```python
import torch

def _softmax(x, axis=-1):
    return torch.softmax(x, dim=axis)
def _gelu(x):
    return torch.nn.functional.gelu(x, approximate="tanh")
def _silu(x):
    return torch.nn.functional.silu(x)
def _sigmoid(x):
    return torch.sigmoid(x)
def _layernorm(x, axis=-1, eps=1e-5):
    m = x.mean(dim=axis, keepdim=True)
    v = x.var(dim=axis, keepdim=True, unbiased=False)
    return (x - m) / torch.sqrt(v + eps)
def _scatter_add(tgt, idx, src, axis=0):
    return tgt.clone().index_add_(axis, idx, src)
def _segment_sum(src, seg, n):
    out = torch.zeros((n,) + src.shape[1:], dtype=src.dtype)
    return out.index_add_(0, seg, src)
def _pad(x, pw):
    flat = tuple(v for pair in reversed(pw) for v in pair)
    return torch.nn.functional.pad(x, flat)

kernel_name = 'recurrent_scan__gqa_block_cached__geglu_ffn__prompt'

def setup_inputs():

    _w = (lambda a: (lambda t: t.to(torch.bfloat16) if t.is_floating_point() else t)(torch.as_tensor(a)))
    def _A_setup():
        B, Sq, D = 1, 2048, 512
        Hq, Hkv, Sk, Dh = 32, 8, 2048, 128
        assert Hq % Hkv == 0, (Hq, Hkv)
        return {
            "x": _w((lambda *s: torch.randn(*s, dtype=torch.bfloat16) * 0.05)(B, Sq, D)),
            "k_cache": _w((lambda *s: torch.randn(*s, dtype=torch.bfloat16) * 0.8)(B, Hkv, Sk, Dh)),
            "v_cache": _w((lambda *s: torch.randn(*s, dtype=torch.bfloat16) * 0.2)(B, Hkv, Sk, Dh)),
            "wq": _w((lambda *s: torch.randn(*s, dtype=torch.bfloat16) * 0.8)(D, Hq * Dh) * (D ** -0.5)),
            "wo": _w((lambda *s: torch.randn(*s, dtype=torch.bfloat16) * 0.2)(Hq * Dh, D) * ((Hq * Dh) ** -0.5)),
        }
    _A_in = _A_setup()

    def _B_setup():
        B, S, D, F = 1, 2048, 512, 1792
        return {
            "x": _w((lambda *s: torch.randn(*s, dtype=torch.bfloat16) * 0.05)(B, S, D)),
            "w_gate": _w((lambda *s: torch.randn(*s, dtype=torch.bfloat16) * 0.1)(D, F)),
            "w_up": _w((lambda *s: torch.randn(*s, dtype=torch.bfloat16) * 0.1)(D, F)),
            "w_down": _w((lambda *s: torch.randn(*s, dtype=torch.bfloat16) * 0.1)(F, D)),
        }
    _B_in = _B_setup()

    return {
        "A_x": _A_in["x"],
        "A_k_cache": _A_in["k_cache"],
        "A_v_cache": _A_in["v_cache"],
        "A_wq": _A_in["wq"],
        "A_wo": _A_in["wo"],
        "B_x": _B_in["x"],
        "B_w_gate": _B_in["w_gate"],
        "B_w_up": _B_in["w_up"],
        "B_w_down": _B_in["w_down"],
    }

def reference(A_x, A_k_cache, A_v_cache, A_wq, A_wo, B_x, B_w_gate, B_w_up, B_w_down):
    def _A_ref(x, k_cache, v_cache, wq, wo):
        B, Sq, D = x.shape
        Hq, Dh = 32, 128
        Hkv = k_cache.shape[1]
        rep = Hq // Hkv
        q = (lambda x, *d: x.permute(*d))((x @ wq).reshape(B, Sq, Hq, Dh), 0, 2, 1, 3)
        k = (lambda x, n, axis: torch.repeat_interleave(x, n, dim=axis))(k_cache, rep, axis=1)
        v = (lambda x, n, axis: torch.repeat_interleave(x, n, dim=axis))(v_cache, rep, axis=1)
        scores = torch.einsum("bhqd,bhkd->bhqk", q, k) * (Dh ** -0.5)
        p = _softmax(scores, axis=-1)
        o = torch.einsum("bhqk,bhkd->bhqd", p, v)
        return (lambda x, *d: x.permute(*d))(o, 0, 2, 1, 3).reshape(B, Sq, Hq * Dh) @ wo

    def _B_ref(x, w_gate, w_up, w_down):
        return (_gelu(x @ w_gate) * (x @ w_up)) @ w_down

    x = A_x
    xn = _layernorm(x, axis=-1)
    s = _A_ref(xn, A_k_cache, A_v_cache, A_wq, A_wo)
    g = _silu(_B_ref(xn, B_w_gate, B_w_up, B_w_down))
    return x + s * g
```

```python
import copy

def rl(f, b, n=1):
    return ["%s%d" % (f, b + i) for i in range(n)]
def rt(f, b, n=1):
    return "%s%d" % (f, b) if n == 1 else "%s[%d:%d]" % (f, b, b + n - 1)

class R:
    def __init__(self, f, b, n=1):
        self.f, self.b, self.n = f, b, n
        lim = {"v": 256, "a": 256, "s": 102}[f]
        assert 0 <= b and b + n <= lim, (f, b, n)
        if n > 1 and f in "va": assert b % 2 == 0, (f, b, n)
        if f == "s" and n == 2: assert b % 2 == 0
        if f == "s" and n >= 4: assert b % 4 == 0
    def __str__(self): return rt(self.f, self.b, self.n)
    def regs(self): return rl(self.f, self.b, self.n)
    def __getitem__(self, i):
        if isinstance(i, tuple): return R(self.f, self.b + i[0], i[1])
        assert 0 <= i < self.n
        return R(self.f, self.b + i, 1)
def V(b, n=1): return R("v", b, n)
def A(b, n=1): return R("a", b, n)
def S(b, n=1): return R("s", b, n)

def regs_of(x):
    if isinstance(x, R): return x.regs()
    if isinstance(x, str) and x in ("vcc", "m0", "exec", "scc"): return [x]
    return []

class I:
    __slots__ = ("text", "kind", "rd", "wr", "srcc", "srcab", "tok", "states", "wide_store", "note")
    def __init__(self, text, kind, rd=(), wr=(), srcc=(), srcab=(), states=1, wide_store=False):
        self.text, self.kind = text, kind
        self.rd, self.wr = list(rd), list(wr)
        self.srcc, self.srcab = list(srcc), list(srcab)
        self.states = states; self.wide_store = wide_store; self.tok = None; self.note = ""

TRANS = ("v_exp_f32", "v_rcp_f32", "v_rsq_f32", "v_sqrt_f32", "v_log_f32")

def fl(x):
    out = []
    for y in x: out += regs_of(y)
    return out

def mfma(d, a, b, c):
    ct = "0" if c == 0 else str(c)
    return I("v_mfma_f32_16x16x32_bf16 %s, %s, %s, %s" % (d, a, b, ct), "mfma", rd=fl([a, b, c]), wr=fl([d]), srcc=fl([c]), srcab=fl([a, b]))
def valu(op, d, *src, mod="", rmw=False, extra_rd=(), extra_wr=()):
    k = "trans" if op in TRANS else "valu"
    if op.startswith("v_permlane"): k = "permlane"
    rd = fl(src) + list(extra_rd); wr = fl([d]) + list(extra_wr)
    if rmw or k == "permlane": rd += fl([d])
    if k == "permlane": wr += fl(src)
    t = "%s %s" % (op, ", ".join([str(d)] + [str(s) for s in src]))
    if mod: t += " " + mod
    i = I(t, k, rd=rd, wr=wr)
    return i
def salu(op, d, *src, scc_w=True, scc_r=False):
    rd = fl(src) + (["scc"] if scc_r else []); wr = fl([d]) + (["scc"] if scc_w else [])
    return I("%s %s" % (op, ", ".join([str(d)] + [str(s) for s in src])), "salu", rd=rd, wr=wr)
def scmp(op, a, b):
    return I("%s %s, %s" % (op, a, b), "salu", rd=fl([a, b]), wr=["scc"])
def dsread(op, d, addr, off=0):
    assert 0 <= off < 65536, off
    return I("%s %s, %s offset:%d" % (op, d, addr, off), "lds", rd=fl([addr]), wr=fl([d]))
def dswrite(op, addr, data, off=0):
    assert 0 <= off < 65536, off
    return I("%s %s, %s offset:%d" % (op, addr, data, off), "lds", rd=fl([addr, data]))
def bload(d, voff, srd, soff, off=0, mod="", n=4):
    assert 0 <= off < 4096
    op = {1: "buffer_load_dword", 2: "buffer_load_dwordx2", 4: "buffer_load_dwordx4"}[n]
    va = "off" if voff is None else str(voff)
    t = "%s %s, %s, %s, %s%s offset:%d%s" % (op, d, va, srd, soff, "" if voff is None else " offen", off, (" " + mod) if mod else "")
    return I(t, "vmem", rd=fl([voff, srd, soff]), wr=fl([d]))
def dma(voff, srd, soff, off=0, mod=""):
    assert 0 <= off < 4096
    t = "buffer_load_dwordx4 %s, %s, %s offen offset:%d%s lds" % (voff, srd, soff, off, (" " + mod) if mod else "")
    return I(t, "dma", rd=fl([voff, srd, soff]) + ["m0"])
def bstore(data, voff, srd, soff, off=0, mod=""):
    assert 0 <= off < 4096
    op = {1: "buffer_store_dword", 2: "buffer_store_dwordx2", 4: "buffer_store_dwordx4"}[data.n]
    va = "off" if voff is None else str(voff)
    t = "%s %s, %s, %s, %s%s offset:%d%s" % (op, data, va, srd, soff, "" if voff is None else " offen", off, (" " + mod) if mod else "")
    return I(t, "vmem", rd=fl([data, voff, srd, soff]), wide_store=(data.n >= 3))
def raw(text, kind="other", rd=(), wr=(), states=1):
    return I(text, kind, rd=fl(rd), wr=fl(wr), states=states)
def nop(n): return I("s_nop %d" % n, "nop", states=n + 1)

class Wait:
    def __init__(self, lg=None, vm=None, lg0=False, vm0=False):
        self.lg, self.vm, self.lg0, self.vm0 = lg, vm, lg0, vm0

class Em:
    def __init__(self):
        self.out = []
        self.lgq = []
        self.vmq = []
        self.pend = {}
        self.smem = False
        self.vm_total = 0
    def label(self, name): self.out.append(I(name + ":", "label", states=0))
    def comment(self, t): self.out.append(I("; " + t, "label", states=0))
    def directive(self, t): self.out.append(I(t, "label", states=0))
    def _retire(self, q, n):
        while len(q) > n:
            i = q.pop(0)
            for r in i.wr:
                if self.pend.get(r) is i: del self.pend[r]
    def wait(self, lg=None, vm=None, lg0=False, vm0=False):
        parts = []
        def cnt(q, toks):
            if not isinstance(toks, (list, tuple)): toks = [toks]
            idx = -1
            for t in toks:
                assert t.tok, "waiting on an op that was not emitted yet: " + t.text
                for k, i in enumerate(q):
                    if i is t: idx = max(idx, k)
            return None if idx < 0 else len(q) - 1 - idx
        nl = 0 if lg0 else (cnt(self.lgq, lg) if lg is not None else None)
        nv = 0 if vm0 else (cnt(self.vmq, vm) if vm is not None else None)
        if nv is not None:
            nv = min(nv, 63); parts.append("vmcnt(%d)" % nv); self._retire(self.vmq, nv)
        if nl is not None:
            nl = min(nl, 15); parts.append("lgkmcnt(%d)" % nl); self._retire(self.lgq, nl)
            if nl == 0: self.smem = False
        if parts:
            self.out.append(I("s_waitcnt " + " ".join(parts), "wait"))
            return True
        return False
    def e(self, i):
        if isinstance(i, Wait):
            return self.wait(i.lg, i.vm, i.lg0, i.vm0)
        if isinstance(i, (list, tuple)):
            for x in i: self.e(x)
            return
        if callable(i):
            return self.e(i())
        for r in i.rd:
            assert r not in self.pend, "read of pending reg %s by '%s' (load '%s')" % (r, i.text, self.pend[r].text)
        for r in i.wr:
            assert r not in self.pend, "write of pending reg %s by '%s' (load '%s')" % (r, i.text, self.pend[r].text)
        self.out.append(i)
        i.tok = True
        if i.kind == "lds":
            self.lgq.append(i)
            assert len(self.lgq) <= 15 or True
            for r in i.wr: self.pend[r] = i
        elif i.kind in ("vmem", "dma"):
            self.vmq.append(i); self.vm_total += 1
            assert len(self.vmq) <= 63, "vmcnt overflow"
            for r in i.wr: self.pend[r] = i
        elif i.kind == "smem":
            self.lgq.append(i)
            for r in i.wr: self.pend[r] = i
        return i
    def text(self):
        return "\n".join(("    " + i.text) if i.kind != "label" else i.text for i in self.out)

def check_hazards(ins, name=""):
    probs = []
    n = len(ins)
    isv = lambda k: k in ("valu", "trans", "permlane")
    for j in range(n):
        c = ins[j]
        if c.kind in ("label",): continue
        dist = 0
        for k in range(j - 1, max(-1, j - 40), -1):
            p = ins[k]
            if p.kind == "label": continue
            need = 0
            pw, pr = set(p.wr), set(p.rd)
            crd, cwr = set(c.rd), set(c.wr)
            if p.kind == "mfma":
                if c.kind == "mfma":
                    if pw & set(c.srcab): need = max(need, 8)
                    ov = pw & set(c.srcc)
                    if ov and not (p.wr == c.srcc): need = max(need, 6)
                    if (pw & cwr) and not (p.wr == c.wr and c.srcc == p.wr):
                        need = max(need, 0)
                elif isv(c.kind):
                    if pw & (crd | cwr): need = max(need, 8)
                    if set(p.srcc) & cwr: need = max(need, 3)
                elif c.kind in ("lds", "vmem", "dma"):
                    if pw & (crd | cwr): need = max(need, 8)
            elif isv(p.kind):
                vw = {r for r in pw if r[0] in "va" and r != "vcc"}
                sw = pw - vw
                if c.kind == "mfma" and vw & crd: need = max(need, 2)
                if p.kind == "trans" and c.kind in ("valu", "permlane") and vw & crd: need = max(need, 1)
                if p.kind == "trans" and c.kind in ("lds", "vmem") and vw & crd: need = max(need, 1)
                if c.kind == "permlane" and vw & crd: need = max(need, 2)
                if ("readfirstlane" in c.text or "readlane" in c.text) and vw & crd: need = max(need, 1)
                if c.kind in ("vmem", "dma") and sw & crd: need = max(need, 5)
                if isv(c.kind) and sw & crd: need = max(need, 2)
                if c.kind == "salu" and sw & crd: need = max(need, 2)
                if "dpp" in c.text and vw & crd: need = max(need, 2)
                if "exec" in pw and c.kind == "mfma": need = max(need, 4)
            elif p.kind == "salu":
                if "m0" in pw and c.kind == "dma": need = max(need, 1)
            elif p.kind == "vmem" and p.wide_store:
                if isv(c.kind) and (pr & cwr): need = max(need, 2)
                elif pr & cwr: need = max(need, 1)
            if need > dist:
                probs.append("%s hazard: '%s' -> '%s' dist %d need %d" % (name, p.text, c.text, dist, need))
            dist += p.states
            if dist >= 20: break
    return probs
```

```python
import sys, os, math, struct
from asmgen import *

KN = "recurrent_scan__gqa_block_cached__geglu_ffn__prompt_kernel"
DUMP = os.environ.get("DUMP", "")
STAMP = int(os.environ.get("STAMP", "0"))

def f2u(x): return struct.unpack("<I", struct.pack("<f", x))[0]
def hx(x): return "0x%x" % (x & 0xffffffff)

S_X, S_K, S_V, S_WQ, S_WO, S_WG, S_WU, S_WD, S_OUT, S_DBG, S_H, S_SP = [S(4 + 4 * i, 4) for i in range(12)]
s_g, s_qb, s_w = S(52), S(53), S(54)
s_t0, s_t1, s_t2, s_t3 = S(55), S(56), S(57), S(58)
s_m0b = S(59)
s_off = S(60)
s_cnt = S(61)
s_kK, s_kV = S(62), S(63)
s_retry = S(64)
s_h0, s_h1 = S(65), S(66)
s_hl = S(67)
s_ka = S(68, 16); s_kb = S(84, 8)
s_pair = S(92, 2); s_pair2 = S(94, 2)
S_DMP = S(96, 4)
s_st = S(68, 4)

v_tid, v_lane, v_lin, v_t = V(0), V(1), V(2), V(3)
v_tr = [V(4, 4), V(8, 4)]
v_dA, v_dB = V(12, 4), V(16, 4)
v_ka = V(20, 4); v_va = V(24, 8); v_kd = V(32, 4); v_vd = V(36, 2)
v_wl = V(38)
v_c = V(39)
v_l0, v_l1 = V(40, 4), V(44, 4)
v_lsave = V(16, 4)
v_negm = V(48, 16)
v_S = [V(64, 32), V(96, 32)]
v_acc = V(128, 128)
a_ring = A(128, 32)
a_B = A(160, 32)
a_Q = A(0, 64)
a_F = A(192, 64)

RING = 65536
MARK = 0x7fc17fc1
WS_SP = 8 << 20
WS_DUMP = 32 << 20

em = Em()
e = em.e

def srd(dst, lo, hi, size, off_s=None):
    if off_s is None:
        e(salu("s_mov_b32", dst[0], lo, scc_w=False)); e(salu("s_mov_b32", dst[1], hi, scc_w=False))
    else:
        e(salu("s_add_u32", dst[0], lo, off_s)); e(salu("s_addc_u32", dst[1], hi, 0, scc_r=True))
    e(salu("s_mov_b32", dst[2], hx(size), scc_w=False)); e(salu("s_mov_b32", dst[3], "0x20000", scc_w=False))

stamp_n = [0]
def stamp():
    if not STAMP: return
    k = stamp_n[0]; stamp_n[0] += 1
    e(raw("s_memtime %s" % S(68, 2), "other", wr=[S(68, 2)]))
    e(raw("s_memrealtime %s" % S(70, 2), "other", wr=[S(70, 2)]))
    e(raw("s_waitcnt lgkmcnt(0)", "wait")); em._retire(em.lgq, 0)
    for i in range(4): e(valu("v_writelane_b32", v_c, S(68 + i), i, rmw=True))
    e(salu("s_lshl_b32", S(72), S(2), 2)); e(salu("s_add_u32", S(72), S(72), s_w)); e(salu("s_lshl_b32", S(72), S(72), 9))
    e(salu("s_mov_b64", S(74, 2), "exec", scc_w=False)); e(raw("s_mov_b64 exec, 15", "salu", wr=["exec"]))
    e(valu("v_lshlrev_b32", v_t, 2, v_lane))
    e(bstore(v_c, v_t, S_DMP, S(72), off=k * 16))
    e(raw("s_mov_b64 exec, %s" % S(74, 2), "salu", wr=["exec"]))

def dump_regs(regs, finish=True):
    em.wait(lg0=True, vm0=True)
    e(nop(7)); e(nop(7))
    n = len(regs)
    e(salu("s_lshl_b32", s_t0, S(2), 2)); e(salu("s_add_u32", s_t0, s_t0, s_w)); e(salu("s_mul_i32", s_t0, s_t0, n * 256, scc_w=False))
    e(valu("v_lshlrev_b32", v_t, 2, v_lane))
    for k, r in enumerate(regs):
        e(bstore(r, v_t, S_DMP, s_t0, off=0))
        e(salu("s_add_u32", s_t0, s_t0, 256))
        if k % 32 == 31: em.wait(vm0=True)
    em.wait(vm0=True)
    if finish: e(raw("s_endpgm"))

def red4(op, x, tmp):
    for sw in ("v_permlane32_swap_b32", "v_permlane16_swap_b32"):
        for a, t in zip(x, tmp): e(valu("v_mov_b32", t, a))
        if len(x) < 3: e(nop(1))
        for a, t in zip(x, tmp): e(valu(sw, a, t))
        for a, t in zip(x, tmp): e(valu(op, a, a, t))

e(scmp("s_cmp_ge_u32", S(2), 256)); e(raw("s_cbranch_scc1 L_end", rd=["scc"]))
i0 = e(I("s_load_dwordx16 %s, s[0:1], 0" % s_ka, "smem", wr=s_ka.regs()))
i1 = e(I("s_load_dwordx8 %s, s[0:1], 64" % s_kb, "smem", wr=s_kb.regs()))
e(salu("s_and_b32", s_g, S(2), 7)); e(salu("s_lshr_b32", s_qb, S(2), 3))
e(valu("v_and_b32", v_lane, 63, v_tid))
e(valu("v_lshrrev_b32", v_t, 6, v_tid))
e(valu("v_lshlrev_b32", v_lin, 4, v_lane))
e(valu("v_readfirstlane_b32", s_w, v_t))
vq, vG, vr, vc_, vx, vy, vz = [V(40 + i) for i in range(7)]
e(valu("v_and_b32", vq, 15, v_lane)); e(valu("v_lshrrev_b32", vG, 4, v_lane))
vxo = V(47)
e(valu("v_lshl_add_u32", vxo, v_t, 4, vq)); e(valu("v_lshlrev_b32", vxo, 10, vxo)); e(valu("v_lshl_add_u32", vxo, vG, 4, vxo))
e(salu("s_lshl_b32", s_t0, s_qb, 16))
em.wait(lg0=True)
srd(S_X, s_ka[0], s_ka[1], 65536, s_t0)
v_xp = V(64, 64)
xl = []
for ks in range(16):
    xl.append(e(bload(v_xp[(4 * ks, 4)], vxo, S_X, 0, off=64 * ks)))
srd(S_OUT, s_kb[2], s_kb[3], 65536, s_t0)
e(salu("s_lshl_b32", s_t1, s_g, 19))
srd(S_K, s_ka[2], s_ka[3], 524288, s_t1)
srd(S_V, s_ka[4], s_ka[5], 524288, s_t1)
srd(S_WO, s_ka[8], s_ka[9], 524288, s_t1)
srd(S_WQ, s_ka[6], s_ka[7], 4 << 20)
srd(S_WG, s_ka[12], s_ka[13], 1835008)
srd(S_WU, s_ka[14], s_ka[15], 1835008)
srd(S_WD, s_kb[0], s_kb[1], 1835008)
srd(S_DBG, s_kb[4], s_kb[5], 256)
e(salu("s_mul_i32", s_t1, s_qb, 229376, scc_w=False))
srd(S_H, s_kb[6], s_kb[7], 229376, s_t1)
e(salu("s_lshl_b32", s_t1, s_qb, 19)); e(salu("s_add_u32", s_t1, s_t1, hx(WS_SP)))
srd(S_SP, s_kb[6], s_kb[7], 524288, s_t1)
if DUMP or STAMP:
    e(salu("s_mov_b32", s_t1, hx(WS_DUMP), scc_w=False))
    srd(S_DMP, s_kb[6], s_kb[7], 200 << 20, s_t1)
e(salu("s_lshl_b32", s_m0b, s_w, 12)); e(salu("s_add_u32", s_m0b, s_m0b, RING))
e(salu("s_and_b32", s_t1, s_g, 1)); e(salu("s_lshl_b32", s_t1, s_t1, 2)); e(salu("s_add_u32", s_t1, s_t1, s_w))
e(scmp("s_cmp_eq_u32", s_w, 3)); e(salu("s_cselect_b32", s_t1, 3, s_t1, scc_w=False, scc_r=True))
e(salu("s_lshr_b32", s_t2, s_g, 1)); e(salu("s_mul_i32", s_t2, s_t2, 7, scc_w=False)); e(salu("s_add_u32", s_t1, s_t1, s_t2))
e(salu("s_lshl_b32", s_h0, s_t1, 13)); e(salu("s_add_u32", s_h1, s_h0, 4096))
e(salu("s_lshl_b32", s_t1, s_t1, 7))
e(salu("s_lshl_b32", s_t2, s_g, 2)); e(salu("s_add_u32", s_t2, s_t2, s_w)); e(salu("s_lshl_b32", s_t2, s_t2, 8))

def dma_voffs(dst, stride, colbase_s, perm):
    for j in range(4):
        e(valu("v_bfe_u32", vx, v_lane, 1, 2)); e(valu("v_bfe_u32", vy, v_lane, 4, 1))
        e(valu("v_xor_b32", vx, vx, vy))
        if j & 1: e(valu("v_xor_b32", vx, 2, vx))
        e(valu("v_and_b32", vy, 1, v_lane)); e(valu("v_lshlrev_b32", vy, 4, vy)); e(valu("v_lshl_add_u32", vx, vx, 5, vy))
        if not perm:
            e(valu("v_lshrrev_b32", vy, 3, v_lane)); rowadd = 8 * j
        else:
            e(valu("v_bfe_u32", vy, v_lane, 3, 2)); e(valu("v_bfe_u32", vz, v_lane, 5, 1)); e(valu("v_lshl_add_u32", vy, vz, 4, vy)); rowadd = 4 * j
        e(valu("v_mul_u32_u24", vy, stride, vy))
        e(valu("v_add3_u32", vx, vx, vy, colbase_s))
        e(valu("v_add_u32", dst[j], rowadd * stride - j * 1024, vx))

dma_voffs(v_dA, 3584, s_t1, False)
dma_voffs(v_dB, 8192, s_t2, False)

def m0set(p): return salu("s_add_u32", "m0", s_m0b, p * 16384)
def s1_dma(m):
    p = m % 6
    if m < 32:
        s, h = m >> 1, m & 1
        return [m0set(p), salu("s_mov_b32", s_off, s * 32 * 3584, scc_w=False)], [dma(v_dA[j], S_WU if h else S_WG, s_off, j * 1024) for j in range(4)]
    if m < 64:
        s, h = (m - 32) >> 1, m & 1
        return [m0set(p), salu("s_mov_b32", s_off, s * 32 * 8192 + 128 * h, scc_w=False)], [dma(v_dB[j], S_WQ, s_off, j * 1024) for j in range(4)]
    if m == 64:
        return [m0set(p), salu("s_mov_b32", s_off, 0, scc_w=False)], [dma(v_kd[j], S_K, s_off, j * 1024) for j in range(4)]
    if m == 65:
        return [m0set(p), salu("s_mov_b32", s_off, 8192, scc_w=False)], [dma(v_kd[j], S_K, s_off, j * 1024) for j in range(4)]
    if m == 66:
        return [m0set(p), salu("s_mov_b32", s_off, 0, scc_w=False)], [dma(v_vd[j & 1], S_V, s_off, j * 1024) for j in range(4)]
    return None
dtok = {}
for m in range(6):
    sa, dm = s1_dma(m)
    e(sa);
    for d in dm: e(d)
    dtok[m] = dm[3]

vw = V(48)
e(salu("s_mul_i32", s_t1, s_g, 448, scc_w=False)); e(salu("s_and_b32", s_t1, s_t1, hx(~127)))
e(salu("s_mul_i32", s_t2, s_qb, 16 * 3584, scc_w=False)); e(salu("s_add_u32", s_t1, s_t1, s_t2))
e(valu("v_lshrrev_b32", vx, 2, v_lane)); e(valu("v_mul_u32_u24", vx, 3584, vx)); e(valu("v_and_b32", vy, 3, v_lane)); e(valu("v_lshl_add_u32", vx, vy, 7, vx))
e(scmp("s_cmp_ge_u32", s_w, 2)); e(raw("s_cbranch_scc1 L_warm_q", rd=["scc"]))
e(scmp("s_cmp_eq_u32", s_w, 1)); e(raw("s_cbranch_scc1 L_warm_u", rd=["scc"]))
w0 = raw("buffer_load_dword %s, %s, %s, %s offen" % (vw, vx, S_WG, s_t1)); e(w0)
e(raw("s_branch L_warm_done"))
em.label("L_warm_u")
e(raw("buffer_load_dword %s, %s, %s, %s offen" % (vw, vx, S_WU, s_t1)))
e(raw("s_branch L_warm_done"))
em.label("L_warm_q")
e(salu("s_lshl_b32", s_t1, s_qb, 4)); e(salu("s_lshl_b32", s_t2, s_w, 3)); e(salu("s_add_u32", s_t1, s_t1, s_t2)); e(salu("s_sub_u32", s_t1, s_t1, 16))
e(salu("s_lshl_b32", s_t1, s_t1, 13)); e(salu("s_lshl_b32", s_t2, s_g, 10)); e(salu("s_add_u32", s_t1, s_t1, s_t2))
e(valu("v_lshrrev_b32", vx, 3, v_lane)); e(valu("v_lshlrev_b32", vx, 13, vx)); e(valu("v_and_b32", vy, 7, v_lane)); e(valu("v_lshl_add_u32", vx, vy, 7, vx))
e(raw("buffer_load_dword %s, %s, %s, %s offen" % (vw, vx, S_WQ, s_t1)))
em.label("L_warm_done")
wtok = I("; warm", "vmem", wr=vw.regs()); em.vmq.append(wtok); em.pend[str(vw)] = wtok
e(raw("s_getpc_b64 %s" % s_pair, "salu", wr=[s_pair]))
em.label("L_pc0")
e(valu("v_lshlrev_b32", vy, 7, v_tid))
for k in range(2):
    e(valu("v_min_u32", vx, "L_code_end-L_pc0-4", vy))
    e(I("global_load_dword %s, %s, %s" % (V(49 + k), vx, s_pair), "vmem", rd=vx.regs() + s_pair.regs(), wr=V(49 + k).regs()))
    if k == 0: e(valu("v_add_u32", vy, 0x8000, vy))

e(valu("v_bfe_u32", vr, v_lane, 2, 2)); e(valu("v_and_b32", vc_, 3, v_lane))
e(valu("v_lshlrev_b32", vx, 10, vG)); e(valu("v_lshl_add_u32", vx, vr, 7, vx)); e(valu("v_lshl_add_u32", vx, vc_, 3, vx)); e(valu("v_add_u32", vx, s_m0b, vx))
e(valu("v_lshrrev_b32", vy, 1, vr)); e(valu("v_and_b32", vz, 1, vG)); e(valu("v_lshl_add_u32", vy, vz, 1, vy))
for u in range(4):
    e(valu("v_xor_b32", vz, u, vy)); e(valu("v_lshl_add_u32", v_tr[0][u], vz, 5, vx)); e(valu("v_add_u32", v_tr[1][u], 3 * 16384, v_tr[0][u]))
e(valu("v_xor_b32", vy, vG, vq))
for ds in range(4):
    e(valu("v_xor_b32", vz, 4 * ds, vy)); e(valu("v_lshlrev_b32", vz, 4, vz)); e(valu("v_lshl_add_u32", vz, vq, 8, vz)); e(valu("v_add_u32", v_ka[ds], RING + 4 * 16384, vz))
e(valu("v_lshl_add_u32", vx, vG, 2, vr)); e(valu("v_and_b32", vy, 7, vx)); e(valu("v_lshlrev_b32", vx, 8, vx)); e(valu("v_lshl_add_u32", vx, vc_, 3, vx)); e(valu("v_add_u32", vx, RING, vx))
for db in range(8):
    e(valu("v_xor_b32", vz, db, vy)); e(valu("v_lshl_add_u32", v_va[db], vz, 5, vx))
e(salu("s_lshl_b32", s_t1, s_w, 12))
e(valu("v_lshlrev_b32", vx, 8, vG)); e(valu("v_add_u32", vx, s_t1, vx))
for j in range(4):
    e(valu("v_add_u32", vy, 4 * j, vG)); e(valu("v_xor_b32", vy, vy, vq)); e(valu("v_lshl_add_u32", v_kd[j], vy, 4, vx))
e(valu("v_and_b32", vz, 1, v_lane)); e(valu("v_lshl_add_u32", vx, vz, 4, vx))
for j in range(2):
    e(valu("v_add_u32", vy, 4 * j, vG)); e(valu("v_lshrrev_b32", vz, 1, vq)); e(valu("v_xor_b32", vy, vy, vz)); e(valu("v_lshl_add_u32", v_vd[j], vy, 5, vx))
e(salu("s_lshl_b32", s_t1, s_w, 14)); e(valu("v_add_u32", v_wl, s_t1, v_lin))
e(salu("s_mov_b32", s_retry, 0, scc_w=False))
stamp()

v_f = V(128, 128)
acc = [V(52, 2), V(54, 2), V(56, 2), V(58, 2)]
for ks in range(16):
    em.wait(vm=xl[ks])
    for k in range(4):
        p = 4 * ks + k
        e(valu("v_lshlrev_b32", v_f[2 * p], 16, v_xp[p])); e(valu("v_and_b32", v_f[2 * p + 1], "0xffff0000", v_xp[p]))
    for k in range(4):
        p = 4 * ks + k
        if ks == 0: e(valu("v_mov_b64", acc[k], v_f[(2 * p, 2)]))
        else: e(valu("v_pk_add_f32", acc[k], acc[k], v_f[(2 * p, 2)]))
e(valu("v_pk_add_f32", acc[0], acc[0], acc[1])); e(valu("v_pk_add_f32", acc[2], acc[2], acc[3])); e(valu("v_pk_add_f32", acc[0], acc[0], acc[2]))
vsum, vtmp, vmb, vdm = V(60), V(61), V(62), V(63)
e(valu("v_add_f32", vsum, acc[0][0], acc[0][1]))
red4("v_add_f32", [vsum], [vtmp])
e(valu("v_mul_f32", vsum, hx(f2u(1.0 / 512)), vsum))
e(valu("v_cvt_pk_bf16_f32", vmb, vsum, vsum)); e(valu("v_lshlrev_b32", vmb, 16, vmb))
e(valu("v_sub_f32", vdm, vsum, vmb))
vneg = V(52, 2)
e(valu("v_sub_f32", vneg[0], 0, vmb))
acc2 = [V(54, 2), V(56, 2), V(58, 2)]
for p in range(64):
    e(valu("v_pk_add_f32", v_f[(2 * p, 2)], v_f[(2 * p, 2)], vneg, mod="op_sel_hi:[1,0]"))
for p in range(64):
    a_ = acc2[p % 3]
    if p < 3: e(valu("v_pk_mul_f32", a_, v_f[(2 * p, 2)], v_f[(2 * p, 2)]))
    else: e(valu("v_pk_fma_f32", a_, v_f[(2 * p, 2)], v_f[(2 * p, 2)], a_))
e(valu("v_pk_add_f32", acc2[0], acc2[0], acc2[1])); e(valu("v_pk_add_f32", acc2[0], acc2[0], acc2[2]))
e(valu("v_add_f32", vsum, acc2[0][0], acc2[0][1]))
red4("v_add_f32", [vsum], [vtmp])
e(valu("v_mul_f32", vsum, hx(f2u(1.0 / 512)), vsum))
e(valu("v_fma_f32", vsum, "-" + str(vdm), vdm, vsum, extra_rd=vdm.regs()))
e(valu("v_max_f32", vsum, 0, vsum))
e(valu("v_cvt_pk_bf16_f32", vsum, vsum, vsum)); e(valu("v_lshlrev_b32", vsum, 16, vsum))
e(valu("v_add_f32", vsum, hx(f2u(1e-5)), vsum))
e(valu("v_cvt_pk_bf16_f32", vsum, vsum, vsum)); e(valu("v_lshlrev_b32", vsum, 16, vsum))
e(valu("v_sqrt_f32", vsum, vsum)); e(nop(0))
e(valu("v_cvt_pk_bf16_f32", vsum, vsum, vsum)); e(valu("v_lshlrev_b32", vsum, 16, vsum))
e(valu("v_rcp_f32", vneg[0], vsum)); e(nop(0))
for ks in range(16):
    for k in range(4):
        p = 4 * ks + k
        e(valu("v_pk_mul_f32", v_f[(2 * p, 2)], v_f[(2 * p, 2)], vneg, mod="op_sel_hi:[1,0]"))
    for k in range(4):
        p = 4 * ks + k
        e(valu("v_cvt_pk_bf16_f32", v_xp[p], v_f[2 * p], v_f[2 * p + 1]))
    e(dswrite("ds_write_b128", v_wl, v_xp[(4 * ks, 4)], ks * 1024))
if DUMP == "ln": dump_regs([v_xp[i] for i in range(64)])
em.wait(lg0=True)
e(raw("s_barrier"))
stamp()

def run_stream(NH, dmaf, dtok, accf, Bf, extra, vstream, LOOK=6, nq=4):
    NG = 4 * NH
    rtok = {}
    def reads(g):
        m, u = g >> 2, g & 3
        p = m % 6
        d = a_ring[((g % 8) * 4, 4)]
        r = [dsread("ds_read_b64_tr_b16", d[(2 * h2, 2)], v_tr[p // 3][u], (p % 3) * 16384 + h2 * 512) for h2 in range(2)]
        rtok[g] = r[1]
        return r
    em.wait(vm=dtok[0])
    for g in range(3): e(reads(g))
    for pre in extra.get(-1, []): e(pre[1])
    em.wait(lg0=True)
    vi = 0
    for g in range(NG):
        m, u = g >> 2, g & 3
        gaps = [[], [], [], []]; cap = [2, 2, 2, 2]
        if g + 3 < NG:
            if (g + 3) & 3 == 0: gaps[0].append(Wait(vm=dtok[(g + 3) >> 2]))
            r = reads(g + 3); gaps[0].append(r[0]); gaps[1].append(r[1]); cap[0] -= 1; cap[1] -= 1
        md, j = (g + 4 * LOOK - 4) >> 2, (g + 4 * LOOK - 4) & 3
        if md >= LOOK:
            if j == 0: cur = dmaf(md)
            if cur is not None:
                if j == 0: gaps[2] += cur[0]
                items = cur[1][j::4]
                for it in items: gaps[3].append(it); cap[3] -= 1
                if j == 3: dtok[md] = cur[1][3]
        for (gp, it, cost) in extra.get(g, []):
            gaps[gp].append(it); cap[gp] -= cost
        if g + 1 < NG: gaps[3].insert(0, Wait(lg=rtok[g + 1]))
        d = a_ring[((g % 8) * 4, 4)]
        for qb in range(nq):
            ac, first = accf(m, u, qb)
            e(mfma(ac, d, Bf(m, qb), 0 if first else ac))
            for it in gaps[qb]: e(it)
            c = cap[qb]
            quota = vstream.quota(g) if vstream else 0
            while vstream and vstream.has(g) and (c > 0 or quota > 0):
                it = vstream.peek()
                cost = 2 if it.kind == "trans" else 1
                if cost > c and quota <= 0: break
                if cost > c: quota -= 1; vstream.used_quota()
                e(vstream.pop()); c -= cost
    if vstream:
        while vstream.has(10 ** 9): e(vstream.pop())

class VStream:
    def __init__(self, items, start, end, extra_total=0):
        self.items = items; self.i = 0; self.start = start; self.end = end
        self.extra_total = extra_total; self.used = 0
    def has(self, g): return self.i < len(self.items) and g >= self.start
    def peek(self): return self.items[self.i]
    def pop(self): self.i += 1; return self.items[self.i - 1]
    def quota(self, g):
        if g < self.start: return 0
        allowed = (g - self.start + 1) * self.extra_total // max(1, self.end - self.start)
        return 1 if allowed > self.used else 0
    def used_quota(self): self.used += 1

def s1_acc(m, u, qb):
    h = m & 1
    idx = ((h * 4 + u) * 4 + qb) * 4
    if m < 32: return A(idx, 4), m < 2
    return v_acc[(idx, 4)], m < 34
def s1_B(m, qb): return a_B[(((m >> 1) & 1) * 16 + qb * 4, 4)]
extra = {}
btok = {}
def bread(s, qb): return dsread("ds_read_b128", a_B[((s & 1) * 16 + qb * 4, 4)], v_lin, (qb * 16 + (s % 16)) * 1024)
extra[-1] = [(0, bread(0, qb), 1) for qb in range(4)]
for s in range(1, 32):
    for qb in range(4):
        extra.setdefault(8 * (s - 1) + 1 + qb, []).append((2, bread(s, qb), 1))
C0 = -2.0 * math.sqrt(2.0 / math.pi) * math.log2(math.e); C1 = C0 * 0.044715
vc0, vc1 = V(40), V(41)
gel = [valu("v_mov_b32", vc0, hx(f2u(C0))), valu("v_mov_b32", vc1, hx(f2u(C1)))]
hst = []
tb = 0
for i in range(2):
    for qb in range(4):
        pk = V(44 + 4 * (tb % 4), 4); tb += 1
        for b in range(2):
            u = 2 * i + b
            T = [V(64 + 16 * ((2 * tb + b) % 4) + k) for k in range(16)]
            G_, U_, X_ = T[0:4], T[4:8], T[8:12]
            ga = lambda r: A((u * 4 + qb) * 4 + r); ua = lambda r: A(((4 + u) * 4 + qb) * 4 + r)
            for r in range(4): gel.append(valu("v_accvgpr_read_b32", G_[r], ga(r)))
            for r in range(4): gel.append(valu("v_accvgpr_read_b32", U_[r], ua(r)))
            for r in range(4): gel.append(valu("v_mul_f32", X_[r], G_[r], G_[r]))
            for r in range(4): gel.append(valu("v_fma_f32", X_[r], X_[r], vc1, vc0))
            for r in range(4): gel.append(valu("v_mul_f32", X_[r], X_[r], G_[r]))
            for r in range(4): gel.append(valu("v_exp_f32", X_[r], X_[r]))
            for r in range(4): gel.append(valu("v_mul_f32", G_[r], G_[r], U_[r]))
            for r in range(4): gel.append(valu("v_add_f32", X_[r], "1.0", X_[r]))
            for r in range(4): gel.append(valu("v_rcp_f32", X_[r], X_[r]))
            gel.append(nop(0))
            for r in range(4): gel.append(valu("v_mul_f32", G_[r], G_[r], X_[r]))
            for k in range(2): gel.append(valu("v_cvt_pk_bf16_f32", pk[2 * b + k], G_[2 * k], G_[2 * k + 1]))
        st = bstore(pk, v_lin, S_H, s_h1 if i else s_h0, off=qb * 1024, mod="sc1")
        gel.append(st); hst.append(st)
vs = VStream(gel, 131, 250, extra_total=300)
run_stream(64, s1_dma, dtok, s1_acc, s1_B, extra, vs)
if DUMP == "qacc": dump_regs([v_acc[i] for i in range(128)])
stamp()

em.wait(vm=hst[-1], lg0=True)
e(raw("s_barrier"))
def signal(off_s_expr_add, lab):
    e(scmp("s_cmp_lg_u32", s_w, 0)); e(raw("s_cbranch_scc1 %s" % lab, rd=["scc"]))
    e(salu("s_lshl_b32", s_t0, s_qb, 2))
    if off_s_expr_add: e(salu("s_add_u32", s_t0, s_t0, off_s_expr_add))
    e(valu("v_mov_b32", v_t, 1))
    e(raw("s_mov_b64 exec, 1", "salu", wr=["exec"]))
    e(raw("buffer_atomic_add %s, off, %s, %s sc1" % (v_t, S_DBG, s_t0)))
    e(raw("s_mov_b64 exec, -1", "salu", wr=["exec"]))
    em.label(lab)
signal(0, "L_sigH")
QS = math.log2(math.e) / math.sqrt(128.0)
vqs = V(40, 2); vqw = V(42)
e(valu("v_mov_b32", vqs[0], hx(f2u(QS))))
e(valu("v_and_b32", v_t, 15, v_lane)); e(valu("v_bfe_u32", vqw, v_lane, 5, 1)); e(valu("v_lshl_add_u32", v_t, vqw, 4, v_t)); e(valu("v_lshlrev_b32", v_t, 4, v_t))
e(valu("v_bfe_u32", vqw, v_lane, 4, 1)); e(valu("v_lshl_add_u32", vqw, vqw, 3, v_t))
e(salu("s_lshl_b32", s_t1, s_w, 14)); e(valu("v_add_u32", vqw, s_t1, vqw))
for blk in range(8):
    for qb in range(4):
        a_ = v_acc[((blk * 4 + qb) * 4, 4)]
        t = V(64 + 2 * ((blk * 4 + qb) % 8), 2)
        for k in range(2): e(valu("v_pk_mul_f32", a_[(2 * k, 2)], a_[(2 * k, 2)], vqs, mod="op_sel_hi:[1,0]"))
        for k in range(2): e(valu("v_cvt_pk_bf16_f32", t[k], a_[2 * k], a_[2 * k + 1]))
        if len(em.lgq) >= 7: em.wait(lg=em.lgq[-7])
        e(dswrite("ds_write_b64", vqw, t, (qb * 4 + (blk >> 1)) * 1024 + (blk & 1) * 512))
em.wait(lg0=True)
for f in range(16):
    e(dsread("ds_read_b128", a_Q[(4 * f, 4)], v_wl, f * 1024))
    if f == 7: pass
em.label("L_att_start")
for i in range(64): e(valu("v_mov_b64", v_acc[(2 * i, 2)], 0))
for i in range(4): e(valu("v_mov_b32", v_l0[i], 0)); e(valu("v_mov_b32", v_l1[i], 0))
em.wait(vm0=True, lg0=True)
e(raw("s_barrier"))
if DUMP == "q": dump_regs([a_Q[i] for i in range(64)])
stamp()

def Qf(qb, ds): return a_Q[((qb * 4 + ds) * 4, 4)]
def Of(db, qb): return v_acc[((db * 4 + qb) * 4, 4)]
def fr(f): return a_ring[((f % 8) * 4, 4)]
def kslot(par): return 16384 if par == 0 else 0
def vslot(par): return 0 if par == 0 else 16384
def frag_reads(par, f):
    if f >= 32: par ^= 1; f -= 32
    d = fr(f)
    if f < 8 or 16 <= f < 24:
        kb = (f >> 2) if f < 8 else 2 + ((f - 16) >> 2)
        return [dsread("ds_read_b128", d, v_ka[f & 3], kslot(par) + kb * 4096)]
    ks2 = 0 if f < 16 else 1
    db = f & 7
    return [dsread("ds_read_b64_tr_b16", d[(2 * h, 2)], v_va[db], vslot(par) + ks2 * 8192 + h * 4096) for h in range(2)]
def read_sched(g):
    r = []
    if g + 3 < 24 or g >= 29: r.append(g + 3)
    if 19 <= g <= 26: r.append(g + 5)
    return r
def sm_val(g, k):
    if 7 <= g <= 22: b = 1; n = 2 * (g - 7) + k
    else: b = 0; n = 2 * ((g - 23) % 32) + k
    kb, qb, r = n >> 4, (n >> 2) & 3, n & 3
    return b, qb, kb, r
def sm_items(g):
    ex, ad = [], []
    for k in range(2):
        b, qb, kb, r = sm_val(g, k)
        x = v_S[b][qb * 8 + kb * 4 + r]
        l = (v_l1 if b else v_l0)[qb]
        ex.append(valu("v_exp_f32", x, x)); ad.append(valu("v_add_f32", l, l, x))
    b, qb, kb, r = sm_val((g - 1) % 32, 0)
    cv = valu("v_cvt_pk_bf16_f32", v_S[b][qb * 8 + kb * 2 + (r >> 1)], v_S[b][qb * 8 + kb * 4 + r], v_S[b][qb * 8 + kb * 4 + r + 1])
    return ex, ad, cv
def att_dma(par, g):
    if g >= 29: k = g - 29; sp = par
    elif g <= 4: k = g + 3; sp = par ^ 1
    else: return [], None
    sal = []
    if k == 0: sal = [salu("s_add_u32", "m0", s_m0b, 4 * 16384 + kslot(sp))]
    if k == 4: sal = [salu("s_add_u32", "m0", s_m0b, vslot(sp))]
    if k < 4: return sal, dma(v_kd[k], S_K, s_kK, k * 1024)
    return sal, dma(v_vd[k & 1], S_V, s_kV, (k - 4) * 1024)
ftok = {}
def att_group(par, g, do_mfma=True, do_mem=True, do_cvt=True, last=False):
    ex, ad, cv = sm_items(g)
    mem = []
    sal = []
    if do_mem:
        for f in read_sched(g):
            r = frag_reads(par, f); mem += r; ftok[f % 32] = r
        sal, d = att_dma(par, g)
        if d is not None: mem.append(d)
    gaps = [[], [], [], []]
    if g == 29 and do_mem:
        gaps[0] += [Wait(lg0=True, vm0=True), raw("s_barrier")]
    gaps[0] += sal
    if g == 6 and do_mem: gaps[0].append(salu("s_add_u32", s_kK, s_kK, 16384))
    if g == 7 and do_mem: gaps[0].append(salu("s_add_u32", s_kV, s_kV, 16384))
    if g == 23 and par == 1 and do_mfma:
        gaps[0] += [valu("v_mov_b32", v_lsave[i], v_l0[i]) for i in range(4)]
    if len(mem) > 2: gaps[0].append(mem[2])
    gaps[0].append(ex[0])
    if len(mem) > 0: gaps[1].append(mem[0])
    if len(mem) == 0 and do_cvt: gaps[1].append(cv)
    gaps[1].append(ad[0])
    if do_mem: gaps[2].append(Wait(lg=ftok.get((g + 1) % 32)))
    if last and g == 30: gaps[2].append(salu("s_sub_u32", s_cnt, s_cnt, 1))
    gaps[2].append(ex[1])
    if len(mem) > 1: gaps[3].append(mem[1])
    if len(mem) > 0 and do_cvt: gaps[3].append(cv)
    gaps[3].append(ad[1])
    for qb in range(4):
        if do_mfma:
            if g < 8 or 16 <= g < 24:
                b = 1 if g < 8 else 0
                kb, ds = (g >> 2) & 1, g & 3
                d = v_S[b][(qb * 8 + kb * 4, 4)]
                e(mfma(d, fr(g), Qf(qb, ds), v_negm[(qb * 4, 4)] if ds == 0 else d))
            else:
                b = 0 if g < 16 else 1
                e(mfma(Of(g & 7, qb), fr(g), v_S[b][(qb * 8, 4)], Of(g & 7, qb)))
        else:
            if qb & 1: e(nop(0))
        for it in gaps[qb]: e(it)

pr = [dsread("ds_read_b128", fr(f), v_ka[f & 3], (f >> 2) * 4096) for f in range(8)]
for r in pr: e(r)
e(scmp("s_cmp_lg_u32", s_retry, 0)); e(raw("s_cbranch_scc1 L_have_max", rd=["scc"]))
for i in range(16): e(valu("v_mov_b32", v_negm[i], 0))
em.label("L_have_max")
for f in range(8):
    em.wait(lg=pr[f])
    for qb in range(4):
        d = v_S[0][(qb * 8 + (f >> 2) * 4, 4)]
        e(mfma(d, fr(f), Qf(qb, f & 3), v_negm[(qb * 4, 4)] if (f & 3) == 0 else d))
e(salu("s_mov_b32", s_kK, 16384 + 8192, scc_w=False)); e(salu("s_mov_b32", s_kV, 16384, scc_w=False)); e(salu("s_mov_b32", s_cnt, 16, scc_w=False))
e(scmp("s_cmp_lg_u32", s_retry, 0)); e(raw("s_cbranch_scc1 L_have_max2", rd=["scc"]))
e(nop(3))
mx = [V(96 + i) for i in range(4)]; mt = [V(100 + i) for i in range(4)]
for qb in range(4): e(valu("v_max3_f32", mx[qb], v_S[0][qb * 8], v_S[0][qb * 8 + 1], v_S[0][qb * 8 + 2]))
for qb in range(4): e(valu("v_max3_f32", mx[qb], mx[qb], v_S[0][qb * 8 + 3], v_S[0][qb * 8 + 4]))
for qb in range(4): e(valu("v_max3_f32", mx[qb], mx[qb], v_S[0][qb * 8 + 5], v_S[0][qb * 8 + 6]))
for qb in range(4): e(valu("v_max_f32", mx[qb], mx[qb], v_S[0][qb * 8 + 7]))
red4("v_max_f32", mx, mt)
for qb in range(4):
    for k in range(4): e(valu("v_sub_f32", v_negm[qb * 4 + k], 0, mx[qb]))
for qb in range(4):
    for k in range(8): e(valu("v_sub_f32", v_S[0][qb * 8 + k], v_S[0][qb * 8 + k], mx[qb]))
em.label("L_have_max2")
e(nop(7))
for g in range(23, 29): att_group(1, g, do_mfma=False, do_mem=False, do_cvt=(g != 23))
for g in range(29, 32): att_group(1, g, do_mfma=False, do_mem=True)
pro_end = len(em.out)
em.directive(".p2align 6")
em.label("L_att_loop")
def body():
    for par in range(2):
        for g in range(32): att_group(par, g, last=(par == 1))
b0 = len(em.out)
body()
b1 = len(em.out)
e(scmp("s_cmp_lg_u32", s_cnt, 0)); e(raw("s_cbranch_scc1 L_att_loop", rd=["scc"]))
b2 = len(em.out)
body()
second = em.out[b2:]; del em.out[b2:]
assert [i.text for i in second] == [i.text for i in em.out[b0:b1]], "loop not in steady state"
loop_probs = check_hazards(em.out[b1 - 40:b2] + second[:60], "loop-wrap")
stamp()

vx, vy, vz = V(96), V(97), V(98)
e(salu("s_lshl_b32", s_t1, s_w, 8))
e(nop(2))
dma_voffs(v_dA, 1024, s_t1, True)
def hreg(m, qb): return A((((m - 32) % 8) * 4 + qb) * 4, 4)
htok = {}
def s2_dma(m):
    p = m % 6
    if m < 32:
        s, h = m >> 1, m & 1
        return [m0set(p), salu("s_mov_b32", s_off, s * 32 * 1024 + 128 * h, scc_w=False)], [dma(v_dA[j], S_WO, s_off, j * 1024) for j in range(4)]
    if m < 46:
        kk = m - 32
        hl = [bload(hreg(m, qb), v_lin, S_H, s_hl, off=qb * 1024, mod="sc1") for qb in range(4)]
        htok[m] = hl[3]
        return [m0set(p), salu("s_mov_b32", s_off, kk * 32 * 1024, scc_w=False), salu("s_add_u32", s_hl, s_hl, 4096)], [dma(v_dB[j], S_WD, s_off, j * 1024) for j in range(4)] + hl
    return None
vpoll = V(99)
e(salu("s_lshl_b32", s_t2, s_qb, 2))
ptok = e(bload(vpoll, None, S_DBG, s_t2, n=1, mod="sc1"))
dtok2 = {}
for m in range(6):
    sa, dm = s2_dma(m); e(sa)
    for d in dm: e(d)
    dtok2[m] = dm[3]
lt = [V(100 + i) for i in range(4)]
for qb in range(4): e(valu("v_add_f32", v_l1[qb], v_l1[qb], v_lsave[qb]))
red4("v_add_f32", [v_l1[i] for i in range(4)], lt)
e(salu("s_mov_b32", s_t0, hx(f2u(2.0 ** 30)), scc_w=False))
e(valu("v_add_f32", lt[1], v_l1[0], v_l1[1])); e(valu("v_add_f32", lt[2], v_l1[2], v_l1[3])); e(valu("v_add_f32", lt[1], lt[1], lt[2]))
e(valu("v_cmp_nge_f32", "vcc", s_t0, lt[1]))
rinv = [V(104 + 2 * i, 2) for i in range(4)]
for qb in range(4): e(valu("v_rcp_f32", rinv[qb][0], v_l1[qb]))
e(salu("s_mov_b64", s_pair, "vcc", scc_w=False))
e(salu("s_mul_i32", s_t1, s_w, 448 * 1024, scc_w=False)); e(salu("s_lshl_b32", s_t3, s_g, 7)); e(salu("s_add_u32", s_t1, s_t1, s_t3))
dma_voffs(v_dB, 1024, s_t1, True)
e(salu("s_mul_i32", s_hl, s_w, 14 * 4096, scc_w=False)); e(salu("s_sub_u32", s_hl, s_hl, 4096))
for i in range(4):
    for qb in range(4):
        t = V(64 + 4 * ((i * 4 + qb) % 8), 4)
        for b in range(2):
            o = Of(2 * i + b, qb)
            for k in range(2): e(valu("v_pk_mul_f32", o[(2 * k, 2)], o[(2 * k, 2)], rinv[qb], mod="op_sel_hi:[1,0]"))
        if len(em.lgq) >= 7: em.wait(lg=em.lgq[-7])
        for b in range(2):
            o = Of(2 * i + b, qb)
            for k in range(2): e(valu("v_cvt_pk_bf16_f32", t[2 * b + k], o[2 * k], o[2 * k + 1]))
        if i == 0 and qb == 0:
            e(scmp("s_cmp_eq_u64", s_pair, 0)); e(raw("s_cbranch_scc1 L_nomark", rd=["scc"]))
            e(valu("v_mov_b32", t[0], hx(MARK)))
            em.label("L_nomark")
        e(dswrite("ds_write_b128", v_wl, t, (i * 4 + qb) * 1024))
if DUMP == "o": dump_regs([v_acc[i] for i in range(128)])
em.wait(vm=ptok)
e(salu("s_mov_b32", s_cnt, 0, scc_w=False))
em.label("L_pollH")
e(valu("v_readfirstlane_b32", s_t0, vpoll)); e(nop(2))
e(scmp("s_cmp_ge_u32", s_t0, 8)); e(raw("s_cbranch_scc1 L_pollH_done", rd=["scc"]))
e(salu("s_add_u32", s_cnt, s_cnt, 1)); e(scmp("s_cmp_ge_u32", s_cnt, 50000)); e(raw("s_cbranch_scc1 L_pollH_done", rd=["scc"]))
e(raw("s_sleep 4")); e(raw("buffer_load_dword %s, off, %s, %s sc1" % (vpoll, S_DBG, s_t2))); e(raw("s_waitcnt vmcnt(0)")); e(raw("s_branch L_pollH"))
em.label("L_pollH_done")
em.wait(lg0=True)
e(raw("s_barrier"))
vm_ = V(96); vma = V(97)
e(valu("v_and_b32", vma, 3, v_lane)); e(valu("v_lshlrev_b32", vma, 14, vma))
mk = e(dsread("ds_read_b32", vm_, vma, 0))
em.wait(lg=mk)
e(valu("v_cmp_eq_u32", "vcc", hx(MARK), vm_))
e(scmp("s_cmp_lg_u32", s_retry, 0)); e(raw("s_cbranch_scc1 L_nofb", rd=["scc"]))
e(nop(1))
e(raw("s_cbranch_vccnz L_fallback", rd=["vcc"]))
em.label("L_nofb")
stamp()

def s2_acc(m, u, qb):
    if m < 32: return v_acc[((((m & 1) * 4 + u) * 4 + qb) * 4, 4)], m < 2
    return a_F[((u * 4 + qb) * 4, 4)], m == 32
def s2_B(m, qb):
    if m < 32: return a_B[(((m >> 1) & 1) * 16 + qb * 4, 4)]
    return hreg(m, qb)
def oread(s, qb): return dsread("ds_read_b128", a_B[((s & 1) * 16 + qb * 4, 4)], v_lin, (s * 4 + qb) * 1024)
extra = {-1: [(0, oread(0, qb), 1) for qb in range(4)]}
for s in range(1, 16):
    for qb in range(4): extra.setdefault(8 * (s - 1) + 1 + qb, []).append((2, oread(s, qb), 1))
class LateWait:
    def __init__(self, f): self.f = f
    def __call__(self): return Wait(vm=self.f())
for m in range(32, 46):
    extra.setdefault(4 * m - 1, []).append((2, LateWait(lambda m=m: htok[m]), 0))
sp = []; spst = []
for ip in range(4):
    for qb in range(4):
        t = V(64 + 4 * ((ip * 4 + qb) % 8), 4)
        for b in range(2):
            o = v_acc[(((2 * ip + b) * 4 + qb) * 4, 4)]
            for k in range(2): sp.append(valu("v_cvt_pk_bf16_f32", t[2 * b + k], o[2 * k], o[2 * k + 1]))
        if (qb & 1) == 0:
            sp.append(salu("s_add_u32", s_t1, s_t3, (ip >> 1) * 65536 + (qb >> 1) * 4096))
        st = bstore(t, v_lin, S_SP, s_t1, off=(qb & 1) * 2048 + (ip & 1) * 1024, mod="sc1")
        sp.append(st); spst.append(st)
e(salu("s_lshl_b32", s_t3, s_w, 4)); e(salu("s_add_u32", s_t3, s_t3, s_g)); e(salu("s_lshl_b32", s_t3, s_t3, 13))
vxf = V(100, 8); vxa = V(108)
e(valu("v_and_b32", vxa, 15, v_lane)); e(salu("s_lshl_b32", s_t0, s_w, 4)); e(valu("v_add_u32", vxa, s_t0, vxa)); e(valu("v_lshlrev_b32", vxa, 10, vxa))
e(valu("v_lshrrev_b32", v_t, 4, v_lane)); e(valu("v_lshl_add_u32", vxa, v_t, 3, vxa)); e(salu("s_lshl_b32", s_t0, s_g, 7)); e(valu("v_add_u32", vxa, s_t0, vxa))
xt = [bload(vxf[(2 * u, 2)], vxa, S_X, 0, off=32 * u, n=2) for u in range(4)]
for u in range(4): extra.setdefault(20 + u, []).append((2, xt[u], 1))
class SigS:
    def __call__(self):
        em.wait(vm=spst[-1]); e(raw("s_barrier")); signal(128, "L_sigS"); return []
extra.setdefault(160, []).append((0, SigS(), 0))
vs = VStream(sp, 131, 145, extra_total=40)
run_stream(46, s2_dma, dtok2, s2_acc, s2_B, extra, vs)
stamp()
vfw = V(109)
e(salu("s_lshl_b32", s_t0, s_w, 12)); e(valu("v_add_u32", vfw, s_t0, v_lin))
e(nop(4))
for qb in range(4):
    for u in range(4):
        if len(em.lgq) >= 12: em.wait(lg=em.lgq[-12])
        e(dswrite("ds_write_b128", vfw, a_F[((u * 4 + qb) * 4, 4)], qb * 16384 + u * 1024))
e(salu("s_lshl_b32", s_t2, s_qb, 2)); e(salu("s_add_u32", s_t2, s_t2, 128))
e(salu("s_mov_b32", s_cnt, 0, scc_w=False))
em.label("L_pollS")
e(raw("buffer_load_dword %s, off, %s, %s sc1" % (vpoll, S_DBG, s_t2))); e(raw("s_waitcnt vmcnt(0)")); em._retire(em.vmq, 0)
e(valu("v_readfirstlane_b32", s_t0, vpoll)); e(nop(2))
e(scmp("s_cmp_ge_u32", s_t0, 8)); e(raw("s_cbranch_scc1 L_pollS_done", rd=["scc"]))
e(salu("s_add_u32", s_cnt, s_cnt, 1)); e(scmp("s_cmp_ge_u32", s_cnt, 50000)); e(raw("s_cbranch_scc1 L_pollS_done", rd=["scc"]))
e(raw("s_sleep 2")); e(raw("s_branch L_pollS"))
em.label("L_pollS_done")
v_sp = V(128, 64)
e(salu("s_lshl_b32", s_t0, s_g, 16)); e(salu("s_lshl_b32", s_t1, s_w, 11)); e(salu("s_add_u32", s_t0, s_t0, s_t1))
sl = []
for gp in range(8):
    for i in range(2): sl.append(e(bload(v_sp[((gp * 2 + i) * 4, 4)], v_lin, S_SP, s_t0, off=i * 1024, mod="sc1")))
    if gp < 7: e(salu("s_add_u32", s_t0, s_t0, 8192))
em.wait(lg0=True)
e(raw("s_barrier"))
v_fr = V(192, 64)
fl_ = []
for ws_ in range(4):
    for u in range(4):
        if len(em.lgq) >= 14: em.wait(lg=em.lgq[-14])
        fl_.append(e(dsread("ds_read_b128", v_fr[((ws_ * 4 + u) * 4, 4)], v_wl, ws_ * 4096 + u * 1024)))
em.wait(lg0=True)
for k in range(8):
    e(valu("v_pk_add_f32", v_fr[(2 * k, 2)], v_fr[(2 * k, 2)], v_fr[(16 + 2 * k, 2)]))
    e(valu("v_pk_add_f32", v_fr[(32 + 2 * k, 2)], v_fr[(32 + 2 * k, 2)], v_fr[(48 + 2 * k, 2)]))
for k in range(8): e(valu("v_pk_add_f32", v_fr[(2 * k, 2)], v_fr[(2 * k, 2)], v_fr[(32 + 2 * k, 2)]))
vE = V(64, 16)
for k in range(16): e(valu("v_mul_f32", vE[k], hx(f2u(-math.log2(math.e))), v_fr[k]))
for k in range(16): e(valu("v_exp_f32", vE[k], vE[k]))
for k in range(16): e(valu("v_add_f32", vE[k], "1.0", vE[k]))
for k in range(16): e(valu("v_rcp_f32", vE[k], vE[k]))
for k in range(16): e(valu("v_mul_f32", v_fr[k], v_fr[k], vE[k]))
vs_ = V(80, 16)
for gp in range(8):
    em.wait(vm=sl[2 * gp + 1])
    for k in range(8):
        src = v_sp[gp * 8 + k]
        if gp == 0:
            e(valu("v_lshlrev_b32", vs_[2 * k], 16, src)); e(valu("v_and_b32", vs_[2 * k + 1], "0xffff0000", src))
        else:
            e(valu("v_lshlrev_b32", V(112 + 2 * (k & 3)), 16, src)); e(valu("v_and_b32", V(113 + 2 * (k & 3)), "0xffff0000", src))
            e(valu("v_pk_add_f32", vs_[(2 * k, 2)], vs_[(2 * k, 2)], V(112 + 2 * (k & 3), 2)))
if DUMP == "fin": dump_regs([vs_[i] for i in range(16)] + [v_fr[i] for i in range(16)])
for k in range(8):
    e(valu("v_lshlrev_b32", vE[2 * k], 16, vxf[k])); e(valu("v_and_b32", vE[2 * k + 1], "0xffff0000", vxf[k]))
for k in range(8): e(valu("v_pk_fma_f32", vE[(2 * k, 2)], vs_[(2 * k, 2)], v_fr[(2 * k, 2)], vE[(2 * k, 2)]))
for k in range(8): e(valu("v_cvt_pk_bf16_f32", vxf[k], vE[2 * k], vE[2 * k + 1]))
for u in range(4): e(bstore(vxf[(2 * u, 2)], vxa, S_OUT, 0, off=32 * u))
stamp()
em.label("L_end")
e(raw("s_endpgm"))
main_end = len(em.out)

em.label("L_fallback")
e(raw("s_waitcnt vmcnt(0) lgkmcnt(0)")); em._retire(em.vmq, 0); em._retire(em.lgq, 0)
e(salu("s_mov_b32", s_retry, 1, scc_w=False))
e(salu("s_mov_b32", s_kK, 0, scc_w=False))
fm = [V(40 + i) for i in range(4)]
for i in range(4): e(valu("v_mov_b32", fm[i], "0xff800000"))
em.label("L_fb_loop")
e(raw("s_barrier"))
e(salu("s_add_u32", "m0", s_m0b, 4 * 16384)); e(nop(0))
for j in range(4): e(dma(v_kd[j], S_K, s_kK, j * 1024))
em.wait(vm0=True)
e(raw("s_barrier"))
for kb in range(4):
    rr = [e(dsread("ds_read_b128", fr(ds), v_ka[ds], kb * 4096)) for ds in range(4)]
    em.wait(lg0=True)
    for ds in range(4):
        for qb in range(4):
            d = v_S[0][(qb * 4, 4)]
            e(mfma(d, fr(ds), Qf(qb, ds), 0 if ds == 0 else d))
    e(nop(7))
    for qb in range(4):
        e(valu("v_max3_f32", fm[qb], fm[qb], v_S[0][qb * 4], v_S[0][qb * 4 + 1])); e(valu("v_max3_f32", fm[qb], fm[qb], v_S[0][qb * 4 + 2], v_S[0][qb * 4 + 3]))
    e(nop(2))
e(salu("s_add_u32", s_kK, s_kK, 16384)); e(scmp("s_cmp_lt_u32", s_kK, 524288)); e(raw("s_cbranch_scc1 L_fb_loop", rd=["scc"]))
red4("v_max_f32", fm, [V(44 + i) for i in range(4)])
for qb in range(4):
    for k in range(4): e(valu("v_sub_f32", v_negm[qb * 4 + k], 0, fm[qb]))
e(raw("s_barrier"))
for m in (64, 65, 66):
    sa, dm = s1_dma(m); e(sa)
    for d in dm: e(d)
e(raw("s_branch L_att_start"))
em.label("L_code_end")
e(raw("s_endpgm"))

probs = check_hazards(em.out, "main") + loop_probs
for p in probs: print("; HAZARD", p, file=sys.stderr)
assert not probs

hdr = open(os.path.join(os.path.dirname(os.path.abspath(__file__)), "header.txt")).read()
print(hdr.rstrip())
print("; @launch grid=(256,1,1) block=(256,1,1) lds=163840")
print('.amdgcn_target "amdgcn-amd-amdhsa--gfx950"\n.text\n.globl %s\n.p2align 8\n.type %s,@function\n%s:' % (KN, KN, KN))
print(em.text())
print('.section .rodata,"a"\n.p2align 6\n.amdhsa_kernel %s' % KN)
print("  .amdhsa_next_free_vgpr 512\n  .amdhsa_next_free_sgpr 102\n  .amdhsa_accum_offset 256\n  .amdhsa_group_segment_fixed_size 0\n  .amdhsa_kernarg_size 96\n  .amdhsa_user_sgpr_count 2\n  .amdhsa_user_sgpr_kernarg_segment_ptr 1\n  .amdhsa_system_sgpr_workgroup_id_x 1\n.end_amdhsa_kernel")
```

```python
import sys, os, math, struct
from asmgen import *

KN = "recurrent_scan__gqa_block_cached__geglu_ffn__prompt_kernel"
DUMP = os.environ.get("DUMP", "")
STAMP = int(os.environ.get("STAMP", "0"))
GEL_END = int(os.environ.get("GEL_END", "228")); GEL_EXTRA = int(os.environ.get("GEL_EXTRA", "360"))

def f2u(x): return struct.unpack("<I", struct.pack("<f", x))[0]
def hx(x): return "0x%x" % (x & 0xffffffff)

S_X, S_K, S_V, S_WQ, S_WO, S_WG, S_WU, S_WD, S_OUT, S_DBG, S_H, S_SP = [S(4 + 4 * i, 4) for i in range(12)]
s_g, s_qb, s_w = S(52), S(53), S(54)
s_t0, s_t1, s_t2, s_t3 = S(55), S(56), S(57), S(58)
s_m0b = S(59)
s_off = S(60)
s_cnt = S(61)
s_kK, s_kV = S(62), S(63)
s_retry = S(64)
s_h0, s_h1 = S(65), S(66)
s_hl = S(67); s_hb = S(78); s_myfl = S(79)
s_ka = S(68, 16); s_kb = S(84, 8)
s_pair = S(92, 2); s_pair2 = S(94, 2)
S_DMP = S(96, 4)
s_cq, s_cg = S(76), S(77)
S_HC = S(80, 4)
S_SPC = S(84, 4)
S_XC = S(88, 4)
s_st = S(68, 4)

v_tid, v_lane, v_lin, v_t = V(0), V(1), V(2), V(3)
v_tr = [V(4, 4), V(8, 4)]
v_dA, v_dB = V(12, 4), V(16, 4)
v_ka = V(20, 4); v_va = V(24, 8); v_kd = V(32, 4); v_vd = V(36, 2)
v_wl = V(38)
v_c = V(39)
v_l0, v_l1 = V(40, 4), V(44, 4)
v_lsave = V(16, 4)
v_negm = V(48, 16)
v_S = [V(64, 32), V(96, 32)]
v_acc = V(128, 128)
a_ring = A(128, 32)
a_B = A(160, 32)
a_Q = A(0, 64)
a_F = A(0, 64)
a_x = A(248, 8)

RING = 65536
MARK = 0x7fc17fc1
WS_SP = 8 << 20
WS_DUMP = 32 << 20
WS_FL = (7 << 20) + (512 << 10)
S_FL = S(4, 4)

em = Em()
e = em.e

def srd(dst, lo, hi, size, off_s=None):
    if off_s is None:
        e(salu("s_mov_b32", dst[0], lo, scc_w=False)); e(salu("s_mov_b32", dst[1], hi, scc_w=False))
    else:
        e(salu("s_add_u32", dst[0], lo, off_s)); e(salu("s_addc_u32", dst[1], hi, 0, scc_r=True))
    e(salu("s_mov_b32", dst[2], hx(size), scc_w=False)); e(salu("s_mov_b32", dst[3], "0x20000", scc_w=False))

stamp_n = [0]
def stamp():
    if not STAMP: return
    k = stamp_n[0]; stamp_n[0] += 1
    e(raw("s_memtime %s" % S(68, 2), "other", wr=[S(68, 2)]))
    e(raw("s_memrealtime %s" % S(70, 2), "other", wr=[S(70, 2)]))
    e(raw("s_waitcnt lgkmcnt(0)", "wait")); em._retire(em.lgq, 0)
    for i in range(4): e(valu("v_writelane_b32", v_c, S(68 + i), i, rmw=True))
    e(salu("s_lshl_b32", S(72), S(2), 2)); e(salu("s_add_u32", S(72), S(72), s_w)); e(salu("s_lshl_b32", S(72), S(72), 9))
    e(salu("s_mov_b64", S(74, 2), "exec", scc_w=False)); e(raw("s_mov_b64 exec, 15", "salu", wr=["exec"]))
    e(valu("v_lshlrev_b32", v_t, 2, v_lane))
    e(bstore(v_c, v_t, S_DMP, S(72), off=k * 16))
    e(raw("s_mov_b64 exec, %s" % S(74, 2), "salu", wr=["exec"]))
    e(valu("v_lshlrev_b32", v_t, 7, v_lane))

def dump_regs(regs, finish=True):
    em.wait(lg0=True, vm0=True)
    e(nop(7)); e(nop(7))
    n = len(regs)
    e(salu("s_lshl_b32", s_t0, S(2), 2)); e(salu("s_add_u32", s_t0, s_t0, s_w)); e(salu("s_mul_i32", s_t0, s_t0, n * 256, scc_w=False))
    e(valu("v_lshlrev_b32", v_t, 2, v_lane))
    for k, r in enumerate(regs):
        e(bstore(r, v_t, S_DMP, s_t0, off=0))
        e(salu("s_add_u32", s_t0, s_t0, 256))
        if k % 32 == 31: em.wait(vm0=True)
    em.wait(vm0=True)
    if finish: e(raw("s_endpgm"))

def red4(op, x, tmp):
    for sw in ("v_permlane32_swap_b32", "v_permlane16_swap_b32"):
        for a, t in zip(x, tmp): e(valu("v_mov_b32", t, a))
        if len(x) < 3: e(nop(1))
        for a, t in zip(x, tmp): e(valu(sw, a, t))
        for a, t in zip(x, tmp): e(valu(op, a, a, t))

e(scmp("s_cmp_ge_u32", S(2), 256)); e(raw("s_cbranch_scc1 L_end", rd=["scc"]))
i0 = e(I("s_load_dwordx16 %s, s[0:1], 0" % s_ka, "smem", wr=s_ka.regs()))
i1 = e(I("s_load_dwordx8 %s, s[0:1], 64" % s_kb, "smem", wr=s_kb.regs()))
e(salu("s_and_b32", s_g, S(2), 7)); e(salu("s_lshr_b32", s_qb, S(2), 3))
e(valu("v_and_b32", v_lane, 63, v_tid))
e(valu("v_lshrrev_b32", v_t, 6, v_tid))
e(valu("v_lshlrev_b32", v_lin, 4, v_lane))
e(valu("v_readfirstlane_b32", s_w, v_t))
vq, vG, vr, vc_, vx, vy, vz = [V(40 + i) for i in range(7)]
e(valu("v_and_b32", vq, 15, v_lane)); e(valu("v_lshrrev_b32", vG, 4, v_lane))
vxo = V(47)
e(valu("v_lshl_add_u32", vxo, v_t, 4, vq)); e(valu("v_lshlrev_b32", vxo, 10, vxo)); e(valu("v_lshl_add_u32", vxo, vG, 4, vxo))
e(salu("s_lshl_b32", s_t0, s_qb, 16))
em.wait(lg0=True)
srd(S_X, s_ka[0], s_ka[1], 65536, s_t0)
v_xp = V(64, 64)
xl = []
for ks in range(16):
    xl.append(e(bload(v_xp[(4 * ks, 4)], vxo, S_X, 0, off=64 * ks)))
e(salu("s_lshr_b32", s_t2, s_qb, 3)); e(salu("s_lshl_b32", s_t3, s_g, 2)); e(salu("s_add_u32", s_t2, s_t2, s_t3))
e(salu("s_lshl_b32", s_t0, s_t2, 16))
srd(S_OUT, s_kb[2], s_kb[3], 65536, s_t0)
e(salu("s_lshl_b32", s_t1, s_g, 19))
srd(S_K, s_ka[2], s_ka[3], 524288, s_t1)
srd(S_V, s_ka[4], s_ka[5], 524288, s_t1)
srd(S_WO, s_ka[8], s_ka[9], 524288, s_t1)
srd(S_WQ, s_ka[6], s_ka[7], 4 << 20)
srd(S_WG, s_ka[12], s_ka[13], 1835008)
srd(S_WU, s_ka[14], s_ka[15], 1835008)
srd(S_WD, s_kb[0], s_kb[1], 1835008)
srd(S_DBG, s_kb[4], s_kb[5], 256)
e(salu("s_mul_i32", s_t1, s_qb, 229376, scc_w=False))
srd(S_H, s_kb[6], s_kb[7], 229376, s_t1)
e(salu("s_lshl_b32", s_t1, s_qb, 19)); e(salu("s_add_u32", s_t1, s_t1, hx(WS_SP)))
srd(S_SP, s_kb[6], s_kb[7], 524288, s_t1)
if DUMP or STAMP:
    e(salu("s_mov_b32", s_t1, hx(WS_DUMP), scc_w=False))
    srd(S_DMP, s_kb[6], s_kb[7], 200 << 20, s_t1)
e(salu("s_mov_b64", s_pair, S(90, 2), scc_w=False))
e(salu("s_lshl_b32", s_t0, s_t2, 16))
srd(S_XC, s_ka[0], s_ka[1], 65536, s_t0)
e(salu("s_mul_i32", s_t1, s_t2, 229376, scc_w=False))
srd(S_HC, s_pair[0], s_pair[1], 229376, s_t1)
e(salu("s_lshl_b32", s_t1, s_t2, 19)); e(salu("s_add_u32", s_t1, s_t1, hx(WS_SP)))
srd(S_SPC, s_pair[0], s_pair[1], 524288, s_t1)
e(salu("s_mov_b32", s_cq, s_t2, scc_w=False)); e(salu("s_and_b32", s_cg, s_qb, 7))
e(salu("s_mov_b32", s_t1, hx(WS_FL), scc_w=False))
srd(S_FL, s_pair[0], s_pair[1], 4096, s_t1)
e(salu("s_lshl_b32", s_myfl, s_qb, 7)); e(salu("s_lshl_b32", s_t1, s_g, 2)); e(salu("s_add_u32", s_myfl, s_myfl, s_t1))
e(salu("s_lshl_b32", s_m0b, s_w, 12)); e(salu("s_add_u32", s_m0b, s_m0b, RING))
e(salu("s_and_b32", s_t1, s_g, 1)); e(salu("s_lshl_b32", s_t1, s_t1, 2)); e(salu("s_add_u32", s_t1, s_t1, s_w))
e(scmp("s_cmp_eq_u32", s_w, 3)); e(salu("s_cselect_b32", s_t1, 3, s_t1, scc_w=False, scc_r=True))
e(salu("s_lshr_b32", s_t2, s_g, 1)); e(salu("s_mul_i32", s_t2, s_t2, 7, scc_w=False)); e(salu("s_add_u32", s_t1, s_t1, s_t2))
e(salu("s_lshl_b32", s_h0, s_t1, 13)); e(salu("s_add_u32", s_h1, s_h0, 4096))
e(salu("s_lshl_b32", s_t1, s_t1, 7))
e(salu("s_lshl_b32", s_t2, s_g, 2)); e(salu("s_add_u32", s_t2, s_t2, s_w)); e(salu("s_lshl_b32", s_t2, s_t2, 8))

def dma_voffs(dst, stride, colbase_s, perm):
    for j in range(4):
        e(valu("v_bfe_u32", vx, v_lane, 1, 2)); e(valu("v_bfe_u32", vy, v_lane, 4, 1))
        e(valu("v_xor_b32", vx, vx, vy))
        if j & 1: e(valu("v_xor_b32", vx, 2, vx))
        e(valu("v_and_b32", vy, 1, v_lane)); e(valu("v_lshlrev_b32", vy, 4, vy)); e(valu("v_lshl_add_u32", vx, vx, 5, vy))
        if not perm:
            e(valu("v_lshrrev_b32", vy, 3, v_lane)); rowadd = 8 * j
        else:
            e(valu("v_bfe_u32", vy, v_lane, 3, 2)); e(valu("v_bfe_u32", vz, v_lane, 5, 1)); e(valu("v_lshl_add_u32", vy, vz, 4, vy)); rowadd = 4 * j
        e(valu("v_mul_u32_u24", vy, stride, vy))
        e(valu("v_add3_u32", vx, vx, vy, colbase_s))
        e(valu("v_add_u32", dst[j], rowadd * stride - j * 1024, vx))

dma_voffs(v_dA, 3584, s_t1, False)
dma_voffs(v_dB, 8192, s_t2, False)

def m0set(p): return salu("s_add_u32", "m0", s_m0b, p * 16384)
def s1_dma(m):
    p = m % 6
    if m < 32:
        s, h = m >> 1, m & 1
        return [m0set(p), salu("s_mov_b32", s_off, s * 32 * 3584, scc_w=False)], [dma(v_dA[j], S_WU if h else S_WG, s_off, j * 1024) for j in range(4)]
    if m < 64:
        s, h = (m - 32) >> 1, m & 1
        return [m0set(p), salu("s_mov_b32", s_off, s * 32 * 8192 + 128 * h, scc_w=False)], [dma(v_dB[j], S_WQ, s_off, j * 1024) for j in range(4)]
    if m == 64:
        return [m0set(p), salu("s_mov_b32", s_off, 0, scc_w=False)], [dma(v_kd[j], S_K, s_off, j * 1024) for j in range(4)]
    if m == 65:
        return [m0set(p), salu("s_mov_b32", s_off, 8192, scc_w=False)], [dma(v_kd[j], S_K, s_off, j * 1024) for j in range(4)]
    if m == 66:
        return [m0set(p), salu("s_mov_b32", s_off, 0, scc_w=False)], [dma(v_vd[j & 1], S_V, s_off, j * 1024) for j in range(4)]
    return None
dtok = {}
for m in range(6):
    sa, dm = s1_dma(m)
    e(sa);
    for d in dm: e(d)
    dtok[m] = dm[3]

def xaddr(dst, tmp):
    e(valu("v_and_b32", dst, 15, v_lane)); e(salu("s_lshl_b32", s_t0, s_w, 4)); e(valu("v_add_u32", dst, s_t0, dst)); e(valu("v_lshlrev_b32", dst, 10, dst))
    e(valu("v_lshrrev_b32", tmp, 4, v_lane)); e(valu("v_lshl_add_u32", dst, tmp, 3, dst)); e(salu("s_lshl_b32", s_t0, s_cg, 7)); e(valu("v_add_u32", dst, s_t0, dst))
e(valu("v_mov_b32", vz, 0))
e(raw("s_mov_b64 exec, 1", "salu", wr=["exec"]))
e(bstore(vz, None, S_FL, s_myfl, mod="sc1"))
e(raw("s_mov_b64 exec, -1", "salu", wr=["exec"]))
xaddr(vx, vy)
for u in range(4): e(bload(a_x[(2 * u, 2)], vx, S_XC, 0, off=32 * u, n=2))
vw = V(48)
e(salu("s_mul_i32", s_t1, s_g, 448, scc_w=False)); e(salu("s_and_b32", s_t1, s_t1, hx(~127)))
e(salu("s_mul_i32", s_t2, s_qb, 16 * 3584, scc_w=False)); e(salu("s_add_u32", s_t1, s_t1, s_t2))
e(valu("v_lshrrev_b32", vx, 2, v_lane)); e(valu("v_mul_u32_u24", vx, 3584, vx)); e(valu("v_and_b32", vy, 3, v_lane)); e(valu("v_lshl_add_u32", vx, vy, 7, vx))
e(scmp("s_cmp_ge_u32", s_w, 2)); e(raw("s_cbranch_scc1 L_warm_q", rd=["scc"]))
e(scmp("s_cmp_eq_u32", s_w, 1)); e(raw("s_cbranch_scc1 L_warm_u", rd=["scc"]))
w0 = raw("buffer_load_dword %s, %s, %s, %s offen" % (vw, vx, S_WG, s_t1)); e(w0)
e(raw("s_branch L_warm_done"))
em.label("L_warm_u")
e(raw("buffer_load_dword %s, %s, %s, %s offen" % (vw, vx, S_WU, s_t1)))
e(raw("s_branch L_warm_done"))
em.label("L_warm_q")
e(salu("s_lshl_b32", s_t1, s_qb, 4)); e(salu("s_lshl_b32", s_t2, s_w, 3)); e(salu("s_add_u32", s_t1, s_t1, s_t2)); e(salu("s_sub_u32", s_t1, s_t1, 16))
e(salu("s_lshl_b32", s_t1, s_t1, 13)); e(salu("s_lshl_b32", s_t2, s_g, 10)); e(salu("s_add_u32", s_t1, s_t1, s_t2))
e(valu("v_lshrrev_b32", vx, 3, v_lane)); e(valu("v_lshlrev_b32", vx, 13, vx)); e(valu("v_and_b32", vy, 7, v_lane)); e(valu("v_lshl_add_u32", vx, vy, 7, vx))
e(raw("buffer_load_dword %s, %s, %s, %s offen" % (vw, vx, S_WQ, s_t1)))
em.label("L_warm_done")
wtok = I("; warm", "vmem", wr=vw.regs()); em.vmq.append(wtok); em.pend[str(vw)] = wtok
e(raw("s_getpc_b64 %s" % s_pair, "salu", wr=[s_pair]))
em.label("L_pc0")
e(valu("v_lshlrev_b32", vy, 7, v_tid))
for k in range(2):
    e(valu("v_min_u32", vx, "L_code_end-L_pc0-4", vy))
    e(I("global_load_dword %s, %s, %s" % (V(49 + k), vx, s_pair), "vmem", rd=vx.regs() + s_pair.regs(), wr=V(49 + k).regs()))
    if k == 0: e(valu("v_add_u32", vy, 0x8000, vy))

e(valu("v_bfe_u32", vr, v_lane, 2, 2)); e(valu("v_and_b32", vc_, 3, v_lane))
e(valu("v_lshlrev_b32", vx, 10, vG)); e(valu("v_lshl_add_u32", vx, vr, 7, vx)); e(valu("v_lshl_add_u32", vx, vc_, 3, vx)); e(valu("v_add_u32", vx, s_m0b, vx))
e(valu("v_lshrrev_b32", vy, 1, vr)); e(valu("v_and_b32", vz, 1, vG)); e(valu("v_lshl_add_u32", vy, vz, 1, vy))
for u in range(4):
    e(valu("v_xor_b32", vz, u, vy)); e(valu("v_lshl_add_u32", v_tr[0][u], vz, 5, vx)); e(valu("v_add_u32", v_tr[1][u], 3 * 16384, v_tr[0][u]))
e(valu("v_xor_b32", vy, vG, vq))
for ds in range(4):
    e(valu("v_xor_b32", vz, 4 * ds, vy)); e(valu("v_lshlrev_b32", vz, 4, vz)); e(valu("v_lshl_add_u32", vz, vq, 8, vz)); e(valu("v_add_u32", v_ka[ds], RING + 4 * 16384, vz))
e(valu("v_lshl_add_u32", vx, vG, 2, vr)); e(valu("v_and_b32", vy, 7, vx)); e(valu("v_lshlrev_b32", vx, 8, vx)); e(valu("v_lshl_add_u32", vx, vc_, 3, vx)); e(valu("v_add_u32", vx, RING, vx))
for db in range(8):
    e(valu("v_xor_b32", vz, db, vy)); e(valu("v_lshl_add_u32", v_va[db], vz, 5, vx))
e(salu("s_lshl_b32", s_t1, s_w, 12))
e(valu("v_lshlrev_b32", vx, 8, vG)); e(valu("v_add_u32", vx, s_t1, vx))
for j in range(4):
    e(valu("v_add_u32", vy, 4 * j, vG)); e(valu("v_xor_b32", vy, vy, vq)); e(valu("v_lshl_add_u32", v_kd[j], vy, 4, vx))
e(valu("v_and_b32", vz, 1, v_lane)); e(valu("v_lshl_add_u32", vx, vz, 4, vx))
for j in range(2):
    e(valu("v_add_u32", vy, 4 * j, vG)); e(valu("v_lshrrev_b32", vz, 1, vq)); e(valu("v_xor_b32", vy, vy, vz)); e(valu("v_lshl_add_u32", v_vd[j], vy, 5, vx))
e(salu("s_lshl_b32", s_t1, s_w, 14)); e(valu("v_add_u32", v_wl, s_t1, v_lin))
e(salu("s_mov_b32", s_retry, 0, scc_w=False))
stamp()

v_f = V(128, 128)
acc = [V(52, 2), V(54, 2), V(56, 2), V(58, 2)]
for ks in range(16):
    em.wait(vm=xl[ks])
    for k in range(4):
        p = 4 * ks + k
        e(valu("v_lshlrev_b32", v_f[2 * p], 16, v_xp[p])); e(valu("v_and_b32", v_f[2 * p + 1], "0xffff0000", v_xp[p]))
    for k in range(4):
        p = 4 * ks + k
        if ks == 0: e(valu("v_mov_b64", acc[k], v_f[(2 * p, 2)]))
        else: e(valu("v_pk_add_f32", acc[k], acc[k], v_f[(2 * p, 2)]))
e(valu("v_pk_add_f32", acc[0], acc[0], acc[1])); e(valu("v_pk_add_f32", acc[2], acc[2], acc[3])); e(valu("v_pk_add_f32", acc[0], acc[0], acc[2]))
vsum, vtmp, vmb, vdm = V(60), V(61), V(62), V(63)
e(valu("v_add_f32", vsum, acc[0][0], acc[0][1]))
red4("v_add_f32", [vsum], [vtmp])
e(valu("v_mul_f32", vsum, hx(f2u(1.0 / 512)), vsum))
e(valu("v_cvt_pk_bf16_f32", vmb, vsum, vsum)); e(valu("v_lshlrev_b32", vmb, 16, vmb))
e(valu("v_sub_f32", vdm, vsum, vmb))
vneg = V(52, 2)
e(valu("v_sub_f32", vneg[0], 0, vmb))
acc2 = [V(54, 2), V(56, 2), V(58, 2)]
for p in range(64):
    e(valu("v_pk_add_f32", v_f[(2 * p, 2)], v_f[(2 * p, 2)], vneg, mod="op_sel_hi:[1,0]"))
for p in range(64):
    a_ = acc2[p % 3]
    if p < 3: e(valu("v_pk_mul_f32", a_, v_f[(2 * p, 2)], v_f[(2 * p, 2)]))
    else: e(valu("v_pk_fma_f32", a_, v_f[(2 * p, 2)], v_f[(2 * p, 2)], a_))
e(valu("v_pk_add_f32", acc2[0], acc2[0], acc2[1])); e(valu("v_pk_add_f32", acc2[0], acc2[0], acc2[2]))
e(valu("v_add_f32", vsum, acc2[0][0], acc2[0][1]))
red4("v_add_f32", [vsum], [vtmp])
e(valu("v_mul_f32", vsum, hx(f2u(1.0 / 512)), vsum))
e(valu("v_fma_f32", vsum, "-" + str(vdm), vdm, vsum, extra_rd=vdm.regs()))
e(valu("v_max_f32", vsum, 0, vsum))
e(valu("v_cvt_pk_bf16_f32", vsum, vsum, vsum)); e(valu("v_lshlrev_b32", vsum, 16, vsum))
e(valu("v_add_f32", vsum, hx(f2u(1e-5)), vsum))
e(valu("v_cvt_pk_bf16_f32", vsum, vsum, vsum)); e(valu("v_lshlrev_b32", vsum, 16, vsum))
e(valu("v_sqrt_f32", vsum, vsum)); e(nop(0))
e(valu("v_cvt_pk_bf16_f32", vsum, vsum, vsum)); e(valu("v_lshlrev_b32", vsum, 16, vsum))
e(valu("v_rcp_f32", vneg[0], vsum)); e(nop(0))
for ks in range(16):
    for k in range(4):
        p = 4 * ks + k
        e(valu("v_pk_mul_f32", v_f[(2 * p, 2)], v_f[(2 * p, 2)], vneg, mod="op_sel_hi:[1,0]"))
    for k in range(4):
        p = 4 * ks + k
        e(valu("v_cvt_pk_bf16_f32", v_xp[p], v_f[2 * p], v_f[2 * p + 1]))
    e(dswrite("ds_write_b128", v_wl, v_xp[(4 * ks, 4)], ks * 1024))
if DUMP == "ln": dump_regs([v_xp[i] for i in range(64)])
em.wait(lg0=True)
e(raw("s_barrier"))
stamp()

def run_stream(NH, dmaf, dtok, accf, Bf, extra, vstream, LOOK=6, nq=4, pos0=0, ring=a_ring):
    NG = 4 * NH
    rtok = {}
    def reads(g):
        m, u = g >> 2, g & 3
        p = (m + pos0) % 6
        d = ring[((g % 8) * 4, 4)]
        r = [dsread("ds_read_b64_tr_b16", d[(2 * h2, 2)], v_tr[p // 3][u], (p % 3) * 16384 + h2 * 512) for h2 in range(2)]
        rtok[g] = r[1]
        return r
    em.wait(vm=dtok[0])
    for g in range(3): e(reads(g))
    for pre in extra.get(-1, []): e(pre[1])
    em.wait(lg0=True)
    vi = 0
    for g in range(NG):
        m, u = g >> 2, g & 3
        gaps = [[], [], [], []]; cap = [2, 2, 2, 2]
        if g + 3 < NG:
            if (g + 3) & 3 == 0: gaps[0].append(Wait(vm=dtok[(g + 3) >> 2]))
            r = reads(g + 3); gaps[0].append(r[0]); gaps[1].append(r[1]); cap[0] -= 1; cap[1] -= 1
        md, j = (g + 4 * LOOK - 4) >> 2, (g + 4 * LOOK - 4) & 3
        if md >= LOOK:
            if j == 0: cur = dmaf(md)
            if cur is not None:
                if j == 0: gaps[2] += cur[0]
                items = cur[1][j::4]
                for it in items: gaps[3].append(it); cap[3] -= 1
                if j == 3: dtok[md] = cur[1][3]
        for (gp, it, cost) in extra.get(g, []):
            gaps[gp].append(it); cap[gp] -= cost
        if g + 1 < NG: gaps[3].insert(0, Wait(lg=rtok[g + 1]))
        d = ring[((g % 8) * 4, 4)]
        for qb in range(nq):
            ac, first = accf(m, u, qb)
            e(mfma(ac, d, Bf(m, qb), 0 if first else ac))
            for it in gaps[qb]: e(it)
            c = cap[qb]
            quota = vstream.quota(g) if vstream else 0
            while vstream and vstream.has(g) and (c > 0 or quota > 0):
                it = vstream.peek()
                cost = 2 if it.kind == "trans" else 1
                if cost > c and quota <= 0: break
                if cost > c: quota -= 1; vstream.used_quota()
                e(vstream.pop()); c -= cost
    if vstream:
        while vstream.has(10 ** 9): e(vstream.pop())

class VStream:
    def __init__(self, items, start, end, extra_total=0):
        self.items = items; self.i = 0; self.start = start; self.end = end
        self.extra_total = extra_total; self.used = 0
    def has(self, g): return self.i < len(self.items) and g >= self.start
    def peek(self): return self.items[self.i]
    def pop(self): self.i += 1; return self.items[self.i - 1]
    def quota(self, g):
        if g < self.start: return 0
        allowed = (g - self.start + 1) * self.extra_total // max(1, self.end - self.start)
        return 1 if allowed > self.used else 0
    def used_quota(self): self.used += 1

def s1_acc(m, u, qb):
    h = m & 1
    idx = ((h * 4 + u) * 4 + qb) * 4
    if m < 32: return A(idx, 4), m < 2
    return v_acc[(idx, 4)], m < 34
def s1_B(m, qb): return a_B[(((m >> 1) & 1) * 16 + qb * 4, 4)]
extra = {}
btok = {}
def bread(s, qb): return dsread("ds_read_b128", a_B[((s & 1) * 16 + qb * 4, 4)], v_lin, (qb * 16 + (s % 16)) * 1024)
extra[-1] = [(0, bread(0, qb), 1) for qb in range(4)]
for s in range(1, 32):
    for qb in range(4):
        extra.setdefault(8 * (s - 1) + 1 + qb, []).append((2, bread(s, qb), 1))
C0 = -2.0 * math.sqrt(2.0 / math.pi) * math.log2(math.e); C1 = C0 * 0.044715
vc0, vc1 = V(40), V(41)
gel = [valu("v_mov_b32", vc0, hx(f2u(C0))), valu("v_mov_b32", vc1, hx(f2u(C1)))]
hst = []
tb = 0
for i in range(2):
    for qb in range(4):
        pk = V(44 + 4 * (tb % 4), 4); tb += 1
        for b in range(2):
            u = 2 * i + b
            T = [V(64 + 16 * ((2 * tb + b) % 4) + k) for k in range(16)]
            G_, U_, X_ = T[0:4], T[4:8], T[8:12]
            ga = lambda r: A((u * 4 + qb) * 4 + r); ua = lambda r: A(((4 + u) * 4 + qb) * 4 + r)
            for r in range(4): gel.append(valu("v_accvgpr_read_b32", G_[r], ga(r)))
            for r in range(4): gel.append(valu("v_accvgpr_read_b32", U_[r], ua(r)))
            for r in range(4): gel.append(valu("v_mul_f32", X_[r], G_[r], G_[r]))
            for r in range(4): gel.append(valu("v_fma_f32", X_[r], X_[r], vc1, vc0))
            for r in range(4): gel.append(valu("v_mul_f32", X_[r], X_[r], G_[r]))
            for r in range(4): gel.append(valu("v_exp_f32", X_[r], X_[r]))
            for r in range(4): gel.append(valu("v_mul_f32", G_[r], G_[r], U_[r]))
            for r in range(4): gel.append(valu("v_add_f32", X_[r], "1.0", X_[r]))
            for r in range(4): gel.append(valu("v_rcp_f32", X_[r], X_[r]))
            gel.append(nop(0))
            for r in range(4): gel.append(valu("v_mul_f32", G_[r], G_[r], X_[r]))
            for k in range(2): gel.append(valu("v_cvt_pk_bf16_f32", pk[2 * b + k], G_[2 * k], G_[2 * k + 1]))
        st = bstore(pk, v_lin, S_H, s_h1 if i else s_h0, off=qb * 1024, mod="sc1")
        gel.append(st); hst.append(st)
class Stamp:
    def __call__(self): stamp(); return []
if STAMP: extra.setdefault(128, []).append((0, Stamp(), 0))
vs = VStream(gel, 131, GEL_END, extra_total=GEL_EXTRA)
run_stream(64, s1_dma, dtok, s1_acc, s1_B, extra, vs)
if DUMP == "qacc": dump_regs([v_acc[i] for i in range(128)])
stamp()

em.wait(lg0=True)
e(raw("s_barrier"))
def signal(off_s_expr_add, lab):
    e(scmp("s_cmp_lg_u32", s_w, 0)); e(raw("s_cbranch_scc1 %s" % lab, rd=["scc"]))
    e(salu("s_lshl_b32", s_t0, s_qb, 2))
    if off_s_expr_add: e(salu("s_add_u32", s_t0, s_t0, off_s_expr_add))
    e(valu("v_mov_b32", v_t, 1))
    e(raw("s_mov_b64 exec, 1", "salu", wr=["exec"]))
    e(raw("buffer_atomic_add %s, off, %s, %s sc1" % (v_t, S_DBG, s_t0)))
    e(raw("s_mov_b64 exec, -1", "salu", wr=["exec"]))
    em.label(lab)
QS = math.log2(math.e) / math.sqrt(128.0)
vqs = V(40, 2); vqw = V(42)
e(valu("v_mov_b32", vqs[0], hx(f2u(QS))))
e(valu("v_and_b32", v_t, 15, v_lane)); e(valu("v_bfe_u32", vqw, v_lane, 5, 1)); e(valu("v_lshl_add_u32", v_t, vqw, 4, v_t)); e(valu("v_lshlrev_b32", v_t, 4, v_t))
e(valu("v_bfe_u32", vqw, v_lane, 4, 1)); e(valu("v_lshl_add_u32", vqw, vqw, 3, v_t))
e(salu("s_lshl_b32", s_t1, s_w, 14)); e(valu("v_add_u32", vqw, s_t1, vqw))
for blk in range(8):
    for qb in range(4):
        a_ = v_acc[((blk * 4 + qb) * 4, 4)]
        t = V(64 + 2 * ((blk * 4 + qb) % 8), 2)
        for k in range(2): e(valu("v_pk_mul_f32", a_[(2 * k, 2)], a_[(2 * k, 2)], vqs, mod="op_sel_hi:[1,0]"))
        for k in range(2): e(valu("v_cvt_pk_bf16_f32", t[k], a_[2 * k], a_[2 * k + 1]))
        if len(em.lgq) >= 7: em.wait(lg=em.lgq[-7])
        e(dswrite("ds_write_b64", vqw, t, (qb * 4 + (blk >> 1)) * 1024 + (blk & 1) * 512))
em.wait(lg0=True)
for f in range(16):
    e(dsread("ds_read_b128", a_Q[(4 * f, 4)], v_wl, f * 1024))
    if f == 7: pass
vx, vy, vz = V(96), V(97), V(98)
e(salu("s_lshl_b32", s_t1, s_w, 8))
dma_voffs(v_dA, 1024, s_t1, True)
em.label("L_att_start")
for i in range(64): e(valu("v_mov_b64", v_acc[(2 * i, 2)], 0))
for i in range(4): e(valu("v_mov_b32", v_l0[i], 0)); e(valu("v_mov_b32", v_l1[i], 0))
em.wait(vm0=True, lg0=True)
e(raw("s_barrier"))
e(scmp("s_cmp_lg_u32", s_retry, 0)); e(raw("s_cbranch_scc1 L_sigH", rd=["scc"]))
signal(0, "L_sigH")
if DUMP == "q": dump_regs([a_Q[i] for i in range(64)])
stamp()

def Qf(qb, ds): return a_Q[((qb * 4 + ds) * 4, 4)]
def Of(db, qb): return v_acc[((db * 4 + qb) * 4, 4)]
def fr(f): return a_ring[((f % 8) * 4, 4)]
def kslot(par): return 16384 if par == 0 else 0
def vslot(par): return 0 if par == 0 else 16384
def frag_reads(par, f):
    if f >= 32: par ^= 1; f -= 32
    d = fr(f)
    if f < 8 or 16 <= f < 24:
        kb = (f >> 2) if f < 8 else 2 + ((f - 16) >> 2)
        return [dsread("ds_read_b128", d, v_ka[f & 3], kslot(par) + kb * 4096)]
    ks2 = 0 if f < 16 else 1
    db = f & 7
    return [dsread("ds_read_b64_tr_b16", d[(2 * h, 2)], v_va[db], vslot(par) + ks2 * 8192 + h * 4096) for h in range(2)]
def read_sched(g):
    r = []
    if g + 3 < 24 or g >= 29: r.append(g + 3)
    if 19 <= g <= 26: r.append(g + 5)
    return r
def sm_val(g, k):
    if 7 <= g <= 22: b = 1; n = 2 * (g - 7) + k
    else: b = 0; n = 2 * ((g - 23) % 32) + k
    kb, qb, r = n >> 4, (n >> 2) & 3, n & 3
    return b, qb, kb, r
def sm_items(g):
    ex, ad = [], []
    for k in range(2):
        b, qb, kb, r = sm_val(g, k)
        x = v_S[b][qb * 8 + kb * 4 + r]
        l = (v_l1 if b else v_l0)[qb]
        ex.append(valu("v_exp_f32", x, x)); ad.append(valu("v_add_f32", l, l, x))
    b, qb, kb, r = sm_val((g - 1) % 32, 0)
    cv = valu("v_cvt_pk_bf16_f32", v_S[b][qb * 8 + kb * 2 + (r >> 1)], v_S[b][qb * 8 + kb * 4 + r], v_S[b][qb * 8 + kb * 4 + r + 1])
    return ex, ad, cv
def att_dma(par, g):
    if g >= 29: k = g - 29; sp = par
    elif g <= 4: k = g + 3; sp = par ^ 1
    else: return [], None
    sal = []
    if k == 0: sal = [salu("s_add_u32", "m0", s_m0b, 4 * 16384 + kslot(sp))]
    if k == 4: sal = [salu("s_add_u32", "m0", s_m0b, vslot(sp))]
    if k < 4: return sal, dma(v_kd[k], S_K, s_kK, k * 1024)
    return sal, dma(v_vd[k & 1], S_V, s_kV, (k - 4) * 1024)
SIDE_FIRST = 11
class Lbl:
    def __init__(self, n): self.n = n
    def __call__(self): em.label(self.n); return []
class LoopStamp:
    def __init__(self, k, par): self.k, self.par = k, par
    def __call__(self):
        k = self.k
        e(raw("s_memtime %s" % S(68 + 2 * k, 2), "other", wr=[S(68 + 2 * k, 2)]))
        if k == 2:
            e(raw("s_waitcnt lgkmcnt(0)", "wait")); em._retire(em.lgq, 0)
            for i in range(3): e(valu("v_writelane_b32", v_c, S(68 + 2 * i), i, rmw=True))
            e(salu("s_lshl_b32", S(74), S(2), 2)); e(salu("s_add_u32", S(74), S(74), s_w)); e(salu("s_lshl_b32", S(74), S(74), 4))
            e(salu("s_sub_u32", S(74), S(74), s_cnt)); e(salu("s_add_u32", S(74), S(74), 16)); e(salu("s_lshl_b32", S(74), S(74), 5))
            e(salu("s_add_u32", S(74), S(74), (1 << 20) + 16 * self.par))
            e(raw("s_mov_b64 exec, 7", "salu", wr=["exec"]))
            e(valu("v_lshlrev_b32", v_t, 2, v_lane))
            e(bstore(v_c, v_t, S_DMP, S(74), off=0))
            e(raw("s_mov_b64 exec, -1", "salu", wr=["exec"]))
            e(valu("v_lshlrev_b32", v_t, 7, v_lane))
        return []
s_pf = [S(16, 2), S(18, 2), S(24, 2), S(26, 2)]
s_pfH = S(28, 2)
s_fo = S(3)
v_tch, v_flag = V(3), V(0)
xtok = []; lastdma = [None]
ROT = int(os.environ.get('ROT', '10'))
ftok = {}
def att_group(par, g, do_mfma=True, do_mem=True, do_cvt=True, last=False):
    ex, ad, cv = sm_items(g)
    mem = []
    sal = []
    if do_mem:
        for f in read_sched(g):
            r = frag_reads(par, f); mem += r; ftok[f % 32] = r
        sal, d = att_dma(par, g)
        if d is not None: mem.append(d)
    if do_mem and par == 0 and g == 5:
        mem.append(I("global_load_dword %s, %s, %s" % (v_flag, v_tch, s_pf[0]), "vmem", rd=v_tch.regs() + s_pf[0].regs(), wr=[])); xtok.append(mem[-1])
    if do_mem and par == 0 and g == 6:
        mem.append(I("buffer_load_dword %s, off, %s, %s sc1" % (v_flag, S_DBG, s_fo), "vmem", rd=S_DBG.regs() + s_fo.regs(), wr=[])); xtok.append(mem[-1])
    if do_mem and par == 0 and g in (8, 9, 10): sal = sal + [scmp("s_cmp_le_u32", s_cnt, ROT), salu("s_cselect_b64", s_pf[g - 8], s_pf[g - 7], s_pf[g - 8], scc_w=False, scc_r=True)]
    if do_mem and g == 4: lastdma[0] = d
    post0 = []
    if do_mem and do_mfma and par == 1 and g == 30: post0 = [valu("v_readfirstlane_b32", s_t0, v_flag)]
    if do_mem and do_mfma and par == 1 and g == 31: sal = sal + [scmp("s_cmp_lt_u32", s_cnt, ROT), salu("s_cselect_b32", s_t0, s_t0, 0, scc_w=False, scc_r=True), scmp("s_cmp_ge_u32", s_t0, 8), salu("s_cselect_b64", s_pf[3], s_pfH, s_pf[3], scc_w=False, scc_r=True)]
    gaps = [[], [], [], []]
    if g == 29 and do_mem:
        if STAMP == 2 and do_mfma: gaps[0] += [LoopStamp(0, par)]
        gaps[0] += [Wait(lg0=True, vm0=True) if (par == 1 or not do_mfma) else Wait(lg0=True, vm=lastdma[0])]
        if STAMP == 2 and do_mfma: gaps[0] += [LoopStamp(1, par)]
        gaps[0] += [raw("s_barrier")]
        if STAMP == 2 and do_mfma: gaps[0] += [LoopStamp(2, par)]
    gaps[0] += sal
    if g == 6 and do_mem: gaps[0].append(salu("s_add_u32", s_kK, s_kK, 16384))
    if g == 7 and do_mem: gaps[0].append(salu("s_add_u32", s_kV, s_kV, 16384))
    if g == 23 and par == 1 and do_mfma:
        gaps[0] += [valu("v_mov_b32", v_lsave[i], v_l0[i]) for i in range(4)]
    if len(mem) > 2: gaps[0].append(mem[2])
    gaps[0].append(ex[0])
    if len(mem) > 0: gaps[1].append(mem[0])
    if len(mem) == 0 and do_cvt: gaps[1].append(cv)
    gaps[1].append(ad[0])
    gaps[1] += post0
    if do_mem: gaps[2].append(Wait(lg=ftok.get((g + 1) % 32)))
    if last and g == 30: gaps[2].append(salu("s_sub_u32", s_cnt, s_cnt, 1))
    gaps[2].append(ex[1])
    if len(mem) > 1: gaps[3].append(mem[1])
    if len(mem) > 0 and do_cvt: gaps[3].append(cv)
    gaps[3].append(ad[1])
    for qb in range(4):
        if do_mfma:
            if g < 8 or 16 <= g < 24:
                b = 1 if g < 8 else 0
                kb, ds = (g >> 2) & 1, g & 3
                d = v_S[b][(qb * 8 + kb * 4, 4)]
                e(mfma(d, fr(g), Qf(qb, ds), v_negm[(qb * 4, 4)] if ds == 0 else d))
            else:
                b = 0 if g < 16 else 1
                e(mfma(Of(g & 7, qb), fr(g), v_S[b][(qb * 8, 4)], Of(g & 7, qb)))
        else:
            if qb & 1: e(nop(0))
        for it in gaps[qb]: e(it)

for it in range(3):
    e(salu("s_add_u32", s_t0, s_w, 4 * it))
    e(salu("s_sub_u32", s_t1, s_t0, 2)); e(salu("s_min_u32", s_t1, s_t1, 6)); e(salu("s_lshl_b32", s_t1, s_t1, 13))
    e(salu("s_mul_i32", s_t2, s_qb, 57344, scc_w=False)); e(salu("s_add_u32", s_t1, s_t1, s_t2))
    e(salu("s_add_u32", s_pf[it][0], S_WD[0], s_t1)); e(salu("s_addc_u32", s_pf[it][1], S_WD[1], 0, scc_r=True))
    if it == 0:
        e(scmp("s_cmp_ge_u32", s_w, 2)); e(raw("s_cbranch_scc1 L_pf_wd", rd=["scc"]))
        e(salu("s_lshl_b32", s_t1, s_qb, 14)); e(salu("s_lshl_b32", s_t2, s_w, 13)); e(salu("s_add_u32", s_t1, s_t1, s_t2))
        e(salu("s_add_u32", s_pf[0][0], S_WO[0], s_t1)); e(salu("s_addc_u32", s_pf[0][1], S_WO[1], 0, scc_r=True))
        em.label("L_pf_wd")
e(raw("s_getpc_b64 %s" % s_pf[3], "salu", wr=[s_pf[3]]))
em.label("L_pc1")
e(salu("s_lshl_b32", s_t0, s_w, 13)); e(salu("s_add_u32", s_t0, s_t0, "L_tail-L_pc1")); e(salu("s_min_u32", s_t0, s_t0, "L_code_end-L_pc1-8192"))
e(salu("s_add_u32", s_pf[3][0], s_pf[3][0], s_t0)); e(salu("s_addc_u32", s_pf[3][1], s_pf[3][1], 0, scc_r=True))
e(salu("s_lshl_b32", s_t0, s_cg, 2)); e(salu("s_add_u32", s_t0, s_t0, s_w)); e(salu("s_mul_i32", s_t0, s_t0, 7168, scc_w=False)); e(salu("s_min_u32", s_t0, s_t0, 229376 - 8192))
e(salu("s_add_u32", s_pfH[0], S_HC[0], s_t0)); e(salu("s_addc_u32", s_pfH[1], S_HC[1], 0, scc_r=True))
e(valu("v_lshlrev_b32", v_tch, 7, v_lane))
e(salu("s_lshl_b32", s_fo, s_cq, 2))
pr = [dsread("ds_read_b128", fr(f), v_ka[f & 3], (f >> 2) * 4096) for f in range(8)]
for r in pr: e(r)
e(scmp("s_cmp_lg_u32", s_retry, 0)); e(raw("s_cbranch_scc1 L_have_max", rd=["scc"]))
for i in range(16): e(valu("v_mov_b32", v_negm[i], 0))
em.label("L_have_max")
for f in range(8):
    em.wait(lg=pr[f])
    for qb in range(4):
        d = v_S[0][(qb * 8 + (f >> 2) * 4, 4)]
        e(mfma(d, fr(f), Qf(qb, f & 3), v_negm[(qb * 4, 4)] if (f & 3) == 0 else d))
e(salu("s_mov_b32", s_kK, 16384 + 8192, scc_w=False)); e(salu("s_mov_b32", s_kV, 16384, scc_w=False)); e(salu("s_mov_b32", s_cnt, 16, scc_w=False))
e(scmp("s_cmp_lg_u32", s_retry, 0)); e(raw("s_cbranch_scc1 L_have_max2", rd=["scc"]))
e(nop(3))
mx = [V(96 + i) for i in range(4)]; mt = [V(100 + i) for i in range(4)]
for qb in range(4): e(valu("v_max3_f32", mx[qb], v_S[0][qb * 8], v_S[0][qb * 8 + 1], v_S[0][qb * 8 + 2]))
for qb in range(4): e(valu("v_max3_f32", mx[qb], mx[qb], v_S[0][qb * 8 + 3], v_S[0][qb * 8 + 4]))
for qb in range(4): e(valu("v_max3_f32", mx[qb], mx[qb], v_S[0][qb * 8 + 5], v_S[0][qb * 8 + 6]))
for qb in range(4): e(valu("v_max_f32", mx[qb], mx[qb], v_S[0][qb * 8 + 7]))
red4("v_max_f32", mx, mt)
for qb in range(4):
    for k in range(4): e(valu("v_sub_f32", v_negm[qb * 4 + k], 0, mx[qb]))
for qb in range(4):
    for k in range(8): e(valu("v_sub_f32", v_S[0][qb * 8 + k], v_S[0][qb * 8 + k], mx[qb]))
em.label("L_have_max2")
e(nop(7))
for g in range(23, 29): att_group(1, g, do_mfma=False, do_mem=False, do_cvt=(g != 23))
stamp()
for g in range(29, 32): att_group(1, g, do_mfma=False, do_mem=True)
pro_end = len(em.out)
em.directive(".p2align 6")
em.label("L_att_loop")
def body():
    for par in range(2):
        for g in range(32): att_group(par, g, last=(par == 1))
b0 = len(em.out)
body()
b1 = len(em.out)
e(scmp("s_cmp_lg_u32", s_cnt, 0)); e(raw("s_cbranch_scc1 L_att_loop", rd=["scc"]))
b2 = len(em.out)
body()
second = em.out[b2:]; del em.out[b2:]
assert [i.text for i in second] == [i.text for i in em.out[b0:b1]], "loop not in steady state"
loop_probs = check_hazards(em.out[b1 - 40:b2] + second[:60], "loop-wrap")
stamp()

em.label("L_tail")
v_ring2 = V(64, 32); v_B2 = V(96, 32)
def hreg(kk, qb): return A(64 + (kk % 12) * 16 + qb * 4, 4)
XY = int(os.environ.get("XY", "0"))
def mh(m): return ((m & 15), m >> 4) if XY else (m >> 1, m & 1)
P2 = 2
def s2_dma(m):
    p = (m + P2) % 6
    if m < 32:
        s, h = mh(m)
        return [m0set(p), salu("s_mov_b32", s_off, s * 32 * 1024 + 128 * h, scc_w=False)], [dma(v_dA[j], S_WO, s_off, j * 1024) for j in range(4)]
    if m < 46:
        return [m0set(p), salu("s_mov_b32", s_off, (m - 32) * 32 * 1024, scc_w=False)], [dma(v_dB[j], S_WD, s_off, j * 1024) for j in range(4)]
    return None
dtok2 = {}
post_v = []
for m in range(0, 6):
    sa, dm = s2_dma(m); post_v.append(sa); post_v += dm; dtok2[m] = dm[3]
pv = [0]
def post_issue(n):
    k = 0
    while k < n and pv[0] < len(post_v):
        it = post_v[pv[0]]; pv[0] += 1
        e(it)
        if not isinstance(it, list): k += 1
post_issue(4)
lt = [V(100 + i) for i in range(4)]
for qb in range(4): e(valu("v_add_f32", v_l1[qb], v_l1[qb], v_lsave[qb]))
red4("v_add_f32", [v_l1[i] for i in range(4)], lt)
e(salu("s_mov_b32", s_t0, hx(f2u(2.0 ** 30)), scc_w=False))
e(valu("v_add_f32", lt[1], v_l1[0], v_l1[1])); e(valu("v_add_f32", lt[2], v_l1[2], v_l1[3])); e(valu("v_add_f32", lt[1], lt[1], lt[2]))
e(valu("v_cmp_nge_f32", "vcc", s_t0, lt[1]))
rinv = [V(104 + 2 * i, 2) for i in range(4)]
for qb in range(4): e(valu("v_rcp_f32", rinv[qb][0], v_l1[qb]))
e(salu("s_mov_b64", s_pair, "vcc", scc_w=False))
post_issue(4)
for i in range(4):
    for qb in range(4):
        t = Of(2 * i, qb)
        for b in range(2):
            o = Of(2 * i + b, qb)
            for k in range(2): e(valu("v_pk_mul_f32", o[(2 * k, 2)], o[(2 * k, 2)], rinv[qb], mod="op_sel_hi:[1,0]"))
        if DUMP != "o":
            for b in range(2):
                o = Of(2 * i + b, qb)
                for k in range(2): e(valu("v_cvt_pk_bf16_f32", t[2 * b + k], o[2 * k], o[2 * k + 1]))
            if i == 0 and qb == 0:
                e(scmp("s_cmp_eq_u64", s_pair, 0)); e(raw("s_cbranch_scc1 L_nomark", rd=["scc"]))
                e(valu("v_mov_b32", t[0], hx(MARK)))
                em.label("L_nomark")
            if len(em.lgq) >= 12: em.wait(lg=em.lgq[-12])
            e(dswrite("ds_write_b128", v_wl, t, (i * 4 + qb) * 1024))
        post_issue(1)
post_issue(100)
if DUMP == "o": dump_regs([v_acc[i] for i in range(128)])
vm_ = V(56); vma = V(57)
e(valu("v_and_b32", vma, 3, v_lane)); e(valu("v_lshlrev_b32", vma, 14, vma))
e(salu("s_mov_b32", s_cnt, 0, scc_w=False))
em.label("L_pollH")
e(valu("v_readfirstlane_b32", s_t0, v_flag)); e(salu("s_mul_i32", s_hb, s_w, 14 * 4096, scc_w=False)); e(nop(1))
e(scmp("s_cmp_ge_u32", s_t0, 8)); e(raw("s_cbranch_scc1 L_pollH_done", rd=["scc"]))
e(salu("s_add_u32", s_cnt, s_cnt, 1)); e(scmp("s_cmp_ge_u32", s_cnt, 50000)); e(raw("s_cbranch_scc1 L_pollH_done", rd=["scc"]))
e(raw("s_sleep 4")); e(raw("buffer_load_dword %s, off, %s, %s sc1" % (v_flag, S_DBG, s_fo))); e(raw("s_waitcnt vmcnt(0)")); e(raw("s_branch L_pollH"))
em.label("L_pollH_done")
em.wait(lg0=True)
e(raw("s_barrier"))
stamp()
mk = e(dsread("ds_read_b32", vm_, vma, 0))
class FbCheck:
    def __call__(self):
        em.wait(lg=mk)
        e(valu("v_cmp_eq_u32", "vcc", hx(MARK), vm_))
        e(scmp("s_cmp_lg_u32", s_retry, 0)); e(raw("s_cbranch_scc1 L_nofb", rd=["scc"]))
        e(nop(1))
        e(raw("s_cbranch_vccnz L_fallback", rd=["vcc"]))
        em.label("L_nofb")
        return []

def s2_acc(m, u, qb):
    if m < 32: return v_acc[(((mh(m)[1] * 4 + u) * 4 + qb) * 4, 4)], mh(m)[0] == 0
    return a_F[((u * 4 + qb) * 4, 4)], m == 32
def bsel(m): return (m & 1) if XY else ((m >> 1) & 1)
def s2_B(m, qb):
    if m < 32: return v_B2[(bsel(m) * 16 + qb * 4, 4)]
    return hreg(m - 32, qb)
def oread(m, qb): return dsread("ds_read_b128", v_B2[(bsel(m) * 16 + qb * 4, 4)], v_lin, (mh(m)[0] * 4 + qb) * 1024)
extra = {-1: [(0, oread(0, qb), 1) for qb in range(4)] + [(0, FbCheck(), 0)]}
for m in range(1, 32):
    if XY:
        rr = [oread(m, qb) for qb in range(4)]
        for qb in range(4): extra.setdefault(4 * (m - 1) + (qb >> 1), []).append((2 + (qb & 1), rr[qb], 1))
        extra.setdefault(4 * m - 1, []).append((2, Wait(lg=rr), 0))
    elif (m & 1) == 0:
        for qb in range(4): extra.setdefault(4 * (m - 2) + 1 + qb, []).append((2, oread(m, qb), 1))
class LateWait:
    def __init__(self, f): self.f = f
    def __call__(self): return Wait(vm=self.f())
vxf = V(40, 8); vxa = V(48); vpoll = V(49); vfw = V(50)
vx, vy, vz = V(52), V(53), V(54)
save = em.out; em.out = []
for k in range(8): e(valu("v_accvgpr_read_b32", vxf[k], a_x[k]))
e(salu("s_mul_i32", s_t1, s_w, 448 * 1024, scc_w=False)); e(salu("s_lshl_b32", s_t3, s_cg, 7)); e(salu("s_add_u32", s_t1, s_t1, s_t3))
dma_voffs(v_dB, 1024, s_t1, True)
xaddr(vxa, vx)
e(valu("v_and_b32", V(51), 7, v_lane)); e(valu("v_lshlrev_b32", V(51), 2, V(51)))
e(salu("s_lshl_b32", s_t0, s_w, 12)); e(valu("v_add_u32", vfw, s_t0, v_lin))
e(salu("s_lshl_b32", s_t3, s_w, 4)); e(salu("s_add_u32", s_t3, s_t3, s_g)); e(salu("s_lshl_b32", s_t3, s_t3, 13))
early = em.out; em.out = save
class Seq:
    kind = "vmem"
    def __init__(self, l): self.l = l
    def __call__(self): return self.l
hld = {}; htok = {}
for kk in range(14):
    hld[kk] = [bload(hreg(kk, qb), v_lin, S_HC, s_hl, off=qb * 1024, mod="sc1") for qb in range(4)]
    htok[kk] = hld[kk][3]
    extra.setdefault(4 * (32 + kk) - 1, []).append((2, LateWait(lambda kk=kk: htok[kk]), 0))
hseq = []
for kk in range(14):
    for qb in range(4):
        hseq.append(Seq([salu("s_add_u32", s_hl, s_hb, kk * 4096), hld[kk][qb]]))
NPRE = int(os.environ.get("NPRE", "12")); HG0 = int(os.environ.get("HG0", "70")); HGS = int(os.environ.get("HGS", "4"))
for k in range(NPRE): extra.setdefault(HG0 + HGS * k, []).append((2, hseq[k], 1))
def sreg(ip, qb, odd=0): return v_acc[(((2 * ip + odd) * 4 + qb) * 4, 4)]
sp = []; spst = []
HPS = int(os.environ.get("HPS", "3")); hk = NPRE
for ip in range(4):
    for qb in range(4):
        t = sreg(ip, qb)
        for b in range(2):
            o = sreg(ip, qb, b)
            for k in range(2): sp.append(valu("v_cvt_pk_bf16_f32", t[2 * b + k], o[2 * k], o[2 * k + 1]))
        if (qb & 1) == 0: sp.append(salu("s_add_u32", s_t1, s_t3, (ip >> 1) * 65536 + (qb >> 1) * 4096))
        st = bstore(t, v_lin, S_SP, s_t1, off=(qb & 1) * 2048 + (ip & 1) * 1024, mod=os.environ.get("ST_MOD", "sc1").replace("plain", ""))
        if os.environ.get("ST_NONE") and not (ip == 3 and qb == 3): st = nop(0)
        sp.append(st); spst.append(st)
        if not (XY and ip < 2):
            for _ in range(HPS * (2 if XY else 1)):
                if hk < 48: sp.append(hseq[hk]); hk += 1
for k in range(hk, 48): sp.append(hseq[k])
for k in range(48, 56): extra.setdefault(140 + (k - 48), []).append((2, hseq[k], 1))
class SigS:
    def __call__(self):
        stamp(); em.wait(vm=spst[-1]); stamp(); e(raw("s_barrier"))
        e(scmp("s_cmp_lg_u32", s_w, 0)); e(raw("s_cbranch_scc1 L_sigS", rd=["scc"]))
        e(valu("v_mov_b32", v_t, 1))
        e(raw("s_mov_b64 exec, 1", "salu", wr=["exec"]))
        e(raw("buffer_store_dword %s, off, %s, %s sc1" % (v_t, S_FL, s_myfl)))
        e(raw("s_mov_b64 exec, -1", "salu", wr=["exec"]))
        em.label("L_sigS")
        return []
G_SIG = int(os.environ.get("G_SIG", "160")); G_POLL = int(os.environ.get("G_POLL", "172")); G_CHK = int(os.environ.get("G_CHK", "178"))
extra.setdefault(G_SIG, []).append((0, SigS(), 0))
vpa = V(51)
ptok = bload(vpoll, vpa, S_FL, s_t2, n=1, mod="sc1")
extra.setdefault(G_POLL, []).append((1, [salu("s_lshl_b32", s_t2, s_cq, 7)], 0))
extra.setdefault(G_POLL, []).append((2, ptok, 1))
def spl(gp, i): return sreg(gp >> 1, (gp & 1) * 2 + i, 1)
sl = []
class ChkS:
    def __call__(self):
        em.wait(vm=ptok)
        stamp()
        e(salu("s_mov_b32", s_cnt, 0, scc_w=False))
        em.label("L_pollS")
        e(valu("v_cmp_ne_u32", "vcc", 1, vpoll)); e(nop(2))
        e(raw("s_cbranch_vccz L_pollS_done", rd=["vcc"]))
        e(salu("s_add_u32", s_cnt, s_cnt, 1)); e(scmp("s_cmp_ge_u32", s_cnt, 50000)); e(raw("s_cbranch_scc1 L_pollS_done", rd=["scc"]))
        e(raw("buffer_load_dword %s, %s, %s, %s offen sc1" % (vpoll, vpa, S_FL, s_t2))); e(raw("s_waitcnt vmcnt(0)")); e(raw("s_branch L_pollS"))
        em.label("L_pollS_done")
        stamp()
        e(salu("s_lshl_b32", s_t0, s_cg, 16)); e(salu("s_lshl_b32", s_t1, s_w, 11)); e(salu("s_add_u32", s_t0, s_t0, s_t1))
        for gp in range(8):
            for i in range(2): sl.append(e(bload(spl(gp, i), v_lin, S_SPC, s_t0, off=i * 1024, mod="sc1")))
            if gp < 7: e(salu("s_add_u32", s_t0, s_t0, 8192))
        return []
if G_CHK < 184: extra.setdefault(G_CHK, []).append((0, ChkS(), 0))
if STAMP: extra.setdefault(128, []).append((0, Stamp(), 0))
class Paced(VStream):
    def has(self, g): return self.i < len(self.items) and g >= self.start and self.i <= (g - self.start + 1) * len(self.items) // max(1, self.end - self.start)
    def quota(self, g): return 99 if g >= self.start else 0
class Multi:
    def __init__(self, *l): self.l = list(l)
    def cur(self, g):
        for x in self.l:
            if x.i < len(x.items): return x
        return self.l[-1]
    def has(self, g): return self.cur(g).has(g)
    def peek(self): return self.cur(0).peek()
    def pop(self): return self.cur(0).pop()
    def quota(self, g): return self.cur(g).quota(g)
    def used_quota(self): self.cur(0).used_quota()
SP_END = int(os.environ.get("SP_END", "146"))
if XY:
    half = sp.index(spst[7]) + 1
    vs = Multi(VStream(early, 2, 40), Paced(sp[:half], int(os.environ.get("X_START", "67")), int(os.environ.get("X_END", "75"))), Paced(sp[half:], 130, SP_END))
else:
    vs = Multi(VStream(early, 2, 40), Paced(sp, 130, SP_END))
class ChkEarly:
    def __call__(self):
        assert vs.l[0].i == len(vs.l[0].items); return []
extra.setdefault(59, []).append((0, ChkEarly(), 0))
run_stream(46, s2_dma, dtok2, s2_acc, s2_B, extra, vs, pos0=P2, ring=v_ring2)
stamp()
e(nop(6))
for qb in range(4):
    for u in range(4):
        if len(em.lgq) >= 12: em.wait(lg=em.lgq[-12])
        e(dswrite("ds_write_b128", vfw, a_F[((u * 4 + qb) * 4, 4)], qb * 16384 + u * 1024))
if G_CHK >= 184: ChkS()()
em.wait(lg0=True)
e(raw("s_barrier"))
def frr(ws_, u): return sreg(ws_, u, 0)
for ws_ in range(4):
    for u in range(4):
        if len(em.lgq) >= 14: em.wait(lg=em.lgq[-14])
        e(dsread("ds_read_b128", frr(ws_, u), v_wl, ws_ * 4096 + u * 1024))
em.wait(lg0=True)
v_fr = V(96, 16); vE = V(64, 16); vs_ = V(80, 16)
for u in range(4):
    for k in range(2):
        e(valu("v_pk_add_f32", frr(0, u)[(2 * k, 2)], frr(0, u)[(2 * k, 2)], frr(1, u)[(2 * k, 2)]))
        e(valu("v_pk_add_f32", frr(2, u)[(2 * k, 2)], frr(2, u)[(2 * k, 2)], frr(3, u)[(2 * k, 2)]))
for u in range(4):
    for k in range(2): e(valu("v_pk_add_f32", v_fr[(4 * u + 2 * k, 2)], frr(0, u)[(2 * k, 2)], frr(2, u)[(2 * k, 2)]))
for k in range(16): e(valu("v_mul_f32", vE[k], hx(f2u(-math.log2(math.e))), v_fr[k]))
for k in range(16): e(valu("v_exp_f32", vE[k], vE[k]))
for k in range(16): e(valu("v_add_f32", vE[k], "1.0", vE[k]))
for k in range(16): e(valu("v_rcp_f32", vE[k], vE[k]))
for k in range(16): e(valu("v_mul_f32", v_fr[k], v_fr[k], vE[k]))
for k in range(8):
    e(valu("v_lshlrev_b32", vE[2 * k], 16, vxf[k])); e(valu("v_and_b32", vE[2 * k + 1], "0xffff0000", vxf[k]))
for gp in range(8):
    em.wait(vm=sl[2 * gp + 1])
    for k in range(8):
        src = spl(gp, k >> 2)[k & 3]
        if gp == 0:
            e(valu("v_lshlrev_b32", vs_[2 * k], 16, src)); e(valu("v_and_b32", vs_[2 * k + 1], "0xffff0000", src))
        else:
            e(valu("v_lshlrev_b32", V(112 + 2 * (k & 3)), 16, src)); e(valu("v_and_b32", V(113 + 2 * (k & 3)), "0xffff0000", src))
            e(valu("v_pk_add_f32", vs_[(2 * k, 2)], vs_[(2 * k, 2)], V(112 + 2 * (k & 3), 2)))
if DUMP == "fin": dump_regs([vs_[i] for i in range(16)] + [v_fr[i] for i in range(16)])
for k in range(8): e(valu("v_pk_fma_f32", vE[(2 * k, 2)], vs_[(2 * k, 2)], v_fr[(2 * k, 2)], vE[(2 * k, 2)]))
for k in range(8): e(valu("v_cvt_pk_bf16_f32", vxf[k], vE[2 * k], vE[2 * k + 1]))
for u in range(4): e(bstore(vxf[(2 * u, 2)], vxa, S_OUT, 0, off=32 * u))
stamp()
em.label("L_end")
e(raw("s_endpgm"))
main_end = len(em.out)

em.lgq, em.vmq, em.pend = [], [], {}
em.label("L_fallback")
e(raw("s_waitcnt vmcnt(0) lgkmcnt(0)")); em._retire(em.vmq, 0); em._retire(em.lgq, 0)
e(salu("s_mov_b32", s_retry, 1, scc_w=False))
e(salu("s_mov_b32", s_kK, 0, scc_w=False))
fm = [V(40 + i) for i in range(4)]
for i in range(4): e(valu("v_mov_b32", fm[i], "0xff800000"))
em.label("L_fb_loop")
e(raw("s_barrier"))
e(salu("s_add_u32", "m0", s_m0b, 4 * 16384)); e(nop(0))
for j in range(4): e(dma(v_kd[j], S_K, s_kK, j * 1024))
em.wait(vm0=True)
e(raw("s_barrier"))
for kb in range(4):
    rr = [e(dsread("ds_read_b128", fr(ds), v_ka[ds], kb * 4096)) for ds in range(4)]
    em.wait(lg0=True)
    for ds in range(4):
        for qb in range(4):
            d = v_S[0][(qb * 4, 4)]
            e(mfma(d, fr(ds), Qf(qb, ds), 0 if ds == 0 else d))
    e(nop(7))
    for qb in range(4):
        e(valu("v_max3_f32", fm[qb], fm[qb], v_S[0][qb * 4], v_S[0][qb * 4 + 1])); e(valu("v_max3_f32", fm[qb], fm[qb], v_S[0][qb * 4 + 2], v_S[0][qb * 4 + 3]))
    e(nop(2))
e(salu("s_add_u32", s_kK, s_kK, 16384)); e(scmp("s_cmp_lt_u32", s_kK, 524288)); e(raw("s_cbranch_scc1 L_fb_loop", rd=["scc"]))
red4("v_max_f32", fm, [V(44 + i) for i in range(4)])
for qb in range(4):
    for k in range(4): e(valu("v_sub_f32", v_negm[qb * 4 + k], 0, fm[qb]))
e(raw("s_barrier"))
for m in (64, 65, 66):
    sa, dm = s1_dma(m); e(sa)
    for d in dm: e(d)
e(raw("s_branch L_att_start"))
em.label("L_code_end")
e(raw("s_endpgm"))

probs = check_hazards(em.out, "main") + loop_probs
for p in probs: print("; HAZARD", p, file=sys.stderr)
assert not probs

hdr = open(os.path.join(os.path.dirname(os.path.abspath(__file__)), "header.txt")).read()
print(hdr.rstrip())
print("; @launch grid=(256,1,1) block=(256,1,1) lds=163840")
print('.amdgcn_target "amdgcn-amd-amdhsa--gfx950"\n.text\n.globl %s\n.p2align 8\n.type %s,@function\n%s:' % (KN, KN, KN))
print(em.text())
print('.section .rodata,"a"\n.p2align 6\n.amdhsa_kernel %s' % KN)
print("  .amdhsa_next_free_vgpr 512\n  .amdhsa_next_free_sgpr 102\n  .amdhsa_accum_offset 256\n  .amdhsa_group_segment_fixed_size 0\n  .amdhsa_kernarg_size 96\n  .amdhsa_user_sgpr_count 2\n  .amdhsa_user_sgpr_kernarg_segment_ptr 1\n  .amdhsa_system_sgpr_workgroup_id_x 1\n.end_amdhsa_kernel")
```

```python
import sys, os, math, struct
from asmgen import *

KN = "recurrent_scan__gqa_block_cached__geglu_ffn__prompt_kernel"
DUMP = os.environ.get("DUMP", "")
STAMP = int(os.environ.get("STAMP", "0"))
GEL_END = int(os.environ.get("GEL_END", "228")); GEL_EXTRA = int(os.environ.get("GEL_EXTRA", "360"))

def f2u(x): return struct.unpack("<I", struct.pack("<f", x))[0]
def hx(x): return "0x%x" % (x & 0xffffffff)

S_X, S_K, S_V, S_WQ, S_WO, S_WG, S_WU, S_WD, S_OUT, S_DBG, S_H, S_SP = [S(4 + 4 * i, 4) for i in range(12)]
s_g, s_qb, s_w = S(52), S(53), S(54)
s_t0, s_t1, s_t2, s_t3 = S(55), S(56), S(57), S(58)
s_m0b = S(59)
s_off = S(60)
s_cnt = S(61)
s_kK, s_kV = S(62), S(63)
s_retry = S(64)
s_h0, s_h1 = S(65), S(66)
s_hl = S(67); s_hb = S(78); s_myfl = S(79)
s_ka = S(68, 16); s_kb = S(84, 8)
s_pair = S(92, 2); s_pair2 = S(94, 2)
S_DMP = S(96, 4)
s_cq, s_cg = S(76), S(77)
S_HC = S(80, 4)
S_SPC = S(84, 4)
S_XC = S(88, 4)
s_st = S(68, 4)

v_tid, v_lane, v_lin, v_t = V(0), V(1), V(2), V(3)
v_tr = [V(4, 4), V(8, 4)]
v_dA, v_dB = V(12, 4), V(16, 4)
v_ka = V(20, 4); v_va = V(24, 8); v_kd = V(32, 4); v_vd = V(36, 2)
v_wl = V(38)
v_c = V(39)
v_l0, v_l1 = V(40, 4), V(44, 4)
v_lsave = V(16, 4)
v_negm = V(48, 16)
v_S = [V(64, 32), V(96, 32)]
v_acc = V(128, 128)
a_ring = A(128, 32)
a_B = A(160, 32)
a_Q = A(0, 64)
a_F = A(0, 64)
a_x = A(248, 8)

RING = 65536
MARK = 0x7fc17fc1
WS_SP = 8 << 20
WS_DUMP = 32 << 20
WS_FL = (7 << 20) + (512 << 10)
S_FL = S(4, 4)

em = Em()
e = em.e

def srd(dst, lo, hi, size, off_s=None):
    if off_s is None:
        e(salu("s_mov_b32", dst[0], lo, scc_w=False)); e(salu("s_mov_b32", dst[1], hi, scc_w=False))
    else:
        e(salu("s_add_u32", dst[0], lo, off_s)); e(salu("s_addc_u32", dst[1], hi, 0, scc_r=True))
    e(salu("s_mov_b32", dst[2], hx(size), scc_w=False)); e(salu("s_mov_b32", dst[3], "0x20000", scc_w=False))

DIAG = int(os.environ.get("DIAG", "0"))
HC_OFF = 128
diag_regs = [S(100, 2), S(70, 2), S(72, 2), S(74, 2), S(96, 2), S(98, 2), S(68, 2)]
diag_n = [0]
def diag():
    if not DIAG: return
    k = diag_n[0]; diag_n[0] += 1
    e(raw("s_memrealtime %s" % diag_regs[k], "other", wr=[diag_regs[k]]))
    if k > 0: e(raw("s_waitcnt lgkmcnt(0)", "wait")); em._retire(em.lgq, 0)
def diag_out():
    if not DIAG: return
    diag()
    e(raw("s_mov_b64 exec, 1", "salu", wr=["exec"]))
    e(salu("s_not_b32", s_t0, diag_regs[0][0]))
    for k in range(diag_n[0]):
        e(valu("v_mov_b32", V(4 + k), s_t0 if k == 0 else diag_regs[k][0]))
        e(raw("buffer_atomic_umax %s, off, %s, 0 offset:%d sc1" % (V(4 + k), S_DBG, 4 * k)))
    e(valu("v_mov_b32", V(12), diag_regs[0][0]))
    e(raw("buffer_atomic_umax %s, off, %s, 0 offset:%d sc1" % (V(12), S_DBG, 4 * 8)))
stamp_n = [0]
def stamp():
    if not STAMP: return
    k = stamp_n[0]; stamp_n[0] += 1
    e(raw("s_memtime %s" % S(68, 2), "other", wr=[S(68, 2)]))
    e(raw("s_memrealtime %s" % S(70, 2), "other", wr=[S(70, 2)]))
    e(raw("s_waitcnt lgkmcnt(0)", "wait")); em._retire(em.lgq, 0)
    for i in range(4): e(valu("v_writelane_b32", v_c, S(68 + i), i, rmw=True))
    e(salu("s_lshl_b32", S(72), S(2), 2)); e(salu("s_add_u32", S(72), S(72), s_w)); e(salu("s_lshl_b32", S(72), S(72), 9))
    e(salu("s_mov_b64", S(74, 2), "exec", scc_w=False)); e(raw("s_mov_b64 exec, 15", "salu", wr=["exec"]))
    e(valu("v_lshlrev_b32", v_t, 2, v_lane))
    e(bstore(v_c, v_t, S_DMP, S(72), off=k * 16))
    e(raw("s_mov_b64 exec, %s" % S(74, 2), "salu", wr=["exec"]))
    e(valu("v_lshlrev_b32", v_t, 7, v_lane))

def dump_regs(regs, finish=True):
    em.wait(lg0=True, vm0=True)
    e(nop(7)); e(nop(7))
    n = len(regs)
    e(salu("s_lshl_b32", s_t0, S(2), 2)); e(salu("s_add_u32", s_t0, s_t0, s_w)); e(salu("s_mul_i32", s_t0, s_t0, n * 256, scc_w=False))
    e(valu("v_lshlrev_b32", v_t, 2, v_lane))
    for k, r in enumerate(regs):
        e(bstore(r, v_t, S_DMP, s_t0, off=0))
        e(salu("s_add_u32", s_t0, s_t0, 256))
        if k % 32 == 31: em.wait(vm0=True)
    em.wait(vm0=True)
    if finish: e(raw("s_endpgm"))

def red4(op, x, tmp):
    for sw in ("v_permlane32_swap_b32", "v_permlane16_swap_b32"):
        for a, t in zip(x, tmp): e(valu("v_mov_b32", t, a))
        if len(x) < 3: e(nop(1))
        for a, t in zip(x, tmp): e(valu(sw, a, t))
        for a, t in zip(x, tmp): e(valu(op, a, a, t))

e(scmp("s_cmp_ge_u32", S(2), 256)); e(raw("s_cbranch_scc1 L_end", rd=["scc"]))
diag()
i0 = e(I("s_load_dwordx16 %s, s[0:1], 0" % s_ka, "smem", wr=s_ka.regs()))
i1 = e(I("s_load_dwordx8 %s, s[0:1], 64" % s_kb, "smem", wr=s_kb.regs()))
e(salu("s_and_b32", s_g, S(2), 7)); e(salu("s_lshr_b32", s_qb, S(2), 3))
e(valu("v_and_b32", v_lane, 63, v_tid))
e(valu("v_lshrrev_b32", v_t, 6, v_tid))
e(valu("v_lshlrev_b32", v_lin, 4, v_lane))
e(valu("v_readfirstlane_b32", s_w, v_t))
vq, vG, vr, vc_, vx, vy, vz = [V(40 + i) for i in range(7)]
e(valu("v_and_b32", vq, 15, v_lane)); e(valu("v_lshrrev_b32", vG, 4, v_lane))
vxo = V(47)
e(valu("v_lshl_add_u32", vxo, v_t, 4, vq)); e(valu("v_lshlrev_b32", vxo, 10, vxo)); e(valu("v_lshl_add_u32", vxo, vG, 4, vxo))
e(salu("s_lshl_b32", s_t0, s_qb, 16))
em.wait(lg0=True)
srd(S_X, s_ka[0], s_ka[1], 65536, s_t0)
v_xp = V(64, 64)
xl = []
for ks in range(16):
    xl.append(e(bload(v_xp[(4 * ks, 4)], vxo, S_X, 0, off=64 * ks)))
e(salu("s_lshr_b32", s_t2, s_qb, 3)); e(salu("s_lshl_b32", s_t3, s_g, 2)); e(salu("s_add_u32", s_t2, s_t2, s_t3))
e(salu("s_lshl_b32", s_t0, s_t2, 16))
srd(S_OUT, s_kb[2], s_kb[3], 65536, s_t0)
e(salu("s_lshl_b32", s_t1, s_g, 19))
srd(S_K, s_ka[2], s_ka[3], 524288, s_t1)
srd(S_V, s_ka[4], s_ka[5], 524288, s_t1)
srd(S_WO, s_ka[8], s_ka[9], 524288, s_t1)
srd(S_WQ, s_ka[6], s_ka[7], 4 << 20)
srd(S_WG, s_ka[12], s_ka[13], 1835008)
srd(S_WU, s_ka[14], s_ka[15], 1835008)
srd(S_WD, s_kb[0], s_kb[1], 1835008)
srd(S_DBG, s_kb[4], s_kb[5], 256)
e(salu("s_mul_i32", s_t1, s_qb, 229376, scc_w=False))
srd(S_H, s_kb[6], s_kb[7], 229376, s_t1)
e(salu("s_lshl_b32", s_t1, s_qb, 19)); e(salu("s_add_u32", s_t1, s_t1, hx(WS_SP)))
srd(S_SP, s_kb[6], s_kb[7], 524288, s_t1)
if DUMP or STAMP:
    e(salu("s_mov_b32", s_t1, hx(WS_DUMP), scc_w=False))
    srd(S_DMP, s_kb[6], s_kb[7], 200 << 20, s_t1)
e(salu("s_mov_b64", s_pair, S(90, 2), scc_w=False))
e(salu("s_lshl_b32", s_t0, s_t2, 16))
srd(S_XC, s_ka[0], s_ka[1], 65536, s_t0)
e(salu("s_mul_i32", s_t1, s_t2, 229376, scc_w=False))
srd(S_HC, s_pair[0], s_pair[1], 229376, s_t1)
e(salu("s_lshl_b32", s_t1, s_t2, 19)); e(salu("s_add_u32", s_t1, s_t1, hx(WS_SP)))
srd(S_SPC, s_pair[0], s_pair[1], 524288, s_t1)
e(salu("s_mov_b32", s_cq, s_t2, scc_w=False)); e(salu("s_and_b32", s_cg, s_qb, 7))
e(salu("s_mov_b32", s_t1, hx(WS_FL), scc_w=False))
srd(S_FL, s_pair[0], s_pair[1], 4096, s_t1)
e(salu("s_lshl_b32", s_myfl, s_qb, 7)); e(salu("s_lshl_b32", s_t1, s_g, 2)); e(salu("s_add_u32", s_myfl, s_myfl, s_t1))
e(salu("s_lshl_b32", s_m0b, s_w, 12)); e(salu("s_add_u32", s_m0b, s_m0b, RING))
e(salu("s_and_b32", s_t1, s_g, 1)); e(salu("s_lshl_b32", s_t1, s_t1, 2)); e(salu("s_add_u32", s_t1, s_t1, s_w))
e(scmp("s_cmp_eq_u32", s_w, 3)); e(salu("s_cselect_b32", s_t1, 3, s_t1, scc_w=False, scc_r=True))
e(salu("s_lshr_b32", s_t2, s_g, 1)); e(salu("s_mul_i32", s_t2, s_t2, 7, scc_w=False)); e(salu("s_add_u32", s_t1, s_t1, s_t2))
e(salu("s_lshl_b32", s_h0, s_t1, 13)); e(salu("s_add_u32", s_h1, s_h0, 4096))
e(salu("s_lshl_b32", s_t1, s_t1, 7))
e(salu("s_lshl_b32", s_t2, s_g, 2)); e(salu("s_add_u32", s_t2, s_t2, s_w)); e(salu("s_lshl_b32", s_t2, s_t2, 8))

def dma_voffs(dst, stride, colbase_s, perm):
    for j in range(4):
        e(valu("v_bfe_u32", vx, v_lane, 1, 2)); e(valu("v_bfe_u32", vy, v_lane, 4, 1))
        e(valu("v_xor_b32", vx, vx, vy))
        if j & 1: e(valu("v_xor_b32", vx, 2, vx))
        e(valu("v_and_b32", vy, 1, v_lane)); e(valu("v_lshlrev_b32", vy, 4, vy)); e(valu("v_lshl_add_u32", vx, vx, 5, vy))
        if not perm:
            e(valu("v_lshrrev_b32", vy, 3, v_lane)); rowadd = 8 * j
        else:
            e(valu("v_bfe_u32", vy, v_lane, 3, 2)); e(valu("v_bfe_u32", vz, v_lane, 5, 1)); e(valu("v_lshl_add_u32", vy, vz, 4, vy)); rowadd = 4 * j
        e(valu("v_mul_u32_u24", vy, stride, vy))
        e(valu("v_add3_u32", vx, vx, vy, colbase_s))
        e(valu("v_add_u32", dst[j], rowadd * stride - j * 1024, vx))

dma_voffs(v_dA, 3584, s_t1, False)
dma_voffs(v_dB, 8192, s_t2, False)

def m0set(p): return salu("s_add_u32", "m0", s_m0b, p * 16384)
def s1_dma(m):
    p = m % 6
    if m < 32:
        s, h = m >> 1, m & 1
        return [m0set(p), salu("s_mov_b32", s_off, s * 32 * 3584, scc_w=False)], [dma(v_dA[j], S_WU if h else S_WG, s_off, j * 1024) for j in range(4)]
    if m < 64:
        s, h = (m - 32) >> 1, m & 1
        return [m0set(p), salu("s_mov_b32", s_off, s * 32 * 8192 + 128 * h, scc_w=False)], [dma(v_dB[j], S_WQ, s_off, j * 1024) for j in range(4)]
    if m == 64:
        return [m0set(p), salu("s_mov_b32", s_off, 0, scc_w=False)], [dma(v_kd[j], S_K, s_off, j * 1024) for j in range(4)]
    if m == 65:
        return [m0set(p), salu("s_mov_b32", s_off, 8192, scc_w=False)], [dma(v_kd[j], S_K, s_off, j * 1024) for j in range(4)]
    if m == 66:
        return [m0set(p), salu("s_mov_b32", s_off, 0, scc_w=False)], [dma(v_vd[j & 1], S_V, s_off, j * 1024) for j in range(4)]
    return None
dtok = {}
for m in range(6):
    sa, dm = s1_dma(m)
    e(sa);
    for d in dm: e(d)
    dtok[m] = dm[3]

def xaddr(dst, tmp):
    e(valu("v_and_b32", dst, 15, v_lane)); e(salu("s_lshl_b32", s_t0, s_w, 4)); e(valu("v_add_u32", dst, s_t0, dst)); e(valu("v_lshlrev_b32", dst, 10, dst))
    e(valu("v_lshrrev_b32", tmp, 4, v_lane)); e(valu("v_lshl_add_u32", dst, tmp, 3, dst)); e(salu("s_lshl_b32", s_t0, s_cg, 7)); e(valu("v_add_u32", dst, s_t0, dst))
e(valu("v_mov_b32", vz, 0))
e(raw("s_mov_b64 exec, 1", "salu", wr=["exec"]))
e(bstore(vz, None, S_FL, s_myfl, mod="sc1"))
e(raw("s_mov_b64 exec, -1", "salu", wr=["exec"]))
xaddr(vx, vy)
for u in range(4): e(bload(a_x[(2 * u, 2)], vx, S_XC, 0, off=32 * u, n=2))
vw = V(48)
e(salu("s_mul_i32", s_t1, s_g, 448, scc_w=False)); e(salu("s_and_b32", s_t1, s_t1, hx(~127)))
e(salu("s_mul_i32", s_t2, s_qb, 16 * 3584, scc_w=False)); e(salu("s_add_u32", s_t1, s_t1, s_t2))
e(valu("v_lshrrev_b32", vx, 2, v_lane)); e(valu("v_mul_u32_u24", vx, 3584, vx)); e(valu("v_and_b32", vy, 3, v_lane)); e(valu("v_lshl_add_u32", vx, vy, 7, vx))
e(scmp("s_cmp_ge_u32", s_w, 2)); e(raw("s_cbranch_scc1 L_warm_q", rd=["scc"]))
e(scmp("s_cmp_eq_u32", s_w, 1)); e(raw("s_cbranch_scc1 L_warm_u", rd=["scc"]))
w0 = raw("buffer_load_dword %s, %s, %s, %s offen" % (vw, vx, S_WG, s_t1)); e(w0)
e(raw("s_branch L_warm_done"))
em.label("L_warm_u")
e(raw("buffer_load_dword %s, %s, %s, %s offen" % (vw, vx, S_WU, s_t1)))
e(raw("s_branch L_warm_done"))
em.label("L_warm_q")
e(salu("s_lshl_b32", s_t1, s_qb, 4)); e(salu("s_lshl_b32", s_t2, s_w, 3)); e(salu("s_add_u32", s_t1, s_t1, s_t2)); e(salu("s_sub_u32", s_t1, s_t1, 16))
e(salu("s_lshl_b32", s_t1, s_t1, 13)); e(salu("s_lshl_b32", s_t2, s_g, 10)); e(salu("s_add_u32", s_t1, s_t1, s_t2))
e(valu("v_lshrrev_b32", vx, 3, v_lane)); e(valu("v_lshlrev_b32", vx, 13, vx)); e(valu("v_and_b32", vy, 7, v_lane)); e(valu("v_lshl_add_u32", vx, vy, 7, vx))
e(raw("buffer_load_dword %s, %s, %s, %s offen" % (vw, vx, S_WQ, s_t1)))
em.label("L_warm_done")
wtok = I("; warm", "vmem", wr=vw.regs()); em.vmq.append(wtok); em.pend[str(vw)] = wtok
e(raw("s_getpc_b64 %s" % s_pair, "salu", wr=[s_pair]))
em.label("L_pc0")
e(valu("v_lshlrev_b32", vy, 7, v_tid))
for k in range(2):
    e(valu("v_min_u32", vx, "L_code_end-L_pc0-4", vy))
    e(I("global_load_dword %s, %s, %s" % (V(49 + k), vx, s_pair), "vmem", rd=vx.regs() + s_pair.regs(), wr=V(49 + k).regs()))
    if k == 0: e(valu("v_add_u32", vy, 0x8000, vy))

e(valu("v_bfe_u32", vr, v_lane, 2, 2)); e(valu("v_and_b32", vc_, 3, v_lane))
e(valu("v_lshlrev_b32", vx, 10, vG)); e(valu("v_lshl_add_u32", vx, vr, 7, vx)); e(valu("v_lshl_add_u32", vx, vc_, 3, vx)); e(valu("v_add_u32", vx, s_m0b, vx))
e(valu("v_lshrrev_b32", vy, 1, vr)); e(valu("v_and_b32", vz, 1, vG)); e(valu("v_lshl_add_u32", vy, vz, 1, vy))
for u in range(4):
    e(valu("v_xor_b32", vz, u, vy)); e(valu("v_lshl_add_u32", v_tr[0][u], vz, 5, vx)); e(valu("v_add_u32", v_tr[1][u], 3 * 16384, v_tr[0][u]))
e(valu("v_xor_b32", vy, vG, vq))
for ds in range(4):
    e(valu("v_xor_b32", vz, 4 * ds, vy)); e(valu("v_lshlrev_b32", vz, 4, vz)); e(valu("v_lshl_add_u32", vz, vq, 8, vz)); e(valu("v_add_u32", v_ka[ds], RING + 4 * 16384, vz))
e(valu("v_lshl_add_u32", vx, vG, 2, vr)); e(valu("v_and_b32", vy, 7, vx)); e(valu("v_lshlrev_b32", vx, 8, vx)); e(valu("v_lshl_add_u32", vx, vc_, 3, vx)); e(valu("v_add_u32", vx, RING, vx))
for db in range(8):
    e(valu("v_xor_b32", vz, db, vy)); e(valu("v_lshl_add_u32", v_va[db], vz, 5, vx))
e(salu("s_lshl_b32", s_t1, s_w, 12))
e(valu("v_lshlrev_b32", vx, 8, vG)); e(valu("v_add_u32", vx, s_t1, vx))
for j in range(4):
    e(valu("v_add_u32", vy, 4 * j, vG)); e(valu("v_xor_b32", vy, vy, vq)); e(valu("v_lshl_add_u32", v_kd[j], vy, 4, vx))
e(valu("v_and_b32", vz, 1, v_lane)); e(valu("v_lshl_add_u32", vx, vz, 4, vx))
for j in range(2):
    e(valu("v_add_u32", vy, 4 * j, vG)); e(valu("v_lshrrev_b32", vz, 1, vq)); e(valu("v_xor_b32", vy, vy, vz)); e(valu("v_lshl_add_u32", v_vd[j], vy, 5, vx))
e(salu("s_lshl_b32", s_t1, s_w, 14)); e(valu("v_add_u32", v_wl, s_t1, v_lin))
e(salu("s_mov_b32", s_retry, 0, scc_w=False))
stamp()

v_f = V(128, 128)
acc = [V(52, 2), V(54, 2), V(56, 2), V(58, 2)]
for ks in range(16):
    em.wait(vm=xl[ks])
    for k in range(4):
        p = 4 * ks + k
        e(valu("v_lshlrev_b32", v_f[2 * p], 16, v_xp[p])); e(valu("v_and_b32", v_f[2 * p + 1], "0xffff0000", v_xp[p]))
    for k in range(4):
        p = 4 * ks + k
        if ks == 0: e(valu("v_mov_b64", acc[k], v_f[(2 * p, 2)]))
        else: e(valu("v_pk_add_f32", acc[k], acc[k], v_f[(2 * p, 2)]))
e(valu("v_pk_add_f32", acc[0], acc[0], acc[1])); e(valu("v_pk_add_f32", acc[2], acc[2], acc[3])); e(valu("v_pk_add_f32", acc[0], acc[0], acc[2]))
vsum, vtmp, vmb, vdm = V(60), V(61), V(62), V(63)
e(valu("v_add_f32", vsum, acc[0][0], acc[0][1]))
red4("v_add_f32", [vsum], [vtmp])
e(valu("v_mul_f32", vsum, hx(f2u(1.0 / 512)), vsum))
e(valu("v_cvt_pk_bf16_f32", vmb, vsum, vsum)); e(valu("v_lshlrev_b32", vmb, 16, vmb))
e(valu("v_sub_f32", vdm, vsum, vmb))
vneg = V(52, 2)
e(valu("v_sub_f32", vneg[0], 0, vmb))
acc2 = [V(54, 2), V(56, 2), V(58, 2)]
for p in range(64):
    e(valu("v_pk_add_f32", v_f[(2 * p, 2)], v_f[(2 * p, 2)], vneg, mod="op_sel_hi:[1,0]"))
for p in range(64):
    a_ = acc2[p % 3]
    if p < 3: e(valu("v_pk_mul_f32", a_, v_f[(2 * p, 2)], v_f[(2 * p, 2)]))
    else: e(valu("v_pk_fma_f32", a_, v_f[(2 * p, 2)], v_f[(2 * p, 2)], a_))
e(valu("v_pk_add_f32", acc2[0], acc2[0], acc2[1])); e(valu("v_pk_add_f32", acc2[0], acc2[0], acc2[2]))
e(valu("v_add_f32", vsum, acc2[0][0], acc2[0][1]))
red4("v_add_f32", [vsum], [vtmp])
e(valu("v_mul_f32", vsum, hx(f2u(1.0 / 512)), vsum))
e(valu("v_fma_f32", vsum, "-" + str(vdm), vdm, vsum, extra_rd=vdm.regs()))
e(valu("v_max_f32", vsum, 0, vsum))
e(valu("v_cvt_pk_bf16_f32", vsum, vsum, vsum)); e(valu("v_lshlrev_b32", vsum, 16, vsum))
e(valu("v_add_f32", vsum, hx(f2u(1e-5)), vsum))
e(valu("v_cvt_pk_bf16_f32", vsum, vsum, vsum)); e(valu("v_lshlrev_b32", vsum, 16, vsum))
e(valu("v_sqrt_f32", vsum, vsum)); e(nop(0))
e(valu("v_cvt_pk_bf16_f32", vsum, vsum, vsum)); e(valu("v_lshlrev_b32", vsum, 16, vsum))
e(valu("v_rcp_f32", vneg[0], vsum)); e(nop(0))
for ks in range(16):
    for k in range(4):
        p = 4 * ks + k
        e(valu("v_pk_mul_f32", v_f[(2 * p, 2)], v_f[(2 * p, 2)], vneg, mod="op_sel_hi:[1,0]"))
    for k in range(4):
        p = 4 * ks + k
        e(valu("v_cvt_pk_bf16_f32", v_xp[p], v_f[2 * p], v_f[2 * p + 1]))
    e(dswrite("ds_write_b128", v_wl, v_xp[(4 * ks, 4)], ks * 1024))
if DUMP == "ln": dump_regs([v_xp[i] for i in range(64)])
em.wait(lg0=True)
e(raw("s_barrier"))
stamp(); diag()

def run_stream(NH, dmaf, dtok, accf, Bf, extra, vstream, LOOK=6, nq=4, pos0=0, ring=a_ring):
    NG = 4 * NH
    rtok = {}
    def reads(g):
        m, u = g >> 2, g & 3
        p = (m + pos0) % 6
        d = ring[((g % 8) * 4, 4)]
        r = [dsread("ds_read_b64_tr_b16", d[(2 * h2, 2)], v_tr[p // 3][u], (p % 3) * 16384 + h2 * 512) for h2 in range(2)]
        rtok[g] = r[1]
        return r
    em.wait(vm=dtok[0])
    for g in range(3): e(reads(g))
    for pre in extra.get(-1, []): e(pre[1])
    em.wait(lg0=True)
    vi = 0
    for g in range(NG):
        m, u = g >> 2, g & 3
        gaps = [[], [], [], []]; cap = [2, 2, 2, 2]
        if g + 3 < NG:
            if (g + 3) & 3 == 0: gaps[0].append(Wait(vm=dtok[(g + 3) >> 2]))
            r = reads(g + 3); gaps[0].append(r[0]); gaps[1].append(r[1]); cap[0] -= 1; cap[1] -= 1
        md, j = (g + 4 * LOOK - 4) >> 2, (g + 4 * LOOK - 4) & 3
        if md >= LOOK:
            if j == 0: cur = dmaf(md)
            if cur is not None:
                if j == 0: gaps[2] += cur[0]
                items = cur[1][j::4]
                for it in items: gaps[3].append(it); cap[3] -= 1
                if j == 3: dtok[md] = cur[1][3]
        for (gp, it, cost) in extra.get(g, []):
            gaps[gp].append(it); cap[gp] -= cost
        if g + 1 < NG: gaps[3].insert(0, Wait(lg=rtok[g + 1]))
        d = ring[((g % 8) * 4, 4)]
        for qb in range(nq):
            ac, first = accf(m, u, qb)
            e(mfma(ac, d, Bf(m, qb), 0 if first else ac))
            for it in gaps[qb]: e(it)
            c = cap[qb]
            quota = vstream.quota(g) if vstream else 0
            while vstream and vstream.has(g) and (c > 0 or quota > 0):
                it = vstream.peek()
                cost = 2 if it.kind == "trans" else 1
                if cost > c and quota <= 0: break
                if cost > c: quota -= 1; vstream.used_quota()
                e(vstream.pop()); c -= cost
    if vstream:
        while vstream.has(10 ** 9): e(vstream.pop())

class VStream:
    def __init__(self, items, start, end, extra_total=0):
        self.items = items; self.i = 0; self.start = start; self.end = end
        self.extra_total = extra_total; self.used = 0
    def has(self, g): return self.i < len(self.items) and g >= self.start
    def peek(self): return self.items[self.i]
    def pop(self): self.i += 1; return self.items[self.i - 1]
    def quota(self, g):
        if g < self.start: return 0
        allowed = (g - self.start + 1) * self.extra_total // max(1, self.end - self.start)
        return 1 if allowed > self.used else 0
    def used_quota(self): self.used += 1

def s1_acc(m, u, qb):
    h = m & 1
    idx = ((h * 4 + u) * 4 + qb) * 4
    if m < 32: return A(idx, 4), m < 2
    return v_acc[(idx, 4)], m < 34
def s1_B(m, qb): return a_B[(((m >> 1) & 1) * 16 + qb * 4, 4)]
extra = {}
btok = {}
def bread(s, qb): return dsread("ds_read_b128", a_B[((s & 1) * 16 + qb * 4, 4)], v_lin, (qb * 16 + (s % 16)) * 1024)
extra[-1] = [(0, bread(0, qb), 1) for qb in range(4)]
for s in range(1, 32):
    for qb in range(4):
        extra.setdefault(8 * (s - 1) + 1 + qb, []).append((2, bread(s, qb), 1))
C0 = -2.0 * math.sqrt(2.0 / math.pi) * math.log2(math.e); C1 = C0 * 0.044715
vc0, vc1 = V(40), V(41)
gel = [valu("v_mov_b32", vc0, hx(f2u(C0))), valu("v_mov_b32", vc1, hx(f2u(C1)))]
hst = []
tb = 0
for i in range(2):
    for qb in range(4):
        pk = V(44 + 4 * (tb % 4), 4); tb += 1
        for b in range(2):
            u = 2 * i + b
            T = [V(64 + 16 * ((2 * tb + b) % 4) + k) for k in range(16)]
            G_, U_, X_ = T[0:4], T[4:8], T[8:12]
            ga = lambda r: A((u * 4 + qb) * 4 + r); ua = lambda r: A(((4 + u) * 4 + qb) * 4 + r)
            for r in range(4): gel.append(valu("v_accvgpr_read_b32", G_[r], ga(r)))
            for r in range(4): gel.append(valu("v_accvgpr_read_b32", U_[r], ua(r)))
            for r in range(4): gel.append(valu("v_mul_f32", X_[r], G_[r], G_[r]))
            for r in range(4): gel.append(valu("v_fma_f32", X_[r], X_[r], vc1, vc0))
            for r in range(4): gel.append(valu("v_mul_f32", X_[r], X_[r], G_[r]))
            for r in range(4): gel.append(valu("v_exp_f32", X_[r], X_[r]))
            for r in range(4): gel.append(valu("v_mul_f32", G_[r], G_[r], U_[r]))
            for r in range(4): gel.append(valu("v_add_f32", X_[r], "1.0", X_[r]))
            for r in range(4): gel.append(valu("v_rcp_f32", X_[r], X_[r]))
            gel.append(nop(0))
            for r in range(4): gel.append(valu("v_mul_f32", G_[r], G_[r], X_[r]))
            for k in range(2): gel.append(valu("v_cvt_pk_bf16_f32", pk[2 * b + k], G_[2 * k], G_[2 * k + 1]))
        st = bstore(pk, v_lin, S_H, s_h1 if i else s_h0, off=qb * 1024, mod="sc1")
        gel.append(st); hst.append(st)
class Stamp:
    def __call__(self): stamp(); return []
if STAMP: extra.setdefault(128, []).append((0, Stamp(), 0))
vs = VStream(gel, 131, GEL_END, extra_total=GEL_EXTRA)
run_stream(64, s1_dma, dtok, s1_acc, s1_B, extra, vs)
if DUMP == "qacc": dump_regs([v_acc[i] for i in range(128)])
stamp()

em.wait(lg0=True)
e(raw("s_barrier"))
def signal(off_s_expr_add, lab):
    e(scmp("s_cmp_lg_u32", s_w, 0)); e(raw("s_cbranch_scc1 %s" % lab, rd=["scc"]))
    e(salu("s_lshl_b32", s_t0, s_qb, 2))
    if off_s_expr_add: e(salu("s_add_u32", s_t0, s_t0, off_s_expr_add))
    e(valu("v_mov_b32", v_t, 1))
    e(raw("s_mov_b64 exec, 1", "salu", wr=["exec"]))
    e(raw("buffer_atomic_add %s, off, %s, %s sc1" % (v_t, S_DBG, s_t0)))
    e(raw("s_mov_b64 exec, -1", "salu", wr=["exec"]))
    em.label(lab)
QS = math.log2(math.e) / math.sqrt(128.0)
vqs = V(40, 2); vqw = V(42)
e(valu("v_mov_b32", vqs[0], hx(f2u(QS))))
e(valu("v_and_b32", v_t, 15, v_lane)); e(valu("v_bfe_u32", vqw, v_lane, 5, 1)); e(valu("v_lshl_add_u32", v_t, vqw, 4, v_t)); e(valu("v_lshlrev_b32", v_t, 4, v_t))
e(valu("v_bfe_u32", vqw, v_lane, 4, 1)); e(valu("v_lshl_add_u32", vqw, vqw, 3, v_t))
e(salu("s_lshl_b32", s_t1, s_w, 14)); e(valu("v_add_u32", vqw, s_t1, vqw))
for blk in range(8):
    for qb in range(4):
        a_ = v_acc[((blk * 4 + qb) * 4, 4)]
        t = V(64 + 2 * ((blk * 4 + qb) % 8), 2)
        for k in range(2): e(valu("v_pk_mul_f32", a_[(2 * k, 2)], a_[(2 * k, 2)], vqs, mod="op_sel_hi:[1,0]"))
        for k in range(2): e(valu("v_cvt_pk_bf16_f32", t[k], a_[2 * k], a_[2 * k + 1]))
        if len(em.lgq) >= 7: em.wait(lg=em.lgq[-7])
        e(dswrite("ds_write_b64", vqw, t, (qb * 4 + (blk >> 1)) * 1024 + (blk & 1) * 512))
em.wait(lg0=True)
for f in range(16):
    e(dsread("ds_read_b128", a_Q[(4 * f, 4)], v_wl, f * 1024))
    if f == 7: pass
vx, vy, vz = V(96), V(97), V(98)
e(salu("s_lshl_b32", s_t1, s_w, 8))
dma_voffs(v_dA, 1024, s_t1, True)
em.label("L_att_start")
for i in range(64): e(valu("v_mov_b64", v_acc[(2 * i, 2)], 0))
for i in range(4): e(valu("v_mov_b32", v_l0[i], 0)); e(valu("v_mov_b32", v_l1[i], 0))
em.wait(vm0=True, lg0=True)
e(raw("s_barrier"))
e(scmp("s_cmp_lg_u32", s_retry, 0)); e(raw("s_cbranch_scc1 L_sigH", rd=["scc"]))
signal(HC_OFF, "L_sigH")
if DUMP == "q": dump_regs([a_Q[i] for i in range(64)])
stamp()

def Qf(qb, ds): return a_Q[((qb * 4 + ds) * 4, 4)]
def Of(db, qb): return v_acc[((db * 4 + qb) * 4, 4)]
def fr(f): return a_ring[((f % 8) * 4, 4)]
def kslot(par): return 16384 if par == 0 else 0
def vslot(par): return 0 if par == 0 else 16384
def frag_reads(par, f):
    if f >= 32: par ^= 1; f -= 32
    d = fr(f)
    if f < 8 or 16 <= f < 24:
        kb = (f >> 2) if f < 8 else 2 + ((f - 16) >> 2)
        return [dsread("ds_read_b128", d, v_ka[f & 3], kslot(par) + kb * 4096)]
    ks2 = 0 if f < 16 else 1
    db = f & 7
    return [dsread("ds_read_b64_tr_b16", d[(2 * h, 2)], v_va[db], vslot(par) + ks2 * 8192 + h * 4096) for h in range(2)]
def read_sched(g):
    r = []
    if g + 3 < 24 or g >= 29: r.append(g + 3)
    if 19 <= g <= 26: r.append(g + 5)
    return r
def sm_val(g, k):
    if 7 <= g <= 22: b = 1; n = 2 * (g - 7) + k
    else: b = 0; n = 2 * ((g - 23) % 32) + k
    kb, qb, r = n >> 4, (n >> 2) & 3, n & 3
    return b, qb, kb, r
def sm_items(g):
    ex, ad = [], []
    for k in range(2):
        b, qb, kb, r = sm_val(g, k)
        x = v_S[b][qb * 8 + kb * 4 + r]
        l = (v_l1 if b else v_l0)[qb]
        ex.append(valu("v_exp_f32", x, x)); ad.append(valu("v_add_f32", l, l, x))
    b, qb, kb, r = sm_val((g - 1) % 32, 0)
    cv = valu("v_cvt_pk_bf16_f32", v_S[b][qb * 8 + kb * 2 + (r >> 1)], v_S[b][qb * 8 + kb * 4 + r], v_S[b][qb * 8 + kb * 4 + r + 1])
    return ex, ad, cv
def att_dma(par, g):
    if g >= 29: k = g - 29; sp = par
    elif g <= 4: k = g + 3; sp = par ^ 1
    else: return [], None
    sal = []
    if k == 0: sal = [salu("s_add_u32", "m0", s_m0b, 4 * 16384 + kslot(sp))]
    if k == 4: sal = [salu("s_add_u32", "m0", s_m0b, vslot(sp))]
    if k < 4: return sal, dma(v_kd[k], S_K, s_kK, k * 1024)
    return sal, dma(v_vd[k & 1], S_V, s_kV, (k - 4) * 1024)
SIDE_FIRST = 11
class Lbl:
    def __init__(self, n): self.n = n
    def __call__(self): em.label(self.n); return []
class LoopStamp:
    def __init__(self, k, par): self.k, self.par = k, par
    def __call__(self):
        k = self.k
        e(raw("s_memtime %s" % S(68 + 2 * k, 2), "other", wr=[S(68 + 2 * k, 2)]))
        if k == 2:
            e(raw("s_waitcnt lgkmcnt(0)", "wait")); em._retire(em.lgq, 0)
            for i in range(3): e(valu("v_writelane_b32", v_c, S(68 + 2 * i), i, rmw=True))
            e(salu("s_lshl_b32", S(74), S(2), 2)); e(salu("s_add_u32", S(74), S(74), s_w)); e(salu("s_lshl_b32", S(74), S(74), 4))
            e(salu("s_sub_u32", S(74), S(74), s_cnt)); e(salu("s_add_u32", S(74), S(74), 16)); e(salu("s_lshl_b32", S(74), S(74), 5))
            e(salu("s_add_u32", S(74), S(74), (1 << 20) + 16 * self.par))
            e(raw("s_mov_b64 exec, 7", "salu", wr=["exec"]))
            e(valu("v_lshlrev_b32", v_t, 2, v_lane))
            e(bstore(v_c, v_t, S_DMP, S(74), off=0))
            e(raw("s_mov_b64 exec, -1", "salu", wr=["exec"]))
            e(valu("v_lshlrev_b32", v_t, 7, v_lane))
        return []
s_pf = [S(16, 2), S(18, 2), S(24, 2), S(26, 2)]
s_pfH = S(28, 2)
s_fo = S(3)
v_tch, v_flag = V(3), V(0)
xtok = []; lastdma = [None]
ROT = int(os.environ.get('ROT', '10'))
ftok = {}
def att_group(par, g, do_mfma=True, do_mem=True, do_cvt=True, last=False):
    ex, ad, cv = sm_items(g)
    mem = []
    sal = []
    if do_mem:
        for f in read_sched(g):
            r = frag_reads(par, f); mem += r; ftok[f % 32] = r
        sal, d = att_dma(par, g)
        if d is not None: mem.append(d)
    if do_mem and par == 0 and g == 5:
        mem.append(I("global_load_dword %s, %s, %s" % (v_flag, v_tch, s_pf[0]), "vmem", rd=v_tch.regs() + s_pf[0].regs(), wr=[])); xtok.append(mem[-1])
    if do_mem and par == 0 and g == 6:
        mem.append(I("buffer_load_dword %s, off, %s, %s sc1" % (v_flag, S_DBG, s_fo), "vmem", rd=S_DBG.regs() + s_fo.regs(), wr=[])); xtok.append(mem[-1])
    if do_mem and par == 0 and g in (8, 9, 10): sal = sal + [scmp("s_cmp_le_u32", s_cnt, ROT), salu("s_cselect_b64", s_pf[g - 8], s_pf[g - 7], s_pf[g - 8], scc_w=False, scc_r=True)]
    if do_mem and g == 4: lastdma[0] = d
    post0 = []
    if do_mem and do_mfma and par == 1 and g == 30: post0 = [valu("v_readfirstlane_b32", s_t0, v_flag)]
    if do_mem and do_mfma and par == 1 and g == 31: sal = sal + [scmp("s_cmp_lt_u32", s_cnt, ROT), salu("s_cselect_b32", s_t0, s_t0, 0, scc_w=False, scc_r=True), scmp("s_cmp_ge_u32", s_t0, 8), salu("s_cselect_b64", s_pf[3], s_pfH, s_pf[3], scc_w=False, scc_r=True)]
    gaps = [[], [], [], []]
    if g == 29 and do_mem:
        if STAMP == 2 and do_mfma: gaps[0] += [LoopStamp(0, par)]
        gaps[0] += [Wait(lg0=True, vm0=True) if (par == 1 or not do_mfma) else Wait(lg0=True, vm=lastdma[0])]
        if STAMP == 2 and do_mfma: gaps[0] += [LoopStamp(1, par)]
        gaps[0] += [raw("s_barrier")]
        if STAMP == 2 and do_mfma: gaps[0] += [LoopStamp(2, par)]
    gaps[0] += sal
    if g == 6 and do_mem: gaps[0].append(salu("s_add_u32", s_kK, s_kK, 16384))
    if g == 7 and do_mem: gaps[0].append(salu("s_add_u32", s_kV, s_kV, 16384))
    if g == 23 and par == 1 and do_mfma:
        gaps[0] += [valu("v_mov_b32", v_lsave[i], v_l0[i]) for i in range(4)]
    if len(mem) > 2: gaps[0].append(mem[2])
    gaps[0].append(ex[0])
    if len(mem) > 0: gaps[1].append(mem[0])
    if len(mem) == 0 and do_cvt: gaps[1].append(cv)
    gaps[1].append(ad[0])
    gaps[1] += post0
    if do_mem: gaps[2].append(Wait(lg=ftok.get((g + 1) % 32)))
    if last and g == 30: gaps[2].append(salu("s_sub_u32", s_cnt, s_cnt, 1))
    gaps[2].append(ex[1])
    if len(mem) > 1: gaps[3].append(mem[1])
    if len(mem) > 0 and do_cvt: gaps[3].append(cv)
    gaps[3].append(ad[1])
    for qb in range(4):
        if do_mfma:
            if g < 8 or 16 <= g < 24:
                b = 1 if g < 8 else 0
                kb, ds = (g >> 2) & 1, g & 3
                d = v_S[b][(qb * 8 + kb * 4, 4)]
                e(mfma(d, fr(g), Qf(qb, ds), v_negm[(qb * 4, 4)] if ds == 0 else d))
            else:
                b = 0 if g < 16 else 1
                e(mfma(Of(g & 7, qb), fr(g), v_S[b][(qb * 8, 4)], Of(g & 7, qb)))
        else:
            if qb & 1: e(nop(0))
        for it in gaps[qb]: e(it)

for it in range(3):
    e(salu("s_add_u32", s_t0, s_w, 4 * it))
    e(salu("s_sub_u32", s_t1, s_t0, 2)); e(salu("s_min_u32", s_t1, s_t1, 6)); e(salu("s_lshl_b32", s_t1, s_t1, 13))
    e(salu("s_mul_i32", s_t2, s_qb, 57344, scc_w=False)); e(salu("s_add_u32", s_t1, s_t1, s_t2))
    e(salu("s_add_u32", s_pf[it][0], S_WD[0], s_t1)); e(salu("s_addc_u32", s_pf[it][1], S_WD[1], 0, scc_r=True))
    if it == 0:
        e(scmp("s_cmp_ge_u32", s_w, 2)); e(raw("s_cbranch_scc1 L_pf_wd", rd=["scc"]))
        e(salu("s_lshl_b32", s_t1, s_qb, 14)); e(salu("s_lshl_b32", s_t2, s_w, 13)); e(salu("s_add_u32", s_t1, s_t1, s_t2))
        e(salu("s_add_u32", s_pf[0][0], S_WO[0], s_t1)); e(salu("s_addc_u32", s_pf[0][1], S_WO[1], 0, scc_r=True))
        em.label("L_pf_wd")
e(raw("s_getpc_b64 %s" % s_pf[3], "salu", wr=[s_pf[3]]))
em.label("L_pc1")
e(salu("s_lshl_b32", s_t0, s_w, 13)); e(salu("s_add_u32", s_t0, s_t0, "L_tail-L_pc1")); e(salu("s_min_u32", s_t0, s_t0, "L_code_end-L_pc1-8192"))
e(salu("s_add_u32", s_pf[3][0], s_pf[3][0], s_t0)); e(salu("s_addc_u32", s_pf[3][1], s_pf[3][1], 0, scc_r=True))
e(salu("s_lshl_b32", s_t0, s_cg, 2)); e(salu("s_add_u32", s_t0, s_t0, s_w)); e(salu("s_mul_i32", s_t0, s_t0, 7168, scc_w=False)); e(salu("s_min_u32", s_t0, s_t0, 229376 - 8192))
e(salu("s_add_u32", s_pfH[0], S_HC[0], s_t0)); e(salu("s_addc_u32", s_pfH[1], S_HC[1], 0, scc_r=True))
e(valu("v_lshlrev_b32", v_tch, 7, v_lane))
e(salu("s_lshl_b32", s_fo, s_cq, 2)); e(salu("s_add_u32", s_fo, s_fo, HC_OFF))
pr = [dsread("ds_read_b128", fr(f), v_ka[f & 3], (f >> 2) * 4096) for f in range(8)]
for r in pr: e(r)
e(scmp("s_cmp_lg_u32", s_retry, 0)); e(raw("s_cbranch_scc1 L_have_max", rd=["scc"]))
for i in range(16): e(valu("v_mov_b32", v_negm[i], 0))
em.label("L_have_max")
for f in range(8):
    em.wait(lg=pr[f])
    for qb in range(4):
        d = v_S[0][(qb * 8 + (f >> 2) * 4, 4)]
        e(mfma(d, fr(f), Qf(qb, f & 3), v_negm[(qb * 4, 4)] if (f & 3) == 0 else d))
e(salu("s_mov_b32", s_kK, 16384 + 8192, scc_w=False)); e(salu("s_mov_b32", s_kV, 16384, scc_w=False)); e(salu("s_mov_b32", s_cnt, 16, scc_w=False))
e(scmp("s_cmp_lg_u32", s_retry, 0)); e(raw("s_cbranch_scc1 L_have_max2", rd=["scc"]))
e(nop(3))
mx = [V(96 + i) for i in range(4)]; mt = [V(100 + i) for i in range(4)]
for qb in range(4): e(valu("v_max3_f32", mx[qb], v_S[0][qb * 8], v_S[0][qb * 8 + 1], v_S[0][qb * 8 + 2]))
for qb in range(4): e(valu("v_max3_f32", mx[qb], mx[qb], v_S[0][qb * 8 + 3], v_S[0][qb * 8 + 4]))
for qb in range(4): e(valu("v_max3_f32", mx[qb], mx[qb], v_S[0][qb * 8 + 5], v_S[0][qb * 8 + 6]))
for qb in range(4): e(valu("v_max_f32", mx[qb], mx[qb], v_S[0][qb * 8 + 7]))
red4("v_max_f32", mx, mt)
for qb in range(4):
    for k in range(4): e(valu("v_sub_f32", v_negm[qb * 4 + k], 0, mx[qb]))
for qb in range(4):
    for k in range(8): e(valu("v_sub_f32", v_S[0][qb * 8 + k], v_S[0][qb * 8 + k], mx[qb]))
em.label("L_have_max2")
e(nop(7))
for g in range(23, 29): att_group(1, g, do_mfma=False, do_mem=False, do_cvt=(g != 23))
stamp(); diag()
for g in range(29, 32): att_group(1, g, do_mfma=False, do_mem=True)
pro_end = len(em.out)
em.directive(".p2align 6")
em.label("L_att_loop")
def body():
    for par in range(2):
        for g in range(32): att_group(par, g, last=(par == 1))
b0 = len(em.out)
body()
b1 = len(em.out)
e(scmp("s_cmp_lg_u32", s_cnt, 0)); e(raw("s_cbranch_scc1 L_att_loop", rd=["scc"]))
b2 = len(em.out)
body()
second = em.out[b2:]; del em.out[b2:]
assert [i.text for i in second] == [i.text for i in em.out[b0:b1]], "loop not in steady state"
loop_probs = check_hazards(em.out[b1 - 40:b2] + second[:60], "loop-wrap")
stamp()

em.label("L_tail")
diag()
v_ring2 = V(64, 32); v_B2 = V(96, 32)
def hreg(kk, qb): return A(64 + (kk % 12) * 16 + qb * 4, 4)
XY = int(os.environ.get("XY", "0"))
def mh(m): return ((m & 15), m >> 4) if XY else (m >> 1, m & 1)
P2 = 2
def s2_dma(m):
    p = (m + P2) % 6
    if m < 32:
        s, h = mh(m)
        return [m0set(p), salu("s_mov_b32", s_off, s * 32 * 1024 + 128 * h, scc_w=False)], [dma(v_dA[j], S_WO, s_off, j * 1024) for j in range(4)]
    if m < 46:
        return [m0set(p), salu("s_mov_b32", s_off, (m - 32) * 32 * 1024, scc_w=False)], [dma(v_dB[j], S_WD, s_off, j * 1024) for j in range(4)]
    return None
dtok2 = {}
post_v = []
for m in range(0, 6):
    sa, dm = s2_dma(m); post_v.append(sa); post_v += dm; dtok2[m] = dm[3]
pv = [0]
def post_issue(n):
    k = 0
    while k < n and pv[0] < len(post_v):
        it = post_v[pv[0]]; pv[0] += 1
        e(it)
        if not isinstance(it, list): k += 1
post_issue(4)
lt = [V(100 + i) for i in range(4)]
for qb in range(4): e(valu("v_add_f32", v_l1[qb], v_l1[qb], v_lsave[qb]))
red4("v_add_f32", [v_l1[i] for i in range(4)], lt)
e(salu("s_mov_b32", s_t0, hx(f2u(2.0 ** 30)), scc_w=False))
e(valu("v_add_f32", lt[1], v_l1[0], v_l1[1])); e(valu("v_add_f32", lt[2], v_l1[2], v_l1[3])); e(valu("v_add_f32", lt[1], lt[1], lt[2]))
e(valu("v_cmp_nge_f32", "vcc", s_t0, lt[1]))
rinv = [V(104 + 2 * i, 2) for i in range(4)]
for qb in range(4): e(valu("v_rcp_f32", rinv[qb][0], v_l1[qb]))
e(salu("s_mov_b64", s_pair, "vcc", scc_w=False))
post_issue(4)
for i in range(4):
    for qb in range(4):
        t = Of(2 * i, qb)
        for b in range(2):
            o = Of(2 * i + b, qb)
            for k in range(2): e(valu("v_pk_mul_f32", o[(2 * k, 2)], o[(2 * k, 2)], rinv[qb], mod="op_sel_hi:[1,0]"))
        if DUMP != "o":
            for b in range(2):
                o = Of(2 * i + b, qb)
                for k in range(2): e(valu("v_cvt_pk_bf16_f32", t[2 * b + k], o[2 * k], o[2 * k + 1]))
            if i == 0 and qb == 0:
                e(scmp("s_cmp_eq_u64", s_pair, 0)); e(raw("s_cbranch_scc1 L_nomark", rd=["scc"]))
                e(valu("v_mov_b32", t[0], hx(MARK)))
                em.label("L_nomark")
            if len(em.lgq) >= 12: em.wait(lg=em.lgq[-12])
            e(dswrite("ds_write_b128", v_wl, t, (i * 4 + qb) * 1024))
        post_issue(1)
post_issue(100)
if DUMP == "o": dump_regs([v_acc[i] for i in range(128)])
vm_ = V(56); vma = V(57)
e(valu("v_and_b32", vma, 3, v_lane)); e(valu("v_lshlrev_b32", vma, 14, vma))
e(salu("s_mov_b32", s_cnt, 0, scc_w=False))
em.label("L_pollH")
e(valu("v_readfirstlane_b32", s_t0, v_flag)); e(salu("s_mul_i32", s_hb, s_w, 14 * 4096, scc_w=False)); e(nop(1))
e(scmp("s_cmp_ge_u32", s_t0, 8)); e(raw("s_cbranch_scc1 L_pollH_done", rd=["scc"]))
e(salu("s_add_u32", s_cnt, s_cnt, 1)); e(scmp("s_cmp_ge_u32", s_cnt, 50000)); e(raw("s_cbranch_scc1 L_pollH_done", rd=["scc"]))
e(raw("s_sleep 4")); e(raw("buffer_load_dword %s, off, %s, %s sc1" % (v_flag, S_DBG, s_fo))); e(raw("s_waitcnt vmcnt(0)")); e(raw("s_branch L_pollH"))
em.label("L_pollH_done")
em.wait(lg0=True)
e(raw("s_barrier"))
stamp()
mk = e(dsread("ds_read_b32", vm_, vma, 0))
class FbCheck:
    def __call__(self):
        em.wait(lg=mk)
        e(valu("v_cmp_eq_u32", "vcc", hx(MARK), vm_))
        e(scmp("s_cmp_lg_u32", s_retry, 0)); e(raw("s_cbranch_scc1 L_nofb", rd=["scc"]))
        e(nop(1))
        e(raw("s_cbranch_vccnz L_fallback", rd=["vcc"]))
        em.label("L_nofb")
        return []

def s2_acc(m, u, qb):
    if m < 32: return v_acc[(((mh(m)[1] * 4 + u) * 4 + qb) * 4, 4)], mh(m)[0] == 0
    return a_F[((u * 4 + qb) * 4, 4)], m == 32
def bsel(m): return (m & 1) if XY else ((m >> 1) & 1)
def s2_B(m, qb):
    if m < 32: return v_B2[(bsel(m) * 16 + qb * 4, 4)]
    return hreg(m - 32, qb)
def oread(m, qb): return dsread("ds_read_b128", v_B2[(bsel(m) * 16 + qb * 4, 4)], v_lin, (mh(m)[0] * 4 + qb) * 1024)
extra = {-1: [(0, oread(0, qb), 1) for qb in range(4)] + [(0, FbCheck(), 0)]}
for m in range(1, 32):
    if XY:
        rr = [oread(m, qb) for qb in range(4)]
        for qb in range(4): extra.setdefault(4 * (m - 1) + (qb >> 1), []).append((2 + (qb & 1), rr[qb], 1))
        extra.setdefault(4 * m - 1, []).append((2, Wait(lg=rr), 0))
    elif (m & 1) == 0:
        for qb in range(4): extra.setdefault(4 * (m - 2) + 1 + qb, []).append((2, oread(m, qb), 1))
class LateWait:
    def __init__(self, f): self.f = f
    def __call__(self): return Wait(vm=self.f())
vxf = V(40, 8); vxa = V(48); vpoll = V(49); vfw = V(50)
vx, vy, vz = V(52), V(53), V(54)
save = em.out; em.out = []
for k in range(8): e(valu("v_accvgpr_read_b32", vxf[k], a_x[k]))
e(salu("s_mul_i32", s_t1, s_w, 448 * 1024, scc_w=False)); e(salu("s_lshl_b32", s_t3, s_cg, 7)); e(salu("s_add_u32", s_t1, s_t1, s_t3))
dma_voffs(v_dB, 1024, s_t1, True)
xaddr(vxa, vx)
e(valu("v_and_b32", V(51), 7, v_lane)); e(valu("v_lshlrev_b32", V(51), 2, V(51)))
e(salu("s_lshl_b32", s_t0, s_w, 12)); e(valu("v_add_u32", vfw, s_t0, v_lin))
e(salu("s_lshl_b32", s_t3, s_w, 4)); e(salu("s_add_u32", s_t3, s_t3, s_g)); e(salu("s_lshl_b32", s_t3, s_t3, 13))
early = em.out; em.out = save
class Seq:
    kind = "vmem"
    def __init__(self, l): self.l = l
    def __call__(self): return self.l
hld = {}; htok = {}
for kk in range(14):
    hld[kk] = [bload(hreg(kk, qb), v_lin, S_HC, s_hl, off=qb * 1024, mod="sc1") for qb in range(4)]
    htok[kk] = hld[kk][3]
    extra.setdefault(4 * (32 + kk) - 1, []).append((2, LateWait(lambda kk=kk: htok[kk]), 0))
hseq = []
for kk in range(14):
    for qb in range(4):
        hseq.append(Seq([salu("s_add_u32", s_hl, s_hb, kk * 4096), hld[kk][qb]]))
NPRE = int(os.environ.get("NPRE", "12")); HG0 = int(os.environ.get("HG0", "70")); HGS = int(os.environ.get("HGS", "4"))
for k in range(NPRE): extra.setdefault(HG0 + HGS * k, []).append((2, hseq[k], 1))
def sreg(ip, qb, odd=0): return v_acc[(((2 * ip + odd) * 4 + qb) * 4, 4)]
sp = []; spst = []
HPS = int(os.environ.get("HPS", "3")); hk = NPRE
for ip in range(4):
    for qb in range(4):
        t = sreg(ip, qb)
        for b in range(2):
            o = sreg(ip, qb, b)
            for k in range(2): sp.append(valu("v_cvt_pk_bf16_f32", t[2 * b + k], o[2 * k], o[2 * k + 1]))
        if (qb & 1) == 0: sp.append(salu("s_add_u32", s_t1, s_t3, (ip >> 1) * 65536 + (qb >> 1) * 4096))
        st = bstore(t, v_lin, S_SP, s_t1, off=(qb & 1) * 2048 + (ip & 1) * 1024, mod=os.environ.get("ST_MOD", "sc1").replace("plain", ""))
        if os.environ.get("ST_NONE") and not (ip == 3 and qb == 3): st = nop(0)
        sp.append(st); spst.append(st)
        if not (XY and ip < 2):
            for _ in range(HPS * (2 if XY else 1)):
                if hk < 48: sp.append(hseq[hk]); hk += 1
for k in range(hk, 48): sp.append(hseq[k])
for k in range(48, 56): extra.setdefault(140 + (k - 48), []).append((2, hseq[k], 1))
class SigS:
    def __call__(self):
        stamp(); em.wait(vm=spst[-1]); stamp(); e(raw("s_barrier"))
        e(scmp("s_cmp_lg_u32", s_w, 0)); e(raw("s_cbranch_scc1 L_sigS", rd=["scc"]))
        e(valu("v_mov_b32", v_t, 1))
        e(raw("s_mov_b64 exec, 1", "salu", wr=["exec"]))
        e(raw("buffer_store_dword %s, off, %s, %s sc1" % (v_t, S_FL, s_myfl)))
        e(raw("s_mov_b64 exec, -1", "salu", wr=["exec"]))
        em.label("L_sigS")
        return []
G_SIG = int(os.environ.get("G_SIG", "160")); G_POLL = int(os.environ.get("G_POLL", "172")); G_CHK = int(os.environ.get("G_CHK", "178"))
extra.setdefault(G_SIG, []).append((0, SigS(), 0))
vpa = V(51)
ptok = bload(vpoll, vpa, S_FL, s_t2, n=1, mod="sc1")
extra.setdefault(G_POLL, []).append((1, [salu("s_lshl_b32", s_t2, s_cq, 7)], 0))
extra.setdefault(G_POLL, []).append((2, ptok, 1))
def spl(gp, i): return sreg(gp >> 1, (gp & 1) * 2 + i, 1)
sl = []
class ChkS:
    def __call__(self):
        em.wait(vm=ptok)
        stamp()
        e(salu("s_mov_b32", s_cnt, 0, scc_w=False))
        em.label("L_pollS")
        e(valu("v_cmp_ne_u32", "vcc", 1, vpoll)); e(nop(2))
        e(raw("s_cbranch_vccz L_pollS_done", rd=["vcc"]))
        e(salu("s_add_u32", s_cnt, s_cnt, 1)); e(scmp("s_cmp_ge_u32", s_cnt, 50000)); e(raw("s_cbranch_scc1 L_pollS_done", rd=["scc"]))
        e(raw("buffer_load_dword %s, %s, %s, %s offen sc1" % (vpoll, vpa, S_FL, s_t2))); e(raw("s_waitcnt vmcnt(0)")); e(raw("s_branch L_pollS"))
        em.label("L_pollS_done")
        stamp()
        e(salu("s_lshl_b32", s_t0, s_cg, 16)); e(salu("s_lshl_b32", s_t1, s_w, 11)); e(salu("s_add_u32", s_t0, s_t0, s_t1))
        for gp in range(8):
            for i in range(2): sl.append(e(bload(spl(gp, i), v_lin, S_SPC, s_t0, off=i * 1024, mod="sc1")))
            if gp < 7: e(salu("s_add_u32", s_t0, s_t0, 8192))
        return []
if G_CHK < 184: extra.setdefault(G_CHK, []).append((0, ChkS(), 0))
if STAMP: extra.setdefault(128, []).append((0, Stamp(), 0))
class Diag:
    def __call__(self): diag(); return []
if DIAG: extra.setdefault(128, []).append((0, Diag(), 0))
class Paced(VStream):
    def has(self, g): return self.i < len(self.items) and g >= self.start and self.i <= (g - self.start + 1) * len(self.items) // max(1, self.end - self.start)
    def quota(self, g): return 99 if g >= self.start else 0
class Multi:
    def __init__(self, *l): self.l = list(l)
    def cur(self, g):
        for x in self.l:
            if x.i < len(x.items): return x
        return self.l[-1]
    def has(self, g): return self.cur(g).has(g)
    def peek(self): return self.cur(0).peek()
    def pop(self): return self.cur(0).pop()
    def quota(self, g): return self.cur(g).quota(g)
    def used_quota(self): self.cur(0).used_quota()
SP_END = int(os.environ.get("SP_END", "146"))
if XY:
    half = sp.index(spst[7]) + 1
    vs = Multi(VStream(early, 2, 40), Paced(sp[:half], int(os.environ.get("X_START", "67")), int(os.environ.get("X_END", "75"))), Paced(sp[half:], 130, SP_END))
else:
    vs = Multi(VStream(early, 2, 40), Paced(sp, 130, SP_END))
class ChkEarly:
    def __call__(self):
        assert vs.l[0].i == len(vs.l[0].items); return []
extra.setdefault(59, []).append((0, ChkEarly(), 0))
run_stream(46, s2_dma, dtok2, s2_acc, s2_B, extra, vs, pos0=P2, ring=v_ring2)
stamp(); diag()
e(nop(6))
for qb in range(4):
    for u in range(4):
        if len(em.lgq) >= 12: em.wait(lg=em.lgq[-12])
        e(dswrite("ds_write_b128", vfw, a_F[((u * 4 + qb) * 4, 4)], qb * 16384 + u * 1024))
if G_CHK >= 184: ChkS()()
em.wait(lg0=True)
e(raw("s_barrier"))
def frr(ws_, u): return sreg(ws_, u, 0)
for ws_ in range(4):
    for u in range(4):
        if len(em.lgq) >= 14: em.wait(lg=em.lgq[-14])
        e(dsread("ds_read_b128", frr(ws_, u), v_wl, ws_ * 4096 + u * 1024))
em.wait(lg0=True)
v_fr = V(96, 16); vE = V(64, 16); vs_ = V(80, 16)
for u in range(4):
    for k in range(2):
        e(valu("v_pk_add_f32", frr(0, u)[(2 * k, 2)], frr(0, u)[(2 * k, 2)], frr(1, u)[(2 * k, 2)]))
        e(valu("v_pk_add_f32", frr(2, u)[(2 * k, 2)], frr(2, u)[(2 * k, 2)], frr(3, u)[(2 * k, 2)]))
for u in range(4):
    for k in range(2): e(valu("v_pk_add_f32", v_fr[(4 * u + 2 * k, 2)], frr(0, u)[(2 * k, 2)], frr(2, u)[(2 * k, 2)]))
for k in range(16): e(valu("v_mul_f32", vE[k], hx(f2u(-math.log2(math.e))), v_fr[k]))
for k in range(16): e(valu("v_exp_f32", vE[k], vE[k]))
for k in range(16): e(valu("v_add_f32", vE[k], "1.0", vE[k]))
for k in range(16): e(valu("v_rcp_f32", vE[k], vE[k]))
for k in range(16): e(valu("v_mul_f32", v_fr[k], v_fr[k], vE[k]))
for k in range(8):
    e(valu("v_lshlrev_b32", vE[2 * k], 16, vxf[k])); e(valu("v_and_b32", vE[2 * k + 1], "0xffff0000", vxf[k]))
for gp in range(8):
    em.wait(vm=sl[2 * gp + 1])
    for k in range(8):
        src = spl(gp, k >> 2)[k & 3]
        if gp == 0:
            e(valu("v_lshlrev_b32", vs_[2 * k], 16, src)); e(valu("v_and_b32", vs_[2 * k + 1], "0xffff0000", src))
        else:
            e(valu("v_lshlrev_b32", V(112 + 2 * (k & 3)), 16, src)); e(valu("v_and_b32", V(113 + 2 * (k & 3)), "0xffff0000", src))
            e(valu("v_pk_add_f32", vs_[(2 * k, 2)], vs_[(2 * k, 2)], V(112 + 2 * (k & 3), 2)))
if DUMP == "fin": dump_regs([vs_[i] for i in range(16)] + [v_fr[i] for i in range(16)])
for k in range(8): e(valu("v_pk_fma_f32", vE[(2 * k, 2)], vs_[(2 * k, 2)], v_fr[(2 * k, 2)], vE[(2 * k, 2)]))
for k in range(8): e(valu("v_cvt_pk_bf16_f32", vxf[k], vE[2 * k], vE[2 * k + 1]))
for u in range(4): e(bstore(vxf[(2 * u, 2)], vxa, S_OUT, 0, off=32 * u))
stamp(); diag_out()
em.label("L_end")
e(raw("s_endpgm"))
main_end = len(em.out)

em.lgq, em.vmq, em.pend = [], [], {}
em.label("L_fallback")
e(raw("s_waitcnt vmcnt(0) lgkmcnt(0)")); em._retire(em.vmq, 0); em._retire(em.lgq, 0)
e(salu("s_mov_b32", s_retry, 1, scc_w=False))
e(salu("s_mov_b32", s_kK, 0, scc_w=False))
fm = [V(40 + i) for i in range(4)]
for i in range(4): e(valu("v_mov_b32", fm[i], "0xff800000"))
em.label("L_fb_loop")
e(raw("s_barrier"))
e(salu("s_add_u32", "m0", s_m0b, 4 * 16384)); e(nop(0))
for j in range(4): e(dma(v_kd[j], S_K, s_kK, j * 1024))
em.wait(vm0=True)
e(raw("s_barrier"))
for kb in range(4):
    rr = [e(dsread("ds_read_b128", fr(ds), v_ka[ds], kb * 4096)) for ds in range(4)]
    em.wait(lg0=True)
    for ds in range(4):
        for qb in range(4):
            d = v_S[0][(qb * 4, 4)]
            e(mfma(d, fr(ds), Qf(qb, ds), 0 if ds == 0 else d))
    e(nop(7))
    for qb in range(4):
        e(valu("v_max3_f32", fm[qb], fm[qb], v_S[0][qb * 4], v_S[0][qb * 4 + 1])); e(valu("v_max3_f32", fm[qb], fm[qb], v_S[0][qb * 4 + 2], v_S[0][qb * 4 + 3]))
    e(nop(2))
e(salu("s_add_u32", s_kK, s_kK, 16384)); e(scmp("s_cmp_lt_u32", s_kK, 524288)); e(raw("s_cbranch_scc1 L_fb_loop", rd=["scc"]))
red4("v_max_f32", fm, [V(44 + i) for i in range(4)])
for qb in range(4):
    for k in range(4): e(valu("v_sub_f32", v_negm[qb * 4 + k], 0, fm[qb]))
e(raw("s_barrier"))
for m in (64, 65, 66):
    sa, dm = s1_dma(m); e(sa)
    for d in dm: e(d)
e(raw("s_branch L_att_start"))
em.label("L_code_end")
e(raw("s_endpgm"))

probs = check_hazards(em.out, "main") + loop_probs
for p in probs: print("; HAZARD", p, file=sys.stderr)
assert not probs

hdr = open(os.path.join(os.path.dirname(os.path.abspath(__file__)), "header.txt")).read()
print(hdr.rstrip())
print("; @launch grid=(256,1,1) block=(256,1,1) lds=163840")
print('.amdgcn_target "amdgcn-amd-amdhsa--gfx950"\n.text\n.globl %s\n.p2align 8\n.type %s,@function\n%s:' % (KN, KN, KN))
print(em.text())
print('.section .rodata,"a"\n.p2align 6\n.amdhsa_kernel %s' % KN)
print("  .amdhsa_next_free_vgpr 512\n  .amdhsa_next_free_sgpr 102\n  .amdhsa_accum_offset 256\n  .amdhsa_group_segment_fixed_size 0\n  .amdhsa_kernarg_size 96\n  .amdhsa_user_sgpr_count 2\n  .amdhsa_user_sgpr_kernarg_segment_ptr 1\n  .amdhsa_system_sgpr_workgroup_id_x 1\n.end_amdhsa_kernel")
```

```python
import sys, os, math, struct
from asmgen import *

KN = "recurrent_scan__gqa_block_cached__geglu_ffn__prompt_kernel"
DUMP = os.environ.get("DUMP", "")
STAMP = int(os.environ.get("STAMP", "0"))
GEL_END = int(os.environ.get("GEL_END", "228")); GEL_EXTRA = int(os.environ.get("GEL_EXTRA", "360"))

def f2u(x): return struct.unpack("<I", struct.pack("<f", x))[0]
def hx(x): return "0x%x" % (x & 0xffffffff)

S_X, S_K, S_V, S_WQ, S_WO, S_WG, S_WU, S_WD, S_OUT, S_DBG, S_H, S_SP = [S(4 + 4 * i, 4) for i in range(12)]
s_g, s_qb, s_w = S(52), S(53), S(54)
s_t0, s_t1, s_t2, s_t3 = S(55), S(56), S(57), S(58)
s_m0b = S(59)
s_off = S(60)
s_cnt = S(61)
s_kK, s_kV = S(62), S(63)
s_retry = S(64)
s_h0, s_h1 = S(65), S(66)
s_hl = S(67); s_hb = S(78); s_myfl = S(79)
s_ka = S(68, 16); s_kb = S(84, 8)
s_pair = S(92, 2); s_pair2 = S(94, 2)
S_DMP = S(96, 4)
s_cq, s_cg = S(76), S(77)
S_HC = S(80, 4)
S_SPC = S(84, 4)
S_XC = S(88, 4)
s_st = S(68, 4)

v_tid, v_lane, v_lin, v_t = V(0), V(1), V(2), V(3)
v_tr = [V(4, 4), V(8, 4)]
v_dA, v_dB = V(12, 4), V(16, 4)
v_ka = V(20, 4); v_va = V(24, 8); v_kd = V(32, 4); v_vd = V(36, 2)
v_wl = V(38)
v_c = V(39)
v_l0, v_l1 = V(40, 4), V(44, 4)
v_lsave = V(16, 4)
v_negm = V(48, 16)
v_S = [V(64, 32), V(96, 32)]
v_acc = V(128, 128)
a_ring = A(128, 32)
a_B = A(160, 32)
a_Q = A(0, 64)
a_F = A(0, 64)
a_x = A(248, 8)

RING = 65536
MARK = 0x7fc17fc1
WS_SP = 8 << 20
WS_DUMP = 32 << 20
WS_FL = (7 << 20) + (512 << 10)
S_FL = S(4, 4)

em = Em()
e = em.e

def srd(dst, lo, hi, size, off_s=None):
    if off_s is None:
        e(salu("s_mov_b32", dst[0], lo, scc_w=False)); e(salu("s_mov_b32", dst[1], hi, scc_w=False))
    else:
        e(salu("s_add_u32", dst[0], lo, off_s)); e(salu("s_addc_u32", dst[1], hi, 0, scc_r=True))
    e(salu("s_mov_b32", dst[2], hx(size), scc_w=False)); e(salu("s_mov_b32", dst[3], "0x20000", scc_w=False))

DIAG = int(os.environ.get("DIAG", "0"))
HC_OFF = 128
diag_regs = [S(100, 2), S(70, 2), S(72, 2), S(74, 2), S(96, 2), S(98, 2), S(68, 2)] if DIAG == 1 else [S(100, 2), S(96, 2), S(98, 2), S(94, 2), S(70, 2), S(72, 2), S(74, 2), S(68, 2)]
diag_n = [0]
def diag(which=1):
    if not DIAG or (which != DIAG and which != 0): return
    k = diag_n[0]; diag_n[0] += 1
    e(raw("s_memrealtime %s" % diag_regs[k], "other", wr=[diag_regs[k]]))
    if k > 0: e(raw("s_waitcnt lgkmcnt(0)", "wait")); em._retire(em.lgq, 0)
def diag_out():
    if not DIAG: return
    diag(0)
    e(scmp("s_cmp_lg_u32", s_w, 0)); e(raw("s_cbranch_scc1 L_end", rd=["scc"]))
    e(raw("s_mov_b64 exec, 1", "salu", wr=["exec"]))
    e(salu("s_not_b32", s_t0, diag_regs[0][0]))
    for k in range(diag_n[0]):
        e(valu("v_mov_b32", V(4 + k), s_t0 if k == 0 else diag_regs[k][0]))
        e(raw("buffer_atomic_umax %s, off, %s, 0 offset:%d sc1" % (V(4 + k), S_DBG, 4 * k)))
    e(valu("v_mov_b32", V(12), diag_regs[0][0]))
    e(raw("buffer_atomic_umax %s, off, %s, 0 offset:%d sc1" % (V(12), S_DBG, 4 * 9)))
stamp_n = [0]
def stamp():
    if not STAMP: return
    k = stamp_n[0]; stamp_n[0] += 1
    e(raw("s_memtime %s" % S(68, 2), "other", wr=[S(68, 2)]))
    e(raw("s_memrealtime %s" % S(70, 2), "other", wr=[S(70, 2)]))
    e(raw("s_waitcnt lgkmcnt(0)", "wait")); em._retire(em.lgq, 0)
    for i in range(4): e(valu("v_writelane_b32", v_c, S(68 + i), i, rmw=True))
    e(salu("s_lshl_b32", S(72), S(2), 2)); e(salu("s_add_u32", S(72), S(72), s_w)); e(salu("s_lshl_b32", S(72), S(72), 9))
    e(salu("s_mov_b64", S(74, 2), "exec", scc_w=False)); e(raw("s_mov_b64 exec, 15", "salu", wr=["exec"]))
    e(valu("v_lshlrev_b32", v_t, 2, v_lane))
    e(bstore(v_c, v_t, S_DMP, S(72), off=k * 16))
    e(raw("s_mov_b64 exec, %s" % S(74, 2), "salu", wr=["exec"]))
    e(valu("v_lshlrev_b32", v_t, 7, v_lane))

def dump_regs(regs, finish=True):
    em.wait(lg0=True, vm0=True)
    e(nop(7)); e(nop(7))
    n = len(regs)
    e(salu("s_lshl_b32", s_t0, S(2), 2)); e(salu("s_add_u32", s_t0, s_t0, s_w)); e(salu("s_mul_i32", s_t0, s_t0, n * 256, scc_w=False))
    e(valu("v_lshlrev_b32", v_t, 2, v_lane))
    for k, r in enumerate(regs):
        e(bstore(r, v_t, S_DMP, s_t0, off=0))
        e(salu("s_add_u32", s_t0, s_t0, 256))
        if k % 32 == 31: em.wait(vm0=True)
    em.wait(vm0=True)
    if finish: e(raw("s_endpgm"))

def red4(op, x, tmp):
    for sw in ("v_permlane32_swap_b32", "v_permlane16_swap_b32"):
        for a, t in zip(x, tmp): e(valu("v_mov_b32", t, a))
        if len(x) < 3: e(nop(1))
        for a, t in zip(x, tmp): e(valu(sw, a, t))
        for a, t in zip(x, tmp): e(valu(op, a, a, t))

e(scmp("s_cmp_ge_u32", S(2), 256)); e(raw("s_cbranch_scc1 L_end", rd=["scc"]))
diag(0)
i0 = e(I("s_load_dwordx16 %s, s[0:1], 0" % s_ka, "smem", wr=s_ka.regs()))
i1 = e(I("s_load_dwordx8 %s, s[0:1], 64" % s_kb, "smem", wr=s_kb.regs()))
e(salu("s_and_b32", s_g, S(2), 7)); e(salu("s_lshr_b32", s_qb, S(2), 3))
e(valu("v_and_b32", v_lane, 63, v_tid))
e(valu("v_lshrrev_b32", v_t, 6, v_tid))
e(valu("v_lshlrev_b32", v_lin, 4, v_lane))
e(valu("v_readfirstlane_b32", s_w, v_t))
vq, vG, vr, vc_, vx, vy, vz = [V(40 + i) for i in range(7)]
e(valu("v_and_b32", vq, 15, v_lane)); e(valu("v_lshrrev_b32", vG, 4, v_lane))
vxo = V(47)
e(valu("v_lshl_add_u32", vxo, v_t, 4, vq)); e(valu("v_lshlrev_b32", vxo, 10, vxo)); e(valu("v_lshl_add_u32", vxo, vG, 4, vxo))
e(salu("s_lshl_b32", s_t0, s_qb, 16))
em.wait(lg0=True)
diag(2)
srd(S_X, s_ka[0], s_ka[1], 65536, s_t0)
v_xp = V(64, 64)
xl = []
for ks in range(16):
    xl.append(e(bload(v_xp[(4 * ks, 4)], vxo, S_X, 0, off=64 * ks)))
diag(2)
e(salu("s_lshr_b32", s_t2, s_qb, 3)); e(salu("s_lshl_b32", s_t3, s_g, 2)); e(salu("s_add_u32", s_t2, s_t2, s_t3))
e(salu("s_lshl_b32", s_t0, s_t2, 16))
srd(S_OUT, s_kb[2], s_kb[3], 65536, s_t0)
e(salu("s_lshl_b32", s_t1, s_g, 19))
srd(S_K, s_ka[2], s_ka[3], 524288, s_t1)
srd(S_V, s_ka[4], s_ka[5], 524288, s_t1)
srd(S_WO, s_ka[8], s_ka[9], 524288, s_t1)
srd(S_WQ, s_ka[6], s_ka[7], 4 << 20)
srd(S_WG, s_ka[12], s_ka[13], 1835008)
srd(S_WU, s_ka[14], s_ka[15], 1835008)
srd(S_WD, s_kb[0], s_kb[1], 1835008)
srd(S_DBG, s_kb[4], s_kb[5], 256)
e(salu("s_mul_i32", s_t1, s_qb, 229376, scc_w=False))
srd(S_H, s_kb[6], s_kb[7], 229376, s_t1)
e(salu("s_lshl_b32", s_t1, s_qb, 19)); e(salu("s_add_u32", s_t1, s_t1, hx(WS_SP)))
srd(S_SP, s_kb[6], s_kb[7], 524288, s_t1)
if DUMP or STAMP:
    e(salu("s_mov_b32", s_t1, hx(WS_DUMP), scc_w=False))
    srd(S_DMP, s_kb[6], s_kb[7], 200 << 20, s_t1)
e(salu("s_mov_b64", s_pair, S(90, 2), scc_w=False))
e(salu("s_lshl_b32", s_t0, s_t2, 16))
srd(S_XC, s_ka[0], s_ka[1], 65536, s_t0)
e(salu("s_mul_i32", s_t1, s_t2, 229376, scc_w=False))
srd(S_HC, s_pair[0], s_pair[1], 229376, s_t1)
e(salu("s_lshl_b32", s_t1, s_t2, 19)); e(salu("s_add_u32", s_t1, s_t1, hx(WS_SP)))
srd(S_SPC, s_pair[0], s_pair[1], 524288, s_t1)
e(salu("s_mov_b32", s_cq, s_t2, scc_w=False)); e(salu("s_and_b32", s_cg, s_qb, 7))
e(salu("s_mov_b32", s_t1, hx(WS_FL), scc_w=False))
srd(S_FL, s_pair[0], s_pair[1], 4096, s_t1)
e(salu("s_lshl_b32", s_myfl, s_qb, 7)); e(salu("s_lshl_b32", s_t1, s_g, 2)); e(salu("s_add_u32", s_myfl, s_myfl, s_t1))
e(salu("s_lshl_b32", s_m0b, s_w, 12)); e(salu("s_add_u32", s_m0b, s_m0b, RING))
e(salu("s_and_b32", s_t1, s_g, 1)); e(salu("s_lshl_b32", s_t1, s_t1, 2)); e(salu("s_add_u32", s_t1, s_t1, s_w))
e(scmp("s_cmp_eq_u32", s_w, 3)); e(salu("s_cselect_b32", s_t1, 3, s_t1, scc_w=False, scc_r=True))
e(salu("s_lshr_b32", s_t2, s_g, 1)); e(salu("s_mul_i32", s_t2, s_t2, 7, scc_w=False)); e(salu("s_add_u32", s_t1, s_t1, s_t2))
e(salu("s_lshl_b32", s_h0, s_t1, 13)); e(salu("s_add_u32", s_h1, s_h0, 4096))
e(salu("s_lshl_b32", s_t1, s_t1, 7))
e(salu("s_lshl_b32", s_t2, s_g, 2)); e(salu("s_add_u32", s_t2, s_t2, s_w)); e(salu("s_lshl_b32", s_t2, s_t2, 8))

def dma_voffs(dst, stride, colbase_s, perm):
    for j in range(4):
        e(valu("v_bfe_u32", vx, v_lane, 1, 2)); e(valu("v_bfe_u32", vy, v_lane, 4, 1))
        e(valu("v_xor_b32", vx, vx, vy))
        if j & 1: e(valu("v_xor_b32", vx, 2, vx))
        e(valu("v_and_b32", vy, 1, v_lane)); e(valu("v_lshlrev_b32", vy, 4, vy)); e(valu("v_lshl_add_u32", vx, vx, 5, vy))
        if not perm:
            e(valu("v_lshrrev_b32", vy, 3, v_lane)); rowadd = 8 * j
        else:
            e(valu("v_bfe_u32", vy, v_lane, 3, 2)); e(valu("v_bfe_u32", vz, v_lane, 5, 1)); e(valu("v_lshl_add_u32", vy, vz, 4, vy)); rowadd = 4 * j
        e(valu("v_mul_u32_u24", vy, stride, vy))
        e(valu("v_add3_u32", vx, vx, vy, colbase_s))
        e(valu("v_add_u32", dst[j], rowadd * stride - j * 1024, vx))

dma_voffs(v_dA, 3584, s_t1, False)
dma_voffs(v_dB, 8192, s_t2, False)

def m0set(p): return salu("s_add_u32", "m0", s_m0b, p * 16384)
def s1_dma(m):
    p = m % 6
    if m < 32:
        s, h = m >> 1, m & 1
        return [m0set(p), salu("s_mov_b32", s_off, s * 32 * 3584, scc_w=False)], [dma(v_dA[j], S_WU if h else S_WG, s_off, j * 1024) for j in range(4)]
    if m < 64:
        s, h = (m - 32) >> 1, m & 1
        return [m0set(p), salu("s_mov_b32", s_off, s * 32 * 8192 + 128 * h, scc_w=False)], [dma(v_dB[j], S_WQ, s_off, j * 1024) for j in range(4)]
    if m == 64:
        return [m0set(p), salu("s_mov_b32", s_off, 0, scc_w=False)], [dma(v_kd[j], S_K, s_off, j * 1024) for j in range(4)]
    if m == 65:
        return [m0set(p), salu("s_mov_b32", s_off, 8192, scc_w=False)], [dma(v_kd[j], S_K, s_off, j * 1024) for j in range(4)]
    if m == 66:
        return [m0set(p), salu("s_mov_b32", s_off, 0, scc_w=False)], [dma(v_vd[j & 1], S_V, s_off, j * 1024) for j in range(4)]
    return None
dtok = {}
for m in range(6):
    sa, dm = s1_dma(m)
    e(sa);
    for d in dm: e(d)
    dtok[m] = dm[3]

def xaddr(dst, tmp):
    e(valu("v_and_b32", dst, 15, v_lane)); e(salu("s_lshl_b32", s_t0, s_w, 4)); e(valu("v_add_u32", dst, s_t0, dst)); e(valu("v_lshlrev_b32", dst, 10, dst))
    e(valu("v_lshrrev_b32", tmp, 4, v_lane)); e(valu("v_lshl_add_u32", dst, tmp, 3, dst)); e(salu("s_lshl_b32", s_t0, s_cg, 7)); e(valu("v_add_u32", dst, s_t0, dst))
e(valu("v_mov_b32", vz, 0))
e(raw("s_mov_b64 exec, 1", "salu", wr=["exec"]))
e(bstore(vz, None, S_FL, s_myfl, mod="sc1"))
e(raw("s_mov_b64 exec, -1", "salu", wr=["exec"]))
xaddr(vx, vy)
for u in range(4): e(bload(a_x[(2 * u, 2)], vx, S_XC, 0, off=32 * u, n=2))
diag(2)
vw = V(48)
e(salu("s_mul_i32", s_t1, s_g, 448, scc_w=False)); e(salu("s_and_b32", s_t1, s_t1, hx(~127)))
e(salu("s_mul_i32", s_t2, s_qb, 16 * 3584, scc_w=False)); e(salu("s_add_u32", s_t1, s_t1, s_t2))
e(valu("v_lshrrev_b32", vx, 2, v_lane)); e(valu("v_mul_u32_u24", vx, 3584, vx)); e(valu("v_and_b32", vy, 3, v_lane)); e(valu("v_lshl_add_u32", vx, vy, 7, vx))
e(scmp("s_cmp_ge_u32", s_w, 2)); e(raw("s_cbranch_scc1 L_warm_q", rd=["scc"]))
e(scmp("s_cmp_eq_u32", s_w, 1)); e(raw("s_cbranch_scc1 L_warm_u", rd=["scc"]))
w0 = raw("buffer_load_dword %s, %s, %s, %s offen" % (vw, vx, S_WG, s_t1)); e(w0)
e(raw("s_branch L_warm_done"))
em.label("L_warm_u")
e(raw("buffer_load_dword %s, %s, %s, %s offen" % (vw, vx, S_WU, s_t1)))
e(raw("s_branch L_warm_done"))
em.label("L_warm_q")
e(salu("s_lshl_b32", s_t1, s_qb, 4)); e(salu("s_lshl_b32", s_t2, s_w, 3)); e(salu("s_add_u32", s_t1, s_t1, s_t2)); e(salu("s_sub_u32", s_t1, s_t1, 16))
e(salu("s_lshl_b32", s_t1, s_t1, 13)); e(salu("s_lshl_b32", s_t2, s_g, 10)); e(salu("s_add_u32", s_t1, s_t1, s_t2))
e(valu("v_lshrrev_b32", vx, 3, v_lane)); e(valu("v_lshlrev_b32", vx, 13, vx)); e(valu("v_and_b32", vy, 7, v_lane)); e(valu("v_lshl_add_u32", vx, vy, 7, vx))
e(raw("buffer_load_dword %s, %s, %s, %s offen" % (vw, vx, S_WQ, s_t1)))
em.label("L_warm_done")
wtok = I("; warm", "vmem", wr=vw.regs()); em.vmq.append(wtok); em.pend[str(vw)] = wtok
e(raw("s_getpc_b64 %s" % s_pair, "salu", wr=[s_pair]))
em.label("L_pc0")
e(valu("v_lshlrev_b32", vy, 7, v_tid))
for k in range(2):
    e(valu("v_min_u32", vx, "L_code_end-L_pc0-4", vy))
    e(I("global_load_dword %s, %s, %s" % (V(49 + k), vx, s_pair), "vmem", rd=vx.regs() + s_pair.regs(), wr=V(49 + k).regs()))
    if k == 0: e(valu("v_add_u32", vy, 0x8000, vy))

e(valu("v_bfe_u32", vr, v_lane, 2, 2)); e(valu("v_and_b32", vc_, 3, v_lane))
e(valu("v_lshlrev_b32", vx, 10, vG)); e(valu("v_lshl_add_u32", vx, vr, 7, vx)); e(valu("v_lshl_add_u32", vx, vc_, 3, vx)); e(valu("v_add_u32", vx, s_m0b, vx))
e(valu("v_lshrrev_b32", vy, 1, vr)); e(valu("v_and_b32", vz, 1, vG)); e(valu("v_lshl_add_u32", vy, vz, 1, vy))
for u in range(4):
    e(valu("v_xor_b32", vz, u, vy)); e(valu("v_lshl_add_u32", v_tr[0][u], vz, 5, vx)); e(valu("v_add_u32", v_tr[1][u], 3 * 16384, v_tr[0][u]))
e(valu("v_xor_b32", vy, vG, vq))
for ds in range(4):
    e(valu("v_xor_b32", vz, 4 * ds, vy)); e(valu("v_lshlrev_b32", vz, 4, vz)); e(valu("v_lshl_add_u32", vz, vq, 8, vz)); e(valu("v_add_u32", v_ka[ds], RING + 4 * 16384, vz))
e(valu("v_lshl_add_u32", vx, vG, 2, vr)); e(valu("v_and_b32", vy, 7, vx)); e(valu("v_lshlrev_b32", vx, 8, vx)); e(valu("v_lshl_add_u32", vx, vc_, 3, vx)); e(valu("v_add_u32", vx, RING, vx))
for db in range(8):
    e(valu("v_xor_b32", vz, db, vy)); e(valu("v_lshl_add_u32", v_va[db], vz, 5, vx))
e(salu("s_lshl_b32", s_t1, s_w, 12))
e(valu("v_lshlrev_b32", vx, 8, vG)); e(valu("v_add_u32", vx, s_t1, vx))
for j in range(4):
    e(valu("v_add_u32", vy, 4 * j, vG)); e(valu("v_xor_b32", vy, vy, vq)); e(valu("v_lshl_add_u32", v_kd[j], vy, 4, vx))
e(valu("v_and_b32", vz, 1, v_lane)); e(valu("v_lshl_add_u32", vx, vz, 4, vx))
for j in range(2):
    e(valu("v_add_u32", vy, 4 * j, vG)); e(valu("v_lshrrev_b32", vz, 1, vq)); e(valu("v_xor_b32", vy, vy, vz)); e(valu("v_lshl_add_u32", v_vd[j], vy, 5, vx))
e(salu("s_lshl_b32", s_t1, s_w, 14)); e(valu("v_add_u32", v_wl, s_t1, v_lin))
e(salu("s_mov_b32", s_retry, 0, scc_w=False))
stamp()

v_f = V(128, 128)
acc = [V(52, 2), V(54, 2), V(56, 2), V(58, 2)]
diag(2)
for ks in range(16):
    em.wait(vm=xl[ks])
    if ks in (0, 15): diag(2)
    for k in range(4):
        p = 4 * ks + k
        e(valu("v_lshlrev_b32", v_f[2 * p], 16, v_xp[p])); e(valu("v_and_b32", v_f[2 * p + 1], "0xffff0000", v_xp[p]))
    for k in range(4):
        p = 4 * ks + k
        if ks == 0: e(valu("v_mov_b64", acc[k], v_f[(2 * p, 2)]))
        else: e(valu("v_pk_add_f32", acc[k], acc[k], v_f[(2 * p, 2)]))
e(valu("v_pk_add_f32", acc[0], acc[0], acc[1])); e(valu("v_pk_add_f32", acc[2], acc[2], acc[3])); e(valu("v_pk_add_f32", acc[0], acc[0], acc[2]))
vsum, vtmp, vmb, vdm = V(60), V(61), V(62), V(63)
e(valu("v_add_f32", vsum, acc[0][0], acc[0][1]))
red4("v_add_f32", [vsum], [vtmp])
e(valu("v_mul_f32", vsum, hx(f2u(1.0 / 512)), vsum))
e(valu("v_cvt_pk_bf16_f32", vmb, vsum, vsum)); e(valu("v_lshlrev_b32", vmb, 16, vmb))
e(valu("v_sub_f32", vdm, vsum, vmb))
vneg = V(52, 2)
e(valu("v_sub_f32", vneg[0], 0, vmb))
acc2 = [V(54, 2), V(56, 2), V(58, 2)]
for p in range(64):
    e(valu("v_pk_add_f32", v_f[(2 * p, 2)], v_f[(2 * p, 2)], vneg, mod="op_sel_hi:[1,0]"))
for p in range(64):
    a_ = acc2[p % 3]
    if p < 3: e(valu("v_pk_mul_f32", a_, v_f[(2 * p, 2)], v_f[(2 * p, 2)]))
    else: e(valu("v_pk_fma_f32", a_, v_f[(2 * p, 2)], v_f[(2 * p, 2)], a_))
e(valu("v_pk_add_f32", acc2[0], acc2[0], acc2[1])); e(valu("v_pk_add_f32", acc2[0], acc2[0], acc2[2]))
e(valu("v_add_f32", vsum, acc2[0][0], acc2[0][1]))
red4("v_add_f32", [vsum], [vtmp])
e(valu("v_mul_f32", vsum, hx(f2u(1.0 / 512)), vsum))
e(valu("v_fma_f32", vsum, "-" + str(vdm), vdm, vsum, extra_rd=vdm.regs()))
e(valu("v_max_f32", vsum, 0, vsum))
e(valu("v_cvt_pk_bf16_f32", vsum, vsum, vsum)); e(valu("v_lshlrev_b32", vsum, 16, vsum))
e(valu("v_add_f32", vsum, hx(f2u(1e-5)), vsum))
e(valu("v_cvt_pk_bf16_f32", vsum, vsum, vsum)); e(valu("v_lshlrev_b32", vsum, 16, vsum))
e(valu("v_sqrt_f32", vsum, vsum)); e(nop(0))
e(valu("v_cvt_pk_bf16_f32", vsum, vsum, vsum)); e(valu("v_lshlrev_b32", vsum, 16, vsum))
e(valu("v_rcp_f32", vneg[0], vsum)); e(nop(0))
for ks in range(16):
    for k in range(4):
        p = 4 * ks + k
        e(valu("v_pk_mul_f32", v_f[(2 * p, 2)], v_f[(2 * p, 2)], vneg, mod="op_sel_hi:[1,0]"))
    for k in range(4):
        p = 4 * ks + k
        e(valu("v_cvt_pk_bf16_f32", v_xp[p], v_f[2 * p], v_f[2 * p + 1]))
    e(dswrite("ds_write_b128", v_wl, v_xp[(4 * ks, 4)], ks * 1024))
if DUMP == "ln": dump_regs([v_xp[i] for i in range(64)])
em.wait(lg0=True)
e(raw("s_barrier"))
stamp(); diag()

def run_stream(NH, dmaf, dtok, accf, Bf, extra, vstream, LOOK=6, nq=4, pos0=0, ring=a_ring):
    NG = 4 * NH
    rtok = {}
    def reads(g):
        m, u = g >> 2, g & 3
        p = (m + pos0) % 6
        d = ring[((g % 8) * 4, 4)]
        r = [dsread("ds_read_b64_tr_b16", d[(2 * h2, 2)], v_tr[p // 3][u], (p % 3) * 16384 + h2 * 512) for h2 in range(2)]
        rtok[g] = r[1]
        return r
    em.wait(vm=dtok[0])
    for g in range(3): e(reads(g))
    for pre in extra.get(-1, []): e(pre[1])
    em.wait(lg0=True)
    vi = 0
    for g in range(NG):
        m, u = g >> 2, g & 3
        gaps = [[], [], [], []]; cap = [2, 2, 2, 2]
        if g + 3 < NG:
            if (g + 3) & 3 == 0: gaps[0].append(Wait(vm=dtok[(g + 3) >> 2]))
            r = reads(g + 3); gaps[0].append(r[0]); gaps[1].append(r[1]); cap[0] -= 1; cap[1] -= 1
        md, j = (g + 4 * LOOK - 4) >> 2, (g + 4 * LOOK - 4) & 3
        if md >= LOOK:
            if j == 0: cur = dmaf(md)
            if cur is not None:
                if j == 0: gaps[2] += cur[0]
                items = cur[1][j::4]
                for it in items: gaps[3].append(it); cap[3] -= 1
                if j == 3: dtok[md] = cur[1][3]
        for (gp, it, cost) in extra.get(g, []):
            gaps[gp].append(it); cap[gp] -= cost
        if g + 1 < NG: gaps[3].insert(0, Wait(lg=rtok[g + 1]))
        d = ring[((g % 8) * 4, 4)]
        for qb in range(nq):
            ac, first = accf(m, u, qb)
            e(mfma(ac, d, Bf(m, qb), 0 if first else ac))
            for it in gaps[qb]: e(it)
            c = cap[qb]
            quota = vstream.quota(g) if vstream else 0
            while vstream and vstream.has(g) and (c > 0 or quota > 0):
                it = vstream.peek()
                cost = 2 if it.kind == "trans" else 1
                if cost > c and quota <= 0: break
                if cost > c: quota -= 1; vstream.used_quota()
                e(vstream.pop()); c -= cost
    if vstream:
        while vstream.has(10 ** 9): e(vstream.pop())

class VStream:
    def __init__(self, items, start, end, extra_total=0):
        self.items = items; self.i = 0; self.start = start; self.end = end
        self.extra_total = extra_total; self.used = 0
    def has(self, g): return self.i < len(self.items) and g >= self.start
    def peek(self): return self.items[self.i]
    def pop(self): self.i += 1; return self.items[self.i - 1]
    def quota(self, g):
        if g < self.start: return 0
        allowed = (g - self.start + 1) * self.extra_total // max(1, self.end - self.start)
        return 1 if allowed > self.used else 0
    def used_quota(self): self.used += 1

def s1_acc(m, u, qb):
    h = m & 1
    idx = ((h * 4 + u) * 4 + qb) * 4
    if m < 32: return A(idx, 4), m < 2
    return v_acc[(idx, 4)], m < 34
def s1_B(m, qb): return a_B[(((m >> 1) & 1) * 16 + qb * 4, 4)]
extra = {}
btok = {}
def bread(s, qb): return dsread("ds_read_b128", a_B[((s & 1) * 16 + qb * 4, 4)], v_lin, (qb * 16 + (s % 16)) * 1024)
extra[-1] = [(0, bread(0, qb), 1) for qb in range(4)]
for s in range(1, 32):
    for qb in range(4):
        extra.setdefault(8 * (s - 1) + 1 + qb, []).append((2, bread(s, qb), 1))
C0 = -2.0 * math.sqrt(2.0 / math.pi) * math.log2(math.e); C1 = C0 * 0.044715
vc0, vc1 = V(40), V(41)
gel = [valu("v_mov_b32", vc0, hx(f2u(C0))), valu("v_mov_b32", vc1, hx(f2u(C1)))]
hst = []
tb = 0
for i in range(2):
    for qb in range(4):
        pk = V(44 + 4 * (tb % 4), 4); tb += 1
        for b in range(2):
            u = 2 * i + b
            T = [V(64 + 16 * ((2 * tb + b) % 4) + k) for k in range(16)]
            G_, U_, X_ = T[0:4], T[4:8], T[8:12]
            ga = lambda r: A((u * 4 + qb) * 4 + r); ua = lambda r: A(((4 + u) * 4 + qb) * 4 + r)
            for r in range(4): gel.append(valu("v_accvgpr_read_b32", G_[r], ga(r)))
            for r in range(4): gel.append(valu("v_accvgpr_read_b32", U_[r], ua(r)))
            for r in range(4): gel.append(valu("v_mul_f32", X_[r], G_[r], G_[r]))
            for r in range(4): gel.append(valu("v_fma_f32", X_[r], X_[r], vc1, vc0))
            for r in range(4): gel.append(valu("v_mul_f32", X_[r], X_[r], G_[r]))
            for r in range(4): gel.append(valu("v_exp_f32", X_[r], X_[r]))
            for r in range(4): gel.append(valu("v_mul_f32", G_[r], G_[r], U_[r]))
            for r in range(4): gel.append(valu("v_add_f32", X_[r], "1.0", X_[r]))
            for r in range(4): gel.append(valu("v_rcp_f32", X_[r], X_[r]))
            gel.append(nop(0))
            for r in range(4): gel.append(valu("v_mul_f32", G_[r], G_[r], X_[r]))
            for k in range(2): gel.append(valu("v_cvt_pk_bf16_f32", pk[2 * b + k], G_[2 * k], G_[2 * k + 1]))
        st = bstore(pk, v_lin, S_H, s_h1 if i else s_h0, off=qb * 1024, mod="sc1")
        gel.append(st); hst.append(st)
class Stamp:
    def __call__(self): stamp(); return []
if STAMP: extra.setdefault(128, []).append((0, Stamp(), 0))
vs = VStream(gel, 131, GEL_END, extra_total=GEL_EXTRA)
run_stream(64, s1_dma, dtok, s1_acc, s1_B, extra, vs)
if DUMP == "qacc": dump_regs([v_acc[i] for i in range(128)])
stamp()

em.wait(lg0=True)
e(raw("s_barrier"))
def signal(off_s_expr_add, lab):
    e(scmp("s_cmp_lg_u32", s_w, 0)); e(raw("s_cbranch_scc1 %s" % lab, rd=["scc"]))
    e(salu("s_lshl_b32", s_t0, s_qb, 2))
    if off_s_expr_add: e(salu("s_add_u32", s_t0, s_t0, off_s_expr_add))
    e(valu("v_mov_b32", v_t, 1))
    e(raw("s_mov_b64 exec, 1", "salu", wr=["exec"]))
    e(raw("buffer_atomic_add %s, off, %s, %s sc1" % (v_t, S_DBG, s_t0)))
    e(raw("s_mov_b64 exec, -1", "salu", wr=["exec"]))
    em.label(lab)
QS = math.log2(math.e) / math.sqrt(128.0)
vqs = V(40, 2); vqw = V(42)
e(valu("v_mov_b32", vqs[0], hx(f2u(QS))))
e(valu("v_and_b32", v_t, 15, v_lane)); e(valu("v_bfe_u32", vqw, v_lane, 5, 1)); e(valu("v_lshl_add_u32", v_t, vqw, 4, v_t)); e(valu("v_lshlrev_b32", v_t, 4, v_t))
e(valu("v_bfe_u32", vqw, v_lane, 4, 1)); e(valu("v_lshl_add_u32", vqw, vqw, 3, v_t))
e(salu("s_lshl_b32", s_t1, s_w, 14)); e(valu("v_add_u32", vqw, s_t1, vqw))
for blk in range(8):
    for qb in range(4):
        a_ = v_acc[((blk * 4 + qb) * 4, 4)]
        t = V(64 + 2 * ((blk * 4 + qb) % 8), 2)
        for k in range(2): e(valu("v_pk_mul_f32", a_[(2 * k, 2)], a_[(2 * k, 2)], vqs, mod="op_sel_hi:[1,0]"))
        for k in range(2): e(valu("v_cvt_pk_bf16_f32", t[k], a_[2 * k], a_[2 * k + 1]))
        if len(em.lgq) >= 7: em.wait(lg=em.lgq[-7])
        e(dswrite("ds_write_b64", vqw, t, (qb * 4 + (blk >> 1)) * 1024 + (blk & 1) * 512))
em.wait(lg0=True)
for f in range(16):
    e(dsread("ds_read_b128", a_Q[(4 * f, 4)], v_wl, f * 1024))
    if f == 7: pass
vx, vy, vz = V(96), V(97), V(98)
e(salu("s_lshl_b32", s_t1, s_w, 8))
dma_voffs(v_dA, 1024, s_t1, True)
em.label("L_att_start")
for i in range(64): e(valu("v_mov_b64", v_acc[(2 * i, 2)], 0))
for i in range(4): e(valu("v_mov_b32", v_l0[i], 0)); e(valu("v_mov_b32", v_l1[i], 0))
em.wait(vm0=True, lg0=True)
e(raw("s_barrier"))
e(scmp("s_cmp_lg_u32", s_retry, 0)); e(raw("s_cbranch_scc1 L_sigH", rd=["scc"]))
signal(HC_OFF, "L_sigH")
if DUMP == "q": dump_regs([a_Q[i] for i in range(64)])
stamp()

def Qf(qb, ds): return a_Q[((qb * 4 + ds) * 4, 4)]
def Of(db, qb): return v_acc[((db * 4 + qb) * 4, 4)]
def fr(f): return a_ring[((f % 8) * 4, 4)]
def kslot(par): return 16384 if par == 0 else 0
def vslot(par): return 0 if par == 0 else 16384
def frag_reads(par, f):
    if f >= 32: par ^= 1; f -= 32
    d = fr(f)
    if f < 8 or 16 <= f < 24:
        kb = (f >> 2) if f < 8 else 2 + ((f - 16) >> 2)
        return [dsread("ds_read_b128", d, v_ka[f & 3], kslot(par) + kb * 4096)]
    ks2 = 0 if f < 16 else 1
    db = f & 7
    return [dsread("ds_read_b64_tr_b16", d[(2 * h, 2)], v_va[db], vslot(par) + ks2 * 8192 + h * 4096) for h in range(2)]
def read_sched(g):
    r = []
    if g + 3 < 24 or g >= 29: r.append(g + 3)
    if 19 <= g <= 26: r.append(g + 5)
    return r
def sm_val(g, k):
    if 7 <= g <= 22: b = 1; n = 2 * (g - 7) + k
    else: b = 0; n = 2 * ((g - 23) % 32) + k
    kb, qb, r = n >> 4, (n >> 2) & 3, n & 3
    return b, qb, kb, r
def sm_items(g):
    ex, ad = [], []
    for k in range(2):
        b, qb, kb, r = sm_val(g, k)
        x = v_S[b][qb * 8 + kb * 4 + r]
        l = (v_l1 if b else v_l0)[qb]
        ex.append(valu("v_exp_f32", x, x)); ad.append(valu("v_add_f32", l, l, x))
    b, qb, kb, r = sm_val((g - 1) % 32, 0)
    cv = valu("v_cvt_pk_bf16_f32", v_S[b][qb * 8 + kb * 2 + (r >> 1)], v_S[b][qb * 8 + kb * 4 + r], v_S[b][qb * 8 + kb * 4 + r + 1])
    return ex, ad, cv
def att_dma(par, g):
    if g >= 29: k = g - 29; sp = par
    elif g <= 4: k = g + 3; sp = par ^ 1
    else: return [], None
    sal = []
    if k == 0: sal = [salu("s_add_u32", "m0", s_m0b, 4 * 16384 + kslot(sp))]
    if k == 4: sal = [salu("s_add_u32", "m0", s_m0b, vslot(sp))]
    if k < 4: return sal, dma(v_kd[k], S_K, s_kK, k * 1024)
    return sal, dma(v_vd[k & 1], S_V, s_kV, (k - 4) * 1024)
SIDE_FIRST = 11
class Lbl:
    def __init__(self, n): self.n = n
    def __call__(self): em.label(self.n); return []
class LoopStamp:
    def __init__(self, k, par): self.k, self.par = k, par
    def __call__(self):
        k = self.k
        e(raw("s_memtime %s" % S(68 + 2 * k, 2), "other", wr=[S(68 + 2 * k, 2)]))
        if k == 2:
            e(raw("s_waitcnt lgkmcnt(0)", "wait")); em._retire(em.lgq, 0)
            for i in range(3): e(valu("v_writelane_b32", v_c, S(68 + 2 * i), i, rmw=True))
            e(salu("s_lshl_b32", S(74), S(2), 2)); e(salu("s_add_u32", S(74), S(74), s_w)); e(salu("s_lshl_b32", S(74), S(74), 4))
            e(salu("s_sub_u32", S(74), S(74), s_cnt)); e(salu("s_add_u32", S(74), S(74), 16)); e(salu("s_lshl_b32", S(74), S(74), 5))
            e(salu("s_add_u32", S(74), S(74), (1 << 20) + 16 * self.par))
            e(raw("s_mov_b64 exec, 7", "salu", wr=["exec"]))
            e(valu("v_lshlrev_b32", v_t, 2, v_lane))
            e(bstore(v_c, v_t, S_DMP, S(74), off=0))
            e(raw("s_mov_b64 exec, -1", "salu", wr=["exec"]))
            e(valu("v_lshlrev_b32", v_t, 7, v_lane))
        return []
s_pf = [S(16, 2), S(18, 2), S(24, 2), S(26, 2)]
s_pfH = S(28, 2)
s_fo = S(3)
v_tch, v_flag = V(3), V(0)
xtok = []; lastdma = [None]
ROT = int(os.environ.get('ROT', '10'))
ftok = {}
def att_group(par, g, do_mfma=True, do_mem=True, do_cvt=True, last=False):
    ex, ad, cv = sm_items(g)
    mem = []
    sal = []
    if do_mem:
        for f in read_sched(g):
            r = frag_reads(par, f); mem += r; ftok[f % 32] = r
        sal, d = att_dma(par, g)
        if d is not None: mem.append(d)
    if do_mem and par == 0 and g == 5:
        mem.append(I("global_load_dword %s, %s, %s" % (v_flag, v_tch, s_pf[0]), "vmem", rd=v_tch.regs() + s_pf[0].regs(), wr=[])); xtok.append(mem[-1])
    if do_mem and par == 0 and g == 6:
        mem.append(I("buffer_load_dword %s, off, %s, %s sc1" % (v_flag, S_DBG, s_fo), "vmem", rd=S_DBG.regs() + s_fo.regs(), wr=[])); xtok.append(mem[-1])
    if do_mem and par == 0 and g in (8, 9, 10): sal = sal + [scmp("s_cmp_le_u32", s_cnt, ROT), salu("s_cselect_b64", s_pf[g - 8], s_pf[g - 7], s_pf[g - 8], scc_w=False, scc_r=True)]
    if do_mem and g == 4: lastdma[0] = d
    post0 = []
    if do_mem and do_mfma and par == 1 and g == 30: post0 = [valu("v_readfirstlane_b32", s_t0, v_flag)]
    if do_mem and do_mfma and par == 1 and g == 31: sal = sal + [scmp("s_cmp_lt_u32", s_cnt, ROT), salu("s_cselect_b32", s_t0, s_t0, 0, scc_w=False, scc_r=True), scmp("s_cmp_ge_u32", s_t0, 8), salu("s_cselect_b64", s_pf[3], s_pfH, s_pf[3], scc_w=False, scc_r=True)]
    gaps = [[], [], [], []]
    if g == 29 and do_mem:
        if STAMP == 2 and do_mfma: gaps[0] += [LoopStamp(0, par)]
        gaps[0] += [Wait(lg0=True, vm0=True) if (par == 1 or not do_mfma) else Wait(lg0=True, vm=lastdma[0])]
        if STAMP == 2 and do_mfma: gaps[0] += [LoopStamp(1, par)]
        gaps[0] += [raw("s_barrier")]
        if STAMP == 2 and do_mfma: gaps[0] += [LoopStamp(2, par)]
    gaps[0] += sal
    if g == 6 and do_mem: gaps[0].append(salu("s_add_u32", s_kK, s_kK, 16384))
    if g == 7 and do_mem: gaps[0].append(salu("s_add_u32", s_kV, s_kV, 16384))
    if g == 23 and par == 1 and do_mfma:
        gaps[0] += [valu("v_mov_b32", v_lsave[i], v_l0[i]) for i in range(4)]
    if len(mem) > 2: gaps[0].append(mem[2])
    gaps[0].append(ex[0])
    if len(mem) > 0: gaps[1].append(mem[0])
    if len(mem) == 0 and do_cvt: gaps[1].append(cv)
    gaps[1].append(ad[0])
    gaps[1] += post0
    if do_mem: gaps[2].append(Wait(lg=ftok.get((g + 1) % 32)))
    if last and g == 30: gaps[2].append(salu("s_sub_u32", s_cnt, s_cnt, 1))
    gaps[2].append(ex[1])
    if len(mem) > 1: gaps[3].append(mem[1])
    if len(mem) > 0 and do_cvt: gaps[3].append(cv)
    gaps[3].append(ad[1])
    for qb in range(4):
        if do_mfma:
            if g < 8 or 16 <= g < 24:
                b = 1 if g < 8 else 0
                kb, ds = (g >> 2) & 1, g & 3
                d = v_S[b][(qb * 8 + kb * 4, 4)]
                e(mfma(d, fr(g), Qf(qb, ds), v_negm[(qb * 4, 4)] if ds == 0 else d))
            else:
                b = 0 if g < 16 else 1
                e(mfma(Of(g & 7, qb), fr(g), v_S[b][(qb * 8, 4)], Of(g & 7, qb)))
        else:
            if qb & 1: e(nop(0))
        for it in gaps[qb]: e(it)

for it in range(3):
    e(salu("s_add_u32", s_t0, s_w, 4 * it))
    e(salu("s_sub_u32", s_t1, s_t0, 2)); e(salu("s_min_u32", s_t1, s_t1, 6)); e(salu("s_lshl_b32", s_t1, s_t1, 13))
    e(salu("s_mul_i32", s_t2, s_qb, 57344, scc_w=False)); e(salu("s_add_u32", s_t1, s_t1, s_t2))
    e(salu("s_add_u32", s_pf[it][0], S_WD[0], s_t1)); e(salu("s_addc_u32", s_pf[it][1], S_WD[1], 0, scc_r=True))
    if it == 0:
        e(scmp("s_cmp_ge_u32", s_w, 2)); e(raw("s_cbranch_scc1 L_pf_wd", rd=["scc"]))
        e(salu("s_lshl_b32", s_t1, s_qb, 14)); e(salu("s_lshl_b32", s_t2, s_w, 13)); e(salu("s_add_u32", s_t1, s_t1, s_t2))
        e(salu("s_add_u32", s_pf[0][0], S_WO[0], s_t1)); e(salu("s_addc_u32", s_pf[0][1], S_WO[1], 0, scc_r=True))
        em.label("L_pf_wd")
e(raw("s_getpc_b64 %s" % s_pf[3], "salu", wr=[s_pf[3]]))
em.label("L_pc1")
e(salu("s_lshl_b32", s_t0, s_w, 13)); e(salu("s_add_u32", s_t0, s_t0, "L_tail-L_pc1")); e(salu("s_min_u32", s_t0, s_t0, "L_code_end-L_pc1-8192"))
e(salu("s_add_u32", s_pf[3][0], s_pf[3][0], s_t0)); e(salu("s_addc_u32", s_pf[3][1], s_pf[3][1], 0, scc_r=True))
e(salu("s_lshl_b32", s_t0, s_cg, 2)); e(salu("s_add_u32", s_t0, s_t0, s_w)); e(salu("s_mul_i32", s_t0, s_t0, 7168, scc_w=False)); e(salu("s_min_u32", s_t0, s_t0, 229376 - 8192))
e(salu("s_add_u32", s_pfH[0], S_HC[0], s_t0)); e(salu("s_addc_u32", s_pfH[1], S_HC[1], 0, scc_r=True))
e(valu("v_lshlrev_b32", v_tch, 7, v_lane))
e(salu("s_lshl_b32", s_fo, s_cq, 2)); e(salu("s_add_u32", s_fo, s_fo, HC_OFF))
pr = [dsread("ds_read_b128", fr(f), v_ka[f & 3], (f >> 2) * 4096) for f in range(8)]
for r in pr: e(r)
e(scmp("s_cmp_lg_u32", s_retry, 0)); e(raw("s_cbranch_scc1 L_have_max", rd=["scc"]))
for i in range(16): e(valu("v_mov_b32", v_negm[i], 0))
em.label("L_have_max")
for f in range(8):
    em.wait(lg=pr[f])
    for qb in range(4):
        d = v_S[0][(qb * 8 + (f >> 2) * 4, 4)]
        e(mfma(d, fr(f), Qf(qb, f & 3), v_negm[(qb * 4, 4)] if (f & 3) == 0 else d))
e(salu("s_mov_b32", s_kK, 16384 + 8192, scc_w=False)); e(salu("s_mov_b32", s_kV, 16384, scc_w=False)); e(salu("s_mov_b32", s_cnt, 16, scc_w=False))
e(scmp("s_cmp_lg_u32", s_retry, 0)); e(raw("s_cbranch_scc1 L_have_max2", rd=["scc"]))
e(nop(3))
mx = [V(96 + i) for i in range(4)]; mt = [V(100 + i) for i in range(4)]
for qb in range(4): e(valu("v_max3_f32", mx[qb], v_S[0][qb * 8], v_S[0][qb * 8 + 1], v_S[0][qb * 8 + 2]))
for qb in range(4): e(valu("v_max3_f32", mx[qb], mx[qb], v_S[0][qb * 8 + 3], v_S[0][qb * 8 + 4]))
for qb in range(4): e(valu("v_max3_f32", mx[qb], mx[qb], v_S[0][qb * 8 + 5], v_S[0][qb * 8 + 6]))
for qb in range(4): e(valu("v_max_f32", mx[qb], mx[qb], v_S[0][qb * 8 + 7]))
red4("v_max_f32", mx, mt)
for qb in range(4):
    for k in range(4): e(valu("v_sub_f32", v_negm[qb * 4 + k], 0, mx[qb]))
for qb in range(4):
    for k in range(8): e(valu("v_sub_f32", v_S[0][qb * 8 + k], v_S[0][qb * 8 + k], mx[qb]))
em.label("L_have_max2")
e(nop(7))
for g in range(23, 29): att_group(1, g, do_mfma=False, do_mem=False, do_cvt=(g != 23))
stamp(); diag()
for g in range(29, 32): att_group(1, g, do_mfma=False, do_mem=True)
pro_end = len(em.out)
em.directive(".p2align 6")
em.label("L_att_loop")
def body():
    for par in range(2):
        for g in range(32): att_group(par, g, last=(par == 1))
b0 = len(em.out)
body()
b1 = len(em.out)
e(scmp("s_cmp_lg_u32", s_cnt, 0)); e(raw("s_cbranch_scc1 L_att_loop", rd=["scc"]))
b2 = len(em.out)
body()
second = em.out[b2:]; del em.out[b2:]
assert [i.text for i in second] == [i.text for i in em.out[b0:b1]], "loop not in steady state"
loop_probs = check_hazards(em.out[b1 - 40:b2] + second[:60], "loop-wrap")
stamp()

em.label("L_tail")
diag()
v_ring2 = V(64, 32); v_B2 = V(96, 32)
def hreg(kk, qb): return A(64 + (kk % 12) * 16 + qb * 4, 4)
XY = int(os.environ.get("XY", "0"))
def mh(m): return ((m & 15), m >> 4) if XY else (m >> 1, m & 1)
P2 = 2
def s2_dma(m):
    p = (m + P2) % 6
    if m < 32:
        s, h = mh(m)
        return [m0set(p), salu("s_mov_b32", s_off, s * 32 * 1024 + 128 * h, scc_w=False)], [dma(v_dA[j], S_WO, s_off, j * 1024) for j in range(4)]
    if m < 46:
        return [m0set(p), salu("s_mov_b32", s_off, (m - 32) * 32 * 1024, scc_w=False)], [dma(v_dB[j], S_WD, s_off, j * 1024) for j in range(4)]
    return None
dtok2 = {}
post_v = []
for m in range(0, 6):
    sa, dm = s2_dma(m); post_v.append(sa); post_v += dm; dtok2[m] = dm[3]
pv = [0]
def post_issue(n):
    k = 0
    while k < n and pv[0] < len(post_v):
        it = post_v[pv[0]]; pv[0] += 1
        e(it)
        if not isinstance(it, list): k += 1
post_issue(4)
lt = [V(100 + i) for i in range(4)]
for qb in range(4): e(valu("v_add_f32", v_l1[qb], v_l1[qb], v_lsave[qb]))
red4("v_add_f32", [v_l1[i] for i in range(4)], lt)
e(salu("s_mov_b32", s_t0, hx(f2u(2.0 ** 30)), scc_w=False))
e(valu("v_add_f32", lt[1], v_l1[0], v_l1[1])); e(valu("v_add_f32", lt[2], v_l1[2], v_l1[3])); e(valu("v_add_f32", lt[1], lt[1], lt[2]))
e(valu("v_cmp_nge_f32", "vcc", s_t0, lt[1]))
rinv = [V(104 + 2 * i, 2) for i in range(4)]
for qb in range(4): e(valu("v_rcp_f32", rinv[qb][0], v_l1[qb]))
e(salu("s_mov_b64", s_pair, "vcc", scc_w=False))
post_issue(4)
for i in range(4):
    for qb in range(4):
        t = Of(2 * i, qb)
        for b in range(2):
            o = Of(2 * i + b, qb)
            for k in range(2): e(valu("v_pk_mul_f32", o[(2 * k, 2)], o[(2 * k, 2)], rinv[qb], mod="op_sel_hi:[1,0]"))
        if DUMP != "o":
            for b in range(2):
                o = Of(2 * i + b, qb)
                for k in range(2): e(valu("v_cvt_pk_bf16_f32", t[2 * b + k], o[2 * k], o[2 * k + 1]))
            if i == 0 and qb == 0:
                e(scmp("s_cmp_eq_u64", s_pair, 0)); e(raw("s_cbranch_scc1 L_nomark", rd=["scc"]))
                e(valu("v_mov_b32", t[0], hx(MARK)))
                em.label("L_nomark")
            if len(em.lgq) >= 12: em.wait(lg=em.lgq[-12])
            e(dswrite("ds_write_b128", v_wl, t, (i * 4 + qb) * 1024))
        post_issue(1)
post_issue(100)
if DUMP == "o": dump_regs([v_acc[i] for i in range(128)])
vm_ = V(56); vma = V(57)
e(valu("v_and_b32", vma, 3, v_lane)); e(valu("v_lshlrev_b32", vma, 14, vma))
e(salu("s_mov_b32", s_cnt, 0, scc_w=False))
em.label("L_pollH")
e(valu("v_readfirstlane_b32", s_t0, v_flag)); e(salu("s_mul_i32", s_hb, s_w, 14 * 4096, scc_w=False)); e(nop(1))
e(scmp("s_cmp_ge_u32", s_t0, 8)); e(raw("s_cbranch_scc1 L_pollH_done", rd=["scc"]))
e(salu("s_add_u32", s_cnt, s_cnt, 1)); e(scmp("s_cmp_ge_u32", s_cnt, 50000)); e(raw("s_cbranch_scc1 L_pollH_done", rd=["scc"]))
e(raw("s_sleep 4")); e(raw("buffer_load_dword %s, off, %s, %s sc1" % (v_flag, S_DBG, s_fo))); e(raw("s_waitcnt vmcnt(0)")); e(raw("s_branch L_pollH"))
em.label("L_pollH_done")
em.wait(lg0=True)
e(raw("s_barrier"))
stamp()
mk = e(dsread("ds_read_b32", vm_, vma, 0))
class FbCheck:
    def __call__(self):
        em.wait(lg=mk)
        e(valu("v_cmp_eq_u32", "vcc", hx(MARK), vm_))
        e(scmp("s_cmp_lg_u32", s_retry, 0)); e(raw("s_cbranch_scc1 L_nofb", rd=["scc"]))
        e(nop(1))
        e(raw("s_cbranch_vccnz L_fallback", rd=["vcc"]))
        em.label("L_nofb")
        return []

def s2_acc(m, u, qb):
    if m < 32: return v_acc[(((mh(m)[1] * 4 + u) * 4 + qb) * 4, 4)], mh(m)[0] == 0
    return a_F[((u * 4 + qb) * 4, 4)], m == 32
def bsel(m): return (m & 1) if XY else ((m >> 1) & 1)
def s2_B(m, qb):
    if m < 32: return v_B2[(bsel(m) * 16 + qb * 4, 4)]
    return hreg(m - 32, qb)
def oread(m, qb): return dsread("ds_read_b128", v_B2[(bsel(m) * 16 + qb * 4, 4)], v_lin, (mh(m)[0] * 4 + qb) * 1024)
extra = {-1: [(0, oread(0, qb), 1) for qb in range(4)] + [(0, FbCheck(), 0)]}
for m in range(1, 32):
    if XY:
        rr = [oread(m, qb) for qb in range(4)]
        for qb in range(4): extra.setdefault(4 * (m - 1) + (qb >> 1), []).append((2 + (qb & 1), rr[qb], 1))
        extra.setdefault(4 * m - 1, []).append((2, Wait(lg=rr), 0))
    elif (m & 1) == 0:
        for qb in range(4): extra.setdefault(4 * (m - 2) + 1 + qb, []).append((2, oread(m, qb), 1))
class LateWait:
    def __init__(self, f): self.f = f
    def __call__(self): return Wait(vm=self.f())
vxf = V(40, 8); vxa = V(48); vpoll = V(49); vfw = V(50)
vx, vy, vz = V(52), V(53), V(54)
save = em.out; em.out = []
for k in range(8): e(valu("v_accvgpr_read_b32", vxf[k], a_x[k]))
e(salu("s_mul_i32", s_t1, s_w, 448 * 1024, scc_w=False)); e(salu("s_lshl_b32", s_t3, s_cg, 7)); e(salu("s_add_u32", s_t1, s_t1, s_t3))
dma_voffs(v_dB, 1024, s_t1, True)
xaddr(vxa, vx)
e(valu("v_and_b32", V(51), 7, v_lane)); e(valu("v_lshlrev_b32", V(51), 2, V(51)))
e(salu("s_lshl_b32", s_t0, s_w, 12)); e(valu("v_add_u32", vfw, s_t0, v_lin))
e(salu("s_lshl_b32", s_t3, s_w, 4)); e(salu("s_add_u32", s_t3, s_t3, s_g)); e(salu("s_lshl_b32", s_t3, s_t3, 13))
early = em.out; em.out = save
class Seq:
    kind = "vmem"
    def __init__(self, l): self.l = l
    def __call__(self): return self.l
hld = {}; htok = {}
for kk in range(14):
    hld[kk] = [bload(hreg(kk, qb), v_lin, S_HC, s_hl, off=qb * 1024, mod="sc1") for qb in range(4)]
    htok[kk] = hld[kk][3]
    extra.setdefault(4 * (32 + kk) - 1, []).append((2, LateWait(lambda kk=kk: htok[kk]), 0))
hseq = []
for kk in range(14):
    for qb in range(4):
        hseq.append(Seq([salu("s_add_u32", s_hl, s_hb, kk * 4096), hld[kk][qb]]))
NPRE = int(os.environ.get("NPRE", "12")); HG0 = int(os.environ.get("HG0", "70")); HGS = int(os.environ.get("HGS", "4"))
for k in range(NPRE): extra.setdefault(HG0 + HGS * k, []).append((2, hseq[k], 1))
def sreg(ip, qb, odd=0): return v_acc[(((2 * ip + odd) * 4 + qb) * 4, 4)]
sp = []; spst = []
HPS = int(os.environ.get("HPS", "3")); hk = NPRE
for ip in range(4):
    for qb in range(4):
        t = sreg(ip, qb)
        for b in range(2):
            o = sreg(ip, qb, b)
            for k in range(2): sp.append(valu("v_cvt_pk_bf16_f32", t[2 * b + k], o[2 * k], o[2 * k + 1]))
        if (qb & 1) == 0: sp.append(salu("s_add_u32", s_t1, s_t3, (ip >> 1) * 65536 + (qb >> 1) * 4096))
        st = bstore(t, v_lin, S_SP, s_t1, off=(qb & 1) * 2048 + (ip & 1) * 1024, mod=os.environ.get("ST_MOD", "sc1").replace("plain", ""))
        if os.environ.get("ST_NONE") and not (ip == 3 and qb == 3): st = nop(0)
        sp.append(st); spst.append(st)
        if not (XY and ip < 2):
            for _ in range(HPS * (2 if XY else 1)):
                if hk < 48: sp.append(hseq[hk]); hk += 1
for k in range(hk, 48): sp.append(hseq[k])
for k in range(48, 56): extra.setdefault(140 + (k - 48), []).append((2, hseq[k], 1))
class SigS:
    def __call__(self):
        stamp(); em.wait(vm=spst[-1]); stamp(); e(raw("s_barrier"))
        e(scmp("s_cmp_lg_u32", s_w, 0)); e(raw("s_cbranch_scc1 L_sigS", rd=["scc"]))
        e(valu("v_mov_b32", v_t, 1))
        e(raw("s_mov_b64 exec, 1", "salu", wr=["exec"]))
        e(raw("buffer_store_dword %s, off, %s, %s sc1" % (v_t, S_FL, s_myfl)))
        e(raw("s_mov_b64 exec, -1", "salu", wr=["exec"]))
        em.label("L_sigS")
        return []
G_SIG = int(os.environ.get("G_SIG", "160")); G_POLL = int(os.environ.get("G_POLL", "172")); G_CHK = int(os.environ.get("G_CHK", "178"))
extra.setdefault(G_SIG, []).append((0, SigS(), 0))
vpa = V(51)
ptok = bload(vpoll, vpa, S_FL, s_t2, n=1, mod="sc1")
extra.setdefault(G_POLL, []).append((1, [salu("s_lshl_b32", s_t2, s_cq, 7)], 0))
extra.setdefault(G_POLL, []).append((2, ptok, 1))
def spl(gp, i): return sreg(gp >> 1, (gp & 1) * 2 + i, 1)
sl = []
class ChkS:
    def __call__(self):
        em.wait(vm=ptok)
        stamp()
        e(salu("s_mov_b32", s_cnt, 0, scc_w=False))
        em.label("L_pollS")
        e(valu("v_cmp_ne_u32", "vcc", 1, vpoll)); e(nop(2))
        e(raw("s_cbranch_vccz L_pollS_done", rd=["vcc"]))
        e(salu("s_add_u32", s_cnt, s_cnt, 1)); e(scmp("s_cmp_ge_u32", s_cnt, 50000)); e(raw("s_cbranch_scc1 L_pollS_done", rd=["scc"]))
        e(raw("buffer_load_dword %s, %s, %s, %s offen sc1" % (vpoll, vpa, S_FL, s_t2))); e(raw("s_waitcnt vmcnt(0)")); e(raw("s_branch L_pollS"))
        em.label("L_pollS_done")
        stamp()
        e(salu("s_lshl_b32", s_t0, s_cg, 16)); e(salu("s_lshl_b32", s_t1, s_w, 11)); e(salu("s_add_u32", s_t0, s_t0, s_t1))
        for gp in range(8):
            for i in range(2): sl.append(e(bload(spl(gp, i), v_lin, S_SPC, s_t0, off=i * 1024, mod="sc1")))
            if gp < 7: e(salu("s_add_u32", s_t0, s_t0, 8192))
        return []
if G_CHK < 184: extra.setdefault(G_CHK, []).append((0, ChkS(), 0))
if STAMP: extra.setdefault(128, []).append((0, Stamp(), 0))
class Diag:
    def __call__(self): diag(); return []
if DIAG: extra.setdefault(128, []).append((0, Diag(), 0))
class Paced(VStream):
    def has(self, g): return self.i < len(self.items) and g >= self.start and self.i <= (g - self.start + 1) * len(self.items) // max(1, self.end - self.start)
    def quota(self, g): return 99 if g >= self.start else 0
class Multi:
    def __init__(self, *l): self.l = list(l)
    def cur(self, g):
        for x in self.l:
            if x.i < len(x.items): return x
        return self.l[-1]
    def has(self, g): return self.cur(g).has(g)
    def peek(self): return self.cur(0).peek()
    def pop(self): return self.cur(0).pop()
    def quota(self, g): return self.cur(g).quota(g)
    def used_quota(self): self.cur(0).used_quota()
SP_END = int(os.environ.get("SP_END", "146"))
if XY:
    half = sp.index(spst[7]) + 1
    vs = Multi(VStream(early, 2, 40), Paced(sp[:half], int(os.environ.get("X_START", "67")), int(os.environ.get("X_END", "75"))), Paced(sp[half:], 130, SP_END))
else:
    vs = Multi(VStream(early, 2, 40), Paced(sp, 130, SP_END))
class ChkEarly:
    def __call__(self):
        assert vs.l[0].i == len(vs.l[0].items); return []
extra.setdefault(59, []).append((0, ChkEarly(), 0))
run_stream(46, s2_dma, dtok2, s2_acc, s2_B, extra, vs, pos0=P2, ring=v_ring2)
stamp(); diag()
e(nop(6))
for qb in range(4):
    for u in range(4):
        if len(em.lgq) >= 12: em.wait(lg=em.lgq[-12])
        e(dswrite("ds_write_b128", vfw, a_F[((u * 4 + qb) * 4, 4)], qb * 16384 + u * 1024))
if G_CHK >= 184: ChkS()()
em.wait(lg0=True)
e(raw("s_barrier"))
def frr(ws_, u): return sreg(ws_, u, 0)
for ws_ in range(4):
    for u in range(4):
        if len(em.lgq) >= 14: em.wait(lg=em.lgq[-14])
        e(dsread("ds_read_b128", frr(ws_, u), v_wl, ws_ * 4096 + u * 1024))
em.wait(lg0=True)
v_fr = V(96, 16); vE = V(64, 16); vs_ = V(80, 16)
for u in range(4):
    for k in range(2):
        e(valu("v_pk_add_f32", frr(0, u)[(2 * k, 2)], frr(0, u)[(2 * k, 2)], frr(1, u)[(2 * k, 2)]))
        e(valu("v_pk_add_f32", frr(2, u)[(2 * k, 2)], frr(2, u)[(2 * k, 2)], frr(3, u)[(2 * k, 2)]))
for u in range(4):
    for k in range(2): e(valu("v_pk_add_f32", v_fr[(4 * u + 2 * k, 2)], frr(0, u)[(2 * k, 2)], frr(2, u)[(2 * k, 2)]))
for k in range(16): e(valu("v_mul_f32", vE[k], hx(f2u(-math.log2(math.e))), v_fr[k]))
for k in range(16): e(valu("v_exp_f32", vE[k], vE[k]))
for k in range(16): e(valu("v_add_f32", vE[k], "1.0", vE[k]))
for k in range(16): e(valu("v_rcp_f32", vE[k], vE[k]))
for k in range(16): e(valu("v_mul_f32", v_fr[k], v_fr[k], vE[k]))
for k in range(8):
    e(valu("v_lshlrev_b32", vE[2 * k], 16, vxf[k])); e(valu("v_and_b32", vE[2 * k + 1], "0xffff0000", vxf[k]))
for gp in range(8):
    em.wait(vm=sl[2 * gp + 1])
    for k in range(8):
        src = spl(gp, k >> 2)[k & 3]
        if gp == 0:
            e(valu("v_lshlrev_b32", vs_[2 * k], 16, src)); e(valu("v_and_b32", vs_[2 * k + 1], "0xffff0000", src))
        else:
            e(valu("v_lshlrev_b32", V(112 + 2 * (k & 3)), 16, src)); e(valu("v_and_b32", V(113 + 2 * (k & 3)), "0xffff0000", src))
            e(valu("v_pk_add_f32", vs_[(2 * k, 2)], vs_[(2 * k, 2)], V(112 + 2 * (k & 3), 2)))
if DUMP == "fin": dump_regs([vs_[i] for i in range(16)] + [v_fr[i] for i in range(16)])
for k in range(8): e(valu("v_pk_fma_f32", vE[(2 * k, 2)], vs_[(2 * k, 2)], v_fr[(2 * k, 2)], vE[(2 * k, 2)]))
for k in range(8): e(valu("v_cvt_pk_bf16_f32", vxf[k], vE[2 * k], vE[2 * k + 1]))
for u in range(4): e(bstore(vxf[(2 * u, 2)], vxa, S_OUT, 0, off=32 * u))
stamp(); diag_out()
em.label("L_end")
e(raw("s_endpgm"))
main_end = len(em.out)

em.lgq, em.vmq, em.pend = [], [], {}
em.label("L_fallback")
e(raw("s_waitcnt vmcnt(0) lgkmcnt(0)")); em._retire(em.vmq, 0); em._retire(em.lgq, 0)
e(salu("s_mov_b32", s_retry, 1, scc_w=False))
e(salu("s_mov_b32", s_kK, 0, scc_w=False))
fm = [V(40 + i) for i in range(4)]
for i in range(4): e(valu("v_mov_b32", fm[i], "0xff800000"))
em.label("L_fb_loop")
e(raw("s_barrier"))
e(salu("s_add_u32", "m0", s_m0b, 4 * 16384)); e(nop(0))
for j in range(4): e(dma(v_kd[j], S_K, s_kK, j * 1024))
em.wait(vm0=True)
e(raw("s_barrier"))
for kb in range(4):
    rr = [e(dsread("ds_read_b128", fr(ds), v_ka[ds], kb * 4096)) for ds in range(4)]
    em.wait(lg0=True)
    for ds in range(4):
        for qb in range(4):
            d = v_S[0][(qb * 4, 4)]
            e(mfma(d, fr(ds), Qf(qb, ds), 0 if ds == 0 else d))
    e(nop(7))
    for qb in range(4):
        e(valu("v_max3_f32", fm[qb], fm[qb], v_S[0][qb * 4], v_S[0][qb * 4 + 1])); e(valu("v_max3_f32", fm[qb], fm[qb], v_S[0][qb * 4 + 2], v_S[0][qb * 4 + 3]))
    e(nop(2))
e(salu("s_add_u32", s_kK, s_kK, 16384)); e(scmp("s_cmp_lt_u32", s_kK, 524288)); e(raw("s_cbranch_scc1 L_fb_loop", rd=["scc"]))
red4("v_max_f32", fm, [V(44 + i) for i in range(4)])
for qb in range(4):
    for k in range(4): e(valu("v_sub_f32", v_negm[qb * 4 + k], 0, fm[qb]))
e(raw("s_barrier"))
for m in (64, 65, 66):
    sa, dm = s1_dma(m); e(sa)
    for d in dm: e(d)
e(raw("s_branch L_att_start"))
em.label("L_code_end")
e(raw("s_endpgm"))

probs = check_hazards(em.out, "main") + loop_probs
for p in probs: print("; HAZARD", p, file=sys.stderr)
assert not probs

hdr = open(os.path.join(os.path.dirname(os.path.abspath(__file__)), "header.txt")).read()
print(hdr.rstrip())
print("; @launch grid=(256,1,1) block=(256,1,1) lds=163840")
print('.amdgcn_target "amdgcn-amd-amdhsa--gfx950"\n.text\n.globl %s\n.p2align 8\n.type %s,@function\n%s:' % (KN, KN, KN))
print(em.text())
print('.section .rodata,"a"\n.p2align 6\n.amdhsa_kernel %s' % KN)
print("  .amdhsa_next_free_vgpr 512\n  .amdhsa_next_free_sgpr 102\n  .amdhsa_accum_offset 256\n  .amdhsa_group_segment_fixed_size 0\n  .amdhsa_kernarg_size 96\n  .amdhsa_user_sgpr_count 2\n  .amdhsa_user_sgpr_kernarg_segment_ptr 1\n  .amdhsa_system_sgpr_workgroup_id_x 1\n.end_amdhsa_kernel")
```

```python
import sys, os, math, struct
from asmgen import *

KN = "recurrent_scan__gqa_block_cached__geglu_ffn__prompt_kernel"
DUMP = os.environ.get("DUMP", "")
STAMP = int(os.environ.get("STAMP", "0"))
GEL_END = int(os.environ.get("GEL_END", "228")); GEL_EXTRA = int(os.environ.get("GEL_EXTRA", "360"))

def f2u(x): return struct.unpack("<I", struct.pack("<f", x))[0]
def hx(x): return "0x%x" % (x & 0xffffffff)

S_X, S_K, S_V, S_WQ, S_WO, S_WG, S_WU, S_WD, S_OUT, S_DBG, S_H, S_SP = [S(4 + 4 * i, 4) for i in range(12)]
s_g, s_qb, s_w = S(52), S(53), S(54)
s_t0, s_t1, s_t2, s_t3 = S(55), S(56), S(57), S(58)
s_m0b = S(59)
s_off = S(60)
s_cnt = S(61)
s_kK, s_kV = S(62), S(63)
s_retry = S(64)
s_h0, s_h1 = S(65), S(66)
s_hl = S(67); s_hb = S(78); s_myfl = S(79)
s_ka = S(68, 16); s_kb = S(84, 8)
s_pair = S(92, 2); s_pair2 = S(94, 2)
S_DMP = S(96, 4)
s_cq, s_cg = S(76), S(77)
S_HC = S(80, 4)
S_SPC = S(84, 4)
S_XC = S(88, 4)
s_st = S(68, 4)

v_tid, v_lane, v_lin, v_t = V(0), V(1), V(2), V(3)
v_tr = [V(4, 4), V(8, 4)]
v_dA, v_dB = V(12, 4), V(16, 4)
v_ka = V(20, 4); v_va = V(24, 8); v_kd = V(32, 4); v_vd = V(36, 2)
v_wl = V(38)
v_c = V(39)
v_l0, v_l1 = V(40, 4), V(44, 4)
v_lsave = V(16, 4)
v_negm = V(48, 16)
v_S = [V(64, 32), V(96, 32)]
v_acc = V(128, 128)
a_ring = A(128, 32)
a_B = A(160, 32)
a_Q = A(0, 64)
a_F = A(0, 64)
a_x = A(248, 8)

RING = 65536
MARK = 0x7fc17fc1
WS_SP = 8 << 20
WS_DUMP = 32 << 20
WS_FL = (7 << 20) + (512 << 10)
S_FL = S(4, 4)

em = Em()
e = em.e

def srd(dst, lo, hi, size, off_s=None):
    if off_s is None:
        e(salu("s_mov_b32", dst[0], lo, scc_w=False)); e(salu("s_mov_b32", dst[1], hi, scc_w=False))
    else:
        e(salu("s_add_u32", dst[0], lo, off_s)); e(salu("s_addc_u32", dst[1], hi, 0, scc_r=True))
    e(salu("s_mov_b32", dst[2], hx(size), scc_w=False)); e(salu("s_mov_b32", dst[3], "0x20000", scc_w=False))

DIAG = int(os.environ.get("DIAG", "0"))
HC_OFF = 128
diag_regs = [S(100, 2), S(70, 2), S(72, 2), S(74, 2), S(96, 2), S(98, 2), S(68, 2)] if DIAG == 1 else [S(100, 2), S(96, 2), S(98, 2), S(94, 2), S(70, 2), S(72, 2), S(74, 2), S(68, 2)]
diag_n = [0]
def diag(which=1):
    if not DIAG or (which != DIAG and which != 0): return
    k = diag_n[0]; diag_n[0] += 1
    e(raw("s_memrealtime %s" % diag_regs[k], "other", wr=[diag_regs[k]]))
    if k > 0: e(raw("s_waitcnt lgkmcnt(0)", "wait")); em._retire(em.lgq, 0)
def diag_out():
    if not DIAG: return
    diag(0)
    e(scmp("s_cmp_lg_u32", s_w, 0)); e(raw("s_cbranch_scc1 L_end", rd=["scc"]))
    e(raw("s_mov_b64 exec, 1", "salu", wr=["exec"]))
    e(salu("s_not_b32", s_t0, diag_regs[0][0]))
    for k in range(diag_n[0]):
        e(valu("v_mov_b32", V(4 + k), s_t0 if k == 0 else diag_regs[k][0]))
        e(raw("buffer_atomic_umax %s, off, %s, 0 offset:%d sc1" % (V(4 + k), S_DBG, 4 * k)))
    e(valu("v_mov_b32", V(12), diag_regs[0][0]))
    e(raw("buffer_atomic_umax %s, off, %s, 0 offset:%d sc1" % (V(12), S_DBG, 4 * 9)))
stamp_n = [0]
def stamp():
    if not STAMP: return
    k = stamp_n[0]; stamp_n[0] += 1
    e(raw("s_memtime %s" % S(68, 2), "other", wr=[S(68, 2)]))
    e(raw("s_memrealtime %s" % S(70, 2), "other", wr=[S(70, 2)]))
    e(raw("s_waitcnt lgkmcnt(0)", "wait")); em._retire(em.lgq, 0)
    for i in range(4): e(valu("v_writelane_b32", v_c, S(68 + i), i, rmw=True))
    e(salu("s_lshl_b32", S(72), S(2), 2)); e(salu("s_add_u32", S(72), S(72), s_w)); e(salu("s_lshl_b32", S(72), S(72), 9))
    e(salu("s_mov_b64", S(74, 2), "exec", scc_w=False)); e(raw("s_mov_b64 exec, 15", "salu", wr=["exec"]))
    e(valu("v_lshlrev_b32", v_t, 2, v_lane))
    e(bstore(v_c, v_t, S_DMP, S(72), off=k * 16))
    e(raw("s_mov_b64 exec, %s" % S(74, 2), "salu", wr=["exec"]))
    e(valu("v_lshlrev_b32", v_t, 7, v_lane))

def dump_regs(regs, finish=True):
    em.wait(lg0=True, vm0=True)
    e(nop(7)); e(nop(7))
    n = len(regs)
    e(salu("s_lshl_b32", s_t0, S(2), 2)); e(salu("s_add_u32", s_t0, s_t0, s_w)); e(salu("s_mul_i32", s_t0, s_t0, n * 256, scc_w=False))
    e(valu("v_lshlrev_b32", v_t, 2, v_lane))
    for k, r in enumerate(regs):
        e(bstore(r, v_t, S_DMP, s_t0, off=0))
        e(salu("s_add_u32", s_t0, s_t0, 256))
        if k % 32 == 31: em.wait(vm0=True)
    em.wait(vm0=True)
    if finish: e(raw("s_endpgm"))

def red4(op, x, tmp):
    for sw in ("v_permlane32_swap_b32", "v_permlane16_swap_b32"):
        for a, t in zip(x, tmp): e(valu("v_mov_b32", t, a))
        if len(x) < 3: e(nop(1))
        for a, t in zip(x, tmp): e(valu(sw, a, t))
        for a, t in zip(x, tmp): e(valu(op, a, a, t))

e(scmp("s_cmp_ge_u32", S(2), 256)); e(raw("s_cbranch_scc1 L_end", rd=["scc"]))
diag(0)
i0 = e(I("s_load_dwordx16 %s, s[0:1], 0" % s_ka, "smem", wr=s_ka.regs()))
i1 = e(I("s_load_dwordx8 %s, s[0:1], 64" % s_kb, "smem", wr=s_kb.regs()))
e(salu("s_and_b32", s_g, S(2), 7)); e(salu("s_lshr_b32", s_qb, S(2), 3))
e(valu("v_and_b32", v_lane, 63, v_tid))
e(valu("v_lshrrev_b32", v_t, 6, v_tid))
e(valu("v_lshlrev_b32", v_lin, 4, v_lane))
e(valu("v_readfirstlane_b32", s_w, v_t))
vq, vG, vr, vc_, vx, vy, vz = [V(40 + i) for i in range(7)]
e(valu("v_and_b32", vq, 15, v_lane)); e(valu("v_lshrrev_b32", vG, 4, v_lane))
vxo = V(47)
e(valu("v_lshl_add_u32", vxo, v_t, 4, vq)); e(valu("v_lshlrev_b32", vxo, 10, vxo)); e(valu("v_lshl_add_u32", vxo, vG, 4, vxo))
e(salu("s_lshl_b32", s_t0, s_qb, 16))
TLBW = int(os.environ.get("TLBW", "1"))
o_g, o_h, o_sp, o_cq, o_hc, o_spc = S(4), S(5), S(6), S(7), S(8), S(9)
if TLBW:
    e(salu("s_lshl_b32", o_g, s_g, 19))
    e(salu("s_mul_i32", o_h, s_qb, 229376, scc_w=False))
    e(salu("s_lshl_b32", o_sp, s_qb, 19)); e(salu("s_add_u32", o_sp, o_sp, hx(WS_SP)))
    e(salu("s_lshr_b32", s_t2, s_qb, 3)); e(salu("s_lshl_b32", s_t3, s_g, 2)); e(salu("s_add_u32", s_t2, s_t2, s_t3))
    e(salu("s_lshl_b32", o_cq, s_t2, 16)); e(salu("s_mul_i32", o_hc, s_t2, 229376, scc_w=False))
    e(salu("s_lshl_b32", o_spc, s_t2, 19)); e(salu("s_add_u32", o_spc, o_spc, hx(WS_SP)))
    e(salu("s_mov_b32", S(10), hx(2 << 20), scc_w=False)); e(salu("s_mov_b32", S(11), hx((4 << 20) - 64), scc_w=False)); e(salu("s_mov_b32", S(12), hx(1835008 - 64), scc_w=False))
em.wait(lg0=True)
if TLBW:
    tl = [(s_ka[(0, 2)], s_t0), (s_ka[(12, 2)], 0), (s_ka[(14, 2)], 0), (s_ka[(12, 2)], S(12)), (s_ka[(14, 2)], S(12)), (s_ka[(6, 2)], 0), (s_ka[(6, 2)], S(10)), (s_ka[(6, 2)], S(11)),
          (s_kb[(6, 2)], o_h), (s_ka[(0, 2)], o_cq), (s_ka[(2, 2)], o_g), (s_ka[(4, 2)], o_g), (s_ka[(8, 2)], o_g), (s_kb[(0, 2)], 0), (s_kb[(0, 2)], S(12)),
          (s_kb[(2, 2)], o_cq), (s_kb[(4, 2)], 0), (s_kb[(6, 2)], o_sp), (s_kb[(6, 2)], o_hc), (s_kb[(6, 2)], o_spc)]
    for b_, o_ in tl:
        e(raw("s_load_dword s3, %s, %s" % (b_, "0x0" if o_ == 0 else o_)))
diag(2)
srd(S_X, s_ka[0], s_ka[1], 65536, s_t0)
v_xp = V(64, 64)
xl = []
for ks in range(16):
    xl.append(e(bload(v_xp[(4 * ks, 4)], vxo, S_X, 0, off=64 * ks)))
diag(2)
e(salu("s_lshr_b32", s_t2, s_qb, 3)); e(salu("s_lshl_b32", s_t3, s_g, 2)); e(salu("s_add_u32", s_t2, s_t2, s_t3))
e(salu("s_lshl_b32", s_t0, s_t2, 16))
srd(S_OUT, s_kb[2], s_kb[3], 65536, s_t0)
e(salu("s_lshl_b32", s_t1, s_g, 19))
srd(S_K, s_ka[2], s_ka[3], 524288, s_t1)
srd(S_V, s_ka[4], s_ka[5], 524288, s_t1)
srd(S_WO, s_ka[8], s_ka[9], 524288, s_t1)
srd(S_WQ, s_ka[6], s_ka[7], 4 << 20)
srd(S_WG, s_ka[12], s_ka[13], 1835008)
srd(S_WU, s_ka[14], s_ka[15], 1835008)
srd(S_WD, s_kb[0], s_kb[1], 1835008)
srd(S_DBG, s_kb[4], s_kb[5], 256)
e(salu("s_mul_i32", s_t1, s_qb, 229376, scc_w=False))
srd(S_H, s_kb[6], s_kb[7], 229376, s_t1)
e(salu("s_lshl_b32", s_t1, s_qb, 19)); e(salu("s_add_u32", s_t1, s_t1, hx(WS_SP)))
srd(S_SP, s_kb[6], s_kb[7], 524288, s_t1)
if DUMP or STAMP:
    e(salu("s_mov_b32", s_t1, hx(WS_DUMP), scc_w=False))
    srd(S_DMP, s_kb[6], s_kb[7], 200 << 20, s_t1)
e(salu("s_mov_b64", s_pair, S(90, 2), scc_w=False))
e(salu("s_lshl_b32", s_t0, s_t2, 16))
srd(S_XC, s_ka[0], s_ka[1], 65536, s_t0)
e(salu("s_mul_i32", s_t1, s_t2, 229376, scc_w=False))
srd(S_HC, s_pair[0], s_pair[1], 229376, s_t1)
e(salu("s_lshl_b32", s_t1, s_t2, 19)); e(salu("s_add_u32", s_t1, s_t1, hx(WS_SP)))
srd(S_SPC, s_pair[0], s_pair[1], 524288, s_t1)
e(salu("s_mov_b32", s_cq, s_t2, scc_w=False)); e(salu("s_and_b32", s_cg, s_qb, 7))
e(salu("s_mov_b32", s_t1, hx(WS_FL), scc_w=False))
srd(S_FL, s_pair[0], s_pair[1], 4096, s_t1)
e(salu("s_lshl_b32", s_myfl, s_qb, 7)); e(salu("s_lshl_b32", s_t1, s_g, 2)); e(salu("s_add_u32", s_myfl, s_myfl, s_t1))
e(salu("s_lshl_b32", s_m0b, s_w, 12)); e(salu("s_add_u32", s_m0b, s_m0b, RING))
e(salu("s_and_b32", s_t1, s_g, 1)); e(salu("s_lshl_b32", s_t1, s_t1, 2)); e(salu("s_add_u32", s_t1, s_t1, s_w))
e(scmp("s_cmp_eq_u32", s_w, 3)); e(salu("s_cselect_b32", s_t1, 3, s_t1, scc_w=False, scc_r=True))
e(salu("s_lshr_b32", s_t2, s_g, 1)); e(salu("s_mul_i32", s_t2, s_t2, 7, scc_w=False)); e(salu("s_add_u32", s_t1, s_t1, s_t2))
e(salu("s_lshl_b32", s_h0, s_t1, 13)); e(salu("s_add_u32", s_h1, s_h0, 4096))
e(salu("s_lshl_b32", s_t1, s_t1, 7))
e(salu("s_lshl_b32", s_t2, s_g, 2)); e(salu("s_add_u32", s_t2, s_t2, s_w)); e(salu("s_lshl_b32", s_t2, s_t2, 8))

def dma_voffs(dst, stride, colbase_s, perm):
    for j in range(4):
        e(valu("v_bfe_u32", vx, v_lane, 1, 2)); e(valu("v_bfe_u32", vy, v_lane, 4, 1))
        e(valu("v_xor_b32", vx, vx, vy))
        if j & 1: e(valu("v_xor_b32", vx, 2, vx))
        e(valu("v_and_b32", vy, 1, v_lane)); e(valu("v_lshlrev_b32", vy, 4, vy)); e(valu("v_lshl_add_u32", vx, vx, 5, vy))
        if not perm:
            e(valu("v_lshrrev_b32", vy, 3, v_lane)); rowadd = 8 * j
        else:
            e(valu("v_bfe_u32", vy, v_lane, 3, 2)); e(valu("v_bfe_u32", vz, v_lane, 5, 1)); e(valu("v_lshl_add_u32", vy, vz, 4, vy)); rowadd = 4 * j
        e(valu("v_mul_u32_u24", vy, stride, vy))
        e(valu("v_add3_u32", vx, vx, vy, colbase_s))
        e(valu("v_add_u32", dst[j], rowadd * stride - j * 1024, vx))

dma_voffs(v_dA, 3584, s_t1, False)
dma_voffs(v_dB, 8192, s_t2, False)

def m0set(p): return salu("s_add_u32", "m0", s_m0b, p * 16384)
def s1_dma(m):
    p = m % 6
    if m < 32:
        s, h = m >> 1, m & 1
        return [m0set(p), salu("s_mov_b32", s_off, s * 32 * 3584, scc_w=False)], [dma(v_dA[j], S_WU if h else S_WG, s_off, j * 1024) for j in range(4)]
    if m < 64:
        s, h = (m - 32) >> 1, m & 1
        return [m0set(p), salu("s_mov_b32", s_off, s * 32 * 8192 + 128 * h, scc_w=False)], [dma(v_dB[j], S_WQ, s_off, j * 1024) for j in range(4)]
    if m == 64:
        return [m0set(p), salu("s_mov_b32", s_off, 0, scc_w=False)], [dma(v_kd[j], S_K, s_off, j * 1024) for j in range(4)]
    if m == 65:
        return [m0set(p), salu("s_mov_b32", s_off, 8192, scc_w=False)], [dma(v_kd[j], S_K, s_off, j * 1024) for j in range(4)]
    if m == 66:
        return [m0set(p), salu("s_mov_b32", s_off, 0, scc_w=False)], [dma(v_vd[j & 1], S_V, s_off, j * 1024) for j in range(4)]
    return None
dtok = {}
for m in range(6):
    sa, dm = s1_dma(m)
    e(sa);
    for d in dm: e(d)
    dtok[m] = dm[3]

def xaddr(dst, tmp):
    e(valu("v_and_b32", dst, 15, v_lane)); e(salu("s_lshl_b32", s_t0, s_w, 4)); e(valu("v_add_u32", dst, s_t0, dst)); e(valu("v_lshlrev_b32", dst, 10, dst))
    e(valu("v_lshrrev_b32", tmp, 4, v_lane)); e(valu("v_lshl_add_u32", dst, tmp, 3, dst)); e(salu("s_lshl_b32", s_t0, s_cg, 7)); e(valu("v_add_u32", dst, s_t0, dst))
e(valu("v_mov_b32", vz, 0))
e(raw("s_mov_b64 exec, 1", "salu", wr=["exec"]))
e(bstore(vz, None, S_FL, s_myfl, mod="sc1"))
e(raw("s_mov_b64 exec, -1", "salu", wr=["exec"]))
xaddr(vx, vy)
for u in range(4): e(bload(a_x[(2 * u, 2)], vx, S_XC, 0, off=32 * u, n=2))
diag(2)
vw = V(48)
e(salu("s_mul_i32", s_t1, s_g, 448, scc_w=False)); e(salu("s_and_b32", s_t1, s_t1, hx(~127)))
e(salu("s_mul_i32", s_t2, s_qb, 16 * 3584, scc_w=False)); e(salu("s_add_u32", s_t1, s_t1, s_t2))
e(valu("v_lshrrev_b32", vx, 2, v_lane)); e(valu("v_mul_u32_u24", vx, 3584, vx)); e(valu("v_and_b32", vy, 3, v_lane)); e(valu("v_lshl_add_u32", vx, vy, 7, vx))
e(scmp("s_cmp_ge_u32", s_w, 2)); e(raw("s_cbranch_scc1 L_warm_q", rd=["scc"]))
e(scmp("s_cmp_eq_u32", s_w, 1)); e(raw("s_cbranch_scc1 L_warm_u", rd=["scc"]))
w0 = raw("buffer_load_dword %s, %s, %s, %s offen" % (vw, vx, S_WG, s_t1)); e(w0)
e(raw("s_branch L_warm_done"))
em.label("L_warm_u")
e(raw("buffer_load_dword %s, %s, %s, %s offen" % (vw, vx, S_WU, s_t1)))
e(raw("s_branch L_warm_done"))
em.label("L_warm_q")
e(salu("s_lshl_b32", s_t1, s_qb, 4)); e(salu("s_lshl_b32", s_t2, s_w, 3)); e(salu("s_add_u32", s_t1, s_t1, s_t2)); e(salu("s_sub_u32", s_t1, s_t1, 16))
e(salu("s_lshl_b32", s_t1, s_t1, 13)); e(salu("s_lshl_b32", s_t2, s_g, 10)); e(salu("s_add_u32", s_t1, s_t1, s_t2))
e(valu("v_lshrrev_b32", vx, 3, v_lane)); e(valu("v_lshlrev_b32", vx, 13, vx)); e(valu("v_and_b32", vy, 7, v_lane)); e(valu("v_lshl_add_u32", vx, vy, 7, vx))
e(raw("buffer_load_dword %s, %s, %s, %s offen" % (vw, vx, S_WQ, s_t1)))
em.label("L_warm_done")
wtok = I("; warm", "vmem", wr=vw.regs()); em.vmq.append(wtok); em.pend[str(vw)] = wtok
e(raw("s_getpc_b64 %s" % s_pair, "salu", wr=[s_pair]))
em.label("L_pc0")
e(valu("v_lshlrev_b32", vy, 7, v_tid))
for k in range(2):
    e(valu("v_min_u32", vx, "L_code_end-L_pc0-4", vy))
    e(I("global_load_dword %s, %s, %s" % (V(49 + k), vx, s_pair), "vmem", rd=vx.regs() + s_pair.regs(), wr=V(49 + k).regs()))
    if k == 0: e(valu("v_add_u32", vy, 0x8000, vy))

e(valu("v_bfe_u32", vr, v_lane, 2, 2)); e(valu("v_and_b32", vc_, 3, v_lane))
e(valu("v_lshlrev_b32", vx, 10, vG)); e(valu("v_lshl_add_u32", vx, vr, 7, vx)); e(valu("v_lshl_add_u32", vx, vc_, 3, vx)); e(valu("v_add_u32", vx, s_m0b, vx))
e(valu("v_lshrrev_b32", vy, 1, vr)); e(valu("v_and_b32", vz, 1, vG)); e(valu("v_lshl_add_u32", vy, vz, 1, vy))
for u in range(4):
    e(valu("v_xor_b32", vz, u, vy)); e(valu("v_lshl_add_u32", v_tr[0][u], vz, 5, vx)); e(valu("v_add_u32", v_tr[1][u], 3 * 16384, v_tr[0][u]))
e(valu("v_xor_b32", vy, vG, vq))
for ds in range(4):
    e(valu("v_xor_b32", vz, 4 * ds, vy)); e(valu("v_lshlrev_b32", vz, 4, vz)); e(valu("v_lshl_add_u32", vz, vq, 8, vz)); e(valu("v_add_u32", v_ka[ds], RING + 4 * 16384, vz))
e(valu("v_lshl_add_u32", vx, vG, 2, vr)); e(valu("v_and_b32", vy, 7, vx)); e(valu("v_lshlrev_b32", vx, 8, vx)); e(valu("v_lshl_add_u32", vx, vc_, 3, vx)); e(valu("v_add_u32", vx, RING, vx))
for db in range(8):
    e(valu("v_xor_b32", vz, db, vy)); e(valu("v_lshl_add_u32", v_va[db], vz, 5, vx))
e(salu("s_lshl_b32", s_t1, s_w, 12))
e(valu("v_lshlrev_b32", vx, 8, vG)); e(valu("v_add_u32", vx, s_t1, vx))
for j in range(4):
    e(valu("v_add_u32", vy, 4 * j, vG)); e(valu("v_xor_b32", vy, vy, vq)); e(valu("v_lshl_add_u32", v_kd[j], vy, 4, vx))
e(valu("v_and_b32", vz, 1, v_lane)); e(valu("v_lshl_add_u32", vx, vz, 4, vx))
for j in range(2):
    e(valu("v_add_u32", vy, 4 * j, vG)); e(valu("v_lshrrev_b32", vz, 1, vq)); e(valu("v_xor_b32", vy, vy, vz)); e(valu("v_lshl_add_u32", v_vd[j], vy, 5, vx))
e(salu("s_lshl_b32", s_t1, s_w, 14)); e(valu("v_add_u32", v_wl, s_t1, v_lin))
e(salu("s_mov_b32", s_retry, 0, scc_w=False))
e(raw("s_waitcnt lgkmcnt(0)", "wait"))
stamp()

v_f = V(128, 128)
acc = [V(52, 2), V(54, 2), V(56, 2), V(58, 2)]
diag(2)
for ks in range(16):
    em.wait(vm=xl[ks])
    if ks in (0, 15): diag(2)
    for k in range(4):
        p = 4 * ks + k
        e(valu("v_lshlrev_b32", v_f[2 * p], 16, v_xp[p])); e(valu("v_and_b32", v_f[2 * p + 1], "0xffff0000", v_xp[p]))
    for k in range(4):
        p = 4 * ks + k
        if ks == 0: e(valu("v_mov_b64", acc[k], v_f[(2 * p, 2)]))
        else: e(valu("v_pk_add_f32", acc[k], acc[k], v_f[(2 * p, 2)]))
e(valu("v_pk_add_f32", acc[0], acc[0], acc[1])); e(valu("v_pk_add_f32", acc[2], acc[2], acc[3])); e(valu("v_pk_add_f32", acc[0], acc[0], acc[2]))
vsum, vtmp, vmb, vdm = V(60), V(61), V(62), V(63)
e(valu("v_add_f32", vsum, acc[0][0], acc[0][1]))
red4("v_add_f32", [vsum], [vtmp])
e(valu("v_mul_f32", vsum, hx(f2u(1.0 / 512)), vsum))
e(valu("v_cvt_pk_bf16_f32", vmb, vsum, vsum)); e(valu("v_lshlrev_b32", vmb, 16, vmb))
e(valu("v_sub_f32", vdm, vsum, vmb))
vneg = V(52, 2)
e(valu("v_sub_f32", vneg[0], 0, vmb))
acc2 = [V(54, 2), V(56, 2), V(58, 2)]
for p in range(64):
    e(valu("v_pk_add_f32", v_f[(2 * p, 2)], v_f[(2 * p, 2)], vneg, mod="op_sel_hi:[1,0]"))
for p in range(64):
    a_ = acc2[p % 3]
    if p < 3: e(valu("v_pk_mul_f32", a_, v_f[(2 * p, 2)], v_f[(2 * p, 2)]))
    else: e(valu("v_pk_fma_f32", a_, v_f[(2 * p, 2)], v_f[(2 * p, 2)], a_))
e(valu("v_pk_add_f32", acc2[0], acc2[0], acc2[1])); e(valu("v_pk_add_f32", acc2[0], acc2[0], acc2[2]))
e(valu("v_add_f32", vsum, acc2[0][0], acc2[0][1]))
red4("v_add_f32", [vsum], [vtmp])
e(valu("v_mul_f32", vsum, hx(f2u(1.0 / 512)), vsum))
e(valu("v_fma_f32", vsum, "-" + str(vdm), vdm, vsum, extra_rd=vdm.regs()))
e(valu("v_max_f32", vsum, 0, vsum))
e(valu("v_cvt_pk_bf16_f32", vsum, vsum, vsum)); e(valu("v_lshlrev_b32", vsum, 16, vsum))
e(valu("v_add_f32", vsum, hx(f2u(1e-5)), vsum))
e(valu("v_cvt_pk_bf16_f32", vsum, vsum, vsum)); e(valu("v_lshlrev_b32", vsum, 16, vsum))
e(valu("v_sqrt_f32", vsum, vsum)); e(nop(0))
e(valu("v_cvt_pk_bf16_f32", vsum, vsum, vsum)); e(valu("v_lshlrev_b32", vsum, 16, vsum))
e(valu("v_rcp_f32", vneg[0], vsum)); e(nop(0))
for ks in range(16):
    for k in range(4):
        p = 4 * ks + k
        e(valu("v_pk_mul_f32", v_f[(2 * p, 2)], v_f[(2 * p, 2)], vneg, mod="op_sel_hi:[1,0]"))
    for k in range(4):
        p = 4 * ks + k
        e(valu("v_cvt_pk_bf16_f32", v_xp[p], v_f[2 * p], v_f[2 * p + 1]))
    e(dswrite("ds_write_b128", v_wl, v_xp[(4 * ks, 4)], ks * 1024))
if DUMP == "ln": dump_regs([v_xp[i] for i in range(64)])
em.wait(lg0=True)
e(raw("s_barrier"))
stamp(); diag()

def run_stream(NH, dmaf, dtok, accf, Bf, extra, vstream, LOOK=6, nq=4, pos0=0, ring=a_ring):
    NG = 4 * NH
    rtok = {}
    def reads(g):
        m, u = g >> 2, g & 3
        p = (m + pos0) % 6
        d = ring[((g % 8) * 4, 4)]
        r = [dsread("ds_read_b64_tr_b16", d[(2 * h2, 2)], v_tr[p // 3][u], (p % 3) * 16384 + h2 * 512) for h2 in range(2)]
        rtok[g] = r[1]
        return r
    em.wait(vm=dtok[0])
    for g in range(3): e(reads(g))
    for pre in extra.get(-1, []): e(pre[1])
    em.wait(lg0=True)
    vi = 0
    for g in range(NG):
        m, u = g >> 2, g & 3
        gaps = [[], [], [], []]; cap = [2, 2, 2, 2]
        if g + 3 < NG:
            if (g + 3) & 3 == 0: gaps[0].append(Wait(vm=dtok[(g + 3) >> 2]))
            r = reads(g + 3); gaps[0].append(r[0]); gaps[1].append(r[1]); cap[0] -= 1; cap[1] -= 1
        md, j = (g + 4 * LOOK - 4) >> 2, (g + 4 * LOOK - 4) & 3
        if md >= LOOK:
            if j == 0: cur = dmaf(md)
            if cur is not None:
                if j == 0: gaps[2] += cur[0]
                items = cur[1][j::4]
                for it in items: gaps[3].append(it); cap[3] -= 1
                if j == 3: dtok[md] = cur[1][3]
        for (gp, it, cost) in extra.get(g, []):
            gaps[gp].append(it); cap[gp] -= cost
        if g + 1 < NG: gaps[3].insert(0, Wait(lg=rtok[g + 1]))
        d = ring[((g % 8) * 4, 4)]
        for qb in range(nq):
            ac, first = accf(m, u, qb)
            e(mfma(ac, d, Bf(m, qb), 0 if first else ac))
            for it in gaps[qb]: e(it)
            c = cap[qb]
            quota = vstream.quota(g) if vstream else 0
            while vstream and vstream.has(g) and (c > 0 or quota > 0):
                it = vstream.peek()
                cost = 2 if it.kind == "trans" else 1
                if cost > c and quota <= 0: break
                if cost > c: quota -= 1; vstream.used_quota()
                e(vstream.pop()); c -= cost
    if vstream:
        while vstream.has(10 ** 9): e(vstream.pop())

class VStream:
    def __init__(self, items, start, end, extra_total=0):
        self.items = items; self.i = 0; self.start = start; self.end = end
        self.extra_total = extra_total; self.used = 0
    def has(self, g): return self.i < len(self.items) and g >= self.start
    def peek(self): return self.items[self.i]
    def pop(self): self.i += 1; return self.items[self.i - 1]
    def quota(self, g):
        if g < self.start: return 0
        allowed = (g - self.start + 1) * self.extra_total // max(1, self.end - self.start)
        return 1 if allowed > self.used else 0
    def used_quota(self): self.used += 1

def s1_acc(m, u, qb):
    h = m & 1
    idx = ((h * 4 + u) * 4 + qb) * 4
    if m < 32: return A(idx, 4), m < 2
    return v_acc[(idx, 4)], m < 34
def s1_B(m, qb): return a_B[(((m >> 1) & 1) * 16 + qb * 4, 4)]
extra = {}
btok = {}
def bread(s, qb): return dsread("ds_read_b128", a_B[((s & 1) * 16 + qb * 4, 4)], v_lin, (qb * 16 + (s % 16)) * 1024)
extra[-1] = [(0, bread(0, qb), 1) for qb in range(4)]
for s in range(1, 32):
    for qb in range(4):
        extra.setdefault(8 * (s - 1) + 1 + qb, []).append((2, bread(s, qb), 1))
C0 = -2.0 * math.sqrt(2.0 / math.pi) * math.log2(math.e); C1 = C0 * 0.044715
vc0, vc1 = V(40), V(41)
gel = [valu("v_mov_b32", vc0, hx(f2u(C0))), valu("v_mov_b32", vc1, hx(f2u(C1)))]
hst = []
tb = 0
for i in range(2):
    for qb in range(4):
        pk = V(44 + 4 * (tb % 4), 4); tb += 1
        for b in range(2):
            u = 2 * i + b
            T = [V(64 + 16 * ((2 * tb + b) % 4) + k) for k in range(16)]
            G_, U_, X_ = T[0:4], T[4:8], T[8:12]
            ga = lambda r: A((u * 4 + qb) * 4 + r); ua = lambda r: A(((4 + u) * 4 + qb) * 4 + r)
            for r in range(4): gel.append(valu("v_accvgpr_read_b32", G_[r], ga(r)))
            for r in range(4): gel.append(valu("v_accvgpr_read_b32", U_[r], ua(r)))
            for r in range(4): gel.append(valu("v_mul_f32", X_[r], G_[r], G_[r]))
            for r in range(4): gel.append(valu("v_fma_f32", X_[r], X_[r], vc1, vc0))
            for r in range(4): gel.append(valu("v_mul_f32", X_[r], X_[r], G_[r]))
            for r in range(4): gel.append(valu("v_exp_f32", X_[r], X_[r]))
            for r in range(4): gel.append(valu("v_mul_f32", G_[r], G_[r], U_[r]))
            for r in range(4): gel.append(valu("v_add_f32", X_[r], "1.0", X_[r]))
            for r in range(4): gel.append(valu("v_rcp_f32", X_[r], X_[r]))
            gel.append(nop(0))
            for r in range(4): gel.append(valu("v_mul_f32", G_[r], G_[r], X_[r]))
            for k in range(2): gel.append(valu("v_cvt_pk_bf16_f32", pk[2 * b + k], G_[2 * k], G_[2 * k + 1]))
        st = bstore(pk, v_lin, S_H, s_h1 if i else s_h0, off=qb * 1024, mod="sc1")
        gel.append(st); hst.append(st)
class Stamp:
    def __call__(self): stamp(); return []
if STAMP: extra.setdefault(128, []).append((0, Stamp(), 0))
vs = VStream(gel, 131, GEL_END, extra_total=GEL_EXTRA)
run_stream(64, s1_dma, dtok, s1_acc, s1_B, extra, vs)
if DUMP == "qacc": dump_regs([v_acc[i] for i in range(128)])
stamp()

em.wait(lg0=True)
e(raw("s_barrier"))
def signal(off_s_expr_add, lab):
    e(scmp("s_cmp_lg_u32", s_w, 0)); e(raw("s_cbranch_scc1 %s" % lab, rd=["scc"]))
    e(salu("s_lshl_b32", s_t0, s_qb, 2))
    if off_s_expr_add: e(salu("s_add_u32", s_t0, s_t0, off_s_expr_add))
    e(valu("v_mov_b32", v_t, 1))
    e(raw("s_mov_b64 exec, 1", "salu", wr=["exec"]))
    e(raw("buffer_atomic_add %s, off, %s, %s sc1" % (v_t, S_DBG, s_t0)))
    e(raw("s_mov_b64 exec, -1", "salu", wr=["exec"]))
    em.label(lab)
QS = math.log2(math.e) / math.sqrt(128.0)
vqs = V(40, 2); vqw = V(42)
e(valu("v_mov_b32", vqs[0], hx(f2u(QS))))
e(valu("v_and_b32", v_t, 15, v_lane)); e(valu("v_bfe_u32", vqw, v_lane, 5, 1)); e(valu("v_lshl_add_u32", v_t, vqw, 4, v_t)); e(valu("v_lshlrev_b32", v_t, 4, v_t))
e(valu("v_bfe_u32", vqw, v_lane, 4, 1)); e(valu("v_lshl_add_u32", vqw, vqw, 3, v_t))
e(salu("s_lshl_b32", s_t1, s_w, 14)); e(valu("v_add_u32", vqw, s_t1, vqw))
for blk in range(8):
    for qb in range(4):
        a_ = v_acc[((blk * 4 + qb) * 4, 4)]
        t = V(64 + 2 * ((blk * 4 + qb) % 8), 2)
        for k in range(2): e(valu("v_pk_mul_f32", a_[(2 * k, 2)], a_[(2 * k, 2)], vqs, mod="op_sel_hi:[1,0]"))
        for k in range(2): e(valu("v_cvt_pk_bf16_f32", t[k], a_[2 * k], a_[2 * k + 1]))
        if len(em.lgq) >= 7: em.wait(lg=em.lgq[-7])
        e(dswrite("ds_write_b64", vqw, t, (qb * 4 + (blk >> 1)) * 1024 + (blk & 1) * 512))
em.wait(lg0=True)
for f in range(16):
    e(dsread("ds_read_b128", a_Q[(4 * f, 4)], v_wl, f * 1024))
    if f == 7: pass
vx, vy, vz = V(96), V(97), V(98)
e(salu("s_lshl_b32", s_t1, s_w, 8))
dma_voffs(v_dA, 1024, s_t1, True)
em.label("L_att_start")
for i in range(64): e(valu("v_mov_b64", v_acc[(2 * i, 2)], 0))
for i in range(4): e(valu("v_mov_b32", v_l0[i], 0)); e(valu("v_mov_b32", v_l1[i], 0))
em.wait(vm0=True, lg0=True)
e(raw("s_barrier"))
e(scmp("s_cmp_lg_u32", s_retry, 0)); e(raw("s_cbranch_scc1 L_sigH", rd=["scc"]))
signal(HC_OFF, "L_sigH")
if DUMP == "q": dump_regs([a_Q[i] for i in range(64)])
stamp()

def Qf(qb, ds): return a_Q[((qb * 4 + ds) * 4, 4)]
def Of(db, qb): return v_acc[((db * 4 + qb) * 4, 4)]
def fr(f): return a_ring[((f % 8) * 4, 4)]
def kslot(par): return 16384 if par == 0 else 0
def vslot(par): return 0 if par == 0 else 16384
def frag_reads(par, f):
    if f >= 32: par ^= 1; f -= 32
    d = fr(f)
    if f < 8 or 16 <= f < 24:
        kb = (f >> 2) if f < 8 else 2 + ((f - 16) >> 2)
        return [dsread("ds_read_b128", d, v_ka[f & 3], kslot(par) + kb * 4096)]
    ks2 = 0 if f < 16 else 1
    db = f & 7
    return [dsread("ds_read_b64_tr_b16", d[(2 * h, 2)], v_va[db], vslot(par) + ks2 * 8192 + h * 4096) for h in range(2)]
def read_sched(g):
    r = []
    if g + 3 < 24 or g >= 29: r.append(g + 3)
    if 19 <= g <= 26: r.append(g + 5)
    return r
def sm_val(g, k):
    if 7 <= g <= 22: b = 1; n = 2 * (g - 7) + k
    else: b = 0; n = 2 * ((g - 23) % 32) + k
    kb, qb, r = n >> 4, (n >> 2) & 3, n & 3
    return b, qb, kb, r
def sm_items(g):
    ex, ad = [], []
    for k in range(2):
        b, qb, kb, r = sm_val(g, k)
        x = v_S[b][qb * 8 + kb * 4 + r]
        l = (v_l1 if b else v_l0)[qb]
        ex.append(valu("v_exp_f32", x, x)); ad.append(valu("v_add_f32", l, l, x))
    b, qb, kb, r = sm_val((g - 1) % 32, 0)
    cv = valu("v_cvt_pk_bf16_f32", v_S[b][qb * 8 + kb * 2 + (r >> 1)], v_S[b][qb * 8 + kb * 4 + r], v_S[b][qb * 8 + kb * 4 + r + 1])
    return ex, ad, cv
def att_dma(par, g):
    if g >= 29: k = g - 29; sp = par
    elif g <= 4: k = g + 3; sp = par ^ 1
    else: return [], None
    sal = []
    if k == 0: sal = [salu("s_add_u32", "m0", s_m0b, 4 * 16384 + kslot(sp))]
    if k == 4: sal = [salu("s_add_u32", "m0", s_m0b, vslot(sp))]
    if k < 4: return sal, dma(v_kd[k], S_K, s_kK, k * 1024)
    return sal, dma(v_vd[k & 1], S_V, s_kV, (k - 4) * 1024)
SIDE_FIRST = 11
class Lbl:
    def __init__(self, n): self.n = n
    def __call__(self): em.label(self.n); return []
class LoopStamp:
    def __init__(self, k, par): self.k, self.par = k, par
    def __call__(self):
        k = self.k
        e(raw("s_memtime %s" % S(68 + 2 * k, 2), "other", wr=[S(68 + 2 * k, 2)]))
        if k == 2:
            e(raw("s_waitcnt lgkmcnt(0)", "wait")); em._retire(em.lgq, 0)
            for i in range(3): e(valu("v_writelane_b32", v_c, S(68 + 2 * i), i, rmw=True))
            e(salu("s_lshl_b32", S(74), S(2), 2)); e(salu("s_add_u32", S(74), S(74), s_w)); e(salu("s_lshl_b32", S(74), S(74), 4))
            e(salu("s_sub_u32", S(74), S(74), s_cnt)); e(salu("s_add_u32", S(74), S(74), 16)); e(salu("s_lshl_b32", S(74), S(74), 5))
            e(salu("s_add_u32", S(74), S(74), (1 << 20) + 16 * self.par))
            e(raw("s_mov_b64 exec, 7", "salu", wr=["exec"]))
            e(valu("v_lshlrev_b32", v_t, 2, v_lane))
            e(bstore(v_c, v_t, S_DMP, S(74), off=0))
            e(raw("s_mov_b64 exec, -1", "salu", wr=["exec"]))
            e(valu("v_lshlrev_b32", v_t, 7, v_lane))
        return []
s_pf = [S(16, 2), S(18, 2), S(24, 2), S(26, 2)]
s_pfH = S(28, 2)
s_fo = S(3)
v_tch, v_flag = V(3), V(0)
xtok = []; lastdma = [None]
ROT = int(os.environ.get('ROT', '10'))
ftok = {}
def att_group(par, g, do_mfma=True, do_mem=True, do_cvt=True, last=False):
    ex, ad, cv = sm_items(g)
    mem = []
    sal = []
    if do_mem:
        for f in read_sched(g):
            r = frag_reads(par, f); mem += r; ftok[f % 32] = r
        sal, d = att_dma(par, g)
        if d is not None: mem.append(d)
    if do_mem and par == 0 and g == 5:
        mem.append(I("global_load_dword %s, %s, %s" % (v_flag, v_tch, s_pf[0]), "vmem", rd=v_tch.regs() + s_pf[0].regs(), wr=[])); xtok.append(mem[-1])
    if do_mem and par == 0 and g == 6:
        mem.append(I("buffer_load_dword %s, off, %s, %s sc1" % (v_flag, S_DBG, s_fo), "vmem", rd=S_DBG.regs() + s_fo.regs(), wr=[])); xtok.append(mem[-1])
    if do_mem and par == 0 and g in (8, 9, 10): sal = sal + [scmp("s_cmp_le_u32", s_cnt, ROT), salu("s_cselect_b64", s_pf[g - 8], s_pf[g - 7], s_pf[g - 8], scc_w=False, scc_r=True)]
    if do_mem and g == 4: lastdma[0] = d
    post0 = []
    if do_mem and do_mfma and par == 1 and g == 30: post0 = [valu("v_readfirstlane_b32", s_t0, v_flag)]
    if do_mem and do_mfma and par == 1 and g == 31: sal = sal + [scmp("s_cmp_lt_u32", s_cnt, ROT), salu("s_cselect_b32", s_t0, s_t0, 0, scc_w=False, scc_r=True), scmp("s_cmp_ge_u32", s_t0, 8), salu("s_cselect_b64", s_pf[3], s_pfH, s_pf[3], scc_w=False, scc_r=True)]
    gaps = [[], [], [], []]
    if g == 29 and do_mem:
        if STAMP == 2 and do_mfma: gaps[0] += [LoopStamp(0, par)]
        gaps[0] += [Wait(lg0=True, vm0=True) if (par == 1 or not do_mfma) else Wait(lg0=True, vm=lastdma[0])]
        if STAMP == 2 and do_mfma: gaps[0] += [LoopStamp(1, par)]
        gaps[0] += [raw("s_barrier")]
        if STAMP == 2 and do_mfma: gaps[0] += [LoopStamp(2, par)]
    gaps[0] += sal
    if g == 6 and do_mem: gaps[0].append(salu("s_add_u32", s_kK, s_kK, 16384))
    if g == 7 and do_mem: gaps[0].append(salu("s_add_u32", s_kV, s_kV, 16384))
    if g == 23 and par == 1 and do_mfma:
        gaps[0] += [valu("v_mov_b32", v_lsave[i], v_l0[i]) for i in range(4)]
    if len(mem) > 2: gaps[0].append(mem[2])
    gaps[0].append(ex[0])
    if len(mem) > 0: gaps[1].append(mem[0])
    if len(mem) == 0 and do_cvt: gaps[1].append(cv)
    gaps[1].append(ad[0])
    gaps[1] += post0
    if do_mem: gaps[2].append(Wait(lg=ftok.get((g + 1) % 32)))
    if last and g == 30: gaps[2].append(salu("s_sub_u32", s_cnt, s_cnt, 1))
    gaps[2].append(ex[1])
    if len(mem) > 1: gaps[3].append(mem[1])
    if len(mem) > 0 and do_cvt: gaps[3].append(cv)
    gaps[3].append(ad[1])
    for qb in range(4):
        if do_mfma:
            if g < 8 or 16 <= g < 24:
                b = 1 if g < 8 else 0
                kb, ds = (g >> 2) & 1, g & 3
                d = v_S[b][(qb * 8 + kb * 4, 4)]
                e(mfma(d, fr(g), Qf(qb, ds), v_negm[(qb * 4, 4)] if ds == 0 else d))
            else:
                b = 0 if g < 16 else 1
                e(mfma(Of(g & 7, qb), fr(g), v_S[b][(qb * 8, 4)], Of(g & 7, qb)))
        else:
            if qb & 1: e(nop(0))
        for it in gaps[qb]: e(it)

for it in range(3):
    e(salu("s_add_u32", s_t0, s_w, 4 * it))
    e(salu("s_sub_u32", s_t1, s_t0, 2)); e(salu("s_min_u32", s_t1, s_t1, 6)); e(salu("s_lshl_b32", s_t1, s_t1, 13))
    e(salu("s_mul_i32", s_t2, s_qb, 57344, scc_w=False)); e(salu("s_add_u32", s_t1, s_t1, s_t2))
    e(salu("s_add_u32", s_pf[it][0], S_WD[0], s_t1)); e(salu("s_addc_u32", s_pf[it][1], S_WD[1], 0, scc_r=True))
    if it == 0:
        e(scmp("s_cmp_ge_u32", s_w, 2)); e(raw("s_cbranch_scc1 L_pf_wd", rd=["scc"]))
        e(salu("s_lshl_b32", s_t1, s_qb, 14)); e(salu("s_lshl_b32", s_t2, s_w, 13)); e(salu("s_add_u32", s_t1, s_t1, s_t2))
        e(salu("s_add_u32", s_pf[0][0], S_WO[0], s_t1)); e(salu("s_addc_u32", s_pf[0][1], S_WO[1], 0, scc_r=True))
        em.label("L_pf_wd")
e(raw("s_getpc_b64 %s" % s_pf[3], "salu", wr=[s_pf[3]]))
em.label("L_pc1")
e(salu("s_lshl_b32", s_t0, s_w, 13)); e(salu("s_add_u32", s_t0, s_t0, "L_tail-L_pc1")); e(salu("s_min_u32", s_t0, s_t0, "L_code_end-L_pc1-8192"))
e(salu("s_add_u32", s_pf[3][0], s_pf[3][0], s_t0)); e(salu("s_addc_u32", s_pf[3][1], s_pf[3][1], 0, scc_r=True))
e(salu("s_lshl_b32", s_t0, s_cg, 2)); e(salu("s_add_u32", s_t0, s_t0, s_w)); e(salu("s_mul_i32", s_t0, s_t0, 7168, scc_w=False)); e(salu("s_min_u32", s_t0, s_t0, 229376 - 8192))
e(salu("s_add_u32", s_pfH[0], S_HC[0], s_t0)); e(salu("s_addc_u32", s_pfH[1], S_HC[1], 0, scc_r=True))
e(valu("v_lshlrev_b32", v_tch, 7, v_lane))
e(salu("s_lshl_b32", s_fo, s_cq, 2)); e(salu("s_add_u32", s_fo, s_fo, HC_OFF))
pr = [dsread("ds_read_b128", fr(f), v_ka[f & 3], (f >> 2) * 4096) for f in range(8)]
for r in pr: e(r)
e(scmp("s_cmp_lg_u32", s_retry, 0)); e(raw("s_cbranch_scc1 L_have_max", rd=["scc"]))
for i in range(16): e(valu("v_mov_b32", v_negm[i], 0))
em.label("L_have_max")
for f in range(8):
    em.wait(lg=pr[f])
    for qb in range(4):
        d = v_S[0][(qb * 8 + (f >> 2) * 4, 4)]
        e(mfma(d, fr(f), Qf(qb, f & 3), v_negm[(qb * 4, 4)] if (f & 3) == 0 else d))
e(salu("s_mov_b32", s_kK, 16384 + 8192, scc_w=False)); e(salu("s_mov_b32", s_kV, 16384, scc_w=False)); e(salu("s_mov_b32", s_cnt, 16, scc_w=False))
e(scmp("s_cmp_lg_u32", s_retry, 0)); e(raw("s_cbranch_scc1 L_have_max2", rd=["scc"]))
e(nop(3))
mx = [V(96 + i) for i in range(4)]; mt = [V(100 + i) for i in range(4)]
for qb in range(4): e(valu("v_max3_f32", mx[qb], v_S[0][qb * 8], v_S[0][qb * 8 + 1], v_S[0][qb * 8 + 2]))
for qb in range(4): e(valu("v_max3_f32", mx[qb], mx[qb], v_S[0][qb * 8 + 3], v_S[0][qb * 8 + 4]))
for qb in range(4): e(valu("v_max3_f32", mx[qb], mx[qb], v_S[0][qb * 8 + 5], v_S[0][qb * 8 + 6]))
for qb in range(4): e(valu("v_max_f32", mx[qb], mx[qb], v_S[0][qb * 8 + 7]))
red4("v_max_f32", mx, mt)
for qb in range(4):
    for k in range(4): e(valu("v_sub_f32", v_negm[qb * 4 + k], 0, mx[qb]))
for qb in range(4):
    for k in range(8): e(valu("v_sub_f32", v_S[0][qb * 8 + k], v_S[0][qb * 8 + k], mx[qb]))
em.label("L_have_max2")
e(nop(7))
for g in range(23, 29): att_group(1, g, do_mfma=False, do_mem=False, do_cvt=(g != 23))
stamp(); diag()
for g in range(29, 32): att_group(1, g, do_mfma=False, do_mem=True)
pro_end = len(em.out)
em.directive(".p2align 6")
em.label("L_att_loop")
def body():
    for par in range(2):
        for g in range(32): att_group(par, g, last=(par == 1))
b0 = len(em.out)
body()
b1 = len(em.out)
e(scmp("s_cmp_lg_u32", s_cnt, 0)); e(raw("s_cbranch_scc1 L_att_loop", rd=["scc"]))
b2 = len(em.out)
body()
second = em.out[b2:]; del em.out[b2:]
assert [i.text for i in second] == [i.text for i in em.out[b0:b1]], "loop not in steady state"
loop_probs = check_hazards(em.out[b1 - 40:b2] + second[:60], "loop-wrap")
stamp()

em.label("L_tail")
diag()
v_ring2 = V(64, 32); v_B2 = V(96, 32)
def hreg(kk, qb): return A(64 + (kk % 12) * 16 + qb * 4, 4)
XY = int(os.environ.get("XY", "0"))
def mh(m): return ((m & 15), m >> 4) if XY else (m >> 1, m & 1)
P2 = 2
def s2_dma(m):
    p = (m + P2) % 6
    if m < 32:
        s, h = mh(m)
        return [m0set(p), salu("s_mov_b32", s_off, s * 32 * 1024 + 128 * h, scc_w=False)], [dma(v_dA[j], S_WO, s_off, j * 1024) for j in range(4)]
    if m < 46:
        return [m0set(p), salu("s_mov_b32", s_off, (m - 32) * 32 * 1024, scc_w=False)], [dma(v_dB[j], S_WD, s_off, j * 1024) for j in range(4)]
    return None
dtok2 = {}
post_v = []
for m in range(0, 6):
    sa, dm = s2_dma(m); post_v.append(sa); post_v += dm; dtok2[m] = dm[3]
pv = [0]
def post_issue(n):
    k = 0
    while k < n and pv[0] < len(post_v):
        it = post_v[pv[0]]; pv[0] += 1
        e(it)
        if not isinstance(it, list): k += 1
post_issue(4)
lt = [V(100 + i) for i in range(4)]
for qb in range(4): e(valu("v_add_f32", v_l1[qb], v_l1[qb], v_lsave[qb]))
red4("v_add_f32", [v_l1[i] for i in range(4)], lt)
e(salu("s_mov_b32", s_t0, hx(f2u(2.0 ** 30)), scc_w=False))
e(valu("v_add_f32", lt[1], v_l1[0], v_l1[1])); e(valu("v_add_f32", lt[2], v_l1[2], v_l1[3])); e(valu("v_add_f32", lt[1], lt[1], lt[2]))
e(valu("v_cmp_nge_f32", "vcc", s_t0, lt[1]))
rinv = [V(104 + 2 * i, 2) for i in range(4)]
for qb in range(4): e(valu("v_rcp_f32", rinv[qb][0], v_l1[qb]))
e(salu("s_mov_b64", s_pair, "vcc", scc_w=False))
post_issue(4)
for i in range(4):
    for qb in range(4):
        t = Of(2 * i, qb)
        for b in range(2):
            o = Of(2 * i + b, qb)
            for k in range(2): e(valu("v_pk_mul_f32", o[(2 * k, 2)], o[(2 * k, 2)], rinv[qb], mod="op_sel_hi:[1,0]"))
        if DUMP != "o":
            for b in range(2):
                o = Of(2 * i + b, qb)
                for k in range(2): e(valu("v_cvt_pk_bf16_f32", t[2 * b + k], o[2 * k], o[2 * k + 1]))
            if i == 0 and qb == 0:
                e(scmp("s_cmp_eq_u64", s_pair, 0)); e(raw("s_cbranch_scc1 L_nomark", rd=["scc"]))
                e(valu("v_mov_b32", t[0], hx(MARK)))
                em.label("L_nomark")
            if len(em.lgq) >= 12: em.wait(lg=em.lgq[-12])
            e(dswrite("ds_write_b128", v_wl, t, (i * 4 + qb) * 1024))
        post_issue(1)
post_issue(100)
if DUMP == "o": dump_regs([v_acc[i] for i in range(128)])
vm_ = V(56); vma = V(57)
e(valu("v_and_b32", vma, 3, v_lane)); e(valu("v_lshlrev_b32", vma, 14, vma))
e(salu("s_mov_b32", s_cnt, 0, scc_w=False))
em.label("L_pollH")
e(valu("v_readfirstlane_b32", s_t0, v_flag)); e(salu("s_mul_i32", s_hb, s_w, 14 * 4096, scc_w=False)); e(nop(1))
e(scmp("s_cmp_ge_u32", s_t0, 8)); e(raw("s_cbranch_scc1 L_pollH_done", rd=["scc"]))
e(salu("s_add_u32", s_cnt, s_cnt, 1)); e(scmp("s_cmp_ge_u32", s_cnt, 50000)); e(raw("s_cbranch_scc1 L_pollH_done", rd=["scc"]))
e(raw("s_sleep 4")); e(raw("buffer_load_dword %s, off, %s, %s sc1" % (v_flag, S_DBG, s_fo))); e(raw("s_waitcnt vmcnt(0)")); e(raw("s_branch L_pollH"))
em.label("L_pollH_done")
em.wait(lg0=True)
e(raw("s_barrier"))
stamp()
mk = e(dsread("ds_read_b32", vm_, vma, 0))
class FbCheck:
    def __call__(self):
        em.wait(lg=mk)
        e(valu("v_cmp_eq_u32", "vcc", hx(MARK), vm_))
        e(scmp("s_cmp_lg_u32", s_retry, 0)); e(raw("s_cbranch_scc1 L_nofb", rd=["scc"]))
        e(nop(1))
        e(raw("s_cbranch_vccnz L_fallback", rd=["vcc"]))
        em.label("L_nofb")
        return []

def s2_acc(m, u, qb):
    if m < 32: return v_acc[(((mh(m)[1] * 4 + u) * 4 + qb) * 4, 4)], mh(m)[0] == 0
    return a_F[((u * 4 + qb) * 4, 4)], m == 32
def bsel(m): return (m & 1) if XY else ((m >> 1) & 1)
def s2_B(m, qb):
    if m < 32: return v_B2[(bsel(m) * 16 + qb * 4, 4)]
    return hreg(m - 32, qb)
def oread(m, qb): return dsread("ds_read_b128", v_B2[(bsel(m) * 16 + qb * 4, 4)], v_lin, (mh(m)[0] * 4 + qb) * 1024)
extra = {-1: [(0, oread(0, qb), 1) for qb in range(4)] + [(0, FbCheck(), 0)]}
for m in range(1, 32):
    if XY:
        rr = [oread(m, qb) for qb in range(4)]
        for qb in range(4): extra.setdefault(4 * (m - 1) + (qb >> 1), []).append((2 + (qb & 1), rr[qb], 1))
        extra.setdefault(4 * m - 1, []).append((2, Wait(lg=rr), 0))
    elif (m & 1) == 0:
        for qb in range(4): extra.setdefault(4 * (m - 2) + 1 + qb, []).append((2, oread(m, qb), 1))
class LateWait:
    def __init__(self, f): self.f = f
    def __call__(self): return Wait(vm=self.f())
vxf = V(40, 8); vxa = V(48); vpoll = V(49); vfw = V(50)
vx, vy, vz = V(52), V(53), V(54)
save = em.out; em.out = []
for k in range(8): e(valu("v_accvgpr_read_b32", vxf[k], a_x[k]))
e(salu("s_mul_i32", s_t1, s_w, 448 * 1024, scc_w=False)); e(salu("s_lshl_b32", s_t3, s_cg, 7)); e(salu("s_add_u32", s_t1, s_t1, s_t3))
dma_voffs(v_dB, 1024, s_t1, True)
xaddr(vxa, vx)
e(valu("v_and_b32", V(51), 7, v_lane)); e(valu("v_lshlrev_b32", V(51), 2, V(51)))
e(salu("s_lshl_b32", s_t0, s_w, 12)); e(valu("v_add_u32", vfw, s_t0, v_lin))
e(salu("s_lshl_b32", s_t3, s_w, 4)); e(salu("s_add_u32", s_t3, s_t3, s_g)); e(salu("s_lshl_b32", s_t3, s_t3, 13))
early = em.out; em.out = save
class Seq:
    kind = "vmem"
    def __init__(self, l): self.l = l
    def __call__(self): return self.l
hld = {}; htok = {}
for kk in range(14):
    hld[kk] = [bload(hreg(kk, qb), v_lin, S_HC, s_hl, off=qb * 1024, mod="sc1") for qb in range(4)]
    htok[kk] = hld[kk][3]
    extra.setdefault(4 * (32 + kk) - 1, []).append((2, LateWait(lambda kk=kk: htok[kk]), 0))
hseq = []
for kk in range(14):
    for qb in range(4):
        hseq.append(Seq([salu("s_add_u32", s_hl, s_hb, kk * 4096), hld[kk][qb]]))
NPRE = int(os.environ.get("NPRE", "12")); HG0 = int(os.environ.get("HG0", "70")); HGS = int(os.environ.get("HGS", "4"))
for k in range(NPRE): extra.setdefault(HG0 + HGS * k, []).append((2, hseq[k], 1))
def sreg(ip, qb, odd=0): return v_acc[(((2 * ip + odd) * 4 + qb) * 4, 4)]
sp = []; spst = []
HPS = int(os.environ.get("HPS", "3")); hk = NPRE
for ip in range(4):
    for qb in range(4):
        t = sreg(ip, qb)
        for b in range(2):
            o = sreg(ip, qb, b)
            for k in range(2): sp.append(valu("v_cvt_pk_bf16_f32", t[2 * b + k], o[2 * k], o[2 * k + 1]))
        if (qb & 1) == 0: sp.append(salu("s_add_u32", s_t1, s_t3, (ip >> 1) * 65536 + (qb >> 1) * 4096))
        st = bstore(t, v_lin, S_SP, s_t1, off=(qb & 1) * 2048 + (ip & 1) * 1024, mod=os.environ.get("ST_MOD", "sc1").replace("plain", ""))
        if os.environ.get("ST_NONE") and not (ip == 3 and qb == 3): st = nop(0)
        sp.append(st); spst.append(st)
        if not (XY and ip < 2):
            for _ in range(HPS * (2 if XY else 1)):
                if hk < 48: sp.append(hseq[hk]); hk += 1
for k in range(hk, 48): sp.append(hseq[k])
for k in range(48, 56): extra.setdefault(140 + (k - 48), []).append((2, hseq[k], 1))
class SigS:
    def __call__(self):
        stamp(); em.wait(vm=spst[-1]); stamp(); e(raw("s_barrier"))
        e(scmp("s_cmp_lg_u32", s_w, 0)); e(raw("s_cbranch_scc1 L_sigS", rd=["scc"]))
        e(valu("v_mov_b32", v_t, 1))
        e(raw("s_mov_b64 exec, 1", "salu", wr=["exec"]))
        e(raw("buffer_store_dword %s, off, %s, %s sc1" % (v_t, S_FL, s_myfl)))
        e(raw("s_mov_b64 exec, -1", "salu", wr=["exec"]))
        em.label("L_sigS")
        return []
G_SIG = int(os.environ.get("G_SIG", "160")); G_POLL = int(os.environ.get("G_POLL", "172")); G_CHK = int(os.environ.get("G_CHK", "178"))
extra.setdefault(G_SIG, []).append((0, SigS(), 0))
vpa = V(51)
ptok = bload(vpoll, vpa, S_FL, s_t2, n=1, mod="sc1")
extra.setdefault(G_POLL, []).append((1, [salu("s_lshl_b32", s_t2, s_cq, 7)], 0))
extra.setdefault(G_POLL, []).append((2, ptok, 1))
def spl(gp, i): return sreg(gp >> 1, (gp & 1) * 2 + i, 1)
sl = []
class ChkS:
    def __call__(self):
        em.wait(vm=ptok)
        stamp()
        e(salu("s_mov_b32", s_cnt, 0, scc_w=False))
        em.label("L_pollS")
        e(valu("v_cmp_ne_u32", "vcc", 1, vpoll)); e(nop(2))
        e(raw("s_cbranch_vccz L_pollS_done", rd=["vcc"]))
        e(salu("s_add_u32", s_cnt, s_cnt, 1)); e(scmp("s_cmp_ge_u32", s_cnt, 50000)); e(raw("s_cbranch_scc1 L_pollS_done", rd=["scc"]))
        e(raw("buffer_load_dword %s, %s, %s, %s offen sc1" % (vpoll, vpa, S_FL, s_t2))); e(raw("s_waitcnt vmcnt(0)")); e(raw("s_branch L_pollS"))
        em.label("L_pollS_done")
        stamp()
        e(salu("s_lshl_b32", s_t0, s_cg, 16)); e(salu("s_lshl_b32", s_t1, s_w, 11)); e(salu("s_add_u32", s_t0, s_t0, s_t1))
        for gp in range(8):
            for i in range(2): sl.append(e(bload(spl(gp, i), v_lin, S_SPC, s_t0, off=i * 1024, mod="sc1")))
            if gp < 7: e(salu("s_add_u32", s_t0, s_t0, 8192))
        return []
if G_CHK < 184: extra.setdefault(G_CHK, []).append((0, ChkS(), 0))
if STAMP: extra.setdefault(128, []).append((0, Stamp(), 0))
class Diag:
    def __call__(self): diag(); return []
if DIAG: extra.setdefault(128, []).append((0, Diag(), 0))
class Paced(VStream):
    def has(self, g): return self.i < len(self.items) and g >= self.start and self.i <= (g - self.start + 1) * len(self.items) // max(1, self.end - self.start)
    def quota(self, g): return 99 if g >= self.start else 0
class Multi:
    def __init__(self, *l): self.l = list(l)
    def cur(self, g):
        for x in self.l:
            if x.i < len(x.items): return x
        return self.l[-1]
    def has(self, g): return self.cur(g).has(g)
    def peek(self): return self.cur(0).peek()
    def pop(self): return self.cur(0).pop()
    def quota(self, g): return self.cur(g).quota(g)
    def used_quota(self): self.cur(0).used_quota()
SP_END = int(os.environ.get("SP_END", "146"))
if XY:
    half = sp.index(spst[7]) + 1
    vs = Multi(VStream(early, 2, 40), Paced(sp[:half], int(os.environ.get("X_START", "67")), int(os.environ.get("X_END", "75"))), Paced(sp[half:], 130, SP_END))
else:
    vs = Multi(VStream(early, 2, 40), Paced(sp, 130, SP_END))
class ChkEarly:
    def __call__(self):
        assert vs.l[0].i == len(vs.l[0].items); return []
extra.setdefault(59, []).append((0, ChkEarly(), 0))
run_stream(46, s2_dma, dtok2, s2_acc, s2_B, extra, vs, pos0=P2, ring=v_ring2)
stamp(); diag()
e(nop(6))
for qb in range(4):
    for u in range(4):
        if len(em.lgq) >= 12: em.wait(lg=em.lgq[-12])
        e(dswrite("ds_write_b128", vfw, a_F[((u * 4 + qb) * 4, 4)], qb * 16384 + u * 1024))
if G_CHK >= 184: ChkS()()
em.wait(lg0=True)
e(raw("s_barrier"))
def frr(ws_, u): return sreg(ws_, u, 0)
for ws_ in range(4):
    for u in range(4):
        if len(em.lgq) >= 14: em.wait(lg=em.lgq[-14])
        e(dsread("ds_read_b128", frr(ws_, u), v_wl, ws_ * 4096 + u * 1024))
em.wait(lg0=True)
v_fr = V(96, 16); vE = V(64, 16); vs_ = V(80, 16)
for u in range(4):
    for k in range(2):
        e(valu("v_pk_add_f32", frr(0, u)[(2 * k, 2)], frr(0, u)[(2 * k, 2)], frr(1, u)[(2 * k, 2)]))
        e(valu("v_pk_add_f32", frr(2, u)[(2 * k, 2)], frr(2, u)[(2 * k, 2)], frr(3, u)[(2 * k, 2)]))
for u in range(4):
    for k in range(2): e(valu("v_pk_add_f32", v_fr[(4 * u + 2 * k, 2)], frr(0, u)[(2 * k, 2)], frr(2, u)[(2 * k, 2)]))
for k in range(16): e(valu("v_mul_f32", vE[k], hx(f2u(-math.log2(math.e))), v_fr[k]))
for k in range(16): e(valu("v_exp_f32", vE[k], vE[k]))
for k in range(16): e(valu("v_add_f32", vE[k], "1.0", vE[k]))
for k in range(16): e(valu("v_rcp_f32", vE[k], vE[k]))
for k in range(16): e(valu("v_mul_f32", v_fr[k], v_fr[k], vE[k]))
for k in range(8):
    e(valu("v_lshlrev_b32", vE[2 * k], 16, vxf[k])); e(valu("v_and_b32", vE[2 * k + 1], "0xffff0000", vxf[k]))
for gp in range(8):
    em.wait(vm=sl[2 * gp + 1])
    for k in range(8):
        src = spl(gp, k >> 2)[k & 3]
        if gp == 0:
            e(valu("v_lshlrev_b32", vs_[2 * k], 16, src)); e(valu("v_and_b32", vs_[2 * k + 1], "0xffff0000", src))
        else:
            e(valu("v_lshlrev_b32", V(112 + 2 * (k & 3)), 16, src)); e(valu("v_and_b32", V(113 + 2 * (k & 3)), "0xffff0000", src))
            e(valu("v_pk_add_f32", vs_[(2 * k, 2)], vs_[(2 * k, 2)], V(112 + 2 * (k & 3), 2)))
if DUMP == "fin": dump_regs([vs_[i] for i in range(16)] + [v_fr[i] for i in range(16)])
for k in range(8): e(valu("v_pk_fma_f32", vE[(2 * k, 2)], vs_[(2 * k, 2)], v_fr[(2 * k, 2)], vE[(2 * k, 2)]))
for k in range(8): e(valu("v_cvt_pk_bf16_f32", vxf[k], vE[2 * k], vE[2 * k + 1]))
for u in range(4): e(bstore(vxf[(2 * u, 2)], vxa, S_OUT, 0, off=32 * u))
stamp(); diag_out()
em.label("L_end")
e(raw("s_endpgm"))
main_end = len(em.out)

em.lgq, em.vmq, em.pend = [], [], {}
em.label("L_fallback")
e(raw("s_waitcnt vmcnt(0) lgkmcnt(0)")); em._retire(em.vmq, 0); em._retire(em.lgq, 0)
e(salu("s_mov_b32", s_retry, 1, scc_w=False))
e(salu("s_mov_b32", s_kK, 0, scc_w=False))
fm = [V(40 + i) for i in range(4)]
for i in range(4): e(valu("v_mov_b32", fm[i], "0xff800000"))
em.label("L_fb_loop")
e(raw("s_barrier"))
e(salu("s_add_u32", "m0", s_m0b, 4 * 16384)); e(nop(0))
for j in range(4): e(dma(v_kd[j], S_K, s_kK, j * 1024))
em.wait(vm0=True)
e(raw("s_barrier"))
for kb in range(4):
    rr = [e(dsread("ds_read_b128", fr(ds), v_ka[ds], kb * 4096)) for ds in range(4)]
    em.wait(lg0=True)
    for ds in range(4):
        for qb in range(4):
            d = v_S[0][(qb * 4, 4)]
            e(mfma(d, fr(ds), Qf(qb, ds), 0 if ds == 0 else d))
    e(nop(7))
    for qb in range(4):
        e(valu("v_max3_f32", fm[qb], fm[qb], v_S[0][qb * 4], v_S[0][qb * 4 + 1])); e(valu("v_max3_f32", fm[qb], fm[qb], v_S[0][qb * 4 + 2], v_S[0][qb * 4 + 3]))
    e(nop(2))
e(salu("s_add_u32", s_kK, s_kK, 16384)); e(scmp("s_cmp_lt_u32", s_kK, 524288)); e(raw("s_cbranch_scc1 L_fb_loop", rd=["scc"]))
red4("v_max_f32", fm, [V(44 + i) for i in range(4)])
for qb in range(4):
    for k in range(4): e(valu("v_sub_f32", v_negm[qb * 4 + k], 0, fm[qb]))
e(raw("s_barrier"))
for m in (64, 65, 66):
    sa, dm = s1_dma(m); e(sa)
    for d in dm: e(d)
e(raw("s_branch L_att_start"))
em.label("L_code_end")
e(raw("s_endpgm"))

probs = check_hazards(em.out, "main") + loop_probs
for p in probs: print("; HAZARD", p, file=sys.stderr)
assert not probs

hdr = open(os.path.join(os.path.dirname(os.path.abspath(__file__)), "header.txt")).read()
print(hdr.rstrip())
print("; @launch grid=(256,1,1) block=(256,1,1) lds=163840")
print('.amdgcn_target "amdgcn-amd-amdhsa--gfx950"\n.text\n.globl %s\n.p2align 8\n.type %s,@function\n%s:' % (KN, KN, KN))
print(em.text())
print('.section .rodata,"a"\n.p2align 6\n.amdhsa_kernel %s' % KN)
print("  .amdhsa_next_free_vgpr 512\n  .amdhsa_next_free_sgpr 102\n  .amdhsa_accum_offset 256\n  .amdhsa_group_segment_fixed_size 0\n  .amdhsa_kernarg_size 96\n  .amdhsa_user_sgpr_count 2\n  .amdhsa_user_sgpr_kernarg_segment_ptr 1\n  .amdhsa_system_sgpr_workgroup_id_x 1\n.end_amdhsa_kernel")
```

```python
import sys, os, math, struct
from asmgen import *

KN = "recurrent_scan__gqa_block_cached__geglu_ffn__prompt_kernel"
DUMP = os.environ.get("DUMP", "")
STAMP = int(os.environ.get("STAMP", "0"))
GEL_END = int(os.environ.get("GEL_END", "228")); GEL_EXTRA = int(os.environ.get("GEL_EXTRA", "360"))

def f2u(x): return struct.unpack("<I", struct.pack("<f", x))[0]
def hx(x): return "0x%x" % (x & 0xffffffff)

S_X, S_K, S_V, S_WQ, S_WO, S_WG, S_WU, S_WD, S_OUT, S_DBG, S_H, S_SP = [S(4 + 4 * i, 4) for i in range(12)]
s_g, s_qb, s_w = S(52), S(53), S(54)
s_t0, s_t1, s_t2, s_t3 = S(55), S(56), S(57), S(58)
s_m0b = S(59)
s_off = S(60)
s_cnt = S(61)
s_kK, s_kV = S(62), S(63)
s_retry = S(64)
s_h0, s_h1 = S(65), S(66)
s_hl = S(67); s_hb = S(78); s_myfl = S(79)
s_ka = S(68, 16); s_kb = S(84, 8)
s_pair = S(92, 2); s_pair2 = S(94, 2)
S_DMP = S(96, 4)
s_cq, s_cg = S(76), S(77)
S_HC = S(80, 4)
S_SPC = S(84, 4)
S_XC = S(88, 4)
s_st = S(68, 4)

v_tid, v_lane, v_lin, v_t = V(0), V(1), V(2), V(3)
v_tr = [V(4, 4), V(8, 4)]
v_dA, v_dB = V(12, 4), V(16, 4)
v_ka = V(20, 4); v_va = V(24, 8); v_kd = V(32, 4); v_vd = V(36, 2)
v_wl = V(38)
v_c = V(39)
v_l0, v_l1 = V(40, 4), V(44, 4)
v_lsave = V(16, 4)
v_negm = V(48, 16)
v_S = [V(64, 32), V(96, 32)]
v_acc = V(128, 128)
a_ring = A(128, 32)
a_B = A(160, 32)
a_Q = A(0, 64)
a_F = A(0, 64)
a_x = A(248, 8)

RING = 65536
MARK = 0x7fc17fc1
WS_SP = 8 << 20
WS_DUMP = 32 << 20
WS_FL = (7 << 20) + (512 << 10)
S_FL = S(4, 4)

em = Em()
e = em.e

def srd(dst, lo, hi, size, off_s=None):
    if off_s is None:
        e(salu("s_mov_b32", dst[0], lo, scc_w=False)); e(salu("s_mov_b32", dst[1], hi, scc_w=False))
    else:
        e(salu("s_add_u32", dst[0], lo, off_s)); e(salu("s_addc_u32", dst[1], hi, 0, scc_r=True))
    e(salu("s_mov_b32", dst[2], hx(size), scc_w=False)); e(salu("s_mov_b32", dst[3], "0x20000", scc_w=False))

DIAG = int(os.environ.get("DIAG", "0"))
HC_OFF = 128
diag_regs = [S(100, 2), S(70, 2), S(72, 2), S(74, 2), S(96, 2), S(98, 2), S(68, 2)] if DIAG == 1 else [S(100, 2), S(96, 2), S(98, 2), S(94, 2), S(70, 2), S(72, 2), S(74, 2), S(68, 2)]
diag_n = [0]
def diag(which=1):
    if not DIAG or (which != DIAG and which != 0): return
    k = diag_n[0]; diag_n[0] += 1
    e(raw("s_memrealtime %s" % diag_regs[k], "other", wr=[diag_regs[k]]))
    if k > 0: e(raw("s_waitcnt lgkmcnt(0)", "wait")); em._retire(em.lgq, 0)
def diag_out():
    if not DIAG: return
    diag(0)
    e(scmp("s_cmp_lg_u32", s_w, 0)); e(raw("s_cbranch_scc1 L_end", rd=["scc"]))
    e(raw("s_mov_b64 exec, 1", "salu", wr=["exec"]))
    e(salu("s_not_b32", s_t0, diag_regs[0][0]))
    for k in range(diag_n[0]):
        e(valu("v_mov_b32", V(4 + k), s_t0 if k == 0 else diag_regs[k][0]))
        e(raw("buffer_atomic_umax %s, off, %s, 0 offset:%d sc1" % (V(4 + k), S_DBG, 4 * k)))
    e(valu("v_mov_b32", V(12), diag_regs[0][0]))
    e(raw("buffer_atomic_umax %s, off, %s, 0 offset:%d sc1" % (V(12), S_DBG, 4 * 9)))
stamp_n = [0]
def stamp():
    if not STAMP: return
    k = stamp_n[0]; stamp_n[0] += 1
    e(raw("s_memtime %s" % S(68, 2), "other", wr=[S(68, 2)]))
    e(raw("s_memrealtime %s" % S(70, 2), "other", wr=[S(70, 2)]))
    e(raw("s_waitcnt lgkmcnt(0)", "wait")); em._retire(em.lgq, 0)
    for i in range(4): e(valu("v_writelane_b32", v_c, S(68 + i), i, rmw=True))
    e(salu("s_lshl_b32", S(72), S(2), 2)); e(salu("s_add_u32", S(72), S(72), s_w)); e(salu("s_lshl_b32", S(72), S(72), 9))
    e(salu("s_mov_b64", S(74, 2), "exec", scc_w=False)); e(raw("s_mov_b64 exec, 15", "salu", wr=["exec"]))
    e(valu("v_lshlrev_b32", v_t, 2, v_lane))
    e(bstore(v_c, v_t, S_DMP, S(72), off=k * 16))
    e(raw("s_mov_b64 exec, %s" % S(74, 2), "salu", wr=["exec"]))
    e(valu("v_lshlrev_b32", v_t, 7, v_lane))

def dump_regs(regs, finish=True):
    em.wait(lg0=True, vm0=True)
    e(nop(7)); e(nop(7))
    n = len(regs)
    e(salu("s_lshl_b32", s_t0, S(2), 2)); e(salu("s_add_u32", s_t0, s_t0, s_w)); e(salu("s_mul_i32", s_t0, s_t0, n * 256, scc_w=False))
    e(valu("v_lshlrev_b32", v_t, 2, v_lane))
    for k, r in enumerate(regs):
        e(bstore(r, v_t, S_DMP, s_t0, off=0))
        e(salu("s_add_u32", s_t0, s_t0, 256))
        if k % 32 == 31: em.wait(vm0=True)
    em.wait(vm0=True)
    if finish: e(raw("s_endpgm"))

def red4(op, x, tmp):
    for sw in ("v_permlane32_swap_b32", "v_permlane16_swap_b32"):
        for a, t in zip(x, tmp): e(valu("v_mov_b32", t, a))
        if len(x) < 3: e(nop(1))
        for a, t in zip(x, tmp): e(valu(sw, a, t))
        for a, t in zip(x, tmp): e(valu(op, a, a, t))

e(scmp("s_cmp_ge_u32", S(2), 256)); e(raw("s_cbranch_scc1 L_end", rd=["scc"]))
diag(0)
i0 = e(I("s_load_dwordx16 %s, s[0:1], 0" % s_ka, "smem", wr=s_ka.regs()))
i1 = e(I("s_load_dwordx8 %s, s[0:1], 64" % s_kb, "smem", wr=s_kb.regs()))
vq, vG, vr, vc_, vx, vy, vz = [V(40 + i) for i in range(7)]
e(raw("s_getpc_b64 %s" % s_pair, "salu", wr=[s_pair]))
em.label("L_pc0")
e(valu("v_lshlrev_b32", vy, 7, v_tid))
e(I("global_load_dword %s, %s, %s" % (V(49), vy, s_pair), "vmem", rd=vy.regs() + s_pair.regs(), wr=V(49).regs()))
e(salu("s_and_b32", s_g, S(2), 7)); e(salu("s_lshr_b32", s_qb, S(2), 3))
e(valu("v_and_b32", v_lane, 63, v_tid))
e(valu("v_lshrrev_b32", v_t, 6, v_tid))
e(valu("v_lshlrev_b32", v_lin, 4, v_lane))
e(valu("v_readfirstlane_b32", s_w, v_t))
e(valu("v_and_b32", vq, 15, v_lane)); e(valu("v_lshrrev_b32", vG, 4, v_lane))
vxo = V(47)
e(valu("v_lshl_add_u32", vxo, v_t, 4, vq)); e(valu("v_lshlrev_b32", vxo, 10, vxo)); e(valu("v_lshl_add_u32", vxo, vG, 4, vxo))
e(salu("s_mul_i32", s_t1, s_g, 448, scc_w=False)); e(salu("s_and_b32", s_t1, s_t1, hx(~127)))
e(salu("s_mul_i32", s_t2, s_qb, 16 * 3584, scc_w=False)); e(salu("s_add_u32", s_t1, s_t1, s_t2))
e(valu("v_lshrrev_b32", vx, 2, v_lane)); e(valu("v_mul_u32_u24", vx, 3584, vx)); e(valu("v_and_b32", vz, 3, v_lane)); e(valu("v_lshl_add_u32", vx, vz, 7, vx))
e(scmp("s_cmp_lt_u32", s_w, 2)); e(raw("s_cbranch_scc1 L_warm_a", rd=["scc"]))
e(salu("s_lshl_b32", s_t1, s_qb, 4)); e(salu("s_lshl_b32", s_t2, s_w, 3)); e(salu("s_add_u32", s_t1, s_t1, s_t2)); e(salu("s_sub_u32", s_t1, s_t1, 16))
e(salu("s_lshl_b32", s_t1, s_t1, 13)); e(salu("s_lshl_b32", s_t2, s_g, 10)); e(salu("s_add_u32", s_t1, s_t1, s_t2))
e(valu("v_lshrrev_b32", vx, 3, v_lane)); e(valu("v_lshlrev_b32", vx, 13, vx)); e(valu("v_and_b32", vz, 7, v_lane)); e(valu("v_lshl_add_u32", vx, vz, 7, vx))
em.label("L_warm_a")
e(valu("v_add_u32", vx, s_t1, vx))
e(salu("s_lshl_b32", s_t0, s_qb, 16))
em.wait(lg0=True)
e(scmp("s_cmp_eq_u32", s_w, 0)); e(salu("s_cselect_b64", s_pair, s_ka[(12, 2)], s_ka[(14, 2)], scc_w=False, scc_r=True))
e(scmp("s_cmp_ge_u32", s_w, 2)); e(salu("s_cselect_b64", s_pair, s_ka[(6, 2)], s_pair, scc_w=False, scc_r=True))
e(I("global_load_dword %s, %s, %s" % (V(48), vx, s_pair), "vmem", rd=vx.regs() + s_pair.regs(), wr=V(48).regs()))
diag(2)
srd(S_X, s_ka[0], s_ka[1], 65536, s_t0)
v_xp = V(64, 64)
xl = []
for ks in range(16):
    xl.append(e(bload(v_xp[(4 * ks, 4)], vxo, S_X, 0, off=64 * ks)))
diag(2)
e(salu("s_lshr_b32", s_t2, s_qb, 3)); e(salu("s_lshl_b32", s_t3, s_g, 2)); e(salu("s_add_u32", s_t2, s_t2, s_t3))
e(salu("s_lshl_b32", s_t0, s_t2, 16))
srd(S_OUT, s_kb[2], s_kb[3], 65536, s_t0)
e(salu("s_lshl_b32", s_t1, s_g, 19))
srd(S_K, s_ka[2], s_ka[3], 524288, s_t1)
srd(S_V, s_ka[4], s_ka[5], 524288, s_t1)
srd(S_WO, s_ka[8], s_ka[9], 524288, s_t1)
srd(S_WQ, s_ka[6], s_ka[7], 4 << 20)
srd(S_WG, s_ka[12], s_ka[13], 1835008)
srd(S_WU, s_ka[14], s_ka[15], 1835008)
srd(S_WD, s_kb[0], s_kb[1], 1835008)
srd(S_DBG, s_kb[4], s_kb[5], 256)
e(salu("s_mul_i32", s_t1, s_qb, 229376, scc_w=False))
srd(S_H, s_kb[6], s_kb[7], 229376, s_t1)
e(salu("s_lshl_b32", s_t1, s_qb, 19)); e(salu("s_add_u32", s_t1, s_t1, hx(WS_SP)))
srd(S_SP, s_kb[6], s_kb[7], 524288, s_t1)
if DUMP or STAMP:
    e(salu("s_mov_b32", s_t1, hx(WS_DUMP), scc_w=False))
    srd(S_DMP, s_kb[6], s_kb[7], 200 << 20, s_t1)
e(salu("s_mov_b64", s_pair, S(90, 2), scc_w=False))
e(salu("s_lshl_b32", s_t0, s_t2, 16))
srd(S_XC, s_ka[0], s_ka[1], 65536, s_t0)
e(salu("s_mul_i32", s_t1, s_t2, 229376, scc_w=False))
srd(S_HC, s_pair[0], s_pair[1], 229376, s_t1)
e(salu("s_lshl_b32", s_t1, s_t2, 19)); e(salu("s_add_u32", s_t1, s_t1, hx(WS_SP)))
srd(S_SPC, s_pair[0], s_pair[1], 524288, s_t1)
e(salu("s_mov_b32", s_cq, s_t2, scc_w=False)); e(salu("s_and_b32", s_cg, s_qb, 7))
e(salu("s_mov_b32", s_t1, hx(WS_FL), scc_w=False))
srd(S_FL, s_pair[0], s_pair[1], 4096, s_t1)
e(salu("s_lshl_b32", s_myfl, s_qb, 7)); e(salu("s_lshl_b32", s_t1, s_g, 2)); e(salu("s_add_u32", s_myfl, s_myfl, s_t1))
e(salu("s_lshl_b32", s_m0b, s_w, 12)); e(salu("s_add_u32", s_m0b, s_m0b, RING))
e(salu("s_and_b32", s_t1, s_g, 1)); e(salu("s_lshl_b32", s_t1, s_t1, 2)); e(salu("s_add_u32", s_t1, s_t1, s_w))
e(scmp("s_cmp_eq_u32", s_w, 3)); e(salu("s_cselect_b32", s_t1, 3, s_t1, scc_w=False, scc_r=True))
e(salu("s_lshr_b32", s_t2, s_g, 1)); e(salu("s_mul_i32", s_t2, s_t2, 7, scc_w=False)); e(salu("s_add_u32", s_t1, s_t1, s_t2))
e(salu("s_lshl_b32", s_h0, s_t1, 13)); e(salu("s_add_u32", s_h1, s_h0, 4096))
e(salu("s_lshl_b32", s_t1, s_t1, 7))
e(salu("s_lshl_b32", s_t2, s_g, 2)); e(salu("s_add_u32", s_t2, s_t2, s_w)); e(salu("s_lshl_b32", s_t2, s_t2, 8))

def dma_voffs(dst, stride, colbase_s, perm):
    for j in range(4):
        e(valu("v_bfe_u32", vx, v_lane, 1, 2)); e(valu("v_bfe_u32", vy, v_lane, 4, 1))
        e(valu("v_xor_b32", vx, vx, vy))
        if j & 1: e(valu("v_xor_b32", vx, 2, vx))
        e(valu("v_and_b32", vy, 1, v_lane)); e(valu("v_lshlrev_b32", vy, 4, vy)); e(valu("v_lshl_add_u32", vx, vx, 5, vy))
        if not perm:
            e(valu("v_lshrrev_b32", vy, 3, v_lane)); rowadd = 8 * j
        else:
            e(valu("v_bfe_u32", vy, v_lane, 3, 2)); e(valu("v_bfe_u32", vz, v_lane, 5, 1)); e(valu("v_lshl_add_u32", vy, vz, 4, vy)); rowadd = 4 * j
        e(valu("v_mul_u32_u24", vy, stride, vy))
        e(valu("v_add3_u32", vx, vx, vy, colbase_s))
        e(valu("v_add_u32", dst[j], rowadd * stride - j * 1024, vx))

dma_voffs(v_dA, 3584, s_t1, False)
dma_voffs(v_dB, 8192, s_t2, False)

def m0set(p): return salu("s_add_u32", "m0", s_m0b, p * 16384)
def s1_dma(m):
    p = m % 6
    if m < 32:
        s, h = m >> 1, m & 1
        return [m0set(p), salu("s_mov_b32", s_off, s * 32 * 3584, scc_w=False)], [dma(v_dA[j], S_WU if h else S_WG, s_off, j * 1024) for j in range(4)]
    if m < 64:
        s, h = (m - 32) >> 1, m & 1
        return [m0set(p), salu("s_mov_b32", s_off, s * 32 * 8192 + 128 * h, scc_w=False)], [dma(v_dB[j], S_WQ, s_off, j * 1024) for j in range(4)]
    if m == 64:
        return [m0set(p), salu("s_mov_b32", s_off, 0, scc_w=False)], [dma(v_kd[j], S_K, s_off, j * 1024) for j in range(4)]
    if m == 65:
        return [m0set(p), salu("s_mov_b32", s_off, 8192, scc_w=False)], [dma(v_kd[j], S_K, s_off, j * 1024) for j in range(4)]
    if m == 66:
        return [m0set(p), salu("s_mov_b32", s_off, 0, scc_w=False)], [dma(v_vd[j & 1], S_V, s_off, j * 1024) for j in range(4)]
    return None
dtok = {}
ln_v = []
for m in range(6):
    sa, dm = s1_dma(m)
    ln_v.append(sa); ln_v += dm
    dtok[m] = dm[3]
def xaddr(dst, tmp):
    e(valu("v_and_b32", dst, 15, v_lane)); e(salu("s_lshl_b32", s_t0, s_w, 4)); e(valu("v_add_u32", dst, s_t0, dst)); e(valu("v_lshlrev_b32", dst, 10, dst))
    e(valu("v_lshrrev_b32", tmp, 4, v_lane)); e(valu("v_lshl_add_u32", dst, tmp, 3, dst)); e(salu("s_lshl_b32", s_t0, s_cg, 7)); e(valu("v_add_u32", dst, s_t0, dst))
vxs, vzero = V(50), V(51)
xaddr(vxs, vy)
e(valu("v_mov_b32", vzero, 0))
ln_v += [bload(a_x[(2 * u, 2)], vxs, S_XC, 0, off=32 * u, n=2) for u in range(4)]
ln_v.append([raw("s_mov_b64 exec, 1", "salu", wr=["exec"]), bstore(vzero, None, S_FL, s_myfl, mod="sc1"), raw("s_mov_b64 exec, -1", "salu", wr=["exec"])])
lv = [0]
def ln_issue(n=1):
    k = 0
    while k < n and lv[0] < len(ln_v):
        it = ln_v[lv[0]]; lv[0] += 1
        e(it)
        if not isinstance(it, list): k += 1
diag(2)
e(valu("v_bfe_u32", vr, v_lane, 2, 2)); e(valu("v_and_b32", vc_, 3, v_lane))
e(valu("v_lshlrev_b32", vx, 10, vG)); e(valu("v_lshl_add_u32", vx, vr, 7, vx)); e(valu("v_lshl_add_u32", vx, vc_, 3, vx)); e(valu("v_add_u32", vx, s_m0b, vx))
e(valu("v_lshrrev_b32", vy, 1, vr)); e(valu("v_and_b32", vz, 1, vG)); e(valu("v_lshl_add_u32", vy, vz, 1, vy))
for u in range(4):
    e(valu("v_xor_b32", vz, u, vy)); e(valu("v_lshl_add_u32", v_tr[0][u], vz, 5, vx)); e(valu("v_add_u32", v_tr[1][u], 3 * 16384, v_tr[0][u]))
e(valu("v_xor_b32", vy, vG, vq))
for ds in range(4):
    e(valu("v_xor_b32", vz, 4 * ds, vy)); e(valu("v_lshlrev_b32", vz, 4, vz)); e(valu("v_lshl_add_u32", vz, vq, 8, vz)); e(valu("v_add_u32", v_ka[ds], RING + 4 * 16384, vz))
e(valu("v_lshl_add_u32", vx, vG, 2, vr)); e(valu("v_and_b32", vy, 7, vx)); e(valu("v_lshlrev_b32", vx, 8, vx)); e(valu("v_lshl_add_u32", vx, vc_, 3, vx)); e(valu("v_add_u32", vx, RING, vx))
for db in range(8):
    e(valu("v_xor_b32", vz, db, vy)); e(valu("v_lshl_add_u32", v_va[db], vz, 5, vx))
e(salu("s_lshl_b32", s_t1, s_w, 12))
e(valu("v_lshlrev_b32", vx, 8, vG)); e(valu("v_add_u32", vx, s_t1, vx))
for j in range(4):
    e(valu("v_add_u32", vy, 4 * j, vG)); e(valu("v_xor_b32", vy, vy, vq)); e(valu("v_lshl_add_u32", v_kd[j], vy, 4, vx))
e(valu("v_and_b32", vz, 1, v_lane)); e(valu("v_lshl_add_u32", vx, vz, 4, vx))
for j in range(2):
    e(valu("v_add_u32", vy, 4 * j, vG)); e(valu("v_lshrrev_b32", vz, 1, vq)); e(valu("v_xor_b32", vy, vy, vz)); e(valu("v_lshl_add_u32", v_vd[j], vy, 5, vx))
e(salu("s_lshl_b32", s_t1, s_w, 14)); e(valu("v_add_u32", v_wl, s_t1, v_lin))
e(salu("s_mov_b32", s_retry, 0, scc_w=False))
stamp()

v_f = V(128, 128)
acc = [V(52, 2), V(54, 2), V(56, 2), V(58, 2)]
diag(2)
for ks in range(16):
    em.wait(vm=xl[ks])
    if ks in (0, 15): diag(2)
    for k in range(4):
        p = 4 * ks + k
        e(valu("v_lshlrev_b32", v_f[2 * p], 16, v_xp[p])); e(valu("v_and_b32", v_f[2 * p + 1], "0xffff0000", v_xp[p]))
    for k in range(4):
        p = 4 * ks + k
        if ks == 0: e(valu("v_mov_b64", acc[k], v_f[(2 * p, 2)]))
        else: e(valu("v_pk_add_f32", acc[k], acc[k], v_f[(2 * p, 2)]))
ln_issue(int(os.environ.get("LN_FIRST", "4")))
e(valu("v_pk_add_f32", acc[0], acc[0], acc[1])); e(valu("v_pk_add_f32", acc[2], acc[2], acc[3])); e(valu("v_pk_add_f32", acc[0], acc[0], acc[2]))
vsum, vtmp, vmb, vdm = V(60), V(61), V(62), V(63)
e(valu("v_add_f32", vsum, acc[0][0], acc[0][1]))
red4("v_add_f32", [vsum], [vtmp])
e(valu("v_mul_f32", vsum, hx(f2u(1.0 / 512)), vsum))
e(valu("v_cvt_pk_bf16_f32", vmb, vsum, vsum)); e(valu("v_lshlrev_b32", vmb, 16, vmb))
e(valu("v_sub_f32", vdm, vsum, vmb))
vneg = V(52, 2)
e(valu("v_sub_f32", vneg[0], 0, vmb))
acc2 = [V(54, 2), V(56, 2), V(58, 2)]
for p in range(64):
    e(valu("v_pk_add_f32", v_f[(2 * p, 2)], v_f[(2 * p, 2)], vneg, mod="op_sel_hi:[1,0]"))
    if p % 8 == 7: ln_issue()
for p in range(64):
    if p % 8 == 7: ln_issue()
    a_ = acc2[p % 3]
    if p < 3: e(valu("v_pk_mul_f32", a_, v_f[(2 * p, 2)], v_f[(2 * p, 2)]))
    else: e(valu("v_pk_fma_f32", a_, v_f[(2 * p, 2)], v_f[(2 * p, 2)], a_))
e(valu("v_pk_add_f32", acc2[0], acc2[0], acc2[1])); e(valu("v_pk_add_f32", acc2[0], acc2[0], acc2[2]))
e(valu("v_add_f32", vsum, acc2[0][0], acc2[0][1]))
red4("v_add_f32", [vsum], [vtmp])
e(valu("v_mul_f32", vsum, hx(f2u(1.0 / 512)), vsum))
e(valu("v_fma_f32", vsum, "-" + str(vdm), vdm, vsum, extra_rd=vdm.regs()))
e(valu("v_max_f32", vsum, 0, vsum))
e(valu("v_cvt_pk_bf16_f32", vsum, vsum, vsum)); e(valu("v_lshlrev_b32", vsum, 16, vsum))
e(valu("v_add_f32", vsum, hx(f2u(1e-5)), vsum))
e(valu("v_cvt_pk_bf16_f32", vsum, vsum, vsum)); e(valu("v_lshlrev_b32", vsum, 16, vsum))
e(valu("v_sqrt_f32", vsum, vsum)); e(nop(0))
e(valu("v_cvt_pk_bf16_f32", vsum, vsum, vsum)); e(valu("v_lshlrev_b32", vsum, 16, vsum))
e(valu("v_rcp_f32", vneg[0], vsum)); e(nop(0))
for ks in range(16):
    for k in range(4):
        p = 4 * ks + k
        e(valu("v_pk_mul_f32", v_f[(2 * p, 2)], v_f[(2 * p, 2)], vneg, mod="op_sel_hi:[1,0]"))
    for k in range(4):
        p = 4 * ks + k
        e(valu("v_cvt_pk_bf16_f32", v_xp[p], v_f[2 * p], v_f[2 * p + 1]))
    e(dswrite("ds_write_b128", v_wl, v_xp[(4 * ks, 4)], ks * 1024))
    ln_issue()
ln_issue(100)
if DUMP == "ln": dump_regs([v_xp[i] for i in range(64)])
em.wait(lg0=True)
e(raw("s_barrier"))
stamp(); diag()

def run_stream(NH, dmaf, dtok, accf, Bf, extra, vstream, LOOK=6, nq=4, pos0=0, ring=a_ring):
    NG = 4 * NH
    rtok = {}
    def reads(g):
        m, u = g >> 2, g & 3
        p = (m + pos0) % 6
        d = ring[((g % 8) * 4, 4)]
        r = [dsread("ds_read_b64_tr_b16", d[(2 * h2, 2)], v_tr[p // 3][u], (p % 3) * 16384 + h2 * 512) for h2 in range(2)]
        rtok[g] = r[1]
        return r
    em.wait(vm=dtok[0])
    for g in range(3): e(reads(g))
    for pre in extra.get(-1, []): e(pre[1])
    em.wait(lg0=True)
    vi = 0
    for g in range(NG):
        m, u = g >> 2, g & 3
        gaps = [[], [], [], []]; cap = [2, 2, 2, 2]
        if g + 3 < NG:
            if (g + 3) & 3 == 0: gaps[0].append(Wait(vm=dtok[(g + 3) >> 2]))
            r = reads(g + 3); gaps[0].append(r[0]); gaps[1].append(r[1]); cap[0] -= 1; cap[1] -= 1
        md, j = (g + 4 * LOOK - 4) >> 2, (g + 4 * LOOK - 4) & 3
        if md >= LOOK:
            if j == 0: cur = dmaf(md)
            if cur is not None:
                if j == 0: gaps[2] += cur[0]
                items = cur[1][j::4]
                for it in items: gaps[3].append(it); cap[3] -= 1
                if j == 3: dtok[md] = cur[1][3]
        for (gp, it, cost) in extra.get(g, []):
            gaps[gp].append(it); cap[gp] -= cost
        if g + 1 < NG: gaps[3].insert(0, Wait(lg=rtok[g + 1]))
        d = ring[((g % 8) * 4, 4)]
        for qb in range(nq):
            ac, first = accf(m, u, qb)
            e(mfma(ac, d, Bf(m, qb), 0 if first else ac))
            for it in gaps[qb]: e(it)
            c = cap[qb]
            quota = vstream.quota(g) if vstream else 0
            while vstream and vstream.has(g) and (c > 0 or quota > 0):
                it = vstream.peek()
                cost = 2 if it.kind == "trans" else 1
                if cost > c and quota <= 0: break
                if cost > c: quota -= 1; vstream.used_quota()
                e(vstream.pop()); c -= cost
    if vstream:
        while vstream.has(10 ** 9): e(vstream.pop())

class VStream:
    def __init__(self, items, start, end, extra_total=0):
        self.items = items; self.i = 0; self.start = start; self.end = end
        self.extra_total = extra_total; self.used = 0
    def has(self, g): return self.i < len(self.items) and g >= self.start
    def peek(self): return self.items[self.i]
    def pop(self): self.i += 1; return self.items[self.i - 1]
    def quota(self, g):
        if g < self.start: return 0
        allowed = (g - self.start + 1) * self.extra_total // max(1, self.end - self.start)
        return 1 if allowed > self.used else 0
    def used_quota(self): self.used += 1

def s1_acc(m, u, qb):
    h = m & 1
    idx = ((h * 4 + u) * 4 + qb) * 4
    if m < 32: return A(idx, 4), m < 2
    return v_acc[(idx, 4)], m < 34
def s1_B(m, qb): return a_B[(((m >> 1) & 1) * 16 + qb * 4, 4)]
extra = {}
btok = {}
def bread(s, qb): return dsread("ds_read_b128", a_B[((s & 1) * 16 + qb * 4, 4)], v_lin, (qb * 16 + (s % 16)) * 1024)
extra[-1] = [(0, bread(0, qb), 1) for qb in range(4)]
for s in range(1, 32):
    for qb in range(4):
        extra.setdefault(8 * (s - 1) + 1 + qb, []).append((2, bread(s, qb), 1))
C0 = -2.0 * math.sqrt(2.0 / math.pi) * math.log2(math.e); C1 = C0 * 0.044715
vc0, vc1 = V(40), V(41)
gel = [valu("v_mov_b32", vc0, hx(f2u(C0))), valu("v_mov_b32", vc1, hx(f2u(C1)))]
hst = []
tb = 0
for i in range(2):
    for qb in range(4):
        pk = V(44 + 4 * (tb % 4), 4); tb += 1
        for b in range(2):
            u = 2 * i + b
            T = [V(64 + 16 * ((2 * tb + b) % 4) + k) for k in range(16)]
            G_, U_, X_ = T[0:4], T[4:8], T[8:12]
            ga = lambda r: A((u * 4 + qb) * 4 + r); ua = lambda r: A(((4 + u) * 4 + qb) * 4 + r)
            for r in range(4): gel.append(valu("v_accvgpr_read_b32", G_[r], ga(r)))
            for r in range(4): gel.append(valu("v_accvgpr_read_b32", U_[r], ua(r)))
            for r in range(4): gel.append(valu("v_mul_f32", X_[r], G_[r], G_[r]))
            for r in range(4): gel.append(valu("v_fma_f32", X_[r], X_[r], vc1, vc0))
            for r in range(4): gel.append(valu("v_mul_f32", X_[r], X_[r], G_[r]))
            for r in range(4): gel.append(valu("v_exp_f32", X_[r], X_[r]))
            for r in range(4): gel.append(valu("v_mul_f32", G_[r], G_[r], U_[r]))
            for r in range(4): gel.append(valu("v_add_f32", X_[r], "1.0", X_[r]))
            for r in range(4): gel.append(valu("v_rcp_f32", X_[r], X_[r]))
            gel.append(nop(0))
            for r in range(4): gel.append(valu("v_mul_f32", G_[r], G_[r], X_[r]))
            for k in range(2): gel.append(valu("v_cvt_pk_bf16_f32", pk[2 * b + k], G_[2 * k], G_[2 * k + 1]))
        st = bstore(pk, v_lin, S_H, s_h1 if i else s_h0, off=qb * 1024, mod="sc1")
        gel.append(st); hst.append(st)
class Stamp:
    def __call__(self): stamp(); return []
if STAMP: extra.setdefault(128, []).append((0, Stamp(), 0))
vs = VStream(gel, 131, GEL_END, extra_total=GEL_EXTRA)
run_stream(64, s1_dma, dtok, s1_acc, s1_B, extra, vs)
if DUMP == "qacc": dump_regs([v_acc[i] for i in range(128)])
stamp()

em.wait(lg0=True)
e(raw("s_barrier"))
def signal(off_s_expr_add, lab):
    e(scmp("s_cmp_lg_u32", s_w, 0)); e(raw("s_cbranch_scc1 %s" % lab, rd=["scc"]))
    e(salu("s_lshl_b32", s_t0, s_qb, 2))
    if off_s_expr_add: e(salu("s_add_u32", s_t0, s_t0, off_s_expr_add))
    e(valu("v_mov_b32", v_t, 1))
    e(raw("s_mov_b64 exec, 1", "salu", wr=["exec"]))
    e(raw("buffer_atomic_add %s, off, %s, %s sc1" % (v_t, S_DBG, s_t0)))
    e(raw("s_mov_b64 exec, -1", "salu", wr=["exec"]))
    em.label(lab)
QS = math.log2(math.e) / math.sqrt(128.0)
vqs = V(40, 2); vqw = V(42)
e(valu("v_mov_b32", vqs[0], hx(f2u(QS))))
e(valu("v_and_b32", v_t, 15, v_lane)); e(valu("v_bfe_u32", vqw, v_lane, 5, 1)); e(valu("v_lshl_add_u32", v_t, vqw, 4, v_t)); e(valu("v_lshlrev_b32", v_t, 4, v_t))
e(valu("v_bfe_u32", vqw, v_lane, 4, 1)); e(valu("v_lshl_add_u32", vqw, vqw, 3, v_t))
e(salu("s_lshl_b32", s_t1, s_w, 14)); e(valu("v_add_u32", vqw, s_t1, vqw))
for blk in range(8):
    for qb in range(4):
        a_ = v_acc[((blk * 4 + qb) * 4, 4)]
        t = V(64 + 2 * ((blk * 4 + qb) % 8), 2)
        for k in range(2): e(valu("v_pk_mul_f32", a_[(2 * k, 2)], a_[(2 * k, 2)], vqs, mod="op_sel_hi:[1,0]"))
        for k in range(2): e(valu("v_cvt_pk_bf16_f32", t[k], a_[2 * k], a_[2 * k + 1]))
        if len(em.lgq) >= 7: em.wait(lg=em.lgq[-7])
        e(dswrite("ds_write_b64", vqw, t, (qb * 4 + (blk >> 1)) * 1024 + (blk & 1) * 512))
em.wait(lg0=True)
for f in range(16):
    e(dsread("ds_read_b128", a_Q[(4 * f, 4)], v_wl, f * 1024))
    if f == 7: pass
vx, vy, vz = V(96), V(97), V(98)
e(salu("s_lshl_b32", s_t1, s_w, 8))
dma_voffs(v_dA, 1024, s_t1, True)
em.label("L_att_start")
for i in range(64): e(valu("v_mov_b64", v_acc[(2 * i, 2)], 0))
for i in range(4): e(valu("v_mov_b32", v_l0[i], 0)); e(valu("v_mov_b32", v_l1[i], 0))
em.wait(vm0=True, lg0=True)
e(raw("s_barrier"))
e(scmp("s_cmp_lg_u32", s_retry, 0)); e(raw("s_cbranch_scc1 L_sigH", rd=["scc"]))
signal(HC_OFF, "L_sigH")
if DUMP == "q": dump_regs([a_Q[i] for i in range(64)])
stamp()

def Qf(qb, ds): return a_Q[((qb * 4 + ds) * 4, 4)]
def Of(db, qb): return v_acc[((db * 4 + qb) * 4, 4)]
def fr(f): return a_ring[((f % 8) * 4, 4)]
def kslot(par): return 16384 if par == 0 else 0
def vslot(par): return 0 if par == 0 else 16384
def frag_reads(par, f):
    if f >= 32: par ^= 1; f -= 32
    d = fr(f)
    if f < 8 or 16 <= f < 24:
        kb = (f >> 2) if f < 8 else 2 + ((f - 16) >> 2)
        return [dsread("ds_read_b128", d, v_ka[f & 3], kslot(par) + kb * 4096)]
    ks2 = 0 if f < 16 else 1
    db = f & 7
    return [dsread("ds_read_b64_tr_b16", d[(2 * h, 2)], v_va[db], vslot(par) + ks2 * 8192 + h * 4096) for h in range(2)]
def read_sched(g):
    r = []
    if g + 3 < 24 or g >= 29: r.append(g + 3)
    if 19 <= g <= 26: r.append(g + 5)
    return r
def sm_val(g, k):
    if 7 <= g <= 22: b = 1; n = 2 * (g - 7) + k
    else: b = 0; n = 2 * ((g - 23) % 32) + k
    kb, qb, r = n >> 4, (n >> 2) & 3, n & 3
    return b, qb, kb, r
def sm_items(g):
    ex, ad = [], []
    for k in range(2):
        b, qb, kb, r = sm_val(g, k)
        x = v_S[b][qb * 8 + kb * 4 + r]
        l = (v_l1 if b else v_l0)[qb]
        ex.append(valu("v_exp_f32", x, x)); ad.append(valu("v_add_f32", l, l, x))
    b, qb, kb, r = sm_val((g - 1) % 32, 0)
    cv = valu("v_cvt_pk_bf16_f32", v_S[b][qb * 8 + kb * 2 + (r >> 1)], v_S[b][qb * 8 + kb * 4 + r], v_S[b][qb * 8 + kb * 4 + r + 1])
    return ex, ad, cv
def att_dma(par, g):
    if g >= 29: k = g - 29; sp = par
    elif g <= 4: k = g + 3; sp = par ^ 1
    else: return [], None
    sal = []
    if k == 0: sal = [salu("s_add_u32", "m0", s_m0b, 4 * 16384 + kslot(sp))]
    if k == 4: sal = [salu("s_add_u32", "m0", s_m0b, vslot(sp))]
    if k < 4: return sal, dma(v_kd[k], S_K, s_kK, k * 1024)
    return sal, dma(v_vd[k & 1], S_V, s_kV, (k - 4) * 1024)
SIDE_FIRST = 11
class Lbl:
    def __init__(self, n): self.n = n
    def __call__(self): em.label(self.n); return []
class LoopStamp:
    def __init__(self, k, par): self.k, self.par = k, par
    def __call__(self):
        k = self.k
        e(raw("s_memtime %s" % S(68 + 2 * k, 2), "other", wr=[S(68 + 2 * k, 2)]))
        if k == 2:
            e(raw("s_waitcnt lgkmcnt(0)", "wait")); em._retire(em.lgq, 0)
            for i in range(3): e(valu("v_writelane_b32", v_c, S(68 + 2 * i), i, rmw=True))
            e(salu("s_lshl_b32", S(74), S(2), 2)); e(salu("s_add_u32", S(74), S(74), s_w)); e(salu("s_lshl_b32", S(74), S(74), 4))
            e(salu("s_sub_u32", S(74), S(74), s_cnt)); e(salu("s_add_u32", S(74), S(74), 16)); e(salu("s_lshl_b32", S(74), S(74), 5))
            e(salu("s_add_u32", S(74), S(74), (1 << 20) + 16 * self.par))
            e(raw("s_mov_b64 exec, 7", "salu", wr=["exec"]))
            e(valu("v_lshlrev_b32", v_t, 2, v_lane))
            e(bstore(v_c, v_t, S_DMP, S(74), off=0))
            e(raw("s_mov_b64 exec, -1", "salu", wr=["exec"]))
            e(valu("v_lshlrev_b32", v_t, 7, v_lane))
        return []
s_pf = [S(16, 2), S(18, 2), S(24, 2), S(26, 2)]
s_pfH = S(28, 2)
s_fo = S(3)
v_tch, v_flag = V(3), V(0)
xtok = []; lastdma = [None]
ROT = int(os.environ.get('ROT', '10'))
ftok = {}
def att_group(par, g, do_mfma=True, do_mem=True, do_cvt=True, last=False):
    ex, ad, cv = sm_items(g)
    mem = []
    sal = []
    if do_mem:
        for f in read_sched(g):
            r = frag_reads(par, f); mem += r; ftok[f % 32] = r
        sal, d = att_dma(par, g)
        if d is not None: mem.append(d)
    if do_mem and par == 0 and g == 5:
        mem.append(I("global_load_dword %s, %s, %s" % (v_flag, v_tch, s_pf[0]), "vmem", rd=v_tch.regs() + s_pf[0].regs(), wr=[])); xtok.append(mem[-1])
    if do_mem and par == 0 and g == 6:
        mem.append(I("buffer_load_dword %s, off, %s, %s sc1" % (v_flag, S_DBG, s_fo), "vmem", rd=S_DBG.regs() + s_fo.regs(), wr=[])); xtok.append(mem[-1])
    if do_mem and par == 0 and g in (8, 9, 10): sal = sal + [scmp("s_cmp_le_u32", s_cnt, ROT), salu("s_cselect_b64", s_pf[g - 8], s_pf[g - 7], s_pf[g - 8], scc_w=False, scc_r=True)]
    if do_mem and g == 4: lastdma[0] = d
    post0 = []
    if do_mem and do_mfma and par == 1 and g == 30: post0 = [valu("v_readfirstlane_b32", s_t0, v_flag)]
    if do_mem and do_mfma and par == 1 and g == 31: sal = sal + [scmp("s_cmp_lt_u32", s_cnt, ROT), salu("s_cselect_b32", s_t0, s_t0, 0, scc_w=False, scc_r=True), scmp("s_cmp_ge_u32", s_t0, 8), salu("s_cselect_b64", s_pf[3], s_pfH, s_pf[3], scc_w=False, scc_r=True)]
    gaps = [[], [], [], []]
    if g == 29 and do_mem:
        if STAMP == 2 and do_mfma: gaps[0] += [LoopStamp(0, par)]
        gaps[0] += [Wait(lg0=True, vm0=True) if (par == 1 or not do_mfma) else Wait(lg0=True, vm=lastdma[0])]
        if STAMP == 2 and do_mfma: gaps[0] += [LoopStamp(1, par)]
        gaps[0] += [raw("s_barrier")]
        if STAMP == 2 and do_mfma: gaps[0] += [LoopStamp(2, par)]
    gaps[0] += sal
    if g == 6 and do_mem: gaps[0].append(salu("s_add_u32", s_kK, s_kK, 16384))
    if g == 7 and do_mem: gaps[0].append(salu("s_add_u32", s_kV, s_kV, 16384))
    if g == 23 and par == 1 and do_mfma:
        gaps[0] += [valu("v_mov_b32", v_lsave[i], v_l0[i]) for i in range(4)]
    if len(mem) > 2: gaps[0].append(mem[2])
    gaps[0].append(ex[0])
    if len(mem) > 0: gaps[1].append(mem[0])
    if len(mem) == 0 and do_cvt: gaps[1].append(cv)
    gaps[1].append(ad[0])
    gaps[1] += post0
    if do_mem: gaps[2].append(Wait(lg=ftok.get((g + 1) % 32)))
    if last and g == 30: gaps[2].append(salu("s_sub_u32", s_cnt, s_cnt, 1))
    gaps[2].append(ex[1])
    if len(mem) > 1: gaps[3].append(mem[1])
    if len(mem) > 0 and do_cvt: gaps[3].append(cv)
    gaps[3].append(ad[1])
    for qb in range(4):
        if do_mfma:
            if g < 8 or 16 <= g < 24:
                b = 1 if g < 8 else 0
                kb, ds = (g >> 2) & 1, g & 3
                d = v_S[b][(qb * 8 + kb * 4, 4)]
                e(mfma(d, fr(g), Qf(qb, ds), v_negm[(qb * 4, 4)] if ds == 0 else d))
            else:
                b = 0 if g < 16 else 1
                e(mfma(Of(g & 7, qb), fr(g), v_S[b][(qb * 8, 4)], Of(g & 7, qb)))
        else:
            if qb & 1: e(nop(0))
        for it in gaps[qb]: e(it)

for it in range(3):
    e(salu("s_add_u32", s_t0, s_w, 4 * it))
    e(salu("s_sub_u32", s_t1, s_t0, 2)); e(salu("s_min_u32", s_t1, s_t1, 6)); e(salu("s_lshl_b32", s_t1, s_t1, 13))
    e(salu("s_mul_i32", s_t2, s_qb, 57344, scc_w=False)); e(salu("s_add_u32", s_t1, s_t1, s_t2))
    e(salu("s_add_u32", s_pf[it][0], S_WD[0], s_t1)); e(salu("s_addc_u32", s_pf[it][1], S_WD[1], 0, scc_r=True))
    if it == 0:
        e(scmp("s_cmp_ge_u32", s_w, 2)); e(raw("s_cbranch_scc1 L_pf_wd", rd=["scc"]))
        e(salu("s_lshl_b32", s_t1, s_qb, 14)); e(salu("s_lshl_b32", s_t2, s_w, 13)); e(salu("s_add_u32", s_t1, s_t1, s_t2))
        e(salu("s_add_u32", s_pf[0][0], S_WO[0], s_t1)); e(salu("s_addc_u32", s_pf[0][1], S_WO[1], 0, scc_r=True))
        em.label("L_pf_wd")
e(raw("s_getpc_b64 %s" % s_pf[3], "salu", wr=[s_pf[3]]))
em.label("L_pc1")
e(salu("s_lshl_b32", s_t0, s_w, 13)); e(salu("s_add_u32", s_t0, s_t0, "L_tail-L_pc1")); e(salu("s_min_u32", s_t0, s_t0, "L_code_end-L_pc1-8192"))
e(salu("s_add_u32", s_pf[3][0], s_pf[3][0], s_t0)); e(salu("s_addc_u32", s_pf[3][1], s_pf[3][1], 0, scc_r=True))
e(salu("s_lshl_b32", s_t0, s_cg, 2)); e(salu("s_add_u32", s_t0, s_t0, s_w)); e(salu("s_mul_i32", s_t0, s_t0, 7168, scc_w=False)); e(salu("s_min_u32", s_t0, s_t0, 229376 - 8192))
e(salu("s_add_u32", s_pfH[0], S_HC[0], s_t0)); e(salu("s_addc_u32", s_pfH[1], S_HC[1], 0, scc_r=True))
e(valu("v_lshlrev_b32", v_tch, 7, v_lane))
e(salu("s_lshl_b32", s_fo, s_cq, 2)); e(salu("s_add_u32", s_fo, s_fo, HC_OFF))
pr = [dsread("ds_read_b128", fr(f), v_ka[f & 3], (f >> 2) * 4096) for f in range(8)]
for r in pr: e(r)
e(scmp("s_cmp_lg_u32", s_retry, 0)); e(raw("s_cbranch_scc1 L_have_max", rd=["scc"]))
for i in range(16): e(valu("v_mov_b32", v_negm[i], 0))
em.label("L_have_max")
for f in range(8):
    em.wait(lg=pr[f])
    for qb in range(4):
        d = v_S[0][(qb * 8 + (f >> 2) * 4, 4)]
        e(mfma(d, fr(f), Qf(qb, f & 3), v_negm[(qb * 4, 4)] if (f & 3) == 0 else d))
e(salu("s_mov_b32", s_kK, 16384 + 8192, scc_w=False)); e(salu("s_mov_b32", s_kV, 16384, scc_w=False)); e(salu("s_mov_b32", s_cnt, 16, scc_w=False))
e(scmp("s_cmp_lg_u32", s_retry, 0)); e(raw("s_cbranch_scc1 L_have_max2", rd=["scc"]))
e(nop(3))
mx = [V(96 + i) for i in range(4)]; mt = [V(100 + i) for i in range(4)]
for qb in range(4): e(valu("v_max3_f32", mx[qb], v_S[0][qb * 8], v_S[0][qb * 8 + 1], v_S[0][qb * 8 + 2]))
for qb in range(4): e(valu("v_max3_f32", mx[qb], mx[qb], v_S[0][qb * 8 + 3], v_S[0][qb * 8 + 4]))
for qb in range(4): e(valu("v_max3_f32", mx[qb], mx[qb], v_S[0][qb * 8 + 5], v_S[0][qb * 8 + 6]))
for qb in range(4): e(valu("v_max_f32", mx[qb], mx[qb], v_S[0][qb * 8 + 7]))
red4("v_max_f32", mx, mt)
for qb in range(4):
    for k in range(4): e(valu("v_sub_f32", v_negm[qb * 4 + k], 0, mx[qb]))
for qb in range(4):
    for k in range(8): e(valu("v_sub_f32", v_S[0][qb * 8 + k], v_S[0][qb * 8 + k], mx[qb]))
em.label("L_have_max2")
e(nop(7))
for g in range(23, 29): att_group(1, g, do_mfma=False, do_mem=False, do_cvt=(g != 23))
stamp(); diag()
for g in range(29, 32): att_group(1, g, do_mfma=False, do_mem=True)
pro_end = len(em.out)
em.directive(".p2align 6")
em.label("L_att_loop")
def body():
    for par in range(2):
        for g in range(32): att_group(par, g, last=(par == 1))
b0 = len(em.out)
body()
b1 = len(em.out)
e(scmp("s_cmp_lg_u32", s_cnt, 0)); e(raw("s_cbranch_scc1 L_att_loop", rd=["scc"]))
b2 = len(em.out)
body()
second = em.out[b2:]; del em.out[b2:]
assert [i.text for i in second] == [i.text for i in em.out[b0:b1]], "loop not in steady state"
loop_probs = check_hazards(em.out[b1 - 40:b2] + second[:60], "loop-wrap")
stamp()

em.label("L_tail")
diag()
v_ring2 = V(64, 32); v_B2 = V(96, 32)
def hreg(kk, qb): return A(64 + (kk % 12) * 16 + qb * 4, 4)
XY = int(os.environ.get("XY", "0"))
def mh(m): return ((m & 15), m >> 4) if XY else (m >> 1, m & 1)
P2 = 2
def s2_dma(m):
    p = (m + P2) % 6
    if m < 32:
        s, h = mh(m)
        return [m0set(p), salu("s_mov_b32", s_off, s * 32 * 1024 + 128 * h, scc_w=False)], [dma(v_dA[j], S_WO, s_off, j * 1024) for j in range(4)]
    if m < 46:
        return [m0set(p), salu("s_mov_b32", s_off, (m - 32) * 32 * 1024, scc_w=False)], [dma(v_dB[j], S_WD, s_off, j * 1024) for j in range(4)]
    return None
dtok2 = {}
post_v = []
for m in range(0, 6):
    sa, dm = s2_dma(m); post_v.append(sa); post_v += dm; dtok2[m] = dm[3]
pv = [0]
def post_issue(n):
    k = 0
    while k < n and pv[0] < len(post_v):
        it = post_v[pv[0]]; pv[0] += 1
        e(it)
        if not isinstance(it, list): k += 1
post_issue(4)
lt = [V(100 + i) for i in range(4)]
for qb in range(4): e(valu("v_add_f32", v_l1[qb], v_l1[qb], v_lsave[qb]))
red4("v_add_f32", [v_l1[i] for i in range(4)], lt)
e(salu("s_mov_b32", s_t0, hx(f2u(2.0 ** 30)), scc_w=False))
e(valu("v_add_f32", lt[1], v_l1[0], v_l1[1])); e(valu("v_add_f32", lt[2], v_l1[2], v_l1[3])); e(valu("v_add_f32", lt[1], lt[1], lt[2]))
e(valu("v_cmp_nge_f32", "vcc", s_t0, lt[1]))
rinv = [V(104 + 2 * i, 2) for i in range(4)]
for qb in range(4): e(valu("v_rcp_f32", rinv[qb][0], v_l1[qb]))
e(salu("s_mov_b64", s_pair, "vcc", scc_w=False))
post_issue(4)
for i in range(4):
    for qb in range(4):
        t = Of(2 * i, qb)
        for b in range(2):
            o = Of(2 * i + b, qb)
            for k in range(2): e(valu("v_pk_mul_f32", o[(2 * k, 2)], o[(2 * k, 2)], rinv[qb], mod="op_sel_hi:[1,0]"))
        if DUMP != "o":
            for b in range(2):
                o = Of(2 * i + b, qb)
                for k in range(2): e(valu("v_cvt_pk_bf16_f32", t[2 * b + k], o[2 * k], o[2 * k + 1]))
            if i == 0 and qb == 0:
                e(scmp("s_cmp_eq_u64", s_pair, 0)); e(raw("s_cbranch_scc1 L_nomark", rd=["scc"]))
                e(valu("v_mov_b32", t[0], hx(MARK)))
                em.label("L_nomark")
            if len(em.lgq) >= 12: em.wait(lg=em.lgq[-12])
            e(dswrite("ds_write_b128", v_wl, t, (i * 4 + qb) * 1024))
        post_issue(1)
post_issue(100)
if DUMP == "o": dump_regs([v_acc[i] for i in range(128)])
vm_ = V(56); vma = V(57)
e(valu("v_and_b32", vma, 3, v_lane)); e(valu("v_lshlrev_b32", vma, 14, vma))
e(salu("s_mov_b32", s_cnt, 0, scc_w=False))
em.label("L_pollH")
e(valu("v_readfirstlane_b32", s_t0, v_flag)); e(salu("s_mul_i32", s_hb, s_w, 14 * 4096, scc_w=False)); e(nop(1))
e(scmp("s_cmp_ge_u32", s_t0, 8)); e(raw("s_cbranch_scc1 L_pollH_done", rd=["scc"]))
e(salu("s_add_u32", s_cnt, s_cnt, 1)); e(scmp("s_cmp_ge_u32", s_cnt, 50000)); e(raw("s_cbranch_scc1 L_pollH_done", rd=["scc"]))
e(raw("s_sleep 4")); e(raw("buffer_load_dword %s, off, %s, %s sc1" % (v_flag, S_DBG, s_fo))); e(raw("s_waitcnt vmcnt(0)")); e(raw("s_branch L_pollH"))
em.label("L_pollH_done")
em.wait(lg0=True)
e(raw("s_barrier"))
stamp()
mk = e(dsread("ds_read_b32", vm_, vma, 0))
class FbCheck:
    def __call__(self):
        em.wait(lg=mk)
        e(valu("v_cmp_eq_u32", "vcc", hx(MARK), vm_))
        e(scmp("s_cmp_lg_u32", s_retry, 0)); e(raw("s_cbranch_scc1 L_nofb", rd=["scc"]))
        e(nop(1))
        e(raw("s_cbranch_vccnz L_fallback", rd=["vcc"]))
        em.label("L_nofb")
        return []

def s2_acc(m, u, qb):
    if m < 32: return v_acc[(((mh(m)[1] * 4 + u) * 4 + qb) * 4, 4)], mh(m)[0] == 0
    return a_F[((u * 4 + qb) * 4, 4)], m == 32
def bsel(m): return (m & 1) if XY else ((m >> 1) & 1)
def s2_B(m, qb):
    if m < 32: return v_B2[(bsel(m) * 16 + qb * 4, 4)]
    return hreg(m - 32, qb)
def oread(m, qb): return dsread("ds_read_b128", v_B2[(bsel(m) * 16 + qb * 4, 4)], v_lin, (mh(m)[0] * 4 + qb) * 1024)
extra = {-1: [(0, oread(0, qb), 1) for qb in range(4)] + [(0, FbCheck(), 0)]}
for m in range(1, 32):
    if XY:
        rr = [oread(m, qb) for qb in range(4)]
        for qb in range(4): extra.setdefault(4 * (m - 1) + (qb >> 1), []).append((2 + (qb & 1), rr[qb], 1))
        extra.setdefault(4 * m - 1, []).append((2, Wait(lg=rr), 0))
    elif (m & 1) == 0:
        for qb in range(4): extra.setdefault(4 * (m - 2) + 1 + qb, []).append((2, oread(m, qb), 1))
class LateWait:
    def __init__(self, f): self.f = f
    def __call__(self): return Wait(vm=self.f())
vxf = V(40, 8); vxa = V(48); vpoll = V(49); vfw = V(50)
vx, vy, vz = V(52), V(53), V(54)
save = em.out; em.out = []
for k in range(8): e(valu("v_accvgpr_read_b32", vxf[k], a_x[k]))
e(salu("s_mul_i32", s_t1, s_w, 448 * 1024, scc_w=False)); e(salu("s_lshl_b32", s_t3, s_cg, 7)); e(salu("s_add_u32", s_t1, s_t1, s_t3))
dma_voffs(v_dB, 1024, s_t1, True)
xaddr(vxa, vx)
e(valu("v_and_b32", V(51), 7, v_lane)); e(valu("v_lshlrev_b32", V(51), 2, V(51)))
e(salu("s_lshl_b32", s_t0, s_w, 12)); e(valu("v_add_u32", vfw, s_t0, v_lin))
e(salu("s_lshl_b32", s_t3, s_w, 4)); e(salu("s_add_u32", s_t3, s_t3, s_g)); e(salu("s_lshl_b32", s_t3, s_t3, 13))
early = em.out; em.out = save
class Seq:
    kind = "vmem"
    def __init__(self, l): self.l = l
    def __call__(self): return self.l
hld = {}; htok = {}
for kk in range(14):
    hld[kk] = [bload(hreg(kk, qb), v_lin, S_HC, s_hl, off=qb * 1024, mod="sc1") for qb in range(4)]
    htok[kk] = hld[kk][3]
    extra.setdefault(4 * (32 + kk) - 1, []).append((2, LateWait(lambda kk=kk: htok[kk]), 0))
hseq = []
for kk in range(14):
    for qb in range(4):
        hseq.append(Seq([salu("s_add_u32", s_hl, s_hb, kk * 4096), hld[kk][qb]]))
NPRE = int(os.environ.get("NPRE", "12")); HG0 = int(os.environ.get("HG0", "70")); HGS = int(os.environ.get("HGS", "4"))
for k in range(NPRE): extra.setdefault(HG0 + HGS * k, []).append((2, hseq[k], 1))
def sreg(ip, qb, odd=0): return v_acc[(((2 * ip + odd) * 4 + qb) * 4, 4)]
sp = []; spst = []
HPS = int(os.environ.get("HPS", "3")); hk = NPRE
for ip in range(4):
    for qb in range(4):
        t = sreg(ip, qb)
        for b in range(2):
            o = sreg(ip, qb, b)
            for k in range(2): sp.append(valu("v_cvt_pk_bf16_f32", t[2 * b + k], o[2 * k], o[2 * k + 1]))
        if (qb & 1) == 0: sp.append(salu("s_add_u32", s_t1, s_t3, (ip >> 1) * 65536 + (qb >> 1) * 4096))
        st = bstore(t, v_lin, S_SP, s_t1, off=(qb & 1) * 2048 + (ip & 1) * 1024, mod=os.environ.get("ST_MOD", "sc1").replace("plain", ""))
        if os.environ.get("ST_NONE") and not (ip == 3 and qb == 3): st = nop(0)
        sp.append(st); spst.append(st)
        if not (XY and ip < 2):
            for _ in range(HPS * (2 if XY else 1)):
                if hk < 48: sp.append(hseq[hk]); hk += 1
for k in range(hk, 48): sp.append(hseq[k])
for k in range(48, 56): extra.setdefault(140 + (k - 48), []).append((2, hseq[k], 1))
class SigS:
    def __call__(self):
        stamp(); em.wait(vm=spst[-1]); stamp(); e(raw("s_barrier"))
        e(scmp("s_cmp_lg_u32", s_w, 0)); e(raw("s_cbranch_scc1 L_sigS", rd=["scc"]))
        e(valu("v_mov_b32", v_t, 1))
        e(raw("s_mov_b64 exec, 1", "salu", wr=["exec"]))
        e(raw("buffer_store_dword %s, off, %s, %s sc1" % (v_t, S_FL, s_myfl)))
        e(raw("s_mov_b64 exec, -1", "salu", wr=["exec"]))
        em.label("L_sigS")
        return []
G_SIG = int(os.environ.get("G_SIG", "160")); G_POLL = int(os.environ.get("G_POLL", "172")); G_CHK = int(os.environ.get("G_CHK", "178"))
extra.setdefault(G_SIG, []).append((0, SigS(), 0))
vpa = V(51)
ptok = bload(vpoll, vpa, S_FL, s_t2, n=1, mod="sc1")
extra.setdefault(G_POLL, []).append((1, [salu("s_lshl_b32", s_t2, s_cq, 7)], 0))
extra.setdefault(G_POLL, []).append((2, ptok, 1))
def spl(gp, i): return sreg(gp >> 1, (gp & 1) * 2 + i, 1)
sl = []
class ChkS:
    def __call__(self):
        em.wait(vm=ptok)
        stamp()
        e(salu("s_mov_b32", s_cnt, 0, scc_w=False))
        em.label("L_pollS")
        e(valu("v_cmp_ne_u32", "vcc", 1, vpoll)); e(nop(2))
        e(raw("s_cbranch_vccz L_pollS_done", rd=["vcc"]))
        e(salu("s_add_u32", s_cnt, s_cnt, 1)); e(scmp("s_cmp_ge_u32", s_cnt, 50000)); e(raw("s_cbranch_scc1 L_pollS_done", rd=["scc"]))
        e(raw("buffer_load_dword %s, %s, %s, %s offen sc1" % (vpoll, vpa, S_FL, s_t2))); e(raw("s_waitcnt vmcnt(0)")); e(raw("s_branch L_pollS"))
        em.label("L_pollS_done")
        stamp()
        e(salu("s_lshl_b32", s_t0, s_cg, 16)); e(salu("s_lshl_b32", s_t1, s_w, 11)); e(salu("s_add_u32", s_t0, s_t0, s_t1))
        for gp in range(8):
            for i in range(2): sl.append(e(bload(spl(gp, i), v_lin, S_SPC, s_t0, off=i * 1024, mod="sc1")))
            if gp < 7: e(salu("s_add_u32", s_t0, s_t0, 8192))
        return []
if G_CHK < 184: extra.setdefault(G_CHK, []).append((0, ChkS(), 0))
if STAMP: extra.setdefault(128, []).append((0, Stamp(), 0))
class Diag:
    def __call__(self): diag(); return []
if DIAG: extra.setdefault(128, []).append((0, Diag(), 0))
class Paced(VStream):
    def has(self, g): return self.i < len(self.items) and g >= self.start and self.i <= (g - self.start + 1) * len(self.items) // max(1, self.end - self.start)
    def quota(self, g): return 99 if g >= self.start else 0
class Multi:
    def __init__(self, *l): self.l = list(l)
    def cur(self, g):
        for x in self.l:
            if x.i < len(x.items): return x
        return self.l[-1]
    def has(self, g): return self.cur(g).has(g)
    def peek(self): return self.cur(0).peek()
    def pop(self): return self.cur(0).pop()
    def quota(self, g): return self.cur(g).quota(g)
    def used_quota(self): self.cur(0).used_quota()
SP_END = int(os.environ.get("SP_END", "146"))
if XY:
    half = sp.index(spst[7]) + 1
    vs = Multi(VStream(early, 2, 40), Paced(sp[:half], int(os.environ.get("X_START", "67")), int(os.environ.get("X_END", "75"))), Paced(sp[half:], 130, SP_END))
else:
    vs = Multi(VStream(early, 2, 40), Paced(sp, 130, SP_END))
class ChkEarly:
    def __call__(self):
        assert vs.l[0].i == len(vs.l[0].items); return []
extra.setdefault(59, []).append((0, ChkEarly(), 0))
run_stream(46, s2_dma, dtok2, s2_acc, s2_B, extra, vs, pos0=P2, ring=v_ring2)
stamp(); diag()
e(nop(6))
for qb in range(4):
    for u in range(4):
        if len(em.lgq) >= 12: em.wait(lg=em.lgq[-12])
        e(dswrite("ds_write_b128", vfw, a_F[((u * 4 + qb) * 4, 4)], qb * 16384 + u * 1024))
if G_CHK >= 184: ChkS()()
em.wait(lg0=True)
e(raw("s_barrier"))
def frr(ws_, u): return sreg(ws_, u, 0)
for ws_ in range(4):
    for u in range(4):
        if len(em.lgq) >= 14: em.wait(lg=em.lgq[-14])
        e(dsread("ds_read_b128", frr(ws_, u), v_wl, ws_ * 4096 + u * 1024))
em.wait(lg0=True)
v_fr = V(96, 16); vE = V(64, 16); vs_ = V(80, 16)
for u in range(4):
    for k in range(2):
        e(valu("v_pk_add_f32", frr(0, u)[(2 * k, 2)], frr(0, u)[(2 * k, 2)], frr(1, u)[(2 * k, 2)]))
        e(valu("v_pk_add_f32", frr(2, u)[(2 * k, 2)], frr(2, u)[(2 * k, 2)], frr(3, u)[(2 * k, 2)]))
for u in range(4):
    for k in range(2): e(valu("v_pk_add_f32", v_fr[(4 * u + 2 * k, 2)], frr(0, u)[(2 * k, 2)], frr(2, u)[(2 * k, 2)]))
for k in range(16): e(valu("v_mul_f32", vE[k], hx(f2u(-math.log2(math.e))), v_fr[k]))
for k in range(16): e(valu("v_exp_f32", vE[k], vE[k]))
for k in range(16): e(valu("v_add_f32", vE[k], "1.0", vE[k]))
for k in range(16): e(valu("v_rcp_f32", vE[k], vE[k]))
for k in range(16): e(valu("v_mul_f32", v_fr[k], v_fr[k], vE[k]))
for k in range(8):
    e(valu("v_lshlrev_b32", vE[2 * k], 16, vxf[k])); e(valu("v_and_b32", vE[2 * k + 1], "0xffff0000", vxf[k]))
for gp in range(8):
    em.wait(vm=sl[2 * gp + 1])
    for k in range(8):
        src = spl(gp, k >> 2)[k & 3]
        if gp == 0:
            e(valu("v_lshlrev_b32", vs_[2 * k], 16, src)); e(valu("v_and_b32", vs_[2 * k + 1], "0xffff0000", src))
        else:
            e(valu("v_lshlrev_b32", V(112 + 2 * (k & 3)), 16, src)); e(valu("v_and_b32", V(113 + 2 * (k & 3)), "0xffff0000", src))
            e(valu("v_pk_add_f32", vs_[(2 * k, 2)], vs_[(2 * k, 2)], V(112 + 2 * (k & 3), 2)))
if DUMP == "fin": dump_regs([vs_[i] for i in range(16)] + [v_fr[i] for i in range(16)])
for k in range(8): e(valu("v_pk_fma_f32", vE[(2 * k, 2)], vs_[(2 * k, 2)], v_fr[(2 * k, 2)], vE[(2 * k, 2)]))
for k in range(8): e(valu("v_cvt_pk_bf16_f32", vxf[k], vE[2 * k], vE[2 * k + 1]))
for u in range(4): e(bstore(vxf[(2 * u, 2)], vxa, S_OUT, 0, off=32 * u))
stamp(); diag_out()
em.label("L_end")
e(raw("s_endpgm"))
main_end = len(em.out)

em.lgq, em.vmq, em.pend = [], [], {}
em.label("L_fallback")
e(raw("s_waitcnt vmcnt(0) lgkmcnt(0)")); em._retire(em.vmq, 0); em._retire(em.lgq, 0)
e(salu("s_mov_b32", s_retry, 1, scc_w=False))
e(salu("s_mov_b32", s_kK, 0, scc_w=False))
fm = [V(40 + i) for i in range(4)]
for i in range(4): e(valu("v_mov_b32", fm[i], "0xff800000"))
em.label("L_fb_loop")
e(raw("s_barrier"))
e(salu("s_add_u32", "m0", s_m0b, 4 * 16384)); e(nop(0))
for j in range(4): e(dma(v_kd[j], S_K, s_kK, j * 1024))
em.wait(vm0=True)
e(raw("s_barrier"))
for kb in range(4):
    rr = [e(dsread("ds_read_b128", fr(ds), v_ka[ds], kb * 4096)) for ds in range(4)]
    em.wait(lg0=True)
    for ds in range(4):
        for qb in range(4):
            d = v_S[0][(qb * 4, 4)]
            e(mfma(d, fr(ds), Qf(qb, ds), 0 if ds == 0 else d))
    e(nop(7))
    for qb in range(4):
        e(valu("v_max3_f32", fm[qb], fm[qb], v_S[0][qb * 4], v_S[0][qb * 4 + 1])); e(valu("v_max3_f32", fm[qb], fm[qb], v_S[0][qb * 4 + 2], v_S[0][qb * 4 + 3]))
    e(nop(2))
e(salu("s_add_u32", s_kK, s_kK, 16384)); e(scmp("s_cmp_lt_u32", s_kK, 524288)); e(raw("s_cbranch_scc1 L_fb_loop", rd=["scc"]))
red4("v_max_f32", fm, [V(44 + i) for i in range(4)])
for qb in range(4):
    for k in range(4): e(valu("v_sub_f32", v_negm[qb * 4 + k], 0, fm[qb]))
e(raw("s_barrier"))
for m in (64, 65, 66):
    sa, dm = s1_dma(m); e(sa)
    for d in dm: e(d)
e(raw("s_branch L_att_start"))
em.label("L_code_end")
e(raw("s_endpgm"))

probs = check_hazards(em.out, "main") + loop_probs
for p in probs: print("; HAZARD", p, file=sys.stderr)
assert not probs

hdr = open(os.path.join(os.path.dirname(os.path.abspath(__file__)), "header.txt")).read()
print(hdr.rstrip())
print("; @launch grid=(256,1,1) block=(256,1,1) lds=163840")
print('.amdgcn_target "amdgcn-amd-amdhsa--gfx950"\n.text\n.globl %s\n.p2align 8\n.type %s,@function\n%s:' % (KN, KN, KN))
print(em.text())
print('.section .rodata,"a"\n.p2align 6\n.amdhsa_kernel %s' % KN)
print("  .amdhsa_next_free_vgpr 512\n  .amdhsa_next_free_sgpr 102\n  .amdhsa_accum_offset 256\n  .amdhsa_group_segment_fixed_size 0\n  .amdhsa_kernarg_size 96\n  .amdhsa_user_sgpr_count 2\n  .amdhsa_user_sgpr_kernarg_segment_ptr 1\n  .amdhsa_system_sgpr_workgroup_id_x 1\n.end_amdhsa_kernel")
```

```python
import sys, os, math, struct
from asmgen import *

KN = "recurrent_scan__gqa_block_cached__geglu_ffn__prompt_kernel"
DUMP = os.environ.get("DUMP", "")
STAMP = int(os.environ.get("STAMP", "0"))
GEL_END = int(os.environ.get("GEL_END", "228")); GEL_EXTRA = int(os.environ.get("GEL_EXTRA", "360"))

def f2u(x): return struct.unpack("<I", struct.pack("<f", x))[0]
def hx(x): return "0x%x" % (x & 0xffffffff)

S_X, S_K, S_V, S_WQ, S_WO, S_WG, S_WU, S_WD, S_OUT, S_DBG, S_H, S_SP = [S(4 + 4 * i, 4) for i in range(12)]
s_g, s_qb, s_w = S(52), S(53), S(54)
s_t0, s_t1, s_t2, s_t3 = S(55), S(56), S(57), S(58)
s_m0b = S(59)
s_off = S(60)
s_cnt = S(61)
s_kK, s_kV = S(62), S(63)
s_retry = S(64)
s_h0, s_h1 = S(65), S(66)
s_hl = S(67); s_hb = S(78); s_myfl = S(79)
s_ka = S(68, 16); s_kb = S(84, 8)
s_pair = S(92, 2); s_pair2 = S(94, 2)
S_DMP = S(96, 4)
s_cq, s_cg = S(76), S(77)
S_HC = S(80, 4)
S_SPC = S(84, 4)
S_XC = S(88, 4)
s_st = S(68, 4)

v_tid, v_lane, v_lin, v_t = V(0), V(1), V(2), V(3)
v_tr = [V(4, 4), V(8, 4)]
v_dA, v_dB = V(12, 4), V(16, 4)
v_ka = V(20, 4); v_va = V(24, 8); v_kd = V(32, 4); v_vd = V(36, 2)
v_wl = V(38)
v_c = V(39)
v_l0, v_l1 = V(40, 4), V(44, 4)
v_lsave = V(16, 4)
v_negm = V(48, 16)
v_S = [V(64, 32), V(96, 32)]
v_acc = V(128, 128)
a_ring = A(128, 32)
a_B = A(160, 32)
a_Q = A(0, 64)
a_F = A(0, 64)
a_x = A(248, 8)

RING = 65536
MARK = 0x7fc17fc1
WS_SP = 8 << 20
WS_DUMP = 32 << 20
WS_FL = (7 << 20) + (512 << 10)
S_FL = S(4, 4)

em = Em()
e = em.e

def srd(dst, lo, hi, size, off_s=None):
    if off_s is None:
        e(salu("s_mov_b32", dst[0], lo, scc_w=False)); e(salu("s_mov_b32", dst[1], hi, scc_w=False))
    else:
        e(salu("s_add_u32", dst[0], lo, off_s)); e(salu("s_addc_u32", dst[1], hi, 0, scc_r=True))
    e(salu("s_mov_b32", dst[2], hx(size), scc_w=False)); e(salu("s_mov_b32", dst[3], "0x20000", scc_w=False))

DIAG = int(os.environ.get("DIAG", "0"))
HC_OFF = 128
diag_regs = [S(100, 2), S(70, 2), S(72, 2), S(74, 2), S(96, 2), S(98, 2), S(68, 2)] if DIAG == 1 else [S(100, 2), S(96, 2), S(98, 2), S(94, 2), S(70, 2), S(72, 2), S(74, 2), S(68, 2)]
diag_n = [0]
def diag(which=1):
    if not DIAG or (which != DIAG and which != 0): return
    k = diag_n[0]; diag_n[0] += 1
    e(raw("s_memrealtime %s" % diag_regs[k], "other", wr=[diag_regs[k]]))
    if k > 0: e(raw("s_waitcnt lgkmcnt(0)", "wait")); em._retire(em.lgq, 0)
AMP = os.environ.get("AMP")
def diag_out():
    if not DIAG: return
    diag(0)
    if AMP:
        k = int(AMP); last = diag_regs[diag_n[0] - 1]
        e(salu("s_sub_u32", s_t0, diag_regs[k][0], diag_regs[0][0])); e(salu("s_lshl_b32", s_t0, s_t0, 2))
        em.label("L_amp")
        e(raw("s_memrealtime s[56:57]")); e(raw("s_waitcnt lgkmcnt(0)"))
        e(salu("s_sub_u32", s_t1, s_t1, last[0])); e(scmp("s_cmp_lt_u32", s_t1, s_t0)); e(raw("s_cbranch_scc1 L_amp", rd=["scc"]))
        return
    e(scmp("s_cmp_lg_u32", s_w, 0)); e(raw("s_cbranch_scc1 L_end", rd=["scc"]))
    e(raw("s_mov_b64 exec, 1", "salu", wr=["exec"]))
    e(salu("s_not_b32", s_t0, diag_regs[0][0]))
    for k in range(diag_n[0]):
        e(valu("v_mov_b32", V(4 + k), s_t0 if k == 0 else diag_regs[k][0]))
        e(raw("buffer_atomic_umax %s, off, %s, 0 offset:%d sc1" % (V(4 + k), S_DBG, 4 * k)))
    e(valu("v_mov_b32", V(12), diag_regs[0][0]))
    e(raw("buffer_atomic_umax %s, off, %s, 0 offset:%d sc1" % (V(12), S_DBG, 4 * 9)))
stamp_n = [0]
def stamp():
    if not STAMP: return
    k = stamp_n[0]; stamp_n[0] += 1
    e(raw("s_memtime %s" % S(68, 2), "other", wr=[S(68, 2)]))
    e(raw("s_memrealtime %s" % S(70, 2), "other", wr=[S(70, 2)]))
    e(raw("s_waitcnt lgkmcnt(0)", "wait")); em._retire(em.lgq, 0)
    for i in range(4): e(valu("v_writelane_b32", v_c, S(68 + i), i, rmw=True))
    e(salu("s_lshl_b32", S(72), S(2), 2)); e(salu("s_add_u32", S(72), S(72), s_w)); e(salu("s_lshl_b32", S(72), S(72), 9))
    e(salu("s_mov_b64", S(74, 2), "exec", scc_w=False)); e(raw("s_mov_b64 exec, 15", "salu", wr=["exec"]))
    e(valu("v_lshlrev_b32", v_t, 2, v_lane))
    e(bstore(v_c, v_t, S_DMP, S(72), off=k * 16))
    e(raw("s_mov_b64 exec, %s" % S(74, 2), "salu", wr=["exec"]))
    e(valu("v_lshlrev_b32", v_t, 7, v_lane))

def dump_regs(regs, finish=True):
    em.wait(lg0=True, vm0=True)
    e(nop(7)); e(nop(7))
    n = len(regs)
    e(salu("s_lshl_b32", s_t0, S(2), 2)); e(salu("s_add_u32", s_t0, s_t0, s_w)); e(salu("s_mul_i32", s_t0, s_t0, n * 256, scc_w=False))
    e(valu("v_lshlrev_b32", v_t, 2, v_lane))
    for k, r in enumerate(regs):
        e(bstore(r, v_t, S_DMP, s_t0, off=0))
        e(salu("s_add_u32", s_t0, s_t0, 256))
        if k % 32 == 31: em.wait(vm0=True)
    em.wait(vm0=True)
    if finish: e(raw("s_endpgm"))

def red4(op, x, tmp):
    for sw in ("v_permlane32_swap_b32", "v_permlane16_swap_b32"):
        for a, t in zip(x, tmp): e(valu("v_mov_b32", t, a))
        if len(x) < 3: e(nop(1))
        for a, t in zip(x, tmp): e(valu(sw, a, t))
        for a, t in zip(x, tmp): e(valu(op, a, a, t))

e(scmp("s_cmp_ge_u32", S(2), 256)); e(raw("s_cbranch_scc1 L_end", rd=["scc"]))
diag(0)
i0 = e(I("s_load_dwordx16 %s, s[0:1], 0" % s_ka, "smem", wr=s_ka.regs()))
i1 = e(I("s_load_dwordx8 %s, s[0:1], 64" % s_kb, "smem", wr=s_kb.regs()))
vq, vG, vr, vc_, vx, vy, vz = [V(40 + i) for i in range(7)]
e(raw("s_getpc_b64 %s" % s_pair, "salu", wr=[s_pair]))
em.label("L_pc0")
e(valu("v_lshlrev_b32", vy, 7, v_tid))
e(I("global_load_dword %s, %s, %s" % (V(49), vy, s_pair), "vmem", rd=vy.regs() + s_pair.regs(), wr=V(49).regs()))
e(salu("s_and_b32", s_g, S(2), 7)); e(salu("s_lshr_b32", s_qb, S(2), 3))
e(valu("v_and_b32", v_lane, 63, v_tid))
e(valu("v_lshrrev_b32", v_t, 6, v_tid))
e(valu("v_lshlrev_b32", v_lin, 4, v_lane))
e(valu("v_readfirstlane_b32", s_w, v_t))
e(valu("v_and_b32", vq, 15, v_lane)); e(valu("v_lshrrev_b32", vG, 4, v_lane))
vxo = V(47)
e(valu("v_lshl_add_u32", vxo, v_t, 4, vq)); e(valu("v_lshlrev_b32", vxo, 10, vxo)); e(valu("v_lshl_add_u32", vxo, vG, 4, vxo))
e(salu("s_mul_i32", s_t1, s_g, 448, scc_w=False)); e(salu("s_and_b32", s_t1, s_t1, hx(~127)))
e(salu("s_mul_i32", s_t2, s_qb, 16 * 3584, scc_w=False)); e(salu("s_add_u32", s_t1, s_t1, s_t2))
e(valu("v_lshrrev_b32", vx, 2, v_lane)); e(valu("v_mul_u32_u24", vx, 3584, vx)); e(valu("v_and_b32", vz, 3, v_lane)); e(valu("v_lshl_add_u32", vx, vz, 7, vx))
e(scmp("s_cmp_lt_u32", s_w, 2)); e(raw("s_cbranch_scc1 L_warm_a", rd=["scc"]))
e(salu("s_lshl_b32", s_t1, s_qb, 4)); e(salu("s_lshl_b32", s_t2, s_w, 3)); e(salu("s_add_u32", s_t1, s_t1, s_t2)); e(salu("s_sub_u32", s_t1, s_t1, 16))
e(salu("s_lshl_b32", s_t1, s_t1, 13)); e(salu("s_lshl_b32", s_t2, s_g, 10)); e(salu("s_add_u32", s_t1, s_t1, s_t2))
e(valu("v_lshrrev_b32", vx, 3, v_lane)); e(valu("v_lshlrev_b32", vx, 13, vx)); e(valu("v_and_b32", vz, 7, v_lane)); e(valu("v_lshl_add_u32", vx, vz, 7, vx))
em.label("L_warm_a")
e(valu("v_add_u32", vx, s_t1, vx))
e(salu("s_lshl_b32", s_t0, s_qb, 16))
em.wait(lg0=True)
e(scmp("s_cmp_eq_u32", s_w, 0)); e(salu("s_cselect_b64", s_pair, s_ka[(12, 2)], s_ka[(14, 2)], scc_w=False, scc_r=True))
e(scmp("s_cmp_ge_u32", s_w, 2)); e(salu("s_cselect_b64", s_pair, s_ka[(6, 2)], s_pair, scc_w=False, scc_r=True))
e(I("global_load_dword %s, %s, %s" % (V(48), vx, s_pair), "vmem", rd=vx.regs() + s_pair.regs(), wr=V(48).regs()))
diag(2)
srd(S_X, s_ka[0], s_ka[1], 65536, s_t0)
v_xp = V(64, 64)
xl = []
for ks in range(16):
    xl.append(e(bload(v_xp[(4 * ks, 4)], vxo, S_X, 0, off=64 * ks)))
diag(2)
e(salu("s_lshr_b32", s_t2, s_qb, 3)); e(salu("s_lshl_b32", s_t3, s_g, 2)); e(salu("s_add_u32", s_t2, s_t2, s_t3))
e(salu("s_lshl_b32", s_t0, s_t2, 16))
srd(S_OUT, s_kb[2], s_kb[3], 65536, s_t0)
e(salu("s_lshl_b32", s_t1, s_g, 19))
srd(S_K, s_ka[2], s_ka[3], 524288, s_t1)
srd(S_V, s_ka[4], s_ka[5], 524288, s_t1)
srd(S_WO, s_ka[8], s_ka[9], 524288, s_t1)
srd(S_WQ, s_ka[6], s_ka[7], 4 << 20)
srd(S_WG, s_ka[12], s_ka[13], 1835008)
srd(S_WU, s_ka[14], s_ka[15], 1835008)
srd(S_WD, s_kb[0], s_kb[1], 1835008)
srd(S_DBG, s_kb[4], s_kb[5], 256)
e(salu("s_mul_i32", s_t1, s_qb, 229376, scc_w=False))
srd(S_H, s_kb[6], s_kb[7], 229376, s_t1)
e(salu("s_lshl_b32", s_t1, s_qb, 19)); e(salu("s_add_u32", s_t1, s_t1, hx(WS_SP)))
srd(S_SP, s_kb[6], s_kb[7], 524288, s_t1)
if DUMP or STAMP:
    e(salu("s_mov_b32", s_t1, hx(WS_DUMP), scc_w=False))
    srd(S_DMP, s_kb[6], s_kb[7], 200 << 20, s_t1)
e(salu("s_mov_b64", s_pair, S(90, 2), scc_w=False))
e(salu("s_lshl_b32", s_t0, s_t2, 16))
srd(S_XC, s_ka[0], s_ka[1], 65536, s_t0)
e(salu("s_mul_i32", s_t1, s_t2, 229376, scc_w=False))
srd(S_HC, s_pair[0], s_pair[1], 229376, s_t1)
e(salu("s_lshl_b32", s_t1, s_t2, 19)); e(salu("s_add_u32", s_t1, s_t1, hx(WS_SP)))
srd(S_SPC, s_pair[0], s_pair[1], 524288, s_t1)
e(salu("s_mov_b32", s_cq, s_t2, scc_w=False)); e(salu("s_and_b32", s_cg, s_qb, 7))
e(salu("s_mov_b32", s_t1, hx(WS_FL), scc_w=False))
srd(S_FL, s_pair[0], s_pair[1], 4096, s_t1)
e(salu("s_lshl_b32", s_myfl, s_qb, 7)); e(salu("s_lshl_b32", s_t1, s_g, 2)); e(salu("s_add_u32", s_myfl, s_myfl, s_t1))
e(salu("s_lshl_b32", s_m0b, s_w, 12)); e(salu("s_add_u32", s_m0b, s_m0b, RING))
e(salu("s_and_b32", s_t1, s_g, 1)); e(salu("s_lshl_b32", s_t1, s_t1, 2)); e(salu("s_add_u32", s_t1, s_t1, s_w))
e(scmp("s_cmp_eq_u32", s_w, 3)); e(salu("s_cselect_b32", s_t1, 3, s_t1, scc_w=False, scc_r=True))
e(salu("s_lshr_b32", s_t2, s_g, 1)); e(salu("s_mul_i32", s_t2, s_t2, 7, scc_w=False)); e(salu("s_add_u32", s_t1, s_t1, s_t2))
e(salu("s_lshl_b32", s_h0, s_t1, 13)); e(salu("s_add_u32", s_h1, s_h0, 4096))
e(salu("s_lshl_b32", s_t1, s_t1, 7))
e(salu("s_lshl_b32", s_t2, s_g, 2)); e(salu("s_add_u32", s_t2, s_t2, s_w)); e(salu("s_lshl_b32", s_t2, s_t2, 8))

def dma_voffs(dst, stride, colbase_s, perm):
    for j in range(4):
        e(valu("v_bfe_u32", vx, v_lane, 1, 2)); e(valu("v_bfe_u32", vy, v_lane, 4, 1))
        e(valu("v_xor_b32", vx, vx, vy))
        if j & 1: e(valu("v_xor_b32", vx, 2, vx))
        e(valu("v_and_b32", vy, 1, v_lane)); e(valu("v_lshlrev_b32", vy, 4, vy)); e(valu("v_lshl_add_u32", vx, vx, 5, vy))
        if not perm:
            e(valu("v_lshrrev_b32", vy, 3, v_lane)); rowadd = 8 * j
        else:
            e(valu("v_bfe_u32", vy, v_lane, 3, 2)); e(valu("v_bfe_u32", vz, v_lane, 5, 1)); e(valu("v_lshl_add_u32", vy, vz, 4, vy)); rowadd = 4 * j
        e(valu("v_mul_u32_u24", vy, stride, vy))
        e(valu("v_add3_u32", vx, vx, vy, colbase_s))
        e(valu("v_add_u32", dst[j], rowadd * stride - j * 1024, vx))

dma_voffs(v_dA, 3584, s_t1, False)
dma_voffs(v_dB, 8192, s_t2, False)

def m0set(p): return salu("s_add_u32", "m0", s_m0b, p * 16384)
def s1_dma(m):
    p = m % 6
    if m < 32:
        s, h = m >> 1, m & 1
        return [m0set(p), salu("s_mov_b32", s_off, s * 32 * 3584, scc_w=False)], [dma(v_dA[j], S_WU if h else S_WG, s_off, j * 1024) for j in range(4)]
    if m < 64:
        s, h = (m - 32) >> 1, m & 1
        return [m0set(p), salu("s_mov_b32", s_off, s * 32 * 8192 + 128 * h, scc_w=False)], [dma(v_dB[j], S_WQ, s_off, j * 1024) for j in range(4)]
    if m == 64:
        return [m0set(p), salu("s_mov_b32", s_off, 0, scc_w=False)], [dma(v_kd[j], S_K, s_off, j * 1024) for j in range(4)]
    if m == 65:
        return [m0set(p), salu("s_mov_b32", s_off, 8192, scc_w=False)], [dma(v_kd[j], S_K, s_off, j * 1024) for j in range(4)]
    if m == 66:
        return [m0set(p), salu("s_mov_b32", s_off, 0, scc_w=False)], [dma(v_vd[j & 1], S_V, s_off, j * 1024) for j in range(4)]
    return None
dtok = {}
ln_v = []
for m in range(6):
    sa, dm = s1_dma(m)
    ln_v.append(sa); ln_v += dm
    dtok[m] = dm[3]
def xaddr(dst, tmp):
    e(valu("v_and_b32", dst, 15, v_lane)); e(salu("s_lshl_b32", s_t0, s_w, 4)); e(valu("v_add_u32", dst, s_t0, dst)); e(valu("v_lshlrev_b32", dst, 10, dst))
    e(valu("v_lshrrev_b32", tmp, 4, v_lane)); e(valu("v_lshl_add_u32", dst, tmp, 3, dst)); e(salu("s_lshl_b32", s_t0, s_cg, 7)); e(valu("v_add_u32", dst, s_t0, dst))
vxs, vzero = V(50), V(51)
xaddr(vxs, vy)
e(valu("v_mov_b32", vzero, 0))
ln_v += [bload(a_x[(2 * u, 2)], vxs, S_XC, 0, off=32 * u, n=2) for u in range(4)]
ln_v.append([raw("s_mov_b64 exec, 1", "salu", wr=["exec"]), bstore(vzero, None, S_FL, s_myfl, mod="sc1"), raw("s_mov_b64 exec, -1", "salu", wr=["exec"])])
lv = [0]
def ln_issue(n=1):
    k = 0
    while k < n and lv[0] < len(ln_v):
        it = ln_v[lv[0]]; lv[0] += 1
        e(it)
        if not isinstance(it, list): k += 1
diag(2)
e(valu("v_bfe_u32", vr, v_lane, 2, 2)); e(valu("v_and_b32", vc_, 3, v_lane))
e(valu("v_lshlrev_b32", vx, 10, vG)); e(valu("v_lshl_add_u32", vx, vr, 7, vx)); e(valu("v_lshl_add_u32", vx, vc_, 3, vx)); e(valu("v_add_u32", vx, s_m0b, vx))
e(valu("v_lshrrev_b32", vy, 1, vr)); e(valu("v_and_b32", vz, 1, vG)); e(valu("v_lshl_add_u32", vy, vz, 1, vy))
for u in range(4):
    e(valu("v_xor_b32", vz, u, vy)); e(valu("v_lshl_add_u32", v_tr[0][u], vz, 5, vx)); e(valu("v_add_u32", v_tr[1][u], 3 * 16384, v_tr[0][u]))
e(valu("v_xor_b32", vy, vG, vq))
for ds in range(4):
    e(valu("v_xor_b32", vz, 4 * ds, vy)); e(valu("v_lshlrev_b32", vz, 4, vz)); e(valu("v_lshl_add_u32", vz, vq, 8, vz)); e(valu("v_add_u32", v_ka[ds], RING + 4 * 16384, vz))
e(valu("v_lshl_add_u32", vx, vG, 2, vr)); e(valu("v_and_b32", vy, 7, vx)); e(valu("v_lshlrev_b32", vx, 8, vx)); e(valu("v_lshl_add_u32", vx, vc_, 3, vx)); e(valu("v_add_u32", vx, RING, vx))
for db in range(8):
    e(valu("v_xor_b32", vz, db, vy)); e(valu("v_lshl_add_u32", v_va[db], vz, 5, vx))
e(salu("s_lshl_b32", s_t1, s_w, 12))
e(valu("v_lshlrev_b32", vx, 8, vG)); e(valu("v_add_u32", vx, s_t1, vx))
for j in range(4):
    e(valu("v_add_u32", vy, 4 * j, vG)); e(valu("v_xor_b32", vy, vy, vq)); e(valu("v_lshl_add_u32", v_kd[j], vy, 4, vx))
e(valu("v_and_b32", vz, 1, v_lane)); e(valu("v_lshl_add_u32", vx, vz, 4, vx))
for j in range(2):
    e(valu("v_add_u32", vy, 4 * j, vG)); e(valu("v_lshrrev_b32", vz, 1, vq)); e(valu("v_xor_b32", vy, vy, vz)); e(valu("v_lshl_add_u32", v_vd[j], vy, 5, vx))
e(salu("s_lshl_b32", s_t1, s_w, 14)); e(valu("v_add_u32", v_wl, s_t1, v_lin))
e(salu("s_mov_b32", s_retry, 0, scc_w=False))
stamp()

v_f = V(128, 128)
acc = [V(52, 2), V(54, 2), V(56, 2), V(58, 2)]
diag(2)
for ks in range(16):
    em.wait(vm=xl[ks])
    if ks in (0, 15): diag(2)
    for k in range(4):
        p = 4 * ks + k
        e(valu("v_lshlrev_b32", v_f[2 * p], 16, v_xp[p])); e(valu("v_and_b32", v_f[2 * p + 1], "0xffff0000", v_xp[p]))
    for k in range(4):
        p = 4 * ks + k
        if ks == 0: e(valu("v_mov_b64", acc[k], v_f[(2 * p, 2)]))
        else: e(valu("v_pk_add_f32", acc[k], acc[k], v_f[(2 * p, 2)]))
ln_issue(int(os.environ.get("LN_FIRST", "4")))
e(valu("v_pk_add_f32", acc[0], acc[0], acc[1])); e(valu("v_pk_add_f32", acc[2], acc[2], acc[3])); e(valu("v_pk_add_f32", acc[0], acc[0], acc[2]))
vsum, vtmp, vmb, vdm = V(60), V(61), V(62), V(63)
e(valu("v_add_f32", vsum, acc[0][0], acc[0][1]))
red4("v_add_f32", [vsum], [vtmp])
e(valu("v_mul_f32", vsum, hx(f2u(1.0 / 512)), vsum))
e(valu("v_cvt_pk_bf16_f32", vmb, vsum, vsum)); e(valu("v_lshlrev_b32", vmb, 16, vmb))
e(valu("v_sub_f32", vdm, vsum, vmb))
vneg = V(52, 2)
e(valu("v_sub_f32", vneg[0], 0, vmb))
acc2 = [V(54, 2), V(56, 2), V(58, 2)]
for p in range(64):
    e(valu("v_pk_add_f32", v_f[(2 * p, 2)], v_f[(2 * p, 2)], vneg, mod="op_sel_hi:[1,0]"))
    if p % 8 == 7: ln_issue()
for p in range(64):
    if p % 8 == 7: ln_issue()
    a_ = acc2[p % 3]
    if p < 3: e(valu("v_pk_mul_f32", a_, v_f[(2 * p, 2)], v_f[(2 * p, 2)]))
    else: e(valu("v_pk_fma_f32", a_, v_f[(2 * p, 2)], v_f[(2 * p, 2)], a_))
e(valu("v_pk_add_f32", acc2[0], acc2[0], acc2[1])); e(valu("v_pk_add_f32", acc2[0], acc2[0], acc2[2]))
e(valu("v_add_f32", vsum, acc2[0][0], acc2[0][1]))
red4("v_add_f32", [vsum], [vtmp])
e(valu("v_mul_f32", vsum, hx(f2u(1.0 / 512)), vsum))
e(valu("v_fma_f32", vsum, "-" + str(vdm), vdm, vsum, extra_rd=vdm.regs()))
e(valu("v_max_f32", vsum, 0, vsum))
e(valu("v_cvt_pk_bf16_f32", vsum, vsum, vsum)); e(valu("v_lshlrev_b32", vsum, 16, vsum))
e(valu("v_add_f32", vsum, hx(f2u(1e-5)), vsum))
e(valu("v_cvt_pk_bf16_f32", vsum, vsum, vsum)); e(valu("v_lshlrev_b32", vsum, 16, vsum))
e(valu("v_sqrt_f32", vsum, vsum)); e(nop(0))
e(valu("v_cvt_pk_bf16_f32", vsum, vsum, vsum)); e(valu("v_lshlrev_b32", vsum, 16, vsum))
e(valu("v_rcp_f32", vneg[0], vsum)); e(nop(0))
for ks in range(16):
    for k in range(4):
        p = 4 * ks + k
        e(valu("v_pk_mul_f32", v_f[(2 * p, 2)], v_f[(2 * p, 2)], vneg, mod="op_sel_hi:[1,0]"))
    for k in range(4):
        p = 4 * ks + k
        e(valu("v_cvt_pk_bf16_f32", v_xp[p], v_f[2 * p], v_f[2 * p + 1]))
    e(dswrite("ds_write_b128", v_wl, v_xp[(4 * ks, 4)], ks * 1024))
    ln_issue()
ln_issue(100)
if DUMP == "ln": dump_regs([v_xp[i] for i in range(64)])
em.wait(lg0=True)
e(raw("s_barrier"))
stamp(); diag()

def run_stream(NH, dmaf, dtok, accf, Bf, extra, vstream, LOOK=6, nq=4, pos0=0, ring=a_ring):
    NG = 4 * NH
    rtok = {}
    def reads(g):
        m, u = g >> 2, g & 3
        p = (m + pos0) % 6
        d = ring[((g % 8) * 4, 4)]
        r = [dsread("ds_read_b64_tr_b16", d[(2 * h2, 2)], v_tr[p // 3][u], (p % 3) * 16384 + h2 * 512) for h2 in range(2)]
        rtok[g] = r[1]
        return r
    em.wait(vm=dtok[0])
    for g in range(3): e(reads(g))
    for pre in extra.get(-1, []): e(pre[1])
    em.wait(lg0=True)
    vi = 0
    for g in range(NG):
        m, u = g >> 2, g & 3
        gaps = [[], [], [], []]; cap = [2, 2, 2, 2]
        if g + 3 < NG:
            if (g + 3) & 3 == 0: gaps[0].append(Wait(vm=dtok[(g + 3) >> 2]))
            r = reads(g + 3); gaps[0].append(r[0]); gaps[1].append(r[1]); cap[0] -= 1; cap[1] -= 1
        md, j = (g + 4 * LOOK - 4) >> 2, (g + 4 * LOOK - 4) & 3
        if md >= LOOK:
            if j == 0: cur = dmaf(md)
            if cur is not None:
                if j == 0: gaps[2] += cur[0]
                items = cur[1][j::4]
                for it in items: gaps[3].append(it); cap[3] -= 1
                if j == 3: dtok[md] = cur[1][3]
        for (gp, it, cost) in extra.get(g, []):
            gaps[gp].append(it); cap[gp] -= cost
        if g + 1 < NG: gaps[3].insert(0, Wait(lg=rtok[g + 1]))
        d = ring[((g % 8) * 4, 4)]
        for qb in range(nq):
            ac, first = accf(m, u, qb)
            e(mfma(ac, d, Bf(m, qb), 0 if first else ac))
            for it in gaps[qb]: e(it)
            c = cap[qb]
            quota = vstream.quota(g) if vstream else 0
            while vstream and vstream.has(g) and (c > 0 or quota > 0):
                it = vstream.peek()
                cost = 2 if it.kind == "trans" else 1
                if cost > c and quota <= 0: break
                if cost > c: quota -= 1; vstream.used_quota()
                e(vstream.pop()); c -= cost
    if vstream:
        while vstream.has(10 ** 9): e(vstream.pop())

class VStream:
    def __init__(self, items, start, end, extra_total=0):
        self.items = items; self.i = 0; self.start = start; self.end = end
        self.extra_total = extra_total; self.used = 0
    def has(self, g): return self.i < len(self.items) and g >= self.start
    def peek(self): return self.items[self.i]
    def pop(self): self.i += 1; return self.items[self.i - 1]
    def quota(self, g):
        if g < self.start: return 0
        allowed = (g - self.start + 1) * self.extra_total // max(1, self.end - self.start)
        return 1 if allowed > self.used else 0
    def used_quota(self): self.used += 1

def s1_acc(m, u, qb):
    h = m & 1
    idx = ((h * 4 + u) * 4 + qb) * 4
    if m < 32: return A(idx, 4), m < 2
    return v_acc[(idx, 4)], m < 34
def s1_B(m, qb): return a_B[(((m >> 1) & 1) * 16 + qb * 4, 4)]
extra = {}
btok = {}
def bread(s, qb): return dsread("ds_read_b128", a_B[((s & 1) * 16 + qb * 4, 4)], v_lin, (qb * 16 + (s % 16)) * 1024)
extra[-1] = [(0, bread(0, qb), 1) for qb in range(4)]
for s in range(1, 32):
    for qb in range(4):
        extra.setdefault(8 * (s - 1) + 1 + qb, []).append((2, bread(s, qb), 1))
C0 = -2.0 * math.sqrt(2.0 / math.pi) * math.log2(math.e); C1 = C0 * 0.044715
vc0, vc1 = V(40), V(41)
gel = [valu("v_mov_b32", vc0, hx(f2u(C0))), valu("v_mov_b32", vc1, hx(f2u(C1)))]
hst = []
tb = 0
for i in range(2):
    for qb in range(4):
        pk = V(44 + 4 * (tb % 4), 4); tb += 1
        for b in range(2):
            u = 2 * i + b
            T = [V(64 + 16 * ((2 * tb + b) % 4) + k) for k in range(16)]
            G_, U_, X_ = T[0:4], T[4:8], T[8:12]
            ga = lambda r: A((u * 4 + qb) * 4 + r); ua = lambda r: A(((4 + u) * 4 + qb) * 4 + r)
            for r in range(4): gel.append(valu("v_accvgpr_read_b32", G_[r], ga(r)))
            for r in range(4): gel.append(valu("v_accvgpr_read_b32", U_[r], ua(r)))
            for r in range(4): gel.append(valu("v_mul_f32", X_[r], G_[r], G_[r]))
            for r in range(4): gel.append(valu("v_fma_f32", X_[r], X_[r], vc1, vc0))
            for r in range(4): gel.append(valu("v_mul_f32", X_[r], X_[r], G_[r]))
            for r in range(4): gel.append(valu("v_exp_f32", X_[r], X_[r]))
            for r in range(4): gel.append(valu("v_mul_f32", G_[r], G_[r], U_[r]))
            for r in range(4): gel.append(valu("v_add_f32", X_[r], "1.0", X_[r]))
            for r in range(4): gel.append(valu("v_rcp_f32", X_[r], X_[r]))
            gel.append(nop(0))
            for r in range(4): gel.append(valu("v_mul_f32", G_[r], G_[r], X_[r]))
            for k in range(2): gel.append(valu("v_cvt_pk_bf16_f32", pk[2 * b + k], G_[2 * k], G_[2 * k + 1]))
        st = bstore(pk, v_lin, S_H, s_h1 if i else s_h0, off=qb * 1024, mod="sc1")
        gel.append(st); hst.append(st)
class Stamp:
    def __call__(self): stamp(); return []
if STAMP: extra.setdefault(128, []).append((0, Stamp(), 0))
vs = VStream(gel, 131, GEL_END, extra_total=GEL_EXTRA)
run_stream(64, s1_dma, dtok, s1_acc, s1_B, extra, vs)
if DUMP == "qacc": dump_regs([v_acc[i] for i in range(128)])
stamp()

em.wait(lg0=True)
e(raw("s_barrier"))
def signal(off_s_expr_add, lab):
    e(scmp("s_cmp_lg_u32", s_w, 0)); e(raw("s_cbranch_scc1 %s" % lab, rd=["scc"]))
    e(salu("s_lshl_b32", s_t0, s_qb, 2))
    if off_s_expr_add: e(salu("s_add_u32", s_t0, s_t0, off_s_expr_add))
    e(valu("v_mov_b32", v_t, 1))
    e(raw("s_mov_b64 exec, 1", "salu", wr=["exec"]))
    e(raw("buffer_atomic_add %s, off, %s, %s sc1" % (v_t, S_DBG, s_t0)))
    e(raw("s_mov_b64 exec, -1", "salu", wr=["exec"]))
    em.label(lab)
QS = math.log2(math.e) / math.sqrt(128.0)
vqs = V(40, 2); vqw = V(42)
e(valu("v_mov_b32", vqs[0], hx(f2u(QS))))
e(valu("v_and_b32", v_t, 15, v_lane)); e(valu("v_bfe_u32", vqw, v_lane, 5, 1)); e(valu("v_lshl_add_u32", v_t, vqw, 4, v_t)); e(valu("v_lshlrev_b32", v_t, 4, v_t))
e(valu("v_bfe_u32", vqw, v_lane, 4, 1)); e(valu("v_lshl_add_u32", vqw, vqw, 3, v_t))
e(salu("s_lshl_b32", s_t1, s_w, 14)); e(valu("v_add_u32", vqw, s_t1, vqw))
for blk in range(8):
    for qb in range(4):
        a_ = v_acc[((blk * 4 + qb) * 4, 4)]
        t = V(64 + 2 * ((blk * 4 + qb) % 8), 2)
        for k in range(2): e(valu("v_pk_mul_f32", a_[(2 * k, 2)], a_[(2 * k, 2)], vqs, mod="op_sel_hi:[1,0]"))
        for k in range(2): e(valu("v_cvt_pk_bf16_f32", t[k], a_[2 * k], a_[2 * k + 1]))
        if len(em.lgq) >= 7: em.wait(lg=em.lgq[-7])
        e(dswrite("ds_write_b64", vqw, t, (qb * 4 + (blk >> 1)) * 1024 + (blk & 1) * 512))
em.wait(lg0=True)
for f in range(16):
    e(dsread("ds_read_b128", a_Q[(4 * f, 4)], v_wl, f * 1024))
    if f == 7: pass
vx, vy, vz = V(96), V(97), V(98)
e(salu("s_lshl_b32", s_t1, s_w, 8))
dma_voffs(v_dA, 1024, s_t1, True)
em.label("L_att_start")
for i in range(64): e(valu("v_mov_b64", v_acc[(2 * i, 2)], 0))
for i in range(4): e(valu("v_mov_b32", v_l0[i], 0)); e(valu("v_mov_b32", v_l1[i], 0))
em.wait(vm0=True, lg0=True)
e(raw("s_barrier"))
e(scmp("s_cmp_lg_u32", s_retry, 0)); e(raw("s_cbranch_scc1 L_sigH", rd=["scc"]))
signal(HC_OFF, "L_sigH")
if DUMP == "q": dump_regs([a_Q[i] for i in range(64)])
stamp()

def Qf(qb, ds): return a_Q[((qb * 4 + ds) * 4, 4)]
def Of(db, qb): return v_acc[((db * 4 + qb) * 4, 4)]
def fr(f): return a_ring[((f % 8) * 4, 4)]
def kslot(par): return 16384 if par == 0 else 0
def vslot(par): return 0 if par == 0 else 16384
def frag_reads(par, f):
    if f >= 32: par ^= 1; f -= 32
    d = fr(f)
    if f < 8 or 16 <= f < 24:
        kb = (f >> 2) if f < 8 else 2 + ((f - 16) >> 2)
        return [dsread("ds_read_b128", d, v_ka[f & 3], kslot(par) + kb * 4096)]
    ks2 = 0 if f < 16 else 1
    db = f & 7
    return [dsread("ds_read_b64_tr_b16", d[(2 * h, 2)], v_va[db], vslot(par) + ks2 * 8192 + h * 4096) for h in range(2)]
def read_sched(g):
    r = []
    if g + 3 < 24 or g >= 29: r.append(g + 3)
    if 19 <= g <= 26: r.append(g + 5)
    return r
def sm_val(g, k):
    if 7 <= g <= 22: b = 1; n = 2 * (g - 7) + k
    else: b = 0; n = 2 * ((g - 23) % 32) + k
    kb, qb, r = n >> 4, (n >> 2) & 3, n & 3
    return b, qb, kb, r
def sm_items(g):
    ex, ad = [], []
    for k in range(2):
        b, qb, kb, r = sm_val(g, k)
        x = v_S[b][qb * 8 + kb * 4 + r]
        l = (v_l1 if b else v_l0)[qb]
        ex.append(valu("v_exp_f32", x, x)); ad.append(valu("v_add_f32", l, l, x))
    b, qb, kb, r = sm_val((g - 1) % 32, 0)
    cv = valu("v_cvt_pk_bf16_f32", v_S[b][qb * 8 + kb * 2 + (r >> 1)], v_S[b][qb * 8 + kb * 4 + r], v_S[b][qb * 8 + kb * 4 + r + 1])
    return ex, ad, cv
def att_dma(par, g):
    if g >= 29: k = g - 29; sp = par
    elif g <= 4: k = g + 3; sp = par ^ 1
    else: return [], None
    sal = []
    if k == 0: sal = [salu("s_add_u32", "m0", s_m0b, 4 * 16384 + kslot(sp))]
    if k == 4: sal = [salu("s_add_u32", "m0", s_m0b, vslot(sp))]
    if k < 4: return sal, dma(v_kd[k], S_K, s_kK, k * 1024)
    return sal, dma(v_vd[k & 1], S_V, s_kV, (k - 4) * 1024)
SIDE_FIRST = 11
class Lbl:
    def __init__(self, n): self.n = n
    def __call__(self): em.label(self.n); return []
class LoopStamp:
    def __init__(self, k, par): self.k, self.par = k, par
    def __call__(self):
        k = self.k
        e(raw("s_memtime %s" % S(68 + 2 * k, 2), "other", wr=[S(68 + 2 * k, 2)]))
        if k == 2:
            e(raw("s_waitcnt lgkmcnt(0)", "wait")); em._retire(em.lgq, 0)
            for i in range(3): e(valu("v_writelane_b32", v_c, S(68 + 2 * i), i, rmw=True))
            e(salu("s_lshl_b32", S(74), S(2), 2)); e(salu("s_add_u32", S(74), S(74), s_w)); e(salu("s_lshl_b32", S(74), S(74), 4))
            e(salu("s_sub_u32", S(74), S(74), s_cnt)); e(salu("s_add_u32", S(74), S(74), 16)); e(salu("s_lshl_b32", S(74), S(74), 5))
            e(salu("s_add_u32", S(74), S(74), (1 << 20) + 16 * self.par))
            e(raw("s_mov_b64 exec, 7", "salu", wr=["exec"]))
            e(valu("v_lshlrev_b32", v_t, 2, v_lane))
            e(bstore(v_c, v_t, S_DMP, S(74), off=0))
            e(raw("s_mov_b64 exec, -1", "salu", wr=["exec"]))
            e(valu("v_lshlrev_b32", v_t, 7, v_lane))
        return []
s_pf = [S(16, 2), S(18, 2), S(24, 2), S(26, 2)]
s_pfH = S(28, 2)
s_fo = S(3)
v_tch, v_flag = V(3), V(0)
xtok = []; lastdma = [None]
ROT = int(os.environ.get('ROT', '10'))
ftok = {}
def att_group(par, g, do_mfma=True, do_mem=True, do_cvt=True, last=False):
    ex, ad, cv = sm_items(g)
    mem = []
    sal = []
    if do_mem:
        for f in read_sched(g):
            r = frag_reads(par, f); mem += r; ftok[f % 32] = r
        sal, d = att_dma(par, g)
        if d is not None: mem.append(d)
    if do_mem and par == 0 and g == 5:
        mem.append(I("global_load_dword %s, %s, %s" % (v_flag, v_tch, s_pf[0]), "vmem", rd=v_tch.regs() + s_pf[0].regs(), wr=[])); xtok.append(mem[-1])
    if do_mem and par == 0 and g == 6:
        mem.append(I("buffer_load_dword %s, off, %s, %s sc1" % (v_flag, S_DBG, s_fo), "vmem", rd=S_DBG.regs() + s_fo.regs(), wr=[])); xtok.append(mem[-1])
    if do_mem and par == 0 and g in (8, 9, 10): sal = sal + [scmp("s_cmp_le_u32", s_cnt, ROT), salu("s_cselect_b64", s_pf[g - 8], s_pf[g - 7], s_pf[g - 8], scc_w=False, scc_r=True)]
    if do_mem and g == 4: lastdma[0] = d
    post0 = []
    if do_mem and do_mfma and par == 1 and g == 30: post0 = [valu("v_readfirstlane_b32", s_t0, v_flag)]
    if do_mem and do_mfma and par == 1 and g == 31: sal = sal + [scmp("s_cmp_lt_u32", s_cnt, ROT), salu("s_cselect_b32", s_t0, s_t0, 0, scc_w=False, scc_r=True), scmp("s_cmp_ge_u32", s_t0, 8), salu("s_cselect_b64", s_pf[3], s_pfH, s_pf[3], scc_w=False, scc_r=True)]
    gaps = [[], [], [], []]
    if g == 29 and do_mem:
        if STAMP == 2 and do_mfma: gaps[0] += [LoopStamp(0, par)]
        gaps[0] += [Wait(lg0=True, vm0=True) if (par == 1 or not do_mfma) else Wait(lg0=True, vm=lastdma[0])]
        if STAMP == 2 and do_mfma: gaps[0] += [LoopStamp(1, par)]
        gaps[0] += [raw("s_barrier")]
        if STAMP == 2 and do_mfma: gaps[0] += [LoopStamp(2, par)]
    gaps[0] += sal
    if g == 6 and do_mem: gaps[0].append(salu("s_add_u32", s_kK, s_kK, 16384))
    if g == 7 and do_mem: gaps[0].append(salu("s_add_u32", s_kV, s_kV, 16384))
    if g == 23 and par == 1 and do_mfma:
        gaps[0] += [valu("v_mov_b32", v_lsave[i], v_l0[i]) for i in range(4)]
    if len(mem) > 2: gaps[0].append(mem[2])
    gaps[0].append(ex[0])
    if len(mem) > 0: gaps[1].append(mem[0])
    if len(mem) == 0 and do_cvt: gaps[1].append(cv)
    gaps[1].append(ad[0])
    gaps[1] += post0
    if do_mem: gaps[2].append(Wait(lg=ftok.get((g + 1) % 32)))
    if last and g == 30: gaps[2].append(salu("s_sub_u32", s_cnt, s_cnt, 1))
    gaps[2].append(ex[1])
    if len(mem) > 1: gaps[3].append(mem[1])
    if len(mem) > 0 and do_cvt: gaps[3].append(cv)
    gaps[3].append(ad[1])
    for qb in range(4):
        if do_mfma:
            if g < 8 or 16 <= g < 24:
                b = 1 if g < 8 else 0
                kb, ds = (g >> 2) & 1, g & 3
                d = v_S[b][(qb * 8 + kb * 4, 4)]
                e(mfma(d, fr(g), Qf(qb, ds), v_negm[(qb * 4, 4)] if ds == 0 else d))
            else:
                b = 0 if g < 16 else 1
                e(mfma(Of(g & 7, qb), fr(g), v_S[b][(qb * 8, 4)], Of(g & 7, qb)))
        else:
            if qb & 1: e(nop(0))
        for it in gaps[qb]: e(it)

for it in range(3):
    e(salu("s_add_u32", s_t0, s_w, 4 * it))
    e(salu("s_sub_u32", s_t1, s_t0, 2)); e(salu("s_min_u32", s_t1, s_t1, 6)); e(salu("s_lshl_b32", s_t1, s_t1, 13))
    e(salu("s_mul_i32", s_t2, s_qb, 57344, scc_w=False)); e(salu("s_add_u32", s_t1, s_t1, s_t2))
    e(salu("s_add_u32", s_pf[it][0], S_WD[0], s_t1)); e(salu("s_addc_u32", s_pf[it][1], S_WD[1], 0, scc_r=True))
    if it == 0:
        e(scmp("s_cmp_ge_u32", s_w, 2)); e(raw("s_cbranch_scc1 L_pf_wd", rd=["scc"]))
        e(salu("s_lshl_b32", s_t1, s_qb, 14)); e(salu("s_lshl_b32", s_t2, s_w, 13)); e(salu("s_add_u32", s_t1, s_t1, s_t2))
        e(salu("s_add_u32", s_pf[0][0], S_WO[0], s_t1)); e(salu("s_addc_u32", s_pf[0][1], S_WO[1], 0, scc_r=True))
        em.label("L_pf_wd")
e(raw("s_getpc_b64 %s" % s_pf[3], "salu", wr=[s_pf[3]]))
em.label("L_pc1")
e(salu("s_lshl_b32", s_t0, s_w, 13)); e(salu("s_add_u32", s_t0, s_t0, "L_tail-L_pc1")); e(salu("s_min_u32", s_t0, s_t0, "L_code_end-L_pc1-8192"))
e(salu("s_add_u32", s_pf[3][0], s_pf[3][0], s_t0)); e(salu("s_addc_u32", s_pf[3][1], s_pf[3][1], 0, scc_r=True))
e(salu("s_lshl_b32", s_t0, s_cg, 2)); e(salu("s_add_u32", s_t0, s_t0, s_w)); e(salu("s_mul_i32", s_t0, s_t0, 7168, scc_w=False)); e(salu("s_min_u32", s_t0, s_t0, 229376 - 8192))
e(salu("s_add_u32", s_pfH[0], S_HC[0], s_t0)); e(salu("s_addc_u32", s_pfH[1], S_HC[1], 0, scc_r=True))
e(valu("v_lshlrev_b32", v_tch, 7, v_lane))
e(salu("s_lshl_b32", s_fo, s_cq, 2)); e(salu("s_add_u32", s_fo, s_fo, HC_OFF))
pr = [dsread("ds_read_b128", fr(f), v_ka[f & 3], (f >> 2) * 4096) for f in range(8)]
for r in pr: e(r)
e(scmp("s_cmp_lg_u32", s_retry, 0)); e(raw("s_cbranch_scc1 L_have_max", rd=["scc"]))
for i in range(16): e(valu("v_mov_b32", v_negm[i], 0))
em.label("L_have_max")
for f in range(8):
    em.wait(lg=pr[f])
    for qb in range(4):
        d = v_S[0][(qb * 8 + (f >> 2) * 4, 4)]
        e(mfma(d, fr(f), Qf(qb, f & 3), v_negm[(qb * 4, 4)] if (f & 3) == 0 else d))
e(salu("s_mov_b32", s_kK, 16384 + 8192, scc_w=False)); e(salu("s_mov_b32", s_kV, 16384, scc_w=False)); e(salu("s_mov_b32", s_cnt, 16, scc_w=False))
e(scmp("s_cmp_lg_u32", s_retry, 0)); e(raw("s_cbranch_scc1 L_have_max2", rd=["scc"]))
e(nop(3))
mx = [V(96 + i) for i in range(4)]; mt = [V(100 + i) for i in range(4)]
for qb in range(4): e(valu("v_max3_f32", mx[qb], v_S[0][qb * 8], v_S[0][qb * 8 + 1], v_S[0][qb * 8 + 2]))
for qb in range(4): e(valu("v_max3_f32", mx[qb], mx[qb], v_S[0][qb * 8 + 3], v_S[0][qb * 8 + 4]))
for qb in range(4): e(valu("v_max3_f32", mx[qb], mx[qb], v_S[0][qb * 8 + 5], v_S[0][qb * 8 + 6]))
for qb in range(4): e(valu("v_max_f32", mx[qb], mx[qb], v_S[0][qb * 8 + 7]))
red4("v_max_f32", mx, mt)
for qb in range(4):
    for k in range(4): e(valu("v_sub_f32", v_negm[qb * 4 + k], 0, mx[qb]))
for qb in range(4):
    for k in range(8): e(valu("v_sub_f32", v_S[0][qb * 8 + k], v_S[0][qb * 8 + k], mx[qb]))
em.label("L_have_max2")
e(nop(7))
for g in range(23, 29): att_group(1, g, do_mfma=False, do_mem=False, do_cvt=(g != 23))
stamp(); diag()
for g in range(29, 32): att_group(1, g, do_mfma=False, do_mem=True)
pro_end = len(em.out)
em.directive(".p2align 6")
em.label("L_att_loop")
def body():
    for par in range(2):
        for g in range(32): att_group(par, g, last=(par == 1))
b0 = len(em.out)
body()
b1 = len(em.out)
e(scmp("s_cmp_lg_u32", s_cnt, 0)); e(raw("s_cbranch_scc1 L_att_loop", rd=["scc"]))
b2 = len(em.out)
body()
second = em.out[b2:]; del em.out[b2:]
assert [i.text for i in second] == [i.text for i in em.out[b0:b1]], "loop not in steady state"
loop_probs = check_hazards(em.out[b1 - 40:b2] + second[:60], "loop-wrap")
stamp()

em.label("L_tail")
diag()
v_ring2 = V(64, 32); v_B2 = V(96, 32)
def hreg(kk, qb): return A(64 + (kk % 12) * 16 + qb * 4, 4)
XY = int(os.environ.get("XY", "0"))
def mh(m): return ((m & 15), m >> 4) if XY else (m >> 1, m & 1)
P2 = 2
def s2_dma(m):
    p = (m + P2) % 6
    if m < 32:
        s, h = mh(m)
        return [m0set(p), salu("s_mov_b32", s_off, s * 32 * 1024 + 128 * h, scc_w=False)], [dma(v_dA[j], S_WO, s_off, j * 1024) for j in range(4)]
    if m < 46:
        return [m0set(p), salu("s_mov_b32", s_off, (m - 32) * 32 * 1024, scc_w=False)], [dma(v_dB[j], S_WD, s_off, j * 1024) for j in range(4)]
    return None
dtok2 = {}
post_v = []
for m in range(0, 6):
    sa, dm = s2_dma(m); post_v.append(sa); post_v += dm; dtok2[m] = dm[3]
pv = [0]
def post_issue(n):
    k = 0
    while k < n and pv[0] < len(post_v):
        it = post_v[pv[0]]; pv[0] += 1
        e(it)
        if not isinstance(it, list): k += 1
post_issue(4)
lt = [V(100 + i) for i in range(4)]
for qb in range(4): e(valu("v_add_f32", v_l1[qb], v_l1[qb], v_lsave[qb]))
red4("v_add_f32", [v_l1[i] for i in range(4)], lt)
e(salu("s_mov_b32", s_t0, hx(f2u(2.0 ** 30)), scc_w=False))
e(valu("v_add_f32", lt[1], v_l1[0], v_l1[1])); e(valu("v_add_f32", lt[2], v_l1[2], v_l1[3])); e(valu("v_add_f32", lt[1], lt[1], lt[2]))
e(valu("v_cmp_nge_f32", "vcc", s_t0, lt[1]))
rinv = [V(104 + 2 * i, 2) for i in range(4)]
for qb in range(4): e(valu("v_rcp_f32", rinv[qb][0], v_l1[qb]))
e(salu("s_mov_b64", s_pair, "vcc", scc_w=False))
post_issue(4)
for i in range(4):
    for qb in range(4):
        t = Of(2 * i, qb)
        for b in range(2):
            o = Of(2 * i + b, qb)
            for k in range(2): e(valu("v_pk_mul_f32", o[(2 * k, 2)], o[(2 * k, 2)], rinv[qb], mod="op_sel_hi:[1,0]"))
        if DUMP != "o":
            for b in range(2):
                o = Of(2 * i + b, qb)
                for k in range(2): e(valu("v_cvt_pk_bf16_f32", t[2 * b + k], o[2 * k], o[2 * k + 1]))
            if i == 0 and qb == 0:
                e(scmp("s_cmp_eq_u64", s_pair, 0)); e(raw("s_cbranch_scc1 L_nomark", rd=["scc"]))
                e(valu("v_mov_b32", t[0], hx(MARK)))
                em.label("L_nomark")
            if len(em.lgq) >= 12: em.wait(lg=em.lgq[-12])
            e(dswrite("ds_write_b128", v_wl, t, (i * 4 + qb) * 1024))
        post_issue(1)
post_issue(100)
if DUMP == "o": dump_regs([v_acc[i] for i in range(128)])
vm_ = V(56); vma = V(57)
e(valu("v_and_b32", vma, 3, v_lane)); e(valu("v_lshlrev_b32", vma, 14, vma))
e(salu("s_mov_b32", s_cnt, 0, scc_w=False))
em.label("L_pollH")
e(valu("v_readfirstlane_b32", s_t0, v_flag)); e(salu("s_mul_i32", s_hb, s_w, 14 * 4096, scc_w=False)); e(nop(1))
e(scmp("s_cmp_ge_u32", s_t0, 8)); e(raw("s_cbranch_scc1 L_pollH_done", rd=["scc"]))
e(salu("s_add_u32", s_cnt, s_cnt, 1)); e(scmp("s_cmp_ge_u32", s_cnt, 50000)); e(raw("s_cbranch_scc1 L_pollH_done", rd=["scc"]))
e(raw("s_sleep 4")); e(raw("buffer_load_dword %s, off, %s, %s sc1" % (v_flag, S_DBG, s_fo))); e(raw("s_waitcnt vmcnt(0)")); e(raw("s_branch L_pollH"))
em.label("L_pollH_done")
em.wait(lg0=True)
e(raw("s_barrier"))
stamp()
mk = e(dsread("ds_read_b32", vm_, vma, 0))
class FbCheck:
    def __call__(self):
        em.wait(lg=mk)
        e(valu("v_cmp_eq_u32", "vcc", hx(MARK), vm_))
        e(scmp("s_cmp_lg_u32", s_retry, 0)); e(raw("s_cbranch_scc1 L_nofb", rd=["scc"]))
        e(nop(1))
        e(raw("s_cbranch_vccnz L_fallback", rd=["vcc"]))
        em.label("L_nofb")
        return []

def s2_acc(m, u, qb):
    if m < 32: return v_acc[(((mh(m)[1] * 4 + u) * 4 + qb) * 4, 4)], mh(m)[0] == 0
    return a_F[((u * 4 + qb) * 4, 4)], m == 32
def bsel(m): return (m & 1) if XY else ((m >> 1) & 1)
def s2_B(m, qb):
    if m < 32: return v_B2[(bsel(m) * 16 + qb * 4, 4)]
    return hreg(m - 32, qb)
def oread(m, qb): return dsread("ds_read_b128", v_B2[(bsel(m) * 16 + qb * 4, 4)], v_lin, (mh(m)[0] * 4 + qb) * 1024)
extra = {-1: [(0, oread(0, qb), 1) for qb in range(4)] + [(0, FbCheck(), 0)]}
for m in range(1, 32):
    if XY:
        rr = [oread(m, qb) for qb in range(4)]
        for qb in range(4): extra.setdefault(4 * (m - 1) + (qb >> 1), []).append((2 + (qb & 1), rr[qb], 1))
        extra.setdefault(4 * m - 1, []).append((2, Wait(lg=rr), 0))
    elif (m & 1) == 0:
        for qb in range(4): extra.setdefault(4 * (m - 2) + 1 + qb, []).append((2, oread(m, qb), 1))
class LateWait:
    def __init__(self, f): self.f = f
    def __call__(self): return Wait(vm=self.f())
vxf = V(40, 8); vxa = V(48); vpoll = V(49); vfw = V(50)
vx, vy, vz = V(52), V(53), V(54)
save = em.out; em.out = []
for k in range(8): e(valu("v_accvgpr_read_b32", vxf[k], a_x[k]))
e(salu("s_mul_i32", s_t1, s_w, 448 * 1024, scc_w=False)); e(salu("s_lshl_b32", s_t3, s_cg, 7)); e(salu("s_add_u32", s_t1, s_t1, s_t3))
dma_voffs(v_dB, 1024, s_t1, True)
xaddr(vxa, vx)
e(valu("v_and_b32", V(51), 7, v_lane)); e(valu("v_lshlrev_b32", V(51), 2, V(51)))
e(salu("s_lshl_b32", s_t0, s_w, 12)); e(valu("v_add_u32", vfw, s_t0, v_lin))
e(salu("s_lshl_b32", s_t3, s_w, 4)); e(salu("s_add_u32", s_t3, s_t3, s_g)); e(salu("s_lshl_b32", s_t3, s_t3, 13))
early = em.out; em.out = save
class Seq:
    kind = "vmem"
    def __init__(self, l): self.l = l
    def __call__(self): return self.l
hld = {}; htok = {}
for kk in range(14):
    hld[kk] = [bload(hreg(kk, qb), v_lin, S_HC, s_hl, off=qb * 1024, mod="sc1") for qb in range(4)]
    htok[kk] = hld[kk][3]
    extra.setdefault(4 * (32 + kk) - 1, []).append((2, LateWait(lambda kk=kk: htok[kk]), 0))
hseq = []
for kk in range(14):
    for qb in range(4):
        hseq.append(Seq([salu("s_add_u32", s_hl, s_hb, kk * 4096), hld[kk][qb]]))
NPRE = int(os.environ.get("NPRE", "12")); HG0 = int(os.environ.get("HG0", "70")); HGS = int(os.environ.get("HGS", "4"))
for k in range(NPRE): extra.setdefault(HG0 + HGS * k, []).append((2, hseq[k], 1))
def sreg(ip, qb, odd=0): return v_acc[(((2 * ip + odd) * 4 + qb) * 4, 4)]
sp = []; spst = []
HPS = int(os.environ.get("HPS", "3")); hk = NPRE
for ip in range(4):
    for qb in range(4):
        t = sreg(ip, qb)
        for b in range(2):
            o = sreg(ip, qb, b)
            for k in range(2): sp.append(valu("v_cvt_pk_bf16_f32", t[2 * b + k], o[2 * k], o[2 * k + 1]))
        if (qb & 1) == 0: sp.append(salu("s_add_u32", s_t1, s_t3, (ip >> 1) * 65536 + (qb >> 1) * 4096))
        st = bstore(t, v_lin, S_SP, s_t1, off=(qb & 1) * 2048 + (ip & 1) * 1024, mod=os.environ.get("ST_MOD", "sc1").replace("plain", ""))
        if os.environ.get("ST_NONE") and not (ip == 3 and qb == 3): st = nop(0)
        sp.append(st); spst.append(st)
        if not (XY and ip < 2):
            for _ in range(HPS * (2 if XY else 1)):
                if hk < 48: sp.append(hseq[hk]); hk += 1
for k in range(hk, 48): sp.append(hseq[k])
for k in range(48, 56): extra.setdefault(140 + (k - 48), []).append((2, hseq[k], 1))
class SigS:
    def __call__(self):
        stamp(); em.wait(vm=spst[-1]); stamp(); e(raw("s_barrier"))
        e(scmp("s_cmp_lg_u32", s_w, 0)); e(raw("s_cbranch_scc1 L_sigS", rd=["scc"]))
        e(valu("v_mov_b32", v_t, 1))
        e(raw("s_mov_b64 exec, 1", "salu", wr=["exec"]))
        e(raw("buffer_store_dword %s, off, %s, %s sc1" % (v_t, S_FL, s_myfl)))
        e(raw("s_mov_b64 exec, -1", "salu", wr=["exec"]))
        em.label("L_sigS")
        return []
G_SIG = int(os.environ.get("G_SIG", "160")); G_POLL = int(os.environ.get("G_POLL", "172")); G_CHK = int(os.environ.get("G_CHK", "178"))
extra.setdefault(G_SIG, []).append((0, SigS(), 0))
vpa = V(51)
ptok = bload(vpoll, vpa, S_FL, s_t2, n=1, mod="sc1")
extra.setdefault(G_POLL, []).append((1, [salu("s_lshl_b32", s_t2, s_cq, 7)], 0))
extra.setdefault(G_POLL, []).append((2, ptok, 1))
def spl(gp, i): return sreg(gp >> 1, (gp & 1) * 2 + i, 1)
sl = []
class ChkS:
    def __call__(self):
        em.wait(vm=ptok)
        stamp()
        e(salu("s_mov_b32", s_cnt, 0, scc_w=False))
        em.label("L_pollS")
        e(valu("v_cmp_ne_u32", "vcc", 1, vpoll)); e(nop(2))
        e(raw("s_cbranch_vccz L_pollS_done", rd=["vcc"]))
        e(salu("s_add_u32", s_cnt, s_cnt, 1)); e(scmp("s_cmp_ge_u32", s_cnt, 50000)); e(raw("s_cbranch_scc1 L_pollS_done", rd=["scc"]))
        e(raw("buffer_load_dword %s, %s, %s, %s offen sc1" % (vpoll, vpa, S_FL, s_t2))); e(raw("s_waitcnt vmcnt(0)")); e(raw("s_branch L_pollS"))
        em.label("L_pollS_done")
        stamp()
        e(salu("s_lshl_b32", s_t0, s_cg, 16)); e(salu("s_lshl_b32", s_t1, s_w, 11)); e(salu("s_add_u32", s_t0, s_t0, s_t1))
        for gp in range(8):
            for i in range(2): sl.append(e(bload(spl(gp, i), v_lin, S_SPC, s_t0, off=i * 1024, mod="sc1")))
            if gp < 7: e(salu("s_add_u32", s_t0, s_t0, 8192))
        return []
if G_CHK < 184: extra.setdefault(G_CHK, []).append((0, ChkS(), 0))
if STAMP: extra.setdefault(128, []).append((0, Stamp(), 0))
class Diag:
    def __call__(self): diag(); return []
if DIAG: extra.setdefault(128, []).append((0, Diag(), 0))
class Paced(VStream):
    def has(self, g): return self.i < len(self.items) and g >= self.start and self.i <= (g - self.start + 1) * len(self.items) // max(1, self.end - self.start)
    def quota(self, g): return 99 if g >= self.start else 0
class Multi:
    def __init__(self, *l): self.l = list(l)
    def cur(self, g):
        for x in self.l:
            if x.i < len(x.items): return x
        return self.l[-1]
    def has(self, g): return self.cur(g).has(g)
    def peek(self): return self.cur(0).peek()
    def pop(self): return self.cur(0).pop()
    def quota(self, g): return self.cur(g).quota(g)
    def used_quota(self): self.cur(0).used_quota()
SP_END = int(os.environ.get("SP_END", "146"))
if XY:
    half = sp.index(spst[7]) + 1
    vs = Multi(VStream(early, 2, 40), Paced(sp[:half], int(os.environ.get("X_START", "67")), int(os.environ.get("X_END", "75"))), Paced(sp[half:], 130, SP_END))
else:
    vs = Multi(VStream(early, 2, 40), Paced(sp, 130, SP_END))
class ChkEarly:
    def __call__(self):
        assert vs.l[0].i == len(vs.l[0].items); return []
extra.setdefault(59, []).append((0, ChkEarly(), 0))
run_stream(46, s2_dma, dtok2, s2_acc, s2_B, extra, vs, pos0=P2, ring=v_ring2)
stamp(); diag()
e(nop(6))
for qb in range(4):
    for u in range(4):
        if len(em.lgq) >= 12: em.wait(lg=em.lgq[-12])
        e(dswrite("ds_write_b128", vfw, a_F[((u * 4 + qb) * 4, 4)], qb * 16384 + u * 1024))
if G_CHK >= 184: ChkS()()
em.wait(lg0=True)
e(raw("s_barrier"))
def frr(ws_, u): return sreg(ws_, u, 0)
for ws_ in range(4):
    for u in range(4):
        if len(em.lgq) >= 14: em.wait(lg=em.lgq[-14])
        e(dsread("ds_read_b128", frr(ws_, u), v_wl, ws_ * 4096 + u * 1024))
em.wait(lg0=True)
v_fr = V(96, 16); vE = V(64, 16); vs_ = V(80, 16)
for u in range(4):
    for k in range(2):
        e(valu("v_pk_add_f32", frr(0, u)[(2 * k, 2)], frr(0, u)[(2 * k, 2)], frr(1, u)[(2 * k, 2)]))
        e(valu("v_pk_add_f32", frr(2, u)[(2 * k, 2)], frr(2, u)[(2 * k, 2)], frr(3, u)[(2 * k, 2)]))
for u in range(4):
    for k in range(2): e(valu("v_pk_add_f32", v_fr[(4 * u + 2 * k, 2)], frr(0, u)[(2 * k, 2)], frr(2, u)[(2 * k, 2)]))
for k in range(16): e(valu("v_mul_f32", vE[k], hx(f2u(-math.log2(math.e))), v_fr[k]))
for k in range(16): e(valu("v_exp_f32", vE[k], vE[k]))
for k in range(16): e(valu("v_add_f32", vE[k], "1.0", vE[k]))
for k in range(16): e(valu("v_rcp_f32", vE[k], vE[k]))
for k in range(16): e(valu("v_mul_f32", v_fr[k], v_fr[k], vE[k]))
for k in range(8):
    e(valu("v_lshlrev_b32", vE[2 * k], 16, vxf[k])); e(valu("v_and_b32", vE[2 * k + 1], "0xffff0000", vxf[k]))
for gp in range(8):
    em.wait(vm=sl[2 * gp + 1])
    for k in range(8):
        src = spl(gp, k >> 2)[k & 3]
        if gp == 0:
            e(valu("v_lshlrev_b32", vs_[2 * k], 16, src)); e(valu("v_and_b32", vs_[2 * k + 1], "0xffff0000", src))
        else:
            e(valu("v_lshlrev_b32", V(112 + 2 * (k & 3)), 16, src)); e(valu("v_and_b32", V(113 + 2 * (k & 3)), "0xffff0000", src))
            e(valu("v_pk_add_f32", vs_[(2 * k, 2)], vs_[(2 * k, 2)], V(112 + 2 * (k & 3), 2)))
if DUMP == "fin": dump_regs([vs_[i] for i in range(16)] + [v_fr[i] for i in range(16)])
for k in range(8): e(valu("v_pk_fma_f32", vE[(2 * k, 2)], vs_[(2 * k, 2)], v_fr[(2 * k, 2)], vE[(2 * k, 2)]))
for k in range(8): e(valu("v_cvt_pk_bf16_f32", vxf[k], vE[2 * k], vE[2 * k + 1]))
for u in range(4): e(bstore(vxf[(2 * u, 2)], vxa, S_OUT, 0, off=32 * u))
stamp(); diag_out()
em.label("L_end")
e(raw("s_endpgm"))
main_end = len(em.out)

em.lgq, em.vmq, em.pend = [], [], {}
em.label("L_fallback")
e(raw("s_waitcnt vmcnt(0) lgkmcnt(0)")); em._retire(em.vmq, 0); em._retire(em.lgq, 0)
e(salu("s_mov_b32", s_retry, 1, scc_w=False))
e(salu("s_mov_b32", s_kK, 0, scc_w=False))
fm = [V(40 + i) for i in range(4)]
for i in range(4): e(valu("v_mov_b32", fm[i], "0xff800000"))
em.label("L_fb_loop")
e(raw("s_barrier"))
e(salu("s_add_u32", "m0", s_m0b, 4 * 16384)); e(nop(0))
for j in range(4): e(dma(v_kd[j], S_K, s_kK, j * 1024))
em.wait(vm0=True)
e(raw("s_barrier"))
for kb in range(4):
    rr = [e(dsread("ds_read_b128", fr(ds), v_ka[ds], kb * 4096)) for ds in range(4)]
    em.wait(lg0=True)
    for ds in range(4):
        for qb in range(4):
            d = v_S[0][(qb * 4, 4)]
            e(mfma(d, fr(ds), Qf(qb, ds), 0 if ds == 0 else d))
    e(nop(7))
    for qb in range(4):
        e(valu("v_max3_f32", fm[qb], fm[qb], v_S[0][qb * 4], v_S[0][qb * 4 + 1])); e(valu("v_max3_f32", fm[qb], fm[qb], v_S[0][qb * 4 + 2], v_S[0][qb * 4 + 3]))
    e(nop(2))
e(salu("s_add_u32", s_kK, s_kK, 16384)); e(scmp("s_cmp_lt_u32", s_kK, 524288)); e(raw("s_cbranch_scc1 L_fb_loop", rd=["scc"]))
red4("v_max_f32", fm, [V(44 + i) for i in range(4)])
for qb in range(4):
    for k in range(4): e(valu("v_sub_f32", v_negm[qb * 4 + k], 0, fm[qb]))
e(raw("s_barrier"))
for m in (64, 65, 66):
    sa, dm = s1_dma(m); e(sa)
    for d in dm: e(d)
e(raw("s_branch L_att_start"))
em.label("L_code_end")
e(raw("s_endpgm"))

probs = check_hazards(em.out, "main") + loop_probs
for p in probs: print("; HAZARD", p, file=sys.stderr)
assert not probs

hdr = open(os.path.join(os.path.dirname(os.path.abspath(__file__)), "header.txt")).read()
print(hdr.rstrip())
print("; @launch grid=(256,1,1) block=(256,1,1) lds=163840")
print('.amdgcn_target "amdgcn-amd-amdhsa--gfx950"\n.text\n.globl %s\n.p2align 8\n.type %s,@function\n%s:' % (KN, KN, KN))
print(em.text())
print('.section .rodata,"a"\n.p2align 6\n.amdhsa_kernel %s' % KN)
print("  .amdhsa_next_free_vgpr 512\n  .amdhsa_next_free_sgpr 102\n  .amdhsa_accum_offset 256\n  .amdhsa_group_segment_fixed_size 0\n  .amdhsa_kernarg_size 96\n  .amdhsa_user_sgpr_count 2\n  .amdhsa_user_sgpr_kernarg_segment_ptr 1\n  .amdhsa_system_sgpr_workgroup_id_x 1\n.end_amdhsa_kernel")
```

```python
import sys, os, math, struct
from asmgen import *

KN = "recurrent_scan__gqa_block_cached__geglu_ffn__prompt_kernel"
DUMP = os.environ.get("DUMP", "")
STAMP = int(os.environ.get("STAMP", "0"))
GEL_END = int(os.environ.get("GEL_END", "228")); GEL_EXTRA = int(os.environ.get("GEL_EXTRA", "360"))

def f2u(x): return struct.unpack("<I", struct.pack("<f", x))[0]
def hx(x): return "0x%x" % (x & 0xffffffff)

S_X, S_K, S_V, S_WQ, S_WO, S_WG, S_WU, S_WD, S_OUT, S_DBG, S_H, S_SP = [S(4 + 4 * i, 4) for i in range(12)]
s_g, s_qb, s_w = S(52), S(53), S(54)
s_t0, s_t1, s_t2, s_t3 = S(55), S(56), S(57), S(58)
s_m0b = S(59)
s_off = S(60)
s_cnt = S(61)
s_kK, s_kV = S(62), S(63)
s_retry = S(64)
s_h0, s_h1 = S(65), S(66)
s_hl = S(67); s_hb = S(78); s_myfl = S(79)
s_ka = S(68, 16); s_kb = S(84, 8)
s_pair = S(92, 2); s_pair2 = S(94, 2)
S_DMP = S(96, 4)
s_cq, s_cg = S(76), S(77)
S_HC = S(80, 4)
S_SPC = S(84, 4)
S_XC = S(88, 4)
s_st = S(68, 4)

v_tid, v_lane, v_lin, v_t = V(0), V(1), V(2), V(3)
v_tr = [V(4, 4), V(8, 4)]
v_dA, v_dB = V(12, 4), V(16, 4)
v_ka = V(20, 4); v_va = V(24, 8); v_kd = V(32, 4); v_vd = V(36, 2)
v_wl = V(38)
v_c = V(39)
v_l0, v_l1 = V(40, 4), V(44, 4)
v_lsave = V(16, 4)
v_negm = V(48, 16)
v_S = [V(64, 32), V(96, 32)]
v_acc = V(128, 128)
a_ring = A(128, 32)
a_B = A(160, 32)
a_Q = A(0, 64)
a_F = A(0, 64)
a_x = A(248, 8)

RING = 65536
MARK = 0x7fc17fc1
WS_SP = 8 << 20
WS_DUMP = 32 << 20
WS_FL = (7 << 20) + (512 << 10)
S_FL = S(4, 4)

em = Em()
e = em.e

def srd(dst, lo, hi, size, off_s=None):
    if off_s is None:
        e(salu("s_mov_b32", dst[0], lo, scc_w=False)); e(salu("s_mov_b32", dst[1], hi, scc_w=False))
    else:
        e(salu("s_add_u32", dst[0], lo, off_s)); e(salu("s_addc_u32", dst[1], hi, 0, scc_r=True))
    e(salu("s_mov_b32", dst[2], hx(size), scc_w=False)); e(salu("s_mov_b32", dst[3], "0x20000", scc_w=False))

DIAG = int(os.environ.get("DIAG", "0"))
HC_OFF = 128
diag_regs = [S(100, 2), S(70, 2), S(72, 2), S(74, 2), S(96, 2), S(98, 2), S(68, 2)] if DIAG == 1 else [S(100, 2), S(96, 2), S(98, 2), S(94, 2), S(70, 2), S(72, 2), S(74, 2), S(68, 2)]
diag_n = [0]
def diag(which=1):
    if not DIAG or (which != DIAG and which != 0): return
    k = diag_n[0]; diag_n[0] += 1
    e(raw("s_memrealtime %s" % diag_regs[k], "other", wr=[diag_regs[k]]))
    if k > 0: e(raw("s_waitcnt lgkmcnt(0)", "wait")); em._retire(em.lgq, 0)
AMP = os.environ.get("AMP")
def diag_out():
    if not DIAG: return
    diag(0)
    if AMP:
        k = int(AMP); last = diag_regs[diag_n[0] - 1]
        e(salu("s_sub_u32", s_t0, diag_regs[k][0], diag_regs[0][0])); e(salu("s_lshl_b32", s_t0, s_t0, 2))
        em.label("L_amp")
        e(raw("s_memrealtime s[56:57]")); e(raw("s_waitcnt lgkmcnt(0)"))
        e(salu("s_sub_u32", s_t1, s_t1, last[0])); e(scmp("s_cmp_lt_u32", s_t1, s_t0)); e(raw("s_cbranch_scc1 L_amp", rd=["scc"]))
        return
    e(scmp("s_cmp_lg_u32", s_w, 0)); e(raw("s_cbranch_scc1 L_end", rd=["scc"]))
    e(raw("s_mov_b64 exec, 1", "salu", wr=["exec"]))
    e(salu("s_not_b32", s_t0, diag_regs[0][0]))
    for k in range(diag_n[0]):
        e(valu("v_mov_b32", V(4 + k), s_t0 if k == 0 else diag_regs[k][0]))
        e(raw("buffer_atomic_umax %s, off, %s, 0 offset:%d sc1" % (V(4 + k), S_DBG, 4 * k)))
    e(valu("v_mov_b32", V(12), diag_regs[0][0]))
    e(raw("buffer_atomic_umax %s, off, %s, 0 offset:%d sc1" % (V(12), S_DBG, 4 * 9)))
stamp_n = [0]
def stamp():
    if not STAMP: return
    k = stamp_n[0]; stamp_n[0] += 1
    e(raw("s_memtime %s" % S(68, 2), "other", wr=[S(68, 2)]))
    e(raw("s_memrealtime %s" % S(70, 2), "other", wr=[S(70, 2)]))
    e(raw("s_waitcnt lgkmcnt(0)", "wait")); em._retire(em.lgq, 0)
    for i in range(4): e(valu("v_writelane_b32", v_c, S(68 + i), i, rmw=True))
    e(salu("s_lshl_b32", S(72), S(2), 2)); e(salu("s_add_u32", S(72), S(72), s_w)); e(salu("s_lshl_b32", S(72), S(72), 9))
    e(salu("s_mov_b64", S(74, 2), "exec", scc_w=False)); e(raw("s_mov_b64 exec, 15", "salu", wr=["exec"]))
    e(valu("v_lshlrev_b32", v_t, 2, v_lane))
    e(bstore(v_c, v_t, S_DMP, S(72), off=k * 16))
    e(raw("s_mov_b64 exec, %s" % S(74, 2), "salu", wr=["exec"]))
    e(valu("v_lshlrev_b32", v_t, 7, v_lane))

def dump_regs(regs, finish=True):
    em.wait(lg0=True, vm0=True)
    e(nop(7)); e(nop(7))
    n = len(regs)
    e(salu("s_lshl_b32", s_t0, S(2), 2)); e(salu("s_add_u32", s_t0, s_t0, s_w)); e(salu("s_mul_i32", s_t0, s_t0, n * 256, scc_w=False))
    e(valu("v_lshlrev_b32", v_t, 2, v_lane))
    for k, r in enumerate(regs):
        e(bstore(r, v_t, S_DMP, s_t0, off=0))
        e(salu("s_add_u32", s_t0, s_t0, 256))
        if k % 32 == 31: em.wait(vm0=True)
    em.wait(vm0=True)
    if finish: e(raw("s_endpgm"))

def red4(op, x, tmp):
    for sw in ("v_permlane32_swap_b32", "v_permlane16_swap_b32"):
        for a, t in zip(x, tmp): e(valu("v_mov_b32", t, a))
        if len(x) < 3: e(nop(1))
        for a, t in zip(x, tmp): e(valu(sw, a, t))
        for a, t in zip(x, tmp): e(valu(op, a, a, t))

e(scmp("s_cmp_ge_u32", S(2), 256)); e(raw("s_cbranch_scc1 L_end", rd=["scc"]))
diag(0)
i0 = e(I("s_load_dwordx16 %s, s[0:1], 0" % s_ka, "smem", wr=s_ka.regs()))
i1 = e(I("s_load_dwordx8 %s, s[0:1], 64" % s_kb, "smem", wr=s_kb.regs()))
vq, vG, vr, vc_, vx, vy, vz = [V(40 + i) for i in range(7)]
e(raw("s_getpc_b64 %s" % s_pair, "salu", wr=[s_pair]))
em.label("L_pc0")
e(valu("v_lshlrev_b32", vy, 7, v_tid))
TORD = int(os.environ.get("TORD", "1"))
vcw = V(52)
e(valu("v_mov_b32", vcw, vy))
ctouch = I("global_load_dword %s, %s, %s" % (V(49), vcw, s_pair2), "vmem", rd=vcw.regs() + s_pair2.regs(), wr=V(49).regs())
e(salu("s_mov_b64", s_pair2, s_pair, scc_w=False))
if TORD == 0: e(ctouch)
e(salu("s_and_b32", s_g, S(2), 7)); e(salu("s_lshr_b32", s_qb, S(2), 3))
e(valu("v_and_b32", v_lane, 63, v_tid))
e(valu("v_lshrrev_b32", v_t, 6, v_tid))
e(valu("v_lshlrev_b32", v_lin, 4, v_lane))
e(valu("v_readfirstlane_b32", s_w, v_t))
e(valu("v_and_b32", vq, 15, v_lane)); e(valu("v_lshrrev_b32", vG, 4, v_lane))
vxo = V(47)
e(valu("v_lshl_add_u32", vxo, v_t, 4, vq)); e(valu("v_lshlrev_b32", vxo, 10, vxo)); e(valu("v_lshl_add_u32", vxo, vG, 4, vxo))
e(salu("s_mul_i32", s_t1, s_g, 448, scc_w=False)); e(salu("s_and_b32", s_t1, s_t1, hx(~127)))
e(salu("s_mul_i32", s_t2, s_qb, 16 * 3584, scc_w=False)); e(salu("s_add_u32", s_t1, s_t1, s_t2))
e(valu("v_lshrrev_b32", vx, 2, v_lane)); e(valu("v_mul_u32_u24", vx, 3584, vx)); e(valu("v_and_b32", vz, 3, v_lane)); e(valu("v_lshl_add_u32", vx, vz, 7, vx))
e(scmp("s_cmp_lt_u32", s_w, 2)); e(raw("s_cbranch_scc1 L_warm_a", rd=["scc"]))
e(salu("s_lshl_b32", s_t1, s_qb, 4)); e(salu("s_lshl_b32", s_t2, s_w, 3)); e(salu("s_add_u32", s_t1, s_t1, s_t2)); e(salu("s_sub_u32", s_t1, s_t1, 16))
e(salu("s_lshl_b32", s_t1, s_t1, 13)); e(salu("s_lshl_b32", s_t2, s_g, 10)); e(salu("s_add_u32", s_t1, s_t1, s_t2))
e(valu("v_lshrrev_b32", vx, 3, v_lane)); e(valu("v_lshlrev_b32", vx, 13, vx)); e(valu("v_and_b32", vz, 7, v_lane)); e(valu("v_lshl_add_u32", vx, vz, 7, vx))
em.label("L_warm_a")
e(valu("v_add_u32", vx, s_t1, vx))
e(salu("s_lshl_b32", s_t0, s_qb, 16))
em.wait(lg0=True)
e(scmp("s_cmp_eq_u32", s_w, 0)); e(salu("s_cselect_b64", s_pair, s_ka[(12, 2)], s_ka[(14, 2)], scc_w=False, scc_r=True))
e(scmp("s_cmp_ge_u32", s_w, 2)); e(salu("s_cselect_b64", s_pair, s_ka[(6, 2)], s_pair, scc_w=False, scc_r=True))
wtouch = I("global_load_dword %s, %s, %s" % (V(48), vx, s_pair), "vmem", rd=vx.regs() + s_pair.regs(), wr=V(48).regs())
if TORD == 0: e(wtouch)
diag(2)
srd(S_X, s_ka[0], s_ka[1], 65536, s_t0)
v_xp = V(64, 64)
xl = []
for ks in range(16):
    xl.append(e(bload(v_xp[(4 * ks, 4)], vxo, S_X, 0, off=64 * ks)))
if TORD == 1: e(wtouch); e(ctouch)
diag(2)
e(salu("s_lshr_b32", s_t2, s_qb, 3)); e(salu("s_lshl_b32", s_t3, s_g, 2)); e(salu("s_add_u32", s_t2, s_t2, s_t3))
e(salu("s_lshl_b32", s_t0, s_t2, 16))
srd(S_OUT, s_kb[2], s_kb[3], 65536, s_t0)
e(salu("s_lshl_b32", s_t1, s_g, 19))
srd(S_K, s_ka[2], s_ka[3], 524288, s_t1)
srd(S_V, s_ka[4], s_ka[5], 524288, s_t1)
srd(S_WO, s_ka[8], s_ka[9], 524288, s_t1)
srd(S_WQ, s_ka[6], s_ka[7], 4 << 20)
srd(S_WG, s_ka[12], s_ka[13], 1835008)
srd(S_WU, s_ka[14], s_ka[15], 1835008)
srd(S_WD, s_kb[0], s_kb[1], 1835008)
srd(S_DBG, s_kb[4], s_kb[5], 256)
e(salu("s_mul_i32", s_t1, s_qb, 229376, scc_w=False))
srd(S_H, s_kb[6], s_kb[7], 229376, s_t1)
e(salu("s_lshl_b32", s_t1, s_qb, 19)); e(salu("s_add_u32", s_t1, s_t1, hx(WS_SP)))
srd(S_SP, s_kb[6], s_kb[7], 524288, s_t1)
if DUMP or STAMP:
    e(salu("s_mov_b32", s_t1, hx(WS_DUMP), scc_w=False))
    srd(S_DMP, s_kb[6], s_kb[7], 200 << 20, s_t1)
e(salu("s_mov_b64", s_pair, S(90, 2), scc_w=False))
e(salu("s_lshl_b32", s_t0, s_t2, 16))
srd(S_XC, s_ka[0], s_ka[1], 65536, s_t0)
e(salu("s_mul_i32", s_t1, s_t2, 229376, scc_w=False))
srd(S_HC, s_pair[0], s_pair[1], 229376, s_t1)
e(salu("s_lshl_b32", s_t1, s_t2, 19)); e(salu("s_add_u32", s_t1, s_t1, hx(WS_SP)))
srd(S_SPC, s_pair[0], s_pair[1], 524288, s_t1)
e(salu("s_mov_b32", s_cq, s_t2, scc_w=False)); e(salu("s_and_b32", s_cg, s_qb, 7))
e(salu("s_mov_b32", s_t1, hx(WS_FL), scc_w=False))
srd(S_FL, s_pair[0], s_pair[1], 4096, s_t1)
e(salu("s_lshl_b32", s_myfl, s_qb, 7)); e(salu("s_lshl_b32", s_t1, s_g, 2)); e(salu("s_add_u32", s_myfl, s_myfl, s_t1))
e(salu("s_lshl_b32", s_m0b, s_w, 12)); e(salu("s_add_u32", s_m0b, s_m0b, RING))
e(salu("s_and_b32", s_t1, s_g, 1)); e(salu("s_lshl_b32", s_t1, s_t1, 2)); e(salu("s_add_u32", s_t1, s_t1, s_w))
e(scmp("s_cmp_eq_u32", s_w, 3)); e(salu("s_cselect_b32", s_t1, 3, s_t1, scc_w=False, scc_r=True))
e(salu("s_lshr_b32", s_t2, s_g, 1)); e(salu("s_mul_i32", s_t2, s_t2, 7, scc_w=False)); e(salu("s_add_u32", s_t1, s_t1, s_t2))
e(salu("s_lshl_b32", s_h0, s_t1, 13)); e(salu("s_add_u32", s_h1, s_h0, 4096))
e(salu("s_lshl_b32", s_t1, s_t1, 7))
e(salu("s_lshl_b32", s_t2, s_g, 2)); e(salu("s_add_u32", s_t2, s_t2, s_w)); e(salu("s_lshl_b32", s_t2, s_t2, 8))

def dma_voffs(dst, stride, colbase_s, perm):
    for j in range(4):
        e(valu("v_bfe_u32", vx, v_lane, 1, 2)); e(valu("v_bfe_u32", vy, v_lane, 4, 1))
        e(valu("v_xor_b32", vx, vx, vy))
        if j & 1: e(valu("v_xor_b32", vx, 2, vx))
        e(valu("v_and_b32", vy, 1, v_lane)); e(valu("v_lshlrev_b32", vy, 4, vy)); e(valu("v_lshl_add_u32", vx, vx, 5, vy))
        if not perm:
            e(valu("v_lshrrev_b32", vy, 3, v_lane)); rowadd = 8 * j
        else:
            e(valu("v_bfe_u32", vy, v_lane, 3, 2)); e(valu("v_bfe_u32", vz, v_lane, 5, 1)); e(valu("v_lshl_add_u32", vy, vz, 4, vy)); rowadd = 4 * j
        e(valu("v_mul_u32_u24", vy, stride, vy))
        e(valu("v_add3_u32", vx, vx, vy, colbase_s))
        e(valu("v_add_u32", dst[j], rowadd * stride - j * 1024, vx))

dma_voffs(v_dA, 3584, s_t1, False)
dma_voffs(v_dB, 8192, s_t2, False)

def m0set(p): return salu("s_add_u32", "m0", s_m0b, p * 16384)
def s1_dma(m):
    p = m % 6
    if m < 32:
        s, h = m >> 1, m & 1
        return [m0set(p), salu("s_mov_b32", s_off, s * 32 * 3584, scc_w=False)], [dma(v_dA[j], S_WU if h else S_WG, s_off, j * 1024) for j in range(4)]
    if m < 64:
        s, h = (m - 32) >> 1, m & 1
        return [m0set(p), salu("s_mov_b32", s_off, s * 32 * 8192 + 128 * h, scc_w=False)], [dma(v_dB[j], S_WQ, s_off, j * 1024) for j in range(4)]
    if m == 64:
        return [m0set(p), salu("s_mov_b32", s_off, 0, scc_w=False)], [dma(v_kd[j], S_K, s_off, j * 1024) for j in range(4)]
    if m == 65:
        return [m0set(p), salu("s_mov_b32", s_off, 8192, scc_w=False)], [dma(v_kd[j], S_K, s_off, j * 1024) for j in range(4)]
    if m == 66:
        return [m0set(p), salu("s_mov_b32", s_off, 0, scc_w=False)], [dma(v_vd[j & 1], S_V, s_off, j * 1024) for j in range(4)]
    return None
dtok = {}
ln_v = []
for m in range(6):
    sa, dm = s1_dma(m)
    ln_v.append(sa); ln_v += dm
    dtok[m] = dm[3]
def xaddr(dst, tmp):
    e(valu("v_and_b32", dst, 15, v_lane)); e(salu("s_lshl_b32", s_t0, s_w, 4)); e(valu("v_add_u32", dst, s_t0, dst)); e(valu("v_lshlrev_b32", dst, 10, dst))
    e(valu("v_lshrrev_b32", tmp, 4, v_lane)); e(valu("v_lshl_add_u32", dst, tmp, 3, dst)); e(salu("s_lshl_b32", s_t0, s_cg, 7)); e(valu("v_add_u32", dst, s_t0, dst))
vxs, vzero = V(50), V(51)
xaddr(vxs, vy)
e(valu("v_mov_b32", vzero, 0))
ln_v += [bload(a_x[(2 * u, 2)], vxs, S_XC, 0, off=32 * u, n=2) for u in range(4)]
ln_v.append([raw("s_mov_b64 exec, 1", "salu", wr=["exec"]), bstore(vzero, None, S_FL, s_myfl, mod="sc1"), raw("s_mov_b64 exec, -1", "salu", wr=["exec"])])
lv = [0]
def ln_issue(n=1):
    k = 0
    while k < n and lv[0] < len(ln_v):
        it = ln_v[lv[0]]; lv[0] += 1
        e(it)
        if not isinstance(it, list): k += 1
diag(2)
e(valu("v_bfe_u32", vr, v_lane, 2, 2)); e(valu("v_and_b32", vc_, 3, v_lane))
e(valu("v_lshlrev_b32", vx, 10, vG)); e(valu("v_lshl_add_u32", vx, vr, 7, vx)); e(valu("v_lshl_add_u32", vx, vc_, 3, vx)); e(valu("v_add_u32", vx, s_m0b, vx))
e(valu("v_lshrrev_b32", vy, 1, vr)); e(valu("v_and_b32", vz, 1, vG)); e(valu("v_lshl_add_u32", vy, vz, 1, vy))
for u in range(4):
    e(valu("v_xor_b32", vz, u, vy)); e(valu("v_lshl_add_u32", v_tr[0][u], vz, 5, vx)); e(valu("v_add_u32", v_tr[1][u], 3 * 16384, v_tr[0][u]))
e(valu("v_xor_b32", vy, vG, vq))
for ds in range(4):
    e(valu("v_xor_b32", vz, 4 * ds, vy)); e(valu("v_lshlrev_b32", vz, 4, vz)); e(valu("v_lshl_add_u32", vz, vq, 8, vz)); e(valu("v_add_u32", v_ka[ds], RING + 4 * 16384, vz))
e(valu("v_lshl_add_u32", vx, vG, 2, vr)); e(valu("v_and_b32", vy, 7, vx)); e(valu("v_lshlrev_b32", vx, 8, vx)); e(valu("v_lshl_add_u32", vx, vc_, 3, vx)); e(valu("v_add_u32", vx, RING, vx))
for db in range(8):
    e(valu("v_xor_b32", vz, db, vy)); e(valu("v_lshl_add_u32", v_va[db], vz, 5, vx))
e(salu("s_lshl_b32", s_t1, s_w, 12))
e(valu("v_lshlrev_b32", vx, 8, vG)); e(valu("v_add_u32", vx, s_t1, vx))
for j in range(4):
    e(valu("v_add_u32", vy, 4 * j, vG)); e(valu("v_xor_b32", vy, vy, vq)); e(valu("v_lshl_add_u32", v_kd[j], vy, 4, vx))
e(valu("v_and_b32", vz, 1, v_lane)); e(valu("v_lshl_add_u32", vx, vz, 4, vx))
for j in range(2):
    e(valu("v_add_u32", vy, 4 * j, vG)); e(valu("v_lshrrev_b32", vz, 1, vq)); e(valu("v_xor_b32", vy, vy, vz)); e(valu("v_lshl_add_u32", v_vd[j], vy, 5, vx))
e(salu("s_lshl_b32", s_t1, s_w, 14)); e(valu("v_add_u32", v_wl, s_t1, v_lin))
e(salu("s_mov_b32", s_retry, 0, scc_w=False))
stamp()

v_f = V(128, 128)
acc = [V(52, 2), V(54, 2), V(56, 2), V(58, 2)]
diag(2)
for ks in range(16):
    em.wait(vm=xl[ks])
    if ks in (0, 15): diag(2)
    for k in range(4):
        p = 4 * ks + k
        e(valu("v_lshlrev_b32", v_f[2 * p], 16, v_xp[p])); e(valu("v_and_b32", v_f[2 * p + 1], "0xffff0000", v_xp[p]))
    for k in range(4):
        p = 4 * ks + k
        if ks == 0: e(valu("v_mov_b64", acc[k], v_f[(2 * p, 2)]))
        else: e(valu("v_pk_add_f32", acc[k], acc[k], v_f[(2 * p, 2)]))
ln_issue(int(os.environ.get("LN_FIRST", "4")))
e(valu("v_pk_add_f32", acc[0], acc[0], acc[1])); e(valu("v_pk_add_f32", acc[2], acc[2], acc[3])); e(valu("v_pk_add_f32", acc[0], acc[0], acc[2]))
vsum, vtmp, vmb, vdm = V(60), V(61), V(62), V(63)
e(valu("v_add_f32", vsum, acc[0][0], acc[0][1]))
red4("v_add_f32", [vsum], [vtmp])
e(valu("v_mul_f32", vsum, hx(f2u(1.0 / 512)), vsum))
e(valu("v_cvt_pk_bf16_f32", vmb, vsum, vsum)); e(valu("v_lshlrev_b32", vmb, 16, vmb))
e(valu("v_sub_f32", vdm, vsum, vmb))
vneg = V(52, 2)
e(valu("v_sub_f32", vneg[0], 0, vmb))
acc2 = [V(54, 2), V(56, 2), V(58, 2)]
for p in range(64):
    e(valu("v_pk_add_f32", v_f[(2 * p, 2)], v_f[(2 * p, 2)], vneg, mod="op_sel_hi:[1,0]"))
    if p % 8 == 7: ln_issue()
for p in range(64):
    if p % 8 == 7: ln_issue()
    a_ = acc2[p % 3]
    if p < 3: e(valu("v_pk_mul_f32", a_, v_f[(2 * p, 2)], v_f[(2 * p, 2)]))
    else: e(valu("v_pk_fma_f32", a_, v_f[(2 * p, 2)], v_f[(2 * p, 2)], a_))
e(valu("v_pk_add_f32", acc2[0], acc2[0], acc2[1])); e(valu("v_pk_add_f32", acc2[0], acc2[0], acc2[2]))
e(valu("v_add_f32", vsum, acc2[0][0], acc2[0][1]))
red4("v_add_f32", [vsum], [vtmp])
e(valu("v_mul_f32", vsum, hx(f2u(1.0 / 512)), vsum))
e(valu("v_fma_f32", vsum, "-" + str(vdm), vdm, vsum, extra_rd=vdm.regs()))
e(valu("v_max_f32", vsum, 0, vsum))
e(valu("v_cvt_pk_bf16_f32", vsum, vsum, vsum)); e(valu("v_lshlrev_b32", vsum, 16, vsum))
e(valu("v_add_f32", vsum, hx(f2u(1e-5)), vsum))
e(valu("v_cvt_pk_bf16_f32", vsum, vsum, vsum)); e(valu("v_lshlrev_b32", vsum, 16, vsum))
e(valu("v_sqrt_f32", vsum, vsum)); e(nop(0))
e(valu("v_cvt_pk_bf16_f32", vsum, vsum, vsum)); e(valu("v_lshlrev_b32", vsum, 16, vsum))
e(valu("v_rcp_f32", vneg[0], vsum)); e(nop(0))
for ks in range(16):
    for k in range(4):
        p = 4 * ks + k
        e(valu("v_pk_mul_f32", v_f[(2 * p, 2)], v_f[(2 * p, 2)], vneg, mod="op_sel_hi:[1,0]"))
    for k in range(4):
        p = 4 * ks + k
        e(valu("v_cvt_pk_bf16_f32", v_xp[p], v_f[2 * p], v_f[2 * p + 1]))
    e(dswrite("ds_write_b128", v_wl, v_xp[(4 * ks, 4)], ks * 1024))
    ln_issue()
ln_issue(100)
if DUMP == "ln": dump_regs([v_xp[i] for i in range(64)])
em.wait(lg0=True)
e(raw("s_barrier"))
stamp(); diag()

def run_stream(NH, dmaf, dtok, accf, Bf, extra, vstream, LOOK=6, nq=4, pos0=0, ring=a_ring):
    NG = 4 * NH
    rtok = {}
    def reads(g):
        m, u = g >> 2, g & 3
        p = (m + pos0) % 6
        d = ring[((g % 8) * 4, 4)]
        r = [dsread("ds_read_b64_tr_b16", d[(2 * h2, 2)], v_tr[p // 3][u], (p % 3) * 16384 + h2 * 512) for h2 in range(2)]
        rtok[g] = r[1]
        return r
    em.wait(vm=dtok[0])
    for g in range(3): e(reads(g))
    for pre in extra.get(-1, []): e(pre[1])
    em.wait(lg0=True)
    vi = 0
    for g in range(NG):
        m, u = g >> 2, g & 3
        gaps = [[], [], [], []]; cap = [2, 2, 2, 2]
        if g + 3 < NG:
            if (g + 3) & 3 == 0: gaps[0].append(Wait(vm=dtok[(g + 3) >> 2]))
            r = reads(g + 3); gaps[0].append(r[0]); gaps[1].append(r[1]); cap[0] -= 1; cap[1] -= 1
        md, j = (g + 4 * LOOK - 4) >> 2, (g + 4 * LOOK - 4) & 3
        if md >= LOOK:
            if j == 0: cur = dmaf(md)
            if cur is not None:
                if j == 0: gaps[2] += cur[0]
                items = cur[1][j::4]
                for it in items: gaps[3].append(it); cap[3] -= 1
                if j == 3: dtok[md] = cur[1][3]
        for (gp, it, cost) in extra.get(g, []):
            gaps[gp].append(it); cap[gp] -= cost
        if g + 1 < NG: gaps[3].insert(0, Wait(lg=rtok[g + 1]))
        d = ring[((g % 8) * 4, 4)]
        for qb in range(nq):
            ac, first = accf(m, u, qb)
            e(mfma(ac, d, Bf(m, qb), 0 if first else ac))
            for it in gaps[qb]: e(it)
            c = cap[qb]
            quota = vstream.quota(g) if vstream else 0
            while vstream and vstream.has(g) and (c > 0 or quota > 0):
                it = vstream.peek()
                cost = 2 if it.kind == "trans" else 1
                if cost > c and quota <= 0: break
                if cost > c: quota -= 1; vstream.used_quota()
                e(vstream.pop()); c -= cost
    if vstream:
        while vstream.has(10 ** 9): e(vstream.pop())

class VStream:
    def __init__(self, items, start, end, extra_total=0):
        self.items = items; self.i = 0; self.start = start; self.end = end
        self.extra_total = extra_total; self.used = 0
    def has(self, g): return self.i < len(self.items) and g >= self.start
    def peek(self): return self.items[self.i]
    def pop(self): self.i += 1; return self.items[self.i - 1]
    def quota(self, g):
        if g < self.start: return 0
        allowed = (g - self.start + 1) * self.extra_total // max(1, self.end - self.start)
        return 1 if allowed > self.used else 0
    def used_quota(self): self.used += 1

def s1_acc(m, u, qb):
    h = m & 1
    idx = ((h * 4 + u) * 4 + qb) * 4
    if m < 32: return A(idx, 4), m < 2
    return v_acc[(idx, 4)], m < 34
def s1_B(m, qb): return a_B[(((m >> 1) & 1) * 16 + qb * 4, 4)]
extra = {}
btok = {}
def bread(s, qb): return dsread("ds_read_b128", a_B[((s & 1) * 16 + qb * 4, 4)], v_lin, (qb * 16 + (s % 16)) * 1024)
extra[-1] = [(0, bread(0, qb), 1) for qb in range(4)]
for s in range(1, 32):
    for qb in range(4):
        extra.setdefault(8 * (s - 1) + 1 + qb, []).append((2, bread(s, qb), 1))
C0 = -2.0 * math.sqrt(2.0 / math.pi) * math.log2(math.e); C1 = C0 * 0.044715
vc0, vc1 = V(40), V(41)
gel = [valu("v_mov_b32", vc0, hx(f2u(C0))), valu("v_mov_b32", vc1, hx(f2u(C1)))]
hst = []
tb = 0
for i in range(2):
    for qb in range(4):
        pk = V(44 + 4 * (tb % 4), 4); tb += 1
        for b in range(2):
            u = 2 * i + b
            T = [V(64 + 16 * ((2 * tb + b) % 4) + k) for k in range(16)]
            G_, U_, X_ = T[0:4], T[4:8], T[8:12]
            ga = lambda r: A((u * 4 + qb) * 4 + r); ua = lambda r: A(((4 + u) * 4 + qb) * 4 + r)
            for r in range(4): gel.append(valu("v_accvgpr_read_b32", G_[r], ga(r)))
            for r in range(4): gel.append(valu("v_accvgpr_read_b32", U_[r], ua(r)))
            for r in range(4): gel.append(valu("v_mul_f32", X_[r], G_[r], G_[r]))
            for r in range(4): gel.append(valu("v_fma_f32", X_[r], X_[r], vc1, vc0))
            for r in range(4): gel.append(valu("v_mul_f32", X_[r], X_[r], G_[r]))
            for r in range(4): gel.append(valu("v_exp_f32", X_[r], X_[r]))
            for r in range(4): gel.append(valu("v_mul_f32", G_[r], G_[r], U_[r]))
            for r in range(4): gel.append(valu("v_add_f32", X_[r], "1.0", X_[r]))
            for r in range(4): gel.append(valu("v_rcp_f32", X_[r], X_[r]))
            gel.append(nop(0))
            for r in range(4): gel.append(valu("v_mul_f32", G_[r], G_[r], X_[r]))
            for k in range(2): gel.append(valu("v_cvt_pk_bf16_f32", pk[2 * b + k], G_[2 * k], G_[2 * k + 1]))
        st = bstore(pk, v_lin, S_H, s_h1 if i else s_h0, off=qb * 1024, mod="sc1")
        gel.append(st); hst.append(st)
class Stamp:
    def __call__(self): stamp(); return []
if STAMP: extra.setdefault(128, []).append((0, Stamp(), 0))
vs = VStream(gel, 131, GEL_END, extra_total=GEL_EXTRA)
run_stream(64, s1_dma, dtok, s1_acc, s1_B, extra, vs)
if DUMP == "qacc": dump_regs([v_acc[i] for i in range(128)])
stamp()

em.wait(lg0=True)
e(raw("s_barrier"))
def signal(off_s_expr_add, lab):
    e(scmp("s_cmp_lg_u32", s_w, 0)); e(raw("s_cbranch_scc1 %s" % lab, rd=["scc"]))
    e(salu("s_lshl_b32", s_t0, s_qb, 2))
    if off_s_expr_add: e(salu("s_add_u32", s_t0, s_t0, off_s_expr_add))
    e(valu("v_mov_b32", v_t, 1))
    e(raw("s_mov_b64 exec, 1", "salu", wr=["exec"]))
    e(raw("buffer_atomic_add %s, off, %s, %s sc1" % (v_t, S_DBG, s_t0)))
    e(raw("s_mov_b64 exec, -1", "salu", wr=["exec"]))
    em.label(lab)
QS = math.log2(math.e) / math.sqrt(128.0)
vqs = V(40, 2); vqw = V(42)
e(valu("v_mov_b32", vqs[0], hx(f2u(QS))))
e(valu("v_and_b32", v_t, 15, v_lane)); e(valu("v_bfe_u32", vqw, v_lane, 5, 1)); e(valu("v_lshl_add_u32", v_t, vqw, 4, v_t)); e(valu("v_lshlrev_b32", v_t, 4, v_t))
e(valu("v_bfe_u32", vqw, v_lane, 4, 1)); e(valu("v_lshl_add_u32", vqw, vqw, 3, v_t))
e(salu("s_lshl_b32", s_t1, s_w, 14)); e(valu("v_add_u32", vqw, s_t1, vqw))
for blk in range(8):
    for qb in range(4):
        a_ = v_acc[((blk * 4 + qb) * 4, 4)]
        t = V(64 + 2 * ((blk * 4 + qb) % 8), 2)
        for k in range(2): e(valu("v_pk_mul_f32", a_[(2 * k, 2)], a_[(2 * k, 2)], vqs, mod="op_sel_hi:[1,0]"))
        for k in range(2): e(valu("v_cvt_pk_bf16_f32", t[k], a_[2 * k], a_[2 * k + 1]))
        if len(em.lgq) >= 7: em.wait(lg=em.lgq[-7])
        e(dswrite("ds_write_b64", vqw, t, (qb * 4 + (blk >> 1)) * 1024 + (blk & 1) * 512))
em.wait(lg0=True)
for f in range(16):
    e(dsread("ds_read_b128", a_Q[(4 * f, 4)], v_wl, f * 1024))
    if f == 7: pass
vx, vy, vz = V(96), V(97), V(98)
e(salu("s_lshl_b32", s_t1, s_w, 8))
dma_voffs(v_dA, 1024, s_t1, True)
em.label("L_att_start")
for i in range(64): e(valu("v_mov_b64", v_acc[(2 * i, 2)], 0))
for i in range(4): e(valu("v_mov_b32", v_l0[i], 0)); e(valu("v_mov_b32", v_l1[i], 0))
em.wait(vm0=True, lg0=True)
e(raw("s_barrier"))
e(scmp("s_cmp_lg_u32", s_retry, 0)); e(raw("s_cbranch_scc1 L_sigH", rd=["scc"]))
signal(HC_OFF, "L_sigH")
if DUMP == "q": dump_regs([a_Q[i] for i in range(64)])
stamp()

def Qf(qb, ds): return a_Q[((qb * 4 + ds) * 4, 4)]
def Of(db, qb): return v_acc[((db * 4 + qb) * 4, 4)]
def fr(f): return a_ring[((f % 8) * 4, 4)]
def kslot(par): return 16384 if par == 0 else 0
def vslot(par): return 0 if par == 0 else 16384
def frag_reads(par, f):
    if f >= 32: par ^= 1; f -= 32
    d = fr(f)
    if f < 8 or 16 <= f < 24:
        kb = (f >> 2) if f < 8 else 2 + ((f - 16) >> 2)
        return [dsread("ds_read_b128", d, v_ka[f & 3], kslot(par) + kb * 4096)]
    ks2 = 0 if f < 16 else 1
    db = f & 7
    return [dsread("ds_read_b64_tr_b16", d[(2 * h, 2)], v_va[db], vslot(par) + ks2 * 8192 + h * 4096) for h in range(2)]
def read_sched(g):
    r = []
    if g + 3 < 24 or g >= 29: r.append(g + 3)
    if 19 <= g <= 26: r.append(g + 5)
    return r
def sm_val(g, k):
    if 7 <= g <= 22: b = 1; n = 2 * (g - 7) + k
    else: b = 0; n = 2 * ((g - 23) % 32) + k
    kb, qb, r = n >> 4, (n >> 2) & 3, n & 3
    return b, qb, kb, r
def sm_items(g):
    ex, ad = [], []
    for k in range(2):
        b, qb, kb, r = sm_val(g, k)
        x = v_S[b][qb * 8 + kb * 4 + r]
        l = (v_l1 if b else v_l0)[qb]
        ex.append(valu("v_exp_f32", x, x)); ad.append(valu("v_add_f32", l, l, x))
    b, qb, kb, r = sm_val((g - 1) % 32, 0)
    cv = valu("v_cvt_pk_bf16_f32", v_S[b][qb * 8 + kb * 2 + (r >> 1)], v_S[b][qb * 8 + kb * 4 + r], v_S[b][qb * 8 + kb * 4 + r + 1])
    return ex, ad, cv
def att_dma(par, g):
    if g >= 29: k = g - 29; sp = par
    elif g <= 4: k = g + 3; sp = par ^ 1
    else: return [], None
    sal = []
    if k == 0: sal = [salu("s_add_u32", "m0", s_m0b, 4 * 16384 + kslot(sp))]
    if k == 4: sal = [salu("s_add_u32", "m0", s_m0b, vslot(sp))]
    if k < 4: return sal, dma(v_kd[k], S_K, s_kK, k * 1024)
    return sal, dma(v_vd[k & 1], S_V, s_kV, (k - 4) * 1024)
SIDE_FIRST = 11
class Lbl:
    def __init__(self, n): self.n = n
    def __call__(self): em.label(self.n); return []
class LoopStamp:
    def __init__(self, k, par): self.k, self.par = k, par
    def __call__(self):
        k = self.k
        e(raw("s_memtime %s" % S(68 + 2 * k, 2), "other", wr=[S(68 + 2 * k, 2)]))
        if k == 2:
            e(raw("s_waitcnt lgkmcnt(0)", "wait")); em._retire(em.lgq, 0)
            for i in range(3): e(valu("v_writelane_b32", v_c, S(68 + 2 * i), i, rmw=True))
            e(salu("s_lshl_b32", S(74), S(2), 2)); e(salu("s_add_u32", S(74), S(74), s_w)); e(salu("s_lshl_b32", S(74), S(74), 4))
            e(salu("s_sub_u32", S(74), S(74), s_cnt)); e(salu("s_add_u32", S(74), S(74), 16)); e(salu("s_lshl_b32", S(74), S(74), 5))
            e(salu("s_add_u32", S(74), S(74), (1 << 20) + 16 * self.par))
            e(raw("s_mov_b64 exec, 7", "salu", wr=["exec"]))
            e(valu("v_lshlrev_b32", v_t, 2, v_lane))
            e(bstore(v_c, v_t, S_DMP, S(74), off=0))
            e(raw("s_mov_b64 exec, -1", "salu", wr=["exec"]))
            e(valu("v_lshlrev_b32", v_t, 7, v_lane))
        return []
s_pf = [S(16, 2), S(18, 2), S(24, 2), S(26, 2)]
s_pfH = S(28, 2)
s_fo = S(3)
v_tch, v_flag = V(3), V(0)
xtok = []; lastdma = [None]
ROT = int(os.environ.get('ROT', '10'))
ftok = {}
def att_group(par, g, do_mfma=True, do_mem=True, do_cvt=True, last=False):
    ex, ad, cv = sm_items(g)
    mem = []
    sal = []
    if do_mem:
        for f in read_sched(g):
            r = frag_reads(par, f); mem += r; ftok[f % 32] = r
        sal, d = att_dma(par, g)
        if d is not None: mem.append(d)
    if do_mem and par == 0 and g == 5:
        mem.append(I("global_load_dword %s, %s, %s" % (v_flag, v_tch, s_pf[0]), "vmem", rd=v_tch.regs() + s_pf[0].regs(), wr=[])); xtok.append(mem[-1])
    if do_mem and par == 0 and g == 6:
        mem.append(I("buffer_load_dword %s, off, %s, %s sc1" % (v_flag, S_DBG, s_fo), "vmem", rd=S_DBG.regs() + s_fo.regs(), wr=[])); xtok.append(mem[-1])
    if do_mem and par == 0 and g in (8, 9, 10): sal = sal + [scmp("s_cmp_le_u32", s_cnt, ROT), salu("s_cselect_b64", s_pf[g - 8], s_pf[g - 7], s_pf[g - 8], scc_w=False, scc_r=True)]
    if do_mem and g == 4: lastdma[0] = d
    post0 = []
    if do_mem and do_mfma and par == 1 and g == 30: post0 = [valu("v_readfirstlane_b32", s_t0, v_flag)]
    if do_mem and do_mfma and par == 1 and g == 31: sal = sal + [scmp("s_cmp_lt_u32", s_cnt, ROT), salu("s_cselect_b32", s_t0, s_t0, 0, scc_w=False, scc_r=True), scmp("s_cmp_ge_u32", s_t0, 8), salu("s_cselect_b64", s_pf[3], s_pfH, s_pf[3], scc_w=False, scc_r=True)]
    gaps = [[], [], [], []]
    if g == 29 and do_mem:
        if STAMP == 2 and do_mfma: gaps[0] += [LoopStamp(0, par)]
        gaps[0] += [Wait(lg0=True, vm0=True) if (par == 1 or not do_mfma) else Wait(lg0=True, vm=lastdma[0])]
        if STAMP == 2 and do_mfma: gaps[0] += [LoopStamp(1, par)]
        gaps[0] += [raw("s_barrier")]
        if STAMP == 2 and do_mfma: gaps[0] += [LoopStamp(2, par)]
    gaps[0] += sal
    if g == 6 and do_mem: gaps[0].append(salu("s_add_u32", s_kK, s_kK, 16384))
    if g == 7 and do_mem: gaps[0].append(salu("s_add_u32", s_kV, s_kV, 16384))
    if g == 23 and par == 1 and do_mfma:
        gaps[0] += [valu("v_mov_b32", v_lsave[i], v_l0[i]) for i in range(4)]
    if len(mem) > 2: gaps[0].append(mem[2])
    gaps[0].append(ex[0])
    if len(mem) > 0: gaps[1].append(mem[0])
    if len(mem) == 0 and do_cvt: gaps[1].append(cv)
    gaps[1].append(ad[0])
    gaps[1] += post0
    if do_mem: gaps[2].append(Wait(lg=ftok.get((g + 1) % 32)))
    if last and g == 30: gaps[2].append(salu("s_sub_u32", s_cnt, s_cnt, 1))
    gaps[2].append(ex[1])
    if len(mem) > 1: gaps[3].append(mem[1])
    if len(mem) > 0 and do_cvt: gaps[3].append(cv)
    gaps[3].append(ad[1])
    for qb in range(4):
        if do_mfma:
            if g < 8 or 16 <= g < 24:
                b = 1 if g < 8 else 0
                kb, ds = (g >> 2) & 1, g & 3
                d = v_S[b][(qb * 8 + kb * 4, 4)]
                e(mfma(d, fr(g), Qf(qb, ds), v_negm[(qb * 4, 4)] if ds == 0 else d))
            else:
                b = 0 if g < 16 else 1
                e(mfma(Of(g & 7, qb), fr(g), v_S[b][(qb * 8, 4)], Of(g & 7, qb)))
        else:
            if qb & 1: e(nop(0))
        for it in gaps[qb]: e(it)

for it in range(3):
    e(salu("s_add_u32", s_t0, s_w, 4 * it))
    e(salu("s_sub_u32", s_t1, s_t0, 2)); e(salu("s_min_u32", s_t1, s_t1, 6)); e(salu("s_lshl_b32", s_t1, s_t1, 13))
    e(salu("s_mul_i32", s_t2, s_qb, 57344, scc_w=False)); e(salu("s_add_u32", s_t1, s_t1, s_t2))
    e(salu("s_add_u32", s_pf[it][0], S_WD[0], s_t1)); e(salu("s_addc_u32", s_pf[it][1], S_WD[1], 0, scc_r=True))
    if it == 0:
        e(scmp("s_cmp_ge_u32", s_w, 2)); e(raw("s_cbranch_scc1 L_pf_wd", rd=["scc"]))
        e(salu("s_lshl_b32", s_t1, s_qb, 14)); e(salu("s_lshl_b32", s_t2, s_w, 13)); e(salu("s_add_u32", s_t1, s_t1, s_t2))
        e(salu("s_add_u32", s_pf[0][0], S_WO[0], s_t1)); e(salu("s_addc_u32", s_pf[0][1], S_WO[1], 0, scc_r=True))
        em.label("L_pf_wd")
e(raw("s_getpc_b64 %s" % s_pf[3], "salu", wr=[s_pf[3]]))
em.label("L_pc1")
e(salu("s_lshl_b32", s_t0, s_w, 13)); e(salu("s_add_u32", s_t0, s_t0, "L_tail-L_pc1")); e(salu("s_min_u32", s_t0, s_t0, "L_code_end-L_pc1-8192"))
e(salu("s_add_u32", s_pf[3][0], s_pf[3][0], s_t0)); e(salu("s_addc_u32", s_pf[3][1], s_pf[3][1], 0, scc_r=True))
e(salu("s_lshl_b32", s_t0, s_cg, 2)); e(salu("s_add_u32", s_t0, s_t0, s_w)); e(salu("s_mul_i32", s_t0, s_t0, 7168, scc_w=False)); e(salu("s_min_u32", s_t0, s_t0, 229376 - 8192))
e(salu("s_add_u32", s_pfH[0], S_HC[0], s_t0)); e(salu("s_addc_u32", s_pfH[1], S_HC[1], 0, scc_r=True))
e(valu("v_lshlrev_b32", v_tch, 7, v_lane))
e(salu("s_lshl_b32", s_fo, s_cq, 2)); e(salu("s_add_u32", s_fo, s_fo, HC_OFF))
pr = [dsread("ds_read_b128", fr(f), v_ka[f & 3], (f >> 2) * 4096) for f in range(8)]
for r in pr: e(r)
e(scmp("s_cmp_lg_u32", s_retry, 0)); e(raw("s_cbranch_scc1 L_have_max", rd=["scc"]))
for i in range(16): e(valu("v_mov_b32", v_negm[i], 0))
em.label("L_have_max")
for f in range(8):
    em.wait(lg=pr[f])
    for qb in range(4):
        d = v_S[0][(qb * 8 + (f >> 2) * 4, 4)]
        e(mfma(d, fr(f), Qf(qb, f & 3), v_negm[(qb * 4, 4)] if (f & 3) == 0 else d))
e(salu("s_mov_b32", s_kK, 16384 + 8192, scc_w=False)); e(salu("s_mov_b32", s_kV, 16384, scc_w=False)); e(salu("s_mov_b32", s_cnt, 16, scc_w=False))
e(scmp("s_cmp_lg_u32", s_retry, 0)); e(raw("s_cbranch_scc1 L_have_max2", rd=["scc"]))
e(nop(3))
mx = [V(96 + i) for i in range(4)]; mt = [V(100 + i) for i in range(4)]
for qb in range(4): e(valu("v_max3_f32", mx[qb], v_S[0][qb * 8], v_S[0][qb * 8 + 1], v_S[0][qb * 8 + 2]))
for qb in range(4): e(valu("v_max3_f32", mx[qb], mx[qb], v_S[0][qb * 8 + 3], v_S[0][qb * 8 + 4]))
for qb in range(4): e(valu("v_max3_f32", mx[qb], mx[qb], v_S[0][qb * 8 + 5], v_S[0][qb * 8 + 6]))
for qb in range(4): e(valu("v_max_f32", mx[qb], mx[qb], v_S[0][qb * 8 + 7]))
red4("v_max_f32", mx, mt)
for qb in range(4):
    for k in range(4): e(valu("v_sub_f32", v_negm[qb * 4 + k], 0, mx[qb]))
for qb in range(4):
    for k in range(8): e(valu("v_sub_f32", v_S[0][qb * 8 + k], v_S[0][qb * 8 + k], mx[qb]))
em.label("L_have_max2")
e(nop(7))
for g in range(23, 29): att_group(1, g, do_mfma=False, do_mem=False, do_cvt=(g != 23))
stamp(); diag()
for g in range(29, 32): att_group(1, g, do_mfma=False, do_mem=True)
pro_end = len(em.out)
em.directive(".p2align 6")
em.label("L_att_loop")
def body():
    for par in range(2):
        for g in range(32): att_group(par, g, last=(par == 1))
b0 = len(em.out)
body()
b1 = len(em.out)
e(scmp("s_cmp_lg_u32", s_cnt, 0)); e(raw("s_cbranch_scc1 L_att_loop", rd=["scc"]))
b2 = len(em.out)
body()
second = em.out[b2:]; del em.out[b2:]
assert [i.text for i in second] == [i.text for i in em.out[b0:b1]], "loop not in steady state"
loop_probs = check_hazards(em.out[b1 - 40:b2] + second[:60], "loop-wrap")
stamp()

em.label("L_tail")
diag()
v_ring2 = V(64, 32); v_B2 = V(96, 32)
def hreg(kk, qb): return A(64 + (kk % 12) * 16 + qb * 4, 4)
XY = int(os.environ.get("XY", "0"))
def mh(m): return ((m & 15), m >> 4) if XY else (m >> 1, m & 1)
P2 = 2
def s2_dma(m):
    p = (m + P2) % 6
    if m < 32:
        s, h = mh(m)
        return [m0set(p), salu("s_mov_b32", s_off, s * 32 * 1024 + 128 * h, scc_w=False)], [dma(v_dA[j], S_WO, s_off, j * 1024) for j in range(4)]
    if m < 46:
        return [m0set(p), salu("s_mov_b32", s_off, (m - 32) * 32 * 1024, scc_w=False)], [dma(v_dB[j], S_WD, s_off, j * 1024) for j in range(4)]
    return None
dtok2 = {}
post_v = []
for m in range(0, 6):
    sa, dm = s2_dma(m); post_v.append(sa); post_v += dm; dtok2[m] = dm[3]
pv = [0]
def post_issue(n):
    k = 0
    while k < n and pv[0] < len(post_v):
        it = post_v[pv[0]]; pv[0] += 1
        e(it)
        if not isinstance(it, list): k += 1
post_issue(4)
lt = [V(100 + i) for i in range(4)]
for qb in range(4): e(valu("v_add_f32", v_l1[qb], v_l1[qb], v_lsave[qb]))
red4("v_add_f32", [v_l1[i] for i in range(4)], lt)
e(salu("s_mov_b32", s_t0, hx(f2u(2.0 ** 30)), scc_w=False))
e(valu("v_add_f32", lt[1], v_l1[0], v_l1[1])); e(valu("v_add_f32", lt[2], v_l1[2], v_l1[3])); e(valu("v_add_f32", lt[1], lt[1], lt[2]))
e(valu("v_cmp_nge_f32", "vcc", s_t0, lt[1]))
rinv = [V(104 + 2 * i, 2) for i in range(4)]
for qb in range(4): e(valu("v_rcp_f32", rinv[qb][0], v_l1[qb]))
e(salu("s_mov_b64", s_pair, "vcc", scc_w=False))
post_issue(4)
for i in range(4):
    for qb in range(4):
        t = Of(2 * i, qb)
        for b in range(2):
            o = Of(2 * i + b, qb)
            for k in range(2): e(valu("v_pk_mul_f32", o[(2 * k, 2)], o[(2 * k, 2)], rinv[qb], mod="op_sel_hi:[1,0]"))
        if DUMP != "o":
            for b in range(2):
                o = Of(2 * i + b, qb)
                for k in range(2): e(valu("v_cvt_pk_bf16_f32", t[2 * b + k], o[2 * k], o[2 * k + 1]))
            if i == 0 and qb == 0:
                e(scmp("s_cmp_eq_u64", s_pair, 0)); e(raw("s_cbranch_scc1 L_nomark", rd=["scc"]))
                e(valu("v_mov_b32", t[0], hx(MARK)))
                em.label("L_nomark")
            if len(em.lgq) >= 12: em.wait(lg=em.lgq[-12])
            e(dswrite("ds_write_b128", v_wl, t, (i * 4 + qb) * 1024))
        post_issue(1)
post_issue(100)
if DUMP == "o": dump_regs([v_acc[i] for i in range(128)])
vm_ = V(56); vma = V(57)
e(valu("v_and_b32", vma, 3, v_lane)); e(valu("v_lshlrev_b32", vma, 14, vma))
e(salu("s_mov_b32", s_cnt, 0, scc_w=False))
em.label("L_pollH")
e(valu("v_readfirstlane_b32", s_t0, v_flag)); e(salu("s_mul_i32", s_hb, s_w, 14 * 4096, scc_w=False)); e(nop(1))
e(scmp("s_cmp_ge_u32", s_t0, 8)); e(raw("s_cbranch_scc1 L_pollH_done", rd=["scc"]))
e(salu("s_add_u32", s_cnt, s_cnt, 1)); e(scmp("s_cmp_ge_u32", s_cnt, 50000)); e(raw("s_cbranch_scc1 L_pollH_done", rd=["scc"]))
e(raw("s_sleep 4")); e(raw("buffer_load_dword %s, off, %s, %s sc1" % (v_flag, S_DBG, s_fo))); e(raw("s_waitcnt vmcnt(0)")); e(raw("s_branch L_pollH"))
em.label("L_pollH_done")
em.wait(lg0=True)
e(raw("s_barrier"))
stamp()
mk = e(dsread("ds_read_b32", vm_, vma, 0))
class FbCheck:
    def __call__(self):
        em.wait(lg=mk)
        e(valu("v_cmp_eq_u32", "vcc", hx(MARK), vm_))
        e(scmp("s_cmp_lg_u32", s_retry, 0)); e(raw("s_cbranch_scc1 L_nofb", rd=["scc"]))
        e(nop(1))
        e(raw("s_cbranch_vccnz L_fallback", rd=["vcc"]))
        em.label("L_nofb")
        return []

def s2_acc(m, u, qb):
    if m < 32: return v_acc[(((mh(m)[1] * 4 + u) * 4 + qb) * 4, 4)], mh(m)[0] == 0
    return a_F[((u * 4 + qb) * 4, 4)], m == 32
def bsel(m): return (m & 1) if XY else ((m >> 1) & 1)
def s2_B(m, qb):
    if m < 32: return v_B2[(bsel(m) * 16 + qb * 4, 4)]
    return hreg(m - 32, qb)
def oread(m, qb): return dsread("ds_read_b128", v_B2[(bsel(m) * 16 + qb * 4, 4)], v_lin, (mh(m)[0] * 4 + qb) * 1024)
extra = {-1: [(0, oread(0, qb), 1) for qb in range(4)] + [(0, FbCheck(), 0)]}
for m in range(1, 32):
    if XY:
        rr = [oread(m, qb) for qb in range(4)]
        for qb in range(4): extra.setdefault(4 * (m - 1) + (qb >> 1), []).append((2 + (qb & 1), rr[qb], 1))
        extra.setdefault(4 * m - 1, []).append((2, Wait(lg=rr), 0))
    elif (m & 1) == 0:
        for qb in range(4): extra.setdefault(4 * (m - 2) + 1 + qb, []).append((2, oread(m, qb), 1))
class LateWait:
    def __init__(self, f): self.f = f
    def __call__(self): return Wait(vm=self.f())
vxf = V(40, 8); vxa = V(48); vpoll = V(49); vfw = V(50)
vx, vy, vz = V(52), V(53), V(54)
save = em.out; em.out = []
for k in range(8): e(valu("v_accvgpr_read_b32", vxf[k], a_x[k]))
e(salu("s_mul_i32", s_t1, s_w, 448 * 1024, scc_w=False)); e(salu("s_lshl_b32", s_t3, s_cg, 7)); e(salu("s_add_u32", s_t1, s_t1, s_t3))
dma_voffs(v_dB, 1024, s_t1, True)
xaddr(vxa, vx)
e(valu("v_and_b32", V(51), 7, v_lane)); e(valu("v_lshlrev_b32", V(51), 2, V(51)))
e(salu("s_lshl_b32", s_t0, s_w, 12)); e(valu("v_add_u32", vfw, s_t0, v_lin))
e(salu("s_lshl_b32", s_t3, s_w, 4)); e(salu("s_add_u32", s_t3, s_t3, s_g)); e(salu("s_lshl_b32", s_t3, s_t3, 13))
early = em.out; em.out = save
class Seq:
    kind = "vmem"
    def __init__(self, l): self.l = l
    def __call__(self): return self.l
hld = {}; htok = {}
for kk in range(14):
    hld[kk] = [bload(hreg(kk, qb), v_lin, S_HC, s_hl, off=qb * 1024, mod="sc1") for qb in range(4)]
    htok[kk] = hld[kk][3]
    extra.setdefault(4 * (32 + kk) - 1, []).append((2, LateWait(lambda kk=kk: htok[kk]), 0))
hseq = []
for kk in range(14):
    for qb in range(4):
        hseq.append(Seq([salu("s_add_u32", s_hl, s_hb, kk * 4096), hld[kk][qb]]))
NPRE = int(os.environ.get("NPRE", "12")); HG0 = int(os.environ.get("HG0", "70")); HGS = int(os.environ.get("HGS", "4"))
for k in range(NPRE): extra.setdefault(HG0 + HGS * k, []).append((2, hseq[k], 1))
def sreg(ip, qb, odd=0): return v_acc[(((2 * ip + odd) * 4 + qb) * 4, 4)]
sp = []; spst = []
HPS = int(os.environ.get("HPS", "3")); hk = NPRE
for ip in range(4):
    for qb in range(4):
        t = sreg(ip, qb)
        for b in range(2):
            o = sreg(ip, qb, b)
            for k in range(2): sp.append(valu("v_cvt_pk_bf16_f32", t[2 * b + k], o[2 * k], o[2 * k + 1]))
        if (qb & 1) == 0: sp.append(salu("s_add_u32", s_t1, s_t3, (ip >> 1) * 65536 + (qb >> 1) * 4096))
        st = bstore(t, v_lin, S_SP, s_t1, off=(qb & 1) * 2048 + (ip & 1) * 1024, mod=os.environ.get("ST_MOD", "sc1").replace("plain", ""))
        if os.environ.get("ST_NONE") and not (ip == 3 and qb == 3): st = nop(0)
        sp.append(st); spst.append(st)
        if not (XY and ip < 2):
            for _ in range(HPS * (2 if XY else 1)):
                if hk < 48: sp.append(hseq[hk]); hk += 1
for k in range(hk, 48): sp.append(hseq[k])
for k in range(48, 56): extra.setdefault(140 + (k - 48), []).append((2, hseq[k], 1))
class SigS:
    def __call__(self):
        stamp(); em.wait(vm=spst[-1]); stamp(); e(raw("s_barrier"))
        e(scmp("s_cmp_lg_u32", s_w, 0)); e(raw("s_cbranch_scc1 L_sigS", rd=["scc"]))
        e(valu("v_mov_b32", v_t, 1))
        e(raw("s_mov_b64 exec, 1", "salu", wr=["exec"]))
        e(raw("buffer_store_dword %s, off, %s, %s sc1" % (v_t, S_FL, s_myfl)))
        e(raw("s_mov_b64 exec, -1", "salu", wr=["exec"]))
        em.label("L_sigS")
        return []
G_SIG = int(os.environ.get("G_SIG", "160")); G_POLL = int(os.environ.get("G_POLL", "172")); G_CHK = int(os.environ.get("G_CHK", "178"))
extra.setdefault(G_SIG, []).append((0, SigS(), 0))
vpa = V(51)
ptok = bload(vpoll, vpa, S_FL, s_t2, n=1, mod="sc1")
extra.setdefault(G_POLL, []).append((1, [salu("s_lshl_b32", s_t2, s_cq, 7)], 0))
extra.setdefault(G_POLL, []).append((2, ptok, 1))
def spl(gp, i): return sreg(gp >> 1, (gp & 1) * 2 + i, 1)
sl = []
class ChkS:
    def __call__(self):
        em.wait(vm=ptok)
        stamp()
        e(salu("s_mov_b32", s_cnt, 0, scc_w=False))
        em.label("L_pollS")
        e(valu("v_cmp_ne_u32", "vcc", 1, vpoll)); e(nop(2))
        e(raw("s_cbranch_vccz L_pollS_done", rd=["vcc"]))
        e(salu("s_add_u32", s_cnt, s_cnt, 1)); e(scmp("s_cmp_ge_u32", s_cnt, 50000)); e(raw("s_cbranch_scc1 L_pollS_done", rd=["scc"]))
        e(raw("buffer_load_dword %s, %s, %s, %s offen sc1" % (vpoll, vpa, S_FL, s_t2))); e(raw("s_waitcnt vmcnt(0)")); e(raw("s_branch L_pollS"))
        em.label("L_pollS_done")
        stamp()
        e(salu("s_lshl_b32", s_t0, s_cg, 16)); e(salu("s_lshl_b32", s_t1, s_w, 11)); e(salu("s_add_u32", s_t0, s_t0, s_t1))
        for gp in range(8):
            for i in range(2): sl.append(e(bload(spl(gp, i), v_lin, S_SPC, s_t0, off=i * 1024, mod="sc1")))
            if gp < 7: e(salu("s_add_u32", s_t0, s_t0, 8192))
        return []
if G_CHK < 184: extra.setdefault(G_CHK, []).append((0, ChkS(), 0))
if STAMP: extra.setdefault(128, []).append((0, Stamp(), 0))
class Diag:
    def __call__(self): diag(); return []
if DIAG: extra.setdefault(128, []).append((0, Diag(), 0))
class Paced(VStream):
    def has(self, g): return self.i < len(self.items) and g >= self.start and self.i <= (g - self.start + 1) * len(self.items) // max(1, self.end - self.start)
    def quota(self, g): return 99 if g >= self.start else 0
class Multi:
    def __init__(self, *l): self.l = list(l)
    def cur(self, g):
        for x in self.l:
            if x.i < len(x.items): return x
        return self.l[-1]
    def has(self, g): return self.cur(g).has(g)
    def peek(self): return self.cur(0).peek()
    def pop(self): return self.cur(0).pop()
    def quota(self, g): return self.cur(g).quota(g)
    def used_quota(self): self.cur(0).used_quota()
SP_END = int(os.environ.get("SP_END", "146"))
if XY:
    half = sp.index(spst[7]) + 1
    vs = Multi(VStream(early, 2, 40), Paced(sp[:half], int(os.environ.get("X_START", "67")), int(os.environ.get("X_END", "75"))), Paced(sp[half:], 130, SP_END))
else:
    vs = Multi(VStream(early, 2, 40), Paced(sp, 130, SP_END))
class ChkEarly:
    def __call__(self):
        assert vs.l[0].i == len(vs.l[0].items); return []
extra.setdefault(59, []).append((0, ChkEarly(), 0))
run_stream(46, s2_dma, dtok2, s2_acc, s2_B, extra, vs, pos0=P2, ring=v_ring2)
stamp(); diag()
e(nop(6))
for qb in range(4):
    for u in range(4):
        if len(em.lgq) >= 12: em.wait(lg=em.lgq[-12])
        e(dswrite("ds_write_b128", vfw, a_F[((u * 4 + qb) * 4, 4)], qb * 16384 + u * 1024))
if G_CHK >= 184: ChkS()()
em.wait(lg0=True)
e(raw("s_barrier"))
def frr(ws_, u): return sreg(ws_, u, 0)
for ws_ in range(4):
    for u in range(4):
        if len(em.lgq) >= 14: em.wait(lg=em.lgq[-14])
        e(dsread("ds_read_b128", frr(ws_, u), v_wl, ws_ * 4096 + u * 1024))
em.wait(lg0=True)
v_fr = V(96, 16); vE = V(64, 16); vs_ = V(80, 16)
for u in range(4):
    for k in range(2):
        e(valu("v_pk_add_f32", frr(0, u)[(2 * k, 2)], frr(0, u)[(2 * k, 2)], frr(1, u)[(2 * k, 2)]))
        e(valu("v_pk_add_f32", frr(2, u)[(2 * k, 2)], frr(2, u)[(2 * k, 2)], frr(3, u)[(2 * k, 2)]))
for u in range(4):
    for k in range(2): e(valu("v_pk_add_f32", v_fr[(4 * u + 2 * k, 2)], frr(0, u)[(2 * k, 2)], frr(2, u)[(2 * k, 2)]))
for k in range(16): e(valu("v_mul_f32", vE[k], hx(f2u(-math.log2(math.e))), v_fr[k]))
for k in range(16): e(valu("v_exp_f32", vE[k], vE[k]))
for k in range(16): e(valu("v_add_f32", vE[k], "1.0", vE[k]))
for k in range(16): e(valu("v_rcp_f32", vE[k], vE[k]))
for k in range(16): e(valu("v_mul_f32", v_fr[k], v_fr[k], vE[k]))
for k in range(8):
    e(valu("v_lshlrev_b32", vE[2 * k], 16, vxf[k])); e(valu("v_and_b32", vE[2 * k + 1], "0xffff0000", vxf[k]))
for gp in range(8):
    em.wait(vm=sl[2 * gp + 1])
    for k in range(8):
        src = spl(gp, k >> 2)[k & 3]
        if gp == 0:
            e(valu("v_lshlrev_b32", vs_[2 * k], 16, src)); e(valu("v_and_b32", vs_[2 * k + 1], "0xffff0000", src))
        else:
            e(valu("v_lshlrev_b32", V(112 + 2 * (k & 3)), 16, src)); e(valu("v_and_b32", V(113 + 2 * (k & 3)), "0xffff0000", src))
            e(valu("v_pk_add_f32", vs_[(2 * k, 2)], vs_[(2 * k, 2)], V(112 + 2 * (k & 3), 2)))
if DUMP == "fin": dump_regs([vs_[i] for i in range(16)] + [v_fr[i] for i in range(16)])
for k in range(8): e(valu("v_pk_fma_f32", vE[(2 * k, 2)], vs_[(2 * k, 2)], v_fr[(2 * k, 2)], vE[(2 * k, 2)]))
for k in range(8): e(valu("v_cvt_pk_bf16_f32", vxf[k], vE[2 * k], vE[2 * k + 1]))
for u in range(4): e(bstore(vxf[(2 * u, 2)], vxa, S_OUT, 0, off=32 * u))
stamp(); diag_out()
em.label("L_end")
e(raw("s_endpgm"))
main_end = len(em.out)

em.lgq, em.vmq, em.pend = [], [], {}
em.label("L_fallback")
e(raw("s_waitcnt vmcnt(0) lgkmcnt(0)")); em._retire(em.vmq, 0); em._retire(em.lgq, 0)
e(salu("s_mov_b32", s_retry, 1, scc_w=False))
e(salu("s_mov_b32", s_kK, 0, scc_w=False))
fm = [V(40 + i) for i in range(4)]
for i in range(4): e(valu("v_mov_b32", fm[i], "0xff800000"))
em.label("L_fb_loop")
e(raw("s_barrier"))
e(salu("s_add_u32", "m0", s_m0b, 4 * 16384)); e(nop(0))
for j in range(4): e(dma(v_kd[j], S_K, s_kK, j * 1024))
em.wait(vm0=True)
e(raw("s_barrier"))
for kb in range(4):
    rr = [e(dsread("ds_read_b128", fr(ds), v_ka[ds], kb * 4096)) for ds in range(4)]
    em.wait(lg0=True)
    for ds in range(4):
        for qb in range(4):
            d = v_S[0][(qb * 4, 4)]
            e(mfma(d, fr(ds), Qf(qb, ds), 0 if ds == 0 else d))
    e(nop(7))
    for qb in range(4):
        e(valu("v_max3_f32", fm[qb], fm[qb], v_S[0][qb * 4], v_S[0][qb * 4 + 1])); e(valu("v_max3_f32", fm[qb], fm[qb], v_S[0][qb * 4 + 2], v_S[0][qb * 4 + 3]))
    e(nop(2))
e(salu("s_add_u32", s_kK, s_kK, 16384)); e(scmp("s_cmp_lt_u32", s_kK, 524288)); e(raw("s_cbranch_scc1 L_fb_loop", rd=["scc"]))
red4("v_max_f32", fm, [V(44 + i) for i in range(4)])
for qb in range(4):
    for k in range(4): e(valu("v_sub_f32", v_negm[qb * 4 + k], 0, fm[qb]))
e(raw("s_barrier"))
for m in (64, 65, 66):
    sa, dm = s1_dma(m); e(sa)
    for d in dm: e(d)
e(raw("s_branch L_att_start"))
em.label("L_code_end")
e(raw("s_endpgm"))

probs = check_hazards(em.out, "main") + loop_probs
for p in probs: print("; HAZARD", p, file=sys.stderr)
assert not probs

hdr = open(os.path.join(os.path.dirname(os.path.abspath(__file__)), "header.txt")).read()
print(hdr.rstrip())
print("; @launch grid=(256,1,1) block=(256,1,1) lds=163840")
print('.amdgcn_target "amdgcn-amd-amdhsa--gfx950"\n.text\n.globl %s\n.p2align 8\n.type %s,@function\n%s:' % (KN, KN, KN))
print(em.text())
print('.section .rodata,"a"\n.p2align 6\n.amdhsa_kernel %s' % KN)
print("  .amdhsa_next_free_vgpr 512\n  .amdhsa_next_free_sgpr 102\n  .amdhsa_accum_offset 256\n  .amdhsa_group_segment_fixed_size 0\n  .amdhsa_kernarg_size 96\n  .amdhsa_user_sgpr_count 2\n  .amdhsa_user_sgpr_kernarg_segment_ptr 1\n  .amdhsa_system_sgpr_workgroup_id_x 1\n.end_amdhsa_kernel")
```

```python
import sys, os, math, struct
from asmgen import *

KN = "recurrent_scan__gqa_block_cached__geglu_ffn__prompt_kernel"
DUMP = os.environ.get("DUMP", "")
STAMP = int(os.environ.get("STAMP", "0"))
GEL_END = int(os.environ.get("GEL_END", "228")); GEL_EXTRA = int(os.environ.get("GEL_EXTRA", "360"))

def f2u(x): return struct.unpack("<I", struct.pack("<f", x))[0]
def hx(x): return "0x%x" % (x & 0xffffffff)

S_X, S_K, S_V, S_WQ, S_WO, S_WG, S_WU, S_WD, S_OUT, S_DBG, S_H, S_SP = [S(4 + 4 * i, 4) for i in range(12)]
s_g, s_qb, s_w = S(52), S(53), S(54)
s_t0, s_t1, s_t2, s_t3 = S(55), S(56), S(57), S(58)
s_m0b = S(59)
s_off = S(60)
s_cnt = S(61)
s_kK, s_kV = S(62), S(63)
s_retry = S(64)
s_h0, s_h1 = S(65), S(66)
s_hl = S(67); s_hb = S(78); s_myfl = S(79)
s_ka = S(68, 16); s_kb = S(84, 8)
s_pair = S(92, 2); s_pair2 = S(94, 2)
S_DMP = S(96, 4)
s_cq, s_cg = S(76), S(77)
S_HC = S(80, 4)
S_SPC = S(84, 4)
S_XC = S(88, 4)
s_st = S(68, 4)

v_tid, v_lane, v_lin, v_t = V(0), V(1), V(2), V(3)
v_tr = [V(4, 4), V(8, 4)]
v_dA, v_dB = V(12, 4), V(16, 4)
v_ka = V(20, 4); v_va = V(24, 8); v_kd = V(32, 4); v_vd = V(36, 2)
v_wl = V(38)
v_c = V(39)
v_l0, v_l1 = V(40, 4), V(44, 4)
v_lsave = V(16, 4)
v_negm = V(48, 16)
v_S = [V(64, 32), V(96, 32)]
v_acc = V(128, 128)
a_ring = A(128, 32)
a_B = A(160, 32)
a_Q = A(0, 64)
a_F = A(0, 64)
a_x = A(248, 8)

RING = 65536
MARK = 0x7fc17fc1
WS_SP = 8 << 20
WS_DUMP = 32 << 20
WS_FL = (7 << 20) + (512 << 10)
S_FL = S(4, 4)

em = Em()
e = em.e

def srd(dst, lo, hi, size, off_s=None):
    if off_s is None:
        e(salu("s_mov_b32", dst[0], lo, scc_w=False)); e(salu("s_mov_b32", dst[1], hi, scc_w=False))
    else:
        e(salu("s_add_u32", dst[0], lo, off_s)); e(salu("s_addc_u32", dst[1], hi, 0, scc_r=True))
    e(salu("s_mov_b32", dst[2], hx(size), scc_w=False)); e(salu("s_mov_b32", dst[3], "0x20000", scc_w=False))

DIAG = int(os.environ.get("DIAG", "0"))
HC_OFF = 128
diag_regs = [S(100, 2), S(70, 2), S(72, 2), S(74, 2), S(96, 2), S(98, 2), S(68, 2)] if DIAG == 1 else [S(100, 2), S(96, 2), S(98, 2), S(94, 2), S(70, 2), S(72, 2), S(74, 2), S(68, 2)]
diag_n = [0]
def diag(which=1):
    if not DIAG or (which != DIAG and which != 0): return
    k = diag_n[0]; diag_n[0] += 1
    e(raw("s_memrealtime %s" % diag_regs[k], "other", wr=[diag_regs[k]]))
    if k > 0: e(raw("s_waitcnt lgkmcnt(0)", "wait")); em._retire(em.lgq, 0)
AMP = os.environ.get("AMP")
def diag_out():
    if not DIAG: return
    diag(0)
    if AMP:
        k = int(AMP); last = diag_regs[diag_n[0] - 1]
        e(salu("s_sub_u32", s_t0, diag_regs[k][0], diag_regs[0][0])); e(salu("s_lshl_b32", s_t0, s_t0, 2))
        em.label("L_amp")
        e(raw("s_memrealtime s[56:57]")); e(raw("s_waitcnt lgkmcnt(0)"))
        e(salu("s_sub_u32", s_t1, s_t1, last[0])); e(scmp("s_cmp_lt_u32", s_t1, s_t0)); e(raw("s_cbranch_scc1 L_amp", rd=["scc"]))
        return
    e(scmp("s_cmp_lg_u32", s_w, 0)); e(raw("s_cbranch_scc1 L_end", rd=["scc"]))
    e(raw("s_mov_b64 exec, 1", "salu", wr=["exec"]))
    e(salu("s_not_b32", s_t0, diag_regs[0][0]))
    for k in range(diag_n[0]):
        e(valu("v_mov_b32", V(4 + k), s_t0 if k == 0 else diag_regs[k][0]))
        e(raw("buffer_atomic_umax %s, off, %s, 0 offset:%d sc1" % (V(4 + k), S_DBG, 4 * k)))
    e(valu("v_mov_b32", V(12), diag_regs[0][0]))
    e(raw("buffer_atomic_umax %s, off, %s, 0 offset:%d sc1" % (V(12), S_DBG, 4 * 9)))
stamp_n = [0]
def stamp():
    if not STAMP: return
    k = stamp_n[0]; stamp_n[0] += 1
    e(raw("s_memtime %s" % S(68, 2), "other", wr=[S(68, 2)]))
    e(raw("s_memrealtime %s" % S(70, 2), "other", wr=[S(70, 2)]))
    e(raw("s_waitcnt lgkmcnt(0)", "wait")); em._retire(em.lgq, 0)
    for i in range(4): e(valu("v_writelane_b32", v_c, S(68 + i), i, rmw=True))
    e(salu("s_lshl_b32", S(72), S(2), 2)); e(salu("s_add_u32", S(72), S(72), s_w)); e(salu("s_lshl_b32", S(72), S(72), 9))
    e(salu("s_mov_b64", S(74, 2), "exec", scc_w=False)); e(raw("s_mov_b64 exec, 15", "salu", wr=["exec"]))
    e(valu("v_lshlrev_b32", v_t, 2, v_lane))
    e(bstore(v_c, v_t, S_DMP, S(72), off=k * 16))
    e(raw("s_mov_b64 exec, %s" % S(74, 2), "salu", wr=["exec"]))
    e(valu("v_lshlrev_b32", v_t, 7, v_lane))

def dump_regs(regs, finish=True):
    em.wait(lg0=True, vm0=True)
    e(nop(7)); e(nop(7))
    n = len(regs)
    e(salu("s_lshl_b32", s_t0, S(2), 2)); e(salu("s_add_u32", s_t0, s_t0, s_w)); e(salu("s_mul_i32", s_t0, s_t0, n * 256, scc_w=False))
    e(valu("v_lshlrev_b32", v_t, 2, v_lane))
    for k, r in enumerate(regs):
        e(bstore(r, v_t, S_DMP, s_t0, off=0))
        e(salu("s_add_u32", s_t0, s_t0, 256))
        if k % 32 == 31: em.wait(vm0=True)
    em.wait(vm0=True)
    if finish: e(raw("s_endpgm"))

def red4(op, x, tmp):
    for sw in ("v_permlane32_swap_b32", "v_permlane16_swap_b32"):
        for a, t in zip(x, tmp): e(valu("v_mov_b32", t, a))
        if len(x) < 3: e(nop(1))
        for a, t in zip(x, tmp): e(valu(sw, a, t))
        for a, t in zip(x, tmp): e(valu(op, a, a, t))

e(scmp("s_cmp_ge_u32", S(2), 256)); e(raw("s_cbranch_scc1 L_end", rd=["scc"]))
diag(0)
i0 = e(I("s_load_dwordx16 %s, s[0:1], 0" % s_ka, "smem", wr=s_ka.regs()))
i1 = e(I("s_load_dwordx8 %s, s[0:1], 64" % s_kb, "smem", wr=s_kb.regs()))
vq, vG, vr, vc_, vx, vy, vz = [V(40 + i) for i in range(7)]
e(raw("s_getpc_b64 %s" % s_pair, "salu", wr=[s_pair]))
em.label("L_pc0")
e(valu("v_lshlrev_b32", vy, 7, v_tid))
TORD = int(os.environ.get("TORD", "1"))
vcw = V(39)
e(valu("v_mov_b32", vcw, vy))
ctouch = I("global_load_dword %s, %s, %s" % (V(49), vcw, s_pair2), "vmem", rd=vcw.regs() + s_pair2.regs(), wr=V(49).regs())
e(salu("s_mov_b64", s_pair2, s_pair, scc_w=False))
if TORD == 0: e(ctouch)
e(salu("s_and_b32", s_g, S(2), 7)); e(salu("s_lshr_b32", s_qb, S(2), 3))
e(valu("v_and_b32", v_lane, 63, v_tid))
e(valu("v_lshrrev_b32", v_t, 6, v_tid))
e(valu("v_lshlrev_b32", v_lin, 4, v_lane))
e(valu("v_readfirstlane_b32", s_w, v_t))
e(valu("v_and_b32", vq, 15, v_lane)); e(valu("v_lshrrev_b32", vG, 4, v_lane))
vxo = V(47)
e(valu("v_lshl_add_u32", vxo, v_t, 4, vq)); e(valu("v_lshlrev_b32", vxo, 10, vxo)); e(valu("v_lshl_add_u32", vxo, vG, 4, vxo))
e(salu("s_mul_i32", s_t1, s_g, 448, scc_w=False)); e(salu("s_and_b32", s_t1, s_t1, hx(~127)))
e(salu("s_mul_i32", s_t2, s_qb, 16 * 3584, scc_w=False)); e(salu("s_add_u32", s_t1, s_t1, s_t2))
e(valu("v_lshrrev_b32", vx, 2, v_lane)); e(valu("v_mul_u32_u24", vx, 3584, vx)); e(valu("v_and_b32", vz, 3, v_lane)); e(valu("v_lshl_add_u32", vx, vz, 7, vx))
e(scmp("s_cmp_lt_u32", s_w, 2)); e(raw("s_cbranch_scc1 L_warm_a", rd=["scc"]))
e(salu("s_lshl_b32", s_t1, s_qb, 4)); e(salu("s_lshl_b32", s_t2, s_w, 3)); e(salu("s_add_u32", s_t1, s_t1, s_t2)); e(salu("s_sub_u32", s_t1, s_t1, 16))
e(salu("s_lshl_b32", s_t1, s_t1, 13)); e(salu("s_lshl_b32", s_t2, s_g, 10)); e(salu("s_add_u32", s_t1, s_t1, s_t2))
e(valu("v_lshrrev_b32", vx, 3, v_lane)); e(valu("v_lshlrev_b32", vx, 13, vx)); e(valu("v_and_b32", vz, 7, v_lane)); e(valu("v_lshl_add_u32", vx, vz, 7, vx))
em.label("L_warm_a")
e(valu("v_add_u32", vx, s_t1, vx))
e(salu("s_lshl_b32", s_t0, s_qb, 16))
em.wait(lg0=True)
e(scmp("s_cmp_eq_u32", s_w, 0)); e(salu("s_cselect_b64", s_pair, s_ka[(12, 2)], s_ka[(14, 2)], scc_w=False, scc_r=True))
e(scmp("s_cmp_ge_u32", s_w, 2)); e(salu("s_cselect_b64", s_pair, s_ka[(6, 2)], s_pair, scc_w=False, scc_r=True))
vwt = V(54); s_wt = S(98, 2)
if TORD == 3: e(valu("v_mov_b32", vwt, vx)); e(salu("s_mov_b64", s_wt, s_pair, scc_w=False))
wtouch = I("global_load_dword %s, %s, %s" % (V(48), vx, s_pair), "vmem", rd=vx.regs() + s_pair.regs(), wr=V(48).regs())
if TORD == 0: e(wtouch)
diag(2)
srd(S_X, s_ka[0], s_ka[1], 65536, s_t0)
v_xp = V(64, 64)
xl = []
for ks in range(16):
    xl.append(e(bload(v_xp[(4 * ks, 4)], vxo, S_X, 0, off=64 * ks)))
if TORD == 1: e(wtouch); e(ctouch)
if TORD == 4: e(wtouch)
diag(2)
e(salu("s_lshr_b32", s_t2, s_qb, 3)); e(salu("s_lshl_b32", s_t3, s_g, 2)); e(salu("s_add_u32", s_t2, s_t2, s_t3))
e(salu("s_lshl_b32", s_t0, s_t2, 16))
srd(S_OUT, s_kb[2], s_kb[3], 65536, s_t0)
e(salu("s_lshl_b32", s_t1, s_g, 19))
srd(S_K, s_ka[2], s_ka[3], 524288, s_t1)
srd(S_V, s_ka[4], s_ka[5], 524288, s_t1)
srd(S_WO, s_ka[8], s_ka[9], 524288, s_t1)
srd(S_WQ, s_ka[6], s_ka[7], 4 << 20)
srd(S_WG, s_ka[12], s_ka[13], 1835008)
srd(S_WU, s_ka[14], s_ka[15], 1835008)
srd(S_WD, s_kb[0], s_kb[1], 1835008)
srd(S_DBG, s_kb[4], s_kb[5], 256)
e(salu("s_mul_i32", s_t1, s_qb, 229376, scc_w=False))
srd(S_H, s_kb[6], s_kb[7], 229376, s_t1)
e(salu("s_lshl_b32", s_t1, s_qb, 19)); e(salu("s_add_u32", s_t1, s_t1, hx(WS_SP)))
srd(S_SP, s_kb[6], s_kb[7], 524288, s_t1)
if DUMP or STAMP:
    e(salu("s_mov_b32", s_t1, hx(WS_DUMP), scc_w=False))
    srd(S_DMP, s_kb[6], s_kb[7], 200 << 20, s_t1)
e(salu("s_mov_b64", s_pair, S(90, 2), scc_w=False))
e(salu("s_lshl_b32", s_t0, s_t2, 16))
srd(S_XC, s_ka[0], s_ka[1], 65536, s_t0)
e(salu("s_mul_i32", s_t1, s_t2, 229376, scc_w=False))
srd(S_HC, s_pair[0], s_pair[1], 229376, s_t1)
e(salu("s_lshl_b32", s_t1, s_t2, 19)); e(salu("s_add_u32", s_t1, s_t1, hx(WS_SP)))
srd(S_SPC, s_pair[0], s_pair[1], 524288, s_t1)
e(salu("s_mov_b32", s_cq, s_t2, scc_w=False)); e(salu("s_and_b32", s_cg, s_qb, 7))
e(salu("s_mov_b32", s_t1, hx(WS_FL), scc_w=False))
srd(S_FL, s_pair[0], s_pair[1], 4096, s_t1)
e(salu("s_lshl_b32", s_myfl, s_qb, 7)); e(salu("s_lshl_b32", s_t1, s_g, 2)); e(salu("s_add_u32", s_myfl, s_myfl, s_t1))
e(salu("s_lshl_b32", s_m0b, s_w, 12)); e(salu("s_add_u32", s_m0b, s_m0b, RING))
e(salu("s_and_b32", s_t1, s_g, 1)); e(salu("s_lshl_b32", s_t1, s_t1, 2)); e(salu("s_add_u32", s_t1, s_t1, s_w))
e(scmp("s_cmp_eq_u32", s_w, 3)); e(salu("s_cselect_b32", s_t1, 3, s_t1, scc_w=False, scc_r=True))
e(salu("s_lshr_b32", s_t2, s_g, 1)); e(salu("s_mul_i32", s_t2, s_t2, 7, scc_w=False)); e(salu("s_add_u32", s_t1, s_t1, s_t2))
e(salu("s_lshl_b32", s_h0, s_t1, 13)); e(salu("s_add_u32", s_h1, s_h0, 4096))
e(salu("s_lshl_b32", s_t1, s_t1, 7))
e(salu("s_lshl_b32", s_t2, s_g, 2)); e(salu("s_add_u32", s_t2, s_t2, s_w)); e(salu("s_lshl_b32", s_t2, s_t2, 8))

def dma_voffs(dst, stride, colbase_s, perm):
    for j in range(4):
        e(valu("v_bfe_u32", vx, v_lane, 1, 2)); e(valu("v_bfe_u32", vy, v_lane, 4, 1))
        e(valu("v_xor_b32", vx, vx, vy))
        if j & 1: e(valu("v_xor_b32", vx, 2, vx))
        e(valu("v_and_b32", vy, 1, v_lane)); e(valu("v_lshlrev_b32", vy, 4, vy)); e(valu("v_lshl_add_u32", vx, vx, 5, vy))
        if not perm:
            e(valu("v_lshrrev_b32", vy, 3, v_lane)); rowadd = 8 * j
        else:
            e(valu("v_bfe_u32", vy, v_lane, 3, 2)); e(valu("v_bfe_u32", vz, v_lane, 5, 1)); e(valu("v_lshl_add_u32", vy, vz, 4, vy)); rowadd = 4 * j
        e(valu("v_mul_u32_u24", vy, stride, vy))
        e(valu("v_add3_u32", vx, vx, vy, colbase_s))
        e(valu("v_add_u32", dst[j], rowadd * stride - j * 1024, vx))

dma_voffs(v_dA, 3584, s_t1, False)
dma_voffs(v_dB, 8192, s_t2, False)

def m0set(p): return salu("s_add_u32", "m0", s_m0b, p * 16384)
def s1_dma(m):
    p = m % 6
    if m < 32:
        s, h = m >> 1, m & 1
        return [m0set(p), salu("s_mov_b32", s_off, s * 32 * 3584, scc_w=False)], [dma(v_dA[j], S_WU if h else S_WG, s_off, j * 1024) for j in range(4)]
    if m < 64:
        s, h = (m - 32) >> 1, m & 1
        return [m0set(p), salu("s_mov_b32", s_off, s * 32 * 8192 + 128 * h, scc_w=False)], [dma(v_dB[j], S_WQ, s_off, j * 1024) for j in range(4)]
    if m == 64:
        return [m0set(p), salu("s_mov_b32", s_off, 0, scc_w=False)], [dma(v_kd[j], S_K, s_off, j * 1024) for j in range(4)]
    if m == 65:
        return [m0set(p), salu("s_mov_b32", s_off, 8192, scc_w=False)], [dma(v_kd[j], S_K, s_off, j * 1024) for j in range(4)]
    if m == 66:
        return [m0set(p), salu("s_mov_b32", s_off, 0, scc_w=False)], [dma(v_vd[j & 1], S_V, s_off, j * 1024) for j in range(4)]
    return None
dtok = {}
ln_v = []
for m in range(6):
    sa, dm = s1_dma(m)
    ln_v.append(sa); ln_v += dm
    dtok[m] = dm[3]
def xaddr(dst, tmp):
    e(valu("v_and_b32", dst, 15, v_lane)); e(salu("s_lshl_b32", s_t0, s_w, 4)); e(valu("v_add_u32", dst, s_t0, dst)); e(valu("v_lshlrev_b32", dst, 10, dst))
    e(valu("v_lshrrev_b32", tmp, 4, v_lane)); e(valu("v_lshl_add_u32", dst, tmp, 3, dst)); e(salu("s_lshl_b32", s_t0, s_cg, 7)); e(valu("v_add_u32", dst, s_t0, dst))
vxs, vzero = V(50), V(51)
xaddr(vxs, vy)
e(valu("v_mov_b32", vzero, 0))
ln_v += [bload(a_x[(2 * u, 2)], vxs, S_XC, 0, off=32 * u, n=2) for u in range(4)]
ln_v.append([raw("s_mov_b64 exec, 1", "salu", wr=["exec"]), bstore(vzero, None, S_FL, s_myfl, mod="sc1"), raw("s_mov_b64 exec, -1", "salu", wr=["exec"])])
if TORD == 3:
    e(valu("v_mov_b32", V(53), vwt)); e(salu("s_mov_b64", S(100, 2), s_wt, scc_w=False))
    ln_v = ln_v[:10] + [I("global_load_dword %s, %s, %s" % (V(48), V(53), S(100, 2)), "vmem", rd=["v53", "s100", "s101"], wr=["v48"]), ctouch] + ln_v[10:]
LNPRE = int(os.environ.get("LNPRE", "0"))
lv = [0]
def ln_issue(n=1):
    k = 0
    while k < n and lv[0] < len(ln_v):
        it = ln_v[lv[0]]; lv[0] += 1
        e(it)
        if not isinstance(it, list): k += 1
diag(2)
ln_issue(LNPRE)
e(valu("v_bfe_u32", vr, v_lane, 2, 2)); e(valu("v_and_b32", vc_, 3, v_lane))
e(valu("v_lshlrev_b32", vx, 10, vG)); e(valu("v_lshl_add_u32", vx, vr, 7, vx)); e(valu("v_lshl_add_u32", vx, vc_, 3, vx)); e(valu("v_add_u32", vx, s_m0b, vx))
e(valu("v_lshrrev_b32", vy, 1, vr)); e(valu("v_and_b32", vz, 1, vG)); e(valu("v_lshl_add_u32", vy, vz, 1, vy))
for u in range(4):
    e(valu("v_xor_b32", vz, u, vy)); e(valu("v_lshl_add_u32", v_tr[0][u], vz, 5, vx)); e(valu("v_add_u32", v_tr[1][u], 3 * 16384, v_tr[0][u]))
e(valu("v_xor_b32", vy, vG, vq))
for ds in range(4):
    e(valu("v_xor_b32", vz, 4 * ds, vy)); e(valu("v_lshlrev_b32", vz, 4, vz)); e(valu("v_lshl_add_u32", vz, vq, 8, vz)); e(valu("v_add_u32", v_ka[ds], RING + 4 * 16384, vz))
e(valu("v_lshl_add_u32", vx, vG, 2, vr)); e(valu("v_and_b32", vy, 7, vx)); e(valu("v_lshlrev_b32", vx, 8, vx)); e(valu("v_lshl_add_u32", vx, vc_, 3, vx)); e(valu("v_add_u32", vx, RING, vx))
for db in range(8):
    e(valu("v_xor_b32", vz, db, vy)); e(valu("v_lshl_add_u32", v_va[db], vz, 5, vx))
e(salu("s_lshl_b32", s_t1, s_w, 12))
e(valu("v_lshlrev_b32", vx, 8, vG)); e(valu("v_add_u32", vx, s_t1, vx))
for j in range(4):
    e(valu("v_add_u32", vy, 4 * j, vG)); e(valu("v_xor_b32", vy, vy, vq)); e(valu("v_lshl_add_u32", v_kd[j], vy, 4, vx))
e(valu("v_and_b32", vz, 1, v_lane)); e(valu("v_lshl_add_u32", vx, vz, 4, vx))
for j in range(2):
    e(valu("v_add_u32", vy, 4 * j, vG)); e(valu("v_lshrrev_b32", vz, 1, vq)); e(valu("v_xor_b32", vy, vy, vz)); e(valu("v_lshl_add_u32", v_vd[j], vy, 5, vx))
e(salu("s_lshl_b32", s_t1, s_w, 14)); e(valu("v_add_u32", v_wl, s_t1, v_lin))
e(salu("s_mov_b32", s_retry, 0, scc_w=False))
stamp()

v_f = V(128, 128)
acc = [V(52, 2), V(54, 2), V(56, 2), V(58, 2)]
diag(2)
for ks in range(16):
    em.wait(vm=xl[ks])
    if ks in (0, 15): diag(2)
    for k in range(4):
        p = 4 * ks + k
        e(valu("v_lshlrev_b32", v_f[2 * p], 16, v_xp[p])); e(valu("v_and_b32", v_f[2 * p + 1], "0xffff0000", v_xp[p]))
    for k in range(4):
        p = 4 * ks + k
        if ks == 0: e(valu("v_mov_b64", acc[k], v_f[(2 * p, 2)]))
        else: e(valu("v_pk_add_f32", acc[k], acc[k], v_f[(2 * p, 2)]))
if STAMP == 3: stamp()
ln_issue(int(os.environ.get("LN_FIRST", "4")))
if STAMP == 3: stamp()
e(valu("v_pk_add_f32", acc[0], acc[0], acc[1])); e(valu("v_pk_add_f32", acc[2], acc[2], acc[3])); e(valu("v_pk_add_f32", acc[0], acc[0], acc[2]))
vsum, vtmp, vmb, vdm = V(60), V(61), V(62), V(63)
e(valu("v_add_f32", vsum, acc[0][0], acc[0][1]))
red4("v_add_f32", [vsum], [vtmp])
e(valu("v_mul_f32", vsum, hx(f2u(1.0 / 512)), vsum))
e(valu("v_cvt_pk_bf16_f32", vmb, vsum, vsum)); e(valu("v_lshlrev_b32", vmb, 16, vmb))
e(valu("v_sub_f32", vdm, vsum, vmb))
vneg = V(52, 2)
e(valu("v_sub_f32", vneg[0], 0, vmb))
acc2 = [V(54, 2), V(56, 2), V(58, 2)]
for p in range(64):
    e(valu("v_pk_add_f32", v_f[(2 * p, 2)], v_f[(2 * p, 2)], vneg, mod="op_sel_hi:[1,0]"))
    if p % 8 == 7: ln_issue()
for p in range(64):
    if p % 8 == 7: ln_issue()
    a_ = acc2[p % 3]
    if p < 3: e(valu("v_pk_mul_f32", a_, v_f[(2 * p, 2)], v_f[(2 * p, 2)]))
    else: e(valu("v_pk_fma_f32", a_, v_f[(2 * p, 2)], v_f[(2 * p, 2)], a_))
if STAMP == 3: stamp()
e(valu("v_pk_add_f32", acc2[0], acc2[0], acc2[1])); e(valu("v_pk_add_f32", acc2[0], acc2[0], acc2[2]))
e(valu("v_add_f32", vsum, acc2[0][0], acc2[0][1]))
red4("v_add_f32", [vsum], [vtmp])
e(valu("v_mul_f32", vsum, hx(f2u(1.0 / 512)), vsum))
e(valu("v_fma_f32", vsum, "-" + str(vdm), vdm, vsum, extra_rd=vdm.regs()))
e(valu("v_max_f32", vsum, 0, vsum))
e(valu("v_cvt_pk_bf16_f32", vsum, vsum, vsum)); e(valu("v_lshlrev_b32", vsum, 16, vsum))
e(valu("v_add_f32", vsum, hx(f2u(1e-5)), vsum))
e(valu("v_cvt_pk_bf16_f32", vsum, vsum, vsum)); e(valu("v_lshlrev_b32", vsum, 16, vsum))
e(valu("v_sqrt_f32", vsum, vsum)); e(nop(0))
e(valu("v_cvt_pk_bf16_f32", vsum, vsum, vsum)); e(valu("v_lshlrev_b32", vsum, 16, vsum))
e(valu("v_rcp_f32", vneg[0], vsum)); e(nop(0))
for ks in range(16):
    for k in range(4):
        p = 4 * ks + k
        e(valu("v_pk_mul_f32", v_f[(2 * p, 2)], v_f[(2 * p, 2)], vneg, mod="op_sel_hi:[1,0]"))
    for k in range(4):
        p = 4 * ks + k
        e(valu("v_cvt_pk_bf16_f32", v_xp[p], v_f[2 * p], v_f[2 * p + 1]))
    e(dswrite("ds_write_b128", v_wl, v_xp[(4 * ks, 4)], ks * 1024))
    ln_issue()
ln_issue(100)
if STAMP == 3: stamp()
if DUMP == "ln": dump_regs([v_xp[i] for i in range(64)])
em.wait(lg0=True)
e(raw("s_barrier"))
stamp(); diag()

def run_stream(NH, dmaf, dtok, accf, Bf, extra, vstream, LOOK=6, nq=4, pos0=0, ring=a_ring):
    NG = 4 * NH
    rtok = {}
    def reads(g):
        m, u = g >> 2, g & 3
        p = (m + pos0) % 6
        d = ring[((g % 8) * 4, 4)]
        r = [dsread("ds_read_b64_tr_b16", d[(2 * h2, 2)], v_tr[p // 3][u], (p % 3) * 16384 + h2 * 512) for h2 in range(2)]
        rtok[g] = r[1]
        return r
    em.wait(vm=dtok[0])
    for g in range(3): e(reads(g))
    for pre in extra.get(-1, []): e(pre[1])
    em.wait(lg0=True)
    vi = 0
    for g in range(NG):
        m, u = g >> 2, g & 3
        gaps = [[], [], [], []]; cap = [2, 2, 2, 2]
        if g + 3 < NG:
            if (g + 3) & 3 == 0: gaps[0].append(Wait(vm=dtok[(g + 3) >> 2]))
            r = reads(g + 3); gaps[0].append(r[0]); gaps[1].append(r[1]); cap[0] -= 1; cap[1] -= 1
        md, j = (g + 4 * LOOK - 4) >> 2, (g + 4 * LOOK - 4) & 3
        if md >= LOOK:
            if j == 0: cur = dmaf(md)
            if cur is not None:
                if j == 0: gaps[2] += cur[0]
                items = cur[1][j::4]
                for it in items: gaps[3].append(it); cap[3] -= 1
                if j == 3: dtok[md] = cur[1][3]
        for (gp, it, cost) in extra.get(g, []):
            gaps[gp].append(it); cap[gp] -= cost
        if g + 1 < NG: gaps[3].insert(0, Wait(lg=rtok[g + 1]))
        d = ring[((g % 8) * 4, 4)]
        for qb in range(nq):
            ac, first = accf(m, u, qb)
            e(mfma(ac, d, Bf(m, qb), 0 if first else ac))
            for it in gaps[qb]: e(it)
            c = cap[qb]
            quota = vstream.quota(g) if vstream else 0
            while vstream and vstream.has(g) and (c > 0 or quota > 0):
                it = vstream.peek()
                cost = 2 if it.kind == "trans" else 1
                if cost > c and quota <= 0: break
                if cost > c: quota -= 1; vstream.used_quota()
                e(vstream.pop()); c -= cost
    if vstream:
        while vstream.has(10 ** 9): e(vstream.pop())

class VStream:
    def __init__(self, items, start, end, extra_total=0):
        self.items = items; self.i = 0; self.start = start; self.end = end
        self.extra_total = extra_total; self.used = 0
    def has(self, g): return self.i < len(self.items) and g >= self.start
    def peek(self): return self.items[self.i]
    def pop(self): self.i += 1; return self.items[self.i - 1]
    def quota(self, g):
        if g < self.start: return 0
        allowed = (g - self.start + 1) * self.extra_total // max(1, self.end - self.start)
        return 1 if allowed > self.used else 0
    def used_quota(self): self.used += 1

def s1_acc(m, u, qb):
    h = m & 1
    idx = ((h * 4 + u) * 4 + qb) * 4
    if m < 32: return A(idx, 4), m < 2
    return v_acc[(idx, 4)], m < 34
def s1_B(m, qb): return a_B[(((m >> 1) & 1) * 16 + qb * 4, 4)]
extra = {}
btok = {}
def bread(s, qb): return dsread("ds_read_b128", a_B[((s & 1) * 16 + qb * 4, 4)], v_lin, (qb * 16 + (s % 16)) * 1024)
extra[-1] = [(0, bread(0, qb), 1) for qb in range(4)]
for s in range(1, 32):
    for qb in range(4):
        extra.setdefault(8 * (s - 1) + 1 + qb, []).append((2, bread(s, qb), 1))
C0 = -2.0 * math.sqrt(2.0 / math.pi) * math.log2(math.e); C1 = C0 * 0.044715
vc0, vc1 = V(40), V(41)
gel = [valu("v_mov_b32", vc0, hx(f2u(C0))), valu("v_mov_b32", vc1, hx(f2u(C1)))]
hst = []
tb = 0
for i in range(2):
    for qb in range(4):
        pk = V(44 + 4 * (tb % 4), 4); tb += 1
        for b in range(2):
            u = 2 * i + b
            T = [V(64 + 16 * ((2 * tb + b) % 4) + k) for k in range(16)]
            G_, U_, X_ = T[0:4], T[4:8], T[8:12]
            ga = lambda r: A((u * 4 + qb) * 4 + r); ua = lambda r: A(((4 + u) * 4 + qb) * 4 + r)
            for r in range(4): gel.append(valu("v_accvgpr_read_b32", G_[r], ga(r)))
            for r in range(4): gel.append(valu("v_accvgpr_read_b32", U_[r], ua(r)))
            for r in range(4): gel.append(valu("v_mul_f32", X_[r], G_[r], G_[r]))
            for r in range(4): gel.append(valu("v_fma_f32", X_[r], X_[r], vc1, vc0))
            for r in range(4): gel.append(valu("v_mul_f32", X_[r], X_[r], G_[r]))
            for r in range(4): gel.append(valu("v_exp_f32", X_[r], X_[r]))
            for r in range(4): gel.append(valu("v_mul_f32", G_[r], G_[r], U_[r]))
            for r in range(4): gel.append(valu("v_add_f32", X_[r], "1.0", X_[r]))
            for r in range(4): gel.append(valu("v_rcp_f32", X_[r], X_[r]))
            gel.append(nop(0))
            for r in range(4): gel.append(valu("v_mul_f32", G_[r], G_[r], X_[r]))
            for k in range(2): gel.append(valu("v_cvt_pk_bf16_f32", pk[2 * b + k], G_[2 * k], G_[2 * k + 1]))
        st = bstore(pk, v_lin, S_H, s_h1 if i else s_h0, off=qb * 1024, mod="sc1")
        gel.append(st); hst.append(st)
class Stamp:
    def __call__(self): stamp(); return []
if STAMP: extra.setdefault(128, []).append((0, Stamp(), 0))
vs = VStream(gel, 131, GEL_END, extra_total=GEL_EXTRA)
run_stream(64, s1_dma, dtok, s1_acc, s1_B, extra, vs)
if DUMP == "qacc": dump_regs([v_acc[i] for i in range(128)])
stamp()

em.wait(lg0=True)
e(raw("s_barrier"))
def signal(off_s_expr_add, lab):
    e(scmp("s_cmp_lg_u32", s_w, 0)); e(raw("s_cbranch_scc1 %s" % lab, rd=["scc"]))
    e(salu("s_lshl_b32", s_t0, s_qb, 2))
    if off_s_expr_add: e(salu("s_add_u32", s_t0, s_t0, off_s_expr_add))
    e(valu("v_mov_b32", v_t, 1))
    e(raw("s_mov_b64 exec, 1", "salu", wr=["exec"]))
    e(raw("buffer_atomic_add %s, off, %s, %s sc1" % (v_t, S_DBG, s_t0)))
    e(raw("s_mov_b64 exec, -1", "salu", wr=["exec"]))
    em.label(lab)
QS = math.log2(math.e) / math.sqrt(128.0)
vqs = V(40, 2); vqw = V(42)
e(valu("v_mov_b32", vqs[0], hx(f2u(QS))))
e(valu("v_and_b32", v_t, 15, v_lane)); e(valu("v_bfe_u32", vqw, v_lane, 5, 1)); e(valu("v_lshl_add_u32", v_t, vqw, 4, v_t)); e(valu("v_lshlrev_b32", v_t, 4, v_t))
e(valu("v_bfe_u32", vqw, v_lane, 4, 1)); e(valu("v_lshl_add_u32", vqw, vqw, 3, v_t))
e(salu("s_lshl_b32", s_t1, s_w, 14)); e(valu("v_add_u32", vqw, s_t1, vqw))
for blk in range(8):
    for qb in range(4):
        a_ = v_acc[((blk * 4 + qb) * 4, 4)]
        t = V(64 + 2 * ((blk * 4 + qb) % 8), 2)
        for k in range(2): e(valu("v_pk_mul_f32", a_[(2 * k, 2)], a_[(2 * k, 2)], vqs, mod="op_sel_hi:[1,0]"))
        for k in range(2): e(valu("v_cvt_pk_bf16_f32", t[k], a_[2 * k], a_[2 * k + 1]))
        if len(em.lgq) >= 7: em.wait(lg=em.lgq[-7])
        e(dswrite("ds_write_b64", vqw, t, (qb * 4 + (blk >> 1)) * 1024 + (blk & 1) * 512))
em.wait(lg0=True)
for f in range(16):
    e(dsread("ds_read_b128", a_Q[(4 * f, 4)], v_wl, f * 1024))
    if f == 7: pass
vx, vy, vz = V(96), V(97), V(98)
e(salu("s_lshl_b32", s_t1, s_w, 8))
dma_voffs(v_dA, 1024, s_t1, True)
em.label("L_att_start")
for i in range(64): e(valu("v_mov_b64", v_acc[(2 * i, 2)], 0))
for i in range(4): e(valu("v_mov_b32", v_l0[i], 0)); e(valu("v_mov_b32", v_l1[i], 0))
em.wait(vm0=True, lg0=True)
e(raw("s_barrier"))
e(scmp("s_cmp_lg_u32", s_retry, 0)); e(raw("s_cbranch_scc1 L_sigH", rd=["scc"]))
signal(HC_OFF, "L_sigH")
if DUMP == "q": dump_regs([a_Q[i] for i in range(64)])
stamp()

def Qf(qb, ds): return a_Q[((qb * 4 + ds) * 4, 4)]
def Of(db, qb): return v_acc[((db * 4 + qb) * 4, 4)]
def fr(f): return a_ring[((f % 8) * 4, 4)]
def kslot(par): return 16384 if par == 0 else 0
def vslot(par): return 0 if par == 0 else 16384
def frag_reads(par, f):
    if f >= 32: par ^= 1; f -= 32
    d = fr(f)
    if f < 8 or 16 <= f < 24:
        kb = (f >> 2) if f < 8 else 2 + ((f - 16) >> 2)
        return [dsread("ds_read_b128", d, v_ka[f & 3], kslot(par) + kb * 4096)]
    ks2 = 0 if f < 16 else 1
    db = f & 7
    return [dsread("ds_read_b64_tr_b16", d[(2 * h, 2)], v_va[db], vslot(par) + ks2 * 8192 + h * 4096) for h in range(2)]
def read_sched(g):
    r = []
    if g + 3 < 24 or g >= 29: r.append(g + 3)
    if 19 <= g <= 26: r.append(g + 5)
    return r
def sm_val(g, k):
    if 7 <= g <= 22: b = 1; n = 2 * (g - 7) + k
    else: b = 0; n = 2 * ((g - 23) % 32) + k
    kb, qb, r = n >> 4, (n >> 2) & 3, n & 3
    return b, qb, kb, r
def sm_items(g):
    ex, ad = [], []
    for k in range(2):
        b, qb, kb, r = sm_val(g, k)
        x = v_S[b][qb * 8 + kb * 4 + r]
        l = (v_l1 if b else v_l0)[qb]
        ex.append(valu("v_exp_f32", x, x)); ad.append(valu("v_add_f32", l, l, x))
    b, qb, kb, r = sm_val((g - 1) % 32, 0)
    cv = valu("v_cvt_pk_bf16_f32", v_S[b][qb * 8 + kb * 2 + (r >> 1)], v_S[b][qb * 8 + kb * 4 + r], v_S[b][qb * 8 + kb * 4 + r + 1])
    return ex, ad, cv
def att_dma(par, g):
    if g >= 29: k = g - 29; sp = par
    elif g <= 4: k = g + 3; sp = par ^ 1
    else: return [], None
    sal = []
    if k == 0: sal = [salu("s_add_u32", "m0", s_m0b, 4 * 16384 + kslot(sp))]
    if k == 4: sal = [salu("s_add_u32", "m0", s_m0b, vslot(sp))]
    if k < 4: return sal, dma(v_kd[k], S_K, s_kK, k * 1024)
    return sal, dma(v_vd[k & 1], S_V, s_kV, (k - 4) * 1024)
SIDE_FIRST = 11
class Lbl:
    def __init__(self, n): self.n = n
    def __call__(self): em.label(self.n); return []
class LoopStamp:
    def __init__(self, k, par): self.k, self.par = k, par
    def __call__(self):
        k = self.k
        e(raw("s_memtime %s" % S(68 + 2 * k, 2), "other", wr=[S(68 + 2 * k, 2)]))
        if k == 2:
            e(raw("s_waitcnt lgkmcnt(0)", "wait")); em._retire(em.lgq, 0)
            for i in range(3): e(valu("v_writelane_b32", v_c, S(68 + 2 * i), i, rmw=True))
            e(salu("s_lshl_b32", S(74), S(2), 2)); e(salu("s_add_u32", S(74), S(74), s_w)); e(salu("s_lshl_b32", S(74), S(74), 4))
            e(salu("s_sub_u32", S(74), S(74), s_cnt)); e(salu("s_add_u32", S(74), S(74), 16)); e(salu("s_lshl_b32", S(74), S(74), 5))
            e(salu("s_add_u32", S(74), S(74), (1 << 20) + 16 * self.par))
            e(raw("s_mov_b64 exec, 7", "salu", wr=["exec"]))
            e(valu("v_lshlrev_b32", v_t, 2, v_lane))
            e(bstore(v_c, v_t, S_DMP, S(74), off=0))
            e(raw("s_mov_b64 exec, -1", "salu", wr=["exec"]))
            e(valu("v_lshlrev_b32", v_t, 7, v_lane))
        return []
s_pf = [S(16, 2), S(18, 2), S(24, 2), S(26, 2)]
s_pfH = S(28, 2)
s_fo = S(3)
v_tch, v_flag = V(3), V(0)
xtok = []; lastdma = [None]
ROT = int(os.environ.get('ROT', '10'))
ftok = {}
def att_group(par, g, do_mfma=True, do_mem=True, do_cvt=True, last=False):
    ex, ad, cv = sm_items(g)
    mem = []
    sal = []
    if do_mem:
        for f in read_sched(g):
            r = frag_reads(par, f); mem += r; ftok[f % 32] = r
        sal, d = att_dma(par, g)
        if d is not None: mem.append(d)
    if do_mem and par == 0 and g == 5:
        mem.append(I("global_load_dword %s, %s, %s" % (v_flag, v_tch, s_pf[0]), "vmem", rd=v_tch.regs() + s_pf[0].regs(), wr=[])); xtok.append(mem[-1])
    if do_mem and par == 0 and g == 6:
        mem.append(I("buffer_load_dword %s, off, %s, %s sc1" % (v_flag, S_DBG, s_fo), "vmem", rd=S_DBG.regs() + s_fo.regs(), wr=[])); xtok.append(mem[-1])
    if do_mem and par == 0 and g in (8, 9, 10): sal = sal + [scmp("s_cmp_le_u32", s_cnt, ROT), salu("s_cselect_b64", s_pf[g - 8], s_pf[g - 7], s_pf[g - 8], scc_w=False, scc_r=True)]
    if do_mem and g == 4: lastdma[0] = d
    post0 = []
    if do_mem and do_mfma and par == 1 and g == 30: post0 = [valu("v_readfirstlane_b32", s_t0, v_flag)]
    if do_mem and do_mfma and par == 1 and g == 31: sal = sal + [scmp("s_cmp_lt_u32", s_cnt, ROT), salu("s_cselect_b32", s_t0, s_t0, 0, scc_w=False, scc_r=True), scmp("s_cmp_ge_u32", s_t0, 8), salu("s_cselect_b64", s_pf[3], s_pfH, s_pf[3], scc_w=False, scc_r=True)]
    gaps = [[], [], [], []]
    if g == 29 and do_mem:
        if STAMP == 2 and do_mfma: gaps[0] += [LoopStamp(0, par)]
        gaps[0] += [Wait(lg0=True, vm0=True) if (par == 1 or not do_mfma) else Wait(lg0=True, vm=lastdma[0])]
        if STAMP == 2 and do_mfma: gaps[0] += [LoopStamp(1, par)]
        gaps[0] += [raw("s_barrier")]
        if STAMP == 2 and do_mfma: gaps[0] += [LoopStamp(2, par)]
    gaps[0] += sal
    if g == 6 and do_mem: gaps[0].append(salu("s_add_u32", s_kK, s_kK, 16384))
    if g == 7 and do_mem: gaps[0].append(salu("s_add_u32", s_kV, s_kV, 16384))
    if g == 23 and par == 1 and do_mfma:
        gaps[0] += [valu("v_mov_b32", v_lsave[i], v_l0[i]) for i in range(4)]
    if len(mem) > 2: gaps[0].append(mem[2])
    gaps[0].append(ex[0])
    if len(mem) > 0: gaps[1].append(mem[0])
    if len(mem) == 0 and do_cvt: gaps[1].append(cv)
    gaps[1].append(ad[0])
    gaps[1] += post0
    if do_mem: gaps[2].append(Wait(lg=ftok.get((g + 1) % 32)))
    if last and g == 30: gaps[2].append(salu("s_sub_u32", s_cnt, s_cnt, 1))
    gaps[2].append(ex[1])
    if len(mem) > 1: gaps[3].append(mem[1])
    if len(mem) > 0 and do_cvt: gaps[3].append(cv)
    gaps[3].append(ad[1])
    for qb in range(4):
        if do_mfma:
            if g < 8 or 16 <= g < 24:
                b = 1 if g < 8 else 0
                kb, ds = (g >> 2) & 1, g & 3
                d = v_S[b][(qb * 8 + kb * 4, 4)]
                e(mfma(d, fr(g), Qf(qb, ds), v_negm[(qb * 4, 4)] if ds == 0 else d))
            else:
                b = 0 if g < 16 else 1
                e(mfma(Of(g & 7, qb), fr(g), v_S[b][(qb * 8, 4)], Of(g & 7, qb)))
        else:
            if qb & 1: e(nop(0))
        for it in gaps[qb]: e(it)

for it in range(3):
    e(salu("s_add_u32", s_t0, s_w, 4 * it))
    e(salu("s_sub_u32", s_t1, s_t0, 2)); e(salu("s_min_u32", s_t1, s_t1, 6)); e(salu("s_lshl_b32", s_t1, s_t1, 13))
    e(salu("s_mul_i32", s_t2, s_qb, 57344, scc_w=False)); e(salu("s_add_u32", s_t1, s_t1, s_t2))
    e(salu("s_add_u32", s_pf[it][0], S_WD[0], s_t1)); e(salu("s_addc_u32", s_pf[it][1], S_WD[1], 0, scc_r=True))
    if it == 0:
        e(scmp("s_cmp_ge_u32", s_w, 2)); e(raw("s_cbranch_scc1 L_pf_wd", rd=["scc"]))
        e(salu("s_lshl_b32", s_t1, s_qb, 14)); e(salu("s_lshl_b32", s_t2, s_w, 13)); e(salu("s_add_u32", s_t1, s_t1, s_t2))
        e(salu("s_add_u32", s_pf[0][0], S_WO[0], s_t1)); e(salu("s_addc_u32", s_pf[0][1], S_WO[1], 0, scc_r=True))
        em.label("L_pf_wd")
e(raw("s_getpc_b64 %s" % s_pf[3], "salu", wr=[s_pf[3]]))
em.label("L_pc1")
e(salu("s_lshl_b32", s_t0, s_w, 13)); e(salu("s_add_u32", s_t0, s_t0, "L_tail-L_pc1")); e(salu("s_min_u32", s_t0, s_t0, "L_code_end-L_pc1-8192"))
e(salu("s_add_u32", s_pf[3][0], s_pf[3][0], s_t0)); e(salu("s_addc_u32", s_pf[3][1], s_pf[3][1], 0, scc_r=True))
e(salu("s_lshl_b32", s_t0, s_cg, 2)); e(salu("s_add_u32", s_t0, s_t0, s_w)); e(salu("s_mul_i32", s_t0, s_t0, 7168, scc_w=False)); e(salu("s_min_u32", s_t0, s_t0, 229376 - 8192))
e(salu("s_add_u32", s_pfH[0], S_HC[0], s_t0)); e(salu("s_addc_u32", s_pfH[1], S_HC[1], 0, scc_r=True))
e(valu("v_lshlrev_b32", v_tch, 7, v_lane))
e(salu("s_lshl_b32", s_fo, s_cq, 2)); e(salu("s_add_u32", s_fo, s_fo, HC_OFF))
pr = [dsread("ds_read_b128", fr(f), v_ka[f & 3], (f >> 2) * 4096) for f in range(8)]
for r in pr: e(r)
e(scmp("s_cmp_lg_u32", s_retry, 0)); e(raw("s_cbranch_scc1 L_have_max", rd=["scc"]))
for i in range(16): e(valu("v_mov_b32", v_negm[i], 0))
em.label("L_have_max")
for f in range(8):
    em.wait(lg=pr[f])
    for qb in range(4):
        d = v_S[0][(qb * 8 + (f >> 2) * 4, 4)]
        e(mfma(d, fr(f), Qf(qb, f & 3), v_negm[(qb * 4, 4)] if (f & 3) == 0 else d))
e(salu("s_mov_b32", s_kK, 16384 + 8192, scc_w=False)); e(salu("s_mov_b32", s_kV, 16384, scc_w=False)); e(salu("s_mov_b32", s_cnt, 16, scc_w=False))
e(scmp("s_cmp_lg_u32", s_retry, 0)); e(raw("s_cbranch_scc1 L_have_max2", rd=["scc"]))
e(nop(3))
mx = [V(96 + i) for i in range(4)]; mt = [V(100 + i) for i in range(4)]
for qb in range(4): e(valu("v_max3_f32", mx[qb], v_S[0][qb * 8], v_S[0][qb * 8 + 1], v_S[0][qb * 8 + 2]))
for qb in range(4): e(valu("v_max3_f32", mx[qb], mx[qb], v_S[0][qb * 8 + 3], v_S[0][qb * 8 + 4]))
for qb in range(4): e(valu("v_max3_f32", mx[qb], mx[qb], v_S[0][qb * 8 + 5], v_S[0][qb * 8 + 6]))
for qb in range(4): e(valu("v_max_f32", mx[qb], mx[qb], v_S[0][qb * 8 + 7]))
red4("v_max_f32", mx, mt)
for qb in range(4):
    for k in range(4): e(valu("v_sub_f32", v_negm[qb * 4 + k], 0, mx[qb]))
for qb in range(4):
    for k in range(8): e(valu("v_sub_f32", v_S[0][qb * 8 + k], v_S[0][qb * 8 + k], mx[qb]))
em.label("L_have_max2")
e(nop(7))
for g in range(23, 29): att_group(1, g, do_mfma=False, do_mem=False, do_cvt=(g != 23))
stamp(); diag()
for g in range(29, 32): att_group(1, g, do_mfma=False, do_mem=True)
pro_end = len(em.out)
em.directive(".p2align 6")
em.label("L_att_loop")
def body():
    for par in range(2):
        for g in range(32): att_group(par, g, last=(par == 1))
b0 = len(em.out)
body()
b1 = len(em.out)
e(scmp("s_cmp_lg_u32", s_cnt, 0)); e(raw("s_cbranch_scc1 L_att_loop", rd=["scc"]))
b2 = len(em.out)
body()
second = em.out[b2:]; del em.out[b2:]
assert [i.text for i in second] == [i.text for i in em.out[b0:b1]], "loop not in steady state"
loop_probs = check_hazards(em.out[b1 - 40:b2] + second[:60], "loop-wrap")
stamp()

em.label("L_tail")
diag()
v_ring2 = V(64, 32); v_B2 = V(96, 32)
def hreg(kk, qb): return A(64 + (kk % 12) * 16 + qb * 4, 4)
XY = int(os.environ.get("XY", "0"))
def mh(m): return ((m & 15), m >> 4) if XY else (m >> 1, m & 1)
P2 = 2
def s2_dma(m):
    p = (m + P2) % 6
    if m < 32:
        s, h = mh(m)
        return [m0set(p), salu("s_mov_b32", s_off, s * 32 * 1024 + 128 * h, scc_w=False)], [dma(v_dA[j], S_WO, s_off, j * 1024) for j in range(4)]
    if m < 46:
        return [m0set(p), salu("s_mov_b32", s_off, (m - 32) * 32 * 1024, scc_w=False)], [dma(v_dB[j], S_WD, s_off, j * 1024) for j in range(4)]
    return None
dtok2 = {}
post_v = []
for m in range(0, 6):
    sa, dm = s2_dma(m); post_v.append(sa); post_v += dm; dtok2[m] = dm[3]
pv = [0]
def post_issue(n):
    k = 0
    while k < n and pv[0] < len(post_v):
        it = post_v[pv[0]]; pv[0] += 1
        e(it)
        if not isinstance(it, list): k += 1
post_issue(4)
lt = [V(100 + i) for i in range(4)]
for qb in range(4): e(valu("v_add_f32", v_l1[qb], v_l1[qb], v_lsave[qb]))
red4("v_add_f32", [v_l1[i] for i in range(4)], lt)
e(salu("s_mov_b32", s_t0, hx(f2u(2.0 ** 30)), scc_w=False))
e(valu("v_add_f32", lt[1], v_l1[0], v_l1[1])); e(valu("v_add_f32", lt[2], v_l1[2], v_l1[3])); e(valu("v_add_f32", lt[1], lt[1], lt[2]))
e(valu("v_cmp_nge_f32", "vcc", s_t0, lt[1]))
rinv = [V(104 + 2 * i, 2) for i in range(4)]
for qb in range(4): e(valu("v_rcp_f32", rinv[qb][0], v_l1[qb]))
e(salu("s_mov_b64", s_pair, "vcc", scc_w=False))
post_issue(4)
for i in range(4):
    for qb in range(4):
        t = Of(2 * i, qb)
        for b in range(2):
            o = Of(2 * i + b, qb)
            for k in range(2): e(valu("v_pk_mul_f32", o[(2 * k, 2)], o[(2 * k, 2)], rinv[qb], mod="op_sel_hi:[1,0]"))
        if DUMP != "o":
            for b in range(2):
                o = Of(2 * i + b, qb)
                for k in range(2): e(valu("v_cvt_pk_bf16_f32", t[2 * b + k], o[2 * k], o[2 * k + 1]))
            if i == 0 and qb == 0:
                e(scmp("s_cmp_eq_u64", s_pair, 0)); e(raw("s_cbranch_scc1 L_nomark", rd=["scc"]))
                e(valu("v_mov_b32", t[0], hx(MARK)))
                em.label("L_nomark")
            if len(em.lgq) >= 12: em.wait(lg=em.lgq[-12])
            e(dswrite("ds_write_b128", v_wl, t, (i * 4 + qb) * 1024))
        post_issue(1)
post_issue(100)
if DUMP == "o": dump_regs([v_acc[i] for i in range(128)])
vm_ = V(56); vma = V(57)
e(valu("v_and_b32", vma, 3, v_lane)); e(valu("v_lshlrev_b32", vma, 14, vma))
e(salu("s_mov_b32", s_cnt, 0, scc_w=False))
em.label("L_pollH")
e(valu("v_readfirstlane_b32", s_t0, v_flag)); e(salu("s_mul_i32", s_hb, s_w, 14 * 4096, scc_w=False)); e(nop(1))
e(scmp("s_cmp_ge_u32", s_t0, 8)); e(raw("s_cbranch_scc1 L_pollH_done", rd=["scc"]))
e(salu("s_add_u32", s_cnt, s_cnt, 1)); e(scmp("s_cmp_ge_u32", s_cnt, 50000)); e(raw("s_cbranch_scc1 L_pollH_done", rd=["scc"]))
e(raw("s_sleep 4")); e(raw("buffer_load_dword %s, off, %s, %s sc1" % (v_flag, S_DBG, s_fo))); e(raw("s_waitcnt vmcnt(0)")); e(raw("s_branch L_pollH"))
em.label("L_pollH_done")
em.wait(lg0=True)
e(raw("s_barrier"))
stamp()
mk = e(dsread("ds_read_b32", vm_, vma, 0))
class FbCheck:
    def __call__(self):
        em.wait(lg=mk)
        e(valu("v_cmp_eq_u32", "vcc", hx(MARK), vm_))
        e(scmp("s_cmp_lg_u32", s_retry, 0)); e(raw("s_cbranch_scc1 L_nofb", rd=["scc"]))
        e(nop(1))
        e(raw("s_cbranch_vccnz L_fallback", rd=["vcc"]))
        em.label("L_nofb")
        return []

def s2_acc(m, u, qb):
    if m < 32: return v_acc[(((mh(m)[1] * 4 + u) * 4 + qb) * 4, 4)], mh(m)[0] == 0
    return a_F[((u * 4 + qb) * 4, 4)], m == 32
def bsel(m): return (m & 1) if XY else ((m >> 1) & 1)
def s2_B(m, qb):
    if m < 32: return v_B2[(bsel(m) * 16 + qb * 4, 4)]
    return hreg(m - 32, qb)
def oread(m, qb): return dsread("ds_read_b128", v_B2[(bsel(m) * 16 + qb * 4, 4)], v_lin, (mh(m)[0] * 4 + qb) * 1024)
extra = {-1: [(0, oread(0, qb), 1) for qb in range(4)] + [(0, FbCheck(), 0)]}
for m in range(1, 32):
    if XY:
        rr = [oread(m, qb) for qb in range(4)]
        for qb in range(4): extra.setdefault(4 * (m - 1) + (qb >> 1), []).append((2 + (qb & 1), rr[qb], 1))
        extra.setdefault(4 * m - 1, []).append((2, Wait(lg=rr), 0))
    elif (m & 1) == 0:
        for qb in range(4): extra.setdefault(4 * (m - 2) + 1 + qb, []).append((2, oread(m, qb), 1))
class LateWait:
    def __init__(self, f): self.f = f
    def __call__(self): return Wait(vm=self.f())
vxf = V(40, 8); vxa = V(48); vpoll = V(49); vfw = V(50)
vx, vy, vz = V(52), V(53), V(54)
save = em.out; em.out = []
for k in range(8): e(valu("v_accvgpr_read_b32", vxf[k], a_x[k]))
e(salu("s_mul_i32", s_t1, s_w, 448 * 1024, scc_w=False)); e(salu("s_lshl_b32", s_t3, s_cg, 7)); e(salu("s_add_u32", s_t1, s_t1, s_t3))
dma_voffs(v_dB, 1024, s_t1, True)
xaddr(vxa, vx)
e(valu("v_and_b32", V(51), 7, v_lane)); e(valu("v_lshlrev_b32", V(51), 2, V(51)))
e(salu("s_lshl_b32", s_t0, s_w, 12)); e(valu("v_add_u32", vfw, s_t0, v_lin))
e(salu("s_lshl_b32", s_t3, s_w, 4)); e(salu("s_add_u32", s_t3, s_t3, s_g)); e(salu("s_lshl_b32", s_t3, s_t3, 13))
early = em.out; em.out = save
class Seq:
    kind = "vmem"
    def __init__(self, l): self.l = l
    def __call__(self): return self.l
hld = {}; htok = {}
for kk in range(14):
    hld[kk] = [bload(hreg(kk, qb), v_lin, S_HC, s_hl, off=qb * 1024, mod="sc1") for qb in range(4)]
    htok[kk] = hld[kk][3]
    extra.setdefault(4 * (32 + kk) - 1, []).append((2, LateWait(lambda kk=kk: htok[kk]), 0))
hseq = []
for kk in range(14):
    for qb in range(4):
        hseq.append(Seq([salu("s_add_u32", s_hl, s_hb, kk * 4096), hld[kk][qb]]))
NPRE = int(os.environ.get("NPRE", "12")); HG0 = int(os.environ.get("HG0", "70")); HGS = int(os.environ.get("HGS", "4"))
for k in range(NPRE): extra.setdefault(HG0 + HGS * k, []).append((2, hseq[k], 1))
def sreg(ip, qb, odd=0): return v_acc[(((2 * ip + odd) * 4 + qb) * 4, 4)]
sp = []; spst = []
HPS = int(os.environ.get("HPS", "3")); hk = NPRE
for ip in range(4):
    for qb in range(4):
        t = sreg(ip, qb)
        for b in range(2):
            o = sreg(ip, qb, b)
            for k in range(2): sp.append(valu("v_cvt_pk_bf16_f32", t[2 * b + k], o[2 * k], o[2 * k + 1]))
        if (qb & 1) == 0: sp.append(salu("s_add_u32", s_t1, s_t3, (ip >> 1) * 65536 + (qb >> 1) * 4096))
        st = bstore(t, v_lin, S_SP, s_t1, off=(qb & 1) * 2048 + (ip & 1) * 1024, mod=os.environ.get("ST_MOD", "sc1").replace("plain", ""))
        if os.environ.get("ST_NONE") and not (ip == 3 and qb == 3): st = nop(0)
        sp.append(st); spst.append(st)
        if not (XY and ip < 2):
            for _ in range(HPS * (2 if XY else 1)):
                if hk < 48: sp.append(hseq[hk]); hk += 1
for k in range(hk, 48): sp.append(hseq[k])
for k in range(48, 56): extra.setdefault(140 + (k - 48), []).append((2, hseq[k], 1))
class SigS:
    def __call__(self):
        stamp(); em.wait(vm=spst[-1]); stamp(); e(raw("s_barrier"))
        e(scmp("s_cmp_lg_u32", s_w, 0)); e(raw("s_cbranch_scc1 L_sigS", rd=["scc"]))
        e(valu("v_mov_b32", v_t, 1))
        e(raw("s_mov_b64 exec, 1", "salu", wr=["exec"]))
        e(raw("buffer_store_dword %s, off, %s, %s sc1" % (v_t, S_FL, s_myfl)))
        e(raw("s_mov_b64 exec, -1", "salu", wr=["exec"]))
        em.label("L_sigS")
        return []
G_SIG = int(os.environ.get("G_SIG", "160")); G_POLL = int(os.environ.get("G_POLL", "172")); G_CHK = int(os.environ.get("G_CHK", "178"))
extra.setdefault(G_SIG, []).append((0, SigS(), 0))
vpa = V(51)
ptok = bload(vpoll, vpa, S_FL, s_t2, n=1, mod="sc1")
extra.setdefault(G_POLL, []).append((1, [salu("s_lshl_b32", s_t2, s_cq, 7)], 0))
extra.setdefault(G_POLL, []).append((2, ptok, 1))
def spl(gp, i): return sreg(gp >> 1, (gp & 1) * 2 + i, 1)
sl = []
class ChkS:
    def __call__(self):
        em.wait(vm=ptok)
        stamp()
        e(salu("s_mov_b32", s_cnt, 0, scc_w=False))
        em.label("L_pollS")
        e(valu("v_cmp_ne_u32", "vcc", 1, vpoll)); e(nop(2))
        e(raw("s_cbranch_vccz L_pollS_done", rd=["vcc"]))
        e(salu("s_add_u32", s_cnt, s_cnt, 1)); e(scmp("s_cmp_ge_u32", s_cnt, 50000)); e(raw("s_cbranch_scc1 L_pollS_done", rd=["scc"]))
        e(raw("buffer_load_dword %s, %s, %s, %s offen sc1" % (vpoll, vpa, S_FL, s_t2))); e(raw("s_waitcnt vmcnt(0)")); e(raw("s_branch L_pollS"))
        em.label("L_pollS_done")
        stamp()
        e(salu("s_lshl_b32", s_t0, s_cg, 16)); e(salu("s_lshl_b32", s_t1, s_w, 11)); e(salu("s_add_u32", s_t0, s_t0, s_t1))
        for gp in range(8):
            for i in range(2): sl.append(e(bload(spl(gp, i), v_lin, S_SPC, s_t0, off=i * 1024, mod="sc1")))
            if gp < 7: e(salu("s_add_u32", s_t0, s_t0, 8192))
        return []
if G_CHK < 184: extra.setdefault(G_CHK, []).append((0, ChkS(), 0))
if STAMP: extra.setdefault(128, []).append((0, Stamp(), 0))
class Diag:
    def __call__(self): diag(); return []
if DIAG: extra.setdefault(128, []).append((0, Diag(), 0))
class Paced(VStream):
    def has(self, g): return self.i < len(self.items) and g >= self.start and self.i <= (g - self.start + 1) * len(self.items) // max(1, self.end - self.start)
    def quota(self, g): return 99 if g >= self.start else 0
class Multi:
    def __init__(self, *l): self.l = list(l)
    def cur(self, g):
        for x in self.l:
            if x.i < len(x.items): return x
        return self.l[-1]
    def has(self, g): return self.cur(g).has(g)
    def peek(self): return self.cur(0).peek()
    def pop(self): return self.cur(0).pop()
    def quota(self, g): return self.cur(g).quota(g)
    def used_quota(self): self.cur(0).used_quota()
SP_END = int(os.environ.get("SP_END", "146"))
if XY:
    half = sp.index(spst[7]) + 1
    vs = Multi(VStream(early, 2, 40), Paced(sp[:half], int(os.environ.get("X_START", "67")), int(os.environ.get("X_END", "75"))), Paced(sp[half:], 130, SP_END))
else:
    vs = Multi(VStream(early, 2, 40), Paced(sp, 130, SP_END))
class ChkEarly:
    def __call__(self):
        assert vs.l[0].i == len(vs.l[0].items); return []
extra.setdefault(59, []).append((0, ChkEarly(), 0))
run_stream(46, s2_dma, dtok2, s2_acc, s2_B, extra, vs, pos0=P2, ring=v_ring2)
stamp(); diag()
e(nop(6))
for qb in range(4):
    for u in range(4):
        if len(em.lgq) >= 12: em.wait(lg=em.lgq[-12])
        e(dswrite("ds_write_b128", vfw, a_F[((u * 4 + qb) * 4, 4)], qb * 16384 + u * 1024))
if G_CHK >= 184: ChkS()()
em.wait(lg0=True)
e(raw("s_barrier"))
def frr(ws_, u): return sreg(ws_, u, 0)
for ws_ in range(4):
    for u in range(4):
        if len(em.lgq) >= 14: em.wait(lg=em.lgq[-14])
        e(dsread("ds_read_b128", frr(ws_, u), v_wl, ws_ * 4096 + u * 1024))
em.wait(lg0=True)
v_fr = V(96, 16); vE = V(64, 16); vs_ = V(80, 16)
for u in range(4):
    for k in range(2):
        e(valu("v_pk_add_f32", frr(0, u)[(2 * k, 2)], frr(0, u)[(2 * k, 2)], frr(1, u)[(2 * k, 2)]))
        e(valu("v_pk_add_f32", frr(2, u)[(2 * k, 2)], frr(2, u)[(2 * k, 2)], frr(3, u)[(2 * k, 2)]))
for u in range(4):
    for k in range(2): e(valu("v_pk_add_f32", v_fr[(4 * u + 2 * k, 2)], frr(0, u)[(2 * k, 2)], frr(2, u)[(2 * k, 2)]))
for k in range(16): e(valu("v_mul_f32", vE[k], hx(f2u(-math.log2(math.e))), v_fr[k]))
for k in range(16): e(valu("v_exp_f32", vE[k], vE[k]))
for k in range(16): e(valu("v_add_f32", vE[k], "1.0", vE[k]))
for k in range(16): e(valu("v_rcp_f32", vE[k], vE[k]))
for k in range(16): e(valu("v_mul_f32", v_fr[k], v_fr[k], vE[k]))
for k in range(8):
    e(valu("v_lshlrev_b32", vE[2 * k], 16, vxf[k])); e(valu("v_and_b32", vE[2 * k + 1], "0xffff0000", vxf[k]))
for gp in range(8):
    em.wait(vm=sl[2 * gp + 1])
    for k in range(8):
        src = spl(gp, k >> 2)[k & 3]
        if gp == 0:
            e(valu("v_lshlrev_b32", vs_[2 * k], 16, src)); e(valu("v_and_b32", vs_[2 * k + 1], "0xffff0000", src))
        else:
            e(valu("v_lshlrev_b32", V(112 + 2 * (k & 3)), 16, src)); e(valu("v_and_b32", V(113 + 2 * (k & 3)), "0xffff0000", src))
            e(valu("v_pk_add_f32", vs_[(2 * k, 2)], vs_[(2 * k, 2)], V(112 + 2 * (k & 3), 2)))
if DUMP == "fin": dump_regs([vs_[i] for i in range(16)] + [v_fr[i] for i in range(16)])
for k in range(8): e(valu("v_pk_fma_f32", vE[(2 * k, 2)], vs_[(2 * k, 2)], v_fr[(2 * k, 2)], vE[(2 * k, 2)]))
for k in range(8): e(valu("v_cvt_pk_bf16_f32", vxf[k], vE[2 * k], vE[2 * k + 1]))
for u in range(4): e(bstore(vxf[(2 * u, 2)], vxa, S_OUT, 0, off=32 * u))
stamp(); diag_out()
em.label("L_end")
e(raw("s_endpgm"))
main_end = len(em.out)

em.lgq, em.vmq, em.pend = [], [], {}
em.label("L_fallback")
e(raw("s_waitcnt vmcnt(0) lgkmcnt(0)")); em._retire(em.vmq, 0); em._retire(em.lgq, 0)
e(salu("s_mov_b32", s_retry, 1, scc_w=False))
e(salu("s_mov_b32", s_kK, 0, scc_w=False))
fm = [V(40 + i) for i in range(4)]
for i in range(4): e(valu("v_mov_b32", fm[i], "0xff800000"))
em.label("L_fb_loop")
e(raw("s_barrier"))
e(salu("s_add_u32", "m0", s_m0b, 4 * 16384)); e(nop(0))
for j in range(4): e(dma(v_kd[j], S_K, s_kK, j * 1024))
em.wait(vm0=True)
e(raw("s_barrier"))
for kb in range(4):
    rr = [e(dsread("ds_read_b128", fr(ds), v_ka[ds], kb * 4096)) for ds in range(4)]
    em.wait(lg0=True)
    for ds in range(4):
        for qb in range(4):
            d = v_S[0][(qb * 4, 4)]
            e(mfma(d, fr(ds), Qf(qb, ds), 0 if ds == 0 else d))
    e(nop(7))
    for qb in range(4):
        e(valu("v_max3_f32", fm[qb], fm[qb], v_S[0][qb * 4], v_S[0][qb * 4 + 1])); e(valu("v_max3_f32", fm[qb], fm[qb], v_S[0][qb * 4 + 2], v_S[0][qb * 4 + 3]))
    e(nop(2))
e(salu("s_add_u32", s_kK, s_kK, 16384)); e(scmp("s_cmp_lt_u32", s_kK, 524288)); e(raw("s_cbranch_scc1 L_fb_loop", rd=["scc"]))
red4("v_max_f32", fm, [V(44 + i) for i in range(4)])
for qb in range(4):
    for k in range(4): e(valu("v_sub_f32", v_negm[qb * 4 + k], 0, fm[qb]))
e(raw("s_barrier"))
for m in (64, 65, 66):
    sa, dm = s1_dma(m); e(sa)
    for d in dm: e(d)
e(raw("s_branch L_att_start"))
em.label("L_code_end")
e(raw("s_endpgm"))

probs = check_hazards(em.out, "main") + loop_probs
for p in probs: print("; HAZARD", p, file=sys.stderr)
assert not probs

hdr = open(os.path.join(os.path.dirname(os.path.abspath(__file__)), "header.txt")).read()
print(hdr.rstrip())
print("; @launch grid=(256,1,1) block=(256,1,1) lds=163840")
print('.amdgcn_target "amdgcn-amd-amdhsa--gfx950"\n.text\n.globl %s\n.p2align 8\n.type %s,@function\n%s:' % (KN, KN, KN))
print(em.text())
print('.section .rodata,"a"\n.p2align 6\n.amdhsa_kernel %s' % KN)
print("  .amdhsa_next_free_vgpr 512\n  .amdhsa_next_free_sgpr 102\n  .amdhsa_accum_offset 256\n  .amdhsa_group_segment_fixed_size 0\n  .amdhsa_kernarg_size 96\n  .amdhsa_user_sgpr_count 2\n  .amdhsa_user_sgpr_kernarg_segment_ptr 1\n  .amdhsa_system_sgpr_workgroup_id_x 1\n.end_amdhsa_kernel")
```

```python
import sys, os, math, struct
from asmgen import *

KN = "recurrent_scan__gqa_block_cached__geglu_ffn__prompt_kernel"
DUMP = os.environ.get("DUMP", "")
STAMP = int(os.environ.get("STAMP", "0"))
GEL_END = int(os.environ.get("GEL_END", "228")); GEL_EXTRA = int(os.environ.get("GEL_EXTRA", "360"))

def f2u(x): return struct.unpack("<I", struct.pack("<f", x))[0]
def hx(x): return "0x%x" % (x & 0xffffffff)

S_X, S_K, S_V, S_WQ, S_WO, S_WG, S_WU, S_WD, S_OUT, S_DBG, S_H, S_SP = [S(4 + 4 * i, 4) for i in range(12)]
s_g, s_qb, s_w = S(52), S(53), S(54)
s_t0, s_t1, s_t2, s_t3 = S(55), S(56), S(57), S(58)
s_m0b = S(59)
s_off = S(60)
s_cnt = S(61)
s_kK, s_kV = S(62), S(63)
s_retry = S(64)
s_h0, s_h1 = S(65), S(66)
s_hl = S(67); s_hb = S(78); s_myfl = S(79)
s_ka = S(68, 16); s_kb = S(84, 8)
s_pair = S(92, 2); s_pair2 = S(94, 2)
S_DMP = S(96, 4)
s_cq, s_cg = S(76), S(77)
S_HC = S(80, 4)
S_SPC = S(84, 4)
S_XC = S(88, 4)
s_st = S(68, 4)

v_tid, v_lane, v_lin, v_t = V(0), V(1), V(2), V(3)
v_tr = [V(4, 4), V(8, 4)]
v_dA, v_dB = V(12, 4), V(16, 4)
v_ka = V(20, 4); v_va = V(24, 8); v_kd = V(32, 4); v_vd = V(36, 2)
v_wl = V(38)
v_c = V(39)
v_l0, v_l1 = V(40, 4), V(44, 4)
v_lsave = V(16, 4)
v_negm = V(48, 16)
v_S = [V(64, 32), V(96, 32)]
v_acc = V(128, 128)
a_ring = A(128, 32)
a_B = A(160, 32)
a_Q = A(0, 64)
a_F = A(0, 64)
a_x = A(248, 8)

RING = 65536
MARK = 0x7fc17fc1
WS_SP = 8 << 20
WS_DUMP = 32 << 20
WS_FL = (7 << 20) + (512 << 10)
S_FL = S(4, 4)

em = Em()
e = em.e

def srd(dst, lo, hi, size, off_s=None):
    if off_s is None:
        e(salu("s_mov_b32", dst[0], lo, scc_w=False)); e(salu("s_mov_b32", dst[1], hi, scc_w=False))
    else:
        e(salu("s_add_u32", dst[0], lo, off_s)); e(salu("s_addc_u32", dst[1], hi, 0, scc_r=True))
    e(salu("s_mov_b32", dst[2], hx(size), scc_w=False)); e(salu("s_mov_b32", dst[3], "0x20000", scc_w=False))

DIAG = int(os.environ.get("DIAG", "0"))
HC_OFF = 128
diag_regs = [S(100, 2), S(70, 2), S(72, 2), S(74, 2), S(96, 2), S(98, 2), S(68, 2)] if DIAG == 1 else [S(100, 2), S(96, 2), S(98, 2), S(94, 2), S(70, 2), S(72, 2), S(74, 2), S(68, 2)]
diag_n = [0]
def diag(which=1):
    if not DIAG or (which != DIAG and which != 0): return
    k = diag_n[0]; diag_n[0] += 1
    e(raw("s_memrealtime %s" % diag_regs[k], "other", wr=[diag_regs[k]]))
    if k > 0: e(raw("s_waitcnt lgkmcnt(0)", "wait")); em._retire(em.lgq, 0)
AMP = os.environ.get("AMP")
def diag_out():
    if not DIAG: return
    diag(0)
    if AMP:
        k = int(AMP); last = diag_regs[diag_n[0] - 1]
        e(salu("s_sub_u32", s_t0, diag_regs[k][0], diag_regs[0][0])); e(salu("s_lshl_b32", s_t0, s_t0, 2))
        em.label("L_amp")
        e(raw("s_memrealtime s[56:57]")); e(raw("s_waitcnt lgkmcnt(0)"))
        e(salu("s_sub_u32", s_t1, s_t1, last[0])); e(scmp("s_cmp_lt_u32", s_t1, s_t0)); e(raw("s_cbranch_scc1 L_amp", rd=["scc"]))
        return
    e(scmp("s_cmp_lg_u32", s_w, 0)); e(raw("s_cbranch_scc1 L_end", rd=["scc"]))
    e(raw("s_mov_b64 exec, 1", "salu", wr=["exec"]))
    e(salu("s_not_b32", s_t0, diag_regs[0][0]))
    for k in range(diag_n[0]):
        e(valu("v_mov_b32", V(4 + k), s_t0 if k == 0 else diag_regs[k][0]))
        e(raw("buffer_atomic_umax %s, off, %s, 0 offset:%d sc1" % (V(4 + k), S_DBG, 4 * k)))
    e(valu("v_mov_b32", V(12), diag_regs[0][0]))
    e(raw("buffer_atomic_umax %s, off, %s, 0 offset:%d sc1" % (V(12), S_DBG, 4 * 9)))
stamp_n = [0]
def stamp():
    if not STAMP: return
    k = stamp_n[0]; stamp_n[0] += 1
    e(raw("s_memtime %s" % S(68, 2), "other", wr=[S(68, 2)]))
    e(raw("s_memrealtime %s" % S(70, 2), "other", wr=[S(70, 2)]))
    e(raw("s_waitcnt lgkmcnt(0)", "wait")); em._retire(em.lgq, 0)
    for i in range(4): e(valu("v_writelane_b32", v_c, S(68 + i), i, rmw=True))
    e(salu("s_lshl_b32", S(72), S(2), 2)); e(salu("s_add_u32", S(72), S(72), s_w)); e(salu("s_lshl_b32", S(72), S(72), 9))
    e(salu("s_mov_b64", S(74, 2), "exec", scc_w=False)); e(raw("s_mov_b64 exec, 15", "salu", wr=["exec"]))
    e(valu("v_lshlrev_b32", v_t, 2, v_lane))
    e(bstore(v_c, v_t, S_DMP, S(72), off=k * 16))
    e(raw("s_mov_b64 exec, %s" % S(74, 2), "salu", wr=["exec"]))
    e(valu("v_lshlrev_b32", v_t, 7, v_lane))

def dump_regs(regs, finish=True):
    em.wait(lg0=True, vm0=True)
    e(nop(7)); e(nop(7))
    n = len(regs)
    e(salu("s_lshl_b32", s_t0, S(2), 2)); e(salu("s_add_u32", s_t0, s_t0, s_w)); e(salu("s_mul_i32", s_t0, s_t0, n * 256, scc_w=False))
    e(valu("v_lshlrev_b32", v_t, 2, v_lane))
    for k, r in enumerate(regs):
        e(bstore(r, v_t, S_DMP, s_t0, off=0))
        e(salu("s_add_u32", s_t0, s_t0, 256))
        if k % 32 == 31: em.wait(vm0=True)
    em.wait(vm0=True)
    if finish: e(raw("s_endpgm"))

def red4(op, x, tmp):
    for sw in ("v_permlane32_swap_b32", "v_permlane16_swap_b32"):
        for a, t in zip(x, tmp): e(valu("v_mov_b32", t, a))
        if len(x) < 3: e(nop(1))
        for a, t in zip(x, tmp): e(valu(sw, a, t))
        for a, t in zip(x, tmp): e(valu(op, a, a, t))

e(scmp("s_cmp_ge_u32", S(2), 256)); e(raw("s_cbranch_scc1 L_end", rd=["scc"]))
diag(0)
i0 = e(I("s_load_dwordx16 %s, s[0:1], 0" % s_ka, "smem", wr=s_ka.regs()))
i1 = e(I("s_load_dwordx8 %s, s[0:1], 64" % s_kb, "smem", wr=s_kb.regs()))
vq, vG, vr, vc_, vx, vy, vz = [V(40 + i) for i in range(7)]
e(raw("s_getpc_b64 %s" % s_pair2, "salu", wr=[s_pair2]))
em.label("L_pc0")
e(salu("s_and_b32", s_g, S(2), 7)); e(salu("s_lshr_b32", s_qb, S(2), 3))
e(valu("v_and_b32", v_lane, 63, v_tid))
e(valu("v_lshrrev_b32", v_t, 6, v_tid))
e(valu("v_lshlrev_b32", v_lin, 4, v_lane))
e(valu("v_readfirstlane_b32", s_w, v_t))
e(valu("v_and_b32", vq, 15, v_lane)); e(valu("v_lshrrev_b32", vG, 4, v_lane))
vxo = V(47)
e(valu("v_lshl_add_u32", vxo, v_t, 4, vq)); e(valu("v_lshlrev_b32", vxo, 10, vxo)); e(valu("v_lshl_add_u32", vxo, vG, 4, vxo))
vwg, vwq, vcw = V(52), V(53), V(54)
e(salu("s_mul_i32", s_t1, s_g, 448, scc_w=False)); e(salu("s_and_b32", s_t1, s_t1, hx(~127)))
e(salu("s_and_b32", s_t2, s_w, 1)); e(salu("s_lshl_b32", s_t3, s_qb, 1)); e(salu("s_add_u32", s_t2, s_t2, s_t3))
e(salu("s_mul_i32", s_t2, s_t2, 8 * 3584, scc_w=False)); e(salu("s_add_u32", s_t1, s_t1, s_t2))
e(valu("v_lshrrev_b32", vx, 2, v_lane)); e(valu("v_mul_u32_u24", vx, 3584, vx)); e(valu("v_and_b32", vz, 3, v_lane)); e(valu("v_lshl_add_u32", vx, vz, 7, vx))
e(valu("v_add_u32", vwg, s_t1, vx))
e(salu("s_lshl_b32", s_t2, s_qb, 2)); e(salu("s_add_u32", s_t2, s_t2, s_w)); e(salu("s_lshl_b32", s_t3, s_t2, 8))
e(valu("v_lshlrev_b32", vcw, 7, v_lane)); e(valu("v_add_u32", vcw, s_t3, vcw))
e(salu("s_lshl_b32", s_t0, s_qb, 16))
em.wait(lg0=True)
diag(2)
srd(S_X, s_ka[0], s_ka[1], 65536, s_t0)
v_xp = V(64, 64)
XFIRST = int(os.environ.get("XFIRST", "8"))
xl = [bload(v_xp[(4 * ks, 4)], vxo, S_X, 0, off=64 * ks) for ks in range(16)]
for ks in range(XFIRST): e(xl[ks])
e(scmp("s_cmp_lt_u32", s_w, 2)); e(salu("s_cselect_b64", s_pair, s_ka[(12, 2)], s_ka[(14, 2)], scc_w=False, scc_r=True))
e(raw("s_mov_b64 exec, 0xffffffff", "salu", wr=["exec"]))
e(I("global_load_dword %s, %s, %s" % (V(48), vwg, s_pair), "vmem", rd=vwg.regs() + s_pair.regs(), wr=V(48).regs()))
e(raw("s_mov_b64 exec, 3", "salu", wr=["exec"]))
e(I("global_load_dword %s, %s, %s" % (V(49), vcw, s_pair2), "vmem", rd=vcw.regs() + s_pair2.regs(), wr=V(49).regs()))
e(raw("s_mov_b64 exec, -1", "salu", wr=["exec"]))
e(salu("s_lshl_b32", s_t2, s_t2, 15)); e(salu("s_lshl_b32", s_t3, s_g, 10)); e(salu("s_add_u32", s_t2, s_t2, s_t3))
e(valu("v_lshrrev_b32", vx, 3, v_lane)); e(valu("v_lshlrev_b32", vx, 13, vx)); e(valu("v_and_b32", vz, 7, v_lane)); e(valu("v_lshl_add_u32", vx, vz, 7, vx))
e(valu("v_add_u32", vwq, s_t2, vx))
e(salu("s_lshr_b32", s_t2, s_qb, 3)); e(salu("s_lshl_b32", s_t3, s_g, 2)); e(salu("s_add_u32", s_t2, s_t2, s_t3))
e(salu("s_lshl_b32", s_t0, s_t2, 16))
srd(S_OUT, s_kb[2], s_kb[3], 65536, s_t0)
e(salu("s_lshl_b32", s_t1, s_g, 19))
srd(S_K, s_ka[2], s_ka[3], 524288, s_t1)
srd(S_V, s_ka[4], s_ka[5], 524288, s_t1)
srd(S_WO, s_ka[8], s_ka[9], 524288, s_t1)
srd(S_WQ, s_ka[6], s_ka[7], 4 << 20)
srd(S_WG, s_ka[12], s_ka[13], 1835008)
srd(S_WU, s_ka[14], s_ka[15], 1835008)
srd(S_WD, s_kb[0], s_kb[1], 1835008)
srd(S_DBG, s_kb[4], s_kb[5], 256)
e(salu("s_mul_i32", s_t1, s_qb, 229376, scc_w=False))
srd(S_H, s_kb[6], s_kb[7], 229376, s_t1)
e(salu("s_lshl_b32", s_t1, s_qb, 19)); e(salu("s_add_u32", s_t1, s_t1, hx(WS_SP)))
srd(S_SP, s_kb[6], s_kb[7], 524288, s_t1)
if DUMP or STAMP:
    e(salu("s_mov_b32", s_t1, hx(WS_DUMP), scc_w=False))
    srd(S_DMP, s_kb[6], s_kb[7], 200 << 20, s_t1)
e(salu("s_mov_b64", s_pair, S(90, 2), scc_w=False))
e(salu("s_lshl_b32", s_t0, s_t2, 16))
srd(S_XC, s_ka[0], s_ka[1], 65536, s_t0)
e(salu("s_mul_i32", s_t1, s_t2, 229376, scc_w=False))
srd(S_HC, s_pair[0], s_pair[1], 229376, s_t1)
e(salu("s_lshl_b32", s_t1, s_t2, 19)); e(salu("s_add_u32", s_t1, s_t1, hx(WS_SP)))
srd(S_SPC, s_pair[0], s_pair[1], 524288, s_t1)
e(salu("s_mov_b32", s_cq, s_t2, scc_w=False)); e(salu("s_and_b32", s_cg, s_qb, 7))
e(salu("s_lshl_b32", s_myfl, s_qb, 7)); e(salu("s_lshl_b32", s_t1, s_g, 2)); e(salu("s_add_u32", s_myfl, s_myfl, s_t1))
e(salu("s_lshl_b32", s_m0b, s_w, 12)); e(salu("s_add_u32", s_m0b, s_m0b, RING))
e(salu("s_and_b32", s_t1, s_g, 1)); e(salu("s_lshl_b32", s_t1, s_t1, 2)); e(salu("s_add_u32", s_t1, s_t1, s_w))
e(scmp("s_cmp_eq_u32", s_w, 3)); e(salu("s_cselect_b32", s_t1, 3, s_t1, scc_w=False, scc_r=True))
e(salu("s_lshr_b32", s_t2, s_g, 1)); e(salu("s_mul_i32", s_t2, s_t2, 7, scc_w=False)); e(salu("s_add_u32", s_t1, s_t1, s_t2))
e(salu("s_lshl_b32", s_h0, s_t1, 13)); e(salu("s_add_u32", s_h1, s_h0, 4096))
e(salu("s_lshl_b32", s_t1, s_t1, 7))
e(salu("s_lshl_b32", s_t2, s_g, 2)); e(salu("s_add_u32", s_t2, s_t2, s_w)); e(salu("s_lshl_b32", s_t2, s_t2, 8))

def dma_voffs(dst, stride, colbase_s, perm):
    for j in range(4):
        e(valu("v_bfe_u32", vx, v_lane, 1, 2)); e(valu("v_bfe_u32", vy, v_lane, 4, 1))
        e(valu("v_xor_b32", vx, vx, vy))
        if j & 1: e(valu("v_xor_b32", vx, 2, vx))
        e(valu("v_and_b32", vy, 1, v_lane)); e(valu("v_lshlrev_b32", vy, 4, vy)); e(valu("v_lshl_add_u32", vx, vx, 5, vy))
        if not perm:
            e(valu("v_lshrrev_b32", vy, 3, v_lane)); rowadd = 8 * j
        else:
            e(valu("v_bfe_u32", vy, v_lane, 3, 2)); e(valu("v_bfe_u32", vz, v_lane, 5, 1)); e(valu("v_lshl_add_u32", vy, vz, 4, vy)); rowadd = 4 * j
        e(valu("v_mul_u32_u24", vy, stride, vy))
        e(valu("v_add3_u32", vx, vx, vy, colbase_s))
        e(valu("v_add_u32", dst[j], rowadd * stride - j * 1024, vx))

dma_voffs(v_dA, 3584, s_t1, False)
dma_voffs(v_dB, 8192, s_t2, False)

def m0set(p): return salu("s_add_u32", "m0", s_m0b, p * 16384)
def s1_dma(m):
    p = m % 6
    if m < 32:
        s, h = m >> 1, m & 1
        return [m0set(p), salu("s_mov_b32", s_off, s * 32 * 3584, scc_w=False)], [dma(v_dA[j], S_WU if h else S_WG, s_off, j * 1024) for j in range(4)]
    if m < 64:
        s, h = (m - 32) >> 1, m & 1
        return [m0set(p), salu("s_mov_b32", s_off, s * 32 * 8192 + 128 * h, scc_w=False)], [dma(v_dB[j], S_WQ, s_off, j * 1024) for j in range(4)]
    if m == 64:
        return [m0set(p), salu("s_mov_b32", s_off, 0, scc_w=False)], [dma(v_kd[j], S_K, s_off, j * 1024) for j in range(4)]
    if m == 65:
        return [m0set(p), salu("s_mov_b32", s_off, 8192, scc_w=False)], [dma(v_kd[j], S_K, s_off, j * 1024) for j in range(4)]
    if m == 66:
        return [m0set(p), salu("s_mov_b32", s_off, 0, scc_w=False)], [dma(v_vd[j & 1], S_V, s_off, j * 1024) for j in range(4)]
    return None
dtok = {}
ln_v = []
for m in range(6):
    sa, dm = s1_dma(m)
    ln_v.append(sa); ln_v += dm
    dtok[m] = dm[3]
def xaddr(dst, tmp):
    e(valu("v_and_b32", dst, 15, v_lane)); e(salu("s_lshl_b32", s_t0, s_w, 4)); e(valu("v_add_u32", dst, s_t0, dst)); e(valu("v_lshlrev_b32", dst, 10, dst))
    e(valu("v_lshrrev_b32", tmp, 4, v_lane)); e(valu("v_lshl_add_u32", dst, tmp, 3, dst)); e(salu("s_lshl_b32", s_t0, s_cg, 7)); e(valu("v_add_u32", dst, s_t0, dst))
vxs, vzero = V(50), V(51)
xaddr(vxs, vy)
e(valu("v_mov_b32", vzero, 0))
ln_v += [bload(a_x[(2 * u, 2)], vxs, S_XC, 0, off=32 * u, n=2) for u in range(4)]
ln_v.append([raw("s_mov_b64 exec, 1", "salu", wr=["exec"]), bstore(vzero, None, S_FL, s_myfl, mod="sc1"), raw("s_mov_b64 exec, -1", "salu", wr=["exec"])])
ln_v.append([raw("s_mov_b64 exec, 0xffffffff", "salu", wr=["exec"]), bload(V(55), vwq, S_WQ, 0, n=1), raw("s_mov_b64 exec, -1", "salu", wr=["exec"])])
LNPRE = int(os.environ.get("LNPRE", "0"))
lv = [0]
def ln_issue(n=1):
    k = 0
    while k < n and lv[0] < len(ln_v):
        it = ln_v[lv[0]]; lv[0] += 1
        e(it)
        if not isinstance(it, list): k += 1
e(valu("v_bfe_u32", vr, v_lane, 2, 2)); e(valu("v_and_b32", vc_, 3, v_lane))
e(valu("v_lshlrev_b32", vx, 10, vG)); e(valu("v_lshl_add_u32", vx, vr, 7, vx)); e(valu("v_lshl_add_u32", vx, vc_, 3, vx)); e(valu("v_add_u32", vx, s_m0b, vx))
e(valu("v_lshrrev_b32", vy, 1, vr)); e(valu("v_and_b32", vz, 1, vG)); e(valu("v_lshl_add_u32", vy, vz, 1, vy))
for u in range(4):
    e(valu("v_xor_b32", vz, u, vy)); e(valu("v_lshl_add_u32", v_tr[0][u], vz, 5, vx)); e(valu("v_add_u32", v_tr[1][u], 3 * 16384, v_tr[0][u]))
e(valu("v_xor_b32", vy, vG, vq))
for ds in range(4):
    e(valu("v_xor_b32", vz, 4 * ds, vy)); e(valu("v_lshlrev_b32", vz, 4, vz)); e(valu("v_lshl_add_u32", vz, vq, 8, vz)); e(valu("v_add_u32", v_ka[ds], RING + 4 * 16384, vz))
e(valu("v_lshl_add_u32", vx, vG, 2, vr)); e(valu("v_and_b32", vy, 7, vx)); e(valu("v_lshlrev_b32", vx, 8, vx)); e(valu("v_lshl_add_u32", vx, vc_, 3, vx)); e(valu("v_add_u32", vx, RING, vx))
for db in range(8):
    e(valu("v_xor_b32", vz, db, vy)); e(valu("v_lshl_add_u32", v_va[db], vz, 5, vx))
e(salu("s_lshl_b32", s_t1, s_w, 12))
e(valu("v_lshlrev_b32", vx, 8, vG)); e(valu("v_add_u32", vx, s_t1, vx))
for j in range(4):
    e(valu("v_add_u32", vy, 4 * j, vG)); e(valu("v_xor_b32", vy, vy, vq)); e(valu("v_lshl_add_u32", v_kd[j], vy, 4, vx))
e(valu("v_and_b32", vz, 1, v_lane)); e(valu("v_lshl_add_u32", vx, vz, 4, vx))
for j in range(2):
    e(valu("v_add_u32", vy, 4 * j, vG)); e(valu("v_lshrrev_b32", vz, 1, vq)); e(valu("v_xor_b32", vy, vy, vz)); e(valu("v_lshl_add_u32", v_vd[j], vy, 5, vx))
e(salu("s_lshl_b32", s_t1, s_w, 14)); e(valu("v_add_u32", v_wl, s_t1, v_lin))
e(salu("s_mov_b32", s_retry, 0, scc_w=False))
for ks in range(XFIRST, 16): e(xl[ks])
e(salu("s_mov_b32", s_t1, hx(WS_FL), scc_w=False))
srd(S_FL, s_pair[0], s_pair[1], 4096, s_t1)
ln_issue(LNPRE)
stamp()

v_f = V(128, 128)
acc = [V(56, 2), V(58, 2), V(60, 2), V(62, 2)]
diag(2)
for ks in range(16):
    em.wait(vm=xl[ks])
    if ks == 15: diag(2)
    for k in range(4):
        p = 4 * ks + k
        e(valu("v_lshlrev_b32", v_f[2 * p], 16, v_xp[p])); e(valu("v_and_b32", v_f[2 * p + 1], "0xffff0000", v_xp[p]))
    for k in range(4):
        p = 4 * ks + k
        if ks == 0: e(valu("v_mov_b64", acc[k], v_f[(2 * p, 2)]))
        else: e(valu("v_pk_add_f32", acc[k], acc[k], v_f[(2 * p, 2)]))
if STAMP == 3: stamp()
ln_issue(int(os.environ.get("LN_FIRST", "40")))
diag(2)
if STAMP == 3: stamp()
e(valu("v_pk_add_f32", acc[0], acc[0], acc[1])); e(valu("v_pk_add_f32", acc[2], acc[2], acc[3])); e(valu("v_pk_add_f32", acc[0], acc[0], acc[2]))
vsum, vtmp, vmb, vdm = V(40), V(41), V(42), V(43)
e(valu("v_add_f32", vsum, acc[0][0], acc[0][1]))
red4("v_add_f32", [vsum], [vtmp])
e(valu("v_mul_f32", vsum, hx(f2u(1.0 / 512)), vsum))
e(valu("v_cvt_pk_bf16_f32", vmb, vsum, vsum)); e(valu("v_lshlrev_b32", vmb, 16, vmb))
e(valu("v_sub_f32", vdm, vsum, vmb))
vneg = V(56, 2)
e(valu("v_sub_f32", vneg[0], 0, vmb))
acc2 = [V(58, 2), V(60, 2), V(62, 2)]
for p in range(64):
    e(valu("v_pk_add_f32", v_f[(2 * p, 2)], v_f[(2 * p, 2)], vneg, mod="op_sel_hi:[1,0]"))
for p in range(64):
    a_ = acc2[p % 3]
    if p < 3: e(valu("v_pk_mul_f32", a_, v_f[(2 * p, 2)], v_f[(2 * p, 2)]))
    else: e(valu("v_pk_fma_f32", a_, v_f[(2 * p, 2)], v_f[(2 * p, 2)], a_))
if STAMP == 3: stamp()
e(valu("v_pk_add_f32", acc2[0], acc2[0], acc2[1])); e(valu("v_pk_add_f32", acc2[0], acc2[0], acc2[2]))
e(valu("v_add_f32", vsum, acc2[0][0], acc2[0][1]))
red4("v_add_f32", [vsum], [vtmp])
e(valu("v_mul_f32", vsum, hx(f2u(1.0 / 512)), vsum))
e(valu("v_fma_f32", vsum, "-" + str(vdm), vdm, vsum, extra_rd=vdm.regs()))
e(valu("v_max_f32", vsum, 0, vsum))
e(valu("v_cvt_pk_bf16_f32", vsum, vsum, vsum)); e(valu("v_lshlrev_b32", vsum, 16, vsum))
e(valu("v_add_f32", vsum, hx(f2u(1e-5)), vsum))
e(valu("v_cvt_pk_bf16_f32", vsum, vsum, vsum)); e(valu("v_lshlrev_b32", vsum, 16, vsum))
e(valu("v_sqrt_f32", vsum, vsum)); e(nop(0))
e(valu("v_cvt_pk_bf16_f32", vsum, vsum, vsum)); e(valu("v_lshlrev_b32", vsum, 16, vsum))
e(valu("v_rcp_f32", vneg[0], vsum)); e(nop(0))
for ks in range(16):
    for k in range(4):
        p = 4 * ks + k
        e(valu("v_pk_mul_f32", v_f[(2 * p, 2)], v_f[(2 * p, 2)], vneg, mod="op_sel_hi:[1,0]"))
    for k in range(4):
        p = 4 * ks + k
        e(valu("v_cvt_pk_bf16_f32", v_xp[p], v_f[2 * p], v_f[2 * p + 1]))
    e(dswrite("ds_write_b128", v_wl, v_xp[(4 * ks, 4)], ks * 1024))
ln_issue(100)
if STAMP == 3: stamp()
if DUMP == "ln": dump_regs([v_xp[i] for i in range(64)])
em.wait(lg0=True)
e(raw("s_barrier"))
stamp(); diag(); diag(2)

def run_stream(NH, dmaf, dtok, accf, Bf, extra, vstream, LOOK=6, nq=4, pos0=0, ring=a_ring):
    NG = 4 * NH
    rtok = {}
    def reads(g):
        m, u = g >> 2, g & 3
        p = (m + pos0) % 6
        d = ring[((g % 8) * 4, 4)]
        r = [dsread("ds_read_b64_tr_b16", d[(2 * h2, 2)], v_tr[p // 3][u], (p % 3) * 16384 + h2 * 512) for h2 in range(2)]
        rtok[g] = r[1]
        return r
    em.wait(vm=dtok[0])
    for g in range(3): e(reads(g))
    for pre in extra.get(-1, []): e(pre[1])
    em.wait(lg0=True)
    vi = 0
    for g in range(NG):
        m, u = g >> 2, g & 3
        gaps = [[], [], [], []]; cap = [2, 2, 2, 2]
        if g + 3 < NG:
            if (g + 3) & 3 == 0: gaps[0].append(Wait(vm=dtok[(g + 3) >> 2]))
            r = reads(g + 3); gaps[0].append(r[0]); gaps[1].append(r[1]); cap[0] -= 1; cap[1] -= 1
        md, j = (g + 4 * LOOK - 4) >> 2, (g + 4 * LOOK - 4) & 3
        if md >= LOOK:
            if j == 0: cur = dmaf(md)
            if cur is not None:
                if j == 0: gaps[2] += cur[0]
                items = cur[1][j::4]
                for it in items: gaps[3].append(it); cap[3] -= 1
                if j == 3: dtok[md] = cur[1][3]
        for (gp, it, cost) in extra.get(g, []):
            gaps[gp].append(it); cap[gp] -= cost
        if g + 1 < NG: gaps[3].insert(0, Wait(lg=rtok[g + 1]))
        d = ring[((g % 8) * 4, 4)]
        for qb in range(nq):
            ac, first = accf(m, u, qb)
            e(mfma(ac, d, Bf(m, qb), 0 if first else ac))
            for it in gaps[qb]: e(it)
            c = cap[qb]
            quota = vstream.quota(g) if vstream else 0
            while vstream and vstream.has(g) and (c > 0 or quota > 0):
                it = vstream.peek()
                cost = 2 if it.kind == "trans" else 1
                if cost > c and quota <= 0: break
                if cost > c: quota -= 1; vstream.used_quota()
                e(vstream.pop()); c -= cost
    if vstream:
        while vstream.has(10 ** 9): e(vstream.pop())

class VStream:
    def __init__(self, items, start, end, extra_total=0):
        self.items = items; self.i = 0; self.start = start; self.end = end
        self.extra_total = extra_total; self.used = 0
    def has(self, g): return self.i < len(self.items) and g >= self.start
    def peek(self): return self.items[self.i]
    def pop(self): self.i += 1; return self.items[self.i - 1]
    def quota(self, g):
        if g < self.start: return 0
        allowed = (g - self.start + 1) * self.extra_total // max(1, self.end - self.start)
        return 1 if allowed > self.used else 0
    def used_quota(self): self.used += 1

def s1_acc(m, u, qb):
    h = m & 1
    idx = ((h * 4 + u) * 4 + qb) * 4
    if m < 32: return A(idx, 4), m < 2
    return v_acc[(idx, 4)], m < 34
def s1_B(m, qb): return a_B[(((m >> 1) & 1) * 16 + qb * 4, 4)]
extra = {}
btok = {}
def bread(s, qb): return dsread("ds_read_b128", a_B[((s & 1) * 16 + qb * 4, 4)], v_lin, (qb * 16 + (s % 16)) * 1024)
extra[-1] = [(0, bread(0, qb), 1) for qb in range(4)]
for s in range(1, 32):
    for qb in range(4):
        extra.setdefault(8 * (s - 1) + 1 + qb, []).append((2, bread(s, qb), 1))
C0 = -2.0 * math.sqrt(2.0 / math.pi) * math.log2(math.e); C1 = C0 * 0.044715
vc0, vc1 = V(40), V(41)
gel = [valu("v_mov_b32", vc0, hx(f2u(C0))), valu("v_mov_b32", vc1, hx(f2u(C1)))]
hst = []
tb = 0
for i in range(2):
    for qb in range(4):
        pk = V(44 + 4 * (tb % 4), 4); tb += 1
        for b in range(2):
            u = 2 * i + b
            T = [V(64 + 16 * ((2 * tb + b) % 4) + k) for k in range(16)]
            G_, U_, X_ = T[0:4], T[4:8], T[8:12]
            ga = lambda r: A((u * 4 + qb) * 4 + r); ua = lambda r: A(((4 + u) * 4 + qb) * 4 + r)
            for r in range(4): gel.append(valu("v_accvgpr_read_b32", G_[r], ga(r)))
            for r in range(4): gel.append(valu("v_accvgpr_read_b32", U_[r], ua(r)))
            for r in range(4): gel.append(valu("v_mul_f32", X_[r], G_[r], G_[r]))
            for r in range(4): gel.append(valu("v_fma_f32", X_[r], X_[r], vc1, vc0))
            for r in range(4): gel.append(valu("v_mul_f32", X_[r], X_[r], G_[r]))
            for r in range(4): gel.append(valu("v_exp_f32", X_[r], X_[r]))
            for r in range(4): gel.append(valu("v_mul_f32", G_[r], G_[r], U_[r]))
            for r in range(4): gel.append(valu("v_add_f32", X_[r], "1.0", X_[r]))
            for r in range(4): gel.append(valu("v_rcp_f32", X_[r], X_[r]))
            gel.append(nop(0))
            for r in range(4): gel.append(valu("v_mul_f32", G_[r], G_[r], X_[r]))
            for k in range(2): gel.append(valu("v_cvt_pk_bf16_f32", pk[2 * b + k], G_[2 * k], G_[2 * k + 1]))
        st = bstore(pk, v_lin, S_H, s_h1 if i else s_h0, off=qb * 1024, mod="sc1")
        gel.append(st); hst.append(st)
class Stamp:
    def __call__(self): stamp(); return []
if STAMP: extra.setdefault(128, []).append((0, Stamp(), 0))
vs = VStream(gel, 131, GEL_END, extra_total=GEL_EXTRA)
run_stream(64, s1_dma, dtok, s1_acc, s1_B, extra, vs)
if DUMP == "qacc": dump_regs([v_acc[i] for i in range(128)])
stamp()

em.wait(lg0=True)
e(raw("s_barrier"))
def signal(off_s_expr_add, lab):
    e(scmp("s_cmp_lg_u32", s_w, 0)); e(raw("s_cbranch_scc1 %s" % lab, rd=["scc"]))
    e(salu("s_lshl_b32", s_t0, s_qb, 2))
    if off_s_expr_add: e(salu("s_add_u32", s_t0, s_t0, off_s_expr_add))
    e(valu("v_mov_b32", v_t, 1))
    e(raw("s_mov_b64 exec, 1", "salu", wr=["exec"]))
    e(raw("buffer_atomic_add %s, off, %s, %s sc1" % (v_t, S_DBG, s_t0)))
    e(raw("s_mov_b64 exec, -1", "salu", wr=["exec"]))
    em.label(lab)
QS = math.log2(math.e) / math.sqrt(128.0)
vqs = V(40, 2); vqw = V(42)
e(valu("v_mov_b32", vqs[0], hx(f2u(QS))))
e(valu("v_and_b32", v_t, 15, v_lane)); e(valu("v_bfe_u32", vqw, v_lane, 5, 1)); e(valu("v_lshl_add_u32", v_t, vqw, 4, v_t)); e(valu("v_lshlrev_b32", v_t, 4, v_t))
e(valu("v_bfe_u32", vqw, v_lane, 4, 1)); e(valu("v_lshl_add_u32", vqw, vqw, 3, v_t))
e(salu("s_lshl_b32", s_t1, s_w, 14)); e(valu("v_add_u32", vqw, s_t1, vqw))
for blk in range(8):
    for qb in range(4):
        a_ = v_acc[((blk * 4 + qb) * 4, 4)]
        t = V(64 + 2 * ((blk * 4 + qb) % 8), 2)
        for k in range(2): e(valu("v_pk_mul_f32", a_[(2 * k, 2)], a_[(2 * k, 2)], vqs, mod="op_sel_hi:[1,0]"))
        for k in range(2): e(valu("v_cvt_pk_bf16_f32", t[k], a_[2 * k], a_[2 * k + 1]))
        if len(em.lgq) >= 7: em.wait(lg=em.lgq[-7])
        e(dswrite("ds_write_b64", vqw, t, (qb * 4 + (blk >> 1)) * 1024 + (blk & 1) * 512))
em.wait(lg0=True)
for f in range(16):
    e(dsread("ds_read_b128", a_Q[(4 * f, 4)], v_wl, f * 1024))
    if f == 7: pass
vx, vy, vz = V(96), V(97), V(98)
e(salu("s_lshl_b32", s_t1, s_w, 8))
dma_voffs(v_dA, 1024, s_t1, True)
em.label("L_att_start")
for i in range(64): e(valu("v_mov_b64", v_acc[(2 * i, 2)], 0))
for i in range(4): e(valu("v_mov_b32", v_l0[i], 0)); e(valu("v_mov_b32", v_l1[i], 0))
em.wait(vm0=True, lg0=True)
e(raw("s_barrier"))
e(scmp("s_cmp_lg_u32", s_retry, 0)); e(raw("s_cbranch_scc1 L_sigH", rd=["scc"]))
signal(HC_OFF, "L_sigH")
if DUMP == "q": dump_regs([a_Q[i] for i in range(64)])
stamp()

def Qf(qb, ds): return a_Q[((qb * 4 + ds) * 4, 4)]
def Of(db, qb): return v_acc[((db * 4 + qb) * 4, 4)]
def fr(f): return a_ring[((f % 8) * 4, 4)]
def kslot(par): return 16384 if par == 0 else 0
def vslot(par): return 0 if par == 0 else 16384
def frag_reads(par, f):
    if f >= 32: par ^= 1; f -= 32
    d = fr(f)
    if f < 8 or 16 <= f < 24:
        kb = (f >> 2) if f < 8 else 2 + ((f - 16) >> 2)
        return [dsread("ds_read_b128", d, v_ka[f & 3], kslot(par) + kb * 4096)]
    ks2 = 0 if f < 16 else 1
    db = f & 7
    return [dsread("ds_read_b64_tr_b16", d[(2 * h, 2)], v_va[db], vslot(par) + ks2 * 8192 + h * 4096) for h in range(2)]
def read_sched(g):
    r = []
    if g + 3 < 24 or g >= 29: r.append(g + 3)
    if 19 <= g <= 26: r.append(g + 5)
    return r
def sm_val(g, k):
    if 7 <= g <= 22: b = 1; n = 2 * (g - 7) + k
    else: b = 0; n = 2 * ((g - 23) % 32) + k
    kb, qb, r = n >> 4, (n >> 2) & 3, n & 3
    return b, qb, kb, r
def sm_items(g):
    ex, ad = [], []
    for k in range(2):
        b, qb, kb, r = sm_val(g, k)
        x = v_S[b][qb * 8 + kb * 4 + r]
        l = (v_l1 if b else v_l0)[qb]
        ex.append(valu("v_exp_f32", x, x)); ad.append(valu("v_add_f32", l, l, x))
    b, qb, kb, r = sm_val((g - 1) % 32, 0)
    cv = valu("v_cvt_pk_bf16_f32", v_S[b][qb * 8 + kb * 2 + (r >> 1)], v_S[b][qb * 8 + kb * 4 + r], v_S[b][qb * 8 + kb * 4 + r + 1])
    return ex, ad, cv
def att_dma(par, g):
    if g >= 29: k = g - 29; sp = par
    elif g <= 4: k = g + 3; sp = par ^ 1
    else: return [], None
    sal = []
    if k == 0: sal = [salu("s_add_u32", "m0", s_m0b, 4 * 16384 + kslot(sp))]
    if k == 4: sal = [salu("s_add_u32", "m0", s_m0b, vslot(sp))]
    if k < 4: return sal, dma(v_kd[k], S_K, s_kK, k * 1024)
    return sal, dma(v_vd[k & 1], S_V, s_kV, (k - 4) * 1024)
SIDE_FIRST = 11
class Lbl:
    def __init__(self, n): self.n = n
    def __call__(self): em.label(self.n); return []
class LoopStamp:
    def __init__(self, k, par): self.k, self.par = k, par
    def __call__(self):
        k = self.k
        e(raw("s_memtime %s" % S(68 + 2 * k, 2), "other", wr=[S(68 + 2 * k, 2)]))
        if k == 2:
            e(raw("s_waitcnt lgkmcnt(0)", "wait")); em._retire(em.lgq, 0)
            for i in range(3): e(valu("v_writelane_b32", v_c, S(68 + 2 * i), i, rmw=True))
            e(salu("s_lshl_b32", S(74), S(2), 2)); e(salu("s_add_u32", S(74), S(74), s_w)); e(salu("s_lshl_b32", S(74), S(74), 4))
            e(salu("s_sub_u32", S(74), S(74), s_cnt)); e(salu("s_add_u32", S(74), S(74), 16)); e(salu("s_lshl_b32", S(74), S(74), 5))
            e(salu("s_add_u32", S(74), S(74), (1 << 20) + 16 * self.par))
            e(raw("s_mov_b64 exec, 7", "salu", wr=["exec"]))
            e(valu("v_lshlrev_b32", v_t, 2, v_lane))
            e(bstore(v_c, v_t, S_DMP, S(74), off=0))
            e(raw("s_mov_b64 exec, -1", "salu", wr=["exec"]))
            e(valu("v_lshlrev_b32", v_t, 7, v_lane))
        return []
s_pf = [S(16, 2), S(18, 2), S(24, 2), S(26, 2)]
s_pfH = S(28, 2)
s_fo = S(3)
v_tch, v_flag = V(3), V(0)
xtok = []; lastdma = [None]
ROT = int(os.environ.get('ROT', '10'))
ftok = {}
def att_group(par, g, do_mfma=True, do_mem=True, do_cvt=True, last=False):
    ex, ad, cv = sm_items(g)
    mem = []
    sal = []
    if do_mem:
        for f in read_sched(g):
            r = frag_reads(par, f); mem += r; ftok[f % 32] = r
        sal, d = att_dma(par, g)
        if d is not None: mem.append(d)
    if do_mem and par == 0 and g == 5:
        mem.append(I("global_load_dword %s, %s, %s" % (v_flag, v_tch, s_pf[0]), "vmem", rd=v_tch.regs() + s_pf[0].regs(), wr=[])); xtok.append(mem[-1])
    if do_mem and par == 0 and g == 6:
        mem.append(I("buffer_load_dword %s, off, %s, %s sc1" % (v_flag, S_DBG, s_fo), "vmem", rd=S_DBG.regs() + s_fo.regs(), wr=[])); xtok.append(mem[-1])
    if do_mem and par == 0 and g in (8, 9, 10): sal = sal + [scmp("s_cmp_le_u32", s_cnt, ROT), salu("s_cselect_b64", s_pf[g - 8], s_pf[g - 7], s_pf[g - 8], scc_w=False, scc_r=True)]
    if do_mem and g == 4: lastdma[0] = d
    post0 = []
    if do_mem and do_mfma and par == 1 and g == 30: post0 = [valu("v_readfirstlane_b32", s_t0, v_flag)]
    if do_mem and do_mfma and par == 1 and g == 31: sal = sal + [scmp("s_cmp_lt_u32", s_cnt, ROT), salu("s_cselect_b32", s_t0, s_t0, 0, scc_w=False, scc_r=True), scmp("s_cmp_ge_u32", s_t0, 8), salu("s_cselect_b64", s_pf[3], s_pfH, s_pf[3], scc_w=False, scc_r=True)]
    gaps = [[], [], [], []]
    if g == 29 and do_mem:
        if STAMP == 2 and do_mfma: gaps[0] += [LoopStamp(0, par)]
        gaps[0] += [Wait(lg0=True, vm0=True) if (par == 1 or not do_mfma) else Wait(lg0=True, vm=lastdma[0])]
        if STAMP == 2 and do_mfma: gaps[0] += [LoopStamp(1, par)]
        gaps[0] += [raw("s_barrier")]
        if STAMP == 2 and do_mfma: gaps[0] += [LoopStamp(2, par)]
    gaps[0] += sal
    if g == 6 and do_mem: gaps[0].append(salu("s_add_u32", s_kK, s_kK, 16384))
    if g == 7 and do_mem: gaps[0].append(salu("s_add_u32", s_kV, s_kV, 16384))
    if g == 23 and par == 1 and do_mfma:
        gaps[0] += [valu("v_mov_b32", v_lsave[i], v_l0[i]) for i in range(4)]
    if len(mem) > 2: gaps[0].append(mem[2])
    gaps[0].append(ex[0])
    if len(mem) > 0: gaps[1].append(mem[0])
    if len(mem) == 0 and do_cvt: gaps[1].append(cv)
    gaps[1].append(ad[0])
    gaps[1] += post0
    if do_mem: gaps[2].append(Wait(lg=ftok.get((g + 1) % 32)))
    if last and g == 30: gaps[2].append(salu("s_sub_u32", s_cnt, s_cnt, 1))
    gaps[2].append(ex[1])
    if len(mem) > 1: gaps[3].append(mem[1])
    if len(mem) > 0 and do_cvt: gaps[3].append(cv)
    gaps[3].append(ad[1])
    for qb in range(4):
        if do_mfma:
            if g < 8 or 16 <= g < 24:
                b = 1 if g < 8 else 0
                kb, ds = (g >> 2) & 1, g & 3
                d = v_S[b][(qb * 8 + kb * 4, 4)]
                e(mfma(d, fr(g), Qf(qb, ds), v_negm[(qb * 4, 4)] if ds == 0 else d))
            else:
                b = 0 if g < 16 else 1
                e(mfma(Of(g & 7, qb), fr(g), v_S[b][(qb * 8, 4)], Of(g & 7, qb)))
        else:
            if qb & 1: e(nop(0))
        for it in gaps[qb]: e(it)

for it in range(3):
    e(salu("s_add_u32", s_t0, s_w, 4 * it))
    e(salu("s_sub_u32", s_t1, s_t0, 2)); e(salu("s_min_u32", s_t1, s_t1, 6)); e(salu("s_lshl_b32", s_t1, s_t1, 13))
    e(salu("s_mul_i32", s_t2, s_qb, 57344, scc_w=False)); e(salu("s_add_u32", s_t1, s_t1, s_t2))
    e(salu("s_add_u32", s_pf[it][0], S_WD[0], s_t1)); e(salu("s_addc_u32", s_pf[it][1], S_WD[1], 0, scc_r=True))
    if it == 0:
        e(scmp("s_cmp_ge_u32", s_w, 2)); e(raw("s_cbranch_scc1 L_pf_wd", rd=["scc"]))
        e(salu("s_lshl_b32", s_t1, s_qb, 14)); e(salu("s_lshl_b32", s_t2, s_w, 13)); e(salu("s_add_u32", s_t1, s_t1, s_t2))
        e(salu("s_add_u32", s_pf[0][0], S_WO[0], s_t1)); e(salu("s_addc_u32", s_pf[0][1], S_WO[1], 0, scc_r=True))
        em.label("L_pf_wd")
e(raw("s_getpc_b64 %s" % s_pf[3], "salu", wr=[s_pf[3]]))
em.label("L_pc1")
e(salu("s_lshl_b32", s_t0, s_w, 13)); e(salu("s_add_u32", s_t0, s_t0, "L_tail-L_pc1")); e(salu("s_min_u32", s_t0, s_t0, "L_code_end-L_pc1-8192"))
e(salu("s_add_u32", s_pf[3][0], s_pf[3][0], s_t0)); e(salu("s_addc_u32", s_pf[3][1], s_pf[3][1], 0, scc_r=True))
e(salu("s_lshl_b32", s_t0, s_cg, 2)); e(salu("s_add_u32", s_t0, s_t0, s_w)); e(salu("s_mul_i32", s_t0, s_t0, 7168, scc_w=False)); e(salu("s_min_u32", s_t0, s_t0, 229376 - 8192))
e(salu("s_add_u32", s_pfH[0], S_HC[0], s_t0)); e(salu("s_addc_u32", s_pfH[1], S_HC[1], 0, scc_r=True))
e(valu("v_lshlrev_b32", v_tch, 7, v_lane))
e(salu("s_lshl_b32", s_fo, s_cq, 2)); e(salu("s_add_u32", s_fo, s_fo, HC_OFF))
pr = [dsread("ds_read_b128", fr(f), v_ka[f & 3], (f >> 2) * 4096) for f in range(8)]
for r in pr: e(r)
e(scmp("s_cmp_lg_u32", s_retry, 0)); e(raw("s_cbranch_scc1 L_have_max", rd=["scc"]))
for i in range(16): e(valu("v_mov_b32", v_negm[i], 0))
em.label("L_have_max")
for f in range(8):
    em.wait(lg=pr[f])
    for qb in range(4):
        d = v_S[0][(qb * 8 + (f >> 2) * 4, 4)]
        e(mfma(d, fr(f), Qf(qb, f & 3), v_negm[(qb * 4, 4)] if (f & 3) == 0 else d))
e(salu("s_mov_b32", s_kK, 16384 + 8192, scc_w=False)); e(salu("s_mov_b32", s_kV, 16384, scc_w=False)); e(salu("s_mov_b32", s_cnt, 16, scc_w=False))
e(scmp("s_cmp_lg_u32", s_retry, 0)); e(raw("s_cbranch_scc1 L_have_max2", rd=["scc"]))
e(nop(3))
mx = [V(96 + i) for i in range(4)]; mt = [V(100 + i) for i in range(4)]
for qb in range(4): e(valu("v_max3_f32", mx[qb], v_S[0][qb * 8], v_S[0][qb * 8 + 1], v_S[0][qb * 8 + 2]))
for qb in range(4): e(valu("v_max3_f32", mx[qb], mx[qb], v_S[0][qb * 8 + 3], v_S[0][qb * 8 + 4]))
for qb in range(4): e(valu("v_max3_f32", mx[qb], mx[qb], v_S[0][qb * 8 + 5], v_S[0][qb * 8 + 6]))
for qb in range(4): e(valu("v_max_f32", mx[qb], mx[qb], v_S[0][qb * 8 + 7]))
red4("v_max_f32", mx, mt)
for qb in range(4):
    for k in range(4): e(valu("v_sub_f32", v_negm[qb * 4 + k], 0, mx[qb]))
for qb in range(4):
    for k in range(8): e(valu("v_sub_f32", v_S[0][qb * 8 + k], v_S[0][qb * 8 + k], mx[qb]))
em.label("L_have_max2")
e(nop(7))
for g in range(23, 29): att_group(1, g, do_mfma=False, do_mem=False, do_cvt=(g != 23))
stamp(); diag()
for g in range(29, 32): att_group(1, g, do_mfma=False, do_mem=True)
pro_end = len(em.out)
em.directive(".p2align 6")
em.label("L_att_loop")
def body():
    for par in range(2):
        for g in range(32): att_group(par, g, last=(par == 1))
b0 = len(em.out)
body()
b1 = len(em.out)
e(scmp("s_cmp_lg_u32", s_cnt, 0)); e(raw("s_cbranch_scc1 L_att_loop", rd=["scc"]))
b2 = len(em.out)
body()
second = em.out[b2:]; del em.out[b2:]
assert [i.text for i in second] == [i.text for i in em.out[b0:b1]], "loop not in steady state"
loop_probs = check_hazards(em.out[b1 - 40:b2] + second[:60], "loop-wrap")
stamp()

em.label("L_tail")
diag()
v_ring2 = V(64, 32); v_B2 = V(96, 32)
def hreg(kk, qb): return A(64 + (kk % 12) * 16 + qb * 4, 4)
XY = int(os.environ.get("XY", "0"))
def mh(m): return ((m & 15), m >> 4) if XY else (m >> 1, m & 1)
P2 = 2
def s2_dma(m):
    p = (m + P2) % 6
    if m < 32:
        s, h = mh(m)
        return [m0set(p), salu("s_mov_b32", s_off, s * 32 * 1024 + 128 * h, scc_w=False)], [dma(v_dA[j], S_WO, s_off, j * 1024) for j in range(4)]
    if m < 46:
        return [m0set(p), salu("s_mov_b32", s_off, (m - 32) * 32 * 1024, scc_w=False)], [dma(v_dB[j], S_WD, s_off, j * 1024) for j in range(4)]
    return None
dtok2 = {}
post_v = []
for m in range(0, 6):
    sa, dm = s2_dma(m); post_v.append(sa); post_v += dm; dtok2[m] = dm[3]
pv = [0]
def post_issue(n):
    k = 0
    while k < n and pv[0] < len(post_v):
        it = post_v[pv[0]]; pv[0] += 1
        e(it)
        if not isinstance(it, list): k += 1
post_issue(4)
lt = [V(100 + i) for i in range(4)]
for qb in range(4): e(valu("v_add_f32", v_l1[qb], v_l1[qb], v_lsave[qb]))
red4("v_add_f32", [v_l1[i] for i in range(4)], lt)
e(salu("s_mov_b32", s_t0, hx(f2u(2.0 ** 30)), scc_w=False))
e(valu("v_add_f32", lt[1], v_l1[0], v_l1[1])); e(valu("v_add_f32", lt[2], v_l1[2], v_l1[3])); e(valu("v_add_f32", lt[1], lt[1], lt[2]))
e(valu("v_cmp_nge_f32", "vcc", s_t0, lt[1]))
rinv = [V(104 + 2 * i, 2) for i in range(4)]
for qb in range(4): e(valu("v_rcp_f32", rinv[qb][0], v_l1[qb]))
e(salu("s_mov_b64", s_pair, "vcc", scc_w=False))
post_issue(4)
for i in range(4):
    for qb in range(4):
        t = Of(2 * i, qb)
        for b in range(2):
            o = Of(2 * i + b, qb)
            for k in range(2): e(valu("v_pk_mul_f32", o[(2 * k, 2)], o[(2 * k, 2)], rinv[qb], mod="op_sel_hi:[1,0]"))
        if DUMP != "o":
            for b in range(2):
                o = Of(2 * i + b, qb)
                for k in range(2): e(valu("v_cvt_pk_bf16_f32", t[2 * b + k], o[2 * k], o[2 * k + 1]))
            if i == 0 and qb == 0:
                e(scmp("s_cmp_eq_u64", s_pair, 0)); e(raw("s_cbranch_scc1 L_nomark", rd=["scc"]))
                e(valu("v_mov_b32", t[0], hx(MARK)))
                em.label("L_nomark")
            if len(em.lgq) >= 12: em.wait(lg=em.lgq[-12])
            e(dswrite("ds_write_b128", v_wl, t, (i * 4 + qb) * 1024))
        post_issue(1)
post_issue(100)
if DUMP == "o": dump_regs([v_acc[i] for i in range(128)])
vm_ = V(56); vma = V(57)
e(valu("v_and_b32", vma, 3, v_lane)); e(valu("v_lshlrev_b32", vma, 14, vma))
e(salu("s_mov_b32", s_cnt, 0, scc_w=False))
em.label("L_pollH")
e(valu("v_readfirstlane_b32", s_t0, v_flag)); e(salu("s_mul_i32", s_hb, s_w, 14 * 4096, scc_w=False)); e(nop(1))
e(scmp("s_cmp_ge_u32", s_t0, 8)); e(raw("s_cbranch_scc1 L_pollH_done", rd=["scc"]))
e(salu("s_add_u32", s_cnt, s_cnt, 1)); e(scmp("s_cmp_ge_u32", s_cnt, 50000)); e(raw("s_cbranch_scc1 L_pollH_done", rd=["scc"]))
e(raw("s_sleep 4")); e(raw("buffer_load_dword %s, off, %s, %s sc1" % (v_flag, S_DBG, s_fo))); e(raw("s_waitcnt vmcnt(0)")); e(raw("s_branch L_pollH"))
em.label("L_pollH_done")
em.wait(lg0=True)
e(raw("s_barrier"))
stamp()
mk = e(dsread("ds_read_b32", vm_, vma, 0))
class FbCheck:
    def __call__(self):
        em.wait(lg=mk)
        e(valu("v_cmp_eq_u32", "vcc", hx(MARK), vm_))
        e(scmp("s_cmp_lg_u32", s_retry, 0)); e(raw("s_cbranch_scc1 L_nofb", rd=["scc"]))
        e(nop(1))
        e(raw("s_cbranch_vccnz L_fallback", rd=["vcc"]))
        em.label("L_nofb")
        return []

def s2_acc(m, u, qb):
    if m < 32: return v_acc[(((mh(m)[1] * 4 + u) * 4 + qb) * 4, 4)], mh(m)[0] == 0
    return a_F[((u * 4 + qb) * 4, 4)], m == 32
def bsel(m): return (m & 1) if XY else ((m >> 1) & 1)
def s2_B(m, qb):
    if m < 32: return v_B2[(bsel(m) * 16 + qb * 4, 4)]
    return hreg(m - 32, qb)
def oread(m, qb): return dsread("ds_read_b128", v_B2[(bsel(m) * 16 + qb * 4, 4)], v_lin, (mh(m)[0] * 4 + qb) * 1024)
extra = {-1: [(0, oread(0, qb), 1) for qb in range(4)] + [(0, FbCheck(), 0)]}
for m in range(1, 32):
    if XY:
        rr = [oread(m, qb) for qb in range(4)]
        for qb in range(4): extra.setdefault(4 * (m - 1) + (qb >> 1), []).append((2 + (qb & 1), rr[qb], 1))
        extra.setdefault(4 * m - 1, []).append((2, Wait(lg=rr), 0))
    elif (m & 1) == 0:
        for qb in range(4): extra.setdefault(4 * (m - 2) + 1 + qb, []).append((2, oread(m, qb), 1))
class LateWait:
    def __init__(self, f): self.f = f
    def __call__(self): return Wait(vm=self.f())
vxf = V(40, 8); vxa = V(48); vpoll = V(49); vfw = V(50)
vx, vy, vz = V(52), V(53), V(54)
save = em.out; em.out = []
for k in range(8): e(valu("v_accvgpr_read_b32", vxf[k], a_x[k]))
e(salu("s_mul_i32", s_t1, s_w, 448 * 1024, scc_w=False)); e(salu("s_lshl_b32", s_t3, s_cg, 7)); e(salu("s_add_u32", s_t1, s_t1, s_t3))
dma_voffs(v_dB, 1024, s_t1, True)
xaddr(vxa, vx)
e(valu("v_and_b32", V(51), 7, v_lane)); e(valu("v_lshlrev_b32", V(51), 2, V(51)))
e(salu("s_lshl_b32", s_t0, s_w, 12)); e(valu("v_add_u32", vfw, s_t0, v_lin))
e(salu("s_lshl_b32", s_t3, s_w, 4)); e(salu("s_add_u32", s_t3, s_t3, s_g)); e(salu("s_lshl_b32", s_t3, s_t3, 13))
early = em.out; em.out = save
class Seq:
    kind = "vmem"
    def __init__(self, l): self.l = l
    def __call__(self): return self.l
hld = {}; htok = {}
for kk in range(14):
    hld[kk] = [bload(hreg(kk, qb), v_lin, S_HC, s_hl, off=qb * 1024, mod="sc1") for qb in range(4)]
    htok[kk] = hld[kk][3]
    extra.setdefault(4 * (32 + kk) - 1, []).append((2, LateWait(lambda kk=kk: htok[kk]), 0))
hseq = []
for kk in range(14):
    for qb in range(4):
        hseq.append(Seq([salu("s_add_u32", s_hl, s_hb, kk * 4096), hld[kk][qb]]))
NPRE = int(os.environ.get("NPRE", "12")); HG0 = int(os.environ.get("HG0", "70")); HGS = int(os.environ.get("HGS", "4"))
for k in range(NPRE): extra.setdefault(HG0 + HGS * k, []).append((2, hseq[k], 1))
def sreg(ip, qb, odd=0): return v_acc[(((2 * ip + odd) * 4 + qb) * 4, 4)]
sp = []; spst = []
HPS = int(os.environ.get("HPS", "3")); hk = NPRE
for ip in range(4):
    for qb in range(4):
        t = sreg(ip, qb)
        for b in range(2):
            o = sreg(ip, qb, b)
            for k in range(2): sp.append(valu("v_cvt_pk_bf16_f32", t[2 * b + k], o[2 * k], o[2 * k + 1]))
        if (qb & 1) == 0: sp.append(salu("s_add_u32", s_t1, s_t3, (ip >> 1) * 65536 + (qb >> 1) * 4096))
        st = bstore(t, v_lin, S_SP, s_t1, off=(qb & 1) * 2048 + (ip & 1) * 1024, mod=os.environ.get("ST_MOD", "sc1").replace("plain", ""))
        if os.environ.get("ST_NONE") and not (ip == 3 and qb == 3): st = nop(0)
        sp.append(st); spst.append(st)
        if not (XY and ip < 2):
            for _ in range(HPS * (2 if XY else 1)):
                if hk < 48: sp.append(hseq[hk]); hk += 1
for k in range(hk, 48): sp.append(hseq[k])
for k in range(48, 56): extra.setdefault(140 + (k - 48), []).append((2, hseq[k], 1))
class SigS:
    def __call__(self):
        stamp(); em.wait(vm=spst[-1]); stamp(); e(raw("s_barrier"))
        e(scmp("s_cmp_lg_u32", s_w, 0)); e(raw("s_cbranch_scc1 L_sigS", rd=["scc"]))
        e(valu("v_mov_b32", v_t, 1))
        e(raw("s_mov_b64 exec, 1", "salu", wr=["exec"]))
        e(raw("buffer_store_dword %s, off, %s, %s sc1" % (v_t, S_FL, s_myfl)))
        e(raw("s_mov_b64 exec, -1", "salu", wr=["exec"]))
        em.label("L_sigS")
        return []
G_SIG = int(os.environ.get("G_SIG", "160")); G_POLL = int(os.environ.get("G_POLL", "172")); G_CHK = int(os.environ.get("G_CHK", "178"))
extra.setdefault(G_SIG, []).append((0, SigS(), 0))
vpa = V(51)
ptok = bload(vpoll, vpa, S_FL, s_t2, n=1, mod="sc1")
extra.setdefault(G_POLL, []).append((1, [salu("s_lshl_b32", s_t2, s_cq, 7)], 0))
extra.setdefault(G_POLL, []).append((2, ptok, 1))
def spl(gp, i): return sreg(gp >> 1, (gp & 1) * 2 + i, 1)
sl = []
class ChkS:
    def __call__(self):
        em.wait(vm=ptok)
        stamp()
        e(salu("s_mov_b32", s_cnt, 0, scc_w=False))
        em.label("L_pollS")
        e(valu("v_cmp_ne_u32", "vcc", 1, vpoll)); e(nop(2))
        e(raw("s_cbranch_vccz L_pollS_done", rd=["vcc"]))
        e(salu("s_add_u32", s_cnt, s_cnt, 1)); e(scmp("s_cmp_ge_u32", s_cnt, 50000)); e(raw("s_cbranch_scc1 L_pollS_done", rd=["scc"]))
        e(raw("buffer_load_dword %s, %s, %s, %s offen sc1" % (vpoll, vpa, S_FL, s_t2))); e(raw("s_waitcnt vmcnt(0)")); e(raw("s_branch L_pollS"))
        em.label("L_pollS_done")
        stamp()
        e(salu("s_lshl_b32", s_t0, s_cg, 16)); e(salu("s_lshl_b32", s_t1, s_w, 11)); e(salu("s_add_u32", s_t0, s_t0, s_t1))
        for gp in range(8):
            for i in range(2): sl.append(e(bload(spl(gp, i), v_lin, S_SPC, s_t0, off=i * 1024, mod="sc1")))
            if gp < 7: e(salu("s_add_u32", s_t0, s_t0, 8192))
        return []
if G_CHK < 184: extra.setdefault(G_CHK, []).append((0, ChkS(), 0))
if STAMP: extra.setdefault(128, []).append((0, Stamp(), 0))
class Diag:
    def __call__(self): diag(); return []
if DIAG: extra.setdefault(128, []).append((0, Diag(), 0))
class Paced(VStream):
    def has(self, g): return self.i < len(self.items) and g >= self.start and self.i <= (g - self.start + 1) * len(self.items) // max(1, self.end - self.start)
    def quota(self, g): return 99 if g >= self.start else 0
class Multi:
    def __init__(self, *l): self.l = list(l)
    def cur(self, g):
        for x in self.l:
            if x.i < len(x.items): return x
        return self.l[-1]
    def has(self, g): return self.cur(g).has(g)
    def peek(self): return self.cur(0).peek()
    def pop(self): return self.cur(0).pop()
    def quota(self, g): return self.cur(g).quota(g)
    def used_quota(self): self.cur(0).used_quota()
SP_END = int(os.environ.get("SP_END", "146"))
if XY:
    half = sp.index(spst[7]) + 1
    vs = Multi(VStream(early, 2, 40), Paced(sp[:half], int(os.environ.get("X_START", "67")), int(os.environ.get("X_END", "75"))), Paced(sp[half:], 130, SP_END))
else:
    vs = Multi(VStream(early, 2, 40), Paced(sp, 130, SP_END))
class ChkEarly:
    def __call__(self):
        assert vs.l[0].i == len(vs.l[0].items); return []
extra.setdefault(59, []).append((0, ChkEarly(), 0))
run_stream(46, s2_dma, dtok2, s2_acc, s2_B, extra, vs, pos0=P2, ring=v_ring2)
stamp(); diag()
e(nop(6))
for qb in range(4):
    for u in range(4):
        if len(em.lgq) >= 12: em.wait(lg=em.lgq[-12])
        e(dswrite("ds_write_b128", vfw, a_F[((u * 4 + qb) * 4, 4)], qb * 16384 + u * 1024))
if G_CHK >= 184: ChkS()()
em.wait(lg0=True)
e(raw("s_barrier"))
def frr(ws_, u): return sreg(ws_, u, 0)
for ws_ in range(4):
    for u in range(4):
        if len(em.lgq) >= 14: em.wait(lg=em.lgq[-14])
        e(dsread("ds_read_b128", frr(ws_, u), v_wl, ws_ * 4096 + u * 1024))
em.wait(lg0=True)
v_fr = V(96, 16); vE = V(64, 16); vs_ = V(80, 16)
for u in range(4):
    for k in range(2):
        e(valu("v_pk_add_f32", frr(0, u)[(2 * k, 2)], frr(0, u)[(2 * k, 2)], frr(1, u)[(2 * k, 2)]))
        e(valu("v_pk_add_f32", frr(2, u)[(2 * k, 2)], frr(2, u)[(2 * k, 2)], frr(3, u)[(2 * k, 2)]))
for u in range(4):
    for k in range(2): e(valu("v_pk_add_f32", v_fr[(4 * u + 2 * k, 2)], frr(0, u)[(2 * k, 2)], frr(2, u)[(2 * k, 2)]))
for k in range(16): e(valu("v_mul_f32", vE[k], hx(f2u(-math.log2(math.e))), v_fr[k]))
for k in range(16): e(valu("v_exp_f32", vE[k], vE[k]))
for k in range(16): e(valu("v_add_f32", vE[k], "1.0", vE[k]))
for k in range(16): e(valu("v_rcp_f32", vE[k], vE[k]))
for k in range(16): e(valu("v_mul_f32", v_fr[k], v_fr[k], vE[k]))
for k in range(8):
    e(valu("v_lshlrev_b32", vE[2 * k], 16, vxf[k])); e(valu("v_and_b32", vE[2 * k + 1], "0xffff0000", vxf[k]))
for gp in range(8):
    em.wait(vm=sl[2 * gp + 1])
    for k in range(8):
        src = spl(gp, k >> 2)[k & 3]
        if gp == 0:
            e(valu("v_lshlrev_b32", vs_[2 * k], 16, src)); e(valu("v_and_b32", vs_[2 * k + 1], "0xffff0000", src))
        else:
            e(valu("v_lshlrev_b32", V(112 + 2 * (k & 3)), 16, src)); e(valu("v_and_b32", V(113 + 2 * (k & 3)), "0xffff0000", src))
            e(valu("v_pk_add_f32", vs_[(2 * k, 2)], vs_[(2 * k, 2)], V(112 + 2 * (k & 3), 2)))
if DUMP == "fin": dump_regs([vs_[i] for i in range(16)] + [v_fr[i] for i in range(16)])
for k in range(8): e(valu("v_pk_fma_f32", vE[(2 * k, 2)], vs_[(2 * k, 2)], v_fr[(2 * k, 2)], vE[(2 * k, 2)]))
for k in range(8): e(valu("v_cvt_pk_bf16_f32", vxf[k], vE[2 * k], vE[2 * k + 1]))
for u in range(4): e(bstore(vxf[(2 * u, 2)], vxa, S_OUT, 0, off=32 * u))
stamp(); diag_out()
em.label("L_end")
e(raw("s_endpgm"))
main_end = len(em.out)

em.lgq, em.vmq, em.pend = [], [], {}
em.label("L_fallback")
e(raw("s_waitcnt vmcnt(0) lgkmcnt(0)")); em._retire(em.vmq, 0); em._retire(em.lgq, 0)
e(salu("s_mov_b32", s_retry, 1, scc_w=False))
e(salu("s_mov_b32", s_kK, 0, scc_w=False))
fm = [V(40 + i) for i in range(4)]
for i in range(4): e(valu("v_mov_b32", fm[i], "0xff800000"))
em.label("L_fb_loop")
e(raw("s_barrier"))
e(salu("s_add_u32", "m0", s_m0b, 4 * 16384)); e(nop(0))
for j in range(4): e(dma(v_kd[j], S_K, s_kK, j * 1024))
em.wait(vm0=True)
e(raw("s_barrier"))
for kb in range(4):
    rr = [e(dsread("ds_read_b128", fr(ds), v_ka[ds], kb * 4096)) for ds in range(4)]
    em.wait(lg0=True)
    for ds in range(4):
        for qb in range(4):
            d = v_S[0][(qb * 4, 4)]
            e(mfma(d, fr(ds), Qf(qb, ds), 0 if ds == 0 else d))
    e(nop(7))
    for qb in range(4):
        e(valu("v_max3_f32", fm[qb], fm[qb], v_S[0][qb * 4], v_S[0][qb * 4 + 1])); e(valu("v_max3_f32", fm[qb], fm[qb], v_S[0][qb * 4 + 2], v_S[0][qb * 4 + 3]))
    e(nop(2))
e(salu("s_add_u32", s_kK, s_kK, 16384)); e(scmp("s_cmp_lt_u32", s_kK, 524288)); e(raw("s_cbranch_scc1 L_fb_loop", rd=["scc"]))
red4("v_max_f32", fm, [V(44 + i) for i in range(4)])
for qb in range(4):
    for k in range(4): e(valu("v_sub_f32", v_negm[qb * 4 + k], 0, fm[qb]))
e(raw("s_barrier"))
for m in (64, 65, 66):
    sa, dm = s1_dma(m); e(sa)
    for d in dm: e(d)
e(raw("s_branch L_att_start"))
em.label("L_code_end")
e(raw("s_endpgm"))

probs = check_hazards(em.out, "main") + loop_probs
for p in probs: print("; HAZARD", p, file=sys.stderr)
assert not probs

hdr = open(os.path.join(os.path.dirname(os.path.abspath(__file__)), "header.txt")).read()
print(hdr.rstrip())
print("; @launch grid=(256,1,1) block=(256,1,1) lds=163840")
print('.amdgcn_target "amdgcn-amd-amdhsa--gfx950"\n.text\n.globl %s\n.p2align 8\n.type %s,@function\n%s:' % (KN, KN, KN))
print(em.text())
print('.section .rodata,"a"\n.p2align 6\n.amdhsa_kernel %s' % KN)
print("  .amdhsa_next_free_vgpr 512\n  .amdhsa_next_free_sgpr 102\n  .amdhsa_accum_offset 256\n  .amdhsa_group_segment_fixed_size 0\n  .amdhsa_kernarg_size 96\n  .amdhsa_user_sgpr_count 2\n  .amdhsa_user_sgpr_kernarg_segment_ptr 1\n  .amdhsa_system_sgpr_workgroup_id_x 1\n.end_amdhsa_kernel")
```

```python
import sys, os, math, struct
from asmgen import *

KN = "recurrent_scan__gqa_block_cached__geglu_ffn__prompt_kernel"
DUMP = os.environ.get("DUMP", "")
STAMP = int(os.environ.get("STAMP", "0"))
GEL_END = int(os.environ.get("GEL_END", "228")); GEL_EXTRA = int(os.environ.get("GEL_EXTRA", "360"))

def f2u(x): return struct.unpack("<I", struct.pack("<f", x))[0]
def hx(x): return "0x%x" % (x & 0xffffffff)

S_X, S_K, S_V, S_WQ, S_WO, S_WG, S_WU, S_WD, S_OUT, S_DBG, S_H, S_SP = [S(4 + 4 * i, 4) for i in range(12)]
s_g, s_qb, s_w = S(52), S(53), S(54)
s_t0, s_t1, s_t2, s_t3 = S(55), S(56), S(57), S(58)
s_m0b = S(59)
s_off = S(60)
s_cnt = S(61)
s_kK, s_kV = S(62), S(63)
s_retry = S(64)
s_h0, s_h1 = S(65), S(66)
s_hl = S(67); s_hb = S(78); s_myfl = S(79)
s_ka = S(68, 16); s_kb = S(84, 8)
s_pair = S(92, 2); s_pair2 = S(94, 2)
S_DMP = S(96, 4)
s_cq, s_cg = S(76), S(77)
S_HC = S(80, 4)
S_SPC = S(84, 4)
S_XC = S(88, 4)
s_st = S(68, 4)

v_tid, v_lane, v_lin, v_t = V(0), V(1), V(2), V(3)
v_tr = [V(4, 4), V(8, 4)]
v_dA, v_dB = V(12, 4), V(16, 4)
v_ka = V(20, 4); v_va = V(24, 8); v_kd = V(32, 4); v_vd = V(36, 2)
v_wl = V(38)
v_c = V(39)
v_l0, v_l1 = V(40, 4), V(44, 4)
v_lsave = V(16, 4)
v_negm = V(48, 16)
v_S = [V(64, 32), V(96, 32)]
v_acc = V(128, 128)
a_ring = A(128, 32)
a_B = A(160, 32)
a_Q = A(0, 64)
a_F = A(0, 64)
a_x = A(248, 8)

RING = 65536
MARK = 0x7fc17fc1
WS_SP = 8 << 20
WS_DUMP = 32 << 20
WS_FL = (7 << 20) + (512 << 10)
S_FL = S(4, 4)

em = Em()
e = em.e

def srd(dst, lo, hi, size, off_s=None):
    if off_s is None:
        e(salu("s_mov_b32", dst[0], lo, scc_w=False)); e(salu("s_mov_b32", dst[1], hi, scc_w=False))
    else:
        e(salu("s_add_u32", dst[0], lo, off_s)); e(salu("s_addc_u32", dst[1], hi, 0, scc_r=True))
    e(salu("s_mov_b32", dst[2], hx(size), scc_w=False)); e(salu("s_mov_b32", dst[3], "0x20000", scc_w=False))

DIAG = int(os.environ.get("DIAG", "0"))
HC_OFF = 128
diag_regs = [S(100, 2), S(70, 2), S(72, 2), S(74, 2), S(96, 2), S(98, 2), S(68, 2)] if DIAG == 1 else [S(100, 2), S(96, 2), S(98, 2), S(94, 2), S(70, 2), S(72, 2), S(74, 2), S(68, 2)]
diag_n = [0]
def diag(which=1):
    if not DIAG or (which != DIAG and which != 0): return
    k = diag_n[0]; diag_n[0] += 1
    e(raw("s_memrealtime %s" % diag_regs[k], "other", wr=[diag_regs[k]]))
    if k > 0: e(raw("s_waitcnt lgkmcnt(0)", "wait")); em._retire(em.lgq, 0)
AMP = os.environ.get("AMP")
def diag_out():
    if not DIAG: return
    diag(0)
    if AMP:
        k = int(AMP); last = diag_regs[diag_n[0] - 1]
        e(salu("s_sub_u32", s_t0, diag_regs[k][0], diag_regs[0][0])); e(salu("s_lshl_b32", s_t0, s_t0, 2))
        em.label("L_amp")
        e(raw("s_memrealtime s[56:57]")); e(raw("s_waitcnt lgkmcnt(0)"))
        e(salu("s_sub_u32", s_t1, s_t1, last[0])); e(scmp("s_cmp_lt_u32", s_t1, s_t0)); e(raw("s_cbranch_scc1 L_amp", rd=["scc"]))
        return
    e(scmp("s_cmp_lg_u32", s_w, 0)); e(raw("s_cbranch_scc1 L_end", rd=["scc"]))
    e(raw("s_mov_b64 exec, 1", "salu", wr=["exec"]))
    e(salu("s_not_b32", s_t0, diag_regs[0][0]))
    for k in range(diag_n[0]):
        e(valu("v_mov_b32", V(4 + k), s_t0 if k == 0 else diag_regs[k][0]))
        e(raw("buffer_atomic_umax %s, off, %s, 0 offset:%d sc1" % (V(4 + k), S_DBG, 4 * k)))
    e(valu("v_mov_b32", V(12), diag_regs[0][0]))
    e(raw("buffer_atomic_umax %s, off, %s, 0 offset:%d sc1" % (V(12), S_DBG, 4 * 9)))
stamp_n = [0]
def stamp():
    if not STAMP: return
    k = stamp_n[0]; stamp_n[0] += 1
    e(raw("s_memtime %s" % S(68, 2), "other", wr=[S(68, 2)]))
    e(raw("s_memrealtime %s" % S(70, 2), "other", wr=[S(70, 2)]))
    e(raw("s_waitcnt lgkmcnt(0)", "wait")); em._retire(em.lgq, 0)
    for i in range(4): e(valu("v_writelane_b32", v_c, S(68 + i), i, rmw=True))
    e(salu("s_lshl_b32", S(72), S(2), 2)); e(salu("s_add_u32", S(72), S(72), s_w)); e(salu("s_lshl_b32", S(72), S(72), 9))
    e(salu("s_mov_b64", S(74, 2), "exec", scc_w=False)); e(raw("s_mov_b64 exec, 15", "salu", wr=["exec"]))
    e(valu("v_lshlrev_b32", v_t, 2, v_lane))
    e(bstore(v_c, v_t, S_DMP, S(72), off=k * 16))
    e(raw("s_mov_b64 exec, %s" % S(74, 2), "salu", wr=["exec"]))
    e(valu("v_lshlrev_b32", v_t, 7, v_lane))

def dump_regs(regs, finish=True):
    em.wait(lg0=True, vm0=True)
    e(nop(7)); e(nop(7))
    n = len(regs)
    e(salu("s_lshl_b32", s_t0, S(2), 2)); e(salu("s_add_u32", s_t0, s_t0, s_w)); e(salu("s_mul_i32", s_t0, s_t0, n * 256, scc_w=False))
    e(valu("v_lshlrev_b32", v_t, 2, v_lane))
    for k, r in enumerate(regs):
        e(bstore(r, v_t, S_DMP, s_t0, off=0))
        e(salu("s_add_u32", s_t0, s_t0, 256))
        if k % 32 == 31: em.wait(vm0=True)
    em.wait(vm0=True)
    if finish: e(raw("s_endpgm"))

def red4(op, x, tmp):
    for sw in ("v_permlane32_swap_b32", "v_permlane16_swap_b32"):
        for a, t in zip(x, tmp): e(valu("v_mov_b32", t, a))
        if len(x) < 3: e(nop(1))
        for a, t in zip(x, tmp): e(valu(sw, a, t))
        for a, t in zip(x, tmp): e(valu(op, a, a, t))

e(scmp("s_cmp_ge_u32", S(2), 256)); e(raw("s_cbranch_scc1 L_end", rd=["scc"]))
diag(0)
i0 = e(I("s_load_dwordx16 %s, s[0:1], 0" % s_ka, "smem", wr=s_ka.regs()))
i1 = e(I("s_load_dwordx8 %s, s[0:1], 64" % s_kb, "smem", wr=s_kb.regs()))
vq, vG, vr, vc_, vx, vy, vz = [V(40 + i) for i in range(7)]
e(raw("s_getpc_b64 %s" % s_pair2, "salu", wr=[s_pair2]))
em.label("L_pc0")
CT0 = int(os.environ.get("CT0", "64"))
if CT0:
    e(valu("v_sub_u32", V(55), 255, v_tid)); e(valu("v_cmp_gt_u32", "vcc", CT0, V(55))); e(valu("v_lshlrev_b32", V(55), 7, V(55))); e(nop(0))
    e(raw("s_and_saveexec_b64 s[4:5], vcc", "salu", wr=["exec"], rd=["vcc"])); e(raw("s_cbranch_execz L_ct0"))
    e(raw("global_load_dword v55, v55, %s" % s_pair2))
    em.label("L_ct0")
    e(raw("s_mov_b64 exec, -1", "salu", wr=["exec"]))
e(salu("s_and_b32", s_g, S(2), 7)); e(salu("s_lshr_b32", s_qb, S(2), 3))
e(valu("v_and_b32", v_lane, 63, v_tid))
e(valu("v_lshrrev_b32", v_t, 6, v_tid))
e(valu("v_lshlrev_b32", v_lin, 4, v_lane))
e(valu("v_readfirstlane_b32", s_w, v_t))
e(valu("v_and_b32", vq, 15, v_lane)); e(valu("v_lshrrev_b32", vG, 4, v_lane))
vxo = V(47)
e(valu("v_lshl_add_u32", vxo, v_t, 4, vq)); e(valu("v_lshlrev_b32", vxo, 10, vxo)); e(valu("v_lshl_add_u32", vxo, vG, 4, vxo))
vwg, vwq, vcw = V(52), V(53), V(54)
e(salu("s_mul_i32", s_t1, s_g, 448, scc_w=False)); e(salu("s_and_b32", s_t1, s_t1, hx(~127)))
e(salu("s_and_b32", s_t2, s_w, 1)); e(salu("s_lshl_b32", s_t3, s_qb, 1)); e(salu("s_add_u32", s_t2, s_t2, s_t3))
e(salu("s_mul_i32", s_t2, s_t2, 8 * 3584, scc_w=False)); e(salu("s_add_u32", s_t1, s_t1, s_t2))
e(valu("v_lshrrev_b32", vx, 2, v_lane)); e(valu("v_mul_u32_u24", vx, 3584, vx)); e(valu("v_and_b32", vz, 3, v_lane)); e(valu("v_lshl_add_u32", vx, vz, 7, vx))
e(valu("v_add_u32", vwg, s_t1, vx))
e(salu("s_lshl_b32", s_t2, s_qb, 2)); e(salu("s_add_u32", s_t2, s_t2, s_w)); e(salu("s_lshl_b32", s_t3, s_t2, 8))
e(valu("v_lshlrev_b32", vcw, 7, v_lane)); e(valu("v_add_u32", vcw, s_t3, vcw))
e(salu("s_lshl_b32", s_t0, s_qb, 16))
em.wait(lg0=True)
diag(2)
srd(S_X, s_ka[0], s_ka[1], 65536, s_t0)
v_xp = V(64, 64)
XFIRST = int(os.environ.get("XFIRST", "12"))
xl = [bload(v_xp[(4 * ks, 4)], vxo, S_X, 0, off=64 * ks) for ks in range(16)]
for ks in range(XFIRST): e(xl[ks])
e(scmp("s_cmp_lt_u32", s_w, 2)); e(salu("s_cselect_b64", s_pair, s_ka[(12, 2)], s_ka[(14, 2)], scc_w=False, scc_r=True))
e(raw("s_mov_b64 exec, 0xffffffff", "salu", wr=["exec"]))
e(I("global_load_dword %s, %s, %s" % (V(48), vwg, s_pair), "vmem", rd=vwg.regs() + s_pair.regs(), wr=V(48).regs()))
e(raw("s_mov_b64 exec, 3", "salu", wr=["exec"]))
e(I("global_load_dword %s, %s, %s" % (V(49), vcw, s_pair2), "vmem", rd=vcw.regs() + s_pair2.regs(), wr=V(49).regs()))
e(raw("s_mov_b64 exec, -1", "salu", wr=["exec"]))
e(salu("s_lshl_b32", s_t2, s_t2, 15)); e(salu("s_lshl_b32", s_t3, s_g, 10)); e(salu("s_add_u32", s_t2, s_t2, s_t3))
e(valu("v_lshrrev_b32", vx, 3, v_lane)); e(valu("v_lshlrev_b32", vx, 13, vx)); e(valu("v_and_b32", vz, 7, v_lane)); e(valu("v_lshl_add_u32", vx, vz, 7, vx))
e(valu("v_add_u32", vwq, s_t2, vx))
e(salu("s_lshr_b32", s_t2, s_qb, 3)); e(salu("s_lshl_b32", s_t3, s_g, 2)); e(salu("s_add_u32", s_t2, s_t2, s_t3))
e(salu("s_lshl_b32", s_t0, s_t2, 16))
srd(S_OUT, s_kb[2], s_kb[3], 65536, s_t0)
e(salu("s_lshl_b32", s_t1, s_g, 19))
srd(S_K, s_ka[2], s_ka[3], 524288, s_t1)
srd(S_V, s_ka[4], s_ka[5], 524288, s_t1)
srd(S_WO, s_ka[8], s_ka[9], 524288, s_t1)
srd(S_WQ, s_ka[6], s_ka[7], 4 << 20)
srd(S_WG, s_ka[12], s_ka[13], 1835008)
srd(S_WU, s_ka[14], s_ka[15], 1835008)
srd(S_WD, s_kb[0], s_kb[1], 1835008)
srd(S_DBG, s_kb[4], s_kb[5], 256)
e(salu("s_mul_i32", s_t1, s_qb, 229376, scc_w=False))
srd(S_H, s_kb[6], s_kb[7], 229376, s_t1)
e(salu("s_lshl_b32", s_t1, s_qb, 19)); e(salu("s_add_u32", s_t1, s_t1, hx(WS_SP)))
srd(S_SP, s_kb[6], s_kb[7], 524288, s_t1)
if DUMP or STAMP:
    e(salu("s_mov_b32", s_t1, hx(WS_DUMP), scc_w=False))
    srd(S_DMP, s_kb[6], s_kb[7], 200 << 20, s_t1)
e(salu("s_mov_b64", s_pair, S(90, 2), scc_w=False))
e(salu("s_lshl_b32", s_t0, s_t2, 16))
srd(S_XC, s_ka[0], s_ka[1], 65536, s_t0)
e(salu("s_mul_i32", s_t1, s_t2, 229376, scc_w=False))
srd(S_HC, s_pair[0], s_pair[1], 229376, s_t1)
e(salu("s_lshl_b32", s_t1, s_t2, 19)); e(salu("s_add_u32", s_t1, s_t1, hx(WS_SP)))
srd(S_SPC, s_pair[0], s_pair[1], 524288, s_t1)
e(salu("s_mov_b32", s_cq, s_t2, scc_w=False)); e(salu("s_and_b32", s_cg, s_qb, 7))
e(salu("s_lshl_b32", s_myfl, s_qb, 7)); e(salu("s_lshl_b32", s_t1, s_g, 2)); e(salu("s_add_u32", s_myfl, s_myfl, s_t1))
e(salu("s_lshl_b32", s_m0b, s_w, 12)); e(salu("s_add_u32", s_m0b, s_m0b, RING))
e(salu("s_and_b32", s_t1, s_g, 1)); e(salu("s_lshl_b32", s_t1, s_t1, 2)); e(salu("s_add_u32", s_t1, s_t1, s_w))
e(scmp("s_cmp_eq_u32", s_w, 3)); e(salu("s_cselect_b32", s_t1, 3, s_t1, scc_w=False, scc_r=True))
e(salu("s_lshr_b32", s_t2, s_g, 1)); e(salu("s_mul_i32", s_t2, s_t2, 7, scc_w=False)); e(salu("s_add_u32", s_t1, s_t1, s_t2))
e(salu("s_lshl_b32", s_h0, s_t1, 13)); e(salu("s_add_u32", s_h1, s_h0, 4096))
e(salu("s_lshl_b32", s_t1, s_t1, 7))
e(salu("s_lshl_b32", s_t2, s_g, 2)); e(salu("s_add_u32", s_t2, s_t2, s_w)); e(salu("s_lshl_b32", s_t2, s_t2, 8))

def dma_voffs(dst, stride, colbase_s, perm):
    for j in range(4):
        e(valu("v_bfe_u32", vx, v_lane, 1, 2)); e(valu("v_bfe_u32", vy, v_lane, 4, 1))
        e(valu("v_xor_b32", vx, vx, vy))
        if j & 1: e(valu("v_xor_b32", vx, 2, vx))
        e(valu("v_and_b32", vy, 1, v_lane)); e(valu("v_lshlrev_b32", vy, 4, vy)); e(valu("v_lshl_add_u32", vx, vx, 5, vy))
        if not perm:
            e(valu("v_lshrrev_b32", vy, 3, v_lane)); rowadd = 8 * j
        else:
            e(valu("v_bfe_u32", vy, v_lane, 3, 2)); e(valu("v_bfe_u32", vz, v_lane, 5, 1)); e(valu("v_lshl_add_u32", vy, vz, 4, vy)); rowadd = 4 * j
        e(valu("v_mul_u32_u24", vy, stride, vy))
        e(valu("v_add3_u32", vx, vx, vy, colbase_s))
        e(valu("v_add_u32", dst[j], rowadd * stride - j * 1024, vx))

dma_voffs(v_dA, 3584, s_t1, False)
dma_voffs(v_dB, 8192, s_t2, False)

def m0set(p): return salu("s_add_u32", "m0", s_m0b, p * 16384)
def s1_dma(m):
    p = m % 6
    if m < 32:
        s, h = m >> 1, m & 1
        return [m0set(p), salu("s_mov_b32", s_off, s * 32 * 3584, scc_w=False)], [dma(v_dA[j], S_WU if h else S_WG, s_off, j * 1024) for j in range(4)]
    if m < 64:
        s, h = (m - 32) >> 1, m & 1
        return [m0set(p), salu("s_mov_b32", s_off, s * 32 * 8192 + 128 * h, scc_w=False)], [dma(v_dB[j], S_WQ, s_off, j * 1024) for j in range(4)]
    if m == 64:
        return [m0set(p), salu("s_mov_b32", s_off, 0, scc_w=False)], [dma(v_kd[j], S_K, s_off, j * 1024) for j in range(4)]
    if m == 65:
        return [m0set(p), salu("s_mov_b32", s_off, 8192, scc_w=False)], [dma(v_kd[j], S_K, s_off, j * 1024) for j in range(4)]
    if m == 66:
        return [m0set(p), salu("s_mov_b32", s_off, 0, scc_w=False)], [dma(v_vd[j & 1], S_V, s_off, j * 1024) for j in range(4)]
    return None
dtok = {}
ln_v = []
for m in range(6):
    sa, dm = s1_dma(m)
    ln_v.append(sa); ln_v += dm
    dtok[m] = dm[3]
def xaddr(dst, tmp):
    e(valu("v_and_b32", dst, 15, v_lane)); e(salu("s_lshl_b32", s_t0, s_w, 4)); e(valu("v_add_u32", dst, s_t0, dst)); e(valu("v_lshlrev_b32", dst, 10, dst))
    e(valu("v_lshrrev_b32", tmp, 4, v_lane)); e(valu("v_lshl_add_u32", dst, tmp, 3, dst)); e(salu("s_lshl_b32", s_t0, s_cg, 7)); e(valu("v_add_u32", dst, s_t0, dst))
vxs, vzero = V(50), V(51)
xaddr(vxs, vy)
e(valu("v_mov_b32", vzero, 0))
ln_v += [bload(a_x[(2 * u, 2)], vxs, S_XC, 0, off=32 * u, n=2) for u in range(4)]
ln_v.append([raw("s_mov_b64 exec, 1", "salu", wr=["exec"]), bstore(vzero, None, S_FL, s_myfl, mod="sc1"), raw("s_mov_b64 exec, -1", "salu", wr=["exec"])])
ln_v.append([raw("s_mov_b64 exec, 0xffffffff", "salu", wr=["exec"]), bload(V(46), vwq, S_WQ, 0, n=1), raw("s_mov_b64 exec, -1", "salu", wr=["exec"])])
LNPRE = int(os.environ.get("LNPRE", "0"))
lv = [0]
def ln_issue(n=1):
    k = 0
    while k < n and lv[0] < len(ln_v):
        it = ln_v[lv[0]]; lv[0] += 1
        e(it)
        if not isinstance(it, list): k += 1
e(valu("v_bfe_u32", vr, v_lane, 2, 2)); e(valu("v_and_b32", vc_, 3, v_lane))
e(valu("v_lshlrev_b32", vx, 10, vG)); e(valu("v_lshl_add_u32", vx, vr, 7, vx)); e(valu("v_lshl_add_u32", vx, vc_, 3, vx)); e(valu("v_add_u32", vx, s_m0b, vx))
e(valu("v_lshrrev_b32", vy, 1, vr)); e(valu("v_and_b32", vz, 1, vG)); e(valu("v_lshl_add_u32", vy, vz, 1, vy))
for u in range(4):
    e(valu("v_xor_b32", vz, u, vy)); e(valu("v_lshl_add_u32", v_tr[0][u], vz, 5, vx)); e(valu("v_add_u32", v_tr[1][u], 3 * 16384, v_tr[0][u]))
e(valu("v_xor_b32", vy, vG, vq))
for ds in range(4):
    e(valu("v_xor_b32", vz, 4 * ds, vy)); e(valu("v_lshlrev_b32", vz, 4, vz)); e(valu("v_lshl_add_u32", vz, vq, 8, vz)); e(valu("v_add_u32", v_ka[ds], RING + 4 * 16384, vz))
e(valu("v_lshl_add_u32", vx, vG, 2, vr)); e(valu("v_and_b32", vy, 7, vx)); e(valu("v_lshlrev_b32", vx, 8, vx)); e(valu("v_lshl_add_u32", vx, vc_, 3, vx)); e(valu("v_add_u32", vx, RING, vx))
for db in range(8):
    e(valu("v_xor_b32", vz, db, vy)); e(valu("v_lshl_add_u32", v_va[db], vz, 5, vx))
e(salu("s_lshl_b32", s_t1, s_w, 12))
e(valu("v_lshlrev_b32", vx, 8, vG)); e(valu("v_add_u32", vx, s_t1, vx))
for j in range(4):
    e(valu("v_add_u32", vy, 4 * j, vG)); e(valu("v_xor_b32", vy, vy, vq)); e(valu("v_lshl_add_u32", v_kd[j], vy, 4, vx))
e(valu("v_and_b32", vz, 1, v_lane)); e(valu("v_lshl_add_u32", vx, vz, 4, vx))
for j in range(2):
    e(valu("v_add_u32", vy, 4 * j, vG)); e(valu("v_lshrrev_b32", vz, 1, vq)); e(valu("v_xor_b32", vy, vy, vz)); e(valu("v_lshl_add_u32", v_vd[j], vy, 5, vx))
e(salu("s_lshl_b32", s_t1, s_w, 14)); e(valu("v_add_u32", v_wl, s_t1, v_lin))
e(salu("s_mov_b32", s_retry, 0, scc_w=False))
for ks in range(XFIRST, 16): e(xl[ks])
e(salu("s_mov_b32", s_t1, hx(WS_FL), scc_w=False))
srd(S_FL, s_pair[0], s_pair[1], 4096, s_t1)
ln_issue(LNPRE)
stamp()

v_f = V(128, 128)
acc = [V(56, 2), V(58, 2), V(60, 2), V(62, 2)]
diag(2)
for ks in range(16):
    em.wait(vm=xl[ks])
    if ks == 15: diag(2)
    for k in range(4):
        p = 4 * ks + k
        e(valu("v_lshlrev_b32", v_f[2 * p], 16, v_xp[p])); e(valu("v_and_b32", v_f[2 * p + 1], "0xffff0000", v_xp[p]))
    for k in range(4):
        p = 4 * ks + k
        if ks == 0: e(valu("v_mov_b64", acc[k], v_f[(2 * p, 2)]))
        else: e(valu("v_pk_add_f32", acc[k], acc[k], v_f[(2 * p, 2)]))
if STAMP == 3: stamp()
ln_issue(int(os.environ.get("LN_FIRST", "12")))
diag(2)
if STAMP == 3: stamp()
e(valu("v_pk_add_f32", acc[0], acc[0], acc[1])); e(valu("v_pk_add_f32", acc[2], acc[2], acc[3])); e(valu("v_pk_add_f32", acc[0], acc[0], acc[2]))
vsum, vtmp, vmb, vdm = V(40), V(41), V(42), V(43)
e(valu("v_add_f32", vsum, acc[0][0], acc[0][1]))
red4("v_add_f32", [vsum], [vtmp])
e(valu("v_mul_f32", vsum, hx(f2u(1.0 / 512)), vsum))
e(valu("v_cvt_pk_bf16_f32", vmb, vsum, vsum)); e(valu("v_lshlrev_b32", vmb, 16, vmb))
e(valu("v_sub_f32", vdm, vsum, vmb))
vneg = V(56, 2)
e(valu("v_sub_f32", vneg[0], 0, vmb))
acc2 = [V(58, 2), V(60, 2), V(62, 2)]
for p in range(64):
    e(valu("v_pk_add_f32", v_f[(2 * p, 2)], v_f[(2 * p, 2)], vneg, mod="op_sel_hi:[1,0]"))
for p in range(64):
    a_ = acc2[p % 3]
    if p < 3: e(valu("v_pk_mul_f32", a_, v_f[(2 * p, 2)], v_f[(2 * p, 2)]))
    else: e(valu("v_pk_fma_f32", a_, v_f[(2 * p, 2)], v_f[(2 * p, 2)], a_))
if STAMP == 3: stamp()
e(valu("v_pk_add_f32", acc2[0], acc2[0], acc2[1])); e(valu("v_pk_add_f32", acc2[0], acc2[0], acc2[2]))
e(valu("v_add_f32", vsum, acc2[0][0], acc2[0][1]))
red4("v_add_f32", [vsum], [vtmp])
e(valu("v_mul_f32", vsum, hx(f2u(1.0 / 512)), vsum))
e(valu("v_fma_f32", vsum, "-" + str(vdm), vdm, vsum, extra_rd=vdm.regs()))
e(valu("v_max_f32", vsum, 0, vsum))
e(valu("v_cvt_pk_bf16_f32", vsum, vsum, vsum)); e(valu("v_lshlrev_b32", vsum, 16, vsum))
e(valu("v_add_f32", vsum, hx(f2u(1e-5)), vsum))
e(valu("v_cvt_pk_bf16_f32", vsum, vsum, vsum)); e(valu("v_lshlrev_b32", vsum, 16, vsum))
e(valu("v_sqrt_f32", vsum, vsum)); e(nop(0))
e(valu("v_cvt_pk_bf16_f32", vsum, vsum, vsum)); e(valu("v_lshlrev_b32", vsum, 16, vsum))
e(valu("v_rcp_f32", vneg[0], vsum)); e(nop(0))
for ks in range(16):
    for k in range(4):
        p = 4 * ks + k
        e(valu("v_pk_mul_f32", v_f[(2 * p, 2)], v_f[(2 * p, 2)], vneg, mod="op_sel_hi:[1,0]"))
    for k in range(4):
        p = 4 * ks + k
        e(valu("v_cvt_pk_bf16_f32", v_xp[p], v_f[2 * p], v_f[2 * p + 1]))
    e(dswrite("ds_write_b128", v_wl, v_xp[(4 * ks, 4)], ks * 1024))
ln_issue(100)
if STAMP == 3: stamp()
if DUMP == "ln": dump_regs([v_xp[i] for i in range(64)])
em.wait(lg0=True)
e(raw("s_barrier"))
stamp(); diag(); diag(2)

def run_stream(NH, dmaf, dtok, accf, Bf, extra, vstream, LOOK=6, nq=4, pos0=0, ring=a_ring):
    NG = 4 * NH
    rtok = {}
    def reads(g):
        m, u = g >> 2, g & 3
        p = (m + pos0) % 6
        d = ring[((g % 8) * 4, 4)]
        r = [dsread("ds_read_b64_tr_b16", d[(2 * h2, 2)], v_tr[p // 3][u], (p % 3) * 16384 + h2 * 512) for h2 in range(2)]
        rtok[g] = r[1]
        return r
    em.wait(vm=dtok[0])
    for g in range(3): e(reads(g))
    for pre in extra.get(-1, []): e(pre[1])
    em.wait(lg0=True)
    vi = 0
    for g in range(NG):
        m, u = g >> 2, g & 3
        gaps = [[], [], [], []]; cap = [2, 2, 2, 2]
        if g + 3 < NG:
            if (g + 3) & 3 == 0: gaps[0].append(Wait(vm=dtok[(g + 3) >> 2]))
            r = reads(g + 3); gaps[0].append(r[0]); gaps[1].append(r[1]); cap[0] -= 1; cap[1] -= 1
        md, j = (g + 4 * LOOK - 4) >> 2, (g + 4 * LOOK - 4) & 3
        if md >= LOOK:
            if j == 0: cur = dmaf(md)
            if cur is not None:
                if j == 0: gaps[2] += cur[0]
                items = cur[1][j::4]
                for it in items: gaps[3].append(it); cap[3] -= 1
                if j == 3: dtok[md] = cur[1][3]
        for (gp, it, cost) in extra.get(g, []):
            gaps[gp].append(it); cap[gp] -= cost
        if g + 1 < NG: gaps[3].insert(0, Wait(lg=rtok[g + 1]))
        d = ring[((g % 8) * 4, 4)]
        for qb in range(nq):
            ac, first = accf(m, u, qb)
            e(mfma(ac, d, Bf(m, qb), 0 if first else ac))
            for it in gaps[qb]: e(it)
            c = cap[qb]
            quota = vstream.quota(g) if vstream else 0
            while vstream and vstream.has(g) and (c > 0 or quota > 0):
                it = vstream.peek()
                cost = 2 if it.kind == "trans" else 1
                if cost > c and quota <= 0: break
                if cost > c: quota -= 1; vstream.used_quota()
                e(vstream.pop()); c -= cost
    if vstream:
        while vstream.has(10 ** 9): e(vstream.pop())

class VStream:
    def __init__(self, items, start, end, extra_total=0):
        self.items = items; self.i = 0; self.start = start; self.end = end
        self.extra_total = extra_total; self.used = 0
    def has(self, g): return self.i < len(self.items) and g >= self.start
    def peek(self): return self.items[self.i]
    def pop(self): self.i += 1; return self.items[self.i - 1]
    def quota(self, g):
        if g < self.start: return 0
        allowed = (g - self.start + 1) * self.extra_total // max(1, self.end - self.start)
        return 1 if allowed > self.used else 0
    def used_quota(self): self.used += 1

def s1_acc(m, u, qb):
    h = m & 1
    idx = ((h * 4 + u) * 4 + qb) * 4
    if m < 32: return A(idx, 4), m < 2
    return v_acc[(idx, 4)], m < 34
def s1_B(m, qb): return a_B[(((m >> 1) & 1) * 16 + qb * 4, 4)]
extra = {}
btok = {}
def bread(s, qb): return dsread("ds_read_b128", a_B[((s & 1) * 16 + qb * 4, 4)], v_lin, (qb * 16 + (s % 16)) * 1024)
extra[-1] = [(0, bread(0, qb), 1) for qb in range(4)]
for s in range(1, 32):
    for qb in range(4):
        extra.setdefault(8 * (s - 1) + 1 + qb, []).append((2, bread(s, qb), 1))
C0 = -2.0 * math.sqrt(2.0 / math.pi) * math.log2(math.e); C1 = C0 * 0.044715
vc0, vc1 = V(40), V(41)
gel = [valu("v_mov_b32", vc0, hx(f2u(C0))), valu("v_mov_b32", vc1, hx(f2u(C1)))]
hst = []
tb = 0
for i in range(2):
    for qb in range(4):
        pk = V(44 + 4 * (tb % 4), 4); tb += 1
        for b in range(2):
            u = 2 * i + b
            T = [V(64 + 16 * ((2 * tb + b) % 4) + k) for k in range(16)]
            G_, U_, X_ = T[0:4], T[4:8], T[8:12]
            ga = lambda r: A((u * 4 + qb) * 4 + r); ua = lambda r: A(((4 + u) * 4 + qb) * 4 + r)
            for r in range(4): gel.append(valu("v_accvgpr_read_b32", G_[r], ga(r)))
            for r in range(4): gel.append(valu("v_accvgpr_read_b32", U_[r], ua(r)))
            for r in range(4): gel.append(valu("v_mul_f32", X_[r], G_[r], G_[r]))
            for r in range(4): gel.append(valu("v_fma_f32", X_[r], X_[r], vc1, vc0))
            for r in range(4): gel.append(valu("v_mul_f32", X_[r], X_[r], G_[r]))
            for r in range(4): gel.append(valu("v_exp_f32", X_[r], X_[r]))
            for r in range(4): gel.append(valu("v_mul_f32", G_[r], G_[r], U_[r]))
            for r in range(4): gel.append(valu("v_add_f32", X_[r], "1.0", X_[r]))
            for r in range(4): gel.append(valu("v_rcp_f32", X_[r], X_[r]))
            gel.append(nop(0))
            for r in range(4): gel.append(valu("v_mul_f32", G_[r], G_[r], X_[r]))
            for k in range(2): gel.append(valu("v_cvt_pk_bf16_f32", pk[2 * b + k], G_[2 * k], G_[2 * k + 1]))
        st = bstore(pk, v_lin, S_H, s_h1 if i else s_h0, off=qb * 1024, mod="sc1")
        gel.append(st); hst.append(st)
class Stamp:
    def __call__(self): stamp(); return []
if STAMP: extra.setdefault(128, []).append((0, Stamp(), 0))
vs = VStream(gel, 131, GEL_END, extra_total=GEL_EXTRA)
run_stream(64, s1_dma, dtok, s1_acc, s1_B, extra, vs)
if DUMP == "qacc": dump_regs([v_acc[i] for i in range(128)])
stamp()

em.wait(lg0=True)
e(raw("s_barrier"))
def signal(off_s_expr_add, lab):
    e(scmp("s_cmp_lg_u32", s_w, 0)); e(raw("s_cbranch_scc1 %s" % lab, rd=["scc"]))
    e(salu("s_lshl_b32", s_t0, s_qb, 2))
    if off_s_expr_add: e(salu("s_add_u32", s_t0, s_t0, off_s_expr_add))
    e(valu("v_mov_b32", v_t, 1))
    e(raw("s_mov_b64 exec, 1", "salu", wr=["exec"]))
    e(raw("buffer_atomic_add %s, off, %s, %s sc1" % (v_t, S_DBG, s_t0)))
    e(raw("s_mov_b64 exec, -1", "salu", wr=["exec"]))
    em.label(lab)
QS = math.log2(math.e) / math.sqrt(128.0)
vqs = V(40, 2); vqw = V(42)
e(valu("v_mov_b32", vqs[0], hx(f2u(QS))))
e(valu("v_and_b32", v_t, 15, v_lane)); e(valu("v_bfe_u32", vqw, v_lane, 5, 1)); e(valu("v_lshl_add_u32", v_t, vqw, 4, v_t)); e(valu("v_lshlrev_b32", v_t, 4, v_t))
e(valu("v_bfe_u32", vqw, v_lane, 4, 1)); e(valu("v_lshl_add_u32", vqw, vqw, 3, v_t))
e(salu("s_lshl_b32", s_t1, s_w, 14)); e(valu("v_add_u32", vqw, s_t1, vqw))
for blk in range(8):
    for qb in range(4):
        a_ = v_acc[((blk * 4 + qb) * 4, 4)]
        t = V(64 + 2 * ((blk * 4 + qb) % 8), 2)
        for k in range(2): e(valu("v_pk_mul_f32", a_[(2 * k, 2)], a_[(2 * k, 2)], vqs, mod="op_sel_hi:[1,0]"))
        for k in range(2): e(valu("v_cvt_pk_bf16_f32", t[k], a_[2 * k], a_[2 * k + 1]))
        if len(em.lgq) >= 7: em.wait(lg=em.lgq[-7])
        e(dswrite("ds_write_b64", vqw, t, (qb * 4 + (blk >> 1)) * 1024 + (blk & 1) * 512))
em.wait(lg0=True)
for f in range(16):
    e(dsread("ds_read_b128", a_Q[(4 * f, 4)], v_wl, f * 1024))
    if f == 7: pass
vx, vy, vz = V(96), V(97), V(98)
e(salu("s_lshl_b32", s_t1, s_w, 8))
dma_voffs(v_dA, 1024, s_t1, True)
em.label("L_att_start")
for i in range(64): e(valu("v_mov_b64", v_acc[(2 * i, 2)], 0))
for i in range(4): e(valu("v_mov_b32", v_l0[i], 0)); e(valu("v_mov_b32", v_l1[i], 0))
em.wait(vm0=True, lg0=True)
e(raw("s_barrier"))
e(scmp("s_cmp_lg_u32", s_retry, 0)); e(raw("s_cbranch_scc1 L_sigH", rd=["scc"]))
signal(HC_OFF, "L_sigH")
if DUMP == "q": dump_regs([a_Q[i] for i in range(64)])
stamp()

def Qf(qb, ds): return a_Q[((qb * 4 + ds) * 4, 4)]
def Of(db, qb): return v_acc[((db * 4 + qb) * 4, 4)]
def fr(f): return a_ring[((f % 8) * 4, 4)]
def kslot(par): return 16384 if par == 0 else 0
def vslot(par): return 0 if par == 0 else 16384
def frag_reads(par, f):
    if f >= 32: par ^= 1; f -= 32
    d = fr(f)
    if f < 8 or 16 <= f < 24:
        kb = (f >> 2) if f < 8 else 2 + ((f - 16) >> 2)
        return [dsread("ds_read_b128", d, v_ka[f & 3], kslot(par) + kb * 4096)]
    ks2 = 0 if f < 16 else 1
    db = f & 7
    return [dsread("ds_read_b64_tr_b16", d[(2 * h, 2)], v_va[db], vslot(par) + ks2 * 8192 + h * 4096) for h in range(2)]
def read_sched(g):
    r = []
    if g + 3 < 24 or g >= 29: r.append(g + 3)
    if 19 <= g <= 26: r.append(g + 5)
    return r
def sm_val(g, k):
    if 7 <= g <= 22: b = 1; n = 2 * (g - 7) + k
    else: b = 0; n = 2 * ((g - 23) % 32) + k
    kb, qb, r = n >> 4, (n >> 2) & 3, n & 3
    return b, qb, kb, r
def sm_items(g):
    ex, ad = [], []
    for k in range(2):
        b, qb, kb, r = sm_val(g, k)
        x = v_S[b][qb * 8 + kb * 4 + r]
        l = (v_l1 if b else v_l0)[qb]
        ex.append(valu("v_exp_f32", x, x)); ad.append(valu("v_add_f32", l, l, x))
    b, qb, kb, r = sm_val((g - 1) % 32, 0)
    cv = valu("v_cvt_pk_bf16_f32", v_S[b][qb * 8 + kb * 2 + (r >> 1)], v_S[b][qb * 8 + kb * 4 + r], v_S[b][qb * 8 + kb * 4 + r + 1])
    return ex, ad, cv
def att_dma(par, g):
    if g >= 29: k = g - 29; sp = par
    elif g <= 4: k = g + 3; sp = par ^ 1
    else: return [], None
    sal = []
    if k == 0: sal = [salu("s_add_u32", "m0", s_m0b, 4 * 16384 + kslot(sp))]
    if k == 4: sal = [salu("s_add_u32", "m0", s_m0b, vslot(sp))]
    if k < 4: return sal, dma(v_kd[k], S_K, s_kK, k * 1024)
    return sal, dma(v_vd[k & 1], S_V, s_kV, (k - 4) * 1024)
SIDE_FIRST = 11
class Lbl:
    def __init__(self, n): self.n = n
    def __call__(self): em.label(self.n); return []
class LoopStamp:
    def __init__(self, k, par): self.k, self.par = k, par
    def __call__(self):
        k = self.k
        e(raw("s_memtime %s" % S(68 + 2 * k, 2), "other", wr=[S(68 + 2 * k, 2)]))
        if k == 2:
            e(raw("s_waitcnt lgkmcnt(0)", "wait")); em._retire(em.lgq, 0)
            for i in range(3): e(valu("v_writelane_b32", v_c, S(68 + 2 * i), i, rmw=True))
            e(salu("s_lshl_b32", S(74), S(2), 2)); e(salu("s_add_u32", S(74), S(74), s_w)); e(salu("s_lshl_b32", S(74), S(74), 4))
            e(salu("s_sub_u32", S(74), S(74), s_cnt)); e(salu("s_add_u32", S(74), S(74), 16)); e(salu("s_lshl_b32", S(74), S(74), 5))
            e(salu("s_add_u32", S(74), S(74), (1 << 20) + 16 * self.par))
            e(raw("s_mov_b64 exec, 7", "salu", wr=["exec"]))
            e(valu("v_lshlrev_b32", v_t, 2, v_lane))
            e(bstore(v_c, v_t, S_DMP, S(74), off=0))
            e(raw("s_mov_b64 exec, -1", "salu", wr=["exec"]))
            e(valu("v_lshlrev_b32", v_t, 7, v_lane))
        return []
s_pf = [S(16, 2), S(18, 2), S(24, 2), S(26, 2)]
s_pfH = S(28, 2)
s_fo = S(3)
v_tch, v_flag = V(3), V(0)
xtok = []; lastdma = [None]
ROT = int(os.environ.get('ROT', '10'))
ftok = {}
def att_group(par, g, do_mfma=True, do_mem=True, do_cvt=True, last=False):
    ex, ad, cv = sm_items(g)
    mem = []
    sal = []
    if do_mem:
        for f in read_sched(g):
            r = frag_reads(par, f); mem += r; ftok[f % 32] = r
        sal, d = att_dma(par, g)
        if d is not None: mem.append(d)
    if do_mem and par == 0 and g == 5:
        mem.append(I("global_load_dword %s, %s, %s" % (v_flag, v_tch, s_pf[0]), "vmem", rd=v_tch.regs() + s_pf[0].regs(), wr=[])); xtok.append(mem[-1])
    if do_mem and par == 0 and g == 6:
        mem.append(I("buffer_load_dword %s, off, %s, %s sc1" % (v_flag, S_DBG, s_fo), "vmem", rd=S_DBG.regs() + s_fo.regs(), wr=[])); xtok.append(mem[-1])
    if do_mem and par == 0 and g in (8, 9, 10): sal = sal + [scmp("s_cmp_le_u32", s_cnt, ROT), salu("s_cselect_b64", s_pf[g - 8], s_pf[g - 7], s_pf[g - 8], scc_w=False, scc_r=True)]
    if do_mem and g == 4: lastdma[0] = d
    post0 = []
    if do_mem and do_mfma and par == 1 and g == 30: post0 = [valu("v_readfirstlane_b32", s_t0, v_flag)]
    if do_mem and do_mfma and par == 1 and g == 31: sal = sal + [scmp("s_cmp_lt_u32", s_cnt, ROT), salu("s_cselect_b32", s_t0, s_t0, 0, scc_w=False, scc_r=True), scmp("s_cmp_ge_u32", s_t0, 8), salu("s_cselect_b64", s_pf[3], s_pfH, s_pf[3], scc_w=False, scc_r=True)]
    gaps = [[], [], [], []]
    if g == 29 and do_mem:
        if STAMP == 2 and do_mfma: gaps[0] += [LoopStamp(0, par)]
        gaps[0] += [Wait(lg0=True, vm0=True) if (par == 1 or not do_mfma) else Wait(lg0=True, vm=lastdma[0])]
        if STAMP == 2 and do_mfma: gaps[0] += [LoopStamp(1, par)]
        gaps[0] += [raw("s_barrier")]
        if STAMP == 2 and do_mfma: gaps[0] += [LoopStamp(2, par)]
    gaps[0] += sal
    if g == 6 and do_mem: gaps[0].append(salu("s_add_u32", s_kK, s_kK, 16384))
    if g == 7 and do_mem: gaps[0].append(salu("s_add_u32", s_kV, s_kV, 16384))
    if g == 23 and par == 1 and do_mfma:
        gaps[0] += [valu("v_mov_b32", v_lsave[i], v_l0[i]) for i in range(4)]
    if len(mem) > 2: gaps[0].append(mem[2])
    gaps[0].append(ex[0])
    if len(mem) > 0: gaps[1].append(mem[0])
    if len(mem) == 0 and do_cvt: gaps[1].append(cv)
    gaps[1].append(ad[0])
    gaps[1] += post0
    if do_mem: gaps[2].append(Wait(lg=ftok.get((g + 1) % 32)))
    if last and g == 30: gaps[2].append(salu("s_sub_u32", s_cnt, s_cnt, 1))
    gaps[2].append(ex[1])
    if len(mem) > 1: gaps[3].append(mem[1])
    if len(mem) > 0 and do_cvt: gaps[3].append(cv)
    gaps[3].append(ad[1])
    for qb in range(4):
        if do_mfma:
            if g < 8 or 16 <= g < 24:
                b = 1 if g < 8 else 0
                kb, ds = (g >> 2) & 1, g & 3
                d = v_S[b][(qb * 8 + kb * 4, 4)]
                e(mfma(d, fr(g), Qf(qb, ds), v_negm[(qb * 4, 4)] if ds == 0 else d))
            else:
                b = 0 if g < 16 else 1
                e(mfma(Of(g & 7, qb), fr(g), v_S[b][(qb * 8, 4)], Of(g & 7, qb)))
        else:
            if qb & 1: e(nop(0))
        for it in gaps[qb]: e(it)

for it in range(3):
    e(salu("s_add_u32", s_t0, s_w, 4 * it))
    e(salu("s_sub_u32", s_t1, s_t0, 2)); e(salu("s_min_u32", s_t1, s_t1, 6)); e(salu("s_lshl_b32", s_t1, s_t1, 13))
    e(salu("s_mul_i32", s_t2, s_qb, 57344, scc_w=False)); e(salu("s_add_u32", s_t1, s_t1, s_t2))
    e(salu("s_add_u32", s_pf[it][0], S_WD[0], s_t1)); e(salu("s_addc_u32", s_pf[it][1], S_WD[1], 0, scc_r=True))
    if it == 0:
        e(scmp("s_cmp_ge_u32", s_w, 2)); e(raw("s_cbranch_scc1 L_pf_wd", rd=["scc"]))
        e(salu("s_lshl_b32", s_t1, s_qb, 14)); e(salu("s_lshl_b32", s_t2, s_w, 13)); e(salu("s_add_u32", s_t1, s_t1, s_t2))
        e(salu("s_add_u32", s_pf[0][0], S_WO[0], s_t1)); e(salu("s_addc_u32", s_pf[0][1], S_WO[1], 0, scc_r=True))
        em.label("L_pf_wd")
e(raw("s_getpc_b64 %s" % s_pf[3], "salu", wr=[s_pf[3]]))
em.label("L_pc1")
e(salu("s_lshl_b32", s_t0, s_w, 13)); e(salu("s_add_u32", s_t0, s_t0, "L_tail-L_pc1")); e(salu("s_min_u32", s_t0, s_t0, "L_code_end-L_pc1-8192"))
e(salu("s_add_u32", s_pf[3][0], s_pf[3][0], s_t0)); e(salu("s_addc_u32", s_pf[3][1], s_pf[3][1], 0, scc_r=True))
e(salu("s_lshl_b32", s_t0, s_cg, 2)); e(salu("s_add_u32", s_t0, s_t0, s_w)); e(salu("s_mul_i32", s_t0, s_t0, 7168, scc_w=False)); e(salu("s_min_u32", s_t0, s_t0, 229376 - 8192))
e(salu("s_add_u32", s_pfH[0], S_HC[0], s_t0)); e(salu("s_addc_u32", s_pfH[1], S_HC[1], 0, scc_r=True))
e(valu("v_lshlrev_b32", v_tch, 7, v_lane))
e(salu("s_lshl_b32", s_fo, s_cq, 2)); e(salu("s_add_u32", s_fo, s_fo, HC_OFF))
pr = [dsread("ds_read_b128", fr(f), v_ka[f & 3], (f >> 2) * 4096) for f in range(8)]
for r in pr: e(r)
e(scmp("s_cmp_lg_u32", s_retry, 0)); e(raw("s_cbranch_scc1 L_have_max", rd=["scc"]))
for i in range(16): e(valu("v_mov_b32", v_negm[i], 0))
em.label("L_have_max")
for f in range(8):
    em.wait(lg=pr[f])
    for qb in range(4):
        d = v_S[0][(qb * 8 + (f >> 2) * 4, 4)]
        e(mfma(d, fr(f), Qf(qb, f & 3), v_negm[(qb * 4, 4)] if (f & 3) == 0 else d))
e(salu("s_mov_b32", s_kK, 16384 + 8192, scc_w=False)); e(salu("s_mov_b32", s_kV, 16384, scc_w=False)); e(salu("s_mov_b32", s_cnt, 16, scc_w=False))
e(scmp("s_cmp_lg_u32", s_retry, 0)); e(raw("s_cbranch_scc1 L_have_max2", rd=["scc"]))
e(nop(3))
mx = [V(96 + i) for i in range(4)]; mt = [V(100 + i) for i in range(4)]
for qb in range(4): e(valu("v_max3_f32", mx[qb], v_S[0][qb * 8], v_S[0][qb * 8 + 1], v_S[0][qb * 8 + 2]))
for qb in range(4): e(valu("v_max3_f32", mx[qb], mx[qb], v_S[0][qb * 8 + 3], v_S[0][qb * 8 + 4]))
for qb in range(4): e(valu("v_max3_f32", mx[qb], mx[qb], v_S[0][qb * 8 + 5], v_S[0][qb * 8 + 6]))
for qb in range(4): e(valu("v_max_f32", mx[qb], mx[qb], v_S[0][qb * 8 + 7]))
red4("v_max_f32", mx, mt)
for qb in range(4):
    for k in range(4): e(valu("v_sub_f32", v_negm[qb * 4 + k], 0, mx[qb]))
for qb in range(4):
    for k in range(8): e(valu("v_sub_f32", v_S[0][qb * 8 + k], v_S[0][qb * 8 + k], mx[qb]))
em.label("L_have_max2")
e(nop(7))
for g in range(23, 29): att_group(1, g, do_mfma=False, do_mem=False, do_cvt=(g != 23))
stamp(); diag()
for g in range(29, 32): att_group(1, g, do_mfma=False, do_mem=True)
pro_end = len(em.out)
em.directive(".p2align 6")
em.label("L_att_loop")
def body():
    for par in range(2):
        for g in range(32): att_group(par, g, last=(par == 1))
b0 = len(em.out)
body()
b1 = len(em.out)
e(scmp("s_cmp_lg_u32", s_cnt, 0)); e(raw("s_cbranch_scc1 L_att_loop", rd=["scc"]))
b2 = len(em.out)
body()
second = em.out[b2:]; del em.out[b2:]
assert [i.text for i in second] == [i.text for i in em.out[b0:b1]], "loop not in steady state"
loop_probs = check_hazards(em.out[b1 - 40:b2] + second[:60], "loop-wrap")
stamp()

em.label("L_tail")
diag()
v_ring2 = V(64, 32); v_B2 = V(96, 32)
def hreg(kk, qb): return A(64 + (kk % 12) * 16 + qb * 4, 4)
XY = int(os.environ.get("XY", "0"))
def mh(m): return ((m & 15), m >> 4) if XY else (m >> 1, m & 1)
P2 = 2
def s2_dma(m):
    p = (m + P2) % 6
    if m < 32:
        s, h = mh(m)
        return [m0set(p), salu("s_mov_b32", s_off, s * 32 * 1024 + 128 * h, scc_w=False)], [dma(v_dA[j], S_WO, s_off, j * 1024) for j in range(4)]
    if m < 46:
        return [m0set(p), salu("s_mov_b32", s_off, (m - 32) * 32 * 1024, scc_w=False)], [dma(v_dB[j], S_WD, s_off, j * 1024) for j in range(4)]
    return None
dtok2 = {}
post_v = []
for m in range(0, 6):
    sa, dm = s2_dma(m); post_v.append(sa); post_v += dm; dtok2[m] = dm[3]
pv = [0]
def post_issue(n):
    k = 0
    while k < n and pv[0] < len(post_v):
        it = post_v[pv[0]]; pv[0] += 1
        e(it)
        if not isinstance(it, list): k += 1
post_issue(4)
lt = [V(100 + i) for i in range(4)]
for qb in range(4): e(valu("v_add_f32", v_l1[qb], v_l1[qb], v_lsave[qb]))
red4("v_add_f32", [v_l1[i] for i in range(4)], lt)
e(salu("s_mov_b32", s_t0, hx(f2u(2.0 ** 30)), scc_w=False))
e(valu("v_add_f32", lt[1], v_l1[0], v_l1[1])); e(valu("v_add_f32", lt[2], v_l1[2], v_l1[3])); e(valu("v_add_f32", lt[1], lt[1], lt[2]))
e(valu("v_cmp_nge_f32", "vcc", s_t0, lt[1]))
rinv = [V(104 + 2 * i, 2) for i in range(4)]
for qb in range(4): e(valu("v_rcp_f32", rinv[qb][0], v_l1[qb]))
e(salu("s_mov_b64", s_pair, "vcc", scc_w=False))
post_issue(4)
for i in range(4):
    for qb in range(4):
        t = Of(2 * i, qb)
        for b in range(2):
            o = Of(2 * i + b, qb)
            for k in range(2): e(valu("v_pk_mul_f32", o[(2 * k, 2)], o[(2 * k, 2)], rinv[qb], mod="op_sel_hi:[1,0]"))
        if DUMP != "o":
            for b in range(2):
                o = Of(2 * i + b, qb)
                for k in range(2): e(valu("v_cvt_pk_bf16_f32", t[2 * b + k], o[2 * k], o[2 * k + 1]))
            if i == 0 and qb == 0:
                e(scmp("s_cmp_eq_u64", s_pair, 0)); e(raw("s_cbranch_scc1 L_nomark", rd=["scc"]))
                e(valu("v_mov_b32", t[0], hx(MARK)))
                em.label("L_nomark")
            if len(em.lgq) >= 12: em.wait(lg=em.lgq[-12])
            e(dswrite("ds_write_b128", v_wl, t, (i * 4 + qb) * 1024))
        post_issue(1)
post_issue(100)
if DUMP == "o": dump_regs([v_acc[i] for i in range(128)])
vm_ = V(56); vma = V(57)
e(valu("v_and_b32", vma, 3, v_lane)); e(valu("v_lshlrev_b32", vma, 14, vma))
e(salu("s_mov_b32", s_cnt, 0, scc_w=False))
em.label("L_pollH")
e(valu("v_readfirstlane_b32", s_t0, v_flag)); e(salu("s_mul_i32", s_hb, s_w, 14 * 4096, scc_w=False)); e(nop(1))
e(scmp("s_cmp_ge_u32", s_t0, 8)); e(raw("s_cbranch_scc1 L_pollH_done", rd=["scc"]))
e(salu("s_add_u32", s_cnt, s_cnt, 1)); e(scmp("s_cmp_ge_u32", s_cnt, 50000)); e(raw("s_cbranch_scc1 L_pollH_done", rd=["scc"]))
e(raw("s_sleep 4")); e(raw("buffer_load_dword %s, off, %s, %s sc1" % (v_flag, S_DBG, s_fo))); e(raw("s_waitcnt vmcnt(0)")); e(raw("s_branch L_pollH"))
em.label("L_pollH_done")
em.wait(lg0=True)
e(raw("s_barrier"))
stamp()
mk = e(dsread("ds_read_b32", vm_, vma, 0))
class FbCheck:
    def __call__(self):
        em.wait(lg=mk)
        e(valu("v_cmp_eq_u32", "vcc", hx(MARK), vm_))
        e(scmp("s_cmp_lg_u32", s_retry, 0)); e(raw("s_cbranch_scc1 L_nofb", rd=["scc"]))
        e(nop(1))
        e(raw("s_cbranch_vccnz L_fallback", rd=["vcc"]))
        em.label("L_nofb")
        return []

def s2_acc(m, u, qb):
    if m < 32: return v_acc[(((mh(m)[1] * 4 + u) * 4 + qb) * 4, 4)], mh(m)[0] == 0
    return a_F[((u * 4 + qb) * 4, 4)], m == 32
def bsel(m): return (m & 1) if XY else ((m >> 1) & 1)
def s2_B(m, qb):
    if m < 32: return v_B2[(bsel(m) * 16 + qb * 4, 4)]
    return hreg(m - 32, qb)
def oread(m, qb): return dsread("ds_read_b128", v_B2[(bsel(m) * 16 + qb * 4, 4)], v_lin, (mh(m)[0] * 4 + qb) * 1024)
extra = {-1: [(0, oread(0, qb), 1) for qb in range(4)] + [(0, FbCheck(), 0)]}
for m in range(1, 32):
    if XY:
        rr = [oread(m, qb) for qb in range(4)]
        for qb in range(4): extra.setdefault(4 * (m - 1) + (qb >> 1), []).append((2 + (qb & 1), rr[qb], 1))
        extra.setdefault(4 * m - 1, []).append((2, Wait(lg=rr), 0))
    elif (m & 1) == 0:
        for qb in range(4): extra.setdefault(4 * (m - 2) + 1 + qb, []).append((2, oread(m, qb), 1))
class LateWait:
    def __init__(self, f): self.f = f
    def __call__(self): return Wait(vm=self.f())
vxf = V(40, 8); vxa = V(48); vpoll = V(49); vfw = V(50)
vx, vy, vz = V(52), V(53), V(54)
save = em.out; em.out = []
for k in range(8): e(valu("v_accvgpr_read_b32", vxf[k], a_x[k]))
e(salu("s_mul_i32", s_t1, s_w, 448 * 1024, scc_w=False)); e(salu("s_lshl_b32", s_t3, s_cg, 7)); e(salu("s_add_u32", s_t1, s_t1, s_t3))
dma_voffs(v_dB, 1024, s_t1, True)
xaddr(vxa, vx)
e(valu("v_and_b32", V(51), 7, v_lane)); e(valu("v_lshlrev_b32", V(51), 2, V(51)))
e(salu("s_lshl_b32", s_t0, s_w, 12)); e(valu("v_add_u32", vfw, s_t0, v_lin))
e(salu("s_lshl_b32", s_t3, s_w, 4)); e(salu("s_add_u32", s_t3, s_t3, s_g)); e(salu("s_lshl_b32", s_t3, s_t3, 13))
early = em.out; em.out = save
class Seq:
    kind = "vmem"
    def __init__(self, l): self.l = l
    def __call__(self): return self.l
hld = {}; htok = {}
for kk in range(14):
    hld[kk] = [bload(hreg(kk, qb), v_lin, S_HC, s_hl, off=qb * 1024, mod="sc1") for qb in range(4)]
    htok[kk] = hld[kk][3]
    extra.setdefault(4 * (32 + kk) - 1, []).append((2, LateWait(lambda kk=kk: htok[kk]), 0))
hseq = []
for kk in range(14):
    for qb in range(4):
        hseq.append(Seq([salu("s_add_u32", s_hl, s_hb, kk * 4096), hld[kk][qb]]))
NPRE = int(os.environ.get("NPRE", "12")); HG0 = int(os.environ.get("HG0", "70")); HGS = int(os.environ.get("HGS", "4"))
for k in range(NPRE): extra.setdefault(HG0 + HGS * k, []).append((2, hseq[k], 1))
def sreg(ip, qb, odd=0): return v_acc[(((2 * ip + odd) * 4 + qb) * 4, 4)]
sp = []; spst = []
HPS = int(os.environ.get("HPS", "3")); hk = NPRE
for ip in range(4):
    for qb in range(4):
        t = sreg(ip, qb)
        for b in range(2):
            o = sreg(ip, qb, b)
            for k in range(2): sp.append(valu("v_cvt_pk_bf16_f32", t[2 * b + k], o[2 * k], o[2 * k + 1]))
        if (qb & 1) == 0: sp.append(salu("s_add_u32", s_t1, s_t3, (ip >> 1) * 65536 + (qb >> 1) * 4096))
        st = bstore(t, v_lin, S_SP, s_t1, off=(qb & 1) * 2048 + (ip & 1) * 1024, mod=os.environ.get("ST_MOD", "sc1").replace("plain", ""))
        if os.environ.get("ST_NONE") and not (ip == 3 and qb == 3): st = nop(0)
        sp.append(st); spst.append(st)
        if not (XY and ip < 2):
            for _ in range(HPS * (2 if XY else 1)):
                if hk < 48: sp.append(hseq[hk]); hk += 1
for k in range(hk, 48): sp.append(hseq[k])
for k in range(48, 56): extra.setdefault(140 + (k - 48), []).append((2, hseq[k], 1))
class SigS:
    def __call__(self):
        stamp(); em.wait(vm=spst[-1]); stamp(); e(raw("s_barrier"))
        e(scmp("s_cmp_lg_u32", s_w, 0)); e(raw("s_cbranch_scc1 L_sigS", rd=["scc"]))
        e(valu("v_mov_b32", v_t, 1))
        e(raw("s_mov_b64 exec, 1", "salu", wr=["exec"]))
        e(raw("buffer_store_dword %s, off, %s, %s sc1" % (v_t, S_FL, s_myfl)))
        e(raw("s_mov_b64 exec, -1", "salu", wr=["exec"]))
        em.label("L_sigS")
        return []
G_SIG = int(os.environ.get("G_SIG", "160")); G_POLL = int(os.environ.get("G_POLL", "172")); G_CHK = int(os.environ.get("G_CHK", "178"))
extra.setdefault(G_SIG, []).append((0, SigS(), 0))
vpa = V(51)
ptok = bload(vpoll, vpa, S_FL, s_t2, n=1, mod="sc1")
extra.setdefault(G_POLL, []).append((1, [salu("s_lshl_b32", s_t2, s_cq, 7)], 0))
extra.setdefault(G_POLL, []).append((2, ptok, 1))
def spl(gp, i): return sreg(gp >> 1, (gp & 1) * 2 + i, 1)
sl = []
class ChkS:
    def __call__(self):
        em.wait(vm=ptok)
        stamp()
        e(salu("s_mov_b32", s_cnt, 0, scc_w=False))
        em.label("L_pollS")
        e(valu("v_cmp_ne_u32", "vcc", 1, vpoll)); e(nop(2))
        e(raw("s_cbranch_vccz L_pollS_done", rd=["vcc"]))
        e(salu("s_add_u32", s_cnt, s_cnt, 1)); e(scmp("s_cmp_ge_u32", s_cnt, 50000)); e(raw("s_cbranch_scc1 L_pollS_done", rd=["scc"]))
        e(raw("buffer_load_dword %s, %s, %s, %s offen sc1" % (vpoll, vpa, S_FL, s_t2))); e(raw("s_waitcnt vmcnt(0)")); e(raw("s_branch L_pollS"))
        em.label("L_pollS_done")
        stamp()
        e(salu("s_lshl_b32", s_t0, s_cg, 16)); e(salu("s_lshl_b32", s_t1, s_w, 11)); e(salu("s_add_u32", s_t0, s_t0, s_t1))
        for gp in range(8):
            for i in range(2): sl.append(e(bload(spl(gp, i), v_lin, S_SPC, s_t0, off=i * 1024, mod="sc1")))
            if gp < 7: e(salu("s_add_u32", s_t0, s_t0, 8192))
        return []
if G_CHK < 184: extra.setdefault(G_CHK, []).append((0, ChkS(), 0))
if STAMP: extra.setdefault(128, []).append((0, Stamp(), 0))
class Diag:
    def __call__(self): diag(); return []
if DIAG: extra.setdefault(128, []).append((0, Diag(), 0))
class Paced(VStream):
    def has(self, g): return self.i < len(self.items) and g >= self.start and self.i <= (g - self.start + 1) * len(self.items) // max(1, self.end - self.start)
    def quota(self, g): return 99 if g >= self.start else 0
class Multi:
    def __init__(self, *l): self.l = list(l)
    def cur(self, g):
        for x in self.l:
            if x.i < len(x.items): return x
        return self.l[-1]
    def has(self, g): return self.cur(g).has(g)
    def peek(self): return self.cur(0).peek()
    def pop(self): return self.cur(0).pop()
    def quota(self, g): return self.cur(g).quota(g)
    def used_quota(self): self.cur(0).used_quota()
SP_END = int(os.environ.get("SP_END", "146"))
if XY:
    half = sp.index(spst[7]) + 1
    vs = Multi(VStream(early, 2, 40), Paced(sp[:half], int(os.environ.get("X_START", "67")), int(os.environ.get("X_END", "75"))), Paced(sp[half:], 130, SP_END))
else:
    vs = Multi(VStream(early, 2, 40), Paced(sp, 130, SP_END))
class ChkEarly:
    def __call__(self):
        assert vs.l[0].i == len(vs.l[0].items); return []
extra.setdefault(59, []).append((0, ChkEarly(), 0))
run_stream(46, s2_dma, dtok2, s2_acc, s2_B, extra, vs, pos0=P2, ring=v_ring2)
stamp(); diag()
e(nop(6))
for qb in range(4):
    for u in range(4):
        if len(em.lgq) >= 12: em.wait(lg=em.lgq[-12])
        e(dswrite("ds_write_b128", vfw, a_F[((u * 4 + qb) * 4, 4)], qb * 16384 + u * 1024))
if G_CHK >= 184: ChkS()()
em.wait(lg0=True)
e(raw("s_barrier"))
def frr(ws_, u): return sreg(ws_, u, 0)
for ws_ in range(4):
    for u in range(4):
        if len(em.lgq) >= 14: em.wait(lg=em.lgq[-14])
        e(dsread("ds_read_b128", frr(ws_, u), v_wl, ws_ * 4096 + u * 1024))
em.wait(lg0=True)
v_fr = V(96, 16); vE = V(64, 16); vs_ = V(80, 16)
for u in range(4):
    for k in range(2):
        e(valu("v_pk_add_f32", frr(0, u)[(2 * k, 2)], frr(0, u)[(2 * k, 2)], frr(1, u)[(2 * k, 2)]))
        e(valu("v_pk_add_f32", frr(2, u)[(2 * k, 2)], frr(2, u)[(2 * k, 2)], frr(3, u)[(2 * k, 2)]))
for u in range(4):
    for k in range(2): e(valu("v_pk_add_f32", v_fr[(4 * u + 2 * k, 2)], frr(0, u)[(2 * k, 2)], frr(2, u)[(2 * k, 2)]))
for k in range(16): e(valu("v_mul_f32", vE[k], hx(f2u(-math.log2(math.e))), v_fr[k]))
for k in range(16): e(valu("v_exp_f32", vE[k], vE[k]))
for k in range(16): e(valu("v_add_f32", vE[k], "1.0", vE[k]))
for k in range(16): e(valu("v_rcp_f32", vE[k], vE[k]))
for k in range(16): e(valu("v_mul_f32", v_fr[k], v_fr[k], vE[k]))
for k in range(8):
    e(valu("v_lshlrev_b32", vE[2 * k], 16, vxf[k])); e(valu("v_and_b32", vE[2 * k + 1], "0xffff0000", vxf[k]))
for gp in range(8):
    em.wait(vm=sl[2 * gp + 1])
    for k in range(8):
        src = spl(gp, k >> 2)[k & 3]
        if gp == 0:
            e(valu("v_lshlrev_b32", vs_[2 * k], 16, src)); e(valu("v_and_b32", vs_[2 * k + 1], "0xffff0000", src))
        else:
            e(valu("v_lshlrev_b32", V(112 + 2 * (k & 3)), 16, src)); e(valu("v_and_b32", V(113 + 2 * (k & 3)), "0xffff0000", src))
            e(valu("v_pk_add_f32", vs_[(2 * k, 2)], vs_[(2 * k, 2)], V(112 + 2 * (k & 3), 2)))
if DUMP == "fin": dump_regs([vs_[i] for i in range(16)] + [v_fr[i] for i in range(16)])
for k in range(8): e(valu("v_pk_fma_f32", vE[(2 * k, 2)], vs_[(2 * k, 2)], v_fr[(2 * k, 2)], vE[(2 * k, 2)]))
for k in range(8): e(valu("v_cvt_pk_bf16_f32", vxf[k], vE[2 * k], vE[2 * k + 1]))
for u in range(4): e(bstore(vxf[(2 * u, 2)], vxa, S_OUT, 0, off=32 * u))
stamp(); diag_out()
em.label("L_end")
e(raw("s_endpgm"))
main_end = len(em.out)

em.lgq, em.vmq, em.pend = [], [], {}
em.label("L_fallback")
e(raw("s_waitcnt vmcnt(0) lgkmcnt(0)")); em._retire(em.vmq, 0); em._retire(em.lgq, 0)
e(salu("s_mov_b32", s_retry, 1, scc_w=False))
e(salu("s_mov_b32", s_kK, 0, scc_w=False))
fm = [V(40 + i) for i in range(4)]
for i in range(4): e(valu("v_mov_b32", fm[i], "0xff800000"))
em.label("L_fb_loop")
e(raw("s_barrier"))
e(salu("s_add_u32", "m0", s_m0b, 4 * 16384)); e(nop(0))
for j in range(4): e(dma(v_kd[j], S_K, s_kK, j * 1024))
em.wait(vm0=True)
e(raw("s_barrier"))
for kb in range(4):
    rr = [e(dsread("ds_read_b128", fr(ds), v_ka[ds], kb * 4096)) for ds in range(4)]
    em.wait(lg0=True)
    for ds in range(4):
        for qb in range(4):
            d = v_S[0][(qb * 4, 4)]
            e(mfma(d, fr(ds), Qf(qb, ds), 0 if ds == 0 else d))
    e(nop(7))
    for qb in range(4):
        e(valu("v_max3_f32", fm[qb], fm[qb], v_S[0][qb * 4], v_S[0][qb * 4 + 1])); e(valu("v_max3_f32", fm[qb], fm[qb], v_S[0][qb * 4 + 2], v_S[0][qb * 4 + 3]))
    e(nop(2))
e(salu("s_add_u32", s_kK, s_kK, 16384)); e(scmp("s_cmp_lt_u32", s_kK, 524288)); e(raw("s_cbranch_scc1 L_fb_loop", rd=["scc"]))
red4("v_max_f32", fm, [V(44 + i) for i in range(4)])
for qb in range(4):
    for k in range(4): e(valu("v_sub_f32", v_negm[qb * 4 + k], 0, fm[qb]))
e(raw("s_barrier"))
for m in (64, 65, 66):
    sa, dm = s1_dma(m); e(sa)
    for d in dm: e(d)
e(raw("s_branch L_att_start"))
em.label("L_code_end")
e(raw("s_endpgm"))

probs = check_hazards(em.out, "main") + loop_probs
for p in probs: print("; HAZARD", p, file=sys.stderr)
assert not probs

hdr = open(os.path.join(os.path.dirname(os.path.abspath(__file__)), "header.txt")).read()
print(hdr.rstrip())
print("; @launch grid=(256,1,1) block=(256,1,1) lds=163840")
print('.amdgcn_target "amdgcn-amd-amdhsa--gfx950"\n.text\n.globl %s\n.p2align 8\n.type %s,@function\n%s:' % (KN, KN, KN))
print(em.text())
print('.section .rodata,"a"\n.p2align 6\n.amdhsa_kernel %s' % KN)
print("  .amdhsa_next_free_vgpr 512\n  .amdhsa_next_free_sgpr 102\n  .amdhsa_accum_offset 256\n  .amdhsa_group_segment_fixed_size 0\n  .amdhsa_kernarg_size 96\n  .amdhsa_user_sgpr_count 2\n  .amdhsa_user_sgpr_kernarg_segment_ptr 1\n  .amdhsa_system_sgpr_workgroup_id_x 1\n.end_amdhsa_kernel")
```

```python
import sys, os, math, struct
from asmgen import *

KN = "recurrent_scan__gqa_block_cached__geglu_ffn__prompt_kernel"
DUMP = os.environ.get("DUMP", "")
STAMP = int(os.environ.get("STAMP", "0"))
GEL_END = int(os.environ.get("GEL_END", "228")); GEL_EXTRA = int(os.environ.get("GEL_EXTRA", "360"))

def f2u(x): return struct.unpack("<I", struct.pack("<f", x))[0]
def hx(x): return "0x%x" % (x & 0xffffffff)

S_X, S_K, S_V, S_WQ, S_WO, S_WG, S_WU, S_WD, S_OUT, S_DBG, S_H, S_SP = [S(4 + 4 * i, 4) for i in range(12)]
s_g, s_qb, s_w = S(52), S(53), S(54)
s_t0, s_t1, s_t2, s_t3 = S(55), S(56), S(57), S(58)
s_m0b = S(59)
s_off = S(60)
s_cnt = S(61)
s_kK, s_kV = S(62), S(63)
s_retry = S(64)
s_h0, s_h1 = S(65), S(66)
s_hl = S(67); s_hb = S(78); s_myfl = S(79)
s_ka = S(68, 16); s_kb = S(84, 8)
s_pair = S(92, 2); s_pair2 = S(94, 2)
S_DMP = S(96, 4)
s_cq, s_cg = S(76), S(77)
S_HC = S(80, 4)
S_SPC = S(84, 4)
S_XC = S(88, 4)
s_st = S(68, 4)

v_tid, v_lane, v_lin, v_t = V(0), V(1), V(2), V(3)
v_tr = [V(4, 4), V(8, 4)]
v_dA, v_dB = V(12, 4), V(16, 4)
v_ka = V(20, 4); v_va = V(24, 8); v_kd = V(32, 4); v_vd = V(36, 2)
v_wl = V(38)
v_c = V(39)
v_l0, v_l1 = V(40, 4), V(44, 4)
v_lsave = V(16, 4)
v_negm = V(48, 16)
v_S = [V(64, 32), V(96, 32)]
v_acc = V(128, 128)
a_ring = A(128, 32)
a_B = A(160, 32)
a_Q = A(0, 64)
a_F = A(0, 64)
a_x = A(248, 8)

RING = 65536
MARK = 0x7fc17fc1
WS_SP = 8 << 20
WS_DUMP = 32 << 20
WS_FL = (7 << 20) + (512 << 10)
S_FL = S(4, 4)

em = Em()
e = em.e

def srd(dst, lo, hi, size, off_s=None):
    if off_s is None:
        e(salu("s_mov_b32", dst[0], lo, scc_w=False)); e(salu("s_mov_b32", dst[1], hi, scc_w=False))
    else:
        e(salu("s_add_u32", dst[0], lo, off_s)); e(salu("s_addc_u32", dst[1], hi, 0, scc_r=True))
    e(salu("s_mov_b32", dst[2], hx(size), scc_w=False)); e(salu("s_mov_b32", dst[3], "0x20000", scc_w=False))

DIAG = int(os.environ.get("DIAG", "0"))
HC_OFF = 128
diag_regs = [S(100, 2), S(70, 2), S(72, 2), S(74, 2), S(96, 2), S(98, 2), S(68, 2)] if DIAG == 1 else [S(100, 2), S(96, 2), S(98, 2), S(94, 2), S(70, 2), S(72, 2), S(74, 2), S(68, 2)]
diag_n = [0]
def diag(which=1, last=False):
    if not DIAG or (which != DIAG and which != 0): return
    k = diag_n[0]; diag_n[0] += 1
    e(raw("%s %s" % ("s_memtime" if (os.environ.get("CYC") and not last) else "s_memrealtime", diag_regs[k]), "other", wr=[diag_regs[k]]))
    if k > 0: e(raw("s_waitcnt lgkmcnt(0)", "wait")); em._retire(em.lgq, 0)
AMP = os.environ.get("AMP")
def diag_out():
    if not DIAG: return
    diag(0, last=True)
    if AMP:
        k = int(AMP); last = diag_regs[diag_n[0] - 1]
        e(salu("s_sub_u32", s_t0, diag_regs[k][0], diag_regs[int(os.environ.get("AMP0", "0"))][0]))
        if os.environ.get("CYC"): e(salu("s_lshr_b32", s_t0, s_t0, 2))
        else: e(salu("s_lshl_b32", s_t0, s_t0, 2))
        em.label("L_amp")
        e(raw("s_memrealtime s[56:57]")); e(raw("s_waitcnt lgkmcnt(0)"))
        e(salu("s_sub_u32", s_t1, s_t1, last[0])); e(scmp("s_cmp_lt_u32", s_t1, s_t0)); e(raw("s_cbranch_scc1 L_amp", rd=["scc"]))
        return
    e(scmp("s_cmp_lg_u32", s_w, 0)); e(raw("s_cbranch_scc1 L_end", rd=["scc"]))
    e(raw("s_mov_b64 exec, 1", "salu", wr=["exec"]))
    e(salu("s_not_b32", s_t0, diag_regs[0][0]))
    for k in range(diag_n[0]):
        e(valu("v_mov_b32", V(4 + k), s_t0 if k == 0 else diag_regs[k][0]))
        e(raw("buffer_atomic_umax %s, off, %s, 0 offset:%d sc1" % (V(4 + k), S_DBG, 4 * k)))
    e(valu("v_mov_b32", V(12), diag_regs[0][0]))
    e(raw("buffer_atomic_umax %s, off, %s, 0 offset:%d sc1" % (V(12), S_DBG, 4 * 9)))
stamp_n = [0]
def stamp():
    if not STAMP: return
    k = stamp_n[0]; stamp_n[0] += 1
    e(raw("s_memtime %s" % S(68, 2), "other", wr=[S(68, 2)]))
    e(raw("s_memrealtime %s" % S(70, 2), "other", wr=[S(70, 2)]))
    e(raw("s_waitcnt lgkmcnt(0)", "wait")); em._retire(em.lgq, 0)
    for i in range(4): e(valu("v_writelane_b32", v_c, S(68 + i), i, rmw=True))
    e(salu("s_lshl_b32", S(72), S(2), 2)); e(salu("s_add_u32", S(72), S(72), s_w)); e(salu("s_lshl_b32", S(72), S(72), 9))
    e(salu("s_mov_b64", S(74, 2), "exec", scc_w=False)); e(raw("s_mov_b64 exec, 15", "salu", wr=["exec"]))
    e(valu("v_lshlrev_b32", v_t, 2, v_lane))
    e(bstore(v_c, v_t, S_DMP, S(72), off=k * 16))
    e(raw("s_mov_b64 exec, %s" % S(74, 2), "salu", wr=["exec"]))
    e(valu("v_lshlrev_b32", v_t, 7, v_lane))

def dump_regs(regs, finish=True):
    em.wait(lg0=True, vm0=True)
    e(nop(7)); e(nop(7))
    n = len(regs)
    e(salu("s_lshl_b32", s_t0, S(2), 2)); e(salu("s_add_u32", s_t0, s_t0, s_w)); e(salu("s_mul_i32", s_t0, s_t0, n * 256, scc_w=False))
    e(valu("v_lshlrev_b32", v_t, 2, v_lane))
    for k, r in enumerate(regs):
        e(bstore(r, v_t, S_DMP, s_t0, off=0))
        e(salu("s_add_u32", s_t0, s_t0, 256))
        if k % 32 == 31: em.wait(vm0=True)
    em.wait(vm0=True)
    if finish: e(raw("s_endpgm"))

def red4(op, x, tmp):
    for sw in ("v_permlane32_swap_b32", "v_permlane16_swap_b32"):
        for a, t in zip(x, tmp): e(valu("v_mov_b32", t, a))
        if len(x) < 3: e(nop(1))
        for a, t in zip(x, tmp): e(valu(sw, a, t))
        for a, t in zip(x, tmp): e(valu(op, a, a, t))

e(scmp("s_cmp_ge_u32", S(2), 256)); e(raw("s_cbranch_scc1 L_end", rd=["scc"]))
diag(0)
i0 = e(I("s_load_dwordx16 %s, s[0:1], 0" % s_ka, "smem", wr=s_ka.regs()))
i1 = e(I("s_load_dwordx8 %s, s[0:1], 64" % s_kb, "smem", wr=s_kb.regs()))
vq, vG, vr, vc_, vx, vy, vz = [V(40 + i) for i in range(7)]
e(raw("s_getpc_b64 %s" % s_pair2, "salu", wr=[s_pair2]))
em.label("L_pc0")
CT0 = int(os.environ.get("CT0", "64"))
if CT0:
    e(valu("v_sub_u32", V(55), 255, v_tid)); e(valu("v_cmp_gt_u32", "vcc", CT0, V(55))); e(valu("v_lshlrev_b32", V(55), 7, V(55))); e(nop(0))
    e(raw("s_and_saveexec_b64 s[4:5], vcc", "salu", wr=["exec"], rd=["vcc"])); e(raw("s_cbranch_execz L_ct0"))
    e(raw("global_load_dword v55, v55, %s" % s_pair2))
    em.label("L_ct0")
    e(raw("s_mov_b64 exec, -1", "salu", wr=["exec"]))
e(salu("s_and_b32", s_g, S(2), 7)); e(salu("s_lshr_b32", s_qb, S(2), 3))
e(valu("v_and_b32", v_lane, 63, v_tid))
e(valu("v_lshrrev_b32", v_t, 6, v_tid))
e(valu("v_lshlrev_b32", v_lin, 4, v_lane))
e(valu("v_readfirstlane_b32", s_w, v_t))
e(valu("v_and_b32", vq, 15, v_lane)); e(valu("v_lshrrev_b32", vG, 4, v_lane))
vxo = V(47)
e(valu("v_lshl_add_u32", vxo, v_t, 4, vq)); e(valu("v_lshlrev_b32", vxo, 10, vxo)); e(valu("v_lshl_add_u32", vxo, vG, 4, vxo))
vwg, vwq, vcw = V(52), V(53), V(54)
e(salu("s_mul_i32", s_t1, s_g, 448, scc_w=False)); e(salu("s_and_b32", s_t1, s_t1, hx(~127)))
e(salu("s_and_b32", s_t2, s_w, 1)); e(salu("s_lshl_b32", s_t3, s_qb, 1)); e(salu("s_add_u32", s_t2, s_t2, s_t3))
e(salu("s_mul_i32", s_t2, s_t2, 8 * 3584, scc_w=False)); e(salu("s_add_u32", s_t1, s_t1, s_t2))
e(valu("v_lshrrev_b32", vx, 2, v_lane)); e(valu("v_mul_u32_u24", vx, 3584, vx)); e(valu("v_and_b32", vz, 3, v_lane)); e(valu("v_lshl_add_u32", vx, vz, 7, vx))
e(valu("v_add_u32", vwg, s_t1, vx))
e(salu("s_lshl_b32", s_t2, s_qb, 2)); e(salu("s_add_u32", s_t2, s_t2, s_w)); e(salu("s_lshl_b32", s_t3, s_t2, 8))
e(valu("v_lshlrev_b32", vcw, 7, v_lane)); e(valu("v_add_u32", vcw, s_t3, vcw))
e(salu("s_lshl_b32", s_t0, s_qb, 16))
em.wait(lg0=True)
diag(2)
srd(S_X, s_ka[0], s_ka[1], 65536, s_t0)
v_xp = V(64, 64)
XFIRST = int(os.environ.get("XFIRST", "12"))
xl = [bload(v_xp[(4 * ks, 4)], vxo, S_X, 0, off=64 * ks) for ks in range(16)]
for ks in range(XFIRST): e(xl[ks])
e(scmp("s_cmp_lt_u32", s_w, 2)); e(salu("s_cselect_b64", s_pair, s_ka[(12, 2)], s_ka[(14, 2)], scc_w=False, scc_r=True))
e(raw("s_mov_b64 exec, 0xffffffff", "salu", wr=["exec"]))
e(I("global_load_dword %s, %s, %s" % (V(48), vwg, s_pair), "vmem", rd=vwg.regs() + s_pair.regs(), wr=V(48).regs()))
e(raw("s_mov_b64 exec, 3", "salu", wr=["exec"]))
e(I("global_load_dword %s, %s, %s" % (V(49), vcw, s_pair2), "vmem", rd=vcw.regs() + s_pair2.regs(), wr=V(49).regs()))
e(raw("s_mov_b64 exec, -1", "salu", wr=["exec"]))
e(salu("s_lshl_b32", s_t2, s_t2, 15)); e(salu("s_lshl_b32", s_t3, s_g, 10)); e(salu("s_add_u32", s_t2, s_t2, s_t3))
e(valu("v_lshrrev_b32", vx, 3, v_lane)); e(valu("v_lshlrev_b32", vx, 13, vx)); e(valu("v_and_b32", vz, 7, v_lane)); e(valu("v_lshl_add_u32", vx, vz, 7, vx))
e(valu("v_add_u32", vwq, s_t2, vx))
e(salu("s_lshr_b32", s_t2, s_qb, 3)); e(salu("s_lshl_b32", s_t3, s_g, 2)); e(salu("s_add_u32", s_t2, s_t2, s_t3))
e(salu("s_lshl_b32", s_t0, s_t2, 16))
srd(S_OUT, s_kb[2], s_kb[3], 65536, s_t0)
e(salu("s_lshl_b32", s_t1, s_g, 19))
srd(S_K, s_ka[2], s_ka[3], 524288, s_t1)
srd(S_V, s_ka[4], s_ka[5], 524288, s_t1)
srd(S_WO, s_ka[8], s_ka[9], 524288, s_t1)
srd(S_WQ, s_ka[6], s_ka[7], 4 << 20)
srd(S_WG, s_ka[12], s_ka[13], 1835008)
srd(S_WU, s_ka[14], s_ka[15], 1835008)
srd(S_WD, s_kb[0], s_kb[1], 1835008)
srd(S_DBG, s_kb[4], s_kb[5], 256)
e(salu("s_mul_i32", s_t1, s_qb, 229376, scc_w=False))
srd(S_H, s_kb[6], s_kb[7], 229376, s_t1)
e(salu("s_lshl_b32", s_t1, s_qb, 19)); e(salu("s_add_u32", s_t1, s_t1, hx(WS_SP)))
srd(S_SP, s_kb[6], s_kb[7], 524288, s_t1)
if DUMP or STAMP:
    e(salu("s_mov_b32", s_t1, hx(WS_DUMP), scc_w=False))
    srd(S_DMP, s_kb[6], s_kb[7], 200 << 20, s_t1)
e(salu("s_mov_b64", s_pair, S(90, 2), scc_w=False))
e(salu("s_lshl_b32", s_t0, s_t2, 16))
srd(S_XC, s_ka[0], s_ka[1], 65536, s_t0)
e(salu("s_mul_i32", s_t1, s_t2, 229376, scc_w=False))
srd(S_HC, s_pair[0], s_pair[1], 229376, s_t1)
e(salu("s_lshl_b32", s_t1, s_t2, 19)); e(salu("s_add_u32", s_t1, s_t1, hx(WS_SP)))
srd(S_SPC, s_pair[0], s_pair[1], 524288, s_t1)
e(salu("s_mov_b32", s_cq, s_t2, scc_w=False)); e(salu("s_and_b32", s_cg, s_qb, 7))
e(salu("s_lshl_b32", s_myfl, s_qb, 7)); e(salu("s_lshl_b32", s_t1, s_g, 2)); e(salu("s_add_u32", s_myfl, s_myfl, s_t1))
e(salu("s_lshl_b32", s_m0b, s_w, 12)); e(salu("s_add_u32", s_m0b, s_m0b, RING))
e(salu("s_and_b32", s_t1, s_g, 1)); e(salu("s_lshl_b32", s_t1, s_t1, 2)); e(salu("s_add_u32", s_t1, s_t1, s_w))
e(scmp("s_cmp_eq_u32", s_w, 3)); e(salu("s_cselect_b32", s_t1, 3, s_t1, scc_w=False, scc_r=True))
e(salu("s_lshr_b32", s_t2, s_g, 1)); e(salu("s_mul_i32", s_t2, s_t2, 7, scc_w=False)); e(salu("s_add_u32", s_t1, s_t1, s_t2))
e(salu("s_lshl_b32", s_h0, s_t1, 13)); e(salu("s_add_u32", s_h1, s_h0, 4096))
e(salu("s_lshl_b32", s_t1, s_t1, 7))
e(salu("s_lshl_b32", s_t2, s_g, 2)); e(salu("s_add_u32", s_t2, s_t2, s_w)); e(salu("s_lshl_b32", s_t2, s_t2, 8))

def dma_voffs(dst, stride, colbase_s, perm):
    for j in range(4):
        e(valu("v_bfe_u32", vx, v_lane, 1, 2)); e(valu("v_bfe_u32", vy, v_lane, 4, 1))
        e(valu("v_xor_b32", vx, vx, vy))
        if j & 1: e(valu("v_xor_b32", vx, 2, vx))
        e(valu("v_and_b32", vy, 1, v_lane)); e(valu("v_lshlrev_b32", vy, 4, vy)); e(valu("v_lshl_add_u32", vx, vx, 5, vy))
        if not perm:
            e(valu("v_lshrrev_b32", vy, 3, v_lane)); rowadd = 8 * j
        else:
            e(valu("v_bfe_u32", vy, v_lane, 3, 2)); e(valu("v_bfe_u32", vz, v_lane, 5, 1)); e(valu("v_lshl_add_u32", vy, vz, 4, vy)); rowadd = 4 * j
        e(valu("v_mul_u32_u24", vy, stride, vy))
        e(valu("v_add3_u32", vx, vx, vy, colbase_s))
        e(valu("v_add_u32", dst[j], rowadd * stride - j * 1024, vx))

dma_voffs(v_dA, 3584, s_t1, False)
dma_voffs(v_dB, 8192, s_t2, False)

def m0set(p): return salu("s_add_u32", "m0", s_m0b, p * 16384)
def s1_dma(m):
    p = m % 6
    if m < 32:
        s, h = m >> 1, m & 1
        return [m0set(p), salu("s_mov_b32", s_off, s * 32 * 3584, scc_w=False)], [dma(v_dA[j], S_WU if h else S_WG, s_off, j * 1024) for j in range(4)]
    if m < 64:
        s, h = (m - 32) >> 1, m & 1
        return [m0set(p), salu("s_mov_b32", s_off, s * 32 * 8192 + 128 * h, scc_w=False)], [dma(v_dB[j], S_WQ, s_off, j * 1024) for j in range(4)]
    if m == 64:
        return [m0set(p), salu("s_mov_b32", s_off, 0, scc_w=False)], [dma(v_kd[j], S_K, s_off, j * 1024) for j in range(4)]
    if m == 65:
        return [m0set(p), salu("s_mov_b32", s_off, 8192, scc_w=False)], [dma(v_kd[j], S_K, s_off, j * 1024) for j in range(4)]
    if m == 66:
        return [m0set(p), salu("s_mov_b32", s_off, 0, scc_w=False)], [dma(v_vd[j & 1], S_V, s_off, j * 1024) for j in range(4)]
    return None
dtok = {}
ln_v = []
for m in range(6):
    sa, dm = s1_dma(m)
    ln_v.append(sa); ln_v += dm
    dtok[m] = dm[3]
def xaddr(dst, tmp):
    e(valu("v_and_b32", dst, 15, v_lane)); e(salu("s_lshl_b32", s_t0, s_w, 4)); e(valu("v_add_u32", dst, s_t0, dst)); e(valu("v_lshlrev_b32", dst, 10, dst))
    e(valu("v_lshrrev_b32", tmp, 4, v_lane)); e(valu("v_lshl_add_u32", dst, tmp, 3, dst)); e(salu("s_lshl_b32", s_t0, s_cg, 7)); e(valu("v_add_u32", dst, s_t0, dst))
vxs, vzero = V(50), V(51)
xaddr(vxs, vy)
e(valu("v_mov_b32", vzero, 0))
ln_v += [bload(a_x[(2 * u, 2)], vxs, S_XC, 0, off=32 * u, n=2) for u in range(4)]
ln_v.append([raw("s_mov_b64 exec, 1", "salu", wr=["exec"]), bstore(vzero, None, S_FL, s_myfl, mod="sc1"), raw("s_mov_b64 exec, -1", "salu", wr=["exec"])])
ln_v.append([raw("s_mov_b64 exec, 0xffffffff", "salu", wr=["exec"]), bload(V(46), vwq, S_WQ, 0, n=1), raw("s_mov_b64 exec, -1", "salu", wr=["exec"])])
LNPRE = int(os.environ.get("LNPRE", "0"))
lv = [0]
def ln_issue(n=1):
    k = 0
    while k < n and lv[0] < len(ln_v):
        it = ln_v[lv[0]]; lv[0] += 1
        e(it)
        if not isinstance(it, list): k += 1
e(valu("v_bfe_u32", vr, v_lane, 2, 2)); e(valu("v_and_b32", vc_, 3, v_lane))
e(valu("v_lshlrev_b32", vx, 10, vG)); e(valu("v_lshl_add_u32", vx, vr, 7, vx)); e(valu("v_lshl_add_u32", vx, vc_, 3, vx)); e(valu("v_add_u32", vx, s_m0b, vx))
e(valu("v_lshrrev_b32", vy, 1, vr)); e(valu("v_and_b32", vz, 1, vG)); e(valu("v_lshl_add_u32", vy, vz, 1, vy))
for u in range(4):
    e(valu("v_xor_b32", vz, u, vy)); e(valu("v_lshl_add_u32", v_tr[0][u], vz, 5, vx)); e(valu("v_add_u32", v_tr[1][u], 3 * 16384, v_tr[0][u]))
e(valu("v_xor_b32", vy, vG, vq))
for ds in range(4):
    e(valu("v_xor_b32", vz, 4 * ds, vy)); e(valu("v_lshlrev_b32", vz, 4, vz)); e(valu("v_lshl_add_u32", vz, vq, 8, vz)); e(valu("v_add_u32", v_ka[ds], RING + 4 * 16384, vz))
e(valu("v_lshl_add_u32", vx, vG, 2, vr)); e(valu("v_and_b32", vy, 7, vx)); e(valu("v_lshlrev_b32", vx, 8, vx)); e(valu("v_lshl_add_u32", vx, vc_, 3, vx)); e(valu("v_add_u32", vx, RING, vx))
for db in range(8):
    e(valu("v_xor_b32", vz, db, vy)); e(valu("v_lshl_add_u32", v_va[db], vz, 5, vx))
e(salu("s_lshl_b32", s_t1, s_w, 12))
e(valu("v_lshlrev_b32", vx, 8, vG)); e(valu("v_add_u32", vx, s_t1, vx))
for j in range(4):
    e(valu("v_add_u32", vy, 4 * j, vG)); e(valu("v_xor_b32", vy, vy, vq)); e(valu("v_lshl_add_u32", v_kd[j], vy, 4, vx))
e(valu("v_and_b32", vz, 1, v_lane)); e(valu("v_lshl_add_u32", vx, vz, 4, vx))
for j in range(2):
    e(valu("v_add_u32", vy, 4 * j, vG)); e(valu("v_lshrrev_b32", vz, 1, vq)); e(valu("v_xor_b32", vy, vy, vz)); e(valu("v_lshl_add_u32", v_vd[j], vy, 5, vx))
e(salu("s_lshl_b32", s_t1, s_w, 14)); e(valu("v_add_u32", v_wl, s_t1, v_lin))
e(salu("s_mov_b32", s_retry, 0, scc_w=False))
for ks in range(XFIRST, 16): e(xl[ks])
e(salu("s_mov_b32", s_t1, hx(WS_FL), scc_w=False))
srd(S_FL, s_pair[0], s_pair[1], 4096, s_t1)
ln_issue(LNPRE)
stamp()

v_f = V(128, 128)
acc = [V(56, 2), V(58, 2), V(60, 2), V(62, 2)]
diag(2)
for ks in range(16):
    em.wait(vm=xl[ks])
    if ks == 15: diag(2)
    for k in range(4):
        p = 4 * ks + k
        e(valu("v_lshlrev_b32", v_f[2 * p], 16, v_xp[p])); e(valu("v_and_b32", v_f[2 * p + 1], "0xffff0000", v_xp[p]))
    for k in range(4):
        p = 4 * ks + k
        if ks == 0: e(valu("v_mov_b64", acc[k], v_f[(2 * p, 2)]))
        else: e(valu("v_pk_add_f32", acc[k], acc[k], v_f[(2 * p, 2)]))
if STAMP == 3: stamp()
ln_issue(int(os.environ.get("LN_FIRST", "12")))
diag(2)
if STAMP == 3: stamp()
e(valu("v_pk_add_f32", acc[0], acc[0], acc[1])); e(valu("v_pk_add_f32", acc[2], acc[2], acc[3])); e(valu("v_pk_add_f32", acc[0], acc[0], acc[2]))
vsum, vtmp, vmb, vdm = V(40), V(41), V(42), V(43)
e(valu("v_add_f32", vsum, acc[0][0], acc[0][1]))
red4("v_add_f32", [vsum], [vtmp])
e(valu("v_mul_f32", vsum, hx(f2u(1.0 / 512)), vsum))
e(valu("v_cvt_pk_bf16_f32", vmb, vsum, vsum)); e(valu("v_lshlrev_b32", vmb, 16, vmb))
e(valu("v_sub_f32", vdm, vsum, vmb))
vneg = V(56, 2)
e(valu("v_sub_f32", vneg[0], 0, vmb))
acc2 = [V(58, 2), V(60, 2), V(62, 2)]
for p in range(64):
    e(valu("v_pk_add_f32", v_f[(2 * p, 2)], v_f[(2 * p, 2)], vneg, mod="op_sel_hi:[1,0]"))
for p in range(64):
    a_ = acc2[p % 3]
    if p < 3: e(valu("v_pk_mul_f32", a_, v_f[(2 * p, 2)], v_f[(2 * p, 2)]))
    else: e(valu("v_pk_fma_f32", a_, v_f[(2 * p, 2)], v_f[(2 * p, 2)], a_))
if STAMP == 3: stamp()
e(valu("v_pk_add_f32", acc2[0], acc2[0], acc2[1])); e(valu("v_pk_add_f32", acc2[0], acc2[0], acc2[2]))
e(valu("v_add_f32", vsum, acc2[0][0], acc2[0][1]))
red4("v_add_f32", [vsum], [vtmp])
e(valu("v_mul_f32", vsum, hx(f2u(1.0 / 512)), vsum))
e(valu("v_fma_f32", vsum, "-" + str(vdm), vdm, vsum, extra_rd=vdm.regs()))
e(valu("v_max_f32", vsum, 0, vsum))
e(valu("v_cvt_pk_bf16_f32", vsum, vsum, vsum)); e(valu("v_lshlrev_b32", vsum, 16, vsum))
e(valu("v_add_f32", vsum, hx(f2u(1e-5)), vsum))
e(valu("v_cvt_pk_bf16_f32", vsum, vsum, vsum)); e(valu("v_lshlrev_b32", vsum, 16, vsum))
e(valu("v_sqrt_f32", vsum, vsum)); e(nop(0))
e(valu("v_cvt_pk_bf16_f32", vsum, vsum, vsum)); e(valu("v_lshlrev_b32", vsum, 16, vsum))
e(valu("v_rcp_f32", vneg[0], vsum)); e(nop(0))
for ks in range(16):
    for k in range(4):
        p = 4 * ks + k
        e(valu("v_pk_mul_f32", v_f[(2 * p, 2)], v_f[(2 * p, 2)], vneg, mod="op_sel_hi:[1,0]"))
    for k in range(4):
        p = 4 * ks + k
        e(valu("v_cvt_pk_bf16_f32", v_xp[p], v_f[2 * p], v_f[2 * p + 1]))
    e(dswrite("ds_write_b128", v_wl, v_xp[(4 * ks, 4)], ks * 1024))
ln_issue(100)
if STAMP == 3: stamp()
if DUMP == "ln": dump_regs([v_xp[i] for i in range(64)])
em.wait(lg0=True)
e(raw("s_barrier"))
stamp(); diag(); diag(2)

def run_stream(NH, dmaf, dtok, accf, Bf, extra, vstream, LOOK=6, nq=4, pos0=0, ring=a_ring):
    NG = 4 * NH
    rtok = {}
    def reads(g):
        m, u = g >> 2, g & 3
        p = (m + pos0) % 6
        d = ring[((g % 8) * 4, 4)]
        r = [dsread("ds_read_b64_tr_b16", d[(2 * h2, 2)], v_tr[p // 3][u], (p % 3) * 16384 + h2 * 512) for h2 in range(2)]
        rtok[g] = r[1]
        return r
    em.wait(vm=dtok[0])
    for g in range(3): e(reads(g))
    for pre in extra.get(-1, []): e(pre[1])
    em.wait(lg0=True)
    vi = 0
    for g in range(NG):
        m, u = g >> 2, g & 3
        gaps = [[], [], [], []]; cap = [2, 2, 2, 2]
        if g + 3 < NG:
            if (g + 3) & 3 == 0: gaps[0].append(Wait(vm=dtok[(g + 3) >> 2]))
            r = reads(g + 3); gaps[0].append(r[0]); gaps[1].append(r[1]); cap[0] -= 1; cap[1] -= 1
        md, j = (g + 4 * LOOK - 4) >> 2, (g + 4 * LOOK - 4) & 3
        if md >= LOOK:
            if j == 0: cur = dmaf(md)
            if cur is not None:
                if j == 0: gaps[2] += cur[0]
                items = cur[1][j::4]
                for it in items: gaps[3].append(it); cap[3] -= 1
                if j == 3: dtok[md] = cur[1][3]
        for (gp, it, cost) in extra.get(g, []):
            gaps[gp].append(it); cap[gp] -= cost
        if g + 1 < NG: gaps[3].insert(0, Wait(lg=rtok[g + 1]))
        d = ring[((g % 8) * 4, 4)]
        for qb in range(nq):
            ac, first = accf(m, u, qb)
            e(mfma(ac, d, Bf(m, qb), 0 if first else ac))
            for it in gaps[qb]: e(it)
            c = cap[qb]
            quota = vstream.quota(g) if vstream else 0
            while vstream and vstream.has(g) and (c > 0 or quota > 0):
                it = vstream.peek()
                cost = 2 if it.kind == "trans" else 1
                if cost > c and quota <= 0: break
                if cost > c: quota -= 1; vstream.used_quota()
                e(vstream.pop()); c -= cost
    if vstream:
        while vstream.has(10 ** 9): e(vstream.pop())

class VStream:
    def __init__(self, items, start, end, extra_total=0):
        self.items = items; self.i = 0; self.start = start; self.end = end
        self.extra_total = extra_total; self.used = 0
    def has(self, g): return self.i < len(self.items) and g >= self.start
    def peek(self): return self.items[self.i]
    def pop(self): self.i += 1; return self.items[self.i - 1]
    def quota(self, g):
        if g < self.start: return 0
        allowed = (g - self.start + 1) * self.extra_total // max(1, self.end - self.start)
        return 1 if allowed > self.used else 0
    def used_quota(self): self.used += 1

def s1_acc(m, u, qb):
    h = m & 1
    idx = ((h * 4 + u) * 4 + qb) * 4
    if m < 32: return A(idx, 4), m < 2
    return v_acc[(idx, 4)], m < 34
def s1_B(m, qb): return a_B[(((m >> 1) & 1) * 16 + qb * 4, 4)]
extra = {}
btok = {}
def bread(s, qb): return dsread("ds_read_b128", a_B[((s & 1) * 16 + qb * 4, 4)], v_lin, (qb * 16 + (s % 16)) * 1024)
extra[-1] = [(0, bread(0, qb), 1) for qb in range(4)]
for s in range(1, 32):
    for qb in range(4):
        extra.setdefault(8 * (s - 1) + 1 + qb, []).append((2, bread(s, qb), 1))
C0 = -2.0 * math.sqrt(2.0 / math.pi) * math.log2(math.e); C1 = C0 * 0.044715
vc0, vc1 = V(40), V(41)
gel = [valu("v_mov_b32", vc0, hx(f2u(C0))), valu("v_mov_b32", vc1, hx(f2u(C1)))]
hst = []
tb = 0
for i in range(2):
    for qb in range(4):
        pk = V(44 + 4 * (tb % 4), 4); tb += 1
        for b in range(2):
            u = 2 * i + b
            T = [V(64 + 16 * ((2 * tb + b) % 4) + k) for k in range(16)]
            G_, U_, X_ = T[0:4], T[4:8], T[8:12]
            ga = lambda r: A((u * 4 + qb) * 4 + r); ua = lambda r: A(((4 + u) * 4 + qb) * 4 + r)
            for r in range(4): gel.append(valu("v_accvgpr_read_b32", G_[r], ga(r)))
            for r in range(4): gel.append(valu("v_accvgpr_read_b32", U_[r], ua(r)))
            for r in range(4): gel.append(valu("v_mul_f32", X_[r], G_[r], G_[r]))
            for r in range(4): gel.append(valu("v_fma_f32", X_[r], X_[r], vc1, vc0))
            for r in range(4): gel.append(valu("v_mul_f32", X_[r], X_[r], G_[r]))
            for r in range(4): gel.append(valu("v_exp_f32", X_[r], X_[r]))
            for r in range(4): gel.append(valu("v_mul_f32", G_[r], G_[r], U_[r]))
            for r in range(4): gel.append(valu("v_add_f32", X_[r], "1.0", X_[r]))
            for r in range(4): gel.append(valu("v_rcp_f32", X_[r], X_[r]))
            gel.append(nop(0))
            for r in range(4): gel.append(valu("v_mul_f32", G_[r], G_[r], X_[r]))
            for k in range(2): gel.append(valu("v_cvt_pk_bf16_f32", pk[2 * b + k], G_[2 * k], G_[2 * k + 1]))
        st = bstore(pk, v_lin, S_H, s_h1 if i else s_h0, off=qb * 1024, mod="sc1")
        gel.append(st); hst.append(st)
class Stamp:
    def __call__(self): stamp(); return []
if STAMP: extra.setdefault(128, []).append((0, Stamp(), 0))
vs = VStream(gel, 131, GEL_END, extra_total=GEL_EXTRA)
run_stream(64, s1_dma, dtok, s1_acc, s1_B, extra, vs)
if DUMP == "qacc": dump_regs([v_acc[i] for i in range(128)])
stamp()

em.wait(lg0=True)
e(raw("s_barrier"))
def signal(off_s_expr_add, lab):
    e(scmp("s_cmp_lg_u32", s_w, 0)); e(raw("s_cbranch_scc1 %s" % lab, rd=["scc"]))
    e(salu("s_lshl_b32", s_t0, s_qb, 2))
    if off_s_expr_add: e(salu("s_add_u32", s_t0, s_t0, off_s_expr_add))
    e(valu("v_mov_b32", v_t, 1))
    e(raw("s_mov_b64 exec, 1", "salu", wr=["exec"]))
    e(raw("buffer_atomic_add %s, off, %s, %s sc1" % (v_t, S_DBG, s_t0)))
    e(raw("s_mov_b64 exec, -1", "salu", wr=["exec"]))
    em.label(lab)
QS = math.log2(math.e) / math.sqrt(128.0)
vqs = V(40, 2); vqw = V(42)
e(valu("v_mov_b32", vqs[0], hx(f2u(QS))))
e(valu("v_and_b32", v_t, 15, v_lane)); e(valu("v_bfe_u32", vqw, v_lane, 5, 1)); e(valu("v_lshl_add_u32", v_t, vqw, 4, v_t)); e(valu("v_lshlrev_b32", v_t, 4, v_t))
e(valu("v_bfe_u32", vqw, v_lane, 4, 1)); e(valu("v_lshl_add_u32", vqw, vqw, 3, v_t))
e(salu("s_lshl_b32", s_t1, s_w, 14)); e(valu("v_add_u32", vqw, s_t1, vqw))
for blk in range(8):
    for qb in range(4):
        a_ = v_acc[((blk * 4 + qb) * 4, 4)]
        t = V(64 + 2 * ((blk * 4 + qb) % 8), 2)
        for k in range(2): e(valu("v_pk_mul_f32", a_[(2 * k, 2)], a_[(2 * k, 2)], vqs, mod="op_sel_hi:[1,0]"))
        for k in range(2): e(valu("v_cvt_pk_bf16_f32", t[k], a_[2 * k], a_[2 * k + 1]))
        if len(em.lgq) >= 7: em.wait(lg=em.lgq[-7])
        e(dswrite("ds_write_b64", vqw, t, (qb * 4 + (blk >> 1)) * 1024 + (blk & 1) * 512))
em.wait(lg0=True)
for f in range(16):
    e(dsread("ds_read_b128", a_Q[(4 * f, 4)], v_wl, f * 1024))
    if f == 7: pass
vx, vy, vz = V(96), V(97), V(98)
e(salu("s_lshl_b32", s_t1, s_w, 8))
dma_voffs(v_dA, 1024, s_t1, True)
em.label("L_att_start")
for i in range(64): e(valu("v_mov_b64", v_acc[(2 * i, 2)], 0))
for i in range(4): e(valu("v_mov_b32", v_l0[i], 0)); e(valu("v_mov_b32", v_l1[i], 0))
em.wait(vm0=True, lg0=True)
e(raw("s_barrier"))
e(scmp("s_cmp_lg_u32", s_retry, 0)); e(raw("s_cbranch_scc1 L_sigH", rd=["scc"]))
signal(HC_OFF, "L_sigH")
if DUMP == "q": dump_regs([a_Q[i] for i in range(64)])
stamp()

def Qf(qb, ds): return a_Q[((qb * 4 + ds) * 4, 4)]
def Of(db, qb): return v_acc[((db * 4 + qb) * 4, 4)]
def fr(f): return a_ring[((f % 8) * 4, 4)]
def kslot(par): return 16384 if par == 0 else 0
def vslot(par): return 0 if par == 0 else 16384
def frag_reads(par, f):
    if f >= 32: par ^= 1; f -= 32
    d = fr(f)
    if f < 8 or 16 <= f < 24:
        kb = (f >> 2) if f < 8 else 2 + ((f - 16) >> 2)
        return [dsread("ds_read_b128", d, v_ka[f & 3], kslot(par) + kb * 4096)]
    ks2 = 0 if f < 16 else 1
    db = f & 7
    return [dsread("ds_read_b64_tr_b16", d[(2 * h, 2)], v_va[db], vslot(par) + ks2 * 8192 + h * 4096) for h in range(2)]
def read_sched(g):
    r = []
    if g + 3 < 24 or g >= 29: r.append(g + 3)
    if 19 <= g <= 26: r.append(g + 5)
    return r
def sm_val(g, k):
    if 7 <= g <= 22: b = 1; n = 2 * (g - 7) + k
    else: b = 0; n = 2 * ((g - 23) % 32) + k
    kb, qb, r = n >> 4, (n >> 2) & 3, n & 3
    return b, qb, kb, r
def sm_items(g):
    ex, ad = [], []
    for k in range(2):
        b, qb, kb, r = sm_val(g, k)
        x = v_S[b][qb * 8 + kb * 4 + r]
        l = (v_l1 if b else v_l0)[qb]
        ex.append(valu("v_exp_f32", x, x)); ad.append(valu("v_add_f32", l, l, x))
    b, qb, kb, r = sm_val((g - 1) % 32, 0)
    cv = valu("v_cvt_pk_bf16_f32", v_S[b][qb * 8 + kb * 2 + (r >> 1)], v_S[b][qb * 8 + kb * 4 + r], v_S[b][qb * 8 + kb * 4 + r + 1])
    return ex, ad, cv
def att_dma(par, g):
    if g >= 29: k = g - 29; sp = par
    elif g <= 4: k = g + 3; sp = par ^ 1
    else: return [], None
    sal = []
    if k == 0: sal = [salu("s_add_u32", "m0", s_m0b, 4 * 16384 + kslot(sp))]
    if k == 4: sal = [salu("s_add_u32", "m0", s_m0b, vslot(sp))]
    if k < 4: return sal, dma(v_kd[k], S_K, s_kK, k * 1024)
    return sal, dma(v_vd[k & 1], S_V, s_kV, (k - 4) * 1024)
SIDE_FIRST = 11
class Lbl:
    def __init__(self, n): self.n = n
    def __call__(self): em.label(self.n); return []
class LoopStamp:
    def __init__(self, k, par): self.k, self.par = k, par
    def __call__(self):
        k = self.k
        e(raw("s_memtime %s" % S(68 + 2 * k, 2), "other", wr=[S(68 + 2 * k, 2)]))
        if k == 2:
            e(raw("s_waitcnt lgkmcnt(0)", "wait")); em._retire(em.lgq, 0)
            for i in range(3): e(valu("v_writelane_b32", v_c, S(68 + 2 * i), i, rmw=True))
            e(salu("s_lshl_b32", S(74), S(2), 2)); e(salu("s_add_u32", S(74), S(74), s_w)); e(salu("s_lshl_b32", S(74), S(74), 4))
            e(salu("s_sub_u32", S(74), S(74), s_cnt)); e(salu("s_add_u32", S(74), S(74), 16)); e(salu("s_lshl_b32", S(74), S(74), 5))
            e(salu("s_add_u32", S(74), S(74), (1 << 20) + 16 * self.par))
            e(raw("s_mov_b64 exec, 7", "salu", wr=["exec"]))
            e(valu("v_lshlrev_b32", v_t, 2, v_lane))
            e(bstore(v_c, v_t, S_DMP, S(74), off=0))
            e(raw("s_mov_b64 exec, -1", "salu", wr=["exec"]))
            e(valu("v_lshlrev_b32", v_t, 7, v_lane))
        return []
s_pf = [S(16, 2), S(18, 2), S(24, 2), S(26, 2)]
s_pfH = S(28, 2)
s_fo = S(3)
v_tch, v_flag = V(3), V(0)
xtok = []; lastdma = [None]
ROT = int(os.environ.get('ROT', '10'))
ftok = {}
def att_group(par, g, do_mfma=True, do_mem=True, do_cvt=True, last=False):
    ex, ad, cv = sm_items(g)
    mem = []
    sal = []
    if do_mem:
        for f in read_sched(g):
            r = frag_reads(par, f); mem += r; ftok[f % 32] = r
        sal, d = att_dma(par, g)
        if d is not None: mem.append(d)
    if do_mem and par == 0 and g == 5:
        mem.append(I("global_load_dword %s, %s, %s" % (v_flag, v_tch, s_pf[0]), "vmem", rd=v_tch.regs() + s_pf[0].regs(), wr=[])); xtok.append(mem[-1])
    if do_mem and par == 0 and g == 6:
        mem.append(I("buffer_load_dword %s, off, %s, %s sc1" % (v_flag, S_DBG, s_fo), "vmem", rd=S_DBG.regs() + s_fo.regs(), wr=[])); xtok.append(mem[-1])
    if do_mem and par == 0 and g in (8, 9, 10): sal = sal + [scmp("s_cmp_le_u32", s_cnt, ROT), salu("s_cselect_b64", s_pf[g - 8], s_pf[g - 7], s_pf[g - 8], scc_w=False, scc_r=True)]
    if do_mem and g == 4: lastdma[0] = d
    post0 = []
    if do_mem and do_mfma and par == 1 and g == 30: post0 = [valu("v_readfirstlane_b32", s_t0, v_flag)]
    if do_mem and do_mfma and par == 1 and g == 31: sal = sal + [scmp("s_cmp_lt_u32", s_cnt, ROT), salu("s_cselect_b32", s_t0, s_t0, 0, scc_w=False, scc_r=True), scmp("s_cmp_ge_u32", s_t0, 8), salu("s_cselect_b64", s_pf[3], s_pfH, s_pf[3], scc_w=False, scc_r=True)]
    gaps = [[], [], [], []]
    if g == 29 and do_mem:
        if STAMP == 2 and do_mfma: gaps[0] += [LoopStamp(0, par)]
        gaps[0] += [Wait(lg0=True, vm0=True) if (par == 1 or not do_mfma) else Wait(lg0=True, vm=lastdma[0])]
        if STAMP == 2 and do_mfma: gaps[0] += [LoopStamp(1, par)]
        gaps[0] += [raw("s_barrier")]
        if STAMP == 2 and do_mfma: gaps[0] += [LoopStamp(2, par)]
    gaps[0] += sal
    if g == 6 and do_mem: gaps[0].append(salu("s_add_u32", s_kK, s_kK, 16384))
    if g == 7 and do_mem: gaps[0].append(salu("s_add_u32", s_kV, s_kV, 16384))
    if g == 23 and par == 1 and do_mfma:
        gaps[0] += [valu("v_mov_b32", v_lsave[i], v_l0[i]) for i in range(4)]
    if len(mem) > 2: gaps[0].append(mem[2])
    gaps[0].append(ex[0])
    if len(mem) > 0: gaps[1].append(mem[0])
    if len(mem) == 0 and do_cvt: gaps[1].append(cv)
    gaps[1].append(ad[0])
    gaps[1] += post0
    if do_mem: gaps[2].append(Wait(lg=ftok.get((g + 1) % 32)))
    if last and g == 30: gaps[2].append(salu("s_sub_u32", s_cnt, s_cnt, 1))
    gaps[2].append(ex[1])
    if len(mem) > 1: gaps[3].append(mem[1])
    if len(mem) > 0 and do_cvt: gaps[3].append(cv)
    gaps[3].append(ad[1])
    for qb in range(4):
        if do_mfma:
            if g < 8 or 16 <= g < 24:
                b = 1 if g < 8 else 0
                kb, ds = (g >> 2) & 1, g & 3
                d = v_S[b][(qb * 8 + kb * 4, 4)]
                e(mfma(d, fr(g), Qf(qb, ds), v_negm[(qb * 4, 4)] if ds == 0 else d))
            else:
                b = 0 if g < 16 else 1
                e(mfma(Of(g & 7, qb), fr(g), v_S[b][(qb * 8, 4)], Of(g & 7, qb)))
        else:
            if qb & 1: e(nop(0))
        for it in gaps[qb]: e(it)

for it in range(3):
    e(salu("s_add_u32", s_t0, s_w, 4 * it))
    e(salu("s_sub_u32", s_t1, s_t0, 2)); e(salu("s_min_u32", s_t1, s_t1, 6)); e(salu("s_lshl_b32", s_t1, s_t1, 13))
    e(salu("s_mul_i32", s_t2, s_qb, 57344, scc_w=False)); e(salu("s_add_u32", s_t1, s_t1, s_t2))
    e(salu("s_add_u32", s_pf[it][0], S_WD[0], s_t1)); e(salu("s_addc_u32", s_pf[it][1], S_WD[1], 0, scc_r=True))
    if it == 0:
        e(scmp("s_cmp_ge_u32", s_w, 2)); e(raw("s_cbranch_scc1 L_pf_wd", rd=["scc"]))
        e(salu("s_lshl_b32", s_t1, s_qb, 14)); e(salu("s_lshl_b32", s_t2, s_w, 13)); e(salu("s_add_u32", s_t1, s_t1, s_t2))
        e(salu("s_add_u32", s_pf[0][0], S_WO[0], s_t1)); e(salu("s_addc_u32", s_pf[0][1], S_WO[1], 0, scc_r=True))
        em.label("L_pf_wd")
e(raw("s_getpc_b64 %s" % s_pf[3], "salu", wr=[s_pf[3]]))
em.label("L_pc1")
e(salu("s_lshl_b32", s_t0, s_w, 13)); e(salu("s_add_u32", s_t0, s_t0, "L_tail-L_pc1")); e(salu("s_min_u32", s_t0, s_t0, "L_code_end-L_pc1-8192"))
e(salu("s_add_u32", s_pf[3][0], s_pf[3][0], s_t0)); e(salu("s_addc_u32", s_pf[3][1], s_pf[3][1], 0, scc_r=True))
e(salu("s_lshl_b32", s_t0, s_cg, 2)); e(salu("s_add_u32", s_t0, s_t0, s_w)); e(salu("s_mul_i32", s_t0, s_t0, 7168, scc_w=False)); e(salu("s_min_u32", s_t0, s_t0, 229376 - 8192))
e(salu("s_add_u32", s_pfH[0], S_HC[0], s_t0)); e(salu("s_addc_u32", s_pfH[1], S_HC[1], 0, scc_r=True))
e(valu("v_lshlrev_b32", v_tch, 7, v_lane))
e(salu("s_lshl_b32", s_fo, s_cq, 2)); e(salu("s_add_u32", s_fo, s_fo, HC_OFF))
pr = [dsread("ds_read_b128", fr(f), v_ka[f & 3], (f >> 2) * 4096) for f in range(8)]
for r in pr: e(r)
e(scmp("s_cmp_lg_u32", s_retry, 0)); e(raw("s_cbranch_scc1 L_have_max", rd=["scc"]))
for i in range(16): e(valu("v_mov_b32", v_negm[i], 0))
em.label("L_have_max")
for f in range(8):
    em.wait(lg=pr[f])
    for qb in range(4):
        d = v_S[0][(qb * 8 + (f >> 2) * 4, 4)]
        e(mfma(d, fr(f), Qf(qb, f & 3), v_negm[(qb * 4, 4)] if (f & 3) == 0 else d))
e(salu("s_mov_b32", s_kK, 16384 + 8192, scc_w=False)); e(salu("s_mov_b32", s_kV, 16384, scc_w=False)); e(salu("s_mov_b32", s_cnt, 16, scc_w=False))
e(scmp("s_cmp_lg_u32", s_retry, 0)); e(raw("s_cbranch_scc1 L_have_max2", rd=["scc"]))
e(nop(3))
mx = [V(96 + i) for i in range(4)]; mt = [V(100 + i) for i in range(4)]
for qb in range(4): e(valu("v_max3_f32", mx[qb], v_S[0][qb * 8], v_S[0][qb * 8 + 1], v_S[0][qb * 8 + 2]))
for qb in range(4): e(valu("v_max3_f32", mx[qb], mx[qb], v_S[0][qb * 8 + 3], v_S[0][qb * 8 + 4]))
for qb in range(4): e(valu("v_max3_f32", mx[qb], mx[qb], v_S[0][qb * 8 + 5], v_S[0][qb * 8 + 6]))
for qb in range(4): e(valu("v_max_f32", mx[qb], mx[qb], v_S[0][qb * 8 + 7]))
red4("v_max_f32", mx, mt)
for qb in range(4):
    for k in range(4): e(valu("v_sub_f32", v_negm[qb * 4 + k], 0, mx[qb]))
for qb in range(4):
    for k in range(8): e(valu("v_sub_f32", v_S[0][qb * 8 + k], v_S[0][qb * 8 + k], mx[qb]))
em.label("L_have_max2")
e(nop(7))
for g in range(23, 29): att_group(1, g, do_mfma=False, do_mem=False, do_cvt=(g != 23))
stamp(); diag()
for g in range(29, 32): att_group(1, g, do_mfma=False, do_mem=True)
pro_end = len(em.out)
em.directive(".p2align 6")
em.label("L_att_loop")
def body():
    for par in range(2):
        for g in range(32): att_group(par, g, last=(par == 1))
b0 = len(em.out)
body()
b1 = len(em.out)
e(scmp("s_cmp_lg_u32", s_cnt, 0)); e(raw("s_cbranch_scc1 L_att_loop", rd=["scc"]))
b2 = len(em.out)
body()
second = em.out[b2:]; del em.out[b2:]
assert [i.text for i in second] == [i.text for i in em.out[b0:b1]], "loop not in steady state"
loop_probs = check_hazards(em.out[b1 - 40:b2] + second[:60], "loop-wrap")
stamp()

em.label("L_tail")
diag()
v_ring2 = V(64, 32); v_B2 = V(96, 32)
def hreg(kk, qb): return A(64 + (kk % 12) * 16 + qb * 4, 4)
XY = int(os.environ.get("XY", "0"))
def mh(m): return ((m & 15), m >> 4) if XY else (m >> 1, m & 1)
P2 = 2
def s2_dma(m):
    p = (m + P2) % 6
    if m < 32:
        s, h = mh(m)
        return [m0set(p), salu("s_mov_b32", s_off, s * 32 * 1024 + 128 * h, scc_w=False)], [dma(v_dA[j], S_WO, s_off, j * 1024) for j in range(4)]
    if m < 46:
        return [m0set(p), salu("s_mov_b32", s_off, (m - 32) * 32 * 1024, scc_w=False)], [dma(v_dB[j], S_WD, s_off, j * 1024) for j in range(4)]
    return None
dtok2 = {}
post_v = []
for m in range(0, 6):
    sa, dm = s2_dma(m); post_v.append(sa); post_v += dm; dtok2[m] = dm[3]
pv = [0]
def post_issue(n):
    k = 0
    while k < n and pv[0] < len(post_v):
        it = post_v[pv[0]]; pv[0] += 1
        e(it)
        if not isinstance(it, list): k += 1
post_issue(4)
lt = [V(100 + i) for i in range(4)]
for qb in range(4): e(valu("v_add_f32", v_l1[qb], v_l1[qb], v_lsave[qb]))
red4("v_add_f32", [v_l1[i] for i in range(4)], lt)
e(salu("s_mov_b32", s_t0, hx(f2u(2.0 ** 30)), scc_w=False))
e(valu("v_add_f32", lt[1], v_l1[0], v_l1[1])); e(valu("v_add_f32", lt[2], v_l1[2], v_l1[3])); e(valu("v_add_f32", lt[1], lt[1], lt[2]))
e(valu("v_cmp_nge_f32", "vcc", s_t0, lt[1]))
rinv = [V(104 + 2 * i, 2) for i in range(4)]
for qb in range(4): e(valu("v_rcp_f32", rinv[qb][0], v_l1[qb]))
e(salu("s_mov_b64", s_pair, "vcc", scc_w=False))
post_issue(4)
for i in range(4):
    for qb in range(4):
        t = Of(2 * i, qb)
        for b in range(2):
            o = Of(2 * i + b, qb)
            for k in range(2): e(valu("v_pk_mul_f32", o[(2 * k, 2)], o[(2 * k, 2)], rinv[qb], mod="op_sel_hi:[1,0]"))
        if DUMP != "o":
            for b in range(2):
                o = Of(2 * i + b, qb)
                for k in range(2): e(valu("v_cvt_pk_bf16_f32", t[2 * b + k], o[2 * k], o[2 * k + 1]))
            if i == 0 and qb == 0:
                e(scmp("s_cmp_eq_u64", s_pair, 0)); e(raw("s_cbranch_scc1 L_nomark", rd=["scc"]))
                e(valu("v_mov_b32", t[0], hx(MARK)))
                em.label("L_nomark")
            if len(em.lgq) >= 12: em.wait(lg=em.lgq[-12])
            e(dswrite("ds_write_b128", v_wl, t, (i * 4 + qb) * 1024))
        post_issue(1)
post_issue(100)
if DUMP == "o": dump_regs([v_acc[i] for i in range(128)])
vm_ = V(56); vma = V(57)
e(valu("v_and_b32", vma, 3, v_lane)); e(valu("v_lshlrev_b32", vma, 14, vma))
e(salu("s_mov_b32", s_cnt, 0, scc_w=False))
em.label("L_pollH")
e(valu("v_readfirstlane_b32", s_t0, v_flag)); e(salu("s_mul_i32", s_hb, s_w, 14 * 4096, scc_w=False)); e(nop(1))
e(scmp("s_cmp_ge_u32", s_t0, 8)); e(raw("s_cbranch_scc1 L_pollH_done", rd=["scc"]))
e(salu("s_add_u32", s_cnt, s_cnt, 1)); e(scmp("s_cmp_ge_u32", s_cnt, 50000)); e(raw("s_cbranch_scc1 L_pollH_done", rd=["scc"]))
e(raw("s_sleep 4")); e(raw("buffer_load_dword %s, off, %s, %s sc1" % (v_flag, S_DBG, s_fo))); e(raw("s_waitcnt vmcnt(0)")); e(raw("s_branch L_pollH"))
em.label("L_pollH_done")
em.wait(lg0=True)
e(raw("s_barrier"))
stamp()
mk = e(dsread("ds_read_b32", vm_, vma, 0))
class FbCheck:
    def __call__(self):
        em.wait(lg=mk)
        e(valu("v_cmp_eq_u32", "vcc", hx(MARK), vm_))
        e(scmp("s_cmp_lg_u32", s_retry, 0)); e(raw("s_cbranch_scc1 L_nofb", rd=["scc"]))
        e(nop(1))
        e(raw("s_cbranch_vccnz L_fallback", rd=["vcc"]))
        em.label("L_nofb")
        return []

def s2_acc(m, u, qb):
    if m < 32: return v_acc[(((mh(m)[1] * 4 + u) * 4 + qb) * 4, 4)], mh(m)[0] == 0
    return a_F[((u * 4 + qb) * 4, 4)], m == 32
def bsel(m): return (m & 1) if XY else ((m >> 1) & 1)
def s2_B(m, qb):
    if m < 32: return v_B2[(bsel(m) * 16 + qb * 4, 4)]
    return hreg(m - 32, qb)
def oread(m, qb): return dsread("ds_read_b128", v_B2[(bsel(m) * 16 + qb * 4, 4)], v_lin, (mh(m)[0] * 4 + qb) * 1024)
extra = {-1: [(0, oread(0, qb), 1) for qb in range(4)] + [(0, FbCheck(), 0)]}
for m in range(1, 32):
    if XY:
        rr = [oread(m, qb) for qb in range(4)]
        for qb in range(4): extra.setdefault(4 * (m - 1) + (qb >> 1), []).append((2 + (qb & 1), rr[qb], 1))
        extra.setdefault(4 * m - 1, []).append((2, Wait(lg=rr), 0))
    elif (m & 1) == 0:
        for qb in range(4): extra.setdefault(4 * (m - 2) + 1 + qb, []).append((2, oread(m, qb), 1))
class LateWait:
    def __init__(self, f): self.f = f
    def __call__(self): return Wait(vm=self.f())
vxf = V(40, 8); vxa = V(48); vpoll = V(49); vfw = V(50)
vx, vy, vz = V(52), V(53), V(54)
save = em.out; em.out = []
for k in range(8): e(valu("v_accvgpr_read_b32", vxf[k], a_x[k]))
e(salu("s_mul_i32", s_t1, s_w, 448 * 1024, scc_w=False)); e(salu("s_lshl_b32", s_t3, s_cg, 7)); e(salu("s_add_u32", s_t1, s_t1, s_t3))
dma_voffs(v_dB, 1024, s_t1, True)
xaddr(vxa, vx)
e(valu("v_and_b32", V(51), 7, v_lane)); e(valu("v_lshlrev_b32", V(51), 2, V(51)))
e(salu("s_lshl_b32", s_t0, s_w, 12)); e(valu("v_add_u32", vfw, s_t0, v_lin))
e(salu("s_lshl_b32", s_t3, s_w, 4)); e(salu("s_add_u32", s_t3, s_t3, s_g)); e(salu("s_lshl_b32", s_t3, s_t3, 13))
early = em.out; em.out = save
class Seq:
    kind = "vmem"
    def __init__(self, l): self.l = l
    def __call__(self): return self.l
hld = {}; htok = {}
for kk in range(14):
    hld[kk] = [bload(hreg(kk, qb), v_lin, S_HC, s_hl, off=qb * 1024, mod="sc1") for qb in range(4)]
    htok[kk] = hld[kk][3]
    extra.setdefault(4 * (32 + kk) - 1, []).append((2, LateWait(lambda kk=kk: htok[kk]), 0))
hseq = []
for kk in range(14):
    for qb in range(4):
        hseq.append(Seq([salu("s_add_u32", s_hl, s_hb, kk * 4096), hld[kk][qb]]))
NPRE = int(os.environ.get("NPRE", "12")); HG0 = int(os.environ.get("HG0", "70")); HGS = int(os.environ.get("HGS", "4"))
for k in range(NPRE): extra.setdefault(HG0 + HGS * k, []).append((2, hseq[k], 1))
def sreg(ip, qb, odd=0): return v_acc[(((2 * ip + odd) * 4 + qb) * 4, 4)]
sp = []; spst = []
HPS = int(os.environ.get("HPS", "3")); hk = NPRE
for ip in range(4):
    for qb in range(4):
        t = sreg(ip, qb)
        for b in range(2):
            o = sreg(ip, qb, b)
            for k in range(2): sp.append(valu("v_cvt_pk_bf16_f32", t[2 * b + k], o[2 * k], o[2 * k + 1]))
        if (qb & 1) == 0: sp.append(salu("s_add_u32", s_t1, s_t3, (ip >> 1) * 65536 + (qb >> 1) * 4096))
        st = bstore(t, v_lin, S_SP, s_t1, off=(qb & 1) * 2048 + (ip & 1) * 1024, mod=os.environ.get("ST_MOD", "sc1").replace("plain", ""))
        if os.environ.get("ST_NONE") and not (ip == 3 and qb == 3): st = nop(0)
        sp.append(st); spst.append(st)
        if not (XY and ip < 2):
            for _ in range(HPS * (2 if XY else 1)):
                if hk < 48: sp.append(hseq[hk]); hk += 1
for k in range(hk, 48): sp.append(hseq[k])
for k in range(48, 56): extra.setdefault(140 + (k - 48), []).append((2, hseq[k], 1))
class SigS:
    def __call__(self):
        stamp(); em.wait(vm=spst[-1]); stamp(); e(raw("s_barrier"))
        e(scmp("s_cmp_lg_u32", s_w, 0)); e(raw("s_cbranch_scc1 L_sigS", rd=["scc"]))
        e(valu("v_mov_b32", v_t, 1))
        e(raw("s_mov_b64 exec, 1", "salu", wr=["exec"]))
        e(raw("buffer_store_dword %s, off, %s, %s sc1" % (v_t, S_FL, s_myfl)))
        e(raw("s_mov_b64 exec, -1", "salu", wr=["exec"]))
        em.label("L_sigS")
        return []
G_SIG = int(os.environ.get("G_SIG", "160")); G_POLL = int(os.environ.get("G_POLL", "172")); G_CHK = int(os.environ.get("G_CHK", "178"))
extra.setdefault(G_SIG, []).append((0, SigS(), 0))
vpa = V(51)
ptok = bload(vpoll, vpa, S_FL, s_t2, n=1, mod="sc1")
extra.setdefault(G_POLL, []).append((1, [salu("s_lshl_b32", s_t2, s_cq, 7)], 0))
extra.setdefault(G_POLL, []).append((2, ptok, 1))
def spl(gp, i): return sreg(gp >> 1, (gp & 1) * 2 + i, 1)
sl = []
class ChkS:
    def __call__(self):
        em.wait(vm=ptok)
        stamp()
        e(salu("s_mov_b32", s_cnt, 0, scc_w=False))
        em.label("L_pollS")
        e(valu("v_cmp_ne_u32", "vcc", 1, vpoll)); e(nop(2))
        e(raw("s_cbranch_vccz L_pollS_done", rd=["vcc"]))
        e(salu("s_add_u32", s_cnt, s_cnt, 1)); e(scmp("s_cmp_ge_u32", s_cnt, 50000)); e(raw("s_cbranch_scc1 L_pollS_done", rd=["scc"]))
        e(raw("buffer_load_dword %s, %s, %s, %s offen sc1" % (vpoll, vpa, S_FL, s_t2))); e(raw("s_waitcnt vmcnt(0)")); e(raw("s_branch L_pollS"))
        em.label("L_pollS_done")
        stamp()
        e(salu("s_lshl_b32", s_t0, s_cg, 16)); e(salu("s_lshl_b32", s_t1, s_w, 11)); e(salu("s_add_u32", s_t0, s_t0, s_t1))
        for gp in range(8):
            for i in range(2): sl.append(e(bload(spl(gp, i), v_lin, S_SPC, s_t0, off=i * 1024, mod="sc1")))
            if gp < 7: e(salu("s_add_u32", s_t0, s_t0, 8192))
        return []
if G_CHK < 184: extra.setdefault(G_CHK, []).append((0, ChkS(), 0))
if STAMP: extra.setdefault(128, []).append((0, Stamp(), 0))
class Diag:
    def __call__(self): diag(); return []
if DIAG: extra.setdefault(128, []).append((0, Diag(), 0))
class Paced(VStream):
    def has(self, g): return self.i < len(self.items) and g >= self.start and self.i <= (g - self.start + 1) * len(self.items) // max(1, self.end - self.start)
    def quota(self, g): return 99 if g >= self.start else 0
class Multi:
    def __init__(self, *l): self.l = list(l)
    def cur(self, g):
        for x in self.l:
            if x.i < len(x.items): return x
        return self.l[-1]
    def has(self, g): return self.cur(g).has(g)
    def peek(self): return self.cur(0).peek()
    def pop(self): return self.cur(0).pop()
    def quota(self, g): return self.cur(g).quota(g)
    def used_quota(self): self.cur(0).used_quota()
SP_END = int(os.environ.get("SP_END", "146"))
if XY:
    half = sp.index(spst[7]) + 1
    vs = Multi(VStream(early, 2, 40), Paced(sp[:half], int(os.environ.get("X_START", "67")), int(os.environ.get("X_END", "75"))), Paced(sp[half:], 130, SP_END))
else:
    vs = Multi(VStream(early, 2, 40), Paced(sp, 130, SP_END))
class ChkEarly:
    def __call__(self):
        assert vs.l[0].i == len(vs.l[0].items); return []
extra.setdefault(59, []).append((0, ChkEarly(), 0))
run_stream(46, s2_dma, dtok2, s2_acc, s2_B, extra, vs, pos0=P2, ring=v_ring2)
stamp(); diag()
e(nop(6))
for qb in range(4):
    for u in range(4):
        if len(em.lgq) >= 12: em.wait(lg=em.lgq[-12])
        e(dswrite("ds_write_b128", vfw, a_F[((u * 4 + qb) * 4, 4)], qb * 16384 + u * 1024))
if G_CHK >= 184: ChkS()()
em.wait(lg0=True)
e(raw("s_barrier"))
def frr(ws_, u): return sreg(ws_, u, 0)
for ws_ in range(4):
    for u in range(4):
        if len(em.lgq) >= 14: em.wait(lg=em.lgq[-14])
        e(dsread("ds_read_b128", frr(ws_, u), v_wl, ws_ * 4096 + u * 1024))
em.wait(lg0=True)
v_fr = V(96, 16); vE = V(64, 16); vs_ = V(80, 16)
for u in range(4):
    for k in range(2):
        e(valu("v_pk_add_f32", frr(0, u)[(2 * k, 2)], frr(0, u)[(2 * k, 2)], frr(1, u)[(2 * k, 2)]))
        e(valu("v_pk_add_f32", frr(2, u)[(2 * k, 2)], frr(2, u)[(2 * k, 2)], frr(3, u)[(2 * k, 2)]))
for u in range(4):
    for k in range(2): e(valu("v_pk_add_f32", v_fr[(4 * u + 2 * k, 2)], frr(0, u)[(2 * k, 2)], frr(2, u)[(2 * k, 2)]))
for k in range(16): e(valu("v_mul_f32", vE[k], hx(f2u(-math.log2(math.e))), v_fr[k]))
for k in range(16): e(valu("v_exp_f32", vE[k], vE[k]))
for k in range(16): e(valu("v_add_f32", vE[k], "1.0", vE[k]))
for k in range(16): e(valu("v_rcp_f32", vE[k], vE[k]))
for k in range(16): e(valu("v_mul_f32", v_fr[k], v_fr[k], vE[k]))
for k in range(8):
    e(valu("v_lshlrev_b32", vE[2 * k], 16, vxf[k])); e(valu("v_and_b32", vE[2 * k + 1], "0xffff0000", vxf[k]))
for gp in range(8):
    em.wait(vm=sl[2 * gp + 1])
    for k in range(8):
        src = spl(gp, k >> 2)[k & 3]
        if gp == 0:
            e(valu("v_lshlrev_b32", vs_[2 * k], 16, src)); e(valu("v_and_b32", vs_[2 * k + 1], "0xffff0000", src))
        else:
            e(valu("v_lshlrev_b32", V(112 + 2 * (k & 3)), 16, src)); e(valu("v_and_b32", V(113 + 2 * (k & 3)), "0xffff0000", src))
            e(valu("v_pk_add_f32", vs_[(2 * k, 2)], vs_[(2 * k, 2)], V(112 + 2 * (k & 3), 2)))
if DUMP == "fin": dump_regs([vs_[i] for i in range(16)] + [v_fr[i] for i in range(16)])
for k in range(8): e(valu("v_pk_fma_f32", vE[(2 * k, 2)], vs_[(2 * k, 2)], v_fr[(2 * k, 2)], vE[(2 * k, 2)]))
for k in range(8): e(valu("v_cvt_pk_bf16_f32", vxf[k], vE[2 * k], vE[2 * k + 1]))
for u in range(4): e(bstore(vxf[(2 * u, 2)], vxa, S_OUT, 0, off=32 * u))
stamp(); diag_out()
em.label("L_end")
e(raw("s_endpgm"))
main_end = len(em.out)

em.lgq, em.vmq, em.pend = [], [], {}
em.label("L_fallback")
e(raw("s_waitcnt vmcnt(0) lgkmcnt(0)")); em._retire(em.vmq, 0); em._retire(em.lgq, 0)
e(salu("s_mov_b32", s_retry, 1, scc_w=False))
e(salu("s_mov_b32", s_kK, 0, scc_w=False))
fm = [V(40 + i) for i in range(4)]
for i in range(4): e(valu("v_mov_b32", fm[i], "0xff800000"))
em.label("L_fb_loop")
e(raw("s_barrier"))
e(salu("s_add_u32", "m0", s_m0b, 4 * 16384)); e(nop(0))
for j in range(4): e(dma(v_kd[j], S_K, s_kK, j * 1024))
em.wait(vm0=True)
e(raw("s_barrier"))
for kb in range(4):
    rr = [e(dsread("ds_read_b128", fr(ds), v_ka[ds], kb * 4096)) for ds in range(4)]
    em.wait(lg0=True)
    for ds in range(4):
        for qb in range(4):
            d = v_S[0][(qb * 4, 4)]
            e(mfma(d, fr(ds), Qf(qb, ds), 0 if ds == 0 else d))
    e(nop(7))
    for qb in range(4):
        e(valu("v_max3_f32", fm[qb], fm[qb], v_S[0][qb * 4], v_S[0][qb * 4 + 1])); e(valu("v_max3_f32", fm[qb], fm[qb], v_S[0][qb * 4 + 2], v_S[0][qb * 4 + 3]))
    e(nop(2))
e(salu("s_add_u32", s_kK, s_kK, 16384)); e(scmp("s_cmp_lt_u32", s_kK, 524288)); e(raw("s_cbranch_scc1 L_fb_loop", rd=["scc"]))
red4("v_max_f32", fm, [V(44 + i) for i in range(4)])
for qb in range(4):
    for k in range(4): e(valu("v_sub_f32", v_negm[qb * 4 + k], 0, fm[qb]))
e(raw("s_barrier"))
for m in (64, 65, 66):
    sa, dm = s1_dma(m); e(sa)
    for d in dm: e(d)
e(raw("s_branch L_att_start"))
em.label("L_code_end")
e(raw("s_endpgm"))

probs = check_hazards(em.out, "main") + loop_probs
for p in probs: print("; HAZARD", p, file=sys.stderr)
assert not probs

hdr = open(os.path.join(os.path.dirname(os.path.abspath(__file__)), "header.txt")).read()
print(hdr.rstrip())
print("; @launch grid=(256,1,1) block=(256,1,1) lds=163840")
print('.amdgcn_target "amdgcn-amd-amdhsa--gfx950"\n.text\n.globl %s\n.p2align 8\n.type %s,@function\n%s:' % (KN, KN, KN))
print(em.text())
print('.section .rodata,"a"\n.p2align 6\n.amdhsa_kernel %s' % KN)
print("  .amdhsa_next_free_vgpr 512\n  .amdhsa_next_free_sgpr 102\n  .amdhsa_accum_offset 256\n  .amdhsa_group_segment_fixed_size 0\n  .amdhsa_kernarg_size 96\n  .amdhsa_user_sgpr_count 2\n  .amdhsa_user_sgpr_kernarg_segment_ptr 1\n  .amdhsa_system_sgpr_workgroup_id_x 1\n.end_amdhsa_kernel")
```

```python
import sys, os, math, struct
from asmgen import *

KN = "recurrent_scan__gqa_block_cached__geglu_ffn__prompt_kernel"
DUMP = os.environ.get("DUMP", "")
STAMP = int(os.environ.get("STAMP", "0"))
GEL_END = int(os.environ.get("GEL_END", "228")); GEL_EXTRA = int(os.environ.get("GEL_EXTRA", "360"))

def f2u(x): return struct.unpack("<I", struct.pack("<f", x))[0]
def hx(x): return "0x%x" % (x & 0xffffffff)

S_X, S_K, S_V, S_WQ, S_WO, S_WG, S_WU, S_WD, S_OUT, S_DBG, S_H, S_SP = [S(4 + 4 * i, 4) for i in range(12)]
s_g, s_qb, s_w = S(52), S(53), S(54)
s_t0, s_t1, s_t2, s_t3 = S(55), S(56), S(57), S(58)
s_m0b = S(59)
s_off = S(60)
s_cnt = S(61)
s_kK, s_kV = S(62), S(63)
s_retry = S(64)
s_h0, s_h1 = S(65), S(66)
s_hl = S(67); s_hb = S(78); s_myfl = S(79)
s_ka = S(68, 16); s_kb = S(84, 8)
s_pair = S(92, 2); s_pair2 = S(94, 2)
S_DMP = S(96, 4)
s_cq, s_cg = S(76), S(77)
S_HC = S(80, 4)
S_SPC = S(84, 4)
S_XC = S(88, 4)
s_st = S(68, 4)

v_tid, v_lane, v_lin, v_t = V(0), V(1), V(2), V(3)
v_tr = [V(4, 4), V(8, 4)]
v_dA, v_dB = V(12, 4), V(16, 4)
v_ka = V(20, 4); v_va = V(24, 8); v_kd = V(32, 4); v_vd = V(36, 2)
v_wl = V(38)
v_c = V(39)
v_l0, v_l1 = V(40, 4), V(44, 4)
v_lsave = V(16, 4)
v_negm = V(48, 16)
v_S = [V(64, 32), V(96, 32)]
v_acc = V(128, 128)
a_ring = A(128, 32)
a_B = A(160, 32)
a_Q = A(0, 64)
a_F = A(0, 64)
a_x = A(248, 8)

RING = 65536
MARK = 0x7fc17fc1
WS_SP = 8 << 20
WS_DUMP = 32 << 20
WS_FL = (7 << 20) + (512 << 10)
S_FL = S(4, 4)

em = Em()
e = em.e

def srd(dst, lo, hi, size, off_s=None):
    if off_s is None:
        e(salu("s_mov_b32", dst[0], lo, scc_w=False)); e(salu("s_mov_b32", dst[1], hi, scc_w=False))
    else:
        e(salu("s_add_u32", dst[0], lo, off_s)); e(salu("s_addc_u32", dst[1], hi, 0, scc_r=True))
    e(salu("s_mov_b32", dst[2], hx(size), scc_w=False)); e(salu("s_mov_b32", dst[3], "0x20000", scc_w=False))

DIAG = int(os.environ.get("DIAG", "0"))
HC_OFF = 128
diag_regs = [S(100, 2), S(70, 2), S(72, 2), S(74, 2), S(96, 2), S(98, 2), S(68, 2)] if DIAG == 1 else [S(100, 2), S(96, 2), S(98, 2), S(94, 2), S(70, 2), S(72, 2), S(74, 2), S(68, 2)]
diag_n = [0]
def diag(which=1, last=False):
    if not DIAG or (which != DIAG and which != 0): return
    k = diag_n[0]; diag_n[0] += 1
    e(raw("%s %s" % ("s_memtime" if (os.environ.get("CYC") and not last) else "s_memrealtime", diag_regs[k]), "other", wr=[diag_regs[k]]))
    if k > 0: e(raw("s_waitcnt lgkmcnt(0)", "wait")); em._retire(em.lgq, 0)
AMP = os.environ.get("AMP")
def diag_out():
    if not DIAG: return
    diag(0, last=True)
    if AMP:
        k = int(AMP); last = diag_regs[diag_n[0] - 1]
        e(salu("s_sub_u32", s_t0, diag_regs[k][0], diag_regs[int(os.environ.get("AMP0", "0"))][0]))
        if os.environ.get("CYC"): e(salu("s_lshr_b32", s_t0, s_t0, 2))
        else: e(salu("s_lshl_b32", s_t0, s_t0, 2))
        em.label("L_amp")
        e(raw("s_memrealtime s[56:57]")); e(raw("s_waitcnt lgkmcnt(0)"))
        e(salu("s_sub_u32", s_t1, s_t1, last[0])); e(scmp("s_cmp_lt_u32", s_t1, s_t0)); e(raw("s_cbranch_scc1 L_amp", rd=["scc"]))
        return
    e(scmp("s_cmp_lg_u32", s_w, 0)); e(raw("s_cbranch_scc1 L_end", rd=["scc"]))
    e(raw("s_mov_b64 exec, 1", "salu", wr=["exec"]))
    e(salu("s_not_b32", s_t0, diag_regs[0][0]))
    for k in range(diag_n[0]):
        e(valu("v_mov_b32", V(4 + k), s_t0 if k == 0 else diag_regs[k][0]))
        e(raw("buffer_atomic_umax %s, off, %s, 0 offset:%d sc1" % (V(4 + k), S_DBG, 4 * k)))
    e(valu("v_mov_b32", V(12), diag_regs[0][0]))
    e(raw("buffer_atomic_umax %s, off, %s, 0 offset:%d sc1" % (V(12), S_DBG, 4 * 9)))
stamp_n = [0]
def stamp():
    if not STAMP: return
    k = stamp_n[0]; stamp_n[0] += 1
    e(raw("s_memtime %s" % S(68, 2), "other", wr=[S(68, 2)]))
    e(raw("s_memrealtime %s" % S(70, 2), "other", wr=[S(70, 2)]))
    e(raw("s_waitcnt lgkmcnt(0)", "wait")); em._retire(em.lgq, 0)
    for i in range(4): e(valu("v_writelane_b32", v_c, S(68 + i), i, rmw=True))
    e(salu("s_lshl_b32", S(72), S(2), 2)); e(salu("s_add_u32", S(72), S(72), s_w)); e(salu("s_lshl_b32", S(72), S(72), 9))
    e(salu("s_mov_b64", S(74, 2), "exec", scc_w=False)); e(raw("s_mov_b64 exec, 15", "salu", wr=["exec"]))
    e(valu("v_lshlrev_b32", v_t, 2, v_lane))
    e(bstore(v_c, v_t, S_DMP, S(72), off=k * 16))
    e(raw("s_mov_b64 exec, %s" % S(74, 2), "salu", wr=["exec"]))
    e(valu("v_lshlrev_b32", v_t, 7, v_lane))

def dump_regs(regs, finish=True):
    em.wait(lg0=True, vm0=True)
    e(nop(7)); e(nop(7))
    n = len(regs)
    e(salu("s_lshl_b32", s_t0, S(2), 2)); e(salu("s_add_u32", s_t0, s_t0, s_w)); e(salu("s_mul_i32", s_t0, s_t0, n * 256, scc_w=False))
    e(valu("v_lshlrev_b32", v_t, 2, v_lane))
    for k, r in enumerate(regs):
        e(bstore(r, v_t, S_DMP, s_t0, off=0))
        e(salu("s_add_u32", s_t0, s_t0, 256))
        if k % 32 == 31: em.wait(vm0=True)
    em.wait(vm0=True)
    if finish: e(raw("s_endpgm"))

def red4(op, x, tmp):
    for sw in ("v_permlane32_swap_b32", "v_permlane16_swap_b32"):
        for a, t in zip(x, tmp): e(valu("v_mov_b32", t, a))
        if len(x) < 3: e(nop(1))
        for a, t in zip(x, tmp): e(valu(sw, a, t))
        for a, t in zip(x, tmp): e(valu(op, a, a, t))

e(scmp("s_cmp_ge_u32", S(2), 256)); e(raw("s_cbranch_scc1 L_end", rd=["scc"]))
diag(0)
i0 = e(I("s_load_dwordx16 %s, s[0:1], 0" % s_ka, "smem", wr=s_ka.regs()))
i1 = e(I("s_load_dwordx8 %s, s[0:1], 64" % s_kb, "smem", wr=s_kb.regs()))
vq, vG, vr, vc_, vx, vy, vz = [V(40 + i) for i in range(7)]
e(raw("s_getpc_b64 %s" % s_pair2, "salu", wr=[s_pair2]))
em.label("L_pc0")
CT0 = int(os.environ.get("CT0", "64"))
if CT0:
    e(valu("v_sub_u32", V(55), 255, v_tid)); e(valu("v_cmp_gt_u32", "vcc", CT0, V(55))); e(valu("v_lshlrev_b32", V(55), 7, V(55))); e(nop(0))
    e(raw("s_and_saveexec_b64 s[4:5], vcc", "salu", wr=["exec"], rd=["vcc"])); e(raw("s_cbranch_execz L_ct0"))
    e(raw("global_load_dword v55, v55, %s" % s_pair2))
    em.label("L_ct0")
    e(raw("s_mov_b64 exec, -1", "salu", wr=["exec"]))
e(salu("s_and_b32", s_g, S(2), 7)); e(salu("s_lshr_b32", s_qb, S(2), 3))
e(valu("v_and_b32", v_lane, 63, v_tid))
e(valu("v_lshrrev_b32", v_t, 6, v_tid))
e(valu("v_lshlrev_b32", v_lin, 4, v_lane))
e(valu("v_readfirstlane_b32", s_w, v_t))
e(valu("v_and_b32", vq, 15, v_lane)); e(valu("v_lshrrev_b32", vG, 4, v_lane))
vxo = V(47)
e(valu("v_lshl_add_u32", vxo, v_t, 4, vq)); e(valu("v_lshlrev_b32", vxo, 10, vxo)); e(valu("v_lshl_add_u32", vxo, vG, 4, vxo))
vwg, vwq, vcw = V(52), V(53), V(54)
e(salu("s_mul_i32", s_t1, s_g, 448, scc_w=False)); e(salu("s_and_b32", s_t1, s_t1, hx(~127)))
e(salu("s_and_b32", s_t2, s_w, 1)); e(salu("s_lshl_b32", s_t3, s_qb, 1)); e(salu("s_add_u32", s_t2, s_t2, s_t3))
e(salu("s_mul_i32", s_t2, s_t2, 8 * 3584, scc_w=False)); e(salu("s_add_u32", s_t1, s_t1, s_t2))
e(valu("v_lshrrev_b32", vx, 2, v_lane)); e(valu("v_mul_u32_u24", vx, 3584, vx)); e(valu("v_and_b32", vz, 3, v_lane)); e(valu("v_lshl_add_u32", vx, vz, 7, vx))
e(valu("v_add_u32", vwg, s_t1, vx))
e(salu("s_lshl_b32", s_t2, s_qb, 2)); e(salu("s_add_u32", s_t2, s_t2, s_w)); e(salu("s_lshl_b32", s_t3, s_t2, 8))
e(valu("v_lshlrev_b32", vcw, 7, v_lane)); e(valu("v_add_u32", vcw, s_t3, vcw))
e(salu("s_lshl_b32", s_t0, s_qb, 16))
em.wait(lg0=True)
diag(2)
srd(S_X, s_ka[0], s_ka[1], 65536, s_t0)
v_xp = V(64, 64)
XFIRST = int(os.environ.get("XFIRST", "12"))
xl = [bload(v_xp[(4 * ks, 4)], vxo, S_X, 0, off=64 * ks) for ks in range(16)]
for ks in range(XFIRST): e(xl[ks])
e(scmp("s_cmp_lt_u32", s_w, 2)); e(salu("s_cselect_b64", s_pair, s_ka[(12, 2)], s_ka[(14, 2)], scc_w=False, scc_r=True))
e(raw("s_mov_b64 exec, 0xffffffff", "salu", wr=["exec"]))
e(I("global_load_dword %s, %s, %s" % (V(48), vwg, s_pair), "vmem", rd=vwg.regs() + s_pair.regs(), wr=V(48).regs()))
e(raw("s_mov_b64 exec, 3", "salu", wr=["exec"]))
e(I("global_load_dword %s, %s, %s" % (V(49), vcw, s_pair2), "vmem", rd=vcw.regs() + s_pair2.regs(), wr=V(49).regs()))
e(raw("s_mov_b64 exec, -1", "salu", wr=["exec"]))
e(salu("s_lshl_b32", s_t2, s_t2, 15)); e(salu("s_lshl_b32", s_t3, s_g, 10)); e(salu("s_add_u32", s_t2, s_t2, s_t3))
e(valu("v_lshrrev_b32", vx, 3, v_lane)); e(valu("v_lshlrev_b32", vx, 13, vx)); e(valu("v_and_b32", vz, 7, v_lane)); e(valu("v_lshl_add_u32", vx, vz, 7, vx))
e(valu("v_add_u32", vwq, s_t2, vx))
e(salu("s_lshr_b32", s_t2, s_qb, 3)); e(salu("s_lshl_b32", s_t3, s_g, 2)); e(salu("s_add_u32", s_t2, s_t2, s_t3))
e(salu("s_lshl_b32", s_t0, s_t2, 16))
srd(S_OUT, s_kb[2], s_kb[3], 65536, s_t0)
e(salu("s_lshl_b32", s_t1, s_g, 19))
srd(S_K, s_ka[2], s_ka[3], 524288, s_t1)
srd(S_V, s_ka[4], s_ka[5], 524288, s_t1)
srd(S_WO, s_ka[8], s_ka[9], 524288, s_t1)
srd(S_WQ, s_ka[6], s_ka[7], 4 << 20)
srd(S_WG, s_ka[12], s_ka[13], 1835008)
srd(S_WU, s_ka[14], s_ka[15], 1835008)
srd(S_WD, s_kb[0], s_kb[1], 1835008)
srd(S_DBG, s_kb[4], s_kb[5], 256)
e(salu("s_mul_i32", s_t1, s_qb, 229376, scc_w=False))
srd(S_H, s_kb[6], s_kb[7], 229376, s_t1)
e(salu("s_lshl_b32", s_t1, s_qb, 19)); e(salu("s_add_u32", s_t1, s_t1, hx(WS_SP)))
srd(S_SP, s_kb[6], s_kb[7], 524288, s_t1)
if DUMP or STAMP:
    e(salu("s_mov_b32", s_t1, hx(WS_DUMP), scc_w=False))
    srd(S_DMP, s_kb[6], s_kb[7], 200 << 20, s_t1)
e(salu("s_mov_b64", s_pair, S(90, 2), scc_w=False))
e(salu("s_lshl_b32", s_t0, s_t2, 16))
srd(S_XC, s_ka[0], s_ka[1], 65536, s_t0)
e(salu("s_mul_i32", s_t1, s_t2, 229376, scc_w=False))
srd(S_HC, s_pair[0], s_pair[1], 229376, s_t1)
e(salu("s_lshl_b32", s_t1, s_t2, 19)); e(salu("s_add_u32", s_t1, s_t1, hx(WS_SP)))
srd(S_SPC, s_pair[0], s_pair[1], 524288, s_t1)
e(salu("s_mov_b32", s_cq, s_t2, scc_w=False)); e(salu("s_and_b32", s_cg, s_qb, 7))
e(salu("s_lshl_b32", s_myfl, s_qb, 7)); e(salu("s_lshl_b32", s_t1, s_g, 2)); e(salu("s_add_u32", s_myfl, s_myfl, s_t1))
e(salu("s_lshl_b32", s_m0b, s_w, 12)); e(salu("s_add_u32", s_m0b, s_m0b, RING))
e(salu("s_and_b32", s_t1, s_g, 1)); e(salu("s_lshl_b32", s_t1, s_t1, 2)); e(salu("s_add_u32", s_t1, s_t1, s_w))
e(scmp("s_cmp_eq_u32", s_w, 3)); e(salu("s_cselect_b32", s_t1, 3, s_t1, scc_w=False, scc_r=True))
e(salu("s_lshr_b32", s_t2, s_g, 1)); e(salu("s_mul_i32", s_t2, s_t2, 7, scc_w=False)); e(salu("s_add_u32", s_t1, s_t1, s_t2))
e(salu("s_lshl_b32", s_h0, s_t1, 13)); e(salu("s_add_u32", s_h1, s_h0, 4096))
e(salu("s_lshl_b32", s_t1, s_t1, 7))
e(salu("s_lshl_b32", s_t2, s_g, 2)); e(salu("s_add_u32", s_t2, s_t2, s_w)); e(salu("s_lshl_b32", s_t2, s_t2, 8))

def dma_voffs(dst, stride, colbase_s, perm):
    for j in range(4):
        e(valu("v_bfe_u32", vx, v_lane, 1, 2)); e(valu("v_bfe_u32", vy, v_lane, 4, 1))
        e(valu("v_xor_b32", vx, vx, vy))
        if j & 1: e(valu("v_xor_b32", vx, 2, vx))
        e(valu("v_and_b32", vy, 1, v_lane)); e(valu("v_lshlrev_b32", vy, 4, vy)); e(valu("v_lshl_add_u32", vx, vx, 5, vy))
        if not perm:
            e(valu("v_lshrrev_b32", vy, 3, v_lane)); rowadd = 8 * j
        else:
            e(valu("v_bfe_u32", vy, v_lane, 3, 2)); e(valu("v_bfe_u32", vz, v_lane, 5, 1)); e(valu("v_lshl_add_u32", vy, vz, 4, vy)); rowadd = 4 * j
        e(valu("v_mul_u32_u24", vy, stride, vy))
        e(valu("v_add3_u32", vx, vx, vy, colbase_s))
        e(valu("v_add_u32", dst[j], rowadd * stride - j * 1024, vx))

dma_voffs(v_dA, 3584, s_t1, False)
dma_voffs(v_dB, 8192, s_t2, False)

def m0set(p): return salu("s_add_u32", "m0", s_m0b, p * 16384)
def s1_dma(m):
    p = m % 6
    if m < 32:
        s, h = m >> 1, m & 1
        return [m0set(p), salu("s_mov_b32", s_off, s * 32 * 3584, scc_w=False)], [dma(v_dA[j], S_WU if h else S_WG, s_off, j * 1024) for j in range(4)]
    if m < 64:
        s, h = (m - 32) >> 1, m & 1
        return [m0set(p), salu("s_mov_b32", s_off, s * 32 * 8192 + 128 * h, scc_w=False)], [dma(v_dB[j], S_WQ, s_off, j * 1024) for j in range(4)]
    if m == 64:
        return [m0set(p), salu("s_mov_b32", s_off, 0, scc_w=False)], [dma(v_kd[j], S_K, s_off, j * 1024) for j in range(4)]
    if m == 65:
        return [m0set(p), salu("s_mov_b32", s_off, 8192, scc_w=False)], [dma(v_kd[j], S_K, s_off, j * 1024) for j in range(4)]
    if m == 66:
        return [m0set(p), salu("s_mov_b32", s_off, 0, scc_w=False)], [dma(v_vd[j & 1], S_V, s_off, j * 1024) for j in range(4)]
    return None
dtok = {}
ln_v = []
for m in range(6):
    sa, dm = s1_dma(m)
    ln_v.append(sa); ln_v += dm
    dtok[m] = dm[3]
def xaddr(dst, tmp):
    e(valu("v_and_b32", dst, 15, v_lane)); e(salu("s_lshl_b32", s_t0, s_w, 4)); e(valu("v_add_u32", dst, s_t0, dst)); e(valu("v_lshlrev_b32", dst, 10, dst))
    e(valu("v_lshrrev_b32", tmp, 4, v_lane)); e(valu("v_lshl_add_u32", dst, tmp, 3, dst)); e(salu("s_lshl_b32", s_t0, s_cg, 7)); e(valu("v_add_u32", dst, s_t0, dst))
vxs, vzero = V(50), V(51)
xaddr(vxs, vy)
e(valu("v_mov_b32", vzero, 0))
ln_v += [bload(a_x[(2 * u, 2)], vxs, S_XC, 0, off=32 * u, n=2) for u in range(4)]
ln_v.append([raw("s_mov_b64 exec, 1", "salu", wr=["exec"]), bstore(vzero, None, S_FL, s_myfl, mod="sc1"), raw("s_mov_b64 exec, -1", "salu", wr=["exec"])])
ln_v.append([raw("s_mov_b64 exec, 0xffffffff", "salu", wr=["exec"]), bload(V(46), vwq, S_WQ, 0, n=1), raw("s_mov_b64 exec, -1", "salu", wr=["exec"])])
LNPRE = int(os.environ.get("LNPRE", "0"))
lv = [0]
def ln_issue(n=1):
    k = 0
    while k < n and lv[0] < len(ln_v):
        it = ln_v[lv[0]]; lv[0] += 1
        e(it)
        if not isinstance(it, list): k += 1
e(valu("v_bfe_u32", vr, v_lane, 2, 2)); e(valu("v_and_b32", vc_, 3, v_lane))
e(valu("v_lshlrev_b32", vx, 10, vG)); e(valu("v_lshl_add_u32", vx, vr, 7, vx)); e(valu("v_lshl_add_u32", vx, vc_, 3, vx)); e(valu("v_add_u32", vx, s_m0b, vx))
e(valu("v_lshrrev_b32", vy, 1, vr)); e(valu("v_and_b32", vz, 1, vG)); e(valu("v_lshl_add_u32", vy, vz, 1, vy))
for u in range(4):
    e(valu("v_xor_b32", vz, u, vy)); e(valu("v_lshl_add_u32", v_tr[0][u], vz, 5, vx)); e(valu("v_add_u32", v_tr[1][u], 3 * 16384, v_tr[0][u]))
e(valu("v_xor_b32", vy, vG, vq))
for ds in range(4):
    e(valu("v_xor_b32", vz, 4 * ds, vy)); e(valu("v_lshlrev_b32", vz, 4, vz)); e(valu("v_lshl_add_u32", vz, vq, 8, vz)); e(valu("v_add_u32", v_ka[ds], RING + 4 * 16384, vz))
e(valu("v_lshl_add_u32", vx, vG, 2, vr)); e(valu("v_and_b32", vy, 7, vx)); e(valu("v_lshlrev_b32", vx, 8, vx)); e(valu("v_lshl_add_u32", vx, vc_, 3, vx)); e(valu("v_add_u32", vx, RING, vx))
for db in range(8):
    e(valu("v_xor_b32", vz, db, vy)); e(valu("v_lshl_add_u32", v_va[db], vz, 5, vx))
e(salu("s_lshl_b32", s_t1, s_w, 12))
e(valu("v_lshlrev_b32", vx, 8, vG)); e(valu("v_add_u32", vx, s_t1, vx))
for j in range(4):
    e(valu("v_add_u32", vy, 4 * j, vG)); e(valu("v_xor_b32", vy, vy, vq)); e(valu("v_lshl_add_u32", v_kd[j], vy, 4, vx))
e(valu("v_and_b32", vz, 1, v_lane)); e(valu("v_lshl_add_u32", vx, vz, 4, vx))
for j in range(2):
    e(valu("v_add_u32", vy, 4 * j, vG)); e(valu("v_lshrrev_b32", vz, 1, vq)); e(valu("v_xor_b32", vy, vy, vz)); e(valu("v_lshl_add_u32", v_vd[j], vy, 5, vx))
e(salu("s_lshl_b32", s_t1, s_w, 14)); e(valu("v_add_u32", v_wl, s_t1, v_lin))
e(salu("s_mov_b32", s_retry, 0, scc_w=False))
for ks in range(XFIRST, 16): e(xl[ks])
e(salu("s_mov_b32", s_t1, hx(WS_FL), scc_w=False))
srd(S_FL, s_pair[0], s_pair[1], 4096, s_t1)
ln_issue(LNPRE)
stamp()

v_f = V(128, 128)
acc = [V(56, 2), V(58, 2), V(60, 2), V(62, 2)]
diag(2)
for ks in range(16):
    em.wait(vm=xl[ks])
    if ks == 15: diag(2)
    for k in range(4):
        p = 4 * ks + k
        e(valu("v_lshlrev_b32", v_f[2 * p], 16, v_xp[p])); e(valu("v_and_b32", v_f[2 * p + 1], "0xffff0000", v_xp[p]))
    for k in range(4):
        p = 4 * ks + k
        if ks == 0: e(valu("v_mov_b64", acc[k], v_f[(2 * p, 2)]))
        else: e(valu("v_pk_add_f32", acc[k], acc[k], v_f[(2 * p, 2)]))
if STAMP == 3: stamp()
ln_issue(int(os.environ.get("LN_FIRST", "12")))
diag(2)
if STAMP == 3: stamp()
e(valu("v_pk_add_f32", acc[0], acc[0], acc[1])); e(valu("v_pk_add_f32", acc[2], acc[2], acc[3])); e(valu("v_pk_add_f32", acc[0], acc[0], acc[2]))
vsum, vtmp, vmb, vdm = V(40), V(41), V(42), V(43)
e(valu("v_add_f32", vsum, acc[0][0], acc[0][1]))
red4("v_add_f32", [vsum], [vtmp])
e(valu("v_mul_f32", vsum, hx(f2u(1.0 / 512)), vsum))
e(valu("v_cvt_pk_bf16_f32", vmb, vsum, vsum)); e(valu("v_lshlrev_b32", vmb, 16, vmb))
e(valu("v_sub_f32", vdm, vsum, vmb))
vneg = V(56, 2)
e(valu("v_sub_f32", vneg[0], 0, vmb))
acc2 = [V(58, 2), V(60, 2), V(62, 2)]
for p in range(64):
    e(valu("v_pk_add_f32", v_f[(2 * p, 2)], v_f[(2 * p, 2)], vneg, mod="op_sel_hi:[1,0]"))
for p in range(64):
    a_ = acc2[p % 3]
    if p < 3: e(valu("v_pk_mul_f32", a_, v_f[(2 * p, 2)], v_f[(2 * p, 2)]))
    else: e(valu("v_pk_fma_f32", a_, v_f[(2 * p, 2)], v_f[(2 * p, 2)], a_))
if STAMP == 3: stamp()
e(valu("v_pk_add_f32", acc2[0], acc2[0], acc2[1])); e(valu("v_pk_add_f32", acc2[0], acc2[0], acc2[2]))
e(valu("v_add_f32", vsum, acc2[0][0], acc2[0][1]))
red4("v_add_f32", [vsum], [vtmp])
e(valu("v_mul_f32", vsum, hx(f2u(1.0 / 512)), vsum))
e(valu("v_fma_f32", vsum, "-" + str(vdm), vdm, vsum, extra_rd=vdm.regs()))
e(valu("v_max_f32", vsum, 0, vsum))
e(valu("v_cvt_pk_bf16_f32", vsum, vsum, vsum)); e(valu("v_lshlrev_b32", vsum, 16, vsum))
e(valu("v_add_f32", vsum, hx(f2u(1e-5)), vsum))
e(valu("v_cvt_pk_bf16_f32", vsum, vsum, vsum)); e(valu("v_lshlrev_b32", vsum, 16, vsum))
e(valu("v_sqrt_f32", vsum, vsum)); e(nop(0))
e(valu("v_cvt_pk_bf16_f32", vsum, vsum, vsum)); e(valu("v_lshlrev_b32", vsum, 16, vsum))
e(valu("v_rcp_f32", vneg[0], vsum)); e(nop(0))
for ks in range(16):
    for k in range(4):
        p = 4 * ks + k
        e(valu("v_pk_mul_f32", v_f[(2 * p, 2)], v_f[(2 * p, 2)], vneg, mod="op_sel_hi:[1,0]"))
    for k in range(4):
        p = 4 * ks + k
        e(valu("v_cvt_pk_bf16_f32", v_xp[p], v_f[2 * p], v_f[2 * p + 1]))
    e(dswrite("ds_write_b128", v_wl, v_xp[(4 * ks, 4)], ks * 1024))
ln_issue(int(os.environ.get("LN_LAST", "0")))
if STAMP == 3: stamp()
if DUMP == "ln": dump_regs([v_xp[i] for i in range(64)])
em.wait(lg0=True)
e(raw("s_barrier"))
stamp(); diag(); diag(2)

def run_stream(NH, dmaf, dtok, accf, Bf, extra, vstream, LOOK=6, nq=4, pos0=0, ring=a_ring):
    NG = 4 * NH
    rtok = {}
    def reads(g):
        m, u = g >> 2, g & 3
        p = (m + pos0) % 6
        d = ring[((g % 8) * 4, 4)]
        r = [dsread("ds_read_b64_tr_b16", d[(2 * h2, 2)], v_tr[p // 3][u], (p % 3) * 16384 + h2 * 512) for h2 in range(2)]
        rtok[g] = r[1]
        return r
    em.wait(vm=dtok[0])
    for g in range(3): e(reads(g))
    for pre in extra.get(-1, []): e(pre[1])
    em.wait(lg0=True)
    vi = 0
    for g in range(NG):
        m, u = g >> 2, g & 3
        gaps = [[], [], [], []]; cap = [2, 2, 2, 2]
        if g + 3 < NG:
            if (g + 3) & 3 == 0: gaps[0].append(Wait(vm=dtok[(g + 3) >> 2]))
            r = reads(g + 3); gaps[0].append(r[0]); gaps[1].append(r[1]); cap[0] -= 1; cap[1] -= 1
        md, j = (g + 4 * LOOK - 4) >> 2, (g + 4 * LOOK - 4) & 3
        if md >= LOOK:
            if j == 0: cur = dmaf(md)
            if cur is not None:
                if j == 0: gaps[2] += cur[0]
                items = cur[1][j::4]
                for it in items: gaps[3].append(it); cap[3] -= 1
                if j == 3: dtok[md] = cur[1][3]
        for (gp, it, cost) in extra.get(g, []):
            gaps[gp].append(it); cap[gp] -= cost
        if g + 1 < NG: gaps[3].insert(0, Wait(lg=rtok[g + 1]))
        d = ring[((g % 8) * 4, 4)]
        for qb in range(nq):
            ac, first = accf(m, u, qb)
            e(mfma(ac, d, Bf(m, qb), 0 if first else ac))
            for it in gaps[qb]: e(it)
            c = cap[qb]
            quota = vstream.quota(g) if vstream else 0
            while vstream and vstream.has(g) and (c > 0 or quota > 0):
                it = vstream.peek()
                cost = 2 if it.kind == "trans" else 1
                if cost > c and quota <= 0: break
                if cost > c: quota -= 1; vstream.used_quota()
                e(vstream.pop()); c -= cost
    if vstream:
        while vstream.has(10 ** 9): e(vstream.pop())

class VStream:
    def __init__(self, items, start, end, extra_total=0):
        self.items = items; self.i = 0; self.start = start; self.end = end
        self.extra_total = extra_total; self.used = 0
    def has(self, g): return self.i < len(self.items) and g >= self.start
    def peek(self): return self.items[self.i]
    def pop(self): self.i += 1; return self.items[self.i - 1]
    def quota(self, g):
        if g < self.start: return 0
        allowed = (g - self.start + 1) * self.extra_total // max(1, self.end - self.start)
        return 1 if allowed > self.used else 0
    def used_quota(self): self.used += 1

def s1_acc(m, u, qb):
    h = m & 1
    idx = ((h * 4 + u) * 4 + qb) * 4
    if m < 32: return A(idx, 4), m < 2
    return v_acc[(idx, 4)], m < 34
def s1_B(m, qb): return a_B[(((m >> 1) & 1) * 16 + qb * 4, 4)]
extra = {}
btok = {}
def bread(s, qb): return dsread("ds_read_b128", a_B[((s & 1) * 16 + qb * 4, 4)], v_lin, (qb * 16 + (s % 16)) * 1024)
extra[-1] = [(0, bread(0, qb), 1) for qb in range(4)]
for s in range(1, 32):
    for qb in range(4):
        extra.setdefault(8 * (s - 1) + 1 + qb, []).append((2, bread(s, qb), 1))
gi = 0; gj = 0; pend_s = []
for it in ln_v[lv[0]:]:
    if isinstance(it, list) and all(x.kind == "salu" for x in it): pend_s = it; continue
    if not isinstance(it, list) and it.kind == "dma":
        assert gi < 12
        extra.setdefault(gi // 3, []).append((gi % 3, [pend_s, it] if pend_s else it, 1)); pend_s = []
        gi += 1
    else:
        extra.setdefault(8 + 2 * gj, []).append((1, it, 1)); gj += 1
C0 = -2.0 * math.sqrt(2.0 / math.pi) * math.log2(math.e); C1 = C0 * 0.044715
vc0, vc1 = V(40), V(41)
gel = [valu("v_mov_b32", vc0, hx(f2u(C0))), valu("v_mov_b32", vc1, hx(f2u(C1)))]
hst = []
tb = 0
for i in range(2):
    for qb in range(4):
        pk = V(44 + 4 * (tb % 4), 4); tb += 1
        for b in range(2):
            u = 2 * i + b
            T = [V(64 + 16 * ((2 * tb + b) % 4) + k) for k in range(16)]
            G_, U_, X_ = T[0:4], T[4:8], T[8:12]
            ga = lambda r: A((u * 4 + qb) * 4 + r); ua = lambda r: A(((4 + u) * 4 + qb) * 4 + r)
            for r in range(4): gel.append(valu("v_accvgpr_read_b32", G_[r], ga(r)))
            for r in range(4): gel.append(valu("v_accvgpr_read_b32", U_[r], ua(r)))
            for r in range(4): gel.append(valu("v_mul_f32", X_[r], G_[r], G_[r]))
            for r in range(4): gel.append(valu("v_fma_f32", X_[r], X_[r], vc1, vc0))
            for r in range(4): gel.append(valu("v_mul_f32", X_[r], X_[r], G_[r]))
            for r in range(4): gel.append(valu("v_exp_f32", X_[r], X_[r]))
            for r in range(4): gel.append(valu("v_mul_f32", G_[r], G_[r], U_[r]))
            for r in range(4): gel.append(valu("v_add_f32", X_[r], "1.0", X_[r]))
            for r in range(4): gel.append(valu("v_rcp_f32", X_[r], X_[r]))
            gel.append(nop(0))
            for r in range(4): gel.append(valu("v_mul_f32", G_[r], G_[r], X_[r]))
            for k in range(2): gel.append(valu("v_cvt_pk_bf16_f32", pk[2 * b + k], G_[2 * k], G_[2 * k + 1]))
        st = bstore(pk, v_lin, S_H, s_h1 if i else s_h0, off=qb * 1024, mod="sc1")
        gel.append(st); hst.append(st)
class Stamp:
    def __call__(self): stamp(); return []
if STAMP: extra.setdefault(128, []).append((0, Stamp(), 0))
vs = VStream(gel, 131, GEL_END, extra_total=GEL_EXTRA)
run_stream(64, s1_dma, dtok, s1_acc, s1_B, extra, vs)
if DUMP == "qacc": dump_regs([v_acc[i] for i in range(128)])
stamp()

em.wait(lg0=True)
e(raw("s_barrier"))
def signal(off_s_expr_add, lab):
    e(scmp("s_cmp_lg_u32", s_w, 0)); e(raw("s_cbranch_scc1 %s" % lab, rd=["scc"]))
    e(salu("s_lshl_b32", s_t0, s_qb, 2))
    if off_s_expr_add: e(salu("s_add_u32", s_t0, s_t0, off_s_expr_add))
    e(valu("v_mov_b32", v_t, 1))
    e(raw("s_mov_b64 exec, 1", "salu", wr=["exec"]))
    e(raw("buffer_atomic_add %s, off, %s, %s sc1" % (v_t, S_DBG, s_t0)))
    e(raw("s_mov_b64 exec, -1", "salu", wr=["exec"]))
    em.label(lab)
QS = math.log2(math.e) / math.sqrt(128.0)
vqs = V(40, 2); vqw = V(42)
e(valu("v_mov_b32", vqs[0], hx(f2u(QS))))
e(valu("v_and_b32", v_t, 15, v_lane)); e(valu("v_bfe_u32", vqw, v_lane, 5, 1)); e(valu("v_lshl_add_u32", v_t, vqw, 4, v_t)); e(valu("v_lshlrev_b32", v_t, 4, v_t))
e(valu("v_bfe_u32", vqw, v_lane, 4, 1)); e(valu("v_lshl_add_u32", vqw, vqw, 3, v_t))
e(salu("s_lshl_b32", s_t1, s_w, 14)); e(valu("v_add_u32", vqw, s_t1, vqw))
for blk in range(8):
    for qb in range(4):
        a_ = v_acc[((blk * 4 + qb) * 4, 4)]
        t = V(64 + 2 * ((blk * 4 + qb) % 8), 2)
        for k in range(2): e(valu("v_pk_mul_f32", a_[(2 * k, 2)], a_[(2 * k, 2)], vqs, mod="op_sel_hi:[1,0]"))
        for k in range(2): e(valu("v_cvt_pk_bf16_f32", t[k], a_[2 * k], a_[2 * k + 1]))
        if len(em.lgq) >= 7: em.wait(lg=em.lgq[-7])
        e(dswrite("ds_write_b64", vqw, t, (qb * 4 + (blk >> 1)) * 1024 + (blk & 1) * 512))
em.wait(lg0=True)
for f in range(16):
    e(dsread("ds_read_b128", a_Q[(4 * f, 4)], v_wl, f * 1024))
    if f == 7: pass
vx, vy, vz = V(96), V(97), V(98)
e(salu("s_lshl_b32", s_t1, s_w, 8))
dma_voffs(v_dA, 1024, s_t1, True)
em.label("L_att_start")
for i in range(64): e(valu("v_mov_b64", v_acc[(2 * i, 2)], 0))
for i in range(4): e(valu("v_mov_b32", v_l0[i], 0)); e(valu("v_mov_b32", v_l1[i], 0))
em.wait(vm0=True, lg0=True)
e(raw("s_barrier"))
e(scmp("s_cmp_lg_u32", s_retry, 0)); e(raw("s_cbranch_scc1 L_sigH", rd=["scc"]))
signal(HC_OFF, "L_sigH")
if DUMP == "q": dump_regs([a_Q[i] for i in range(64)])
stamp()

def Qf(qb, ds): return a_Q[((qb * 4 + ds) * 4, 4)]
def Of(db, qb): return v_acc[((db * 4 + qb) * 4, 4)]
def fr(f): return a_ring[((f % 8) * 4, 4)]
def kslot(par): return 16384 if par == 0 else 0
def vslot(par): return 0 if par == 0 else 16384
def frag_reads(par, f):
    if f >= 32: par ^= 1; f -= 32
    d = fr(f)
    if f < 8 or 16 <= f < 24:
        kb = (f >> 2) if f < 8 else 2 + ((f - 16) >> 2)
        return [dsread("ds_read_b128", d, v_ka[f & 3], kslot(par) + kb * 4096)]
    ks2 = 0 if f < 16 else 1
    db = f & 7
    return [dsread("ds_read_b64_tr_b16", d[(2 * h, 2)], v_va[db], vslot(par) + ks2 * 8192 + h * 4096) for h in range(2)]
def read_sched(g):
    r = []
    if g + 3 < 24 or g >= 29: r.append(g + 3)
    if 19 <= g <= 26: r.append(g + 5)
    return r
def sm_val(g, k):
    if 7 <= g <= 22: b = 1; n = 2 * (g - 7) + k
    else: b = 0; n = 2 * ((g - 23) % 32) + k
    kb, qb, r = n >> 4, (n >> 2) & 3, n & 3
    return b, qb, kb, r
def sm_items(g):
    ex, ad = [], []
    for k in range(2):
        b, qb, kb, r = sm_val(g, k)
        x = v_S[b][qb * 8 + kb * 4 + r]
        l = (v_l1 if b else v_l0)[qb]
        ex.append(valu("v_exp_f32", x, x)); ad.append(valu("v_add_f32", l, l, x))
    b, qb, kb, r = sm_val((g - 1) % 32, 0)
    cv = valu("v_cvt_pk_bf16_f32", v_S[b][qb * 8 + kb * 2 + (r >> 1)], v_S[b][qb * 8 + kb * 4 + r], v_S[b][qb * 8 + kb * 4 + r + 1])
    return ex, ad, cv
def att_dma(par, g):
    if g >= 29: k = g - 29; sp = par
    elif g <= 4: k = g + 3; sp = par ^ 1
    else: return [], None
    sal = []
    if k == 0: sal = [salu("s_add_u32", "m0", s_m0b, 4 * 16384 + kslot(sp))]
    if k == 4: sal = [salu("s_add_u32", "m0", s_m0b, vslot(sp))]
    if k < 4: return sal, dma(v_kd[k], S_K, s_kK, k * 1024)
    return sal, dma(v_vd[k & 1], S_V, s_kV, (k - 4) * 1024)
SIDE_FIRST = 11
class Lbl:
    def __init__(self, n): self.n = n
    def __call__(self): em.label(self.n); return []
class LoopStamp:
    def __init__(self, k, par): self.k, self.par = k, par
    def __call__(self):
        k = self.k
        e(raw("s_memtime %s" % S(68 + 2 * k, 2), "other", wr=[S(68 + 2 * k, 2)]))
        if k == 2:
            e(raw("s_waitcnt lgkmcnt(0)", "wait")); em._retire(em.lgq, 0)
            for i in range(3): e(valu("v_writelane_b32", v_c, S(68 + 2 * i), i, rmw=True))
            e(salu("s_lshl_b32", S(74), S(2), 2)); e(salu("s_add_u32", S(74), S(74), s_w)); e(salu("s_lshl_b32", S(74), S(74), 4))
            e(salu("s_sub_u32", S(74), S(74), s_cnt)); e(salu("s_add_u32", S(74), S(74), 16)); e(salu("s_lshl_b32", S(74), S(74), 5))
            e(salu("s_add_u32", S(74), S(74), (1 << 20) + 16 * self.par))
            e(raw("s_mov_b64 exec, 7", "salu", wr=["exec"]))
            e(valu("v_lshlrev_b32", v_t, 2, v_lane))
            e(bstore(v_c, v_t, S_DMP, S(74), off=0))
            e(raw("s_mov_b64 exec, -1", "salu", wr=["exec"]))
            e(valu("v_lshlrev_b32", v_t, 7, v_lane))
        return []
s_pf = [S(16, 2), S(18, 2), S(24, 2), S(26, 2)]
s_pfH = S(28, 2)
s_fo = S(3)
v_tch, v_flag = V(3), V(0)
xtok = []; lastdma = [None]
ROT = int(os.environ.get('ROT', '10'))
ftok = {}
def att_group(par, g, do_mfma=True, do_mem=True, do_cvt=True, last=False):
    ex, ad, cv = sm_items(g)
    mem = []
    sal = []
    if do_mem:
        for f in read_sched(g):
            r = frag_reads(par, f); mem += r; ftok[f % 32] = r
        sal, d = att_dma(par, g)
        if d is not None: mem.append(d)
    if do_mem and par == 0 and g == 5:
        mem.append(I("global_load_dword %s, %s, %s" % (v_flag, v_tch, s_pf[0]), "vmem", rd=v_tch.regs() + s_pf[0].regs(), wr=[])); xtok.append(mem[-1])
    if do_mem and par == 0 and g == 6:
        mem.append(I("buffer_load_dword %s, off, %s, %s sc1" % (v_flag, S_DBG, s_fo), "vmem", rd=S_DBG.regs() + s_fo.regs(), wr=[])); xtok.append(mem[-1])
    if do_mem and par == 0 and g in (8, 9, 10): sal = sal + [scmp("s_cmp_le_u32", s_cnt, ROT), salu("s_cselect_b64", s_pf[g - 8], s_pf[g - 7], s_pf[g - 8], scc_w=False, scc_r=True)]
    if do_mem and g == 4: lastdma[0] = d
    post0 = []
    if do_mem and do_mfma and par == 1 and g == 30: post0 = [valu("v_readfirstlane_b32", s_t0, v_flag)]
    if do_mem and do_mfma and par == 1 and g == 31: sal = sal + [scmp("s_cmp_lt_u32", s_cnt, ROT), salu("s_cselect_b32", s_t0, s_t0, 0, scc_w=False, scc_r=True), scmp("s_cmp_ge_u32", s_t0, 8), salu("s_cselect_b64", s_pf[3], s_pfH, s_pf[3], scc_w=False, scc_r=True)]
    gaps = [[], [], [], []]
    if g == 29 and do_mem:
        if STAMP == 2 and do_mfma: gaps[0] += [LoopStamp(0, par)]
        gaps[0] += [Wait(lg0=True, vm0=True) if (par == 1 or not do_mfma) else Wait(lg0=True, vm=lastdma[0])]
        if STAMP == 2 and do_mfma: gaps[0] += [LoopStamp(1, par)]
        gaps[0] += [raw("s_barrier")]
        if STAMP == 2 and do_mfma: gaps[0] += [LoopStamp(2, par)]
    gaps[0] += sal
    if g == 6 and do_mem: gaps[0].append(salu("s_add_u32", s_kK, s_kK, 16384))
    if g == 7 and do_mem: gaps[0].append(salu("s_add_u32", s_kV, s_kV, 16384))
    if g == 23 and par == 1 and do_mfma:
        gaps[0] += [valu("v_mov_b32", v_lsave[i], v_l0[i]) for i in range(4)]
    if len(mem) > 2: gaps[0].append(mem[2])
    gaps[0].append(ex[0])
    if len(mem) > 0: gaps[1].append(mem[0])
    if len(mem) == 0 and do_cvt: gaps[1].append(cv)
    gaps[1].append(ad[0])
    gaps[1] += post0
    if do_mem: gaps[2].append(Wait(lg=ftok.get((g + 1) % 32)))
    if last and g == 30: gaps[2].append(salu("s_sub_u32", s_cnt, s_cnt, 1))
    gaps[2].append(ex[1])
    if len(mem) > 1: gaps[3].append(mem[1])
    if len(mem) > 0 and do_cvt: gaps[3].append(cv)
    gaps[3].append(ad[1])
    for qb in range(4):
        if do_mfma:
            if g < 8 or 16 <= g < 24:
                b = 1 if g < 8 else 0
                kb, ds = (g >> 2) & 1, g & 3
                d = v_S[b][(qb * 8 + kb * 4, 4)]
                e(mfma(d, fr(g), Qf(qb, ds), v_negm[(qb * 4, 4)] if ds == 0 else d))
            else:
                b = 0 if g < 16 else 1
                e(mfma(Of(g & 7, qb), fr(g), v_S[b][(qb * 8, 4)], Of(g & 7, qb)))
        else:
            if qb & 1: e(nop(0))
        for it in gaps[qb]: e(it)

for it in range(3):
    e(salu("s_add_u32", s_t0, s_w, 4 * it))
    e(salu("s_sub_u32", s_t1, s_t0, 2)); e(salu("s_min_u32", s_t1, s_t1, 6)); e(salu("s_lshl_b32", s_t1, s_t1, 13))
    e(salu("s_mul_i32", s_t2, s_qb, 57344, scc_w=False)); e(salu("s_add_u32", s_t1, s_t1, s_t2))
    e(salu("s_add_u32", s_pf[it][0], S_WD[0], s_t1)); e(salu("s_addc_u32", s_pf[it][1], S_WD[1], 0, scc_r=True))
    if it == 0:
        e(scmp("s_cmp_ge_u32", s_w, 2)); e(raw("s_cbranch_scc1 L_pf_wd", rd=["scc"]))
        e(salu("s_lshl_b32", s_t1, s_qb, 14)); e(salu("s_lshl_b32", s_t2, s_w, 13)); e(salu("s_add_u32", s_t1, s_t1, s_t2))
        e(salu("s_add_u32", s_pf[0][0], S_WO[0], s_t1)); e(salu("s_addc_u32", s_pf[0][1], S_WO[1], 0, scc_r=True))
        em.label("L_pf_wd")
e(raw("s_getpc_b64 %s" % s_pf[3], "salu", wr=[s_pf[3]]))
em.label("L_pc1")
e(salu("s_lshl_b32", s_t0, s_w, 13)); e(salu("s_add_u32", s_t0, s_t0, "L_tail-L_pc1")); e(salu("s_min_u32", s_t0, s_t0, "L_code_end-L_pc1-8192"))
e(salu("s_add_u32", s_pf[3][0], s_pf[3][0], s_t0)); e(salu("s_addc_u32", s_pf[3][1], s_pf[3][1], 0, scc_r=True))
e(salu("s_lshl_b32", s_t0, s_cg, 2)); e(salu("s_add_u32", s_t0, s_t0, s_w)); e(salu("s_mul_i32", s_t0, s_t0, 7168, scc_w=False)); e(salu("s_min_u32", s_t0, s_t0, 229376 - 8192))
e(salu("s_add_u32", s_pfH[0], S_HC[0], s_t0)); e(salu("s_addc_u32", s_pfH[1], S_HC[1], 0, scc_r=True))
e(valu("v_lshlrev_b32", v_tch, 7, v_lane))
e(salu("s_lshl_b32", s_fo, s_cq, 2)); e(salu("s_add_u32", s_fo, s_fo, HC_OFF))
pr = [dsread("ds_read_b128", fr(f), v_ka[f & 3], (f >> 2) * 4096) for f in range(8)]
for r in pr: e(r)
e(scmp("s_cmp_lg_u32", s_retry, 0)); e(raw("s_cbranch_scc1 L_have_max", rd=["scc"]))
for i in range(16): e(valu("v_mov_b32", v_negm[i], 0))
em.label("L_have_max")
for f in range(8):
    em.wait(lg=pr[f])
    for qb in range(4):
        d = v_S[0][(qb * 8 + (f >> 2) * 4, 4)]
        e(mfma(d, fr(f), Qf(qb, f & 3), v_negm[(qb * 4, 4)] if (f & 3) == 0 else d))
e(salu("s_mov_b32", s_kK, 16384 + 8192, scc_w=False)); e(salu("s_mov_b32", s_kV, 16384, scc_w=False)); e(salu("s_mov_b32", s_cnt, 16, scc_w=False))
e(scmp("s_cmp_lg_u32", s_retry, 0)); e(raw("s_cbranch_scc1 L_have_max2", rd=["scc"]))
e(nop(3))
mx = [V(96 + i) for i in range(4)]; mt = [V(100 + i) for i in range(4)]
for qb in range(4): e(valu("v_max3_f32", mx[qb], v_S[0][qb * 8], v_S[0][qb * 8 + 1], v_S[0][qb * 8 + 2]))
for qb in range(4): e(valu("v_max3_f32", mx[qb], mx[qb], v_S[0][qb * 8 + 3], v_S[0][qb * 8 + 4]))
for qb in range(4): e(valu("v_max3_f32", mx[qb], mx[qb], v_S[0][qb * 8 + 5], v_S[0][qb * 8 + 6]))
for qb in range(4): e(valu("v_max_f32", mx[qb], mx[qb], v_S[0][qb * 8 + 7]))
red4("v_max_f32", mx, mt)
for qb in range(4):
    for k in range(4): e(valu("v_sub_f32", v_negm[qb * 4 + k], 0, mx[qb]))
for qb in range(4):
    for k in range(8): e(valu("v_sub_f32", v_S[0][qb * 8 + k], v_S[0][qb * 8 + k], mx[qb]))
em.label("L_have_max2")
e(nop(7))
for g in range(23, 29): att_group(1, g, do_mfma=False, do_mem=False, do_cvt=(g != 23))
stamp(); diag()
for g in range(29, 32): att_group(1, g, do_mfma=False, do_mem=True)
pro_end = len(em.out)
em.directive(".p2align 6")
em.label("L_att_loop")
def body():
    for par in range(2):
        for g in range(32): att_group(par, g, last=(par == 1))
b0 = len(em.out)
body()
b1 = len(em.out)
e(scmp("s_cmp_lg_u32", s_cnt, 0)); e(raw("s_cbranch_scc1 L_att_loop", rd=["scc"]))
b2 = len(em.out)
body()
second = em.out[b2:]; del em.out[b2:]
assert [i.text for i in second] == [i.text for i in em.out[b0:b1]], "loop not in steady state"
loop_probs = check_hazards(em.out[b1 - 40:b2] + second[:60], "loop-wrap")
stamp()

em.label("L_tail")
diag()
v_ring2 = V(64, 32); v_B2 = V(96, 32)
def hreg(kk, qb): return A(64 + (kk % 12) * 16 + qb * 4, 4)
XY = int(os.environ.get("XY", "0"))
def mh(m): return ((m & 15), m >> 4) if XY else (m >> 1, m & 1)
P2 = 2
def s2_dma(m):
    p = (m + P2) % 6
    if m < 32:
        s, h = mh(m)
        return [m0set(p), salu("s_mov_b32", s_off, s * 32 * 1024 + 128 * h, scc_w=False)], [dma(v_dA[j], S_WO, s_off, j * 1024) for j in range(4)]
    if m < 46:
        return [m0set(p), salu("s_mov_b32", s_off, (m - 32) * 32 * 1024, scc_w=False)], [dma(v_dB[j], S_WD, s_off, j * 1024) for j in range(4)]
    return None
dtok2 = {}
post_v = []
for m in range(0, 6):
    sa, dm = s2_dma(m); post_v.append(sa); post_v += dm; dtok2[m] = dm[3]
pv = [0]
def post_issue(n):
    k = 0
    while k < n and pv[0] < len(post_v):
        it = post_v[pv[0]]; pv[0] += 1
        e(it)
        if not isinstance(it, list): k += 1
post_issue(4)
lt = [V(100 + i) for i in range(4)]
for qb in range(4): e(valu("v_add_f32", v_l1[qb], v_l1[qb], v_lsave[qb]))
red4("v_add_f32", [v_l1[i] for i in range(4)], lt)
e(salu("s_mov_b32", s_t0, hx(f2u(2.0 ** 30)), scc_w=False))
e(valu("v_add_f32", lt[1], v_l1[0], v_l1[1])); e(valu("v_add_f32", lt[2], v_l1[2], v_l1[3])); e(valu("v_add_f32", lt[1], lt[1], lt[2]))
e(valu("v_cmp_nge_f32", "vcc", s_t0, lt[1]))
rinv = [V(104 + 2 * i, 2) for i in range(4)]
for qb in range(4): e(valu("v_rcp_f32", rinv[qb][0], v_l1[qb]))
e(salu("s_mov_b64", s_pair, "vcc", scc_w=False))
post_issue(4)
for i in range(4):
    for qb in range(4):
        t = Of(2 * i, qb)
        for b in range(2):
            o = Of(2 * i + b, qb)
            for k in range(2): e(valu("v_pk_mul_f32", o[(2 * k, 2)], o[(2 * k, 2)], rinv[qb], mod="op_sel_hi:[1,0]"))
        if DUMP != "o":
            for b in range(2):
                o = Of(2 * i + b, qb)
                for k in range(2): e(valu("v_cvt_pk_bf16_f32", t[2 * b + k], o[2 * k], o[2 * k + 1]))
            if i == 0 and qb == 0:
                e(scmp("s_cmp_eq_u64", s_pair, 0)); e(raw("s_cbranch_scc1 L_nomark", rd=["scc"]))
                e(valu("v_mov_b32", t[0], hx(MARK)))
                em.label("L_nomark")
            if len(em.lgq) >= 12: em.wait(lg=em.lgq[-12])
            e(dswrite("ds_write_b128", v_wl, t, (i * 4 + qb) * 1024))
        post_issue(1)
post_issue(100)
if DUMP == "o": dump_regs([v_acc[i] for i in range(128)])
vm_ = V(56); vma = V(57)
e(valu("v_and_b32", vma, 3, v_lane)); e(valu("v_lshlrev_b32", vma, 14, vma))
e(salu("s_mov_b32", s_cnt, 0, scc_w=False))
em.label("L_pollH")
e(valu("v_readfirstlane_b32", s_t0, v_flag)); e(salu("s_mul_i32", s_hb, s_w, 14 * 4096, scc_w=False)); e(nop(1))
e(scmp("s_cmp_ge_u32", s_t0, 8)); e(raw("s_cbranch_scc1 L_pollH_done", rd=["scc"]))
e(salu("s_add_u32", s_cnt, s_cnt, 1)); e(scmp("s_cmp_ge_u32", s_cnt, 50000)); e(raw("s_cbranch_scc1 L_pollH_done", rd=["scc"]))
e(raw("s_sleep 4")); e(raw("buffer_load_dword %s, off, %s, %s sc1" % (v_flag, S_DBG, s_fo))); e(raw("s_waitcnt vmcnt(0)")); e(raw("s_branch L_pollH"))
em.label("L_pollH_done")
em.wait(lg0=True)
e(raw("s_barrier"))
stamp()
mk = e(dsread("ds_read_b32", vm_, vma, 0))
class FbCheck:
    def __call__(self):
        em.wait(lg=mk)
        e(valu("v_cmp_eq_u32", "vcc", hx(MARK), vm_))
        e(scmp("s_cmp_lg_u32", s_retry, 0)); e(raw("s_cbranch_scc1 L_nofb", rd=["scc"]))
        e(nop(1))
        e(raw("s_cbranch_vccnz L_fallback", rd=["vcc"]))
        em.label("L_nofb")
        return []

def s2_acc(m, u, qb):
    if m < 32: return v_acc[(((mh(m)[1] * 4 + u) * 4 + qb) * 4, 4)], mh(m)[0] == 0
    return a_F[((u * 4 + qb) * 4, 4)], m == 32
def bsel(m): return (m & 1) if XY else ((m >> 1) & 1)
def s2_B(m, qb):
    if m < 32: return v_B2[(bsel(m) * 16 + qb * 4, 4)]
    return hreg(m - 32, qb)
def oread(m, qb): return dsread("ds_read_b128", v_B2[(bsel(m) * 16 + qb * 4, 4)], v_lin, (mh(m)[0] * 4 + qb) * 1024)
extra = {-1: [(0, oread(0, qb), 1) for qb in range(4)] + [(0, FbCheck(), 0)]}
for m in range(1, 32):
    if XY:
        rr = [oread(m, qb) for qb in range(4)]
        for qb in range(4): extra.setdefault(4 * (m - 1) + (qb >> 1), []).append((2 + (qb & 1), rr[qb], 1))
        extra.setdefault(4 * m - 1, []).append((2, Wait(lg=rr), 0))
    elif (m & 1) == 0:
        for qb in range(4): extra.setdefault(4 * (m - 2) + 1 + qb, []).append((2, oread(m, qb), 1))
class LateWait:
    def __init__(self, f): self.f = f
    def __call__(self): return Wait(vm=self.f())
vxf = V(40, 8); vxa = V(48); vpoll = V(49); vfw = V(50)
vx, vy, vz = V(52), V(53), V(54)
save = em.out; em.out = []
for k in range(8): e(valu("v_accvgpr_read_b32", vxf[k], a_x[k]))
e(salu("s_mul_i32", s_t1, s_w, 448 * 1024, scc_w=False)); e(salu("s_lshl_b32", s_t3, s_cg, 7)); e(salu("s_add_u32", s_t1, s_t1, s_t3))
dma_voffs(v_dB, 1024, s_t1, True)
xaddr(vxa, vx)
e(valu("v_and_b32", V(51), 7, v_lane)); e(valu("v_lshlrev_b32", V(51), 2, V(51)))
e(salu("s_lshl_b32", s_t0, s_w, 12)); e(valu("v_add_u32", vfw, s_t0, v_lin))
e(salu("s_lshl_b32", s_t3, s_w, 4)); e(salu("s_add_u32", s_t3, s_t3, s_g)); e(salu("s_lshl_b32", s_t3, s_t3, 13))
early = em.out; em.out = save
class Seq:
    kind = "vmem"
    def __init__(self, l): self.l = l
    def __call__(self): return self.l
hld = {}; htok = {}
for kk in range(14):
    hld[kk] = [bload(hreg(kk, qb), v_lin, S_HC, s_hl, off=qb * 1024, mod="sc1") for qb in range(4)]
    htok[kk] = hld[kk][3]
    extra.setdefault(4 * (32 + kk) - 1, []).append((2, LateWait(lambda kk=kk: htok[kk]), 0))
hseq = []
for kk in range(14):
    for qb in range(4):
        hseq.append(Seq([salu("s_add_u32", s_hl, s_hb, kk * 4096), hld[kk][qb]]))
NPRE = int(os.environ.get("NPRE", "12")); HG0 = int(os.environ.get("HG0", "70")); HGS = int(os.environ.get("HGS", "4"))
for k in range(NPRE): extra.setdefault(HG0 + HGS * k, []).append((2, hseq[k], 1))
def sreg(ip, qb, odd=0): return v_acc[(((2 * ip + odd) * 4 + qb) * 4, 4)]
sp = []; spst = []
HPS = int(os.environ.get("HPS", "3")); hk = NPRE
for ip in range(4):
    for qb in range(4):
        t = sreg(ip, qb)
        for b in range(2):
            o = sreg(ip, qb, b)
            for k in range(2): sp.append(valu("v_cvt_pk_bf16_f32", t[2 * b + k], o[2 * k], o[2 * k + 1]))
        if (qb & 1) == 0: sp.append(salu("s_add_u32", s_t1, s_t3, (ip >> 1) * 65536 + (qb >> 1) * 4096))
        st = bstore(t, v_lin, S_SP, s_t1, off=(qb & 1) * 2048 + (ip & 1) * 1024, mod=os.environ.get("ST_MOD", "sc1").replace("plain", ""))
        if os.environ.get("ST_NONE") and not (ip == 3 and qb == 3): st = nop(0)
        sp.append(st); spst.append(st)
        if not (XY and ip < 2):
            for _ in range(HPS * (2 if XY else 1)):
                if hk < 48: sp.append(hseq[hk]); hk += 1
for k in range(hk, 48): sp.append(hseq[k])
for k in range(48, 56): extra.setdefault(140 + (k - 48), []).append((2, hseq[k], 1))
class SigS:
    def __call__(self):
        stamp(); em.wait(vm=spst[-1]); stamp(); e(raw("s_barrier"))
        e(scmp("s_cmp_lg_u32", s_w, 0)); e(raw("s_cbranch_scc1 L_sigS", rd=["scc"]))
        e(valu("v_mov_b32", v_t, 1))
        e(raw("s_mov_b64 exec, 1", "salu", wr=["exec"]))
        e(raw("buffer_store_dword %s, off, %s, %s sc1" % (v_t, S_FL, s_myfl)))
        e(raw("s_mov_b64 exec, -1", "salu", wr=["exec"]))
        em.label("L_sigS")
        return []
G_SIG = int(os.environ.get("G_SIG", "160")); G_POLL = int(os.environ.get("G_POLL", "172")); G_CHK = int(os.environ.get("G_CHK", "178"))
extra.setdefault(G_SIG, []).append((0, SigS(), 0))
vpa = V(51)
ptok = bload(vpoll, vpa, S_FL, s_t2, n=1, mod="sc1")
extra.setdefault(G_POLL, []).append((1, [salu("s_lshl_b32", s_t2, s_cq, 7)], 0))
extra.setdefault(G_POLL, []).append((2, ptok, 1))
def spl(gp, i): return sreg(gp >> 1, (gp & 1) * 2 + i, 1)
sl = []
class ChkS:
    def __call__(self):
        em.wait(vm=ptok)
        stamp()
        e(salu("s_mov_b32", s_cnt, 0, scc_w=False))
        em.label("L_pollS")
        e(valu("v_cmp_ne_u32", "vcc", 1, vpoll)); e(nop(2))
        e(raw("s_cbranch_vccz L_pollS_done", rd=["vcc"]))
        e(salu("s_add_u32", s_cnt, s_cnt, 1)); e(scmp("s_cmp_ge_u32", s_cnt, 50000)); e(raw("s_cbranch_scc1 L_pollS_done", rd=["scc"]))
        e(raw("buffer_load_dword %s, %s, %s, %s offen sc1" % (vpoll, vpa, S_FL, s_t2))); e(raw("s_waitcnt vmcnt(0)")); e(raw("s_branch L_pollS"))
        em.label("L_pollS_done")
        stamp()
        e(salu("s_lshl_b32", s_t0, s_cg, 16)); e(salu("s_lshl_b32", s_t1, s_w, 11)); e(salu("s_add_u32", s_t0, s_t0, s_t1))
        for gp in range(8):
            for i in range(2): sl.append(e(bload(spl(gp, i), v_lin, S_SPC, s_t0, off=i * 1024, mod="sc1")))
            if gp < 7: e(salu("s_add_u32", s_t0, s_t0, 8192))
        return []
if G_CHK < 184: extra.setdefault(G_CHK, []).append((0, ChkS(), 0))
if STAMP: extra.setdefault(128, []).append((0, Stamp(), 0))
class Diag:
    def __call__(self): diag(); return []
if DIAG: extra.setdefault(128, []).append((0, Diag(), 0))
class Paced(VStream):
    def has(self, g): return self.i < len(self.items) and g >= self.start and self.i <= (g - self.start + 1) * len(self.items) // max(1, self.end - self.start)
    def quota(self, g): return 99 if g >= self.start else 0
class Multi:
    def __init__(self, *l): self.l = list(l)
    def cur(self, g):
        for x in self.l:
            if x.i < len(x.items): return x
        return self.l[-1]
    def has(self, g): return self.cur(g).has(g)
    def peek(self): return self.cur(0).peek()
    def pop(self): return self.cur(0).pop()
    def quota(self, g): return self.cur(g).quota(g)
    def used_quota(self): self.cur(0).used_quota()
SP_END = int(os.environ.get("SP_END", "146"))
if XY:
    half = sp.index(spst[7]) + 1
    vs = Multi(VStream(early, 2, 40), Paced(sp[:half], int(os.environ.get("X_START", "67")), int(os.environ.get("X_END", "75"))), Paced(sp[half:], 130, SP_END))
else:
    vs = Multi(VStream(early, 2, 40), Paced(sp, 130, SP_END))
class ChkEarly:
    def __call__(self):
        assert vs.l[0].i == len(vs.l[0].items); return []
extra.setdefault(59, []).append((0, ChkEarly(), 0))
run_stream(46, s2_dma, dtok2, s2_acc, s2_B, extra, vs, pos0=P2, ring=v_ring2)
stamp(); diag()
e(nop(6))
for qb in range(4):
    for u in range(4):
        if len(em.lgq) >= 12: em.wait(lg=em.lgq[-12])
        e(dswrite("ds_write_b128", vfw, a_F[((u * 4 + qb) * 4, 4)], qb * 16384 + u * 1024))
if G_CHK >= 184: ChkS()()
em.wait(lg0=True)
e(raw("s_barrier"))
def frr(ws_, u): return sreg(ws_, u, 0)
for ws_ in range(4):
    for u in range(4):
        if len(em.lgq) >= 14: em.wait(lg=em.lgq[-14])
        e(dsread("ds_read_b128", frr(ws_, u), v_wl, ws_ * 4096 + u * 1024))
em.wait(lg0=True)
v_fr = V(96, 16); vE = V(64, 16); vs_ = V(80, 16)
for u in range(4):
    for k in range(2):
        e(valu("v_pk_add_f32", frr(0, u)[(2 * k, 2)], frr(0, u)[(2 * k, 2)], frr(1, u)[(2 * k, 2)]))
        e(valu("v_pk_add_f32", frr(2, u)[(2 * k, 2)], frr(2, u)[(2 * k, 2)], frr(3, u)[(2 * k, 2)]))
for u in range(4):
    for k in range(2): e(valu("v_pk_add_f32", v_fr[(4 * u + 2 * k, 2)], frr(0, u)[(2 * k, 2)], frr(2, u)[(2 * k, 2)]))
for k in range(16): e(valu("v_mul_f32", vE[k], hx(f2u(-math.log2(math.e))), v_fr[k]))
for k in range(16): e(valu("v_exp_f32", vE[k], vE[k]))
for k in range(16): e(valu("v_add_f32", vE[k], "1.0", vE[k]))
for k in range(16): e(valu("v_rcp_f32", vE[k], vE[k]))
for k in range(16): e(valu("v_mul_f32", v_fr[k], v_fr[k], vE[k]))
for k in range(8):
    e(valu("v_lshlrev_b32", vE[2 * k], 16, vxf[k])); e(valu("v_and_b32", vE[2 * k + 1], "0xffff0000", vxf[k]))
for gp in range(8):
    em.wait(vm=sl[2 * gp + 1])
    for k in range(8):
        src = spl(gp, k >> 2)[k & 3]
        if gp == 0:
            e(valu("v_lshlrev_b32", vs_[2 * k], 16, src)); e(valu("v_and_b32", vs_[2 * k + 1], "0xffff0000", src))
        else:
            e(valu("v_lshlrev_b32", V(112 + 2 * (k & 3)), 16, src)); e(valu("v_and_b32", V(113 + 2 * (k & 3)), "0xffff0000", src))
            e(valu("v_pk_add_f32", vs_[(2 * k, 2)], vs_[(2 * k, 2)], V(112 + 2 * (k & 3), 2)))
if DUMP == "fin": dump_regs([vs_[i] for i in range(16)] + [v_fr[i] for i in range(16)])
for k in range(8): e(valu("v_pk_fma_f32", vE[(2 * k, 2)], vs_[(2 * k, 2)], v_fr[(2 * k, 2)], vE[(2 * k, 2)]))
for k in range(8): e(valu("v_cvt_pk_bf16_f32", vxf[k], vE[2 * k], vE[2 * k + 1]))
for u in range(4): e(bstore(vxf[(2 * u, 2)], vxa, S_OUT, 0, off=32 * u))
stamp(); diag_out()
em.label("L_end")
e(raw("s_endpgm"))
main_end = len(em.out)

em.lgq, em.vmq, em.pend = [], [], {}
em.label("L_fallback")
e(raw("s_waitcnt vmcnt(0) lgkmcnt(0)")); em._retire(em.vmq, 0); em._retire(em.lgq, 0)
e(salu("s_mov_b32", s_retry, 1, scc_w=False))
e(salu("s_mov_b32", s_kK, 0, scc_w=False))
fm = [V(40 + i) for i in range(4)]
for i in range(4): e(valu("v_mov_b32", fm[i], "0xff800000"))
em.label("L_fb_loop")
e(raw("s_barrier"))
e(salu("s_add_u32", "m0", s_m0b, 4 * 16384)); e(nop(0))
for j in range(4): e(dma(v_kd[j], S_K, s_kK, j * 1024))
em.wait(vm0=True)
e(raw("s_barrier"))
for kb in range(4):
    rr = [e(dsread("ds_read_b128", fr(ds), v_ka[ds], kb * 4096)) for ds in range(4)]
    em.wait(lg0=True)
    for ds in range(4):
        for qb in range(4):
            d = v_S[0][(qb * 4, 4)]
            e(mfma(d, fr(ds), Qf(qb, ds), 0 if ds == 0 else d))
    e(nop(7))
    for qb in range(4):
        e(valu("v_max3_f32", fm[qb], fm[qb], v_S[0][qb * 4], v_S[0][qb * 4 + 1])); e(valu("v_max3_f32", fm[qb], fm[qb], v_S[0][qb * 4 + 2], v_S[0][qb * 4 + 3]))
    e(nop(2))
e(salu("s_add_u32", s_kK, s_kK, 16384)); e(scmp("s_cmp_lt_u32", s_kK, 524288)); e(raw("s_cbranch_scc1 L_fb_loop", rd=["scc"]))
red4("v_max_f32", fm, [V(44 + i) for i in range(4)])
for qb in range(4):
    for k in range(4): e(valu("v_sub_f32", v_negm[qb * 4 + k], 0, fm[qb]))
e(raw("s_barrier"))
for m in (64, 65, 66):
    sa, dm = s1_dma(m); e(sa)
    for d in dm: e(d)
e(raw("s_branch L_att_start"))
em.label("L_code_end")
e(raw("s_endpgm"))

probs = check_hazards(em.out, "main") + loop_probs
for p in probs: print("; HAZARD", p, file=sys.stderr)
assert not probs

hdr = open(os.path.join(os.path.dirname(os.path.abspath(__file__)), "header.txt")).read()
print(hdr.rstrip())
print("; @launch grid=(256,1,1) block=(256,1,1) lds=163840")
print('.amdgcn_target "amdgcn-amd-amdhsa--gfx950"\n.text\n.globl %s\n.p2align 8\n.type %s,@function\n%s:' % (KN, KN, KN))
print(em.text())
print('.section .rodata,"a"\n.p2align 6\n.amdhsa_kernel %s' % KN)
print("  .amdhsa_next_free_vgpr 512\n  .amdhsa_next_free_sgpr 102\n  .amdhsa_accum_offset 256\n  .amdhsa_group_segment_fixed_size 0\n  .amdhsa_kernarg_size 96\n  .amdhsa_user_sgpr_count 2\n  .amdhsa_user_sgpr_kernarg_segment_ptr 1\n  .amdhsa_system_sgpr_workgroup_id_x 1\n.end_amdhsa_kernel")
```

```python
import sys, os, math, struct
from asmgen import *

KN = "recurrent_scan__gqa_block_cached__geglu_ffn__prompt_kernel"
DUMP = os.environ.get("DUMP", "")
STAMP = int(os.environ.get("STAMP", "0"))
GEL_END = int(os.environ.get("GEL_END", "254")); GEL_EXTRA = int(os.environ.get("GEL_EXTRA", "360"))

def f2u(x): return struct.unpack("<I", struct.pack("<f", x))[0]
def hx(x): return "0x%x" % (x & 0xffffffff)

S_X, S_K, S_V, S_WQ, S_WO, S_WG, S_WU, S_WD, S_OUT, S_DBG, S_H, S_SP = [S(4 + 4 * i, 4) for i in range(12)]
s_g, s_qb, s_w = S(52), S(53), S(54)
s_t0, s_t1, s_t2, s_t3 = S(55), S(56), S(57), S(58)
s_m0b = S(59)
s_off = S(60)
s_cnt = S(61)
s_kK, s_kV = S(62), S(63)
s_retry = S(64)
s_h0, s_h1 = S(65), S(66)
s_hl = S(67); s_hb = S(78); s_myfl = S(79); s_wdd = S(67); s_sig = S(78)
s_ka = S(68, 16); s_kb = S(84, 8)
s_pair = S(92, 2); s_pair2 = S(94, 2)
S_DMP = S(96, 4)
s_cq, s_cg = S(76), S(77)
S_HC = S(80, 4)
S_SPC = S(84, 4)
S_XC = S(88, 4)
s_st = S(68, 4)

v_tid, v_lane, v_lin, v_t = V(0), V(1), V(2), V(3)
v_tr = [V(4, 4), V(8, 4)]
v_dA, v_dB = V(12, 4), V(16, 4)
v_ka = V(20, 4); v_va = V(24, 8); v_kd = V(32, 4); v_vd = V(36, 2)
v_wl = V(38)
v_c = V(39)
v_l0, v_l1 = V(40, 4), V(44, 4)
v_lsave = V(16, 4)
v_negm = V(48, 16)
v_S = [V(64, 32), V(96, 32)]
v_acc = V(128, 128)
a_ring = A(128, 32)
a_B = A(160, 32)
a_Q = A(0, 64)
a_F = A(0, 64)
a_x = A(248, 8)

RING = 65536
MARK = 0x7fc17fc1
WS_SP = 8 << 20
WS_DUMP = 32 << 20
WS_FL = (7 << 20) + (512 << 10)
S_FL = S(4, 4)

em = Em()
e = em.e

def srd(dst, lo, hi, size, off_s=None):
    if off_s is None:
        e(salu("s_mov_b32", dst[0], lo, scc_w=False)); e(salu("s_mov_b32", dst[1], hi, scc_w=False))
    else:
        e(salu("s_add_u32", dst[0], lo, off_s)); e(salu("s_addc_u32", dst[1], hi, 0, scc_r=True))
    e(salu("s_mov_b32", dst[2], hx(size), scc_w=False)); e(salu("s_mov_b32", dst[3], "0x20000", scc_w=False))

DIAG = int(os.environ.get("DIAG", "0"))
HC_OFF = 128
diag_regs = [S(100, 2), S(70, 2), S(72, 2), S(74, 2), S(96, 2), S(98, 2), S(68, 2)] if DIAG == 1 else [S(100, 2), S(96, 2), S(98, 2), S(94, 2), S(70, 2), S(72, 2), S(74, 2), S(68, 2)]
diag_n = [0]
def diag(which=1, last=False):
    if not DIAG or (which != DIAG and which != 0): return
    k = diag_n[0]; diag_n[0] += 1
    e(raw("%s %s" % ("s_memtime" if (os.environ.get("CYC") and not last) else "s_memrealtime", diag_regs[k]), "other", wr=[diag_regs[k]]))
    if k > 0: e(raw("s_waitcnt lgkmcnt(0)", "wait")); em._retire(em.lgq, 0)
AMP = os.environ.get("AMP")
def diag_out():
    if not DIAG: return
    diag(0, last=True)
    if AMP:
        k = int(AMP); last = diag_regs[diag_n[0] - 1]
        e(salu("s_sub_u32", s_t0, diag_regs[k][0], diag_regs[int(os.environ.get("AMP0", "0"))][0]))
        if os.environ.get("CYC"): e(salu("s_lshr_b32", s_t0, s_t0, 2))
        else: e(salu("s_lshl_b32", s_t0, s_t0, 2))
        em.label("L_amp")
        e(raw("s_memrealtime s[56:57]")); e(raw("s_waitcnt lgkmcnt(0)"))
        e(salu("s_sub_u32", s_t1, s_t1, last[0])); e(scmp("s_cmp_lt_u32", s_t1, s_t0)); e(raw("s_cbranch_scc1 L_amp", rd=["scc"]))
        return
    e(scmp("s_cmp_lg_u32", s_w, 0)); e(raw("s_cbranch_scc1 L_end", rd=["scc"]))
    e(raw("s_mov_b64 exec, 1", "salu", wr=["exec"]))
    e(salu("s_not_b32", s_t0, diag_regs[0][0]))
    for k in range(diag_n[0]):
        e(valu("v_mov_b32", V(4 + k), s_t0 if k == 0 else diag_regs[k][0]))
        e(raw("buffer_atomic_umax %s, off, %s, 0 offset:%d sc1" % (V(4 + k), S_DBG, 4 * k)))
    e(valu("v_mov_b32", V(12), diag_regs[0][0]))
    e(raw("buffer_atomic_umax %s, off, %s, 0 offset:%d sc1" % (V(12), S_DBG, 4 * 9)))
stamp_n = [0]
def stamp():
    if not STAMP: return
    k = stamp_n[0]; stamp_n[0] += 1
    e(raw("s_memtime %s" % S(68, 2), "other", wr=[S(68, 2)]))
    e(raw("s_memrealtime %s" % S(70, 2), "other", wr=[S(70, 2)]))
    e(raw("s_waitcnt lgkmcnt(0)", "wait")); em._retire(em.lgq, 0)
    for i in range(4): e(valu("v_writelane_b32", v_c, S(68 + i), i, rmw=True))
    e(salu("s_lshl_b32", S(72), S(2), 2)); e(salu("s_add_u32", S(72), S(72), s_w)); e(salu("s_lshl_b32", S(72), S(72), 9))
    e(salu("s_mov_b64", S(74, 2), "exec", scc_w=False)); e(raw("s_mov_b64 exec, 15", "salu", wr=["exec"]))
    e(valu("v_lshlrev_b32", v_t, 2, v_lane))
    e(bstore(v_c, v_t, S_DMP, S(72), off=k * 16))
    e(raw("s_mov_b64 exec, %s" % S(74, 2), "salu", wr=["exec"]))
    e(valu("v_lshlrev_b32", v_t, 7, v_lane))

def dump_regs(regs, finish=True):
    em.wait(lg0=True, vm0=True)
    e(nop(7)); e(nop(7))
    n = len(regs)
    e(salu("s_lshl_b32", s_t0, S(2), 2)); e(salu("s_add_u32", s_t0, s_t0, s_w)); e(salu("s_mul_i32", s_t0, s_t0, n * 256, scc_w=False))
    e(valu("v_lshlrev_b32", v_t, 2, v_lane))
    for k, r in enumerate(regs):
        e(bstore(r, v_t, S_DMP, s_t0, off=0))
        e(salu("s_add_u32", s_t0, s_t0, 256))
        if k % 32 == 31: em.wait(vm0=True)
    em.wait(vm0=True)
    if finish: e(raw("s_endpgm"))

def red4(op, x, tmp):
    for sw in ("v_permlane32_swap_b32", "v_permlane16_swap_b32"):
        for a, t in zip(x, tmp): e(valu("v_mov_b32", t, a))
        if len(x) < 3: e(nop(1))
        for a, t in zip(x, tmp): e(valu(sw, a, t))
        for a, t in zip(x, tmp): e(valu(op, a, a, t))

e(scmp("s_cmp_ge_u32", S(2), 256)); e(raw("s_cbranch_scc1 L_end", rd=["scc"]))
diag(0)
i0 = e(I("s_load_dwordx16 %s, s[0:1], 0" % s_ka, "smem", wr=s_ka.regs()))
i1 = e(I("s_load_dwordx8 %s, s[0:1], 64" % s_kb, "smem", wr=s_kb.regs()))
vq, vG, vr, vc_, vx, vy, vz = [V(40 + i) for i in range(7)]
e(raw("s_getpc_b64 %s" % s_pair2, "salu", wr=[s_pair2]))
em.label("L_pc0")
CT0 = int(os.environ.get("CT0", "64"))
if CT0:
    e(valu("v_sub_u32", V(55), 255, v_tid)); e(valu("v_cmp_gt_u32", "vcc", CT0, V(55))); e(valu("v_lshlrev_b32", V(55), 7, V(55))); e(nop(0))
    e(raw("s_and_saveexec_b64 s[4:5], vcc", "salu", wr=["exec"], rd=["vcc"])); e(raw("s_cbranch_execz L_ct0"))
    e(raw("global_load_dword v55, v55, %s" % s_pair2))
    em.label("L_ct0")
    e(raw("s_mov_b64 exec, -1", "salu", wr=["exec"]))
e(salu("s_and_b32", s_g, S(2), 7)); e(salu("s_lshr_b32", s_qb, S(2), 3))
e(valu("v_and_b32", v_lane, 63, v_tid))
e(valu("v_lshrrev_b32", v_t, 6, v_tid))
e(valu("v_lshlrev_b32", v_lin, 4, v_lane))
e(valu("v_readfirstlane_b32", s_w, v_t))
e(valu("v_and_b32", vq, 15, v_lane)); e(valu("v_lshrrev_b32", vG, 4, v_lane))
vxo = V(47)
e(valu("v_lshl_add_u32", vxo, v_t, 4, vq)); e(valu("v_lshlrev_b32", vxo, 10, vxo)); e(valu("v_lshl_add_u32", vxo, vG, 4, vxo))
vwg, vwq, vcw = V(52), V(53), V(54)
e(salu("s_mul_i32", s_t1, s_g, 448, scc_w=False)); e(salu("s_and_b32", s_t1, s_t1, hx(~127)))
e(salu("s_and_b32", s_t2, s_w, 1)); e(salu("s_lshl_b32", s_t3, s_qb, 1)); e(salu("s_add_u32", s_t2, s_t2, s_t3))
e(salu("s_mul_i32", s_t2, s_t2, 8 * 3584, scc_w=False)); e(salu("s_add_u32", s_t1, s_t1, s_t2))
e(valu("v_lshrrev_b32", vx, 2, v_lane)); e(valu("v_mul_u32_u24", vx, 3584, vx)); e(valu("v_and_b32", vz, 3, v_lane)); e(valu("v_lshl_add_u32", vx, vz, 7, vx))
e(valu("v_add_u32", vwg, s_t1, vx))
e(salu("s_lshl_b32", s_t2, s_qb, 2)); e(salu("s_add_u32", s_t2, s_t2, s_w)); e(salu("s_lshl_b32", s_t3, s_t2, 8))
e(valu("v_lshlrev_b32", vcw, 7, v_lane)); e(valu("v_add_u32", vcw, s_t3, vcw))
e(salu("s_lshl_b32", s_t0, s_qb, 16))
em.wait(lg0=True)
diag(2)
srd(S_X, s_ka[0], s_ka[1], 65536, s_t0)
v_xp = V(64, 64)
XFIRST = int(os.environ.get("XFIRST", "12"))
xl = [bload(v_xp[(4 * ks, 4)], vxo, S_X, 0, off=64 * ks) for ks in range(16)]
for ks in range(XFIRST): e(xl[ks])
e(scmp("s_cmp_lt_u32", s_w, 2)); e(salu("s_cselect_b64", s_pair, s_ka[(12, 2)], s_ka[(14, 2)], scc_w=False, scc_r=True))
e(raw("s_mov_b64 exec, 0xffffffff", "salu", wr=["exec"]))
e(I("global_load_dword %s, %s, %s" % (V(48), vwg, s_pair), "vmem", rd=vwg.regs() + s_pair.regs(), wr=V(48).regs()))
e(raw("s_mov_b64 exec, 3", "salu", wr=["exec"]))
e(I("global_load_dword %s, %s, %s" % (V(49), vcw, s_pair2), "vmem", rd=vcw.regs() + s_pair2.regs(), wr=V(49).regs()))
e(raw("s_mov_b64 exec, -1", "salu", wr=["exec"]))
e(salu("s_lshl_b32", s_t2, s_t2, 15)); e(salu("s_lshl_b32", s_t3, s_g, 10)); e(salu("s_add_u32", s_t2, s_t2, s_t3))
e(valu("v_lshrrev_b32", vx, 3, v_lane)); e(valu("v_lshlrev_b32", vx, 13, vx)); e(valu("v_and_b32", vz, 7, v_lane)); e(valu("v_lshl_add_u32", vx, vz, 7, vx))
e(valu("v_add_u32", vwq, s_t2, vx))
e(salu("s_lshr_b32", s_t2, s_qb, 3)); e(salu("s_lshl_b32", s_t3, s_g, 2)); e(salu("s_add_u32", s_t2, s_t2, s_t3))
e(salu("s_lshl_b32", s_t0, s_t2, 16))
srd(S_OUT, s_kb[2], s_kb[3], 65536, s_t0)
e(salu("s_lshl_b32", s_t1, s_g, 19))
srd(S_K, s_ka[2], s_ka[3], 524288, s_t1)
srd(S_V, s_ka[4], s_ka[5], 524288, s_t1)
srd(S_WO, s_ka[8], s_ka[9], 524288, s_t1)
srd(S_WQ, s_ka[6], s_ka[7], 4 << 20)
srd(S_WG, s_ka[12], s_ka[13], 1835008)
srd(S_WU, s_ka[14], s_ka[15], 1835008)
srd(S_WD, s_kb[0], s_kb[1], 1835008)
srd(S_DBG, s_kb[4], s_kb[5], 256)
e(salu("s_mul_i32", s_t1, s_qb, 229376, scc_w=False))
srd(S_H, s_kb[6], s_kb[7], 229376, s_t1)
e(salu("s_lshl_b32", s_t1, s_qb, 19)); e(salu("s_add_u32", s_t1, s_t1, hx(WS_SP)))
srd(S_SP, s_kb[6], s_kb[7], 524288, s_t1)
if DUMP or STAMP:
    e(salu("s_mov_b32", s_t1, hx(WS_DUMP), scc_w=False))
    srd(S_DMP, s_kb[6], s_kb[7], 200 << 20, s_t1)
e(salu("s_mov_b64", s_pair, S(90, 2), scc_w=False))
e(salu("s_lshl_b32", s_t0, s_t2, 16))
srd(S_XC, s_ka[0], s_ka[1], 65536, s_t0)
e(salu("s_mul_i32", s_t1, s_t2, 229376, scc_w=False))
srd(S_HC, s_pair[0], s_pair[1], 229376, s_t1)
e(salu("s_lshl_b32", s_t1, s_t2, 19)); e(salu("s_add_u32", s_t1, s_t1, hx(WS_SP)))
srd(S_SPC, s_pair[0], s_pair[1], 524288, s_t1)
e(salu("s_mov_b32", s_cq, s_t2, scc_w=False)); e(salu("s_and_b32", s_cg, s_qb, 7))
e(salu("s_lshl_b32", s_myfl, s_qb, 7)); e(salu("s_lshl_b32", s_t1, s_g, 2)); e(salu("s_add_u32", s_myfl, s_myfl, s_t1))
e(salu("s_lshl_b32", s_m0b, s_w, 12)); e(salu("s_add_u32", s_m0b, s_m0b, RING))
e(salu("s_and_b32", s_t1, s_g, 1)); e(salu("s_lshl_b32", s_t1, s_t1, 2)); e(salu("s_add_u32", s_t1, s_t1, s_w))
e(scmp("s_cmp_eq_u32", s_w, 3)); e(salu("s_cselect_b32", s_t1, 3, s_t1, scc_w=False, scc_r=True))
e(salu("s_lshr_b32", s_t2, s_g, 1)); e(salu("s_mul_i32", s_t2, s_t2, 7, scc_w=False)); e(salu("s_add_u32", s_t1, s_t1, s_t2))
e(salu("s_lshl_b32", s_h0, s_t1, 13)); e(salu("s_add_u32", s_h1, s_h0, 4096))
e(salu("s_lshl_b32", s_t1, s_t1, 7))
e(salu("s_lshl_b32", s_t2, s_g, 2)); e(salu("s_add_u32", s_t2, s_t2, s_w)); e(salu("s_lshl_b32", s_t2, s_t2, 8))

def dma_voffs(dst, stride, colbase_s, perm):
    for j in range(4):
        e(valu("v_bfe_u32", vx, v_lane, 1, 2)); e(valu("v_bfe_u32", vy, v_lane, 4, 1))
        e(valu("v_xor_b32", vx, vx, vy))
        if j & 1: e(valu("v_xor_b32", vx, 2, vx))
        e(valu("v_and_b32", vy, 1, v_lane)); e(valu("v_lshlrev_b32", vy, 4, vy)); e(valu("v_lshl_add_u32", vx, vx, 5, vy))
        if not perm:
            e(valu("v_lshrrev_b32", vy, 3, v_lane)); rowadd = 8 * j
        else:
            e(valu("v_bfe_u32", vy, v_lane, 3, 2)); e(valu("v_bfe_u32", vz, v_lane, 5, 1)); e(valu("v_lshl_add_u32", vy, vz, 4, vy)); rowadd = 4 * j
        e(valu("v_mul_u32_u24", vy, stride, vy))
        e(valu("v_add3_u32", vx, vx, vy, colbase_s))
        e(valu("v_add_u32", dst[j], rowadd * stride - j * 1024, vx))

dma_voffs(v_dA, 3584, s_t1, False)
dma_voffs(v_dB, 8192, s_t2, False)

def m0set(p): return salu("s_add_u32", "m0", s_m0b, p * 16384) if p < 6 else salu("s_sub_u32", "m0", s_m0b, RING - (p - 6) * 16384)
def s1_dma(m):
    p = m % 6
    if m < 32:
        s, h = m >> 1, m & 1
        return [m0set(p), salu("s_mov_b32", s_off, s * 32 * 3584, scc_w=False)], [dma(v_dA[j], S_WU if h else S_WG, s_off, j * 1024) for j in range(4)]
    if m < 64:
        s, h = (m - 32) >> 1, m & 1
        return [m0set(p), salu("s_mov_b32", s_off, s * 32 * 8192 + 128 * h, scc_w=False)], [dma(v_dB[j], S_WQ, s_off, j * 1024) for j in range(4)]
    if m == 64:
        return [m0set(p), salu("s_mov_b32", s_off, 0, scc_w=False)], [dma(v_kd[j], S_K, s_off, j * 1024) for j in range(4)]
    if m == 65:
        return [m0set(p), salu("s_mov_b32", s_off, 8192, scc_w=False)], [dma(v_kd[j], S_K, s_off, j * 1024) for j in range(4)]
    if m == 66:
        return [m0set(p), salu("s_mov_b32", s_off, 0, scc_w=False)], [dma(v_vd[j & 1], S_V, s_off, j * 1024) for j in range(4)]
    return None
dtok = {}
ln_v = []
for m in range(6):
    sa, dm = s1_dma(m)
    ln_v.append(sa); ln_v += dm
    dtok[m] = dm[3]
def xaddr(dst, tmp):
    e(valu("v_and_b32", dst, 15, v_lane)); e(salu("s_lshl_b32", s_t0, s_w, 4)); e(valu("v_add_u32", dst, s_t0, dst)); e(valu("v_lshlrev_b32", dst, 10, dst))
    e(valu("v_lshrrev_b32", tmp, 4, v_lane)); e(valu("v_lshl_add_u32", dst, tmp, 3, dst)); e(salu("s_lshl_b32", s_t0, s_cg, 7)); e(valu("v_add_u32", dst, s_t0, dst))
vxs, vzero = V(50), V(51)
xaddr(vxs, vy)
e(valu("v_mov_b32", vzero, 0))
ln_v += [bload(a_x[(2 * u, 2)], vxs, S_XC, 0, off=32 * u, n=2) for u in range(4)]
ln_v.append([raw("s_mov_b64 exec, 1", "salu", wr=["exec"]), bstore(vzero, None, S_FL, s_myfl, mod="sc1"), raw("s_mov_b64 exec, -1", "salu", wr=["exec"])])
ln_v.append([raw("s_mov_b64 exec, 0xffffffff", "salu", wr=["exec"]), bload(V(46), vwq, S_WQ, 0, n=1), raw("s_mov_b64 exec, -1", "salu", wr=["exec"])])
LNPRE = int(os.environ.get("LNPRE", "0"))
lv = [0]
def ln_issue(n=1):
    k = 0
    while k < n and lv[0] < len(ln_v):
        it = ln_v[lv[0]]; lv[0] += 1
        e(it)
        if not isinstance(it, list): k += 1
e(valu("v_bfe_u32", vr, v_lane, 2, 2)); e(valu("v_and_b32", vc_, 3, v_lane))
e(valu("v_lshlrev_b32", vx, 10, vG)); e(valu("v_lshl_add_u32", vx, vr, 7, vx)); e(valu("v_lshl_add_u32", vx, vc_, 3, vx)); e(valu("v_add_u32", vx, s_m0b, vx))
e(valu("v_lshrrev_b32", vy, 1, vr)); e(valu("v_and_b32", vz, 1, vG)); e(valu("v_lshl_add_u32", vy, vz, 1, vy))
for u in range(4):
    e(valu("v_xor_b32", vz, u, vy)); e(valu("v_lshl_add_u32", v_tr[0][u], vz, 5, vx)); e(valu("v_add_u32", v_tr[1][u], 3 * 16384, v_tr[0][u]))
e(valu("v_xor_b32", vy, vG, vq))
for ds in range(4):
    e(valu("v_xor_b32", vz, 4 * ds, vy)); e(valu("v_lshlrev_b32", vz, 4, vz)); e(valu("v_lshl_add_u32", vz, vq, 8, vz)); e(valu("v_add_u32", v_ka[ds], RING + 4 * 16384, vz))
e(valu("v_lshl_add_u32", vx, vG, 2, vr)); e(valu("v_and_b32", vy, 7, vx)); e(valu("v_lshlrev_b32", vx, 8, vx)); e(valu("v_lshl_add_u32", vx, vc_, 3, vx)); e(valu("v_add_u32", vx, RING, vx))
for db in range(8):
    e(valu("v_xor_b32", vz, db, vy)); e(valu("v_lshl_add_u32", v_va[db], vz, 5, vx))
e(salu("s_lshl_b32", s_t1, s_w, 12))
e(valu("v_lshlrev_b32", vx, 8, vG)); e(valu("v_add_u32", vx, s_t1, vx))
for j in range(4):
    e(valu("v_add_u32", vy, 4 * j, vG)); e(valu("v_xor_b32", vy, vy, vq)); e(valu("v_lshl_add_u32", v_kd[j], vy, 4, vx))
e(valu("v_and_b32", vz, 1, v_lane)); e(valu("v_lshl_add_u32", vx, vz, 4, vx))
for j in range(2):
    e(valu("v_add_u32", vy, 4 * j, vG)); e(valu("v_lshrrev_b32", vz, 1, vq)); e(valu("v_xor_b32", vy, vy, vz)); e(valu("v_lshl_add_u32", v_vd[j], vy, 5, vx))
e(salu("s_lshl_b32", s_t1, s_w, 14)); e(valu("v_add_u32", v_wl, s_t1, v_lin))
e(salu("s_mov_b32", s_retry, 0, scc_w=False))
for ks in range(XFIRST, 16): e(xl[ks])
e(salu("s_mov_b32", s_t1, hx(WS_FL), scc_w=False))
srd(S_FL, s_pair[0], s_pair[1], 4096, s_t1)
ln_issue(LNPRE)
stamp()

v_f = V(128, 128)
acc = [V(56, 2), V(58, 2), V(60, 2), V(62, 2)]
diag(2)
for ks in range(16):
    em.wait(vm=xl[ks])
    if ks == 15: diag(2)
    for k in range(4):
        p = 4 * ks + k
        e(valu("v_lshlrev_b32", v_f[2 * p], 16, v_xp[p])); e(valu("v_and_b32", v_f[2 * p + 1], "0xffff0000", v_xp[p]))
    for k in range(4):
        p = 4 * ks + k
        if ks == 0: e(valu("v_mov_b64", acc[k], v_f[(2 * p, 2)]))
        else: e(valu("v_pk_add_f32", acc[k], acc[k], v_f[(2 * p, 2)]))
if STAMP == 3: stamp()
ln_issue(int(os.environ.get("LN_FIRST", "12")))
diag(2)
if STAMP == 3: stamp()
e(valu("v_pk_add_f32", acc[0], acc[0], acc[1])); e(valu("v_pk_add_f32", acc[2], acc[2], acc[3])); e(valu("v_pk_add_f32", acc[0], acc[0], acc[2]))
vsum, vtmp, vmb, vdm = V(40), V(41), V(42), V(43)
e(valu("v_add_f32", vsum, acc[0][0], acc[0][1]))
red4("v_add_f32", [vsum], [vtmp])
e(valu("v_mul_f32", vsum, hx(f2u(1.0 / 512)), vsum))
e(valu("v_cvt_pk_bf16_f32", vmb, vsum, vsum)); e(valu("v_lshlrev_b32", vmb, 16, vmb))
e(valu("v_sub_f32", vdm, vsum, vmb))
vneg = V(56, 2)
e(valu("v_sub_f32", vneg[0], 0, vmb))
acc2 = [V(58, 2), V(60, 2), V(62, 2)]
for p in range(64):
    e(valu("v_pk_add_f32", v_f[(2 * p, 2)], v_f[(2 * p, 2)], vneg, mod="op_sel_hi:[1,0]"))
for p in range(64):
    a_ = acc2[p % 3]
    if p < 3: e(valu("v_pk_mul_f32", a_, v_f[(2 * p, 2)], v_f[(2 * p, 2)]))
    else: e(valu("v_pk_fma_f32", a_, v_f[(2 * p, 2)], v_f[(2 * p, 2)], a_))
if STAMP == 3: stamp()
e(valu("v_pk_add_f32", acc2[0], acc2[0], acc2[1])); e(valu("v_pk_add_f32", acc2[0], acc2[0], acc2[2]))
e(valu("v_add_f32", vsum, acc2[0][0], acc2[0][1]))
red4("v_add_f32", [vsum], [vtmp])
e(valu("v_mul_f32", vsum, hx(f2u(1.0 / 512)), vsum))
e(valu("v_fma_f32", vsum, "-" + str(vdm), vdm, vsum, extra_rd=vdm.regs()))
e(valu("v_max_f32", vsum, 0, vsum))
e(valu("v_cvt_pk_bf16_f32", vsum, vsum, vsum)); e(valu("v_lshlrev_b32", vsum, 16, vsum))
e(valu("v_add_f32", vsum, hx(f2u(1e-5)), vsum))
e(valu("v_cvt_pk_bf16_f32", vsum, vsum, vsum)); e(valu("v_lshlrev_b32", vsum, 16, vsum))
e(valu("v_sqrt_f32", vsum, vsum)); e(nop(0))
e(valu("v_cvt_pk_bf16_f32", vsum, vsum, vsum)); e(valu("v_lshlrev_b32", vsum, 16, vsum))
e(valu("v_rcp_f32", vneg[0], vsum)); e(nop(0))
for ks in range(16):
    for k in range(4):
        p = 4 * ks + k
        e(valu("v_pk_mul_f32", v_f[(2 * p, 2)], v_f[(2 * p, 2)], vneg, mod="op_sel_hi:[1,0]"))
    for k in range(4):
        p = 4 * ks + k
        e(valu("v_cvt_pk_bf16_f32", v_xp[p], v_f[2 * p], v_f[2 * p + 1]))
    e(dswrite("ds_write_b128", v_wl, v_xp[(4 * ks, 4)], ks * 1024))
ln_issue(int(os.environ.get("LN_LAST", "100")))
if STAMP == 3: stamp()
if DUMP == "ln": dump_regs([v_xp[i] for i in range(64)])
em.wait(lg0=True)
e(raw("s_barrier"))
stamp(); diag(); diag(2)

def cost_of(it):
    k = getattr(it, "kind", "")
    return 2 if k == "trans" else (0 if k in ("salu", "nop") else 1)
class Fill:
    def __init__(self, items, start, end, spread=False): self.items, self.start, self.end, self.spread = list(items), start, end, spread; self.i = 0
    def done(self): return self.i == len(self.items)
def run_stream(NH, dmaf, dtok, accf, Bf, extra, fills, LOOK=6, nq=4, posf=lambda m: m % 6, ring=a_ring, first_dma=6, tr2=None):
    NG = 4 * NH
    rtok = {}
    def reads(g):
        m, u = g >> 2, g & 3
        p = posf(m)
        d = ring[((g % 8) * 4, 4)]
        ar, of = (v_tr[p // 3][u], (p % 3) * 16384) if p < 6 else (tr2[u], (p - 6) * 16384)
        r = [dsread("ds_read_b64_tr_b16", d[(2 * h2, 2)], ar, of + h2 * 512) for h2 in range(2)]
        rtok[g] = r[1]
        return r
    pre = [reads(g) for g in range(3)]
    G, C = [], []
    cur = None
    for g in range(NG):
        gaps = [[], [], [], []]; cap = [2, 2, 2, 2]
        if g + 3 < NG:
            if (g + 3) & 3 == 0: gaps[0].append(LateW(dtok, (g + 3) >> 2))
            r = reads(g + 3); gaps[0].append(r[0]); gaps[1].append(r[1]); cap[0] -= 1; cap[1] -= 1
        md, j = (g + 4 * LOOK - 4) >> 2, (g + 4 * LOOK - 4) & 3
        if md >= first_dma:
            if j == 0: cur = dmaf(md)
            if cur is not None:
                if j == 0: gaps[2] += cur[0]
                for it in cur[1][j::4]: gaps[3].append(it); cap[3] -= 1
                if j == 3: dtok[md] = cur[1][3]
        for (gp, it, cost) in extra.get(g, []):
            gaps[gp].append(it); cap[gp] -= cost
        if g + 1 < NG: gaps[3].insert(0, Wait(lg=rtok[g + 1]))
        G.append(gaps); C.append(cap)
    B = {}
    for f in fills:
        idx = [(g, q) for g in range(f.start, f.end) for q in range(4)]
        caps = [max(0, C[g][q]) for g, q in idx]
        W = sum(cost_of(it) for it in f.items); T = sum(caps); n = len(idx)
        acc = 0.0; cum = 0
        for k, key in enumerate(idx):
            if W >= T: acc += caps[k] + (W - T) / n
            elif f.spread: acc += caps[k] * W / T
            else: acc += caps[k]
            B[key] = (f, acc)
    em.wait(vm=dtok[0])
    for r in pre: e(r)
    for p_ in extra.get(-1, []): e(p_[1])
    em.wait(lg0=True)
    used = {id(f): 0 for f in fills}
    for g in range(NG):
        m, u = g >> 2, g & 3
        d = ring[((g % 8) * 4, 4)]
        for qb in range(nq):
            ac, first = accf(m, u, qb)
            e(mfma(ac, d, Bf(m, qb), 0 if first else ac))
            ent = B.get((g, qb))
            sawv = False
            if ent:
                f, lim = ent
                while not f.done() and getattr(f.items[f.i], "kind", "") in ("lds", "vmem", "salu") and used[id(f)] + cost_of(f.items[f.i]) <= lim + 0.5:
                    it = f.items[f.i]; f.i += 1; used[id(f)] += cost_of(it); e(it)
            for it in G[g][qb]: e(it)
            if ent:
                f, lim = ent
                lastgap = (g == f.end - 1 and qb == 3)
                while not f.done():
                    it = f.items[f.i]; c = cost_of(it)
                    if not lastgap:
                        if used[id(f)] + c > lim + 0.5: break
                        if sawv and getattr(it, "kind", "") in ("lds", "vmem"): break
                    f.i += 1; used[id(f)] += c; e(it)
                    if getattr(it, "kind", "") in ("valu", "trans"): sawv = True
    assert all(f.done() for f in fills)
class LateW:
    def __init__(self, d, k): self.d, self.k = d, k
    def __call__(self): return Wait(vm=self.d[self.k])

def s1_acc(m, u, qb):
    h = m & 1
    idx = ((h * 4 + u) * 4 + qb) * 4
    if m < 32: return A(idx, 4), m < 2
    return v_acc[(idx, 4)], m < 34
def s1_B(m, qb): return a_B[(((m >> 1) & 1) * 16 + qb * 4, 4)]
extra = {}
btok = {}
def bread(s, qb): return dsread("ds_read_b128", a_B[((s & 1) * 16 + qb * 4, 4)], v_lin, (qb * 16 + (s % 16)) * 1024)
extra[-1] = [(0, bread(0, qb), 1) for qb in range(4)]
for s in range(1, 32):
    for qb in range(4):
        extra.setdefault(8 * (s - 1) + 1 + qb, []).append((2, bread(s, qb), 1))
gi = 0; gj = 0; pend_s = []
for it in ln_v[lv[0]:]:
    if isinstance(it, list) and all(x.kind == "salu" for x in it): pend_s = it; continue
    if not isinstance(it, list) and it.kind == "dma":
        assert gi < 12
        extra.setdefault(gi // 3, []).append((gi % 3, [pend_s, it] if pend_s else it, 1)); pend_s = []
        gi += 1
    else:
        extra.setdefault(8 + 2 * gj, []).append((1, it, 1)); gj += 1
C0 = -2.0 * math.sqrt(2.0 / math.pi) * math.log2(math.e); C1 = C0 * 0.044715
vc0, vc1 = V(40), V(41)
gel = [valu("v_mov_b32", vc0, hx(f2u(C0))), valu("v_mov_b32", vc1, hx(f2u(C1)))]
hst = []
tb = 0
for i in range(2):
    for qb in range(4):
        pk = V(96 + 4 * tb, 4); tb += 1
        for b in range(2):
            u = 2 * i + b
            T = [V(64 + 16 * b + k) for k in range(16)]
            G_, U_, X_ = T[0:4], T[4:8], T[8:12]
            ga = lambda r: A((u * 4 + qb) * 4 + r); ua = lambda r: A(((4 + u) * 4 + qb) * 4 + r)
            for r in range(4): gel.append(valu("v_accvgpr_read_b32", G_[r], ga(r)))
            for r in range(4): gel.append(valu("v_accvgpr_read_b32", U_[r], ua(r)))
            for r in range(4): gel.append(valu("v_mul_f32", X_[r], G_[r], G_[r]))
            for r in range(4): gel.append(valu("v_fma_f32", X_[r], X_[r], vc1, vc0))
            for r in range(4): gel.append(valu("v_mul_f32", X_[r], X_[r], G_[r]))
            for r in range(4): gel.append(valu("v_exp_f32", X_[r], X_[r]))
            for r in range(4): gel.append(valu("v_mul_f32", G_[r], G_[r], U_[r]))
            for r in range(4): gel.append(valu("v_add_f32", X_[r], "1.0", X_[r]))
            for r in range(4): gel.append(valu("v_rcp_f32", X_[r], X_[r]))
            gel.append(nop(0))
            for r in range(4): gel.append(valu("v_mul_f32", G_[r], G_[r], X_[r]))
            for k in range(2): gel.append(valu("v_cvt_pk_bf16_f32", pk[2 * b + k], G_[2 * k], G_[2 * k + 1]))
        st = bstore(pk, v_lin, S_H, s_h1 if i else s_h0, off=qb * 1024, mod="sc1")
        hst.append(st)
class Stamp:
    def __call__(self): stamp(); return []
if STAMP: extra.setdefault(128, []).append((0, Stamp(), 0))
class Grp:
    kind = "salu"
    def __init__(self, l): self.l = l
    def __call__(self):
        for x in self.l:
            if x.kind == "label": em.out.append(x)
            else: e(x)
        return []
def group_scc(items):
    out = []
    for it in items:
        if out and ("scc" in it.rd or it.kind == "label"):
            p = out.pop(); out.append(Grp((p.l if isinstance(p, Grp) else [p]) + [it]))
        else: out.append(it)
    return out
s_pf = [S(24, 2), S(26, 2), S(28, 2), S(30, 2)]
s_pfH = s_pair2
s_fo = S(3)
QS = math.log2(math.e) / math.sqrt(128.0)
vqs = V(42, 2); vqw = V(44)
save = em.out; em.out = []; spend = em.pend; em.pend = {}
for it in range(3):
    e(salu("s_add_u32", s_t0, s_w, 4 * it))
    e(salu("s_sub_u32", s_t1, s_t0, 2)); e(salu("s_min_u32", s_t1, s_t1, 6)); e(salu("s_lshl_b32", s_t1, s_t1, 13))
    e(salu("s_mul_i32", s_t2, s_qb, 57344, scc_w=False)); e(salu("s_add_u32", s_t1, s_t1, s_t2))
    e(salu("s_add_u32", s_pf[it][0], S_WD[0], s_t1)); e(salu("s_addc_u32", s_pf[it][1], S_WD[1], 0, scc_r=True))
    if it == 0:
        e(salu("s_lshl_b32", s_t1, s_qb, 14)); e(salu("s_lshl_b32", s_t2, s_w, 13)); e(salu("s_add_u32", s_t1, s_t1, s_t2))
        e(salu("s_add_u32", s_pf[1][0], S_WO[0], s_t1)); e(salu("s_addc_u32", s_pf[1][1], S_WO[1], 0, scc_r=True))
        e(scmp("s_cmp_lt_u32", s_w, 2)); e(salu("s_cselect_b64", s_pf[0], s_pf[1], s_pf[0], scc_w=False, scc_r=True))
e(raw("s_getpc_b64 %s" % s_pf[3], "salu", wr=[s_pf[3]]))
em.label("L_pc1")
e(salu("s_lshl_b32", s_t0, s_w, 13)); e(salu("s_add_u32", s_t0, s_t0, "L_tail-L_pc1")); e(salu("s_min_u32", s_t0, s_t0, "L_code_end-L_pc1-8192"))
e(salu("s_add_u32", s_t1, s_t0, 3 * 8192)); e(salu("s_min_u32", s_t1, s_t1, "L_code_end-L_pc1-8192"))
e(salu("s_add_u32", s_pfH[0], s_pf[3][0], s_t1)); e(salu("s_addc_u32", s_pfH[1], s_pf[3][1], 0, scc_r=True))
e(scmp("s_cmp_eq_u32", s_w, 0)); e(salu("s_cselect_b64", s_pf[2], s_pf[2], s_pfH, scc_w=False, scc_r=True))
e(salu("s_add_u32", s_pf[3][0], s_pf[3][0], s_t0)); e(salu("s_addc_u32", s_pf[3][1], s_pf[3][1], 0, scc_r=True))
e(salu("s_lshl_b32", s_t0, s_cg, 2)); e(salu("s_add_u32", s_t0, s_t0, s_w)); e(salu("s_mul_i32", s_t0, s_t0, 7168, scc_w=False)); e(salu("s_min_u32", s_t0, s_t0, 229376 - 8192))
e(salu("s_add_u32", s_pfH[0], S_HC[0], s_t0)); e(salu("s_addc_u32", s_pfH[1], S_HC[1], 0, scc_r=True))
e(salu("s_lshl_b32", s_fo, s_cq, 3))
vx, vy, vz = V(45), V(46), V(47)
e(salu("s_lshl_b32", s_t1, s_w, 8))
dma_voffs(v_dA, 1024, s_t1, True)
e(salu("s_mul_i32", s_wdd, s_w, 448 * 1024 - 256, scc_w=False)); e(salu("s_lshl_b32", s_t3, s_cg, 7)); e(salu("s_add_u32", s_wdd, s_wdd, s_t3))
e(valu("v_mov_b32", vqs[0], hx(f2u(QS))))
e(valu("v_and_b32", vx, 15, v_lane)); e(valu("v_bfe_u32", vqw, v_lane, 5, 1)); e(valu("v_lshl_add_u32", vx, vqw, 4, vx)); e(valu("v_lshlrev_b32", vx, 4, vx))
e(valu("v_bfe_u32", vqw, v_lane, 4, 1)); e(valu("v_lshl_add_u32", vqw, vqw, 3, vx))
e(salu("s_lshl_b32", s_t1, s_w, 14)); e(valu("v_add_u32", vqw, s_t1, vqw))
midset = group_scc(em.out); em.out = save; em.pend = spend
run_stream(64, s1_dma, dtok, s1_acc, s1_B, extra, [Fill(midset, 109, 130), Fill(gel, 131, GEL_END)])
if DUMP == "qacc": dump_regs([v_acc[i] for i in range(128)])
stamp()

em.wait(lg0=True)
e(raw("s_barrier"))
def signal(off_s_expr_add, lab, v_t):
    e(scmp("s_cmp_lg_u32", s_w, 0)); e(raw("s_cbranch_scc1 %s" % lab, rd=["scc"]))
    e(salu("s_lshl_b32", s_t0, s_qb, 2))
    if off_s_expr_add: e(salu("s_add_u32", s_t0, s_t0, off_s_expr_add))
    e(valu("v_mov_b32", v_t, 1))
    e(raw("s_mov_b64 exec, 1", "salu", wr=["exec"]))
    e(raw("buffer_atomic_add %s, off, %s, %s sc1" % (v_t, S_DBG, s_t0)))
    e(raw("s_mov_b64 exec, -1", "salu", wr=["exec"]))
    em.label(lab)
for blk in range(8):
    for qb in range(4):
        a_ = v_acc[((blk * 4 + qb) * 4, 4)]
        t = V(64 + 2 * ((blk * 4 + qb) % 8), 2)
        for k in range(2): e(valu("v_pk_mul_f32", a_[(2 * k, 2)], a_[(2 * k, 2)], vqs, mod="op_sel_hi:[1,0]"))
        for k in range(2): e(valu("v_cvt_pk_bf16_f32", t[k], a_[2 * k], a_[2 * k + 1]))
        if len(em.lgq) >= 7: em.wait(lg=em.lgq[-7])
        e(dswrite("ds_write_b64", vqw, t, (qb * 4 + (blk >> 1)) * 1024 + (blk & 1) * 512))
for j in range(4): e(valu("v_add_u32", v_dB[j], s_wdd, v_dA[j]))
em.wait(lg0=True)
for f in range(16): e(dsread("ds_read_b128", a_Q[(4 * f, 4)], v_wl, f * 1024))
em.label("L_att_start")
NZ0 = 40
for i in range(NZ0): e(valu("v_mov_b64", v_acc[(2 * i, 2)], 0))
for i in range(4): e(valu("v_mov_b32", v_l0[i], 0)); e(valu("v_mov_b32", v_l1[i], 0))
e(valu("v_lshlrev_b32", V(3), 7, v_lane))
e(valu("v_and_b32", V(38), 7, v_lane)); e(valu("v_mov_b32", V(0), 0))
em.wait(vm0=True, lg0=True)
e(raw("s_barrier"))
if DUMP == "q": dump_regs([a_Q[i] for i in range(64)])
stamp()

def Qf(qb, ds): return a_Q[((qb * 4 + ds) * 4, 4)]
def Of(db, qb): return v_acc[((db * 4 + qb) * 4, 4)]
def fr(f): return a_ring[((f % 8) * 4, 4)]
def kslot(par): return 16384 if par == 0 else 0
def vslot(par): return 0 if par == 0 else 16384
def frag_reads(par, f):
    if f >= 32: par ^= 1; f -= 32
    d = fr(f)
    if f < 8 or 16 <= f < 24:
        kb = (f >> 2) if f < 8 else 2 + ((f - 16) >> 2)
        return [dsread("ds_read_b128", d, v_ka[f & 3], kslot(par) + kb * 4096)]
    ks2 = 0 if f < 16 else 1
    db = f & 7
    return [dsread("ds_read_b64_tr_b16", d[(2 * h, 2)], v_va[db], vslot(par) + ks2 * 8192 + h * 4096) for h in range(2)]
def read_sched(g):
    r = []
    if g + 3 < 24 or g >= 29: r.append(g + 3)
    if 19 <= g <= 26: r.append(g + 5)
    return r
def sm_val(g, k):
    if 7 <= g <= 22: b = 1; n = 2 * (g - 7) + k
    else: b = 0; n = 2 * ((g - 23) % 32) + k
    kb, qb, r = n >> 4, (n >> 2) & 3, n & 3
    return b, qb, kb, r
def sm_items(g):
    ex, ad = [], []
    for k in range(2):
        b, qb, kb, r = sm_val(g, k)
        x = v_S[b][qb * 8 + kb * 4 + r]
        l = (v_l1 if b else v_l0)[qb]
        ex.append(valu("v_exp_f32", x, x)); ad.append(valu("v_add_f32", l, l, x))
    b, qb, kb, r = sm_val((g - 1) % 32, 0)
    cv = valu("v_cvt_pk_bf16_f32", v_S[b][qb * 8 + kb * 2 + (r >> 1)], v_S[b][qb * 8 + kb * 4 + r], v_S[b][qb * 8 + kb * 4 + r + 1])
    return ex, ad, cv
def att_dma(par, g):
    if g >= 29: k = g - 29; sp = par
    elif g <= 4: k = g + 3; sp = par ^ 1
    else: return [], None
    sal = []
    if k == 0: sal = [salu("s_add_u32", "m0", s_m0b, 4 * 16384 + kslot(sp))]
    if k == 4: sal = [salu("s_add_u32", "m0", s_m0b, vslot(sp))]
    if k < 4: return sal, dma(v_kd[k], S_K, s_kK, k * 1024)
    return sal, dma(v_vd[k & 1], S_V, s_kV, (k - 4) * 1024)
SIDE_FIRST = 11
class Lbl:
    def __init__(self, n): self.n = n
    def __call__(self): em.label(self.n); return []
class LoopStamp:
    def __init__(self, k, par): self.k, self.par = k, par
    def __call__(self):
        k = self.k
        e(raw("s_memtime %s" % S(68 + 2 * k, 2), "other", wr=[S(68 + 2 * k, 2)]))
        if k == 2:
            e(raw("s_waitcnt lgkmcnt(0)", "wait")); em._retire(em.lgq, 0)
            for i in range(3): e(valu("v_writelane_b32", v_c, S(68 + 2 * i), i, rmw=True))
            e(salu("s_lshl_b32", S(74), S(2), 2)); e(salu("s_add_u32", S(74), S(74), s_w)); e(salu("s_lshl_b32", S(74), S(74), 4))
            e(salu("s_sub_u32", S(74), S(74), s_cnt)); e(salu("s_add_u32", S(74), S(74), 16)); e(salu("s_lshl_b32", S(74), S(74), 5))
            e(salu("s_add_u32", S(74), S(74), (1 << 20) + 16 * self.par))
            e(raw("s_mov_b64 exec, 7", "salu", wr=["exec"]))
            e(valu("v_lshlrev_b32", v_t, 2, v_lane))
            e(bstore(v_c, v_t, S_DMP, S(74), off=0))
            e(raw("s_mov_b64 exec, -1", "salu", wr=["exec"]))
            e(valu("v_lshlrev_b32", v_t, 7, v_lane))
        return []
v_tch, v_flag, v_fa = V(3), V(0), V(38)
xtok = []; lastdma = [None]
NITER = 14
ROT = int(os.environ.get('ROT', '9'))
ftok = {}
def att_group(par, g, do_mfma=True, do_mem=True, do_cvt=True, last=False, pp=None, xmem=(), xsal=(), xvalu=None):
    ex, ad, cv = sm_items(g)
    mem = []
    sal = []
    fin = (pp == 3)
    d = None
    if do_mem:
        if fin: sched = ([g + 3] if g + 3 < 16 else []) + ([g + 11] if 13 <= g <= 20 else [])
        else: sched = read_sched(g)
        for f in sched:
            r = frag_reads(par, f); mem += r; ftok[f % 32] = r
        if pp is None or (g <= 4 and pp <= 2) or (g >= 29 and pp <= 1):
            sal, d = att_dma(par, g)
            if d is not None: mem.append(d)
    loop = do_mem and pp is None
    post0 = []
    if loop and par == 0:
        if g == 14: mem.append(I("global_load_dword %s, %s, %s" % (v_c, v_tch, s_pf[0]), "vmem", rd=v_tch.regs() + s_pf[0].regs(), wr=[]))
        if g == 13: mem.append(I("buffer_load_ubyte %s, %s, %s, %s offen sc1" % (v_flag, v_fa, S_DBG, s_fo), "vmem", rd=S_DBG.regs() + s_fo.regs() + v_fa.regs(), wr=[]))
        if g in (15, 16, 17): sal = sal + [salu("s_mov_b64", s_pf[g - 15], s_pf[g - 14], scc_w=False)]
        if g == 0: post0 = [valu("v_cmp_eq_u32", "vcc", 1, v_flag)]
        if g == 2: sal = sal + [raw("s_cmp_eq_u32 vcc_lo, -1", "salu", rd=["vcc"], wr=["scc"])]
        if g == 3: sal = sal + [salu("s_cselect_b64", s_pf[3], s_pfH, s_pf[3], scc_w=False, scc_r=True)]
        if g == 18: sal = sal + [scmp("s_cmp_eq_u32", s_cnt, s_sig)]
        if g == 19: sal = sal + [raw("s_cbranch_scc1 L_sigH_side", rd=["scc"]), Lbl("L_sigH_ret")]
    if do_mem and g == 4 and d is not None: lastdma[0] = d
    mem += list(xmem); sal = sal + list(xsal)
    gaps = [[], [], [], []]
    if g == 29 and do_mem and not fin:
        if STAMP == 2 and loop and do_mfma: gaps[0] += [LoopStamp(0, par)]
        gaps[0] += [Wait(lg0=True) if not do_mfma else (Wait(lg0=True, vm0=True) if (pp is None and par == 1) else Wait(lg0=True, vm=lastdma[0]))]
        if STAMP == 2 and loop and do_mfma: gaps[0] += [LoopStamp(1, par)]
        gaps[0] += [raw("s_barrier")]
        if STAMP == 2 and loop and do_mfma: gaps[0] += [LoopStamp(2, par)]
    gaps[0] += sal
    if g == 6 and do_mem and (pp is None or pp <= 1): gaps[0].append(salu("s_add_u32", s_kK, s_kK, 16384))
    if g == 7 and do_mem and (pp is None or pp <= 1): gaps[0].append(salu("s_add_u32", s_kV, s_kV, 16384))
    sm = not (fin and g >= 23)
    if fin and g > 23: do_cvt = False
    if fin and 16 <= g < 24: do_mfma = False
    gaps[0] += mem[2:3]
    if sm: gaps[0].append(ex[0])
    if len(mem) > 0: gaps[1].append(mem[0])
    if len(mem) == 0 and do_cvt: gaps[1].append(cv)
    if sm: gaps[1].append(ad[0])
    gaps[1] += post0
    nf = (g + 1) % 32
    if do_mem and not (fin and (16 <= nf < 24 or nf == 0)): gaps[2].append(Wait(lg=ftok.get(nf)))
    if last and g == 30: gaps[2].append(salu("s_sub_u32", s_cnt, s_cnt, 1))
    gaps[2] += mem[3:]
    if sm: gaps[2].append(ex[1])
    if len(mem) > 1: gaps[3].append(mem[1])
    if len(mem) > 0 and do_cvt: gaps[3].append(cv)
    if sm: gaps[3].append(ad[1])
    for qb in range(4):
        if do_mfma:
            if g < 8 or 16 <= g < 24:
                b = 1 if g < 8 else 0
                kb, ds = (g >> 2) & 1, g & 3
                d = v_S[b][(qb * 8 + kb * 4, 4)]
                e(mfma(d, fr(g), Qf(qb, ds), v_negm[(qb * 4, 4)] if ds == 0 else d))
            else:
                b = 0 if g < 16 else 1
                e(mfma(Of(g & 7, qb), fr(g), v_S[b][(qb * 8, 4)], Of(g & 7, qb)))
        else:
            if (qb & 1) and not gaps[qb][:1] or ((qb & 1) and getattr(gaps[qb][0], "kind", "") in ("valu",)): e(nop(0))
        for it in gaps[qb]: e(it)
        if xvalu is not None:
            c = 2 - sum(1 for it in gaps[qb] if getattr(it, "kind", "") in ("lds", "vmem", "dma", "valu"))
            while xvalu and c > 0:
                it = xvalu.pop(0); e(it); c -= 2 if it.kind == "trans" else 1

pr = [dsread("ds_read_b128", fr(f), v_ka[f & 3], (f >> 2) * 4096) for f in range(8)]
for r in pr: e(r)
e(scmp("s_cmp_lg_u32", s_retry, 0)); e(raw("s_cbranch_scc1 L_have_max", rd=["scc"]))
for i in range(16): e(valu("v_mov_b32", v_negm[i], 0))
em.label("L_have_max")
zr = [valu("v_mov_b32", v_acc[i], 0) for i in range(2 * NZ0, 128)]
for f in range(8):
    em.wait(lg=pr[f])
    for qb in range(4):
        d = v_S[0][(qb * 8 + (f >> 2) * 4, 4)]
        e(mfma(d, fr(f), Qf(qb, f & 3), v_negm[(qb * 4, 4)] if (f & 3) == 0 else d))
        if qb == 0: e(hst[f])
        for _ in range(1 if qb == 0 else 2):
            if zr: e(zr.pop(0))
assert not zr
e(salu("s_mov_b32", s_kK, 16384 + 8192, scc_w=False)); e(salu("s_mov_b32", s_kV, 16384, scc_w=False)); e(salu("s_mov_b32", s_cnt, NITER, scc_w=False))
e(scmp("s_cmp_lg_u32", s_retry, 0)); e(raw("s_cbranch_scc1 L_have_max2", rd=["scc"]))
e(nop(3))
mx = [V(97 + 4 * i) for i in range(4)]; mt = [V(98 + 4 * i) for i in range(4)]
for qb in range(4): e(valu("v_max3_f32", mx[qb], v_S[0][qb * 8], v_S[0][qb * 8 + 1], v_S[0][qb * 8 + 2]))
for qb in range(4): e(valu("v_max3_f32", mx[qb], mx[qb], v_S[0][qb * 8 + 3], v_S[0][qb * 8 + 4]))
for qb in range(4): e(valu("v_max3_f32", mx[qb], mx[qb], v_S[0][qb * 8 + 5], v_S[0][qb * 8 + 6]))
for qb in range(4): e(valu("v_max_f32", mx[qb], mx[qb], v_S[0][qb * 8 + 7]))
red4("v_max_f32", mx, mt)
for qb in range(4):
    for k in range(4): e(valu("v_sub_f32", v_negm[qb * 4 + k], 0, mx[qb]))
for qb in range(4):
    for k in range(8): e(valu("v_sub_f32", v_S[0][qb * 8 + k], v_S[0][qb * 8 + k], mx[qb]))
em.label("L_have_max2")
e(nop(7))
for g in range(23, 29): att_group(1, g, do_mfma=False, do_mem=False, do_cvt=(g != 23))
stamp(); diag()
e(scmp("s_cmp_eq_u32", s_w, 0)); e(salu("s_cselect_b32", s_sig, NITER - 1, -1, scc_w=False, scc_r=True))
e(scmp("s_cmp_eq_u32", s_retry, 0)); e(salu("s_cselect_b32", s_sig, s_sig, -1, scc_w=False, scc_r=True))
for g in range(29, 32): att_group(1, g, do_mfma=False, do_mem=True)
pro_end = len(em.out)
em.directive(".p2align 6")
em.label("L_att_loop")
def body():
    for par in range(2):
        for g in range(32): att_group(par, g, last=(par == 1))
b0 = len(em.out)
body()
b1 = len(em.out)
e(scmp("s_cmp_lg_u32", s_cnt, 0)); e(raw("s_cbranch_scc1 L_att_loop", rd=["scc"]))
b2 = len(em.out)
body()
second = em.out[b2:]; del em.out[b2:]
assert [i.text for i in second] == [i.text for i in em.out[b0:b1]], "loop not in steady state"
loop_probs = check_hazards(em.out[b1 - 40:b2] + second[:60], "loop-wrap")

em.label("L_tail")
v_ring2 = V(64, 32); v_B2 = V(96, 32)
NF1 = 8
def hreg(kk, qb):
    if kk >= NF1: kk -= NF1
    return A((64 + 16 * kk if kk < 4 else 160 + 16 * (kk - 4)) + qb * 4, 4)
def Facc(u, qb):
    t = u * 4 + qb
    return A(128 + 4 * t if t < 8 else 224 + 4 * (t - 8), 4)
POS2 = [5, 0, 2, 3, 4, 1]
NB = int(os.environ.get("NB", "4"))
def pos2(m): return 6 + m if m < NB else POS2[(m - NB) % 6]
def kind2(m):
    if m < NF1: return ("F", m)
    if m < NF1 + 32: return ("O", (m - NF1) >> 1, (m - NF1) & 1)
    return ("F", m - 32)
def s2_dma(m):
    if m >= 46: return None
    p = pos2(m); k = kind2(m)
    if k[0] == "O":
        return [m0set(p), salu("s_mov_b32", s_off, k[1] * 32 * 1024 + 128 * k[2], scc_w=False)], [dma(v_dA[j], S_WO, s_off, j * 1024) for j in range(4)]
    return [m0set(p), salu("s_mov_b32", s_off, k[1] * 32 * 1024, scc_w=False)], [dma(v_dB[j], S_WD, s_off, j * 1024) for j in range(4)]
dtok2 = {}; s2pre = {}
for m in range(6 + NB):
    s2pre[m] = s2_dma(m); dtok2[m] = s2pre[m][1][3]
class Seq:
    kind = "vmem"
    def __init__(self, l): self.l = l
    def __call__(self): return self.l
hld = {}; htok = {}
for kk in range(14):
    hld[kk] = [bload(hreg(kk, qb), v_lin, S_HC, s_hl, off=qb * 1024, mod="sc1") for qb in range(4)]
    htok[kk] = hld[kk][3]
e(salu("s_mov_b32", s_cnt, 0, scc_w=False))
em.label("L_pollH")
e(valu("v_cmp_ne_u32", "vcc", 1, v_flag)); e(salu("s_mul_i32", s_hb, s_w, 14 * 4096, scc_w=False)); e(nop(1))
e(raw("s_cbranch_vccz L_pollH_done", rd=["vcc"]))
e(salu("s_add_u32", s_cnt, s_cnt, 1)); e(scmp("s_cmp_ge_u32", s_cnt, 50000)); e(raw("s_cbranch_scc1 L_pollH_done", rd=["scc"]))
e(raw("s_sleep 4")); e(raw("buffer_load_ubyte %s, %s, %s, %s offen sc1" % (v_flag, v_fa, S_DBG, s_fo))); e(raw("s_waitcnt vmcnt(0)")); e(raw("s_branch L_pollH"))
em.label("L_pollH_done")
NH0 = 4 * NF1
hsl = sorted([(pp, g) for pp in range(3) for g in (5, 13, 14, 15, 16, 17, 18, 27, 28, 9, 11)])[:NH0]
px = {}
for k, key in enumerate(hsl):
    px.setdefault(key, ([], []))
    px[key][0].append(hld[k >> 2][k & 3])
    if k & 3 == 0: px[key][1].append(salu("s_add_u32", s_hl, s_hb, (k >> 2) * 4096))
wsl = [(pp, g) for pp in range(2) for g in (6, 7, 8, 10, 12, 21, 22, 23)][:4 * NB] + [(2, 29), (2, 30), (2, 31), (3, 0), (3, 1), (3, 2), (3, 3), (3, 4)] + [(3, g) for g in range(5, 13)] + [(3, g) for g in range(24, 32)]
for k, key in enumerate(wsl):
    px.setdefault(key, ([], []))
    m, j = k >> 2, k & 3
    px[key][0].append(s2pre[m][1][j])
    if j == 0: px[key][1].extend(s2pre[m][0])
px[(3, 24)][1][:0] = [Wait(lg0=True), raw("s_barrier")]
lt = [V(48 + i) for i in range(4)]
rinv = [V(52 + i) for i in range(4)]
vxf = V(40, 8)
save = em.out; em.out = []
for qb in range(4): e(valu("v_add_f32", v_l1[qb], v_l1[qb], v_l0[qb]))
red4("v_add_f32", [v_l1[i] for i in range(4)], lt)
e(valu("v_add_f32", lt[1], v_l1[0], v_l1[1])); e(valu("v_add_f32", lt[2], v_l1[2], v_l1[3])); e(valu("v_add_f32", lt[1], lt[1], lt[2]))
for qb in range(4): e(valu("v_rcp_f32", rinv[qb], v_l1[qb]))
e(valu("v_cmp_nge_f32", "vcc", hx(f2u(2.0 ** 30)), lt[1]))
for k in range(8): e(valu("v_accvgpr_read_b32", vxf[k], a_x[k]))
v_tr2 = V(56, 4); v_ow = V(62)
for u in range(4): e(valu("v_subrev_u32", v_tr2[u], RING, v_tr[0][u]))
e(valu("v_subrev_u32", v_ow, RING, v_lin)); e(valu("v_add_u32", v_ow, s_m0b, v_ow))
lred = em.out; em.out = save
for pp in range(4):
    for g in range(32):
        xm, xs = px.get((pp, g), ([], []))
        att_group(pp & 1, g, pp=pp, xmem=xm, xsal=xs, xvalu=(lred if (pp == 3 and g >= 24) else None))
for it in lred: e(it)
diag(); stamp()
if DUMP == "o":
    e(nop(7))
    for db in range(8):
        for qb in range(4):
            for k in range(4): e(valu("v_mul_f32", Of(db, qb)[k], Of(db, qb)[k], rinv[qb]))
    dump_regs([v_acc[i] for i in range(128)])

vm_ = V(60); vma = V(61)
class Mark:
    kind = "salu"
    def __init__(self, t): self.t = t
    def __call__(self):
        e(raw("s_cbranch_vccz L_nomark", rd=["vcc"])); e(valu("v_mov_b32", self.t, hx(MARK))); em.label("L_nomark"); return []
norm = [valu("v_and_b32", vma, 3, v_lane), valu("v_lshlrev_b32", vma, 12, vma)]
ow = []; ncv = []
for i in range(4):
    for qb in range(4):
        t = Of(2 * i, qb)
        for b in range(2):
            for k in range(4): norm.append(valu("v_mul_f32", Of(2 * i + b, qb)[k], Of(2 * i + b, qb)[k], rinv[qb]))
        for b in range(2):
            o = Of(2 * i + b, qb)
            for k in range(2): norm.append(valu("v_cvt_pk_bf16_f32", t[2 * b + k], o[2 * k], o[2 * k + 1]))
        ncv.append(norm[-1])
        if i == 0 and qb == 0: norm.append(Mark(t[0]))
        ow.append(dswrite("ds_write_b128", v_ow, t, i * 16384 + qb * 1024))
        if NB == 0: norm.append(ow[-1])
class ChkNorm:
    def __init__(self, k): self.k = k
    def __call__(self):
        assert ncv[self.k].tok, "O write %d scheduled before its data" % self.k
        return ow[self.k]
G0 = 4 * NF1
G1 = G0 + 128
mk = dsread("ds_read_b32", vm_, vma, 0)
class OBar:
    def __call__(self):
        assert all(w.tok for w in ow)
        em.wait(lg0=True); e(raw("s_barrier")); stamp(); e(mk); return []
class FbCheck:
    def __call__(self):
        em.wait(lg=mk)
        e(valu("v_cmp_eq_u32", "vcc", hx(MARK), vm_))
        e(scmp("s_cmp_lg_u32", s_retry, 0)); e(raw("s_cbranch_scc1 L_nofb", rd=["scc"]))
        e(nop(1))
        e(raw("s_cbranch_vccnz L_fallback", rd=["vcc"]))
        em.label("L_nofb")
        return []
def s2_acc(m, u, qb):
    k = kind2(m)
    if k[0] == "O": return v_acc[(((k[2] * 4 + u) * 4 + qb) * 4, 4)], k[1] == 0
    return Facc(u, qb), k[1] == 0
def s2_B(m, qb):
    k = kind2(m)
    if k[0] == "O": return v_B2[((k[1] & 1) * 16 + qb * 4, 4)]
    return hreg(k[1], qb)
def oread(s, qb): return dsread("ds_read_b128", v_B2[((s & 1) * 16 + qb * 4, 4)], v_lin, (s & 3) * 16384 + (s >> 2) * 4096 + qb * 1024)
extra = {}
if NB:
    OW0 = int(os.environ.get("OW0", "11"))
    for k in range(16): extra.setdefault(OW0 + k, []).append((2, ChkNorm(k), 1))
GB = G0 - int(os.environ.get("OBAR", "3"))
extra.setdefault(GB, []).append((0, OBar(), 0))
r0 = [oread(0, qb) for qb in range(4)]
for qb in range(4): extra.setdefault(GB + (qb >> 1), []).append((1 + (qb & 1) if qb < 2 else (qb & 1) * 2, r0[qb], 1))
extra.setdefault(G0 - 1, []).append((2, [Wait(lg=r0), FbCheck()], 0))
for s_ in range(1, 16):
    for qb in range(4): extra.setdefault(G0 + 8 * (s_ - 1) + 1 + qb, []).append((2, oread(s_, qb), 1))
class LateWait:
    def __init__(self, f): self.f = f
    def __call__(self): return Wait(vm=self.f())
vxa = V(48); vpoll = V(49); vfw = V(50)
vx, vy, vz = V(63), V(57), V(58)
save = em.out; em.out = []
xaddr(vxa, vx)
e(valu("v_and_b32", V(51), 7, v_lane)); e(valu("v_lshlrev_b32", V(51), 2, V(51)))
e(valu("v_add_u32", vfw, s_m0b, v_lin)); e(salu("s_lshl_b32", s_t0, s_w, 14)); e(salu("s_add_u32", s_t0, s_t0, RING)); e(valu("v_add_u32", V(55), s_t0, v_lin))
e(salu("s_lshl_b32", s_t3, s_w, 4)); e(salu("s_add_u32", s_t3, s_t3, s_g)); e(salu("s_lshl_b32", s_t3, s_t3, 13))
early = em.out; em.out = save
extra.setdefault(-1, []).append((0, LateWait(lambda: htok[0]), 0))
for kk in range(1, 14):
    g_ = 4 * kk if kk < NF1 else 4 * (kk + 32)
    extra.setdefault(g_ - 1, []).append((2, LateWait(lambda kk=kk: htok[kk]), 0))
HG0 = int(os.environ.get("HG0", "5")); HGS = int(os.environ.get("HGS", "1"))
for k in range(NH0, 56):
    extra.setdefault(HG0 + HGS * (k - NH0), []).append((2, Seq([salu("s_add_u32", s_hl, s_hb, (k >> 2) * 4096), hld[k >> 2][k & 3]]), 1))
def sreg(ip, qb, odd=0): return v_acc[(((2 * ip + odd) * 4 + qb) * 4, 4)]
sp = []; spst = []; stq = []
NSI = int(os.environ.get("NSI", "11"))
s_so = [s_t1, s_cnt, s_h0, s_h1]
for k in range(4): sp.append(salu("s_add_u32", s_so[k], s_t3, (k >> 1) * 65536 + (k & 1) * 4096))
for ip in range(4):
    for qb in range(4):
        t = sreg(ip, qb)
        for b in range(2):
            o = sreg(ip, qb, b)
            for k in range(2): sp.append(valu("v_cvt_pk_bf16_f32", t[2 * b + k], o[2 * k], o[2 * k + 1]))
        st = bstore(t, v_lin, S_SP, s_so[(ip >> 1) * 2 + (qb >> 1)], off=(qb & 1) * 2048 + (ip & 1) * 1024, mod="sc1")
        spst.append((st, sp[-1]))
class St:
    def __init__(self, k): self.k = k
    def __call__(self):
        assert spst[self.k][1].tok
        return spst[self.k][0]
STG = int(os.environ.get("STG", "2"))
for k in range(NSI): extra.setdefault(G1 + 3 + STG * k, []).append((2, St(k), 1))
sti = [NSI]
def st_next(n=1):
    for _ in range(n):
        if sti[0] < 16: e(spst[sti[0]][0]); sti[0] += 1
vpa = V(51)
s_done, s_new, s_sb = s_kK, s_kV, s_fo
def spl(gp, i): return A((gp * 2 + i) * 4, 4)
def flag_load(): return bload(vpoll, vpa, S_FL, s_t2, n=1, mod="sc1")
lblc = [0]
def issue_new():
    k = lblc[0]; lblc[0] += 1
    e(valu("v_cmp_eq_u32", "vcc", 1, vpoll)); e(nop(1))
    e(raw("s_andn2_b32 %s, vcc_lo, %s" % (s_new, s_done), "salu", rd=["vcc", s_done], wr=[s_new, "scc"])); e(salu("s_and_b32", s_new, s_new, 255))
    e(raw("s_cbranch_scc0 L_in%d_end" % k, rd=["scc"]))
    e(salu("s_or_b32", s_done, s_done, s_new))
    for gp in range(8):
        e(scmp("s_bitcmp1_b32", s_new, gp)); e(raw("s_cbranch_scc0 L_in%d_%d" % (k, gp), rd=["scc"]))
        e(salu("s_add_u32", s_t0, s_sb, gp * 8192))
        for i in range(2): e(raw(bload(spl(gp, i), v_lin, S_SPC, s_t0, off=i * 1024, mod="sc1").text))
        em.label("L_in%d_%d" % (k, gp))
    em.label("L_in%d_end" % k)
pinit = [salu("s_lshl_b32", s_t2, s_cq, 7), salu("s_mov_b32", s_done, 0, scc_w=False),
         salu("s_lshl_b32", s_sb, s_cg, 16), salu("s_lshl_b32", s_new, s_w, 11), salu("s_add_u32", s_sb, s_sb, s_new)]
extra.setdefault(G1 - 8, []).append((1, pinit, 0))
class MidPoll:
    def __init__(self, tok): self.tok = tok
    def __call__(self):
        em.wait(vm=self.tok); issue_new()
        e(salu("s_mov_b32", s_hb, s_done, scc_w=False))
        midmark.append(em.vm_total)
        return []
midmark = []
if int(os.environ.get("MID", "1")):
    pt = flag_load()
    extra.setdefault(G1 - int(os.environ.get("MID0", "4")), []).append((2, pt, 1))
    MIDPOST = int(os.environ.get("MIDPOST", "1"))
    if not MIDPOST: extra.setdefault(G1 + int(os.environ.get("MID1", "3")), []).append((0, MidPoll(pt), 0))
    else: extra.setdefault(G1 + 2, []).append((0, Wait(vm=pt), 0))
if STAMP: extra.setdefault(G1, []).append((0, Stamp(), 0))
class Diag:
    def __call__(self): diag(); return []
if DIAG: extra.setdefault(G1, []).append((0, Diag(), 0))
vs = [Fill(norm, 0, GB - (3 if NB else 1)), Fill(early, G0 + 2, G0 + 40), Fill(sp, G1 + 2, G1 + 16)]
run_stream(46, s2_dma, dtok2, s2_acc, s2_B, extra, vs, posf=pos2, ring=v_ring2, first_dma=6 + NB, tr2=v_tr2)
stamp(); diag()
def static_loads():
    e(valu("v_cmp_eq_u32", "vcc", 1, vpoll)); e(nop(1))
    e(raw("s_and_b32 %s, vcc_lo, 255" % s_done, "salu", rd=["vcc"], wr=[s_done, "scc"]))
    for gp in range(8):
        e(salu("s_add_u32", s_t0, s_sb, gp * 8192)); e(scmp("s_bitcmp1_b32", s_done, gp)); e(salu("s_cselect_b32", s_t0, s_t0, 524288, scc_w=False, scc_r=True))
        for i in range(2): e(bload(spl(gp, i), v_lin, S_SPC, s_t0, off=i * 1024, mod="sc1"))
e(nop(5))
for qb in range(4):
    for u in range(4):
        if len(em.lgq) >= 12: em.wait(lg=em.lgq[-12])
        e(dswrite("ds_write_b128", vfw, Facc(u, qb), qb * 16384 + u * 1024))
    if qb & 1: st_next(int(os.environ.get("STW", "1")))
v_fr = V(96, 16); vE = V(64, 16); vs_ = V(80, 16)
for k in range(8): e(valu("v_mov_b64", vs_[(2 * k, 2)], 0))
em.wait(lg0=True)
e(raw("s_barrier"))
def frr(ws_, u): return sreg(ws_, u, 1)
for ws_ in range(4):
    for u in range(4):
        if len(em.lgq) >= 14: em.wait(lg=em.lgq[-14])
        e(dsread("ds_read_b128", frr(ws_, u), V(55), ws_ * 4096 + u * 1024))
st_next()
if MIDPOST:
    st_next(16)
    if MIDPOST == 1: static_loads()
em.wait(lg0=True)
for u in range(4):
    for k in range(2):
        e(valu("v_pk_add_f32", frr(0, u)[(2 * k, 2)], frr(0, u)[(2 * k, 2)], frr(1, u)[(2 * k, 2)]))
        e(valu("v_pk_add_f32", frr(2, u)[(2 * k, 2)], frr(2, u)[(2 * k, 2)], frr(3, u)[(2 * k, 2)]))
for u in range(4):
    for k in range(2): e(valu("v_pk_add_f32", v_fr[(4 * u + 2 * k, 2)], frr(0, u)[(2 * k, 2)], frr(2, u)[(2 * k, 2)]))
for k in range(16): e(valu("v_mul_f32", vE[k], hx(f2u(-math.log2(math.e))), v_fr[k]))
st_next()
for k in range(16): e(valu("v_exp_f32", vE[k], vE[k]))
for k in range(16): e(valu("v_add_f32", vE[k], "1.0", vE[k]))
st_next()
for k in range(16): e(valu("v_rcp_f32", vE[k], vE[k]))
for k in range(16): e(valu("v_mul_f32", v_fr[k], v_fr[k], vE[k]))
for k in range(8):
    e(valu("v_lshlrev_b32", vE[2 * k], 16, vxf[k])); e(valu("v_and_b32", vE[2 * k + 1], "0xffff0000", vxf[k]))
st_next()
stamp()
accn = [0]
def acc_pieces(mask, sprinkle=False):
    n = accn[0]; accn[0] += 1
    for gp in range(8):
        e(scmp("s_bitcmp1_b32", mask, gp)); e(raw("s_cbranch_scc0 L_acc%d_%d" % (n, gp), rd=["scc"]))
        for k2 in range(8): e(valu("v_accvgpr_read_b32", V(120 + k2), spl(gp, k2 >> 2)[k2 & 3]))
        for k in range(8):
            e(valu("v_lshlrev_b32", V(112 + 2 * (k & 3)), 16, V(120 + k))); e(valu("v_and_b32", V(113 + 2 * (k & 3)), "0xffff0000", V(120 + k)))
            e(valu("v_pk_add_f32", vs_[(2 * k, 2)], vs_[(2 * k, 2)], V(112 + 2 * (k & 3), 2)))
        em.label("L_acc%d_%d" % (n, gp))
        if sprinkle and gp & 1: st_next()
if midmark:
    n_y = em.vm_total - midmark[0]
    e(raw("s_waitcnt vmcnt(%d)" % n_y, "wait")); em._retire(em.vmq, n_y)
    acc_pieces(s_hb, sprinkle=True)
st_next(16)
if MIDPOST != 2: e(flag_load())
em.wait(vm=spst[-1][0]); stamp(); e(raw("s_barrier"))
e(scmp("s_cmp_lg_u32", s_w, 0)); e(raw("s_cbranch_scc1 L_sigS", rd=["scc"]))
e(valu("v_mov_b32", v_t, 1))
e(raw("s_mov_b64 exec, 1", "salu", wr=["exec"]))
e(raw("buffer_store_dword %s, off, %s, %s sc1" % (v_t, S_FL, s_myfl)))
e(raw("s_mov_b64 exec, -1", "salu", wr=["exec"]))
em.label("L_sigS")
if MIDPOST == 2: static_loads(); e(flag_load())
s_prev = s_hl
e(salu("s_mov_b32", s_prev, s_done if MIDPOST else 0, scc_w=False)); e(salu("s_mov_b32", s_cnt, 0, scc_w=False))
em.label("L_fin_loop")
em.wait(vm0=True)
issue_new()
e(raw(flag_load().text))
acc_pieces(s_prev)
e(salu("s_mov_b32", s_prev, s_new, scc_w=False))
e(salu("s_add_u32", s_cnt, s_cnt, 1)); e(scmp("s_cmp_ge_u32", s_cnt, 50000)); e(raw("s_cbranch_scc1 L_fin_done", rd=["scc"]))
e(scmp("s_cmp_lg_u32", s_prev, 0)); e(raw("s_cbranch_scc1 L_fin_loop", rd=["scc"]))
e(scmp("s_cmp_lg_u32", s_done, 255)); e(raw("s_cbranch_scc1 L_fin_loop", rd=["scc"]))
em.label("L_fin_done")
if DUMP == "fin": dump_regs([vs_[i] for i in range(16)] + [v_fr[i] for i in range(16)])
for k in range(8): e(valu("v_pk_fma_f32", vE[(2 * k, 2)], vs_[(2 * k, 2)], v_fr[(2 * k, 2)], vE[(2 * k, 2)]))
for k in range(8): e(valu("v_cvt_pk_bf16_f32", vxf[k], vE[2 * k], vE[2 * k + 1]))
for u in range(4): e(bstore(vxf[(2 * u, 2)], vxa, S_OUT, 0, off=32 * u))
stamp(); diag_out()
em.label("L_end")
e(raw("s_endpgm"))
main_end = len(em.out)

em.lgq, em.vmq, em.pend = [], [], {}
em.label("L_sigH_side")
e(salu("s_lshl_b32", s_t1, s_qb, 3)); e(salu("s_add_u32", s_t1, s_t1, s_g))
e(raw("s_mov_b64 exec, 2", "salu", wr=["exec"]))
e(raw("buffer_store_byte %s, off, %s, %s sc1" % (v_fa, S_DBG, s_t1)))
e(raw("s_mov_b64 exec, -1", "salu", wr=["exec"]))
e(raw("s_branch L_sigH_ret"))
em.label("L_fallback")
e(raw("s_waitcnt vmcnt(0) lgkmcnt(0)")); em._retire(em.vmq, 0); em._retire(em.lgq, 0)
for k in range(8): e(valu("v_accvgpr_write_b32", a_x[k], V(40 + k)))
e(salu("s_mov_b32", s_retry, 1, scc_w=False))
e(salu("s_mov_b32", S_H[2], 0, scc_w=False))
e(salu("s_mov_b32", s_kK, 0, scc_w=False))
fm = [V(40 + i) for i in range(4)]
for i in range(4): e(valu("v_mov_b32", fm[i], "0xff800000"))
em.label("L_fb_loop")
e(raw("s_barrier"))
e(salu("s_add_u32", "m0", s_m0b, 4 * 16384)); e(nop(0))
for j in range(4): e(dma(v_kd[j], S_K, s_kK, j * 1024))
em.wait(vm0=True)
e(raw("s_barrier"))
for kb in range(4):
    rr = [e(dsread("ds_read_b128", fr(ds), v_ka[ds], kb * 4096)) for ds in range(4)]
    em.wait(lg0=True)
    for ds in range(4):
        for qb in range(4):
            d = v_S[0][(qb * 4, 4)]
            e(mfma(d, fr(ds), Qf(qb, ds), 0 if ds == 0 else d))
    e(nop(7))
    for qb in range(4):
        e(valu("v_max3_f32", fm[qb], fm[qb], v_S[0][qb * 4], v_S[0][qb * 4 + 1])); e(valu("v_max3_f32", fm[qb], fm[qb], v_S[0][qb * 4 + 2], v_S[0][qb * 4 + 3]))
    e(nop(2))
e(salu("s_add_u32", s_kK, s_kK, 16384)); e(scmp("s_cmp_lt_u32", s_kK, 524288)); e(raw("s_cbranch_scc1 L_fb_loop", rd=["scc"]))
red4("v_max_f32", fm, [V(44 + i) for i in range(4)])
for qb in range(4):
    for k in range(4): e(valu("v_sub_f32", v_negm[qb * 4 + k], 0, fm[qb]))
e(raw("s_barrier"))
for m in (64, 65, 66):
    sa, dm = s1_dma(m); e(sa)
    for d in dm: e(d)
e(raw("s_branch L_att_start"))
em.label("L_code_end")
e(raw("s_endpgm"))

probs = check_hazards(em.out, "main") + loop_probs
for p in probs: print("; HAZARD", p, file=sys.stderr)
assert not probs

hdr = open(os.path.join(os.path.dirname(os.path.abspath(__file__)), "header.txt")).read()
print(hdr.rstrip())
print("; @launch grid=(256,1,1) block=(256,1,1) lds=163840")
print('.amdgcn_target "amdgcn-amd-amdhsa--gfx950"\n.text\n.globl %s\n.p2align 8\n.type %s,@function\n%s:' % (KN, KN, KN))
print(em.text())
print('.section .rodata,"a"\n.p2align 6\n.amdhsa_kernel %s' % KN)
print("  .amdhsa_next_free_vgpr 512\n  .amdhsa_next_free_sgpr 102\n  .amdhsa_accum_offset 256\n  .amdhsa_group_segment_fixed_size 0\n  .amdhsa_kernarg_size 96\n  .amdhsa_user_sgpr_count 2\n  .amdhsa_user_sgpr_kernarg_segment_ptr 1\n  .amdhsa_system_sgpr_workgroup_id_x 1\n.end_amdhsa_kernel")
```

```python
import sys, os, math, struct
from asmgen import *

KN = "recurrent_scan__gqa_block_cached__geglu_ffn__prompt_kernel"
DUMP = os.environ.get("DUMP", "")
STAMP = int(os.environ.get("STAMP", "0"))
GEL_END = int(os.environ.get("GEL_END", "247")); GEL_EXTRA = int(os.environ.get("GEL_EXTRA", "360"))

def f2u(x): return struct.unpack("<I", struct.pack("<f", x))[0]
def hx(x): return "0x%x" % (x & 0xffffffff)

S_X, S_K, S_V, S_WQ, S_WO, S_WG, S_WU, S_WD, S_OUT, S_DBG, S_H, S_SP = [S(4 + 4 * i, 4) for i in range(12)]
s_g, s_qb, s_w = S(52), S(53), S(54)
s_t0, s_t1, s_t2, s_t3 = S(55), S(56), S(57), S(58)
s_m0b = S(59)
s_off = S(60)
s_cnt = S(61)
s_kK, s_kV = S(62), S(63)
s_retry = S(64)
s_h0, s_h1 = S(65), S(66)
s_hl = S(67); s_hb = S(78); s_myfl = S(79); s_wdd = S(67); s_sig = S(78)
s_ka = S(68, 16); s_kb = S(84, 8)
s_pair = S(92, 2); s_pair2 = S(94, 2)
S_DMP = S(96, 4)
s_cq, s_cg = S(76), S(77)
S_HC = S(80, 4)
S_SPC = S(84, 4)
S_XC = S(88, 4)
s_st = S(68, 4)

v_tid, v_lane, v_lin, v_t = V(0), V(1), V(2), V(3)
v_tr = [V(4, 4), V(8, 4)]
v_dA, v_dB = V(12, 4), V(16, 4)
v_ka = V(20, 4); v_va = V(24, 8); v_kd = V(32, 4); v_vd = V(36, 2)
v_wl = V(38)
v_c = V(39)
v_l0, v_l1 = V(40, 4), V(44, 4)
v_lsave = V(16, 4)
v_negm = V(48, 16)
v_S = [V(64, 32), V(96, 32)]
v_acc = V(128, 128)
a_ring = A(128, 32)
a_B = A(160, 32)
a_Q = A(0, 64)
a_F = A(0, 64)
a_x = A(248, 8)

RING = 65536
MARK = 0x7fc17fc1
WS_SP = 8 << 20
WS_DUMP = 32 << 20
WS_FL = (7 << 20) + (512 << 10)
S_FL = S(4, 4)

em = Em()
e = em.e

def srd(dst, lo, hi, size, off_s=None):
    if off_s is None:
        e(salu("s_mov_b32", dst[0], lo, scc_w=False)); e(salu("s_mov_b32", dst[1], hi, scc_w=False))
    else:
        e(salu("s_add_u32", dst[0], lo, off_s)); e(salu("s_addc_u32", dst[1], hi, 0, scc_r=True))
    e(salu("s_mov_b32", dst[2], hx(size), scc_w=False)); e(salu("s_mov_b32", dst[3], "0x20000", scc_w=False))

DIAG = int(os.environ.get("DIAG", "0"))
HC_OFF = 128
diag_regs = [S(100, 2), S(70, 2), S(72, 2), S(74, 2), S(96, 2), S(98, 2), S(68, 2)] if DIAG == 1 else [S(100, 2), S(96, 2), S(98, 2), S(94, 2), S(70, 2), S(72, 2), S(74, 2), S(68, 2)]
diag_n = [0]
def diag(which=1, last=False):
    if not DIAG or (which != DIAG and which != 0): return
    k = diag_n[0]; diag_n[0] += 1
    e(raw("%s %s" % ("s_memtime" if (os.environ.get("CYC") and not last) else "s_memrealtime", diag_regs[k]), "other", wr=[diag_regs[k]]))
    if k > 0: e(raw("s_waitcnt lgkmcnt(0)", "wait")); em._retire(em.lgq, 0)
AMP = os.environ.get("AMP")
def diag_out():
    if not DIAG: return
    diag(0, last=True)
    if AMP:
        k = int(AMP); last = diag_regs[diag_n[0] - 1]
        e(salu("s_sub_u32", s_t0, diag_regs[k][0], diag_regs[int(os.environ.get("AMP0", "0"))][0]))
        if os.environ.get("CYC"): e(salu("s_lshr_b32", s_t0, s_t0, 2))
        else: e(salu("s_lshl_b32", s_t0, s_t0, 2))
        em.label("L_amp")
        e(raw("s_memrealtime s[56:57]")); e(raw("s_waitcnt lgkmcnt(0)"))
        e(salu("s_sub_u32", s_t1, s_t1, last[0])); e(scmp("s_cmp_lt_u32", s_t1, s_t0)); e(raw("s_cbranch_scc1 L_amp", rd=["scc"]))
        return
    e(scmp("s_cmp_lg_u32", s_w, 0)); e(raw("s_cbranch_scc1 L_end", rd=["scc"]))
    e(raw("s_mov_b64 exec, 1", "salu", wr=["exec"]))
    e(salu("s_not_b32", s_t0, diag_regs[0][0]))
    for k in range(diag_n[0]):
        e(valu("v_mov_b32", V(4 + k), s_t0 if k == 0 else diag_regs[k][0]))
        e(raw("buffer_atomic_umax %s, off, %s, 0 offset:%d sc1" % (V(4 + k), S_DBG, 4 * k)))
    e(valu("v_mov_b32", V(12), diag_regs[0][0]))
    e(raw("buffer_atomic_umax %s, off, %s, 0 offset:%d sc1" % (V(12), S_DBG, 4 * 9)))
stamp_n = [0]
def stamp():
    if not STAMP: return
    k = stamp_n[0]; stamp_n[0] += 1
    e(raw("s_memtime %s" % S(68, 2), "other", wr=[S(68, 2)]))
    e(raw("s_memrealtime %s" % S(70, 2), "other", wr=[S(70, 2)]))
    e(raw("s_waitcnt lgkmcnt(0)", "wait")); em._retire(em.lgq, 0)
    for i in range(4): e(valu("v_writelane_b32", v_c, S(68 + i), i, rmw=True))
    e(salu("s_lshl_b32", S(72), S(2), 2)); e(salu("s_add_u32", S(72), S(72), s_w)); e(salu("s_lshl_b32", S(72), S(72), 9))
    e(salu("s_mov_b64", S(74, 2), "exec", scc_w=False)); e(raw("s_mov_b64 exec, 15", "salu", wr=["exec"]))
    e(valu("v_lshlrev_b32", v_t, 2, v_lane))
    e(bstore(v_c, v_t, S_DMP, S(72), off=k * 16))
    e(raw("s_mov_b64 exec, %s" % S(74, 2), "salu", wr=["exec"]))
    e(valu("v_lshlrev_b32", v_t, 7, v_lane))

def dump_regs(regs, finish=True):
    em.wait(lg0=True, vm0=True)
    e(nop(7)); e(nop(7))
    n = len(regs)
    e(salu("s_lshl_b32", s_t0, S(2), 2)); e(salu("s_add_u32", s_t0, s_t0, s_w)); e(salu("s_mul_i32", s_t0, s_t0, n * 256, scc_w=False))
    e(valu("v_lshlrev_b32", v_t, 2, v_lane))
    for k, r in enumerate(regs):
        e(bstore(r, v_t, S_DMP, s_t0, off=0))
        e(salu("s_add_u32", s_t0, s_t0, 256))
        if k % 32 == 31: em.wait(vm0=True)
    em.wait(vm0=True)
    if finish: e(raw("s_endpgm"))

def red4(op, x, tmp):
    for sw in ("v_permlane32_swap_b32", "v_permlane16_swap_b32"):
        for a, t in zip(x, tmp): e(valu("v_mov_b32", t, a))
        if len(x) < 3: e(nop(1))
        for a, t in zip(x, tmp): e(valu(sw, a, t))
        for a, t in zip(x, tmp): e(valu(op, a, a, t))

e(scmp("s_cmp_ge_u32", S(2), 256)); e(raw("s_cbranch_scc1 L_end", rd=["scc"]))
diag(0)
i0 = e(I("s_load_dwordx16 %s, s[0:1], 0" % s_ka, "smem", wr=s_ka.regs()))
i1 = e(I("s_load_dwordx8 %s, s[0:1], 64" % s_kb, "smem", wr=s_kb.regs()))
vq, vG, vr, vc_, vx, vy, vz = [V(40 + i) for i in range(7)]
e(raw("s_getpc_b64 %s" % s_pair2, "salu", wr=[s_pair2]))
em.label("L_pc0")
CT0 = int(os.environ.get("CT0", "64"))
if CT0:
    e(valu("v_sub_u32", V(55), 255, v_tid)); e(valu("v_cmp_gt_u32", "vcc", CT0, V(55))); e(valu("v_lshlrev_b32", V(55), 7, V(55))); e(nop(0))
    e(raw("s_and_saveexec_b64 s[4:5], vcc", "salu", wr=["exec"], rd=["vcc"])); e(raw("s_cbranch_execz L_ct0"))
    e(raw("global_load_dword v55, v55, %s" % s_pair2))
    em.label("L_ct0")
    e(raw("s_mov_b64 exec, -1", "salu", wr=["exec"]))
e(salu("s_and_b32", s_g, S(2), 7)); e(salu("s_lshr_b32", s_qb, S(2), 3))
e(valu("v_and_b32", v_lane, 63, v_tid))
e(valu("v_lshrrev_b32", v_t, 6, v_tid))
e(valu("v_lshlrev_b32", v_lin, 4, v_lane))
e(valu("v_readfirstlane_b32", s_w, v_t))
e(valu("v_and_b32", vq, 15, v_lane)); e(valu("v_lshrrev_b32", vG, 4, v_lane))
vxo = V(47)
e(valu("v_lshl_add_u32", vxo, v_t, 4, vq)); e(valu("v_lshlrev_b32", vxo, 10, vxo)); e(valu("v_lshl_add_u32", vxo, vG, 4, vxo))
vwg, vwq, vcw = V(52), V(53), V(54)
e(salu("s_mul_i32", s_t1, s_g, 448, scc_w=False)); e(salu("s_and_b32", s_t1, s_t1, hx(~127)))
e(salu("s_and_b32", s_t2, s_w, 1)); e(salu("s_lshl_b32", s_t3, s_qb, 1)); e(salu("s_add_u32", s_t2, s_t2, s_t3))
e(salu("s_mul_i32", s_t2, s_t2, 8 * 3584, scc_w=False)); e(salu("s_add_u32", s_t1, s_t1, s_t2))
e(valu("v_lshrrev_b32", vx, 2, v_lane)); e(valu("v_mul_u32_u24", vx, 3584, vx)); e(valu("v_and_b32", vz, 3, v_lane)); e(valu("v_lshl_add_u32", vx, vz, 7, vx))
e(valu("v_add_u32", vwg, s_t1, vx))
e(salu("s_lshl_b32", s_t2, s_qb, 2)); e(salu("s_add_u32", s_t2, s_t2, s_w)); e(salu("s_lshl_b32", s_t3, s_t2, 8))
e(valu("v_lshlrev_b32", vcw, 7, v_lane)); e(valu("v_add_u32", vcw, s_t3, vcw))
e(salu("s_lshl_b32", s_t0, s_qb, 16))
em.wait(lg0=True)
diag(2)
srd(S_X, s_ka[0], s_ka[1], 65536, s_t0)
v_xp = V(64, 64)
XFIRST = int(os.environ.get("XFIRST", "12"))
xl = [bload(v_xp[(4 * ks, 4)], vxo, S_X, 0, off=64 * ks) for ks in range(16)]
for ks in range(XFIRST): e(xl[ks])
e(scmp("s_cmp_lt_u32", s_w, 2)); e(salu("s_cselect_b64", s_pair, s_ka[(12, 2)], s_ka[(14, 2)], scc_w=False, scc_r=True))
e(raw("s_mov_b64 exec, 0xffffffff", "salu", wr=["exec"]))
e(I("global_load_dword %s, %s, %s" % (V(48), vwg, s_pair), "vmem", rd=vwg.regs() + s_pair.regs(), wr=V(48).regs()))
e(raw("s_mov_b64 exec, 3", "salu", wr=["exec"]))
e(I("global_load_dword %s, %s, %s" % (V(49), vcw, s_pair2), "vmem", rd=vcw.regs() + s_pair2.regs(), wr=V(49).regs()))
e(raw("s_mov_b64 exec, -1", "salu", wr=["exec"]))
e(salu("s_lshl_b32", s_t2, s_t2, 15)); e(salu("s_lshl_b32", s_t3, s_g, 10)); e(salu("s_add_u32", s_t2, s_t2, s_t3))
e(valu("v_lshrrev_b32", vx, 3, v_lane)); e(valu("v_lshlrev_b32", vx, 13, vx)); e(valu("v_and_b32", vz, 7, v_lane)); e(valu("v_lshl_add_u32", vx, vz, 7, vx))
e(valu("v_add_u32", vwq, s_t2, vx))
e(salu("s_lshr_b32", s_t2, s_qb, 3)); e(salu("s_lshl_b32", s_t3, s_g, 2)); e(salu("s_add_u32", s_t2, s_t2, s_t3))
e(salu("s_lshl_b32", s_t0, s_t2, 16))
srd(S_OUT, s_kb[2], s_kb[3], 65536, s_t0)
e(salu("s_lshl_b32", s_t1, s_g, 19))
srd(S_K, s_ka[2], s_ka[3], 524288, s_t1)
srd(S_V, s_ka[4], s_ka[5], 524288, s_t1)
srd(S_WO, s_ka[8], s_ka[9], 524288, s_t1)
srd(S_WQ, s_ka[6], s_ka[7], 4 << 20)
srd(S_WG, s_ka[12], s_ka[13], 1835008)
srd(S_WU, s_ka[14], s_ka[15], 1835008)
srd(S_WD, s_kb[0], s_kb[1], 1835008)
srd(S_DBG, s_kb[4], s_kb[5], 256)
e(salu("s_mul_i32", s_t1, s_qb, 229376, scc_w=False))
srd(S_H, s_kb[6], s_kb[7], 229376, s_t1)
e(salu("s_lshl_b32", s_t1, s_qb, 19)); e(salu("s_add_u32", s_t1, s_t1, hx(WS_SP)))
srd(S_SP, s_kb[6], s_kb[7], 524288, s_t1)
if DUMP or STAMP:
    e(salu("s_mov_b32", s_t1, hx(WS_DUMP), scc_w=False))
    srd(S_DMP, s_kb[6], s_kb[7], 200 << 20, s_t1)
e(salu("s_mov_b64", s_pair, S(90, 2), scc_w=False))
e(salu("s_lshl_b32", s_t0, s_t2, 16))
srd(S_XC, s_ka[0], s_ka[1], 65536, s_t0)
e(salu("s_mul_i32", s_t1, s_t2, 229376, scc_w=False))
srd(S_HC, s_pair[0], s_pair[1], 229376, s_t1)
e(salu("s_lshl_b32", s_t1, s_t2, 19)); e(salu("s_add_u32", s_t1, s_t1, hx(WS_SP)))
srd(S_SPC, s_pair[0], s_pair[1], 524288, s_t1)
e(salu("s_mov_b32", s_cq, s_t2, scc_w=False)); e(salu("s_and_b32", s_cg, s_qb, 7))
e(salu("s_lshl_b32", s_myfl, s_qb, 7)); e(salu("s_lshl_b32", s_t1, s_g, 2)); e(salu("s_add_u32", s_myfl, s_myfl, s_t1))
e(salu("s_lshl_b32", s_m0b, s_w, 12)); e(salu("s_add_u32", s_m0b, s_m0b, RING))
e(salu("s_and_b32", s_t1, s_g, 1)); e(salu("s_lshl_b32", s_t1, s_t1, 2)); e(salu("s_add_u32", s_t1, s_t1, s_w))
e(scmp("s_cmp_eq_u32", s_w, 3)); e(salu("s_cselect_b32", s_t1, 3, s_t1, scc_w=False, scc_r=True))
e(salu("s_lshr_b32", s_t2, s_g, 1)); e(salu("s_mul_i32", s_t2, s_t2, 7, scc_w=False)); e(salu("s_add_u32", s_t1, s_t1, s_t2))
e(salu("s_lshl_b32", s_h0, s_t1, 13)); e(salu("s_add_u32", s_h1, s_h0, 4096))
e(salu("s_lshl_b32", s_t1, s_t1, 7))
e(salu("s_lshl_b32", s_t2, s_g, 2)); e(salu("s_add_u32", s_t2, s_t2, s_w)); e(salu("s_lshl_b32", s_t2, s_t2, 8))

def dma_voffs(dst, stride, colbase_s, perm):
    for j in range(4):
        e(valu("v_bfe_u32", vx, v_lane, 1, 2)); e(valu("v_bfe_u32", vy, v_lane, 4, 1))
        e(valu("v_xor_b32", vx, vx, vy))
        if j & 1: e(valu("v_xor_b32", vx, 2, vx))
        e(valu("v_and_b32", vy, 1, v_lane)); e(valu("v_lshlrev_b32", vy, 4, vy)); e(valu("v_lshl_add_u32", vx, vx, 5, vy))
        if not perm:
            e(valu("v_lshrrev_b32", vy, 3, v_lane)); rowadd = 8 * j
        else:
            e(valu("v_bfe_u32", vy, v_lane, 3, 2)); e(valu("v_bfe_u32", vz, v_lane, 5, 1)); e(valu("v_lshl_add_u32", vy, vz, 4, vy)); rowadd = 4 * j
        e(valu("v_mul_u32_u24", vy, stride, vy))
        e(valu("v_add3_u32", vx, vx, vy, colbase_s))
        e(valu("v_add_u32", dst[j], rowadd * stride - j * 1024, vx))

dma_voffs(v_dA, 3584, s_t1, False)
dma_voffs(v_dB, 8192, s_t2, False)

def m0set(p): return salu("s_add_u32", "m0", s_m0b, p * 16384) if p < 6 else salu("s_sub_u32", "m0", s_m0b, RING - (p - 6) * 16384)
def s1_dma(m):
    p = m % 6
    if m < 32:
        s, h = m >> 1, m & 1
        return [m0set(p), salu("s_mov_b32", s_off, s * 32 * 3584, scc_w=False)], [dma(v_dA[j], S_WU if h else S_WG, s_off, j * 1024) for j in range(4)]
    if m < 64:
        s, h = (m - 32) >> 1, m & 1
        return [m0set(p), salu("s_mov_b32", s_off, s * 32 * 8192 + 128 * h, scc_w=False)], [dma(v_dB[j], S_WQ, s_off, j * 1024) for j in range(4)]
    if m == 64:
        return [m0set(p), salu("s_mov_b32", s_off, 0, scc_w=False)], [dma(v_kd[j], S_K, s_off, j * 1024) for j in range(4)]
    if m == 65:
        return [m0set(p), salu("s_mov_b32", s_off, 8192, scc_w=False)], [dma(v_kd[j], S_K, s_off, j * 1024) for j in range(4)]
    if m == 66:
        return [m0set(p), salu("s_mov_b32", s_off, 0, scc_w=False)], [dma(v_vd[j & 1], S_V, s_off, j * 1024) for j in range(4)]
    return None
dtok = {}
ln_v = []
for m in range(6):
    sa, dm = s1_dma(m)
    ln_v.append(sa); ln_v += dm
    dtok[m] = dm[3]
def xaddr(dst, tmp):
    e(valu("v_and_b32", dst, 15, v_lane)); e(salu("s_lshl_b32", s_t0, s_w, 4)); e(valu("v_add_u32", dst, s_t0, dst)); e(valu("v_lshlrev_b32", dst, 10, dst))
    e(valu("v_lshrrev_b32", tmp, 4, v_lane)); e(valu("v_lshl_add_u32", dst, tmp, 3, dst)); e(salu("s_lshl_b32", s_t0, s_cg, 7)); e(valu("v_add_u32", dst, s_t0, dst))
vxs, vzero = V(50), V(51)
xaddr(vxs, vy)
e(valu("v_mov_b32", vzero, 0))
ln_v += [bload(a_x[(2 * u, 2)], vxs, S_XC, 0, off=32 * u, n=2) for u in range(4)]
ln_v.append([raw("s_mov_b64 exec, 1", "salu", wr=["exec"]), bstore(vzero, None, S_FL, s_myfl, mod="sc1"), raw("s_mov_b64 exec, -1", "salu", wr=["exec"])])
ln_v.append([raw("s_mov_b64 exec, 0xffffffff", "salu", wr=["exec"]), bload(V(46), vwq, S_WQ, 0, n=1), raw("s_mov_b64 exec, -1", "salu", wr=["exec"])])
LNPRE = int(os.environ.get("LNPRE", "0"))
lv = [0]
def ln_issue(n=1):
    k = 0
    while k < n and lv[0] < len(ln_v):
        it = ln_v[lv[0]]; lv[0] += 1
        e(it)
        if not isinstance(it, list): k += 1
e(valu("v_bfe_u32", vr, v_lane, 2, 2)); e(valu("v_and_b32", vc_, 3, v_lane))
e(valu("v_lshlrev_b32", vx, 10, vG)); e(valu("v_lshl_add_u32", vx, vr, 7, vx)); e(valu("v_lshl_add_u32", vx, vc_, 3, vx)); e(valu("v_add_u32", vx, s_m0b, vx))
e(valu("v_lshrrev_b32", vy, 1, vr)); e(valu("v_and_b32", vz, 1, vG)); e(valu("v_lshl_add_u32", vy, vz, 1, vy))
for u in range(4):
    e(valu("v_xor_b32", vz, u, vy)); e(valu("v_lshl_add_u32", v_tr[0][u], vz, 5, vx)); e(valu("v_add_u32", v_tr[1][u], 3 * 16384, v_tr[0][u]))
e(valu("v_xor_b32", vy, vG, vq))
for ds in range(4):
    e(valu("v_xor_b32", vz, 4 * ds, vy)); e(valu("v_lshlrev_b32", vz, 4, vz)); e(valu("v_lshl_add_u32", vz, vq, 8, vz)); e(valu("v_add_u32", v_ka[ds], RING + 4 * 16384, vz))
e(valu("v_lshl_add_u32", vx, vG, 2, vr)); e(valu("v_and_b32", vy, 7, vx)); e(valu("v_lshlrev_b32", vx, 8, vx)); e(valu("v_lshl_add_u32", vx, vc_, 3, vx)); e(valu("v_add_u32", vx, RING, vx))
for db in range(8):
    e(valu("v_xor_b32", vz, db, vy)); e(valu("v_lshl_add_u32", v_va[db], vz, 5, vx))
e(salu("s_lshl_b32", s_t1, s_w, 12))
e(valu("v_lshlrev_b32", vx, 8, vG)); e(valu("v_add_u32", vx, s_t1, vx))
for j in range(4):
    e(valu("v_add_u32", vy, 4 * j, vG)); e(valu("v_xor_b32", vy, vy, vq)); e(valu("v_lshl_add_u32", v_kd[j], vy, 4, vx))
e(valu("v_and_b32", vz, 1, v_lane)); e(valu("v_lshl_add_u32", vx, vz, 4, vx))
for j in range(2):
    e(valu("v_add_u32", vy, 4 * j, vG)); e(valu("v_lshrrev_b32", vz, 1, vq)); e(valu("v_xor_b32", vy, vy, vz)); e(valu("v_lshl_add_u32", v_vd[j], vy, 5, vx))
e(salu("s_lshl_b32", s_t1, s_w, 14)); e(valu("v_add_u32", v_wl, s_t1, v_lin))
e(salu("s_mov_b32", s_retry, 0, scc_w=False))
for ks in range(XFIRST, 16): e(xl[ks])
e(salu("s_mov_b32", s_t1, hx(WS_FL), scc_w=False))
srd(S_FL, s_pair[0], s_pair[1], 4096, s_t1)
ln_issue(LNPRE)
stamp()

v_f = V(128, 128)
acc = [V(56, 2), V(58, 2), V(60, 2), V(62, 2)]
diag(2)
for ks in range(16):
    em.wait(vm=xl[ks])
    if ks == 15: diag(2)
    for k in range(4):
        p = 4 * ks + k
        e(valu("v_lshlrev_b32", v_f[2 * p], 16, v_xp[p])); e(valu("v_and_b32", v_f[2 * p + 1], "0xffff0000", v_xp[p]))
    for k in range(4):
        p = 4 * ks + k
        if ks == 0: e(valu("v_mov_b64", acc[k], v_f[(2 * p, 2)]))
        else: e(valu("v_pk_add_f32", acc[k], acc[k], v_f[(2 * p, 2)]))
if STAMP == 3: stamp()
ln_issue(int(os.environ.get("LN_FIRST", "12")))
diag(2)
if STAMP == 3: stamp()
e(valu("v_pk_add_f32", acc[0], acc[0], acc[1])); e(valu("v_pk_add_f32", acc[2], acc[2], acc[3])); e(valu("v_pk_add_f32", acc[0], acc[0], acc[2]))
vsum, vtmp, vmb, vdm = V(40), V(41), V(42), V(43)
e(valu("v_add_f32", vsum, acc[0][0], acc[0][1]))
red4("v_add_f32", [vsum], [vtmp])
e(valu("v_mul_f32", vsum, hx(f2u(1.0 / 512)), vsum))
e(valu("v_cvt_pk_bf16_f32", vmb, vsum, vsum)); e(valu("v_lshlrev_b32", vmb, 16, vmb))
e(valu("v_sub_f32", vdm, vsum, vmb))
vneg = V(56, 2)
e(valu("v_sub_f32", vneg[0], 0, vmb))
acc2 = [V(58, 2), V(60, 2), V(62, 2)]
for p in range(64):
    e(valu("v_pk_add_f32", v_f[(2 * p, 2)], v_f[(2 * p, 2)], vneg, mod="op_sel_hi:[1,0]"))
for p in range(64):
    a_ = acc2[p % 3]
    if p < 3: e(valu("v_pk_mul_f32", a_, v_f[(2 * p, 2)], v_f[(2 * p, 2)]))
    else: e(valu("v_pk_fma_f32", a_, v_f[(2 * p, 2)], v_f[(2 * p, 2)], a_))
if STAMP == 3: stamp()
e(valu("v_pk_add_f32", acc2[0], acc2[0], acc2[1])); e(valu("v_pk_add_f32", acc2[0], acc2[0], acc2[2]))
e(valu("v_add_f32", vsum, acc2[0][0], acc2[0][1]))
red4("v_add_f32", [vsum], [vtmp])
e(valu("v_mul_f32", vsum, hx(f2u(1.0 / 512)), vsum))
e(valu("v_fma_f32", vsum, "-" + str(vdm), vdm, vsum, extra_rd=vdm.regs()))
e(valu("v_max_f32", vsum, 0, vsum))
e(valu("v_cvt_pk_bf16_f32", vsum, vsum, vsum)); e(valu("v_lshlrev_b32", vsum, 16, vsum))
e(valu("v_add_f32", vsum, hx(f2u(1e-5)), vsum))
e(valu("v_cvt_pk_bf16_f32", vsum, vsum, vsum)); e(valu("v_lshlrev_b32", vsum, 16, vsum))
e(valu("v_sqrt_f32", vsum, vsum)); e(nop(0))
e(valu("v_cvt_pk_bf16_f32", vsum, vsum, vsum)); e(valu("v_lshlrev_b32", vsum, 16, vsum))
e(valu("v_rcp_f32", vneg[0], vsum)); e(nop(0))
for ks in range(16):
    for k in range(4):
        p = 4 * ks + k
        e(valu("v_pk_mul_f32", v_f[(2 * p, 2)], v_f[(2 * p, 2)], vneg, mod="op_sel_hi:[1,0]"))
    for k in range(4):
        p = 4 * ks + k
        e(valu("v_cvt_pk_bf16_f32", v_xp[p], v_f[2 * p], v_f[2 * p + 1]))
    e(dswrite("ds_write_b128", v_wl, v_xp[(4 * ks, 4)], ks * 1024))
ln_issue(int(os.environ.get("LN_LAST", "100")))
if STAMP == 3: stamp()
if DUMP == "ln": dump_regs([v_xp[i] for i in range(64)])
em.wait(lg0=True)
e(raw("s_barrier"))
stamp(); diag(); diag(2)

def cost_of(it):
    k = getattr(it, "kind", "")
    return 2 if k == "trans" else (0 if k in ("salu", "nop") else 1)
class Fill:
    def __init__(self, items, start, end, spread=False): self.items, self.start, self.end, self.spread = list(items), start, end, spread; self.i = 0
    def done(self): return self.i == len(self.items)
def run_stream(NH, dmaf, dtok, accf, Bf, extra, fills, LOOK=6, nq=4, posf=lambda m: m % 6, ring=a_ring, first_dma=6, tr2=None):
    NG = 4 * NH
    rtok = {}
    def reads(g):
        m, u = g >> 2, g & 3
        p = posf(m)
        d = ring[((g % 8) * 4, 4)]
        ar, of = (v_tr[p // 3][u], (p % 3) * 16384) if p < 6 else (tr2[u], (p - 6) * 16384)
        r = [dsread("ds_read_b64_tr_b16", d[(2 * h2, 2)], ar, of + h2 * 512) for h2 in range(2)]
        rtok[g] = r[1]
        return r
    pre = [reads(g) for g in range(3)]
    G, C = [], []
    cur = None
    for g in range(NG):
        gaps = [[], [], [], []]; cap = [2, 2, 2, 2]
        if g + 3 < NG:
            if (g + 3) & 3 == 0: gaps[0].append(LateW(dtok, (g + 3) >> 2))
            r = reads(g + 3); gaps[0].append(r[0]); gaps[1].append(r[1]); cap[0] -= 1; cap[1] -= 1
        md, j = (g + 4 * LOOK - 4) >> 2, (g + 4 * LOOK - 4) & 3
        if md >= first_dma:
            if j == 0: cur = dmaf(md)
            if cur is not None:
                if j == 0: gaps[2] += cur[0]
                for it in cur[1][j::4]: gaps[3].append(it); cap[3] -= 1
                if j == 3: dtok[md] = cur[1][3]
        for (gp, it, cost) in extra.get(g, []):
            gaps[gp].append(it); cap[gp] -= cost
        if g + 1 < NG: gaps[3].insert(0, Wait(lg=rtok[g + 1]))
        G.append(gaps); C.append(cap)
    B = {}
    for f in fills:
        idx = [(g, q) for g in range(f.start, f.end) for q in range(4)]
        caps = [max(0, C[g][q]) for g, q in idx]
        W = sum(cost_of(it) for it in f.items); T = sum(caps); n = len(idx)
        acc = 0.0; cum = 0
        for k, key in enumerate(idx):
            if W >= T: acc += caps[k] + (W - T) / n
            elif f.spread: acc += caps[k] * W / T
            else: acc += caps[k]
            B[key] = (f, acc)
    em.wait(vm=dtok[0])
    for r in pre: e(r)
    for p_ in extra.get(-1, []): e(p_[1])
    em.wait(lg0=True)
    used = {id(f): 0 for f in fills}
    for g in range(NG):
        m, u = g >> 2, g & 3
        d = ring[((g % 8) * 4, 4)]
        for qb in range(nq):
            ac, first = accf(m, u, qb)
            e(mfma(ac, d, Bf(m, qb), 0 if first else ac))
            ent = B.get((g, qb))
            sawv = False
            if ent:
                f, lim = ent
                while not f.done() and getattr(f.items[f.i], "kind", "") in ("lds", "vmem", "salu") and used[id(f)] + cost_of(f.items[f.i]) <= lim + 0.5:
                    it = f.items[f.i]; f.i += 1; used[id(f)] += cost_of(it); e(it)
            for it in G[g][qb]: e(it)
            if ent:
                f, lim = ent
                lastgap = (g == f.end - 1 and qb == 3)
                while not f.done():
                    it = f.items[f.i]; c = cost_of(it)
                    if not lastgap:
                        if used[id(f)] + c > lim + 0.5: break
                        if sawv and getattr(it, "kind", "") in ("lds", "vmem"): break
                    f.i += 1; used[id(f)] += c; e(it)
                    if getattr(it, "kind", "") in ("valu", "trans"): sawv = True
    assert all(f.done() for f in fills)
class LateW:
    def __init__(self, d, k): self.d, self.k = d, k
    def __call__(self): return Wait(vm=self.d[self.k])

def s1_acc(m, u, qb):
    h = m & 1
    idx = ((h * 4 + u) * 4 + qb) * 4
    if m < 32: return A(idx, 4), m < 2
    return v_acc[(idx, 4)], m < 34
def s1_B(m, qb): return a_B[(((m >> 1) & 1) * 16 + qb * 4, 4)]
extra = {}
btok = {}
def bread(s, qb): return dsread("ds_read_b128", a_B[((s & 1) * 16 + qb * 4, 4)], v_lin, (qb * 16 + (s % 16)) * 1024)
extra[-1] = [(0, bread(0, qb), 1) for qb in range(4)]
for s in range(1, 32):
    for qb in range(4):
        extra.setdefault(8 * (s - 1) + 1 + qb, []).append((2, bread(s, qb), 1))
gi = 0; gj = 0; pend_s = []
for it in ln_v[lv[0]:]:
    if isinstance(it, list) and all(x.kind == "salu" for x in it): pend_s = it; continue
    if not isinstance(it, list) and it.kind == "dma":
        assert gi < 12
        extra.setdefault(gi // 3, []).append((gi % 3, [pend_s, it] if pend_s else it, 1)); pend_s = []
        gi += 1
    else:
        extra.setdefault(8 + 2 * gj, []).append((1, it, 1)); gj += 1
C0 = -2.0 * math.sqrt(2.0 / math.pi) * math.log2(math.e); C1 = C0 * 0.044715
vc0, vc1 = V(40), V(41)
gel = [valu("v_mov_b32", vc0, hx(f2u(C0))), valu("v_mov_b32", vc1, hx(f2u(C1)))]
hst = []
tb = 0
for i in range(2):
    for qb in range(4):
        pk = V(96 + 4 * tb, 4); tb += 1
        for b in range(2):
            u = 2 * i + b
            T = [V(64 + 16 * b + k) for k in range(16)]
            G_, U_, X_ = T[0:4], T[4:8], T[8:12]
            ga = lambda r: A((u * 4 + qb) * 4 + r); ua = lambda r: A(((4 + u) * 4 + qb) * 4 + r)
            for r in range(4): gel.append(valu("v_accvgpr_read_b32", G_[r], ga(r)))
            for r in range(4): gel.append(valu("v_accvgpr_read_b32", U_[r], ua(r)))
            for r in range(4): gel.append(valu("v_mul_f32", X_[r], G_[r], G_[r]))
            for r in range(4): gel.append(valu("v_fma_f32", X_[r], X_[r], vc1, vc0))
            for r in range(4): gel.append(valu("v_mul_f32", X_[r], X_[r], G_[r]))
            for r in range(4): gel.append(valu("v_exp_f32", X_[r], X_[r]))
            for r in range(4): gel.append(valu("v_mul_f32", G_[r], G_[r], U_[r]))
            for r in range(4): gel.append(valu("v_add_f32", X_[r], "1.0", X_[r]))
            for r in range(4): gel.append(valu("v_rcp_f32", X_[r], X_[r]))
            gel.append(nop(0))
            for r in range(4): gel.append(valu("v_mul_f32", G_[r], G_[r], X_[r]))
            for k in range(2): gel.append(valu("v_cvt_pk_bf16_f32", pk[2 * b + k], G_[2 * k], G_[2 * k + 1]))
        st = bstore(pk, v_lin, S_H, s_h1 if i else s_h0, off=qb * 1024, mod="sc1")
        hst.append(st)
class Stamp:
    def __call__(self): stamp(); return []
if STAMP: extra.setdefault(128, []).append((0, Stamp(), 0))
class Grp:
    kind = "salu"
    def __init__(self, l): self.l = l
    def __call__(self):
        for x in self.l:
            if x.kind == "label": em.out.append(x)
            else: e(x)
        return []
def group_scc(items):
    out = []
    for it in items:
        if out and ("scc" in it.rd or it.kind == "label"):
            p = out.pop(); out.append(Grp((p.l if isinstance(p, Grp) else [p]) + [it]))
        else: out.append(it)
    return out
s_pf = [S(24, 2), S(26, 2), S(28, 2), S(30, 2)]
s_pfH = s_pair2
s_fo = S(3)
QS = math.log2(math.e) / math.sqrt(128.0)
vqs = V(42, 2); vqw = V(44)
save = em.out; em.out = []; spend = em.pend; em.pend = {}
for it in range(3):
    e(salu("s_add_u32", s_t0, s_w, 4 * it))
    e(salu("s_sub_u32", s_t1, s_t0, 2)); e(salu("s_min_u32", s_t1, s_t1, 6)); e(salu("s_lshl_b32", s_t1, s_t1, 13))
    e(salu("s_mul_i32", s_t2, s_qb, 57344, scc_w=False)); e(salu("s_add_u32", s_t1, s_t1, s_t2))
    e(salu("s_add_u32", s_pf[it][0], S_WD[0], s_t1)); e(salu("s_addc_u32", s_pf[it][1], S_WD[1], 0, scc_r=True))
    if it == 0:
        e(salu("s_lshl_b32", s_t1, s_qb, 14)); e(salu("s_lshl_b32", s_t2, s_w, 13)); e(salu("s_add_u32", s_t1, s_t1, s_t2))
        e(salu("s_add_u32", s_pf[1][0], S_WO[0], s_t1)); e(salu("s_addc_u32", s_pf[1][1], S_WO[1], 0, scc_r=True))
        e(scmp("s_cmp_lt_u32", s_w, 2)); e(salu("s_cselect_b64", s_pf[0], s_pf[1], s_pf[0], scc_w=False, scc_r=True))
e(raw("s_getpc_b64 %s" % s_pf[3], "salu", wr=[s_pf[3]]))
em.label("L_pc1")
e(salu("s_lshl_b32", s_t0, s_w, 13)); e(salu("s_add_u32", s_t0, s_t0, "L_tail-L_pc1")); e(salu("s_min_u32", s_t0, s_t0, "L_code_end-L_pc1-8192"))
e(salu("s_add_u32", s_t1, s_t0, 3 * 8192)); e(salu("s_min_u32", s_t1, s_t1, "L_code_end-L_pc1-8192"))
e(salu("s_add_u32", s_pfH[0], s_pf[3][0], s_t1)); e(salu("s_addc_u32", s_pfH[1], s_pf[3][1], 0, scc_r=True))
e(scmp("s_cmp_eq_u32", s_w, 0)); e(salu("s_cselect_b64", s_pf[2], s_pf[2], s_pfH, scc_w=False, scc_r=True))
e(salu("s_add_u32", s_pf[3][0], s_pf[3][0], s_t0)); e(salu("s_addc_u32", s_pf[3][1], s_pf[3][1], 0, scc_r=True))
e(salu("s_lshl_b32", s_t0, s_cg, 2)); e(salu("s_add_u32", s_t0, s_t0, s_w)); e(salu("s_mul_i32", s_t0, s_t0, 7168, scc_w=False)); e(salu("s_min_u32", s_t0, s_t0, 229376 - 8192))
e(salu("s_add_u32", s_pfH[0], S_HC[0], s_t0)); e(salu("s_addc_u32", s_pfH[1], S_HC[1], 0, scc_r=True))
e(salu("s_lshl_b32", s_fo, s_cq, 3))
vx, vy, vz = V(45), V(46), V(47)
e(salu("s_lshl_b32", s_t1, s_w, 8))
dma_voffs(v_dA, 1024, s_t1, True)
e(salu("s_mul_i32", s_wdd, s_w, 448 * 1024 - 256, scc_w=False)); e(salu("s_lshl_b32", s_t3, s_cg, 7)); e(salu("s_add_u32", s_wdd, s_wdd, s_t3))
e(valu("v_mov_b32", vqs[0], hx(f2u(QS))))
e(valu("v_and_b32", vx, 15, v_lane)); e(valu("v_bfe_u32", vqw, v_lane, 5, 1)); e(valu("v_lshl_add_u32", vx, vqw, 4, vx)); e(valu("v_lshlrev_b32", vx, 4, vx))
e(valu("v_bfe_u32", vqw, v_lane, 4, 1)); e(valu("v_lshl_add_u32", vqw, vqw, 3, vx))
e(salu("s_lshl_b32", s_t1, s_w, 14)); e(valu("v_add_u32", vqw, s_t1, vqw))
midset = group_scc(em.out); em.out = save; em.pend = spend
HST = int(os.environ.get("HST", "0"))
if HST == 0: GEL_END = 254
for k in range(8):
    if HST: extra.setdefault(248 + k, []).append((0, hst[k], 1))
run_stream(64, s1_dma, dtok, s1_acc, s1_B, extra, [Fill(midset, 109, 130), Fill(gel, 131, GEL_END)])
if DUMP == "qacc": dump_regs([v_acc[i] for i in range(128)])
stamp()

em.wait(lg0=True)
e(raw("s_barrier"))
def signal(off_s_expr_add, lab, v_t):
    e(scmp("s_cmp_lg_u32", s_w, 0)); e(raw("s_cbranch_scc1 %s" % lab, rd=["scc"]))
    e(salu("s_lshl_b32", s_t0, s_qb, 2))
    if off_s_expr_add: e(salu("s_add_u32", s_t0, s_t0, off_s_expr_add))
    e(valu("v_mov_b32", v_t, 1))
    e(raw("s_mov_b64 exec, 1", "salu", wr=["exec"]))
    e(raw("buffer_atomic_add %s, off, %s, %s sc1" % (v_t, S_DBG, s_t0)))
    e(raw("s_mov_b64 exec, -1", "salu", wr=["exec"]))
    em.label(lab)
for blk in range(8):
    for qb in range(4):
        a_ = v_acc[((blk * 4 + qb) * 4, 4)]
        t = V(64 + 2 * ((blk * 4 + qb) % 8), 2)
        for k in range(2): e(valu("v_pk_mul_f32", a_[(2 * k, 2)], a_[(2 * k, 2)], vqs, mod="op_sel_hi:[1,0]"))
        for k in range(2): e(valu("v_cvt_pk_bf16_f32", t[k], a_[2 * k], a_[2 * k + 1]))
        if len(em.lgq) >= 7: em.wait(lg=em.lgq[-7])
        e(dswrite("ds_write_b64", vqw, t, (qb * 4 + (blk >> 1)) * 1024 + (blk & 1) * 512))
for j in range(4): e(valu("v_add_u32", v_dB[j], s_wdd, v_dA[j]))
em.wait(lg0=True)
for f in range(16): e(dsread("ds_read_b128", a_Q[(4 * f, 4)], v_wl, f * 1024))
em.label("L_att_start")
NZ0 = 32
for i in range(NZ0): e(valu("v_mov_b64", v_acc[(2 * i, 2)], 0))
for i in range(4): e(valu("v_mov_b32", v_l0[i], 0)); e(valu("v_mov_b32", v_l1[i], 0))
e(valu("v_lshlrev_b32", V(3), 7, v_lane))
e(valu("v_and_b32", V(38), 7, v_lane)); e(valu("v_mov_b32", V(0), 0))
em.wait(vm=dtok[66], lg0=True)
e(raw("s_barrier"))
if DUMP == "q": dump_regs([a_Q[i] for i in range(64)])
stamp()

def Qf(qb, ds): return a_Q[((qb * 4 + ds) * 4, 4)]
def Of(db, qb): return v_acc[((db * 4 + qb) * 4, 4)]
def fr(f): return a_ring[((f % 8) * 4, 4)]
def kslot(par): return 16384 if par == 0 else 0
def vslot(par): return 0 if par == 0 else 16384
def frag_reads(par, f):
    if f >= 32: par ^= 1; f -= 32
    d = fr(f)
    if f < 8 or 16 <= f < 24:
        kb = (f >> 2) if f < 8 else 2 + ((f - 16) >> 2)
        return [dsread("ds_read_b128", d, v_ka[f & 3], kslot(par) + kb * 4096)]
    ks2 = 0 if f < 16 else 1
    db = f & 7
    return [dsread("ds_read_b64_tr_b16", d[(2 * h, 2)], v_va[db], vslot(par) + ks2 * 8192 + h * 4096) for h in range(2)]
def read_sched(g):
    r = []
    if g + 3 < 24 or g >= 29: r.append(g + 3)
    if 19 <= g <= 26: r.append(g + 5)
    return r
def sm_val(g, k):
    if 7 <= g <= 22: b = 1; n = 2 * (g - 7) + k
    else: b = 0; n = 2 * ((g - 23) % 32) + k
    kb, qb, r = n >> 4, (n >> 2) & 3, n & 3
    return b, qb, kb, r
def sm_items(g):
    ex, ad = [], []
    for k in range(2):
        b, qb, kb, r = sm_val(g, k)
        x = v_S[b][qb * 8 + kb * 4 + r]
        l = (v_l1 if b else v_l0)[qb]
        ex.append(valu("v_exp_f32", x, x)); ad.append(valu("v_add_f32", l, l, x))
    b, qb, kb, r = sm_val((g - 1) % 32, 0)
    cv = valu("v_cvt_pk_bf16_f32", v_S[b][qb * 8 + kb * 2 + (r >> 1)], v_S[b][qb * 8 + kb * 4 + r], v_S[b][qb * 8 + kb * 4 + r + 1])
    return ex, ad, cv
def att_dma(par, g):
    if g >= 29: k = g - 29; sp = par
    elif g <= 4: k = g + 3; sp = par ^ 1
    else: return [], None
    sal = []
    if k == 0: sal = [salu("s_add_u32", "m0", s_m0b, 4 * 16384 + kslot(sp))]
    if k == 4: sal = [salu("s_add_u32", "m0", s_m0b, vslot(sp))]
    if k < 4: return sal, dma(v_kd[k], S_K, s_kK, k * 1024)
    return sal, dma(v_vd[k & 1], S_V, s_kV, (k - 4) * 1024)
SIDE_FIRST = 11
class Lbl:
    def __init__(self, n): self.n = n
    def __call__(self): em.label(self.n); return []
class LoopStamp:
    def __init__(self, k, par): self.k, self.par = k, par
    def __call__(self):
        k = self.k
        e(raw("s_memtime %s" % S(68 + 2 * k, 2), "other", wr=[S(68 + 2 * k, 2)]))
        if k == 2:
            e(raw("s_waitcnt lgkmcnt(0)", "wait")); em._retire(em.lgq, 0)
            for i in range(3): e(valu("v_writelane_b32", v_c, S(68 + 2 * i), i, rmw=True))
            e(salu("s_lshl_b32", S(74), S(2), 2)); e(salu("s_add_u32", S(74), S(74), s_w)); e(salu("s_lshl_b32", S(74), S(74), 4))
            e(salu("s_sub_u32", S(74), S(74), s_cnt)); e(salu("s_add_u32", S(74), S(74), 16)); e(salu("s_lshl_b32", S(74), S(74), 5))
            e(salu("s_add_u32", S(74), S(74), (1 << 20) + 16 * self.par))
            e(raw("s_mov_b64 exec, 7", "salu", wr=["exec"]))
            e(valu("v_lshlrev_b32", v_t, 2, v_lane))
            e(bstore(v_c, v_t, S_DMP, S(74), off=0))
            e(raw("s_mov_b64 exec, -1", "salu", wr=["exec"]))
            e(valu("v_lshlrev_b32", v_t, 7, v_lane))
        return []
v_tch, v_flag, v_fa = V(3), V(0), V(38)
xtok = []; lastdma = [None]
NITER = 14
s_pfc = S(16, 2); s_one = S(18)
ROT = int(os.environ.get('ROT', '8'))
ftok = {}
def att_group(par, g, do_mfma=True, do_mem=True, do_cvt=True, last=False, pp=None, xmem=(), xsal=(), xvalu=None):
    ex, ad, cv = sm_items(g)
    mem = []
    sal = []
    fin = (pp == 3)
    d = None
    if do_mem:
        if fin: sched = ([g + 3] if g + 3 < 16 else []) + ([g + 11] if 13 <= g <= 20 else [])
        else: sched = read_sched(g)
        for f in sched:
            r = frag_reads(par, f); mem += r; ftok[f % 32] = r
        if pp is None or (g <= 4 and pp <= 2) or (g >= 29 and pp <= 1):
            sal, d = att_dma(par, g)
            if d is not None: mem.append(d)
    loop = do_mem and pp is None
    post0 = []
    if loop and par == 0:
        if g == 14: mem.append(I("global_load_dword %s, %s, %s" % (v_c, v_tch, s_pfc), "vmem", rd=v_tch.regs() + s_pfc.regs(), wr=[]))
        if g == 13: mem.append(I("buffer_load_ubyte %s, %s, %s, %s offen sc1" % (v_flag, v_fa, S_DBG, s_t2), "vmem", rd=S_DBG.regs() + s_t2.regs() + v_fa.regs(), wr=[]))
        if g == 8: sal = sal + [scmp("s_cmp_le_u32", s_cnt, ROT)]
        if g in (9, 10, 11, 12):
            q_ = [s_pfc] + s_pf
            sal = sal + [salu("s_cselect_b64", q_[g - 9], q_[g - 8], q_[g - 9], scc_w=False, scc_r=True)]
        if g == 0: post0 = [valu("v_cmp_eq_u32", "vcc", 1, v_flag)]
        if g == 2: sal = sal + [raw("s_cmp_eq_u32 vcc_lo, -1", "salu", rd=["vcc"], wr=["scc"])]
        if g == 3: sal = sal + [salu("s_cselect_b64", s_pf[3], s_pfH, s_pf[3], scc_w=False, scc_r=True)]
        if g == 13: sal = sal + [salu("s_cselect_b32", s_t2, s_fo, 256, scc_w=False, scc_r=True)]
        if g == 18: sal = sal + [scmp("s_cmp_eq_u32", s_cnt, s_sig)]
        if g == 19: sal = sal + [raw("s_cbranch_scc1 L_sigH_side", rd=["scc"]), Lbl("L_sigH_ret")]
    if do_mem and g == 4 and d is not None: lastdma[0] = d
    mem += list(xmem); sal = sal + list(xsal)
    gaps = [[], [], [], []]
    if g == 29 and do_mem and not fin:
        if STAMP == 2 and loop and do_mfma: gaps[0] += [LoopStamp(0, par)]
        gaps[0] += [Wait(lg0=True) if not do_mfma else (Wait(lg0=True, vm0=True) if (pp is None and par == 1) else Wait(lg0=True, vm=lastdma[0]))]
        if STAMP == 2 and loop and do_mfma: gaps[0] += [LoopStamp(1, par)]
        gaps[0] += [raw("s_barrier")]
        if STAMP == 2 and loop and do_mfma: gaps[0] += [LoopStamp(2, par)]
    gaps[0] += sal
    if g == 6 and do_mem and (pp is None or pp <= 1): gaps[0].append(salu("s_add_u32", s_kK, s_kK, 16384))
    if g == 7 and do_mem and (pp is None or pp <= 1): gaps[0].append(salu("s_add_u32", s_kV, s_kV, 16384))
    sm = not (fin and g >= 23)
    if fin and g > 23: do_cvt = False
    if fin and 16 <= g < 24: do_mfma = False
    gaps[0] += mem[2:3]
    if sm: gaps[0].append(ex[0])
    if len(mem) > 0: gaps[1].append(mem[0])
    if len(mem) == 0 and do_cvt: gaps[1].append(cv)
    if sm: gaps[1].append(ad[0])
    gaps[1] += post0
    nf = (g + 1) % 32
    if do_mem and not (fin and (16 <= nf < 24 or nf == 0)): gaps[2].append(Wait(lg=ftok.get(nf)))
    if last and g == 30: gaps[2].append(salu("s_sub_u32", s_cnt, s_cnt, 1))
    gaps[2] += mem[3:]
    if sm: gaps[2].append(ex[1])
    if len(mem) > 1: gaps[3].append(mem[1])
    if len(mem) > 0 and do_cvt: gaps[3].append(cv)
    if sm: gaps[3].append(ad[1])
    for qb in range(4):
        if do_mfma:
            if g < 8 or 16 <= g < 24:
                b = 1 if g < 8 else 0
                kb, ds = (g >> 2) & 1, g & 3
                d = v_S[b][(qb * 8 + kb * 4, 4)]
                e(mfma(d, fr(g), Qf(qb, ds), v_negm[(qb * 4, 4)] if ds == 0 else d))
            else:
                b = 0 if g < 16 else 1
                e(mfma(Of(g & 7, qb), fr(g), v_S[b][(qb * 8, 4)], Of(g & 7, qb)))
        else:
            if (qb & 1) and not gaps[qb][:1] or ((qb & 1) and getattr(gaps[qb][0], "kind", "") in ("valu",)): e(nop(0))
        for it in gaps[qb]: e(it)
        if xvalu is not None:
            c = 2 - sum(1 for it in gaps[qb] if getattr(it, "kind", "") in ("lds", "vmem", "dma", "valu"))
            while xvalu and c > 0:
                it = xvalu.pop(0); e(it); c -= 2 if it.kind == "trans" else 1

pr = [dsread("ds_read_b128", fr(f), v_ka[f & 3], (f >> 2) * 4096) for f in range(8)]
for r in pr: e(r)
e(scmp("s_cmp_lg_u32", s_retry, 0)); e(raw("s_cbranch_scc1 L_have_max", rd=["scc"]))
for i in range(16): e(valu("v_mov_b32", v_negm[i], 0))
em.label("L_have_max")
zr = [valu("v_mov_b32", v_acc[i], 0) for i in range(2 * NZ0, 128)]
for f in range(8):
    em.wait(lg=pr[f])
    for qb in range(4):
        d = v_S[0][(qb * 8 + (f >> 2) * 4, 4)]
        e(mfma(d, fr(f), Qf(qb, f & 3), v_negm[(qb * 4, 4)] if (f & 3) == 0 else d))
        if qb == 0 and HST == 0: e(hst[f])
        for _ in range(2):
            if zr: e(zr.pop(0))
assert not zr
e(salu("s_mov_b32", s_kK, 16384 + 8192, scc_w=False)); e(salu("s_mov_b32", s_kV, 16384, scc_w=False)); e(salu("s_mov_b32", s_cnt, NITER, scc_w=False))
e(scmp("s_cmp_lg_u32", s_retry, 0)); e(raw("s_cbranch_scc1 L_have_max2", rd=["scc"]))
e(nop(3))
mx = [V(97 + 4 * i) for i in range(4)]; mt = [V(98 + 4 * i) for i in range(4)]
for qb in range(4): e(valu("v_max3_f32", mx[qb], v_S[0][qb * 8], v_S[0][qb * 8 + 1], v_S[0][qb * 8 + 2]))
for qb in range(4): e(valu("v_max3_f32", mx[qb], mx[qb], v_S[0][qb * 8 + 3], v_S[0][qb * 8 + 4]))
for qb in range(4): e(valu("v_max3_f32", mx[qb], mx[qb], v_S[0][qb * 8 + 5], v_S[0][qb * 8 + 6]))
for qb in range(4): e(valu("v_max_f32", mx[qb], mx[qb], v_S[0][qb * 8 + 7]))
red4("v_max_f32", mx, mt)
for qb in range(4):
    for k in range(4): e(valu("v_sub_f32", v_negm[qb * 4 + k], 0, mx[qb]))
for qb in range(4):
    for k in range(8): e(valu("v_sub_f32", v_S[0][qb * 8 + k], v_S[0][qb * 8 + k], mx[qb]))
em.label("L_have_max2")
e(nop(7))
for g in range(23, 29): att_group(1, g, do_mfma=False, do_mem=False, do_cvt=(g != 23))
stamp(); diag()
e(salu("s_and_b32", s_t0, s_qb, 3)); e(salu("s_sub_u32", s_t0, NITER - 1, s_t0))
e(scmp("s_cmp_eq_u32", s_w, 0)); e(salu("s_cselect_b32", s_sig, s_t0, -1, scc_w=False, scc_r=True))
e(scmp("s_cmp_eq_u32", s_retry, 0)); e(salu("s_cselect_b32", s_sig, s_sig, -1, scc_w=False, scc_r=True))
e(salu("s_mov_b64", s_pfc, S_K[(0, 2)], scc_w=False))
for g in range(29, 32): att_group(1, g, do_mfma=False, do_mem=True)
pro_end = len(em.out)
em.directive(".p2align 6")
em.label("L_att_loop")
def body():
    for par in range(2):
        for g in range(32): att_group(par, g, last=(par == 1))
b0 = len(em.out)
body()
b1 = len(em.out)
e(scmp("s_cmp_lg_u32", s_cnt, 0)); e(raw("s_cbranch_scc1 L_att_loop", rd=["scc"]))
b2 = len(em.out)
body()
second = em.out[b2:]; del em.out[b2:]
assert [i.text for i in second] == [i.text for i in em.out[b0:b1]], "loop not in steady state"
loop_probs = check_hazards(em.out[b1 - 40:b2] + second[:60], "loop-wrap")

em.label("L_tail")
v_ring2 = V(64, 32); v_B2 = V(96, 32)
NF1 = 8
def hreg(kk, qb):
    if kk >= NF1: kk -= NF1
    return A((64 + 16 * kk if kk < 4 else 160 + 16 * (kk - 4)) + qb * 4, 4)
def Facc(u, qb):
    t = u * 4 + qb
    return A(128 + 4 * t if t < 8 else 224 + 4 * (t - 8), 4)
POS2 = [5, 0, 2, 3, 4, 1]
NB = int(os.environ.get("NB", "4"))
def pos2(m): return 6 + m if m < NB else POS2[(m - NB) % 6]
def kind2(m):
    if m < NF1: return ("F", m)
    if m < NF1 + 32: return ("O", (m - NF1) >> 1, (m - NF1) & 1)
    return ("F", m - 32)
def s2_dma(m):
    if m >= 46: return None
    p = pos2(m); k = kind2(m)
    if k[0] == "O":
        return [m0set(p), salu("s_mov_b32", s_off, k[1] * 32 * 1024 + 128 * k[2], scc_w=False)], [dma(v_dA[j], S_WO, s_off, j * 1024) for j in range(4)]
    return [m0set(p), salu("s_mov_b32", s_off, k[1] * 32 * 1024, scc_w=False)], [dma(v_dB[j], S_WD, s_off, j * 1024) for j in range(4)]
dtok2 = {}; s2pre = {}
for m in range(6 + NB):
    s2pre[m] = s2_dma(m); dtok2[m] = s2pre[m][1][3]
class Seq:
    kind = "vmem"
    def __init__(self, l): self.l = l
    def __call__(self): return self.l
hld = {}; htok = {}
for kk in range(14):
    hld[kk] = [bload(hreg(kk, qb), v_lin, S_HC, s_hl, off=qb * 1024, mod="sc1") for qb in range(4)]
    htok[kk] = hld[kk][3]
e(salu("s_mov_b32", s_cnt, 0, scc_w=False))
em.label("L_pollH")
e(valu("v_cmp_ne_u32", "vcc", 1, v_flag)); e(salu("s_mul_i32", s_hb, s_w, 14 * 4096, scc_w=False)); e(nop(1))
e(raw("s_cbranch_vccz L_pollH_done", rd=["vcc"]))
e(salu("s_add_u32", s_cnt, s_cnt, 1)); e(scmp("s_cmp_ge_u32", s_cnt, 50000)); e(raw("s_cbranch_scc1 L_pollH_done", rd=["scc"]))
e(raw("s_sleep 4")); e(raw("buffer_load_ubyte %s, %s, %s, %s offen sc1" % (v_flag, v_fa, S_DBG, s_fo))); e(raw("s_waitcnt vmcnt(0)")); e(raw("s_branch L_pollH"))
em.label("L_pollH_done")
NH0 = 4 * NF1
hsl = sorted([(pp, g) for pp in range(3) for g in (5, 13, 14, 15, 16, 17, 18, 27, 28, 9, 11)])[:NH0]
px = {}
for k, key in enumerate(hsl):
    px.setdefault(key, ([], []))
    px[key][0].append(hld[k >> 2][k & 3])
    if k & 3 == 0: px[key][1].append(salu("s_add_u32", s_hl, s_hb, (k >> 2) * 4096))
wsl = [(pp, g) for pp in range(2) for g in (6, 7, 8, 10, 12, 21, 22, 23)][:4 * NB] + [(2, 29), (2, 30), (2, 31), (3, 0), (3, 1), (3, 2), (3, 3), (3, 4)] + [(3, g) for g in range(5, 13)] + [(3, g) for g in range(24, 32)]
for k, key in enumerate(wsl):
    px.setdefault(key, ([], []))
    m, j = k >> 2, k & 3
    px[key][0].append(s2pre[m][1][j])
    if j == 0: px[key][1].extend(s2pre[m][0])
px[(3, 24)][1][:0] = [Wait(lg0=True), raw("s_barrier")]
lt = [V(48 + i) for i in range(4)]
rinv = [V(52 + i) for i in range(4)]
vxf = V(40, 8)
save = em.out; em.out = []
for qb in range(4): e(valu("v_add_f32", v_l1[qb], v_l1[qb], v_l0[qb]))
red4("v_add_f32", [v_l1[i] for i in range(4)], lt)
e(valu("v_add_f32", lt[1], v_l1[0], v_l1[1])); e(valu("v_add_f32", lt[2], v_l1[2], v_l1[3])); e(valu("v_add_f32", lt[1], lt[1], lt[2]))
for qb in range(4): e(valu("v_rcp_f32", rinv[qb], v_l1[qb]))
e(valu("v_cmp_nge_f32", "vcc", hx(f2u(2.0 ** 30)), lt[1]))
for k in range(8): e(valu("v_accvgpr_read_b32", vxf[k], a_x[k]))
v_tr2 = V(56, 4); v_ow = V(62)
for u in range(4): e(valu("v_subrev_u32", v_tr2[u], RING, v_tr[0][u]))
e(valu("v_subrev_u32", v_ow, RING, v_lin)); e(valu("v_add_u32", v_ow, s_m0b, v_ow))
lred = em.out; em.out = save
for pp in range(4):
    for g in range(32):
        xm, xs = px.get((pp, g), ([], []))
        att_group(pp & 1, g, pp=pp, xmem=xm, xsal=xs, xvalu=(lred if (pp == 3 and g >= 24) else None))
for it in lred: e(it)
diag(); stamp()
if DUMP == "o":
    e(nop(7))
    for db in range(8):
        for qb in range(4):
            for k in range(4): e(valu("v_mul_f32", Of(db, qb)[k], Of(db, qb)[k], rinv[qb]))
    dump_regs([v_acc[i] for i in range(128)])

vm_ = V(60); vma = V(61)
class Mark:
    kind = "salu"
    def __init__(self, t): self.t = t
    def __call__(self):
        e(raw("s_cbranch_vccz L_nomark", rd=["vcc"])); e(valu("v_mov_b32", self.t, hx(MARK))); em.label("L_nomark"); return []
norm = [valu("v_and_b32", vma, 3, v_lane), valu("v_lshlrev_b32", vma, 12, vma)]
ow = []; ncv = []
for i in range(4):
    for qb in range(4):
        t = Of(2 * i, qb)
        for b in range(2):
            for k in range(4): norm.append(valu("v_mul_f32", Of(2 * i + b, qb)[k], Of(2 * i + b, qb)[k], rinv[qb]))
        for b in range(2):
            o = Of(2 * i + b, qb)
            for k in range(2): norm.append(valu("v_cvt_pk_bf16_f32", t[2 * b + k], o[2 * k], o[2 * k + 1]))
        ncv.append(norm[-1])
        if i == 0 and qb == 0: norm.append(Mark(t[0]))
        ow.append(dswrite("ds_write_b128", v_ow, t, i * 16384 + qb * 1024))
        if NB == 0: norm.append(ow[-1])
class ChkNorm:
    def __init__(self, k): self.k = k
    def __call__(self):
        assert ncv[self.k].tok, "O write %d scheduled before its data" % self.k
        return ow[self.k]
G0 = 4 * NF1
G1 = G0 + 128
mk = dsread("ds_read_b32", vm_, vma, 0)
class OBar:
    def __call__(self):
        assert all(w.tok for w in ow)
        em.wait(lg0=True); e(raw("s_barrier")); stamp(); e(mk); return []
class FbCheck:
    def __call__(self):
        em.wait(lg=mk)
        e(valu("v_cmp_eq_u32", "vcc", hx(MARK), vm_))
        e(scmp("s_cmp_lg_u32", s_retry, 0)); e(raw("s_cbranch_scc1 L_nofb", rd=["scc"]))
        e(nop(1))
        e(raw("s_cbranch_vccnz L_fallback", rd=["vcc"]))
        em.label("L_nofb")
        return []
def s2_acc(m, u, qb):
    k = kind2(m)
    if k[0] == "O": return v_acc[(((k[2] * 4 + u) * 4 + qb) * 4, 4)], k[1] == 0
    return Facc(u, qb), k[1] == 0
def s2_B(m, qb):
    k = kind2(m)
    if k[0] == "O": return v_B2[((k[1] & 1) * 16 + qb * 4, 4)]
    return hreg(k[1], qb)
def oread(s, qb): return dsread("ds_read_b128", v_B2[((s & 1) * 16 + qb * 4, 4)], v_lin, (s & 3) * 16384 + (s >> 2) * 4096 + qb * 1024)
extra = {}
if NB:
    OW0 = int(os.environ.get("OW0", "11"))
    for k in range(16): extra.setdefault(OW0 + k, []).append((2, ChkNorm(k), 1))
GB = G0 - int(os.environ.get("OBAR", "3"))
extra.setdefault(GB, []).append((0, OBar(), 0))
r0 = [oread(0, qb) for qb in range(4)]
for qb in range(4): extra.setdefault(GB + (qb >> 1), []).append((1 + (qb & 1) if qb < 2 else (qb & 1) * 2, r0[qb], 1))
extra.setdefault(G0 - 1, []).append((2, [Wait(lg=r0), FbCheck()], 0))
for s_ in range(1, 16):
    for qb in range(4): extra.setdefault(G0 + 8 * (s_ - 1) + 1 + qb, []).append((2, oread(s_, qb), 1))
class LateWait:
    def __init__(self, f): self.f = f
    def __call__(self): return Wait(vm=self.f())
vxa = V(48); vpoll = V(49); vfw = V(50)
vx, vy, vz = V(63), V(57), V(58)
save = em.out; em.out = []
xaddr(vxa, vx)
e(valu("v_and_b32", V(51), 7, v_lane)); e(valu("v_lshlrev_b32", V(51), 2, V(51)))
e(valu("v_add_u32", vfw, s_m0b, v_lin)); e(salu("s_lshl_b32", s_t0, s_w, 14)); e(salu("s_add_u32", s_t0, s_t0, RING)); e(valu("v_add_u32", V(55), s_t0, v_lin))
e(salu("s_lshl_b32", s_t3, s_w, 4)); e(salu("s_add_u32", s_t3, s_t3, s_g)); e(salu("s_lshl_b32", s_t3, s_t3, 13))
early = em.out; em.out = save
extra.setdefault(-1, []).append((0, LateWait(lambda: htok[0]), 0))
for kk in range(1, 14):
    g_ = 4 * kk if kk < NF1 else 4 * (kk + 32)
    extra.setdefault(g_ - 1, []).append((2, LateWait(lambda kk=kk: htok[kk]), 0))
HG0 = int(os.environ.get("HG0", "5")); HGS = int(os.environ.get("HGS", "1"))
for k in range(NH0, 56):
    extra.setdefault(HG0 + HGS * (k - NH0), []).append((2, Seq([salu("s_add_u32", s_hl, s_hb, (k >> 2) * 4096), hld[k >> 2][k & 3]]), 1))
def sreg(ip, qb, odd=0): return v_acc[(((2 * ip + odd) * 4 + qb) * 4, 4)]
sp = []; spst = []; stq = []
NSI = int(os.environ.get("NSI", "11"))
s_so = [s_t1, s_cnt, s_h0, s_h1]
for k in range(4): sp.append(salu("s_add_u32", s_so[k], s_t3, (k >> 1) * 65536 + (k & 1) * 4096))
for ip in range(4):
    for qb in range(4):
        t = sreg(ip, qb)
        for b in range(2):
            o = sreg(ip, qb, b)
            for k in range(2): sp.append(valu("v_cvt_pk_bf16_f32", t[2 * b + k], o[2 * k], o[2 * k + 1]))
        st = bstore(t, v_lin, S_SP, s_so[(ip >> 1) * 2 + (qb >> 1)], off=(qb & 1) * 2048 + (ip & 1) * 1024, mod="sc1")
        spst.append((st, sp[-1]))
class St:
    def __init__(self, k): self.k = k
    def __call__(self):
        assert spst[self.k][1].tok
        return spst[self.k][0]
STG = int(os.environ.get("STG", "2"))
for k in range(NSI): extra.setdefault(G1 + 3 + STG * k, []).append((2, St(k), 1))
sti = [NSI]
def st_next(n=1):
    for _ in range(n):
        if sti[0] < 16: e(spst[sti[0]][0]); sti[0] += 1
vpa = V(51)
s_done, s_new, s_sb = s_kK, s_kV, s_fo
def spl(gp, i): return A((gp * 2 + i) * 4, 4)
def flag_load(): return bload(vpoll, vpa, S_FL, s_t2, n=1, mod="sc1")
lblc = [0]
def issue_new():
    k = lblc[0]; lblc[0] += 1
    e(valu("v_cmp_eq_u32", "vcc", 1, vpoll)); e(nop(1))
    e(raw("s_andn2_b32 %s, vcc_lo, %s" % (s_new, s_done), "salu", rd=["vcc", s_done], wr=[s_new, "scc"])); e(salu("s_and_b32", s_new, s_new, 255))
    e(raw("s_cbranch_scc0 L_in%d_end" % k, rd=["scc"]))
    e(salu("s_or_b32", s_done, s_done, s_new))
    for gp in range(8):
        e(scmp("s_bitcmp1_b32", s_new, gp)); e(raw("s_cbranch_scc0 L_in%d_%d" % (k, gp), rd=["scc"]))
        e(salu("s_add_u32", s_t0, s_sb, gp * 8192))
        for i in range(2): e(raw(bload(spl(gp, i), v_lin, S_SPC, s_t0, off=i * 1024, mod="sc1").text))
        em.label("L_in%d_%d" % (k, gp))
    em.label("L_in%d_end" % k)
pinit = [salu("s_lshl_b32", s_t2, s_cq, 7), salu("s_mov_b32", s_done, 0, scc_w=False),
         salu("s_lshl_b32", s_sb, s_cg, 16), salu("s_lshl_b32", s_new, s_w, 11), salu("s_add_u32", s_sb, s_sb, s_new)]
extra.setdefault(G1 - 8, []).append((1, pinit, 0))
class MidPoll:
    def __init__(self, tok): self.tok = tok
    def __call__(self):
        em.wait(vm=self.tok); issue_new()
        e(salu("s_mov_b32", s_hb, s_done, scc_w=False))
        midmark.append(em.vm_total)
        return []
midmark = []
if int(os.environ.get("MID", "1")):
    pt = flag_load()
    extra.setdefault(G1 - int(os.environ.get("MID0", "4")), []).append((2, pt, 1))
    MIDPOST = int(os.environ.get("MIDPOST", "1"))
    if not MIDPOST: extra.setdefault(G1 + int(os.environ.get("MID1", "3")), []).append((0, MidPoll(pt), 0))
    else: extra.setdefault(G1 + 2, []).append((0, Wait(vm=pt), 0))
if STAMP: extra.setdefault(G1, []).append((0, Stamp(), 0))
class Diag:
    def __call__(self): diag(); return []
if DIAG: extra.setdefault(G1, []).append((0, Diag(), 0))
vs = [Fill(norm, 0, GB - (3 if NB else 1)), Fill(early, G0 + 2, G0 + 40), Fill(sp, G1 + 2, G1 + 16)]
run_stream(46, s2_dma, dtok2, s2_acc, s2_B, extra, vs, posf=pos2, ring=v_ring2, first_dma=6 + NB, tr2=v_tr2)
stamp(); diag()
def static_loads():
    e(valu("v_cmp_eq_u32", "vcc", 1, vpoll)); e(nop(1))
    e(raw("s_and_b32 %s, vcc_lo, 255" % s_done, "salu", rd=["vcc"], wr=[s_done, "scc"]))
    for gp in range(8):
        e(salu("s_add_u32", s_t0, s_sb, gp * 8192)); e(scmp("s_bitcmp1_b32", s_done, gp)); e(salu("s_cselect_b32", s_t0, s_t0, 524288, scc_w=False, scc_r=True))
        for i in range(2): e(bload(spl(gp, i), v_lin, S_SPC, s_t0, off=i * 1024, mod="sc1"))
e(nop(5))
for qb in range(4):
    for u in range(4):
        if len(em.lgq) >= 12: em.wait(lg=em.lgq[-12])
        e(dswrite("ds_write_b128", vfw, Facc(u, qb), qb * 16384 + u * 1024))
    if qb & 1: st_next(int(os.environ.get("STW", "1")))
v_fr = V(96, 16); vE = V(64, 16); vs_ = V(80, 16)
for k in range(8): e(valu("v_mov_b64", vs_[(2 * k, 2)], 0))
em.wait(lg0=True)
e(raw("s_barrier"))
def frr(ws_, u): return sreg(ws_, u, 1)
for ws_ in range(4):
    for u in range(4):
        if len(em.lgq) >= 14: em.wait(lg=em.lgq[-14])
        e(dsread("ds_read_b128", frr(ws_, u), V(55), ws_ * 4096 + u * 1024))
st_next()
if MIDPOST:
    st_next(16)
    if MIDPOST == 1: static_loads()
em.wait(lg0=True)
for u in range(4):
    for k in range(2):
        e(valu("v_pk_add_f32", frr(0, u)[(2 * k, 2)], frr(0, u)[(2 * k, 2)], frr(1, u)[(2 * k, 2)]))
        e(valu("v_pk_add_f32", frr(2, u)[(2 * k, 2)], frr(2, u)[(2 * k, 2)], frr(3, u)[(2 * k, 2)]))
for u in range(4):
    for k in range(2): e(valu("v_pk_add_f32", v_fr[(4 * u + 2 * k, 2)], frr(0, u)[(2 * k, 2)], frr(2, u)[(2 * k, 2)]))
for k in range(16): e(valu("v_mul_f32", vE[k], hx(f2u(-math.log2(math.e))), v_fr[k]))
st_next()
for k in range(16): e(valu("v_exp_f32", vE[k], vE[k]))
for k in range(16): e(valu("v_add_f32", vE[k], "1.0", vE[k]))
st_next()
for k in range(16): e(valu("v_rcp_f32", vE[k], vE[k]))
for k in range(16): e(valu("v_mul_f32", v_fr[k], v_fr[k], vE[k]))
for k in range(8):
    e(valu("v_lshlrev_b32", vE[2 * k], 16, vxf[k])); e(valu("v_and_b32", vE[2 * k + 1], "0xffff0000", vxf[k]))
st_next()
stamp()
accn = [0]
def acc_pieces(mask, sprinkle=False):
    n = accn[0]; accn[0] += 1
    for gp in range(8):
        e(scmp("s_bitcmp1_b32", mask, gp)); e(raw("s_cbranch_scc0 L_acc%d_%d" % (n, gp), rd=["scc"]))
        for k2 in range(8): e(valu("v_accvgpr_read_b32", V(120 + k2), spl(gp, k2 >> 2)[k2 & 3]))
        for k in range(8):
            e(valu("v_lshlrev_b32", V(112 + 2 * (k & 3)), 16, V(120 + k))); e(valu("v_and_b32", V(113 + 2 * (k & 3)), "0xffff0000", V(120 + k)))
            e(valu("v_pk_add_f32", vs_[(2 * k, 2)], vs_[(2 * k, 2)], V(112 + 2 * (k & 3), 2)))
        em.label("L_acc%d_%d" % (n, gp))
        if sprinkle and gp & 1: st_next()
if midmark:
    n_y = em.vm_total - midmark[0]
    e(raw("s_waitcnt vmcnt(%d)" % n_y, "wait")); em._retire(em.vmq, n_y)
    acc_pieces(s_hb, sprinkle=True)
st_next(16)
if MIDPOST != 2: e(flag_load())
em.wait(vm=spst[-1][0]); stamp(); e(raw("s_barrier"))
e(scmp("s_cmp_lg_u32", s_w, 0)); e(raw("s_cbranch_scc1 L_sigS", rd=["scc"]))
e(valu("v_mov_b32", v_t, 1))
e(raw("s_mov_b64 exec, 1", "salu", wr=["exec"]))
e(raw("buffer_store_dword %s, off, %s, %s sc1" % (v_t, S_FL, s_myfl)))
e(raw("s_mov_b64 exec, -1", "salu", wr=["exec"]))
em.label("L_sigS")
if MIDPOST == 2: static_loads(); e(flag_load())
s_prev = s_hl
e(salu("s_mov_b32", s_prev, s_done if MIDPOST else 0, scc_w=False)); e(salu("s_mov_b32", s_cnt, 0, scc_w=False))
em.label("L_fin_loop")
em.wait(vm0=True)
issue_new()
e(raw(flag_load().text))
acc_pieces(s_prev)
e(salu("s_mov_b32", s_prev, s_new, scc_w=False))
e(salu("s_add_u32", s_cnt, s_cnt, 1)); e(scmp("s_cmp_ge_u32", s_cnt, 50000)); e(raw("s_cbranch_scc1 L_fin_done", rd=["scc"]))
e(scmp("s_cmp_lg_u32", s_prev, 0)); e(raw("s_cbranch_scc1 L_fin_loop", rd=["scc"]))
e(scmp("s_cmp_lg_u32", s_done, 255)); e(raw("s_cbranch_scc1 L_fin_loop", rd=["scc"]))
em.label("L_fin_done")
if DUMP == "fin": dump_regs([vs_[i] for i in range(16)] + [v_fr[i] for i in range(16)])
for k in range(8): e(valu("v_pk_fma_f32", vE[(2 * k, 2)], vs_[(2 * k, 2)], v_fr[(2 * k, 2)], vE[(2 * k, 2)]))
for k in range(8): e(valu("v_cvt_pk_bf16_f32", vxf[k], vE[2 * k], vE[2 * k + 1]))
for u in range(4): e(bstore(vxf[(2 * u, 2)], vxa, S_OUT, 0, off=32 * u))
stamp(); diag_out()
em.label("L_end")
e(raw("s_endpgm"))
main_end = len(em.out)

em.lgq, em.vmq, em.pend = [], [], {}
em.label("L_sigH_side")
e(salu("s_lshl_b32", s_t1, s_qb, 3)); e(salu("s_add_u32", s_t1, s_t1, s_g))
e(raw("s_mov_b64 exec, 2", "salu", wr=["exec"]))
e(raw("buffer_store_byte %s, off, %s, %s sc1" % (v_fa, S_DBG, s_t1)))
e(raw("s_mov_b64 exec, -1", "salu", wr=["exec"]))
e(raw("s_branch L_sigH_ret"))
em.label("L_fallback")
e(raw("s_waitcnt vmcnt(0) lgkmcnt(0)")); em._retire(em.vmq, 0); em._retire(em.lgq, 0)
for k in range(8): e(valu("v_accvgpr_write_b32", a_x[k], V(40 + k)))
e(salu("s_mov_b32", s_retry, 1, scc_w=False))
e(salu("s_mov_b32", S_H[2], 0, scc_w=False))
e(salu("s_mov_b32", s_kK, 0, scc_w=False))
fm = [V(40 + i) for i in range(4)]
for i in range(4): e(valu("v_mov_b32", fm[i], "0xff800000"))
em.label("L_fb_loop")
e(raw("s_barrier"))
e(salu("s_add_u32", "m0", s_m0b, 4 * 16384)); e(nop(0))
for j in range(4): e(dma(v_kd[j], S_K, s_kK, j * 1024))
em.wait(vm0=True)
e(raw("s_barrier"))
for kb in range(4):
    rr = [e(dsread("ds_read_b128", fr(ds), v_ka[ds], kb * 4096)) for ds in range(4)]
    em.wait(lg0=True)
    for ds in range(4):
        for qb in range(4):
            d = v_S[0][(qb * 4, 4)]
            e(mfma(d, fr(ds), Qf(qb, ds), 0 if ds == 0 else d))
    e(nop(7))
    for qb in range(4):
        e(valu("v_max3_f32", fm[qb], fm[qb], v_S[0][qb * 4], v_S[0][qb * 4 + 1])); e(valu("v_max3_f32", fm[qb], fm[qb], v_S[0][qb * 4 + 2], v_S[0][qb * 4 + 3]))
    e(nop(2))
e(salu("s_add_u32", s_kK, s_kK, 16384)); e(scmp("s_cmp_lt_u32", s_kK, 524288)); e(raw("s_cbranch_scc1 L_fb_loop", rd=["scc"]))
red4("v_max_f32", fm, [V(44 + i) for i in range(4)])
for qb in range(4):
    for k in range(4): e(valu("v_sub_f32", v_negm[qb * 4 + k], 0, fm[qb]))
e(raw("s_barrier"))
for m in (64, 65, 66):
    sa, dm = s1_dma(m); e(sa)
    for d in dm: e(d)
e(raw("s_waitcnt vmcnt(0)"))
e(raw("s_branch L_att_start"))
em.label("L_code_end")
e(raw("s_endpgm"))

probs = check_hazards(em.out, "main") + loop_probs
for p in probs: print("; HAZARD", p, file=sys.stderr)
assert not probs

hdr = open(os.path.join(os.path.dirname(os.path.abspath(__file__)), "header.txt")).read()
print(hdr.rstrip())
print("; @launch grid=(256,1,1) block=(256,1,1) lds=163840")
print('.amdgcn_target "amdgcn-amd-amdhsa--gfx950"\n.text\n.globl %s\n.p2align 8\n.type %s,@function\n%s:' % (KN, KN, KN))
print(em.text())
print('.section .rodata,"a"\n.p2align 6\n.amdhsa_kernel %s' % KN)
print("  .amdhsa_next_free_vgpr 512\n  .amdhsa_next_free_sgpr 102\n  .amdhsa_accum_offset 256\n  .amdhsa_group_segment_fixed_size 0\n  .amdhsa_kernarg_size 96\n  .amdhsa_user_sgpr_count 2\n  .amdhsa_user_sgpr_kernarg_segment_ptr 1\n  .amdhsa_system_sgpr_workgroup_id_x 1\n.end_amdhsa_kernel")
```

```python
import sys, os, math, struct
from asmgen import *

KN = "recurrent_scan__gqa_block_cached__geglu_ffn__prompt_kernel"
DUMP = os.environ.get("DUMP", "")
STAMP = int(os.environ.get("STAMP", "0"))
GEL_END = int(os.environ.get("GEL_END", "247")); GEL_EXTRA = int(os.environ.get("GEL_EXTRA", "360"))

def f2u(x): return struct.unpack("<I", struct.pack("<f", x))[0]
def hx(x): return "0x%x" % (x & 0xffffffff)

S_X, S_K, S_V, S_WQ, S_WO, S_WG, S_WU, S_WD, S_OUT, S_DBG, S_H, S_SP = [S(4 + 4 * i, 4) for i in range(12)]
s_g, s_qb, s_w = S(52), S(53), S(54)
s_t0, s_t1, s_t2, s_t3 = S(55), S(56), S(57), S(58)
s_m0b = S(59)
s_off = S(60)
s_cnt = S(61)
s_kK, s_kV = S(62), S(63)
s_retry = S(64)
s_h0, s_h1 = S(65), S(66)
s_hl = S(67); s_hb = S(78); s_myfl = S(79); s_wdd = S(67); s_sig = S(78)
s_ka = S(68, 16); s_kb = S(84, 8)
s_pair = S(92, 2); s_pair2 = S(94, 2)
S_DMP = S(96, 4)
s_cq, s_cg = S(76), S(77)
S_HC = S(80, 4)
S_SPC = S(84, 4)
S_XC = S(88, 4)
s_st = S(68, 4)

v_tid, v_lane, v_lin, v_t = V(0), V(1), V(2), V(3)
v_tr = [V(4, 4), V(8, 4)]
v_dA, v_dB = V(12, 4), V(16, 4)
v_ka = V(20, 4); v_va = V(24, 8); v_kd = V(32, 4); v_vd = V(36, 2)
v_wl = V(38)
v_c = V(39)
v_l0, v_l1 = V(40, 4), V(44, 4)
v_lsave = V(16, 4)
v_negm = V(48, 16)
v_S = [V(64, 32), V(96, 32)]
v_acc = V(128, 128)
a_ring = A(128, 32)
a_B = A(160, 32)
a_Q = A(0, 64)
a_F = A(0, 64)
a_x = A(248, 8)
LSUM = int(os.environ.get('LSUM', '1'))
a_L = A(224, 16); a_ones = A(240, 4)

RING = 65536
MARK = 0x7fc17fc1
WS_SP = 8 << 20
WS_DUMP = 32 << 20
WS_FL = (7 << 20) + (512 << 10)
S_FL = S(4, 4)

em = Em()
e = em.e

def srd(dst, lo, hi, size, off_s=None):
    if off_s is None:
        e(salu("s_mov_b32", dst[0], lo, scc_w=False)); e(salu("s_mov_b32", dst[1], hi, scc_w=False))
    else:
        e(salu("s_add_u32", dst[0], lo, off_s)); e(salu("s_addc_u32", dst[1], hi, 0, scc_r=True))
    e(salu("s_mov_b32", dst[2], hx(size), scc_w=False)); e(salu("s_mov_b32", dst[3], "0x20000", scc_w=False))

DIAG = int(os.environ.get("DIAG", "0"))
HC_OFF = 128
diag_regs = [S(100, 2), S(70, 2), S(72, 2), S(74, 2), S(96, 2), S(98, 2), S(68, 2)] if DIAG == 1 else [S(100, 2), S(96, 2), S(98, 2), S(94, 2), S(70, 2), S(72, 2), S(74, 2), S(68, 2)]
diag_n = [0]
def diag(which=1, last=False):
    if not DIAG or (which != DIAG and which != 0): return
    k = diag_n[0]; diag_n[0] += 1
    e(raw("%s %s" % ("s_memtime" if (os.environ.get("CYC") and not last) else "s_memrealtime", diag_regs[k]), "other", wr=[diag_regs[k]]))
    if k > 0: e(raw("s_waitcnt lgkmcnt(0)", "wait")); em._retire(em.lgq, 0)
AMP = os.environ.get("AMP")
def diag_out():
    if not DIAG: return
    diag(0, last=True)
    if AMP:
        k = int(AMP); last = diag_regs[diag_n[0] - 1]
        e(salu("s_sub_u32", s_t0, diag_regs[k][0], diag_regs[int(os.environ.get("AMP0", "0"))][0]))
        if os.environ.get("CYC"): e(salu("s_lshr_b32", s_t0, s_t0, 2))
        else: e(salu("s_lshl_b32", s_t0, s_t0, 2))
        em.label("L_amp")
        e(raw("s_memrealtime s[56:57]")); e(raw("s_waitcnt lgkmcnt(0)"))
        e(salu("s_sub_u32", s_t1, s_t1, last[0])); e(scmp("s_cmp_lt_u32", s_t1, s_t0)); e(raw("s_cbranch_scc1 L_amp", rd=["scc"]))
        return
    e(scmp("s_cmp_lg_u32", s_w, 0)); e(raw("s_cbranch_scc1 L_end", rd=["scc"]))
    e(raw("s_mov_b64 exec, 1", "salu", wr=["exec"]))
    e(salu("s_not_b32", s_t0, diag_regs[0][0]))
    for k in range(diag_n[0]):
        e(valu("v_mov_b32", V(4 + k), s_t0 if k == 0 else diag_regs[k][0]))
        e(raw("buffer_atomic_umax %s, off, %s, 0 offset:%d sc1" % (V(4 + k), S_DBG, 4 * k)))
    e(valu("v_mov_b32", V(12), diag_regs[0][0]))
    e(raw("buffer_atomic_umax %s, off, %s, 0 offset:%d sc1" % (V(12), S_DBG, 4 * 9)))
stamp_n = [0]
def stamp():
    if not STAMP: return
    k = stamp_n[0]; stamp_n[0] += 1
    e(raw("s_memtime %s" % S(68, 2), "other", wr=[S(68, 2)]))
    e(raw("s_memrealtime %s" % S(70, 2), "other", wr=[S(70, 2)]))
    e(raw("s_waitcnt lgkmcnt(0)", "wait")); em._retire(em.lgq, 0)
    for i in range(4): e(valu("v_writelane_b32", v_c, S(68 + i), i, rmw=True))
    e(salu("s_lshl_b32", S(72), S(2), 2)); e(salu("s_add_u32", S(72), S(72), s_w)); e(salu("s_lshl_b32", S(72), S(72), 9))
    e(salu("s_mov_b64", S(74, 2), "exec", scc_w=False)); e(raw("s_mov_b64 exec, 15", "salu", wr=["exec"]))
    e(valu("v_lshlrev_b32", v_t, 2, v_lane))
    e(bstore(v_c, v_t, S_DMP, S(72), off=k * 16))
    e(raw("s_mov_b64 exec, %s" % S(74, 2), "salu", wr=["exec"]))
    e(valu("v_lshlrev_b32", v_t, 7, v_lane))

def dump_regs(regs, finish=True):
    em.wait(lg0=True, vm0=True)
    e(nop(7)); e(nop(7))
    n = len(regs)
    e(salu("s_lshl_b32", s_t0, S(2), 2)); e(salu("s_add_u32", s_t0, s_t0, s_w)); e(salu("s_mul_i32", s_t0, s_t0, n * 256, scc_w=False))
    e(valu("v_lshlrev_b32", v_t, 2, v_lane))
    for k, r in enumerate(regs):
        e(bstore(r, v_t, S_DMP, s_t0, off=0))
        e(salu("s_add_u32", s_t0, s_t0, 256))
        if k % 32 == 31: em.wait(vm0=True)
    em.wait(vm0=True)
    if finish: e(raw("s_endpgm"))

def red4(op, x, tmp):
    for sw in ("v_permlane32_swap_b32", "v_permlane16_swap_b32"):
        for a, t in zip(x, tmp): e(valu("v_mov_b32", t, a))
        if len(x) < 3: e(nop(1))
        for a, t in zip(x, tmp): e(valu(sw, a, t))
        for a, t in zip(x, tmp): e(valu(op, a, a, t))

e(scmp("s_cmp_ge_u32", S(2), 256)); e(raw("s_cbranch_scc1 L_end", rd=["scc"]))
diag(0)
i0 = e(I("s_load_dwordx16 %s, s[0:1], 0" % s_ka, "smem", wr=s_ka.regs()))
i1 = e(I("s_load_dwordx8 %s, s[0:1], 64" % s_kb, "smem", wr=s_kb.regs()))
vq, vG, vr, vc_, vx, vy, vz = [V(40 + i) for i in range(7)]
e(raw("s_getpc_b64 %s" % s_pair2, "salu", wr=[s_pair2]))
em.label("L_pc0")
CT0 = int(os.environ.get("CT0", "64"))
if CT0:
    e(valu("v_sub_u32", V(55), 255, v_tid)); e(valu("v_cmp_gt_u32", "vcc", CT0, V(55))); e(valu("v_lshlrev_b32", V(55), 7, V(55))); e(nop(0))
    e(raw("s_and_saveexec_b64 s[4:5], vcc", "salu", wr=["exec"], rd=["vcc"])); e(raw("s_cbranch_execz L_ct0"))
    e(raw("global_load_dword v55, v55, %s" % s_pair2))
    em.label("L_ct0")
    e(raw("s_mov_b64 exec, -1", "salu", wr=["exec"]))
e(salu("s_and_b32", s_g, S(2), 7)); e(salu("s_lshr_b32", s_qb, S(2), 3))
e(valu("v_and_b32", v_lane, 63, v_tid))
e(valu("v_lshrrev_b32", v_t, 6, v_tid))
e(valu("v_lshlrev_b32", v_lin, 4, v_lane))
e(valu("v_readfirstlane_b32", s_w, v_t))
e(valu("v_and_b32", vq, 15, v_lane)); e(valu("v_lshrrev_b32", vG, 4, v_lane))
vxo = V(47)
e(valu("v_lshl_add_u32", vxo, v_t, 4, vq)); e(valu("v_lshlrev_b32", vxo, 10, vxo)); e(valu("v_lshl_add_u32", vxo, vG, 4, vxo))
vwg, vwq, vcw = V(52), V(53), V(54)
e(salu("s_mul_i32", s_t1, s_g, 448, scc_w=False)); e(salu("s_and_b32", s_t1, s_t1, hx(~127)))
e(salu("s_and_b32", s_t2, s_w, 1)); e(salu("s_lshl_b32", s_t3, s_qb, 1)); e(salu("s_add_u32", s_t2, s_t2, s_t3))
e(salu("s_mul_i32", s_t2, s_t2, 8 * 3584, scc_w=False)); e(salu("s_add_u32", s_t1, s_t1, s_t2))
e(valu("v_lshrrev_b32", vx, 2, v_lane)); e(valu("v_mul_u32_u24", vx, 3584, vx)); e(valu("v_and_b32", vz, 3, v_lane)); e(valu("v_lshl_add_u32", vx, vz, 7, vx))
e(valu("v_add_u32", vwg, s_t1, vx))
e(salu("s_lshl_b32", s_t2, s_qb, 2)); e(salu("s_add_u32", s_t2, s_t2, s_w)); e(salu("s_lshl_b32", s_t3, s_t2, 8))
e(valu("v_lshlrev_b32", vcw, 7, v_lane)); e(valu("v_add_u32", vcw, s_t3, vcw))
e(salu("s_lshl_b32", s_t0, s_qb, 16))
em.wait(lg0=True)
diag(2)
srd(S_X, s_ka[0], s_ka[1], 65536, s_t0)
v_xp = V(64, 64)
XFIRST = int(os.environ.get("XFIRST", "12"))
xl = [bload(v_xp[(4 * ks, 4)], vxo, S_X, 0, off=64 * ks) for ks in range(16)]
for ks in range(XFIRST): e(xl[ks])
e(scmp("s_cmp_lt_u32", s_w, 2)); e(salu("s_cselect_b64", s_pair, s_ka[(12, 2)], s_ka[(14, 2)], scc_w=False, scc_r=True))
e(raw("s_mov_b64 exec, 0xffffffff", "salu", wr=["exec"]))
e(I("global_load_dword %s, %s, %s" % (V(48), vwg, s_pair), "vmem", rd=vwg.regs() + s_pair.regs(), wr=V(48).regs()))
e(raw("s_mov_b64 exec, 3", "salu", wr=["exec"]))
e(I("global_load_dword %s, %s, %s" % (V(49), vcw, s_pair2), "vmem", rd=vcw.regs() + s_pair2.regs(), wr=V(49).regs()))
e(raw("s_mov_b64 exec, -1", "salu", wr=["exec"]))
e(salu("s_lshl_b32", s_t2, s_t2, 15)); e(salu("s_lshl_b32", s_t3, s_g, 10)); e(salu("s_add_u32", s_t2, s_t2, s_t3))
e(valu("v_lshrrev_b32", vx, 3, v_lane)); e(valu("v_lshlrev_b32", vx, 13, vx)); e(valu("v_and_b32", vz, 7, v_lane)); e(valu("v_lshl_add_u32", vx, vz, 7, vx))
e(valu("v_add_u32", vwq, s_t2, vx))
e(salu("s_lshr_b32", s_t2, s_qb, 3)); e(salu("s_lshl_b32", s_t3, s_g, 2)); e(salu("s_add_u32", s_t2, s_t2, s_t3))
e(salu("s_lshl_b32", s_t0, s_t2, 16))
srd(S_OUT, s_kb[2], s_kb[3], 65536, s_t0)
e(salu("s_lshl_b32", s_t1, s_g, 19))
srd(S_K, s_ka[2], s_ka[3], 524288, s_t1)
srd(S_V, s_ka[4], s_ka[5], 524288, s_t1)
srd(S_WO, s_ka[8], s_ka[9], 524288, s_t1)
srd(S_WQ, s_ka[6], s_ka[7], 4 << 20)
srd(S_WG, s_ka[12], s_ka[13], 1835008)
srd(S_WU, s_ka[14], s_ka[15], 1835008)
srd(S_WD, s_kb[0], s_kb[1], 1835008)
srd(S_DBG, s_kb[4], s_kb[5], 256)
e(salu("s_mul_i32", s_t1, s_qb, 229376, scc_w=False))
srd(S_H, s_kb[6], s_kb[7], 229376, s_t1)
e(salu("s_lshl_b32", s_t1, s_qb, 19)); e(salu("s_add_u32", s_t1, s_t1, hx(WS_SP)))
srd(S_SP, s_kb[6], s_kb[7], 524288, s_t1)
if DUMP or STAMP:
    e(salu("s_mov_b32", s_t1, hx(WS_DUMP), scc_w=False))
    srd(S_DMP, s_kb[6], s_kb[7], 200 << 20, s_t1)
e(salu("s_mov_b64", s_pair, S(90, 2), scc_w=False))
e(salu("s_lshl_b32", s_t0, s_t2, 16))
srd(S_XC, s_ka[0], s_ka[1], 65536, s_t0)
e(salu("s_mul_i32", s_t1, s_t2, 229376, scc_w=False))
srd(S_HC, s_pair[0], s_pair[1], 229376, s_t1)
e(salu("s_lshl_b32", s_t1, s_t2, 19)); e(salu("s_add_u32", s_t1, s_t1, hx(WS_SP)))
srd(S_SPC, s_pair[0], s_pair[1], 524288, s_t1)
e(salu("s_mov_b32", s_cq, s_t2, scc_w=False)); e(salu("s_and_b32", s_cg, s_qb, 7))
e(salu("s_lshl_b32", s_myfl, s_qb, 7)); e(salu("s_lshl_b32", s_t1, s_g, 2)); e(salu("s_add_u32", s_myfl, s_myfl, s_t1))
e(salu("s_lshl_b32", s_m0b, s_w, 12)); e(salu("s_add_u32", s_m0b, s_m0b, RING))
e(salu("s_and_b32", s_t1, s_g, 1)); e(salu("s_lshl_b32", s_t1, s_t1, 2)); e(salu("s_add_u32", s_t1, s_t1, s_w))
e(scmp("s_cmp_eq_u32", s_w, 3)); e(salu("s_cselect_b32", s_t1, 3, s_t1, scc_w=False, scc_r=True))
e(salu("s_lshr_b32", s_t2, s_g, 1)); e(salu("s_mul_i32", s_t2, s_t2, 7, scc_w=False)); e(salu("s_add_u32", s_t1, s_t1, s_t2))
e(salu("s_lshl_b32", s_h0, s_t1, 13)); e(salu("s_add_u32", s_h1, s_h0, 4096))
e(salu("s_lshl_b32", s_t1, s_t1, 7))
e(salu("s_lshl_b32", s_t2, s_g, 2)); e(salu("s_add_u32", s_t2, s_t2, s_w)); e(salu("s_lshl_b32", s_t2, s_t2, 8))

def dma_voffs(dst, stride, colbase_s, perm):
    for j in range(4):
        e(valu("v_bfe_u32", vx, v_lane, 1, 2)); e(valu("v_bfe_u32", vy, v_lane, 4, 1))
        e(valu("v_xor_b32", vx, vx, vy))
        if j & 1: e(valu("v_xor_b32", vx, 2, vx))
        e(valu("v_and_b32", vy, 1, v_lane)); e(valu("v_lshlrev_b32", vy, 4, vy)); e(valu("v_lshl_add_u32", vx, vx, 5, vy))
        if not perm:
            e(valu("v_lshrrev_b32", vy, 3, v_lane)); rowadd = 8 * j
        else:
            e(valu("v_bfe_u32", vy, v_lane, 3, 2)); e(valu("v_bfe_u32", vz, v_lane, 5, 1)); e(valu("v_lshl_add_u32", vy, vz, 4, vy)); rowadd = 4 * j
        e(valu("v_mul_u32_u24", vy, stride, vy))
        e(valu("v_add3_u32", vx, vx, vy, colbase_s))
        e(valu("v_add_u32", dst[j], rowadd * stride - j * 1024, vx))

dma_voffs(v_dA, 3584, s_t1, False)
dma_voffs(v_dB, 8192, s_t2, False)

def m0set(p): return salu("s_add_u32", "m0", s_m0b, p * 16384) if p < 6 else salu("s_sub_u32", "m0", s_m0b, RING - (p - 6) * 16384)
def s1_dma(m):
    p = m % 6
    if m < 32:
        s, h = m >> 1, m & 1
        return [m0set(p), salu("s_mov_b32", s_off, s * 32 * 3584, scc_w=False)], [dma(v_dA[j], S_WU if h else S_WG, s_off, j * 1024) for j in range(4)]
    if m < 64:
        s, h = (m - 32) >> 1, m & 1
        return [m0set(p), salu("s_mov_b32", s_off, s * 32 * 8192 + 128 * h, scc_w=False)], [dma(v_dB[j], S_WQ, s_off, j * 1024) for j in range(4)]
    if m == 64:
        return [m0set(p), salu("s_mov_b32", s_off, 0, scc_w=False)], [dma(v_kd[j], S_K, s_off, j * 1024) for j in range(4)]
    if m == 65:
        return [m0set(p), salu("s_mov_b32", s_off, 8192, scc_w=False)], [dma(v_kd[j], S_K, s_off, j * 1024) for j in range(4)]
    if m == 66:
        return [m0set(p), salu("s_mov_b32", s_off, 0, scc_w=False)], [dma(v_vd[j & 1], S_V, s_off, j * 1024) for j in range(4)]
    return None
dtok = {}
ln_v = []
for m in range(6):
    sa, dm = s1_dma(m)
    ln_v.append(sa); ln_v += dm
    dtok[m] = dm[3]
def xaddr(dst, tmp):
    e(valu("v_and_b32", dst, 15, v_lane)); e(salu("s_lshl_b32", s_t0, s_w, 4)); e(valu("v_add_u32", dst, s_t0, dst)); e(valu("v_lshlrev_b32", dst, 10, dst))
    e(valu("v_lshrrev_b32", tmp, 4, v_lane)); e(valu("v_lshl_add_u32", dst, tmp, 3, dst)); e(salu("s_lshl_b32", s_t0, s_cg, 7)); e(valu("v_add_u32", dst, s_t0, dst))
vxs, vzero = V(50), V(51)
xaddr(vxs, vy)
e(valu("v_mov_b32", vzero, 0))
ln_v += [bload(a_x[(2 * u, 2)], vxs, S_XC, 0, off=32 * u, n=2) for u in range(4)]
ln_v.append([raw("s_mov_b64 exec, 1", "salu", wr=["exec"]), bstore(vzero, None, S_FL, s_myfl, mod="sc1"), raw("s_mov_b64 exec, -1", "salu", wr=["exec"])])
ln_v.append([raw("s_mov_b64 exec, 0xffffffff", "salu", wr=["exec"]), bload(V(46), vwq, S_WQ, 0, n=1), raw("s_mov_b64 exec, -1", "salu", wr=["exec"])])
LNPRE = int(os.environ.get("LNPRE", "0"))
lv = [0]
def ln_issue(n=1):
    k = 0
    while k < n and lv[0] < len(ln_v):
        it = ln_v[lv[0]]; lv[0] += 1
        e(it)
        if not isinstance(it, list): k += 1
e(valu("v_bfe_u32", vr, v_lane, 2, 2)); e(valu("v_and_b32", vc_, 3, v_lane))
e(valu("v_lshlrev_b32", vx, 10, vG)); e(valu("v_lshl_add_u32", vx, vr, 7, vx)); e(valu("v_lshl_add_u32", vx, vc_, 3, vx)); e(valu("v_add_u32", vx, s_m0b, vx))
e(valu("v_lshrrev_b32", vy, 1, vr)); e(valu("v_and_b32", vz, 1, vG)); e(valu("v_lshl_add_u32", vy, vz, 1, vy))
for u in range(4):
    e(valu("v_xor_b32", vz, u, vy)); e(valu("v_lshl_add_u32", v_tr[0][u], vz, 5, vx)); e(valu("v_add_u32", v_tr[1][u], 3 * 16384, v_tr[0][u]))
e(valu("v_xor_b32", vy, vG, vq))
for ds in range(4):
    e(valu("v_xor_b32", vz, 4 * ds, vy)); e(valu("v_lshlrev_b32", vz, 4, vz)); e(valu("v_lshl_add_u32", vz, vq, 8, vz)); e(valu("v_add_u32", v_ka[ds], RING + 4 * 16384, vz))
e(valu("v_lshl_add_u32", vx, vG, 2, vr)); e(valu("v_and_b32", vy, 7, vx)); e(valu("v_lshlrev_b32", vx, 8, vx)); e(valu("v_lshl_add_u32", vx, vc_, 3, vx)); e(valu("v_add_u32", vx, RING, vx))
for db in range(8):
    e(valu("v_xor_b32", vz, db, vy)); e(valu("v_lshl_add_u32", v_va[db], vz, 5, vx))
e(salu("s_lshl_b32", s_t1, s_w, 12))
e(valu("v_lshlrev_b32", vx, 8, vG)); e(valu("v_add_u32", vx, s_t1, vx))
for j in range(4):
    e(valu("v_add_u32", vy, 4 * j, vG)); e(valu("v_xor_b32", vy, vy, vq)); e(valu("v_lshl_add_u32", v_kd[j], vy, 4, vx))
e(valu("v_and_b32", vz, 1, v_lane)); e(valu("v_lshl_add_u32", vx, vz, 4, vx))
for j in range(2):
    e(valu("v_add_u32", vy, 4 * j, vG)); e(valu("v_lshrrev_b32", vz, 1, vq)); e(valu("v_xor_b32", vy, vy, vz)); e(valu("v_lshl_add_u32", v_vd[j], vy, 5, vx))
e(salu("s_lshl_b32", s_t1, s_w, 14)); e(valu("v_add_u32", v_wl, s_t1, v_lin))
e(salu("s_mov_b32", s_retry, 0, scc_w=False))
for ks in range(XFIRST, 16): e(xl[ks])
e(salu("s_mov_b32", s_t1, hx(WS_FL), scc_w=False))
srd(S_FL, s_pair[0], s_pair[1], 4096, s_t1)
ln_issue(LNPRE)
stamp()

v_f = V(128, 128)
acc = [V(56, 2), V(58, 2), V(60, 2), V(62, 2)]
diag(2)
for ks in range(16):
    em.wait(vm=xl[ks])
    if ks == 15: diag(2)
    for k in range(4):
        p = 4 * ks + k
        e(valu("v_lshlrev_b32", v_f[2 * p], 16, v_xp[p])); e(valu("v_and_b32", v_f[2 * p + 1], "0xffff0000", v_xp[p]))
    for k in range(4):
        p = 4 * ks + k
        if ks == 0: e(valu("v_mov_b64", acc[k], v_f[(2 * p, 2)]))
        else: e(valu("v_pk_add_f32", acc[k], acc[k], v_f[(2 * p, 2)]))
if STAMP == 3: stamp()
ln_issue(int(os.environ.get("LN_FIRST", "12")))
diag(2)
if STAMP == 3: stamp()
e(valu("v_pk_add_f32", acc[0], acc[0], acc[1])); e(valu("v_pk_add_f32", acc[2], acc[2], acc[3])); e(valu("v_pk_add_f32", acc[0], acc[0], acc[2]))
vsum, vtmp, vmb, vdm = V(40), V(41), V(42), V(43)
e(valu("v_add_f32", vsum, acc[0][0], acc[0][1]))
red4("v_add_f32", [vsum], [vtmp])
e(valu("v_mul_f32", vsum, hx(f2u(1.0 / 512)), vsum))
e(valu("v_cvt_pk_bf16_f32", vmb, vsum, vsum)); e(valu("v_lshlrev_b32", vmb, 16, vmb))
e(valu("v_sub_f32", vdm, vsum, vmb))
vneg = V(56, 2)
e(valu("v_sub_f32", vneg[0], 0, vmb))
acc2 = [V(58, 2), V(60, 2), V(62, 2)]
for p in range(64):
    e(valu("v_pk_add_f32", v_f[(2 * p, 2)], v_f[(2 * p, 2)], vneg, mod="op_sel_hi:[1,0]"))
for p in range(64):
    a_ = acc2[p % 3]
    if p < 3: e(valu("v_pk_mul_f32", a_, v_f[(2 * p, 2)], v_f[(2 * p, 2)]))
    else: e(valu("v_pk_fma_f32", a_, v_f[(2 * p, 2)], v_f[(2 * p, 2)], a_))
if STAMP == 3: stamp()
e(valu("v_pk_add_f32", acc2[0], acc2[0], acc2[1])); e(valu("v_pk_add_f32", acc2[0], acc2[0], acc2[2]))
e(valu("v_add_f32", vsum, acc2[0][0], acc2[0][1]))
red4("v_add_f32", [vsum], [vtmp])
e(valu("v_mul_f32", vsum, hx(f2u(1.0 / 512)), vsum))
e(valu("v_fma_f32", vsum, "-" + str(vdm), vdm, vsum, extra_rd=vdm.regs()))
e(valu("v_max_f32", vsum, 0, vsum))
e(valu("v_cvt_pk_bf16_f32", vsum, vsum, vsum)); e(valu("v_lshlrev_b32", vsum, 16, vsum))
e(valu("v_add_f32", vsum, hx(f2u(1e-5)), vsum))
e(valu("v_cvt_pk_bf16_f32", vsum, vsum, vsum)); e(valu("v_lshlrev_b32", vsum, 16, vsum))
e(valu("v_sqrt_f32", vsum, vsum)); e(nop(0))
e(valu("v_cvt_pk_bf16_f32", vsum, vsum, vsum)); e(valu("v_lshlrev_b32", vsum, 16, vsum))
e(valu("v_rcp_f32", vneg[0], vsum)); e(nop(0))
for ks in range(16):
    for k in range(4):
        p = 4 * ks + k
        e(valu("v_pk_mul_f32", v_f[(2 * p, 2)], v_f[(2 * p, 2)], vneg, mod="op_sel_hi:[1,0]"))
    for k in range(4):
        p = 4 * ks + k
        e(valu("v_cvt_pk_bf16_f32", v_xp[p], v_f[2 * p], v_f[2 * p + 1]))
    e(dswrite("ds_write_b128", v_wl, v_xp[(4 * ks, 4)], ks * 1024))
ln_issue(int(os.environ.get("LN_LAST", "100")))
if STAMP == 3: stamp()
if DUMP == "ln": dump_regs([v_xp[i] for i in range(64)])
em.wait(lg0=True)
e(raw("s_barrier"))
stamp(); diag(); diag(2)

def cost_of(it):
    k = getattr(it, "kind", "")
    return 2 if k == "trans" else (0 if k in ("salu", "nop") else 1)
class Fill:
    def __init__(self, items, start, end, spread=False): self.items, self.start, self.end, self.spread = list(items), start, end, spread; self.i = 0
    def done(self): return self.i == len(self.items)
def run_stream(NH, dmaf, dtok, accf, Bf, extra, fills, LOOK=6, nq=4, posf=lambda m: m % 6, ring=a_ring, first_dma=6, tr2=None):
    NG = 4 * NH
    rtok = {}
    def reads(g):
        m, u = g >> 2, g & 3
        p = posf(m)
        d = ring[((g % 8) * 4, 4)]
        ar, of = (v_tr[p // 3][u], (p % 3) * 16384) if p < 6 else (tr2[u], (p - 6) * 16384)
        r = [dsread("ds_read_b64_tr_b16", d[(2 * h2, 2)], ar, of + h2 * 512) for h2 in range(2)]
        rtok[g] = r[1]
        return r
    pre = [reads(g) for g in range(3)]
    G, C = [], []
    cur = None
    for g in range(NG):
        gaps = [[], [], [], []]; cap = [2, 2, 2, 2]
        if g + 3 < NG:
            if (g + 3) & 3 == 0: gaps[0].append(LateW(dtok, (g + 3) >> 2))
            r = reads(g + 3); gaps[0].append(r[0]); gaps[1].append(r[1]); cap[0] -= 1; cap[1] -= 1
        md, j = (g + 4 * LOOK - 4) >> 2, (g + 4 * LOOK - 4) & 3
        if md >= first_dma:
            if j == 0: cur = dmaf(md)
            if cur is not None:
                if j == 0: gaps[2] += cur[0]
                for it in cur[1][j::4]: gaps[3].append(it); cap[3] -= 1
                if j == 3: dtok[md] = cur[1][3]
        for (gp, it, cost) in extra.get(g, []):
            gaps[gp].append(it); cap[gp] -= cost
        if g + 1 < NG: gaps[3].insert(0, Wait(lg=rtok[g + 1]))
        G.append(gaps); C.append(cap)
    B = {}
    for f in fills:
        idx = [(g, q) for g in range(f.start, f.end) for q in range(4)]
        caps = [max(0, C[g][q]) for g, q in idx]
        W = sum(cost_of(it) for it in f.items); T = sum(caps); n = len(idx)
        acc = 0.0; cum = 0
        for k, key in enumerate(idx):
            if W >= T: acc += caps[k] + (W - T) / n
            elif f.spread: acc += caps[k] * W / T
            else: acc += caps[k]
            B[key] = (f, acc)
    em.wait(vm=dtok[0])
    for r in pre: e(r)
    for p_ in extra.get(-1, []): e(p_[1])
    em.wait(lg0=True)
    used = {id(f): 0 for f in fills}
    for g in range(NG):
        m, u = g >> 2, g & 3
        d = ring[((g % 8) * 4, 4)]
        for qb in range(nq):
            ac, first = accf(m, u, qb)
            e(mfma(ac, d, Bf(m, qb), 0 if first else ac))
            ent = B.get((g, qb))
            sawv = False
            if ent:
                f, lim = ent
                while not f.done() and getattr(f.items[f.i], "kind", "") in ("lds", "vmem", "salu") and used[id(f)] + cost_of(f.items[f.i]) <= lim + 0.5:
                    it = f.items[f.i]; f.i += 1; used[id(f)] += cost_of(it); e(it)
            for it in G[g][qb]: e(it)
            if ent:
                f, lim = ent
                lastgap = (g == f.end - 1 and qb == 3)
                while not f.done():
                    it = f.items[f.i]; c = cost_of(it)
                    if not lastgap:
                        if used[id(f)] + c > lim + 0.5: break
                        if sawv and getattr(it, "kind", "") in ("lds", "vmem"): break
                    f.i += 1; used[id(f)] += c; e(it)
                    if getattr(it, "kind", "") in ("valu", "trans"): sawv = True
    assert all(f.done() for f in fills)
class LateW:
    def __init__(self, d, k): self.d, self.k = d, k
    def __call__(self): return Wait(vm=self.d[self.k])

def s1_acc(m, u, qb):
    h = m & 1
    idx = ((h * 4 + u) * 4 + qb) * 4
    if m < 32: return A(idx, 4), m < 2
    return v_acc[(idx, 4)], m < 34
def s1_B(m, qb): return a_B[(((m >> 1) & 1) * 16 + qb * 4, 4)]
extra = {}
btok = {}
def bread(s, qb): return dsread("ds_read_b128", a_B[((s & 1) * 16 + qb * 4, 4)], v_lin, (qb * 16 + (s % 16)) * 1024)
extra[-1] = [(0, bread(0, qb), 1) for qb in range(4)]
for s in range(1, 32):
    for qb in range(4):
        extra.setdefault(8 * (s - 1) + 1 + qb, []).append((2, bread(s, qb), 1))
gi = 0; gj = 0; pend_s = []
for it in ln_v[lv[0]:]:
    if isinstance(it, list) and all(x.kind == "salu" for x in it): pend_s = it; continue
    if not isinstance(it, list) and it.kind == "dma":
        assert gi < 12
        extra.setdefault(gi // 3, []).append((gi % 3, [pend_s, it] if pend_s else it, 1)); pend_s = []
        gi += 1
    else:
        extra.setdefault(8 + 2 * gj, []).append((1, it, 1)); gj += 1
C0 = -2.0 * math.sqrt(2.0 / math.pi) * math.log2(math.e); C1 = C0 * 0.044715
vc0, vc1 = V(40), V(41)
gel = [valu("v_mov_b32", vc0, hx(f2u(C0))), valu("v_mov_b32", vc1, hx(f2u(C1)))]
hst = []
tb = 0
for i in range(2):
    for qb in range(4):
        pk = V(96 + 4 * tb, 4); tb += 1
        for b in range(2):
            u = 2 * i + b
            T = [V(64 + 16 * b + k) for k in range(16)]
            G_, U_, X_ = T[0:4], T[4:8], T[8:12]
            ga = lambda r: A((u * 4 + qb) * 4 + r); ua = lambda r: A(((4 + u) * 4 + qb) * 4 + r)
            for r in range(4): gel.append(valu("v_accvgpr_read_b32", G_[r], ga(r)))
            for r in range(4): gel.append(valu("v_accvgpr_read_b32", U_[r], ua(r)))
            for r in range(4): gel.append(valu("v_mul_f32", X_[r], G_[r], G_[r]))
            for r in range(4): gel.append(valu("v_fma_f32", X_[r], X_[r], vc1, vc0))
            for r in range(4): gel.append(valu("v_mul_f32", X_[r], X_[r], G_[r]))
            for r in range(4): gel.append(valu("v_exp_f32", X_[r], X_[r]))
            for r in range(4): gel.append(valu("v_mul_f32", G_[r], G_[r], U_[r]))
            for r in range(4): gel.append(valu("v_add_f32", X_[r], "1.0", X_[r]))
            for r in range(4): gel.append(valu("v_rcp_f32", X_[r], X_[r]))
            gel.append(nop(0))
            for r in range(4): gel.append(valu("v_mul_f32", G_[r], G_[r], X_[r]))
            for k in range(2): gel.append(valu("v_cvt_pk_bf16_f32", pk[2 * b + k], G_[2 * k], G_[2 * k + 1]))
        st = bstore(pk, v_lin, S_H, s_h1 if i else s_h0, off=qb * 1024, mod="sc1")
        hst.append(st)
class Stamp:
    def __call__(self): stamp(); return []
if STAMP: extra.setdefault(128, []).append((0, Stamp(), 0))
class Grp:
    kind = "salu"
    def __init__(self, l): self.l = l
    def __call__(self):
        for x in self.l:
            if x.kind == "label": em.out.append(x)
            else: e(x)
        return []
def group_scc(items):
    out = []
    for it in items:
        if out and ("scc" in it.rd or it.kind == "label"):
            p = out.pop(); out.append(Grp((p.l if isinstance(p, Grp) else [p]) + [it]))
        else: out.append(it)
    return out
s_pf = [S(24, 2), S(26, 2), S(28, 2), S(30, 2)]
s_pfH = s_pair2
s_fo = S(3)
QS = math.log2(math.e) / math.sqrt(128.0)
vqs = V(42, 2); vqw = V(44)
save = em.out; em.out = []; spend = em.pend; em.pend = {}
for it in range(3):
    e(salu("s_add_u32", s_t0, s_w, 4 * it))
    e(salu("s_sub_u32", s_t1, s_t0, 2)); e(salu("s_min_u32", s_t1, s_t1, 6)); e(salu("s_lshl_b32", s_t1, s_t1, 13))
    e(salu("s_mul_i32", s_t2, s_qb, 57344, scc_w=False)); e(salu("s_add_u32", s_t1, s_t1, s_t2))
    e(salu("s_add_u32", s_pf[it][0], S_WD[0], s_t1)); e(salu("s_addc_u32", s_pf[it][1], S_WD[1], 0, scc_r=True))
    if it == 0:
        e(salu("s_lshl_b32", s_t1, s_qb, 14)); e(salu("s_lshl_b32", s_t2, s_w, 13)); e(salu("s_add_u32", s_t1, s_t1, s_t2))
        e(salu("s_add_u32", s_pf[1][0], S_WO[0], s_t1)); e(salu("s_addc_u32", s_pf[1][1], S_WO[1], 0, scc_r=True))
        e(scmp("s_cmp_lt_u32", s_w, 2)); e(salu("s_cselect_b64", s_pf[0], s_pf[1], s_pf[0], scc_w=False, scc_r=True))
e(raw("s_getpc_b64 %s" % s_pf[3], "salu", wr=[s_pf[3]]))
em.label("L_pc1")
e(salu("s_lshl_b32", s_t0, s_w, 13)); e(salu("s_add_u32", s_t0, s_t0, "L_tail-L_pc1")); e(salu("s_min_u32", s_t0, s_t0, "L_code_end-L_pc1-8192"))
e(salu("s_add_u32", s_t1, s_t0, 3 * 8192)); e(salu("s_min_u32", s_t1, s_t1, "L_code_end-L_pc1-8192"))
e(salu("s_add_u32", s_pfH[0], s_pf[3][0], s_t1)); e(salu("s_addc_u32", s_pfH[1], s_pf[3][1], 0, scc_r=True))
e(scmp("s_cmp_eq_u32", s_w, 0)); e(salu("s_cselect_b64", s_pf[2], s_pf[2], s_pfH, scc_w=False, scc_r=True))
e(salu("s_add_u32", s_pf[3][0], s_pf[3][0], s_t0)); e(salu("s_addc_u32", s_pf[3][1], s_pf[3][1], 0, scc_r=True))
e(salu("s_lshl_b32", s_t0, s_cg, 2)); e(salu("s_add_u32", s_t0, s_t0, s_w)); e(salu("s_mul_i32", s_t0, s_t0, 7168, scc_w=False)); e(salu("s_min_u32", s_t0, s_t0, 229376 - 8192))
e(salu("s_add_u32", s_pfH[0], S_HC[0], s_t0)); e(salu("s_addc_u32", s_pfH[1], S_HC[1], 0, scc_r=True))
e(salu("s_lshl_b32", s_fo, s_cq, 3))
vx, vy, vz = V(45), V(46), V(47)
e(salu("s_lshl_b32", s_t1, s_w, 8))
dma_voffs(v_dA, 1024, s_t1, True)
e(salu("s_mul_i32", s_wdd, s_w, 448 * 1024 - 256, scc_w=False)); e(salu("s_lshl_b32", s_t3, s_cg, 7)); e(salu("s_add_u32", s_wdd, s_wdd, s_t3))
e(valu("v_mov_b32", vqs[0], hx(f2u(QS))))
e(valu("v_and_b32", vx, 15, v_lane)); e(valu("v_bfe_u32", vqw, v_lane, 5, 1)); e(valu("v_lshl_add_u32", vx, vqw, 4, vx)); e(valu("v_lshlrev_b32", vx, 4, vx))
e(valu("v_bfe_u32", vqw, v_lane, 4, 1)); e(valu("v_lshl_add_u32", vqw, vqw, 3, vx))
e(salu("s_lshl_b32", s_t1, s_w, 14)); e(valu("v_add_u32", vqw, s_t1, vqw))
midset = group_scc(em.out); em.out = save; em.pend = spend
HST = int(os.environ.get("HST", "0"))
if HST == 0: GEL_END = 254
for k in range(8):
    if HST: extra.setdefault(248 + k, []).append((0, hst[k], 1))
run_stream(64, s1_dma, dtok, s1_acc, s1_B, extra, [Fill(midset, 109, 130), Fill(gel, 131, GEL_END)])
if DUMP == "qacc": dump_regs([v_acc[i] for i in range(128)])
stamp()

em.wait(lg0=True)
e(raw("s_barrier"))
def signal(off_s_expr_add, lab, v_t):
    e(scmp("s_cmp_lg_u32", s_w, 0)); e(raw("s_cbranch_scc1 %s" % lab, rd=["scc"]))
    e(salu("s_lshl_b32", s_t0, s_qb, 2))
    if off_s_expr_add: e(salu("s_add_u32", s_t0, s_t0, off_s_expr_add))
    e(valu("v_mov_b32", v_t, 1))
    e(raw("s_mov_b64 exec, 1", "salu", wr=["exec"]))
    e(raw("buffer_atomic_add %s, off, %s, %s sc1" % (v_t, S_DBG, s_t0)))
    e(raw("s_mov_b64 exec, -1", "salu", wr=["exec"]))
    em.label(lab)
for blk in range(8):
    for qb in range(4):
        a_ = v_acc[((blk * 4 + qb) * 4, 4)]
        t = V(64 + 2 * ((blk * 4 + qb) % 8), 2)
        for k in range(2): e(valu("v_pk_mul_f32", a_[(2 * k, 2)], a_[(2 * k, 2)], vqs, mod="op_sel_hi:[1,0]"))
        for k in range(2): e(valu("v_cvt_pk_bf16_f32", t[k], a_[2 * k], a_[2 * k + 1]))
        if len(em.lgq) >= 7: em.wait(lg=em.lgq[-7])
        e(dswrite("ds_write_b64", vqw, t, (qb * 4 + (blk >> 1)) * 1024 + (blk & 1) * 512))
for j in range(4): e(valu("v_add_u32", v_dB[j], s_wdd, v_dA[j]))
em.wait(lg0=True)
for f in range(16): e(dsread("ds_read_b128", a_Q[(4 * f, 4)], v_wl, f * 1024))
em.label("L_att_start")
NZ0 = 32
for i in range(NZ0): e(valu("v_mov_b64", v_acc[(2 * i, 2)], 0))
if LSUM:
    for i in range(16): e(valu("v_accvgpr_write_b32", a_L[i], 0))
    e(valu("v_mov_b32", V(40), "0x3f803f80"))
    if LSUM == 2:
        e(valu("v_and_b32", V(41), 15, v_lane)); e(valu("v_cmp_eq_u32", "vcc", 0, V(41))); e(nop(1)); e(valu("v_cndmask_b32", V(40), 0, V(40), "vcc"))
    for i in range(4): e(valu("v_accvgpr_write_b32", a_ones[i], V(40)))
else:
    for i in range(4): e(valu("v_mov_b32", v_l0[i], 0)); e(valu("v_mov_b32", v_l1[i], 0))
e(valu("v_lshlrev_b32", V(3), 7, v_lane))
e(valu("v_and_b32", V(38), 7, v_lane)); e(valu("v_mov_b32", V(0), 0))
em.wait(vm=dtok[66], lg0=True)
e(raw("s_barrier"))
if DUMP == "q": dump_regs([a_Q[i] for i in range(64)])
stamp()

def Qf(qb, ds): return a_Q[((qb * 4 + ds) * 4, 4)]
def Of(db, qb): return v_acc[((db * 4 + qb) * 4, 4)]
def fr(f): return a_ring[((f % 8) * 4, 4)]
def kslot(par): return 16384 if par == 0 else 0
def vslot(par): return 0 if par == 0 else 16384
def frag_reads(par, f):
    if f >= 32: par ^= 1; f -= 32
    d = fr(f)
    if f < 8 or 16 <= f < 24:
        kb = (f >> 2) if f < 8 else 2 + ((f - 16) >> 2)
        return [dsread("ds_read_b128", d, v_ka[f & 3], kslot(par) + kb * 4096)]
    ks2 = 0 if f < 16 else 1
    db = f & 7
    return [dsread("ds_read_b64_tr_b16", d[(2 * h, 2)], v_va[db], vslot(par) + ks2 * 8192 + h * 4096) for h in range(2)]
def read_sched(g):
    r = []
    if g + 3 < 24 or g >= 29: r.append(g + 3)
    if 19 <= g <= 26: r.append(g + 5)
    return r
def sm_val(g, k):
    if 7 <= g <= 22: b = 1; n = 2 * (g - 7) + k
    else: b = 0; n = 2 * ((g - 23) % 32) + k
    kb, qb, r = n >> 4, (n >> 2) & 3, n & 3
    return b, qb, kb, r
def sm_items(g):
    ex, ad = [], []
    for k in range(2):
        b, qb, kb, r = sm_val(g, k)
        x = v_S[b][qb * 8 + kb * 4 + r]
        l = (v_l1 if b else v_l0)[qb]
        ex.append(valu("v_exp_f32", x, x)); ad.append(valu("v_add_f32", l, l, x))
    b, qb, kb, r = sm_val((g - 1) % 32, 0)
    cv = valu("v_cvt_pk_bf16_f32", v_S[b][qb * 8 + kb * 2 + (r >> 1)], v_S[b][qb * 8 + kb * 4 + r], v_S[b][qb * 8 + kb * 4 + r + 1])
    return ex, ad, cv
def att_dma(par, g):
    if g >= 29: k = g - 29; sp = par
    elif g <= 4: k = g + 3; sp = par ^ 1
    else: return [], None
    sal = []
    if k == 0: sal = [salu("s_add_u32", "m0", s_m0b, 4 * 16384 + kslot(sp))]
    if k == 4: sal = [salu("s_add_u32", "m0", s_m0b, vslot(sp))]
    if k < 4: return sal, dma(v_kd[k], S_K, s_kK, k * 1024)
    return sal, dma(v_vd[k & 1], S_V, s_kV, (k - 4) * 1024)
SIDE_FIRST = 11
class Lbl:
    def __init__(self, n): self.n = n
    def __call__(self): em.label(self.n); return []
class LoopStamp:
    def __init__(self, k, par): self.k, self.par = k, par
    def __call__(self):
        k = self.k
        e(raw("s_memtime %s" % S(68 + 2 * k, 2), "other", wr=[S(68 + 2 * k, 2)]))
        if k == 2:
            e(raw("s_waitcnt lgkmcnt(0)", "wait")); em._retire(em.lgq, 0)
            for i in range(3): e(valu("v_writelane_b32", v_c, S(68 + 2 * i), i, rmw=True))
            e(salu("s_lshl_b32", S(74), S(2), 2)); e(salu("s_add_u32", S(74), S(74), s_w)); e(salu("s_lshl_b32", S(74), S(74), 4))
            e(salu("s_sub_u32", S(74), S(74), s_cnt)); e(salu("s_add_u32", S(74), S(74), 16)); e(salu("s_lshl_b32", S(74), S(74), 5))
            e(salu("s_add_u32", S(74), S(74), (1 << 20) + 16 * self.par))
            e(raw("s_mov_b64 exec, 7", "salu", wr=["exec"]))
            e(valu("v_lshlrev_b32", v_t, 2, v_lane))
            e(bstore(v_c, v_t, S_DMP, S(74), off=0))
            e(raw("s_mov_b64 exec, -1", "salu", wr=["exec"]))
            e(valu("v_lshlrev_b32", v_t, 7, v_lane))
        return []
v_tch, v_flag, v_fa = V(3), V(0), V(38)
xtok = []; lastdma = [None]
NITER = 14
s_pfc = S(16, 2); s_one = S(18)
ROT = int(os.environ.get('ROT', '8'))
ftok = {}
def att_group(par, g, do_mfma=True, do_mem=True, do_cvt=True, last=False, pp=None, xmem=(), xsal=(), xvalu=None):
    ex, ad, cv = sm_items(g)
    mem = []
    sal = []
    fin = (pp == 3)
    d = None
    if do_mem:
        if fin: sched = ([g + 3] if g + 3 < 16 else []) + ([g + 11] if 13 <= g <= 20 else [])
        else: sched = read_sched(g)
        for f in sched:
            r = frag_reads(par, f); mem += r; ftok[f % 32] = r
        if pp is None or (g <= 4 and pp <= 2) or (g >= 29 and pp <= 1):
            sal, d = att_dma(par, g)
            if d is not None: mem.append(d)
    loop = do_mem and pp is None
    post0 = []
    if loop and par == 0:
        if g == 14: mem.append(I("global_load_dword %s, %s, %s" % (v_c, v_tch, s_pfc), "vmem", rd=v_tch.regs() + s_pfc.regs(), wr=[]))
        if g == 13: mem.append(I("buffer_load_ubyte %s, %s, %s, %s offen sc1" % (v_flag, v_fa, S_DBG, s_t2), "vmem", rd=S_DBG.regs() + s_t2.regs() + v_fa.regs(), wr=[]))
        if g == 8: sal = sal + [scmp("s_cmp_le_u32", s_cnt, ROT)]
        if g in (9, 10, 11, 12):
            q_ = [s_pfc] + s_pf
            sal = sal + [salu("s_cselect_b64", q_[g - 9], q_[g - 8], q_[g - 9], scc_w=False, scc_r=True)]
        if g == 0: post0 = [valu("v_cmp_eq_u32", "vcc", 1, v_flag)]
        if g == 2: sal = sal + [raw("s_cmp_eq_u32 vcc_lo, -1", "salu", rd=["vcc"], wr=["scc"])]
        if g == 3: sal = sal + [salu("s_cselect_b64", s_pf[3], s_pfH, s_pf[3], scc_w=False, scc_r=True)]
        if g == 13: sal = sal + [salu("s_cselect_b32", s_t2, s_fo, 256, scc_w=False, scc_r=True)]
        if g == 18: sal = sal + [scmp("s_cmp_eq_u32", s_cnt, s_sig)]
        if g == 19: sal = sal + [raw("s_cbranch_scc1 L_sigH_side", rd=["scc"]), Lbl("L_sigH_ret")]
    if do_mem and g == 4 and d is not None: lastdma[0] = d
    mem += list(xmem); sal = sal + list(xsal)
    gaps = [[], [], [], []]
    if g == 29 and do_mem and not fin:
        if STAMP == 2 and loop and do_mfma: gaps[0] += [LoopStamp(0, par)]
        gaps[0] += [Wait(lg0=True) if not do_mfma else (Wait(lg0=True, vm0=True) if (pp is None and par == 1) else Wait(lg0=True, vm=lastdma[0]))]
        if STAMP == 2 and loop and do_mfma: gaps[0] += [LoopStamp(1, par)]
        gaps[0] += [raw("s_barrier")]
        if STAMP == 2 and loop and do_mfma: gaps[0] += [LoopStamp(2, par)]
    gaps[0] += sal
    if g == 6 and do_mem and (pp is None or pp <= 1): gaps[0].append(salu("s_add_u32", s_kK, s_kK, 16384))
    if g == 7 and do_mem and (pp is None or pp <= 1): gaps[0].append(salu("s_add_u32", s_kV, s_kV, 16384))
    sm = not (fin and g >= 23)
    if fin and g > 23: do_cvt = False
    if fin and 16 <= g < 24: do_mfma = False
    if LSUM:
        if sm: gaps[0].append(ex[0])
        gaps[1] += mem[0:2] if len(mem) > 2 else mem[0:1]
        gaps[1] += post0
        nf = (g + 1) % 32
        if do_mem and not (fin and (16 <= nf < 24 or nf == 0)): gaps[2].append(Wait(lg=ftok.get(nf)))
        if last and g == 30: gaps[2].append(salu("s_sub_u32", s_cnt, s_cnt, 1))
        if sm: gaps[2].append(ex[1])
        gaps[3] += mem[2:] if len(mem) > 2 else mem[1:]
        if do_cvt: gaps[1 if len(gaps[1]) < 2 else 3].append(cv)
    else:
      gaps[0] += mem[2:3]
      if sm: gaps[0].append(ex[0])
      if len(mem) > 0: gaps[1].append(mem[0])
      if len(mem) == 0 and do_cvt: gaps[1].append(cv)
      if sm: gaps[1].append(ad[0])
      gaps[1] += post0
      nf = (g + 1) % 32
      if do_mem and not (fin and (16 <= nf < 24 or nf == 0)): gaps[2].append(Wait(lg=ftok.get(nf)))
      if last and g == 30: gaps[2].append(salu("s_sub_u32", s_cnt, s_cnt, 1))
      gaps[2] += mem[3:]
      if sm: gaps[2].append(ex[1])
      if len(mem) > 1: gaps[3].append(mem[1])
      if len(mem) > 0 and do_cvt: gaps[3].append(cv)
      if sm: gaps[3].append(ad[1])
    for qb in range(4):
        if do_mfma:
            if g < 8 or 16 <= g < 24:
                b = 1 if g < 8 else 0
                kb, ds = (g >> 2) & 1, g & 3
                d = v_S[b][(qb * 8 + kb * 4, 4)]
                e(mfma(d, fr(g), Qf(qb, ds), v_negm[(qb * 4, 4)] if ds == 0 else d))
            else:
                b = 0 if g < 16 else 1
                e(mfma(Of(g & 7, qb), fr(g), v_S[b][(qb * 8, 4)], Of(g & 7, qb)))
        else:
            if (qb & 1) and not gaps[qb][:1] or ((qb & 1) and getattr(gaps[qb][0], "kind", "") in ("valu",)): e(nop(0))
        for it in gaps[qb]: e(it)
        if xvalu is not None:
            c = 2 - sum(1 for it in gaps[qb] if getattr(it, "kind", "") in ("lds", "vmem", "dma", "valu"))
            while xvalu and c > 0:
                it = xvalu.pop(0); e(it); c -= 2 if it.kind == "trans" else 1
    if LSUM and do_mfma and (g & 8):
        k = g & 7
        lq = (k if k < 4 else None) if (fin and g >= 24) else (k >> 1 if k & 1 else None)
        if lq is not None: e(mfma(a_L[(4 * lq, 4)], a_ones, v_S[0 if g < 16 else 1][(lq * 8, 4)], a_L[(4 * lq, 4)]))

pr = [dsread("ds_read_b128", fr(f), v_ka[f & 3], (f >> 2) * 4096) for f in range(8)]
for r in pr: e(r)
e(scmp("s_cmp_lg_u32", s_retry, 0)); e(raw("s_cbranch_scc1 L_have_max", rd=["scc"]))
for i in range(16): e(valu("v_mov_b32", v_negm[i], 0))
em.label("L_have_max")
zr = [valu("v_mov_b32", v_acc[i], 0) for i in range(2 * NZ0, 128)]
for f in range(8):
    em.wait(lg=pr[f])
    for qb in range(4):
        d = v_S[0][(qb * 8 + (f >> 2) * 4, 4)]
        e(mfma(d, fr(f), Qf(qb, f & 3), v_negm[(qb * 4, 4)] if (f & 3) == 0 else d))
        if qb == 0 and HST == 0: e(hst[f])
        for _ in range(2):
            if zr: e(zr.pop(0))
assert not zr
e(salu("s_mov_b32", s_kK, 16384 + 8192, scc_w=False)); e(salu("s_mov_b32", s_kV, 16384, scc_w=False)); e(salu("s_mov_b32", s_cnt, NITER, scc_w=False))
e(scmp("s_cmp_lg_u32", s_retry, 0)); e(raw("s_cbranch_scc1 L_have_max2", rd=["scc"]))
e(nop(3))
mx = [V(97 + 4 * i) for i in range(4)]; mt = [V(98 + 4 * i) for i in range(4)]
for qb in range(4): e(valu("v_max3_f32", mx[qb], v_S[0][qb * 8], v_S[0][qb * 8 + 1], v_S[0][qb * 8 + 2]))
for qb in range(4): e(valu("v_max3_f32", mx[qb], mx[qb], v_S[0][qb * 8 + 3], v_S[0][qb * 8 + 4]))
for qb in range(4): e(valu("v_max3_f32", mx[qb], mx[qb], v_S[0][qb * 8 + 5], v_S[0][qb * 8 + 6]))
for qb in range(4): e(valu("v_max_f32", mx[qb], mx[qb], v_S[0][qb * 8 + 7]))
red4("v_max_f32", mx, mt)
for qb in range(4):
    for k in range(4): e(valu("v_sub_f32", v_negm[qb * 4 + k], 0, mx[qb]))
for qb in range(4):
    for k in range(8): e(valu("v_sub_f32", v_S[0][qb * 8 + k], v_S[0][qb * 8 + k], mx[qb]))
em.label("L_have_max2")
e(nop(7))
for g in range(23, 29): att_group(1, g, do_mfma=False, do_mem=False, do_cvt=(g != 23))
stamp(); diag()
e(salu("s_and_b32", s_t0, s_qb, 3)); e(salu("s_sub_u32", s_t0, NITER - 1, s_t0))
e(scmp("s_cmp_eq_u32", s_w, 0)); e(salu("s_cselect_b32", s_sig, s_t0, -1, scc_w=False, scc_r=True))
e(scmp("s_cmp_eq_u32", s_retry, 0)); e(salu("s_cselect_b32", s_sig, s_sig, -1, scc_w=False, scc_r=True))
e(salu("s_mov_b64", s_pfc, S_K[(0, 2)], scc_w=False))
for g in range(29, 32): att_group(1, g, do_mfma=False, do_mem=True)
pro_end = len(em.out)
em.directive(".p2align 6")
em.label("L_att_loop")
def body():
    for par in range(2):
        for g in range(32): att_group(par, g, last=(par == 1))
b0 = len(em.out)
body()
b1 = len(em.out)
e(scmp("s_cmp_lg_u32", s_cnt, 0)); e(raw("s_cbranch_scc1 L_att_loop", rd=["scc"]))
b2 = len(em.out)
body()
second = em.out[b2:]; del em.out[b2:]
assert [i.text for i in second] == [i.text for i in em.out[b0:b1]], "loop not in steady state"
loop_probs = check_hazards(em.out[b1 - 40:b2] + second[:60], "loop-wrap")

em.label("L_tail")
v_ring2 = V(64, 32); v_B2 = V(96, 32)
NF1 = 8
def hreg(kk, qb):
    if kk >= NF1: kk -= NF1
    return A((64 + 16 * kk if kk < 4 else 160 + 16 * (kk - 4)) + qb * 4, 4)
def Facc(u, qb):
    t = u * 4 + qb
    return A(128 + 4 * t if t < 8 else 224 + 4 * (t - 8), 4)
POS2 = [5, 0, 2, 3, 4, 1]
NB = int(os.environ.get("NB", "0"))
def pos2(m): return 6 + m if m < NB else POS2[(m - NB) % 6]
def kind2(m):
    if m < NF1: return ("F", m)
    if m < NF1 + 32: return ("O", (m - NF1) >> 1, (m - NF1) & 1)
    return ("F", m - 32)
def s2_dma(m):
    if m >= 46: return None
    p = pos2(m); k = kind2(m)
    if k[0] == "O":
        return [m0set(p), salu("s_mov_b32", s_off, k[1] * 32 * 1024 + 128 * k[2], scc_w=False)], [dma(v_dA[j], S_WO, s_off, j * 1024) for j in range(4)]
    return [m0set(p), salu("s_mov_b32", s_off, k[1] * 32 * 1024, scc_w=False)], [dma(v_dB[j], S_WD, s_off, j * 1024) for j in range(4)]
dtok2 = {}; s2pre = {}
for m in range(6 + NB):
    s2pre[m] = s2_dma(m); dtok2[m] = s2pre[m][1][3]
class Seq:
    kind = "vmem"
    def __init__(self, l): self.l = l
    def __call__(self): return self.l
hld = {}; htok = {}
for kk in range(14):
    hld[kk] = [bload(hreg(kk, qb), v_lin, S_HC, s_hl, off=qb * 1024, mod="sc1") for qb in range(4)]
    htok[kk] = hld[kk][3]
e(salu("s_mov_b32", s_cnt, 0, scc_w=False))
em.label("L_pollH")
e(valu("v_cmp_ne_u32", "vcc", 1, v_flag)); e(salu("s_mul_i32", s_hb, s_w, 14 * 4096, scc_w=False)); e(nop(1))
e(raw("s_cbranch_vccz L_pollH_done", rd=["vcc"]))
e(salu("s_add_u32", s_cnt, s_cnt, 1)); e(scmp("s_cmp_ge_u32", s_cnt, 50000)); e(raw("s_cbranch_scc1 L_pollH_done", rd=["scc"]))
e(raw("s_sleep 4")); e(raw("buffer_load_ubyte %s, %s, %s, %s offen sc1" % (v_flag, v_fa, S_DBG, s_fo))); e(raw("s_waitcnt vmcnt(0)")); e(raw("s_branch L_pollH"))
em.label("L_pollH_done")
NH0 = 4 * NF1
hsl = sorted([(pp, g) for pp in range(3) for g in (5, 13, 14, 15, 16, 17, 18, 27, 28, 9, 11)])[:NH0]
px = {}
for k, key in enumerate(hsl):
    px.setdefault(key, ([], []))
    px[key][0].append(hld[k >> 2][k & 3])
    if k & 3 == 0: px[key][1].append(salu("s_add_u32", s_hl, s_hb, (k >> 2) * 4096))
wsl = [(pp, g) for pp in range(2) for g in (6, 7, 8, 10, 12, 21, 22, 23)][:4 * NB] + [(2, 29), (2, 30), (2, 31), (3, 0), (3, 1), (3, 2), (3, 3), (3, 4)] + [(3, g) for g in range(5, 13)] + [(3, g) for g in range(24, 32)]
for k, key in enumerate(wsl):
    px.setdefault(key, ([], []))
    m, j = k >> 2, k & 3
    px[key][0].append(s2pre[m][1][j])
    if j == 0: px[key][1].extend(s2pre[m][0])
px[(3, 24)][1][:0] = [Wait(lg0=True), raw("s_barrier")]
lt = [V(48 + i) for i in range(4)]
rinv = [V(52 + i) for i in range(4)]
vxf = V(40, 8)
save = em.out; em.out = []
if LSUM:
    for qb in range(4): e(valu("v_accvgpr_read_b32", v_l1[qb], a_L[4 * qb]))
    if LSUM == 2: red4("v_add_f32", [v_l1[i] for i in range(4)], lt)
else:
    for qb in range(4): e(valu("v_add_f32", v_l1[qb], v_l1[qb], v_l0[qb]))
    red4("v_add_f32", [v_l1[i] for i in range(4)], lt)
e(valu("v_add_f32", lt[1], v_l1[0], v_l1[1])); e(valu("v_add_f32", lt[2], v_l1[2], v_l1[3])); e(valu("v_add_f32", lt[1], lt[1], lt[2]))
for qb in range(4): e(valu("v_rcp_f32", rinv[qb], v_l1[qb]))
e(valu("v_cmp_nge_f32", "vcc", hx(f2u(2.0 ** 30)), lt[1]))
for k in range(8): e(valu("v_accvgpr_read_b32", vxf[k], a_x[k]))
v_tr2 = V(56, 4); v_ow = V(62)
for u in range(4): e(valu("v_subrev_u32", v_tr2[u], RING, v_tr[0][u]))
e(valu("v_subrev_u32", v_ow, RING, v_lin)); e(valu("v_add_u32", v_ow, s_m0b, v_ow))
lred = em.out; em.out = save
for pp in range(4):
    for g in range(32):
        xm, xs = px.get((pp, g), ([], []))
        att_group(pp & 1, g, pp=pp, xmem=xm, xsal=xs, xvalu=(lred if (pp == 3 and g >= (30 if LSUM else 24)) else None))
for it in lred: e(it)
diag(); stamp()
if DUMP == "o":
    e(nop(7))
    for db in range(8):
        for qb in range(4):
            for k in range(4): e(valu("v_mul_f32", Of(db, qb)[k], Of(db, qb)[k], rinv[qb]))
    dump_regs([v_acc[i] for i in range(128)])

vm_ = V(60); vma = V(61)
class Mark:
    kind = "salu"
    def __init__(self, t): self.t = t
    def __call__(self):
        e(raw("s_cbranch_vccz L_nomark", rd=["vcc"])); e(valu("v_mov_b32", self.t, hx(MARK))); em.label("L_nomark"); return []
norm = [valu("v_and_b32", vma, 3, v_lane), valu("v_lshlrev_b32", vma, 12, vma)]
ow = []; ncv = []
for i in range(4):
    for qb in range(4):
        t = Of(2 * i, qb)
        for b in range(2):
            for k in range(4): norm.append(valu("v_mul_f32", Of(2 * i + b, qb)[k], Of(2 * i + b, qb)[k], rinv[qb]))
        for b in range(2):
            o = Of(2 * i + b, qb)
            for k in range(2): norm.append(valu("v_cvt_pk_bf16_f32", t[2 * b + k], o[2 * k], o[2 * k + 1]))
        ncv.append(norm[-1])
        if i == 0 and qb == 0: norm.append(Mark(t[0]))
        ow.append(dswrite("ds_write_b128", v_ow, t, i * 16384 + qb * 1024))
        if NB == 0: norm.append(ow[-1])
class ChkNorm:
    def __init__(self, k): self.k = k
    def __call__(self):
        assert ncv[self.k].tok, "O write %d scheduled before its data" % self.k
        return ow[self.k]
G0 = 4 * NF1
G1 = G0 + 128
mk = dsread("ds_read_b32", vm_, vma, 0)
class OBar:
    def __call__(self):
        assert all(w.tok for w in ow)
        em.wait(lg0=True); e(raw("s_barrier")); stamp(); e(mk); return []
class FbCheck:
    def __call__(self):
        em.wait(lg=mk)
        e(valu("v_cmp_eq_u32", "vcc", hx(MARK), vm_))
        e(scmp("s_cmp_lg_u32", s_retry, 0)); e(raw("s_cbranch_scc1 L_nofb", rd=["scc"]))
        e(nop(1))
        e(raw("s_cbranch_vccnz L_fallback", rd=["vcc"]))
        em.label("L_nofb")
        return []
def s2_acc(m, u, qb):
    k = kind2(m)
    if k[0] == "O": return v_acc[(((k[2] * 4 + u) * 4 + qb) * 4, 4)], k[1] == 0
    return Facc(u, qb), k[1] == 0
def s2_B(m, qb):
    k = kind2(m)
    if k[0] == "O": return v_B2[((k[1] & 1) * 16 + qb * 4, 4)]
    return hreg(k[1], qb)
def oread(s, qb): return dsread("ds_read_b128", v_B2[((s & 1) * 16 + qb * 4, 4)], v_lin, (s & 3) * 16384 + (s >> 2) * 4096 + qb * 1024)
extra = {}
if NB:
    OW0 = int(os.environ.get("OW0", "11"))
    for k in range(16): extra.setdefault(OW0 + k, []).append((2, ChkNorm(k), 1))
GB = G0 - int(os.environ.get("OBAR", "3"))
extra.setdefault(GB, []).append((0, OBar(), 0))
r0 = [oread(0, qb) for qb in range(4)]
for qb in range(4): extra.setdefault(GB + (qb >> 1), []).append((1 + (qb & 1) if qb < 2 else (qb & 1) * 2, r0[qb], 1))
extra.setdefault(G0 - 1, []).append((2, [Wait(lg=r0), FbCheck()], 0))
for s_ in range(1, 16):
    for qb in range(4): extra.setdefault(G0 + 8 * (s_ - 1) + 1 + qb, []).append((2, oread(s_, qb), 1))
class LateWait:
    def __init__(self, f): self.f = f
    def __call__(self): return Wait(vm=self.f())
vxa = V(48); vpoll = V(49); vfw = V(50)
vx, vy, vz = V(63), V(57), V(58)
save = em.out; em.out = []
xaddr(vxa, vx)
e(valu("v_and_b32", V(51), 7, v_lane)); e(valu("v_lshlrev_b32", V(51), 2, V(51)))
e(valu("v_add_u32", vfw, s_m0b, v_lin)); e(salu("s_lshl_b32", s_t0, s_w, 14)); e(salu("s_add_u32", s_t0, s_t0, RING)); e(valu("v_add_u32", V(55), s_t0, v_lin))
e(salu("s_lshl_b32", s_t3, s_w, 4)); e(salu("s_add_u32", s_t3, s_t3, s_g)); e(salu("s_lshl_b32", s_t3, s_t3, 13))
early = em.out; em.out = save
extra.setdefault(-1, []).append((0, LateWait(lambda: htok[0]), 0))
for kk in range(1, 14):
    g_ = 4 * kk if kk < NF1 else 4 * (kk + 32)
    extra.setdefault(g_ - 1, []).append((2, LateWait(lambda kk=kk: htok[kk]), 0))
HG0 = int(os.environ.get("HG0", "5")); HGS = int(os.environ.get("HGS", "1"))
for k in range(NH0, 56):
    extra.setdefault(HG0 + HGS * (k - NH0), []).append((2, Seq([salu("s_add_u32", s_hl, s_hb, (k >> 2) * 4096), hld[k >> 2][k & 3]]), 1))
def sreg(ip, qb, odd=0): return v_acc[(((2 * ip + odd) * 4 + qb) * 4, 4)]
sp = []; spst = []; stq = []
NSI = int(os.environ.get("NSI", "11"))
s_so = [s_t1, s_cnt, s_h0, s_h1]
for k in range(4): sp.append(salu("s_add_u32", s_so[k], s_t3, (k >> 1) * 65536 + (k & 1) * 4096))
for ip in range(4):
    for qb in range(4):
        t = sreg(ip, qb)
        for b in range(2):
            o = sreg(ip, qb, b)
            for k in range(2): sp.append(valu("v_cvt_pk_bf16_f32", t[2 * b + k], o[2 * k], o[2 * k + 1]))
        st = bstore(t, v_lin, S_SP, s_so[(ip >> 1) * 2 + (qb >> 1)], off=(qb & 1) * 2048 + (ip & 1) * 1024, mod="sc1")
        spst.append((st, sp[-1]))
class St:
    def __init__(self, k): self.k = k
    def __call__(self):
        assert spst[self.k][1].tok
        return spst[self.k][0]
STG = int(os.environ.get("STG", "2"))
for k in range(NSI): extra.setdefault(G1 + 3 + STG * k, []).append((2, St(k), 1))
sti = [NSI]
def st_next(n=1):
    for _ in range(n):
        if sti[0] < 16: e(spst[sti[0]][0]); sti[0] += 1
vpa = V(51)
s_done, s_new, s_sb = s_kK, s_kV, s_fo
def spl(gp, i): return A((gp * 2 + i) * 4, 4)
def flag_load(): return bload(vpoll, vpa, S_FL, s_t2, n=1, mod="sc1")
lblc = [0]
def issue_new():
    k = lblc[0]; lblc[0] += 1
    e(valu("v_cmp_eq_u32", "vcc", 1, vpoll)); e(nop(1))
    e(raw("s_andn2_b32 %s, vcc_lo, %s" % (s_new, s_done), "salu", rd=["vcc", s_done], wr=[s_new, "scc"])); e(salu("s_and_b32", s_new, s_new, 255))
    e(raw("s_cbranch_scc0 L_in%d_end" % k, rd=["scc"]))
    e(salu("s_or_b32", s_done, s_done, s_new))
    for gp in range(8):
        e(scmp("s_bitcmp1_b32", s_new, gp)); e(raw("s_cbranch_scc0 L_in%d_%d" % (k, gp), rd=["scc"]))
        e(salu("s_add_u32", s_t0, s_sb, gp * 8192))
        for i in range(2): e(raw(bload(spl(gp, i), v_lin, S_SPC, s_t0, off=i * 1024, mod="sc1").text))
        em.label("L_in%d_%d" % (k, gp))
    em.label("L_in%d_end" % k)
pinit = [salu("s_lshl_b32", s_t2, s_cq, 7), salu("s_mov_b32", s_done, 0, scc_w=False),
         salu("s_lshl_b32", s_sb, s_cg, 16), salu("s_lshl_b32", s_new, s_w, 11), salu("s_add_u32", s_sb, s_sb, s_new)]
extra.setdefault(G1 - 8, []).append((1, pinit, 0))
class MidPoll:
    def __init__(self, tok): self.tok = tok
    def __call__(self):
        em.wait(vm=self.tok); issue_new()
        e(salu("s_mov_b32", s_hb, s_done, scc_w=False))
        midmark.append(em.vm_total)
        return []
midmark = []
if int(os.environ.get("MID", "1")):
    pt = flag_load()
    extra.setdefault(G1 - int(os.environ.get("MID0", "4")), []).append((2, pt, 1))
    MIDPOST = int(os.environ.get("MIDPOST", "2"))
    if not MIDPOST: extra.setdefault(G1 + int(os.environ.get("MID1", "3")), []).append((0, MidPoll(pt), 0))
    else: extra.setdefault(G1 + 2, []).append((0, Wait(vm=pt), 0))
if STAMP: extra.setdefault(G1, []).append((0, Stamp(), 0))
class Diag:
    def __call__(self): diag(); return []
if DIAG: extra.setdefault(G1, []).append((0, Diag(), 0))
vs = [Fill(norm, 0, GB - (3 if NB else 1)), Fill(early, G0 + 2, G0 + 40), Fill(sp, G1 + 2, G1 + 16)]
run_stream(46, s2_dma, dtok2, s2_acc, s2_B, extra, vs, posf=pos2, ring=v_ring2, first_dma=6 + NB, tr2=v_tr2)
stamp(); diag()
def static_loads():
    e(valu("v_cmp_eq_u32", "vcc", 1, vpoll)); e(nop(1))
    e(raw("s_and_b32 %s, vcc_lo, 255" % s_done, "salu", rd=["vcc"], wr=[s_done, "scc"]))
    for gp in range(8):
        e(salu("s_add_u32", s_t0, s_sb, gp * 8192)); e(scmp("s_bitcmp1_b32", s_done, gp)); e(salu("s_cselect_b32", s_t0, s_t0, 524288, scc_w=False, scc_r=True))
        for i in range(2): e(bload(spl(gp, i), v_lin, S_SPC, s_t0, off=i * 1024, mod="sc1"))
e(nop(5))
for qb in range(4):
    for u in range(4):
        if len(em.lgq) >= 12: em.wait(lg=em.lgq[-12])
        e(dswrite("ds_write_b128", vfw, Facc(u, qb), qb * 16384 + u * 1024))
    if qb & 1: st_next(int(os.environ.get("STW", "1")))
v_fr = V(96, 16); vE = V(64, 16); vs_ = V(80, 16)
for k in range(8): e(valu("v_mov_b64", vs_[(2 * k, 2)], 0))
em.wait(lg0=True)
e(raw("s_barrier"))
def frr(ws_, u): return sreg(ws_, u, 1)
for ws_ in range(4):
    for u in range(4):
        if len(em.lgq) >= 14: em.wait(lg=em.lgq[-14])
        e(dsread("ds_read_b128", frr(ws_, u), V(55), ws_ * 4096 + u * 1024))
st_next()
if MIDPOST:
    st_next(16)
    if MIDPOST == 1: static_loads()
em.wait(lg0=True)
for u in range(4):
    for k in range(2):
        e(valu("v_pk_add_f32", frr(0, u)[(2 * k, 2)], frr(0, u)[(2 * k, 2)], frr(1, u)[(2 * k, 2)]))
        e(valu("v_pk_add_f32", frr(2, u)[(2 * k, 2)], frr(2, u)[(2 * k, 2)], frr(3, u)[(2 * k, 2)]))
for u in range(4):
    for k in range(2): e(valu("v_pk_add_f32", v_fr[(4 * u + 2 * k, 2)], frr(0, u)[(2 * k, 2)], frr(2, u)[(2 * k, 2)]))
for k in range(16): e(valu("v_mul_f32", vE[k], hx(f2u(-math.log2(math.e))), v_fr[k]))
st_next()
for k in range(16): e(valu("v_exp_f32", vE[k], vE[k]))
for k in range(16): e(valu("v_add_f32", vE[k], "1.0", vE[k]))
st_next()
for k in range(16): e(valu("v_rcp_f32", vE[k], vE[k]))
for k in range(16): e(valu("v_mul_f32", v_fr[k], v_fr[k], vE[k]))
for k in range(8):
    e(valu("v_lshlrev_b32", vE[2 * k], 16, vxf[k])); e(valu("v_and_b32", vE[2 * k + 1], "0xffff0000", vxf[k]))
st_next()
stamp()
accn = [0]
def acc_pieces(mask, sprinkle=False):
    n = accn[0]; accn[0] += 1
    for gp in range(8):
        e(scmp("s_bitcmp1_b32", mask, gp)); e(raw("s_cbranch_scc0 L_acc%d_%d" % (n, gp), rd=["scc"]))
        for k2 in range(8): e(valu("v_accvgpr_read_b32", V(120 + k2), spl(gp, k2 >> 2)[k2 & 3]))
        for k in range(8):
            e(valu("v_lshlrev_b32", V(112 + 2 * (k & 3)), 16, V(120 + k))); e(valu("v_and_b32", V(113 + 2 * (k & 3)), "0xffff0000", V(120 + k)))
            e(valu("v_pk_add_f32", vs_[(2 * k, 2)], vs_[(2 * k, 2)], V(112 + 2 * (k & 3), 2)))
        em.label("L_acc%d_%d" % (n, gp))
        if sprinkle and gp & 1: st_next()
if midmark:
    n_y = em.vm_total - midmark[0]
    e(raw("s_waitcnt vmcnt(%d)" % n_y, "wait")); em._retire(em.vmq, n_y)
    acc_pieces(s_hb, sprinkle=True)
st_next(16)
if MIDPOST != 2: e(flag_load())
em.wait(vm=spst[-1][0]); stamp(); e(raw("s_barrier"))
e(scmp("s_cmp_lg_u32", s_w, 0)); e(raw("s_cbranch_scc1 L_sigS", rd=["scc"]))
e(valu("v_mov_b32", v_t, 1))
e(raw("s_mov_b64 exec, 1", "salu", wr=["exec"]))
e(raw("buffer_store_dword %s, off, %s, %s sc1" % (v_t, S_FL, s_myfl)))
e(raw("s_mov_b64 exec, -1", "salu", wr=["exec"]))
em.label("L_sigS")
if MIDPOST == 2: static_loads(); e(flag_load())
s_prev = s_hl
e(salu("s_mov_b32", s_prev, s_done if MIDPOST else 0, scc_w=False)); e(salu("s_mov_b32", s_cnt, 0, scc_w=False))
em.label("L_fin_loop")
em.wait(vm0=True)
issue_new()
e(raw(flag_load().text))
acc_pieces(s_prev)
e(salu("s_mov_b32", s_prev, s_new, scc_w=False))
e(salu("s_add_u32", s_cnt, s_cnt, 1)); e(scmp("s_cmp_ge_u32", s_cnt, 50000)); e(raw("s_cbranch_scc1 L_fin_done", rd=["scc"]))
e(scmp("s_cmp_lg_u32", s_prev, 0)); e(raw("s_cbranch_scc1 L_fin_loop", rd=["scc"]))
e(scmp("s_cmp_lg_u32", s_done, 255)); e(raw("s_cbranch_scc1 L_fin_loop", rd=["scc"]))
em.label("L_fin_done")
if DUMP == "fin": dump_regs([vs_[i] for i in range(16)] + [v_fr[i] for i in range(16)])
for k in range(8): e(valu("v_pk_fma_f32", vE[(2 * k, 2)], vs_[(2 * k, 2)], v_fr[(2 * k, 2)], vE[(2 * k, 2)]))
for k in range(8): e(valu("v_cvt_pk_bf16_f32", vxf[k], vE[2 * k], vE[2 * k + 1]))
for u in range(4): e(bstore(vxf[(2 * u, 2)], vxa, S_OUT, 0, off=32 * u))
stamp(); diag_out()
em.label("L_end")
e(raw("s_endpgm"))
main_end = len(em.out)

em.lgq, em.vmq, em.pend = [], [], {}
em.label("L_sigH_side")
e(salu("s_lshl_b32", s_t1, s_qb, 3)); e(salu("s_add_u32", s_t1, s_t1, s_g))
e(raw("s_mov_b64 exec, 2", "salu", wr=["exec"]))
e(raw("buffer_store_byte %s, off, %s, %s sc1" % (v_fa, S_DBG, s_t1)))
e(raw("s_mov_b64 exec, -1", "salu", wr=["exec"]))
e(raw("s_branch L_sigH_ret"))
em.label("L_fallback")
e(raw("s_waitcnt vmcnt(0) lgkmcnt(0)")); em._retire(em.vmq, 0); em._retire(em.lgq, 0)
for k in range(8): e(valu("v_accvgpr_write_b32", a_x[k], V(40 + k)))
e(salu("s_mov_b32", s_retry, 1, scc_w=False))
e(salu("s_mov_b32", S_H[2], 0, scc_w=False))
e(salu("s_mov_b32", s_kK, 0, scc_w=False))
fm = [V(40 + i) for i in range(4)]
for i in range(4): e(valu("v_mov_b32", fm[i], "0xff800000"))
em.label("L_fb_loop")
e(raw("s_barrier"))
e(salu("s_add_u32", "m0", s_m0b, 4 * 16384)); e(nop(0))
for j in range(4): e(dma(v_kd[j], S_K, s_kK, j * 1024))
em.wait(vm0=True)
e(raw("s_barrier"))
for kb in range(4):
    rr = [e(dsread("ds_read_b128", fr(ds), v_ka[ds], kb * 4096)) for ds in range(4)]
    em.wait(lg0=True)
    for ds in range(4):
        for qb in range(4):
            d = v_S[0][(qb * 4, 4)]
            e(mfma(d, fr(ds), Qf(qb, ds), 0 if ds == 0 else d))
    e(nop(7))
    for qb in range(4):
        e(valu("v_max3_f32", fm[qb], fm[qb], v_S[0][qb * 4], v_S[0][qb * 4 + 1])); e(valu("v_max3_f32", fm[qb], fm[qb], v_S[0][qb * 4 + 2], v_S[0][qb * 4 + 3]))
    e(nop(2))
e(salu("s_add_u32", s_kK, s_kK, 16384)); e(scmp("s_cmp_lt_u32", s_kK, 524288)); e(raw("s_cbranch_scc1 L_fb_loop", rd=["scc"]))
red4("v_max_f32", fm, [V(44 + i) for i in range(4)])
for qb in range(4):
    for k in range(4): e(valu("v_sub_f32", v_negm[qb * 4 + k], 0, fm[qb]))
e(raw("s_barrier"))
for m in (64, 65, 66):
    sa, dm = s1_dma(m); e(sa)
    for d in dm: e(d)
e(raw("s_waitcnt vmcnt(0)"))
e(raw("s_branch L_att_start"))
em.label("L_code_end")
e(raw("s_endpgm"))

probs = check_hazards(em.out, "main") + loop_probs
for p in probs: print("; HAZARD", p, file=sys.stderr)
assert not probs

hdr = open(os.path.join(os.path.dirname(os.path.abspath(__file__)), "header.txt")).read()
print(hdr.rstrip())
print("; @launch grid=(256,1,1) block=(256,1,1) lds=163840")
print('.amdgcn_target "amdgcn-amd-amdhsa--gfx950"\n.text\n.globl %s\n.p2align 8\n.type %s,@function\n%s:' % (KN, KN, KN))
print(em.text())
print('.section .rodata,"a"\n.p2align 6\n.amdhsa_kernel %s' % KN)
print("  .amdhsa_next_free_vgpr 512\n  .amdhsa_next_free_sgpr 102\n  .amdhsa_accum_offset 256\n  .amdhsa_group_segment_fixed_size 0\n  .amdhsa_kernarg_size 96\n  .amdhsa_user_sgpr_count 2\n  .amdhsa_user_sgpr_kernarg_segment_ptr 1\n  .amdhsa_system_sgpr_workgroup_id_x 1\n.end_amdhsa_kernel")
```

```python
import sys, os, math, struct
from asmgen import *

KN = "recurrent_scan__gqa_block_cached__geglu_ffn__prompt_kernel"
DUMP = os.environ.get("DUMP", "")
STAMP = int(os.environ.get("STAMP", "0"))
GEL_END = int(os.environ.get("GEL_END", "247")); GEL_EXTRA = int(os.environ.get("GEL_EXTRA", "360"))

def f2u(x): return struct.unpack("<I", struct.pack("<f", x))[0]
def hx(x): return "0x%x" % (x & 0xffffffff)

S_X, S_K, S_V, S_WQ, S_WO, S_WG, S_WU, S_WD, S_OUT, S_DBG, S_H, S_SP = [S(4 + 4 * i, 4) for i in range(12)]
s_g, s_qb, s_w = S(52), S(53), S(54)
s_t0, s_t1, s_t2, s_t3 = S(55), S(56), S(57), S(58)
s_m0b = S(59)
s_off = S(60)
s_cnt = S(61)
s_kK, s_kV = S(62), S(63)
s_retry = S(64)
s_h0, s_h1 = S(65), S(66)
s_hl = S(67); s_hb = S(78); s_myfl = S(79); s_wdd = S(67); s_sig = S(78)
s_ka = S(68, 16); s_kb = S(84, 8)
s_pair = S(92, 2); s_pair2 = S(94, 2)
S_DMP = S(96, 4)
s_cq, s_cg = S(76), S(77)
S_HC = S(80, 4)
S_SPC = S(84, 4)
S_XC = S(88, 4)
s_st = S(68, 4)

v_tid, v_lane, v_lin, v_t = V(0), V(1), V(2), V(3)
v_tr = [V(4, 4), V(8, 4)]
v_dA, v_dB = V(12, 4), V(16, 4)
v_ka = V(20, 4); v_va = V(24, 8); v_kd = V(32, 4); v_vd = V(36, 2)
v_wl = V(38)
v_c = V(39)
v_l0, v_l1 = V(40, 4), V(44, 4)
v_lsave = V(16, 4)
v_negm = V(48, 16)
v_S = [V(64, 32), V(96, 32)]
v_acc = V(128, 128)
a_ring = A(128, 32)
a_B = A(160, 32)
a_Q = A(0, 64)
a_F = A(0, 64)
a_x = A(248, 8)
LSUM = int(os.environ.get('LSUM', '1'))
a_L = A(224, 16); a_ones = A(240, 4)

RING = 65536
MARK = 0x7fc17fc1
WS_SP = 8 << 20
WS_DUMP = 32 << 20
WS_FL = (7 << 20) + (512 << 10)
S_FL = S(4, 4)

em = Em()
e = em.e

def srd(dst, lo, hi, size, off_s=None):
    if off_s is None:
        e(salu("s_mov_b32", dst[0], lo, scc_w=False)); e(salu("s_mov_b32", dst[1], hi, scc_w=False))
    else:
        e(salu("s_add_u32", dst[0], lo, off_s)); e(salu("s_addc_u32", dst[1], hi, 0, scc_r=True))
    e(salu("s_mov_b32", dst[2], hx(size), scc_w=False)); e(salu("s_mov_b32", dst[3], "0x20000", scc_w=False))

DIAG = int(os.environ.get("DIAG", "0"))
HC_OFF = 128
diag_regs = [S(100, 2), S(70, 2), S(72, 2), S(74, 2), S(96, 2), S(98, 2), S(68, 2)] if DIAG == 1 else [S(100, 2), S(96, 2), S(98, 2), S(94, 2), S(70, 2), S(72, 2), S(74, 2), S(68, 2)]
diag_n = [0]
def diag(which=1, last=False):
    if not DIAG or (which != DIAG and which != 0): return
    k = diag_n[0]; diag_n[0] += 1
    e(raw("%s %s" % ("s_memtime" if (os.environ.get("CYC") and not last) else "s_memrealtime", diag_regs[k]), "other", wr=[diag_regs[k]]))
    if k > 0: e(raw("s_waitcnt lgkmcnt(0)", "wait")); em._retire(em.lgq, 0)
AMP = os.environ.get("AMP")
def diag_out():
    if not DIAG: return
    diag(0, last=True)
    if AMP:
        k = int(AMP); last = diag_regs[diag_n[0] - 1]
        e(salu("s_sub_u32", s_t0, diag_regs[k][0], diag_regs[int(os.environ.get("AMP0", "0"))][0]))
        if os.environ.get("CYC"): e(salu("s_lshr_b32", s_t0, s_t0, 2))
        else: e(salu("s_lshl_b32", s_t0, s_t0, 2))
        em.label("L_amp")
        e(raw("s_memrealtime s[56:57]")); e(raw("s_waitcnt lgkmcnt(0)"))
        e(salu("s_sub_u32", s_t1, s_t1, last[0])); e(scmp("s_cmp_lt_u32", s_t1, s_t0)); e(raw("s_cbranch_scc1 L_amp", rd=["scc"]))
        return
    e(scmp("s_cmp_lg_u32", s_w, 0)); e(raw("s_cbranch_scc1 L_end", rd=["scc"]))
    e(raw("s_mov_b64 exec, 1", "salu", wr=["exec"]))
    e(salu("s_not_b32", s_t0, diag_regs[0][0]))
    for k in range(diag_n[0]):
        e(valu("v_mov_b32", V(4 + k), s_t0 if k == 0 else diag_regs[k][0]))
        e(raw("buffer_atomic_umax %s, off, %s, 0 offset:%d sc1" % (V(4 + k), S_DBG, 4 * k)))
    e(valu("v_mov_b32", V(12), diag_regs[0][0]))
    e(raw("buffer_atomic_umax %s, off, %s, 0 offset:%d sc1" % (V(12), S_DBG, 4 * 9)))
stamp_n = [0]
def stamp():
    if not STAMP: return
    k = stamp_n[0]; stamp_n[0] += 1
    e(raw("s_memtime %s" % S(68, 2), "other", wr=[S(68, 2)]))
    e(raw("s_memrealtime %s" % S(70, 2), "other", wr=[S(70, 2)]))
    e(raw("s_waitcnt lgkmcnt(0)", "wait")); em._retire(em.lgq, 0)
    for i in range(4): e(valu("v_writelane_b32", v_c, S(68 + i), i, rmw=True))
    e(salu("s_lshl_b32", S(72), S(2), 2)); e(salu("s_add_u32", S(72), S(72), s_w)); e(salu("s_lshl_b32", S(72), S(72), 9))
    e(salu("s_mov_b64", S(74, 2), "exec", scc_w=False)); e(raw("s_mov_b64 exec, 15", "salu", wr=["exec"]))
    e(valu("v_lshlrev_b32", v_t, 2, v_lane))
    e(bstore(v_c, v_t, S_DMP, S(72), off=k * 16))
    e(raw("s_mov_b64 exec, %s" % S(74, 2), "salu", wr=["exec"]))
    e(valu("v_lshlrev_b32", v_t, 7, v_lane))

def dump_regs(regs, finish=True):
    em.wait(lg0=True, vm0=True)
    e(nop(7)); e(nop(7))
    n = len(regs)
    e(salu("s_lshl_b32", s_t0, S(2), 2)); e(salu("s_add_u32", s_t0, s_t0, s_w)); e(salu("s_mul_i32", s_t0, s_t0, n * 256, scc_w=False))
    e(valu("v_lshlrev_b32", v_t, 2, v_lane))
    for k, r in enumerate(regs):
        e(bstore(r, v_t, S_DMP, s_t0, off=0))
        e(salu("s_add_u32", s_t0, s_t0, 256))
        if k % 32 == 31: em.wait(vm0=True)
    em.wait(vm0=True)
    if finish: e(raw("s_endpgm"))

def red4(op, x, tmp):
    for sw in ("v_permlane32_swap_b32", "v_permlane16_swap_b32"):
        for a, t in zip(x, tmp): e(valu("v_mov_b32", t, a))
        if len(x) < 3: e(nop(1))
        for a, t in zip(x, tmp): e(valu(sw, a, t))
        for a, t in zip(x, tmp): e(valu(op, a, a, t))

e(scmp("s_cmp_ge_u32", S(2), 256)); e(raw("s_cbranch_scc1 L_end", rd=["scc"]))
diag(0)
i0 = e(I("s_load_dwordx16 %s, s[0:1], 0" % s_ka, "smem", wr=s_ka.regs()))
i1 = e(I("s_load_dwordx8 %s, s[0:1], 64" % s_kb, "smem", wr=s_kb.regs()))
vq, vG, vr, vc_, vx, vy, vz = [V(40 + i) for i in range(7)]
e(raw("s_getpc_b64 %s" % s_pair2, "salu", wr=[s_pair2]))
em.label("L_pc0")
CT0 = int(os.environ.get("CT0", "64"))
if CT0:
    e(valu("v_sub_u32", V(55), 255, v_tid)); e(valu("v_cmp_gt_u32", "vcc", CT0, V(55))); e(valu("v_lshlrev_b32", V(55), 7, V(55))); e(nop(0))
    e(raw("s_and_saveexec_b64 s[4:5], vcc", "salu", wr=["exec"], rd=["vcc"])); e(raw("s_cbranch_execz L_ct0"))
    e(raw("global_load_dword v55, v55, %s" % s_pair2))
    em.label("L_ct0")
    e(raw("s_mov_b64 exec, -1", "salu", wr=["exec"]))
e(salu("s_and_b32", s_g, S(2), 7)); e(salu("s_lshr_b32", s_qb, S(2), 3))
e(valu("v_and_b32", v_lane, 63, v_tid))
e(valu("v_lshrrev_b32", v_t, 6, v_tid))
e(valu("v_lshlrev_b32", v_lin, 4, v_lane))
e(valu("v_readfirstlane_b32", s_w, v_t))
e(valu("v_and_b32", vq, 15, v_lane)); e(valu("v_lshrrev_b32", vG, 4, v_lane))
vxo = V(47)
e(valu("v_lshl_add_u32", vxo, v_t, 4, vq)); e(valu("v_lshlrev_b32", vxo, 10, vxo)); e(valu("v_lshl_add_u32", vxo, vG, 4, vxo))
vwg, vwq, vcw = V(52), V(53), V(54)
e(salu("s_mul_i32", s_t1, s_g, 448, scc_w=False)); e(salu("s_and_b32", s_t1, s_t1, hx(~127)))
e(salu("s_and_b32", s_t2, s_w, 1)); e(salu("s_lshl_b32", s_t3, s_qb, 1)); e(salu("s_add_u32", s_t2, s_t2, s_t3))
e(salu("s_mul_i32", s_t2, s_t2, 8 * 3584, scc_w=False)); e(salu("s_add_u32", s_t1, s_t1, s_t2))
e(valu("v_lshrrev_b32", vx, 2, v_lane)); e(valu("v_mul_u32_u24", vx, 3584, vx)); e(valu("v_and_b32", vz, 3, v_lane)); e(valu("v_lshl_add_u32", vx, vz, 7, vx))
e(valu("v_add_u32", vwg, s_t1, vx))
e(salu("s_lshl_b32", s_t2, s_qb, 2)); e(salu("s_add_u32", s_t2, s_t2, s_w)); e(salu("s_lshl_b32", s_t3, s_t2, 8))
e(valu("v_lshlrev_b32", vcw, 7, v_lane)); e(valu("v_add_u32", vcw, s_t3, vcw))
e(salu("s_lshl_b32", s_t0, s_qb, 16))
em.wait(lg0=True)
diag(2)
srd(S_X, s_ka[0], s_ka[1], 65536, s_t0)
v_xp = V(64, 64)
XFIRST = int(os.environ.get("XFIRST", "12"))
xl = [bload(v_xp[(4 * ks, 4)], vxo, S_X, 0, off=64 * ks) for ks in range(16)]
for ks in range(XFIRST): e(xl[ks])
e(scmp("s_cmp_lt_u32", s_w, 2)); e(salu("s_cselect_b64", s_pair, s_ka[(12, 2)], s_ka[(14, 2)], scc_w=False, scc_r=True))
e(raw("s_mov_b64 exec, 0xffffffff", "salu", wr=["exec"]))
e(I("global_load_dword %s, %s, %s" % (V(48), vwg, s_pair), "vmem", rd=vwg.regs() + s_pair.regs(), wr=V(48).regs()))
e(raw("s_mov_b64 exec, 3", "salu", wr=["exec"]))
e(I("global_load_dword %s, %s, %s" % (V(49), vcw, s_pair2), "vmem", rd=vcw.regs() + s_pair2.regs(), wr=V(49).regs()))
e(raw("s_mov_b64 exec, -1", "salu", wr=["exec"]))
e(salu("s_lshl_b32", s_t2, s_t2, 15)); e(salu("s_lshl_b32", s_t3, s_g, 10)); e(salu("s_add_u32", s_t2, s_t2, s_t3))
e(valu("v_lshrrev_b32", vx, 3, v_lane)); e(valu("v_lshlrev_b32", vx, 13, vx)); e(valu("v_and_b32", vz, 7, v_lane)); e(valu("v_lshl_add_u32", vx, vz, 7, vx))
e(valu("v_add_u32", vwq, s_t2, vx))
e(salu("s_lshr_b32", s_t2, s_qb, 3)); e(salu("s_lshl_b32", s_t3, s_g, 2)); e(salu("s_add_u32", s_t2, s_t2, s_t3))
e(salu("s_lshl_b32", s_t0, s_t2, 16))
srd(S_OUT, s_kb[2], s_kb[3], 65536, s_t0)
e(salu("s_lshl_b32", s_t1, s_g, 19))
srd(S_K, s_ka[2], s_ka[3], 524288, s_t1)
srd(S_V, s_ka[4], s_ka[5], 524288, s_t1)
srd(S_WO, s_ka[8], s_ka[9], 524288, s_t1)
srd(S_WQ, s_ka[6], s_ka[7], 4 << 20)
srd(S_WG, s_ka[12], s_ka[13], 1835008)
srd(S_WU, s_ka[14], s_ka[15], 1835008)
srd(S_WD, s_kb[0], s_kb[1], 1835008)
srd(S_DBG, s_kb[4], s_kb[5], 256)
e(salu("s_mul_i32", s_t1, s_qb, 229376, scc_w=False))
srd(S_H, s_kb[6], s_kb[7], 229376, s_t1)
e(salu("s_lshl_b32", s_t1, s_qb, 19)); e(salu("s_add_u32", s_t1, s_t1, hx(WS_SP)))
srd(S_SP, s_kb[6], s_kb[7], 524288, s_t1)
if DUMP or STAMP:
    e(salu("s_mov_b32", s_t1, hx(WS_DUMP), scc_w=False))
    srd(S_DMP, s_kb[6], s_kb[7], 200 << 20, s_t1)
e(salu("s_mov_b64", s_pair, S(90, 2), scc_w=False))
e(salu("s_lshl_b32", s_t0, s_t2, 16))
srd(S_XC, s_ka[0], s_ka[1], 65536, s_t0)
e(salu("s_mul_i32", s_t1, s_t2, 229376, scc_w=False))
srd(S_HC, s_pair[0], s_pair[1], 229376, s_t1)
e(salu("s_lshl_b32", s_t1, s_t2, 19)); e(salu("s_add_u32", s_t1, s_t1, hx(WS_SP)))
srd(S_SPC, s_pair[0], s_pair[1], 524288, s_t1)
e(salu("s_mov_b32", s_cq, s_t2, scc_w=False)); e(salu("s_and_b32", s_cg, s_qb, 7))
e(salu("s_lshl_b32", s_myfl, s_qb, 7)); e(salu("s_lshl_b32", s_t1, s_g, 2)); e(salu("s_add_u32", s_myfl, s_myfl, s_t1))
e(salu("s_lshl_b32", s_m0b, s_w, 12)); e(salu("s_add_u32", s_m0b, s_m0b, RING))
e(salu("s_and_b32", s_t1, s_g, 1)); e(salu("s_lshl_b32", s_t1, s_t1, 2)); e(salu("s_add_u32", s_t1, s_t1, s_w))
e(scmp("s_cmp_eq_u32", s_w, 3)); e(salu("s_cselect_b32", s_t1, 3, s_t1, scc_w=False, scc_r=True))
e(salu("s_lshr_b32", s_t2, s_g, 1)); e(salu("s_mul_i32", s_t2, s_t2, 7, scc_w=False)); e(salu("s_add_u32", s_t1, s_t1, s_t2))
e(salu("s_lshl_b32", s_h0, s_t1, 13)); e(salu("s_add_u32", s_h1, s_h0, 4096))
e(salu("s_lshl_b32", s_t1, s_t1, 7))
e(salu("s_lshl_b32", s_t2, s_g, 2)); e(salu("s_add_u32", s_t2, s_t2, s_w)); e(salu("s_lshl_b32", s_t2, s_t2, 8))

def dma_voffs(dst, stride, colbase_s, perm):
    for j in range(4):
        e(valu("v_bfe_u32", vx, v_lane, 1, 2)); e(valu("v_bfe_u32", vy, v_lane, 4, 1))
        e(valu("v_xor_b32", vx, vx, vy))
        if j & 1: e(valu("v_xor_b32", vx, 2, vx))
        e(valu("v_and_b32", vy, 1, v_lane)); e(valu("v_lshlrev_b32", vy, 4, vy)); e(valu("v_lshl_add_u32", vx, vx, 5, vy))
        if not perm:
            e(valu("v_lshrrev_b32", vy, 3, v_lane)); rowadd = 8 * j
        else:
            e(valu("v_bfe_u32", vy, v_lane, 3, 2)); e(valu("v_bfe_u32", vz, v_lane, 5, 1)); e(valu("v_lshl_add_u32", vy, vz, 4, vy)); rowadd = 4 * j
        e(valu("v_mul_u32_u24", vy, stride, vy))
        e(valu("v_add3_u32", vx, vx, vy, colbase_s))
        e(valu("v_add_u32", dst[j], rowadd * stride - j * 1024, vx))

dma_voffs(v_dA, 3584, s_t1, False)
dma_voffs(v_dB, 8192, s_t2, False)

def m0set(p): return salu("s_add_u32", "m0", s_m0b, p * 16384) if p < 6 else salu("s_sub_u32", "m0", s_m0b, RING - (p - 6) * 16384)
def s1_dma(m):
    p = m % 6
    if m < 32:
        s, h = m >> 1, m & 1
        return [m0set(p), salu("s_mov_b32", s_off, s * 32 * 3584, scc_w=False)], [dma(v_dA[j], S_WU if h else S_WG, s_off, j * 1024) for j in range(4)]
    if m < 64:
        s, h = (m - 32) >> 1, m & 1
        return [m0set(p), salu("s_mov_b32", s_off, s * 32 * 8192 + 128 * h, scc_w=False)], [dma(v_dB[j], S_WQ, s_off, j * 1024) for j in range(4)]
    if m == 64:
        return [m0set(p), salu("s_mov_b32", s_off, 0, scc_w=False)], [dma(v_kd[j], S_K, s_off, j * 1024) for j in range(4)]
    if m == 65:
        return [m0set(p), salu("s_mov_b32", s_off, 8192, scc_w=False)], [dma(v_kd[j], S_K, s_off, j * 1024) for j in range(4)]
    if m == 66:
        return [m0set(p), salu("s_mov_b32", s_off, 0, scc_w=False)], [dma(v_vd[j & 1], S_V, s_off, j * 1024) for j in range(4)]
    return None
dtok = {}
ln_v = []
for m in range(6):
    sa, dm = s1_dma(m)
    ln_v.append(sa); ln_v += dm
    dtok[m] = dm[3]
def xaddr(dst, tmp):
    e(valu("v_and_b32", dst, 15, v_lane)); e(salu("s_lshl_b32", s_t0, s_w, 4)); e(valu("v_add_u32", dst, s_t0, dst)); e(valu("v_lshlrev_b32", dst, 10, dst))
    e(valu("v_lshrrev_b32", tmp, 4, v_lane)); e(valu("v_lshl_add_u32", dst, tmp, 3, dst)); e(salu("s_lshl_b32", s_t0, s_cg, 7)); e(valu("v_add_u32", dst, s_t0, dst))
vxs, vzero = V(50), V(51)
xaddr(vxs, vy)
e(valu("v_mov_b32", vzero, 0))
ln_v += [bload(a_x[(2 * u, 2)], vxs, S_XC, 0, off=32 * u, n=2) for u in range(4)]
ln_v.append([raw("s_mov_b64 exec, 1", "salu", wr=["exec"]), bstore(vzero, None, S_FL, s_myfl, mod="sc1"), raw("s_mov_b64 exec, -1", "salu", wr=["exec"])])
ln_v.append([raw("s_mov_b64 exec, 0xffffffff", "salu", wr=["exec"]), bload(V(46), vwq, S_WQ, 0, n=1), raw("s_mov_b64 exec, -1", "salu", wr=["exec"])])
LNPRE = int(os.environ.get("LNPRE", "0"))
lv = [0]
def ln_issue(n=1):
    k = 0
    while k < n and lv[0] < len(ln_v):
        it = ln_v[lv[0]]; lv[0] += 1
        e(it)
        if not isinstance(it, list): k += 1
e(valu("v_bfe_u32", vr, v_lane, 2, 2)); e(valu("v_and_b32", vc_, 3, v_lane))
e(valu("v_lshlrev_b32", vx, 10, vG)); e(valu("v_lshl_add_u32", vx, vr, 7, vx)); e(valu("v_lshl_add_u32", vx, vc_, 3, vx)); e(valu("v_add_u32", vx, s_m0b, vx))
e(valu("v_lshrrev_b32", vy, 1, vr)); e(valu("v_and_b32", vz, 1, vG)); e(valu("v_lshl_add_u32", vy, vz, 1, vy))
for u in range(4):
    e(valu("v_xor_b32", vz, u, vy)); e(valu("v_lshl_add_u32", v_tr[0][u], vz, 5, vx)); e(valu("v_add_u32", v_tr[1][u], 3 * 16384, v_tr[0][u]))
e(valu("v_xor_b32", vy, vG, vq))
for ds in range(4):
    e(valu("v_xor_b32", vz, 4 * ds, vy)); e(valu("v_lshlrev_b32", vz, 4, vz)); e(valu("v_lshl_add_u32", vz, vq, 8, vz)); e(valu("v_add_u32", v_ka[ds], RING + 4 * 16384, vz))
e(valu("v_lshl_add_u32", vx, vG, 2, vr)); e(valu("v_and_b32", vy, 7, vx)); e(valu("v_lshlrev_b32", vx, 8, vx)); e(valu("v_lshl_add_u32", vx, vc_, 3, vx)); e(valu("v_add_u32", vx, RING, vx))
for db in range(8):
    e(valu("v_xor_b32", vz, db, vy)); e(valu("v_lshl_add_u32", v_va[db], vz, 5, vx))
e(salu("s_lshl_b32", s_t1, s_w, 12))
e(valu("v_lshlrev_b32", vx, 8, vG)); e(valu("v_add_u32", vx, s_t1, vx))
for j in range(4):
    e(valu("v_add_u32", vy, 4 * j, vG)); e(valu("v_xor_b32", vy, vy, vq)); e(valu("v_lshl_add_u32", v_kd[j], vy, 4, vx))
e(valu("v_and_b32", vz, 1, v_lane)); e(valu("v_lshl_add_u32", vx, vz, 4, vx))
for j in range(2):
    e(valu("v_add_u32", vy, 4 * j, vG)); e(valu("v_lshrrev_b32", vz, 1, vq)); e(valu("v_xor_b32", vy, vy, vz)); e(valu("v_lshl_add_u32", v_vd[j], vy, 5, vx))
e(salu("s_lshl_b32", s_t1, s_w, 14)); e(valu("v_add_u32", v_wl, s_t1, v_lin))
e(salu("s_mov_b32", s_retry, 0, scc_w=False))
for ks in range(XFIRST, 16): e(xl[ks])
e(salu("s_mov_b32", s_t1, hx(WS_FL), scc_w=False))
srd(S_FL, s_pair[0], s_pair[1], 4096, s_t1)
ln_issue(LNPRE)
stamp()

v_f = V(128, 128)
acc = [V(56, 2), V(58, 2), V(60, 2), V(62, 2)]
diag(2)
for ks in range(16):
    em.wait(vm=xl[ks])
    if ks == 15: diag(2)
    for k in range(4):
        p = 4 * ks + k
        e(valu("v_lshlrev_b32", v_f[2 * p], 16, v_xp[p])); e(valu("v_and_b32", v_f[2 * p + 1], "0xffff0000", v_xp[p]))
    for k in range(4):
        p = 4 * ks + k
        if ks == 0: e(valu("v_mov_b64", acc[k], v_f[(2 * p, 2)]))
        else: e(valu("v_pk_add_f32", acc[k], acc[k], v_f[(2 * p, 2)]))
if STAMP == 3: stamp()
ln_issue(int(os.environ.get("LN_FIRST", "12")))
diag(2)
if STAMP == 3: stamp()
e(valu("v_pk_add_f32", acc[0], acc[0], acc[1])); e(valu("v_pk_add_f32", acc[2], acc[2], acc[3])); e(valu("v_pk_add_f32", acc[0], acc[0], acc[2]))
vsum, vtmp, vmb, vdm = V(40), V(41), V(42), V(43)
e(valu("v_add_f32", vsum, acc[0][0], acc[0][1]))
red4("v_add_f32", [vsum], [vtmp])
e(valu("v_mul_f32", vsum, hx(f2u(1.0 / 512)), vsum))
e(valu("v_cvt_pk_bf16_f32", vmb, vsum, vsum)); e(valu("v_lshlrev_b32", vmb, 16, vmb))
e(valu("v_sub_f32", vdm, vsum, vmb))
vneg = V(56, 2)
e(valu("v_sub_f32", vneg[0], 0, vmb))
acc2 = [V(58, 2), V(60, 2), V(62, 2)]
for p in range(64):
    e(valu("v_pk_add_f32", v_f[(2 * p, 2)], v_f[(2 * p, 2)], vneg, mod="op_sel_hi:[1,0]"))
for p in range(64):
    a_ = acc2[p % 3]
    if p < 3: e(valu("v_pk_mul_f32", a_, v_f[(2 * p, 2)], v_f[(2 * p, 2)]))
    else: e(valu("v_pk_fma_f32", a_, v_f[(2 * p, 2)], v_f[(2 * p, 2)], a_))
if STAMP == 3: stamp()
e(valu("v_pk_add_f32", acc2[0], acc2[0], acc2[1])); e(valu("v_pk_add_f32", acc2[0], acc2[0], acc2[2]))
e(valu("v_add_f32", vsum, acc2[0][0], acc2[0][1]))
red4("v_add_f32", [vsum], [vtmp])
e(valu("v_mul_f32", vsum, hx(f2u(1.0 / 512)), vsum))
e(valu("v_fma_f32", vsum, "-" + str(vdm), vdm, vsum, extra_rd=vdm.regs()))
e(valu("v_max_f32", vsum, 0, vsum))
e(valu("v_cvt_pk_bf16_f32", vsum, vsum, vsum)); e(valu("v_lshlrev_b32", vsum, 16, vsum))
e(valu("v_add_f32", vsum, hx(f2u(1e-5)), vsum))
e(valu("v_cvt_pk_bf16_f32", vsum, vsum, vsum)); e(valu("v_lshlrev_b32", vsum, 16, vsum))
e(valu("v_sqrt_f32", vsum, vsum)); e(nop(0))
e(valu("v_cvt_pk_bf16_f32", vsum, vsum, vsum)); e(valu("v_lshlrev_b32", vsum, 16, vsum))
e(valu("v_rcp_f32", vneg[0], vsum)); e(nop(0))
for ks in range(16):
    for k in range(4):
        p = 4 * ks + k
        e(valu("v_pk_mul_f32", v_f[(2 * p, 2)], v_f[(2 * p, 2)], vneg, mod="op_sel_hi:[1,0]"))
    for k in range(4):
        p = 4 * ks + k
        e(valu("v_cvt_pk_bf16_f32", v_xp[p], v_f[2 * p], v_f[2 * p + 1]))
    e(dswrite("ds_write_b128", v_wl, v_xp[(4 * ks, 4)], ks * 1024))
ln_issue(int(os.environ.get("LN_LAST", "100")))
if STAMP == 3: stamp()
if DUMP == "ln": dump_regs([v_xp[i] for i in range(64)])
em.wait(lg0=True)
e(raw("s_barrier"))
stamp(); diag(); diag(2)

def cost_of(it):
    k = getattr(it, "kind", "")
    return 2 if k == "trans" else (0 if k in ("salu", "nop") else 1)
class Fill:
    def __init__(self, items, start, end, spread=False): self.items, self.start, self.end, self.spread = list(items), start, end, spread; self.i = 0
    def done(self): return self.i == len(self.items)
def run_stream(NH, dmaf, dtok, accf, Bf, extra, fills, LOOK=6, nq=4, posf=lambda m: m % 6, ring=a_ring, first_dma=6, tr2=None):
    NG = 4 * NH
    rtok = {}
    def reads(g):
        m, u = g >> 2, g & 3
        p = posf(m)
        d = ring[((g % 8) * 4, 4)]
        ar, of = (v_tr[p // 3][u], (p % 3) * 16384) if p < 6 else (tr2[u], (p - 6) * 16384)
        r = [dsread("ds_read_b64_tr_b16", d[(2 * h2, 2)], ar, of + h2 * 512) for h2 in range(2)]
        rtok[g] = r[1]
        return r
    pre = [reads(g) for g in range(3)]
    G, C = [], []
    cur = None
    for g in range(NG):
        gaps = [[], [], [], []]; cap = [2, 2, 2, 2]
        if g + 3 < NG:
            if (g + 3) & 3 == 0: gaps[0].append(LateW(dtok, (g + 3) >> 2))
            r = reads(g + 3); gaps[0].append(r[0]); gaps[1].append(r[1]); cap[0] -= 1; cap[1] -= 1
        md, j = (g + 4 * LOOK - 4) >> 2, (g + 4 * LOOK - 4) & 3
        if md >= first_dma:
            if j == 0: cur = dmaf(md)
            if cur is not None:
                if j == 0: gaps[2] += cur[0]
                for it in cur[1][j::4]: gaps[3].append(it); cap[3] -= 1
                if j == 3: dtok[md] = cur[1][3]
        for (gp, it, cost) in extra.get(g, []):
            gaps[gp].append(it); cap[gp] -= cost
        if g + 1 < NG: gaps[3].insert(0, Wait(lg=rtok[g + 1]))
        G.append(gaps); C.append(cap)
    B = {}
    for f in fills:
        idx = [(g, q) for g in range(f.start, f.end) for q in range(4)]
        caps = [max(0, C[g][q]) for g, q in idx]
        W = sum(cost_of(it) for it in f.items); T = sum(caps); n = len(idx)
        acc = 0.0; cum = 0
        for k, key in enumerate(idx):
            if W >= T: acc += caps[k] + (W - T) / n
            elif f.spread: acc += caps[k] * W / T
            else: acc += caps[k]
            B[key] = (f, acc)
    em.wait(vm=dtok[0])
    for r in pre: e(r)
    for p_ in extra.get(-1, []): e(p_[1])
    em.wait(lg0=True)
    used = {id(f): 0 for f in fills}
    for g in range(NG):
        m, u = g >> 2, g & 3
        d = ring[((g % 8) * 4, 4)]
        for qb in range(nq):
            ac, first = accf(m, u, qb)
            e(mfma(ac, d, Bf(m, qb), 0 if first else ac))
            ent = B.get((g, qb))
            sawv = False
            if ent:
                f, lim = ent
                while not f.done() and getattr(f.items[f.i], "kind", "") in ("lds", "vmem", "salu") and used[id(f)] + cost_of(f.items[f.i]) <= lim + 0.5:
                    it = f.items[f.i]; f.i += 1; used[id(f)] += cost_of(it); e(it)
            for it in G[g][qb]: e(it)
            if ent:
                f, lim = ent
                lastgap = (g == f.end - 1 and qb == 3)
                while not f.done():
                    it = f.items[f.i]; c = cost_of(it)
                    if not lastgap:
                        if used[id(f)] + c > lim + 0.5: break
                        if sawv and getattr(it, "kind", "") in ("lds", "vmem"): break
                    f.i += 1; used[id(f)] += c; e(it)
                    if getattr(it, "kind", "") in ("valu", "trans"): sawv = True
    assert all(f.done() for f in fills)
class LateW:
    def __init__(self, d, k): self.d, self.k = d, k
    def __call__(self): return Wait(vm=self.d[self.k])

def s1_acc(m, u, qb):
    h = m & 1
    idx = ((h * 4 + u) * 4 + qb) * 4
    if m < 32: return A(idx, 4), m < 2
    return v_acc[(idx, 4)], m < 34
def s1_B(m, qb): return a_B[(((m >> 1) & 1) * 16 + qb * 4, 4)]
extra = {}
btok = {}
def bread(s, qb): return dsread("ds_read_b128", a_B[((s & 1) * 16 + qb * 4, 4)], v_lin, (qb * 16 + (s % 16)) * 1024)
extra[-1] = [(0, bread(0, qb), 1) for qb in range(4)]
for s in range(1, 32):
    for qb in range(4):
        extra.setdefault(8 * (s - 1) + 1 + qb, []).append((2, bread(s, qb), 1))
gi = 0; gj = 0; pend_s = []
for it in ln_v[lv[0]:]:
    if isinstance(it, list) and all(x.kind == "salu" for x in it): pend_s = it; continue
    if not isinstance(it, list) and it.kind == "dma":
        assert gi < 12
        extra.setdefault(gi // 3, []).append((gi % 3, [pend_s, it] if pend_s else it, 1)); pend_s = []
        gi += 1
    else:
        extra.setdefault(8 + 2 * gj, []).append((1, it, 1)); gj += 1
C0 = -2.0 * math.sqrt(2.0 / math.pi) * math.log2(math.e); C1 = C0 * 0.044715
vc0, vc1 = V(40), V(41)
gel = [valu("v_mov_b32", vc0, hx(f2u(C0))), valu("v_mov_b32", vc1, hx(f2u(C1)))]
hst = []
tb = 0
for i in range(2):
    for qb in range(4):
        pk = V(96 + 4 * tb, 4); tb += 1
        for b in range(2):
            u = 2 * i + b
            T = [V(64 + 16 * b + k) for k in range(16)]
            G_, U_, X_ = T[0:4], T[4:8], T[8:12]
            ga = lambda r: A((u * 4 + qb) * 4 + r); ua = lambda r: A(((4 + u) * 4 + qb) * 4 + r)
            for r in range(4): gel.append(valu("v_accvgpr_read_b32", G_[r], ga(r)))
            for r in range(4): gel.append(valu("v_accvgpr_read_b32", U_[r], ua(r)))
            for r in range(4): gel.append(valu("v_mul_f32", X_[r], G_[r], G_[r]))
            for r in range(4): gel.append(valu("v_fma_f32", X_[r], X_[r], vc1, vc0))
            for r in range(4): gel.append(valu("v_mul_f32", X_[r], X_[r], G_[r]))
            for r in range(4): gel.append(valu("v_exp_f32", X_[r], X_[r]))
            for r in range(4): gel.append(valu("v_mul_f32", G_[r], G_[r], U_[r]))
            for r in range(4): gel.append(valu("v_add_f32", X_[r], "1.0", X_[r]))
            for r in range(4): gel.append(valu("v_rcp_f32", X_[r], X_[r]))
            gel.append(nop(0))
            for r in range(4): gel.append(valu("v_mul_f32", G_[r], G_[r], X_[r]))
            for k in range(2): gel.append(valu("v_cvt_pk_bf16_f32", pk[2 * b + k], G_[2 * k], G_[2 * k + 1]))
        st = bstore(pk, v_lin, S_H, s_h1 if i else s_h0, off=qb * 1024, mod="sc1")
        hst.append(st)
class Stamp:
    def __call__(self): stamp(); return []
if STAMP: extra.setdefault(128, []).append((0, Stamp(), 0))
class Grp:
    kind = "salu"
    def __init__(self, l): self.l = l
    def __call__(self):
        for x in self.l:
            if x.kind == "label": em.out.append(x)
            else: e(x)
        return []
def group_scc(items):
    out = []
    for it in items:
        if out and ("scc" in it.rd or it.kind == "label"):
            p = out.pop(); out.append(Grp((p.l if isinstance(p, Grp) else [p]) + [it]))
        else: out.append(it)
    return out
s_pf = [S(24, 2), S(26, 2), S(28, 2), S(30, 2)]
s_pfH = s_pair2
s_fo = S(3)
QS = math.log2(math.e) / math.sqrt(128.0)
vqs = V(42, 2); vqw = V(44)
save = em.out; em.out = []; spend = em.pend; em.pend = {}
for it in range(3):
    e(salu("s_add_u32", s_t0, s_w, 4 * it))
    e(salu("s_sub_u32", s_t1, s_t0, 2)); e(salu("s_min_u32", s_t1, s_t1, 6)); e(salu("s_lshl_b32", s_t1, s_t1, 13))
    e(salu("s_mul_i32", s_t2, s_qb, 57344, scc_w=False)); e(salu("s_add_u32", s_t1, s_t1, s_t2))
    e(salu("s_add_u32", s_pf[it][0], S_WD[0], s_t1)); e(salu("s_addc_u32", s_pf[it][1], S_WD[1], 0, scc_r=True))
    if it == 0:
        e(salu("s_lshl_b32", s_t1, s_qb, 14)); e(salu("s_lshl_b32", s_t2, s_w, 13)); e(salu("s_add_u32", s_t1, s_t1, s_t2))
        e(salu("s_add_u32", s_pf[1][0], S_WO[0], s_t1)); e(salu("s_addc_u32", s_pf[1][1], S_WO[1], 0, scc_r=True))
        e(scmp("s_cmp_lt_u32", s_w, 2)); e(salu("s_cselect_b64", s_pf[0], s_pf[1], s_pf[0], scc_w=False, scc_r=True))
e(raw("s_getpc_b64 %s" % s_pf[3], "salu", wr=[s_pf[3]]))
em.label("L_pc1")
e(salu("s_lshl_b32", s_t0, s_w, 13)); e(salu("s_add_u32", s_t0, s_t0, "L_tail-L_pc1")); e(salu("s_min_u32", s_t0, s_t0, "L_code_end-L_pc1-8192"))
e(salu("s_add_u32", s_t1, s_t0, 3 * 8192)); e(salu("s_min_u32", s_t1, s_t1, "L_code_end-L_pc1-8192"))
e(salu("s_add_u32", s_pfH[0], s_pf[3][0], s_t1)); e(salu("s_addc_u32", s_pfH[1], s_pf[3][1], 0, scc_r=True))
e(scmp("s_cmp_eq_u32", s_w, 0)); e(salu("s_cselect_b64", s_pf[2], s_pf[2], s_pfH, scc_w=False, scc_r=True))
e(salu("s_add_u32", s_pf[3][0], s_pf[3][0], s_t0)); e(salu("s_addc_u32", s_pf[3][1], s_pf[3][1], 0, scc_r=True))
e(salu("s_lshl_b32", s_t0, s_cg, 2)); e(salu("s_add_u32", s_t0, s_t0, s_w)); e(salu("s_mul_i32", s_t0, s_t0, 7168, scc_w=False)); e(salu("s_min_u32", s_t0, s_t0, 229376 - 8192))
e(salu("s_add_u32", s_pfH[0], S_HC[0], s_t0)); e(salu("s_addc_u32", s_pfH[1], S_HC[1], 0, scc_r=True))
e(salu("s_lshl_b32", s_fo, s_cq, 3))
vx, vy, vz = V(45), V(46), V(47)
e(salu("s_lshl_b32", s_t1, s_w, 8))
dma_voffs(v_dA, 1024, s_t1, True)
e(salu("s_mul_i32", s_wdd, s_w, 448 * 1024 - 256, scc_w=False)); e(salu("s_lshl_b32", s_t3, s_cg, 7)); e(salu("s_add_u32", s_wdd, s_wdd, s_t3))
e(valu("v_mov_b32", vqs[0], hx(f2u(QS))))
e(valu("v_and_b32", vx, 15, v_lane)); e(valu("v_bfe_u32", vqw, v_lane, 5, 1)); e(valu("v_lshl_add_u32", vx, vqw, 4, vx)); e(valu("v_lshlrev_b32", vx, 4, vx))
e(valu("v_bfe_u32", vqw, v_lane, 4, 1)); e(valu("v_lshl_add_u32", vqw, vqw, 3, vx))
e(salu("s_lshl_b32", s_t1, s_w, 14)); e(valu("v_add_u32", vqw, s_t1, vqw))
midset = group_scc(em.out); em.out = save; em.pend = spend
HST = int(os.environ.get("HST", "0"))
if HST == 0: GEL_END = 254
for k in range(8):
    if HST: extra.setdefault(248 + k, []).append((0, hst[k], 1))
run_stream(64, s1_dma, dtok, s1_acc, s1_B, extra, [Fill(midset, 109, 130), Fill(gel, 131, GEL_END)])
if DUMP == "qacc": dump_regs([v_acc[i] for i in range(128)])
stamp()

em.wait(lg0=True)
e(raw("s_barrier"))
def signal(off_s_expr_add, lab, v_t):
    e(scmp("s_cmp_lg_u32", s_w, 0)); e(raw("s_cbranch_scc1 %s" % lab, rd=["scc"]))
    e(salu("s_lshl_b32", s_t0, s_qb, 2))
    if off_s_expr_add: e(salu("s_add_u32", s_t0, s_t0, off_s_expr_add))
    e(valu("v_mov_b32", v_t, 1))
    e(raw("s_mov_b64 exec, 1", "salu", wr=["exec"]))
    e(raw("buffer_atomic_add %s, off, %s, %s sc1" % (v_t, S_DBG, s_t0)))
    e(raw("s_mov_b64 exec, -1", "salu", wr=["exec"]))
    em.label(lab)
for blk in range(8):
    for qb in range(4):
        a_ = v_acc[((blk * 4 + qb) * 4, 4)]
        t = V(64 + 2 * ((blk * 4 + qb) % 8), 2)
        for k in range(2): e(valu("v_pk_mul_f32", a_[(2 * k, 2)], a_[(2 * k, 2)], vqs, mod="op_sel_hi:[1,0]"))
        for k in range(2): e(valu("v_cvt_pk_bf16_f32", t[k], a_[2 * k], a_[2 * k + 1]))
        if len(em.lgq) >= 7: em.wait(lg=em.lgq[-7])
        e(dswrite("ds_write_b64", vqw, t, (qb * 4 + (blk >> 1)) * 1024 + (blk & 1) * 512))
for j in range(4): e(valu("v_add_u32", v_dB[j], s_wdd, v_dA[j]))
em.wait(lg0=True)
for f in range(16): e(dsread("ds_read_b128", a_Q[(4 * f, 4)], v_wl, f * 1024))
em.label("L_att_start")
NZ0 = 32
for i in range(NZ0): e(valu("v_mov_b64", v_acc[(2 * i, 2)], 0))
if LSUM:
    for i in range(16): e(valu("v_accvgpr_write_b32", a_L[i], 0))
    e(valu("v_mov_b32", V(40), "0x3f803f80"))
    if LSUM == 2:
        e(valu("v_and_b32", V(41), 15, v_lane)); e(valu("v_cmp_eq_u32", "vcc", 0, V(41))); e(nop(1)); e(valu("v_cndmask_b32", V(40), 0, V(40), "vcc"))
    for i in range(4): e(valu("v_accvgpr_write_b32", a_ones[i], V(40)))
else:
    for i in range(4): e(valu("v_mov_b32", v_l0[i], 0)); e(valu("v_mov_b32", v_l1[i], 0))
e(valu("v_lshlrev_b32", V(3), 7, v_lane))
e(valu("v_and_b32", V(38), 7, v_lane)); e(valu("v_mov_b32", V(0), 0))
em.wait(vm=dtok[66], lg0=True)
e(raw("s_barrier"))
if DUMP == "q": dump_regs([a_Q[i] for i in range(64)])
stamp()

def Qf(qb, ds): return a_Q[((qb * 4 + ds) * 4, 4)]
def Of(db, qb): return v_acc[((db * 4 + qb) * 4, 4)]
def fr(f): return a_ring[((f % 8) * 4, 4)]
def kslot(par): return 16384 if par == 0 else 0
def vslot(par): return 0 if par == 0 else 16384
def frag_reads(par, f):
    if f >= 32: par ^= 1; f -= 32
    d = fr(f)
    if f < 8 or 16 <= f < 24:
        kb = (f >> 2) if f < 8 else 2 + ((f - 16) >> 2)
        return [dsread("ds_read_b128", d, v_ka[f & 3], kslot(par) + kb * 4096)]
    ks2 = 0 if f < 16 else 1
    db = f & 7
    return [dsread("ds_read_b64_tr_b16", d[(2 * h, 2)], v_va[db], vslot(par) + ks2 * 8192 + h * 4096) for h in range(2)]
def read_sched(g):
    r = []
    if g + 3 < 24 or g >= 29: r.append(g + 3)
    if 19 <= g <= 26: r.append(g + 5)
    return r
def sm_val(g, k):
    if 7 <= g <= 22: b = 1; n = 2 * (g - 7) + k
    else: b = 0; n = 2 * ((g - 23) % 32) + k
    kb, qb, r = n >> 4, (n >> 2) & 3, n & 3
    return b, qb, kb, r
def sm_items(g):
    ex, ad = [], []
    for k in range(2):
        b, qb, kb, r = sm_val(g, k)
        x = v_S[b][qb * 8 + kb * 4 + r]
        l = (v_l1 if b else v_l0)[qb]
        ex.append(valu("v_exp_f32", x, x)); ad.append(valu("v_add_f32", l, l, x))
    b, qb, kb, r = sm_val((g - 1) % 32, 0)
    cv = valu("v_cvt_pk_bf16_f32", v_S[b][qb * 8 + kb * 2 + (r >> 1)], v_S[b][qb * 8 + kb * 4 + r], v_S[b][qb * 8 + kb * 4 + r + 1])
    return ex, ad, cv
def att_dma(par, g):
    if g >= 29: k = g - 29; sp = par
    elif g <= 4: k = g + 3; sp = par ^ 1
    else: return [], None
    sal = []
    if k == 0: sal = [salu("s_add_u32", "m0", s_m0b, 4 * 16384 + kslot(sp))]
    if k == 4: sal = [salu("s_add_u32", "m0", s_m0b, vslot(sp))]
    if k < 4: return sal, dma(v_kd[k], S_K, s_kK, k * 1024)
    return sal, dma(v_vd[k & 1], S_V, s_kV, (k - 4) * 1024)
SIDE_FIRST = 11
class Lbl:
    def __init__(self, n): self.n = n
    def __call__(self): em.label(self.n); return []
class LoopStamp:
    def __init__(self, k, par): self.k, self.par = k, par
    def __call__(self):
        k = self.k
        e(raw("s_memtime %s" % S(68 + 2 * k, 2), "other", wr=[S(68 + 2 * k, 2)]))
        if k == 2:
            e(raw("s_waitcnt lgkmcnt(0)", "wait")); em._retire(em.lgq, 0)
            for i in range(3): e(valu("v_writelane_b32", v_c, S(68 + 2 * i), i, rmw=True))
            e(salu("s_lshl_b32", S(74), S(2), 2)); e(salu("s_add_u32", S(74), S(74), s_w)); e(salu("s_lshl_b32", S(74), S(74), 4))
            e(salu("s_sub_u32", S(74), S(74), s_cnt)); e(salu("s_add_u32", S(74), S(74), 16)); e(salu("s_lshl_b32", S(74), S(74), 5))
            e(salu("s_add_u32", S(74), S(74), (1 << 20) + 16 * self.par))
            e(raw("s_mov_b64 exec, 7", "salu", wr=["exec"]))
            e(valu("v_lshlrev_b32", v_t, 2, v_lane))
            e(bstore(v_c, v_t, S_DMP, S(74), off=0))
            e(raw("s_mov_b64 exec, -1", "salu", wr=["exec"]))
            e(valu("v_lshlrev_b32", v_t, 7, v_lane))
        return []
v_tch, v_flag, v_fa = V(3), V(0), V(38)
xtok = []; lastdma = [None]
NITER = 14
s_pfc = S(16, 2); s_kvt = S(18, 2); KVIT = int(os.environ.get('KVIT', '12'))
ROT = int(os.environ.get('ROT', '8'))
ftok = {}
def att_group(par, g, do_mfma=True, do_mem=True, do_cvt=True, last=False, pp=None, xmem=(), xsal=(), xvalu=None):
    ex, ad, cv = sm_items(g)
    mem = []
    sal = []
    fin = (pp == 3)
    d = None
    if do_mem:
        if fin: sched = ([g + 3] if g + 3 < 16 else []) + ([g + 11] if 13 <= g <= 20 else [])
        else: sched = read_sched(g)
        for f in sched:
            r = frag_reads(par, f); mem += r; ftok[f % 32] = r
        if pp is None or (g <= 4 and pp <= 2) or (g >= 29 and pp <= 1):
            sal, d = att_dma(par, g)
            if d is not None: mem.append(d)
    loop = do_mem and pp is None
    post0 = []
    if loop and par == 0:
        if g == 14: mem.append(I("global_load_dword %s, %s, %s" % (v_c, v_tch, s_pfc), "vmem", rd=v_tch.regs() + s_pfc.regs(), wr=[]))
        if g == 13: mem.append(I("buffer_load_ubyte %s, %s, %s, %s offen sc1" % (v_flag, v_fa, S_DBG, s_t2), "vmem", rd=S_DBG.regs() + s_t2.regs() + v_fa.regs(), wr=[]))
        if g == 8: sal = sal + [scmp("s_cmp_le_u32", s_cnt, ROT)]
        if g in (9, 10, 11, 12):
            q_ = [s_pfc] + s_pf
            sal = sal + [salu("s_cselect_b64", q_[g - 9], q_[g - 8], q_[g - 9], scc_w=False, scc_r=True)]
        if g == 0: post0 = [valu("v_cmp_eq_u32", "vcc", 1, v_flag)]
        if g == 2: sal = sal + [raw("s_cmp_eq_u32 vcc_lo, -1", "salu", rd=["vcc"], wr=["scc"])]
        if g == 3: sal = sal + [salu("s_cselect_b32", s_t0, s_cnt, -1, scc_w=False, scc_r=True)]
        if g == 4: sal = sal + [scmp("s_cmp_eq_u32", s_t0, ROT - 1)]
        if g == 5: sal = sal + [salu("s_cselect_b64", s_pf[3], s_pfH, s_pf[3], scc_w=False, scc_r=True)]
        if g == 15: sal = sal + [salu("s_cselect_b64", s_pf[3], S_K[(0, 2)], s_pf[3], scc_w=False, scc_r=True)]
        if g == 20: sal = sal + [scmp("s_cmp_eq_u32", s_cnt, KVIT + 1)]
        if g == 21: sal = sal + [salu("s_cselect_b64", s_pfc, s_kvt, S_K[(0, 2)], scc_w=False, scc_r=True)]
        if g == 13: sal = sal + [salu("s_cselect_b32", s_t2, s_fo, 256, scc_w=False, scc_r=True)]
        if g == 18: sal = sal + [scmp("s_cmp_eq_u32", s_cnt, s_sig)]
        if g == 19: sal = sal + [raw("s_cbranch_scc1 L_sigH_side", rd=["scc"]), Lbl("L_sigH_ret")]
    if do_mem and g == 4 and d is not None: lastdma[0] = d
    mem += list(xmem); sal = sal + list(xsal)
    gaps = [[], [], [], []]
    if g == 29 and do_mem and not fin:
        if STAMP == 2 and loop and do_mfma: gaps[0] += [LoopStamp(0, par)]
        gaps[0] += [Wait(lg0=True) if not do_mfma else (Wait(lg0=True, vm0=True) if (pp is None and par == 1) else Wait(lg0=True, vm=lastdma[0]))]
        if STAMP == 2 and loop and do_mfma: gaps[0] += [LoopStamp(1, par)]
        gaps[0] += [raw("s_barrier")]
        if STAMP == 2 and loop and do_mfma: gaps[0] += [LoopStamp(2, par)]
    gaps[0] += sal
    if g == 6 and do_mem and (pp is None or pp <= 1): gaps[0].append(salu("s_add_u32", s_kK, s_kK, 16384))
    if g == 7 and do_mem and (pp is None or pp <= 1): gaps[0].append(salu("s_add_u32", s_kV, s_kV, 16384))
    sm = not (fin and g >= 23)
    if fin and g > 23: do_cvt = False
    if fin and 16 <= g < 24: do_mfma = False
    if LSUM:
        if sm: gaps[0].append(ex[0])
        gaps[1] += mem[0:2] if len(mem) > 2 else mem[0:1]
        gaps[1] += post0
        nf = (g + 1) % 32
        if do_mem and not (fin and (16 <= nf < 24 or nf == 0)): gaps[2].append(Wait(lg=ftok.get(nf)))
        if last and g == 30: gaps[2].append(salu("s_sub_u32", s_cnt, s_cnt, 1))
        if sm: gaps[2].append(ex[1])
        gaps[3] += mem[2:] if len(mem) > 2 else mem[1:]
        if do_cvt: gaps[1 if len(gaps[1]) < 2 else 3].append(cv)
    else:
      gaps[0] += mem[2:3]
      if sm: gaps[0].append(ex[0])
      if len(mem) > 0: gaps[1].append(mem[0])
      if len(mem) == 0 and do_cvt: gaps[1].append(cv)
      if sm: gaps[1].append(ad[0])
      gaps[1] += post0
      nf = (g + 1) % 32
      if do_mem and not (fin and (16 <= nf < 24 or nf == 0)): gaps[2].append(Wait(lg=ftok.get(nf)))
      if last and g == 30: gaps[2].append(salu("s_sub_u32", s_cnt, s_cnt, 1))
      gaps[2] += mem[3:]
      if sm: gaps[2].append(ex[1])
      if len(mem) > 1: gaps[3].append(mem[1])
      if len(mem) > 0 and do_cvt: gaps[3].append(cv)
      if sm: gaps[3].append(ad[1])
    for qb in range(4):
        if do_mfma:
            if g < 8 or 16 <= g < 24:
                b = 1 if g < 8 else 0
                kb, ds = (g >> 2) & 1, g & 3
                d = v_S[b][(qb * 8 + kb * 4, 4)]
                e(mfma(d, fr(g), Qf(qb, ds), v_negm[(qb * 4, 4)] if ds == 0 else d))
            else:
                b = 0 if g < 16 else 1
                e(mfma(Of(g & 7, qb), fr(g), v_S[b][(qb * 8, 4)], Of(g & 7, qb)))
        else:
            if (qb & 1) and not gaps[qb][:1] or ((qb & 1) and getattr(gaps[qb][0], "kind", "") in ("valu",)): e(nop(0))
        for it in gaps[qb]: e(it)
        if xvalu is not None:
            c = 2 - sum(1 for it in gaps[qb] if getattr(it, "kind", "") in ("lds", "vmem", "dma", "valu"))
            while xvalu and c > 0:
                it = xvalu.pop(0); e(it); c -= 2 if it.kind == "trans" else 1
    if LSUM and do_mfma and (g & 8):
        k = g & 7
        lq = (k if k < 4 else None) if (fin and g >= 24) else (k >> 1 if k & 1 else None)
        if lq is not None: e(mfma(a_L[(4 * lq, 4)], a_ones, v_S[0 if g < 16 else 1][(lq * 8, 4)], a_L[(4 * lq, 4)]))

pr = [dsread("ds_read_b128", fr(f), v_ka[f & 3], (f >> 2) * 4096) for f in range(8)]
for r in pr: e(r)
e(scmp("s_cmp_lg_u32", s_retry, 0)); e(raw("s_cbranch_scc1 L_have_max", rd=["scc"]))
for i in range(16): e(valu("v_mov_b32", v_negm[i], 0))
em.label("L_have_max")
zr = [valu("v_mov_b32", v_acc[i], 0) for i in range(2 * NZ0, 128)]
for f in range(8):
    em.wait(lg=pr[f])
    for qb in range(4):
        d = v_S[0][(qb * 8 + (f >> 2) * 4, 4)]
        e(mfma(d, fr(f), Qf(qb, f & 3), v_negm[(qb * 4, 4)] if (f & 3) == 0 else d))
        if qb == 0 and HST == 0: e(hst[f])
        for _ in range(2):
            if zr: e(zr.pop(0))
assert not zr
e(salu("s_mov_b32", s_kK, 16384 + 8192, scc_w=False)); e(salu("s_mov_b32", s_kV, 16384, scc_w=False)); e(salu("s_mov_b32", s_cnt, NITER, scc_w=False))
e(scmp("s_cmp_lg_u32", s_retry, 0)); e(raw("s_cbranch_scc1 L_have_max2", rd=["scc"]))
e(nop(3))
mx = [V(97 + 4 * i) for i in range(4)]; mt = [V(98 + 4 * i) for i in range(4)]
for qb in range(4): e(valu("v_max3_f32", mx[qb], v_S[0][qb * 8], v_S[0][qb * 8 + 1], v_S[0][qb * 8 + 2]))
for qb in range(4): e(valu("v_max3_f32", mx[qb], mx[qb], v_S[0][qb * 8 + 3], v_S[0][qb * 8 + 4]))
for qb in range(4): e(valu("v_max3_f32", mx[qb], mx[qb], v_S[0][qb * 8 + 5], v_S[0][qb * 8 + 6]))
for qb in range(4): e(valu("v_max_f32", mx[qb], mx[qb], v_S[0][qb * 8 + 7]))
red4("v_max_f32", mx, mt)
for qb in range(4):
    for k in range(4): e(valu("v_sub_f32", v_negm[qb * 4 + k], 0, mx[qb]))
for qb in range(4):
    for k in range(8): e(valu("v_sub_f32", v_S[0][qb * 8 + k], v_S[0][qb * 8 + k], mx[qb]))
em.label("L_have_max2")
e(nop(7))
for g in range(23, 29): att_group(1, g, do_mfma=False, do_mem=False, do_cvt=(g != 23))
stamp(); diag()
e(salu("s_and_b32", s_t0, s_qb, 3)); e(salu("s_sub_u32", s_t0, NITER - 1, s_t0))
e(scmp("s_cmp_eq_u32", s_w, 0)); e(salu("s_cselect_b32", s_sig, s_t0, -1, scc_w=False, scc_r=True))
e(scmp("s_cmp_eq_u32", s_retry, 0)); e(salu("s_cselect_b32", s_sig, s_sig, -1, scc_w=False, scc_r=True))
e(salu("s_mov_b64", s_pfc, S_K[(0, 2)], scc_w=False))
e(scmp("s_cmp_lt_u32", s_w, 2)); e(salu("s_cselect_b64", s_kvt, S_K[(0, 2)], S_V[(0, 2)], scc_w=False, scc_r=True))
e(salu("s_and_b32", s_t0, s_w, 1)); e(salu("s_lshl_b32", s_t1, s_qb, 1)); e(salu("s_add_u32", s_t0, s_t0, s_t1)); e(salu("s_lshl_b32", s_t0, s_t0, 13))
e(salu("s_add_u32", s_kvt[0], s_kvt[0], s_t0)); e(salu("s_addc_u32", s_kvt[1], s_kvt[1], 0, scc_r=True))
for g in range(29, 32): att_group(1, g, do_mfma=False, do_mem=True)
pro_end = len(em.out)
em.directive(".p2align 6")
em.label("L_att_loop")
def body():
    for par in range(2):
        for g in range(32): att_group(par, g, last=(par == 1))
b0 = len(em.out)
body()
b1 = len(em.out)
e(scmp("s_cmp_lg_u32", s_cnt, 0)); e(raw("s_cbranch_scc1 L_att_loop", rd=["scc"]))
b2 = len(em.out)
body()
second = em.out[b2:]; del em.out[b2:]
assert [i.text for i in second] == [i.text for i in em.out[b0:b1]], "loop not in steady state"
loop_probs = check_hazards(em.out[b1 - 40:b2] + second[:60], "loop-wrap")

em.label("L_tail")
v_ring2 = V(64, 32); v_B2 = V(96, 32)
NF1 = 8
def hreg(kk, qb):
    if kk >= NF1: kk -= NF1
    return A((64 + 16 * kk if kk < 4 else 160 + 16 * (kk - 4)) + qb * 4, 4)
def Facc(u, qb):
    t = u * 4 + qb
    return A(128 + 4 * t if t < 8 else 224 + 4 * (t - 8), 4)
POS2 = [5, 0, 2, 3, 4, 1]
NB = int(os.environ.get("NB", "4"))
def pos2(m): return 6 + m if m < NB else POS2[(m - NB) % 6]
def kind2(m):
    if m < NF1: return ("F", m)
    if m < NF1 + 32: return ("O", (m - NF1) >> 1, (m - NF1) & 1)
    return ("F", m - 32)
def s2_dma(m):
    if m >= 46: return None
    p = pos2(m); k = kind2(m)
    if k[0] == "O":
        return [m0set(p), salu("s_mov_b32", s_off, k[1] * 32 * 1024 + 128 * k[2], scc_w=False)], [dma(v_dA[j], S_WO, s_off, j * 1024) for j in range(4)]
    return [m0set(p), salu("s_mov_b32", s_off, k[1] * 32 * 1024, scc_w=False)], [dma(v_dB[j], S_WD, s_off, j * 1024) for j in range(4)]
dtok2 = {}; s2pre = {}
for m in range(6 + NB):
    s2pre[m] = s2_dma(m); dtok2[m] = s2pre[m][1][3]
class Seq:
    kind = "vmem"
    def __init__(self, l): self.l = l
    def __call__(self): return self.l
hld = {}; htok = {}
for kk in range(14):
    hld[kk] = [bload(hreg(kk, qb), v_lin, S_HC, s_hl, off=qb * 1024, mod="sc1") for qb in range(4)]
    htok[kk] = hld[kk][3]
e(salu("s_mov_b32", s_cnt, 0, scc_w=False))
em.label("L_pollH")
e(valu("v_cmp_ne_u32", "vcc", 1, v_flag)); e(salu("s_mul_i32", s_hb, s_w, 14 * 4096, scc_w=False)); e(nop(1))
e(raw("s_cbranch_vccz L_pollH_done", rd=["vcc"]))
e(salu("s_add_u32", s_cnt, s_cnt, 1)); e(scmp("s_cmp_ge_u32", s_cnt, 50000)); e(raw("s_cbranch_scc1 L_pollH_done", rd=["scc"]))
e(raw("s_sleep 4")); e(raw("buffer_load_ubyte %s, %s, %s, %s offen sc1" % (v_flag, v_fa, S_DBG, s_fo))); e(raw("s_waitcnt vmcnt(0)")); e(raw("s_branch L_pollH"))
em.label("L_pollH_done")
NH0 = 4 * NF1
hsl = sorted([(pp, g) for pp in range(3) for g in (5, 13, 14, 15, 16, 17, 18, 27, 28, 9, 11)])[:NH0]
px = {}
for k, key in enumerate(hsl):
    px.setdefault(key, ([], []))
    px[key][0].append(hld[k >> 2][k & 3])
    if k & 3 == 0: px[key][1].append(salu("s_add_u32", s_hl, s_hb, (k >> 2) * 4096))
wsl = [(pp, g) for pp in range(2) for g in (6, 7, 8, 10, 12, 21, 22, 23)][:4 * NB] + [(2, 29), (2, 30), (2, 31), (3, 0), (3, 1), (3, 2), (3, 3), (3, 4)] + [(3, g) for g in range(5, 13)] + [(3, g) for g in range(24, 32)]
for k, key in enumerate(wsl):
    px.setdefault(key, ([], []))
    m, j = k >> 2, k & 3
    px[key][0].append(s2pre[m][1][j])
    if j == 0: px[key][1].extend(s2pre[m][0])
px[(3, 24)][1][:0] = [Wait(lg0=True), raw("s_barrier")]
lt = [V(48 + i) for i in range(4)]
rinv = [V(52 + i) for i in range(4)]
vxf = V(40, 8)
save = em.out; em.out = []
if LSUM:
    for qb in range(4): e(valu("v_accvgpr_read_b32", v_l1[qb], a_L[4 * qb]))
    if LSUM == 2: red4("v_add_f32", [v_l1[i] for i in range(4)], lt)
else:
    for qb in range(4): e(valu("v_add_f32", v_l1[qb], v_l1[qb], v_l0[qb]))
    red4("v_add_f32", [v_l1[i] for i in range(4)], lt)
e(valu("v_add_f32", lt[1], v_l1[0], v_l1[1])); e(valu("v_add_f32", lt[2], v_l1[2], v_l1[3])); e(valu("v_add_f32", lt[1], lt[1], lt[2]))
for qb in range(4): e(valu("v_rcp_f32", rinv[qb], v_l1[qb]))
e(valu("v_cmp_nge_f32", "vcc", hx(f2u(2.0 ** 30)), lt[1]))
for k in range(8): e(valu("v_accvgpr_read_b32", vxf[k], a_x[k]))
v_tr2 = V(56, 4); v_ow = V(62)
for u in range(4): e(valu("v_subrev_u32", v_tr2[u], RING, v_tr[0][u]))
e(valu("v_subrev_u32", v_ow, RING, v_lin)); e(valu("v_add_u32", v_ow, s_m0b, v_ow))
lred = em.out; em.out = save
for pp in range(4):
    for g in range(32):
        if STAMP == 4 and g in (0, 16): stamp()
        xm, xs = px.get((pp, g), ([], []))
        att_group(pp & 1, g, pp=pp, xmem=xm, xsal=xs, xvalu=(lred if (pp == 3 and g >= (30 if LSUM else 24)) else None))
for it in lred: e(it)
diag(); stamp()
if DUMP == "o":
    e(nop(7))
    for db in range(8):
        for qb in range(4):
            for k in range(4): e(valu("v_mul_f32", Of(db, qb)[k], Of(db, qb)[k], rinv[qb]))
    dump_regs([v_acc[i] for i in range(128)])

vm_ = V(60); vma = V(61)
class Mark:
    kind = "salu"
    def __init__(self, t): self.t = t
    def __call__(self):
        e(raw("s_cbranch_vccz L_nomark", rd=["vcc"])); e(valu("v_mov_b32", self.t, hx(MARK))); em.label("L_nomark"); return []
norm = [valu("v_and_b32", vma, 3, v_lane), valu("v_lshlrev_b32", vma, 12, vma)]
ow = []; ncv = []
for i in range(4):
    for qb in range(4):
        t = Of(2 * i, qb)
        for b in range(2):
            for k in range(4): norm.append(valu("v_mul_f32", Of(2 * i + b, qb)[k], Of(2 * i + b, qb)[k], rinv[qb]))
        for b in range(2):
            o = Of(2 * i + b, qb)
            for k in range(2): norm.append(valu("v_cvt_pk_bf16_f32", t[2 * b + k], o[2 * k], o[2 * k + 1]))
        ncv.append(norm[-1])
        if i == 0 and qb == 0: norm.append(Mark(t[0]))
        ow.append(dswrite("ds_write_b128", v_ow, t, i * 16384 + qb * 1024))
        if NB == 0: norm.append(ow[-1])
class ChkNorm:
    def __init__(self, k): self.k = k
    def __call__(self):
        assert ncv[self.k].tok, "O write %d scheduled before its data" % self.k
        return ow[self.k]
G0 = 4 * NF1
G1 = G0 + 128
mk = dsread("ds_read_b32", vm_, vma, 0)
class OBar:
    def __call__(self):
        assert all(w.tok for w in ow)
        em.wait(lg0=True); e(raw("s_barrier")); stamp(); e(mk); return []
class FbCheck:
    def __call__(self):
        em.wait(lg=mk)
        e(valu("v_cmp_eq_u32", "vcc", hx(MARK), vm_))
        e(scmp("s_cmp_lg_u32", s_retry, 0)); e(raw("s_cbranch_scc1 L_nofb", rd=["scc"]))
        e(nop(1))
        e(raw("s_cbranch_vccnz L_fallback", rd=["vcc"]))
        em.label("L_nofb")
        return []
def s2_acc(m, u, qb):
    k = kind2(m)
    if k[0] == "O": return v_acc[(((k[2] * 4 + u) * 4 + qb) * 4, 4)], k[1] == 0
    return Facc(u, qb), k[1] == 0
def s2_B(m, qb):
    k = kind2(m)
    if k[0] == "O": return v_B2[((k[1] & 1) * 16 + qb * 4, 4)]
    return hreg(k[1], qb)
def oread(s, qb): return dsread("ds_read_b128", v_B2[((s & 1) * 16 + qb * 4, 4)], v_lin, (s & 3) * 16384 + (s >> 2) * 4096 + qb * 1024)
extra = {}
if NB:
    OW0 = int(os.environ.get("OW0", "11"))
    for k in range(16): extra.setdefault(OW0 + k, []).append((2, ChkNorm(k), 1))
GB = G0 - int(os.environ.get("OBAR", "3"))
extra.setdefault(GB, []).append((0, OBar(), 0))
r0 = [oread(0, qb) for qb in range(4)]
for qb in range(4): extra.setdefault(GB + (qb >> 1), []).append((1 + (qb & 1) if qb < 2 else (qb & 1) * 2, r0[qb], 1))
extra.setdefault(G0 - 1, []).append((2, [Wait(lg=r0), FbCheck()], 0))
for s_ in range(1, 16):
    for qb in range(4): extra.setdefault(G0 + 8 * (s_ - 1) + 1 + qb, []).append((2, oread(s_, qb), 1))
class LateWait:
    def __init__(self, f): self.f = f
    def __call__(self): return Wait(vm=self.f())
vxa = V(48); vpoll = V(49); vfw = V(50)
vx, vy, vz = V(63), V(57), V(58)
save = em.out; em.out = []
xaddr(vxa, vx)
e(valu("v_and_b32", V(51), 7, v_lane)); e(valu("v_lshlrev_b32", V(51), 2, V(51)))
e(valu("v_add_u32", vfw, s_m0b, v_lin)); e(salu("s_lshl_b32", s_t0, s_w, 14)); e(salu("s_add_u32", s_t0, s_t0, RING)); e(valu("v_add_u32", V(55), s_t0, v_lin))
e(salu("s_lshl_b32", s_t3, s_w, 4)); e(salu("s_add_u32", s_t3, s_t3, s_g)); e(salu("s_lshl_b32", s_t3, s_t3, 13))
early = em.out; em.out = save
extra.setdefault(-1, []).append((0, LateWait(lambda: htok[0]), 0))
for kk in range(1, 14):
    g_ = 4 * kk if kk < NF1 else 4 * (kk + 32)
    extra.setdefault(g_ - 1, []).append((2, LateWait(lambda kk=kk: htok[kk]), 0))
HG0 = int(os.environ.get("HG0", "5")); HGS = int(os.environ.get("HGS", "1"))
for k in range(NH0, 56):
    extra.setdefault(HG0 + HGS * (k - NH0), []).append((2, Seq([salu("s_add_u32", s_hl, s_hb, (k >> 2) * 4096), hld[k >> 2][k & 3]]), 1))
def sreg(ip, qb, odd=0): return v_acc[(((2 * ip + odd) * 4 + qb) * 4, 4)]
sp = []; spst = []; stq = []
NSI = int(os.environ.get("NSI", "11"))
s_so = [s_t1, s_cnt, s_h0, s_h1]
for k in range(4): sp.append(salu("s_add_u32", s_so[k], s_t3, (k >> 1) * 65536 + (k & 1) * 4096))
for ip in range(4):
    for qb in range(4):
        t = sreg(ip, qb)
        for b in range(2):
            o = sreg(ip, qb, b)
            for k in range(2): sp.append(valu("v_cvt_pk_bf16_f32", t[2 * b + k], o[2 * k], o[2 * k + 1]))
        st = bstore(t, v_lin, S_SP, s_so[(ip >> 1) * 2 + (qb >> 1)], off=(qb & 1) * 2048 + (ip & 1) * 1024, mod="sc1")
        spst.append((st, sp[-1]))
class St:
    def __init__(self, k): self.k = k
    def __call__(self):
        assert spst[self.k][1].tok
        return spst[self.k][0]
STG = int(os.environ.get("STG", "2"))
for k in range(NSI): extra.setdefault(G1 + 3 + STG * k, []).append((2, St(k), 1))
sti = [NSI]
def st_next(n=1):
    for _ in range(n):
        if sti[0] < 16: e(spst[sti[0]][0]); sti[0] += 1
vpa = V(51)
s_done, s_new, s_sb = s_kK, s_kV, s_fo
def spl(gp, i): return A((gp * 2 + i) * 4, 4)
def flag_load(): return bload(vpoll, vpa, S_FL, s_t2, n=1, mod="sc1")
lblc = [0]
def issue_new():
    k = lblc[0]; lblc[0] += 1
    e(valu("v_cmp_eq_u32", "vcc", 1, vpoll)); e(nop(1))
    e(raw("s_andn2_b32 %s, vcc_lo, %s" % (s_new, s_done), "salu", rd=["vcc", s_done], wr=[s_new, "scc"])); e(salu("s_and_b32", s_new, s_new, 255))
    e(raw("s_cbranch_scc0 L_in%d_end" % k, rd=["scc"]))
    e(salu("s_or_b32", s_done, s_done, s_new))
    for gp in range(8):
        e(scmp("s_bitcmp1_b32", s_new, gp)); e(raw("s_cbranch_scc0 L_in%d_%d" % (k, gp), rd=["scc"]))
        e(salu("s_add_u32", s_t0, s_sb, gp * 8192))
        for i in range(2): e(raw(bload(spl(gp, i), v_lin, S_SPC, s_t0, off=i * 1024, mod="sc1").text))
        em.label("L_in%d_%d" % (k, gp))
    em.label("L_in%d_end" % k)
pinit = [salu("s_lshl_b32", s_t2, s_cq, 7), salu("s_mov_b32", s_done, 0, scc_w=False),
         salu("s_lshl_b32", s_sb, s_cg, 16), salu("s_lshl_b32", s_new, s_w, 11), salu("s_add_u32", s_sb, s_sb, s_new)]
extra.setdefault(G1 - 8, []).append((1, pinit, 0))
class MidPoll:
    def __init__(self, tok): self.tok = tok
    def __call__(self):
        em.wait(vm=self.tok); issue_new()
        e(salu("s_mov_b32", s_hb, s_done, scc_w=False))
        midmark.append(em.vm_total)
        return []
midmark = []
if int(os.environ.get("MID", "1")):
    pt = flag_load()
    extra.setdefault(G1 - int(os.environ.get("MID0", "4")), []).append((2, pt, 1))
    MIDPOST = int(os.environ.get("MIDPOST", "2"))
    if not MIDPOST: extra.setdefault(G1 + int(os.environ.get("MID1", "3")), []).append((0, MidPoll(pt), 0))
    else: extra.setdefault(G1 + 2, []).append((0, Wait(vm=pt), 0))
if STAMP: extra.setdefault(G1, []).append((0, Stamp(), 0))
class Diag:
    def __call__(self): diag(); return []
if DIAG: extra.setdefault(G1, []).append((0, Diag(), 0))
vs = [Fill(norm, 0, GB - (3 if NB else 1)), Fill(early, G0 + 2, G0 + 40), Fill(sp, G1 + 2, G1 + 16)]
run_stream(46, s2_dma, dtok2, s2_acc, s2_B, extra, vs, posf=pos2, ring=v_ring2, first_dma=6 + NB, tr2=v_tr2)
stamp(); diag()
def static_loads():
    e(valu("v_cmp_eq_u32", "vcc", 1, vpoll)); e(nop(1))
    e(raw("s_and_b32 %s, vcc_lo, 255" % s_done, "salu", rd=["vcc"], wr=[s_done, "scc"]))
    for gp in range(8):
        e(salu("s_add_u32", s_t0, s_sb, gp * 8192)); e(scmp("s_bitcmp1_b32", s_done, gp)); e(salu("s_cselect_b32", s_t0, s_t0, 524288, scc_w=False, scc_r=True))
        for i in range(2): e(bload(spl(gp, i), v_lin, S_SPC, s_t0, off=i * 1024, mod="sc1"))
e(nop(5))
for qb in range(4):
    for u in range(4):
        if len(em.lgq) >= 12: em.wait(lg=em.lgq[-12])
        e(dswrite("ds_write_b128", vfw, Facc(u, qb), qb * 16384 + u * 1024))
    if qb & 1: st_next(int(os.environ.get("STW", "1")))
v_fr = V(96, 16); vE = V(64, 16); vs_ = V(80, 16)
for k in range(8): e(valu("v_mov_b64", vs_[(2 * k, 2)], 0))
em.wait(lg0=True)
e(raw("s_barrier"))
def frr(ws_, u): return sreg(ws_, u, 1)
for ws_ in range(4):
    for u in range(4):
        if len(em.lgq) >= 14: em.wait(lg=em.lgq[-14])
        e(dsread("ds_read_b128", frr(ws_, u), V(55), ws_ * 4096 + u * 1024))
st_next()
if MIDPOST:
    st_next(16)
    if MIDPOST == 1: static_loads()
em.wait(lg0=True)
for u in range(4):
    for k in range(2):
        e(valu("v_pk_add_f32", frr(0, u)[(2 * k, 2)], frr(0, u)[(2 * k, 2)], frr(1, u)[(2 * k, 2)]))
        e(valu("v_pk_add_f32", frr(2, u)[(2 * k, 2)], frr(2, u)[(2 * k, 2)], frr(3, u)[(2 * k, 2)]))
for u in range(4):
    for k in range(2): e(valu("v_pk_add_f32", v_fr[(4 * u + 2 * k, 2)], frr(0, u)[(2 * k, 2)], frr(2, u)[(2 * k, 2)]))
for k in range(16): e(valu("v_mul_f32", vE[k], hx(f2u(-math.log2(math.e))), v_fr[k]))
st_next()
for k in range(16): e(valu("v_exp_f32", vE[k], vE[k]))
for k in range(16): e(valu("v_add_f32", vE[k], "1.0", vE[k]))
st_next()
for k in range(16): e(valu("v_rcp_f32", vE[k], vE[k]))
for k in range(16): e(valu("v_mul_f32", v_fr[k], v_fr[k], vE[k]))
for k in range(8):
    e(valu("v_lshlrev_b32", vE[2 * k], 16, vxf[k])); e(valu("v_and_b32", vE[2 * k + 1], "0xffff0000", vxf[k]))
st_next()
stamp()
accn = [0]
def acc_pieces(mask, sprinkle=False):
    n = accn[0]; accn[0] += 1
    for gp in range(8):
        e(scmp("s_bitcmp1_b32", mask, gp)); e(raw("s_cbranch_scc0 L_acc%d_%d" % (n, gp), rd=["scc"]))
        for k2 in range(8): e(valu("v_accvgpr_read_b32", V(120 + k2), spl(gp, k2 >> 2)[k2 & 3]))
        for k in range(8):
            e(valu("v_lshlrev_b32", V(112 + 2 * (k & 3)), 16, V(120 + k))); e(valu("v_and_b32", V(113 + 2 * (k & 3)), "0xffff0000", V(120 + k)))
            e(valu("v_pk_add_f32", vs_[(2 * k, 2)], vs_[(2 * k, 2)], V(112 + 2 * (k & 3), 2)))
        em.label("L_acc%d_%d" % (n, gp))
        if sprinkle and gp & 1: st_next()
if midmark:
    n_y = em.vm_total - midmark[0]
    e(raw("s_waitcnt vmcnt(%d)" % n_y, "wait")); em._retire(em.vmq, n_y)
    acc_pieces(s_hb, sprinkle=True)
st_next(16)
if MIDPOST != 2: e(flag_load())
em.wait(vm=spst[-1][0]); stamp(); e(raw("s_barrier"))
e(scmp("s_cmp_lg_u32", s_w, 0)); e(raw("s_cbranch_scc1 L_sigS", rd=["scc"]))
e(valu("v_mov_b32", v_t, 1))
e(raw("s_mov_b64 exec, 1", "salu", wr=["exec"]))
e(raw("buffer_store_dword %s, off, %s, %s sc1" % (v_t, S_FL, s_myfl)))
e(raw("s_mov_b64 exec, -1", "salu", wr=["exec"]))
em.label("L_sigS")
if MIDPOST == 2: static_loads(); e(flag_load())
s_prev = s_hl
e(salu("s_mov_b32", s_prev, s_done if MIDPOST else 0, scc_w=False)); e(salu("s_mov_b32", s_cnt, 0, scc_w=False))
em.label("L_fin_loop")
em.wait(vm0=True)
issue_new()
e(raw(flag_load().text))
acc_pieces(s_prev)
e(salu("s_mov_b32", s_prev, s_new, scc_w=False))
e(salu("s_add_u32", s_cnt, s_cnt, 1)); e(scmp("s_cmp_ge_u32", s_cnt, 50000)); e(raw("s_cbranch_scc1 L_fin_done", rd=["scc"]))
e(scmp("s_cmp_lg_u32", s_prev, 0)); e(raw("s_cbranch_scc1 L_fin_loop", rd=["scc"]))
e(scmp("s_cmp_lg_u32", s_done, 255)); e(raw("s_cbranch_scc1 L_fin_loop", rd=["scc"]))
em.label("L_fin_done")
if DUMP == "fin": dump_regs([vs_[i] for i in range(16)] + [v_fr[i] for i in range(16)])
for k in range(8): e(valu("v_pk_fma_f32", vE[(2 * k, 2)], vs_[(2 * k, 2)], v_fr[(2 * k, 2)], vE[(2 * k, 2)]))
for k in range(8): e(valu("v_cvt_pk_bf16_f32", vxf[k], vE[2 * k], vE[2 * k + 1]))
for u in range(4): e(bstore(vxf[(2 * u, 2)], vxa, S_OUT, 0, off=32 * u))
stamp(); diag_out()
em.label("L_end")
e(raw("s_endpgm"))
main_end = len(em.out)

em.lgq, em.vmq, em.pend = [], [], {}
em.label("L_sigH_side")
e(salu("s_lshl_b32", s_t1, s_qb, 3)); e(salu("s_add_u32", s_t1, s_t1, s_g))
e(raw("s_mov_b64 exec, 2", "salu", wr=["exec"]))
e(raw("buffer_store_byte %s, off, %s, %s sc1" % (v_fa, S_DBG, s_t1)))
e(raw("s_mov_b64 exec, -1", "salu", wr=["exec"]))
e(raw("s_branch L_sigH_ret"))
em.label("L_fallback")
e(raw("s_waitcnt vmcnt(0) lgkmcnt(0)")); em._retire(em.vmq, 0); em._retire(em.lgq, 0)
for k in range(8): e(valu("v_accvgpr_write_b32", a_x[k], V(40 + k)))
e(salu("s_mov_b32", s_retry, 1, scc_w=False))
e(salu("s_mov_b32", S_H[2], 0, scc_w=False))
e(salu("s_mov_b32", s_kK, 0, scc_w=False))
fm = [V(40 + i) for i in range(4)]
for i in range(4): e(valu("v_mov_b32", fm[i], "0xff800000"))
em.label("L_fb_loop")
e(raw("s_barrier"))
e(salu("s_add_u32", "m0", s_m0b, 4 * 16384)); e(nop(0))
for j in range(4): e(dma(v_kd[j], S_K, s_kK, j * 1024))
em.wait(vm0=True)
e(raw("s_barrier"))
for kb in range(4):
    rr = [e(dsread("ds_read_b128", fr(ds), v_ka[ds], kb * 4096)) for ds in range(4)]
    em.wait(lg0=True)
    for ds in range(4):
        for qb in range(4):
            d = v_S[0][(qb * 4, 4)]
            e(mfma(d, fr(ds), Qf(qb, ds), 0 if ds == 0 else d))
    e(nop(7))
    for qb in range(4):
        e(valu("v_max3_f32", fm[qb], fm[qb], v_S[0][qb * 4], v_S[0][qb * 4 + 1])); e(valu("v_max3_f32", fm[qb], fm[qb], v_S[0][qb * 4 + 2], v_S[0][qb * 4 + 3]))
    e(nop(2))
e(salu("s_add_u32", s_kK, s_kK, 16384)); e(scmp("s_cmp_lt_u32", s_kK, 524288)); e(raw("s_cbranch_scc1 L_fb_loop", rd=["scc"]))
red4("v_max_f32", fm, [V(44 + i) for i in range(4)])
for qb in range(4):
    for k in range(4): e(valu("v_sub_f32", v_negm[qb * 4 + k], 0, fm[qb]))
e(raw("s_barrier"))
for m in (64, 65, 66):
    sa, dm = s1_dma(m); e(sa)
    for d in dm: e(d)
e(raw("s_waitcnt vmcnt(0)"))
e(raw("s_branch L_att_start"))
em.label("L_code_end")
e(raw("s_endpgm"))

probs = check_hazards(em.out, "main") + loop_probs
for p in probs: print("; HAZARD", p, file=sys.stderr)
assert not probs

hdr = open(os.path.join(os.path.dirname(os.path.abspath(__file__)), "header.txt")).read()
print(hdr.rstrip())
print("; @launch grid=(256,1,1) block=(256,1,1) lds=163840")
print('.amdgcn_target "amdgcn-amd-amdhsa--gfx950"\n.text\n.globl %s\n.p2align 8\n.type %s,@function\n%s:' % (KN, KN, KN))
print(em.text())
print('.section .rodata,"a"\n.p2align 6\n.amdhsa_kernel %s' % KN)
print("  .amdhsa_next_free_vgpr 512\n  .amdhsa_next_free_sgpr 102\n  .amdhsa_accum_offset 256\n  .amdhsa_group_segment_fixed_size 0\n  .amdhsa_kernarg_size 96\n  .amdhsa_user_sgpr_count 2\n  .amdhsa_user_sgpr_kernarg_segment_ptr 1\n  .amdhsa_system_sgpr_workgroup_id_x 1\n.end_amdhsa_kernel")
```

```python
import sys, os, math, struct
from asmgen import *

KN = "recurrent_scan__gqa_block_cached__geglu_ffn__prompt_kernel"
DUMP = os.environ.get("DUMP", "")
STAMP = int(os.environ.get("STAMP", "0"))
GEL_END = int(os.environ.get("GEL_END", "247")); GEL_EXTRA = int(os.environ.get("GEL_EXTRA", "360"))

def f2u(x): return struct.unpack("<I", struct.pack("<f", x))[0]
def hx(x): return "0x%x" % (x & 0xffffffff)

S_X, S_K, S_V, S_WQ, S_WO, S_WG, S_WU, S_WD, S_OUT, S_DBG, S_H, S_SP = [S(4 + 4 * i, 4) for i in range(12)]
s_g, s_qb, s_w = S(52), S(53), S(54)
s_t0, s_t1, s_t2, s_t3 = S(55), S(56), S(57), S(58)
s_m0b = S(59)
s_off = S(60)
s_cnt = S(61)
s_kK, s_kV = S(62), S(63)
s_retry = S(64)
s_h0, s_h1 = S(65), S(66)
s_hl = S(67); s_hb = S(78); s_myfl = S(79); s_wdd = S(67); s_sig = S(78)
s_ka = S(68, 16); s_kb = S(84, 8)
s_pair = S(92, 2); s_pair2 = S(94, 2)
S_DMP = S(96, 4)
s_cq, s_cg = S(76), S(77)
S_HC = S(80, 4)
S_SPC = S(84, 4)
S_XC = S(88, 4)
s_st = S(68, 4)

v_tid, v_lane, v_lin, v_t = V(0), V(1), V(2), V(3)
v_tr = [V(4, 4), V(8, 4)]
v_dA, v_dB = V(12, 4), V(16, 4)
v_ka = V(20, 4); v_va = V(24, 8); v_kd = V(32, 4); v_vd = V(36, 2)
v_wl = V(38)
v_c = V(39)
v_l0, v_l1 = V(40, 4), V(44, 4)
v_lsave = V(16, 4)
v_negm = V(48, 16)
v_S = [V(64, 32), V(96, 32)]
v_acc = V(128, 128)
a_ring = A(128, 32)
a_B = A(160, 32)
a_Q = A(0, 64)
a_F = A(0, 64)
a_x = A(248, 8)
LSUM = int(os.environ.get('LSUM', '1'))
a_L = A(224, 16); a_ones = A(240, 4)

RING = 65536
MARK = 0x7fc17fc1
WS_SP = 8 << 20
WS_DUMP = 32 << 20
WS_FL = (7 << 20) + (512 << 10)
S_FL = S(4, 4)

em = Em()
e = em.e

def srd(dst, lo, hi, size, off_s=None):
    if off_s is None:
        e(salu("s_mov_b32", dst[0], lo, scc_w=False)); e(salu("s_mov_b32", dst[1], hi, scc_w=False))
    else:
        e(salu("s_add_u32", dst[0], lo, off_s)); e(salu("s_addc_u32", dst[1], hi, 0, scc_r=True))
    e(salu("s_mov_b32", dst[2], hx(size), scc_w=False)); e(salu("s_mov_b32", dst[3], "0x20000", scc_w=False))

DIAG = int(os.environ.get("DIAG", "0"))
HC_OFF = 128
diag_regs = [S(100, 2), S(70, 2), S(72, 2), S(74, 2), S(96, 2), S(98, 2), S(68, 2)] if DIAG == 1 else [S(100, 2), S(96, 2), S(98, 2), S(94, 2), S(70, 2), S(72, 2), S(74, 2), S(68, 2)]
diag_n = [0]
def diag(which=1, last=False):
    if not DIAG or (which != DIAG and which != 0): return
    k = diag_n[0]; diag_n[0] += 1
    e(raw("%s %s" % ("s_memtime" if (os.environ.get("CYC") and not last) else "s_memrealtime", diag_regs[k]), "other", wr=[diag_regs[k]]))
    if k > 0: e(raw("s_waitcnt lgkmcnt(0)", "wait")); em._retire(em.lgq, 0)
AMP = os.environ.get("AMP")
def diag_out():
    if not DIAG: return
    diag(0, last=True)
    if AMP:
        k = int(AMP); last = diag_regs[diag_n[0] - 1]
        e(salu("s_sub_u32", s_t0, diag_regs[k][0], diag_regs[int(os.environ.get("AMP0", "0"))][0]))
        if os.environ.get("CYC"): e(salu("s_lshr_b32", s_t0, s_t0, 2))
        else: e(salu("s_lshl_b32", s_t0, s_t0, 2))
        em.label("L_amp")
        e(raw("s_memrealtime s[56:57]")); e(raw("s_waitcnt lgkmcnt(0)"))
        e(salu("s_sub_u32", s_t1, s_t1, last[0])); e(scmp("s_cmp_lt_u32", s_t1, s_t0)); e(raw("s_cbranch_scc1 L_amp", rd=["scc"]))
        return
    e(scmp("s_cmp_lg_u32", s_w, 0)); e(raw("s_cbranch_scc1 L_end", rd=["scc"]))
    e(raw("s_mov_b64 exec, 1", "salu", wr=["exec"]))
    e(salu("s_not_b32", s_t0, diag_regs[0][0]))
    for k in range(diag_n[0]):
        e(valu("v_mov_b32", V(4 + k), s_t0 if k == 0 else diag_regs[k][0]))
        e(raw("buffer_atomic_umax %s, off, %s, 0 offset:%d sc1" % (V(4 + k), S_DBG, 4 * k)))
    e(valu("v_mov_b32", V(12), diag_regs[0][0]))
    e(raw("buffer_atomic_umax %s, off, %s, 0 offset:%d sc1" % (V(12), S_DBG, 4 * 9)))
stamp_n = [0]
def stamp():
    if not STAMP: return
    k = stamp_n[0]; stamp_n[0] += 1
    e(raw("s_memtime %s" % S(68, 2), "other", wr=[S(68, 2)]))
    e(raw("s_memrealtime %s" % S(70, 2), "other", wr=[S(70, 2)]))
    e(raw("s_waitcnt lgkmcnt(0)", "wait")); em._retire(em.lgq, 0)
    for i in range(4): e(valu("v_writelane_b32", v_c, S(68 + i), i, rmw=True))
    e(salu("s_lshl_b32", S(72), S(2), 2)); e(salu("s_add_u32", S(72), S(72), s_w)); e(salu("s_lshl_b32", S(72), S(72), 9))
    e(salu("s_mov_b64", S(74, 2), "exec", scc_w=False)); e(raw("s_mov_b64 exec, 15", "salu", wr=["exec"]))
    e(valu("v_lshlrev_b32", v_t, 2, v_lane))
    e(bstore(v_c, v_t, S_DMP, S(72), off=k * 16))
    e(raw("s_mov_b64 exec, %s" % S(74, 2), "salu", wr=["exec"]))
    e(valu("v_lshlrev_b32", v_t, 7, v_lane))

def dump_regs(regs, finish=True):
    em.wait(lg0=True, vm0=True)
    e(nop(7)); e(nop(7))
    n = len(regs)
    e(salu("s_lshl_b32", s_t0, S(2), 2)); e(salu("s_add_u32", s_t0, s_t0, s_w)); e(salu("s_mul_i32", s_t0, s_t0, n * 256, scc_w=False))
    e(valu("v_lshlrev_b32", v_t, 2, v_lane))
    for k, r in enumerate(regs):
        e(bstore(r, v_t, S_DMP, s_t0, off=0))
        e(salu("s_add_u32", s_t0, s_t0, 256))
        if k % 32 == 31: em.wait(vm0=True)
    em.wait(vm0=True)
    if finish: e(raw("s_endpgm"))

def red4(op, x, tmp):
    for sw in ("v_permlane32_swap_b32", "v_permlane16_swap_b32"):
        for a, t in zip(x, tmp): e(valu("v_mov_b32", t, a))
        if len(x) < 3: e(nop(1))
        for a, t in zip(x, tmp): e(valu(sw, a, t))
        for a, t in zip(x, tmp): e(valu(op, a, a, t))

e(scmp("s_cmp_ge_u32", S(2), 256)); e(raw("s_cbranch_scc1 L_end", rd=["scc"]))
diag(0)
i0 = e(I("s_load_dwordx16 %s, s[0:1], 0" % s_ka, "smem", wr=s_ka.regs()))
i1 = e(I("s_load_dwordx8 %s, s[0:1], 64" % s_kb, "smem", wr=s_kb.regs()))
vq, vG, vr, vc_, vx, vy, vz = [V(40 + i) for i in range(7)]
e(raw("s_getpc_b64 %s" % s_pair2, "salu", wr=[s_pair2]))
em.label("L_pc0")
CT0 = int(os.environ.get("CT0", "64"))
if CT0:
    e(valu("v_sub_u32", V(55), 255, v_tid)); e(valu("v_cmp_gt_u32", "vcc", CT0, V(55))); e(valu("v_lshlrev_b32", V(55), 7, V(55))); e(nop(0))
    e(raw("s_and_saveexec_b64 s[4:5], vcc", "salu", wr=["exec"], rd=["vcc"])); e(raw("s_cbranch_execz L_ct0"))
    e(raw("global_load_dword v55, v55, %s" % s_pair2))
    em.label("L_ct0")
    e(raw("s_mov_b64 exec, -1", "salu", wr=["exec"]))
e(salu("s_and_b32", s_g, S(2), 7)); e(salu("s_lshr_b32", s_qb, S(2), 3))
e(valu("v_and_b32", v_lane, 63, v_tid))
e(valu("v_lshrrev_b32", v_t, 6, v_tid))
e(valu("v_lshlrev_b32", v_lin, 4, v_lane))
e(valu("v_readfirstlane_b32", s_w, v_t))
e(valu("v_and_b32", vq, 15, v_lane)); e(valu("v_lshrrev_b32", vG, 4, v_lane))
vxo = V(47)
e(valu("v_lshl_add_u32", vxo, v_t, 4, vq)); e(valu("v_lshlrev_b32", vxo, 10, vxo)); e(valu("v_lshl_add_u32", vxo, vG, 4, vxo))
vwg, vwq, vcw = V(52), V(53), V(54)
e(salu("s_mul_i32", s_t1, s_g, 448, scc_w=False)); e(salu("s_and_b32", s_t1, s_t1, hx(~127)))
e(salu("s_and_b32", s_t2, s_w, 1)); e(salu("s_lshl_b32", s_t3, s_qb, 1)); e(salu("s_add_u32", s_t2, s_t2, s_t3))
e(salu("s_mul_i32", s_t2, s_t2, 8 * 3584, scc_w=False)); e(salu("s_add_u32", s_t1, s_t1, s_t2))
e(valu("v_lshrrev_b32", vx, 2, v_lane)); e(valu("v_mul_u32_u24", vx, 3584, vx)); e(valu("v_and_b32", vz, 3, v_lane)); e(valu("v_lshl_add_u32", vx, vz, 7, vx))
e(valu("v_add_u32", vwg, s_t1, vx))
e(salu("s_lshl_b32", s_t2, s_qb, 2)); e(salu("s_add_u32", s_t2, s_t2, s_w)); e(salu("s_lshl_b32", s_t3, s_t2, 8))
e(valu("v_lshlrev_b32", vcw, 7, v_lane)); e(valu("v_add_u32", vcw, s_t3, vcw))
e(salu("s_lshl_b32", s_t0, s_qb, 16))
em.wait(lg0=True)
diag(2)
srd(S_X, s_ka[0], s_ka[1], 65536, s_t0)
v_xp = V(64, 64)
XFIRST = int(os.environ.get("XFIRST", "12"))
xl = [bload(v_xp[(4 * ks, 4)], vxo, S_X, 0, off=64 * ks) for ks in range(16)]
for ks in range(XFIRST): e(xl[ks])
e(scmp("s_cmp_lt_u32", s_w, 2)); e(salu("s_cselect_b64", s_pair, s_ka[(12, 2)], s_ka[(14, 2)], scc_w=False, scc_r=True))
e(raw("s_mov_b64 exec, 0xffffffff", "salu", wr=["exec"]))
e(I("global_load_dword %s, %s, %s" % (V(48), vwg, s_pair), "vmem", rd=vwg.regs() + s_pair.regs(), wr=V(48).regs()))
e(raw("s_mov_b64 exec, 3", "salu", wr=["exec"]))
e(I("global_load_dword %s, %s, %s" % (V(49), vcw, s_pair2), "vmem", rd=vcw.regs() + s_pair2.regs(), wr=V(49).regs()))
e(raw("s_mov_b64 exec, -1", "salu", wr=["exec"]))
e(salu("s_lshl_b32", s_t2, s_t2, 15)); e(salu("s_lshl_b32", s_t3, s_g, 10)); e(salu("s_add_u32", s_t2, s_t2, s_t3))
e(valu("v_lshrrev_b32", vx, 3, v_lane)); e(valu("v_lshlrev_b32", vx, 13, vx)); e(valu("v_and_b32", vz, 7, v_lane)); e(valu("v_lshl_add_u32", vx, vz, 7, vx))
e(valu("v_add_u32", vwq, s_t2, vx))
e(salu("s_lshr_b32", s_t2, s_qb, 3)); e(salu("s_lshl_b32", s_t3, s_g, 2)); e(salu("s_add_u32", s_t2, s_t2, s_t3))
e(salu("s_lshl_b32", s_t0, s_t2, 16))
srd(S_OUT, s_kb[2], s_kb[3], 65536, s_t0)
e(salu("s_lshl_b32", s_t1, s_g, 19))
srd(S_K, s_ka[2], s_ka[3], 524288, s_t1)
srd(S_V, s_ka[4], s_ka[5], 524288, s_t1)
srd(S_WO, s_ka[8], s_ka[9], 524288, s_t1)
srd(S_WQ, s_ka[6], s_ka[7], 4 << 20)
srd(S_WG, s_ka[12], s_ka[13], 1835008)
srd(S_WU, s_ka[14], s_ka[15], 1835008)
srd(S_WD, s_kb[0], s_kb[1], 1835008)
srd(S_DBG, s_kb[4], s_kb[5], 256)
e(salu("s_mul_i32", s_t1, s_qb, 229376, scc_w=False))
srd(S_H, s_kb[6], s_kb[7], 229376, s_t1)
e(salu("s_lshl_b32", s_t1, s_qb, 19)); e(salu("s_add_u32", s_t1, s_t1, hx(WS_SP)))
srd(S_SP, s_kb[6], s_kb[7], 524288, s_t1)
if DUMP or STAMP:
    e(salu("s_mov_b32", s_t1, hx(WS_DUMP), scc_w=False))
    srd(S_DMP, s_kb[6], s_kb[7], 200 << 20, s_t1)
e(salu("s_mov_b64", s_pair, S(90, 2), scc_w=False))
e(salu("s_lshl_b32", s_t0, s_t2, 16))
srd(S_XC, s_ka[0], s_ka[1], 65536, s_t0)
e(salu("s_mul_i32", s_t1, s_t2, 229376, scc_w=False))
srd(S_HC, s_pair[0], s_pair[1], 229376, s_t1)
e(salu("s_lshl_b32", s_t1, s_t2, 19)); e(salu("s_add_u32", s_t1, s_t1, hx(WS_SP)))
srd(S_SPC, s_pair[0], s_pair[1], 524288, s_t1)
e(salu("s_mov_b32", s_cq, s_t2, scc_w=False)); e(salu("s_and_b32", s_cg, s_qb, 7))
e(salu("s_lshl_b32", s_myfl, s_qb, 2)); e(salu("s_add_u32", s_myfl, s_myfl, s_w)); e(salu("s_lshl_b32", s_myfl, s_myfl, 8))
e(salu("s_lshl_b32", s_t1, s_g, 2)); e(salu("s_add_u32", s_myfl, s_myfl, s_t1))
e(salu("s_lshl_b32", s_m0b, s_w, 12)); e(salu("s_add_u32", s_m0b, s_m0b, RING))
e(salu("s_and_b32", s_t1, s_g, 1)); e(salu("s_lshl_b32", s_t1, s_t1, 2)); e(salu("s_add_u32", s_t1, s_t1, s_w))
e(scmp("s_cmp_eq_u32", s_w, 3)); e(salu("s_cselect_b32", s_t1, 3, s_t1, scc_w=False, scc_r=True))
e(salu("s_lshr_b32", s_t2, s_g, 1)); e(salu("s_mul_i32", s_t2, s_t2, 7, scc_w=False)); e(salu("s_add_u32", s_t1, s_t1, s_t2))
e(salu("s_lshl_b32", s_h0, s_t1, 13)); e(salu("s_add_u32", s_h1, s_h0, 4096))
e(salu("s_lshl_b32", s_t1, s_t1, 7))
e(salu("s_lshl_b32", s_t2, s_g, 2)); e(salu("s_add_u32", s_t2, s_t2, s_w)); e(salu("s_lshl_b32", s_t2, s_t2, 8))

def dma_voffs(dst, stride, colbase_s, perm):
    for j in range(4):
        e(valu("v_bfe_u32", vx, v_lane, 1, 2)); e(valu("v_bfe_u32", vy, v_lane, 4, 1))
        e(valu("v_xor_b32", vx, vx, vy))
        if j & 1: e(valu("v_xor_b32", vx, 2, vx))
        e(valu("v_and_b32", vy, 1, v_lane)); e(valu("v_lshlrev_b32", vy, 4, vy)); e(valu("v_lshl_add_u32", vx, vx, 5, vy))
        if not perm:
            e(valu("v_lshrrev_b32", vy, 3, v_lane)); rowadd = 8 * j
        else:
            e(valu("v_bfe_u32", vy, v_lane, 3, 2)); e(valu("v_bfe_u32", vz, v_lane, 5, 1)); e(valu("v_lshl_add_u32", vy, vz, 4, vy)); rowadd = 4 * j
        e(valu("v_mul_u32_u24", vy, stride, vy))
        e(valu("v_add3_u32", vx, vx, vy, colbase_s))
        e(valu("v_add_u32", dst[j], rowadd * stride - j * 1024, vx))

dma_voffs(v_dA, 3584, s_t1, False)
dma_voffs(v_dB, 8192, s_t2, False)

def m0set(p): return salu("s_add_u32", "m0", s_m0b, p * 16384) if p < 6 else salu("s_sub_u32", "m0", s_m0b, RING - (p - 6) * 16384)
def s1_dma(m):
    p = m % 6
    if m < 32:
        s, h = m >> 1, m & 1
        return [m0set(p), salu("s_mov_b32", s_off, s * 32 * 3584, scc_w=False)], [dma(v_dA[j], S_WU if h else S_WG, s_off, j * 1024) for j in range(4)]
    if m < 64:
        s, h = (m - 32) >> 1, m & 1
        return [m0set(p), salu("s_mov_b32", s_off, s * 32 * 8192 + 128 * h, scc_w=False)], [dma(v_dB[j], S_WQ, s_off, j * 1024) for j in range(4)]
    if m == 64:
        return [m0set(p), salu("s_mov_b32", s_off, 0, scc_w=False)], [dma(v_kd[j], S_K, s_off, j * 1024) for j in range(4)]
    if m == 65:
        return [m0set(p), salu("s_mov_b32", s_off, 8192, scc_w=False)], [dma(v_kd[j], S_K, s_off, j * 1024) for j in range(4)]
    if m == 66:
        return [m0set(p), salu("s_mov_b32", s_off, 0, scc_w=False)], [dma(v_vd[j & 1], S_V, s_off, j * 1024) for j in range(4)]
    return None
dtok = {}
ln_v = []
for m in range(6):
    sa, dm = s1_dma(m)
    ln_v.append(sa); ln_v += dm
    dtok[m] = dm[3]
def xaddr(dst, tmp):
    e(valu("v_and_b32", dst, 15, v_lane)); e(salu("s_lshl_b32", s_t0, s_w, 4)); e(valu("v_add_u32", dst, s_t0, dst)); e(valu("v_lshlrev_b32", dst, 10, dst))
    e(valu("v_lshrrev_b32", tmp, 4, v_lane)); e(valu("v_lshl_add_u32", dst, tmp, 3, dst)); e(salu("s_lshl_b32", s_t0, s_cg, 7)); e(valu("v_add_u32", dst, s_t0, dst))
vxs, vzero = V(50), V(51)
xaddr(vxs, vy)
e(valu("v_mov_b32", vzero, 0))
ln_v += [bload(a_x[(2 * u, 2)], vxs, S_XC, 0, off=32 * u, n=2) for u in range(4)]
e(valu("v_lshlrev_b32", V(39), 7, v_lane))
ln_v.append([raw("s_mov_b64 exec, 3", "salu", wr=["exec"]), bstore(vzero, V(39), S_FL, s_myfl, mod="sc1"), raw("s_mov_b64 exec, -1", "salu", wr=["exec"])])
ln_v.append([raw("s_mov_b64 exec, 0xffffffff", "salu", wr=["exec"]), bload(V(46), vwq, S_WQ, 0, n=1), raw("s_mov_b64 exec, -1", "salu", wr=["exec"])])
LNPRE = int(os.environ.get("LNPRE", "0"))
lv = [0]
def ln_issue(n=1):
    k = 0
    while k < n and lv[0] < len(ln_v):
        it = ln_v[lv[0]]; lv[0] += 1
        e(it)
        if not isinstance(it, list): k += 1
e(valu("v_bfe_u32", vr, v_lane, 2, 2)); e(valu("v_and_b32", vc_, 3, v_lane))
e(valu("v_lshlrev_b32", vx, 10, vG)); e(valu("v_lshl_add_u32", vx, vr, 7, vx)); e(valu("v_lshl_add_u32", vx, vc_, 3, vx)); e(valu("v_add_u32", vx, s_m0b, vx))
e(valu("v_lshrrev_b32", vy, 1, vr)); e(valu("v_and_b32", vz, 1, vG)); e(valu("v_lshl_add_u32", vy, vz, 1, vy))
for u in range(4):
    e(valu("v_xor_b32", vz, u, vy)); e(valu("v_lshl_add_u32", v_tr[0][u], vz, 5, vx)); e(valu("v_add_u32", v_tr[1][u], 3 * 16384, v_tr[0][u]))
e(valu("v_xor_b32", vy, vG, vq))
for ds in range(4):
    e(valu("v_xor_b32", vz, 4 * ds, vy)); e(valu("v_lshlrev_b32", vz, 4, vz)); e(valu("v_lshl_add_u32", vz, vq, 8, vz)); e(valu("v_add_u32", v_ka[ds], RING + 4 * 16384, vz))
e(valu("v_lshl_add_u32", vx, vG, 2, vr)); e(valu("v_and_b32", vy, 7, vx)); e(valu("v_lshlrev_b32", vx, 8, vx)); e(valu("v_lshl_add_u32", vx, vc_, 3, vx)); e(valu("v_add_u32", vx, RING, vx))
for db in range(8):
    e(valu("v_xor_b32", vz, db, vy)); e(valu("v_lshl_add_u32", v_va[db], vz, 5, vx))
e(salu("s_lshl_b32", s_t1, s_w, 12))
e(valu("v_lshlrev_b32", vx, 8, vG)); e(valu("v_add_u32", vx, s_t1, vx))
for j in range(4):
    e(valu("v_add_u32", vy, 4 * j, vG)); e(valu("v_xor_b32", vy, vy, vq)); e(valu("v_lshl_add_u32", v_kd[j], vy, 4, vx))
e(valu("v_and_b32", vz, 1, v_lane)); e(valu("v_lshl_add_u32", vx, vz, 4, vx))
for j in range(2):
    e(valu("v_add_u32", vy, 4 * j, vG)); e(valu("v_lshrrev_b32", vz, 1, vq)); e(valu("v_xor_b32", vy, vy, vz)); e(valu("v_lshl_add_u32", v_vd[j], vy, 5, vx))
e(salu("s_lshl_b32", s_t1, s_w, 14)); e(valu("v_add_u32", v_wl, s_t1, v_lin))
e(salu("s_mov_b32", s_retry, 0, scc_w=False))
for ks in range(XFIRST, 16): e(xl[ks])
e(salu("s_mov_b32", s_t1, hx(WS_FL), scc_w=False))
srd(S_FL, s_pair[0], s_pair[1], 32768, s_t1)
ln_issue(LNPRE)
stamp()

v_f = V(128, 128)
acc = [V(56, 2), V(58, 2), V(60, 2), V(62, 2)]
diag(2)
for ks in range(16):
    em.wait(vm=xl[ks])
    if ks == 15: diag(2)
    for k in range(4):
        p = 4 * ks + k
        e(valu("v_lshlrev_b32", v_f[2 * p], 16, v_xp[p])); e(valu("v_and_b32", v_f[2 * p + 1], "0xffff0000", v_xp[p]))
    for k in range(4):
        p = 4 * ks + k
        if ks == 0: e(valu("v_mov_b64", acc[k], v_f[(2 * p, 2)]))
        else: e(valu("v_pk_add_f32", acc[k], acc[k], v_f[(2 * p, 2)]))
if STAMP == 3: stamp()
ln_issue(int(os.environ.get("LN_FIRST", "12")))
diag(2)
if STAMP == 3: stamp()
e(valu("v_pk_add_f32", acc[0], acc[0], acc[1])); e(valu("v_pk_add_f32", acc[2], acc[2], acc[3])); e(valu("v_pk_add_f32", acc[0], acc[0], acc[2]))
vsum, vtmp, vmb, vdm = V(40), V(41), V(42), V(43)
e(valu("v_add_f32", vsum, acc[0][0], acc[0][1]))
red4("v_add_f32", [vsum], [vtmp])
e(valu("v_mul_f32", vsum, hx(f2u(1.0 / 512)), vsum))
e(valu("v_cvt_pk_bf16_f32", vmb, vsum, vsum)); e(valu("v_lshlrev_b32", vmb, 16, vmb))
e(valu("v_sub_f32", vdm, vsum, vmb))
vneg = V(56, 2)
e(valu("v_sub_f32", vneg[0], 0, vmb))
acc2 = [V(58, 2), V(60, 2), V(62, 2)]
for p in range(64):
    e(valu("v_pk_add_f32", v_f[(2 * p, 2)], v_f[(2 * p, 2)], vneg, mod="op_sel_hi:[1,0]"))
for p in range(64):
    a_ = acc2[p % 3]
    if p < 3: e(valu("v_pk_mul_f32", a_, v_f[(2 * p, 2)], v_f[(2 * p, 2)]))
    else: e(valu("v_pk_fma_f32", a_, v_f[(2 * p, 2)], v_f[(2 * p, 2)], a_))
if STAMP == 3: stamp()
e(valu("v_pk_add_f32", acc2[0], acc2[0], acc2[1])); e(valu("v_pk_add_f32", acc2[0], acc2[0], acc2[2]))
e(valu("v_add_f32", vsum, acc2[0][0], acc2[0][1]))
red4("v_add_f32", [vsum], [vtmp])
e(valu("v_mul_f32", vsum, hx(f2u(1.0 / 512)), vsum))
e(valu("v_fma_f32", vsum, "-" + str(vdm), vdm, vsum, extra_rd=vdm.regs()))
e(valu("v_max_f32", vsum, 0, vsum))
e(valu("v_cvt_pk_bf16_f32", vsum, vsum, vsum)); e(valu("v_lshlrev_b32", vsum, 16, vsum))
e(valu("v_add_f32", vsum, hx(f2u(1e-5)), vsum))
e(valu("v_cvt_pk_bf16_f32", vsum, vsum, vsum)); e(valu("v_lshlrev_b32", vsum, 16, vsum))
e(valu("v_sqrt_f32", vsum, vsum)); e(nop(0))
e(valu("v_cvt_pk_bf16_f32", vsum, vsum, vsum)); e(valu("v_lshlrev_b32", vsum, 16, vsum))
e(valu("v_rcp_f32", vneg[0], vsum)); e(nop(0))
for ks in range(16):
    for k in range(4):
        p = 4 * ks + k
        e(valu("v_pk_mul_f32", v_f[(2 * p, 2)], v_f[(2 * p, 2)], vneg, mod="op_sel_hi:[1,0]"))
    for k in range(4):
        p = 4 * ks + k
        e(valu("v_cvt_pk_bf16_f32", v_xp[p], v_f[2 * p], v_f[2 * p + 1]))
    e(dswrite("ds_write_b128", v_wl, v_xp[(4 * ks, 4)], ks * 1024))
ln_issue(int(os.environ.get("LN_LAST", "100")))
if STAMP == 3: stamp()
if DUMP == "ln": dump_regs([v_xp[i] for i in range(64)])
em.wait(lg0=True)
e(raw("s_barrier"))
stamp(); diag(); diag(2)

def cost_of(it):
    k = getattr(it, "kind", "")
    return 2 if k == "trans" else (0 if k in ("salu", "nop") else 1)
class Fill:
    def __init__(self, items, start, end, spread=False): self.items, self.start, self.end, self.spread = list(items), start, end, spread; self.i = 0
    def done(self): return self.i == len(self.items)
def run_stream(NH, dmaf, dtok, accf, Bf, extra, fills, LOOK=6, nq=4, posf=lambda m: m % 6, ring=a_ring, first_dma=6, tr2=None, early_dma=False):
    NG = 4 * NH
    rtok = {}
    def reads(g):
        m, u = g >> 2, g & 3
        p = posf(m)
        d = ring[((g % 8) * 4, 4)]
        ar, of = (v_tr[p // 3][u], (p % 3) * 16384) if p < 6 else (tr2[u], (p - 6) * 16384)
        r = [dsread("ds_read_b64_tr_b16", d[(2 * h2, 2)], ar, of + h2 * 512) for h2 in range(2)]
        rtok[g] = r[1]
        return r
    pre = [reads(g) for g in range(3)]
    G, C = [], []
    cur = None
    for g in range(NG):
        gaps = [[], [], [], []]; cap = [2, 2, 2, 2]
        if g + 3 < NG:
            if (g + 3) & 3 == 0: gaps[0].append(LateW(dtok, (g + 3) >> 2))
            r = reads(g + 3); gaps[0].append(r[0]); gaps[1].append(r[1]); cap[0] -= 1; cap[1] -= 1
        md, j = (g + 4 * LOOK - 4) >> 2, (g + 4 * LOOK - 4) & 3
        if early_dma:
            md, j = (g + 4 * LOOK - 3) >> 2, (g + 4 * LOOK - 3) & 3
            if md >= first_dma and j < 2:
                if j == 0: cur = dmaf(md)
                if cur is not None:
                    if j == 0: gaps[1] += cur[0]
                    gaps[2].append(cur[1][2 * j]); gaps[3].append(cur[1][2 * j + 1]); cap[2] -= 1; cap[3] -= 1
                    if j == 1: dtok[md] = cur[1][3]
        elif md >= first_dma:
            if j == 0: cur = dmaf(md)
            if cur is not None:
                if j == 0: gaps[2] += cur[0]
                for it in cur[1][j::4]: gaps[3].append(it); cap[3] -= 1
                if j == 3: dtok[md] = cur[1][3]
        for (gp, it, cost) in extra.get(g, []):
            gaps[gp].append(it); cap[gp] -= cost
        if g + 1 < NG: gaps[3].insert(0, Wait(lg=rtok[g + 1]))
        G.append(gaps); C.append(cap)
    B = {}
    for f in fills:
        idx = [(g, q) for g in range(f.start, f.end) for q in range(4)]
        caps = [max(0, C[g][q]) for g, q in idx]
        W = sum(cost_of(it) for it in f.items); T = sum(caps); n = len(idx)
        acc = 0.0; cum = 0
        for k, key in enumerate(idx):
            if W >= T: acc += caps[k] + (W - T) / n
            elif f.spread: acc += caps[k] * W / T
            else: acc += caps[k]
            B[key] = (f, acc)
    em.wait(vm=dtok[0])
    for r in pre: e(r)
    for p_ in extra.get(-1, []): e(p_[1])
    em.wait(lg0=True)
    used = {id(f): 0 for f in fills}
    for g in range(NG):
        m, u = g >> 2, g & 3
        d = ring[((g % 8) * 4, 4)]
        for qb in range(nq):
            ac, first = accf(m, u, qb)
            e(mfma(ac, d, Bf(m, qb), 0 if first else ac))
            ent = B.get((g, qb))
            sawv = False
            if ent:
                f, lim = ent
                while not f.done() and getattr(f.items[f.i], "kind", "") in ("lds", "vmem", "salu") and used[id(f)] + cost_of(f.items[f.i]) <= lim + 0.5:
                    it = f.items[f.i]; f.i += 1; used[id(f)] += cost_of(it); e(it)
            for it in G[g][qb]: e(it)
            if ent:
                f, lim = ent
                lastgap = (g == f.end - 1 and qb == 3)
                while not f.done():
                    it = f.items[f.i]; c = cost_of(it)
                    if not lastgap:
                        if used[id(f)] + c > lim + 0.5: break
                        if sawv and getattr(it, "kind", "") in ("lds", "vmem"): break
                    f.i += 1; used[id(f)] += c; e(it)
                    if getattr(it, "kind", "") in ("valu", "trans"): sawv = True
    assert all(f.done() for f in fills)
class LateW:
    def __init__(self, d, k): self.d, self.k = d, k
    def __call__(self): return Wait(vm=self.d[self.k])

def s1_acc(m, u, qb):
    h = m & 1
    idx = ((h * 4 + u) * 4 + qb) * 4
    if m < 32: return A(idx, 4), m < 2
    return v_acc[(idx, 4)], m < 34
def s1_B(m, qb): return a_B[(((m >> 1) & 1) * 16 + qb * 4, 4)]
extra = {}
btok = {}
def bread(s, qb): return dsread("ds_read_b128", a_B[((s & 1) * 16 + qb * 4, 4)], v_lin, (qb * 16 + (s % 16)) * 1024)
extra[-1] = [(0, bread(0, qb), 1) for qb in range(4)]
for s in range(1, 32):
    for qb in range(4):
        extra.setdefault(8 * (s - 1) + 1 + qb, []).append((2, bread(s, qb), 1))
gi = 0; gj = 0; pend_s = []
for it in ln_v[lv[0]:]:
    if isinstance(it, list) and all(x.kind == "salu" for x in it): pend_s = it; continue
    if not isinstance(it, list) and it.kind == "dma":
        assert gi < 12
        extra.setdefault(gi // 3, []).append((gi % 3, [pend_s, it] if pend_s else it, 1)); pend_s = []
        gi += 1
    else:
        extra.setdefault(8 + 2 * gj, []).append((1, it, 1)); gj += 1
C0 = -2.0 * math.sqrt(2.0 / math.pi) * math.log2(math.e); C1 = C0 * 0.044715
vc0, vc1 = V(40), V(41)
gel = [valu("v_mov_b32", vc0, hx(f2u(C0))), valu("v_mov_b32", vc1, hx(f2u(C1)))]
hst = []
tb = 0
for i in range(2):
    for qb in range(4):
        pk = V(96 + 4 * tb, 4); tb += 1
        for b in range(2):
            u = 2 * i + b
            T = [V(64 + 16 * b + k) for k in range(16)]
            G_, U_, X_ = T[0:4], T[4:8], T[8:12]
            ga = lambda r: A((u * 4 + qb) * 4 + r); ua = lambda r: A(((4 + u) * 4 + qb) * 4 + r)
            for r in range(4): gel.append(valu("v_accvgpr_read_b32", G_[r], ga(r)))
            for r in range(4): gel.append(valu("v_accvgpr_read_b32", U_[r], ua(r)))
            for r in range(4): gel.append(valu("v_mul_f32", X_[r], G_[r], G_[r]))
            for r in range(4): gel.append(valu("v_fma_f32", X_[r], X_[r], vc1, vc0))
            for r in range(4): gel.append(valu("v_mul_f32", X_[r], X_[r], G_[r]))
            for r in range(4): gel.append(valu("v_exp_f32", X_[r], X_[r]))
            for r in range(4): gel.append(valu("v_mul_f32", G_[r], G_[r], U_[r]))
            for r in range(4): gel.append(valu("v_add_f32", X_[r], "1.0", X_[r]))
            for r in range(4): gel.append(valu("v_rcp_f32", X_[r], X_[r]))
            gel.append(nop(0))
            for r in range(4): gel.append(valu("v_mul_f32", G_[r], G_[r], X_[r]))
            for k in range(2): gel.append(valu("v_cvt_pk_bf16_f32", pk[2 * b + k], G_[2 * k], G_[2 * k + 1]))
        st = bstore(pk, v_lin, S_H, s_h1 if i else s_h0, off=qb * 1024, mod="sc1")
        hst.append(st)
class Stamp:
    def __call__(self): stamp(); return []
if STAMP: extra.setdefault(128, []).append((0, Stamp(), 0))
class Grp:
    kind = "salu"
    def __init__(self, l): self.l = l
    def __call__(self):
        for x in self.l:
            if x.kind == "label": em.out.append(x)
            else: e(x)
        return []
def group_scc(items):
    out = []
    for it in items:
        if out and ("scc" in it.rd or it.kind == "label"):
            p = out.pop(); out.append(Grp((p.l if isinstance(p, Grp) else [p]) + [it]))
        else: out.append(it)
    return out
s_pf = [S(24, 2), S(26, 2), S(28, 2), S(30, 2)]
s_pfH = s_pair2
s_fo = S(3)
QS = math.log2(math.e) / math.sqrt(128.0)
vqs = V(42, 2); vqw = V(44)
save = em.out; em.out = []; spend = em.pend; em.pend = {}
for it in range(3):
    e(salu("s_add_u32", s_t0, s_w, 4 * it))
    e(salu("s_sub_u32", s_t1, s_t0, 2)); e(salu("s_min_u32", s_t1, s_t1, 6)); e(salu("s_lshl_b32", s_t1, s_t1, 13))
    e(salu("s_mul_i32", s_t2, s_qb, 57344, scc_w=False)); e(salu("s_add_u32", s_t1, s_t1, s_t2))
    e(salu("s_add_u32", s_pf[it][0], S_WD[0], s_t1)); e(salu("s_addc_u32", s_pf[it][1], S_WD[1], 0, scc_r=True))
    if it == 0:
        e(salu("s_lshl_b32", s_t1, s_qb, 14)); e(salu("s_lshl_b32", s_t2, s_w, 13)); e(salu("s_add_u32", s_t1, s_t1, s_t2))
        e(salu("s_add_u32", s_pf[1][0], S_WO[0], s_t1)); e(salu("s_addc_u32", s_pf[1][1], S_WO[1], 0, scc_r=True))
        e(scmp("s_cmp_lt_u32", s_w, 2)); e(salu("s_cselect_b64", s_pf[0], s_pf[1], s_pf[0], scc_w=False, scc_r=True))
e(raw("s_getpc_b64 %s" % s_pf[3], "salu", wr=[s_pf[3]]))
em.label("L_pc1")
e(salu("s_lshl_b32", s_t0, s_w, 13)); e(salu("s_add_u32", s_t0, s_t0, "L_tail-L_pc1")); e(salu("s_min_u32", s_t0, s_t0, "L_code_end-L_pc1-8192"))
e(salu("s_add_u32", s_t1, s_t0, 3 * 8192)); e(salu("s_min_u32", s_t1, s_t1, "L_code_end-L_pc1-8192"))
e(salu("s_add_u32", s_pfH[0], s_pf[3][0], s_t1)); e(salu("s_addc_u32", s_pfH[1], s_pf[3][1], 0, scc_r=True))
e(scmp("s_cmp_eq_u32", s_w, 0)); e(salu("s_cselect_b64", s_pf[2], s_pf[2], s_pfH, scc_w=False, scc_r=True))
e(salu("s_add_u32", s_pf[3][0], s_pf[3][0], s_t0)); e(salu("s_addc_u32", s_pf[3][1], s_pf[3][1], 0, scc_r=True))
e(salu("s_lshl_b32", s_t0, s_cg, 2)); e(salu("s_add_u32", s_t0, s_t0, s_w)); e(salu("s_mul_i32", s_t0, s_t0, 7168, scc_w=False)); e(salu("s_min_u32", s_t0, s_t0, 229376 - 8192))
e(salu("s_add_u32", s_pfH[0], S_HC[0], s_t0)); e(salu("s_addc_u32", s_pfH[1], S_HC[1], 0, scc_r=True))
e(salu("s_lshl_b32", s_fo, s_cq, 3))
vx, vy, vz = V(45), V(46), V(47)
e(salu("s_lshl_b32", s_t1, s_w, 8))
dma_voffs(v_dA, 1024, s_t1, True)
e(salu("s_mul_i32", s_wdd, s_w, 448 * 1024 - 256, scc_w=False)); e(salu("s_lshl_b32", s_t3, s_cg, 7)); e(salu("s_add_u32", s_wdd, s_wdd, s_t3))
e(valu("v_mov_b32", vqs[0], hx(f2u(QS))))
e(valu("v_and_b32", vx, 15, v_lane)); e(valu("v_bfe_u32", vqw, v_lane, 5, 1)); e(valu("v_lshl_add_u32", vx, vqw, 4, vx)); e(valu("v_lshlrev_b32", vx, 4, vx))
e(valu("v_bfe_u32", vqw, v_lane, 4, 1)); e(valu("v_lshl_add_u32", vqw, vqw, 3, vx))
e(salu("s_lshl_b32", s_t1, s_w, 14)); e(valu("v_add_u32", vqw, s_t1, vqw))
midset = group_scc(em.out); em.out = save; em.pend = spend
HST = int(os.environ.get("HST", "0"))
if HST == 0: GEL_END = 254
for k in range(8):
    if HST: extra.setdefault(248 + k, []).append((0, hst[k], 1))
run_stream(64, s1_dma, dtok, s1_acc, s1_B, extra, [Fill(midset, 109, 130), Fill(gel, 131, GEL_END)], early_dma=int(os.environ.get('ED1', '0')))
if DUMP == "qacc": dump_regs([v_acc[i] for i in range(128)])
stamp()

em.wait(lg0=True)
e(raw("s_barrier"))
def signal(off_s_expr_add, lab, v_t):
    e(scmp("s_cmp_lg_u32", s_w, 0)); e(raw("s_cbranch_scc1 %s" % lab, rd=["scc"]))
    e(salu("s_lshl_b32", s_t0, s_qb, 2))
    if off_s_expr_add: e(salu("s_add_u32", s_t0, s_t0, off_s_expr_add))
    e(valu("v_mov_b32", v_t, 1))
    e(raw("s_mov_b64 exec, 1", "salu", wr=["exec"]))
    e(raw("buffer_atomic_add %s, off, %s, %s sc1" % (v_t, S_DBG, s_t0)))
    e(raw("s_mov_b64 exec, -1", "salu", wr=["exec"]))
    em.label(lab)
for blk in range(8):
    for qb in range(4):
        a_ = v_acc[((blk * 4 + qb) * 4, 4)]
        t = V(64 + 2 * ((blk * 4 + qb) % 8), 2)
        for k in range(2): e(valu("v_pk_mul_f32", a_[(2 * k, 2)], a_[(2 * k, 2)], vqs, mod="op_sel_hi:[1,0]"))
        for k in range(2): e(valu("v_cvt_pk_bf16_f32", t[k], a_[2 * k], a_[2 * k + 1]))
        if len(em.lgq) >= 7: em.wait(lg=em.lgq[-7])
        e(dswrite("ds_write_b64", vqw, t, (qb * 4 + (blk >> 1)) * 1024 + (blk & 1) * 512))
for j in range(4): e(valu("v_add_u32", v_dB[j], s_wdd, v_dA[j]))
em.wait(lg0=True)
for f in range(16): e(dsread("ds_read_b128", a_Q[(4 * f, 4)], v_wl, f * 1024))
em.label("L_att_start")
NZ0 = 32
for i in range(NZ0): e(valu("v_mov_b64", v_acc[(2 * i, 2)], 0))
if LSUM:
    for i in range(16): e(valu("v_accvgpr_write_b32", a_L[i], 0))
    e(valu("v_mov_b32", V(40), "0x3f803f80"))
    if LSUM == 2:
        e(valu("v_and_b32", V(41), 15, v_lane)); e(valu("v_cmp_eq_u32", "vcc", 0, V(41))); e(nop(1)); e(valu("v_cndmask_b32", V(40), 0, V(40), "vcc"))
    for i in range(4): e(valu("v_accvgpr_write_b32", a_ones[i], V(40)))
else:
    for i in range(4): e(valu("v_mov_b32", v_l0[i], 0)); e(valu("v_mov_b32", v_l1[i], 0))
e(valu("v_lshlrev_b32", V(3), 7, v_lane))
e(valu("v_and_b32", V(38), 7, v_lane)); e(valu("v_mov_b32", V(0), 0))
em.wait(vm=dtok[66], lg0=True)
e(raw("s_barrier"))
if DUMP == "q": dump_regs([a_Q[i] for i in range(64)])
stamp()

def Qf(qb, ds): return a_Q[((qb * 4 + ds) * 4, 4)]
def Of(db, qb): return v_acc[((db * 4 + qb) * 4, 4)]
def fr(f): return a_ring[((f % 8) * 4, 4)]
def kslot(par): return 16384 if par == 0 else 0
def vslot(par): return 0 if par == 0 else 16384
def frag_reads(par, f):
    if f >= 32: par ^= 1; f -= 32
    d = fr(f)
    if f < 8 or 16 <= f < 24:
        kb = (f >> 2) if f < 8 else 2 + ((f - 16) >> 2)
        return [dsread("ds_read_b128", d, v_ka[f & 3], kslot(par) + kb * 4096)]
    ks2 = 0 if f < 16 else 1
    db = f & 7
    return [dsread("ds_read_b64_tr_b16", d[(2 * h, 2)], v_va[db], vslot(par) + ks2 * 8192 + h * 4096) for h in range(2)]
def read_sched(g):
    r = []
    if g + 3 < 24 or g >= 29: r.append(g + 3)
    if 19 <= g <= 26: r.append(g + 5)
    return r
def sm_val(g, k):
    if 7 <= g <= 22: b = 1; n = 2 * (g - 7) + k
    else: b = 0; n = 2 * ((g - 23) % 32) + k
    kb, qb, r = n >> 4, (n >> 2) & 3, n & 3
    return b, qb, kb, r
def sm_items(g):
    ex, ad = [], []
    for k in range(2):
        b, qb, kb, r = sm_val(g, k)
        x = v_S[b][qb * 8 + kb * 4 + r]
        l = (v_l1 if b else v_l0)[qb]
        ex.append(valu("v_exp_f32", x, x)); ad.append(valu("v_add_f32", l, l, x))
    b, qb, kb, r = sm_val((g - 1) % 32, 0)
    cv = valu("v_cvt_pk_bf16_f32", v_S[b][qb * 8 + kb * 2 + (r >> 1)], v_S[b][qb * 8 + kb * 4 + r], v_S[b][qb * 8 + kb * 4 + r + 1])
    return ex, ad, cv
def att_dma(par, g):
    if g >= 29: k = g - 29; sp = par
    elif g <= 4: k = g + 3; sp = par ^ 1
    else: return [], None
    sal = []
    if k == 0: sal = [salu("s_add_u32", "m0", s_m0b, 4 * 16384 + kslot(sp))]
    if k == 4: sal = [salu("s_add_u32", "m0", s_m0b, vslot(sp))]
    if k < 4: return sal, dma(v_kd[k], S_K, s_kK, k * 1024)
    return sal, dma(v_vd[k & 1], S_V, s_kV, (k - 4) * 1024)
SIDE_FIRST = 11
class Lbl:
    def __init__(self, n): self.n = n
    def __call__(self): em.label(self.n); return []
class LoopStamp:
    def __init__(self, k, par): self.k, self.par = k, par
    def __call__(self):
        k = self.k
        e(raw("s_memtime %s" % S(68 + 2 * k, 2), "other", wr=[S(68 + 2 * k, 2)]))
        if k == 2:
            e(raw("s_waitcnt lgkmcnt(0)", "wait")); em._retire(em.lgq, 0)
            for i in range(3): e(valu("v_writelane_b32", v_c, S(68 + 2 * i), i, rmw=True))
            e(salu("s_lshl_b32", S(74), S(2), 2)); e(salu("s_add_u32", S(74), S(74), s_w)); e(salu("s_lshl_b32", S(74), S(74), 4))
            e(salu("s_sub_u32", S(74), S(74), s_cnt)); e(salu("s_add_u32", S(74), S(74), 16)); e(salu("s_lshl_b32", S(74), S(74), 5))
            e(salu("s_add_u32", S(74), S(74), (1 << 20) + 16 * self.par))
            e(raw("s_mov_b64 exec, 7", "salu", wr=["exec"]))
            e(valu("v_lshlrev_b32", v_t, 2, v_lane))
            e(bstore(v_c, v_t, S_DMP, S(74), off=0))
            e(raw("s_mov_b64 exec, -1", "salu", wr=["exec"]))
            e(valu("v_lshlrev_b32", v_t, 7, v_lane))
        return []
v_tch, v_flag, v_fa = V(3), V(0), V(38)
xtok = []; lastdma = [None]
NITER = 14
s_pfc = S(16, 2); s_kvt = S(18, 2); KVIT = int(os.environ.get('KVIT', '12'))
ROT = int(os.environ.get('ROT', '8'))
ftok = {}
def att_group(par, g, do_mfma=True, do_mem=True, do_cvt=True, last=False, pp=None, xmem=(), xsal=(), xvalu=None):
    ex, ad, cv = sm_items(g)
    mem = []
    sal = []
    fin = (pp == 3)
    d = None
    if do_mem:
        if fin: sched = ([g + 3] if g + 3 < 16 else []) + ([g + 11] if 13 <= g <= 20 else [])
        else: sched = read_sched(g)
        for f in sched:
            r = frag_reads(par, f); mem += r; ftok[f % 32] = r
        if pp is None or (g <= 4 and pp <= 2) or (g >= 29 and pp <= 1):
            sal, d = att_dma(par, g)
            if d is not None: mem.append(d)
    loop = do_mem and pp is None
    post0 = []
    if loop and par == 0:
        if g == 14: mem.append(I("global_load_dword %s, %s, %s" % (v_c, v_tch, s_pfc), "vmem", rd=v_tch.regs() + s_pfc.regs(), wr=[]))
        if g == 13: mem.append(I("buffer_load_ubyte %s, %s, %s, %s offen sc1" % (v_flag, v_fa, S_DBG, s_t2), "vmem", rd=S_DBG.regs() + s_t2.regs() + v_fa.regs(), wr=[]))
        if g == 8: sal = sal + [scmp("s_cmp_le_u32", s_cnt, ROT)]
        if g in (9, 10, 11, 12):
            q_ = [s_pfc] + s_pf
            sal = sal + [salu("s_cselect_b64", q_[g - 9], q_[g - 8], q_[g - 9], scc_w=False, scc_r=True)]
        if g == 0: post0 = [valu("v_cmp_eq_u32", "vcc", 1, v_flag)]
        if g == 2: sal = sal + [raw("s_cmp_eq_u32 vcc_lo, -1", "salu", rd=["vcc"], wr=["scc"])]
        if g == 3: sal = sal + [salu("s_cselect_b32", s_t0, s_cnt, -1, scc_w=False, scc_r=True)]
        if g == 4: sal = sal + [scmp("s_cmp_eq_u32", s_t0, ROT - 1)]
        if g == 5: sal = sal + [salu("s_cselect_b64", s_pf[3], s_pfH, s_pf[3], scc_w=False, scc_r=True)]
        if g == 15: sal = sal + [salu("s_cselect_b64", s_pf[3], S_K[(0, 2)], s_pf[3], scc_w=False, scc_r=True)]
        if g == 20: sal = sal + [scmp("s_cmp_eq_u32", s_cnt, KVIT + 1)]
        if g == 21: sal = sal + [salu("s_cselect_b64", s_pfc, s_kvt, S_K[(0, 2)], scc_w=False, scc_r=True)]
        if g == 13: sal = sal + [salu("s_cselect_b32", s_t2, s_fo, 256, scc_w=False, scc_r=True)]
        if g == 18: sal = sal + [scmp("s_cmp_eq_u32", s_cnt, s_sig)]
        if g == 19: sal = sal + [raw("s_cbranch_scc1 L_sigH_side", rd=["scc"]), Lbl("L_sigH_ret")]
    if do_mem and g == 4 and d is not None: lastdma[0] = d
    mem += list(xmem); sal = sal + list(xsal)
    gaps = [[], [], [], []]
    if g == 29 and do_mem and not fin:
        if STAMP == 2 and loop and do_mfma: gaps[0] += [LoopStamp(0, par)]
        gaps[0] += [Wait(lg0=True) if not do_mfma else (Wait(lg0=True, vm0=True) if (pp is None and par == 1) else Wait(lg0=True, vm=lastdma[0]))]
        if STAMP == 2 and loop and do_mfma: gaps[0] += [LoopStamp(1, par)]
        gaps[0] += [raw("s_barrier")]
        if STAMP == 2 and loop and do_mfma: gaps[0] += [LoopStamp(2, par)]
    gaps[0] += sal
    if g == 6 and do_mem and (pp is None or pp <= 1): gaps[0].append(salu("s_add_u32", s_kK, s_kK, 16384))
    if g == 7 and do_mem and (pp is None or pp <= 1): gaps[0].append(salu("s_add_u32", s_kV, s_kV, 16384))
    sm = not (fin and g >= 23)
    if fin and g > 23: do_cvt = False
    if fin and 16 <= g < 24: do_mfma = False
    if LSUM:
        if sm: gaps[0].append(ex[0])
        gaps[1] += mem[0:2] if len(mem) > 2 else mem[0:1]
        gaps[1] += post0
        nf = (g + 1) % 32
        if do_mem and not (fin and (16 <= nf < 24 or nf == 0)): gaps[2].append(Wait(lg=ftok.get(nf)))
        if last and g == 30: gaps[2].append(salu("s_sub_u32", s_cnt, s_cnt, 1))
        if sm: gaps[2].append(ex[1])
        gaps[3] += mem[2:] if len(mem) > 2 else mem[1:]
        if do_cvt: gaps[1 if len(gaps[1]) < 2 else 3].append(cv)
    else:
      gaps[0] += mem[2:3]
      if sm: gaps[0].append(ex[0])
      if len(mem) > 0: gaps[1].append(mem[0])
      if len(mem) == 0 and do_cvt: gaps[1].append(cv)
      if sm: gaps[1].append(ad[0])
      gaps[1] += post0
      nf = (g + 1) % 32
      if do_mem and not (fin and (16 <= nf < 24 or nf == 0)): gaps[2].append(Wait(lg=ftok.get(nf)))
      if last and g == 30: gaps[2].append(salu("s_sub_u32", s_cnt, s_cnt, 1))
      gaps[2] += mem[3:]
      if sm: gaps[2].append(ex[1])
      if len(mem) > 1: gaps[3].append(mem[1])
      if len(mem) > 0 and do_cvt: gaps[3].append(cv)
      if sm: gaps[3].append(ad[1])
    for qb in range(4):
        if do_mfma:
            if g < 8 or 16 <= g < 24:
                b = 1 if g < 8 else 0
                kb, ds = (g >> 2) & 1, g & 3
                d = v_S[b][(qb * 8 + kb * 4, 4)]
                e(mfma(d, fr(g), Qf(qb, ds), v_negm[(qb * 4, 4)] if ds == 0 else d))
            else:
                b = 0 if g < 16 else 1
                e(mfma(Of(g & 7, qb), fr(g), v_S[b][(qb * 8, 4)], Of(g & 7, qb)))
        else:
            if (qb & 1) and not gaps[qb][:1] or ((qb & 1) and getattr(gaps[qb][0], "kind", "") in ("valu",)): e(nop(0))
        for it in gaps[qb]: e(it)
        if xvalu is not None:
            c = 2 - sum(1 for it in gaps[qb] if getattr(it, "kind", "") in ("lds", "vmem", "dma", "valu"))
            while xvalu and c > 0:
                it = xvalu.pop(0); e(it); c -= 2 if it.kind == "trans" else 1
    if LSUM and do_mfma and (g & 8):
        k = g & 7
        lq = (k if k < 4 else None) if (fin and g >= 24) else (k >> 1 if k & 1 else None)
        if lq is not None: e(mfma(a_L[(4 * lq, 4)], a_ones, v_S[0 if g < 16 else 1][(lq * 8, 4)], a_L[(4 * lq, 4)]))

pr = [dsread("ds_read_b128", fr(f), v_ka[f & 3], (f >> 2) * 4096) for f in range(8)]
for r in pr: e(r)
e(scmp("s_cmp_lg_u32", s_retry, 0)); e(raw("s_cbranch_scc1 L_have_max", rd=["scc"]))
for i in range(16): e(valu("v_mov_b32", v_negm[i], 0))
em.label("L_have_max")
zr = [valu("v_mov_b32", v_acc[i], 0) for i in range(2 * NZ0, 128)]
for f in range(8):
    em.wait(lg=pr[f])
    for qb in range(4):
        d = v_S[0][(qb * 8 + (f >> 2) * 4, 4)]
        e(mfma(d, fr(f), Qf(qb, f & 3), v_negm[(qb * 4, 4)] if (f & 3) == 0 else d))
        if qb == 0 and HST == 0: e(hst[f])
        for _ in range(2):
            if zr: e(zr.pop(0))
assert not zr
e(salu("s_mov_b32", s_kK, 16384 + 8192, scc_w=False)); e(salu("s_mov_b32", s_kV, 16384, scc_w=False)); e(salu("s_mov_b32", s_cnt, NITER, scc_w=False))
e(scmp("s_cmp_lg_u32", s_retry, 0)); e(raw("s_cbranch_scc1 L_have_max2", rd=["scc"]))
e(nop(3))
mx = [V(97 + 4 * i) for i in range(4)]; mt = [V(98 + 4 * i) for i in range(4)]
for qb in range(4): e(valu("v_max3_f32", mx[qb], v_S[0][qb * 8], v_S[0][qb * 8 + 1], v_S[0][qb * 8 + 2]))
for qb in range(4): e(valu("v_max3_f32", mx[qb], mx[qb], v_S[0][qb * 8 + 3], v_S[0][qb * 8 + 4]))
for qb in range(4): e(valu("v_max3_f32", mx[qb], mx[qb], v_S[0][qb * 8 + 5], v_S[0][qb * 8 + 6]))
for qb in range(4): e(valu("v_max_f32", mx[qb], mx[qb], v_S[0][qb * 8 + 7]))
red4("v_max_f32", mx, mt)
for qb in range(4):
    for k in range(4): e(valu("v_sub_f32", v_negm[qb * 4 + k], 0, mx[qb]))
for qb in range(4):
    for k in range(8): e(valu("v_sub_f32", v_S[0][qb * 8 + k], v_S[0][qb * 8 + k], mx[qb]))
em.label("L_have_max2")
e(nop(7))
for g in range(23, 29): att_group(1, g, do_mfma=False, do_mem=False, do_cvt=(g != 23))
stamp(); diag()
e(salu("s_and_b32", s_t0, s_qb, 3)); e(salu("s_sub_u32", s_t0, NITER - 1, s_t0))
e(scmp("s_cmp_eq_u32", s_w, 0)); e(salu("s_cselect_b32", s_sig, s_t0, -1, scc_w=False, scc_r=True))
e(scmp("s_cmp_eq_u32", s_retry, 0)); e(salu("s_cselect_b32", s_sig, s_sig, -1, scc_w=False, scc_r=True))
e(salu("s_mov_b64", s_pfc, S_K[(0, 2)], scc_w=False))
e(scmp("s_cmp_lt_u32", s_w, 2)); e(salu("s_cselect_b64", s_kvt, S_K[(0, 2)], S_V[(0, 2)], scc_w=False, scc_r=True))
e(salu("s_and_b32", s_t0, s_w, 1)); e(salu("s_lshl_b32", s_t1, s_qb, 1)); e(salu("s_add_u32", s_t0, s_t0, s_t1)); e(salu("s_lshl_b32", s_t0, s_t0, 13))
e(salu("s_add_u32", s_kvt[0], s_kvt[0], s_t0)); e(salu("s_addc_u32", s_kvt[1], s_kvt[1], 0, scc_r=True))
for g in range(29, 32): att_group(1, g, do_mfma=False, do_mem=True)
pro_end = len(em.out)
em.directive(".p2align 6")
em.label("L_att_loop")
def body():
    for par in range(2):
        for g in range(32): att_group(par, g, last=(par == 1))
b0 = len(em.out)
body()
b1 = len(em.out)
e(scmp("s_cmp_lg_u32", s_cnt, 0)); e(raw("s_cbranch_scc1 L_att_loop", rd=["scc"]))
b2 = len(em.out)
body()
second = em.out[b2:]; del em.out[b2:]
assert [i.text for i in second] == [i.text for i in em.out[b0:b1]], "loop not in steady state"
loop_probs = check_hazards(em.out[b1 - 40:b2] + second[:60], "loop-wrap")

em.label("L_tail")
v_ring2 = V(64, 32); v_B2 = V(96, 32)
XY = int(os.environ.get('XY', '0'))
NF1 = int(os.environ.get('NF1', '8'))
def hreg(kk, qb):
    if kk >= 8: kk -= 8
    return A((64 + 16 * kk if kk < 4 else 160 + 16 * (kk - 4)) + qb * 4, 4)
def Facc(u, qb):
    t = u * 4 + qb
    return A(128 + 4 * t if t < 8 else 224 + 4 * (t - 8), 4)
POS2 = [5, 0, 2, 3, 4, 1]
NB = int(os.environ.get("NB", "4"))
def pos2(m): return 6 + m if m < NB else POS2[(m - NB) % 6]
def kind2(m):
    if m < NF1: return ("F", m)
    if m < NF1 + 32: return ("O", (m - NF1) & 15, (m - NF1) >> 4) if XY else ("O", (m - NF1) >> 1, (m - NF1) & 1)
    return ("F", m - 32)
def s2_dma(m):
    if m >= 46: return None
    p = pos2(m); k = kind2(m)
    if k[0] == "O":
        return [m0set(p), salu("s_mov_b32", s_off, k[1] * 32 * 1024 + 128 * k[2], scc_w=False)], [dma(v_dA[j], S_WO, s_off, j * 1024) for j in range(4)]
    return [m0set(p), salu("s_mov_b32", s_off, k[1] * 32 * 1024, scc_w=False)], [dma(v_dB[j], S_WD, s_off, j * 1024) for j in range(4)]
dtok2 = {}; s2pre = {}
for m in range(6 + NB):
    s2pre[m] = s2_dma(m); dtok2[m] = s2pre[m][1][3]
class Seq:
    kind = "vmem"
    def __init__(self, l): self.l = l
    def __call__(self): return self.l
hld = {}; htok = {}
for kk in range(14):
    hld[kk] = [bload(hreg(kk, qb), v_lin, S_HC, s_hl, off=qb * 1024, mod="sc1") for qb in range(4)]
    htok[kk] = hld[kk][3]
e(salu("s_mov_b32", s_cnt, 0, scc_w=False))
em.label("L_pollH")
e(valu("v_cmp_ne_u32", "vcc", 1, v_flag)); e(salu("s_mul_i32", s_hb, s_w, 14 * 4096, scc_w=False)); e(nop(1))
e(raw("s_cbranch_vccz L_pollH_done", rd=["vcc"]))
e(salu("s_add_u32", s_cnt, s_cnt, 1)); e(scmp("s_cmp_ge_u32", s_cnt, 50000)); e(raw("s_cbranch_scc1 L_pollH_done", rd=["scc"]))
e(raw("s_sleep 4")); e(raw("buffer_load_ubyte %s, %s, %s, %s offen sc1" % (v_flag, v_fa, S_DBG, s_fo))); e(raw("s_waitcnt vmcnt(0)")); e(raw("s_branch L_pollH"))
em.label("L_pollH_done")
NH0 = 32
hsl = sorted([(pp, g) for pp in range(3) for g in (5, 13, 14, 15, 16, 17, 18, 27, 28, 9, 11)])[:NH0]
px = {}
for k, key in enumerate(hsl):
    px.setdefault(key, ([], []))
    px[key][0].append(hld[k >> 2][k & 3])
    if k & 3 == 0: px[key][1].append(salu("s_add_u32", s_hl, s_hb, (k >> 2) * 4096))
wsl = [(pp, g) for pp in range(2) for g in (6, 7, 8, 10, 12, 21, 22, 23)][:4 * NB] + [(2, 29), (2, 30), (2, 31), (3, 0), (3, 1), (3, 2), (3, 3), (3, 4)] + [(3, g) for g in range(5, 13)] + [(3, g) for g in range(24, 32)]
for k, key in enumerate(wsl):
    px.setdefault(key, ([], []))
    m, j = k >> 2, k & 3
    px[key][0].append(s2pre[m][1][j])
    if j == 0: px[key][1].extend(s2pre[m][0])
px[(3, 24)][1][:0] = [Wait(lg0=True), raw("s_barrier")]
lt = [V(48 + i) for i in range(4)]
rinv = [V(52 + i) for i in range(4)]
vxf = V(40, 8)
save = em.out; em.out = []
if LSUM:
    for qb in range(4): e(valu("v_accvgpr_read_b32", v_l1[qb], a_L[4 * qb]))
    if LSUM == 2: red4("v_add_f32", [v_l1[i] for i in range(4)], lt)
else:
    for qb in range(4): e(valu("v_add_f32", v_l1[qb], v_l1[qb], v_l0[qb]))
    red4("v_add_f32", [v_l1[i] for i in range(4)], lt)
e(valu("v_add_f32", lt[1], v_l1[0], v_l1[1])); e(valu("v_add_f32", lt[2], v_l1[2], v_l1[3])); e(valu("v_add_f32", lt[1], lt[1], lt[2]))
for qb in range(4): e(valu("v_rcp_f32", rinv[qb], v_l1[qb]))
e(valu("v_cmp_nge_f32", "vcc", hx(f2u(2.0 ** 30)), lt[1]))
for k in range(8): e(valu("v_accvgpr_read_b32", vxf[k], a_x[k]))
v_tr2 = V(56, 4); v_ow = V(62)
for u in range(4): e(valu("v_subrev_u32", v_tr2[u], RING, v_tr[0][u]))
e(valu("v_subrev_u32", v_ow, RING, v_lin)); e(valu("v_add_u32", v_ow, s_m0b, v_ow))
lred = em.out; em.out = save
for pp in range(4):
    for g in range(32):
        if STAMP == 4 and g in (0, 16): stamp()
        xm, xs = px.get((pp, g), ([], []))
        att_group(pp & 1, g, pp=pp, xmem=xm, xsal=xs, xvalu=(lred if (pp == 3 and g >= (30 if LSUM else 24)) else None))
for it in lred: e(it)
diag(); stamp()
if DUMP == "o":
    e(nop(7))
    for db in range(8):
        for qb in range(4):
            for k in range(4): e(valu("v_mul_f32", Of(db, qb)[k], Of(db, qb)[k], rinv[qb]))
    dump_regs([v_acc[i] for i in range(128)])

vm_ = V(60); vma = V(61)
class Mark:
    kind = "salu"
    def __init__(self, t): self.t = t
    def __call__(self):
        e(raw("s_cbranch_vccz L_nomark", rd=["vcc"])); e(valu("v_mov_b32", self.t, hx(MARK))); em.label("L_nomark"); return []
norm = [valu("v_and_b32", vma, 3, v_lane), valu("v_lshlrev_b32", vma, 12, vma)]
ow = []; ncv = []
for i in range(4):
    for qb in range(4):
        t = Of(2 * i, qb)
        for b in range(2):
            for k in range(4): norm.append(valu("v_mul_f32", Of(2 * i + b, qb)[k], Of(2 * i + b, qb)[k], rinv[qb]))
        for b in range(2):
            o = Of(2 * i + b, qb)
            for k in range(2): norm.append(valu("v_cvt_pk_bf16_f32", t[2 * b + k], o[2 * k], o[2 * k + 1]))
        ncv.append(norm[-1])
        if i == 0 and qb == 0: norm.append(Mark(t[0]))
        ow.append(dswrite("ds_write_b128", v_ow, t, i * 16384 + qb * 1024))
        if NB == 0: norm.append(ow[-1])
class ChkNorm:
    def __init__(self, k): self.k = k
    def __call__(self):
        assert ncv[self.k].tok, "O write %d scheduled before its data" % self.k
        return ow[self.k]
G0 = 4 * NF1
G1 = G0 + 128
mk = dsread("ds_read_b32", vm_, vma, 0)
class OBar:
    def __call__(self):
        assert all(w.tok for w in ow)
        em.wait(lg0=True); e(raw("s_barrier")); stamp(); e(mk); return []
class FbCheck:
    def __call__(self):
        em.wait(lg=mk)
        e(valu("v_cmp_eq_u32", "vcc", hx(MARK), vm_))
        e(scmp("s_cmp_lg_u32", s_retry, 0)); e(raw("s_cbranch_scc1 L_nofb", rd=["scc"]))
        e(nop(1))
        e(raw("s_cbranch_vccnz L_fallback", rd=["vcc"]))
        em.label("L_nofb")
        return []
def s2_acc(m, u, qb):
    k = kind2(m)
    if k[0] == "O": return v_acc[(((k[2] * 4 + u) * 4 + qb) * 4, 4)], k[1] == 0
    return Facc(u, qb), k[1] == 0
def s2_B(m, qb):
    k = kind2(m)
    if k[0] == "O": return v_B2[((k[1] & 1) * 16 + qb * 4, 4)]
    return hreg(k[1], qb)
def oread(s, qb): return dsread("ds_read_b128", v_B2[((s & 1) * 16 + qb * 4, 4)], v_lin, (s & 3) * 16384 + (s >> 2) * 4096 + qb * 1024)
extra = {}
if NB:
    OW0 = int(os.environ.get("OW0", "11")); OWN = int(os.environ.get("OWN", "1"))
    for k in range(16):
        gg = OW0 + k // OWN
        assert (k >> 2) >= NB or gg > 4 * (k >> 2) + 3
        extra.setdefault(gg, []).append((2 + (k % OWN) % 2, ChkNorm(k), 1))
GB = G0 - int(os.environ.get("OBAR", "3"))
extra.setdefault(GB, []).append((0, OBar(), 0))
r0 = [oread(0, qb) for qb in range(4)]
for qb in range(4): extra.setdefault(GB + (qb >> 1), []).append((1 + (qb & 1) if qb < 2 else (qb & 1) * 2, r0[qb], 1))
extra.setdefault(G0 - 1, []).append((2, [Wait(lg=r0), FbCheck()], 0))
if XY:
    for mm in range(1, 32):
        rr = [oread(mm & 15, qb) for qb in range(4)]
        for qb in range(4): extra.setdefault(G0 + 4 * (mm - 1) + (qb >> 1), []).append((2 + (qb & 1), rr[qb], 1))
        extra.setdefault(G0 + 4 * mm - 1, []).append((2, Wait(lg=rr), 0))
else:
    for s_ in range(1, 16):
        for qb in range(4): extra.setdefault(G0 + 8 * (s_ - 1) + 1 + qb, []).append((2, oread(s_, qb), 1))
class LateWait:
    def __init__(self, f): self.f = f
    def __call__(self): return Wait(vm=self.f())
vxa = V(48); vpoll = V(49); vfw = V(50)
vx, vy, vz = V(63), V(57), V(58)
save = em.out; em.out = []
xaddr(vxa, vx)
e(valu("v_and_b32", V(51), 7, v_lane)); e(valu("v_lshlrev_b32", V(51), 2, V(51)))
e(valu("v_add_u32", vfw, s_m0b, v_lin)); e(salu("s_lshl_b32", s_t0, s_w, 14)); e(salu("s_add_u32", s_t0, s_t0, RING)); e(valu("v_add_u32", V(55), s_t0, v_lin))
e(salu("s_lshl_b32", s_t3, s_w, 4)); e(salu("s_add_u32", s_t3, s_t3, s_g)); e(salu("s_lshl_b32", s_t3, s_t3, 13))
early = em.out; em.out = save
extra.setdefault(-1, []).append((0, LateWait(lambda: htok[0]), 0))
for kk in range(1, 14):
    g_ = 4 * kk if kk < NF1 else 4 * (kk + 32)
    extra.setdefault(g_ - 1, []).append((2, LateWait(lambda kk=kk: htok[kk]), 0))
HG0 = int(os.environ.get("HG0", "5")); HGS = int(os.environ.get("HGS", "1"))
for k in range(NH0, 56):
    prev = (k >> 2) - 8
    gfree = (4 * prev if prev < NF1 else 4 * (prev + 32)) + 5 + (k & 3)
    extra.setdefault(max(gfree, HG0 + HGS * (k - NH0)), []).append((2, Seq([salu("s_add_u32", s_hl, s_hb, (k >> 2) * 4096), hld[k >> 2][k & 3]]), 1))
def sreg(ip, qb, odd=0): return v_acc[(((2 * ip + odd) * 4 + qb) * 4, 4)]
sp = []; spst = []; stq = []
s_oob = S(19)
if os.environ.get("NOST") or os.environ.get("NOLD"): e(salu("s_mov_b32", s_oob, 524288, scc_w=False))
NSI = int(os.environ.get("NSI", "11"))
s_so = [s_t1, s_cnt, s_h0, s_h1]
for k in range(4): sp.append(salu("s_add_u32", s_so[k], s_t3, (k >> 1) * 65536 + (k & 1) * 4096))
for ip in range(4):
    for qb in range(4):
        t = sreg(ip, qb)
        for b in range(2):
            o = sreg(ip, qb, b)
            for k in range(2): sp.append(valu("v_cvt_pk_bf16_f32", t[2 * b + k], o[2 * k], o[2 * k + 1]))
        st = bstore(t, v_lin, S_SP, s_so[(ip >> 1) * 2 + (qb >> 1)], off=(qb & 1) * 2048 + (ip & 1) * 1024, mod="sc1")
        if os.environ.get("NOST") and not (ip == 3 and qb == 3): st = bstore(t, v_lin, S_SP, s_oob, off=0)
        spst.append((st, sp[-1]))
class St:
    def __init__(self, k): self.k = k
    def __call__(self):
        assert spst[self.k][1].tok
        return spst[self.k][0]
STG = int(os.environ.get("STG", "2"))
if XY:
    GY = G0 + 64
    XS0 = int(os.environ.get("XS0", "4")); XSG = int(os.environ.get("XSG", "5")); XFL = int(os.environ.get("XFL", "60"))
    for k in range(8): extra.setdefault(GY + XS0 + XSG * k, []).append((1, St(k), 1))
    class XFlag:
        def __call__(self): em.wait(vm=spst[7][0]); return flag_store(0)
    extra.setdefault(GY + XFL, []).append((1, XFlag(), 1))
    NSI = int(os.environ.get("NSI", "16"))
    for k in range(8, NSI): extra.setdefault(G1 + 3 + STG * (k - 8), []).append((2, St(k), 1))
    hx_ = sp.index(spst[7][1]) + 1
    spf = [Fill(sp[:hx_], GY + 2, GY + 14), Fill(sp[hx_:], G1 + 2, G1 + 10)]
else:
    for k in range(NSI): extra.setdefault(G1 + 3 + STG * k, []).append((2, St(k), 1))
    spf = [Fill(sp, G1 + 2, G1 + int(os.environ.get("CVL", "16")))]
FLG = int(os.environ.get("FLG", "0"))
if FLG:
    assert NSI == 16
    class YFlag:
        def __call__(self):
            em.wait(vm=spst[-1][0]); stamp()
            return ([] if XY else flag_store(0)) + flag_store(1)
    extra.setdefault(G1 + FLG, []).append((1, YFlag(), 1))
sti = [NSI]
def st_next(n=1):
    for _ in range(n):
        if sti[0] < 16: e(spst[sti[0]][0]); sti[0] += 1
def flag_store(h):
    return [valu("v_mov_b32", v_t, 1), raw("s_mov_b64 exec, 1", "salu", wr=["exec"]), bstore(v_t, None, S_FL, s_myfl, off=128 * h, mod="sc1"), raw("s_mov_b64 exec, -1", "salu", wr=["exec"])]
vpa = V(51)
s_done, s_new, s_sb = s_kK, s_kV, s_fo
def spl(gp, i): return A((gp * 2 + i) * 4, 4)
def flag_load(): return bload(vpoll, vpa, S_FL, s_t2, n=1, mod="sc1")
lblc = [0]
def issue_new():
    k = lblc[0]; lblc[0] += 1
    e(valu("v_cmp_eq_u32", "vcc", 1, vpoll)); e(nop(1))
    e(raw("s_andn2_b32 %s, vcc_lo, %s" % (s_new, s_done), "salu", rd=["vcc", s_done], wr=[s_new, "scc"])); e(salu("s_and_b32", s_new, s_new, 255))
    e(raw("s_cbranch_scc0 L_in%d_end" % k, rd=["scc"]))
    e(salu("s_or_b32", s_done, s_done, s_new))
    for gp in range(8):
        e(scmp("s_bitcmp1_b32", s_new, gp)); e(raw("s_cbranch_scc0 L_in%d_%d" % (k, gp), rd=["scc"]))
        e(salu("s_add_u32", s_t0, s_sb, gp * 8192) if not os.environ.get("NOLD") else salu("s_mov_b32", s_t0, s_oob, scc_w=False))
        for i in range(2): e(raw(bload(spl(gp, i), v_lin, S_SPC, s_t0, off=i * 1024, mod="sc1").text))
        em.label("L_in%d_%d" % (k, gp))
    em.label("L_in%d_end" % k)
pinit = [salu("s_lshl_b32", s_t2, s_cq, 3), salu("s_add_u32", s_t2, s_t2, s_cg), salu("s_lshl_b32", s_t2, s_t2, 7), salu("s_mov_b32", s_done, 0, scc_w=False),
         salu("s_lshl_b32", s_sb, s_cg, 16), salu("s_lshl_b32", s_new, s_w, 11), salu("s_add_u32", s_sb, s_sb, s_new)]
extra.setdefault(G1 - 8, []).append((1, pinit, 0))
class MidPoll:
    def __init__(self, tok): self.tok = tok
    def __call__(self):
        em.wait(vm=self.tok); issue_new()
        e(salu("s_mov_b32", s_hb, s_done, scc_w=False))
        midmark.append(em.vm_total)
        return []
midmark = []
if int(os.environ.get("MID", "1")):
    pt = flag_load()
    MIDPOST = int(os.environ.get("MIDPOST", "2"))
    if MIDPOST == 4: extra.setdefault(184 - int(os.environ.get("MID4", "6")), []).append((2, pt, 1))
    else: extra.setdefault(G1 - int(os.environ.get("MID0", "4")), []).append((2, pt, 1))
    if not MIDPOST: extra.setdefault(G1 + int(os.environ.get("MID1", "3")), []).append((0, MidPoll(pt), 0))
    elif MIDPOST != 4: extra.setdefault(G1 + 2, []).append((0, Wait(vm=pt), 0))
    if MIDPOST == 3:
        extra[G1 + 2].pop(); extra[G1 - int(os.environ.get("MID0", "4"))].pop()
if STAMP: extra.setdefault(G1, []).append((0, Stamp(), 0))
class Diag:
    def __call__(self): diag(); return []
if DIAG: extra.setdefault(G1, []).append((0, Diag(), 0))
vs = [Fill(norm, 0, GB - (3 if NB else 1)), Fill(early, G0 + 2, G0 + 40)] + spf
run_stream(46, s2_dma, dtok2, s2_acc, s2_B, extra, vs, posf=pos2, ring=v_ring2, first_dma=6 + NB, tr2=v_tr2, early_dma=int(os.environ.get('ED2', '0')))
stamp(); diag()
def static_loads():
    e(valu("v_cmp_eq_u32", "vcc", 1, vpoll)); e(nop(1))
    e(raw("s_and_b32 %s, vcc_lo, 255" % s_done, "salu", rd=["vcc"], wr=[s_done, "scc"]))
    for gp in range(8):
        e(salu("s_add_u32", s_t0, s_sb, gp * 8192)); e(scmp("s_bitcmp1_b32", s_done, gp)); e(salu("s_cselect_b32", s_t0, s_t0 if not os.environ.get("NOLD") else s_oob, 524288, scc_w=False, scc_r=True))
        for i in range(2): e(bload(spl(gp, i), v_lin, S_SPC, s_t0, off=i * 1024, mod="sc1"))
if MIDPOST == 4:
    em.wait(vm=pt); static_loads()
if MIDPOST == 3:
    st_next(16); fl3 = e(flag_load())
e(nop(5))
for qb in range(4):
    for u in range(4):
        if len(em.lgq) >= 12: em.wait(lg=em.lgq[-12])
        e(dswrite("ds_write_b128", vfw, Facc(u, qb), qb * 16384 + u * 1024))
    if qb & 1: st_next(int(os.environ.get("STW", "1")))
v_fr = V(96, 16); vE = V(64, 16); vs_ = V(80, 16)
for k in range(8): e(valu("v_mov_b64", vs_[(2 * k, 2)], 0))
if MIDPOST == 3:
    em.wait(vm=fl3); stamp()
    if not XY: e(flag_store(0))
    e(flag_store(1))
    static_loads()
em.wait(lg0=True)
e(raw("s_barrier"))
def frr(ws_, u): return sreg(ws_, u, 1)
for ws_ in range(4):
    for u in range(4):
        if len(em.lgq) >= 14: em.wait(lg=em.lgq[-14])
        e(dsread("ds_read_b128", frr(ws_, u), V(55), ws_ * 4096 + u * 1024))
st_next()
if MIDPOST:
    st_next(16)
    if MIDPOST == 1: static_loads()
em.wait(lg0=True)
for u in range(4):
    for k in range(2):
        e(valu("v_pk_add_f32", frr(0, u)[(2 * k, 2)], frr(0, u)[(2 * k, 2)], frr(1, u)[(2 * k, 2)]))
        e(valu("v_pk_add_f32", frr(2, u)[(2 * k, 2)], frr(2, u)[(2 * k, 2)], frr(3, u)[(2 * k, 2)]))
for u in range(4):
    for k in range(2): e(valu("v_pk_add_f32", v_fr[(4 * u + 2 * k, 2)], frr(0, u)[(2 * k, 2)], frr(2, u)[(2 * k, 2)]))
for k in range(16): e(valu("v_mul_f32", vE[k], hx(f2u(-math.log2(math.e))), v_fr[k]))
st_next()
for k in range(16): e(valu("v_exp_f32", vE[k], vE[k]))
for k in range(16): e(valu("v_add_f32", vE[k], "1.0", vE[k]))
st_next()
for k in range(16): e(valu("v_rcp_f32", vE[k], vE[k]))
for k in range(16): e(valu("v_mul_f32", v_fr[k], v_fr[k], vE[k]))
for k in range(8):
    e(valu("v_lshlrev_b32", vE[2 * k], 16, vxf[k])); e(valu("v_and_b32", vE[2 * k + 1], "0xffff0000", vxf[k]))
st_next()
stamp()
accn = [0]
def acc_pieces(mask, sprinkle=False):
    n = accn[0]; accn[0] += 1
    for gp in range(8):
        e(scmp("s_bitcmp1_b32", mask, gp)); e(raw("s_cbranch_scc0 L_acc%d_%d" % (n, gp), rd=["scc"]))
        for k2 in range(8): e(valu("v_accvgpr_read_b32", V(120 + k2), spl(gp, k2 >> 2)[k2 & 3]))
        for k in range(8):
            e(valu("v_lshlrev_b32", V(112 + 2 * (k & 3)), 16, V(120 + k))); e(valu("v_and_b32", V(113 + 2 * (k & 3)), "0xffff0000", V(120 + k)))
            e(valu("v_pk_add_f32", vs_[(2 * k, 2)], vs_[(2 * k, 2)], V(112 + 2 * (k & 3), 2)))
        em.label("L_acc%d_%d" % (n, gp))
        if sprinkle and gp & 1: st_next()
if midmark:
    n_y = em.vm_total - midmark[0]
    e(raw("s_waitcnt vmcnt(%d)" % n_y, "wait")); em._retire(em.vmq, n_y)
    acc_pieces(s_hb, sprinkle=True)
st_next(16)
if MIDPOST != 2: e(flag_load())
if MIDPOST != 3 and not FLG:
    em.wait(vm=spst[-1][0]); stamp()
    if not XY: e(flag_store(0))
    e(flag_store(1))
if MIDPOST == 2: static_loads(); e(flag_load())
s_prev = s_hl
e(salu("s_mov_b32", s_prev, s_done if MIDPOST else 0, scc_w=False)); e(salu("s_mov_b32", s_cnt, 0, scc_w=False))
em.label("L_fin_loop")
em.wait(vm0=True)
issue_new()
e(raw(flag_load().text))
acc_pieces(s_prev)
e(salu("s_mov_b32", s_prev, s_new, scc_w=False))
e(salu("s_add_u32", s_cnt, s_cnt, 1)); e(scmp("s_cmp_ge_u32", s_cnt, 50000)); e(raw("s_cbranch_scc1 L_fin_done", rd=["scc"]))
e(scmp("s_cmp_lg_u32", s_prev, 0)); e(raw("s_cbranch_scc1 L_fin_loop", rd=["scc"]))
e(scmp("s_cmp_lg_u32", s_done, 255)); e(raw("s_cbranch_scc1 L_fin_loop", rd=["scc"]))
em.label("L_fin_done")
if DUMP == "fin": dump_regs([vs_[i] for i in range(16)] + [v_fr[i] for i in range(16)])
for k in range(8): e(valu("v_pk_fma_f32", vE[(2 * k, 2)], vs_[(2 * k, 2)], v_fr[(2 * k, 2)], vE[(2 * k, 2)]))
for k in range(8): e(valu("v_cvt_pk_bf16_f32", vxf[k], vE[2 * k], vE[2 * k + 1]))
for u in range(4): e(bstore(vxf[(2 * u, 2)], vxa, S_OUT, 0, off=32 * u))
stamp(); diag_out()
em.label("L_end")
e(raw("s_endpgm"))
main_end = len(em.out)

em.lgq, em.vmq, em.pend = [], [], {}
em.label("L_sigH_side")
e(salu("s_lshl_b32", s_t1, s_qb, 3)); e(salu("s_add_u32", s_t1, s_t1, s_g))
e(raw("s_mov_b64 exec, 2", "salu", wr=["exec"]))
e(raw("buffer_store_byte %s, off, %s, %s sc1" % (v_fa, S_DBG, s_t1)))
e(raw("s_mov_b64 exec, -1", "salu", wr=["exec"]))
e(raw("s_branch L_sigH_ret"))
em.label("L_fallback")
e(raw("s_waitcnt vmcnt(0) lgkmcnt(0)")); em._retire(em.vmq, 0); em._retire(em.lgq, 0)
for k in range(8): e(valu("v_accvgpr_write_b32", a_x[k], V(40 + k)))
e(salu("s_mov_b32", s_retry, 1, scc_w=False))
e(salu("s_mov_b32", S_H[2], 0, scc_w=False))
e(salu("s_mov_b32", s_kK, 0, scc_w=False))
fm = [V(40 + i) for i in range(4)]
for i in range(4): e(valu("v_mov_b32", fm[i], "0xff800000"))
em.label("L_fb_loop")
e(raw("s_barrier"))
e(salu("s_add_u32", "m0", s_m0b, 4 * 16384)); e(nop(0))
for j in range(4): e(dma(v_kd[j], S_K, s_kK, j * 1024))
em.wait(vm0=True)
e(raw("s_barrier"))
for kb in range(4):
    rr = [e(dsread("ds_read_b128", fr(ds), v_ka[ds], kb * 4096)) for ds in range(4)]
    em.wait(lg0=True)
    for ds in range(4):
        for qb in range(4):
            d = v_S[0][(qb * 4, 4)]
            e(mfma(d, fr(ds), Qf(qb, ds), 0 if ds == 0 else d))
    e(nop(7))
    for qb in range(4):
        e(valu("v_max3_f32", fm[qb], fm[qb], v_S[0][qb * 4], v_S[0][qb * 4 + 1])); e(valu("v_max3_f32", fm[qb], fm[qb], v_S[0][qb * 4 + 2], v_S[0][qb * 4 + 3]))
    e(nop(2))
e(salu("s_add_u32", s_kK, s_kK, 16384)); e(scmp("s_cmp_lt_u32", s_kK, 524288)); e(raw("s_cbranch_scc1 L_fb_loop", rd=["scc"]))
red4("v_max_f32", fm, [V(44 + i) for i in range(4)])
for qb in range(4):
    for k in range(4): e(valu("v_sub_f32", v_negm[qb * 4 + k], 0, fm[qb]))
e(raw("s_barrier"))
for m in (64, 65, 66):
    sa, dm = s1_dma(m); e(sa)
    for d in dm: e(d)
e(raw("s_waitcnt vmcnt(0)"))
e(raw("s_branch L_att_start"))
em.label("L_code_end")
e(raw("s_endpgm"))

probs = check_hazards(em.out, "main") + loop_probs
for p in probs: print("; HAZARD", p, file=sys.stderr)
assert not probs

hdr = open(os.path.join(os.path.dirname(os.path.abspath(__file__)), "header.txt")).read()
print(hdr.rstrip())
print("; @launch grid=(256,1,1) block=(256,1,1) lds=163840")
print('.amdgcn_target "amdgcn-amd-amdhsa--gfx950"\n.text\n.globl %s\n.p2align 8\n.type %s,@function\n%s:' % (KN, KN, KN))
print(em.text())
print('.section .rodata,"a"\n.p2align 6\n.amdhsa_kernel %s' % KN)
print("  .amdhsa_next_free_vgpr 512\n  .amdhsa_next_free_sgpr 102\n  .amdhsa_accum_offset 256\n  .amdhsa_group_segment_fixed_size 0\n  .amdhsa_kernarg_size 96\n  .amdhsa_user_sgpr_count 2\n  .amdhsa_user_sgpr_kernarg_segment_ptr 1\n  .amdhsa_system_sgpr_workgroup_id_x 1\n.end_amdhsa_kernel")
```

```python
import sys, os, math, struct
from asmgen import *

KN = "recurrent_scan__gqa_block_cached__geglu_ffn__prompt_kernel"
DUMP = os.environ.get("DUMP", "")
STAMP = int(os.environ.get("STAMP", "0"))
GEL_END = int(os.environ.get("GEL_END", "247")); GEL_EXTRA = int(os.environ.get("GEL_EXTRA", "360"))

def f2u(x): return struct.unpack("<I", struct.pack("<f", x))[0]
def hx(x): return "0x%x" % (x & 0xffffffff)

S_X, S_K, S_V, S_WQ, S_WO, S_WG, S_WU, S_WD, S_OUT, S_DBG, S_H, S_SP = [S(4 + 4 * i, 4) for i in range(12)]
s_g, s_qb, s_w = S(52), S(53), S(54)
s_t0, s_t1, s_t2, s_t3 = S(55), S(56), S(57), S(58)
s_m0b = S(59)
s_off = S(60)
s_cnt = S(61)
s_kK, s_kV = S(62), S(63)
s_retry = S(64)
s_h0, s_h1 = S(65), S(66)
s_hl = S(67); s_hb = S(78); s_myfl = S(79); s_wdd = S(67); s_sig = S(78)
s_ka = S(68, 16); s_kb = S(84, 8)
s_pair = S(92, 2); s_pair2 = S(94, 2)
S_DMP = S(96, 4)
s_cq, s_cg = S(76), S(77)
S_HC = S(80, 4)
S_SPC = S(84, 4)
S_XC = S(88, 4)
s_st = S(68, 4)

v_tid, v_lane, v_lin, v_t = V(0), V(1), V(2), V(3)
v_tr = [V(4, 4), V(8, 4)]
v_dA, v_dB = V(12, 4), V(16, 4)
v_ka = V(20, 4); v_va = V(24, 8); v_kd = V(32, 4); v_vd = V(36, 2)
v_wl = V(38)
v_c = V(39)
v_l0, v_l1 = V(40, 4), V(44, 4)
v_lsave = V(16, 4)
v_negm = V(48, 16)
v_S = [V(64, 32), V(96, 32)]
v_acc = V(128, 128)
a_ring = A(128, 32)
a_B = A(160, 32)
a_Q = A(0, 64)
a_F = A(0, 64)
a_x = A(248, 8)
LSUM = int(os.environ.get('LSUM', '1'))
a_L = A(224, 16); a_ones = A(240, 4)

RING = 65536
MARK = 0x7fc17fc1
WS_SP = 8 << 20
WS_DUMP = 32 << 20
WS_FL = (7 << 20) + (512 << 10)
S_FL = S(4, 4)

em = Em()
e = em.e

def srd(dst, lo, hi, size, off_s=None):
    if off_s is None:
        e(salu("s_mov_b32", dst[0], lo, scc_w=False)); e(salu("s_mov_b32", dst[1], hi, scc_w=False))
    else:
        e(salu("s_add_u32", dst[0], lo, off_s)); e(salu("s_addc_u32", dst[1], hi, 0, scc_r=True))
    e(salu("s_mov_b32", dst[2], hx(size), scc_w=False)); e(salu("s_mov_b32", dst[3], "0x20000", scc_w=False))

DIAG = int(os.environ.get("DIAG", "0"))
HC_OFF = 128
diag_regs = [S(100, 2), S(70, 2), S(72, 2), S(74, 2), S(96, 2), S(98, 2), S(68, 2)] if DIAG == 1 else [S(100, 2), S(96, 2), S(98, 2), S(94, 2), S(70, 2), S(72, 2), S(74, 2), S(68, 2)]
diag_n = [0]
def diag(which=1, last=False):
    if not DIAG or (which != DIAG and which != 0): return
    k = diag_n[0]; diag_n[0] += 1
    e(raw("%s %s" % ("s_memtime" if (os.environ.get("CYC") and not last) else "s_memrealtime", diag_regs[k]), "other", wr=[diag_regs[k]]))
    if k > 0: e(raw("s_waitcnt lgkmcnt(0)", "wait")); em._retire(em.lgq, 0)
AMP = os.environ.get("AMP")
def diag_out():
    if not DIAG: return
    diag(0, last=True)
    if AMP:
        k = int(AMP); last = diag_regs[diag_n[0] - 1]
        e(salu("s_sub_u32", s_t0, diag_regs[k][0], diag_regs[int(os.environ.get("AMP0", "0"))][0]))
        if os.environ.get("CYC"): e(salu("s_lshr_b32", s_t0, s_t0, 2))
        else: e(salu("s_lshl_b32", s_t0, s_t0, 2))
        em.label("L_amp")
        e(raw("s_memrealtime s[56:57]")); e(raw("s_waitcnt lgkmcnt(0)"))
        e(salu("s_sub_u32", s_t1, s_t1, last[0])); e(scmp("s_cmp_lt_u32", s_t1, s_t0)); e(raw("s_cbranch_scc1 L_amp", rd=["scc"]))
        return
    e(scmp("s_cmp_lg_u32", s_w, 0)); e(raw("s_cbranch_scc1 L_end", rd=["scc"]))
    e(raw("s_mov_b64 exec, 1", "salu", wr=["exec"]))
    e(salu("s_not_b32", s_t0, diag_regs[0][0]))
    for k in range(diag_n[0]):
        e(valu("v_mov_b32", V(4 + k), s_t0 if k == 0 else diag_regs[k][0]))
        e(raw("buffer_atomic_umax %s, off, %s, 0 offset:%d sc1" % (V(4 + k), S_DBG, 4 * k)))
    e(valu("v_mov_b32", V(12), diag_regs[0][0]))
    e(raw("buffer_atomic_umax %s, off, %s, 0 offset:%d sc1" % (V(12), S_DBG, 4 * 9)))
stamp_n = [0]
def stamp():
    if not STAMP: return
    k = stamp_n[0]; stamp_n[0] += 1
    e(raw("s_memtime %s" % S(68, 2), "other", wr=[S(68, 2)]))
    e(raw("s_memrealtime %s" % S(70, 2), "other", wr=[S(70, 2)]))
    e(raw("s_waitcnt lgkmcnt(0)", "wait")); em._retire(em.lgq, 0)
    for i in range(4): e(valu("v_writelane_b32", v_c, S(68 + i), i, rmw=True))
    e(salu("s_lshl_b32", S(72), S(2), 2)); e(salu("s_add_u32", S(72), S(72), s_w)); e(salu("s_lshl_b32", S(72), S(72), 9))
    e(salu("s_mov_b64", S(74, 2), "exec", scc_w=False)); e(raw("s_mov_b64 exec, 15", "salu", wr=["exec"]))
    e(valu("v_lshlrev_b32", v_t, 2, v_lane))
    e(bstore(v_c, v_t, S_DMP, S(72), off=k * 16))
    e(raw("s_mov_b64 exec, %s" % S(74, 2), "salu", wr=["exec"]))
    e(valu("v_lshlrev_b32", v_t, 7, v_lane))

def dump_regs(regs, finish=True):
    em.wait(lg0=True, vm0=True)
    e(nop(7)); e(nop(7))
    n = len(regs)
    e(salu("s_lshl_b32", s_t0, S(2), 2)); e(salu("s_add_u32", s_t0, s_t0, s_w)); e(salu("s_mul_i32", s_t0, s_t0, n * 256, scc_w=False))
    e(valu("v_lshlrev_b32", v_t, 2, v_lane))
    for k, r in enumerate(regs):
        e(bstore(r, v_t, S_DMP, s_t0, off=0))
        e(salu("s_add_u32", s_t0, s_t0, 256))
        if k % 32 == 31: em.wait(vm0=True)
    em.wait(vm0=True)
    if finish: e(raw("s_endpgm"))

def red4(op, x, tmp):
    for sw in ("v_permlane32_swap_b32", "v_permlane16_swap_b32"):
        for a, t in zip(x, tmp): e(valu("v_mov_b32", t, a))
        if len(x) < 3: e(nop(1))
        for a, t in zip(x, tmp): e(valu(sw, a, t))
        for a, t in zip(x, tmp): e(valu(op, a, a, t))

e(scmp("s_cmp_ge_u32", S(2), 256)); e(raw("s_cbranch_scc1 L_end", rd=["scc"]))
diag(0)
i0 = e(I("s_load_dwordx16 %s, s[0:1], 0" % s_ka, "smem", wr=s_ka.regs()))
i1 = e(I("s_load_dwordx8 %s, s[0:1], 64" % s_kb, "smem", wr=s_kb.regs()))
vq, vG, vr, vc_, vx, vy, vz = [V(40 + i) for i in range(7)]
e(raw("s_getpc_b64 %s" % s_pair2, "salu", wr=[s_pair2]))
em.label("L_pc0")
CT0 = int(os.environ.get("CT0", "64"))
if CT0:
    e(valu("v_sub_u32", V(55), 255, v_tid)); e(valu("v_cmp_gt_u32", "vcc", CT0, V(55))); e(valu("v_lshlrev_b32", V(55), 7, V(55))); e(nop(0))
    e(raw("s_and_saveexec_b64 s[4:5], vcc", "salu", wr=["exec"], rd=["vcc"])); e(raw("s_cbranch_execz L_ct0"))
    e(raw("global_load_dword v55, v55, %s" % s_pair2))
    em.label("L_ct0")
    e(raw("s_mov_b64 exec, -1", "salu", wr=["exec"]))
MAP2 = int(os.environ.get("MAP2", "1"))
s_i = S(65)
if MAP2:
    e(salu("s_and_b32", s_g, S(2), 3)); e(salu("s_lshl_b32", s_g, s_g, 1)); e(salu("s_bfe_u32", s_t0, S(2), "0x10003")); e(salu("s_add_u32", s_g, s_g, s_t0))
    e(salu("s_bfe_u32", s_qb, S(2), "0x10002")); e(salu("s_lshl_b32", s_qb, s_qb, 4)); e(salu("s_lshr_b32", s_t0, S(2), 4)); e(salu("s_add_u32", s_qb, s_qb, s_t0))
else:
    e(salu("s_and_b32", s_g, S(2), 7)); e(salu("s_lshr_b32", s_qb, S(2), 3))
def sx(dst): return salu("s_lshr_b32", dst, S(2), 4 if MAP2 else 3)
TL = "-1" if MAP2 else "0xffffffff"
e(valu("v_and_b32", v_lane, 63, v_tid))
e(valu("v_lshrrev_b32", v_t, 6, v_tid))
e(valu("v_lshlrev_b32", v_lin, 4, v_lane))
e(valu("v_readfirstlane_b32", s_w, v_t))
e(valu("v_and_b32", vq, 15, v_lane)); e(valu("v_lshrrev_b32", vG, 4, v_lane))
vxo = V(47)
e(valu("v_lshl_add_u32", vxo, v_t, 4, vq)); e(valu("v_lshlrev_b32", vxo, 10, vxo)); e(valu("v_lshl_add_u32", vxo, vG, 4, vxo))
vwg, vwq, vcw = V(52), V(53), V(54)
e(salu("s_mul_i32", s_t1, s_g, 448, scc_w=False)); e(salu("s_and_b32", s_t1, s_t1, hx(~127)))
e(salu("s_and_b32", s_t2, s_w, 1)); e(sx(s_t3)); e(salu("s_lshl_b32", s_t3, s_t3, 1)); e(salu("s_add_u32", s_t2, s_t2, s_t3))
e(salu("s_mul_i32", s_t2, s_t2, (16 if MAP2 else 8) * 3584, scc_w=False)); e(salu("s_add_u32", s_t1, s_t1, s_t2))
e(valu("v_lshrrev_b32", vx, 2, v_lane)); e(valu("v_mul_u32_u24", vx, 3584, vx)); e(valu("v_and_b32", vz, 3, v_lane)); e(valu("v_lshl_add_u32", vx, vz, 7, vx))
e(valu("v_add_u32", vwg, s_t1, vx))
e(salu("s_lshr_b32", s_t2, S(2), 3)); e(salu("s_lshl_b32", s_t2, s_t2, 2)); e(salu("s_add_u32", s_t2, s_t2, s_w)); e(salu("s_lshl_b32", s_t3, s_t2, 8))
e(valu("v_lshlrev_b32", vcw, 7, v_lane)); e(valu("v_add_u32", vcw, s_t3, vcw))
e(salu("s_lshl_b32", s_t0, s_qb, 16))
em.wait(lg0=True)
diag(2)
srd(S_X, s_ka[0], s_ka[1], 65536, s_t0)
v_xp = V(64, 64)
XFIRST = int(os.environ.get("XFIRST", "12"))
xl = [bload(v_xp[(4 * ks, 4)], vxo, S_X, 0, off=64 * ks) for ks in range(16)]
for ks in range(XFIRST): e(xl[ks])
e(scmp("s_cmp_lt_u32", s_w, 2)); e(salu("s_cselect_b64", s_pair, s_ka[(12, 2)], s_ka[(14, 2)], scc_w=False, scc_r=True))
e(raw("s_mov_b64 exec, " + TL, "salu", wr=["exec"]))
e(I("global_load_dword %s, %s, %s" % (V(48), vwg, s_pair), "vmem", rd=vwg.regs() + s_pair.regs(), wr=V(48).regs()))
e(raw("s_mov_b64 exec, 3", "salu", wr=["exec"]))
e(I("global_load_dword %s, %s, %s" % (V(49), vcw, s_pair2), "vmem", rd=vcw.regs() + s_pair2.regs(), wr=V(49).regs()))
e(raw("s_mov_b64 exec, -1", "salu", wr=["exec"]))
e(sx(s_t2)); e(salu("s_lshl_b32", s_t2, s_t2, 2)); e(salu("s_add_u32", s_t2, s_t2, s_w))
e(salu("s_lshl_b32", s_t2, s_t2, 16 if MAP2 else 15)); e(salu("s_lshl_b32", s_t3, s_g, 10)); e(salu("s_add_u32", s_t2, s_t2, s_t3))
e(valu("v_lshrrev_b32", vx, 3, v_lane)); e(valu("v_lshlrev_b32", vx, 13, vx)); e(valu("v_and_b32", vz, 7, v_lane)); e(valu("v_lshl_add_u32", vx, vz, 7, vx))
e(valu("v_add_u32", vwq, s_t2, vx))
e(salu("s_lshr_b32", s_t2, S(2), 6)); e(salu("s_and_b32", s_t3, S(2), 7)); e(salu("s_lshl_b32", s_t3, s_t3, 2)); e(salu("s_add_u32", s_t2, s_t2, s_t3))
e(salu("s_lshl_b32", s_t0, s_t2, 16))
srd(S_OUT, s_kb[2], s_kb[3], 65536, s_t0)
e(salu("s_lshl_b32", s_t1, s_g, 19))
srd(S_K, s_ka[2], s_ka[3], 524288, s_t1)
srd(S_V, s_ka[4], s_ka[5], 524288, s_t1)
srd(S_WO, s_ka[8], s_ka[9], 524288, s_t1)
srd(S_WQ, s_ka[6], s_ka[7], 4 << 20)
srd(S_WG, s_ka[12], s_ka[13], 1835008)
srd(S_WU, s_ka[14], s_ka[15], 1835008)
srd(S_WD, s_kb[0], s_kb[1], 1835008)
srd(S_DBG, s_kb[4], s_kb[5], 256)
e(salu("s_mul_i32", s_t1, s_qb, 229376, scc_w=False))
srd(S_H, s_kb[6], s_kb[7], 229376, s_t1)
e(salu("s_lshl_b32", s_t1, s_qb, 19)); e(salu("s_add_u32", s_t1, s_t1, hx(WS_SP)))
srd(S_SP, s_kb[6], s_kb[7], 524288, s_t1)
if DUMP or STAMP:
    e(salu("s_mov_b32", s_t1, hx(WS_DUMP), scc_w=False))
    srd(S_DMP, s_kb[6], s_kb[7], 200 << 20, s_t1)
e(salu("s_mov_b64", s_pair, S(90, 2), scc_w=False))
e(salu("s_lshl_b32", s_t0, s_t2, 16))
srd(S_XC, s_ka[0], s_ka[1], 65536, s_t0)
e(salu("s_mul_i32", s_t1, s_t2, 229376, scc_w=False))
srd(S_HC, s_pair[0], s_pair[1], 229376, s_t1)
e(salu("s_lshl_b32", s_t1, s_t2, 19)); e(salu("s_add_u32", s_t1, s_t1, hx(WS_SP)))
srd(S_SPC, s_pair[0], s_pair[1], 524288, s_t1)
e(salu("s_mov_b32", s_cq, s_t2, scc_w=False)); e(salu("s_bfe_u32", s_cg, S(2), "0x30003"))
e(salu("s_lshl_b32", s_myfl, s_qb, 2)); e(salu("s_add_u32", s_myfl, s_myfl, s_w)); e(salu("s_lshl_b32", s_myfl, s_myfl, 8))
e(salu("s_lshl_b32", s_t1, s_g, 2)); e(salu("s_add_u32", s_myfl, s_myfl, s_t1))
e(salu("s_lshl_b32", s_m0b, s_w, 12)); e(salu("s_add_u32", s_m0b, s_m0b, RING))
e(salu("s_and_b32", s_t1, s_g, 1)); e(salu("s_lshl_b32", s_t1, s_t1, 2)); e(salu("s_add_u32", s_t1, s_t1, s_w))
e(scmp("s_cmp_eq_u32", s_w, 3)); e(salu("s_cselect_b32", s_t1, 3, s_t1, scc_w=False, scc_r=True))
e(salu("s_lshr_b32", s_t2, s_g, 1)); e(salu("s_mul_i32", s_t2, s_t2, 7, scc_w=False)); e(salu("s_add_u32", s_t1, s_t1, s_t2))
e(salu("s_lshl_b32", s_h0, s_t1, 13)); e(salu("s_add_u32", s_h1, s_h0, 4096))
e(salu("s_lshl_b32", s_t1, s_t1, 7))
e(salu("s_lshl_b32", s_t2, s_g, 2)); e(salu("s_add_u32", s_t2, s_t2, s_w)); e(salu("s_lshl_b32", s_t2, s_t2, 8))

def dma_voffs(dst, stride, colbase_s, perm):
    for j in range(4):
        e(valu("v_bfe_u32", vx, v_lane, 1, 2)); e(valu("v_bfe_u32", vy, v_lane, 4, 1))
        e(valu("v_xor_b32", vx, vx, vy))
        if j & 1: e(valu("v_xor_b32", vx, 2, vx))
        e(valu("v_and_b32", vy, 1, v_lane)); e(valu("v_lshlrev_b32", vy, 4, vy)); e(valu("v_lshl_add_u32", vx, vx, 5, vy))
        if not perm:
            e(valu("v_lshrrev_b32", vy, 3, v_lane)); rowadd = 8 * j
        else:
            e(valu("v_bfe_u32", vy, v_lane, 3, 2)); e(valu("v_bfe_u32", vz, v_lane, 5, 1)); e(valu("v_lshl_add_u32", vy, vz, 4, vy)); rowadd = 4 * j
        e(valu("v_mul_u32_u24", vy, stride, vy))
        e(valu("v_add3_u32", vx, vx, vy, colbase_s))
        e(valu("v_add_u32", dst[j], rowadd * stride - j * 1024, vx))

dma_voffs(v_dA, 3584, s_t1, False)
dma_voffs(v_dB, 8192, s_t2, False)

def m0set(p): return salu("s_add_u32", "m0", s_m0b, p * 16384) if p < 6 else salu("s_sub_u32", "m0", s_m0b, RING - (p - 6) * 16384)
def s1_dma(m):
    p = m % 6
    if m < 32:
        s, h = m >> 1, m & 1
        return [m0set(p), salu("s_mov_b32", s_off, s * 32 * 3584, scc_w=False)], [dma(v_dA[j], S_WU if h else S_WG, s_off, j * 1024) for j in range(4)]
    if m < 64:
        s, h = (m - 32) >> 1, m & 1
        return [m0set(p), salu("s_mov_b32", s_off, s * 32 * 8192 + 128 * h, scc_w=False)], [dma(v_dB[j], S_WQ, s_off, j * 1024) for j in range(4)]
    if m == 64:
        return [m0set(p), salu("s_mov_b32", s_off, 0, scc_w=False)], [dma(v_kd[j], S_K, s_off, j * 1024) for j in range(4)]
    if m == 65:
        return [m0set(p), salu("s_mov_b32", s_off, 8192, scc_w=False)], [dma(v_kd[j], S_K, s_off, j * 1024) for j in range(4)]
    if m == 66:
        return [m0set(p), salu("s_mov_b32", s_off, 0, scc_w=False)], [dma(v_vd[j & 1], S_V, s_off, j * 1024) for j in range(4)]
    return None
dtok = {}
ln_v = []
for m in range(6):
    sa, dm = s1_dma(m)
    ln_v.append(sa); ln_v += dm
    dtok[m] = dm[3]
def xaddr(dst, tmp):
    e(valu("v_and_b32", dst, 15, v_lane)); e(salu("s_lshl_b32", s_t0, s_w, 4)); e(valu("v_add_u32", dst, s_t0, dst)); e(valu("v_lshlrev_b32", dst, 10, dst))
    e(valu("v_lshrrev_b32", tmp, 4, v_lane)); e(valu("v_lshl_add_u32", dst, tmp, 3, dst)); e(salu("s_lshl_b32", s_t0, s_cg, 7)); e(valu("v_add_u32", dst, s_t0, dst))
vxs, vzero = V(50), V(51)
xaddr(vxs, vy)
e(valu("v_mov_b32", vzero, 0))
ln_v += [bload(a_x[(2 * u, 2)], vxs, S_XC, 0, off=32 * u, n=2) for u in range(4)]
e(valu("v_lshlrev_b32", V(39), 7, v_lane))
ln_v.append([raw("s_mov_b64 exec, 3", "salu", wr=["exec"]), bstore(vzero, V(39), S_FL, s_myfl, mod="sc1"), raw("s_mov_b64 exec, -1", "salu", wr=["exec"])])
ln_v.append([raw("s_mov_b64 exec, " + TL, "salu", wr=["exec"]), bload(V(46), vwq, S_WQ, 0, n=1), raw("s_mov_b64 exec, -1", "salu", wr=["exec"])])
LNPRE = int(os.environ.get("LNPRE", "0"))
lv = [0]
def ln_issue(n=1):
    k = 0
    while k < n and lv[0] < len(ln_v):
        it = ln_v[lv[0]]; lv[0] += 1
        e(it)
        if not isinstance(it, list): k += 1
e(valu("v_bfe_u32", vr, v_lane, 2, 2)); e(valu("v_and_b32", vc_, 3, v_lane))
e(valu("v_lshlrev_b32", vx, 10, vG)); e(valu("v_lshl_add_u32", vx, vr, 7, vx)); e(valu("v_lshl_add_u32", vx, vc_, 3, vx)); e(valu("v_add_u32", vx, s_m0b, vx))
e(valu("v_lshrrev_b32", vy, 1, vr)); e(valu("v_and_b32", vz, 1, vG)); e(valu("v_lshl_add_u32", vy, vz, 1, vy))
for u in range(4):
    e(valu("v_xor_b32", vz, u, vy)); e(valu("v_lshl_add_u32", v_tr[0][u], vz, 5, vx)); e(valu("v_add_u32", v_tr[1][u], 3 * 16384, v_tr[0][u]))
e(valu("v_xor_b32", vy, vG, vq))
for ds in range(4):
    e(valu("v_xor_b32", vz, 4 * ds, vy)); e(valu("v_lshlrev_b32", vz, 4, vz)); e(valu("v_lshl_add_u32", vz, vq, 8, vz)); e(valu("v_add_u32", v_ka[ds], RING + 4 * 16384, vz))
e(valu("v_lshl_add_u32", vx, vG, 2, vr)); e(valu("v_and_b32", vy, 7, vx)); e(valu("v_lshlrev_b32", vx, 8, vx)); e(valu("v_lshl_add_u32", vx, vc_, 3, vx)); e(valu("v_add_u32", vx, RING, vx))
for db in range(8):
    e(valu("v_xor_b32", vz, db, vy)); e(valu("v_lshl_add_u32", v_va[db], vz, 5, vx))
e(salu("s_lshl_b32", s_t1, s_w, 12))
e(valu("v_lshlrev_b32", vx, 8, vG)); e(valu("v_add_u32", vx, s_t1, vx))
for j in range(4):
    e(valu("v_add_u32", vy, 4 * j, vG)); e(valu("v_xor_b32", vy, vy, vq)); e(valu("v_lshl_add_u32", v_kd[j], vy, 4, vx))
e(valu("v_and_b32", vz, 1, v_lane)); e(valu("v_lshl_add_u32", vx, vz, 4, vx))
for j in range(2):
    e(valu("v_add_u32", vy, 4 * j, vG)); e(valu("v_lshrrev_b32", vz, 1, vq)); e(valu("v_xor_b32", vy, vy, vz)); e(valu("v_lshl_add_u32", v_vd[j], vy, 5, vx))
e(salu("s_lshl_b32", s_t1, s_w, 14)); e(valu("v_add_u32", v_wl, s_t1, v_lin))
e(salu("s_mov_b32", s_retry, 0, scc_w=False))
for ks in range(XFIRST, 16): e(xl[ks])
e(salu("s_mov_b32", s_t1, hx(WS_FL), scc_w=False))
srd(S_FL, s_pair[0], s_pair[1], 32768, s_t1)
ln_issue(LNPRE)
stamp()

v_f = V(128, 128)
acc = [V(56, 2), V(58, 2), V(60, 2), V(62, 2)]
diag(2)
for ks in range(16):
    em.wait(vm=xl[ks])
    if ks == 15: diag(2)
    for k in range(4):
        p = 4 * ks + k
        e(valu("v_lshlrev_b32", v_f[2 * p], 16, v_xp[p])); e(valu("v_and_b32", v_f[2 * p + 1], "0xffff0000", v_xp[p]))
    for k in range(4):
        p = 4 * ks + k
        if ks == 0: e(valu("v_mov_b64", acc[k], v_f[(2 * p, 2)]))
        else: e(valu("v_pk_add_f32", acc[k], acc[k], v_f[(2 * p, 2)]))
if STAMP == 3: stamp()
ln_issue(int(os.environ.get("LN_FIRST", "12")))
diag(2)
if STAMP == 3: stamp()
e(valu("v_pk_add_f32", acc[0], acc[0], acc[1])); e(valu("v_pk_add_f32", acc[2], acc[2], acc[3])); e(valu("v_pk_add_f32", acc[0], acc[0], acc[2]))
vsum, vtmp, vmb, vdm = V(40), V(41), V(42), V(43)
e(valu("v_add_f32", vsum, acc[0][0], acc[0][1]))
red4("v_add_f32", [vsum], [vtmp])
e(valu("v_mul_f32", vsum, hx(f2u(1.0 / 512)), vsum))
e(valu("v_cvt_pk_bf16_f32", vmb, vsum, vsum)); e(valu("v_lshlrev_b32", vmb, 16, vmb))
e(valu("v_sub_f32", vdm, vsum, vmb))
vneg = V(56, 2)
e(valu("v_sub_f32", vneg[0], 0, vmb))
acc2 = [V(58, 2), V(60, 2), V(62, 2)]
for p in range(64):
    e(valu("v_pk_add_f32", v_f[(2 * p, 2)], v_f[(2 * p, 2)], vneg, mod="op_sel_hi:[1,0]"))
for p in range(64):
    a_ = acc2[p % 3]
    if p < 3: e(valu("v_pk_mul_f32", a_, v_f[(2 * p, 2)], v_f[(2 * p, 2)]))
    else: e(valu("v_pk_fma_f32", a_, v_f[(2 * p, 2)], v_f[(2 * p, 2)], a_))
if STAMP == 3: stamp()
e(valu("v_pk_add_f32", acc2[0], acc2[0], acc2[1])); e(valu("v_pk_add_f32", acc2[0], acc2[0], acc2[2]))
e(valu("v_add_f32", vsum, acc2[0][0], acc2[0][1]))
red4("v_add_f32", [vsum], [vtmp])
e(valu("v_mul_f32", vsum, hx(f2u(1.0 / 512)), vsum))
e(valu("v_fma_f32", vsum, "-" + str(vdm), vdm, vsum, extra_rd=vdm.regs()))
e(valu("v_max_f32", vsum, 0, vsum))
e(valu("v_cvt_pk_bf16_f32", vsum, vsum, vsum)); e(valu("v_lshlrev_b32", vsum, 16, vsum))
e(valu("v_add_f32", vsum, hx(f2u(1e-5)), vsum))
e(valu("v_cvt_pk_bf16_f32", vsum, vsum, vsum)); e(valu("v_lshlrev_b32", vsum, 16, vsum))
e(valu("v_sqrt_f32", vsum, vsum)); e(nop(0))
e(valu("v_cvt_pk_bf16_f32", vsum, vsum, vsum)); e(valu("v_lshlrev_b32", vsum, 16, vsum))
e(valu("v_rcp_f32", vneg[0], vsum)); e(nop(0))
for ks in range(16):
    for k in range(4):
        p = 4 * ks + k
        e(valu("v_pk_mul_f32", v_f[(2 * p, 2)], v_f[(2 * p, 2)], vneg, mod="op_sel_hi:[1,0]"))
    for k in range(4):
        p = 4 * ks + k
        e(valu("v_cvt_pk_bf16_f32", v_xp[p], v_f[2 * p], v_f[2 * p + 1]))
    e(dswrite("ds_write_b128", v_wl, v_xp[(4 * ks, 4)], ks * 1024))
ln_issue(int(os.environ.get("LN_LAST", "100")))
if STAMP == 3: stamp()
if DUMP == "ln": dump_regs([v_xp[i] for i in range(64)])
em.wait(lg0=True)
e(raw("s_barrier"))
stamp(); diag(); diag(2)

def cost_of(it):
    k = getattr(it, "kind", "")
    return 2 if k == "trans" else (0 if k in ("salu", "nop") else 1)
class Fill:
    def __init__(self, items, start, end, spread=False): self.items, self.start, self.end, self.spread = list(items), start, end, spread; self.i = 0
    def done(self): return self.i == len(self.items)
def run_stream(NH, dmaf, dtok, accf, Bf, extra, fills, LOOK=6, nq=4, posf=lambda m: m % 6, ring=a_ring, first_dma=6, tr2=None, early_dma=False):
    NG = 4 * NH
    rtok = {}
    def reads(g):
        m, u = g >> 2, g & 3
        p = posf(m)
        d = ring[((g % 8) * 4, 4)]
        ar, of = (v_tr[p // 3][u], (p % 3) * 16384) if p < 6 else (tr2[u], (p - 6) * 16384)
        r = [dsread("ds_read_b64_tr_b16", d[(2 * h2, 2)], ar, of + h2 * 512) for h2 in range(2)]
        rtok[g] = r[1]
        return r
    pre = [reads(g) for g in range(3)]
    G, C = [], []
    cur = None
    for g in range(NG):
        gaps = [[], [], [], []]; cap = [2, 2, 2, 2]
        if g + 3 < NG:
            if (g + 3) & 3 == 0: gaps[0].append(LateW(dtok, (g + 3) >> 2))
            r = reads(g + 3); gaps[0].append(r[0]); gaps[1].append(r[1]); cap[0] -= 1; cap[1] -= 1
        md, j = (g + 4 * LOOK - 4) >> 2, (g + 4 * LOOK - 4) & 3
        if early_dma:
            md, j = (g + 4 * LOOK - 3) >> 2, (g + 4 * LOOK - 3) & 3
            if md >= first_dma and j < 2:
                if j == 0: cur = dmaf(md)
                if cur is not None:
                    if j == 0: gaps[1] += cur[0]
                    gaps[2].append(cur[1][2 * j]); gaps[3].append(cur[1][2 * j + 1]); cap[2] -= 1; cap[3] -= 1
                    if j == 1: dtok[md] = cur[1][3]
        elif md >= first_dma:
            if j == 0: cur = dmaf(md)
            if cur is not None:
                if j == 0: gaps[2] += cur[0]
                for it in cur[1][j::4]: gaps[3].append(it); cap[3] -= 1
                if j == 3: dtok[md] = cur[1][3]
        for (gp, it, cost) in extra.get(g, []):
            gaps[gp].append(it); cap[gp] -= cost
        if g + 1 < NG: gaps[3].insert(0, Wait(lg=rtok[g + 1]))
        G.append(gaps); C.append(cap)
    B = {}
    for f in fills:
        idx = [(g, q) for g in range(f.start, f.end) for q in range(4)]
        caps = [max(0, C[g][q]) for g, q in idx]
        W = sum(cost_of(it) for it in f.items); T = sum(caps); n = len(idx)
        acc = 0.0; cum = 0
        for k, key in enumerate(idx):
            if W >= T: acc += caps[k] + (W - T) / n
            elif f.spread: acc += caps[k] * W / T
            else: acc += caps[k]
            B[key] = (f, acc)
    em.wait(vm=dtok[0])
    for r in pre: e(r)
    for p_ in extra.get(-1, []): e(p_[1])
    em.wait(lg0=True)
    used = {id(f): 0 for f in fills}
    for g in range(NG):
        m, u = g >> 2, g & 3
        d = ring[((g % 8) * 4, 4)]
        for qb in range(nq):
            ac, first = accf(m, u, qb)
            e(mfma(ac, d, Bf(m, qb), 0 if first else ac))
            ent = B.get((g, qb))
            sawv = False
            if ent:
                f, lim = ent
                while not f.done() and getattr(f.items[f.i], "kind", "") in ("lds", "vmem", "salu") and used[id(f)] + cost_of(f.items[f.i]) <= lim + 0.5:
                    it = f.items[f.i]; f.i += 1; used[id(f)] += cost_of(it); e(it)
            for it in G[g][qb]: e(it)
            if ent:
                f, lim = ent
                lastgap = (g == f.end - 1 and qb == 3)
                while not f.done():
                    it = f.items[f.i]; c = cost_of(it)
                    if not lastgap:
                        if used[id(f)] + c > lim + 0.5: break
                        if sawv and getattr(it, "kind", "") in ("lds", "vmem"): break
                    f.i += 1; used[id(f)] += c; e(it)
                    if getattr(it, "kind", "") in ("valu", "trans"): sawv = True
    assert all(f.done() for f in fills)
class LateW:
    def __init__(self, d, k): self.d, self.k = d, k
    def __call__(self): return Wait(vm=self.d[self.k])

def s1_acc(m, u, qb):
    h = m & 1
    idx = ((h * 4 + u) * 4 + qb) * 4
    if m < 32: return A(idx, 4), m < 2
    return v_acc[(idx, 4)], m < 34
def s1_B(m, qb): return a_B[(((m >> 1) & 1) * 16 + qb * 4, 4)]
extra = {}
btok = {}
def bread(s, qb): return dsread("ds_read_b128", a_B[((s & 1) * 16 + qb * 4, 4)], v_lin, (qb * 16 + (s % 16)) * 1024)
extra[-1] = [(0, bread(0, qb), 1) for qb in range(4)]
for s in range(1, 32):
    for qb in range(4):
        extra.setdefault(8 * (s - 1) + 1 + qb, []).append((2, bread(s, qb), 1))
gi = 0; gj = 0; pend_s = []
for it in ln_v[lv[0]:]:
    if isinstance(it, list) and all(x.kind == "salu" for x in it): pend_s = it; continue
    if not isinstance(it, list) and it.kind == "dma":
        assert gi < 12
        extra.setdefault(gi // 3, []).append((gi % 3, [pend_s, it] if pend_s else it, 1)); pend_s = []
        gi += 1
    else:
        extra.setdefault(8 + 2 * gj, []).append((1, it, 1)); gj += 1
C0 = -2.0 * math.sqrt(2.0 / math.pi) * math.log2(math.e); C1 = C0 * 0.044715
vc0, vc1 = V(40), V(41)
gel = [valu("v_mov_b32", vc0, hx(f2u(C0))), valu("v_mov_b32", vc1, hx(f2u(C1)))]
hst = []
tb = 0
for i in range(2):
    for qb in range(4):
        pk = V(96 + 4 * tb, 4); tb += 1
        for b in range(2):
            u = 2 * i + b
            T = [V(64 + 16 * b + k) for k in range(16)]
            G_, U_, X_ = T[0:4], T[4:8], T[8:12]
            ga = lambda r: A((u * 4 + qb) * 4 + r); ua = lambda r: A(((4 + u) * 4 + qb) * 4 + r)
            for r in range(4): gel.append(valu("v_accvgpr_read_b32", G_[r], ga(r)))
            for r in range(4): gel.append(valu("v_accvgpr_read_b32", U_[r], ua(r)))
            for r in range(4): gel.append(valu("v_mul_f32", X_[r], G_[r], G_[r]))
            for r in range(4): gel.append(valu("v_fma_f32", X_[r], X_[r], vc1, vc0))
            for r in range(4): gel.append(valu("v_mul_f32", X_[r], X_[r], G_[r]))
            for r in range(4): gel.append(valu("v_exp_f32", X_[r], X_[r]))
            for r in range(4): gel.append(valu("v_mul_f32", G_[r], G_[r], U_[r]))
            for r in range(4): gel.append(valu("v_add_f32", X_[r], "1.0", X_[r]))
            for r in range(4): gel.append(valu("v_rcp_f32", X_[r], X_[r]))
            gel.append(nop(0))
            for r in range(4): gel.append(valu("v_mul_f32", G_[r], G_[r], X_[r]))
            for k in range(2): gel.append(valu("v_cvt_pk_bf16_f32", pk[2 * b + k], G_[2 * k], G_[2 * k + 1]))
        st = bstore(pk, v_lin, S_H, s_h1 if i else s_h0, off=qb * 1024, mod="sc1")
        hst.append(st)
class Stamp:
    def __call__(self): stamp(); return []
if STAMP: extra.setdefault(128, []).append((0, Stamp(), 0))
class Grp:
    kind = "salu"
    def __init__(self, l): self.l = l
    def __call__(self):
        for x in self.l:
            if x.kind == "label": em.out.append(x)
            else: e(x)
        return []
def group_scc(items):
    out = []
    for it in items:
        if out and ("scc" in it.rd or it.kind == "label"):
            p = out.pop(); out.append(Grp((p.l if isinstance(p, Grp) else [p]) + [it]))
        else: out.append(it)
    return out
s_pf = [S(24, 2), S(26, 2), S(28, 2), S(30, 2)]
s_pfH = s_pair2
s_fo = S(3)
QS = math.log2(math.e) / math.sqrt(128.0)
vqs = V(42, 2); vqw = V(44)
save = em.out; em.out = []; spend = em.pend; em.pend = {}
NWO = 4 if MAP2 else 2
for it in range(3):
    e(salu("s_add_u32", s_t0, s_w, 4 * it))
    e(salu("s_sub_u32", s_t1, s_t0, NWO)); e(salu("s_min_u32", s_t1, s_t1, 6)); e(salu("s_lshl_b32", s_t1, s_t1, 13))
    e(salu("s_lshr_b32", s_t2, S(2), 3)); e(salu("s_mul_i32", s_t2, s_t2, 57344, scc_w=False)); e(salu("s_add_u32", s_t1, s_t1, s_t2))
    e(salu("s_add_u32", s_pf[it][0], S_WD[0], s_t1)); e(salu("s_addc_u32", s_pf[it][1], S_WD[1], 0, scc_r=True))
    if it == 0:
        e(sx(s_t1)); e(salu("s_lshl_b32", s_t1, s_t1, 15 if MAP2 else 14)); e(salu("s_lshl_b32", s_t2, s_w, 13)); e(salu("s_add_u32", s_t1, s_t1, s_t2))
        e(salu("s_add_u32", s_pf[1][0], S_WO[0], s_t1)); e(salu("s_addc_u32", s_pf[1][1], S_WO[1], 0, scc_r=True))
        e(scmp("s_cmp_lt_u32", s_w, NWO)); e(salu("s_cselect_b64", s_pf[0], s_pf[1], s_pf[0], scc_w=False, scc_r=True))
e(raw("s_getpc_b64 %s" % s_pf[3], "salu", wr=[s_pf[3]]))
em.label("L_pc1")
e(salu("s_lshl_b32", s_t0, s_w, 13)); e(salu("s_add_u32", s_t0, s_t0, "L_tail-L_pc1")); e(salu("s_min_u32", s_t0, s_t0, "L_code_end-L_pc1-8192"))
e(salu("s_add_u32", s_t1, s_t0, (1 if MAP2 else 3) * 8192)); e(salu("s_min_u32", s_t1, s_t1, "L_code_end-L_pc1-8192"))
e(salu("s_add_u32", s_pfH[0], s_pf[3][0], s_t1)); e(salu("s_addc_u32", s_pfH[1], s_pf[3][1], 0, scc_r=True))
e(scmp("s_cmp_lt_u32", s_w, 3 if MAP2 else 1)); e(salu("s_cselect_b64", s_pf[2], s_pf[2], s_pfH, scc_w=False, scc_r=True))
e(salu("s_add_u32", s_pf[3][0], s_pf[3][0], s_t0)); e(salu("s_addc_u32", s_pf[3][1], s_pf[3][1], 0, scc_r=True))
e(salu("s_lshl_b32", s_t0, s_cg, 2)); e(salu("s_add_u32", s_t0, s_t0, s_w)); e(salu("s_mul_i32", s_t0, s_t0, 7168, scc_w=False)); e(salu("s_min_u32", s_t0, s_t0, 229376 - 8192))
e(salu("s_add_u32", s_pfH[0], S_HC[0], s_t0)); e(salu("s_addc_u32", s_pfH[1], S_HC[1], 0, scc_r=True))
e(salu("s_lshl_b32", s_fo, s_cq, 3))
vx, vy, vz = V(45), V(46), V(47)
e(salu("s_lshl_b32", s_t1, s_w, 8))
dma_voffs(v_dA, 1024, s_t1, True)
e(salu("s_mul_i32", s_wdd, s_w, 448 * 1024 - 256, scc_w=False)); e(salu("s_lshl_b32", s_t3, s_cg, 7)); e(salu("s_add_u32", s_wdd, s_wdd, s_t3))
e(valu("v_mov_b32", vqs[0], hx(f2u(QS))))
e(valu("v_and_b32", vx, 15, v_lane)); e(valu("v_bfe_u32", vqw, v_lane, 5, 1)); e(valu("v_lshl_add_u32", vx, vqw, 4, vx)); e(valu("v_lshlrev_b32", vx, 4, vx))
e(valu("v_bfe_u32", vqw, v_lane, 4, 1)); e(valu("v_lshl_add_u32", vqw, vqw, 3, vx))
e(salu("s_lshl_b32", s_t1, s_w, 14)); e(valu("v_add_u32", vqw, s_t1, vqw))
midset = group_scc(em.out); em.out = save; em.pend = spend
HST = int(os.environ.get("HST", "0"))
if HST == 0: GEL_END = 254
for k in range(8):
    if HST: extra.setdefault(248 + k, []).append((0, hst[k], 1))
run_stream(64, s1_dma, dtok, s1_acc, s1_B, extra, [Fill(midset, 109, 130), Fill(gel, 131, GEL_END)], early_dma=int(os.environ.get('ED1', '0')))
if DUMP == "qacc": dump_regs([v_acc[i] for i in range(128)])
stamp()

em.wait(lg0=True)
e(raw("s_barrier"))
def signal(off_s_expr_add, lab, v_t):
    e(scmp("s_cmp_lg_u32", s_w, 0)); e(raw("s_cbranch_scc1 %s" % lab, rd=["scc"]))
    e(salu("s_lshl_b32", s_t0, s_qb, 2))
    if off_s_expr_add: e(salu("s_add_u32", s_t0, s_t0, off_s_expr_add))
    e(valu("v_mov_b32", v_t, 1))
    e(raw("s_mov_b64 exec, 1", "salu", wr=["exec"]))
    e(raw("buffer_atomic_add %s, off, %s, %s sc1" % (v_t, S_DBG, s_t0)))
    e(raw("s_mov_b64 exec, -1", "salu", wr=["exec"]))
    em.label(lab)
for blk in range(8):
    for qb in range(4):
        a_ = v_acc[((blk * 4 + qb) * 4, 4)]
        t = V(64 + 2 * ((blk * 4 + qb) % 8), 2)
        for k in range(2): e(valu("v_pk_mul_f32", a_[(2 * k, 2)], a_[(2 * k, 2)], vqs, mod="op_sel_hi:[1,0]"))
        for k in range(2): e(valu("v_cvt_pk_bf16_f32", t[k], a_[2 * k], a_[2 * k + 1]))
        if len(em.lgq) >= 7: em.wait(lg=em.lgq[-7])
        e(dswrite("ds_write_b64", vqw, t, (qb * 4 + (blk >> 1)) * 1024 + (blk & 1) * 512))
for j in range(4): e(valu("v_add_u32", v_dB[j], s_wdd, v_dA[j]))
em.wait(lg0=True)
for f in range(16): e(dsread("ds_read_b128", a_Q[(4 * f, 4)], v_wl, f * 1024))
em.label("L_att_start")
NZ0 = 32
for i in range(NZ0): e(valu("v_mov_b64", v_acc[(2 * i, 2)], 0))
if LSUM:
    for i in range(16): e(valu("v_accvgpr_write_b32", a_L[i], 0))
    e(valu("v_mov_b32", V(40), "0x3f803f80"))
    if LSUM == 2:
        e(valu("v_and_b32", V(41), 15, v_lane)); e(valu("v_cmp_eq_u32", "vcc", 0, V(41))); e(nop(1)); e(valu("v_cndmask_b32", V(40), 0, V(40), "vcc"))
    for i in range(4): e(valu("v_accvgpr_write_b32", a_ones[i], V(40)))
else:
    for i in range(4): e(valu("v_mov_b32", v_l0[i], 0)); e(valu("v_mov_b32", v_l1[i], 0))
e(valu("v_lshlrev_b32", V(3), 7, v_lane))
e(valu("v_and_b32", V(38), 7, v_lane)); e(valu("v_mov_b32", V(0), 0))
em.wait(vm=dtok[66], lg0=True)
e(raw("s_barrier"))
if DUMP == "q": dump_regs([a_Q[i] for i in range(64)])
stamp()

def Qf(qb, ds): return a_Q[((qb * 4 + ds) * 4, 4)]
def Of(db, qb): return v_acc[((db * 4 + qb) * 4, 4)]
def fr(f): return a_ring[((f % 8) * 4, 4)]
def kslot(par): return 16384 if par == 0 else 0
def vslot(par): return 0 if par == 0 else 16384
def frag_reads(par, f):
    if f >= 32: par ^= 1; f -= 32
    d = fr(f)
    if f < 8 or 16 <= f < 24:
        kb = (f >> 2) if f < 8 else 2 + ((f - 16) >> 2)
        return [dsread("ds_read_b128", d, v_ka[f & 3], kslot(par) + kb * 4096)]
    ks2 = 0 if f < 16 else 1
    db = f & 7
    return [dsread("ds_read_b64_tr_b16", d[(2 * h, 2)], v_va[db], vslot(par) + ks2 * 8192 + h * 4096) for h in range(2)]
def read_sched(g):
    r = []
    if g + 3 < 24 or g >= 29: r.append(g + 3)
    if 19 <= g <= 26: r.append(g + 5)
    return r
def sm_val(g, k):
    if 7 <= g <= 22: b = 1; n = 2 * (g - 7) + k
    else: b = 0; n = 2 * ((g - 23) % 32) + k
    kb, qb, r = n >> 4, (n >> 2) & 3, n & 3
    return b, qb, kb, r
def sm_items(g):
    ex, ad = [], []
    for k in range(2):
        b, qb, kb, r = sm_val(g, k)
        x = v_S[b][qb * 8 + kb * 4 + r]
        l = (v_l1 if b else v_l0)[qb]
        ex.append(valu("v_exp_f32", x, x)); ad.append(valu("v_add_f32", l, l, x))
    b, qb, kb, r = sm_val((g - 1) % 32, 0)
    cv = valu("v_cvt_pk_bf16_f32", v_S[b][qb * 8 + kb * 2 + (r >> 1)], v_S[b][qb * 8 + kb * 4 + r], v_S[b][qb * 8 + kb * 4 + r + 1])
    return ex, ad, cv
def att_dma(par, g):
    if g >= 29: k = g - 29; sp = par
    elif g <= 4: k = g + 3; sp = par ^ 1
    else: return [], None
    sal = []
    if k == 0: sal = [salu("s_add_u32", "m0", s_m0b, 4 * 16384 + kslot(sp))]
    if k == 4: sal = [salu("s_add_u32", "m0", s_m0b, vslot(sp))]
    if k < 4: return sal, dma(v_kd[k], S_K, s_kK, k * 1024)
    return sal, dma(v_vd[k & 1], S_V, s_kV, (k - 4) * 1024)
SIDE_FIRST = 11
class Lbl:
    def __init__(self, n): self.n = n
    def __call__(self): em.label(self.n); return []
class LoopStamp:
    def __init__(self, k, par): self.k, self.par = k, par
    def __call__(self):
        k = self.k
        e(raw("s_memtime %s" % S(68 + 2 * k, 2), "other", wr=[S(68 + 2 * k, 2)]))
        if k == 2:
            e(raw("s_waitcnt lgkmcnt(0)", "wait")); em._retire(em.lgq, 0)
            for i in range(3): e(valu("v_writelane_b32", v_c, S(68 + 2 * i), i, rmw=True))
            e(salu("s_lshl_b32", S(74), S(2), 2)); e(salu("s_add_u32", S(74), S(74), s_w)); e(salu("s_lshl_b32", S(74), S(74), 4))
            e(salu("s_sub_u32", S(74), S(74), s_cnt)); e(salu("s_add_u32", S(74), S(74), 16)); e(salu("s_lshl_b32", S(74), S(74), 5))
            e(salu("s_add_u32", S(74), S(74), (1 << 20) + 16 * self.par))
            e(raw("s_mov_b64 exec, 7", "salu", wr=["exec"]))
            e(valu("v_lshlrev_b32", v_t, 2, v_lane))
            e(bstore(v_c, v_t, S_DMP, S(74), off=0))
            e(raw("s_mov_b64 exec, -1", "salu", wr=["exec"]))
            e(valu("v_lshlrev_b32", v_t, 7, v_lane))
        return []
v_tch, v_flag, v_fa = V(3), V(0), V(38)
xtok = []; lastdma = [None]
NITER = 14
s_pfc = S(16, 2); s_kvt = S(18, 2); KVIT = int(os.environ.get('KVIT', '12'))
ROT = int(os.environ.get('ROT', '8'))
ftok = {}
def att_group(par, g, do_mfma=True, do_mem=True, do_cvt=True, last=False, pp=None, xmem=(), xsal=(), xvalu=None):
    ex, ad, cv = sm_items(g)
    mem = []
    sal = []
    fin = (pp == 3)
    d = None
    if do_mem:
        if fin: sched = ([g + 3] if g + 3 < 16 else []) + ([g + 11] if 13 <= g <= 20 else [])
        else: sched = read_sched(g)
        for f in sched:
            r = frag_reads(par, f); mem += r; ftok[f % 32] = r
        if pp is None or (g <= 4 and pp <= 2) or (g >= 29 and pp <= 1):
            sal, d = att_dma(par, g)
            if d is not None: mem.append(d)
    loop = do_mem and pp is None
    post0 = []
    if loop and par == 0:
        if g == 14: mem.append(I("global_load_dword %s, %s, %s" % (v_c, v_tch, s_pfc), "vmem", rd=v_tch.regs() + s_pfc.regs(), wr=[]))
        if g == 13: mem.append(I("buffer_load_ubyte %s, %s, %s, %s offen sc1" % (v_flag, v_fa, S_DBG, s_t2), "vmem", rd=S_DBG.regs() + s_t2.regs() + v_fa.regs(), wr=[]))
        if g == 8: sal = sal + [scmp("s_cmp_le_u32", s_cnt, ROT)]
        if g in (9, 10, 11, 12):
            q_ = [s_pfc] + s_pf
            sal = sal + [salu("s_cselect_b64", q_[g - 9], q_[g - 8], q_[g - 9], scc_w=False, scc_r=True)]
        if g == 0: post0 = [valu("v_cmp_eq_u32", "vcc", 1, v_flag)]
        if g == 2: sal = sal + [raw("s_cmp_eq_u32 vcc_lo, -1", "salu", rd=["vcc"], wr=["scc"])]
        if g == 3: sal = sal + [salu("s_cselect_b32", s_t0, s_cnt, -1, scc_w=False, scc_r=True)]
        if g == 4: sal = sal + [scmp("s_cmp_eq_u32", s_t0, ROT - 1)]
        if g == 5: sal = sal + [salu("s_cselect_b64", s_pf[3], s_pfH, s_pf[3], scc_w=False, scc_r=True)]
        if g == 15: sal = sal + [salu("s_cselect_b64", s_pf[3], S_K[(0, 2)], s_pf[3], scc_w=False, scc_r=True)]
        if g == 20: sal = sal + [scmp("s_cmp_eq_u32", s_cnt, KVIT + 1)]
        if g == 21: sal = sal + [salu("s_cselect_b64", s_pfc, s_kvt, S_K[(0, 2)], scc_w=False, scc_r=True)]
        if g == 13: sal = sal + [salu("s_cselect_b32", s_t2, s_fo, 256, scc_w=False, scc_r=True)]
        if g == 18: sal = sal + [scmp("s_cmp_eq_u32", s_cnt, s_sig)]
        if g == 19: sal = sal + [raw("s_cbranch_scc1 L_sigH_side", rd=["scc"]), Lbl("L_sigH_ret")]
    if do_mem and g == 4 and d is not None: lastdma[0] = d
    mem += list(xmem); sal = sal + list(xsal)
    gaps = [[], [], [], []]
    if g == 29 and do_mem and not fin:
        if STAMP == 2 and loop and do_mfma: gaps[0] += [LoopStamp(0, par)]
        gaps[0] += [Wait(lg0=True) if not do_mfma else (Wait(lg0=True, vm0=True) if (pp is None and par == 1) else Wait(lg0=True, vm=lastdma[0]))]
        if STAMP == 2 and loop and do_mfma: gaps[0] += [LoopStamp(1, par)]
        gaps[0] += [raw("s_barrier")]
        if STAMP == 2 and loop and do_mfma: gaps[0] += [LoopStamp(2, par)]
    gaps[0] += sal
    if g == 6 and do_mem and (pp is None or pp <= 1): gaps[0].append(salu("s_add_u32", s_kK, s_kK, 16384))
    if g == 7 and do_mem and (pp is None or pp <= 1): gaps[0].append(salu("s_add_u32", s_kV, s_kV, 16384))
    sm = not (fin and g >= 23)
    if fin and g > 23: do_cvt = False
    if fin and 16 <= g < 24: do_mfma = False
    if LSUM:
        if sm: gaps[0].append(ex[0])
        gaps[1] += mem[0:2] if len(mem) > 2 else mem[0:1]
        gaps[1] += post0
        nf = (g + 1) % 32
        if do_mem and not (fin and (16 <= nf < 24 or nf == 0)): gaps[2].append(Wait(lg=ftok.get(nf)))
        if last and g == 30: gaps[2].append(salu("s_sub_u32", s_cnt, s_cnt, 1))
        if sm: gaps[2].append(ex[1])
        gaps[3] += mem[2:] if len(mem) > 2 else mem[1:]
        if do_cvt: gaps[1 if len(gaps[1]) < 2 else 3].append(cv)
    else:
      gaps[0] += mem[2:3]
      if sm: gaps[0].append(ex[0])
      if len(mem) > 0: gaps[1].append(mem[0])
      if len(mem) == 0 and do_cvt: gaps[1].append(cv)
      if sm: gaps[1].append(ad[0])
      gaps[1] += post0
      nf = (g + 1) % 32
      if do_mem and not (fin and (16 <= nf < 24 or nf == 0)): gaps[2].append(Wait(lg=ftok.get(nf)))
      if last and g == 30: gaps[2].append(salu("s_sub_u32", s_cnt, s_cnt, 1))
      gaps[2] += mem[3:]
      if sm: gaps[2].append(ex[1])
      if len(mem) > 1: gaps[3].append(mem[1])
      if len(mem) > 0 and do_cvt: gaps[3].append(cv)
      if sm: gaps[3].append(ad[1])
    for qb in range(4):
        if do_mfma:
            if g < 8 or 16 <= g < 24:
                b = 1 if g < 8 else 0
                kb, ds = (g >> 2) & 1, g & 3
                d = v_S[b][(qb * 8 + kb * 4, 4)]
                e(mfma(d, fr(g), Qf(qb, ds), v_negm[(qb * 4, 4)] if ds == 0 else d))
            else:
                b = 0 if g < 16 else 1
                e(mfma(Of(g & 7, qb), fr(g), v_S[b][(qb * 8, 4)], Of(g & 7, qb)))
        else:
            if (qb & 1) and not gaps[qb][:1] or ((qb & 1) and getattr(gaps[qb][0], "kind", "") in ("valu",)): e(nop(0))
        for it in gaps[qb]: e(it)
        if xvalu is not None:
            c = 2 - sum(1 for it in gaps[qb] if getattr(it, "kind", "") in ("lds", "vmem", "dma", "valu"))
            while xvalu and c > 0:
                it = xvalu.pop(0); e(it); c -= 2 if it.kind == "trans" else 1
    if LSUM and do_mfma and (g & 8):
        k = g & 7
        lq = (k if k < 4 else None) if (fin and g >= 24) else (k >> 1 if k & 1 else None)
        if lq is not None: e(mfma(a_L[(4 * lq, 4)], a_ones, v_S[0 if g < 16 else 1][(lq * 8, 4)], a_L[(4 * lq, 4)]))

pr = [dsread("ds_read_b128", fr(f), v_ka[f & 3], (f >> 2) * 4096) for f in range(8)]
for r in pr: e(r)
e(scmp("s_cmp_lg_u32", s_retry, 0)); e(raw("s_cbranch_scc1 L_have_max", rd=["scc"]))
for i in range(16): e(valu("v_mov_b32", v_negm[i], 0))
em.label("L_have_max")
zr = [valu("v_mov_b32", v_acc[i], 0) for i in range(2 * NZ0, 128)]
for f in range(8):
    em.wait(lg=pr[f])
    for qb in range(4):
        d = v_S[0][(qb * 8 + (f >> 2) * 4, 4)]
        e(mfma(d, fr(f), Qf(qb, f & 3), v_negm[(qb * 4, 4)] if (f & 3) == 0 else d))
        if qb == 0 and HST == 0: e(hst[f])
        for _ in range(2):
            if zr: e(zr.pop(0))
assert not zr
e(salu("s_mov_b32", s_kK, 16384 + 8192, scc_w=False)); e(salu("s_mov_b32", s_kV, 16384, scc_w=False)); e(salu("s_mov_b32", s_cnt, NITER, scc_w=False))
e(scmp("s_cmp_lg_u32", s_retry, 0)); e(raw("s_cbranch_scc1 L_have_max2", rd=["scc"]))
e(nop(3))
mx = [V(97 + 4 * i) for i in range(4)]; mt = [V(98 + 4 * i) for i in range(4)]
for qb in range(4): e(valu("v_max3_f32", mx[qb], v_S[0][qb * 8], v_S[0][qb * 8 + 1], v_S[0][qb * 8 + 2]))
for qb in range(4): e(valu("v_max3_f32", mx[qb], mx[qb], v_S[0][qb * 8 + 3], v_S[0][qb * 8 + 4]))
for qb in range(4): e(valu("v_max3_f32", mx[qb], mx[qb], v_S[0][qb * 8 + 5], v_S[0][qb * 8 + 6]))
for qb in range(4): e(valu("v_max_f32", mx[qb], mx[qb], v_S[0][qb * 8 + 7]))
red4("v_max_f32", mx, mt)
for qb in range(4):
    for k in range(4): e(valu("v_sub_f32", v_negm[qb * 4 + k], 0, mx[qb]))
for qb in range(4):
    for k in range(8): e(valu("v_sub_f32", v_S[0][qb * 8 + k], v_S[0][qb * 8 + k], mx[qb]))
em.label("L_have_max2")
e(nop(7))
for g in range(23, 29): att_group(1, g, do_mfma=False, do_mem=False, do_cvt=(g != 23))
stamp(); diag()
e(salu("s_and_b32", s_t0, s_qb, 3)); e(salu("s_sub_u32", s_t0, NITER - 1, s_t0))
e(scmp("s_cmp_eq_u32", s_w, 0)); e(salu("s_cselect_b32", s_sig, s_t0, -1, scc_w=False, scc_r=True))
e(scmp("s_cmp_eq_u32", s_retry, 0)); e(salu("s_cselect_b32", s_sig, s_sig, -1, scc_w=False, scc_r=True))
e(salu("s_mov_b64", s_pfc, S_K[(0, 2)], scc_w=False))
e(scmp("s_cmp_lt_u32", s_w, 2)); e(salu("s_cselect_b64", s_kvt, S_K[(0, 2)], S_V[(0, 2)], scc_w=False, scc_r=True))
e(salu("s_and_b32", s_t0, s_w, 1)); e(sx(s_t1)); e(salu("s_lshl_b32", s_t1, s_t1, 1)); e(salu("s_add_u32", s_t0, s_t0, s_t1)); e(salu("s_lshl_b32", s_t0, s_t0, 13))
if MAP2: e(salu("s_add_u32", s_t0, s_t0, 262144))
e(salu("s_add_u32", s_kvt[0], s_kvt[0], s_t0)); e(salu("s_addc_u32", s_kvt[1], s_kvt[1], 0, scc_r=True))
for g in range(29, 32): att_group(1, g, do_mfma=False, do_mem=True)
pro_end = len(em.out)
em.directive(".p2align 6")
em.label("L_att_loop")
def body():
    for par in range(2):
        for g in range(32): att_group(par, g, last=(par == 1))
b0 = len(em.out)
body()
b1 = len(em.out)
e(scmp("s_cmp_lg_u32", s_cnt, 0)); e(raw("s_cbranch_scc1 L_att_loop", rd=["scc"]))
b2 = len(em.out)
body()
second = em.out[b2:]; del em.out[b2:]
assert [i.text for i in second] == [i.text for i in em.out[b0:b1]], "loop not in steady state"
loop_probs = check_hazards(em.out[b1 - 40:b2] + second[:60], "loop-wrap")

em.label("L_tail")
v_ring2 = V(64, 32); v_B2 = V(96, 32)
XY = int(os.environ.get('XY', '0'))
NF1 = int(os.environ.get('NF1', '8'))
def hreg(kk, qb):
    if kk >= 8: kk -= 8
    return A((64 + 16 * kk if kk < 4 else 160 + 16 * (kk - 4)) + qb * 4, 4)
def Facc(u, qb):
    t = u * 4 + qb
    return A(128 + 4 * t if t < 8 else 224 + 4 * (t - 8), 4)
POS2 = [5, 0, 2, 3, 4, 1]
NB = int(os.environ.get("NB", "4"))
def pos2(m): return 6 + m if m < NB else POS2[(m - NB) % 6]
def kind2(m):
    if m < NF1: return ("F", m)
    if m < NF1 + 32: return ("O", (m - NF1) & 15, (m - NF1) >> 4) if XY else ("O", (m - NF1) >> 1, (m - NF1) & 1)
    return ("F", m - 32)
def s2_dma(m):
    if m >= 46: return None
    p = pos2(m); k = kind2(m)
    if k[0] == "O":
        return [m0set(p), salu("s_mov_b32", s_off, k[1] * 32 * 1024 + 128 * k[2], scc_w=False)], [dma(v_dA[j], S_WO, s_off, j * 1024) for j in range(4)]
    return [m0set(p), salu("s_mov_b32", s_off, k[1] * 32 * 1024, scc_w=False)], [dma(v_dB[j], S_WD, s_off, j * 1024) for j in range(4)]
dtok2 = {}; s2pre = {}
for m in range(6 + NB):
    s2pre[m] = s2_dma(m); dtok2[m] = s2pre[m][1][3]
class Seq:
    kind = "vmem"
    def __init__(self, l): self.l = l
    def __call__(self): return self.l
hld = {}; htok = {}
for kk in range(14):
    hld[kk] = [bload(hreg(kk, qb), v_lin, S_HC, s_hl, off=qb * 1024, mod="sc1") for qb in range(4)]
    htok[kk] = hld[kk][3]
e(salu("s_mov_b32", s_cnt, 0, scc_w=False))
em.label("L_pollH")
e(valu("v_cmp_ne_u32", "vcc", 1, v_flag)); e(salu("s_mul_i32", s_hb, s_w, 14 * 4096, scc_w=False)); e(nop(1))
e(raw("s_cbranch_vccz L_pollH_done", rd=["vcc"]))
e(salu("s_add_u32", s_cnt, s_cnt, 1)); e(scmp("s_cmp_ge_u32", s_cnt, 50000)); e(raw("s_cbranch_scc1 L_pollH_done", rd=["scc"]))
e(raw("s_sleep 4")); e(raw("buffer_load_ubyte %s, %s, %s, %s offen sc1" % (v_flag, v_fa, S_DBG, s_fo))); e(raw("s_waitcnt vmcnt(0)")); e(raw("s_branch L_pollH"))
em.label("L_pollH_done")
NH0 = 32
hsl = sorted([(pp, g) for pp in range(3) for g in (5, 13, 14, 15, 16, 17, 18, 27, 28, 9, 11)])[:NH0]
px = {}
for k, key in enumerate(hsl):
    px.setdefault(key, ([], []))
    px[key][0].append(hld[k >> 2][k & 3])
    if k & 3 == 0: px[key][1].append(salu("s_add_u32", s_hl, s_hb, (k >> 2) * 4096))
wsl = [(pp, g) for pp in range(2) for g in (6, 7, 8, 10, 12, 21, 22, 23)][:4 * NB] + [(2, 29), (2, 30), (2, 31), (3, 0), (3, 1), (3, 2), (3, 3), (3, 4)] + [(3, g) for g in range(5, 13)] + [(3, g) for g in range(24, 32)]
for k, key in enumerate(wsl):
    px.setdefault(key, ([], []))
    m, j = k >> 2, k & 3
    px[key][0].append(s2pre[m][1][j])
    if j == 0: px[key][1].extend(s2pre[m][0])
px[(3, 24)][1][:0] = [Wait(lg0=True), raw("s_barrier")]
lt = [V(48 + i) for i in range(4)]
rinv = [V(52 + i) for i in range(4)]
vxf = V(40, 8)
save = em.out; em.out = []
if LSUM:
    for qb in range(4): e(valu("v_accvgpr_read_b32", v_l1[qb], a_L[4 * qb]))
    if LSUM == 2: red4("v_add_f32", [v_l1[i] for i in range(4)], lt)
else:
    for qb in range(4): e(valu("v_add_f32", v_l1[qb], v_l1[qb], v_l0[qb]))
    red4("v_add_f32", [v_l1[i] for i in range(4)], lt)
e(valu("v_add_f32", lt[1], v_l1[0], v_l1[1])); e(valu("v_add_f32", lt[2], v_l1[2], v_l1[3])); e(valu("v_add_f32", lt[1], lt[1], lt[2]))
for qb in range(4): e(valu("v_rcp_f32", rinv[qb], v_l1[qb]))
e(valu("v_cmp_nge_f32", "vcc", hx(f2u(2.0 ** 30)), lt[1]))
for k in range(8): e(valu("v_accvgpr_read_b32", vxf[k], a_x[k]))
v_tr2 = V(56, 4); v_ow = V(62)
for u in range(4): e(valu("v_subrev_u32", v_tr2[u], RING, v_tr[0][u]))
e(valu("v_subrev_u32", v_ow, RING, v_lin)); e(valu("v_add_u32", v_ow, s_m0b, v_ow))
lred = em.out; em.out = save
for pp in range(4):
    for g in range(32):
        if STAMP == 4 and g in (0, 16): stamp()
        xm, xs = px.get((pp, g), ([], []))
        att_group(pp & 1, g, pp=pp, xmem=xm, xsal=xs, xvalu=(lred if (pp == 3 and g >= (30 if LSUM else 24)) else None))
for it in lred: e(it)
diag(); stamp()
if DUMP == "o":
    e(nop(7))
    for db in range(8):
        for qb in range(4):
            for k in range(4): e(valu("v_mul_f32", Of(db, qb)[k], Of(db, qb)[k], rinv[qb]))
    dump_regs([v_acc[i] for i in range(128)])

vm_ = V(60); vma = V(61)
class Mark:
    kind = "salu"
    def __init__(self, t): self.t = t
    def __call__(self):
        e(raw("s_cbranch_vccz L_nomark", rd=["vcc"])); e(valu("v_mov_b32", self.t, hx(MARK))); em.label("L_nomark"); return []
norm = [valu("v_and_b32", vma, 3, v_lane), valu("v_lshlrev_b32", vma, 12, vma)]
ow = []; ncv = []
for i in range(4):
    for qb in range(4):
        t = Of(2 * i, qb)
        for b in range(2):
            for k in range(4): norm.append(valu("v_mul_f32", Of(2 * i + b, qb)[k], Of(2 * i + b, qb)[k], rinv[qb]))
        for b in range(2):
            o = Of(2 * i + b, qb)
            for k in range(2): norm.append(valu("v_cvt_pk_bf16_f32", t[2 * b + k], o[2 * k], o[2 * k + 1]))
        ncv.append(norm[-1])
        if i == 0 and qb == 0: norm.append(Mark(t[0]))
        ow.append(dswrite("ds_write_b128", v_ow, t, i * 16384 + qb * 1024))
        if NB == 0: norm.append(ow[-1])
class ChkNorm:
    def __init__(self, k): self.k = k
    def __call__(self):
        assert ncv[self.k].tok, "O write %d scheduled before its data" % self.k
        return ow[self.k]
G0 = 4 * NF1
G1 = G0 + 128
mk = dsread("ds_read_b32", vm_, vma, 0)
class OBar:
    def __call__(self):
        assert all(w.tok for w in ow)
        em.wait(lg0=True); e(raw("s_barrier")); stamp(); e(mk); return []
class FbCheck:
    def __call__(self):
        em.wait(lg=mk)
        e(valu("v_cmp_eq_u32", "vcc", hx(MARK), vm_))
        e(scmp("s_cmp_lg_u32", s_retry, 0)); e(raw("s_cbranch_scc1 L_nofb", rd=["scc"]))
        e(nop(1))
        e(raw("s_cbranch_vccnz L_fallback", rd=["vcc"]))
        em.label("L_nofb")
        return []
def s2_acc(m, u, qb):
    k = kind2(m)
    if k[0] == "O": return v_acc[(((k[2] * 4 + u) * 4 + qb) * 4, 4)], k[1] == 0
    return Facc(u, qb), k[1] == 0
def s2_B(m, qb):
    k = kind2(m)
    if k[0] == "O": return v_B2[((k[1] & 1) * 16 + qb * 4, 4)]
    return hreg(k[1], qb)
def oread(s, qb): return dsread("ds_read_b128", v_B2[((s & 1) * 16 + qb * 4, 4)], v_lin, (s & 3) * 16384 + (s >> 2) * 4096 + qb * 1024)
extra = {}
if NB:
    OW0 = int(os.environ.get("OW0", "11")); OWN = int(os.environ.get("OWN", "1"))
    for k in range(16):
        gg = OW0 + k // OWN
        assert (k >> 2) >= NB or gg > 4 * (k >> 2) + 3
        extra.setdefault(gg, []).append((2 + (k % OWN) % 2, ChkNorm(k), 1))
GB = G0 - int(os.environ.get("OBAR", "3"))
extra.setdefault(GB, []).append((0, OBar(), 0))
r0 = [oread(0, qb) for qb in range(4)]
for qb in range(4): extra.setdefault(GB + (qb >> 1), []).append((1 + (qb & 1) if qb < 2 else (qb & 1) * 2, r0[qb], 1))
extra.setdefault(G0 - 1, []).append((2, [Wait(lg=r0), FbCheck()], 0))
if XY:
    for mm in range(1, 32):
        rr = [oread(mm & 15, qb) for qb in range(4)]
        for qb in range(4): extra.setdefault(G0 + 4 * (mm - 1) + (qb >> 1), []).append((2 + (qb & 1), rr[qb], 1))
        extra.setdefault(G0 + 4 * mm - 1, []).append((2, Wait(lg=rr), 0))
else:
    for s_ in range(1, 16):
        for qb in range(4): extra.setdefault(G0 + 8 * (s_ - 1) + 1 + qb, []).append((2, oread(s_, qb), 1))
class LateWait:
    def __init__(self, f): self.f = f
    def __call__(self): return Wait(vm=self.f())
vxa = V(48); vpoll = V(49); vfw = V(50)
vx, vy, vz = V(63), V(57), V(58)
save = em.out; em.out = []
xaddr(vxa, vx)
e(valu("v_and_b32", V(51), 7, v_lane)); e(valu("v_lshlrev_b32", V(51), 2, V(51)))
e(valu("v_add_u32", vfw, s_m0b, v_lin)); e(salu("s_lshl_b32", s_t0, s_w, 14)); e(salu("s_add_u32", s_t0, s_t0, RING)); e(valu("v_add_u32", V(55), s_t0, v_lin))
e(salu("s_lshl_b32", s_t3, s_w, 4)); e(salu("s_add_u32", s_t3, s_t3, s_g)); e(salu("s_lshl_b32", s_t3, s_t3, 13))
early = em.out; em.out = save
extra.setdefault(-1, []).append((0, LateWait(lambda: htok[0]), 0))
for kk in range(1, 14):
    g_ = 4 * kk if kk < NF1 else 4 * (kk + 32)
    extra.setdefault(g_ - 1, []).append((2, LateWait(lambda kk=kk: htok[kk]), 0))
HG0 = int(os.environ.get("HG0", "5")); HGS = int(os.environ.get("HGS", "1"))
for k in range(NH0, 56):
    prev = (k >> 2) - 8
    gfree = (4 * prev if prev < NF1 else 4 * (prev + 32)) + 5 + (k & 3)
    extra.setdefault(max(gfree, HG0 + HGS * (k - NH0)), []).append((2, Seq([salu("s_add_u32", s_hl, s_hb, (k >> 2) * 4096), hld[k >> 2][k & 3]]), 1))
def sreg(ip, qb, odd=0): return v_acc[(((2 * ip + odd) * 4 + qb) * 4, 4)]
sp = []; spst = []; stq = []
s_oob = S(19)
if os.environ.get("NOST") or os.environ.get("NOLD"): e(salu("s_mov_b32", s_oob, 524288, scc_w=False))
NSI = int(os.environ.get("NSI", "11"))
s_so = [s_t1, s_cnt, s_h0, s_h1]
for k in range(4): sp.append(salu("s_add_u32", s_so[k], s_t3, (k >> 1) * 65536 + (k & 1) * 4096))
for ip in range(4):
    for qb in range(4):
        t = sreg(ip, qb)
        for b in range(2):
            o = sreg(ip, qb, b)
            for k in range(2): sp.append(valu("v_cvt_pk_bf16_f32", t[2 * b + k], o[2 * k], o[2 * k + 1]))
        st = bstore(t, v_lin, S_SP, s_so[(ip >> 1) * 2 + (qb >> 1)], off=(qb & 1) * 2048 + (ip & 1) * 1024, mod="sc1")
        if os.environ.get("NOST") and not (ip == 3 and qb == 3): st = bstore(t, v_lin, S_SP, s_oob, off=0)
        spst.append((st, sp[-1]))
class St:
    def __init__(self, k): self.k = k
    def __call__(self):
        assert spst[self.k][1].tok
        return spst[self.k][0]
STG = int(os.environ.get("STG", "2"))
if XY:
    GY = G0 + 64
    XS0 = int(os.environ.get("XS0", "4")); XSG = int(os.environ.get("XSG", "5")); XFL = int(os.environ.get("XFL", "60"))
    for k in range(8): extra.setdefault(GY + XS0 + XSG * k, []).append((1, St(k), 1))
    class XFlag:
        def __call__(self): em.wait(vm=spst[7][0]); return flag_store(0)
    extra.setdefault(GY + XFL, []).append((1, XFlag(), 1))
    NSI = int(os.environ.get("NSI", "16"))
    for k in range(8, NSI): extra.setdefault(G1 + 3 + STG * (k - 8), []).append((2, St(k), 1))
    hx_ = sp.index(spst[7][1]) + 1
    spf = [Fill(sp[:hx_], GY + 2, GY + 14), Fill(sp[hx_:], G1 + 2, G1 + 10)]
else:
    for k in range(NSI): extra.setdefault(G1 + 3 + STG * k, []).append((2, St(k), 1))
    spf = [Fill(sp, G1 + 2, G1 + int(os.environ.get("CVL", "16")))]
FLG = int(os.environ.get("FLG", "0"))
if FLG:
    assert NSI == 16
    class YFlag:
        def __call__(self):
            em.wait(vm=spst[-1][0]); stamp()
            return ([] if XY else flag_store(0)) + flag_store(1)
    extra.setdefault(G1 + FLG, []).append((1, YFlag(), 1))
sti = [NSI]
def st_next(n=1):
    for _ in range(n):
        if sti[0] < 16: e(spst[sti[0]][0]); sti[0] += 1
def flag_store(h):
    return [valu("v_mov_b32", v_t, 1), raw("s_mov_b64 exec, 1", "salu", wr=["exec"]), bstore(v_t, None, S_FL, s_myfl, off=128 * h, mod="sc1"), raw("s_mov_b64 exec, -1", "salu", wr=["exec"])]
vpa = V(51)
s_done, s_new, s_sb = s_kK, s_kV, s_fo
def spl(gp, i): return A((gp * 2 + i) * 4, 4)
def flag_load(): return bload(vpoll, vpa, S_FL, s_t2, n=1, mod="sc1")
lblc = [0]
def issue_new():
    k = lblc[0]; lblc[0] += 1
    e(valu("v_cmp_eq_u32", "vcc", 1, vpoll)); e(nop(1))
    e(raw("s_andn2_b32 %s, vcc_lo, %s" % (s_new, s_done), "salu", rd=["vcc", s_done], wr=[s_new, "scc"])); e(salu("s_and_b32", s_new, s_new, 255))
    e(raw("s_cbranch_scc0 L_in%d_end" % k, rd=["scc"]))
    e(salu("s_or_b32", s_done, s_done, s_new))
    for gp in range(8):
        e(scmp("s_bitcmp1_b32", s_new, gp)); e(raw("s_cbranch_scc0 L_in%d_%d" % (k, gp), rd=["scc"]))
        e(salu("s_add_u32", s_t0, s_sb, gp * 8192) if not os.environ.get("NOLD") else salu("s_mov_b32", s_t0, s_oob, scc_w=False))
        for i in range(2): e(raw(bload(spl(gp, i), v_lin, S_SPC, s_t0, off=i * 1024, mod="sc1").text))
        em.label("L_in%d_%d" % (k, gp))
    em.label("L_in%d_end" % k)
pinit = [salu("s_lshl_b32", s_t2, s_cq, 3), salu("s_add_u32", s_t2, s_t2, s_cg), salu("s_lshl_b32", s_t2, s_t2, 7), salu("s_mov_b32", s_done, 0, scc_w=False),
         salu("s_lshl_b32", s_sb, s_cg, 16), salu("s_lshl_b32", s_new, s_w, 11), salu("s_add_u32", s_sb, s_sb, s_new)]
extra.setdefault(G1 - 8, []).append((1, pinit, 0))
class MidPoll:
    def __init__(self, tok): self.tok = tok
    def __call__(self):
        em.wait(vm=self.tok); issue_new()
        e(salu("s_mov_b32", s_hb, s_done, scc_w=False))
        midmark.append(em.vm_total)
        return []
midmark = []
if int(os.environ.get("MID", "1")):
    pt = flag_load()
    MIDPOST = int(os.environ.get("MIDPOST", "2"))
    if MIDPOST == 4: extra.setdefault(184 - int(os.environ.get("MID4", "6")), []).append((2, pt, 1))
    else: extra.setdefault(G1 - int(os.environ.get("MID0", "4")), []).append((2, pt, 1))
    if not MIDPOST: extra.setdefault(G1 + int(os.environ.get("MID1", "3")), []).append((0, MidPoll(pt), 0))
    elif MIDPOST != 4: extra.setdefault(G1 + 2, []).append((0, Wait(vm=pt), 0))
    if MIDPOST == 3:
        extra[G1 + 2].pop(); extra[G1 - int(os.environ.get("MID0", "4"))].pop()
if STAMP: extra.setdefault(G1, []).append((0, Stamp(), 0))
class Diag:
    def __call__(self): diag(); return []
if DIAG: extra.setdefault(G1, []).append((0, Diag(), 0))
vs = [Fill(norm, 0, GB - (3 if NB else 1)), Fill(early, G0 + 2, G0 + 40)] + spf
run_stream(46, s2_dma, dtok2, s2_acc, s2_B, extra, vs, posf=pos2, ring=v_ring2, first_dma=6 + NB, tr2=v_tr2, early_dma=int(os.environ.get('ED2', '0')))
stamp(); diag()
def static_loads():
    e(valu("v_cmp_eq_u32", "vcc", 1, vpoll)); e(nop(1))
    e(raw("s_and_b32 %s, vcc_lo, 255" % s_done, "salu", rd=["vcc"], wr=[s_done, "scc"]))
    for gp in range(8):
        e(salu("s_add_u32", s_t0, s_sb, gp * 8192)); e(scmp("s_bitcmp1_b32", s_done, gp)); e(salu("s_cselect_b32", s_t0, s_t0 if not os.environ.get("NOLD") else s_oob, 524288, scc_w=False, scc_r=True))
        for i in range(2): e(bload(spl(gp, i), v_lin, S_SPC, s_t0, off=i * 1024, mod="sc1"))
if MIDPOST == 4:
    em.wait(vm=pt); static_loads()
if MIDPOST == 3:
    st_next(16); fl3 = e(flag_load())
e(nop(5))
for qb in range(4):
    for u in range(4):
        if len(em.lgq) >= 12: em.wait(lg=em.lgq[-12])
        e(dswrite("ds_write_b128", vfw, Facc(u, qb), qb * 16384 + u * 1024))
    if qb & 1: st_next(int(os.environ.get("STW", "1")))
v_fr = V(96, 16); vE = V(64, 16); vs_ = V(80, 16)
for k in range(8): e(valu("v_mov_b64", vs_[(2 * k, 2)], 0))
if MIDPOST == 3:
    em.wait(vm=fl3); stamp()
    if not XY: e(flag_store(0))
    e(flag_store(1))
    static_loads()
em.wait(lg0=True)
e(raw("s_barrier"))
def frr(ws_, u): return sreg(ws_, u, 1)
for ws_ in range(4):
    for u in range(4):
        if len(em.lgq) >= 14: em.wait(lg=em.lgq[-14])
        e(dsread("ds_read_b128", frr(ws_, u), V(55), ws_ * 4096 + u * 1024))
st_next()
if MIDPOST:
    st_next(16)
    if MIDPOST == 1: static_loads()
em.wait(lg0=True)
for u in range(4):
    for k in range(2):
        e(valu("v_pk_add_f32", frr(0, u)[(2 * k, 2)], frr(0, u)[(2 * k, 2)], frr(1, u)[(2 * k, 2)]))
        e(valu("v_pk_add_f32", frr(2, u)[(2 * k, 2)], frr(2, u)[(2 * k, 2)], frr(3, u)[(2 * k, 2)]))
for u in range(4):
    for k in range(2): e(valu("v_pk_add_f32", v_fr[(4 * u + 2 * k, 2)], frr(0, u)[(2 * k, 2)], frr(2, u)[(2 * k, 2)]))
for k in range(16): e(valu("v_mul_f32", vE[k], hx(f2u(-math.log2(math.e))), v_fr[k]))
st_next()
for k in range(16): e(valu("v_exp_f32", vE[k], vE[k]))
for k in range(16): e(valu("v_add_f32", vE[k], "1.0", vE[k]))
st_next()
for k in range(16): e(valu("v_rcp_f32", vE[k], vE[k]))
for k in range(16): e(valu("v_mul_f32", v_fr[k], v_fr[k], vE[k]))
for k in range(8):
    e(valu("v_lshlrev_b32", vE[2 * k], 16, vxf[k])); e(valu("v_and_b32", vE[2 * k + 1], "0xffff0000", vxf[k]))
st_next()
stamp()
accn = [0]
def acc_pieces(mask, sprinkle=False):
    n = accn[0]; accn[0] += 1
    for gp in range(8):
        e(scmp("s_bitcmp1_b32", mask, gp)); e(raw("s_cbranch_scc0 L_acc%d_%d" % (n, gp), rd=["scc"]))
        for k2 in range(8): e(valu("v_accvgpr_read_b32", V(120 + k2), spl(gp, k2 >> 2)[k2 & 3]))
        for k in range(8):
            e(valu("v_lshlrev_b32", V(112 + 2 * (k & 3)), 16, V(120 + k))); e(valu("v_and_b32", V(113 + 2 * (k & 3)), "0xffff0000", V(120 + k)))
            e(valu("v_pk_add_f32", vs_[(2 * k, 2)], vs_[(2 * k, 2)], V(112 + 2 * (k & 3), 2)))
        em.label("L_acc%d_%d" % (n, gp))
        if sprinkle and gp & 1: st_next()
if midmark:
    n_y = em.vm_total - midmark[0]
    e(raw("s_waitcnt vmcnt(%d)" % n_y, "wait")); em._retire(em.vmq, n_y)
    acc_pieces(s_hb, sprinkle=True)
st_next(16)
if MIDPOST != 2: e(flag_load())
if MIDPOST != 3 and not FLG:
    em.wait(vm=spst[-1][0]); stamp()
    if not XY: e(flag_store(0))
    e(flag_store(1))
if MIDPOST == 2: static_loads(); e(flag_load())
s_prev = s_hl
e(salu("s_mov_b32", s_prev, s_done if MIDPOST else 0, scc_w=False)); e(salu("s_mov_b32", s_cnt, 0, scc_w=False))
em.label("L_fin_loop")
em.wait(vm0=True)
issue_new()
e(raw(flag_load().text))
acc_pieces(s_prev)
e(salu("s_mov_b32", s_prev, s_new, scc_w=False))
e(salu("s_add_u32", s_cnt, s_cnt, 1)); e(scmp("s_cmp_ge_u32", s_cnt, 50000)); e(raw("s_cbranch_scc1 L_fin_done", rd=["scc"]))
e(scmp("s_cmp_lg_u32", s_prev, 0)); e(raw("s_cbranch_scc1 L_fin_loop", rd=["scc"]))
e(scmp("s_cmp_lg_u32", s_done, 255)); e(raw("s_cbranch_scc1 L_fin_loop", rd=["scc"]))
em.label("L_fin_done")
if DUMP == "fin": dump_regs([vs_[i] for i in range(16)] + [v_fr[i] for i in range(16)])
for k in range(8): e(valu("v_pk_fma_f32", vE[(2 * k, 2)], vs_[(2 * k, 2)], v_fr[(2 * k, 2)], vE[(2 * k, 2)]))
for k in range(8): e(valu("v_cvt_pk_bf16_f32", vxf[k], vE[2 * k], vE[2 * k + 1]))
for u in range(4): e(bstore(vxf[(2 * u, 2)], vxa, S_OUT, 0, off=32 * u))
stamp(); diag_out()
em.label("L_end")
e(raw("s_endpgm"))
main_end = len(em.out)

em.lgq, em.vmq, em.pend = [], [], {}
em.label("L_sigH_side")
e(salu("s_lshl_b32", s_t1, s_qb, 3)); e(salu("s_add_u32", s_t1, s_t1, s_g))
e(raw("s_mov_b64 exec, 2", "salu", wr=["exec"]))
e(raw("buffer_store_byte %s, off, %s, %s sc1" % (v_fa, S_DBG, s_t1)))
e(raw("s_mov_b64 exec, -1", "salu", wr=["exec"]))
e(raw("s_branch L_sigH_ret"))
em.label("L_fallback")
e(raw("s_waitcnt vmcnt(0) lgkmcnt(0)")); em._retire(em.vmq, 0); em._retire(em.lgq, 0)
for k in range(8): e(valu("v_accvgpr_write_b32", a_x[k], V(40 + k)))
e(salu("s_mov_b32", s_retry, 1, scc_w=False))
e(salu("s_mov_b32", S_H[2], 0, scc_w=False))
e(salu("s_mov_b32", s_kK, 0, scc_w=False))
fm = [V(40 + i) for i in range(4)]
for i in range(4): e(valu("v_mov_b32", fm[i], "0xff800000"))
em.label("L_fb_loop")
e(raw("s_barrier"))
e(salu("s_add_u32", "m0", s_m0b, 4 * 16384)); e(nop(0))
for j in range(4): e(dma(v_kd[j], S_K, s_kK, j * 1024))
em.wait(vm0=True)
e(raw("s_barrier"))
for kb in range(4):
    rr = [e(dsread("ds_read_b128", fr(ds), v_ka[ds], kb * 4096)) for ds in range(4)]
    em.wait(lg0=True)
    for ds in range(4):
        for qb in range(4):
            d = v_S[0][(qb * 4, 4)]
            e(mfma(d, fr(ds), Qf(qb, ds), 0 if ds == 0 else d))
    e(nop(7))
    for qb in range(4):
        e(valu("v_max3_f32", fm[qb], fm[qb], v_S[0][qb * 4], v_S[0][qb * 4 + 1])); e(valu("v_max3_f32", fm[qb], fm[qb], v_S[0][qb * 4 + 2], v_S[0][qb * 4 + 3]))
    e(nop(2))
e(salu("s_add_u32", s_kK, s_kK, 16384)); e(scmp("s_cmp_lt_u32", s_kK, 524288)); e(raw("s_cbranch_scc1 L_fb_loop", rd=["scc"]))
red4("v_max_f32", fm, [V(44 + i) for i in range(4)])
for qb in range(4):
    for k in range(4): e(valu("v_sub_f32", v_negm[qb * 4 + k], 0, fm[qb]))
e(raw("s_barrier"))
for m in (64, 65, 66):
    sa, dm = s1_dma(m); e(sa)
    for d in dm: e(d)
e(raw("s_waitcnt vmcnt(0)"))
e(raw("s_branch L_att_start"))
em.label("L_code_end")
e(raw("s_endpgm"))

probs = check_hazards(em.out, "main") + loop_probs
for p in probs: print("; HAZARD", p, file=sys.stderr)
assert not probs

hdr = open(os.path.join(os.path.dirname(os.path.abspath(__file__)), "header.txt")).read()
print(hdr.rstrip())
print("; @launch grid=(256,1,1) block=(256,1,1) lds=163840")
print('.amdgcn_target "amdgcn-amd-amdhsa--gfx950"\n.text\n.globl %s\n.p2align 8\n.type %s,@function\n%s:' % (KN, KN, KN))
print(em.text())
print('.section .rodata,"a"\n.p2align 6\n.amdhsa_kernel %s' % KN)
print("  .amdhsa_next_free_vgpr 512\n  .amdhsa_next_free_sgpr 102\n  .amdhsa_accum_offset 256\n  .amdhsa_group_segment_fixed_size 0\n  .amdhsa_kernarg_size 96\n  .amdhsa_user_sgpr_count 2\n  .amdhsa_user_sgpr_kernarg_segment_ptr 1\n  .amdhsa_system_sgpr_workgroup_id_x 1\n.end_amdhsa_kernel")
```

```python
import sys, os, math, struct
from asmgen import *

KN = "recurrent_scan__gqa_block_cached__geglu_ffn__prompt_kernel"
DUMP = os.environ.get("DUMP", "")
STAMP = int(os.environ.get("STAMP", "0"))
GEL_END = int(os.environ.get("GEL_END", "247")); GEL_EXTRA = int(os.environ.get("GEL_EXTRA", "360"))

def f2u(x): return struct.unpack("<I", struct.pack("<f", x))[0]
def hx(x): return "0x%x" % (x & 0xffffffff)

S_X, S_K, S_V, S_WQ, S_WO, S_WG, S_WU, S_WD, S_OUT, S_DBG, S_H, S_SP = [S(4 + 4 * i, 4) for i in range(12)]
s_g, s_qb, s_w = S(52), S(53), S(54)
s_t0, s_t1, s_t2, s_t3 = S(55), S(56), S(57), S(58)
s_m0b = S(59)
s_off = S(60)
s_cnt = S(61)
s_kK, s_kV = S(62), S(63)
s_retry = S(64)
s_h0, s_h1 = S(65), S(66)
s_hl = S(67); s_hb = S(78); s_myfl = S(79); s_wdd = S(67); s_sig = S(78)
s_ka = S(68, 16); s_kb = S(84, 8)
s_pair = S(92, 2); s_pair2 = S(94, 2)
S_DMP = S(96, 4)
s_cq, s_cg = S(76), S(77)
S_HC = S(80, 4)
S_SPC = S(84, 4)
S_XC = S(88, 4)
s_st = S(68, 4)

v_tid, v_lane, v_lin, v_t = V(0), V(1), V(2), V(3)
v_tr = [V(4, 4), V(8, 4)]
v_dA, v_dB = V(12, 4), V(16, 4)
v_ka = V(20, 4); v_va = V(24, 8); v_kd = V(32, 4); v_vd = V(36, 2)
v_wl = V(38)
v_c = V(39)
v_l0, v_l1 = V(40, 4), V(44, 4)
v_lsave = V(16, 4)
v_negm = V(48, 16)
v_S = [V(64, 32), V(96, 32)]
v_acc = V(128, 128)
a_ring = A(128, 32)
a_B = A(160, 32)
a_Q = A(0, 64)
a_F = A(0, 64)
a_x = A(248, 8)
LSUM = int(os.environ.get('LSUM', '1'))
a_L = A(224, 16); a_ones = A(240, 4)

RING = 65536
MARK = 0x7fc17fc1
WS_SP = 8 << 20
WS_DUMP = 32 << 20
WS_FL = (7 << 20) + (512 << 10)
S_FL = S(4, 4)

em = Em()
e = em.e

def srd(dst, lo, hi, size, off_s=None):
    if off_s is None:
        e(salu("s_mov_b32", dst[0], lo, scc_w=False)); e(salu("s_mov_b32", dst[1], hi, scc_w=False))
    else:
        e(salu("s_add_u32", dst[0], lo, off_s)); e(salu("s_addc_u32", dst[1], hi, 0, scc_r=True))
    e(salu("s_mov_b32", dst[2], hx(size), scc_w=False)); e(salu("s_mov_b32", dst[3], "0x20000", scc_w=False))

DIAG = int(os.environ.get("DIAG", "0"))
HC_OFF = 128
diag_regs = [S(100, 2), S(70, 2), S(72, 2), S(74, 2), S(96, 2), S(98, 2), S(68, 2)] if DIAG != 2 else [S(100, 2), S(96, 2), S(98, 2), S(94, 2), S(70, 2), S(72, 2), S(74, 2), S(68, 2)]
diag_n = [0]
def diag(which=1, last=False):
    if not DIAG or (which != DIAG and which != 0): return
    k = diag_n[0]; diag_n[0] += 1
    e(raw("%s %s" % ("s_memtime" if (os.environ.get("CYC") and not last) else "s_memrealtime", diag_regs[k]), "other", wr=[diag_regs[k]]))
    if k > 0: e(raw("s_waitcnt lgkmcnt(0)", "wait")); em._retire(em.lgq, 0)
AMP = os.environ.get("AMP")
def diag_out():
    if not DIAG: return
    diag(0, last=True)
    if AMP:
        k = int(AMP); last = diag_regs[diag_n[0] - 1]
        e(salu("s_sub_u32", s_t0, diag_regs[k][0], diag_regs[int(os.environ.get("AMP0", "0"))][0]))
        if os.environ.get("CYC"): e(salu("s_lshr_b32", s_t0, s_t0, 2))
        else: e(salu("s_lshl_b32", s_t0, s_t0, 2))
        em.label("L_amp")
        e(raw("s_memrealtime s[56:57]")); e(raw("s_waitcnt lgkmcnt(0)"))
        e(salu("s_sub_u32", s_t1, s_t1, last[0])); e(scmp("s_cmp_lt_u32", s_t1, s_t0)); e(raw("s_cbranch_scc1 L_amp", rd=["scc"]))
        return
    e(scmp("s_cmp_lg_u32", s_w, 0)); e(raw("s_cbranch_scc1 L_end", rd=["scc"]))
    e(raw("s_mov_b64 exec, 1", "salu", wr=["exec"]))
    e(salu("s_not_b32", s_t0, diag_regs[0][0]))
    for k in range(diag_n[0]):
        e(valu("v_mov_b32", V(4 + k), s_t0 if k == 0 else diag_regs[k][0]))
        e(raw("buffer_atomic_umax %s, off, %s, 0 offset:%d sc1" % (V(4 + k), S_DBG, 4 * k)))
    e(valu("v_mov_b32", V(12), diag_regs[0][0]))
    e(raw("buffer_atomic_umax %s, off, %s, 0 offset:%d sc1" % (V(12), S_DBG, 4 * 9)))
stamp_n = [0]
def stamp():
    if not STAMP: return
    k = stamp_n[0]; stamp_n[0] += 1
    e(raw("s_memtime %s" % S(68, 2), "other", wr=[S(68, 2)]))
    e(raw("s_memrealtime %s" % S(70, 2), "other", wr=[S(70, 2)]))
    e(raw("s_waitcnt lgkmcnt(0)", "wait")); em._retire(em.lgq, 0)
    for i in range(4): e(valu("v_writelane_b32", v_c, S(68 + i), i, rmw=True))
    e(salu("s_lshl_b32", S(72), S(2), 2)); e(salu("s_add_u32", S(72), S(72), s_w)); e(salu("s_lshl_b32", S(72), S(72), 9))
    e(salu("s_mov_b64", S(74, 2), "exec", scc_w=False)); e(raw("s_mov_b64 exec, 15", "salu", wr=["exec"]))
    e(valu("v_lshlrev_b32", v_t, 2, v_lane))
    e(bstore(v_c, v_t, S_DMP, S(72), off=k * 16))
    e(raw("s_mov_b64 exec, %s" % S(74, 2), "salu", wr=["exec"]))
    e(valu("v_lshlrev_b32", v_t, 7, v_lane))

def dump_regs(regs, finish=True):
    em.wait(lg0=True, vm0=True)
    e(nop(7)); e(nop(7))
    n = len(regs)
    e(salu("s_lshl_b32", s_t0, S(2), 2)); e(salu("s_add_u32", s_t0, s_t0, s_w)); e(salu("s_mul_i32", s_t0, s_t0, n * 256, scc_w=False))
    e(valu("v_lshlrev_b32", v_t, 2, v_lane))
    for k, r in enumerate(regs):
        e(bstore(r, v_t, S_DMP, s_t0, off=0))
        e(salu("s_add_u32", s_t0, s_t0, 256))
        if k % 32 == 31: em.wait(vm0=True)
    em.wait(vm0=True)
    if finish: e(raw("s_endpgm"))

def red4(op, x, tmp):
    for sw in ("v_permlane32_swap_b32", "v_permlane16_swap_b32"):
        for a, t in zip(x, tmp): e(valu("v_mov_b32", t, a))
        if len(x) < 3: e(nop(1))
        for a, t in zip(x, tmp): e(valu(sw, a, t))
        for a, t in zip(x, tmp): e(valu(op, a, a, t))

e(scmp("s_cmp_ge_u32", S(2), 256)); e(raw("s_cbranch_scc1 L_end", rd=["scc"]))
diag(0)
i0 = e(I("s_load_dwordx16 %s, s[0:1], 0" % s_ka, "smem", wr=s_ka.regs()))
i1 = e(I("s_load_dwordx8 %s, s[0:1], 64" % s_kb, "smem", wr=s_kb.regs()))
vq, vG, vr, vc_, vx, vy, vz = [V(40 + i) for i in range(7)]
e(raw("s_getpc_b64 %s" % s_pair2, "salu", wr=[s_pair2]))
em.label("L_pc0")
CT0 = int(os.environ.get("CT0", "64"))
if CT0:
    e(valu("v_sub_u32", V(55), 255, v_tid)); e(valu("v_cmp_gt_u32", "vcc", CT0, V(55))); e(valu("v_lshlrev_b32", V(55), 7, V(55))); e(nop(0))
    e(raw("s_and_saveexec_b64 s[4:5], vcc", "salu", wr=["exec"], rd=["vcc"])); e(raw("s_cbranch_execz L_ct0"))
    e(raw("global_load_dword v55, v55, %s" % s_pair2))
    em.label("L_ct0")
    e(raw("s_mov_b64 exec, -1", "salu", wr=["exec"]))
MAP2 = int(os.environ.get("MAP2", "0"))
s_i = S(65)
if MAP2:
    e(salu("s_and_b32", s_g, S(2), 3)); e(salu("s_lshl_b32", s_g, s_g, 1)); e(salu("s_bfe_u32", s_t0, S(2), "0x10003")); e(salu("s_add_u32", s_g, s_g, s_t0))
    e(salu("s_bfe_u32", s_qb, S(2), "0x10002")); e(salu("s_lshl_b32", s_qb, s_qb, 4)); e(salu("s_lshr_b32", s_t0, S(2), 4)); e(salu("s_add_u32", s_qb, s_qb, s_t0))
else:
    e(salu("s_and_b32", s_g, S(2), 7)); e(salu("s_lshr_b32", s_qb, S(2), 3))
def sx(dst): return salu("s_lshr_b32", dst, S(2), 4 if MAP2 else 3)
TL = "-1" if MAP2 else "0xffffffff"
e(valu("v_and_b32", v_lane, 63, v_tid))
e(valu("v_lshrrev_b32", v_t, 6, v_tid))
e(valu("v_lshlrev_b32", v_lin, 4, v_lane))
e(valu("v_readfirstlane_b32", s_w, v_t))
e(valu("v_and_b32", vq, 15, v_lane)); e(valu("v_lshrrev_b32", vG, 4, v_lane))
vxo = V(47)
e(valu("v_lshl_add_u32", vxo, v_t, 4, vq)); e(valu("v_lshlrev_b32", vxo, 10, vxo)); e(valu("v_lshl_add_u32", vxo, vG, 4, vxo))
vwg, vwq, vcw = V(52), V(53), V(54)
e(salu("s_mul_i32", s_t1, s_g, 448, scc_w=False)); e(salu("s_and_b32", s_t1, s_t1, hx(~127)))
e(salu("s_and_b32", s_t2, s_w, 1)); e(sx(s_t3)); e(salu("s_lshl_b32", s_t3, s_t3, 1)); e(salu("s_add_u32", s_t2, s_t2, s_t3))
e(salu("s_mul_i32", s_t2, s_t2, (16 if MAP2 else 8) * 3584, scc_w=False)); e(salu("s_add_u32", s_t1, s_t1, s_t2))
e(valu("v_lshrrev_b32", vx, 2, v_lane)); e(valu("v_mul_u32_u24", vx, 3584, vx)); e(valu("v_and_b32", vz, 3, v_lane)); e(valu("v_lshl_add_u32", vx, vz, 7, vx))
e(valu("v_add_u32", vwg, s_t1, vx))
e(salu("s_lshr_b32", s_t2, S(2), 3)); e(salu("s_lshl_b32", s_t2, s_t2, 2)); e(salu("s_add_u32", s_t2, s_t2, s_w)); e(salu("s_lshl_b32", s_t3, s_t2, 8))
e(valu("v_lshlrev_b32", vcw, 7, v_lane)); e(valu("v_add_u32", vcw, s_t3, vcw))
e(salu("s_lshl_b32", s_t0, s_qb, 16))
em.wait(lg0=True)
diag(2)
srd(S_X, s_ka[0], s_ka[1], 65536, s_t0)
v_xp = V(64, 64)
XFIRST = int(os.environ.get("XFIRST", "12"))
xl = [bload(v_xp[(4 * ks, 4)], vxo, S_X, 0, off=64 * ks) for ks in range(16)]
for ks in range(XFIRST): e(xl[ks])
e(scmp("s_cmp_lt_u32", s_w, 2)); e(salu("s_cselect_b64", s_pair, s_ka[(12, 2)], s_ka[(14, 2)], scc_w=False, scc_r=True))
e(raw("s_mov_b64 exec, " + TL, "salu", wr=["exec"]))
e(I("global_load_dword %s, %s, %s" % (V(48), vwg, s_pair), "vmem", rd=vwg.regs() + s_pair.regs(), wr=V(48).regs()))
e(raw("s_mov_b64 exec, 3", "salu", wr=["exec"]))
e(I("global_load_dword %s, %s, %s" % (V(49), vcw, s_pair2), "vmem", rd=vcw.regs() + s_pair2.regs(), wr=V(49).regs()))
e(raw("s_mov_b64 exec, -1", "salu", wr=["exec"]))
e(sx(s_t2)); e(salu("s_lshl_b32", s_t2, s_t2, 2)); e(salu("s_add_u32", s_t2, s_t2, s_w))
e(salu("s_lshl_b32", s_t2, s_t2, 16 if MAP2 else 15)); e(salu("s_lshl_b32", s_t3, s_g, 10)); e(salu("s_add_u32", s_t2, s_t2, s_t3))
e(valu("v_lshrrev_b32", vx, 3, v_lane)); e(valu("v_lshlrev_b32", vx, 13, vx)); e(valu("v_and_b32", vz, 7, v_lane)); e(valu("v_lshl_add_u32", vx, vz, 7, vx))
e(valu("v_add_u32", vwq, s_t2, vx))
e(salu("s_lshr_b32", s_t2, S(2), 6)); e(salu("s_and_b32", s_t3, S(2), 7)); e(salu("s_lshl_b32", s_t3, s_t3, 2)); e(salu("s_add_u32", s_t2, s_t2, s_t3))
e(salu("s_lshl_b32", s_t0, s_t2, 16))
srd(S_OUT, s_kb[2], s_kb[3], 65536, s_t0)
e(salu("s_lshl_b32", s_t1, s_g, 19))
srd(S_K, s_ka[2], s_ka[3], 524288, s_t1)
srd(S_V, s_ka[4], s_ka[5], 524288, s_t1)
srd(S_WO, s_ka[8], s_ka[9], 524288, s_t1)
srd(S_WQ, s_ka[6], s_ka[7], 4 << 20)
srd(S_WG, s_ka[12], s_ka[13], 1835008)
srd(S_WU, s_ka[14], s_ka[15], 1835008)
srd(S_WD, s_kb[0], s_kb[1], 1835008)
srd(S_DBG, s_kb[4], s_kb[5], 256)
e(salu("s_mul_i32", s_t1, s_qb, 229376, scc_w=False))
srd(S_H, s_kb[6], s_kb[7], 229376, s_t1)
e(salu("s_lshl_b32", s_t1, s_qb, 19)); e(salu("s_add_u32", s_t1, s_t1, hx(WS_SP)))
srd(S_SP, s_kb[6], s_kb[7], 524288, s_t1)
if DUMP or STAMP:
    e(salu("s_mov_b32", s_t1, hx(WS_DUMP), scc_w=False))
    srd(S_DMP, s_kb[6], s_kb[7], 200 << 20, s_t1)
e(salu("s_mov_b64", s_pair, S(90, 2), scc_w=False))
e(salu("s_lshl_b32", s_t0, s_t2, 16))
srd(S_XC, s_ka[0], s_ka[1], 65536, s_t0)
e(salu("s_mul_i32", s_t1, s_t2, 229376, scc_w=False))
srd(S_HC, s_pair[0], s_pair[1], 229376, s_t1)
e(salu("s_lshl_b32", s_t1, s_t2, 19)); e(salu("s_add_u32", s_t1, s_t1, hx(WS_SP)))
srd(S_SPC, s_pair[0], s_pair[1], 524288, s_t1)
e(salu("s_mov_b32", s_cq, s_t2, scc_w=False)); e(salu("s_bfe_u32", s_cg, S(2), "0x30003"))
e(salu("s_lshl_b32", s_myfl, s_qb, 2)); e(salu("s_add_u32", s_myfl, s_myfl, s_w)); e(salu("s_lshl_b32", s_myfl, s_myfl, 8))
e(salu("s_lshl_b32", s_t1, s_g, 2)); e(salu("s_add_u32", s_myfl, s_myfl, s_t1))
e(salu("s_lshl_b32", s_m0b, s_w, 12)); e(salu("s_add_u32", s_m0b, s_m0b, RING))
e(salu("s_and_b32", s_t1, s_g, 1)); e(salu("s_lshl_b32", s_t1, s_t1, 2)); e(salu("s_add_u32", s_t1, s_t1, s_w))
e(scmp("s_cmp_eq_u32", s_w, 3)); e(salu("s_cselect_b32", s_t1, 3, s_t1, scc_w=False, scc_r=True))
e(salu("s_lshr_b32", s_t2, s_g, 1)); e(salu("s_mul_i32", s_t2, s_t2, 7, scc_w=False)); e(salu("s_add_u32", s_t1, s_t1, s_t2))
e(salu("s_lshl_b32", s_h0, s_t1, 13)); e(salu("s_add_u32", s_h1, s_h0, 4096))
e(salu("s_lshl_b32", s_t1, s_t1, 7))
e(salu("s_lshl_b32", s_t2, s_g, 2)); e(salu("s_add_u32", s_t2, s_t2, s_w)); e(salu("s_lshl_b32", s_t2, s_t2, 8))

def dma_voffs(dst, stride, colbase_s, perm):
    for j in range(4):
        e(valu("v_bfe_u32", vx, v_lane, 1, 2)); e(valu("v_bfe_u32", vy, v_lane, 4, 1))
        e(valu("v_xor_b32", vx, vx, vy))
        if j & 1: e(valu("v_xor_b32", vx, 2, vx))
        e(valu("v_and_b32", vy, 1, v_lane)); e(valu("v_lshlrev_b32", vy, 4, vy)); e(valu("v_lshl_add_u32", vx, vx, 5, vy))
        if not perm:
            e(valu("v_lshrrev_b32", vy, 3, v_lane)); rowadd = 8 * j
        else:
            e(valu("v_bfe_u32", vy, v_lane, 3, 2)); e(valu("v_bfe_u32", vz, v_lane, 5, 1)); e(valu("v_lshl_add_u32", vy, vz, 4, vy)); rowadd = 4 * j
        e(valu("v_mul_u32_u24", vy, stride, vy))
        e(valu("v_add3_u32", vx, vx, vy, colbase_s))
        e(valu("v_add_u32", dst[j], rowadd * stride - j * 1024, vx))

dma_voffs(v_dA, 3584, s_t1, False)
dma_voffs(v_dB, 8192, s_t2, False)

def m0set(p): return salu("s_add_u32", "m0", s_m0b, p * 16384) if p < 6 else salu("s_sub_u32", "m0", s_m0b, RING - (p - 6) * 16384)
def s1_dma(m):
    p = m % 6
    if m < 32:
        s, h = m >> 1, m & 1
        return [m0set(p), salu("s_mov_b32", s_off, s * 32 * 3584, scc_w=False)], [dma(v_dA[j], S_WU if h else S_WG, s_off, j * 1024) for j in range(4)]
    if m < 64:
        s, h = (m - 32) >> 1, m & 1
        return [m0set(p), salu("s_mov_b32", s_off, s * 32 * 8192 + 128 * h, scc_w=False)], [dma(v_dB[j], S_WQ, s_off, j * 1024) for j in range(4)]
    if m == 64:
        return [m0set(p), salu("s_mov_b32", s_off, 0, scc_w=False)], [dma(v_kd[j], S_K, s_off, j * 1024) for j in range(4)]
    if m == 65:
        return [m0set(p), salu("s_mov_b32", s_off, 8192, scc_w=False)], [dma(v_kd[j], S_K, s_off, j * 1024) for j in range(4)]
    if m == 66:
        return [m0set(p), salu("s_mov_b32", s_off, 0, scc_w=False)], [dma(v_vd[j & 1], S_V, s_off, j * 1024) for j in range(4)]
    return None
dtok = {}
ln_v = []
for m in range(6):
    sa, dm = s1_dma(m)
    ln_v.append(sa); ln_v += dm
    dtok[m] = dm[3]
def xaddr(dst, tmp):
    e(valu("v_and_b32", dst, 15, v_lane)); e(salu("s_lshl_b32", s_t0, s_w, 4)); e(valu("v_add_u32", dst, s_t0, dst)); e(valu("v_lshlrev_b32", dst, 10, dst))
    e(valu("v_lshrrev_b32", tmp, 4, v_lane)); e(valu("v_lshl_add_u32", dst, tmp, 3, dst)); e(salu("s_lshl_b32", s_t0, s_cg, 7)); e(valu("v_add_u32", dst, s_t0, dst))
vxs, vzero = V(50), V(51)
xaddr(vxs, vy)
e(valu("v_mov_b32", vzero, 0))
ln_v += [bload(a_x[(2 * u, 2)], vxs, S_XC, 0, off=32 * u, n=2) for u in range(4)]
e(valu("v_lshlrev_b32", V(39), 7, v_lane))
ln_v.append([raw("s_mov_b64 exec, 3", "salu", wr=["exec"]), bstore(vzero, V(39), S_FL, s_myfl, mod="sc1"), raw("s_mov_b64 exec, -1", "salu", wr=["exec"])])
ln_v.append([raw("s_mov_b64 exec, " + TL, "salu", wr=["exec"]), bload(V(46), vwq, S_WQ, 0, n=1), raw("s_mov_b64 exec, -1", "salu", wr=["exec"])])
LNPRE = int(os.environ.get("LNPRE", "0"))
lv = [0]
def ln_issue(n=1):
    k = 0
    while k < n and lv[0] < len(ln_v):
        it = ln_v[lv[0]]; lv[0] += 1
        e(it)
        if not isinstance(it, list): k += 1
e(valu("v_bfe_u32", vr, v_lane, 2, 2)); e(valu("v_and_b32", vc_, 3, v_lane))
e(valu("v_lshlrev_b32", vx, 10, vG)); e(valu("v_lshl_add_u32", vx, vr, 7, vx)); e(valu("v_lshl_add_u32", vx, vc_, 3, vx)); e(valu("v_add_u32", vx, s_m0b, vx))
e(valu("v_lshrrev_b32", vy, 1, vr)); e(valu("v_and_b32", vz, 1, vG)); e(valu("v_lshl_add_u32", vy, vz, 1, vy))
for u in range(4):
    e(valu("v_xor_b32", vz, u, vy)); e(valu("v_lshl_add_u32", v_tr[0][u], vz, 5, vx)); e(valu("v_add_u32", v_tr[1][u], 3 * 16384, v_tr[0][u]))
e(valu("v_xor_b32", vy, vG, vq))
for ds in range(4):
    e(valu("v_xor_b32", vz, 4 * ds, vy)); e(valu("v_lshlrev_b32", vz, 4, vz)); e(valu("v_lshl_add_u32", vz, vq, 8, vz)); e(valu("v_add_u32", v_ka[ds], RING + 4 * 16384, vz))
e(valu("v_lshl_add_u32", vx, vG, 2, vr)); e(valu("v_and_b32", vy, 7, vx)); e(valu("v_lshlrev_b32", vx, 8, vx)); e(valu("v_lshl_add_u32", vx, vc_, 3, vx)); e(valu("v_add_u32", vx, RING, vx))
for db in range(8):
    e(valu("v_xor_b32", vz, db, vy)); e(valu("v_lshl_add_u32", v_va[db], vz, 5, vx))
e(salu("s_lshl_b32", s_t1, s_w, 12))
e(valu("v_lshlrev_b32", vx, 8, vG)); e(valu("v_add_u32", vx, s_t1, vx))
for j in range(4):
    e(valu("v_add_u32", vy, 4 * j, vG)); e(valu("v_xor_b32", vy, vy, vq)); e(valu("v_lshl_add_u32", v_kd[j], vy, 4, vx))
e(valu("v_and_b32", vz, 1, v_lane)); e(valu("v_lshl_add_u32", vx, vz, 4, vx))
for j in range(2):
    e(valu("v_add_u32", vy, 4 * j, vG)); e(valu("v_lshrrev_b32", vz, 1, vq)); e(valu("v_xor_b32", vy, vy, vz)); e(valu("v_lshl_add_u32", v_vd[j], vy, 5, vx))
e(salu("s_lshl_b32", s_t1, s_w, 14)); e(valu("v_add_u32", v_wl, s_t1, v_lin))
e(salu("s_mov_b32", s_retry, 0, scc_w=False))
for ks in range(XFIRST, 16): e(xl[ks])
e(salu("s_mov_b32", s_t1, hx(WS_FL), scc_w=False))
srd(S_FL, s_pair[0], s_pair[1], 32768, s_t1)
ln_issue(LNPRE)
stamp()

v_f = V(128, 128)
acc = [V(56, 2), V(58, 2), V(60, 2), V(62, 2)]
diag(2)
for ks in range(16):
    em.wait(vm=xl[ks])
    if ks == 15: diag(2)
    for k in range(4):
        p = 4 * ks + k
        e(valu("v_lshlrev_b32", v_f[2 * p], 16, v_xp[p])); e(valu("v_and_b32", v_f[2 * p + 1], "0xffff0000", v_xp[p]))
    for k in range(4):
        p = 4 * ks + k
        if ks == 0: e(valu("v_mov_b64", acc[k], v_f[(2 * p, 2)]))
        else: e(valu("v_pk_add_f32", acc[k], acc[k], v_f[(2 * p, 2)]))
if STAMP == 3: stamp()
ln_issue(int(os.environ.get("LN_FIRST", "12")))
diag(2)
if STAMP == 3: stamp()
e(valu("v_pk_add_f32", acc[0], acc[0], acc[1])); e(valu("v_pk_add_f32", acc[2], acc[2], acc[3])); e(valu("v_pk_add_f32", acc[0], acc[0], acc[2]))
vsum, vtmp, vmb, vdm = V(40), V(41), V(42), V(43)
e(valu("v_add_f32", vsum, acc[0][0], acc[0][1]))
red4("v_add_f32", [vsum], [vtmp])
e(valu("v_mul_f32", vsum, hx(f2u(1.0 / 512)), vsum))
e(valu("v_cvt_pk_bf16_f32", vmb, vsum, vsum)); e(valu("v_lshlrev_b32", vmb, 16, vmb))
e(valu("v_sub_f32", vdm, vsum, vmb))
vneg = V(56, 2)
e(valu("v_sub_f32", vneg[0], 0, vmb))
acc2 = [V(58, 2), V(60, 2), V(62, 2)]
for p in range(64):
    e(valu("v_pk_add_f32", v_f[(2 * p, 2)], v_f[(2 * p, 2)], vneg, mod="op_sel_hi:[1,0]"))
for p in range(64):
    a_ = acc2[p % 3]
    if p < 3: e(valu("v_pk_mul_f32", a_, v_f[(2 * p, 2)], v_f[(2 * p, 2)]))
    else: e(valu("v_pk_fma_f32", a_, v_f[(2 * p, 2)], v_f[(2 * p, 2)], a_))
if STAMP == 3: stamp()
e(valu("v_pk_add_f32", acc2[0], acc2[0], acc2[1])); e(valu("v_pk_add_f32", acc2[0], acc2[0], acc2[2]))
e(valu("v_add_f32", vsum, acc2[0][0], acc2[0][1]))
red4("v_add_f32", [vsum], [vtmp])
e(valu("v_mul_f32", vsum, hx(f2u(1.0 / 512)), vsum))
e(valu("v_fma_f32", vsum, "-" + str(vdm), vdm, vsum, extra_rd=vdm.regs()))
e(valu("v_max_f32", vsum, 0, vsum))
e(valu("v_cvt_pk_bf16_f32", vsum, vsum, vsum)); e(valu("v_lshlrev_b32", vsum, 16, vsum))
e(valu("v_add_f32", vsum, hx(f2u(1e-5)), vsum))
e(valu("v_cvt_pk_bf16_f32", vsum, vsum, vsum)); e(valu("v_lshlrev_b32", vsum, 16, vsum))
e(valu("v_sqrt_f32", vsum, vsum)); e(nop(0))
e(valu("v_cvt_pk_bf16_f32", vsum, vsum, vsum)); e(valu("v_lshlrev_b32", vsum, 16, vsum))
e(valu("v_rcp_f32", vneg[0], vsum)); e(nop(0))
for ks in range(16):
    for k in range(4):
        p = 4 * ks + k
        e(valu("v_pk_mul_f32", v_f[(2 * p, 2)], v_f[(2 * p, 2)], vneg, mod="op_sel_hi:[1,0]"))
    for k in range(4):
        p = 4 * ks + k
        e(valu("v_cvt_pk_bf16_f32", v_xp[p], v_f[2 * p], v_f[2 * p + 1]))
    e(dswrite("ds_write_b128", v_wl, v_xp[(4 * ks, 4)], ks * 1024))
ln_issue(int(os.environ.get("LN_LAST", "100")))
if STAMP == 3: stamp()
if DUMP == "ln": dump_regs([v_xp[i] for i in range(64)])
em.wait(lg0=True)
e(raw("s_barrier"))
stamp(); diag(); diag(2); diag(3)

def cost_of(it):
    k = getattr(it, "kind", "")
    return 2 if k == "trans" else (0 if k in ("salu", "nop") else 1)
class Fill:
    def __init__(self, items, start, end, spread=False): self.items, self.start, self.end, self.spread = list(items), start, end, spread; self.i = 0
    def done(self): return self.i == len(self.items)
def run_stream(NH, dmaf, dtok, accf, Bf, extra, fills, LOOK=6, nq=4, posf=lambda m: m % 6, ring=a_ring, first_dma=6, tr2=None, early_dma=False):
    NG = 4 * NH
    rtok = {}
    def reads(g):
        m, u = g >> 2, g & 3
        p = posf(m)
        d = ring[((g % 8) * 4, 4)]
        ar, of = (v_tr[p // 3][u], (p % 3) * 16384) if p < 6 else (tr2[u], (p - 6) * 16384)
        r = [dsread("ds_read_b64_tr_b16", d[(2 * h2, 2)], ar, of + h2 * 512) for h2 in range(2)]
        rtok[g] = r[1]
        return r
    pre = [reads(g) for g in range(3)]
    G, C = [], []
    cur = None
    for g in range(NG):
        gaps = [[], [], [], []]; cap = [2, 2, 2, 2]
        if g + 3 < NG:
            if (g + 3) & 3 == 0: gaps[0].append(LateW(dtok, (g + 3) >> 2))
            r = reads(g + 3); gaps[0].append(r[0]); gaps[1].append(r[1]); cap[0] -= 1; cap[1] -= 1
        md, j = (g + 4 * LOOK - 4) >> 2, (g + 4 * LOOK - 4) & 3
        if early_dma:
            md, j = (g + 4 * LOOK - 3) >> 2, (g + 4 * LOOK - 3) & 3
            if md >= first_dma and j < 2:
                if j == 0: cur = dmaf(md)
                if cur is not None:
                    if j == 0: gaps[1] += cur[0]
                    gaps[2].append(cur[1][2 * j]); gaps[3].append(cur[1][2 * j + 1]); cap[2] -= 1; cap[3] -= 1
                    if j == 1: dtok[md] = cur[1][3]
        elif md >= first_dma:
            if j == 0: cur = dmaf(md)
            if cur is not None:
                if j == 0: gaps[2] += cur[0]
                for it in cur[1][j::4]: gaps[3].append(it); cap[3] -= 1
                if j == 3: dtok[md] = cur[1][3]
        for (gp, it, cost) in extra.get(g, []):
            gaps[gp].append(it); cap[gp] -= cost
        if g + 1 < NG: gaps[3].insert(0, Wait(lg=rtok[g + 1]))
        G.append(gaps); C.append(cap)
    B = {}
    for f in fills:
        idx = [(g, q) for g in range(f.start, f.end) for q in range(4)]
        caps = [max(0, C[g][q]) for g, q in idx]
        W = sum(cost_of(it) for it in f.items); T = sum(caps); n = len(idx)
        acc = 0.0; cum = 0
        for k, key in enumerate(idx):
            if W >= T: acc += caps[k] + (W - T) / n
            elif f.spread: acc += caps[k] * W / T
            else: acc += caps[k]
            B[key] = (f, acc)
    em.wait(vm=dtok[0])
    for r in pre: e(r)
    for p_ in extra.get(-1, []): e(p_[1])
    em.wait(lg0=True)
    used = {id(f): 0 for f in fills}
    for g in range(NG):
        m, u = g >> 2, g & 3
        d = ring[((g % 8) * 4, 4)]
        for qb in range(nq):
            ac, first = accf(m, u, qb)
            e(mfma(ac, d, Bf(m, qb), 0 if first else ac))
            ent = B.get((g, qb))
            sawv = False
            if ent:
                f, lim = ent
                while not f.done() and getattr(f.items[f.i], "kind", "") in ("lds", "vmem", "salu") and used[id(f)] + cost_of(f.items[f.i]) <= lim + 0.5:
                    it = f.items[f.i]; f.i += 1; used[id(f)] += cost_of(it); e(it)
            for it in G[g][qb]: e(it)
            if ent:
                f, lim = ent
                lastgap = (g == f.end - 1 and qb == 3)
                while not f.done():
                    it = f.items[f.i]; c = cost_of(it)
                    if not lastgap:
                        if used[id(f)] + c > lim + 0.5: break
                        if sawv and getattr(it, "kind", "") in ("lds", "vmem"): break
                    f.i += 1; used[id(f)] += c; e(it)
                    if getattr(it, "kind", "") in ("valu", "trans"): sawv = True
    assert all(f.done() for f in fills)
class LateW:
    def __init__(self, d, k): self.d, self.k = d, k
    def __call__(self): return Wait(vm=self.d[self.k])

def s1_acc(m, u, qb):
    h = m & 1
    idx = ((h * 4 + u) * 4 + qb) * 4
    if m < 32: return A(idx, 4), m < 2
    return v_acc[(idx, 4)], m < 34
def s1_B(m, qb): return a_B[(((m >> 1) & 1) * 16 + qb * 4, 4)]
extra = {}
btok = {}
def bread(s, qb): return dsread("ds_read_b128", a_B[((s & 1) * 16 + qb * 4, 4)], v_lin, (qb * 16 + (s % 16)) * 1024)
extra[-1] = [(0, bread(0, qb), 1) for qb in range(4)]
for s in range(1, 32):
    for qb in range(4):
        extra.setdefault(8 * (s - 1) + 1 + qb, []).append((2, bread(s, qb), 1))
gi = 0; gj = 0; pend_s = []
for it in ln_v[lv[0]:]:
    if isinstance(it, list) and all(x.kind == "salu" for x in it): pend_s = it; continue
    if not isinstance(it, list) and it.kind == "dma":
        assert gi < 12
        extra.setdefault(gi // 3, []).append((gi % 3, [pend_s, it] if pend_s else it, 1)); pend_s = []
        gi += 1
    else:
        extra.setdefault(8 + 2 * gj, []).append((1, it, 1)); gj += 1
C0 = -2.0 * math.sqrt(2.0 / math.pi) * math.log2(math.e); C1 = C0 * 0.044715
vc0, vc1 = V(40), V(41)
gel = [valu("v_mov_b32", vc0, hx(f2u(C0))), valu("v_mov_b32", vc1, hx(f2u(C1)))]
hst = []
tb = 0
for i in range(2):
    for qb in range(4):
        pk = V(96 + 4 * tb, 4); tb += 1
        for b in range(2):
            u = 2 * i + b
            T = [V(64 + 16 * b + k) for k in range(16)]
            G_, U_, X_ = T[0:4], T[4:8], T[8:12]
            ga = lambda r: A((u * 4 + qb) * 4 + r); ua = lambda r: A(((4 + u) * 4 + qb) * 4 + r)
            for r in range(4): gel.append(valu("v_accvgpr_read_b32", G_[r], ga(r)))
            for r in range(4): gel.append(valu("v_accvgpr_read_b32", U_[r], ua(r)))
            for r in range(4): gel.append(valu("v_mul_f32", X_[r], G_[r], G_[r]))
            for r in range(4): gel.append(valu("v_fma_f32", X_[r], X_[r], vc1, vc0))
            for r in range(4): gel.append(valu("v_mul_f32", X_[r], X_[r], G_[r]))
            for r in range(4): gel.append(valu("v_exp_f32", X_[r], X_[r]))
            for r in range(4): gel.append(valu("v_mul_f32", G_[r], G_[r], U_[r]))
            for r in range(4): gel.append(valu("v_add_f32", X_[r], "1.0", X_[r]))
            for r in range(4): gel.append(valu("v_rcp_f32", X_[r], X_[r]))
            gel.append(nop(0))
            for r in range(4): gel.append(valu("v_mul_f32", G_[r], G_[r], X_[r]))
            for k in range(2): gel.append(valu("v_cvt_pk_bf16_f32", pk[2 * b + k], G_[2 * k], G_[2 * k + 1]))
        st = bstore(pk, v_lin, S_H, s_h1 if i else s_h0, off=qb * 1024, mod="sc1")
        hst.append(st)
class Stamp:
    def __call__(self): stamp(); return []
if STAMP: extra.setdefault(128, []).append((0, Stamp(), 0))
class Diag3:
    def __call__(self): diag(3); return []
if DIAG == 3:
    for g_ in (32, 128, 192): extra.setdefault(g_, []).append((0, Diag3(), 0))
class Grp:
    kind = "salu"
    def __init__(self, l): self.l = l
    def __call__(self):
        for x in self.l:
            if x.kind == "label": em.out.append(x)
            else: e(x)
        return []
def group_scc(items):
    out = []
    for it in items:
        if out and ("scc" in it.rd or it.kind == "label"):
            p = out.pop(); out.append(Grp((p.l if isinstance(p, Grp) else [p]) + [it]))
        else: out.append(it)
    return out
s_pf = [S(24, 2), S(26, 2), S(28, 2), S(30, 2)]
s_pfH = s_pair2
s_fo = S(3)
QS = math.log2(math.e) / math.sqrt(128.0)
vqs = V(42, 2); vqw = V(44)
save = em.out; em.out = []; spend = em.pend; em.pend = {}
NWO = 4 if MAP2 else 2
for it in range(3):
    e(salu("s_add_u32", s_t0, s_w, 4 * it))
    e(salu("s_sub_u32", s_t1, s_t0, NWO)); e(salu("s_min_u32", s_t1, s_t1, 6)); e(salu("s_lshl_b32", s_t1, s_t1, 13))
    e(salu("s_lshr_b32", s_t2, S(2), 3)); e(salu("s_mul_i32", s_t2, s_t2, 57344, scc_w=False)); e(salu("s_add_u32", s_t1, s_t1, s_t2))
    e(salu("s_add_u32", s_pf[it][0], S_WD[0], s_t1)); e(salu("s_addc_u32", s_pf[it][1], S_WD[1], 0, scc_r=True))
    if it == 0:
        e(sx(s_t1)); e(salu("s_lshl_b32", s_t1, s_t1, 15 if MAP2 else 14)); e(salu("s_lshl_b32", s_t2, s_w, 13)); e(salu("s_add_u32", s_t1, s_t1, s_t2))
        e(salu("s_add_u32", s_pf[1][0], S_WO[0], s_t1)); e(salu("s_addc_u32", s_pf[1][1], S_WO[1], 0, scc_r=True))
        e(scmp("s_cmp_lt_u32", s_w, NWO)); e(salu("s_cselect_b64", s_pf[0], s_pf[1], s_pf[0], scc_w=False, scc_r=True))
e(raw("s_getpc_b64 %s" % s_pf[3], "salu", wr=[s_pf[3]]))
em.label("L_pc1")
e(salu("s_lshl_b32", s_t0, s_w, 13)); e(salu("s_add_u32", s_t0, s_t0, "L_tail-L_pc1")); e(salu("s_min_u32", s_t0, s_t0, "L_code_end-L_pc1-8192"))
e(salu("s_add_u32", s_t1, s_t0, (1 if MAP2 else 3) * 8192)); e(salu("s_min_u32", s_t1, s_t1, "L_code_end-L_pc1-8192"))
e(salu("s_add_u32", s_pfH[0], s_pf[3][0], s_t1)); e(salu("s_addc_u32", s_pfH[1], s_pf[3][1], 0, scc_r=True))
e(scmp("s_cmp_lt_u32", s_w, 3 if MAP2 else 1)); e(salu("s_cselect_b64", s_pf[2], s_pf[2], s_pfH, scc_w=False, scc_r=True))
e(salu("s_add_u32", s_pf[3][0], s_pf[3][0], s_t0)); e(salu("s_addc_u32", s_pf[3][1], s_pf[3][1], 0, scc_r=True))
e(salu("s_lshl_b32", s_t0, s_cg, 2)); e(salu("s_add_u32", s_t0, s_t0, s_w)); e(salu("s_mul_i32", s_t0, s_t0, 7168, scc_w=False)); e(salu("s_min_u32", s_t0, s_t0, 229376 - 8192))
e(salu("s_add_u32", s_pfH[0], S_HC[0], s_t0)); e(salu("s_addc_u32", s_pfH[1], S_HC[1], 0, scc_r=True))
e(salu("s_lshl_b32", s_fo, s_cq, 3))
vx, vy, vz = V(45), V(46), V(47)
e(salu("s_lshl_b32", s_t1, s_w, 8))
dma_voffs(v_dA, 1024, s_t1, True)
e(salu("s_mul_i32", s_wdd, s_w, 448 * 1024 - 256, scc_w=False)); e(salu("s_lshl_b32", s_t3, s_cg, 7)); e(salu("s_add_u32", s_wdd, s_wdd, s_t3))
e(valu("v_mov_b32", vqs[0], hx(f2u(QS))))
e(valu("v_and_b32", vx, 15, v_lane)); e(valu("v_bfe_u32", vqw, v_lane, 5, 1)); e(valu("v_lshl_add_u32", vx, vqw, 4, vx)); e(valu("v_lshlrev_b32", vx, 4, vx))
e(valu("v_bfe_u32", vqw, v_lane, 4, 1)); e(valu("v_lshl_add_u32", vqw, vqw, 3, vx))
e(salu("s_lshl_b32", s_t1, s_w, 14)); e(valu("v_add_u32", vqw, s_t1, vqw))
midset = group_scc(em.out); em.out = save; em.pend = spend
HST = int(os.environ.get("HST", "0"))
if HST == 0: GEL_END = 254
for k in range(8):
    if HST: extra.setdefault(248 + k, []).append((0, hst[k], 1))
run_stream(64, s1_dma, dtok, s1_acc, s1_B, extra, [Fill(midset, 109, 130), Fill(gel, 131, GEL_END)], early_dma=int(os.environ.get('ED1', '0')))
if DUMP == "qacc": dump_regs([v_acc[i] for i in range(128)])
stamp(); diag(3)

em.wait(lg0=True)
e(raw("s_barrier"))
def signal(off_s_expr_add, lab, v_t):
    e(scmp("s_cmp_lg_u32", s_w, 0)); e(raw("s_cbranch_scc1 %s" % lab, rd=["scc"]))
    e(salu("s_lshl_b32", s_t0, s_qb, 2))
    if off_s_expr_add: e(salu("s_add_u32", s_t0, s_t0, off_s_expr_add))
    e(valu("v_mov_b32", v_t, 1))
    e(raw("s_mov_b64 exec, 1", "salu", wr=["exec"]))
    e(raw("buffer_atomic_add %s, off, %s, %s sc1" % (v_t, S_DBG, s_t0)))
    e(raw("s_mov_b64 exec, -1", "salu", wr=["exec"]))
    em.label(lab)
for blk in range(8):
    for qb in range(4):
        a_ = v_acc[((blk * 4 + qb) * 4, 4)]
        t = V(64 + 2 * ((blk * 4 + qb) % 8), 2)
        for k in range(2): e(valu("v_pk_mul_f32", a_[(2 * k, 2)], a_[(2 * k, 2)], vqs, mod="op_sel_hi:[1,0]"))
        for k in range(2): e(valu("v_cvt_pk_bf16_f32", t[k], a_[2 * k], a_[2 * k + 1]))
        if len(em.lgq) >= 7: em.wait(lg=em.lgq[-7])
        e(dswrite("ds_write_b64", vqw, t, (qb * 4 + (blk >> 1)) * 1024 + (blk & 1) * 512))
for j in range(4): e(valu("v_add_u32", v_dB[j], s_wdd, v_dA[j]))
em.wait(lg0=True)
for f in range(16): e(dsread("ds_read_b128", a_Q[(4 * f, 4)], v_wl, f * 1024))
em.label("L_att_start")
NZ0 = 32
for i in range(NZ0): e(valu("v_mov_b64", v_acc[(2 * i, 2)], 0))
if LSUM:
    for i in range(16): e(valu("v_accvgpr_write_b32", a_L[i], 0))
    e(valu("v_mov_b32", V(40), "0x3f803f80"))
    if LSUM == 2:
        e(valu("v_and_b32", V(41), 15, v_lane)); e(valu("v_cmp_eq_u32", "vcc", 0, V(41))); e(nop(1)); e(valu("v_cndmask_b32", V(40), 0, V(40), "vcc"))
    for i in range(4): e(valu("v_accvgpr_write_b32", a_ones[i], V(40)))
else:
    for i in range(4): e(valu("v_mov_b32", v_l0[i], 0)); e(valu("v_mov_b32", v_l1[i], 0))
e(valu("v_lshlrev_b32", V(3), 7, v_lane))
e(valu("v_and_b32", V(38), 7, v_lane)); e(valu("v_mov_b32", V(0), 0))
em.wait(vm=dtok[66], lg0=True)
e(raw("s_barrier"))
if DUMP == "q": dump_regs([a_Q[i] for i in range(64)])
stamp()

def Qf(qb, ds): return a_Q[((qb * 4 + ds) * 4, 4)]
def Of(db, qb): return v_acc[((db * 4 + qb) * 4, 4)]
def fr(f): return a_ring[((f % 8) * 4, 4)]
def kslot(par): return 16384 if par == 0 else 0
def vslot(par): return 0 if par == 0 else 16384
def frag_reads(par, f):
    if f >= 32: par ^= 1; f -= 32
    d = fr(f)
    if f < 8 or 16 <= f < 24:
        kb = (f >> 2) if f < 8 else 2 + ((f - 16) >> 2)
        return [dsread("ds_read_b128", d, v_ka[f & 3], kslot(par) + kb * 4096)]
    ks2 = 0 if f < 16 else 1
    db = f & 7
    return [dsread("ds_read_b64_tr_b16", d[(2 * h, 2)], v_va[db], vslot(par) + ks2 * 8192 + h * 4096) for h in range(2)]
def read_sched(g):
    r = []
    if g + 3 < 24 or g >= 29: r.append(g + 3)
    if 19 <= g <= 26: r.append(g + 5)
    return r
def sm_val(g, k):
    if 7 <= g <= 22: b = 1; n = 2 * (g - 7) + k
    else: b = 0; n = 2 * ((g - 23) % 32) + k
    kb, qb, r = n >> 4, (n >> 2) & 3, n & 3
    return b, qb, kb, r
def sm_items(g):
    ex, ad = [], []
    for k in range(2):
        b, qb, kb, r = sm_val(g, k)
        x = v_S[b][qb * 8 + kb * 4 + r]
        l = (v_l1 if b else v_l0)[qb]
        ex.append(valu("v_exp_f32", x, x)); ad.append(valu("v_add_f32", l, l, x))
    b, qb, kb, r = sm_val((g - 1) % 32, 0)
    cv = valu("v_cvt_pk_bf16_f32", v_S[b][qb * 8 + kb * 2 + (r >> 1)], v_S[b][qb * 8 + kb * 4 + r], v_S[b][qb * 8 + kb * 4 + r + 1])
    return ex, ad, cv
def att_dma(par, g):
    if g >= 29: k = g - 29; sp = par
    elif g <= 4: k = g + 3; sp = par ^ 1
    else: return [], None
    sal = []
    if k == 0: sal = [salu("s_add_u32", "m0", s_m0b, 4 * 16384 + kslot(sp))]
    if k == 4: sal = [salu("s_add_u32", "m0", s_m0b, vslot(sp))]
    if k < 4: return sal, dma(v_kd[k], S_K, s_kK, k * 1024)
    return sal, dma(v_vd[k & 1], S_V, s_kV, (k - 4) * 1024)
SIDE_FIRST = 11
class Lbl:
    def __init__(self, n): self.n = n
    def __call__(self): em.label(self.n); return []
class LoopStamp:
    def __init__(self, k, par): self.k, self.par = k, par
    def __call__(self):
        k = self.k
        e(raw("s_memtime %s" % S(68 + 2 * k, 2), "other", wr=[S(68 + 2 * k, 2)]))
        if k == 2:
            e(raw("s_waitcnt lgkmcnt(0)", "wait")); em._retire(em.lgq, 0)
            for i in range(3): e(valu("v_writelane_b32", v_c, S(68 + 2 * i), i, rmw=True))
            e(salu("s_lshl_b32", S(74), S(2), 2)); e(salu("s_add_u32", S(74), S(74), s_w)); e(salu("s_lshl_b32", S(74), S(74), 4))
            e(salu("s_sub_u32", S(74), S(74), s_cnt)); e(salu("s_add_u32", S(74), S(74), 16)); e(salu("s_lshl_b32", S(74), S(74), 5))
            e(salu("s_add_u32", S(74), S(74), (1 << 20) + 16 * self.par))
            e(raw("s_mov_b64 exec, 7", "salu", wr=["exec"]))
            e(valu("v_lshlrev_b32", v_t, 2, v_lane))
            e(bstore(v_c, v_t, S_DMP, S(74), off=0))
            e(raw("s_mov_b64 exec, -1", "salu", wr=["exec"]))
            e(valu("v_lshlrev_b32", v_t, 7, v_lane))
        return []
v_tch, v_flag, v_fa = V(3), V(0), V(38)
xtok = []; lastdma = [None]
NITER = 14
s_pfc = S(16, 2); s_kvt = S(18, 2); KVIT = int(os.environ.get('KVIT', '12'))
ROT = int(os.environ.get('ROT', '8'))
ftok = {}
def att_group(par, g, do_mfma=True, do_mem=True, do_cvt=True, last=False, pp=None, xmem=(), xsal=(), xvalu=None):
    ex, ad, cv = sm_items(g)
    mem = []
    sal = []
    fin = (pp == 3)
    d = None
    if do_mem:
        if fin: sched = ([g + 3] if g + 3 < 16 else []) + ([g + 11] if 13 <= g <= 20 else [])
        else: sched = read_sched(g)
        for f in sched:
            r = frag_reads(par, f); mem += r; ftok[f % 32] = r
        if pp is None or (g <= 4 and pp <= 2) or (g >= 29 and pp <= 1):
            sal, d = att_dma(par, g)
            if d is not None: mem.append(d)
    loop = do_mem and pp is None
    post0 = []
    if loop and par == 0:
        if g == 14: mem.append(I("global_load_dword %s, %s, %s" % (v_c, v_tch, s_pfc), "vmem", rd=v_tch.regs() + s_pfc.regs(), wr=[]))
        if g == 13: mem.append(I("buffer_load_ubyte %s, %s, %s, %s offen sc1" % (v_flag, v_fa, S_DBG, s_t2), "vmem", rd=S_DBG.regs() + s_t2.regs() + v_fa.regs(), wr=[]))
        if g == 8: sal = sal + [scmp("s_cmp_le_u32", s_cnt, ROT)]
        if g in (9, 10, 11, 12):
            q_ = [s_pfc] + s_pf
            sal = sal + [salu("s_cselect_b64", q_[g - 9], q_[g - 8], q_[g - 9], scc_w=False, scc_r=True)]
        if g == 0: post0 = [valu("v_cmp_eq_u32", "vcc", 1, v_flag)]
        if g == 2: sal = sal + [raw("s_cmp_eq_u32 vcc_lo, -1", "salu", rd=["vcc"], wr=["scc"])]
        if g == 3: sal = sal + [salu("s_cselect_b32", s_t0, s_cnt, -1, scc_w=False, scc_r=True)]
        if g == 4: sal = sal + [scmp("s_cmp_eq_u32", s_t0, ROT - 1)]
        if g == 5: sal = sal + [salu("s_cselect_b64", s_pf[3], s_pfH, s_pf[3], scc_w=False, scc_r=True)]
        if g == 15: sal = sal + [salu("s_cselect_b64", s_pf[3], S_K[(0, 2)], s_pf[3], scc_w=False, scc_r=True)]
        if g == 20: sal = sal + [scmp("s_cmp_eq_u32", s_cnt, KVIT + 1)]
        if g == 21: sal = sal + [salu("s_cselect_b64", s_pfc, s_kvt, S_K[(0, 2)], scc_w=False, scc_r=True)]
        if g == 13: sal = sal + [salu("s_cselect_b32", s_t2, s_fo, 256, scc_w=False, scc_r=True)]
        if g == 18: sal = sal + [scmp("s_cmp_eq_u32", s_cnt, s_sig)]
        if g == 19: sal = sal + [raw("s_cbranch_scc1 L_sigH_side", rd=["scc"]), Lbl("L_sigH_ret")]
    if do_mem and g == 4 and d is not None: lastdma[0] = d
    mem += list(xmem); sal = sal + list(xsal)
    gaps = [[], [], [], []]
    if g == 29 and do_mem and not fin:
        if STAMP == 2 and loop and do_mfma: gaps[0] += [LoopStamp(0, par)]
        gaps[0] += [Wait(lg0=True) if not do_mfma else (Wait(lg0=True, vm0=True) if (pp is None and par == 1) else Wait(lg0=True, vm=lastdma[0]))]
        if STAMP == 2 and loop and do_mfma: gaps[0] += [LoopStamp(1, par)]
        gaps[0] += [raw("s_barrier")]
        if STAMP == 2 and loop and do_mfma: gaps[0] += [LoopStamp(2, par)]
    gaps[0] += sal
    if g == 6 and do_mem and (pp is None or pp <= 1): gaps[0].append(salu("s_add_u32", s_kK, s_kK, 16384))
    if g == 7 and do_mem and (pp is None or pp <= 1): gaps[0].append(salu("s_add_u32", s_kV, s_kV, 16384))
    sm = not (fin and g >= 23)
    if fin and g > 23: do_cvt = False
    if fin and 16 <= g < 24: do_mfma = False
    if LSUM:
        if sm: gaps[0].append(ex[0])
        gaps[1] += mem[0:2] if len(mem) > 2 else mem[0:1]
        gaps[1] += post0
        nf = (g + 1) % 32
        if do_mem and not (fin and (16 <= nf < 24 or nf == 0)): gaps[2].append(Wait(lg=ftok.get(nf)))
        if last and g == 30: gaps[2].append(salu("s_sub_u32", s_cnt, s_cnt, 1))
        if sm: gaps[2].append(ex[1])
        gaps[3] += mem[2:] if len(mem) > 2 else mem[1:]
        if do_cvt: gaps[1 if len(gaps[1]) < 2 else 3].append(cv)
    else:
      gaps[0] += mem[2:3]
      if sm: gaps[0].append(ex[0])
      if len(mem) > 0: gaps[1].append(mem[0])
      if len(mem) == 0 and do_cvt: gaps[1].append(cv)
      if sm: gaps[1].append(ad[0])
      gaps[1] += post0
      nf = (g + 1) % 32
      if do_mem and not (fin and (16 <= nf < 24 or nf == 0)): gaps[2].append(Wait(lg=ftok.get(nf)))
      if last and g == 30: gaps[2].append(salu("s_sub_u32", s_cnt, s_cnt, 1))
      gaps[2] += mem[3:]
      if sm: gaps[2].append(ex[1])
      if len(mem) > 1: gaps[3].append(mem[1])
      if len(mem) > 0 and do_cvt: gaps[3].append(cv)
      if sm: gaps[3].append(ad[1])
    for qb in range(4):
        if do_mfma:
            if g < 8 or 16 <= g < 24:
                b = 1 if g < 8 else 0
                kb, ds = (g >> 2) & 1, g & 3
                d = v_S[b][(qb * 8 + kb * 4, 4)]
                e(mfma(d, fr(g), Qf(qb, ds), v_negm[(qb * 4, 4)] if ds == 0 else d))
            else:
                b = 0 if g < 16 else 1
                e(mfma(Of(g & 7, qb), fr(g), v_S[b][(qb * 8, 4)], Of(g & 7, qb)))
        else:
            if (qb & 1) and not gaps[qb][:1] or ((qb & 1) and getattr(gaps[qb][0], "kind", "") in ("valu",)): e(nop(0))
        for it in gaps[qb]: e(it)
        if xvalu is not None:
            c = 2 - sum(1 for it in gaps[qb] if getattr(it, "kind", "") in ("lds", "vmem", "dma", "valu"))
            while xvalu and c > 0:
                it = xvalu.pop(0); e(it); c -= 2 if it.kind == "trans" else 1
    if LSUM and do_mfma and (g & 8):
        k = g & 7
        lq = (k if k < 4 else None) if (fin and g >= 24) else (k >> 1 if k & 1 else None)
        if lq is not None: e(mfma(a_L[(4 * lq, 4)], a_ones, v_S[0 if g < 16 else 1][(lq * 8, 4)], a_L[(4 * lq, 4)]))

pr = [dsread("ds_read_b128", fr(f), v_ka[f & 3], (f >> 2) * 4096) for f in range(8)]
for r in pr: e(r)
e(scmp("s_cmp_lg_u32", s_retry, 0)); e(raw("s_cbranch_scc1 L_have_max", rd=["scc"]))
for i in range(16): e(valu("v_mov_b32", v_negm[i], 0))
em.label("L_have_max")
zr = [valu("v_mov_b32", v_acc[i], 0) for i in range(2 * NZ0, 128)]
for f in range(8):
    em.wait(lg=pr[f])
    for qb in range(4):
        d = v_S[0][(qb * 8 + (f >> 2) * 4, 4)]
        e(mfma(d, fr(f), Qf(qb, f & 3), v_negm[(qb * 4, 4)] if (f & 3) == 0 else d))
        if qb == 0 and HST == 0: e(hst[f])
        for _ in range(2):
            if zr: e(zr.pop(0))
assert not zr
e(salu("s_mov_b32", s_kK, 16384 + 8192, scc_w=False)); e(salu("s_mov_b32", s_kV, 16384, scc_w=False)); e(salu("s_mov_b32", s_cnt, NITER, scc_w=False))
e(scmp("s_cmp_lg_u32", s_retry, 0)); e(raw("s_cbranch_scc1 L_have_max2", rd=["scc"]))
e(nop(3))
mx = [V(97 + 4 * i) for i in range(4)]; mt = [V(98 + 4 * i) for i in range(4)]
for qb in range(4): e(valu("v_max3_f32", mx[qb], v_S[0][qb * 8], v_S[0][qb * 8 + 1], v_S[0][qb * 8 + 2]))
for qb in range(4): e(valu("v_max3_f32", mx[qb], mx[qb], v_S[0][qb * 8 + 3], v_S[0][qb * 8 + 4]))
for qb in range(4): e(valu("v_max3_f32", mx[qb], mx[qb], v_S[0][qb * 8 + 5], v_S[0][qb * 8 + 6]))
for qb in range(4): e(valu("v_max_f32", mx[qb], mx[qb], v_S[0][qb * 8 + 7]))
red4("v_max_f32", mx, mt)
for qb in range(4):
    for k in range(4): e(valu("v_sub_f32", v_negm[qb * 4 + k], 0, mx[qb]))
for qb in range(4):
    for k in range(8): e(valu("v_sub_f32", v_S[0][qb * 8 + k], v_S[0][qb * 8 + k], mx[qb]))
em.label("L_have_max2")
e(nop(7))
for g in range(23, 29): att_group(1, g, do_mfma=False, do_mem=False, do_cvt=(g != 23))
stamp(); diag()
e(salu("s_and_b32", s_t0, s_qb, 3)); e(salu("s_sub_u32", s_t0, NITER - 1, s_t0))
e(scmp("s_cmp_eq_u32", s_w, 0)); e(salu("s_cselect_b32", s_sig, s_t0, -1, scc_w=False, scc_r=True))
e(scmp("s_cmp_eq_u32", s_retry, 0)); e(salu("s_cselect_b32", s_sig, s_sig, -1, scc_w=False, scc_r=True))
e(salu("s_mov_b64", s_pfc, S_K[(0, 2)], scc_w=False))
e(scmp("s_cmp_lt_u32", s_w, 2)); e(salu("s_cselect_b64", s_kvt, S_K[(0, 2)], S_V[(0, 2)], scc_w=False, scc_r=True))
e(salu("s_and_b32", s_t0, s_w, 1)); e(sx(s_t1)); e(salu("s_lshl_b32", s_t1, s_t1, 1)); e(salu("s_add_u32", s_t0, s_t0, s_t1)); e(salu("s_lshl_b32", s_t0, s_t0, 13))
if MAP2: e(salu("s_add_u32", s_t0, s_t0, 262144))
e(salu("s_add_u32", s_kvt[0], s_kvt[0], s_t0)); e(salu("s_addc_u32", s_kvt[1], s_kvt[1], 0, scc_r=True))
for g in range(29, 32): att_group(1, g, do_mfma=False, do_mem=True)
pro_end = len(em.out)
em.directive(".p2align 6")
em.label("L_att_loop")
def body():
    for par in range(2):
        for g in range(32): att_group(par, g, last=(par == 1))
b0 = len(em.out)
body()
b1 = len(em.out)
e(scmp("s_cmp_lg_u32", s_cnt, 0)); e(raw("s_cbranch_scc1 L_att_loop", rd=["scc"]))
b2 = len(em.out)
body()
second = em.out[b2:]; del em.out[b2:]
assert [i.text for i in second] == [i.text for i in em.out[b0:b1]], "loop not in steady state"
loop_probs = check_hazards(em.out[b1 - 40:b2] + second[:60], "loop-wrap")

em.label("L_tail")
v_ring2 = V(64, 32); v_B2 = V(96, 32)
XY = int(os.environ.get('XY', '0'))
NF1 = int(os.environ.get('NF1', '8'))
def hreg(kk, qb):
    if kk >= 8: kk -= 8
    return A((64 + 16 * kk if kk < 4 else 160 + 16 * (kk - 4)) + qb * 4, 4)
def Facc(u, qb):
    t = u * 4 + qb
    return A(128 + 4 * t if t < 8 else 224 + 4 * (t - 8), 4)
POS2 = [5, 0, 2, 3, 4, 1]
NB = int(os.environ.get("NB", "4"))
def pos2(m): return 6 + m if m < NB else POS2[(m - NB) % 6]
def kind2(m):
    if m < NF1: return ("F", m)
    if m < NF1 + 32: return ("O", (m - NF1) & 15, (m - NF1) >> 4) if XY else ("O", (m - NF1) >> 1, (m - NF1) & 1)
    return ("F", m - 32)
def s2_dma(m):
    if m >= 46: return None
    p = pos2(m); k = kind2(m)
    if k[0] == "O":
        return [m0set(p), salu("s_mov_b32", s_off, k[1] * 32 * 1024 + 128 * k[2], scc_w=False)], [dma(v_dA[j], S_WO, s_off, j * 1024) for j in range(4)]
    return [m0set(p), salu("s_mov_b32", s_off, k[1] * 32 * 1024, scc_w=False)], [dma(v_dB[j], S_WD, s_off, j * 1024) for j in range(4)]
dtok2 = {}; s2pre = {}
for m in range(6 + NB):
    s2pre[m] = s2_dma(m); dtok2[m] = s2pre[m][1][3]
class Seq:
    kind = "vmem"
    def __init__(self, l): self.l = l
    def __call__(self): return self.l
hld = {}; htok = {}
for kk in range(14):
    hld[kk] = [bload(hreg(kk, qb), v_lin, S_HC, s_hl, off=qb * 1024, mod="sc1") for qb in range(4)]
    htok[kk] = hld[kk][3]
e(salu("s_mov_b32", s_cnt, 0, scc_w=False))
em.label("L_pollH")
e(valu("v_cmp_ne_u32", "vcc", 1, v_flag)); e(salu("s_mul_i32", s_hb, s_w, 14 * 4096, scc_w=False)); e(nop(1))
e(raw("s_cbranch_vccz L_pollH_done", rd=["vcc"]))
e(salu("s_add_u32", s_cnt, s_cnt, 1)); e(scmp("s_cmp_ge_u32", s_cnt, 50000)); e(raw("s_cbranch_scc1 L_pollH_done", rd=["scc"]))
e(raw("s_sleep 4")); e(raw("buffer_load_ubyte %s, %s, %s, %s offen sc1" % (v_flag, v_fa, S_DBG, s_fo))); e(raw("s_waitcnt vmcnt(0)")); e(raw("s_branch L_pollH"))
em.label("L_pollH_done")
NH0 = 32
hsl = sorted([(pp, g) for pp in range(3) for g in (5, 13, 14, 15, 16, 17, 18, 27, 28, 9, 11)])[:NH0]
px = {}
for k, key in enumerate(hsl):
    px.setdefault(key, ([], []))
    px[key][0].append(hld[k >> 2][k & 3])
    if k & 3 == 0: px[key][1].append(salu("s_add_u32", s_hl, s_hb, (k >> 2) * 4096))
wsl = [(pp, g) for pp in range(2) for g in (6, 7, 8, 10, 12, 21, 22, 23)][:4 * NB] + [(2, 29), (2, 30), (2, 31), (3, 0), (3, 1), (3, 2), (3, 3), (3, 4)] + [(3, g) for g in range(5, 13)] + [(3, g) for g in range(24, 32)]
for k, key in enumerate(wsl):
    px.setdefault(key, ([], []))
    m, j = k >> 2, k & 3
    px[key][0].append(s2pre[m][1][j])
    if j == 0: px[key][1].extend(s2pre[m][0])
px[(3, 24)][1][:0] = [Wait(lg0=True), raw("s_barrier")]
lt = [V(48 + i) for i in range(4)]
rinv = [V(52 + i) for i in range(4)]
vxf = V(40, 8)
save = em.out; em.out = []
if LSUM:
    for qb in range(4): e(valu("v_accvgpr_read_b32", v_l1[qb], a_L[4 * qb]))
    if LSUM == 2: red4("v_add_f32", [v_l1[i] for i in range(4)], lt)
else:
    for qb in range(4): e(valu("v_add_f32", v_l1[qb], v_l1[qb], v_l0[qb]))
    red4("v_add_f32", [v_l1[i] for i in range(4)], lt)
e(valu("v_add_f32", lt[1], v_l1[0], v_l1[1])); e(valu("v_add_f32", lt[2], v_l1[2], v_l1[3])); e(valu("v_add_f32", lt[1], lt[1], lt[2]))
for qb in range(4): e(valu("v_rcp_f32", rinv[qb], v_l1[qb]))
e(valu("v_cmp_nge_f32", "vcc", hx(f2u(2.0 ** 30)), lt[1]))
for k in range(8): e(valu("v_accvgpr_read_b32", vxf[k], a_x[k]))
v_tr2 = V(56, 4); v_ow = V(62)
for u in range(4): e(valu("v_subrev_u32", v_tr2[u], RING, v_tr[0][u]))
e(valu("v_subrev_u32", v_ow, RING, v_lin)); e(valu("v_add_u32", v_ow, s_m0b, v_ow))
lred = em.out; em.out = save
for pp in range(4):
    for g in range(32):
        if STAMP == 4 and g in (0, 16): stamp()
        xm, xs = px.get((pp, g), ([], []))
        att_group(pp & 1, g, pp=pp, xmem=xm, xsal=xs, xvalu=(lred if (pp == 3 and g >= (30 if LSUM else 24)) else None))
for it in lred: e(it)
diag(); stamp()
if DUMP == "o":
    e(nop(7))
    for db in range(8):
        for qb in range(4):
            for k in range(4): e(valu("v_mul_f32", Of(db, qb)[k], Of(db, qb)[k], rinv[qb]))
    dump_regs([v_acc[i] for i in range(128)])

vm_ = V(60); vma = V(61)
class Mark:
    kind = "salu"
    def __init__(self, t): self.t = t
    def __call__(self):
        e(raw("s_cbranch_vccz L_nomark", rd=["vcc"])); e(valu("v_mov_b32", self.t, hx(MARK))); em.label("L_nomark"); return []
norm = [valu("v_and_b32", vma, 3, v_lane), valu("v_lshlrev_b32", vma, 12, vma)]
ow = []; ncv = []
for i in range(4):
    for qb in range(4):
        t = Of(2 * i, qb)
        for b in range(2):
            for k in range(4): norm.append(valu("v_mul_f32", Of(2 * i + b, qb)[k], Of(2 * i + b, qb)[k], rinv[qb]))
        for b in range(2):
            o = Of(2 * i + b, qb)
            for k in range(2): norm.append(valu("v_cvt_pk_bf16_f32", t[2 * b + k], o[2 * k], o[2 * k + 1]))
        ncv.append(norm[-1])
        if i == 0 and qb == 0: norm.append(Mark(t[0]))
        ow.append(dswrite("ds_write_b128", v_ow, t, i * 16384 + qb * 1024))
        if NB == 0: norm.append(ow[-1])
class ChkNorm:
    def __init__(self, k): self.k = k
    def __call__(self):
        assert ncv[self.k].tok, "O write %d scheduled before its data" % self.k
        return ow[self.k]
G0 = 4 * NF1
G1 = G0 + 128
mk = dsread("ds_read_b32", vm_, vma, 0)
class OBar:
    def __call__(self):
        assert all(w.tok for w in ow)
        em.wait(lg0=True); e(raw("s_barrier")); stamp(); e(mk); return []
class FbCheck:
    def __call__(self):
        em.wait(lg=mk)
        e(valu("v_cmp_eq_u32", "vcc", hx(MARK), vm_))
        e(scmp("s_cmp_lg_u32", s_retry, 0)); e(raw("s_cbranch_scc1 L_nofb", rd=["scc"]))
        e(nop(1))
        e(raw("s_cbranch_vccnz L_fallback", rd=["vcc"]))
        em.label("L_nofb")
        return []
def s2_acc(m, u, qb):
    k = kind2(m)
    if k[0] == "O": return v_acc[(((k[2] * 4 + u) * 4 + qb) * 4, 4)], k[1] == 0
    return Facc(u, qb), k[1] == 0
def s2_B(m, qb):
    k = kind2(m)
    if k[0] == "O": return v_B2[((k[1] & 1) * 16 + qb * 4, 4)]
    return hreg(k[1], qb)
def oread(s, qb): return dsread("ds_read_b128", v_B2[((s & 1) * 16 + qb * 4, 4)], v_lin, (s & 3) * 16384 + (s >> 2) * 4096 + qb * 1024)
extra = {}
if NB:
    OW0 = int(os.environ.get("OW0", "11")); OWN = int(os.environ.get("OWN", "1"))
    for k in range(16):
        gg = OW0 + k // OWN
        assert (k >> 2) >= NB or gg > 4 * (k >> 2) + 3
        extra.setdefault(gg, []).append((2 + (k % OWN) % 2, ChkNorm(k), 1))
GB = G0 - int(os.environ.get("OBAR", "3"))
extra.setdefault(GB, []).append((0, OBar(), 0))
r0 = [oread(0, qb) for qb in range(4)]
for qb in range(4): extra.setdefault(GB + (qb >> 1), []).append((1 + (qb & 1) if qb < 2 else (qb & 1) * 2, r0[qb], 1))
extra.setdefault(G0 - 1, []).append((2, [Wait(lg=r0), FbCheck()], 0))
if XY:
    for mm in range(1, 32):
        rr = [oread(mm & 15, qb) for qb in range(4)]
        for qb in range(4): extra.setdefault(G0 + 4 * (mm - 1) + (qb >> 1), []).append((2 + (qb & 1), rr[qb], 1))
        extra.setdefault(G0 + 4 * mm - 1, []).append((2, Wait(lg=rr), 0))
else:
    for s_ in range(1, 16):
        for qb in range(4): extra.setdefault(G0 + 8 * (s_ - 1) + 1 + qb, []).append((2, oread(s_, qb), 1))
class LateWait:
    def __init__(self, f): self.f = f
    def __call__(self): return Wait(vm=self.f())
vxa = V(48); vpoll = V(49); vfw = V(50)
vx, vy, vz = V(63), V(57), V(58)
save = em.out; em.out = []
xaddr(vxa, vx)
e(valu("v_and_b32", V(51), 7, v_lane)); e(valu("v_lshlrev_b32", V(51), 2, V(51)))
e(valu("v_add_u32", vfw, s_m0b, v_lin)); e(salu("s_lshl_b32", s_t0, s_w, 14)); e(salu("s_add_u32", s_t0, s_t0, RING)); e(valu("v_add_u32", V(55), s_t0, v_lin))
e(salu("s_lshl_b32", s_t3, s_w, 4)); e(salu("s_add_u32", s_t3, s_t3, s_g)); e(salu("s_lshl_b32", s_t3, s_t3, 13))
early = em.out; em.out = save
extra.setdefault(-1, []).append((0, LateWait(lambda: htok[0]), 0))
for kk in range(1, 14):
    g_ = 4 * kk if kk < NF1 else 4 * (kk + 32)
    extra.setdefault(g_ - 1, []).append((2, LateWait(lambda kk=kk: htok[kk]), 0))
HG0 = int(os.environ.get("HG0", "5")); HGS = int(os.environ.get("HGS", "1"))
for k in range(NH0, 56):
    prev = (k >> 2) - 8
    gfree = (4 * prev if prev < NF1 else 4 * (prev + 32)) + 5 + (k & 3)
    extra.setdefault(max(gfree, HG0 + HGS * (k - NH0)), []).append((2, Seq([salu("s_add_u32", s_hl, s_hb, (k >> 2) * 4096), hld[k >> 2][k & 3]]), 1))
def sreg(ip, qb, odd=0): return v_acc[(((2 * ip + odd) * 4 + qb) * 4, 4)]
sp = []; spst = []; stq = []
s_oob = S(19)
if os.environ.get("NOST") or os.environ.get("NOLD"): e(salu("s_mov_b32", s_oob, 524288, scc_w=False))
NSI = int(os.environ.get("NSI", "11"))
s_so = [s_t1, s_cnt, s_h0, s_h1]
for k in range(4): sp.append(salu("s_add_u32", s_so[k], s_t3, (k >> 1) * 65536 + (k & 1) * 4096))
for ip in range(4):
    for qb in range(4):
        t = sreg(ip, qb)
        for b in range(2):
            o = sreg(ip, qb, b)
            for k in range(2): sp.append(valu("v_cvt_pk_bf16_f32", t[2 * b + k], o[2 * k], o[2 * k + 1]))
        st = bstore(t, v_lin, S_SP, s_so[(ip >> 1) * 2 + (qb >> 1)], off=(qb & 1) * 2048 + (ip & 1) * 1024, mod="sc1")
        if os.environ.get("NOST") and not (ip == 3 and qb == 3): st = bstore(t, v_lin, S_SP, s_oob, off=0)
        spst.append((st, sp[-1]))
class St:
    def __init__(self, k): self.k = k
    def __call__(self):
        assert spst[self.k][1].tok
        return spst[self.k][0]
STG = int(os.environ.get("STG", "2"))
if XY:
    GY = G0 + 64
    XS0 = int(os.environ.get("XS0", "4")); XSG = int(os.environ.get("XSG", "5")); XFL = int(os.environ.get("XFL", "60"))
    for k in range(8): extra.setdefault(GY + XS0 + XSG * k, []).append((1, St(k), 1))
    class XFlag:
        def __call__(self): em.wait(vm=spst[7][0]); return flag_store(0)
    extra.setdefault(GY + XFL, []).append((1, XFlag(), 1))
    NSI = int(os.environ.get("NSI", "16"))
    for k in range(8, NSI): extra.setdefault(G1 + 3 + STG * (k - 8), []).append((2, St(k), 1))
    hx_ = sp.index(spst[7][1]) + 1
    spf = [Fill(sp[:hx_], GY + 2, GY + 14), Fill(sp[hx_:], G1 + 2, G1 + 10)]
else:
    for k in range(NSI): extra.setdefault(G1 + 3 + STG * k, []).append((2, St(k), 1))
    spf = [Fill(sp, G1 + 2, G1 + int(os.environ.get("CVL", "16")))]
FLG = int(os.environ.get("FLG", "0"))
if FLG:
    assert NSI == 16
    class YFlag:
        def __call__(self):
            em.wait(vm=spst[-1][0]); stamp()
            return ([] if XY else flag_store(0)) + flag_store(1)
    extra.setdefault(G1 + FLG, []).append((1, YFlag(), 1))
sti = [NSI]
def st_next(n=1):
    for _ in range(n):
        if sti[0] < 16: e(spst[sti[0]][0]); sti[0] += 1
def flag_store(h):
    return [valu("v_mov_b32", v_t, 1), raw("s_mov_b64 exec, 1", "salu", wr=["exec"]), bstore(v_t, None, S_FL, s_myfl, off=128 * h, mod="sc1"), raw("s_mov_b64 exec, -1", "salu", wr=["exec"])]
vpa = V(51)
s_done, s_new, s_sb = s_kK, s_kV, s_fo
def spl(gp, i): return A((gp * 2 + i) * 4, 4)
def flag_load(): return bload(vpoll, vpa, S_FL, s_t2, n=1, mod="sc1")
lblc = [0]
def issue_new():
    k = lblc[0]; lblc[0] += 1
    e(valu("v_cmp_eq_u32", "vcc", 1, vpoll)); e(nop(1))
    e(raw("s_andn2_b32 %s, vcc_lo, %s" % (s_new, s_done), "salu", rd=["vcc", s_done], wr=[s_new, "scc"])); e(salu("s_and_b32", s_new, s_new, 255))
    e(raw("s_cbranch_scc0 L_in%d_end" % k, rd=["scc"]))
    e(salu("s_or_b32", s_done, s_done, s_new))
    for gp in range(8):
        e(scmp("s_bitcmp1_b32", s_new, gp)); e(raw("s_cbranch_scc0 L_in%d_%d" % (k, gp), rd=["scc"]))
        e(salu("s_add_u32", s_t0, s_sb, gp * 8192) if not os.environ.get("NOLD") else salu("s_mov_b32", s_t0, s_oob, scc_w=False))
        for i in range(2): e(raw(bload(spl(gp, i), v_lin, S_SPC, s_t0, off=i * 1024, mod="sc1").text))
        em.label("L_in%d_%d" % (k, gp))
    em.label("L_in%d_end" % k)
pinit = [salu("s_lshl_b32", s_t2, s_cq, 3), salu("s_add_u32", s_t2, s_t2, s_cg), salu("s_lshl_b32", s_t2, s_t2, 7), salu("s_mov_b32", s_done, 0, scc_w=False),
         salu("s_lshl_b32", s_sb, s_cg, 16), salu("s_lshl_b32", s_new, s_w, 11), salu("s_add_u32", s_sb, s_sb, s_new)]
extra.setdefault(G1 - 8, []).append((1, pinit, 0))
class MidPoll:
    def __init__(self, tok): self.tok = tok
    def __call__(self):
        em.wait(vm=self.tok); issue_new()
        e(salu("s_mov_b32", s_hb, s_done, scc_w=False))
        midmark.append(em.vm_total)
        return []
midmark = []
if int(os.environ.get("MID", "1")):
    pt = flag_load()
    MIDPOST = int(os.environ.get("MIDPOST", "2"))
    if MIDPOST == 4: extra.setdefault(184 - int(os.environ.get("MID4", "6")), []).append((2, pt, 1))
    else: extra.setdefault(G1 - int(os.environ.get("MID0", "4")), []).append((2, pt, 1))
    if not MIDPOST: extra.setdefault(G1 + int(os.environ.get("MID1", "3")), []).append((0, MidPoll(pt), 0))
    elif MIDPOST != 4: extra.setdefault(G1 + 2, []).append((0, Wait(vm=pt), 0))
    if MIDPOST == 3:
        extra[G1 + 2].pop(); extra[G1 - int(os.environ.get("MID0", "4"))].pop()
if STAMP: extra.setdefault(G1, []).append((0, Stamp(), 0))
class Diag:
    def __call__(self): diag(); return []
if DIAG: extra.setdefault(G1, []).append((0, Diag(), 0))
vs = [Fill(norm, 0, GB - (3 if NB else 1)), Fill(early, G0 + 2, G0 + 40)] + spf
run_stream(46, s2_dma, dtok2, s2_acc, s2_B, extra, vs, posf=pos2, ring=v_ring2, first_dma=6 + NB, tr2=v_tr2, early_dma=int(os.environ.get('ED2', '0')))
stamp(); diag()
def static_loads():
    e(valu("v_cmp_eq_u32", "vcc", 1, vpoll)); e(nop(1))
    e(raw("s_and_b32 %s, vcc_lo, 255" % s_done, "salu", rd=["vcc"], wr=[s_done, "scc"]))
    for gp in range(8):
        e(salu("s_add_u32", s_t0, s_sb, gp * 8192)); e(scmp("s_bitcmp1_b32", s_done, gp)); e(salu("s_cselect_b32", s_t0, s_t0 if not os.environ.get("NOLD") else s_oob, 524288, scc_w=False, scc_r=True))
        for i in range(2): e(bload(spl(gp, i), v_lin, S_SPC, s_t0, off=i * 1024, mod="sc1"))
if MIDPOST == 4:
    em.wait(vm=pt); static_loads()
if MIDPOST == 3:
    st_next(16); fl3 = e(flag_load())
e(nop(5))
for qb in range(4):
    for u in range(4):
        if len(em.lgq) >= 12: em.wait(lg=em.lgq[-12])
        e(dswrite("ds_write_b128", vfw, Facc(u, qb), qb * 16384 + u * 1024))
    if qb & 1: st_next(int(os.environ.get("STW", "1")))
v_fr = V(96, 16); vE = V(64, 16); vs_ = V(80, 16)
for k in range(8): e(valu("v_mov_b64", vs_[(2 * k, 2)], 0))
if MIDPOST == 3:
    em.wait(vm=fl3); stamp()
    if not XY: e(flag_store(0))
    e(flag_store(1))
    static_loads()
em.wait(lg0=True)
e(raw("s_barrier"))
def frr(ws_, u): return sreg(ws_, u, 1)
for ws_ in range(4):
    for u in range(4):
        if len(em.lgq) >= 14: em.wait(lg=em.lgq[-14])
        e(dsread("ds_read_b128", frr(ws_, u), V(55), ws_ * 4096 + u * 1024))
st_next()
if MIDPOST:
    st_next(16)
    if MIDPOST == 1: static_loads()
em.wait(lg0=True)
for u in range(4):
    for k in range(2):
        e(valu("v_pk_add_f32", frr(0, u)[(2 * k, 2)], frr(0, u)[(2 * k, 2)], frr(1, u)[(2 * k, 2)]))
        e(valu("v_pk_add_f32", frr(2, u)[(2 * k, 2)], frr(2, u)[(2 * k, 2)], frr(3, u)[(2 * k, 2)]))
for u in range(4):
    for k in range(2): e(valu("v_pk_add_f32", v_fr[(4 * u + 2 * k, 2)], frr(0, u)[(2 * k, 2)], frr(2, u)[(2 * k, 2)]))
for k in range(16): e(valu("v_mul_f32", vE[k], hx(f2u(-math.log2(math.e))), v_fr[k]))
st_next()
for k in range(16): e(valu("v_exp_f32", vE[k], vE[k]))
for k in range(16): e(valu("v_add_f32", vE[k], "1.0", vE[k]))
st_next()
for k in range(16): e(valu("v_rcp_f32", vE[k], vE[k]))
for k in range(16): e(valu("v_mul_f32", v_fr[k], v_fr[k], vE[k]))
for k in range(8):
    e(valu("v_lshlrev_b32", vE[2 * k], 16, vxf[k])); e(valu("v_and_b32", vE[2 * k + 1], "0xffff0000", vxf[k]))
st_next()
stamp()
accn = [0]
def acc_pieces(mask, sprinkle=False):
    n = accn[0]; accn[0] += 1
    for gp in range(8):
        e(scmp("s_bitcmp1_b32", mask, gp)); e(raw("s_cbranch_scc0 L_acc%d_%d" % (n, gp), rd=["scc"]))
        for k2 in range(8): e(valu("v_accvgpr_read_b32", V(120 + k2), spl(gp, k2 >> 2)[k2 & 3]))
        for k in range(8):
            e(valu("v_lshlrev_b32", V(112 + 2 * (k & 3)), 16, V(120 + k))); e(valu("v_and_b32", V(113 + 2 * (k & 3)), "0xffff0000", V(120 + k)))
            e(valu("v_pk_add_f32", vs_[(2 * k, 2)], vs_[(2 * k, 2)], V(112 + 2 * (k & 3), 2)))
        em.label("L_acc%d_%d" % (n, gp))
        if sprinkle and gp & 1: st_next()
if midmark:
    n_y = em.vm_total - midmark[0]
    e(raw("s_waitcnt vmcnt(%d)" % n_y, "wait")); em._retire(em.vmq, n_y)
    acc_pieces(s_hb, sprinkle=True)
st_next(16)
if MIDPOST != 2: e(flag_load())
if MIDPOST != 3 and not FLG:
    em.wait(vm=spst[-1][0]); stamp()
    if not XY: e(flag_store(0))
    e(flag_store(1))
if MIDPOST == 2: static_loads(); e(flag_load())
s_prev = s_hl
e(salu("s_mov_b32", s_prev, s_done if MIDPOST else 0, scc_w=False)); e(salu("s_mov_b32", s_cnt, 0, scc_w=False))
em.label("L_fin_loop")
em.wait(vm0=True)
issue_new()
e(raw(flag_load().text))
acc_pieces(s_prev)
e(salu("s_mov_b32", s_prev, s_new, scc_w=False))
e(salu("s_add_u32", s_cnt, s_cnt, 1)); e(scmp("s_cmp_ge_u32", s_cnt, 50000)); e(raw("s_cbranch_scc1 L_fin_done", rd=["scc"]))
e(scmp("s_cmp_lg_u32", s_prev, 0)); e(raw("s_cbranch_scc1 L_fin_loop", rd=["scc"]))
e(scmp("s_cmp_lg_u32", s_done, 255)); e(raw("s_cbranch_scc1 L_fin_loop", rd=["scc"]))
em.label("L_fin_done")
if DUMP == "fin": dump_regs([vs_[i] for i in range(16)] + [v_fr[i] for i in range(16)])
for k in range(8): e(valu("v_pk_fma_f32", vE[(2 * k, 2)], vs_[(2 * k, 2)], v_fr[(2 * k, 2)], vE[(2 * k, 2)]))
for k in range(8): e(valu("v_cvt_pk_bf16_f32", vxf[k], vE[2 * k], vE[2 * k + 1]))
for u in range(4): e(bstore(vxf[(2 * u, 2)], vxa, S_OUT, 0, off=32 * u))
stamp(); diag_out()
em.label("L_end")
e(raw("s_endpgm"))
main_end = len(em.out)

em.lgq, em.vmq, em.pend = [], [], {}
em.label("L_sigH_side")
e(salu("s_lshl_b32", s_t1, s_qb, 3)); e(salu("s_add_u32", s_t1, s_t1, s_g))
e(raw("s_mov_b64 exec, 2", "salu", wr=["exec"]))
e(raw("buffer_store_byte %s, off, %s, %s sc1" % (v_fa, S_DBG, s_t1)))
e(raw("s_mov_b64 exec, -1", "salu", wr=["exec"]))
e(raw("s_branch L_sigH_ret"))
em.label("L_fallback")
e(raw("s_waitcnt vmcnt(0) lgkmcnt(0)")); em._retire(em.vmq, 0); em._retire(em.lgq, 0)
for k in range(8): e(valu("v_accvgpr_write_b32", a_x[k], V(40 + k)))
e(salu("s_mov_b32", s_retry, 1, scc_w=False))
e(salu("s_mov_b32", S_H[2], 0, scc_w=False))
e(salu("s_mov_b32", s_kK, 0, scc_w=False))
fm = [V(40 + i) for i in range(4)]
for i in range(4): e(valu("v_mov_b32", fm[i], "0xff800000"))
em.label("L_fb_loop")
e(raw("s_barrier"))
e(salu("s_add_u32", "m0", s_m0b, 4 * 16384)); e(nop(0))
for j in range(4): e(dma(v_kd[j], S_K, s_kK, j * 1024))
em.wait(vm0=True)
e(raw("s_barrier"))
for kb in range(4):
    rr = [e(dsread("ds_read_b128", fr(ds), v_ka[ds], kb * 4096)) for ds in range(4)]
    em.wait(lg0=True)
    for ds in range(4):
        for qb in range(4):
            d = v_S[0][(qb * 4, 4)]
            e(mfma(d, fr(ds), Qf(qb, ds), 0 if ds == 0 else d))
    e(nop(7))
    for qb in range(4):
        e(valu("v_max3_f32", fm[qb], fm[qb], v_S[0][qb * 4], v_S[0][qb * 4 + 1])); e(valu("v_max3_f32", fm[qb], fm[qb], v_S[0][qb * 4 + 2], v_S[0][qb * 4 + 3]))
    e(nop(2))
e(salu("s_add_u32", s_kK, s_kK, 16384)); e(scmp("s_cmp_lt_u32", s_kK, 524288)); e(raw("s_cbranch_scc1 L_fb_loop", rd=["scc"]))
red4("v_max_f32", fm, [V(44 + i) for i in range(4)])
for qb in range(4):
    for k in range(4): e(valu("v_sub_f32", v_negm[qb * 4 + k], 0, fm[qb]))
e(raw("s_barrier"))
for m in (64, 65, 66):
    sa, dm = s1_dma(m); e(sa)
    for d in dm: e(d)
e(raw("s_waitcnt vmcnt(0)"))
e(raw("s_branch L_att_start"))
em.label("L_code_end")
e(raw("s_endpgm"))

probs = check_hazards(em.out, "main") + loop_probs
for p in probs: print("; HAZARD", p, file=sys.stderr)
assert not probs

hdr = open(os.path.join(os.path.dirname(os.path.abspath(__file__)), "header.txt")).read()
print(hdr.rstrip())
print("; @launch grid=(256,1,1) block=(256,1,1) lds=163840")
print('.amdgcn_target "amdgcn-amd-amdhsa--gfx950"\n.text\n.globl %s\n.p2align 8\n.type %s,@function\n%s:' % (KN, KN, KN))
print(em.text())
print('.section .rodata,"a"\n.p2align 6\n.amdhsa_kernel %s' % KN)
print("  .amdhsa_next_free_vgpr 512\n  .amdhsa_next_free_sgpr 102\n  .amdhsa_accum_offset 256\n  .amdhsa_group_segment_fixed_size 0\n  .amdhsa_kernarg_size 96\n  .amdhsa_user_sgpr_count 2\n  .amdhsa_user_sgpr_kernarg_segment_ptr 1\n  .amdhsa_system_sgpr_workgroup_id_x 1\n.end_amdhsa_kernel")
```

```python
import sys, os, math, struct
from asmgen import *

KN = "recurrent_scan__gqa_block_cached__geglu_ffn__prompt_kernel"
DUMP = os.environ.get("DUMP", "")
STAMP = int(os.environ.get("STAMP", "0"))
GEL_END = int(os.environ.get("GEL_END", "247")); GEL_EXTRA = int(os.environ.get("GEL_EXTRA", "360"))

def f2u(x): return struct.unpack("<I", struct.pack("<f", x))[0]
def hx(x): return "0x%x" % (x & 0xffffffff)

S_X, S_K, S_V, S_WQ, S_WO, S_WG, S_WU, S_WD, S_OUT, S_DBG, S_H, S_SP = [S(4 + 4 * i, 4) for i in range(12)]
s_g, s_qb, s_w = S(52), S(53), S(54)
s_t0, s_t1, s_t2, s_t3 = S(55), S(56), S(57), S(58)
s_m0b = S(59)
s_off = S(60)
s_cnt = S(61)
s_kK, s_kV = S(62), S(63)
s_retry = S(64)
s_h0, s_h1 = S(65), S(66)
s_hl = S(67); s_hb = S(78); s_myfl = S(79); s_wdd = S(67); s_sig = S(78)
s_ka = S(68, 16); s_kb = S(84, 8)
s_pair = S(92, 2); s_pair2 = S(94, 2)
S_DMP = S(96, 4)
s_cq, s_cg = S(76), S(77)
S_HC = S(80, 4)
S_SPC = S(84, 4)
S_XC = S(88, 4)
s_st = S(68, 4)

v_tid, v_lane, v_lin, v_t = V(0), V(1), V(2), V(3)
v_tr = [V(4, 4), V(8, 4)]
v_dA, v_dB = V(12, 4), V(16, 4)
v_ka = V(20, 4); v_va = V(24, 8); v_kd = V(32, 4); v_vd = V(36, 2)
v_wl = V(38)
v_c = V(39)
v_l0, v_l1 = V(40, 4), V(44, 4)
v_lsave = V(16, 4)
v_negm = V(48, 16)
v_S = [V(64, 32), V(96, 32)]
v_acc = V(128, 128)
a_ring = A(128, 32)
a_B = A(160, 32)
a_Q = A(0, 64)
a_F = A(0, 64)
a_x = A(248, 8)
LSUM = int(os.environ.get('LSUM', '1'))
a_L = A(224, 16); a_ones = A(240, 4)

RING = 65536
MARK = 0x7fc17fc1
WS_SP = 8 << 20
WS_DUMP = 32 << 20
WS_FL = (7 << 20) + (512 << 10)
S_FL = S(4, 4)

em = Em()
e = em.e

def srd(dst, lo, hi, size, off_s=None):
    if off_s is None:
        e(salu("s_mov_b32", dst[0], lo, scc_w=False)); e(salu("s_mov_b32", dst[1], hi, scc_w=False))
    else:
        e(salu("s_add_u32", dst[0], lo, off_s)); e(salu("s_addc_u32", dst[1], hi, 0, scc_r=True))
    e(salu("s_mov_b32", dst[2], hx(size), scc_w=False)); e(salu("s_mov_b32", dst[3], "0x20000", scc_w=False))

DIAG = int(os.environ.get("DIAG", "0"))
HC_OFF = 128
diag_regs = [S(100, 2), S(70, 2), S(72, 2), S(74, 2), S(96, 2), S(98, 2), S(68, 2)] if DIAG != 2 else [S(100, 2), S(96, 2), S(98, 2), S(94, 2), S(70, 2), S(72, 2), S(74, 2), S(68, 2)]
diag_n = [0]
def diag(which=1, last=False):
    if not DIAG or (which != DIAG and which != 0): return
    k = diag_n[0]; diag_n[0] += 1
    e(raw("%s %s" % ("s_memtime" if (os.environ.get("CYC") and not last) else "s_memrealtime", diag_regs[k]), "other", wr=[diag_regs[k]]))
    if k > 0: e(raw("s_waitcnt lgkmcnt(0)", "wait")); em._retire(em.lgq, 0)
AMP = os.environ.get("AMP")
def diag_out():
    if not DIAG: return
    diag(0, last=True)
    if AMP:
        k = int(AMP); last = diag_regs[diag_n[0] - 1]
        e(salu("s_sub_u32", s_t0, diag_regs[k][0], diag_regs[int(os.environ.get("AMP0", "0"))][0]))
        if os.environ.get("CYC"): e(salu("s_lshr_b32", s_t0, s_t0, 2))
        else: e(salu("s_lshl_b32", s_t0, s_t0, 2))
        em.label("L_amp")
        e(raw("s_memrealtime s[56:57]")); e(raw("s_waitcnt lgkmcnt(0)"))
        e(salu("s_sub_u32", s_t1, s_t1, last[0])); e(scmp("s_cmp_lt_u32", s_t1, s_t0)); e(raw("s_cbranch_scc1 L_amp", rd=["scc"]))
        return
    e(scmp("s_cmp_lg_u32", s_w, 0)); e(raw("s_cbranch_scc1 L_end", rd=["scc"]))
    e(raw("s_mov_b64 exec, 1", "salu", wr=["exec"]))
    e(salu("s_not_b32", s_t0, diag_regs[0][0]))
    for k in range(diag_n[0]):
        e(valu("v_mov_b32", V(4 + k), s_t0 if k == 0 else diag_regs[k][0]))
        e(raw("buffer_atomic_umax %s, off, %s, 0 offset:%d sc1" % (V(4 + k), S_DBG, 4 * k)))
    e(valu("v_mov_b32", V(12), diag_regs[0][0]))
    e(raw("buffer_atomic_umax %s, off, %s, 0 offset:%d sc1" % (V(12), S_DBG, 4 * 9)))
stamp_n = [0]
def stamp():
    if not STAMP: return
    k = stamp_n[0]; stamp_n[0] += 1
    e(raw("s_memtime %s" % S(68, 2), "other", wr=[S(68, 2)]))
    e(raw("s_memrealtime %s" % S(70, 2), "other", wr=[S(70, 2)]))
    e(raw("s_waitcnt lgkmcnt(0)", "wait")); em._retire(em.lgq, 0)
    for i in range(4): e(valu("v_writelane_b32", v_c, S(68 + i), i, rmw=True))
    e(salu("s_lshl_b32", S(72), S(2), 2)); e(salu("s_add_u32", S(72), S(72), s_w)); e(salu("s_lshl_b32", S(72), S(72), 9))
    e(salu("s_mov_b64", S(74, 2), "exec", scc_w=False)); e(raw("s_mov_b64 exec, 15", "salu", wr=["exec"]))
    e(valu("v_lshlrev_b32", v_t, 2, v_lane))
    e(bstore(v_c, v_t, S_DMP, S(72), off=k * 16))
    e(raw("s_mov_b64 exec, %s" % S(74, 2), "salu", wr=["exec"]))
    e(valu("v_lshlrev_b32", v_t, 7, v_lane))

def dump_regs(regs, finish=True):
    em.wait(lg0=True, vm0=True)
    e(nop(7)); e(nop(7))
    n = len(regs)
    e(salu("s_lshl_b32", s_t0, S(2), 2)); e(salu("s_add_u32", s_t0, s_t0, s_w)); e(salu("s_mul_i32", s_t0, s_t0, n * 256, scc_w=False))
    e(valu("v_lshlrev_b32", v_t, 2, v_lane))
    for k, r in enumerate(regs):
        e(bstore(r, v_t, S_DMP, s_t0, off=0))
        e(salu("s_add_u32", s_t0, s_t0, 256))
        if k % 32 == 31: em.wait(vm0=True)
    em.wait(vm0=True)
    if finish: e(raw("s_endpgm"))

def red4(op, x, tmp):
    for sw in ("v_permlane32_swap_b32", "v_permlane16_swap_b32"):
        for a, t in zip(x, tmp): e(valu("v_mov_b32", t, a))
        if len(x) < 3: e(nop(1))
        for a, t in zip(x, tmp): e(valu(sw, a, t))
        for a, t in zip(x, tmp): e(valu(op, a, a, t))

e(scmp("s_cmp_ge_u32", S(2), 256)); e(raw("s_cbranch_scc1 L_end", rd=["scc"]))
diag(0)
i0 = e(I("s_load_dwordx16 %s, s[0:1], 0" % s_ka, "smem", wr=s_ka.regs()))
i1 = e(I("s_load_dwordx8 %s, s[0:1], 64" % s_kb, "smem", wr=s_kb.regs()))
vq, vG, vr, vc_, vx, vy, vz = [V(40 + i) for i in range(7)]
e(raw("s_getpc_b64 %s" % s_pair2, "salu", wr=[s_pair2]))
em.label("L_pc0")
CT0 = int(os.environ.get("CT0", "64"))
if CT0:
    e(valu("v_sub_u32", V(55), 255, v_tid)); e(valu("v_cmp_gt_u32", "vcc", CT0, V(55))); e(valu("v_lshlrev_b32", V(55), 7, V(55))); e(nop(0))
    e(raw("s_and_saveexec_b64 s[4:5], vcc", "salu", wr=["exec"], rd=["vcc"])); e(raw("s_cbranch_execz L_ct0"))
    e(raw("global_load_dword v55, v55, %s" % s_pair2))
    em.label("L_ct0")
    e(raw("s_mov_b64 exec, -1", "salu", wr=["exec"]))
MAP2 = int(os.environ.get("MAP2", "0"))
s_i = S(65)
if MAP2:
    e(salu("s_and_b32", s_g, S(2), 3)); e(salu("s_lshl_b32", s_g, s_g, 1)); e(salu("s_bfe_u32", s_t0, S(2), "0x10003")); e(salu("s_add_u32", s_g, s_g, s_t0))
    e(salu("s_bfe_u32", s_qb, S(2), "0x10002")); e(salu("s_lshl_b32", s_qb, s_qb, 4)); e(salu("s_lshr_b32", s_t0, S(2), 4)); e(salu("s_add_u32", s_qb, s_qb, s_t0))
else:
    e(salu("s_and_b32", s_g, S(2), 7)); e(salu("s_lshr_b32", s_qb, S(2), 3))
def sx(dst): return salu("s_lshr_b32", dst, S(2), 4 if MAP2 else 3)
TL = "-1" if MAP2 else "0xffffffff"
e(valu("v_and_b32", v_lane, 63, v_tid))
e(valu("v_lshrrev_b32", v_t, 6, v_tid))
e(valu("v_lshlrev_b32", v_lin, 4, v_lane))
e(valu("v_readfirstlane_b32", s_w, v_t))
e(valu("v_and_b32", vq, 15, v_lane)); e(valu("v_lshrrev_b32", vG, 4, v_lane))
vxo = V(47)
e(valu("v_lshl_add_u32", vxo, v_t, 4, vq)); e(valu("v_lshlrev_b32", vxo, 10, vxo)); e(valu("v_lshl_add_u32", vxo, vG, 4, vxo))
vwg, vwq, vcw = V(52), V(53), V(54)
e(salu("s_mul_i32", s_t1, s_g, 448, scc_w=False)); e(salu("s_and_b32", s_t1, s_t1, hx(~127)))
e(salu("s_and_b32", s_t2, s_w, 1)); e(sx(s_t3)); e(salu("s_lshl_b32", s_t3, s_t3, 1)); e(salu("s_add_u32", s_t2, s_t2, s_t3))
e(salu("s_mul_i32", s_t2, s_t2, (16 if MAP2 else 8) * 3584, scc_w=False)); e(salu("s_add_u32", s_t1, s_t1, s_t2))
e(valu("v_lshrrev_b32", vx, 2, v_lane)); e(valu("v_mul_u32_u24", vx, 3584, vx)); e(valu("v_and_b32", vz, 3, v_lane)); e(valu("v_lshl_add_u32", vx, vz, 7, vx))
e(valu("v_add_u32", vwg, s_t1, vx))
e(salu("s_lshr_b32", s_t2, S(2), 3)); e(salu("s_lshl_b32", s_t2, s_t2, 2)); e(salu("s_add_u32", s_t2, s_t2, s_w)); e(salu("s_lshl_b32", s_t3, s_t2, 8))
e(valu("v_lshlrev_b32", vcw, 7, v_lane)); e(valu("v_add_u32", vcw, s_t3, vcw))
e(salu("s_lshl_b32", s_t0, s_qb, 16))
em.wait(lg0=True)
diag(2)
srd(S_X, s_ka[0], s_ka[1], 65536, s_t0)
v_xp = V(64, 64)
XFIRST = int(os.environ.get("XFIRST", "12"))
xl = [bload(v_xp[(4 * ks, 4)], vxo, S_X, 0, off=64 * ks) for ks in range(16)]
for ks in range(XFIRST): e(xl[ks])
e(scmp("s_cmp_lt_u32", s_w, 2)); e(salu("s_cselect_b64", s_pair, s_ka[(12, 2)], s_ka[(14, 2)], scc_w=False, scc_r=True))
e(raw("s_mov_b64 exec, " + TL, "salu", wr=["exec"]))
e(I("global_load_dword %s, %s, %s" % (V(48), vwg, s_pair), "vmem", rd=vwg.regs() + s_pair.regs(), wr=V(48).regs()))
e(raw("s_mov_b64 exec, 3", "salu", wr=["exec"]))
e(I("global_load_dword %s, %s, %s" % (V(49), vcw, s_pair2), "vmem", rd=vcw.regs() + s_pair2.regs(), wr=V(49).regs()))
e(raw("s_mov_b64 exec, -1", "salu", wr=["exec"]))
e(sx(s_t2)); e(salu("s_lshl_b32", s_t2, s_t2, 2)); e(salu("s_add_u32", s_t2, s_t2, s_w))
e(salu("s_lshl_b32", s_t2, s_t2, 16 if MAP2 else 15)); e(salu("s_lshl_b32", s_t3, s_g, 10)); e(salu("s_add_u32", s_t2, s_t2, s_t3))
e(valu("v_lshrrev_b32", vx, 3, v_lane)); e(valu("v_lshlrev_b32", vx, 13, vx)); e(valu("v_and_b32", vz, 7, v_lane)); e(valu("v_lshl_add_u32", vx, vz, 7, vx))
e(valu("v_add_u32", vwq, s_t2, vx))
e(salu("s_lshr_b32", s_t2, S(2), 6)); e(salu("s_and_b32", s_t3, S(2), 7)); e(salu("s_lshl_b32", s_t3, s_t3, 2)); e(salu("s_add_u32", s_t2, s_t2, s_t3))
e(salu("s_lshl_b32", s_t0, s_t2, 16))
srd(S_OUT, s_kb[2], s_kb[3], 65536, s_t0)
e(salu("s_lshl_b32", s_t1, s_g, 19))
srd(S_K, s_ka[2], s_ka[3], 524288, s_t1)
srd(S_V, s_ka[4], s_ka[5], 524288, s_t1)
srd(S_WO, s_ka[8], s_ka[9], 524288, s_t1)
srd(S_WQ, s_ka[6], s_ka[7], 4 << 20)
srd(S_WG, s_ka[12], s_ka[13], 1835008)
srd(S_WU, s_ka[14], s_ka[15], 1835008)
srd(S_WD, s_kb[0], s_kb[1], 1835008)
srd(S_DBG, s_kb[4], s_kb[5], 256)
e(salu("s_mul_i32", s_t1, s_qb, 229376, scc_w=False))
srd(S_H, s_kb[6], s_kb[7], 229376, s_t1)
e(salu("s_lshl_b32", s_t1, s_qb, 19)); e(salu("s_add_u32", s_t1, s_t1, hx(WS_SP)))
srd(S_SP, s_kb[6], s_kb[7], 524288, s_t1)
if DUMP or STAMP:
    e(salu("s_mov_b32", s_t1, hx(WS_DUMP), scc_w=False))
    srd(S_DMP, s_kb[6], s_kb[7], 200 << 20, s_t1)
e(salu("s_mov_b64", s_pair, S(90, 2), scc_w=False))
e(salu("s_lshl_b32", s_t0, s_t2, 16))
srd(S_XC, s_ka[0], s_ka[1], 65536, s_t0)
e(salu("s_mul_i32", s_t1, s_t2, 229376, scc_w=False))
srd(S_HC, s_pair[0], s_pair[1], 229376, s_t1)
e(salu("s_lshl_b32", s_t1, s_t2, 19)); e(salu("s_add_u32", s_t1, s_t1, hx(WS_SP)))
srd(S_SPC, s_pair[0], s_pair[1], 524288, s_t1)
e(salu("s_mov_b32", s_cq, s_t2, scc_w=False)); e(salu("s_bfe_u32", s_cg, S(2), "0x30003"))
e(salu("s_lshl_b32", s_myfl, s_qb, 2)); e(salu("s_add_u32", s_myfl, s_myfl, s_w)); e(salu("s_lshl_b32", s_myfl, s_myfl, 8))
e(salu("s_lshl_b32", s_t1, s_g, 2)); e(salu("s_add_u32", s_myfl, s_myfl, s_t1))
e(salu("s_lshl_b32", s_m0b, s_w, 12)); e(salu("s_add_u32", s_m0b, s_m0b, RING))
e(salu("s_and_b32", s_t1, s_g, 1)); e(salu("s_lshl_b32", s_t1, s_t1, 2)); e(salu("s_add_u32", s_t1, s_t1, s_w))
e(scmp("s_cmp_eq_u32", s_w, 3)); e(salu("s_cselect_b32", s_t1, 3, s_t1, scc_w=False, scc_r=True))
e(salu("s_lshr_b32", s_t2, s_g, 1)); e(salu("s_mul_i32", s_t2, s_t2, 7, scc_w=False)); e(salu("s_add_u32", s_t1, s_t1, s_t2))
e(salu("s_lshl_b32", s_h0, s_t1, 13)); e(salu("s_add_u32", s_h1, s_h0, 4096))
e(salu("s_lshl_b32", s_t1, s_t1, 7))
e(salu("s_lshl_b32", s_t2, s_g, 2)); e(salu("s_add_u32", s_t2, s_t2, s_w)); e(salu("s_lshl_b32", s_t2, s_t2, 8))

def dma_voffs(dst, stride, colbase_s, perm):
    for j in range(4):
        e(valu("v_bfe_u32", vx, v_lane, 1, 2)); e(valu("v_bfe_u32", vy, v_lane, 4, 1))
        e(valu("v_xor_b32", vx, vx, vy))
        if j & 1: e(valu("v_xor_b32", vx, 2, vx))
        e(valu("v_and_b32", vy, 1, v_lane)); e(valu("v_lshlrev_b32", vy, 4, vy)); e(valu("v_lshl_add_u32", vx, vx, 5, vy))
        if not perm:
            e(valu("v_lshrrev_b32", vy, 3, v_lane)); rowadd = 8 * j
        else:
            e(valu("v_bfe_u32", vy, v_lane, 3, 2)); e(valu("v_bfe_u32", vz, v_lane, 5, 1)); e(valu("v_lshl_add_u32", vy, vz, 4, vy)); rowadd = 4 * j
        e(valu("v_mul_u32_u24", vy, stride, vy))
        e(valu("v_add3_u32", vx, vx, vy, colbase_s))
        e(valu("v_add_u32", dst[j], rowadd * stride - j * 1024, vx))

dma_voffs(v_dA, 3584, s_t1, False)
dma_voffs(v_dB, 8192, s_t2, False)

def m0set(p): return salu("s_add_u32", "m0", s_m0b, p * 16384) if p < 6 else salu("s_sub_u32", "m0", s_m0b, RING - (p - 6) * 16384)
def s1_dma(m):
    p = m % 6
    if m < 32:
        s, h = m >> 1, m & 1
        return [m0set(p), salu("s_mov_b32", s_off, s * 32 * 3584, scc_w=False)], [dma(v_dA[j], S_WU if h else S_WG, s_off, j * 1024) for j in range(4)]
    if m < 64:
        s, h = (m - 32) >> 1, m & 1
        return [m0set(p), salu("s_mov_b32", s_off, s * 32 * 8192 + 128 * h, scc_w=False)], [dma(v_dB[j], S_WQ, s_off, j * 1024) for j in range(4)]
    if m == 64:
        return [m0set(p), salu("s_mov_b32", s_off, 0, scc_w=False)], [dma(v_kd[j], S_K, s_off, j * 1024) for j in range(4)]
    if m == 65:
        return [m0set(p), salu("s_mov_b32", s_off, 8192, scc_w=False)], [dma(v_kd[j], S_K, s_off, j * 1024) for j in range(4)]
    if m == 66:
        return [m0set(p), salu("s_mov_b32", s_off, 0, scc_w=False)], [dma(v_vd[j & 1], S_V, s_off, j * 1024) for j in range(4)]
    return None
dtok = {}
ln_v = []
for m in range(6):
    sa, dm = s1_dma(m)
    ln_v.append(sa); ln_v += dm
    dtok[m] = dm[3]
def xaddr(dst, tmp):
    e(valu("v_and_b32", dst, 15, v_lane)); e(salu("s_lshl_b32", s_t0, s_w, 4)); e(valu("v_add_u32", dst, s_t0, dst)); e(valu("v_lshlrev_b32", dst, 10, dst))
    e(valu("v_lshrrev_b32", tmp, 4, v_lane)); e(valu("v_lshl_add_u32", dst, tmp, 3, dst)); e(salu("s_lshl_b32", s_t0, s_cg, 7)); e(valu("v_add_u32", dst, s_t0, dst))
vxs, vzero = V(50), V(51)
xaddr(vxs, vy)
e(valu("v_mov_b32", vzero, 0))
ln_v += [bload(a_x[(2 * u, 2)], vxs, S_XC, 0, off=32 * u, n=2) for u in range(4)]
e(valu("v_lshlrev_b32", V(39), 7, v_lane))
ln_v.append([raw("s_mov_b64 exec, 3", "salu", wr=["exec"]), bstore(vzero, V(39), S_FL, s_myfl, mod="sc1"), raw("s_mov_b64 exec, -1", "salu", wr=["exec"])])
ln_v.append([raw("s_mov_b64 exec, " + TL, "salu", wr=["exec"]), bload(V(46), vwq, S_WQ, 0, n=1), raw("s_mov_b64 exec, -1", "salu", wr=["exec"])])
LNPRE = int(os.environ.get("LNPRE", "0"))
lv = [0]
def ln_issue(n=1):
    k = 0
    while k < n and lv[0] < len(ln_v):
        it = ln_v[lv[0]]; lv[0] += 1
        e(it)
        if not isinstance(it, list): k += 1
e(valu("v_bfe_u32", vr, v_lane, 2, 2)); e(valu("v_and_b32", vc_, 3, v_lane))
e(valu("v_lshlrev_b32", vx, 10, vG)); e(valu("v_lshl_add_u32", vx, vr, 7, vx)); e(valu("v_lshl_add_u32", vx, vc_, 3, vx)); e(valu("v_add_u32", vx, s_m0b, vx))
e(valu("v_lshrrev_b32", vy, 1, vr)); e(valu("v_and_b32", vz, 1, vG)); e(valu("v_lshl_add_u32", vy, vz, 1, vy))
for u in range(4):
    e(valu("v_xor_b32", vz, u, vy)); e(valu("v_lshl_add_u32", v_tr[0][u], vz, 5, vx)); e(valu("v_add_u32", v_tr[1][u], 3 * 16384, v_tr[0][u]))
e(valu("v_xor_b32", vy, vG, vq))
for ds in range(4):
    e(valu("v_xor_b32", vz, 4 * ds, vy)); e(valu("v_lshlrev_b32", vz, 4, vz)); e(valu("v_lshl_add_u32", vz, vq, 8, vz)); e(valu("v_add_u32", v_ka[ds], RING + 4 * 16384, vz))
e(valu("v_lshl_add_u32", vx, vG, 2, vr)); e(valu("v_and_b32", vy, 7, vx)); e(valu("v_lshlrev_b32", vx, 8, vx)); e(valu("v_lshl_add_u32", vx, vc_, 3, vx)); e(valu("v_add_u32", vx, RING, vx))
for db in range(8):
    e(valu("v_xor_b32", vz, db, vy)); e(valu("v_lshl_add_u32", v_va[db], vz, 5, vx))
e(salu("s_lshl_b32", s_t1, s_w, 12))
e(valu("v_lshlrev_b32", vx, 8, vG)); e(valu("v_add_u32", vx, s_t1, vx))
for j in range(4):
    e(valu("v_add_u32", vy, 4 * j, vG)); e(valu("v_xor_b32", vy, vy, vq)); e(valu("v_lshl_add_u32", v_kd[j], vy, 4, vx))
e(valu("v_and_b32", vz, 1, v_lane)); e(valu("v_lshl_add_u32", vx, vz, 4, vx))
for j in range(2):
    e(valu("v_add_u32", vy, 4 * j, vG)); e(valu("v_lshrrev_b32", vz, 1, vq)); e(valu("v_xor_b32", vy, vy, vz)); e(valu("v_lshl_add_u32", v_vd[j], vy, 5, vx))
e(salu("s_lshl_b32", s_t1, s_w, 14)); e(valu("v_add_u32", v_wl, s_t1, v_lin))
e(salu("s_mov_b32", s_retry, 0, scc_w=False))
for ks in range(XFIRST, 16): e(xl[ks])
e(salu("s_mov_b32", s_t1, hx(WS_FL), scc_w=False))
srd(S_FL, s_pair[0], s_pair[1], 32768, s_t1)
ln_issue(LNPRE)
stamp()

v_f = V(128, 128)
LNM = int(os.environ.get("LNM", "1"))
vsum, vtmp, vmb, vdm = V(40), V(41), V(42), V(43)
vneg = V(56, 2)
diag(2)
if LNM:
    d1, d2 = V(56, 4), V(60, 4)
    e(valu("v_mov_b32", vtmp, "0x3f803f80"))
    for i in range(4): e(valu("v_accvgpr_write_b32", a_ones[i], vtmp))
    e(valu("v_and_b32", vtmp, 3, v_lane))
    for r in range(1, 4): e(valu("v_cmp_eq_u32", S(68 + 2 * r, 2), r, vtmp))
    e(valu("v_bfe_u32", vtmp, v_lane, 2, 2)); e(valu("v_lshrrev_b32", vmb, 4, v_lane)); e(valu("v_cmp_eq_u32", S(68, 2), vtmp, vmb))
    LND = int(os.environ.get("LND", "4"))
    for ks in range(16):
        em.wait(vm=xl[ks])
        if ks == 15: diag(2)
        x4 = v_xp[(4 * ks, 4)]
        e(mfma(d1, a_ones, x4, 0 if ks == 0 else d1))
        if ks >= LND: ln_issue(1)
        for k in range(2):
            p = 4 * ks + k
            e(valu("v_lshlrev_b32", v_f[2 * p], 16, v_xp[p])); e(valu("v_and_b32", v_f[2 * p + 1], "0xffff0000", v_xp[p]))
        e(mfma(d2, x4, x4, 0 if ks == 0 else d2))
        for k in range(2, 4):
            p = 4 * ks + k
            e(valu("v_lshlrev_b32", v_f[2 * p], 16, v_xp[p])); e(valu("v_and_b32", v_f[2 * p + 1], "0xffff0000", v_xp[p]))
    if STAMP == 3: stamp()
    ln_issue(int(os.environ.get("LN_FIRST", "0")))
    diag(2)
    if STAMP == 3: stamp()
    e(nop(2))
    e(valu("v_mul_f32", vsum, hx(f2u(1.0 / 512)), d1[0]))
    e(valu("v_cvt_pk_bf16_f32", vmb, vsum, vsum)); e(valu("v_lshlrev_b32", vmb, 16, vmb))
    e(valu("v_mov_b32", vdm, vsum))
    for r in range(1, 4): e(valu("v_cndmask_b32", d2[0], d2[0], d2[r], S(68 + 2 * r, 2)))
    e(valu("v_cndmask_b32", vsum, 0, d2[0], S(68, 2)))
    red4("v_add_f32", [vsum], [vtmp])
    e(valu("v_mul_f32", vsum, hx(f2u(1.0 / 512)), vsum))
    e(valu("v_fma_f32", vsum, "-" + str(vdm), vdm, vsum, extra_rd=vdm.regs()))
    if STAMP == 3: stamp()
else:
    acc = [V(56, 2), V(58, 2), V(60, 2), V(62, 2)]
    for ks in range(16):
        em.wait(vm=xl[ks])
        if ks == 15: diag(2)
        for k in range(4):
            p = 4 * ks + k
            e(valu("v_lshlrev_b32", v_f[2 * p], 16, v_xp[p])); e(valu("v_and_b32", v_f[2 * p + 1], "0xffff0000", v_xp[p]))
        for k in range(4):
            p = 4 * ks + k
            if ks == 0: e(valu("v_mov_b64", acc[k], v_f[(2 * p, 2)]))
            else: e(valu("v_pk_add_f32", acc[k], acc[k], v_f[(2 * p, 2)]))
    if STAMP == 3: stamp()
    ln_issue(int(os.environ.get("LN_FIRST", "12")))
    diag(2)
    if STAMP == 3: stamp()
    e(valu("v_pk_add_f32", acc[0], acc[0], acc[1])); e(valu("v_pk_add_f32", acc[2], acc[2], acc[3])); e(valu("v_pk_add_f32", acc[0], acc[0], acc[2]))
    e(valu("v_add_f32", vsum, acc[0][0], acc[0][1]))
    red4("v_add_f32", [vsum], [vtmp])
    e(valu("v_mul_f32", vsum, hx(f2u(1.0 / 512)), vsum))
    e(valu("v_cvt_pk_bf16_f32", vmb, vsum, vsum)); e(valu("v_lshlrev_b32", vmb, 16, vmb))
    e(valu("v_sub_f32", vdm, vsum, vmb))
    e(valu("v_sub_f32", vneg[0], 0, vmb))
    acc2 = [V(58, 2), V(60, 2), V(62, 2)]
    for p in range(64):
        e(valu("v_pk_add_f32", v_f[(2 * p, 2)], v_f[(2 * p, 2)], vneg, mod="op_sel_hi:[1,0]"))
    for p in range(64):
        a_ = acc2[p % 3]
        if p < 3: e(valu("v_pk_mul_f32", a_, v_f[(2 * p, 2)], v_f[(2 * p, 2)]))
        else: e(valu("v_pk_fma_f32", a_, v_f[(2 * p, 2)], v_f[(2 * p, 2)], a_))
    if STAMP == 3: stamp()
    e(valu("v_pk_add_f32", acc2[0], acc2[0], acc2[1])); e(valu("v_pk_add_f32", acc2[0], acc2[0], acc2[2]))
    e(valu("v_add_f32", vsum, acc2[0][0], acc2[0][1]))
    red4("v_add_f32", [vsum], [vtmp])
    e(valu("v_mul_f32", vsum, hx(f2u(1.0 / 512)), vsum))
    e(valu("v_fma_f32", vsum, "-" + str(vdm), vdm, vsum, extra_rd=vdm.regs()))
e(valu("v_max_f32", vsum, 0, vsum))
e(valu("v_cvt_pk_bf16_f32", vsum, vsum, vsum)); e(valu("v_lshlrev_b32", vsum, 16, vsum))
e(valu("v_add_f32", vsum, hx(f2u(1e-5)), vsum))
e(valu("v_cvt_pk_bf16_f32", vsum, vsum, vsum)); e(valu("v_lshlrev_b32", vsum, 16, vsum))
e(valu("v_sqrt_f32", vsum, vsum)); e(nop(0))
e(valu("v_cvt_pk_bf16_f32", vsum, vsum, vsum)); e(valu("v_lshlrev_b32", vsum, 16, vsum))
e(valu("v_rcp_f32", vneg[0], vsum)); e(nop(0))
if LNM: e(valu("v_mul_f32", vneg[1], "-" + str(vmb), vneg[0], mod="", extra_rd=vmb.regs()))
for ks in range(16):
    for k in range(4):
        p = 4 * ks + k
        if LNM: e(valu("v_pk_fma_f32", v_f[(2 * p, 2)], v_f[(2 * p, 2)], vneg, vneg, mod="op_sel:[0,0,1] op_sel_hi:[1,0,1]"))
        else: e(valu("v_pk_mul_f32", v_f[(2 * p, 2)], v_f[(2 * p, 2)], vneg, mod="op_sel_hi:[1,0]"))
    for k in range(4):
        p = 4 * ks + k
        e(valu("v_cvt_pk_bf16_f32", v_xp[p], v_f[2 * p], v_f[2 * p + 1]))
    e(dswrite("ds_write_b128", v_wl, v_xp[(4 * ks, 4)], ks * 1024))
ln_issue(int(os.environ.get("LN_LAST", "100")))
if STAMP == 3: stamp()
if DUMP == "ln": dump_regs([v_xp[i] for i in range(64)])
em.wait(lg0=True)
e(raw("s_barrier"))
stamp(); diag(); diag(2); diag(3)

def cost_of(it):
    k = getattr(it, "kind", "")
    return 2 if k == "trans" else (0 if k in ("salu", "nop") else 1)
class Fill:
    def __init__(self, items, start, end, spread=False): self.items, self.start, self.end, self.spread = list(items), start, end, spread; self.i = 0
    def done(self): return self.i == len(self.items)
def run_stream(NH, dmaf, dtok, accf, Bf, extra, fills, LOOK=6, nq=4, posf=lambda m: m % 6, ring=a_ring, first_dma=6, tr2=None, early_dma=False):
    NG = 4 * NH
    rtok = {}
    def reads(g):
        m, u = g >> 2, g & 3
        p = posf(m)
        d = ring[((g % 8) * 4, 4)]
        ar, of = (v_tr[p // 3][u], (p % 3) * 16384) if p < 6 else (tr2[u], (p - 6) * 16384)
        r = [dsread("ds_read_b64_tr_b16", d[(2 * h2, 2)], ar, of + h2 * 512) for h2 in range(2)]
        rtok[g] = r[1]
        return r
    pre = [reads(g) for g in range(3)]
    G, C = [], []
    cur = None
    for g in range(NG):
        gaps = [[], [], [], []]; cap = [2, 2, 2, 2]
        if g + 3 < NG:
            if (g + 3) & 3 == 0: gaps[0].append(LateW(dtok, (g + 3) >> 2))
            r = reads(g + 3); gaps[0].append(r[0]); gaps[1].append(r[1]); cap[0] -= 1; cap[1] -= 1
        md, j = (g + 4 * LOOK - 4) >> 2, (g + 4 * LOOK - 4) & 3
        if early_dma:
            md, j = (g + 4 * LOOK - 3) >> 2, (g + 4 * LOOK - 3) & 3
            if md >= first_dma and j < 2:
                if j == 0: cur = dmaf(md)
                if cur is not None:
                    if j == 0: gaps[1] += cur[0]
                    gaps[2].append(cur[1][2 * j]); gaps[3].append(cur[1][2 * j + 1]); cap[2] -= 1; cap[3] -= 1
                    if j == 1: dtok[md] = cur[1][3]
        elif md >= first_dma:
            if j == 0: cur = dmaf(md)
            if cur is not None:
                if j == 0: gaps[2] += cur[0]
                for it in cur[1][j::4]: gaps[3].append(it); cap[3] -= 1
                if j == 3: dtok[md] = cur[1][3]
        for (gp, it, cost) in extra.get(g, []):
            gaps[gp].append(it); cap[gp] -= cost
        if g + 1 < NG: gaps[3].insert(0, Wait(lg=rtok[g + 1]))
        G.append(gaps); C.append(cap)
    B = {}
    for f in fills:
        idx = [(g, q) for g in range(f.start, f.end) for q in range(4)]
        caps = [max(0, C[g][q]) for g, q in idx]
        W = sum(cost_of(it) for it in f.items); T = sum(caps); n = len(idx)
        acc = 0.0; cum = 0
        for k, key in enumerate(idx):
            if W >= T: acc += caps[k] + (W - T) / n
            elif f.spread: acc += caps[k] * W / T
            else: acc += caps[k]
            B[key] = (f, acc)
    em.wait(vm=dtok[0])
    for r in pre: e(r)
    for p_ in extra.get(-1, []): e(p_[1])
    em.wait(lg0=True)
    used = {id(f): 0 for f in fills}
    for g in range(NG):
        m, u = g >> 2, g & 3
        d = ring[((g % 8) * 4, 4)]
        for qb in range(nq):
            ac, first = accf(m, u, qb)
            e(mfma(ac, d, Bf(m, qb), 0 if first else ac))
            ent = B.get((g, qb))
            sawv = False
            if ent:
                f, lim = ent
                while not f.done() and getattr(f.items[f.i], "kind", "") in ("lds", "vmem", "salu") and used[id(f)] + cost_of(f.items[f.i]) <= lim + 0.5:
                    it = f.items[f.i]; f.i += 1; used[id(f)] += cost_of(it); e(it)
            for it in G[g][qb]: e(it)
            if ent:
                f, lim = ent
                lastgap = (g == f.end - 1 and qb == 3)
                while not f.done():
                    it = f.items[f.i]; c = cost_of(it)
                    if not lastgap:
                        if used[id(f)] + c > lim + 0.5: break
                        if sawv and getattr(it, "kind", "") in ("lds", "vmem"): break
                    f.i += 1; used[id(f)] += c; e(it)
                    if getattr(it, "kind", "") in ("valu", "trans"): sawv = True
    assert all(f.done() for f in fills)
class LateW:
    def __init__(self, d, k): self.d, self.k = d, k
    def __call__(self): return Wait(vm=self.d[self.k])

def s1_acc(m, u, qb):
    h = m & 1
    idx = ((h * 4 + u) * 4 + qb) * 4
    if m < 32: return A(idx, 4), m < 2
    return v_acc[(idx, 4)], m < 34
def s1_B(m, qb): return a_B[(((m >> 1) & 1) * 16 + qb * 4, 4)]
extra = {}
btok = {}
def bread(s, qb): return dsread("ds_read_b128", a_B[((s & 1) * 16 + qb * 4, 4)], v_lin, (qb * 16 + (s % 16)) * 1024)
extra[-1] = [(0, bread(0, qb), 1) for qb in range(4)]
for s in range(1, 32):
    for qb in range(4):
        extra.setdefault(8 * (s - 1) + 1 + qb, []).append((2, bread(s, qb), 1))
gi = 0; gj = 0; pend_s = []
for it in ln_v[lv[0]:]:
    if isinstance(it, list) and all(x.kind == "salu" for x in it): pend_s = it; continue
    if not isinstance(it, list) and it.kind == "dma":
        assert gi < 12
        extra.setdefault(gi // 3, []).append((gi % 3, [pend_s, it] if pend_s else it, 1)); pend_s = []
        gi += 1
    else:
        extra.setdefault(8 + 2 * gj, []).append((1, it, 1)); gj += 1
C0 = -2.0 * math.sqrt(2.0 / math.pi) * math.log2(math.e); C1 = C0 * 0.044715
vc0, vc1 = V(40), V(41)
gel = [valu("v_mov_b32", vc0, hx(f2u(C0))), valu("v_mov_b32", vc1, hx(f2u(C1)))]
hst = []
tb = 0
for i in range(2):
    for qb in range(4):
        pk = V(96 + 4 * tb, 4); tb += 1
        for b in range(2):
            u = 2 * i + b
            T = [V(64 + 16 * b + k) for k in range(16)]
            G_, U_, X_ = T[0:4], T[4:8], T[8:12]
            ga = lambda r: A((u * 4 + qb) * 4 + r); ua = lambda r: A(((4 + u) * 4 + qb) * 4 + r)
            for r in range(4): gel.append(valu("v_accvgpr_read_b32", G_[r], ga(r)))
            for r in range(4): gel.append(valu("v_accvgpr_read_b32", U_[r], ua(r)))
            for r in range(4): gel.append(valu("v_mul_f32", X_[r], G_[r], G_[r]))
            for r in range(4): gel.append(valu("v_fma_f32", X_[r], X_[r], vc1, vc0))
            for r in range(4): gel.append(valu("v_mul_f32", X_[r], X_[r], G_[r]))
            for r in range(4): gel.append(valu("v_exp_f32", X_[r], X_[r]))
            for r in range(4): gel.append(valu("v_mul_f32", G_[r], G_[r], U_[r]))
            for r in range(4): gel.append(valu("v_add_f32", X_[r], "1.0", X_[r]))
            for r in range(4): gel.append(valu("v_rcp_f32", X_[r], X_[r]))
            gel.append(nop(0))
            for r in range(4): gel.append(valu("v_mul_f32", G_[r], G_[r], X_[r]))
            for k in range(2): gel.append(valu("v_cvt_pk_bf16_f32", pk[2 * b + k], G_[2 * k], G_[2 * k + 1]))
        st = bstore(pk, v_lin, S_H, s_h1 if i else s_h0, off=qb * 1024, mod="sc1")
        hst.append(st)
class Stamp:
    def __call__(self): stamp(); return []
if STAMP: extra.setdefault(128, []).append((0, Stamp(), 0))
class Diag3:
    def __call__(self): diag(3); return []
if DIAG == 3:
    for g_ in (32, 128, 192): extra.setdefault(g_, []).append((0, Diag3(), 0))
class Grp:
    kind = "salu"
    def __init__(self, l): self.l = l
    def __call__(self):
        for x in self.l:
            if x.kind == "label": em.out.append(x)
            else: e(x)
        return []
def group_scc(items):
    out = []
    for it in items:
        if out and ("scc" in it.rd or it.kind == "label"):
            p = out.pop(); out.append(Grp((p.l if isinstance(p, Grp) else [p]) + [it]))
        else: out.append(it)
    return out
s_pf = [S(24, 2), S(26, 2), S(28, 2), S(30, 2)]
s_pfH = s_pair2
s_fo = S(3)
QS = math.log2(math.e) / math.sqrt(128.0)
vqs = V(42, 2); vqw = V(44)
save = em.out; em.out = []; spend = em.pend; em.pend = {}
NWO = 4 if MAP2 else 2
for it in range(3):
    e(salu("s_add_u32", s_t0, s_w, 4 * it))
    e(salu("s_sub_u32", s_t1, s_t0, NWO)); e(salu("s_min_u32", s_t1, s_t1, 6)); e(salu("s_lshl_b32", s_t1, s_t1, 13))
    e(salu("s_lshr_b32", s_t2, S(2), 3)); e(salu("s_mul_i32", s_t2, s_t2, 57344, scc_w=False)); e(salu("s_add_u32", s_t1, s_t1, s_t2))
    e(salu("s_add_u32", s_pf[it][0], S_WD[0], s_t1)); e(salu("s_addc_u32", s_pf[it][1], S_WD[1], 0, scc_r=True))
    if it == 0:
        e(sx(s_t1)); e(salu("s_lshl_b32", s_t1, s_t1, 15 if MAP2 else 14)); e(salu("s_lshl_b32", s_t2, s_w, 13)); e(salu("s_add_u32", s_t1, s_t1, s_t2))
        e(salu("s_add_u32", s_pf[1][0], S_WO[0], s_t1)); e(salu("s_addc_u32", s_pf[1][1], S_WO[1], 0, scc_r=True))
        e(scmp("s_cmp_lt_u32", s_w, NWO)); e(salu("s_cselect_b64", s_pf[0], s_pf[1], s_pf[0], scc_w=False, scc_r=True))
e(raw("s_getpc_b64 %s" % s_pf[3], "salu", wr=[s_pf[3]]))
em.label("L_pc1")
e(salu("s_lshl_b32", s_t0, s_w, 13)); e(salu("s_add_u32", s_t0, s_t0, "L_tail-L_pc1")); e(salu("s_min_u32", s_t0, s_t0, "L_code_end-L_pc1-8192"))
e(salu("s_add_u32", s_t1, s_t0, (1 if MAP2 else 3) * 8192)); e(salu("s_min_u32", s_t1, s_t1, "L_code_end-L_pc1-8192"))
e(salu("s_add_u32", s_pfH[0], s_pf[3][0], s_t1)); e(salu("s_addc_u32", s_pfH[1], s_pf[3][1], 0, scc_r=True))
e(scmp("s_cmp_lt_u32", s_w, 3 if MAP2 else 1)); e(salu("s_cselect_b64", s_pf[2], s_pf[2], s_pfH, scc_w=False, scc_r=True))
e(salu("s_add_u32", s_pf[3][0], s_pf[3][0], s_t0)); e(salu("s_addc_u32", s_pf[3][1], s_pf[3][1], 0, scc_r=True))
e(salu("s_lshl_b32", s_t0, s_cg, 2)); e(salu("s_add_u32", s_t0, s_t0, s_w)); e(salu("s_mul_i32", s_t0, s_t0, 7168, scc_w=False)); e(salu("s_min_u32", s_t0, s_t0, 229376 - 8192))
e(salu("s_add_u32", s_pfH[0], S_HC[0], s_t0)); e(salu("s_addc_u32", s_pfH[1], S_HC[1], 0, scc_r=True))
e(salu("s_lshl_b32", s_fo, s_cq, 3))
vx, vy, vz = V(45), V(46), V(47)
e(salu("s_lshl_b32", s_t1, s_w, 8))
dma_voffs(v_dA, 1024, s_t1, True)
e(salu("s_mul_i32", s_wdd, s_w, 448 * 1024 - 256, scc_w=False)); e(salu("s_lshl_b32", s_t3, s_cg, 7)); e(salu("s_add_u32", s_wdd, s_wdd, s_t3))
e(valu("v_mov_b32", vqs[0], hx(f2u(QS))))
e(valu("v_and_b32", vx, 15, v_lane)); e(valu("v_bfe_u32", vqw, v_lane, 5, 1)); e(valu("v_lshl_add_u32", vx, vqw, 4, vx)); e(valu("v_lshlrev_b32", vx, 4, vx))
e(valu("v_bfe_u32", vqw, v_lane, 4, 1)); e(valu("v_lshl_add_u32", vqw, vqw, 3, vx))
e(salu("s_lshl_b32", s_t1, s_w, 14)); e(valu("v_add_u32", vqw, s_t1, vqw))
midset = group_scc(em.out); em.out = save; em.pend = spend
HST = int(os.environ.get("HST", "0"))
if HST == 0: GEL_END = 254
for k in range(8):
    if HST: extra.setdefault(248 + k, []).append((0, hst[k], 1))
run_stream(64, s1_dma, dtok, s1_acc, s1_B, extra, [Fill(midset, 109, 130), Fill(gel, 131, GEL_END)], early_dma=int(os.environ.get('ED1', '0')))
if DUMP == "qacc": dump_regs([v_acc[i] for i in range(128)])
stamp(); diag(3)

em.wait(lg0=True)
e(raw("s_barrier"))
def signal(off_s_expr_add, lab, v_t):
    e(scmp("s_cmp_lg_u32", s_w, 0)); e(raw("s_cbranch_scc1 %s" % lab, rd=["scc"]))
    e(salu("s_lshl_b32", s_t0, s_qb, 2))
    if off_s_expr_add: e(salu("s_add_u32", s_t0, s_t0, off_s_expr_add))
    e(valu("v_mov_b32", v_t, 1))
    e(raw("s_mov_b64 exec, 1", "salu", wr=["exec"]))
    e(raw("buffer_atomic_add %s, off, %s, %s sc1" % (v_t, S_DBG, s_t0)))
    e(raw("s_mov_b64 exec, -1", "salu", wr=["exec"]))
    em.label(lab)
for blk in range(8):
    for qb in range(4):
        a_ = v_acc[((blk * 4 + qb) * 4, 4)]
        t = V(64 + 2 * ((blk * 4 + qb) % 8), 2)
        for k in range(2): e(valu("v_pk_mul_f32", a_[(2 * k, 2)], a_[(2 * k, 2)], vqs, mod="op_sel_hi:[1,0]"))
        for k in range(2): e(valu("v_cvt_pk_bf16_f32", t[k], a_[2 * k], a_[2 * k + 1]))
        if len(em.lgq) >= 7: em.wait(lg=em.lgq[-7])
        e(dswrite("ds_write_b64", vqw, t, (qb * 4 + (blk >> 1)) * 1024 + (blk & 1) * 512))
for j in range(4): e(valu("v_add_u32", v_dB[j], s_wdd, v_dA[j]))
em.wait(lg0=True)
for f in range(16): e(dsread("ds_read_b128", a_Q[(4 * f, 4)], v_wl, f * 1024))
em.label("L_att_start")
NZ0 = 32
for i in range(NZ0): e(valu("v_mov_b64", v_acc[(2 * i, 2)], 0))
if LSUM:
    for i in range(16): e(valu("v_accvgpr_write_b32", a_L[i], 0))
    e(valu("v_mov_b32", V(40), "0x3f803f80"))
    if LSUM == 2:
        e(valu("v_and_b32", V(41), 15, v_lane)); e(valu("v_cmp_eq_u32", "vcc", 0, V(41))); e(nop(1)); e(valu("v_cndmask_b32", V(40), 0, V(40), "vcc"))
    for i in range(4): e(valu("v_accvgpr_write_b32", a_ones[i], V(40)))
else:
    for i in range(4): e(valu("v_mov_b32", v_l0[i], 0)); e(valu("v_mov_b32", v_l1[i], 0))
e(valu("v_lshlrev_b32", V(3), 7, v_lane))
e(valu("v_and_b32", V(38), 7, v_lane)); e(valu("v_mov_b32", V(0), 0))
em.wait(vm=dtok[66], lg0=True)
e(raw("s_barrier"))
if DUMP == "q": dump_regs([a_Q[i] for i in range(64)])
stamp()

def Qf(qb, ds): return a_Q[((qb * 4 + ds) * 4, 4)]
def Of(db, qb): return v_acc[((db * 4 + qb) * 4, 4)]
def fr(f): return a_ring[((f % 8) * 4, 4)]
def kslot(par): return 16384 if par == 0 else 0
def vslot(par): return 0 if par == 0 else 16384
def frag_reads(par, f):
    if f >= 32: par ^= 1; f -= 32
    d = fr(f)
    if f < 8 or 16 <= f < 24:
        kb = (f >> 2) if f < 8 else 2 + ((f - 16) >> 2)
        return [dsread("ds_read_b128", d, v_ka[f & 3], kslot(par) + kb * 4096)]
    ks2 = 0 if f < 16 else 1
    db = f & 7
    return [dsread("ds_read_b64_tr_b16", d[(2 * h, 2)], v_va[db], vslot(par) + ks2 * 8192 + h * 4096) for h in range(2)]
def read_sched(g):
    r = []
    if g + 3 < 24 or g >= 29: r.append(g + 3)
    if 19 <= g <= 26: r.append(g + 5)
    return r
def sm_val(g, k):
    if 7 <= g <= 22: b = 1; n = 2 * (g - 7) + k
    else: b = 0; n = 2 * ((g - 23) % 32) + k
    kb, qb, r = n >> 4, (n >> 2) & 3, n & 3
    return b, qb, kb, r
def sm_items(g):
    ex, ad = [], []
    for k in range(2):
        b, qb, kb, r = sm_val(g, k)
        x = v_S[b][qb * 8 + kb * 4 + r]
        l = (v_l1 if b else v_l0)[qb]
        ex.append(valu("v_exp_f32", x, x)); ad.append(valu("v_add_f32", l, l, x))
    b, qb, kb, r = sm_val((g - 1) % 32, 0)
    cv = valu("v_cvt_pk_bf16_f32", v_S[b][qb * 8 + kb * 2 + (r >> 1)], v_S[b][qb * 8 + kb * 4 + r], v_S[b][qb * 8 + kb * 4 + r + 1])
    return ex, ad, cv
def att_dma(par, g):
    if g >= 29: k = g - 29; sp = par
    elif g <= 4: k = g + 3; sp = par ^ 1
    else: return [], None
    sal = []
    if k == 0: sal = [salu("s_add_u32", "m0", s_m0b, 4 * 16384 + kslot(sp))]
    if k == 4: sal = [salu("s_add_u32", "m0", s_m0b, vslot(sp))]
    if k < 4: return sal, dma(v_kd[k], S_K, s_kK, k * 1024)
    return sal, dma(v_vd[k & 1], S_V, s_kV, (k - 4) * 1024)
SIDE_FIRST = 11
class Lbl:
    def __init__(self, n): self.n = n
    def __call__(self): em.label(self.n); return []
class LoopStamp:
    def __init__(self, k, par): self.k, self.par = k, par
    def __call__(self):
        k = self.k
        e(raw("s_memtime %s" % S(68 + 2 * k, 2), "other", wr=[S(68 + 2 * k, 2)]))
        if k == 2:
            e(raw("s_waitcnt lgkmcnt(0)", "wait")); em._retire(em.lgq, 0)
            for i in range(3): e(valu("v_writelane_b32", v_c, S(68 + 2 * i), i, rmw=True))
            e(salu("s_lshl_b32", S(74), S(2), 2)); e(salu("s_add_u32", S(74), S(74), s_w)); e(salu("s_lshl_b32", S(74), S(74), 4))
            e(salu("s_sub_u32", S(74), S(74), s_cnt)); e(salu("s_add_u32", S(74), S(74), 16)); e(salu("s_lshl_b32", S(74), S(74), 5))
            e(salu("s_add_u32", S(74), S(74), (1 << 20) + 16 * self.par))
            e(raw("s_mov_b64 exec, 7", "salu", wr=["exec"]))
            e(valu("v_lshlrev_b32", v_t, 2, v_lane))
            e(bstore(v_c, v_t, S_DMP, S(74), off=0))
            e(raw("s_mov_b64 exec, -1", "salu", wr=["exec"]))
            e(valu("v_lshlrev_b32", v_t, 7, v_lane))
        return []
v_tch, v_flag, v_fa = V(3), V(0), V(38)
xtok = []; lastdma = [None]
NITER = 14
s_pfc = S(16, 2); s_kvt = S(18, 2); KVIT = int(os.environ.get('KVIT', '12'))
ROT = int(os.environ.get('ROT', '8'))
ftok = {}
def att_group(par, g, do_mfma=True, do_mem=True, do_cvt=True, last=False, pp=None, xmem=(), xsal=(), xvalu=None):
    ex, ad, cv = sm_items(g)
    mem = []
    sal = []
    fin = (pp == 3)
    d = None
    if do_mem:
        if fin: sched = ([g + 3] if g + 3 < 16 else []) + ([g + 11] if 13 <= g <= 20 else [])
        else: sched = read_sched(g)
        for f in sched:
            r = frag_reads(par, f); mem += r; ftok[f % 32] = r
        if pp is None or (g <= 4 and pp <= 2) or (g >= 29 and pp <= 1):
            sal, d = att_dma(par, g)
            if d is not None: mem.append(d)
    loop = do_mem and pp is None
    post0 = []
    if loop and par == 0:
        if g == 14: mem.append(I("global_load_dword %s, %s, %s" % (v_c, v_tch, s_pfc), "vmem", rd=v_tch.regs() + s_pfc.regs(), wr=[]))
        if g == 13: mem.append(I("buffer_load_ubyte %s, %s, %s, %s offen sc1" % (v_flag, v_fa, S_DBG, s_t2), "vmem", rd=S_DBG.regs() + s_t2.regs() + v_fa.regs(), wr=[]))
        if g == 8: sal = sal + [scmp("s_cmp_le_u32", s_cnt, ROT)]
        if g in (9, 10, 11, 12):
            q_ = [s_pfc] + s_pf
            sal = sal + [salu("s_cselect_b64", q_[g - 9], q_[g - 8], q_[g - 9], scc_w=False, scc_r=True)]
        if g == 0: post0 = [valu("v_cmp_eq_u32", "vcc", 1, v_flag)]
        if g == 2: sal = sal + [raw("s_cmp_eq_u32 vcc_lo, -1", "salu", rd=["vcc"], wr=["scc"])]
        if g == 3: sal = sal + [salu("s_cselect_b32", s_t0, s_cnt, -1, scc_w=False, scc_r=True)]
        if g == 4: sal = sal + [scmp("s_cmp_eq_u32", s_t0, ROT - 1)]
        if g == 5: sal = sal + [salu("s_cselect_b64", s_pf[3], s_pfH, s_pf[3], scc_w=False, scc_r=True)]
        if g == 15: sal = sal + [salu("s_cselect_b64", s_pf[3], S_K[(0, 2)], s_pf[3], scc_w=False, scc_r=True)]
        if g == 20: sal = sal + [scmp("s_cmp_eq_u32", s_cnt, KVIT + 1)]
        if g == 21: sal = sal + [salu("s_cselect_b64", s_pfc, s_kvt, S_K[(0, 2)], scc_w=False, scc_r=True)]
        if g == 13: sal = sal + [salu("s_cselect_b32", s_t2, s_fo, 256, scc_w=False, scc_r=True)]
        if g == 18: sal = sal + [scmp("s_cmp_eq_u32", s_cnt, s_sig)]
        if g == 19: sal = sal + [raw("s_cbranch_scc1 L_sigH_side", rd=["scc"]), Lbl("L_sigH_ret")]
    if do_mem and g == 4 and d is not None: lastdma[0] = d
    mem += list(xmem); sal = sal + list(xsal)
    gaps = [[], [], [], []]
    if g == 29 and do_mem and not fin:
        if STAMP == 2 and loop and do_mfma: gaps[0] += [LoopStamp(0, par)]
        gaps[0] += [Wait(lg0=True) if not do_mfma else (Wait(lg0=True, vm0=True) if (pp is None and par == 1) else Wait(lg0=True, vm=lastdma[0]))]
        if STAMP == 2 and loop and do_mfma: gaps[0] += [LoopStamp(1, par)]
        gaps[0] += [raw("s_barrier")]
        if STAMP == 2 and loop and do_mfma: gaps[0] += [LoopStamp(2, par)]
    gaps[0] += sal
    if g == 6 and do_mem and (pp is None or pp <= 1): gaps[0].append(salu("s_add_u32", s_kK, s_kK, 16384))
    if g == 7 and do_mem and (pp is None or pp <= 1): gaps[0].append(salu("s_add_u32", s_kV, s_kV, 16384))
    sm = not (fin and g >= 23)
    if fin and g > 23: do_cvt = False
    if fin and 16 <= g < 24: do_mfma = False
    if LSUM:
        if sm: gaps[0].append(ex[0])
        gaps[1] += mem[0:2] if len(mem) > 2 else mem[0:1]
        gaps[1] += post0
        nf = (g + 1) % 32
        if do_mem and not (fin and (16 <= nf < 24 or nf == 0)): gaps[2].append(Wait(lg=ftok.get(nf)))
        if last and g == 30: gaps[2].append(salu("s_sub_u32", s_cnt, s_cnt, 1))
        if sm: gaps[2].append(ex[1])
        gaps[3] += mem[2:] if len(mem) > 2 else mem[1:]
        if do_cvt: gaps[1 if len(gaps[1]) < 2 else 3].append(cv)
    else:
      gaps[0] += mem[2:3]
      if sm: gaps[0].append(ex[0])
      if len(mem) > 0: gaps[1].append(mem[0])
      if len(mem) == 0 and do_cvt: gaps[1].append(cv)
      if sm: gaps[1].append(ad[0])
      gaps[1] += post0
      nf = (g + 1) % 32
      if do_mem and not (fin and (16 <= nf < 24 or nf == 0)): gaps[2].append(Wait(lg=ftok.get(nf)))
      if last and g == 30: gaps[2].append(salu("s_sub_u32", s_cnt, s_cnt, 1))
      gaps[2] += mem[3:]
      if sm: gaps[2].append(ex[1])
      if len(mem) > 1: gaps[3].append(mem[1])
      if len(mem) > 0 and do_cvt: gaps[3].append(cv)
      if sm: gaps[3].append(ad[1])
    for qb in range(4):
        if do_mfma:
            if g < 8 or 16 <= g < 24:
                b = 1 if g < 8 else 0
                kb, ds = (g >> 2) & 1, g & 3
                d = v_S[b][(qb * 8 + kb * 4, 4)]
                e(mfma(d, fr(g), Qf(qb, ds), v_negm[(qb * 4, 4)] if ds == 0 else d))
            else:
                b = 0 if g < 16 else 1
                e(mfma(Of(g & 7, qb), fr(g), v_S[b][(qb * 8, 4)], Of(g & 7, qb)))
        else:
            if (qb & 1) and not gaps[qb][:1] or ((qb & 1) and getattr(gaps[qb][0], "kind", "") in ("valu",)): e(nop(0))
        for it in gaps[qb]: e(it)
        if xvalu is not None:
            c = 2 - sum(1 for it in gaps[qb] if getattr(it, "kind", "") in ("lds", "vmem", "dma", "valu"))
            while xvalu and c > 0:
                it = xvalu.pop(0); e(it); c -= 2 if it.kind == "trans" else 1
    if LSUM and do_mfma and (g & 8):
        k = g & 7
        lq = (k if k < 4 else None) if (fin and g >= 24) else (k >> 1 if k & 1 else None)
        if lq is not None: e(mfma(a_L[(4 * lq, 4)], a_ones, v_S[0 if g < 16 else 1][(lq * 8, 4)], a_L[(4 * lq, 4)]))

pr = [dsread("ds_read_b128", fr(f), v_ka[f & 3], (f >> 2) * 4096) for f in range(8)]
for r in pr: e(r)
e(scmp("s_cmp_lg_u32", s_retry, 0)); e(raw("s_cbranch_scc1 L_have_max", rd=["scc"]))
for i in range(16): e(valu("v_mov_b32", v_negm[i], 0))
em.label("L_have_max")
zr = [valu("v_mov_b32", v_acc[i], 0) for i in range(2 * NZ0, 128)]
for f in range(8):
    em.wait(lg=pr[f])
    for qb in range(4):
        d = v_S[0][(qb * 8 + (f >> 2) * 4, 4)]
        e(mfma(d, fr(f), Qf(qb, f & 3), v_negm[(qb * 4, 4)] if (f & 3) == 0 else d))
        if qb == 0 and HST == 0: e(hst[f])
        for _ in range(2):
            if zr: e(zr.pop(0))
assert not zr
e(salu("s_mov_b32", s_kK, 16384 + 8192, scc_w=False)); e(salu("s_mov_b32", s_kV, 16384, scc_w=False)); e(salu("s_mov_b32", s_cnt, NITER, scc_w=False))
e(scmp("s_cmp_lg_u32", s_retry, 0)); e(raw("s_cbranch_scc1 L_have_max2", rd=["scc"]))
e(nop(3))
mx = [V(97 + 4 * i) for i in range(4)]; mt = [V(98 + 4 * i) for i in range(4)]
for qb in range(4): e(valu("v_max3_f32", mx[qb], v_S[0][qb * 8], v_S[0][qb * 8 + 1], v_S[0][qb * 8 + 2]))
for qb in range(4): e(valu("v_max3_f32", mx[qb], mx[qb], v_S[0][qb * 8 + 3], v_S[0][qb * 8 + 4]))
for qb in range(4): e(valu("v_max3_f32", mx[qb], mx[qb], v_S[0][qb * 8 + 5], v_S[0][qb * 8 + 6]))
for qb in range(4): e(valu("v_max_f32", mx[qb], mx[qb], v_S[0][qb * 8 + 7]))
red4("v_max_f32", mx, mt)
for qb in range(4):
    for k in range(4): e(valu("v_sub_f32", v_negm[qb * 4 + k], 0, mx[qb]))
for qb in range(4):
    for k in range(8): e(valu("v_sub_f32", v_S[0][qb * 8 + k], v_S[0][qb * 8 + k], mx[qb]))
em.label("L_have_max2")
e(nop(7))
for g in range(23, 29): att_group(1, g, do_mfma=False, do_mem=False, do_cvt=(g != 23))
stamp(); diag()
e(salu("s_and_b32", s_t0, s_qb, 3)); e(salu("s_sub_u32", s_t0, NITER - 1, s_t0))
e(scmp("s_cmp_eq_u32", s_w, 0)); e(salu("s_cselect_b32", s_sig, s_t0, -1, scc_w=False, scc_r=True))
e(scmp("s_cmp_eq_u32", s_retry, 0)); e(salu("s_cselect_b32", s_sig, s_sig, -1, scc_w=False, scc_r=True))
e(salu("s_mov_b64", s_pfc, S_K[(0, 2)], scc_w=False))
e(scmp("s_cmp_lt_u32", s_w, 2)); e(salu("s_cselect_b64", s_kvt, S_K[(0, 2)], S_V[(0, 2)], scc_w=False, scc_r=True))
e(salu("s_and_b32", s_t0, s_w, 1)); e(sx(s_t1)); e(salu("s_lshl_b32", s_t1, s_t1, 1)); e(salu("s_add_u32", s_t0, s_t0, s_t1)); e(salu("s_lshl_b32", s_t0, s_t0, 13))
if MAP2: e(salu("s_add_u32", s_t0, s_t0, 262144))
e(salu("s_add_u32", s_kvt[0], s_kvt[0], s_t0)); e(salu("s_addc_u32", s_kvt[1], s_kvt[1], 0, scc_r=True))
for g in range(29, 32): att_group(1, g, do_mfma=False, do_mem=True)
pro_end = len(em.out)
em.directive(".p2align 6")
em.label("L_att_loop")
def body():
    for par in range(2):
        for g in range(32): att_group(par, g, last=(par == 1))
b0 = len(em.out)
body()
b1 = len(em.out)
e(scmp("s_cmp_lg_u32", s_cnt, 0)); e(raw("s_cbranch_scc1 L_att_loop", rd=["scc"]))
b2 = len(em.out)
body()
second = em.out[b2:]; del em.out[b2:]
assert [i.text for i in second] == [i.text for i in em.out[b0:b1]], "loop not in steady state"
loop_probs = check_hazards(em.out[b1 - 40:b2] + second[:60], "loop-wrap")

em.label("L_tail")
v_ring2 = V(64, 32); v_B2 = V(96, 32)
XY = int(os.environ.get('XY', '0'))
NF1 = int(os.environ.get('NF1', '8'))
def hreg(kk, qb):
    if kk >= 8: kk -= 8
    return A((64 + 16 * kk if kk < 4 else 160 + 16 * (kk - 4)) + qb * 4, 4)
def Facc(u, qb):
    t = u * 4 + qb
    return A(128 + 4 * t if t < 8 else 224 + 4 * (t - 8), 4)
POS2 = [5, 0, 2, 3, 4, 1]
NB = int(os.environ.get("NB", "4"))
def pos2(m): return 6 + m if m < NB else POS2[(m - NB) % 6]
def kind2(m):
    if m < NF1: return ("F", m)
    if m < NF1 + 32: return ("O", (m - NF1) & 15, (m - NF1) >> 4) if XY else ("O", (m - NF1) >> 1, (m - NF1) & 1)
    return ("F", m - 32)
def s2_dma(m):
    if m >= 46: return None
    p = pos2(m); k = kind2(m)
    if k[0] == "O":
        return [m0set(p), salu("s_mov_b32", s_off, k[1] * 32 * 1024 + 128 * k[2], scc_w=False)], [dma(v_dA[j], S_WO, s_off, j * 1024) for j in range(4)]
    return [m0set(p), salu("s_mov_b32", s_off, k[1] * 32 * 1024, scc_w=False)], [dma(v_dB[j], S_WD, s_off, j * 1024) for j in range(4)]
dtok2 = {}; s2pre = {}
for m in range(6 + NB):
    s2pre[m] = s2_dma(m); dtok2[m] = s2pre[m][1][3]
class Seq:
    kind = "vmem"
    def __init__(self, l): self.l = l
    def __call__(self): return self.l
hld = {}; htok = {}
for kk in range(14):
    hld[kk] = [bload(hreg(kk, qb), v_lin, S_HC, s_hl, off=qb * 1024, mod="sc1") for qb in range(4)]
    htok[kk] = hld[kk][3]
e(salu("s_mov_b32", s_cnt, 0, scc_w=False))
em.label("L_pollH")
e(valu("v_cmp_ne_u32", "vcc", 1, v_flag)); e(salu("s_mul_i32", s_hb, s_w, 14 * 4096, scc_w=False)); e(nop(1))
e(raw("s_cbranch_vccz L_pollH_done", rd=["vcc"]))
e(salu("s_add_u32", s_cnt, s_cnt, 1)); e(scmp("s_cmp_ge_u32", s_cnt, 50000)); e(raw("s_cbranch_scc1 L_pollH_done", rd=["scc"]))
e(raw("s_sleep 4")); e(raw("buffer_load_ubyte %s, %s, %s, %s offen sc1" % (v_flag, v_fa, S_DBG, s_fo))); e(raw("s_waitcnt vmcnt(0)")); e(raw("s_branch L_pollH"))
em.label("L_pollH_done")
NH0 = 32
hsl = sorted([(pp, g) for pp in range(3) for g in (5, 13, 14, 15, 16, 17, 18, 27, 28, 9, 11)])[:NH0]
px = {}
for k, key in enumerate(hsl):
    px.setdefault(key, ([], []))
    px[key][0].append(hld[k >> 2][k & 3])
    if k & 3 == 0: px[key][1].append(salu("s_add_u32", s_hl, s_hb, (k >> 2) * 4096))
wsl = [(pp, g) for pp in range(2) for g in (6, 7, 8, 10, 12, 21, 22, 23)][:4 * NB] + [(2, 29), (2, 30), (2, 31), (3, 0), (3, 1), (3, 2), (3, 3), (3, 4)] + [(3, g) for g in range(5, 13)] + [(3, g) for g in range(24, 32)]
for k, key in enumerate(wsl):
    px.setdefault(key, ([], []))
    m, j = k >> 2, k & 3
    px[key][0].append(s2pre[m][1][j])
    if j == 0: px[key][1].extend(s2pre[m][0])
px[(3, 24)][1][:0] = [Wait(lg0=True), raw("s_barrier")]
lt = [V(48 + i) for i in range(4)]
rinv = [V(52 + i) for i in range(4)]
vxf = V(40, 8)
save = em.out; em.out = []
if LSUM:
    for qb in range(4): e(valu("v_accvgpr_read_b32", v_l1[qb], a_L[4 * qb]))
    if LSUM == 2: red4("v_add_f32", [v_l1[i] for i in range(4)], lt)
else:
    for qb in range(4): e(valu("v_add_f32", v_l1[qb], v_l1[qb], v_l0[qb]))
    red4("v_add_f32", [v_l1[i] for i in range(4)], lt)
e(valu("v_add_f32", lt[1], v_l1[0], v_l1[1])); e(valu("v_add_f32", lt[2], v_l1[2], v_l1[3])); e(valu("v_add_f32", lt[1], lt[1], lt[2]))
for qb in range(4): e(valu("v_rcp_f32", rinv[qb], v_l1[qb]))
e(valu("v_cmp_nge_f32", "vcc", hx(f2u(2.0 ** 30)), lt[1]))
for k in range(8): e(valu("v_accvgpr_read_b32", vxf[k], a_x[k]))
v_tr2 = V(56, 4); v_ow = V(62)
for u in range(4): e(valu("v_subrev_u32", v_tr2[u], RING, v_tr[0][u]))
e(valu("v_subrev_u32", v_ow, RING, v_lin)); e(valu("v_add_u32", v_ow, s_m0b, v_ow))
lred = em.out; em.out = save
for pp in range(4):
    for g in range(32):
        if STAMP == 4 and g in (0, 16): stamp()
        xm, xs = px.get((pp, g), ([], []))
        att_group(pp & 1, g, pp=pp, xmem=xm, xsal=xs, xvalu=(lred if (pp == 3 and g >= (30 if LSUM else 24)) else None))
for it in lred: e(it)
diag(); stamp()
if DUMP == "o":
    e(nop(7))
    for db in range(8):
        for qb in range(4):
            for k in range(4): e(valu("v_mul_f32", Of(db, qb)[k], Of(db, qb)[k], rinv[qb]))
    dump_regs([v_acc[i] for i in range(128)])

vm_ = V(60); vma = V(61)
class Mark:
    kind = "salu"
    def __init__(self, t): self.t = t
    def __call__(self):
        e(raw("s_cbranch_vccz L_nomark", rd=["vcc"])); e(valu("v_mov_b32", self.t, hx(MARK))); em.label("L_nomark"); return []
norm = [valu("v_and_b32", vma, 3, v_lane), valu("v_lshlrev_b32", vma, 12, vma)]
ow = []; ncv = []
for i in range(4):
    for qb in range(4):
        t = Of(2 * i, qb)
        for b in range(2):
            for k in range(4): norm.append(valu("v_mul_f32", Of(2 * i + b, qb)[k], Of(2 * i + b, qb)[k], rinv[qb]))
        for b in range(2):
            o = Of(2 * i + b, qb)
            for k in range(2): norm.append(valu("v_cvt_pk_bf16_f32", t[2 * b + k], o[2 * k], o[2 * k + 1]))
        ncv.append(norm[-1])
        if i == 0 and qb == 0: norm.append(Mark(t[0]))
        ow.append(dswrite("ds_write_b128", v_ow, t, i * 16384 + qb * 1024))
        if NB == 0: norm.append(ow[-1])
class ChkNorm:
    def __init__(self, k): self.k = k
    def __call__(self):
        assert ncv[self.k].tok, "O write %d scheduled before its data" % self.k
        return ow[self.k]
G0 = 4 * NF1
G1 = G0 + 128
mk = dsread("ds_read_b32", vm_, vma, 0)
class OBar:
    def __call__(self):
        assert all(w.tok for w in ow)
        em.wait(lg0=True); e(raw("s_barrier")); stamp(); e(mk); return []
class FbCheck:
    def __call__(self):
        em.wait(lg=mk)
        e(valu("v_cmp_eq_u32", "vcc", hx(MARK), vm_))
        e(scmp("s_cmp_lg_u32", s_retry, 0)); e(raw("s_cbranch_scc1 L_nofb", rd=["scc"]))
        e(nop(1))
        e(raw("s_cbranch_vccnz L_fallback", rd=["vcc"]))
        em.label("L_nofb")
        return []
def s2_acc(m, u, qb):
    k = kind2(m)
    if k[0] == "O": return v_acc[(((k[2] * 4 + u) * 4 + qb) * 4, 4)], k[1] == 0
    return Facc(u, qb), k[1] == 0
def s2_B(m, qb):
    k = kind2(m)
    if k[0] == "O": return v_B2[((k[1] & 1) * 16 + qb * 4, 4)]
    return hreg(k[1], qb)
def oread(s, qb): return dsread("ds_read_b128", v_B2[((s & 1) * 16 + qb * 4, 4)], v_lin, (s & 3) * 16384 + (s >> 2) * 4096 + qb * 1024)
extra = {}
if NB:
    OW0 = int(os.environ.get("OW0", "11")); OWN = int(os.environ.get("OWN", "1"))
    for k in range(16):
        gg = OW0 + k // OWN
        assert (k >> 2) >= NB or gg > 4 * (k >> 2) + 3
        extra.setdefault(gg, []).append((2 + (k % OWN) % 2, ChkNorm(k), 1))
GB = G0 - int(os.environ.get("OBAR", "3"))
extra.setdefault(GB, []).append((0, OBar(), 0))
r0 = [oread(0, qb) for qb in range(4)]
for qb in range(4): extra.setdefault(GB + (qb >> 1), []).append((1 + (qb & 1) if qb < 2 else (qb & 1) * 2, r0[qb], 1))
extra.setdefault(G0 - 1, []).append((2, [Wait(lg=r0), FbCheck()], 0))
if XY:
    for mm in range(1, 32):
        rr = [oread(mm & 15, qb) for qb in range(4)]
        for qb in range(4): extra.setdefault(G0 + 4 * (mm - 1) + (qb >> 1), []).append((2 + (qb & 1), rr[qb], 1))
        extra.setdefault(G0 + 4 * mm - 1, []).append((2, Wait(lg=rr), 0))
else:
    for s_ in range(1, 16):
        for qb in range(4): extra.setdefault(G0 + 8 * (s_ - 1) + 1 + qb, []).append((2, oread(s_, qb), 1))
class LateWait:
    def __init__(self, f): self.f = f
    def __call__(self): return Wait(vm=self.f())
vxa = V(48); vpoll = V(49); vfw = V(50)
vx, vy, vz = V(63), V(57), V(58)
save = em.out; em.out = []
xaddr(vxa, vx)
e(valu("v_and_b32", V(51), 7, v_lane)); e(valu("v_lshlrev_b32", V(51), 2, V(51)))
e(valu("v_add_u32", vfw, s_m0b, v_lin)); e(salu("s_lshl_b32", s_t0, s_w, 14)); e(salu("s_add_u32", s_t0, s_t0, RING)); e(valu("v_add_u32", V(55), s_t0, v_lin))
e(salu("s_lshl_b32", s_t3, s_w, 4)); e(salu("s_add_u32", s_t3, s_t3, s_g)); e(salu("s_lshl_b32", s_t3, s_t3, 13))
early = em.out; em.out = save
extra.setdefault(-1, []).append((0, LateWait(lambda: htok[0]), 0))
for kk in range(1, 14):
    g_ = 4 * kk if kk < NF1 else 4 * (kk + 32)
    extra.setdefault(g_ - 1, []).append((2, LateWait(lambda kk=kk: htok[kk]), 0))
HG0 = int(os.environ.get("HG0", "5")); HGS = int(os.environ.get("HGS", "1"))
for k in range(NH0, 56):
    prev = (k >> 2) - 8
    gfree = (4 * prev if prev < NF1 else 4 * (prev + 32)) + 5 + (k & 3)
    extra.setdefault(max(gfree, HG0 + HGS * (k - NH0)), []).append((2, Seq([salu("s_add_u32", s_hl, s_hb, (k >> 2) * 4096), hld[k >> 2][k & 3]]), 1))
def sreg(ip, qb, odd=0): return v_acc[(((2 * ip + odd) * 4 + qb) * 4, 4)]
sp = []; spst = []; stq = []
s_oob = S(19)
if os.environ.get("NOST") or os.environ.get("NOLD"): e(salu("s_mov_b32", s_oob, 524288, scc_w=False))
NSI = int(os.environ.get("NSI", "11"))
s_so = [s_t1, s_cnt, s_h0, s_h1]
for k in range(4): sp.append(salu("s_add_u32", s_so[k], s_t3, (k >> 1) * 65536 + (k & 1) * 4096))
for ip in range(4):
    for qb in range(4):
        t = sreg(ip, qb)
        for b in range(2):
            o = sreg(ip, qb, b)
            for k in range(2): sp.append(valu("v_cvt_pk_bf16_f32", t[2 * b + k], o[2 * k], o[2 * k + 1]))
        st = bstore(t, v_lin, S_SP, s_so[(ip >> 1) * 2 + (qb >> 1)], off=(qb & 1) * 2048 + (ip & 1) * 1024, mod="sc1")
        if os.environ.get("NOST") and not (ip == 3 and qb == 3): st = bstore(t, v_lin, S_SP, s_oob, off=0)
        spst.append((st, sp[-1]))
class St:
    def __init__(self, k): self.k = k
    def __call__(self):
        assert spst[self.k][1].tok
        return spst[self.k][0]
STG = int(os.environ.get("STG", "2"))
if XY:
    GY = G0 + 64
    XS0 = int(os.environ.get("XS0", "4")); XSG = int(os.environ.get("XSG", "5")); XFL = int(os.environ.get("XFL", "60"))
    for k in range(8): extra.setdefault(GY + XS0 + XSG * k, []).append((1, St(k), 1))
    class XFlag:
        def __call__(self): em.wait(vm=spst[7][0]); return flag_store(0)
    extra.setdefault(GY + XFL, []).append((1, XFlag(), 1))
    NSI = int(os.environ.get("NSI", "16"))
    for k in range(8, NSI): extra.setdefault(G1 + 3 + STG * (k - 8), []).append((2, St(k), 1))
    hx_ = sp.index(spst[7][1]) + 1
    spf = [Fill(sp[:hx_], GY + 2, GY + 14), Fill(sp[hx_:], G1 + 2, G1 + 10)]
else:
    for k in range(NSI): extra.setdefault(G1 + 3 + STG * k, []).append((2, St(k), 1))
    spf = [Fill(sp, G1 + 2, G1 + int(os.environ.get("CVL", "16")))]
FLG = int(os.environ.get("FLG", "0"))
if FLG:
    assert NSI == 16
    class YFlag:
        def __call__(self):
            em.wait(vm=spst[-1][0]); stamp()
            return ([] if XY else flag_store(0)) + flag_store(1)
    extra.setdefault(G1 + FLG, []).append((1, YFlag(), 1))
sti = [NSI]
def st_next(n=1):
    for _ in range(n):
        if sti[0] < 16: e(spst[sti[0]][0]); sti[0] += 1
def flag_store(h):
    return [valu("v_mov_b32", v_t, 1), raw("s_mov_b64 exec, 1", "salu", wr=["exec"]), bstore(v_t, None, S_FL, s_myfl, off=128 * h, mod="sc1"), raw("s_mov_b64 exec, -1", "salu", wr=["exec"])]
vpa = V(51)
s_done, s_new, s_sb = s_kK, s_kV, s_fo
def spl(gp, i): return A((gp * 2 + i) * 4, 4)
def flag_load(): return bload(vpoll, vpa, S_FL, s_t2, n=1, mod="sc1")
lblc = [0]
def issue_new():
    k = lblc[0]; lblc[0] += 1
    e(valu("v_cmp_eq_u32", "vcc", 1, vpoll)); e(nop(1))
    e(raw("s_andn2_b32 %s, vcc_lo, %s" % (s_new, s_done), "salu", rd=["vcc", s_done], wr=[s_new, "scc"])); e(salu("s_and_b32", s_new, s_new, 255))
    e(raw("s_cbranch_scc0 L_in%d_end" % k, rd=["scc"]))
    e(salu("s_or_b32", s_done, s_done, s_new))
    for gp in range(8):
        e(scmp("s_bitcmp1_b32", s_new, gp)); e(raw("s_cbranch_scc0 L_in%d_%d" % (k, gp), rd=["scc"]))
        e(salu("s_add_u32", s_t0, s_sb, gp * 8192) if not os.environ.get("NOLD") else salu("s_mov_b32", s_t0, s_oob, scc_w=False))
        for i in range(2): e(raw(bload(spl(gp, i), v_lin, S_SPC, s_t0, off=i * 1024, mod="sc1").text))
        em.label("L_in%d_%d" % (k, gp))
    em.label("L_in%d_end" % k)
pinit = [salu("s_lshl_b32", s_t2, s_cq, 3), salu("s_add_u32", s_t2, s_t2, s_cg), salu("s_lshl_b32", s_t2, s_t2, 7), salu("s_mov_b32", s_done, 0, scc_w=False),
         salu("s_lshl_b32", s_sb, s_cg, 16), salu("s_lshl_b32", s_new, s_w, 11), salu("s_add_u32", s_sb, s_sb, s_new)]
extra.setdefault(G1 - 8, []).append((1, pinit, 0))
class MidPoll:
    def __init__(self, tok): self.tok = tok
    def __call__(self):
        em.wait(vm=self.tok); issue_new()
        e(salu("s_mov_b32", s_hb, s_done, scc_w=False))
        midmark.append(em.vm_total)
        return []
midmark = []
if int(os.environ.get("MID", "1")):
    pt = flag_load()
    MIDPOST = int(os.environ.get("MIDPOST", "2"))
    if MIDPOST == 4: extra.setdefault(184 - int(os.environ.get("MID4", "6")), []).append((2, pt, 1))
    else: extra.setdefault(G1 - int(os.environ.get("MID0", "4")), []).append((2, pt, 1))
    if not MIDPOST: extra.setdefault(G1 + int(os.environ.get("MID1", "3")), []).append((0, MidPoll(pt), 0))
    elif MIDPOST != 4: extra.setdefault(G1 + 2, []).append((0, Wait(vm=pt), 0))
    if MIDPOST == 3:
        extra[G1 + 2].pop(); extra[G1 - int(os.environ.get("MID0", "4"))].pop()
if STAMP: extra.setdefault(G1, []).append((0, Stamp(), 0))
class Diag:
    def __call__(self): diag(); return []
if DIAG: extra.setdefault(G1, []).append((0, Diag(), 0))
vs = [Fill(norm, 0, GB - (3 if NB else 1)), Fill(early, G0 + 2, G0 + 40)] + spf
run_stream(46, s2_dma, dtok2, s2_acc, s2_B, extra, vs, posf=pos2, ring=v_ring2, first_dma=6 + NB, tr2=v_tr2, early_dma=int(os.environ.get('ED2', '0')))
stamp(); diag()
def static_loads():
    e(valu("v_cmp_eq_u32", "vcc", 1, vpoll)); e(nop(1))
    e(raw("s_and_b32 %s, vcc_lo, 255" % s_done, "salu", rd=["vcc"], wr=[s_done, "scc"]))
    for gp in range(8):
        e(salu("s_add_u32", s_t0, s_sb, gp * 8192)); e(scmp("s_bitcmp1_b32", s_done, gp)); e(salu("s_cselect_b32", s_t0, s_t0 if not os.environ.get("NOLD") else s_oob, 524288, scc_w=False, scc_r=True))
        for i in range(2): e(bload(spl(gp, i), v_lin, S_SPC, s_t0, off=i * 1024, mod="sc1"))
if MIDPOST == 4:
    em.wait(vm=pt); static_loads()
if MIDPOST == 3:
    st_next(16); fl3 = e(flag_load())
e(nop(5))
for qb in range(4):
    for u in range(4):
        if len(em.lgq) >= 12: em.wait(lg=em.lgq[-12])
        e(dswrite("ds_write_b128", vfw, Facc(u, qb), qb * 16384 + u * 1024))
    if qb & 1: st_next(int(os.environ.get("STW", "1")))
v_fr = V(96, 16); vE = V(64, 16); vs_ = V(80, 16)
for k in range(8): e(valu("v_mov_b64", vs_[(2 * k, 2)], 0))
if MIDPOST == 3:
    em.wait(vm=fl3); stamp()
    if not XY: e(flag_store(0))
    e(flag_store(1))
    static_loads()
em.wait(lg0=True)
e(raw("s_barrier"))
def frr(ws_, u): return sreg(ws_, u, 1)
for ws_ in range(4):
    for u in range(4):
        if len(em.lgq) >= 14: em.wait(lg=em.lgq[-14])
        e(dsread("ds_read_b128", frr(ws_, u), V(55), ws_ * 4096 + u * 1024))
st_next()
if MIDPOST:
    st_next(16)
    if MIDPOST == 1: static_loads()
em.wait(lg0=True)
for u in range(4):
    for k in range(2):
        e(valu("v_pk_add_f32", frr(0, u)[(2 * k, 2)], frr(0, u)[(2 * k, 2)], frr(1, u)[(2 * k, 2)]))
        e(valu("v_pk_add_f32", frr(2, u)[(2 * k, 2)], frr(2, u)[(2 * k, 2)], frr(3, u)[(2 * k, 2)]))
for u in range(4):
    for k in range(2): e(valu("v_pk_add_f32", v_fr[(4 * u + 2 * k, 2)], frr(0, u)[(2 * k, 2)], frr(2, u)[(2 * k, 2)]))
for k in range(16): e(valu("v_mul_f32", vE[k], hx(f2u(-math.log2(math.e))), v_fr[k]))
st_next()
for k in range(16): e(valu("v_exp_f32", vE[k], vE[k]))
for k in range(16): e(valu("v_add_f32", vE[k], "1.0", vE[k]))
st_next()
for k in range(16): e(valu("v_rcp_f32", vE[k], vE[k]))
for k in range(16): e(valu("v_mul_f32", v_fr[k], v_fr[k], vE[k]))
for k in range(8):
    e(valu("v_lshlrev_b32", vE[2 * k], 16, vxf[k])); e(valu("v_and_b32", vE[2 * k + 1], "0xffff0000", vxf[k]))
st_next()
stamp()
accn = [0]
def acc_pieces(mask, sprinkle=False):
    n = accn[0]; accn[0] += 1
    for gp in range(8):
        e(scmp("s_bitcmp1_b32", mask, gp)); e(raw("s_cbranch_scc0 L_acc%d_%d" % (n, gp), rd=["scc"]))
        for k2 in range(8): e(valu("v_accvgpr_read_b32", V(120 + k2), spl(gp, k2 >> 2)[k2 & 3]))
        for k in range(8):
            e(valu("v_lshlrev_b32", V(112 + 2 * (k & 3)), 16, V(120 + k))); e(valu("v_and_b32", V(113 + 2 * (k & 3)), "0xffff0000", V(120 + k)))
            e(valu("v_pk_add_f32", vs_[(2 * k, 2)], vs_[(2 * k, 2)], V(112 + 2 * (k & 3), 2)))
        em.label("L_acc%d_%d" % (n, gp))
        if sprinkle and gp & 1: st_next()
if midmark:
    n_y = em.vm_total - midmark[0]
    e(raw("s_waitcnt vmcnt(%d)" % n_y, "wait")); em._retire(em.vmq, n_y)
    acc_pieces(s_hb, sprinkle=True)
st_next(16)
if MIDPOST != 2: e(flag_load())
if MIDPOST != 3 and not FLG:
    em.wait(vm=spst[-1][0]); stamp()
    if not XY: e(flag_store(0))
    e(flag_store(1))
if MIDPOST == 2: static_loads(); e(flag_load())
s_prev = s_hl
e(salu("s_mov_b32", s_prev, s_done if MIDPOST else 0, scc_w=False)); e(salu("s_mov_b32", s_cnt, 0, scc_w=False))
em.label("L_fin_loop")
em.wait(vm0=True)
issue_new()
e(raw(flag_load().text))
acc_pieces(s_prev)
e(salu("s_mov_b32", s_prev, s_new, scc_w=False))
e(salu("s_add_u32", s_cnt, s_cnt, 1)); e(scmp("s_cmp_ge_u32", s_cnt, 50000)); e(raw("s_cbranch_scc1 L_fin_done", rd=["scc"]))
e(scmp("s_cmp_lg_u32", s_prev, 0)); e(raw("s_cbranch_scc1 L_fin_loop", rd=["scc"]))
e(scmp("s_cmp_lg_u32", s_done, 255)); e(raw("s_cbranch_scc1 L_fin_loop", rd=["scc"]))
em.label("L_fin_done")
if DUMP == "fin": dump_regs([vs_[i] for i in range(16)] + [v_fr[i] for i in range(16)])
for k in range(8): e(valu("v_pk_fma_f32", vE[(2 * k, 2)], vs_[(2 * k, 2)], v_fr[(2 * k, 2)], vE[(2 * k, 2)]))
for k in range(8): e(valu("v_cvt_pk_bf16_f32", vxf[k], vE[2 * k], vE[2 * k + 1]))
for u in range(4): e(bstore(vxf[(2 * u, 2)], vxa, S_OUT, 0, off=32 * u))
stamp(); diag_out()
em.label("L_end")
e(raw("s_endpgm"))
main_end = len(em.out)

em.lgq, em.vmq, em.pend = [], [], {}
em.label("L_sigH_side")
e(salu("s_lshl_b32", s_t1, s_qb, 3)); e(salu("s_add_u32", s_t1, s_t1, s_g))
e(raw("s_mov_b64 exec, 2", "salu", wr=["exec"]))
e(raw("buffer_store_byte %s, off, %s, %s sc1" % (v_fa, S_DBG, s_t1)))
e(raw("s_mov_b64 exec, -1", "salu", wr=["exec"]))
e(raw("s_branch L_sigH_ret"))
em.label("L_fallback")
e(raw("s_waitcnt vmcnt(0) lgkmcnt(0)")); em._retire(em.vmq, 0); em._retire(em.lgq, 0)
for k in range(8): e(valu("v_accvgpr_write_b32", a_x[k], V(40 + k)))
e(salu("s_mov_b32", s_retry, 1, scc_w=False))
e(salu("s_mov_b32", S_H[2], 0, scc_w=False))
e(salu("s_mov_b32", s_kK, 0, scc_w=False))
fm = [V(40 + i) for i in range(4)]
for i in range(4): e(valu("v_mov_b32", fm[i], "0xff800000"))
em.label("L_fb_loop")
e(raw("s_barrier"))
e(salu("s_add_u32", "m0", s_m0b, 4 * 16384)); e(nop(0))
for j in range(4): e(dma(v_kd[j], S_K, s_kK, j * 1024))
em.wait(vm0=True)
e(raw("s_barrier"))
for kb in range(4):
    rr = [e(dsread("ds_read_b128", fr(ds), v_ka[ds], kb * 4096)) for ds in range(4)]
    em.wait(lg0=True)
    for ds in range(4):
        for qb in range(4):
            d = v_S[0][(qb * 4, 4)]
            e(mfma(d, fr(ds), Qf(qb, ds), 0 if ds == 0 else d))
    e(nop(7))
    for qb in range(4):
        e(valu("v_max3_f32", fm[qb], fm[qb], v_S[0][qb * 4], v_S[0][qb * 4 + 1])); e(valu("v_max3_f32", fm[qb], fm[qb], v_S[0][qb * 4 + 2], v_S[0][qb * 4 + 3]))
    e(nop(2))
e(salu("s_add_u32", s_kK, s_kK, 16384)); e(scmp("s_cmp_lt_u32", s_kK, 524288)); e(raw("s_cbranch_scc1 L_fb_loop", rd=["scc"]))
red4("v_max_f32", fm, [V(44 + i) for i in range(4)])
for qb in range(4):
    for k in range(4): e(valu("v_sub_f32", v_negm[qb * 4 + k], 0, fm[qb]))
e(raw("s_barrier"))
for m in (64, 65, 66):
    sa, dm = s1_dma(m); e(sa)
    for d in dm: e(d)
e(raw("s_waitcnt vmcnt(0)"))
e(raw("s_branch L_att_start"))
em.label("L_code_end")
e(raw("s_endpgm"))

probs = check_hazards(em.out, "main") + loop_probs
for p in probs: print("; HAZARD", p, file=sys.stderr)
assert not probs

hdr = open(os.path.join(os.path.dirname(os.path.abspath(__file__)), "header.txt")).read()
print(hdr.rstrip())
print("; @launch grid=(256,1,1) block=(256,1,1) lds=163840")
print('.amdgcn_target "amdgcn-amd-amdhsa--gfx950"\n.text\n.globl %s\n.p2align 8\n.type %s,@function\n%s:' % (KN, KN, KN))
print(em.text())
print('.section .rodata,"a"\n.p2align 6\n.amdhsa_kernel %s' % KN)
print("  .amdhsa_next_free_vgpr 512\n  .amdhsa_next_free_sgpr 102\n  .amdhsa_accum_offset 256\n  .amdhsa_group_segment_fixed_size 0\n  .amdhsa_kernarg_size 96\n  .amdhsa_user_sgpr_count 2\n  .amdhsa_user_sgpr_kernarg_segment_ptr 1\n  .amdhsa_system_sgpr_workgroup_id_x 1\n.end_amdhsa_kernel")
```

```python
import sys, os, math, struct
from asmgen import *

KN = "recurrent_scan__gqa_block_cached__geglu_ffn__prompt_kernel"
DUMP = os.environ.get("DUMP", "")
STAMP = int(os.environ.get("STAMP", "0"))
GEL_END = int(os.environ.get("GEL_END", "247")); GEL_EXTRA = int(os.environ.get("GEL_EXTRA", "360"))

def f2u(x): return struct.unpack("<I", struct.pack("<f", x))[0]
def hx(x): return "0x%x" % (x & 0xffffffff)

S_X, S_K, S_V, S_WQ, S_WO, S_WG, S_WU, S_WD, S_OUT, S_DBG, S_H, S_SP = [S(4 + 4 * i, 4) for i in range(12)]
s_g, s_qb, s_w = S(52), S(53), S(54)
s_t0, s_t1, s_t2, s_t3 = S(55), S(56), S(57), S(58)
s_m0b = S(59)
s_off = S(60)
s_cnt = S(61)
s_kK, s_kV = S(62), S(63)
s_retry = S(64)
s_h0, s_h1 = S(65), S(66)
s_hl = S(67); s_hb = S(78); s_myfl = S(79); s_wdd = S(67); s_sig = S(78)
s_ka = S(68, 16); s_kb = S(84, 8)
s_pair = S(92, 2); s_pair2 = S(94, 2)
S_DMP = S(96, 4)
s_cq, s_cg = S(76), S(77)
S_HC = S(80, 4)
S_SPC = S(84, 4)
S_XC = S(88, 4)
s_st = S(68, 4)

v_tid, v_lane, v_lin, v_t = V(0), V(1), V(2), V(3)
v_tr = [V(4, 4), V(8, 4)]
v_dA, v_dB = V(12, 4), V(16, 4)
v_ka = V(20, 4); v_va = V(24, 8); v_kd = V(32, 4); v_vd = V(36, 2)
v_wl = V(38)
v_c = V(39)
v_l0, v_l1 = V(40, 4), V(44, 4)
v_lsave = V(16, 4)
v_negm = V(48, 16)
v_S = [V(64, 32), V(96, 32)]
v_acc = V(128, 128)
a_ring = A(128, 32)
a_B = A(160, 32)
a_Q = A(0, 64)
a_F = A(0, 64)
a_x = A(248, 8)
LSUM = int(os.environ.get('LSUM', '1'))
a_L = A(224, 16); a_ones = A(240, 4)

RING = 65536
MARK = 0x7fc17fc1
WS_SP = 8 << 20
WS_DUMP = 32 << 20
WS_FL = (7 << 20) + (512 << 10)
S_FLZ = S(4, 4)
S_FL = S(4, 4)

em = Em()
e = em.e

def srd(dst, lo, hi, size, off_s=None):
    if off_s is None:
        e(salu("s_mov_b32", dst[0], lo, scc_w=False)); e(salu("s_mov_b32", dst[1], hi, scc_w=False))
    else:
        e(salu("s_add_u32", dst[0], lo, off_s)); e(salu("s_addc_u32", dst[1], hi, 0, scc_r=True))
    e(salu("s_mov_b32", dst[2], hx(size), scc_w=False)); e(salu("s_mov_b32", dst[3], "0x20000", scc_w=False))

DIAG = int(os.environ.get("DIAG", "0"))
HC_OFF = 128
diag_regs = [S(100, 2), S(70, 2), S(72, 2), S(74, 2), S(96, 2), S(98, 2), S(68, 2)] if DIAG != 2 else [S(100, 2), S(96, 2), S(98, 2), S(94, 2), S(70, 2), S(72, 2), S(74, 2), S(68, 2)]
diag_n = [0]
def diag(which=1, last=False):
    if not DIAG or (which != DIAG and which != 0): return
    k = diag_n[0]; diag_n[0] += 1
    e(raw("%s %s" % ("s_memtime" if (os.environ.get("CYC") and not last) else "s_memrealtime", diag_regs[k]), "other", wr=[diag_regs[k]]))
    if k > 0: e(raw("s_waitcnt lgkmcnt(0)", "wait")); em._retire(em.lgq, 0)
AMP = os.environ.get("AMP")
def diag_out():
    if not DIAG: return
    diag(0, last=True)
    if AMP:
        k = int(AMP); last = diag_regs[diag_n[0] - 1]
        e(salu("s_sub_u32", s_t0, diag_regs[k][0], diag_regs[int(os.environ.get("AMP0", "0"))][0]))
        if os.environ.get("CYC"): e(salu("s_lshr_b32", s_t0, s_t0, 2))
        else: e(salu("s_lshl_b32", s_t0, s_t0, 2))
        em.label("L_amp")
        e(raw("s_memrealtime s[56:57]")); e(raw("s_waitcnt lgkmcnt(0)"))
        e(salu("s_sub_u32", s_t1, s_t1, last[0])); e(scmp("s_cmp_lt_u32", s_t1, s_t0)); e(raw("s_cbranch_scc1 L_amp", rd=["scc"]))
        return
    e(scmp("s_cmp_lg_u32", s_w, 0)); e(raw("s_cbranch_scc1 L_end", rd=["scc"]))
    e(raw("s_mov_b64 exec, 1", "salu", wr=["exec"]))
    e(salu("s_not_b32", s_t0, diag_regs[0][0]))
    for k in range(diag_n[0]):
        e(valu("v_mov_b32", V(4 + k), s_t0 if k == 0 else diag_regs[k][0]))
        e(raw("buffer_atomic_umax %s, off, %s, 0 offset:%d sc1" % (V(4 + k), S_DBG, 4 * k)))
    e(valu("v_mov_b32", V(12), diag_regs[0][0]))
    e(raw("buffer_atomic_umax %s, off, %s, 0 offset:%d sc1" % (V(12), S_DBG, 4 * 9)))
stamp_n = [0]
def stamp():
    if not STAMP: return
    k = stamp_n[0]; stamp_n[0] += 1
    e(raw("s_memtime %s" % S(68, 2), "other", wr=[S(68, 2)]))
    e(raw("s_memrealtime %s" % S(70, 2), "other", wr=[S(70, 2)]))
    e(raw("s_waitcnt lgkmcnt(0)", "wait")); em._retire(em.lgq, 0)
    for i in range(4): e(valu("v_writelane_b32", v_c, S(68 + i), i, rmw=True))
    e(salu("s_lshl_b32", S(72), S(2), 2)); e(salu("s_add_u32", S(72), S(72), s_w)); e(salu("s_lshl_b32", S(72), S(72), 9))
    e(salu("s_mov_b64", S(74, 2), "exec", scc_w=False)); e(raw("s_mov_b64 exec, 15", "salu", wr=["exec"]))
    e(valu("v_lshlrev_b32", v_t, 2, v_lane))
    e(bstore(v_c, v_t, S_DMP, S(72), off=k * 16))
    e(raw("s_mov_b64 exec, %s" % S(74, 2), "salu", wr=["exec"]))
    e(valu("v_lshlrev_b32", v_t, 7, v_lane))

def dump_regs(regs, finish=True):
    em.wait(lg0=True, vm0=True)
    e(nop(7)); e(nop(7))
    n = len(regs)
    e(salu("s_lshl_b32", s_t0, S(2), 2)); e(salu("s_add_u32", s_t0, s_t0, s_w)); e(salu("s_mul_i32", s_t0, s_t0, n * 256, scc_w=False))
    e(valu("v_lshlrev_b32", v_t, 2, v_lane))
    for k, r in enumerate(regs):
        e(bstore(r, v_t, S_DMP, s_t0, off=0))
        e(salu("s_add_u32", s_t0, s_t0, 256))
        if k % 32 == 31: em.wait(vm0=True)
    em.wait(vm0=True)
    if finish: e(raw("s_endpgm"))

def red4(op, x, tmp):
    for sw in ("v_permlane32_swap_b32", "v_permlane16_swap_b32"):
        for a, t in zip(x, tmp): e(valu("v_mov_b32", t, a))
        if len(x) < 3: e(nop(1))
        for a, t in zip(x, tmp): e(valu(sw, a, t))
        for a, t in zip(x, tmp): e(valu(op, a, a, t))

e(scmp("s_cmp_ge_u32", S(2), 256)); e(raw("s_cbranch_scc1 L_end", rd=["scc"]))
diag(0)
i0 = e(I("s_load_dwordx16 %s, s[0:1], 0" % s_ka, "smem", wr=s_ka.regs()))
i1 = e(I("s_load_dwordx8 %s, s[0:1], 64" % s_kb, "smem", wr=s_kb.regs()))
vq, vG, vr, vc_, vx, vy, vz = [V(40 + i) for i in range(7)]
e(raw("s_getpc_b64 %s" % s_pair2, "salu", wr=[s_pair2]))
em.label("L_pc0")
CT0 = int(os.environ.get("CT0", "64"))
if CT0:
    e(valu("v_sub_u32", V(55), 255, v_tid)); e(valu("v_cmp_gt_u32", "vcc", CT0, V(55))); e(valu("v_lshlrev_b32", V(55), 7, V(55))); e(nop(0))
    e(raw("s_and_saveexec_b64 s[4:5], vcc", "salu", wr=["exec"], rd=["vcc"])); e(raw("s_cbranch_execz L_ct0"))
    e(raw("global_load_dword v55, v55, %s" % s_pair2))
    em.label("L_ct0")
    e(raw("s_mov_b64 exec, -1", "salu", wr=["exec"]))
MAP2 = int(os.environ.get("MAP2", "0"))
s_i = S(65)
if MAP2:
    e(salu("s_and_b32", s_g, S(2), 3)); e(salu("s_lshl_b32", s_g, s_g, 1)); e(salu("s_bfe_u32", s_t0, S(2), "0x10003")); e(salu("s_add_u32", s_g, s_g, s_t0))
    e(salu("s_bfe_u32", s_qb, S(2), "0x10002")); e(salu("s_lshl_b32", s_qb, s_qb, 4)); e(salu("s_lshr_b32", s_t0, S(2), 4)); e(salu("s_add_u32", s_qb, s_qb, s_t0))
else:
    e(salu("s_and_b32", s_g, S(2), 7)); e(salu("s_lshr_b32", s_qb, S(2), 3))
def sx(dst): return salu("s_lshr_b32", dst, S(2), 4 if MAP2 else 3)
TL = "-1" if MAP2 else "0xffffffff"
e(valu("v_and_b32", v_lane, 63, v_tid))
e(valu("v_lshrrev_b32", v_t, 6, v_tid))
e(valu("v_lshlrev_b32", v_lin, 4, v_lane))
e(valu("v_readfirstlane_b32", s_w, v_t))
e(valu("v_and_b32", vq, 15, v_lane)); e(valu("v_lshrrev_b32", vG, 4, v_lane))
vxo = V(47)
e(valu("v_lshl_add_u32", vxo, v_t, 4, vq)); e(valu("v_lshlrev_b32", vxo, 10, vxo)); e(valu("v_lshl_add_u32", vxo, vG, 4, vxo))
vwg, vwq, vcw = V(52), V(53), V(54)
e(salu("s_mul_i32", s_t1, s_g, 448, scc_w=False)); e(salu("s_and_b32", s_t1, s_t1, hx(~127)))
e(salu("s_and_b32", s_t2, s_w, 1)); e(sx(s_t3)); e(salu("s_lshl_b32", s_t3, s_t3, 1)); e(salu("s_add_u32", s_t2, s_t2, s_t3))
e(salu("s_mul_i32", s_t2, s_t2, (16 if MAP2 else 8) * 3584, scc_w=False)); e(salu("s_add_u32", s_t1, s_t1, s_t2))
e(valu("v_lshrrev_b32", vx, 2, v_lane)); e(valu("v_mul_u32_u24", vx, 3584, vx)); e(valu("v_and_b32", vz, 3, v_lane)); e(valu("v_lshl_add_u32", vx, vz, 7, vx))
e(valu("v_add_u32", vwg, s_t1, vx))
e(salu("s_lshr_b32", s_t2, S(2), 3)); e(salu("s_lshl_b32", s_t2, s_t2, 2)); e(salu("s_add_u32", s_t2, s_t2, s_w)); e(salu("s_lshl_b32", s_t3, s_t2, 8))
e(valu("v_lshlrev_b32", vcw, 7, v_lane)); e(valu("v_add_u32", vcw, s_t3, vcw))
e(salu("s_lshl_b32", s_t0, s_qb, 16))
em.wait(lg0=True)
diag(2)
srd(S_X, s_ka[0], s_ka[1], 65536, s_t0)
v_xp = V(64, 64)
XFIRST = int(os.environ.get("XFIRST", "12"))
xl = [bload(v_xp[(4 * ks, 4)], vxo, S_X, 0, off=64 * ks) for ks in range(16)]
for ks in range(XFIRST): e(xl[ks])
e(scmp("s_cmp_lt_u32", s_w, 2)); e(salu("s_cselect_b64", s_pair, s_ka[(12, 2)], s_ka[(14, 2)], scc_w=False, scc_r=True))
e(raw("s_mov_b64 exec, " + TL, "salu", wr=["exec"]))
e(I("global_load_dword %s, %s, %s" % (V(48), vwg, s_pair), "vmem", rd=vwg.regs() + s_pair.regs(), wr=V(48).regs()))
e(raw("s_mov_b64 exec, 3", "salu", wr=["exec"]))
e(I("global_load_dword %s, %s, %s" % (V(49), vcw, s_pair2), "vmem", rd=vcw.regs() + s_pair2.regs(), wr=V(49).regs()))
e(raw("s_mov_b64 exec, -1", "salu", wr=["exec"]))
e(sx(s_t2)); e(salu("s_lshl_b32", s_t2, s_t2, 2)); e(salu("s_add_u32", s_t2, s_t2, s_w))
e(salu("s_lshl_b32", s_t2, s_t2, 16 if MAP2 else 15)); e(salu("s_lshl_b32", s_t3, s_g, 10)); e(salu("s_add_u32", s_t2, s_t2, s_t3))
e(valu("v_lshrrev_b32", vx, 3, v_lane)); e(valu("v_lshlrev_b32", vx, 13, vx)); e(valu("v_and_b32", vz, 7, v_lane)); e(valu("v_lshl_add_u32", vx, vz, 7, vx))
e(valu("v_add_u32", vwq, s_t2, vx))
e(salu("s_lshr_b32", s_t2, S(2), 6)); e(salu("s_and_b32", s_t3, S(2), 7)); e(salu("s_lshl_b32", s_t3, s_t3, 2)); e(salu("s_add_u32", s_t2, s_t2, s_t3))
e(salu("s_lshl_b32", s_t0, s_t2, 16))
srd(S_OUT, s_kb[2], s_kb[3], 65536, s_t0)
e(salu("s_lshl_b32", s_t1, s_g, 19))
srd(S_K, s_ka[2], s_ka[3], 524288, s_t1)
srd(S_V, s_ka[4], s_ka[5], 524288, s_t1)
srd(S_WO, s_ka[8], s_ka[9], 524288, s_t1)
srd(S_WQ, s_ka[6], s_ka[7], 4 << 20)
srd(S_WG, s_ka[12], s_ka[13], 1835008)
srd(S_WU, s_ka[14], s_ka[15], 1835008)
srd(S_WD, s_kb[0], s_kb[1], 1835008)
srd(S_DBG, s_kb[4], s_kb[5], 256)
e(salu("s_mul_i32", s_t1, s_qb, 229376, scc_w=False))
srd(S_H, s_kb[6], s_kb[7], 229376, s_t1)
e(salu("s_lshl_b32", s_t1, s_qb, 19)); e(salu("s_add_u32", s_t1, s_t1, hx(WS_SP)))
srd(S_SP, s_kb[6], s_kb[7], 524288, s_t1)
if DUMP or STAMP:
    e(salu("s_mov_b32", s_t1, hx(WS_DUMP), scc_w=False))
    srd(S_DMP, s_kb[6], s_kb[7], 200 << 20, s_t1)
e(salu("s_mov_b64", s_pair, S(90, 2), scc_w=False))
e(salu("s_lshl_b32", s_t0, s_t2, 16))
srd(S_XC, s_ka[0], s_ka[1], 65536, s_t0)
e(salu("s_mul_i32", s_t1, s_t2, 229376, scc_w=False))
srd(S_HC, s_pair[0], s_pair[1], 229376, s_t1)
e(salu("s_lshl_b32", s_t1, s_t2, 19)); e(salu("s_add_u32", s_t1, s_t1, hx(WS_SP)))
srd(S_SPC, s_pair[0], s_pair[1], 524288, s_t1)
e(salu("s_mov_b32", s_cq, s_t2, scc_w=False)); e(salu("s_bfe_u32", s_cg, S(2), "0x30003"))
e(salu("s_lshl_b32", s_myfl, s_qb, 2)); e(salu("s_add_u32", s_myfl, s_myfl, s_w)); e(salu("s_lshl_b32", s_myfl, s_myfl, 8))
e(salu("s_lshl_b32", s_t1, s_g, 2)); e(salu("s_add_u32", s_myfl, s_myfl, s_t1))
e(salu("s_lshl_b32", s_m0b, s_w, 12)); e(salu("s_add_u32", s_m0b, s_m0b, RING))
e(salu("s_and_b32", s_t1, s_g, 1)); e(salu("s_lshl_b32", s_t1, s_t1, 2)); e(salu("s_add_u32", s_t1, s_t1, s_w))
e(scmp("s_cmp_eq_u32", s_w, 3)); e(salu("s_cselect_b32", s_t1, 3, s_t1, scc_w=False, scc_r=True))
e(salu("s_lshr_b32", s_t2, s_g, 1)); e(salu("s_mul_i32", s_t2, s_t2, 7, scc_w=False)); e(salu("s_add_u32", s_t1, s_t1, s_t2))
e(salu("s_lshl_b32", s_h0, s_t1, 13)); e(salu("s_add_u32", s_h1, s_h0, 4096))
e(salu("s_lshl_b32", s_t1, s_t1, 7))
e(salu("s_lshl_b32", s_t2, s_g, 2)); e(salu("s_add_u32", s_t2, s_t2, s_w)); e(salu("s_lshl_b32", s_t2, s_t2, 8))

def dma_voffs(dst, stride, colbase_s, perm):
    for j in range(4):
        e(valu("v_bfe_u32", vx, v_lane, 1, 2)); e(valu("v_bfe_u32", vy, v_lane, 4, 1))
        e(valu("v_xor_b32", vx, vx, vy))
        if j & 1: e(valu("v_xor_b32", vx, 2, vx))
        e(valu("v_and_b32", vy, 1, v_lane)); e(valu("v_lshlrev_b32", vy, 4, vy)); e(valu("v_lshl_add_u32", vx, vx, 5, vy))
        if not perm:
            e(valu("v_lshrrev_b32", vy, 3, v_lane)); rowadd = 8 * j
        else:
            e(valu("v_bfe_u32", vy, v_lane, 3, 2)); e(valu("v_bfe_u32", vz, v_lane, 5, 1)); e(valu("v_lshl_add_u32", vy, vz, 4, vy)); rowadd = 4 * j
        e(valu("v_mul_u32_u24", vy, stride, vy))
        e(valu("v_add3_u32", vx, vx, vy, colbase_s))
        e(valu("v_add_u32", dst[j], rowadd * stride - j * 1024, vx))

dma_voffs(v_dA, 3584, s_t1, False)
dma_voffs(v_dB, 8192, s_t2, False)

def m0set(p): return salu("s_add_u32", "m0", s_m0b, p * 16384) if p < 6 else salu("s_sub_u32", "m0", s_m0b, RING - (p - 6) * 16384)
def s1_dma(m):
    p = m % 6
    if m < 32:
        s, h = m >> 1, m & 1
        return [m0set(p), salu("s_mov_b32", s_off, s * 32 * 3584, scc_w=False)], [dma(v_dA[j], S_WU if h else S_WG, s_off, j * 1024) for j in range(4)]
    if m < 64:
        s, h = (m - 32) >> 1, m & 1
        return [m0set(p), salu("s_mov_b32", s_off, s * 32 * 8192 + 128 * h, scc_w=False)], [dma(v_dB[j], S_WQ, s_off, j * 1024) for j in range(4)]
    if m == 64:
        return [m0set(p), salu("s_mov_b32", s_off, 0, scc_w=False)], [dma(v_kd[j], S_K, s_off, j * 1024) for j in range(4)]
    if m == 65:
        return [m0set(p), salu("s_mov_b32", s_off, 8192, scc_w=False)], [dma(v_kd[j], S_K, s_off, j * 1024) for j in range(4)]
    if m == 66:
        return [m0set(p), salu("s_mov_b32", s_off, 0, scc_w=False)], [dma(v_vd[j & 1], S_V, s_off, j * 1024) for j in range(4)]
    return None
dtok = {}
ln_v = []
for m in range(6):
    sa, dm = s1_dma(m)
    ln_v.append(sa); ln_v += dm
    dtok[m] = dm[3]
def xaddr(dst, tmp):
    e(valu("v_and_b32", dst, 15, v_lane)); e(salu("s_lshl_b32", s_t0, s_w, 4)); e(valu("v_add_u32", dst, s_t0, dst)); e(valu("v_lshlrev_b32", dst, 10, dst))
    e(valu("v_lshrrev_b32", tmp, 4, v_lane)); e(valu("v_lshl_add_u32", dst, tmp, 3, dst)); e(salu("s_lshl_b32", s_t0, s_cg, 7)); e(valu("v_add_u32", dst, s_t0, dst))
WQT = int(os.environ.get("WQT", "0"))
wqt = [raw("s_mov_b64 exec, " + TL, "salu", wr=["exec"]), bload(V(46), vwq, S_WQ, 0, n=1), raw("s_mov_b64 exec, -1", "salu", wr=["exec"])]
if WQT == 0: ln_v.append(wqt)
LNPRE = int(os.environ.get("LNPRE", "0"))
lv = [0]
def ln_issue(n=1):
    k = 0
    while k < n and lv[0] < len(ln_v):
        it = ln_v[lv[0]]; lv[0] += 1
        e(it)
        if not isinstance(it, list): k += 1
e(valu("v_bfe_u32", vr, v_lane, 2, 2)); e(valu("v_and_b32", vc_, 3, v_lane))
e(valu("v_lshlrev_b32", vx, 10, vG)); e(valu("v_lshl_add_u32", vx, vr, 7, vx)); e(valu("v_lshl_add_u32", vx, vc_, 3, vx)); e(valu("v_add_u32", vx, s_m0b, vx))
e(valu("v_lshrrev_b32", vy, 1, vr)); e(valu("v_and_b32", vz, 1, vG)); e(valu("v_lshl_add_u32", vy, vz, 1, vy))
for u in range(4):
    e(valu("v_xor_b32", vz, u, vy)); e(valu("v_lshl_add_u32", v_tr[0][u], vz, 5, vx)); e(valu("v_add_u32", v_tr[1][u], 3 * 16384, v_tr[0][u]))
e(valu("v_xor_b32", vy, vG, vq))
for ds in range(4):
    e(valu("v_xor_b32", vz, 4 * ds, vy)); e(valu("v_lshlrev_b32", vz, 4, vz)); e(valu("v_lshl_add_u32", vz, vq, 8, vz)); e(valu("v_add_u32", v_ka[ds], RING + 4 * 16384, vz))
e(valu("v_lshl_add_u32", vx, vG, 2, vr)); e(valu("v_and_b32", vy, 7, vx)); e(valu("v_lshlrev_b32", vx, 8, vx)); e(valu("v_lshl_add_u32", vx, vc_, 3, vx)); e(valu("v_add_u32", vx, RING, vx))
for db in range(8):
    e(valu("v_xor_b32", vz, db, vy)); e(valu("v_lshl_add_u32", v_va[db], vz, 5, vx))
e(salu("s_lshl_b32", s_t1, s_w, 12))
e(valu("v_lshlrev_b32", vx, 8, vG)); e(valu("v_add_u32", vx, s_t1, vx))
for j in range(4):
    e(valu("v_add_u32", vy, 4 * j, vG)); e(valu("v_xor_b32", vy, vy, vq)); e(valu("v_lshl_add_u32", v_kd[j], vy, 4, vx))
e(valu("v_and_b32", vz, 1, v_lane)); e(valu("v_lshl_add_u32", vx, vz, 4, vx))
for j in range(2):
    e(valu("v_add_u32", vy, 4 * j, vG)); e(valu("v_lshrrev_b32", vz, 1, vq)); e(valu("v_xor_b32", vy, vy, vz)); e(valu("v_lshl_add_u32", v_vd[j], vy, 5, vx))
e(salu("s_lshl_b32", s_t1, s_w, 14)); e(valu("v_add_u32", v_wl, s_t1, v_lin))
e(salu("s_mov_b32", s_retry, 0, scc_w=False))
for ks in range(XFIRST, 16): e(xl[ks])
e(salu("s_mov_b32", s_t1, hx(WS_FL), scc_w=False))
srd(S_FL, s_pair[0], s_pair[1], 32768, s_t1)
if WQT == 1: e(wqt)
ln_issue(LNPRE)
stamp()

v_f = V(128, 128)
LNM = int(os.environ.get("LNM", "1"))
vsum, vtmp, vmb, vdm = V(40), V(41), V(42), V(43)
vneg = V(56, 2)
diag(2)
if LNM:
    d1, d2 = V(56, 4), V(60, 4)
    e(valu("v_mov_b32", vtmp, "0x3f803f80"))
    for i in range(4): e(valu("v_accvgpr_write_b32", a_ones[i], vtmp))
    e(valu("v_and_b32", vtmp, 3, v_lane))
    for r in range(1, 4): e(valu("v_cmp_eq_u32", S(68 + 2 * r, 2), r, vtmp))
    e(valu("v_bfe_u32", vtmp, v_lane, 2, 2)); e(valu("v_lshrrev_b32", vmb, 4, v_lane)); e(valu("v_cmp_eq_u32", S(68, 2), vtmp, vmb))
    LND = int(os.environ.get("LND", "4"))
    for ks in range(16):
        em.wait(vm=xl[ks])
        if ks == 15: diag(2)
        x4 = v_xp[(4 * ks, 4)]
        e(mfma(d1, a_ones, x4, 0 if ks == 0 else d1))
        if ks >= LND: ln_issue(1)
        for k in range(2):
            p = 4 * ks + k
            e(valu("v_lshlrev_b32", v_f[2 * p], 16, v_xp[p])); e(valu("v_and_b32", v_f[2 * p + 1], "0xffff0000", v_xp[p]))
        e(mfma(d2, x4, x4, 0 if ks == 0 else d2))
        for k in range(2, 4):
            p = 4 * ks + k
            e(valu("v_lshlrev_b32", v_f[2 * p], 16, v_xp[p])); e(valu("v_and_b32", v_f[2 * p + 1], "0xffff0000", v_xp[p]))
    if STAMP == 3: stamp()
    ln_issue(int(os.environ.get("LN_FIRST", "0")))
    diag(2)
    if STAMP == 3: stamp()
    e(nop(2))
    e(valu("v_mul_f32", vsum, hx(f2u(1.0 / 512)), d1[0]))
    e(valu("v_cvt_pk_bf16_f32", vmb, vsum, vsum)); e(valu("v_lshlrev_b32", vmb, 16, vmb))
    e(valu("v_mov_b32", vdm, vsum))
    for r in range(1, 4): e(valu("v_cndmask_b32", d2[0], d2[0], d2[r], S(68 + 2 * r, 2)))
    e(valu("v_cndmask_b32", vsum, 0, d2[0], S(68, 2)))
    red4("v_add_f32", [vsum], [vtmp])
    e(valu("v_mul_f32", vsum, hx(f2u(1.0 / 512)), vsum))
    e(valu("v_fma_f32", vsum, "-" + str(vdm), vdm, vsum, extra_rd=vdm.regs()))
    if STAMP == 3: stamp()
else:
    acc = [V(56, 2), V(58, 2), V(60, 2), V(62, 2)]
    for ks in range(16):
        em.wait(vm=xl[ks])
        if ks == 15: diag(2)
        for k in range(4):
            p = 4 * ks + k
            e(valu("v_lshlrev_b32", v_f[2 * p], 16, v_xp[p])); e(valu("v_and_b32", v_f[2 * p + 1], "0xffff0000", v_xp[p]))
        for k in range(4):
            p = 4 * ks + k
            if ks == 0: e(valu("v_mov_b64", acc[k], v_f[(2 * p, 2)]))
            else: e(valu("v_pk_add_f32", acc[k], acc[k], v_f[(2 * p, 2)]))
    if STAMP == 3: stamp()
    ln_issue(int(os.environ.get("LN_FIRST", "12")))
    diag(2)
    if STAMP == 3: stamp()
    e(valu("v_pk_add_f32", acc[0], acc[0], acc[1])); e(valu("v_pk_add_f32", acc[2], acc[2], acc[3])); e(valu("v_pk_add_f32", acc[0], acc[0], acc[2]))
    e(valu("v_add_f32", vsum, acc[0][0], acc[0][1]))
    red4("v_add_f32", [vsum], [vtmp])
    e(valu("v_mul_f32", vsum, hx(f2u(1.0 / 512)), vsum))
    e(valu("v_cvt_pk_bf16_f32", vmb, vsum, vsum)); e(valu("v_lshlrev_b32", vmb, 16, vmb))
    e(valu("v_sub_f32", vdm, vsum, vmb))
    e(valu("v_sub_f32", vneg[0], 0, vmb))
    acc2 = [V(58, 2), V(60, 2), V(62, 2)]
    for p in range(64):
        e(valu("v_pk_add_f32", v_f[(2 * p, 2)], v_f[(2 * p, 2)], vneg, mod="op_sel_hi:[1,0]"))
    for p in range(64):
        a_ = acc2[p % 3]
        if p < 3: e(valu("v_pk_mul_f32", a_, v_f[(2 * p, 2)], v_f[(2 * p, 2)]))
        else: e(valu("v_pk_fma_f32", a_, v_f[(2 * p, 2)], v_f[(2 * p, 2)], a_))
    if STAMP == 3: stamp()
    e(valu("v_pk_add_f32", acc2[0], acc2[0], acc2[1])); e(valu("v_pk_add_f32", acc2[0], acc2[0], acc2[2]))
    e(valu("v_add_f32", vsum, acc2[0][0], acc2[0][1]))
    red4("v_add_f32", [vsum], [vtmp])
    e(valu("v_mul_f32", vsum, hx(f2u(1.0 / 512)), vsum))
    e(valu("v_fma_f32", vsum, "-" + str(vdm), vdm, vsum, extra_rd=vdm.regs()))
e(valu("v_max_f32", vsum, 0, vsum))
e(valu("v_cvt_pk_bf16_f32", vsum, vsum, vsum)); e(valu("v_lshlrev_b32", vsum, 16, vsum))
e(valu("v_add_f32", vsum, hx(f2u(1e-5)), vsum))
e(valu("v_cvt_pk_bf16_f32", vsum, vsum, vsum)); e(valu("v_lshlrev_b32", vsum, 16, vsum))
e(valu("v_sqrt_f32", vsum, vsum)); e(nop(0))
e(valu("v_cvt_pk_bf16_f32", vsum, vsum, vsum)); e(valu("v_lshlrev_b32", vsum, 16, vsum))
e(valu("v_rcp_f32", vneg[0], vsum)); e(nop(0))
if LNM: e(valu("v_mul_f32", vneg[1], "-" + str(vmb), vneg[0], mod="", extra_rd=vmb.regs()))
for ks in range(16):
    for k in range(4):
        p = 4 * ks + k
        if LNM: e(valu("v_pk_fma_f32", v_f[(2 * p, 2)], v_f[(2 * p, 2)], vneg, vneg, mod="op_sel:[0,0,1] op_sel_hi:[1,0,1]"))
        else: e(valu("v_pk_mul_f32", v_f[(2 * p, 2)], v_f[(2 * p, 2)], vneg, mod="op_sel_hi:[1,0]"))
    for k in range(4):
        p = 4 * ks + k
        e(valu("v_cvt_pk_bf16_f32", v_xp[p], v_f[2 * p], v_f[2 * p + 1]))
    e(dswrite("ds_write_b128", v_wl, v_xp[(4 * ks, 4)], ks * 1024))
ln_issue(int(os.environ.get("LN_LAST", "100")))
if STAMP == 3: stamp()
if DUMP == "ln": dump_regs([v_xp[i] for i in range(64)])
em.wait(lg0=True)
e(raw("s_barrier"))
stamp(); diag(); diag(2); diag(3)

def cost_of(it):
    k = getattr(it, "kind", "")
    return 2 if k == "trans" else (0 if k in ("salu", "nop") else 1)
class Fill:
    def __init__(self, items, start, end, spread=False): self.items, self.start, self.end, self.spread = list(items), start, end, spread; self.i = 0
    def done(self): return self.i == len(self.items)
def run_stream(NH, dmaf, dtok, accf, Bf, extra, fills, LOOK=6, nq=4, posf=lambda m: m % 6, ring=a_ring, first_dma=6, tr2=None, early_dma=False):
    NG = 4 * NH
    rtok = {}
    def reads(g):
        m, u = g >> 2, g & 3
        p = posf(m)
        d = ring[((g % 8) * 4, 4)]
        ar, of = (v_tr[p // 3][u], (p % 3) * 16384) if p < 6 else (tr2[u], (p - 6) * 16384)
        r = [dsread("ds_read_b64_tr_b16", d[(2 * h2, 2)], ar, of + h2 * 512) for h2 in range(2)]
        rtok[g] = r[1]
        return r
    pre = [reads(g) for g in range(3)]
    G, C = [], []
    cur = None
    for g in range(NG):
        gaps = [[], [], [], []]; cap = [2, 2, 2, 2]
        if g + 3 < NG:
            if (g + 3) & 3 == 0: gaps[0].append(LateW(dtok, (g + 3) >> 2))
            r = reads(g + 3); gaps[0].append(r[0]); gaps[1].append(r[1]); cap[0] -= 1; cap[1] -= 1
        md, j = (g + 4 * LOOK - 4) >> 2, (g + 4 * LOOK - 4) & 3
        if early_dma:
            md, j = (g + 4 * LOOK - 3) >> 2, (g + 4 * LOOK - 3) & 3
            if md >= first_dma and j < 2:
                if j == 0: cur = dmaf(md)
                if cur is not None:
                    if j == 0: gaps[1] += cur[0]
                    gaps[2].append(cur[1][2 * j]); gaps[3].append(cur[1][2 * j + 1]); cap[2] -= 1; cap[3] -= 1
                    if j == 1: dtok[md] = cur[1][3]
        elif md >= first_dma:
            if j == 0: cur = dmaf(md)
            if cur is not None:
                if j == 0: gaps[2] += cur[0]
                for it in cur[1][j::4]: gaps[3].append(it); cap[3] -= 1
                if j == 3: dtok[md] = cur[1][3]
        for (gp, it, cost) in extra.get(g, []):
            gaps[gp].append(it); cap[gp] -= cost
        if g + 1 < NG: gaps[3].insert(0, Wait(lg=rtok[g + 1]))
        G.append(gaps); C.append(cap)
    B = {}
    for f in fills:
        idx = [(g, q) for g in range(f.start, f.end) for q in range(4)]
        caps = [max(0, C[g][q]) for g, q in idx]
        W = sum(cost_of(it) for it in f.items); T = sum(caps); n = len(idx)
        acc = 0.0; cum = 0
        for k, key in enumerate(idx):
            if W >= T: acc += caps[k] + (W - T) / n
            elif f.spread: acc += caps[k] * W / T
            else: acc += caps[k]
            B[key] = (f, acc)
    em.wait(vm=dtok[0])
    for r in pre: e(r)
    for p_ in extra.get(-1, []): e(p_[1])
    em.wait(lg0=True)
    used = {id(f): 0 for f in fills}
    for g in range(NG):
        m, u = g >> 2, g & 3
        d = ring[((g % 8) * 4, 4)]
        for qb in range(nq):
            ac, first = accf(m, u, qb)
            e(mfma(ac, d, Bf(m, qb), 0 if first else ac))
            ent = B.get((g, qb))
            sawv = False
            if ent:
                f, lim = ent
                while not f.done() and getattr(f.items[f.i], "kind", "") in ("lds", "vmem", "salu") and used[id(f)] + cost_of(f.items[f.i]) <= lim + 0.5:
                    it = f.items[f.i]; f.i += 1; used[id(f)] += cost_of(it); e(it)
            for it in G[g][qb]: e(it)
            if ent:
                f, lim = ent
                lastgap = (g == f.end - 1 and qb == 3)
                while not f.done():
                    it = f.items[f.i]; c = cost_of(it)
                    if not lastgap:
                        if used[id(f)] + c > lim + 0.5: break
                        if sawv and getattr(it, "kind", "") in ("lds", "vmem"): break
                    f.i += 1; used[id(f)] += c; e(it)
                    if getattr(it, "kind", "") in ("valu", "trans"): sawv = True
    assert all(f.done() for f in fills)
class LateW:
    def __init__(self, d, k): self.d, self.k = d, k
    def __call__(self): return Wait(vm=self.d[self.k])

def s1_acc(m, u, qb):
    h = m & 1
    idx = ((h * 4 + u) * 4 + qb) * 4
    if m < 32: return A(idx, 4), m < 2
    return v_acc[(idx, 4)], m < 34
def s1_B(m, qb): return a_B[(((m >> 1) & 1) * 16 + qb * 4, 4)]
extra = {}
btok = {}
def bread(s, qb): return dsread("ds_read_b128", a_B[((s & 1) * 16 + qb * 4, 4)], v_lin, (qb * 16 + (s % 16)) * 1024)
extra[-1] = [(0, bread(0, qb), 1) for qb in range(4)]
for s in range(1, 32):
    for qb in range(4):
        extra.setdefault(8 * (s - 1) + 1 + qb, []).append((2, bread(s, qb), 1))
gi = 0; gj = 0; pend_s = []
for it in ln_v[lv[0]:]:
    if isinstance(it, list) and all(x.kind == "salu" for x in it): pend_s = it; continue
    if not isinstance(it, list) and it.kind == "dma":
        assert gi < 12
        extra.setdefault(gi // 3, []).append((gi % 3, [pend_s, it] if pend_s else it, 1)); pend_s = []
        gi += 1
    else:
        extra.setdefault(8 + 2 * gj, []).append((1, it, 1)); gj += 1
C0 = -2.0 * math.sqrt(2.0 / math.pi) * math.log2(math.e); C1 = C0 * 0.044715
vc0, vc1 = V(40), V(41)
gel = [valu("v_mov_b32", vc0, hx(f2u(C0))), valu("v_mov_b32", vc1, hx(f2u(C1)))]
hst = []
tb = 0
for i in range(2):
    for qb in range(4):
        pk = V(96 + 4 * tb, 4); tb += 1
        for b in range(2):
            u = 2 * i + b
            T = [V(64 + 16 * b + k) for k in range(16)]
            G_, U_, X_ = T[0:4], T[4:8], T[8:12]
            ga = lambda r: A((u * 4 + qb) * 4 + r); ua = lambda r: A(((4 + u) * 4 + qb) * 4 + r)
            for r in range(4): gel.append(valu("v_accvgpr_read_b32", G_[r], ga(r)))
            for r in range(4): gel.append(valu("v_accvgpr_read_b32", U_[r], ua(r)))
            for r in range(4): gel.append(valu("v_mul_f32", X_[r], G_[r], G_[r]))
            for r in range(4): gel.append(valu("v_fma_f32", X_[r], X_[r], vc1, vc0))
            for r in range(4): gel.append(valu("v_mul_f32", X_[r], X_[r], G_[r]))
            for r in range(4): gel.append(valu("v_exp_f32", X_[r], X_[r]))
            for r in range(4): gel.append(valu("v_mul_f32", G_[r], G_[r], U_[r]))
            for r in range(4): gel.append(valu("v_add_f32", X_[r], "1.0", X_[r]))
            for r in range(4): gel.append(valu("v_rcp_f32", X_[r], X_[r]))
            gel.append(nop(0))
            for r in range(4): gel.append(valu("v_mul_f32", G_[r], G_[r], X_[r]))
            for k in range(2): gel.append(valu("v_cvt_pk_bf16_f32", pk[2 * b + k], G_[2 * k], G_[2 * k + 1]))
        st = bstore(pk, v_lin, S_H, s_h1 if i else s_h0, off=qb * 1024, mod="sc1")
        hst.append(st)
class Stamp:
    def __call__(self): stamp(); return []
if STAMP: extra.setdefault(128, []).append((0, Stamp(), 0))
class Diag3:
    def __call__(self): diag(3); return []
if DIAG == 3:
    for g_ in (32, 128, 192): extra.setdefault(g_, []).append((0, Diag3(), 0))
class Grp:
    kind = "salu"
    def __init__(self, l): self.l = l
    def __call__(self):
        for x in self.l:
            if x.kind == "label": em.out.append(x)
            else: e(x)
        return []
def group_scc(items):
    out = []
    for it in items:
        if out and ("scc" in it.rd or it.kind == "label"):
            p = out.pop(); out.append(Grp((p.l if isinstance(p, Grp) else [p]) + [it]))
        else: out.append(it)
    return out
s_pf = [S(24, 2), S(26, 2), S(28, 2), S(30, 2)]
s_pfH = s_pair2
s_fo = S(3)
QS = math.log2(math.e) / math.sqrt(128.0)
vqs = V(42, 2); vqw = V(44)
save = em.out; em.out = []; spend = em.pend; em.pend = {}
NWO = 4 if MAP2 else 2
for it in range(3):
    e(salu("s_add_u32", s_t0, s_w, 4 * it))
    e(salu("s_sub_u32", s_t1, s_t0, NWO)); e(salu("s_min_u32", s_t1, s_t1, 6)); e(salu("s_lshl_b32", s_t1, s_t1, 13))
    e(salu("s_lshr_b32", s_t2, S(2), 3)); e(salu("s_mul_i32", s_t2, s_t2, 57344, scc_w=False)); e(salu("s_add_u32", s_t1, s_t1, s_t2))
    e(salu("s_add_u32", s_pf[it][0], S_WD[0], s_t1)); e(salu("s_addc_u32", s_pf[it][1], S_WD[1], 0, scc_r=True))
    if it == 0:
        e(sx(s_t1)); e(salu("s_lshl_b32", s_t1, s_t1, 15 if MAP2 else 14)); e(salu("s_lshl_b32", s_t2, s_w, 13)); e(salu("s_add_u32", s_t1, s_t1, s_t2))
        e(salu("s_add_u32", s_pf[1][0], S_WO[0], s_t1)); e(salu("s_addc_u32", s_pf[1][1], S_WO[1], 0, scc_r=True))
        e(scmp("s_cmp_lt_u32", s_w, NWO)); e(salu("s_cselect_b64", s_pf[0], s_pf[1], s_pf[0], scc_w=False, scc_r=True))
e(raw("s_getpc_b64 %s" % s_pf[3], "salu", wr=[s_pf[3]]))
em.label("L_pc1")
e(salu("s_lshl_b32", s_t0, s_w, 13)); e(salu("s_add_u32", s_t0, s_t0, "L_tail-L_pc1")); e(salu("s_min_u32", s_t0, s_t0, "L_code_end-L_pc1-8192"))
e(salu("s_add_u32", s_t1, s_t0, (1 if MAP2 else 3) * 8192)); e(salu("s_min_u32", s_t1, s_t1, "L_code_end-L_pc1-8192"))
e(salu("s_add_u32", s_pfH[0], s_pf[3][0], s_t1)); e(salu("s_addc_u32", s_pfH[1], s_pf[3][1], 0, scc_r=True))
e(scmp("s_cmp_lt_u32", s_w, 3 if MAP2 else 1)); e(salu("s_cselect_b64", s_pf[2], s_pf[2], s_pfH, scc_w=False, scc_r=True))
e(salu("s_add_u32", s_pf[3][0], s_pf[3][0], s_t0)); e(salu("s_addc_u32", s_pf[3][1], s_pf[3][1], 0, scc_r=True))
e(salu("s_lshl_b32", s_t0, s_cg, 2)); e(salu("s_add_u32", s_t0, s_t0, s_w)); e(salu("s_mul_i32", s_t0, s_t0, 7168, scc_w=False)); e(salu("s_min_u32", s_t0, s_t0, 229376 - 8192))
e(salu("s_add_u32", s_pfH[0], S_HC[0], s_t0)); e(salu("s_addc_u32", s_pfH[1], S_HC[1], 0, scc_r=True))
e(salu("s_lshl_b32", s_fo, s_cq, 3))
vx, vy, vz = V(45), V(46), V(47)
e(salu("s_lshl_b32", s_t1, s_w, 8))
dma_voffs(v_dA, 1024, s_t1, True)
e(salu("s_mul_i32", s_wdd, s_w, 448 * 1024 - 256, scc_w=False)); e(salu("s_lshl_b32", s_t3, s_cg, 7)); e(salu("s_add_u32", s_wdd, s_wdd, s_t3))
e(valu("v_mov_b32", vqs[0], hx(f2u(QS))))
e(valu("v_and_b32", vx, 15, v_lane)); e(valu("v_bfe_u32", vqw, v_lane, 5, 1)); e(valu("v_lshl_add_u32", vx, vqw, 4, vx)); e(valu("v_lshlrev_b32", vx, 4, vx))
e(valu("v_bfe_u32", vqw, v_lane, 4, 1)); e(valu("v_lshl_add_u32", vqw, vqw, 3, vx))
e(salu("s_lshl_b32", s_t1, s_w, 14)); e(valu("v_add_u32", vqw, s_t1, vqw))
midset = group_scc(em.out); em.out = save; em.pend = spend
HST = int(os.environ.get("HST", "0"))
if HST == 0: GEL_END = 254
for k in range(8):
    if HST: extra.setdefault(248 + k, []).append((0, hst[k], 1))
run_stream(64, s1_dma, dtok, s1_acc, s1_B, extra, [Fill(midset, 109, 130), Fill(gel, 131, GEL_END)], early_dma=int(os.environ.get('ED1', '0')))
if DUMP == "qacc": dump_regs([v_acc[i] for i in range(128)])
stamp(); diag(3)

em.wait(lg0=True)
e(raw("s_barrier"))
def signal(off_s_expr_add, lab, v_t):
    e(scmp("s_cmp_lg_u32", s_w, 0)); e(raw("s_cbranch_scc1 %s" % lab, rd=["scc"]))
    e(salu("s_lshl_b32", s_t0, s_qb, 2))
    if off_s_expr_add: e(salu("s_add_u32", s_t0, s_t0, off_s_expr_add))
    e(valu("v_mov_b32", v_t, 1))
    e(raw("s_mov_b64 exec, 1", "salu", wr=["exec"]))
    e(raw("buffer_atomic_add %s, off, %s, %s sc1" % (v_t, S_DBG, s_t0)))
    e(raw("s_mov_b64 exec, -1", "salu", wr=["exec"]))
    em.label(lab)
for blk in range(8):
    for qb in range(4):
        a_ = v_acc[((blk * 4 + qb) * 4, 4)]
        t = V(64 + 2 * ((blk * 4 + qb) % 8), 2)
        for k in range(2): e(valu("v_pk_mul_f32", a_[(2 * k, 2)], a_[(2 * k, 2)], vqs, mod="op_sel_hi:[1,0]"))
        for k in range(2): e(valu("v_cvt_pk_bf16_f32", t[k], a_[2 * k], a_[2 * k + 1]))
        if len(em.lgq) >= 7: em.wait(lg=em.lgq[-7])
        e(dswrite("ds_write_b64", vqw, t, (qb * 4 + (blk >> 1)) * 1024 + (blk & 1) * 512))
for j in range(4): e(valu("v_add_u32", v_dB[j], s_wdd, v_dA[j]))
em.wait(lg0=True)
for f in range(16): e(dsread("ds_read_b128", a_Q[(4 * f, 4)], v_wl, f * 1024))
em.label("L_att_start")
NZ0 = 32
for i in range(NZ0): e(valu("v_mov_b64", v_acc[(2 * i, 2)], 0))
if LSUM:
    for i in range(16): e(valu("v_accvgpr_write_b32", a_L[i], 0))
    e(valu("v_mov_b32", V(40), "0x3f803f80"))
    if LSUM == 2:
        e(valu("v_and_b32", V(41), 15, v_lane)); e(valu("v_cmp_eq_u32", "vcc", 0, V(41))); e(nop(1)); e(valu("v_cndmask_b32", V(40), 0, V(40), "vcc"))
    for i in range(4): e(valu("v_accvgpr_write_b32", a_ones[i], V(40)))
else:
    for i in range(4): e(valu("v_mov_b32", v_l0[i], 0)); e(valu("v_mov_b32", v_l1[i], 0))
e(valu("v_lshlrev_b32", V(3), 7, v_lane))
e(valu("v_and_b32", V(38), 7, v_lane)); e(valu("v_mov_b32", V(0), 0))
em.wait(vm=dtok[66], lg0=True)
e(raw("s_barrier"))
if DUMP == "q": dump_regs([a_Q[i] for i in range(64)])
stamp()

def Qf(qb, ds): return a_Q[((qb * 4 + ds) * 4, 4)]
def Of(db, qb): return v_acc[((db * 4 + qb) * 4, 4)]
def fr(f): return a_ring[((f % 8) * 4, 4)]
def kslot(par): return 16384 if par == 0 else 0
def vslot(par): return 0 if par == 0 else 16384
def frag_reads(par, f):
    if f >= 32: par ^= 1; f -= 32
    d = fr(f)
    if f < 8 or 16 <= f < 24:
        kb = (f >> 2) if f < 8 else 2 + ((f - 16) >> 2)
        return [dsread("ds_read_b128", d, v_ka[f & 3], kslot(par) + kb * 4096)]
    ks2 = 0 if f < 16 else 1
    db = f & 7
    return [dsread("ds_read_b64_tr_b16", d[(2 * h, 2)], v_va[db], vslot(par) + ks2 * 8192 + h * 4096) for h in range(2)]
def read_sched(g):
    r = []
    if g + 3 < 24 or g >= 29: r.append(g + 3)
    if 19 <= g <= 26: r.append(g + 5)
    return r
def sm_val(g, k):
    if 7 <= g <= 22: b = 1; n = 2 * (g - 7) + k
    else: b = 0; n = 2 * ((g - 23) % 32) + k
    kb, qb, r = n >> 4, (n >> 2) & 3, n & 3
    return b, qb, kb, r
def sm_items(g):
    ex, ad = [], []
    for k in range(2):
        b, qb, kb, r = sm_val(g, k)
        x = v_S[b][qb * 8 + kb * 4 + r]
        l = (v_l1 if b else v_l0)[qb]
        ex.append(valu("v_exp_f32", x, x)); ad.append(valu("v_add_f32", l, l, x))
    b, qb, kb, r = sm_val((g - 1) % 32, 0)
    cv = valu("v_cvt_pk_bf16_f32", v_S[b][qb * 8 + kb * 2 + (r >> 1)], v_S[b][qb * 8 + kb * 4 + r], v_S[b][qb * 8 + kb * 4 + r + 1])
    return ex, ad, cv
def att_dma(par, g):
    if g >= 29: k = g - 29; sp = par
    elif g <= 4: k = g + 3; sp = par ^ 1
    else: return [], None
    sal = []
    if k == 0: sal = [salu("s_add_u32", "m0", s_m0b, 4 * 16384 + kslot(sp))]
    if k == 4: sal = [salu("s_add_u32", "m0", s_m0b, vslot(sp))]
    if k < 4: return sal, dma(v_kd[k], S_K, s_kK, k * 1024)
    return sal, dma(v_vd[k & 1], S_V, s_kV, (k - 4) * 1024)
SIDE_FIRST = 11
class Lbl:
    def __init__(self, n): self.n = n
    def __call__(self): em.label(self.n); return []
class LoopStamp:
    def __init__(self, k, par): self.k, self.par = k, par
    def __call__(self):
        k = self.k
        e(raw("s_memtime %s" % S(68 + 2 * k, 2), "other", wr=[S(68 + 2 * k, 2)]))
        if k == 2:
            e(raw("s_waitcnt lgkmcnt(0)", "wait")); em._retire(em.lgq, 0)
            for i in range(3): e(valu("v_writelane_b32", v_c, S(68 + 2 * i), i, rmw=True))
            e(salu("s_lshl_b32", S(74), S(2), 2)); e(salu("s_add_u32", S(74), S(74), s_w)); e(salu("s_lshl_b32", S(74), S(74), 4))
            e(salu("s_sub_u32", S(74), S(74), s_cnt)); e(salu("s_add_u32", S(74), S(74), 16)); e(salu("s_lshl_b32", S(74), S(74), 5))
            e(salu("s_add_u32", S(74), S(74), (1 << 20) + 16 * self.par))
            e(raw("s_mov_b64 exec, 7", "salu", wr=["exec"]))
            e(valu("v_lshlrev_b32", v_t, 2, v_lane))
            e(bstore(v_c, v_t, S_DMP, S(74), off=0))
            e(raw("s_mov_b64 exec, -1", "salu", wr=["exec"]))
            e(valu("v_lshlrev_b32", v_t, 7, v_lane))
        return []
v_tch, v_flag, v_fa = V(3), V(0), V(38)
xtok = []; lastdma = [None]
NITER = 14
s_pfc = S(16, 2); s_kvt = S(18, 2); KVIT = int(os.environ.get('KVIT', '12'))
ROT = int(os.environ.get('ROT', '8'))
ftok = {}
def att_group(par, g, do_mfma=True, do_mem=True, do_cvt=True, last=False, pp=None, xmem=(), xsal=(), xvalu=None):
    ex, ad, cv = sm_items(g)
    mem = []
    sal = []
    fin = (pp == 3)
    d = None
    if do_mem:
        if fin: sched = ([g + 3] if g + 3 < 16 else []) + ([g + 11] if 13 <= g <= 20 else [])
        else: sched = read_sched(g)
        for f in sched:
            r = frag_reads(par, f); mem += r; ftok[f % 32] = r
        if pp is None or (g <= 4 and pp <= 2) or (g >= 29 and pp <= 1):
            sal, d = att_dma(par, g)
            if d is not None: mem.append(d)
    loop = do_mem and pp is None
    post0 = []
    if loop and par == 0:
        if g == 14: mem.append(I("global_load_dword %s, %s, %s" % (v_c, v_tch, s_pfc), "vmem", rd=v_tch.regs() + s_pfc.regs(), wr=[]))
        if g == 13: mem.append(I("buffer_load_ubyte %s, %s, %s, %s offen sc1" % (v_flag, v_fa, S_DBG, s_t2), "vmem", rd=S_DBG.regs() + s_t2.regs() + v_fa.regs(), wr=[]))
        if g == 8: sal = sal + [scmp("s_cmp_le_u32", s_cnt, ROT)]
        if g in (9, 10, 11, 12):
            q_ = [s_pfc] + s_pf
            sal = sal + [salu("s_cselect_b64", q_[g - 9], q_[g - 8], q_[g - 9], scc_w=False, scc_r=True)]
        if g == 0: post0 = [valu("v_cmp_eq_u32", "vcc", 1, v_flag)]
        if g == 2: sal = sal + [raw("s_cmp_eq_u32 vcc_lo, -1", "salu", rd=["vcc"], wr=["scc"])]
        if g == 3: sal = sal + [salu("s_cselect_b32", s_t0, s_cnt, -1, scc_w=False, scc_r=True)]
        if g == 4: sal = sal + [scmp("s_cmp_eq_u32", s_t0, ROT - 1)]
        if g == 5: sal = sal + [salu("s_cselect_b64", s_pf[3], s_pfH, s_pf[3], scc_w=False, scc_r=True)]
        if g == 15: sal = sal + [salu("s_cselect_b64", s_pf[3], S_K[(0, 2)], s_pf[3], scc_w=False, scc_r=True)]
        if g == 20: sal = sal + [scmp("s_cmp_eq_u32", s_cnt, KVIT + 1)]
        if g == 21: sal = sal + [salu("s_cselect_b64", s_pfc, s_kvt, S_K[(0, 2)], scc_w=False, scc_r=True)]
        if g == 13: sal = sal + [salu("s_cselect_b32", s_t2, s_fo, 256, scc_w=False, scc_r=True)]
        if g == 18: sal = sal + [scmp("s_cmp_eq_u32", s_cnt, s_sig)]
        if g == 19: sal = sal + [raw("s_cbranch_scc1 L_sigH_side", rd=["scc"]), Lbl("L_sigH_ret")]
    if do_mem and g == 4 and d is not None: lastdma[0] = d
    mem += list(xmem); sal = sal + list(xsal)
    gaps = [[], [], [], []]
    if g == 29 and do_mem and not fin:
        if STAMP == 2 and loop and do_mfma: gaps[0] += [LoopStamp(0, par)]
        gaps[0] += [Wait(lg0=True) if not do_mfma else (Wait(lg0=True, vm0=True) if (pp is None and par == 1) else Wait(lg0=True, vm=lastdma[0]))]
        if STAMP == 2 and loop and do_mfma: gaps[0] += [LoopStamp(1, par)]
        gaps[0] += [raw("s_barrier")]
        if STAMP == 2 and loop and do_mfma: gaps[0] += [LoopStamp(2, par)]
    gaps[0] += sal
    if g == 6 and do_mem and (pp is None or pp <= 1): gaps[0].append(salu("s_add_u32", s_kK, s_kK, 16384))
    if g == 7 and do_mem and (pp is None or pp <= 1): gaps[0].append(salu("s_add_u32", s_kV, s_kV, 16384))
    sm = not (fin and g >= 23)
    if fin and g > 23: do_cvt = False
    if fin and 16 <= g < 24: do_mfma = False
    if LSUM:
        if sm: gaps[0].append(ex[0])
        gaps[1] += mem[0:2] if len(mem) > 2 else mem[0:1]
        gaps[1] += post0
        nf = (g + 1) % 32
        if do_mem and not (fin and (16 <= nf < 24 or nf == 0)): gaps[2].append(Wait(lg=ftok.get(nf)))
        if last and g == 30: gaps[2].append(salu("s_sub_u32", s_cnt, s_cnt, 1))
        if sm: gaps[2].append(ex[1])
        gaps[3] += mem[2:] if len(mem) > 2 else mem[1:]
        if do_cvt: gaps[1 if len(gaps[1]) < 2 else 3].append(cv)
    else:
      gaps[0] += mem[2:3]
      if sm: gaps[0].append(ex[0])
      if len(mem) > 0: gaps[1].append(mem[0])
      if len(mem) == 0 and do_cvt: gaps[1].append(cv)
      if sm: gaps[1].append(ad[0])
      gaps[1] += post0
      nf = (g + 1) % 32
      if do_mem and not (fin and (16 <= nf < 24 or nf == 0)): gaps[2].append(Wait(lg=ftok.get(nf)))
      if last and g == 30: gaps[2].append(salu("s_sub_u32", s_cnt, s_cnt, 1))
      gaps[2] += mem[3:]
      if sm: gaps[2].append(ex[1])
      if len(mem) > 1: gaps[3].append(mem[1])
      if len(mem) > 0 and do_cvt: gaps[3].append(cv)
      if sm: gaps[3].append(ad[1])
    for qb in range(4):
        if do_mfma:
            if g < 8 or 16 <= g < 24:
                b = 1 if g < 8 else 0
                kb, ds = (g >> 2) & 1, g & 3
                d = v_S[b][(qb * 8 + kb * 4, 4)]
                e(mfma(d, fr(g), Qf(qb, ds), v_negm[(qb * 4, 4)] if ds == 0 else d))
            else:
                b = 0 if g < 16 else 1
                e(mfma(Of(g & 7, qb), fr(g), v_S[b][(qb * 8, 4)], Of(g & 7, qb)))
        else:
            if (qb & 1) and not gaps[qb][:1] or ((qb & 1) and getattr(gaps[qb][0], "kind", "") in ("valu",)): e(nop(0))
        for it in gaps[qb]: e(it)
        if xvalu is not None:
            c = 2 - sum(1 for it in gaps[qb] if getattr(it, "kind", "") in ("lds", "vmem", "dma", "valu"))
            while xvalu and c > 0:
                it = xvalu.pop(0); e(it); c -= 2 if it.kind == "trans" else 1
    if LSUM and do_mfma and (g & 8):
        k = g & 7
        lq = (k if k < 4 else None) if (fin and g >= 24) else (k >> 1 if k & 1 else None)
        if lq is not None: e(mfma(a_L[(4 * lq, 4)], a_ones, v_S[0 if g < 16 else 1][(lq * 8, 4)], a_L[(4 * lq, 4)]))

pr = [dsread("ds_read_b128", fr(f), v_ka[f & 3], (f >> 2) * 4096) for f in range(8)]
for r in pr: e(r)
e(scmp("s_cmp_lg_u32", s_retry, 0)); e(raw("s_cbranch_scc1 L_have_max", rd=["scc"]))
for i in range(16): e(valu("v_mov_b32", v_negm[i], 0))
em.label("L_have_max")
zr = [valu("v_mov_b32", v_acc[i], 0) for i in range(2 * NZ0, 128)]
for f in range(8):
    em.wait(lg=pr[f])
    for qb in range(4):
        d = v_S[0][(qb * 8 + (f >> 2) * 4, 4)]
        e(mfma(d, fr(f), Qf(qb, f & 3), v_negm[(qb * 4, 4)] if (f & 3) == 0 else d))
        if qb == 0 and HST == 0: e(hst[f])
        if qb == 2 and f == 0:
            e(raw("s_mov_b64 exec, 3", "salu", wr=["exec"])); e(bstore(v_acc[0], V(3), S_FLZ, s_myfl, mod="sc1")); e(raw("s_mov_b64 exec, -1", "salu", wr=["exec"]))
        for _ in range(2):
            if zr: e(zr.pop(0))
assert not zr
e(salu("s_mov_b32", s_kK, 16384 + 8192, scc_w=False)); e(salu("s_mov_b32", s_kV, 16384, scc_w=False)); e(salu("s_mov_b32", s_cnt, NITER, scc_w=False))
e(scmp("s_cmp_lg_u32", s_retry, 0)); e(raw("s_cbranch_scc1 L_have_max2", rd=["scc"]))
e(nop(3))
mx = [V(97 + 4 * i) for i in range(4)]; mt = [V(98 + 4 * i) for i in range(4)]
for qb in range(4): e(valu("v_max3_f32", mx[qb], v_S[0][qb * 8], v_S[0][qb * 8 + 1], v_S[0][qb * 8 + 2]))
for qb in range(4): e(valu("v_max3_f32", mx[qb], mx[qb], v_S[0][qb * 8 + 3], v_S[0][qb * 8 + 4]))
for qb in range(4): e(valu("v_max3_f32", mx[qb], mx[qb], v_S[0][qb * 8 + 5], v_S[0][qb * 8 + 6]))
for qb in range(4): e(valu("v_max_f32", mx[qb], mx[qb], v_S[0][qb * 8 + 7]))
red4("v_max_f32", mx, mt)
for qb in range(4):
    for k in range(4): e(valu("v_sub_f32", v_negm[qb * 4 + k], 0, mx[qb]))
for qb in range(4):
    for k in range(8): e(valu("v_sub_f32", v_S[0][qb * 8 + k], v_S[0][qb * 8 + k], mx[qb]))
em.label("L_have_max2")
e(nop(7))
for g in range(23, 29): att_group(1, g, do_mfma=False, do_mem=False, do_cvt=(g != 23))
stamp(); diag()
e(salu("s_and_b32", s_t0, s_qb, 3)); e(salu("s_sub_u32", s_t0, NITER - 1, s_t0))
e(scmp("s_cmp_eq_u32", s_w, 0)); e(salu("s_cselect_b32", s_sig, s_t0, -1, scc_w=False, scc_r=True))
e(scmp("s_cmp_eq_u32", s_retry, 0)); e(salu("s_cselect_b32", s_sig, s_sig, -1, scc_w=False, scc_r=True))
e(salu("s_mov_b64", s_pfc, S_K[(0, 2)], scc_w=False))
e(scmp("s_cmp_lt_u32", s_w, 2)); e(salu("s_cselect_b64", s_kvt, S_K[(0, 2)], S_V[(0, 2)], scc_w=False, scc_r=True))
e(salu("s_and_b32", s_t0, s_w, 1)); e(sx(s_t1)); e(salu("s_lshl_b32", s_t1, s_t1, 1)); e(salu("s_add_u32", s_t0, s_t0, s_t1)); e(salu("s_lshl_b32", s_t0, s_t0, 13))
if MAP2: e(salu("s_add_u32", s_t0, s_t0, 262144))
e(salu("s_add_u32", s_kvt[0], s_kvt[0], s_t0)); e(salu("s_addc_u32", s_kvt[1], s_kvt[1], 0, scc_r=True))
for g in range(29, 32): att_group(1, g, do_mfma=False, do_mem=True)
pro_end = len(em.out)
em.directive(".p2align 6")
em.label("L_att_loop")
def body():
    for par in range(2):
        for g in range(32): att_group(par, g, last=(par == 1))
b0 = len(em.out)
body()
b1 = len(em.out)
e(scmp("s_cmp_lg_u32", s_cnt, 0)); e(raw("s_cbranch_scc1 L_att_loop", rd=["scc"]))
b2 = len(em.out)
body()
second = em.out[b2:]; del em.out[b2:]
assert [i.text for i in second] == [i.text for i in em.out[b0:b1]], "loop not in steady state"
loop_probs = check_hazards(em.out[b1 - 40:b2] + second[:60], "loop-wrap")

em.label("L_tail")
v_ring2 = V(64, 32); v_B2 = V(96, 32)
XY = int(os.environ.get('XY', '0'))
NF1 = int(os.environ.get('NF1', '8'))
def hreg(kk, qb):
    if kk >= 8: kk -= 8
    return A((64 + 16 * kk if kk < 4 else 160 + 16 * (kk - 4)) + qb * 4, 4)
def Facc(u, qb):
    t = u * 4 + qb
    return A(128 + 4 * t if t < 8 else 224 + 4 * (t - 8), 4)
POS2 = [5, 0, 2, 3, 4, 1]
NB = int(os.environ.get("NB", "4"))
def pos2(m): return 6 + m if m < NB else POS2[(m - NB) % 6]
def kind2(m):
    if m < NF1: return ("F", m)
    if m < NF1 + 32: return ("O", (m - NF1) & 15, (m - NF1) >> 4) if XY else ("O", (m - NF1) >> 1, (m - NF1) & 1)
    return ("F", m - 32)
def s2_dma(m):
    if m >= 46: return None
    p = pos2(m); k = kind2(m)
    if k[0] == "O":
        return [m0set(p), salu("s_mov_b32", s_off, k[1] * 32 * 1024 + 128 * k[2], scc_w=False)], [dma(v_dA[j], S_WO, s_off, j * 1024) for j in range(4)]
    return [m0set(p), salu("s_mov_b32", s_off, k[1] * 32 * 1024, scc_w=False)], [dma(v_dB[j], S_WD, s_off, j * 1024) for j in range(4)]
dtok2 = {}; s2pre = {}
for m in range(6 + NB):
    s2pre[m] = s2_dma(m); dtok2[m] = s2pre[m][1][3]
class Seq:
    kind = "vmem"
    def __init__(self, l): self.l = l
    def __call__(self): return self.l
hld = {}; htok = {}
for kk in range(14):
    hld[kk] = [bload(hreg(kk, qb), v_lin, S_HC, s_hl, off=qb * 1024, mod="sc1") for qb in range(4)]
    htok[kk] = hld[kk][3]
e(salu("s_mov_b32", s_cnt, 0, scc_w=False))
em.label("L_pollH")
e(valu("v_cmp_ne_u32", "vcc", 1, v_flag)); e(salu("s_mul_i32", s_hb, s_w, 14 * 4096, scc_w=False)); e(nop(1))
e(raw("s_cbranch_vccz L_pollH_done", rd=["vcc"]))
e(salu("s_add_u32", s_cnt, s_cnt, 1)); e(scmp("s_cmp_ge_u32", s_cnt, 50000)); e(raw("s_cbranch_scc1 L_pollH_done", rd=["scc"]))
e(raw("s_sleep 4")); e(raw("buffer_load_ubyte %s, %s, %s, %s offen sc1" % (v_flag, v_fa, S_DBG, s_fo))); e(raw("s_waitcnt vmcnt(0)")); e(raw("s_branch L_pollH"))
em.label("L_pollH_done")
xaddr(V(39), V(0))
xsl = [bload(a_x[(2 * u, 2)], V(39), S_XC, 0, off=32 * u, n=2) for u in range(4)]
NH0 = 32
hsl = sorted([(pp, g) for pp in range(3) for g in (5, 13, 14, 15, 16, 17, 18, 27, 28, 9, 11)])[:NH0]
px = {}
for k, key in enumerate(hsl):
    px.setdefault(key, ([], []))
    px[key][0].append(hld[k >> 2][k & 3])
    if k & 3 == 0: px[key][1].append(salu("s_add_u32", s_hl, s_hb, (k >> 2) * 4096))
for u in range(4): px.setdefault((0, 1 + u), ([], []))[0].append(xsl[u])
wsl = [(pp, g) for pp in range(2) for g in (6, 7, 8, 10, 12, 21, 22, 23)][:4 * NB] + [(2, 29), (2, 30), (2, 31), (3, 0), (3, 1), (3, 2), (3, 3), (3, 4)] + [(3, g) for g in range(5, 13)] + [(3, g) for g in range(24, 32)]
for k, key in enumerate(wsl):
    px.setdefault(key, ([], []))
    m, j = k >> 2, k & 3
    px[key][0].append(s2pre[m][1][j])
    if j == 0: px[key][1].extend(s2pre[m][0])
px[(3, 24)][1][:0] = [Wait(lg0=True), raw("s_barrier")]
lt = [V(48 + i) for i in range(4)]
rinv = [V(52 + i) for i in range(4)]
vxf = V(40, 8)
save = em.out; em.out = []
if LSUM:
    for qb in range(4): e(valu("v_accvgpr_read_b32", v_l1[qb], a_L[4 * qb]))
    if LSUM == 2: red4("v_add_f32", [v_l1[i] for i in range(4)], lt)
else:
    for qb in range(4): e(valu("v_add_f32", v_l1[qb], v_l1[qb], v_l0[qb]))
    red4("v_add_f32", [v_l1[i] for i in range(4)], lt)
e(valu("v_add_f32", lt[1], v_l1[0], v_l1[1])); e(valu("v_add_f32", lt[2], v_l1[2], v_l1[3])); e(valu("v_add_f32", lt[1], lt[1], lt[2]))
for qb in range(4): e(valu("v_rcp_f32", rinv[qb], v_l1[qb]))
e(valu("v_cmp_nge_f32", "vcc", hx(f2u(2.0 ** 30)), lt[1]))
for k in range(8): e(valu("v_accvgpr_read_b32", vxf[k], a_x[k]))
v_tr2 = V(56, 4); v_ow = V(62)
for u in range(4): e(valu("v_subrev_u32", v_tr2[u], RING, v_tr[0][u]))
e(valu("v_subrev_u32", v_ow, RING, v_lin)); e(valu("v_add_u32", v_ow, s_m0b, v_ow))
lred = em.out; em.out = save
for pp in range(4):
    for g in range(32):
        if STAMP == 4 and g in (0, 16): stamp()
        xm, xs = px.get((pp, g), ([], []))
        att_group(pp & 1, g, pp=pp, xmem=xm, xsal=xs, xvalu=(lred if (pp == 3 and g >= (30 if LSUM else 24)) else None))
for it in lred: e(it)
diag(); stamp()
if DUMP == "o":
    e(nop(7))
    for db in range(8):
        for qb in range(4):
            for k in range(4): e(valu("v_mul_f32", Of(db, qb)[k], Of(db, qb)[k], rinv[qb]))
    dump_regs([v_acc[i] for i in range(128)])

vm_ = V(60); vma = V(61)
class Mark:
    kind = "salu"
    def __init__(self, t): self.t = t
    def __call__(self):
        e(raw("s_cbranch_vccz L_nomark", rd=["vcc"])); e(valu("v_mov_b32", self.t, hx(MARK))); em.label("L_nomark"); return []
norm = [valu("v_and_b32", vma, 3, v_lane), valu("v_lshlrev_b32", vma, 12, vma)]
ow = []; ncv = []
for i in range(4):
    for qb in range(4):
        t = Of(2 * i, qb)
        for b in range(2):
            for k in range(4): norm.append(valu("v_mul_f32", Of(2 * i + b, qb)[k], Of(2 * i + b, qb)[k], rinv[qb]))
        for b in range(2):
            o = Of(2 * i + b, qb)
            for k in range(2): norm.append(valu("v_cvt_pk_bf16_f32", t[2 * b + k], o[2 * k], o[2 * k + 1]))
        ncv.append(norm[-1])
        if i == 0 and qb == 0: norm.append(Mark(t[0]))
        ow.append(dswrite("ds_write_b128", v_ow, t, i * 16384 + qb * 1024))
        if NB == 0: norm.append(ow[-1])
class ChkNorm:
    def __init__(self, k): self.k = k
    def __call__(self):
        assert ncv[self.k].tok, "O write %d scheduled before its data" % self.k
        return ow[self.k]
G0 = 4 * NF1
G1 = G0 + 128
mk = dsread("ds_read_b32", vm_, vma, 0)
class OBar:
    def __call__(self):
        assert all(w.tok for w in ow)
        em.wait(lg0=True); e(raw("s_barrier")); stamp(); e(mk); return []
class FbCheck:
    def __call__(self):
        em.wait(lg=mk)
        e(valu("v_cmp_eq_u32", "vcc", hx(MARK), vm_))
        e(scmp("s_cmp_lg_u32", s_retry, 0)); e(raw("s_cbranch_scc1 L_nofb", rd=["scc"]))
        e(nop(1))
        e(raw("s_cbranch_vccnz L_fallback", rd=["vcc"]))
        em.label("L_nofb")
        return []
def s2_acc(m, u, qb):
    k = kind2(m)
    if k[0] == "O": return v_acc[(((k[2] * 4 + u) * 4 + qb) * 4, 4)], k[1] == 0
    return Facc(u, qb), k[1] == 0
def s2_B(m, qb):
    k = kind2(m)
    if k[0] == "O": return v_B2[((k[1] & 1) * 16 + qb * 4, 4)]
    return hreg(k[1], qb)
def oread(s, qb): return dsread("ds_read_b128", v_B2[((s & 1) * 16 + qb * 4, 4)], v_lin, (s & 3) * 16384 + (s >> 2) * 4096 + qb * 1024)
extra = {}
if NB:
    OW0 = int(os.environ.get("OW0", "11")); OWN = int(os.environ.get("OWN", "1"))
    for k in range(16):
        gg = OW0 + k // OWN
        assert (k >> 2) >= NB or gg > 4 * (k >> 2) + 3
        extra.setdefault(gg, []).append((2 + (k % OWN) % 2, ChkNorm(k), 1))
GB = G0 - int(os.environ.get("OBAR", "3"))
extra.setdefault(GB, []).append((0, OBar(), 0))
r0 = [oread(0, qb) for qb in range(4)]
for qb in range(4): extra.setdefault(GB + (qb >> 1), []).append((1 + (qb & 1) if qb < 2 else (qb & 1) * 2, r0[qb], 1))
extra.setdefault(G0 - 1, []).append((2, [Wait(lg=r0), FbCheck()], 0))
if XY:
    for mm in range(1, 32):
        rr = [oread(mm & 15, qb) for qb in range(4)]
        for qb in range(4): extra.setdefault(G0 + 4 * (mm - 1) + (qb >> 1), []).append((2 + (qb & 1), rr[qb], 1))
        extra.setdefault(G0 + 4 * mm - 1, []).append((2, Wait(lg=rr), 0))
else:
    for s_ in range(1, 16):
        for qb in range(4): extra.setdefault(G0 + 8 * (s_ - 1) + 1 + qb, []).append((2, oread(s_, qb), 1))
class LateWait:
    def __init__(self, f): self.f = f
    def __call__(self): return Wait(vm=self.f())
vxa = V(48); vpoll = V(49); vfw = V(50)
vx, vy, vz = V(63), V(57), V(58)
save = em.out; em.out = []
xaddr(vxa, vx)
e(valu("v_and_b32", V(51), 7, v_lane)); e(valu("v_lshlrev_b32", V(51), 2, V(51)))
e(valu("v_add_u32", vfw, s_m0b, v_lin)); e(salu("s_lshl_b32", s_t0, s_w, 14)); e(salu("s_add_u32", s_t0, s_t0, RING)); e(valu("v_add_u32", V(55), s_t0, v_lin))
e(salu("s_lshl_b32", s_t3, s_w, 4)); e(salu("s_add_u32", s_t3, s_t3, s_g)); e(salu("s_lshl_b32", s_t3, s_t3, 13))
early = em.out; em.out = save
extra.setdefault(-1, []).append((0, LateWait(lambda: htok[0]), 0))
for kk in range(1, 14):
    g_ = 4 * kk if kk < NF1 else 4 * (kk + 32)
    extra.setdefault(g_ - 1, []).append((2, LateWait(lambda kk=kk: htok[kk]), 0))
HG0 = int(os.environ.get("HG0", "5")); HGS = int(os.environ.get("HGS", "1"))
for k in range(NH0, 56):
    prev = (k >> 2) - 8
    gfree = (4 * prev if prev < NF1 else 4 * (prev + 32)) + 5 + (k & 3)
    extra.setdefault(max(gfree, HG0 + HGS * (k - NH0)), []).append((2, Seq([salu("s_add_u32", s_hl, s_hb, (k >> 2) * 4096), hld[k >> 2][k & 3]]), 1))
def sreg(ip, qb, odd=0): return v_acc[(((2 * ip + odd) * 4 + qb) * 4, 4)]
sp = []; spst = []; stq = []
s_oob = S(19)
if os.environ.get("NOST") or os.environ.get("NOLD"): e(salu("s_mov_b32", s_oob, 524288, scc_w=False))
NSI = int(os.environ.get("NSI", "11"))
s_so = [s_t1, s_cnt, s_h0, s_h1]
for k in range(4): sp.append(salu("s_add_u32", s_so[k], s_t3, (k >> 1) * 65536 + (k & 1) * 4096))
for ip in range(4):
    for qb in range(4):
        t = sreg(ip, qb)
        for b in range(2):
            o = sreg(ip, qb, b)
            for k in range(2): sp.append(valu("v_cvt_pk_bf16_f32", t[2 * b + k], o[2 * k], o[2 * k + 1]))
        st = bstore(t, v_lin, S_SP, s_so[(ip >> 1) * 2 + (qb >> 1)], off=(qb & 1) * 2048 + (ip & 1) * 1024, mod="sc1")
        if os.environ.get("NOST") and not (ip == 3 and qb == 3): st = bstore(t, v_lin, S_SP, s_oob, off=0)
        spst.append((st, sp[-1]))
class St:
    def __init__(self, k): self.k = k
    def __call__(self):
        assert spst[self.k][1].tok
        return spst[self.k][0]
STG = int(os.environ.get("STG", "2"))
if XY:
    GY = G0 + 64
    XS0 = int(os.environ.get("XS0", "4")); XSG = int(os.environ.get("XSG", "5")); XFL = int(os.environ.get("XFL", "60"))
    for k in range(8): extra.setdefault(GY + XS0 + XSG * k, []).append((1, St(k), 1))
    class XFlag:
        def __call__(self): em.wait(vm=spst[7][0]); return flag_store(0)
    extra.setdefault(GY + XFL, []).append((1, XFlag(), 1))
    NSI = int(os.environ.get("NSI", "16"))
    for k in range(8, NSI): extra.setdefault(G1 + 3 + STG * (k - 8), []).append((2, St(k), 1))
    hx_ = sp.index(spst[7][1]) + 1
    spf = [Fill(sp[:hx_], GY + 2, GY + 14), Fill(sp[hx_:], G1 + 2, G1 + 10)]
else:
    for k in range(NSI): extra.setdefault(G1 + 3 + STG * k, []).append((2, St(k), 1))
    spf = [Fill(sp, G1 + 2, G1 + int(os.environ.get("CVL", "16")))]
FLG = int(os.environ.get("FLG", "0"))
if FLG:
    assert NSI == 16
    class YFlag:
        def __call__(self):
            em.wait(vm=spst[-1][0]); stamp()
            return ([] if XY else flag_store(0)) + flag_store(1)
    extra.setdefault(G1 + FLG, []).append((1, YFlag(), 1))
sti = [NSI]
def st_next(n=1):
    for _ in range(n):
        if sti[0] < 16: e(spst[sti[0]][0]); sti[0] += 1
def flag_store(h):
    return [valu("v_mov_b32", v_t, 1), raw("s_mov_b64 exec, 1", "salu", wr=["exec"]), bstore(v_t, None, S_FL, s_myfl, off=128 * h, mod="sc1"), raw("s_mov_b64 exec, -1", "salu", wr=["exec"])]
vpa = V(51)
s_done, s_new, s_sb = s_kK, s_kV, s_fo
def spl(gp, i): return A((gp * 2 + i) * 4, 4)
def flag_load(): return bload(vpoll, vpa, S_FL, s_t2, n=1, mod="sc1")
lblc = [0]
def issue_new():
    k = lblc[0]; lblc[0] += 1
    e(valu("v_cmp_eq_u32", "vcc", 1, vpoll)); e(nop(1))
    e(raw("s_andn2_b32 %s, vcc_lo, %s" % (s_new, s_done), "salu", rd=["vcc", s_done], wr=[s_new, "scc"])); e(salu("s_and_b32", s_new, s_new, 255))
    e(raw("s_cbranch_scc0 L_in%d_end" % k, rd=["scc"]))
    e(salu("s_or_b32", s_done, s_done, s_new))
    for gp in range(8):
        e(scmp("s_bitcmp1_b32", s_new, gp)); e(raw("s_cbranch_scc0 L_in%d_%d" % (k, gp), rd=["scc"]))
        e(salu("s_add_u32", s_t0, s_sb, gp * 8192) if not os.environ.get("NOLD") else salu("s_mov_b32", s_t0, s_oob, scc_w=False))
        for i in range(2): e(raw(bload(spl(gp, i), v_lin, S_SPC, s_t0, off=i * 1024, mod="sc1").text))
        em.label("L_in%d_%d" % (k, gp))
    em.label("L_in%d_end" % k)
pinit = [salu("s_lshl_b32", s_t2, s_cq, 3), salu("s_add_u32", s_t2, s_t2, s_cg), salu("s_lshl_b32", s_t2, s_t2, 7), salu("s_mov_b32", s_done, 0, scc_w=False),
         salu("s_lshl_b32", s_sb, s_cg, 16), salu("s_lshl_b32", s_new, s_w, 11), salu("s_add_u32", s_sb, s_sb, s_new)]
extra.setdefault(G1 - 8, []).append((1, pinit, 0))
class MidPoll:
    def __init__(self, tok): self.tok = tok
    def __call__(self):
        em.wait(vm=self.tok); issue_new()
        e(salu("s_mov_b32", s_hb, s_done, scc_w=False))
        midmark.append(em.vm_total)
        return []
midmark = []
if int(os.environ.get("MID", "1")):
    pt = flag_load()
    MIDPOST = int(os.environ.get("MIDPOST", "2"))
    if MIDPOST == 4: extra.setdefault(184 - int(os.environ.get("MID4", "6")), []).append((2, pt, 1))
    else: extra.setdefault(G1 - int(os.environ.get("MID0", "4")), []).append((2, pt, 1))
    if not MIDPOST: extra.setdefault(G1 + int(os.environ.get("MID1", "3")), []).append((0, MidPoll(pt), 0))
    elif MIDPOST != 4: extra.setdefault(G1 + 2, []).append((0, Wait(vm=pt), 0))
    if MIDPOST == 3:
        extra[G1 + 2].pop(); extra[G1 - int(os.environ.get("MID0", "4"))].pop()
if STAMP: extra.setdefault(G1, []).append((0, Stamp(), 0))
class Diag:
    def __call__(self): diag(); return []
if DIAG: extra.setdefault(G1, []).append((0, Diag(), 0))
vs = [Fill(norm, 0, GB - (3 if NB else 1)), Fill(early, G0 + 2, G0 + 40)] + spf
run_stream(46, s2_dma, dtok2, s2_acc, s2_B, extra, vs, posf=pos2, ring=v_ring2, first_dma=6 + NB, tr2=v_tr2, early_dma=int(os.environ.get('ED2', '0')))
stamp(); diag()
def static_loads():
    e(valu("v_cmp_eq_u32", "vcc", 1, vpoll)); e(nop(1))
    e(raw("s_and_b32 %s, vcc_lo, 255" % s_done, "salu", rd=["vcc"], wr=[s_done, "scc"]))
    for gp in range(8):
        e(salu("s_add_u32", s_t0, s_sb, gp * 8192)); e(scmp("s_bitcmp1_b32", s_done, gp)); e(salu("s_cselect_b32", s_t0, s_t0 if not os.environ.get("NOLD") else s_oob, 524288, scc_w=False, scc_r=True))
        for i in range(2): e(bload(spl(gp, i), v_lin, S_SPC, s_t0, off=i * 1024, mod="sc1"))
if MIDPOST == 4:
    em.wait(vm=pt); static_loads()
if MIDPOST == 3:
    st_next(16); fl3 = e(flag_load())
e(nop(5))
for qb in range(4):
    for u in range(4):
        if len(em.lgq) >= 12: em.wait(lg=em.lgq[-12])
        e(dswrite("ds_write_b128", vfw, Facc(u, qb), qb * 16384 + u * 1024))
    if qb & 1: st_next(int(os.environ.get("STW", "1")))
v_fr = V(96, 16); vE = V(64, 16); vs_ = V(80, 16)
for k in range(8): e(valu("v_mov_b64", vs_[(2 * k, 2)], 0))
if MIDPOST == 3:
    em.wait(vm=fl3); stamp()
    if not XY: e(flag_store(0))
    e(flag_store(1))
    static_loads()
em.wait(lg0=True)
e(raw("s_barrier"))
def frr(ws_, u): return sreg(ws_, u, 1)
for ws_ in range(4):
    for u in range(4):
        if len(em.lgq) >= 14: em.wait(lg=em.lgq[-14])
        e(dsread("ds_read_b128", frr(ws_, u), V(55), ws_ * 4096 + u * 1024))
st_next()
if MIDPOST:
    st_next(16)
    if MIDPOST == 1: static_loads()
em.wait(lg0=True)
for u in range(4):
    for k in range(2):
        e(valu("v_pk_add_f32", frr(0, u)[(2 * k, 2)], frr(0, u)[(2 * k, 2)], frr(1, u)[(2 * k, 2)]))
        e(valu("v_pk_add_f32", frr(2, u)[(2 * k, 2)], frr(2, u)[(2 * k, 2)], frr(3, u)[(2 * k, 2)]))
for u in range(4):
    for k in range(2): e(valu("v_pk_add_f32", v_fr[(4 * u + 2 * k, 2)], frr(0, u)[(2 * k, 2)], frr(2, u)[(2 * k, 2)]))
for k in range(16): e(valu("v_mul_f32", vE[k], hx(f2u(-math.log2(math.e))), v_fr[k]))
st_next()
for k in range(16): e(valu("v_exp_f32", vE[k], vE[k]))
for k in range(16): e(valu("v_add_f32", vE[k], "1.0", vE[k]))
st_next()
for k in range(16): e(valu("v_rcp_f32", vE[k], vE[k]))
for k in range(16): e(valu("v_mul_f32", v_fr[k], v_fr[k], vE[k]))
for k in range(8):
    e(valu("v_lshlrev_b32", vE[2 * k], 16, vxf[k])); e(valu("v_and_b32", vE[2 * k + 1], "0xffff0000", vxf[k]))
st_next()
stamp()
accn = [0]
def acc_pieces(mask, sprinkle=False):
    n = accn[0]; accn[0] += 1
    for gp in range(8):
        e(scmp("s_bitcmp1_b32", mask, gp)); e(raw("s_cbranch_scc0 L_acc%d_%d" % (n, gp), rd=["scc"]))
        for k2 in range(8): e(valu("v_accvgpr_read_b32", V(120 + k2), spl(gp, k2 >> 2)[k2 & 3]))
        for k in range(8):
            e(valu("v_lshlrev_b32", V(112 + 2 * (k & 3)), 16, V(120 + k))); e(valu("v_and_b32", V(113 + 2 * (k & 3)), "0xffff0000", V(120 + k)))
            e(valu("v_pk_add_f32", vs_[(2 * k, 2)], vs_[(2 * k, 2)], V(112 + 2 * (k & 3), 2)))
        em.label("L_acc%d_%d" % (n, gp))
        if sprinkle and gp & 1: st_next()
if midmark:
    n_y = em.vm_total - midmark[0]
    e(raw("s_waitcnt vmcnt(%d)" % n_y, "wait")); em._retire(em.vmq, n_y)
    acc_pieces(s_hb, sprinkle=True)
st_next(16)
if MIDPOST != 2: e(flag_load())
if MIDPOST != 3 and not FLG:
    em.wait(vm=spst[-1][0]); stamp()
    if not XY: e(flag_store(0))
    e(flag_store(1))
if MIDPOST == 2: static_loads(); e(flag_load())
s_prev = s_hl
e(salu("s_mov_b32", s_prev, s_done if MIDPOST else 0, scc_w=False)); e(salu("s_mov_b32", s_cnt, 0, scc_w=False))
em.label("L_fin_loop")
em.wait(vm0=True)
issue_new()
e(raw(flag_load().text))
acc_pieces(s_prev)
e(salu("s_mov_b32", s_prev, s_new, scc_w=False))
e(salu("s_add_u32", s_cnt, s_cnt, 1)); e(scmp("s_cmp_ge_u32", s_cnt, 50000)); e(raw("s_cbranch_scc1 L_fin_done", rd=["scc"]))
e(scmp("s_cmp_lg_u32", s_prev, 0)); e(raw("s_cbranch_scc1 L_fin_loop", rd=["scc"]))
e(scmp("s_cmp_lg_u32", s_done, 255)); e(raw("s_cbranch_scc1 L_fin_loop", rd=["scc"]))
em.label("L_fin_done")
if DUMP == "fin": dump_regs([vs_[i] for i in range(16)] + [v_fr[i] for i in range(16)])
for k in range(8): e(valu("v_pk_fma_f32", vE[(2 * k, 2)], vs_[(2 * k, 2)], v_fr[(2 * k, 2)], vE[(2 * k, 2)]))
for k in range(8): e(valu("v_cvt_pk_bf16_f32", vxf[k], vE[2 * k], vE[2 * k + 1]))
for u in range(4): e(bstore(vxf[(2 * u, 2)], vxa, S_OUT, 0, off=32 * u))
stamp(); diag_out()
em.label("L_end")
e(raw("s_endpgm"))
main_end = len(em.out)

em.lgq, em.vmq, em.pend = [], [], {}
em.label("L_sigH_side")
e(salu("s_lshl_b32", s_t1, s_qb, 3)); e(salu("s_add_u32", s_t1, s_t1, s_g))
e(raw("s_mov_b64 exec, 2", "salu", wr=["exec"]))
e(raw("buffer_store_byte %s, off, %s, %s sc1" % (v_fa, S_DBG, s_t1)))
e(raw("s_mov_b64 exec, -1", "salu", wr=["exec"]))
e(raw("s_branch L_sigH_ret"))
em.label("L_fallback")
e(raw("s_waitcnt vmcnt(0) lgkmcnt(0)")); em._retire(em.vmq, 0); em._retire(em.lgq, 0)
e(salu("s_mov_b32", s_retry, 1, scc_w=False))
e(salu("s_mov_b32", S_H[2], 0, scc_w=False))
e(salu("s_mov_b32", s_kK, 0, scc_w=False))
fm = [V(40 + i) for i in range(4)]
for i in range(4): e(valu("v_mov_b32", fm[i], "0xff800000"))
em.label("L_fb_loop")
e(raw("s_barrier"))
e(salu("s_add_u32", "m0", s_m0b, 4 * 16384)); e(nop(0))
for j in range(4): e(dma(v_kd[j], S_K, s_kK, j * 1024))
em.wait(vm0=True)
e(raw("s_barrier"))
for kb in range(4):
    rr = [e(dsread("ds_read_b128", fr(ds), v_ka[ds], kb * 4096)) for ds in range(4)]
    em.wait(lg0=True)
    for ds in range(4):
        for qb in range(4):
            d = v_S[0][(qb * 4, 4)]
            e(mfma(d, fr(ds), Qf(qb, ds), 0 if ds == 0 else d))
    e(nop(7))
    for qb in range(4):
        e(valu("v_max3_f32", fm[qb], fm[qb], v_S[0][qb * 4], v_S[0][qb * 4 + 1])); e(valu("v_max3_f32", fm[qb], fm[qb], v_S[0][qb * 4 + 2], v_S[0][qb * 4 + 3]))
    e(nop(2))
e(salu("s_add_u32", s_kK, s_kK, 16384)); e(scmp("s_cmp_lt_u32", s_kK, 524288)); e(raw("s_cbranch_scc1 L_fb_loop", rd=["scc"]))
red4("v_max_f32", fm, [V(44 + i) for i in range(4)])
for qb in range(4):
    for k in range(4): e(valu("v_sub_f32", v_negm[qb * 4 + k], 0, fm[qb]))
e(raw("s_barrier"))
for m in (64, 65, 66):
    sa, dm = s1_dma(m); e(sa)
    for d in dm: e(d)
e(raw("s_waitcnt vmcnt(0)"))
e(raw("s_branch L_att_start"))
em.label("L_code_end")
e(raw("s_endpgm"))

probs = check_hazards(em.out, "main") + loop_probs
for p in probs: print("; HAZARD", p, file=sys.stderr)
assert not probs

hdr = open(os.path.join(os.path.dirname(os.path.abspath(__file__)), "header.txt")).read()
print(hdr.rstrip())
print("; @launch grid=(256,1,1) block=(256,1,1) lds=163840")
print('.amdgcn_target "amdgcn-amd-amdhsa--gfx950"\n.text\n.globl %s\n.p2align 8\n.type %s,@function\n%s:' % (KN, KN, KN))
print(em.text())
print('.section .rodata,"a"\n.p2align 6\n.amdhsa_kernel %s' % KN)
print("  .amdhsa_next_free_vgpr 512\n  .amdhsa_next_free_sgpr 102\n  .amdhsa_accum_offset 256\n  .amdhsa_group_segment_fixed_size 0\n  .amdhsa_kernarg_size 96\n  .amdhsa_user_sgpr_count 2\n  .amdhsa_user_sgpr_kernarg_segment_ptr 1\n  .amdhsa_system_sgpr_workgroup_id_x 1\n.end_amdhsa_kernel")
```

```python
import sys, os, math, struct
from asmgen import *

KN = "recurrent_scan__gqa_block_cached__geglu_ffn__prompt_kernel"
DUMP = os.environ.get("DUMP", "")
STAMP = int(os.environ.get("STAMP", "0"))
GEL_END = int(os.environ.get("GEL_END", "247")); GEL_EXTRA = int(os.environ.get("GEL_EXTRA", "360"))

def f2u(x): return struct.unpack("<I", struct.pack("<f", x))[0]
def hx(x): return "0x%x" % (x & 0xffffffff)

S_X, S_K, S_V, S_WQ, S_WO, S_WG, S_WU, S_WD, S_OUT, S_DBG, S_H, S_SP = [S(4 + 4 * i, 4) for i in range(12)]
s_g, s_qb, s_w = S(52), S(53), S(54)
s_t0, s_t1, s_t2, s_t3 = S(55), S(56), S(57), S(58)
s_m0b = S(59)
s_off = S(60)
s_cnt = S(61)
s_kK, s_kV = S(62), S(63)
s_retry = S(64)
s_h0, s_h1 = S(65), S(66)
s_hl = S(67); s_hb = S(78); s_myfl = S(79); s_wdd = S(67); s_sig = S(78)
s_ka = S(68, 16); s_kb = S(84, 8)
s_pair = S(92, 2); s_pair2 = S(94, 2)
S_DMP = S(96, 4)
s_cq, s_cg = S(76), S(77)
S_HC = S(80, 4)
S_SPC = S(84, 4)
S_XC = S(88, 4)
s_st = S(68, 4)

v_tid, v_lane, v_lin, v_t = V(0), V(1), V(2), V(3)
v_tr = [V(4, 4), V(8, 4)]
v_dA, v_dB = V(12, 4), V(16, 4)
v_ka = V(20, 4); v_va = V(24, 8); v_kd = V(32, 4); v_vd = V(36, 2)
v_wl = V(38)
v_c = V(39)
v_l0, v_l1 = V(40, 4), V(44, 4)
v_lsave = V(16, 4)
v_negm = V(48, 16)
v_S = [V(64, 32), V(96, 32)]
v_acc = V(128, 128)
a_ring = A(128, 32)
a_B = A(160, 32)
a_Q = A(0, 64)
a_F = A(0, 64)
a_x = A(248, 8)
LSUM = int(os.environ.get('LSUM', '1'))
a_L = A(224, 16); a_ones = A(240, 4)

RING = 65536
MARK = 0x7fc17fc1
WS_SP = 8 << 20
WS_DUMP = 32 << 20
WS_FL = (7 << 20) + (512 << 10)
S_FLZ = S(4, 4)
S_FL = S(4, 4)

em = Em()
e = em.e

def srd(dst, lo, hi, size, off_s=None):
    if off_s is None:
        e(salu("s_mov_b32", dst[0], lo, scc_w=False)); e(salu("s_mov_b32", dst[1], hi, scc_w=False))
    else:
        e(salu("s_add_u32", dst[0], lo, off_s)); e(salu("s_addc_u32", dst[1], hi, 0, scc_r=True))
    e(salu("s_mov_b32", dst[2], hx(size), scc_w=False)); e(salu("s_mov_b32", dst[3], "0x20000", scc_w=False))

DIAG = int(os.environ.get("DIAG", "0"))
HC_OFF = 128
diag_regs = [S(100, 2), S(70, 2), S(72, 2), S(74, 2), S(96, 2), S(98, 2), S(68, 2)] if DIAG != 2 else [S(100, 2), S(96, 2), S(98, 2), S(94, 2), S(70, 2), S(72, 2), S(74, 2), S(68, 2)]
diag_n = [0]
def diag(which=1, last=False):
    if not DIAG or (which != DIAG and which != 0): return
    k = diag_n[0]; diag_n[0] += 1
    e(raw("%s %s" % ("s_memtime" if (os.environ.get("CYC") and not last) else "s_memrealtime", diag_regs[k]), "other", wr=[diag_regs[k]]))
    if k > 0: e(raw("s_waitcnt lgkmcnt(0)", "wait")); em._retire(em.lgq, 0)
AMP = os.environ.get("AMP")
def diag_out():
    if not DIAG: return
    diag(0, last=True)
    if AMP:
        k = int(AMP); last = diag_regs[diag_n[0] - 1]
        e(salu("s_sub_u32", s_t0, diag_regs[k][0], diag_regs[int(os.environ.get("AMP0", "0"))][0]))
        if os.environ.get("CYC"): e(salu("s_lshr_b32", s_t0, s_t0, 2))
        else: e(salu("s_lshl_b32", s_t0, s_t0, 2))
        em.label("L_amp")
        e(raw("s_memrealtime s[56:57]")); e(raw("s_waitcnt lgkmcnt(0)"))
        e(salu("s_sub_u32", s_t1, s_t1, last[0])); e(scmp("s_cmp_lt_u32", s_t1, s_t0)); e(raw("s_cbranch_scc1 L_amp", rd=["scc"]))
        return
    e(scmp("s_cmp_lg_u32", s_w, 0)); e(raw("s_cbranch_scc1 L_end", rd=["scc"]))
    e(raw("s_mov_b64 exec, 1", "salu", wr=["exec"]))
    e(salu("s_not_b32", s_t0, diag_regs[0][0]))
    for k in range(diag_n[0]):
        e(valu("v_mov_b32", V(4 + k), s_t0 if k == 0 else diag_regs[k][0]))
        e(raw("buffer_atomic_umax %s, off, %s, 0 offset:%d sc1" % (V(4 + k), S_DBG, 4 * k)))
    e(valu("v_mov_b32", V(12), diag_regs[0][0]))
    e(raw("buffer_atomic_umax %s, off, %s, 0 offset:%d sc1" % (V(12), S_DBG, 4 * 9)))
stamp_n = [0]
def stamp():
    if not STAMP: return
    k = stamp_n[0]; stamp_n[0] += 1
    e(raw("s_memtime %s" % S(68, 2), "other", wr=[S(68, 2)]))
    e(raw("s_memrealtime %s" % S(70, 2), "other", wr=[S(70, 2)]))
    e(raw("s_waitcnt lgkmcnt(0)", "wait")); em._retire(em.lgq, 0)
    for i in range(4): e(valu("v_writelane_b32", v_c, S(68 + i), i, rmw=True))
    e(salu("s_lshl_b32", S(72), S(2), 2)); e(salu("s_add_u32", S(72), S(72), s_w)); e(salu("s_lshl_b32", S(72), S(72), 9))
    e(salu("s_mov_b64", S(74, 2), "exec", scc_w=False)); e(raw("s_mov_b64 exec, 15", "salu", wr=["exec"]))
    e(valu("v_lshlrev_b32", v_t, 2, v_lane))
    e(bstore(v_c, v_t, S_DMP, S(72), off=k * 16))
    e(raw("s_mov_b64 exec, %s" % S(74, 2), "salu", wr=["exec"]))
    e(valu("v_lshlrev_b32", v_t, 7, v_lane))

def dump_regs(regs, finish=True):
    em.wait(lg0=True, vm0=True)
    e(nop(7)); e(nop(7))
    n = len(regs)
    e(salu("s_lshl_b32", s_t0, S(2), 2)); e(salu("s_add_u32", s_t0, s_t0, s_w)); e(salu("s_mul_i32", s_t0, s_t0, n * 256, scc_w=False))
    e(valu("v_lshlrev_b32", v_t, 2, v_lane))
    for k, r in enumerate(regs):
        e(bstore(r, v_t, S_DMP, s_t0, off=0))
        e(salu("s_add_u32", s_t0, s_t0, 256))
        if k % 32 == 31: em.wait(vm0=True)
    em.wait(vm0=True)
    if finish: e(raw("s_endpgm"))

def red4(op, x, tmp):
    for sw in ("v_permlane32_swap_b32", "v_permlane16_swap_b32"):
        for a, t in zip(x, tmp): e(valu("v_mov_b32", t, a))
        if len(x) < 3: e(nop(1))
        for a, t in zip(x, tmp): e(valu(sw, a, t))
        for a, t in zip(x, tmp): e(valu(op, a, a, t))

e(scmp("s_cmp_ge_u32", S(2), 256)); e(raw("s_cbranch_scc1 L_end", rd=["scc"]))
diag(0)
i0 = e(I("s_load_dwordx16 %s, s[0:1], 0" % s_ka, "smem", wr=s_ka.regs()))
i1 = e(I("s_load_dwordx8 %s, s[0:1], 64" % s_kb, "smem", wr=s_kb.regs()))
vq, vG, vr, vc_, vx, vy, vz = [V(40 + i) for i in range(7)]
e(raw("s_getpc_b64 %s" % s_pair2, "salu", wr=[s_pair2]))
em.label("L_pc0")
CT0 = int(os.environ.get("CT0", "64"))
if CT0:
    e(valu("v_sub_u32", V(55), 255, v_tid)); e(valu("v_cmp_gt_u32", "vcc", CT0, V(55))); e(valu("v_lshlrev_b32", V(55), 7, V(55))); e(nop(0))
    e(raw("s_and_saveexec_b64 s[4:5], vcc", "salu", wr=["exec"], rd=["vcc"])); e(raw("s_cbranch_execz L_ct0"))
    e(raw("global_load_dword v55, v55, %s" % s_pair2))
    em.label("L_ct0")
    e(raw("s_mov_b64 exec, -1", "salu", wr=["exec"]))
MAP2 = int(os.environ.get("MAP2", "0"))
s_i = S(65)
if MAP2:
    e(salu("s_and_b32", s_g, S(2), 3)); e(salu("s_lshl_b32", s_g, s_g, 1)); e(salu("s_bfe_u32", s_t0, S(2), "0x10003")); e(salu("s_add_u32", s_g, s_g, s_t0))
    e(salu("s_bfe_u32", s_qb, S(2), "0x10002")); e(salu("s_lshl_b32", s_qb, s_qb, 4)); e(salu("s_lshr_b32", s_t0, S(2), 4)); e(salu("s_add_u32", s_qb, s_qb, s_t0))
else:
    e(salu("s_and_b32", s_g, S(2), 7)); e(salu("s_lshr_b32", s_qb, S(2), 3))
def sx(dst): return salu("s_lshr_b32", dst, S(2), 4 if MAP2 else 3)
TL = "-1" if MAP2 else "0xffffffff"
e(valu("v_and_b32", v_lane, 63, v_tid))
e(valu("v_lshrrev_b32", v_t, 6, v_tid))
e(valu("v_lshlrev_b32", v_lin, 4, v_lane))
e(valu("v_readfirstlane_b32", s_w, v_t))
e(valu("v_and_b32", vq, 15, v_lane)); e(valu("v_lshrrev_b32", vG, 4, v_lane))
vxo = V(47)
e(valu("v_lshl_add_u32", vxo, v_t, 4, vq)); e(valu("v_lshlrev_b32", vxo, 10, vxo)); e(valu("v_lshl_add_u32", vxo, vG, 4, vxo))
vwg, vwq, vcw = V(52), V(53), V(54)
e(salu("s_mul_i32", s_t1, s_g, 448, scc_w=False)); e(salu("s_and_b32", s_t1, s_t1, hx(~127)))
e(salu("s_and_b32", s_t2, s_w, 1)); e(sx(s_t3)); e(salu("s_lshl_b32", s_t3, s_t3, 1)); e(salu("s_add_u32", s_t2, s_t2, s_t3))
e(salu("s_mul_i32", s_t2, s_t2, (16 if MAP2 else 8) * 3584, scc_w=False)); e(salu("s_add_u32", s_t1, s_t1, s_t2))
e(valu("v_lshrrev_b32", vx, 2, v_lane)); e(valu("v_mul_u32_u24", vx, 3584, vx)); e(valu("v_and_b32", vz, 3, v_lane)); e(valu("v_lshl_add_u32", vx, vz, 7, vx))
e(valu("v_add_u32", vwg, s_t1, vx))
e(salu("s_lshr_b32", s_t2, S(2), 3)); e(salu("s_lshl_b32", s_t2, s_t2, 2)); e(salu("s_add_u32", s_t2, s_t2, s_w)); e(salu("s_lshl_b32", s_t3, s_t2, 8))
e(valu("v_lshlrev_b32", vcw, 7, v_lane)); e(valu("v_add_u32", vcw, s_t3, vcw))
e(salu("s_lshl_b32", s_t0, s_qb, 16))
em.wait(lg0=True)
diag(2)
srd(S_X, s_ka[0], s_ka[1], 65536, s_t0)
v_xp = V(64, 64)
XFIRST = int(os.environ.get("XFIRST", "12"))
xl = [bload(v_xp[(4 * ks, 4)], vxo, S_X, 0, off=64 * ks) for ks in range(16)]
for ks in range(XFIRST): e(xl[ks])
e(scmp("s_cmp_lt_u32", s_w, 2)); e(salu("s_cselect_b64", s_pair, s_ka[(12, 2)], s_ka[(14, 2)], scc_w=False, scc_r=True))
e(raw("s_mov_b64 exec, " + TL, "salu", wr=["exec"]))
e(I("global_load_dword %s, %s, %s" % (V(48), vwg, s_pair), "vmem", rd=vwg.regs() + s_pair.regs(), wr=V(48).regs()))
e(raw("s_mov_b64 exec, 3", "salu", wr=["exec"]))
e(I("global_load_dword %s, %s, %s" % (V(49), vcw, s_pair2), "vmem", rd=vcw.regs() + s_pair2.regs(), wr=V(49).regs()))
e(raw("s_mov_b64 exec, -1", "salu", wr=["exec"]))
e(sx(s_t2)); e(salu("s_lshl_b32", s_t2, s_t2, 2)); e(salu("s_add_u32", s_t2, s_t2, s_w))
e(salu("s_lshl_b32", s_t2, s_t2, 16 if MAP2 else 15)); e(salu("s_lshl_b32", s_t3, s_g, 10)); e(salu("s_add_u32", s_t2, s_t2, s_t3))
e(valu("v_lshrrev_b32", vx, 3, v_lane)); e(valu("v_lshlrev_b32", vx, 13, vx)); e(valu("v_and_b32", vz, 7, v_lane)); e(valu("v_lshl_add_u32", vx, vz, 7, vx))
e(valu("v_add_u32", vwq, s_t2, vx))
e(salu("s_lshr_b32", s_t2, S(2), 6)); e(salu("s_and_b32", s_t3, S(2), 7)); e(salu("s_lshl_b32", s_t3, s_t3, 2)); e(salu("s_add_u32", s_t2, s_t2, s_t3))
e(salu("s_lshl_b32", s_t0, s_t2, 16))
srd(S_OUT, s_kb[2], s_kb[3], 65536, s_t0)
e(salu("s_lshl_b32", s_t1, s_g, 19))
srd(S_K, s_ka[2], s_ka[3], 524288, s_t1)
srd(S_V, s_ka[4], s_ka[5], 524288, s_t1)
srd(S_WO, s_ka[8], s_ka[9], 524288, s_t1)
srd(S_WQ, s_ka[6], s_ka[7], 4 << 20)
srd(S_WG, s_ka[12], s_ka[13], 1835008)
srd(S_WU, s_ka[14], s_ka[15], 1835008)
srd(S_WD, s_kb[0], s_kb[1], 1835008)
srd(S_DBG, s_kb[4], s_kb[5], 256)
e(salu("s_mul_i32", s_t1, s_qb, 229376, scc_w=False))
srd(S_H, s_kb[6], s_kb[7], 229376, s_t1)
e(salu("s_lshl_b32", s_t1, s_qb, 19)); e(salu("s_add_u32", s_t1, s_t1, hx(WS_SP)))
srd(S_SP, s_kb[6], s_kb[7], 524288, s_t1)
if DUMP or STAMP:
    e(salu("s_mov_b32", s_t1, hx(WS_DUMP), scc_w=False))
    srd(S_DMP, s_kb[6], s_kb[7], 200 << 20, s_t1)
e(salu("s_mov_b64", s_pair, S(90, 2), scc_w=False))
e(salu("s_lshl_b32", s_t0, s_t2, 16))
srd(S_XC, s_ka[0], s_ka[1], 65536, s_t0)
e(salu("s_mul_i32", s_t1, s_t2, 229376, scc_w=False))
srd(S_HC, s_pair[0], s_pair[1], 229376, s_t1)
e(salu("s_lshl_b32", s_t1, s_t2, 19)); e(salu("s_add_u32", s_t1, s_t1, hx(WS_SP)))
srd(S_SPC, s_pair[0], s_pair[1], 524288, s_t1)
e(salu("s_mov_b32", s_cq, s_t2, scc_w=False)); e(salu("s_bfe_u32", s_cg, S(2), "0x30003"))
e(salu("s_lshl_b32", s_myfl, s_qb, 2)); e(salu("s_add_u32", s_myfl, s_myfl, s_w)); e(salu("s_lshl_b32", s_myfl, s_myfl, 8))
e(salu("s_lshl_b32", s_t1, s_g, 2)); e(salu("s_add_u32", s_myfl, s_myfl, s_t1))
e(salu("s_lshl_b32", s_m0b, s_w, 12)); e(salu("s_add_u32", s_m0b, s_m0b, RING))
e(salu("s_and_b32", s_t1, s_g, 1)); e(salu("s_lshl_b32", s_t1, s_t1, 2)); e(salu("s_add_u32", s_t1, s_t1, s_w))
e(scmp("s_cmp_eq_u32", s_w, 3)); e(salu("s_cselect_b32", s_t1, 3, s_t1, scc_w=False, scc_r=True))
e(salu("s_lshr_b32", s_t2, s_g, 1)); e(salu("s_mul_i32", s_t2, s_t2, 7, scc_w=False)); e(salu("s_add_u32", s_t1, s_t1, s_t2))
e(salu("s_lshl_b32", s_h0, s_t1, 13)); e(salu("s_add_u32", s_h1, s_h0, 4096))
e(salu("s_lshl_b32", s_t1, s_t1, 7))
e(salu("s_lshl_b32", s_t2, s_g, 2)); e(salu("s_add_u32", s_t2, s_t2, s_w)); e(salu("s_lshl_b32", s_t2, s_t2, 8))

def dma_voffs(dst, stride, colbase_s, perm):
    for j in range(4):
        e(valu("v_bfe_u32", vx, v_lane, 1, 2)); e(valu("v_bfe_u32", vy, v_lane, 4, 1))
        e(valu("v_xor_b32", vx, vx, vy))
        if j & 1: e(valu("v_xor_b32", vx, 2, vx))
        e(valu("v_and_b32", vy, 1, v_lane)); e(valu("v_lshlrev_b32", vy, 4, vy)); e(valu("v_lshl_add_u32", vx, vx, 5, vy))
        if not perm:
            e(valu("v_lshrrev_b32", vy, 3, v_lane)); rowadd = 8 * j
        else:
            e(valu("v_bfe_u32", vy, v_lane, 3, 2)); e(valu("v_bfe_u32", vz, v_lane, 5, 1)); e(valu("v_lshl_add_u32", vy, vz, 4, vy)); rowadd = 4 * j
        e(valu("v_mul_u32_u24", vy, stride, vy))
        e(valu("v_add3_u32", vx, vx, vy, colbase_s))
        e(valu("v_add_u32", dst[j], rowadd * stride - j * 1024, vx))

dma_voffs(v_dA, 3584, s_t1, False)
dma_voffs(v_dB, 8192, s_t2, False)

def m0set(p): return salu("s_add_u32", "m0", s_m0b, p * 16384) if p < 6 else salu("s_sub_u32", "m0", s_m0b, RING - (p - 6) * 16384)
def s1_dma(m):
    p = m % 6
    if m < 32:
        s, h = m >> 1, m & 1
        return [m0set(p), salu("s_mov_b32", s_off, s * 32 * 3584, scc_w=False)], [dma(v_dA[j], S_WU if h else S_WG, s_off, j * 1024) for j in range(4)]
    if m < 64:
        s, h = (m - 32) >> 1, m & 1
        return [m0set(p), salu("s_mov_b32", s_off, s * 32 * 8192 + 128 * h, scc_w=False)], [dma(v_dB[j], S_WQ, s_off, j * 1024) for j in range(4)]
    if m == 64:
        return [m0set(p), salu("s_mov_b32", s_off, 0, scc_w=False)], [dma(v_kd[j], S_K, s_off, j * 1024) for j in range(4)]
    if m == 65:
        return [m0set(p), salu("s_mov_b32", s_off, 8192, scc_w=False)], [dma(v_kd[j], S_K, s_off, j * 1024) for j in range(4)]
    if m == 66:
        return [m0set(p), salu("s_mov_b32", s_off, 0, scc_w=False)], [dma(v_vd[j & 1], S_V, s_off, j * 1024) for j in range(4)]
    return None
dtok = {}
ln_v = []
for m in range(6):
    sa, dm = s1_dma(m)
    ln_v.append(sa); ln_v += dm
    dtok[m] = dm[3]
def xaddr(dst, tmp):
    e(valu("v_and_b32", dst, 15, v_lane)); e(salu("s_lshl_b32", s_t0, s_w, 4)); e(valu("v_add_u32", dst, s_t0, dst)); e(valu("v_lshlrev_b32", dst, 10, dst))
    e(valu("v_lshrrev_b32", tmp, 4, v_lane)); e(valu("v_lshl_add_u32", dst, tmp, 3, dst)); e(salu("s_lshl_b32", s_t0, s_cg, 7)); e(valu("v_add_u32", dst, s_t0, dst))
WQT = int(os.environ.get("WQT", "0"))
wqt = [raw("s_mov_b64 exec, " + TL, "salu", wr=["exec"]), bload(V(46), vwq, S_WQ, 0, n=1), raw("s_mov_b64 exec, -1", "salu", wr=["exec"])]
if WQT == 0: ln_v.append(wqt)
LNPRE = int(os.environ.get("LNPRE", "0"))
lv = [0]
def ln_issue(n=1):
    k = 0
    while k < n and lv[0] < len(ln_v):
        it = ln_v[lv[0]]; lv[0] += 1
        e(it)
        if not isinstance(it, list): k += 1
e(valu("v_bfe_u32", vr, v_lane, 2, 2)); e(valu("v_and_b32", vc_, 3, v_lane))
e(valu("v_lshlrev_b32", vx, 10, vG)); e(valu("v_lshl_add_u32", vx, vr, 7, vx)); e(valu("v_lshl_add_u32", vx, vc_, 3, vx)); e(valu("v_add_u32", vx, s_m0b, vx))
e(valu("v_lshrrev_b32", vy, 1, vr)); e(valu("v_and_b32", vz, 1, vG)); e(valu("v_lshl_add_u32", vy, vz, 1, vy))
for u in range(4):
    e(valu("v_xor_b32", vz, u, vy)); e(valu("v_lshl_add_u32", v_tr[0][u], vz, 5, vx)); e(valu("v_add_u32", v_tr[1][u], 3 * 16384, v_tr[0][u]))
e(valu("v_xor_b32", vy, vG, vq))
for ds in range(4):
    e(valu("v_xor_b32", vz, 4 * ds, vy)); e(valu("v_lshlrev_b32", vz, 4, vz)); e(valu("v_lshl_add_u32", vz, vq, 8, vz)); e(valu("v_add_u32", v_ka[ds], RING + 4 * 16384, vz))
e(valu("v_lshl_add_u32", vx, vG, 2, vr)); e(valu("v_and_b32", vy, 7, vx)); e(valu("v_lshlrev_b32", vx, 8, vx)); e(valu("v_lshl_add_u32", vx, vc_, 3, vx)); e(valu("v_add_u32", vx, RING, vx))
for db in range(8):
    e(valu("v_xor_b32", vz, db, vy)); e(valu("v_lshl_add_u32", v_va[db], vz, 5, vx))
e(salu("s_lshl_b32", s_t1, s_w, 12))
e(valu("v_lshlrev_b32", vx, 8, vG)); e(valu("v_add_u32", vx, s_t1, vx))
for j in range(4):
    e(valu("v_add_u32", vy, 4 * j, vG)); e(valu("v_xor_b32", vy, vy, vq)); e(valu("v_lshl_add_u32", v_kd[j], vy, 4, vx))
e(valu("v_and_b32", vz, 1, v_lane)); e(valu("v_lshl_add_u32", vx, vz, 4, vx))
for j in range(2):
    e(valu("v_add_u32", vy, 4 * j, vG)); e(valu("v_lshrrev_b32", vz, 1, vq)); e(valu("v_xor_b32", vy, vy, vz)); e(valu("v_lshl_add_u32", v_vd[j], vy, 5, vx))
e(salu("s_lshl_b32", s_t1, s_w, 14)); e(valu("v_add_u32", v_wl, s_t1, v_lin))
e(salu("s_mov_b32", s_retry, 0, scc_w=False))
for ks in range(XFIRST, 16): e(xl[ks])
e(salu("s_mov_b32", s_t1, hx(WS_FL), scc_w=False))
srd(S_FL, s_pair[0], s_pair[1], 32768, s_t1)
if WQT == 1: e(wqt)
ln_issue(LNPRE)
stamp()

v_f = V(128, 128)
LNM = int(os.environ.get("LNM", "1"))
vsum, vtmp, vmb, vdm = V(40), V(41), V(42), V(43)
vneg = V(56, 2)
diag(2)
if LNM:
    d1, d2 = V(56, 4), V(60, 4)
    e(valu("v_mov_b32", vtmp, "0x3f803f80"))
    for i in range(4): e(valu("v_accvgpr_write_b32", a_ones[i], vtmp))
    e(valu("v_and_b32", vtmp, 3, v_lane))
    for r in range(1, 4): e(valu("v_cmp_eq_u32", S(68 + 2 * r, 2), r, vtmp))
    e(valu("v_bfe_u32", vtmp, v_lane, 2, 2)); e(valu("v_lshrrev_b32", vmb, 4, v_lane)); e(valu("v_cmp_eq_u32", S(68, 2), vtmp, vmb))
    LND = int(os.environ.get("LND", "4"))
    for ks in range(16):
        em.wait(vm=xl[ks])
        if ks == 15: diag(2)
        x4 = v_xp[(4 * ks, 4)]
        e(mfma(d1, a_ones, x4, 0 if ks == 0 else d1))
        if ks >= LND: ln_issue(1)
        for k in range(2):
            p = 4 * ks + k
            e(valu("v_lshlrev_b32", v_f[2 * p], 16, v_xp[p])); e(valu("v_and_b32", v_f[2 * p + 1], "0xffff0000", v_xp[p]))
        e(mfma(d2, x4, x4, 0 if ks == 0 else d2))
        for k in range(2, 4):
            p = 4 * ks + k
            e(valu("v_lshlrev_b32", v_f[2 * p], 16, v_xp[p])); e(valu("v_and_b32", v_f[2 * p + 1], "0xffff0000", v_xp[p]))
    if STAMP == 3: stamp()
    ln_issue(int(os.environ.get("LN_FIRST", "0")))
    diag(2)
    if STAMP == 3: stamp()
    e(nop(2))
    e(valu("v_mul_f32", vsum, hx(f2u(1.0 / 512)), d1[0]))
    e(valu("v_cvt_pk_bf16_f32", vmb, vsum, vsum)); e(valu("v_lshlrev_b32", vmb, 16, vmb))
    e(valu("v_mov_b32", vdm, vsum))
    for r in range(1, 4): e(valu("v_cndmask_b32", d2[0], d2[0], d2[r], S(68 + 2 * r, 2)))
    e(valu("v_cndmask_b32", vsum, 0, d2[0], S(68, 2)))
    red4("v_add_f32", [vsum], [vtmp])
    e(valu("v_mul_f32", vsum, hx(f2u(1.0 / 512)), vsum))
    e(valu("v_fma_f32", vsum, "-" + str(vdm), vdm, vsum, extra_rd=vdm.regs()))
    if STAMP == 3: stamp()
else:
    acc = [V(56, 2), V(58, 2), V(60, 2), V(62, 2)]
    for ks in range(16):
        em.wait(vm=xl[ks])
        if ks == 15: diag(2)
        for k in range(4):
            p = 4 * ks + k
            e(valu("v_lshlrev_b32", v_f[2 * p], 16, v_xp[p])); e(valu("v_and_b32", v_f[2 * p + 1], "0xffff0000", v_xp[p]))
        for k in range(4):
            p = 4 * ks + k
            if ks == 0: e(valu("v_mov_b64", acc[k], v_f[(2 * p, 2)]))
            else: e(valu("v_pk_add_f32", acc[k], acc[k], v_f[(2 * p, 2)]))
    if STAMP == 3: stamp()
    ln_issue(int(os.environ.get("LN_FIRST", "12")))
    diag(2)
    if STAMP == 3: stamp()
    e(valu("v_pk_add_f32", acc[0], acc[0], acc[1])); e(valu("v_pk_add_f32", acc[2], acc[2], acc[3])); e(valu("v_pk_add_f32", acc[0], acc[0], acc[2]))
    e(valu("v_add_f32", vsum, acc[0][0], acc[0][1]))
    red4("v_add_f32", [vsum], [vtmp])
    e(valu("v_mul_f32", vsum, hx(f2u(1.0 / 512)), vsum))
    e(valu("v_cvt_pk_bf16_f32", vmb, vsum, vsum)); e(valu("v_lshlrev_b32", vmb, 16, vmb))
    e(valu("v_sub_f32", vdm, vsum, vmb))
    e(valu("v_sub_f32", vneg[0], 0, vmb))
    acc2 = [V(58, 2), V(60, 2), V(62, 2)]
    for p in range(64):
        e(valu("v_pk_add_f32", v_f[(2 * p, 2)], v_f[(2 * p, 2)], vneg, mod="op_sel_hi:[1,0]"))
    for p in range(64):
        a_ = acc2[p % 3]
        if p < 3: e(valu("v_pk_mul_f32", a_, v_f[(2 * p, 2)], v_f[(2 * p, 2)]))
        else: e(valu("v_pk_fma_f32", a_, v_f[(2 * p, 2)], v_f[(2 * p, 2)], a_))
    if STAMP == 3: stamp()
    e(valu("v_pk_add_f32", acc2[0], acc2[0], acc2[1])); e(valu("v_pk_add_f32", acc2[0], acc2[0], acc2[2]))
    e(valu("v_add_f32", vsum, acc2[0][0], acc2[0][1]))
    red4("v_add_f32", [vsum], [vtmp])
    e(valu("v_mul_f32", vsum, hx(f2u(1.0 / 512)), vsum))
    e(valu("v_fma_f32", vsum, "-" + str(vdm), vdm, vsum, extra_rd=vdm.regs()))
e(valu("v_max_f32", vsum, 0, vsum))
e(valu("v_cvt_pk_bf16_f32", vsum, vsum, vsum)); e(valu("v_lshlrev_b32", vsum, 16, vsum))
e(valu("v_add_f32", vsum, hx(f2u(1e-5)), vsum))
e(valu("v_cvt_pk_bf16_f32", vsum, vsum, vsum)); e(valu("v_lshlrev_b32", vsum, 16, vsum))
e(valu("v_sqrt_f32", vsum, vsum)); e(nop(0))
e(valu("v_cvt_pk_bf16_f32", vsum, vsum, vsum)); e(valu("v_lshlrev_b32", vsum, 16, vsum))
e(valu("v_rcp_f32", vneg[0], vsum)); e(nop(0))
if LNM: e(valu("v_mul_f32", vneg[1], "-" + str(vmb), vneg[0], mod="", extra_rd=vmb.regs()))
for ks in range(16):
    for k in range(4):
        p = 4 * ks + k
        if LNM: e(valu("v_pk_fma_f32", v_f[(2 * p, 2)], v_f[(2 * p, 2)], vneg, vneg, mod="op_sel:[0,0,1] op_sel_hi:[1,0,1]"))
        else: e(valu("v_pk_mul_f32", v_f[(2 * p, 2)], v_f[(2 * p, 2)], vneg, mod="op_sel_hi:[1,0]"))
    for k in range(4):
        p = 4 * ks + k
        e(valu("v_cvt_pk_bf16_f32", v_xp[p], v_f[2 * p], v_f[2 * p + 1]))
    e(dswrite("ds_write_b128", v_wl, v_xp[(4 * ks, 4)], ks * 1024))
ln_issue(int(os.environ.get("LN_LAST", "100")))
if STAMP == 3: stamp()
if DUMP == "ln": dump_regs([v_xp[i] for i in range(64)])
em.wait(lg0=True)
e(raw("s_barrier"))
stamp(); diag(); diag(2); diag(3)

def cost_of(it):
    k = getattr(it, "kind", "")
    return 2 if k == "trans" else (0 if k in ("salu", "nop") else 1)
class Fill:
    def __init__(self, items, start, end, spread=False): self.items, self.start, self.end, self.spread = list(items), start, end, spread; self.i = 0
    def done(self): return self.i == len(self.items)
def run_stream(NH, dmaf, dtok, accf, Bf, extra, fills, LOOK=6, nq=4, posf=lambda m: m % 6, ring=a_ring, first_dma=6, tr2=None, early_dma=False):
    NG = 4 * NH
    rtok = {}
    def reads(g):
        m, u = g >> 2, g & 3
        p = posf(m)
        d = ring[((g % 8) * 4, 4)]
        ar, of = (v_tr[p // 3][u], (p % 3) * 16384) if p < 6 else (tr2[u], (p - 6) * 16384)
        r = [dsread("ds_read_b64_tr_b16", d[(2 * h2, 2)], ar, of + h2 * 512) for h2 in range(2)]
        rtok[g] = r[1]
        return r
    pre = [reads(g) for g in range(3)]
    G, C = [], []
    cur = None
    for g in range(NG):
        gaps = [[], [], [], []]; cap = [2, 2, 2, 2]
        if g + 3 < NG:
            if (g + 3) & 3 == 0: gaps[0].append(LateW(dtok, (g + 3) >> 2))
            r = reads(g + 3); gaps[0].append(r[0]); gaps[1].append(r[1]); cap[0] -= 1; cap[1] -= 1
        md, j = (g + 4 * LOOK - 4) >> 2, (g + 4 * LOOK - 4) & 3
        if early_dma:
            md, j = (g + 4 * LOOK - 3) >> 2, (g + 4 * LOOK - 3) & 3
            if md >= first_dma and j < 2:
                if j == 0: cur = dmaf(md)
                if cur is not None:
                    if j == 0: gaps[1] += cur[0]
                    gaps[2].append(cur[1][2 * j]); gaps[3].append(cur[1][2 * j + 1]); cap[2] -= 1; cap[3] -= 1
                    if j == 1: dtok[md] = cur[1][3]
        elif md >= first_dma:
            if j == 0: cur = dmaf(md)
            if cur is not None:
                if j == 0: gaps[2] += cur[0]
                for it in cur[1][j::4]: gaps[3].append(it); cap[3] -= 1
                if j == 3: dtok[md] = cur[1][3]
        for (gp, it, cost) in extra.get(g, []):
            gaps[gp].append(it); cap[gp] -= cost
        if g + 1 < NG: gaps[3].insert(0, Wait(lg=rtok[g + 1]))
        G.append(gaps); C.append(cap)
    B = {}
    for f in fills:
        idx = [(g, q) for g in range(f.start, f.end) for q in range(4)]
        caps = [max(0, C[g][q]) for g, q in idx]
        W = sum(cost_of(it) for it in f.items); T = sum(caps); n = len(idx)
        acc = 0.0; cum = 0
        for k, key in enumerate(idx):
            if W >= T: acc += caps[k] + (W - T) / n
            elif f.spread: acc += caps[k] * W / T
            else: acc += caps[k]
            B[key] = (f, acc)
    em.wait(vm=dtok[0])
    for r in pre: e(r)
    for p_ in extra.get(-1, []): e(p_[1])
    em.wait(lg0=True)
    used = {id(f): 0 for f in fills}
    for g in range(NG):
        m, u = g >> 2, g & 3
        d = ring[((g % 8) * 4, 4)]
        for qb in range(nq):
            ac, first = accf(m, u, qb)
            e(mfma(ac, d, Bf(m, qb), 0 if first else ac))
            ent = B.get((g, qb))
            sawv = False
            if ent:
                f, lim = ent
                while not f.done() and getattr(f.items[f.i], "kind", "") in ("lds", "vmem", "salu") and used[id(f)] + cost_of(f.items[f.i]) <= lim + 0.5:
                    it = f.items[f.i]; f.i += 1; used[id(f)] += cost_of(it); e(it)
            for it in G[g][qb]: e(it)
            if ent:
                f, lim = ent
                lastgap = (g == f.end - 1 and qb == 3)
                while not f.done():
                    it = f.items[f.i]; c = cost_of(it)
                    if not lastgap:
                        if used[id(f)] + c > lim + 0.5: break
                        if sawv and getattr(it, "kind", "") in ("lds", "vmem"): break
                    f.i += 1; used[id(f)] += c; e(it)
                    if getattr(it, "kind", "") in ("valu", "trans"): sawv = True
    assert all(f.done() for f in fills)
class LateW:
    def __init__(self, d, k): self.d, self.k = d, k
    def __call__(self): return Wait(vm=self.d[self.k])

def s1_acc(m, u, qb):
    h = m & 1
    idx = ((h * 4 + u) * 4 + qb) * 4
    if m < 32: return A(idx, 4), m < 2
    return v_acc[(idx, 4)], m < 34
def s1_B(m, qb): return a_B[(((m >> 1) & 1) * 16 + qb * 4, 4)]
extra = {}
btok = {}
def bread(s, qb): return dsread("ds_read_b128", a_B[((s & 1) * 16 + qb * 4, 4)], v_lin, (qb * 16 + (s % 16)) * 1024)
extra[-1] = [(0, bread(0, qb), 1) for qb in range(4)]
for s in range(1, 32):
    for qb in range(4):
        extra.setdefault(8 * (s - 1) + 1 + qb, []).append((2, bread(s, qb), 1))
gi = 0; gj = 0; pend_s = []
for it in ln_v[lv[0]:]:
    if isinstance(it, list) and all(x.kind == "salu" for x in it): pend_s = it; continue
    if not isinstance(it, list) and it.kind == "dma":
        assert gi < 12
        extra.setdefault(gi // 3, []).append((gi % 3, [pend_s, it] if pend_s else it, 1)); pend_s = []
        gi += 1
    else:
        extra.setdefault(8 + 2 * gj, []).append((1, it, 1)); gj += 1
C0 = -2.0 * math.sqrt(2.0 / math.pi) * math.log2(math.e); C1 = C0 * 0.044715
vc0, vc1 = V(40), V(41)
gel = [valu("v_mov_b32", vc0, hx(f2u(C0))), valu("v_mov_b32", vc1, hx(f2u(C1)))]
hst = []
tb = 0
for i in range(2):
    for qb in range(4):
        pk = V(96 + 4 * tb, 4); tb += 1
        for b in range(2):
            u = 2 * i + b
            T = [V(64 + 16 * b + k) for k in range(16)]
            G_, U_, X_ = T[0:4], T[4:8], T[8:12]
            ga = lambda r: A((u * 4 + qb) * 4 + r); ua = lambda r: A(((4 + u) * 4 + qb) * 4 + r)
            for r in range(4): gel.append(valu("v_accvgpr_read_b32", G_[r], ga(r)))
            for r in range(4): gel.append(valu("v_accvgpr_read_b32", U_[r], ua(r)))
            for r in range(4): gel.append(valu("v_mul_f32", X_[r], G_[r], G_[r]))
            for r in range(4): gel.append(valu("v_fma_f32", X_[r], X_[r], vc1, vc0))
            for r in range(4): gel.append(valu("v_mul_f32", X_[r], X_[r], G_[r]))
            for r in range(4): gel.append(valu("v_exp_f32", X_[r], X_[r]))
            for r in range(4): gel.append(valu("v_mul_f32", G_[r], G_[r], U_[r]))
            for r in range(4): gel.append(valu("v_add_f32", X_[r], "1.0", X_[r]))
            for r in range(4): gel.append(valu("v_rcp_f32", X_[r], X_[r]))
            gel.append(nop(0))
            for r in range(4): gel.append(valu("v_mul_f32", G_[r], G_[r], X_[r]))
            for k in range(2): gel.append(valu("v_cvt_pk_bf16_f32", pk[2 * b + k], G_[2 * k], G_[2 * k + 1]))
        st = bstore(pk, v_lin, S_H, s_h1 if i else s_h0, off=qb * 1024, mod="sc1")
        hst.append(st)
class Stamp:
    def __call__(self): stamp(); return []
if STAMP: extra.setdefault(128, []).append((0, Stamp(), 0))
class Diag3:
    def __call__(self): diag(3); return []
if DIAG == 3:
    for g_ in (32, 128, 192): extra.setdefault(g_, []).append((0, Diag3(), 0))
class Grp:
    kind = "salu"
    def __init__(self, l): self.l = l
    def __call__(self):
        for x in self.l:
            if x.kind == "label": em.out.append(x)
            else: e(x)
        return []
def group_scc(items):
    out = []
    for it in items:
        if out and ("scc" in it.rd or it.kind == "label"):
            p = out.pop(); out.append(Grp((p.l if isinstance(p, Grp) else [p]) + [it]))
        else: out.append(it)
    return out
s_pf = [S(24, 2), S(26, 2), S(28, 2), S(30, 2)]
s_pfH = s_pair2
s_fo = S(3)
QS = math.log2(math.e) / math.sqrt(128.0)
vqs = V(42, 2); vqw = V(44)
save = em.out; em.out = []; spend = em.pend; em.pend = {}
NWO = 4 if MAP2 else 2
for it in range(3):
    e(salu("s_add_u32", s_t0, s_w, 4 * it))
    e(salu("s_sub_u32", s_t1, s_t0, NWO)); e(salu("s_min_u32", s_t1, s_t1, 6)); e(salu("s_lshl_b32", s_t1, s_t1, 13))
    e(salu("s_lshr_b32", s_t2, S(2), 3)); e(salu("s_mul_i32", s_t2, s_t2, 57344, scc_w=False)); e(salu("s_add_u32", s_t1, s_t1, s_t2))
    e(salu("s_add_u32", s_pf[it][0], S_WD[0], s_t1)); e(salu("s_addc_u32", s_pf[it][1], S_WD[1], 0, scc_r=True))
    if it == 0:
        e(sx(s_t1)); e(salu("s_lshl_b32", s_t1, s_t1, 15 if MAP2 else 14)); e(salu("s_lshl_b32", s_t2, s_w, 13)); e(salu("s_add_u32", s_t1, s_t1, s_t2))
        e(salu("s_add_u32", s_pf[1][0], S_WO[0], s_t1)); e(salu("s_addc_u32", s_pf[1][1], S_WO[1], 0, scc_r=True))
        e(scmp("s_cmp_lt_u32", s_w, NWO)); e(salu("s_cselect_b64", s_pf[0], s_pf[1], s_pf[0], scc_w=False, scc_r=True))
e(raw("s_getpc_b64 %s" % s_pf[3], "salu", wr=[s_pf[3]]))
em.label("L_pc1")
e(salu("s_lshl_b32", s_t0, s_w, 13)); e(salu("s_add_u32", s_t0, s_t0, "L_tail-L_pc1")); e(salu("s_min_u32", s_t0, s_t0, "L_code_end-L_pc1-8192"))
e(salu("s_add_u32", s_t1, s_t0, (1 if MAP2 else 3) * 8192)); e(salu("s_min_u32", s_t1, s_t1, "L_code_end-L_pc1-8192"))
e(salu("s_add_u32", s_pfH[0], s_pf[3][0], s_t1)); e(salu("s_addc_u32", s_pfH[1], s_pf[3][1], 0, scc_r=True))
e(scmp("s_cmp_lt_u32", s_w, 3 if MAP2 else 1)); e(salu("s_cselect_b64", s_pf[2], s_pf[2], s_pfH, scc_w=False, scc_r=True))
e(salu("s_add_u32", s_pf[3][0], s_pf[3][0], s_t0)); e(salu("s_addc_u32", s_pf[3][1], s_pf[3][1], 0, scc_r=True))
e(salu("s_lshl_b32", s_t0, s_cg, 2)); e(salu("s_add_u32", s_t0, s_t0, s_w)); e(salu("s_mul_i32", s_t0, s_t0, 7168, scc_w=False)); e(salu("s_min_u32", s_t0, s_t0, 229376 - 8192))
e(salu("s_add_u32", s_pfH[0], S_HC[0], s_t0)); e(salu("s_addc_u32", s_pfH[1], S_HC[1], 0, scc_r=True))
e(salu("s_lshl_b32", s_fo, s_cq, 3))
vx, vy, vz = V(45), V(46), V(47)
e(salu("s_lshl_b32", s_t1, s_w, 8))
dma_voffs(v_dA, 1024, s_t1, True)
e(salu("s_mul_i32", s_wdd, s_w, 448 * 1024 - 256, scc_w=False)); e(salu("s_lshl_b32", s_t3, s_cg, 7)); e(salu("s_add_u32", s_wdd, s_wdd, s_t3))
e(valu("v_mov_b32", vqs[0], hx(f2u(QS))))
e(valu("v_and_b32", vx, 15, v_lane)); e(valu("v_bfe_u32", vqw, v_lane, 5, 1)); e(valu("v_lshl_add_u32", vx, vqw, 4, vx)); e(valu("v_lshlrev_b32", vx, 4, vx))
e(valu("v_bfe_u32", vqw, v_lane, 4, 1)); e(valu("v_lshl_add_u32", vqw, vqw, 3, vx))
e(salu("s_lshl_b32", s_t1, s_w, 14)); e(valu("v_add_u32", vqw, s_t1, vqw))
midset = group_scc(em.out); em.out = save; em.pend = spend
HST = int(os.environ.get("HST", "0"))
if HST == 0: GEL_END = 254
for k in range(8):
    if HST: extra.setdefault(248 + k, []).append((0, hst[k], 1))
run_stream(64, s1_dma, dtok, s1_acc, s1_B, extra, [Fill(midset, 109, 130), Fill(gel, 131, GEL_END)], early_dma=int(os.environ.get('ED1', '0')))
if DUMP == "qacc": dump_regs([v_acc[i] for i in range(128)])
stamp(); diag(3)

em.wait(lg0=True)
e(raw("s_barrier"))
def signal(off_s_expr_add, lab, v_t):
    e(scmp("s_cmp_lg_u32", s_w, 0)); e(raw("s_cbranch_scc1 %s" % lab, rd=["scc"]))
    e(salu("s_lshl_b32", s_t0, s_qb, 2))
    if off_s_expr_add: e(salu("s_add_u32", s_t0, s_t0, off_s_expr_add))
    e(valu("v_mov_b32", v_t, 1))
    e(raw("s_mov_b64 exec, 1", "salu", wr=["exec"]))
    e(raw("buffer_atomic_add %s, off, %s, %s sc1" % (v_t, S_DBG, s_t0)))
    e(raw("s_mov_b64 exec, -1", "salu", wr=["exec"]))
    em.label(lab)
for blk in range(8):
    for qb in range(4):
        a_ = v_acc[((blk * 4 + qb) * 4, 4)]
        t = V(64 + 2 * ((blk * 4 + qb) % 8), 2)
        for k in range(2): e(valu("v_pk_mul_f32", a_[(2 * k, 2)], a_[(2 * k, 2)], vqs, mod="op_sel_hi:[1,0]"))
        for k in range(2): e(valu("v_cvt_pk_bf16_f32", t[k], a_[2 * k], a_[2 * k + 1]))
        if len(em.lgq) >= 7: em.wait(lg=em.lgq[-7])
        e(dswrite("ds_write_b64", vqw, t, (qb * 4 + (blk >> 1)) * 1024 + (blk & 1) * 512))
for j in range(4): e(valu("v_add_u32", v_dB[j], s_wdd, v_dA[j]))
em.wait(lg0=True)
for f in range(16): e(dsread("ds_read_b128", a_Q[(4 * f, 4)], v_wl, f * 1024))
em.label("L_att_start")
NZ0 = 32
for i in range(NZ0): e(valu("v_mov_b64", v_acc[(2 * i, 2)], 0))
if LSUM:
    for i in range(16): e(valu("v_accvgpr_write_b32", a_L[i], 0))
    e(valu("v_mov_b32", V(40), "0x3f803f80"))
    if LSUM == 2:
        e(valu("v_and_b32", V(41), 15, v_lane)); e(valu("v_cmp_eq_u32", "vcc", 0, V(41))); e(nop(1)); e(valu("v_cndmask_b32", V(40), 0, V(40), "vcc"))
    for i in range(4): e(valu("v_accvgpr_write_b32", a_ones[i], V(40)))
else:
    for i in range(4): e(valu("v_mov_b32", v_l0[i], 0)); e(valu("v_mov_b32", v_l1[i], 0))
e(valu("v_lshlrev_b32", V(3), 7, v_lane))
e(valu("v_and_b32", V(38), 7, v_lane)); e(valu("v_mov_b32", V(0), 0))
em.wait(vm=dtok[66], lg0=True)
e(raw("s_barrier"))
if DUMP == "q": dump_regs([a_Q[i] for i in range(64)])
stamp()

def Qf(qb, ds): return a_Q[((qb * 4 + ds) * 4, 4)]
def Of(db, qb): return v_acc[((db * 4 + qb) * 4, 4)]
def fr(f): return a_ring[((f % 8) * 4, 4)]
def kslot(par): return 16384 if par == 0 else 0
def vslot(par): return 0 if par == 0 else 16384
def frag_reads(par, f):
    if f >= 32: par ^= 1; f -= 32
    d = fr(f)
    if f < 8 or 16 <= f < 24:
        kb = (f >> 2) if f < 8 else 2 + ((f - 16) >> 2)
        return [dsread("ds_read_b128", d, v_ka[f & 3], kslot(par) + kb * 4096)]
    ks2 = 0 if f < 16 else 1
    db = f & 7
    return [dsread("ds_read_b64_tr_b16", d[(2 * h, 2)], v_va[db], vslot(par) + ks2 * 8192 + h * 4096) for h in range(2)]
def read_sched(g):
    r = []
    if g + 3 < 24 or g >= 29: r.append(g + 3)
    if 19 <= g <= 26: r.append(g + 5)
    return r
def sm_val(g, k):
    if 7 <= g <= 22: b = 1; n = 2 * (g - 7) + k
    else: b = 0; n = 2 * ((g - 23) % 32) + k
    kb, qb, r = n >> 4, (n >> 2) & 3, n & 3
    return b, qb, kb, r
def sm_items(g):
    ex, ad = [], []
    for k in range(2):
        b, qb, kb, r = sm_val(g, k)
        x = v_S[b][qb * 8 + kb * 4 + r]
        l = (v_l1 if b else v_l0)[qb]
        ex.append(valu("v_exp_f32", x, x)); ad.append(valu("v_add_f32", l, l, x))
    b, qb, kb, r = sm_val((g - 1) % 32, 0)
    cv = valu("v_cvt_pk_bf16_f32", v_S[b][qb * 8 + kb * 2 + (r >> 1)], v_S[b][qb * 8 + kb * 4 + r], v_S[b][qb * 8 + kb * 4 + r + 1])
    return ex, ad, cv
def att_dma(par, g):
    if g >= 29: k = g - 29; sp = par
    elif g <= 4: k = g + 3; sp = par ^ 1
    else: return [], None
    sal = []
    if k == 0: sal = [salu("s_add_u32", "m0", s_m0b, 4 * 16384 + kslot(sp))]
    if k == 4: sal = [salu("s_add_u32", "m0", s_m0b, vslot(sp))]
    if k < 4: return sal, dma(v_kd[k], S_K, s_kK, k * 1024)
    return sal, dma(v_vd[k & 1], S_V, s_kV, (k - 4) * 1024)
SIDE_FIRST = 11
class Lbl:
    def __init__(self, n): self.n = n
    def __call__(self): em.label(self.n); return []
class LoopStamp:
    def __init__(self, k, par): self.k, self.par = k, par
    def __call__(self):
        k = self.k
        e(raw("s_memtime %s" % S(68 + 2 * k, 2), "other", wr=[S(68 + 2 * k, 2)]))
        if k == 2:
            e(raw("s_waitcnt lgkmcnt(0)", "wait")); em._retire(em.lgq, 0)
            for i in range(3): e(valu("v_writelane_b32", v_c, S(68 + 2 * i), i, rmw=True))
            e(salu("s_lshl_b32", S(74), S(2), 2)); e(salu("s_add_u32", S(74), S(74), s_w)); e(salu("s_lshl_b32", S(74), S(74), 4))
            e(salu("s_sub_u32", S(74), S(74), s_cnt)); e(salu("s_add_u32", S(74), S(74), 16)); e(salu("s_lshl_b32", S(74), S(74), 5))
            e(salu("s_add_u32", S(74), S(74), (1 << 20) + 16 * self.par))
            e(raw("s_mov_b64 exec, 7", "salu", wr=["exec"]))
            e(valu("v_lshlrev_b32", v_t, 2, v_lane))
            e(bstore(v_c, v_t, S_DMP, S(74), off=0))
            e(raw("s_mov_b64 exec, -1", "salu", wr=["exec"]))
            e(valu("v_lshlrev_b32", v_t, 7, v_lane))
        return []
v_tch, v_flag, v_fa = V(3), V(0), V(38)
xtok = []; lastdma = [None]
NITER = 14
s_pfc = S(16, 2); s_kvt = S(18, 2); KVIT = int(os.environ.get('KVIT', '12'))
ROT = int(os.environ.get('ROT', '8'))
ftok = {}
def att_group(par, g, do_mfma=True, do_mem=True, do_cvt=True, last=False, pp=None, xmem=(), xsal=(), xvalu=None):
    ex, ad, cv = sm_items(g)
    mem = []
    sal = []
    fin = (pp == 3)
    d = None
    if do_mem:
        if fin: sched = ([g + 3] if g + 3 < 16 else []) + ([g + 11] if 13 <= g <= 20 else [])
        else: sched = read_sched(g)
        for f in sched:
            r = frag_reads(par, f); mem += r; ftok[f % 32] = r
        if pp is None or (g <= 4 and pp <= 2) or (g >= 29 and pp <= 1):
            sal, d = att_dma(par, g)
            if d is not None: mem.append(d)
    loop = do_mem and pp is None
    post0 = []
    if loop and par == 0:
        if g == 14: mem.append(I("global_load_dword %s, %s, %s" % (v_c, v_tch, s_pfc), "vmem", rd=v_tch.regs() + s_pfc.regs(), wr=[]))
        if g == 13: mem.append(I("buffer_load_ubyte %s, %s, %s, %s offen sc1" % (v_flag, v_fa, S_DBG, s_t2), "vmem", rd=S_DBG.regs() + s_t2.regs() + v_fa.regs(), wr=[]))
        if g == 8: sal = sal + [scmp("s_cmp_le_u32", s_cnt, ROT)]
        if g in (9, 10, 11, 12):
            q_ = [s_pfc] + s_pf
            sal = sal + [salu("s_cselect_b64", q_[g - 9], q_[g - 8], q_[g - 9], scc_w=False, scc_r=True)]
        if g == 0: post0 = [valu("v_cmp_eq_u32", "vcc", 1, v_flag)]
        if g == 2: sal = sal + [raw("s_cmp_eq_u32 vcc_lo, -1", "salu", rd=["vcc"], wr=["scc"])]
        if g == 3: sal = sal + [salu("s_cselect_b32", s_t0, s_cnt, -1, scc_w=False, scc_r=True)]
        if g == 4: sal = sal + [scmp("s_cmp_eq_u32", s_t0, ROT - 1)]
        if g == 5: sal = sal + [salu("s_cselect_b64", s_pf[3], s_pfH, s_pf[3], scc_w=False, scc_r=True)]
        if g == 15: sal = sal + [salu("s_cselect_b64", s_pf[3], S_K[(0, 2)], s_pf[3], scc_w=False, scc_r=True)]
        if g == 20: sal = sal + [scmp("s_cmp_eq_u32", s_cnt, KVIT + 1)]
        if g == 21: sal = sal + [salu("s_cselect_b64", s_pfc, s_kvt, S_K[(0, 2)], scc_w=False, scc_r=True)]
        if g == 13: sal = sal + [salu("s_cselect_b32", s_t2, s_fo, 256, scc_w=False, scc_r=True)]
        if g == 18: sal = sal + [scmp("s_cmp_eq_u32", s_cnt, s_sig)]
        if g == 19: sal = sal + [raw("s_cbranch_scc1 L_sigH_side", rd=["scc"]), Lbl("L_sigH_ret")]
    if do_mem and g == 4 and d is not None: lastdma[0] = d
    mem += list(xmem); sal = sal + list(xsal)
    gaps = [[], [], [], []]
    if g == 29 and do_mem and not fin:
        if STAMP == 2 and loop and do_mfma: gaps[0] += [LoopStamp(0, par)]
        gaps[0] += [Wait(lg0=True) if not do_mfma else (Wait(lg0=True, vm0=True) if (pp is None and par == 1) else Wait(lg0=True, vm=lastdma[0]))]
        if STAMP == 2 and loop and do_mfma: gaps[0] += [LoopStamp(1, par)]
        gaps[0] += [raw("s_barrier")]
        if STAMP == 2 and loop and do_mfma: gaps[0] += [LoopStamp(2, par)]
    gaps[0] += sal
    if g == 6 and do_mem and (pp is None or pp <= 1): gaps[0].append(salu("s_add_u32", s_kK, s_kK, 16384))
    if g == 7 and do_mem and (pp is None or pp <= 1): gaps[0].append(salu("s_add_u32", s_kV, s_kV, 16384))
    sm = not (fin and g >= 23)
    if fin and g > 23: do_cvt = False
    if fin and 16 <= g < 24: do_mfma = False
    if LSUM:
        if sm: gaps[0].append(ex[0])
        gaps[1] += mem[0:2] if len(mem) > 2 else mem[0:1]
        gaps[1] += post0
        nf = (g + 1) % 32
        if do_mem and not (fin and (16 <= nf < 24 or nf == 0)): gaps[2].append(Wait(lg=ftok.get(nf)))
        if last and g == 30: gaps[2].append(salu("s_sub_u32", s_cnt, s_cnt, 1))
        if sm: gaps[2].append(ex[1])
        gaps[3] += mem[2:] if len(mem) > 2 else mem[1:]
        if do_cvt: gaps[1 if len(gaps[1]) < 2 else 3].append(cv)
    else:
      gaps[0] += mem[2:3]
      if sm: gaps[0].append(ex[0])
      if len(mem) > 0: gaps[1].append(mem[0])
      if len(mem) == 0 and do_cvt: gaps[1].append(cv)
      if sm: gaps[1].append(ad[0])
      gaps[1] += post0
      nf = (g + 1) % 32
      if do_mem and not (fin and (16 <= nf < 24 or nf == 0)): gaps[2].append(Wait(lg=ftok.get(nf)))
      if last and g == 30: gaps[2].append(salu("s_sub_u32", s_cnt, s_cnt, 1))
      gaps[2] += mem[3:]
      if sm: gaps[2].append(ex[1])
      if len(mem) > 1: gaps[3].append(mem[1])
      if len(mem) > 0 and do_cvt: gaps[3].append(cv)
      if sm: gaps[3].append(ad[1])
    for qb in range(4):
        if do_mfma:
            if g < 8 or 16 <= g < 24:
                b = 1 if g < 8 else 0
                kb, ds = (g >> 2) & 1, g & 3
                d = v_S[b][(qb * 8 + kb * 4, 4)]
                e(mfma(d, fr(g), Qf(qb, ds), v_negm[(qb * 4, 4)] if ds == 0 else d))
            else:
                b = 0 if g < 16 else 1
                e(mfma(Of(g & 7, qb), fr(g), v_S[b][(qb * 8, 4)], Of(g & 7, qb)))
        else:
            if (qb & 1) and not gaps[qb][:1] or ((qb & 1) and getattr(gaps[qb][0], "kind", "") in ("valu",)): e(nop(0))
        for it in gaps[qb]: e(it)
        if xvalu is not None:
            c = 2 - sum(1 for it in gaps[qb] if getattr(it, "kind", "") in ("lds", "vmem", "dma", "valu"))
            while xvalu and c > 0:
                it = xvalu.pop(0); e(it); c -= 2 if it.kind == "trans" else 1
    if LSUM and do_mfma and (g & 8):
        k = g & 7
        lq = (k if k < 4 else None) if (fin and g >= 24) else (k >> 1 if k & 1 else None)
        if lq is not None: e(mfma(a_L[(4 * lq, 4)], a_ones, v_S[0 if g < 16 else 1][(lq * 8, 4)], a_L[(4 * lq, 4)]))

pr = [dsread("ds_read_b128", fr(f), v_ka[f & 3], (f >> 2) * 4096) for f in range(8)]
for r in pr: e(r)
e(scmp("s_cmp_lg_u32", s_retry, 0)); e(raw("s_cbranch_scc1 L_have_max", rd=["scc"]))
for i in range(16): e(valu("v_mov_b32", v_negm[i], 0))
em.label("L_have_max")
zr = [valu("v_mov_b32", v_acc[i], 0) for i in range(2 * NZ0, 128)]
for f in range(8):
    em.wait(lg=pr[f])
    for qb in range(4):
        d = v_S[0][(qb * 8 + (f >> 2) * 4, 4)]
        e(mfma(d, fr(f), Qf(qb, f & 3), v_negm[(qb * 4, 4)] if (f & 3) == 0 else d))
        if qb == 0 and HST == 0: e(hst[f])
        if qb == 2 and f == 0:
            e(raw("s_mov_b64 exec, 3", "salu", wr=["exec"])); e(bstore(v_acc[0], V(3), S_FLZ, s_myfl, mod="sc1")); e(raw("s_mov_b64 exec, -1", "salu", wr=["exec"]))
        for _ in range(2):
            if zr: e(zr.pop(0))
assert not zr
e(salu("s_mov_b32", s_kK, 16384 + 8192, scc_w=False)); e(salu("s_mov_b32", s_kV, 16384, scc_w=False)); e(salu("s_mov_b32", s_cnt, NITER, scc_w=False))
e(scmp("s_cmp_lg_u32", s_retry, 0)); e(raw("s_cbranch_scc1 L_have_max2", rd=["scc"]))
e(nop(3))
mx = [V(97 + 4 * i) for i in range(4)]; mt = [V(98 + 4 * i) for i in range(4)]
for qb in range(4): e(valu("v_max3_f32", mx[qb], v_S[0][qb * 8], v_S[0][qb * 8 + 1], v_S[0][qb * 8 + 2]))
for qb in range(4): e(valu("v_max3_f32", mx[qb], mx[qb], v_S[0][qb * 8 + 3], v_S[0][qb * 8 + 4]))
for qb in range(4): e(valu("v_max3_f32", mx[qb], mx[qb], v_S[0][qb * 8 + 5], v_S[0][qb * 8 + 6]))
for qb in range(4): e(valu("v_max_f32", mx[qb], mx[qb], v_S[0][qb * 8 + 7]))
red4("v_max_f32", mx, mt)
for qb in range(4):
    for k in range(4): e(valu("v_sub_f32", v_negm[qb * 4 + k], 0, mx[qb]))
for qb in range(4):
    for k in range(8): e(valu("v_sub_f32", v_S[0][qb * 8 + k], v_S[0][qb * 8 + k], mx[qb]))
em.label("L_have_max2")
e(nop(7))
for g in range(23, 29): att_group(1, g, do_mfma=False, do_mem=False, do_cvt=(g != 23))
stamp(); diag()
e(salu("s_and_b32", s_t0, s_qb, 3)); e(salu("s_sub_u32", s_t0, NITER - 1, s_t0))
e(scmp("s_cmp_eq_u32", s_w, 0)); e(salu("s_cselect_b32", s_sig, s_t0, -1, scc_w=False, scc_r=True))
e(scmp("s_cmp_eq_u32", s_retry, 0)); e(salu("s_cselect_b32", s_sig, s_sig, -1, scc_w=False, scc_r=True))
e(salu("s_mov_b64", s_pfc, S_K[(0, 2)], scc_w=False))
e(scmp("s_cmp_lt_u32", s_w, 2)); e(salu("s_cselect_b64", s_kvt, S_K[(0, 2)], S_V[(0, 2)], scc_w=False, scc_r=True))
e(salu("s_and_b32", s_t0, s_w, 1)); e(sx(s_t1)); e(salu("s_lshl_b32", s_t1, s_t1, 1)); e(salu("s_add_u32", s_t0, s_t0, s_t1)); e(salu("s_lshl_b32", s_t0, s_t0, 13))
if MAP2: e(salu("s_add_u32", s_t0, s_t0, 262144))
e(salu("s_add_u32", s_kvt[0], s_kvt[0], s_t0)); e(salu("s_addc_u32", s_kvt[1], s_kvt[1], 0, scc_r=True))
for g in range(29, 32): att_group(1, g, do_mfma=False, do_mem=True)
pro_end = len(em.out)
em.directive(".p2align 6")
em.label("L_att_loop")
def body():
    for par in range(2):
        for g in range(32): att_group(par, g, last=(par == 1))
b0 = len(em.out)
body()
b1 = len(em.out)
e(scmp("s_cmp_lg_u32", s_cnt, 0)); e(raw("s_cbranch_scc1 L_att_loop", rd=["scc"]))
b2 = len(em.out)
body()
second = em.out[b2:]; del em.out[b2:]
assert [i.text for i in second] == [i.text for i in em.out[b0:b1]], "loop not in steady state"
loop_probs = check_hazards(em.out[b1 - 40:b2] + second[:60], "loop-wrap")

em.label("L_tail")
v_ring2 = V(64, 32); v_B2 = V(96, 32)
XY = int(os.environ.get('XY', '0'))
NF1 = int(os.environ.get('NF1', '8'))
def hreg(kk, qb):
    if kk >= 8: kk -= 8
    return A((64 + 16 * kk if kk < 4 else 160 + 16 * (kk - 4)) + qb * 4, 4)
def Facc(u, qb):
    t = u * 4 + qb
    return A(128 + 4 * t if t < 8 else 224 + 4 * (t - 8), 4)
POS2 = [5, 0, 2, 3, 4, 1]
NB = int(os.environ.get("NB", "4"))
def pos2(m): return 6 + m if m < NB else POS2[(m - NB) % 6]
def kind2(m):
    if m < NF1: return ("F", m)
    if m < NF1 + 32: return ("O", (m - NF1) & 15, (m - NF1) >> 4) if XY else ("O", (m - NF1) >> 1, (m - NF1) & 1)
    return ("F", m - 32)
def s2_dma(m):
    if m >= 46: return None
    p = pos2(m); k = kind2(m)
    if k[0] == "O":
        return [m0set(p), salu("s_mov_b32", s_off, k[1] * 32 * 1024 + 128 * k[2], scc_w=False)], [dma(v_dA[j], S_WO, s_off, j * 1024) for j in range(4)]
    return [m0set(p), salu("s_mov_b32", s_off, k[1] * 32 * 1024, scc_w=False)], [dma(v_dB[j], S_WD, s_off, j * 1024) for j in range(4)]
dtok2 = {}; s2pre = {}
for m in range(6 + NB):
    s2pre[m] = s2_dma(m); dtok2[m] = s2pre[m][1][3]
class Seq:
    kind = "vmem"
    def __init__(self, l): self.l = l
    def __call__(self): return self.l
hld = {}; htok = {}
for kk in range(14):
    hld[kk] = [bload(hreg(kk, qb), v_lin, S_HC, s_hl, off=qb * 1024, mod="sc1") for qb in range(4)]
    htok[kk] = hld[kk][3]
e(salu("s_mov_b32", s_cnt, 0, scc_w=False))
em.label("L_pollH")
e(valu("v_cmp_ne_u32", "vcc", 1, v_flag)); e(salu("s_mul_i32", s_hb, s_w, 14 * 4096, scc_w=False)); e(nop(1))
e(raw("s_cbranch_vccz L_pollH_done", rd=["vcc"]))
e(salu("s_add_u32", s_cnt, s_cnt, 1)); e(scmp("s_cmp_ge_u32", s_cnt, 50000)); e(raw("s_cbranch_scc1 L_pollH_done", rd=["scc"]))
e(raw("s_sleep 4")); e(raw("buffer_load_ubyte %s, %s, %s, %s offen sc1" % (v_flag, v_fa, S_DBG, s_fo))); e(raw("s_waitcnt vmcnt(0)")); e(raw("s_branch L_pollH"))
em.label("L_pollH_done")
xaddr(V(39), V(0))
xsl = [bload(a_x[(2 * u, 2)], V(39), S_XC, 0, off=32 * u, n=2) for u in range(4)]
NH0 = 32
hsl = sorted([(pp, g) for pp in range(3) for g in (5, 13, 14, 15, 16, 17, 18, 27, 28, 9, 11)])[:NH0]
px = {}
for k, key in enumerate(hsl):
    px.setdefault(key, ([], []))
    px[key][0].append(hld[k >> 2][k & 3])
    if k & 3 == 0: px[key][1].append(salu("s_add_u32", s_hl, s_hb, (k >> 2) * 4096))
for u in range(4): px.setdefault((0, 1 + u), ([], []))[0].append(xsl[u])
wsl = [(pp, g) for pp in range(2) for g in (6, 7, 8, 10, 12, 21, 22, 23)][:4 * NB] + [(2, 29), (2, 30), (2, 31), (3, 0), (3, 1), (3, 2), (3, 3), (3, 4)] + [(3, g) for g in range(5, 13)] + [(3, g) for g in range(24, 32)]
for k, key in enumerate(wsl):
    px.setdefault(key, ([], []))
    m, j = k >> 2, k & 3
    px[key][0].append(s2pre[m][1][j])
    if j == 0: px[key][1].extend(s2pre[m][0])
px[(3, 24)][1][:0] = [Wait(lg0=True), raw("s_barrier")]
lt = [V(48 + i) for i in range(4)]
rinv = [V(52 + i) for i in range(4)]
vxf = V(40, 8)
save = em.out; em.out = []
if LSUM:
    for qb in range(4): e(valu("v_accvgpr_read_b32", v_l1[qb], a_L[4 * qb]))
    if LSUM == 2: red4("v_add_f32", [v_l1[i] for i in range(4)], lt)
else:
    for qb in range(4): e(valu("v_add_f32", v_l1[qb], v_l1[qb], v_l0[qb]))
    red4("v_add_f32", [v_l1[i] for i in range(4)], lt)
e(valu("v_add_f32", lt[1], v_l1[0], v_l1[1])); e(valu("v_add_f32", lt[2], v_l1[2], v_l1[3])); e(valu("v_add_f32", lt[1], lt[1], lt[2]))
for qb in range(4): e(valu("v_rcp_f32", rinv[qb], v_l1[qb]))
e(valu("v_cmp_nge_f32", "vcc", hx(f2u(2.0 ** 30)), lt[1]))
for k in range(8): e(valu("v_accvgpr_read_b32", vxf[k], a_x[k]))
v_tr2 = V(56, 4); v_ow = V(62)
for u in range(4): e(valu("v_subrev_u32", v_tr2[u], RING, v_tr[0][u]))
e(valu("v_subrev_u32", v_ow, RING, v_lin)); e(valu("v_add_u32", v_ow, s_m0b, v_ow))
lred = em.out; em.out = save
for pp in range(4):
    for g in range(32):
        if STAMP == 4 and g in (0, 16): stamp()
        xm, xs = px.get((pp, g), ([], []))
        att_group(pp & 1, g, pp=pp, xmem=xm, xsal=xs, xvalu=(lred if (pp == 3 and g >= (30 if LSUM else 24)) else None))
for it in lred: e(it)
diag(); stamp()
if DUMP == "o":
    e(nop(7))
    for db in range(8):
        for qb in range(4):
            for k in range(4): e(valu("v_mul_f32", Of(db, qb)[k], Of(db, qb)[k], rinv[qb]))
    dump_regs([v_acc[i] for i in range(128)])

vm_ = V(60); vma = V(61)
class Mark:
    kind = "salu"
    def __init__(self, t): self.t = t
    def __call__(self):
        e(raw("s_cbranch_vccz L_nomark", rd=["vcc"])); e(valu("v_mov_b32", self.t, hx(MARK))); em.label("L_nomark"); return []
norm = [valu("v_and_b32", vma, 3, v_lane), valu("v_lshlrev_b32", vma, 12, vma)]
ow = []; ncv = []
for i in range(4):
    for qb in range(4):
        t = Of(2 * i, qb)
        for b in range(2):
            for k in range(4): norm.append(valu("v_mul_f32", Of(2 * i + b, qb)[k], Of(2 * i + b, qb)[k], rinv[qb]))
        for b in range(2):
            o = Of(2 * i + b, qb)
            for k in range(2): norm.append(valu("v_cvt_pk_bf16_f32", t[2 * b + k], o[2 * k], o[2 * k + 1]))
        ncv.append(norm[-1])
        if i == 0 and qb == 0: norm.append(Mark(t[0]))
        ow.append(dswrite("ds_write_b128", v_ow, t, i * 16384 + qb * 1024))
        if NB == 0: norm.append(ow[-1])
class ChkNorm:
    def __init__(self, k): self.k = k
    def __call__(self):
        assert ncv[self.k].tok, "O write %d scheduled before its data" % self.k
        return ow[self.k]
G0 = 4 * NF1
G1 = G0 + 128
mk = dsread("ds_read_b32", vm_, vma, 0)
class OBar:
    def __call__(self):
        assert all(w.tok for w in ow)
        em.wait(lg0=True); e(raw("s_barrier")); stamp(); e(mk); return []
class FbCheck:
    def __call__(self):
        em.wait(lg=mk)
        e(valu("v_cmp_eq_u32", "vcc", hx(MARK), vm_))
        e(scmp("s_cmp_lg_u32", s_retry, 0)); e(raw("s_cbranch_scc1 L_nofb", rd=["scc"]))
        e(nop(1))
        e(raw("s_cbranch_vccnz L_fallback", rd=["vcc"]))
        em.label("L_nofb")
        return []
def s2_acc(m, u, qb):
    k = kind2(m)
    if k[0] == "O": return v_acc[(((k[2] * 4 + u) * 4 + qb) * 4, 4)], k[1] == 0
    return Facc(u, qb), k[1] == 0
def s2_B(m, qb):
    k = kind2(m)
    if k[0] == "O": return v_B2[((k[1] & 1) * 16 + qb * 4, 4)]
    return hreg(k[1], qb)
def oread(s, qb): return dsread("ds_read_b128", v_B2[((s & 1) * 16 + qb * 4, 4)], v_lin, (s & 3) * 16384 + (s >> 2) * 4096 + qb * 1024)
extra = {}
if NB:
    OW0 = int(os.environ.get("OW0", "11")); OWN = int(os.environ.get("OWN", "1"))
    for k in range(16):
        gg = OW0 + k // OWN
        assert (k >> 2) >= NB or gg > 4 * (k >> 2) + 3
        extra.setdefault(gg, []).append((2 + (k % OWN) % 2, ChkNorm(k), 1))
GB = G0 - int(os.environ.get("OBAR", "3"))
extra.setdefault(GB, []).append((0, OBar(), 0))
r0 = [oread(0, qb) for qb in range(4)]
for qb in range(4): extra.setdefault(GB + (qb >> 1), []).append((1 + (qb & 1) if qb < 2 else (qb & 1) * 2, r0[qb], 1))
extra.setdefault(G0 - 1, []).append((2, [Wait(lg=r0), FbCheck()], 0))
if XY:
    for mm in range(1, 32):
        rr = [oread(mm & 15, qb) for qb in range(4)]
        for qb in range(4): extra.setdefault(G0 + 4 * (mm - 1) + (qb >> 1), []).append((2 + (qb & 1), rr[qb], 1))
        extra.setdefault(G0 + 4 * mm - 1, []).append((2, Wait(lg=rr), 0))
else:
    for s_ in range(1, 16):
        for qb in range(4): extra.setdefault(G0 + 8 * (s_ - 1) + 1 + qb, []).append((2, oread(s_, qb), 1))
class LateWait:
    def __init__(self, f): self.f = f
    def __call__(self): return Wait(vm=self.f())
vxa = V(48); vpoll = V(49); vfw = V(50)
vx, vy, vz = V(63), V(57), V(58)
save = em.out; em.out = []
xaddr(vxa, vx)
e(valu("v_and_b32", V(51), 7, v_lane)); e(valu("v_lshlrev_b32", V(51), 2, V(51)))
e(valu("v_add_u32", vfw, s_m0b, v_lin)); e(salu("s_lshl_b32", s_t0, s_w, 14)); e(salu("s_add_u32", s_t0, s_t0, RING)); e(valu("v_add_u32", V(55), s_t0, v_lin))
e(salu("s_lshl_b32", s_t3, s_w, 4)); e(salu("s_add_u32", s_t3, s_t3, s_g)); e(salu("s_lshl_b32", s_t3, s_t3, 13))
early = em.out; em.out = save
extra.setdefault(-1, []).append((0, LateWait(lambda: htok[0]), 0))
for kk in range(1, 14):
    g_ = 4 * kk if kk < NF1 else 4 * (kk + 32)
    extra.setdefault(g_ - 1, []).append((2, LateWait(lambda kk=kk: htok[kk]), 0))
HG0 = int(os.environ.get("HG0", "5")); HGS = int(os.environ.get("HGS", "1"))
for k in range(NH0, 56):
    prev = (k >> 2) - 8
    gfree = (4 * prev if prev < NF1 else 4 * (prev + 32)) + 5 + (k & 3)
    extra.setdefault(max(gfree, HG0 + HGS * (k - NH0)), []).append((2, Seq([salu("s_add_u32", s_hl, s_hb, (k >> 2) * 4096), hld[k >> 2][k & 3]]), 1))
def sreg(ip, qb, odd=0): return v_acc[(((2 * ip + odd) * 4 + qb) * 4, 4)]
sp = []; spst = []; stq = []
s_oob = S(19)
if os.environ.get("NOST") or os.environ.get("NOLD"): e(salu("s_mov_b32", s_oob, 524288, scc_w=False))
NSI = int(os.environ.get("NSI", "11"))
s_so = [s_t1, s_cnt, s_h0, s_h1]
for k in range(4): sp.append(salu("s_add_u32", s_so[k], s_t3, (k >> 1) * 65536 + (k & 1) * 4096))
for ip in range(4):
    for qb in range(4):
        t = sreg(ip, qb)
        for b in range(2):
            o = sreg(ip, qb, b)
            for k in range(2): sp.append(valu("v_cvt_pk_bf16_f32", t[2 * b + k], o[2 * k], o[2 * k + 1]))
        st = bstore(t, v_lin, S_SP, s_so[(ip >> 1) * 2 + (qb >> 1)], off=(qb & 1) * 2048 + (ip & 1) * 1024, mod="sc1")
        if os.environ.get("NOST") and not (ip == 3 and qb == 3): st = bstore(t, v_lin, S_SP, s_oob, off=0)
        spst.append((st, sp[-1]))
class St:
    def __init__(self, k): self.k = k
    def __call__(self):
        assert spst[self.k][1].tok
        return spst[self.k][0]
STG = int(os.environ.get("STG", "2"))
if XY:
    GY = G0 + 64
    XS0 = int(os.environ.get("XS0", "4")); XSG = int(os.environ.get("XSG", "5")); XFL = int(os.environ.get("XFL", "60"))
    for k in range(8): extra.setdefault(GY + XS0 + XSG * k, []).append((1, St(k), 1))
    class XFlag:
        def __call__(self): em.wait(vm=spst[7][0]); return flag_store(0)
    extra.setdefault(GY + XFL, []).append((1, XFlag(), 1))
    NSI = int(os.environ.get("NSI", "16"))
    for k in range(8, NSI): extra.setdefault(G1 + 3 + STG * (k - 8), []).append((2, St(k), 1))
    hx_ = sp.index(spst[7][1]) + 1
    spf = [Fill(sp[:hx_], GY + 2, GY + 14), Fill(sp[hx_:], G1 + 2, G1 + 10)]
else:
    for k in range(NSI): extra.setdefault(G1 + 3 + STG * k, []).append((2, St(k), 1))
    spf = [Fill(sp, G1 + 2, G1 + int(os.environ.get("CVL", "16")))]
FLG = int(os.environ.get("FLG", "0"))
if FLG:
    assert NSI == 16
    class YFlag:
        def __call__(self):
            em.wait(vm=spst[-1][0]); stamp()
            return ([] if XY else flag_store(0)) + flag_store(1)
    extra.setdefault(G1 + FLG, []).append((1, YFlag(), 1))
sti = [NSI]
def st_next(n=1):
    for _ in range(n):
        if sti[0] < 16: e(spst[sti[0]][0]); sti[0] += 1
def flag_store(h):
    return [valu("v_mov_b32", v_t, 1), raw("s_mov_b64 exec, 1", "salu", wr=["exec"]), bstore(v_t, None, S_FL, s_myfl, off=128 * h, mod="sc1"), raw("s_mov_b64 exec, -1", "salu", wr=["exec"])]
vpa = V(51)
s_done, s_new, s_sb = s_kK, s_kV, s_fo
SPV = int(os.environ.get("SPV", "1"))
def spl(gp, i): return sreg(gp >> 1, (gp & 1) * 2 + i, 0) if SPV else A((gp * 2 + i) * 4, 4)
def flag_load(): return bload(vpoll, vpa, S_FL, s_t2, n=1, mod="sc1")
lblc = [0]
def issue_new():
    k = lblc[0]; lblc[0] += 1
    e(valu("v_cmp_eq_u32", "vcc", 1, vpoll)); e(nop(1))
    e(raw("s_andn2_b32 %s, vcc_lo, %s" % (s_new, s_done), "salu", rd=["vcc", s_done], wr=[s_new, "scc"])); e(salu("s_and_b32", s_new, s_new, 255))
    e(raw("s_cbranch_scc0 L_in%d_end" % k, rd=["scc"]))
    e(salu("s_or_b32", s_done, s_done, s_new))
    for gp in range(8):
        e(scmp("s_bitcmp1_b32", s_new, gp)); e(raw("s_cbranch_scc0 L_in%d_%d" % (k, gp), rd=["scc"]))
        e(salu("s_add_u32", s_t0, s_sb, gp * 8192) if not os.environ.get("NOLD") else salu("s_mov_b32", s_t0, s_oob, scc_w=False))
        for i in range(2): e(raw(bload(spl(gp, i), v_lin, S_SPC, s_t0, off=i * 1024, mod="sc1").text))
        em.label("L_in%d_%d" % (k, gp))
    em.label("L_in%d_end" % k)
pinit = [salu("s_lshl_b32", s_t2, s_cq, 3), salu("s_add_u32", s_t2, s_t2, s_cg), salu("s_lshl_b32", s_t2, s_t2, 7), salu("s_mov_b32", s_done, 0, scc_w=False),
         salu("s_lshl_b32", s_sb, s_cg, 16), salu("s_lshl_b32", s_new, s_w, 11), salu("s_add_u32", s_sb, s_sb, s_new)]
extra.setdefault(G1 - 8, []).append((1, pinit, 0))
class MidPoll:
    def __init__(self, tok): self.tok = tok
    def __call__(self):
        em.wait(vm=self.tok); issue_new()
        e(salu("s_mov_b32", s_hb, s_done, scc_w=False))
        midmark.append(em.vm_total)
        return []
midmark = []
if int(os.environ.get("MID", "1")):
    pt = flag_load()
    MIDPOST = int(os.environ.get("MIDPOST", "2"))
    if MIDPOST == 4: extra.setdefault(184 - int(os.environ.get("MID4", "6")), []).append((2, pt, 1))
    else: extra.setdefault(G1 - int(os.environ.get("MID0", "4")), []).append((2, pt, 1))
    if not MIDPOST: extra.setdefault(G1 + int(os.environ.get("MID1", "3")), []).append((0, MidPoll(pt), 0))
    elif MIDPOST != 4: extra.setdefault(G1 + 2, []).append((0, Wait(vm=pt), 0))
    if MIDPOST == 3:
        extra[G1 + 2].pop(); extra[G1 - int(os.environ.get("MID0", "4"))].pop()
if STAMP: extra.setdefault(G1, []).append((0, Stamp(), 0))
class Diag:
    def __call__(self): diag(); return []
if DIAG: extra.setdefault(G1, []).append((0, Diag(), 0))
vs = [Fill(norm, 0, GB - (3 if NB else 1)), Fill(early, G0 + 2, G0 + 40)] + spf
run_stream(46, s2_dma, dtok2, s2_acc, s2_B, extra, vs, posf=pos2, ring=v_ring2, first_dma=6 + NB, tr2=v_tr2, early_dma=int(os.environ.get('ED2', '0')))
stamp(); diag()
def static_loads():
    e(valu("v_cmp_eq_u32", "vcc", 1, vpoll)); e(nop(1))
    e(raw("s_and_b32 %s, vcc_lo, 255" % s_done, "salu", rd=["vcc"], wr=[s_done, "scc"]))
    for gp in range(8):
        e(salu("s_add_u32", s_t0, s_sb, gp * 8192)); e(scmp("s_bitcmp1_b32", s_done, gp)); e(salu("s_cselect_b32", s_t0, s_t0 if not os.environ.get("NOLD") else s_oob, 524288, scc_w=False, scc_r=True))
        for i in range(2): e(bload(spl(gp, i), v_lin, S_SPC, s_t0, off=i * 1024, mod="sc1"))
if MIDPOST == 4:
    em.wait(vm=pt); static_loads()
if MIDPOST == 3:
    st_next(16); fl3 = e(flag_load())
e(nop(5))
for qb in range(4):
    for u in range(4):
        if len(em.lgq) >= 12: em.wait(lg=em.lgq[-12])
        e(dswrite("ds_write_b128", vfw, Facc(u, qb), qb * 16384 + u * 1024))
    if qb & 1: st_next(int(os.environ.get("STW", "1")))
v_fr = V(96, 16); vE = V(64, 16); vs_ = V(80, 16)
for k in range(8): e(valu("v_mov_b64", vs_[(2 * k, 2)], 0))
if MIDPOST == 3:
    em.wait(vm=fl3); stamp()
    if not XY: e(flag_store(0))
    e(flag_store(1))
    static_loads()
em.wait(lg0=True)
e(raw("s_barrier"))
def frr(ws_, u): return sreg(ws_, u, 1)
for ws_ in range(4):
    for u in range(4):
        if len(em.lgq) >= 14: em.wait(lg=em.lgq[-14])
        e(dsread("ds_read_b128", frr(ws_, u), V(55), ws_ * 4096 + u * 1024))
st_next()
if MIDPOST:
    st_next(16)
    if MIDPOST == 1: static_loads()
em.wait(lg0=True)
for u in range(4):
    for k in range(2):
        e(valu("v_pk_add_f32", frr(0, u)[(2 * k, 2)], frr(0, u)[(2 * k, 2)], frr(1, u)[(2 * k, 2)]))
        e(valu("v_pk_add_f32", frr(2, u)[(2 * k, 2)], frr(2, u)[(2 * k, 2)], frr(3, u)[(2 * k, 2)]))
for u in range(4):
    for k in range(2): e(valu("v_pk_add_f32", v_fr[(4 * u + 2 * k, 2)], frr(0, u)[(2 * k, 2)], frr(2, u)[(2 * k, 2)]))
for k in range(16): e(valu("v_mul_f32", vE[k], hx(f2u(-math.log2(math.e))), v_fr[k]))
st_next()
for k in range(16): e(valu("v_exp_f32", vE[k], vE[k]))
for k in range(16): e(valu("v_add_f32", vE[k], "1.0", vE[k]))
st_next()
for k in range(16): e(valu("v_rcp_f32", vE[k], vE[k]))
for k in range(16): e(valu("v_mul_f32", v_fr[k], v_fr[k], vE[k]))
for k in range(8):
    e(valu("v_lshlrev_b32", vE[2 * k], 16, vxf[k])); e(valu("v_and_b32", vE[2 * k + 1], "0xffff0000", vxf[k]))
st_next()
stamp()
accn = [0]
def acc_pieces(mask, sprinkle=False):
    n = accn[0]; accn[0] += 1
    for gp in range(8):
        e(scmp("s_bitcmp1_b32", mask, gp)); e(raw("s_cbranch_scc0 L_acc%d_%d" % (n, gp), rd=["scc"]))
        if not SPV:
            for k2 in range(8): e(valu("v_accvgpr_read_b32", V(120 + k2), spl(gp, k2 >> 2)[k2 & 3]))
        for k in range(8):
            src = spl(gp, k >> 2)[k & 3] if SPV else V(120 + k)
            e(valu("v_lshlrev_b32", V(112 + 2 * (k & 3)), 16, src)); e(valu("v_and_b32", V(113 + 2 * (k & 3)), "0xffff0000", src))
            e(valu("v_pk_add_f32", vs_[(2 * k, 2)], vs_[(2 * k, 2)], V(112 + 2 * (k & 3), 2)))
        em.label("L_acc%d_%d" % (n, gp))
        if sprinkle and gp & 1: st_next()
if midmark:
    n_y = em.vm_total - midmark[0]
    e(raw("s_waitcnt vmcnt(%d)" % n_y, "wait")); em._retire(em.vmq, n_y)
    acc_pieces(s_hb, sprinkle=True)
st_next(16)
if MIDPOST != 2: e(flag_load())
if MIDPOST != 3 and not FLG:
    em.wait(vm=spst[-1][0]); stamp()
    if not XY: e(flag_store(0))
    e(flag_store(1))
if MIDPOST == 2:
    static_loads()
    if int(os.environ.get("FSL", "0")): e(raw("s_sleep %d" % int(os.environ.get("FSL"))))
    e(flag_load())
s_prev = s_hl
e(salu("s_mov_b32", s_prev, s_done if MIDPOST else 0, scc_w=False)); e(salu("s_mov_b32", s_cnt, 0, scc_w=False))
em.label("L_fin_loop")
em.wait(vm0=True)
issue_new()
e(raw(flag_load().text))
acc_pieces(s_prev)
e(salu("s_mov_b32", s_prev, s_new, scc_w=False))
e(salu("s_add_u32", s_cnt, s_cnt, 1)); e(scmp("s_cmp_ge_u32", s_cnt, 50000)); e(raw("s_cbranch_scc1 L_fin_done", rd=["scc"]))
e(scmp("s_cmp_lg_u32", s_prev, 0)); e(raw("s_cbranch_scc1 L_fin_loop", rd=["scc"]))
e(scmp("s_cmp_lg_u32", s_done, 255)); e(raw("s_cbranch_scc1 L_fin_loop", rd=["scc"]))
em.label("L_fin_done")
if DUMP == "fin": dump_regs([vs_[i] for i in range(16)] + [v_fr[i] for i in range(16)])
for k in range(8): e(valu("v_pk_fma_f32", vE[(2 * k, 2)], vs_[(2 * k, 2)], v_fr[(2 * k, 2)], vE[(2 * k, 2)]))
for k in range(8): e(valu("v_cvt_pk_bf16_f32", vxf[k], vE[2 * k], vE[2 * k + 1]))
for u in range(4): e(bstore(vxf[(2 * u, 2)], vxa, S_OUT, 0, off=32 * u, mod=os.environ.get("OUTM", "")))
stamp(); diag_out()
em.label("L_end")
e(raw("s_endpgm"))
main_end = len(em.out)

em.lgq, em.vmq, em.pend = [], [], {}
em.label("L_sigH_side")
e(salu("s_lshl_b32", s_t1, s_qb, 3)); e(salu("s_add_u32", s_t1, s_t1, s_g))
e(raw("s_mov_b64 exec, 2", "salu", wr=["exec"]))
e(raw("buffer_store_byte %s, off, %s, %s sc1" % (v_fa, S_DBG, s_t1)))
e(raw("s_mov_b64 exec, -1", "salu", wr=["exec"]))
e(raw("s_branch L_sigH_ret"))
em.label("L_fallback")
e(raw("s_waitcnt vmcnt(0) lgkmcnt(0)")); em._retire(em.vmq, 0); em._retire(em.lgq, 0)
e(salu("s_mov_b32", s_retry, 1, scc_w=False))
e(salu("s_mov_b32", S_H[2], 0, scc_w=False))
e(salu("s_mov_b32", s_kK, 0, scc_w=False))
fm = [V(40 + i) for i in range(4)]
for i in range(4): e(valu("v_mov_b32", fm[i], "0xff800000"))
em.label("L_fb_loop")
e(raw("s_barrier"))
e(salu("s_add_u32", "m0", s_m0b, 4 * 16384)); e(nop(0))
for j in range(4): e(dma(v_kd[j], S_K, s_kK, j * 1024))
em.wait(vm0=True)
e(raw("s_barrier"))
for kb in range(4):
    rr = [e(dsread("ds_read_b128", fr(ds), v_ka[ds], kb * 4096)) for ds in range(4)]
    em.wait(lg0=True)
    for ds in range(4):
        for qb in range(4):
            d = v_S[0][(qb * 4, 4)]
            e(mfma(d, fr(ds), Qf(qb, ds), 0 if ds == 0 else d))
    e(nop(7))
    for qb in range(4):
        e(valu("v_max3_f32", fm[qb], fm[qb], v_S[0][qb * 4], v_S[0][qb * 4 + 1])); e(valu("v_max3_f32", fm[qb], fm[qb], v_S[0][qb * 4 + 2], v_S[0][qb * 4 + 3]))
    e(nop(2))
e(salu("s_add_u32", s_kK, s_kK, 16384)); e(scmp("s_cmp_lt_u32", s_kK, 524288)); e(raw("s_cbranch_scc1 L_fb_loop", rd=["scc"]))
red4("v_max_f32", fm, [V(44 + i) for i in range(4)])
for qb in range(4):
    for k in range(4): e(valu("v_sub_f32", v_negm[qb * 4 + k], 0, fm[qb]))
e(raw("s_barrier"))
for m in (64, 65, 66):
    sa, dm = s1_dma(m); e(sa)
    for d in dm: e(d)
e(raw("s_waitcnt vmcnt(0)"))
e(raw("s_branch L_att_start"))
em.label("L_code_end")
e(raw("s_endpgm"))

probs = check_hazards(em.out, "main") + loop_probs
for p in probs: print("; HAZARD", p, file=sys.stderr)
assert not probs

hdr = open(os.path.join(os.path.dirname(os.path.abspath(__file__)), "header.txt")).read()
print(hdr.rstrip())
print("; @launch grid=(256,1,1) block=(256,1,1) lds=163840")
print('.amdgcn_target "amdgcn-amd-amdhsa--gfx950"\n.text\n.globl %s\n.p2align 8\n.type %s,@function\n%s:' % (KN, KN, KN))
print(em.text())
print('.section .rodata,"a"\n.p2align 6\n.amdhsa_kernel %s' % KN)
print("  .amdhsa_next_free_vgpr 512\n  .amdhsa_next_free_sgpr 102\n  .amdhsa_accum_offset 256\n  .amdhsa_group_segment_fixed_size 0\n  .amdhsa_kernarg_size 96\n  .amdhsa_user_sgpr_count 2\n  .amdhsa_user_sgpr_kernarg_segment_ptr 1\n  .amdhsa_system_sgpr_workgroup_id_x 1\n.end_amdhsa_kernel")
```

```python
import sys, os, math, struct
from asmgen import *

KN = "recurrent_scan__gqa_block_cached__geglu_ffn__prompt_kernel"
DUMP = os.environ.get("DUMP", "")
STAMP = int(os.environ.get("STAMP", "0"))
GEL_END = int(os.environ.get("GEL_END", "247")); GEL_EXTRA = int(os.environ.get("GEL_EXTRA", "360"))

def f2u(x): return struct.unpack("<I", struct.pack("<f", x))[0]
def hx(x): return "0x%x" % (x & 0xffffffff)

S_X, S_K, S_V, S_WQ, S_WO, S_WG, S_WU, S_WD, S_OUT, S_DBG, S_H, S_SP = [S(4 + 4 * i, 4) for i in range(12)]
s_g, s_qb, s_w = S(52), S(53), S(54)
s_t0, s_t1, s_t2, s_t3 = S(55), S(56), S(57), S(58)
s_m0b = S(59)
s_off = S(60)
s_cnt = S(61)
s_kK, s_kV = S(62), S(63)
s_retry = S(64)
s_h0, s_h1 = S(65), S(66)
s_hl = S(67); s_hb = S(78); s_myfl = S(79); s_wdd = S(67); s_sig = S(78)
s_ka = S(68, 16); s_kb = S(84, 8)
s_pair = S(92, 2); s_pair2 = S(94, 2)
S_DMP = S(96, 4)
s_cq, s_cg = S(76), S(77)
S_HC = S(80, 4)
S_SPC = S(84, 4)
S_XC = S(88, 4)
s_st = S(68, 4)

v_tid, v_lane, v_lin, v_t = V(0), V(1), V(2), V(3)
v_tr = [V(4, 4), V(8, 4)]
v_dA, v_dB = V(12, 4), V(16, 4)
v_ka = V(20, 4); v_va = V(24, 8); v_kd = V(32, 4); v_vd = V(36, 2)
v_wl = V(38)
v_c = V(39)
v_l0, v_l1 = V(40, 4), V(44, 4)
v_lsave = V(16, 4)
v_negm = V(48, 16)
v_S = [V(64, 32), V(96, 32)]
v_acc = V(128, 128)
a_ring = A(128, 32)
a_B = A(160, 32)
a_Q = A(0, 64)
a_F = A(0, 64)
a_x = A(248, 8)
LSUM = int(os.environ.get('LSUM', '1'))
a_L = A(224, 16); a_ones = A(240, 4)
POI = int(os.environ.get('POI', '0'))
POISON = 0x7f817f81
a_poi = A(244, 4)

RING = 65536
MARK = 0x7fc17fc1
WS_SP = 8 << 20
WS_DUMP = 32 << 20
WS_FL = (7 << 20) + (512 << 10)
S_FLZ = S(4, 4)
S_FL = S(4, 4)

em = Em()
e = em.e

def srd(dst, lo, hi, size, off_s=None):
    if off_s is None:
        e(salu("s_mov_b32", dst[0], lo, scc_w=False)); e(salu("s_mov_b32", dst[1], hi, scc_w=False))
    else:
        e(salu("s_add_u32", dst[0], lo, off_s)); e(salu("s_addc_u32", dst[1], hi, 0, scc_r=True))
    e(salu("s_mov_b32", dst[2], hx(size), scc_w=False)); e(salu("s_mov_b32", dst[3], "0x20000", scc_w=False))

DIAG = int(os.environ.get("DIAG", "0"))
HC_OFF = 128
diag_regs = [S(100, 2), S(70, 2), S(72, 2), S(74, 2), S(96, 2), S(98, 2), S(68, 2)] if DIAG != 2 else [S(100, 2), S(96, 2), S(98, 2), S(94, 2), S(70, 2), S(72, 2), S(74, 2), S(68, 2)]
diag_n = [0]
def diag(which=1, last=False):
    if not DIAG or (which != DIAG and which != 0): return
    k = diag_n[0]; diag_n[0] += 1
    e(raw("%s %s" % ("s_memtime" if (os.environ.get("CYC") and not last) else "s_memrealtime", diag_regs[k]), "other", wr=[diag_regs[k]]))
    if k > 0: e(raw("s_waitcnt lgkmcnt(0)", "wait")); em._retire(em.lgq, 0)
AMP = os.environ.get("AMP")
def diag_out():
    if not DIAG: return
    diag(0, last=True)
    if AMP:
        k = int(AMP); last = diag_regs[diag_n[0] - 1]
        e(salu("s_sub_u32", s_t0, diag_regs[k][0], diag_regs[int(os.environ.get("AMP0", "0"))][0]))
        if os.environ.get("CYC"): e(salu("s_lshr_b32", s_t0, s_t0, 2))
        else: e(salu("s_lshl_b32", s_t0, s_t0, 2))
        em.label("L_amp")
        e(raw("s_memrealtime s[56:57]")); e(raw("s_waitcnt lgkmcnt(0)"))
        e(salu("s_sub_u32", s_t1, s_t1, last[0])); e(scmp("s_cmp_lt_u32", s_t1, s_t0)); e(raw("s_cbranch_scc1 L_amp", rd=["scc"]))
        return
    e(scmp("s_cmp_lg_u32", s_w, 0)); e(raw("s_cbranch_scc1 L_end", rd=["scc"]))
    e(raw("s_mov_b64 exec, 1", "salu", wr=["exec"]))
    e(salu("s_not_b32", s_t0, diag_regs[0][0]))
    for k in range(diag_n[0]):
        e(valu("v_mov_b32", V(4 + k), s_t0 if k == 0 else diag_regs[k][0]))
        e(raw("buffer_atomic_umax %s, off, %s, 0 offset:%d sc1" % (V(4 + k), S_DBG, 4 * k)))
    e(valu("v_mov_b32", V(12), diag_regs[0][0]))
    e(raw("buffer_atomic_umax %s, off, %s, 0 offset:%d sc1" % (V(12), S_DBG, 4 * 9)))
stamp_n = [0]
def stamp():
    if not STAMP: return
    k = stamp_n[0]; stamp_n[0] += 1
    e(raw("s_memtime %s" % S(68, 2), "other", wr=[S(68, 2)]))
    e(raw("s_memrealtime %s" % S(70, 2), "other", wr=[S(70, 2)]))
    e(raw("s_waitcnt lgkmcnt(0)", "wait")); em._retire(em.lgq, 0)
    for i in range(4): e(valu("v_writelane_b32", v_c, S(68 + i), i, rmw=True))
    e(salu("s_lshl_b32", S(72), S(2), 2)); e(salu("s_add_u32", S(72), S(72), s_w)); e(salu("s_lshl_b32", S(72), S(72), 9))
    e(salu("s_mov_b64", S(74, 2), "exec", scc_w=False)); e(raw("s_mov_b64 exec, 15", "salu", wr=["exec"]))
    e(valu("v_lshlrev_b32", v_t, 2, v_lane))
    e(bstore(v_c, v_t, S_DMP, S(72), off=k * 16))
    e(raw("s_mov_b64 exec, %s" % S(74, 2), "salu", wr=["exec"]))
    e(valu("v_lshlrev_b32", v_t, 7, v_lane))

def dump_regs(regs, finish=True):
    em.wait(lg0=True, vm0=True)
    e(nop(7)); e(nop(7))
    n = len(regs)
    e(salu("s_lshl_b32", s_t0, S(2), 2)); e(salu("s_add_u32", s_t0, s_t0, s_w)); e(salu("s_mul_i32", s_t0, s_t0, n * 256, scc_w=False))
    e(valu("v_lshlrev_b32", v_t, 2, v_lane))
    for k, r in enumerate(regs):
        e(bstore(r, v_t, S_DMP, s_t0, off=0))
        e(salu("s_add_u32", s_t0, s_t0, 256))
        if k % 32 == 31: em.wait(vm0=True)
    em.wait(vm0=True)
    if finish: e(raw("s_endpgm"))

def red4(op, x, tmp):
    for sw in ("v_permlane32_swap_b32", "v_permlane16_swap_b32"):
        for a, t in zip(x, tmp): e(valu("v_mov_b32", t, a))
        if len(x) < 3: e(nop(1))
        for a, t in zip(x, tmp): e(valu(sw, a, t))
        for a, t in zip(x, tmp): e(valu(op, a, a, t))

e(scmp("s_cmp_ge_u32", S(2), 256)); e(raw("s_cbranch_scc1 L_end", rd=["scc"]))
diag(0)
i0 = e(I("s_load_dwordx16 %s, s[0:1], 0" % s_ka, "smem", wr=s_ka.regs()))
i1 = e(I("s_load_dwordx8 %s, s[0:1], 64" % s_kb, "smem", wr=s_kb.regs()))
vq, vG, vr, vc_, vx, vy, vz = [V(40 + i) for i in range(7)]
e(raw("s_getpc_b64 %s" % s_pair2, "salu", wr=[s_pair2]))
em.label("L_pc0")
CT0 = int(os.environ.get("CT0", "64"))
if CT0:
    e(valu("v_sub_u32", V(55), 255, v_tid)); e(valu("v_cmp_gt_u32", "vcc", CT0, V(55))); e(valu("v_lshlrev_b32", V(55), 7, V(55))); e(nop(0))
    e(raw("s_and_saveexec_b64 s[4:5], vcc", "salu", wr=["exec"], rd=["vcc"])); e(raw("s_cbranch_execz L_ct0"))
    e(raw("global_load_dword v55, v55, %s" % s_pair2))
    em.label("L_ct0")
    e(raw("s_mov_b64 exec, -1", "salu", wr=["exec"]))
MAP2 = int(os.environ.get("MAP2", "0"))
s_i = S(65)
if MAP2:
    e(salu("s_and_b32", s_g, S(2), 3)); e(salu("s_lshl_b32", s_g, s_g, 1)); e(salu("s_bfe_u32", s_t0, S(2), "0x10003")); e(salu("s_add_u32", s_g, s_g, s_t0))
    e(salu("s_bfe_u32", s_qb, S(2), "0x10002")); e(salu("s_lshl_b32", s_qb, s_qb, 4)); e(salu("s_lshr_b32", s_t0, S(2), 4)); e(salu("s_add_u32", s_qb, s_qb, s_t0))
else:
    e(salu("s_and_b32", s_g, S(2), 7)); e(salu("s_lshr_b32", s_qb, S(2), 3))
def sx(dst): return salu("s_lshr_b32", dst, S(2), 4 if MAP2 else 3)
TL = "-1" if MAP2 else "0xffffffff"
e(valu("v_and_b32", v_lane, 63, v_tid))
e(valu("v_lshrrev_b32", v_t, 6, v_tid))
e(valu("v_lshlrev_b32", v_lin, 4, v_lane))
e(valu("v_readfirstlane_b32", s_w, v_t))
e(valu("v_and_b32", vq, 15, v_lane)); e(valu("v_lshrrev_b32", vG, 4, v_lane))
vxo = V(47)
XD = int(os.environ.get("XD", "1"))
if XD:
    vxo2 = V(50); vxr = [V(47), V(50)]
    e(valu("v_lshrrev_b32", vx, 3, v_lane)); e(valu("v_lshl_add_u32", vx, v_t, 4, vx)); e(valu("v_lshlrev_b32", vx, 10, vx))
    e(valu("v_and_b32", vy, 7, v_lane)); e(valu("v_xor_b32", vy, vy, vG)); e(valu("v_lshl_add_u32", vxo, vy, 4, vx))
    e(valu("v_xor_b32", vxo2, 64, vxo)); e(valu("v_add_u32", vxo2, 8192, vxo2))
else:
    e(valu("v_lshl_add_u32", vxo, v_t, 4, vq)); e(valu("v_lshlrev_b32", vxo, 10, vxo)); e(valu("v_lshl_add_u32", vxo, vG, 4, vxo))
vwg, vwq, vcw = V(52), V(53), V(54)
e(salu("s_mul_i32", s_t1, s_g, 448, scc_w=False)); e(salu("s_and_b32", s_t1, s_t1, hx(~127)))
e(salu("s_and_b32", s_t2, s_w, 1)); e(sx(s_t3)); e(salu("s_lshl_b32", s_t3, s_t3, 1)); e(salu("s_add_u32", s_t2, s_t2, s_t3))
e(salu("s_mul_i32", s_t2, s_t2, (16 if MAP2 else 8) * 3584, scc_w=False)); e(salu("s_add_u32", s_t1, s_t1, s_t2))
e(valu("v_lshrrev_b32", vx, 2, v_lane)); e(valu("v_mul_u32_u24", vx, 3584, vx)); e(valu("v_and_b32", vz, 3, v_lane)); e(valu("v_lshl_add_u32", vx, vz, 7, vx))
e(valu("v_add_u32", vwg, s_t1, vx))
e(salu("s_lshr_b32", s_t2, S(2), 3)); e(salu("s_lshl_b32", s_t2, s_t2, 2)); e(salu("s_add_u32", s_t2, s_t2, s_w)); e(salu("s_lshl_b32", s_t3, s_t2, 8))
e(valu("v_lshlrev_b32", vcw, 7, v_lane)); e(valu("v_add_u32", vcw, s_t3, vcw))
e(salu("s_lshl_b32", s_t0, s_qb, 16))
em.wait(lg0=True)
diag(2)
srd(S_X, s_ka[0], s_ka[1], 65536, s_t0)
v_xp = V(64, 64)
XFIRST = int(os.environ.get("XFIRST", "12"))
if XD:
    s_xb = S(60)
    e(salu("s_lshl_b32", s_xb, s_w, 14))
    xl = [dma(vxo2 if t & 1 else vxo, S_X, 0, off=128 * (t >> 1)) for t in range(16)]
    def xissue(t): e(salu("s_add_u32", "m0", s_xb, t * 1024 - 128 * (t >> 1))); e(nop(0)); e(xl[t])
else:
    xl = [bload(v_xp[(4 * ks, 4)], vxo, S_X, 0, off=64 * ks) for ks in range(16)]
    def xissue(t): e(xl[t])
for ks in range(XFIRST): xissue(ks)
e(scmp("s_cmp_lt_u32", s_w, 2)); e(salu("s_cselect_b64", s_pair, s_ka[(12, 2)], s_ka[(14, 2)], scc_w=False, scc_r=True))
e(raw("s_mov_b64 exec, " + TL, "salu", wr=["exec"]))
e(I("global_load_dword %s, %s, %s" % (V(48), vwg, s_pair), "vmem", rd=vwg.regs() + s_pair.regs(), wr=V(48).regs()))
e(raw("s_mov_b64 exec, 3", "salu", wr=["exec"]))
e(I("global_load_dword %s, %s, %s" % (V(49), vcw, s_pair2), "vmem", rd=vcw.regs() + s_pair2.regs(), wr=V(49).regs()))
e(raw("s_mov_b64 exec, -1", "salu", wr=["exec"]))
e(sx(s_t2)); e(salu("s_lshl_b32", s_t2, s_t2, 2)); e(salu("s_add_u32", s_t2, s_t2, s_w))
e(salu("s_lshl_b32", s_t2, s_t2, 16 if MAP2 else 15)); e(salu("s_lshl_b32", s_t3, s_g, 10)); e(salu("s_add_u32", s_t2, s_t2, s_t3))
e(valu("v_lshrrev_b32", vx, 3, v_lane)); e(valu("v_lshlrev_b32", vx, 13, vx)); e(valu("v_and_b32", vz, 7, v_lane)); e(valu("v_lshl_add_u32", vx, vz, 7, vx))
e(valu("v_add_u32", vwq, s_t2, vx))
e(salu("s_lshr_b32", s_t2, S(2), 6)); e(salu("s_and_b32", s_t3, S(2), 7)); e(salu("s_lshl_b32", s_t3, s_t3, 2)); e(salu("s_add_u32", s_t2, s_t2, s_t3))
e(salu("s_lshl_b32", s_t0, s_t2, 16))
srd(S_OUT, s_kb[2], s_kb[3], 65536, s_t0)
e(salu("s_lshl_b32", s_t1, s_g, 19))
srd(S_K, s_ka[2], s_ka[3], 524288, s_t1)
srd(S_V, s_ka[4], s_ka[5], 524288, s_t1)
srd(S_WO, s_ka[8], s_ka[9], 524288, s_t1)
srd(S_WQ, s_ka[6], s_ka[7], 4 << 20)
srd(S_WG, s_ka[12], s_ka[13], 1835008)
srd(S_WU, s_ka[14], s_ka[15], 1835008)
srd(S_WD, s_kb[0], s_kb[1], 1835008)
srd(S_DBG, s_kb[4], s_kb[5], 256)
e(salu("s_mul_i32", s_t1, s_qb, 229376, scc_w=False))
srd(S_H, s_kb[6], s_kb[7], 229376, s_t1)
e(salu("s_lshl_b32", s_t1, s_qb, 19)); e(salu("s_add_u32", s_t1, s_t1, hx(WS_SP)))
srd(S_SP, s_kb[6], s_kb[7], 524288, s_t1)
if DUMP or STAMP:
    e(salu("s_mov_b32", s_t1, hx(WS_DUMP), scc_w=False))
    srd(S_DMP, s_kb[6], s_kb[7], 200 << 20, s_t1)
e(salu("s_mov_b64", s_pair, S(90, 2), scc_w=False))
e(salu("s_lshl_b32", s_t0, s_t2, 16))
srd(S_XC, s_ka[0], s_ka[1], 65536, s_t0)
e(salu("s_mul_i32", s_t1, s_t2, 229376, scc_w=False))
srd(S_HC, s_pair[0], s_pair[1], 229376, s_t1)
e(salu("s_lshl_b32", s_t1, s_t2, 19)); e(salu("s_add_u32", s_t1, s_t1, hx(WS_SP)))
srd(S_SPC, s_pair[0], s_pair[1], 524288, s_t1)
e(salu("s_mov_b32", s_cq, s_t2, scc_w=False)); e(salu("s_bfe_u32", s_cg, S(2), "0x30003"))
e(salu("s_lshl_b32", s_myfl, s_qb, 2)); e(salu("s_add_u32", s_myfl, s_myfl, s_w)); e(salu("s_lshl_b32", s_myfl, s_myfl, 8))
e(salu("s_lshl_b32", s_t1, s_g, 2)); e(salu("s_add_u32", s_myfl, s_myfl, s_t1))
e(salu("s_lshl_b32", s_m0b, s_w, 12)); e(salu("s_add_u32", s_m0b, s_m0b, RING))
e(salu("s_and_b32", s_t1, s_g, 1)); e(salu("s_lshl_b32", s_t1, s_t1, 2)); e(salu("s_add_u32", s_t1, s_t1, s_w))
e(scmp("s_cmp_eq_u32", s_w, 3)); e(salu("s_cselect_b32", s_t1, 3, s_t1, scc_w=False, scc_r=True))
e(salu("s_lshr_b32", s_t2, s_g, 1)); e(salu("s_mul_i32", s_t2, s_t2, 7, scc_w=False)); e(salu("s_add_u32", s_t1, s_t1, s_t2))
e(salu("s_lshl_b32", s_h0, s_t1, 13)); e(salu("s_add_u32", s_h1, s_h0, 4096))
e(salu("s_lshl_b32", s_t1, s_t1, 7))
e(salu("s_lshl_b32", s_t2, s_g, 2)); e(salu("s_add_u32", s_t2, s_t2, s_w)); e(salu("s_lshl_b32", s_t2, s_t2, 8))

def dma_voffs(dst, stride, colbase_s, perm):
    for j in range(4):
        e(valu("v_bfe_u32", vx, v_lane, 1, 2)); e(valu("v_bfe_u32", vy, v_lane, 4, 1))
        e(valu("v_xor_b32", vx, vx, vy))
        if j & 1: e(valu("v_xor_b32", vx, 2, vx))
        e(valu("v_and_b32", vy, 1, v_lane)); e(valu("v_lshlrev_b32", vy, 4, vy)); e(valu("v_lshl_add_u32", vx, vx, 5, vy))
        if not perm:
            e(valu("v_lshrrev_b32", vy, 3, v_lane)); rowadd = 8 * j
        else:
            e(valu("v_bfe_u32", vy, v_lane, 3, 2)); e(valu("v_bfe_u32", vz, v_lane, 5, 1)); e(valu("v_lshl_add_u32", vy, vz, 4, vy)); rowadd = 4 * j
        e(valu("v_mul_u32_u24", vy, stride, vy))
        e(valu("v_add3_u32", vx, vx, vy, colbase_s))
        e(valu("v_add_u32", dst[j], rowadd * stride - j * 1024, vx))

dma_voffs(v_dA, 3584, s_t1, False)
dma_voffs(v_dB, 8192, s_t2, False)

def m0set(p): return salu("s_add_u32", "m0", s_m0b, p * 16384) if p < 6 else salu("s_sub_u32", "m0", s_m0b, RING - (p - 6) * 16384)
def s1_dma(m):
    p = m % 6
    if m < 32:
        s, h = m >> 1, m & 1
        return [m0set(p), salu("s_mov_b32", s_off, s * 32 * 3584, scc_w=False)], [dma(v_dA[j], S_WU if h else S_WG, s_off, j * 1024) for j in range(4)]
    if m < 64:
        s, h = (m - 32) >> 1, m & 1
        return [m0set(p), salu("s_mov_b32", s_off, s * 32 * 8192 + 128 * h, scc_w=False)], [dma(v_dB[j], S_WQ, s_off, j * 1024) for j in range(4)]
    if m == 64:
        return [m0set(p), salu("s_mov_b32", s_off, 0, scc_w=False)], [dma(v_kd[j], S_K, s_off, j * 1024) for j in range(4)]
    if m == 65:
        return [m0set(p), salu("s_mov_b32", s_off, 8192, scc_w=False)], [dma(v_kd[j], S_K, s_off, j * 1024) for j in range(4)]
    if m == 66:
        return [m0set(p), salu("s_mov_b32", s_off, 0, scc_w=False)], [dma(v_vd[j & 1], S_V, s_off, j * 1024) for j in range(4)]
    return None
dtok = {}
ln_v = []
for m in range(6):
    sa, dm = s1_dma(m)
    ln_v.append(sa); ln_v += dm
    dtok[m] = dm[3]
def xaddr(dst, tmp):
    e(valu("v_and_b32", dst, 15, v_lane)); e(salu("s_lshl_b32", s_t0, s_w, 4)); e(valu("v_add_u32", dst, s_t0, dst)); e(valu("v_lshlrev_b32", dst, 10, dst))
    e(valu("v_lshrrev_b32", tmp, 4, v_lane)); e(valu("v_lshl_add_u32", dst, tmp, 3, dst)); e(salu("s_lshl_b32", s_t0, s_cg, 7)); e(valu("v_add_u32", dst, s_t0, dst))
WQT = int(os.environ.get("WQT", "0"))
wqt = [raw("s_mov_b64 exec, " + TL, "salu", wr=["exec"]), bload(V(46), vwq, S_WQ, 0, n=1), raw("s_mov_b64 exec, -1", "salu", wr=["exec"])]
if WQT == 0: ln_v.append(wqt)
LNPRE = int(os.environ.get("LNPRE", "0"))
lv = [0]
def ln_issue(n=1):
    k = 0
    while k < n and lv[0] < len(ln_v):
        it = ln_v[lv[0]]; lv[0] += 1
        e(it)
        if not isinstance(it, list): k += 1
e(valu("v_bfe_u32", vr, v_lane, 2, 2)); e(valu("v_and_b32", vc_, 3, v_lane))
e(valu("v_lshlrev_b32", vx, 10, vG)); e(valu("v_lshl_add_u32", vx, vr, 7, vx)); e(valu("v_lshl_add_u32", vx, vc_, 3, vx)); e(valu("v_add_u32", vx, s_m0b, vx))
e(valu("v_lshrrev_b32", vy, 1, vr)); e(valu("v_and_b32", vz, 1, vG)); e(valu("v_lshl_add_u32", vy, vz, 1, vy))
for u in range(4):
    e(valu("v_xor_b32", vz, u, vy)); e(valu("v_lshl_add_u32", v_tr[0][u], vz, 5, vx)); e(valu("v_add_u32", v_tr[1][u], 3 * 16384, v_tr[0][u]))
e(valu("v_xor_b32", vy, vG, vq))
for ds in range(4):
    e(valu("v_xor_b32", vz, 4 * ds, vy)); e(valu("v_lshlrev_b32", vz, 4, vz)); e(valu("v_lshl_add_u32", vz, vq, 8, vz)); e(valu("v_add_u32", v_ka[ds], RING + 4 * 16384, vz))
e(valu("v_lshl_add_u32", vx, vG, 2, vr)); e(valu("v_and_b32", vy, 7, vx)); e(valu("v_lshlrev_b32", vx, 8, vx)); e(valu("v_lshl_add_u32", vx, vc_, 3, vx)); e(valu("v_add_u32", vx, RING, vx))
for db in range(8):
    e(valu("v_xor_b32", vz, db, vy)); e(valu("v_lshl_add_u32", v_va[db], vz, 5, vx))
e(salu("s_lshl_b32", s_t1, s_w, 12))
e(valu("v_lshlrev_b32", vx, 8, vG)); e(valu("v_add_u32", vx, s_t1, vx))
for j in range(4):
    e(valu("v_add_u32", vy, 4 * j, vG)); e(valu("v_xor_b32", vy, vy, vq)); e(valu("v_lshl_add_u32", v_kd[j], vy, 4, vx))
e(valu("v_and_b32", vz, 1, v_lane)); e(valu("v_lshl_add_u32", vx, vz, 4, vx))
for j in range(2):
    e(valu("v_add_u32", vy, 4 * j, vG)); e(valu("v_lshrrev_b32", vz, 1, vq)); e(valu("v_xor_b32", vy, vy, vz)); e(valu("v_lshl_add_u32", v_vd[j], vy, 5, vx))
e(salu("s_lshl_b32", s_t1, s_w, 14)); e(valu("v_add_u32", v_wl, s_t1, v_lin))
e(salu("s_mov_b32", s_retry, 0, scc_w=False))
for ks in range(XFIRST, 16): xissue(ks)
if XD:
    e(valu("v_lshrrev_b32", vx, 1, vq)); e(valu("v_xor_b32", vx, vx, vG)); e(valu("v_lshlrev_b32", vx, 4, vx))
    e(valu("v_lshl_add_u32", vx, vq, 7, vx)); e(valu("v_add_u32", vxr[0], s_xb, vx)); e(valu("v_xor_b32", vxr[1], 64, vxr[0]))
e(salu("s_mov_b32", s_t1, hx(WS_FL), scc_w=False))
srd(S_FL, s_pair[0], s_pair[1], 32768, s_t1)
if WQT == 1: e(wqt)
ln_issue(LNPRE)
stamp()

v_f = V(128, 128)
LNM = int(os.environ.get("LNM", "1"))
vsum, vtmp, vmb, vdm = V(40), V(41), V(42), V(43)
vneg = V(56, 2)
diag(2)
if LNM:
    d1, d2 = V(56, 4), V(60, 4)
    xr = {}
    def xread(t2):
        em.wait(vm=xl[2 * t2 + 1])
        for ks in (2 * t2, 2 * t2 + 1): xr[ks] = e(dsread("ds_read_b128", v_xp[(4 * ks, 4)], vxr[ks & 1], (ks >> 1) * 2048))
    e(valu("v_mov_b32", vtmp, "0x3f803f80"))
    for i in range(4): e(valu("v_accvgpr_write_b32", a_ones[i], vtmp))
    e(valu("v_and_b32", vtmp, 3, v_lane))
    for r in range(1, 4): e(valu("v_cmp_eq_u32", S(68 + 2 * r, 2), r, vtmp))
    e(valu("v_bfe_u32", vtmp, v_lane, 2, 2)); e(valu("v_lshrrev_b32", vmb, 4, v_lane)); e(valu("v_cmp_eq_u32", S(68, 2), vtmp, vmb))
    LND = int(os.environ.get("LND", "4"))
    if XD: xread(0)
    for ks in range(16):
        if XD:
            if ks % 2 == 0 and ks + 2 < 16: xread(ks // 2 + 1)
            em.wait(lg=xr[ks])
        else: em.wait(vm=xl[ks])
        if ks == 15: diag(2)
        x4 = v_xp[(4 * ks, 4)]
        e(mfma(d1, a_ones, x4, 0 if ks == 0 else d1))
        if ks >= LND: ln_issue(1)
        for k in range(2):
            p = 4 * ks + k
            e(valu("v_lshlrev_b32", v_f[2 * p], 16, v_xp[p])); e(valu("v_and_b32", v_f[2 * p + 1], "0xffff0000", v_xp[p]))
        e(mfma(d2, x4, x4, 0 if ks == 0 else d2))
        for k in range(2, 4):
            p = 4 * ks + k
            e(valu("v_lshlrev_b32", v_f[2 * p], 16, v_xp[p])); e(valu("v_and_b32", v_f[2 * p + 1], "0xffff0000", v_xp[p]))
    if STAMP == 3: stamp()
    ln_issue(int(os.environ.get("LN_FIRST", "0")))
    diag(2)
    if STAMP == 3: stamp()
    e(nop(2))
    e(valu("v_mul_f32", vsum, hx(f2u(1.0 / 512)), d1[0]))
    e(valu("v_cvt_pk_bf16_f32", vmb, vsum, vsum)); e(valu("v_lshlrev_b32", vmb, 16, vmb))
    e(valu("v_mov_b32", vdm, vsum))
    for r in range(1, 4): e(valu("v_cndmask_b32", d2[0], d2[0], d2[r], S(68 + 2 * r, 2)))
    e(valu("v_cndmask_b32", vsum, 0, d2[0], S(68, 2)))
    red4("v_add_f32", [vsum], [vtmp])
    e(valu("v_mul_f32", vsum, hx(f2u(1.0 / 512)), vsum))
    e(valu("v_fma_f32", vsum, "-" + str(vdm), vdm, vsum, extra_rd=vdm.regs()))
    if STAMP == 3: stamp()
else:
    acc = [V(56, 2), V(58, 2), V(60, 2), V(62, 2)]
    for ks in range(16):
        em.wait(vm=xl[ks])
        if ks == 15: diag(2)
        for k in range(4):
            p = 4 * ks + k
            e(valu("v_lshlrev_b32", v_f[2 * p], 16, v_xp[p])); e(valu("v_and_b32", v_f[2 * p + 1], "0xffff0000", v_xp[p]))
        for k in range(4):
            p = 4 * ks + k
            if ks == 0: e(valu("v_mov_b64", acc[k], v_f[(2 * p, 2)]))
            else: e(valu("v_pk_add_f32", acc[k], acc[k], v_f[(2 * p, 2)]))
    if STAMP == 3: stamp()
    ln_issue(int(os.environ.get("LN_FIRST", "12")))
    diag(2)
    if STAMP == 3: stamp()
    e(valu("v_pk_add_f32", acc[0], acc[0], acc[1])); e(valu("v_pk_add_f32", acc[2], acc[2], acc[3])); e(valu("v_pk_add_f32", acc[0], acc[0], acc[2]))
    e(valu("v_add_f32", vsum, acc[0][0], acc[0][1]))
    red4("v_add_f32", [vsum], [vtmp])
    e(valu("v_mul_f32", vsum, hx(f2u(1.0 / 512)), vsum))
    e(valu("v_cvt_pk_bf16_f32", vmb, vsum, vsum)); e(valu("v_lshlrev_b32", vmb, 16, vmb))
    e(valu("v_sub_f32", vdm, vsum, vmb))
    e(valu("v_sub_f32", vneg[0], 0, vmb))
    acc2 = [V(58, 2), V(60, 2), V(62, 2)]
    for p in range(64):
        e(valu("v_pk_add_f32", v_f[(2 * p, 2)], v_f[(2 * p, 2)], vneg, mod="op_sel_hi:[1,0]"))
    for p in range(64):
        a_ = acc2[p % 3]
        if p < 3: e(valu("v_pk_mul_f32", a_, v_f[(2 * p, 2)], v_f[(2 * p, 2)]))
        else: e(valu("v_pk_fma_f32", a_, v_f[(2 * p, 2)], v_f[(2 * p, 2)], a_))
    if STAMP == 3: stamp()
    e(valu("v_pk_add_f32", acc2[0], acc2[0], acc2[1])); e(valu("v_pk_add_f32", acc2[0], acc2[0], acc2[2]))
    e(valu("v_add_f32", vsum, acc2[0][0], acc2[0][1]))
    red4("v_add_f32", [vsum], [vtmp])
    e(valu("v_mul_f32", vsum, hx(f2u(1.0 / 512)), vsum))
    e(valu("v_fma_f32", vsum, "-" + str(vdm), vdm, vsum, extra_rd=vdm.regs()))
e(valu("v_max_f32", vsum, 0, vsum))
e(valu("v_cvt_pk_bf16_f32", vsum, vsum, vsum)); e(valu("v_lshlrev_b32", vsum, 16, vsum))
e(valu("v_add_f32", vsum, hx(f2u(1e-5)), vsum))
e(valu("v_cvt_pk_bf16_f32", vsum, vsum, vsum)); e(valu("v_lshlrev_b32", vsum, 16, vsum))
e(valu("v_sqrt_f32", vsum, vsum)); e(nop(0))
e(valu("v_cvt_pk_bf16_f32", vsum, vsum, vsum)); e(valu("v_lshlrev_b32", vsum, 16, vsum))
e(valu("v_rcp_f32", vneg[0], vsum)); e(nop(0))
if LNM: e(valu("v_mul_f32", vneg[1], "-" + str(vmb), vneg[0], mod="", extra_rd=vmb.regs()))
for ks in range(16):
    for k in range(4):
        p = 4 * ks + k
        if LNM: e(valu("v_pk_fma_f32", v_f[(2 * p, 2)], v_f[(2 * p, 2)], vneg, vneg, mod="op_sel:[0,0,1] op_sel_hi:[1,0,1]"))
        else: e(valu("v_pk_mul_f32", v_f[(2 * p, 2)], v_f[(2 * p, 2)], vneg, mod="op_sel_hi:[1,0]"))
    for k in range(4):
        p = 4 * ks + k
        e(valu("v_cvt_pk_bf16_f32", v_xp[p], v_f[2 * p], v_f[2 * p + 1]))
    e(dswrite("ds_write_b128", v_wl, v_xp[(4 * ks, 4)], ks * 1024))
ln_issue(int(os.environ.get("LN_LAST", "100")))
if STAMP == 3: stamp()
if DUMP == "ln": dump_regs([v_xp[i] for i in range(64)])
em.wait(lg0=True)
e(raw("s_barrier"))
stamp(); diag(); diag(2); diag(3)

def cost_of(it):
    k = getattr(it, "kind", "")
    return 2 if k == "trans" else (0 if k in ("salu", "nop") else 1)
class Fill:
    def __init__(self, items, start, end, spread=False): self.items, self.start, self.end, self.spread = list(items), start, end, spread; self.i = 0
    def done(self): return self.i == len(self.items)
def run_stream(NH, dmaf, dtok, accf, Bf, extra, fills, LOOK=6, nq=4, posf=lambda m: m % 6, ring=a_ring, first_dma=6, tr2=None, early_dma=False, w2=lambda g: False):
    NG = 4 * NH
    rtok = {}
    def reads(g):
        m, u = g >> 2, g & 3
        p = posf(m)
        d = ring[((g % 8) * 4, 4)]
        ar, of = (v_tr[p // 3][u], (p % 3) * 16384) if p < 6 else (tr2[u], (p - 6) * 16384)
        r = [dsread("ds_read_b64_tr_b16", d[(2 * h2, 2)], ar, of + h2 * 512) for h2 in range(2)]
        rtok[g] = r[1]
        return r
    pre = [reads(g) for g in range(3)]
    G, C = [], []
    cur = None
    for g in range(NG):
        gaps = [[], [], [], []]; cap = [2, 2, 2, 2]
        if g + 3 < NG:
            if (g + 3) & 3 == 0 and not (g > 0 and w2(g - 1)): gaps[0].append(LateW(dtok, (g + 3) >> 2))
            r = reads(g + 3); gaps[0].append(r[0]); gaps[1].append(r[1]); cap[0] -= 1; cap[1] -= 1
        md, j = (g + 4 * LOOK - 4) >> 2, (g + 4 * LOOK - 4) & 3
        if early_dma:
            md, j = (g + 4 * LOOK - 3) >> 2, (g + 4 * LOOK - 3) & 3
            if md >= first_dma and j < 2:
                if j == 0: cur = dmaf(md)
                if cur is not None:
                    if j == 0: gaps[1] += cur[0]
                    gaps[2].append(cur[1][2 * j]); gaps[3].append(cur[1][2 * j + 1]); cap[2] -= 1; cap[3] -= 1
                    if j == 1: dtok[md] = cur[1][3]
        elif md >= first_dma:
            if j == 0: cur = dmaf(md)
            if cur is not None:
                if j == 0: gaps[2] += cur[0]
                for it in cur[1][j::4]: gaps[3].append(it); cap[3] -= 1
                if j == 3: dtok[md] = cur[1][3]
        for (gp, it, cost) in extra.get(g, []):
            gaps[gp].append(it); cap[gp] -= cost
        if w2(g):
            if g & 1 == 0 and g + 1 < NG:
                gaps[3].insert(0, LateW2(rtok, [x for x in (g + 1, g + 2) if x < NG], dtok, (g + 4) >> 2 if ((g + 4) & 3 == 0 and g + 4 < NG) else None))
        elif g + 1 < NG: gaps[3].insert(0, Wait(lg=rtok[g + 1]))
        G.append(gaps); C.append(cap)
    B = {}
    for f in fills:
        idx = [(g, q) for g in range(f.start, f.end) for q in range(4)]
        caps = [max(0, C[g][q]) for g, q in idx]
        W = sum(cost_of(it) for it in f.items); T = sum(caps); n = len(idx)
        acc = 0.0; cum = 0
        for k, key in enumerate(idx):
            if W >= T: acc += caps[k] + (W - T) / n
            elif f.spread: acc += caps[k] * W / T
            else: acc += caps[k]
            B[key] = (f, acc)
    em.wait(vm=dtok[0])
    for r in pre: e(r)
    for p_ in extra.get(-1, []): e(p_[1])
    em.wait(lg0=True)
    used = {id(f): 0 for f in fills}
    for g in range(NG):
        m, u = g >> 2, g & 3
        d = ring[((g % 8) * 4, 4)]
        for qb in range(nq):
            ac, first = accf(m, u, qb)
            e(mfma(ac, d, Bf(m, qb), 0 if first else ac))
            ent = B.get((g, qb))
            sawv = False
            if ent:
                f, lim = ent
                while not f.done() and getattr(f.items[f.i], "kind", "") in ("lds", "vmem", "salu") and used[id(f)] + cost_of(f.items[f.i]) <= lim + 0.5:
                    it = f.items[f.i]; f.i += 1; used[id(f)] += cost_of(it); e(it)
            for it in G[g][qb]: e(it)
            if ent:
                f, lim = ent
                lastgap = (g == f.end - 1 and qb == 3)
                while not f.done():
                    it = f.items[f.i]; c = cost_of(it)
                    if not lastgap:
                        if used[id(f)] + c > lim + 0.5: break
                        if sawv and getattr(it, "kind", "") in ("lds", "vmem"): break
                    f.i += 1; used[id(f)] += c; e(it)
                    if getattr(it, "kind", "") in ("valu", "trans"): sawv = True
    assert all(f.done() for f in fills)
class LateW2:
    def __init__(self, r, fl, d, k): self.r, self.fl, self.d, self.k = r, fl, d, k
    def __call__(self): return Wait(lg=[self.r[f] for f in self.fl], vm=(self.d[self.k] if self.k is not None else None))
class LateW:
    def __init__(self, d, k): self.d, self.k = d, k
    def __call__(self): return Wait(vm=self.d[self.k])

def s1_acc(m, u, qb):
    h = m & 1
    idx = ((h * 4 + u) * 4 + qb) * 4
    if m < 32: return A(idx, 4), m < 2
    return v_acc[(idx, 4)], m < 34
def s1_B(m, qb): return a_B[(((m >> 1) & 1) * 16 + qb * 4, 4)]
extra = {}
btok = {}
def bread(s, qb): return dsread("ds_read_b128", a_B[((s & 1) * 16 + qb * 4, 4)], v_lin, (qb * 16 + (s % 16)) * 1024)
extra[-1] = [(0, bread(0, qb), 1) for qb in range(4)]
for s in range(1, 32):
    for qb in range(4):
        extra.setdefault(8 * (s - 1) + 1 + qb, []).append((2, bread(s, qb), 1))
gi = 0; gj = 0; pend_s = []
for it in ln_v[lv[0]:]:
    if isinstance(it, list) and all(x.kind == "salu" for x in it): pend_s = it; continue
    if not isinstance(it, list) and it.kind == "dma":
        assert gi < 12
        extra.setdefault(gi // 3, []).append((gi % 3, [pend_s, it] if pend_s else it, 1)); pend_s = []
        gi += 1
    else:
        extra.setdefault(8 + 2 * gj, []).append((1, it, 1)); gj += 1
C0 = -2.0 * math.sqrt(2.0 / math.pi) * math.log2(math.e); C1 = C0 * 0.044715
vc0, vc1 = V(40), V(41)
gel = [valu("v_mov_b32", vc0, hx(f2u(C0))), valu("v_mov_b32", vc1, hx(f2u(C1)))]
hst = []
tb = 0
for i in range(2):
    for qb in range(4):
        pk = V(96 + 4 * tb, 4); tb += 1
        for b in range(2):
            u = 2 * i + b
            T = [V(64 + 16 * b + k) for k in range(16)]
            G_, U_, X_ = T[0:4], T[4:8], T[8:12]
            ga = lambda r: A((u * 4 + qb) * 4 + r); ua = lambda r: A(((4 + u) * 4 + qb) * 4 + r)
            for r in range(4): gel.append(valu("v_accvgpr_read_b32", G_[r], ga(r)))
            for r in range(4): gel.append(valu("v_accvgpr_read_b32", U_[r], ua(r)))
            for r in range(4): gel.append(valu("v_mul_f32", X_[r], G_[r], G_[r]))
            for r in range(4): gel.append(valu("v_fma_f32", X_[r], X_[r], vc1, vc0))
            for r in range(4): gel.append(valu("v_mul_f32", X_[r], X_[r], G_[r]))
            for r in range(4): gel.append(valu("v_exp_f32", X_[r], X_[r]))
            for r in range(4): gel.append(valu("v_mul_f32", G_[r], G_[r], U_[r]))
            for r in range(4): gel.append(valu("v_add_f32", X_[r], "1.0", X_[r]))
            for r in range(4): gel.append(valu("v_rcp_f32", X_[r], X_[r]))
            gel.append(nop(0))
            for r in range(4): gel.append(valu("v_mul_f32", G_[r], G_[r], X_[r]))
            for k in range(2): gel.append(valu("v_cvt_pk_bf16_f32", pk[2 * b + k], G_[2 * k], G_[2 * k + 1]))
        st = bstore(pk, v_lin, S_H, s_h1 if i else s_h0, off=qb * 1024, mod="sc1")
        hst.append(st)
class Stamp:
    def __call__(self): stamp(); return []
if STAMP: extra.setdefault(128, []).append((0, Stamp(), 0))
class Diag3:
    def __call__(self): diag(3); return []
if DIAG == 3:
    for g_ in (32, 128, 192): extra.setdefault(g_, []).append((0, Diag3(), 0))
class Grp:
    kind = "salu"
    def __init__(self, l): self.l = l
    def __call__(self):
        for x in self.l:
            if x.kind == "label": em.out.append(x)
            else: e(x)
        return []
def group_scc(items):
    out = []
    for it in items:
        if out and ("scc" in it.rd or it.kind == "label"):
            p = out.pop(); out.append(Grp((p.l if isinstance(p, Grp) else [p]) + [it]))
        else: out.append(it)
    return out
s_pf = [S(24, 2), S(26, 2), S(28, 2), S(30, 2)]
s_pfH = s_pair2
s_fo = S(3)
QS = math.log2(math.e) / math.sqrt(128.0)
vqs = V(42, 2); vqw = V(44)
save = em.out; em.out = []; spend = em.pend; em.pend = {}
NWO = 4 if MAP2 else 2
for it in range(3):
    e(salu("s_add_u32", s_t0, s_w, 4 * it))
    e(salu("s_sub_u32", s_t1, s_t0, NWO)); e(salu("s_min_u32", s_t1, s_t1, 6)); e(salu("s_lshl_b32", s_t1, s_t1, 13))
    e(salu("s_lshr_b32", s_t2, S(2), 3)); e(salu("s_mul_i32", s_t2, s_t2, 57344, scc_w=False)); e(salu("s_add_u32", s_t1, s_t1, s_t2))
    e(salu("s_add_u32", s_pf[it][0], S_WD[0], s_t1)); e(salu("s_addc_u32", s_pf[it][1], S_WD[1], 0, scc_r=True))
    if it == 0:
        e(sx(s_t1)); e(salu("s_lshl_b32", s_t1, s_t1, 15 if MAP2 else 14)); e(salu("s_lshl_b32", s_t2, s_w, 13)); e(salu("s_add_u32", s_t1, s_t1, s_t2))
        e(salu("s_add_u32", s_pf[1][0], S_WO[0], s_t1)); e(salu("s_addc_u32", s_pf[1][1], S_WO[1], 0, scc_r=True))
        e(scmp("s_cmp_lt_u32", s_w, NWO)); e(salu("s_cselect_b64", s_pf[0], s_pf[1], s_pf[0], scc_w=False, scc_r=True))
e(raw("s_getpc_b64 %s" % s_pf[3], "salu", wr=[s_pf[3]]))
em.label("L_pc1")
e(salu("s_lshl_b32", s_t0, s_w, 13)); e(salu("s_add_u32", s_t0, s_t0, "L_tail-L_pc1")); e(salu("s_min_u32", s_t0, s_t0, "L_code_end-L_pc1-8192"))
e(salu("s_add_u32", s_t1, s_t0, (1 if MAP2 else 3) * 8192)); e(salu("s_min_u32", s_t1, s_t1, "L_code_end-L_pc1-8192"))
e(salu("s_add_u32", s_pfH[0], s_pf[3][0], s_t1)); e(salu("s_addc_u32", s_pfH[1], s_pf[3][1], 0, scc_r=True))
e(scmp("s_cmp_lt_u32", s_w, 3 if MAP2 else 1)); e(salu("s_cselect_b64", s_pf[2], s_pf[2], s_pfH, scc_w=False, scc_r=True))
e(salu("s_add_u32", s_pf[3][0], s_pf[3][0], s_t0)); e(salu("s_addc_u32", s_pf[3][1], s_pf[3][1], 0, scc_r=True))
e(salu("s_lshl_b32", s_t0, s_cg, 2)); e(salu("s_add_u32", s_t0, s_t0, s_w)); e(salu("s_mul_i32", s_t0, s_t0, 7168, scc_w=False)); e(salu("s_min_u32", s_t0, s_t0, 229376 - 8192))
e(salu("s_add_u32", s_pfH[0], S_HC[0], s_t0)); e(salu("s_addc_u32", s_pfH[1], S_HC[1], 0, scc_r=True))
e(salu("s_lshl_b32", s_fo, s_cq, 3))
vx, vy, vz = V(45), V(46), V(47)
e(salu("s_lshl_b32", s_t1, s_w, 8))
dma_voffs(v_dA, 1024, s_t1, True)
e(salu("s_mul_i32", s_wdd, s_w, 448 * 1024 - 256, scc_w=False)); e(salu("s_lshl_b32", s_t3, s_cg, 7)); e(salu("s_add_u32", s_wdd, s_wdd, s_t3))
e(valu("v_mov_b32", vqs[0], hx(f2u(QS))))
e(valu("v_and_b32", vx, 15, v_lane)); e(valu("v_bfe_u32", vqw, v_lane, 5, 1)); e(valu("v_lshl_add_u32", vx, vqw, 4, vx)); e(valu("v_lshlrev_b32", vx, 4, vx))
e(valu("v_bfe_u32", vqw, v_lane, 4, 1)); e(valu("v_lshl_add_u32", vqw, vqw, 3, vx))
e(salu("s_lshl_b32", s_t1, s_w, 14)); e(valu("v_add_u32", vqw, s_t1, vqw))
midset = group_scc(em.out); em.out = save; em.pend = spend
HST = int(os.environ.get("HST", "0"))
if HST == 0: GEL_END = 254
for k in range(8):
    if HST: extra.setdefault(248 + k, []).append((0, hst[k], 1))
run_stream(64, s1_dma, dtok, s1_acc, s1_B, extra, [Fill(midset, 109, 130), Fill(gel, 131, GEL_END)], early_dma=int(os.environ.get('ED1', '0')), w2=lambda g: int(os.environ.get('W2A', '1')) and g >= 130)
if DUMP == "qacc": dump_regs([v_acc[i] for i in range(128)])
stamp(); diag(3)

em.wait(lg0=True)
e(raw("s_barrier"))
def signal(off_s_expr_add, lab, v_t):
    e(scmp("s_cmp_lg_u32", s_w, 0)); e(raw("s_cbranch_scc1 %s" % lab, rd=["scc"]))
    e(salu("s_lshl_b32", s_t0, s_qb, 2))
    if off_s_expr_add: e(salu("s_add_u32", s_t0, s_t0, off_s_expr_add))
    e(valu("v_mov_b32", v_t, 1))
    e(raw("s_mov_b64 exec, 1", "salu", wr=["exec"]))
    e(raw("buffer_atomic_add %s, off, %s, %s sc1" % (v_t, S_DBG, s_t0)))
    e(raw("s_mov_b64 exec, -1", "salu", wr=["exec"]))
    em.label(lab)
for blk in range(8):
    for qb in range(4):
        a_ = v_acc[((blk * 4 + qb) * 4, 4)]
        t = V(64 + 2 * ((blk * 4 + qb) % 8), 2)
        for k in range(2): e(valu("v_pk_mul_f32", a_[(2 * k, 2)], a_[(2 * k, 2)], vqs, mod="op_sel_hi:[1,0]"))
        for k in range(2): e(valu("v_cvt_pk_bf16_f32", t[k], a_[2 * k], a_[2 * k + 1]))
        if len(em.lgq) >= 7: em.wait(lg=em.lgq[-7])
        e(dswrite("ds_write_b64", vqw, t, (qb * 4 + (blk >> 1)) * 1024 + (blk & 1) * 512))
for j in range(4): e(valu("v_add_u32", v_dB[j], s_wdd, v_dA[j]))
em.wait(lg0=True)
for f in range(16): e(dsread("ds_read_b128", a_Q[(4 * f, 4)], v_wl, f * 1024))
em.label("L_att_start")
NZ0 = 32
for i in range(NZ0): e(valu("v_mov_b64", v_acc[(2 * i, 2)], 0))
if LSUM:
    for i in range(16): e(valu("v_accvgpr_write_b32", a_L[i], 0))
    if LSUM == 3:
        for i in range(4): e(valu("v_mov_b32", v_l1[i], 0))
    if POI:
        e(valu("v_mov_b32", V(41), hx(POISON)))
        for i in range(4): e(valu("v_accvgpr_write_b32", a_poi[i], V(41)))
    e(valu("v_mov_b32", V(40), "0x3f803f80"))
    if LSUM == 2:
        e(valu("v_and_b32", V(41), 15, v_lane)); e(valu("v_cmp_eq_u32", "vcc", 0, V(41))); e(nop(1)); e(valu("v_cndmask_b32", V(40), 0, V(40), "vcc"))
    for i in range(4): e(valu("v_accvgpr_write_b32", a_ones[i], V(40)))
else:
    for i in range(4): e(valu("v_mov_b32", v_l0[i], 0)); e(valu("v_mov_b32", v_l1[i], 0))
e(valu("v_lshlrev_b32", V(3), 7, v_lane))
e(valu("v_and_b32", V(38), 7, v_lane)); e(valu("v_mov_b32", V(0), 0))
em.wait(vm=dtok[66], lg0=True)
e(raw("s_barrier"))
if DUMP == "q": dump_regs([a_Q[i] for i in range(64)])
stamp()

def Qf(qb, ds): return a_Q[((qb * 4 + ds) * 4, 4)]
def Of(db, qb): return v_acc[((db * 4 + qb) * 4, 4)]
def fr(f): return a_ring[((f % 8) * 4, 4)]
def kslot(par): return 16384 if par == 0 else 0
def vslot(par): return 0 if par == 0 else 16384
def frag_reads(par, f):
    if f >= 32: par ^= 1; f -= 32
    d = fr(f)
    if f < 8 or 16 <= f < 24:
        kb = (f >> 2) if f < 8 else 2 + ((f - 16) >> 2)
        return [dsread("ds_read_b128", d, v_ka[f & 3], kslot(par) + kb * 4096)]
    ks2 = 0 if f < 16 else 1
    db = f & 7
    return [dsread("ds_read_b64_tr_b16", d[(2 * h, 2)], v_va[db], vslot(par) + ks2 * 8192 + h * 4096) for h in range(2)]
def read_sched(g):
    r = []
    if g + 3 < 24 or g >= 29: r.append(g + 3)
    if 19 <= g <= 26: r.append(g + 5)
    return r
def sm_val(g, k):
    if 7 <= g <= 22: b = 1; n = 2 * (g - 7) + k
    else: b = 0; n = 2 * ((g - 23) % 32) + k
    kb, qb, r = n >> 4, (n >> 2) & 3, n & 3
    return b, qb, kb, r
def sm_items(g):
    ex, ad = [], []
    for k in range(2):
        b, qb, kb, r = sm_val(g, k)
        x = v_S[b][qb * 8 + kb * 4 + r]
        l = (v_l1 if b else v_l0)[qb]
        ex.append(valu("v_exp_f32", x, x)); ad.append(valu("v_add_f32", l, l, x))
    b, qb, kb, r = sm_val((g - 1) % 32, 0)
    cv = valu("v_cvt_pk_bf16_f32", v_S[b][qb * 8 + kb * 2 + (r >> 1)], v_S[b][qb * 8 + kb * 4 + r], v_S[b][qb * 8 + kb * 4 + r + 1])
    return ex, ad, cv
def att_dma(par, g):
    if g >= 29: k = g - 29; sp = par
    elif g <= 4: k = g + 3; sp = par ^ 1
    else: return [], None
    sal = []
    if k == 0: sal = [salu("s_add_u32", "m0", s_m0b, 4 * 16384 + kslot(sp))]
    if k == 4: sal = [salu("s_add_u32", "m0", s_m0b, vslot(sp))]
    if k < 4: return sal, dma(v_kd[k], S_K, s_kK, k * 1024)
    return sal, dma(v_vd[k & 1], S_V, s_kV, (k - 4) * 1024)
SIDE_FIRST = 11
class Lbl:
    def __init__(self, n): self.n = n
    def __call__(self): em.label(self.n); return []
class LoopStamp:
    def __init__(self, k, par): self.k, self.par = k, par
    def __call__(self):
        k = self.k
        e(raw("s_memtime %s" % S(68 + 2 * k, 2), "other", wr=[S(68 + 2 * k, 2)]))
        if k == 2:
            e(raw("s_waitcnt lgkmcnt(0)", "wait")); em._retire(em.lgq, 0)
            for i in range(3): e(valu("v_writelane_b32", v_c, S(68 + 2 * i), i, rmw=True))
            e(salu("s_lshl_b32", S(74), S(2), 2)); e(salu("s_add_u32", S(74), S(74), s_w)); e(salu("s_lshl_b32", S(74), S(74), 4))
            e(salu("s_sub_u32", S(74), S(74), s_cnt)); e(salu("s_add_u32", S(74), S(74), 16)); e(salu("s_lshl_b32", S(74), S(74), 5))
            e(salu("s_add_u32", S(74), S(74), (1 << 20) + 16 * self.par))
            e(raw("s_mov_b64 exec, 7", "salu", wr=["exec"]))
            e(valu("v_lshlrev_b32", v_t, 2, v_lane))
            e(bstore(v_c, v_t, S_DMP, S(74), off=0))
            e(raw("s_mov_b64 exec, -1", "salu", wr=["exec"]))
            e(valu("v_lshlrev_b32", v_t, 7, v_lane))
        return []
v_tch, v_flag, v_fa = V(3), V(0), V(38)
xtok = []; lastdma = [None]
NITER = 14
s_po0, s_po1, s_poe = s_h0, s_h1, s_off
s_pfc = S(16, 2); s_kvt = S(18, 2); KVIT = int(os.environ.get('KVIT', '12'))
ROT = int(os.environ.get('ROT', '8'))
LQ = int(os.environ.get("LQ", "2"))
def plan_adds():
    nmem = {}
    for g in range(32):
        n = sum(1 if (f % 32 < 8 or 16 <= f % 32 < 24) else 2 for f in read_sched(g)) + (1 if (g >= 29 or g <= 4) else 0) + (1 if g in (13, 14) else 0)
        nmem[g] = n
    free = {}
    for g in range(32):
        n = nmem[g]; a1 = 2 if n > 2 else min(n, 1); a3 = n - a1
        if a1 < 2: a1 += 1
        else: a3 += 1
        if g == 0: a1 += 1
        free[(g, 1)] = max(0, 2 - a1); free[(g, 3)] = max(0, 2 - a3)
        free[(g, 4)] = 2 if ((g & 8) and (g & 1) and ((g & 7) >> 1) < LQ) else 0
    jobs = []
    for g in range(7, 39):
        for k in range(2):
            b, qb, kb, r = sm_val(g % 32, k)
            if qb < LQ: continue
            early = 4 * g + (1 if k == 0 else 3)
            idx = kb * 4 + r
            if idx < 4:
                gsrc = g + 1 if idx == 0 else (g + 2 if idx == 1 else (g + 8 if idx == 2 else g + 9))
                dead = 4 * gsrc
            else: dead = 4 * (g + 11)
            if b == 1: dead = min(dead, 4 * 30)
            jobs.append((dead, early, b, qb, idx))
    plan = {}
    for dead, early, b, qb, idx in sorted(jobs):
        for t in range(early, dead):
            g, q = t >> 2, t & 3
            for gp in ([1] if q == 1 else ([3, 4] if q == 3 else [])):
                if free[(g % 32, gp)] > 0:
                    free[(g % 32, gp)] -= 1; plan.setdefault((g % 32, gp), []).append((b, qb, idx, g)); break
            else: continue
            break
        else:
            g = early >> 2; plan.setdefault((g % 32, early & 3), []).append((b, qb, idx, g)); print("; add overflow", g, file=sys.stderr)
    return plan
ADDS = plan_adds() if LSUM == 3 else {}
def add_items(g, gp, fin, pro):
    out = []
    for b, qb, idx, gabs in ADDS.get((g, gp), []):
        if fin and b == 0 and g >= 23: continue
        if pro and b == 1: continue
        out.append(valu("v_add_f32", v_l1[qb], v_l1[qb], v_S[b][qb * 8 + idx]))
    return out
ftok = {}
def att_group(par, g, do_mfma=True, do_mem=True, do_cvt=True, last=False, pp=None, xmem=(), xsal=(), xvalu=None):
    ex, ad, cv = sm_items(g)
    mem = []
    sal = []
    fin = (pp == 3)
    d = None
    if do_mem:
        if fin: sched = ([g + 3] if g + 3 < 16 else []) + ([g + 11] if 13 <= g <= 20 else [])
        else: sched = read_sched(g)
        for f in sched:
            r = frag_reads(par, f); mem += r; ftok[f % 32] = r
        if pp is None or (g <= 4 and pp <= 2) or (g >= 29 and pp <= 1):
            sal, d = att_dma(par, g)
            if d is not None: mem.append(d)
    loop = do_mem and pp is None
    post0 = []
    if loop and par == 0:
        if g == 14: mem.append(I("global_load_dword %s, %s, %s" % (v_c, v_tch, s_pfc), "vmem", rd=v_tch.regs() + s_pfc.regs(), wr=[]))
        if g == 13: mem.append(I("buffer_load_ubyte %s, %s, %s, %s offen sc1" % (v_flag, v_fa, S_DBG, s_t2), "vmem", rd=S_DBG.regs() + s_t2.regs() + v_fa.regs(), wr=[]))
        if g == 8: sal = sal + [scmp("s_cmp_le_u32", s_cnt, ROT)]
        if g in (9, 10, 11, 12):
            q_ = [s_pfc] + s_pf
            sal = sal + [salu("s_cselect_b64", q_[g - 9], q_[g - 8], q_[g - 9], scc_w=False, scc_r=True)]
        if g == 0: post0 = [valu("v_cmp_eq_u32", "vcc", 1, v_flag)]
        if g == 2: sal = sal + [raw("s_cmp_eq_u32 vcc_lo, -1", "salu", rd=["vcc"], wr=["scc"])]
        if g == 3: sal = sal + [salu("s_cselect_b32", s_t0, s_cnt, -1, scc_w=False, scc_r=True)]
        if g == 4: sal = sal + [scmp("s_cmp_eq_u32", s_t0, ROT - 1)]
        if g == 5: sal = sal + [salu("s_cselect_b64", s_pf[3], s_pfH, s_pf[3], scc_w=False, scc_r=True)]
        if g == 15: sal = sal + [salu("s_cselect_b64", s_pf[3], S_K[(0, 2)], s_pf[3], scc_w=False, scc_r=True)]
        if g == 20: sal = sal + [scmp("s_cmp_eq_u32", s_cnt, KVIT + 1)]
        if g == 21: sal = sal + [salu("s_cselect_b64", s_pfc, s_kvt, S_K[(0, 2)], scc_w=False, scc_r=True)]
        if g == 13: sal = sal + [salu("s_cselect_b32", s_t2, s_fo, 256, scc_w=False, scc_r=True)]
        if g == 18: sal = sal + [scmp("s_cmp_eq_u32", s_cnt, s_sig)]
        if g == 19: sal = sal + [raw("s_cbranch_scc1 L_sigH_side", rd=["scc"]), Lbl("L_sigH_ret")]
    if loop and POI and par == 0 and do_mfma:
        if g == 22: sal = sal + [salu("s_add_u32", s_po1, s_po0, 65536)]
        if g == 16: mem.append(bstore(a_poi, v_lin, S_SP, s_po0, mod="sc1"))
        if g == 27: mem.append(bstore(a_poi, v_lin, S_SP, s_po1, mod="sc1"))
        if g == 23: sal = sal + [salu("s_add_u32", s_po0, s_po0, 1024)]
        if g == 24: sal = sal + [salu("s_min_u32", s_po0, s_po0, s_poe)]
    if do_mem and g == 4 and d is not None: lastdma[0] = d
    mem += list(xmem); sal = sal + list(xsal)
    gaps = [[], [], [], []]
    if g == 29 and do_mem and not fin:
        if STAMP == 2 and loop and do_mfma: gaps[0] += [LoopStamp(0, par)]
        gaps[0] += [Wait(lg0=True) if not do_mfma else (Wait(lg0=True, vm0=True) if (pp is None and par == 1) else Wait(lg0=True, vm=lastdma[0]))]
        if STAMP == 2 and loop and do_mfma: gaps[0] += [LoopStamp(1, par)]
        gaps[0] += [raw("s_barrier")]
        if STAMP == 2 and loop and do_mfma: gaps[0] += [LoopStamp(2, par)]
    gaps[0] += sal
    if g == 6 and do_mem and (pp is None or pp <= 1): gaps[0].append(salu("s_add_u32", s_kK, s_kK, 16384))
    if g == 7 and do_mem and (pp is None or pp <= 1): gaps[0].append(salu("s_add_u32", s_kV, s_kV, 16384))
    sm = not (fin and g >= 23)
    if fin and g > 23: do_cvt = False
    if fin and 16 <= g < 24: do_mfma = False
    if LSUM:
        if sm: gaps[0].append(ex[0])
        gaps[1] += mem[0:2] if len(mem) > 2 else mem[0:1]
        gaps[1] += post0
        nf = (g + 1) % 32
        if do_mem and not (fin and (16 <= nf < 24 or nf == 0)): gaps[2].append(Wait(lg=ftok.get(nf)))
        if last and g == 30: gaps[2].append(salu("s_sub_u32", s_cnt, s_cnt, 1))
        if sm: gaps[2].append(ex[1])
        gaps[3] += mem[2:] if len(mem) > 2 else mem[1:]
        pro = not do_mfma and not fin
        gaps[1] += add_items(g, 1, fin, pro)
        if do_cvt: gaps[1 if len([x for x in gaps[1] if x not in ()]) - len(add_items(g, 1, fin, pro)) < 2 else 3].append(cv)
        gaps[3] += add_items(g, 3, fin, pro)
    else:
      gaps[0] += mem[2:3]
      if sm: gaps[0].append(ex[0])
      if len(mem) > 0: gaps[1].append(mem[0])
      if len(mem) == 0 and do_cvt: gaps[1].append(cv)
      if sm: gaps[1].append(ad[0])
      gaps[1] += post0
      nf = (g + 1) % 32
      if do_mem and not (fin and (16 <= nf < 24 or nf == 0)): gaps[2].append(Wait(lg=ftok.get(nf)))
      if last and g == 30: gaps[2].append(salu("s_sub_u32", s_cnt, s_cnt, 1))
      gaps[2] += mem[3:]
      if sm: gaps[2].append(ex[1])
      if len(mem) > 1: gaps[3].append(mem[1])
      if len(mem) > 0 and do_cvt: gaps[3].append(cv)
      if sm: gaps[3].append(ad[1])
    for qb in range(4):
        if do_mfma:
            if g < 8 or 16 <= g < 24:
                b = 1 if g < 8 else 0
                kb, ds = (g >> 2) & 1, g & 3
                d = v_S[b][(qb * 8 + kb * 4, 4)]
                e(mfma(d, fr(g), Qf(qb, ds), v_negm[(qb * 4, 4)] if ds == 0 else d))
            else:
                b = 0 if g < 16 else 1
                e(mfma(Of(g & 7, qb), fr(g), v_S[b][(qb * 8, 4)], Of(g & 7, qb)))
        else:
            if (qb & 1) and not gaps[qb][:1] or ((qb & 1) and getattr(gaps[qb][0], "kind", "") in ("valu",)): e(nop(0))
        for it in gaps[qb]: e(it)
        if xvalu is not None:
            c = 2 - sum(1 for it in gaps[qb] if getattr(it, "kind", "") in ("lds", "vmem", "dma", "valu"))
            while xvalu and c > 0:
                it = xvalu.pop(0); e(it); c -= 2 if it.kind == "trans" else 1
    if LSUM and do_mfma and (g & 8):
        k = g & 7
        lq = (k if k < 4 else None) if (fin and g >= 24) else (k >> 1 if k & 1 else None)
        if lq is not None and (LSUM != 3 or lq < LQ): e(mfma(a_L[(4 * lq, 4)], a_ones, v_S[0 if g < 16 else 1][(lq * 8, 4)], a_L[(4 * lq, 4)]))
    if LSUM == 3: e(add_items(g, 4, fin, not do_mfma and not fin))

pr = [dsread("ds_read_b128", fr(f), v_ka[f & 3], (f >> 2) * 4096) for f in range(8)]
for r in pr: e(r)
e(scmp("s_cmp_lg_u32", s_retry, 0)); e(raw("s_cbranch_scc1 L_have_max", rd=["scc"]))
for i in range(16): e(valu("v_mov_b32", v_negm[i], 0))
em.label("L_have_max")
zr = [valu("v_mov_b32", v_acc[i], 0) for i in range(2 * NZ0, 128)]
for f in range(8):
    em.wait(lg=pr[f])
    for qb in range(4):
        d = v_S[0][(qb * 8 + (f >> 2) * 4, 4)]
        e(mfma(d, fr(f), Qf(qb, f & 3), v_negm[(qb * 4, 4)] if (f & 3) == 0 else d))
        if qb == 0 and HST == 0: e(hst[f])
        if qb == 2 and f == 0:
            e(raw("s_mov_b64 exec, 3", "salu", wr=["exec"])); e(bstore(v_acc[0], V(3), S_FLZ, s_myfl, mod="sc1")); e(raw("s_mov_b64 exec, -1", "salu", wr=["exec"]))
        for _ in range(2):
            if zr: e(zr.pop(0))
assert not zr
e(salu("s_mov_b32", s_kK, 16384 + 8192, scc_w=False)); e(salu("s_mov_b32", s_kV, 16384, scc_w=False)); e(salu("s_mov_b32", s_cnt, NITER, scc_w=False))
e(scmp("s_cmp_lg_u32", s_retry, 0)); e(raw("s_cbranch_scc1 L_have_max2", rd=["scc"]))
e(nop(3))
mx = [V(97 + 4 * i) for i in range(4)]; mt = [V(98 + 4 * i) for i in range(4)]
for qb in range(4): e(valu("v_max3_f32", mx[qb], v_S[0][qb * 8], v_S[0][qb * 8 + 1], v_S[0][qb * 8 + 2]))
for qb in range(4): e(valu("v_max3_f32", mx[qb], mx[qb], v_S[0][qb * 8 + 3], v_S[0][qb * 8 + 4]))
for qb in range(4): e(valu("v_max3_f32", mx[qb], mx[qb], v_S[0][qb * 8 + 5], v_S[0][qb * 8 + 6]))
for qb in range(4): e(valu("v_max_f32", mx[qb], mx[qb], v_S[0][qb * 8 + 7]))
red4("v_max_f32", mx, mt)
for qb in range(4):
    for k in range(4): e(valu("v_sub_f32", v_negm[qb * 4 + k], 0, mx[qb]))
for qb in range(4):
    for k in range(8): e(valu("v_sub_f32", v_S[0][qb * 8 + k], v_S[0][qb * 8 + k], mx[qb]))
em.label("L_have_max2")
e(nop(7))
for g in range(23, 29): att_group(1, g, do_mfma=False, do_mem=False, do_cvt=(g != 23))
stamp(); diag()
e(salu("s_and_b32", s_t0, s_qb, 3)); e(salu("s_sub_u32", s_t0, NITER - 1, s_t0))
e(scmp("s_cmp_eq_u32", s_w, 0)); e(salu("s_cselect_b32", s_sig, s_t0, -1, scc_w=False, scc_r=True))
e(scmp("s_cmp_eq_u32", s_retry, 0)); e(salu("s_cselect_b32", s_sig, s_sig, -1, scc_w=False, scc_r=True))
e(salu("s_mov_b64", s_pfc, S_K[(0, 2)], scc_w=False))
if POI:
    e(salu("s_lshl_b32", s_po0, s_w, 4)); e(salu("s_add_u32", s_po0, s_po0, s_g)); e(salu("s_lshl_b32", s_po0, s_po0, 13))
    e(salu("s_add_u32", s_poe, s_po0, 7168))
e(scmp("s_cmp_lt_u32", s_w, 2)); e(salu("s_cselect_b64", s_kvt, S_K[(0, 2)], S_V[(0, 2)], scc_w=False, scc_r=True))
e(salu("s_and_b32", s_t0, s_w, 1)); e(sx(s_t1)); e(salu("s_lshl_b32", s_t1, s_t1, 1)); e(salu("s_add_u32", s_t0, s_t0, s_t1)); e(salu("s_lshl_b32", s_t0, s_t0, 13))
if MAP2: e(salu("s_add_u32", s_t0, s_t0, 262144))
e(salu("s_add_u32", s_kvt[0], s_kvt[0], s_t0)); e(salu("s_addc_u32", s_kvt[1], s_kvt[1], 0, scc_r=True))
for g in range(29, 32): att_group(1, g, do_mfma=False, do_mem=True)
pro_end = len(em.out)
em.directive(".p2align 6")
em.label("L_att_loop")
def body():
    for par in range(2):
        for g in range(32): att_group(par, g, last=(par == 1))
b0 = len(em.out)
body()
b1 = len(em.out)
e(scmp("s_cmp_lg_u32", s_cnt, 0)); e(raw("s_cbranch_scc1 L_att_loop", rd=["scc"]))
b2 = len(em.out)
body()
second = em.out[b2:]; del em.out[b2:]
assert [i.text for i in second] == [i.text for i in em.out[b0:b1]], "loop not in steady state"
loop_probs = check_hazards(em.out[b1 - 40:b2] + second[:60], "loop-wrap")

em.label("L_tail")
v_ring2 = V(64, 32); v_B2 = V(96, 32)
XY = int(os.environ.get('XY', '0'))
NF1 = int(os.environ.get('NF1', '8'))
def hreg(kk, qb):
    if kk >= 8: kk -= 8
    return A((64 + 16 * kk if kk < 4 else 160 + 16 * (kk - 4)) + qb * 4, 4)
def Facc(u, qb):
    t = u * 4 + qb
    return A(128 + 4 * t if t < 8 else 224 + 4 * (t - 8), 4)
POS2 = [5, 0, 2, 3, 4, 1]
NB = int(os.environ.get("NB", "4"))
def pos2(m): return 6 + m if m < NB else POS2[(m - NB) % 6]
def kind2(m):
    if m < NF1: return ("F", m)
    if m < NF1 + 32: return ("O", (m - NF1) & 15, (m - NF1) >> 4) if XY else ("O", (m - NF1) >> 1, (m - NF1) & 1)
    return ("F", m - 32)
def s2_dma(m):
    if m >= 46: return None
    p = pos2(m); k = kind2(m)
    if k[0] == "O":
        return [m0set(p), salu("s_mov_b32", s_off, k[1] * 32 * 1024 + 128 * k[2], scc_w=False)], [dma(v_dA[j], S_WO, s_off, j * 1024) for j in range(4)]
    return [m0set(p), salu("s_mov_b32", s_off, k[1] * 32 * 1024, scc_w=False)], [dma(v_dB[j], S_WD, s_off, j * 1024) for j in range(4)]
dtok2 = {}; s2pre = {}
for m in range(6 + NB):
    s2pre[m] = s2_dma(m); dtok2[m] = s2pre[m][1][3]
class Seq:
    kind = "vmem"
    def __init__(self, l): self.l = l
    def __call__(self): return self.l
hld = {}; htok = {}
for kk in range(14):
    hld[kk] = [bload(hreg(kk, qb), v_lin, S_HC, s_hl, off=qb * 1024, mod="sc1") for qb in range(4)]
    htok[kk] = hld[kk][3]
e(salu("s_mov_b32", s_cnt, 0, scc_w=False))
em.label("L_pollH")
e(valu("v_cmp_ne_u32", "vcc", 1, v_flag)); e(salu("s_mul_i32", s_hb, s_w, 14 * 4096, scc_w=False)); e(nop(1))
e(raw("s_cbranch_vccz L_pollH_done", rd=["vcc"]))
e(salu("s_add_u32", s_cnt, s_cnt, 1)); e(scmp("s_cmp_ge_u32", s_cnt, 50000)); e(raw("s_cbranch_scc1 L_pollH_done", rd=["scc"]))
e(raw("s_sleep 4")); e(raw("buffer_load_ubyte %s, %s, %s, %s offen sc1" % (v_flag, v_fa, S_DBG, s_fo))); e(raw("s_waitcnt vmcnt(0)")); e(raw("s_branch L_pollH"))
em.label("L_pollH_done")
xaddr(V(39), V(0))
assert LSUM == 1
xsl = [bload(V(40 + 2 * u, 2), V(39), S_XC, 0, off=32 * u, n=2) for u in range(4)]
NH0 = 32
hsl = sorted([(pp, g) for pp in range(3) for g in (5, 13, 14, 15, 16, 17, 18, 27, 28, 9, 11)])[:NH0]
px = {}
for k, key in enumerate(hsl):
    px.setdefault(key, ([], []))
    px[key][0].append(hld[k >> 2][k & 3])
    if k & 3 == 0: px[key][1].append(salu("s_add_u32", s_hl, s_hb, (k >> 2) * 4096))
for u in range(4): px.setdefault((int(os.environ.get('XSP', '3')), int(os.environ.get('XSG0', '13')) + u), ([], []))[0].append(xsl[u])
wsl = [(pp, g) for pp in range(2) for g in (6, 7, 8, 10, 12, 21, 22, 23)][:4 * NB] + [(2, 29), (2, 30), (2, 31), (3, 0), (3, 1), (3, 2), (3, 3), (3, 4)] + [(3, g) for g in range(5, 13)] + [(3, g) for g in range(24, 32)]
for k, key in enumerate(wsl):
    px.setdefault(key, ([], []))
    m, j = k >> 2, k & 3
    px[key][0].append(s2pre[m][1][j])
    if j == 0: px[key][1].extend(s2pre[m][0])
px[(3, 24)][1][:0] = [Wait(lg0=True), raw("s_barrier")]
lt = [V(48 + i) for i in range(4)]
rinv = [V(52 + i) for i in range(4)]
vxf = V(40, 8)
save = em.out; em.out = []
for qb in range(4): e(valu("v_accvgpr_read_b32", lt[qb], a_L[4 * qb]))
e(valu("v_add_f32", V(60), lt[0], lt[1])); e(valu("v_add_f32", V(61), lt[2], lt[3])); e(valu("v_add_f32", V(60), V(60), V(61)))
for qb in range(4): e(valu("v_rcp_f32", rinv[qb], lt[qb]))
e(valu("v_cmp_nge_f32", "vcc", hx(f2u(2.0 ** 30)), V(60)))
v_tr2 = V(56, 4); v_ow = V(62)
for u in range(4): e(valu("v_subrev_u32", v_tr2[u], RING, v_tr[0][u]))
e(valu("v_subrev_u32", v_ow, RING, v_lin)); e(valu("v_add_u32", v_ow, s_m0b, v_ow))
lred = em.out; em.out = save
for pp in range(4):
    for g in range(32):
        if STAMP == 4 and g in (0, 16): stamp()
        xm, xs = px.get((pp, g), ([], []))
        att_group(pp & 1, g, pp=pp, xmem=xm, xsal=xs, xvalu=(lred if (pp == 3 and g >= (30 if LSUM else 24)) else None))
for it in lred: e(it)
diag(); stamp()
if DUMP == "o":
    e(nop(7))
    for db in range(8):
        for qb in range(4):
            for k in range(4): e(valu("v_mul_f32", Of(db, qb)[k], Of(db, qb)[k], rinv[qb]))
    dump_regs([v_acc[i] for i in range(128)])

vm_ = V(60); vma = V(61)
class Mark:
    kind = "salu"
    def __init__(self, t): self.t = t
    def __call__(self):
        e(raw("s_cbranch_vccz L_nomark", rd=["vcc"])); e(valu("v_mov_b32", self.t, hx(MARK))); em.label("L_nomark"); return []
norm = [valu("v_and_b32", vma, 3, v_lane), valu("v_lshlrev_b32", vma, 12, vma)]
ow = []; ncv = []
for i in range(4):
    for qb in range(4):
        t = Of(2 * i, qb)
        for b in range(2):
            for k in range(4): norm.append(valu("v_mul_f32", Of(2 * i + b, qb)[k], Of(2 * i + b, qb)[k], rinv[qb]))
        for b in range(2):
            o = Of(2 * i + b, qb)
            for k in range(2): norm.append(valu("v_cvt_pk_bf16_f32", t[2 * b + k], o[2 * k], o[2 * k + 1]))
        ncv.append(norm[-1])
        if i == 0 and qb == 0: norm.append(Mark(t[0]))
        ow.append(dswrite("ds_write_b128", v_ow, t, i * 16384 + qb * 1024))
        if NB == 0: norm.append(ow[-1])
class ChkNorm:
    def __init__(self, k): self.k = k
    def __call__(self):
        assert ncv[self.k].tok, "O write %d scheduled before its data" % self.k
        return ow[self.k]
G0 = 4 * NF1
G1 = G0 + 128
mk = dsread("ds_read_b32", vm_, vma, 0)
class OBar:
    def __call__(self):
        assert all(w.tok for w in ow)
        em.wait(lg0=True); e(raw("s_barrier")); stamp(); e(mk); return []
class FbCheck:
    def __call__(self):
        em.wait(lg=mk)
        e(valu("v_cmp_eq_u32", "vcc", hx(MARK), vm_))
        e(scmp("s_cmp_lg_u32", s_retry, 0)); e(raw("s_cbranch_scc1 L_nofb", rd=["scc"]))
        e(nop(1))
        e(raw("s_cbranch_vccnz L_fallback", rd=["vcc"]))
        em.label("L_nofb")
        return []
def s2_acc(m, u, qb):
    k = kind2(m)
    if k[0] == "O": return v_acc[(((k[2] * 4 + u) * 4 + qb) * 4, 4)], k[1] == 0
    return Facc(u, qb), k[1] == 0
def s2_B(m, qb):
    k = kind2(m)
    if k[0] == "O": return v_B2[((k[1] & 1) * 16 + qb * 4, 4)]
    return hreg(k[1], qb)
def oread(s, qb): return dsread("ds_read_b128", v_B2[((s & 1) * 16 + qb * 4, 4)], v_lin, (s & 3) * 16384 + (s >> 2) * 4096 + qb * 1024)
extra = {}
if NB:
    OW0 = int(os.environ.get("OW0", "11")); OWN = int(os.environ.get("OWN", "1"))
    for k in range(16):
        gg = OW0 + k // OWN
        assert (k >> 2) >= NB or gg > 4 * (k >> 2) + 3
        extra.setdefault(gg, []).append((2 + (k % OWN) % 2, ChkNorm(k), 1))
GB = G0 - int(os.environ.get("OBAR", "3"))
extra.setdefault(GB, []).append((0, OBar(), 0))
r0 = [oread(0, qb) for qb in range(4)]
for qb in range(4): extra.setdefault(GB + (qb >> 1), []).append((1 + (qb & 1) if qb < 2 else (qb & 1) * 2, r0[qb], 1))
extra.setdefault(G0 - 1, []).append((2, [Wait(lg=r0), FbCheck()], 0))
if XY:
    for mm in range(1, 32):
        rr = [oread(mm & 15, qb) for qb in range(4)]
        for qb in range(4): extra.setdefault(G0 + 4 * (mm - 1) + (qb >> 1), []).append((2 + (qb & 1), rr[qb], 1))
        extra.setdefault(G0 + 4 * mm - 1, []).append((2, Wait(lg=rr), 0))
else:
    for s_ in range(1, 16):
        for qb in range(4): extra.setdefault(G0 + 8 * (s_ - 1) + 1 + qb, []).append((2, oread(s_, qb), 1))
class LateWait:
    def __init__(self, f): self.f = f
    def __call__(self): return Wait(vm=self.f())
vxa = V(48); vpoll = V(49); vfw = V(50)
vx, vy, vz = V(63), V(57), V(58)
save = em.out; em.out = []
xaddr(vxa, vx)
e(valu("v_and_b32", V(51), 7, v_lane)); e(valu("v_lshlrev_b32", V(51), 2, V(51)))
e(valu("v_add_u32", vfw, s_m0b, v_lin)); e(salu("s_lshl_b32", s_t0, s_w, 14)); e(salu("s_add_u32", s_t0, s_t0, RING)); e(valu("v_add_u32", V(55), s_t0, v_lin))
e(salu("s_lshl_b32", s_t3, s_w, 4)); e(salu("s_add_u32", s_t3, s_t3, s_g)); e(salu("s_lshl_b32", s_t3, s_t3, 13))
early = em.out; em.out = save
extra.setdefault(-1, []).append((0, LateWait(lambda: htok[0]), 0))
for kk in range(1, 14):
    g_ = 4 * kk if kk < NF1 else 4 * (kk + 32)
    extra.setdefault(g_ - 1, []).append((2, LateWait(lambda kk=kk: htok[kk]), 0))
HG0 = int(os.environ.get("HG0", "5")); HGS = int(os.environ.get("HGS", "1"))
for k in range(NH0, 56):
    prev = (k >> 2) - 8
    gfree = (4 * prev if prev < NF1 else 4 * (prev + 32)) + 5 + (k & 3)
    extra.setdefault(max(gfree, HG0 + HGS * (k - NH0)), []).append((2, Seq([salu("s_add_u32", s_hl, s_hb, (k >> 2) * 4096), hld[k >> 2][k & 3]]), 1))
def sreg(ip, qb, odd=0): return v_acc[(((2 * ip + odd) * 4 + qb) * 4, 4)]
SPV_ = int(os.environ.get('SPV', '1'))
sp = []; spst = []; stq = []
s_oob = S(19)
if os.environ.get("NOST") or os.environ.get("NOLD"): e(salu("s_mov_b32", s_oob, 524288, scc_w=False))
NSI = int(os.environ.get("NSI", "11"))
s_so = [s_t1, s_cnt, s_h0, s_h1]
for k in range(4): sp.append(salu("s_add_u32", s_so[k], s_t3, (k >> 1) * 65536 + (k & 1) * 4096))
for ip in range(4):
    for qb in range(4):
        t = sreg(ip, qb)
        for b in range(2):
            o = sreg(ip, qb, b)
            for k in range(2): sp.append(valu("v_cvt_pk_bf16_f32", t[2 * b + k], o[2 * k], o[2 * k + 1]))
        st = bstore(t, v_lin, S_SP, s_so[(ip >> 1) * 2 + (qb >> 1)], off=(qb & 1) * 2048 + (ip & 1) * 1024, mod="sc1")
        if os.environ.get("NOST") and not (ip == 3 and qb == 3): st = bstore(t, v_lin, S_SP, s_oob, off=0)
        spst.append((st, sp[-1]))
class St:
    def __init__(self, k): self.k = k
    def __call__(self):
        assert spst[self.k][1].tok
        return spst[self.k][0]
STG = int(os.environ.get("STG", "2"))
if XY:
    GY = G0 + 64
    XS0 = int(os.environ.get("XS0", "4")); XSG = int(os.environ.get("XSG", "5")); XFL = int(os.environ.get("XFL", "60"))
    for k in range(8): extra.setdefault(GY + XS0 + XSG * k, []).append((1, St(k), 1))
    class XFlag:
        def __call__(self): em.wait(vm=spst[7][0]); return flag_store(0)
    extra.setdefault(GY + XFL, []).append((1, XFlag(), 1))
    NSI = int(os.environ.get("NSI", "16"))
    for k in range(8, NSI): extra.setdefault(G1 + 3 + STG * (k - 8), []).append((2, St(k), 1))
    hx_ = sp.index(spst[7][1]) + 1
    spf = [Fill(sp[:hx_], GY + 2, GY + 14), Fill(sp[hx_:], G1 + 2, G1 + 10)]
else:
    for k in range(NSI): extra.setdefault(G1 + 3 + STG * k, []).append((2, St(k), 1))
    spf = [Fill(sp, G1 + 2, G1 + int(os.environ.get("CVL", "16")))]
if POI:
    assert not XY and SPV_
    hint = [valu("v_mov_b32", V(57), 2), valu("v_lshlrev_b32", V(58), 7, v_lane), raw("s_mov_b64 exec, 3", "salu", wr=["exec"]),
            bstore(V(57), V(58), S_FL, s_myfl, mod="sc1"), raw("s_mov_b64 exec, -1", "salu", wr=["exec"])]
    extra.setdefault(G1 + int(os.environ.get("HINT", "4")), []).append((1, hint, 1))
FLG = int(os.environ.get("FLG", "0"))
if FLG:
    assert NSI == 16
    class YFlag:
        def __call__(self):
            em.wait(vm=spst[-1][0]); stamp()
            e(([] if XY else flag_store(0)) + flag_store(1))
            if MIDPOST == 5: static_loads()
            return []
    extra.setdefault(G1 + FLG, []).append((1, YFlag(), 1))
sti = [NSI]
def st_next(n=1):
    for _ in range(n):
        if sti[0] < 16: e(spst[sti[0]][0]); sti[0] += 1
def flag_store(h):
    return [valu("v_mov_b32", v_t, 1), raw("s_mov_b64 exec, 1", "salu", wr=["exec"]), bstore(v_t, None, S_FL, s_myfl, off=128 * h, mod="sc1"), raw("s_mov_b64 exec, -1", "salu", wr=["exec"])]
vpa = V(51)
s_done, s_new, s_sb = s_kK, s_kV, s_fo
SPV = int(os.environ.get("SPV", "1"))
def spl(gp, i): return sreg(gp >> 1, (gp & 1) * 2 + i, 0) if SPV else A((gp * 2 + i) * 4, 4)
def flag_load(): return bload(vpoll, vpa, S_FL, s_t2, n=1, mod="sc1")
lblc = [0]
def issue_new():
    k = lblc[0]; lblc[0] += 1
    e(valu("v_cmp_eq_u32", "vcc", 1, vpoll)); e(nop(1))
    e(raw("s_andn2_b32 %s, vcc_lo, %s" % (s_new, s_done), "salu", rd=["vcc", s_done], wr=[s_new, "scc"])); e(salu("s_and_b32", s_new, s_new, 255))
    e(raw("s_cbranch_scc0 L_in%d_end" % k, rd=["scc"]))
    e(salu("s_or_b32", s_done, s_done, s_new))
    for gp in range(8):
        e(scmp("s_bitcmp1_b32", s_new, gp)); e(raw("s_cbranch_scc0 L_in%d_%d" % (k, gp), rd=["scc"]))
        e(salu("s_add_u32", s_t0, s_sb, gp * 8192) if not os.environ.get("NOLD") else salu("s_mov_b32", s_t0, s_oob, scc_w=False))
        for i in range(2): e(raw(bload(spl(gp, i), v_lin, S_SPC, s_t0, off=i * 1024, mod="sc1").text))
        em.label("L_in%d_%d" % (k, gp))
    em.label("L_in%d_end" % k)
def static_loads():
    e(valu("v_cmp_eq_u32", "vcc", 1, vpoll)); e(nop(1))
    e(raw("s_and_b32 %s, vcc_lo, 255" % s_done, "salu", rd=["vcc"], wr=[s_done, "scc"]))
    for gp in range(8):
        e(salu("s_add_u32", s_t0, s_sb, gp * 8192)); e(scmp("s_bitcmp1_b32", s_done, gp)); e(salu("s_cselect_b32", s_t0, s_t0 if not os.environ.get("NOLD") else s_oob, 524288, scc_w=False, scc_r=True))
        for i in range(2): e(bload(spl(gp, i), v_lin, S_SPC, s_t0, off=i * 1024, mod="sc1"))
pinit = [salu("s_lshl_b32", s_t2, s_cq, 3), salu("s_add_u32", s_t2, s_t2, s_cg), salu("s_lshl_b32", s_t2, s_t2, 7), salu("s_mov_b32", s_done, 0, scc_w=False),
         salu("s_lshl_b32", s_sb, s_cg, 16), salu("s_lshl_b32", s_new, s_w, 11), salu("s_add_u32", s_sb, s_sb, s_new)]
extra.setdefault(G1 - 8, []).append((1, pinit, 0))
class MidPoll:
    def __init__(self, tok): self.tok = tok
    def __call__(self):
        em.wait(vm=self.tok); issue_new()
        e(salu("s_mov_b32", s_hb, s_done, scc_w=False))
        midmark.append(em.vm_total)
        return []
midmark = []
if int(os.environ.get("MID", "1")):
    pt = flag_load()
    MIDPOST = int(os.environ.get("MIDPOST", "2"))
    if MIDPOST == 4: extra.setdefault(184 - int(os.environ.get("MID4", "6")), []).append((2, pt, 1))
    else: extra.setdefault(G1 - int(os.environ.get("MID0", "-4")), []).append((2, pt, 1))
    if not MIDPOST: extra.setdefault(G1 + int(os.environ.get("MID1", "3")), []).append((0, MidPoll(pt), 0))
    elif MIDPOST != 4 and int(os.environ.get("MID0", "-4")) > 0: extra.setdefault(G1 + 2, []).append((0, Wait(vm=pt), 0))
    if MIDPOST == 3:
        extra[G1 + 2].pop(); extra[G1 - int(os.environ.get("MID0", "-4"))].pop()
if STAMP: extra.setdefault(G1, []).append((0, Stamp(), 0))
if STAMP == 5:
    for g_ in (0, 8, 16, 24): extra.setdefault(g_, []).append((0, Stamp(), 0))
class Diag:
    def __call__(self): diag(); return []
if DIAG: extra.setdefault(G1, []).append((0, Diag(), 0))
vs = [Fill(norm, 0, GB - (3 if NB else 1)), Fill(early, G0 + 2, G0 + 40)] + spf
run_stream(46, s2_dma, dtok2, s2_acc, s2_B, extra, vs, posf=pos2, ring=v_ring2, first_dma=6 + NB, tr2=v_tr2, early_dma=int(os.environ.get('ED2', '0')), w2=lambda g: int(os.environ.get('W2B', '1')) and g < 28)
stamp(); diag()
if MIDPOST == 4:
    em.wait(vm=pt); static_loads()
if MIDPOST == 3:
    st_next(16); fl3 = e(flag_load())
e(nop(5))
for qb in range(4):
    for u in range(4):
        if len(em.lgq) >= 12: em.wait(lg=em.lgq[-12])
        e(dswrite("ds_write_b128", vfw, Facc(u, qb), qb * 16384 + u * 1024))
    if qb & 1: st_next(int(os.environ.get("STW", "1")))
if MIDPOST == 6:
    st_next(16); em.wait(vm=spst[-1][0]); stamp(); e(flag_store(0) + flag_store(1)); static_loads()
v_fr = V(96, 16); vE = V(64, 16); vs_ = V(80, 16)
for k in range(8): e(valu("v_mov_b64", vs_[(2 * k, 2)], 0))
if MIDPOST == 3:
    em.wait(vm=fl3); stamp()
    if not XY: e(flag_store(0))
    e(flag_store(1))
    static_loads()
em.wait(lg0=True)
e(raw("s_barrier"))
def frr(ws_, u): return sreg(ws_, u, 1)
for ws_ in range(4):
    for u in range(4):
        if len(em.lgq) >= 14: em.wait(lg=em.lgq[-14])
        e(dsread("ds_read_b128", frr(ws_, u), V(55), ws_ * 4096 + u * 1024))
st_next()
if MIDPOST:
    st_next(16)
    if MIDPOST == 1: static_loads()
em.wait(lg0=True)
for u in range(4):
    for k in range(2):
        e(valu("v_pk_add_f32", frr(0, u)[(2 * k, 2)], frr(0, u)[(2 * k, 2)], frr(1, u)[(2 * k, 2)]))
        e(valu("v_pk_add_f32", frr(2, u)[(2 * k, 2)], frr(2, u)[(2 * k, 2)], frr(3, u)[(2 * k, 2)]))
for u in range(4):
    for k in range(2): e(valu("v_pk_add_f32", v_fr[(4 * u + 2 * k, 2)], frr(0, u)[(2 * k, 2)], frr(2, u)[(2 * k, 2)]))
for k in range(16): e(valu("v_mul_f32", vE[k], hx(f2u(-math.log2(math.e))), v_fr[k]))
st_next()
for k in range(16): e(valu("v_exp_f32", vE[k], vE[k]))
for k in range(16): e(valu("v_add_f32", vE[k], "1.0", vE[k]))
st_next()
for k in range(16): e(valu("v_rcp_f32", vE[k], vE[k]))
for k in range(16): e(valu("v_mul_f32", v_fr[k], v_fr[k], vE[k]))
for k in range(8):
    e(valu("v_lshlrev_b32", vE[2 * k], 16, vxf[k])); e(valu("v_and_b32", vE[2 * k + 1], "0xffff0000", vxf[k]))
st_next()
stamp()
accn = [0]
def acc_pieces(mask, sprinkle=False):
    n = accn[0]; accn[0] += 1
    for gp in range(8):
        e(scmp("s_bitcmp1_b32", mask, gp)); e(raw("s_cbranch_scc0 L_acc%d_%d" % (n, gp), rd=["scc"]))
        if not SPV:
            for k2 in range(8): e(valu("v_accvgpr_read_b32", V(120 + k2), spl(gp, k2 >> 2)[k2 & 3]))
        for k in range(8):
            src = spl(gp, k >> 2)[k & 3] if SPV else V(120 + k)
            e(valu("v_lshlrev_b32", V(112 + 2 * (k & 3)), 16, src)); e(valu("v_and_b32", V(113 + 2 * (k & 3)), "0xffff0000", src))
            e(valu("v_pk_add_f32", vs_[(2 * k, 2)], vs_[(2 * k, 2)], V(112 + 2 * (k & 3), 2)))
        em.label("L_acc%d_%d" % (n, gp))
        if sprinkle and gp & 1: st_next()
if midmark:
    n_y = em.vm_total - midmark[0]
    e(raw("s_waitcnt vmcnt(%d)" % n_y, "wait")); em._retire(em.vmq, n_y)
    acc_pieces(s_hb, sprinkle=True)
st_next(16)
if POI:
    s_want = s_new
    e(salu("s_mov_b32", s_cnt, 0, scc_w=False)); e(salu("s_mov_b32", s_t1, hx(POISON), scc_w=False))
    if MIDPOST == 2: em.wait(vm=pt)
    stamp()
    em.label("L_fin_loop")
    e(valu("v_cmp_eq_u32", "vcc", 2, vpoll)); e(nop(1))
    e(raw("s_andn2_b32 %s, vcc_lo, %s" % (s_want, s_done), "salu", rd=["vcc", s_done], wr=[s_want, "scc"])); e(salu("s_and_b32", s_want, s_want, 255))
    for gp in range(8):
        e(scmp("s_bitcmp1_b32", s_want, gp)); e(raw("s_cbranch_scc0 L_pl_%d" % gp, rd=["scc"]))
        e(salu("s_add_u32", s_t0, s_sb, gp * 8192))
        for i in range(2): e(raw(bload(spl(gp, i), v_lin, S_SPC, s_t0, off=i * 1024, mod="sc1").text))
        em.label("L_pl_%d" % gp)
    e(raw(flag_load().text))
    e(raw("s_waitcnt vmcnt(0)", "wait")); em._retire(em.vmq, 0)
    for gp in range(8):
        e(scmp("s_bitcmp1_b32", s_want, gp)); e(raw("s_cbranch_scc0 L_pa_%d" % gp, rd=["scc"]))
        for k in range(8): e(valu("v_cmpx_ne_u32", "vcc", s_t1, spl(gp, k >> 2)[k & 3], extra_wr=["exec"]))
        e(nop(1))
        e(raw("s_cmp_eq_u64 exec, -1", "salu", rd=["exec"], wr=["scc"])); e(raw("s_mov_b64 exec, -1", "salu", wr=["exec"]))
        e(raw("s_cbranch_scc0 L_pa_%d" % gp, rd=["scc"]))
        e(salu("s_bitset1_b32", s_done, gp, scc_w=False))
        for k in range(8):
            src = spl(gp, k >> 2)[k & 3]
            e(valu("v_lshlrev_b32", V(112 + 2 * (k & 3)), 16, src)); e(valu("v_and_b32", V(113 + 2 * (k & 3)), "0xffff0000", src))
            e(valu("v_pk_add_f32", vs_[(2 * k, 2)], vs_[(2 * k, 2)], V(112 + 2 * (k & 3), 2)))
        em.label("L_pa_%d" % gp)
    e(salu("s_add_u32", s_cnt, s_cnt, 1)); e(scmp("s_cmp_ge_u32", s_cnt, 50000)); e(raw("s_cbranch_scc1 L_fin_done", rd=["scc"]))
    e(scmp("s_cmp_lg_u32", s_done, 255)); e(raw("s_cbranch_scc1 L_fin_loop", rd=["scc"]))
else:
    if MIDPOST != 2: e(flag_load())
    if MIDPOST not in (3, 6) and not FLG:
        em.wait(vm=spst[-1][0]); stamp()
        if not XY: e(flag_store(0))
        e(flag_store(1))
    if MIDPOST == 2:
        static_loads()
        if int(os.environ.get("FSL", "0")): e(raw("s_sleep %d" % int(os.environ.get("FSL"))))
        e(flag_load())
    s_prev = s_hl
    e(salu("s_mov_b32", s_prev, s_done if MIDPOST else 0, scc_w=False)); e(salu("s_mov_b32", s_cnt, 0, scc_w=False))
    em.label("L_fin_loop")
    em.wait(vm0=True)
    issue_new()
    e(raw(flag_load().text))
    acc_pieces(s_prev)
    e(salu("s_mov_b32", s_prev, s_new, scc_w=False))
    e(salu("s_add_u32", s_cnt, s_cnt, 1)); e(scmp("s_cmp_ge_u32", s_cnt, 50000)); e(raw("s_cbranch_scc1 L_fin_done", rd=["scc"]))
    e(scmp("s_cmp_lg_u32", s_prev, 0)); e(raw("s_cbranch_scc1 L_fin_loop", rd=["scc"]))
    e(scmp("s_cmp_lg_u32", s_done, 255)); e(raw("s_cbranch_scc1 L_fin_loop", rd=["scc"]))
em.label("L_fin_done")
if DUMP == "fin": dump_regs([vs_[i] for i in range(16)] + [v_fr[i] for i in range(16)])
for k in range(8): e(valu("v_pk_fma_f32", vE[(2 * k, 2)], vs_[(2 * k, 2)], v_fr[(2 * k, 2)], vE[(2 * k, 2)]))
for k in range(8): e(valu("v_cvt_pk_bf16_f32", vxf[k], vE[2 * k], vE[2 * k + 1]))
for u in range(4): e(bstore(vxf[(2 * u, 2)], vxa, S_OUT, 0, off=32 * u, mod=os.environ.get("OUTM", "")))
stamp(); diag_out()
em.label("L_end")
e(raw("s_endpgm"))
main_end = len(em.out)

em.lgq, em.vmq, em.pend = [], [], {}
em.label("L_sigH_side")
e(salu("s_lshl_b32", s_t1, s_qb, 3)); e(salu("s_add_u32", s_t1, s_t1, s_g))
e(raw("s_mov_b64 exec, 2", "salu", wr=["exec"]))
e(raw("buffer_store_byte %s, off, %s, %s sc1" % (v_fa, S_DBG, s_t1)))
e(raw("s_mov_b64 exec, -1", "salu", wr=["exec"]))
e(raw("s_branch L_sigH_ret"))
em.label("L_fallback")
e(raw("s_waitcnt vmcnt(0) lgkmcnt(0)")); em._retire(em.vmq, 0); em._retire(em.lgq, 0)
e(salu("s_mov_b32", s_retry, 1, scc_w=False))
e(salu("s_mov_b32", S_H[2], 0, scc_w=False))
e(salu("s_mov_b32", s_kK, 0, scc_w=False))
fm = [V(40 + i) for i in range(4)]
for i in range(4): e(valu("v_mov_b32", fm[i], "0xff800000"))
em.label("L_fb_loop")
e(raw("s_barrier"))
e(salu("s_add_u32", "m0", s_m0b, 4 * 16384)); e(nop(0))
for j in range(4): e(dma(v_kd[j], S_K, s_kK, j * 1024))
em.wait(vm0=True)
e(raw("s_barrier"))
for kb in range(4):
    rr = [e(dsread("ds_read_b128", fr(ds), v_ka[ds], kb * 4096)) for ds in range(4)]
    em.wait(lg0=True)
    for ds in range(4):
        for qb in range(4):
            d = v_S[0][(qb * 4, 4)]
            e(mfma(d, fr(ds), Qf(qb, ds), 0 if ds == 0 else d))
    e(nop(7))
    for qb in range(4):
        e(valu("v_max3_f32", fm[qb], fm[qb], v_S[0][qb * 4], v_S[0][qb * 4 + 1])); e(valu("v_max3_f32", fm[qb], fm[qb], v_S[0][qb * 4 + 2], v_S[0][qb * 4 + 3]))
    e(nop(2))
e(salu("s_add_u32", s_kK, s_kK, 16384)); e(scmp("s_cmp_lt_u32", s_kK, 524288)); e(raw("s_cbranch_scc1 L_fb_loop", rd=["scc"]))
red4("v_max_f32", fm, [V(44 + i) for i in range(4)])
for qb in range(4):
    for k in range(4): e(valu("v_sub_f32", v_negm[qb * 4 + k], 0, fm[qb]))
e(raw("s_barrier"))
for m in (64, 65, 66):
    sa, dm = s1_dma(m); e(sa)
    for d in dm: e(d)
e(raw("s_waitcnt vmcnt(0)"))
e(raw("s_branch L_att_start"))
em.label("L_code_end")
e(raw("s_endpgm"))

ALIGN8 = int(os.environ.get("ALIGN8", "0"))
import re as _re
def isize(i):
    t = i.text
    if i.kind == "label": return 0
    op = t.split()[0]
    if i.kind in ("mfma", "lds", "vmem", "dma") or op.startswith(("buffer_", "global_", "ds_", "s_load", "s_memtime", "s_memrealtime")): return 8
    lit = False
    for tok in _re.split(r"[ ,]+", t)[1:]:
        if _re.fullmatch(r"-?\d+", tok): lit |= not (-16 <= int(tok) <= 64)
        elif tok.startswith("0x"): lit |= not (int(tok, 16) <= 64)
        elif tok.startswith("L_") and not op.startswith(("s_cbranch", "s_branch")): lit = True
    if op.startswith("s_"):
        if op in ("s_waitcnt", "s_nop", "s_barrier", "s_sleep", "s_endpgm") or op.startswith(("s_cbranch", "s_branch")): return 4
        return 8 if lit else 4
    e32 = ("v_exp_f32", "v_rcp_f32", "v_sqrt_f32", "v_mov_b32", "v_mov_b64", "v_add_f32", "v_sub_f32", "v_mul_f32", "v_max_f32", "v_and_b32", "v_xor_b32", "v_lshlrev_b32", "v_lshrrev_b32",
           "v_add_u32", "v_sub_u32", "v_subrev_u32", "v_mul_u32_u24", "v_min_u32", "v_readfirstlane_b32", "v_permlane16_swap_b32", "v_permlane32_swap_b32")
    if op in e32 and "-v" not in t: return 8 if lit else 4
    if op.startswith("v_cmp") and t.split()[1].startswith("vcc"): return 8 if lit else 4
    return 8
WIDE = ("v_exp_f32", "v_rcp_f32", "v_add_f32", "v_mul_f32", "v_mov_b32", "v_sub_f32", "v_and_b32", "v_lshlrev_b32")
if ALIGN8:
    pos = 0; cand = None; nfix = 0; nmiss = 0
    for i in em.out:
        if i.kind == "label":
            if i.text.startswith(".p2align"): pos = 0; cand = None
            continue
        if i.kind == "mfma" and pos % 8:
            if cand is not None: cand.text = cand.text.replace(cand.text.split()[0], cand.text.split()[0] + "_e64", 1); pos += 4; nfix += 1
            else: nmiss += 1
        if i.kind == "mfma": cand = None
        sz = isize(i)
        if sz == 4 and i.text.split()[0] in WIDE: cand = i
        pos += sz
    print("; align8: widened %d, unfixed %d" % (nfix, nmiss), file=sys.stderr)
probs = check_hazards(em.out, "main") + loop_probs
for p in probs: print("; HAZARD", p, file=sys.stderr)
assert not probs

hdr = open(os.path.join(os.path.dirname(os.path.abspath(__file__)), "header.txt")).read()
print(hdr.rstrip())
print("; @launch grid=(256,1,1) block=(256,1,1) lds=163840")
print('.amdgcn_target "amdgcn-amd-amdhsa--gfx950"\n.text\n.globl %s\n.p2align 8\n.type %s,@function\n%s:' % (KN, KN, KN))
print(em.text())
print('.section .rodata,"a"\n.p2align 6\n.amdhsa_kernel %s' % KN)
print("  .amdhsa_next_free_vgpr 512\n  .amdhsa_next_free_sgpr 102\n  .amdhsa_accum_offset 256\n  .amdhsa_group_segment_fixed_size 0\n  .amdhsa_kernarg_size 96\n  .amdhsa_user_sgpr_count 2\n  .amdhsa_user_sgpr_kernarg_segment_ptr 1\n  .amdhsa_system_sgpr_workgroup_id_x 1\n.end_amdhsa_kernel")
```

```python
import sys, os, math, struct
from asmgen import *

KN = "recurrent_scan__gqa_block_cached__geglu_ffn__prompt_kernel"
DUMP = os.environ.get("DUMP", "")
STAMP = int(os.environ.get("STAMP", "0"))
GEL_END = int(os.environ.get("GEL_END", "247")); GEL_EXTRA = int(os.environ.get("GEL_EXTRA", "360"))

def f2u(x): return struct.unpack("<I", struct.pack("<f", x))[0]
def hx(x): return "0x%x" % (x & 0xffffffff)

S_X, S_K, S_V, S_WQ, S_WO, S_WG, S_WU, S_WD, S_OUT, S_DBG, S_H, S_SP = [S(4 + 4 * i, 4) for i in range(12)]
s_g, s_qb, s_w = S(52), S(53), S(54)
s_t0, s_t1, s_t2, s_t3 = S(55), S(56), S(57), S(58)
s_m0b = S(59)
s_off = S(60)
s_cnt = S(61)
s_kK, s_kV = S(62), S(63)
s_retry = S(64)
s_h0, s_h1 = S(65), S(66)
s_hl = S(67); s_hb = S(78); s_myfl = S(79); s_wdd = S(67); s_sig = S(78)
s_ka = S(68, 16); s_kb = S(84, 8)
s_pair = S(92, 2); s_pair2 = S(94, 2)
S_DMP = S(96, 4)
s_cq, s_cg = S(76), S(77)
S_HC = S(80, 4)
S_SPC = S(84, 4)
S_XC = S(88, 4)
s_st = S(68, 4)

v_tid, v_lane, v_lin, v_t = V(0), V(1), V(2), V(3)
v_tr = [V(4, 4), V(8, 4)]
v_dA, v_dB = V(12, 4), V(16, 4)
v_ka = V(20, 4); v_va = V(24, 8); v_kd = V(32, 4); v_vd = V(36, 2)
v_wl = V(38)
v_c = V(39)
v_l0, v_l1 = V(40, 4), V(44, 4)
v_lsave = V(16, 4)
v_negm = V(48, 16)
v_S = [V(64, 32), V(96, 32)]
v_acc = V(128, 128)
a_ring = A(128, 32)
a_B = A(160, 32)
a_Q = A(0, 64)
a_F = A(0, 64)
a_x = A(248, 8)
LSUM = int(os.environ.get('LSUM', '1'))
a_L = A(224, 16); a_ones = A(240, 4)
POI = int(os.environ.get('POI', '0'))
POISON = 0x7f817f81
a_poi = A(244, 4)

RING = 65536
MARK = 0x7fc17fc1
WS_SP = 8 << 20
WS_DUMP = 32 << 20
WS_FL = (7 << 20) + (512 << 10)
S_FLZ = S(4, 4)
S_FL = S(4, 4)

em = Em()
e = em.e

def srd(dst, lo, hi, size, off_s=None):
    if off_s is None:
        e(salu("s_mov_b32", dst[0], lo, scc_w=False)); e(salu("s_mov_b32", dst[1], hi, scc_w=False))
    else:
        e(salu("s_add_u32", dst[0], lo, off_s)); e(salu("s_addc_u32", dst[1], hi, 0, scc_r=True))
    e(salu("s_mov_b32", dst[2], hx(size), scc_w=False)); e(salu("s_mov_b32", dst[3], "0x20000", scc_w=False))

DIAG = int(os.environ.get("DIAG", "0"))
HC_OFF = 128
diag_regs = [S(100, 2), S(70, 2), S(72, 2), S(74, 2), S(96, 2), S(98, 2), S(68, 2)] if DIAG != 2 else [S(100, 2), S(96, 2), S(98, 2), S(94, 2), S(70, 2), S(72, 2), S(74, 2), S(68, 2)]
diag_n = [0]
def diag(which=1, last=False):
    if not DIAG or (which != DIAG and which != 0): return
    k = diag_n[0]; diag_n[0] += 1
    e(raw("%s %s" % ("s_memtime" if (os.environ.get("CYC") and not last) else "s_memrealtime", diag_regs[k]), "other", wr=[diag_regs[k]]))
    if k > 0: e(raw("s_waitcnt lgkmcnt(0)", "wait")); em._retire(em.lgq, 0)
AMP = os.environ.get("AMP")
def diag_out():
    if not DIAG: return
    diag(0, last=True)
    if AMP:
        k = int(AMP); last = diag_regs[diag_n[0] - 1]
        e(salu("s_sub_u32", s_t0, diag_regs[k][0], diag_regs[int(os.environ.get("AMP0", "0"))][0]))
        if os.environ.get("CYC"): e(salu("s_lshr_b32", s_t0, s_t0, 2))
        else: e(salu("s_lshl_b32", s_t0, s_t0, 2))
        em.label("L_amp")
        e(raw("s_memrealtime s[56:57]")); e(raw("s_waitcnt lgkmcnt(0)"))
        e(salu("s_sub_u32", s_t1, s_t1, last[0])); e(scmp("s_cmp_lt_u32", s_t1, s_t0)); e(raw("s_cbranch_scc1 L_amp", rd=["scc"]))
        return
    e(scmp("s_cmp_lg_u32", s_w, 0)); e(raw("s_cbranch_scc1 L_end", rd=["scc"]))
    e(raw("s_mov_b64 exec, 1", "salu", wr=["exec"]))
    e(salu("s_not_b32", s_t0, diag_regs[0][0]))
    for k in range(diag_n[0]):
        e(valu("v_mov_b32", V(4 + k), s_t0 if k == 0 else diag_regs[k][0]))
        e(raw("buffer_atomic_umax %s, off, %s, 0 offset:%d sc1" % (V(4 + k), S_DBG, 4 * k)))
    e(valu("v_mov_b32", V(12), diag_regs[0][0]))
    e(raw("buffer_atomic_umax %s, off, %s, 0 offset:%d sc1" % (V(12), S_DBG, 4 * 9)))
stamp_n = [0]
def stamp():
    if not STAMP: return
    k = stamp_n[0]; stamp_n[0] += 1
    e(raw("s_memtime %s" % S(68, 2), "other", wr=[S(68, 2)]))
    e(raw("s_memrealtime %s" % S(70, 2), "other", wr=[S(70, 2)]))
    e(raw("s_waitcnt lgkmcnt(0)", "wait")); em._retire(em.lgq, 0)
    for i in range(4): e(valu("v_writelane_b32", v_c, S(68 + i), i, rmw=True))
    e(salu("s_lshl_b32", S(72), S(2), 2)); e(salu("s_add_u32", S(72), S(72), s_w)); e(salu("s_lshl_b32", S(72), S(72), 9))
    e(salu("s_mov_b64", S(74, 2), "exec", scc_w=False)); e(raw("s_mov_b64 exec, 15", "salu", wr=["exec"]))
    e(valu("v_lshlrev_b32", v_t, 2, v_lane))
    e(bstore(v_c, v_t, S_DMP, S(72), off=k * 16))
    e(raw("s_mov_b64 exec, %s" % S(74, 2), "salu", wr=["exec"]))
    e(valu("v_lshlrev_b32", v_t, 7, v_lane))

def dump_regs(regs, finish=True):
    em.wait(lg0=True, vm0=True)
    e(nop(7)); e(nop(7))
    n = len(regs)
    e(salu("s_lshl_b32", s_t0, S(2), 2)); e(salu("s_add_u32", s_t0, s_t0, s_w)); e(salu("s_mul_i32", s_t0, s_t0, n * 256, scc_w=False))
    e(valu("v_lshlrev_b32", v_t, 2, v_lane))
    for k, r in enumerate(regs):
        e(bstore(r, v_t, S_DMP, s_t0, off=0))
        e(salu("s_add_u32", s_t0, s_t0, 256))
        if k % 32 == 31: em.wait(vm0=True)
    em.wait(vm0=True)
    if finish: e(raw("s_endpgm"))

def red4(op, x, tmp):
    for sw in ("v_permlane32_swap_b32", "v_permlane16_swap_b32"):
        for a, t in zip(x, tmp): e(valu("v_mov_b32", t, a))
        if len(x) < 3: e(nop(1))
        for a, t in zip(x, tmp): e(valu(sw, a, t))
        for a, t in zip(x, tmp): e(valu(op, a, a, t))

e(scmp("s_cmp_ge_u32", S(2), 256)); e(raw("s_cbranch_scc1 L_end", rd=["scc"]))
diag(0)
e(salu("s_mov_b32", s_retry, 0, scc_w=False))
em.label("L_restart")
i0 = e(I("s_load_dwordx16 %s, s[0:1], 0" % s_ka, "smem", wr=s_ka.regs()))
i1 = e(I("s_load_dwordx8 %s, s[0:1], 64" % s_kb, "smem", wr=s_kb.regs()))
vq, vG, vr, vc_, vx, vy, vz = [V(40 + i) for i in range(7)]
e(raw("s_getpc_b64 %s" % s_pair2, "salu", wr=[s_pair2]))
em.label("L_pc0")
CT0 = int(os.environ.get("CT0", "64"))
if CT0:
    e(valu("v_sub_u32", V(55), 255, v_tid)); e(valu("v_cmp_gt_u32", "vcc", CT0, V(55))); e(valu("v_lshlrev_b32", V(55), 7, V(55))); e(nop(0))
    e(raw("s_and_saveexec_b64 s[4:5], vcc", "salu", wr=["exec"], rd=["vcc"])); e(raw("s_cbranch_execz L_ct0"))
    e(raw("global_load_dword v55, v55, %s" % s_pair2))
    em.label("L_ct0")
    e(raw("s_mov_b64 exec, -1", "salu", wr=["exec"]))
MAP2 = int(os.environ.get("MAP2", "0"))
s_i = S(65)
if MAP2:
    e(salu("s_and_b32", s_g, S(2), 3)); e(salu("s_lshl_b32", s_g, s_g, 1)); e(salu("s_bfe_u32", s_t0, S(2), "0x10003")); e(salu("s_add_u32", s_g, s_g, s_t0))
    e(salu("s_bfe_u32", s_qb, S(2), "0x10002")); e(salu("s_lshl_b32", s_qb, s_qb, 4)); e(salu("s_lshr_b32", s_t0, S(2), 4)); e(salu("s_add_u32", s_qb, s_qb, s_t0))
else:
    e(salu("s_and_b32", s_g, S(2), 7)); e(salu("s_lshr_b32", s_qb, S(2), 3))
def sx(dst): return salu("s_lshr_b32", dst, S(2), 4 if MAP2 else 3)
TL = "-1" if MAP2 else "0xffffffff"
e(valu("v_and_b32", v_lane, 63, v_tid))
e(valu("v_lshrrev_b32", v_t, 6, v_tid))
e(valu("v_lshlrev_b32", v_lin, 4, v_lane))
e(valu("v_readfirstlane_b32", s_w, v_t))
e(valu("v_and_b32", vq, 15, v_lane)); e(valu("v_lshrrev_b32", vG, 4, v_lane))
vxo = V(47)
XD = int(os.environ.get("XD", "1"))
if XD:
    vxo2 = V(50); vxr = [V(47), V(50)]
    e(valu("v_lshrrev_b32", vx, 3, v_lane)); e(valu("v_lshl_add_u32", vx, v_t, 4, vx)); e(valu("v_lshlrev_b32", vx, 10, vx))
    e(valu("v_and_b32", vy, 7, v_lane)); e(valu("v_xor_b32", vy, vy, vG)); e(valu("v_lshl_add_u32", vxo, vy, 4, vx))
    e(valu("v_xor_b32", vxo2, 64, vxo)); e(valu("v_add_u32", vxo2, 8192, vxo2))
else:
    e(valu("v_lshl_add_u32", vxo, v_t, 4, vq)); e(valu("v_lshlrev_b32", vxo, 10, vxo)); e(valu("v_lshl_add_u32", vxo, vG, 4, vxo))
vwg, vwq, vcw = V(52), V(53), V(54)
GM0 = int(os.environ.get("GM", "1"))
if GM0: e(salu("s_lshl_b32", s_t1, s_g, 7))
else: e(salu("s_mul_i32", s_t1, s_g, 448, scc_w=False)); e(salu("s_and_b32", s_t1, s_t1, hx(~127)))
e(salu("s_and_b32", s_t2, s_w, 1)); e(sx(s_t3)); e(salu("s_lshl_b32", s_t3, s_t3, 1)); e(salu("s_add_u32", s_t2, s_t2, s_t3))
e(salu("s_mul_i32", s_t2, s_t2, (16 if MAP2 else 8) * 3584, scc_w=False)); e(salu("s_add_u32", s_t1, s_t1, s_t2))
e(valu("v_lshrrev_b32", vx, 2, v_lane)); e(valu("v_mul_u32_u24", vx, 3584, vx)); e(valu("v_and_b32", vz, 3, v_lane)); e(valu("v_lshl_add_u32", vx, vz, 10 if GM0 else 7, vx))
e(valu("v_add_u32", vwg, s_t1, vx))
if GM0:
    e(salu("s_add_u32", s_t3, s_g, 1)); e(salu("s_lshr_b32", s_t3, s_t3, 1)); e(salu("s_lshl_b32", s_t3, s_t3, 7))
    e(valu("v_cmp_eq_u32", "vcc", 3, vz)); e(valu("v_subrev_u32", vx, s_t3, vwg)); e(nop(0)); e(valu("v_cndmask_b32", vwg, vwg, vx, "vcc"))
e(salu("s_lshr_b32", s_t2, S(2), 3)); e(salu("s_lshl_b32", s_t2, s_t2, 2)); e(salu("s_add_u32", s_t2, s_t2, s_w)); e(salu("s_lshl_b32", s_t3, s_t2, 8))
e(valu("v_lshlrev_b32", vcw, 7, v_lane)); e(valu("v_add_u32", vcw, s_t3, vcw))
e(salu("s_lshl_b32", s_t0, s_qb, 16))
em.wait(lg0=True)
diag(2)
srd(S_X, s_ka[0], s_ka[1], 65536, s_t0)
v_xp = V(64, 64)
XFIRST = int(os.environ.get("XFIRST", "12"))
if XD:
    s_xb = S(60)
    e(salu("s_lshl_b32", s_xb, s_w, 14))
    xl = [dma(vxo2 if t & 1 else vxo, S_X, 0, off=128 * (t >> 1)) for t in range(16)]
    def xissue(t): e(salu("s_add_u32", "m0", s_xb, t * 1024 - 128 * (t >> 1))); e(nop(0)); e(xl[t])
else:
    xl = [bload(v_xp[(4 * ks, 4)], vxo, S_X, 0, off=64 * ks) for ks in range(16)]
    def xissue(t): e(xl[t])
for ks in range(XFIRST): xissue(ks)
e(scmp("s_cmp_lt_u32", s_w, 2)); e(salu("s_cselect_b64", s_pair, s_ka[(12, 2)], s_ka[(14, 2)], scc_w=False, scc_r=True))
e(raw("s_mov_b64 exec, " + TL, "salu", wr=["exec"]))
e(I("global_load_dword %s, %s, %s" % (V(48), vwg, s_pair), "vmem", rd=vwg.regs() + s_pair.regs(), wr=V(48).regs()))
e(raw("s_mov_b64 exec, 3", "salu", wr=["exec"]))
e(I("global_load_dword %s, %s, %s" % (V(49), vcw, s_pair2), "vmem", rd=vcw.regs() + s_pair2.regs(), wr=V(49).regs()))
e(raw("s_mov_b64 exec, -1", "salu", wr=["exec"]))
e(sx(s_t2)); e(salu("s_lshl_b32", s_t2, s_t2, 2)); e(salu("s_add_u32", s_t2, s_t2, s_w))
e(salu("s_lshl_b32", s_t2, s_t2, 16 if MAP2 else 15)); e(salu("s_lshl_b32", s_t3, s_g, 10)); e(salu("s_add_u32", s_t2, s_t2, s_t3))
e(valu("v_lshrrev_b32", vx, 3, v_lane)); e(valu("v_lshlrev_b32", vx, 13, vx)); e(valu("v_and_b32", vz, 7, v_lane)); e(valu("v_lshl_add_u32", vx, vz, 7, vx))
e(valu("v_add_u32", vwq, s_t2, vx))
e(salu("s_lshr_b32", s_t2, S(2), 6)); e(salu("s_and_b32", s_t3, S(2), 7)); e(salu("s_lshl_b32", s_t3, s_t3, 2)); e(salu("s_add_u32", s_t2, s_t2, s_t3))
e(salu("s_lshl_b32", s_t0, s_t2, 16))
srd(S_OUT, s_kb[2], s_kb[3], 65536, s_t0)
e(salu("s_lshl_b32", s_t1, s_g, 19))
srd(S_K, s_ka[2], s_ka[3], 524288, s_t1)
srd(S_V, s_ka[4], s_ka[5], 524288, s_t1)
srd(S_WO, s_ka[8], s_ka[9], 524288, s_t1)
srd(S_WQ, s_ka[6], s_ka[7], 4 << 20)
srd(S_WG, s_ka[12], s_ka[13], 1835008)
srd(S_WU, s_ka[14], s_ka[15], 1835008)
srd(S_WD, s_kb[0], s_kb[1], 1835008)
srd(S_DBG, s_kb[4], s_kb[5], 256)
e(salu("s_mul_i32", s_t1, s_qb, 229376, scc_w=False))
srd(S_H, s_kb[6], s_kb[7], 229376, s_t1)
e(salu("s_lshl_b32", s_t1, s_qb, 19)); e(salu("s_add_u32", s_t1, s_t1, hx(WS_SP)))
srd(S_SP, s_kb[6], s_kb[7], 524288, s_t1)
if DUMP or STAMP:
    e(salu("s_mov_b32", s_t1, hx(WS_DUMP), scc_w=False))
    srd(S_DMP, s_kb[6], s_kb[7], 200 << 20, s_t1)
e(salu("s_mov_b64", s_pair, S(90, 2), scc_w=False))
e(salu("s_lshl_b32", s_t0, s_t2, 16))
srd(S_XC, s_ka[0], s_ka[1], 65536, s_t0)
e(salu("s_mul_i32", s_t1, s_t2, 229376, scc_w=False))
srd(S_HC, s_pair[0], s_pair[1], 229376, s_t1)
e(salu("s_lshl_b32", s_t1, s_t2, 19)); e(salu("s_add_u32", s_t1, s_t1, hx(WS_SP)))
srd(S_SPC, s_pair[0], s_pair[1], 524288, s_t1)
e(salu("s_mov_b32", s_cq, s_t2, scc_w=False)); e(salu("s_bfe_u32", s_cg, S(2), "0x30003"))
e(salu("s_lshl_b32", s_myfl, s_qb, 2)); e(salu("s_add_u32", s_myfl, s_myfl, s_w)); e(salu("s_lshl_b32", s_myfl, s_myfl, 8))
e(salu("s_lshl_b32", s_t1, s_g, 2)); e(salu("s_add_u32", s_myfl, s_myfl, s_t1))
e(salu("s_lshl_b32", s_m0b, s_w, 12)); e(salu("s_add_u32", s_m0b, s_m0b, RING))
GM = int(os.environ.get("GM", "1"))
if GM:
    e(salu("s_lshl_b32", s_t1, s_w, 3)); e(salu("s_add_u32", s_t1, s_t1, s_g))
    e(salu("s_lshr_b32", s_t2, s_g, 1)); e(salu("s_add_u32", s_t2, s_t2, 24))
    e(scmp("s_cmp_eq_u32", s_w, 3)); e(salu("s_cselect_b32", s_t1, s_t2, s_t1, scc_w=False, scc_r=True))
else:
    e(salu("s_and_b32", s_t1, s_g, 1)); e(salu("s_lshl_b32", s_t1, s_t1, 2)); e(salu("s_add_u32", s_t1, s_t1, s_w))
    e(scmp("s_cmp_eq_u32", s_w, 3)); e(salu("s_cselect_b32", s_t1, 3, s_t1, scc_w=False, scc_r=True))
    e(salu("s_lshr_b32", s_t2, s_g, 1)); e(salu("s_mul_i32", s_t2, s_t2, 7, scc_w=False)); e(salu("s_add_u32", s_t1, s_t1, s_t2))
e(salu("s_lshl_b32", s_h0, s_t1, 13)); e(salu("s_add_u32", s_h1, s_h0, 4096))
e(salu("s_lshl_b32", s_t1, s_t1, 7))
e(salu("s_lshl_b32", s_t2, s_g, 2)); e(salu("s_add_u32", s_t2, s_t2, s_w)); e(salu("s_lshl_b32", s_t2, s_t2, 8))

def dma_voffs(dst, stride, colbase_s, perm):
    for j in range(4):
        e(valu("v_bfe_u32", vx, v_lane, 1, 2)); e(valu("v_bfe_u32", vy, v_lane, 4, 1))
        e(valu("v_xor_b32", vx, vx, vy))
        if j & 1: e(valu("v_xor_b32", vx, 2, vx))
        e(valu("v_and_b32", vy, 1, v_lane)); e(valu("v_lshlrev_b32", vy, 4, vy)); e(valu("v_lshl_add_u32", vx, vx, 5, vy))
        if not perm:
            e(valu("v_lshrrev_b32", vy, 3, v_lane)); rowadd = 8 * j
        else:
            e(valu("v_bfe_u32", vy, v_lane, 3, 2)); e(valu("v_bfe_u32", vz, v_lane, 5, 1)); e(valu("v_lshl_add_u32", vy, vz, 4, vy)); rowadd = 4 * j
        e(valu("v_mul_u32_u24", vy, stride, vy))
        e(valu("v_add3_u32", vx, vx, vy, colbase_s))
        e(valu("v_add_u32", dst[j], rowadd * stride - j * 1024, vx))

dma_voffs(v_dA, 3584, s_t1, False)
dma_voffs(v_dB, 8192, s_t2, False)

def m0set(p): return salu("s_add_u32", "m0", s_m0b, p * 16384) if p < 6 else salu("s_sub_u32", "m0", s_m0b, RING - (p - 6) * 16384)
def s1_dma(m):
    p = m % 6
    if m < 32:
        s, h = m >> 1, m & 1
        return [m0set(p), salu("s_mov_b32", s_off, s * 32 * 3584, scc_w=False)], [dma(v_dA[j], S_WU if h else S_WG, s_off, j * 1024) for j in range(4)]
    if m < 64:
        s, h = (m - 32) >> 1, m & 1
        return [m0set(p), salu("s_mov_b32", s_off, s * 32 * 8192 + 128 * h, scc_w=False)], [dma(v_dB[j], S_WQ, s_off, j * 1024) for j in range(4)]
    if m == 64:
        return [m0set(p), salu("s_mov_b32", s_off, 0, scc_w=False)], [dma(v_kd[j], S_K, s_off, j * 1024) for j in range(4)]
    if m == 65:
        return [m0set(p), salu("s_mov_b32", s_off, 8192, scc_w=False)], [dma(v_kd[j], S_K, s_off, j * 1024) for j in range(4)]
    if m == 66:
        return [m0set(p), salu("s_mov_b32", s_off, 0, scc_w=False)], [dma(v_vd[j & 1], S_V, s_off, j * 1024) for j in range(4)]
    return None
dtok = {}
ln_v = []
for m in range(6):
    sa, dm = s1_dma(m)
    ln_v.append(sa); ln_v += dm
    dtok[m] = dm[3]
def xaddr(dst, tmp):
    e(valu("v_and_b32", dst, 15, v_lane)); e(salu("s_lshl_b32", s_t0, s_w, 4)); e(valu("v_add_u32", dst, s_t0, dst)); e(valu("v_lshlrev_b32", dst, 10, dst))
    e(valu("v_lshrrev_b32", tmp, 4, v_lane)); e(valu("v_lshl_add_u32", dst, tmp, 3, dst)); e(salu("s_lshl_b32", s_t0, s_cg, 7)); e(valu("v_add_u32", dst, s_t0, dst))
WQT = int(os.environ.get("WQT", "0"))
wqt = [raw("s_mov_b64 exec, " + TL, "salu", wr=["exec"]), bload(V(46), vwq, S_WQ, 0, n=1), raw("s_mov_b64 exec, -1", "salu", wr=["exec"])]
if WQT == 0: ln_v.append(wqt)
LNPRE = int(os.environ.get("LNPRE", "0"))
lv = [0]
def ln_issue(n=1):
    k = 0
    while k < n and lv[0] < len(ln_v):
        it = ln_v[lv[0]]; lv[0] += 1
        e(it)
        if not isinstance(it, list): k += 1
e(valu("v_bfe_u32", vr, v_lane, 2, 2)); e(valu("v_and_b32", vc_, 3, v_lane))
e(valu("v_lshlrev_b32", vx, 10, vG)); e(valu("v_lshl_add_u32", vx, vr, 7, vx)); e(valu("v_lshl_add_u32", vx, vc_, 3, vx)); e(valu("v_add_u32", vx, s_m0b, vx))
e(valu("v_lshrrev_b32", vy, 1, vr)); e(valu("v_and_b32", vz, 1, vG)); e(valu("v_lshl_add_u32", vy, vz, 1, vy))
for u in range(4):
    e(valu("v_xor_b32", vz, u, vy)); e(valu("v_lshl_add_u32", v_tr[0][u], vz, 5, vx)); e(valu("v_add_u32", v_tr[1][u], 3 * 16384, v_tr[0][u]))
e(valu("v_xor_b32", vy, vG, vq))
for ds in range(4):
    e(valu("v_xor_b32", vz, 4 * ds, vy)); e(valu("v_lshlrev_b32", vz, 4, vz)); e(valu("v_lshl_add_u32", vz, vq, 8, vz)); e(valu("v_add_u32", v_ka[ds], RING + 4 * 16384, vz))
e(valu("v_lshl_add_u32", vx, vG, 2, vr)); e(valu("v_and_b32", vy, 7, vx)); e(valu("v_lshlrev_b32", vx, 8, vx)); e(valu("v_lshl_add_u32", vx, vc_, 3, vx)); e(valu("v_add_u32", vx, RING, vx))
for db in range(8):
    e(valu("v_xor_b32", vz, db, vy)); e(valu("v_lshl_add_u32", v_va[db], vz, 5, vx))
e(salu("s_lshl_b32", s_t1, s_w, 12))
e(valu("v_lshlrev_b32", vx, 8, vG)); e(valu("v_add_u32", vx, s_t1, vx))
for j in range(4):
    e(valu("v_add_u32", vy, 4 * j, vG)); e(valu("v_xor_b32", vy, vy, vq)); e(valu("v_lshl_add_u32", v_kd[j], vy, 4, vx))
e(valu("v_and_b32", vz, 1, v_lane)); e(valu("v_lshl_add_u32", vx, vz, 4, vx))
for j in range(2):
    e(valu("v_add_u32", vy, 4 * j, vG)); e(valu("v_lshrrev_b32", vz, 1, vq)); e(valu("v_xor_b32", vy, vy, vz)); e(valu("v_lshl_add_u32", v_vd[j], vy, 5, vx))
e(salu("s_lshl_b32", s_t1, s_w, 14)); e(valu("v_add_u32", v_wl, s_t1, v_lin))
for ks in range(XFIRST, 16): xissue(ks)
if XD:
    e(valu("v_lshrrev_b32", vx, 1, vq)); e(valu("v_xor_b32", vx, vx, vG)); e(valu("v_lshlrev_b32", vx, 4, vx))
    e(valu("v_lshl_add_u32", vx, vq, 7, vx)); e(valu("v_add_u32", vxr[0], s_xb, vx)); e(valu("v_xor_b32", vxr[1], 64, vxr[0]))
e(salu("s_mov_b32", s_t1, hx(WS_FL), scc_w=False))
srd(S_FL, s_pair[0], s_pair[1], 32768, s_t1)
if WQT == 1: e(wqt)
ln_issue(LNPRE)
stamp()

v_f = V(128, 128)
LNM = int(os.environ.get("LNM", "1"))
vsum, vtmp, vmb, vdm = V(40), V(41), V(42), V(43)
vneg = V(56, 2)
diag(2)
if LNM:
    d1, d2 = V(56, 4), V(60, 4)
    xr = {}
    def xread(t2):
        em.wait(vm=xl[2 * t2 + 1])
        for ks in (2 * t2, 2 * t2 + 1): xr[ks] = e(dsread("ds_read_b128", v_xp[(4 * ks, 4)], vxr[ks & 1], (ks >> 1) * 2048))
    e(valu("v_mov_b32", vtmp, "0x3f803f80"))
    for i in range(4): e(valu("v_accvgpr_write_b32", a_ones[i], vtmp))
    e(valu("v_and_b32", vtmp, 3, v_lane))
    for r in range(1, 4): e(valu("v_cmp_eq_u32", S(68 + 2 * r, 2), r, vtmp))
    e(valu("v_bfe_u32", vtmp, v_lane, 2, 2)); e(valu("v_lshrrev_b32", vmb, 4, v_lane)); e(valu("v_cmp_eq_u32", S(68, 2), vtmp, vmb))
    LND = int(os.environ.get("LND", "4"))
    if XD: xread(0)
    for ks in range(16):
        if XD:
            if ks % 2 == 0 and ks + 2 < 16: xread(ks // 2 + 1)
            em.wait(lg=xr[ks])
        else: em.wait(vm=xl[ks])
        if ks == 15: diag(2)
        x4 = v_xp[(4 * ks, 4)]
        e(mfma(d1, a_ones, x4, 0 if ks == 0 else d1))
        if ks >= LND: ln_issue(1)
        for k in range(2):
            p = 4 * ks + k
            e(valu("v_lshlrev_b32", v_f[2 * p], 16, v_xp[p])); e(valu("v_and_b32", v_f[2 * p + 1], "0xffff0000", v_xp[p]))
        e(mfma(d2, x4, x4, 0 if ks == 0 else d2))
        for k in range(2, 4):
            p = 4 * ks + k
            e(valu("v_lshlrev_b32", v_f[2 * p], 16, v_xp[p])); e(valu("v_and_b32", v_f[2 * p + 1], "0xffff0000", v_xp[p]))
    if STAMP == 3: stamp()
    ln_issue(int(os.environ.get("LN_FIRST", "0")))
    diag(2)
    if STAMP == 3: stamp()
    e(nop(2))
    e(valu("v_mul_f32", vsum, hx(f2u(1.0 / 512)), d1[0]))
    e(valu("v_cvt_pk_bf16_f32", vmb, vsum, vsum)); e(valu("v_lshlrev_b32", vmb, 16, vmb))
    e(valu("v_mov_b32", vdm, vsum))
    for r in range(1, 4): e(valu("v_cndmask_b32", d2[0], d2[0], d2[r], S(68 + 2 * r, 2)))
    e(valu("v_cndmask_b32", vsum, 0, d2[0], S(68, 2)))
    red4("v_add_f32", [vsum], [vtmp])
    e(valu("v_mul_f32", vsum, hx(f2u(1.0 / 512)), vsum))
    e(valu("v_fma_f32", vsum, "-" + str(vdm), vdm, vsum, extra_rd=vdm.regs()))
    if STAMP == 3: stamp()
else:
    acc = [V(56, 2), V(58, 2), V(60, 2), V(62, 2)]
    for ks in range(16):
        em.wait(vm=xl[ks])
        if ks == 15: diag(2)
        for k in range(4):
            p = 4 * ks + k
            e(valu("v_lshlrev_b32", v_f[2 * p], 16, v_xp[p])); e(valu("v_and_b32", v_f[2 * p + 1], "0xffff0000", v_xp[p]))
        for k in range(4):
            p = 4 * ks + k
            if ks == 0: e(valu("v_mov_b64", acc[k], v_f[(2 * p, 2)]))
            else: e(valu("v_pk_add_f32", acc[k], acc[k], v_f[(2 * p, 2)]))
    if STAMP == 3: stamp()
    ln_issue(int(os.environ.get("LN_FIRST", "12")))
    diag(2)
    if STAMP == 3: stamp()
    e(valu("v_pk_add_f32", acc[0], acc[0], acc[1])); e(valu("v_pk_add_f32", acc[2], acc[2], acc[3])); e(valu("v_pk_add_f32", acc[0], acc[0], acc[2]))
    e(valu("v_add_f32", vsum, acc[0][0], acc[0][1]))
    red4("v_add_f32", [vsum], [vtmp])
    e(valu("v_mul_f32", vsum, hx(f2u(1.0 / 512)), vsum))
    e(valu("v_cvt_pk_bf16_f32", vmb, vsum, vsum)); e(valu("v_lshlrev_b32", vmb, 16, vmb))
    e(valu("v_sub_f32", vdm, vsum, vmb))
    e(valu("v_sub_f32", vneg[0], 0, vmb))
    acc2 = [V(58, 2), V(60, 2), V(62, 2)]
    for p in range(64):
        e(valu("v_pk_add_f32", v_f[(2 * p, 2)], v_f[(2 * p, 2)], vneg, mod="op_sel_hi:[1,0]"))
    for p in range(64):
        a_ = acc2[p % 3]
        if p < 3: e(valu("v_pk_mul_f32", a_, v_f[(2 * p, 2)], v_f[(2 * p, 2)]))
        else: e(valu("v_pk_fma_f32", a_, v_f[(2 * p, 2)], v_f[(2 * p, 2)], a_))
    if STAMP == 3: stamp()
    e(valu("v_pk_add_f32", acc2[0], acc2[0], acc2[1])); e(valu("v_pk_add_f32", acc2[0], acc2[0], acc2[2]))
    e(valu("v_add_f32", vsum, acc2[0][0], acc2[0][1]))
    red4("v_add_f32", [vsum], [vtmp])
    e(valu("v_mul_f32", vsum, hx(f2u(1.0 / 512)), vsum))
    e(valu("v_fma_f32", vsum, "-" + str(vdm), vdm, vsum, extra_rd=vdm.regs()))
e(valu("v_max_f32", vsum, 0, vsum))
e(valu("v_cvt_pk_bf16_f32", vsum, vsum, vsum)); e(valu("v_lshlrev_b32", vsum, 16, vsum))
e(valu("v_add_f32", vsum, hx(f2u(1e-5)), vsum))
e(valu("v_cvt_pk_bf16_f32", vsum, vsum, vsum)); e(valu("v_lshlrev_b32", vsum, 16, vsum))
e(valu("v_sqrt_f32", vsum, vsum)); e(nop(0))
e(valu("v_cvt_pk_bf16_f32", vsum, vsum, vsum)); e(valu("v_lshlrev_b32", vsum, 16, vsum))
e(valu("v_rcp_f32", vneg[0], vsum)); e(nop(0))
if LNM: e(valu("v_mul_f32", vneg[1], "-" + str(vmb), vneg[0], mod="", extra_rd=vmb.regs()))
for ks in range(16):
    for k in range(4):
        p = 4 * ks + k
        if LNM: e(valu("v_pk_fma_f32", v_f[(2 * p, 2)], v_f[(2 * p, 2)], vneg, vneg, mod="op_sel:[0,0,1] op_sel_hi:[1,0,1]"))
        else: e(valu("v_pk_mul_f32", v_f[(2 * p, 2)], v_f[(2 * p, 2)], vneg, mod="op_sel_hi:[1,0]"))
    for k in range(4):
        p = 4 * ks + k
        e(valu("v_cvt_pk_bf16_f32", v_xp[p], v_f[2 * p], v_f[2 * p + 1]))
    e(dswrite("ds_write_b128", v_wl, v_xp[(4 * ks, 4)], ks * 1024))
ln_issue(int(os.environ.get("LN_LAST", "100")))
if STAMP == 3: stamp()
if DUMP == "ln": dump_regs([v_xp[i] for i in range(64)])
em.wait(lg0=True)
e(raw("s_barrier"))
stamp(); diag(); diag(2); diag(3)

def cost_of(it):
    k = getattr(it, "kind", "")
    return 2 if k == "trans" else (0 if k in ("salu", "nop") else 1)
class Fill:
    def __init__(self, items, start, end, spread=False): self.items, self.start, self.end, self.spread = list(items), start, end, spread; self.i = 0
    def done(self): return self.i == len(self.items)
def run_stream(NH, dmaf, dtok, accf, Bf, extra, fills, LOOK=6, nq=4, posf=lambda m: m % 6, ring=a_ring, first_dma=6, tr2=None, early_dma=False, w2=lambda g: False):
    NG = 4 * NH
    rtok = {}
    def reads(g):
        m, u = g >> 2, g & 3
        p = posf(m)
        d = ring[((g % 8) * 4, 4)]
        ar, of = (v_tr[p // 3][u], (p % 3) * 16384) if p < 6 else (tr2[u], (p - 6) * 16384)
        r = [dsread("ds_read_b64_tr_b16", d[(2 * h2, 2)], ar, of + h2 * 512) for h2 in range(2)]
        rtok[g] = r[1]
        return r
    pre = [reads(g) for g in range(3)]
    G, C = [], []
    cur = None
    for g in range(NG):
        gaps = [[], [], [], []]; cap = [2, 2, 2, 2]
        if g + 3 < NG:
            if (g + 3) & 3 == 0 and not (g > 0 and w2(g - 1)): gaps[0].append(LateW(dtok, (g + 3) >> 2))
            r = reads(g + 3); gaps[0].append(r[0]); gaps[1].append(r[1]); cap[0] -= 1; cap[1] -= 1
        md, j = (g + 4 * LOOK - 4) >> 2, (g + 4 * LOOK - 4) & 3
        if early_dma:
            md, j = (g + 4 * LOOK - 3) >> 2, (g + 4 * LOOK - 3) & 3
            if md >= first_dma and j < 2:
                if j == 0: cur = dmaf(md)
                if cur is not None:
                    if j == 0: gaps[1] += cur[0]
                    gaps[2].append(cur[1][2 * j]); gaps[3].append(cur[1][2 * j + 1]); cap[2] -= 1; cap[3] -= 1
                    if j == 1: dtok[md] = cur[1][3]
        elif md >= first_dma:
            if j == 0: cur = dmaf(md)
            if cur is not None:
                if j == 0: gaps[2] += cur[0]
                for it in cur[1][j::4]: gaps[3].append(it); cap[3] -= 1
                if j == 3: dtok[md] = cur[1][3]
        for (gp, it, cost) in extra.get(g, []):
            gaps[gp].append(it); cap[gp] -= cost
        if w2(g):
            if g & 1 == 0 and g + 1 < NG:
                gaps[3].insert(0, LateW2(rtok, [x for x in (g + 1, g + 2) if x < NG], dtok, (g + 4) >> 2 if ((g + 4) & 3 == 0 and g + 4 < NG) else None))
        elif g + 1 < NG: gaps[3].insert(0, Wait(lg=rtok[g + 1]))
        G.append(gaps); C.append(cap)
    B = {}
    for f in fills:
        idx = [(g, q) for g in range(f.start, f.end) for q in range(4)]
        caps = [max(0, C[g][q]) for g, q in idx]
        W = sum(cost_of(it) for it in f.items); T = sum(caps); n = len(idx)
        acc = 0.0; cum = 0
        for k, key in enumerate(idx):
            if W >= T: acc += caps[k] + (W - T) / n
            elif f.spread: acc += caps[k] * W / T
            else: acc += caps[k]
            B[key] = (f, acc)
    em.wait(vm=dtok[0])
    for r in pre: e(r)
    for p_ in extra.get(-1, []): e(p_[1])
    em.wait(lg0=True)
    used = {id(f): 0 for f in fills}
    for g in range(NG):
        m, u = g >> 2, g & 3
        d = ring[((g % 8) * 4, 4)]
        for qb in range(nq):
            ac, first = accf(m, u, qb)
            e(mfma(ac, d, Bf(m, qb), 0 if first else ac))
            ent = B.get((g, qb))
            sawv = False
            if ent:
                f, lim = ent
                while not f.done() and getattr(f.items[f.i], "kind", "") in ("lds", "vmem", "salu") and used[id(f)] + cost_of(f.items[f.i]) <= lim + 0.5:
                    it = f.items[f.i]; f.i += 1; used[id(f)] += cost_of(it); e(it)
            for it in G[g][qb]: e(it)
            if ent:
                f, lim = ent
                lastgap = (g == f.end - 1 and qb == 3)
                while not f.done():
                    it = f.items[f.i]; c = cost_of(it)
                    if not lastgap:
                        if used[id(f)] + c > lim + 0.5: break
                        if sawv and getattr(it, "kind", "") in ("lds", "vmem"): break
                    f.i += 1; used[id(f)] += c; e(it)
                    if getattr(it, "kind", "") in ("valu", "trans"): sawv = True
    assert all(f.done() for f in fills)
class LateW2:
    def __init__(self, r, fl, d, k): self.r, self.fl, self.d, self.k = r, fl, d, k
    def __call__(self): return Wait(lg=[self.r[f] for f in self.fl], vm=(self.d[self.k] if self.k is not None else None))
class LateW:
    def __init__(self, d, k): self.d, self.k = d, k
    def __call__(self): return Wait(vm=self.d[self.k])

def s1_acc(m, u, qb):
    h = m & 1
    idx = ((h * 4 + u) * 4 + qb) * 4
    if m < 32: return A(idx, 4), m < 2
    return v_acc[(idx, 4)], m < 34
def s1_B(m, qb): return a_B[(((m >> 1) & 1) * 16 + qb * 4, 4)]
extra = {}
btok = {}
def bread(s, qb): return dsread("ds_read_b128", a_B[((s & 1) * 16 + qb * 4, 4)], v_lin, (qb * 16 + (s % 16)) * 1024)
extra[-1] = [(0, bread(0, qb), 1) for qb in range(4)]
for s in range(1, 32):
    for qb in range(4):
        extra.setdefault(8 * (s - 1) + 1 + qb, []).append((2, bread(s, qb), 1))
gi = 0; gj = 0; pend_s = []
for it in ln_v[lv[0]:]:
    if isinstance(it, list) and all(x.kind == "salu" for x in it): pend_s = it; continue
    if not isinstance(it, list) and it.kind == "dma":
        assert gi < 12
        extra.setdefault(gi // 3, []).append((gi % 3, [pend_s, it] if pend_s else it, 1)); pend_s = []
        gi += 1
    else:
        extra.setdefault(8 + 2 * gj, []).append((1, it, 1)); gj += 1
C0 = -2.0 * math.sqrt(2.0 / math.pi) * math.log2(math.e); C1 = C0 * 0.044715
vc0, vc1 = V(40), V(41)
gel = [valu("v_mov_b32", vc0, hx(f2u(C0))), valu("v_mov_b32", vc1, hx(f2u(C1)))]
hst = []
tb = 0
for i in range(2):
    for qb in range(4):
        pk = V(96 + 4 * tb, 4); tb += 1
        for b in range(2):
            u = 2 * i + b
            T = [V(64 + 16 * b + k) for k in range(16)]
            G_, U_, X_ = T[0:4], T[4:8], T[8:12]
            ga = lambda r: A((u * 4 + qb) * 4 + r); ua = lambda r: A(((4 + u) * 4 + qb) * 4 + r)
            for r in range(4): gel.append(valu("v_accvgpr_read_b32", G_[r], ga(r)))
            for r in range(4): gel.append(valu("v_accvgpr_read_b32", U_[r], ua(r)))
            for r in range(4): gel.append(valu("v_mul_f32", X_[r], G_[r], G_[r]))
            for r in range(4): gel.append(valu("v_fma_f32", X_[r], X_[r], vc1, vc0))
            for r in range(4): gel.append(valu("v_mul_f32", X_[r], X_[r], G_[r]))
            for r in range(4): gel.append(valu("v_exp_f32", X_[r], X_[r]))
            for r in range(4): gel.append(valu("v_mul_f32", G_[r], G_[r], U_[r]))
            for r in range(4): gel.append(valu("v_add_f32", X_[r], "1.0", X_[r]))
            for r in range(4): gel.append(valu("v_rcp_f32", X_[r], X_[r]))
            gel.append(nop(0))
            for r in range(4): gel.append(valu("v_mul_f32", G_[r], G_[r], X_[r]))
            for k in range(2): gel.append(valu("v_cvt_pk_bf16_f32", pk[2 * b + k], G_[2 * k], G_[2 * k + 1]))
        st = bstore(pk, v_lin, S_H, s_h1 if i else s_h0, off=qb * 1024, mod="sc1")
        hst.append(st)
class Stamp:
    def __call__(self): stamp(); return []
if STAMP: extra.setdefault(128, []).append((0, Stamp(), 0))
if STAMP == 6:
    for g_ in (0, 8, 16, 24, 32, 48, 64, 96): extra.setdefault(g_, []).append((0, Stamp(), 0))
class Diag3:
    def __call__(self): diag(3); return []
if DIAG == 3:
    for g_ in (32, 128, 192): extra.setdefault(g_, []).append((0, Diag3(), 0))
class Grp:
    kind = "salu"
    def __init__(self, l): self.l = l
    def __call__(self):
        for x in self.l:
            if x.kind == "label": em.out.append(x)
            else: e(x)
        return []
def group_scc(items):
    out = []
    for it in items:
        if out and ("scc" in it.rd or it.kind == "label"):
            p = out.pop(); out.append(Grp((p.l if isinstance(p, Grp) else [p]) + [it]))
        else: out.append(it)
    return out
s_pf = [S(24, 2), S(26, 2), S(28, 2), S(30, 2)]
s_pfH = s_pair2
s_fo = S(3)
QS = math.log2(math.e) / math.sqrt(128.0)
vqs = V(42, 2); vqw = V(44)
save = em.out; em.out = []; spend = em.pend; em.pend = {}
NWO = 4 if MAP2 else 2
for it in range(3):
    e(salu("s_add_u32", s_t0, s_w, 4 * it))
    e(salu("s_sub_u32", s_t1, s_t0, NWO)); e(salu("s_min_u32", s_t1, s_t1, 6)); e(salu("s_lshl_b32", s_t1, s_t1, 13))
    e(salu("s_lshr_b32", s_t2, S(2), 3)); e(salu("s_mul_i32", s_t2, s_t2, 57344, scc_w=False)); e(salu("s_add_u32", s_t1, s_t1, s_t2))
    e(salu("s_add_u32", s_pf[it][0], S_WD[0], s_t1)); e(salu("s_addc_u32", s_pf[it][1], S_WD[1], 0, scc_r=True))
    if it == 0:
        e(sx(s_t1)); e(salu("s_lshl_b32", s_t1, s_t1, 15 if MAP2 else 14)); e(salu("s_lshl_b32", s_t2, s_w, 13)); e(salu("s_add_u32", s_t1, s_t1, s_t2))
        e(salu("s_add_u32", s_pf[1][0], S_WO[0], s_t1)); e(salu("s_addc_u32", s_pf[1][1], S_WO[1], 0, scc_r=True))
        e(scmp("s_cmp_lt_u32", s_w, NWO)); e(salu("s_cselect_b64", s_pf[0], s_pf[1], s_pf[0], scc_w=False, scc_r=True))
e(raw("s_getpc_b64 %s" % s_pf[3], "salu", wr=[s_pf[3]]))
em.label("L_pc1")
e(salu("s_lshl_b32", s_t0, s_w, 13)); e(salu("s_add_u32", s_t0, s_t0, "L_tail-L_pc1")); e(salu("s_min_u32", s_t0, s_t0, "L_code_end-L_pc1-8192"))
e(salu("s_add_u32", s_t1, s_t0, (1 if MAP2 else 3) * 8192)); e(salu("s_min_u32", s_t1, s_t1, "L_code_end-L_pc1-8192"))
e(salu("s_add_u32", s_pfH[0], s_pf[3][0], s_t1)); e(salu("s_addc_u32", s_pfH[1], s_pf[3][1], 0, scc_r=True))
e(scmp("s_cmp_lt_u32", s_w, 3 if MAP2 else 1)); e(salu("s_cselect_b64", s_pf[2], s_pf[2], s_pfH, scc_w=False, scc_r=True))
e(salu("s_add_u32", s_pf[3][0], s_pf[3][0], s_t0)); e(salu("s_addc_u32", s_pf[3][1], s_pf[3][1], 0, scc_r=True))
e(salu("s_lshl_b32", s_t0, s_cg, 2)); e(salu("s_add_u32", s_t0, s_t0, s_w)); e(salu("s_mul_i32", s_t0, s_t0, 7168, scc_w=False)); e(salu("s_min_u32", s_t0, s_t0, 229376 - 8192))
e(salu("s_add_u32", s_pfH[0], S_HC[0], s_t0)); e(salu("s_addc_u32", s_pfH[1], S_HC[1], 0, scc_r=True))
e(salu("s_lshl_b32", s_fo, s_cq, 3))
vx, vy, vz = V(45), V(46), V(47)
e(salu("s_lshl_b32", s_t1, s_w, 8))
dma_voffs(v_dA, 1024, s_t1, True)
e(salu("s_mul_i32", s_wdd, s_w, 448 * 1024 - 256, scc_w=False)); e(salu("s_lshl_b32", s_t3, s_cg, 7)); e(salu("s_add_u32", s_wdd, s_wdd, s_t3))
e(valu("v_mov_b32", vqs[0], hx(f2u(QS))))
e(valu("v_and_b32", vx, 15, v_lane)); e(valu("v_bfe_u32", vqw, v_lane, 5, 1)); e(valu("v_lshl_add_u32", vx, vqw, 4, vx)); e(valu("v_lshlrev_b32", vx, 4, vx))
e(valu("v_bfe_u32", vqw, v_lane, 4, 1)); e(valu("v_lshl_add_u32", vqw, vqw, 3, vx))
e(salu("s_lshl_b32", s_t1, s_w, 14)); e(valu("v_add_u32", vqw, s_t1, vqw))
for i in range(16): e(valu("v_accvgpr_write_b32", a_L[i], 0))
midset = group_scc(em.out); em.out = save; em.pend = spend
HST = int(os.environ.get("HST", "0"))
if HST == 0: GEL_END = 254
for k in range(8):
    if HST: extra.setdefault(248 + k, []).append((0, hst[k], 1))
run_stream(64, s1_dma, dtok, s1_acc, s1_B, extra, [Fill(midset, 109, 130), Fill(gel, 131, GEL_END)], early_dma=int(os.environ.get('ED1', '0')), w2=lambda g: int(os.environ.get('W2A', '1')) and g >= 130)
if DUMP == "qacc": dump_regs([v_acc[i] for i in range(128)])
stamp(); diag(3)

em.wait(lg0=True)
e(raw("s_barrier"))
def signal(off_s_expr_add, lab, v_t):
    e(scmp("s_cmp_lg_u32", s_w, 0)); e(raw("s_cbranch_scc1 %s" % lab, rd=["scc"]))
    e(salu("s_lshl_b32", s_t0, s_qb, 2))
    if off_s_expr_add: e(salu("s_add_u32", s_t0, s_t0, off_s_expr_add))
    e(valu("v_mov_b32", v_t, 1))
    e(raw("s_mov_b64 exec, 1", "salu", wr=["exec"]))
    e(raw("buffer_atomic_add %s, off, %s, %s sc1" % (v_t, S_DBG, s_t0)))
    e(raw("s_mov_b64 exec, -1", "salu", wr=["exec"]))
    em.label(lab)
for blk in range(8):
    for qb in range(4):
        a_ = v_acc[((blk * 4 + qb) * 4, 4)]
        t = a_[(0, 2)]
        for k in range(2): e(valu("v_pk_mul_f32", a_[(2 * k, 2)], a_[(2 * k, 2)], vqs, mod="op_sel_hi:[1,0]"))
        for k in range(2): e(valu("v_cvt_pk_bf16_f32", t[k], a_[2 * k], a_[2 * k + 1]))
        e(dswrite("ds_write_b64", vqw, t, (qb * 4 + (blk >> 1)) * 1024 + (blk & 1) * 512))
for j in range(4): e(valu("v_add_u32", v_dB[j], s_wdd, v_dA[j]))
em.wait(lg0=True)
for f in range(16): e(dsread("ds_read_b128", a_Q[(4 * f, 4)], v_wl, f * 1024))
e(scmp("s_cmp_eq_u32", s_retry, 1)); e(raw("s_cbranch_scc1 L_maxpass", rd=["scc"]))
em.label("L_att_start")
NZ0 = 32
for i in range(NZ0): e(valu("v_mov_b64", v_acc[(2 * i, 2)], 0))
assert LSUM == 1 and LNM and not POI
e(valu("v_lshlrev_b32", V(3), 7, v_lane))
e(valu("v_and_b32", V(38), 7, v_lane)); e(valu("v_mov_b32", V(0), 0))
em.wait(vm=dtok[66], lg0=True)
e(raw("s_barrier"))
if DUMP == "q": dump_regs([a_Q[i] for i in range(64)])
stamp()

def Qf(qb, ds): return a_Q[((qb * 4 + ds) * 4, 4)]
def Of(db, qb): return v_acc[((db * 4 + qb) * 4, 4)]
def fr(f): return a_ring[((f % 8) * 4, 4)]
def kslot(par): return 16384 if par == 0 else 0
def vslot(par): return 0 if par == 0 else 16384
def frag_reads(par, f):
    if f >= 32: par ^= 1; f -= 32
    d = fr(f)
    if f < 8 or 16 <= f < 24:
        kb = (f >> 2) if f < 8 else 2 + ((f - 16) >> 2)
        return [dsread("ds_read_b128", d, v_ka[f & 3], kslot(par) + kb * 4096)]
    ks2 = 0 if f < 16 else 1
    db = f & 7
    return [dsread("ds_read_b64_tr_b16", d[(2 * h, 2)], v_va[db], vslot(par) + ks2 * 8192 + h * 4096) for h in range(2)]
def read_sched(g):
    r = []
    if g + 3 < 24 or g >= 29: r.append(g + 3)
    if 19 <= g <= 26: r.append(g + 5)
    return r
def sm_val(g, k):
    if 7 <= g <= 22: b = 1; n = 2 * (g - 7) + k
    else: b = 0; n = 2 * ((g - 23) % 32) + k
    kb, qb, r = n >> 4, (n >> 2) & 3, n & 3
    return b, qb, kb, r
def sm_items(g):
    ex, ad = [], []
    for k in range(2):
        b, qb, kb, r = sm_val(g, k)
        x = v_S[b][qb * 8 + kb * 4 + r]
        l = (v_l1 if b else v_l0)[qb]
        ex.append(valu("v_exp_f32", x, x)); ad.append(valu("v_add_f32", l, l, x))
    b, qb, kb, r = sm_val((g - 1) % 32, 0)
    cv = valu("v_cvt_pk_bf16_f32", v_S[b][qb * 8 + kb * 2 + (r >> 1)], v_S[b][qb * 8 + kb * 4 + r], v_S[b][qb * 8 + kb * 4 + r + 1])
    return ex, ad, cv
def att_dma(par, g):
    if g >= 29: k = g - 29; sp = par
    elif g <= 4: k = g + 3; sp = par ^ 1
    else: return [], None
    sal = []
    if k == 0: sal = [salu("s_add_u32", "m0", s_m0b, 4 * 16384 + kslot(sp))]
    if k == 4: sal = [salu("s_add_u32", "m0", s_m0b, vslot(sp))]
    if k < 4: return sal, dma(v_kd[k], S_K, s_kK, k * 1024)
    return sal, dma(v_vd[k & 1], S_V, s_kV, (k - 4) * 1024)
SIDE_FIRST = 11
class Lbl:
    def __init__(self, n): self.n = n
    def __call__(self): em.label(self.n); return []
class LoopStamp:
    def __init__(self, k, par): self.k, self.par = k, par
    def __call__(self):
        k = self.k
        e(raw("s_memtime %s" % S(68 + 2 * k, 2), "other", wr=[S(68 + 2 * k, 2)]))
        if k == 2:
            e(raw("s_waitcnt lgkmcnt(0)", "wait")); em._retire(em.lgq, 0)
            for i in range(3): e(valu("v_writelane_b32", v_c, S(68 + 2 * i), i, rmw=True))
            e(salu("s_lshl_b32", S(74), S(2), 2)); e(salu("s_add_u32", S(74), S(74), s_w)); e(salu("s_lshl_b32", S(74), S(74), 4))
            e(salu("s_sub_u32", S(74), S(74), s_cnt)); e(salu("s_add_u32", S(74), S(74), 16)); e(salu("s_lshl_b32", S(74), S(74), 5))
            e(salu("s_add_u32", S(74), S(74), (1 << 20) + 16 * self.par))
            e(raw("s_mov_b64 exec, 7", "salu", wr=["exec"]))
            e(valu("v_lshlrev_b32", v_t, 2, v_lane))
            e(bstore(v_c, v_t, S_DMP, S(74), off=0))
            e(raw("s_mov_b64 exec, -1", "salu", wr=["exec"]))
            e(valu("v_lshlrev_b32", v_t, 7, v_lane))
        return []
v_tch, v_flag, v_fa = V(3), V(0), V(38)
xtok = []; lastdma = [None]
NITER = 14
s_po0, s_po1, s_poe = s_h0, s_h1, s_off
s_pfc = S(16, 2); s_kvt = S(18, 2); KVIT = int(os.environ.get('KVIT', '12'))
ROT = int(os.environ.get('ROT', '8'))
LQ = int(os.environ.get("LQ", "2"))
def plan_adds():
    nmem = {}
    for g in range(32):
        n = sum(1 if (f % 32 < 8 or 16 <= f % 32 < 24) else 2 for f in read_sched(g)) + (1 if (g >= 29 or g <= 4) else 0) + (1 if g in (13, 14) else 0)
        nmem[g] = n
    free = {}
    for g in range(32):
        n = nmem[g]; a1 = 2 if n > 2 else min(n, 1); a3 = n - a1
        if a1 < 2: a1 += 1
        else: a3 += 1
        if g == 0: a1 += 1
        free[(g, 1)] = max(0, 2 - a1); free[(g, 3)] = max(0, 2 - a3)
        free[(g, 4)] = 2 if ((g & 8) and (g & 1) and ((g & 7) >> 1) < LQ) else 0
    jobs = []
    for g in range(7, 39):
        for k in range(2):
            b, qb, kb, r = sm_val(g % 32, k)
            if qb < LQ: continue
            early = 4 * g + (1 if k == 0 else 3)
            idx = kb * 4 + r
            if idx < 4:
                gsrc = g + 1 if idx == 0 else (g + 2 if idx == 1 else (g + 8 if idx == 2 else g + 9))
                dead = 4 * gsrc
            else: dead = 4 * (g + 11)
            if b == 1: dead = min(dead, 4 * 30)
            jobs.append((dead, early, b, qb, idx))
    plan = {}
    for dead, early, b, qb, idx in sorted(jobs):
        for t in range(early, dead):
            g, q = t >> 2, t & 3
            for gp in ([1] if q == 1 else ([3, 4] if q == 3 else [])):
                if free[(g % 32, gp)] > 0:
                    free[(g % 32, gp)] -= 1; plan.setdefault((g % 32, gp), []).append((b, qb, idx, g)); break
            else: continue
            break
        else:
            g = early >> 2; plan.setdefault((g % 32, early & 3), []).append((b, qb, idx, g)); print("; add overflow", g, file=sys.stderr)
    return plan
ADDS = plan_adds() if LSUM == 3 else {}
def add_items(g, gp, fin, pro):
    out = []
    for b, qb, idx, gabs in ADDS.get((g, gp), []):
        if fin and b == 0 and g >= 23: continue
        if pro and b == 1: continue
        out.append(valu("v_add_f32", v_l1[qb], v_l1[qb], v_S[b][qb * 8 + idx]))
    return out
ftok = {}
def att_group(par, g, do_mfma=True, do_mem=True, do_cvt=True, last=False, pp=None, xmem=(), xsal=(), xvalu=None):
    ex, ad, cv = sm_items(g)
    mem = []
    sal = []
    fin = (pp == 3)
    d = None
    if do_mem:
        if fin: sched = ([g + 3] if g + 3 < 16 else []) + ([g + 11] if 13 <= g <= 20 else [])
        else: sched = read_sched(g)
        for f in sched:
            r = frag_reads(par, f); mem += r; ftok[f % 32] = r
        if pp is None or (g <= 4 and pp <= 2) or (g >= 29 and pp <= 1):
            sal, d = att_dma(par, g)
            if d is not None: mem.append(d)
    loop = do_mem and pp is None
    post0 = []
    if loop and par == 0:
        if g == 14: mem.append(I("global_load_dword %s, %s, %s" % (v_c, v_tch, s_pfc), "vmem", rd=v_tch.regs() + s_pfc.regs(), wr=[]))
        if g == 13: mem.append(I("buffer_load_ubyte %s, %s, %s, %s offen sc1" % (v_flag, v_fa, S_DBG, s_t2), "vmem", rd=S_DBG.regs() + s_t2.regs() + v_fa.regs(), wr=[]))
        if g == 8: sal = sal + [scmp("s_cmp_le_u32", s_cnt, ROT)]
        if g in (9, 10, 11, 12):
            q_ = [s_pfc] + s_pf
            sal = sal + [salu("s_cselect_b64", q_[g - 9], q_[g - 8], q_[g - 9], scc_w=False, scc_r=True)]
        if g == 0: post0 = [valu("v_cmp_eq_u32", "vcc", 1, v_flag)]
        if g == 2: sal = sal + [raw("s_cmp_eq_u32 vcc_lo, -1", "salu", rd=["vcc"], wr=["scc"])]
        if g == 3: sal = sal + [salu("s_cselect_b32", s_t0, s_cnt, -1, scc_w=False, scc_r=True)]
        if g == 4: sal = sal + [scmp("s_cmp_eq_u32", s_t0, ROT - 1)]
        if g == 5: sal = sal + [salu("s_cselect_b64", s_pf[3], s_pfH, s_pf[3], scc_w=False, scc_r=True)]
        if g == 15: sal = sal + [salu("s_cselect_b64", s_pf[3], S_K[(0, 2)], s_pf[3], scc_w=False, scc_r=True)]
        if g == 20: sal = sal + [scmp("s_cmp_eq_u32", s_cnt, KVIT + 1)]
        if g == 21: sal = sal + [salu("s_cselect_b64", s_pfc, s_kvt, S_K[(0, 2)], scc_w=False, scc_r=True)]
        if g == 13: sal = sal + [salu("s_cselect_b32", s_t2, s_fo, 256, scc_w=False, scc_r=True)]
        if g == 18: sal = sal + [scmp("s_cmp_eq_u32", s_cnt, s_sig)]
        if g == 19: sal = sal + [raw("s_cbranch_scc1 L_sigH_side", rd=["scc"]), Lbl("L_sigH_ret")]
    if loop and POI and par == 0 and do_mfma:
        if g == 22: sal = sal + [salu("s_add_u32", s_po1, s_po0, 65536)]
        if g == 16: mem.append(bstore(a_poi, v_lin, S_SP, s_po0, mod="sc1"))
        if g == 27: mem.append(bstore(a_poi, v_lin, S_SP, s_po1, mod="sc1"))
        if g == 23: sal = sal + [salu("s_add_u32", s_po0, s_po0, 1024)]
        if g == 24: sal = sal + [salu("s_min_u32", s_po0, s_po0, s_poe)]
    if do_mem and g == 4 and d is not None: lastdma[0] = d
    mem += list(xmem); sal = sal + list(xsal)
    gaps = [[], [], [], []]
    if g == 29 and do_mem and not fin:
        if STAMP == 2 and loop and do_mfma: gaps[0] += [LoopStamp(0, par)]
        gaps[0] += [Wait(lg0=True) if not do_mfma else (Wait(lg0=True, vm0=True) if (pp is None and par == 1) else Wait(lg0=True, vm=lastdma[0]))]
        if STAMP == 2 and loop and do_mfma: gaps[0] += [LoopStamp(1, par)]
        gaps[0] += [raw("s_barrier")]
        if STAMP == 2 and loop and do_mfma: gaps[0] += [LoopStamp(2, par)]
    gaps[0] += sal
    if g == 6 and do_mem and (pp is None or pp <= 1): gaps[0].append(salu("s_add_u32", s_kK, s_kK, 16384))
    if g == 7 and do_mem and (pp is None or pp <= 1): gaps[0].append(salu("s_add_u32", s_kV, s_kV, 16384))
    sm = not (fin and g >= 23)
    if fin and g > 23: do_cvt = False
    if fin and 16 <= g < 24: do_mfma = False
    if LSUM:
        if sm: gaps[0].append(ex[0])
        gaps[1] += mem[0:2] if len(mem) > 2 else mem[0:1]
        gaps[1] += post0
        nf = (g + 1) % 32
        if do_mem and not (fin and (16 <= nf < 24 or nf == 0)): gaps[2].append(Wait(lg=ftok.get(nf)))
        if last and g == 30: gaps[2].append(salu("s_sub_u32", s_cnt, s_cnt, 1))
        if sm: gaps[2].append(ex[1])
        gaps[3] += mem[2:] if len(mem) > 2 else mem[1:]
        pro = not do_mfma and not fin
        gaps[1] += add_items(g, 1, fin, pro)
        if do_cvt: gaps[1 if len([x for x in gaps[1] if x not in ()]) - len(add_items(g, 1, fin, pro)) < 2 else 3].append(cv)
        gaps[3] += add_items(g, 3, fin, pro)
    else:
      gaps[0] += mem[2:3]
      if sm: gaps[0].append(ex[0])
      if len(mem) > 0: gaps[1].append(mem[0])
      if len(mem) == 0 and do_cvt: gaps[1].append(cv)
      if sm: gaps[1].append(ad[0])
      gaps[1] += post0
      nf = (g + 1) % 32
      if do_mem and not (fin and (16 <= nf < 24 or nf == 0)): gaps[2].append(Wait(lg=ftok.get(nf)))
      if last and g == 30: gaps[2].append(salu("s_sub_u32", s_cnt, s_cnt, 1))
      gaps[2] += mem[3:]
      if sm: gaps[2].append(ex[1])
      if len(mem) > 1: gaps[3].append(mem[1])
      if len(mem) > 0 and do_cvt: gaps[3].append(cv)
      if sm: gaps[3].append(ad[1])
    for qb in range(4):
        if do_mfma:
            if g < 8 or 16 <= g < 24:
                b = 1 if g < 8 else 0
                kb, ds = (g >> 2) & 1, g & 3
                d = v_S[b][(qb * 8 + kb * 4, 4)]
                e(mfma(d, fr(g), Qf(qb, ds), v_negm[(qb * 4, 4)] if ds == 0 else d))
            else:
                b = 0 if g < 16 else 1
                e(mfma(Of(g & 7, qb), fr(g), v_S[b][(qb * 8, 4)], Of(g & 7, qb)))
        else:
            if (qb & 1) and not gaps[qb][:1] or ((qb & 1) and getattr(gaps[qb][0], "kind", "") in ("valu",)): e(nop(0))
        for it in gaps[qb]: e(it)
        if xvalu is not None:
            c = 2 - sum(1 for it in gaps[qb] if getattr(it, "kind", "") in ("lds", "vmem", "dma", "valu"))
            while xvalu and c > 0:
                it = xvalu.pop(0); e(it); c -= 2 if it.kind == "trans" else 1
    if LSUM and do_mfma and (g & 8):
        k = g & 7
        lq = (k if k < 4 else None) if (fin and g >= 24) else (k >> 1 if k & 1 else None)
        if lq is not None and (LSUM != 3 or lq < LQ): e(mfma(a_L[(4 * lq, 4)], a_ones, v_S[0 if g < 16 else 1][(lq * 8, 4)], a_L[(4 * lq, 4)]))
    if LSUM == 3: e(add_items(g, 4, fin, not do_mfma and not fin))

pr = [dsread("ds_read_b128", fr(f), v_ka[f & 3], (f >> 2) * 4096) for f in range(8)]
for r in pr: e(r)
zr = [valu("v_mov_b32", v_acc[i], 0) for i in range(2 * NZ0, 128)]
for f in range(8):
    em.wait(lg=pr[f])
    for qb in range(4):
        d = v_S[0][(qb * 8 + (f >> 2) * 4, 4)]
        e(mfma(d, fr(f), Qf(qb, f & 3), 0 if (f & 3) == 0 else d))
        if qb == 0 and HST == 0: e(hst[f])
        if qb == 2 and f == 0:
            e(raw("s_mov_b64 exec, 3", "salu", wr=["exec"])); e(bstore(v_acc[0], V(3), S_FLZ, s_myfl, mod="sc1")); e(raw("s_mov_b64 exec, -1", "salu", wr=["exec"]))
        for _ in range(2):
            if zr: e(zr.pop(0))
assert not zr
e(salu("s_mov_b32", s_kK, 16384 + 8192, scc_w=False)); e(salu("s_mov_b32", s_kV, 16384, scc_w=False)); e(salu("s_mov_b32", s_cnt, NITER, scc_w=False))
e(scmp("s_cmp_lg_u32", s_retry, 0)); e(raw("s_cbranch_scc1 L_have_max2", rd=["scc"]))
e(nop(3))
mx = [V(97 + 4 * i) for i in range(4)]; mt = [V(98 + 4 * i) for i in range(4)]
for qb in range(4): e(valu("v_max3_f32", mx[qb], v_S[0][qb * 8], v_S[0][qb * 8 + 1], v_S[0][qb * 8 + 2]))
for qb in range(4): e(valu("v_max3_f32", mx[qb], mx[qb], v_S[0][qb * 8 + 3], v_S[0][qb * 8 + 4]))
for qb in range(4): e(valu("v_max3_f32", mx[qb], mx[qb], v_S[0][qb * 8 + 5], v_S[0][qb * 8 + 6]))
for qb in range(4): e(valu("v_max_f32", mx[qb], mx[qb], v_S[0][qb * 8 + 7]))
red4("v_max_f32", mx, mt)
for qb in range(4):
    for k in range(4): e(valu("v_sub_f32", v_negm[qb * 4 + k], 0, mx[qb]))
em.label("L_have_max2")
e(nop(3))
for qb in range(4):
    for k in range(8): e(valu("v_add_f32", v_S[0][qb * 8 + k], v_S[0][qb * 8 + k], v_negm[qb * 4]))
for g in range(23, 29): att_group(1, g, do_mfma=False, do_mem=False, do_cvt=(g != 23))
stamp(); diag()
e(salu("s_and_b32", s_t0, s_qb, 3)); e(salu("s_sub_u32", s_t0, NITER - 1, s_t0))
e(scmp("s_cmp_eq_u32", s_w, 0)); e(salu("s_cselect_b32", s_sig, s_t0, -1, scc_w=False, scc_r=True))
e(scmp("s_cmp_eq_u32", s_retry, 0)); e(salu("s_cselect_b32", s_sig, s_sig, -1, scc_w=False, scc_r=True))
e(salu("s_mov_b64", s_pfc, S_K[(0, 2)], scc_w=False))
if POI:
    e(salu("s_lshl_b32", s_po0, s_w, 4)); e(salu("s_add_u32", s_po0, s_po0, s_g)); e(salu("s_lshl_b32", s_po0, s_po0, 13))
    e(salu("s_add_u32", s_poe, s_po0, 7168))
e(scmp("s_cmp_lt_u32", s_w, 2)); e(salu("s_cselect_b64", s_kvt, S_K[(0, 2)], S_V[(0, 2)], scc_w=False, scc_r=True))
e(salu("s_and_b32", s_t0, s_w, 1)); e(sx(s_t1)); e(salu("s_lshl_b32", s_t1, s_t1, 1)); e(salu("s_add_u32", s_t0, s_t0, s_t1)); e(salu("s_lshl_b32", s_t0, s_t0, 13))
if MAP2: e(salu("s_add_u32", s_t0, s_t0, 262144))
e(salu("s_add_u32", s_kvt[0], s_kvt[0], s_t0)); e(salu("s_addc_u32", s_kvt[1], s_kvt[1], 0, scc_r=True))
for g in range(29, 32): att_group(1, g, do_mfma=False, do_mem=True)
pro_end = len(em.out)
em.directive(".p2align 6")
em.label("L_att_loop")
def body():
    for par in range(2):
        for g in range(32): att_group(par, g, last=(par == 1))
b0 = len(em.out)
body()
b1 = len(em.out)
e(scmp("s_cmp_lg_u32", s_cnt, 0)); e(raw("s_cbranch_scc1 L_att_loop", rd=["scc"]))
b2 = len(em.out)
body()
second = em.out[b2:]; del em.out[b2:]
assert [i.text for i in second] == [i.text for i in em.out[b0:b1]], "loop not in steady state"
loop_probs = check_hazards(em.out[b1 - 40:b2] + second[:60], "loop-wrap")

em.label("L_tail")
v_ring2 = V(64, 32); v_B2 = V(96, 32)
QH = int(os.environ.get('QH', '0'))
XY = int(os.environ.get('XY', '0'))
NF1 = int(os.environ.get('NF1', '8'))
def hreg(kk, qb):
    if QH and 8 <= kk < 12: return A(16 * (kk - 8) + qb * 4, 4)
    if QH and kk >= 12: kk -= 4
    if kk >= 8: kk -= 8
    return A((64 + 16 * kk if kk < 4 else 160 + 16 * (kk - 4)) + qb * 4, 4)
def Facc(u, qb):
    t = u * 4 + qb
    return A(128 + 4 * t if t < 8 else 224 + 4 * (t - 8), 4)
POS2 = [5, 0, 2, 3, 4, 1]
NB = int(os.environ.get("NB", "4"))
def pos2(m): return 6 + m if m < NB else POS2[(m - NB) % 6]
def kind2(m):
    if m < NF1: return ("F", m)
    if m < NF1 + 32: return ("O", (m - NF1) & 15, (m - NF1) >> 4) if XY else ("O", (m - NF1) >> 1, (m - NF1) & 1)
    return ("F", m - 32)
def s2_dma(m):
    if m >= 46: return None
    p = pos2(m); k = kind2(m)
    if k[0] == "O":
        return [m0set(p), salu("s_mov_b32", s_off, k[1] * 32 * 1024 + 128 * k[2], scc_w=False)], [dma(v_dA[j], S_WO, s_off, j * 1024) for j in range(4)]
    return [m0set(p), salu("s_mov_b32", s_off, k[1] * 32 * 1024, scc_w=False)], [dma(v_dB[j], S_WD, s_off, j * 1024) for j in range(4)]
dtok2 = {}; s2pre = {}
for m in range(6 + NB):
    s2pre[m] = s2_dma(m); dtok2[m] = s2pre[m][1][3]
class Seq:
    kind = "vmem"
    def __init__(self, l): self.l = l
    def __call__(self): return self.l
hld = {}; htok = {}
for kk in range(14):
    hld[kk] = [bload(hreg(kk, qb), v_lin, S_HC, s_hl, off=qb * 1024, mod="sc1") for qb in range(4)]
    htok[kk] = hld[kk][3]
e(salu("s_mov_b32", s_cnt, 0, scc_w=False))
em.label("L_pollH")
e(valu("v_cmp_ne_u32", "vcc", 1, v_flag)); e(salu("s_mul_i32", s_hb, s_w, 14 * 4096, scc_w=False)); e(nop(1))
e(raw("s_cbranch_vccz L_pollH_done", rd=["vcc"]))
e(salu("s_add_u32", s_cnt, s_cnt, 1)); e(scmp("s_cmp_ge_u32", s_cnt, 50000)); e(raw("s_cbranch_scc1 L_pollH_done", rd=["scc"]))
e(raw("s_sleep 4")); e(raw("buffer_load_ubyte %s, %s, %s, %s offen sc1" % (v_flag, v_fa, S_DBG, s_fo))); e(raw("s_waitcnt vmcnt(0)")); e(raw("s_branch L_pollH"))
em.label("L_pollH_done")
xaddr(V(39), V(0))
assert LSUM == 1
xsl = [bload(V(40 + 2 * u, 2), V(39), S_XC, 0, off=32 * u, n=2) for u in range(4)]
NH0 = 32
hsl = sorted([(pp, g) for pp in range(3) for g in (5, 13, 14, 15, 16, 17, 18, 27, 28, 9, 11)])[:NH0]
if QH:
    hsl += [(3, g) for g in list(range(8, 16)) + list(range(24, 32))]; NH0 = 48
px = {}
for k, key in enumerate(hsl):
    px.setdefault(key, ([], []))
    px[key][0].append(hld[k >> 2][k & 3])
    if k & 3 == 0: px[key][1].append(salu("s_add_u32", s_hl, s_hb, (k >> 2) * 4096))
for u in range(4): px.setdefault((int(os.environ.get('XSP', '3')), int(os.environ.get('XSG0', '13')) + u), ([], []))[0].append(xsl[u])
wsl = [(pp, g) for pp in range(2) for g in (6, 7, 8, 10, 12, 21, 22, 23)][:4 * NB] + [(2, 29), (2, 30), (2, 31), (3, 0), (3, 1), (3, 2), (3, 3), (3, 4)] + ([(2, g) for g in (6, 7, 8, 10, 12, 21, 22, 23)] if QH else [(3, g) for g in range(5, 13)]) + [(3, g) for g in range(24, 32)]
for k, key in enumerate(wsl):
    px.setdefault(key, ([], []))
    m, j = k >> 2, k & 3
    px[key][0].append(s2pre[m][1][j])
    if j == 0: px[key][1].extend(s2pre[m][0])
px[(3, 24)][1][:0] = [Wait(lg0=True), raw("s_barrier")]
lt = [V(48 + i) for i in range(4)]
NPK = int(os.environ.get("NPK", "0"))
rinv = [V(52 + i) for i in range(4)]
vxf = V(40, 8)
save = em.out; em.out = []
for qb in range(4): e(valu("v_accvgpr_read_b32", lt[qb], a_L[4 * qb]))
e(valu("v_add_f32", V(60), lt[0], lt[1])); e(valu("v_add_f32", V(61), lt[2], lt[3])); e(valu("v_add_f32", V(60), V(60), V(61)))
for qb in range(4): e(valu("v_rcp_f32", rinv[qb], lt[qb]))
e(valu("v_cmp_nge_f32", "vcc", hx(f2u(2.0 ** 30)), V(60)))
v_tr2 = V(56, 4); v_ow = V(62)
for u in range(4): e(valu("v_subrev_u32", v_tr2[u], RING, v_tr[0][u]))
e(valu("v_subrev_u32", v_ow, RING, v_lin)); e(valu("v_add_u32", v_ow, s_m0b, v_ow))
lred = em.out; em.out = save
for pp in range(4):
    for g in range(32):
        if STAMP == 4 and g in (0, 16): stamp()
        xm, xs = px.get((pp, g), ([], []))
        att_group(pp & 1, g, pp=pp, xmem=xm, xsal=xs, xvalu=(lred if (pp == 3 and g >= (30 if LSUM else 24)) else None))
for it in lred: e(it)
diag(); stamp()
if DUMP == "o":
    e(nop(7))
    for db in range(8):
        for qb in range(4):
            for k in range(4): e(valu("v_mul_f32", Of(db, qb)[k], Of(db, qb)[k], rinv[qb]))
    dump_regs([v_acc[i] for i in range(128)])

vm_ = V(60); vma = V(61)
class Mark:
    kind = "salu"
    def __init__(self, t): self.t = t
    def __call__(self):
        e(raw("s_cbranch_vccz L_nomark", rd=["vcc"])); e(valu("v_mov_b32", self.t, hx(MARK))); em.label("L_nomark"); return []
norm = [valu("v_and_b32", vma, 3, v_lane), valu("v_lshlrev_b32", vma, 12, vma)]
ow = []; ncv = []
NPK_N = int(os.environ.get("NPK_N", "16")) if NPK else 0
for i in range(4):
    for qb in range(4):
        t = Of(2 * i, qb)
        for b in range(2):
            if i * 4 + qb < NPK_N:
                rp = V(52 + (qb & ~1), 2)
                for k in range(2): norm.append(valu("v_pk_mul_f32", Of(2 * i + b, qb)[(2 * k, 2)], Of(2 * i + b, qb)[(2 * k, 2)], rp, mod="op_sel:[0,%d] op_sel_hi:[1,%d]" % (qb & 1, qb & 1)))
            else:
                for k in range(4): norm.append(valu("v_mul_f32", Of(2 * i + b, qb)[k], Of(2 * i + b, qb)[k], rinv[qb]))
        for b in range(2):
            o = Of(2 * i + b, qb)
            for k in range(2): norm.append(valu("v_cvt_pk_bf16_f32", t[2 * b + k], o[2 * k], o[2 * k + 1]))
        ncv.append(norm[-1])
        if i == 0 and qb == 0: norm.append(Mark(t[0]))
        ow.append(dswrite("ds_write_b128", v_ow, t, i * 16384 + qb * 1024))
        if NB == 0: norm.append(ow[-1])
if NPK_N:
    cut = norm.index(ncv[NPK_N - 1]) + 1
    e(nop(4))
    for it in norm[:cut]: e(it)
    norm = norm[cut:]
class ChkNorm:
    def __init__(self, k): self.k = k
    def __call__(self):
        assert ncv[self.k].tok, "O write %d scheduled before its data" % self.k
        return ow[self.k]
G0 = 4 * NF1
G1 = G0 + 128
mk = dsread("ds_read_b32", vm_, vma, 0)
class OBar:
    def __call__(self):
        assert all(w.tok for w in ow)
        em.wait(lg0=True); e(raw("s_barrier")); stamp(); e(mk); return []
class FbCheck:
    def __call__(self):
        em.wait(lg=mk)
        e(valu("v_cmp_eq_u32", "vcc", hx(MARK), vm_))
        e(scmp("s_cmp_lg_u32", s_retry, 0)); e(raw("s_cbranch_scc1 L_nofb", rd=["scc"]))
        e(nop(1))
        e(raw("s_cbranch_vccnz L_fallback", rd=["vcc"]))
        em.label("L_nofb")
        return []
def s2_acc(m, u, qb):
    k = kind2(m)
    if k[0] == "O": return v_acc[(((k[2] * 4 + u) * 4 + qb) * 4, 4)], k[1] == 0
    return Facc(u, qb), k[1] == 0
def s2_B(m, qb):
    k = kind2(m)
    if k[0] == "O": return v_B2[((k[1] & 1) * 16 + qb * 4, 4)]
    return hreg(k[1], qb)
def oread(s, qb): return dsread("ds_read_b128", v_B2[((s & 1) * 16 + qb * 4, 4)], v_lin, (s & 3) * 16384 + (s >> 2) * 4096 + qb * 1024)
extra = {}
if NB:
    OW0 = int(os.environ.get("OW0", "11")); OWN = int(os.environ.get("OWN", "1"))
    for k in range(16):
        gg = OW0 + k // OWN
        assert (k >> 2) >= NB or gg > 4 * (k >> 2) + 3
        extra.setdefault(gg, []).append((2 + (k % OWN) % 2, ChkNorm(k), 1))
GB = G0 - int(os.environ.get("OBAR", "3"))
extra.setdefault(GB, []).append((0, OBar(), 0))
r0 = [oread(0, qb) for qb in range(4)]
for qb in range(4): extra.setdefault(GB + (qb >> 1), []).append((1 + (qb & 1) if qb < 2 else (qb & 1) * 2, r0[qb], 1))
extra.setdefault(G0 - 1, []).append((2, [Wait(lg=r0), FbCheck()], 0))
if XY:
    for mm in range(1, 32):
        rr = [oread(mm & 15, qb) for qb in range(4)]
        for qb in range(4): extra.setdefault(G0 + 4 * (mm - 1) + (qb >> 1), []).append((2 + (qb & 1), rr[qb], 1))
        extra.setdefault(G0 + 4 * mm - 1, []).append((2, Wait(lg=rr), 0))
else:
    for s_ in range(1, 16):
        for qb in range(4): extra.setdefault(G0 + 8 * (s_ - 1) + 1 + qb, []).append((2, oread(s_, qb), 1))
class LateWait:
    def __init__(self, f): self.f = f
    def __call__(self): return Wait(vm=self.f())
vxa = V(48); vpoll = V(49); vfw = V(50)
vx, vy, vz = V(63), V(57), V(58)
save = em.out; em.out = []
xaddr(vxa, vx)
e(valu("v_and_b32", V(51), 7, v_lane)); e(valu("v_lshlrev_b32", V(51), 2, V(51)))
e(valu("v_add_u32", vfw, s_m0b, v_lin)); e(salu("s_lshl_b32", s_t0, s_w, 14)); e(salu("s_add_u32", s_t0, s_t0, RING)); e(valu("v_add_u32", V(55), s_t0, v_lin))
e(salu("s_lshl_b32", s_t3, s_w, 4)); e(salu("s_add_u32", s_t3, s_t3, s_g)); e(salu("s_lshl_b32", s_t3, s_t3, 13))
early = em.out; em.out = save
extra.setdefault(-1, []).append((0, LateWait(lambda: htok[0]), 0))
for kk in range(1, 14):
    g_ = 4 * kk if kk < NF1 else 4 * (kk + 32)
    extra.setdefault(g_ - 1, []).append((2, LateWait(lambda kk=kk: htok[kk]), 0))
HG0 = int(os.environ.get("HG0", "5")); HGS = int(os.environ.get("HGS", "1"))
for k in range(NH0, 56):
    prev = (k >> 2) - (12 if QH else 8)
    gfree = (4 * prev if prev < NF1 else 4 * (prev + 32)) + 5 + (k & 3)
    extra.setdefault(max(gfree, HG0 + HGS * (k - NH0)), []).append((2, Seq([salu("s_add_u32", s_hl, s_hb, (k >> 2) * 4096), hld[k >> 2][k & 3]]), 1))
def sreg(ip, qb, odd=0): return v_acc[(((2 * ip + odd) * 4 + qb) * 4, 4)]
SPV_ = int(os.environ.get('SPV', '1'))
sp = []; spst = []; stq = []
s_oob = S(19)
if os.environ.get("NOST") or os.environ.get("NOLD"): e(salu("s_mov_b32", s_oob, 524288, scc_w=False))
NSI = int(os.environ.get("NSI", "11"))
s_so = [s_t1, s_cnt, s_h0, s_h1]
for k in range(4): sp.append(salu("s_add_u32", s_so[k], s_t3, (k >> 1) * 65536 + (k & 1) * 4096))
for ip in range(4):
    for qb in range(4):
        t = sreg(ip, qb)
        for b in range(2):
            o = sreg(ip, qb, b)
            for k in range(2): sp.append(valu("v_cvt_pk_bf16_f32", t[2 * b + k], o[2 * k], o[2 * k + 1]))
        st = bstore(t, v_lin, S_SP, s_so[(ip >> 1) * 2 + (qb >> 1)], off=(qb & 1) * 2048 + (ip & 1) * 1024, mod="sc1")
        if os.environ.get("NOST") and not (ip == 3 and qb == 3): st = bstore(t, v_lin, S_SP, s_oob, off=0)
        spst.append((st, sp[-1]))
class St:
    def __init__(self, k): self.k = k
    def __call__(self):
        assert spst[self.k][1].tok
        return spst[self.k][0]
STG = int(os.environ.get("STG", "2"))
if XY:
    GY = G0 + 64
    XS0 = int(os.environ.get("XS0", "4")); XSG = int(os.environ.get("XSG", "5")); XFL = int(os.environ.get("XFL", "60"))
    for k in range(8): extra.setdefault(GY + XS0 + XSG * k, []).append((1, St(k), 1))
    class XFlag:
        def __call__(self): em.wait(vm=spst[7][0]); return flag_store(0)
    extra.setdefault(GY + XFL, []).append((1, XFlag(), 1))
    NSI = int(os.environ.get("NSI", "16"))
    for k in range(8, NSI): extra.setdefault(G1 + 3 + STG * (k - 8), []).append((2, St(k), 1))
    hx_ = sp.index(spst[7][1]) + 1
    spf = [Fill(sp[:hx_], GY + 2, GY + 14), Fill(sp[hx_:], G1 + 2, G1 + 10)]
else:
    for k in range(NSI): extra.setdefault(G1 + 3 + STG * k, []).append((2, St(k), 1))
    spf = [Fill(sp, G1 + 2, G1 + int(os.environ.get("CVL", "16")))]
if POI:
    assert not XY and SPV_
    hint = [valu("v_mov_b32", V(57), 2), valu("v_lshlrev_b32", V(58), 7, v_lane), raw("s_mov_b64 exec, 3", "salu", wr=["exec"]),
            bstore(V(57), V(58), S_FL, s_myfl, mod="sc1"), raw("s_mov_b64 exec, -1", "salu", wr=["exec"])]
    extra.setdefault(G1 + int(os.environ.get("HINT", "4")), []).append((1, hint, 1))
FLG = int(os.environ.get("FLG", "0"))
if FLG:
    assert NSI == 16
    class YFlag:
        def __call__(self):
            em.wait(vm=spst[-1][0]); stamp()
            e(([] if XY else flag_store(0)) + flag_store(1))
            if MIDPOST == 5: static_loads()
            return []
    extra.setdefault(G1 + FLG, []).append((1, YFlag(), 1))
sti = [NSI]
def st_next(n=1):
    for _ in range(n):
        if sti[0] < 16: e(spst[sti[0]][0]); sti[0] += 1
def flag_store(h):
    return [valu("v_mov_b32", v_t, 1), raw("s_mov_b64 exec, 1", "salu", wr=["exec"]), bstore(v_t, None, S_FL, s_myfl, off=128 * h, mod="sc1"), raw("s_mov_b64 exec, -1", "salu", wr=["exec"])]
vpa = V(51)
s_done, s_new, s_sb = s_kK, s_kV, s_fo
SPV = int(os.environ.get("SPV", "1"))
def spl(gp, i): return sreg(gp >> 1, (gp & 1) * 2 + i, 0) if SPV else A((gp * 2 + i) * 4, 4)
def flag_load(): return bload(vpoll, vpa, S_FL, s_t2, n=1, mod="sc1")
lblc = [0]
def issue_new():
    k = lblc[0]; lblc[0] += 1
    e(valu("v_cmp_eq_u32", "vcc", 1, vpoll)); e(nop(1))
    e(raw("s_andn2_b32 %s, vcc_lo, %s" % (s_new, s_done), "salu", rd=["vcc", s_done], wr=[s_new, "scc"])); e(salu("s_and_b32", s_new, s_new, 255))
    e(raw("s_cbranch_scc0 L_in%d_end" % k, rd=["scc"]))
    e(salu("s_or_b32", s_done, s_done, s_new))
    for gp in range(8):
        e(scmp("s_bitcmp1_b32", s_new, gp)); e(raw("s_cbranch_scc0 L_in%d_%d" % (k, gp), rd=["scc"]))
        e(salu("s_add_u32", s_t0, s_sb, gp * 8192) if not os.environ.get("NOLD") else salu("s_mov_b32", s_t0, s_oob, scc_w=False))
        for i in range(2): e(raw(bload(spl(gp, i), v_lin, S_SPC, s_t0, off=i * 1024, mod="sc1").text))
        em.label("L_in%d_%d" % (k, gp))
    em.label("L_in%d_end" % k)
def static_loads():
    e(valu("v_cmp_eq_u32", "vcc", 1, vpoll)); e(nop(1))
    e(raw("s_and_b32 %s, vcc_lo, 255" % s_done, "salu", rd=["vcc"], wr=[s_done, "scc"]))
    for gp in range(8):
        e(salu("s_add_u32", s_t0, s_sb, gp * 8192)); e(scmp("s_bitcmp1_b32", s_done, gp)); e(salu("s_cselect_b32", s_t0, s_t0 if not os.environ.get("NOLD") else s_oob, 524288, scc_w=False, scc_r=True))
        for i in range(2): e(bload(spl(gp, i), v_lin, S_SPC, s_t0, off=i * 1024, mod="sc1"))
pinit = [salu("s_lshl_b32", s_t2, s_cq, 3), salu("s_add_u32", s_t2, s_t2, s_cg), salu("s_lshl_b32", s_t2, s_t2, 7), salu("s_mov_b32", s_done, 0, scc_w=False),
         salu("s_lshl_b32", s_sb, s_cg, 16), salu("s_lshl_b32", s_new, s_w, 11), salu("s_add_u32", s_sb, s_sb, s_new)]
extra.setdefault(G1 - 8, []).append((1, pinit, 0))
class MidPoll:
    def __init__(self, tok): self.tok = tok
    def __call__(self):
        em.wait(vm=self.tok); issue_new()
        e(salu("s_mov_b32", s_hb, s_done, scc_w=False))
        midmark.append(em.vm_total)
        return []
midmark = []
if int(os.environ.get("MID", "1")):
    pt = flag_load()
    MIDPOST = int(os.environ.get("MIDPOST", "2"))
    if MIDPOST == 4: extra.setdefault(184 - int(os.environ.get("MID4", "6")), []).append((2, pt, 1))
    else: extra.setdefault(G1 - int(os.environ.get("MID0", "-4")), []).append((2, pt, 1))
    if not MIDPOST: extra.setdefault(G1 + int(os.environ.get("MID1", "3")), []).append((0, MidPoll(pt), 0))
    elif MIDPOST != 4 and int(os.environ.get("MID0", "-4")) > 0: extra.setdefault(G1 + 2, []).append((0, Wait(vm=pt), 0))
    if MIDPOST == 3:
        extra[G1 + 2].pop(); extra[G1 - int(os.environ.get("MID0", "-4"))].pop()
if STAMP: extra.setdefault(G1, []).append((0, Stamp(), 0))
if STAMP == 5:
    for g_ in (0, 8, 16, 24): extra.setdefault(g_, []).append((0, Stamp(), 0))
class Diag:
    def __call__(self): diag(); return []
if DIAG: extra.setdefault(G1, []).append((0, Diag(), 0))
vs = [Fill(norm, 0, GB - (3 if NB else 1)), Fill(early, G0 + 2, G0 + 40)] + spf
run_stream(46, s2_dma, dtok2, s2_acc, s2_B, extra, vs, posf=pos2, ring=v_ring2, first_dma=6 + NB, tr2=v_tr2, early_dma=int(os.environ.get('ED2', '0')), w2=lambda g: int(os.environ.get('W2B', '1')) and g < 28)
stamp(); diag()
if MIDPOST == 4:
    em.wait(vm=pt); static_loads()
if MIDPOST == 3:
    st_next(16); fl3 = e(flag_load())
e(nop(5))
for qb in range(4):
    for u in range(4):
        if len(em.lgq) >= 12: em.wait(lg=em.lgq[-12])
        e(dswrite("ds_write_b128", vfw, Facc(u, qb), qb * 16384 + u * 1024))
    if qb & 1: st_next(int(os.environ.get("STW", "1")))
if MIDPOST == 6:
    st_next(16); em.wait(vm=spst[-1][0]); stamp(); e(flag_store(0) + flag_store(1)); static_loads()
v_fr = V(96, 16); vE = V(64, 16); vs_ = V(80, 16)
for k in range(8): e(valu("v_mov_b64", vs_[(2 * k, 2)], 0))
if MIDPOST == 3:
    em.wait(vm=fl3); stamp()
    if not XY: e(flag_store(0))
    e(flag_store(1))
    static_loads()
em.wait(lg0=True)
e(raw("s_barrier"))
def frr(ws_, u): return sreg(ws_, u, 1)
for ws_ in range(4):
    for u in range(4):
        if len(em.lgq) >= 14: em.wait(lg=em.lgq[-14])
        e(dsread("ds_read_b128", frr(ws_, u), V(55), ws_ * 4096 + u * 1024))
st_next()
if MIDPOST:
    st_next(16)
    if MIDPOST == 1: static_loads()
em.wait(lg0=True)
for u in range(4):
    for k in range(2):
        e(valu("v_pk_add_f32", frr(0, u)[(2 * k, 2)], frr(0, u)[(2 * k, 2)], frr(1, u)[(2 * k, 2)]))
        e(valu("v_pk_add_f32", frr(2, u)[(2 * k, 2)], frr(2, u)[(2 * k, 2)], frr(3, u)[(2 * k, 2)]))
for u in range(4):
    for k in range(2): e(valu("v_pk_add_f32", v_fr[(4 * u + 2 * k, 2)], frr(0, u)[(2 * k, 2)], frr(2, u)[(2 * k, 2)]))
for k in range(16): e(valu("v_mul_f32", vE[k], hx(f2u(-math.log2(math.e))), v_fr[k]))
st_next()
for k in range(16): e(valu("v_exp_f32", vE[k], vE[k]))
for k in range(16): e(valu("v_add_f32", vE[k], "1.0", vE[k]))
st_next()
for k in range(16): e(valu("v_rcp_f32", vE[k], vE[k]))
for k in range(16): e(valu("v_mul_f32", v_fr[k], v_fr[k], vE[k]))
for k in range(8):
    e(valu("v_lshlrev_b32", vE[2 * k], 16, vxf[k])); e(valu("v_and_b32", vE[2 * k + 1], "0xffff0000", vxf[k]))
st_next()
stamp()
accn = [0]
def acc_pieces(mask, sprinkle=False):
    n = accn[0]; accn[0] += 1
    for gp in range(8):
        e(scmp("s_bitcmp1_b32", mask, gp)); e(raw("s_cbranch_scc0 L_acc%d_%d" % (n, gp), rd=["scc"]))
        if not SPV:
            for k2 in range(8): e(valu("v_accvgpr_read_b32", V(120 + k2), spl(gp, k2 >> 2)[k2 & 3]))
        for k in range(8):
            src = spl(gp, k >> 2)[k & 3] if SPV else V(120 + k)
            e(valu("v_lshlrev_b32", V(112 + 2 * (k & 3)), 16, src)); e(valu("v_and_b32", V(113 + 2 * (k & 3)), "0xffff0000", src))
            e(valu("v_pk_add_f32", vs_[(2 * k, 2)], vs_[(2 * k, 2)], V(112 + 2 * (k & 3), 2)))
        em.label("L_acc%d_%d" % (n, gp))
        if sprinkle and gp & 1: st_next()
if midmark:
    n_y = em.vm_total - midmark[0]
    e(raw("s_waitcnt vmcnt(%d)" % n_y, "wait")); em._retire(em.vmq, n_y)
    acc_pieces(s_hb, sprinkle=True)
st_next(16)
if POI:
    s_want = s_new
    e(salu("s_mov_b32", s_cnt, 0, scc_w=False)); e(salu("s_mov_b32", s_t1, hx(POISON), scc_w=False))
    if MIDPOST == 2: em.wait(vm=pt)
    stamp()
    em.label("L_fin_loop")
    e(valu("v_cmp_eq_u32", "vcc", 2, vpoll)); e(nop(1))
    e(raw("s_andn2_b32 %s, vcc_lo, %s" % (s_want, s_done), "salu", rd=["vcc", s_done], wr=[s_want, "scc"])); e(salu("s_and_b32", s_want, s_want, 255))
    for gp in range(8):
        e(scmp("s_bitcmp1_b32", s_want, gp)); e(raw("s_cbranch_scc0 L_pl_%d" % gp, rd=["scc"]))
        e(salu("s_add_u32", s_t0, s_sb, gp * 8192))
        for i in range(2): e(raw(bload(spl(gp, i), v_lin, S_SPC, s_t0, off=i * 1024, mod="sc1").text))
        em.label("L_pl_%d" % gp)
    e(raw(flag_load().text))
    e(raw("s_waitcnt vmcnt(0)", "wait")); em._retire(em.vmq, 0)
    for gp in range(8):
        e(scmp("s_bitcmp1_b32", s_want, gp)); e(raw("s_cbranch_scc0 L_pa_%d" % gp, rd=["scc"]))
        for k in range(8): e(valu("v_cmpx_ne_u32", "vcc", s_t1, spl(gp, k >> 2)[k & 3], extra_wr=["exec"]))
        e(nop(1))
        e(raw("s_cmp_eq_u64 exec, -1", "salu", rd=["exec"], wr=["scc"])); e(raw("s_mov_b64 exec, -1", "salu", wr=["exec"]))
        e(raw("s_cbranch_scc0 L_pa_%d" % gp, rd=["scc"]))
        e(salu("s_bitset1_b32", s_done, gp, scc_w=False))
        for k in range(8):
            src = spl(gp, k >> 2)[k & 3]
            e(valu("v_lshlrev_b32", V(112 + 2 * (k & 3)), 16, src)); e(valu("v_and_b32", V(113 + 2 * (k & 3)), "0xffff0000", src))
            e(valu("v_pk_add_f32", vs_[(2 * k, 2)], vs_[(2 * k, 2)], V(112 + 2 * (k & 3), 2)))
        em.label("L_pa_%d" % gp)
    e(salu("s_add_u32", s_cnt, s_cnt, 1)); e(scmp("s_cmp_ge_u32", s_cnt, 50000)); e(raw("s_cbranch_scc1 L_fin_done", rd=["scc"]))
    e(scmp("s_cmp_lg_u32", s_done, 255)); e(raw("s_cbranch_scc1 L_fin_loop", rd=["scc"]))
else:
    if MIDPOST != 2: e(flag_load())
    if MIDPOST not in (3, 6) and not FLG:
        em.wait(vm=spst[-1][0]); stamp()
        if not XY: e(flag_store(0))
        e(flag_store(1))
    if MIDPOST == 2:
        static_loads()
        if int(os.environ.get("FSL", "0")): e(raw("s_sleep %d" % int(os.environ.get("FSL"))))
        e(flag_load())
    s_prev = s_hl
    e(salu("s_mov_b32", s_prev, s_done if MIDPOST else 0, scc_w=False)); e(salu("s_mov_b32", s_cnt, 0, scc_w=False))
    em.label("L_fin_loop")
    em.wait(vm0=True)
    issue_new()
    e(raw(flag_load().text))
    acc_pieces(s_prev)
    e(salu("s_mov_b32", s_prev, s_new, scc_w=False))
    e(salu("s_add_u32", s_cnt, s_cnt, 1)); e(scmp("s_cmp_ge_u32", s_cnt, 50000)); e(raw("s_cbranch_scc1 L_fin_done", rd=["scc"]))
    e(scmp("s_cmp_lg_u32", s_prev, 0)); e(raw("s_cbranch_scc1 L_fin_loop", rd=["scc"]))
    e(scmp("s_cmp_lg_u32", s_done, 255)); e(raw("s_cbranch_scc1 L_fin_loop", rd=["scc"]))
em.label("L_fin_done")
if DUMP == "fin": dump_regs([vs_[i] for i in range(16)] + [v_fr[i] for i in range(16)])
for k in range(8): e(valu("v_pk_fma_f32", vE[(2 * k, 2)], vs_[(2 * k, 2)], v_fr[(2 * k, 2)], vE[(2 * k, 2)]))
for k in range(8): e(valu("v_cvt_pk_bf16_f32", vxf[k], vE[2 * k], vE[2 * k + 1]))
for u in range(4): e(bstore(vxf[(2 * u, 2)], vxa, S_OUT, 0, off=32 * u, mod=os.environ.get("OUTM", "")))
stamp(); diag_out()
em.label("L_end")
e(raw("s_endpgm"))
main_end = len(em.out)

em.lgq, em.vmq, em.pend = [], [], {}
em.label("L_sigH_side")
e(salu("s_lshl_b32", s_t1, s_qb, 3)); e(salu("s_add_u32", s_t1, s_t1, s_g))
e(raw("s_mov_b64 exec, 2", "salu", wr=["exec"]))
e(raw("buffer_store_byte %s, off, %s, %s sc1" % (v_fa, S_DBG, s_t1)))
e(raw("s_mov_b64 exec, -1", "salu", wr=["exec"]))
e(raw("s_branch L_sigH_ret"))
em.label("L_fallback")
e(raw("s_waitcnt vmcnt(0) lgkmcnt(0)")); em._retire(em.vmq, 0); em._retire(em.lgq, 0)
e(salu("s_mov_b32", s_retry, 1, scc_w=False))
e(salu("s_lshl_b32", s_t0, s_w, 6)); e(valu("v_add_u32", v_tid, s_t0, v_lane))
e(raw("s_barrier"))
e(raw("s_branch L_restart"))
em.label("L_maxpass")
e(raw("s_waitcnt vmcnt(0) lgkmcnt(0)"))
e(salu("s_mov_b32", s_retry, 2, scc_w=False))
e(salu("s_mov_b32", s_kK, 0, scc_w=False))
fm = [V(40 + i) for i in range(4)]
for i in range(4): e(valu("v_mov_b32", fm[i], "0xff800000"))
em.label("L_fb_loop")
e(raw("s_barrier"))
e(salu("s_add_u32", "m0", s_m0b, 4 * 16384)); e(nop(0))
for j in range(4): e(dma(v_kd[j], S_K, s_kK, j * 1024))
em.wait(vm0=True)
e(raw("s_barrier"))
for kb in range(4):
    rr = [e(dsread("ds_read_b128", fr(ds), v_ka[ds], kb * 4096)) for ds in range(4)]
    em.wait(lg0=True)
    for ds in range(4):
        for qb in range(4):
            d = v_S[0][(qb * 4, 4)]
            e(mfma(d, fr(ds), Qf(qb, ds), 0 if ds == 0 else d))
    e(nop(7))
    for qb in range(4):
        e(valu("v_max3_f32", fm[qb], fm[qb], v_S[0][qb * 4], v_S[0][qb * 4 + 1])); e(valu("v_max3_f32", fm[qb], fm[qb], v_S[0][qb * 4 + 2], v_S[0][qb * 4 + 3]))
    e(nop(2))
e(salu("s_add_u32", s_kK, s_kK, 16384)); e(scmp("s_cmp_lt_u32", s_kK, 524288)); e(raw("s_cbranch_scc1 L_fb_loop", rd=["scc"]))
red4("v_max_f32", fm, [V(44 + i) for i in range(4)])
for qb in range(4):
    for k in range(4): e(valu("v_sub_f32", v_negm[qb * 4 + k], 0, fm[qb]))
e(raw("s_barrier"))
for m in (64, 65, 66):
    sa, dm = s1_dma(m); e(sa)
    for d in dm: e(d)
e(raw("s_waitcnt vmcnt(0)"))
e(raw("s_branch L_att_start"))
em.label("L_code_end")
e(raw("s_endpgm"))

ALIGN8 = int(os.environ.get("ALIGN8", "0"))
import re as _re
def isize(i):
    t = i.text
    if i.kind == "label": return 0
    op = t.split()[0]
    if i.kind in ("mfma", "lds", "vmem", "dma") or op.startswith(("buffer_", "global_", "ds_", "s_load", "s_memtime", "s_memrealtime")): return 8
    lit = False
    for tok in _re.split(r"[ ,]+", t)[1:]:
        if _re.fullmatch(r"-?\d+", tok): lit |= not (-16 <= int(tok) <= 64)
        elif tok.startswith("0x"): lit |= not (int(tok, 16) <= 64)
        elif tok.startswith("L_") and not op.startswith(("s_cbranch", "s_branch")): lit = True
    if op.startswith("s_"):
        if op in ("s_waitcnt", "s_nop", "s_barrier", "s_sleep", "s_endpgm") or op.startswith(("s_cbranch", "s_branch")): return 4
        return 8 if lit else 4
    e32 = ("v_exp_f32", "v_rcp_f32", "v_sqrt_f32", "v_mov_b32", "v_mov_b64", "v_add_f32", "v_sub_f32", "v_mul_f32", "v_max_f32", "v_and_b32", "v_xor_b32", "v_lshlrev_b32", "v_lshrrev_b32",
           "v_add_u32", "v_sub_u32", "v_subrev_u32", "v_mul_u32_u24", "v_min_u32", "v_readfirstlane_b32", "v_permlane16_swap_b32", "v_permlane32_swap_b32")
    if op in e32 and "-v" not in t: return 8 if lit else 4
    if op.startswith("v_cmp") and t.split()[1].startswith("vcc"): return 8 if lit else 4
    return 8
WIDE = ("v_exp_f32", "v_rcp_f32", "v_add_f32", "v_mul_f32", "v_mov_b32", "v_sub_f32", "v_and_b32", "v_lshlrev_b32")
if ALIGN8:
    pos = 0; cand = None; nfix = 0; nmiss = 0
    for i in em.out:
        if i.kind == "label":
            if i.text.startswith(".p2align"): pos = 0; cand = None
            continue
        if i.kind == "mfma" and pos % 8:
            if cand is not None: cand.text = cand.text.replace(cand.text.split()[0], cand.text.split()[0] + "_e64", 1); pos += 4; nfix += 1
            else: nmiss += 1
        if i.kind == "mfma": cand = None
        sz = isize(i)
        if sz == 4 and i.text.split()[0] in WIDE: cand = i
        pos += sz
    print("; align8: widened %d, unfixed %d" % (nfix, nmiss), file=sys.stderr)
probs = check_hazards(em.out, "main") + loop_probs
for p in probs: print("; HAZARD", p, file=sys.stderr)
assert not probs

hdr = open(os.path.join(os.path.dirname(os.path.abspath(__file__)), "header.txt")).read()
print(hdr.rstrip())
print("; @launch grid=(256,1,1) block=(256,1,1) lds=163840")
print('.amdgcn_target "amdgcn-amd-amdhsa--gfx950"\n.text\n.globl %s\n.p2align 8\n.type %s,@function\n%s:' % (KN, KN, KN))
print(em.text())
print('.section .rodata,"a"\n.p2align 6\n.amdhsa_kernel %s' % KN)
print("  .amdhsa_next_free_vgpr 512\n  .amdhsa_next_free_sgpr 102\n  .amdhsa_accum_offset 256\n  .amdhsa_group_segment_fixed_size 0\n  .amdhsa_kernarg_size 96\n  .amdhsa_user_sgpr_count 2\n  .amdhsa_user_sgpr_kernarg_segment_ptr 1\n  .amdhsa_system_sgpr_workgroup_id_x 1\n.end_amdhsa_kernel")
```

```python
import sys, os, math, struct
from asmgen import *

KN = "recurrent_scan__gqa_block_cached__geglu_ffn__prompt_kernel"
DUMP = os.environ.get("DUMP", "")
STAMP = int(os.environ.get("STAMP", "0"))
GEL_END = int(os.environ.get("GEL_END", "247")); GEL_EXTRA = int(os.environ.get("GEL_EXTRA", "360"))

def f2u(x): return struct.unpack("<I", struct.pack("<f", x))[0]
def hx(x): return "0x%x" % (x & 0xffffffff)

S_X, S_K, S_V, S_WQ, S_WO, S_WG, S_WU, S_WD, S_OUT, S_DBG, S_H, S_SP = [S(4 + 4 * i, 4) for i in range(12)]
s_g, s_qb, s_w = S(52), S(53), S(54)
s_t0, s_t1, s_t2, s_t3 = S(55), S(56), S(57), S(58)
s_m0b = S(59)
s_off = S(60)
s_cnt = S(61)
s_kK, s_kV = S(62), S(63)
s_retry = S(64)
s_h0, s_h1 = S(65), S(66)
s_hl = S(67); s_hb = S(78); s_myfl = S(79); s_wdd = S(67); s_sig = S(78)
s_ka = S(68, 16); s_kb = S(84, 8)
s_pair = S(92, 2); s_pair2 = S(94, 2)
S_DMP = S(96, 4)
s_cq, s_cg = S(76), S(77)
S_HC = S(80, 4)
S_SPC = S(84, 4)
S_XC = S(88, 4)
s_st = S(68, 4)

v_tid, v_lane, v_lin, v_t = V(0), V(1), V(2), V(3)
v_tr = [V(4, 4), V(8, 4)]
v_dA, v_dB = V(12, 4), V(16, 4)
v_ka = V(20, 4); v_va = V(24, 8); v_kd = V(32, 4); v_vd = V(36, 2)
v_wl = V(38)
v_c = V(39)
v_l0, v_l1 = V(40, 4), V(44, 4)
v_lsave = V(16, 4)
v_negm = V(48, 16)
v_S = [V(64, 32), V(96, 32)]
v_acc = V(128, 128)
a_ring = A(128, 32)
a_B = A(160, 32)
a_Q = A(0, 64)
a_F = A(0, 64)
a_x = A(248, 8)
LSUM = int(os.environ.get('LSUM', '1'))
a_L = A(224, 16); a_ones = A(240, 4)
POI = int(os.environ.get('POI', '0'))
POISON = 0x7f817f81
a_poi = A(244, 4)

RING = 65536
MARK = 0x7fc17fc1
WS_SP = 8 << 20
WS_DUMP = 32 << 20
WS_FL = (7 << 20) + (512 << 10)
S_FLZ = S(4, 4)
S_FL = S(4, 4)

em = Em()
e = em.e

def srd(dst, lo, hi, size, off_s=None):
    if off_s is None:
        e(salu("s_mov_b32", dst[0], lo, scc_w=False)); e(salu("s_mov_b32", dst[1], hi, scc_w=False))
    else:
        e(salu("s_add_u32", dst[0], lo, off_s)); e(salu("s_addc_u32", dst[1], hi, 0, scc_r=True))
    e(salu("s_mov_b32", dst[2], hx(size), scc_w=False)); e(salu("s_mov_b32", dst[3], "0x20000", scc_w=False))

DIAG = int(os.environ.get("DIAG", "0"))
HC_OFF = 128
diag_regs = [S(100, 2), S(70, 2), S(72, 2), S(74, 2), S(96, 2), S(98, 2), S(68, 2)] if DIAG != 2 else [S(100, 2), S(96, 2), S(98, 2), S(94, 2), S(70, 2), S(72, 2), S(74, 2), S(68, 2)]
diag_n = [0]
def diag(which=1, last=False):
    if not DIAG or (which != DIAG and which != 0): return
    k = diag_n[0]; diag_n[0] += 1
    e(raw("%s %s" % ("s_memtime" if (os.environ.get("CYC") and not last) else "s_memrealtime", diag_regs[k]), "other", wr=[diag_regs[k]]))
    if k > 0: e(raw("s_waitcnt lgkmcnt(0)", "wait")); em._retire(em.lgq, 0)
AMP = os.environ.get("AMP")
def diag_out():
    if not DIAG: return
    diag(0, last=True)
    if AMP:
        k = int(AMP); last = diag_regs[diag_n[0] - 1]
        e(salu("s_sub_u32", s_t0, diag_regs[k][0], diag_regs[int(os.environ.get("AMP0", "0"))][0]))
        if os.environ.get("CYC"): e(salu("s_lshr_b32", s_t0, s_t0, 2))
        else: e(salu("s_lshl_b32", s_t0, s_t0, 2))
        em.label("L_amp")
        e(raw("s_memrealtime s[56:57]")); e(raw("s_waitcnt lgkmcnt(0)"))
        e(salu("s_sub_u32", s_t1, s_t1, last[0])); e(scmp("s_cmp_lt_u32", s_t1, s_t0)); e(raw("s_cbranch_scc1 L_amp", rd=["scc"]))
        return
    e(scmp("s_cmp_lg_u32", s_w, 0)); e(raw("s_cbranch_scc1 L_end", rd=["scc"]))
    e(raw("s_mov_b64 exec, 1", "salu", wr=["exec"]))
    e(salu("s_not_b32", s_t0, diag_regs[0][0]))
    for k in range(diag_n[0]):
        e(valu("v_mov_b32", V(4 + k), s_t0 if k == 0 else diag_regs[k][0]))
        e(raw("buffer_atomic_umax %s, off, %s, 0 offset:%d sc1" % (V(4 + k), S_DBG, 4 * k)))
    e(valu("v_mov_b32", V(12), diag_regs[0][0]))
    e(raw("buffer_atomic_umax %s, off, %s, 0 offset:%d sc1" % (V(12), S_DBG, 4 * 9)))
stamp_n = [0]
def stamp():
    if not STAMP: return
    k = stamp_n[0]; stamp_n[0] += 1
    e(raw("s_memtime %s" % S(68, 2), "other", wr=[S(68, 2)]))
    e(raw("s_memrealtime %s" % S(70, 2), "other", wr=[S(70, 2)]))
    e(raw("s_waitcnt lgkmcnt(0)", "wait")); em._retire(em.lgq, 0)
    for i in range(4): e(valu("v_writelane_b32", v_c, S(68 + i), i, rmw=True))
    e(salu("s_lshl_b32", S(72), S(2), 2)); e(salu("s_add_u32", S(72), S(72), s_w)); e(salu("s_lshl_b32", S(72), S(72), 9))
    e(salu("s_mov_b64", S(74, 2), "exec", scc_w=False)); e(raw("s_mov_b64 exec, 15", "salu", wr=["exec"]))
    e(valu("v_lshlrev_b32", v_t, 2, v_lane))
    e(bstore(v_c, v_t, S_DMP, S(72), off=k * 16))
    e(raw("s_mov_b64 exec, %s" % S(74, 2), "salu", wr=["exec"]))
    e(valu("v_lshlrev_b32", v_t, 7, v_lane))

def dump_regs(regs, finish=True):
    em.wait(lg0=True, vm0=True)
    e(nop(7)); e(nop(7))
    n = len(regs)
    e(salu("s_lshl_b32", s_t0, S(2), 2)); e(salu("s_add_u32", s_t0, s_t0, s_w)); e(salu("s_mul_i32", s_t0, s_t0, n * 256, scc_w=False))
    e(valu("v_lshlrev_b32", v_t, 2, v_lane))
    for k, r in enumerate(regs):
        e(bstore(r, v_t, S_DMP, s_t0, off=0))
        e(salu("s_add_u32", s_t0, s_t0, 256))
        if k % 32 == 31: em.wait(vm0=True)
    em.wait(vm0=True)
    if finish: e(raw("s_endpgm"))

def red4(op, x, tmp):
    for sw in ("v_permlane32_swap_b32", "v_permlane16_swap_b32"):
        for a, t in zip(x, tmp): e(valu("v_mov_b32", t, a))
        if len(x) < 3: e(nop(1))
        for a, t in zip(x, tmp): e(valu(sw, a, t))
        for a, t in zip(x, tmp): e(valu(op, a, a, t))

e(scmp("s_cmp_ge_u32", S(2), 256)); e(raw("s_cbranch_scc1 L_end", rd=["scc"]))
diag(0)
e(salu("s_mov_b32", s_retry, 0, scc_w=False))
em.label("L_restart")
i0 = e(I("s_load_dwordx16 %s, s[0:1], 0" % s_ka, "smem", wr=s_ka.regs()))
i1 = e(I("s_load_dwordx8 %s, s[0:1], 64" % s_kb, "smem", wr=s_kb.regs()))
vq, vG, vr, vc_, vx, vy, vz = [V(40 + i) for i in range(7)]
e(raw("s_getpc_b64 %s" % s_pair2, "salu", wr=[s_pair2]))
em.label("L_pc0")
CT0 = int(os.environ.get("CT0", "64"))
if CT0:
    e(valu("v_sub_u32", V(55), 255, v_tid)); e(valu("v_cmp_gt_u32", "vcc", CT0, V(55))); e(valu("v_lshlrev_b32", V(55), 7, V(55))); e(nop(0))
    e(raw("s_and_saveexec_b64 s[4:5], vcc", "salu", wr=["exec"], rd=["vcc"])); e(raw("s_cbranch_execz L_ct0"))
    e(raw("global_load_dword v55, v55, %s" % s_pair2))
    em.label("L_ct0")
    e(raw("s_mov_b64 exec, -1", "salu", wr=["exec"]))
MAP2 = int(os.environ.get("MAP2", "0"))
s_i = S(65)
if MAP2:
    e(salu("s_and_b32", s_g, S(2), 3)); e(salu("s_lshl_b32", s_g, s_g, 1)); e(salu("s_bfe_u32", s_t0, S(2), "0x10003")); e(salu("s_add_u32", s_g, s_g, s_t0))
    e(salu("s_bfe_u32", s_qb, S(2), "0x10002")); e(salu("s_lshl_b32", s_qb, s_qb, 4)); e(salu("s_lshr_b32", s_t0, S(2), 4)); e(salu("s_add_u32", s_qb, s_qb, s_t0))
else:
    e(salu("s_and_b32", s_g, S(2), 7)); e(salu("s_lshr_b32", s_qb, S(2), 3))
def sx(dst): return salu("s_lshr_b32", dst, S(2), 4 if MAP2 else 3)
TL = "-1" if MAP2 else "0xffffffff"
e(valu("v_and_b32", v_lane, 63, v_tid))
e(valu("v_lshrrev_b32", v_t, 6, v_tid))
e(valu("v_lshlrev_b32", v_lin, 4, v_lane))
e(valu("v_readfirstlane_b32", s_w, v_t))
e(valu("v_and_b32", vq, 15, v_lane)); e(valu("v_lshrrev_b32", vG, 4, v_lane))
vxo = V(47)
XD = int(os.environ.get("XD", "1"))
if XD:
    vxo2 = V(50); vxr = [V(47), V(50)]
    e(valu("v_lshrrev_b32", vx, 3, v_lane)); e(valu("v_lshl_add_u32", vx, v_t, 4, vx)); e(valu("v_lshlrev_b32", vx, 10, vx))
    e(valu("v_and_b32", vy, 7, v_lane)); e(valu("v_xor_b32", vy, vy, vG)); e(valu("v_lshl_add_u32", vxo, vy, 4, vx))
    e(valu("v_xor_b32", vxo2, 64, vxo)); e(valu("v_add_u32", vxo2, 8192, vxo2))
else:
    e(valu("v_lshl_add_u32", vxo, v_t, 4, vq)); e(valu("v_lshlrev_b32", vxo, 10, vxo)); e(valu("v_lshl_add_u32", vxo, vG, 4, vxo))
vwg, vwq, vcw = V(52), V(53), V(54)
GM0 = int(os.environ.get("GM", "0"))
if GM0: e(salu("s_lshl_b32", s_t1, s_g, 7))
else: e(salu("s_mul_i32", s_t1, s_g, 448, scc_w=False)); e(salu("s_and_b32", s_t1, s_t1, hx(~127)))
e(salu("s_and_b32", s_t2, s_w, 1)); e(sx(s_t3)); e(salu("s_lshl_b32", s_t3, s_t3, 1)); e(salu("s_add_u32", s_t2, s_t2, s_t3))
e(salu("s_mul_i32", s_t2, s_t2, (16 if MAP2 else 8) * 3584, scc_w=False)); e(salu("s_add_u32", s_t1, s_t1, s_t2))
e(valu("v_lshrrev_b32", vx, 2, v_lane)); e(valu("v_mul_u32_u24", vx, 3584, vx)); e(valu("v_and_b32", vz, 3, v_lane)); e(valu("v_lshl_add_u32", vx, vz, 10 if GM0 else 7, vx))
e(valu("v_add_u32", vwg, s_t1, vx))
if GM0:
    e(salu("s_add_u32", s_t3, s_g, 1)); e(salu("s_lshr_b32", s_t3, s_t3, 1)); e(salu("s_lshl_b32", s_t3, s_t3, 7))
    e(valu("v_cmp_eq_u32", "vcc", 3, vz)); e(valu("v_subrev_u32", vx, s_t3, vwg)); e(nop(0)); e(valu("v_cndmask_b32", vwg, vwg, vx, "vcc"))
e(salu("s_lshr_b32", s_t2, S(2), 3)); e(salu("s_lshl_b32", s_t2, s_t2, 2)); e(salu("s_add_u32", s_t2, s_t2, s_w)); e(salu("s_lshl_b32", s_t3, s_t2, 8))
e(valu("v_lshlrev_b32", vcw, 7, v_lane)); e(valu("v_add_u32", vcw, s_t3, vcw))
e(salu("s_lshl_b32", s_t0, s_qb, 16))
em.wait(lg0=True)
diag(2)
srd(S_X, s_ka[0], s_ka[1], 65536, s_t0)
v_xp = V(64, 64)
XFIRST = int(os.environ.get("XFIRST", "12"))
if XD:
    s_xb = S(60)
    e(salu("s_lshl_b32", s_xb, s_w, 14))
    xl = [dma(vxo2 if t & 1 else vxo, S_X, 0, off=128 * (t >> 1)) for t in range(16)]
    def xissue(t): e(salu("s_add_u32", "m0", s_xb, t * 1024 - 128 * (t >> 1))); e(nop(0)); e(xl[t])
else:
    xl = [bload(v_xp[(4 * ks, 4)], vxo, S_X, 0, off=64 * ks) for ks in range(16)]
    def xissue(t): e(xl[t])
for ks in range(XFIRST): xissue(ks)
e(scmp("s_cmp_lt_u32", s_w, 2)); e(salu("s_cselect_b64", s_pair, s_ka[(12, 2)], s_ka[(14, 2)], scc_w=False, scc_r=True))
WT = int(os.environ.get("WT", "0"))
s_wgp = S(100, 2)
if WT:
    e(salu("s_lshl_b32", s_t3, S(2), 1)); e(salu("s_and_b32", s_t1, s_w, 1)); e(salu("s_add_u32", s_t3, s_t3, s_t1)); e(salu("s_mul_i32", s_t3, s_t3, 3584, scc_w=False))
    e(valu("v_lshlrev_b32", V(51), 7, v_lane)); e(valu("v_add_u32", V(51), s_t3, V(51)))
    e(raw("s_mov_b64 exec, 0xfffffff", "salu", wr=["exec"]))
    e(I("global_load_dword %s, %s, %s" % (V(48), V(51), s_pair), "vmem", rd=V(51).regs() + s_pair.regs(), wr=V(48).regs()))
    e(salu("s_mov_b64", s_wgp, s_pair, scc_w=False))
else:
    e(raw("s_mov_b64 exec, " + TL, "salu", wr=["exec"]))
    e(I("global_load_dword %s, %s, %s" % (V(48), vwg, s_pair), "vmem", rd=vwg.regs() + s_pair.regs(), wr=V(48).regs()))
e(raw("s_mov_b64 exec, 3", "salu", wr=["exec"]))
e(I("global_load_dword %s, %s, %s" % (V(49), vcw, s_pair2), "vmem", rd=vcw.regs() + s_pair2.regs(), wr=V(49).regs()))
e(raw("s_mov_b64 exec, -1", "salu", wr=["exec"]))
e(sx(s_t2)); e(salu("s_lshl_b32", s_t2, s_t2, 2)); e(salu("s_add_u32", s_t2, s_t2, s_w))
e(salu("s_lshl_b32", s_t2, s_t2, 16 if MAP2 else 15)); e(salu("s_lshl_b32", s_t3, s_g, 10)); e(salu("s_add_u32", s_t2, s_t2, s_t3))
e(valu("v_lshrrev_b32", vx, 3, v_lane)); e(valu("v_lshlrev_b32", vx, 13, vx)); e(valu("v_and_b32", vz, 7, v_lane)); e(valu("v_lshl_add_u32", vx, vz, 7, vx))
e(valu("v_add_u32", vwq, s_t2, vx))
e(salu("s_lshr_b32", s_t2, S(2), 6)); e(salu("s_and_b32", s_t3, S(2), 7)); e(salu("s_lshl_b32", s_t3, s_t3, 2)); e(salu("s_add_u32", s_t2, s_t2, s_t3))
e(salu("s_lshl_b32", s_t0, s_t2, 16))
srd(S_OUT, s_kb[2], s_kb[3], 65536, s_t0)
e(salu("s_lshl_b32", s_t1, s_g, 19))
srd(S_K, s_ka[2], s_ka[3], 524288, s_t1)
srd(S_V, s_ka[4], s_ka[5], 524288, s_t1)
srd(S_WO, s_ka[8], s_ka[9], 524288, s_t1)
srd(S_WQ, s_ka[6], s_ka[7], 4 << 20)
srd(S_WG, s_ka[12], s_ka[13], 1835008)
srd(S_WU, s_ka[14], s_ka[15], 1835008)
srd(S_WD, s_kb[0], s_kb[1], 1835008)
srd(S_DBG, s_kb[4], s_kb[5], 256)
e(salu("s_mul_i32", s_t1, s_qb, 229376, scc_w=False))
srd(S_H, s_kb[6], s_kb[7], 229376, s_t1)
e(salu("s_lshl_b32", s_t1, s_qb, 19)); e(salu("s_add_u32", s_t1, s_t1, hx(WS_SP)))
srd(S_SP, s_kb[6], s_kb[7], 524288, s_t1)
if DUMP or STAMP:
    e(salu("s_mov_b32", s_t1, hx(WS_DUMP), scc_w=False))
    srd(S_DMP, s_kb[6], s_kb[7], 200 << 20, s_t1)
e(salu("s_mov_b64", s_pair, S(90, 2), scc_w=False))
e(salu("s_lshl_b32", s_t0, s_t2, 16))
srd(S_XC, s_ka[0], s_ka[1], 65536, s_t0)
e(salu("s_mul_i32", s_t1, s_t2, 229376, scc_w=False))
srd(S_HC, s_pair[0], s_pair[1], 229376, s_t1)
e(salu("s_lshl_b32", s_t1, s_t2, 19)); e(salu("s_add_u32", s_t1, s_t1, hx(WS_SP)))
srd(S_SPC, s_pair[0], s_pair[1], 524288, s_t1)
e(salu("s_mov_b32", s_cq, s_t2, scc_w=False)); e(salu("s_bfe_u32", s_cg, S(2), "0x30003"))
e(salu("s_lshl_b32", s_myfl, s_qb, 2)); e(salu("s_add_u32", s_myfl, s_myfl, s_w)); e(salu("s_lshl_b32", s_myfl, s_myfl, 8))
e(salu("s_lshl_b32", s_t1, s_g, 2)); e(salu("s_add_u32", s_myfl, s_myfl, s_t1))
e(salu("s_lshl_b32", s_m0b, s_w, 12)); e(salu("s_add_u32", s_m0b, s_m0b, RING))
GM = int(os.environ.get("GM", "0"))
if GM:
    e(salu("s_lshl_b32", s_t1, s_w, 3)); e(salu("s_add_u32", s_t1, s_t1, s_g))
    e(salu("s_lshr_b32", s_t2, s_g, 1)); e(salu("s_add_u32", s_t2, s_t2, 24))
    e(scmp("s_cmp_eq_u32", s_w, 3)); e(salu("s_cselect_b32", s_t1, s_t2, s_t1, scc_w=False, scc_r=True))
else:
    e(salu("s_and_b32", s_t1, s_g, 1)); e(salu("s_lshl_b32", s_t1, s_t1, 2)); e(salu("s_add_u32", s_t1, s_t1, s_w))
    e(scmp("s_cmp_eq_u32", s_w, 3)); e(salu("s_cselect_b32", s_t1, 3, s_t1, scc_w=False, scc_r=True))
    e(salu("s_lshr_b32", s_t2, s_g, 1)); e(salu("s_mul_i32", s_t2, s_t2, 7, scc_w=False)); e(salu("s_add_u32", s_t1, s_t1, s_t2))
e(salu("s_lshl_b32", s_h0, s_t1, 13)); e(salu("s_add_u32", s_h1, s_h0, 4096))
e(salu("s_lshl_b32", s_t1, s_t1, 7))
e(salu("s_lshl_b32", s_t2, s_g, 2)); e(salu("s_add_u32", s_t2, s_t2, s_w)); e(salu("s_lshl_b32", s_t2, s_t2, 8))

def dma_voffs(dst, stride, colbase_s, perm):
    for j in range(4):
        e(valu("v_bfe_u32", vx, v_lane, 1, 2)); e(valu("v_bfe_u32", vy, v_lane, 4, 1))
        e(valu("v_xor_b32", vx, vx, vy))
        if j & 1: e(valu("v_xor_b32", vx, 2, vx))
        e(valu("v_and_b32", vy, 1, v_lane)); e(valu("v_lshlrev_b32", vy, 4, vy)); e(valu("v_lshl_add_u32", vx, vx, 5, vy))
        if not perm:
            e(valu("v_lshrrev_b32", vy, 3, v_lane)); rowadd = 8 * j
        else:
            e(valu("v_bfe_u32", vy, v_lane, 3, 2)); e(valu("v_bfe_u32", vz, v_lane, 5, 1)); e(valu("v_lshl_add_u32", vy, vz, 4, vy)); rowadd = 4 * j
        e(valu("v_mul_u32_u24", vy, stride, vy))
        e(valu("v_add3_u32", vx, vx, vy, colbase_s))
        e(valu("v_add_u32", dst[j], rowadd * stride - j * 1024, vx))

dma_voffs(v_dA, 3584, s_t1, False)
dma_voffs(v_dB, 8192, s_t2, False)

def m0set(p): return salu("s_add_u32", "m0", s_m0b, p * 16384) if p < 6 else salu("s_sub_u32", "m0", s_m0b, RING - (p - 6) * 16384)
def s1_dma(m):
    p = m % 6
    if m < 32:
        s, h = m >> 1, m & 1
        return [m0set(p), salu("s_mov_b32", s_off, s * 32 * 3584, scc_w=False)], [dma(v_dA[j], S_WU if h else S_WG, s_off, j * 1024) for j in range(4)]
    if m < 64:
        s, h = (m - 32) >> 1, m & 1
        return [m0set(p), salu("s_mov_b32", s_off, s * 32 * 8192 + 128 * h, scc_w=False)], [dma(v_dB[j], S_WQ, s_off, j * 1024) for j in range(4)]
    if m == 64:
        return [m0set(p), salu("s_mov_b32", s_off, 0, scc_w=False)], [dma(v_kd[j], S_K, s_off, j * 1024) for j in range(4)]
    if m == 65:
        return [m0set(p), salu("s_mov_b32", s_off, 8192, scc_w=False)], [dma(v_kd[j], S_K, s_off, j * 1024) for j in range(4)]
    if m == 66:
        return [m0set(p), salu("s_mov_b32", s_off, 0, scc_w=False)], [dma(v_vd[j & 1], S_V, s_off, j * 1024) for j in range(4)]
    return None
dtok = {}
ln_v = []
for m in range(6):
    sa, dm = s1_dma(m)
    ln_v.append(sa); ln_v += dm
    dtok[m] = dm[3]
def xaddr(dst, tmp):
    e(valu("v_and_b32", dst, 15, v_lane)); e(salu("s_lshl_b32", s_t0, s_w, 4)); e(valu("v_add_u32", dst, s_t0, dst)); e(valu("v_lshlrev_b32", dst, 10, dst))
    e(valu("v_lshrrev_b32", tmp, 4, v_lane)); e(valu("v_lshl_add_u32", dst, tmp, 3, dst)); e(salu("s_lshl_b32", s_t0, s_cg, 7)); e(valu("v_add_u32", dst, s_t0, dst))
WQT = int(os.environ.get("WQT", "0"))
wqt = [raw("s_mov_b64 exec, " + TL, "salu", wr=["exec"]), bload(V(46), vwq, S_WQ, 0, n=1), raw("s_mov_b64 exec, -1", "salu", wr=["exec"])]
if WT == 2:
    wgt = [raw("s_mov_b64 exec, " + TL, "salu", wr=["exec"]), I("global_load_dword %s, %s, %s" % (V(51), vwg, s_wgp), "vmem", rd=vwg.regs() + s_wgp.regs(), wr=V(51).regs()), raw("s_mov_b64 exec, -1", "salu", wr=["exec"])]
    ln_v.insert(int(os.environ.get("WTP", "0")), wgt)
if WQT == 0: ln_v.append(wqt)
LNPRE = int(os.environ.get("LNPRE", "0"))
lv = [0]
def ln_issue(n=1):
    k = 0
    while k < n and lv[0] < len(ln_v):
        it = ln_v[lv[0]]; lv[0] += 1
        e(it)
        if not isinstance(it, list): k += 1
e(valu("v_bfe_u32", vr, v_lane, 2, 2)); e(valu("v_and_b32", vc_, 3, v_lane))
e(valu("v_lshlrev_b32", vx, 10, vG)); e(valu("v_lshl_add_u32", vx, vr, 7, vx)); e(valu("v_lshl_add_u32", vx, vc_, 3, vx)); e(valu("v_add_u32", vx, s_m0b, vx))
e(valu("v_lshrrev_b32", vy, 1, vr)); e(valu("v_and_b32", vz, 1, vG)); e(valu("v_lshl_add_u32", vy, vz, 1, vy))
for u in range(4):
    e(valu("v_xor_b32", vz, u, vy)); e(valu("v_lshl_add_u32", v_tr[0][u], vz, 5, vx)); e(valu("v_add_u32", v_tr[1][u], 3 * 16384, v_tr[0][u]))
e(valu("v_xor_b32", vy, vG, vq))
for ds in range(4):
    e(valu("v_xor_b32", vz, 4 * ds, vy)); e(valu("v_lshlrev_b32", vz, 4, vz)); e(valu("v_lshl_add_u32", vz, vq, 8, vz)); e(valu("v_add_u32", v_ka[ds], RING + 4 * 16384, vz))
e(valu("v_lshl_add_u32", vx, vG, 2, vr)); e(valu("v_and_b32", vy, 7, vx)); e(valu("v_lshlrev_b32", vx, 8, vx)); e(valu("v_lshl_add_u32", vx, vc_, 3, vx)); e(valu("v_add_u32", vx, RING, vx))
for db in range(8):
    e(valu("v_xor_b32", vz, db, vy)); e(valu("v_lshl_add_u32", v_va[db], vz, 5, vx))
e(salu("s_lshl_b32", s_t1, s_w, 12))
e(valu("v_lshlrev_b32", vx, 8, vG)); e(valu("v_add_u32", vx, s_t1, vx))
for j in range(4):
    e(valu("v_add_u32", vy, 4 * j, vG)); e(valu("v_xor_b32", vy, vy, vq)); e(valu("v_lshl_add_u32", v_kd[j], vy, 4, vx))
e(valu("v_and_b32", vz, 1, v_lane)); e(valu("v_lshl_add_u32", vx, vz, 4, vx))
for j in range(2):
    e(valu("v_add_u32", vy, 4 * j, vG)); e(valu("v_lshrrev_b32", vz, 1, vq)); e(valu("v_xor_b32", vy, vy, vz)); e(valu("v_lshl_add_u32", v_vd[j], vy, 5, vx))
e(salu("s_lshl_b32", s_t1, s_w, 14)); e(valu("v_add_u32", v_wl, s_t1, v_lin))
for ks in range(XFIRST, 16): xissue(ks)
if XD:
    e(valu("v_lshrrev_b32", vx, 1, vq)); e(valu("v_xor_b32", vx, vx, vG)); e(valu("v_lshlrev_b32", vx, 4, vx))
    e(valu("v_lshl_add_u32", vx, vq, 7, vx)); e(valu("v_add_u32", vxr[0], s_xb, vx)); e(valu("v_xor_b32", vxr[1], 64, vxr[0]))
e(salu("s_mov_b32", s_t1, hx(WS_FL), scc_w=False))
srd(S_FL, s_pair[0], s_pair[1], 32768, s_t1)
if WQT == 1: e(wqt)
ln_issue(LNPRE)
stamp()

v_f = V(128, 128)
LNM = int(os.environ.get("LNM", "1"))
vsum, vtmp, vmb, vdm = V(40), V(41), V(42), V(43)
vneg = V(56, 2)
diag(2)
if LNM:
    d1, d2 = V(56, 4), V(60, 4)
    xr = {}
    def xread(t2):
        em.wait(vm=xl[2 * t2 + 1])
        for ks in (2 * t2, 2 * t2 + 1): xr[ks] = e(dsread("ds_read_b128", v_xp[(4 * ks, 4)], vxr[ks & 1], (ks >> 1) * 2048))
    e(valu("v_mov_b32", vtmp, "0x3f803f80"))
    for i in range(4): e(valu("v_accvgpr_write_b32", a_ones[i], vtmp))
    e(valu("v_and_b32", vtmp, 3, v_lane))
    for r in range(1, 4): e(valu("v_cmp_eq_u32", S(68 + 2 * r, 2), r, vtmp))
    e(valu("v_bfe_u32", vtmp, v_lane, 2, 2)); e(valu("v_lshrrev_b32", vmb, 4, v_lane)); e(valu("v_cmp_eq_u32", S(68, 2), vtmp, vmb))
    LND = int(os.environ.get("LND", "4"))
    if XD: xread(0)
    for ks in range(16):
        if XD:
            if ks % 2 == 0 and ks + 2 < 16: xread(ks // 2 + 1)
            em.wait(lg=xr[ks])
        else: em.wait(vm=xl[ks])
        if ks == 15: diag(2)
        x4 = v_xp[(4 * ks, 4)]
        e(mfma(d1, a_ones, x4, 0 if ks == 0 else d1))
        if ks >= LND: ln_issue(1)
        for k in range(2):
            p = 4 * ks + k
            e(valu("v_lshlrev_b32", v_f[2 * p], 16, v_xp[p])); e(valu("v_and_b32", v_f[2 * p + 1], "0xffff0000", v_xp[p]))
        e(mfma(d2, x4, x4, 0 if ks == 0 else d2))
        for k in range(2, 4):
            p = 4 * ks + k
            e(valu("v_lshlrev_b32", v_f[2 * p], 16, v_xp[p])); e(valu("v_and_b32", v_f[2 * p + 1], "0xffff0000", v_xp[p]))
    if STAMP == 3: stamp()
    ln_issue(int(os.environ.get("LN_FIRST", "0")))
    diag(2)
    if STAMP == 3: stamp()
    e(nop(2))
    e(valu("v_mul_f32", vsum, hx(f2u(1.0 / 512)), d1[0]))
    e(valu("v_cvt_pk_bf16_f32", vmb, vsum, vsum)); e(valu("v_lshlrev_b32", vmb, 16, vmb))
    e(valu("v_mov_b32", vdm, vsum))
    for r in range(1, 4): e(valu("v_cndmask_b32", d2[0], d2[0], d2[r], S(68 + 2 * r, 2)))
    e(valu("v_cndmask_b32", vsum, 0, d2[0], S(68, 2)))
    red4("v_add_f32", [vsum], [vtmp])
    e(valu("v_mul_f32", vsum, hx(f2u(1.0 / 512)), vsum))
    e(valu("v_fma_f32", vsum, "-" + str(vdm), vdm, vsum, extra_rd=vdm.regs()))
    if STAMP == 3: stamp()
else:
    acc = [V(56, 2), V(58, 2), V(60, 2), V(62, 2)]
    for ks in range(16):
        em.wait(vm=xl[ks])
        if ks == 15: diag(2)
        for k in range(4):
            p = 4 * ks + k
            e(valu("v_lshlrev_b32", v_f[2 * p], 16, v_xp[p])); e(valu("v_and_b32", v_f[2 * p + 1], "0xffff0000", v_xp[p]))
        for k in range(4):
            p = 4 * ks + k
            if ks == 0: e(valu("v_mov_b64", acc[k], v_f[(2 * p, 2)]))
            else: e(valu("v_pk_add_f32", acc[k], acc[k], v_f[(2 * p, 2)]))
    if STAMP == 3: stamp()
    ln_issue(int(os.environ.get("LN_FIRST", "12")))
    diag(2)
    if STAMP == 3: stamp()
    e(valu("v_pk_add_f32", acc[0], acc[0], acc[1])); e(valu("v_pk_add_f32", acc[2], acc[2], acc[3])); e(valu("v_pk_add_f32", acc[0], acc[0], acc[2]))
    e(valu("v_add_f32", vsum, acc[0][0], acc[0][1]))
    red4("v_add_f32", [vsum], [vtmp])
    e(valu("v_mul_f32", vsum, hx(f2u(1.0 / 512)), vsum))
    e(valu("v_cvt_pk_bf16_f32", vmb, vsum, vsum)); e(valu("v_lshlrev_b32", vmb, 16, vmb))
    e(valu("v_sub_f32", vdm, vsum, vmb))
    e(valu("v_sub_f32", vneg[0], 0, vmb))
    acc2 = [V(58, 2), V(60, 2), V(62, 2)]
    for p in range(64):
        e(valu("v_pk_add_f32", v_f[(2 * p, 2)], v_f[(2 * p, 2)], vneg, mod="op_sel_hi:[1,0]"))
    for p in range(64):
        a_ = acc2[p % 3]
        if p < 3: e(valu("v_pk_mul_f32", a_, v_f[(2 * p, 2)], v_f[(2 * p, 2)]))
        else: e(valu("v_pk_fma_f32", a_, v_f[(2 * p, 2)], v_f[(2 * p, 2)], a_))
    if STAMP == 3: stamp()
    e(valu("v_pk_add_f32", acc2[0], acc2[0], acc2[1])); e(valu("v_pk_add_f32", acc2[0], acc2[0], acc2[2]))
    e(valu("v_add_f32", vsum, acc2[0][0], acc2[0][1]))
    red4("v_add_f32", [vsum], [vtmp])
    e(valu("v_mul_f32", vsum, hx(f2u(1.0 / 512)), vsum))
    e(valu("v_fma_f32", vsum, "-" + str(vdm), vdm, vsum, extra_rd=vdm.regs()))
e(valu("v_max_f32", vsum, 0, vsum))
e(valu("v_cvt_pk_bf16_f32", vsum, vsum, vsum)); e(valu("v_lshlrev_b32", vsum, 16, vsum))
e(valu("v_add_f32", vsum, hx(f2u(1e-5)), vsum))
e(valu("v_cvt_pk_bf16_f32", vsum, vsum, vsum)); e(valu("v_lshlrev_b32", vsum, 16, vsum))
e(valu("v_sqrt_f32", vsum, vsum)); e(nop(0))
e(valu("v_cvt_pk_bf16_f32", vsum, vsum, vsum)); e(valu("v_lshlrev_b32", vsum, 16, vsum))
e(valu("v_rcp_f32", vneg[0], vsum)); e(nop(0))
if LNM: e(valu("v_mul_f32", vneg[1], "-" + str(vmb), vneg[0], mod="", extra_rd=vmb.regs()))
for ks in range(16):
    for k in range(4):
        p = 4 * ks + k
        if LNM: e(valu("v_pk_fma_f32", v_f[(2 * p, 2)], v_f[(2 * p, 2)], vneg, vneg, mod="op_sel:[0,0,1] op_sel_hi:[1,0,1]"))
        else: e(valu("v_pk_mul_f32", v_f[(2 * p, 2)], v_f[(2 * p, 2)], vneg, mod="op_sel_hi:[1,0]"))
    for k in range(4):
        p = 4 * ks + k
        e(valu("v_cvt_pk_bf16_f32", v_xp[p], v_f[2 * p], v_f[2 * p + 1]))
    e(dswrite("ds_write_b128", v_wl, v_xp[(4 * ks, 4)], ks * 1024))
ln_issue(int(os.environ.get("LN_LAST", "100")))
if STAMP == 3: stamp()
if DUMP == "ln": dump_regs([v_xp[i] for i in range(64)])
em.wait(lg0=True)
e(raw("s_barrier"))
stamp(); diag(); diag(2); diag(3)

def cost_of(it):
    k = getattr(it, "kind", "")
    return 2 if k == "trans" else (0 if k in ("salu", "nop") else 1)
class Fill:
    def __init__(self, items, start, end, spread=False): self.items, self.start, self.end, self.spread = list(items), start, end, spread; self.i = 0
    def done(self): return self.i == len(self.items)
def run_stream(NH, dmaf, dtok, accf, Bf, extra, fills, LOOK=6, nq=4, posf=lambda m: m % 6, ring=a_ring, first_dma=6, tr2=None, early_dma=False, w2=lambda g: False):
    NG = 4 * NH
    rtok = {}
    def reads(g):
        m, u = g >> 2, g & 3
        p = posf(m)
        d = ring[((g % 8) * 4, 4)]
        ar, of = (v_tr[p // 3][u], (p % 3) * 16384) if p < 6 else (tr2[u], (p - 6) * 16384)
        r = [dsread("ds_read_b64_tr_b16", d[(2 * h2, 2)], ar, of + h2 * 512) for h2 in range(2)]
        rtok[g] = r[1]
        return r
    pre = [reads(g) for g in range(3)]
    G, C = [], []
    cur = None
    for g in range(NG):
        gaps = [[], [], [], []]; cap = [2, 2, 2, 2]
        if g + 3 < NG:
            if (g + 3) & 3 == 0 and not (g > 0 and w2(g - 1)): gaps[0].append(LateW(dtok, (g + 3) >> 2))
            r = reads(g + 3); gaps[0].append(r[0]); gaps[1].append(r[1]); cap[0] -= 1; cap[1] -= 1
        md, j = (g + 4 * LOOK - 4) >> 2, (g + 4 * LOOK - 4) & 3
        if early_dma:
            md, j = (g + 4 * LOOK - 3) >> 2, (g + 4 * LOOK - 3) & 3
            if md >= first_dma and j < 2:
                if j == 0: cur = dmaf(md)
                if cur is not None:
                    if j == 0: gaps[1] += cur[0]
                    gaps[2].append(cur[1][2 * j]); gaps[3].append(cur[1][2 * j + 1]); cap[2] -= 1; cap[3] -= 1
                    if j == 1: dtok[md] = cur[1][3]
        elif md >= first_dma:
            if j == 0: cur = dmaf(md)
            if cur is not None:
                if j == 0: gaps[2] += cur[0]
                for it in cur[1][j::4]: gaps[3].append(it); cap[3] -= 1
                if j == 3: dtok[md] = cur[1][3]
        for (gp, it, cost) in extra.get(g, []):
            gaps[gp].append(it); cap[gp] -= cost
        if w2(g):
            if g & 1 == 0 and g + 1 < NG:
                gaps[3].insert(0, LateW2(rtok, [x for x in (g + 1, g + 2) if x < NG], dtok, (g + 4) >> 2 if ((g + 4) & 3 == 0 and g + 4 < NG) else None))
        elif g + 1 < NG: gaps[3].insert(0, Wait(lg=rtok[g + 1]))
        G.append(gaps); C.append(cap)
    B = {}
    for f in fills:
        idx = [(g, q) for g in range(f.start, f.end) for q in range(4)]
        caps = [max(0, C[g][q]) for g, q in idx]
        W = sum(cost_of(it) for it in f.items); T = sum(caps); n = len(idx)
        acc = 0.0; cum = 0
        for k, key in enumerate(idx):
            if W >= T: acc += caps[k] + (W - T) / n
            elif f.spread: acc += caps[k] * W / T
            else: acc += caps[k]
            B[key] = (f, acc)
    em.wait(vm=dtok[0])
    for r in pre: e(r)
    for p_ in extra.get(-1, []): e(p_[1])
    em.wait(lg0=True)
    used = {id(f): 0 for f in fills}
    for g in range(NG):
        m, u = g >> 2, g & 3
        d = ring[((g % 8) * 4, 4)]
        for qb in range(nq):
            ac, first = accf(m, u, qb)
            e(mfma(ac, d, Bf(m, qb), 0 if first else ac))
            ent = B.get((g, qb))
            sawv = False
            if ent:
                f, lim = ent
                while not f.done() and getattr(f.items[f.i], "kind", "") in ("lds", "vmem", "salu") and used[id(f)] + cost_of(f.items[f.i]) <= lim + 0.5:
                    it = f.items[f.i]; f.i += 1; used[id(f)] += cost_of(it); e(it)
            for it in G[g][qb]: e(it)
            if ent:
                f, lim = ent
                lastgap = (g == f.end - 1 and qb == 3)
                while not f.done():
                    it = f.items[f.i]; c = cost_of(it)
                    if not lastgap:
                        if used[id(f)] + c > lim + 0.5: break
                        if sawv and getattr(it, "kind", "") in ("lds", "vmem"): break
                    f.i += 1; used[id(f)] += c; e(it)
                    if getattr(it, "kind", "") in ("valu", "trans"): sawv = True
    assert all(f.done() for f in fills)
class LateW2:
    def __init__(self, r, fl, d, k): self.r, self.fl, self.d, self.k = r, fl, d, k
    def __call__(self): return Wait(lg=[self.r[f] for f in self.fl], vm=(self.d[self.k] if self.k is not None else None))
class LateW:
    def __init__(self, d, k): self.d, self.k = d, k
    def __call__(self): return Wait(vm=self.d[self.k])

def s1_acc(m, u, qb):
    h = m & 1
    idx = ((h * 4 + u) * 4 + qb) * 4
    if m < 32: return A(idx, 4), m < 2
    return v_acc[(idx, 4)], m < 34
def s1_B(m, qb): return a_B[(((m >> 1) & 1) * 16 + qb * 4, 4)]
extra = {}
btok = {}
def bread(s, qb): return dsread("ds_read_b128", a_B[((s & 1) * 16 + qb * 4, 4)], v_lin, (qb * 16 + (s % 16)) * 1024)
extra[-1] = [(0, bread(0, qb), 1) for qb in range(4)]
for s in range(1, 32):
    for qb in range(4):
        extra.setdefault(8 * (s - 1) + 1 + qb, []).append((2, bread(s, qb), 1))
gi = 0; gj = 0; pend_s = []
for it in ln_v[lv[0]:]:
    if isinstance(it, list) and all(x.kind == "salu" for x in it): pend_s = it; continue
    if not isinstance(it, list) and it.kind == "dma":
        assert gi < 12
        extra.setdefault(gi // 3, []).append((gi % 3, [pend_s, it] if pend_s else it, 1)); pend_s = []
        gi += 1
    else:
        extra.setdefault(8 + 2 * gj, []).append((1, it, 1)); gj += 1
C0 = -2.0 * math.sqrt(2.0 / math.pi) * math.log2(math.e); C1 = C0 * 0.044715
vc0, vc1 = V(40), V(41)
gel = [valu("v_mov_b32", vc0, hx(f2u(C0))), valu("v_mov_b32", vc1, hx(f2u(C1)))]
hst = []
tb = 0
for i in range(2):
    for qb in range(4):
        pk = V(96 + 4 * tb, 4); tb += 1
        for b in range(2):
            u = 2 * i + b
            T = [V(64 + 16 * b + k) for k in range(16)]
            G_, U_, X_ = T[0:4], T[4:8], T[8:12]
            ga = lambda r: A((u * 4 + qb) * 4 + r); ua = lambda r: A(((4 + u) * 4 + qb) * 4 + r)
            for r in range(4): gel.append(valu("v_accvgpr_read_b32", G_[r], ga(r)))
            for r in range(4): gel.append(valu("v_accvgpr_read_b32", U_[r], ua(r)))
            for r in range(4): gel.append(valu("v_mul_f32", X_[r], G_[r], G_[r]))
            for r in range(4): gel.append(valu("v_fma_f32", X_[r], X_[r], vc1, vc0))
            for r in range(4): gel.append(valu("v_mul_f32", X_[r], X_[r], G_[r]))
            for r in range(4): gel.append(valu("v_exp_f32", X_[r], X_[r]))
            for r in range(4): gel.append(valu("v_mul_f32", G_[r], G_[r], U_[r]))
            for r in range(4): gel.append(valu("v_add_f32", X_[r], "1.0", X_[r]))
            for r in range(4): gel.append(valu("v_rcp_f32", X_[r], X_[r]))
            gel.append(nop(0))
            for r in range(4): gel.append(valu("v_mul_f32", G_[r], G_[r], X_[r]))
            for k in range(2): gel.append(valu("v_cvt_pk_bf16_f32", pk[2 * b + k], G_[2 * k], G_[2 * k + 1]))
        st = bstore(pk, v_lin, S_H, s_h1 if i else s_h0, off=qb * 1024, mod="sc1")
        hst.append(st)
class Stamp:
    def __call__(self): stamp(); return []
if STAMP: extra.setdefault(128, []).append((0, Stamp(), 0))
if STAMP == 6:
    for g_ in (0, 8, 16, 24, 32, 48, 64, 96): extra.setdefault(g_, []).append((0, Stamp(), 0))
class Diag3:
    def __call__(self): diag(3); return []
if DIAG == 3:
    for g_ in (32, 128, 192): extra.setdefault(g_, []).append((0, Diag3(), 0))
class Grp:
    kind = "salu"
    def __init__(self, l): self.l = l
    def __call__(self):
        for x in self.l:
            if x.kind == "label": em.out.append(x)
            else: e(x)
        return []
def group_scc(items):
    out = []
    for it in items:
        if out and ("scc" in it.rd or it.kind == "label"):
            p = out.pop(); out.append(Grp((p.l if isinstance(p, Grp) else [p]) + [it]))
        else: out.append(it)
    return out
s_pf = [S(24, 2), S(26, 2), S(28, 2), S(30, 2)]
s_pfH = s_pair2
s_fo = S(3)
QS = math.log2(math.e) / math.sqrt(128.0)
vqs = V(42, 2); vqw = V(44)
save = em.out; em.out = []; spend = em.pend; em.pend = {}
NWO = 4 if MAP2 else 2
for it in range(3):
    e(salu("s_add_u32", s_t0, s_w, 4 * it))
    e(salu("s_sub_u32", s_t1, s_t0, NWO)); e(salu("s_min_u32", s_t1, s_t1, 6)); e(salu("s_lshl_b32", s_t1, s_t1, 13))
    e(salu("s_lshr_b32", s_t2, S(2), 3)); e(salu("s_mul_i32", s_t2, s_t2, 57344, scc_w=False)); e(salu("s_add_u32", s_t1, s_t1, s_t2))
    e(salu("s_add_u32", s_pf[it][0], S_WD[0], s_t1)); e(salu("s_addc_u32", s_pf[it][1], S_WD[1], 0, scc_r=True))
    if it == 0:
        e(sx(s_t1)); e(salu("s_lshl_b32", s_t1, s_t1, 15 if MAP2 else 14)); e(salu("s_lshl_b32", s_t2, s_w, 13)); e(salu("s_add_u32", s_t1, s_t1, s_t2))
        e(salu("s_add_u32", s_pf[1][0], S_WO[0], s_t1)); e(salu("s_addc_u32", s_pf[1][1], S_WO[1], 0, scc_r=True))
        e(scmp("s_cmp_lt_u32", s_w, NWO)); e(salu("s_cselect_b64", s_pf[0], s_pf[1], s_pf[0], scc_w=False, scc_r=True))
e(raw("s_getpc_b64 %s" % s_pf[3], "salu", wr=[s_pf[3]]))
em.label("L_pc1")
e(salu("s_lshl_b32", s_t0, s_w, 13)); e(salu("s_add_u32", s_t0, s_t0, "L_tail-L_pc1")); e(salu("s_min_u32", s_t0, s_t0, "L_code_end-L_pc1-8192"))
e(salu("s_add_u32", s_t1, s_t0, (1 if MAP2 else 3) * 8192)); e(salu("s_min_u32", s_t1, s_t1, "L_code_end-L_pc1-8192"))
e(salu("s_add_u32", s_pfH[0], s_pf[3][0], s_t1)); e(salu("s_addc_u32", s_pfH[1], s_pf[3][1], 0, scc_r=True))
e(scmp("s_cmp_lt_u32", s_w, 3 if MAP2 else 1)); e(salu("s_cselect_b64", s_pf[2], s_pf[2], s_pfH, scc_w=False, scc_r=True))
e(salu("s_add_u32", s_pf[3][0], s_pf[3][0], s_t0)); e(salu("s_addc_u32", s_pf[3][1], s_pf[3][1], 0, scc_r=True))
e(salu("s_lshl_b32", s_t0, s_cg, 2)); e(salu("s_add_u32", s_t0, s_t0, s_w)); e(salu("s_mul_i32", s_t0, s_t0, 7168, scc_w=False)); e(salu("s_min_u32", s_t0, s_t0, 229376 - 8192))
e(salu("s_add_u32", s_pfH[0], S_HC[0], s_t0)); e(salu("s_addc_u32", s_pfH[1], S_HC[1], 0, scc_r=True))
e(salu("s_lshl_b32", s_fo, s_cq, 3))
vx, vy, vz = V(45), V(46), V(47)
e(salu("s_lshl_b32", s_t1, s_w, 8))
dma_voffs(v_dA, 1024, s_t1, True)
e(salu("s_mul_i32", s_wdd, s_w, 448 * 1024 - 256, scc_w=False)); e(salu("s_lshl_b32", s_t3, s_cg, 7)); e(salu("s_add_u32", s_wdd, s_wdd, s_t3))
e(valu("v_mov_b32", vqs[0], hx(f2u(QS))))
e(valu("v_and_b32", vx, 15, v_lane)); e(valu("v_bfe_u32", vqw, v_lane, 5, 1)); e(valu("v_lshl_add_u32", vx, vqw, 4, vx)); e(valu("v_lshlrev_b32", vx, 4, vx))
e(valu("v_bfe_u32", vqw, v_lane, 4, 1)); e(valu("v_lshl_add_u32", vqw, vqw, 3, vx))
e(salu("s_lshl_b32", s_t1, s_w, 14)); e(valu("v_add_u32", vqw, s_t1, vqw))
for i in range(16): e(valu("v_accvgpr_write_b32", a_L[i], 0))
midset = group_scc(em.out); em.out = save; em.pend = spend
HST = int(os.environ.get("HST", "0"))
if HST == 0: GEL_END = 254
for k in range(8):
    if HST: extra.setdefault(248 + k, []).append((0, hst[k], 1))
run_stream(64, s1_dma, dtok, s1_acc, s1_B, extra, [Fill(midset, 109, 130), Fill(gel, 131, GEL_END)], early_dma=int(os.environ.get('ED1', '0')), w2=lambda g: int(os.environ.get('W2A', '1')) and g >= 130)
if DUMP == "qacc": dump_regs([v_acc[i] for i in range(128)])
stamp(); diag(3)

em.wait(lg0=True)
e(raw("s_barrier"))
def signal(off_s_expr_add, lab, v_t):
    e(scmp("s_cmp_lg_u32", s_w, 0)); e(raw("s_cbranch_scc1 %s" % lab, rd=["scc"]))
    e(salu("s_lshl_b32", s_t0, s_qb, 2))
    if off_s_expr_add: e(salu("s_add_u32", s_t0, s_t0, off_s_expr_add))
    e(valu("v_mov_b32", v_t, 1))
    e(raw("s_mov_b64 exec, 1", "salu", wr=["exec"]))
    e(raw("buffer_atomic_add %s, off, %s, %s sc1" % (v_t, S_DBG, s_t0)))
    e(raw("s_mov_b64 exec, -1", "salu", wr=["exec"]))
    em.label(lab)
for blk in range(8):
    for qb in range(4):
        a_ = v_acc[((blk * 4 + qb) * 4, 4)]
        t = a_[(0, 2)]
        for k in range(2): e(valu("v_pk_mul_f32", a_[(2 * k, 2)], a_[(2 * k, 2)], vqs, mod="op_sel_hi:[1,0]"))
        for k in range(2): e(valu("v_cvt_pk_bf16_f32", t[k], a_[2 * k], a_[2 * k + 1]))
        e(dswrite("ds_write_b64", vqw, t, (qb * 4 + (blk >> 1)) * 1024 + (blk & 1) * 512))
for j in range(4): e(valu("v_add_u32", v_dB[j], s_wdd, v_dA[j]))
em.wait(lg0=True)
for f in range(16): e(dsread("ds_read_b128", a_Q[(4 * f, 4)], v_wl, f * 1024))
e(scmp("s_cmp_eq_u32", s_retry, 1)); e(raw("s_cbranch_scc1 L_maxpass", rd=["scc"]))
em.label("L_att_start")
NZ0 = 32
for i in range(NZ0): e(valu("v_mov_b64", v_acc[(2 * i, 2)], 0))
assert LSUM == 1 and LNM and not POI
e(valu("v_lshlrev_b32", V(3), 7, v_lane))
e(valu("v_and_b32", V(38), 7, v_lane)); e(valu("v_mov_b32", V(0), 0))
em.wait(vm=dtok[66], lg0=True)
e(raw("s_barrier"))
if DUMP == "q": dump_regs([a_Q[i] for i in range(64)])
stamp()

def Qf(qb, ds): return a_Q[((qb * 4 + ds) * 4, 4)]
def Of(db, qb): return v_acc[((db * 4 + qb) * 4, 4)]
def fr(f): return a_ring[((f % 8) * 4, 4)]
def kslot(par): return 16384 if par == 0 else 0
def vslot(par): return 0 if par == 0 else 16384
def frag_reads(par, f):
    if f >= 32: par ^= 1; f -= 32
    d = fr(f)
    if f < 8 or 16 <= f < 24:
        kb = (f >> 2) if f < 8 else 2 + ((f - 16) >> 2)
        return [dsread("ds_read_b128", d, v_ka[f & 3], kslot(par) + kb * 4096)]
    ks2 = 0 if f < 16 else 1
    db = f & 7
    return [dsread("ds_read_b64_tr_b16", d[(2 * h, 2)], v_va[db], vslot(par) + ks2 * 8192 + h * 4096) for h in range(2)]
def read_sched(g):
    r = []
    if g + 3 < 24 or g >= 29: r.append(g + 3)
    if 19 <= g <= 26: r.append(g + 5)
    return r
def sm_val(g, k):
    if 7 <= g <= 22: b = 1; n = 2 * (g - 7) + k
    else: b = 0; n = 2 * ((g - 23) % 32) + k
    kb, qb, r = n >> 4, (n >> 2) & 3, n & 3
    return b, qb, kb, r
def sm_items(g):
    ex, ad = [], []
    for k in range(2):
        b, qb, kb, r = sm_val(g, k)
        x = v_S[b][qb * 8 + kb * 4 + r]
        l = (v_l1 if b else v_l0)[qb]
        ex.append(valu("v_exp_f32", x, x)); ad.append(valu("v_add_f32", l, l, x))
    b, qb, kb, r = sm_val((g - 1) % 32, 0)
    cv = valu("v_cvt_pk_bf16_f32", v_S[b][qb * 8 + kb * 2 + (r >> 1)], v_S[b][qb * 8 + kb * 4 + r], v_S[b][qb * 8 + kb * 4 + r + 1])
    return ex, ad, cv
def att_dma(par, g):
    if g >= 29: k = g - 29; sp = par
    elif g <= 4: k = g + 3; sp = par ^ 1
    else: return [], None
    sal = []
    if k == 0: sal = [salu("s_add_u32", "m0", s_m0b, 4 * 16384 + kslot(sp))]
    if k == 4: sal = [salu("s_add_u32", "m0", s_m0b, vslot(sp))]
    if k < 4: return sal, dma(v_kd[k], S_K, s_kK, k * 1024)
    return sal, dma(v_vd[k & 1], S_V, s_kV, (k - 4) * 1024)
SIDE_FIRST = 11
class Lbl:
    def __init__(self, n): self.n = n
    def __call__(self): em.label(self.n); return []
class LoopStamp:
    def __init__(self, k, par): self.k, self.par = k, par
    def __call__(self):
        k = self.k
        e(raw("s_memtime %s" % S(68 + 2 * k, 2), "other", wr=[S(68 + 2 * k, 2)]))
        if k == 2:
            e(raw("s_waitcnt lgkmcnt(0)", "wait")); em._retire(em.lgq, 0)
            for i in range(3): e(valu("v_writelane_b32", v_c, S(68 + 2 * i), i, rmw=True))
            e(salu("s_lshl_b32", S(74), S(2), 2)); e(salu("s_add_u32", S(74), S(74), s_w)); e(salu("s_lshl_b32", S(74), S(74), 4))
            e(salu("s_sub_u32", S(74), S(74), s_cnt)); e(salu("s_add_u32", S(74), S(74), 16)); e(salu("s_lshl_b32", S(74), S(74), 5))
            e(salu("s_add_u32", S(74), S(74), (1 << 20) + 16 * self.par))
            e(raw("s_mov_b64 exec, 7", "salu", wr=["exec"]))
            e(valu("v_lshlrev_b32", v_t, 2, v_lane))
            e(bstore(v_c, v_t, S_DMP, S(74), off=0))
            e(raw("s_mov_b64 exec, -1", "salu", wr=["exec"]))
            e(valu("v_lshlrev_b32", v_t, 7, v_lane))
        return []
v_tch, v_flag, v_fa = V(3), V(0), V(38)
xtok = []; lastdma = [None]
NITER = 14
s_po0, s_po1, s_poe = s_h0, s_h1, s_off
s_pfc = S(16, 2); s_kvt = S(18, 2); KVIT = int(os.environ.get('KVIT', '12'))
ROT = int(os.environ.get('ROT', '8'))
LQ = int(os.environ.get("LQ", "2"))
def plan_adds():
    nmem = {}
    for g in range(32):
        n = sum(1 if (f % 32 < 8 or 16 <= f % 32 < 24) else 2 for f in read_sched(g)) + (1 if (g >= 29 or g <= 4) else 0) + (1 if g in (13, 14) else 0)
        nmem[g] = n
    free = {}
    for g in range(32):
        n = nmem[g]; a1 = 2 if n > 2 else min(n, 1); a3 = n - a1
        if a1 < 2: a1 += 1
        else: a3 += 1
        if g == 0: a1 += 1
        free[(g, 1)] = max(0, 2 - a1); free[(g, 3)] = max(0, 2 - a3)
        free[(g, 4)] = 2 if ((g & 8) and (g & 1) and ((g & 7) >> 1) < LQ) else 0
    jobs = []
    for g in range(7, 39):
        for k in range(2):
            b, qb, kb, r = sm_val(g % 32, k)
            if qb < LQ: continue
            early = 4 * g + (1 if k == 0 else 3)
            idx = kb * 4 + r
            if idx < 4:
                gsrc = g + 1 if idx == 0 else (g + 2 if idx == 1 else (g + 8 if idx == 2 else g + 9))
                dead = 4 * gsrc
            else: dead = 4 * (g + 11)
            if b == 1: dead = min(dead, 4 * 30)
            jobs.append((dead, early, b, qb, idx))
    plan = {}
    for dead, early, b, qb, idx in sorted(jobs):
        for t in range(early, dead):
            g, q = t >> 2, t & 3
            for gp in ([1] if q == 1 else ([3, 4] if q == 3 else [])):
                if free[(g % 32, gp)] > 0:
                    free[(g % 32, gp)] -= 1; plan.setdefault((g % 32, gp), []).append((b, qb, idx, g)); break
            else: continue
            break
        else:
            g = early >> 2; plan.setdefault((g % 32, early & 3), []).append((b, qb, idx, g)); print("; add overflow", g, file=sys.stderr)
    return plan
ADDS = plan_adds() if LSUM == 3 else {}
def add_items(g, gp, fin, pro):
    out = []
    for b, qb, idx, gabs in ADDS.get((g, gp), []):
        if fin and b == 0 and g >= 23: continue
        if pro and b == 1: continue
        out.append(valu("v_add_f32", v_l1[qb], v_l1[qb], v_S[b][qb * 8 + idx]))
    return out
ftok = {}
def att_group(par, g, do_mfma=True, do_mem=True, do_cvt=True, last=False, pp=None, xmem=(), xsal=(), xvalu=None):
    ex, ad, cv = sm_items(g)
    mem = []
    sal = []
    fin = (pp == 3)
    d = None
    if do_mem:
        if fin: sched = ([g + 3] if g + 3 < 16 else []) + ([g + 11] if 13 <= g <= 20 else [])
        else: sched = read_sched(g)
        for f in sched:
            r = frag_reads(par, f); mem += r; ftok[f % 32] = r
        if pp is None or (g <= 4 and pp <= 2) or (g >= 29 and pp <= 1):
            sal, d = att_dma(par, g)
            if d is not None: mem.append(d)
    loop = do_mem and pp is None
    post0 = []
    if loop and par == 0:
        if g == 14: mem.append(I("global_load_dword %s, %s, %s" % (v_c, v_tch, s_pfc), "vmem", rd=v_tch.regs() + s_pfc.regs(), wr=[]))
        if g == 13: mem.append(I("buffer_load_ubyte %s, %s, %s, %s offen sc1" % (v_flag, v_fa, S_DBG, s_t2), "vmem", rd=S_DBG.regs() + s_t2.regs() + v_fa.regs(), wr=[]))
        if g == 8: sal = sal + [scmp("s_cmp_le_u32", s_cnt, ROT)]
        if g in (9, 10, 11, 12):
            q_ = [s_pfc] + s_pf
            sal = sal + [salu("s_cselect_b64", q_[g - 9], q_[g - 8], q_[g - 9], scc_w=False, scc_r=True)]
        if g == 0: post0 = [valu("v_cmp_eq_u32", "vcc", 1, v_flag)]
        if g == 2: sal = sal + [raw("s_cmp_eq_u32 vcc_lo, -1", "salu", rd=["vcc"], wr=["scc"])]
        if g == 3: sal = sal + [salu("s_cselect_b32", s_t0, s_cnt, -1, scc_w=False, scc_r=True)]
        if g == 4: sal = sal + [scmp("s_cmp_eq_u32", s_t0, ROT - 1)]
        if g == 5: sal = sal + [salu("s_cselect_b64", s_pf[3], s_pfH, s_pf[3], scc_w=False, scc_r=True)]
        if g == 15: sal = sal + [salu("s_cselect_b64", s_pf[3], S_K[(0, 2)], s_pf[3], scc_w=False, scc_r=True)]
        if g == 20: sal = sal + [scmp("s_cmp_eq_u32", s_cnt, KVIT + 1)]
        if g == 21: sal = sal + [salu("s_cselect_b64", s_pfc, s_kvt, S_K[(0, 2)], scc_w=False, scc_r=True)]
        if g == 13: sal = sal + [salu("s_cselect_b32", s_t2, s_fo, 256, scc_w=False, scc_r=True)]
        if g == 18: sal = sal + [scmp("s_cmp_eq_u32", s_cnt, s_sig)]
        if g == 19: sal = sal + [raw("s_cbranch_scc1 L_sigH_side", rd=["scc"]), Lbl("L_sigH_ret")]
    if loop and POI and par == 0 and do_mfma:
        if g == 22: sal = sal + [salu("s_add_u32", s_po1, s_po0, 65536)]
        if g == 16: mem.append(bstore(a_poi, v_lin, S_SP, s_po0, mod="sc1"))
        if g == 27: mem.append(bstore(a_poi, v_lin, S_SP, s_po1, mod="sc1"))
        if g == 23: sal = sal + [salu("s_add_u32", s_po0, s_po0, 1024)]
        if g == 24: sal = sal + [salu("s_min_u32", s_po0, s_po0, s_poe)]
    if do_mem and g == 4 and d is not None: lastdma[0] = d
    mem += list(xmem); sal = sal + list(xsal)
    gaps = [[], [], [], []]
    if g == 29 and do_mem and not fin:
        if STAMP == 2 and loop and do_mfma: gaps[0] += [LoopStamp(0, par)]
        gaps[0] += [Wait(lg0=True) if not do_mfma else (Wait(lg0=True, vm0=True) if (pp is None and par == 1) else Wait(lg0=True, vm=lastdma[0]))]
        if STAMP == 2 and loop and do_mfma: gaps[0] += [LoopStamp(1, par)]
        gaps[0] += [raw("s_barrier")]
        if STAMP == 2 and loop and do_mfma: gaps[0] += [LoopStamp(2, par)]
    gaps[0] += sal
    if g == 6 and do_mem and (pp is None or pp <= 1): gaps[0].append(salu("s_add_u32", s_kK, s_kK, 16384))
    if g == 7 and do_mem and (pp is None or pp <= 1): gaps[0].append(salu("s_add_u32", s_kV, s_kV, 16384))
    sm = not (fin and g >= 23)
    if fin and g > 23: do_cvt = False
    if fin and 16 <= g < 24: do_mfma = False
    if LSUM:
        if sm: gaps[0].append(ex[0])
        gaps[1] += mem[0:2] if len(mem) > 2 else mem[0:1]
        gaps[1] += post0
        nf = (g + 1) % 32
        if do_mem and not (fin and (16 <= nf < 24 or nf == 0)): gaps[2].append(Wait(lg=ftok.get(nf)))
        if last and g == 30: gaps[2].append(salu("s_sub_u32", s_cnt, s_cnt, 1))
        if sm: gaps[2].append(ex[1])
        gaps[3] += mem[2:] if len(mem) > 2 else mem[1:]
        pro = not do_mfma and not fin
        gaps[1] += add_items(g, 1, fin, pro)
        if do_cvt: gaps[1 if len([x for x in gaps[1] if x not in ()]) - len(add_items(g, 1, fin, pro)) < 2 else 3].append(cv)
        gaps[3] += add_items(g, 3, fin, pro)
    else:
      gaps[0] += mem[2:3]
      if sm: gaps[0].append(ex[0])
      if len(mem) > 0: gaps[1].append(mem[0])
      if len(mem) == 0 and do_cvt: gaps[1].append(cv)
      if sm: gaps[1].append(ad[0])
      gaps[1] += post0
      nf = (g + 1) % 32
      if do_mem and not (fin and (16 <= nf < 24 or nf == 0)): gaps[2].append(Wait(lg=ftok.get(nf)))
      if last and g == 30: gaps[2].append(salu("s_sub_u32", s_cnt, s_cnt, 1))
      gaps[2] += mem[3:]
      if sm: gaps[2].append(ex[1])
      if len(mem) > 1: gaps[3].append(mem[1])
      if len(mem) > 0 and do_cvt: gaps[3].append(cv)
      if sm: gaps[3].append(ad[1])
    for qb in range(4):
        if do_mfma:
            if g < 8 or 16 <= g < 24:
                b = 1 if g < 8 else 0
                kb, ds = (g >> 2) & 1, g & 3
                d = v_S[b][(qb * 8 + kb * 4, 4)]
                e(mfma(d, fr(g), Qf(qb, ds), v_negm[(qb * 4, 4)] if ds == 0 else d))
            else:
                b = 0 if g < 16 else 1
                e(mfma(Of(g & 7, qb), fr(g), v_S[b][(qb * 8, 4)], Of(g & 7, qb)))
        else:
            if (qb & 1) and not gaps[qb][:1] or ((qb & 1) and getattr(gaps[qb][0], "kind", "") in ("valu",)): e(nop(0))
        for it in gaps[qb]: e(it)
        if xvalu is not None:
            c = 2 - sum(1 for it in gaps[qb] if getattr(it, "kind", "") in ("lds", "vmem", "dma", "valu"))
            while xvalu and c > 0:
                it = xvalu.pop(0); e(it); c -= 2 if it.kind == "trans" else 1
    if LSUM and do_mfma and (g & 8):
        k = g & 7
        lq = (k if k < 4 else None) if (fin and g >= 24) else (k >> 1 if k & 1 else None)
        if lq is not None and (LSUM != 3 or lq < LQ): e(mfma(a_L[(4 * lq, 4)], a_ones, v_S[0 if g < 16 else 1][(lq * 8, 4)], a_L[(4 * lq, 4)]))
    if LSUM == 3: e(add_items(g, 4, fin, not do_mfma and not fin))

pr = [dsread("ds_read_b128", fr(f), v_ka[f & 3], (f >> 2) * 4096) for f in range(8)]
for r in pr: e(r)
zr = [valu("v_mov_b32", v_acc[i], 0) for i in range(2 * NZ0, 128)]
for f in range(8):
    em.wait(lg=pr[f])
    for qb in range(4):
        d = v_S[0][(qb * 8 + (f >> 2) * 4, 4)]
        e(mfma(d, fr(f), Qf(qb, f & 3), 0 if (f & 3) == 0 else d))
        if qb == 0 and HST == 0: e(hst[f])
        if qb == 2 and f == 0:
            e(raw("s_mov_b64 exec, 3", "salu", wr=["exec"])); e(bstore(v_acc[0], V(3), S_FLZ, s_myfl, mod="sc1")); e(raw("s_mov_b64 exec, -1", "salu", wr=["exec"]))
        for _ in range(2):
            if zr: e(zr.pop(0))
assert not zr
e(salu("s_mov_b32", s_kK, 16384 + 8192, scc_w=False)); e(salu("s_mov_b32", s_kV, 16384, scc_w=False)); e(salu("s_mov_b32", s_cnt, NITER, scc_w=False))
e(scmp("s_cmp_lg_u32", s_retry, 0)); e(raw("s_cbranch_scc1 L_have_max2", rd=["scc"]))
e(nop(3))
mx = [V(97 + 4 * i) for i in range(4)]; mt = [V(98 + 4 * i) for i in range(4)]
for qb in range(4): e(valu("v_max3_f32", mx[qb], v_S[0][qb * 8], v_S[0][qb * 8 + 1], v_S[0][qb * 8 + 2]))
for qb in range(4): e(valu("v_max3_f32", mx[qb], mx[qb], v_S[0][qb * 8 + 3], v_S[0][qb * 8 + 4]))
for qb in range(4): e(valu("v_max3_f32", mx[qb], mx[qb], v_S[0][qb * 8 + 5], v_S[0][qb * 8 + 6]))
for qb in range(4): e(valu("v_max_f32", mx[qb], mx[qb], v_S[0][qb * 8 + 7]))
red4("v_max_f32", mx, mt)
for qb in range(4):
    for k in range(4): e(valu("v_sub_f32", v_negm[qb * 4 + k], 0, mx[qb]))
em.label("L_have_max2")
e(nop(3))
for qb in range(4):
    for k in range(8): e(valu("v_add_f32", v_S[0][qb * 8 + k], v_S[0][qb * 8 + k], v_negm[qb * 4]))
for g in range(23, 29): att_group(1, g, do_mfma=False, do_mem=False, do_cvt=(g != 23))
stamp(); diag()
e(salu("s_and_b32", s_t0, s_qb, 3)); e(salu("s_sub_u32", s_t0, NITER - 1, s_t0))
e(scmp("s_cmp_eq_u32", s_w, 0)); e(salu("s_cselect_b32", s_sig, s_t0, -1, scc_w=False, scc_r=True))
e(scmp("s_cmp_eq_u32", s_retry, 0)); e(salu("s_cselect_b32", s_sig, s_sig, -1, scc_w=False, scc_r=True))
e(salu("s_mov_b64", s_pfc, S_K[(0, 2)], scc_w=False))
if POI:
    e(salu("s_lshl_b32", s_po0, s_w, 4)); e(salu("s_add_u32", s_po0, s_po0, s_g)); e(salu("s_lshl_b32", s_po0, s_po0, 13))
    e(salu("s_add_u32", s_poe, s_po0, 7168))
e(scmp("s_cmp_lt_u32", s_w, 2)); e(salu("s_cselect_b64", s_kvt, S_K[(0, 2)], S_V[(0, 2)], scc_w=False, scc_r=True))
e(salu("s_and_b32", s_t0, s_w, 1)); e(sx(s_t1)); e(salu("s_lshl_b32", s_t1, s_t1, 1)); e(salu("s_add_u32", s_t0, s_t0, s_t1)); e(salu("s_lshl_b32", s_t0, s_t0, 13))
if MAP2: e(salu("s_add_u32", s_t0, s_t0, 262144))
e(salu("s_add_u32", s_kvt[0], s_kvt[0], s_t0)); e(salu("s_addc_u32", s_kvt[1], s_kvt[1], 0, scc_r=True))
for g in range(29, 32): att_group(1, g, do_mfma=False, do_mem=True)
pro_end = len(em.out)
em.directive(".p2align 6")
em.label("L_att_loop")
def body():
    for par in range(2):
        for g in range(32): att_group(par, g, last=(par == 1))
b0 = len(em.out)
body()
b1 = len(em.out)
e(scmp("s_cmp_lg_u32", s_cnt, 0)); e(raw("s_cbranch_scc1 L_att_loop", rd=["scc"]))
b2 = len(em.out)
body()
second = em.out[b2:]; del em.out[b2:]
assert [i.text for i in second] == [i.text for i in em.out[b0:b1]], "loop not in steady state"
loop_probs = check_hazards(em.out[b1 - 40:b2] + second[:60], "loop-wrap")

em.label("L_tail")
v_ring2 = V(64, 32); v_B2 = V(96, 32)
QH = int(os.environ.get('QH', '0'))
XY = int(os.environ.get('XY', '0'))
NF1 = int(os.environ.get('NF1', '8'))
def hreg(kk, qb):
    if QH and 8 <= kk < 12: return A(16 * (kk - 8) + qb * 4, 4)
    if QH and kk >= 12: kk -= 4
    if kk >= 8: kk -= 8
    return A((64 + 16 * kk if kk < 4 else 160 + 16 * (kk - 4)) + qb * 4, 4)
def Facc(u, qb):
    t = u * 4 + qb
    return A(128 + 4 * t if t < 8 else 224 + 4 * (t - 8), 4)
POS2 = [5, 0, 2, 3, 4, 1]
NB = int(os.environ.get("NB", "4"))
def pos2(m): return 6 + m if m < NB else POS2[(m - NB) % 6]
def kind2(m):
    if m < NF1: return ("F", m)
    if m < NF1 + 32: return ("O", (m - NF1) & 15, (m - NF1) >> 4) if XY else ("O", (m - NF1) >> 1, (m - NF1) & 1)
    return ("F", m - 32)
def s2_dma(m):
    if m >= 46: return None
    p = pos2(m); k = kind2(m)
    if k[0] == "O":
        return [m0set(p), salu("s_mov_b32", s_off, k[1] * 32 * 1024 + 128 * k[2], scc_w=False)], [dma(v_dA[j], S_WO, s_off, j * 1024) for j in range(4)]
    return [m0set(p), salu("s_mov_b32", s_off, k[1] * 32 * 1024, scc_w=False)], [dma(v_dB[j], S_WD, s_off, j * 1024) for j in range(4)]
dtok2 = {}; s2pre = {}
for m in range(6 + NB):
    s2pre[m] = s2_dma(m); dtok2[m] = s2pre[m][1][3]
class Seq:
    kind = "vmem"
    def __init__(self, l): self.l = l
    def __call__(self): return self.l
hld = {}; htok = {}
for kk in range(14):
    hld[kk] = [bload(hreg(kk, qb), v_lin, S_HC, s_hl, off=qb * 1024, mod="sc1") for qb in range(4)]
    htok[kk] = hld[kk][3]
e(salu("s_mov_b32", s_cnt, 0, scc_w=False))
em.label("L_pollH")
e(valu("v_cmp_ne_u32", "vcc", 1, v_flag)); e(salu("s_mul_i32", s_hb, s_w, 14 * 4096, scc_w=False)); e(nop(1))
e(raw("s_cbranch_vccz L_pollH_done", rd=["vcc"]))
e(salu("s_add_u32", s_cnt, s_cnt, 1)); e(scmp("s_cmp_ge_u32", s_cnt, 50000)); e(raw("s_cbranch_scc1 L_pollH_done", rd=["scc"]))
e(raw("s_sleep 4")); e(raw("buffer_load_ubyte %s, %s, %s, %s offen sc1" % (v_flag, v_fa, S_DBG, s_fo))); e(raw("s_waitcnt vmcnt(0)")); e(raw("s_branch L_pollH"))
em.label("L_pollH_done")
xaddr(V(39), V(0))
assert LSUM == 1
xsl = [bload(V(40 + 2 * u, 2), V(39), S_XC, 0, off=32 * u, n=2) for u in range(4)]
NH0 = 32
hsl = sorted([(pp, g) for pp in range(3) for g in (5, 13, 14, 15, 16, 17, 18, 27, 28, 9, 11)])[:NH0]
if QH:
    hsl += [(3, g) for g in list(range(8, 16)) + list(range(24, 32))]; NH0 = 48
px = {}
for k, key in enumerate(hsl):
    px.setdefault(key, ([], []))
    px[key][0].append(hld[k >> 2][k & 3])
    if k & 3 == 0: px[key][1].append(salu("s_add_u32", s_hl, s_hb, (k >> 2) * 4096))
for u in range(4): px.setdefault((int(os.environ.get('XSP', '3')), int(os.environ.get('XSG0', '13')) + u), ([], []))[0].append(xsl[u])
wsl = [(pp, g) for pp in range(2) for g in (6, 7, 8, 10, 12, 21, 22, 23)][:4 * NB] + [(2, 29), (2, 30), (2, 31), (3, 0), (3, 1), (3, 2), (3, 3), (3, 4)] + ([(2, g) for g in (6, 7, 8, 10, 12, 21, 22, 23)] if QH else [(3, g) for g in range(5, 13)]) + [(3, g) for g in range(24, 32)]
for k, key in enumerate(wsl):
    px.setdefault(key, ([], []))
    m, j = k >> 2, k & 3
    px[key][0].append(s2pre[m][1][j])
    if j == 0: px[key][1].extend(s2pre[m][0])
px[(3, 24)][1][:0] = [Wait(lg0=True), raw("s_barrier")]
lt = [V(48 + i) for i in range(4)]
NPK = int(os.environ.get("NPK", "0"))
rinv = [V(52 + i) for i in range(4)]
vxf = V(40, 8)
save = em.out; em.out = []
for qb in range(4): e(valu("v_accvgpr_read_b32", lt[qb], a_L[4 * qb]))
e(valu("v_add_f32", V(60), lt[0], lt[1])); e(valu("v_add_f32", V(61), lt[2], lt[3])); e(valu("v_add_f32", V(60), V(60), V(61)))
for qb in range(4): e(valu("v_rcp_f32", rinv[qb], lt[qb]))
e(valu("v_cmp_nge_f32", "vcc", hx(f2u(2.0 ** 30)), V(60)))
v_tr2 = V(56, 4); v_ow = V(62)
for u in range(4): e(valu("v_subrev_u32", v_tr2[u], RING, v_tr[0][u]))
e(valu("v_subrev_u32", v_ow, RING, v_lin)); e(valu("v_add_u32", v_ow, s_m0b, v_ow))
lred = em.out; em.out = save
for pp in range(4):
    for g in range(32):
        if STAMP == 4 and g in (0, 16): stamp()
        xm, xs = px.get((pp, g), ([], []))
        att_group(pp & 1, g, pp=pp, xmem=xm, xsal=xs, xvalu=(lred if (pp == 3 and g >= (30 if LSUM else 24)) else None))
for it in lred: e(it)
diag(); stamp()
if DUMP == "o":
    e(nop(7))
    for db in range(8):
        for qb in range(4):
            for k in range(4): e(valu("v_mul_f32", Of(db, qb)[k], Of(db, qb)[k], rinv[qb]))
    dump_regs([v_acc[i] for i in range(128)])

vm_ = V(60); vma = V(61)
class Mark:
    kind = "salu"
    def __init__(self, t): self.t = t
    def __call__(self):
        e(raw("s_cbranch_vccz L_nomark", rd=["vcc"])); e(valu("v_mov_b32", self.t, hx(MARK))); em.label("L_nomark"); return []
norm = [valu("v_and_b32", vma, 3, v_lane), valu("v_lshlrev_b32", vma, 12, vma)]
ow = []; ncv = []
NPK_N = int(os.environ.get("NPK_N", "16")) if NPK else 0
for i in range(4):
    for qb in range(4):
        t = Of(2 * i, qb)
        for b in range(2):
            if i * 4 + qb < NPK_N:
                rp = V(52 + (qb & ~1), 2)
                for k in range(2): norm.append(valu("v_pk_mul_f32", Of(2 * i + b, qb)[(2 * k, 2)], Of(2 * i + b, qb)[(2 * k, 2)], rp, mod="op_sel:[0,%d] op_sel_hi:[1,%d]" % (qb & 1, qb & 1)))
            else:
                for k in range(4): norm.append(valu("v_mul_f32", Of(2 * i + b, qb)[k], Of(2 * i + b, qb)[k], rinv[qb]))
        for b in range(2):
            o = Of(2 * i + b, qb)
            for k in range(2): norm.append(valu("v_cvt_pk_bf16_f32", t[2 * b + k], o[2 * k], o[2 * k + 1]))
        ncv.append(norm[-1])
        if i == 0 and qb == 0: norm.append(Mark(t[0]))
        ow.append(dswrite("ds_write_b128", v_ow, t, i * 16384 + qb * 1024))
        if NB == 0: norm.append(ow[-1])
if NPK_N:
    cut = norm.index(ncv[NPK_N - 1]) + 1
    e(nop(4))
    for it in norm[:cut]: e(it)
    norm = norm[cut:]
class ChkNorm:
    def __init__(self, k): self.k = k
    def __call__(self):
        assert ncv[self.k].tok, "O write %d scheduled before its data" % self.k
        return ow[self.k]
G0 = 4 * NF1
G1 = G0 + 128
mk = dsread("ds_read_b32", vm_, vma, 0)
class OBar:
    def __call__(self):
        assert all(w.tok for w in ow)
        em.wait(lg0=True); e(raw("s_barrier")); stamp(); e(mk); return []
class FbCheck:
    def __call__(self):
        em.wait(lg=mk)
        e(valu("v_cmp_eq_u32", "vcc", hx(MARK), vm_))
        e(scmp("s_cmp_lg_u32", s_retry, 0)); e(raw("s_cbranch_scc1 L_nofb", rd=["scc"]))
        e(nop(1))
        e(raw("s_cbranch_vccnz L_fallback", rd=["vcc"]))
        em.label("L_nofb")
        return []
def s2_acc(m, u, qb):
    k = kind2(m)
    if k[0] == "O": return v_acc[(((k[2] * 4 + u) * 4 + qb) * 4, 4)], k[1] == 0
    return Facc(u, qb), k[1] == 0
def s2_B(m, qb):
    k = kind2(m)
    if k[0] == "O": return v_B2[((k[1] & 1) * 16 + qb * 4, 4)]
    return hreg(k[1], qb)
def oread(s, qb): return dsread("ds_read_b128", v_B2[((s & 1) * 16 + qb * 4, 4)], v_lin, (s & 3) * 16384 + (s >> 2) * 4096 + qb * 1024)
extra = {}
if NB:
    OW0 = int(os.environ.get("OW0", "11")); OWN = int(os.environ.get("OWN", "1"))
    for k in range(16):
        gg = OW0 + k // OWN
        assert (k >> 2) >= NB or gg > 4 * (k >> 2) + 3
        extra.setdefault(gg, []).append((2 + (k % OWN) % 2, ChkNorm(k), 1))
GB = G0 - int(os.environ.get("OBAR", "3"))
extra.setdefault(GB, []).append((0, OBar(), 0))
r0 = [oread(0, qb) for qb in range(4)]
for qb in range(4): extra.setdefault(GB + (qb >> 1), []).append((1 + (qb & 1) if qb < 2 else (qb & 1) * 2, r0[qb], 1))
extra.setdefault(G0 - 1, []).append((2, [Wait(lg=r0), FbCheck()], 0))
if XY:
    for mm in range(1, 32):
        rr = [oread(mm & 15, qb) for qb in range(4)]
        for qb in range(4): extra.setdefault(G0 + 4 * (mm - 1) + (qb >> 1), []).append((2 + (qb & 1), rr[qb], 1))
        extra.setdefault(G0 + 4 * mm - 1, []).append((2, Wait(lg=rr), 0))
else:
    for s_ in range(1, 16):
        for qb in range(4): extra.setdefault(G0 + 8 * (s_ - 1) + 1 + qb, []).append((2, oread(s_, qb), 1))
class LateWait:
    def __init__(self, f): self.f = f
    def __call__(self): return Wait(vm=self.f())
vxa = V(48); vpoll = V(49); vfw = V(50)
vx, vy, vz = V(63), V(57), V(58)
save = em.out; em.out = []
xaddr(vxa, vx)
e(valu("v_and_b32", V(51), 7, v_lane)); e(valu("v_lshlrev_b32", V(51), 2, V(51)))
e(valu("v_add_u32", vfw, s_m0b, v_lin)); e(salu("s_lshl_b32", s_t0, s_w, 14)); e(salu("s_add_u32", s_t0, s_t0, RING)); e(valu("v_add_u32", V(55), s_t0, v_lin))
e(salu("s_lshl_b32", s_t3, s_w, 4)); e(salu("s_add_u32", s_t3, s_t3, s_g)); e(salu("s_lshl_b32", s_t3, s_t3, 13))
early = em.out; em.out = save
extra.setdefault(-1, []).append((0, LateWait(lambda: htok[0]), 0))
for kk in range(1, 14):
    g_ = 4 * kk if kk < NF1 else 4 * (kk + 32)
    extra.setdefault(g_ - 1, []).append((2, LateWait(lambda kk=kk: htok[kk]), 0))
HG0 = int(os.environ.get("HG0", "5")); HGS = int(os.environ.get("HGS", "1"))
for k in range(NH0, 56):
    prev = (k >> 2) - (12 if QH else 8)
    gfree = (4 * prev if prev < NF1 else 4 * (prev + 32)) + 5 + (k & 3)
    extra.setdefault(max(gfree, HG0 + HGS * (k - NH0)), []).append((2, Seq([salu("s_add_u32", s_hl, s_hb, (k >> 2) * 4096), hld[k >> 2][k & 3]]), 1))
def sreg(ip, qb, odd=0): return v_acc[(((2 * ip + odd) * 4 + qb) * 4, 4)]
SPV_ = int(os.environ.get('SPV', '1'))
sp = []; spst = []; stq = []
s_oob = S(19)
if os.environ.get("NOST") or os.environ.get("NOLD"): e(salu("s_mov_b32", s_oob, 524288, scc_w=False))
NSI = int(os.environ.get("NSI", "11"))
s_so = [s_t1, s_cnt, s_h0, s_h1]
for k in range(4): sp.append(salu("s_add_u32", s_so[k], s_t3, (k >> 1) * 65536 + (k & 1) * 4096))
for ip in range(4):
    for qb in range(4):
        t = sreg(ip, qb)
        for b in range(2):
            o = sreg(ip, qb, b)
            for k in range(2): sp.append(valu("v_cvt_pk_bf16_f32", t[2 * b + k], o[2 * k], o[2 * k + 1]))
        st = bstore(t, v_lin, S_SP, s_so[(ip >> 1) * 2 + (qb >> 1)], off=(qb & 1) * 2048 + (ip & 1) * 1024, mod="sc1")
        if os.environ.get("NOST") and not (ip == 3 and qb == 3): st = bstore(t, v_lin, S_SP, s_oob, off=0)
        spst.append((st, sp[-1]))
class St:
    def __init__(self, k): self.k = k
    def __call__(self):
        assert spst[self.k][1].tok
        return spst[self.k][0]
STG = int(os.environ.get("STG", "2"))
if XY:
    GY = G0 + 64
    XS0 = int(os.environ.get("XS0", "4")); XSG = int(os.environ.get("XSG", "5")); XFL = int(os.environ.get("XFL", "60"))
    for k in range(8): extra.setdefault(GY + XS0 + XSG * k, []).append((1, St(k), 1))
    class XFlag:
        def __call__(self): em.wait(vm=spst[7][0]); return flag_store(0)
    extra.setdefault(GY + XFL, []).append((1, XFlag(), 1))
    NSI = int(os.environ.get("NSI", "16"))
    for k in range(8, NSI): extra.setdefault(G1 + 3 + STG * (k - 8), []).append((2, St(k), 1))
    hx_ = sp.index(spst[7][1]) + 1
    spf = [Fill(sp[:hx_], GY + 2, GY + 14), Fill(sp[hx_:], G1 + 2, G1 + 10)]
else:
    for k in range(NSI): extra.setdefault(G1 + 3 + STG * k, []).append((2, St(k), 1))
    spf = [Fill(sp, G1 + 2, G1 + int(os.environ.get("CVL", "16")))]
if POI:
    assert not XY and SPV_
    hint = [valu("v_mov_b32", V(57), 2), valu("v_lshlrev_b32", V(58), 7, v_lane), raw("s_mov_b64 exec, 3", "salu", wr=["exec"]),
            bstore(V(57), V(58), S_FL, s_myfl, mod="sc1"), raw("s_mov_b64 exec, -1", "salu", wr=["exec"])]
    extra.setdefault(G1 + int(os.environ.get("HINT", "4")), []).append((1, hint, 1))
FLG = int(os.environ.get("FLG", "0"))
if FLG:
    assert NSI == 16
    class YFlag:
        def __call__(self):
            em.wait(vm=spst[-1][0]); stamp()
            e(([] if XY else flag_store(0)) + flag_store(1))
            if MIDPOST == 5: static_loads()
            return []
    extra.setdefault(G1 + FLG, []).append((1, YFlag(), 1))
sti = [NSI]
def st_next(n=1):
    for _ in range(n):
        if sti[0] < 16: e(spst[sti[0]][0]); sti[0] += 1
def flag_store(h):
    return [valu("v_mov_b32", v_t, 1), raw("s_mov_b64 exec, 1", "salu", wr=["exec"]), bstore(v_t, None, S_FL, s_myfl, off=128 * h, mod="sc1"), raw("s_mov_b64 exec, -1", "salu", wr=["exec"])]
vpa = V(51)
s_done, s_new, s_sb = s_kK, s_kV, s_fo
SPV = int(os.environ.get("SPV", "1"))
def spl(gp, i): return sreg(gp >> 1, (gp & 1) * 2 + i, 0) if SPV else A((gp * 2 + i) * 4, 4)
def flag_load(): return bload(vpoll, vpa, S_FL, s_t2, n=1, mod="sc1")
lblc = [0]
def issue_new():
    k = lblc[0]; lblc[0] += 1
    e(valu("v_cmp_eq_u32", "vcc", 1, vpoll)); e(nop(1))
    e(raw("s_andn2_b32 %s, vcc_lo, %s" % (s_new, s_done), "salu", rd=["vcc", s_done], wr=[s_new, "scc"])); e(salu("s_and_b32", s_new, s_new, 255))
    e(raw("s_cbranch_scc0 L_in%d_end" % k, rd=["scc"]))
    e(salu("s_or_b32", s_done, s_done, s_new))
    for gp in range(8):
        e(scmp("s_bitcmp1_b32", s_new, gp)); e(raw("s_cbranch_scc0 L_in%d_%d" % (k, gp), rd=["scc"]))
        e(salu("s_add_u32", s_t0, s_sb, gp * 8192) if not os.environ.get("NOLD") else salu("s_mov_b32", s_t0, s_oob, scc_w=False))
        for i in range(2): e(raw(bload(spl(gp, i), v_lin, S_SPC, s_t0, off=i * 1024, mod="sc1").text))
        em.label("L_in%d_%d" % (k, gp))
    em.label("L_in%d_end" % k)
def static_loads():
    e(valu("v_cmp_eq_u32", "vcc", 1, vpoll)); e(nop(1))
    e(raw("s_and_b32 %s, vcc_lo, 255" % s_done, "salu", rd=["vcc"], wr=[s_done, "scc"]))
    for gp in range(8):
        e(salu("s_add_u32", s_t0, s_sb, gp * 8192)); e(scmp("s_bitcmp1_b32", s_done, gp)); e(salu("s_cselect_b32", s_t0, s_t0 if not os.environ.get("NOLD") else s_oob, 524288, scc_w=False, scc_r=True))
        for i in range(2): e(bload(spl(gp, i), v_lin, S_SPC, s_t0, off=i * 1024, mod="sc1"))
pinit = [salu("s_lshl_b32", s_t2, s_cq, 3), salu("s_add_u32", s_t2, s_t2, s_cg), salu("s_lshl_b32", s_t2, s_t2, 7), salu("s_mov_b32", s_done, 0, scc_w=False),
         salu("s_lshl_b32", s_sb, s_cg, 16), salu("s_lshl_b32", s_new, s_w, 11), salu("s_add_u32", s_sb, s_sb, s_new)]
extra.setdefault(G1 - 8, []).append((1, pinit, 0))
class MidPoll:
    def __init__(self, tok): self.tok = tok
    def __call__(self):
        em.wait(vm=self.tok); issue_new()
        e(salu("s_mov_b32", s_hb, s_done, scc_w=False))
        midmark.append(em.vm_total)
        return []
midmark = []
if int(os.environ.get("MID", "1")):
    pt = flag_load()
    MIDPOST = int(os.environ.get("MIDPOST", "2"))
    if MIDPOST == 4: extra.setdefault(184 - int(os.environ.get("MID4", "6")), []).append((2, pt, 1))
    else: extra.setdefault(G1 - int(os.environ.get("MID0", "-4")), []).append((2, pt, 1))
    if not MIDPOST: extra.setdefault(G1 + int(os.environ.get("MID1", "3")), []).append((0, MidPoll(pt), 0))
    elif MIDPOST != 4 and int(os.environ.get("MID0", "-4")) > 0: extra.setdefault(G1 + 2, []).append((0, Wait(vm=pt), 0))
    if MIDPOST == 3:
        extra[G1 + 2].pop(); extra[G1 - int(os.environ.get("MID0", "-4"))].pop()
if STAMP: extra.setdefault(G1, []).append((0, Stamp(), 0))
if STAMP == 5:
    for g_ in (0, 8, 16, 24): extra.setdefault(g_, []).append((0, Stamp(), 0))
class Diag:
    def __call__(self): diag(); return []
if DIAG: extra.setdefault(G1, []).append((0, Diag(), 0))
vs = [Fill(norm, 0, GB - (3 if NB else 1)), Fill(early, G0 + 2, G0 + 40)] + spf
run_stream(46, s2_dma, dtok2, s2_acc, s2_B, extra, vs, posf=pos2, ring=v_ring2, first_dma=6 + NB, tr2=v_tr2, early_dma=int(os.environ.get('ED2', '0')), w2=lambda g: int(os.environ.get('W2B', '1')) and g < 28)
stamp(); diag()
if MIDPOST == 4:
    em.wait(vm=pt); static_loads()
if MIDPOST == 3:
    st_next(16); fl3 = e(flag_load())
e(nop(5))
for qb in range(4):
    for u in range(4):
        if len(em.lgq) >= 12: em.wait(lg=em.lgq[-12])
        e(dswrite("ds_write_b128", vfw, Facc(u, qb), qb * 16384 + u * 1024))
    if qb & 1: st_next(int(os.environ.get("STW", "1")))
if MIDPOST == 6:
    st_next(16); em.wait(vm=spst[-1][0]); stamp(); e(flag_store(0) + flag_store(1)); static_loads()
v_fr = V(96, 16); vE = V(64, 16); vs_ = V(80, 16)
for k in range(8): e(valu("v_mov_b64", vs_[(2 * k, 2)], 0))
if MIDPOST == 3:
    em.wait(vm=fl3); stamp()
    if not XY: e(flag_store(0))
    e(flag_store(1))
    static_loads()
em.wait(lg0=True)
e(raw("s_barrier"))
def frr(ws_, u): return sreg(ws_, u, 1)
for ws_ in range(4):
    for u in range(4):
        if len(em.lgq) >= 14: em.wait(lg=em.lgq[-14])
        e(dsread("ds_read_b128", frr(ws_, u), V(55), ws_ * 4096 + u * 1024))
st_next()
if MIDPOST:
    st_next(16)
    if MIDPOST == 1: static_loads()
em.wait(lg0=True)
for u in range(4):
    for k in range(2):
        e(valu("v_pk_add_f32", frr(0, u)[(2 * k, 2)], frr(0, u)[(2 * k, 2)], frr(1, u)[(2 * k, 2)]))
        e(valu("v_pk_add_f32", frr(2, u)[(2 * k, 2)], frr(2, u)[(2 * k, 2)], frr(3, u)[(2 * k, 2)]))
for u in range(4):
    for k in range(2): e(valu("v_pk_add_f32", v_fr[(4 * u + 2 * k, 2)], frr(0, u)[(2 * k, 2)], frr(2, u)[(2 * k, 2)]))
for k in range(16): e(valu("v_mul_f32", vE[k], hx(f2u(-math.log2(math.e))), v_fr[k]))
st_next()
for k in range(16): e(valu("v_exp_f32", vE[k], vE[k]))
for k in range(16): e(valu("v_add_f32", vE[k], "1.0", vE[k]))
st_next()
for k in range(16): e(valu("v_rcp_f32", vE[k], vE[k]))
for k in range(16): e(valu("v_mul_f32", v_fr[k], v_fr[k], vE[k]))
for k in range(8):
    e(valu("v_lshlrev_b32", vE[2 * k], 16, vxf[k])); e(valu("v_and_b32", vE[2 * k + 1], "0xffff0000", vxf[k]))
st_next()
stamp()
accn = [0]
def acc_pieces(mask, sprinkle=False):
    n = accn[0]; accn[0] += 1
    for gp in range(8):
        e(scmp("s_bitcmp1_b32", mask, gp)); e(raw("s_cbranch_scc0 L_acc%d_%d" % (n, gp), rd=["scc"]))
        if not SPV:
            for k2 in range(8): e(valu("v_accvgpr_read_b32", V(120 + k2), spl(gp, k2 >> 2)[k2 & 3]))
        for k in range(8):
            src = spl(gp, k >> 2)[k & 3] if SPV else V(120 + k)
            e(valu("v_lshlrev_b32", V(112 + 2 * (k & 3)), 16, src)); e(valu("v_and_b32", V(113 + 2 * (k & 3)), "0xffff0000", src))
            e(valu("v_pk_add_f32", vs_[(2 * k, 2)], vs_[(2 * k, 2)], V(112 + 2 * (k & 3), 2)))
        em.label("L_acc%d_%d" % (n, gp))
        if sprinkle and gp & 1: st_next()
if midmark:
    n_y = em.vm_total - midmark[0]
    e(raw("s_waitcnt vmcnt(%d)" % n_y, "wait")); em._retire(em.vmq, n_y)
    acc_pieces(s_hb, sprinkle=True)
st_next(16)
if POI:
    s_want = s_new
    e(salu("s_mov_b32", s_cnt, 0, scc_w=False)); e(salu("s_mov_b32", s_t1, hx(POISON), scc_w=False))
    if MIDPOST == 2: em.wait(vm=pt)
    stamp()
    em.label("L_fin_loop")
    e(valu("v_cmp_eq_u32", "vcc", 2, vpoll)); e(nop(1))
    e(raw("s_andn2_b32 %s, vcc_lo, %s" % (s_want, s_done), "salu", rd=["vcc", s_done], wr=[s_want, "scc"])); e(salu("s_and_b32", s_want, s_want, 255))
    for gp in range(8):
        e(scmp("s_bitcmp1_b32", s_want, gp)); e(raw("s_cbranch_scc0 L_pl_%d" % gp, rd=["scc"]))
        e(salu("s_add_u32", s_t0, s_sb, gp * 8192))
        for i in range(2): e(raw(bload(spl(gp, i), v_lin, S_SPC, s_t0, off=i * 1024, mod="sc1").text))
        em.label("L_pl_%d" % gp)
    e(raw(flag_load().text))
    e(raw("s_waitcnt vmcnt(0)", "wait")); em._retire(em.vmq, 0)
    for gp in range(8):
        e(scmp("s_bitcmp1_b32", s_want, gp)); e(raw("s_cbranch_scc0 L_pa_%d" % gp, rd=["scc"]))
        for k in range(8): e(valu("v_cmpx_ne_u32", "vcc", s_t1, spl(gp, k >> 2)[k & 3], extra_wr=["exec"]))
        e(nop(1))
        e(raw("s_cmp_eq_u64 exec, -1", "salu", rd=["exec"], wr=["scc"])); e(raw("s_mov_b64 exec, -1", "salu", wr=["exec"]))
        e(raw("s_cbranch_scc0 L_pa_%d" % gp, rd=["scc"]))
        e(salu("s_bitset1_b32", s_done, gp, scc_w=False))
        for k in range(8):
            src = spl(gp, k >> 2)[k & 3]
            e(valu("v_lshlrev_b32", V(112 + 2 * (k & 3)), 16, src)); e(valu("v_and_b32", V(113 + 2 * (k & 3)), "0xffff0000", src))
            e(valu("v_pk_add_f32", vs_[(2 * k, 2)], vs_[(2 * k, 2)], V(112 + 2 * (k & 3), 2)))
        em.label("L_pa_%d" % gp)
    e(salu("s_add_u32", s_cnt, s_cnt, 1)); e(scmp("s_cmp_ge_u32", s_cnt, 50000)); e(raw("s_cbranch_scc1 L_fin_done", rd=["scc"]))
    e(scmp("s_cmp_lg_u32", s_done, 255)); e(raw("s_cbranch_scc1 L_fin_loop", rd=["scc"]))
else:
    if MIDPOST != 2: e(flag_load())
    if MIDPOST not in (3, 6) and not FLG:
        em.wait(vm=spst[-1][0]); stamp()
        if not XY: e(flag_store(0))
        e(flag_store(1))
    if MIDPOST == 2:
        static_loads()
        if int(os.environ.get("FSL", "0")): e(raw("s_sleep %d" % int(os.environ.get("FSL"))))
        e(flag_load())
    s_prev = s_hl
    e(salu("s_mov_b32", s_prev, s_done if MIDPOST else 0, scc_w=False)); e(salu("s_mov_b32", s_cnt, 0, scc_w=False))
    em.label("L_fin_loop")
    em.wait(vm0=True)
    issue_new()
    e(raw(flag_load().text))
    acc_pieces(s_prev)
    e(salu("s_mov_b32", s_prev, s_new, scc_w=False))
    e(salu("s_add_u32", s_cnt, s_cnt, 1)); e(scmp("s_cmp_ge_u32", s_cnt, 50000)); e(raw("s_cbranch_scc1 L_fin_done", rd=["scc"]))
    e(scmp("s_cmp_lg_u32", s_prev, 0)); e(raw("s_cbranch_scc1 L_fin_loop", rd=["scc"]))
    e(scmp("s_cmp_lg_u32", s_done, 255)); e(raw("s_cbranch_scc1 L_fin_loop", rd=["scc"]))
em.label("L_fin_done")
if DUMP == "fin": dump_regs([vs_[i] for i in range(16)] + [v_fr[i] for i in range(16)])
for k in range(8): e(valu("v_pk_fma_f32", vE[(2 * k, 2)], vs_[(2 * k, 2)], v_fr[(2 * k, 2)], vE[(2 * k, 2)]))
for k in range(8): e(valu("v_cvt_pk_bf16_f32", vxf[k], vE[2 * k], vE[2 * k + 1]))
for u in range(4): e(bstore(vxf[(2 * u, 2)], vxa, S_OUT, 0, off=32 * u, mod=os.environ.get("OUTM", "")))
stamp(); diag_out()
em.label("L_end")
e(raw("s_endpgm"))
main_end = len(em.out)

em.lgq, em.vmq, em.pend = [], [], {}
em.label("L_sigH_side")
e(salu("s_lshl_b32", s_t1, s_qb, 3)); e(salu("s_add_u32", s_t1, s_t1, s_g))
e(raw("s_mov_b64 exec, 2", "salu", wr=["exec"]))
e(raw("buffer_store_byte %s, off, %s, %s sc1" % (v_fa, S_DBG, s_t1)))
e(raw("s_mov_b64 exec, -1", "salu", wr=["exec"]))
e(raw("s_branch L_sigH_ret"))
em.label("L_fallback")
e(raw("s_waitcnt vmcnt(0) lgkmcnt(0)")); em._retire(em.vmq, 0); em._retire(em.lgq, 0)
e(salu("s_mov_b32", s_retry, 1, scc_w=False))
e(salu("s_lshl_b32", s_t0, s_w, 6)); e(valu("v_add_u32", v_tid, s_t0, v_lane))
e(raw("s_barrier"))
e(raw("s_branch L_restart"))
em.label("L_maxpass")
e(raw("s_waitcnt vmcnt(0) lgkmcnt(0)"))
e(salu("s_mov_b32", s_retry, 2, scc_w=False))
e(salu("s_mov_b32", s_kK, 0, scc_w=False))
fm = [V(40 + i) for i in range(4)]
for i in range(4): e(valu("v_mov_b32", fm[i], "0xff800000"))
em.label("L_fb_loop")
e(raw("s_barrier"))
e(salu("s_add_u32", "m0", s_m0b, 4 * 16384)); e(nop(0))
for j in range(4): e(dma(v_kd[j], S_K, s_kK, j * 1024))
em.wait(vm0=True)
e(raw("s_barrier"))
for kb in range(4):
    rr = [e(dsread("ds_read_b128", fr(ds), v_ka[ds], kb * 4096)) for ds in range(4)]
    em.wait(lg0=True)
    for ds in range(4):
        for qb in range(4):
            d = v_S[0][(qb * 4, 4)]
            e(mfma(d, fr(ds), Qf(qb, ds), 0 if ds == 0 else d))
    e(nop(7))
    for qb in range(4):
        e(valu("v_max3_f32", fm[qb], fm[qb], v_S[0][qb * 4], v_S[0][qb * 4 + 1])); e(valu("v_max3_f32", fm[qb], fm[qb], v_S[0][qb * 4 + 2], v_S[0][qb * 4 + 3]))
    e(nop(2))
e(salu("s_add_u32", s_kK, s_kK, 16384)); e(scmp("s_cmp_lt_u32", s_kK, 524288)); e(raw("s_cbranch_scc1 L_fb_loop", rd=["scc"]))
red4("v_max_f32", fm, [V(44 + i) for i in range(4)])
for qb in range(4):
    for k in range(4): e(valu("v_sub_f32", v_negm[qb * 4 + k], 0, fm[qb]))
e(raw("s_barrier"))
for m in (64, 65, 66):
    sa, dm = s1_dma(m); e(sa)
    for d in dm: e(d)
e(raw("s_waitcnt vmcnt(0)"))
e(raw("s_branch L_att_start"))
em.label("L_code_end")
e(raw("s_endpgm"))

ALIGN8 = int(os.environ.get("ALIGN8", "0"))
import re as _re
def isize(i):
    t = i.text
    if i.kind == "label": return 0
    op = t.split()[0]
    if i.kind in ("mfma", "lds", "vmem", "dma") or op.startswith(("buffer_", "global_", "ds_", "s_load", "s_memtime", "s_memrealtime")): return 8
    lit = False
    for tok in _re.split(r"[ ,]+", t)[1:]:
        if _re.fullmatch(r"-?\d+", tok): lit |= not (-16 <= int(tok) <= 64)
        elif tok.startswith("0x"): lit |= not (int(tok, 16) <= 64)
        elif tok.startswith("L_") and not op.startswith(("s_cbranch", "s_branch")): lit = True
    if op.startswith("s_"):
        if op in ("s_waitcnt", "s_nop", "s_barrier", "s_sleep", "s_endpgm") or op.startswith(("s_cbranch", "s_branch")): return 4
        return 8 if lit else 4
    e32 = ("v_exp_f32", "v_rcp_f32", "v_sqrt_f32", "v_mov_b32", "v_mov_b64", "v_add_f32", "v_sub_f32", "v_mul_f32", "v_max_f32", "v_and_b32", "v_xor_b32", "v_lshlrev_b32", "v_lshrrev_b32",
           "v_add_u32", "v_sub_u32", "v_subrev_u32", "v_mul_u32_u24", "v_min_u32", "v_readfirstlane_b32", "v_permlane16_swap_b32", "v_permlane32_swap_b32")
    if op in e32 and "-v" not in t: return 8 if lit else 4
    if op.startswith("v_cmp") and t.split()[1].startswith("vcc"): return 8 if lit else 4
    return 8
WIDE = ("v_exp_f32", "v_rcp_f32", "v_add_f32", "v_mul_f32", "v_mov_b32", "v_sub_f32", "v_and_b32", "v_lshlrev_b32")
if ALIGN8:
    pos = 0; cand = None; nfix = 0; nmiss = 0
    for i in em.out:
        if i.kind == "label":
            if i.text.startswith(".p2align"): pos = 0; cand = None
            continue
        if i.kind == "mfma" and pos % 8:
            if cand is not None: cand.text = cand.text.replace(cand.text.split()[0], cand.text.split()[0] + "_e64", 1); pos += 4; nfix += 1
            else: nmiss += 1
        if i.kind == "mfma": cand = None
        sz = isize(i)
        if sz == 4 and i.text.split()[0] in WIDE: cand = i
        pos += sz
    print("; align8: widened %d, unfixed %d" % (nfix, nmiss), file=sys.stderr)
probs = check_hazards(em.out, "main") + loop_probs
for p in probs: print("; HAZARD", p, file=sys.stderr)
assert not probs

hdr = open(os.path.join(os.path.dirname(os.path.abspath(__file__)), "header.txt")).read()
print(hdr.rstrip())
print("; @launch grid=(256,1,1) block=(256,1,1) lds=163840")
print('.amdgcn_target "amdgcn-amd-amdhsa--gfx950"\n.text\n.globl %s\n.p2align 8\n.type %s,@function\n%s:' % (KN, KN, KN))
print(em.text())
print('.section .rodata,"a"\n.p2align 6\n.amdhsa_kernel %s' % KN)
print("  .amdhsa_next_free_vgpr 512\n  .amdhsa_next_free_sgpr 102\n  .amdhsa_accum_offset 256\n  .amdhsa_group_segment_fixed_size 0\n  .amdhsa_kernarg_size 96\n  .amdhsa_user_sgpr_count 2\n  .amdhsa_user_sgpr_kernarg_segment_ptr 1\n  .amdhsa_system_sgpr_workgroup_id_x 1\n.end_amdhsa_kernel")
```

```python
import sys, os, math, struct
from asmgen import *

KN = "recurrent_scan__gqa_block_cached__geglu_ffn__prompt_kernel"
DUMP = os.environ.get("DUMP", "")
STAMP = int(os.environ.get("STAMP", "0"))
GEL_END = int(os.environ.get("GEL_END", "247")); GEL_EXTRA = int(os.environ.get("GEL_EXTRA", "360"))

def f2u(x): return struct.unpack("<I", struct.pack("<f", x))[0]
def hx(x): return "0x%x" % (x & 0xffffffff)

S_X, S_K, S_V, S_WQ, S_WO, S_WG, S_WU, S_WD, S_OUT, S_DBG, S_H, S_SP = [S(4 + 4 * i, 4) for i in range(12)]
s_g, s_qb, s_w = S(52), S(53), S(54)
s_t0, s_t1, s_t2, s_t3 = S(55), S(56), S(57), S(58)
s_m0b = S(59)
s_off = S(60)
s_cnt = S(61)
s_kK, s_kV = S(62), S(63)
s_retry = S(64)
s_h0, s_h1 = S(65), S(66)
s_hl = S(67); s_hb = S(78); s_myfl = S(79); s_wdd = S(67); s_sig = S(78)
s_ka = S(68, 16); s_kb = S(84, 8)
s_pair = S(92, 2); s_pair2 = S(94, 2)
S_DMP = S(96, 4)
s_cq, s_cg = S(76), S(77)
S_HC = S(80, 4)
S_SPC = S(84, 4)
S_XC = S(88, 4)
s_st = S(68, 4)

v_tid, v_lane, v_lin, v_t = V(0), V(1), V(2), V(3)
v_tr = [V(4, 4), V(8, 4)]
v_dA, v_dB = V(12, 4), V(16, 4)
v_ka = V(20, 4); v_va = V(24, 8); v_kd = V(32, 4); v_vd = V(36, 2)
v_wl = V(38)
v_c = V(39)
v_l0, v_l1 = V(40, 4), V(44, 4)
v_lsave = V(16, 4)
v_negm = V(48, 16)
v_S = [V(64, 32), V(96, 32)]
v_acc = V(128, 128)
a_ring = A(128, 32)
a_B = A(160, 32)
a_Q = A(0, 64)
a_F = A(0, 64)
a_x = A(248, 8)
LSUM = int(os.environ.get('LSUM', '1'))
a_L = A(224, 16); a_ones = A(240, 4)
POI = int(os.environ.get('POI', '0'))
POISON = 0x7f817f81
a_poi = A(244, 4)

RING = 65536
MARK = 0x7fc17fc1
WS_SP = 8 << 20
WS_DUMP = 32 << 20
WS_FL = (7 << 20) + (512 << 10)
S_FLZ = S(4, 4)
S_FL = S(4, 4)

em = Em()
e = em.e

def srd(dst, lo, hi, size, off_s=None):
    if off_s is None:
        e(salu("s_mov_b32", dst[0], lo, scc_w=False)); e(salu("s_mov_b32", dst[1], hi, scc_w=False))
    else:
        e(salu("s_add_u32", dst[0], lo, off_s)); e(salu("s_addc_u32", dst[1], hi, 0, scc_r=True))
    e(salu("s_mov_b32", dst[2], hx(size), scc_w=False)); e(salu("s_mov_b32", dst[3], "0x20000", scc_w=False))

DIAG = int(os.environ.get("DIAG", "0"))
HC_OFF = 128
diag_regs = [S(100, 2), S(70, 2), S(72, 2), S(74, 2), S(96, 2), S(98, 2), S(68, 2)] if DIAG != 2 else [S(100, 2), S(96, 2), S(98, 2), S(94, 2), S(70, 2), S(72, 2), S(74, 2), S(68, 2)]
diag_n = [0]
def diag(which=1, last=False):
    if not DIAG or (which != DIAG and which != 0): return
    k = diag_n[0]; diag_n[0] += 1
    e(raw("%s %s" % ("s_memtime" if (os.environ.get("CYC") and not last) else "s_memrealtime", diag_regs[k]), "other", wr=[diag_regs[k]]))
    if k > 0: e(raw("s_waitcnt lgkmcnt(0)", "wait")); em._retire(em.lgq, 0)
AMP = os.environ.get("AMP")
def diag_out():
    if not DIAG: return
    diag(0, last=True)
    if AMP:
        k = int(AMP); last = diag_regs[diag_n[0] - 1]
        e(salu("s_sub_u32", s_t0, diag_regs[k][0], diag_regs[int(os.environ.get("AMP0", "0"))][0]))
        if os.environ.get("CYC"): e(salu("s_lshr_b32", s_t0, s_t0, 2))
        else: e(salu("s_lshl_b32", s_t0, s_t0, 2))
        em.label("L_amp")
        e(raw("s_memrealtime s[56:57]")); e(raw("s_waitcnt lgkmcnt(0)"))
        e(salu("s_sub_u32", s_t1, s_t1, last[0])); e(scmp("s_cmp_lt_u32", s_t1, s_t0)); e(raw("s_cbranch_scc1 L_amp", rd=["scc"]))
        return
    e(scmp("s_cmp_lg_u32", s_w, 0)); e(raw("s_cbranch_scc1 L_end", rd=["scc"]))
    e(raw("s_mov_b64 exec, 1", "salu", wr=["exec"]))
    e(salu("s_not_b32", s_t0, diag_regs[0][0]))
    for k in range(diag_n[0]):
        e(valu("v_mov_b32", V(4 + k), s_t0 if k == 0 else diag_regs[k][0]))
        e(raw("buffer_atomic_umax %s, off, %s, 0 offset:%d sc1" % (V(4 + k), S_DBG, 4 * k)))
    e(valu("v_mov_b32", V(12), diag_regs[0][0]))
    e(raw("buffer_atomic_umax %s, off, %s, 0 offset:%d sc1" % (V(12), S_DBG, 4 * 9)))
stamp_n = [0]
def stamp():
    if not STAMP: return
    k = stamp_n[0]; stamp_n[0] += 1
    e(raw("s_memtime %s" % S(68, 2), "other", wr=[S(68, 2)]))
    e(raw("s_memrealtime %s" % S(70, 2), "other", wr=[S(70, 2)]))
    e(raw("s_waitcnt lgkmcnt(0)", "wait")); em._retire(em.lgq, 0)
    for i in range(4): e(valu("v_writelane_b32", v_c, S(68 + i), i, rmw=True))
    e(salu("s_lshl_b32", S(72), S(2), 2)); e(salu("s_add_u32", S(72), S(72), s_w)); e(salu("s_lshl_b32", S(72), S(72), 9))
    e(salu("s_mov_b64", S(74, 2), "exec", scc_w=False)); e(raw("s_mov_b64 exec, 15", "salu", wr=["exec"]))
    e(valu("v_lshlrev_b32", v_t, 2, v_lane))
    e(bstore(v_c, v_t, S_DMP, S(72), off=k * 16))
    e(raw("s_mov_b64 exec, %s" % S(74, 2), "salu", wr=["exec"]))
    e(valu("v_lshlrev_b32", v_t, 7, v_lane))

def dump_regs(regs, finish=True):
    em.wait(lg0=True, vm0=True)
    e(nop(7)); e(nop(7))
    n = len(regs)
    e(salu("s_lshl_b32", s_t0, S(2), 2)); e(salu("s_add_u32", s_t0, s_t0, s_w)); e(salu("s_mul_i32", s_t0, s_t0, n * 256, scc_w=False))
    e(valu("v_lshlrev_b32", v_t, 2, v_lane))
    for k, r in enumerate(regs):
        e(bstore(r, v_t, S_DMP, s_t0, off=0))
        e(salu("s_add_u32", s_t0, s_t0, 256))
        if k % 32 == 31: em.wait(vm0=True)
    em.wait(vm0=True)
    if finish: e(raw("s_endpgm"))

def red4(op, x, tmp):
    for sw in ("v_permlane32_swap_b32", "v_permlane16_swap_b32"):
        for a, t in zip(x, tmp): e(valu("v_mov_b32", t, a))
        if len(x) < 3: e(nop(1))
        for a, t in zip(x, tmp): e(valu(sw, a, t))
        for a, t in zip(x, tmp): e(valu(op, a, a, t))

e(scmp("s_cmp_ge_u32", S(2), 256)); e(raw("s_cbranch_scc1 L_end", rd=["scc"]))
diag(0)
e(salu("s_mov_b32", s_retry, 0, scc_w=False))
em.label("L_restart")
i0 = e(I("s_load_dwordx16 %s, s[0:1], 0" % s_ka, "smem", wr=s_ka.regs()))
i1 = e(I("s_load_dwordx8 %s, s[0:1], 64" % s_kb, "smem", wr=s_kb.regs()))
vq, vG, vr, vc_, vx, vy, vz = [V(40 + i) for i in range(7)]
e(raw("s_getpc_b64 %s" % s_pair2, "salu", wr=[s_pair2]))
em.label("L_pc0")
CT0 = int(os.environ.get("CT0", "64"))
if CT0:
    e(valu("v_sub_u32", V(55), 255, v_tid)); e(valu("v_cmp_gt_u32", "vcc", CT0, V(55))); e(valu("v_lshlrev_b32", V(55), 7, V(55))); e(nop(0))
    e(raw("s_and_saveexec_b64 s[4:5], vcc", "salu", wr=["exec"], rd=["vcc"])); e(raw("s_cbranch_execz L_ct0"))
    e(raw("global_load_dword v55, v55, %s" % s_pair2))
    em.label("L_ct0")
    e(raw("s_mov_b64 exec, -1", "salu", wr=["exec"]))
MAP2 = int(os.environ.get("MAP2", "0"))
s_i = S(65)
if MAP2:
    e(salu("s_and_b32", s_g, S(2), 3)); e(salu("s_lshl_b32", s_g, s_g, 1)); e(salu("s_bfe_u32", s_t0, S(2), "0x10003")); e(salu("s_add_u32", s_g, s_g, s_t0))
    e(salu("s_bfe_u32", s_qb, S(2), "0x10002")); e(salu("s_lshl_b32", s_qb, s_qb, 4)); e(salu("s_lshr_b32", s_t0, S(2), 4)); e(salu("s_add_u32", s_qb, s_qb, s_t0))
else:
    e(salu("s_and_b32", s_g, S(2), 7)); e(salu("s_lshr_b32", s_qb, S(2), 3))
def sx(dst): return salu("s_lshr_b32", dst, S(2), 4 if MAP2 else 3)
TL = "-1" if MAP2 else "0xffffffff"
e(valu("v_and_b32", v_lane, 63, v_tid))
e(valu("v_lshrrev_b32", v_t, 6, v_tid))
e(valu("v_lshlrev_b32", v_lin, 4, v_lane))
e(valu("v_readfirstlane_b32", s_w, v_t))
e(valu("v_and_b32", vq, 15, v_lane)); e(valu("v_lshrrev_b32", vG, 4, v_lane))
vxo = V(47)
XD = int(os.environ.get("XD", "1"))
if XD:
    vxo2 = V(50); vxr = [V(47), V(50)]
    e(valu("v_lshrrev_b32", vx, 3, v_lane)); e(valu("v_lshl_add_u32", vx, v_t, 4, vx)); e(valu("v_lshlrev_b32", vx, 10, vx))
    e(valu("v_and_b32", vy, 7, v_lane)); e(valu("v_xor_b32", vy, vy, vG)); e(valu("v_lshl_add_u32", vxo, vy, 4, vx))
    e(valu("v_xor_b32", vxo2, 64, vxo)); e(valu("v_add_u32", vxo2, 8192, vxo2))
else:
    e(valu("v_lshl_add_u32", vxo, v_t, 4, vq)); e(valu("v_lshlrev_b32", vxo, 10, vxo)); e(valu("v_lshl_add_u32", vxo, vG, 4, vxo))
vwg, vwq, vcw = V(52), V(53), V(54)
GM0 = int(os.environ.get("GM", "0"))
if GM0: e(salu("s_lshl_b32", s_t1, s_g, 7))
else: e(salu("s_mul_i32", s_t1, s_g, 448, scc_w=False)); e(salu("s_and_b32", s_t1, s_t1, hx(~127)))
e(salu("s_and_b32", s_t2, s_w, 1)); e(sx(s_t3)); e(salu("s_lshl_b32", s_t3, s_t3, 1)); e(salu("s_add_u32", s_t2, s_t2, s_t3))
e(salu("s_mul_i32", s_t2, s_t2, (16 if MAP2 else 8) * 3584, scc_w=False)); e(salu("s_add_u32", s_t1, s_t1, s_t2))
e(valu("v_lshrrev_b32", vx, 2, v_lane)); e(valu("v_mul_u32_u24", vx, 3584, vx)); e(valu("v_and_b32", vz, 3, v_lane)); e(valu("v_lshl_add_u32", vx, vz, 10 if GM0 else 7, vx))
e(valu("v_add_u32", vwg, s_t1, vx))
if GM0:
    e(salu("s_add_u32", s_t3, s_g, 1)); e(salu("s_lshr_b32", s_t3, s_t3, 1)); e(salu("s_lshl_b32", s_t3, s_t3, 7))
    e(valu("v_cmp_eq_u32", "vcc", 3, vz)); e(valu("v_subrev_u32", vx, s_t3, vwg)); e(nop(0)); e(valu("v_cndmask_b32", vwg, vwg, vx, "vcc"))
e(salu("s_lshr_b32", s_t2, S(2), 3)); e(salu("s_lshl_b32", s_t2, s_t2, 2)); e(salu("s_add_u32", s_t2, s_t2, s_w)); e(salu("s_lshl_b32", s_t3, s_t2, 8))
e(valu("v_lshlrev_b32", vcw, 7, v_lane)); e(valu("v_add_u32", vcw, s_t3, vcw))
e(salu("s_lshl_b32", s_t0, s_qb, 16))
em.wait(lg0=True)
diag(2)
srd(S_X, s_ka[0], s_ka[1], 65536, s_t0)
v_xp = V(64, 64)
XFIRST = int(os.environ.get("XFIRST", "12"))
if XD:
    s_xb = S(60)
    e(salu("s_lshl_b32", s_xb, s_w, 14))
    xl = [dma(vxo2 if t & 1 else vxo, S_X, 0, off=128 * (t >> 1)) for t in range(16)]
    def xissue(t): e(salu("s_add_u32", "m0", s_xb, t * 1024 - 128 * (t >> 1))); e(nop(0)); e(xl[t])
else:
    xl = [bload(v_xp[(4 * ks, 4)], vxo, S_X, 0, off=64 * ks) for ks in range(16)]
    def xissue(t): e(xl[t])
for ks in range(XFIRST): xissue(ks)
e(scmp("s_cmp_lt_u32", s_w, 2)); e(salu("s_cselect_b64", s_pair, s_ka[(12, 2)], s_ka[(14, 2)], scc_w=False, scc_r=True))
WT = int(os.environ.get("WT", "0"))
s_wgp = S(100, 2)
if WT:
    e(salu("s_lshl_b32", s_t3, S(2), 1)); e(salu("s_and_b32", s_t1, s_w, 1)); e(salu("s_add_u32", s_t3, s_t3, s_t1)); e(salu("s_mul_i32", s_t3, s_t3, 3584, scc_w=False))
    e(valu("v_lshlrev_b32", V(51), 7, v_lane)); e(valu("v_add_u32", V(51), s_t3, V(51)))
    e(raw("s_mov_b64 exec, 0xfffffff", "salu", wr=["exec"]))
    e(I("global_load_dword %s, %s, %s" % (V(48), V(51), s_pair), "vmem", rd=V(51).regs() + s_pair.regs(), wr=V(48).regs()))
    e(salu("s_mov_b64", s_wgp, s_pair, scc_w=False))
else:
    e(raw("s_mov_b64 exec, " + TL, "salu", wr=["exec"]))
    e(I("global_load_dword %s, %s, %s" % (V(48), vwg, s_pair), "vmem", rd=vwg.regs() + s_pair.regs(), wr=V(48).regs()))
e(raw("s_mov_b64 exec, 3", "salu", wr=["exec"]))
e(I("global_load_dword %s, %s, %s" % (V(49), vcw, s_pair2), "vmem", rd=vcw.regs() + s_pair2.regs(), wr=V(49).regs()))
e(raw("s_mov_b64 exec, -1", "salu", wr=["exec"]))
e(sx(s_t2)); e(salu("s_lshl_b32", s_t2, s_t2, 2)); e(salu("s_add_u32", s_t2, s_t2, s_w))
e(salu("s_lshl_b32", s_t2, s_t2, 16 if MAP2 else 15)); e(salu("s_lshl_b32", s_t3, s_g, 10)); e(salu("s_add_u32", s_t2, s_t2, s_t3))
e(valu("v_lshrrev_b32", vx, 3, v_lane)); e(valu("v_lshlrev_b32", vx, 13, vx)); e(valu("v_and_b32", vz, 7, v_lane)); e(valu("v_lshl_add_u32", vx, vz, 7, vx))
e(valu("v_add_u32", vwq, s_t2, vx))
e(salu("s_lshr_b32", s_t2, S(2), 6)); e(salu("s_and_b32", s_t3, S(2), 7)); e(salu("s_lshl_b32", s_t3, s_t3, 2)); e(salu("s_add_u32", s_t2, s_t2, s_t3))
e(salu("s_lshl_b32", s_t0, s_t2, 16))
srd(S_OUT, s_kb[2], s_kb[3], 65536, s_t0)
e(salu("s_lshl_b32", s_t1, s_g, 19))
srd(S_K, s_ka[2], s_ka[3], 524288, s_t1)
srd(S_V, s_ka[4], s_ka[5], 524288, s_t1)
srd(S_WO, s_ka[8], s_ka[9], 524288, s_t1)
srd(S_WQ, s_ka[6], s_ka[7], 4 << 20)
srd(S_WG, s_ka[12], s_ka[13], 1835008)
srd(S_WU, s_ka[14], s_ka[15], 1835008)
srd(S_WD, s_kb[0], s_kb[1], 1835008)
srd(S_DBG, s_kb[4], s_kb[5], 256)
e(salu("s_mul_i32", s_t1, s_qb, 229376, scc_w=False))
srd(S_H, s_kb[6], s_kb[7], 229376, s_t1)
e(salu("s_lshl_b32", s_t1, s_qb, 19)); e(salu("s_add_u32", s_t1, s_t1, hx(WS_SP)))
srd(S_SP, s_kb[6], s_kb[7], 524288, s_t1)
if DUMP or STAMP:
    e(salu("s_mov_b32", s_t1, hx(WS_DUMP), scc_w=False))
    srd(S_DMP, s_kb[6], s_kb[7], 200 << 20, s_t1)
e(salu("s_mov_b64", s_pair, S(90, 2), scc_w=False))
e(salu("s_lshl_b32", s_t0, s_t2, 16))
srd(S_XC, s_ka[0], s_ka[1], 65536, s_t0)
e(salu("s_mul_i32", s_t1, s_t2, 229376, scc_w=False))
srd(S_HC, s_pair[0], s_pair[1], 229376, s_t1)
e(salu("s_lshl_b32", s_t1, s_t2, 19)); e(salu("s_add_u32", s_t1, s_t1, hx(WS_SP)))
srd(S_SPC, s_pair[0], s_pair[1], 524288, s_t1)
e(salu("s_mov_b32", s_cq, s_t2, scc_w=False)); e(salu("s_bfe_u32", s_cg, S(2), "0x30003"))
e(salu("s_lshl_b32", s_myfl, s_qb, 2)); e(salu("s_add_u32", s_myfl, s_myfl, s_w)); e(salu("s_lshl_b32", s_myfl, s_myfl, 8))
e(salu("s_lshl_b32", s_t1, s_g, 2)); e(salu("s_add_u32", s_myfl, s_myfl, s_t1))
e(salu("s_lshl_b32", s_m0b, s_w, 12)); e(salu("s_add_u32", s_m0b, s_m0b, RING))
GM = int(os.environ.get("GM", "0"))
if GM:
    e(salu("s_lshl_b32", s_t1, s_w, 3)); e(salu("s_add_u32", s_t1, s_t1, s_g))
    e(salu("s_lshr_b32", s_t2, s_g, 1)); e(salu("s_add_u32", s_t2, s_t2, 24))
    e(scmp("s_cmp_eq_u32", s_w, 3)); e(salu("s_cselect_b32", s_t1, s_t2, s_t1, scc_w=False, scc_r=True))
else:
    e(salu("s_and_b32", s_t1, s_g, 1)); e(salu("s_lshl_b32", s_t1, s_t1, 2)); e(salu("s_add_u32", s_t1, s_t1, s_w))
    e(scmp("s_cmp_eq_u32", s_w, 3)); e(salu("s_cselect_b32", s_t1, 3, s_t1, scc_w=False, scc_r=True))
    e(salu("s_lshr_b32", s_t2, s_g, 1)); e(salu("s_mul_i32", s_t2, s_t2, 7, scc_w=False)); e(salu("s_add_u32", s_t1, s_t1, s_t2))
e(salu("s_lshl_b32", s_h0, s_t1, 13)); e(salu("s_add_u32", s_h1, s_h0, 4096))
e(salu("s_lshl_b32", s_t1, s_t1, 7))
e(salu("s_lshl_b32", s_t2, s_g, 2)); e(salu("s_add_u32", s_t2, s_t2, s_w)); e(salu("s_lshl_b32", s_t2, s_t2, 8))

def dma_voffs(dst, stride, colbase_s, perm):
    for j in range(4):
        e(valu("v_bfe_u32", vx, v_lane, 1, 2)); e(valu("v_bfe_u32", vy, v_lane, 4, 1))
        e(valu("v_xor_b32", vx, vx, vy))
        if j & 1: e(valu("v_xor_b32", vx, 2, vx))
        e(valu("v_and_b32", vy, 1, v_lane)); e(valu("v_lshlrev_b32", vy, 4, vy)); e(valu("v_lshl_add_u32", vx, vx, 5, vy))
        if not perm:
            e(valu("v_lshrrev_b32", vy, 3, v_lane)); rowadd = 8 * j
        else:
            e(valu("v_bfe_u32", vy, v_lane, 3, 2)); e(valu("v_bfe_u32", vz, v_lane, 5, 1)); e(valu("v_lshl_add_u32", vy, vz, 4, vy)); rowadd = 4 * j
        e(valu("v_mul_u32_u24", vy, stride, vy))
        e(valu("v_add3_u32", vx, vx, vy, colbase_s))
        e(valu("v_add_u32", dst[j], rowadd * stride - j * 1024, vx))

dma_voffs(v_dA, 3584, s_t1, False)
dma_voffs(v_dB, 8192, s_t2, False)

def m0set(p): return salu("s_add_u32", "m0", s_m0b, p * 16384) if p < 6 else salu("s_sub_u32", "m0", s_m0b, RING - (p - 6) * 16384)
def s1_dma(m):
    p = m % 6
    if m < 32:
        s, h = m >> 1, m & 1
        return [m0set(p), salu("s_mov_b32", s_off, s * 32 * 3584, scc_w=False)], [dma(v_dA[j], S_WU if h else S_WG, s_off, j * 1024) for j in range(4)]
    if m < 64:
        s, h = (m - 32) >> 1, m & 1
        return [m0set(p), salu("s_mov_b32", s_off, s * 32 * 8192 + 128 * h, scc_w=False)], [dma(v_dB[j], S_WQ, s_off, j * 1024) for j in range(4)]
    if m == 64:
        return [m0set(p), salu("s_mov_b32", s_off, 0, scc_w=False)], [dma(v_kd[j], S_K, s_off, j * 1024) for j in range(4)]
    if m == 65:
        return [m0set(p), salu("s_mov_b32", s_off, 8192, scc_w=False)], [dma(v_kd[j], S_K, s_off, j * 1024) for j in range(4)]
    if m == 66:
        return [m0set(p), salu("s_mov_b32", s_off, 0, scc_w=False)], [dma(v_vd[j & 1], S_V, s_off, j * 1024) for j in range(4)]
    return None
dtok = {}
ln_v = []
for m in range(6):
    sa, dm = s1_dma(m)
    ln_v.append(sa); ln_v += dm
    dtok[m] = dm[3]
def xaddr(dst, tmp):
    e(valu("v_and_b32", dst, 15, v_lane)); e(salu("s_lshl_b32", s_t0, s_w, 4)); e(valu("v_add_u32", dst, s_t0, dst)); e(valu("v_lshlrev_b32", dst, 10, dst))
    e(valu("v_lshrrev_b32", tmp, 4, v_lane)); e(valu("v_lshl_add_u32", dst, tmp, 3, dst)); e(salu("s_lshl_b32", s_t0, s_cg, 7)); e(valu("v_add_u32", dst, s_t0, dst))
WQT = int(os.environ.get("WQT", "0"))
wqt = [raw("s_mov_b64 exec, " + TL, "salu", wr=["exec"]), bload(V(46), vwq, S_WQ, 0, n=1), raw("s_mov_b64 exec, -1", "salu", wr=["exec"])]
WQC = int(os.environ.get("WQC", "0"))
wqs = wqt
if WQC:
    e(salu("s_lshl_b32", s_t3, S(2), 2)); e(salu("s_add_u32", s_t3, s_t3, s_w)); e(salu("s_lshl_b32", s_t3, s_t3, 12))
    e(valu("v_lshlrev_b32", V(54), 7, v_lane)); e(valu("v_add_u32", V(54), s_t3, V(54)))
    wqt = [raw("s_mov_b64 exec, 0xffffffff", "salu", wr=["exec"]), bload(V(49), V(54), S_WQ, 0, n=1), raw("s_mov_b64 exec, -1", "salu", wr=["exec"])]
if WT == 2:
    wgt = [raw("s_mov_b64 exec, " + TL, "salu", wr=["exec"]), I("global_load_dword %s, %s, %s" % (V(51), vwg, s_wgp), "vmem", rd=vwg.regs() + s_wgp.regs(), wr=V(51).regs()), raw("s_mov_b64 exec, -1", "salu", wr=["exec"])]
    ln_v.insert(int(os.environ.get("WTP", "0")), wgt)
if WQT == 0: ln_v.append(wqt)
LNPRE = int(os.environ.get("LNPRE", "0"))
lv = [0]
def ln_issue(n=1):
    k = 0
    while k < n and lv[0] < len(ln_v):
        it = ln_v[lv[0]]; lv[0] += 1
        e(it)
        if not isinstance(it, list): k += 1
e(valu("v_bfe_u32", vr, v_lane, 2, 2)); e(valu("v_and_b32", vc_, 3, v_lane))
e(valu("v_lshlrev_b32", vx, 10, vG)); e(valu("v_lshl_add_u32", vx, vr, 7, vx)); e(valu("v_lshl_add_u32", vx, vc_, 3, vx)); e(valu("v_add_u32", vx, s_m0b, vx))
e(valu("v_lshrrev_b32", vy, 1, vr)); e(valu("v_and_b32", vz, 1, vG)); e(valu("v_lshl_add_u32", vy, vz, 1, vy))
for u in range(4):
    e(valu("v_xor_b32", vz, u, vy)); e(valu("v_lshl_add_u32", v_tr[0][u], vz, 5, vx)); e(valu("v_add_u32", v_tr[1][u], 3 * 16384, v_tr[0][u]))
e(valu("v_xor_b32", vy, vG, vq))
for ds in range(4):
    e(valu("v_xor_b32", vz, 4 * ds, vy)); e(valu("v_lshlrev_b32", vz, 4, vz)); e(valu("v_lshl_add_u32", vz, vq, 8, vz)); e(valu("v_add_u32", v_ka[ds], RING + 4 * 16384, vz))
e(valu("v_lshl_add_u32", vx, vG, 2, vr)); e(valu("v_and_b32", vy, 7, vx)); e(valu("v_lshlrev_b32", vx, 8, vx)); e(valu("v_lshl_add_u32", vx, vc_, 3, vx)); e(valu("v_add_u32", vx, RING, vx))
for db in range(8):
    e(valu("v_xor_b32", vz, db, vy)); e(valu("v_lshl_add_u32", v_va[db], vz, 5, vx))
e(salu("s_lshl_b32", s_t1, s_w, 12))
e(valu("v_lshlrev_b32", vx, 8, vG)); e(valu("v_add_u32", vx, s_t1, vx))
for j in range(4):
    e(valu("v_add_u32", vy, 4 * j, vG)); e(valu("v_xor_b32", vy, vy, vq)); e(valu("v_lshl_add_u32", v_kd[j], vy, 4, vx))
e(valu("v_and_b32", vz, 1, v_lane)); e(valu("v_lshl_add_u32", vx, vz, 4, vx))
for j in range(2):
    e(valu("v_add_u32", vy, 4 * j, vG)); e(valu("v_lshrrev_b32", vz, 1, vq)); e(valu("v_xor_b32", vy, vy, vz)); e(valu("v_lshl_add_u32", v_vd[j], vy, 5, vx))
e(salu("s_lshl_b32", s_t1, s_w, 14)); e(valu("v_add_u32", v_wl, s_t1, v_lin))
for ks in range(XFIRST, 16): xissue(ks)
if XD:
    e(valu("v_lshrrev_b32", vx, 1, vq)); e(valu("v_xor_b32", vx, vx, vG)); e(valu("v_lshlrev_b32", vx, 4, vx))
    e(valu("v_lshl_add_u32", vx, vq, 7, vx)); e(valu("v_add_u32", vxr[0], s_xb, vx)); e(valu("v_xor_b32", vxr[1], 64, vxr[0]))
e(salu("s_mov_b32", s_t1, hx(WS_FL), scc_w=False))
srd(S_FL, s_pair[0], s_pair[1], 32768, s_t1)
if WQT == 1: e(wqt)
ln_issue(LNPRE)
stamp()

v_f = V(128, 128)
LNM = int(os.environ.get("LNM", "1"))
vsum, vtmp, vmb, vdm = V(40), V(41), V(42), V(43)
vneg = V(56, 2)
diag(2)
if LNM:
    d1, d2 = V(56, 4), V(60, 4)
    xr = {}
    def xread(t2):
        em.wait(vm=xl[2 * t2 + 1])
        for ks in (2 * t2, 2 * t2 + 1): xr[ks] = e(dsread("ds_read_b128", v_xp[(4 * ks, 4)], vxr[ks & 1], (ks >> 1) * 2048))
    e(valu("v_mov_b32", vtmp, "0x3f803f80"))
    for i in range(4): e(valu("v_accvgpr_write_b32", a_ones[i], vtmp))
    e(valu("v_and_b32", vtmp, 3, v_lane))
    for r in range(1, 4): e(valu("v_cmp_eq_u32", S(68 + 2 * r, 2), r, vtmp))
    e(valu("v_bfe_u32", vtmp, v_lane, 2, 2)); e(valu("v_lshrrev_b32", vmb, 4, v_lane)); e(valu("v_cmp_eq_u32", S(68, 2), vtmp, vmb))
    LND = int(os.environ.get("LND", "4"))
    if XD: xread(0)
    for ks in range(16):
        if XD:
            if ks % 2 == 0 and ks + 2 < 16: xread(ks // 2 + 1)
            em.wait(lg=xr[ks])
        else: em.wait(vm=xl[ks])
        if ks == 15: diag(2)
        x4 = v_xp[(4 * ks, 4)]
        e(mfma(d1, a_ones, x4, 0 if ks == 0 else d1))
        if ks >= LND: ln_issue(1)
        for k in range(2):
            p = 4 * ks + k
            e(valu("v_lshlrev_b32", v_f[2 * p], 16, v_xp[p])); e(valu("v_and_b32", v_f[2 * p + 1], "0xffff0000", v_xp[p]))
        e(mfma(d2, x4, x4, 0 if ks == 0 else d2))
        for k in range(2, 4):
            p = 4 * ks + k
            e(valu("v_lshlrev_b32", v_f[2 * p], 16, v_xp[p])); e(valu("v_and_b32", v_f[2 * p + 1], "0xffff0000", v_xp[p]))
    if STAMP == 3: stamp()
    ln_issue(int(os.environ.get("LN_FIRST", "0")))
    diag(2)
    if STAMP == 3: stamp()
    e(nop(2))
    e(valu("v_mul_f32", vsum, hx(f2u(1.0 / 512)), d1[0]))
    e(valu("v_cvt_pk_bf16_f32", vmb, vsum, vsum)); e(valu("v_lshlrev_b32", vmb, 16, vmb))
    e(valu("v_mov_b32", vdm, vsum))
    for r in range(1, 4): e(valu("v_cndmask_b32", d2[0], d2[0], d2[r], S(68 + 2 * r, 2)))
    e(valu("v_cndmask_b32", vsum, 0, d2[0], S(68, 2)))
    red4("v_add_f32", [vsum], [vtmp])
    e(valu("v_mul_f32", vsum, hx(f2u(1.0 / 512)), vsum))
    e(valu("v_fma_f32", vsum, "-" + str(vdm), vdm, vsum, extra_rd=vdm.regs()))
    if STAMP == 3: stamp()
else:
    acc = [V(56, 2), V(58, 2), V(60, 2), V(62, 2)]
    for ks in range(16):
        em.wait(vm=xl[ks])
        if ks == 15: diag(2)
        for k in range(4):
            p = 4 * ks + k
            e(valu("v_lshlrev_b32", v_f[2 * p], 16, v_xp[p])); e(valu("v_and_b32", v_f[2 * p + 1], "0xffff0000", v_xp[p]))
        for k in range(4):
            p = 4 * ks + k
            if ks == 0: e(valu("v_mov_b64", acc[k], v_f[(2 * p, 2)]))
            else: e(valu("v_pk_add_f32", acc[k], acc[k], v_f[(2 * p, 2)]))
    if STAMP == 3: stamp()
    ln_issue(int(os.environ.get("LN_FIRST", "12")))
    diag(2)
    if STAMP == 3: stamp()
    e(valu("v_pk_add_f32", acc[0], acc[0], acc[1])); e(valu("v_pk_add_f32", acc[2], acc[2], acc[3])); e(valu("v_pk_add_f32", acc[0], acc[0], acc[2]))
    e(valu("v_add_f32", vsum, acc[0][0], acc[0][1]))
    red4("v_add_f32", [vsum], [vtmp])
    e(valu("v_mul_f32", vsum, hx(f2u(1.0 / 512)), vsum))
    e(valu("v_cvt_pk_bf16_f32", vmb, vsum, vsum)); e(valu("v_lshlrev_b32", vmb, 16, vmb))
    e(valu("v_sub_f32", vdm, vsum, vmb))
    e(valu("v_sub_f32", vneg[0], 0, vmb))
    acc2 = [V(58, 2), V(60, 2), V(62, 2)]
    for p in range(64):
        e(valu("v_pk_add_f32", v_f[(2 * p, 2)], v_f[(2 * p, 2)], vneg, mod="op_sel_hi:[1,0]"))
    for p in range(64):
        a_ = acc2[p % 3]
        if p < 3: e(valu("v_pk_mul_f32", a_, v_f[(2 * p, 2)], v_f[(2 * p, 2)]))
        else: e(valu("v_pk_fma_f32", a_, v_f[(2 * p, 2)], v_f[(2 * p, 2)], a_))
    if STAMP == 3: stamp()
    e(valu("v_pk_add_f32", acc2[0], acc2[0], acc2[1])); e(valu("v_pk_add_f32", acc2[0], acc2[0], acc2[2]))
    e(valu("v_add_f32", vsum, acc2[0][0], acc2[0][1]))
    red4("v_add_f32", [vsum], [vtmp])
    e(valu("v_mul_f32", vsum, hx(f2u(1.0 / 512)), vsum))
    e(valu("v_fma_f32", vsum, "-" + str(vdm), vdm, vsum, extra_rd=vdm.regs()))
e(valu("v_max_f32", vsum, 0, vsum))
e(valu("v_cvt_pk_bf16_f32", vsum, vsum, vsum)); e(valu("v_lshlrev_b32", vsum, 16, vsum))
e(valu("v_add_f32", vsum, hx(f2u(1e-5)), vsum))
e(valu("v_cvt_pk_bf16_f32", vsum, vsum, vsum)); e(valu("v_lshlrev_b32", vsum, 16, vsum))
e(valu("v_sqrt_f32", vsum, vsum)); e(nop(0))
e(valu("v_cvt_pk_bf16_f32", vsum, vsum, vsum)); e(valu("v_lshlrev_b32", vsum, 16, vsum))
e(valu("v_rcp_f32", vneg[0], vsum)); e(nop(0))
if LNM: e(valu("v_mul_f32", vneg[1], "-" + str(vmb), vneg[0], mod="", extra_rd=vmb.regs()))
for ks in range(16):
    for k in range(4):
        p = 4 * ks + k
        if LNM: e(valu("v_pk_fma_f32", v_f[(2 * p, 2)], v_f[(2 * p, 2)], vneg, vneg, mod="op_sel:[0,0,1] op_sel_hi:[1,0,1]"))
        else: e(valu("v_pk_mul_f32", v_f[(2 * p, 2)], v_f[(2 * p, 2)], vneg, mod="op_sel_hi:[1,0]"))
    for k in range(4):
        p = 4 * ks + k
        e(valu("v_cvt_pk_bf16_f32", v_xp[p], v_f[2 * p], v_f[2 * p + 1]))
    e(dswrite("ds_write_b128", v_wl, v_xp[(4 * ks, 4)], ks * 1024))
ln_issue(int(os.environ.get("LN_LAST", "100")))
if STAMP == 3: stamp()
if DUMP == "ln": dump_regs([v_xp[i] for i in range(64)])
em.wait(lg0=True)
e(raw("s_barrier"))
stamp(); diag(); diag(2); diag(3)

def cost_of(it):
    k = getattr(it, "kind", "")
    return 2 if k == "trans" else (0 if k in ("salu", "nop") else 1)
class Fill:
    def __init__(self, items, start, end, spread=False): self.items, self.start, self.end, self.spread = list(items), start, end, spread; self.i = 0
    def done(self): return self.i == len(self.items)
def run_stream(NH, dmaf, dtok, accf, Bf, extra, fills, LOOK=6, nq=4, posf=lambda m: m % 6, ring=a_ring, first_dma=6, tr2=None, early_dma=False, w2=lambda g: False):
    NG = 4 * NH
    rtok = {}
    def reads(g):
        m, u = g >> 2, g & 3
        p = posf(m)
        d = ring[((g % 8) * 4, 4)]
        ar, of = (v_tr[p // 3][u], (p % 3) * 16384) if p < 6 else (tr2[u], (p - 6) * 16384)
        r = [dsread("ds_read_b64_tr_b16", d[(2 * h2, 2)], ar, of + h2 * 512) for h2 in range(2)]
        rtok[g] = r[1]
        return r
    pre = [reads(g) for g in range(3)]
    G, C = [], []
    cur = None
    for g in range(NG):
        gaps = [[], [], [], []]; cap = [2, 2, 2, 2]
        if g + 3 < NG:
            if (g + 3) & 3 == 0 and not (g > 0 and w2(g - 1)): gaps[0].append(LateW(dtok, (g + 3) >> 2))
            r = reads(g + 3); gaps[0].append(r[0]); gaps[1].append(r[1]); cap[0] -= 1; cap[1] -= 1
        md, j = (g + 4 * LOOK - 4) >> 2, (g + 4 * LOOK - 4) & 3
        if early_dma:
            md, j = (g + 4 * LOOK - 3) >> 2, (g + 4 * LOOK - 3) & 3
            if md >= first_dma and j < 2:
                if j == 0: cur = dmaf(md)
                if cur is not None:
                    if j == 0: gaps[1] += cur[0]
                    gaps[2].append(cur[1][2 * j]); gaps[3].append(cur[1][2 * j + 1]); cap[2] -= 1; cap[3] -= 1
                    if j == 1: dtok[md] = cur[1][3]
        elif md >= first_dma:
            if j == 0: cur = dmaf(md)
            if cur is not None:
                if j == 0: gaps[2] += cur[0]
                for it in cur[1][j::4]: gaps[3].append(it); cap[3] -= 1
                if j == 3: dtok[md] = cur[1][3]
        for (gp, it, cost) in extra.get(g, []):
            gaps[gp].append(it); cap[gp] -= cost
        if w2(g):
            if g & 1 == 0 and g + 1 < NG:
                gaps[3].insert(0, LateW2(rtok, [x for x in (g + 1, g + 2) if x < NG], dtok, (g + 4) >> 2 if ((g + 4) & 3 == 0 and g + 4 < NG) else None))
        elif g + 1 < NG: gaps[3].insert(0, Wait(lg=rtok[g + 1]))
        G.append(gaps); C.append(cap)
    B = {}
    for f in fills:
        idx = [(g, q) for g in range(f.start, f.end) for q in range(4)]
        caps = [max(0, C[g][q]) for g, q in idx]
        W = sum(cost_of(it) for it in f.items); T = sum(caps); n = len(idx)
        acc = 0.0; cum = 0
        for k, key in enumerate(idx):
            if W >= T: acc += caps[k] + (W - T) / n
            elif f.spread: acc += caps[k] * W / T
            else: acc += caps[k]
            B[key] = (f, acc)
    em.wait(vm=dtok[0])
    for r in pre: e(r)
    for p_ in extra.get(-1, []): e(p_[1])
    em.wait(lg0=True)
    used = {id(f): 0 for f in fills}
    for g in range(NG):
        m, u = g >> 2, g & 3
        d = ring[((g % 8) * 4, 4)]
        for qb in range(nq):
            ac, first = accf(m, u, qb)
            e(mfma(ac, d, Bf(m, qb), 0 if first else ac))
            ent = B.get((g, qb))
            sawv = False
            if ent:
                f, lim = ent
                while not f.done() and getattr(f.items[f.i], "kind", "") in ("lds", "vmem", "salu") and used[id(f)] + cost_of(f.items[f.i]) <= lim + 0.5:
                    it = f.items[f.i]; f.i += 1; used[id(f)] += cost_of(it); e(it)
            for it in G[g][qb]: e(it)
            if ent:
                f, lim = ent
                lastgap = (g == f.end - 1 and qb == 3)
                while not f.done():
                    it = f.items[f.i]; c = cost_of(it)
                    if not lastgap:
                        if used[id(f)] + c > lim + 0.5: break
                        if sawv and getattr(it, "kind", "") in ("lds", "vmem"): break
                    f.i += 1; used[id(f)] += c; e(it)
                    if getattr(it, "kind", "") in ("valu", "trans"): sawv = True
    assert all(f.done() for f in fills)
class LateW2:
    def __init__(self, r, fl, d, k): self.r, self.fl, self.d, self.k = r, fl, d, k
    def __call__(self): return Wait(lg=[self.r[f] for f in self.fl], vm=(self.d[self.k] if self.k is not None else None))
class LateW:
    def __init__(self, d, k): self.d, self.k = d, k
    def __call__(self): return Wait(vm=self.d[self.k])

def s1_acc(m, u, qb):
    h = m & 1
    idx = ((h * 4 + u) * 4 + qb) * 4
    if m < 32: return A(idx, 4), m < 2
    return v_acc[(idx, 4)], m < 34
def s1_B(m, qb): return a_B[(((m >> 1) & 1) * 16 + qb * 4, 4)]
extra = {}
btok = {}
def bread(s, qb): return dsread("ds_read_b128", a_B[((s & 1) * 16 + qb * 4, 4)], v_lin, (qb * 16 + (s % 16)) * 1024)
extra[-1] = [(0, bread(0, qb), 1) for qb in range(4)]
for s in range(1, 32):
    for qb in range(4):
        extra.setdefault(8 * (s - 1) + 1 + qb, []).append((2, bread(s, qb), 1))
gi = 0; gj = 0; pend_s = []
for it in ln_v[lv[0]:]:
    if isinstance(it, list) and all(x.kind == "salu" for x in it): pend_s = it; continue
    if not isinstance(it, list) and it.kind == "dma":
        assert gi < 12
        extra.setdefault(gi // 3, []).append((gi % 3, [pend_s, it] if pend_s else it, 1)); pend_s = []
        gi += 1
    else:
        extra.setdefault(8 + 2 * gj, []).append((1, it, 1)); gj += 1
if WQC == 2: extra.setdefault(int(os.environ.get("WQG", "40")), []).append((1, wqs, 1))
C0 = -2.0 * math.sqrt(2.0 / math.pi) * math.log2(math.e); C1 = C0 * 0.044715
vc0, vc1 = V(40), V(41)
gel = [valu("v_mov_b32", vc0, hx(f2u(C0))), valu("v_mov_b32", vc1, hx(f2u(C1)))]
hst = []
tb = 0
for i in range(2):
    for qb in range(4):
        pk = V(96 + 4 * tb, 4); tb += 1
        for b in range(2):
            u = 2 * i + b
            T = [V(64 + 16 * b + k) for k in range(16)]
            G_, U_, X_ = T[0:4], T[4:8], T[8:12]
            ga = lambda r: A((u * 4 + qb) * 4 + r); ua = lambda r: A(((4 + u) * 4 + qb) * 4 + r)
            for r in range(4): gel.append(valu("v_accvgpr_read_b32", G_[r], ga(r)))
            for r in range(4): gel.append(valu("v_accvgpr_read_b32", U_[r], ua(r)))
            for r in range(4): gel.append(valu("v_mul_f32", X_[r], G_[r], G_[r]))
            for r in range(4): gel.append(valu("v_fma_f32", X_[r], X_[r], vc1, vc0))
            for r in range(4): gel.append(valu("v_mul_f32", X_[r], X_[r], G_[r]))
            for r in range(4): gel.append(valu("v_exp_f32", X_[r], X_[r]))
            for r in range(4): gel.append(valu("v_mul_f32", G_[r], G_[r], U_[r]))
            for r in range(4): gel.append(valu("v_add_f32", X_[r], "1.0", X_[r]))
            for r in range(4): gel.append(valu("v_rcp_f32", X_[r], X_[r]))
            gel.append(nop(0))
            for r in range(4): gel.append(valu("v_mul_f32", G_[r], G_[r], X_[r]))
            for k in range(2): gel.append(valu("v_cvt_pk_bf16_f32", pk[2 * b + k], G_[2 * k], G_[2 * k + 1]))
        st = bstore(pk, v_lin, S_H, s_h1 if i else s_h0, off=qb * 1024, mod="sc1")
        hst.append(st)
class Stamp:
    def __call__(self): stamp(); return []
if STAMP: extra.setdefault(128, []).append((0, Stamp(), 0))
if STAMP == 6:
    for g_ in (0, 8, 16, 24, 32, 48, 64, 96): extra.setdefault(g_, []).append((0, Stamp(), 0))
class Diag3:
    def __call__(self): diag(3); return []
if DIAG == 3:
    for g_ in (32, 128, 192): extra.setdefault(g_, []).append((0, Diag3(), 0))
class Grp:
    kind = "salu"
    def __init__(self, l): self.l = l
    def __call__(self):
        for x in self.l:
            if x.kind == "label": em.out.append(x)
            else: e(x)
        return []
def group_scc(items):
    out = []
    for it in items:
        if out and ("scc" in it.rd or it.kind == "label"):
            p = out.pop(); out.append(Grp((p.l if isinstance(p, Grp) else [p]) + [it]))
        else: out.append(it)
    return out
s_pf = [S(24, 2), S(26, 2), S(28, 2), S(30, 2)]
s_pfH = s_pair2
s_fo = S(3)
QS = math.log2(math.e) / math.sqrt(128.0)
vqs = V(42, 2); vqw = V(44)
save = em.out; em.out = []; spend = em.pend; em.pend = {}
NWO = 4 if MAP2 else 2
for it in range(3):
    e(salu("s_add_u32", s_t0, s_w, 4 * it))
    e(salu("s_sub_u32", s_t1, s_t0, NWO)); e(salu("s_min_u32", s_t1, s_t1, 6)); e(salu("s_lshl_b32", s_t1, s_t1, 13))
    e(salu("s_lshr_b32", s_t2, S(2), 3)); e(salu("s_mul_i32", s_t2, s_t2, 57344, scc_w=False)); e(salu("s_add_u32", s_t1, s_t1, s_t2))
    e(salu("s_add_u32", s_pf[it][0], S_WD[0], s_t1)); e(salu("s_addc_u32", s_pf[it][1], S_WD[1], 0, scc_r=True))
    if it == 0:
        e(sx(s_t1)); e(salu("s_lshl_b32", s_t1, s_t1, 15 if MAP2 else 14)); e(salu("s_lshl_b32", s_t2, s_w, 13)); e(salu("s_add_u32", s_t1, s_t1, s_t2))
        e(salu("s_add_u32", s_pf[1][0], S_WO[0], s_t1)); e(salu("s_addc_u32", s_pf[1][1], S_WO[1], 0, scc_r=True))
        e(scmp("s_cmp_lt_u32", s_w, NWO)); e(salu("s_cselect_b64", s_pf[0], s_pf[1], s_pf[0], scc_w=False, scc_r=True))
e(raw("s_getpc_b64 %s" % s_pf[3], "salu", wr=[s_pf[3]]))
em.label("L_pc1")
e(salu("s_lshl_b32", s_t0, s_w, 13)); e(salu("s_add_u32", s_t0, s_t0, "L_tail-L_pc1")); e(salu("s_min_u32", s_t0, s_t0, "L_code_end-L_pc1-8192"))
e(salu("s_add_u32", s_t1, s_t0, (1 if MAP2 else 3) * 8192)); e(salu("s_min_u32", s_t1, s_t1, "L_code_end-L_pc1-8192"))
e(salu("s_add_u32", s_pfH[0], s_pf[3][0], s_t1)); e(salu("s_addc_u32", s_pfH[1], s_pf[3][1], 0, scc_r=True))
e(scmp("s_cmp_lt_u32", s_w, 3 if MAP2 else 1)); e(salu("s_cselect_b64", s_pf[2], s_pf[2], s_pfH, scc_w=False, scc_r=True))
e(salu("s_add_u32", s_pf[3][0], s_pf[3][0], s_t0)); e(salu("s_addc_u32", s_pf[3][1], s_pf[3][1], 0, scc_r=True))
e(salu("s_lshl_b32", s_t0, s_cg, 2)); e(salu("s_add_u32", s_t0, s_t0, s_w)); e(salu("s_mul_i32", s_t0, s_t0, 7168, scc_w=False)); e(salu("s_min_u32", s_t0, s_t0, 229376 - 8192))
e(salu("s_add_u32", s_pfH[0], S_HC[0], s_t0)); e(salu("s_addc_u32", s_pfH[1], S_HC[1], 0, scc_r=True))
e(salu("s_lshl_b32", s_fo, s_cq, 3))
vx, vy, vz = V(45), V(46), V(47)
e(salu("s_lshl_b32", s_t1, s_w, 8))
dma_voffs(v_dA, 1024, s_t1, True)
e(salu("s_mul_i32", s_wdd, s_w, 448 * 1024 - 256, scc_w=False)); e(salu("s_lshl_b32", s_t3, s_cg, 7)); e(salu("s_add_u32", s_wdd, s_wdd, s_t3))
e(valu("v_mov_b32", vqs[0], hx(f2u(QS))))
e(valu("v_and_b32", vx, 15, v_lane)); e(valu("v_bfe_u32", vqw, v_lane, 5, 1)); e(valu("v_lshl_add_u32", vx, vqw, 4, vx)); e(valu("v_lshlrev_b32", vx, 4, vx))
e(valu("v_bfe_u32", vqw, v_lane, 4, 1)); e(valu("v_lshl_add_u32", vqw, vqw, 3, vx))
e(salu("s_lshl_b32", s_t1, s_w, 14)); e(valu("v_add_u32", vqw, s_t1, vqw))
for i in range(16): e(valu("v_accvgpr_write_b32", a_L[i], 0))
midset = group_scc(em.out); em.out = save; em.pend = spend
HST = int(os.environ.get("HST", "0"))
if HST == 0: GEL_END = 254
for k in range(8):
    if HST: extra.setdefault(248 + k, []).append((0, hst[k], 1))
run_stream(64, s1_dma, dtok, s1_acc, s1_B, extra, [Fill(midset, 109, 130), Fill(gel, 131, GEL_END)], early_dma=int(os.environ.get('ED1', '0')), w2=lambda g: int(os.environ.get('W2A', '1')) and g >= 130)
if DUMP == "qacc": dump_regs([v_acc[i] for i in range(128)])
stamp(); diag(3)

em.wait(lg0=True)
e(raw("s_barrier"))
def signal(off_s_expr_add, lab, v_t):
    e(scmp("s_cmp_lg_u32", s_w, 0)); e(raw("s_cbranch_scc1 %s" % lab, rd=["scc"]))
    e(salu("s_lshl_b32", s_t0, s_qb, 2))
    if off_s_expr_add: e(salu("s_add_u32", s_t0, s_t0, off_s_expr_add))
    e(valu("v_mov_b32", v_t, 1))
    e(raw("s_mov_b64 exec, 1", "salu", wr=["exec"]))
    e(raw("buffer_atomic_add %s, off, %s, %s sc1" % (v_t, S_DBG, s_t0)))
    e(raw("s_mov_b64 exec, -1", "salu", wr=["exec"]))
    em.label(lab)
for blk in range(8):
    for qb in range(4):
        a_ = v_acc[((blk * 4 + qb) * 4, 4)]
        t = a_[(0, 2)]
        for k in range(2): e(valu("v_pk_mul_f32", a_[(2 * k, 2)], a_[(2 * k, 2)], vqs, mod="op_sel_hi:[1,0]"))
        for k in range(2): e(valu("v_cvt_pk_bf16_f32", t[k], a_[2 * k], a_[2 * k + 1]))
        e(dswrite("ds_write_b64", vqw, t, (qb * 4 + (blk >> 1)) * 1024 + (blk & 1) * 512))
for j in range(4): e(valu("v_add_u32", v_dB[j], s_wdd, v_dA[j]))
em.wait(lg0=True)
for f in range(16): e(dsread("ds_read_b128", a_Q[(4 * f, 4)], v_wl, f * 1024))
e(scmp("s_cmp_eq_u32", s_retry, 1)); e(raw("s_cbranch_scc1 L_maxpass", rd=["scc"]))
em.label("L_att_start")
NZ0 = 32
for i in range(NZ0): e(valu("v_mov_b64", v_acc[(2 * i, 2)], 0))
assert LSUM == 1 and LNM and not POI
e(valu("v_lshlrev_b32", V(3), 7, v_lane))
e(valu("v_and_b32", V(38), 7, v_lane)); e(valu("v_mov_b32", V(0), 0))
em.wait(vm=dtok[66], lg0=True)
e(raw("s_barrier"))
if DUMP == "q": dump_regs([a_Q[i] for i in range(64)])
stamp()

def Qf(qb, ds): return a_Q[((qb * 4 + ds) * 4, 4)]
def Of(db, qb): return v_acc[((db * 4 + qb) * 4, 4)]
def fr(f): return a_ring[((f % 8) * 4, 4)]
def kslot(par): return 16384 if par == 0 else 0
def vslot(par): return 0 if par == 0 else 16384
def frag_reads(par, f):
    if f >= 32: par ^= 1; f -= 32
    d = fr(f)
    if f < 8 or 16 <= f < 24:
        kb = (f >> 2) if f < 8 else 2 + ((f - 16) >> 2)
        return [dsread("ds_read_b128", d, v_ka[f & 3], kslot(par) + kb * 4096)]
    ks2 = 0 if f < 16 else 1
    db = f & 7
    return [dsread("ds_read_b64_tr_b16", d[(2 * h, 2)], v_va[db], vslot(par) + ks2 * 8192 + h * 4096) for h in range(2)]
def read_sched(g):
    r = []
    if g + 3 < 24 or g >= 29: r.append(g + 3)
    if 19 <= g <= 26: r.append(g + 5)
    return r
def sm_val(g, k):
    if 7 <= g <= 22: b = 1; n = 2 * (g - 7) + k
    else: b = 0; n = 2 * ((g - 23) % 32) + k
    kb, qb, r = n >> 4, (n >> 2) & 3, n & 3
    return b, qb, kb, r
def sm_items(g):
    ex, ad = [], []
    for k in range(2):
        b, qb, kb, r = sm_val(g, k)
        x = v_S[b][qb * 8 + kb * 4 + r]
        l = (v_l1 if b else v_l0)[qb]
        ex.append(valu("v_exp_f32", x, x)); ad.append(valu("v_add_f32", l, l, x))
    b, qb, kb, r = sm_val((g - 1) % 32, 0)
    cv = valu("v_cvt_pk_bf16_f32", v_S[b][qb * 8 + kb * 2 + (r >> 1)], v_S[b][qb * 8 + kb * 4 + r], v_S[b][qb * 8 + kb * 4 + r + 1])
    return ex, ad, cv
def att_dma(par, g):
    if g >= 29: k = g - 29; sp = par
    elif g <= 4: k = g + 3; sp = par ^ 1
    else: return [], None
    sal = []
    if k == 0: sal = [salu("s_add_u32", "m0", s_m0b, 4 * 16384 + kslot(sp))]
    if k == 4: sal = [salu("s_add_u32", "m0", s_m0b, vslot(sp))]
    if k < 4: return sal, dma(v_kd[k], S_K, s_kK, k * 1024)
    return sal, dma(v_vd[k & 1], S_V, s_kV, (k - 4) * 1024)
SIDE_FIRST = 11
class Lbl:
    def __init__(self, n): self.n = n
    def __call__(self): em.label(self.n); return []
class LoopStamp:
    def __init__(self, k, par): self.k, self.par = k, par
    def __call__(self):
        k = self.k
        e(raw("s_memtime %s" % S(68 + 2 * k, 2), "other", wr=[S(68 + 2 * k, 2)]))
        if k == 2:
            e(raw("s_waitcnt lgkmcnt(0)", "wait")); em._retire(em.lgq, 0)
            for i in range(3): e(valu("v_writelane_b32", v_c, S(68 + 2 * i), i, rmw=True))
            e(salu("s_lshl_b32", S(74), S(2), 2)); e(salu("s_add_u32", S(74), S(74), s_w)); e(salu("s_lshl_b32", S(74), S(74), 4))
            e(salu("s_sub_u32", S(74), S(74), s_cnt)); e(salu("s_add_u32", S(74), S(74), 16)); e(salu("s_lshl_b32", S(74), S(74), 5))
            e(salu("s_add_u32", S(74), S(74), (1 << 20) + 16 * self.par))
            e(raw("s_mov_b64 exec, 7", "salu", wr=["exec"]))
            e(valu("v_lshlrev_b32", v_t, 2, v_lane))
            e(bstore(v_c, v_t, S_DMP, S(74), off=0))
            e(raw("s_mov_b64 exec, -1", "salu", wr=["exec"]))
            e(valu("v_lshlrev_b32", v_t, 7, v_lane))
        return []
v_tch, v_flag, v_fa = V(3), V(0), V(38)
xtok = []; lastdma = [None]
NITER = 14
s_po0, s_po1, s_poe = s_h0, s_h1, s_off
s_pfc = S(16, 2); s_kvt = S(18, 2); KVIT = int(os.environ.get('KVIT', '12'))
ROT = int(os.environ.get('ROT', '8'))
LQ = int(os.environ.get("LQ", "2"))
def plan_adds():
    nmem = {}
    for g in range(32):
        n = sum(1 if (f % 32 < 8 or 16 <= f % 32 < 24) else 2 for f in read_sched(g)) + (1 if (g >= 29 or g <= 4) else 0) + (1 if g in (13, 14) else 0)
        nmem[g] = n
    free = {}
    for g in range(32):
        n = nmem[g]; a1 = 2 if n > 2 else min(n, 1); a3 = n - a1
        if a1 < 2: a1 += 1
        else: a3 += 1
        if g == 0: a1 += 1
        free[(g, 1)] = max(0, 2 - a1); free[(g, 3)] = max(0, 2 - a3)
        free[(g, 4)] = 2 if ((g & 8) and (g & 1) and ((g & 7) >> 1) < LQ) else 0
    jobs = []
    for g in range(7, 39):
        for k in range(2):
            b, qb, kb, r = sm_val(g % 32, k)
            if qb < LQ: continue
            early = 4 * g + (1 if k == 0 else 3)
            idx = kb * 4 + r
            if idx < 4:
                gsrc = g + 1 if idx == 0 else (g + 2 if idx == 1 else (g + 8 if idx == 2 else g + 9))
                dead = 4 * gsrc
            else: dead = 4 * (g + 11)
            if b == 1: dead = min(dead, 4 * 30)
            jobs.append((dead, early, b, qb, idx))
    plan = {}
    for dead, early, b, qb, idx in sorted(jobs):
        for t in range(early, dead):
            g, q = t >> 2, t & 3
            for gp in ([1] if q == 1 else ([3, 4] if q == 3 else [])):
                if free[(g % 32, gp)] > 0:
                    free[(g % 32, gp)] -= 1; plan.setdefault((g % 32, gp), []).append((b, qb, idx, g)); break
            else: continue
            break
        else:
            g = early >> 2; plan.setdefault((g % 32, early & 3), []).append((b, qb, idx, g)); print("; add overflow", g, file=sys.stderr)
    return plan
ADDS = plan_adds() if LSUM == 3 else {}
def add_items(g, gp, fin, pro):
    out = []
    for b, qb, idx, gabs in ADDS.get((g, gp), []):
        if fin and b == 0 and g >= 23: continue
        if pro and b == 1: continue
        out.append(valu("v_add_f32", v_l1[qb], v_l1[qb], v_S[b][qb * 8 + idx]))
    return out
ftok = {}
def att_group(par, g, do_mfma=True, do_mem=True, do_cvt=True, last=False, pp=None, xmem=(), xsal=(), xvalu=None):
    ex, ad, cv = sm_items(g)
    mem = []
    sal = []
    fin = (pp == 3)
    d = None
    if do_mem:
        if fin: sched = ([g + 3] if g + 3 < 16 else []) + ([g + 11] if 13 <= g <= 20 else [])
        else: sched = read_sched(g)
        for f in sched:
            r = frag_reads(par, f); mem += r; ftok[f % 32] = r
        if pp is None or (g <= 4 and pp <= 2) or (g >= 29 and pp <= 1):
            sal, d = att_dma(par, g)
            if d is not None: mem.append(d)
    loop = do_mem and pp is None
    post0 = []
    if loop and par == 0:
        if g == 14: mem.append(I("global_load_dword %s, %s, %s" % (v_c, v_tch, s_pfc), "vmem", rd=v_tch.regs() + s_pfc.regs(), wr=[]))
        if g == 13: mem.append(I("buffer_load_ubyte %s, %s, %s, %s offen sc1" % (v_flag, v_fa, S_DBG, s_t2), "vmem", rd=S_DBG.regs() + s_t2.regs() + v_fa.regs(), wr=[]))
        if g == 8: sal = sal + [scmp("s_cmp_le_u32", s_cnt, ROT)]
        if g in (9, 10, 11, 12):
            q_ = [s_pfc] + s_pf
            sal = sal + [salu("s_cselect_b64", q_[g - 9], q_[g - 8], q_[g - 9], scc_w=False, scc_r=True)]
        if g == 0: post0 = [valu("v_cmp_eq_u32", "vcc", 1, v_flag)]
        if g == 2: sal = sal + [raw("s_cmp_eq_u32 vcc_lo, -1", "salu", rd=["vcc"], wr=["scc"])]
        if g == 3: sal = sal + [salu("s_cselect_b32", s_t0, s_cnt, -1, scc_w=False, scc_r=True)]
        if g == 4: sal = sal + [scmp("s_cmp_eq_u32", s_t0, ROT - 1)]
        if g == 5: sal = sal + [salu("s_cselect_b64", s_pf[3], s_pfH, s_pf[3], scc_w=False, scc_r=True)]
        if g == 15: sal = sal + [salu("s_cselect_b64", s_pf[3], S_K[(0, 2)], s_pf[3], scc_w=False, scc_r=True)]
        if g == 20: sal = sal + [scmp("s_cmp_eq_u32", s_cnt, KVIT + 1)]
        if g == 21: sal = sal + [salu("s_cselect_b64", s_pfc, s_kvt, S_K[(0, 2)], scc_w=False, scc_r=True)]
        if g == 13: sal = sal + [salu("s_cselect_b32", s_t2, s_fo, 256, scc_w=False, scc_r=True)]
        if g == 18: sal = sal + [scmp("s_cmp_eq_u32", s_cnt, s_sig)]
        if g == 19: sal = sal + [raw("s_cbranch_scc1 L_sigH_side", rd=["scc"]), Lbl("L_sigH_ret")]
    if loop and POI and par == 0 and do_mfma:
        if g == 22: sal = sal + [salu("s_add_u32", s_po1, s_po0, 65536)]
        if g == 16: mem.append(bstore(a_poi, v_lin, S_SP, s_po0, mod="sc1"))
        if g == 27: mem.append(bstore(a_poi, v_lin, S_SP, s_po1, mod="sc1"))
        if g == 23: sal = sal + [salu("s_add_u32", s_po0, s_po0, 1024)]
        if g == 24: sal = sal + [salu("s_min_u32", s_po0, s_po0, s_poe)]
    if do_mem and g == 4 and d is not None: lastdma[0] = d
    mem += list(xmem); sal = sal + list(xsal)
    gaps = [[], [], [], []]
    if g == 29 and do_mem and not fin:
        if STAMP == 2 and loop and do_mfma: gaps[0] += [LoopStamp(0, par)]
        gaps[0] += [Wait(lg0=True) if not do_mfma else (Wait(lg0=True, vm0=True) if (pp is None and par == 1) else Wait(lg0=True, vm=lastdma[0]))]
        if STAMP == 2 and loop and do_mfma: gaps[0] += [LoopStamp(1, par)]
        gaps[0] += [raw("s_barrier")]
        if STAMP == 2 and loop and do_mfma: gaps[0] += [LoopStamp(2, par)]
    gaps[0] += sal
    if g == 6 and do_mem and (pp is None or pp <= 1): gaps[0].append(salu("s_add_u32", s_kK, s_kK, 16384))
    if g == 7 and do_mem and (pp is None or pp <= 1): gaps[0].append(salu("s_add_u32", s_kV, s_kV, 16384))
    sm = not (fin and g >= 23)
    if fin and g > 23: do_cvt = False
    if fin and 16 <= g < 24: do_mfma = False
    if LSUM:
        if sm: gaps[0].append(ex[0])
        gaps[1] += mem[0:2] if len(mem) > 2 else mem[0:1]
        gaps[1] += post0
        nf = (g + 1) % 32
        if do_mem and not (fin and (16 <= nf < 24 or nf == 0)): gaps[2].append(Wait(lg=ftok.get(nf)))
        if last and g == 30: gaps[2].append(salu("s_sub_u32", s_cnt, s_cnt, 1))
        if sm: gaps[2].append(ex[1])
        gaps[3] += mem[2:] if len(mem) > 2 else mem[1:]
        pro = not do_mfma and not fin
        gaps[1] += add_items(g, 1, fin, pro)
        if do_cvt: gaps[1 if len([x for x in gaps[1] if x not in ()]) - len(add_items(g, 1, fin, pro)) < 2 else 3].append(cv)
        gaps[3] += add_items(g, 3, fin, pro)
    else:
      gaps[0] += mem[2:3]
      if sm: gaps[0].append(ex[0])
      if len(mem) > 0: gaps[1].append(mem[0])
      if len(mem) == 0 and do_cvt: gaps[1].append(cv)
      if sm: gaps[1].append(ad[0])
      gaps[1] += post0
      nf = (g + 1) % 32
      if do_mem and not (fin and (16 <= nf < 24 or nf == 0)): gaps[2].append(Wait(lg=ftok.get(nf)))
      if last and g == 30: gaps[2].append(salu("s_sub_u32", s_cnt, s_cnt, 1))
      gaps[2] += mem[3:]
      if sm: gaps[2].append(ex[1])
      if len(mem) > 1: gaps[3].append(mem[1])
      if len(mem) > 0 and do_cvt: gaps[3].append(cv)
      if sm: gaps[3].append(ad[1])
    for qb in range(4):
        if do_mfma:
            if g < 8 or 16 <= g < 24:
                b = 1 if g < 8 else 0
                kb, ds = (g >> 2) & 1, g & 3
                d = v_S[b][(qb * 8 + kb * 4, 4)]
                e(mfma(d, fr(g), Qf(qb, ds), v_negm[(qb * 4, 4)] if ds == 0 else d))
            else:
                b = 0 if g < 16 else 1
                e(mfma(Of(g & 7, qb), fr(g), v_S[b][(qb * 8, 4)], Of(g & 7, qb)))
        else:
            if (qb & 1) and not gaps[qb][:1] or ((qb & 1) and getattr(gaps[qb][0], "kind", "") in ("valu",)): e(nop(0))
        for it in gaps[qb]: e(it)
        if xvalu is not None:
            c = 2 - sum(1 for it in gaps[qb] if getattr(it, "kind", "") in ("lds", "vmem", "dma", "valu"))
            while xvalu and c > 0:
                it = xvalu.pop(0); e(it); c -= 2 if it.kind == "trans" else 1
    if LSUM and do_mfma and (g & 8):
        k = g & 7
        lq = (k if k < 4 else None) if (fin and g >= 24) else (k >> 1 if k & 1 else None)
        if lq is not None and (LSUM != 3 or lq < LQ): e(mfma(a_L[(4 * lq, 4)], a_ones, v_S[0 if g < 16 else 1][(lq * 8, 4)], a_L[(4 * lq, 4)]))
    if LSUM == 3: e(add_items(g, 4, fin, not do_mfma and not fin))

pr = [dsread("ds_read_b128", fr(f), v_ka[f & 3], (f >> 2) * 4096) for f in range(8)]
for r in pr: e(r)
zr = [valu("v_mov_b32", v_acc[i], 0) for i in range(2 * NZ0, 128)]
for f in range(8):
    em.wait(lg=pr[f])
    for qb in range(4):
        d = v_S[0][(qb * 8 + (f >> 2) * 4, 4)]
        e(mfma(d, fr(f), Qf(qb, f & 3), 0 if (f & 3) == 0 else d))
        if qb == 0 and HST == 0: e(hst[f])
        if qb == 2 and f == 0:
            e(raw("s_mov_b64 exec, 3", "salu", wr=["exec"])); e(bstore(v_acc[0], V(3), S_FLZ, s_myfl, mod="sc1")); e(raw("s_mov_b64 exec, -1", "salu", wr=["exec"]))
        for _ in range(2):
            if zr: e(zr.pop(0))
assert not zr
e(salu("s_mov_b32", s_kK, 16384 + 8192, scc_w=False)); e(salu("s_mov_b32", s_kV, 16384, scc_w=False)); e(salu("s_mov_b32", s_cnt, NITER, scc_w=False))
e(scmp("s_cmp_lg_u32", s_retry, 0)); e(raw("s_cbranch_scc1 L_have_max2", rd=["scc"]))
e(nop(3))
mx = [V(97 + 4 * i) for i in range(4)]; mt = [V(98 + 4 * i) for i in range(4)]
for qb in range(4): e(valu("v_max3_f32", mx[qb], v_S[0][qb * 8], v_S[0][qb * 8 + 1], v_S[0][qb * 8 + 2]))
for qb in range(4): e(valu("v_max3_f32", mx[qb], mx[qb], v_S[0][qb * 8 + 3], v_S[0][qb * 8 + 4]))
for qb in range(4): e(valu("v_max3_f32", mx[qb], mx[qb], v_S[0][qb * 8 + 5], v_S[0][qb * 8 + 6]))
for qb in range(4): e(valu("v_max_f32", mx[qb], mx[qb], v_S[0][qb * 8 + 7]))
red4("v_max_f32", mx, mt)
for qb in range(4):
    for k in range(4): e(valu("v_sub_f32", v_negm[qb * 4 + k], 0, mx[qb]))
em.label("L_have_max2")
e(nop(3))
for qb in range(4):
    for k in range(8): e(valu("v_add_f32", v_S[0][qb * 8 + k], v_S[0][qb * 8 + k], v_negm[qb * 4]))
for g in range(23, 29): att_group(1, g, do_mfma=False, do_mem=False, do_cvt=(g != 23))
stamp(); diag()
e(salu("s_and_b32", s_t0, s_qb, 3)); e(salu("s_sub_u32", s_t0, NITER - 1, s_t0))
e(scmp("s_cmp_eq_u32", s_w, 0)); e(salu("s_cselect_b32", s_sig, s_t0, -1, scc_w=False, scc_r=True))
e(scmp("s_cmp_eq_u32", s_retry, 0)); e(salu("s_cselect_b32", s_sig, s_sig, -1, scc_w=False, scc_r=True))
e(salu("s_mov_b64", s_pfc, S_K[(0, 2)], scc_w=False))
if POI:
    e(salu("s_lshl_b32", s_po0, s_w, 4)); e(salu("s_add_u32", s_po0, s_po0, s_g)); e(salu("s_lshl_b32", s_po0, s_po0, 13))
    e(salu("s_add_u32", s_poe, s_po0, 7168))
e(scmp("s_cmp_lt_u32", s_w, 2)); e(salu("s_cselect_b64", s_kvt, S_K[(0, 2)], S_V[(0, 2)], scc_w=False, scc_r=True))
e(salu("s_and_b32", s_t0, s_w, 1)); e(sx(s_t1)); e(salu("s_lshl_b32", s_t1, s_t1, 1)); e(salu("s_add_u32", s_t0, s_t0, s_t1)); e(salu("s_lshl_b32", s_t0, s_t0, 13))
if MAP2: e(salu("s_add_u32", s_t0, s_t0, 262144))
e(salu("s_add_u32", s_kvt[0], s_kvt[0], s_t0)); e(salu("s_addc_u32", s_kvt[1], s_kvt[1], 0, scc_r=True))
for g in range(29, 32): att_group(1, g, do_mfma=False, do_mem=True)
pro_end = len(em.out)
em.directive(".p2align 6")
em.label("L_att_loop")
def body():
    for par in range(2):
        for g in range(32): att_group(par, g, last=(par == 1))
b0 = len(em.out)
body()
b1 = len(em.out)
e(scmp("s_cmp_lg_u32", s_cnt, 0)); e(raw("s_cbranch_scc1 L_att_loop", rd=["scc"]))
b2 = len(em.out)
body()
second = em.out[b2:]; del em.out[b2:]
assert [i.text for i in second] == [i.text for i in em.out[b0:b1]], "loop not in steady state"
loop_probs = check_hazards(em.out[b1 - 40:b2] + second[:60], "loop-wrap")

em.label("L_tail")
v_ring2 = V(64, 32); v_B2 = V(96, 32)
QH = int(os.environ.get('QH', '0'))
XY = int(os.environ.get('XY', '0'))
NF1 = int(os.environ.get('NF1', '8'))
def hreg(kk, qb):
    if QH and 8 <= kk < 12: return A(16 * (kk - 8) + qb * 4, 4)
    if QH and kk >= 12: kk -= 4
    if kk >= 8: kk -= 8
    return A((64 + 16 * kk if kk < 4 else 160 + 16 * (kk - 4)) + qb * 4, 4)
def Facc(u, qb):
    t = u * 4 + qb
    return A(128 + 4 * t if t < 8 else 224 + 4 * (t - 8), 4)
POS2 = [5, 0, 2, 3, 4, 1]
NB = int(os.environ.get("NB", "4"))
def pos2(m): return 6 + m if m < NB else POS2[(m - NB) % 6]
def kind2(m):
    if m < NF1: return ("F", m)
    if m < NF1 + 32: return ("O", (m - NF1) & 15, (m - NF1) >> 4) if XY else ("O", (m - NF1) >> 1, (m - NF1) & 1)
    return ("F", m - 32)
def s2_dma(m):
    if m >= 46: return None
    p = pos2(m); k = kind2(m)
    if k[0] == "O":
        return [m0set(p), salu("s_mov_b32", s_off, k[1] * 32 * 1024 + 128 * k[2], scc_w=False)], [dma(v_dA[j], S_WO, s_off, j * 1024) for j in range(4)]
    return [m0set(p), salu("s_mov_b32", s_off, k[1] * 32 * 1024, scc_w=False)], [dma(v_dB[j], S_WD, s_off, j * 1024) for j in range(4)]
dtok2 = {}; s2pre = {}
for m in range(6 + NB):
    s2pre[m] = s2_dma(m); dtok2[m] = s2pre[m][1][3]
class Seq:
    kind = "vmem"
    def __init__(self, l): self.l = l
    def __call__(self): return self.l
hld = {}; htok = {}
for kk in range(14):
    hld[kk] = [bload(hreg(kk, qb), v_lin, S_HC, s_hl, off=qb * 1024, mod="sc1") for qb in range(4)]
    htok[kk] = hld[kk][3]
e(salu("s_mov_b32", s_cnt, 0, scc_w=False))
em.label("L_pollH")
e(valu("v_cmp_ne_u32", "vcc", 1, v_flag)); e(salu("s_mul_i32", s_hb, s_w, 14 * 4096, scc_w=False)); e(nop(1))
e(raw("s_cbranch_vccz L_pollH_done", rd=["vcc"]))
e(salu("s_add_u32", s_cnt, s_cnt, 1)); e(scmp("s_cmp_ge_u32", s_cnt, 50000)); e(raw("s_cbranch_scc1 L_pollH_done", rd=["scc"]))
e(raw("s_sleep 4")); e(raw("buffer_load_ubyte %s, %s, %s, %s offen sc1" % (v_flag, v_fa, S_DBG, s_fo))); e(raw("s_waitcnt vmcnt(0)")); e(raw("s_branch L_pollH"))
em.label("L_pollH_done")
xaddr(V(39), V(0))
assert LSUM == 1
xsl = [bload(V(40 + 2 * u, 2), V(39), S_XC, 0, off=32 * u, n=2) for u in range(4)]
NH0 = 32
hsl = sorted([(pp, g) for pp in range(3) for g in (5, 13, 14, 15, 16, 17, 18, 27, 28, 9, 11)])[:NH0]
if QH:
    hsl += [(3, g) for g in list(range(8, 16)) + list(range(24, 32))]; NH0 = 48
px = {}
for k, key in enumerate(hsl):
    px.setdefault(key, ([], []))
    px[key][0].append(hld[k >> 2][k & 3])
    if k & 3 == 0: px[key][1].append(salu("s_add_u32", s_hl, s_hb, (k >> 2) * 4096))
for u in range(4): px.setdefault((int(os.environ.get('XSP', '3')), int(os.environ.get('XSG0', '13')) + u), ([], []))[0].append(xsl[u])
wsl = [(pp, g) for pp in range(2) for g in (6, 7, 8, 10, 12, 21, 22, 23)][:4 * NB] + [(2, 29), (2, 30), (2, 31), (3, 0), (3, 1), (3, 2), (3, 3), (3, 4)] + ([(2, g) for g in (6, 7, 8, 10, 12, 21, 22, 23)] if QH else [(3, g) for g in range(5, 13)]) + [(3, g) for g in range(24, 32)]
for k, key in enumerate(wsl):
    px.setdefault(key, ([], []))
    m, j = k >> 2, k & 3
    px[key][0].append(s2pre[m][1][j])
    if j == 0: px[key][1].extend(s2pre[m][0])
px[(3, 24)][1][:0] = [Wait(lg0=True), raw("s_barrier")]
lt = [V(48 + i) for i in range(4)]
NPK = int(os.environ.get("NPK", "0"))
rinv = [V(52 + i) for i in range(4)]
vxf = V(40, 8)
save = em.out; em.out = []
for qb in range(4): e(valu("v_accvgpr_read_b32", lt[qb], a_L[4 * qb]))
e(valu("v_add_f32", V(60), lt[0], lt[1])); e(valu("v_add_f32", V(61), lt[2], lt[3])); e(valu("v_add_f32", V(60), V(60), V(61)))
for qb in range(4): e(valu("v_rcp_f32", rinv[qb], lt[qb]))
e(valu("v_cmp_nge_f32", "vcc", hx(f2u(2.0 ** 30)), V(60)))
v_tr2 = V(56, 4); v_ow = V(62)
for u in range(4): e(valu("v_subrev_u32", v_tr2[u], RING, v_tr[0][u]))
e(valu("v_subrev_u32", v_ow, RING, v_lin)); e(valu("v_add_u32", v_ow, s_m0b, v_ow))
lred = em.out; em.out = save
for pp in range(4):
    for g in range(32):
        if STAMP == 4 and g in (0, 16): stamp()
        xm, xs = px.get((pp, g), ([], []))
        att_group(pp & 1, g, pp=pp, xmem=xm, xsal=xs, xvalu=(lred if (pp == 3 and g >= (30 if LSUM else 24)) else None))
for it in lred: e(it)
diag(); stamp()
if DUMP == "o":
    e(nop(7))
    for db in range(8):
        for qb in range(4):
            for k in range(4): e(valu("v_mul_f32", Of(db, qb)[k], Of(db, qb)[k], rinv[qb]))
    dump_regs([v_acc[i] for i in range(128)])

vm_ = V(60); vma = V(61)
class Mark:
    kind = "salu"
    def __init__(self, t): self.t = t
    def __call__(self):
        e(raw("s_cbranch_vccz L_nomark", rd=["vcc"])); e(valu("v_mov_b32", self.t, hx(MARK))); em.label("L_nomark"); return []
norm = [valu("v_and_b32", vma, 3, v_lane), valu("v_lshlrev_b32", vma, 12, vma)]
ow = []; ncv = []
NPK_N = int(os.environ.get("NPK_N", "16")) if NPK else 0
for i in range(4):
    for qb in range(4):
        t = Of(2 * i, qb)
        for b in range(2):
            if i * 4 + qb < NPK_N:
                rp = V(52 + (qb & ~1), 2)
                for k in range(2): norm.append(valu("v_pk_mul_f32", Of(2 * i + b, qb)[(2 * k, 2)], Of(2 * i + b, qb)[(2 * k, 2)], rp, mod="op_sel:[0,%d] op_sel_hi:[1,%d]" % (qb & 1, qb & 1)))
            else:
                for k in range(4): norm.append(valu("v_mul_f32", Of(2 * i + b, qb)[k], Of(2 * i + b, qb)[k], rinv[qb]))
        for b in range(2):
            o = Of(2 * i + b, qb)
            for k in range(2): norm.append(valu("v_cvt_pk_bf16_f32", t[2 * b + k], o[2 * k], o[2 * k + 1]))
        ncv.append(norm[-1])
        if i == 0 and qb == 0: norm.append(Mark(t[0]))
        ow.append(dswrite("ds_write_b128", v_ow, t, i * 16384 + qb * 1024))
        if NB == 0: norm.append(ow[-1])
if NPK_N:
    cut = norm.index(ncv[NPK_N - 1]) + 1
    e(nop(4))
    for it in norm[:cut]: e(it)
    norm = norm[cut:]
class ChkNorm:
    def __init__(self, k): self.k = k
    def __call__(self):
        assert ncv[self.k].tok, "O write %d scheduled before its data" % self.k
        return ow[self.k]
G0 = 4 * NF1
G1 = G0 + 128
mk = dsread("ds_read_b32", vm_, vma, 0)
class OBar:
    def __call__(self):
        assert all(w.tok for w in ow)
        em.wait(lg0=True); e(raw("s_barrier")); stamp(); e(mk); return []
class FbCheck:
    def __call__(self):
        em.wait(lg=mk)
        e(valu("v_cmp_eq_u32", "vcc", hx(MARK), vm_))
        e(scmp("s_cmp_lg_u32", s_retry, 0)); e(raw("s_cbranch_scc1 L_nofb", rd=["scc"]))
        e(nop(1))
        e(raw("s_cbranch_vccnz L_fallback", rd=["vcc"]))
        em.label("L_nofb")
        return []
def s2_acc(m, u, qb):
    k = kind2(m)
    if k[0] == "O": return v_acc[(((k[2] * 4 + u) * 4 + qb) * 4, 4)], k[1] == 0
    return Facc(u, qb), k[1] == 0
def s2_B(m, qb):
    k = kind2(m)
    if k[0] == "O": return v_B2[((k[1] & 1) * 16 + qb * 4, 4)]
    return hreg(k[1], qb)
def oread(s, qb): return dsread("ds_read_b128", v_B2[((s & 1) * 16 + qb * 4, 4)], v_lin, (s & 3) * 16384 + (s >> 2) * 4096 + qb * 1024)
extra = {}
if NB:
    OW0 = int(os.environ.get("OW0", "11")); OWN = int(os.environ.get("OWN", "1"))
    for k in range(16):
        gg = OW0 + k // OWN
        assert (k >> 2) >= NB or gg > 4 * (k >> 2) + 3
        extra.setdefault(gg, []).append((2 + (k % OWN) % 2, ChkNorm(k), 1))
GB = G0 - int(os.environ.get("OBAR", "3"))
extra.setdefault(GB, []).append((0, OBar(), 0))
r0 = [oread(0, qb) for qb in range(4)]
for qb in range(4): extra.setdefault(GB + (qb >> 1), []).append((1 + (qb & 1) if qb < 2 else (qb & 1) * 2, r0[qb], 1))
extra.setdefault(G0 - 1, []).append((2, [Wait(lg=r0), FbCheck()], 0))
if XY:
    for mm in range(1, 32):
        rr = [oread(mm & 15, qb) for qb in range(4)]
        for qb in range(4): extra.setdefault(G0 + 4 * (mm - 1) + (qb >> 1), []).append((2 + (qb & 1), rr[qb], 1))
        extra.setdefault(G0 + 4 * mm - 1, []).append((2, Wait(lg=rr), 0))
else:
    for s_ in range(1, 16):
        for qb in range(4): extra.setdefault(G0 + 8 * (s_ - 1) + 1 + qb, []).append((2, oread(s_, qb), 1))
class LateWait:
    def __init__(self, f): self.f = f
    def __call__(self): return Wait(vm=self.f())
vxa = V(48); vpoll = V(49); vfw = V(50)
vx, vy, vz = V(63), V(57), V(58)
save = em.out; em.out = []
xaddr(vxa, vx)
e(valu("v_and_b32", V(51), 7, v_lane)); e(valu("v_lshlrev_b32", V(51), 2, V(51)))
e(valu("v_add_u32", vfw, s_m0b, v_lin)); e(salu("s_lshl_b32", s_t0, s_w, 14)); e(salu("s_add_u32", s_t0, s_t0, RING)); e(valu("v_add_u32", V(55), s_t0, v_lin))
e(salu("s_lshl_b32", s_t3, s_w, 4)); e(salu("s_add_u32", s_t3, s_t3, s_g)); e(salu("s_lshl_b32", s_t3, s_t3, 13))
early = em.out; em.out = save
extra.setdefault(-1, []).append((0, LateWait(lambda: htok[0]), 0))
for kk in range(1, 14):
    g_ = 4 * kk if kk < NF1 else 4 * (kk + 32)
    extra.setdefault(g_ - 1, []).append((2, LateWait(lambda kk=kk: htok[kk]), 0))
HG0 = int(os.environ.get("HG0", "5")); HGS = int(os.environ.get("HGS", "1"))
for k in range(NH0, 56):
    prev = (k >> 2) - (12 if QH else 8)
    gfree = (4 * prev if prev < NF1 else 4 * (prev + 32)) + 5 + (k & 3)
    extra.setdefault(max(gfree, HG0 + HGS * (k - NH0)), []).append((2, Seq([salu("s_add_u32", s_hl, s_hb, (k >> 2) * 4096), hld[k >> 2][k & 3]]), 1))
def sreg(ip, qb, odd=0): return v_acc[(((2 * ip + odd) * 4 + qb) * 4, 4)]
SPV_ = int(os.environ.get('SPV', '1'))
sp = []; spst = []; stq = []
s_oob = S(19)
if os.environ.get("NOST") or os.environ.get("NOLD"): e(salu("s_mov_b32", s_oob, 524288, scc_w=False))
NSI = int(os.environ.get("NSI", "11"))
s_so = [s_t1, s_cnt, s_h0, s_h1]
for k in range(4): sp.append(salu("s_add_u32", s_so[k], s_t3, (k >> 1) * 65536 + (k & 1) * 4096))
for ip in range(4):
    for qb in range(4):
        t = sreg(ip, qb)
        for b in range(2):
            o = sreg(ip, qb, b)
            for k in range(2): sp.append(valu("v_cvt_pk_bf16_f32", t[2 * b + k], o[2 * k], o[2 * k + 1]))
        st = bstore(t, v_lin, S_SP, s_so[(ip >> 1) * 2 + (qb >> 1)], off=(qb & 1) * 2048 + (ip & 1) * 1024, mod="sc1")
        if os.environ.get("NOST") and not (ip == 3 and qb == 3): st = bstore(t, v_lin, S_SP, s_oob, off=0)
        spst.append((st, sp[-1]))
class St:
    def __init__(self, k): self.k = k
    def __call__(self):
        assert spst[self.k][1].tok
        return spst[self.k][0]
STG = int(os.environ.get("STG", "2"))
if XY:
    GY = G0 + 64
    XS0 = int(os.environ.get("XS0", "4")); XSG = int(os.environ.get("XSG", "5")); XFL = int(os.environ.get("XFL", "60"))
    for k in range(8): extra.setdefault(GY + XS0 + XSG * k, []).append((1, St(k), 1))
    class XFlag:
        def __call__(self): em.wait(vm=spst[7][0]); return flag_store(0)
    extra.setdefault(GY + XFL, []).append((1, XFlag(), 1))
    NSI = int(os.environ.get("NSI", "16"))
    for k in range(8, NSI): extra.setdefault(G1 + 3 + STG * (k - 8), []).append((2, St(k), 1))
    hx_ = sp.index(spst[7][1]) + 1
    spf = [Fill(sp[:hx_], GY + 2, GY + 14), Fill(sp[hx_:], G1 + 2, G1 + 10)]
else:
    for k in range(NSI): extra.setdefault(G1 + 3 + STG * k, []).append((2, St(k), 1))
    spf = [Fill(sp, G1 + 2, G1 + int(os.environ.get("CVL", "16")))]
if POI:
    assert not XY and SPV_
    hint = [valu("v_mov_b32", V(57), 2), valu("v_lshlrev_b32", V(58), 7, v_lane), raw("s_mov_b64 exec, 3", "salu", wr=["exec"]),
            bstore(V(57), V(58), S_FL, s_myfl, mod="sc1"), raw("s_mov_b64 exec, -1", "salu", wr=["exec"])]
    extra.setdefault(G1 + int(os.environ.get("HINT", "4")), []).append((1, hint, 1))
FLG = int(os.environ.get("FLG", "0"))
if FLG:
    assert NSI == 16
    class YFlag:
        def __call__(self):
            em.wait(vm=spst[-1][0]); stamp()
            e(([] if XY else flag_store(0)) + flag_store(1))
            if MIDPOST == 5: static_loads()
            return []
    extra.setdefault(G1 + FLG, []).append((1, YFlag(), 1))
sti = [NSI]
def st_next(n=1):
    for _ in range(n):
        if sti[0] < 16: e(spst[sti[0]][0]); sti[0] += 1
def flag_store(h):
    return [valu("v_mov_b32", v_t, 1), raw("s_mov_b64 exec, 1", "salu", wr=["exec"]), bstore(v_t, None, S_FL, s_myfl, off=128 * h, mod="sc1"), raw("s_mov_b64 exec, -1", "salu", wr=["exec"])]
vpa = V(51)
s_done, s_new, s_sb = s_kK, s_kV, s_fo
SPV = int(os.environ.get("SPV", "1"))
def spl(gp, i): return sreg(gp >> 1, (gp & 1) * 2 + i, 0) if SPV else A((gp * 2 + i) * 4, 4)
def flag_load(): return bload(vpoll, vpa, S_FL, s_t2, n=1, mod="sc1")
lblc = [0]
def issue_new():
    k = lblc[0]; lblc[0] += 1
    e(valu("v_cmp_eq_u32", "vcc", 1, vpoll)); e(nop(1))
    e(raw("s_andn2_b32 %s, vcc_lo, %s" % (s_new, s_done), "salu", rd=["vcc", s_done], wr=[s_new, "scc"])); e(salu("s_and_b32", s_new, s_new, 255))
    e(raw("s_cbranch_scc0 L_in%d_end" % k, rd=["scc"]))
    e(salu("s_or_b32", s_done, s_done, s_new))
    for gp in range(8):
        e(scmp("s_bitcmp1_b32", s_new, gp)); e(raw("s_cbranch_scc0 L_in%d_%d" % (k, gp), rd=["scc"]))
        e(salu("s_add_u32", s_t0, s_sb, gp * 8192) if not os.environ.get("NOLD") else salu("s_mov_b32", s_t0, s_oob, scc_w=False))
        for i in range(2): e(raw(bload(spl(gp, i), v_lin, S_SPC, s_t0, off=i * 1024, mod="sc1").text))
        em.label("L_in%d_%d" % (k, gp))
    em.label("L_in%d_end" % k)
def static_loads():
    e(valu("v_cmp_eq_u32", "vcc", 1, vpoll)); e(nop(1))
    e(raw("s_and_b32 %s, vcc_lo, 255" % s_done, "salu", rd=["vcc"], wr=[s_done, "scc"]))
    for gp in range(8):
        e(salu("s_add_u32", s_t0, s_sb, gp * 8192)); e(scmp("s_bitcmp1_b32", s_done, gp)); e(salu("s_cselect_b32", s_t0, s_t0 if not os.environ.get("NOLD") else s_oob, 524288, scc_w=False, scc_r=True))
        for i in range(2): e(bload(spl(gp, i), v_lin, S_SPC, s_t0, off=i * 1024, mod="sc1"))
pinit = [salu("s_lshl_b32", s_t2, s_cq, 3), salu("s_add_u32", s_t2, s_t2, s_cg), salu("s_lshl_b32", s_t2, s_t2, 7), salu("s_mov_b32", s_done, 0, scc_w=False),
         salu("s_lshl_b32", s_sb, s_cg, 16), salu("s_lshl_b32", s_new, s_w, 11), salu("s_add_u32", s_sb, s_sb, s_new)]
extra.setdefault(G1 - 8, []).append((1, pinit, 0))
class MidPoll:
    def __init__(self, tok): self.tok = tok
    def __call__(self):
        em.wait(vm=self.tok); issue_new()
        e(salu("s_mov_b32", s_hb, s_done, scc_w=False))
        midmark.append(em.vm_total)
        return []
midmark = []
if int(os.environ.get("MID", "1")):
    pt = flag_load()
    MIDPOST = int(os.environ.get("MIDPOST", "2"))
    if MIDPOST == 4: extra.setdefault(184 - int(os.environ.get("MID4", "6")), []).append((2, pt, 1))
    else: extra.setdefault(G1 - int(os.environ.get("MID0", "-4")), []).append((2, pt, 1))
    if not MIDPOST: extra.setdefault(G1 + int(os.environ.get("MID1", "3")), []).append((0, MidPoll(pt), 0))
    elif MIDPOST != 4 and int(os.environ.get("MID0", "-4")) > 0: extra.setdefault(G1 + 2, []).append((0, Wait(vm=pt), 0))
    if MIDPOST == 3:
        extra[G1 + 2].pop(); extra[G1 - int(os.environ.get("MID0", "-4"))].pop()
if STAMP: extra.setdefault(G1, []).append((0, Stamp(), 0))
if STAMP == 5:
    for g_ in (0, 8, 16, 24): extra.setdefault(g_, []).append((0, Stamp(), 0))
class Diag:
    def __call__(self): diag(); return []
if DIAG: extra.setdefault(G1, []).append((0, Diag(), 0))
vs = [Fill(norm, 0, GB - (3 if NB else 1)), Fill(early, G0 + 2, G0 + 40)] + spf
run_stream(46, s2_dma, dtok2, s2_acc, s2_B, extra, vs, posf=pos2, ring=v_ring2, first_dma=6 + NB, tr2=v_tr2, early_dma=int(os.environ.get('ED2', '0')), w2=lambda g: int(os.environ.get('W2B', '1')) and g < 28)
stamp(); diag()
if MIDPOST == 4:
    em.wait(vm=pt); static_loads()
if MIDPOST == 3:
    st_next(16); fl3 = e(flag_load())
e(nop(5))
for qb in range(4):
    for u in range(4):
        if len(em.lgq) >= 12: em.wait(lg=em.lgq[-12])
        e(dswrite("ds_write_b128", vfw, Facc(u, qb), qb * 16384 + u * 1024))
    if qb & 1: st_next(int(os.environ.get("STW", "1")))
if MIDPOST == 6:
    st_next(16); em.wait(vm=spst[-1][0]); stamp(); e(flag_store(0) + flag_store(1)); static_loads()
v_fr = V(96, 16); vE = V(64, 16); vs_ = V(80, 16)
for k in range(8): e(valu("v_mov_b64", vs_[(2 * k, 2)], 0))
if MIDPOST == 3:
    em.wait(vm=fl3); stamp()
    if not XY: e(flag_store(0))
    e(flag_store(1))
    static_loads()
em.wait(lg0=True)
e(raw("s_barrier"))
def frr(ws_, u): return sreg(ws_, u, 1)
for ws_ in range(4):
    for u in range(4):
        if len(em.lgq) >= 14: em.wait(lg=em.lgq[-14])
        e(dsread("ds_read_b128", frr(ws_, u), V(55), ws_ * 4096 + u * 1024))
st_next()
if MIDPOST:
    st_next(16)
    if MIDPOST == 1: static_loads()
em.wait(lg0=True)
for u in range(4):
    for k in range(2):
        e(valu("v_pk_add_f32", frr(0, u)[(2 * k, 2)], frr(0, u)[(2 * k, 2)], frr(1, u)[(2 * k, 2)]))
        e(valu("v_pk_add_f32", frr(2, u)[(2 * k, 2)], frr(2, u)[(2 * k, 2)], frr(3, u)[(2 * k, 2)]))
for u in range(4):
    for k in range(2): e(valu("v_pk_add_f32", v_fr[(4 * u + 2 * k, 2)], frr(0, u)[(2 * k, 2)], frr(2, u)[(2 * k, 2)]))
for k in range(16): e(valu("v_mul_f32", vE[k], hx(f2u(-math.log2(math.e))), v_fr[k]))
st_next()
for k in range(16): e(valu("v_exp_f32", vE[k], vE[k]))
for k in range(16): e(valu("v_add_f32", vE[k], "1.0", vE[k]))
st_next()
for k in range(16): e(valu("v_rcp_f32", vE[k], vE[k]))
for k in range(16): e(valu("v_mul_f32", v_fr[k], v_fr[k], vE[k]))
for k in range(8):
    e(valu("v_lshlrev_b32", vE[2 * k], 16, vxf[k])); e(valu("v_and_b32", vE[2 * k + 1], "0xffff0000", vxf[k]))
st_next()
stamp()
accn = [0]
def acc_pieces(mask, sprinkle=False):
    n = accn[0]; accn[0] += 1
    for gp in range(8):
        e(scmp("s_bitcmp1_b32", mask, gp)); e(raw("s_cbranch_scc0 L_acc%d_%d" % (n, gp), rd=["scc"]))
        if not SPV:
            for k2 in range(8): e(valu("v_accvgpr_read_b32", V(120 + k2), spl(gp, k2 >> 2)[k2 & 3]))
        for k in range(8):
            src = spl(gp, k >> 2)[k & 3] if SPV else V(120 + k)
            e(valu("v_lshlrev_b32", V(112 + 2 * (k & 3)), 16, src)); e(valu("v_and_b32", V(113 + 2 * (k & 3)), "0xffff0000", src))
            e(valu("v_pk_add_f32", vs_[(2 * k, 2)], vs_[(2 * k, 2)], V(112 + 2 * (k & 3), 2)))
        em.label("L_acc%d_%d" % (n, gp))
        if sprinkle and gp & 1: st_next()
if midmark:
    n_y = em.vm_total - midmark[0]
    e(raw("s_waitcnt vmcnt(%d)" % n_y, "wait")); em._retire(em.vmq, n_y)
    acc_pieces(s_hb, sprinkle=True)
st_next(16)
if POI:
    s_want = s_new
    e(salu("s_mov_b32", s_cnt, 0, scc_w=False)); e(salu("s_mov_b32", s_t1, hx(POISON), scc_w=False))
    if MIDPOST == 2: em.wait(vm=pt)
    stamp()
    em.label("L_fin_loop")
    e(valu("v_cmp_eq_u32", "vcc", 2, vpoll)); e(nop(1))
    e(raw("s_andn2_b32 %s, vcc_lo, %s" % (s_want, s_done), "salu", rd=["vcc", s_done], wr=[s_want, "scc"])); e(salu("s_and_b32", s_want, s_want, 255))
    for gp in range(8):
        e(scmp("s_bitcmp1_b32", s_want, gp)); e(raw("s_cbranch_scc0 L_pl_%d" % gp, rd=["scc"]))
        e(salu("s_add_u32", s_t0, s_sb, gp * 8192))
        for i in range(2): e(raw(bload(spl(gp, i), v_lin, S_SPC, s_t0, off=i * 1024, mod="sc1").text))
        em.label("L_pl_%d" % gp)
    e(raw(flag_load().text))
    e(raw("s_waitcnt vmcnt(0)", "wait")); em._retire(em.vmq, 0)
    for gp in range(8):
        e(scmp("s_bitcmp1_b32", s_want, gp)); e(raw("s_cbranch_scc0 L_pa_%d" % gp, rd=["scc"]))
        for k in range(8): e(valu("v_cmpx_ne_u32", "vcc", s_t1, spl(gp, k >> 2)[k & 3], extra_wr=["exec"]))
        e(nop(1))
        e(raw("s_cmp_eq_u64 exec, -1", "salu", rd=["exec"], wr=["scc"])); e(raw("s_mov_b64 exec, -1", "salu", wr=["exec"]))
        e(raw("s_cbranch_scc0 L_pa_%d" % gp, rd=["scc"]))
        e(salu("s_bitset1_b32", s_done, gp, scc_w=False))
        for k in range(8):
            src = spl(gp, k >> 2)[k & 3]
            e(valu("v_lshlrev_b32", V(112 + 2 * (k & 3)), 16, src)); e(valu("v_and_b32", V(113 + 2 * (k & 3)), "0xffff0000", src))
            e(valu("v_pk_add_f32", vs_[(2 * k, 2)], vs_[(2 * k, 2)], V(112 + 2 * (k & 3), 2)))
        em.label("L_pa_%d" % gp)
    e(salu("s_add_u32", s_cnt, s_cnt, 1)); e(scmp("s_cmp_ge_u32", s_cnt, 50000)); e(raw("s_cbranch_scc1 L_fin_done", rd=["scc"]))
    e(scmp("s_cmp_lg_u32", s_done, 255)); e(raw("s_cbranch_scc1 L_fin_loop", rd=["scc"]))
else:
    if MIDPOST != 2: e(flag_load())
    if MIDPOST not in (3, 6) and not FLG:
        em.wait(vm=spst[-1][0]); stamp()
        if not XY: e(flag_store(0))
        e(flag_store(1))
    if MIDPOST == 2:
        static_loads()
        if int(os.environ.get("FSL", "0")): e(raw("s_sleep %d" % int(os.environ.get("FSL"))))
        e(flag_load())
    s_prev = s_hl
    e(salu("s_mov_b32", s_prev, s_done if MIDPOST else 0, scc_w=False)); e(salu("s_mov_b32", s_cnt, 0, scc_w=False))
    em.label("L_fin_loop")
    em.wait(vm0=True)
    issue_new()
    e(raw(flag_load().text))
    acc_pieces(s_prev)
    e(salu("s_mov_b32", s_prev, s_new, scc_w=False))
    e(salu("s_add_u32", s_cnt, s_cnt, 1)); e(scmp("s_cmp_ge_u32", s_cnt, 50000)); e(raw("s_cbranch_scc1 L_fin_done", rd=["scc"]))
    e(scmp("s_cmp_lg_u32", s_prev, 0)); e(raw("s_cbranch_scc1 L_fin_loop", rd=["scc"]))
    e(scmp("s_cmp_lg_u32", s_done, 255)); e(raw("s_cbranch_scc1 L_fin_loop", rd=["scc"]))
em.label("L_fin_done")
if DUMP == "fin": dump_regs([vs_[i] for i in range(16)] + [v_fr[i] for i in range(16)])
for k in range(8): e(valu("v_pk_fma_f32", vE[(2 * k, 2)], vs_[(2 * k, 2)], v_fr[(2 * k, 2)], vE[(2 * k, 2)]))
for k in range(8): e(valu("v_cvt_pk_bf16_f32", vxf[k], vE[2 * k], vE[2 * k + 1]))
for u in range(4): e(bstore(vxf[(2 * u, 2)], vxa, S_OUT, 0, off=32 * u, mod=os.environ.get("OUTM", "")))
stamp(); diag_out()
em.label("L_end")
e(raw("s_endpgm"))
main_end = len(em.out)

em.lgq, em.vmq, em.pend = [], [], {}
em.label("L_sigH_side")
e(salu("s_lshl_b32", s_t1, s_qb, 3)); e(salu("s_add_u32", s_t1, s_t1, s_g))
e(raw("s_mov_b64 exec, 2", "salu", wr=["exec"]))
e(raw("buffer_store_byte %s, off, %s, %s sc1" % (v_fa, S_DBG, s_t1)))
e(raw("s_mov_b64 exec, -1", "salu", wr=["exec"]))
e(raw("s_branch L_sigH_ret"))
em.label("L_fallback")
e(raw("s_waitcnt vmcnt(0) lgkmcnt(0)")); em._retire(em.vmq, 0); em._retire(em.lgq, 0)
e(salu("s_mov_b32", s_retry, 1, scc_w=False))
e(salu("s_lshl_b32", s_t0, s_w, 6)); e(valu("v_add_u32", v_tid, s_t0, v_lane))
e(raw("s_barrier"))
e(raw("s_branch L_restart"))
em.label("L_maxpass")
e(raw("s_waitcnt vmcnt(0) lgkmcnt(0)"))
e(salu("s_mov_b32", s_retry, 2, scc_w=False))
e(salu("s_mov_b32", s_kK, 0, scc_w=False))
fm = [V(40 + i) for i in range(4)]
for i in range(4): e(valu("v_mov_b32", fm[i], "0xff800000"))
em.label("L_fb_loop")
e(raw("s_barrier"))
e(salu("s_add_u32", "m0", s_m0b, 4 * 16384)); e(nop(0))
for j in range(4): e(dma(v_kd[j], S_K, s_kK, j * 1024))
em.wait(vm0=True)
e(raw("s_barrier"))
for kb in range(4):
    rr = [e(dsread("ds_read_b128", fr(ds), v_ka[ds], kb * 4096)) for ds in range(4)]
    em.wait(lg0=True)
    for ds in range(4):
        for qb in range(4):
            d = v_S[0][(qb * 4, 4)]
            e(mfma(d, fr(ds), Qf(qb, ds), 0 if ds == 0 else d))
    e(nop(7))
    for qb in range(4):
        e(valu("v_max3_f32", fm[qb], fm[qb], v_S[0][qb * 4], v_S[0][qb * 4 + 1])); e(valu("v_max3_f32", fm[qb], fm[qb], v_S[0][qb * 4 + 2], v_S[0][qb * 4 + 3]))
    e(nop(2))
e(salu("s_add_u32", s_kK, s_kK, 16384)); e(scmp("s_cmp_lt_u32", s_kK, 524288)); e(raw("s_cbranch_scc1 L_fb_loop", rd=["scc"]))
red4("v_max_f32", fm, [V(44 + i) for i in range(4)])
for qb in range(4):
    for k in range(4): e(valu("v_sub_f32", v_negm[qb * 4 + k], 0, fm[qb]))
e(raw("s_barrier"))
for m in (64, 65, 66):
    sa, dm = s1_dma(m); e(sa)
    for d in dm: e(d)
e(raw("s_waitcnt vmcnt(0)"))
e(raw("s_branch L_att_start"))
em.label("L_code_end")
e(raw("s_endpgm"))

ALIGN8 = int(os.environ.get("ALIGN8", "0"))
import re as _re
def isize(i):
    t = i.text
    if i.kind == "label": return 0
    op = t.split()[0]
    if i.kind in ("mfma", "lds", "vmem", "dma") or op.startswith(("buffer_", "global_", "ds_", "s_load", "s_memtime", "s_memrealtime")): return 8
    lit = False
    for tok in _re.split(r"[ ,]+", t)[1:]:
        if _re.fullmatch(r"-?\d+", tok): lit |= not (-16 <= int(tok) <= 64)
        elif tok.startswith("0x"): lit |= not (int(tok, 16) <= 64)
        elif tok.startswith("L_") and not op.startswith(("s_cbranch", "s_branch")): lit = True
    if op.startswith("s_"):
        if op in ("s_waitcnt", "s_nop", "s_barrier", "s_sleep", "s_endpgm") or op.startswith(("s_cbranch", "s_branch")): return 4
        return 8 if lit else 4
    e32 = ("v_exp_f32", "v_rcp_f32", "v_sqrt_f32", "v_mov_b32", "v_mov_b64", "v_add_f32", "v_sub_f32", "v_mul_f32", "v_max_f32", "v_and_b32", "v_xor_b32", "v_lshlrev_b32", "v_lshrrev_b32",
           "v_add_u32", "v_sub_u32", "v_subrev_u32", "v_mul_u32_u24", "v_min_u32", "v_readfirstlane_b32", "v_permlane16_swap_b32", "v_permlane32_swap_b32")
    if op in e32 and "-v" not in t: return 8 if lit else 4
    if op.startswith("v_cmp") and t.split()[1].startswith("vcc"): return 8 if lit else 4
    return 8
WIDE = ("v_exp_f32", "v_rcp_f32", "v_add_f32", "v_mul_f32", "v_mov_b32", "v_sub_f32", "v_and_b32", "v_lshlrev_b32")
if ALIGN8:
    pos = 0; cand = None; nfix = 0; nmiss = 0
    for i in em.out:
        if i.kind == "label":
            if i.text.startswith(".p2align"): pos = 0; cand = None
            continue
        if i.kind == "mfma" and pos % 8:
            if cand is not None: cand.text = cand.text.replace(cand.text.split()[0], cand.text.split()[0] + "_e64", 1); pos += 4; nfix += 1
            else: nmiss += 1
        if i.kind == "mfma": cand = None
        sz = isize(i)
        if sz == 4 and i.text.split()[0] in WIDE: cand = i
        pos += sz
    print("; align8: widened %d, unfixed %d" % (nfix, nmiss), file=sys.stderr)
probs = check_hazards(em.out, "main") + loop_probs
for p in probs: print("; HAZARD", p, file=sys.stderr)
assert not probs

hdr = open(os.path.join(os.path.dirname(os.path.abspath(__file__)), "header.txt")).read()
print(hdr.rstrip())
print("; @launch grid=(256,1,1) block=(256,1,1) lds=163840")
print('.amdgcn_target "amdgcn-amd-amdhsa--gfx950"\n.text\n.globl %s\n.p2align 8\n.type %s,@function\n%s:' % (KN, KN, KN))
print(em.text())
print('.section .rodata,"a"\n.p2align 6\n.amdhsa_kernel %s' % KN)
print("  .amdhsa_next_free_vgpr 512\n  .amdhsa_next_free_sgpr 102\n  .amdhsa_accum_offset 256\n  .amdhsa_group_segment_fixed_size 0\n  .amdhsa_kernarg_size 96\n  .amdhsa_user_sgpr_count 2\n  .amdhsa_user_sgpr_kernarg_segment_ptr 1\n  .amdhsa_system_sgpr_workgroup_id_x 1\n.end_amdhsa_kernel")
```

```python
import sys, os, math, struct
from asmgen import *

KN = "recurrent_scan__gqa_block_cached__geglu_ffn__prompt_kernel"
DUMP = os.environ.get("DUMP", "")
STAMP = int(os.environ.get("STAMP", "0"))
GEL_END = int(os.environ.get("GEL_END", "247")); GEL_EXTRA = int(os.environ.get("GEL_EXTRA", "360"))

def f2u(x): return struct.unpack("<I", struct.pack("<f", x))[0]
def hx(x): return "0x%x" % (x & 0xffffffff)

S_X, S_K, S_V, S_WQ, S_WO, S_WG, S_WU, S_WD, S_OUT, S_DBG, S_H, S_SP = [S(4 + 4 * i, 4) for i in range(12)]
s_g, s_qb, s_w = S(52), S(53), S(54)
s_t0, s_t1, s_t2, s_t3 = S(55), S(56), S(57), S(58)
s_m0b = S(59)
s_off = S(60)
s_cnt = S(61)
s_kK, s_kV = S(62), S(63)
s_retry = S(64)
s_h0, s_h1 = S(65), S(66)
s_hl = S(67); s_hb = S(78); s_myfl = S(79); s_wdd = S(67); s_sig = S(78)
s_ka = S(68, 16); s_kb = S(84, 8)
s_pair = S(92, 2); s_pair2 = S(94, 2)
S_DMP = S(96, 4)
s_cq, s_cg = S(76), S(77)
S_HC = S(80, 4)
S_SPC = S(84, 4)
S_XC = S(88, 4)
s_st = S(68, 4)

v_tid, v_lane, v_lin, v_t = V(0), V(1), V(2), V(3)
v_tr = [V(4, 4), V(8, 4)]
v_dA, v_dB = V(12, 4), V(16, 4)
v_ka = V(20, 4); v_va = V(24, 8); v_kd = V(32, 4); v_vd = V(36, 2)
v_wl = V(38)
v_c = V(39)
v_l0, v_l1 = V(40, 4), V(44, 4)
v_lsave = V(16, 4)
v_negm = V(48, 16)
v_S = [V(64, 32), V(96, 32)]
v_acc = V(128, 128)
a_ring = A(128, 32)
a_B = A(160, 32)
a_Q = A(0, 64)
a_F = A(0, 64)
a_x = A(248, 8)
LSUM = int(os.environ.get('LSUM', '1'))
a_L = A(224, 16); a_ones = A(240, 4)
POI = int(os.environ.get('POI', '0'))
POISON = 0x7f817f81
a_poi = A(244, 4)

RING = 65536
MARK = 0x7fc17fc1
WS_SP = 8 << 20
WS_DUMP = 32 << 20
WS_FL = (7 << 20) + (512 << 10)
S_FLZ = S(4, 4)
S_FL = S(4, 4)

em = Em()
e = em.e

def srd(dst, lo, hi, size, off_s=None):
    if off_s is None:
        e(salu("s_mov_b32", dst[0], lo, scc_w=False)); e(salu("s_mov_b32", dst[1], hi, scc_w=False))
    else:
        e(salu("s_add_u32", dst[0], lo, off_s)); e(salu("s_addc_u32", dst[1], hi, 0, scc_r=True))
    e(salu("s_mov_b32", dst[2], hx(size), scc_w=False)); e(salu("s_mov_b32", dst[3], "0x20000", scc_w=False))

DIAG = int(os.environ.get("DIAG", "0"))
HC_OFF = 128
diag_regs = [S(100, 2), S(70, 2), S(72, 2), S(74, 2), S(96, 2), S(98, 2), S(68, 2)] if DIAG != 2 else [S(100, 2), S(96, 2), S(98, 2), S(94, 2), S(70, 2), S(72, 2), S(74, 2), S(68, 2)]
diag_n = [0]
def diag(which=1, last=False):
    if not DIAG or (which != DIAG and which != 0): return
    k = diag_n[0]; diag_n[0] += 1
    e(raw("%s %s" % ("s_memtime" if (os.environ.get("CYC") and not last) else "s_memrealtime", diag_regs[k]), "other", wr=[diag_regs[k]]))
    if k > 0: e(raw("s_waitcnt lgkmcnt(0)", "wait")); em._retire(em.lgq, 0)
AMP = os.environ.get("AMP")
def diag_out():
    if not DIAG: return
    diag(0, last=True)
    if AMP:
        k = int(AMP); last = diag_regs[diag_n[0] - 1]
        e(salu("s_sub_u32", s_t0, diag_regs[k][0], diag_regs[int(os.environ.get("AMP0", "0"))][0]))
        if os.environ.get("CYC"): e(salu("s_lshr_b32", s_t0, s_t0, 2))
        else: e(salu("s_lshl_b32", s_t0, s_t0, 2))
        em.label("L_amp")
        e(raw("s_memrealtime s[56:57]")); e(raw("s_waitcnt lgkmcnt(0)"))
        e(salu("s_sub_u32", s_t1, s_t1, last[0])); e(scmp("s_cmp_lt_u32", s_t1, s_t0)); e(raw("s_cbranch_scc1 L_amp", rd=["scc"]))
        return
    e(scmp("s_cmp_lg_u32", s_w, 0)); e(raw("s_cbranch_scc1 L_end", rd=["scc"]))
    e(raw("s_mov_b64 exec, 1", "salu", wr=["exec"]))
    e(salu("s_not_b32", s_t0, diag_regs[0][0]))
    for k in range(diag_n[0]):
        e(valu("v_mov_b32", V(4 + k), s_t0 if k == 0 else diag_regs[k][0]))
        e(raw("buffer_atomic_umax %s, off, %s, 0 offset:%d sc1" % (V(4 + k), S_DBG, 4 * k)))
    e(valu("v_mov_b32", V(12), diag_regs[0][0]))
    e(raw("buffer_atomic_umax %s, off, %s, 0 offset:%d sc1" % (V(12), S_DBG, 4 * 9)))
stamp_n = [0]
def stamp():
    if not STAMP: return
    k = stamp_n[0]; stamp_n[0] += 1
    e(raw("s_memtime %s" % S(68, 2), "other", wr=[S(68, 2)]))
    e(raw("s_memrealtime %s" % S(70, 2), "other", wr=[S(70, 2)]))
    e(raw("s_waitcnt lgkmcnt(0)", "wait")); em._retire(em.lgq, 0)
    for i in range(4): e(valu("v_writelane_b32", v_c, S(68 + i), i, rmw=True))
    e(salu("s_lshl_b32", S(72), S(2), 2)); e(salu("s_add_u32", S(72), S(72), s_w)); e(salu("s_lshl_b32", S(72), S(72), 9))
    e(salu("s_mov_b64", S(74, 2), "exec", scc_w=False)); e(raw("s_mov_b64 exec, 15", "salu", wr=["exec"]))
    e(valu("v_lshlrev_b32", v_t, 2, v_lane))
    e(bstore(v_c, v_t, S_DMP, S(72), off=k * 16))
    e(raw("s_mov_b64 exec, %s" % S(74, 2), "salu", wr=["exec"]))
    e(valu("v_lshlrev_b32", v_t, 7, v_lane))

def dump_regs(regs, finish=True):
    em.wait(lg0=True, vm0=True)
    e(nop(7)); e(nop(7))
    n = len(regs)
    e(salu("s_lshl_b32", s_t0, S(2), 2)); e(salu("s_add_u32", s_t0, s_t0, s_w)); e(salu("s_mul_i32", s_t0, s_t0, n * 256, scc_w=False))
    e(valu("v_lshlrev_b32", v_t, 2, v_lane))
    for k, r in enumerate(regs):
        e(bstore(r, v_t, S_DMP, s_t0, off=0))
        e(salu("s_add_u32", s_t0, s_t0, 256))
        if k % 32 == 31: em.wait(vm0=True)
    em.wait(vm0=True)
    if finish: e(raw("s_endpgm"))

def red4(op, x, tmp):
    for sw in ("v_permlane32_swap_b32", "v_permlane16_swap_b32"):
        for a, t in zip(x, tmp): e(valu("v_mov_b32", t, a))
        if len(x) < 3: e(nop(1))
        for a, t in zip(x, tmp): e(valu(sw, a, t))
        for a, t in zip(x, tmp): e(valu(op, a, a, t))

e(scmp("s_cmp_ge_u32", S(2), 256)); e(raw("s_cbranch_scc1 L_end", rd=["scc"]))
diag(0)
e(salu("s_mov_b32", s_retry, 0, scc_w=False))
em.label("L_restart")
i0 = e(I("s_load_dwordx16 %s, s[0:1], 0" % s_ka, "smem", wr=s_ka.regs()))
i1 = e(I("s_load_dwordx8 %s, s[0:1], 64" % s_kb, "smem", wr=s_kb.regs()))
vq, vG, vr, vc_, vx, vy, vz = [V(40 + i) for i in range(7)]
e(raw("s_getpc_b64 %s" % s_pair2, "salu", wr=[s_pair2]))
em.label("L_pc0")
CT0 = int(os.environ.get("CT0", "64"))
if CT0:
    e(valu("v_sub_u32", V(55), 255, v_tid)); e(valu("v_cmp_gt_u32", "vcc", CT0, V(55))); e(valu("v_lshlrev_b32", V(55), 7, V(55))); e(nop(0))
    e(raw("s_and_saveexec_b64 s[4:5], vcc", "salu", wr=["exec"], rd=["vcc"])); e(raw("s_cbranch_execz L_ct0"))
    e(raw("global_load_dword v55, v55, %s" % s_pair2))
    em.label("L_ct0")
    e(raw("s_mov_b64 exec, -1", "salu", wr=["exec"]))
MAP2 = int(os.environ.get("MAP2", "0"))
s_i = S(65)
if MAP2:
    e(salu("s_and_b32", s_g, S(2), 3)); e(salu("s_lshl_b32", s_g, s_g, 1)); e(salu("s_bfe_u32", s_t0, S(2), "0x10003")); e(salu("s_add_u32", s_g, s_g, s_t0))
    e(salu("s_bfe_u32", s_qb, S(2), "0x10002")); e(salu("s_lshl_b32", s_qb, s_qb, 4)); e(salu("s_lshr_b32", s_t0, S(2), 4)); e(salu("s_add_u32", s_qb, s_qb, s_t0))
else:
    e(salu("s_and_b32", s_g, S(2), 7)); e(salu("s_lshr_b32", s_qb, S(2), 3))
def sx(dst): return salu("s_lshr_b32", dst, S(2), 4 if MAP2 else 3)
TL = "-1" if MAP2 else "0xffffffff"
e(valu("v_and_b32", v_lane, 63, v_tid))
e(valu("v_lshrrev_b32", v_t, 6, v_tid))
e(valu("v_lshlrev_b32", v_lin, 4, v_lane))
e(valu("v_readfirstlane_b32", s_w, v_t))
e(valu("v_and_b32", vq, 15, v_lane)); e(valu("v_lshrrev_b32", vG, 4, v_lane))
vxo = V(47)
XD = int(os.environ.get("XD", "1"))
if XD == 2:
    vxq = V(60, 4); vxr = vxq
    for rg in range(4):
        e(valu("v_add_u32", vy, 4 * rg, vG)); e(valu("v_xor_b32", vz, vy, vq)); e(valu("v_lshl_add_u32", vy, v_t, 4, vy)); e(valu("v_lshlrev_b32", vy, 10, vy))
        e(valu("v_lshl_add_u32", vxq[rg], vz, 4, vy))
elif XD:
    vxo2 = V(50); vxr = [V(47), V(50)]
    e(valu("v_lshrrev_b32", vx, 3, v_lane)); e(valu("v_lshl_add_u32", vx, v_t, 4, vx)); e(valu("v_lshlrev_b32", vx, 10, vx))
    e(valu("v_and_b32", vy, 7, v_lane)); e(valu("v_xor_b32", vy, vy, vG)); e(valu("v_lshl_add_u32", vxo, vy, 4, vx))
    e(valu("v_xor_b32", vxo2, 64, vxo)); e(valu("v_add_u32", vxo2, 8192, vxo2))
else:
    e(valu("v_lshl_add_u32", vxo, v_t, 4, vq)); e(valu("v_lshlrev_b32", vxo, 10, vxo)); e(valu("v_lshl_add_u32", vxo, vG, 4, vxo))
vwg, vwq, vcw = V(52), V(53), V(54)
GM0 = int(os.environ.get("GM", "0"))
if GM0: e(salu("s_lshl_b32", s_t1, s_g, 7))
else: e(salu("s_mul_i32", s_t1, s_g, 448, scc_w=False)); e(salu("s_and_b32", s_t1, s_t1, hx(~127)))
e(salu("s_and_b32", s_t2, s_w, 1)); e(sx(s_t3)); e(salu("s_lshl_b32", s_t3, s_t3, 1)); e(salu("s_add_u32", s_t2, s_t2, s_t3))
e(salu("s_mul_i32", s_t2, s_t2, (16 if MAP2 else 8) * 3584, scc_w=False)); e(salu("s_add_u32", s_t1, s_t1, s_t2))
e(valu("v_lshrrev_b32", vx, 2, v_lane)); e(valu("v_mul_u32_u24", vx, 3584, vx)); e(valu("v_and_b32", vz, 3, v_lane)); e(valu("v_lshl_add_u32", vx, vz, 10 if GM0 else 7, vx))
e(valu("v_add_u32", vwg, s_t1, vx))
if GM0:
    e(salu("s_add_u32", s_t3, s_g, 1)); e(salu("s_lshr_b32", s_t3, s_t3, 1)); e(salu("s_lshl_b32", s_t3, s_t3, 7))
    e(valu("v_cmp_eq_u32", "vcc", 3, vz)); e(valu("v_subrev_u32", vx, s_t3, vwg)); e(nop(0)); e(valu("v_cndmask_b32", vwg, vwg, vx, "vcc"))
e(salu("s_lshr_b32", s_t2, S(2), 3)); e(salu("s_lshl_b32", s_t2, s_t2, 2)); e(salu("s_add_u32", s_t2, s_t2, s_w)); e(salu("s_lshl_b32", s_t3, s_t2, 8))
e(valu("v_lshlrev_b32", vcw, 7, v_lane)); e(valu("v_add_u32", vcw, s_t3, vcw))
e(salu("s_lshl_b32", s_t0, s_qb, 16))
em.wait(lg0=True)
diag(2)
srd(S_X, s_ka[0], s_ka[1], 65536, s_t0)
v_xp = V(64, 64)
XFIRST = int(os.environ.get("XFIRST", "12"))
if XD:
    s_xb = S(60)
    e(salu("s_lshl_b32", s_xb, s_w, 14))
    xo = [256 * (t >> 2) if XD == 2 else 128 * (t >> 1) for t in range(16)]
    xl = [dma(vxq[t & 3] if XD == 2 else (vxo2 if t & 1 else vxo), S_X, 0, off=xo[t]) for t in range(16)]
    def xissue(t): e(salu("s_add_u32", "m0", s_xb, t * 1024 - xo[t])); e(nop(0)); e(xl[t])
else:
    xl = [bload(v_xp[(4 * ks, 4)], vxo, S_X, 0, off=64 * ks) for ks in range(16)]
    def xissue(t): e(xl[t])
for ks in range(XFIRST): xissue(ks)
e(scmp("s_cmp_lt_u32", s_w, 2)); e(salu("s_cselect_b64", s_pair, s_ka[(12, 2)], s_ka[(14, 2)], scc_w=False, scc_r=True))
WT = int(os.environ.get("WT", "0"))
s_wgp = S(100, 2)
if WT:
    e(salu("s_lshl_b32", s_t3, S(2), 1)); e(salu("s_and_b32", s_t1, s_w, 1)); e(salu("s_add_u32", s_t3, s_t3, s_t1)); e(salu("s_mul_i32", s_t3, s_t3, 3584, scc_w=False))
    e(valu("v_lshlrev_b32", V(51), 7, v_lane)); e(valu("v_add_u32", V(51), s_t3, V(51)))
    e(raw("s_mov_b64 exec, 0xfffffff", "salu", wr=["exec"]))
    e(I("global_load_dword %s, %s, %s" % (V(48), V(51), s_pair), "vmem", rd=V(51).regs() + s_pair.regs(), wr=V(48).regs()))
    e(salu("s_mov_b64", s_wgp, s_pair, scc_w=False))
else:
    e(raw("s_mov_b64 exec, " + TL, "salu", wr=["exec"]))
    e(I("global_load_dword %s, %s, %s" % (V(48), vwg, s_pair), "vmem", rd=vwg.regs() + s_pair.regs(), wr=V(48).regs()))
e(raw("s_mov_b64 exec, 3", "salu", wr=["exec"]))
e(I("global_load_dword %s, %s, %s" % (V(49), vcw, s_pair2), "vmem", rd=vcw.regs() + s_pair2.regs(), wr=V(49).regs()))
e(raw("s_mov_b64 exec, -1", "salu", wr=["exec"]))
e(sx(s_t2)); e(salu("s_lshl_b32", s_t2, s_t2, 2)); e(salu("s_add_u32", s_t2, s_t2, s_w))
e(salu("s_lshl_b32", s_t2, s_t2, 16 if MAP2 else 15)); e(salu("s_lshl_b32", s_t3, s_g, 10)); e(salu("s_add_u32", s_t2, s_t2, s_t3))
e(valu("v_lshrrev_b32", vx, 3, v_lane)); e(valu("v_lshlrev_b32", vx, 13, vx)); e(valu("v_and_b32", vz, 7, v_lane)); e(valu("v_lshl_add_u32", vx, vz, 7, vx))
e(valu("v_add_u32", vwq, s_t2, vx))
e(salu("s_lshr_b32", s_t2, S(2), 6)); e(salu("s_and_b32", s_t3, S(2), 7)); e(salu("s_lshl_b32", s_t3, s_t3, 2)); e(salu("s_add_u32", s_t2, s_t2, s_t3))
e(salu("s_lshl_b32", s_t0, s_t2, 16))
srd(S_OUT, s_kb[2], s_kb[3], 65536, s_t0)
e(salu("s_lshl_b32", s_t1, s_g, 19))
srd(S_K, s_ka[2], s_ka[3], 524288, s_t1)
srd(S_V, s_ka[4], s_ka[5], 524288, s_t1)
srd(S_WO, s_ka[8], s_ka[9], 524288, s_t1)
srd(S_WQ, s_ka[6], s_ka[7], 4 << 20)
srd(S_WG, s_ka[12], s_ka[13], 1835008)
srd(S_WU, s_ka[14], s_ka[15], 1835008)
srd(S_WD, s_kb[0], s_kb[1], 1835008)
srd(S_DBG, s_kb[4], s_kb[5], 256)
e(salu("s_mul_i32", s_t1, s_qb, 229376, scc_w=False))
srd(S_H, s_kb[6], s_kb[7], 229376, s_t1)
e(salu("s_lshl_b32", s_t1, s_qb, 19)); e(salu("s_add_u32", s_t1, s_t1, hx(WS_SP)))
srd(S_SP, s_kb[6], s_kb[7], 524288, s_t1)
if DUMP or STAMP:
    e(salu("s_mov_b32", s_t1, hx(WS_DUMP), scc_w=False))
    srd(S_DMP, s_kb[6], s_kb[7], 200 << 20, s_t1)
e(salu("s_mov_b64", s_pair, S(90, 2), scc_w=False))
e(salu("s_lshl_b32", s_t0, s_t2, 16))
srd(S_XC, s_ka[0], s_ka[1], 65536, s_t0)
e(salu("s_mul_i32", s_t1, s_t2, 229376, scc_w=False))
srd(S_HC, s_pair[0], s_pair[1], 229376, s_t1)
e(salu("s_lshl_b32", s_t1, s_t2, 19)); e(salu("s_add_u32", s_t1, s_t1, hx(WS_SP)))
srd(S_SPC, s_pair[0], s_pair[1], 524288, s_t1)
e(salu("s_mov_b32", s_cq, s_t2, scc_w=False)); e(salu("s_bfe_u32", s_cg, S(2), "0x30003"))
e(salu("s_lshl_b32", s_myfl, s_qb, 2)); e(salu("s_add_u32", s_myfl, s_myfl, s_w)); e(salu("s_lshl_b32", s_myfl, s_myfl, 8))
e(salu("s_lshl_b32", s_t1, s_g, 2)); e(salu("s_add_u32", s_myfl, s_myfl, s_t1))
e(salu("s_lshl_b32", s_m0b, s_w, 12)); e(salu("s_add_u32", s_m0b, s_m0b, RING))
GM = int(os.environ.get("GM", "0"))
if GM:
    e(salu("s_lshl_b32", s_t1, s_w, 3)); e(salu("s_add_u32", s_t1, s_t1, s_g))
    e(salu("s_lshr_b32", s_t2, s_g, 1)); e(salu("s_add_u32", s_t2, s_t2, 24))
    e(scmp("s_cmp_eq_u32", s_w, 3)); e(salu("s_cselect_b32", s_t1, s_t2, s_t1, scc_w=False, scc_r=True))
else:
    e(salu("s_and_b32", s_t1, s_g, 1)); e(salu("s_lshl_b32", s_t1, s_t1, 2)); e(salu("s_add_u32", s_t1, s_t1, s_w))
    e(scmp("s_cmp_eq_u32", s_w, 3)); e(salu("s_cselect_b32", s_t1, 3, s_t1, scc_w=False, scc_r=True))
    e(salu("s_lshr_b32", s_t2, s_g, 1)); e(salu("s_mul_i32", s_t2, s_t2, 7, scc_w=False)); e(salu("s_add_u32", s_t1, s_t1, s_t2))
e(salu("s_lshl_b32", s_h0, s_t1, 13)); e(salu("s_add_u32", s_h1, s_h0, 4096))
e(salu("s_lshl_b32", s_t1, s_t1, 7))
e(salu("s_lshl_b32", s_t2, s_g, 2)); e(salu("s_add_u32", s_t2, s_t2, s_w)); e(salu("s_lshl_b32", s_t2, s_t2, 8))

def dma_voffs(dst, stride, colbase_s, perm):
    for j in range(4):
        e(valu("v_bfe_u32", vx, v_lane, 1, 2)); e(valu("v_bfe_u32", vy, v_lane, 4, 1))
        e(valu("v_xor_b32", vx, vx, vy))
        if j & 1: e(valu("v_xor_b32", vx, 2, vx))
        e(valu("v_and_b32", vy, 1, v_lane)); e(valu("v_lshlrev_b32", vy, 4, vy)); e(valu("v_lshl_add_u32", vx, vx, 5, vy))
        if not perm:
            e(valu("v_lshrrev_b32", vy, 3, v_lane)); rowadd = 8 * j
        else:
            e(valu("v_bfe_u32", vy, v_lane, 3, 2)); e(valu("v_bfe_u32", vz, v_lane, 5, 1)); e(valu("v_lshl_add_u32", vy, vz, 4, vy)); rowadd = 4 * j
        e(valu("v_mul_u32_u24", vy, stride, vy))
        e(valu("v_add3_u32", vx, vx, vy, colbase_s))
        e(valu("v_add_u32", dst[j], rowadd * stride - j * 1024, vx))

dma_voffs(v_dA, 3584, s_t1, False)
dma_voffs(v_dB, 8192, s_t2, False)

def m0set(p): return salu("s_add_u32", "m0", s_m0b, p * 16384) if p < 6 else salu("s_sub_u32", "m0", s_m0b, RING - (p - 6) * 16384)
def s1_dma(m):
    p = m % 6
    if m < 32:
        s, h = m >> 1, m & 1
        return [m0set(p), salu("s_mov_b32", s_off, s * 32 * 3584, scc_w=False)], [dma(v_dA[j], S_WU if h else S_WG, s_off, j * 1024) for j in range(4)]
    if m < 64:
        s, h = (m - 32) >> 1, m & 1
        return [m0set(p), salu("s_mov_b32", s_off, s * 32 * 8192 + 128 * h, scc_w=False)], [dma(v_dB[j], S_WQ, s_off, j * 1024) for j in range(4)]
    if m == 64:
        return [m0set(p), salu("s_mov_b32", s_off, 0, scc_w=False)], [dma(v_kd[j], S_K, s_off, j * 1024) for j in range(4)]
    if m == 65:
        return [m0set(p), salu("s_mov_b32", s_off, 8192, scc_w=False)], [dma(v_kd[j], S_K, s_off, j * 1024) for j in range(4)]
    if m == 66:
        return [m0set(p), salu("s_mov_b32", s_off, 0, scc_w=False)], [dma(v_vd[j & 1], S_V, s_off, j * 1024) for j in range(4)]
    return None
dtok = {}
ln_v = []
for m in range(6):
    sa, dm = s1_dma(m)
    ln_v.append(sa); ln_v += dm
    dtok[m] = dm[3]
def xaddr(dst, tmp):
    e(valu("v_and_b32", dst, 15, v_lane)); e(salu("s_lshl_b32", s_t0, s_w, 4)); e(valu("v_add_u32", dst, s_t0, dst)); e(valu("v_lshlrev_b32", dst, 10, dst))
    e(valu("v_lshrrev_b32", tmp, 4, v_lane)); e(valu("v_lshl_add_u32", dst, tmp, 3, dst)); e(salu("s_lshl_b32", s_t0, s_cg, 7)); e(valu("v_add_u32", dst, s_t0, dst))
WQT = int(os.environ.get("WQT", "0"))
wqt = [raw("s_mov_b64 exec, " + TL, "salu", wr=["exec"]), bload(V(46), vwq, S_WQ, 0, n=1), raw("s_mov_b64 exec, -1", "salu", wr=["exec"])]
WQC = int(os.environ.get("WQC", "2"))
wqs = wqt
if WQC:
    e(salu("s_lshl_b32", s_t3, S(2), 2)); e(salu("s_add_u32", s_t3, s_t3, s_w)); e(salu("s_lshl_b32", s_t3, s_t3, 12))
    e(valu("v_lshlrev_b32", V(54), 7, v_lane)); e(valu("v_add_u32", V(54), s_t3, V(54)))
    wqt = [raw("s_mov_b64 exec, 0xffffffff", "salu", wr=["exec"]), bload(V(49), V(54), S_WQ, 0, n=1), raw("s_mov_b64 exec, -1", "salu", wr=["exec"])]
if WT == 2:
    wgt = [raw("s_mov_b64 exec, " + TL, "salu", wr=["exec"]), I("global_load_dword %s, %s, %s" % (V(51), vwg, s_wgp), "vmem", rd=vwg.regs() + s_wgp.regs(), wr=V(51).regs()), raw("s_mov_b64 exec, -1", "salu", wr=["exec"])]
    ln_v.insert(int(os.environ.get("WTP", "0")), wgt)
if WQT == 0: ln_v.append(wqt)
LNPRE = int(os.environ.get("LNPRE", "0"))
lv = [0]
def ln_issue(n=1):
    k = 0
    while k < n and lv[0] < len(ln_v):
        it = ln_v[lv[0]]; lv[0] += 1
        e(it)
        if not isinstance(it, list): k += 1
e(valu("v_bfe_u32", vr, v_lane, 2, 2)); e(valu("v_and_b32", vc_, 3, v_lane))
e(valu("v_lshlrev_b32", vx, 10, vG)); e(valu("v_lshl_add_u32", vx, vr, 7, vx)); e(valu("v_lshl_add_u32", vx, vc_, 3, vx)); e(valu("v_add_u32", vx, s_m0b, vx))
e(valu("v_lshrrev_b32", vy, 1, vr)); e(valu("v_and_b32", vz, 1, vG)); e(valu("v_lshl_add_u32", vy, vz, 1, vy))
for u in range(4):
    e(valu("v_xor_b32", vz, u, vy)); e(valu("v_lshl_add_u32", v_tr[0][u], vz, 5, vx)); e(valu("v_add_u32", v_tr[1][u], 3 * 16384, v_tr[0][u]))
e(valu("v_xor_b32", vy, vG, vq))
for ds in range(4):
    e(valu("v_xor_b32", vz, 4 * ds, vy)); e(valu("v_lshlrev_b32", vz, 4, vz)); e(valu("v_lshl_add_u32", vz, vq, 8, vz)); e(valu("v_add_u32", v_ka[ds], RING + 4 * 16384, vz))
e(valu("v_lshl_add_u32", vx, vG, 2, vr)); e(valu("v_and_b32", vy, 7, vx)); e(valu("v_lshlrev_b32", vx, 8, vx)); e(valu("v_lshl_add_u32", vx, vc_, 3, vx)); e(valu("v_add_u32", vx, RING, vx))
for db in range(8):
    e(valu("v_xor_b32", vz, db, vy)); e(valu("v_lshl_add_u32", v_va[db], vz, 5, vx))
e(salu("s_lshl_b32", s_t1, s_w, 12))
e(valu("v_lshlrev_b32", vx, 8, vG)); e(valu("v_add_u32", vx, s_t1, vx))
for j in range(4):
    e(valu("v_add_u32", vy, 4 * j, vG)); e(valu("v_xor_b32", vy, vy, vq)); e(valu("v_lshl_add_u32", v_kd[j], vy, 4, vx))
e(valu("v_and_b32", vz, 1, v_lane)); e(valu("v_lshl_add_u32", vx, vz, 4, vx))
for j in range(2):
    e(valu("v_add_u32", vy, 4 * j, vG)); e(valu("v_lshrrev_b32", vz, 1, vq)); e(valu("v_xor_b32", vy, vy, vz)); e(valu("v_lshl_add_u32", v_vd[j], vy, 5, vx))
e(salu("s_lshl_b32", s_t1, s_w, 14)); e(valu("v_add_u32", v_wl, s_t1, v_lin))
for ks in range(XFIRST, 16): xissue(ks)
if XD == 2:
    e(valu("v_xor_b32", vx, vq, vG)); e(valu("v_lshlrev_b32", vy, 8, vq)); e(valu("v_add_u32", vy, s_xb, vy))
    for b_ in range(4): e(valu("v_xor_b32", vz, 4 * b_, vx)); e(valu("v_lshl_add_u32", V(48 + 0) if False else vxr[b_], vz, 4, vy))
elif XD:
    e(valu("v_lshrrev_b32", vx, 1, vq)); e(valu("v_xor_b32", vx, vx, vG)); e(valu("v_lshlrev_b32", vx, 4, vx))
    e(valu("v_lshl_add_u32", vx, vq, 7, vx)); e(valu("v_add_u32", vxr[0], s_xb, vx)); e(valu("v_xor_b32", vxr[1], 64, vxr[0]))
e(salu("s_mov_b32", s_t1, hx(WS_FL), scc_w=False))
srd(S_FL, s_pair[0], s_pair[1], 32768, s_t1)
if WQT == 1: e(wqt)
ln_issue(LNPRE)
stamp()

v_f = V(128, 128)
LNM = int(os.environ.get("LNM", "1"))
vsum, vtmp, vmb, vdm = V(40), V(41), V(42), V(43)
vneg = V(56, 2)
diag(2)
if LNM:
    d1, d2 = V(56, 4), (V(60, 4) if XD != 2 else A(196, 4))
    xr = {}
    def xread(t2):
        em.wait(vm=xl[2 * t2 + 1])
        for ks in (2 * t2, 2 * t2 + 1): xr[ks] = e(dsread("ds_read_b128", v_xp[(4 * ks, 4)], vxr[ks & 1], (ks >> 1) * 2048))
    e(valu("v_mov_b32", vtmp, "0x3f803f80"))
    for i in range(4): e(valu("v_accvgpr_write_b32", a_ones[i], vtmp))
    e(valu("v_and_b32", vtmp, 3, v_lane))
    for r in range(1, 4): e(valu("v_cmp_eq_u32", S(68 + 2 * r, 2), r, vtmp))
    e(valu("v_bfe_u32", vtmp, v_lane, 2, 2)); e(valu("v_lshrrev_b32", vmb, 4, v_lane)); e(valu("v_cmp_eq_u32", S(68, 2), vtmp, vmb))
    LND = int(os.environ.get("LND", "4"))
    def xread4(sg):
        em.wait(vm=xl[4 * sg + 3])
        for ks in range(4 * sg, 4 * sg + 4): xr[ks] = e(dsread("ds_read_b128", v_xp[(4 * ks, 4)], vxr[ks & 3], sg * 4096))
    if XD == 1: xread(0)
    for ks in range(16):
        if XD == 2:
            if ks % 4 == 0: xread4(ks // 4)
            em.wait(lg=xr[ks])
        elif XD:
            if ks % 2 == 0 and ks + 2 < 16: xread(ks // 2 + 1)
            em.wait(lg=xr[ks])
        else: em.wait(vm=xl[ks])
        if ks == 15: diag(2)
        x4 = v_xp[(4 * ks, 4)]
        e(mfma(d1, a_ones, x4, 0 if ks == 0 else d1))
        if ks >= LND: ln_issue(1)
        for k in range(2):
            p = 4 * ks + k
            e(valu("v_lshlrev_b32", v_f[2 * p], 16, v_xp[p])); e(valu("v_and_b32", v_f[2 * p + 1], "0xffff0000", v_xp[p]))
        e(mfma(d2, x4, x4, 0 if ks == 0 else d2))
        for k in range(2, 4):
            p = 4 * ks + k
            e(valu("v_lshlrev_b32", v_f[2 * p], 16, v_xp[p])); e(valu("v_and_b32", v_f[2 * p + 1], "0xffff0000", v_xp[p]))
    if STAMP == 3: stamp()
    ln_issue(int(os.environ.get("LN_FIRST", "0")))
    diag(2)
    if STAMP == 3: stamp()
    e(nop(2))
    if XD == 2:
        e(nop(2))
        for r in range(4): e(valu("v_accvgpr_read_b32", V(60 + r), d2[r]))
        d2 = V(60, 4)
    e(valu("v_mul_f32", vsum, hx(f2u(1.0 / 512)), d1[0]))
    e(valu("v_cvt_pk_bf16_f32", vmb, vsum, vsum)); e(valu("v_lshlrev_b32", vmb, 16, vmb))
    e(valu("v_mov_b32", vdm, vsum))
    for r in range(1, 4): e(valu("v_cndmask_b32", d2[0], d2[0], d2[r], S(68 + 2 * r, 2)))
    e(valu("v_cndmask_b32", vsum, 0, d2[0], S(68, 2)))
    red4("v_add_f32", [vsum], [vtmp])
    e(valu("v_mul_f32", vsum, hx(f2u(1.0 / 512)), vsum))
    e(valu("v_fma_f32", vsum, "-" + str(vdm), vdm, vsum, extra_rd=vdm.regs()))
    if STAMP == 3: stamp()
else:
    acc = [V(56, 2), V(58, 2), V(60, 2), V(62, 2)]
    for ks in range(16):
        em.wait(vm=xl[ks])
        if ks == 15: diag(2)
        for k in range(4):
            p = 4 * ks + k
            e(valu("v_lshlrev_b32", v_f[2 * p], 16, v_xp[p])); e(valu("v_and_b32", v_f[2 * p + 1], "0xffff0000", v_xp[p]))
        for k in range(4):
            p = 4 * ks + k
            if ks == 0: e(valu("v_mov_b64", acc[k], v_f[(2 * p, 2)]))
            else: e(valu("v_pk_add_f32", acc[k], acc[k], v_f[(2 * p, 2)]))
    if STAMP == 3: stamp()
    ln_issue(int(os.environ.get("LN_FIRST", "12")))
    diag(2)
    if STAMP == 3: stamp()
    e(valu("v_pk_add_f32", acc[0], acc[0], acc[1])); e(valu("v_pk_add_f32", acc[2], acc[2], acc[3])); e(valu("v_pk_add_f32", acc[0], acc[0], acc[2]))
    e(valu("v_add_f32", vsum, acc[0][0], acc[0][1]))
    red4("v_add_f32", [vsum], [vtmp])
    e(valu("v_mul_f32", vsum, hx(f2u(1.0 / 512)), vsum))
    e(valu("v_cvt_pk_bf16_f32", vmb, vsum, vsum)); e(valu("v_lshlrev_b32", vmb, 16, vmb))
    e(valu("v_sub_f32", vdm, vsum, vmb))
    e(valu("v_sub_f32", vneg[0], 0, vmb))
    acc2 = [V(58, 2), V(60, 2), V(62, 2)]
    for p in range(64):
        e(valu("v_pk_add_f32", v_f[(2 * p, 2)], v_f[(2 * p, 2)], vneg, mod="op_sel_hi:[1,0]"))
    for p in range(64):
        a_ = acc2[p % 3]
        if p < 3: e(valu("v_pk_mul_f32", a_, v_f[(2 * p, 2)], v_f[(2 * p, 2)]))
        else: e(valu("v_pk_fma_f32", a_, v_f[(2 * p, 2)], v_f[(2 * p, 2)], a_))
    if STAMP == 3: stamp()
    e(valu("v_pk_add_f32", acc2[0], acc2[0], acc2[1])); e(valu("v_pk_add_f32", acc2[0], acc2[0], acc2[2]))
    e(valu("v_add_f32", vsum, acc2[0][0], acc2[0][1]))
    red4("v_add_f32", [vsum], [vtmp])
    e(valu("v_mul_f32", vsum, hx(f2u(1.0 / 512)), vsum))
    e(valu("v_fma_f32", vsum, "-" + str(vdm), vdm, vsum, extra_rd=vdm.regs()))
e(valu("v_max_f32", vsum, 0, vsum))
e(valu("v_cvt_pk_bf16_f32", vsum, vsum, vsum)); e(valu("v_lshlrev_b32", vsum, 16, vsum))
e(valu("v_add_f32", vsum, hx(f2u(1e-5)), vsum))
e(valu("v_cvt_pk_bf16_f32", vsum, vsum, vsum)); e(valu("v_lshlrev_b32", vsum, 16, vsum))
e(valu("v_sqrt_f32", vsum, vsum)); e(nop(0))
e(valu("v_cvt_pk_bf16_f32", vsum, vsum, vsum)); e(valu("v_lshlrev_b32", vsum, 16, vsum))
e(valu("v_rcp_f32", vneg[0], vsum)); e(nop(0))
if LNM: e(valu("v_mul_f32", vneg[1], "-" + str(vmb), vneg[0], mod="", extra_rd=vmb.regs()))
for ks in range(16):
    for k in range(4):
        p = 4 * ks + k
        if LNM: e(valu("v_pk_fma_f32", v_f[(2 * p, 2)], v_f[(2 * p, 2)], vneg, vneg, mod="op_sel:[0,0,1] op_sel_hi:[1,0,1]"))
        else: e(valu("v_pk_mul_f32", v_f[(2 * p, 2)], v_f[(2 * p, 2)], vneg, mod="op_sel_hi:[1,0]"))
    for k in range(4):
        p = 4 * ks + k
        e(valu("v_cvt_pk_bf16_f32", v_xp[p], v_f[2 * p], v_f[2 * p + 1]))
    e(dswrite("ds_write_b128", v_wl, v_xp[(4 * ks, 4)], ks * 1024))
ln_issue(int(os.environ.get("LN_LAST", "100")))
if STAMP == 3: stamp()
if DUMP == "ln": dump_regs([v_xp[i] for i in range(64)])
em.wait(lg0=True)
e(raw("s_barrier"))
stamp(); diag(); diag(2); diag(3)

def cost_of(it):
    k = getattr(it, "kind", "")
    return 2 if k == "trans" else (0 if k in ("salu", "nop") else 1)
class Fill:
    def __init__(self, items, start, end, spread=False): self.items, self.start, self.end, self.spread = list(items), start, end, spread; self.i = 0
    def done(self): return self.i == len(self.items)
def run_stream(NH, dmaf, dtok, accf, Bf, extra, fills, LOOK=6, nq=4, posf=lambda m: m % 6, ring=a_ring, first_dma=6, tr2=None, early_dma=False, w2=lambda g: False):
    NG = 4 * NH
    rtok = {}
    def reads(g):
        m, u = g >> 2, g & 3
        p = posf(m)
        d = ring[((g % 8) * 4, 4)]
        ar, of = (v_tr[p // 3][u], (p % 3) * 16384) if p < 6 else (tr2[u], (p - 6) * 16384)
        r = [dsread("ds_read_b64_tr_b16", d[(2 * h2, 2)], ar, of + h2 * 512) for h2 in range(2)]
        rtok[g] = r[1]
        return r
    pre = [reads(g) for g in range(3)]
    G, C = [], []
    cur = None
    for g in range(NG):
        gaps = [[], [], [], []]; cap = [2, 2, 2, 2]
        if g + 3 < NG:
            if (g + 3) & 3 == 0 and not (g > 0 and w2(g - 1)): gaps[0].append(LateW(dtok, (g + 3) >> 2))
            r = reads(g + 3); gaps[0].append(r[0]); gaps[1].append(r[1]); cap[0] -= 1; cap[1] -= 1
        md, j = (g + 4 * LOOK - 4) >> 2, (g + 4 * LOOK - 4) & 3
        if early_dma:
            md, j = (g + 4 * LOOK - 3) >> 2, (g + 4 * LOOK - 3) & 3
            if md >= first_dma and j < 2:
                if j == 0: cur = dmaf(md)
                if cur is not None:
                    if j == 0: gaps[1] += cur[0]
                    gaps[2].append(cur[1][2 * j]); gaps[3].append(cur[1][2 * j + 1]); cap[2] -= 1; cap[3] -= 1
                    if j == 1: dtok[md] = cur[1][3]
        elif md >= first_dma:
            if j == 0: cur = dmaf(md)
            if cur is not None:
                if j == 0: gaps[2] += cur[0]
                for it in cur[1][j::4]: gaps[3].append(it); cap[3] -= 1
                if j == 3: dtok[md] = cur[1][3]
        for (gp, it, cost) in extra.get(g, []):
            gaps[gp].append(it); cap[gp] -= cost
        if w2(g):
            if g & 1 == 0 and g + 1 < NG:
                gaps[3].insert(0, LateW2(rtok, [x for x in (g + 1, g + 2) if x < NG], dtok, (g + 4) >> 2 if ((g + 4) & 3 == 0 and g + 4 < NG) else None))
        elif g + 1 < NG: gaps[3].insert(0, Wait(lg=rtok[g + 1]))
        G.append(gaps); C.append(cap)
    B = {}
    for f in fills:
        idx = [(g, q) for g in range(f.start, f.end) for q in range(4)]
        caps = [max(0, C[g][q]) for g, q in idx]
        W = sum(cost_of(it) for it in f.items); T = sum(caps); n = len(idx)
        acc = 0.0; cum = 0
        for k, key in enumerate(idx):
            if W >= T: acc += caps[k] + (W - T) / n
            elif f.spread: acc += caps[k] * W / T
            else: acc += caps[k]
            B[key] = (f, acc)
    em.wait(vm=dtok[0])
    for r in pre: e(r)
    for p_ in extra.get(-1, []): e(p_[1])
    em.wait(lg0=True)
    used = {id(f): 0 for f in fills}
    for g in range(NG):
        m, u = g >> 2, g & 3
        d = ring[((g % 8) * 4, 4)]
        for qb in range(nq):
            ac, first = accf(m, u, qb)
            e(mfma(ac, d, Bf(m, qb), 0 if first else ac))
            ent = B.get((g, qb))
            sawv = False
            if ent:
                f, lim = ent
                while not f.done() and getattr(f.items[f.i], "kind", "") in ("lds", "vmem", "salu") and used[id(f)] + cost_of(f.items[f.i]) <= lim + 0.5:
                    it = f.items[f.i]; f.i += 1; used[id(f)] += cost_of(it); e(it)
            for it in G[g][qb]: e(it)
            if ent:
                f, lim = ent
                lastgap = (g == f.end - 1 and qb == 3)
                while not f.done():
                    it = f.items[f.i]; c = cost_of(it)
                    if not lastgap:
                        if used[id(f)] + c > lim + 0.5: break
                        if sawv and getattr(it, "kind", "") in ("lds", "vmem"): break
                    f.i += 1; used[id(f)] += c; e(it)
                    if getattr(it, "kind", "") in ("valu", "trans"): sawv = True
    assert all(f.done() for f in fills)
class LateW2:
    def __init__(self, r, fl, d, k): self.r, self.fl, self.d, self.k = r, fl, d, k
    def __call__(self): return Wait(lg=[self.r[f] for f in self.fl], vm=(self.d[self.k] if self.k is not None else None))
class LateW:
    def __init__(self, d, k): self.d, self.k = d, k
    def __call__(self): return Wait(vm=self.d[self.k])

def s1_acc(m, u, qb):
    h = m & 1
    idx = ((h * 4 + u) * 4 + qb) * 4
    if m < 32: return A(idx, 4), m < 2
    return v_acc[(idx, 4)], m < 34
def s1_B(m, qb): return a_B[(((m >> 1) & 1) * 16 + qb * 4, 4)]
extra = {}
btok = {}
def bread(s, qb): return dsread("ds_read_b128", a_B[((s & 1) * 16 + qb * 4, 4)], v_lin, (qb * 16 + (s % 16)) * 1024)
extra[-1] = [(0, bread(0, qb), 1) for qb in range(4)]
for s in range(1, 32):
    for qb in range(4):
        extra.setdefault(8 * (s - 1) + 1 + qb, []).append((2, bread(s, qb), 1))
gi = 0; gj = 0; pend_s = []
for it in ln_v[lv[0]:]:
    if isinstance(it, list) and all(x.kind == "salu" for x in it): pend_s = it; continue
    if not isinstance(it, list) and it.kind == "dma":
        assert gi < 12
        extra.setdefault(gi // 3, []).append((gi % 3, [pend_s, it] if pend_s else it, 1)); pend_s = []
        gi += 1
    else:
        extra.setdefault(8 + 2 * gj, []).append((1, it, 1)); gj += 1
if WQC == 2: extra.setdefault(int(os.environ.get("WQG", "40")), []).append((1, wqs, 1))
C0 = -2.0 * math.sqrt(2.0 / math.pi) * math.log2(math.e); C1 = C0 * 0.044715
vc0, vc1 = V(40), V(41)
gel = [valu("v_mov_b32", vc0, hx(f2u(C0))), valu("v_mov_b32", vc1, hx(f2u(C1)))]
hst = []
tb = 0
for i in range(2):
    for qb in range(4):
        pk = V(96 + 4 * tb, 4); tb += 1
        for b in range(2):
            u = 2 * i + b
            T = [V(64 + 16 * b + k) for k in range(16)]
            G_, U_, X_ = T[0:4], T[4:8], T[8:12]
            ga = lambda r: A((u * 4 + qb) * 4 + r); ua = lambda r: A(((4 + u) * 4 + qb) * 4 + r)
            for r in range(4): gel.append(valu("v_accvgpr_read_b32", G_[r], ga(r)))
            for r in range(4): gel.append(valu("v_accvgpr_read_b32", U_[r], ua(r)))
            for r in range(4): gel.append(valu("v_mul_f32", X_[r], G_[r], G_[r]))
            for r in range(4): gel.append(valu("v_fma_f32", X_[r], X_[r], vc1, vc0))
            for r in range(4): gel.append(valu("v_mul_f32", X_[r], X_[r], G_[r]))
            for r in range(4): gel.append(valu("v_exp_f32", X_[r], X_[r]))
            for r in range(4): gel.append(valu("v_mul_f32", G_[r], G_[r], U_[r]))
            for r in range(4): gel.append(valu("v_add_f32", X_[r], "1.0", X_[r]))
            for r in range(4): gel.append(valu("v_rcp_f32", X_[r], X_[r]))
            gel.append(nop(0))
            for r in range(4): gel.append(valu("v_mul_f32", G_[r], G_[r], X_[r]))
            for k in range(2): gel.append(valu("v_cvt_pk_bf16_f32", pk[2 * b + k], G_[2 * k], G_[2 * k + 1]))
        st = bstore(pk, v_lin, S_H, s_h1 if i else s_h0, off=qb * 1024, mod="sc1")
        hst.append(st)
class Stamp:
    def __call__(self): stamp(); return []
if STAMP: extra.setdefault(128, []).append((0, Stamp(), 0))
if STAMP == 6:
    for g_ in (0, 8, 16, 24, 32, 48, 64, 96): extra.setdefault(g_, []).append((0, Stamp(), 0))
class Diag3:
    def __call__(self): diag(3); return []
if DIAG == 3:
    for g_ in (32, 128, 192): extra.setdefault(g_, []).append((0, Diag3(), 0))
class Grp:
    kind = "salu"
    def __init__(self, l): self.l = l
    def __call__(self):
        for x in self.l:
            if x.kind == "label": em.out.append(x)
            else: e(x)
        return []
def group_scc(items):
    out = []
    for it in items:
        if out and ("scc" in it.rd or it.kind == "label"):
            p = out.pop(); out.append(Grp((p.l if isinstance(p, Grp) else [p]) + [it]))
        else: out.append(it)
    return out
s_pf = [S(24, 2), S(26, 2), S(28, 2), S(30, 2)]
s_pfH = s_pair2
s_fo = S(3)
QS = math.log2(math.e) / math.sqrt(128.0)
vqs = V(42, 2); vqw = V(44)
save = em.out; em.out = []; spend = em.pend; em.pend = {}
NWO = 4 if MAP2 else 2
for it in range(3):
    e(salu("s_add_u32", s_t0, s_w, 4 * it))
    e(salu("s_sub_u32", s_t1, s_t0, NWO)); e(salu("s_min_u32", s_t1, s_t1, 6)); e(salu("s_lshl_b32", s_t1, s_t1, 13))
    e(salu("s_lshr_b32", s_t2, S(2), 3)); e(salu("s_mul_i32", s_t2, s_t2, 57344, scc_w=False)); e(salu("s_add_u32", s_t1, s_t1, s_t2))
    e(salu("s_add_u32", s_pf[it][0], S_WD[0], s_t1)); e(salu("s_addc_u32", s_pf[it][1], S_WD[1], 0, scc_r=True))
    if it == 0:
        e(sx(s_t1)); e(salu("s_lshl_b32", s_t1, s_t1, 15 if MAP2 else 14)); e(salu("s_lshl_b32", s_t2, s_w, 13)); e(salu("s_add_u32", s_t1, s_t1, s_t2))
        e(salu("s_add_u32", s_pf[1][0], S_WO[0], s_t1)); e(salu("s_addc_u32", s_pf[1][1], S_WO[1], 0, scc_r=True))
        e(scmp("s_cmp_lt_u32", s_w, NWO)); e(salu("s_cselect_b64", s_pf[0], s_pf[1], s_pf[0], scc_w=False, scc_r=True))
e(raw("s_getpc_b64 %s" % s_pf[3], "salu", wr=[s_pf[3]]))
em.label("L_pc1")
e(salu("s_lshl_b32", s_t0, s_w, 13)); e(salu("s_add_u32", s_t0, s_t0, "L_tail-L_pc1")); e(salu("s_min_u32", s_t0, s_t0, "L_code_end-L_pc1-8192"))
e(salu("s_add_u32", s_t1, s_t0, (1 if MAP2 else 3) * 8192)); e(salu("s_min_u32", s_t1, s_t1, "L_code_end-L_pc1-8192"))
e(salu("s_add_u32", s_pfH[0], s_pf[3][0], s_t1)); e(salu("s_addc_u32", s_pfH[1], s_pf[3][1], 0, scc_r=True))
e(scmp("s_cmp_lt_u32", s_w, 3 if MAP2 else 1)); e(salu("s_cselect_b64", s_pf[2], s_pf[2], s_pfH, scc_w=False, scc_r=True))
e(salu("s_add_u32", s_pf[3][0], s_pf[3][0], s_t0)); e(salu("s_addc_u32", s_pf[3][1], s_pf[3][1], 0, scc_r=True))
e(salu("s_lshl_b32", s_t0, s_cg, 2)); e(salu("s_add_u32", s_t0, s_t0, s_w)); e(salu("s_mul_i32", s_t0, s_t0, 7168, scc_w=False)); e(salu("s_min_u32", s_t0, s_t0, 229376 - 8192))
e(salu("s_add_u32", s_pfH[0], S_HC[0], s_t0)); e(salu("s_addc_u32", s_pfH[1], S_HC[1], 0, scc_r=True))
e(salu("s_lshl_b32", s_fo, s_cq, 3))
vx, vy, vz = V(45), V(46), V(47)
e(salu("s_lshl_b32", s_t1, s_w, 8))
dma_voffs(v_dA, 1024, s_t1, True)
e(salu("s_mul_i32", s_wdd, s_w, 448 * 1024 - 256, scc_w=False)); e(salu("s_lshl_b32", s_t3, s_cg, 7)); e(salu("s_add_u32", s_wdd, s_wdd, s_t3))
e(valu("v_mov_b32", vqs[0], hx(f2u(QS))))
e(valu("v_and_b32", vx, 15, v_lane)); e(valu("v_bfe_u32", vqw, v_lane, 5, 1)); e(valu("v_lshl_add_u32", vx, vqw, 4, vx)); e(valu("v_lshlrev_b32", vx, 4, vx))
e(valu("v_bfe_u32", vqw, v_lane, 4, 1)); e(valu("v_lshl_add_u32", vqw, vqw, 3, vx))
e(salu("s_lshl_b32", s_t1, s_w, 14)); e(valu("v_add_u32", vqw, s_t1, vqw))
for i in range(16): e(valu("v_accvgpr_write_b32", a_L[i], 0))
midset = group_scc(em.out); em.out = save; em.pend = spend
HST = int(os.environ.get("HST", "0"))
if HST == 0: GEL_END = 254
for k in range(8):
    if HST: extra.setdefault(248 + k, []).append((0, hst[k], 1))
run_stream(64, s1_dma, dtok, s1_acc, s1_B, extra, [Fill(midset, 109, 130), Fill(gel, 131, GEL_END)], early_dma=int(os.environ.get('ED1', '0')), w2=lambda g: int(os.environ.get('W2A', '1')) and g >= 130)
if DUMP == "qacc": dump_regs([v_acc[i] for i in range(128)])
stamp(); diag(3)

em.wait(lg0=True)
e(raw("s_barrier"))
def signal(off_s_expr_add, lab, v_t):
    e(scmp("s_cmp_lg_u32", s_w, 0)); e(raw("s_cbranch_scc1 %s" % lab, rd=["scc"]))
    e(salu("s_lshl_b32", s_t0, s_qb, 2))
    if off_s_expr_add: e(salu("s_add_u32", s_t0, s_t0, off_s_expr_add))
    e(valu("v_mov_b32", v_t, 1))
    e(raw("s_mov_b64 exec, 1", "salu", wr=["exec"]))
    e(raw("buffer_atomic_add %s, off, %s, %s sc1" % (v_t, S_DBG, s_t0)))
    e(raw("s_mov_b64 exec, -1", "salu", wr=["exec"]))
    em.label(lab)
for blk in range(8):
    for qb in range(4):
        a_ = v_acc[((blk * 4 + qb) * 4, 4)]
        t = a_[(0, 2)]
        for k in range(2): e(valu("v_pk_mul_f32", a_[(2 * k, 2)], a_[(2 * k, 2)], vqs, mod="op_sel_hi:[1,0]"))
        for k in range(2): e(valu("v_cvt_pk_bf16_f32", t[k], a_[2 * k], a_[2 * k + 1]))
        e(dswrite("ds_write_b64", vqw, t, (qb * 4 + (blk >> 1)) * 1024 + (blk & 1) * 512))
for j in range(4): e(valu("v_add_u32", v_dB[j], s_wdd, v_dA[j]))
em.wait(lg0=True)
for f in range(16): e(dsread("ds_read_b128", a_Q[(4 * f, 4)], v_wl, f * 1024))
e(scmp("s_cmp_eq_u32", s_retry, 1)); e(raw("s_cbranch_scc1 L_maxpass", rd=["scc"]))
em.label("L_att_start")
NZ0 = 32
for i in range(NZ0): e(valu("v_mov_b64", v_acc[(2 * i, 2)], 0))
assert LSUM == 1 and LNM and not POI
e(valu("v_lshlrev_b32", V(3), 7, v_lane))
e(valu("v_and_b32", V(38), 7, v_lane)); e(valu("v_mov_b32", V(0), 0))
em.wait(vm=dtok[66], lg0=True)
e(raw("s_barrier"))
if DUMP == "q": dump_regs([a_Q[i] for i in range(64)])
stamp()

def Qf(qb, ds): return a_Q[((qb * 4 + ds) * 4, 4)]
def Of(db, qb): return v_acc[((db * 4 + qb) * 4, 4)]
def fr(f): return a_ring[((f % 8) * 4, 4)]
def kslot(par): return 16384 if par == 0 else 0
def vslot(par): return 0 if par == 0 else 16384
def frag_reads(par, f):
    if f >= 32: par ^= 1; f -= 32
    d = fr(f)
    if f < 8 or 16 <= f < 24:
        kb = (f >> 2) if f < 8 else 2 + ((f - 16) >> 2)
        return [dsread("ds_read_b128", d, v_ka[f & 3], kslot(par) + kb * 4096)]
    ks2 = 0 if f < 16 else 1
    db = f & 7
    return [dsread("ds_read_b64_tr_b16", d[(2 * h, 2)], v_va[db], vslot(par) + ks2 * 8192 + h * 4096) for h in range(2)]
def read_sched(g):
    r = []
    if g + 3 < 24 or g >= 29: r.append(g + 3)
    if 19 <= g <= 26: r.append(g + 5)
    return r
def sm_val(g, k):
    if 7 <= g <= 22: b = 1; n = 2 * (g - 7) + k
    else: b = 0; n = 2 * ((g - 23) % 32) + k
    kb, qb, r = n >> 4, (n >> 2) & 3, n & 3
    return b, qb, kb, r
def sm_items(g):
    ex, ad = [], []
    for k in range(2):
        b, qb, kb, r = sm_val(g, k)
        x = v_S[b][qb * 8 + kb * 4 + r]
        l = (v_l1 if b else v_l0)[qb]
        ex.append(valu("v_exp_f32", x, x)); ad.append(valu("v_add_f32", l, l, x))
    b, qb, kb, r = sm_val((g - 1) % 32, 0)
    cv = valu("v_cvt_pk_bf16_f32", v_S[b][qb * 8 + kb * 2 + (r >> 1)], v_S[b][qb * 8 + kb * 4 + r], v_S[b][qb * 8 + kb * 4 + r + 1])
    return ex, ad, cv
def att_dma(par, g):
    if g >= 29: k = g - 29; sp = par
    elif g <= 4: k = g + 3; sp = par ^ 1
    else: return [], None
    sal = []
    if k == 0: sal = [salu("s_add_u32", "m0", s_m0b, 4 * 16384 + kslot(sp))]
    if k == 4: sal = [salu("s_add_u32", "m0", s_m0b, vslot(sp))]
    if k < 4: return sal, dma(v_kd[k], S_K, s_kK, k * 1024)
    return sal, dma(v_vd[k & 1], S_V, s_kV, (k - 4) * 1024)
SIDE_FIRST = 11
class Lbl:
    def __init__(self, n): self.n = n
    def __call__(self): em.label(self.n); return []
class LoopStamp:
    def __init__(self, k, par): self.k, self.par = k, par
    def __call__(self):
        k = self.k
        e(raw("s_memtime %s" % S(68 + 2 * k, 2), "other", wr=[S(68 + 2 * k, 2)]))
        if k == 2:
            e(raw("s_waitcnt lgkmcnt(0)", "wait")); em._retire(em.lgq, 0)
            for i in range(3): e(valu("v_writelane_b32", v_c, S(68 + 2 * i), i, rmw=True))
            e(salu("s_lshl_b32", S(74), S(2), 2)); e(salu("s_add_u32", S(74), S(74), s_w)); e(salu("s_lshl_b32", S(74), S(74), 4))
            e(salu("s_sub_u32", S(74), S(74), s_cnt)); e(salu("s_add_u32", S(74), S(74), 16)); e(salu("s_lshl_b32", S(74), S(74), 5))
            e(salu("s_add_u32", S(74), S(74), (1 << 20) + 16 * self.par))
            e(raw("s_mov_b64 exec, 7", "salu", wr=["exec"]))
            e(valu("v_lshlrev_b32", v_t, 2, v_lane))
            e(bstore(v_c, v_t, S_DMP, S(74), off=0))
            e(raw("s_mov_b64 exec, -1", "salu", wr=["exec"]))
            e(valu("v_lshlrev_b32", v_t, 7, v_lane))
        return []
v_tch, v_flag, v_fa = V(3), V(0), V(38)
xtok = []; lastdma = [None]
NITER = 14
s_po0, s_po1, s_poe = s_h0, s_h1, s_off
s_pfc = S(16, 2); s_kvt = S(18, 2); KVIT = int(os.environ.get('KVIT', '12'))
ROT = int(os.environ.get('ROT', '8'))
LQ = int(os.environ.get("LQ", "2"))
def plan_adds():
    nmem = {}
    for g in range(32):
        n = sum(1 if (f % 32 < 8 or 16 <= f % 32 < 24) else 2 for f in read_sched(g)) + (1 if (g >= 29 or g <= 4) else 0) + (1 if g in (13, 14) else 0)
        nmem[g] = n
    free = {}
    for g in range(32):
        n = nmem[g]; a1 = 2 if n > 2 else min(n, 1); a3 = n - a1
        if a1 < 2: a1 += 1
        else: a3 += 1
        if g == 0: a1 += 1
        free[(g, 1)] = max(0, 2 - a1); free[(g, 3)] = max(0, 2 - a3)
        free[(g, 4)] = 2 if ((g & 8) and (g & 1) and ((g & 7) >> 1) < LQ) else 0
    jobs = []
    for g in range(7, 39):
        for k in range(2):
            b, qb, kb, r = sm_val(g % 32, k)
            if qb < LQ: continue
            early = 4 * g + (1 if k == 0 else 3)
            idx = kb * 4 + r
            if idx < 4:
                gsrc = g + 1 if idx == 0 else (g + 2 if idx == 1 else (g + 8 if idx == 2 else g + 9))
                dead = 4 * gsrc
            else: dead = 4 * (g + 11)
            if b == 1: dead = min(dead, 4 * 30)
            jobs.append((dead, early, b, qb, idx))
    plan = {}
    for dead, early, b, qb, idx in sorted(jobs):
        for t in range(early, dead):
            g, q = t >> 2, t & 3
            for gp in ([1] if q == 1 else ([3, 4] if q == 3 else [])):
                if free[(g % 32, gp)] > 0:
                    free[(g % 32, gp)] -= 1; plan.setdefault((g % 32, gp), []).append((b, qb, idx, g)); break
            else: continue
            break
        else:
            g = early >> 2; plan.setdefault((g % 32, early & 3), []).append((b, qb, idx, g)); print("; add overflow", g, file=sys.stderr)
    return plan
ADDS = plan_adds() if LSUM == 3 else {}
def add_items(g, gp, fin, pro):
    out = []
    for b, qb, idx, gabs in ADDS.get((g, gp), []):
        if fin and b == 0 and g >= 23: continue
        if pro and b == 1: continue
        out.append(valu("v_add_f32", v_l1[qb], v_l1[qb], v_S[b][qb * 8 + idx]))
    return out
ftok = {}
def att_group(par, g, do_mfma=True, do_mem=True, do_cvt=True, last=False, pp=None, xmem=(), xsal=(), xvalu=None):
    ex, ad, cv = sm_items(g)
    mem = []
    sal = []
    fin = (pp == 3)
    d = None
    if do_mem:
        if fin: sched = ([g + 3] if g + 3 < 16 else []) + ([g + 11] if 13 <= g <= 20 else [])
        else: sched = read_sched(g)
        for f in sched:
            r = frag_reads(par, f); mem += r; ftok[f % 32] = r
        if pp is None or (g <= 4 and pp <= 2) or (g >= 29 and pp <= 1):
            sal, d = att_dma(par, g)
            if d is not None: mem.append(d)
    loop = do_mem and pp is None
    post0 = []
    if loop and par == 0:
        if g == 14: mem.append(I("global_load_dword %s, %s, %s" % (v_c, v_tch, s_pfc), "vmem", rd=v_tch.regs() + s_pfc.regs(), wr=[]))
        if g == 13: mem.append(I("buffer_load_ubyte %s, %s, %s, %s offen sc1" % (v_flag, v_fa, S_DBG, s_t2), "vmem", rd=S_DBG.regs() + s_t2.regs() + v_fa.regs(), wr=[]))
        if g == 8: sal = sal + [scmp("s_cmp_le_u32", s_cnt, ROT)]
        if g in (9, 10, 11, 12):
            q_ = [s_pfc] + s_pf
            sal = sal + [salu("s_cselect_b64", q_[g - 9], q_[g - 8], q_[g - 9], scc_w=False, scc_r=True)]
        if g == 0: post0 = [valu("v_cmp_eq_u32", "vcc", 1, v_flag)]
        if g == 2: sal = sal + [raw("s_cmp_eq_u32 vcc_lo, -1", "salu", rd=["vcc"], wr=["scc"])]
        if g == 3: sal = sal + [salu("s_cselect_b32", s_t0, s_cnt, -1, scc_w=False, scc_r=True)]
        if g == 4: sal = sal + [scmp("s_cmp_eq_u32", s_t0, ROT - 1)]
        if g == 5: sal = sal + [salu("s_cselect_b64", s_pf[3], s_pfH, s_pf[3], scc_w=False, scc_r=True)]
        if g == 15: sal = sal + [salu("s_cselect_b64", s_pf[3], S_K[(0, 2)], s_pf[3], scc_w=False, scc_r=True)]
        if g == 20: sal = sal + [scmp("s_cmp_eq_u32", s_cnt, KVIT + 1)]
        if g == 21: sal = sal + [salu("s_cselect_b64", s_pfc, s_kvt, S_K[(0, 2)], scc_w=False, scc_r=True)]
        if g == 13: sal = sal + [salu("s_cselect_b32", s_t2, s_fo, 256, scc_w=False, scc_r=True)]
        if g == 18: sal = sal + [scmp("s_cmp_eq_u32", s_cnt, s_sig)]
        if g == 19: sal = sal + [raw("s_cbranch_scc1 L_sigH_side", rd=["scc"]), Lbl("L_sigH_ret")]
    if loop and POI and par == 0 and do_mfma:
        if g == 22: sal = sal + [salu("s_add_u32", s_po1, s_po0, 65536)]
        if g == 16: mem.append(bstore(a_poi, v_lin, S_SP, s_po0, mod="sc1"))
        if g == 27: mem.append(bstore(a_poi, v_lin, S_SP, s_po1, mod="sc1"))
        if g == 23: sal = sal + [salu("s_add_u32", s_po0, s_po0, 1024)]
        if g == 24: sal = sal + [salu("s_min_u32", s_po0, s_po0, s_poe)]
    if do_mem and g == 4 and d is not None: lastdma[0] = d
    mem += list(xmem); sal = sal + list(xsal)
    gaps = [[], [], [], []]
    if g == 29 and do_mem and not fin:
        if STAMP == 2 and loop and do_mfma: gaps[0] += [LoopStamp(0, par)]
        gaps[0] += [Wait(lg0=True) if not do_mfma else (Wait(lg0=True, vm0=True) if (pp is None and par == 1) else Wait(lg0=True, vm=lastdma[0]))]
        if STAMP == 2 and loop and do_mfma: gaps[0] += [LoopStamp(1, par)]
        gaps[0] += [raw("s_barrier")]
        if STAMP == 2 and loop and do_mfma: gaps[0] += [LoopStamp(2, par)]
    gaps[0] += sal
    if g == 6 and do_mem and (pp is None or pp <= 1): gaps[0].append(salu("s_add_u32", s_kK, s_kK, 16384))
    if g == 7 and do_mem and (pp is None or pp <= 1): gaps[0].append(salu("s_add_u32", s_kV, s_kV, 16384))
    sm = not (fin and g >= 23)
    if fin and g > 23: do_cvt = False
    if fin and 16 <= g < 24: do_mfma = False
    if LSUM:
        if sm: gaps[0].append(ex[0])
        gaps[1] += mem[0:2] if len(mem) > 2 else mem[0:1]
        gaps[1] += post0
        nf = (g + 1) % 32
        if do_mem and not (fin and (16 <= nf < 24 or nf == 0)): gaps[2].append(Wait(lg=ftok.get(nf)))
        if last and g == 30: gaps[2].append(salu("s_sub_u32", s_cnt, s_cnt, 1))
        if sm: gaps[2].append(ex[1])
        gaps[3] += mem[2:] if len(mem) > 2 else mem[1:]
        pro = not do_mfma and not fin
        gaps[1] += add_items(g, 1, fin, pro)
        if do_cvt: gaps[1 if len([x for x in gaps[1] if x not in ()]) - len(add_items(g, 1, fin, pro)) < 2 else 3].append(cv)
        gaps[3] += add_items(g, 3, fin, pro)
    else:
      gaps[0] += mem[2:3]
      if sm: gaps[0].append(ex[0])
      if len(mem) > 0: gaps[1].append(mem[0])
      if len(mem) == 0 and do_cvt: gaps[1].append(cv)
      if sm: gaps[1].append(ad[0])
      gaps[1] += post0
      nf = (g + 1) % 32
      if do_mem and not (fin and (16 <= nf < 24 or nf == 0)): gaps[2].append(Wait(lg=ftok.get(nf)))
      if last and g == 30: gaps[2].append(salu("s_sub_u32", s_cnt, s_cnt, 1))
      gaps[2] += mem[3:]
      if sm: gaps[2].append(ex[1])
      if len(mem) > 1: gaps[3].append(mem[1])
      if len(mem) > 0 and do_cvt: gaps[3].append(cv)
      if sm: gaps[3].append(ad[1])
    for qb in range(4):
        if do_mfma:
            if g < 8 or 16 <= g < 24:
                b = 1 if g < 8 else 0
                kb, ds = (g >> 2) & 1, g & 3
                d = v_S[b][(qb * 8 + kb * 4, 4)]
                e(mfma(d, fr(g), Qf(qb, ds), v_negm[(qb * 4, 4)] if ds == 0 else d))
            else:
                b = 0 if g < 16 else 1
                e(mfma(Of(g & 7, qb), fr(g), v_S[b][(qb * 8, 4)], Of(g & 7, qb)))
        else:
            if (qb & 1) and not gaps[qb][:1] or ((qb & 1) and getattr(gaps[qb][0], "kind", "") in ("valu",)): e(nop(0))
        for it in gaps[qb]: e(it)
        if xvalu is not None:
            c = 2 - sum(1 for it in gaps[qb] if getattr(it, "kind", "") in ("lds", "vmem", "dma", "valu"))
            while xvalu and c > 0:
                it = xvalu.pop(0); e(it); c -= 2 if it.kind == "trans" else 1
    if LSUM and do_mfma and (g & 8):
        k = g & 7
        lq = (k if k < 4 else None) if (fin and g >= 24) else (k >> 1 if k & 1 else None)
        if lq is not None and (LSUM != 3 or lq < LQ): e(mfma(a_L[(4 * lq, 4)], a_ones, v_S[0 if g < 16 else 1][(lq * 8, 4)], a_L[(4 * lq, 4)]))
    if LSUM == 3: e(add_items(g, 4, fin, not do_mfma and not fin))

pr = [dsread("ds_read_b128", fr(f), v_ka[f & 3], (f >> 2) * 4096) for f in range(8)]
for r in pr: e(r)
zr = [valu("v_mov_b32", v_acc[i], 0) for i in range(2 * NZ0, 128)]
for f in range(8):
    em.wait(lg=pr[f])
    for qb in range(4):
        d = v_S[0][(qb * 8 + (f >> 2) * 4, 4)]
        e(mfma(d, fr(f), Qf(qb, f & 3), 0 if (f & 3) == 0 else d))
        if qb == 0 and HST == 0: e(hst[f])
        if qb == 2 and f == 0:
            e(raw("s_mov_b64 exec, 3", "salu", wr=["exec"])); e(bstore(v_acc[0], V(3), S_FLZ, s_myfl, mod="sc1")); e(raw("s_mov_b64 exec, -1", "salu", wr=["exec"]))
        for _ in range(2):
            if zr: e(zr.pop(0))
assert not zr
e(salu("s_mov_b32", s_kK, 16384 + 8192, scc_w=False)); e(salu("s_mov_b32", s_kV, 16384, scc_w=False)); e(salu("s_mov_b32", s_cnt, NITER, scc_w=False))
e(scmp("s_cmp_lg_u32", s_retry, 0)); e(raw("s_cbranch_scc1 L_have_max2", rd=["scc"]))
e(nop(3))
mx = [V(97 + 4 * i) for i in range(4)]; mt = [V(98 + 4 * i) for i in range(4)]
for qb in range(4): e(valu("v_max3_f32", mx[qb], v_S[0][qb * 8], v_S[0][qb * 8 + 1], v_S[0][qb * 8 + 2]))
for qb in range(4): e(valu("v_max3_f32", mx[qb], mx[qb], v_S[0][qb * 8 + 3], v_S[0][qb * 8 + 4]))
for qb in range(4): e(valu("v_max3_f32", mx[qb], mx[qb], v_S[0][qb * 8 + 5], v_S[0][qb * 8 + 6]))
for qb in range(4): e(valu("v_max_f32", mx[qb], mx[qb], v_S[0][qb * 8 + 7]))
red4("v_max_f32", mx, mt)
for qb in range(4):
    for k in range(4): e(valu("v_sub_f32", v_negm[qb * 4 + k], 0, mx[qb]))
em.label("L_have_max2")
e(nop(3))
for qb in range(4):
    for k in range(8): e(valu("v_add_f32", v_S[0][qb * 8 + k], v_S[0][qb * 8 + k], v_negm[qb * 4]))
for g in range(23, 29): att_group(1, g, do_mfma=False, do_mem=False, do_cvt=(g != 23))
stamp(); diag()
e(salu("s_and_b32", s_t0, s_qb, 3)); e(salu("s_sub_u32", s_t0, NITER - 1, s_t0))
e(scmp("s_cmp_eq_u32", s_w, 0)); e(salu("s_cselect_b32", s_sig, s_t0, -1, scc_w=False, scc_r=True))
e(scmp("s_cmp_eq_u32", s_retry, 0)); e(salu("s_cselect_b32", s_sig, s_sig, -1, scc_w=False, scc_r=True))
e(salu("s_mov_b64", s_pfc, S_K[(0, 2)], scc_w=False))
if POI:
    e(salu("s_lshl_b32", s_po0, s_w, 4)); e(salu("s_add_u32", s_po0, s_po0, s_g)); e(salu("s_lshl_b32", s_po0, s_po0, 13))
    e(salu("s_add_u32", s_poe, s_po0, 7168))
e(scmp("s_cmp_lt_u32", s_w, 2)); e(salu("s_cselect_b64", s_kvt, S_K[(0, 2)], S_V[(0, 2)], scc_w=False, scc_r=True))
e(salu("s_and_b32", s_t0, s_w, 1)); e(sx(s_t1)); e(salu("s_lshl_b32", s_t1, s_t1, 1)); e(salu("s_add_u32", s_t0, s_t0, s_t1)); e(salu("s_lshl_b32", s_t0, s_t0, 13))
if MAP2: e(salu("s_add_u32", s_t0, s_t0, 262144))
e(salu("s_add_u32", s_kvt[0], s_kvt[0], s_t0)); e(salu("s_addc_u32", s_kvt[1], s_kvt[1], 0, scc_r=True))
for g in range(29, 32): att_group(1, g, do_mfma=False, do_mem=True)
pro_end = len(em.out)
em.directive(".p2align 6")
em.label("L_att_loop")
def body():
    for par in range(2):
        for g in range(32): att_group(par, g, last=(par == 1))
b0 = len(em.out)
body()
b1 = len(em.out)
e(scmp("s_cmp_lg_u32", s_cnt, 0)); e(raw("s_cbranch_scc1 L_att_loop", rd=["scc"]))
b2 = len(em.out)
body()
second = em.out[b2:]; del em.out[b2:]
assert [i.text for i in second] == [i.text for i in em.out[b0:b1]], "loop not in steady state"
loop_probs = check_hazards(em.out[b1 - 40:b2] + second[:60], "loop-wrap")

em.label("L_tail")
v_ring2 = V(64, 32); v_B2 = V(96, 32)
QH = int(os.environ.get('QH', '0'))
XY = int(os.environ.get('XY', '0'))
NF1 = int(os.environ.get('NF1', '8'))
def hreg(kk, qb):
    if QH and 8 <= kk < 12: return A(16 * (kk - 8) + qb * 4, 4)
    if QH and kk >= 12: kk -= 4
    if kk >= 8: kk -= 8
    return A((64 + 16 * kk if kk < 4 else 160 + 16 * (kk - 4)) + qb * 4, 4)
def Facc(u, qb):
    t = u * 4 + qb
    return A(128 + 4 * t if t < 8 else 224 + 4 * (t - 8), 4)
POS2 = [5, 0, 2, 3, 4, 1]
NB = int(os.environ.get("NB", "4"))
def pos2(m): return 6 + m if m < NB else POS2[(m - NB) % 6]
def kind2(m):
    if m < NF1: return ("F", m)
    if m < NF1 + 32: return ("O", (m - NF1) & 15, (m - NF1) >> 4) if XY else ("O", (m - NF1) >> 1, (m - NF1) & 1)
    return ("F", m - 32)
def s2_dma(m):
    if m >= 46: return None
    p = pos2(m); k = kind2(m)
    if k[0] == "O":
        return [m0set(p), salu("s_mov_b32", s_off, k[1] * 32 * 1024 + 128 * k[2], scc_w=False)], [dma(v_dA[j], S_WO, s_off, j * 1024) for j in range(4)]
    return [m0set(p), salu("s_mov_b32", s_off, k[1] * 32 * 1024, scc_w=False)], [dma(v_dB[j], S_WD, s_off, j * 1024) for j in range(4)]
dtok2 = {}; s2pre = {}
for m in range(6 + NB):
    s2pre[m] = s2_dma(m); dtok2[m] = s2pre[m][1][3]
class Seq:
    kind = "vmem"
    def __init__(self, l): self.l = l
    def __call__(self): return self.l
hld = {}; htok = {}
for kk in range(14):
    hld[kk] = [bload(hreg(kk, qb), v_lin, S_HC, s_hl, off=qb * 1024, mod="sc1") for qb in range(4)]
    htok[kk] = hld[kk][3]
e(salu("s_mov_b32", s_cnt, 0, scc_w=False))
em.label("L_pollH")
e(valu("v_cmp_ne_u32", "vcc", 1, v_flag)); e(salu("s_mul_i32", s_hb, s_w, 14 * 4096, scc_w=False)); e(nop(1))
e(raw("s_cbranch_vccz L_pollH_done", rd=["vcc"]))
e(salu("s_add_u32", s_cnt, s_cnt, 1)); e(scmp("s_cmp_ge_u32", s_cnt, 50000)); e(raw("s_cbranch_scc1 L_pollH_done", rd=["scc"]))
e(raw("s_sleep 4")); e(raw("buffer_load_ubyte %s, %s, %s, %s offen sc1" % (v_flag, v_fa, S_DBG, s_fo))); e(raw("s_waitcnt vmcnt(0)")); e(raw("s_branch L_pollH"))
em.label("L_pollH_done")
xaddr(V(39), V(0))
assert LSUM == 1
xsl = [bload(V(40 + 2 * u, 2), V(39), S_XC, 0, off=32 * u, n=2) for u in range(4)]
NH0 = 32
hsl = sorted([(pp, g) for pp in range(3) for g in (5, 13, 14, 15, 16, 17, 18, 27, 28, 9, 11)])[:NH0]
if QH:
    hsl += [(3, g) for g in list(range(8, 16)) + list(range(24, 32))]; NH0 = 48
px = {}
for k, key in enumerate(hsl):
    px.setdefault(key, ([], []))
    px[key][0].append(hld[k >> 2][k & 3])
    if k & 3 == 0: px[key][1].append(salu("s_add_u32", s_hl, s_hb, (k >> 2) * 4096))
for u in range(4): px.setdefault((int(os.environ.get('XSP', '3')), int(os.environ.get('XSG0', '13')) + u), ([], []))[0].append(xsl[u])
wsl = [(pp, g) for pp in range(2) for g in (6, 7, 8, 10, 12, 21, 22, 23)][:4 * NB] + [(2, 29), (2, 30), (2, 31), (3, 0), (3, 1), (3, 2), (3, 3), (3, 4)] + ([(2, g) for g in (6, 7, 8, 10, 12, 21, 22, 23)] if QH else [(3, g) for g in range(5, 13)]) + [(3, g) for g in range(24, 32)]
for k, key in enumerate(wsl):
    px.setdefault(key, ([], []))
    m, j = k >> 2, k & 3
    px[key][0].append(s2pre[m][1][j])
    if j == 0: px[key][1].extend(s2pre[m][0])
px[(3, 24)][1][:0] = [Wait(lg0=True), raw("s_barrier")]
lt = [V(48 + i) for i in range(4)]
NPK = int(os.environ.get("NPK", "0"))
rinv = [V(52 + i) for i in range(4)]
vxf = V(40, 8)
save = em.out; em.out = []
for qb in range(4): e(valu("v_accvgpr_read_b32", lt[qb], a_L[4 * qb]))
e(valu("v_add_f32", V(60), lt[0], lt[1])); e(valu("v_add_f32", V(61), lt[2], lt[3])); e(valu("v_add_f32", V(60), V(60), V(61)))
for qb in range(4): e(valu("v_rcp_f32", rinv[qb], lt[qb]))
e(valu("v_cmp_nge_f32", "vcc", hx(f2u(2.0 ** 30)), V(60)))
v_tr2 = V(56, 4); v_ow = V(62)
for u in range(4): e(valu("v_subrev_u32", v_tr2[u], RING, v_tr[0][u]))
e(valu("v_subrev_u32", v_ow, RING, v_lin)); e(valu("v_add_u32", v_ow, s_m0b, v_ow))
lred = em.out; em.out = save
for pp in range(4):
    for g in range(32):
        if STAMP == 4 and g in (0, 16): stamp()
        xm, xs = px.get((pp, g), ([], []))
        att_group(pp & 1, g, pp=pp, xmem=xm, xsal=xs, xvalu=(lred if (pp == 3 and g >= (30 if LSUM else 24)) else None))
for it in lred: e(it)
diag(); stamp()
if DUMP == "o":
    e(nop(7))
    for db in range(8):
        for qb in range(4):
            for k in range(4): e(valu("v_mul_f32", Of(db, qb)[k], Of(db, qb)[k], rinv[qb]))
    dump_regs([v_acc[i] for i in range(128)])

vm_ = V(60); vma = V(61)
class Mark:
    kind = "salu"
    def __init__(self, t): self.t = t
    def __call__(self):
        e(raw("s_cbranch_vccz L_nomark", rd=["vcc"])); e(valu("v_mov_b32", self.t, hx(MARK))); em.label("L_nomark"); return []
norm = [valu("v_and_b32", vma, 3, v_lane), valu("v_lshlrev_b32", vma, 12, vma)]
ow = []; ncv = []
NPK_N = int(os.environ.get("NPK_N", "16")) if NPK else 0
for i in range(4):
    for qb in range(4):
        t = Of(2 * i, qb)
        for b in range(2):
            if i * 4 + qb < NPK_N:
                rp = V(52 + (qb & ~1), 2)
                for k in range(2): norm.append(valu("v_pk_mul_f32", Of(2 * i + b, qb)[(2 * k, 2)], Of(2 * i + b, qb)[(2 * k, 2)], rp, mod="op_sel:[0,%d] op_sel_hi:[1,%d]" % (qb & 1, qb & 1)))
            else:
                for k in range(4): norm.append(valu("v_mul_f32", Of(2 * i + b, qb)[k], Of(2 * i + b, qb)[k], rinv[qb]))
        for b in range(2):
            o = Of(2 * i + b, qb)
            for k in range(2): norm.append(valu("v_cvt_pk_bf16_f32", t[2 * b + k], o[2 * k], o[2 * k + 1]))
        ncv.append(norm[-1])
        if i == 0 and qb == 0: norm.append(Mark(t[0]))
        ow.append(dswrite("ds_write_b128", v_ow, t, i * 16384 + qb * 1024))
        if NB == 0: norm.append(ow[-1])
if NPK_N:
    cut = norm.index(ncv[NPK_N - 1]) + 1
    e(nop(4))
    for it in norm[:cut]: e(it)
    norm = norm[cut:]
class ChkNorm:
    def __init__(self, k): self.k = k
    def __call__(self):
        assert ncv[self.k].tok, "O write %d scheduled before its data" % self.k
        return ow[self.k]
G0 = 4 * NF1
G1 = G0 + 128
mk = dsread("ds_read_b32", vm_, vma, 0)
class OBar:
    def __call__(self):
        assert all(w.tok for w in ow)
        em.wait(lg0=True); e(raw("s_barrier")); stamp(); e(mk); return []
class FbCheck:
    def __call__(self):
        em.wait(lg=mk)
        e(valu("v_cmp_eq_u32", "vcc", hx(MARK), vm_))
        e(scmp("s_cmp_lg_u32", s_retry, 0)); e(raw("s_cbranch_scc1 L_nofb", rd=["scc"]))
        e(nop(1))
        e(raw("s_cbranch_vccnz L_fallback", rd=["vcc"]))
        em.label("L_nofb")
        return []
def s2_acc(m, u, qb):
    k = kind2(m)
    if k[0] == "O": return v_acc[(((k[2] * 4 + u) * 4 + qb) * 4, 4)], k[1] == 0
    return Facc(u, qb), k[1] == 0
def s2_B(m, qb):
    k = kind2(m)
    if k[0] == "O": return v_B2[((k[1] & 1) * 16 + qb * 4, 4)]
    return hreg(k[1], qb)
def oread(s, qb): return dsread("ds_read_b128", v_B2[((s & 1) * 16 + qb * 4, 4)], v_lin, (s & 3) * 16384 + (s >> 2) * 4096 + qb * 1024)
extra = {}
if NB:
    OW0 = int(os.environ.get("OW0", "11")); OWN = int(os.environ.get("OWN", "1"))
    for k in range(16):
        gg = OW0 + k // OWN
        assert (k >> 2) >= NB or gg > 4 * (k >> 2) + 3
        extra.setdefault(gg, []).append((2 + (k % OWN) % 2, ChkNorm(k), 1))
GB = G0 - int(os.environ.get("OBAR", "3"))
extra.setdefault(GB, []).append((0, OBar(), 0))
r0 = [oread(0, qb) for qb in range(4)]
for qb in range(4): extra.setdefault(GB + (qb >> 1), []).append((1 + (qb & 1) if qb < 2 else (qb & 1) * 2, r0[qb], 1))
extra.setdefault(G0 - 1, []).append((2, [Wait(lg=r0), FbCheck()], 0))
if XY:
    for mm in range(1, 32):
        rr = [oread(mm & 15, qb) for qb in range(4)]
        for qb in range(4): extra.setdefault(G0 + 4 * (mm - 1) + (qb >> 1), []).append((2 + (qb & 1), rr[qb], 1))
        extra.setdefault(G0 + 4 * mm - 1, []).append((2, Wait(lg=rr), 0))
else:
    for s_ in range(1, 16):
        for qb in range(4): extra.setdefault(G0 + 8 * (s_ - 1) + 1 + qb, []).append((2, oread(s_, qb), 1))
class LateWait:
    def __init__(self, f): self.f = f
    def __call__(self): return Wait(vm=self.f())
vxa = V(48); vpoll = V(49); vfw = V(50)
vx, vy, vz = V(63), V(57), V(58)
save = em.out; em.out = []
xaddr(vxa, vx)
e(valu("v_and_b32", V(51), 7, v_lane)); e(valu("v_lshlrev_b32", V(51), 2, V(51)))
e(valu("v_add_u32", vfw, s_m0b, v_lin)); e(salu("s_lshl_b32", s_t0, s_w, 14)); e(salu("s_add_u32", s_t0, s_t0, RING)); e(valu("v_add_u32", V(55), s_t0, v_lin))
e(salu("s_lshl_b32", s_t3, s_w, 4)); e(salu("s_add_u32", s_t3, s_t3, s_g)); e(salu("s_lshl_b32", s_t3, s_t3, 13))
early = em.out; em.out = save
extra.setdefault(-1, []).append((0, LateWait(lambda: htok[0]), 0))
for kk in range(1, 14):
    g_ = 4 * kk if kk < NF1 else 4 * (kk + 32)
    extra.setdefault(g_ - 1, []).append((2, LateWait(lambda kk=kk: htok[kk]), 0))
HG0 = int(os.environ.get("HG0", "5")); HGS = int(os.environ.get("HGS", "1"))
for k in range(NH0, 56):
    prev = (k >> 2) - (12 if QH else 8)
    gfree = (4 * prev if prev < NF1 else 4 * (prev + 32)) + 5 + (k & 3)
    extra.setdefault(max(gfree, HG0 + HGS * (k - NH0)), []).append((2, Seq([salu("s_add_u32", s_hl, s_hb, (k >> 2) * 4096), hld[k >> 2][k & 3]]), 1))
def sreg(ip, qb, odd=0): return v_acc[(((2 * ip + odd) * 4 + qb) * 4, 4)]
SPV_ = int(os.environ.get('SPV', '1'))
sp = []; spst = []; stq = []
s_oob = S(19)
if os.environ.get("NOST") or os.environ.get("NOLD"): e(salu("s_mov_b32", s_oob, 524288, scc_w=False))
NSI = int(os.environ.get("NSI", "11"))
s_so = [s_t1, s_cnt, s_h0, s_h1]
for k in range(4): sp.append(salu("s_add_u32", s_so[k], s_t3, (k >> 1) * 65536 + (k & 1) * 4096))
for ip in range(4):
    for qb in range(4):
        t = sreg(ip, qb)
        for b in range(2):
            o = sreg(ip, qb, b)
            for k in range(2): sp.append(valu("v_cvt_pk_bf16_f32", t[2 * b + k], o[2 * k], o[2 * k + 1]))
        st = bstore(t, v_lin, S_SP, s_so[(ip >> 1) * 2 + (qb >> 1)], off=(qb & 1) * 2048 + (ip & 1) * 1024, mod="sc1")
        if os.environ.get("NOST") and not (ip == 3 and qb == 3): st = bstore(t, v_lin, S_SP, s_oob, off=0)
        spst.append((st, sp[-1]))
class St:
    def __init__(self, k): self.k = k
    def __call__(self):
        assert spst[self.k][1].tok
        return spst[self.k][0]
STG = int(os.environ.get("STG", "2"))
if XY:
    GY = G0 + 64
    XS0 = int(os.environ.get("XS0", "4")); XSG = int(os.environ.get("XSG", "5")); XFL = int(os.environ.get("XFL", "60"))
    for k in range(8): extra.setdefault(GY + XS0 + XSG * k, []).append((1, St(k), 1))
    class XFlag:
        def __call__(self): em.wait(vm=spst[7][0]); return flag_store(0)
    extra.setdefault(GY + XFL, []).append((1, XFlag(), 1))
    NSI = int(os.environ.get("NSI", "16"))
    for k in range(8, NSI): extra.setdefault(G1 + 3 + STG * (k - 8), []).append((2, St(k), 1))
    hx_ = sp.index(spst[7][1]) + 1
    spf = [Fill(sp[:hx_], GY + 2, GY + 14), Fill(sp[hx_:], G1 + 2, G1 + 10)]
else:
    for k in range(NSI): extra.setdefault(G1 + 3 + STG * k, []).append((2, St(k), 1))
    spf = [Fill(sp, G1 + 2, G1 + int(os.environ.get("CVL", "16")))]
if POI:
    assert not XY and SPV_
    hint = [valu("v_mov_b32", V(57), 2), valu("v_lshlrev_b32", V(58), 7, v_lane), raw("s_mov_b64 exec, 3", "salu", wr=["exec"]),
            bstore(V(57), V(58), S_FL, s_myfl, mod="sc1"), raw("s_mov_b64 exec, -1", "salu", wr=["exec"])]
    extra.setdefault(G1 + int(os.environ.get("HINT", "4")), []).append((1, hint, 1))
FLG = int(os.environ.get("FLG", "0"))
if FLG:
    assert NSI == 16
    class YFlag:
        def __call__(self):
            em.wait(vm=spst[-1][0]); stamp()
            e(([] if XY else flag_store(0)) + flag_store(1))
            if MIDPOST == 5: static_loads()
            return []
    extra.setdefault(G1 + FLG, []).append((1, YFlag(), 1))
sti = [NSI]
def st_next(n=1):
    for _ in range(n):
        if sti[0] < 16: e(spst[sti[0]][0]); sti[0] += 1
def flag_store(h):
    return [valu("v_mov_b32", v_t, 1), raw("s_mov_b64 exec, 1", "salu", wr=["exec"]), bstore(v_t, None, S_FL, s_myfl, off=128 * h, mod="sc1"), raw("s_mov_b64 exec, -1", "salu", wr=["exec"])]
vpa = V(51)
s_done, s_new, s_sb = s_kK, s_kV, s_fo
SPV = int(os.environ.get("SPV", "1"))
def spl(gp, i): return sreg(gp >> 1, (gp & 1) * 2 + i, 0) if SPV else A((gp * 2 + i) * 4, 4)
def flag_load(): return bload(vpoll, vpa, S_FL, s_t2, n=1, mod="sc1")
lblc = [0]
def issue_new():
    k = lblc[0]; lblc[0] += 1
    e(valu("v_cmp_eq_u32", "vcc", 1, vpoll)); e(nop(1))
    e(raw("s_andn2_b32 %s, vcc_lo, %s" % (s_new, s_done), "salu", rd=["vcc", s_done], wr=[s_new, "scc"])); e(salu("s_and_b32", s_new, s_new, 255))
    e(raw("s_cbranch_scc0 L_in%d_end" % k, rd=["scc"]))
    e(salu("s_or_b32", s_done, s_done, s_new))
    for gp in range(8):
        e(scmp("s_bitcmp1_b32", s_new, gp)); e(raw("s_cbranch_scc0 L_in%d_%d" % (k, gp), rd=["scc"]))
        e(salu("s_add_u32", s_t0, s_sb, gp * 8192) if not os.environ.get("NOLD") else salu("s_mov_b32", s_t0, s_oob, scc_w=False))
        for i in range(2): e(raw(bload(spl(gp, i), v_lin, S_SPC, s_t0, off=i * 1024, mod="sc1").text))
        em.label("L_in%d_%d" % (k, gp))
    em.label("L_in%d_end" % k)
def static_loads():
    e(valu("v_cmp_eq_u32", "vcc", 1, vpoll)); e(nop(1))
    e(raw("s_and_b32 %s, vcc_lo, 255" % s_done, "salu", rd=["vcc"], wr=[s_done, "scc"]))
    for gp in range(8):
        e(salu("s_add_u32", s_t0, s_sb, gp * 8192)); e(scmp("s_bitcmp1_b32", s_done, gp)); e(salu("s_cselect_b32", s_t0, s_t0 if not os.environ.get("NOLD") else s_oob, 524288, scc_w=False, scc_r=True))
        for i in range(2): e(bload(spl(gp, i), v_lin, S_SPC, s_t0, off=i * 1024, mod="sc1"))
pinit = [salu("s_lshl_b32", s_t2, s_cq, 3), salu("s_add_u32", s_t2, s_t2, s_cg), salu("s_lshl_b32", s_t2, s_t2, 7), salu("s_mov_b32", s_done, 0, scc_w=False),
         salu("s_lshl_b32", s_sb, s_cg, 16), salu("s_lshl_b32", s_new, s_w, 11), salu("s_add_u32", s_sb, s_sb, s_new)]
extra.setdefault(G1 - 8, []).append((1, pinit, 0))
class MidPoll:
    def __init__(self, tok): self.tok = tok
    def __call__(self):
        em.wait(vm=self.tok); issue_new()
        e(salu("s_mov_b32", s_hb, s_done, scc_w=False))
        midmark.append(em.vm_total)
        return []
midmark = []
if int(os.environ.get("MID", "1")):
    pt = flag_load()
    MIDPOST = int(os.environ.get("MIDPOST", "2"))
    if MIDPOST == 4: extra.setdefault(184 - int(os.environ.get("MID4", "6")), []).append((2, pt, 1))
    else: extra.setdefault(G1 - int(os.environ.get("MID0", "-4")), []).append((2, pt, 1))
    if not MIDPOST: extra.setdefault(G1 + int(os.environ.get("MID1", "3")), []).append((0, MidPoll(pt), 0))
    elif MIDPOST != 4 and int(os.environ.get("MID0", "-4")) > 0: extra.setdefault(G1 + 2, []).append((0, Wait(vm=pt), 0))
    if MIDPOST == 3:
        extra[G1 + 2].pop(); extra[G1 - int(os.environ.get("MID0", "-4"))].pop()
if STAMP: extra.setdefault(G1, []).append((0, Stamp(), 0))
if STAMP == 5:
    for g_ in (0, 8, 16, 24): extra.setdefault(g_, []).append((0, Stamp(), 0))
class Diag:
    def __call__(self): diag(); return []
if DIAG: extra.setdefault(G1, []).append((0, Diag(), 0))
vs = [Fill(norm, 0, GB - (3 if NB else 1)), Fill(early, G0 + 2, G0 + 40)] + spf
run_stream(46, s2_dma, dtok2, s2_acc, s2_B, extra, vs, posf=pos2, ring=v_ring2, first_dma=6 + NB, tr2=v_tr2, early_dma=int(os.environ.get('ED2', '0')), w2=lambda g: int(os.environ.get('W2B', '1')) and g < 28)
stamp(); diag()
if MIDPOST == 4:
    em.wait(vm=pt); static_loads()
if MIDPOST == 3:
    st_next(16); fl3 = e(flag_load())
e(nop(5))
for qb in range(4):
    for u in range(4):
        if len(em.lgq) >= 12: em.wait(lg=em.lgq[-12])
        e(dswrite("ds_write_b128", vfw, Facc(u, qb), qb * 16384 + u * 1024))
    if qb & 1: st_next(int(os.environ.get("STW", "1")))
if MIDPOST == 6:
    st_next(16); em.wait(vm=spst[-1][0]); stamp(); e(flag_store(0) + flag_store(1)); static_loads()
v_fr = V(96, 16); vE = V(64, 16); vs_ = V(80, 16)
for k in range(8): e(valu("v_mov_b64", vs_[(2 * k, 2)], 0))
if MIDPOST == 3:
    em.wait(vm=fl3); stamp()
    if not XY: e(flag_store(0))
    e(flag_store(1))
    static_loads()
em.wait(lg0=True)
e(raw("s_barrier"))
def frr(ws_, u): return sreg(ws_, u, 1)
for ws_ in range(4):
    for u in range(4):
        if len(em.lgq) >= 14: em.wait(lg=em.lgq[-14])
        e(dsread("ds_read_b128", frr(ws_, u), V(55), ws_ * 4096 + u * 1024))
st_next()
if MIDPOST:
    st_next(16)
    if MIDPOST == 1: static_loads()
em.wait(lg0=True)
for u in range(4):
    for k in range(2):
        e(valu("v_pk_add_f32", frr(0, u)[(2 * k, 2)], frr(0, u)[(2 * k, 2)], frr(1, u)[(2 * k, 2)]))
        e(valu("v_pk_add_f32", frr(2, u)[(2 * k, 2)], frr(2, u)[(2 * k, 2)], frr(3, u)[(2 * k, 2)]))
for u in range(4):
    for k in range(2): e(valu("v_pk_add_f32", v_fr[(4 * u + 2 * k, 2)], frr(0, u)[(2 * k, 2)], frr(2, u)[(2 * k, 2)]))
for k in range(16): e(valu("v_mul_f32", vE[k], hx(f2u(-math.log2(math.e))), v_fr[k]))
st_next()
for k in range(16): e(valu("v_exp_f32", vE[k], vE[k]))
for k in range(16): e(valu("v_add_f32", vE[k], "1.0", vE[k]))
st_next()
for k in range(16): e(valu("v_rcp_f32", vE[k], vE[k]))
for k in range(16): e(valu("v_mul_f32", v_fr[k], v_fr[k], vE[k]))
for k in range(8):
    e(valu("v_lshlrev_b32", vE[2 * k], 16, vxf[k])); e(valu("v_and_b32", vE[2 * k + 1], "0xffff0000", vxf[k]))
st_next()
stamp()
accn = [0]
def acc_pieces(mask, sprinkle=False):
    n = accn[0]; accn[0] += 1
    for gp in range(8):
        e(scmp("s_bitcmp1_b32", mask, gp)); e(raw("s_cbranch_scc0 L_acc%d_%d" % (n, gp), rd=["scc"]))
        if not SPV:
            for k2 in range(8): e(valu("v_accvgpr_read_b32", V(120 + k2), spl(gp, k2 >> 2)[k2 & 3]))
        for k in range(8):
            src = spl(gp, k >> 2)[k & 3] if SPV else V(120 + k)
            e(valu("v_lshlrev_b32", V(112 + 2 * (k & 3)), 16, src)); e(valu("v_and_b32", V(113 + 2 * (k & 3)), "0xffff0000", src))
            e(valu("v_pk_add_f32", vs_[(2 * k, 2)], vs_[(2 * k, 2)], V(112 + 2 * (k & 3), 2)))
        em.label("L_acc%d_%d" % (n, gp))
        if sprinkle and gp & 1: st_next()
if midmark:
    n_y = em.vm_total - midmark[0]
    e(raw("s_waitcnt vmcnt(%d)" % n_y, "wait")); em._retire(em.vmq, n_y)
    acc_pieces(s_hb, sprinkle=True)
st_next(16)
if POI:
    s_want = s_new
    e(salu("s_mov_b32", s_cnt, 0, scc_w=False)); e(salu("s_mov_b32", s_t1, hx(POISON), scc_w=False))
    if MIDPOST == 2: em.wait(vm=pt)
    stamp()
    em.label("L_fin_loop")
    e(valu("v_cmp_eq_u32", "vcc", 2, vpoll)); e(nop(1))
    e(raw("s_andn2_b32 %s, vcc_lo, %s" % (s_want, s_done), "salu", rd=["vcc", s_done], wr=[s_want, "scc"])); e(salu("s_and_b32", s_want, s_want, 255))
    for gp in range(8):
        e(scmp("s_bitcmp1_b32", s_want, gp)); e(raw("s_cbranch_scc0 L_pl_%d" % gp, rd=["scc"]))
        e(salu("s_add_u32", s_t0, s_sb, gp * 8192))
        for i in range(2): e(raw(bload(spl(gp, i), v_lin, S_SPC, s_t0, off=i * 1024, mod="sc1").text))
        em.label("L_pl_%d" % gp)
    e(raw(flag_load().text))
    e(raw("s_waitcnt vmcnt(0)", "wait")); em._retire(em.vmq, 0)
    for gp in range(8):
        e(scmp("s_bitcmp1_b32", s_want, gp)); e(raw("s_cbranch_scc0 L_pa_%d" % gp, rd=["scc"]))
        for k in range(8): e(valu("v_cmpx_ne_u32", "vcc", s_t1, spl(gp, k >> 2)[k & 3], extra_wr=["exec"]))
        e(nop(1))
        e(raw("s_cmp_eq_u64 exec, -1", "salu", rd=["exec"], wr=["scc"])); e(raw("s_mov_b64 exec, -1", "salu", wr=["exec"]))
        e(raw("s_cbranch_scc0 L_pa_%d" % gp, rd=["scc"]))
        e(salu("s_bitset1_b32", s_done, gp, scc_w=False))
        for k in range(8):
            src = spl(gp, k >> 2)[k & 3]
            e(valu("v_lshlrev_b32", V(112 + 2 * (k & 3)), 16, src)); e(valu("v_and_b32", V(113 + 2 * (k & 3)), "0xffff0000", src))
            e(valu("v_pk_add_f32", vs_[(2 * k, 2)], vs_[(2 * k, 2)], V(112 + 2 * (k & 3), 2)))
        em.label("L_pa_%d" % gp)
    e(salu("s_add_u32", s_cnt, s_cnt, 1)); e(scmp("s_cmp_ge_u32", s_cnt, 50000)); e(raw("s_cbranch_scc1 L_fin_done", rd=["scc"]))
    e(scmp("s_cmp_lg_u32", s_done, 255)); e(raw("s_cbranch_scc1 L_fin_loop", rd=["scc"]))
else:
    if MIDPOST != 2: e(flag_load())
    if MIDPOST not in (3, 6) and not FLG:
        em.wait(vm=spst[-1][0]); stamp()
        if not XY: e(flag_store(0))
        e(flag_store(1))
    if MIDPOST == 2:
        static_loads()
        if int(os.environ.get("FSL", "0")): e(raw("s_sleep %d" % int(os.environ.get("FSL"))))
        e(flag_load())
    s_prev = s_hl
    e(salu("s_mov_b32", s_prev, s_done if MIDPOST else 0, scc_w=False)); e(salu("s_mov_b32", s_cnt, 0, scc_w=False))
    em.label("L_fin_loop")
    em.wait(vm0=True)
    issue_new()
    e(raw(flag_load().text))
    acc_pieces(s_prev)
    e(salu("s_mov_b32", s_prev, s_new, scc_w=False))
    e(salu("s_add_u32", s_cnt, s_cnt, 1)); e(scmp("s_cmp_ge_u32", s_cnt, 50000)); e(raw("s_cbranch_scc1 L_fin_done", rd=["scc"]))
    e(scmp("s_cmp_lg_u32", s_prev, 0)); e(raw("s_cbranch_scc1 L_fin_loop", rd=["scc"]))
    if int(os.environ.get("PSL", "0")): e(raw("s_sleep %d" % int(os.environ.get("PSL"))))
    e(scmp("s_cmp_lg_u32", s_done, 255)); e(raw("s_cbranch_scc1 L_fin_loop", rd=["scc"]))
em.label("L_fin_done")
if DUMP == "fin": dump_regs([vs_[i] for i in range(16)] + [v_fr[i] for i in range(16)])
for k in range(8): e(valu("v_pk_fma_f32", vE[(2 * k, 2)], vs_[(2 * k, 2)], v_fr[(2 * k, 2)], vE[(2 * k, 2)]))
for k in range(8): e(valu("v_cvt_pk_bf16_f32", vxf[k], vE[2 * k], vE[2 * k + 1]))
for u in range(4): e(bstore(vxf[(2 * u, 2)], vxa, S_OUT, 0, off=32 * u, mod=os.environ.get("OUTM", "")))
stamp(); diag_out()
em.label("L_end")
e(raw("s_endpgm"))
main_end = len(em.out)

em.lgq, em.vmq, em.pend = [], [], {}
em.label("L_sigH_side")
e(salu("s_lshl_b32", s_t1, s_qb, 3)); e(salu("s_add_u32", s_t1, s_t1, s_g))
e(raw("s_mov_b64 exec, 2", "salu", wr=["exec"]))
e(raw("buffer_store_byte %s, off, %s, %s sc1" % (v_fa, S_DBG, s_t1)))
e(raw("s_mov_b64 exec, -1", "salu", wr=["exec"]))
e(raw("s_branch L_sigH_ret"))
em.label("L_fallback")
e(raw("s_waitcnt vmcnt(0) lgkmcnt(0)")); em._retire(em.vmq, 0); em._retire(em.lgq, 0)
e(salu("s_mov_b32", s_retry, 1, scc_w=False))
e(salu("s_lshl_b32", s_t0, s_w, 6)); e(valu("v_add_u32", v_tid, s_t0, v_lane))
e(raw("s_barrier"))
e(raw("s_branch L_restart"))
em.label("L_maxpass")
e(raw("s_waitcnt vmcnt(0) lgkmcnt(0)"))
e(salu("s_mov_b32", s_retry, 2, scc_w=False))
e(salu("s_mov_b32", s_kK, 0, scc_w=False))
fm = [V(40 + i) for i in range(4)]
for i in range(4): e(valu("v_mov_b32", fm[i], "0xff800000"))
em.label("L_fb_loop")
e(raw("s_barrier"))
e(salu("s_add_u32", "m0", s_m0b, 4 * 16384)); e(nop(0))
for j in range(4): e(dma(v_kd[j], S_K, s_kK, j * 1024))
em.wait(vm0=True)
e(raw("s_barrier"))
for kb in range(4):
    rr = [e(dsread("ds_read_b128", fr(ds), v_ka[ds], kb * 4096)) for ds in range(4)]
    em.wait(lg0=True)
    for ds in range(4):
        for qb in range(4):
            d = v_S[0][(qb * 4, 4)]
            e(mfma(d, fr(ds), Qf(qb, ds), 0 if ds == 0 else d))
    e(nop(7))
    for qb in range(4):
        e(valu("v_max3_f32", fm[qb], fm[qb], v_S[0][qb * 4], v_S[0][qb * 4 + 1])); e(valu("v_max3_f32", fm[qb], fm[qb], v_S[0][qb * 4 + 2], v_S[0][qb * 4 + 3]))
    e(nop(2))
e(salu("s_add_u32", s_kK, s_kK, 16384)); e(scmp("s_cmp_lt_u32", s_kK, 524288)); e(raw("s_cbranch_scc1 L_fb_loop", rd=["scc"]))
red4("v_max_f32", fm, [V(44 + i) for i in range(4)])
for qb in range(4):
    for k in range(4): e(valu("v_sub_f32", v_negm[qb * 4 + k], 0, fm[qb]))
e(raw("s_barrier"))
for m in (64, 65, 66):
    sa, dm = s1_dma(m); e(sa)
    for d in dm: e(d)
e(raw("s_waitcnt vmcnt(0)"))
e(raw("s_branch L_att_start"))
em.label("L_code_end")
e(raw("s_endpgm"))

ALIGN8 = int(os.environ.get("ALIGN8", "0"))
import re as _re
def isize(i):
    t = i.text
    if i.kind == "label": return 0
    op = t.split()[0]
    if i.kind in ("mfma", "lds", "vmem", "dma") or op.startswith(("buffer_", "global_", "ds_", "s_load", "s_memtime", "s_memrealtime")): return 8
    lit = False
    for tok in _re.split(r"[ ,]+", t)[1:]:
        if _re.fullmatch(r"-?\d+", tok): lit |= not (-16 <= int(tok) <= 64)
        elif tok.startswith("0x"): lit |= not (int(tok, 16) <= 64)
        elif tok.startswith("L_") and not op.startswith(("s_cbranch", "s_branch")): lit = True
    if op.startswith("s_"):
        if op in ("s_waitcnt", "s_nop", "s_barrier", "s_sleep", "s_endpgm") or op.startswith(("s_cbranch", "s_branch")): return 4
        return 8 if lit else 4
    e32 = ("v_exp_f32", "v_rcp_f32", "v_sqrt_f32", "v_mov_b32", "v_mov_b64", "v_add_f32", "v_sub_f32", "v_mul_f32", "v_max_f32", "v_and_b32", "v_xor_b32", "v_lshlrev_b32", "v_lshrrev_b32",
           "v_add_u32", "v_sub_u32", "v_subrev_u32", "v_mul_u32_u24", "v_min_u32", "v_readfirstlane_b32", "v_permlane16_swap_b32", "v_permlane32_swap_b32")
    if op in e32 and "-v" not in t: return 8 if lit else 4
    if op.startswith("v_cmp") and t.split()[1].startswith("vcc"): return 8 if lit else 4
    return 8
WIDE = ("v_exp_f32", "v_rcp_f32", "v_add_f32", "v_mul_f32", "v_mov_b32", "v_sub_f32", "v_and_b32", "v_lshlrev_b32")
if ALIGN8:
    pos = 0; cand = None; nfix = 0; nmiss = 0
    for i in em.out:
        if i.kind == "label":
            if i.text.startswith(".p2align"): pos = 0; cand = None
            continue
        if i.kind == "mfma" and pos % 8:
            if cand is not None: cand.text = cand.text.replace(cand.text.split()[0], cand.text.split()[0] + "_e64", 1); pos += 4; nfix += 1
            else: nmiss += 1
        if i.kind == "mfma": cand = None
        sz = isize(i)
        if sz == 4 and i.text.split()[0] in WIDE: cand = i
        pos += sz
    print("; align8: widened %d, unfixed %d" % (nfix, nmiss), file=sys.stderr)
probs = check_hazards(em.out, "main") + loop_probs
for p in probs: print("; HAZARD", p, file=sys.stderr)
assert not probs

hdr = open(os.path.join(os.path.dirname(os.path.abspath(__file__)), "header.txt")).read()
print(hdr.rstrip())
print("; @launch grid=(256,1,1) block=(256,1,1) lds=163840")
print('.amdgcn_target "amdgcn-amd-amdhsa--gfx950"\n.text\n.globl %s\n.p2align 8\n.type %s,@function\n%s:' % (KN, KN, KN))
print(em.text())
print('.section .rodata,"a"\n.p2align 6\n.amdhsa_kernel %s' % KN)
print("  .amdhsa_next_free_vgpr 512\n  .amdhsa_next_free_sgpr 102\n  .amdhsa_accum_offset 256\n  .amdhsa_group_segment_fixed_size 0\n  .amdhsa_kernarg_size 96\n  .amdhsa_user_sgpr_count 2\n  .amdhsa_user_sgpr_kernarg_segment_ptr 1\n  .amdhsa_system_sgpr_workgroup_id_x 1\n.end_amdhsa_kernel")
```

```python
import sys, os, math, struct
from asmgen import *

KN = "recurrent_scan__gqa_block_cached__geglu_ffn__prompt_kernel"
DUMP = os.environ.get("DUMP", "")
STAMP = int(os.environ.get("STAMP", "0"))
GEL_END = int(os.environ.get("GEL_END", "247")); GEL_EXTRA = int(os.environ.get("GEL_EXTRA", "360"))

def f2u(x): return struct.unpack("<I", struct.pack("<f", x))[0]
def hx(x): return "0x%x" % (x & 0xffffffff)

S_X, S_K, S_V, S_WQ, S_WO, S_WG, S_WU, S_WD, S_OUT, S_DBG, S_H, S_SP = [S(4 + 4 * i, 4) for i in range(12)]
s_g, s_qb, s_w = S(52), S(53), S(54)
s_t0, s_t1, s_t2, s_t3 = S(55), S(56), S(57), S(58)
s_m0b = S(59)
s_off = S(60)
s_cnt = S(61)
s_kK, s_kV = S(62), S(63)
s_retry = S(64)
s_h0, s_h1 = S(65), S(66)
s_hl = S(67); s_hb = S(78); s_myfl = S(79); s_wdd = S(67); s_sig = S(78)
s_ka = S(68, 16); s_kb = S(84, 8)
s_pair = S(92, 2); s_pair2 = S(94, 2)
S_DMP = S(96, 4)
s_cq, s_cg = S(76), S(77)
S_HC = S(80, 4)
S_SPC = S(84, 4)
S_XC = S(88, 4)
s_st = S(68, 4)

v_tid, v_lane, v_lin, v_t = V(0), V(1), V(2), V(3)
v_tr = [V(4, 4), V(8, 4)]
v_dA, v_dB = V(12, 4), V(16, 4)
v_ka = V(20, 4); v_va = V(24, 8); v_kd = V(32, 4); v_vd = V(36, 2)
v_wl = V(38)
v_c = V(39)
v_l0, v_l1 = V(40, 4), V(44, 4)
v_lsave = V(16, 4)
v_negm = V(48, 16)
v_S = [V(64, 32), V(96, 32)]
v_acc = V(128, 128)
a_ring = A(128, 32)
a_B = A(160, 32)
a_Q = A(0, 64)
a_F = A(0, 64)
a_x = A(248, 8)
LSUM = int(os.environ.get('LSUM', '1'))
a_L = A(224, 16); a_ones = A(240, 4)
POI = int(os.environ.get('POI', '0'))
POISON = 0x7f817f81
a_poi = A(244, 4)

RING = 65536
MARK = 0x7fc17fc1
WS_SP = 8 << 20
WS_DUMP = 32 << 20
WS_FL = (7 << 20) + (512 << 10)
S_FLZ = S(4, 4)
S_FL = S(4, 4)

em = Em()
e = em.e

def srd(dst, lo, hi, size, off_s=None):
    if off_s is None:
        e(salu("s_mov_b32", dst[0], lo, scc_w=False)); e(salu("s_mov_b32", dst[1], hi, scc_w=False))
    else:
        e(salu("s_add_u32", dst[0], lo, off_s)); e(salu("s_addc_u32", dst[1], hi, 0, scc_r=True))
    e(salu("s_mov_b32", dst[2], hx(size), scc_w=False)); e(salu("s_mov_b32", dst[3], "0x20000", scc_w=False))

DIAG = int(os.environ.get("DIAG", "0"))
HC_OFF = 128
diag_regs = [S(100, 2), S(70, 2), S(72, 2), S(74, 2), S(96, 2), S(98, 2), S(68, 2)] if DIAG != 2 else [S(100, 2), S(96, 2), S(98, 2), S(94, 2), S(70, 2), S(72, 2), S(74, 2), S(68, 2)]
diag_n = [0]
def diag(which=1, last=False):
    if not DIAG or (which != DIAG and which != 0): return
    k = diag_n[0]; diag_n[0] += 1
    e(raw("%s %s" % ("s_memtime" if (os.environ.get("CYC") and not last) else "s_memrealtime", diag_regs[k]), "other", wr=[diag_regs[k]]))
    if k > 0: e(raw("s_waitcnt lgkmcnt(0)", "wait")); em._retire(em.lgq, 0)
AMP = os.environ.get("AMP")
def diag_out():
    if not DIAG: return
    diag(0, last=True)
    if AMP:
        k = int(AMP); last = diag_regs[diag_n[0] - 1]
        e(salu("s_sub_u32", s_t0, diag_regs[k][0], diag_regs[int(os.environ.get("AMP0", "0"))][0]))
        if os.environ.get("CYC"): e(salu("s_lshr_b32", s_t0, s_t0, 2))
        else: e(salu("s_lshl_b32", s_t0, s_t0, 2))
        em.label("L_amp")
        e(raw("s_memrealtime s[56:57]")); e(raw("s_waitcnt lgkmcnt(0)"))
        e(salu("s_sub_u32", s_t1, s_t1, last[0])); e(scmp("s_cmp_lt_u32", s_t1, s_t0)); e(raw("s_cbranch_scc1 L_amp", rd=["scc"]))
        return
    e(scmp("s_cmp_lg_u32", s_w, 0)); e(raw("s_cbranch_scc1 L_end", rd=["scc"]))
    e(raw("s_mov_b64 exec, 1", "salu", wr=["exec"]))
    e(salu("s_not_b32", s_t0, diag_regs[0][0]))
    for k in range(diag_n[0]):
        e(valu("v_mov_b32", V(4 + k), s_t0 if k == 0 else diag_regs[k][0]))
        e(raw("buffer_atomic_umax %s, off, %s, 0 offset:%d sc1" % (V(4 + k), S_DBG, 4 * k)))
    e(valu("v_mov_b32", V(12), diag_regs[0][0]))
    e(raw("buffer_atomic_umax %s, off, %s, 0 offset:%d sc1" % (V(12), S_DBG, 4 * 9)))
stamp_n = [0]
def stamp():
    if not STAMP: return
    k = stamp_n[0]; stamp_n[0] += 1
    e(raw("s_memtime %s" % S(68, 2), "other", wr=[S(68, 2)]))
    e(raw("s_memrealtime %s" % S(70, 2), "other", wr=[S(70, 2)]))
    e(raw("s_waitcnt lgkmcnt(0)", "wait")); em._retire(em.lgq, 0)
    for i in range(4): e(valu("v_writelane_b32", v_c, S(68 + i), i, rmw=True))
    e(salu("s_lshl_b32", S(72), S(2), 2)); e(salu("s_add_u32", S(72), S(72), s_w)); e(salu("s_lshl_b32", S(72), S(72), 9))
    e(salu("s_mov_b64", S(74, 2), "exec", scc_w=False)); e(raw("s_mov_b64 exec, 15", "salu", wr=["exec"]))
    e(valu("v_lshlrev_b32", v_t, 2, v_lane))
    e(bstore(v_c, v_t, S_DMP, S(72), off=k * 16))
    e(raw("s_mov_b64 exec, %s" % S(74, 2), "salu", wr=["exec"]))
    e(valu("v_lshlrev_b32", v_t, 7, v_lane))

def dump_regs(regs, finish=True):
    em.wait(lg0=True, vm0=True)
    e(nop(7)); e(nop(7))
    n = len(regs)
    e(salu("s_lshl_b32", s_t0, S(2), 2)); e(salu("s_add_u32", s_t0, s_t0, s_w)); e(salu("s_mul_i32", s_t0, s_t0, n * 256, scc_w=False))
    e(valu("v_lshlrev_b32", v_t, 2, v_lane))
    for k, r in enumerate(regs):
        e(bstore(r, v_t, S_DMP, s_t0, off=0))
        e(salu("s_add_u32", s_t0, s_t0, 256))
        if k % 32 == 31: em.wait(vm0=True)
    em.wait(vm0=True)
    if finish: e(raw("s_endpgm"))

def red4(op, x, tmp):
    for sw in ("v_permlane32_swap_b32", "v_permlane16_swap_b32"):
        for a, t in zip(x, tmp): e(valu("v_mov_b32", t, a))
        if len(x) < 3: e(nop(1))
        for a, t in zip(x, tmp): e(valu(sw, a, t))
        for a, t in zip(x, tmp): e(valu(op, a, a, t))

e(scmp("s_cmp_ge_u32", S(2), 256)); e(raw("s_cbranch_scc1 L_end", rd=["scc"]))
diag(0)
e(salu("s_mov_b32", s_retry, 0, scc_w=False))
em.label("L_restart")
i0 = e(I("s_load_dwordx16 %s, s[0:1], 0" % s_ka, "smem", wr=s_ka.regs()))
i1 = e(I("s_load_dwordx8 %s, s[0:1], 64" % s_kb, "smem", wr=s_kb.regs()))
vq, vG, vr, vc_, vx, vy, vz = [V(40 + i) for i in range(7)]
e(raw("s_getpc_b64 %s" % s_pair2, "salu", wr=[s_pair2]))
em.label("L_pc0")
CT0 = int(os.environ.get("CT0", "64"))
if CT0:
    e(valu("v_sub_u32", V(55), 255, v_tid)); e(valu("v_cmp_gt_u32", "vcc", CT0, V(55))); e(valu("v_lshlrev_b32", V(55), 7, V(55))); e(nop(0))
    e(raw("s_and_saveexec_b64 s[4:5], vcc", "salu", wr=["exec"], rd=["vcc"])); e(raw("s_cbranch_execz L_ct0"))
    e(raw("global_load_dword v55, v55, %s" % s_pair2))
    em.label("L_ct0")
    e(raw("s_mov_b64 exec, -1", "salu", wr=["exec"]))
MAP2 = int(os.environ.get("MAP2", "0"))
s_i = S(65)
if MAP2:
    e(salu("s_and_b32", s_g, S(2), 3)); e(salu("s_lshl_b32", s_g, s_g, 1)); e(salu("s_bfe_u32", s_t0, S(2), "0x10003")); e(salu("s_add_u32", s_g, s_g, s_t0))
    e(salu("s_bfe_u32", s_qb, S(2), "0x10002")); e(salu("s_lshl_b32", s_qb, s_qb, 4)); e(salu("s_lshr_b32", s_t0, S(2), 4)); e(salu("s_add_u32", s_qb, s_qb, s_t0))
else:
    e(salu("s_and_b32", s_g, S(2), 7)); e(salu("s_lshr_b32", s_qb, S(2), 3))
def sx(dst): return salu("s_lshr_b32", dst, S(2), 4 if MAP2 else 3)
TL = "-1" if MAP2 else "0xffffffff"
e(valu("v_and_b32", v_lane, 63, v_tid))
e(valu("v_lshrrev_b32", v_t, 6, v_tid))
e(valu("v_lshlrev_b32", v_lin, 4, v_lane))
e(valu("v_readfirstlane_b32", s_w, v_t))
e(valu("v_and_b32", vq, 15, v_lane)); e(valu("v_lshrrev_b32", vG, 4, v_lane))
vxo = V(47)
XD = int(os.environ.get("XD", "1"))
if XD == 2:
    vxq = V(60, 4); vxr = vxq
    for rg in range(4):
        e(valu("v_add_u32", vy, 4 * rg, vG)); e(valu("v_xor_b32", vz, vy, vq)); e(valu("v_lshl_add_u32", vy, v_t, 4, vy)); e(valu("v_lshlrev_b32", vy, 10, vy))
        e(valu("v_lshl_add_u32", vxq[rg], vz, 4, vy))
elif XD:
    vxo2 = V(50); vxr = [V(47), V(50)]
    e(valu("v_lshrrev_b32", vx, 3, v_lane)); e(valu("v_lshl_add_u32", vx, v_t, 4, vx)); e(valu("v_lshlrev_b32", vx, 10, vx))
    e(valu("v_and_b32", vy, 7, v_lane)); e(valu("v_xor_b32", vy, vy, vG)); e(valu("v_lshl_add_u32", vxo, vy, 4, vx))
    e(valu("v_xor_b32", vxo2, 64, vxo)); e(valu("v_add_u32", vxo2, 8192, vxo2))
else:
    e(valu("v_lshl_add_u32", vxo, v_t, 4, vq)); e(valu("v_lshlrev_b32", vxo, 10, vxo)); e(valu("v_lshl_add_u32", vxo, vG, 4, vxo))
vwg, vwq, vcw = V(52), V(53), V(54)
GM0 = int(os.environ.get("GM", "0"))
if GM0: e(salu("s_lshl_b32", s_t1, s_g, 7))
else: e(salu("s_mul_i32", s_t1, s_g, 448, scc_w=False)); e(salu("s_and_b32", s_t1, s_t1, hx(~127)))
e(salu("s_and_b32", s_t2, s_w, 1)); e(sx(s_t3)); e(salu("s_lshl_b32", s_t3, s_t3, 1)); e(salu("s_add_u32", s_t2, s_t2, s_t3))
e(salu("s_mul_i32", s_t2, s_t2, (16 if MAP2 else 8) * 3584, scc_w=False)); e(salu("s_add_u32", s_t1, s_t1, s_t2))
e(valu("v_lshrrev_b32", vx, 2, v_lane)); e(valu("v_mul_u32_u24", vx, 3584, vx)); e(valu("v_and_b32", vz, 3, v_lane)); e(valu("v_lshl_add_u32", vx, vz, 10 if GM0 else 7, vx))
e(valu("v_add_u32", vwg, s_t1, vx))
if GM0:
    e(salu("s_add_u32", s_t3, s_g, 1)); e(salu("s_lshr_b32", s_t3, s_t3, 1)); e(salu("s_lshl_b32", s_t3, s_t3, 7))
    e(valu("v_cmp_eq_u32", "vcc", 3, vz)); e(valu("v_subrev_u32", vx, s_t3, vwg)); e(nop(0)); e(valu("v_cndmask_b32", vwg, vwg, vx, "vcc"))
e(salu("s_lshr_b32", s_t2, S(2), 3)); e(salu("s_lshl_b32", s_t2, s_t2, 2)); e(salu("s_add_u32", s_t2, s_t2, s_w)); e(salu("s_lshl_b32", s_t3, s_t2, 8))
e(valu("v_lshlrev_b32", vcw, 7, v_lane)); e(valu("v_add_u32", vcw, s_t3, vcw))
e(salu("s_lshl_b32", s_t0, s_qb, 16))
em.wait(lg0=True)
diag(2)
srd(S_X, s_ka[0], s_ka[1], 65536, s_t0)
v_xp = V(64, 64)
XFIRST = int(os.environ.get("XFIRST", "12"))
if XD:
    s_xb = S(60)
    e(salu("s_lshl_b32", s_xb, s_w, 14))
    xo = [256 * (t >> 2) if XD == 2 else 128 * (t >> 1) for t in range(16)]
    xl = [dma(vxq[t & 3] if XD == 2 else (vxo2 if t & 1 else vxo), S_X, 0, off=xo[t]) for t in range(16)]
    def xissue(t): e(salu("s_add_u32", "m0", s_xb, t * 1024 - xo[t])); e(nop(0)); e(xl[t])
else:
    xl = [bload(v_xp[(4 * ks, 4)], vxo, S_X, 0, off=64 * ks) for ks in range(16)]
    def xissue(t): e(xl[t])
for ks in range(XFIRST): xissue(ks)
e(scmp("s_cmp_lt_u32", s_w, 2)); e(salu("s_cselect_b64", s_pair, s_ka[(12, 2)], s_ka[(14, 2)], scc_w=False, scc_r=True))
WT = int(os.environ.get("WT", "0"))
s_wgp = S(100, 2)
if WT:
    e(salu("s_lshl_b32", s_t3, S(2), 1)); e(salu("s_and_b32", s_t1, s_w, 1)); e(salu("s_add_u32", s_t3, s_t3, s_t1)); e(salu("s_mul_i32", s_t3, s_t3, 3584, scc_w=False))
    e(valu("v_lshlrev_b32", V(51), 7, v_lane)); e(valu("v_add_u32", V(51), s_t3, V(51)))
    e(raw("s_mov_b64 exec, 0xfffffff", "salu", wr=["exec"]))
    e(I("global_load_dword %s, %s, %s" % (V(48), V(51), s_pair), "vmem", rd=V(51).regs() + s_pair.regs(), wr=V(48).regs()))
    e(salu("s_mov_b64", s_wgp, s_pair, scc_w=False))
else:
    e(raw("s_mov_b64 exec, " + TL, "salu", wr=["exec"]))
    e(I("global_load_dword %s, %s, %s" % (V(48), vwg, s_pair), "vmem", rd=vwg.regs() + s_pair.regs(), wr=V(48).regs()))
e(raw("s_mov_b64 exec, 3", "salu", wr=["exec"]))
e(I("global_load_dword %s, %s, %s" % (V(49), vcw, s_pair2), "vmem", rd=vcw.regs() + s_pair2.regs(), wr=V(49).regs()))
e(raw("s_mov_b64 exec, -1", "salu", wr=["exec"]))
e(sx(s_t2)); e(salu("s_lshl_b32", s_t2, s_t2, 2)); e(salu("s_add_u32", s_t2, s_t2, s_w))
e(salu("s_lshl_b32", s_t2, s_t2, 16 if MAP2 else 15)); e(salu("s_lshl_b32", s_t3, s_g, 10)); e(salu("s_add_u32", s_t2, s_t2, s_t3))
e(valu("v_lshrrev_b32", vx, 3, v_lane)); e(valu("v_lshlrev_b32", vx, 13, vx)); e(valu("v_and_b32", vz, 7, v_lane)); e(valu("v_lshl_add_u32", vx, vz, 7, vx))
e(valu("v_add_u32", vwq, s_t2, vx))
e(salu("s_lshr_b32", s_t2, S(2), 6)); e(salu("s_and_b32", s_t3, S(2), 7)); e(salu("s_lshl_b32", s_t3, s_t3, 2)); e(salu("s_add_u32", s_t2, s_t2, s_t3))
e(salu("s_lshl_b32", s_t0, s_t2, 16))
srd(S_OUT, s_kb[2], s_kb[3], 65536, s_t0)
e(salu("s_lshl_b32", s_t1, s_g, 19))
srd(S_K, s_ka[2], s_ka[3], 524288, s_t1)
srd(S_V, s_ka[4], s_ka[5], 524288, s_t1)
srd(S_WO, s_ka[8], s_ka[9], 524288, s_t1)
srd(S_WQ, s_ka[6], s_ka[7], 4 << 20)
srd(S_WG, s_ka[12], s_ka[13], 1835008)
srd(S_WU, s_ka[14], s_ka[15], 1835008)
srd(S_WD, s_kb[0], s_kb[1], 1835008)
srd(S_DBG, s_kb[4], s_kb[5], 256)
e(salu("s_mul_i32", s_t1, s_qb, 229376, scc_w=False))
srd(S_H, s_kb[6], s_kb[7], 229376, s_t1)
e(salu("s_lshl_b32", s_t1, s_qb, 19)); e(salu("s_add_u32", s_t1, s_t1, hx(WS_SP)))
srd(S_SP, s_kb[6], s_kb[7], 524288, s_t1)
if DUMP or STAMP:
    e(salu("s_mov_b32", s_t1, hx(WS_DUMP), scc_w=False))
    srd(S_DMP, s_kb[6], s_kb[7], 200 << 20, s_t1)
e(salu("s_mov_b64", s_pair, S(90, 2), scc_w=False))
e(salu("s_lshl_b32", s_t0, s_t2, 16))
srd(S_XC, s_ka[0], s_ka[1], 65536, s_t0)
e(salu("s_mul_i32", s_t1, s_t2, 229376, scc_w=False))
srd(S_HC, s_pair[0], s_pair[1], 229376, s_t1)
e(salu("s_lshl_b32", s_t1, s_t2, 19)); e(salu("s_add_u32", s_t1, s_t1, hx(WS_SP)))
srd(S_SPC, s_pair[0], s_pair[1], 524288, s_t1)
e(salu("s_mov_b32", s_cq, s_t2, scc_w=False)); e(salu("s_bfe_u32", s_cg, S(2), "0x30003"))
e(salu("s_lshl_b32", s_myfl, s_qb, 2)); e(salu("s_add_u32", s_myfl, s_myfl, s_w)); e(salu("s_lshl_b32", s_myfl, s_myfl, 8))
e(salu("s_lshl_b32", s_t1, s_g, 2)); e(salu("s_add_u32", s_myfl, s_myfl, s_t1))
e(salu("s_lshl_b32", s_m0b, s_w, 12)); e(salu("s_add_u32", s_m0b, s_m0b, RING))
GM = int(os.environ.get("GM", "0"))
if GM:
    e(salu("s_lshl_b32", s_t1, s_w, 3)); e(salu("s_add_u32", s_t1, s_t1, s_g))
    e(salu("s_lshr_b32", s_t2, s_g, 1)); e(salu("s_add_u32", s_t2, s_t2, 24))
    e(scmp("s_cmp_eq_u32", s_w, 3)); e(salu("s_cselect_b32", s_t1, s_t2, s_t1, scc_w=False, scc_r=True))
else:
    e(salu("s_and_b32", s_t1, s_g, 1)); e(salu("s_lshl_b32", s_t1, s_t1, 2)); e(salu("s_add_u32", s_t1, s_t1, s_w))
    e(scmp("s_cmp_eq_u32", s_w, 3)); e(salu("s_cselect_b32", s_t1, 3, s_t1, scc_w=False, scc_r=True))
    e(salu("s_lshr_b32", s_t2, s_g, 1)); e(salu("s_mul_i32", s_t2, s_t2, 7, scc_w=False)); e(salu("s_add_u32", s_t1, s_t1, s_t2))
e(salu("s_lshl_b32", s_h0, s_t1, 13)); e(salu("s_add_u32", s_h1, s_h0, 4096))
e(salu("s_lshl_b32", s_t1, s_t1, 7))
e(salu("s_lshl_b32", s_t2, s_g, 2)); e(salu("s_add_u32", s_t2, s_t2, s_w)); e(salu("s_lshl_b32", s_t2, s_t2, 8))

def dma_voffs(dst, stride, colbase_s, perm):
    for j in range(4):
        e(valu("v_bfe_u32", vx, v_lane, 1, 2)); e(valu("v_bfe_u32", vy, v_lane, 4, 1))
        e(valu("v_xor_b32", vx, vx, vy))
        if j & 1: e(valu("v_xor_b32", vx, 2, vx))
        e(valu("v_and_b32", vy, 1, v_lane)); e(valu("v_lshlrev_b32", vy, 4, vy)); e(valu("v_lshl_add_u32", vx, vx, 5, vy))
        if not perm:
            e(valu("v_lshrrev_b32", vy, 3, v_lane)); rowadd = 8 * j
        else:
            e(valu("v_bfe_u32", vy, v_lane, 3, 2)); e(valu("v_bfe_u32", vz, v_lane, 5, 1)); e(valu("v_lshl_add_u32", vy, vz, 4, vy)); rowadd = 4 * j
        e(valu("v_mul_u32_u24", vy, stride, vy))
        e(valu("v_add3_u32", vx, vx, vy, colbase_s))
        e(valu("v_add_u32", dst[j], rowadd * stride - j * 1024, vx))

dma_voffs(v_dA, 3584, s_t1, False)
dma_voffs(v_dB, 8192, s_t2, False)

def m0set(p): return salu("s_add_u32", "m0", s_m0b, p * 16384) if p < 6 else salu("s_sub_u32", "m0", s_m0b, RING - (p - 6) * 16384)
def s1_dma(m):
    p = m % 6
    if m < 32:
        s, h = m >> 1, m & 1
        return [m0set(p), salu("s_mov_b32", s_off, s * 32 * 3584, scc_w=False)], [dma(v_dA[j], S_WU if h else S_WG, s_off, j * 1024) for j in range(4)]
    if m < 64:
        s, h = (m - 32) >> 1, m & 1
        return [m0set(p), salu("s_mov_b32", s_off, s * 32 * 8192 + 128 * h, scc_w=False)], [dma(v_dB[j], S_WQ, s_off, j * 1024) for j in range(4)]
    if m == 64:
        return [m0set(p), salu("s_mov_b32", s_off, 0, scc_w=False)], [dma(v_kd[j], S_K, s_off, j * 1024) for j in range(4)]
    if m == 65:
        return [m0set(p), salu("s_mov_b32", s_off, 8192, scc_w=False)], [dma(v_kd[j], S_K, s_off, j * 1024) for j in range(4)]
    if m == 66:
        return [m0set(p), salu("s_mov_b32", s_off, 0, scc_w=False)], [dma(v_vd[j & 1], S_V, s_off, j * 1024) for j in range(4)]
    return None
dtok = {}
ln_v = []
for m in range(6):
    sa, dm = s1_dma(m)
    ln_v.append(sa); ln_v += dm
    dtok[m] = dm[3]
def xaddr(dst, tmp):
    e(valu("v_and_b32", dst, 15, v_lane)); e(salu("s_lshl_b32", s_t0, s_w, 4)); e(valu("v_add_u32", dst, s_t0, dst)); e(valu("v_lshlrev_b32", dst, 10, dst))
    e(valu("v_lshrrev_b32", tmp, 4, v_lane)); e(valu("v_lshl_add_u32", dst, tmp, 3, dst)); e(salu("s_lshl_b32", s_t0, s_cg, 7)); e(valu("v_add_u32", dst, s_t0, dst))
WQT = int(os.environ.get("WQT", "0"))
wqt = [raw("s_mov_b64 exec, " + TL, "salu", wr=["exec"]), bload(V(46), vwq, S_WQ, 0, n=1), raw("s_mov_b64 exec, -1", "salu", wr=["exec"])]
WQC = int(os.environ.get("WQC", "2"))
wqs = wqt
if WQC:
    e(salu("s_lshl_b32", s_t3, S(2), 2)); e(salu("s_add_u32", s_t3, s_t3, s_w)); e(salu("s_lshl_b32", s_t3, s_t3, 12))
    e(valu("v_lshlrev_b32", V(54), 7, v_lane)); e(valu("v_add_u32", V(54), s_t3, V(54)))
    wqt = [raw("s_mov_b64 exec, 0xffffffff", "salu", wr=["exec"]), bload(V(49), V(54), S_WQ, 0, n=1), raw("s_mov_b64 exec, -1", "salu", wr=["exec"])]
if WT == 2:
    wgt = [raw("s_mov_b64 exec, " + TL, "salu", wr=["exec"]), I("global_load_dword %s, %s, %s" % (V(51), vwg, s_wgp), "vmem", rd=vwg.regs() + s_wgp.regs(), wr=V(51).regs()), raw("s_mov_b64 exec, -1", "salu", wr=["exec"])]
    ln_v.insert(int(os.environ.get("WTP", "0")), wgt)
if WQT == 0: ln_v.append(wqt)
LNPRE = int(os.environ.get("LNPRE", "0"))
lv = [0]
def ln_issue(n=1):
    k = 0
    while k < n and lv[0] < len(ln_v):
        it = ln_v[lv[0]]; lv[0] += 1
        e(it)
        if not isinstance(it, list): k += 1
e(valu("v_bfe_u32", vr, v_lane, 2, 2)); e(valu("v_and_b32", vc_, 3, v_lane))
e(valu("v_lshlrev_b32", vx, 10, vG)); e(valu("v_lshl_add_u32", vx, vr, 7, vx)); e(valu("v_lshl_add_u32", vx, vc_, 3, vx)); e(valu("v_add_u32", vx, s_m0b, vx))
e(valu("v_lshrrev_b32", vy, 1, vr)); e(valu("v_and_b32", vz, 1, vG)); e(valu("v_lshl_add_u32", vy, vz, 1, vy))
for u in range(4):
    e(valu("v_xor_b32", vz, u, vy)); e(valu("v_lshl_add_u32", v_tr[0][u], vz, 5, vx)); e(valu("v_add_u32", v_tr[1][u], 3 * 16384, v_tr[0][u]))
e(valu("v_xor_b32", vy, vG, vq))
for ds in range(4):
    e(valu("v_xor_b32", vz, 4 * ds, vy)); e(valu("v_lshlrev_b32", vz, 4, vz)); e(valu("v_lshl_add_u32", vz, vq, 8, vz)); e(valu("v_add_u32", v_ka[ds], RING + 4 * 16384, vz))
e(valu("v_lshl_add_u32", vx, vG, 2, vr)); e(valu("v_and_b32", vy, 7, vx)); e(valu("v_lshlrev_b32", vx, 8, vx)); e(valu("v_lshl_add_u32", vx, vc_, 3, vx)); e(valu("v_add_u32", vx, RING, vx))
for db in range(8):
    e(valu("v_xor_b32", vz, db, vy)); e(valu("v_lshl_add_u32", v_va[db], vz, 5, vx))
e(salu("s_lshl_b32", s_t1, s_w, 12))
e(valu("v_lshlrev_b32", vx, 8, vG)); e(valu("v_add_u32", vx, s_t1, vx))
for j in range(4):
    e(valu("v_add_u32", vy, 4 * j, vG)); e(valu("v_xor_b32", vy, vy, vq)); e(valu("v_lshl_add_u32", v_kd[j], vy, 4, vx))
e(valu("v_and_b32", vz, 1, v_lane)); e(valu("v_lshl_add_u32", vx, vz, 4, vx))
for j in range(2):
    e(valu("v_add_u32", vy, 4 * j, vG)); e(valu("v_lshrrev_b32", vz, 1, vq)); e(valu("v_xor_b32", vy, vy, vz)); e(valu("v_lshl_add_u32", v_vd[j], vy, 5, vx))
e(salu("s_lshl_b32", s_t1, s_w, 14)); e(valu("v_add_u32", v_wl, s_t1, v_lin))
for ks in range(XFIRST, 16): xissue(ks)
if XD == 2:
    e(valu("v_xor_b32", vx, vq, vG)); e(valu("v_lshlrev_b32", vy, 8, vq)); e(valu("v_add_u32", vy, s_xb, vy))
    for b_ in range(4): e(valu("v_xor_b32", vz, 4 * b_, vx)); e(valu("v_lshl_add_u32", V(48 + 0) if False else vxr[b_], vz, 4, vy))
elif XD:
    e(valu("v_lshrrev_b32", vx, 1, vq)); e(valu("v_xor_b32", vx, vx, vG)); e(valu("v_lshlrev_b32", vx, 4, vx))
    e(valu("v_lshl_add_u32", vx, vq, 7, vx)); e(valu("v_add_u32", vxr[0], s_xb, vx)); e(valu("v_xor_b32", vxr[1], 64, vxr[0]))
e(salu("s_mov_b32", s_t1, hx(WS_FL), scc_w=False))
srd(S_FL, s_pair[0], s_pair[1], 32768, s_t1)
if WQT == 1: e(wqt)
ln_issue(LNPRE)
stamp()

v_f = V(128, 128)
LNM = int(os.environ.get("LNM", "1"))
vsum, vtmp, vmb, vdm = V(40), V(41), V(42), V(43)
vneg = V(56, 2)
diag(2)
if LNM:
    d1, d2 = V(56, 4), (V(60, 4) if XD != 2 else A(196, 4))
    xr = {}
    def xread(t2):
        em.wait(vm=xl[2 * t2 + 1])
        for ks in (2 * t2, 2 * t2 + 1): xr[ks] = e(dsread("ds_read_b128", v_xp[(4 * ks, 4)], vxr[ks & 1], (ks >> 1) * 2048))
    e(valu("v_mov_b32", vtmp, "0x3f803f80"))
    for i in range(4): e(valu("v_accvgpr_write_b32", a_ones[i], vtmp))
    e(valu("v_and_b32", vtmp, 3, v_lane))
    for r in range(1, 4): e(valu("v_cmp_eq_u32", S(68 + 2 * r, 2), r, vtmp))
    e(valu("v_bfe_u32", vtmp, v_lane, 2, 2)); e(valu("v_lshrrev_b32", vmb, 4, v_lane)); e(valu("v_cmp_eq_u32", S(68, 2), vtmp, vmb))
    LND = int(os.environ.get("LND", "4"))
    def xread4(sg):
        em.wait(vm=xl[4 * sg + 3])
        for ks in range(4 * sg, 4 * sg + 4): xr[ks] = e(dsread("ds_read_b128", v_xp[(4 * ks, 4)], vxr[ks & 3], sg * 4096))
    if XD == 1: xread(0)
    for ks in range(16):
        if XD == 2:
            if ks % 4 == 0: xread4(ks // 4)
            em.wait(lg=xr[ks])
        elif XD:
            if ks % 2 == 0 and ks + 2 < 16: xread(ks // 2 + 1)
            em.wait(lg=xr[ks])
        else: em.wait(vm=xl[ks])
        if ks == 15: diag(2)
        x4 = v_xp[(4 * ks, 4)]
        e(mfma(d1, a_ones, x4, 0 if ks == 0 else d1))
        if ks >= LND: ln_issue(1)
        for k in range(2):
            p = 4 * ks + k
            e(valu("v_lshlrev_b32", v_f[2 * p], 16, v_xp[p])); e(valu("v_and_b32", v_f[2 * p + 1], "0xffff0000", v_xp[p]))
        e(mfma(d2, x4, x4, 0 if ks == 0 else d2))
        for k in range(2, 4):
            p = 4 * ks + k
            e(valu("v_lshlrev_b32", v_f[2 * p], 16, v_xp[p])); e(valu("v_and_b32", v_f[2 * p + 1], "0xffff0000", v_xp[p]))
    if STAMP == 3: stamp()
    ln_issue(int(os.environ.get("LN_FIRST", "0")))
    diag(2)
    if STAMP == 3: stamp()
    e(nop(2))
    if XD == 2:
        e(nop(2))
        for r in range(4): e(valu("v_accvgpr_read_b32", V(60 + r), d2[r]))
        d2 = V(60, 4)
    e(valu("v_mul_f32", vsum, hx(f2u(1.0 / 512)), d1[0]))
    e(valu("v_cvt_pk_bf16_f32", vmb, vsum, vsum)); e(valu("v_lshlrev_b32", vmb, 16, vmb))
    e(valu("v_mov_b32", vdm, vsum))
    for r in range(1, 4): e(valu("v_cndmask_b32", d2[0], d2[0], d2[r], S(68 + 2 * r, 2)))
    e(valu("v_cndmask_b32", vsum, 0, d2[0], S(68, 2)))
    red4("v_add_f32", [vsum], [vtmp])
    e(valu("v_mul_f32", vsum, hx(f2u(1.0 / 512)), vsum))
    e(valu("v_fma_f32", vsum, "-" + str(vdm), vdm, vsum, extra_rd=vdm.regs()))
    if STAMP == 3: stamp()
else:
    acc = [V(56, 2), V(58, 2), V(60, 2), V(62, 2)]
    for ks in range(16):
        em.wait(vm=xl[ks])
        if ks == 15: diag(2)
        for k in range(4):
            p = 4 * ks + k
            e(valu("v_lshlrev_b32", v_f[2 * p], 16, v_xp[p])); e(valu("v_and_b32", v_f[2 * p + 1], "0xffff0000", v_xp[p]))
        for k in range(4):
            p = 4 * ks + k
            if ks == 0: e(valu("v_mov_b64", acc[k], v_f[(2 * p, 2)]))
            else: e(valu("v_pk_add_f32", acc[k], acc[k], v_f[(2 * p, 2)]))
    if STAMP == 3: stamp()
    ln_issue(int(os.environ.get("LN_FIRST", "12")))
    diag(2)
    if STAMP == 3: stamp()
    e(valu("v_pk_add_f32", acc[0], acc[0], acc[1])); e(valu("v_pk_add_f32", acc[2], acc[2], acc[3])); e(valu("v_pk_add_f32", acc[0], acc[0], acc[2]))
    e(valu("v_add_f32", vsum, acc[0][0], acc[0][1]))
    red4("v_add_f32", [vsum], [vtmp])
    e(valu("v_mul_f32", vsum, hx(f2u(1.0 / 512)), vsum))
    e(valu("v_cvt_pk_bf16_f32", vmb, vsum, vsum)); e(valu("v_lshlrev_b32", vmb, 16, vmb))
    e(valu("v_sub_f32", vdm, vsum, vmb))
    e(valu("v_sub_f32", vneg[0], 0, vmb))
    acc2 = [V(58, 2), V(60, 2), V(62, 2)]
    for p in range(64):
        e(valu("v_pk_add_f32", v_f[(2 * p, 2)], v_f[(2 * p, 2)], vneg, mod="op_sel_hi:[1,0]"))
    for p in range(64):
        a_ = acc2[p % 3]
        if p < 3: e(valu("v_pk_mul_f32", a_, v_f[(2 * p, 2)], v_f[(2 * p, 2)]))
        else: e(valu("v_pk_fma_f32", a_, v_f[(2 * p, 2)], v_f[(2 * p, 2)], a_))
    if STAMP == 3: stamp()
    e(valu("v_pk_add_f32", acc2[0], acc2[0], acc2[1])); e(valu("v_pk_add_f32", acc2[0], acc2[0], acc2[2]))
    e(valu("v_add_f32", vsum, acc2[0][0], acc2[0][1]))
    red4("v_add_f32", [vsum], [vtmp])
    e(valu("v_mul_f32", vsum, hx(f2u(1.0 / 512)), vsum))
    e(valu("v_fma_f32", vsum, "-" + str(vdm), vdm, vsum, extra_rd=vdm.regs()))
e(valu("v_max_f32", vsum, 0, vsum))
e(valu("v_cvt_pk_bf16_f32", vsum, vsum, vsum)); e(valu("v_lshlrev_b32", vsum, 16, vsum))
e(valu("v_add_f32", vsum, hx(f2u(1e-5)), vsum))
e(valu("v_cvt_pk_bf16_f32", vsum, vsum, vsum)); e(valu("v_lshlrev_b32", vsum, 16, vsum))
e(valu("v_sqrt_f32", vsum, vsum)); e(nop(0))
e(valu("v_cvt_pk_bf16_f32", vsum, vsum, vsum)); e(valu("v_lshlrev_b32", vsum, 16, vsum))
e(valu("v_rcp_f32", vneg[0], vsum)); e(nop(0))
if LNM: e(valu("v_mul_f32", vneg[1], "-" + str(vmb), vneg[0], mod="", extra_rd=vmb.regs()))
for ks in range(16):
    for k in range(4):
        p = 4 * ks + k
        if LNM: e(valu("v_pk_fma_f32", v_f[(2 * p, 2)], v_f[(2 * p, 2)], vneg, vneg, mod="op_sel:[0,0,1] op_sel_hi:[1,0,1]"))
        else: e(valu("v_pk_mul_f32", v_f[(2 * p, 2)], v_f[(2 * p, 2)], vneg, mod="op_sel_hi:[1,0]"))
    for k in range(4):
        p = 4 * ks + k
        e(valu("v_cvt_pk_bf16_f32", v_xp[p], v_f[2 * p], v_f[2 * p + 1]))
    e(dswrite("ds_write_b128", v_wl, v_xp[(4 * ks, 4)], ks * 1024))
ln_issue(int(os.environ.get("LN_LAST", "100")))
if STAMP == 3: stamp()
if DUMP == "ln": dump_regs([v_xp[i] for i in range(64)])
em.wait(lg0=True)
e(raw("s_barrier"))
stamp(); diag(); diag(2); diag(3)

PA = int(os.environ.get("PA", "1"))
SNAKE = int(os.environ.get("SNAKE", "1"))
def cost_of(it):
    k = getattr(it, "kind", "")
    return 2 if k == "trans" else (0 if k in ("salu", "nop") else 1)
class Fill:
    def __init__(self, items, start, end, spread=False): self.items, self.start, self.end, self.spread = list(items), start, end, spread; self.i = 0
    def done(self): return self.i == len(self.items)
def run_stream(NH, dmaf, dtok, accf, Bf, extra, fills, LOOK=6, nq=4, posf=lambda m: m % 6, ring=a_ring, first_dma=6, tr2=None, early_dma=False, w2=lambda g: False):
    NG = 4 * NH
    rtok = {}
    def reads(g):
        m, u = g >> 2, g & 3
        p = posf(m)
        d = ring[((g % 8) * 4, 4)]
        ar, of = (v_tr[p // 3][u], (p % 3) * 16384) if p < 6 else (tr2[u], (p - 6) * 16384)
        r = [dsread("ds_read_b64_tr_b16", d[(2 * h2, 2)], ar, of + h2 * 512) for h2 in range(2)]
        rtok[g] = r[1]
        return r
    assert all(k < NG for k in extra), "extra item scheduled past the end of the stream"
    pre = [reads(g) for g in range(3)]
    G, C = [], []
    cur = None
    for g in range(NG):
        gaps = [[], [], [], []]; cap = [2, 2, 2, 2]
        if g + 3 < NG:
            if (g + 3) & 3 == 0 and not (g > 0 and w2(g - 1)): gaps[0].append(LateW(dtok, (g + 3) >> 2))
            r = reads(g + 3); gaps[0].append(r[0]); gaps[1].append(r[1]); cap[0] -= 1; cap[1] -= 1
        md, j = (g + 4 * LOOK - 4) >> 2, (g + 4 * LOOK - 4) & 3
        if early_dma:
            md, j = (g + 4 * LOOK - 3) >> 2, (g + 4 * LOOK - 3) & 3
            if md >= first_dma and j < 2:
                if j == 0: cur = dmaf(md)
                if cur is not None:
                    if j == 0: gaps[1] += cur[0]
                    gaps[2].append(cur[1][2 * j]); gaps[3].append(cur[1][2 * j + 1]); cap[2] -= 1; cap[3] -= 1
                    if j == 1: dtok[md] = cur[1][3]
        elif md >= first_dma:
            if j == 0: cur = dmaf(md)
            if cur is not None:
                if j == 0: gaps[2] += cur[0]
                for it in cur[1][j::4]: gaps[3].append(it); cap[3] -= 1
                if j == 3: dtok[md] = cur[1][3]
        for (gp, it, cost) in extra.get(g, []):
            gaps[gp].append(it); cap[gp] -= cost
        if w2(g):
            if g & 1 == 0 and g + 1 < NG:
                gaps[3].insert(0, LateW2(rtok, [x for x in (g + 1, g + 2) if x < NG], dtok, (g + 4) >> 2 if ((g + 4) & 3 == 0 and g + 4 < NG) else None))
        elif g + 1 < NG: gaps[3].insert(0, Wait(lg=rtok[g + 1]))
        G.append(gaps); C.append(cap)
    B = {}
    for f in fills:
        idx = [(g, q) for g in range(f.start, f.end) for q in range(4)]
        caps = [max(0, C[g][q]) for g, q in idx]
        W = sum(cost_of(it) for it in f.items); T = sum(caps); n = len(idx)
        acc = 0.0; cum = 0
        for k, key in enumerate(idx):
            if W >= T: acc += caps[k] + (W - T) / n
            elif f.spread: acc += caps[k] * W / T
            else: acc += caps[k]
            B[key] = (f, acc)
    em.wait(vm=dtok[0])
    for r in pre: e(r)
    for p_ in extra.get(-1, []): e(p_[1])
    em.wait(lg0=True)
    used = {id(f): 0 for f in fills}
    for g in range(NG):
        m, u = g >> 2, g & 3
        d = ring[((g % 8) * 4, 4)]
        for qb in range(nq):
            qq = 3 - qb if (SNAKE and g & 1) else qb
            ac, first = accf(m, u, qq)
            e(mfma(ac, d, Bf(m, qq), 0 if first else ac))
            ent = B.get((g, qb))
            sawv = False
            if ent:
                f, lim = ent
                while not f.done() and getattr(f.items[f.i], "kind", "") in ("lds", "vmem", "salu") and used[id(f)] + cost_of(f.items[f.i]) <= lim + 0.5:
                    it = f.items[f.i]; f.i += 1; used[id(f)] += cost_of(it); e(it)
            for it in G[g][qb]: e(it)
            if ent:
                f, lim = ent
                lastgap = (g == f.end - 1 and qb == 3)
                while not f.done():
                    it = f.items[f.i]; c = cost_of(it)
                    if not lastgap:
                        if used[id(f)] + c > lim + 0.5: break
                        if sawv and getattr(it, "kind", "") in ("lds", "vmem"): break
                    f.i += 1; used[id(f)] += c; e(it)
                    if getattr(it, "kind", "") in ("valu", "trans"): sawv = True
    assert all(f.done() for f in fills)
class LateW2:
    def __init__(self, r, fl, d, k): self.r, self.fl, self.d, self.k = r, fl, d, k
    def __call__(self): return Wait(lg=[self.r[f] for f in self.fl], vm=(self.d[self.k] if self.k is not None else None))
class LateW:
    def __init__(self, d, k): self.d, self.k = d, k
    def __call__(self): return Wait(vm=self.d[self.k])

def s1_acc(m, u, qb):
    h = m & 1
    idx = ((h * 4 + u) * 4 + qb) * 4
    if m < 32: return A(idx, 4), m < 2
    return v_acc[(idx, 4)], m < 34
def s1_B(m, qb): return a_B[(((m >> 1) & 1) * 16 + qb * 4, 4)]
extra = {}
btok = {}
def bread(s, qb): return dsread("ds_read_b128", a_B[((s & 1) * 16 + qb * 4, 4)], v_lin, (qb * 16 + (s % 16)) * 1024)
extra[-1] = [(0, bread(0, qb), 1) for qb in range(4)]
for s in range(1, 32):
    for qb in range(4):
        extra.setdefault(8 * (s - 1) + 1 + qb, []).append((2, bread(s, qb), 1))
gi = 0; gj = 0; pend_s = []
for it in ln_v[lv[0]:]:
    if isinstance(it, list) and all(x.kind == "salu" for x in it): pend_s = it; continue
    if not isinstance(it, list) and it.kind == "dma":
        assert gi < 12
        extra.setdefault(gi // 3, []).append((gi % 3, [pend_s, it] if pend_s else it, 1)); pend_s = []
        gi += 1
    else:
        extra.setdefault(8 + 2 * gj, []).append((1, it, 1)); gj += 1
if WQC == 2: extra.setdefault(int(os.environ.get("WQG", "40")), []).append((1, wqs, 1))
C0 = -2.0 * math.sqrt(2.0 / math.pi) * math.log2(math.e); C1 = C0 * 0.044715
vc0, vc1 = V(40), V(41)
gel = [valu("v_mov_b32", vc0, hx(f2u(C0))), valu("v_mov_b32", vc1, hx(f2u(C1)))]
hst = []
tb = 0
for i in range(2):
    for qb in range(4):
        pk = V(96 + 4 * tb, 4); tb += 1
        for b in range(2):
            u = 2 * i + b
            T = [V(64 + 16 * b + k) for k in range(16)]
            G_, U_, X_ = T[0:4], T[4:8], T[8:12]
            ga = lambda r: A((u * 4 + qb) * 4 + r); ua = lambda r: A(((4 + u) * 4 + qb) * 4 + r)
            for r in range(4): gel.append(valu("v_accvgpr_read_b32", G_[r], ga(r)))
            for r in range(4): gel.append(valu("v_accvgpr_read_b32", U_[r], ua(r)))
            for r in range(4): gel.append(valu("v_mul_f32", X_[r], G_[r], G_[r]))
            for r in range(4): gel.append(valu("v_fma_f32", X_[r], X_[r], vc1, vc0))
            for r in range(4): gel.append(valu("v_mul_f32", X_[r], X_[r], G_[r]))
            for r in range(4): gel.append(valu("v_exp_f32", X_[r], X_[r]))
            for r in range(4): gel.append(valu("v_mul_f32", G_[r], G_[r], U_[r]))
            for r in range(4): gel.append(valu("v_add_f32", X_[r], "1.0", X_[r]))
            for r in range(4): gel.append(valu("v_rcp_f32", X_[r], X_[r]))
            gel.append(nop(0))
            for r in range(4): gel.append(valu("v_mul_f32", G_[r], G_[r], X_[r]))
            for k in range(2): gel.append(valu("v_cvt_pk_bf16_f32", pk[2 * b + k], G_[2 * k], G_[2 * k + 1]))
        st = bstore(pk, v_lin, S_H, s_h1 if i else s_h0, off=qb * 1024, mod="sc1")
        hst.append(st)
class Stamp:
    def __call__(self): stamp(); return []
if STAMP: extra.setdefault(128, []).append((0, Stamp(), 0))
if STAMP == 6:
    for g_ in (0, 8, 16, 24, 32, 48, 64, 96): extra.setdefault(g_, []).append((0, Stamp(), 0))
class Diag3:
    def __call__(self): diag(3); return []
if DIAG == 3:
    for g_ in (32, 128, 192): extra.setdefault(g_, []).append((0, Diag3(), 0))
class Grp:
    kind = "salu"
    def __init__(self, l): self.l = l
    def __call__(self):
        for x in self.l:
            if x.kind == "label": em.out.append(x)
            else: e(x)
        return []
def group_scc(items):
    out = []
    for it in items:
        if out and ("scc" in it.rd or it.kind == "label"):
            p = out.pop(); out.append(Grp((p.l if isinstance(p, Grp) else [p]) + [it]))
        else: out.append(it)
    return out
s_pf = [S(24, 2), S(26, 2), S(28, 2), S(30, 2)]
s_pfH = s_pair2
s_fo = S(3)
QS = math.log2(math.e) / math.sqrt(128.0)
vqs = V(42, 2); vqw = V(44)
save = em.out; em.out = []; spend = em.pend; em.pend = {}
NWO = 4 if MAP2 else 2
for it in range(3):
    e(salu("s_add_u32", s_t0, s_w, 4 * it))
    e(salu("s_sub_u32", s_t1, s_t0, NWO)); e(salu("s_min_u32", s_t1, s_t1, 6)); e(salu("s_lshl_b32", s_t1, s_t1, 13))
    e(salu("s_lshr_b32", s_t2, S(2), 3)); e(salu("s_mul_i32", s_t2, s_t2, 57344, scc_w=False)); e(salu("s_add_u32", s_t1, s_t1, s_t2))
    e(salu("s_add_u32", s_pf[it][0], S_WD[0], s_t1)); e(salu("s_addc_u32", s_pf[it][1], S_WD[1], 0, scc_r=True))
    if it == 0:
        e(sx(s_t1)); e(salu("s_lshl_b32", s_t1, s_t1, 15 if MAP2 else 14)); e(salu("s_lshl_b32", s_t2, s_w, 13)); e(salu("s_add_u32", s_t1, s_t1, s_t2))
        e(salu("s_add_u32", s_pf[1][0], S_WO[0], s_t1)); e(salu("s_addc_u32", s_pf[1][1], S_WO[1], 0, scc_r=True))
        e(scmp("s_cmp_lt_u32", s_w, NWO)); e(salu("s_cselect_b64", s_pf[0], s_pf[1], s_pf[0], scc_w=False, scc_r=True))
e(raw("s_getpc_b64 %s" % s_pf[3], "salu", wr=[s_pf[3]]))
em.label("L_pc1")
e(salu("s_lshl_b32", s_t0, s_w, 13)); e(salu("s_add_u32", s_t0, s_t0, "L_tail-L_pc1")); e(salu("s_min_u32", s_t0, s_t0, "L_code_end-L_pc1-8192"))
e(salu("s_add_u32", s_t1, s_t0, (1 if MAP2 else 3) * 8192)); e(salu("s_min_u32", s_t1, s_t1, "L_code_end-L_pc1-8192"))
e(salu("s_add_u32", s_pfH[0], s_pf[3][0], s_t1)); e(salu("s_addc_u32", s_pfH[1], s_pf[3][1], 0, scc_r=True))
e(scmp("s_cmp_lt_u32", s_w, 3 if MAP2 else 1)); e(salu("s_cselect_b64", s_pf[2], s_pf[2], s_pfH, scc_w=False, scc_r=True))
e(salu("s_add_u32", s_pf[3][0], s_pf[3][0], s_t0)); e(salu("s_addc_u32", s_pf[3][1], s_pf[3][1], 0, scc_r=True))
e(salu("s_lshl_b32", s_t0, s_cg, 2)); e(salu("s_add_u32", s_t0, s_t0, s_w)); e(salu("s_mul_i32", s_t0, s_t0, 7168, scc_w=False)); e(salu("s_min_u32", s_t0, s_t0, 229376 - 8192))
e(salu("s_add_u32", s_pfH[0], S_HC[0], s_t0)); e(salu("s_addc_u32", s_pfH[1], S_HC[1], 0, scc_r=True))
e(salu("s_lshl_b32", s_fo, s_cq, 3))
vx, vy, vz = V(45), V(46), V(47)
e(salu("s_lshl_b32", s_t1, s_w, 8))
dma_voffs(v_dA, 1024, s_t1, True)
e(salu("s_mul_i32", s_wdd, s_w, 448 * 1024 - 256, scc_w=False)); e(salu("s_lshl_b32", s_t3, s_cg, 7)); e(salu("s_add_u32", s_wdd, s_wdd, s_t3))
e(valu("v_mov_b32", vqs[0], hx(f2u(QS))))
e(valu("v_and_b32", vx, 15, v_lane)); e(valu("v_bfe_u32", vqw, v_lane, 5, 1)); e(valu("v_lshl_add_u32", vx, vqw, 4, vx)); e(valu("v_lshlrev_b32", vx, 4, vx))
e(valu("v_bfe_u32", vqw, v_lane, 4, 1)); e(valu("v_lshl_add_u32", vqw, vqw, 3, vx))
e(salu("s_lshl_b32", s_t1, s_w, 14)); e(valu("v_add_u32", vqw, s_t1, vqw))
for i in range(16): e(valu("v_accvgpr_write_b32", a_L[i], 0))
midset = group_scc(em.out); em.out = save; em.pend = spend
HST = int(os.environ.get("HST", "0"))
if HST == 0: GEL_END = 254
for k in range(8):
    if HST: extra.setdefault(248 + k, []).append((0, hst[k], 1))
run_stream(64, s1_dma, dtok, s1_acc, s1_B, extra, [Fill(midset, 109, 130), Fill(gel, 131, GEL_END)], early_dma=int(os.environ.get('ED1', '0')), w2=lambda g: int(os.environ.get('W2A', '1')) and g >= 130)
if DUMP == "qacc": dump_regs([v_acc[i] for i in range(128)])
stamp(); diag(3)

em.wait(lg0=True)
e(raw("s_barrier"))
def signal(off_s_expr_add, lab, v_t):
    e(scmp("s_cmp_lg_u32", s_w, 0)); e(raw("s_cbranch_scc1 %s" % lab, rd=["scc"]))
    e(salu("s_lshl_b32", s_t0, s_qb, 2))
    if off_s_expr_add: e(salu("s_add_u32", s_t0, s_t0, off_s_expr_add))
    e(valu("v_mov_b32", v_t, 1))
    e(raw("s_mov_b64 exec, 1", "salu", wr=["exec"]))
    e(raw("buffer_atomic_add %s, off, %s, %s sc1" % (v_t, S_DBG, s_t0)))
    e(raw("s_mov_b64 exec, -1", "salu", wr=["exec"]))
    em.label(lab)
for blk in range(8):
    for qb in range(4):
        a_ = v_acc[((blk * 4 + qb) * 4, 4)]
        t = a_[(0, 2)]
        for k in range(2): e(valu("v_pk_mul_f32", a_[(2 * k, 2)], a_[(2 * k, 2)], vqs, mod="op_sel_hi:[1,0]"))
        for k in range(2): e(valu("v_cvt_pk_bf16_f32", t[k], a_[2 * k], a_[2 * k + 1]))
        e(dswrite("ds_write_b64", vqw, t, (qb * 4 + (blk >> 1)) * 1024 + (blk & 1) * 512))
for j in range(4): e(valu("v_add_u32", v_dB[j], s_wdd, v_dA[j]))
em.wait(lg0=True)
for f in range(16): e(dsread("ds_read_b128", a_Q[(4 * f, 4)], v_wl, f * 1024))
e(scmp("s_cmp_eq_u32", s_retry, 1)); e(raw("s_cbranch_scc1 L_maxpass", rd=["scc"]))
em.label("L_att_start")
NZ0 = 32
for i in range(NZ0): e(valu("v_mov_b64", v_acc[(2 * i, 2)], 0))
assert LSUM == 1 and LNM and not POI
e(valu("v_lshlrev_b32", V(3), 7, v_lane))
e(valu("v_and_b32", V(38), 7, v_lane)); e(valu("v_mov_b32", V(0), 0))
em.wait(vm=dtok[66], lg0=True)
e(raw("s_barrier"))
if DUMP == "q": dump_regs([a_Q[i] for i in range(64)])
stamp()

def Qf(qb, ds): return a_Q[((qb * 4 + ds) * 4, 4)]
def Of(db, qb): return v_acc[((db * 4 + qb) * 4, 4)]
def fr(f): return a_ring[((f % 8) * 4, 4)]
def kslot(par): return 16384 if par == 0 else 0
def vslot(par): return 0 if par == 0 else 16384
def frag_reads(par, f):
    if f >= 32: par ^= 1; f -= 32
    d = fr(f)
    if f < 8 or 16 <= f < 24:
        kb = (f >> 2) if f < 8 else 2 + ((f - 16) >> 2)
        return [dsread("ds_read_b128", d, v_ka[f & 3], kslot(par) + kb * 4096)]
    ks2 = 0 if f < 16 else 1
    db = f & 7
    return [dsread("ds_read_b64_tr_b16", d[(2 * h, 2)], v_va[db], vslot(par) + ks2 * 8192 + h * 4096) for h in range(2)]
def read_sched(g):
    r = []
    if g + 3 < 24 or g >= 29: r.append(g + 3)
    if 19 <= g <= 26: r.append(g + 5)
    return r
def sm_val(g, k):
    if 7 <= g <= 22: b = 1; n = 2 * (g - 7) + k
    else: b = 0; n = 2 * ((g - 23) % 32) + k
    kb, qb, r = n >> 4, (n >> 2) & 3, n & 3
    return b, qb, kb, r
def sm_items(g):
    ex, ad = [], []
    for k in range(2):
        b, qb, kb, r = sm_val(g, k)
        x = v_S[b][qb * 8 + kb * 4 + r]
        l = (v_l1 if b else v_l0)[qb]
        ex.append(valu("v_exp_f32", x, x)); ad.append(valu("v_add_f32", l, l, x))
    b, qb, kb, r = sm_val((g - 1) % 32, 0)
    cv = valu("v_cvt_pk_bf16_f32", v_S[b][qb * 8 + kb * 2 + (r >> 1)], v_S[b][qb * 8 + kb * 4 + r], v_S[b][qb * 8 + kb * 4 + r + 1])
    return ex, ad, cv
def att_dma(par, g):
    if g >= 29: k = g - 29; sp = par
    elif g <= 4: k = g + 3; sp = par ^ 1
    else: return [], None
    sal = []
    if k == 0: sal = [salu("s_add_u32", "m0", s_m0b, 4 * 16384 + kslot(sp))]
    if k == 4: sal = [salu("s_add_u32", "m0", s_m0b, vslot(sp))]
    if k < 4: return sal, dma(v_kd[k], S_K, s_kK, k * 1024)
    return sal, dma(v_vd[k & 1], S_V, s_kV, (k - 4) * 1024)
SIDE_FIRST = 11
class Lbl:
    def __init__(self, n): self.n = n
    def __call__(self): em.label(self.n); return []
class LoopStamp:
    def __init__(self, k, par): self.k, self.par = k, par
    def __call__(self):
        k = self.k
        e(raw("s_memtime %s" % S(68 + 2 * k, 2), "other", wr=[S(68 + 2 * k, 2)]))
        if k == 2:
            e(raw("s_waitcnt lgkmcnt(0)", "wait")); em._retire(em.lgq, 0)
            for i in range(3): e(valu("v_writelane_b32", v_c, S(68 + 2 * i), i, rmw=True))
            e(salu("s_lshl_b32", S(74), S(2), 2)); e(salu("s_add_u32", S(74), S(74), s_w)); e(salu("s_lshl_b32", S(74), S(74), 4))
            e(salu("s_sub_u32", S(74), S(74), s_cnt)); e(salu("s_add_u32", S(74), S(74), 16)); e(salu("s_lshl_b32", S(74), S(74), 5))
            e(salu("s_add_u32", S(74), S(74), (1 << 20) + 16 * self.par))
            e(raw("s_mov_b64 exec, 7", "salu", wr=["exec"]))
            e(valu("v_lshlrev_b32", v_t, 2, v_lane))
            e(bstore(v_c, v_t, S_DMP, S(74), off=0))
            e(raw("s_mov_b64 exec, -1", "salu", wr=["exec"]))
            e(valu("v_lshlrev_b32", v_t, 7, v_lane))
        return []
v_tch, v_flag, v_fa = V(3), V(0), V(38)
xtok = []; lastdma = [None]
NITER = 14
s_po0, s_po1, s_poe = s_h0, s_h1, s_off
s_pfc = S(16, 2); s_kvt = S(18, 2); KVIT = int(os.environ.get('KVIT', '12'))
ROT = int(os.environ.get('ROT', '8'))
LQ = int(os.environ.get("LQ", "2"))
def plan_adds():
    nmem = {}
    for g in range(32):
        n = sum(1 if (f % 32 < 8 or 16 <= f % 32 < 24) else 2 for f in read_sched(g)) + (1 if (g >= 29 or g <= 4) else 0) + (1 if g in (13, 14) else 0)
        nmem[g] = n
    free = {}
    for g in range(32):
        n = nmem[g]; a1 = 2 if n > 2 else min(n, 1); a3 = n - a1
        if a1 < 2: a1 += 1
        else: a3 += 1
        if g == 0: a1 += 1
        free[(g, 1)] = max(0, 2 - a1); free[(g, 3)] = max(0, 2 - a3)
        free[(g, 4)] = 2 if ((g & 8) and (g & 1) and ((g & 7) >> 1) < LQ) else 0
    jobs = []
    for g in range(7, 39):
        for k in range(2):
            b, qb, kb, r = sm_val(g % 32, k)
            if qb < LQ: continue
            early = 4 * g + (1 if k == 0 else 3)
            idx = kb * 4 + r
            if idx < 4:
                gsrc = g + 1 if idx == 0 else (g + 2 if idx == 1 else (g + 8 if idx == 2 else g + 9))
                dead = 4 * gsrc
            else: dead = 4 * (g + 11)
            if b == 1: dead = min(dead, 4 * 30)
            jobs.append((dead, early, b, qb, idx))
    plan = {}
    for dead, early, b, qb, idx in sorted(jobs):
        for t in range(early, dead):
            g, q = t >> 2, t & 3
            for gp in ([1] if q == 1 else ([3, 4] if q == 3 else [])):
                if free[(g % 32, gp)] > 0:
                    free[(g % 32, gp)] -= 1; plan.setdefault((g % 32, gp), []).append((b, qb, idx, g)); break
            else: continue
            break
        else:
            g = early >> 2; plan.setdefault((g % 32, early & 3), []).append((b, qb, idx, g)); print("; add overflow", g, file=sys.stderr)
    return plan
ADDS = plan_adds() if LSUM == 3 else {}
def add_items(g, gp, fin, pro):
    out = []
    for b, qb, idx, gabs in ADDS.get((g, gp), []):
        if fin and b == 0 and g >= 23: continue
        if pro and b == 1: continue
        out.append(valu("v_add_f32", v_l1[qb], v_l1[qb], v_S[b][qb * 8 + idx]))
    return out
ftok = {}
def att_group(par, g, do_mfma=True, do_mem=True, do_cvt=True, last=False, pp=None, xmem=(), xsal=(), xvalu=None):
    ex, ad, cv = sm_items(g)
    mem = []
    sal = []
    fin = (pp == 3)
    d = None
    if do_mem:
        if fin: sched = ([g + 3] if g + 3 < 16 else []) + ([g + 11] if 13 <= g <= 20 else [])
        else: sched = read_sched(g)
        for f in sched:
            r = frag_reads(par, f); mem += r; ftok[f % 32] = r
        if pp is None or (g <= 4 and pp <= 2) or (g >= 29 and pp <= 1):
            sal, d = att_dma(par, g)
            if d is not None: mem.append(d)
    loop = do_mem and pp is None
    post0 = []
    if loop and par == 0:
        if g == 14: mem.append(I("global_load_dword %s, %s, %s" % (v_c, v_tch, s_pfc), "vmem", rd=v_tch.regs() + s_pfc.regs(), wr=[]))
        if g == 13: mem.append(I("buffer_load_ubyte %s, %s, %s, %s offen sc1" % (v_flag, v_fa, S_DBG, s_t2), "vmem", rd=S_DBG.regs() + s_t2.regs() + v_fa.regs(), wr=[]))
        if g == 8: sal = sal + [scmp("s_cmp_le_u32", s_cnt, ROT)]
        if g in (9, 10, 11, 12):
            q_ = [s_pfc] + s_pf
            sal = sal + [salu("s_cselect_b64", q_[g - 9], q_[g - 8], q_[g - 9], scc_w=False, scc_r=True)]
        if g == 0: post0 = [valu("v_cmp_eq_u32", "vcc", 1, v_flag)]
        if g == 2: sal = sal + [raw("s_cmp_eq_u32 vcc_lo, -1", "salu", rd=["vcc"], wr=["scc"])]
        if g == 3: sal = sal + [salu("s_cselect_b32", s_t0, s_cnt, -1, scc_w=False, scc_r=True)]
        if g == 4: sal = sal + [scmp("s_cmp_eq_u32", s_t0, ROT - 1)]
        if g == 5: sal = sal + [salu("s_cselect_b64", s_pf[3], s_pfH, s_pf[3], scc_w=False, scc_r=True)]
        if g == 15: sal = sal + [salu("s_cselect_b64", s_pf[3], S_K[(0, 2)], s_pf[3], scc_w=False, scc_r=True)]
        if g == 20: sal = sal + [scmp("s_cmp_eq_u32", s_cnt, KVIT + 1)]
        if g == 21: sal = sal + [salu("s_cselect_b64", s_pfc, s_kvt, S_K[(0, 2)], scc_w=False, scc_r=True)]
        if g == 13: sal = sal + [salu("s_cselect_b32", s_t2, s_fo, 256, scc_w=False, scc_r=True)]
        if g == 18: sal = sal + [scmp("s_cmp_eq_u32", s_cnt, s_sig)]
        if g == 19: sal = sal + [raw("s_cbranch_scc1 L_sigH_side", rd=["scc"]), Lbl("L_sigH_ret")]
    if loop and POI and par == 0 and do_mfma:
        if g == 22: sal = sal + [salu("s_add_u32", s_po1, s_po0, 65536)]
        if g == 16: mem.append(bstore(a_poi, v_lin, S_SP, s_po0, mod="sc1"))
        if g == 27: mem.append(bstore(a_poi, v_lin, S_SP, s_po1, mod="sc1"))
        if g == 23: sal = sal + [salu("s_add_u32", s_po0, s_po0, 1024)]
        if g == 24: sal = sal + [salu("s_min_u32", s_po0, s_po0, s_poe)]
    if do_mem and g == 4 and d is not None: lastdma[0] = d
    mem += list(xmem); sal = sal + list(xsal)
    gaps = [[], [], [], []]
    if g == 29 and do_mem and not fin:
        if STAMP == 2 and loop and do_mfma: gaps[0] += [LoopStamp(0, par)]
        gaps[0] += [Wait(lg0=True) if not do_mfma else (Wait(lg0=True, vm0=True) if (pp is None and par == 1) else Wait(lg0=True, vm=lastdma[0]))]
        if STAMP == 2 and loop and do_mfma: gaps[0] += [LoopStamp(1, par)]
        gaps[0] += [raw("s_barrier")]
        if STAMP == 2 and loop and do_mfma: gaps[0] += [LoopStamp(2, par)]
    gaps[0] += sal
    if g == 6 and do_mem and (pp is None or pp <= 1): gaps[0].append(salu("s_add_u32", s_kK, s_kK, 16384))
    if g == 7 and do_mem and (pp is None or pp <= 1): gaps[0].append(salu("s_add_u32", s_kV, s_kV, 16384))
    sm = not (fin and g >= 23)
    if fin and g > 23: do_cvt = False
    if fin and 16 <= g < 24: do_mfma = False
    if LSUM:
        if sm: gaps[0].append(ex[0])
        gaps[1] += mem[0:2] if len(mem) > 2 else mem[0:1]
        gaps[1] += post0
        nf = (g + 1) % 32
        if do_mem and not (fin and (16 <= nf < 24 or nf == 0)): gaps[2].append(Wait(lg=ftok.get(nf)))
        if last and g == 30: gaps[2].append(salu("s_sub_u32", s_cnt, s_cnt, 1))
        if sm: gaps[2].append(ex[1])
        gaps[3] += mem[2:] if len(mem) > 2 else mem[1:]
        pro = not do_mfma and not fin
        gaps[1] += add_items(g, 1, fin, pro)
        if do_cvt: gaps[1 if len([x for x in gaps[1] if x not in ()]) - len(add_items(g, 1, fin, pro)) < 2 else 3].append(cv)
        gaps[3] += add_items(g, 3, fin, pro)
    else:
      gaps[0] += mem[2:3]
      if sm: gaps[0].append(ex[0])
      if len(mem) > 0: gaps[1].append(mem[0])
      if len(mem) == 0 and do_cvt: gaps[1].append(cv)
      if sm: gaps[1].append(ad[0])
      gaps[1] += post0
      nf = (g + 1) % 32
      if do_mem and not (fin and (16 <= nf < 24 or nf == 0)): gaps[2].append(Wait(lg=ftok.get(nf)))
      if last and g == 30: gaps[2].append(salu("s_sub_u32", s_cnt, s_cnt, 1))
      gaps[2] += mem[3:]
      if sm: gaps[2].append(ex[1])
      if len(mem) > 1: gaps[3].append(mem[1])
      if len(mem) > 0 and do_cvt: gaps[3].append(cv)
      if sm: gaps[3].append(ad[1])
    for qb in range(4):
        if do_mfma:
            if g < 8 or 16 <= g < 24:
                b = 1 if g < 8 else 0
                kb, ds = (g >> 2) & 1, g & 3
                d = v_S[b][(qb * 8 + kb * 4, 4)]
                e(mfma(d, fr(g), Qf(qb, ds), v_negm[(qb * 4, 4)] if ds == 0 else d))
            else:
                b = 0 if g < 16 else 1
                qq = 3 - qb if (SNAKE and g & 1) else qb
                if PA: e(mfma(Of(g & 7, qq), v_S[b][(qq * 8, 4)], fr(g), Of(g & 7, qq)))
                else: e(mfma(Of(g & 7, qq), fr(g), v_S[b][(qq * 8, 4)], Of(g & 7, qq)))
        else:
            if (qb & 1) and not gaps[qb][:1] or ((qb & 1) and getattr(gaps[qb][0], "kind", "") in ("valu",)): e(nop(0))
        for it in gaps[qb]: e(it)
        if xvalu is not None:
            c = 2 - sum(1 for it in gaps[qb] if getattr(it, "kind", "") in ("lds", "vmem", "dma", "valu"))
            while xvalu and c > 0:
                it = xvalu.pop(0); e(it); c -= 2 if it.kind == "trans" else 1
    if LSUM and do_mfma and (g & 8):
        k = g & 7
        lq = None if (fin and g >= 24) else (k >> 1 if k & 1 else None)
        if lq is not None and (LSUM != 3 or lq < LQ): e(mfma(a_L[(4 * lq, 4)], a_ones, v_S[0 if g < 16 else 1][(lq * 8, 4)], a_L[(4 * lq, 4)]))
    if LSUM == 1 and fin and g == 23:
        e(nop(1))
        for lq in range(4): e(mfma(a_L[(4 * lq, 4)], a_ones, v_S[1][(lq * 8, 4)], a_L[(4 * lq, 4)]))
    if LSUM == 3: e(add_items(g, 4, fin, not do_mfma and not fin))

pr = [dsread("ds_read_b128", fr(f), v_ka[f & 3], (f >> 2) * 4096) for f in range(8)]
for r in pr: e(r)
zr = [valu("v_mov_b32", v_acc[i], 0) for i in range(2 * NZ0, 128)]
for f in range(8):
    em.wait(lg=pr[f])
    for qb in range(4):
        d = v_S[0][(qb * 8 + (f >> 2) * 4, 4)]
        e(mfma(d, fr(f), Qf(qb, f & 3), 0 if (f & 3) == 0 else d))
        if qb == 0 and HST == 0: e(hst[f])
        if qb == 2 and f == 0:
            e(raw("s_mov_b64 exec, 3", "salu", wr=["exec"])); e(bstore(v_acc[0], V(3), S_FLZ, s_myfl, mod="sc1")); e(raw("s_mov_b64 exec, -1", "salu", wr=["exec"]))
        for _ in range(2):
            if zr: e(zr.pop(0))
assert not zr
e(salu("s_mov_b32", s_kK, 16384 + 8192, scc_w=False)); e(salu("s_mov_b32", s_kV, 16384, scc_w=False)); e(salu("s_mov_b32", s_cnt, NITER, scc_w=False))
e(scmp("s_cmp_lg_u32", s_retry, 0)); e(raw("s_cbranch_scc1 L_have_max2", rd=["scc"]))
e(nop(3))
mx = [V(97 + 4 * i) for i in range(4)]; mt = [V(98 + 4 * i) for i in range(4)]
for qb in range(4): e(valu("v_max3_f32", mx[qb], v_S[0][qb * 8], v_S[0][qb * 8 + 1], v_S[0][qb * 8 + 2]))
for qb in range(4): e(valu("v_max3_f32", mx[qb], mx[qb], v_S[0][qb * 8 + 3], v_S[0][qb * 8 + 4]))
for qb in range(4): e(valu("v_max3_f32", mx[qb], mx[qb], v_S[0][qb * 8 + 5], v_S[0][qb * 8 + 6]))
for qb in range(4): e(valu("v_max_f32", mx[qb], mx[qb], v_S[0][qb * 8 + 7]))
red4("v_max_f32", mx, mt)
for qb in range(4):
    for k in range(4): e(valu("v_sub_f32", v_negm[qb * 4 + k], 0, mx[qb]))
em.label("L_have_max2")
e(nop(3))
for qb in range(4):
    for k in range(8): e(valu("v_add_f32", v_S[0][qb * 8 + k], v_S[0][qb * 8 + k], v_negm[qb * 4]))
for g in range(23, 29): att_group(1, g, do_mfma=False, do_mem=False, do_cvt=(g != 23))
stamp(); diag()
e(salu("s_and_b32", s_t0, s_qb, 3)); e(salu("s_sub_u32", s_t0, NITER - 1, s_t0))
e(scmp("s_cmp_eq_u32", s_w, 0)); e(salu("s_cselect_b32", s_sig, s_t0, -1, scc_w=False, scc_r=True))
e(scmp("s_cmp_eq_u32", s_retry, 0)); e(salu("s_cselect_b32", s_sig, s_sig, -1, scc_w=False, scc_r=True))
e(salu("s_mov_b64", s_pfc, S_K[(0, 2)], scc_w=False))
if POI:
    e(salu("s_lshl_b32", s_po0, s_w, 4)); e(salu("s_add_u32", s_po0, s_po0, s_g)); e(salu("s_lshl_b32", s_po0, s_po0, 13))
    e(salu("s_add_u32", s_poe, s_po0, 7168))
e(scmp("s_cmp_lt_u32", s_w, 2)); e(salu("s_cselect_b64", s_kvt, S_K[(0, 2)], S_V[(0, 2)], scc_w=False, scc_r=True))
e(salu("s_and_b32", s_t0, s_w, 1)); e(sx(s_t1)); e(salu("s_lshl_b32", s_t1, s_t1, 1)); e(salu("s_add_u32", s_t0, s_t0, s_t1)); e(salu("s_lshl_b32", s_t0, s_t0, 13))
if MAP2: e(salu("s_add_u32", s_t0, s_t0, 262144))
e(salu("s_add_u32", s_kvt[0], s_kvt[0], s_t0)); e(salu("s_addc_u32", s_kvt[1], s_kvt[1], 0, scc_r=True))
for g in range(29, 32): att_group(1, g, do_mfma=False, do_mem=True)
pro_end = len(em.out)
em.directive(".p2align 6")
em.label("L_att_loop")
def body():
    for par in range(2):
        for g in range(32): att_group(par, g, last=(par == 1))
b0 = len(em.out)
body()
b1 = len(em.out)
e(scmp("s_cmp_lg_u32", s_cnt, 0)); e(raw("s_cbranch_scc1 L_att_loop", rd=["scc"]))
b2 = len(em.out)
body()
second = em.out[b2:]; del em.out[b2:]
assert [i.text for i in second] == [i.text for i in em.out[b0:b1]], "loop not in steady state"
loop_probs = check_hazards(em.out[b1 - 40:b2] + second[:60], "loop-wrap")

em.label("L_tail")
v_ring2 = V(64, 32); v_B2 = V(96, 32)
QH = int(os.environ.get('QH', '0'))
XY = int(os.environ.get('XY', '0'))
NF1 = int(os.environ.get('NF1', '8'))
def hreg(kk, qb):
    if QH and 8 <= kk < 12: return A(16 * (kk - 8) + qb * 4, 4)
    if QH and kk >= 12: kk -= 4
    if kk >= 8: kk -= 8
    return A((64 + 16 * kk if kk < 4 else 160 + 16 * (kk - 4)) + qb * 4, 4)
def Facc(u, qb):
    t = u * 4 + qb
    return A(128 + 4 * t if t < 8 else 224 + 4 * (t - 8), 4)
POS2 = [5, 0, 2, 3, 4, 1]
NB = int(os.environ.get("NB", "4"))
def pos2(m): return 6 + m if m < NB else POS2[(m - NB) % 6]
def kind2(m):
    if m < NF1: return ("F", m)
    if m < NF1 + 32: return ("O", (m - NF1) & 15, (m - NF1) >> 4) if XY else ("O", (m - NF1) >> 1, (m - NF1) & 1)
    return ("F", m - 32)
def s2_dma(m):
    if m >= 46: return None
    p = pos2(m); k = kind2(m)
    if k[0] == "O":
        return [m0set(p), salu("s_mov_b32", s_off, k[1] * 32 * 1024 + 128 * k[2], scc_w=False)], [dma(v_dA[j], S_WO, s_off, j * 1024) for j in range(4)]
    return [m0set(p), salu("s_mov_b32", s_off, k[1] * 32 * 1024, scc_w=False)], [dma(v_dB[j], S_WD, s_off, j * 1024) for j in range(4)]
dtok2 = {}; s2pre = {}
for m in range(6 + NB):
    s2pre[m] = s2_dma(m); dtok2[m] = s2pre[m][1][3]
class Seq:
    kind = "vmem"
    def __init__(self, l): self.l = l
    def __call__(self): return self.l
hld = {}; htok = {}
for kk in range(14):
    hld[kk] = [bload(hreg(kk, qb), v_lin, S_HC, s_hl, off=qb * 1024, mod="sc1") for qb in range(4)]
    htok[kk] = hld[kk][3]
e(salu("s_mov_b32", s_cnt, 0, scc_w=False))
em.label("L_pollH")
e(valu("v_cmp_ne_u32", "vcc", 1, v_flag)); e(salu("s_mul_i32", s_hb, s_w, 14 * 4096, scc_w=False)); e(nop(1))
e(raw("s_cbranch_vccz L_pollH_done", rd=["vcc"]))
e(salu("s_add_u32", s_cnt, s_cnt, 1)); e(scmp("s_cmp_ge_u32", s_cnt, 50000)); e(raw("s_cbranch_scc1 L_pollH_done", rd=["scc"]))
e(raw("s_sleep 4")); e(raw("buffer_load_ubyte %s, %s, %s, %s offen sc1" % (v_flag, v_fa, S_DBG, s_fo))); e(raw("s_waitcnt vmcnt(0)")); e(raw("s_branch L_pollH"))
em.label("L_pollH_done")
xaddr(V(39), V(0))
assert LSUM == 1
xsl = [bload(V(40 + 2 * u, 2), V(39), S_XC, 0, off=32 * u, n=2) for u in range(4)]
NH0 = 32
hsl = sorted([(pp, g) for pp in range(3) for g in (5, 13, 14, 15, 16, 17, 18, 27, 28, 9, 11)])[:NH0]
if QH:
    hsl += [(3, g) for g in list(range(8, 16)) + list(range(24, 32))]; NH0 = 48
px = {}
for k, key in enumerate(hsl):
    px.setdefault(key, ([], []))
    px[key][0].append(hld[k >> 2][k & 3])
    if k & 3 == 0: px[key][1].append(salu("s_add_u32", s_hl, s_hb, (k >> 2) * 4096))
for u in range(4): px.setdefault((int(os.environ.get('XSP', '3')), int(os.environ.get('XSG0', '13')) + u), ([], []))[0].append(xsl[u])
wsl = [(pp, g) for pp in range(2) for g in (6, 7, 8, 10, 12, 21, 22, 23)][:4 * NB] + [(2, 29), (2, 30), (2, 31), (3, 0), (3, 1), (3, 2), (3, 3), (3, 4)] + ([(2, g) for g in (6, 7, 8, 10, 12, 21, 22, 23)] if QH else [(3, g) for g in range(5, 13)]) + [(3, g) for g in range(24, 32)]
for k, key in enumerate(wsl):
    px.setdefault(key, ([], []))
    m, j = k >> 2, k & 3
    px[key][0].append(s2pre[m][1][j])
    if j == 0: px[key][1].extend(s2pre[m][0])
px[(3, 24)][1][:0] = [Wait(lg0=True), raw("s_barrier")]
lt = [V(48 + i) for i in range(4)]
NPK = int(os.environ.get("NPK", "0"))
rinv = [V(52 + i) for i in range(4)]
vxf = V(40, 8)
save = em.out; em.out = []
for qb in range(4): e(valu("v_accvgpr_read_b32", lt[qb], a_L[4 * qb]))
e(valu("v_add_f32", V(60), lt[0], lt[1])); e(valu("v_add_f32", V(61), lt[2], lt[3])); e(valu("v_add_f32", V(60), V(60), V(61)))
for qb in range(4): e(valu("v_rcp_f32", rinv[qb], lt[qb]))
e(valu("v_cmp_nge_f32", "vcc", hx(f2u(2.0 ** 30)), V(60)))
v_tr2 = V(56, 4); v_ow = V(62)
for u in range(4): e(valu("v_subrev_u32", v_tr2[u], RING, v_tr[0][u]))
if PA:
    def rT(qb, r): return V(100 + 8 * qb + r)
    v_l8 = V(63)
    vcap = em.lgq, em.pend; em.lgq, em.pend = [], {}
    e(valu("v_and_b32", V(61), 48, v_lane))
    for qb in range(4):
        for r in range(4): e(I("ds_bpermute_b32 %s, %s, %s offset:%d" % (rT(qb, r), V(61), rinv[qb], 4 * r), "lds", rd=["v61"] + rinv[qb].regs(), wr=rT(qb, r).regs()))
    em.lgq, em.pend = vcap
    e(valu("v_lshrrev_b32", v_l8, 4, v_lane)); e(valu("v_bfe_u32", V(60), v_lane, 2, 2)); e(valu("v_xor_b32", V(60), V(60), v_l8))
    e(valu("v_and_b32", v_ow, 15, v_lane)); e(valu("v_lshlrev_b32", v_ow, 5, v_ow)); e(valu("v_lshl_add_u32", v_ow, V(60), 3, v_ow))
    e(valu("v_subrev_u32", v_ow, RING, v_ow)); e(valu("v_add_u32", v_ow, s_m0b, v_ow))
    e(valu("v_xor_b32", v_l8, v_l8, v_lane)); e(valu("v_lshlrev_b32", v_l8, 3, v_l8))
else:
    e(valu("v_subrev_u32", v_ow, RING, v_lin)); e(valu("v_add_u32", v_ow, s_m0b, v_ow))
lred = em.out; em.out = save
for pp in range(4):
    for g in range(32):
        if STAMP == 4 and g in (0, 16): stamp()
        xm, xs = px.get((pp, g), ([], []))
        att_group(pp & 1, g, pp=pp, xmem=xm, xsal=xs, xvalu=(lred if (pp == 3 and g >= (26 if LSUM else 24)) else None))
for it in lred: e(it)
diag(); stamp()
if DUMP == "o":
    e(nop(7))
    for db in range(8):
        for qb in range(4):
            for k in range(4): e(valu("v_mul_f32", Of(db, qb)[k], Of(db, qb)[k], rinv[qb]))
    dump_regs([v_acc[i] for i in range(128)])

vm_ = V(60); vma = V(61)
class Mark:
    kind = "salu"
    def __init__(self, t): self.t = t
    def __call__(self):
        e(raw("s_cbranch_vccz L_nomark", rd=["vcc"])); e(valu("v_mov_b32", self.t, hx(MARK))); em.label("L_nomark"); return []
norm = [valu("v_and_b32", vma, 3, v_lane), valu("v_lshlrev_b32", vma, 12, vma)]
ow = []; ncv = []; ow2 = []
assert not (PA and (NB == 0 or NPK or XY))
NPK_N = int(os.environ.get("NPK_N", "16")) if NPK else 0
for i in range(4):
    for qb in range(4):
        t = Of(2 * i, qb)
        for b in range(2):
            if i * 4 + qb < NPK_N:
                rp = V(52 + (qb & ~1), 2)
                for k in range(2): norm.append(valu("v_pk_mul_f32", Of(2 * i + b, qb)[(2 * k, 2)], Of(2 * i + b, qb)[(2 * k, 2)], rp, mod="op_sel:[0,%d] op_sel_hi:[1,%d]" % (qb & 1, qb & 1)))
            else:
                for k in range(4): norm.append(valu("v_mul_f32", Of(2 * i + b, qb)[k], Of(2 * i + b, qb)[k], rT(qb, k) if PA else rinv[qb]))
        for b in range(2):
            o = Of(2 * i + b, qb)
            for k in range(2): norm.append(valu("v_cvt_pk_bf16_f32", t[2 * b + k], o[2 * k], o[2 * k + 1]))
        ncv.append(norm[-1])
        if PA: ow2.append(dswrite("ds_write_b64", v_ow, t[(2, 2)], i * 16384 + qb * 1024 + 512))
        if i == 0 and qb == 0: norm.append(Mark(t[0]))
        ow.append(dswrite("ds_write_b64", v_ow, t[(0, 2)], i * 16384 + qb * 1024) if PA else dswrite("ds_write_b128", v_ow, t, i * 16384 + qb * 1024))
        if NB == 0: norm.append(ow[-1])
if NPK_N:
    cut = norm.index(ncv[NPK_N - 1]) + 1
    e(nop(4))
    for it in norm[:cut]: e(it)
    norm = norm[cut:]
class ChkNorm:
    def __init__(self, k): self.k = k
    def __call__(self):
        assert ncv[self.k].tok, "O write %d scheduled before its data" % self.k
        return [ow[self.k], ow2[self.k]] if PA else ow[self.k]
G0 = 4 * NF1
G1 = G0 + 128
mk = dsread("ds_read_b32", vm_, vma, 0)
class OBar:
    def __call__(self):
        assert all(w.tok for w in ow)
        em.wait(lg0=True); e(raw("s_barrier")); stamp(); e(mk); return []
class FbCheck:
    def __call__(self):
        em.wait(lg=mk)
        e(valu("v_cmp_eq_u32", "vcc", hx(MARK), vm_))
        e(scmp("s_cmp_lg_u32", s_retry, 0)); e(raw("s_cbranch_scc1 L_nofb", rd=["scc"]))
        e(nop(1))
        e(raw("s_cbranch_vccnz L_fallback", rd=["vcc"]))
        em.label("L_nofb")
        return []
def s2_acc(m, u, qb):
    k = kind2(m)
    if k[0] == "O": return v_acc[(((k[2] * 4 + u) * 4 + qb) * 4, 4)], k[1] == 0
    return Facc(u, qb), k[1] == 0
def s2_B(m, qb):
    k = kind2(m)
    if k[0] == "O": return v_B2[((k[1] & 1) * 16 + qb * 4, 4)]
    return hreg(k[1], qb)
def oread(s, qb):
    d = v_B2[((s & 1) * 16 + qb * 4, 4)]; of = (s & 3) * 16384 + (s >> 2) * 4096 + qb * 1024
    if PA: return [dsread("ds_read_b64_tr_b16", d[(2 * b, 2)], v_l8, of + 512 * b) for b in range(2)]
    return dsread("ds_read_b128", d, v_lin, of)
extra = {}
if NB:
    OW0 = int(os.environ.get("OW0", "11")); OWN = int(os.environ.get("OWN", "1"))
    for k in range(16):
        gg = OW0 + k // OWN
        assert (k >> 2) >= NB or gg > 4 * (k >> 2) + 3
        extra.setdefault(gg, []).append((2 + (k % OWN) % 2, ChkNorm(k), 1))
GB = G0 - int(os.environ.get("OBAR", "3"))
extra.setdefault(GB, []).append((0, OBar(), 0))
r0 = [oread(0, qb) for qb in range(4)]
for qb in range(4): extra.setdefault(GB + (qb >> 1), []).append((1 + (qb & 1) if qb < 2 else (qb & 1) * 2, r0[qb], 1))
extra.setdefault(G0 - 1, []).append((2, [Wait(lg=([x for y in r0 for x in y] if PA else r0)), FbCheck()], 0))
if XY:
    for mm in range(1, 32):
        rr = [oread(mm & 15, qb) for qb in range(4)]
        for qb in range(4): extra.setdefault(G0 + 4 * (mm - 1) + (qb >> 1), []).append((2 + (qb & 1), rr[qb], 1))
        extra.setdefault(G0 + 4 * mm - 1, []).append((2, Wait(lg=rr), 0))
else:
    for s_ in range(1, 16):
        for qb in range(4): extra.setdefault(G0 + 8 * (s_ - 1) + 1 + qb, []).append((2, oread(s_, qb), 1))
class LateWait:
    def __init__(self, f): self.f = f
    def __call__(self): return Wait(vm=self.f())
vxa = V(48); vpoll = V(49); vfw = V(50)
vx, vy, vz = V(59), V(57), V(58)
save = em.out; em.out = []
xaddr(vxa, vx)
e(valu("v_and_b32", V(51), 7, v_lane)); e(valu("v_lshlrev_b32", V(51), 2, V(51)))
e(valu("v_add_u32", vfw, s_m0b, v_lin)); e(salu("s_lshl_b32", s_t0, s_w, 14)); e(salu("s_add_u32", s_t0, s_t0, RING)); e(valu("v_add_u32", V(55), s_t0, v_lin))
e(salu("s_lshl_b32", s_t3, s_w, 4)); e(salu("s_add_u32", s_t3, s_t3, s_g)); e(salu("s_lshl_b32", s_t3, s_t3, 13))
early = em.out; em.out = save
extra.setdefault(-1, []).append((0, LateWait(lambda: htok[0]), 0))
for kk in range(1, 14):
    g_ = 4 * kk if kk < NF1 else 4 * (kk + 32)
    extra.setdefault(g_ - 1, []).append((2, LateWait(lambda kk=kk: htok[kk]), 0))
HG0 = int(os.environ.get("HG0", "5")); HGS = int(os.environ.get("HGS", "1"))
for k in range(NH0, 56):
    prev = (k >> 2) - (12 if QH else 8)
    gfree = (4 * prev if prev < NF1 else 4 * (prev + 32)) + 5 + (k & 3)
    extra.setdefault(max(gfree, HG0 + HGS * (k - NH0)), []).append((2, Seq([salu("s_add_u32", s_hl, s_hb, (k >> 2) * 4096), hld[k >> 2][k & 3]]), 1))
def sreg(ip, qb, odd=0): return v_acc[(((2 * ip + odd) * 4 + qb) * 4, 4)]
SPV_ = int(os.environ.get('SPV', '1'))
sp = []; spst = []; stq = []
s_oob = S(19)
if os.environ.get("NOST") or os.environ.get("NOLD"): e(salu("s_mov_b32", s_oob, 524288, scc_w=False))
NSI = int(os.environ.get("NSI", "11"))
s_so = [s_t1, s_cnt, s_h0, s_h1]
for k in range(4): sp.append(salu("s_add_u32", s_so[k], s_t3, (k >> 1) * 65536 + (k & 1) * 4096))
for ip in range(4):
    for qb in range(4):
        t = sreg(ip, qb)
        for b in range(2):
            o = sreg(ip, qb, b)
            for k in range(2): sp.append(valu("v_cvt_pk_bf16_f32", t[2 * b + k], o[2 * k], o[2 * k + 1]))
        st = bstore(t, v_lin, S_SP, s_so[(ip >> 1) * 2 + (qb >> 1)], off=(qb & 1) * 2048 + (ip & 1) * 1024, mod="sc1")
        if os.environ.get("NOST") and not (ip == 3 and qb == 3): st = bstore(t, v_lin, S_SP, s_oob, off=0)
        spst.append((st, sp[-1]))
class St:
    def __init__(self, k): self.k = k
    def __call__(self):
        assert spst[self.k][1].tok
        return spst[self.k][0]
STG = int(os.environ.get("STG", "2"))
if XY:
    GY = G0 + 64
    XS0 = int(os.environ.get("XS0", "4")); XSG = int(os.environ.get("XSG", "5")); XFL = int(os.environ.get("XFL", "60"))
    for k in range(8): extra.setdefault(GY + XS0 + XSG * k, []).append((1, St(k), 1))
    class XFlag:
        def __call__(self): em.wait(vm=spst[7][0]); return flag_store(0)
    extra.setdefault(GY + XFL, []).append((1, XFlag(), 1))
    NSI = int(os.environ.get("NSI", "16"))
    for k in range(8, NSI): extra.setdefault(G1 + 3 + STG * (k - 8), []).append((2, St(k), 1))
    hx_ = sp.index(spst[7][1]) + 1
    spf = [Fill(sp[:hx_], GY + 2, GY + 14), Fill(sp[hx_:], G1 + 2, G1 + 10)]
else:
    for k in range(NSI): extra.setdefault(G1 + 3 + STG * k, []).append((2, St(k), 1))
    spf = [Fill(sp, G1 + 2, G1 + int(os.environ.get("CVL", "16")))]
if POI:
    assert not XY and SPV_
    hint = [valu("v_mov_b32", V(57), 2), valu("v_lshlrev_b32", V(58), 7, v_lane), raw("s_mov_b64 exec, 3", "salu", wr=["exec"]),
            bstore(V(57), V(58), S_FL, s_myfl, mod="sc1"), raw("s_mov_b64 exec, -1", "salu", wr=["exec"])]
    extra.setdefault(G1 + int(os.environ.get("HINT", "4")), []).append((1, hint, 1))
FLG = int(os.environ.get("FLG", "0"))
if FLG:
    assert NSI == 16
    class YFlag:
        def __call__(self):
            em.wait(vm=spst[-1][0]); stamp()
            e(([] if XY else flag_store(0)) + flag_store(1))
            if MIDPOST == 5: static_loads()
            return []
    extra.setdefault(G1 + FLG, []).append((1, YFlag(), 1))
sti = [NSI]
def st_next(n=1):
    for _ in range(n):
        if sti[0] < 16: e(spst[sti[0]][0]); sti[0] += 1
def flag_store(h):
    return [valu("v_mov_b32", v_t, 1), raw("s_mov_b64 exec, 1", "salu", wr=["exec"]), bstore(v_t, None, S_FL, s_myfl, off=128 * h, mod="sc1"), raw("s_mov_b64 exec, -1", "salu", wr=["exec"])]
vpa = V(51)
s_done, s_new, s_sb = s_kK, s_kV, s_fo
SPV = int(os.environ.get("SPV", "1"))
def spl(gp, i): return sreg(gp >> 1, (gp & 1) * 2 + i, 0) if SPV else A((gp * 2 + i) * 4, 4)
def flag_load(): return bload(vpoll, vpa, S_FL, s_t2, n=1, mod="sc1")
lblc = [0]
def issue_new():
    k = lblc[0]; lblc[0] += 1
    e(valu("v_cmp_eq_u32", "vcc", 1, vpoll)); e(nop(1))
    e(raw("s_andn2_b32 %s, vcc_lo, %s" % (s_new, s_done), "salu", rd=["vcc", s_done], wr=[s_new, "scc"])); e(salu("s_and_b32", s_new, s_new, 255))
    e(raw("s_cbranch_scc0 L_in%d_end" % k, rd=["scc"]))
    e(salu("s_or_b32", s_done, s_done, s_new))
    for gp in range(8):
        e(scmp("s_bitcmp1_b32", s_new, gp)); e(raw("s_cbranch_scc0 L_in%d_%d" % (k, gp), rd=["scc"]))
        e(salu("s_add_u32", s_t0, s_sb, gp * 8192) if not os.environ.get("NOLD") else salu("s_mov_b32", s_t0, s_oob, scc_w=False))
        for i in range(2): e(raw(bload(spl(gp, i), v_lin, S_SPC, s_t0, off=i * 1024, mod="sc1").text))
        em.label("L_in%d_%d" % (k, gp))
    em.label("L_in%d_end" % k)
def static_loads():
    e(valu("v_cmp_eq_u32", "vcc", 1, vpoll)); e(nop(1))
    e(raw("s_and_b32 %s, vcc_lo, 255" % s_done, "salu", rd=["vcc"], wr=[s_done, "scc"]))
    for gp in range(8):
        e(salu("s_add_u32", s_t0, s_sb, gp * 8192)); e(scmp("s_bitcmp1_b32", s_done, gp)); e(salu("s_cselect_b32", s_t0, s_t0 if not os.environ.get("NOLD") else s_oob, 524288, scc_w=False, scc_r=True))
        for i in range(2): e(bload(spl(gp, i), v_lin, S_SPC, s_t0, off=i * 1024, mod="sc1"))
pinit = [salu("s_lshl_b32", s_t2, s_cq, 3), salu("s_add_u32", s_t2, s_t2, s_cg), salu("s_lshl_b32", s_t2, s_t2, 7), salu("s_mov_b32", s_done, 0, scc_w=False),
         salu("s_lshl_b32", s_sb, s_cg, 16), salu("s_lshl_b32", s_new, s_w, 11), salu("s_add_u32", s_sb, s_sb, s_new)]
extra.setdefault(G1 - 8, []).append((1, pinit, 0))
class MidPoll:
    def __init__(self, tok): self.tok = tok
    def __call__(self):
        em.wait(vm=self.tok); issue_new()
        e(salu("s_mov_b32", s_hb, s_done, scc_w=False))
        midmark.append(em.vm_total)
        return []
midmark = []
if int(os.environ.get("MID", "1")):
    pt = flag_load()
    MIDPOST = int(os.environ.get("MIDPOST", "2"))
    if MIDPOST == 4: extra.setdefault(184 - int(os.environ.get("MID4", "6")), []).append((2, pt, 1))
    else: extra.setdefault(G1 - int(os.environ.get("MID0", "-4")), []).append((2, pt, 1))
    if not MIDPOST: extra.setdefault(G1 + int(os.environ.get("MID1", "3")), []).append((0, MidPoll(pt), 0))
    elif MIDPOST != 4 and int(os.environ.get("MID0", "-4")) > 0: extra.setdefault(G1 + 2, []).append((0, Wait(vm=pt), 0))
    if MIDPOST == 3:
        extra[G1 + 2].pop(); extra[G1 - int(os.environ.get("MID0", "-4"))].pop()
if STAMP: extra.setdefault(G1, []).append((0, Stamp(), 0))
if STAMP == 5:
    for g_ in (0, 8, 16, 24): extra.setdefault(g_, []).append((0, Stamp(), 0))
class Diag:
    def __call__(self): diag(); return []
if DIAG: extra.setdefault(G1, []).append((0, Diag(), 0))
vs = [Fill(norm, 0, GB - (3 if NB else 1)), Fill(early, G0 + 2, G0 + 40)] + spf
run_stream(46, s2_dma, dtok2, s2_acc, s2_B, extra, vs, posf=pos2, ring=v_ring2, first_dma=6 + NB, tr2=v_tr2, early_dma=int(os.environ.get('ED2', '0')), w2=lambda g: int(os.environ.get('W2B', '1')) and g < 28)
stamp(); diag()
if MIDPOST == 4:
    em.wait(vm=pt); static_loads()
if MIDPOST == 3:
    st_next(16); fl3 = e(flag_load())
e(nop(5))
for qb in range(4):
    for u in range(4):
        if len(em.lgq) >= 12: em.wait(lg=em.lgq[-12])
        e(dswrite("ds_write_b128", vfw, Facc(u, qb), qb * 16384 + u * 1024))
    if qb & 1: st_next(int(os.environ.get("STW", "1")))
if MIDPOST == 6:
    st_next(16); em.wait(vm=spst[-1][0]); stamp(); e(flag_store(0) + flag_store(1)); static_loads()
v_fr = V(96, 16); vE = V(64, 16); vs_ = V(80, 16)
for k in range(8): e(valu("v_mov_b64", vs_[(2 * k, 2)], 0))
if MIDPOST == 3:
    em.wait(vm=fl3); stamp()
    if not XY: e(flag_store(0))
    e(flag_store(1))
    static_loads()
em.wait(lg0=True)
e(raw("s_barrier"))
def frr(ws_, u): return sreg(ws_, u, 1)
for ws_ in range(4):
    for u in range(4):
        if len(em.lgq) >= 14: em.wait(lg=em.lgq[-14])
        e(dsread("ds_read_b128", frr(ws_, u), V(55), ws_ * 4096 + u * 1024))
st_next()
if MIDPOST:
    st_next(16)
    if MIDPOST == 1: static_loads()
em.wait(lg0=True)
for u in range(4):
    for k in range(2):
        e(valu("v_pk_add_f32", frr(0, u)[(2 * k, 2)], frr(0, u)[(2 * k, 2)], frr(1, u)[(2 * k, 2)]))
        e(valu("v_pk_add_f32", frr(2, u)[(2 * k, 2)], frr(2, u)[(2 * k, 2)], frr(3, u)[(2 * k, 2)]))
for u in range(4):
    for k in range(2): e(valu("v_pk_add_f32", v_fr[(4 * u + 2 * k, 2)], frr(0, u)[(2 * k, 2)], frr(2, u)[(2 * k, 2)]))
for k in range(16): e(valu("v_mul_f32", vE[k], hx(f2u(-math.log2(math.e))), v_fr[k]))
st_next()
for k in range(16): e(valu("v_exp_f32", vE[k], vE[k]))
for k in range(16): e(valu("v_add_f32", vE[k], "1.0", vE[k]))
st_next()
for k in range(16): e(valu("v_rcp_f32", vE[k], vE[k]))
for k in range(16): e(valu("v_mul_f32", v_fr[k], v_fr[k], vE[k]))
for k in range(8):
    e(valu("v_lshlrev_b32", vE[2 * k], 16, vxf[k])); e(valu("v_and_b32", vE[2 * k + 1], "0xffff0000", vxf[k]))
st_next()
stamp()
accn = [0]
def acc_pieces(mask, sprinkle=False):
    n = accn[0]; accn[0] += 1
    for gp in range(8):
        e(scmp("s_bitcmp1_b32", mask, gp)); e(raw("s_cbranch_scc0 L_acc%d_%d" % (n, gp), rd=["scc"]))
        if not SPV:
            for k2 in range(8): e(valu("v_accvgpr_read_b32", V(120 + k2), spl(gp, k2 >> 2)[k2 & 3]))
        for k in range(8):
            src = spl(gp, k >> 2)[k & 3] if SPV else V(120 + k)
            e(valu("v_lshlrev_b32", V(112 + 2 * (k & 3)), 16, src)); e(valu("v_and_b32", V(113 + 2 * (k & 3)), "0xffff0000", src))
            e(valu("v_pk_add_f32", vs_[(2 * k, 2)], vs_[(2 * k, 2)], V(112 + 2 * (k & 3), 2)))
        em.label("L_acc%d_%d" % (n, gp))
        if sprinkle and gp & 1: st_next()
if midmark:
    n_y = em.vm_total - midmark[0]
    e(raw("s_waitcnt vmcnt(%d)" % n_y, "wait")); em._retire(em.vmq, n_y)
    acc_pieces(s_hb, sprinkle=True)
st_next(16)
if POI:
    s_want = s_new
    e(salu("s_mov_b32", s_cnt, 0, scc_w=False)); e(salu("s_mov_b32", s_t1, hx(POISON), scc_w=False))
    if MIDPOST == 2: em.wait(vm=pt)
    stamp()
    em.label("L_fin_loop")
    e(valu("v_cmp_eq_u32", "vcc", 2, vpoll)); e(nop(1))
    e(raw("s_andn2_b32 %s, vcc_lo, %s" % (s_want, s_done), "salu", rd=["vcc", s_done], wr=[s_want, "scc"])); e(salu("s_and_b32", s_want, s_want, 255))
    for gp in range(8):
        e(scmp("s_bitcmp1_b32", s_want, gp)); e(raw("s_cbranch_scc0 L_pl_%d" % gp, rd=["scc"]))
        e(salu("s_add_u32", s_t0, s_sb, gp * 8192))
        for i in range(2): e(raw(bload(spl(gp, i), v_lin, S_SPC, s_t0, off=i * 1024, mod="sc1").text))
        em.label("L_pl_%d" % gp)
    e(raw(flag_load().text))
    e(raw("s_waitcnt vmcnt(0)", "wait")); em._retire(em.vmq, 0)
    for gp in range(8):
        e(scmp("s_bitcmp1_b32", s_want, gp)); e(raw("s_cbranch_scc0 L_pa_%d" % gp, rd=["scc"]))
        for k in range(8): e(valu("v_cmpx_ne_u32", "vcc", s_t1, spl(gp, k >> 2)[k & 3], extra_wr=["exec"]))
        e(nop(1))
        e(raw("s_cmp_eq_u64 exec, -1", "salu", rd=["exec"], wr=["scc"])); e(raw("s_mov_b64 exec, -1", "salu", wr=["exec"]))
        e(raw("s_cbranch_scc0 L_pa_%d" % gp, rd=["scc"]))
        e(salu("s_bitset1_b32", s_done, gp, scc_w=False))
        for k in range(8):
            src = spl(gp, k >> 2)[k & 3]
            e(valu("v_lshlrev_b32", V(112 + 2 * (k & 3)), 16, src)); e(valu("v_and_b32", V(113 + 2 * (k & 3)), "0xffff0000", src))
            e(valu("v_pk_add_f32", vs_[(2 * k, 2)], vs_[(2 * k, 2)], V(112 + 2 * (k & 3), 2)))
        em.label("L_pa_%d" % gp)
    e(salu("s_add_u32", s_cnt, s_cnt, 1)); e(scmp("s_cmp_ge_u32", s_cnt, 50000)); e(raw("s_cbranch_scc1 L_fin_done", rd=["scc"]))
    e(scmp("s_cmp_lg_u32", s_done, 255)); e(raw("s_cbranch_scc1 L_fin_loop", rd=["scc"]))
else:
    if MIDPOST != 2: e(flag_load())
    if MIDPOST not in (3, 6) and not FLG:
        em.wait(vm=spst[-1][0]); stamp()
        if not XY: e(flag_store(0))
        e(flag_store(1))
    if MIDPOST == 2:
        static_loads()
        if int(os.environ.get("FSL", "0")): e(raw("s_sleep %d" % int(os.environ.get("FSL"))))
        e(flag_load())
    s_prev = s_hl
    e(salu("s_mov_b32", s_prev, s_done if MIDPOST else 0, scc_w=False)); e(salu("s_mov_b32", s_cnt, 0, scc_w=False))
    em.label("L_fin_loop")
    em.wait(vm0=True)
    issue_new()
    e(raw(flag_load().text))
    acc_pieces(s_prev)
    e(salu("s_mov_b32", s_prev, s_new, scc_w=False))
    e(salu("s_add_u32", s_cnt, s_cnt, 1)); e(scmp("s_cmp_ge_u32", s_cnt, 50000)); e(raw("s_cbranch_scc1 L_fin_done", rd=["scc"]))
    e(scmp("s_cmp_lg_u32", s_prev, 0)); e(raw("s_cbranch_scc1 L_fin_loop", rd=["scc"]))
    if int(os.environ.get("PSL", "0")): e(raw("s_sleep %d" % int(os.environ.get("PSL"))))
    e(scmp("s_cmp_lg_u32", s_done, 255)); e(raw("s_cbranch_scc1 L_fin_loop", rd=["scc"]))
em.label("L_fin_done")
if DUMP == "fin": dump_regs([vs_[i] for i in range(16)] + [v_fr[i] for i in range(16)])
for k in range(8): e(valu("v_pk_fma_f32", vE[(2 * k, 2)], vs_[(2 * k, 2)], v_fr[(2 * k, 2)], vE[(2 * k, 2)]))
for k in range(8): e(valu("v_cvt_pk_bf16_f32", vxf[k], vE[2 * k], vE[2 * k + 1]))
for u in range(4): e(bstore(vxf[(2 * u, 2)], vxa, S_OUT, 0, off=32 * u, mod=os.environ.get("OUTM", "")))
stamp(); diag_out()
em.label("L_end")
e(raw("s_endpgm"))
main_end = len(em.out)

em.lgq, em.vmq, em.pend = [], [], {}
em.label("L_sigH_side")
e(salu("s_lshl_b32", s_t1, s_qb, 3)); e(salu("s_add_u32", s_t1, s_t1, s_g))
e(raw("s_mov_b64 exec, 2", "salu", wr=["exec"]))
e(raw("buffer_store_byte %s, off, %s, %s sc1" % (v_fa, S_DBG, s_t1)))
e(raw("s_mov_b64 exec, -1", "salu", wr=["exec"]))
e(raw("s_branch L_sigH_ret"))
em.label("L_fallback")
e(raw("s_waitcnt vmcnt(0) lgkmcnt(0)")); em._retire(em.vmq, 0); em._retire(em.lgq, 0)
e(salu("s_mov_b32", s_retry, 1, scc_w=False))
e(salu("s_lshl_b32", s_t0, s_w, 6)); e(valu("v_add_u32", v_tid, s_t0, v_lane))
e(raw("s_barrier"))
e(raw("s_branch L_restart"))
em.label("L_maxpass")
e(raw("s_waitcnt vmcnt(0) lgkmcnt(0)"))
e(salu("s_mov_b32", s_retry, 2, scc_w=False))
e(salu("s_mov_b32", s_kK, 0, scc_w=False))
fm = [V(40 + i) for i in range(4)]
for i in range(4): e(valu("v_mov_b32", fm[i], "0xff800000"))
em.label("L_fb_loop")
e(raw("s_barrier"))
e(salu("s_add_u32", "m0", s_m0b, 4 * 16384)); e(nop(0))
for j in range(4): e(dma(v_kd[j], S_K, s_kK, j * 1024))
em.wait(vm0=True)
e(raw("s_barrier"))
for kb in range(4):
    rr = [e(dsread("ds_read_b128", fr(ds), v_ka[ds], kb * 4096)) for ds in range(4)]
    em.wait(lg0=True)
    for ds in range(4):
        for qb in range(4):
            d = v_S[0][(qb * 4, 4)]
            e(mfma(d, fr(ds), Qf(qb, ds), 0 if ds == 0 else d))
    e(nop(7))
    for qb in range(4):
        e(valu("v_max3_f32", fm[qb], fm[qb], v_S[0][qb * 4], v_S[0][qb * 4 + 1])); e(valu("v_max3_f32", fm[qb], fm[qb], v_S[0][qb * 4 + 2], v_S[0][qb * 4 + 3]))
    e(nop(2))
e(salu("s_add_u32", s_kK, s_kK, 16384)); e(scmp("s_cmp_lt_u32", s_kK, 524288)); e(raw("s_cbranch_scc1 L_fb_loop", rd=["scc"]))
red4("v_max_f32", fm, [V(44 + i) for i in range(4)])
for qb in range(4):
    for k in range(4): e(valu("v_sub_f32", v_negm[qb * 4 + k], 0, fm[qb]))
e(raw("s_barrier"))
for m in (64, 65, 66):
    sa, dm = s1_dma(m); e(sa)
    for d in dm: e(d)
e(raw("s_waitcnt vmcnt(0)"))
e(raw("s_branch L_att_start"))
em.label("L_code_end")
e(raw("s_endpgm"))

ALIGN8 = int(os.environ.get("ALIGN8", "0"))
import re as _re
def isize(i):
    t = i.text
    if i.kind == "label": return 0
    op = t.split()[0]
    if i.kind in ("mfma", "lds", "vmem", "dma") or op.startswith(("buffer_", "global_", "ds_", "s_load", "s_memtime", "s_memrealtime")): return 8
    lit = False
    for tok in _re.split(r"[ ,]+", t)[1:]:
        if _re.fullmatch(r"-?\d+", tok): lit |= not (-16 <= int(tok) <= 64)
        elif tok.startswith("0x"): lit |= not (int(tok, 16) <= 64)
        elif tok.startswith("L_") and not op.startswith(("s_cbranch", "s_branch")): lit = True
    if op.startswith("s_"):
        if op in ("s_waitcnt", "s_nop", "s_barrier", "s_sleep", "s_endpgm") or op.startswith(("s_cbranch", "s_branch")): return 4
        return 8 if lit else 4
    e32 = ("v_exp_f32", "v_rcp_f32", "v_sqrt_f32", "v_mov_b32", "v_mov_b64", "v_add_f32", "v_sub_f32", "v_mul_f32", "v_max_f32", "v_and_b32", "v_xor_b32", "v_lshlrev_b32", "v_lshrrev_b32",
           "v_add_u32", "v_sub_u32", "v_subrev_u32", "v_mul_u32_u24", "v_min_u32", "v_readfirstlane_b32", "v_permlane16_swap_b32", "v_permlane32_swap_b32")
    if op in e32 and "-v" not in t: return 8 if lit else 4
    if op.startswith("v_cmp") and t.split()[1].startswith("vcc"): return 8 if lit else 4
    return 8
WIDE = ("v_exp_f32", "v_rcp_f32", "v_add_f32", "v_mul_f32", "v_mov_b32", "v_sub_f32", "v_and_b32", "v_lshlrev_b32")
if ALIGN8:
    pos = 0; cand = None; nfix = 0; nmiss = 0
    for i in em.out:
        if i.kind == "label":
            if i.text.startswith(".p2align"): pos = 0; cand = None
            continue
        if i.kind == "mfma" and pos % 8:
            if cand is not None: cand.text = cand.text.replace(cand.text.split()[0], cand.text.split()[0] + "_e64", 1); pos += 4; nfix += 1
            else: nmiss += 1
        if i.kind == "mfma": cand = None
        sz = isize(i)
        if sz == 4 and i.text.split()[0] in WIDE: cand = i
        pos += sz
    print("; align8: widened %d, unfixed %d" % (nfix, nmiss), file=sys.stderr)
probs = check_hazards(em.out, "main") + loop_probs
for p in probs: print("; HAZARD", p, file=sys.stderr)
assert not probs

hdr = open(os.path.join(os.path.dirname(os.path.abspath(__file__)), "header.txt")).read()
print(hdr.rstrip())
print("; @launch grid=(256,1,1) block=(256,1,1) lds=163840")
print('.amdgcn_target "amdgcn-amd-amdhsa--gfx950"\n.text\n.globl %s\n.p2align 8\n.type %s,@function\n%s:' % (KN, KN, KN))
print(em.text())
print('.section .rodata,"a"\n.p2align 6\n.amdhsa_kernel %s' % KN)
print("  .amdhsa_next_free_vgpr 512\n  .amdhsa_next_free_sgpr 102\n  .amdhsa_accum_offset 256\n  .amdhsa_group_segment_fixed_size 0\n  .amdhsa_kernarg_size 96\n  .amdhsa_user_sgpr_count 2\n  .amdhsa_user_sgpr_kernarg_segment_ptr 1\n  .amdhsa_system_sgpr_workgroup_id_x 1\n.end_amdhsa_kernel")
```

```python
import sys, os, math, struct
from asmgen import *

KN = "recurrent_scan__gqa_block_cached__geglu_ffn__prompt_kernel"
DUMP = os.environ.get("DUMP", "")
STAMP = int(os.environ.get("STAMP", "0"))
GEL_END = int(os.environ.get("GEL_END", "247")); GEL_EXTRA = int(os.environ.get("GEL_EXTRA", "360"))

def f2u(x): return struct.unpack("<I", struct.pack("<f", x))[0]
def hx(x): return "0x%x" % (x & 0xffffffff)

S_X, S_K, S_V, S_WQ, S_WO, S_WG, S_WU, S_WD, S_OUT, S_DBG, S_H, S_SP = [S(4 + 4 * i, 4) for i in range(12)]
s_g, s_qb, s_w = S(52), S(53), S(54)
s_t0, s_t1, s_t2, s_t3 = S(55), S(56), S(57), S(58)
s_m0b = S(59)
s_off = S(60)
s_cnt = S(61)
s_kK, s_kV = S(62), S(63)
s_retry = S(64)
s_h0, s_h1 = S(65), S(66)
s_hl = S(67); s_hb = S(78); s_myfl = S(79); s_wdd = S(67); s_sig = S(78)
s_ka = S(68, 16); s_kb = S(84, 8)
s_pair = S(92, 2); s_pair2 = S(94, 2)
S_DMP = S(96, 4)
s_cq, s_cg = S(76), S(77)
S_HC = S(80, 4)
S_SPC = S(84, 4)
S_XC = S(88, 4)
s_st = S(68, 4)

v_tid, v_lane, v_lin, v_t = V(0), V(1), V(2), V(3)
v_tr = [V(4, 4), V(8, 4)]
v_dA, v_dB = V(12, 4), V(16, 4)
v_ka = V(20, 4); v_va = V(24, 8); v_kd = V(32, 4); v_vd = V(36, 2)
v_wl = V(38)
v_c = V(39)
v_l0, v_l1 = V(40, 4), V(44, 4)
v_lsave = V(16, 4)
v_negm = V(48, 16)
v_S = [V(64, 32), V(96, 32)]
v_acc = V(128, 128)
a_ring = A(128, 32)
a_B = A(160, 32)
a_Q = A(0, 64)
a_F = A(0, 64)
a_x = A(248, 8)
LSUM = int(os.environ.get('LSUM', '1'))
a_L = A(224, 16); a_ones = A(240, 4)
POI = int(os.environ.get('POI', '0'))
POISON = 0x7f817f81
a_poi = A(244, 4)

RING = 65536
MARK = 0x7fc17fc1
WS_SP = 8 << 20
WS_DUMP = 32 << 20
WS_FL = (7 << 20) + (512 << 10)
S_FLZ = S(4, 4)
S_FL = S(4, 4)

em = Em()
e = em.e

def srd(dst, lo, hi, size, off_s=None):
    if off_s is None:
        e(salu("s_mov_b32", dst[0], lo, scc_w=False)); e(salu("s_mov_b32", dst[1], hi, scc_w=False))
    else:
        e(salu("s_add_u32", dst[0], lo, off_s)); e(salu("s_addc_u32", dst[1], hi, 0, scc_r=True))
    e(salu("s_mov_b32", dst[2], hx(size), scc_w=False)); e(salu("s_mov_b32", dst[3], "0x20000", scc_w=False))

DIAG = int(os.environ.get("DIAG", "0"))
HC_OFF = 128
diag_regs = [S(100, 2), S(70, 2), S(72, 2), S(74, 2), S(96, 2), S(98, 2), S(68, 2)] if DIAG != 2 else [S(100, 2), S(96, 2), S(98, 2), S(94, 2), S(70, 2), S(72, 2), S(74, 2), S(68, 2)]
diag_n = [0]
def diag(which=1, last=False):
    if not DIAG or (which != DIAG and which != 0): return
    k = diag_n[0]; diag_n[0] += 1
    e(raw("%s %s" % ("s_memtime" if (os.environ.get("CYC") and not last) else "s_memrealtime", diag_regs[k]), "other", wr=[diag_regs[k]]))
    if k > 0: e(raw("s_waitcnt lgkmcnt(0)", "wait")); em._retire(em.lgq, 0)
AMP = os.environ.get("AMP")
def diag_out():
    if not DIAG: return
    diag(0, last=True)
    if AMP:
        k = int(AMP); last = diag_regs[diag_n[0] - 1]
        e(salu("s_sub_u32", s_t0, diag_regs[k][0], diag_regs[int(os.environ.get("AMP0", "0"))][0]))
        if os.environ.get("CYC"): e(salu("s_lshr_b32", s_t0, s_t0, 2))
        else: e(salu("s_lshl_b32", s_t0, s_t0, 2))
        em.label("L_amp")
        e(raw("s_memrealtime s[56:57]")); e(raw("s_waitcnt lgkmcnt(0)"))
        e(salu("s_sub_u32", s_t1, s_t1, last[0])); e(scmp("s_cmp_lt_u32", s_t1, s_t0)); e(raw("s_cbranch_scc1 L_amp", rd=["scc"]))
        return
    e(scmp("s_cmp_lg_u32", s_w, 0)); e(raw("s_cbranch_scc1 L_end", rd=["scc"]))
    e(raw("s_mov_b64 exec, 1", "salu", wr=["exec"]))
    e(salu("s_not_b32", s_t0, diag_regs[0][0]))
    for k in range(diag_n[0]):
        e(valu("v_mov_b32", V(4 + k), s_t0 if k == 0 else diag_regs[k][0]))
        e(raw("buffer_atomic_umax %s, off, %s, 0 offset:%d sc1" % (V(4 + k), S_DBG, 4 * k)))
    e(valu("v_mov_b32", V(12), diag_regs[0][0]))
    e(raw("buffer_atomic_umax %s, off, %s, 0 offset:%d sc1" % (V(12), S_DBG, 4 * 9)))
stamp_n = [0]
def stamp():
    if not STAMP: return
    k = stamp_n[0]; stamp_n[0] += 1
    e(raw("s_memtime %s" % S(68, 2), "other", wr=[S(68, 2)]))
    e(raw("s_memrealtime %s" % S(70, 2), "other", wr=[S(70, 2)]))
    e(raw("s_waitcnt lgkmcnt(0)", "wait")); em._retire(em.lgq, 0)
    for i in range(4): e(valu("v_writelane_b32", v_c, S(68 + i), i, rmw=True))
    e(salu("s_lshl_b32", S(72), S(2), 2)); e(salu("s_add_u32", S(72), S(72), s_w)); e(salu("s_lshl_b32", S(72), S(72), 9))
    e(salu("s_mov_b64", S(74, 2), "exec", scc_w=False)); e(raw("s_mov_b64 exec, 15", "salu", wr=["exec"]))
    e(valu("v_lshlrev_b32", v_t, 2, v_lane))
    e(bstore(v_c, v_t, S_DMP, S(72), off=k * 16))
    e(raw("s_mov_b64 exec, %s" % S(74, 2), "salu", wr=["exec"]))
    e(valu("v_lshlrev_b32", v_t, 7, v_lane))

def dump_regs(regs, finish=True):
    em.wait(lg0=True, vm0=True)
    e(nop(7)); e(nop(7))
    n = len(regs)
    e(salu("s_lshl_b32", s_t0, S(2), 2)); e(salu("s_add_u32", s_t0, s_t0, s_w)); e(salu("s_mul_i32", s_t0, s_t0, n * 256, scc_w=False))
    e(valu("v_lshlrev_b32", v_t, 2, v_lane))
    for k, r in enumerate(regs):
        e(bstore(r, v_t, S_DMP, s_t0, off=0))
        e(salu("s_add_u32", s_t0, s_t0, 256))
        if k % 32 == 31: em.wait(vm0=True)
    em.wait(vm0=True)
    if finish: e(raw("s_endpgm"))

def red4(op, x, tmp):
    for sw in ("v_permlane32_swap_b32", "v_permlane16_swap_b32"):
        for a, t in zip(x, tmp): e(valu("v_mov_b32", t, a))
        if len(x) < 3: e(nop(1))
        for a, t in zip(x, tmp): e(valu(sw, a, t))
        for a, t in zip(x, tmp): e(valu(op, a, a, t))

e(scmp("s_cmp_ge_u32", S(2), 256)); e(raw("s_cbranch_scc1 L_end", rd=["scc"]))
diag(0)
e(salu("s_mov_b32", s_retry, 0, scc_w=False))
em.label("L_restart")
i0 = e(I("s_load_dwordx16 %s, s[0:1], 0" % s_ka, "smem", wr=s_ka.regs()))
i1 = e(I("s_load_dwordx8 %s, s[0:1], 64" % s_kb, "smem", wr=s_kb.regs()))
vq, vG, vr, vc_, vx, vy, vz = [V(40 + i) for i in range(7)]
e(raw("s_getpc_b64 %s" % s_pair2, "salu", wr=[s_pair2]))
em.label("L_pc0")
CT0 = int(os.environ.get("CT0", "64"))
if CT0:
    e(valu("v_sub_u32", V(55), 255, v_tid)); e(valu("v_cmp_gt_u32", "vcc", CT0, V(55))); e(valu("v_lshlrev_b32", V(55), 7, V(55))); e(nop(0))
    e(raw("s_and_saveexec_b64 s[4:5], vcc", "salu", wr=["exec"], rd=["vcc"])); e(raw("s_cbranch_execz L_ct0"))
    e(raw("global_load_dword v55, v55, %s" % s_pair2))
    em.label("L_ct0")
    e(raw("s_mov_b64 exec, -1", "salu", wr=["exec"]))
MAP2 = int(os.environ.get("MAP2", "0"))
s_i = S(65)
if MAP2:
    e(salu("s_and_b32", s_g, S(2), 3)); e(salu("s_lshl_b32", s_g, s_g, 1)); e(salu("s_bfe_u32", s_t0, S(2), "0x10003")); e(salu("s_add_u32", s_g, s_g, s_t0))
    e(salu("s_bfe_u32", s_qb, S(2), "0x10002")); e(salu("s_lshl_b32", s_qb, s_qb, 4)); e(salu("s_lshr_b32", s_t0, S(2), 4)); e(salu("s_add_u32", s_qb, s_qb, s_t0))
else:
    e(salu("s_and_b32", s_g, S(2), 7)); e(salu("s_lshr_b32", s_qb, S(2), 3))
def sx(dst): return salu("s_lshr_b32", dst, S(2), 4 if MAP2 else 3)
TL = "-1" if MAP2 else "0xffffffff"
e(valu("v_and_b32", v_lane, 63, v_tid))
e(valu("v_lshrrev_b32", v_t, 6, v_tid))
e(valu("v_lshlrev_b32", v_lin, 4, v_lane))
e(valu("v_readfirstlane_b32", s_w, v_t))
e(valu("v_and_b32", vq, 15, v_lane)); e(valu("v_lshrrev_b32", vG, 4, v_lane))
vxo = V(47)
XD = int(os.environ.get("XD", "1"))
if XD == 2:
    vxq = V(60, 4); vxr = vxq
    for rg in range(4):
        e(valu("v_add_u32", vy, 4 * rg, vG)); e(valu("v_xor_b32", vz, vy, vq)); e(valu("v_lshl_add_u32", vy, v_t, 4, vy)); e(valu("v_lshlrev_b32", vy, 10, vy))
        e(valu("v_lshl_add_u32", vxq[rg], vz, 4, vy))
elif XD:
    vxo2 = V(50); vxr = [V(47), V(50)]
    e(valu("v_lshrrev_b32", vx, 3, v_lane)); e(valu("v_lshl_add_u32", vx, v_t, 4, vx)); e(valu("v_lshlrev_b32", vx, 10, vx))
    e(valu("v_and_b32", vy, 7, v_lane)); e(valu("v_xor_b32", vy, vy, vG)); e(valu("v_lshl_add_u32", vxo, vy, 4, vx))
    e(valu("v_xor_b32", vxo2, 64, vxo)); e(valu("v_add_u32", vxo2, 8192, vxo2))
else:
    e(valu("v_lshl_add_u32", vxo, v_t, 4, vq)); e(valu("v_lshlrev_b32", vxo, 10, vxo)); e(valu("v_lshl_add_u32", vxo, vG, 4, vxo))
vwg, vwq, vcw = V(52), V(53), V(54)
GM0 = int(os.environ.get("GM", "0"))
if GM0: e(salu("s_lshl_b32", s_t1, s_g, 7))
else: e(salu("s_mul_i32", s_t1, s_g, 448, scc_w=False)); e(salu("s_and_b32", s_t1, s_t1, hx(~127)))
e(salu("s_and_b32", s_t2, s_w, 1)); e(sx(s_t3)); e(salu("s_lshl_b32", s_t3, s_t3, 1)); e(salu("s_add_u32", s_t2, s_t2, s_t3))
e(salu("s_mul_i32", s_t2, s_t2, (16 if MAP2 else 8) * 3584, scc_w=False)); e(salu("s_add_u32", s_t1, s_t1, s_t2))
e(valu("v_lshrrev_b32", vx, 2, v_lane)); e(valu("v_mul_u32_u24", vx, 3584, vx)); e(valu("v_and_b32", vz, 3, v_lane)); e(valu("v_lshl_add_u32", vx, vz, 10 if GM0 else 7, vx))
e(valu("v_add_u32", vwg, s_t1, vx))
if GM0:
    e(salu("s_add_u32", s_t3, s_g, 1)); e(salu("s_lshr_b32", s_t3, s_t3, 1)); e(salu("s_lshl_b32", s_t3, s_t3, 7))
    e(valu("v_cmp_eq_u32", "vcc", 3, vz)); e(valu("v_subrev_u32", vx, s_t3, vwg)); e(nop(0)); e(valu("v_cndmask_b32", vwg, vwg, vx, "vcc"))
e(salu("s_lshr_b32", s_t2, S(2), 3)); e(salu("s_lshl_b32", s_t2, s_t2, 2)); e(salu("s_add_u32", s_t2, s_t2, s_w)); e(salu("s_lshl_b32", s_t3, s_t2, 8))
e(valu("v_lshlrev_b32", vcw, 7, v_lane)); e(valu("v_add_u32", vcw, s_t3, vcw))
e(salu("s_lshl_b32", s_t0, s_qb, 16))
em.wait(lg0=True)
diag(2)
srd(S_X, s_ka[0], s_ka[1], 65536, s_t0)
v_xp = V(64, 64)
XFIRST = int(os.environ.get("XFIRST", "12"))
if XD:
    s_xb = S(60)
    e(salu("s_lshl_b32", s_xb, s_w, 14))
    xo = [256 * (t >> 2) if XD == 2 else 128 * (t >> 1) for t in range(16)]
    xl = [dma(vxq[t & 3] if XD == 2 else (vxo2 if t & 1 else vxo), S_X, 0, off=xo[t]) for t in range(16)]
    def xissue(t): e(salu("s_add_u32", "m0", s_xb, t * 1024 - xo[t])); e(nop(0)); e(xl[t])
else:
    xl = [bload(v_xp[(4 * ks, 4)], vxo, S_X, 0, off=64 * ks) for ks in range(16)]
    def xissue(t): e(xl[t])
for ks in range(XFIRST): xissue(ks)
e(scmp("s_cmp_lt_u32", s_w, 2)); e(salu("s_cselect_b64", s_pair, s_ka[(12, 2)], s_ka[(14, 2)], scc_w=False, scc_r=True))
WT = int(os.environ.get("WT", "0"))
s_wgp = S(100, 2)
if WT:
    e(salu("s_lshl_b32", s_t3, S(2), 1)); e(salu("s_and_b32", s_t1, s_w, 1)); e(salu("s_add_u32", s_t3, s_t3, s_t1)); e(salu("s_mul_i32", s_t3, s_t3, 3584, scc_w=False))
    e(valu("v_lshlrev_b32", V(51), 7, v_lane)); e(valu("v_add_u32", V(51), s_t3, V(51)))
    e(raw("s_mov_b64 exec, 0xfffffff", "salu", wr=["exec"]))
    e(I("global_load_dword %s, %s, %s" % (V(48), V(51), s_pair), "vmem", rd=V(51).regs() + s_pair.regs(), wr=V(48).regs()))
    e(salu("s_mov_b64", s_wgp, s_pair, scc_w=False))
else:
    e(raw("s_mov_b64 exec, " + TL, "salu", wr=["exec"]))
    e(I("global_load_dword %s, %s, %s" % (V(48), vwg, s_pair), "vmem", rd=vwg.regs() + s_pair.regs(), wr=V(48).regs()))
e(raw("s_mov_b64 exec, 3", "salu", wr=["exec"]))
e(I("global_load_dword %s, %s, %s" % (V(49), vcw, s_pair2), "vmem", rd=vcw.regs() + s_pair2.regs(), wr=V(49).regs()))
e(raw("s_mov_b64 exec, -1", "salu", wr=["exec"]))
e(sx(s_t2)); e(salu("s_lshl_b32", s_t2, s_t2, 2)); e(salu("s_add_u32", s_t2, s_t2, s_w))
e(salu("s_lshl_b32", s_t2, s_t2, 16 if MAP2 else 15)); e(salu("s_lshl_b32", s_t3, s_g, 10)); e(salu("s_add_u32", s_t2, s_t2, s_t3))
e(valu("v_lshrrev_b32", vx, 3, v_lane)); e(valu("v_lshlrev_b32", vx, 13, vx)); e(valu("v_and_b32", vz, 7, v_lane)); e(valu("v_lshl_add_u32", vx, vz, 7, vx))
e(valu("v_add_u32", vwq, s_t2, vx))
e(salu("s_lshr_b32", s_t2, S(2), 6)); e(salu("s_and_b32", s_t3, S(2), 7)); e(salu("s_lshl_b32", s_t3, s_t3, 2)); e(salu("s_add_u32", s_t2, s_t2, s_t3))
e(salu("s_lshl_b32", s_t0, s_t2, 16))
srd(S_OUT, s_kb[2], s_kb[3], 65536, s_t0)
e(salu("s_lshl_b32", s_t1, s_g, 19))
srd(S_K, s_ka[2], s_ka[3], 524288, s_t1)
srd(S_V, s_ka[4], s_ka[5], 524288, s_t1)
srd(S_WO, s_ka[8], s_ka[9], 524288, s_t1)
srd(S_WQ, s_ka[6], s_ka[7], 4 << 20)
srd(S_WG, s_ka[12], s_ka[13], 1835008)
srd(S_WU, s_ka[14], s_ka[15], 1835008)
srd(S_WD, s_kb[0], s_kb[1], 1835008)
srd(S_DBG, s_kb[4], s_kb[5], 256)
e(salu("s_mul_i32", s_t1, s_qb, 229376, scc_w=False))
srd(S_H, s_kb[6], s_kb[7], 229376, s_t1)
e(salu("s_lshl_b32", s_t1, s_qb, 19)); e(salu("s_add_u32", s_t1, s_t1, hx(WS_SP)))
srd(S_SP, s_kb[6], s_kb[7], 524288, s_t1)
if DUMP or STAMP:
    e(salu("s_mov_b32", s_t1, hx(WS_DUMP), scc_w=False))
    srd(S_DMP, s_kb[6], s_kb[7], 200 << 20, s_t1)
e(salu("s_mov_b64", s_pair, S(90, 2), scc_w=False))
e(salu("s_lshl_b32", s_t0, s_t2, 16))
srd(S_XC, s_ka[0], s_ka[1], 65536, s_t0)
e(salu("s_mul_i32", s_t1, s_t2, 229376, scc_w=False))
srd(S_HC, s_pair[0], s_pair[1], 229376, s_t1)
e(salu("s_lshl_b32", s_t1, s_t2, 19)); e(salu("s_add_u32", s_t1, s_t1, hx(WS_SP)))
srd(S_SPC, s_pair[0], s_pair[1], 524288, s_t1)
e(salu("s_mov_b32", s_cq, s_t2, scc_w=False)); e(salu("s_bfe_u32", s_cg, S(2), "0x30003"))
e(salu("s_lshl_b32", s_myfl, s_qb, 2)); e(salu("s_add_u32", s_myfl, s_myfl, s_w)); e(salu("s_lshl_b32", s_myfl, s_myfl, 8))
e(salu("s_lshl_b32", s_t1, s_g, 2)); e(salu("s_add_u32", s_myfl, s_myfl, s_t1))
e(salu("s_lshl_b32", s_m0b, s_w, 12)); e(salu("s_add_u32", s_m0b, s_m0b, RING))
GM = int(os.environ.get("GM", "0"))
if GM:
    e(salu("s_lshl_b32", s_t1, s_w, 3)); e(salu("s_add_u32", s_t1, s_t1, s_g))
    e(salu("s_lshr_b32", s_t2, s_g, 1)); e(salu("s_add_u32", s_t2, s_t2, 24))
    e(scmp("s_cmp_eq_u32", s_w, 3)); e(salu("s_cselect_b32", s_t1, s_t2, s_t1, scc_w=False, scc_r=True))
else:
    e(salu("s_and_b32", s_t1, s_g, 1)); e(salu("s_lshl_b32", s_t1, s_t1, 2)); e(salu("s_add_u32", s_t1, s_t1, s_w))
    e(scmp("s_cmp_eq_u32", s_w, 3)); e(salu("s_cselect_b32", s_t1, 3, s_t1, scc_w=False, scc_r=True))
    e(salu("s_lshr_b32", s_t2, s_g, 1)); e(salu("s_mul_i32", s_t2, s_t2, 7, scc_w=False)); e(salu("s_add_u32", s_t1, s_t1, s_t2))
e(salu("s_lshl_b32", s_h0, s_t1, 13)); e(salu("s_add_u32", s_h1, s_h0, 4096))
e(salu("s_lshl_b32", s_t1, s_t1, 7))
e(salu("s_lshl_b32", s_t2, s_g, 2)); e(salu("s_add_u32", s_t2, s_t2, s_w)); e(salu("s_lshl_b32", s_t2, s_t2, 8))

def dma_voffs(dst, stride, colbase_s, perm):
    for j in range(4):
        e(valu("v_bfe_u32", vx, v_lane, 1, 2)); e(valu("v_bfe_u32", vy, v_lane, 4, 1))
        e(valu("v_xor_b32", vx, vx, vy))
        if j & 1: e(valu("v_xor_b32", vx, 2, vx))
        e(valu("v_and_b32", vy, 1, v_lane)); e(valu("v_lshlrev_b32", vy, 4, vy)); e(valu("v_lshl_add_u32", vx, vx, 5, vy))
        if not perm:
            e(valu("v_lshrrev_b32", vy, 3, v_lane)); rowadd = 8 * j
        else:
            e(valu("v_bfe_u32", vy, v_lane, 3, 2)); e(valu("v_bfe_u32", vz, v_lane, 5, 1)); e(valu("v_lshl_add_u32", vy, vz, 4, vy)); rowadd = 4 * j
        e(valu("v_mul_u32_u24", vy, stride, vy))
        e(valu("v_add3_u32", vx, vx, vy, colbase_s))
        e(valu("v_add_u32", dst[j], rowadd * stride - j * 1024, vx))

dma_voffs(v_dA, 3584, s_t1, False)
dma_voffs(v_dB, 8192, s_t2, False)

def m0set(p): return salu("s_add_u32", "m0", s_m0b, p * 16384) if p < 6 else salu("s_sub_u32", "m0", s_m0b, RING - (p - 6) * 16384)
def s1_dma(m):
    p = m % 6
    if m < 32:
        s, h = m >> 1, m & 1
        return [m0set(p), salu("s_mov_b32", s_off, s * 32 * 3584, scc_w=False)], [dma(v_dA[j], S_WU if h else S_WG, s_off, j * 1024) for j in range(4)]
    if m < 64:
        s, h = (m - 32) >> 1, m & 1
        return [m0set(p), salu("s_mov_b32", s_off, s * 32 * 8192 + 128 * h, scc_w=False)], [dma(v_dB[j], S_WQ, s_off, j * 1024) for j in range(4)]
    if m == 64:
        return [m0set(p), salu("s_mov_b32", s_off, 0, scc_w=False)], [dma(v_kd[j], S_K, s_off, j * 1024) for j in range(4)]
    if m == 65:
        return [m0set(p), salu("s_mov_b32", s_off, 8192, scc_w=False)], [dma(v_kd[j], S_K, s_off, j * 1024) for j in range(4)]
    if m == 66:
        return [m0set(p), salu("s_mov_b32", s_off, 0, scc_w=False)], [dma(v_vd[j & 1], S_V, s_off, j * 1024) for j in range(4)]
    return None
dtok = {}
ln_v = []
for m in range(6):
    sa, dm = s1_dma(m)
    ln_v.append(sa); ln_v += dm
    dtok[m] = dm[3]
def xaddr(dst, tmp):
    e(valu("v_and_b32", dst, 15, v_lane)); e(salu("s_lshl_b32", s_t0, s_w, 4)); e(valu("v_add_u32", dst, s_t0, dst)); e(valu("v_lshlrev_b32", dst, 10, dst))
    e(valu("v_lshrrev_b32", tmp, 4, v_lane)); e(valu("v_lshl_add_u32", dst, tmp, 3, dst)); e(salu("s_lshl_b32", s_t0, s_cg, 7)); e(valu("v_add_u32", dst, s_t0, dst))
WQT = int(os.environ.get("WQT", "0"))
wqt = [raw("s_mov_b64 exec, " + TL, "salu", wr=["exec"]), bload(V(46), vwq, S_WQ, 0, n=1), raw("s_mov_b64 exec, -1", "salu", wr=["exec"])]
WQC = int(os.environ.get("WQC", "2"))
wqs = wqt
if WQC:
    e(salu("s_lshl_b32", s_t3, S(2), 2)); e(salu("s_add_u32", s_t3, s_t3, s_w)); e(salu("s_lshl_b32", s_t3, s_t3, 12))
    e(valu("v_lshlrev_b32", V(54), 7, v_lane)); e(valu("v_add_u32", V(54), s_t3, V(54)))
    wqt = [raw("s_mov_b64 exec, 0xffffffff", "salu", wr=["exec"]), bload(V(49), V(54), S_WQ, 0, n=1), raw("s_mov_b64 exec, -1", "salu", wr=["exec"])]
if WT == 2:
    wgt = [raw("s_mov_b64 exec, " + TL, "salu", wr=["exec"]), I("global_load_dword %s, %s, %s" % (V(51), vwg, s_wgp), "vmem", rd=vwg.regs() + s_wgp.regs(), wr=V(51).regs()), raw("s_mov_b64 exec, -1", "salu", wr=["exec"])]
    ln_v.insert(int(os.environ.get("WTP", "0")), wgt)
if WQT == 0: ln_v.append(wqt)
LNPRE = int(os.environ.get("LNPRE", "0"))
lv = [0]
def ln_issue(n=1):
    k = 0
    while k < n and lv[0] < len(ln_v):
        it = ln_v[lv[0]]; lv[0] += 1
        e(it)
        if not isinstance(it, list): k += 1
e(valu("v_bfe_u32", vr, v_lane, 2, 2)); e(valu("v_and_b32", vc_, 3, v_lane))
e(valu("v_lshlrev_b32", vx, 10, vG)); e(valu("v_lshl_add_u32", vx, vr, 7, vx)); e(valu("v_lshl_add_u32", vx, vc_, 3, vx)); e(valu("v_add_u32", vx, s_m0b, vx))
e(valu("v_lshrrev_b32", vy, 1, vr)); e(valu("v_and_b32", vz, 1, vG)); e(valu("v_lshl_add_u32", vy, vz, 1, vy))
for u in range(4):
    e(valu("v_xor_b32", vz, u, vy)); e(valu("v_lshl_add_u32", v_tr[0][u], vz, 5, vx)); e(valu("v_add_u32", v_tr[1][u], 3 * 16384, v_tr[0][u]))
e(valu("v_xor_b32", vy, vG, vq))
for ds in range(4):
    e(valu("v_xor_b32", vz, 4 * ds, vy)); e(valu("v_lshlrev_b32", vz, 4, vz)); e(valu("v_lshl_add_u32", vz, vq, 8, vz)); e(valu("v_add_u32", v_ka[ds], RING + 4 * 16384, vz))
e(valu("v_lshl_add_u32", vx, vG, 2, vr)); e(valu("v_and_b32", vy, 7, vx)); e(valu("v_lshlrev_b32", vx, 8, vx)); e(valu("v_lshl_add_u32", vx, vc_, 3, vx)); e(valu("v_add_u32", vx, RING, vx))
for db in range(8):
    e(valu("v_xor_b32", vz, db, vy)); e(valu("v_lshl_add_u32", v_va[db], vz, 5, vx))
e(salu("s_lshl_b32", s_t1, s_w, 12))
e(valu("v_lshlrev_b32", vx, 8, vG)); e(valu("v_add_u32", vx, s_t1, vx))
for j in range(4):
    e(valu("v_add_u32", vy, 4 * j, vG)); e(valu("v_xor_b32", vy, vy, vq)); e(valu("v_lshl_add_u32", v_kd[j], vy, 4, vx))
e(valu("v_and_b32", vz, 1, v_lane)); e(valu("v_lshl_add_u32", vx, vz, 4, vx))
for j in range(2):
    e(valu("v_add_u32", vy, 4 * j, vG)); e(valu("v_lshrrev_b32", vz, 1, vq)); e(valu("v_xor_b32", vy, vy, vz)); e(valu("v_lshl_add_u32", v_vd[j], vy, 5, vx))
e(salu("s_lshl_b32", s_t1, s_w, 14)); e(valu("v_add_u32", v_wl, s_t1, v_lin))
for ks in range(XFIRST, 16): xissue(ks)
if XD == 2:
    e(valu("v_xor_b32", vx, vq, vG)); e(valu("v_lshlrev_b32", vy, 8, vq)); e(valu("v_add_u32", vy, s_xb, vy))
    for b_ in range(4): e(valu("v_xor_b32", vz, 4 * b_, vx)); e(valu("v_lshl_add_u32", V(48 + 0) if False else vxr[b_], vz, 4, vy))
elif XD:
    e(valu("v_lshrrev_b32", vx, 1, vq)); e(valu("v_xor_b32", vx, vx, vG)); e(valu("v_lshlrev_b32", vx, 4, vx))
    e(valu("v_lshl_add_u32", vx, vq, 7, vx)); e(valu("v_add_u32", vxr[0], s_xb, vx)); e(valu("v_xor_b32", vxr[1], 64, vxr[0]))
e(salu("s_mov_b32", s_t1, hx(WS_FL), scc_w=False))
srd(S_FL, s_pair[0], s_pair[1], 32768, s_t1)
if WQT == 1: e(wqt)
ln_issue(LNPRE)
stamp()

v_f = V(128, 128)
LNM = int(os.environ.get("LNM", "1"))
vsum, vtmp, vmb, vdm = V(40), V(41), V(42), V(43)
vneg = V(56, 2)
diag(2)
if LNM:
    d1, d2 = V(56, 4), (V(60, 4) if XD != 2 else A(196, 4))
    xr = {}
    def xread(t2):
        em.wait(vm=xl[2 * t2 + 1])
        for ks in (2 * t2, 2 * t2 + 1): xr[ks] = e(dsread("ds_read_b128", v_xp[(4 * ks, 4)], vxr[ks & 1], (ks >> 1) * 2048))
    e(valu("v_mov_b32", vtmp, "0x3f803f80"))
    for i in range(4): e(valu("v_accvgpr_write_b32", a_ones[i], vtmp))
    e(valu("v_and_b32", vtmp, 3, v_lane))
    for r in range(1, 4): e(valu("v_cmp_eq_u32", S(68 + 2 * r, 2), r, vtmp))
    e(valu("v_bfe_u32", vtmp, v_lane, 2, 2)); e(valu("v_lshrrev_b32", vmb, 4, v_lane)); e(valu("v_cmp_eq_u32", S(68, 2), vtmp, vmb))
    LND = int(os.environ.get("LND", "4"))
    def xread4(sg):
        em.wait(vm=xl[4 * sg + 3])
        for ks in range(4 * sg, 4 * sg + 4): xr[ks] = e(dsread("ds_read_b128", v_xp[(4 * ks, 4)], vxr[ks & 3], sg * 4096))
    if XD == 1: xread(0)
    for ks in range(16):
        if XD == 2:
            if ks % 4 == 0: xread4(ks // 4)
            em.wait(lg=xr[ks])
        elif XD:
            if ks % 2 == 0 and ks + 2 < 16: xread(ks // 2 + 1)
            em.wait(lg=xr[ks])
        else: em.wait(vm=xl[ks])
        if ks == 15: diag(2)
        x4 = v_xp[(4 * ks, 4)]
        e(mfma(d1, a_ones, x4, 0 if ks == 0 else d1))
        if ks >= LND: ln_issue(1)
        for k in range(2):
            p = 4 * ks + k
            e(valu("v_lshlrev_b32", v_f[2 * p], 16, v_xp[p])); e(valu("v_and_b32", v_f[2 * p + 1], "0xffff0000", v_xp[p]))
        e(mfma(d2, x4, x4, 0 if ks == 0 else d2))
        for k in range(2, 4):
            p = 4 * ks + k
            e(valu("v_lshlrev_b32", v_f[2 * p], 16, v_xp[p])); e(valu("v_and_b32", v_f[2 * p + 1], "0xffff0000", v_xp[p]))
    if STAMP == 3: stamp()
    ln_issue(int(os.environ.get("LN_FIRST", "0")))
    diag(2)
    if STAMP == 3: stamp()
    e(nop(2))
    if XD == 2:
        e(nop(2))
        for r in range(4): e(valu("v_accvgpr_read_b32", V(60 + r), d2[r]))
        d2 = V(60, 4)
    e(valu("v_mul_f32", vsum, hx(f2u(1.0 / 512)), d1[0]))
    e(valu("v_cvt_pk_bf16_f32", vmb, vsum, vsum)); e(valu("v_lshlrev_b32", vmb, 16, vmb))
    e(valu("v_mov_b32", vdm, vsum))
    for r in range(1, 4): e(valu("v_cndmask_b32", d2[0], d2[0], d2[r], S(68 + 2 * r, 2)))
    e(valu("v_cndmask_b32", vsum, 0, d2[0], S(68, 2)))
    red4("v_add_f32", [vsum], [vtmp])
    e(valu("v_mul_f32", vsum, hx(f2u(1.0 / 512)), vsum))
    e(valu("v_fma_f32", vsum, "-" + str(vdm), vdm, vsum, extra_rd=vdm.regs()))
    if STAMP == 3: stamp()
else:
    acc = [V(56, 2), V(58, 2), V(60, 2), V(62, 2)]
    for ks in range(16):
        em.wait(vm=xl[ks])
        if ks == 15: diag(2)
        for k in range(4):
            p = 4 * ks + k
            e(valu("v_lshlrev_b32", v_f[2 * p], 16, v_xp[p])); e(valu("v_and_b32", v_f[2 * p + 1], "0xffff0000", v_xp[p]))
        for k in range(4):
            p = 4 * ks + k
            if ks == 0: e(valu("v_mov_b64", acc[k], v_f[(2 * p, 2)]))
            else: e(valu("v_pk_add_f32", acc[k], acc[k], v_f[(2 * p, 2)]))
    if STAMP == 3: stamp()
    ln_issue(int(os.environ.get("LN_FIRST", "12")))
    diag(2)
    if STAMP == 3: stamp()
    e(valu("v_pk_add_f32", acc[0], acc[0], acc[1])); e(valu("v_pk_add_f32", acc[2], acc[2], acc[3])); e(valu("v_pk_add_f32", acc[0], acc[0], acc[2]))
    e(valu("v_add_f32", vsum, acc[0][0], acc[0][1]))
    red4("v_add_f32", [vsum], [vtmp])
    e(valu("v_mul_f32", vsum, hx(f2u(1.0 / 512)), vsum))
    e(valu("v_cvt_pk_bf16_f32", vmb, vsum, vsum)); e(valu("v_lshlrev_b32", vmb, 16, vmb))
    e(valu("v_sub_f32", vdm, vsum, vmb))
    e(valu("v_sub_f32", vneg[0], 0, vmb))
    acc2 = [V(58, 2), V(60, 2), V(62, 2)]
    for p in range(64):
        e(valu("v_pk_add_f32", v_f[(2 * p, 2)], v_f[(2 * p, 2)], vneg, mod="op_sel_hi:[1,0]"))
    for p in range(64):
        a_ = acc2[p % 3]
        if p < 3: e(valu("v_pk_mul_f32", a_, v_f[(2 * p, 2)], v_f[(2 * p, 2)]))
        else: e(valu("v_pk_fma_f32", a_, v_f[(2 * p, 2)], v_f[(2 * p, 2)], a_))
    if STAMP == 3: stamp()
    e(valu("v_pk_add_f32", acc2[0], acc2[0], acc2[1])); e(valu("v_pk_add_f32", acc2[0], acc2[0], acc2[2]))
    e(valu("v_add_f32", vsum, acc2[0][0], acc2[0][1]))
    red4("v_add_f32", [vsum], [vtmp])
    e(valu("v_mul_f32", vsum, hx(f2u(1.0 / 512)), vsum))
    e(valu("v_fma_f32", vsum, "-" + str(vdm), vdm, vsum, extra_rd=vdm.regs()))
e(valu("v_max_f32", vsum, 0, vsum))
e(valu("v_cvt_pk_bf16_f32", vsum, vsum, vsum)); e(valu("v_lshlrev_b32", vsum, 16, vsum))
e(valu("v_add_f32", vsum, hx(f2u(1e-5)), vsum))
e(valu("v_cvt_pk_bf16_f32", vsum, vsum, vsum)); e(valu("v_lshlrev_b32", vsum, 16, vsum))
e(valu("v_sqrt_f32", vsum, vsum)); e(nop(0))
e(valu("v_cvt_pk_bf16_f32", vsum, vsum, vsum)); e(valu("v_lshlrev_b32", vsum, 16, vsum))
e(valu("v_rcp_f32", vneg[0], vsum)); e(nop(0))
if LNM: e(valu("v_mul_f32", vneg[1], "-" + str(vmb), vneg[0], mod="", extra_rd=vmb.regs()))
for ks in range(16):
    for k in range(4):
        p = 4 * ks + k
        if LNM: e(valu("v_pk_fma_f32", v_f[(2 * p, 2)], v_f[(2 * p, 2)], vneg, vneg, mod="op_sel:[0,0,1] op_sel_hi:[1,0,1]"))
        else: e(valu("v_pk_mul_f32", v_f[(2 * p, 2)], v_f[(2 * p, 2)], vneg, mod="op_sel_hi:[1,0]"))
    for k in range(4):
        p = 4 * ks + k
        e(valu("v_cvt_pk_bf16_f32", v_xp[p], v_f[2 * p], v_f[2 * p + 1]))
    e(dswrite("ds_write_b128", v_wl, v_xp[(4 * ks, 4)], ks * 1024))
ln_issue(int(os.environ.get("LN_LAST", "100")))
if STAMP == 3: stamp()
if DUMP == "ln": dump_regs([v_xp[i] for i in range(64)])
em.wait(lg0=True)
e(raw("s_barrier"))
stamp(); diag(); diag(2); diag(3)

PA = int(os.environ.get("PA", "1"))
SNAKE = int(os.environ.get("SNAKE", "1"))
def cost_of(it):
    k = getattr(it, "kind", "")
    return 2 if k == "trans" else (0 if k in ("salu", "nop") else 1)
class Fill:
    def __init__(self, items, start, end, spread=False): self.items, self.start, self.end, self.spread = list(items), start, end, spread; self.i = 0
    def done(self): return self.i == len(self.items)
def run_stream(NH, dmaf, dtok, accf, Bf, extra, fills, LOOK=6, nq=4, posf=lambda m: m % 6, ring=a_ring, first_dma=6, tr2=None, early_dma=False, w2=lambda g: False):
    NG = 4 * NH
    rtok = {}
    def reads(g):
        m, u = g >> 2, g & 3
        p = posf(m)
        d = ring[((g % 8) * 4, 4)]
        ar, of = (v_tr[p // 3][u], (p % 3) * 16384) if p < 6 else (tr2[u], (p - 6) * 16384)
        r = [dsread("ds_read_b64_tr_b16", d[(2 * h2, 2)], ar, of + h2 * 512) for h2 in range(2)]
        rtok[g] = r[1]
        return r
    assert all(k < NG for k in extra), "extra item scheduled past the end of the stream"
    pre = [reads(g) for g in range(3)]
    G, C = [], []
    cur = None
    for g in range(NG):
        gaps = [[], [], [], []]; cap = [2, 2, 2, 2]
        if g + 3 < NG:
            if (g + 3) & 3 == 0 and not (g > 0 and w2(g - 1)): gaps[0].append(LateW(dtok, (g + 3) >> 2))
            r = reads(g + 3); gaps[0].append(r[0]); gaps[1].append(r[1]); cap[0] -= 1; cap[1] -= 1
        md, j = (g + 4 * LOOK - 4) >> 2, (g + 4 * LOOK - 4) & 3
        if early_dma:
            md, j = (g + 4 * LOOK - 3) >> 2, (g + 4 * LOOK - 3) & 3
            if md >= first_dma and j < 2:
                if j == 0: cur = dmaf(md)
                if cur is not None:
                    if j == 0: gaps[1] += cur[0]
                    gaps[2].append(cur[1][2 * j]); gaps[3].append(cur[1][2 * j + 1]); cap[2] -= 1; cap[3] -= 1
                    if j == 1: dtok[md] = cur[1][3]
        elif md >= first_dma:
            if j == 0: cur = dmaf(md)
            if cur is not None:
                if j == 0: gaps[2] += cur[0]
                for it in cur[1][j::4]: gaps[3].append(it); cap[3] -= 1
                if j == 3: dtok[md] = cur[1][3]
        for (gp, it, cost) in extra.get(g, []):
            gaps[gp].append(it); cap[gp] -= cost
        if w2(g):
            if g & 1 == 0 and g + 1 < NG:
                gaps[3].insert(0, LateW2(rtok, [x for x in (g + 1, g + 2) if x < NG], dtok, (g + 4) >> 2 if ((g + 4) & 3 == 0 and g + 4 < NG) else None))
        elif g + 1 < NG: gaps[3].insert(0, Wait(lg=rtok[g + 1]))
        G.append(gaps); C.append(cap)
    B = {}
    for f in fills:
        idx = [(g, q) for g in range(f.start, f.end) for q in range(4)]
        caps = [max(0, C[g][q]) for g, q in idx]
        W = sum(cost_of(it) for it in f.items); T = sum(caps); n = len(idx)
        acc = 0.0; cum = 0
        for k, key in enumerate(idx):
            if W >= T: acc += caps[k] + (W - T) / n
            elif f.spread: acc += caps[k] * W / T
            else: acc += caps[k]
            B[key] = (f, acc)
    em.wait(vm=dtok[0])
    for r in pre: e(r)
    for p_ in extra.get(-1, []): e(p_[1])
    em.wait(lg0=True)
    used = {id(f): 0 for f in fills}
    for g in range(NG):
        m, u = g >> 2, g & 3
        d = ring[((g % 8) * 4, 4)]
        for qb in range(nq):
            qq = 3 - qb if (SNAKE and g & 1) else qb
            ac, first = accf(m, u, qq)
            e(mfma(ac, d, Bf(m, qq), 0 if first else ac))
            ent = B.get((g, qb))
            sawv = False
            if ent:
                f, lim = ent
                while not f.done() and getattr(f.items[f.i], "kind", "") in ("lds", "vmem", "salu") and used[id(f)] + cost_of(f.items[f.i]) <= lim + 0.5:
                    it = f.items[f.i]; f.i += 1; used[id(f)] += cost_of(it); e(it)
            for it in G[g][qb]: e(it)
            if ent:
                f, lim = ent
                lastgap = (g == f.end - 1 and qb == 3)
                while not f.done():
                    it = f.items[f.i]; c = cost_of(it)
                    if not lastgap:
                        if used[id(f)] + c > lim + 0.5: break
                        if sawv and getattr(it, "kind", "") in ("lds", "vmem"): break
                    f.i += 1; used[id(f)] += c; e(it)
                    if getattr(it, "kind", "") in ("valu", "trans"): sawv = True
    assert all(f.done() for f in fills)
class LateW2:
    def __init__(self, r, fl, d, k): self.r, self.fl, self.d, self.k = r, fl, d, k
    def __call__(self): return Wait(lg=[self.r[f] for f in self.fl], vm=(self.d[self.k] if self.k is not None else None))
class LateW:
    def __init__(self, d, k): self.d, self.k = d, k
    def __call__(self): return Wait(vm=self.d[self.k])

def s1_acc(m, u, qb):
    h = m & 1
    idx = ((h * 4 + u) * 4 + qb) * 4
    if m < 32: return A(idx, 4), m < 2
    return v_acc[(idx, 4)], m < 34
def s1_B(m, qb): return a_B[(((m >> 1) & 1) * 16 + qb * 4, 4)]
extra = {}
btok = {}
W3Z = int(os.environ.get("W3Z", "1"))
v_lz = [V(50), V(51)]
def bread(s, qb): return dsread("ds_read_b128", a_B[((s & 1) * 16 + qb * 4, 4)], v_lz[qb >> 1] if (W3Z and s < 16) else v_lin, (qb * 16 + (s % 16)) * 1024)
if W3Z:
    s_hz = [S(84 - 16 + 0), S(69)]
    for h in range(2):
        e(salu("s_and_b32", s_t0, s_g, 1)); e(salu("s_lshl_b32", s_t0, s_t0, 2)); e(salu("s_add_u32", s_t0, s_t0, s_w))
        e(scmp("s_cmp_eq_u32", s_t0, 7 if h == 0 else 3)); e(salu("s_cselect_b32", s_hz[h], "0x40000", 0, scc_w=False, scc_r=True))
        e(valu("v_add_u32", v_lz[h], s_hz[h], v_lin))
extra[-1] = [(0, bread(0, qb), 1) for qb in range(4)]
for s in range(1, 32):
    for qb in range(4):
        extra.setdefault(8 * (s - 1) + 1 + qb, []).append((2, bread(s, qb), 1))
gi = 0; gj = 0; pend_s = []
for it in ln_v[lv[0]:]:
    if isinstance(it, list) and all(x.kind == "salu" for x in it): pend_s = it; continue
    if not isinstance(it, list) and it.kind == "dma":
        assert gi < 12
        extra.setdefault(gi // 3, []).append((gi % 3, [pend_s, it] if pend_s else it, 1)); pend_s = []
        gi += 1
    else:
        extra.setdefault(8 + 2 * gj, []).append((1, it, 1)); gj += 1
if WQC == 2: extra.setdefault(int(os.environ.get("WQG", "40")), []).append((1, wqs, 1))
C0 = -2.0 * math.sqrt(2.0 / math.pi) * math.log2(math.e); C1 = C0 * 0.044715
vc0, vc1 = V(40), V(41)
gel = [valu("v_mov_b32", vc0, hx(f2u(C0))), valu("v_mov_b32", vc1, hx(f2u(C1)))]
hst = []
tb = 0
for i in range(2):
    for qb in range(4):
        pk = V(96 + 4 * tb, 4); tb += 1
        for b in range(2):
            u = 2 * i + b
            T = [V(64 + 16 * b + k) for k in range(16)]
            G_, U_, X_ = T[0:4], T[4:8], T[8:12]
            ga = lambda r: A((u * 4 + qb) * 4 + r); ua = lambda r: A(((4 + u) * 4 + qb) * 4 + r)
            for r in range(4): gel.append(valu("v_accvgpr_read_b32", G_[r], ga(r)))
            for r in range(4): gel.append(valu("v_accvgpr_read_b32", U_[r], ua(r)))
            for r in range(4): gel.append(valu("v_mul_f32", X_[r], G_[r], G_[r]))
            for r in range(4): gel.append(valu("v_fma_f32", X_[r], X_[r], vc1, vc0))
            for r in range(4): gel.append(valu("v_mul_f32", X_[r], X_[r], G_[r]))
            for r in range(4): gel.append(valu("v_exp_f32", X_[r], X_[r]))
            for r in range(4): gel.append(valu("v_mul_f32", G_[r], G_[r], U_[r]))
            for r in range(4): gel.append(valu("v_add_f32", X_[r], "1.0", X_[r]))
            for r in range(4): gel.append(valu("v_rcp_f32", X_[r], X_[r]))
            gel.append(nop(0))
            for r in range(4): gel.append(valu("v_mul_f32", G_[r], G_[r], X_[r]))
            for k in range(2): gel.append(valu("v_cvt_pk_bf16_f32", pk[2 * b + k], G_[2 * k], G_[2 * k + 1]))
        st = bstore(pk, v_lz[qb >> 1] if W3Z else v_lin, S_H, s_h1 if i else s_h0, off=qb * 1024, mod="sc1")
        hst.append(st)
class Stamp:
    def __call__(self): stamp(); return []
if STAMP: extra.setdefault(128, []).append((0, Stamp(), 0))
if STAMP == 6:
    for g_ in (0, 8, 16, 24, 32, 48, 64, 96): extra.setdefault(g_, []).append((0, Stamp(), 0))
class Diag3:
    def __call__(self): diag(3); return []
if DIAG == 3:
    for g_ in (32, 128, 192): extra.setdefault(g_, []).append((0, Diag3(), 0))
class Grp:
    kind = "salu"
    def __init__(self, l): self.l = l
    def __call__(self):
        for x in self.l:
            if x.kind == "label": em.out.append(x)
            else: e(x)
        return []
def group_scc(items):
    out = []
    for it in items:
        if out and ("scc" in it.rd or it.kind == "label"):
            p = out.pop(); out.append(Grp((p.l if isinstance(p, Grp) else [p]) + [it]))
        else: out.append(it)
    return out
s_pf = [S(24, 2), S(26, 2), S(28, 2), S(30, 2)]
s_pfH = s_pair2
s_fo = S(3)
QS = math.log2(math.e) / math.sqrt(128.0)
vqs = V(42, 2); vqw = V(44)
save = em.out; em.out = []; spend = em.pend; em.pend = {}
NWO = 4 if MAP2 else 2
for it in range(3):
    e(salu("s_add_u32", s_t0, s_w, 4 * it))
    e(salu("s_sub_u32", s_t1, s_t0, NWO)); e(salu("s_min_u32", s_t1, s_t1, 6)); e(salu("s_lshl_b32", s_t1, s_t1, 13))
    e(salu("s_lshr_b32", s_t2, S(2), 3)); e(salu("s_mul_i32", s_t2, s_t2, 57344, scc_w=False)); e(salu("s_add_u32", s_t1, s_t1, s_t2))
    e(salu("s_add_u32", s_pf[it][0], S_WD[0], s_t1)); e(salu("s_addc_u32", s_pf[it][1], S_WD[1], 0, scc_r=True))
    if it == 0:
        e(sx(s_t1)); e(salu("s_lshl_b32", s_t1, s_t1, 15 if MAP2 else 14)); e(salu("s_lshl_b32", s_t2, s_w, 13)); e(salu("s_add_u32", s_t1, s_t1, s_t2))
        e(salu("s_add_u32", s_pf[1][0], S_WO[0], s_t1)); e(salu("s_addc_u32", s_pf[1][1], S_WO[1], 0, scc_r=True))
        e(scmp("s_cmp_lt_u32", s_w, NWO)); e(salu("s_cselect_b64", s_pf[0], s_pf[1], s_pf[0], scc_w=False, scc_r=True))
e(raw("s_getpc_b64 %s" % s_pf[3], "salu", wr=[s_pf[3]]))
em.label("L_pc1")
e(salu("s_lshl_b32", s_t0, s_w, 13)); e(salu("s_add_u32", s_t0, s_t0, "L_tail-L_pc1")); e(salu("s_min_u32", s_t0, s_t0, "L_code_end-L_pc1-8192"))
e(salu("s_add_u32", s_t1, s_t0, (1 if MAP2 else 3) * 8192)); e(salu("s_min_u32", s_t1, s_t1, "L_code_end-L_pc1-8192"))
e(salu("s_add_u32", s_pfH[0], s_pf[3][0], s_t1)); e(salu("s_addc_u32", s_pfH[1], s_pf[3][1], 0, scc_r=True))
e(scmp("s_cmp_lt_u32", s_w, 3 if MAP2 else 1)); e(salu("s_cselect_b64", s_pf[2], s_pf[2], s_pfH, scc_w=False, scc_r=True))
e(salu("s_add_u32", s_pf[3][0], s_pf[3][0], s_t0)); e(salu("s_addc_u32", s_pf[3][1], s_pf[3][1], 0, scc_r=True))
e(salu("s_lshl_b32", s_t0, s_cg, 2)); e(salu("s_add_u32", s_t0, s_t0, s_w)); e(salu("s_mul_i32", s_t0, s_t0, 7168, scc_w=False)); e(salu("s_min_u32", s_t0, s_t0, 229376 - 8192))
e(salu("s_add_u32", s_pfH[0], S_HC[0], s_t0)); e(salu("s_addc_u32", s_pfH[1], S_HC[1], 0, scc_r=True))
e(salu("s_lshl_b32", s_fo, s_cq, 3))
vx, vy, vz = V(45), V(46), V(47)
e(salu("s_lshl_b32", s_t1, s_w, 8))
dma_voffs(v_dA, 1024, s_t1, True)
e(salu("s_mul_i32", s_wdd, s_w, 448 * 1024 - 256, scc_w=False)); e(salu("s_lshl_b32", s_t3, s_cg, 7)); e(salu("s_add_u32", s_wdd, s_wdd, s_t3))
e(valu("v_mov_b32", vqs[0], hx(f2u(QS))))
e(valu("v_and_b32", vx, 15, v_lane)); e(valu("v_bfe_u32", vqw, v_lane, 5, 1)); e(valu("v_lshl_add_u32", vx, vqw, 4, vx)); e(valu("v_lshlrev_b32", vx, 4, vx))
e(valu("v_bfe_u32", vqw, v_lane, 4, 1)); e(valu("v_lshl_add_u32", vqw, vqw, 3, vx))
e(salu("s_lshl_b32", s_t1, s_w, 14)); e(valu("v_add_u32", vqw, s_t1, vqw))
for i in range(16): e(valu("v_accvgpr_write_b32", a_L[i], 0))
midset = group_scc(em.out); em.out = save; em.pend = spend
HST = int(os.environ.get("HST", "0"))
if HST == 0: GEL_END = 254
for k in range(8):
    if HST: extra.setdefault(248 + k, []).append((0, hst[k], 1))
run_stream(64, s1_dma, dtok, s1_acc, s1_B, extra, [Fill(midset, 109, 130), Fill(gel, 131, GEL_END)], early_dma=int(os.environ.get('ED1', '0')), w2=lambda g: int(os.environ.get('W2A', '1')) and g >= 130)
if DUMP == "qacc": dump_regs([v_acc[i] for i in range(128)])
stamp(); diag(3)

em.wait(lg0=True)
e(raw("s_barrier"))
def signal(off_s_expr_add, lab, v_t):
    e(scmp("s_cmp_lg_u32", s_w, 0)); e(raw("s_cbranch_scc1 %s" % lab, rd=["scc"]))
    e(salu("s_lshl_b32", s_t0, s_qb, 2))
    if off_s_expr_add: e(salu("s_add_u32", s_t0, s_t0, off_s_expr_add))
    e(valu("v_mov_b32", v_t, 1))
    e(raw("s_mov_b64 exec, 1", "salu", wr=["exec"]))
    e(raw("buffer_atomic_add %s, off, %s, %s sc1" % (v_t, S_DBG, s_t0)))
    e(raw("s_mov_b64 exec, -1", "salu", wr=["exec"]))
    em.label(lab)
for blk in range(8):
    for qb in range(4):
        a_ = v_acc[((blk * 4 + qb) * 4, 4)]
        t = a_[(0, 2)]
        for k in range(2): e(valu("v_pk_mul_f32", a_[(2 * k, 2)], a_[(2 * k, 2)], vqs, mod="op_sel_hi:[1,0]"))
        for k in range(2): e(valu("v_cvt_pk_bf16_f32", t[k], a_[2 * k], a_[2 * k + 1]))
        e(dswrite("ds_write_b64", vqw, t, (qb * 4 + (blk >> 1)) * 1024 + (blk & 1) * 512))
for j in range(4): e(valu("v_add_u32", v_dB[j], s_wdd, v_dA[j]))
em.wait(lg0=True)
for f in range(16): e(dsread("ds_read_b128", a_Q[(4 * f, 4)], v_wl, f * 1024))
e(scmp("s_cmp_eq_u32", s_retry, 1)); e(raw("s_cbranch_scc1 L_maxpass", rd=["scc"]))
em.label("L_att_start")
NZ0 = 32
for i in range(NZ0): e(valu("v_mov_b64", v_acc[(2 * i, 2)], 0))
assert LSUM == 1 and LNM and not POI
e(valu("v_lshlrev_b32", V(3), 7, v_lane))
e(valu("v_and_b32", V(38), 7, v_lane)); e(valu("v_mov_b32", V(0), 0))
em.wait(vm=dtok[66], lg0=True)
e(raw("s_barrier"))
if DUMP == "q": dump_regs([a_Q[i] for i in range(64)])
stamp()

def Qf(qb, ds): return a_Q[((qb * 4 + ds) * 4, 4)]
def Of(db, qb): return v_acc[((db * 4 + qb) * 4, 4)]
def fr(f): return a_ring[((f % 8) * 4, 4)]
def kslot(par): return 16384 if par == 0 else 0
def vslot(par): return 0 if par == 0 else 16384
def frag_reads(par, f):
    if f >= 32: par ^= 1; f -= 32
    d = fr(f)
    if f < 8 or 16 <= f < 24:
        kb = (f >> 2) if f < 8 else 2 + ((f - 16) >> 2)
        return [dsread("ds_read_b128", d, v_ka[f & 3], kslot(par) + kb * 4096)]
    ks2 = 0 if f < 16 else 1
    db = f & 7
    return [dsread("ds_read_b64_tr_b16", d[(2 * h, 2)], v_va[db], vslot(par) + ks2 * 8192 + h * 4096) for h in range(2)]
def read_sched(g):
    r = []
    if g + 3 < 24 or g >= 29: r.append(g + 3)
    if 19 <= g <= 26: r.append(g + 5)
    return r
def sm_val(g, k):
    if 7 <= g <= 22: b = 1; n = 2 * (g - 7) + k
    else: b = 0; n = 2 * ((g - 23) % 32) + k
    kb, qb, r = n >> 4, (n >> 2) & 3, n & 3
    return b, qb, kb, r
def sm_items(g):
    ex, ad = [], []
    for k in range(2):
        b, qb, kb, r = sm_val(g, k)
        x = v_S[b][qb * 8 + kb * 4 + r]
        l = (v_l1 if b else v_l0)[qb]
        ex.append(valu("v_exp_f32", x, x)); ad.append(valu("v_add_f32", l, l, x))
    b, qb, kb, r = sm_val((g - 1) % 32, 0)
    cv = valu("v_cvt_pk_bf16_f32", v_S[b][qb * 8 + kb * 2 + (r >> 1)], v_S[b][qb * 8 + kb * 4 + r], v_S[b][qb * 8 + kb * 4 + r + 1])
    return ex, ad, cv
def att_dma(par, g):
    if g >= 29: k = g - 29; sp = par
    elif g <= 4: k = g + 3; sp = par ^ 1
    else: return [], None
    sal = []
    if k == 0: sal = [salu("s_add_u32", "m0", s_m0b, 4 * 16384 + kslot(sp))]
    if k == 4: sal = [salu("s_add_u32", "m0", s_m0b, vslot(sp))]
    if k < 4: return sal, dma(v_kd[k], S_K, s_kK, k * 1024)
    return sal, dma(v_vd[k & 1], S_V, s_kV, (k - 4) * 1024)
SIDE_FIRST = 11
class Lbl:
    def __init__(self, n): self.n = n
    def __call__(self): em.label(self.n); return []
class LoopStamp:
    def __init__(self, k, par): self.k, self.par = k, par
    def __call__(self):
        k = self.k
        e(raw("s_memtime %s" % S(68 + 2 * k, 2), "other", wr=[S(68 + 2 * k, 2)]))
        if k == 2:
            e(raw("s_waitcnt lgkmcnt(0)", "wait")); em._retire(em.lgq, 0)
            for i in range(3): e(valu("v_writelane_b32", v_c, S(68 + 2 * i), i, rmw=True))
            e(salu("s_lshl_b32", S(74), S(2), 2)); e(salu("s_add_u32", S(74), S(74), s_w)); e(salu("s_lshl_b32", S(74), S(74), 4))
            e(salu("s_sub_u32", S(74), S(74), s_cnt)); e(salu("s_add_u32", S(74), S(74), 16)); e(salu("s_lshl_b32", S(74), S(74), 5))
            e(salu("s_add_u32", S(74), S(74), (1 << 20) + 16 * self.par))
            e(raw("s_mov_b64 exec, 7", "salu", wr=["exec"]))
            e(valu("v_lshlrev_b32", v_t, 2, v_lane))
            e(bstore(v_c, v_t, S_DMP, S(74), off=0))
            e(raw("s_mov_b64 exec, -1", "salu", wr=["exec"]))
            e(valu("v_lshlrev_b32", v_t, 7, v_lane))
        return []
v_tch, v_flag, v_fa = V(3), V(0), V(38)
xtok = []; lastdma = [None]
NITER = 14
s_po0, s_po1, s_poe = s_h0, s_h1, s_off
s_pfc = S(16, 2); s_kvt = S(18, 2); KVIT = int(os.environ.get('KVIT', '12'))
ROT = int(os.environ.get('ROT', '8'))
LQ = int(os.environ.get("LQ", "2"))
def plan_adds():
    nmem = {}
    for g in range(32):
        n = sum(1 if (f % 32 < 8 or 16 <= f % 32 < 24) else 2 for f in read_sched(g)) + (1 if (g >= 29 or g <= 4) else 0) + (1 if g in (13, 14) else 0)
        nmem[g] = n
    free = {}
    for g in range(32):
        n = nmem[g]; a1 = 2 if n > 2 else min(n, 1); a3 = n - a1
        if a1 < 2: a1 += 1
        else: a3 += 1
        if g == 0: a1 += 1
        free[(g, 1)] = max(0, 2 - a1); free[(g, 3)] = max(0, 2 - a3)
        free[(g, 4)] = 2 if ((g & 8) and (g & 1) and ((g & 7) >> 1) < LQ) else 0
    jobs = []
    for g in range(7, 39):
        for k in range(2):
            b, qb, kb, r = sm_val(g % 32, k)
            if qb < LQ: continue
            early = 4 * g + (1 if k == 0 else 3)
            idx = kb * 4 + r
            if idx < 4:
                gsrc = g + 1 if idx == 0 else (g + 2 if idx == 1 else (g + 8 if idx == 2 else g + 9))
                dead = 4 * gsrc
            else: dead = 4 * (g + 11)
            if b == 1: dead = min(dead, 4 * 30)
            jobs.append((dead, early, b, qb, idx))
    plan = {}
    for dead, early, b, qb, idx in sorted(jobs):
        for t in range(early, dead):
            g, q = t >> 2, t & 3
            for gp in ([1] if q == 1 else ([3, 4] if q == 3 else [])):
                if free[(g % 32, gp)] > 0:
                    free[(g % 32, gp)] -= 1; plan.setdefault((g % 32, gp), []).append((b, qb, idx, g)); break
            else: continue
            break
        else:
            g = early >> 2; plan.setdefault((g % 32, early & 3), []).append((b, qb, idx, g)); print("; add overflow", g, file=sys.stderr)
    return plan
ADDS = plan_adds() if LSUM == 3 else {}
def add_items(g, gp, fin, pro):
    out = []
    for b, qb, idx, gabs in ADDS.get((g, gp), []):
        if fin and b == 0 and g >= 23: continue
        if pro and b == 1: continue
        out.append(valu("v_add_f32", v_l1[qb], v_l1[qb], v_S[b][qb * 8 + idx]))
    return out
ftok = {}
def att_group(par, g, do_mfma=True, do_mem=True, do_cvt=True, last=False, pp=None, xmem=(), xsal=(), xvalu=None):
    ex, ad, cv = sm_items(g)
    mem = []
    sal = []
    fin = (pp == 3)
    d = None
    if do_mem:
        if fin: sched = ([g + 3] if g + 3 < 16 else []) + ([g + 11] if 13 <= g <= 20 else [])
        else: sched = read_sched(g)
        for f in sched:
            r = frag_reads(par, f); mem += r; ftok[f % 32] = r
        if pp is None or (g <= 4 and pp <= 2) or (g >= 29 and pp <= 1):
            sal, d = att_dma(par, g)
            if d is not None: mem.append(d)
    loop = do_mem and pp is None
    post0 = []
    if loop and par == 0:
        if g == 14: mem.append(I("global_load_dword %s, %s, %s" % (v_c, v_tch, s_pfc), "vmem", rd=v_tch.regs() + s_pfc.regs(), wr=[]))
        if g == 13: mem.append(I("buffer_load_ubyte %s, %s, %s, %s offen sc1" % (v_flag, v_fa, S_DBG, s_t2), "vmem", rd=S_DBG.regs() + s_t2.regs() + v_fa.regs(), wr=[]))
        if g == 8: sal = sal + [scmp("s_cmp_le_u32", s_cnt, ROT)]
        if g in (9, 10, 11, 12):
            q_ = [s_pfc] + s_pf
            sal = sal + [salu("s_cselect_b64", q_[g - 9], q_[g - 8], q_[g - 9], scc_w=False, scc_r=True)]
        if g == 0: post0 = [valu("v_cmp_eq_u32", "vcc", 1, v_flag)]
        if g == 2: sal = sal + [raw("s_cmp_eq_u32 vcc_lo, -1", "salu", rd=["vcc"], wr=["scc"])]
        if g == 3: sal = sal + [salu("s_cselect_b32", s_t0, s_cnt, -1, scc_w=False, scc_r=True)]
        if g == 4: sal = sal + [scmp("s_cmp_eq_u32", s_t0, ROT - 1)]
        if g == 5: sal = sal + [salu("s_cselect_b64", s_pf[3], s_pfH, s_pf[3], scc_w=False, scc_r=True)]
        if g == 15: sal = sal + [salu("s_cselect_b64", s_pf[3], S_K[(0, 2)], s_pf[3], scc_w=False, scc_r=True)]
        if g == 20: sal = sal + [scmp("s_cmp_eq_u32", s_cnt, KVIT + 1)]
        if g == 21: sal = sal + [salu("s_cselect_b64", s_pfc, s_kvt, S_K[(0, 2)], scc_w=False, scc_r=True)]
        if g == 13: sal = sal + [salu("s_cselect_b32", s_t2, s_fo, 256, scc_w=False, scc_r=True)]
        if g == 18: sal = sal + [scmp("s_cmp_eq_u32", s_cnt, s_sig)]
        if g == 19: sal = sal + [raw("s_cbranch_scc1 L_sigH_side", rd=["scc"]), Lbl("L_sigH_ret")]
    if loop and POI and par == 0 and do_mfma:
        if g == 22: sal = sal + [salu("s_add_u32", s_po1, s_po0, 65536)]
        if g == 16: mem.append(bstore(a_poi, v_lin, S_SP, s_po0, mod="sc1"))
        if g == 27: mem.append(bstore(a_poi, v_lin, S_SP, s_po1, mod="sc1"))
        if g == 23: sal = sal + [salu("s_add_u32", s_po0, s_po0, 1024)]
        if g == 24: sal = sal + [salu("s_min_u32", s_po0, s_po0, s_poe)]
    if do_mem and g == 4 and d is not None: lastdma[0] = d
    mem += list(xmem); sal = sal + list(xsal)
    gaps = [[], [], [], []]
    if g == 29 and do_mem and not fin:
        if STAMP == 2 and loop and do_mfma: gaps[0] += [LoopStamp(0, par)]
        gaps[0] += [Wait(lg0=True) if not do_mfma else (Wait(lg0=True, vm0=True) if (pp is None and par == 1) else Wait(lg0=True, vm=lastdma[0]))]
        if STAMP == 2 and loop and do_mfma: gaps[0] += [LoopStamp(1, par)]
        gaps[0] += [raw("s_barrier")]
        if STAMP == 2 and loop and do_mfma: gaps[0] += [LoopStamp(2, par)]
    gaps[0] += sal
    if g == 6 and do_mem and (pp is None or pp <= 1): gaps[0].append(salu("s_add_u32", s_kK, s_kK, 16384))
    if g == 7 and do_mem and (pp is None or pp <= 1): gaps[0].append(salu("s_add_u32", s_kV, s_kV, 16384))
    sm = not (fin and g >= 23)
    if fin and g > 23: do_cvt = False
    if fin and 16 <= g < 24: do_mfma = False
    if LSUM:
        if sm: gaps[0].append(ex[0])
        gaps[1] += mem[0:2] if len(mem) > 2 else mem[0:1]
        gaps[1] += post0
        nf = (g + 1) % 32
        if do_mem and not (fin and (16 <= nf < 24 or nf == 0)): gaps[2].append(Wait(lg=ftok.get(nf)))
        if last and g == 30: gaps[2].append(salu("s_sub_u32", s_cnt, s_cnt, 1))
        if sm: gaps[2].append(ex[1])
        gaps[3] += mem[2:] if len(mem) > 2 else mem[1:]
        pro = not do_mfma and not fin
        gaps[1] += add_items(g, 1, fin, pro)
        if do_cvt: gaps[1 if len([x for x in gaps[1] if x not in ()]) - len(add_items(g, 1, fin, pro)) < 2 else 3].append(cv)
        gaps[3] += add_items(g, 3, fin, pro)
    else:
      gaps[0] += mem[2:3]
      if sm: gaps[0].append(ex[0])
      if len(mem) > 0: gaps[1].append(mem[0])
      if len(mem) == 0 and do_cvt: gaps[1].append(cv)
      if sm: gaps[1].append(ad[0])
      gaps[1] += post0
      nf = (g + 1) % 32
      if do_mem and not (fin and (16 <= nf < 24 or nf == 0)): gaps[2].append(Wait(lg=ftok.get(nf)))
      if last and g == 30: gaps[2].append(salu("s_sub_u32", s_cnt, s_cnt, 1))
      gaps[2] += mem[3:]
      if sm: gaps[2].append(ex[1])
      if len(mem) > 1: gaps[3].append(mem[1])
      if len(mem) > 0 and do_cvt: gaps[3].append(cv)
      if sm: gaps[3].append(ad[1])
    for qb in range(4):
        if do_mfma:
            if g < 8 or 16 <= g < 24:
                b = 1 if g < 8 else 0
                kb, ds = (g >> 2) & 1, g & 3
                d = v_S[b][(qb * 8 + kb * 4, 4)]
                e(mfma(d, fr(g), Qf(qb, ds), v_negm[(qb * 4, 4)] if ds == 0 else d))
            else:
                b = 0 if g < 16 else 1
                qq = 3 - qb if (SNAKE and g & 1) else qb
                if PA: e(mfma(Of(g & 7, qq), v_S[b][(qq * 8, 4)], fr(g), Of(g & 7, qq)))
                else: e(mfma(Of(g & 7, qq), fr(g), v_S[b][(qq * 8, 4)], Of(g & 7, qq)))
        else:
            if (qb & 1) and not gaps[qb][:1] or ((qb & 1) and getattr(gaps[qb][0], "kind", "") in ("valu",)): e(nop(0))
        for it in gaps[qb]: e(it)
        if xvalu is not None:
            c = 2 - sum(1 for it in gaps[qb] if getattr(it, "kind", "") in ("lds", "vmem", "dma", "valu"))
            while xvalu and c > 0:
                it = xvalu.pop(0); e(it); c -= 2 if it.kind == "trans" else 1
    if LSUM and do_mfma and (g & 8):
        k = g & 7
        lq = None if (fin and g >= 24) else (k >> 1 if k & 1 else None)
        if lq is not None and (LSUM != 3 or lq < LQ): e(mfma(a_L[(4 * lq, 4)], a_ones, v_S[0 if g < 16 else 1][(lq * 8, 4)], a_L[(4 * lq, 4)]))
    if LSUM == 1 and fin and g == 23:
        e(nop(1))
        for lq in range(4): e(mfma(a_L[(4 * lq, 4)], a_ones, v_S[1][(lq * 8, 4)], a_L[(4 * lq, 4)]))
    if LSUM == 3: e(add_items(g, 4, fin, not do_mfma and not fin))

pr = [dsread("ds_read_b128", fr(f), v_ka[f & 3], (f >> 2) * 4096) for f in range(8)]
for r in pr: e(r)
zr = [valu("v_mov_b32", v_acc[i], 0) for i in range(2 * NZ0, 128)]
for f in range(8):
    em.wait(lg=pr[f])
    for qb in range(4):
        d = v_S[0][(qb * 8 + (f >> 2) * 4, 4)]
        e(mfma(d, fr(f), Qf(qb, f & 3), 0 if (f & 3) == 0 else d))
        if qb == 0 and HST == 0: e(hst[f])
        if qb == 2 and f == 0:
            e(raw("s_mov_b64 exec, 3", "salu", wr=["exec"])); e(bstore(v_acc[0], V(3), S_FLZ, s_myfl, mod="sc1")); e(raw("s_mov_b64 exec, -1", "salu", wr=["exec"]))
        for _ in range(2):
            if zr: e(zr.pop(0))
assert not zr
e(salu("s_mov_b32", s_kK, 16384 + 8192, scc_w=False)); e(salu("s_mov_b32", s_kV, 16384, scc_w=False)); e(salu("s_mov_b32", s_cnt, NITER, scc_w=False))
e(scmp("s_cmp_lg_u32", s_retry, 0)); e(raw("s_cbranch_scc1 L_have_max2", rd=["scc"]))
e(nop(3))
mx = [V(97 + 4 * i) for i in range(4)]; mt = [V(98 + 4 * i) for i in range(4)]
for qb in range(4): e(valu("v_max3_f32", mx[qb], v_S[0][qb * 8], v_S[0][qb * 8 + 1], v_S[0][qb * 8 + 2]))
for qb in range(4): e(valu("v_max3_f32", mx[qb], mx[qb], v_S[0][qb * 8 + 3], v_S[0][qb * 8 + 4]))
for qb in range(4): e(valu("v_max3_f32", mx[qb], mx[qb], v_S[0][qb * 8 + 5], v_S[0][qb * 8 + 6]))
for qb in range(4): e(valu("v_max_f32", mx[qb], mx[qb], v_S[0][qb * 8 + 7]))
red4("v_max_f32", mx, mt)
for qb in range(4):
    for k in range(4): e(valu("v_sub_f32", v_negm[qb * 4 + k], 0, mx[qb]))
em.label("L_have_max2")
e(nop(3))
for qb in range(4):
    for k in range(8): e(valu("v_add_f32", v_S[0][qb * 8 + k], v_S[0][qb * 8 + k], v_negm[qb * 4]))
for g in range(23, 29): att_group(1, g, do_mfma=False, do_mem=False, do_cvt=(g != 23))
stamp(); diag()
e(salu("s_and_b32", s_t0, s_qb, 3)); e(salu("s_sub_u32", s_t0, NITER - 1, s_t0))
e(scmp("s_cmp_eq_u32", s_w, 0)); e(salu("s_cselect_b32", s_sig, s_t0, -1, scc_w=False, scc_r=True))
e(scmp("s_cmp_eq_u32", s_retry, 0)); e(salu("s_cselect_b32", s_sig, s_sig, -1, scc_w=False, scc_r=True))
e(salu("s_mov_b64", s_pfc, S_K[(0, 2)], scc_w=False))
if POI:
    e(salu("s_lshl_b32", s_po0, s_w, 4)); e(salu("s_add_u32", s_po0, s_po0, s_g)); e(salu("s_lshl_b32", s_po0, s_po0, 13))
    e(salu("s_add_u32", s_poe, s_po0, 7168))
e(scmp("s_cmp_lt_u32", s_w, 2)); e(salu("s_cselect_b64", s_kvt, S_K[(0, 2)], S_V[(0, 2)], scc_w=False, scc_r=True))
e(salu("s_and_b32", s_t0, s_w, 1)); e(sx(s_t1)); e(salu("s_lshl_b32", s_t1, s_t1, 1)); e(salu("s_add_u32", s_t0, s_t0, s_t1)); e(salu("s_lshl_b32", s_t0, s_t0, 13))
if MAP2: e(salu("s_add_u32", s_t0, s_t0, 262144))
e(salu("s_add_u32", s_kvt[0], s_kvt[0], s_t0)); e(salu("s_addc_u32", s_kvt[1], s_kvt[1], 0, scc_r=True))
for g in range(29, 32): att_group(1, g, do_mfma=False, do_mem=True)
pro_end = len(em.out)
em.directive(".p2align 6")
em.label("L_att_loop")
def body():
    for par in range(2):
        for g in range(32): att_group(par, g, last=(par == 1))
b0 = len(em.out)
body()
b1 = len(em.out)
e(scmp("s_cmp_lg_u32", s_cnt, 0)); e(raw("s_cbranch_scc1 L_att_loop", rd=["scc"]))
b2 = len(em.out)
body()
second = em.out[b2:]; del em.out[b2:]
assert [i.text for i in second] == [i.text for i in em.out[b0:b1]], "loop not in steady state"
loop_probs = check_hazards(em.out[b1 - 40:b2] + second[:60], "loop-wrap")

em.label("L_tail")
v_ring2 = V(64, 32); v_B2 = V(96, 32)
QH = int(os.environ.get('QH', '0'))
XY = int(os.environ.get('XY', '0'))
NF1 = int(os.environ.get('NF1', '8'))
def hreg(kk, qb):
    if QH and 8 <= kk < 12: return A(16 * (kk - 8) + qb * 4, 4)
    if QH and kk >= 12: kk -= 4
    if kk >= 8: kk -= 8
    return A((64 + 16 * kk if kk < 4 else 160 + 16 * (kk - 4)) + qb * 4, 4)
def Facc(u, qb):
    t = u * 4 + qb
    return A(128 + 4 * t if t < 8 else 224 + 4 * (t - 8), 4)
POS2 = [5, 0, 2, 3, 4, 1]
NB = int(os.environ.get("NB", "4"))
def pos2(m): return 6 + m if m < NB else POS2[(m - NB) % 6]
def kind2(m):
    if m < NF1: return ("F", m)
    if m < NF1 + 32: return ("O", (m - NF1) & 15, (m - NF1) >> 4) if XY else ("O", (m - NF1) >> 1, (m - NF1) & 1)
    return ("F", m - 32)
def s2_dma(m):
    if m >= 46: return None
    p = pos2(m); k = kind2(m)
    if k[0] == "O":
        return [m0set(p), salu("s_mov_b32", s_off, k[1] * 32 * 1024 + 128 * k[2], scc_w=False)], [dma(v_dA[j], S_WO, s_off, j * 1024) for j in range(4)]
    return [m0set(p), salu("s_mov_b32", s_off, k[1] * 32 * 1024, scc_w=False)], [dma(v_dB[j], S_WD, s_off, j * 1024) for j in range(4)]
dtok2 = {}; s2pre = {}
for m in range(6 + NB):
    s2pre[m] = s2_dma(m); dtok2[m] = s2pre[m][1][3]
class Seq:
    kind = "vmem"
    def __init__(self, l): self.l = l
    def __call__(self): return self.l
hld = {}; htok = {}
for kk in range(14):
    hld[kk] = [bload(hreg(kk, qb), v_lin, S_HC, s_hl, off=qb * 1024, mod="sc1") for qb in range(4)]
    htok[kk] = hld[kk][3]
e(salu("s_mov_b32", s_cnt, 0, scc_w=False))
em.label("L_pollH")
e(valu("v_cmp_ne_u32", "vcc", 1, v_flag)); e(salu("s_mul_i32", s_hb, s_w, 14 * 4096, scc_w=False)); e(nop(1))
e(raw("s_cbranch_vccz L_pollH_done", rd=["vcc"]))
e(salu("s_add_u32", s_cnt, s_cnt, 1)); e(scmp("s_cmp_ge_u32", s_cnt, 50000)); e(raw("s_cbranch_scc1 L_pollH_done", rd=["scc"]))
e(raw("s_sleep 4")); e(raw("buffer_load_ubyte %s, %s, %s, %s offen sc1" % (v_flag, v_fa, S_DBG, s_fo))); e(raw("s_waitcnt vmcnt(0)")); e(raw("s_branch L_pollH"))
em.label("L_pollH_done")
xaddr(V(39), V(0))
assert LSUM == 1
xsl = [bload(V(40 + 2 * u, 2), V(39), S_XC, 0, off=32 * u, n=2) for u in range(4)]
NH0 = 32
hsl = sorted([(pp, g) for pp in range(3) for g in (5, 13, 14, 15, 16, 17, 18, 27, 28, 9, 11)])[:NH0]
if QH:
    hsl += [(3, g) for g in list(range(8, 16)) + list(range(24, 32))]; NH0 = 48
px = {}
for k, key in enumerate(hsl):
    px.setdefault(key, ([], []))
    px[key][0].append(hld[k >> 2][k & 3])
    if k & 3 == 0: px[key][1].append(salu("s_add_u32", s_hl, s_hb, (k >> 2) * 4096))
for u in range(4): px.setdefault((int(os.environ.get('XSP', '3')), int(os.environ.get('XSG0', '13')) + u), ([], []))[0].append(xsl[u])
wsl = [(pp, g) for pp in range(2) for g in (6, 7, 8, 10, 12, 21, 22, 23)][:4 * NB] + [(2, 29), (2, 30), (2, 31), (3, 0), (3, 1), (3, 2), (3, 3), (3, 4)] + ([(2, g) for g in (6, 7, 8, 10, 12, 21, 22, 23)] if QH else [(3, g) for g in range(5, 13)]) + [(3, g) for g in range(24, 32)]
for k, key in enumerate(wsl):
    px.setdefault(key, ([], []))
    m, j = k >> 2, k & 3
    px[key][0].append(s2pre[m][1][j])
    if j == 0: px[key][1].extend(s2pre[m][0])
px[(3, 24)][1][:0] = [Wait(lg0=True), raw("s_barrier")]
lt = [V(48 + i) for i in range(4)]
NPK = int(os.environ.get("NPK", "0"))
rinv = [V(52 + i) for i in range(4)]
vxf = V(40, 8)
save = em.out; em.out = []
for qb in range(4): e(valu("v_accvgpr_read_b32", lt[qb], a_L[4 * qb]))
e(valu("v_add_f32", V(60), lt[0], lt[1])); e(valu("v_add_f32", V(61), lt[2], lt[3])); e(valu("v_add_f32", V(60), V(60), V(61)))
for qb in range(4): e(valu("v_rcp_f32", rinv[qb], lt[qb]))
e(valu("v_cmp_nge_f32", "vcc", hx(f2u(2.0 ** 30)), V(60)))
v_tr2 = V(56, 4); v_ow = V(62)
for u in range(4): e(valu("v_subrev_u32", v_tr2[u], RING, v_tr[0][u]))
if PA:
    def rT(qb, r): return V(100 + 8 * qb + r)
    v_l8 = V(63)
    vcap = em.lgq, em.pend; em.lgq, em.pend = [], {}
    e(valu("v_and_b32", V(61), 48, v_lane))
    for qb in range(4):
        for r in range(4): e(I("ds_bpermute_b32 %s, %s, %s offset:%d" % (rT(qb, r), V(61), rinv[qb], 4 * r), "lds", rd=["v61"] + rinv[qb].regs(), wr=rT(qb, r).regs()))
    em.lgq, em.pend = vcap
    e(valu("v_lshrrev_b32", v_l8, 4, v_lane)); e(valu("v_bfe_u32", V(60), v_lane, 2, 2)); e(valu("v_xor_b32", V(60), V(60), v_l8))
    e(valu("v_and_b32", v_ow, 15, v_lane)); e(valu("v_lshlrev_b32", v_ow, 5, v_ow)); e(valu("v_lshl_add_u32", v_ow, V(60), 3, v_ow))
    e(valu("v_subrev_u32", v_ow, RING, v_ow)); e(valu("v_add_u32", v_ow, s_m0b, v_ow))
    e(valu("v_xor_b32", v_l8, v_l8, v_lane)); e(valu("v_lshlrev_b32", v_l8, 3, v_l8))
else:
    e(valu("v_subrev_u32", v_ow, RING, v_lin)); e(valu("v_add_u32", v_ow, s_m0b, v_ow))
lred = em.out; em.out = save
for pp in range(4):
    for g in range(32):
        if STAMP == 4 and g in (0, 16): stamp()
        xm, xs = px.get((pp, g), ([], []))
        att_group(pp & 1, g, pp=pp, xmem=xm, xsal=xs, xvalu=(lred if (pp == 3 and g >= (26 if LSUM else 24)) else None))
for it in lred: e(it)
diag(); stamp()
if DUMP == "o":
    e(nop(7))
    for db in range(8):
        for qb in range(4):
            for k in range(4): e(valu("v_mul_f32", Of(db, qb)[k], Of(db, qb)[k], rinv[qb]))
    dump_regs([v_acc[i] for i in range(128)])

vm_ = V(60); vma = V(61)
class Mark:
    kind = "salu"
    def __init__(self, t): self.t = t
    def __call__(self):
        e(raw("s_cbranch_vccz L_nomark", rd=["vcc"])); e(valu("v_mov_b32", self.t, hx(MARK))); em.label("L_nomark"); return []
norm = [valu("v_and_b32", vma, 3, v_lane), valu("v_lshlrev_b32", vma, 12, vma)]
ow = []; ncv = []; ow2 = []
assert not (PA and (NB == 0 or NPK or XY))
NPK_N = int(os.environ.get("NPK_N", "16")) if NPK else 0
for i in range(4):
    for qb in range(4):
        t = Of(2 * i, qb)
        for b in range(2):
            if i * 4 + qb < NPK_N:
                rp = V(52 + (qb & ~1), 2)
                for k in range(2): norm.append(valu("v_pk_mul_f32", Of(2 * i + b, qb)[(2 * k, 2)], Of(2 * i + b, qb)[(2 * k, 2)], rp, mod="op_sel:[0,%d] op_sel_hi:[1,%d]" % (qb & 1, qb & 1)))
            else:
                for k in range(4): norm.append(valu("v_mul_f32", Of(2 * i + b, qb)[k], Of(2 * i + b, qb)[k], rT(qb, k) if PA else rinv[qb]))
        for b in range(2):
            o = Of(2 * i + b, qb)
            for k in range(2): norm.append(valu("v_cvt_pk_bf16_f32", t[2 * b + k], o[2 * k], o[2 * k + 1]))
        ncv.append(norm[-1])
        if PA: ow2.append(dswrite("ds_write_b64", v_ow, t[(2, 2)], i * 16384 + qb * 1024 + 512))
        if i == 0 and qb == 0: norm.append(Mark(t[0]))
        ow.append(dswrite("ds_write_b64", v_ow, t[(0, 2)], i * 16384 + qb * 1024) if PA else dswrite("ds_write_b128", v_ow, t, i * 16384 + qb * 1024))
        if NB == 0: norm.append(ow[-1])
if NPK_N:
    cut = norm.index(ncv[NPK_N - 1]) + 1
    e(nop(4))
    for it in norm[:cut]: e(it)
    norm = norm[cut:]
class ChkNorm:
    def __init__(self, k): self.k = k
    def __call__(self):
        assert ncv[self.k].tok, "O write %d scheduled before its data" % self.k
        return [ow[self.k], ow2[self.k]] if PA else ow[self.k]
G0 = 4 * NF1
G1 = G0 + 128
mk = dsread("ds_read_b32", vm_, vma, 0)
class OBar:
    def __call__(self):
        assert all(w.tok for w in ow)
        em.wait(lg0=True); e(raw("s_barrier")); stamp(); e(mk); return []
class FbCheck:
    def __call__(self):
        em.wait(lg=mk)
        e(valu("v_cmp_eq_u32", "vcc", hx(MARK), vm_))
        e(scmp("s_cmp_lg_u32", s_retry, 0)); e(raw("s_cbranch_scc1 L_nofb", rd=["scc"]))
        e(nop(1))
        e(raw("s_cbranch_vccnz L_fallback", rd=["vcc"]))
        em.label("L_nofb")
        return []
def s2_acc(m, u, qb):
    k = kind2(m)
    if k[0] == "O": return v_acc[(((k[2] * 4 + u) * 4 + qb) * 4, 4)], k[1] == 0
    return Facc(u, qb), k[1] == 0
def s2_B(m, qb):
    k = kind2(m)
    if k[0] == "O": return v_B2[((k[1] & 1) * 16 + qb * 4, 4)]
    return hreg(k[1], qb)
def oread(s, qb):
    d = v_B2[((s & 1) * 16 + qb * 4, 4)]; of = (s & 3) * 16384 + (s >> 2) * 4096 + qb * 1024
    if PA: return [dsread("ds_read_b64_tr_b16", d[(2 * b, 2)], v_l8, of + 512 * b) for b in range(2)]
    return dsread("ds_read_b128", d, v_lin, of)
extra = {}
if NB:
    OW0 = int(os.environ.get("OW0", "11")); OWN = int(os.environ.get("OWN", "1"))
    for k in range(16):
        gg = OW0 + k // OWN
        assert (k >> 2) >= NB or gg > 4 * (k >> 2) + 3
        extra.setdefault(gg, []).append((2 + (k % OWN) % 2, ChkNorm(k), 1))
GB = G0 - int(os.environ.get("OBAR", "3"))
extra.setdefault(GB, []).append((0, OBar(), 0))
r0 = [oread(0, qb) for qb in range(4)]
for qb in range(4): extra.setdefault(GB + (qb >> 1), []).append((1 + (qb & 1) if qb < 2 else (qb & 1) * 2, r0[qb], 1))
extra.setdefault(G0 - 1, []).append((2, [Wait(lg=([x for y in r0 for x in y] if PA else r0)), FbCheck()], 0))
if XY:
    for mm in range(1, 32):
        rr = [oread(mm & 15, qb) for qb in range(4)]
        for qb in range(4): extra.setdefault(G0 + 4 * (mm - 1) + (qb >> 1), []).append((2 + (qb & 1), rr[qb], 1))
        extra.setdefault(G0 + 4 * mm - 1, []).append((2, Wait(lg=rr), 0))
else:
    for s_ in range(1, 16):
        for qb in range(4): extra.setdefault(G0 + 8 * (s_ - 1) + 1 + qb, []).append((2, oread(s_, qb), 1))
class LateWait:
    def __init__(self, f): self.f = f
    def __call__(self): return Wait(vm=self.f())
vxa = V(48); vpoll = V(49); vfw = V(50)
vx, vy, vz = V(59), V(57), V(58)
save = em.out; em.out = []
xaddr(vxa, vx)
e(valu("v_and_b32", V(51), 7, v_lane)); e(valu("v_lshlrev_b32", V(51), 2, V(51)))
e(valu("v_add_u32", vfw, s_m0b, v_lin)); e(salu("s_lshl_b32", s_t0, s_w, 14)); e(salu("s_add_u32", s_t0, s_t0, RING)); e(valu("v_add_u32", V(55), s_t0, v_lin))
e(salu("s_lshl_b32", s_t3, s_w, 4)); e(salu("s_add_u32", s_t3, s_t3, s_g)); e(salu("s_lshl_b32", s_t3, s_t3, 13))
early = em.out; em.out = save
extra.setdefault(-1, []).append((0, LateWait(lambda: htok[0]), 0))
for kk in range(1, 14):
    g_ = 4 * kk if kk < NF1 else 4 * (kk + 32)
    extra.setdefault(g_ - 1, []).append((2, LateWait(lambda kk=kk: htok[kk]), 0))
HG0 = int(os.environ.get("HG0", "5")); HGS = int(os.environ.get("HGS", "1"))
for k in range(NH0, 56):
    prev = (k >> 2) - (12 if QH else 8)
    gfree = (4 * prev if prev < NF1 else 4 * (prev + 32)) + 5 + (k & 3)
    extra.setdefault(max(gfree, HG0 + HGS * (k - NH0)), []).append((2, Seq([salu("s_add_u32", s_hl, s_hb, (k >> 2) * 4096), hld[k >> 2][k & 3]]), 1))
def sreg(ip, qb, odd=0): return v_acc[(((2 * ip + odd) * 4 + qb) * 4, 4)]
SPV_ = int(os.environ.get('SPV', '1'))
sp = []; spst = []; stq = []
s_oob = S(19)
if os.environ.get("NOST") or os.environ.get("NOLD"): e(salu("s_mov_b32", s_oob, 524288, scc_w=False))
NSI = int(os.environ.get("NSI", "11"))
s_so = [s_t1, s_cnt, s_h0, s_h1]
for k in range(4): sp.append(salu("s_add_u32", s_so[k], s_t3, (k >> 1) * 65536 + (k & 1) * 4096))
for ip in range(4):
    for qb in range(4):
        t = sreg(ip, qb)
        for b in range(2):
            o = sreg(ip, qb, b)
            for k in range(2): sp.append(valu("v_cvt_pk_bf16_f32", t[2 * b + k], o[2 * k], o[2 * k + 1]))
        st = bstore(t, v_lin, S_SP, s_so[(ip >> 1) * 2 + (qb >> 1)], off=(qb & 1) * 2048 + (ip & 1) * 1024, mod="sc1")
        if os.environ.get("NOST") and not (ip == 3 and qb == 3): st = bstore(t, v_lin, S_SP, s_oob, off=0)
        spst.append((st, sp[-1]))
class St:
    def __init__(self, k): self.k = k
    def __call__(self):
        assert spst[self.k][1].tok
        return spst[self.k][0]
STG = int(os.environ.get("STG", "2"))
if XY:
    GY = G0 + 64
    XS0 = int(os.environ.get("XS0", "4")); XSG = int(os.environ.get("XSG", "5")); XFL = int(os.environ.get("XFL", "60"))
    for k in range(8): extra.setdefault(GY + XS0 + XSG * k, []).append((1, St(k), 1))
    class XFlag:
        def __call__(self): em.wait(vm=spst[7][0]); return flag_store(0)
    extra.setdefault(GY + XFL, []).append((1, XFlag(), 1))
    NSI = int(os.environ.get("NSI", "16"))
    for k in range(8, NSI): extra.setdefault(G1 + 3 + STG * (k - 8), []).append((2, St(k), 1))
    hx_ = sp.index(spst[7][1]) + 1
    spf = [Fill(sp[:hx_], GY + 2, GY + 14), Fill(sp[hx_:], G1 + 2, G1 + 10)]
else:
    for k in range(NSI): extra.setdefault(G1 + 3 + STG * k, []).append((2, St(k), 1))
    spf = [Fill(sp, G1 + 2, G1 + int(os.environ.get("CVL", "16")))]
if POI:
    assert not XY and SPV_
    hint = [valu("v_mov_b32", V(57), 2), valu("v_lshlrev_b32", V(58), 7, v_lane), raw("s_mov_b64 exec, 3", "salu", wr=["exec"]),
            bstore(V(57), V(58), S_FL, s_myfl, mod="sc1"), raw("s_mov_b64 exec, -1", "salu", wr=["exec"])]
    extra.setdefault(G1 + int(os.environ.get("HINT", "4")), []).append((1, hint, 1))
FLG = int(os.environ.get("FLG", "0"))
if FLG:
    assert NSI == 16
    class YFlag:
        def __call__(self):
            em.wait(vm=spst[-1][0]); stamp()
            e(([] if XY else flag_store(0)) + flag_store(1))
            if MIDPOST == 5: static_loads()
            return []
    extra.setdefault(G1 + FLG, []).append((1, YFlag(), 1))
sti = [NSI]
def st_next(n=1):
    for _ in range(n):
        if sti[0] < 16: e(spst[sti[0]][0]); sti[0] += 1
def flag_store(h):
    return [valu("v_mov_b32", v_t, 1), raw("s_mov_b64 exec, 1", "salu", wr=["exec"]), bstore(v_t, None, S_FL, s_myfl, off=128 * h, mod="sc1"), raw("s_mov_b64 exec, -1", "salu", wr=["exec"])]
vpa = V(51)
s_done, s_new, s_sb = s_kK, s_kV, s_fo
SPV = int(os.environ.get("SPV", "1"))
def spl(gp, i): return sreg(gp >> 1, (gp & 1) * 2 + i, 0) if SPV else A((gp * 2 + i) * 4, 4)
def flag_load(): return bload(vpoll, vpa, S_FL, s_t2, n=1, mod="sc1")
lblc = [0]
def issue_new():
    k = lblc[0]; lblc[0] += 1
    e(valu("v_cmp_eq_u32", "vcc", 1, vpoll)); e(nop(1))
    e(raw("s_andn2_b32 %s, vcc_lo, %s" % (s_new, s_done), "salu", rd=["vcc", s_done], wr=[s_new, "scc"])); e(salu("s_and_b32", s_new, s_new, 255))
    e(raw("s_cbranch_scc0 L_in%d_end" % k, rd=["scc"]))
    e(salu("s_or_b32", s_done, s_done, s_new))
    for gp in range(8):
        e(scmp("s_bitcmp1_b32", s_new, gp)); e(raw("s_cbranch_scc0 L_in%d_%d" % (k, gp), rd=["scc"]))
        e(salu("s_add_u32", s_t0, s_sb, gp * 8192) if not os.environ.get("NOLD") else salu("s_mov_b32", s_t0, s_oob, scc_w=False))
        for i in range(2): e(raw(bload(spl(gp, i), v_lin, S_SPC, s_t0, off=i * 1024, mod="sc1").text))
        em.label("L_in%d_%d" % (k, gp))
    em.label("L_in%d_end" % k)
def static_loads():
    e(valu("v_cmp_eq_u32", "vcc", 1, vpoll)); e(nop(1))
    e(raw("s_and_b32 %s, vcc_lo, 255" % s_done, "salu", rd=["vcc"], wr=[s_done, "scc"]))
    for gp in range(8):
        e(salu("s_add_u32", s_t0, s_sb, gp * 8192)); e(scmp("s_bitcmp1_b32", s_done, gp)); e(salu("s_cselect_b32", s_t0, s_t0 if not os.environ.get("NOLD") else s_oob, 524288, scc_w=False, scc_r=True))
        for i in range(2): e(bload(spl(gp, i), v_lin, S_SPC, s_t0, off=i * 1024, mod="sc1"))
pinit = [salu("s_lshl_b32", s_t2, s_cq, 3), salu("s_add_u32", s_t2, s_t2, s_cg), salu("s_lshl_b32", s_t2, s_t2, 7), salu("s_mov_b32", s_done, 0, scc_w=False),
         salu("s_lshl_b32", s_sb, s_cg, 16), salu("s_lshl_b32", s_new, s_w, 11), salu("s_add_u32", s_sb, s_sb, s_new)]
extra.setdefault(G1 - 8, []).append((1, pinit, 0))
class MidPoll:
    def __init__(self, tok): self.tok = tok
    def __call__(self):
        em.wait(vm=self.tok); issue_new()
        e(salu("s_mov_b32", s_hb, s_done, scc_w=False))
        midmark.append(em.vm_total)
        return []
midmark = []
if int(os.environ.get("MID", "1")):
    pt = flag_load()
    MIDPOST = int(os.environ.get("MIDPOST", "2"))
    if MIDPOST == 4: extra.setdefault(184 - int(os.environ.get("MID4", "6")), []).append((2, pt, 1))
    else: extra.setdefault(G1 - int(os.environ.get("MID0", "-4")), []).append((2, pt, 1))
    if not MIDPOST: extra.setdefault(G1 + int(os.environ.get("MID1", "3")), []).append((0, MidPoll(pt), 0))
    elif MIDPOST != 4 and int(os.environ.get("MID0", "-4")) > 0: extra.setdefault(G1 + 2, []).append((0, Wait(vm=pt), 0))
    if MIDPOST == 3:
        extra[G1 + 2].pop(); extra[G1 - int(os.environ.get("MID0", "-4"))].pop()
if STAMP: extra.setdefault(G1, []).append((0, Stamp(), 0))
if STAMP == 5:
    for g_ in (0, 8, 16, 24): extra.setdefault(g_, []).append((0, Stamp(), 0))
class Diag:
    def __call__(self): diag(); return []
if DIAG: extra.setdefault(G1, []).append((0, Diag(), 0))
vs = [Fill(norm, 0, GB - (3 if NB else 1)), Fill(early, G0 + 2, G0 + 40)] + spf
run_stream(46, s2_dma, dtok2, s2_acc, s2_B, extra, vs, posf=pos2, ring=v_ring2, first_dma=6 + NB, tr2=v_tr2, early_dma=int(os.environ.get('ED2', '0')), w2=lambda g: int(os.environ.get('W2B', '1')) and g < 28)
stamp(); diag()
if MIDPOST == 4:
    em.wait(vm=pt); static_loads()
if MIDPOST == 3:
    st_next(16); fl3 = e(flag_load())
e(nop(5))
for qb in range(4):
    for u in range(4):
        if len(em.lgq) >= 12: em.wait(lg=em.lgq[-12])
        e(dswrite("ds_write_b128", vfw, Facc(u, qb), qb * 16384 + u * 1024))
    if qb & 1: st_next(int(os.environ.get("STW", "1")))
if MIDPOST == 6:
    st_next(16); em.wait(vm=spst[-1][0]); stamp(); e(flag_store(0) + flag_store(1)); static_loads()
v_fr = V(96, 16); vE = V(64, 16); vs_ = V(80, 16)
for k in range(8): e(valu("v_mov_b64", vs_[(2 * k, 2)], 0))
if MIDPOST == 3:
    em.wait(vm=fl3); stamp()
    if not XY: e(flag_store(0))
    e(flag_store(1))
    static_loads()
em.wait(lg0=True)
e(raw("s_barrier"))
def frr(ws_, u): return sreg(ws_, u, 1)
for ws_ in range(4):
    for u in range(4):
        if len(em.lgq) >= 14: em.wait(lg=em.lgq[-14])
        e(dsread("ds_read_b128", frr(ws_, u), V(55), ws_ * 4096 + u * 1024))
st_next()
if MIDPOST:
    st_next(16)
    if MIDPOST == 1: static_loads()
em.wait(lg0=True)
for u in range(4):
    for k in range(2):
        e(valu("v_pk_add_f32", frr(0, u)[(2 * k, 2)], frr(0, u)[(2 * k, 2)], frr(1, u)[(2 * k, 2)]))
        e(valu("v_pk_add_f32", frr(2, u)[(2 * k, 2)], frr(2, u)[(2 * k, 2)], frr(3, u)[(2 * k, 2)]))
for u in range(4):
    for k in range(2): e(valu("v_pk_add_f32", v_fr[(4 * u + 2 * k, 2)], frr(0, u)[(2 * k, 2)], frr(2, u)[(2 * k, 2)]))
for k in range(16): e(valu("v_mul_f32", vE[k], hx(f2u(-math.log2(math.e))), v_fr[k]))
st_next()
for k in range(16): e(valu("v_exp_f32", vE[k], vE[k]))
for k in range(16): e(valu("v_add_f32", vE[k], "1.0", vE[k]))
st_next()
for k in range(16): e(valu("v_rcp_f32", vE[k], vE[k]))
for k in range(16): e(valu("v_mul_f32", v_fr[k], v_fr[k], vE[k]))
for k in range(8):
    e(valu("v_lshlrev_b32", vE[2 * k], 16, vxf[k])); e(valu("v_and_b32", vE[2 * k + 1], "0xffff0000", vxf[k]))
st_next()
stamp()
accn = [0]
def acc_pieces(mask, sprinkle=False):
    n = accn[0]; accn[0] += 1
    for gp in range(8):
        e(scmp("s_bitcmp1_b32", mask, gp)); e(raw("s_cbranch_scc0 L_acc%d_%d" % (n, gp), rd=["scc"]))
        if not SPV:
            for k2 in range(8): e(valu("v_accvgpr_read_b32", V(120 + k2), spl(gp, k2 >> 2)[k2 & 3]))
        for k in range(8):
            src = spl(gp, k >> 2)[k & 3] if SPV else V(120 + k)
            e(valu("v_lshlrev_b32", V(112 + 2 * (k & 3)), 16, src)); e(valu("v_and_b32", V(113 + 2 * (k & 3)), "0xffff0000", src))
            e(valu("v_pk_add_f32", vs_[(2 * k, 2)], vs_[(2 * k, 2)], V(112 + 2 * (k & 3), 2)))
        em.label("L_acc%d_%d" % (n, gp))
        if sprinkle and gp & 1: st_next()
if midmark:
    n_y = em.vm_total - midmark[0]
    e(raw("s_waitcnt vmcnt(%d)" % n_y, "wait")); em._retire(em.vmq, n_y)
    acc_pieces(s_hb, sprinkle=True)
st_next(16)
if POI:
    s_want = s_new
    e(salu("s_mov_b32", s_cnt, 0, scc_w=False)); e(salu("s_mov_b32", s_t1, hx(POISON), scc_w=False))
    if MIDPOST == 2: em.wait(vm=pt)
    stamp()
    em.label("L_fin_loop")
    e(valu("v_cmp_eq_u32", "vcc", 2, vpoll)); e(nop(1))
    e(raw("s_andn2_b32 %s, vcc_lo, %s" % (s_want, s_done), "salu", rd=["vcc", s_done], wr=[s_want, "scc"])); e(salu("s_and_b32", s_want, s_want, 255))
    for gp in range(8):
        e(scmp("s_bitcmp1_b32", s_want, gp)); e(raw("s_cbranch_scc0 L_pl_%d" % gp, rd=["scc"]))
        e(salu("s_add_u32", s_t0, s_sb, gp * 8192))
        for i in range(2): e(raw(bload(spl(gp, i), v_lin, S_SPC, s_t0, off=i * 1024, mod="sc1").text))
        em.label("L_pl_%d" % gp)
    e(raw(flag_load().text))
    e(raw("s_waitcnt vmcnt(0)", "wait")); em._retire(em.vmq, 0)
    for gp in range(8):
        e(scmp("s_bitcmp1_b32", s_want, gp)); e(raw("s_cbranch_scc0 L_pa_%d" % gp, rd=["scc"]))
        for k in range(8): e(valu("v_cmpx_ne_u32", "vcc", s_t1, spl(gp, k >> 2)[k & 3], extra_wr=["exec"]))
        e(nop(1))
        e(raw("s_cmp_eq_u64 exec, -1", "salu", rd=["exec"], wr=["scc"])); e(raw("s_mov_b64 exec, -1", "salu", wr=["exec"]))
        e(raw("s_cbranch_scc0 L_pa_%d" % gp, rd=["scc"]))
        e(salu("s_bitset1_b32", s_done, gp, scc_w=False))
        for k in range(8):
            src = spl(gp, k >> 2)[k & 3]
            e(valu("v_lshlrev_b32", V(112 + 2 * (k & 3)), 16, src)); e(valu("v_and_b32", V(113 + 2 * (k & 3)), "0xffff0000", src))
            e(valu("v_pk_add_f32", vs_[(2 * k, 2)], vs_[(2 * k, 2)], V(112 + 2 * (k & 3), 2)))
        em.label("L_pa_%d" % gp)
    e(salu("s_add_u32", s_cnt, s_cnt, 1)); e(scmp("s_cmp_ge_u32", s_cnt, 50000)); e(raw("s_cbranch_scc1 L_fin_done", rd=["scc"]))
    e(scmp("s_cmp_lg_u32", s_done, 255)); e(raw("s_cbranch_scc1 L_fin_loop", rd=["scc"]))
else:
    if MIDPOST != 2: e(flag_load())
    if MIDPOST not in (3, 6) and not FLG:
        em.wait(vm=spst[-1][0]); stamp()
        if not XY: e(flag_store(0))
        e(flag_store(1))
    if MIDPOST == 2:
        static_loads()
        if int(os.environ.get("FSL", "0")): e(raw("s_sleep %d" % int(os.environ.get("FSL"))))
        e(flag_load())
    s_prev = s_hl
    e(salu("s_mov_b32", s_prev, s_done if MIDPOST else 0, scc_w=False)); e(salu("s_mov_b32", s_cnt, 0, scc_w=False))
    em.label("L_fin_loop")
    em.wait(vm0=True)
    issue_new()
    e(raw(flag_load().text))
    acc_pieces(s_prev)
    e(salu("s_mov_b32", s_prev, s_new, scc_w=False))
    e(salu("s_add_u32", s_cnt, s_cnt, 1)); e(scmp("s_cmp_ge_u32", s_cnt, 50000)); e(raw("s_cbranch_scc1 L_fin_done", rd=["scc"]))
    e(scmp("s_cmp_lg_u32", s_prev, 0)); e(raw("s_cbranch_scc1 L_fin_loop", rd=["scc"]))
    if int(os.environ.get("PSL", "0")): e(raw("s_sleep %d" % int(os.environ.get("PSL"))))
    e(scmp("s_cmp_lg_u32", s_done, 255)); e(raw("s_cbranch_scc1 L_fin_loop", rd=["scc"]))
em.label("L_fin_done")
if DUMP == "fin": dump_regs([vs_[i] for i in range(16)] + [v_fr[i] for i in range(16)])
for k in range(8): e(valu("v_pk_fma_f32", vE[(2 * k, 2)], vs_[(2 * k, 2)], v_fr[(2 * k, 2)], vE[(2 * k, 2)]))
for k in range(8): e(valu("v_cvt_pk_bf16_f32", vxf[k], vE[2 * k], vE[2 * k + 1]))
for u in range(4): e(bstore(vxf[(2 * u, 2)], vxa, S_OUT, 0, off=32 * u, mod=os.environ.get("OUTM", "")))
stamp(); diag_out()
em.label("L_end")
e(raw("s_endpgm"))
main_end = len(em.out)

em.lgq, em.vmq, em.pend = [], [], {}
em.label("L_sigH_side")
e(salu("s_lshl_b32", s_t1, s_qb, 3)); e(salu("s_add_u32", s_t1, s_t1, s_g))
e(raw("s_mov_b64 exec, 2", "salu", wr=["exec"]))
e(raw("buffer_store_byte %s, off, %s, %s sc1" % (v_fa, S_DBG, s_t1)))
e(raw("s_mov_b64 exec, -1", "salu", wr=["exec"]))
e(raw("s_branch L_sigH_ret"))
em.label("L_fallback")
e(raw("s_waitcnt vmcnt(0) lgkmcnt(0)")); em._retire(em.vmq, 0); em._retire(em.lgq, 0)
e(salu("s_mov_b32", s_retry, 1, scc_w=False))
e(salu("s_lshl_b32", s_t0, s_w, 6)); e(valu("v_add_u32", v_tid, s_t0, v_lane))
e(raw("s_barrier"))
e(raw("s_branch L_restart"))
em.label("L_maxpass")
e(raw("s_waitcnt vmcnt(0) lgkmcnt(0)"))
e(salu("s_mov_b32", s_retry, 2, scc_w=False))
e(salu("s_mov_b32", S_H[2], 0, scc_w=False))
e(salu("s_mov_b32", s_kK, 0, scc_w=False))
fm = [V(40 + i) for i in range(4)]
for i in range(4): e(valu("v_mov_b32", fm[i], "0xff800000"))
em.label("L_fb_loop")
e(raw("s_barrier"))
e(salu("s_add_u32", "m0", s_m0b, 4 * 16384)); e(nop(0))
for j in range(4): e(dma(v_kd[j], S_K, s_kK, j * 1024))
em.wait(vm0=True)
e(raw("s_barrier"))
for kb in range(4):
    rr = [e(dsread("ds_read_b128", fr(ds), v_ka[ds], kb * 4096)) for ds in range(4)]
    em.wait(lg0=True)
    for ds in range(4):
        for qb in range(4):
            d = v_S[0][(qb * 4, 4)]
            e(mfma(d, fr(ds), Qf(qb, ds), 0 if ds == 0 else d))
    e(nop(7))
    for qb in range(4):
        e(valu("v_max3_f32", fm[qb], fm[qb], v_S[0][qb * 4], v_S[0][qb * 4 + 1])); e(valu("v_max3_f32", fm[qb], fm[qb], v_S[0][qb * 4 + 2], v_S[0][qb * 4 + 3]))
    e(nop(2))
e(salu("s_add_u32", s_kK, s_kK, 16384)); e(scmp("s_cmp_lt_u32", s_kK, 524288)); e(raw("s_cbranch_scc1 L_fb_loop", rd=["scc"]))
red4("v_max_f32", fm, [V(44 + i) for i in range(4)])
for qb in range(4):
    for k in range(4): e(valu("v_sub_f32", v_negm[qb * 4 + k], 0, fm[qb]))
e(raw("s_barrier"))
for m in (64, 65, 66):
    sa, dm = s1_dma(m); e(sa)
    for d in dm: e(d)
e(raw("s_waitcnt vmcnt(0)"))
e(raw("s_branch L_att_start"))
em.label("L_code_end")
e(raw("s_endpgm"))

ALIGN8 = int(os.environ.get("ALIGN8", "0"))
import re as _re
def isize(i):
    t = i.text
    if i.kind == "label": return 0
    op = t.split()[0]
    if i.kind in ("mfma", "lds", "vmem", "dma") or op.startswith(("buffer_", "global_", "ds_", "s_load", "s_memtime", "s_memrealtime")): return 8
    lit = False
    for tok in _re.split(r"[ ,]+", t)[1:]:
        if _re.fullmatch(r"-?\d+", tok): lit |= not (-16 <= int(tok) <= 64)
        elif tok.startswith("0x"): lit |= not (int(tok, 16) <= 64)
        elif tok.startswith("L_") and not op.startswith(("s_cbranch", "s_branch")): lit = True
    if op.startswith("s_"):
        if op in ("s_waitcnt", "s_nop", "s_barrier", "s_sleep", "s_endpgm") or op.startswith(("s_cbranch", "s_branch")): return 4
        return 8 if lit else 4
    e32 = ("v_exp_f32", "v_rcp_f32", "v_sqrt_f32", "v_mov_b32", "v_mov_b64", "v_add_f32", "v_sub_f32", "v_mul_f32", "v_max_f32", "v_and_b32", "v_xor_b32", "v_lshlrev_b32", "v_lshrrev_b32",
           "v_add_u32", "v_sub_u32", "v_subrev_u32", "v_mul_u32_u24", "v_min_u32", "v_readfirstlane_b32", "v_permlane16_swap_b32", "v_permlane32_swap_b32")
    if op in e32 and "-v" not in t: return 8 if lit else 4
    if op.startswith("v_cmp") and t.split()[1].startswith("vcc"): return 8 if lit else 4
    return 8
WIDE = ("v_exp_f32", "v_rcp_f32", "v_add_f32", "v_mul_f32", "v_mov_b32", "v_sub_f32", "v_and_b32", "v_lshlrev_b32")
if ALIGN8:
    pos = 0; cand = None; nfix = 0; nmiss = 0
    for i in em.out:
        if i.kind == "label":
            if i.text.startswith(".p2align"): pos = 0; cand = None
            continue
        if i.kind == "mfma" and pos % 8:
            if cand is not None: cand.text = cand.text.replace(cand.text.split()[0], cand.text.split()[0] + "_e64", 1); pos += 4; nfix += 1
            else: nmiss += 1
        if i.kind == "mfma": cand = None
        sz = isize(i)
        if sz == 4 and i.text.split()[0] in WIDE: cand = i
        pos += sz
    print("; align8: widened %d, unfixed %d" % (nfix, nmiss), file=sys.stderr)
probs = check_hazards(em.out, "main") + loop_probs
for p in probs: print("; HAZARD", p, file=sys.stderr)
assert not probs

hdr = open(os.path.join(os.path.dirname(os.path.abspath(__file__)), "header.txt")).read()
print(hdr.rstrip())
print("; @launch grid=(256,1,1) block=(256,1,1) lds=163840")
print('.amdgcn_target "amdgcn-amd-amdhsa--gfx950"\n.text\n.globl %s\n.p2align 8\n.type %s,@function\n%s:' % (KN, KN, KN))
print(em.text())
print('.section .rodata,"a"\n.p2align 6\n.amdhsa_kernel %s' % KN)
print("  .amdhsa_next_free_vgpr 512\n  .amdhsa_next_free_sgpr 102\n  .amdhsa_accum_offset 256\n  .amdhsa_group_segment_fixed_size 0\n  .amdhsa_kernarg_size 96\n  .amdhsa_user_sgpr_count 2\n  .amdhsa_user_sgpr_kernarg_segment_ptr 1\n  .amdhsa_system_sgpr_workgroup_id_x 1\n.end_amdhsa_kernel")
```

```python
import sys, os, math, struct
from asmgen import *

KN = "recurrent_scan__gqa_block_cached__geglu_ffn__prompt_kernel"
DUMP = os.environ.get("DUMP", "")
STAMP = int(os.environ.get("STAMP", "0"))
GEL_END = int(os.environ.get("GEL_END", "247")); GEL_EXTRA = int(os.environ.get("GEL_EXTRA", "360"))

def f2u(x): return struct.unpack("<I", struct.pack("<f", x))[0]
def hx(x): return "0x%x" % (x & 0xffffffff)

S_X, S_K, S_V, S_WQ, S_WO, S_WG, S_WU, S_WD, S_OUT, S_DBG, S_H, S_SP = [S(4 + 4 * i, 4) for i in range(12)]
s_g, s_qb, s_w = S(52), S(53), S(54)
s_t0, s_t1, s_t2, s_t3 = S(55), S(56), S(57), S(58)
s_m0b = S(59)
s_off = S(60)
s_cnt = S(61)
s_kK, s_kV = S(62), S(63)
s_retry = S(64)
s_h0, s_h1 = S(65), S(66)
s_hl = S(67); s_hb = S(78); s_myfl = S(79); s_wdd = S(67); s_sig = S(78)
s_ka = S(68, 16); s_kb = S(84, 8)
s_pair = S(92, 2); s_pair2 = S(94, 2)
S_DMP = S(96, 4)
s_cq, s_cg = S(76), S(77)
S_HC = S(80, 4)
S_SPC = S(84, 4)
S_XC = S(88, 4)
s_st = S(68, 4)

v_tid, v_lane, v_lin, v_t = V(0), V(1), V(2), V(3)
v_tr = [V(4, 4), V(8, 4)]
v_dA, v_dB = V(12, 4), V(16, 4)
v_ka = V(20, 4); v_va = V(24, 8); v_kd = V(32, 4); v_vd = V(36, 2)
v_wl = V(38)
v_c = V(39)
v_l0, v_l1 = V(40, 4), V(44, 4)
v_lsave = V(16, 4)
v_negm = V(48, 16)
v_S = [V(64, 32), V(96, 32)]
v_acc = V(128, 128)
a_ring = A(128, 32)
a_B = A(160, 32)
a_Q = A(0, 64)
ORD = int(os.environ.get("ORD", "1"))
v_wo, v_wd = (v_dB, v_dA) if ORD else (v_dA, v_dB)
a_F = A(0, 64)
a_x = A(248, 8)
LSUM = int(os.environ.get('LSUM', '1'))
a_L = A(224, 16); a_ones = A(240, 4)
POI = int(os.environ.get('POI', '0'))
POISON = 0x7f817f81
a_poi = A(244, 4)

RING = 65536
MARK = 0x7fc17fc1
WS_SP = 8 << 20
WS_DUMP = 32 << 20
WS_FL = (7 << 20) + (512 << 10)
S_FLZ = S(4, 4)
S_FL = S(4, 4)

em = Em()
e = em.e

def srd(dst, lo, hi, size, off_s=None):
    if off_s is None:
        e(salu("s_mov_b32", dst[0], lo, scc_w=False)); e(salu("s_mov_b32", dst[1], hi, scc_w=False))
    else:
        e(salu("s_add_u32", dst[0], lo, off_s)); e(salu("s_addc_u32", dst[1], hi, 0, scc_r=True))
    e(salu("s_mov_b32", dst[2], hx(size), scc_w=False)); e(salu("s_mov_b32", dst[3], "0x20000", scc_w=False))

DIAG = int(os.environ.get("DIAG", "0"))
HC_OFF = 128
diag_regs = [S(100, 2), S(70, 2), S(72, 2), S(74, 2), S(96, 2), S(98, 2), S(68, 2)] if DIAG != 2 else [S(100, 2), S(96, 2), S(98, 2), S(94, 2), S(70, 2), S(72, 2), S(74, 2), S(68, 2)]
diag_n = [0]
def diag(which=1, last=False):
    if not DIAG or (which != DIAG and which != 0): return
    k = diag_n[0]; diag_n[0] += 1
    e(raw("%s %s" % ("s_memtime" if (os.environ.get("CYC") and not last) else "s_memrealtime", diag_regs[k]), "other", wr=[diag_regs[k]]))
    if k > 0: e(raw("s_waitcnt lgkmcnt(0)", "wait")); em._retire(em.lgq, 0)
AMP = os.environ.get("AMP")
def diag_out():
    if not DIAG: return
    diag(0, last=True)
    if AMP:
        k = int(AMP); last = diag_regs[diag_n[0] - 1]
        e(salu("s_sub_u32", s_t0, diag_regs[k][0], diag_regs[int(os.environ.get("AMP0", "0"))][0]))
        if os.environ.get("CYC"): e(salu("s_lshr_b32", s_t0, s_t0, 2))
        else: e(salu("s_lshl_b32", s_t0, s_t0, 2))
        em.label("L_amp")
        e(raw("s_memrealtime s[56:57]")); e(raw("s_waitcnt lgkmcnt(0)"))
        e(salu("s_sub_u32", s_t1, s_t1, last[0])); e(scmp("s_cmp_lt_u32", s_t1, s_t0)); e(raw("s_cbranch_scc1 L_amp", rd=["scc"]))
        return
    e(scmp("s_cmp_lg_u32", s_w, 0)); e(raw("s_cbranch_scc1 L_end", rd=["scc"]))
    e(raw("s_mov_b64 exec, 1", "salu", wr=["exec"]))
    e(salu("s_not_b32", s_t0, diag_regs[0][0]))
    for k in range(diag_n[0]):
        e(valu("v_mov_b32", V(4 + k), s_t0 if k == 0 else diag_regs[k][0]))
        e(raw("buffer_atomic_umax %s, off, %s, 0 offset:%d sc1" % (V(4 + k), S_DBG, 4 * k)))
    e(valu("v_mov_b32", V(12), diag_regs[0][0]))
    e(raw("buffer_atomic_umax %s, off, %s, 0 offset:%d sc1" % (V(12), S_DBG, 4 * 9)))
stamp_n = [0]
def stamp():
    if not STAMP: return
    k = stamp_n[0]; stamp_n[0] += 1
    e(raw("s_memtime %s" % S(68, 2), "other", wr=[S(68, 2)]))
    e(raw("s_memrealtime %s" % S(70, 2), "other", wr=[S(70, 2)]))
    e(raw("s_waitcnt lgkmcnt(0)", "wait")); em._retire(em.lgq, 0)
    for i in range(4): e(valu("v_writelane_b32", v_c, S(68 + i), i, rmw=True))
    e(salu("s_lshl_b32", S(72), S(2), 2)); e(salu("s_add_u32", S(72), S(72), s_w)); e(salu("s_lshl_b32", S(72), S(72), 9))
    e(salu("s_mov_b64", S(74, 2), "exec", scc_w=False)); e(raw("s_mov_b64 exec, 15", "salu", wr=["exec"]))
    e(valu("v_lshlrev_b32", v_t, 2, v_lane))
    e(bstore(v_c, v_t, S_DMP, S(72), off=k * 16))
    e(raw("s_mov_b64 exec, %s" % S(74, 2), "salu", wr=["exec"]))
    e(valu("v_lshlrev_b32", v_t, 7, v_lane))

def dump_regs(regs, finish=True):
    em.wait(lg0=True, vm0=True)
    e(nop(7)); e(nop(7))
    n = len(regs)
    e(salu("s_lshl_b32", s_t0, S(2), 2)); e(salu("s_add_u32", s_t0, s_t0, s_w)); e(salu("s_mul_i32", s_t0, s_t0, n * 256, scc_w=False))
    e(valu("v_lshlrev_b32", v_t, 2, v_lane))
    for k, r in enumerate(regs):
        e(bstore(r, v_t, S_DMP, s_t0, off=0))
        e(salu("s_add_u32", s_t0, s_t0, 256))
        if k % 32 == 31: em.wait(vm0=True)
    em.wait(vm0=True)
    if finish: e(raw("s_endpgm"))

def red4(op, x, tmp):
    for sw in ("v_permlane32_swap_b32", "v_permlane16_swap_b32"):
        for a, t in zip(x, tmp): e(valu("v_mov_b32", t, a))
        if len(x) < 3: e(nop(1))
        for a, t in zip(x, tmp): e(valu(sw, a, t))
        for a, t in zip(x, tmp): e(valu(op, a, a, t))

e(scmp("s_cmp_ge_u32", S(2), 256)); e(raw("s_cbranch_scc1 L_end", rd=["scc"]))
diag(0)
e(salu("s_mov_b32", s_retry, 0, scc_w=False))
em.label("L_restart")
i0 = e(I("s_load_dwordx16 %s, s[0:1], 0" % s_ka, "smem", wr=s_ka.regs()))
i1 = e(I("s_load_dwordx8 %s, s[0:1], 64" % s_kb, "smem", wr=s_kb.regs()))
vq, vG, vr, vc_, vx, vy, vz = [V(40 + i) for i in range(7)]
e(raw("s_getpc_b64 %s" % s_pair2, "salu", wr=[s_pair2]))
em.label("L_pc0")
CT0 = int(os.environ.get("CT0", "64"))
if CT0:
    e(valu("v_sub_u32", V(55), 255, v_tid)); e(valu("v_cmp_gt_u32", "vcc", CT0, V(55))); e(valu("v_lshlrev_b32", V(55), 7, V(55))); e(nop(0))
    e(raw("s_and_saveexec_b64 s[4:5], vcc", "salu", wr=["exec"], rd=["vcc"])); e(raw("s_cbranch_execz L_ct0"))
    e(raw("global_load_dword v55, v55, %s" % s_pair2))
    em.label("L_ct0")
    e(raw("s_mov_b64 exec, -1", "salu", wr=["exec"]))
MAP2 = int(os.environ.get("MAP2", "0"))
s_i = S(65)
if MAP2:
    e(salu("s_and_b32", s_g, S(2), 3)); e(salu("s_lshl_b32", s_g, s_g, 1)); e(salu("s_bfe_u32", s_t0, S(2), "0x10003")); e(salu("s_add_u32", s_g, s_g, s_t0))
    e(salu("s_bfe_u32", s_qb, S(2), "0x10002")); e(salu("s_lshl_b32", s_qb, s_qb, 4)); e(salu("s_lshr_b32", s_t0, S(2), 4)); e(salu("s_add_u32", s_qb, s_qb, s_t0))
else:
    e(salu("s_and_b32", s_g, S(2), 7)); e(salu("s_lshr_b32", s_qb, S(2), 3))
def sx(dst): return salu("s_lshr_b32", dst, S(2), 4 if MAP2 else 3)
TL = "-1" if MAP2 else "0xffffffff"
e(valu("v_and_b32", v_lane, 63, v_tid))
e(valu("v_lshrrev_b32", v_t, 6, v_tid))
e(valu("v_lshlrev_b32", v_lin, 4, v_lane))
e(valu("v_readfirstlane_b32", s_w, v_t))
e(valu("v_and_b32", vq, 15, v_lane)); e(valu("v_lshrrev_b32", vG, 4, v_lane))
vxo = V(47)
XD = int(os.environ.get("XD", "1"))
if XD == 2:
    vxq = V(60, 4); vxr = vxq
    for rg in range(4):
        e(valu("v_add_u32", vy, 4 * rg, vG)); e(valu("v_xor_b32", vz, vy, vq)); e(valu("v_lshl_add_u32", vy, v_t, 4, vy)); e(valu("v_lshlrev_b32", vy, 10, vy))
        e(valu("v_lshl_add_u32", vxq[rg], vz, 4, vy))
elif XD:
    vxo2 = V(50); vxr = [V(47), V(50)]
    e(valu("v_lshrrev_b32", vx, 3, v_lane)); e(valu("v_lshl_add_u32", vx, v_t, 4, vx)); e(valu("v_lshlrev_b32", vx, 10, vx))
    e(valu("v_and_b32", vy, 7, v_lane)); e(valu("v_xor_b32", vy, vy, vG)); e(valu("v_lshl_add_u32", vxo, vy, 4, vx))
    e(valu("v_xor_b32", vxo2, 64, vxo)); e(valu("v_add_u32", vxo2, 8192, vxo2))
else:
    e(valu("v_lshl_add_u32", vxo, v_t, 4, vq)); e(valu("v_lshlrev_b32", vxo, 10, vxo)); e(valu("v_lshl_add_u32", vxo, vG, 4, vxo))
vwg, vwq, vcw = V(52), V(53), V(54)
GM0 = int(os.environ.get("GM", "0"))
if GM0: e(salu("s_lshl_b32", s_t1, s_g, 7))
else: e(salu("s_mul_i32", s_t1, s_g, 448, scc_w=False)); e(salu("s_and_b32", s_t1, s_t1, hx(~127)))
e(salu("s_and_b32", s_t2, s_w, 1)); e(sx(s_t3)); e(salu("s_lshl_b32", s_t3, s_t3, 1)); e(salu("s_add_u32", s_t2, s_t2, s_t3))
e(salu("s_mul_i32", s_t2, s_t2, (16 if MAP2 else 8) * 3584, scc_w=False)); e(salu("s_add_u32", s_t1, s_t1, s_t2))
e(valu("v_lshrrev_b32", vx, 2, v_lane)); e(valu("v_mul_u32_u24", vx, 3584, vx)); e(valu("v_and_b32", vz, 3, v_lane)); e(valu("v_lshl_add_u32", vx, vz, 10 if GM0 else 7, vx))
e(valu("v_add_u32", vwg, s_t1, vx))
if GM0:
    e(salu("s_add_u32", s_t3, s_g, 1)); e(salu("s_lshr_b32", s_t3, s_t3, 1)); e(salu("s_lshl_b32", s_t3, s_t3, 7))
    e(valu("v_cmp_eq_u32", "vcc", 3, vz)); e(valu("v_subrev_u32", vx, s_t3, vwg)); e(nop(0)); e(valu("v_cndmask_b32", vwg, vwg, vx, "vcc"))
e(salu("s_lshr_b32", s_t2, S(2), 3)); e(salu("s_lshl_b32", s_t2, s_t2, 2)); e(salu("s_add_u32", s_t2, s_t2, s_w)); e(salu("s_lshl_b32", s_t3, s_t2, 8))
e(valu("v_lshlrev_b32", vcw, 7, v_lane)); e(valu("v_add_u32", vcw, s_t3, vcw))
e(salu("s_lshl_b32", s_t0, s_qb, 16))
em.wait(lg0=True)
diag(2)
srd(S_X, s_ka[0], s_ka[1], 65536, s_t0)
v_xp = V(64, 64)
XFIRST = int(os.environ.get("XFIRST", "12"))
if XD:
    s_xb = S(60)
    e(salu("s_lshl_b32", s_xb, s_w, 14))
    xo = [256 * (t >> 2) if XD == 2 else 128 * (t >> 1) for t in range(16)]
    xl = [dma(vxq[t & 3] if XD == 2 else (vxo2 if t & 1 else vxo), S_X, 0, off=xo[t]) for t in range(16)]
    def xissue(t): e(salu("s_add_u32", "m0", s_xb, t * 1024 - xo[t])); e(nop(0)); e(xl[t])
else:
    xl = [bload(v_xp[(4 * ks, 4)], vxo, S_X, 0, off=64 * ks) for ks in range(16)]
    def xissue(t): e(xl[t])
for ks in range(XFIRST): xissue(ks)
e(scmp("s_cmp_lt_u32", s_w, 2)); e(salu("s_cselect_b64", s_pair, s_ka[(12, 2)], s_ka[(14, 2)], scc_w=False, scc_r=True))
WT = int(os.environ.get("WT", "0"))
s_wgp = S(100, 2)
def wq_addr():
    e(sx(s_t2)); e(salu("s_lshl_b32", s_t2, s_t2, 2)); e(salu("s_add_u32", s_t2, s_t2, s_w))
    e(salu("s_lshl_b32", s_t2, s_t2, 16 if MAP2 else 15)); e(salu("s_lshl_b32", s_t3, s_g, 10)); e(salu("s_add_u32", s_t2, s_t2, s_t3))
    e(valu("v_lshrrev_b32", vx, 3, v_lane)); e(valu("v_lshlrev_b32", vx, 13, vx)); e(valu("v_and_b32", vz, 7, v_lane)); e(valu("v_lshl_add_u32", vx, vz, 7, vx))
    e(valu("v_add_u32", vwq, s_t2, vx))
if ORD:
    e(salu("s_mov_b64", s_wgp, s_pair, scc_w=False))
    wq_addr()
    e(raw("s_mov_b64 exec, " + TL, "salu", wr=["exec"]))
    e(I("global_load_dword %s, %s, %s" % (V(48), vwq, s_ka[(6, 2)]), "vmem", rd=vwq.regs() + s_ka[(6, 2)].regs(), wr=V(48).regs()))
elif WT:
    e(salu("s_lshl_b32", s_t3, S(2), 1)); e(salu("s_and_b32", s_t1, s_w, 1)); e(salu("s_add_u32", s_t3, s_t3, s_t1)); e(salu("s_mul_i32", s_t3, s_t3, 3584, scc_w=False))
    e(valu("v_lshlrev_b32", V(51), 7, v_lane)); e(valu("v_add_u32", V(51), s_t3, V(51)))
    e(raw("s_mov_b64 exec, 0xfffffff", "salu", wr=["exec"]))
    e(I("global_load_dword %s, %s, %s" % (V(48), V(51), s_pair), "vmem", rd=V(51).regs() + s_pair.regs(), wr=V(48).regs()))
    e(salu("s_mov_b64", s_wgp, s_pair, scc_w=False))
else:
    e(raw("s_mov_b64 exec, " + TL, "salu", wr=["exec"]))
    e(I("global_load_dword %s, %s, %s" % (V(48), vwg, s_pair), "vmem", rd=vwg.regs() + s_pair.regs(), wr=V(48).regs()))
e(raw("s_mov_b64 exec, 3", "salu", wr=["exec"]))
e(I("global_load_dword %s, %s, %s" % (V(49), vcw, s_pair2), "vmem", rd=vcw.regs() + s_pair2.regs(), wr=V(49).regs()))
e(raw("s_mov_b64 exec, -1", "salu", wr=["exec"]))
if not ORD: wq_addr()
e(salu("s_lshr_b32", s_t2, S(2), 6)); e(salu("s_and_b32", s_t3, S(2), 7)); e(salu("s_lshl_b32", s_t3, s_t3, 2)); e(salu("s_add_u32", s_t2, s_t2, s_t3))
e(salu("s_lshl_b32", s_t0, s_t2, 16))
srd(S_OUT, s_kb[2], s_kb[3], 65536, s_t0)
e(salu("s_lshl_b32", s_t1, s_g, 19))
srd(S_K, s_ka[2], s_ka[3], 524288, s_t1)
srd(S_V, s_ka[4], s_ka[5], 524288, s_t1)
srd(S_WO, s_ka[8], s_ka[9], 524288, s_t1)
srd(S_WQ, s_ka[6], s_ka[7], 4 << 20)
srd(S_WG, s_ka[12], s_ka[13], 1835008)
srd(S_WU, s_ka[14], s_ka[15], 1835008)
srd(S_WD, s_kb[0], s_kb[1], 1835008)
srd(S_DBG, s_kb[4], s_kb[5], 256)
e(salu("s_mul_i32", s_t1, s_qb, 229376, scc_w=False))
srd(S_H, s_kb[6], s_kb[7], 229376, s_t1)
e(salu("s_lshl_b32", s_t1, s_qb, 19)); e(salu("s_add_u32", s_t1, s_t1, hx(WS_SP)))
srd(S_SP, s_kb[6], s_kb[7], 524288, s_t1)
if DUMP or STAMP:
    e(salu("s_mov_b32", s_t1, hx(WS_DUMP), scc_w=False))
    srd(S_DMP, s_kb[6], s_kb[7], 200 << 20, s_t1)
e(salu("s_mov_b64", s_pair, S(90, 2), scc_w=False))
e(salu("s_lshl_b32", s_t0, s_t2, 16))
srd(S_XC, s_ka[0], s_ka[1], 65536, s_t0)
e(salu("s_mul_i32", s_t1, s_t2, 229376, scc_w=False))
srd(S_HC, s_pair[0], s_pair[1], 229376, s_t1)
e(salu("s_lshl_b32", s_t1, s_t2, 19)); e(salu("s_add_u32", s_t1, s_t1, hx(WS_SP)))
srd(S_SPC, s_pair[0], s_pair[1], 524288, s_t1)
e(salu("s_mov_b32", s_cq, s_t2, scc_w=False)); e(salu("s_bfe_u32", s_cg, S(2), "0x30003"))
e(salu("s_lshl_b32", s_myfl, s_qb, 2)); e(salu("s_add_u32", s_myfl, s_myfl, s_w)); e(salu("s_lshl_b32", s_myfl, s_myfl, 8))
e(salu("s_lshl_b32", s_t1, s_g, 2)); e(salu("s_add_u32", s_myfl, s_myfl, s_t1))
e(salu("s_lshl_b32", s_m0b, s_w, 12)); e(salu("s_add_u32", s_m0b, s_m0b, RING))
GM = int(os.environ.get("GM", "0"))
if GM:
    e(salu("s_lshl_b32", s_t1, s_w, 3)); e(salu("s_add_u32", s_t1, s_t1, s_g))
    e(salu("s_lshr_b32", s_t2, s_g, 1)); e(salu("s_add_u32", s_t2, s_t2, 24))
    e(scmp("s_cmp_eq_u32", s_w, 3)); e(salu("s_cselect_b32", s_t1, s_t2, s_t1, scc_w=False, scc_r=True))
else:
    e(salu("s_and_b32", s_t1, s_g, 1)); e(salu("s_lshl_b32", s_t1, s_t1, 2)); e(salu("s_add_u32", s_t1, s_t1, s_w))
    e(scmp("s_cmp_eq_u32", s_w, 3)); e(salu("s_cselect_b32", s_t1, 3, s_t1, scc_w=False, scc_r=True))
    e(salu("s_lshr_b32", s_t2, s_g, 1)); e(salu("s_mul_i32", s_t2, s_t2, 7, scc_w=False)); e(salu("s_add_u32", s_t1, s_t1, s_t2))
e(salu("s_lshl_b32", s_h0, s_t1, 13)); e(salu("s_add_u32", s_h1, s_h0, 4096))
e(salu("s_lshl_b32", s_t1, s_t1, 7))
e(salu("s_lshl_b32", s_t2, s_g, 2)); e(salu("s_add_u32", s_t2, s_t2, s_w)); e(salu("s_lshl_b32", s_t2, s_t2, 8))

def dma_voffs(dst, stride, colbase_s, perm):
    for j in range(4):
        e(valu("v_bfe_u32", vx, v_lane, 1, 2)); e(valu("v_bfe_u32", vy, v_lane, 4, 1))
        e(valu("v_xor_b32", vx, vx, vy))
        if j & 1: e(valu("v_xor_b32", vx, 2, vx))
        e(valu("v_and_b32", vy, 1, v_lane)); e(valu("v_lshlrev_b32", vy, 4, vy)); e(valu("v_lshl_add_u32", vx, vx, 5, vy))
        if not perm:
            e(valu("v_lshrrev_b32", vy, 3, v_lane)); rowadd = 8 * j
        else:
            e(valu("v_bfe_u32", vy, v_lane, 3, 2)); e(valu("v_bfe_u32", vz, v_lane, 5, 1)); e(valu("v_lshl_add_u32", vy, vz, 4, vy)); rowadd = 4 * j
        e(valu("v_mul_u32_u24", vy, stride, vy))
        e(valu("v_add3_u32", vx, vx, vy, colbase_s))
        e(valu("v_add_u32", dst[j], rowadd * stride - j * 1024, vx))

dma_voffs(v_dA, 3584, s_t1, False)
dma_voffs(v_dB, 8192, s_t2, False)

def m0set(p): return salu("s_add_u32", "m0", s_m0b, p * 16384) if p < 6 else salu("s_sub_u32", "m0", s_m0b, RING - (p - 6) * 16384)
def s1_dma(m):
    p = m % 6
    if ORD and m < 64: m ^= 32
    if m < 32:
        s, h = m >> 1, m & 1
        return [m0set(p), salu("s_mov_b32", s_off, s * 32 * 3584, scc_w=False)], [dma(v_dA[j], S_WU if h else S_WG, s_off, j * 1024) for j in range(4)]
    if m < 64:
        s, h = (m - 32) >> 1, m & 1
        return [m0set(p), salu("s_mov_b32", s_off, s * 32 * 8192 + 128 * h, scc_w=False)], [dma(v_dB[j], S_WQ, s_off, j * 1024) for j in range(4)]
    if m == 64:
        return [m0set(p), salu("s_mov_b32", s_off, 0, scc_w=False)], [dma(v_kd[j], S_K, s_off, j * 1024) for j in range(4)]
    if m == 65:
        return [m0set(p), salu("s_mov_b32", s_off, 8192, scc_w=False)], [dma(v_kd[j], S_K, s_off, j * 1024) for j in range(4)]
    if m == 66:
        return [m0set(p), salu("s_mov_b32", s_off, 0, scc_w=False)], [dma(v_vd[j & 1], S_V, s_off, j * 1024) for j in range(4)]
    return None
dtok = {}
ln_v = []
for m in range(6):
    sa, dm = s1_dma(m)
    ln_v.append(sa); ln_v += dm
    dtok[m] = dm[3]
def xaddr(dst, tmp):
    e(valu("v_and_b32", dst, 15, v_lane)); e(salu("s_lshl_b32", s_t0, s_w, 4)); e(valu("v_add_u32", dst, s_t0, dst)); e(valu("v_lshlrev_b32", dst, 10, dst))
    e(valu("v_lshrrev_b32", tmp, 4, v_lane)); e(valu("v_lshl_add_u32", dst, tmp, 3, dst)); e(salu("s_lshl_b32", s_t0, s_cg, 7)); e(valu("v_add_u32", dst, s_t0, dst))
WQT = int(os.environ.get("WQT", "0"))
wqt = [raw("s_mov_b64 exec, " + TL, "salu", wr=["exec"]), bload(V(46), vwq, S_WQ, 0, n=1), raw("s_mov_b64 exec, -1", "salu", wr=["exec"])]
WQC = int(os.environ.get("WQC", "2"))
wqs = wqt
if ORD:
    e(salu("s_lshl_b32", s_t3, S(2), 1)); e(salu("s_and_b32", s_t1, s_w, 1)); e(salu("s_add_u32", s_t3, s_t3, s_t1)); e(salu("s_mul_i32", s_t3, s_t3, 3584, scc_w=False))
    e(valu("v_lshlrev_b32", V(54), 7, v_lane)); e(valu("v_add_u32", V(54), s_t3, V(54)))
    wqt = [raw("s_mov_b64 exec, 0xfffffff", "salu", wr=["exec"]), I("global_load_dword %s, %s, %s" % (V(49), V(54), s_wgp), "vmem", rd=["v54"] + s_wgp.regs(), wr=["v49"]), raw("s_mov_b64 exec, -1", "salu", wr=["exec"])]
    wqs = [raw("s_mov_b64 exec, " + TL, "salu", wr=["exec"]), I("global_load_dword %s, %s, %s" % (V(46), vwg, s_wgp), "vmem", rd=vwg.regs() + s_wgp.regs(), wr=["v46"]), raw("s_mov_b64 exec, -1", "salu", wr=["exec"])]
elif WQC:
    e(salu("s_lshl_b32", s_t3, S(2), 2)); e(salu("s_add_u32", s_t3, s_t3, s_w)); e(salu("s_lshl_b32", s_t3, s_t3, 12))
    e(valu("v_lshlrev_b32", V(54), 7, v_lane)); e(valu("v_add_u32", V(54), s_t3, V(54)))
    wqt = [raw("s_mov_b64 exec, 0xffffffff", "salu", wr=["exec"]), bload(V(49), V(54), S_WQ, 0, n=1), raw("s_mov_b64 exec, -1", "salu", wr=["exec"])]
if WT == 2:
    wgt = [raw("s_mov_b64 exec, " + TL, "salu", wr=["exec"]), I("global_load_dword %s, %s, %s" % (V(51), vwg, s_wgp), "vmem", rd=vwg.regs() + s_wgp.regs(), wr=V(51).regs()), raw("s_mov_b64 exec, -1", "salu", wr=["exec"])]
    ln_v.insert(int(os.environ.get("WTP", "0")), wgt)
if WQT == 0: ln_v.append(wqt)
LNPRE = int(os.environ.get("LNPRE", "0"))
lv = [0]
def ln_issue(n=1):
    k = 0
    while k < n and lv[0] < len(ln_v):
        it = ln_v[lv[0]]; lv[0] += 1
        e(it)
        if not isinstance(it, list): k += 1
e(valu("v_bfe_u32", vr, v_lane, 2, 2)); e(valu("v_and_b32", vc_, 3, v_lane))
e(valu("v_lshlrev_b32", vx, 10, vG)); e(valu("v_lshl_add_u32", vx, vr, 7, vx)); e(valu("v_lshl_add_u32", vx, vc_, 3, vx)); e(valu("v_add_u32", vx, s_m0b, vx))
e(valu("v_lshrrev_b32", vy, 1, vr)); e(valu("v_and_b32", vz, 1, vG)); e(valu("v_lshl_add_u32", vy, vz, 1, vy))
for u in range(4):
    e(valu("v_xor_b32", vz, u, vy)); e(valu("v_lshl_add_u32", v_tr[0][u], vz, 5, vx)); e(valu("v_add_u32", v_tr[1][u], 3 * 16384, v_tr[0][u]))
e(valu("v_xor_b32", vy, vG, vq))
for ds in range(4):
    e(valu("v_xor_b32", vz, 4 * ds, vy)); e(valu("v_lshlrev_b32", vz, 4, vz)); e(valu("v_lshl_add_u32", vz, vq, 8, vz)); e(valu("v_add_u32", v_ka[ds], RING + 4 * 16384, vz))
e(valu("v_lshl_add_u32", vx, vG, 2, vr)); e(valu("v_and_b32", vy, 7, vx)); e(valu("v_lshlrev_b32", vx, 8, vx)); e(valu("v_lshl_add_u32", vx, vc_, 3, vx)); e(valu("v_add_u32", vx, RING, vx))
for db in range(8):
    e(valu("v_xor_b32", vz, db, vy)); e(valu("v_lshl_add_u32", v_va[db], vz, 5, vx))
e(salu("s_lshl_b32", s_t1, s_w, 12))
e(valu("v_lshlrev_b32", vx, 8, vG)); e(valu("v_add_u32", vx, s_t1, vx))
for j in range(4):
    e(valu("v_add_u32", vy, 4 * j, vG)); e(valu("v_xor_b32", vy, vy, vq)); e(valu("v_lshl_add_u32", v_kd[j], vy, 4, vx))
e(valu("v_and_b32", vz, 1, v_lane)); e(valu("v_lshl_add_u32", vx, vz, 4, vx))
for j in range(2):
    e(valu("v_add_u32", vy, 4 * j, vG)); e(valu("v_lshrrev_b32", vz, 1, vq)); e(valu("v_xor_b32", vy, vy, vz)); e(valu("v_lshl_add_u32", v_vd[j], vy, 5, vx))
e(salu("s_lshl_b32", s_t1, s_w, 14)); e(valu("v_add_u32", v_wl, s_t1, v_lin))
for ks in range(XFIRST, 16): xissue(ks)
if XD == 2:
    e(valu("v_xor_b32", vx, vq, vG)); e(valu("v_lshlrev_b32", vy, 8, vq)); e(valu("v_add_u32", vy, s_xb, vy))
    for b_ in range(4): e(valu("v_xor_b32", vz, 4 * b_, vx)); e(valu("v_lshl_add_u32", V(48 + 0) if False else vxr[b_], vz, 4, vy))
elif XD:
    e(valu("v_lshrrev_b32", vx, 1, vq)); e(valu("v_xor_b32", vx, vx, vG)); e(valu("v_lshlrev_b32", vx, 4, vx))
    e(valu("v_lshl_add_u32", vx, vq, 7, vx)); e(valu("v_add_u32", vxr[0], s_xb, vx)); e(valu("v_xor_b32", vxr[1], 64, vxr[0]))
e(salu("s_mov_b32", s_t1, hx(WS_FL), scc_w=False))
srd(S_FL, s_pair[0], s_pair[1], 32768, s_t1)
if WQT == 1: e(wqt)
ln_issue(LNPRE)
stamp()

v_f = V(128, 128)
LNM = int(os.environ.get("LNM", "1"))
vsum, vtmp, vmb, vdm = V(40), V(41), V(42), V(43)
vneg = V(56, 2)
diag(2)
if LNM:
    d1, d2 = V(56, 4), (V(60, 4) if XD != 2 else A(196, 4))
    xr = {}
    def xread(t2):
        em.wait(vm=xl[2 * t2 + 1])
        for ks in (2 * t2, 2 * t2 + 1): xr[ks] = e(dsread("ds_read_b128", v_xp[(4 * ks, 4)], vxr[ks & 1], (ks >> 1) * 2048))
    e(valu("v_mov_b32", vtmp, "0x3f803f80"))
    for i in range(4): e(valu("v_accvgpr_write_b32", a_ones[i], vtmp))
    e(valu("v_and_b32", vtmp, 3, v_lane))
    for r in range(1, 4): e(valu("v_cmp_eq_u32", S(68 + 2 * r, 2), r, vtmp))
    e(valu("v_bfe_u32", vtmp, v_lane, 2, 2)); e(valu("v_lshrrev_b32", vmb, 4, v_lane)); e(valu("v_cmp_eq_u32", S(68, 2), vtmp, vmb))
    LND = int(os.environ.get("LND", "4"))
    def xread4(sg):
        em.wait(vm=xl[4 * sg + 3])
        for ks in range(4 * sg, 4 * sg + 4): xr[ks] = e(dsread("ds_read_b128", v_xp[(4 * ks, 4)], vxr[ks & 3], sg * 4096))
    if XD == 1: xread(0)
    for ks in range(16):
        if XD == 2:
            if ks % 4 == 0: xread4(ks // 4)
            em.wait(lg=xr[ks])
        elif XD:
            if ks % 2 == 0 and ks + 2 < 16: xread(ks // 2 + 1)
            em.wait(lg=xr[ks])
        else: em.wait(vm=xl[ks])
        if ks == 15: diag(2)
        x4 = v_xp[(4 * ks, 4)]
        e(mfma(d1, a_ones, x4, 0 if ks == 0 else d1))
        if ks >= LND: ln_issue(1)
        for k in range(2):
            p = 4 * ks + k
            e(valu("v_lshlrev_b32", v_f[2 * p], 16, v_xp[p])); e(valu("v_and_b32", v_f[2 * p + 1], "0xffff0000", v_xp[p]))
        e(mfma(d2, x4, x4, 0 if ks == 0 else d2))
        for k in range(2, 4):
            p = 4 * ks + k
            e(valu("v_lshlrev_b32", v_f[2 * p], 16, v_xp[p])); e(valu("v_and_b32", v_f[2 * p + 1], "0xffff0000", v_xp[p]))
    if STAMP == 3: stamp()
    ln_issue(int(os.environ.get("LN_FIRST", "0")))
    diag(2)
    if STAMP == 3: stamp()
    e(nop(2))
    if XD == 2:
        e(nop(2))
        for r in range(4): e(valu("v_accvgpr_read_b32", V(60 + r), d2[r]))
        d2 = V(60, 4)
    e(valu("v_mul_f32", vsum, hx(f2u(1.0 / 512)), d1[0]))
    e(valu("v_cvt_pk_bf16_f32", vmb, vsum, vsum)); e(valu("v_lshlrev_b32", vmb, 16, vmb))
    e(valu("v_mov_b32", vdm, vsum))
    for r in range(1, 4): e(valu("v_cndmask_b32", d2[0], d2[0], d2[r], S(68 + 2 * r, 2)))
    e(valu("v_cndmask_b32", vsum, 0, d2[0], S(68, 2)))
    red4("v_add_f32", [vsum], [vtmp])
    e(valu("v_mul_f32", vsum, hx(f2u(1.0 / 512)), vsum))
    e(valu("v_fma_f32", vsum, "-" + str(vdm), vdm, vsum, extra_rd=vdm.regs()))
    if STAMP == 3: stamp()
else:
    acc = [V(56, 2), V(58, 2), V(60, 2), V(62, 2)]
    for ks in range(16):
        em.wait(vm=xl[ks])
        if ks == 15: diag(2)
        for k in range(4):
            p = 4 * ks + k
            e(valu("v_lshlrev_b32", v_f[2 * p], 16, v_xp[p])); e(valu("v_and_b32", v_f[2 * p + 1], "0xffff0000", v_xp[p]))
        for k in range(4):
            p = 4 * ks + k
            if ks == 0: e(valu("v_mov_b64", acc[k], v_f[(2 * p, 2)]))
            else: e(valu("v_pk_add_f32", acc[k], acc[k], v_f[(2 * p, 2)]))
    if STAMP == 3: stamp()
    ln_issue(int(os.environ.get("LN_FIRST", "12")))
    diag(2)
    if STAMP == 3: stamp()
    e(valu("v_pk_add_f32", acc[0], acc[0], acc[1])); e(valu("v_pk_add_f32", acc[2], acc[2], acc[3])); e(valu("v_pk_add_f32", acc[0], acc[0], acc[2]))
    e(valu("v_add_f32", vsum, acc[0][0], acc[0][1]))
    red4("v_add_f32", [vsum], [vtmp])
    e(valu("v_mul_f32", vsum, hx(f2u(1.0 / 512)), vsum))
    e(valu("v_cvt_pk_bf16_f32", vmb, vsum, vsum)); e(valu("v_lshlrev_b32", vmb, 16, vmb))
    e(valu("v_sub_f32", vdm, vsum, vmb))
    e(valu("v_sub_f32", vneg[0], 0, vmb))
    acc2 = [V(58, 2), V(60, 2), V(62, 2)]
    for p in range(64):
        e(valu("v_pk_add_f32", v_f[(2 * p, 2)], v_f[(2 * p, 2)], vneg, mod="op_sel_hi:[1,0]"))
    for p in range(64):
        a_ = acc2[p % 3]
        if p < 3: e(valu("v_pk_mul_f32", a_, v_f[(2 * p, 2)], v_f[(2 * p, 2)]))
        else: e(valu("v_pk_fma_f32", a_, v_f[(2 * p, 2)], v_f[(2 * p, 2)], a_))
    if STAMP == 3: stamp()
    e(valu("v_pk_add_f32", acc2[0], acc2[0], acc2[1])); e(valu("v_pk_add_f32", acc2[0], acc2[0], acc2[2]))
    e(valu("v_add_f32", vsum, acc2[0][0], acc2[0][1]))
    red4("v_add_f32", [vsum], [vtmp])
    e(valu("v_mul_f32", vsum, hx(f2u(1.0 / 512)), vsum))
    e(valu("v_fma_f32", vsum, "-" + str(vdm), vdm, vsum, extra_rd=vdm.regs()))
e(valu("v_max_f32", vsum, 0, vsum))
e(valu("v_cvt_pk_bf16_f32", vsum, vsum, vsum)); e(valu("v_lshlrev_b32", vsum, 16, vsum))
e(valu("v_add_f32", vsum, hx(f2u(1e-5)), vsum))
e(valu("v_cvt_pk_bf16_f32", vsum, vsum, vsum)); e(valu("v_lshlrev_b32", vsum, 16, vsum))
e(valu("v_sqrt_f32", vsum, vsum)); e(nop(0))
e(valu("v_cvt_pk_bf16_f32", vsum, vsum, vsum)); e(valu("v_lshlrev_b32", vsum, 16, vsum))
e(valu("v_rcp_f32", vneg[0], vsum)); e(nop(0))
if LNM: e(valu("v_mul_f32", vneg[1], "-" + str(vmb), vneg[0], mod="", extra_rd=vmb.regs()))
for ks in range(16):
    for k in range(4):
        p = 4 * ks + k
        if LNM: e(valu("v_pk_fma_f32", v_f[(2 * p, 2)], v_f[(2 * p, 2)], vneg, vneg, mod="op_sel:[0,0,1] op_sel_hi:[1,0,1]"))
        else: e(valu("v_pk_mul_f32", v_f[(2 * p, 2)], v_f[(2 * p, 2)], vneg, mod="op_sel_hi:[1,0]"))
    for k in range(4):
        p = 4 * ks + k
        e(valu("v_cvt_pk_bf16_f32", v_xp[p], v_f[2 * p], v_f[2 * p + 1]))
    e(dswrite("ds_write_b128", v_wl, v_xp[(4 * ks, 4)], ks * 1024))
ln_issue(int(os.environ.get("LN_LAST", "100")))
if STAMP == 3: stamp()
if DUMP == "ln": dump_regs([v_xp[i] for i in range(64)])
em.wait(lg0=True)
e(raw("s_barrier"))
stamp(); diag(); diag(2); diag(3)

PA = int(os.environ.get("PA", "1"))
SNAKE = int(os.environ.get("SNAKE", "1"))
def cost_of(it):
    k = getattr(it, "kind", "")
    return 2 if k == "trans" else (0 if k in ("salu", "nop") else 1)
class Fill:
    def __init__(self, items, start, end, spread=False): self.items, self.start, self.end, self.spread = list(items), start, end, spread; self.i = 0
    def done(self): return self.i == len(self.items)
def run_stream(NH, dmaf, dtok, accf, Bf, extra, fills, LOOK=6, nq=4, posf=lambda m: m % 6, ring=a_ring, first_dma=6, tr2=None, early_dma=False, w2=lambda g: False):
    NG = 4 * NH
    rtok = {}
    def reads(g):
        m, u = g >> 2, g & 3
        p = posf(m)
        d = ring[((g % 8) * 4, 4)]
        ar, of = (v_tr[p // 3][u], (p % 3) * 16384) if p < 6 else (tr2[u], (p - 6) * 16384)
        r = [dsread("ds_read_b64_tr_b16", d[(2 * h2, 2)], ar, of + h2 * 512) for h2 in range(2)]
        rtok[g] = r[1]
        return r
    assert all(k < NG for k in extra), "extra item scheduled past the end of the stream"
    pre = [reads(g) for g in range(3)]
    G, C = [], []
    cur = None
    for g in range(NG):
        gaps = [[], [], [], []]; cap = [2, 2, 2, 2]
        if g + 3 < NG:
            if (g + 3) & 3 == 0 and not (g > 0 and w2(g - 1)): gaps[0].append(LateW(dtok, (g + 3) >> 2))
            r = reads(g + 3); gaps[0].append(r[0]); gaps[1].append(r[1]); cap[0] -= 1; cap[1] -= 1
        md, j = (g + 4 * LOOK - 4) >> 2, (g + 4 * LOOK - 4) & 3
        if early_dma:
            md, j = (g + 4 * LOOK - 3) >> 2, (g + 4 * LOOK - 3) & 3
            if md >= first_dma and j < 2:
                if j == 0: cur = dmaf(md)
                if cur is not None:
                    if j == 0: gaps[1] += cur[0]
                    gaps[2].append(cur[1][2 * j]); gaps[3].append(cur[1][2 * j + 1]); cap[2] -= 1; cap[3] -= 1
                    if j == 1: dtok[md] = cur[1][3]
        elif md >= first_dma:
            if j == 0: cur = dmaf(md)
            if cur is not None:
                if j == 0: gaps[2] += cur[0]
                for it in cur[1][j::4]: gaps[3].append(it); cap[3] -= 1
                if j == 3: dtok[md] = cur[1][3]
        for (gp, it, cost) in extra.get(g, []):
            gaps[gp].append(it); cap[gp] -= cost
        if w2(g):
            if g & 1 == 0 and g + 1 < NG:
                gaps[3].insert(0, LateW2(rtok, [x for x in (g + 1, g + 2) if x < NG], dtok, (g + 4) >> 2 if ((g + 4) & 3 == 0 and g + 4 < NG) else None))
        elif g + 1 < NG: gaps[3].insert(0, Wait(lg=rtok[g + 1]))
        G.append(gaps); C.append(cap)
    B = {}
    for f in fills:
        idx = [(g, q) for g in range(f.start, f.end) for q in range(4)]
        caps = [max(0, C[g][q]) for g, q in idx]
        W = sum(cost_of(it) for it in f.items); T = sum(caps); n = len(idx)
        acc = 0.0; cum = 0
        for k, key in enumerate(idx):
            if W >= T: acc += caps[k] + (W - T) / n
            elif f.spread: acc += caps[k] * W / T
            else: acc += caps[k]
            B[key] = (f, acc)
    em.wait(vm=dtok[0])
    for r in pre: e(r)
    for p_ in extra.get(-1, []): e(p_[1])
    em.wait(lg0=True)
    used = {id(f): 0 for f in fills}
    for g in range(NG):
        m, u = g >> 2, g & 3
        d = ring[((g % 8) * 4, 4)]
        for qb in range(nq):
            qq = 3 - qb if (SNAKE and g & 1) else qb
            ac, first = accf(m, u, qq)
            e(mfma(ac, d, Bf(m, qq), 0 if first else ac))
            ent = B.get((g, qb))
            sawv = False
            if ent:
                f, lim = ent
                while not f.done() and getattr(f.items[f.i], "kind", "") in ("lds", "vmem", "salu") and used[id(f)] + cost_of(f.items[f.i]) <= lim + 0.5:
                    it = f.items[f.i]; f.i += 1; used[id(f)] += cost_of(it); e(it)
            for it in G[g][qb]: e(it)
            if ent:
                f, lim = ent
                lastgap = (g == f.end - 1 and qb == 3)
                while not f.done():
                    it = f.items[f.i]; c = cost_of(it)
                    if not lastgap:
                        if used[id(f)] + c > lim + 0.5: break
                        if sawv and getattr(it, "kind", "") in ("lds", "vmem"): break
                    f.i += 1; used[id(f)] += c; e(it)
                    if getattr(it, "kind", "") in ("valu", "trans"): sawv = True
    assert all(f.done() for f in fills)
class LateW2:
    def __init__(self, r, fl, d, k): self.r, self.fl, self.d, self.k = r, fl, d, k
    def __call__(self): return Wait(lg=[self.r[f] for f in self.fl], vm=(self.d[self.k] if self.k is not None else None))
class LateW:
    def __init__(self, d, k): self.d, self.k = d, k
    def __call__(self): return Wait(vm=self.d[self.k])

def s1_acc(m, u, qb):
    h = m & 1
    idx = ((h * 4 + u) * 4 + qb) * 4
    if m < 32: return A(idx, 4), m < 2
    return v_acc[(idx, 4)], m < 34
def s1_B(m, qb): return a_B[(((m >> 1) & 1) * 16 + qb * 4, 4)]
extra = {}
btok = {}
W3Z = int(os.environ.get("W3Z", "1"))
v_lz = [V(50), V(51)]
def bread(s, qb): return dsread("ds_read_b128", a_B[((s & 1) * 16 + qb * 4, 4)], v_lz[qb >> 1] if (W3Z and (s >= 16 if ORD else s < 16)) else v_lin, (qb * 16 + (s % 16)) * 1024)
if W3Z:
    s_hz = [S(84 - 16 + 0), S(69)]
    for h in range(2):
        e(salu("s_and_b32", s_t0, s_g, 1)); e(salu("s_lshl_b32", s_t0, s_t0, 2)); e(salu("s_add_u32", s_t0, s_t0, s_w))
        e(scmp("s_cmp_eq_u32", s_t0, 7 if h == 0 else 3)); e(salu("s_cselect_b32", s_hz[h], "0x40000", 0, scc_w=False, scc_r=True))
        e(valu("v_add_u32", v_lz[h], s_hz[h], v_lin))
extra[-1] = [(0, bread(0, qb), 1) for qb in range(4)]
for s in range(1, 32):
    for qb in range(4):
        extra.setdefault(8 * (s - 1) + 1 + qb, []).append((2, bread(s, qb), 1))
gi = 0; gj = 0; pend_s = []
for it in ln_v[lv[0]:]:
    if isinstance(it, list) and all(x.kind == "salu" for x in it): pend_s = it; continue
    if not isinstance(it, list) and it.kind == "dma":
        assert gi < 12
        extra.setdefault(gi // 3, []).append((gi % 3, [pend_s, it] if pend_s else it, 1)); pend_s = []
        gi += 1
    else:
        extra.setdefault(8 + 2 * gj, []).append((1, it, 1)); gj += 1
if WQC == 2: extra.setdefault(int(os.environ.get("WQG", "40")), []).append((1, wqs, 1))
C0 = -2.0 * math.sqrt(2.0 / math.pi) * math.log2(math.e); C1 = C0 * 0.044715
vc0, vc1 = V(40), V(41)
gel = [valu("v_mov_b32", vc0, hx(f2u(C0))), valu("v_mov_b32", vc1, hx(f2u(C1)))]
hst = []
tb = 0
for i in range(2):
    for qb in range(4):
        pk = V(96 + 4 * tb, 4); tb += 1
        for b in range(2):
            u = 2 * i + b
            T = [V(64 + 16 * b + k) for k in range(16)]
            G_, U_, X_ = T[0:4], T[4:8], T[8:12]
            ga = lambda r: A((u * 4 + qb) * 4 + r); ua = lambda r: A(((4 + u) * 4 + qb) * 4 + r)
            for r in range(4): gel.append(valu("v_accvgpr_read_b32", G_[r], ga(r)))
            for r in range(4): gel.append(valu("v_accvgpr_read_b32", U_[r], ua(r)))
            for r in range(4): gel.append(valu("v_mul_f32", X_[r], G_[r], G_[r]))
            for r in range(4): gel.append(valu("v_fma_f32", X_[r], X_[r], vc1, vc0))
            for r in range(4): gel.append(valu("v_mul_f32", X_[r], X_[r], G_[r]))
            for r in range(4): gel.append(valu("v_exp_f32", X_[r], X_[r]))
            for r in range(4): gel.append(valu("v_mul_f32", G_[r], G_[r], U_[r]))
            for r in range(4): gel.append(valu("v_add_f32", X_[r], "1.0", X_[r]))
            for r in range(4): gel.append(valu("v_rcp_f32", X_[r], X_[r]))
            gel.append(nop(0))
            for r in range(4): gel.append(valu("v_mul_f32", G_[r], G_[r], X_[r]))
            for k in range(2): gel.append(valu("v_cvt_pk_bf16_f32", pk[2 * b + k], G_[2 * k], G_[2 * k + 1]))
        st = bstore(pk, v_lz[qb >> 1] if W3Z else v_lin, S_H, s_h1 if i else s_h0, off=qb * 1024, mod="sc1")
        hst.append(st)
class Stamp:
    def __call__(self): stamp(); return []
if STAMP: extra.setdefault(128, []).append((0, Stamp(), 0))
if STAMP == 6:
    for g_ in (0, 8, 16, 24, 32, 48, 64, 96): extra.setdefault(g_, []).append((0, Stamp(), 0))
class Diag3:
    def __call__(self): diag(3); return []
if DIAG == 3:
    for g_ in (32, 128, 192): extra.setdefault(g_, []).append((0, Diag3(), 0))
class Grp:
    kind = "salu"
    def __init__(self, l): self.l = l
    def __call__(self):
        for x in self.l:
            if x.kind == "label": em.out.append(x)
            else: e(x)
        return []
def group_scc(items):
    out = []
    for it in items:
        if out and ("scc" in it.rd or it.kind == "label"):
            p = out.pop(); out.append(Grp((p.l if isinstance(p, Grp) else [p]) + [it]))
        else: out.append(it)
    return out
s_pf = [S(24, 2), S(26, 2), S(28, 2), S(30, 2)]
s_pfH = s_pair2
s_fo = S(3)
QS = math.log2(math.e) / math.sqrt(128.0)
vqs = V(42, 2); vqw = V(44)
save = em.out; em.out = []; spend = em.pend; em.pend = {}
NWO = 4 if MAP2 else 2
for it in range(3):
    e(salu("s_add_u32", s_t0, s_w, 4 * it))
    e(salu("s_sub_u32", s_t1, s_t0, NWO)); e(salu("s_min_u32", s_t1, s_t1, 6)); e(salu("s_lshl_b32", s_t1, s_t1, 13))
    e(salu("s_lshr_b32", s_t2, S(2), 3)); e(salu("s_mul_i32", s_t2, s_t2, 57344, scc_w=False)); e(salu("s_add_u32", s_t1, s_t1, s_t2))
    e(salu("s_add_u32", s_pf[it][0], S_WD[0], s_t1)); e(salu("s_addc_u32", s_pf[it][1], S_WD[1], 0, scc_r=True))
    if it == 0:
        e(sx(s_t1)); e(salu("s_lshl_b32", s_t1, s_t1, 15 if MAP2 else 14)); e(salu("s_lshl_b32", s_t2, s_w, 13)); e(salu("s_add_u32", s_t1, s_t1, s_t2))
        e(salu("s_add_u32", s_pf[1][0], S_WO[0], s_t1)); e(salu("s_addc_u32", s_pf[1][1], S_WO[1], 0, scc_r=True))
        e(scmp("s_cmp_lt_u32", s_w, NWO)); e(salu("s_cselect_b64", s_pf[0], s_pf[1], s_pf[0], scc_w=False, scc_r=True))
e(raw("s_getpc_b64 %s" % s_pf[3], "salu", wr=[s_pf[3]]))
em.label("L_pc1")
e(salu("s_lshl_b32", s_t0, s_w, 13)); e(salu("s_add_u32", s_t0, s_t0, "L_tail-L_pc1")); e(salu("s_min_u32", s_t0, s_t0, "L_code_end-L_pc1-8192"))
e(salu("s_add_u32", s_t1, s_t0, (1 if MAP2 else 3) * 8192)); e(salu("s_min_u32", s_t1, s_t1, "L_code_end-L_pc1-8192"))
e(salu("s_add_u32", s_pfH[0], s_pf[3][0], s_t1)); e(salu("s_addc_u32", s_pfH[1], s_pf[3][1], 0, scc_r=True))
e(scmp("s_cmp_lt_u32", s_w, 3 if MAP2 else 1)); e(salu("s_cselect_b64", s_pf[2], s_pf[2], s_pfH, scc_w=False, scc_r=True))
e(salu("s_add_u32", s_pf[3][0], s_pf[3][0], s_t0)); e(salu("s_addc_u32", s_pf[3][1], s_pf[3][1], 0, scc_r=True))
e(salu("s_lshl_b32", s_t0, s_cg, 2)); e(salu("s_add_u32", s_t0, s_t0, s_w)); e(salu("s_mul_i32", s_t0, s_t0, 7168, scc_w=False)); e(salu("s_min_u32", s_t0, s_t0, 229376 - 8192))
e(salu("s_add_u32", s_pfH[0], S_HC[0], s_t0)); e(salu("s_addc_u32", s_pfH[1], S_HC[1], 0, scc_r=True))
e(salu("s_lshl_b32", s_fo, s_cq, 3))
vx, vy, vz = V(45), V(46), V(47)
e(salu("s_lshl_b32", s_t1, s_w, 8))
pf_part = len(em.out)
dma_voffs(v_wo, 1024, s_t1, True)
e(salu("s_mul_i32", s_wdd, s_w, 448 * 1024 - 256, scc_w=False)); e(salu("s_lshl_b32", s_t3, s_cg, 7)); e(salu("s_add_u32", s_wdd, s_wdd, s_t3))
e(valu("v_mov_b32", vqs[0], hx(f2u(QS))))
e(valu("v_and_b32", vx, 15, v_lane)); e(valu("v_bfe_u32", vqw, v_lane, 5, 1)); e(valu("v_lshl_add_u32", vx, vqw, 4, vx)); e(valu("v_lshlrev_b32", vx, 4, vx))
e(valu("v_bfe_u32", vqw, v_lane, 4, 1)); e(valu("v_lshl_add_u32", vqw, vqw, 3, vx))
e(salu("s_lshl_b32", s_t1, s_w, 14)); e(valu("v_add_u32", vqw, s_t1, vqw))
for i in range(16): e(valu("v_accvgpr_write_b32", a_L[i], 0))
midset = group_scc(em.out[pf_part - 1:]) if ORD else group_scc(em.out)
pfset = group_scc(em.out[:pf_part - 1]); em.out = save; em.pend = spend
qconv = []
if ORD:
    QS_ = V(42)
    for ds in range(4):
        for q2 in range(2):
            T = [[V(64 + 16 * (q2 & 1) + 8 * j + k) for k in range(8)] for j in range(2)]
            qs = [2 * q2, 2 * q2 + 1]
            for k in range(8):
                for j in range(2): qconv.append(valu("v_accvgpr_read_b32", T[j][k], A(((2 * ds + (k >> 2)) * 4 + qs[j]) * 4 + (k & 3))))
            for k in range(8):
                for j in range(2): qconv.append(valu("v_mul_f32", T[j][k], QS_, T[j][k]))
            for k in range(4):
                for j in range(2): qconv.append(valu("v_cvt_pk_bf16_f32", T[j][k], T[j][2 * k], T[j][2 * k + 1]))
            for sw in ("v_permlane32_swap_b32", "v_permlane16_swap_b32"):
                for k in range(2):
                    for j in range(2): qconv.append(valu(sw, T[j][k], T[j][k + 2]))
            for k in range(4):
                for j in range(2): qconv.append(valu("v_accvgpr_write_b32", A((8 * ds + qs[j]) * 4 + k), T[j][k]))
HST = int(os.environ.get("HST", "0"))
if HST == 0: GEL_END = 254
for k in range(8):
    if HST: extra.setdefault(248 + k, []).append((0, hst[k], 1))
run_stream(64, s1_dma, dtok, s1_acc, s1_B, extra, [Fill(midset, 109, 130), Fill(qconv, 131, 236), Fill(pfset, 237, 255)] if ORD else [Fill(midset, 109, 130), Fill(gel, 131, GEL_END)], early_dma=int(os.environ.get('ED1', '0')), w2=lambda g: int(os.environ.get('W2A', '1')) and g >= 130 and not ORD)
if DUMP == "qacc": dump_regs([v_acc[i] for i in range(128)])
stamp(); diag(3)

if not ORD:
    em.wait(lg0=True)
    e(raw("s_barrier"))
def signal(off_s_expr_add, lab, v_t):
    e(scmp("s_cmp_lg_u32", s_w, 0)); e(raw("s_cbranch_scc1 %s" % lab, rd=["scc"]))
    e(salu("s_lshl_b32", s_t0, s_qb, 2))
    if off_s_expr_add: e(salu("s_add_u32", s_t0, s_t0, off_s_expr_add))
    e(valu("v_mov_b32", v_t, 1))
    e(raw("s_mov_b64 exec, 1", "salu", wr=["exec"]))
    e(raw("buffer_atomic_add %s, off, %s, %s sc1" % (v_t, S_DBG, s_t0)))
    e(raw("s_mov_b64 exec, -1", "salu", wr=["exec"]))
    em.label(lab)
if ORD:
    cc = V(40, 2); one = V(44, 2)
    e(valu("v_mov_b32", cc[0], hx(f2u(C0)))); e(valu("v_mov_b32", cc[1], hx(f2u(C1)))); e(valu("v_mov_b32", one[0], "1.0")); e(nop(4))
    for i in range(2):
        for qb in range(4):
            pk = V(96 + 4 * (i * 4 + qb), 4)
            P_ = [(v_acc[(((2 * i + b) * 4 + qb) * 4 + 2 * k, 2)], v_acc[(((4 + 2 * i + b) * 4 + qb) * 4 + 2 * k, 2)], V(64 + 2 * (2 * b + k), 2)) for b in range(2) for k in range(2)]
            for g_, u_, x_ in P_: e(valu("v_pk_mul_f32", x_, g_, g_))
            for g_, u_, x_ in P_: e(valu("v_pk_fma_f32", x_, x_, cc, cc, mod="op_sel:[0,1,0] op_sel_hi:[1,1,0]"))
            for g_, u_, x_ in P_: e(valu("v_pk_mul_f32", x_, x_, g_))
            for g_, u_, x_ in P_: e(valu("v_exp_f32", x_[0], x_[0])); e(valu("v_exp_f32", x_[1], x_[1]))
            for g_, u_, x_ in P_: e(valu("v_pk_mul_f32", g_, g_, u_))
            for g_, u_, x_ in P_: e(valu("v_pk_add_f32", x_, x_, one, mod="op_sel_hi:[1,0]"))
            for g_, u_, x_ in P_: e(valu("v_rcp_f32", x_[0], x_[0])); e(valu("v_rcp_f32", x_[1], x_[1]))
            for g_, u_, x_ in P_: e(valu("v_mov_b64", u_, 0))
            for g_, u_, x_ in P_: e(valu("v_pk_mul_f32", g_, g_, x_))
            for k, (g_, u_, x_) in enumerate(P_): e(valu("v_cvt_pk_bf16_f32", pk[k], g_[0], g_[1]))
for blk in range(8 if not ORD else 0):
    for qb in range(4):
        a_ = v_acc[((blk * 4 + qb) * 4, 4)]
        t = a_[(0, 2)]
        for k in range(2): e(valu("v_pk_mul_f32", a_[(2 * k, 2)], a_[(2 * k, 2)], vqs, mod="op_sel_hi:[1,0]"))
        for k in range(2): e(valu("v_cvt_pk_bf16_f32", t[k], a_[2 * k], a_[2 * k + 1]))
        e(dswrite("ds_write_b64", vqw, t, (qb * 4 + (blk >> 1)) * 1024 + (blk & 1) * 512))
for j in range(4): e(valu("v_add_u32", v_wd[j], s_wdd, v_wo[j]))
if not ORD: em.wait(lg0=True)
for f in range(16 if not ORD else 0): e(dsread("ds_read_b128", a_Q[(4 * f, 4)], v_wl, f * 1024))
e(scmp("s_cmp_eq_u32", s_retry, 1)); e(raw("s_cbranch_scc1 L_maxpass", rd=["scc"]))
em.label("L_att_start")
NZ0 = 32
for i in range(NZ0 if not ORD else 1): e(valu("v_mov_b64", v_acc[(2 * i, 2)], 0))
assert LSUM == 1 and LNM and not POI
e(valu("v_lshlrev_b32", V(3), 7, v_lane))
e(valu("v_and_b32", V(38), 7, v_lane)); e(valu("v_mov_b32", V(0), 0))
em.wait(vm=dtok[66], lg0=True)
e(raw("s_barrier"))
if DUMP == "q": dump_regs([a_Q[i] for i in range(64)])
stamp()

def Qf(qb, ds): return A((8 * ds + qb) * 4, 4) if ORD else a_Q[((qb * 4 + ds) * 4, 4)]
def Of(db, qb): return v_acc[((db * 4 + qb) * 4, 4)]
def fr(f): return a_ring[((f % 8) * 4, 4)]
def kslot(par): return 16384 if par == 0 else 0
def vslot(par): return 0 if par == 0 else 16384
def frag_reads(par, f):
    if f >= 32: par ^= 1; f -= 32
    d = fr(f)
    if f < 8 or 16 <= f < 24:
        kb = (f >> 2) if f < 8 else 2 + ((f - 16) >> 2)
        return [dsread("ds_read_b128", d, v_ka[f & 3], kslot(par) + kb * 4096)]
    ks2 = 0 if f < 16 else 1
    db = f & 7
    return [dsread("ds_read_b64_tr_b16", d[(2 * h, 2)], v_va[db], vslot(par) + ks2 * 8192 + h * 4096) for h in range(2)]
def read_sched(g):
    r = []
    if g + 3 < 24 or g >= 29: r.append(g + 3)
    if 19 <= g <= 26: r.append(g + 5)
    return r
def sm_val(g, k):
    if 7 <= g <= 22: b = 1; n = 2 * (g - 7) + k
    else: b = 0; n = 2 * ((g - 23) % 32) + k
    kb, qb, r = n >> 4, (n >> 2) & 3, n & 3
    return b, qb, kb, r
def sm_items(g):
    ex, ad = [], []
    for k in range(2):
        b, qb, kb, r = sm_val(g, k)
        x = v_S[b][qb * 8 + kb * 4 + r]
        l = (v_l1 if b else v_l0)[qb]
        ex.append(valu("v_exp_f32", x, x)); ad.append(valu("v_add_f32", l, l, x))
    b, qb, kb, r = sm_val((g - 1) % 32, 0)
    cv = valu("v_cvt_pk_bf16_f32", v_S[b][qb * 8 + kb * 2 + (r >> 1)], v_S[b][qb * 8 + kb * 4 + r], v_S[b][qb * 8 + kb * 4 + r + 1])
    return ex, ad, cv
def att_dma(par, g):
    if g >= 29: k = g - 29; sp = par
    elif g <= 4: k = g + 3; sp = par ^ 1
    else: return [], None
    sal = []
    if k == 0: sal = [salu("s_add_u32", "m0", s_m0b, 4 * 16384 + kslot(sp))]
    if k == 4: sal = [salu("s_add_u32", "m0", s_m0b, vslot(sp))]
    if k < 4: return sal, dma(v_kd[k], S_K, s_kK, k * 1024)
    return sal, dma(v_vd[k & 1], S_V, s_kV, (k - 4) * 1024)
SIDE_FIRST = 11
class Lbl:
    def __init__(self, n): self.n = n
    def __call__(self): em.label(self.n); return []
class LoopStamp:
    def __init__(self, k, par): self.k, self.par = k, par
    def __call__(self):
        k = self.k
        e(raw("s_memtime %s" % S(68 + 2 * k, 2), "other", wr=[S(68 + 2 * k, 2)]))
        if k == 2:
            e(raw("s_waitcnt lgkmcnt(0)", "wait")); em._retire(em.lgq, 0)
            for i in range(3): e(valu("v_writelane_b32", v_c, S(68 + 2 * i), i, rmw=True))
            e(salu("s_lshl_b32", S(74), S(2), 2)); e(salu("s_add_u32", S(74), S(74), s_w)); e(salu("s_lshl_b32", S(74), S(74), 4))
            e(salu("s_sub_u32", S(74), S(74), s_cnt)); e(salu("s_add_u32", S(74), S(74), 16)); e(salu("s_lshl_b32", S(74), S(74), 5))
            e(salu("s_add_u32", S(74), S(74), (1 << 20) + 16 * self.par))
            e(raw("s_mov_b64 exec, 7", "salu", wr=["exec"]))
            e(valu("v_lshlrev_b32", v_t, 2, v_lane))
            e(bstore(v_c, v_t, S_DMP, S(74), off=0))
            e(raw("s_mov_b64 exec, -1", "salu", wr=["exec"]))
            e(valu("v_lshlrev_b32", v_t, 7, v_lane))
        return []
v_tch, v_flag, v_fa = V(3), V(0), V(38)
xtok = []; lastdma = [None]
NITER = 14
s_po0, s_po1, s_poe = s_h0, s_h1, s_off
s_pfc = S(16, 2); s_kvt = S(18, 2); KVIT = int(os.environ.get('KVIT', '12'))
ROT = int(os.environ.get('ROT', '8'))
LQ = int(os.environ.get("LQ", "2"))
def plan_adds():
    nmem = {}
    for g in range(32):
        n = sum(1 if (f % 32 < 8 or 16 <= f % 32 < 24) else 2 for f in read_sched(g)) + (1 if (g >= 29 or g <= 4) else 0) + (1 if g in (13, 14) else 0)
        nmem[g] = n
    free = {}
    for g in range(32):
        n = nmem[g]; a1 = 2 if n > 2 else min(n, 1); a3 = n - a1
        if a1 < 2: a1 += 1
        else: a3 += 1
        if g == 0: a1 += 1
        free[(g, 1)] = max(0, 2 - a1); free[(g, 3)] = max(0, 2 - a3)
        free[(g, 4)] = 2 if ((g & 8) and (g & 1) and ((g & 7) >> 1) < LQ) else 0
    jobs = []
    for g in range(7, 39):
        for k in range(2):
            b, qb, kb, r = sm_val(g % 32, k)
            if qb < LQ: continue
            early = 4 * g + (1 if k == 0 else 3)
            idx = kb * 4 + r
            if idx < 4:
                gsrc = g + 1 if idx == 0 else (g + 2 if idx == 1 else (g + 8 if idx == 2 else g + 9))
                dead = 4 * gsrc
            else: dead = 4 * (g + 11)
            if b == 1: dead = min(dead, 4 * 30)
            jobs.append((dead, early, b, qb, idx))
    plan = {}
    for dead, early, b, qb, idx in sorted(jobs):
        for t in range(early, dead):
            g, q = t >> 2, t & 3
            for gp in ([1] if q == 1 else ([3, 4] if q == 3 else [])):
                if free[(g % 32, gp)] > 0:
                    free[(g % 32, gp)] -= 1; plan.setdefault((g % 32, gp), []).append((b, qb, idx, g)); break
            else: continue
            break
        else:
            g = early >> 2; plan.setdefault((g % 32, early & 3), []).append((b, qb, idx, g)); print("; add overflow", g, file=sys.stderr)
    return plan
ADDS = plan_adds() if LSUM == 3 else {}
def add_items(g, gp, fin, pro):
    out = []
    for b, qb, idx, gabs in ADDS.get((g, gp), []):
        if fin and b == 0 and g >= 23: continue
        if pro and b == 1: continue
        out.append(valu("v_add_f32", v_l1[qb], v_l1[qb], v_S[b][qb * 8 + idx]))
    return out
ftok = {}
def att_group(par, g, do_mfma=True, do_mem=True, do_cvt=True, last=False, pp=None, xmem=(), xsal=(), xvalu=None):
    ex, ad, cv = sm_items(g)
    mem = []
    sal = []
    fin = (pp == 3)
    d = None
    if do_mem:
        if fin: sched = ([g + 3] if g + 3 < 16 else []) + ([g + 11] if 13 <= g <= 20 else [])
        else: sched = read_sched(g)
        for f in sched:
            r = frag_reads(par, f); mem += r; ftok[f % 32] = r
        if pp is None or (g <= 4 and pp <= 2) or (g >= 29 and pp <= 1):
            sal, d = att_dma(par, g)
            if d is not None: mem.append(d)
    loop = do_mem and pp is None
    post0 = []
    if loop and par == 0:
        if g == 14: mem.append(I("global_load_dword %s, %s, %s" % (v_c, v_tch, s_pfc), "vmem", rd=v_tch.regs() + s_pfc.regs(), wr=[]))
        if g == 13: mem.append(I("buffer_load_ubyte %s, %s, %s, %s offen sc1" % (v_flag, v_fa, S_DBG, s_t2), "vmem", rd=S_DBG.regs() + s_t2.regs() + v_fa.regs(), wr=[]))
        if g == 8: sal = sal + [scmp("s_cmp_le_u32", s_cnt, ROT)]
        if g in (9, 10, 11, 12):
            q_ = [s_pfc] + s_pf
            sal = sal + [salu("s_cselect_b64", q_[g - 9], q_[g - 8], q_[g - 9], scc_w=False, scc_r=True)]
        if g == 0: post0 = [valu("v_cmp_eq_u32", "vcc", 1, v_flag)]
        if g == 2: sal = sal + [raw("s_cmp_eq_u32 vcc_lo, -1", "salu", rd=["vcc"], wr=["scc"])]
        if g == 3: sal = sal + [salu("s_cselect_b32", s_t0, s_cnt, -1, scc_w=False, scc_r=True)]
        if g == 4: sal = sal + [scmp("s_cmp_eq_u32", s_t0, ROT - 1)]
        if g == 5: sal = sal + [salu("s_cselect_b64", s_pf[3], s_pfH, s_pf[3], scc_w=False, scc_r=True)]
        if g == 15: sal = sal + [salu("s_cselect_b64", s_pf[3], S_K[(0, 2)], s_pf[3], scc_w=False, scc_r=True)]
        if g == 20: sal = sal + [scmp("s_cmp_eq_u32", s_cnt, KVIT + 1)]
        if g == 21: sal = sal + [salu("s_cselect_b64", s_pfc, s_kvt, S_K[(0, 2)], scc_w=False, scc_r=True)]
        if g == 13: sal = sal + [salu("s_cselect_b32", s_t2, s_fo, 256, scc_w=False, scc_r=True)]
        if g == 18: sal = sal + [scmp("s_cmp_eq_u32", s_cnt, s_sig)]
        if g == 19: sal = sal + [raw("s_cbranch_scc1 L_sigH_side", rd=["scc"]), Lbl("L_sigH_ret")]
    if loop and POI and par == 0 and do_mfma:
        if g == 22: sal = sal + [salu("s_add_u32", s_po1, s_po0, 65536)]
        if g == 16: mem.append(bstore(a_poi, v_lin, S_SP, s_po0, mod="sc1"))
        if g == 27: mem.append(bstore(a_poi, v_lin, S_SP, s_po1, mod="sc1"))
        if g == 23: sal = sal + [salu("s_add_u32", s_po0, s_po0, 1024)]
        if g == 24: sal = sal + [salu("s_min_u32", s_po0, s_po0, s_poe)]
    if do_mem and g == 4 and d is not None: lastdma[0] = d
    mem += list(xmem); sal = sal + list(xsal)
    gaps = [[], [], [], []]
    if g == 29 and do_mem and not fin:
        if STAMP == 2 and loop and do_mfma: gaps[0] += [LoopStamp(0, par)]
        gaps[0] += [Wait(lg0=True) if not do_mfma else (Wait(lg0=True, vm0=True) if (pp is None and par == 1) else Wait(lg0=True, vm=lastdma[0]))]
        if STAMP == 2 and loop and do_mfma: gaps[0] += [LoopStamp(1, par)]
        gaps[0] += [raw("s_barrier")]
        if STAMP == 2 and loop and do_mfma: gaps[0] += [LoopStamp(2, par)]
    gaps[0] += sal
    if g == 6 and do_mem and (pp is None or pp <= 1): gaps[0].append(salu("s_add_u32", s_kK, s_kK, 16384))
    if g == 7 and do_mem and (pp is None or pp <= 1): gaps[0].append(salu("s_add_u32", s_kV, s_kV, 16384))
    sm = not (fin and g >= 23)
    if fin and g > 23: do_cvt = False
    if fin and 16 <= g < 24: do_mfma = False
    if LSUM:
        if sm: gaps[0].append(ex[0])
        gaps[1] += mem[0:2] if len(mem) > 2 else mem[0:1]
        gaps[1] += post0
        nf = (g + 1) % 32
        if do_mem and not (fin and (16 <= nf < 24 or nf == 0)): gaps[2].append(Wait(lg=ftok.get(nf)))
        if last and g == 30: gaps[2].append(salu("s_sub_u32", s_cnt, s_cnt, 1))
        if sm: gaps[2].append(ex[1])
        gaps[3] += mem[2:] if len(mem) > 2 else mem[1:]
        pro = not do_mfma and not fin
        gaps[1] += add_items(g, 1, fin, pro)
        if do_cvt: gaps[1 if len([x for x in gaps[1] if x not in ()]) - len(add_items(g, 1, fin, pro)) < 2 else 3].append(cv)
        gaps[3] += add_items(g, 3, fin, pro)
    else:
      gaps[0] += mem[2:3]
      if sm: gaps[0].append(ex[0])
      if len(mem) > 0: gaps[1].append(mem[0])
      if len(mem) == 0 and do_cvt: gaps[1].append(cv)
      if sm: gaps[1].append(ad[0])
      gaps[1] += post0
      nf = (g + 1) % 32
      if do_mem and not (fin and (16 <= nf < 24 or nf == 0)): gaps[2].append(Wait(lg=ftok.get(nf)))
      if last and g == 30: gaps[2].append(salu("s_sub_u32", s_cnt, s_cnt, 1))
      gaps[2] += mem[3:]
      if sm: gaps[2].append(ex[1])
      if len(mem) > 1: gaps[3].append(mem[1])
      if len(mem) > 0 and do_cvt: gaps[3].append(cv)
      if sm: gaps[3].append(ad[1])
    for qb in range(4):
        if do_mfma:
            if g < 8 or 16 <= g < 24:
                b = 1 if g < 8 else 0
                kb, ds = (g >> 2) & 1, g & 3
                d = v_S[b][(qb * 8 + kb * 4, 4)]
                e(mfma(d, fr(g), Qf(qb, ds), v_negm[(qb * 4, 4)] if ds == 0 else d))
            else:
                b = 0 if g < 16 else 1
                qq = 3 - qb if (SNAKE and g & 1) else qb
                if PA: e(mfma(Of(g & 7, qq), v_S[b][(qq * 8, 4)], fr(g), Of(g & 7, qq)))
                else: e(mfma(Of(g & 7, qq), fr(g), v_S[b][(qq * 8, 4)], Of(g & 7, qq)))
        else:
            if (qb & 1) and not gaps[qb][:1] or ((qb & 1) and getattr(gaps[qb][0], "kind", "") in ("valu",)): e(nop(0))
        for it in gaps[qb]: e(it)
        if xvalu is not None:
            c = 2 - sum(1 for it in gaps[qb] if getattr(it, "kind", "") in ("lds", "vmem", "dma", "valu"))
            while xvalu and c > 0:
                it = xvalu.pop(0); e(it); c -= 2 if it.kind == "trans" else 1
    if LSUM and do_mfma and (g & 8):
        k = g & 7
        lq = None if (fin and g >= 24) else (k >> 1 if k & 1 else None)
        if lq is not None and (LSUM != 3 or lq < LQ): e(mfma(a_L[(4 * lq, 4)], a_ones, v_S[0 if g < 16 else 1][(lq * 8, 4)], a_L[(4 * lq, 4)]))
    if LSUM == 1 and fin and g == 23:
        e(nop(1))
        for lq in range(4): e(mfma(a_L[(4 * lq, 4)], a_ones, v_S[1][(lq * 8, 4)], a_L[(4 * lq, 4)]))
    if LSUM == 3: e(add_items(g, 4, fin, not do_mfma and not fin))

pr = [dsread("ds_read_b128", fr(f), v_ka[f & 3], (f >> 2) * 4096) for f in range(8)]
for r in pr: e(r)
zr = [valu("v_mov_b32", v_acc[i], 0) for i in (range(2, 64) if ORD else range(2 * NZ0, 128))]
for f in range(8):
    em.wait(lg=pr[f])
    for qb in range(4):
        d = v_S[0][(qb * 8 + (f >> 2) * 4, 4)]
        e(mfma(d, fr(f), Qf(qb, f & 3), 0 if (f & 3) == 0 else d))
        if qb == 0 and HST == 0: e(hst[f])
        if qb == 2 and f == 0:
            e(raw("s_mov_b64 exec, 3", "salu", wr=["exec"])); e(bstore(v_acc[0], V(3), S_FLZ, s_myfl, mod="sc1")); e(raw("s_mov_b64 exec, -1", "salu", wr=["exec"]))
        for _ in range(2):
            if zr: e(zr.pop(0))
assert not zr
e(salu("s_mov_b32", s_kK, 16384 + 8192, scc_w=False)); e(salu("s_mov_b32", s_kV, 16384, scc_w=False)); e(salu("s_mov_b32", s_cnt, NITER, scc_w=False))
e(scmp("s_cmp_lg_u32", s_retry, 0)); e(raw("s_cbranch_scc1 L_have_max2", rd=["scc"]))
e(nop(3))
mx = [V(97 + 4 * i) for i in range(4)]; mt = [V(98 + 4 * i) for i in range(4)]
for qb in range(4): e(valu("v_max3_f32", mx[qb], v_S[0][qb * 8], v_S[0][qb * 8 + 1], v_S[0][qb * 8 + 2]))
for qb in range(4): e(valu("v_max3_f32", mx[qb], mx[qb], v_S[0][qb * 8 + 3], v_S[0][qb * 8 + 4]))
for qb in range(4): e(valu("v_max3_f32", mx[qb], mx[qb], v_S[0][qb * 8 + 5], v_S[0][qb * 8 + 6]))
for qb in range(4): e(valu("v_max_f32", mx[qb], mx[qb], v_S[0][qb * 8 + 7]))
red4("v_max_f32", mx, mt)
for qb in range(4):
    for k in range(4): e(valu("v_sub_f32", v_negm[qb * 4 + k], 0, mx[qb]))
em.label("L_have_max2")
e(nop(3))
for qb in range(4):
    for k in range(8): e(valu("v_add_f32", v_S[0][qb * 8 + k], v_S[0][qb * 8 + k], v_negm[qb * 4]))
for g in range(23, 29): att_group(1, g, do_mfma=False, do_mem=False, do_cvt=(g != 23))
stamp(); diag()
e(salu("s_and_b32", s_t0, s_qb, 3)); e(salu("s_sub_u32", s_t0, NITER - 1, s_t0))
e(scmp("s_cmp_eq_u32", s_w, 0)); e(salu("s_cselect_b32", s_sig, s_t0, -1, scc_w=False, scc_r=True))
e(scmp("s_cmp_eq_u32", s_retry, 0)); e(salu("s_cselect_b32", s_sig, s_sig, -1, scc_w=False, scc_r=True))
e(salu("s_mov_b64", s_pfc, S_K[(0, 2)], scc_w=False))
if POI:
    e(salu("s_lshl_b32", s_po0, s_w, 4)); e(salu("s_add_u32", s_po0, s_po0, s_g)); e(salu("s_lshl_b32", s_po0, s_po0, 13))
    e(salu("s_add_u32", s_poe, s_po0, 7168))
e(scmp("s_cmp_lt_u32", s_w, 2)); e(salu("s_cselect_b64", s_kvt, S_K[(0, 2)], S_V[(0, 2)], scc_w=False, scc_r=True))
e(salu("s_and_b32", s_t0, s_w, 1)); e(sx(s_t1)); e(salu("s_lshl_b32", s_t1, s_t1, 1)); e(salu("s_add_u32", s_t0, s_t0, s_t1)); e(salu("s_lshl_b32", s_t0, s_t0, 13))
if MAP2: e(salu("s_add_u32", s_t0, s_t0, 262144))
e(salu("s_add_u32", s_kvt[0], s_kvt[0], s_t0)); e(salu("s_addc_u32", s_kvt[1], s_kvt[1], 0, scc_r=True))
for g in range(29, 32): att_group(1, g, do_mfma=False, do_mem=True)
pro_end = len(em.out)
em.directive(".p2align 6")
em.label("L_att_loop")
def body():
    for par in range(2):
        for g in range(32): att_group(par, g, last=(par == 1))
b0 = len(em.out)
body()
b1 = len(em.out)
e(scmp("s_cmp_lg_u32", s_cnt, 0)); e(raw("s_cbranch_scc1 L_att_loop", rd=["scc"]))
b2 = len(em.out)
body()
second = em.out[b2:]; del em.out[b2:]
assert [i.text for i in second] == [i.text for i in em.out[b0:b1]], "loop not in steady state"
loop_probs = check_hazards(em.out[b1 - 40:b2] + second[:60], "loop-wrap")

em.label("L_tail")
v_ring2 = V(64, 32); v_B2 = V(96, 32)
QH = int(os.environ.get('QH', '0'))
XY = int(os.environ.get('XY', '0'))
NF1 = int(os.environ.get('NF1', '8'))
def hreg(kk, qb):
    if QH and 8 <= kk < 12: return A(16 * (kk - 8) + qb * 4, 4)
    if QH and kk >= 12: kk -= 4
    if kk >= 8: kk -= 8
    if ORD and kk < 4: return A(((2 * kk + 1) * 4 + qb) * 4, 4)
    return A((64 + 16 * kk if kk < 4 else 160 + 16 * (kk - 4)) + qb * 4, 4)
def Facc(u, qb):
    t = u * 4 + qb
    return A(128 + 4 * t if t < 8 else 224 + 4 * (t - 8), 4)
POS2 = [5, 0, 2, 3, 4, 1]
NB = int(os.environ.get("NB", "4"))
def pos2(m): return 6 + m if m < NB else POS2[(m - NB) % 6]
def kind2(m):
    if m < NF1: return ("F", m)
    if m < NF1 + 32: return ("O", (m - NF1) & 15, (m - NF1) >> 4) if XY else ("O", (m - NF1) >> 1, (m - NF1) & 1)
    return ("F", m - 32)
def s2_dma(m):
    if m >= 46: return None
    p = pos2(m); k = kind2(m)
    if k[0] == "O":
        return [m0set(p), salu("s_mov_b32", s_off, k[1] * 32 * 1024 + 128 * k[2], scc_w=False)], [dma(v_wo[j], S_WO, s_off, j * 1024) for j in range(4)]
    return [m0set(p), salu("s_mov_b32", s_off, k[1] * 32 * 1024, scc_w=False)], [dma(v_wd[j], S_WD, s_off, j * 1024) for j in range(4)]
dtok2 = {}; s2pre = {}
for m in range(6 + NB):
    s2pre[m] = s2_dma(m); dtok2[m] = s2pre[m][1][3]
class Seq:
    kind = "vmem"
    def __init__(self, l): self.l = l
    def __call__(self): return self.l
hld = {}; htok = {}
for kk in range(14):
    hld[kk] = [bload(hreg(kk, qb), v_lin, S_HC, s_hl, off=qb * 1024, mod="sc1") for qb in range(4)]
    htok[kk] = hld[kk][3]
e(salu("s_mov_b32", s_cnt, 0, scc_w=False))
em.label("L_pollH")
e(valu("v_cmp_ne_u32", "vcc", 1, v_flag)); e(salu("s_mul_i32", s_hb, s_w, 14 * 4096, scc_w=False)); e(nop(1))
e(raw("s_cbranch_vccz L_pollH_done", rd=["vcc"]))
e(salu("s_add_u32", s_cnt, s_cnt, 1)); e(scmp("s_cmp_ge_u32", s_cnt, 50000)); e(raw("s_cbranch_scc1 L_pollH_done", rd=["scc"]))
e(raw("s_sleep 4")); e(raw("buffer_load_ubyte %s, %s, %s, %s offen sc1" % (v_flag, v_fa, S_DBG, s_fo))); e(raw("s_waitcnt vmcnt(0)")); e(raw("s_branch L_pollH"))
em.label("L_pollH_done")
xaddr(V(39), V(0))
assert LSUM == 1
xsl = [bload(V(40 + 2 * u, 2), V(39), S_XC, 0, off=32 * u, n=2) for u in range(4)]
NH0 = 32
hsl = sorted([(pp, g) for pp in range(3) for g in (5, 13, 14, 15, 16, 17, 18, 27, 28, 9, 11)])[:NH0]
if QH:
    hsl += [(3, g) for g in list(range(8, 16)) + list(range(24, 32))]; NH0 = 48
px = {}
for k, key in enumerate(hsl):
    px.setdefault(key, ([], []))
    px[key][0].append(hld[k >> 2][k & 3])
    if k & 3 == 0: px[key][1].append(salu("s_add_u32", s_hl, s_hb, (k >> 2) * 4096))
for u in range(4): px.setdefault((int(os.environ.get('XSP', '3')), int(os.environ.get('XSG0', '13')) + u), ([], []))[0].append(xsl[u])
wsl = [(pp, g) for pp in range(2) for g in (6, 7, 8, 10, 12, 21, 22, 23)][:4 * NB] + [(2, 29), (2, 30), (2, 31), (3, 0), (3, 1), (3, 2), (3, 3), (3, 4)] + ([(2, g) for g in (6, 7, 8, 10, 12, 21, 22, 23)] if QH else [(3, g) for g in range(5, 13)]) + [(3, g) for g in range(24, 32)]
for k, key in enumerate(wsl):
    px.setdefault(key, ([], []))
    m, j = k >> 2, k & 3
    px[key][0].append(s2pre[m][1][j])
    if j == 0: px[key][1].extend(s2pre[m][0])
px[(3, 24)][1][:0] = [Wait(lg0=True), raw("s_barrier")]
lt = [V(48 + i) for i in range(4)]
NPK = int(os.environ.get("NPK", "0"))
rinv = [V(52 + i) for i in range(4)]
vxf = V(40, 8)
save = em.out; em.out = []
for qb in range(4): e(valu("v_accvgpr_read_b32", lt[qb], a_L[4 * qb]))
e(valu("v_add_f32", V(60), lt[0], lt[1])); e(valu("v_add_f32", V(61), lt[2], lt[3])); e(valu("v_add_f32", V(60), V(60), V(61)))
for qb in range(4): e(valu("v_rcp_f32", rinv[qb], lt[qb]))
e(valu("v_cmp_nge_f32", "vcc", hx(f2u(2.0 ** 30)), V(60)))
v_tr2 = V(56, 4); v_ow = V(62)
for u in range(4): e(valu("v_subrev_u32", v_tr2[u], RING, v_tr[0][u]))
if PA:
    def rT(qb, r): return V(100 + 8 * qb + r)
    v_l8 = V(63)
    vcap = em.lgq, em.pend; em.lgq, em.pend = [], {}
    e(valu("v_and_b32", V(61), 48, v_lane))
    for qb in range(4):
        for r in range(4): e(I("ds_bpermute_b32 %s, %s, %s offset:%d" % (rT(qb, r), V(61), rinv[qb], 4 * r), "lds", rd=["v61"] + rinv[qb].regs(), wr=rT(qb, r).regs()))
    em.lgq, em.pend = vcap
    e(valu("v_lshrrev_b32", v_l8, 4, v_lane)); e(valu("v_bfe_u32", V(60), v_lane, 2, 2)); e(valu("v_xor_b32", V(60), V(60), v_l8))
    e(valu("v_and_b32", v_ow, 15, v_lane)); e(valu("v_lshlrev_b32", v_ow, 5, v_ow)); e(valu("v_lshl_add_u32", v_ow, V(60), 3, v_ow))
    e(valu("v_subrev_u32", v_ow, RING, v_ow)); e(valu("v_add_u32", v_ow, s_m0b, v_ow))
    e(valu("v_xor_b32", v_l8, v_l8, v_lane)); e(valu("v_lshlrev_b32", v_l8, 3, v_l8))
else:
    e(valu("v_subrev_u32", v_ow, RING, v_lin)); e(valu("v_add_u32", v_ow, s_m0b, v_ow))
lred = em.out; em.out = save
for pp in range(4):
    for g in range(32):
        if STAMP == 4 and g in (0, 16): stamp()
        xm, xs = px.get((pp, g), ([], []))
        att_group(pp & 1, g, pp=pp, xmem=xm, xsal=xs, xvalu=(lred if (pp == 3 and g >= (26 if LSUM else 24)) else None))
for it in lred: e(it)
diag(); stamp()
if DUMP == "o":
    e(nop(7))
    for db in range(8):
        for qb in range(4):
            for k in range(4): e(valu("v_mul_f32", Of(db, qb)[k], Of(db, qb)[k], rinv[qb]))
    dump_regs([v_acc[i] for i in range(128)])

vm_ = V(60); vma = V(61)
class Mark:
    kind = "salu"
    def __init__(self, t): self.t = t
    def __call__(self):
        e(raw("s_cbranch_vccz L_nomark", rd=["vcc"])); e(valu("v_mov_b32", self.t, hx(MARK))); em.label("L_nomark"); return []
norm = [valu("v_and_b32", vma, 3, v_lane), valu("v_lshlrev_b32", vma, 12, vma)]
ow = []; ncv = []; ow2 = []
assert not (PA and (NB == 0 or NPK))
NPK_N = int(os.environ.get("NPK_N", "16")) if NPK else 0
for i in range(4):
    for qb in range(4):
        t = Of(2 * i, qb)
        for b in range(2):
            if i * 4 + qb < NPK_N:
                rp = V(52 + (qb & ~1), 2)
                for k in range(2): norm.append(valu("v_pk_mul_f32", Of(2 * i + b, qb)[(2 * k, 2)], Of(2 * i + b, qb)[(2 * k, 2)], rp, mod="op_sel:[0,%d] op_sel_hi:[1,%d]" % (qb & 1, qb & 1)))
            else:
                for k in range(4): norm.append(valu("v_mul_f32", Of(2 * i + b, qb)[k], Of(2 * i + b, qb)[k], rT(qb, k) if PA else rinv[qb]))
        for b in range(2):
            o = Of(2 * i + b, qb)
            for k in range(2): norm.append(valu("v_cvt_pk_bf16_f32", t[2 * b + k], o[2 * k], o[2 * k + 1]))
        ncv.append(norm[-1])
        if PA: ow2.append(dswrite("ds_write_b64", v_ow, t[(2, 2)], i * 16384 + qb * 1024 + 512))
        if i == 0 and qb == 0: norm.append(Mark(t[0]))
        ow.append(dswrite("ds_write_b64", v_ow, t[(0, 2)], i * 16384 + qb * 1024) if PA else dswrite("ds_write_b128", v_ow, t, i * 16384 + qb * 1024))
        if NB == 0: norm.append(ow[-1])
if NPK_N:
    cut = norm.index(ncv[NPK_N - 1]) + 1
    e(nop(4))
    for it in norm[:cut]: e(it)
    norm = norm[cut:]
class ChkNorm:
    def __init__(self, k): self.k = k
    def __call__(self):
        assert ncv[self.k].tok, "O write %d scheduled before its data" % self.k
        return [ow[self.k], ow2[self.k]] if PA else ow[self.k]
G0 = 4 * NF1
G1 = G0 + 128
mk = dsread("ds_read_b32", vm_, vma, 0)
class OBar:
    def __call__(self):
        assert all(w.tok for w in ow)
        em.wait(lg0=True); e(raw("s_barrier")); stamp(); e(mk); return []
class FbCheck:
    def __call__(self):
        em.wait(lg=mk)
        e(valu("v_cmp_eq_u32", "vcc", hx(MARK), vm_))
        e(scmp("s_cmp_lg_u32", s_retry, 0)); e(raw("s_cbranch_scc1 L_nofb", rd=["scc"]))
        e(nop(1))
        e(raw("s_cbranch_vccnz L_fallback", rd=["vcc"]))
        em.label("L_nofb")
        return []
def s2_acc(m, u, qb):
    k = kind2(m)
    if k[0] == "O": return v_acc[(((k[2] * 4 + u) * 4 + qb) * 4, 4)], k[1] == 0
    return Facc(u, qb), k[1] == 0
def s2_B(m, qb):
    k = kind2(m)
    if k[0] == "O": return v_B2[((k[1] & 1) * 16 + qb * 4, 4)]
    return hreg(k[1], qb)
def oread(s, qb):
    d = v_B2[((s & 1) * 16 + qb * 4, 4)]; of = (s & 3) * 16384 + (s >> 2) * 4096 + qb * 1024
    if PA: return [dsread("ds_read_b64_tr_b16", d[(2 * b, 2)], v_l8, of + 512 * b) for b in range(2)]
    return dsread("ds_read_b128", d, v_lin, of)
extra = {}
if NB:
    OW0 = int(os.environ.get("OW0", "11")); OWN = int(os.environ.get("OWN", "1"))
    for k in range(16):
        gg = OW0 + k // OWN
        assert (k >> 2) >= NB or gg > 4 * (k >> 2) + 3
        extra.setdefault(gg, []).append((2 + (k % OWN) % 2, ChkNorm(k), 1))
GB = G0 - int(os.environ.get("OBAR", "3"))
extra.setdefault(GB, []).append((0, OBar(), 0))
r0 = [oread(0, qb) for qb in range(4)]
for qb in range(4): extra.setdefault(GB + (qb >> 1), []).append((1 + (qb & 1) if qb < 2 else (qb & 1) * 2, r0[qb], 1))
extra.setdefault(G0 - 1, []).append((2, [Wait(lg=([x for y in r0 for x in y] if PA else r0)), FbCheck()], 0))
if XY:
    for mm in range(1, 32):
        rr = [oread(mm & 15, qb) for qb in range(4)]
        for qb in range(4): extra.setdefault(G0 + 4 * (mm - 1) + (qb >> 1), []).append((2 + (qb & 1), rr[qb], 1))
        extra.setdefault(G0 + 4 * mm - 1, []).append((2, Wait(lg=([x for y in rr for x in y] if PA else rr)), 0))
else:
    for s_ in range(1, 16):
        for qb in range(4): extra.setdefault(G0 + 8 * (s_ - 1) + 1 + qb, []).append((2, oread(s_, qb), 1))
class LateWait:
    def __init__(self, f): self.f = f
    def __call__(self): return Wait(vm=self.f())
vxa = V(48); vpoll = V(49); vfw = V(50)
vx, vy, vz = V(59), V(57), V(58)
save = em.out; em.out = []
xaddr(vxa, vx)
e(valu("v_and_b32", V(51), 7, v_lane)); e(valu("v_lshlrev_b32", V(51), 2, V(51)))
e(valu("v_add_u32", vfw, s_m0b, v_lin)); e(salu("s_lshl_b32", s_t0, s_w, 14)); e(salu("s_add_u32", s_t0, s_t0, RING)); e(valu("v_add_u32", V(55), s_t0, v_lin))
e(salu("s_lshl_b32", s_t3, s_w, 4)); e(salu("s_add_u32", s_t3, s_t3, s_g)); e(salu("s_lshl_b32", s_t3, s_t3, 13))
early = em.out; em.out = save
extra.setdefault(-1, []).append((0, LateWait(lambda: htok[0]), 0))
for kk in range(1, 14):
    g_ = 4 * kk if kk < NF1 else 4 * (kk + 32)
    extra.setdefault(g_ - 1, []).append((2, LateWait(lambda kk=kk: htok[kk]), 0))
HG0 = int(os.environ.get("HG0", "5")); HGS = int(os.environ.get("HGS", "1"))
for k in range(NH0, 56):
    prev = (k >> 2) - (12 if QH else 8)
    gfree = (4 * prev if prev < NF1 else 4 * (prev + 32)) + 5 + (k & 3)
    extra.setdefault(max(gfree, HG0 + HGS * (k - NH0)), []).append((2, Seq([salu("s_add_u32", s_hl, s_hb, (k >> 2) * 4096), hld[k >> 2][k & 3]]), 1))
def sreg(ip, qb, odd=0): return v_acc[(((2 * ip + odd) * 4 + qb) * 4, 4)]
SPV_ = int(os.environ.get('SPV', '1'))
sp = []; spst = []; stq = []
s_oob = S(19)
if os.environ.get("NOST") or os.environ.get("NOLD"): e(salu("s_mov_b32", s_oob, 524288, scc_w=False))
NSI = int(os.environ.get("NSI", "11"))
s_so = [s_t1, s_cnt, s_h0, s_h1]
for k in range(4): sp.append(salu("s_add_u32", s_so[k], s_t3, (k >> 1) * 65536 + (k & 1) * 4096))
for ip in range(4):
    for qb in range(4):
        t = sreg(ip, qb)
        for b in range(2):
            o = sreg(ip, qb, b)
            for k in range(2): sp.append(valu("v_cvt_pk_bf16_f32", t[2 * b + k], o[2 * k], o[2 * k + 1]))
        st = bstore(t, v_lin, S_SP, s_so[(ip >> 1) * 2 + (qb >> 1)], off=(qb & 1) * 2048 + (ip & 1) * 1024, mod="sc1")
        if os.environ.get("NOST") and not (ip == 3 and qb == 3): st = bstore(t, v_lin, S_SP, s_oob, off=0)
        spst.append((st, sp[-1]))
class St:
    def __init__(self, k): self.k = k
    def __call__(self):
        assert spst[self.k][1].tok
        return spst[self.k][0]
STG = int(os.environ.get("STG", "2"))
if XY:
    GY = G0 + 64
    XS0 = int(os.environ.get("XS0", "4")); XSG = int(os.environ.get("XSG", "5")); XFL = int(os.environ.get("XFL", "60"))
    for k in range(8): extra.setdefault(GY + XS0 + XSG * k, []).append((1, St(k), 1))
    class XFlag:
        def __call__(self): em.wait(vm=spst[7][0]); return flag_store(0)
    hx_ = sp.index(spst[7][1]) + 1
    if NF1 == 14:
        NSI = 8; spf = [Fill(sp[:hx_], GY + 2, GY + 14)]; ypost = sp[hx_:]
    else:
        extra.setdefault(GY + XFL, []).append((1, XFlag(), 1))
        NSI = int(os.environ.get("NSI", "16"))
        for k in range(8, NSI): extra.setdefault(G1 + 3 + STG * (k - 8), []).append((2, St(k), 1))
        spf = [Fill(sp[:hx_], GY + 2, GY + 14), Fill(sp[hx_:], G1 + 2, G1 + 10)]
else:
    if NF1 == 14:
        NSI = 0; spf = []; ypost = sp
    else:
        for k in range(NSI): extra.setdefault(G1 + 3 + STG * k, []).append((2, St(k), 1))
        spf = [Fill(sp, G1 + 2, G1 + int(os.environ.get("CVL", "16")))]
if POI:
    assert not XY and SPV_
    hint = [valu("v_mov_b32", V(57), 2), valu("v_lshlrev_b32", V(58), 7, v_lane), raw("s_mov_b64 exec, 3", "salu", wr=["exec"]),
            bstore(V(57), V(58), S_FL, s_myfl, mod="sc1"), raw("s_mov_b64 exec, -1", "salu", wr=["exec"])]
    extra.setdefault(G1 + int(os.environ.get("HINT", "4")), []).append((1, hint, 1))
FLG = int(os.environ.get("FLG", "0"))
if FLG:
    assert NSI == 16
    class YFlag:
        def __call__(self):
            em.wait(vm=spst[-1][0]); stamp()
            e(([] if XY else flag_store(0)) + flag_store(1))
            if MIDPOST == 5: static_loads()
            return []
    extra.setdefault(G1 + FLG, []).append((1, YFlag(), 1))
sti = [NSI]
def st_next(n=1):
    for _ in range(n):
        if sti[0] < 16: e(spst[sti[0]][0]); sti[0] += 1
def flag_store(h):
    return [valu("v_mov_b32", v_t, 1), raw("s_mov_b64 exec, 1", "salu", wr=["exec"]), bstore(v_t, None, S_FL, s_myfl, off=128 * h, mod="sc1"), raw("s_mov_b64 exec, -1", "salu", wr=["exec"])]
vpa = V(51)
s_done, s_new, s_sb = s_kK, s_kV, s_fo
SPV = int(os.environ.get("SPV", "1"))
def spl(gp, i): return sreg(gp >> 1, (gp & 1) * 2 + i, 0) if SPV else A((gp * 2 + i) * 4, 4)
def flag_load(): return bload(vpoll, vpa, S_FL, s_t2, n=1, mod="sc1")
lblc = [0]
def issue_new():
    k = lblc[0]; lblc[0] += 1
    e(valu("v_cmp_eq_u32", "vcc", 1, vpoll)); e(nop(1))
    e(raw("s_andn2_b32 %s, vcc_lo, %s" % (s_new, s_done), "salu", rd=["vcc", s_done], wr=[s_new, "scc"])); e(salu("s_and_b32", s_new, s_new, 255))
    e(raw("s_cbranch_scc0 L_in%d_end" % k, rd=["scc"]))
    e(salu("s_or_b32", s_done, s_done, s_new))
    for gp in range(8):
        e(scmp("s_bitcmp1_b32", s_new, gp)); e(raw("s_cbranch_scc0 L_in%d_%d" % (k, gp), rd=["scc"]))
        e(salu("s_add_u32", s_t0, s_sb, gp * 8192) if not os.environ.get("NOLD") else salu("s_mov_b32", s_t0, s_oob, scc_w=False))
        for i in range(2): e(raw(bload(spl(gp, i), v_lin, S_SPC, s_t0, off=i * 1024, mod="sc1").text))
        em.label("L_in%d_%d" % (k, gp))
    em.label("L_in%d_end" % k)
def static_loads():
    e(valu("v_cmp_eq_u32", "vcc", 1, vpoll)); e(nop(1))
    e(raw("s_and_b32 %s, vcc_lo, 255" % s_done, "salu", rd=["vcc"], wr=[s_done, "scc"]))
    for gp in range(8):
        e(salu("s_add_u32", s_t0, s_sb, gp * 8192)); e(scmp("s_bitcmp1_b32", s_done, gp)); e(salu("s_cselect_b32", s_t0, s_t0 if not os.environ.get("NOLD") else s_oob, 524288, scc_w=False, scc_r=True))
        for i in range(2): e(bload(spl(gp, i), v_lin, S_SPC, s_t0, off=i * 1024, mod="sc1"))
pinit = [salu("s_lshl_b32", s_t2, s_cq, 3), salu("s_add_u32", s_t2, s_t2, s_cg), salu("s_lshl_b32", s_t2, s_t2, 7), salu("s_mov_b32", s_done, 0, scc_w=False),
         salu("s_lshl_b32", s_sb, s_cg, 16), salu("s_lshl_b32", s_new, s_w, 11), salu("s_add_u32", s_sb, s_sb, s_new)]
extra.setdefault(G1 - 8, []).append((1, pinit, 0))
class MidPoll:
    def __init__(self, tok): self.tok = tok
    def __call__(self):
        em.wait(vm=self.tok); issue_new()
        e(salu("s_mov_b32", s_hb, s_done, scc_w=False))
        midmark.append(em.vm_total)
        return []
midmark = []
if int(os.environ.get("MID", "1")):
    pt = flag_load()
    MIDPOST = int(os.environ.get("MIDPOST", "2"))
    if MIDPOST == 4: extra.setdefault(184 - int(os.environ.get("MID4", "6")), []).append((2, pt, 1))
    else: extra.setdefault(G1 - int(os.environ.get("MID0", "-4")), []).append((2, pt, 1))
    if not MIDPOST: extra.setdefault(G1 + int(os.environ.get("MID1", "3")), []).append((0, MidPoll(pt), 0))
    elif MIDPOST != 4 and int(os.environ.get("MID0", "-4")) > 0 and NF1 < 14: extra.setdefault(G1 + 2, []).append((0, Wait(vm=pt), 0))
    if MIDPOST == 3:
        extra[G1 + 2].pop(); extra[G1 - int(os.environ.get("MID0", "-4"))].pop()
if STAMP and NF1 < 14: extra.setdefault(G1, []).append((0, Stamp(), 0))
if STAMP == 5:
    for g_ in (0, 8, 16, 24): extra.setdefault(g_, []).append((0, Stamp(), 0))
class Diag:
    def __call__(self): diag(); return []
if DIAG and NF1 < 14: extra.setdefault(G1, []).append((0, Diag(), 0))
vs = [Fill(norm, 0, GB - (3 if NB else 1)), Fill(early, G0 + 2, G0 + 40)] + spf
run_stream(46, s2_dma, dtok2, s2_acc, s2_B, extra, vs, posf=pos2, ring=v_ring2, first_dma=6 + NB, tr2=v_tr2, early_dma=int(os.environ.get('ED2', '0')), w2=lambda g: int(os.environ.get('W2B', '1')) and g < 28)
stamp(); diag()
if NF1 == 14:
    fw = [dswrite("ds_write_b128", vfw, Facc(u, qb), qb * 16384 + u * 1024) for qb in range(4) for u in range(4)]
    for k in range(4): e(fw.pop(0))
    e(nop(3))
    for it in ypost:
        e(it)
        if any(it is c for _, c in spst):
            st_next()
            if fw: e(fw.pop(0))
            if XY and sti[0] == int(os.environ.get("XFP", "12")): em.wait(vm=spst[7][0]); e(flag_store(0))
    for it in fw: e(it)
    stamp()
if MIDPOST == 4:
    em.wait(vm=pt); static_loads()
if MIDPOST == 3:
    st_next(16); fl3 = e(flag_load())
e(nop(5))
for qb in range(4 if NF1 < 14 else 0):
    for u in range(4):
        if len(em.lgq) >= 12: em.wait(lg=em.lgq[-12])
        e(dswrite("ds_write_b128", vfw, Facc(u, qb), qb * 16384 + u * 1024))
    if qb & 1: st_next(int(os.environ.get("STW", "1")))
if MIDPOST == 6:
    st_next(16); em.wait(vm=spst[-1][0]); stamp(); e(flag_store(0) + flag_store(1)); static_loads()
v_fr = V(96, 16); vE = V(64, 16); vs_ = V(80, 16)
for k in range(8): e(valu("v_mov_b64", vs_[(2 * k, 2)], 0))
if MIDPOST == 3:
    em.wait(vm=fl3); stamp()
    if not XY: e(flag_store(0))
    e(flag_store(1))
    static_loads()
em.wait(lg0=True)
e(raw("s_barrier"))
def frr(ws_, u): return sreg(ws_, u, 1)
for ws_ in range(4):
    for u in range(4):
        if len(em.lgq) >= 14: em.wait(lg=em.lgq[-14])
        e(dsread("ds_read_b128", frr(ws_, u), V(55), ws_ * 4096 + u * 1024))
st_next()
if MIDPOST:
    st_next(16)
    if MIDPOST == 1: static_loads()
em.wait(lg0=True)
for u in range(4):
    for k in range(2):
        e(valu("v_pk_add_f32", frr(0, u)[(2 * k, 2)], frr(0, u)[(2 * k, 2)], frr(1, u)[(2 * k, 2)]))
        e(valu("v_pk_add_f32", frr(2, u)[(2 * k, 2)], frr(2, u)[(2 * k, 2)], frr(3, u)[(2 * k, 2)]))
for u in range(4):
    for k in range(2): e(valu("v_pk_add_f32", v_fr[(4 * u + 2 * k, 2)], frr(0, u)[(2 * k, 2)], frr(2, u)[(2 * k, 2)]))
for k in range(16): e(valu("v_mul_f32", vE[k], hx(f2u(-math.log2(math.e))), v_fr[k]))
st_next()
for k in range(16): e(valu("v_exp_f32", vE[k], vE[k]))
for k in range(16): e(valu("v_add_f32", vE[k], "1.0", vE[k]))
st_next()
for k in range(16): e(valu("v_rcp_f32", vE[k], vE[k]))
for k in range(16): e(valu("v_mul_f32", v_fr[k], v_fr[k], vE[k]))
for k in range(8):
    e(valu("v_lshlrev_b32", vE[2 * k], 16, vxf[k])); e(valu("v_and_b32", vE[2 * k + 1], "0xffff0000", vxf[k]))
st_next()
stamp()
accn = [0]
def acc_pieces(mask, sprinkle=False):
    n = accn[0]; accn[0] += 1
    for gp in range(8):
        e(scmp("s_bitcmp1_b32", mask, gp)); e(raw("s_cbranch_scc0 L_acc%d_%d" % (n, gp), rd=["scc"]))
        if not SPV:
            for k2 in range(8): e(valu("v_accvgpr_read_b32", V(120 + k2), spl(gp, k2 >> 2)[k2 & 3]))
        for k in range(8):
            src = spl(gp, k >> 2)[k & 3] if SPV else V(120 + k)
            e(valu("v_lshlrev_b32", V(112 + 2 * (k & 3)), 16, src)); e(valu("v_and_b32", V(113 + 2 * (k & 3)), "0xffff0000", src))
            e(valu("v_pk_add_f32", vs_[(2 * k, 2)], vs_[(2 * k, 2)], V(112 + 2 * (k & 3), 2)))
        em.label("L_acc%d_%d" % (n, gp))
        if sprinkle and gp & 1: st_next()
if midmark:
    n_y = em.vm_total - midmark[0]
    e(raw("s_waitcnt vmcnt(%d)" % n_y, "wait")); em._retire(em.vmq, n_y)
    acc_pieces(s_hb, sprinkle=True)
st_next(16)
if POI:
    s_want = s_new
    e(salu("s_mov_b32", s_cnt, 0, scc_w=False)); e(salu("s_mov_b32", s_t1, hx(POISON), scc_w=False))
    if MIDPOST == 2: em.wait(vm=pt)
    stamp()
    em.label("L_fin_loop")
    e(valu("v_cmp_eq_u32", "vcc", 2, vpoll)); e(nop(1))
    e(raw("s_andn2_b32 %s, vcc_lo, %s" % (s_want, s_done), "salu", rd=["vcc", s_done], wr=[s_want, "scc"])); e(salu("s_and_b32", s_want, s_want, 255))
    for gp in range(8):
        e(scmp("s_bitcmp1_b32", s_want, gp)); e(raw("s_cbranch_scc0 L_pl_%d" % gp, rd=["scc"]))
        e(salu("s_add_u32", s_t0, s_sb, gp * 8192))
        for i in range(2): e(raw(bload(spl(gp, i), v_lin, S_SPC, s_t0, off=i * 1024, mod="sc1").text))
        em.label("L_pl_%d" % gp)
    e(raw(flag_load().text))
    e(raw("s_waitcnt vmcnt(0)", "wait")); em._retire(em.vmq, 0)
    for gp in range(8):
        e(scmp("s_bitcmp1_b32", s_want, gp)); e(raw("s_cbranch_scc0 L_pa_%d" % gp, rd=["scc"]))
        for k in range(8): e(valu("v_cmpx_ne_u32", "vcc", s_t1, spl(gp, k >> 2)[k & 3], extra_wr=["exec"]))
        e(nop(1))
        e(raw("s_cmp_eq_u64 exec, -1", "salu", rd=["exec"], wr=["scc"])); e(raw("s_mov_b64 exec, -1", "salu", wr=["exec"]))
        e(raw("s_cbranch_scc0 L_pa_%d" % gp, rd=["scc"]))
        e(salu("s_bitset1_b32", s_done, gp, scc_w=False))
        for k in range(8):
            src = spl(gp, k >> 2)[k & 3]
            e(valu("v_lshlrev_b32", V(112 + 2 * (k & 3)), 16, src)); e(valu("v_and_b32", V(113 + 2 * (k & 3)), "0xffff0000", src))
            e(valu("v_pk_add_f32", vs_[(2 * k, 2)], vs_[(2 * k, 2)], V(112 + 2 * (k & 3), 2)))
        em.label("L_pa_%d" % gp)
    e(salu("s_add_u32", s_cnt, s_cnt, 1)); e(scmp("s_cmp_ge_u32", s_cnt, 50000)); e(raw("s_cbranch_scc1 L_fin_done", rd=["scc"]))
    e(scmp("s_cmp_lg_u32", s_done, 255)); e(raw("s_cbranch_scc1 L_fin_loop", rd=["scc"]))
else:
    if MIDPOST != 2: e(flag_load())
    if MIDPOST not in (3, 6) and not FLG:
        em.wait(vm=spst[-1][0]); stamp()
        if not XY: e(flag_store(0))
        e(flag_store(1))
    if MIDPOST == 2:
        static_loads()
        if int(os.environ.get("FSL", "0")): e(raw("s_sleep %d" % int(os.environ.get("FSL"))))
        e(flag_load())
    s_prev = s_hl
    e(salu("s_mov_b32", s_prev, s_done if MIDPOST else 0, scc_w=False)); e(salu("s_mov_b32", s_cnt, 0, scc_w=False))
    em.label("L_fin_loop")
    em.wait(vm0=True)
    issue_new()
    e(raw(flag_load().text))
    acc_pieces(s_prev)
    e(salu("s_mov_b32", s_prev, s_new, scc_w=False))
    e(salu("s_add_u32", s_cnt, s_cnt, 1)); e(scmp("s_cmp_ge_u32", s_cnt, 50000)); e(raw("s_cbranch_scc1 L_fin_done", rd=["scc"]))
    e(scmp("s_cmp_lg_u32", s_prev, 0)); e(raw("s_cbranch_scc1 L_fin_loop", rd=["scc"]))
    if int(os.environ.get("PSL", "0")): e(raw("s_sleep %d" % int(os.environ.get("PSL"))))
    e(scmp("s_cmp_lg_u32", s_done, 255)); e(raw("s_cbranch_scc1 L_fin_loop", rd=["scc"]))
em.label("L_fin_done")
if DUMP == "fin": dump_regs([vs_[i] for i in range(16)] + [v_fr[i] for i in range(16)])
for k in range(8): e(valu("v_pk_fma_f32", vE[(2 * k, 2)], vs_[(2 * k, 2)], v_fr[(2 * k, 2)], vE[(2 * k, 2)]))
for k in range(8): e(valu("v_cvt_pk_bf16_f32", vxf[k], vE[2 * k], vE[2 * k + 1]))
for u in range(4): e(bstore(vxf[(2 * u, 2)], vxa, S_OUT, 0, off=32 * u, mod=os.environ.get("OUTM", "")))
stamp(); diag_out()
em.label("L_end")
e(raw("s_endpgm"))
main_end = len(em.out)

em.lgq, em.vmq, em.pend = [], [], {}
em.label("L_sigH_side")
e(salu("s_lshl_b32", s_t1, s_qb, 3)); e(salu("s_add_u32", s_t1, s_t1, s_g))
e(raw("s_mov_b64 exec, 2", "salu", wr=["exec"]))
e(raw("buffer_store_byte %s, off, %s, %s sc1" % (v_fa, S_DBG, s_t1)))
e(raw("s_mov_b64 exec, -1", "salu", wr=["exec"]))
e(raw("s_branch L_sigH_ret"))
em.label("L_fallback")
e(raw("s_waitcnt vmcnt(0) lgkmcnt(0)")); em._retire(em.vmq, 0); em._retire(em.lgq, 0)
e(salu("s_mov_b32", s_retry, 1, scc_w=False))
e(salu("s_lshl_b32", s_t0, s_w, 6)); e(valu("v_add_u32", v_tid, s_t0, v_lane))
e(raw("s_barrier"))
e(raw("s_branch L_restart"))
em.label("L_maxpass")
e(raw("s_waitcnt vmcnt(0) lgkmcnt(0)"))
e(salu("s_mov_b32", s_retry, 2, scc_w=False))
e(salu("s_mov_b32", S_H[2], 0, scc_w=False))
e(salu("s_mov_b32", s_kK, 0, scc_w=False))
fm = [V(40 + i) for i in range(4)]
for i in range(4): e(valu("v_mov_b32", fm[i], "0xff800000"))
em.label("L_fb_loop")
e(raw("s_barrier"))
e(salu("s_add_u32", "m0", s_m0b, 4 * 16384)); e(nop(0))
for j in range(4): e(dma(v_kd[j], S_K, s_kK, j * 1024))
em.wait(vm0=True)
e(raw("s_barrier"))
for kb in range(4):
    rr = [e(dsread("ds_read_b128", fr(ds), v_ka[ds], kb * 4096)) for ds in range(4)]
    em.wait(lg0=True)
    for ds in range(4):
        for qb in range(4):
            d = v_S[0][(qb * 4, 4)]
            e(mfma(d, fr(ds), Qf(qb, ds), 0 if ds == 0 else d))
    e(nop(7))
    for qb in range(4):
        e(valu("v_max3_f32", fm[qb], fm[qb], v_S[0][qb * 4], v_S[0][qb * 4 + 1])); e(valu("v_max3_f32", fm[qb], fm[qb], v_S[0][qb * 4 + 2], v_S[0][qb * 4 + 3]))
    e(nop(2))
e(salu("s_add_u32", s_kK, s_kK, 16384)); e(scmp("s_cmp_lt_u32", s_kK, 524288)); e(raw("s_cbranch_scc1 L_fb_loop", rd=["scc"]))
red4("v_max_f32", fm, [V(44 + i) for i in range(4)])
for qb in range(4):
    for k in range(4): e(valu("v_sub_f32", v_negm[qb * 4 + k], 0, fm[qb]))
e(raw("s_barrier"))
for m in (64, 65, 66):
    sa, dm = s1_dma(m); e(sa)
    for d in dm: e(d)
e(raw("s_waitcnt vmcnt(0)"))
e(raw("s_branch L_att_start"))
em.label("L_code_end")
e(raw("s_endpgm"))

ALIGN8 = int(os.environ.get("ALIGN8", "0"))
import re as _re
def isize(i):
    t = i.text
    if i.kind == "label": return 0
    op = t.split()[0]
    if i.kind in ("mfma", "lds", "vmem", "dma") or op.startswith(("buffer_", "global_", "ds_", "s_load", "s_memtime", "s_memrealtime")): return 8
    lit = False
    for tok in _re.split(r"[ ,]+", t)[1:]:
        if _re.fullmatch(r"-?\d+", tok): lit |= not (-16 <= int(tok) <= 64)
        elif tok.startswith("0x"): lit |= not (int(tok, 16) <= 64)
        elif tok.startswith("L_") and not op.startswith(("s_cbranch", "s_branch")): lit = True
    if op.startswith("s_"):
        if op in ("s_waitcnt", "s_nop", "s_barrier", "s_sleep", "s_endpgm") or op.startswith(("s_cbranch", "s_branch")): return 4
        return 8 if lit else 4
    e32 = ("v_exp_f32", "v_rcp_f32", "v_sqrt_f32", "v_mov_b32", "v_mov_b64", "v_add_f32", "v_sub_f32", "v_mul_f32", "v_max_f32", "v_and_b32", "v_xor_b32", "v_lshlrev_b32", "v_lshrrev_b32",
           "v_add_u32", "v_sub_u32", "v_subrev_u32", "v_mul_u32_u24", "v_min_u32", "v_readfirstlane_b32", "v_permlane16_swap_b32", "v_permlane32_swap_b32")
    if op in e32 and "-v" not in t: return 8 if lit else 4
    if op.startswith("v_cmp") and t.split()[1].startswith("vcc"): return 8 if lit else 4
    return 8
WIDE = ("v_exp_f32", "v_rcp_f32", "v_add_f32", "v_mul_f32", "v_mov_b32", "v_sub_f32", "v_and_b32", "v_lshlrev_b32")
if ALIGN8:
    pos = 0; cand = None; nfix = 0; nmiss = 0
    for i in em.out:
        if i.kind == "label":
            if i.text.startswith(".p2align"): pos = 0; cand = None
            continue
        if i.kind == "mfma" and pos % 8:
            if cand is not None: cand.text = cand.text.replace(cand.text.split()[0], cand.text.split()[0] + "_e64", 1); pos += 4; nfix += 1
            else: nmiss += 1
        if i.kind == "mfma": cand = None
        sz = isize(i)
        if sz == 4 and i.text.split()[0] in WIDE: cand = i
        pos += sz
    print("; align8: widened %d, unfixed %d" % (nfix, nmiss), file=sys.stderr)
probs = check_hazards(em.out, "main") + loop_probs
for p in probs: print("; HAZARD", p, file=sys.stderr)
assert not probs

hdr = open(os.path.join(os.path.dirname(os.path.abspath(__file__)), "header.txt")).read()
print(hdr.rstrip())
print("; @launch grid=(256,1,1) block=(256,1,1) lds=163840")
print('.amdgcn_target "amdgcn-amd-amdhsa--gfx950"\n.text\n.globl %s\n.p2align 8\n.type %s,@function\n%s:' % (KN, KN, KN))
print(em.text())
print('.section .rodata,"a"\n.p2align 6\n.amdhsa_kernel %s' % KN)
print("  .amdhsa_next_free_vgpr 512\n  .amdhsa_next_free_sgpr 102\n  .amdhsa_accum_offset 256\n  .amdhsa_group_segment_fixed_size 0\n  .amdhsa_kernarg_size 96\n  .amdhsa_user_sgpr_count 2\n  .amdhsa_user_sgpr_kernarg_segment_ptr 1\n  .amdhsa_system_sgpr_workgroup_id_x 1\n.end_amdhsa_kernel")
```

```python
import sys, os, math, struct
from asmgen import *

KN = "recurrent_scan__gqa_block_cached__geglu_ffn__prompt_kernel"
DUMP = os.environ.get("DUMP", "")
STAMP = int(os.environ.get("STAMP", "0"))
GEL_END = int(os.environ.get("GEL_END", "247")); GEL_EXTRA = int(os.environ.get("GEL_EXTRA", "360"))

def f2u(x): return struct.unpack("<I", struct.pack("<f", x))[0]
def hx(x): return "0x%x" % (x & 0xffffffff)

S_X, S_K, S_V, S_WQ, S_WO, S_WG, S_WU, S_WD, S_OUT, S_DBG, S_H, S_SP = [S(4 + 4 * i, 4) for i in range(12)]
s_g, s_qb, s_w = S(52), S(53), S(54)
s_t0, s_t1, s_t2, s_t3 = S(55), S(56), S(57), S(58)
s_m0b = S(59)
s_off = S(60)
s_cnt = S(61)
s_kK, s_kV = S(62), S(63)
s_retry = S(64)
s_h0, s_h1 = S(65), S(66)
s_hl = S(67); s_hb = S(78); s_myfl = S(79); s_wdd = S(67); s_sig = S(78)
s_ka = S(68, 16); s_kb = S(84, 8)
s_pair = S(92, 2); s_pair2 = S(94, 2)
S_DMP = S(96, 4)
s_cq, s_cg = S(76), S(77)
S_HC = S(80, 4)
S_SPC = S(84, 4)
S_XC = S(88, 4)
s_st = S(68, 4)

v_tid, v_lane, v_lin, v_t = V(0), V(1), V(2), V(3)
v_tr = [V(4, 4), V(8, 4)]
v_dA, v_dB = V(12, 4), V(16, 4)
v_ka = V(20, 4); v_va = V(24, 8); v_kd = V(32, 4); v_vd = V(36, 2)
v_wl = V(38)
v_c = V(39)
v_l0, v_l1 = V(40, 4), V(44, 4)
v_lsave = V(16, 4)
v_negm = V(48, 16)
v_S = [V(64, 32), V(96, 32)]
v_acc = V(128, 128)
a_ring = A(128, 32)
a_B = A(160, 32)
a_Q = A(0, 64)
ORD = int(os.environ.get("ORD", "1"))
v_wo, v_wd = (v_dB, v_dA) if ORD else (v_dA, v_dB)
a_F = A(0, 64)
a_x = A(248, 8)
LSUM = int(os.environ.get('LSUM', '1'))
a_L = A(224, 16); a_ones = A(240, 4)
POI = int(os.environ.get('POI', '0'))
POISON = 0x7f817f81
a_poi = A(244, 4)

RING = 65536
MARK = 0x7fc17fc1
WS_SP = 8 << 20
WS_DUMP = 32 << 20
WS_FL = (7 << 20) + (512 << 10)
S_FLZ = S(4, 4)
S_FL = S(4, 4)

em = Em()
e = em.e

def srd(dst, lo, hi, size, off_s=None):
    if off_s is None:
        e(salu("s_mov_b32", dst[0], lo, scc_w=False)); e(salu("s_mov_b32", dst[1], hi, scc_w=False))
    else:
        e(salu("s_add_u32", dst[0], lo, off_s)); e(salu("s_addc_u32", dst[1], hi, 0, scc_r=True))
    e(salu("s_mov_b32", dst[2], hx(size), scc_w=False)); e(salu("s_mov_b32", dst[3], "0x20000", scc_w=False))

DIAG = int(os.environ.get("DIAG", "0"))
HC_OFF = 128
diag_regs = [S(100, 2), S(70, 2), S(72, 2), S(74, 2), S(96, 2), S(98, 2), S(68, 2)] if DIAG == 1 else [S(100, 2), S(96, 2), S(70, 2), S(72, 2), S(74, 2), S(98, 2), S(92, 2)] if DIAG == 3 else [S(100, 2), S(96, 2), S(98, 2), S(94, 2), S(70, 2), S(72, 2), S(74, 2), S(68, 2)]
diag_n = [0]
def diag(which=1, last=False):
    if not DIAG or (which != DIAG and which != 0): return
    k = diag_n[0]; diag_n[0] += 1
    e(raw("%s %s" % ("s_memtime" if (os.environ.get("CYC") and not last) else "s_memrealtime", diag_regs[k]), "other", wr=[diag_regs[k]]))
    if k > 0: e(raw("s_waitcnt lgkmcnt(0)", "wait")); em._retire(em.lgq, 0)
AMP = os.environ.get("AMP")
def diag_out():
    if not DIAG: return
    diag(0, last=True)
    if AMP:
        k = int(AMP); last = diag_regs[diag_n[0] - 1]
        e(salu("s_sub_u32", s_t0, diag_regs[k][0], diag_regs[int(os.environ.get("AMP0", "0"))][0]))
        if os.environ.get("CYC"): e(salu("s_lshr_b32", s_t0, s_t0, 2))
        else: e(salu("s_lshl_b32", s_t0, s_t0, 2))
        em.label("L_amp")
        e(raw("s_memrealtime s[56:57]")); e(raw("s_waitcnt lgkmcnt(0)"))
        e(salu("s_sub_u32", s_t1, s_t1, last[0])); e(scmp("s_cmp_lt_u32", s_t1, s_t0)); e(raw("s_cbranch_scc1 L_amp", rd=["scc"]))
        return
    e(scmp("s_cmp_lg_u32", s_w, 0)); e(raw("s_cbranch_scc1 L_end", rd=["scc"]))
    e(raw("s_mov_b64 exec, 1", "salu", wr=["exec"]))
    e(salu("s_not_b32", s_t0, diag_regs[0][0]))
    for k in range(diag_n[0]):
        e(valu("v_mov_b32", V(4 + k), s_t0 if k == 0 else diag_regs[k][0]))
        e(raw("buffer_atomic_umax %s, off, %s, 0 offset:%d sc1" % (V(4 + k), S_DBG, 4 * k)))
    e(valu("v_mov_b32", V(12), diag_regs[0][0]))
    e(raw("buffer_atomic_umax %s, off, %s, 0 offset:%d sc1" % (V(12), S_DBG, 4 * 9)))
stamp_n = [0]
def stamp():
    if not STAMP: return
    k = stamp_n[0]; stamp_n[0] += 1
    e(raw("s_memtime %s" % S(68, 2), "other", wr=[S(68, 2)]))
    e(raw("s_memrealtime %s" % S(70, 2), "other", wr=[S(70, 2)]))
    e(raw("s_waitcnt lgkmcnt(0)", "wait")); em._retire(em.lgq, 0)
    for i in range(4): e(valu("v_writelane_b32", v_c, S(68 + i), i, rmw=True))
    e(salu("s_lshl_b32", S(72), S(2), 2)); e(salu("s_add_u32", S(72), S(72), s_w)); e(salu("s_lshl_b32", S(72), S(72), 9))
    e(salu("s_mov_b64", S(74, 2), "exec", scc_w=False)); e(raw("s_mov_b64 exec, 15", "salu", wr=["exec"]))
    e(valu("v_lshlrev_b32", v_t, 2, v_lane))
    e(bstore(v_c, v_t, S_DMP, S(72), off=k * 16))
    e(raw("s_mov_b64 exec, %s" % S(74, 2), "salu", wr=["exec"]))
    e(valu("v_lshlrev_b32", v_t, 7, v_lane))

def dump_regs(regs, finish=True):
    em.wait(lg0=True, vm0=True)
    e(nop(7)); e(nop(7))
    n = len(regs)
    e(salu("s_lshl_b32", s_t0, S(2), 2)); e(salu("s_add_u32", s_t0, s_t0, s_w)); e(salu("s_mul_i32", s_t0, s_t0, n * 256, scc_w=False))
    e(valu("v_lshlrev_b32", v_t, 2, v_lane))
    for k, r in enumerate(regs):
        e(bstore(r, v_t, S_DMP, s_t0, off=0))
        e(salu("s_add_u32", s_t0, s_t0, 256))
        if k % 32 == 31: em.wait(vm0=True)
    em.wait(vm0=True)
    if finish: e(raw("s_endpgm"))

def red4(op, x, tmp):
    for sw in ("v_permlane32_swap_b32", "v_permlane16_swap_b32"):
        for a, t in zip(x, tmp): e(valu("v_mov_b32", t, a))
        if len(x) < 3: e(nop(1))
        for a, t in zip(x, tmp): e(valu(sw, a, t))
        for a, t in zip(x, tmp): e(valu(op, a, a, t))

e(scmp("s_cmp_ge_u32", S(2), 256)); e(raw("s_cbranch_scc1 L_end", rd=["scc"]))
diag(0)
e(salu("s_mov_b32", s_retry, 0, scc_w=False))
em.label("L_restart")
i0 = e(I("s_load_dwordx16 %s, s[0:1], 0" % s_ka, "smem", wr=s_ka.regs()))
i1 = e(I("s_load_dwordx8 %s, s[0:1], 64" % s_kb, "smem", wr=s_kb.regs()))
vq, vG, vr, vc_, vx, vy, vz = [V(40 + i) for i in range(7)]
e(raw("s_getpc_b64 %s" % s_pair2, "salu", wr=[s_pair2]))
em.label("L_pc0")
CT0 = int(os.environ.get("CT0", "64"))
if CT0:
    e(valu("v_sub_u32", V(55), 255, v_tid)); e(valu("v_cmp_gt_u32", "vcc", CT0, V(55))); e(valu("v_lshlrev_b32", V(55), 7, V(55))); e(nop(0))
    e(raw("s_and_saveexec_b64 s[4:5], vcc", "salu", wr=["exec"], rd=["vcc"])); e(raw("s_cbranch_execz L_ct0"))
    e(raw("global_load_dword v55, v55, %s" % s_pair2))
    em.label("L_ct0")
    e(raw("s_mov_b64 exec, -1", "salu", wr=["exec"]))
MAP2 = int(os.environ.get("MAP2", "0"))
s_i = S(65)
if MAP2:
    e(salu("s_and_b32", s_g, S(2), 3)); e(salu("s_lshl_b32", s_g, s_g, 1)); e(salu("s_bfe_u32", s_t0, S(2), "0x10003")); e(salu("s_add_u32", s_g, s_g, s_t0))
    e(salu("s_bfe_u32", s_qb, S(2), "0x10002")); e(salu("s_lshl_b32", s_qb, s_qb, 4)); e(salu("s_lshr_b32", s_t0, S(2), 4)); e(salu("s_add_u32", s_qb, s_qb, s_t0))
else:
    e(salu("s_and_b32", s_g, S(2), 7)); e(salu("s_lshr_b32", s_qb, S(2), 3))
def sx(dst): return salu("s_lshr_b32", dst, S(2), 4 if MAP2 else 3)
TL = "-1" if MAP2 else "0xffffffff"
e(valu("v_and_b32", v_lane, 63, v_tid))
e(valu("v_lshrrev_b32", v_t, 6, v_tid))
e(valu("v_lshlrev_b32", v_lin, 4, v_lane))
e(valu("v_readfirstlane_b32", s_w, v_t))
e(valu("v_and_b32", vq, 15, v_lane)); e(valu("v_lshrrev_b32", vG, 4, v_lane))
vxo = V(47)
XD = int(os.environ.get("XD", "1"))
if XD == 2:
    vxq = V(60, 4); vxr = vxq
    for rg in range(4):
        e(valu("v_add_u32", vy, 4 * rg, vG)); e(valu("v_xor_b32", vz, vy, vq)); e(valu("v_lshl_add_u32", vy, v_t, 4, vy)); e(valu("v_lshlrev_b32", vy, 10, vy))
        e(valu("v_lshl_add_u32", vxq[rg], vz, 4, vy))
elif XD:
    vxo2 = V(50); vxr = [V(47), V(50)]
    e(valu("v_lshrrev_b32", vx, 3, v_lane)); e(valu("v_lshl_add_u32", vx, v_t, 4, vx)); e(valu("v_lshlrev_b32", vx, 10, vx))
    e(valu("v_and_b32", vy, 7, v_lane)); e(valu("v_xor_b32", vy, vy, vG)); e(valu("v_lshl_add_u32", vxo, vy, 4, vx))
    e(valu("v_xor_b32", vxo2, 64, vxo)); e(valu("v_add_u32", vxo2, 8192, vxo2))
else:
    e(valu("v_lshl_add_u32", vxo, v_t, 4, vq)); e(valu("v_lshlrev_b32", vxo, 10, vxo)); e(valu("v_lshl_add_u32", vxo, vG, 4, vxo))
vwg, vwq, vcw = V(52), V(53), V(54)
GM0 = int(os.environ.get("GM", "1"))
if GM0: e(salu("s_lshl_b32", s_t1, s_g, 7))
else: e(salu("s_mul_i32", s_t1, s_g, 448, scc_w=False)); e(salu("s_and_b32", s_t1, s_t1, hx(~127)))
e(salu("s_and_b32", s_t2, s_w, 1)); e(sx(s_t3)); e(salu("s_lshl_b32", s_t3, s_t3, 1)); e(salu("s_add_u32", s_t2, s_t2, s_t3))
e(salu("s_mul_i32", s_t2, s_t2, (16 if MAP2 else 8) * 3584, scc_w=False)); e(salu("s_add_u32", s_t1, s_t1, s_t2))
e(valu("v_lshrrev_b32", vx, 2, v_lane)); e(valu("v_mul_u32_u24", vx, 3584, vx)); e(valu("v_and_b32", vz, 3, v_lane)); e(valu("v_lshl_add_u32", vx, vz, 10 if GM0 else 7, vx))
e(valu("v_add_u32", vwg, s_t1, vx))
if GM0:
    e(salu("s_add_u32", s_t3, s_g, 1)); e(salu("s_lshr_b32", s_t3, s_t3, 1)); e(salu("s_lshl_b32", s_t3, s_t3, 7))
    e(valu("v_cmp_eq_u32", "vcc", 3, vz)); e(valu("v_subrev_u32", vx, s_t3, vwg)); e(nop(0)); e(valu("v_cndmask_b32", vwg, vwg, vx, "vcc"))
e(salu("s_lshr_b32", s_t2, S(2), 3)); e(salu("s_lshl_b32", s_t2, s_t2, 2)); e(salu("s_add_u32", s_t2, s_t2, s_w)); e(salu("s_lshl_b32", s_t3, s_t2, 8))
e(valu("v_lshlrev_b32", vcw, 7, v_lane)); e(valu("v_add_u32", vcw, s_t3, vcw))
e(salu("s_lshl_b32", s_t0, s_qb, 16))
em.wait(lg0=True)
diag(2)
srd(S_X, s_ka[0], s_ka[1], 65536, s_t0)
v_xp = V(64, 64)
XFIRST = int(os.environ.get("XFIRST", "12"))
if XD:
    s_xb = S(60)
    e(salu("s_lshl_b32", s_xb, s_w, 14))
    xo = [256 * (t >> 2) if XD == 2 else 128 * (t >> 1) for t in range(16)]
    xl = [dma(vxq[t & 3] if XD == 2 else (vxo2 if t & 1 else vxo), S_X, 0, off=xo[t]) for t in range(16)]
    def xissue(t): e(salu("s_add_u32", "m0", s_xb, t * 1024 - xo[t])); e(nop(0)); e(xl[t])
else:
    xl = [bload(v_xp[(4 * ks, 4)], vxo, S_X, 0, off=64 * ks) for ks in range(16)]
    def xissue(t): e(xl[t])
for ks in range(XFIRST): xissue(ks)
e(scmp("s_cmp_lt_u32", s_w, 2)); e(salu("s_cselect_b64", s_pair, s_ka[(12, 2)], s_ka[(14, 2)], scc_w=False, scc_r=True))
WT = int(os.environ.get("WT", "0"))
s_wgp = S(100, 2) if not DIAG else S(98, 2)
def wq_addr():
    e(sx(s_t2)); e(salu("s_lshl_b32", s_t2, s_t2, 2)); e(salu("s_add_u32", s_t2, s_t2, s_w))
    e(salu("s_lshl_b32", s_t2, s_t2, 16 if MAP2 else 15)); e(salu("s_lshl_b32", s_t3, s_g, 10)); e(salu("s_add_u32", s_t2, s_t2, s_t3))
    e(valu("v_lshrrev_b32", vx, 3, v_lane)); e(valu("v_lshlrev_b32", vx, 13, vx)); e(valu("v_and_b32", vz, 7, v_lane)); e(valu("v_lshl_add_u32", vx, vz, 7, vx))
    e(valu("v_add_u32", vwq, s_t2, vx))
if ORD:
    e(salu("s_mov_b64", s_wgp, s_pair, scc_w=False))
    wq_addr()
    e(raw("s_mov_b64 exec, " + TL, "salu", wr=["exec"]))
    e(I("global_load_dword %s, %s, %s" % (V(48), vwq, s_ka[(6, 2)]), "vmem", rd=vwq.regs() + s_ka[(6, 2)].regs(), wr=V(48).regs()))
elif WT:
    e(salu("s_lshl_b32", s_t3, S(2), 1)); e(salu("s_and_b32", s_t1, s_w, 1)); e(salu("s_add_u32", s_t3, s_t3, s_t1)); e(salu("s_mul_i32", s_t3, s_t3, 3584, scc_w=False))
    e(valu("v_lshlrev_b32", V(51), 7, v_lane)); e(valu("v_add_u32", V(51), s_t3, V(51)))
    e(raw("s_mov_b64 exec, 0xfffffff", "salu", wr=["exec"]))
    e(I("global_load_dword %s, %s, %s" % (V(48), V(51), s_pair), "vmem", rd=V(51).regs() + s_pair.regs(), wr=V(48).regs()))
    e(salu("s_mov_b64", s_wgp, s_pair, scc_w=False))
else:
    e(raw("s_mov_b64 exec, " + TL, "salu", wr=["exec"]))
    e(I("global_load_dword %s, %s, %s" % (V(48), vwg, s_pair), "vmem", rd=vwg.regs() + s_pair.regs(), wr=V(48).regs()))
e(raw("s_mov_b64 exec, 3", "salu", wr=["exec"]))
e(I("global_load_dword %s, %s, %s" % (V(49), vcw, s_pair2), "vmem", rd=vcw.regs() + s_pair2.regs(), wr=V(49).regs()))
e(raw("s_mov_b64 exec, -1", "salu", wr=["exec"]))
if not ORD: wq_addr()
e(salu("s_lshr_b32", s_t2, S(2), 6)); e(salu("s_and_b32", s_t3, S(2), 7)); e(salu("s_lshl_b32", s_t3, s_t3, 2)); e(salu("s_add_u32", s_t2, s_t2, s_t3))
e(salu("s_lshl_b32", s_t0, s_t2, 16))
srd(S_OUT, s_kb[2], s_kb[3], 65536, s_t0)
e(salu("s_lshl_b32", s_t1, s_g, 19))
srd(S_K, s_ka[2], s_ka[3], 524288, s_t1)
srd(S_V, s_ka[4], s_ka[5], 524288, s_t1)
srd(S_WO, s_ka[8], s_ka[9], 524288, s_t1)
srd(S_WQ, s_ka[6], s_ka[7], 4 << 20)
srd(S_WG, s_ka[12], s_ka[13], 1835008)
srd(S_WU, s_ka[14], s_ka[15], 1835008)
srd(S_WD, s_kb[0], s_kb[1], 1835008)
srd(S_DBG, s_kb[4], s_kb[5], 256)
e(salu("s_mul_i32", s_t1, s_qb, 229376, scc_w=False))
srd(S_H, s_kb[6], s_kb[7], 229376, s_t1)
e(salu("s_lshl_b32", s_t1, s_qb, 19)); e(salu("s_add_u32", s_t1, s_t1, hx(WS_SP)))
srd(S_SP, s_kb[6], s_kb[7], 524288, s_t1)
if DUMP or STAMP:
    e(salu("s_mov_b32", s_t1, hx(WS_DUMP), scc_w=False))
    srd(S_DMP, s_kb[6], s_kb[7], 200 << 20, s_t1)
e(salu("s_mov_b64", s_pair, S(90, 2), scc_w=False))
e(salu("s_lshl_b32", s_t0, s_t2, 16))
srd(S_XC, s_ka[0], s_ka[1], 65536, s_t0)
e(salu("s_mul_i32", s_t1, s_t2, 229376, scc_w=False))
srd(S_HC, s_pair[0], s_pair[1], 229376, s_t1)
e(salu("s_lshl_b32", s_t1, s_t2, 19)); e(salu("s_add_u32", s_t1, s_t1, hx(WS_SP)))
srd(S_SPC, s_pair[0], s_pair[1], 524288, s_t1)
e(salu("s_mov_b32", s_cq, s_t2, scc_w=False)); e(salu("s_bfe_u32", s_cg, S(2), "0x30003"))
e(salu("s_lshl_b32", s_myfl, s_qb, 2)); e(salu("s_add_u32", s_myfl, s_myfl, s_w)); e(salu("s_lshl_b32", s_myfl, s_myfl, 8))
e(salu("s_lshl_b32", s_t1, s_g, 2)); e(salu("s_add_u32", s_myfl, s_myfl, s_t1))
e(salu("s_lshl_b32", s_m0b, s_w, 12)); e(salu("s_add_u32", s_m0b, s_m0b, RING))
GM = int(os.environ.get("GM", "1"))
if GM:
    e(salu("s_lshl_b32", s_t1, s_w, 3)); e(salu("s_add_u32", s_t1, s_t1, s_g))
    e(salu("s_lshr_b32", s_t2, s_g, 1)); e(salu("s_add_u32", s_t2, s_t2, 24))
    e(scmp("s_cmp_eq_u32", s_w, 3)); e(salu("s_cselect_b32", s_t1, s_t2, s_t1, scc_w=False, scc_r=True))
else:
    e(salu("s_and_b32", s_t1, s_g, 1)); e(salu("s_lshl_b32", s_t1, s_t1, 2)); e(salu("s_add_u32", s_t1, s_t1, s_w))
    e(scmp("s_cmp_eq_u32", s_w, 3)); e(salu("s_cselect_b32", s_t1, 3, s_t1, scc_w=False, scc_r=True))
    e(salu("s_lshr_b32", s_t2, s_g, 1)); e(salu("s_mul_i32", s_t2, s_t2, 7, scc_w=False)); e(salu("s_add_u32", s_t1, s_t1, s_t2))
e(salu("s_lshl_b32", s_h0, s_t1, 13)); e(salu("s_add_u32", s_h1, s_h0, 4096))
e(salu("s_lshl_b32", s_t1, s_t1, 7))
e(salu("s_lshl_b32", s_t2, s_g, 2)); e(salu("s_add_u32", s_t2, s_t2, s_w)); e(salu("s_lshl_b32", s_t2, s_t2, 8))

def dma_voffs(dst, stride, colbase_s, perm):
    for j in range(4):
        e(valu("v_bfe_u32", vx, v_lane, 1, 2)); e(valu("v_bfe_u32", vy, v_lane, 4, 1))
        e(valu("v_xor_b32", vx, vx, vy))
        if j & 1: e(valu("v_xor_b32", vx, 2, vx))
        e(valu("v_and_b32", vy, 1, v_lane)); e(valu("v_lshlrev_b32", vy, 4, vy)); e(valu("v_lshl_add_u32", vx, vx, 5, vy))
        if not perm:
            e(valu("v_lshrrev_b32", vy, 3, v_lane)); rowadd = 8 * j
        else:
            e(valu("v_bfe_u32", vy, v_lane, 3, 2)); e(valu("v_bfe_u32", vz, v_lane, 5, 1)); e(valu("v_lshl_add_u32", vy, vz, 4, vy)); rowadd = 4 * j
        e(valu("v_mul_u32_u24", vy, stride, vy))
        e(valu("v_add3_u32", vx, vx, vy, colbase_s))
        e(valu("v_add_u32", dst[j], rowadd * stride - j * 1024, vx))

dma_voffs(v_dA, 3584, s_t1, False)
dma_voffs(v_dB, 8192, s_t2, False)

def m0set(p): return salu("s_add_u32", "m0", s_m0b, p * 16384) if p < 6 else salu("s_sub_u32", "m0", s_m0b, RING - (p - 6) * 16384)
def s1_dma(m):
    p = m % 6
    if ORD and m < 64: m ^= 32
    if m < 32:
        s, h = m >> 1, m & 1
        return [m0set(p), salu("s_mov_b32", s_off, s * 32 * 3584, scc_w=False)], [dma(v_dA[j], S_WU if h else S_WG, s_off, j * 1024) for j in range(4)]
    if m < 64:
        s, h = (m - 32) >> 1, m & 1
        return [m0set(p), salu("s_mov_b32", s_off, s * 32 * 8192 + 128 * h, scc_w=False)], [dma(v_dB[j], S_WQ, s_off, j * 1024) for j in range(4)]
    if m == 64:
        return [m0set(p), salu("s_mov_b32", s_off, 0, scc_w=False)], [dma(v_kd[j], S_K, s_off, j * 1024) for j in range(4)]
    if m == 65:
        return [m0set(p), salu("s_mov_b32", s_off, 8192, scc_w=False)], [dma(v_kd[j], S_K, s_off, j * 1024) for j in range(4)]
    if m == 66:
        return [m0set(p), salu("s_mov_b32", s_off, 0, scc_w=False)], [dma(v_vd[j & 1], S_V, s_off, j * 1024) for j in range(4)]
    return None
dtok = {}
ln_v = []
for m in range(6):
    sa, dm = s1_dma(m)
    ln_v.append(sa); ln_v += dm
    dtok[m] = dm[3]
def xaddr(dst, tmp):
    e(valu("v_and_b32", dst, 15, v_lane)); e(salu("s_lshl_b32", s_t0, s_w, 4)); e(valu("v_add_u32", dst, s_t0, dst)); e(valu("v_lshlrev_b32", dst, 10, dst))
    e(valu("v_lshrrev_b32", tmp, 4, v_lane)); e(valu("v_lshl_add_u32", dst, tmp, 3, dst)); e(salu("s_lshl_b32", s_t0, s_cg, 7)); e(valu("v_add_u32", dst, s_t0, dst))
WQT = int(os.environ.get("WQT", "0"))
wqt = [raw("s_mov_b64 exec, " + TL, "salu", wr=["exec"]), bload(V(46), vwq, S_WQ, 0, n=1), raw("s_mov_b64 exec, -1", "salu", wr=["exec"])]
WQC = int(os.environ.get("WQC", "2"))
wqs = wqt
if ORD:
    e(salu("s_lshl_b32", s_t3, S(2), 1)); e(salu("s_and_b32", s_t1, s_w, 1)); e(salu("s_add_u32", s_t3, s_t3, s_t1)); e(salu("s_mul_i32", s_t3, s_t3, 3584, scc_w=False))
    e(valu("v_lshlrev_b32", V(54), 7, v_lane)); e(valu("v_add_u32", V(54), s_t3, V(54)))
    wqt = [raw("s_mov_b64 exec, 0xfffffff", "salu", wr=["exec"]), I("global_load_dword %s, %s, %s" % (V(49), V(54), s_wgp), "vmem", rd=["v54"] + s_wgp.regs(), wr=["v49"]), raw("s_mov_b64 exec, -1", "salu", wr=["exec"])]
    wqs = [raw("s_mov_b64 exec, " + TL, "salu", wr=["exec"]), I("global_load_dword %s, %s, %s" % (V(46), vwg, s_wgp), "vmem", rd=vwg.regs() + s_wgp.regs(), wr=["v46"]), raw("s_mov_b64 exec, -1", "salu", wr=["exec"])]
elif WQC:
    e(salu("s_lshl_b32", s_t3, S(2), 2)); e(salu("s_add_u32", s_t3, s_t3, s_w)); e(salu("s_lshl_b32", s_t3, s_t3, 12))
    e(valu("v_lshlrev_b32", V(54), 7, v_lane)); e(valu("v_add_u32", V(54), s_t3, V(54)))
    wqt = [raw("s_mov_b64 exec, 0xffffffff", "salu", wr=["exec"]), bload(V(49), V(54), S_WQ, 0, n=1), raw("s_mov_b64 exec, -1", "salu", wr=["exec"])]
if WT == 2:
    wgt = [raw("s_mov_b64 exec, " + TL, "salu", wr=["exec"]), I("global_load_dword %s, %s, %s" % (V(51), vwg, s_wgp), "vmem", rd=vwg.regs() + s_wgp.regs(), wr=V(51).regs()), raw("s_mov_b64 exec, -1", "salu", wr=["exec"])]
    ln_v.insert(int(os.environ.get("WTP", "0")), wgt)
if WQT == 0: ln_v.append(wqt)
LNPRE = int(os.environ.get("LNPRE", "0"))
lv = [0]
def ln_issue(n=1):
    k = 0
    while k < n and lv[0] < len(ln_v):
        it = ln_v[lv[0]]; lv[0] += 1
        e(it)
        if not isinstance(it, list): k += 1
e(valu("v_bfe_u32", vr, v_lane, 2, 2)); e(valu("v_and_b32", vc_, 3, v_lane))
e(valu("v_lshlrev_b32", vx, 10, vG)); e(valu("v_lshl_add_u32", vx, vr, 7, vx)); e(valu("v_lshl_add_u32", vx, vc_, 3, vx)); e(valu("v_add_u32", vx, s_m0b, vx))
e(valu("v_lshrrev_b32", vy, 1, vr)); e(valu("v_and_b32", vz, 1, vG)); e(valu("v_lshl_add_u32", vy, vz, 1, vy))
for u in range(4):
    e(valu("v_xor_b32", vz, u, vy)); e(valu("v_lshl_add_u32", v_tr[0][u], vz, 5, vx)); e(valu("v_add_u32", v_tr[1][u], 3 * 16384, v_tr[0][u]))
e(valu("v_xor_b32", vy, vG, vq))
for ds in range(4):
    e(valu("v_xor_b32", vz, 4 * ds, vy)); e(valu("v_lshlrev_b32", vz, 4, vz)); e(valu("v_lshl_add_u32", vz, vq, 8, vz)); e(valu("v_add_u32", v_ka[ds], RING + 4 * 16384, vz))
e(valu("v_lshl_add_u32", vx, vG, 2, vr)); e(valu("v_and_b32", vy, 7, vx)); e(valu("v_lshlrev_b32", vx, 8, vx)); e(valu("v_lshl_add_u32", vx, vc_, 3, vx)); e(valu("v_add_u32", vx, RING, vx))
for db in range(8):
    e(valu("v_xor_b32", vz, db, vy)); e(valu("v_lshl_add_u32", v_va[db], vz, 5, vx))
e(salu("s_lshl_b32", s_t1, s_w, 12))
e(valu("v_lshlrev_b32", vx, 8, vG)); e(valu("v_add_u32", vx, s_t1, vx))
for j in range(4):
    e(valu("v_add_u32", vy, 4 * j, vG)); e(valu("v_xor_b32", vy, vy, vq)); e(valu("v_lshl_add_u32", v_kd[j], vy, 4, vx))
e(valu("v_and_b32", vz, 1, v_lane)); e(valu("v_lshl_add_u32", vx, vz, 4, vx))
for j in range(2):
    e(valu("v_add_u32", vy, 4 * j, vG)); e(valu("v_lshrrev_b32", vz, 1, vq)); e(valu("v_xor_b32", vy, vy, vz)); e(valu("v_lshl_add_u32", v_vd[j], vy, 5, vx))
e(salu("s_lshl_b32", s_t1, s_w, 14)); e(valu("v_add_u32", v_wl, s_t1, v_lin))
for ks in range(XFIRST, 16): xissue(ks)
if XD == 2:
    e(valu("v_xor_b32", vx, vq, vG)); e(valu("v_lshlrev_b32", vy, 8, vq)); e(valu("v_add_u32", vy, s_xb, vy))
    for b_ in range(4): e(valu("v_xor_b32", vz, 4 * b_, vx)); e(valu("v_lshl_add_u32", V(48 + 0) if False else vxr[b_], vz, 4, vy))
elif XD:
    e(valu("v_lshrrev_b32", vx, 1, vq)); e(valu("v_xor_b32", vx, vx, vG)); e(valu("v_lshlrev_b32", vx, 4, vx))
    e(valu("v_lshl_add_u32", vx, vq, 7, vx)); e(valu("v_add_u32", vxr[0], s_xb, vx)); e(valu("v_xor_b32", vxr[1], 64, vxr[0]))
e(salu("s_mov_b32", s_t1, hx(WS_FL), scc_w=False))
srd(S_FL, s_pair[0], s_pair[1], 32768, s_t1)
if WQT == 1: e(wqt)
ln_issue(LNPRE)
stamp()

v_f = V(128, 128)
LNM = int(os.environ.get("LNM", "1"))
vsum, vtmp, vmb, vdm = V(40), V(41), V(42), V(43)
vneg = V(56, 2)
diag(2)
if LNM:
    d1, d2 = V(56, 4), (V(60, 4) if XD != 2 else A(196, 4))
    xr = {}
    def xread(t2):
        em.wait(vm=xl[2 * t2 + 1])
        for ks in (2 * t2, 2 * t2 + 1): xr[ks] = e(dsread("ds_read_b128", v_xp[(4 * ks, 4)], vxr[ks & 1], (ks >> 1) * 2048))
    e(valu("v_mov_b32", vtmp, "0x3f803f80"))
    for i in range(4): e(valu("v_accvgpr_write_b32", a_ones[i], vtmp))
    e(valu("v_and_b32", vtmp, 3, v_lane))
    for r in range(1, 4): e(valu("v_cmp_eq_u32", S(68 + 2 * r, 2), r, vtmp))
    e(valu("v_bfe_u32", vtmp, v_lane, 2, 2)); e(valu("v_lshrrev_b32", vmb, 4, v_lane)); e(valu("v_cmp_eq_u32", S(68, 2), vtmp, vmb))
    LND = int(os.environ.get("LND", "4"))
    def xread4(sg):
        em.wait(vm=xl[4 * sg + 3])
        for ks in range(4 * sg, 4 * sg + 4): xr[ks] = e(dsread("ds_read_b128", v_xp[(4 * ks, 4)], vxr[ks & 3], sg * 4096))
    if XD == 1: xread(0)
    for ks in range(16):
        if XD == 2:
            if ks % 4 == 0: xread4(ks // 4)
            em.wait(lg=xr[ks])
        elif XD:
            if ks % 2 == 0 and ks + 2 < 16: xread(ks // 2 + 1)
            em.wait(lg=xr[ks])
        else: em.wait(vm=xl[ks])
        if ks == 15: diag(2)
        x4 = v_xp[(4 * ks, 4)]
        e(mfma(d1, a_ones, x4, 0 if ks == 0 else d1))
        if ks >= LND: ln_issue(1)
        for k in range(2):
            p = 4 * ks + k
            e(valu("v_lshlrev_b32", v_f[2 * p], 16, v_xp[p])); e(valu("v_and_b32", v_f[2 * p + 1], "0xffff0000", v_xp[p]))
        e(mfma(d2, x4, x4, 0 if ks == 0 else d2))
        for k in range(2, 4):
            p = 4 * ks + k
            e(valu("v_lshlrev_b32", v_f[2 * p], 16, v_xp[p])); e(valu("v_and_b32", v_f[2 * p + 1], "0xffff0000", v_xp[p]))
    if STAMP == 3: stamp()
    ln_issue(int(os.environ.get("LN_FIRST", "0")))
    diag(2)
    if STAMP == 3: stamp()
    e(nop(2))
    if XD == 2:
        e(nop(2))
        for r in range(4): e(valu("v_accvgpr_read_b32", V(60 + r), d2[r]))
        d2 = V(60, 4)
    e(valu("v_mul_f32", vsum, hx(f2u(1.0 / 512)), d1[0]))
    e(valu("v_cvt_pk_bf16_f32", vmb, vsum, vsum)); e(valu("v_lshlrev_b32", vmb, 16, vmb))
    e(valu("v_mov_b32", vdm, vsum))
    for r in range(1, 4): e(valu("v_cndmask_b32", d2[0], d2[0], d2[r], S(68 + 2 * r, 2)))
    e(valu("v_cndmask_b32", vsum, 0, d2[0], S(68, 2)))
    red4("v_add_f32", [vsum], [vtmp])
    e(valu("v_mul_f32", vsum, hx(f2u(1.0 / 512)), vsum))
    e(valu("v_fma_f32", vsum, "-" + str(vdm), vdm, vsum, extra_rd=vdm.regs()))
    if STAMP == 3: stamp()
else:
    acc = [V(56, 2), V(58, 2), V(60, 2), V(62, 2)]
    for ks in range(16):
        em.wait(vm=xl[ks])
        if ks == 15: diag(2)
        for k in range(4):
            p = 4 * ks + k
            e(valu("v_lshlrev_b32", v_f[2 * p], 16, v_xp[p])); e(valu("v_and_b32", v_f[2 * p + 1], "0xffff0000", v_xp[p]))
        for k in range(4):
            p = 4 * ks + k
            if ks == 0: e(valu("v_mov_b64", acc[k], v_f[(2 * p, 2)]))
            else: e(valu("v_pk_add_f32", acc[k], acc[k], v_f[(2 * p, 2)]))
    if STAMP == 3: stamp()
    ln_issue(int(os.environ.get("LN_FIRST", "12")))
    diag(2)
    if STAMP == 3: stamp()
    e(valu("v_pk_add_f32", acc[0], acc[0], acc[1])); e(valu("v_pk_add_f32", acc[2], acc[2], acc[3])); e(valu("v_pk_add_f32", acc[0], acc[0], acc[2]))
    e(valu("v_add_f32", vsum, acc[0][0], acc[0][1]))
    red4("v_add_f32", [vsum], [vtmp])
    e(valu("v_mul_f32", vsum, hx(f2u(1.0 / 512)), vsum))
    e(valu("v_cvt_pk_bf16_f32", vmb, vsum, vsum)); e(valu("v_lshlrev_b32", vmb, 16, vmb))
    e(valu("v_sub_f32", vdm, vsum, vmb))
    e(valu("v_sub_f32", vneg[0], 0, vmb))
    acc2 = [V(58, 2), V(60, 2), V(62, 2)]
    for p in range(64):
        e(valu("v_pk_add_f32", v_f[(2 * p, 2)], v_f[(2 * p, 2)], vneg, mod="op_sel_hi:[1,0]"))
    for p in range(64):
        a_ = acc2[p % 3]
        if p < 3: e(valu("v_pk_mul_f32", a_, v_f[(2 * p, 2)], v_f[(2 * p, 2)]))
        else: e(valu("v_pk_fma_f32", a_, v_f[(2 * p, 2)], v_f[(2 * p, 2)], a_))
    if STAMP == 3: stamp()
    e(valu("v_pk_add_f32", acc2[0], acc2[0], acc2[1])); e(valu("v_pk_add_f32", acc2[0], acc2[0], acc2[2]))
    e(valu("v_add_f32", vsum, acc2[0][0], acc2[0][1]))
    red4("v_add_f32", [vsum], [vtmp])
    e(valu("v_mul_f32", vsum, hx(f2u(1.0 / 512)), vsum))
    e(valu("v_fma_f32", vsum, "-" + str(vdm), vdm, vsum, extra_rd=vdm.regs()))
e(valu("v_max_f32", vsum, 0, vsum))
e(valu("v_cvt_pk_bf16_f32", vsum, vsum, vsum)); e(valu("v_lshlrev_b32", vsum, 16, vsum))
e(valu("v_add_f32", vsum, hx(f2u(1e-5)), vsum))
e(valu("v_cvt_pk_bf16_f32", vsum, vsum, vsum)); e(valu("v_lshlrev_b32", vsum, 16, vsum))
e(valu("v_sqrt_f32", vsum, vsum)); e(nop(0))
e(valu("v_cvt_pk_bf16_f32", vsum, vsum, vsum)); e(valu("v_lshlrev_b32", vsum, 16, vsum))
e(valu("v_rcp_f32", vneg[0], vsum)); e(nop(0))
if LNM: e(valu("v_mul_f32", vneg[1], "-" + str(vmb), vneg[0], mod="", extra_rd=vmb.regs()))
for ks in range(16):
    for k in range(4):
        p = 4 * ks + k
        if LNM: e(valu("v_pk_fma_f32", v_f[(2 * p, 2)], v_f[(2 * p, 2)], vneg, vneg, mod="op_sel:[0,0,1] op_sel_hi:[1,0,1]"))
        else: e(valu("v_pk_mul_f32", v_f[(2 * p, 2)], v_f[(2 * p, 2)], vneg, mod="op_sel_hi:[1,0]"))
    for k in range(4):
        p = 4 * ks + k
        e(valu("v_cvt_pk_bf16_f32", v_xp[p], v_f[2 * p], v_f[2 * p + 1]))
    e(dswrite("ds_write_b128", v_wl, v_xp[(4 * ks, 4)], ks * 1024))
ln_issue(int(os.environ.get("LN_LAST", "100")))
if STAMP == 3: stamp()
if DUMP == "ln": dump_regs([v_xp[i] for i in range(64)])
em.wait(lg0=True)
e(raw("s_barrier"))
stamp(); diag(); diag(2); diag(3)

PA = int(os.environ.get("PA", "1"))
SNAKE = int(os.environ.get("SNAKE", "1"))
def cost_of(it):
    k = getattr(it, "kind", "")
    return 2 if k == "trans" else (0 if k in ("salu", "nop") else 1)
class Fill:
    def __init__(self, items, start, end, spread=False): self.items, self.start, self.end, self.spread = list(items), start, end, spread; self.i = 0
    def done(self): return self.i == len(self.items)
def run_stream(NH, dmaf, dtok, accf, Bf, extra, fills, LOOK=6, nq=4, posf=lambda m: m % 6, ring=a_ring, first_dma=6, tr2=None, early_dma=False, w2=lambda g: False):
    NG = 4 * NH
    rtok = {}
    def reads(g):
        m, u = g >> 2, g & 3
        p = posf(m)
        d = ring[((g % 8) * 4, 4)]
        ar, of = (v_tr[p // 3][u], (p % 3) * 16384) if p < 6 else (tr2[u], (p - 6) * 16384)
        r = [dsread("ds_read_b64_tr_b16", d[(2 * h2, 2)], ar, of + h2 * 512) for h2 in range(2)]
        rtok[g] = r[1]
        return r
    assert all(k < NG for k in extra), "extra item scheduled past the end of the stream"
    pre = [reads(g) for g in range(3)]
    G, C = [], []
    cur = None
    for g in range(NG):
        gaps = [[], [], [], []]; cap = [2, 2, 2, 2]
        if g + 3 < NG:
            if (g + 3) & 3 == 0 and not (g > 0 and w2(g - 1)): gaps[0].append(LateW(dtok, (g + 3) >> 2))
            r = reads(g + 3); gaps[0].append(r[0]); gaps[1].append(r[1]); cap[0] -= 1; cap[1] -= 1
        md, j = (g + 4 * LOOK - 4) >> 2, (g + 4 * LOOK - 4) & 3
        if early_dma:
            md, j = (g + 4 * LOOK - 3) >> 2, (g + 4 * LOOK - 3) & 3
            if md >= first_dma and j < 2:
                if j == 0: cur = dmaf(md)
                if cur is not None:
                    if j == 0: gaps[1] += cur[0]
                    gaps[2].append(cur[1][2 * j]); gaps[3].append(cur[1][2 * j + 1]); cap[2] -= 1; cap[3] -= 1
                    if j == 1: dtok[md] = cur[1][3]
        elif md >= first_dma:
            if j == 0: cur = dmaf(md)
            if cur is not None:
                if j == 0: gaps[2] += cur[0]
                for it in cur[1][j::4]: gaps[3].append(it); cap[3] -= 1
                if j == 3: dtok[md] = cur[1][3]
        for (gp, it, cost) in extra.get(g, []):
            gaps[gp].append(it); cap[gp] -= cost
        if w2(g):
            if g & 1 == 0 and g + 1 < NG:
                gaps[3].insert(0, LateW2(rtok, [x for x in (g + 1, g + 2) if x < NG], dtok, (g + 4) >> 2 if ((g + 4) & 3 == 0 and g + 4 < NG) else None))
        elif g + 1 < NG: gaps[3].insert(0, Wait(lg=rtok[g + 1]))
        G.append(gaps); C.append(cap)
    B = {}
    for f in fills:
        idx = [(g, q) for g in range(f.start, f.end) for q in range(4)]
        caps = [max(0, C[g][q]) for g, q in idx]
        W = sum(cost_of(it) for it in f.items); T = sum(caps); n = len(idx)
        acc = 0.0; cum = 0
        for k, key in enumerate(idx):
            if W >= T: acc += caps[k] + (W - T) / n
            elif f.spread: acc += caps[k] * W / T
            else: acc += caps[k]
            B[key] = (f, acc)
    em.wait(vm=dtok[0])
    for r in pre: e(r)
    for p_ in extra.get(-1, []): e(p_[1])
    em.wait(lg0=True)
    used = {id(f): 0 for f in fills}
    for g in range(NG):
        m, u = g >> 2, g & 3
        d = ring[((g % 8) * 4, 4)]
        for qb in range(nq):
            qq = 3 - qb if (SNAKE and g & 1) else qb
            ac, first = accf(m, u, qq)
            e(mfma(ac, d, Bf(m, qq), 0 if first else ac))
            ent = B.get((g, qb))
            sawv = False
            if ent:
                f, lim = ent
                while not f.done() and getattr(f.items[f.i], "kind", "") in ("lds", "vmem", "salu") and used[id(f)] + cost_of(f.items[f.i]) <= lim + 0.5:
                    it = f.items[f.i]; f.i += 1; used[id(f)] += cost_of(it); e(it)
            for it in G[g][qb]: e(it)
            if ent:
                f, lim = ent
                lastgap = (g == f.end - 1 and qb == 3)
                while not f.done():
                    it = f.items[f.i]; c = cost_of(it)
                    if not lastgap:
                        if used[id(f)] + c > lim + 0.5: break
                        if sawv and getattr(it, "kind", "") in ("lds", "vmem"): break
                    f.i += 1; used[id(f)] += c; e(it)
                    if getattr(it, "kind", "") in ("valu", "trans"): sawv = True
    assert all(f.done() for f in fills)
class LateW2:
    def __init__(self, r, fl, d, k): self.r, self.fl, self.d, self.k = r, fl, d, k
    def __call__(self): return Wait(lg=[self.r[f] for f in self.fl], vm=(self.d[self.k] if self.k is not None else None))
class LateW:
    def __init__(self, d, k): self.d, self.k = d, k
    def __call__(self): return Wait(vm=self.d[self.k])

def s1_acc(m, u, qb):
    h = m & 1
    idx = ((h * 4 + u) * 4 + qb) * 4
    if m < 32: return A(idx, 4), m < 2
    return v_acc[(idx, 4)], m < 34
def s1_B(m, qb): return a_B[(((m >> 1) & 1) * 16 + qb * 4, 4)]
extra = {}
btok = {}
W3Z = int(os.environ.get("W3Z", "1"))
v_lz = [V(50), V(51)]
def bread(s, qb): return dsread("ds_read_b128", a_B[((s & 1) * 16 + qb * 4, 4)], v_lz[qb >> 1] if (W3Z and (s >= 16 if ORD else s < 16)) else v_lin, (qb * 16 + (s % 16)) * 1024)
if W3Z:
    s_hz = [S(84 - 16 + 0), S(69)]
    for h in range(2):
        e(salu("s_and_b32", s_t0, s_g, 1)); e(salu("s_lshl_b32", s_t0, s_t0, 2)); e(salu("s_add_u32", s_t0, s_t0, s_w))
        e(scmp("s_cmp_eq_u32", s_t0, 7 if h == 0 else 3)); e(salu("s_cselect_b32", s_hz[h], "0x40000", 0, scc_w=False, scc_r=True))
        e(valu("v_add_u32", v_lz[h], s_hz[h], v_lin))
extra[-1] = [(0, bread(0, qb), 1) for qb in range(4)]
for s in range(1, 32):
    for qb in range(4):
        extra.setdefault(8 * (s - 1) + 1 + qb, []).append((2, bread(s, qb), 1))
gi = 0; gj = 0; pend_s = []
for it in ln_v[lv[0]:]:
    if isinstance(it, list) and all(x.kind == "salu" for x in it): pend_s = it; continue
    if not isinstance(it, list) and it.kind == "dma":
        assert gi < 12
        extra.setdefault(gi // 3, []).append((gi % 3, [pend_s, it] if pend_s else it, 1)); pend_s = []
        gi += 1
    else:
        extra.setdefault(8 + 2 * gj, []).append((1, it, 1)); gj += 1
if WQC == 2: extra.setdefault(int(os.environ.get("WQG", "70")), []).append((1, wqs, 1))
C0 = -2.0 * math.sqrt(2.0 / math.pi) * math.log2(math.e); C1 = C0 * 0.044715
vc0, vc1 = V(40), V(41)
gel = [valu("v_mov_b32", vc0, hx(f2u(C0))), valu("v_mov_b32", vc1, hx(f2u(C1)))]
hst = []
tb = 0
for i in range(2):
    for qb in range(4):
        pk = V(96 + 4 * tb, 4); tb += 1
        for b in range(2):
            u = 2 * i + b
            T = [V(64 + 16 * b + k) for k in range(16)]
            G_, U_, X_ = T[0:4], T[4:8], T[8:12]
            ga = lambda r: A((u * 4 + qb) * 4 + r); ua = lambda r: A(((4 + u) * 4 + qb) * 4 + r)
            for r in range(4): gel.append(valu("v_accvgpr_read_b32", G_[r], ga(r)))
            for r in range(4): gel.append(valu("v_accvgpr_read_b32", U_[r], ua(r)))
            for r in range(4): gel.append(valu("v_mul_f32", X_[r], G_[r], G_[r]))
            for r in range(4): gel.append(valu("v_fma_f32", X_[r], X_[r], vc1, vc0))
            for r in range(4): gel.append(valu("v_mul_f32", X_[r], X_[r], G_[r]))
            for r in range(4): gel.append(valu("v_exp_f32", X_[r], X_[r]))
            for r in range(4): gel.append(valu("v_mul_f32", G_[r], G_[r], U_[r]))
            for r in range(4): gel.append(valu("v_add_f32", X_[r], "1.0", X_[r]))
            for r in range(4): gel.append(valu("v_rcp_f32", X_[r], X_[r]))
            gel.append(nop(0))
            for r in range(4): gel.append(valu("v_mul_f32", G_[r], G_[r], X_[r]))
            for k in range(2): gel.append(valu("v_cvt_pk_bf16_f32", pk[2 * b + k], G_[2 * k], G_[2 * k + 1]))
        st = bstore(pk, v_lz[qb >> 1] if W3Z else v_lin, S_H, s_h1 if i else s_h0, off=qb * 1024, mod="sc1")
        hst.append(st)
class Stamp:
    def __call__(self): stamp(); return []
if STAMP: extra.setdefault(128, []).append((0, Stamp(), 0))
if STAMP == 6:
    for g_ in (0, 8, 16, 24, 32, 48, 64, 96): extra.setdefault(g_, []).append((0, Stamp(), 0))
class Diag3:
    def __call__(self): diag(3); return []
if DIAG == 3:
    for g_ in (32, 128, 192): extra.setdefault(g_, []).append((0, Diag3(), 0))
class Grp:
    kind = "salu"
    def __init__(self, l): self.l = l
    def __call__(self):
        for x in self.l:
            if x.kind == "label": em.out.append(x)
            else: e(x)
        return []
def group_scc(items):
    out = []
    for it in items:
        if out and ("scc" in it.rd or it.kind == "label"):
            p = out.pop(); out.append(Grp((p.l if isinstance(p, Grp) else [p]) + [it]))
        else: out.append(it)
    return out
s_pf = [S(24, 2), S(26, 2), S(28, 2), S(30, 2)]
s_pfH = s_pair2
s_fo = S(3)
QS = math.log2(math.e) / math.sqrt(128.0)
vqs = V(42, 2); vqw = V(44)
save = em.out; em.out = []; spend = em.pend; em.pend = {}
NWO = 4 if MAP2 else 2
for it in range(3):
    e(salu("s_add_u32", s_t0, s_w, 4 * it))
    e(salu("s_sub_u32", s_t1, s_t0, NWO)); e(salu("s_min_u32", s_t1, s_t1, 6)); e(salu("s_lshl_b32", s_t1, s_t1, 13))
    e(salu("s_lshr_b32", s_t2, S(2), 3)); e(salu("s_mul_i32", s_t2, s_t2, 57344, scc_w=False)); e(salu("s_add_u32", s_t1, s_t1, s_t2))
    e(salu("s_add_u32", s_pf[it][0], S_WD[0], s_t1)); e(salu("s_addc_u32", s_pf[it][1], S_WD[1], 0, scc_r=True))
    if it == 0:
        e(sx(s_t1)); e(salu("s_lshl_b32", s_t1, s_t1, 15 if MAP2 else 14)); e(salu("s_lshl_b32", s_t2, s_w, 13)); e(salu("s_add_u32", s_t1, s_t1, s_t2))
        e(salu("s_add_u32", s_pf[1][0], S_WO[0], s_t1)); e(salu("s_addc_u32", s_pf[1][1], S_WO[1], 0, scc_r=True))
        e(scmp("s_cmp_lt_u32", s_w, NWO)); e(salu("s_cselect_b64", s_pf[0], s_pf[1], s_pf[0], scc_w=False, scc_r=True))
e(raw("s_getpc_b64 %s" % s_pf[3], "salu", wr=[s_pf[3]]))
em.label("L_pc1")
e(salu("s_lshl_b32", s_t0, s_w, 13)); e(salu("s_add_u32", s_t0, s_t0, "L_tail-L_pc1")); e(salu("s_min_u32", s_t0, s_t0, "L_code_end-L_pc1-8192"))
e(salu("s_add_u32", s_t1, s_t0, (1 if MAP2 else 3) * 8192)); e(salu("s_min_u32", s_t1, s_t1, "L_code_end-L_pc1-8192"))
e(salu("s_add_u32", s_pfH[0], s_pf[3][0], s_t1)); e(salu("s_addc_u32", s_pfH[1], s_pf[3][1], 0, scc_r=True))
e(scmp("s_cmp_lt_u32", s_w, 3 if MAP2 else 1)); e(salu("s_cselect_b64", s_pf[2], s_pf[2], s_pfH, scc_w=False, scc_r=True))
e(salu("s_add_u32", s_pf[3][0], s_pf[3][0], s_t0)); e(salu("s_addc_u32", s_pf[3][1], s_pf[3][1], 0, scc_r=True))
e(salu("s_lshl_b32", s_t0, s_cg, 2)); e(salu("s_add_u32", s_t0, s_t0, s_w)); e(salu("s_mul_i32", s_t0, s_t0, 7168, scc_w=False)); e(salu("s_min_u32", s_t0, s_t0, 229376 - 8192))
e(salu("s_add_u32", s_pfH[0], S_HC[0], s_t0)); e(salu("s_addc_u32", s_pfH[1], S_HC[1], 0, scc_r=True))
e(salu("s_lshl_b32", s_fo, s_cq, 3))
vx, vy, vz = V(45), V(46), V(47)
e(salu("s_lshl_b32", s_t1, s_w, 8))
pf_part = len(em.out)
dma_voffs(v_wo, 1024, s_t1, True)
e(salu("s_mul_i32", s_wdd, s_w, 448 * 1024 - 256, scc_w=False)); e(salu("s_lshl_b32", s_t3, s_cg, 7)); e(salu("s_add_u32", s_wdd, s_wdd, s_t3))
e(valu("v_mov_b32", vqs[0], hx(f2u(QS))))
e(valu("v_and_b32", vx, 15, v_lane)); e(valu("v_bfe_u32", vqw, v_lane, 5, 1)); e(valu("v_lshl_add_u32", vx, vqw, 4, vx)); e(valu("v_lshlrev_b32", vx, 4, vx))
e(valu("v_bfe_u32", vqw, v_lane, 4, 1)); e(valu("v_lshl_add_u32", vqw, vqw, 3, vx))
e(salu("s_lshl_b32", s_t1, s_w, 14)); e(valu("v_add_u32", vqw, s_t1, vqw))
for i in range(16): e(valu("v_accvgpr_write_b32", a_L[i], 0))
midset = group_scc(em.out[pf_part - 1:]) if ORD else group_scc(em.out)
pfset = group_scc(em.out[:pf_part - 1]); em.out = save; em.pend = spend
qconv = []
if ORD:
    QS_ = V(42)
    for ds in range(4):
        for q2 in range(2):
            T = [[V(64 + 16 * (q2 & 1) + 8 * j + k) for k in range(8)] for j in range(2)]
            qs = [2 * q2, 2 * q2 + 1]
            for k in range(8):
                for j in range(2): qconv.append(valu("v_accvgpr_read_b32", T[j][k], A(((2 * ds + (k >> 2)) * 4 + qs[j]) * 4 + (k & 3))))
            for k in range(8):
                for j in range(2): qconv.append(valu("v_mul_f32", T[j][k], QS_, T[j][k]))
            for k in range(4):
                for j in range(2): qconv.append(valu("v_cvt_pk_bf16_f32", T[j][k], T[j][2 * k], T[j][2 * k + 1]))
            for sw in ("v_permlane32_swap_b32", "v_permlane16_swap_b32"):
                for k in range(2):
                    for j in range(2): qconv.append(valu(sw, T[j][k], T[j][k + 2]))
            for k in range(4):
                for j in range(2): qconv.append(valu("v_accvgpr_write_b32", A((8 * ds + qs[j]) * 4 + k), T[j][k]))
HST = int(os.environ.get("HST", "0"))
if HST == 0: GEL_END = 254
for k in range(8):
    if HST: extra.setdefault(248 + k, []).append((0, hst[k], 1))
run_stream(64, s1_dma, dtok, s1_acc, s1_B, extra, [Fill(midset, 109, 130), Fill(qconv, 131, 236), Fill(pfset, 237, 255)] if ORD else [Fill(midset, 109, 130), Fill(gel, 131, GEL_END)], early_dma=int(os.environ.get('ED1', '0')), w2=lambda g: int(os.environ.get('W2A', '1')) and g >= 130 and not ORD)
if DUMP == "qacc": dump_regs([v_acc[i] for i in range(128)])
stamp(); diag(3)

if not ORD:
    em.wait(lg0=True)
    e(raw("s_barrier"))
def signal(off_s_expr_add, lab, v_t):
    e(scmp("s_cmp_lg_u32", s_w, 0)); e(raw("s_cbranch_scc1 %s" % lab, rd=["scc"]))
    e(salu("s_lshl_b32", s_t0, s_qb, 2))
    if off_s_expr_add: e(salu("s_add_u32", s_t0, s_t0, off_s_expr_add))
    e(valu("v_mov_b32", v_t, 1))
    e(raw("s_mov_b64 exec, 1", "salu", wr=["exec"]))
    e(raw("buffer_atomic_add %s, off, %s, %s sc1" % (v_t, S_DBG, s_t0)))
    e(raw("s_mov_b64 exec, -1", "salu", wr=["exec"]))
    em.label(lab)
if ORD:
    cc = V(40, 2); one = V(44, 2)
    e(valu("v_mov_b32", cc[0], hx(f2u(C0)))); e(valu("v_mov_b32", cc[1], hx(f2u(C1)))); e(valu("v_mov_b32", one[0], "1.0")); e(nop(4))
    for i in range(2):
        for qb in range(4):
            pk = V(96 + 4 * (i * 4 + qb), 4)
            P_ = [(v_acc[(((2 * i + b) * 4 + qb) * 4 + 2 * k, 2)], v_acc[(((4 + 2 * i + b) * 4 + qb) * 4 + 2 * k, 2)], V(64 + 2 * (2 * b + k), 2)) for b in range(2) for k in range(2)]
            for g_, u_, x_ in P_: e(valu("v_pk_mul_f32", x_, g_, g_))
            for g_, u_, x_ in P_: e(valu("v_pk_fma_f32", x_, x_, cc, cc, mod="op_sel:[0,1,0] op_sel_hi:[1,1,0]"))
            for g_, u_, x_ in P_: e(valu("v_pk_mul_f32", x_, x_, g_))
            for g_, u_, x_ in P_: e(valu("v_exp_f32", x_[0], x_[0])); e(valu("v_exp_f32", x_[1], x_[1]))
            for g_, u_, x_ in P_: e(valu("v_pk_mul_f32", g_, g_, u_))
            for g_, u_, x_ in P_: e(valu("v_pk_add_f32", x_, x_, one, mod="op_sel_hi:[1,0]"))
            for g_, u_, x_ in P_: e(valu("v_rcp_f32", x_[0], x_[0])); e(valu("v_rcp_f32", x_[1], x_[1]))
            for g_, u_, x_ in P_: e(valu("v_mov_b64", u_, 0))
            for g_, u_, x_ in P_: e(valu("v_pk_mul_f32", g_, g_, x_))
            for k, (g_, u_, x_) in enumerate(P_): e(valu("v_cvt_pk_bf16_f32", pk[k], g_[0], g_[1]))
for blk in range(8 if not ORD else 0):
    for qb in range(4):
        a_ = v_acc[((blk * 4 + qb) * 4, 4)]
        t = a_[(0, 2)]
        for k in range(2): e(valu("v_pk_mul_f32", a_[(2 * k, 2)], a_[(2 * k, 2)], vqs, mod="op_sel_hi:[1,0]"))
        for k in range(2): e(valu("v_cvt_pk_bf16_f32", t[k], a_[2 * k], a_[2 * k + 1]))
        e(dswrite("ds_write_b64", vqw, t, (qb * 4 + (blk >> 1)) * 1024 + (blk & 1) * 512))
for j in range(4): e(valu("v_add_u32", v_wd[j], s_wdd, v_wo[j]))
if not ORD: em.wait(lg0=True)
for f in range(16 if not ORD else 0): e(dsread("ds_read_b128", a_Q[(4 * f, 4)], v_wl, f * 1024))
e(scmp("s_cmp_eq_u32", s_retry, 1)); e(raw("s_cbranch_scc1 L_maxpass", rd=["scc"]))
em.label("L_att_start")
NZ0 = 32
for i in range(NZ0 if not ORD else 1): e(valu("v_mov_b64", v_acc[(2 * i, 2)], 0))
assert LSUM == 1 and LNM and not POI
e(valu("v_lshlrev_b32", V(3), 7, v_lane))
e(valu("v_and_b32", V(38), 7, v_lane)); e(valu("v_mov_b32", V(0), 0))
em.wait(vm=dtok[66], lg0=True)
e(raw("s_barrier"))
if DUMP == "q": dump_regs([a_Q[i] for i in range(64)])
stamp()

def Qf(qb, ds): return A((8 * ds + qb) * 4, 4) if ORD else a_Q[((qb * 4 + ds) * 4, 4)]
def Of(db, qb): return v_acc[((db * 4 + qb) * 4, 4)]
def fr(f): return a_ring[((f % 8) * 4, 4)]
def kslot(par): return 16384 if par == 0 else 0
def vslot(par): return 0 if par == 0 else 16384
def frag_reads(par, f):
    if f >= 32: par ^= 1; f -= 32
    d = fr(f)
    if f < 8 or 16 <= f < 24:
        kb = (f >> 2) if f < 8 else 2 + ((f - 16) >> 2)
        return [dsread("ds_read_b128", d, v_ka[f & 3], kslot(par) + kb * 4096)]
    ks2 = 0 if f < 16 else 1
    db = f & 7
    return [dsread("ds_read_b64_tr_b16", d[(2 * h, 2)], v_va[db], vslot(par) + ks2 * 8192 + h * 4096) for h in range(2)]
def read_sched(g):
    r = []
    if g + 3 < 24 or g >= 29: r.append(g + 3)
    if 19 <= g <= 26: r.append(g + 5)
    return r
def sm_val(g, k):
    if 7 <= g <= 22: b = 1; n = 2 * (g - 7) + k
    else: b = 0; n = 2 * ((g - 23) % 32) + k
    kb, qb, r = n >> 4, (n >> 2) & 3, n & 3
    return b, qb, kb, r
def sm_items(g):
    ex, ad = [], []
    for k in range(2):
        b, qb, kb, r = sm_val(g, k)
        x = v_S[b][qb * 8 + kb * 4 + r]
        l = (v_l1 if b else v_l0)[qb]
        ex.append(valu("v_exp_f32", x, x)); ad.append(valu("v_add_f32", l, l, x))
    b, qb, kb, r = sm_val((g - 1) % 32, 0)
    cv = valu("v_cvt_pk_bf16_f32", v_S[b][qb * 8 + kb * 2 + (r >> 1)], v_S[b][qb * 8 + kb * 4 + r], v_S[b][qb * 8 + kb * 4 + r + 1])
    return ex, ad, cv
def att_dma(par, g):
    if g >= 29: k = g - 29; sp = par
    elif g <= 4: k = g + 3; sp = par ^ 1
    else: return [], None
    sal = []
    if k == 0: sal = [salu("s_add_u32", "m0", s_m0b, 4 * 16384 + kslot(sp))]
    if k == 4: sal = [salu("s_add_u32", "m0", s_m0b, vslot(sp))]
    if k < 4: return sal, dma(v_kd[k], S_K, s_kK, k * 1024)
    return sal, dma(v_vd[k & 1], S_V, s_kV, (k - 4) * 1024)
SIDE_FIRST = 11
class Lbl:
    def __init__(self, n): self.n = n
    def __call__(self): em.label(self.n); return []
class LoopStamp:
    def __init__(self, k, par): self.k, self.par = k, par
    def __call__(self):
        k = self.k
        e(raw("s_memtime %s" % S(68 + 2 * k, 2), "other", wr=[S(68 + 2 * k, 2)]))
        if k == 2:
            e(raw("s_waitcnt lgkmcnt(0)", "wait")); em._retire(em.lgq, 0)
            for i in range(3): e(valu("v_writelane_b32", v_c, S(68 + 2 * i), i, rmw=True))
            e(salu("s_lshl_b32", S(74), S(2), 2)); e(salu("s_add_u32", S(74), S(74), s_w)); e(salu("s_lshl_b32", S(74), S(74), 4))
            e(salu("s_sub_u32", S(74), S(74), s_cnt)); e(salu("s_add_u32", S(74), S(74), 16)); e(salu("s_lshl_b32", S(74), S(74), 5))
            e(salu("s_add_u32", S(74), S(74), (1 << 20) + 16 * self.par))
            e(raw("s_mov_b64 exec, 7", "salu", wr=["exec"]))
            e(valu("v_lshlrev_b32", v_t, 2, v_lane))
            e(bstore(v_c, v_t, S_DMP, S(74), off=0))
            e(raw("s_mov_b64 exec, -1", "salu", wr=["exec"]))
            e(valu("v_lshlrev_b32", v_t, 7, v_lane))
        return []
v_tch, v_flag, v_fa = V(3), V(0), V(38)
xtok = []; lastdma = [None]
NITER = 14
s_po0, s_po1, s_poe = s_h0, s_h1, s_off
s_pfc = S(16, 2); s_kvt = S(18, 2); KVIT = int(os.environ.get('KVIT', '12'))
ROT = int(os.environ.get('ROT', '8'))
LQ = int(os.environ.get("LQ", "2"))
def plan_adds():
    nmem = {}
    for g in range(32):
        n = sum(1 if (f % 32 < 8 or 16 <= f % 32 < 24) else 2 for f in read_sched(g)) + (1 if (g >= 29 or g <= 4) else 0) + (1 if g in (13, 14) else 0)
        nmem[g] = n
    free = {}
    for g in range(32):
        n = nmem[g]; a1 = 2 if n > 2 else min(n, 1); a3 = n - a1
        if a1 < 2: a1 += 1
        else: a3 += 1
        if g == 0: a1 += 1
        free[(g, 1)] = max(0, 2 - a1); free[(g, 3)] = max(0, 2 - a3)
        free[(g, 4)] = 2 if ((g & 8) and (g & 1) and ((g & 7) >> 1) < LQ) else 0
    jobs = []
    for g in range(7, 39):
        for k in range(2):
            b, qb, kb, r = sm_val(g % 32, k)
            if qb < LQ: continue
            early = 4 * g + (1 if k == 0 else 3)
            idx = kb * 4 + r
            if idx < 4:
                gsrc = g + 1 if idx == 0 else (g + 2 if idx == 1 else (g + 8 if idx == 2 else g + 9))
                dead = 4 * gsrc
            else: dead = 4 * (g + 11)
            if b == 1: dead = min(dead, 4 * 30)
            jobs.append((dead, early, b, qb, idx))
    plan = {}
    for dead, early, b, qb, idx in sorted(jobs):
        for t in range(early, dead):
            g, q = t >> 2, t & 3
            for gp in ([1] if q == 1 else ([3, 4] if q == 3 else [])):
                if free[(g % 32, gp)] > 0:
                    free[(g % 32, gp)] -= 1; plan.setdefault((g % 32, gp), []).append((b, qb, idx, g)); break
            else: continue
            break
        else:
            g = early >> 2; plan.setdefault((g % 32, early & 3), []).append((b, qb, idx, g)); print("; add overflow", g, file=sys.stderr)
    return plan
ADDS = plan_adds() if LSUM == 3 else {}
def add_items(g, gp, fin, pro):
    out = []
    for b, qb, idx, gabs in ADDS.get((g, gp), []):
        if fin and b == 0 and g >= 23: continue
        if pro and b == 1: continue
        out.append(valu("v_add_f32", v_l1[qb], v_l1[qb], v_S[b][qb * 8 + idx]))
    return out
ftok = {}
def att_group(par, g, do_mfma=True, do_mem=True, do_cvt=True, last=False, pp=None, xmem=(), xsal=(), xvalu=None):
    ex, ad, cv = sm_items(g)
    mem = []
    sal = []
    fin = (pp == 3)
    d = None
    if do_mem:
        if fin: sched = ([g + 3] if g + 3 < 16 else []) + ([g + 11] if 13 <= g <= 20 else [])
        else: sched = read_sched(g)
        for f in sched:
            r = frag_reads(par, f); mem += r; ftok[f % 32] = r
        if pp is None or (g <= 4 and pp <= 2) or (g >= 29 and pp <= 1):
            sal, d = att_dma(par, g)
            if d is not None: mem.append(d)
    loop = do_mem and pp is None
    post0 = []
    if loop and par == 0:
        if g == 14: mem.append(I("global_load_dword %s, %s, %s" % (v_c, v_tch, s_pfc), "vmem", rd=v_tch.regs() + s_pfc.regs(), wr=[]))
        if g == 13: mem.append(I("buffer_load_ubyte %s, %s, %s, %s offen sc1" % (v_flag, v_fa, S_DBG, s_t2), "vmem", rd=S_DBG.regs() + s_t2.regs() + v_fa.regs(), wr=[]))
        if g == 8: sal = sal + [scmp("s_cmp_le_u32", s_cnt, ROT)]
        if g in (9, 10, 11, 12):
            q_ = [s_pfc] + s_pf
            sal = sal + [salu("s_cselect_b64", q_[g - 9], q_[g - 8], q_[g - 9], scc_w=False, scc_r=True)]
        if g == 0: post0 = [valu("v_cmp_eq_u32", "vcc", 1, v_flag)]
        if g == 2: sal = sal + [raw("s_cmp_eq_u32 vcc_lo, -1", "salu", rd=["vcc"], wr=["scc"])]
        if g == 3: sal = sal + [salu("s_cselect_b32", s_t0, s_cnt, -1, scc_w=False, scc_r=True)]
        if g == 4: sal = sal + [scmp("s_cmp_eq_u32", s_t0, ROT - 1)]
        if g == 5: sal = sal + [salu("s_cselect_b64", s_pf[3], s_pfH, s_pf[3], scc_w=False, scc_r=True)]
        if g == 15: sal = sal + [salu("s_cselect_b64", s_pf[3], S_K[(0, 2)], s_pf[3], scc_w=False, scc_r=True)]
        if g == 20: sal = sal + [scmp("s_cmp_eq_u32", s_cnt, KVIT + 1)]
        if g == 21: sal = sal + [salu("s_cselect_b64", s_pfc, s_kvt, S_K[(0, 2)], scc_w=False, scc_r=True)]
        if g == 13: sal = sal + [salu("s_cselect_b32", s_t2, s_fo, 256, scc_w=False, scc_r=True)]
        if g == 18: sal = sal + [scmp("s_cmp_eq_u32", s_cnt, s_sig)]
        if g == 19: sal = sal + [raw("s_cbranch_scc1 L_sigH_side", rd=["scc"]), Lbl("L_sigH_ret")]
    if loop and POI and par == 0 and do_mfma:
        if g == 22: sal = sal + [salu("s_add_u32", s_po1, s_po0, 65536)]
        if g == 16: mem.append(bstore(a_poi, v_lin, S_SP, s_po0, mod="sc1"))
        if g == 27: mem.append(bstore(a_poi, v_lin, S_SP, s_po1, mod="sc1"))
        if g == 23: sal = sal + [salu("s_add_u32", s_po0, s_po0, 1024)]
        if g == 24: sal = sal + [salu("s_min_u32", s_po0, s_po0, s_poe)]
    if do_mem and g == 4 and d is not None: lastdma[0] = d
    mem += list(xmem); sal = sal + list(xsal)
    gaps = [[], [], [], []]
    if g == 29 and do_mem and not fin:
        if STAMP == 2 and loop and do_mfma: gaps[0] += [LoopStamp(0, par)]
        gaps[0] += [Wait(lg0=True) if not do_mfma else (Wait(lg0=True, vm0=True) if (pp is None and par == 1) else Wait(lg0=True, vm=lastdma[0]))]
        if STAMP == 2 and loop and do_mfma: gaps[0] += [LoopStamp(1, par)]
        gaps[0] += [raw("s_barrier")]
        if STAMP == 2 and loop and do_mfma: gaps[0] += [LoopStamp(2, par)]
    gaps[0] += sal
    if g == 6 and do_mem and (pp is None or pp <= 1): gaps[0].append(salu("s_add_u32", s_kK, s_kK, 16384))
    if g == 7 and do_mem and (pp is None or pp <= 1): gaps[0].append(salu("s_add_u32", s_kV, s_kV, 16384))
    sm = not (fin and g >= 23)
    if fin and g > 23: do_cvt = False
    if fin and 16 <= g < 24: do_mfma = False
    if LSUM:
        if sm: gaps[0].append(ex[0])
        gaps[1] += mem[0:2] if len(mem) > 2 else mem[0:1]
        gaps[1] += post0
        nf = (g + 1) % 32
        if do_mem and not (fin and (16 <= nf < 24 or nf == 0)): gaps[2].append(Wait(lg=ftok.get(nf)))
        if last and g == 30: gaps[2].append(salu("s_sub_u32", s_cnt, s_cnt, 1))
        if sm: gaps[2].append(ex[1])
        gaps[3] += mem[2:] if len(mem) > 2 else mem[1:]
        pro = not do_mfma and not fin
        gaps[1] += add_items(g, 1, fin, pro)
        if do_cvt: gaps[1 if len([x for x in gaps[1] if x not in ()]) - len(add_items(g, 1, fin, pro)) < 2 else 3].append(cv)
        gaps[3] += add_items(g, 3, fin, pro)
    else:
      gaps[0] += mem[2:3]
      if sm: gaps[0].append(ex[0])
      if len(mem) > 0: gaps[1].append(mem[0])
      if len(mem) == 0 and do_cvt: gaps[1].append(cv)
      if sm: gaps[1].append(ad[0])
      gaps[1] += post0
      nf = (g + 1) % 32
      if do_mem and not (fin and (16 <= nf < 24 or nf == 0)): gaps[2].append(Wait(lg=ftok.get(nf)))
      if last and g == 30: gaps[2].append(salu("s_sub_u32", s_cnt, s_cnt, 1))
      gaps[2] += mem[3:]
      if sm: gaps[2].append(ex[1])
      if len(mem) > 1: gaps[3].append(mem[1])
      if len(mem) > 0 and do_cvt: gaps[3].append(cv)
      if sm: gaps[3].append(ad[1])
    for qb in range(4):
        if do_mfma:
            if g < 8 or 16 <= g < 24:
                b = 1 if g < 8 else 0
                kb, ds = (g >> 2) & 1, g & 3
                d = v_S[b][(qb * 8 + kb * 4, 4)]
                e(mfma(d, fr(g), Qf(qb, ds), v_negm[(qb * 4, 4)] if ds == 0 else d))
            else:
                b = 0 if g < 16 else 1
                qq = 3 - qb if (SNAKE and g & 1) else qb
                if PA: e(mfma(Of(g & 7, qq), v_S[b][(qq * 8, 4)], fr(g), Of(g & 7, qq)))
                else: e(mfma(Of(g & 7, qq), fr(g), v_S[b][(qq * 8, 4)], Of(g & 7, qq)))
        else:
            if (qb & 1) and not gaps[qb][:1] or ((qb & 1) and getattr(gaps[qb][0], "kind", "") in ("valu",)): e(nop(0))
        for it in gaps[qb]: e(it)
        if xvalu is not None:
            c = 2 - sum(1 for it in gaps[qb] if getattr(it, "kind", "") in ("lds", "vmem", "dma", "valu"))
            while xvalu and c > 0:
                it = xvalu.pop(0); e(it); c -= 2 if it.kind == "trans" else 1
    if LSUM and do_mfma and (g & 8):
        k = g & 7
        lq = None if (fin and g >= 24) else (k >> 1 if k & 1 else None)
        if lq is not None and (LSUM != 3 or lq < LQ): e(mfma(a_L[(4 * lq, 4)], a_ones, v_S[0 if g < 16 else 1][(lq * 8, 4)], a_L[(4 * lq, 4)]))
    if LSUM == 1 and fin and g == 23:
        e(nop(1))
        for lq in range(4): e(mfma(a_L[(4 * lq, 4)], a_ones, v_S[1][(lq * 8, 4)], a_L[(4 * lq, 4)]))
    if LSUM == 3: e(add_items(g, 4, fin, not do_mfma and not fin))

pr = [dsread("ds_read_b128", fr(f), v_ka[f & 3], (f >> 2) * 4096) for f in range(8)]
for r in pr: e(r)
zr = [valu("v_mov_b32", v_acc[i], 0) for i in (range(2, 64) if ORD else range(2 * NZ0, 128))]
for f in range(8):
    em.wait(lg=pr[f])
    for qb in range(4):
        d = v_S[0][(qb * 8 + (f >> 2) * 4, 4)]
        e(mfma(d, fr(f), Qf(qb, f & 3), 0 if (f & 3) == 0 else d))
        if qb == 0 and HST == 0: e(hst[f])
        if qb == 2 and f == 0:
            e(raw("s_mov_b64 exec, 3", "salu", wr=["exec"])); e(bstore(v_acc[0], V(3), S_FLZ, s_myfl, mod="sc1")); e(raw("s_mov_b64 exec, -1", "salu", wr=["exec"]))
        for _ in range(2):
            if zr: e(zr.pop(0))
assert not zr
e(salu("s_mov_b32", s_kK, 16384 + 8192, scc_w=False)); e(salu("s_mov_b32", s_kV, 16384, scc_w=False)); e(salu("s_mov_b32", s_cnt, NITER, scc_w=False))
e(scmp("s_cmp_lg_u32", s_retry, 0)); e(raw("s_cbranch_scc1 L_have_max2", rd=["scc"]))
e(nop(3))
mx = [V(97 + 4 * i) for i in range(4)]; mt = [V(98 + 4 * i) for i in range(4)]
for qb in range(4): e(valu("v_max3_f32", mx[qb], v_S[0][qb * 8], v_S[0][qb * 8 + 1], v_S[0][qb * 8 + 2]))
for qb in range(4): e(valu("v_max3_f32", mx[qb], mx[qb], v_S[0][qb * 8 + 3], v_S[0][qb * 8 + 4]))
for qb in range(4): e(valu("v_max3_f32", mx[qb], mx[qb], v_S[0][qb * 8 + 5], v_S[0][qb * 8 + 6]))
for qb in range(4): e(valu("v_max_f32", mx[qb], mx[qb], v_S[0][qb * 8 + 7]))
red4("v_max_f32", mx, mt)
for qb in range(4):
    for k in range(4): e(valu("v_sub_f32", v_negm[qb * 4 + k], 0, mx[qb]))
em.label("L_have_max2")
e(nop(3))
for qb in range(4):
    for k in range(8): e(valu("v_add_f32", v_S[0][qb * 8 + k], v_S[0][qb * 8 + k], v_negm[qb * 4]))
for g in range(23, 29): att_group(1, g, do_mfma=False, do_mem=False, do_cvt=(g != 23))
stamp(); diag()
e(salu("s_and_b32", s_t0, s_qb, 3)); e(salu("s_sub_u32", s_t0, NITER - 1, s_t0))
e(scmp("s_cmp_eq_u32", s_w, 0)); e(salu("s_cselect_b32", s_sig, s_t0, -1, scc_w=False, scc_r=True))
e(scmp("s_cmp_eq_u32", s_retry, 0)); e(salu("s_cselect_b32", s_sig, s_sig, -1, scc_w=False, scc_r=True))
e(salu("s_mov_b64", s_pfc, S_K[(0, 2)], scc_w=False))
if POI:
    e(salu("s_lshl_b32", s_po0, s_w, 4)); e(salu("s_add_u32", s_po0, s_po0, s_g)); e(salu("s_lshl_b32", s_po0, s_po0, 13))
    e(salu("s_add_u32", s_poe, s_po0, 7168))
e(scmp("s_cmp_lt_u32", s_w, 2)); e(salu("s_cselect_b64", s_kvt, S_K[(0, 2)], S_V[(0, 2)], scc_w=False, scc_r=True))
e(salu("s_and_b32", s_t0, s_w, 1)); e(sx(s_t1)); e(salu("s_lshl_b32", s_t1, s_t1, 1)); e(salu("s_add_u32", s_t0, s_t0, s_t1)); e(salu("s_lshl_b32", s_t0, s_t0, 13))
if MAP2: e(salu("s_add_u32", s_t0, s_t0, 262144))
e(salu("s_add_u32", s_kvt[0], s_kvt[0], s_t0)); e(salu("s_addc_u32", s_kvt[1], s_kvt[1], 0, scc_r=True))
for g in range(29, 32): att_group(1, g, do_mfma=False, do_mem=True)
pro_end = len(em.out)
em.directive(".p2align 6")
em.label("L_att_loop")
def body():
    for par in range(2):
        for g in range(32): att_group(par, g, last=(par == 1))
b0 = len(em.out)
body()
b1 = len(em.out)
e(scmp("s_cmp_lg_u32", s_cnt, 0)); e(raw("s_cbranch_scc1 L_att_loop", rd=["scc"]))
b2 = len(em.out)
body()
second = em.out[b2:]; del em.out[b2:]
assert [i.text for i in second] == [i.text for i in em.out[b0:b1]], "loop not in steady state"
loop_probs = check_hazards(em.out[b1 - 40:b2] + second[:60], "loop-wrap")

em.label("L_tail")
v_ring2 = V(64, 32); v_B2 = V(96, 32)
QH = int(os.environ.get('QH', '0'))
XY = int(os.environ.get('XY', '0'))
NF1 = int(os.environ.get('NF1', '8'))
def hreg(kk, qb):
    if QH and 8 <= kk < 12: return A(16 * (kk - 8) + qb * 4, 4)
    if QH and kk >= 12: kk -= 4
    if kk >= 8: kk -= 8
    if ORD and kk < 4: return A(((2 * kk + 1) * 4 + qb) * 4, 4)
    return A((64 + 16 * kk if kk < 4 else 160 + 16 * (kk - 4)) + qb * 4, 4)
def Facc(u, qb):
    t = u * 4 + qb
    return A(128 + 4 * t if t < 8 else 224 + 4 * (t - 8), 4)
POS2 = [5, 0, 2, 3, 4, 1]
NB = int(os.environ.get("NB", "4"))
def pos2(m): return 6 + m if m < NB else POS2[(m - NB) % 6]
def kind2(m):
    if m < NF1: return ("F", m)
    if m < NF1 + 32: return ("O", (m - NF1) & 15, (m - NF1) >> 4) if XY else ("O", (m - NF1) >> 1, (m - NF1) & 1)
    return ("F", m - 32)
def s2_dma(m):
    if m >= 46: return None
    p = pos2(m); k = kind2(m)
    if k[0] == "O":
        return [m0set(p), salu("s_mov_b32", s_off, k[1] * 32 * 1024 + 128 * k[2], scc_w=False)], [dma(v_wo[j], S_WO, s_off, j * 1024) for j in range(4)]
    return [m0set(p), salu("s_mov_b32", s_off, k[1] * 32 * 1024, scc_w=False)], [dma(v_wd[j], S_WD, s_off, j * 1024) for j in range(4)]
dtok2 = {}; s2pre = {}
for m in range(6 + NB):
    s2pre[m] = s2_dma(m); dtok2[m] = s2pre[m][1][3]
class Seq:
    kind = "vmem"
    def __init__(self, l): self.l = l
    def __call__(self): return self.l
hld = {}; htok = {}
for kk in range(14):
    hld[kk] = [bload(hreg(kk, qb), v_lin, S_HC, s_hl, off=qb * 1024, mod="sc1") for qb in range(4)]
    htok[kk] = hld[kk][3]
e(salu("s_mov_b32", s_cnt, 0, scc_w=False))
em.label("L_pollH")
e(valu("v_cmp_ne_u32", "vcc", 1, v_flag)); e(salu("s_mul_i32", s_hb, s_w, 14 * 4096, scc_w=False)); e(nop(1))
e(raw("s_cbranch_vccz L_pollH_done", rd=["vcc"]))
e(salu("s_add_u32", s_cnt, s_cnt, 1)); e(scmp("s_cmp_ge_u32", s_cnt, 50000)); e(raw("s_cbranch_scc1 L_pollH_done", rd=["scc"]))
e(raw("s_sleep 4")); e(raw("buffer_load_ubyte %s, %s, %s, %s offen sc1" % (v_flag, v_fa, S_DBG, s_fo))); e(raw("s_waitcnt vmcnt(0)")); e(raw("s_branch L_pollH"))
em.label("L_pollH_done")
xaddr(V(39), V(0))
assert LSUM == 1
xsl = [bload(V(40 + 2 * u, 2), V(39), S_XC, 0, off=32 * u, n=2) for u in range(4)]
NH0 = 32
hsl = sorted([(pp, g) for pp in range(3) for g in (5, 13, 14, 15, 16, 17, 18, 27, 28, 9, 11)])[:NH0]
if QH:
    hsl += [(3, g) for g in list(range(8, 16)) + list(range(24, 32))]; NH0 = 48
px = {}
for k, key in enumerate(hsl):
    px.setdefault(key, ([], []))
    px[key][0].append(hld[k >> 2][k & 3])
    if k & 3 == 0: px[key][1].append(salu("s_add_u32", s_hl, s_hb, (k >> 2) * 4096))
for u in range(4): px.setdefault((int(os.environ.get('XSP', '3')), int(os.environ.get('XSG0', '13')) + u), ([], []))[0].append(xsl[u])
wsl = [(pp, g) for pp in range(2) for g in (6, 7, 8, 10, 12, 21, 22, 23)][:4 * NB] + [(2, 29), (2, 30), (2, 31), (3, 0), (3, 1), (3, 2), (3, 3), (3, 4)] + ([(2, g) for g in (6, 7, 8, 10, 12, 21, 22, 23)] if QH else [(3, g) for g in range(5, 13)]) + [(3, g) for g in range(24, 32)]
for k, key in enumerate(wsl):
    px.setdefault(key, ([], []))
    m, j = k >> 2, k & 3
    px[key][0].append(s2pre[m][1][j])
    if j == 0: px[key][1].extend(s2pre[m][0])
px[(3, 24)][1][:0] = [Wait(lg0=True), raw("s_barrier")]
lt = [V(48 + i) for i in range(4)]
NPK = int(os.environ.get("NPK", "0"))
rinv = [V(52 + i) for i in range(4)]
vxf = V(40, 8)
save = em.out; em.out = []
for qb in range(4): e(valu("v_accvgpr_read_b32", lt[qb], a_L[4 * qb]))
e(valu("v_add_f32", V(60), lt[0], lt[1])); e(valu("v_add_f32", V(61), lt[2], lt[3])); e(valu("v_add_f32", V(60), V(60), V(61)))
for qb in range(4): e(valu("v_rcp_f32", rinv[qb], lt[qb]))
e(valu("v_cmp_nge_f32", "vcc", hx(f2u(2.0 ** 30)), V(60)))
v_tr2 = V(56, 4); v_ow = V(62)
for u in range(4): e(valu("v_subrev_u32", v_tr2[u], RING, v_tr[0][u]))
if PA:
    def rT(qb, r): return V(100 + 8 * qb + r)
    v_l8 = V(63)
    vcap = em.lgq, em.pend; em.lgq, em.pend = [], {}
    e(valu("v_and_b32", V(61), 48, v_lane))
    for qb in range(4):
        for r in range(4): e(I("ds_bpermute_b32 %s, %s, %s offset:%d" % (rT(qb, r), V(61), rinv[qb], 4 * r), "lds", rd=["v61"] + rinv[qb].regs(), wr=rT(qb, r).regs()))
    em.lgq, em.pend = vcap
    e(valu("v_lshrrev_b32", v_l8, 4, v_lane)); e(valu("v_bfe_u32", V(60), v_lane, 2, 2)); e(valu("v_xor_b32", V(60), V(60), v_l8))
    e(valu("v_and_b32", v_ow, 15, v_lane)); e(valu("v_lshlrev_b32", v_ow, 5, v_ow)); e(valu("v_lshl_add_u32", v_ow, V(60), 3, v_ow))
    e(valu("v_subrev_u32", v_ow, RING, v_ow)); e(valu("v_add_u32", v_ow, s_m0b, v_ow))
    e(valu("v_xor_b32", v_l8, v_l8, v_lane)); e(valu("v_lshlrev_b32", v_l8, 3, v_l8))
else:
    e(valu("v_subrev_u32", v_ow, RING, v_lin)); e(valu("v_add_u32", v_ow, s_m0b, v_ow))
lred = em.out; em.out = save
for pp in range(4):
    for g in range(32):
        if STAMP == 4 and g in (0, 16): stamp()
        xm, xs = px.get((pp, g), ([], []))
        att_group(pp & 1, g, pp=pp, xmem=xm, xsal=xs, xvalu=(lred if (pp == 3 and g >= (26 if LSUM else 24)) else None))
for it in lred: e(it)
diag(); stamp()
if DUMP == "o":
    e(nop(7))
    for db in range(8):
        for qb in range(4):
            for k in range(4): e(valu("v_mul_f32", Of(db, qb)[k], Of(db, qb)[k], rinv[qb]))
    dump_regs([v_acc[i] for i in range(128)])

vm_ = V(60); vma = V(61)
class Mark:
    kind = "salu"
    def __init__(self, t): self.t = t
    def __call__(self):
        e(raw("s_cbranch_vccz L_nomark", rd=["vcc"])); e(valu("v_mov_b32", self.t, hx(MARK))); em.label("L_nomark"); return []
norm = [valu("v_and_b32", vma, 3, v_lane), valu("v_lshlrev_b32", vma, 12, vma)]
ow = []; ncv = []; ow2 = []
assert not (PA and (NB == 0 or NPK))
NPK_N = int(os.environ.get("NPK_N", "16")) if NPK else 0
for i in range(4):
    for qb in range(4):
        t = Of(2 * i, qb)
        for b in range(2):
            if i * 4 + qb < NPK_N:
                rp = V(52 + (qb & ~1), 2)
                for k in range(2): norm.append(valu("v_pk_mul_f32", Of(2 * i + b, qb)[(2 * k, 2)], Of(2 * i + b, qb)[(2 * k, 2)], rp, mod="op_sel:[0,%d] op_sel_hi:[1,%d]" % (qb & 1, qb & 1)))
            else:
                for k in range(4): norm.append(valu("v_mul_f32", Of(2 * i + b, qb)[k], Of(2 * i + b, qb)[k], rT(qb, k) if PA else rinv[qb]))
        for b in range(2):
            o = Of(2 * i + b, qb)
            for k in range(2): norm.append(valu("v_cvt_pk_bf16_f32", t[2 * b + k], o[2 * k], o[2 * k + 1]))
        ncv.append(norm[-1])
        if PA: ow2.append(dswrite("ds_write_b64", v_ow, t[(2, 2)], i * 16384 + qb * 1024 + 512))
        if i == 0 and qb == 0: norm.append(Mark(t[0]))
        ow.append(dswrite("ds_write_b64", v_ow, t[(0, 2)], i * 16384 + qb * 1024) if PA else dswrite("ds_write_b128", v_ow, t, i * 16384 + qb * 1024))
        if NB == 0: norm.append(ow[-1])
if NPK_N:
    cut = norm.index(ncv[NPK_N - 1]) + 1
    e(nop(4))
    for it in norm[:cut]: e(it)
    norm = norm[cut:]
class ChkNorm:
    def __init__(self, k): self.k = k
    def __call__(self):
        assert ncv[self.k].tok, "O write %d scheduled before its data" % self.k
        return [ow[self.k], ow2[self.k]] if PA else ow[self.k]
G0 = 4 * NF1
G1 = G0 + 128
mk = dsread("ds_read_b32", vm_, vma, 0)
class OBar:
    def __call__(self):
        assert all(w.tok for w in ow)
        em.wait(lg0=True); e(raw("s_barrier")); stamp(); e(mk); return []
class FbCheck:
    def __call__(self):
        em.wait(lg=mk)
        e(valu("v_cmp_eq_u32", "vcc", hx(MARK), vm_))
        e(scmp("s_cmp_lg_u32", s_retry, 0)); e(raw("s_cbranch_scc1 L_nofb", rd=["scc"]))
        e(nop(1))
        e(raw("s_cbranch_vccnz L_fallback", rd=["vcc"]))
        em.label("L_nofb")
        return []
def s2_acc(m, u, qb):
    k = kind2(m)
    if k[0] == "O": return v_acc[(((k[2] * 4 + u) * 4 + qb) * 4, 4)], k[1] == 0
    return Facc(u, qb), k[1] == 0
def s2_B(m, qb):
    k = kind2(m)
    if k[0] == "O": return v_B2[((k[1] & 1) * 16 + qb * 4, 4)]
    return hreg(k[1], qb)
def oread(s, qb):
    d = v_B2[((s & 1) * 16 + qb * 4, 4)]; of = (s & 3) * 16384 + (s >> 2) * 4096 + qb * 1024
    if PA: return [dsread("ds_read_b64_tr_b16", d[(2 * b, 2)], v_l8, of + 512 * b) for b in range(2)]
    return dsread("ds_read_b128", d, v_lin, of)
extra = {}
if NB:
    OW0 = int(os.environ.get("OW0", "11")); OWN = int(os.environ.get("OWN", "1"))
    for k in range(16):
        gg = OW0 + k // OWN
        assert (k >> 2) >= NB or gg > 4 * (k >> 2) + 3
        extra.setdefault(gg, []).append((2 + (k % OWN) % 2, ChkNorm(k), 1))
GB = G0 - int(os.environ.get("OBAR", "3"))
extra.setdefault(GB, []).append((0, OBar(), 0))
r0 = [oread(0, qb) for qb in range(4)]
for qb in range(4): extra.setdefault(GB + (qb >> 1), []).append((1 + (qb & 1) if qb < 2 else (qb & 1) * 2, r0[qb], 1))
extra.setdefault(G0 - 1, []).append((2, [Wait(lg=([x for y in r0 for x in y] if PA else r0)), FbCheck()], 0))
if XY:
    for mm in range(1, 32):
        rr = [oread(mm & 15, qb) for qb in range(4)]
        for qb in range(4): extra.setdefault(G0 + 4 * (mm - 1) + (qb >> 1), []).append((2 + (qb & 1), rr[qb], 1))
        extra.setdefault(G0 + 4 * mm - 1, []).append((2, Wait(lg=([x for y in rr for x in y] if PA else rr)), 0))
else:
    for s_ in range(1, 16):
        for qb in range(4): extra.setdefault(G0 + 8 * (s_ - 1) + 1 + qb, []).append((2, oread(s_, qb), 1))
class LateWait:
    def __init__(self, f): self.f = f
    def __call__(self): return Wait(vm=self.f())
vxa = V(48); vpoll = V(49); vfw = V(50)
vx, vy, vz = V(59), V(57), V(58)
save = em.out; em.out = []
xaddr(vxa, vx)
e(valu("v_and_b32", V(51), 7, v_lane)); e(valu("v_lshlrev_b32", V(51), 2, V(51)))
e(valu("v_add_u32", vfw, s_m0b, v_lin)); e(salu("s_lshl_b32", s_t0, s_w, 14)); e(salu("s_add_u32", s_t0, s_t0, RING)); e(valu("v_add_u32", V(55), s_t0, v_lin))
e(salu("s_lshl_b32", s_t3, s_w, 4)); e(salu("s_add_u32", s_t3, s_t3, s_g)); e(salu("s_lshl_b32", s_t3, s_t3, 13))
early = em.out; em.out = save
extra.setdefault(-1, []).append((0, LateWait(lambda: htok[0]), 0))
for kk in range(1, 14):
    g_ = 4 * kk if kk < NF1 else 4 * (kk + 32)
    extra.setdefault(g_ - 1, []).append((2, LateWait(lambda kk=kk: htok[kk]), 0))
HG0 = int(os.environ.get("HG0", "5")); HGS = int(os.environ.get("HGS", "1"))
for k in range(NH0, 56):
    prev = (k >> 2) - (12 if QH else 8)
    gfree = (4 * prev if prev < NF1 else 4 * (prev + 32)) + 5 + (k & 3)
    extra.setdefault(max(gfree, HG0 + HGS * (k - NH0)), []).append((2, Seq([salu("s_add_u32", s_hl, s_hb, (k >> 2) * 4096), hld[k >> 2][k & 3]]), 1))
def sreg(ip, qb, odd=0): return v_acc[(((2 * ip + odd) * 4 + qb) * 4, 4)]
SPV_ = int(os.environ.get('SPV', '1'))
sp = []; spst = []; stq = []
s_oob = S(19)
if os.environ.get("NOST") or os.environ.get("NOLD"): e(salu("s_mov_b32", s_oob, 524288, scc_w=False))
NSI = int(os.environ.get("NSI", "11"))
s_so = [s_t1, s_cnt, s_h0, s_h1]
for k in range(4): sp.append(salu("s_add_u32", s_so[k], s_t3, (k >> 1) * 65536 + (k & 1) * 4096))
for ip in range(4):
    for qb in range(4):
        t = sreg(ip, qb)
        for b in range(2):
            o = sreg(ip, qb, b)
            for k in range(2): sp.append(valu("v_cvt_pk_bf16_f32", t[2 * b + k], o[2 * k], o[2 * k + 1]))
        st = bstore(t, v_lin, S_SP, s_so[(ip >> 1) * 2 + (qb >> 1)], off=(qb & 1) * 2048 + (ip & 1) * 1024, mod="sc1")
        if os.environ.get("NOST") and not (ip == 3 and qb == 3): st = bstore(t, v_lin, S_SP, s_oob, off=0)
        spst.append((st, sp[-1]))
class St:
    def __init__(self, k): self.k = k
    def __call__(self):
        assert spst[self.k][1].tok
        return spst[self.k][0]
STG = int(os.environ.get("STG", "2"))
if XY:
    GY = G0 + 64
    XS0 = int(os.environ.get("XS0", "4")); XSG = int(os.environ.get("XSG", "5")); XFL = int(os.environ.get("XFL", "60"))
    for k in range(8): extra.setdefault(GY + XS0 + XSG * k, []).append((1, St(k), 1))
    class XFlag:
        def __call__(self): em.wait(vm=spst[7][0]); return flag_store(0)
    hx_ = sp.index(spst[7][1]) + 1
    if NF1 == 14:
        NSI = 8; spf = [Fill(sp[:hx_], GY + 2, GY + 14)]; ypost = sp[hx_:]
    else:
        extra.setdefault(GY + XFL, []).append((1, XFlag(), 1))
        NSI = int(os.environ.get("NSI", "16"))
        for k in range(8, NSI): extra.setdefault(G1 + 3 + STG * (k - 8), []).append((2, St(k), 1))
        spf = [Fill(sp[:hx_], GY + 2, GY + 14), Fill(sp[hx_:], G1 + 2, G1 + 10)]
else:
    if NF1 == 14:
        NSI = 0; spf = []; ypost = sp
    else:
        for k in range(NSI): extra.setdefault(G1 + 3 + STG * k, []).append((2, St(k), 1))
        spf = [Fill(sp, G1 + 2, G1 + int(os.environ.get("CVL", "16")))]
if POI:
    assert not XY and SPV_
    hint = [valu("v_mov_b32", V(57), 2), valu("v_lshlrev_b32", V(58), 7, v_lane), raw("s_mov_b64 exec, 3", "salu", wr=["exec"]),
            bstore(V(57), V(58), S_FL, s_myfl, mod="sc1"), raw("s_mov_b64 exec, -1", "salu", wr=["exec"])]
    extra.setdefault(G1 + int(os.environ.get("HINT", "4")), []).append((1, hint, 1))
FLG = int(os.environ.get("FLG", "0"))
if FLG:
    assert NSI == 16
    class YFlag:
        def __call__(self):
            em.wait(vm=spst[-1][0]); stamp()
            e(([] if XY else flag_store(0)) + flag_store(1))
            if MIDPOST == 5: static_loads()
            return []
    extra.setdefault(G1 + FLG, []).append((1, YFlag(), 1))
sti = [NSI]
def st_next(n=1):
    for _ in range(n):
        if sti[0] < 16: e(spst[sti[0]][0]); sti[0] += 1
def flag_store(h):
    return [valu("v_mov_b32", v_t, 1), raw("s_mov_b64 exec, 1", "salu", wr=["exec"]), bstore(v_t, None, S_FL, s_myfl, off=128 * h, mod="sc1"), raw("s_mov_b64 exec, -1", "salu", wr=["exec"])]
vpa = V(51)
s_done, s_new, s_sb = s_kK, s_kV, s_fo
SPV = int(os.environ.get("SPV", "1"))
def spl(gp, i): return sreg(gp >> 1, (gp & 1) * 2 + i, 0) if SPV else A((gp * 2 + i) * 4, 4)
def flag_load(): return bload(vpoll, vpa, S_FL, s_t2, n=1, mod="sc1")
lblc = [0]
def issue_new():
    k = lblc[0]; lblc[0] += 1
    e(valu("v_cmp_eq_u32", "vcc", 1, vpoll)); e(nop(1))
    e(raw("s_andn2_b32 %s, vcc_lo, %s" % (s_new, s_done), "salu", rd=["vcc", s_done], wr=[s_new, "scc"])); e(salu("s_and_b32", s_new, s_new, 255))
    e(raw("s_cbranch_scc0 L_in%d_end" % k, rd=["scc"]))
    e(salu("s_or_b32", s_done, s_done, s_new))
    for gp in range(8):
        e(scmp("s_bitcmp1_b32", s_new, gp)); e(raw("s_cbranch_scc0 L_in%d_%d" % (k, gp), rd=["scc"]))
        e(salu("s_add_u32", s_t0, s_sb, gp * 8192) if not os.environ.get("NOLD") else salu("s_mov_b32", s_t0, s_oob, scc_w=False))
        for i in range(2): e(raw(bload(spl(gp, i), v_lin, S_SPC, s_t0, off=i * 1024, mod="sc1").text))
        em.label("L_in%d_%d" % (k, gp))
    em.label("L_in%d_end" % k)
def static_loads():
    e(valu("v_cmp_eq_u32", "vcc", 1, vpoll)); e(nop(1))
    e(raw("s_and_b32 %s, vcc_lo, 255" % s_done, "salu", rd=["vcc"], wr=[s_done, "scc"]))
    for gp in range(8):
        e(salu("s_add_u32", s_t0, s_sb, gp * 8192)); e(scmp("s_bitcmp1_b32", s_done, gp)); e(salu("s_cselect_b32", s_t0, s_t0 if not os.environ.get("NOLD") else s_oob, 524288, scc_w=False, scc_r=True))
        for i in range(2): e(bload(spl(gp, i), v_lin, S_SPC, s_t0, off=i * 1024, mod="sc1"))
pinit = [salu("s_lshl_b32", s_t2, s_cq, 3), salu("s_add_u32", s_t2, s_t2, s_cg), salu("s_lshl_b32", s_t2, s_t2, 7), salu("s_mov_b32", s_done, 0, scc_w=False),
         salu("s_lshl_b32", s_sb, s_cg, 16), salu("s_lshl_b32", s_new, s_w, 11), salu("s_add_u32", s_sb, s_sb, s_new)]
extra.setdefault(G1 - 8, []).append((1, pinit, 0))
class MidPoll:
    def __init__(self, tok): self.tok = tok
    def __call__(self):
        em.wait(vm=self.tok); issue_new()
        e(salu("s_mov_b32", s_hb, s_done, scc_w=False))
        midmark.append(em.vm_total)
        return []
midmark = []
if int(os.environ.get("MID", "1")):
    pt = flag_load()
    MIDPOST = int(os.environ.get("MIDPOST", "2"))
    if MIDPOST == 4: extra.setdefault(184 - int(os.environ.get("MID4", "6")), []).append((2, pt, 1))
    else: extra.setdefault(G1 - int(os.environ.get("MID0", "-4")), []).append((2, pt, 1))
    if not MIDPOST: extra.setdefault(G1 + int(os.environ.get("MID1", "3")), []).append((0, MidPoll(pt), 0))
    elif MIDPOST != 4 and int(os.environ.get("MID0", "-4")) > 0 and NF1 < 14: extra.setdefault(G1 + 2, []).append((0, Wait(vm=pt), 0))
    if MIDPOST == 3:
        extra[G1 + 2].pop(); extra[G1 - int(os.environ.get("MID0", "-4"))].pop()
if STAMP and NF1 < 14: extra.setdefault(G1, []).append((0, Stamp(), 0))
if STAMP == 5:
    for g_ in (0, 8, 16, 24): extra.setdefault(g_, []).append((0, Stamp(), 0))
class Diag:
    def __call__(self): diag(); return []
if DIAG and NF1 < 14: extra.setdefault(G1, []).append((0, Diag(), 0))
vs = [Fill(norm, 0, GB - (3 if NB else 1)), Fill(early, G0 + 2, G0 + 40)] + spf
run_stream(46, s2_dma, dtok2, s2_acc, s2_B, extra, vs, posf=pos2, ring=v_ring2, first_dma=6 + NB, tr2=v_tr2, early_dma=int(os.environ.get('ED2', '0')), w2=lambda g: int(os.environ.get('W2B', '1')) and g < 28)
stamp(); diag()
if NF1 == 14:
    fw = [dswrite("ds_write_b128", vfw, Facc(u, qb), qb * 16384 + u * 1024) for qb in range(4) for u in range(4)]
    for k in range(4): e(fw.pop(0))
    e(nop(3))
    for it in ypost:
        e(it)
        if any(it is c for _, c in spst):
            st_next()
            if fw: e(fw.pop(0))
            if XY and sti[0] == int(os.environ.get("XFP", "12")): em.wait(vm=spst[7][0]); e(flag_store(0))
    for it in fw: e(it)
    stamp()
if MIDPOST == 4:
    em.wait(vm=pt); static_loads()
if MIDPOST == 3:
    st_next(16); fl3 = e(flag_load())
e(nop(5))
for qb in range(4 if NF1 < 14 else 0):
    for u in range(4):
        if len(em.lgq) >= 12: em.wait(lg=em.lgq[-12])
        e(dswrite("ds_write_b128", vfw, Facc(u, qb), qb * 16384 + u * 1024))
    if qb & 1: st_next(int(os.environ.get("STW", "1")))
if MIDPOST == 6:
    st_next(16); em.wait(vm=spst[-1][0]); stamp(); e(flag_store(0) + flag_store(1)); static_loads()
v_fr = V(96, 16); vE = V(64, 16); vs_ = V(80, 16)
for k in range(8): e(valu("v_mov_b64", vs_[(2 * k, 2)], 0))
if MIDPOST == 3:
    em.wait(vm=fl3); stamp()
    if not XY: e(flag_store(0))
    e(flag_store(1))
    static_loads()
em.wait(lg0=True)
e(raw("s_barrier"))
def frr(ws_, u): return sreg(ws_, u, 1)
for ws_ in range(4):
    for u in range(4):
        if len(em.lgq) >= 14: em.wait(lg=em.lgq[-14])
        e(dsread("ds_read_b128", frr(ws_, u), V(55), ws_ * 4096 + u * 1024))
st_next()
if MIDPOST:
    st_next(16)
    if MIDPOST == 1: static_loads()
em.wait(lg0=True)
for u in range(4):
    for k in range(2):
        e(valu("v_pk_add_f32", frr(0, u)[(2 * k, 2)], frr(0, u)[(2 * k, 2)], frr(1, u)[(2 * k, 2)]))
        e(valu("v_pk_add_f32", frr(2, u)[(2 * k, 2)], frr(2, u)[(2 * k, 2)], frr(3, u)[(2 * k, 2)]))
for u in range(4):
    for k in range(2): e(valu("v_pk_add_f32", v_fr[(4 * u + 2 * k, 2)], frr(0, u)[(2 * k, 2)], frr(2, u)[(2 * k, 2)]))
for k in range(16): e(valu("v_mul_f32", vE[k], hx(f2u(-math.log2(math.e))), v_fr[k]))
st_next()
for k in range(16): e(valu("v_exp_f32", vE[k], vE[k]))
for k in range(16): e(valu("v_add_f32", vE[k], "1.0", vE[k]))
st_next()
for k in range(16): e(valu("v_rcp_f32", vE[k], vE[k]))
for k in range(16): e(valu("v_mul_f32", v_fr[k], v_fr[k], vE[k]))
for k in range(8):
    e(valu("v_lshlrev_b32", vE[2 * k], 16, vxf[k])); e(valu("v_and_b32", vE[2 * k + 1], "0xffff0000", vxf[k]))
st_next()
stamp()
accn = [0]
def acc_pieces(mask, sprinkle=False):
    n = accn[0]; accn[0] += 1
    for gp in range(8):
        e(scmp("s_bitcmp1_b32", mask, gp)); e(raw("s_cbranch_scc0 L_acc%d_%d" % (n, gp), rd=["scc"]))
        if not SPV:
            for k2 in range(8): e(valu("v_accvgpr_read_b32", V(120 + k2), spl(gp, k2 >> 2)[k2 & 3]))
        for k in range(8):
            src = spl(gp, k >> 2)[k & 3] if SPV else V(120 + k)
            e(valu("v_lshlrev_b32", V(112 + 2 * (k & 3)), 16, src)); e(valu("v_and_b32", V(113 + 2 * (k & 3)), "0xffff0000", src))
            e(valu("v_pk_add_f32", vs_[(2 * k, 2)], vs_[(2 * k, 2)], V(112 + 2 * (k & 3), 2)))
        em.label("L_acc%d_%d" % (n, gp))
        if sprinkle and gp & 1: st_next()
if midmark:
    n_y = em.vm_total - midmark[0]
    e(raw("s_waitcnt vmcnt(%d)" % n_y, "wait")); em._retire(em.vmq, n_y)
    acc_pieces(s_hb, sprinkle=True)
st_next(16)
if POI:
    s_want = s_new
    e(salu("s_mov_b32", s_cnt, 0, scc_w=False)); e(salu("s_mov_b32", s_t1, hx(POISON), scc_w=False))
    if MIDPOST == 2: em.wait(vm=pt)
    stamp()
    em.label("L_fin_loop")
    e(valu("v_cmp_eq_u32", "vcc", 2, vpoll)); e(nop(1))
    e(raw("s_andn2_b32 %s, vcc_lo, %s" % (s_want, s_done), "salu", rd=["vcc", s_done], wr=[s_want, "scc"])); e(salu("s_and_b32", s_want, s_want, 255))
    for gp in range(8):
        e(scmp("s_bitcmp1_b32", s_want, gp)); e(raw("s_cbranch_scc0 L_pl_%d" % gp, rd=["scc"]))
        e(salu("s_add_u32", s_t0, s_sb, gp * 8192))
        for i in range(2): e(raw(bload(spl(gp, i), v_lin, S_SPC, s_t0, off=i * 1024, mod="sc1").text))
        em.label("L_pl_%d" % gp)
    e(raw(flag_load().text))
    e(raw("s_waitcnt vmcnt(0)", "wait")); em._retire(em.vmq, 0)
    for gp in range(8):
        e(scmp("s_bitcmp1_b32", s_want, gp)); e(raw("s_cbranch_scc0 L_pa_%d" % gp, rd=["scc"]))
        for k in range(8): e(valu("v_cmpx_ne_u32", "vcc", s_t1, spl(gp, k >> 2)[k & 3], extra_wr=["exec"]))
        e(nop(1))
        e(raw("s_cmp_eq_u64 exec, -1", "salu", rd=["exec"], wr=["scc"])); e(raw("s_mov_b64 exec, -1", "salu", wr=["exec"]))
        e(raw("s_cbranch_scc0 L_pa_%d" % gp, rd=["scc"]))
        e(salu("s_bitset1_b32", s_done, gp, scc_w=False))
        for k in range(8):
            src = spl(gp, k >> 2)[k & 3]
            e(valu("v_lshlrev_b32", V(112 + 2 * (k & 3)), 16, src)); e(valu("v_and_b32", V(113 + 2 * (k & 3)), "0xffff0000", src))
            e(valu("v_pk_add_f32", vs_[(2 * k, 2)], vs_[(2 * k, 2)], V(112 + 2 * (k & 3), 2)))
        em.label("L_pa_%d" % gp)
    e(salu("s_add_u32", s_cnt, s_cnt, 1)); e(scmp("s_cmp_ge_u32", s_cnt, 50000)); e(raw("s_cbranch_scc1 L_fin_done", rd=["scc"]))
    e(scmp("s_cmp_lg_u32", s_done, 255)); e(raw("s_cbranch_scc1 L_fin_loop", rd=["scc"]))
else:
    if MIDPOST != 2: e(flag_load())
    if MIDPOST not in (3, 6) and not FLG:
        em.wait(vm=spst[-1][0]); stamp()
        if not XY: e(flag_store(0))
        e(flag_store(1))
    if MIDPOST == 2:
        static_loads()
        if int(os.environ.get("FSL", "0")): e(raw("s_sleep %d" % int(os.environ.get("FSL"))))
        e(flag_load())
    s_prev = s_hl
    e(salu("s_mov_b32", s_prev, s_done if MIDPOST else 0, scc_w=False)); e(salu("s_mov_b32", s_cnt, 0, scc_w=False))
    em.label("L_fin_loop")
    em.wait(vm0=True)
    issue_new()
    e(raw(flag_load().text))
    acc_pieces(s_prev)
    e(salu("s_mov_b32", s_prev, s_new, scc_w=False))
    e(salu("s_add_u32", s_cnt, s_cnt, 1)); e(scmp("s_cmp_ge_u32", s_cnt, 50000)); e(raw("s_cbranch_scc1 L_fin_done", rd=["scc"]))
    e(scmp("s_cmp_lg_u32", s_prev, 0)); e(raw("s_cbranch_scc1 L_fin_loop", rd=["scc"]))
    if int(os.environ.get("PSL", "0")): e(raw("s_sleep %d" % int(os.environ.get("PSL"))))
    e(scmp("s_cmp_lg_u32", s_done, 255)); e(raw("s_cbranch_scc1 L_fin_loop", rd=["scc"]))
em.label("L_fin_done")
if DUMP == "fin": dump_regs([vs_[i] for i in range(16)] + [v_fr[i] for i in range(16)])
for k in range(8): e(valu("v_pk_fma_f32", vE[(2 * k, 2)], vs_[(2 * k, 2)], v_fr[(2 * k, 2)], vE[(2 * k, 2)]))
for k in range(8): e(valu("v_cvt_pk_bf16_f32", vxf[k], vE[2 * k], vE[2 * k + 1]))
for u in range(4): e(bstore(vxf[(2 * u, 2)], vxa, S_OUT, 0, off=32 * u, mod=os.environ.get("OUTM", "")))
stamp(); diag_out()
em.label("L_end")
e(raw("s_endpgm"))
main_end = len(em.out)

em.lgq, em.vmq, em.pend = [], [], {}
em.label("L_sigH_side")
e(salu("s_lshl_b32", s_t1, s_qb, 3)); e(salu("s_add_u32", s_t1, s_t1, s_g))
e(raw("s_mov_b64 exec, 2", "salu", wr=["exec"]))
e(raw("buffer_store_byte %s, off, %s, %s sc1" % (v_fa, S_DBG, s_t1)))
e(raw("s_mov_b64 exec, -1", "salu", wr=["exec"]))
e(raw("s_branch L_sigH_ret"))
em.label("L_fallback")
e(raw("s_waitcnt vmcnt(0) lgkmcnt(0)")); em._retire(em.vmq, 0); em._retire(em.lgq, 0)
e(salu("s_mov_b32", s_retry, 1, scc_w=False))
e(salu("s_lshl_b32", s_t0, s_w, 6)); e(valu("v_add_u32", v_tid, s_t0, v_lane))
e(raw("s_barrier"))
e(raw("s_branch L_restart"))
em.label("L_maxpass")
e(raw("s_waitcnt vmcnt(0) lgkmcnt(0)"))
e(salu("s_mov_b32", s_retry, 2, scc_w=False))
e(salu("s_mov_b32", S_H[2], 0, scc_w=False))
e(salu("s_mov_b32", s_kK, 0, scc_w=False))
fm = [V(40 + i) for i in range(4)]
for i in range(4): e(valu("v_mov_b32", fm[i], "0xff800000"))
em.label("L_fb_loop")
e(raw("s_barrier"))
e(salu("s_add_u32", "m0", s_m0b, 4 * 16384)); e(nop(0))
for j in range(4): e(dma(v_kd[j], S_K, s_kK, j * 1024))
em.wait(vm0=True)
e(raw("s_barrier"))
for kb in range(4):
    rr = [e(dsread("ds_read_b128", fr(ds), v_ka[ds], kb * 4096)) for ds in range(4)]
    em.wait(lg0=True)
    for ds in range(4):
        for qb in range(4):
            d = v_S[0][(qb * 4, 4)]
            e(mfma(d, fr(ds), Qf(qb, ds), 0 if ds == 0 else d))
    e(nop(7))
    for qb in range(4):
        e(valu("v_max3_f32", fm[qb], fm[qb], v_S[0][qb * 4], v_S[0][qb * 4 + 1])); e(valu("v_max3_f32", fm[qb], fm[qb], v_S[0][qb * 4 + 2], v_S[0][qb * 4 + 3]))
    e(nop(2))
e(salu("s_add_u32", s_kK, s_kK, 16384)); e(scmp("s_cmp_lt_u32", s_kK, 524288)); e(raw("s_cbranch_scc1 L_fb_loop", rd=["scc"]))
red4("v_max_f32", fm, [V(44 + i) for i in range(4)])
for qb in range(4):
    for k in range(4): e(valu("v_sub_f32", v_negm[qb * 4 + k], 0, fm[qb]))
e(raw("s_barrier"))
for m in (64, 65, 66):
    sa, dm = s1_dma(m); e(sa)
    for d in dm: e(d)
e(raw("s_waitcnt vmcnt(0)"))
e(raw("s_branch L_att_start"))
em.label("L_code_end")
e(raw("s_endpgm"))

ALIGN8 = int(os.environ.get("ALIGN8", "0"))
import re as _re
def isize(i):
    t = i.text
    if i.kind == "label": return 0
    op = t.split()[0]
    if i.kind in ("mfma", "lds", "vmem", "dma") or op.startswith(("buffer_", "global_", "ds_", "s_load", "s_memtime", "s_memrealtime")): return 8
    lit = False
    for tok in _re.split(r"[ ,]+", t)[1:]:
        if _re.fullmatch(r"-?\d+", tok): lit |= not (-16 <= int(tok) <= 64)
        elif tok.startswith("0x"): lit |= not (int(tok, 16) <= 64)
        elif tok.startswith("L_") and not op.startswith(("s_cbranch", "s_branch")): lit = True
    if op.startswith("s_"):
        if op in ("s_waitcnt", "s_nop", "s_barrier", "s_sleep", "s_endpgm") or op.startswith(("s_cbranch", "s_branch")): return 4
        return 8 if lit else 4
    e32 = ("v_exp_f32", "v_rcp_f32", "v_sqrt_f32", "v_mov_b32", "v_mov_b64", "v_add_f32", "v_sub_f32", "v_mul_f32", "v_max_f32", "v_and_b32", "v_xor_b32", "v_lshlrev_b32", "v_lshrrev_b32",
           "v_add_u32", "v_sub_u32", "v_subrev_u32", "v_mul_u32_u24", "v_min_u32", "v_readfirstlane_b32", "v_permlane16_swap_b32", "v_permlane32_swap_b32")
    if op in e32 and "-v" not in t: return 8 if lit else 4
    if op.startswith("v_cmp") and t.split()[1].startswith("vcc"): return 8 if lit else 4
    return 8
WIDE = ("v_exp_f32", "v_rcp_f32", "v_add_f32", "v_mul_f32", "v_mov_b32", "v_sub_f32", "v_and_b32", "v_lshlrev_b32")
if ALIGN8:
    pos = 0; cand = None; nfix = 0; nmiss = 0
    for i in em.out:
        if i.kind == "label":
            if i.text.startswith(".p2align"): pos = 0; cand = None
            continue
        if i.kind == "mfma" and pos % 8:
            if cand is not None: cand.text = cand.text.replace(cand.text.split()[0], cand.text.split()[0] + "_e64", 1); pos += 4; nfix += 1
            else: nmiss += 1
        if i.kind == "mfma": cand = None
        sz = isize(i)
        if sz == 4 and i.text.split()[0] in WIDE: cand = i
        pos += sz
    print("; align8: widened %d, unfixed %d" % (nfix, nmiss), file=sys.stderr)
probs = check_hazards(em.out, "main") + loop_probs
for p in probs: print("; HAZARD", p, file=sys.stderr)
assert not probs

hdr = open(os.path.join(os.path.dirname(os.path.abspath(__file__)), "header.txt")).read()
print(hdr.rstrip())
print("; @launch grid=(256,1,1) block=(256,1,1) lds=163840")
print('.amdgcn_target "amdgcn-amd-amdhsa--gfx950"\n.text\n.globl %s\n.p2align 8\n.type %s,@function\n%s:' % (KN, KN, KN))
print(em.text())
print('.section .rodata,"a"\n.p2align 6\n.amdhsa_kernel %s' % KN)
print("  .amdhsa_next_free_vgpr 512\n  .amdhsa_next_free_sgpr 102\n  .amdhsa_accum_offset 256\n  .amdhsa_group_segment_fixed_size 0\n  .amdhsa_kernarg_size 96\n  .amdhsa_user_sgpr_count 2\n  .amdhsa_user_sgpr_kernarg_segment_ptr 1\n  .amdhsa_system_sgpr_workgroup_id_x 1\n.end_amdhsa_kernel")
```

```python
import sys, os, math, struct
from asmgen import *

KN = "recurrent_scan__gqa_block_cached__geglu_ffn__prompt_kernel"
DUMP = os.environ.get("DUMP", "")
STAMP = int(os.environ.get("STAMP", "0"))
GEL_END = int(os.environ.get("GEL_END", "247")); GEL_EXTRA = int(os.environ.get("GEL_EXTRA", "360"))

def f2u(x): return struct.unpack("<I", struct.pack("<f", x))[0]
def hx(x): return "0x%x" % (x & 0xffffffff)

S_X, S_K, S_V, S_WQ, S_WO, S_WG, S_WU, S_WD, S_OUT, S_DBG, S_H, S_SP = [S(4 + 4 * i, 4) for i in range(12)]
s_g, s_qb, s_w = S(52), S(53), S(54)
s_t0, s_t1, s_t2, s_t3 = S(55), S(56), S(57), S(58)
s_m0b = S(59)
s_off = S(60)
s_cnt = S(61)
s_kK, s_kV = S(62), S(63)
s_retry = S(64)
s_h0, s_h1 = S(65), S(66)
s_hl = S(67); s_hb = S(78); s_myfl = S(79); s_wdd = S(67); s_sig = S(78)
s_ka = S(68, 16); s_kb = S(84, 8)
s_pair = S(92, 2); s_pair2 = S(94, 2)
S_DMP = S(96, 4)
s_cq, s_cg = S(76), S(77)
S_HC = S(80, 4)
S_SPC = S(84, 4)
S_XC = S(88, 4)
s_st = S(68, 4)

v_tid, v_lane, v_lin, v_t = V(0), V(1), V(2), V(3)
v_tr = [V(4, 4), V(8, 4)]
v_dA, v_dB = V(12, 4), V(16, 4)
v_ka = V(20, 4); v_va = V(24, 8); v_kd = V(32, 4); v_vd = V(36, 2)
v_wl = V(38)
v_c = V(39)
v_l0, v_l1 = V(40, 4), V(44, 4)
v_lsave = V(16, 4)
v_negm = V(48, 16)
v_S = [V(64, 32), V(96, 32)]
v_acc = V(128, 128)
a_ring = A(128, 32)
a_B = A(160, 32)
a_Q = A(0, 64)
ORD = int(os.environ.get("ORD", "1"))
v_wo, v_wd = (v_dB, v_dA) if ORD else (v_dA, v_dB)
a_F = A(0, 64)
a_x = A(248, 8)
LSUM = int(os.environ.get('LSUM', '1'))
a_L = A(224, 16); a_ones = A(240, 4)
POI = int(os.environ.get('POI', '0'))
POISON = 0x7f817f81
a_poi = A(244, 4)

RING = 65536
MARK = 0x7fc17fc1
WS_SP = 8 << 20
WS_DUMP = 32 << 20
WS_FL = (7 << 20) + (512 << 10)
S_FLZ = S(4, 4)
S_FL = S(4, 4)

em = Em()
e = em.e

def srd(dst, lo, hi, size, off_s=None):
    if off_s is None:
        e(salu("s_mov_b32", dst[0], lo, scc_w=False)); e(salu("s_mov_b32", dst[1], hi, scc_w=False))
    else:
        e(salu("s_add_u32", dst[0], lo, off_s)); e(salu("s_addc_u32", dst[1], hi, 0, scc_r=True))
    e(salu("s_mov_b32", dst[2], hx(size), scc_w=False)); e(salu("s_mov_b32", dst[3], "0x20000", scc_w=False))

DIAG = int(os.environ.get("DIAG", "0"))
HC_OFF = 128
diag_regs = [S(100, 2), S(70, 2), S(72, 2), S(74, 2), S(96, 2), S(98, 2), S(68, 2)] if DIAG == 1 else [S(100, 2), S(96, 2), S(70, 2), S(72, 2), S(74, 2), S(98, 2), S(92, 2)] if DIAG == 3 else [S(100, 2), S(96, 2), S(98, 2), S(94, 2), S(70, 2), S(72, 2), S(74, 2), S(68, 2)]
diag_n = [0]
def diag(which=1, last=False):
    if not DIAG or (which != DIAG and which != 0): return
    k = diag_n[0]; diag_n[0] += 1
    e(raw("%s %s" % ("s_memtime" if (os.environ.get("CYC") and not last) else "s_memrealtime", diag_regs[k]), "other", wr=[diag_regs[k]]))
    if k > 0: e(raw("s_waitcnt lgkmcnt(0)", "wait")); em._retire(em.lgq, 0)
AMP = os.environ.get("AMP")
def diag_out():
    if not DIAG: return
    diag(0, last=True)
    if AMP:
        k = int(AMP); last = diag_regs[diag_n[0] - 1]
        e(salu("s_sub_u32", s_t0, diag_regs[k][0], diag_regs[int(os.environ.get("AMP0", "0"))][0]))
        if os.environ.get("CYC"): e(salu("s_lshr_b32", s_t0, s_t0, 2))
        else: e(salu("s_lshl_b32", s_t0, s_t0, 2))
        em.label("L_amp")
        e(raw("s_memrealtime s[56:57]")); e(raw("s_waitcnt lgkmcnt(0)"))
        e(salu("s_sub_u32", s_t1, s_t1, last[0])); e(scmp("s_cmp_lt_u32", s_t1, s_t0)); e(raw("s_cbranch_scc1 L_amp", rd=["scc"]))
        return
    e(scmp("s_cmp_lg_u32", s_w, 0)); e(raw("s_cbranch_scc1 L_end", rd=["scc"]))
    e(raw("s_mov_b64 exec, 1", "salu", wr=["exec"]))
    e(salu("s_not_b32", s_t0, diag_regs[0][0]))
    for k in range(diag_n[0]):
        e(valu("v_mov_b32", V(4 + k), s_t0 if k == 0 else diag_regs[k][0]))
        e(raw("buffer_atomic_umax %s, off, %s, 0 offset:%d sc1" % (V(4 + k), S_DBG, 4 * k)))
    e(valu("v_mov_b32", V(12), diag_regs[0][0]))
    e(raw("buffer_atomic_umax %s, off, %s, 0 offset:%d sc1" % (V(12), S_DBG, 4 * 9)))
stamp_n = [0]
def stamp():
    if not STAMP: return
    k = stamp_n[0]; stamp_n[0] += 1
    e(raw("s_memtime %s" % S(68, 2), "other", wr=[S(68, 2)]))
    e(raw("s_memrealtime %s" % S(70, 2), "other", wr=[S(70, 2)]))
    e(raw("s_waitcnt lgkmcnt(0)", "wait")); em._retire(em.lgq, 0)
    for i in range(4): e(valu("v_writelane_b32", v_c, S(68 + i), i, rmw=True))
    e(salu("s_lshl_b32", S(72), S(2), 2)); e(salu("s_add_u32", S(72), S(72), s_w)); e(salu("s_lshl_b32", S(72), S(72), 9))
    e(salu("s_mov_b64", S(74, 2), "exec", scc_w=False)); e(raw("s_mov_b64 exec, 15", "salu", wr=["exec"]))
    e(valu("v_lshlrev_b32", v_t, 2, v_lane))
    e(bstore(v_c, v_t, S_DMP, S(72), off=k * 16))
    e(raw("s_mov_b64 exec, %s" % S(74, 2), "salu", wr=["exec"]))
    e(valu("v_lshlrev_b32", v_t, 7, v_lane))

def dump_regs(regs, finish=True):
    em.wait(lg0=True, vm0=True)
    e(nop(7)); e(nop(7))
    n = len(regs)
    e(salu("s_lshl_b32", s_t0, S(2), 2)); e(salu("s_add_u32", s_t0, s_t0, s_w)); e(salu("s_mul_i32", s_t0, s_t0, n * 256, scc_w=False))
    e(valu("v_lshlrev_b32", v_t, 2, v_lane))
    for k, r in enumerate(regs):
        e(bstore(r, v_t, S_DMP, s_t0, off=0))
        e(salu("s_add_u32", s_t0, s_t0, 256))
        if k % 32 == 31: em.wait(vm0=True)
    em.wait(vm0=True)
    if finish: e(raw("s_endpgm"))

def red4(op, x, tmp):
    for sw in ("v_permlane32_swap_b32", "v_permlane16_swap_b32"):
        for a, t in zip(x, tmp): e(valu("v_mov_b32", t, a))
        if len(x) < 3: e(nop(1))
        for a, t in zip(x, tmp): e(valu(sw, a, t))
        for a, t in zip(x, tmp): e(valu(op, a, a, t))

e(scmp("s_cmp_ge_u32", S(2), 256)); e(raw("s_cbranch_scc1 L_end", rd=["scc"]))
diag(0)
e(salu("s_mov_b32", s_retry, 0, scc_w=False))
em.label("L_restart")
i0 = e(I("s_load_dwordx16 %s, s[0:1], 0" % s_ka, "smem", wr=s_ka.regs()))
i1 = e(I("s_load_dwordx8 %s, s[0:1], 64" % s_kb, "smem", wr=s_kb.regs()))
vq, vG, vr, vc_, vx, vy, vz = [V(40 + i) for i in range(7)]
e(raw("s_getpc_b64 %s" % s_pair2, "salu", wr=[s_pair2]))
em.label("L_pc0")
CT0 = int(os.environ.get("CT0", "64"))
if CT0:
    e(valu("v_sub_u32", V(55), 255, v_tid)); e(valu("v_cmp_gt_u32", "vcc", CT0, V(55))); e(valu("v_lshlrev_b32", V(55), 7, V(55))); e(nop(0))
    e(raw("s_and_saveexec_b64 s[4:5], vcc", "salu", wr=["exec"], rd=["vcc"])); e(raw("s_cbranch_execz L_ct0"))
    e(raw("global_load_dword v55, v55, %s" % s_pair2))
    em.label("L_ct0")
    e(raw("s_mov_b64 exec, -1", "salu", wr=["exec"]))
MAP2 = int(os.environ.get("MAP2", "0"))
s_i = S(65)
if MAP2:
    e(salu("s_and_b32", s_g, S(2), 3)); e(salu("s_lshl_b32", s_g, s_g, 1)); e(salu("s_bfe_u32", s_t0, S(2), "0x10003")); e(salu("s_add_u32", s_g, s_g, s_t0))
    e(salu("s_bfe_u32", s_qb, S(2), "0x10002")); e(salu("s_lshl_b32", s_qb, s_qb, 4)); e(salu("s_lshr_b32", s_t0, S(2), 4)); e(salu("s_add_u32", s_qb, s_qb, s_t0))
else:
    e(salu("s_and_b32", s_g, S(2), 7)); e(salu("s_lshr_b32", s_qb, S(2), 3))
def sx(dst): return salu("s_lshr_b32", dst, S(2), 4 if MAP2 else 3)
TL = "-1" if MAP2 else "0xffffffff"
e(valu("v_and_b32", v_lane, 63, v_tid))
e(valu("v_lshrrev_b32", v_t, 6, v_tid))
e(valu("v_lshlrev_b32", v_lin, 4, v_lane))
e(valu("v_readfirstlane_b32", s_w, v_t))
e(valu("v_and_b32", vq, 15, v_lane)); e(valu("v_lshrrev_b32", vG, 4, v_lane))
vxo = V(47)
XD = int(os.environ.get("XD", "1"))
if XD == 2:
    vxq = V(60, 4); vxr = vxq
    for rg in range(4):
        e(valu("v_add_u32", vy, 4 * rg, vG)); e(valu("v_xor_b32", vz, vy, vq)); e(valu("v_lshl_add_u32", vy, v_t, 4, vy)); e(valu("v_lshlrev_b32", vy, 10, vy))
        e(valu("v_lshl_add_u32", vxq[rg], vz, 4, vy))
elif XD:
    vxo2 = V(50); vxr = [V(47), V(50)]
    e(valu("v_lshrrev_b32", vx, 3, v_lane)); e(valu("v_lshl_add_u32", vx, v_t, 4, vx)); e(valu("v_lshlrev_b32", vx, 10, vx))
    e(valu("v_and_b32", vy, 7, v_lane)); e(valu("v_xor_b32", vy, vy, vG)); e(valu("v_lshl_add_u32", vxo, vy, 4, vx))
    e(valu("v_xor_b32", vxo2, 64, vxo)); e(valu("v_add_u32", vxo2, 8192, vxo2))
else:
    e(valu("v_lshl_add_u32", vxo, v_t, 4, vq)); e(valu("v_lshlrev_b32", vxo, 10, vxo)); e(valu("v_lshl_add_u32", vxo, vG, 4, vxo))
vwg, vwq, vcw = V(52), V(53), V(54)
GM0 = int(os.environ.get("GM", "1"))
if GM0: e(salu("s_lshl_b32", s_t1, s_g, 7))
else: e(salu("s_mul_i32", s_t1, s_g, 448, scc_w=False)); e(salu("s_and_b32", s_t1, s_t1, hx(~127)))
e(salu("s_and_b32", s_t2, s_w, 1)); e(sx(s_t3)); e(salu("s_lshl_b32", s_t3, s_t3, 1)); e(salu("s_add_u32", s_t2, s_t2, s_t3))
e(salu("s_mul_i32", s_t2, s_t2, (16 if MAP2 else 8) * 3584, scc_w=False)); e(salu("s_add_u32", s_t1, s_t1, s_t2))
e(valu("v_lshrrev_b32", vx, 2, v_lane)); e(valu("v_mul_u32_u24", vx, 3584, vx)); e(valu("v_and_b32", vz, 3, v_lane)); e(valu("v_lshl_add_u32", vx, vz, 10 if GM0 else 7, vx))
e(valu("v_add_u32", vwg, s_t1, vx))
if GM0:
    e(salu("s_add_u32", s_t3, s_g, 1)); e(salu("s_lshr_b32", s_t3, s_t3, 1)); e(salu("s_lshl_b32", s_t3, s_t3, 7))
    e(valu("v_cmp_eq_u32", "vcc", 3, vz)); e(valu("v_subrev_u32", vx, s_t3, vwg)); e(nop(0)); e(valu("v_cndmask_b32", vwg, vwg, vx, "vcc"))
e(salu("s_lshr_b32", s_t2, S(2), 3)); e(salu("s_lshl_b32", s_t2, s_t2, 2)); e(salu("s_add_u32", s_t2, s_t2, s_w)); e(salu("s_lshl_b32", s_t3, s_t2, 8))
e(valu("v_lshlrev_b32", vcw, 7, v_lane)); e(valu("v_add_u32", vcw, s_t3, vcw))
e(salu("s_lshl_b32", s_t0, s_qb, 16))
em.wait(lg0=True)
diag(2)
srd(S_X, s_ka[0], s_ka[1], 65536, s_t0)
v_xp = V(64, 64)
XFIRST = int(os.environ.get("XFIRST", "12"))
if XD:
    s_xb = S(60)
    e(salu("s_lshl_b32", s_xb, s_w, 14))
    xo = [256 * (t >> 2) if XD == 2 else 128 * (t >> 1) for t in range(16)]
    xl = [dma(vxq[t & 3] if XD == 2 else (vxo2 if t & 1 else vxo), S_X, 0, off=xo[t]) for t in range(16)]
    def xissue(t): e(salu("s_add_u32", "m0", s_xb, t * 1024 - xo[t])); e(nop(0)); e(xl[t])
else:
    xl = [bload(v_xp[(4 * ks, 4)], vxo, S_X, 0, off=64 * ks) for ks in range(16)]
    def xissue(t): e(xl[t])
for ks in range(XFIRST): xissue(ks)
e(scmp("s_cmp_lt_u32", s_w, 2)); e(salu("s_cselect_b64", s_pair, s_ka[(12, 2)], s_ka[(14, 2)], scc_w=False, scc_r=True))
WT = int(os.environ.get("WT", "0"))
s_wgp = S(100, 2) if not DIAG else S(98, 2)
def wq_addr():
    e(sx(s_t2)); e(salu("s_lshl_b32", s_t2, s_t2, 2)); e(salu("s_add_u32", s_t2, s_t2, s_w))
    e(salu("s_lshl_b32", s_t2, s_t2, 16 if MAP2 else 15)); e(salu("s_lshl_b32", s_t3, s_g, 10)); e(salu("s_add_u32", s_t2, s_t2, s_t3))
    e(valu("v_lshrrev_b32", vx, 3, v_lane)); e(valu("v_lshlrev_b32", vx, 13, vx)); e(valu("v_and_b32", vz, 7, v_lane)); e(valu("v_lshl_add_u32", vx, vz, 7, vx))
    e(valu("v_add_u32", vwq, s_t2, vx))
if ORD:
    e(salu("s_mov_b64", s_wgp, s_pair, scc_w=False))
    wq_addr()
    e(raw("s_mov_b64 exec, " + TL, "salu", wr=["exec"]))
    e(I("global_load_dword %s, %s, %s" % (V(48), vwq, s_ka[(6, 2)]), "vmem", rd=vwq.regs() + s_ka[(6, 2)].regs(), wr=V(48).regs()))
elif WT:
    e(salu("s_lshl_b32", s_t3, S(2), 1)); e(salu("s_and_b32", s_t1, s_w, 1)); e(salu("s_add_u32", s_t3, s_t3, s_t1)); e(salu("s_mul_i32", s_t3, s_t3, 3584, scc_w=False))
    e(valu("v_lshlrev_b32", V(51), 7, v_lane)); e(valu("v_add_u32", V(51), s_t3, V(51)))
    e(raw("s_mov_b64 exec, 0xfffffff", "salu", wr=["exec"]))
    e(I("global_load_dword %s, %s, %s" % (V(48), V(51), s_pair), "vmem", rd=V(51).regs() + s_pair.regs(), wr=V(48).regs()))
    e(salu("s_mov_b64", s_wgp, s_pair, scc_w=False))
else:
    e(raw("s_mov_b64 exec, " + TL, "salu", wr=["exec"]))
    e(I("global_load_dword %s, %s, %s" % (V(48), vwg, s_pair), "vmem", rd=vwg.regs() + s_pair.regs(), wr=V(48).regs()))
e(raw("s_mov_b64 exec, 3", "salu", wr=["exec"]))
e(I("global_load_dword %s, %s, %s" % (V(49), vcw, s_pair2), "vmem", rd=vcw.regs() + s_pair2.regs(), wr=V(49).regs()))
e(raw("s_mov_b64 exec, -1", "salu", wr=["exec"]))
if not ORD: wq_addr()
e(salu("s_lshr_b32", s_t2, S(2), 6)); e(salu("s_and_b32", s_t3, S(2), 7)); e(salu("s_lshl_b32", s_t3, s_t3, 2)); e(salu("s_add_u32", s_t2, s_t2, s_t3))
e(salu("s_lshl_b32", s_t0, s_t2, 16))
srd(S_OUT, s_kb[2], s_kb[3], 65536, s_t0)
e(salu("s_lshl_b32", s_t1, s_g, 19))
srd(S_K, s_ka[2], s_ka[3], 524288, s_t1)
srd(S_V, s_ka[4], s_ka[5], 524288, s_t1)
srd(S_WO, s_ka[8], s_ka[9], 524288, s_t1)
srd(S_WQ, s_ka[6], s_ka[7], 4 << 20)
srd(S_WG, s_ka[12], s_ka[13], 1835008)
srd(S_WU, s_ka[14], s_ka[15], 1835008)
srd(S_WD, s_kb[0], s_kb[1], 1835008)
srd(S_DBG, s_kb[4], s_kb[5], 256)
e(salu("s_mul_i32", s_t1, s_qb, 229376, scc_w=False))
srd(S_H, s_kb[6], s_kb[7], 229376, s_t1)
e(salu("s_lshl_b32", s_t1, s_qb, 19)); e(salu("s_add_u32", s_t1, s_t1, hx(WS_SP)))
srd(S_SP, s_kb[6], s_kb[7], 524288, s_t1)
if DUMP or STAMP:
    e(salu("s_mov_b32", s_t1, hx(WS_DUMP), scc_w=False))
    srd(S_DMP, s_kb[6], s_kb[7], 200 << 20, s_t1)
e(salu("s_mov_b64", s_pair, S(90, 2), scc_w=False))
e(salu("s_lshl_b32", s_t0, s_t2, 16))
srd(S_XC, s_ka[0], s_ka[1], 65536, s_t0)
e(salu("s_mul_i32", s_t1, s_t2, 229376, scc_w=False))
srd(S_HC, s_pair[0], s_pair[1], 229376, s_t1)
e(salu("s_lshl_b32", s_t1, s_t2, 19)); e(salu("s_add_u32", s_t1, s_t1, hx(WS_SP)))
srd(S_SPC, s_pair[0], s_pair[1], 524288, s_t1)
e(salu("s_mov_b32", s_cq, s_t2, scc_w=False)); e(salu("s_bfe_u32", s_cg, S(2), "0x30003"))
e(salu("s_lshl_b32", s_myfl, s_qb, 2)); e(salu("s_add_u32", s_myfl, s_myfl, s_w)); e(salu("s_lshl_b32", s_myfl, s_myfl, 8))
e(salu("s_lshl_b32", s_t1, s_g, 2)); e(salu("s_add_u32", s_myfl, s_myfl, s_t1))
e(salu("s_lshl_b32", s_m0b, s_w, 12)); e(salu("s_add_u32", s_m0b, s_m0b, RING))
GM = int(os.environ.get("GM", "1"))
if GM:
    e(salu("s_lshl_b32", s_t1, s_w, 3)); e(salu("s_add_u32", s_t1, s_t1, s_g))
    e(salu("s_lshr_b32", s_t2, s_g, 1)); e(salu("s_add_u32", s_t2, s_t2, 24))
    e(scmp("s_cmp_eq_u32", s_w, 3)); e(salu("s_cselect_b32", s_t1, s_t2, s_t1, scc_w=False, scc_r=True))
else:
    e(salu("s_and_b32", s_t1, s_g, 1)); e(salu("s_lshl_b32", s_t1, s_t1, 2)); e(salu("s_add_u32", s_t1, s_t1, s_w))
    e(scmp("s_cmp_eq_u32", s_w, 3)); e(salu("s_cselect_b32", s_t1, 3, s_t1, scc_w=False, scc_r=True))
    e(salu("s_lshr_b32", s_t2, s_g, 1)); e(salu("s_mul_i32", s_t2, s_t2, 7, scc_w=False)); e(salu("s_add_u32", s_t1, s_t1, s_t2))
e(salu("s_lshl_b32", s_h0, s_t1, 13)); e(salu("s_add_u32", s_h1, s_h0, 4096))
e(salu("s_lshl_b32", s_t1, s_t1, 7))
e(salu("s_lshl_b32", s_t2, s_g, 2)); e(salu("s_add_u32", s_t2, s_t2, s_w)); e(salu("s_lshl_b32", s_t2, s_t2, 8))

def dma_voffs(dst, stride, colbase_s, perm):
    for j in range(4):
        e(valu("v_bfe_u32", vx, v_lane, 1, 2)); e(valu("v_bfe_u32", vy, v_lane, 4, 1))
        e(valu("v_xor_b32", vx, vx, vy))
        if j & 1: e(valu("v_xor_b32", vx, 2, vx))
        e(valu("v_and_b32", vy, 1, v_lane)); e(valu("v_lshlrev_b32", vy, 4, vy)); e(valu("v_lshl_add_u32", vx, vx, 5, vy))
        if not perm:
            e(valu("v_lshrrev_b32", vy, 3, v_lane)); rowadd = 8 * j
        else:
            e(valu("v_bfe_u32", vy, v_lane, 3, 2)); e(valu("v_bfe_u32", vz, v_lane, 5, 1)); e(valu("v_lshl_add_u32", vy, vz, 4, vy)); rowadd = 4 * j
        e(valu("v_mul_u32_u24", vy, stride, vy))
        e(valu("v_add3_u32", vx, vx, vy, colbase_s))
        e(valu("v_add_u32", dst[j], rowadd * stride - j * 1024, vx))

dma_voffs(v_dA, 3584, s_t1, False)
dma_voffs(v_dB, 8192, s_t2, False)

def m0set(p): return salu("s_add_u32", "m0", s_m0b, p * 16384) if p < 6 else salu("s_sub_u32", "m0", s_m0b, RING - (p - 6) * 16384)
def s1_dma(m):
    p = m % 6
    if ORD and m < 64: m ^= 32
    if m < 32:
        s, h = m >> 1, m & 1
        return [m0set(p), salu("s_mov_b32", s_off, s * 32 * 3584, scc_w=False)], [dma(v_dA[j], S_WU if h else S_WG, s_off, j * 1024) for j in range(4)]
    if m < 64:
        s, h = (m - 32) >> 1, m & 1
        return [m0set(p), salu("s_mov_b32", s_off, s * 32 * 8192 + 128 * h, scc_w=False)], [dma(v_dB[j], S_WQ, s_off, j * 1024) for j in range(4)]
    if m == 64:
        return [m0set(p), salu("s_mov_b32", s_off, 0, scc_w=False)], [dma(v_kd[j], S_K, s_off, j * 1024) for j in range(4)]
    if m == 65:
        return [m0set(p), salu("s_mov_b32", s_off, 8192, scc_w=False)], [dma(v_kd[j], S_K, s_off, j * 1024) for j in range(4)]
    if m == 66:
        return [m0set(p), salu("s_mov_b32", s_off, 0, scc_w=False)], [dma(v_vd[j & 1], S_V, s_off, j * 1024) for j in range(4)]
    return None
dtok = {}
ln_v = []
for m in range(6):
    sa, dm = s1_dma(m)
    ln_v.append(sa); ln_v += dm
    dtok[m] = dm[3]
def xaddr(dst, tmp):
    e(valu("v_and_b32", dst, 15, v_lane)); e(salu("s_lshl_b32", s_t0, s_w, 4)); e(valu("v_add_u32", dst, s_t0, dst)); e(valu("v_lshlrev_b32", dst, 10, dst))
    e(valu("v_lshrrev_b32", tmp, 4, v_lane)); e(valu("v_lshl_add_u32", dst, tmp, 3, dst)); e(salu("s_lshl_b32", s_t0, s_cg, 7)); e(valu("v_add_u32", dst, s_t0, dst))
WQT = int(os.environ.get("WQT", "0"))
wqt = [raw("s_mov_b64 exec, " + TL, "salu", wr=["exec"]), bload(V(46), vwq, S_WQ, 0, n=1), raw("s_mov_b64 exec, -1", "salu", wr=["exec"])]
WQC = int(os.environ.get("WQC", "2"))
wqs = wqt
if ORD:
    e(salu("s_lshl_b32", s_t3, S(2), 1)); e(salu("s_and_b32", s_t1, s_w, 1)); e(salu("s_add_u32", s_t3, s_t3, s_t1)); e(salu("s_mul_i32", s_t3, s_t3, 3584, scc_w=False))
    e(valu("v_lshlrev_b32", V(54), 7, v_lane)); e(valu("v_add_u32", V(54), s_t3, V(54)))
    wqt = [raw("s_mov_b64 exec, 0xfffffff", "salu", wr=["exec"]), I("global_load_dword %s, %s, %s" % (V(49), V(54), s_wgp), "vmem", rd=["v54"] + s_wgp.regs(), wr=["v49"]), raw("s_mov_b64 exec, -1", "salu", wr=["exec"])]
    wqs = [raw("s_mov_b64 exec, " + TL, "salu", wr=["exec"]), I("global_load_dword %s, %s, %s" % (V(46), vwg, s_wgp), "vmem", rd=vwg.regs() + s_wgp.regs(), wr=["v46"]), raw("s_mov_b64 exec, -1", "salu", wr=["exec"])]
elif WQC:
    e(salu("s_lshl_b32", s_t3, S(2), 2)); e(salu("s_add_u32", s_t3, s_t3, s_w)); e(salu("s_lshl_b32", s_t3, s_t3, 12))
    e(valu("v_lshlrev_b32", V(54), 7, v_lane)); e(valu("v_add_u32", V(54), s_t3, V(54)))
    wqt = [raw("s_mov_b64 exec, 0xffffffff", "salu", wr=["exec"]), bload(V(49), V(54), S_WQ, 0, n=1), raw("s_mov_b64 exec, -1", "salu", wr=["exec"])]
if WT == 2:
    wgt = [raw("s_mov_b64 exec, " + TL, "salu", wr=["exec"]), I("global_load_dword %s, %s, %s" % (V(51), vwg, s_wgp), "vmem", rd=vwg.regs() + s_wgp.regs(), wr=V(51).regs()), raw("s_mov_b64 exec, -1", "salu", wr=["exec"])]
    ln_v.insert(int(os.environ.get("WTP", "0")), wgt)
if WQT == 0: ln_v.append(wqt)
LNPRE = int(os.environ.get("LNPRE", "0"))
lv = [0]
def ln_issue(n=1):
    k = 0
    while k < n and lv[0] < len(ln_v):
        it = ln_v[lv[0]]; lv[0] += 1
        e(it)
        if not isinstance(it, list): k += 1
e(valu("v_bfe_u32", vr, v_lane, 2, 2)); e(valu("v_and_b32", vc_, 3, v_lane))
e(valu("v_lshlrev_b32", vx, 10, vG)); e(valu("v_lshl_add_u32", vx, vr, 7, vx)); e(valu("v_lshl_add_u32", vx, vc_, 3, vx)); e(valu("v_add_u32", vx, s_m0b, vx))
e(valu("v_lshrrev_b32", vy, 1, vr)); e(valu("v_and_b32", vz, 1, vG)); e(valu("v_lshl_add_u32", vy, vz, 1, vy))
for u in range(4):
    e(valu("v_xor_b32", vz, u, vy)); e(valu("v_lshl_add_u32", v_tr[0][u], vz, 5, vx)); e(valu("v_add_u32", v_tr[1][u], 3 * 16384, v_tr[0][u]))
e(valu("v_xor_b32", vy, vG, vq))
for ds in range(4):
    e(valu("v_xor_b32", vz, 4 * ds, vy)); e(valu("v_lshlrev_b32", vz, 4, vz)); e(valu("v_lshl_add_u32", vz, vq, 8, vz)); e(valu("v_add_u32", v_ka[ds], RING + 4 * 16384, vz))
e(valu("v_lshl_add_u32", vx, vG, 2, vr)); e(valu("v_and_b32", vy, 7, vx)); e(valu("v_lshlrev_b32", vx, 8, vx)); e(valu("v_lshl_add_u32", vx, vc_, 3, vx)); e(valu("v_add_u32", vx, RING, vx))
for db in range(8):
    e(valu("v_xor_b32", vz, db, vy)); e(valu("v_lshl_add_u32", v_va[db], vz, 5, vx))
e(salu("s_lshl_b32", s_t1, s_w, 12))
e(valu("v_lshlrev_b32", vx, 8, vG)); e(valu("v_add_u32", vx, s_t1, vx))
for j in range(4):
    e(valu("v_add_u32", vy, 4 * j, vG)); e(valu("v_xor_b32", vy, vy, vq)); e(valu("v_lshl_add_u32", v_kd[j], vy, 4, vx))
e(valu("v_and_b32", vz, 1, v_lane)); e(valu("v_lshl_add_u32", vx, vz, 4, vx))
for j in range(2):
    e(valu("v_add_u32", vy, 4 * j, vG)); e(valu("v_lshrrev_b32", vz, 1, vq)); e(valu("v_xor_b32", vy, vy, vz)); e(valu("v_lshl_add_u32", v_vd[j], vy, 5, vx))
e(salu("s_lshl_b32", s_t1, s_w, 14)); e(valu("v_add_u32", v_wl, s_t1, v_lin))
for ks in range(XFIRST, 16): xissue(ks)
if XD == 2:
    e(valu("v_xor_b32", vx, vq, vG)); e(valu("v_lshlrev_b32", vy, 8, vq)); e(valu("v_add_u32", vy, s_xb, vy))
    for b_ in range(4): e(valu("v_xor_b32", vz, 4 * b_, vx)); e(valu("v_lshl_add_u32", V(48 + 0) if False else vxr[b_], vz, 4, vy))
elif XD:
    e(valu("v_lshrrev_b32", vx, 1, vq)); e(valu("v_xor_b32", vx, vx, vG)); e(valu("v_lshlrev_b32", vx, 4, vx))
    e(valu("v_lshl_add_u32", vx, vq, 7, vx)); e(valu("v_add_u32", vxr[0], s_xb, vx)); e(valu("v_xor_b32", vxr[1], 64, vxr[0]))
e(salu("s_mov_b32", s_t1, hx(WS_FL), scc_w=False))
srd(S_FL, s_pair[0], s_pair[1], 32768, s_t1)
if WQT == 1: e(wqt)
ln_issue(LNPRE)
stamp()

C0 = -2.0 * math.sqrt(2.0 / math.pi) * math.log2(math.e); C1 = C0 * 0.044715
DRY = int(os.environ.get("DRY", "1")) and ORD
s_sub, s_ret = S(92, 2), S(70, 2)
class GeluMark(I):
    def __init__(self): I.__init__(self, "; (gelu subroutine ran)", "label", states=0)
def mix_trans(ops, look=70):
    ops = list(ops); out = []
    def free(j):
        o = ops[j]
        for p in ops[:j]:
            if set(p.wr) & (set(o.rd) | set(o.wr)) or set(p.rd) & set(o.wr): return False
        if out and out[-1].kind == "trans" and o.kind != "trans" and set(out[-1].wr) & set(o.rd): return False
        return True
    D = int(os.environ.get("DEPD", "6"))
    def dist(j):
        o = ops[j]
        for k in range(1, min(D, len(out)) + 1):
            if set(out[-k].wr) & set(o.rd): return k
        return D + 1
    while ops:
        want = "valu" if (out and out[-1].kind == "trans") else "trans"
        cand = [j for j in range(min(look, len(ops))) if free(j)]
        if not cand: out.append(nop(0)); continue
        good = [j for j in cand if dist(j) > D]
        pick = next((j for j in good if ops[j].kind == want), good[0] if good else max(cand, key=lambda j: (dist(j), -j)))
        out.append(ops.pop(pick))
    return out
def gelu_block():
    cc = V(40, 2); one = V(44, 2)
    e(valu("v_mov_b32", cc[0], hx(f2u(C0)))); e(valu("v_mov_b32", cc[1], hx(f2u(C1)))); e(valu("v_mov_b32", one[0], "1.0")); e(nop(4))
    save = em.out; em.out = []
    for i in range(2):
        for qb in range(4):
            pk = V(96 + 4 * (i * 4 + qb), 4)
            P_ = [(v_acc[(((2 * i + b) * 4 + qb) * 4 + 2 * k, 2)], v_acc[(((4 + 2 * i + b) * 4 + qb) * 4 + 2 * k, 2)], V(64 + 8 * (qb & 3) + 2 * (2 * b + k), 2)) for b in range(2) for k in range(2)]
            for g_, u_, x_ in P_: e(valu("v_pk_mul_f32", x_, g_, g_))
            for g_, u_, x_ in P_: e(valu("v_pk_fma_f32", x_, x_, cc, cc, mod="op_sel:[0,1,0] op_sel_hi:[1,1,0]"))
            for g_, u_, x_ in P_: e(valu("v_pk_mul_f32", x_, x_, g_))
            for g_, u_, x_ in P_: e(valu("v_exp_f32", x_[0], x_[0])); e(valu("v_exp_f32", x_[1], x_[1]))
            for g_, u_, x_ in P_: e(valu("v_pk_mul_f32", g_, g_, u_))
            for g_, u_, x_ in P_: e(valu("v_pk_add_f32", x_, x_, one, mod="op_sel_hi:[1,0]"))
            for g_, u_, x_ in P_: e(valu("v_rcp_f32", x_[0], x_[0])); e(valu("v_rcp_f32", x_[1], x_[1]))
            for g_, u_, x_ in P_: e(valu("v_mov_b64", u_, 0))
            for g_, u_, x_ in P_: e(valu("v_pk_mul_f32", g_, g_, x_))
            for k, (g_, u_, x_) in enumerate(P_): e(valu("v_cvt_pk_bf16_f32", pk[k], g_[0], g_[1]))
    ops = em.out; em.out = save
    for it in (mix_trans(ops) if int(os.environ.get("MIXT", "1")) else ops): e(it)
if DRY:
    e(raw("s_getpc_b64 %s" % s_ret, "salu", wr=[s_ret])); em.label("L_pc3")
    e(salu("s_add_u32", s_ret[0], s_ret[0], "L_gelu_end-L_pc3")); e(salu("s_addc_u32", s_ret[1], s_ret[1], 0, scc_r=True))
    em.label("L_gelu")
    gelu_block()
    e(raw("s_setpc_b64 %s" % s_ret, "salu", rd=[s_ret]))
    em.label("L_gelu_end")
v_f = V(128, 128)
LNM = int(os.environ.get("LNM", "1"))
vsum, vtmp, vmb, vdm = V(40), V(41), V(42), V(43)
vneg = V(56, 2)
diag(2)
if LNM:
    d1, d2 = V(56, 4), (V(60, 4) if XD != 2 else A(196, 4))
    xr = {}
    def xread(t2):
        em.wait(vm=xl[2 * t2 + 1])
        for ks in (2 * t2, 2 * t2 + 1): xr[ks] = e(dsread("ds_read_b128", v_xp[(4 * ks, 4)], vxr[ks & 1], (ks >> 1) * 2048))
    e(valu("v_mov_b32", vtmp, "0x3f803f80"))
    for i in range(4): e(valu("v_accvgpr_write_b32", a_ones[i], vtmp))
    e(valu("v_and_b32", vtmp, 3, v_lane))
    for r in range(1, 4): e(valu("v_cmp_eq_u32", S(68 + 2 * r, 2), r, vtmp))
    e(valu("v_bfe_u32", vtmp, v_lane, 2, 2)); e(valu("v_lshrrev_b32", vmb, 4, v_lane)); e(valu("v_cmp_eq_u32", S(68, 2), vtmp, vmb))
    LND = int(os.environ.get("LND", "4"))
    def xread4(sg):
        em.wait(vm=xl[4 * sg + 3])
        for ks in range(4 * sg, 4 * sg + 4): xr[ks] = e(dsread("ds_read_b128", v_xp[(4 * ks, 4)], vxr[ks & 3], sg * 4096))
    if XD == 1: xread(0)
    for ks in range(16):
        if XD == 2:
            if ks % 4 == 0: xread4(ks // 4)
            em.wait(lg=xr[ks])
        elif XD:
            if ks % 2 == 0 and ks + 2 < 16: xread(ks // 2 + 1)
            em.wait(lg=xr[ks])
        else: em.wait(vm=xl[ks])
        if ks == 15: diag(2)
        x4 = v_xp[(4 * ks, 4)]
        e(mfma(d1, a_ones, x4, 0 if ks == 0 else d1))
        if ks >= LND: ln_issue(1)
        for k in range(2):
            p = 4 * ks + k
            e(valu("v_lshlrev_b32", v_f[2 * p], 16, v_xp[p])); e(valu("v_and_b32", v_f[2 * p + 1], "0xffff0000", v_xp[p]))
        e(mfma(d2, x4, x4, 0 if ks == 0 else d2))
        for k in range(2, 4):
            p = 4 * ks + k
            e(valu("v_lshlrev_b32", v_f[2 * p], 16, v_xp[p])); e(valu("v_and_b32", v_f[2 * p + 1], "0xffff0000", v_xp[p]))
    if STAMP == 3: stamp()
    ln_issue(int(os.environ.get("LN_FIRST", "0")))
    diag(2)
    if STAMP == 3: stamp()
    e(nop(2))
    if XD == 2:
        e(nop(2))
        for r in range(4): e(valu("v_accvgpr_read_b32", V(60 + r), d2[r]))
        d2 = V(60, 4)
    e(valu("v_mul_f32", vsum, hx(f2u(1.0 / 512)), d1[0]))
    e(valu("v_cvt_pk_bf16_f32", vmb, vsum, vsum)); e(valu("v_lshlrev_b32", vmb, 16, vmb))
    e(valu("v_mov_b32", vdm, vsum))
    for r in range(1, 4): e(valu("v_cndmask_b32", d2[0], d2[0], d2[r], S(68 + 2 * r, 2)))
    e(valu("v_cndmask_b32", vsum, 0, d2[0], S(68, 2)))
    red4("v_add_f32", [vsum], [vtmp])
    e(valu("v_mul_f32", vsum, hx(f2u(1.0 / 512)), vsum))
    e(valu("v_fma_f32", vsum, "-" + str(vdm), vdm, vsum, extra_rd=vdm.regs()))
    if STAMP == 3: stamp()
else:
    acc = [V(56, 2), V(58, 2), V(60, 2), V(62, 2)]
    for ks in range(16):
        em.wait(vm=xl[ks])
        if ks == 15: diag(2)
        for k in range(4):
            p = 4 * ks + k
            e(valu("v_lshlrev_b32", v_f[2 * p], 16, v_xp[p])); e(valu("v_and_b32", v_f[2 * p + 1], "0xffff0000", v_xp[p]))
        for k in range(4):
            p = 4 * ks + k
            if ks == 0: e(valu("v_mov_b64", acc[k], v_f[(2 * p, 2)]))
            else: e(valu("v_pk_add_f32", acc[k], acc[k], v_f[(2 * p, 2)]))
    if STAMP == 3: stamp()
    ln_issue(int(os.environ.get("LN_FIRST", "12")))
    diag(2)
    if STAMP == 3: stamp()
    e(valu("v_pk_add_f32", acc[0], acc[0], acc[1])); e(valu("v_pk_add_f32", acc[2], acc[2], acc[3])); e(valu("v_pk_add_f32", acc[0], acc[0], acc[2]))
    e(valu("v_add_f32", vsum, acc[0][0], acc[0][1]))
    red4("v_add_f32", [vsum], [vtmp])
    e(valu("v_mul_f32", vsum, hx(f2u(1.0 / 512)), vsum))
    e(valu("v_cvt_pk_bf16_f32", vmb, vsum, vsum)); e(valu("v_lshlrev_b32", vmb, 16, vmb))
    e(valu("v_sub_f32", vdm, vsum, vmb))
    e(valu("v_sub_f32", vneg[0], 0, vmb))
    acc2 = [V(58, 2), V(60, 2), V(62, 2)]
    for p in range(64):
        e(valu("v_pk_add_f32", v_f[(2 * p, 2)], v_f[(2 * p, 2)], vneg, mod="op_sel_hi:[1,0]"))
    for p in range(64):
        a_ = acc2[p % 3]
        if p < 3: e(valu("v_pk_mul_f32", a_, v_f[(2 * p, 2)], v_f[(2 * p, 2)]))
        else: e(valu("v_pk_fma_f32", a_, v_f[(2 * p, 2)], v_f[(2 * p, 2)], a_))
    if STAMP == 3: stamp()
    e(valu("v_pk_add_f32", acc2[0], acc2[0], acc2[1])); e(valu("v_pk_add_f32", acc2[0], acc2[0], acc2[2]))
    e(valu("v_add_f32", vsum, acc2[0][0], acc2[0][1]))
    red4("v_add_f32", [vsum], [vtmp])
    e(valu("v_mul_f32", vsum, hx(f2u(1.0 / 512)), vsum))
    e(valu("v_fma_f32", vsum, "-" + str(vdm), vdm, vsum, extra_rd=vdm.regs()))
e(valu("v_max_f32", vsum, 0, vsum))
e(valu("v_cvt_pk_bf16_f32", vsum, vsum, vsum)); e(valu("v_lshlrev_b32", vsum, 16, vsum))
e(valu("v_add_f32", vsum, hx(f2u(1e-5)), vsum))
e(valu("v_cvt_pk_bf16_f32", vsum, vsum, vsum)); e(valu("v_lshlrev_b32", vsum, 16, vsum))
e(valu("v_sqrt_f32", vsum, vsum)); e(nop(0))
e(valu("v_cvt_pk_bf16_f32", vsum, vsum, vsum)); e(valu("v_lshlrev_b32", vsum, 16, vsum))
e(valu("v_rcp_f32", vneg[0], vsum)); e(nop(0))
if LNM: e(valu("v_mul_f32", vneg[1], "-" + str(vmb), vneg[0], mod="", extra_rd=vmb.regs()))
for k2 in range(8):
    if not LNM: break
    for p in range(8 * k2, 8 * k2 + 8): e(valu("v_pk_fma_f32", v_f[(2 * p, 2)], v_f[(2 * p, 2)], vneg, vneg, mod="op_sel:[0,0,1] op_sel_hi:[1,0,1]"))
    if k2:
        for ks in (2 * k2 - 2, 2 * k2 - 1): e(dswrite("ds_write_b128", v_wl, v_xp[(4 * ks, 4)], ks * 1024))
    for p in range(8 * k2, 8 * k2 + 8): e(valu("v_cvt_pk_bf16_f32", v_xp[p], v_f[2 * p], v_f[2 * p + 1]))
if LNM:
    for ks in (14, 15): e(dswrite("ds_write_b128", v_wl, v_xp[(4 * ks, 4)], ks * 1024))
for ks in range(16 if not LNM else 0):
    for k in range(4):
        p = 4 * ks + k
        if LNM: e(valu("v_pk_fma_f32", v_f[(2 * p, 2)], v_f[(2 * p, 2)], vneg, vneg, mod="op_sel:[0,0,1] op_sel_hi:[1,0,1]"))
        else: e(valu("v_pk_mul_f32", v_f[(2 * p, 2)], v_f[(2 * p, 2)], vneg, mod="op_sel_hi:[1,0]"))
    for k in range(4):
        p = 4 * ks + k
        e(valu("v_cvt_pk_bf16_f32", v_xp[p], v_f[2 * p], v_f[2 * p + 1]))
    e(dswrite("ds_write_b128", v_wl, v_xp[(4 * ks, 4)], ks * 1024))
ln_issue(int(os.environ.get("LN_LAST", "100")))
if STAMP == 3: stamp()
if DUMP == "ln": dump_regs([v_xp[i] for i in range(64)])
em.wait(lg0=True)
e(raw("s_barrier"))
stamp(); diag(); diag(2); diag(3)

PA = int(os.environ.get("PA", "1"))
SNAKE = int(os.environ.get("SNAKE", "1"))
def cost_of(it):
    k = getattr(it, "kind", "")
    return 2 if k == "trans" else (0 if k in ("salu", "nop") else 1)
class Fill:
    def __init__(self, items, start, end, spread=False): self.items, self.start, self.end, self.spread = list(items), start, end, spread; self.i = 0
    def done(self): return self.i == len(self.items)
def run_stream(NH, dmaf, dtok, accf, Bf, extra, fills, LOOK=6, nq=4, posf=lambda m: m % 6, ring=a_ring, first_dma=6, tr2=None, early_dma=False, w2=lambda g: False):
    NG = 4 * NH
    rtok = {}
    def reads(g):
        m, u = g >> 2, g & 3
        p = posf(m)
        d = ring[((g % 8) * 4, 4)]
        ar, of = (v_tr[p // 3][u], (p % 3) * 16384) if p < 6 else (tr2[u], (p - 6) * 16384)
        r = [dsread("ds_read_b64_tr_b16", d[(2 * h2, 2)], ar, of + h2 * 512) for h2 in range(2)]
        rtok[g] = r[1]
        return r
    assert all(k < NG for k in extra), "extra item scheduled past the end of the stream"
    pre = [reads(g) for g in range(3)]
    G, C = [], []
    cur = None
    for g in range(NG):
        gaps = [[], [], [], []]; cap = [2, 2, 2, 2]
        if g + 3 < NG:
            if (g + 3) & 3 == 0 and not (g > 0 and w2(g - 1)): gaps[0].append(LateW(dtok, (g + 3) >> 2))
            r = reads(g + 3); gaps[0].append(r[0]); gaps[1].append(r[1]); cap[0] -= 1; cap[1] -= 1
        md, j = (g + 4 * LOOK - 4) >> 2, (g + 4 * LOOK - 4) & 3
        if early_dma:
            md, j = (g + 4 * LOOK - 3) >> 2, (g + 4 * LOOK - 3) & 3
            if md >= first_dma and j < 2:
                if j == 0: cur = dmaf(md)
                if cur is not None:
                    if j == 0: gaps[1] += cur[0]
                    gaps[2].append(cur[1][2 * j]); gaps[3].append(cur[1][2 * j + 1]); cap[2] -= 1; cap[3] -= 1
                    if j == 1: dtok[md] = cur[1][3]
        elif md >= first_dma:
            if j == 0: cur = dmaf(md)
            if cur is not None:
                if j == 0: gaps[2] += cur[0]
                for it in cur[1][j::4]: gaps[3].append(it); cap[3] -= 1
                if j == 3: dtok[md] = cur[1][3]
        for (gp, it, cost) in extra.get(g, []):
            gaps[gp].append(it); cap[gp] -= cost
        if w2(g):
            if g & 1 == 0 and g + 1 < NG:
                gaps[3].insert(0, LateW2(rtok, [x for x in (g + 1, g + 2) if x < NG], dtok, (g + 4) >> 2 if ((g + 4) & 3 == 0 and g + 4 < NG) else None))
        elif g + 1 < NG: gaps[3].insert(0, Wait(lg=rtok[g + 1]))
        G.append(gaps); C.append(cap)
    B = {}
    for f in fills:
        idx = [(g, q) for g in range(f.start, f.end) for q in range(4)]
        caps = [max(0, C[g][q]) for g, q in idx]
        W = sum(cost_of(it) for it in f.items); T = sum(caps); n = len(idx)
        acc = 0.0; cum = 0
        for k, key in enumerate(idx):
            if W >= T: acc += caps[k] + (W - T) / n
            elif f.spread: acc += caps[k] * W / T
            else: acc += caps[k]
            B[key] = (f, acc)
    em.wait(vm=dtok[0])
    for r in pre: e(r)
    for p_ in extra.get(-1, []): e(p_[1])
    em.wait(lg0=True)
    used = {id(f): 0 for f in fills}
    for g in range(NG):
        m, u = g >> 2, g & 3
        d = ring[((g % 8) * 4, 4)]
        for qb in range(nq):
            qq = 3 - qb if (SNAKE and g & 1) else qb
            ac, first = accf(m, u, qq)
            e(mfma(ac, d, Bf(m, qq), 0 if first else ac))
            ent = B.get((g, qb))
            sawv = False
            if ent:
                f, lim = ent
                while not f.done() and getattr(f.items[f.i], "kind", "") in ("lds", "vmem", "salu") and used[id(f)] + cost_of(f.items[f.i]) <= lim + 0.5:
                    it = f.items[f.i]; f.i += 1; used[id(f)] += cost_of(it); e(it)
            for it in G[g][qb]: e(it)
            if ent:
                f, lim = ent
                lastgap = (g == f.end - 1 and qb == 3)
                while not f.done():
                    it = f.items[f.i]; c = cost_of(it)
                    if not lastgap:
                        if used[id(f)] + c > lim + 0.5: break
                        if sawv and getattr(it, "kind", "") in ("lds", "vmem"): break
                    f.i += 1; used[id(f)] += c; e(it)
                    if getattr(it, "kind", "") in ("valu", "trans"): sawv = True
    assert all(f.done() for f in fills)
class LateW2:
    def __init__(self, r, fl, d, k): self.r, self.fl, self.d, self.k = r, fl, d, k
    def __call__(self): return Wait(lg=[self.r[f] for f in self.fl], vm=(self.d[self.k] if self.k is not None else None))
class LateW:
    def __init__(self, d, k): self.d, self.k = d, k
    def __call__(self): return Wait(vm=self.d[self.k])

def s1_acc(m, u, qb):
    h = m & 1
    idx = ((h * 4 + u) * 4 + qb) * 4
    if m < 32: return A(idx, 4), m < 2
    return v_acc[(idx, 4)], m < 34
def s1_B(m, qb): return a_B[(((m >> 1) & 1) * 16 + qb * 4, 4)]
extra = {}
btok = {}
W3Z = int(os.environ.get("W3Z", "1"))
v_lz = [V(50), V(51)]
def bread(s, qb): return dsread("ds_read_b128", a_B[((s & 1) * 16 + qb * 4, 4)], v_lz[qb >> 1] if (W3Z and (s >= 16 if ORD else s < 16)) else v_lin, (qb * 16 + (s % 16)) * 1024)
if W3Z:
    s_hz = [S(84 - 16 + 0), S(69)]
    for h in range(2):
        e(salu("s_and_b32", s_t0, s_g, 1)); e(salu("s_lshl_b32", s_t0, s_t0, 2)); e(salu("s_add_u32", s_t0, s_t0, s_w))
        e(scmp("s_cmp_eq_u32", s_t0, 7 if h == 0 else 3)); e(salu("s_cselect_b32", s_hz[h], "0x40000", 0, scc_w=False, scc_r=True))
        e(valu("v_add_u32", v_lz[h], s_hz[h], v_lin))
extra[-1] = [(0, bread(0, qb), 1) for qb in range(4)]
for s in range(1, 32):
    for qb in range(4):
        extra.setdefault(8 * (s - 1) + 1 + qb, []).append((2, bread(s, qb), 1))
gi = 0; gj = 0; pend_s = []
for it in ln_v[lv[0]:]:
    if isinstance(it, list) and all(x.kind == "salu" for x in it): pend_s = it; continue
    if not isinstance(it, list) and it.kind == "dma":
        assert gi < 12
        extra.setdefault(gi // 3, []).append((gi % 3, [pend_s, it] if pend_s else it, 1)); pend_s = []
        gi += 1
    else:
        extra.setdefault(8 + 2 * gj, []).append((1, it, 1)); gj += 1
if WQC == 2: extra.setdefault(int(os.environ.get("WQG", "70")), []).append((1, wqs, 1))
C0 = -2.0 * math.sqrt(2.0 / math.pi) * math.log2(math.e); C1 = C0 * 0.044715
vc0, vc1 = V(40), V(41)
gel = [valu("v_mov_b32", vc0, hx(f2u(C0))), valu("v_mov_b32", vc1, hx(f2u(C1)))]
hst = []
tb = 0
for i in range(2):
    for qb in range(4):
        pk = V(96 + 4 * tb, 4); tb += 1
        for b in range(2):
            u = 2 * i + b
            T = [V(64 + 16 * b + k) for k in range(16)]
            G_, U_, X_ = T[0:4], T[4:8], T[8:12]
            ga = lambda r: A((u * 4 + qb) * 4 + r); ua = lambda r: A(((4 + u) * 4 + qb) * 4 + r)
            for r in range(4): gel.append(valu("v_accvgpr_read_b32", G_[r], ga(r)))
            for r in range(4): gel.append(valu("v_accvgpr_read_b32", U_[r], ua(r)))
            for r in range(4): gel.append(valu("v_mul_f32", X_[r], G_[r], G_[r]))
            for r in range(4): gel.append(valu("v_fma_f32", X_[r], X_[r], vc1, vc0))
            for r in range(4): gel.append(valu("v_mul_f32", X_[r], X_[r], G_[r]))
            for r in range(4): gel.append(valu("v_exp_f32", X_[r], X_[r]))
            for r in range(4): gel.append(valu("v_mul_f32", G_[r], G_[r], U_[r]))
            for r in range(4): gel.append(valu("v_add_f32", X_[r], "1.0", X_[r]))
            for r in range(4): gel.append(valu("v_rcp_f32", X_[r], X_[r]))
            gel.append(nop(0))
            for r in range(4): gel.append(valu("v_mul_f32", G_[r], G_[r], X_[r]))
            for k in range(2): gel.append(valu("v_cvt_pk_bf16_f32", pk[2 * b + k], G_[2 * k], G_[2 * k + 1]))
        st = bstore(pk, v_lz[qb >> 1] if W3Z else v_lin, S_H, s_h1 if i else s_h0, off=qb * 1024, mod="sc1")
        hst.append(st)
class Stamp:
    def __call__(self): stamp(); return []
if STAMP: extra.setdefault(128, []).append((0, Stamp(), 0))
if STAMP == 6:
    for g_ in (0, 8, 16, 24, 32, 48, 64, 96): extra.setdefault(g_, []).append((0, Stamp(), 0))
class Diag3:
    def __call__(self): diag(3); return []
if DIAG == 3:
    for g_ in (32, 128, 192): extra.setdefault(g_, []).append((0, Diag3(), 0))
class Grp:
    kind = "salu"
    def __init__(self, l): self.l = l
    def __call__(self):
        for x in self.l:
            if x.kind == "label": em.out.append(x)
            else: e(x)
        return []
def group_scc(items):
    out = []
    for it in items:
        if out and ("scc" in it.rd or it.kind == "label"):
            p = out.pop(); out.append(Grp((p.l if isinstance(p, Grp) else [p]) + [it]))
        else: out.append(it)
    return out
s_pf = [S(24, 2), S(26, 2), S(28, 2), S(30, 2)]
s_pfH = s_pair2
s_fo = S(3)
QS = math.log2(math.e) / math.sqrt(128.0)
vqs = V(42, 2); vqw = V(44)
save = em.out; em.out = []; spend = em.pend; em.pend = {}
NWO = 4 if MAP2 else 2
for it in range(3):
    e(salu("s_add_u32", s_t0, s_w, 4 * it))
    e(salu("s_sub_u32", s_t1, s_t0, NWO)); e(salu("s_min_u32", s_t1, s_t1, 6)); e(salu("s_lshl_b32", s_t1, s_t1, 13))
    e(salu("s_lshr_b32", s_t2, S(2), 3)); e(salu("s_mul_i32", s_t2, s_t2, 57344, scc_w=False)); e(salu("s_add_u32", s_t1, s_t1, s_t2))
    e(salu("s_add_u32", s_pf[it][0], S_WD[0], s_t1)); e(salu("s_addc_u32", s_pf[it][1], S_WD[1], 0, scc_r=True))
    if it == 0:
        e(sx(s_t1)); e(salu("s_lshl_b32", s_t1, s_t1, 15 if MAP2 else 14)); e(salu("s_lshl_b32", s_t2, s_w, 13)); e(salu("s_add_u32", s_t1, s_t1, s_t2))
        e(salu("s_add_u32", s_pf[1][0], S_WO[0], s_t1)); e(salu("s_addc_u32", s_pf[1][1], S_WO[1], 0, scc_r=True))
        e(scmp("s_cmp_lt_u32", s_w, NWO)); e(salu("s_cselect_b64", s_pf[0], s_pf[1], s_pf[0], scc_w=False, scc_r=True))
e(raw("s_getpc_b64 %s" % s_pf[3], "salu", wr=[s_pf[3]]))
em.label("L_pc1")
e(salu("s_lshl_b32", s_t0, s_w, 13)); e(salu("s_add_u32", s_t0, s_t0, "L_tail-L_pc1")); e(salu("s_min_u32", s_t0, s_t0, "L_code_end-L_pc1-8192"))
e(salu("s_add_u32", s_t1, s_t0, (1 if MAP2 else 3) * 8192)); e(salu("s_min_u32", s_t1, s_t1, "L_code_end-L_pc1-8192"))
e(salu("s_add_u32", s_pfH[0], s_pf[3][0], s_t1)); e(salu("s_addc_u32", s_pfH[1], s_pf[3][1], 0, scc_r=True))
e(scmp("s_cmp_lt_u32", s_w, 3 if MAP2 else 1)); e(salu("s_cselect_b64", s_pf[2], s_pf[2], s_pfH, scc_w=False, scc_r=True))
e(salu("s_add_u32", s_pf[3][0], s_pf[3][0], s_t0)); e(salu("s_addc_u32", s_pf[3][1], s_pf[3][1], 0, scc_r=True))
e(salu("s_lshl_b32", s_t0, s_cg, 2)); e(salu("s_add_u32", s_t0, s_t0, s_w)); e(salu("s_mul_i32", s_t0, s_t0, 7168, scc_w=False)); e(salu("s_min_u32", s_t0, s_t0, 229376 - 8192))
e(salu("s_add_u32", s_pfH[0], S_HC[0], s_t0)); e(salu("s_addc_u32", s_pfH[1], S_HC[1], 0, scc_r=True))
e(salu("s_lshl_b32", s_fo, s_cq, 3))
vx, vy, vz = V(45), V(46), V(47)
e(salu("s_lshl_b32", s_t1, s_w, 8))
pf_part = len(em.out)
dma_voffs(v_wo, 1024, s_t1, True)
e(salu("s_mul_i32", s_wdd, s_w, 448 * 1024 - 256, scc_w=False)); e(salu("s_lshl_b32", s_t3, s_cg, 7)); e(salu("s_add_u32", s_wdd, s_wdd, s_t3))
e(valu("v_mov_b32", vqs[0], hx(f2u(QS))))
e(valu("v_and_b32", vx, 15, v_lane)); e(valu("v_bfe_u32", vqw, v_lane, 5, 1)); e(valu("v_lshl_add_u32", vx, vqw, 4, vx)); e(valu("v_lshlrev_b32", vx, 4, vx))
e(valu("v_bfe_u32", vqw, v_lane, 4, 1)); e(valu("v_lshl_add_u32", vqw, vqw, 3, vx))
e(salu("s_lshl_b32", s_t1, s_w, 14)); e(valu("v_add_u32", vqw, s_t1, vqw))
for i in range(16): e(valu("v_accvgpr_write_b32", a_L[i], 0))
midset = group_scc(em.out[pf_part - 1:]) if ORD else group_scc(em.out)
pfset = group_scc(em.out[:pf_part - 1]); em.out = save; em.pend = spend
qconv = []
if ORD:
    QS_ = V(42)
    for ds in range(4):
        for q2 in range(2):
            T = [[V(64 + 16 * (q2 & 1) + 8 * j + k) for k in range(8)] for j in range(2)]
            qs = [2 * q2, 2 * q2 + 1]
            for k in range(8):
                for j in range(2): qconv.append(valu("v_accvgpr_read_b32", T[j][k], A(((2 * ds + (k >> 2)) * 4 + qs[j]) * 4 + (k & 3))))
            for k in range(8):
                for j in range(2): qconv.append(valu("v_mul_f32", T[j][k], QS_, T[j][k]))
            for k in range(4):
                for j in range(2): qconv.append(valu("v_cvt_pk_bf16_f32", T[j][k], T[j][2 * k], T[j][2 * k + 1]))
            for sw in ("v_permlane32_swap_b32", "v_permlane16_swap_b32"):
                for k in range(2):
                    for j in range(2): qconv.append(valu(sw, T[j][k], T[j][k + 2]))
            for k in range(4):
                for j in range(2): qconv.append(valu("v_accvgpr_write_b32", A((8 * ds + qs[j]) * 4 + k), T[j][k]))
HST = int(os.environ.get("HST", "0"))
if HST == 0: GEL_END = 254
for k in range(8):
    if HST: extra.setdefault(248 + k, []).append((0, hst[k], 1))
run_stream(64, s1_dma, dtok, s1_acc, s1_B, extra, [Fill(midset, 109, 130), Fill(qconv, 131, 236), Fill(pfset, 237, 255)] if ORD else [Fill(midset, 109, 130), Fill(gel, 131, GEL_END)], early_dma=int(os.environ.get('ED1', '0')), w2=lambda g: int(os.environ.get('W2A', '1')) and g >= 130 and not ORD)
if DUMP == "qacc": dump_regs([v_acc[i] for i in range(128)])
stamp(); diag(3)

if not ORD:
    em.wait(lg0=True)
    e(raw("s_barrier"))
def signal(off_s_expr_add, lab, v_t):
    e(scmp("s_cmp_lg_u32", s_w, 0)); e(raw("s_cbranch_scc1 %s" % lab, rd=["scc"]))
    e(salu("s_lshl_b32", s_t0, s_qb, 2))
    if off_s_expr_add: e(salu("s_add_u32", s_t0, s_t0, off_s_expr_add))
    e(valu("v_mov_b32", v_t, 1))
    e(raw("s_mov_b64 exec, 1", "salu", wr=["exec"]))
    e(raw("buffer_atomic_add %s, off, %s, %s sc1" % (v_t, S_DBG, s_t0)))
    e(raw("s_mov_b64 exec, -1", "salu", wr=["exec"]))
    em.label(lab)
if ORD:
    if DRY:
        e(raw("s_getpc_b64 %s" % s_sub, "salu", wr=[s_sub])); em.label("L_pc2")
        e(salu("s_sub_u32", s_sub[0], s_sub[0], "L_pc2-L_gelu")); e(salu("s_subb_u32", s_sub[1], s_sub[1], 0, scc_r=True))
        e(nop(1)); e(raw("s_swappc_b64 %s, %s" % (s_ret, s_sub), "salu", rd=[s_sub], wr=[s_ret])); em.out.append(GeluMark())
    else: gelu_block()
for blk in range(8 if not ORD else 0):
    for qb in range(4):
        a_ = v_acc[((blk * 4 + qb) * 4, 4)]
        t = a_[(0, 2)]
        for k in range(2): e(valu("v_pk_mul_f32", a_[(2 * k, 2)], a_[(2 * k, 2)], vqs, mod="op_sel_hi:[1,0]"))
        for k in range(2): e(valu("v_cvt_pk_bf16_f32", t[k], a_[2 * k], a_[2 * k + 1]))
        e(dswrite("ds_write_b64", vqw, t, (qb * 4 + (blk >> 1)) * 1024 + (blk & 1) * 512))
for j in range(4): e(valu("v_add_u32", v_wd[j], s_wdd, v_wo[j]))
if not ORD: em.wait(lg0=True)
for f in range(16 if not ORD else 0): e(dsread("ds_read_b128", a_Q[(4 * f, 4)], v_wl, f * 1024))
e(scmp("s_cmp_eq_u32", s_retry, 1)); e(raw("s_cbranch_scc1 L_maxpass", rd=["scc"]))
em.label("L_att_start")
NZ0 = 32
for i in range(NZ0 if not ORD else 1): e(valu("v_mov_b64", v_acc[(2 * i, 2)], 0))
assert LSUM == 1 and LNM and not POI
e(valu("v_lshlrev_b32", V(3), 7, v_lane))
e(valu("v_and_b32", V(38), 7, v_lane)); e(valu("v_mov_b32", V(0), 0))
em.wait(vm=dtok[66], lg0=True)
e(raw("s_barrier"))
if DUMP == "q": dump_regs([a_Q[i] for i in range(64)])
stamp()

def Qf(qb, ds): return A((8 * ds + qb) * 4, 4) if ORD else a_Q[((qb * 4 + ds) * 4, 4)]
def Of(db, qb): return v_acc[((db * 4 + qb) * 4, 4)]
def fr(f): return a_ring[((f % 8) * 4, 4)]
def kslot(par): return 16384 if par == 0 else 0
def vslot(par): return 0 if par == 0 else 16384
def frag_reads(par, f):
    if f >= 32: par ^= 1; f -= 32
    d = fr(f)
    if f < 8 or 16 <= f < 24:
        kb = (f >> 2) if f < 8 else 2 + ((f - 16) >> 2)
        return [dsread("ds_read_b128", d, v_ka[f & 3], kslot(par) + kb * 4096)]
    ks2 = 0 if f < 16 else 1
    db = f & 7
    return [dsread("ds_read_b64_tr_b16", d[(2 * h, 2)], v_va[db], vslot(par) + ks2 * 8192 + h * 4096) for h in range(2)]
def read_sched(g):
    r = []
    if g + 3 < 24 or g >= 29: r.append(g + 3)
    if 19 <= g <= 26: r.append(g + 5)
    return r
def sm_val(g, k):
    if 7 <= g <= 22: b = 1; n = 2 * (g - 7) + k
    else: b = 0; n = 2 * ((g - 23) % 32) + k
    kb, qb, r = n >> 4, (n >> 2) & 3, n & 3
    return b, qb, kb, r
def sm_items(g):
    ex, ad = [], []
    for k in range(2):
        b, qb, kb, r = sm_val(g, k)
        x = v_S[b][qb * 8 + kb * 4 + r]
        l = (v_l1 if b else v_l0)[qb]
        ex.append(valu("v_exp_f32", x, x)); ad.append(valu("v_add_f32", l, l, x))
    b, qb, kb, r = sm_val((g - 1) % 32, 0)
    cv = valu("v_cvt_pk_bf16_f32", v_S[b][qb * 8 + kb * 2 + (r >> 1)], v_S[b][qb * 8 + kb * 4 + r], v_S[b][qb * 8 + kb * 4 + r + 1])
    return ex, ad, cv
def att_dma(par, g):
    if g >= 29: k = g - 29; sp = par
    elif g <= 4: k = g + 3; sp = par ^ 1
    else: return [], None
    sal = []
    if k == 0: sal = [salu("s_add_u32", "m0", s_m0b, 4 * 16384 + kslot(sp))]
    if k == 4: sal = [salu("s_add_u32", "m0", s_m0b, vslot(sp))]
    if k < 4: return sal, dma(v_kd[k], S_K, s_kK, k * 1024)
    return sal, dma(v_vd[k & 1], S_V, s_kV, (k - 4) * 1024)
SIDE_FIRST = 11
class Lbl:
    def __init__(self, n): self.n = n
    def __call__(self): em.label(self.n); return []
class LoopStamp:
    def __init__(self, k, par): self.k, self.par = k, par
    def __call__(self):
        k = self.k
        e(raw("s_memtime %s" % S(68 + 2 * k, 2), "other", wr=[S(68 + 2 * k, 2)]))
        if k == 2:
            e(raw("s_waitcnt lgkmcnt(0)", "wait")); em._retire(em.lgq, 0)
            for i in range(3): e(valu("v_writelane_b32", v_c, S(68 + 2 * i), i, rmw=True))
            e(salu("s_lshl_b32", S(74), S(2), 2)); e(salu("s_add_u32", S(74), S(74), s_w)); e(salu("s_lshl_b32", S(74), S(74), 4))
            e(salu("s_sub_u32", S(74), S(74), s_cnt)); e(salu("s_add_u32", S(74), S(74), 16)); e(salu("s_lshl_b32", S(74), S(74), 5))
            e(salu("s_add_u32", S(74), S(74), (1 << 20) + 16 * self.par))
            e(raw("s_mov_b64 exec, 7", "salu", wr=["exec"]))
            e(valu("v_lshlrev_b32", v_t, 2, v_lane))
            e(bstore(v_c, v_t, S_DMP, S(74), off=0))
            e(raw("s_mov_b64 exec, -1", "salu", wr=["exec"]))
            e(valu("v_lshlrev_b32", v_t, 7, v_lane))
        return []
v_tch, v_flag, v_fa = V(3), V(0), V(38)
xtok = []; lastdma = [None]
NITER = 14
s_po0, s_po1, s_poe = s_h0, s_h1, s_off
s_pfc = S(16, 2); s_kvt = S(18, 2); KVIT = int(os.environ.get('KVIT', '12'))
ROT = int(os.environ.get('ROT', '8'))
LQ = int(os.environ.get("LQ", "2"))
def plan_adds():
    nmem = {}
    for g in range(32):
        n = sum(1 if (f % 32 < 8 or 16 <= f % 32 < 24) else 2 for f in read_sched(g)) + (1 if (g >= 29 or g <= 4) else 0) + (1 if g in (13, 14) else 0)
        nmem[g] = n
    free = {}
    for g in range(32):
        n = nmem[g]; a1 = 2 if n > 2 else min(n, 1); a3 = n - a1
        if a1 < 2: a1 += 1
        else: a3 += 1
        if g == 0: a1 += 1
        free[(g, 1)] = max(0, 2 - a1); free[(g, 3)] = max(0, 2 - a3)
        free[(g, 4)] = 2 if ((g & 8) and (g & 1) and ((g & 7) >> 1) < LQ) else 0
    jobs = []
    for g in range(7, 39):
        for k in range(2):
            b, qb, kb, r = sm_val(g % 32, k)
            if qb < LQ: continue
            early = 4 * g + (1 if k == 0 else 3)
            idx = kb * 4 + r
            if idx < 4:
                gsrc = g + 1 if idx == 0 else (g + 2 if idx == 1 else (g + 8 if idx == 2 else g + 9))
                dead = 4 * gsrc
            else: dead = 4 * (g + 11)
            if b == 1: dead = min(dead, 4 * 30)
            jobs.append((dead, early, b, qb, idx))
    plan = {}
    for dead, early, b, qb, idx in sorted(jobs):
        for t in range(early, dead):
            g, q = t >> 2, t & 3
            for gp in ([1] if q == 1 else ([3, 4] if q == 3 else [])):
                if free[(g % 32, gp)] > 0:
                    free[(g % 32, gp)] -= 1; plan.setdefault((g % 32, gp), []).append((b, qb, idx, g)); break
            else: continue
            break
        else:
            g = early >> 2; plan.setdefault((g % 32, early & 3), []).append((b, qb, idx, g)); print("; add overflow", g, file=sys.stderr)
    return plan
ADDS = plan_adds() if LSUM == 3 else {}
def add_items(g, gp, fin, pro):
    out = []
    for b, qb, idx, gabs in ADDS.get((g, gp), []):
        if fin and b == 0 and g >= 23: continue
        if pro and b == 1: continue
        out.append(valu("v_add_f32", v_l1[qb], v_l1[qb], v_S[b][qb * 8 + idx]))
    return out
ftok = {}
def att_group(par, g, do_mfma=True, do_mem=True, do_cvt=True, last=False, pp=None, xmem=(), xsal=(), xvalu=None):
    ex, ad, cv = sm_items(g)
    mem = []
    sal = []
    fin = (pp == 3)
    d = None
    if do_mem:
        if fin: sched = ([g + 3] if g + 3 < 16 else []) + ([g + 11] if 13 <= g <= 20 else [])
        else: sched = read_sched(g)
        for f in sched:
            r = frag_reads(par, f); mem += r; ftok[f % 32] = r
        if pp is None or (g <= 4 and pp <= 2) or (g >= 29 and pp <= 1):
            sal, d = att_dma(par, g)
            if d is not None: mem.append(d)
    loop = do_mem and pp is None
    post0 = []
    if loop and par == 0:
        if g == 14: mem.append(I("global_load_dword %s, %s, %s" % (v_c, v_tch, s_pfc), "vmem", rd=v_tch.regs() + s_pfc.regs(), wr=[]))
        if g == 13: mem.append(I("buffer_load_ubyte %s, %s, %s, %s offen sc1" % (v_flag, v_fa, S_DBG, s_t2), "vmem", rd=S_DBG.regs() + s_t2.regs() + v_fa.regs(), wr=[]))
        if g == 8: sal = sal + [scmp("s_cmp_le_u32", s_cnt, ROT)]
        if g in (9, 10, 11, 12):
            q_ = [s_pfc] + s_pf
            sal = sal + [salu("s_cselect_b64", q_[g - 9], q_[g - 8], q_[g - 9], scc_w=False, scc_r=True)]
        if g == 0: post0 = [valu("v_cmp_eq_u32", "vcc", 1, v_flag)]
        if g == 2: sal = sal + [raw("s_cmp_eq_u32 vcc_lo, -1", "salu", rd=["vcc"], wr=["scc"])]
        if g == 3: sal = sal + [salu("s_cselect_b32", s_t0, s_cnt, -1, scc_w=False, scc_r=True)]
        if g == 4: sal = sal + [scmp("s_cmp_eq_u32", s_t0, ROT - 1)]
        if g == 5: sal = sal + [salu("s_cselect_b64", s_pf[3], s_pfH, s_pf[3], scc_w=False, scc_r=True)]
        if g == 15: sal = sal + [salu("s_cselect_b64", s_pf[3], S_K[(0, 2)], s_pf[3], scc_w=False, scc_r=True)]
        if g == 20: sal = sal + [scmp("s_cmp_eq_u32", s_cnt, KVIT + 1)]
        if g == 21: sal = sal + [salu("s_cselect_b64", s_pfc, s_kvt, S_K[(0, 2)], scc_w=False, scc_r=True)]
        if g == 13: sal = sal + [salu("s_cselect_b32", s_t2, s_fo, 256, scc_w=False, scc_r=True)]
        if g == 18: sal = sal + [scmp("s_cmp_eq_u32", s_cnt, s_sig)]
        if g == 19: sal = sal + [raw("s_cbranch_scc1 L_sigH_side", rd=["scc"]), Lbl("L_sigH_ret")]
    if loop and POI and par == 0 and do_mfma:
        if g == 22: sal = sal + [salu("s_add_u32", s_po1, s_po0, 65536)]
        if g == 16: mem.append(bstore(a_poi, v_lin, S_SP, s_po0, mod="sc1"))
        if g == 27: mem.append(bstore(a_poi, v_lin, S_SP, s_po1, mod="sc1"))
        if g == 23: sal = sal + [salu("s_add_u32", s_po0, s_po0, 1024)]
        if g == 24: sal = sal + [salu("s_min_u32", s_po0, s_po0, s_poe)]
    if do_mem and g == 4 and d is not None: lastdma[0] = d
    mem += list(xmem); sal = sal + list(xsal)
    gaps = [[], [], [], []]
    if g == 29 and do_mem and not fin:
        if STAMP == 2 and loop and do_mfma: gaps[0] += [LoopStamp(0, par)]
        gaps[0] += [Wait(lg0=True) if not do_mfma else (Wait(lg0=True, vm0=True) if (pp is None and par == 1) else Wait(lg0=True, vm=lastdma[0]))]
        if STAMP == 2 and loop and do_mfma: gaps[0] += [LoopStamp(1, par)]
        gaps[0] += [raw("s_barrier")]
        if STAMP == 2 and loop and do_mfma: gaps[0] += [LoopStamp(2, par)]
    gaps[0] += sal
    if g == 6 and do_mem and (pp is None or pp <= 1): gaps[0].append(salu("s_add_u32", s_kK, s_kK, 16384))
    if g == 7 and do_mem and (pp is None or pp <= 1): gaps[0].append(salu("s_add_u32", s_kV, s_kV, 16384))
    sm = not (fin and g >= 23)
    if fin and g > 23: do_cvt = False
    if fin and 16 <= g < 24: do_mfma = False
    if LSUM:
        if sm: gaps[0].append(ex[0])
        gaps[1] += mem[0:2] if len(mem) > 2 else mem[0:1]
        gaps[1] += post0
        nf = (g + 1) % 32
        if do_mem and not (fin and (16 <= nf < 24 or nf == 0)): gaps[2].append(Wait(lg=ftok.get(nf)))
        if last and g == 30: gaps[2].append(salu("s_sub_u32", s_cnt, s_cnt, 1))
        if sm: gaps[2].append(ex[1])
        gaps[3] += mem[2:] if len(mem) > 2 else mem[1:]
        pro = not do_mfma and not fin
        gaps[1] += add_items(g, 1, fin, pro)
        if do_cvt: gaps[1 if len([x for x in gaps[1] if x not in ()]) - len(add_items(g, 1, fin, pro)) < 2 else 3].append(cv)
        gaps[3] += add_items(g, 3, fin, pro)
    else:
      gaps[0] += mem[2:3]
      if sm: gaps[0].append(ex[0])
      if len(mem) > 0: gaps[1].append(mem[0])
      if len(mem) == 0 and do_cvt: gaps[1].append(cv)
      if sm: gaps[1].append(ad[0])
      gaps[1] += post0
      nf = (g + 1) % 32
      if do_mem and not (fin and (16 <= nf < 24 or nf == 0)): gaps[2].append(Wait(lg=ftok.get(nf)))
      if last and g == 30: gaps[2].append(salu("s_sub_u32", s_cnt, s_cnt, 1))
      gaps[2] += mem[3:]
      if sm: gaps[2].append(ex[1])
      if len(mem) > 1: gaps[3].append(mem[1])
      if len(mem) > 0 and do_cvt: gaps[3].append(cv)
      if sm: gaps[3].append(ad[1])
    for qb in range(4):
        if do_mfma:
            if g < 8 or 16 <= g < 24:
                b = 1 if g < 8 else 0
                kb, ds = (g >> 2) & 1, g & 3
                d = v_S[b][(qb * 8 + kb * 4, 4)]
                e(mfma(d, fr(g), Qf(qb, ds), v_negm[(qb * 4, 4)] if ds == 0 else d))
            else:
                b = 0 if g < 16 else 1
                qq = 3 - qb if (SNAKE and g & 1) else qb
                if PA: e(mfma(Of(g & 7, qq), v_S[b][(qq * 8, 4)], fr(g), Of(g & 7, qq)))
                else: e(mfma(Of(g & 7, qq), fr(g), v_S[b][(qq * 8, 4)], Of(g & 7, qq)))
        else:
            if (qb & 1) and not gaps[qb][:1] or ((qb & 1) and getattr(gaps[qb][0], "kind", "") in ("valu",)): e(nop(0))
        for it in gaps[qb]: e(it)
        if xvalu is not None:
            c = 2 - sum(1 for it in gaps[qb] if getattr(it, "kind", "") in ("lds", "vmem", "dma", "valu"))
            while xvalu and c > 0:
                it = xvalu.pop(0); e(it); c -= 2 if it.kind == "trans" else 1
    if LSUM and do_mfma and (g & 8):
        k = g & 7
        lq = None if (fin and g >= 24) else (k >> 1 if k & 1 else None)
        if lq is not None and (LSUM != 3 or lq < LQ): e(mfma(a_L[(4 * lq, 4)], a_ones, v_S[0 if g < 16 else 1][(lq * 8, 4)], a_L[(4 * lq, 4)]))
    if LSUM == 1 and fin and g == 23:
        e(nop(1))
        for lq in range(4): e(mfma(a_L[(4 * lq, 4)], a_ones, v_S[1][(lq * 8, 4)], a_L[(4 * lq, 4)]))
    if LSUM == 3: e(add_items(g, 4, fin, not do_mfma and not fin))

pr = [dsread("ds_read_b128", fr(f), v_ka[f & 3], (f >> 2) * 4096) for f in range(8)]
for r in pr: e(r)
zr = [valu("v_mov_b32", v_acc[i], 0) for i in (range(2, 64) if ORD else range(2 * NZ0, 128))]
for f in range(8):
    em.wait(lg=pr[f])
    for qb in range(4):
        d = v_S[0][(qb * 8 + (f >> 2) * 4, 4)]
        e(mfma(d, fr(f), Qf(qb, f & 3), 0 if (f & 3) == 0 else d))
        if qb == 0 and HST == 0: e(hst[f])
        if qb == 2 and f == 0:
            e(raw("s_mov_b64 exec, 3", "salu", wr=["exec"])); e(bstore(v_acc[0], V(3), S_FLZ, s_myfl, mod="sc1")); e(raw("s_mov_b64 exec, -1", "salu", wr=["exec"]))
        for _ in range(2):
            if zr: e(zr.pop(0))
assert not zr
e(salu("s_mov_b32", s_kK, 16384 + 8192, scc_w=False)); e(salu("s_mov_b32", s_kV, 16384, scc_w=False)); e(salu("s_mov_b32", s_cnt, NITER, scc_w=False))
e(scmp("s_cmp_lg_u32", s_retry, 0)); e(raw("s_cbranch_scc1 L_have_max2", rd=["scc"]))
e(nop(3))
mx = [V(97 + 4 * i) for i in range(4)]; mt = [V(98 + 4 * i) for i in range(4)]
for qb in range(4): e(valu("v_max3_f32", mx[qb], v_S[0][qb * 8], v_S[0][qb * 8 + 1], v_S[0][qb * 8 + 2]))
for qb in range(4): e(valu("v_max3_f32", mx[qb], mx[qb], v_S[0][qb * 8 + 3], v_S[0][qb * 8 + 4]))
for qb in range(4): e(valu("v_max3_f32", mx[qb], mx[qb], v_S[0][qb * 8 + 5], v_S[0][qb * 8 + 6]))
for qb in range(4): e(valu("v_max_f32", mx[qb], mx[qb], v_S[0][qb * 8 + 7]))
red4("v_max_f32", mx, mt)
for qb in range(4):
    for k in range(4): e(valu("v_sub_f32", v_negm[qb * 4 + k], 0, mx[qb]))
em.label("L_have_max2")
e(nop(3))
for qb in range(4):
    for k in range(8): e(valu("v_add_f32", v_S[0][qb * 8 + k], v_S[0][qb * 8 + k], v_negm[qb * 4]))
for g in range(23, 29): att_group(1, g, do_mfma=False, do_mem=False, do_cvt=(g != 23))
stamp(); diag()
e(salu("s_and_b32", s_t0, s_qb, 3)); e(salu("s_sub_u32", s_t0, NITER - 1, s_t0))
e(scmp("s_cmp_eq_u32", s_w, 0)); e(salu("s_cselect_b32", s_sig, s_t0, -1, scc_w=False, scc_r=True))
e(scmp("s_cmp_eq_u32", s_retry, 0)); e(salu("s_cselect_b32", s_sig, s_sig, -1, scc_w=False, scc_r=True))
e(salu("s_mov_b64", s_pfc, S_K[(0, 2)], scc_w=False))
if POI:
    e(salu("s_lshl_b32", s_po0, s_w, 4)); e(salu("s_add_u32", s_po0, s_po0, s_g)); e(salu("s_lshl_b32", s_po0, s_po0, 13))
    e(salu("s_add_u32", s_poe, s_po0, 7168))
e(scmp("s_cmp_lt_u32", s_w, 2)); e(salu("s_cselect_b64", s_kvt, S_K[(0, 2)], S_V[(0, 2)], scc_w=False, scc_r=True))
e(salu("s_and_b32", s_t0, s_w, 1)); e(sx(s_t1)); e(salu("s_lshl_b32", s_t1, s_t1, 1)); e(salu("s_add_u32", s_t0, s_t0, s_t1)); e(salu("s_lshl_b32", s_t0, s_t0, 13))
if MAP2: e(salu("s_add_u32", s_t0, s_t0, 262144))
e(salu("s_add_u32", s_kvt[0], s_kvt[0], s_t0)); e(salu("s_addc_u32", s_kvt[1], s_kvt[1], 0, scc_r=True))
for g in range(29, 32): att_group(1, g, do_mfma=False, do_mem=True)
pro_end = len(em.out)
em.directive(".p2align 6")
em.label("L_att_loop")
def body():
    for par in range(2):
        for g in range(32): att_group(par, g, last=(par == 1))
b0 = len(em.out)
body()
b1 = len(em.out)
e(scmp("s_cmp_lg_u32", s_cnt, 0)); e(raw("s_cbranch_scc1 L_att_loop", rd=["scc"]))
b2 = len(em.out)
body()
second = em.out[b2:]; del em.out[b2:]
assert [i.text for i in second] == [i.text for i in em.out[b0:b1]], "loop not in steady state"
loop_probs = check_hazards(em.out[b1 - 40:b2] + second[:60], "loop-wrap")

em.label("L_tail")
v_ring2 = V(64, 32); v_B2 = V(96, 32)
QH = int(os.environ.get('QH', '0'))
XY = int(os.environ.get('XY', '0'))
NF1 = int(os.environ.get('NF1', '8'))
def hreg(kk, qb):
    if QH and 8 <= kk < 12: return A(16 * (kk - 8) + qb * 4, 4)
    if QH and kk >= 12: kk -= 4
    if kk >= 8: kk -= 8
    if ORD and kk < 4: return A(((2 * kk + 1) * 4 + qb) * 4, 4)
    return A((64 + 16 * kk if kk < 4 else 160 + 16 * (kk - 4)) + qb * 4, 4)
def Facc(u, qb):
    t = u * 4 + qb
    return A(128 + 4 * t if t < 8 else 224 + 4 * (t - 8), 4)
POS2 = [5, 0, 2, 3, 4, 1]
NB = int(os.environ.get("NB", "4"))
def pos2(m): return 6 + m if m < NB else POS2[(m - NB) % 6]
def kind2(m):
    if m < NF1: return ("F", m)
    if m < NF1 + 32: return ("O", (m - NF1) & 15, (m - NF1) >> 4) if XY else ("O", (m - NF1) >> 1, (m - NF1) & 1)
    return ("F", m - 32)
def s2_dma(m):
    if m >= 46: return None
    p = pos2(m); k = kind2(m)
    if k[0] == "O":
        return [m0set(p), salu("s_mov_b32", s_off, k[1] * 32 * 1024 + 128 * k[2], scc_w=False)], [dma(v_wo[j], S_WO, s_off, j * 1024) for j in range(4)]
    return [m0set(p), salu("s_mov_b32", s_off, k[1] * 32 * 1024, scc_w=False)], [dma(v_wd[j], S_WD, s_off, j * 1024) for j in range(4)]
dtok2 = {}; s2pre = {}
for m in range(6 + NB):
    s2pre[m] = s2_dma(m); dtok2[m] = s2pre[m][1][3]
class Seq:
    kind = "vmem"
    def __init__(self, l): self.l = l
    def __call__(self): return self.l
hld = {}; htok = {}
for kk in range(14):
    hld[kk] = [bload(hreg(kk, qb), v_lin, S_HC, s_hl, off=qb * 1024, mod="sc1") for qb in range(4)]
    htok[kk] = hld[kk][3]
e(salu("s_mov_b32", s_cnt, 0, scc_w=False))
em.label("L_pollH")
e(valu("v_cmp_ne_u32", "vcc", 1, v_flag)); e(salu("s_mul_i32", s_hb, s_w, 14 * 4096, scc_w=False)); e(nop(1))
e(raw("s_cbranch_vccz L_pollH_done", rd=["vcc"]))
e(salu("s_add_u32", s_cnt, s_cnt, 1)); e(scmp("s_cmp_ge_u32", s_cnt, 50000)); e(raw("s_cbranch_scc1 L_pollH_done", rd=["scc"]))
e(raw("s_sleep 4")); e(raw("buffer_load_ubyte %s, %s, %s, %s offen sc1" % (v_flag, v_fa, S_DBG, s_fo))); e(raw("s_waitcnt vmcnt(0)")); e(raw("s_branch L_pollH"))
em.label("L_pollH_done")
xaddr(V(39), V(0))
assert LSUM == 1
xsl = [bload(V(40 + 2 * u, 2), V(39), S_XC, 0, off=32 * u, n=2) for u in range(4)]
NH0 = 32
hsl = sorted([(pp, g) for pp in range(3) for g in (5, 13, 14, 15, 16, 17, 18, 27, 28, 9, 11)])[:NH0]
if QH:
    hsl += [(3, g) for g in list(range(8, 16)) + list(range(24, 32))]; NH0 = 48
px = {}
for k, key in enumerate(hsl):
    px.setdefault(key, ([], []))
    px[key][0].append(hld[k >> 2][k & 3])
    if k & 3 == 0: px[key][1].append(salu("s_add_u32", s_hl, s_hb, (k >> 2) * 4096))
for u in range(4): px.setdefault((int(os.environ.get('XSP', '3')), int(os.environ.get('XSG0', '13')) + u), ([], []))[0].append(xsl[u])
wsl = [(pp, g) for pp in range(2) for g in (6, 7, 8, 10, 12, 21, 22, 23)][:4 * NB] + [(2, 29), (2, 30), (2, 31), (3, 0), (3, 1), (3, 2), (3, 3), (3, 4)] + ([(2, g) for g in (6, 7, 8, 10, 12, 21, 22, 23)] if QH else [(3, g) for g in range(5, 13)]) + [(3, g) for g in range(24, 32)]
for k, key in enumerate(wsl):
    px.setdefault(key, ([], []))
    m, j = k >> 2, k & 3
    px[key][0].append(s2pre[m][1][j])
    if j == 0: px[key][1].extend(s2pre[m][0])
px[(3, 24)][1][:0] = [Wait(lg0=True), raw("s_barrier")]
lt = [V(48 + i) for i in range(4)]
NPK = int(os.environ.get("NPK", "0"))
rinv = [V(52 + i) for i in range(4)]
vxf = V(40, 8)
save = em.out; em.out = []
for qb in range(4): e(valu("v_accvgpr_read_b32", lt[qb], a_L[4 * qb]))
e(valu("v_add_f32", V(60), lt[0], lt[1])); e(valu("v_add_f32", V(61), lt[2], lt[3])); e(valu("v_add_f32", V(60), V(60), V(61)))
for qb in range(4): e(valu("v_rcp_f32", rinv[qb], lt[qb]))
e(valu("v_cmp_nge_f32", "vcc", hx(f2u(2.0 ** 30)), V(60)))
v_tr2 = V(56, 4); v_ow = V(62)
for u in range(4): e(valu("v_subrev_u32", v_tr2[u], RING, v_tr[0][u]))
if PA:
    def rT(qb, r): return V(100 + 8 * qb + r)
    v_l8 = V(63)
    vcap = em.lgq, em.pend; em.lgq, em.pend = [], {}
    e(valu("v_and_b32", V(61), 48, v_lane))
    for qb in range(4):
        for r in range(4): e(I("ds_bpermute_b32 %s, %s, %s offset:%d" % (rT(qb, r), V(61), rinv[qb], 4 * r), "lds", rd=["v61"] + rinv[qb].regs(), wr=rT(qb, r).regs()))
    em.lgq, em.pend = vcap
    e(valu("v_lshrrev_b32", v_l8, 4, v_lane)); e(valu("v_bfe_u32", V(60), v_lane, 2, 2)); e(valu("v_xor_b32", V(60), V(60), v_l8))
    e(valu("v_and_b32", v_ow, 15, v_lane)); e(valu("v_lshlrev_b32", v_ow, 5, v_ow)); e(valu("v_lshl_add_u32", v_ow, V(60), 3, v_ow))
    e(valu("v_subrev_u32", v_ow, RING, v_ow)); e(valu("v_add_u32", v_ow, s_m0b, v_ow))
    e(valu("v_xor_b32", v_l8, v_l8, v_lane)); e(valu("v_lshlrev_b32", v_l8, 3, v_l8))
else:
    e(valu("v_subrev_u32", v_ow, RING, v_lin)); e(valu("v_add_u32", v_ow, s_m0b, v_ow))
lred = em.out; em.out = save
for pp in range(4):
    for g in range(32):
        if STAMP == 4 and g in (0, 16): stamp()
        xm, xs = px.get((pp, g), ([], []))
        att_group(pp & 1, g, pp=pp, xmem=xm, xsal=xs, xvalu=(lred if (pp == 3 and g >= (26 if LSUM else 24)) else None))
for it in lred: e(it)
diag(); stamp()
if DUMP == "o":
    e(nop(7))
    for db in range(8):
        for qb in range(4):
            for k in range(4): e(valu("v_mul_f32", Of(db, qb)[k], Of(db, qb)[k], rinv[qb]))
    dump_regs([v_acc[i] for i in range(128)])

vm_ = V(60); vma = V(61)
class Mark:
    kind = "salu"
    def __init__(self, t): self.t = t
    def __call__(self):
        e(raw("s_cbranch_vccz L_nomark", rd=["vcc"])); e(valu("v_mov_b32", self.t, hx(MARK))); em.label("L_nomark"); return []
norm = [valu("v_and_b32", vma, 3, v_lane), valu("v_lshlrev_b32", vma, 12, vma)]
ow = []; ncv = []; ow2 = []
assert not (PA and (NB == 0 or NPK))
NPK_N = int(os.environ.get("NPK_N", "16")) if NPK else 0
for i in range(4):
    for qb in range(4):
        t = Of(2 * i, qb)
        for b in range(2):
            if i * 4 + qb < NPK_N:
                rp = V(52 + (qb & ~1), 2)
                for k in range(2): norm.append(valu("v_pk_mul_f32", Of(2 * i + b, qb)[(2 * k, 2)], Of(2 * i + b, qb)[(2 * k, 2)], rp, mod="op_sel:[0,%d] op_sel_hi:[1,%d]" % (qb & 1, qb & 1)))
            else:
                for k in range(4): norm.append(valu("v_mul_f32", Of(2 * i + b, qb)[k], Of(2 * i + b, qb)[k], rT(qb, k) if PA else rinv[qb]))
        for b in range(2):
            o = Of(2 * i + b, qb)
            for k in range(2): norm.append(valu("v_cvt_pk_bf16_f32", t[2 * b + k], o[2 * k], o[2 * k + 1]))
        ncv.append(norm[-1])
        if PA: ow2.append(dswrite("ds_write_b64", v_ow, t[(2, 2)], i * 16384 + qb * 1024 + 512))
        if i == 0 and qb == 0: norm.append(Mark(t[0]))
        ow.append(dswrite("ds_write_b64", v_ow, t[(0, 2)], i * 16384 + qb * 1024) if PA else dswrite("ds_write_b128", v_ow, t, i * 16384 + qb * 1024))
        if NB == 0: norm.append(ow[-1])
if NPK_N:
    cut = norm.index(ncv[NPK_N - 1]) + 1
    e(nop(4))
    for it in norm[:cut]: e(it)
    norm = norm[cut:]
class ChkNorm:
    def __init__(self, k): self.k = k
    def __call__(self):
        assert ncv[self.k].tok, "O write %d scheduled before its data" % self.k
        return [ow[self.k], ow2[self.k]] if PA else ow[self.k]
G0 = 4 * NF1
G1 = G0 + 128
mk = dsread("ds_read_b32", vm_, vma, 0)
class OBar:
    def __call__(self):
        assert all(w.tok for w in ow)
        em.wait(lg0=True); e(raw("s_barrier")); stamp(); e(mk); return []
class FbCheck:
    def __call__(self):
        em.wait(lg=mk)
        e(valu("v_cmp_eq_u32", "vcc", hx(MARK), vm_))
        e(scmp("s_cmp_lg_u32", s_retry, 0)); e(raw("s_cbranch_scc1 L_nofb", rd=["scc"]))
        e(nop(1))
        e(raw("s_cbranch_vccnz L_fallback", rd=["vcc"]))
        em.label("L_nofb")
        return []
def s2_acc(m, u, qb):
    k = kind2(m)
    if k[0] == "O": return v_acc[(((k[2] * 4 + u) * 4 + qb) * 4, 4)], k[1] == 0
    return Facc(u, qb), k[1] == 0
def s2_B(m, qb):
    k = kind2(m)
    if k[0] == "O": return v_B2[((k[1] & 1) * 16 + qb * 4, 4)]
    return hreg(k[1], qb)
def oread(s, qb):
    d = v_B2[((s & 1) * 16 + qb * 4, 4)]; of = (s & 3) * 16384 + (s >> 2) * 4096 + qb * 1024
    if PA: return [dsread("ds_read_b64_tr_b16", d[(2 * b, 2)], v_l8, of + 512 * b) for b in range(2)]
    return dsread("ds_read_b128", d, v_lin, of)
extra = {}
if NB:
    OW0 = int(os.environ.get("OW0", "11")); OWN = int(os.environ.get("OWN", "1"))
    for k in range(16):
        gg = OW0 + k // OWN
        assert (k >> 2) >= NB or gg > 4 * (k >> 2) + 3
        extra.setdefault(gg, []).append((2 + (k % OWN) % 2, ChkNorm(k), 1))
GB = G0 - int(os.environ.get("OBAR", "3"))
extra.setdefault(GB, []).append((0, OBar(), 0))
r0 = [oread(0, qb) for qb in range(4)]
for qb in range(4): extra.setdefault(GB + (qb >> 1), []).append((1 + (qb & 1) if qb < 2 else (qb & 1) * 2, r0[qb], 1))
extra.setdefault(G0 - 1, []).append((2, [Wait(lg=([x for y in r0 for x in y] if PA else r0)), FbCheck()], 0))
if XY:
    for mm in range(1, 32):
        rr = [oread(mm & 15, qb) for qb in range(4)]
        for qb in range(4): extra.setdefault(G0 + 4 * (mm - 1) + (qb >> 1), []).append((2 + (qb & 1), rr[qb], 1))
        extra.setdefault(G0 + 4 * mm - 1, []).append((2, Wait(lg=([x for y in rr for x in y] if PA else rr)), 0))
else:
    for s_ in range(1, 16):
        for qb in range(4): extra.setdefault(G0 + 8 * (s_ - 1) + 1 + qb, []).append((2, oread(s_, qb), 1))
class LateWait:
    def __init__(self, f): self.f = f
    def __call__(self): return Wait(vm=self.f())
vxa = V(48); vpoll = V(49); vfw = V(50)
vx, vy, vz = V(59), V(57), V(58)
save = em.out; em.out = []
xaddr(vxa, vx)
e(valu("v_and_b32", V(51), 7, v_lane)); e(valu("v_lshlrev_b32", V(51), 2, V(51)))
e(valu("v_add_u32", vfw, s_m0b, v_lin)); e(salu("s_lshl_b32", s_t0, s_w, 14)); e(salu("s_add_u32", s_t0, s_t0, RING)); e(valu("v_add_u32", V(55), s_t0, v_lin))
e(salu("s_lshl_b32", s_t3, s_w, 4)); e(salu("s_add_u32", s_t3, s_t3, s_g)); e(salu("s_lshl_b32", s_t3, s_t3, 13))
early = em.out; em.out = save
extra.setdefault(-1, []).append((0, LateWait(lambda: htok[0]), 0))
for kk in range(1, 14):
    g_ = 4 * kk if kk < NF1 else 4 * (kk + 32)
    extra.setdefault(g_ - 1, []).append((2, LateWait(lambda kk=kk: htok[kk]), 0))
HG0 = int(os.environ.get("HG0", "5")); HGS = int(os.environ.get("HGS", "1"))
for k in range(NH0, 56):
    prev = (k >> 2) - (12 if QH else 8)
    gfree = (4 * prev if prev < NF1 else 4 * (prev + 32)) + 5 + (k & 3)
    extra.setdefault(max(gfree, HG0 + HGS * (k - NH0)), []).append((2, Seq([salu("s_add_u32", s_hl, s_hb, (k >> 2) * 4096), hld[k >> 2][k & 3]]), 1))
def sreg(ip, qb, odd=0): return v_acc[(((2 * ip + odd) * 4 + qb) * 4, 4)]
SPV_ = int(os.environ.get('SPV', '1'))
sp = []; spst = []; stq = []
s_oob = S(19)
if os.environ.get("NOST") or os.environ.get("NOLD"): e(salu("s_mov_b32", s_oob, 524288, scc_w=False))
NSI = int(os.environ.get("NSI", "11"))
s_so = [s_t1, s_cnt, s_h0, s_h1]
for k in range(4): sp.append(salu("s_add_u32", s_so[k], s_t3, (k >> 1) * 65536 + (k & 1) * 4096))
for ip in range(4):
    for qb in range(4):
        t = sreg(ip, qb)
        for b in range(2):
            o = sreg(ip, qb, b)
            for k in range(2): sp.append(valu("v_cvt_pk_bf16_f32", t[2 * b + k], o[2 * k], o[2 * k + 1]))
        st = bstore(t, v_lin, S_SP, s_so[(ip >> 1) * 2 + (qb >> 1)], off=(qb & 1) * 2048 + (ip & 1) * 1024, mod="sc1")
        if os.environ.get("NOST") and not (ip == 3 and qb == 3): st = bstore(t, v_lin, S_SP, s_oob, off=0)
        spst.append((st, sp[-1]))
class St:
    def __init__(self, k): self.k = k
    def __call__(self):
        assert spst[self.k][1].tok
        return spst[self.k][0]
STG = int(os.environ.get("STG", "2"))
if XY:
    GY = G0 + 64
    XS0 = int(os.environ.get("XS0", "4")); XSG = int(os.environ.get("XSG", "5")); XFL = int(os.environ.get("XFL", "60"))
    for k in range(8): extra.setdefault(GY + XS0 + XSG * k, []).append((1, St(k), 1))
    class XFlag:
        def __call__(self): em.wait(vm=spst[7][0]); return flag_store(0)
    hx_ = sp.index(spst[7][1]) + 1
    if NF1 == 14:
        NSI = 8; spf = [Fill(sp[:hx_], GY + 2, GY + 14)]; ypost = sp[hx_:]
    else:
        extra.setdefault(GY + XFL, []).append((1, XFlag(), 1))
        NSI = int(os.environ.get("NSI", "16"))
        for k in range(8, NSI): extra.setdefault(G1 + 3 + STG * (k - 8), []).append((2, St(k), 1))
        spf = [Fill(sp[:hx_], GY + 2, GY + 14), Fill(sp[hx_:], G1 + 2, G1 + 10)]
else:
    if NF1 == 14:
        NSI = 0; spf = []; ypost = sp
    else:
        for k in range(NSI): extra.setdefault(G1 + 3 + STG * k, []).append((2, St(k), 1))
        spf = [Fill(sp, G1 + 2, G1 + int(os.environ.get("CVL", "16")))]
if POI:
    assert not XY and SPV_
    hint = [valu("v_mov_b32", V(57), 2), valu("v_lshlrev_b32", V(58), 7, v_lane), raw("s_mov_b64 exec, 3", "salu", wr=["exec"]),
            bstore(V(57), V(58), S_FL, s_myfl, mod="sc1"), raw("s_mov_b64 exec, -1", "salu", wr=["exec"])]
    extra.setdefault(G1 + int(os.environ.get("HINT", "4")), []).append((1, hint, 1))
FLG = int(os.environ.get("FLG", "0"))
if FLG:
    assert NSI == 16
    class YFlag:
        def __call__(self):
            em.wait(vm=spst[-1][0]); stamp()
            e(([] if XY else flag_store(0)) + flag_store(1))
            if MIDPOST == 5: static_loads()
            return []
    extra.setdefault(G1 + FLG, []).append((1, YFlag(), 1))
sti = [NSI]
def st_next(n=1):
    for _ in range(n):
        if sti[0] < 16: e(spst[sti[0]][0]); sti[0] += 1
def flag_store(h):
    return [valu("v_mov_b32", v_t, 1), raw("s_mov_b64 exec, 1", "salu", wr=["exec"]), bstore(v_t, None, S_FL, s_myfl, off=128 * h, mod="sc1"), raw("s_mov_b64 exec, -1", "salu", wr=["exec"])]
vpa = V(51)
s_done, s_new, s_sb = s_kK, s_kV, s_fo
SPV = int(os.environ.get("SPV", "1"))
def spl(gp, i): return sreg(gp >> 1, (gp & 1) * 2 + i, 0) if SPV else A((gp * 2 + i) * 4, 4)
def flag_load(): return bload(vpoll, vpa, S_FL, s_t2, n=1, mod="sc1")
lblc = [0]
def issue_new():
    k = lblc[0]; lblc[0] += 1
    e(valu("v_cmp_eq_u32", "vcc", 1, vpoll)); e(nop(1))
    e(raw("s_andn2_b32 %s, vcc_lo, %s" % (s_new, s_done), "salu", rd=["vcc", s_done], wr=[s_new, "scc"])); e(salu("s_and_b32", s_new, s_new, 255))
    e(raw("s_cbranch_scc0 L_in%d_end" % k, rd=["scc"]))
    e(salu("s_or_b32", s_done, s_done, s_new))
    for gp in range(8):
        e(scmp("s_bitcmp1_b32", s_new, gp)); e(raw("s_cbranch_scc0 L_in%d_%d" % (k, gp), rd=["scc"]))
        e(salu("s_add_u32", s_t0, s_sb, gp * 8192) if not os.environ.get("NOLD") else salu("s_mov_b32", s_t0, s_oob, scc_w=False))
        for i in range(2): e(raw(bload(spl(gp, i), v_lin, S_SPC, s_t0, off=i * 1024, mod="sc1").text))
        em.label("L_in%d_%d" % (k, gp))
    em.label("L_in%d_end" % k)
def static_loads():
    e(valu("v_cmp_eq_u32", "vcc", 1, vpoll)); e(nop(1))
    e(raw("s_and_b32 %s, vcc_lo, 255" % s_done, "salu", rd=["vcc"], wr=[s_done, "scc"]))
    for gp in range(8):
        e(salu("s_add_u32", s_t0, s_sb, gp * 8192)); e(scmp("s_bitcmp1_b32", s_done, gp)); e(salu("s_cselect_b32", s_t0, s_t0 if not os.environ.get("NOLD") else s_oob, 524288, scc_w=False, scc_r=True))
        for i in range(2): e(bload(spl(gp, i), v_lin, S_SPC, s_t0, off=i * 1024, mod="sc1"))
pinit = [salu("s_lshl_b32", s_t2, s_cq, 3), salu("s_add_u32", s_t2, s_t2, s_cg), salu("s_lshl_b32", s_t2, s_t2, 7), salu("s_mov_b32", s_done, 0, scc_w=False),
         salu("s_lshl_b32", s_sb, s_cg, 16), salu("s_lshl_b32", s_new, s_w, 11), salu("s_add_u32", s_sb, s_sb, s_new)]
extra.setdefault(G1 - 8, []).append((1, pinit, 0))
class MidPoll:
    def __init__(self, tok): self.tok = tok
    def __call__(self):
        em.wait(vm=self.tok); issue_new()
        e(salu("s_mov_b32", s_hb, s_done, scc_w=False))
        midmark.append(em.vm_total)
        return []
midmark = []
if int(os.environ.get("MID", "1")):
    pt = flag_load()
    MIDPOST = int(os.environ.get("MIDPOST", "2"))
    if MIDPOST == 4: extra.setdefault(184 - int(os.environ.get("MID4", "6")), []).append((2, pt, 1))
    else: extra.setdefault(G1 - int(os.environ.get("MID0", "-4")), []).append((2, pt, 1))
    if not MIDPOST: extra.setdefault(G1 + int(os.environ.get("MID1", "3")), []).append((0, MidPoll(pt), 0))
    elif MIDPOST != 4 and int(os.environ.get("MID0", "-4")) > 0 and NF1 < 14: extra.setdefault(G1 + 2, []).append((0, Wait(vm=pt), 0))
    if MIDPOST == 3:
        extra[G1 + 2].pop(); extra[G1 - int(os.environ.get("MID0", "-4"))].pop()
if STAMP and NF1 < 14: extra.setdefault(G1, []).append((0, Stamp(), 0))
if STAMP == 5:
    for g_ in (0, 8, 16, 24): extra.setdefault(g_, []).append((0, Stamp(), 0))
class Diag:
    def __call__(self): diag(); return []
if DIAG and NF1 < 14: extra.setdefault(G1, []).append((0, Diag(), 0))
vs = [Fill(norm, 0, GB - (3 if NB else 1)), Fill(early, G0 + 2, G0 + 40)] + spf
run_stream(46, s2_dma, dtok2, s2_acc, s2_B, extra, vs, posf=pos2, ring=v_ring2, first_dma=6 + NB, tr2=v_tr2, early_dma=int(os.environ.get('ED2', '0')), w2=lambda g: int(os.environ.get('W2B', '1')) and g < 28)
stamp(); diag()
if NF1 == 14:
    fw = [dswrite("ds_write_b128", vfw, Facc(u, qb), qb * 16384 + u * 1024) for qb in range(4) for u in range(4)]
    for k in range(4): e(fw.pop(0))
    e(nop(3))
    for it in ypost:
        e(it)
        if any(it is c for _, c in spst):
            st_next()
            if fw: e(fw.pop(0))
            if XY and sti[0] == int(os.environ.get("XFP", "12")): em.wait(vm=spst[7][0]); e(flag_store(0))
    for it in fw: e(it)
    stamp()
if MIDPOST == 4:
    em.wait(vm=pt); static_loads()
if MIDPOST == 3:
    st_next(16); fl3 = e(flag_load())
e(nop(5))
for qb in range(4 if NF1 < 14 else 0):
    for u in range(4):
        if len(em.lgq) >= 12: em.wait(lg=em.lgq[-12])
        e(dswrite("ds_write_b128", vfw, Facc(u, qb), qb * 16384 + u * 1024))
    if qb & 1: st_next(int(os.environ.get("STW", "1")))
if MIDPOST == 6:
    st_next(16); em.wait(vm=spst[-1][0]); stamp(); e(flag_store(0) + flag_store(1)); static_loads()
v_fr = V(96, 16); vE = V(64, 16); vs_ = V(80, 16)
for k in range(8): e(valu("v_mov_b64", vs_[(2 * k, 2)], 0))
if MIDPOST == 3:
    em.wait(vm=fl3); stamp()
    if not XY: e(flag_store(0))
    e(flag_store(1))
    static_loads()
em.wait(lg0=True)
e(raw("s_barrier"))
def frr(ws_, u): return sreg(ws_, u, 1)
for ws_ in range(4):
    for u in range(4):
        if len(em.lgq) >= 14: em.wait(lg=em.lgq[-14])
        e(dsread("ds_read_b128", frr(ws_, u), V(55), ws_ * 4096 + u * 1024))
st_next()
if MIDPOST:
    st_next(16)
    if MIDPOST == 1: static_loads()
em.wait(lg0=True)
for u in range(4):
    for k in range(2):
        e(valu("v_pk_add_f32", frr(0, u)[(2 * k, 2)], frr(0, u)[(2 * k, 2)], frr(1, u)[(2 * k, 2)]))
        e(valu("v_pk_add_f32", frr(2, u)[(2 * k, 2)], frr(2, u)[(2 * k, 2)], frr(3, u)[(2 * k, 2)]))
for u in range(4):
    for k in range(2): e(valu("v_pk_add_f32", v_fr[(4 * u + 2 * k, 2)], frr(0, u)[(2 * k, 2)], frr(2, u)[(2 * k, 2)]))
for k in range(16): e(valu("v_mul_f32", vE[k], hx(f2u(-math.log2(math.e))), v_fr[k]))
st_next()
for k in range(16): e(valu("v_exp_f32", vE[k], vE[k]))
for k in range(16): e(valu("v_add_f32", vE[k], "1.0", vE[k]))
st_next()
for k in range(16): e(valu("v_rcp_f32", vE[k], vE[k]))
for k in range(16): e(valu("v_mul_f32", v_fr[k], v_fr[k], vE[k]))
for k in range(8):
    e(valu("v_lshlrev_b32", vE[2 * k], 16, vxf[k])); e(valu("v_and_b32", vE[2 * k + 1], "0xffff0000", vxf[k]))
st_next()
stamp()
accn = [0]
def acc_pieces(mask, sprinkle=False):
    n = accn[0]; accn[0] += 1
    for gp in range(8):
        e(scmp("s_bitcmp1_b32", mask, gp)); e(raw("s_cbranch_scc0 L_acc%d_%d" % (n, gp), rd=["scc"]))
        if not SPV:
            for k2 in range(8): e(valu("v_accvgpr_read_b32", V(120 + k2), spl(gp, k2 >> 2)[k2 & 3]))
        assert SPV
        for k in range(8):
            src = spl(gp, k >> 2)[k & 3]
            e(valu("v_lshlrev_b32", V(112 + 2 * k), 16, src)); e(valu("v_and_b32", V(113 + 2 * k), "0xffff0000", src))
        for k in range(8): e(valu("v_pk_add_f32", vs_[(2 * k, 2)], vs_[(2 * k, 2)], V(112 + 2 * k, 2)))
        em.label("L_acc%d_%d" % (n, gp))
        if sprinkle and gp & 1: st_next()
if midmark:
    n_y = em.vm_total - midmark[0]
    e(raw("s_waitcnt vmcnt(%d)" % n_y, "wait")); em._retire(em.vmq, n_y)
    acc_pieces(s_hb, sprinkle=True)
st_next(16)
if POI:
    s_want = s_new
    e(salu("s_mov_b32", s_cnt, 0, scc_w=False)); e(salu("s_mov_b32", s_t1, hx(POISON), scc_w=False))
    if MIDPOST == 2: em.wait(vm=pt)
    stamp()
    em.label("L_fin_loop")
    e(valu("v_cmp_eq_u32", "vcc", 2, vpoll)); e(nop(1))
    e(raw("s_andn2_b32 %s, vcc_lo, %s" % (s_want, s_done), "salu", rd=["vcc", s_done], wr=[s_want, "scc"])); e(salu("s_and_b32", s_want, s_want, 255))
    for gp in range(8):
        e(scmp("s_bitcmp1_b32", s_want, gp)); e(raw("s_cbranch_scc0 L_pl_%d" % gp, rd=["scc"]))
        e(salu("s_add_u32", s_t0, s_sb, gp * 8192))
        for i in range(2): e(raw(bload(spl(gp, i), v_lin, S_SPC, s_t0, off=i * 1024, mod="sc1").text))
        em.label("L_pl_%d" % gp)
    e(raw(flag_load().text))
    e(raw("s_waitcnt vmcnt(0)", "wait")); em._retire(em.vmq, 0)
    for gp in range(8):
        e(scmp("s_bitcmp1_b32", s_want, gp)); e(raw("s_cbranch_scc0 L_pa_%d" % gp, rd=["scc"]))
        for k in range(8): e(valu("v_cmpx_ne_u32", "vcc", s_t1, spl(gp, k >> 2)[k & 3], extra_wr=["exec"]))
        e(nop(1))
        e(raw("s_cmp_eq_u64 exec, -1", "salu", rd=["exec"], wr=["scc"])); e(raw("s_mov_b64 exec, -1", "salu", wr=["exec"]))
        e(raw("s_cbranch_scc0 L_pa_%d" % gp, rd=["scc"]))
        e(salu("s_bitset1_b32", s_done, gp, scc_w=False))
        for k in range(8):
            src = spl(gp, k >> 2)[k & 3]
            e(valu("v_lshlrev_b32", V(112 + 2 * (k & 3)), 16, src)); e(valu("v_and_b32", V(113 + 2 * (k & 3)), "0xffff0000", src))
            e(valu("v_pk_add_f32", vs_[(2 * k, 2)], vs_[(2 * k, 2)], V(112 + 2 * (k & 3), 2)))
        em.label("L_pa_%d" % gp)
    e(salu("s_add_u32", s_cnt, s_cnt, 1)); e(scmp("s_cmp_ge_u32", s_cnt, 50000)); e(raw("s_cbranch_scc1 L_fin_done", rd=["scc"]))
    e(scmp("s_cmp_lg_u32", s_done, 255)); e(raw("s_cbranch_scc1 L_fin_loop", rd=["scc"]))
else:
    if MIDPOST != 2: e(flag_load())
    if MIDPOST not in (3, 6) and not FLG:
        em.wait(vm=spst[-1][0]); stamp()
        if not XY: e(flag_store(0))
        e(flag_store(1))
    if MIDPOST == 2:
        static_loads()
        if int(os.environ.get("FSL", "0")): e(raw("s_sleep %d" % int(os.environ.get("FSL"))))
        e(flag_load())
    s_prev = s_hl
    e(salu("s_mov_b32", s_prev, s_done if MIDPOST else 0, scc_w=False)); e(salu("s_mov_b32", s_cnt, 0, scc_w=False))
    em.label("L_fin_loop")
    em.wait(vm0=True)
    issue_new()
    e(raw(flag_load().text))
    acc_pieces(s_prev)
    e(salu("s_mov_b32", s_prev, s_new, scc_w=False))
    e(salu("s_add_u32", s_cnt, s_cnt, 1)); e(scmp("s_cmp_ge_u32", s_cnt, 50000)); e(raw("s_cbranch_scc1 L_fin_done", rd=["scc"]))
    e(scmp("s_cmp_lg_u32", s_prev, 0)); e(raw("s_cbranch_scc1 L_fin_loop", rd=["scc"]))
    if int(os.environ.get("PSL", "0")): e(raw("s_sleep %d" % int(os.environ.get("PSL"))))
    e(scmp("s_cmp_lg_u32", s_done, 255)); e(raw("s_cbranch_scc1 L_fin_loop", rd=["scc"]))
em.label("L_fin_done")
if DUMP == "fin": dump_regs([vs_[i] for i in range(16)] + [v_fr[i] for i in range(16)])
for k in range(8): e(valu("v_pk_fma_f32", vE[(2 * k, 2)], vs_[(2 * k, 2)], v_fr[(2 * k, 2)], vE[(2 * k, 2)]))
for k in range(8): e(valu("v_cvt_pk_bf16_f32", vxf[k], vE[2 * k], vE[2 * k + 1]))
for u in range(4): e(bstore(vxf[(2 * u, 2)], vxa, S_OUT, 0, off=32 * u, mod=os.environ.get("OUTM", "")))
stamp(); diag_out()
em.label("L_end")
e(raw("s_endpgm"))
main_end = len(em.out)

em.lgq, em.vmq, em.pend = [], [], {}
em.label("L_sigH_side")
e(salu("s_lshl_b32", s_t1, s_qb, 3)); e(salu("s_add_u32", s_t1, s_t1, s_g))
e(raw("s_mov_b64 exec, 2", "salu", wr=["exec"]))
e(raw("buffer_store_byte %s, off, %s, %s sc1" % (v_fa, S_DBG, s_t1)))
e(raw("s_mov_b64 exec, -1", "salu", wr=["exec"]))
e(raw("s_branch L_sigH_ret"))
em.label("L_fallback")
e(raw("s_waitcnt vmcnt(0) lgkmcnt(0)")); em._retire(em.vmq, 0); em._retire(em.lgq, 0)
e(salu("s_mov_b32", s_retry, 1, scc_w=False))
e(salu("s_lshl_b32", s_t0, s_w, 6)); e(valu("v_add_u32", v_tid, s_t0, v_lane))
e(raw("s_barrier"))
e(raw("s_branch L_restart"))
em.label("L_maxpass")
e(raw("s_waitcnt vmcnt(0) lgkmcnt(0)"))
e(salu("s_mov_b32", s_retry, 2, scc_w=False))
e(salu("s_mov_b32", S_H[2], 0, scc_w=False))
e(salu("s_mov_b32", s_kK, 0, scc_w=False))
fm = [V(40 + i) for i in range(4)]
for i in range(4): e(valu("v_mov_b32", fm[i], "0xff800000"))
em.label("L_fb_loop")
e(raw("s_barrier"))
e(salu("s_add_u32", "m0", s_m0b, 4 * 16384)); e(nop(0))
for j in range(4): e(dma(v_kd[j], S_K, s_kK, j * 1024))
em.wait(vm0=True)
e(raw("s_barrier"))
for kb in range(4):
    rr = [e(dsread("ds_read_b128", fr(ds), v_ka[ds], kb * 4096)) for ds in range(4)]
    em.wait(lg0=True)
    for ds in range(4):
        for qb in range(4):
            d = v_S[0][(qb * 4, 4)]
            e(mfma(d, fr(ds), Qf(qb, ds), 0 if ds == 0 else d))
    e(nop(7))
    for qb in range(4):
        e(valu("v_max3_f32", fm[qb], fm[qb], v_S[0][qb * 4], v_S[0][qb * 4 + 1])); e(valu("v_max3_f32", fm[qb], fm[qb], v_S[0][qb * 4 + 2], v_S[0][qb * 4 + 3]))
    e(nop(2))
e(salu("s_add_u32", s_kK, s_kK, 16384)); e(scmp("s_cmp_lt_u32", s_kK, 524288)); e(raw("s_cbranch_scc1 L_fb_loop", rd=["scc"]))
red4("v_max_f32", fm, [V(44 + i) for i in range(4)])
for qb in range(4):
    for k in range(4): e(valu("v_sub_f32", v_negm[qb * 4 + k], 0, fm[qb]))
e(raw("s_barrier"))
for m in (64, 65, 66):
    sa, dm = s1_dma(m); e(sa)
    for d in dm: e(d)
e(raw("s_waitcnt vmcnt(0)"))
e(raw("s_branch L_att_start"))
em.label("L_code_end")
e(raw("s_endpgm"))

ALIGN8 = int(os.environ.get("ALIGN8", "0"))
import re as _re
def isize(i):
    t = i.text
    if i.kind == "label": return 0
    op = t.split()[0]
    if i.kind in ("mfma", "lds", "vmem", "dma") or op.startswith(("buffer_", "global_", "ds_", "s_load", "s_memtime", "s_memrealtime")): return 8
    lit = False
    for tok in _re.split(r"[ ,]+", t)[1:]:
        if _re.fullmatch(r"-?\d+", tok): lit |= not (-16 <= int(tok) <= 64)
        elif tok.startswith("0x"): lit |= not (int(tok, 16) <= 64)
        elif tok.startswith("L_") and not op.startswith(("s_cbranch", "s_branch")): lit = True
    if op.startswith("s_"):
        if op in ("s_waitcnt", "s_nop", "s_barrier", "s_sleep", "s_endpgm") or op.startswith(("s_cbranch", "s_branch")): return 4
        return 8 if lit else 4
    e32 = ("v_exp_f32", "v_rcp_f32", "v_sqrt_f32", "v_mov_b32", "v_mov_b64", "v_add_f32", "v_sub_f32", "v_mul_f32", "v_max_f32", "v_and_b32", "v_xor_b32", "v_lshlrev_b32", "v_lshrrev_b32",
           "v_add_u32", "v_sub_u32", "v_subrev_u32", "v_mul_u32_u24", "v_min_u32", "v_readfirstlane_b32", "v_permlane16_swap_b32", "v_permlane32_swap_b32")
    if op in e32 and "-v" not in t: return 8 if lit else 4
    if op.startswith("v_cmp") and t.split()[1].startswith("vcc"): return 8 if lit else 4
    return 8
WIDE = ("v_exp_f32", "v_rcp_f32", "v_add_f32", "v_mul_f32", "v_mov_b32", "v_sub_f32", "v_and_b32", "v_lshlrev_b32")
if ALIGN8:
    pos = 0; cand = None; nfix = 0; nmiss = 0
    for i in em.out:
        if i.kind == "label":
            if i.text.startswith(".p2align"): pos = 0; cand = None
            continue
        if i.kind == "mfma" and pos % 8:
            if cand is not None: cand.text = cand.text.replace(cand.text.split()[0], cand.text.split()[0] + "_e64", 1); pos += 4; nfix += 1
            else: nmiss += 1
        if i.kind == "mfma": cand = None
        sz = isize(i)
        if sz == 4 and i.text.split()[0] in WIDE: cand = i
        pos += sz
    print("; align8: widened %d, unfixed %d" % (nfix, nmiss), file=sys.stderr)
probs = check_hazards(em.out, "main") + loop_probs
for p in probs: print("; HAZARD", p, file=sys.stderr)
assert not probs

hdr = open(os.path.join(os.path.dirname(os.path.abspath(__file__)), "header.txt")).read()
print(hdr.rstrip())
print("; @launch grid=(256,1,1) block=(256,1,1) lds=163840")
print('.amdgcn_target "amdgcn-amd-amdhsa--gfx950"\n.text\n.globl %s\n.p2align 8\n.type %s,@function\n%s:' % (KN, KN, KN))
print(em.text())
print('.section .rodata,"a"\n.p2align 6\n.amdhsa_kernel %s' % KN)
print("  .amdhsa_next_free_vgpr 512\n  .amdhsa_next_free_sgpr 102\n  .amdhsa_accum_offset 256\n  .amdhsa_group_segment_fixed_size 0\n  .amdhsa_kernarg_size 96\n  .amdhsa_user_sgpr_count 2\n  .amdhsa_user_sgpr_kernarg_segment_ptr 1\n  .amdhsa_system_sgpr_workgroup_id_x 1\n.end_amdhsa_kernel")
```

```python
import sys, os, math, struct
from asmgen import *

KN = "recurrent_scan__gqa_block_cached__geglu_ffn__prompt_kernel"
DUMP = os.environ.get("DUMP", "")
STAMP = int(os.environ.get("STAMP", "0"))
GEL_END = int(os.environ.get("GEL_END", "247")); GEL_EXTRA = int(os.environ.get("GEL_EXTRA", "360"))

def f2u(x): return struct.unpack("<I", struct.pack("<f", x))[0]
def hx(x): return "0x%x" % (x & 0xffffffff)

S_X, S_K, S_V, S_WQ, S_WO, S_WG, S_WU, S_WD, S_OUT, S_DBG, S_H, S_SP = [S(4 + 4 * i, 4) for i in range(12)]
s_g, s_qb, s_w = S(52), S(53), S(54)
s_t0, s_t1, s_t2, s_t3 = S(55), S(56), S(57), S(58)
s_m0b = S(59)
s_off = S(60)
s_cnt = S(61)
s_kK, s_kV = S(62), S(63)
s_retry = S(64)
s_h0, s_h1 = S(65), S(66)
s_hl = S(67); s_hb = S(78); s_myfl = S(79); s_wdd = S(67); s_sig = S(78)
s_ka = S(68, 16); s_kb = S(84, 8)
s_pair = S(92, 2); s_pair2 = S(94, 2)
S_DMP = S(96, 4)
s_cq, s_cg = S(76), S(77)
S_HC = S(80, 4)
S_SPC = S(84, 4)
S_XC = S(88, 4)
s_st = S(68, 4)

v_tid, v_lane, v_lin, v_t = V(0), V(1), V(2), V(3)
v_tr = [V(4, 4), V(8, 4)]
v_dA, v_dB = V(12, 4), V(16, 4)
v_ka = V(20, 4); v_va = V(24, 8); v_kd = V(32, 4); v_vd = V(36, 2)
v_wl = V(38)
v_c = V(39)
v_l0, v_l1 = V(40, 4), V(44, 4)
v_lsave = V(16, 4)
v_negm = V(48, 16)
v_S = [V(64, 32), V(96, 32)]
v_acc = V(128, 128)
a_ring = A(128, 32)
a_B = A(160, 32)
a_Q = A(0, 64)
ORD = int(os.environ.get("ORD", "1"))
v_wo, v_wd = (v_dB, v_dA) if ORD else (v_dA, v_dB)
a_F = A(0, 64)
a_x = A(248, 8)
LSUM = int(os.environ.get('LSUM', '1'))
a_L = A(224, 16); a_ones = A(240, 4)
POI = int(os.environ.get('POI', '0'))
POISON = 0x7f817f81
a_poi = A(244, 4)

RING = 65536
MARK = 0x7fc17fc1
WS_SP = 8 << 20
WS_DUMP = 32 << 20
WS_FL = (7 << 20) + (512 << 10)
S_FLZ = S(4, 4)
S_FL = S(4, 4)

em = Em()
e = em.e

def srd(dst, lo, hi, size, off_s=None):
    if off_s is None:
        e(salu("s_mov_b32", dst[0], lo, scc_w=False)); e(salu("s_mov_b32", dst[1], hi, scc_w=False))
    else:
        e(salu("s_add_u32", dst[0], lo, off_s)); e(salu("s_addc_u32", dst[1], hi, 0, scc_r=True))
    e(salu("s_mov_b32", dst[2], hx(size), scc_w=False)); e(salu("s_mov_b32", dst[3], "0x20000", scc_w=False))

DIAG = int(os.environ.get("DIAG", "0"))
HC_OFF = 128
diag_regs = [S(100, 2), S(70, 2), S(72, 2), S(74, 2), S(96, 2), S(98, 2), S(68, 2)] if DIAG == 1 else [S(100, 2), S(96, 2), S(70, 2), S(72, 2), S(74, 2), S(98, 2), S(92, 2)] if DIAG == 3 else [S(100, 2), S(96, 2), S(98, 2), S(94, 2), S(70, 2), S(72, 2), S(74, 2), S(68, 2)]
diag_n = [0]
def diag(which=1, last=False):
    if not DIAG or (which != DIAG and which != 0): return
    k = diag_n[0]; diag_n[0] += 1
    e(raw("%s %s" % ("s_memtime" if (os.environ.get("CYC") and not last) else "s_memrealtime", diag_regs[k]), "other", wr=[diag_regs[k]]))
    if k > 0: e(raw("s_waitcnt lgkmcnt(0)", "wait")); em._retire(em.lgq, 0)
AMP = os.environ.get("AMP")
def diag_out():
    if not DIAG: return
    diag(0, last=True)
    if AMP:
        k = int(AMP); last = diag_regs[diag_n[0] - 1]
        e(salu("s_sub_u32", s_t0, diag_regs[k][0], diag_regs[int(os.environ.get("AMP0", "0"))][0]))
        if os.environ.get("CYC"): e(salu("s_lshr_b32", s_t0, s_t0, 2))
        else: e(salu("s_lshl_b32", s_t0, s_t0, 2))
        em.label("L_amp")
        e(raw("s_memrealtime s[56:57]")); e(raw("s_waitcnt lgkmcnt(0)"))
        e(salu("s_sub_u32", s_t1, s_t1, last[0])); e(scmp("s_cmp_lt_u32", s_t1, s_t0)); e(raw("s_cbranch_scc1 L_amp", rd=["scc"]))
        return
    e(scmp("s_cmp_lg_u32", s_w, 0)); e(raw("s_cbranch_scc1 L_end", rd=["scc"]))
    e(raw("s_mov_b64 exec, 1", "salu", wr=["exec"]))
    e(salu("s_not_b32", s_t0, diag_regs[0][0]))
    for k in range(diag_n[0]):
        e(valu("v_mov_b32", V(4 + k), s_t0 if k == 0 else diag_regs[k][0]))
        e(raw("buffer_atomic_umax %s, off, %s, 0 offset:%d sc1" % (V(4 + k), S_DBG, 4 * k)))
    e(valu("v_mov_b32", V(12), diag_regs[0][0]))
    e(raw("buffer_atomic_umax %s, off, %s, 0 offset:%d sc1" % (V(12), S_DBG, 4 * 9)))
stamp_n = [0]
def stamp():
    if not STAMP: return
    k = stamp_n[0]; stamp_n[0] += 1
    e(raw("s_memtime %s" % S(68, 2), "other", wr=[S(68, 2)]))
    e(raw("s_memrealtime %s" % S(70, 2), "other", wr=[S(70, 2)]))
    e(raw("s_waitcnt lgkmcnt(0)", "wait")); em._retire(em.lgq, 0)
    for i in range(4): e(valu("v_writelane_b32", v_c, S(68 + i), i, rmw=True))
    e(salu("s_lshl_b32", S(72), S(2), 2)); e(salu("s_add_u32", S(72), S(72), s_w)); e(salu("s_lshl_b32", S(72), S(72), 9))
    e(salu("s_mov_b64", S(74, 2), "exec", scc_w=False)); e(raw("s_mov_b64 exec, 15", "salu", wr=["exec"]))
    e(valu("v_lshlrev_b32", v_t, 2, v_lane))
    e(bstore(v_c, v_t, S_DMP, S(72), off=k * 16))
    e(raw("s_mov_b64 exec, %s" % S(74, 2), "salu", wr=["exec"]))
    e(valu("v_lshlrev_b32", v_t, 7, v_lane))

def dump_regs(regs, finish=True):
    em.wait(lg0=True, vm0=True)
    e(nop(7)); e(nop(7))
    n = len(regs)
    e(salu("s_lshl_b32", s_t0, S(2), 2)); e(salu("s_add_u32", s_t0, s_t0, s_w)); e(salu("s_mul_i32", s_t0, s_t0, n * 256, scc_w=False))
    e(valu("v_lshlrev_b32", v_t, 2, v_lane))
    for k, r in enumerate(regs):
        e(bstore(r, v_t, S_DMP, s_t0, off=0))
        e(salu("s_add_u32", s_t0, s_t0, 256))
        if k % 32 == 31: em.wait(vm0=True)
    em.wait(vm0=True)
    if finish: e(raw("s_endpgm"))

def red4(op, x, tmp):
    for sw in ("v_permlane32_swap_b32", "v_permlane16_swap_b32"):
        for a, t in zip(x, tmp): e(valu("v_mov_b32", t, a))
        if len(x) < 3: e(nop(1))
        for a, t in zip(x, tmp): e(valu(sw, a, t))
        for a, t in zip(x, tmp): e(valu(op, a, a, t))

e(scmp("s_cmp_ge_u32", S(2), 256)); e(raw("s_cbranch_scc1 L_end", rd=["scc"]))
diag(0)
e(salu("s_mov_b32", s_retry, 0, scc_w=False))
em.label("L_restart")
i0 = e(I("s_load_dwordx16 %s, s[0:1], 0" % s_ka, "smem", wr=s_ka.regs()))
i1 = e(I("s_load_dwordx8 %s, s[0:1], 64" % s_kb, "smem", wr=s_kb.regs()))
vq, vG, vr, vc_, vx, vy, vz = [V(40 + i) for i in range(7)]
e(raw("s_getpc_b64 %s" % s_pair2, "salu", wr=[s_pair2]))
em.label("L_pc0")
CT0 = int(os.environ.get("CT0", "64"))
if CT0:
    e(valu("v_sub_u32", V(55), 255, v_tid)); e(valu("v_cmp_gt_u32", "vcc", CT0, V(55))); e(valu("v_lshlrev_b32", V(55), 7, V(55))); e(nop(0))
    e(raw("s_and_saveexec_b64 s[4:5], vcc", "salu", wr=["exec"], rd=["vcc"])); e(raw("s_cbranch_execz L_ct0"))
    e(raw("global_load_dword v55, v55, %s" % s_pair2))
    em.label("L_ct0")
    e(raw("s_mov_b64 exec, -1", "salu", wr=["exec"]))
MAP2 = int(os.environ.get("MAP2", "0"))
s_i = S(65)
if MAP2:
    e(salu("s_and_b32", s_g, S(2), 3)); e(salu("s_lshl_b32", s_g, s_g, 1)); e(salu("s_bfe_u32", s_t0, S(2), "0x10003")); e(salu("s_add_u32", s_g, s_g, s_t0))
    e(salu("s_bfe_u32", s_qb, S(2), "0x10002")); e(salu("s_lshl_b32", s_qb, s_qb, 4)); e(salu("s_lshr_b32", s_t0, S(2), 4)); e(salu("s_add_u32", s_qb, s_qb, s_t0))
else:
    e(salu("s_and_b32", s_g, S(2), 7)); e(salu("s_lshr_b32", s_qb, S(2), 3))
def sx(dst): return salu("s_lshr_b32", dst, S(2), 4 if MAP2 else 3)
TL = "-1" if MAP2 else "0xffffffff"
e(valu("v_and_b32", v_lane, 63, v_tid))
e(valu("v_lshrrev_b32", v_t, 6, v_tid))
e(valu("v_lshlrev_b32", v_lin, 4, v_lane))
e(valu("v_readfirstlane_b32", s_w, v_t))
e(valu("v_and_b32", vq, 15, v_lane)); e(valu("v_lshrrev_b32", vG, 4, v_lane))
vxo = V(47)
XD = int(os.environ.get("XD", "1"))
if XD == 2:
    vxq = V(60, 4); vxr = vxq
    for rg in range(4):
        e(valu("v_add_u32", vy, 4 * rg, vG)); e(valu("v_xor_b32", vz, vy, vq)); e(valu("v_lshl_add_u32", vy, v_t, 4, vy)); e(valu("v_lshlrev_b32", vy, 10, vy))
        e(valu("v_lshl_add_u32", vxq[rg], vz, 4, vy))
elif XD:
    vxo2 = V(50); vxr = [V(47), V(50)]
    e(valu("v_lshrrev_b32", vx, 3, v_lane)); e(valu("v_lshl_add_u32", vx, v_t, 4, vx)); e(valu("v_lshlrev_b32", vx, 10, vx))
    e(valu("v_and_b32", vy, 7, v_lane)); e(valu("v_xor_b32", vy, vy, vG)); e(valu("v_lshl_add_u32", vxo, vy, 4, vx))
    e(valu("v_xor_b32", vxo2, 64, vxo)); e(valu("v_add_u32", vxo2, 8192, vxo2))
else:
    e(valu("v_lshl_add_u32", vxo, v_t, 4, vq)); e(valu("v_lshlrev_b32", vxo, 10, vxo)); e(valu("v_lshl_add_u32", vxo, vG, 4, vxo))
vwg, vwq, vcw = V(52), V(53), V(54)
GM0 = int(os.environ.get("GM", "1"))
if GM0: e(salu("s_lshl_b32", s_t1, s_g, 7))
else: e(salu("s_mul_i32", s_t1, s_g, 448, scc_w=False)); e(salu("s_and_b32", s_t1, s_t1, hx(~127)))
e(salu("s_and_b32", s_t2, s_w, 1)); e(sx(s_t3)); e(salu("s_lshl_b32", s_t3, s_t3, 1)); e(salu("s_add_u32", s_t2, s_t2, s_t3))
e(salu("s_mul_i32", s_t2, s_t2, (16 if MAP2 else 8) * 3584, scc_w=False)); e(salu("s_add_u32", s_t1, s_t1, s_t2))
e(valu("v_lshrrev_b32", vx, 2, v_lane)); e(valu("v_mul_u32_u24", vx, 3584, vx)); e(valu("v_and_b32", vz, 3, v_lane)); e(valu("v_lshl_add_u32", vx, vz, 10 if GM0 else 7, vx))
e(valu("v_add_u32", vwg, s_t1, vx))
if GM0:
    e(salu("s_add_u32", s_t3, s_g, 1)); e(salu("s_lshr_b32", s_t3, s_t3, 1)); e(salu("s_lshl_b32", s_t3, s_t3, 7))
    e(valu("v_cmp_eq_u32", "vcc", 3, vz)); e(valu("v_subrev_u32", vx, s_t3, vwg)); e(nop(0)); e(valu("v_cndmask_b32", vwg, vwg, vx, "vcc"))
e(salu("s_lshr_b32", s_t2, S(2), 3)); e(salu("s_lshl_b32", s_t2, s_t2, 2)); e(salu("s_add_u32", s_t2, s_t2, s_w)); e(salu("s_mul_i32", s_t3, s_t2, 384, scc_w=False))
e(valu("v_lshlrev_b32", vcw, 7, v_lane)); e(valu("v_add_u32", vcw, s_t3, vcw))
e(salu("s_lshl_b32", s_t0, s_qb, 16))
em.wait(lg0=True)
diag(2)
srd(S_X, s_ka[0], s_ka[1], 65536, s_t0)
v_xp = V(64, 64)
XFIRST = int(os.environ.get("XFIRST", "12"))
if XD:
    s_xb = S(60)
    e(salu("s_lshl_b32", s_xb, s_w, 14))
    xo = [256 * (t >> 2) if XD == 2 else 128 * (t >> 1) for t in range(16)]
    xl = [dma(vxq[t & 3] if XD == 2 else (vxo2 if t & 1 else vxo), S_X, 0, off=xo[t]) for t in range(16)]
    def xissue(t): e(salu("s_add_u32", "m0", s_xb, t * 1024 - xo[t])); e(nop(0)); e(xl[t])
else:
    xl = [bload(v_xp[(4 * ks, 4)], vxo, S_X, 0, off=64 * ks) for ks in range(16)]
    def xissue(t): e(xl[t])
for ks in range(XFIRST): xissue(ks)
e(scmp("s_cmp_lt_u32", s_w, 2)); e(salu("s_cselect_b64", s_pair, s_ka[(12, 2)], s_ka[(14, 2)], scc_w=False, scc_r=True))
WT = int(os.environ.get("WT", "0"))
s_wgp = S(100, 2) if not DIAG else S(98, 2)
def wq_addr():
    e(sx(s_t2)); e(salu("s_lshl_b32", s_t2, s_t2, 2)); e(salu("s_add_u32", s_t2, s_t2, s_w))
    e(salu("s_lshl_b32", s_t2, s_t2, 16 if MAP2 else 15)); e(salu("s_lshl_b32", s_t3, s_g, 10)); e(salu("s_add_u32", s_t2, s_t2, s_t3))
    e(valu("v_lshrrev_b32", vx, 3, v_lane)); e(valu("v_lshlrev_b32", vx, 13, vx)); e(valu("v_and_b32", vz, 7, v_lane)); e(valu("v_lshl_add_u32", vx, vz, 7, vx))
    e(valu("v_add_u32", vwq, s_t2, vx))
if ORD:
    e(salu("s_mov_b64", s_wgp, s_pair, scc_w=False))
    wq_addr()
    e(raw("s_mov_b64 exec, " + TL, "salu", wr=["exec"]))
    e(I("global_load_dword %s, %s, %s" % (V(48), vwq, s_ka[(6, 2)]), "vmem", rd=vwq.regs() + s_ka[(6, 2)].regs(), wr=V(48).regs()))
elif WT:
    e(salu("s_lshl_b32", s_t3, S(2), 1)); e(salu("s_and_b32", s_t1, s_w, 1)); e(salu("s_add_u32", s_t3, s_t3, s_t1)); e(salu("s_mul_i32", s_t3, s_t3, 3584, scc_w=False))
    e(valu("v_lshlrev_b32", V(51), 7, v_lane)); e(valu("v_add_u32", V(51), s_t3, V(51)))
    e(raw("s_mov_b64 exec, 0xfffffff", "salu", wr=["exec"]))
    e(I("global_load_dword %s, %s, %s" % (V(48), V(51), s_pair), "vmem", rd=V(51).regs() + s_pair.regs(), wr=V(48).regs()))
    e(salu("s_mov_b64", s_wgp, s_pair, scc_w=False))
else:
    e(raw("s_mov_b64 exec, " + TL, "salu", wr=["exec"]))
    e(I("global_load_dword %s, %s, %s" % (V(48), vwg, s_pair), "vmem", rd=vwg.regs() + s_pair.regs(), wr=V(48).regs()))
e(raw("s_mov_b64 exec, 7", "salu", wr=["exec"]))
e(I("global_load_dword %s, %s, %s" % (V(49), vcw, s_pair2), "vmem", rd=vcw.regs() + s_pair2.regs(), wr=V(49).regs()))
e(raw("s_mov_b64 exec, -1", "salu", wr=["exec"]))
if not ORD: wq_addr()
e(salu("s_lshr_b32", s_t2, S(2), 6)); e(salu("s_and_b32", s_t3, S(2), 7)); e(salu("s_lshl_b32", s_t3, s_t3, 2)); e(salu("s_add_u32", s_t2, s_t2, s_t3))
e(salu("s_lshl_b32", s_t0, s_t2, 16))
srd(S_OUT, s_kb[2], s_kb[3], 65536, s_t0)
e(salu("s_lshl_b32", s_t1, s_g, 19))
srd(S_K, s_ka[2], s_ka[3], 524288, s_t1)
srd(S_V, s_ka[4], s_ka[5], 524288, s_t1)
srd(S_WO, s_ka[8], s_ka[9], 524288, s_t1)
srd(S_WQ, s_ka[6], s_ka[7], 4 << 20)
srd(S_WG, s_ka[12], s_ka[13], 1835008)
srd(S_WU, s_ka[14], s_ka[15], 1835008)
srd(S_WD, s_kb[0], s_kb[1], 1835008)
srd(S_DBG, s_kb[4], s_kb[5], 256)
e(salu("s_mul_i32", s_t1, s_qb, 229376, scc_w=False))
srd(S_H, s_kb[6], s_kb[7], 229376, s_t1)
e(salu("s_lshl_b32", s_t1, s_qb, 19)); e(salu("s_add_u32", s_t1, s_t1, hx(WS_SP)))
srd(S_SP, s_kb[6], s_kb[7], 524288, s_t1)
if DUMP or STAMP:
    e(salu("s_mov_b32", s_t1, hx(WS_DUMP), scc_w=False))
    srd(S_DMP, s_kb[6], s_kb[7], 200 << 20, s_t1)
e(salu("s_mov_b64", s_pair, S(90, 2), scc_w=False))
e(salu("s_lshl_b32", s_t0, s_t2, 16))
srd(S_XC, s_ka[0], s_ka[1], 65536, s_t0)
e(salu("s_mul_i32", s_t1, s_t2, 229376, scc_w=False))
srd(S_HC, s_pair[0], s_pair[1], 229376, s_t1)
e(salu("s_lshl_b32", s_t1, s_t2, 19)); e(salu("s_add_u32", s_t1, s_t1, hx(WS_SP)))
srd(S_SPC, s_pair[0], s_pair[1], 524288, s_t1)
e(salu("s_mov_b32", s_cq, s_t2, scc_w=False)); e(salu("s_bfe_u32", s_cg, S(2), "0x30003"))
e(salu("s_lshl_b32", s_myfl, s_qb, 2)); e(salu("s_add_u32", s_myfl, s_myfl, s_w)); e(salu("s_lshl_b32", s_myfl, s_myfl, 8))
e(salu("s_lshl_b32", s_t1, s_g, 2)); e(salu("s_add_u32", s_myfl, s_myfl, s_t1))
e(salu("s_lshl_b32", s_m0b, s_w, 12)); e(salu("s_add_u32", s_m0b, s_m0b, RING))
GM = int(os.environ.get("GM", "1"))
if GM:
    e(salu("s_lshl_b32", s_t1, s_w, 3)); e(salu("s_add_u32", s_t1, s_t1, s_g))
    e(salu("s_lshr_b32", s_t2, s_g, 1)); e(salu("s_add_u32", s_t2, s_t2, 24))
    e(scmp("s_cmp_eq_u32", s_w, 3)); e(salu("s_cselect_b32", s_t1, s_t2, s_t1, scc_w=False, scc_r=True))
else:
    e(salu("s_and_b32", s_t1, s_g, 1)); e(salu("s_lshl_b32", s_t1, s_t1, 2)); e(salu("s_add_u32", s_t1, s_t1, s_w))
    e(scmp("s_cmp_eq_u32", s_w, 3)); e(salu("s_cselect_b32", s_t1, 3, s_t1, scc_w=False, scc_r=True))
    e(salu("s_lshr_b32", s_t2, s_g, 1)); e(salu("s_mul_i32", s_t2, s_t2, 7, scc_w=False)); e(salu("s_add_u32", s_t1, s_t1, s_t2))
e(salu("s_lshl_b32", s_h0, s_t1, 13)); e(salu("s_add_u32", s_h1, s_h0, 4096))
e(salu("s_lshl_b32", s_t1, s_t1, 7))
e(salu("s_lshl_b32", s_t2, s_g, 2)); e(salu("s_add_u32", s_t2, s_t2, s_w)); e(salu("s_lshl_b32", s_t2, s_t2, 8))

def dma_voffs(dst, stride, colbase_s, perm):
    for j in range(4):
        e(valu("v_bfe_u32", vx, v_lane, 1, 2)); e(valu("v_bfe_u32", vy, v_lane, 4, 1))
        e(valu("v_xor_b32", vx, vx, vy))
        if j & 1: e(valu("v_xor_b32", vx, 2, vx))
        e(valu("v_and_b32", vy, 1, v_lane)); e(valu("v_lshlrev_b32", vy, 4, vy)); e(valu("v_lshl_add_u32", vx, vx, 5, vy))
        if not perm:
            e(valu("v_lshrrev_b32", vy, 3, v_lane)); rowadd = 8 * j
        else:
            e(valu("v_bfe_u32", vy, v_lane, 3, 2)); e(valu("v_bfe_u32", vz, v_lane, 5, 1)); e(valu("v_lshl_add_u32", vy, vz, 4, vy)); rowadd = 4 * j
        e(valu("v_mul_u32_u24", vy, stride, vy))
        e(valu("v_add3_u32", vx, vx, vy, colbase_s))
        e(valu("v_add_u32", dst[j], rowadd * stride - j * 1024, vx))

dma_voffs(v_dA, 3584, s_t1, False)
dma_voffs(v_dB, 8192, s_t2, False)

def m0set(p): return salu("s_add_u32", "m0", s_m0b, p * 16384) if p < 6 else salu("s_sub_u32", "m0", s_m0b, RING - (p - 6) * 16384)
def s1_dma(m):
    p = m % 6
    if ORD and m < 64: m ^= 32
    if m < 32:
        s, h = m >> 1, m & 1
        return [m0set(p), salu("s_mov_b32", s_off, s * 32 * 3584, scc_w=False)], [dma(v_dA[j], S_WU if h else S_WG, s_off, j * 1024) for j in range(4)]
    if m < 64:
        s, h = (m - 32) >> 1, m & 1
        return [m0set(p), salu("s_mov_b32", s_off, s * 32 * 8192 + 128 * h, scc_w=False)], [dma(v_dB[j], S_WQ, s_off, j * 1024) for j in range(4)]
    if m == 64:
        return [m0set(p), salu("s_mov_b32", s_off, 0, scc_w=False)], [dma(v_kd[j], S_K, s_off, j * 1024) for j in range(4)]
    if m == 65:
        return [m0set(p), salu("s_mov_b32", s_off, 8192, scc_w=False)], [dma(v_kd[j], S_K, s_off, j * 1024) for j in range(4)]
    if m == 66:
        return [m0set(p), salu("s_mov_b32", s_off, 0, scc_w=False)], [dma(v_vd[j & 1], S_V, s_off, j * 1024) for j in range(4)]
    return None
dtok = {}
ln_v = []
for m in range(6):
    sa, dm = s1_dma(m)
    ln_v.append(sa); ln_v += dm
    dtok[m] = dm[3]
def xaddr(dst, tmp):
    e(valu("v_and_b32", dst, 15, v_lane)); e(salu("s_lshl_b32", s_t0, s_w, 4)); e(valu("v_add_u32", dst, s_t0, dst)); e(valu("v_lshlrev_b32", dst, 10, dst))
    e(valu("v_lshrrev_b32", tmp, 4, v_lane)); e(valu("v_lshl_add_u32", dst, tmp, 3, dst)); e(salu("s_lshl_b32", s_t0, s_cg, 7)); e(valu("v_add_u32", dst, s_t0, dst))
WQT = int(os.environ.get("WQT", "0"))
wqt = [raw("s_mov_b64 exec, " + TL, "salu", wr=["exec"]), bload(V(46), vwq, S_WQ, 0, n=1), raw("s_mov_b64 exec, -1", "salu", wr=["exec"])]
WQC = int(os.environ.get("WQC", "2"))
wqs = wqt
if ORD:
    e(salu("s_lshl_b32", s_t3, S(2), 1)); e(salu("s_and_b32", s_t1, s_w, 1)); e(salu("s_add_u32", s_t3, s_t3, s_t1)); e(salu("s_mul_i32", s_t3, s_t3, 3584, scc_w=False))
    e(valu("v_lshlrev_b32", V(54), 7, v_lane)); e(valu("v_add_u32", V(54), s_t3, V(54)))
    wqt = [raw("s_mov_b64 exec, 0xfffffff", "salu", wr=["exec"]), I("global_load_dword %s, %s, %s" % (V(49), V(54), s_wgp), "vmem", rd=["v54"] + s_wgp.regs(), wr=["v49"]), raw("s_mov_b64 exec, -1", "salu", wr=["exec"])]
    wqs = [raw("s_mov_b64 exec, " + TL, "salu", wr=["exec"]), I("global_load_dword %s, %s, %s" % (V(46), vwg, s_wgp), "vmem", rd=vwg.regs() + s_wgp.regs(), wr=["v46"]), raw("s_mov_b64 exec, -1", "salu", wr=["exec"])]
elif WQC:
    e(salu("s_lshl_b32", s_t3, S(2), 2)); e(salu("s_add_u32", s_t3, s_t3, s_w)); e(salu("s_lshl_b32", s_t3, s_t3, 12))
    e(valu("v_lshlrev_b32", V(54), 7, v_lane)); e(valu("v_add_u32", V(54), s_t3, V(54)))
    wqt = [raw("s_mov_b64 exec, 0xffffffff", "salu", wr=["exec"]), bload(V(49), V(54), S_WQ, 0, n=1), raw("s_mov_b64 exec, -1", "salu", wr=["exec"])]
if WT == 2:
    wgt = [raw("s_mov_b64 exec, " + TL, "salu", wr=["exec"]), I("global_load_dword %s, %s, %s" % (V(51), vwg, s_wgp), "vmem", rd=vwg.regs() + s_wgp.regs(), wr=V(51).regs()), raw("s_mov_b64 exec, -1", "salu", wr=["exec"])]
    ln_v.insert(int(os.environ.get("WTP", "0")), wgt)
if WQT == 0: ln_v.append(wqt)
LNPRE = int(os.environ.get("LNPRE", "0"))
lv = [0]
def ln_issue(n=1):
    k = 0
    while k < n and lv[0] < len(ln_v):
        it = ln_v[lv[0]]; lv[0] += 1
        e(it)
        if not isinstance(it, list): k += 1
e(valu("v_bfe_u32", vr, v_lane, 2, 2)); e(valu("v_and_b32", vc_, 3, v_lane))
e(valu("v_lshlrev_b32", vx, 10, vG)); e(valu("v_lshl_add_u32", vx, vr, 7, vx)); e(valu("v_lshl_add_u32", vx, vc_, 3, vx)); e(valu("v_add_u32", vx, s_m0b, vx))
e(valu("v_lshrrev_b32", vy, 1, vr)); e(valu("v_and_b32", vz, 1, vG)); e(valu("v_lshl_add_u32", vy, vz, 1, vy))
for u in range(4):
    e(valu("v_xor_b32", vz, u, vy)); e(valu("v_lshl_add_u32", v_tr[0][u], vz, 5, vx)); e(valu("v_add_u32", v_tr[1][u], 3 * 16384, v_tr[0][u]))
e(valu("v_xor_b32", vy, vG, vq))
for ds in range(4):
    e(valu("v_xor_b32", vz, 4 * ds, vy)); e(valu("v_lshlrev_b32", vz, 4, vz)); e(valu("v_lshl_add_u32", vz, vq, 8, vz)); e(valu("v_add_u32", v_ka[ds], RING + 4 * 16384, vz))
e(valu("v_lshl_add_u32", vx, vG, 2, vr)); e(valu("v_and_b32", vy, 7, vx)); e(valu("v_lshlrev_b32", vx, 8, vx)); e(valu("v_lshl_add_u32", vx, vc_, 3, vx)); e(valu("v_add_u32", vx, RING, vx))
for db in range(8):
    e(valu("v_xor_b32", vz, db, vy)); e(valu("v_lshl_add_u32", v_va[db], vz, 5, vx))
e(salu("s_lshl_b32", s_t1, s_w, 12))
e(valu("v_lshlrev_b32", vx, 8, vG)); e(valu("v_add_u32", vx, s_t1, vx))
for j in range(4):
    e(valu("v_add_u32", vy, 4 * j, vG)); e(valu("v_xor_b32", vy, vy, vq)); e(valu("v_lshl_add_u32", v_kd[j], vy, 4, vx))
e(valu("v_and_b32", vz, 1, v_lane)); e(valu("v_lshl_add_u32", vx, vz, 4, vx))
for j in range(2):
    e(valu("v_add_u32", vy, 4 * j, vG)); e(valu("v_lshrrev_b32", vz, 1, vq)); e(valu("v_xor_b32", vy, vy, vz)); e(valu("v_lshl_add_u32", v_vd[j], vy, 5, vx))
e(salu("s_lshl_b32", s_t1, s_w, 14)); e(valu("v_add_u32", v_wl, s_t1, v_lin))
for ks in range(XFIRST, 16): xissue(ks)
if XD == 2:
    e(valu("v_xor_b32", vx, vq, vG)); e(valu("v_lshlrev_b32", vy, 8, vq)); e(valu("v_add_u32", vy, s_xb, vy))
    for b_ in range(4): e(valu("v_xor_b32", vz, 4 * b_, vx)); e(valu("v_lshl_add_u32", V(48 + 0) if False else vxr[b_], vz, 4, vy))
elif XD:
    e(valu("v_lshrrev_b32", vx, 1, vq)); e(valu("v_xor_b32", vx, vx, vG)); e(valu("v_lshlrev_b32", vx, 4, vx))
    e(valu("v_lshl_add_u32", vx, vq, 7, vx)); e(valu("v_add_u32", vxr[0], s_xb, vx)); e(valu("v_xor_b32", vxr[1], 64, vxr[0]))
e(salu("s_mov_b32", s_t1, hx(WS_FL), scc_w=False))
srd(S_FL, s_pair[0], s_pair[1], 32768, s_t1)
if WQT == 1: e(wqt)
ln_issue(LNPRE)
stamp()

C0 = -2.0 * math.sqrt(2.0 / math.pi) * math.log2(math.e); C1 = C0 * 0.044715
PF1 = int(os.environ.get("PF1", "1")) and ORD
def hpk(i, qb): return v_acc[(((4 + 2 * i) * 4 + qb) * 4, 4)] if PF1 else V(96 + 4 * (i * 4 + qb), 4)
DRY = int(os.environ.get("DRY", "0")) and ORD
s_sub, s_ret = S(92, 2), S(70, 2)
class GeluMark(I):
    def __init__(self): I.__init__(self, "; (gelu subroutine ran)", "label", states=0)
def mix_trans(ops, look=70):
    ops = list(ops); out = []
    def free(j):
        o = ops[j]
        for p in ops[:j]:
            if set(p.wr) & (set(o.rd) | set(o.wr)) or set(p.rd) & set(o.wr): return False
        if out and out[-1].kind == "trans" and o.kind != "trans" and set(out[-1].wr) & set(o.rd): return False
        return True
    D = int(os.environ.get("DEPD", "6"))
    def dist(j):
        o = ops[j]
        for k in range(1, min(D, len(out)) + 1):
            if set(out[-k].wr) & set(o.rd): return k
        return D + 1
    while ops:
        want = "valu" if (out and out[-1].kind == "trans") else "trans"
        cand = [j for j in range(min(look, len(ops))) if free(j)]
        if not cand: out.append(nop(0)); continue
        good = [j for j in cand if dist(j) > D]
        pick = next((j for j in good if ops[j].kind == want), good[0] if good else max(cand, key=lambda j: (dist(j), -j)))
        out.append(ops.pop(pick))
    return out
def gelu_block():
    cc = V(40, 2); one = V(44, 2)
    e(valu("v_mov_b32", cc[0], hx(f2u(C0)))); e(valu("v_mov_b32", cc[1], hx(f2u(C1)))); e(valu("v_mov_b32", one[0], "1.0")); e(nop(4))
    save = em.out; em.out = []
    for i in range(2):
        for qb in range(4):
            pk = hpk(i, qb)
            P_ = [(v_acc[(((2 * i + b) * 4 + qb) * 4 + 2 * k, 2)], v_acc[(((4 + 2 * i + b) * 4 + qb) * 4 + 2 * k, 2)], V(64 + 8 * (qb & 3) + 2 * (2 * b + k), 2)) for b in range(2) for k in range(2)]
            for g_, u_, x_ in P_: e(valu("v_pk_mul_f32", x_, g_, g_))
            for g_, u_, x_ in P_: e(valu("v_pk_fma_f32", x_, x_, cc, cc, mod="op_sel:[0,1,0] op_sel_hi:[1,1,0]"))
            for g_, u_, x_ in P_: e(valu("v_pk_mul_f32", x_, x_, g_))
            for g_, u_, x_ in P_: e(valu("v_exp_f32", x_[0], x_[0])); e(valu("v_exp_f32", x_[1], x_[1]))
            for g_, u_, x_ in P_: e(valu("v_pk_mul_f32", g_, g_, u_))
            for g_, u_, x_ in P_: e(valu("v_pk_add_f32", x_, x_, one, mod="op_sel_hi:[1,0]"))
            for g_, u_, x_ in P_: e(valu("v_rcp_f32", x_[0], x_[0])); e(valu("v_rcp_f32", x_[1], x_[1]))
            if not PF1:
                for g_, u_, x_ in P_: e(valu("v_mov_b64", u_, 0))
            for g_, u_, x_ in P_: e(valu("v_pk_mul_f32", g_, g_, x_))
            for k, (g_, u_, x_) in enumerate(P_): e(valu("v_cvt_pk_bf16_f32", pk[k], g_[0], g_[1]))
    ops = em.out; em.out = save
    for it in (mix_trans(ops) if int(os.environ.get("MIXT", "1")) else ops): e(it)
if DRY:
    e(raw("s_getpc_b64 %s" % s_ret, "salu", wr=[s_ret])); em.label("L_pc3")
    e(salu("s_add_u32", s_ret[0], s_ret[0], "L_gelu_end-L_pc3")); e(salu("s_addc_u32", s_ret[1], s_ret[1], 0, scc_r=True))
    em.label("L_gelu")
    gelu_block()
    e(raw("s_setpc_b64 %s" % s_ret, "salu", rd=[s_ret]))
    em.label("L_gelu_end")
v_f = V(128, 128)
LNM = int(os.environ.get("LNM", "1"))
vsum, vtmp, vmb, vdm = V(40), V(41), V(42), V(43)
vneg = V(56, 2)
diag(2)
if LNM:
    d1, d2 = V(56, 4), (V(60, 4) if XD != 2 else A(196, 4))
    xr = {}
    def xread(t2):
        em.wait(vm=xl[2 * t2 + 1])
        for ks in (2 * t2, 2 * t2 + 1): xr[ks] = e(dsread("ds_read_b128", v_xp[(4 * ks, 4)], vxr[ks & 1], (ks >> 1) * 2048))
    e(valu("v_mov_b32", vtmp, "0x3f803f80"))
    for i in range(4): e(valu("v_accvgpr_write_b32", a_ones[i], vtmp))
    e(valu("v_and_b32", vtmp, 3, v_lane))
    for r in range(1, 4): e(valu("v_cmp_eq_u32", S(68 + 2 * r, 2), r, vtmp))
    e(valu("v_bfe_u32", vtmp, v_lane, 2, 2)); e(valu("v_lshrrev_b32", vmb, 4, v_lane)); e(valu("v_cmp_eq_u32", S(68, 2), vtmp, vmb))
    LND = int(os.environ.get("LND", "4"))
    def xread4(sg):
        em.wait(vm=xl[4 * sg + 3])
        for ks in range(4 * sg, 4 * sg + 4): xr[ks] = e(dsread("ds_read_b128", v_xp[(4 * ks, 4)], vxr[ks & 3], sg * 4096))
    if XD == 1: xread(0)
    for ks in range(16):
        if XD == 2:
            if ks % 4 == 0: xread4(ks // 4)
            em.wait(lg=xr[ks])
        elif XD:
            if ks % 2 == 0 and ks + 2 < 16: xread(ks // 2 + 1)
            em.wait(lg=xr[ks])
        else: em.wait(vm=xl[ks])
        if ks == 15: diag(2)
        x4 = v_xp[(4 * ks, 4)]
        e(mfma(d1, a_ones, x4, 0 if ks == 0 else d1))
        if ks >= LND: ln_issue(1)
        for k in range(2):
            p = 4 * ks + k
            e(valu("v_lshlrev_b32", v_f[2 * p], 16, v_xp[p])); e(valu("v_and_b32", v_f[2 * p + 1], "0xffff0000", v_xp[p]))
        e(mfma(d2, x4, x4, 0 if ks == 0 else d2))
        for k in range(2, 4):
            p = 4 * ks + k
            e(valu("v_lshlrev_b32", v_f[2 * p], 16, v_xp[p])); e(valu("v_and_b32", v_f[2 * p + 1], "0xffff0000", v_xp[p]))
    if STAMP == 3: stamp()
    ln_issue(int(os.environ.get("LN_FIRST", "0")))
    diag(2)
    if STAMP == 3: stamp()
    e(nop(2))
    if XD == 2:
        e(nop(2))
        for r in range(4): e(valu("v_accvgpr_read_b32", V(60 + r), d2[r]))
        d2 = V(60, 4)
    e(valu("v_mul_f32", vsum, hx(f2u(1.0 / 512)), d1[0]))
    e(valu("v_cvt_pk_bf16_f32", vmb, vsum, vsum)); e(valu("v_lshlrev_b32", vmb, 16, vmb))
    e(valu("v_mov_b32", vdm, vsum))
    for r in range(1, 4): e(valu("v_cndmask_b32", d2[0], d2[0], d2[r], S(68 + 2 * r, 2)))
    e(valu("v_cndmask_b32", vsum, 0, d2[0], S(68, 2)))
    red4("v_add_f32", [vsum], [vtmp])
    e(valu("v_mul_f32", vsum, hx(f2u(1.0 / 512)), vsum))
    e(valu("v_fma_f32", vsum, "-" + str(vdm), vdm, vsum, extra_rd=vdm.regs()))
    if STAMP == 3: stamp()
else:
    acc = [V(56, 2), V(58, 2), V(60, 2), V(62, 2)]
    for ks in range(16):
        em.wait(vm=xl[ks])
        if ks == 15: diag(2)
        for k in range(4):
            p = 4 * ks + k
            e(valu("v_lshlrev_b32", v_f[2 * p], 16, v_xp[p])); e(valu("v_and_b32", v_f[2 * p + 1], "0xffff0000", v_xp[p]))
        for k in range(4):
            p = 4 * ks + k
            if ks == 0: e(valu("v_mov_b64", acc[k], v_f[(2 * p, 2)]))
            else: e(valu("v_pk_add_f32", acc[k], acc[k], v_f[(2 * p, 2)]))
    if STAMP == 3: stamp()
    ln_issue(int(os.environ.get("LN_FIRST", "12")))
    diag(2)
    if STAMP == 3: stamp()
    e(valu("v_pk_add_f32", acc[0], acc[0], acc[1])); e(valu("v_pk_add_f32", acc[2], acc[2], acc[3])); e(valu("v_pk_add_f32", acc[0], acc[0], acc[2]))
    e(valu("v_add_f32", vsum, acc[0][0], acc[0][1]))
    red4("v_add_f32", [vsum], [vtmp])
    e(valu("v_mul_f32", vsum, hx(f2u(1.0 / 512)), vsum))
    e(valu("v_cvt_pk_bf16_f32", vmb, vsum, vsum)); e(valu("v_lshlrev_b32", vmb, 16, vmb))
    e(valu("v_sub_f32", vdm, vsum, vmb))
    e(valu("v_sub_f32", vneg[0], 0, vmb))
    acc2 = [V(58, 2), V(60, 2), V(62, 2)]
    for p in range(64):
        e(valu("v_pk_add_f32", v_f[(2 * p, 2)], v_f[(2 * p, 2)], vneg, mod="op_sel_hi:[1,0]"))
    for p in range(64):
        a_ = acc2[p % 3]
        if p < 3: e(valu("v_pk_mul_f32", a_, v_f[(2 * p, 2)], v_f[(2 * p, 2)]))
        else: e(valu("v_pk_fma_f32", a_, v_f[(2 * p, 2)], v_f[(2 * p, 2)], a_))
    if STAMP == 3: stamp()
    e(valu("v_pk_add_f32", acc2[0], acc2[0], acc2[1])); e(valu("v_pk_add_f32", acc2[0], acc2[0], acc2[2]))
    e(valu("v_add_f32", vsum, acc2[0][0], acc2[0][1]))
    red4("v_add_f32", [vsum], [vtmp])
    e(valu("v_mul_f32", vsum, hx(f2u(1.0 / 512)), vsum))
    e(valu("v_fma_f32", vsum, "-" + str(vdm), vdm, vsum, extra_rd=vdm.regs()))
e(valu("v_max_f32", vsum, 0, vsum))
e(valu("v_cvt_pk_bf16_f32", vsum, vsum, vsum)); e(valu("v_lshlrev_b32", vsum, 16, vsum))
e(valu("v_add_f32", vsum, hx(f2u(1e-5)), vsum))
e(valu("v_cvt_pk_bf16_f32", vsum, vsum, vsum)); e(valu("v_lshlrev_b32", vsum, 16, vsum))
e(valu("v_sqrt_f32", vsum, vsum)); e(nop(0))
e(valu("v_cvt_pk_bf16_f32", vsum, vsum, vsum)); e(valu("v_lshlrev_b32", vsum, 16, vsum))
e(valu("v_rcp_f32", vneg[0], vsum)); e(nop(0))
if LNM: e(valu("v_mul_f32", vneg[1], "-" + str(vmb), vneg[0], mod="", extra_rd=vmb.regs()))
for k2 in range(8):
    if not LNM: break
    for p in range(8 * k2, 8 * k2 + 8): e(valu("v_pk_fma_f32", v_f[(2 * p, 2)], v_f[(2 * p, 2)], vneg, vneg, mod="op_sel:[0,0,1] op_sel_hi:[1,0,1]"))
    if k2:
        for ks in (2 * k2 - 2, 2 * k2 - 1): e(dswrite("ds_write_b128", v_wl, v_xp[(4 * ks, 4)], ks * 1024))
    for p in range(8 * k2, 8 * k2 + 8): e(valu("v_cvt_pk_bf16_f32", v_xp[p], v_f[2 * p], v_f[2 * p + 1]))
if LNM:
    for ks in (14, 15): e(dswrite("ds_write_b128", v_wl, v_xp[(4 * ks, 4)], ks * 1024))
for ks in range(16 if not LNM else 0):
    for k in range(4):
        p = 4 * ks + k
        if LNM: e(valu("v_pk_fma_f32", v_f[(2 * p, 2)], v_f[(2 * p, 2)], vneg, vneg, mod="op_sel:[0,0,1] op_sel_hi:[1,0,1]"))
        else: e(valu("v_pk_mul_f32", v_f[(2 * p, 2)], v_f[(2 * p, 2)], vneg, mod="op_sel_hi:[1,0]"))
    for k in range(4):
        p = 4 * ks + k
        e(valu("v_cvt_pk_bf16_f32", v_xp[p], v_f[2 * p], v_f[2 * p + 1]))
    e(dswrite("ds_write_b128", v_wl, v_xp[(4 * ks, 4)], ks * 1024))
ln_issue(int(os.environ.get("LN_LAST", "100")))
if STAMP == 3: stamp()
if DUMP == "ln": dump_regs([v_xp[i] for i in range(64)])
em.wait(lg0=True)
e(raw("s_barrier"))
stamp(); diag(); diag(2); diag(3)

PA = int(os.environ.get("PA", "1"))
SNAKE = int(os.environ.get("SNAKE", "1"))
def cost_of(it):
    k = getattr(it, "kind", "")
    return 2 if k == "trans" else (0 if k in ("salu", "nop") else 1)
class Fill:
    def __init__(self, items, start, end, spread=False): self.items, self.start, self.end, self.spread = list(items), start, end, spread; self.i = 0
    def done(self): return self.i == len(self.items)
def run_stream(NH, dmaf, dtok, accf, Bf, extra, fills, LOOK=6, nq=4, posf=lambda m: m % 6, ring=a_ring, first_dma=6, tr2=None, early_dma=False, w2=lambda g: False):
    NG = 4 * NH
    rtok = {}
    def reads(g):
        m, u = g >> 2, g & 3
        p = posf(m)
        d = ring[((g % 8) * 4, 4)]
        ar, of = (v_tr[p // 3][u], (p % 3) * 16384) if p < 6 else (tr2[u], (p - 6) * 16384)
        r = [dsread("ds_read_b64_tr_b16", d[(2 * h2, 2)], ar, of + h2 * 512) for h2 in range(2)]
        rtok[g] = r[1]
        return r
    assert all(k < NG for k in extra), "extra item scheduled past the end of the stream"
    pre = [reads(g) for g in range(3)]
    G, C = [], []
    cur = None
    for g in range(NG):
        gaps = [[], [], [], []]; cap = [2, 2, 2, 2]
        if g + 3 < NG:
            if (g + 3) & 3 == 0 and not (g > 0 and w2(g - 1)): gaps[0].append(LateW(dtok, (g + 3) >> 2))
            r = reads(g + 3); gaps[0].append(r[0]); gaps[1].append(r[1]); cap[0] -= 1; cap[1] -= 1
        md, j = (g + 4 * LOOK - 4) >> 2, (g + 4 * LOOK - 4) & 3
        if early_dma:
            md, j = (g + 4 * LOOK - 3) >> 2, (g + 4 * LOOK - 3) & 3
            if md >= first_dma and j < 2:
                if j == 0: cur = dmaf(md)
                if cur is not None:
                    if j == 0: gaps[1] += cur[0]
                    gaps[2].append(cur[1][2 * j]); gaps[3].append(cur[1][2 * j + 1]); cap[2] -= 1; cap[3] -= 1
                    if j == 1: dtok[md] = cur[1][3]
        elif md >= first_dma:
            if j == 0: cur = dmaf(md)
            if cur is not None:
                if j == 0: gaps[2] += cur[0]
                for it in cur[1][j::4]: gaps[3].append(it); cap[3] -= 1
                if j == 3: dtok[md] = cur[1][3]
        for (gp, it, cost) in extra.get(g, []):
            gaps[gp].append(it); cap[gp] -= cost
        if w2(g):
            if g & 1 == 0 and g + 1 < NG:
                gaps[3].insert(0, LateW2(rtok, [x for x in (g + 1, g + 2) if x < NG], dtok, (g + 4) >> 2 if ((g + 4) & 3 == 0 and g + 4 < NG) else None))
        elif g + 1 < NG: gaps[3].insert(0, Wait(lg=rtok[g + 1]))
        G.append(gaps); C.append(cap)
    B = {}
    for f in fills:
        idx = [(g, q) for g in range(f.start, f.end) for q in range(4)]
        caps = [max(0, C[g][q]) for g, q in idx]
        W = sum(cost_of(it) for it in f.items); T = sum(caps); n = len(idx)
        acc = 0.0; cum = 0
        for k, key in enumerate(idx):
            if W >= T: acc += caps[k] + (W - T) / n
            elif f.spread: acc += caps[k] * W / T
            else: acc += caps[k]
            B[key] = (f, acc)
    em.wait(vm=dtok[0])
    for r in pre: e(r)
    for p_ in extra.get(-1, []): e(p_[1])
    em.wait(lg0=True)
    used = {id(f): 0 for f in fills}
    for g in range(NG):
        m, u = g >> 2, g & 3
        d = ring[((g % 8) * 4, 4)]
        for qb in range(nq):
            qq = 3 - qb if (SNAKE and g & 1) else qb
            ac, first = accf(m, u, qq)
            e(mfma(ac, d, Bf(m, qq), 0 if first else ac))
            ent = B.get((g, qb))
            sawv = False
            if ent:
                f, lim = ent
                while not f.done() and getattr(f.items[f.i], "kind", "") in ("lds", "vmem", "salu") and used[id(f)] + cost_of(f.items[f.i]) <= lim + 0.5:
                    it = f.items[f.i]; f.i += 1; used[id(f)] += cost_of(it); e(it)
            for it in G[g][qb]: e(it)
            if ent:
                f, lim = ent
                lastgap = (g == f.end - 1 and qb == 3)
                while not f.done():
                    it = f.items[f.i]; c = cost_of(it)
                    if not lastgap:
                        if used[id(f)] + c > lim + 0.5: break
                        if sawv and getattr(it, "kind", "") in ("lds", "vmem"): break
                    f.i += 1; used[id(f)] += c; e(it)
                    if getattr(it, "kind", "") in ("valu", "trans"): sawv = True
    assert all(f.done() for f in fills)
class LateW2:
    def __init__(self, r, fl, d, k): self.r, self.fl, self.d, self.k = r, fl, d, k
    def __call__(self): return Wait(lg=[self.r[f] for f in self.fl], vm=(self.d[self.k] if self.k is not None else None))
class LateW:
    def __init__(self, d, k): self.d, self.k = d, k
    def __call__(self): return Wait(vm=self.d[self.k])

def s1_acc(m, u, qb):
    h = m & 1
    idx = ((h * 4 + u) * 4 + qb) * 4
    if m < 32: return A(idx, 4), m < 2
    return v_acc[(idx, 4)], m < 34
def s1_B(m, qb): return a_B[(((m >> 1) & 1) * 16 + qb * 4, 4)]
extra = {}
btok = {}
W3Z = int(os.environ.get("W3Z", "1"))
v_lz = [V(50), V(51)]
def bread(s, qb): return dsread("ds_read_b128", a_B[((s & 1) * 16 + qb * 4, 4)], v_lz[qb >> 1] if (W3Z and (s >= 16 if ORD else s < 16)) else v_lin, (qb * 16 + (s % 16)) * 1024)
if W3Z:
    s_hz = [S(84 - 16 + 0), S(69)]
    for h in range(2):
        e(salu("s_and_b32", s_t0, s_g, 1)); e(salu("s_lshl_b32", s_t0, s_t0, 2)); e(salu("s_add_u32", s_t0, s_t0, s_w))
        e(scmp("s_cmp_eq_u32", s_t0, 7 if h == 0 else 3)); e(salu("s_cselect_b32", s_hz[h], "0x40000", 0, scc_w=False, scc_r=True))
        e(valu("v_add_u32", v_lz[h], s_hz[h], v_lin))
extra[-1] = [(0, bread(0, qb), 1) for qb in range(4)]
for s in range(1, 32):
    for qb in range(4):
        extra.setdefault(8 * (s - 1) + 1 + qb, []).append((2, bread(s, qb), 1))
gi = 0; gj = 0; pend_s = []
for it in ln_v[lv[0]:]:
    if isinstance(it, list) and all(x.kind == "salu" for x in it): pend_s = it; continue
    if not isinstance(it, list) and it.kind == "dma":
        assert gi < 12
        extra.setdefault(gi // 3, []).append((gi % 3, [pend_s, it] if pend_s else it, 1)); pend_s = []
        gi += 1
    else:
        extra.setdefault(8 + 2 * gj, []).append((1, it, 1)); gj += 1
if WQC == 2: extra.setdefault(int(os.environ.get("WQG", "70")), []).append((1, wqs, 1))
C0 = -2.0 * math.sqrt(2.0 / math.pi) * math.log2(math.e); C1 = C0 * 0.044715
vc0, vc1 = V(40), V(41)
gel = [valu("v_mov_b32", vc0, hx(f2u(C0))), valu("v_mov_b32", vc1, hx(f2u(C1)))]
hst = []
tb = 0
for i in range(2):
    for qb in range(4):
        pk = hpk(i, qb); tb += 1
        for b in range(2):
            u = 2 * i + b
            T = [V(64 + 16 * b + k) for k in range(16)]
            G_, U_, X_ = T[0:4], T[4:8], T[8:12]
            ga = lambda r: A((u * 4 + qb) * 4 + r); ua = lambda r: A(((4 + u) * 4 + qb) * 4 + r)
            for r in range(4): gel.append(valu("v_accvgpr_read_b32", G_[r], ga(r)))
            for r in range(4): gel.append(valu("v_accvgpr_read_b32", U_[r], ua(r)))
            for r in range(4): gel.append(valu("v_mul_f32", X_[r], G_[r], G_[r]))
            for r in range(4): gel.append(valu("v_fma_f32", X_[r], X_[r], vc1, vc0))
            for r in range(4): gel.append(valu("v_mul_f32", X_[r], X_[r], G_[r]))
            for r in range(4): gel.append(valu("v_exp_f32", X_[r], X_[r]))
            for r in range(4): gel.append(valu("v_mul_f32", G_[r], G_[r], U_[r]))
            for r in range(4): gel.append(valu("v_add_f32", X_[r], "1.0", X_[r]))
            for r in range(4): gel.append(valu("v_rcp_f32", X_[r], X_[r]))
            gel.append(nop(0))
            for r in range(4): gel.append(valu("v_mul_f32", G_[r], G_[r], X_[r]))
            for k in range(2): gel.append(valu("v_cvt_pk_bf16_f32", pk[2 * b + k], G_[2 * k], G_[2 * k + 1]))
        st = bstore(pk, v_lz[qb >> 1] if W3Z else v_lin, S_H, s_h1 if i else s_h0, off=qb * 1024, mod="sc1")
        hst.append(st)
class Stamp:
    def __call__(self): stamp(); return []
if STAMP: extra.setdefault(128, []).append((0, Stamp(), 0))
if STAMP == 6:
    for g_ in (0, 8, 16, 24, 32, 48, 64, 96): extra.setdefault(g_, []).append((0, Stamp(), 0))
class Diag3:
    def __call__(self): diag(3); return []
if DIAG == 3:
    for g_ in (32, 128, 192): extra.setdefault(g_, []).append((0, Diag3(), 0))
class Grp:
    kind = "salu"
    def __init__(self, l): self.l = l
    def __call__(self):
        for x in self.l:
            if x.kind == "label": em.out.append(x)
            else: e(x)
        return []
def group_scc(items):
    out = []
    for it in items:
        if out and ("scc" in it.rd or it.kind == "label"):
            p = out.pop(); out.append(Grp((p.l if isinstance(p, Grp) else [p]) + [it]))
        else: out.append(it)
    return out
s_pf = [S(24, 2), S(26, 2), S(28, 2), S(30, 2)]
s_pfH = s_pair2
s_fo = S(3)
QS = math.log2(math.e) / math.sqrt(128.0)
vqs = V(42, 2); vqw = V(44)
save = em.out; em.out = []; spend = em.pend; em.pend = {}
NWO = 4 if MAP2 else 2
for it in range(3):
    e(salu("s_add_u32", s_t0, s_w, 4 * it))
    e(salu("s_sub_u32", s_t1, s_t0, NWO)); e(salu("s_min_u32", s_t1, s_t1, 6)); e(salu("s_lshl_b32", s_t1, s_t1, 13))
    e(salu("s_lshr_b32", s_t2, S(2), 3)); e(salu("s_mul_i32", s_t2, s_t2, 57344, scc_w=False)); e(salu("s_add_u32", s_t1, s_t1, s_t2))
    e(salu("s_add_u32", s_pf[it][0], S_WD[0], s_t1)); e(salu("s_addc_u32", s_pf[it][1], S_WD[1], 0, scc_r=True))
    if it == 0:
        e(sx(s_t1)); e(salu("s_lshl_b32", s_t1, s_t1, 15 if MAP2 else 14)); e(salu("s_lshl_b32", s_t2, s_w, 13)); e(salu("s_add_u32", s_t1, s_t1, s_t2))
        e(salu("s_add_u32", s_pf[1][0], S_WO[0], s_t1)); e(salu("s_addc_u32", s_pf[1][1], S_WO[1], 0, scc_r=True))
        e(scmp("s_cmp_lt_u32", s_w, NWO)); e(salu("s_cselect_b64", s_pf[0], s_pf[1], s_pf[0], scc_w=False, scc_r=True))
e(raw("s_getpc_b64 %s" % s_pf[3], "salu", wr=[s_pf[3]]))
em.label("L_pc1")
e(salu("s_lshl_b32", s_t0, s_w, 13)); e(salu("s_add_u32", s_t0, s_t0, "L_tail-L_pc1")); e(salu("s_min_u32", s_t0, s_t0, "L_code_end-L_pc1-8192"))
e(salu("s_add_u32", s_t1, s_t0, (1 if MAP2 else 3) * 8192)); e(salu("s_min_u32", s_t1, s_t1, "L_code_end-L_pc1-8192"))
e(salu("s_add_u32", s_pfH[0], s_pf[3][0], s_t1)); e(salu("s_addc_u32", s_pfH[1], s_pf[3][1], 0, scc_r=True))
e(scmp("s_cmp_lt_u32", s_w, 3 if MAP2 else 1)); e(salu("s_cselect_b64", s_pf[2], s_pf[2], s_pfH, scc_w=False, scc_r=True))
e(salu("s_add_u32", s_pf[3][0], s_pf[3][0], s_t0)); e(salu("s_addc_u32", s_pf[3][1], s_pf[3][1], 0, scc_r=True))
e(salu("s_lshl_b32", s_t0, s_cg, 2)); e(salu("s_add_u32", s_t0, s_t0, s_w)); e(salu("s_mul_i32", s_t0, s_t0, 7168, scc_w=False)); e(salu("s_min_u32", s_t0, s_t0, 229376 - 8192))
e(salu("s_add_u32", s_pfH[0], S_HC[0], s_t0)); e(salu("s_addc_u32", s_pfH[1], S_HC[1], 0, scc_r=True))
e(salu("s_lshl_b32", s_fo, s_cq, 3))
vx, vy, vz = V(45), V(46), V(47)
e(salu("s_lshl_b32", s_t1, s_w, 8))
pf_part = len(em.out)
dma_voffs(v_wo, 1024, s_t1, True)
e(salu("s_mul_i32", s_wdd, s_w, 448 * 1024 - 256, scc_w=False)); e(salu("s_lshl_b32", s_t3, s_cg, 7)); e(salu("s_add_u32", s_wdd, s_wdd, s_t3))
e(valu("v_mov_b32", vqs[0], hx(f2u(QS))))
e(valu("v_and_b32", vx, 15, v_lane)); e(valu("v_bfe_u32", vqw, v_lane, 5, 1)); e(valu("v_lshl_add_u32", vx, vqw, 4, vx)); e(valu("v_lshlrev_b32", vx, 4, vx))
e(valu("v_bfe_u32", vqw, v_lane, 4, 1)); e(valu("v_lshl_add_u32", vqw, vqw, 3, vx))
e(salu("s_lshl_b32", s_t1, s_w, 14)); e(valu("v_add_u32", vqw, s_t1, vqw))
for i in range(16 if not PF1 else 0): e(valu("v_accvgpr_write_b32", a_L[i], 0))
midset = group_scc(em.out[pf_part - 1:]) if ORD else group_scc(em.out)
pfset = group_scc(em.out[:pf_part - 1]); em.out = save; em.pend = spend
qconv = []
if ORD:
    QS_ = V(42)
    for ds in range(4):
        for q2 in range(2):
            T = [[V(64 + 16 * (q2 & 1) + 8 * j + k) for k in range(8)] for j in range(2)]
            qs = [2 * q2, 2 * q2 + 1]
            for k in range(8):
                for j in range(2): qconv.append(valu("v_accvgpr_read_b32", T[j][k], A(((2 * ds + (k >> 2)) * 4 + qs[j]) * 4 + (k & 3))))
            for k in range(8):
                for j in range(2): qconv.append(valu("v_mul_f32", T[j][k], QS_, T[j][k]))
            for k in range(4):
                for j in range(2): qconv.append(valu("v_cvt_pk_bf16_f32", T[j][k], T[j][2 * k], T[j][2 * k + 1]))
            for sw in ("v_permlane32_swap_b32", "v_permlane16_swap_b32"):
                for k in range(2):
                    for j in range(2): qconv.append(valu(sw, T[j][k], T[j][k + 2]))
            for k in range(4):
                for j in range(2): qconv.append(valu("v_accvgpr_write_b32", A((8 * ds + qs[j]) * 4 + k), T[j][k]))
HST = int(os.environ.get("HST", "0"))
if HST == 0: GEL_END = 254
for k in range(8):
    if HST: extra.setdefault(248 + k, []).append((0, hst[k], 1))
run_stream(64, s1_dma, dtok, s1_acc, s1_B, extra, [Fill(midset, 109, 130), Fill(qconv, 131, 236), Fill(pfset, 237, 255)] if ORD else [Fill(midset, 109, 130), Fill(gel, 131, GEL_END)], early_dma=int(os.environ.get('ED1', '0')), w2=lambda g: int(os.environ.get('W2A', '1')) and g >= 130 and not ORD)
if DUMP == "qacc": dump_regs([v_acc[i] for i in range(128)])
stamp(); diag(3)

if not ORD:
    em.wait(lg0=True)
    e(raw("s_barrier"))
def signal(off_s_expr_add, lab, v_t):
    e(scmp("s_cmp_lg_u32", s_w, 0)); e(raw("s_cbranch_scc1 %s" % lab, rd=["scc"]))
    e(salu("s_lshl_b32", s_t0, s_qb, 2))
    if off_s_expr_add: e(salu("s_add_u32", s_t0, s_t0, off_s_expr_add))
    e(valu("v_mov_b32", v_t, 1))
    e(raw("s_mov_b64 exec, 1", "salu", wr=["exec"]))
    e(raw("buffer_atomic_add %s, off, %s, %s sc1" % (v_t, S_DBG, s_t0)))
    e(raw("s_mov_b64 exec, -1", "salu", wr=["exec"]))
    em.label(lab)
if ORD:
    if DRY:
        e(raw("s_getpc_b64 %s" % s_sub, "salu", wr=[s_sub])); em.label("L_pc2")
        e(salu("s_sub_u32", s_sub[0], s_sub[0], "L_pc2-L_gelu")); e(salu("s_subb_u32", s_sub[1], s_sub[1], 0, scc_r=True))
        e(nop(1)); e(raw("s_swappc_b64 %s, %s" % (s_ret, s_sub), "salu", rd=[s_sub], wr=[s_ret])); em.out.append(GeluMark())
    else: gelu_block()
for blk in range(8 if not ORD else 0):
    for qb in range(4):
        a_ = v_acc[((blk * 4 + qb) * 4, 4)]
        t = a_[(0, 2)]
        for k in range(2): e(valu("v_pk_mul_f32", a_[(2 * k, 2)], a_[(2 * k, 2)], vqs, mod="op_sel_hi:[1,0]"))
        for k in range(2): e(valu("v_cvt_pk_bf16_f32", t[k], a_[2 * k], a_[2 * k + 1]))
        e(dswrite("ds_write_b64", vqw, t, (qb * 4 + (blk >> 1)) * 1024 + (blk & 1) * 512))
for j in range(4): e(valu("v_add_u32", v_wd[j], s_wdd, v_wo[j]))
if not ORD: em.wait(lg0=True)
for f in range(16 if not ORD else 0): e(dsread("ds_read_b128", a_Q[(4 * f, 4)], v_wl, f * 1024))
e(scmp("s_cmp_eq_u32", s_retry, 1)); e(raw("s_cbranch_scc1 L_maxpass", rd=["scc"]))
em.label("L_att_start")
NZ0 = 32
for i in range(NZ0 if not ORD else 1): e(valu("v_mov_b64", v_acc[(2 * i, 2)], 0))
assert LSUM == 1 and LNM and not POI
e(valu("v_lshlrev_b32", V(3), 7, v_lane))
e(valu("v_and_b32", V(38), 7, v_lane)); e(valu("v_mov_b32", V(0), 0))
em.wait(vm=dtok[66], lg0=True)
e(raw("s_barrier"))
if DUMP == "q": dump_regs([a_Q[i] for i in range(64)])
stamp()

def Qf(qb, ds): return A((8 * ds + qb) * 4, 4) if ORD else a_Q[((qb * 4 + ds) * 4, 4)]
def Of(db, qb): return v_acc[((db * 4 + qb) * 4, 4)]
def fr(f): return a_ring[((f % 8) * 4, 4)]
def kslot(par): return 16384 if par == 0 else 0
def vslot(par): return 0 if par == 0 else 16384
def frag_reads(par, f):
    if f >= 32: par ^= 1; f -= 32
    d = fr(f)
    if f < 8 or 16 <= f < 24:
        kb = (f >> 2) if f < 8 else 2 + ((f - 16) >> 2)
        return [dsread("ds_read_b128", d, v_ka[f & 3], kslot(par) + kb * 4096)]
    ks2 = 0 if f < 16 else 1
    db = f & 7
    return [dsread("ds_read_b64_tr_b16", d[(2 * h, 2)], v_va[db], vslot(par) + ks2 * 8192 + h * 4096) for h in range(2)]
def read_sched(g):
    r = []
    if g + 3 < 24 or g >= 29: r.append(g + 3)
    if 19 <= g <= 26: r.append(g + 5)
    return r
def sm_val(g, k):
    if 7 <= g <= 22: b = 1; n = 2 * (g - 7) + k
    else: b = 0; n = 2 * ((g - 23) % 32) + k
    kb, qb, r = n >> 4, (n >> 2) & 3, n & 3
    return b, qb, kb, r
def sm_items(g):
    ex, ad = [], []
    for k in range(2):
        b, qb, kb, r = sm_val(g, k)
        x = v_S[b][qb * 8 + kb * 4 + r]
        l = (v_l1 if b else v_l0)[qb]
        ex.append(valu("v_exp_f32", x, x)); ad.append(valu("v_add_f32", l, l, x))
    b, qb, kb, r = sm_val((g - 1) % 32, 0)
    cv = valu("v_cvt_pk_bf16_f32", v_S[b][qb * 8 + kb * 2 + (r >> 1)], v_S[b][qb * 8 + kb * 4 + r], v_S[b][qb * 8 + kb * 4 + r + 1])
    return ex, ad, cv
def att_dma(par, g):
    if g >= 29: k = g - 29; sp = par
    elif g <= 4: k = g + 3; sp = par ^ 1
    else: return [], None
    sal = []
    if k == 0: sal = [salu("s_add_u32", "m0", s_m0b, 4 * 16384 + kslot(sp))]
    if k == 4: sal = [salu("s_add_u32", "m0", s_m0b, vslot(sp))]
    if k < 4: return sal, dma(v_kd[k], S_K, s_kK, k * 1024)
    return sal, dma(v_vd[k & 1], S_V, s_kV, (k - 4) * 1024)
SIDE_FIRST = 11
class Lbl:
    def __init__(self, n): self.n = n
    def __call__(self): em.label(self.n); return []
class LoopStamp:
    def __init__(self, k, par): self.k, self.par = k, par
    def __call__(self):
        k = self.k
        e(raw("s_memtime %s" % S(68 + 2 * k, 2), "other", wr=[S(68 + 2 * k, 2)]))
        if k == 2:
            e(raw("s_waitcnt lgkmcnt(0)", "wait")); em._retire(em.lgq, 0)
            for i in range(3): e(valu("v_writelane_b32", v_c, S(68 + 2 * i), i, rmw=True))
            e(salu("s_lshl_b32", S(74), S(2), 2)); e(salu("s_add_u32", S(74), S(74), s_w)); e(salu("s_lshl_b32", S(74), S(74), 4))
            e(salu("s_sub_u32", S(74), S(74), s_cnt)); e(salu("s_add_u32", S(74), S(74), 16)); e(salu("s_lshl_b32", S(74), S(74), 5))
            e(salu("s_add_u32", S(74), S(74), (1 << 20) + 16 * self.par))
            e(raw("s_mov_b64 exec, 7", "salu", wr=["exec"]))
            e(valu("v_lshlrev_b32", v_t, 2, v_lane))
            e(bstore(v_c, v_t, S_DMP, S(74), off=0))
            e(raw("s_mov_b64 exec, -1", "salu", wr=["exec"]))
            e(valu("v_lshlrev_b32", v_t, 7, v_lane))
        return []
v_tch, v_flag, v_fa = V(3), V(0), V(38)
xtok = []; lastdma = [None]
NITER = 13 if PF1 else 14
s_po0, s_po1, s_poe = s_h0, s_h1, s_off
s_pfc = S(16, 2); s_kvt = S(18, 2); KVIT = int(os.environ.get('KVIT', '12'))
ROT = int(os.environ.get('ROT', '8'))
LQ = int(os.environ.get("LQ", "2"))
def plan_adds():
    nmem = {}
    for g in range(32):
        n = sum(1 if (f % 32 < 8 or 16 <= f % 32 < 24) else 2 for f in read_sched(g)) + (1 if (g >= 29 or g <= 4) else 0) + (1 if g in (13, 14) else 0)
        nmem[g] = n
    free = {}
    for g in range(32):
        n = nmem[g]; a1 = 2 if n > 2 else min(n, 1); a3 = n - a1
        if a1 < 2: a1 += 1
        else: a3 += 1
        if g == 0: a1 += 1
        free[(g, 1)] = max(0, 2 - a1); free[(g, 3)] = max(0, 2 - a3)
        free[(g, 4)] = 2 if ((g & 8) and (g & 1) and ((g & 7) >> 1) < LQ) else 0
    jobs = []
    for g in range(7, 39):
        for k in range(2):
            b, qb, kb, r = sm_val(g % 32, k)
            if qb < LQ: continue
            early = 4 * g + (1 if k == 0 else 3)
            idx = kb * 4 + r
            if idx < 4:
                gsrc = g + 1 if idx == 0 else (g + 2 if idx == 1 else (g + 8 if idx == 2 else g + 9))
                dead = 4 * gsrc
            else: dead = 4 * (g + 11)
            if b == 1: dead = min(dead, 4 * 30)
            jobs.append((dead, early, b, qb, idx))
    plan = {}
    for dead, early, b, qb, idx in sorted(jobs):
        for t in range(early, dead):
            g, q = t >> 2, t & 3
            for gp in ([1] if q == 1 else ([3, 4] if q == 3 else [])):
                if free[(g % 32, gp)] > 0:
                    free[(g % 32, gp)] -= 1; plan.setdefault((g % 32, gp), []).append((b, qb, idx, g)); break
            else: continue
            break
        else:
            g = early >> 2; plan.setdefault((g % 32, early & 3), []).append((b, qb, idx, g)); print("; add overflow", g, file=sys.stderr)
    return plan
ADDS = plan_adds() if LSUM == 3 else {}
def add_items(g, gp, fin, pro):
    out = []
    for b, qb, idx, gabs in ADDS.get((g, gp), []):
        if fin and b == 0 and g >= 23: continue
        if pro and b == 1: continue
        out.append(valu("v_add_f32", v_l1[qb], v_l1[qb], v_S[b][qb * 8 + idx]))
    return out
ftok = {}
def att_group(par, g, do_mfma=True, do_mem=True, do_cvt=True, last=False, pp=None, xmem=(), xsal=(), xvalu=None, first=False):
    ex, ad, cv = sm_items(g)
    mem = []
    sal = []
    fin = (pp == 3)
    d = None
    if do_mem:
        if fin: sched = ([g + 3] if g + 3 < 16 else []) + ([g + 11] if 13 <= g <= 20 else [])
        else: sched = read_sched(g)
        for f in sched:
            r = frag_reads(par, f); mem += r; ftok[f % 32] = r
        if pp is None or (g <= 4 and pp <= 2) or (g >= 29 and pp <= 1):
            sal, d = att_dma(par, g)
            if d is not None: mem.append(d)
    loop = do_mem and pp is None and not first
    post0 = []
    if loop and par == 0:
        if g == 14: mem.append(I("global_load_dword %s, %s, %s" % (v_c, v_tch, s_pfc), "vmem", rd=v_tch.regs() + s_pfc.regs(), wr=[]))
        if g == 13: mem.append(I("buffer_load_ubyte %s, %s, %s, %s offen sc1" % (v_flag, v_fa, S_DBG, s_t2), "vmem", rd=S_DBG.regs() + s_t2.regs() + v_fa.regs(), wr=[]))
        if g == 8: sal = sal + [scmp("s_cmp_le_u32", s_cnt, ROT)]
        if g in (9, 10, 11, 12):
            q_ = [s_pfc] + s_pf
            sal = sal + [salu("s_cselect_b64", q_[g - 9], q_[g - 8], q_[g - 9], scc_w=False, scc_r=True)]
        if g == 0: post0 = [valu("v_cmp_eq_u32", "vcc", 1, v_flag)]
        if g == 2: sal = sal + [raw("s_cmp_eq_u32 vcc_lo, -1", "salu", rd=["vcc"], wr=["scc"])]
        if g == 3: sal = sal + [salu("s_cselect_b32", s_t0, s_cnt, -1, scc_w=False, scc_r=True)]
        if g == 4: sal = sal + [scmp("s_cmp_eq_u32", s_t0, ROT - 1)]
        if g == 5: sal = sal + [salu("s_cselect_b64", s_pf[3], s_pfH, s_pf[3], scc_w=False, scc_r=True)]
        if g == 15: sal = sal + [salu("s_cselect_b64", s_pf[3], S_K[(0, 2)], s_pf[3], scc_w=False, scc_r=True)]
        if g == 20: sal = sal + [scmp("s_cmp_eq_u32", s_cnt, KVIT + 1)]
        if g == 21: sal = sal + [salu("s_cselect_b64", s_pfc, s_kvt, S_K[(0, 2)], scc_w=False, scc_r=True)]
        if g == 13: sal = sal + [salu("s_cselect_b32", s_t2, s_fo, 256, scc_w=False, scc_r=True)]
        if g == 18: sal = sal + [scmp("s_cmp_eq_u32", s_cnt, s_sig)]
        if g == 19: sal = sal + [raw("s_cbranch_scc1 L_sigH_side", rd=["scc"]), Lbl("L_sigH_ret")]
    if loop and POI and par == 0 and do_mfma:
        if g == 22: sal = sal + [salu("s_add_u32", s_po1, s_po0, 65536)]
        if g == 16: mem.append(bstore(a_poi, v_lin, S_SP, s_po0, mod="sc1"))
        if g == 27: mem.append(bstore(a_poi, v_lin, S_SP, s_po1, mod="sc1"))
        if g == 23: sal = sal + [salu("s_add_u32", s_po0, s_po0, 1024)]
        if g == 24: sal = sal + [salu("s_min_u32", s_po0, s_po0, s_poe)]
    if do_mem and g == 4 and d is not None: lastdma[0] = d
    mem += list(xmem); sal = sal + list(xsal)
    gaps = [[], [], [], []]
    if g == 29 and do_mem and not fin:
        if STAMP == 2 and loop and do_mfma: gaps[0] += [LoopStamp(0, par)]
        gaps[0] += [Wait(lg0=True) if not do_mfma else (Wait(lg0=True, vm0=True) if (pp is None and par == 1) else Wait(lg0=True, vm=lastdma[0]))]
        if STAMP == 2 and loop and do_mfma: gaps[0] += [LoopStamp(1, par)]
        gaps[0] += [raw("s_barrier")]
        if STAMP == 2 and loop and do_mfma: gaps[0] += [LoopStamp(2, par)]
    gaps[0] += sal
    if g == 6 and do_mem and (pp is None or pp <= 1): gaps[0].append(salu("s_add_u32", s_kK, s_kK, 16384))
    if g == 7 and do_mem and (pp is None or pp <= 1): gaps[0].append(salu("s_add_u32", s_kV, s_kV, 16384))
    sm = not (fin and g >= 23)
    if fin and g > 23: do_cvt = False
    if fin and 16 <= g < 24: do_mfma = False
    if LSUM:
        if sm: gaps[0].append(ex[0])
        gaps[1] += mem[0:2] if len(mem) > 2 else mem[0:1]
        gaps[1] += post0
        nf = (g + 1) % 32
        if do_mem and not (fin and (16 <= nf < 24 or nf == 0)): gaps[2].append(Wait(lg=ftok.get(nf)))
        if last and g == 30: gaps[2].append(salu("s_sub_u32", s_cnt, s_cnt, 1))
        if sm: gaps[2].append(ex[1])
        gaps[3] += mem[2:] if len(mem) > 2 else mem[1:]
        pro = not do_mfma and not fin
        gaps[1] += add_items(g, 1, fin, pro)
        if do_cvt: gaps[1 if len([x for x in gaps[1] if x not in ()]) - len(add_items(g, 1, fin, pro)) < 2 else 3].append(cv)
        gaps[3] += add_items(g, 3, fin, pro)
    else:
      gaps[0] += mem[2:3]
      if sm: gaps[0].append(ex[0])
      if len(mem) > 0: gaps[1].append(mem[0])
      if len(mem) == 0 and do_cvt: gaps[1].append(cv)
      if sm: gaps[1].append(ad[0])
      gaps[1] += post0
      nf = (g + 1) % 32
      if do_mem and not (fin and (16 <= nf < 24 or nf == 0)): gaps[2].append(Wait(lg=ftok.get(nf)))
      if last and g == 30: gaps[2].append(salu("s_sub_u32", s_cnt, s_cnt, 1))
      gaps[2] += mem[3:]
      if sm: gaps[2].append(ex[1])
      if len(mem) > 1: gaps[3].append(mem[1])
      if len(mem) > 0 and do_cvt: gaps[3].append(cv)
      if sm: gaps[3].append(ad[1])
    for qb in range(4):
        if do_mfma:
            if g < 8 or 16 <= g < 24:
                b = 1 if g < 8 else 0
                kb, ds = (g >> 2) & 1, g & 3
                d = v_S[b][(qb * 8 + kb * 4, 4)]
                e(mfma(d, fr(g), Qf(qb, ds), v_negm[(qb * 4, 4)] if ds == 0 else d))
            else:
                b = 0 if g < 16 else 1
                qq = 3 - qb if (SNAKE and g & 1) else qb
                if PA: e(mfma(Of(g & 7, qq), v_S[b][(qq * 8, 4)], fr(g), 0 if (first and par == 0 and g < 16) else Of(g & 7, qq)))
                else: e(mfma(Of(g & 7, qq), fr(g), v_S[b][(qq * 8, 4)], Of(g & 7, qq)))
        else:
            if (qb & 1) and not gaps[qb][:1] or ((qb & 1) and getattr(gaps[qb][0], "kind", "") in ("valu",)): e(nop(0))
        for it in gaps[qb]: e(it)
        if xvalu is not None:
            c = 2 - sum(1 for it in gaps[qb] if getattr(it, "kind", "") in ("lds", "vmem", "dma", "valu"))
            while xvalu and c > 0:
                it = xvalu.pop(0); e(it); c -= 2 if it.kind == "trans" else 1
    if LSUM and do_mfma and (g & 8):
        k = g & 7
        lq = None if (fin and g >= 24) else (k >> 1 if k & 1 else None)
        if lq is not None and (LSUM != 3 or lq < LQ): e(mfma(a_L[(4 * lq, 4)], a_ones, v_S[0 if g < 16 else 1][(lq * 8, 4)], 0 if (first and par == 0 and g < 16) else a_L[(4 * lq, 4)]))
    if LSUM == 1 and fin and g == 23:
        e(nop(1))
        for lq in range(4): e(mfma(a_L[(4 * lq, 4)], a_ones, v_S[1][(lq * 8, 4)], a_L[(4 * lq, 4)]))
    if LSUM == 3: e(add_items(g, 4, fin, not do_mfma and not fin))

pr = [dsread("ds_read_b128", fr(f), v_ka[f & 3], (f >> 2) * 4096) for f in range(8)]
for r in pr: e(r)
zr = [valu("v_mov_b32", v_acc[i], 0) for i in ((range(2, 64) if not PF1 else []) if ORD else range(2 * NZ0, 128))]
for f in range(8):
    em.wait(lg=pr[f])
    for qb in range(4):
        d = v_S[0][(qb * 8 + (f >> 2) * 4, 4)]
        e(mfma(d, fr(f), Qf(qb, f & 3), 0 if (f & 3) == 0 else d))
        if qb == 0 and HST == 0 and not PF1: e(hst[f])
        if qb == 2 and f == 0:
            e(raw("s_mov_b64 exec, 3", "salu", wr=["exec"])); e(bstore(v_acc[0], V(3), S_FLZ, s_myfl, mod="sc1")); e(raw("s_mov_b64 exec, -1", "salu", wr=["exec"]))
        for _ in range(2):
            if zr: e(zr.pop(0))
assert not zr
e(salu("s_mov_b32", s_kK, 16384 + 8192, scc_w=False)); e(salu("s_mov_b32", s_kV, 16384, scc_w=False)); e(salu("s_mov_b32", s_cnt, NITER, scc_w=False))
e(scmp("s_cmp_lg_u32", s_retry, 0)); e(raw("s_cbranch_scc1 L_have_max2", rd=["scc"]))
e(nop(3))
mx = [V(97 + 4 * i) for i in range(4)]; mt = [V(98 + 4 * i) for i in range(4)]
for qb in range(4): e(valu("v_max3_f32", mx[qb], v_S[0][qb * 8], v_S[0][qb * 8 + 1], v_S[0][qb * 8 + 2]))
for qb in range(4): e(valu("v_max3_f32", mx[qb], mx[qb], v_S[0][qb * 8 + 3], v_S[0][qb * 8 + 4]))
for qb in range(4): e(valu("v_max3_f32", mx[qb], mx[qb], v_S[0][qb * 8 + 5], v_S[0][qb * 8 + 6]))
for qb in range(4): e(valu("v_max_f32", mx[qb], mx[qb], v_S[0][qb * 8 + 7]))
red4("v_max_f32", mx, mt)
for qb in range(4):
    for k in range(4): e(valu("v_sub_f32", v_negm[qb * 4 + k], 0, mx[qb]))
em.label("L_have_max2")
e(nop(3))
for qb in range(4):
    for k in range(8): e(valu("v_add_f32", v_S[0][qb * 8 + k], v_S[0][qb * 8 + k], v_negm[qb * 4]))
for g in range(23, 29): att_group(1, g, do_mfma=False, do_mem=False, do_cvt=(g != 23))
stamp(); diag()
e(salu("s_and_b32", s_t0, s_qb, 3)); e(salu("s_sub_u32", s_t0, 13, s_t0))
e(scmp("s_cmp_eq_u32", s_w, 0)); e(salu("s_cselect_b32", s_sig, s_t0, -1, scc_w=False, scc_r=True))
e(scmp("s_cmp_eq_u32", s_retry, 0)); e(salu("s_cselect_b32", s_sig, s_sig, -1, scc_w=False, scc_r=True))
e(salu("s_mov_b64", s_pfc, S_K[(0, 2)], scc_w=False))
if POI:
    e(salu("s_lshl_b32", s_po0, s_w, 4)); e(salu("s_add_u32", s_po0, s_po0, s_g)); e(salu("s_lshl_b32", s_po0, s_po0, 13))
    e(salu("s_add_u32", s_poe, s_po0, 7168))
e(scmp("s_cmp_lt_u32", s_w, 2)); e(salu("s_cselect_b64", s_kvt, S_K[(0, 2)], S_V[(0, 2)], scc_w=False, scc_r=True))
e(salu("s_and_b32", s_t0, s_w, 1)); e(sx(s_t1)); e(salu("s_lshl_b32", s_t1, s_t1, 1)); e(salu("s_add_u32", s_t0, s_t0, s_t1)); e(salu("s_lshl_b32", s_t0, s_t0, 13))
if MAP2: e(salu("s_add_u32", s_t0, s_t0, 262144))
e(salu("s_add_u32", s_kvt[0], s_kvt[0], s_t0)); e(salu("s_addc_u32", s_kvt[1], s_kvt[1], 0, scc_r=True))
for g in range(29, 32): att_group(1, g, do_mfma=False, do_mem=True)
if PF1:
    assert PA
    for par in range(2):
        for g in range(32): att_group(par, g, first=True, xmem=([hst[g - 5]] if (par == 0 and 5 <= g < 13) else []))
pro_end = len(em.out)
em.directive(".p2align 6")
em.label("L_att_loop")
def body():
    for par in range(2):
        for g in range(32): att_group(par, g, last=(par == 1))
b0 = len(em.out)
body()
b1 = len(em.out)
e(scmp("s_cmp_lg_u32", s_cnt, 0)); e(raw("s_cbranch_scc1 L_att_loop", rd=["scc"]))
b2 = len(em.out)
body()
second = em.out[b2:]; del em.out[b2:]
assert [i.text for i in second] == [i.text for i in em.out[b0:b1]], "loop not in steady state"
loop_probs = check_hazards(em.out[b1 - 40:b2] + second[:60], "loop-wrap")

em.label("L_tail")
v_ring2 = V(64, 32); v_B2 = V(96, 32)
QH = int(os.environ.get('QH', '0'))
XY = int(os.environ.get('XY', '0'))
NF1 = int(os.environ.get('NF1', '8'))
def hreg(kk, qb):
    if QH and 8 <= kk < 12: return A(16 * (kk - 8) + qb * 4, 4)
    if QH and kk >= 12: kk -= 4
    if kk >= 8: kk -= 8
    if ORD and kk < 4: return A(((2 * kk + 1) * 4 + qb) * 4, 4)
    return A((64 + 16 * kk if kk < 4 else 160 + 16 * (kk - 4)) + qb * 4, 4)
def Facc(u, qb):
    t = u * 4 + qb
    return A(128 + 4 * t if t < 8 else 224 + 4 * (t - 8), 4)
POS2 = [5, 0, 2, 3, 4, 1]
NB = int(os.environ.get("NB", "4"))
def pos2(m): return 6 + m if m < NB else POS2[(m - NB) % 6]
def kind2(m):
    if m < NF1: return ("F", m)
    if m < NF1 + 32: return ("O", (m - NF1) & 15, (m - NF1) >> 4) if XY else ("O", (m - NF1) >> 1, (m - NF1) & 1)
    return ("F", m - 32)
def s2_dma(m):
    if m >= 46: return None
    p = pos2(m); k = kind2(m)
    if k[0] == "O":
        return [m0set(p), salu("s_mov_b32", s_off, k[1] * 32 * 1024 + 128 * k[2], scc_w=False)], [dma(v_wo[j], S_WO, s_off, j * 1024) for j in range(4)]
    return [m0set(p), salu("s_mov_b32", s_off, k[1] * 32 * 1024, scc_w=False)], [dma(v_wd[j], S_WD, s_off, j * 1024) for j in range(4)]
dtok2 = {}; s2pre = {}
for m in range(6 + NB):
    s2pre[m] = s2_dma(m); dtok2[m] = s2pre[m][1][3]
class Seq:
    kind = "vmem"
    def __init__(self, l): self.l = l
    def __call__(self): return self.l
hld = {}; htok = {}
for kk in range(14):
    hld[kk] = [bload(hreg(kk, qb), v_lin, S_HC, s_hl, off=qb * 1024, mod="sc1") for qb in range(4)]
    htok[kk] = hld[kk][3]
e(salu("s_mov_b32", s_cnt, 0, scc_w=False))
em.label("L_pollH")
e(valu("v_cmp_ne_u32", "vcc", 1, v_flag)); e(salu("s_mul_i32", s_hb, s_w, 14 * 4096, scc_w=False)); e(nop(1))
e(raw("s_cbranch_vccz L_pollH_done", rd=["vcc"]))
e(salu("s_add_u32", s_cnt, s_cnt, 1)); e(scmp("s_cmp_ge_u32", s_cnt, 50000)); e(raw("s_cbranch_scc1 L_pollH_done", rd=["scc"]))
e(raw("s_sleep 4")); e(raw("buffer_load_ubyte %s, %s, %s, %s offen sc1" % (v_flag, v_fa, S_DBG, s_fo))); e(raw("s_waitcnt vmcnt(0)")); e(raw("s_branch L_pollH"))
em.label("L_pollH_done")
xaddr(V(39), V(0))
assert LSUM == 1
xsl = [bload(V(40 + 2 * u, 2), V(39), S_XC, 0, off=32 * u, n=2) for u in range(4)]
NH0 = 32
hsl = sorted([(pp, g) for pp in range(3) for g in (5, 13, 14, 15, 16, 17, 18, 27, 28, 9, 11)])[:NH0]
if QH:
    hsl += [(3, g) for g in list(range(8, 16)) + list(range(24, 32))]; NH0 = 48
px = {}
for k, key in enumerate(hsl):
    px.setdefault(key, ([], []))
    px[key][0].append(hld[k >> 2][k & 3])
    if k & 3 == 0: px[key][1].append(salu("s_add_u32", s_hl, s_hb, (k >> 2) * 4096))
for u in range(4): px.setdefault((int(os.environ.get('XSP', '3')), int(os.environ.get('XSG0', '13')) + u), ([], []))[0].append(xsl[u])
wsl = [(pp, g) for pp in range(2) for g in (6, 7, 8, 10, 12, 21, 22, 23)][:4 * NB] + [(2, 29), (2, 30), (2, 31), (3, 0), (3, 1), (3, 2), (3, 3), (3, 4)] + ([(2, g) for g in (6, 7, 8, 10, 12, 21, 22, 23)] if QH else [(3, g) for g in range(5, 13)]) + [(3, g) for g in range(24, 32)]
for k, key in enumerate(wsl):
    px.setdefault(key, ([], []))
    m, j = k >> 2, k & 3
    px[key][0].append(s2pre[m][1][j])
    if j == 0: px[key][1].extend(s2pre[m][0])
px[(3, 24)][1][:0] = [Wait(lg0=True), raw("s_barrier")]
lt = [V(48 + i) for i in range(4)]
NPK = int(os.environ.get("NPK", "0"))
rinv = [V(52 + i) for i in range(4)]
vxf = V(40, 8)
save = em.out; em.out = []
for qb in range(4): e(valu("v_accvgpr_read_b32", lt[qb], a_L[4 * qb]))
e(valu("v_add_f32", V(60), lt[0], lt[1])); e(valu("v_add_f32", V(61), lt[2], lt[3])); e(valu("v_add_f32", V(60), V(60), V(61)))
for qb in range(4): e(valu("v_rcp_f32", rinv[qb], lt[qb]))
e(valu("v_cmp_nge_f32", "vcc", hx(f2u(2.0 ** 30)), V(60)))
v_tr2 = V(56, 4); v_ow = V(62)
for u in range(4): e(valu("v_subrev_u32", v_tr2[u], RING, v_tr[0][u]))
if PA:
    def rT(qb, r): return V(100 + 8 * qb + r)
    v_l8 = V(63)
    vcap = em.lgq, em.pend; em.lgq, em.pend = [], {}
    e(valu("v_and_b32", V(61), 48, v_lane))
    for qb in range(4):
        for r in range(4): e(I("ds_bpermute_b32 %s, %s, %s offset:%d" % (rT(qb, r), V(61), rinv[qb], 4 * r), "lds", rd=["v61"] + rinv[qb].regs(), wr=rT(qb, r).regs()))
    em.lgq, em.pend = vcap
    e(valu("v_lshrrev_b32", v_l8, 4, v_lane)); e(valu("v_bfe_u32", V(60), v_lane, 2, 2)); e(valu("v_xor_b32", V(60), V(60), v_l8))
    e(valu("v_and_b32", v_ow, 15, v_lane)); e(valu("v_lshlrev_b32", v_ow, 5, v_ow)); e(valu("v_lshl_add_u32", v_ow, V(60), 3, v_ow))
    e(valu("v_subrev_u32", v_ow, RING, v_ow)); e(valu("v_add_u32", v_ow, s_m0b, v_ow))
    e(valu("v_xor_b32", v_l8, v_l8, v_lane)); e(valu("v_lshlrev_b32", v_l8, 3, v_l8))
else:
    e(valu("v_subrev_u32", v_ow, RING, v_lin)); e(valu("v_add_u32", v_ow, s_m0b, v_ow))
lred = em.out; em.out = save
for pp in range(4):
    for g in range(32):
        if STAMP == 4 and g in (0, 16): stamp()
        xm, xs = px.get((pp, g), ([], []))
        att_group(pp & 1, g, pp=pp, xmem=xm, xsal=xs, xvalu=(lred if (pp == 3 and g >= (26 if LSUM else 24)) else None))
for it in lred: e(it)
diag(); stamp()
if DUMP == "o":
    e(nop(7))
    for db in range(8):
        for qb in range(4):
            for k in range(4): e(valu("v_mul_f32", Of(db, qb)[k], Of(db, qb)[k], rinv[qb]))
    dump_regs([v_acc[i] for i in range(128)])

vm_ = V(60); vma = V(61)
class Mark:
    kind = "salu"
    def __init__(self, t): self.t = t
    def __call__(self):
        e(raw("s_cbranch_vccz L_nomark", rd=["vcc"])); e(valu("v_mov_b32", self.t, hx(MARK))); em.label("L_nomark"); return []
norm = [valu("v_and_b32", vma, 3, v_lane), valu("v_lshlrev_b32", vma, 12, vma)]
ow = []; ncv = []; ow2 = []
assert not (PA and (NB == 0 or NPK))
NPK_N = int(os.environ.get("NPK_N", "16")) if NPK else 0
for i in range(4):
    for qb in range(4):
        t = Of(2 * i, qb)
        for b in range(2):
            if i * 4 + qb < NPK_N:
                rp = V(52 + (qb & ~1), 2)
                for k in range(2): norm.append(valu("v_pk_mul_f32", Of(2 * i + b, qb)[(2 * k, 2)], Of(2 * i + b, qb)[(2 * k, 2)], rp, mod="op_sel:[0,%d] op_sel_hi:[1,%d]" % (qb & 1, qb & 1)))
            else:
                for k in range(4): norm.append(valu("v_mul_f32", Of(2 * i + b, qb)[k], Of(2 * i + b, qb)[k], rT(qb, k) if PA else rinv[qb]))
        for b in range(2):
            o = Of(2 * i + b, qb)
            for k in range(2): norm.append(valu("v_cvt_pk_bf16_f32", t[2 * b + k], o[2 * k], o[2 * k + 1]))
        ncv.append(norm[-1])
        if PA: ow2.append(dswrite("ds_write_b64", v_ow, t[(2, 2)], i * 16384 + qb * 1024 + 512))
        if i == 0 and qb == 0: norm.append(Mark(t[0]))
        ow.append(dswrite("ds_write_b64", v_ow, t[(0, 2)], i * 16384 + qb * 1024) if PA else dswrite("ds_write_b128", v_ow, t, i * 16384 + qb * 1024))
        if NB == 0: norm.append(ow[-1])
if NPK_N:
    cut = norm.index(ncv[NPK_N - 1]) + 1
    e(nop(4))
    for it in norm[:cut]: e(it)
    norm = norm[cut:]
class ChkNorm:
    def __init__(self, k): self.k = k
    def __call__(self):
        assert ncv[self.k].tok, "O write %d scheduled before its data" % self.k
        return [ow[self.k], ow2[self.k]] if PA else ow[self.k]
G0 = 4 * NF1
G1 = G0 + 128
mk = dsread("ds_read_b32", vm_, vma, 0)
class OBar:
    def __call__(self):
        assert all(w.tok for w in ow)
        em.wait(lg0=True); e(raw("s_barrier")); stamp(); e(mk); return []
class FbCheck:
    def __call__(self):
        em.wait(lg=mk)
        e(valu("v_cmp_eq_u32", "vcc", hx(MARK), vm_))
        e(scmp("s_cmp_lg_u32", s_retry, 0)); e(raw("s_cbranch_scc1 L_nofb", rd=["scc"]))
        e(nop(1))
        e(raw("s_cbranch_vccnz L_fallback", rd=["vcc"]))
        em.label("L_nofb")
        return []
def s2_acc(m, u, qb):
    k = kind2(m)
    if k[0] == "O": return v_acc[(((k[2] * 4 + u) * 4 + qb) * 4, 4)], k[1] == 0
    return Facc(u, qb), k[1] == 0
def s2_B(m, qb):
    k = kind2(m)
    if k[0] == "O": return v_B2[((k[1] & 1) * 16 + qb * 4, 4)]
    return hreg(k[1], qb)
def oread(s, qb):
    d = v_B2[((s & 1) * 16 + qb * 4, 4)]; of = (s & 3) * 16384 + (s >> 2) * 4096 + qb * 1024
    if PA: return [dsread("ds_read_b64_tr_b16", d[(2 * b, 2)], v_l8, of + 512 * b) for b in range(2)]
    return dsread("ds_read_b128", d, v_lin, of)
extra = {}
if NB:
    OW0 = int(os.environ.get("OW0", "11")); OWN = int(os.environ.get("OWN", "1"))
    for k in range(16):
        gg = OW0 + k // OWN
        assert (k >> 2) >= NB or gg > 4 * (k >> 2) + 3
        extra.setdefault(gg, []).append((2 + (k % OWN) % 2, ChkNorm(k), 1))
GB = G0 - int(os.environ.get("OBAR", "3"))
extra.setdefault(GB, []).append((0, OBar(), 0))
r0 = [oread(0, qb) for qb in range(4)]
for qb in range(4): extra.setdefault(GB + (qb >> 1), []).append((1 + (qb & 1) if qb < 2 else (qb & 1) * 2, r0[qb], 1))
extra.setdefault(G0 - 1, []).append((2, [Wait(lg=([x for y in r0 for x in y] if PA else r0)), FbCheck()], 0))
if XY:
    for mm in range(1, 32):
        rr = [oread(mm & 15, qb) for qb in range(4)]
        for qb in range(4): extra.setdefault(G0 + 4 * (mm - 1) + (qb >> 1), []).append((2 + (qb & 1), rr[qb], 1))
        extra.setdefault(G0 + 4 * mm - 1, []).append((2, Wait(lg=([x for y in rr for x in y] if PA else rr)), 0))
else:
    for s_ in range(1, 16):
        for qb in range(4): extra.setdefault(G0 + 8 * (s_ - 1) + 1 + qb, []).append((2, oread(s_, qb), 1))
class LateWait:
    def __init__(self, f): self.f = f
    def __call__(self): return Wait(vm=self.f())
vxa = V(48); vpoll = V(49); vfw = V(50)
vx, vy, vz = V(59), V(57), V(58)
save = em.out; em.out = []
xaddr(vxa, vx)
e(valu("v_and_b32", V(51), 7, v_lane)); e(valu("v_lshlrev_b32", V(51), 2, V(51)))
e(valu("v_add_u32", vfw, s_m0b, v_lin)); e(salu("s_lshl_b32", s_t0, s_w, 14)); e(salu("s_add_u32", s_t0, s_t0, RING)); e(valu("v_add_u32", V(55), s_t0, v_lin))
e(salu("s_lshl_b32", s_t3, s_w, 4)); e(salu("s_add_u32", s_t3, s_t3, s_g)); e(salu("s_lshl_b32", s_t3, s_t3, 13))
early = em.out; em.out = save
extra.setdefault(-1, []).append((0, LateWait(lambda: htok[0]), 0))
for kk in range(1, 14):
    g_ = 4 * kk if kk < NF1 else 4 * (kk + 32)
    extra.setdefault(g_ - 1, []).append((2, LateWait(lambda kk=kk: htok[kk]), 0))
HG0 = int(os.environ.get("HG0", "5")); HGS = int(os.environ.get("HGS", "1"))
for k in range(NH0, 56):
    prev = (k >> 2) - (12 if QH else 8)
    gfree = (4 * prev if prev < NF1 else 4 * (prev + 32)) + 5 + (k & 3)
    extra.setdefault(max(gfree, HG0 + HGS * (k - NH0)), []).append((2, Seq([salu("s_add_u32", s_hl, s_hb, (k >> 2) * 4096), hld[k >> 2][k & 3]]), 1))
def sreg(ip, qb, odd=0): return v_acc[(((2 * ip + odd) * 4 + qb) * 4, 4)]
SPV_ = int(os.environ.get('SPV', '1'))
sp = []; spst = []; stq = []
s_oob = S(19)
if os.environ.get("NOST") or os.environ.get("NOLD"): e(salu("s_mov_b32", s_oob, 524288, scc_w=False))
NSI = int(os.environ.get("NSI", "11"))
s_so = [s_t1, s_cnt, s_h0, s_h1]
for k in range(4): sp.append(salu("s_add_u32", s_so[k], s_t3, (k >> 1) * 65536 + (k & 1) * 4096))
for ip in range(4):
    for qb in range(4):
        t = sreg(ip, qb)
        for b in range(2):
            o = sreg(ip, qb, b)
            for k in range(2): sp.append(valu("v_cvt_pk_bf16_f32", t[2 * b + k], o[2 * k], o[2 * k + 1]))
        st = bstore(t, v_lin, S_SP, s_so[(ip >> 1) * 2 + (qb >> 1)], off=(qb & 1) * 2048 + (ip & 1) * 1024, mod="sc1")
        if os.environ.get("NOST") and not (ip == 3 and qb == 3): st = bstore(t, v_lin, S_SP, s_oob, off=0)
        spst.append((st, sp[-1]))
class St:
    def __init__(self, k): self.k = k
    def __call__(self):
        assert spst[self.k][1].tok
        return spst[self.k][0]
STG = int(os.environ.get("STG", "2"))
if XY:
    GY = G0 + 64
    XS0 = int(os.environ.get("XS0", "4")); XSG = int(os.environ.get("XSG", "5")); XFL = int(os.environ.get("XFL", "60"))
    for k in range(8): extra.setdefault(GY + XS0 + XSG * k, []).append((1, St(k), 1))
    class XFlag:
        def __call__(self): em.wait(vm=spst[7][0]); return flag_store(0)
    hx_ = sp.index(spst[7][1]) + 1
    if NF1 == 14:
        NSI = 8; spf = [Fill(sp[:hx_], GY + 2, GY + 14)]; ypost = sp[hx_:]
    else:
        extra.setdefault(GY + XFL, []).append((1, XFlag(), 1))
        NSI = int(os.environ.get("NSI", "16"))
        for k in range(8, NSI): extra.setdefault(G1 + 3 + STG * (k - 8), []).append((2, St(k), 1))
        spf = [Fill(sp[:hx_], GY + 2, GY + 14), Fill(sp[hx_:], G1 + 2, G1 + 10)]
else:
    if NF1 == 14:
        NSI = 0; spf = []; ypost = sp
    else:
        for k in range(NSI): extra.setdefault(G1 + 3 + STG * k, []).append((2, St(k), 1))
        spf = [Fill(sp, G1 + 2, G1 + int(os.environ.get("CVL", "16")))]
if POI:
    assert not XY and SPV_
    hint = [valu("v_mov_b32", V(57), 2), valu("v_lshlrev_b32", V(58), 7, v_lane), raw("s_mov_b64 exec, 3", "salu", wr=["exec"]),
            bstore(V(57), V(58), S_FL, s_myfl, mod="sc1"), raw("s_mov_b64 exec, -1", "salu", wr=["exec"])]
    extra.setdefault(G1 + int(os.environ.get("HINT", "4")), []).append((1, hint, 1))
FLG = int(os.environ.get("FLG", "0"))
if FLG:
    assert NSI == 16
    class YFlag:
        def __call__(self):
            em.wait(vm=spst[-1][0]); stamp()
            e(([] if XY else flag_store(0)) + flag_store(1))
            if MIDPOST == 5: static_loads()
            return []
    extra.setdefault(G1 + FLG, []).append((1, YFlag(), 1))
sti = [NSI]
def st_next(n=1):
    for _ in range(n):
        if sti[0] < 16: e(spst[sti[0]][0]); sti[0] += 1
def flag_store(h):
    return [valu("v_mov_b32", v_t, 1), raw("s_mov_b64 exec, 1", "salu", wr=["exec"]), bstore(v_t, None, S_FL, s_myfl, off=128 * h, mod="sc1"), raw("s_mov_b64 exec, -1", "salu", wr=["exec"])]
vpa = V(51)
s_done, s_new, s_sb = s_kK, s_kV, s_fo
SPV = int(os.environ.get("SPV", "1"))
def spl(gp, i): return sreg(gp >> 1, (gp & 1) * 2 + i, 0) if SPV else A((gp * 2 + i) * 4, 4)
def flag_load(): return bload(vpoll, vpa, S_FL, s_t2, n=1, mod="sc1")
lblc = [0]
def issue_new():
    k = lblc[0]; lblc[0] += 1
    e(valu("v_cmp_eq_u32", "vcc", 1, vpoll)); e(nop(1))
    e(raw("s_andn2_b32 %s, vcc_lo, %s" % (s_new, s_done), "salu", rd=["vcc", s_done], wr=[s_new, "scc"])); e(salu("s_and_b32", s_new, s_new, 255))
    e(raw("s_cbranch_scc0 L_in%d_end" % k, rd=["scc"]))
    e(salu("s_or_b32", s_done, s_done, s_new))
    for gp in range(8):
        e(scmp("s_bitcmp1_b32", s_new, gp)); e(raw("s_cbranch_scc0 L_in%d_%d" % (k, gp), rd=["scc"]))
        e(salu("s_add_u32", s_t0, s_sb, gp * 8192) if not os.environ.get("NOLD") else salu("s_mov_b32", s_t0, s_oob, scc_w=False))
        for i in range(2): e(raw(bload(spl(gp, i), v_lin, S_SPC, s_t0, off=i * 1024, mod="sc1").text))
        em.label("L_in%d_%d" % (k, gp))
    em.label("L_in%d_end" % k)
def static_loads():
    e(valu("v_cmp_eq_u32", "vcc", 1, vpoll)); e(nop(1))
    e(raw("s_and_b32 %s, vcc_lo, 255" % s_done, "salu", rd=["vcc"], wr=[s_done, "scc"]))
    for gp in range(8):
        e(salu("s_add_u32", s_t0, s_sb, gp * 8192)); e(scmp("s_bitcmp1_b32", s_done, gp)); e(salu("s_cselect_b32", s_t0, s_t0 if not os.environ.get("NOLD") else s_oob, 524288, scc_w=False, scc_r=True))
        for i in range(2): e(bload(spl(gp, i), v_lin, S_SPC, s_t0, off=i * 1024, mod="sc1"))
pinit = [salu("s_lshl_b32", s_t2, s_cq, 3), salu("s_add_u32", s_t2, s_t2, s_cg), salu("s_lshl_b32", s_t2, s_t2, 7), salu("s_mov_b32", s_done, 0, scc_w=False),
         salu("s_lshl_b32", s_sb, s_cg, 16), salu("s_lshl_b32", s_new, s_w, 11), salu("s_add_u32", s_sb, s_sb, s_new)]
extra.setdefault(G1 - 8, []).append((1, pinit, 0))
class MidPoll:
    def __init__(self, tok): self.tok = tok
    def __call__(self):
        em.wait(vm=self.tok); issue_new()
        e(salu("s_mov_b32", s_hb, s_done, scc_w=False))
        midmark.append(em.vm_total)
        return []
midmark = []
if int(os.environ.get("MID", "1")):
    pt = flag_load()
    MIDPOST = int(os.environ.get("MIDPOST", "2"))
    if MIDPOST == 4: extra.setdefault(184 - int(os.environ.get("MID4", "6")), []).append((2, pt, 1))
    else: extra.setdefault(G1 - int(os.environ.get("MID0", "-4")), []).append((2, pt, 1))
    if not MIDPOST: extra.setdefault(G1 + int(os.environ.get("MID1", "3")), []).append((0, MidPoll(pt), 0))
    elif MIDPOST != 4 and int(os.environ.get("MID0", "-4")) > 0 and NF1 < 14: extra.setdefault(G1 + 2, []).append((0, Wait(vm=pt), 0))
    if MIDPOST == 3:
        extra[G1 + 2].pop(); extra[G1 - int(os.environ.get("MID0", "-4"))].pop()
if STAMP and NF1 < 14: extra.setdefault(G1, []).append((0, Stamp(), 0))
if STAMP == 5:
    for g_ in (0, 8, 16, 24): extra.setdefault(g_, []).append((0, Stamp(), 0))
class Diag:
    def __call__(self): diag(); return []
if DIAG and NF1 < 14: extra.setdefault(G1, []).append((0, Diag(), 0))
vs = [Fill(norm, 0, GB - (3 if NB else 1)), Fill(early, G0 + 2, G0 + 40)] + spf
run_stream(46, s2_dma, dtok2, s2_acc, s2_B, extra, vs, posf=pos2, ring=v_ring2, first_dma=6 + NB, tr2=v_tr2, early_dma=int(os.environ.get('ED2', '0')), w2=lambda g: int(os.environ.get('W2B', '1')) and g < 28)
stamp(); diag()
if NF1 == 14:
    fw = [dswrite("ds_write_b128", vfw, Facc(u, qb), qb * 16384 + u * 1024) for qb in range(4) for u in range(4)]
    for k in range(4): e(fw.pop(0))
    e(nop(3))
    for it in ypost:
        e(it)
        if any(it is c for _, c in spst):
            st_next()
            if fw: e(fw.pop(0))
            if XY and sti[0] == int(os.environ.get("XFP", "12")): em.wait(vm=spst[7][0]); e(flag_store(0))
    for it in fw: e(it)
    stamp()
if MIDPOST == 4:
    em.wait(vm=pt); static_loads()
if MIDPOST == 3:
    st_next(16); fl3 = e(flag_load())
e(nop(5))
for qb in range(4 if NF1 < 14 else 0):
    for u in range(4):
        if len(em.lgq) >= 12: em.wait(lg=em.lgq[-12])
        e(dswrite("ds_write_b128", vfw, Facc(u, qb), qb * 16384 + u * 1024))
    if qb & 1: st_next(int(os.environ.get("STW", "1")))
if MIDPOST == 6:
    st_next(16); em.wait(vm=spst[-1][0]); stamp(); e(flag_store(0) + flag_store(1)); static_loads()
v_fr = V(96, 16); vE = V(64, 16); vs_ = V(80, 16)
for k in range(8): e(valu("v_mov_b64", vs_[(2 * k, 2)], 0))
if MIDPOST == 3:
    em.wait(vm=fl3); stamp()
    if not XY: e(flag_store(0))
    e(flag_store(1))
    static_loads()
em.wait(lg0=True)
e(raw("s_barrier"))
def frr(ws_, u): return sreg(ws_, u, 1)
for ws_ in range(4):
    for u in range(4):
        if len(em.lgq) >= 14: em.wait(lg=em.lgq[-14])
        e(dsread("ds_read_b128", frr(ws_, u), V(55), ws_ * 4096 + u * 1024))
st_next()
if MIDPOST:
    st_next(16)
    if MIDPOST == 1: static_loads()
em.wait(lg0=True)
for u in range(4):
    for k in range(2):
        e(valu("v_pk_add_f32", frr(0, u)[(2 * k, 2)], frr(0, u)[(2 * k, 2)], frr(1, u)[(2 * k, 2)]))
        e(valu("v_pk_add_f32", frr(2, u)[(2 * k, 2)], frr(2, u)[(2 * k, 2)], frr(3, u)[(2 * k, 2)]))
for u in range(4):
    for k in range(2): e(valu("v_pk_add_f32", v_fr[(4 * u + 2 * k, 2)], frr(0, u)[(2 * k, 2)], frr(2, u)[(2 * k, 2)]))
for k in range(16): e(valu("v_mul_f32", vE[k], hx(f2u(-math.log2(math.e))), v_fr[k]))
st_next()
for k in range(16): e(valu("v_exp_f32", vE[k], vE[k]))
for k in range(16): e(valu("v_add_f32", vE[k], "1.0", vE[k]))
st_next()
for k in range(16): e(valu("v_rcp_f32", vE[k], vE[k]))
for k in range(16): e(valu("v_mul_f32", v_fr[k], v_fr[k], vE[k]))
for k in range(8):
    e(valu("v_lshlrev_b32", vE[2 * k], 16, vxf[k])); e(valu("v_and_b32", vE[2 * k + 1], "0xffff0000", vxf[k]))
st_next()
stamp()
accn = [0]
def acc_pieces(mask, sprinkle=False):
    n = accn[0]; accn[0] += 1
    for gp in range(8):
        e(scmp("s_bitcmp1_b32", mask, gp)); e(raw("s_cbranch_scc0 L_acc%d_%d" % (n, gp), rd=["scc"]))
        if not SPV:
            for k2 in range(8): e(valu("v_accvgpr_read_b32", V(120 + k2), spl(gp, k2 >> 2)[k2 & 3]))
        assert SPV
        for k in range(8):
            src = spl(gp, k >> 2)[k & 3]
            e(valu("v_lshlrev_b32", V(112 + 2 * k), 16, src)); e(valu("v_and_b32", V(113 + 2 * k), "0xffff0000", src))
        for k in range(8): e(valu("v_pk_add_f32", vs_[(2 * k, 2)], vs_[(2 * k, 2)], V(112 + 2 * k, 2)))
        em.label("L_acc%d_%d" % (n, gp))
        if sprinkle and gp & 1: st_next()
if midmark:
    n_y = em.vm_total - midmark[0]
    e(raw("s_waitcnt vmcnt(%d)" % n_y, "wait")); em._retire(em.vmq, n_y)
    acc_pieces(s_hb, sprinkle=True)
st_next(16)
if POI:
    s_want = s_new
    e(salu("s_mov_b32", s_cnt, 0, scc_w=False)); e(salu("s_mov_b32", s_t1, hx(POISON), scc_w=False))
    if MIDPOST == 2: em.wait(vm=pt)
    stamp()
    em.label("L_fin_loop")
    e(valu("v_cmp_eq_u32", "vcc", 2, vpoll)); e(nop(1))
    e(raw("s_andn2_b32 %s, vcc_lo, %s" % (s_want, s_done), "salu", rd=["vcc", s_done], wr=[s_want, "scc"])); e(salu("s_and_b32", s_want, s_want, 255))
    for gp in range(8):
        e(scmp("s_bitcmp1_b32", s_want, gp)); e(raw("s_cbranch_scc0 L_pl_%d" % gp, rd=["scc"]))
        e(salu("s_add_u32", s_t0, s_sb, gp * 8192))
        for i in range(2): e(raw(bload(spl(gp, i), v_lin, S_SPC, s_t0, off=i * 1024, mod="sc1").text))
        em.label("L_pl_%d" % gp)
    e(raw(flag_load().text))
    e(raw("s_waitcnt vmcnt(0)", "wait")); em._retire(em.vmq, 0)
    for gp in range(8):
        e(scmp("s_bitcmp1_b32", s_want, gp)); e(raw("s_cbranch_scc0 L_pa_%d" % gp, rd=["scc"]))
        for k in range(8): e(valu("v_cmpx_ne_u32", "vcc", s_t1, spl(gp, k >> 2)[k & 3], extra_wr=["exec"]))
        e(nop(1))
        e(raw("s_cmp_eq_u64 exec, -1", "salu", rd=["exec"], wr=["scc"])); e(raw("s_mov_b64 exec, -1", "salu", wr=["exec"]))
        e(raw("s_cbranch_scc0 L_pa_%d" % gp, rd=["scc"]))
        e(salu("s_bitset1_b32", s_done, gp, scc_w=False))
        for k in range(8):
            src = spl(gp, k >> 2)[k & 3]
            e(valu("v_lshlrev_b32", V(112 + 2 * (k & 3)), 16, src)); e(valu("v_and_b32", V(113 + 2 * (k & 3)), "0xffff0000", src))
            e(valu("v_pk_add_f32", vs_[(2 * k, 2)], vs_[(2 * k, 2)], V(112 + 2 * (k & 3), 2)))
        em.label("L_pa_%d" % gp)
    e(salu("s_add_u32", s_cnt, s_cnt, 1)); e(scmp("s_cmp_ge_u32", s_cnt, 50000)); e(raw("s_cbranch_scc1 L_fin_done", rd=["scc"]))
    e(scmp("s_cmp_lg_u32", s_done, 255)); e(raw("s_cbranch_scc1 L_fin_loop", rd=["scc"]))
else:
    if MIDPOST != 2: e(flag_load())
    if MIDPOST not in (3, 6) and not FLG:
        em.wait(vm=spst[-1][0]); stamp()
        if not XY: e(flag_store(0))
        e(flag_store(1))
    if MIDPOST == 2:
        static_loads()
        if int(os.environ.get("FSL", "0")): e(raw("s_sleep %d" % int(os.environ.get("FSL"))))
        e(flag_load())
    s_prev = s_hl
    e(salu("s_mov_b32", s_prev, s_done if MIDPOST else 0, scc_w=False)); e(salu("s_mov_b32", s_cnt, 0, scc_w=False))
    em.label("L_fin_loop")
    em.wait(vm0=True)
    issue_new()
    e(raw(flag_load().text))
    acc_pieces(s_prev)
    e(salu("s_mov_b32", s_prev, s_new, scc_w=False))
    e(salu("s_add_u32", s_cnt, s_cnt, 1)); e(scmp("s_cmp_ge_u32", s_cnt, 50000)); e(raw("s_cbranch_scc1 L_fin_done", rd=["scc"]))
    e(scmp("s_cmp_lg_u32", s_prev, 0)); e(raw("s_cbranch_scc1 L_fin_loop", rd=["scc"]))
    if int(os.environ.get("PSL", "0")): e(raw("s_sleep %d" % int(os.environ.get("PSL"))))
    e(scmp("s_cmp_lg_u32", s_done, 255)); e(raw("s_cbranch_scc1 L_fin_loop", rd=["scc"]))
em.label("L_fin_done")
if DUMP == "fin": dump_regs([vs_[i] for i in range(16)] + [v_fr[i] for i in range(16)])
for k in range(8): e(valu("v_pk_fma_f32", vE[(2 * k, 2)], vs_[(2 * k, 2)], v_fr[(2 * k, 2)], vE[(2 * k, 2)]))
for k in range(8): e(valu("v_cvt_pk_bf16_f32", vxf[k], vE[2 * k], vE[2 * k + 1]))
for u in range(4): e(bstore(vxf[(2 * u, 2)], vxa, S_OUT, 0, off=32 * u, mod=os.environ.get("OUTM", "")))
stamp(); diag_out()
em.label("L_end")
e(raw("s_endpgm"))
main_end = len(em.out)

em.lgq, em.vmq, em.pend = [], [], {}
em.label("L_sigH_side")
e(salu("s_lshl_b32", s_t1, s_qb, 3)); e(salu("s_add_u32", s_t1, s_t1, s_g))
e(raw("s_mov_b64 exec, 2", "salu", wr=["exec"]))
e(raw("buffer_store_byte %s, off, %s, %s sc1" % (v_fa, S_DBG, s_t1)))
e(raw("s_mov_b64 exec, -1", "salu", wr=["exec"]))
e(raw("s_branch L_sigH_ret"))
em.label("L_fallback")
e(raw("s_waitcnt vmcnt(0) lgkmcnt(0)")); em._retire(em.vmq, 0); em._retire(em.lgq, 0)
e(salu("s_mov_b32", s_retry, 1, scc_w=False))
e(salu("s_lshl_b32", s_t0, s_w, 6)); e(valu("v_add_u32", v_tid, s_t0, v_lane))
e(raw("s_barrier"))
e(raw("s_branch L_restart"))
em.label("L_maxpass")
e(raw("s_waitcnt vmcnt(0) lgkmcnt(0)"))
e(salu("s_mov_b32", s_retry, 2, scc_w=False))
e(salu("s_mov_b32", S_H[2], 0, scc_w=False))
e(salu("s_mov_b32", s_kK, 0, scc_w=False))
fm = [V(40 + i) for i in range(4)]
for i in range(4): e(valu("v_mov_b32", fm[i], "0xff800000"))
em.label("L_fb_loop")
e(raw("s_barrier"))
e(salu("s_add_u32", "m0", s_m0b, 4 * 16384)); e(nop(0))
for j in range(4): e(dma(v_kd[j], S_K, s_kK, j * 1024))
em.wait(vm0=True)
e(raw("s_barrier"))
for kb in range(4):
    rr = [e(dsread("ds_read_b128", fr(ds), v_ka[ds], kb * 4096)) for ds in range(4)]
    em.wait(lg0=True)
    for ds in range(4):
        for qb in range(4):
            d = v_S[0][(qb * 4, 4)]
            e(mfma(d, fr(ds), Qf(qb, ds), 0 if ds == 0 else d))
    e(nop(7))
    for qb in range(4):
        e(valu("v_max3_f32", fm[qb], fm[qb], v_S[0][qb * 4], v_S[0][qb * 4 + 1])); e(valu("v_max3_f32", fm[qb], fm[qb], v_S[0][qb * 4 + 2], v_S[0][qb * 4 + 3]))
    e(nop(2))
e(salu("s_add_u32", s_kK, s_kK, 16384)); e(scmp("s_cmp_lt_u32", s_kK, 524288)); e(raw("s_cbranch_scc1 L_fb_loop", rd=["scc"]))
red4("v_max_f32", fm, [V(44 + i) for i in range(4)])
for qb in range(4):
    for k in range(4): e(valu("v_sub_f32", v_negm[qb * 4 + k], 0, fm[qb]))
e(raw("s_barrier"))
for m in (64, 65, 66):
    sa, dm = s1_dma(m); e(sa)
    for d in dm: e(d)
e(raw("s_waitcnt vmcnt(0)"))
e(raw("s_branch L_att_start"))
em.label("L_code_end")
e(raw("s_endpgm"))

ALIGN8 = int(os.environ.get("ALIGN8", "0"))
import re as _re
def isize(i):
    t = i.text
    if i.kind == "label": return 0
    op = t.split()[0]
    if i.kind in ("mfma", "lds", "vmem", "dma") or op.startswith(("buffer_", "global_", "ds_", "s_load", "s_memtime", "s_memrealtime")): return 8
    lit = False
    for tok in _re.split(r"[ ,]+", t)[1:]:
        if _re.fullmatch(r"-?\d+", tok): lit |= not (-16 <= int(tok) <= 64)
        elif tok.startswith("0x"): lit |= not (int(tok, 16) <= 64)
        elif tok.startswith("L_") and not op.startswith(("s_cbranch", "s_branch")): lit = True
    if op.startswith("s_"):
        if op in ("s_waitcnt", "s_nop", "s_barrier", "s_sleep", "s_endpgm") or op.startswith(("s_cbranch", "s_branch")): return 4
        return 8 if lit else 4
    e32 = ("v_exp_f32", "v_rcp_f32", "v_sqrt_f32", "v_mov_b32", "v_mov_b64", "v_add_f32", "v_sub_f32", "v_mul_f32", "v_max_f32", "v_and_b32", "v_xor_b32", "v_lshlrev_b32", "v_lshrrev_b32",
           "v_add_u32", "v_sub_u32", "v_subrev_u32", "v_mul_u32_u24", "v_min_u32", "v_readfirstlane_b32", "v_permlane16_swap_b32", "v_permlane32_swap_b32")
    if op in e32 and "-v" not in t: return 8 if lit else 4
    if op.startswith("v_cmp") and t.split()[1].startswith("vcc"): return 8 if lit else 4
    return 8
WIDE = ("v_exp_f32", "v_rcp_f32", "v_add_f32", "v_mul_f32", "v_mov_b32", "v_sub_f32", "v_and_b32", "v_lshlrev_b32")
if ALIGN8:
    pos = 0; cand = None; nfix = 0; nmiss = 0
    for i in em.out:
        if i.kind == "label":
            if i.text.startswith(".p2align"): pos = 0; cand = None
            continue
        if i.kind == "mfma" and pos % 8:
            if cand is not None: cand.text = cand.text.replace(cand.text.split()[0], cand.text.split()[0] + "_e64", 1); pos += 4; nfix += 1
            else: nmiss += 1
        if i.kind == "mfma": cand = None
        sz = isize(i)
        if sz == 4 and i.text.split()[0] in WIDE: cand = i
        pos += sz
    print("; align8: widened %d, unfixed %d" % (nfix, nmiss), file=sys.stderr)
probs = check_hazards(em.out, "main") + loop_probs
for p in probs: print("; HAZARD", p, file=sys.stderr)
assert not probs

hdr = open(os.path.join(os.path.dirname(os.path.abspath(__file__)), "header.txt")).read()
print(hdr.rstrip())
print("; @launch grid=(256,1,1) block=(256,1,1) lds=163840")
print('.amdgcn_target "amdgcn-amd-amdhsa--gfx950"\n.text\n.globl %s\n.p2align 8\n.type %s,@function\n%s:' % (KN, KN, KN))
print(em.text())
print('.section .rodata,"a"\n.p2align 6\n.amdhsa_kernel %s' % KN)
print("  .amdhsa_next_free_vgpr 512\n  .amdhsa_next_free_sgpr 102\n  .amdhsa_accum_offset 256\n  .amdhsa_group_segment_fixed_size 0\n  .amdhsa_kernarg_size 96\n  .amdhsa_user_sgpr_count 2\n  .amdhsa_user_sgpr_kernarg_segment_ptr 1\n  .amdhsa_system_sgpr_workgroup_id_x 1\n.end_amdhsa_kernel")
```

```python
import sys, os, math, struct
from asmgen import *

KN = "recurrent_scan__gqa_block_cached__geglu_ffn__prompt_kernel"
DUMP = os.environ.get("DUMP", "")
STAMP = int(os.environ.get("STAMP", "0"))
GEL_END = int(os.environ.get("GEL_END", "247")); GEL_EXTRA = int(os.environ.get("GEL_EXTRA", "360"))

def f2u(x): return struct.unpack("<I", struct.pack("<f", x))[0]
def hx(x): return "0x%x" % (x & 0xffffffff)

S_X, S_K, S_V, S_WQ, S_WO, S_WG, S_WU, S_WD, S_OUT, S_DBG, S_H, S_SP = [S(4 + 4 * i, 4) for i in range(12)]
s_g, s_qb, s_w = S(52), S(53), S(54)
s_t0, s_t1, s_t2, s_t3 = S(55), S(56), S(57), S(58)
s_m0b = S(59)
s_off = S(60)
s_cnt = S(61)
s_kK, s_kV = S(62), S(63)
s_retry = S(64)
s_h0, s_h1 = S(65), S(66)
s_hl = S(67); s_hb = S(78); s_myfl = S(79); s_wdd = S(67); s_sig = S(78)
s_ka = S(68, 16); s_kb = S(84, 8)
s_pair = S(92, 2); s_pair2 = S(94, 2)
S_DMP = S(96, 4)
s_cq, s_cg = S(76), S(77)
S_HC = S(80, 4)
S_SPC = S(84, 4)
S_XC = S(88, 4)
s_st = S(68, 4)

v_tid, v_lane, v_lin, v_t = V(0), V(1), V(2), V(3)
v_tr = [V(4, 4), V(8, 4)]
v_dA, v_dB = V(12, 4), V(16, 4)
v_ka = V(20, 4); v_va = V(24, 8); v_kd = V(32, 4); v_vd = V(36, 2)
v_wl = V(38)
v_c = V(39)
v_l0, v_l1 = V(40, 4), V(44, 4)
v_lsave = V(16, 4)
v_negm = V(48, 16)
v_S = [V(64, 32), V(96, 32)]
v_acc = V(128, 128)
a_ring = A(128, 32)
a_B = A(160, 32)
a_Q = A(0, 64)
ORD = int(os.environ.get("ORD", "1"))
v_wo, v_wd = (v_dB, v_dA) if ORD else (v_dA, v_dB)
a_F = A(0, 64)
a_x = A(248, 8)
LSUM = int(os.environ.get('LSUM', '1'))
a_L = A(224, 16); a_ones = A(240, 4)
POI = int(os.environ.get('POI', '0'))
POISON = 0x7f817f81
a_poi = A(244, 4)

RING = 65536
MARK = 0x7fc17fc1
WS_SP = 8 << 20
WS_DUMP = 32 << 20
WS_FL = (7 << 20) + (512 << 10)
S_FLZ = S(4, 4)
S_FL = S(4, 4)

em = Em()
e = em.e

def srd(dst, lo, hi, size, off_s=None):
    if off_s is None:
        e(salu("s_mov_b32", dst[0], lo, scc_w=False)); e(salu("s_mov_b32", dst[1], hi, scc_w=False))
    else:
        e(salu("s_add_u32", dst[0], lo, off_s)); e(salu("s_addc_u32", dst[1], hi, 0, scc_r=True))
    e(salu("s_mov_b32", dst[2], hx(size), scc_w=False)); e(salu("s_mov_b32", dst[3], "0x20000", scc_w=False))

DIAG = int(os.environ.get("DIAG", "0"))
HC_OFF = 128
diag_regs = [S(100, 2), S(70, 2), S(72, 2), S(74, 2), S(96, 2), S(98, 2), S(68, 2)] if DIAG == 1 else [S(100, 2), S(96, 2), S(70, 2), S(72, 2), S(74, 2), S(98, 2), S(92, 2)] if DIAG == 3 else [S(100, 2), S(96, 2), S(98, 2), S(94, 2), S(70, 2), S(72, 2), S(74, 2), S(68, 2)]
diag_n = [0]
def diag(which=1, last=False):
    if not DIAG or (which != DIAG and which != 0): return
    k = diag_n[0]; diag_n[0] += 1
    e(raw("%s %s" % ("s_memtime" if (os.environ.get("CYC") and not last) else "s_memrealtime", diag_regs[k]), "other", wr=[diag_regs[k]]))
    if k > 0: e(raw("s_waitcnt lgkmcnt(0)", "wait")); em._retire(em.lgq, 0)
AMP = os.environ.get("AMP")
def diag_out():
    if not DIAG: return
    diag(0, last=True)
    if AMP:
        k = int(AMP); last = diag_regs[diag_n[0] - 1]
        e(salu("s_sub_u32", s_t0, diag_regs[k][0], diag_regs[int(os.environ.get("AMP0", "0"))][0]))
        if os.environ.get("CYC"): e(salu("s_lshr_b32", s_t0, s_t0, 2))
        else: e(salu("s_lshl_b32", s_t0, s_t0, 2))
        em.label("L_amp")
        e(raw("s_memrealtime s[56:57]")); e(raw("s_waitcnt lgkmcnt(0)"))
        e(salu("s_sub_u32", s_t1, s_t1, last[0])); e(scmp("s_cmp_lt_u32", s_t1, s_t0)); e(raw("s_cbranch_scc1 L_amp", rd=["scc"]))
        return
    e(scmp("s_cmp_lg_u32", s_w, 0)); e(raw("s_cbranch_scc1 L_end", rd=["scc"]))
    e(raw("s_mov_b64 exec, 1", "salu", wr=["exec"]))
    e(salu("s_not_b32", s_t0, diag_regs[0][0]))
    for k in range(diag_n[0]):
        e(valu("v_mov_b32", V(4 + k), s_t0 if k == 0 else diag_regs[k][0]))
        e(raw("buffer_atomic_umax %s, off, %s, 0 offset:%d sc1" % (V(4 + k), S_DBG, 4 * k)))
    e(valu("v_mov_b32", V(12), diag_regs[0][0]))
    e(raw("buffer_atomic_umax %s, off, %s, 0 offset:%d sc1" % (V(12), S_DBG, 4 * 9)))
stamp_n = [0]
def stamp():
    if not STAMP: return
    k = stamp_n[0]; stamp_n[0] += 1
    e(raw("s_memtime %s" % S(68, 2), "other", wr=[S(68, 2)]))
    e(raw("s_memrealtime %s" % S(70, 2), "other", wr=[S(70, 2)]))
    e(raw("s_waitcnt lgkmcnt(0)", "wait")); em._retire(em.lgq, 0)
    for i in range(4): e(valu("v_writelane_b32", v_c, S(68 + i), i, rmw=True))
    e(salu("s_lshl_b32", S(72), S(2), 2)); e(salu("s_add_u32", S(72), S(72), s_w)); e(salu("s_lshl_b32", S(72), S(72), 9))
    e(salu("s_mov_b64", S(74, 2), "exec", scc_w=False)); e(raw("s_mov_b64 exec, 15", "salu", wr=["exec"]))
    e(valu("v_lshlrev_b32", v_t, 2, v_lane))
    e(bstore(v_c, v_t, S_DMP, S(72), off=k * 16))
    e(raw("s_mov_b64 exec, %s" % S(74, 2), "salu", wr=["exec"]))
    e(valu("v_lshlrev_b32", v_t, 7, v_lane))

def dump_regs(regs, finish=True):
    em.wait(lg0=True, vm0=True)
    e(nop(7)); e(nop(7))
    n = len(regs)
    e(salu("s_lshl_b32", s_t0, S(2), 2)); e(salu("s_add_u32", s_t0, s_t0, s_w)); e(salu("s_mul_i32", s_t0, s_t0, n * 256, scc_w=False))
    e(valu("v_lshlrev_b32", v_t, 2, v_lane))
    for k, r in enumerate(regs):
        e(bstore(r, v_t, S_DMP, s_t0, off=0))
        e(salu("s_add_u32", s_t0, s_t0, 256))
        if k % 32 == 31: em.wait(vm0=True)
    em.wait(vm0=True)
    if finish: e(raw("s_endpgm"))

def red4(op, x, tmp):
    for sw in ("v_permlane32_swap_b32", "v_permlane16_swap_b32"):
        for a, t in zip(x, tmp): e(valu("v_mov_b32", t, a))
        if len(x) < 3: e(nop(1))
        for a, t in zip(x, tmp): e(valu(sw, a, t))
        for a, t in zip(x, tmp): e(valu(op, a, a, t))

e(scmp("s_cmp_ge_u32", S(2), 256)); e(raw("s_cbranch_scc1 L_end", rd=["scc"]))
diag(0)
e(salu("s_mov_b32", s_retry, 0, scc_w=False))
em.label("L_restart")
i0 = e(I("s_load_dwordx16 %s, s[0:1], 0" % s_ka, "smem", wr=s_ka.regs()))
i1 = e(I("s_load_dwordx8 %s, s[0:1], 64" % s_kb, "smem", wr=s_kb.regs()))
vq, vG, vr, vc_, vx, vy, vz = [V(40 + i) for i in range(7)]
e(raw("s_getpc_b64 %s" % s_pair2, "salu", wr=[s_pair2]))
em.label("L_pc0")
CT0 = int(os.environ.get("CT0", "64"))
if CT0:
    e(valu("v_sub_u32", V(55), 255, v_tid)); e(valu("v_cmp_gt_u32", "vcc", CT0, V(55))); e(valu("v_lshlrev_b32", V(55), 7, V(55))); e(nop(0))
    e(raw("s_and_saveexec_b64 s[4:5], vcc", "salu", wr=["exec"], rd=["vcc"])); e(raw("s_cbranch_execz L_ct0"))
    e(raw("global_load_dword v55, v55, %s" % s_pair2))
    em.label("L_ct0")
    e(raw("s_mov_b64 exec, -1", "salu", wr=["exec"]))
MAP2 = int(os.environ.get("MAP2", "0"))
s_i = S(65)
if MAP2:
    e(salu("s_and_b32", s_g, S(2), 3)); e(salu("s_lshl_b32", s_g, s_g, 1)); e(salu("s_bfe_u32", s_t0, S(2), "0x10003")); e(salu("s_add_u32", s_g, s_g, s_t0))
    e(salu("s_bfe_u32", s_qb, S(2), "0x10002")); e(salu("s_lshl_b32", s_qb, s_qb, 4)); e(salu("s_lshr_b32", s_t0, S(2), 4)); e(salu("s_add_u32", s_qb, s_qb, s_t0))
else:
    e(salu("s_and_b32", s_g, S(2), 7)); e(salu("s_lshr_b32", s_qb, S(2), 3))
def sx(dst): return salu("s_lshr_b32", dst, S(2), 4 if MAP2 else 3)
TL = "-1" if MAP2 else "0xffffffff"
e(valu("v_and_b32", v_lane, 63, v_tid))
e(valu("v_lshrrev_b32", v_t, 6, v_tid))
e(valu("v_lshlrev_b32", v_lin, 4, v_lane))
e(valu("v_readfirstlane_b32", s_w, v_t))
e(valu("v_and_b32", vq, 15, v_lane)); e(valu("v_lshrrev_b32", vG, 4, v_lane))
vxo = V(47)
XD = int(os.environ.get("XD", "1"))
if XD == 2:
    vxq = V(60, 4); vxr = vxq
    for rg in range(4):
        e(valu("v_add_u32", vy, 4 * rg, vG)); e(valu("v_xor_b32", vz, vy, vq)); e(valu("v_lshl_add_u32", vy, v_t, 4, vy)); e(valu("v_lshlrev_b32", vy, 10, vy))
        e(valu("v_lshl_add_u32", vxq[rg], vz, 4, vy))
elif XD:
    vxo2 = V(50); vxr = [V(47), V(50)]
    e(valu("v_lshrrev_b32", vx, 3, v_lane)); e(valu("v_lshl_add_u32", vx, v_t, 4, vx)); e(valu("v_lshlrev_b32", vx, 10, vx))
    e(valu("v_and_b32", vy, 7, v_lane)); e(valu("v_xor_b32", vy, vy, vG)); e(valu("v_lshl_add_u32", vxo, vy, 4, vx))
    e(valu("v_xor_b32", vxo2, 64, vxo)); e(valu("v_add_u32", vxo2, 8192, vxo2))
else:
    e(valu("v_lshl_add_u32", vxo, v_t, 4, vq)); e(valu("v_lshlrev_b32", vxo, 10, vxo)); e(valu("v_lshl_add_u32", vxo, vG, 4, vxo))
vwg, vwq, vcw = V(52), V(53), V(54)
GM0 = int(os.environ.get("GM", "1"))
if GM0: e(salu("s_lshl_b32", s_t1, s_g, 7))
else: e(salu("s_mul_i32", s_t1, s_g, 448, scc_w=False)); e(salu("s_and_b32", s_t1, s_t1, hx(~127)))
e(salu("s_and_b32", s_t2, s_w, 1)); e(sx(s_t3)); e(salu("s_lshl_b32", s_t3, s_t3, 1)); e(salu("s_add_u32", s_t2, s_t2, s_t3))
e(salu("s_mul_i32", s_t2, s_t2, (16 if MAP2 else 8) * 3584, scc_w=False)); e(salu("s_add_u32", s_t1, s_t1, s_t2))
e(valu("v_lshrrev_b32", vx, 2, v_lane)); e(valu("v_mul_u32_u24", vx, 3584, vx)); e(valu("v_and_b32", vz, 3, v_lane)); e(valu("v_lshl_add_u32", vx, vz, 10 if GM0 else 7, vx))
e(valu("v_add_u32", vwg, s_t1, vx))
if GM0:
    e(salu("s_add_u32", s_t3, s_g, 1)); e(salu("s_lshr_b32", s_t3, s_t3, 1)); e(salu("s_lshl_b32", s_t3, s_t3, 7))
    e(valu("v_cmp_eq_u32", "vcc", 3, vz)); e(valu("v_subrev_u32", vx, s_t3, vwg)); e(nop(0)); e(valu("v_cndmask_b32", vwg, vwg, vx, "vcc"))
e(salu("s_lshr_b32", s_t2, S(2), 3)); e(salu("s_lshl_b32", s_t2, s_t2, 2)); e(salu("s_add_u32", s_t2, s_t2, s_w)); e(salu("s_mul_i32", s_t3, s_t2, 384, scc_w=False))
e(valu("v_lshlrev_b32", vcw, 7, v_lane)); e(valu("v_add_u32", vcw, s_t3, vcw))
e(salu("s_lshl_b32", s_t0, s_qb, 16))
em.wait(lg0=True)
diag(2)
srd(S_X, s_ka[0], s_ka[1], 65536, s_t0)
v_xp = V(64, 64)
XFIRST = int(os.environ.get("XFIRST", "12"))
if XD:
    s_xb = S(60)
    e(salu("s_lshl_b32", s_xb, s_w, 14))
    xo = [256 * (t >> 2) if XD == 2 else 128 * (t >> 1) for t in range(16)]
    xl = [dma(vxq[t & 3] if XD == 2 else (vxo2 if t & 1 else vxo), S_X, 0, off=xo[t]) for t in range(16)]
    def xissue(t): e(salu("s_add_u32", "m0", s_xb, t * 1024 - xo[t])); e(nop(0)); e(xl[t])
else:
    xl = [bload(v_xp[(4 * ks, 4)], vxo, S_X, 0, off=64 * ks) for ks in range(16)]
    def xissue(t): e(xl[t])
for ks in range(XFIRST): xissue(ks)
e(scmp("s_cmp_lt_u32", s_w, 2)); e(salu("s_cselect_b64", s_pair, s_ka[(12, 2)], s_ka[(14, 2)], scc_w=False, scc_r=True))
WT = int(os.environ.get("WT", "0"))
s_wgp = S(100, 2) if not DIAG else S(98, 2)
def wq_addr():
    e(sx(s_t2)); e(salu("s_lshl_b32", s_t2, s_t2, 2)); e(salu("s_add_u32", s_t2, s_t2, s_w))
    e(salu("s_lshl_b32", s_t2, s_t2, 16 if MAP2 else 15)); e(salu("s_lshl_b32", s_t3, s_g, 10)); e(salu("s_add_u32", s_t2, s_t2, s_t3))
    e(valu("v_lshrrev_b32", vx, 3, v_lane)); e(valu("v_lshlrev_b32", vx, 13, vx)); e(valu("v_and_b32", vz, 7, v_lane)); e(valu("v_lshl_add_u32", vx, vz, 7, vx))
    e(valu("v_add_u32", vwq, s_t2, vx))
if ORD:
    e(salu("s_mov_b64", s_wgp, s_pair, scc_w=False))
    wq_addr()
    e(raw("s_mov_b64 exec, " + TL, "salu", wr=["exec"]))
    e(I("global_load_dword %s, %s, %s" % (V(48), vwq, s_ka[(6, 2)]), "vmem", rd=vwq.regs() + s_ka[(6, 2)].regs(), wr=V(48).regs()))
elif WT:
    e(salu("s_lshl_b32", s_t3, S(2), 1)); e(salu("s_and_b32", s_t1, s_w, 1)); e(salu("s_add_u32", s_t3, s_t3, s_t1)); e(salu("s_mul_i32", s_t3, s_t3, 3584, scc_w=False))
    e(valu("v_lshlrev_b32", V(51), 7, v_lane)); e(valu("v_add_u32", V(51), s_t3, V(51)))
    e(raw("s_mov_b64 exec, 0xfffffff", "salu", wr=["exec"]))
    e(I("global_load_dword %s, %s, %s" % (V(48), V(51), s_pair), "vmem", rd=V(51).regs() + s_pair.regs(), wr=V(48).regs()))
    e(salu("s_mov_b64", s_wgp, s_pair, scc_w=False))
else:
    e(raw("s_mov_b64 exec, " + TL, "salu", wr=["exec"]))
    e(I("global_load_dword %s, %s, %s" % (V(48), vwg, s_pair), "vmem", rd=vwg.regs() + s_pair.regs(), wr=V(48).regs()))
e(raw("s_mov_b64 exec, 7", "salu", wr=["exec"]))
e(I("global_load_dword %s, %s, %s" % (V(49), vcw, s_pair2), "vmem", rd=vcw.regs() + s_pair2.regs(), wr=V(49).regs()))
e(raw("s_mov_b64 exec, -1", "salu", wr=["exec"]))
if not ORD: wq_addr()
e(salu("s_lshr_b32", s_t2, S(2), 6)); e(salu("s_and_b32", s_t3, S(2), 7)); e(salu("s_lshl_b32", s_t3, s_t3, 2)); e(salu("s_add_u32", s_t2, s_t2, s_t3))
e(salu("s_lshl_b32", s_t0, s_t2, 16))
srd(S_OUT, s_kb[2], s_kb[3], 65536, s_t0)
e(salu("s_lshl_b32", s_t1, s_g, 19))
srd(S_K, s_ka[2], s_ka[3], 524288, s_t1)
srd(S_V, s_ka[4], s_ka[5], 524288, s_t1)
srd(S_WO, s_ka[8], s_ka[9], 524288, s_t1)
srd(S_WQ, s_ka[6], s_ka[7], 4 << 20)
srd(S_WG, s_ka[12], s_ka[13], 1835008)
srd(S_WU, s_ka[14], s_ka[15], 1835008)
srd(S_WD, s_kb[0], s_kb[1], 1835008)
srd(S_DBG, s_kb[4], s_kb[5], 256)
e(salu("s_mul_i32", s_t1, s_qb, 229376, scc_w=False))
srd(S_H, s_kb[6], s_kb[7], 229376, s_t1)
e(salu("s_lshl_b32", s_t1, s_qb, 19)); e(salu("s_add_u32", s_t1, s_t1, hx(WS_SP)))
srd(S_SP, s_kb[6], s_kb[7], 524288, s_t1)
if DUMP or STAMP:
    e(salu("s_mov_b32", s_t1, hx(WS_DUMP), scc_w=False))
    srd(S_DMP, s_kb[6], s_kb[7], 200 << 20, s_t1)
e(salu("s_mov_b64", s_pair, S(90, 2), scc_w=False))
e(salu("s_lshl_b32", s_t0, s_t2, 16))
srd(S_XC, s_ka[0], s_ka[1], 65536, s_t0)
e(salu("s_mul_i32", s_t1, s_t2, 229376, scc_w=False))
srd(S_HC, s_pair[0], s_pair[1], 229376, s_t1)
e(salu("s_lshl_b32", s_t1, s_t2, 19)); e(salu("s_add_u32", s_t1, s_t1, hx(WS_SP)))
srd(S_SPC, s_pair[0], s_pair[1], 524288, s_t1)
e(salu("s_mov_b32", s_cq, s_t2, scc_w=False)); e(salu("s_bfe_u32", s_cg, S(2), "0x30003"))
e(salu("s_lshl_b32", s_myfl, s_qb, 2)); e(salu("s_add_u32", s_myfl, s_myfl, s_w)); e(salu("s_lshl_b32", s_myfl, s_myfl, 8))
e(salu("s_lshl_b32", s_t1, s_g, 2)); e(salu("s_add_u32", s_myfl, s_myfl, s_t1))
e(salu("s_lshl_b32", s_m0b, s_w, 12)); e(salu("s_add_u32", s_m0b, s_m0b, RING))
GM = int(os.environ.get("GM", "1"))
if GM:
    e(salu("s_lshl_b32", s_t1, s_w, 3)); e(salu("s_add_u32", s_t1, s_t1, s_g))
    e(salu("s_lshr_b32", s_t2, s_g, 1)); e(salu("s_add_u32", s_t2, s_t2, 24))
    e(scmp("s_cmp_eq_u32", s_w, 3)); e(salu("s_cselect_b32", s_t1, s_t2, s_t1, scc_w=False, scc_r=True))
else:
    e(salu("s_and_b32", s_t1, s_g, 1)); e(salu("s_lshl_b32", s_t1, s_t1, 2)); e(salu("s_add_u32", s_t1, s_t1, s_w))
    e(scmp("s_cmp_eq_u32", s_w, 3)); e(salu("s_cselect_b32", s_t1, 3, s_t1, scc_w=False, scc_r=True))
    e(salu("s_lshr_b32", s_t2, s_g, 1)); e(salu("s_mul_i32", s_t2, s_t2, 7, scc_w=False)); e(salu("s_add_u32", s_t1, s_t1, s_t2))
e(salu("s_lshl_b32", s_h0, s_t1, 13)); e(salu("s_add_u32", s_h1, s_h0, 4096))
e(salu("s_lshl_b32", s_t1, s_t1, 7))
e(salu("s_lshl_b32", s_t2, s_g, 2)); e(salu("s_add_u32", s_t2, s_t2, s_w)); e(salu("s_lshl_b32", s_t2, s_t2, 8))

def dma_voffs(dst, stride, colbase_s, perm):
    for j in range(4):
        e(valu("v_bfe_u32", vx, v_lane, 1, 2)); e(valu("v_bfe_u32", vy, v_lane, 4, 1))
        e(valu("v_xor_b32", vx, vx, vy))
        if j & 1: e(valu("v_xor_b32", vx, 2, vx))
        e(valu("v_and_b32", vy, 1, v_lane)); e(valu("v_lshlrev_b32", vy, 4, vy)); e(valu("v_lshl_add_u32", vx, vx, 5, vy))
        if not perm:
            e(valu("v_lshrrev_b32", vy, 3, v_lane)); rowadd = 8 * j
        else:
            e(valu("v_bfe_u32", vy, v_lane, 3, 2)); e(valu("v_bfe_u32", vz, v_lane, 5, 1)); e(valu("v_lshl_add_u32", vy, vz, 4, vy)); rowadd = 4 * j
        e(valu("v_mul_u32_u24", vy, stride, vy))
        e(valu("v_add3_u32", vx, vx, vy, colbase_s))
        e(valu("v_add_u32", dst[j], rowadd * stride - j * 1024, vx))

dma_voffs(v_dA, 3584, s_t1, False)
dma_voffs(v_dB, 8192, s_t2, False)

def m0set(p): return salu("s_add_u32", "m0", s_m0b, p * 16384) if p < 6 else salu("s_sub_u32", "m0", s_m0b, RING - (p - 6) * 16384)
def s1_dma(m):
    p = m % 6
    if ORD and m < 64: m ^= 32
    if m < 32:
        s, h = m >> 1, m & 1
        return [m0set(p), salu("s_mov_b32", s_off, s * 32 * 3584, scc_w=False)], [dma(v_dA[j], S_WU if h else S_WG, s_off, j * 1024) for j in range(4)]
    if m < 64:
        s, h = (m - 32) >> 1, m & 1
        return [m0set(p), salu("s_mov_b32", s_off, s * 32 * 8192 + 128 * h, scc_w=False)], [dma(v_dB[j], S_WQ, s_off, j * 1024) for j in range(4)]
    if m == 64:
        return [m0set(p), salu("s_mov_b32", s_off, 0, scc_w=False)], [dma(v_kd[j], S_K, s_off, j * 1024) for j in range(4)]
    if m == 65:
        return [m0set(p), salu("s_mov_b32", s_off, 8192, scc_w=False)], [dma(v_kd[j], S_K, s_off, j * 1024) for j in range(4)]
    if m == 66:
        return [m0set(p), salu("s_mov_b32", s_off, 0, scc_w=False)], [dma(v_vd[j & 1], S_V, s_off, j * 1024) for j in range(4)]
    return None
dtok = {}
ln_v = []
for m in range(6):
    sa, dm = s1_dma(m)
    ln_v.append(sa); ln_v += dm
    dtok[m] = dm[3]
def xaddr(dst, tmp):
    e(valu("v_and_b32", dst, 15, v_lane)); e(salu("s_lshl_b32", s_t0, s_w, 4)); e(valu("v_add_u32", dst, s_t0, dst)); e(valu("v_lshlrev_b32", dst, 10, dst))
    e(valu("v_lshrrev_b32", tmp, 4, v_lane)); e(valu("v_lshl_add_u32", dst, tmp, 3, dst)); e(salu("s_lshl_b32", s_t0, s_cg, 7)); e(valu("v_add_u32", dst, s_t0, dst))
WQT = int(os.environ.get("WQT", "0"))
wqt = [raw("s_mov_b64 exec, " + TL, "salu", wr=["exec"]), bload(V(46), vwq, S_WQ, 0, n=1), raw("s_mov_b64 exec, -1", "salu", wr=["exec"])]
WQC = int(os.environ.get("WQC", "2"))
wqs = wqt
if ORD:
    e(salu("s_lshl_b32", s_t3, S(2), 1)); e(salu("s_and_b32", s_t1, s_w, 1)); e(salu("s_add_u32", s_t3, s_t3, s_t1)); e(salu("s_mul_i32", s_t3, s_t3, 3584, scc_w=False))
    e(valu("v_lshlrev_b32", V(54), 7, v_lane)); e(valu("v_add_u32", V(54), s_t3, V(54)))
    wqt = [raw("s_mov_b64 exec, 0xfffffff", "salu", wr=["exec"]), I("global_load_dword %s, %s, %s" % (V(49), V(54), s_wgp), "vmem", rd=["v54"] + s_wgp.regs(), wr=["v49"]), raw("s_mov_b64 exec, -1", "salu", wr=["exec"])]
    wqs = [raw("s_mov_b64 exec, " + TL, "salu", wr=["exec"]), I("global_load_dword %s, %s, %s" % (V(46), vwg, s_wgp), "vmem", rd=vwg.regs() + s_wgp.regs(), wr=["v46"]), raw("s_mov_b64 exec, -1", "salu", wr=["exec"])]
elif WQC:
    e(salu("s_lshl_b32", s_t3, S(2), 2)); e(salu("s_add_u32", s_t3, s_t3, s_w)); e(salu("s_lshl_b32", s_t3, s_t3, 12))
    e(valu("v_lshlrev_b32", V(54), 7, v_lane)); e(valu("v_add_u32", V(54), s_t3, V(54)))
    wqt = [raw("s_mov_b64 exec, 0xffffffff", "salu", wr=["exec"]), bload(V(49), V(54), S_WQ, 0, n=1), raw("s_mov_b64 exec, -1", "salu", wr=["exec"])]
if WT == 2:
    wgt = [raw("s_mov_b64 exec, " + TL, "salu", wr=["exec"]), I("global_load_dword %s, %s, %s" % (V(51), vwg, s_wgp), "vmem", rd=vwg.regs() + s_wgp.regs(), wr=V(51).regs()), raw("s_mov_b64 exec, -1", "salu", wr=["exec"])]
    ln_v.insert(int(os.environ.get("WTP", "0")), wgt)
if WQT == 0: ln_v.append(wqt)
LNPRE = int(os.environ.get("LNPRE", "0"))
lv = [0]
def ln_issue(n=1):
    k = 0
    while k < n and lv[0] < len(ln_v):
        it = ln_v[lv[0]]; lv[0] += 1
        e(it)
        if not isinstance(it, list): k += 1
e(valu("v_bfe_u32", vr, v_lane, 2, 2)); e(valu("v_and_b32", vc_, 3, v_lane))
e(valu("v_lshlrev_b32", vx, 10, vG)); e(valu("v_lshl_add_u32", vx, vr, 7, vx)); e(valu("v_lshl_add_u32", vx, vc_, 3, vx)); e(valu("v_add_u32", vx, s_m0b, vx))
e(valu("v_lshrrev_b32", vy, 1, vr)); e(valu("v_and_b32", vz, 1, vG)); e(valu("v_lshl_add_u32", vy, vz, 1, vy))
for u in range(4):
    e(valu("v_xor_b32", vz, u, vy)); e(valu("v_lshl_add_u32", v_tr[0][u], vz, 5, vx)); e(valu("v_add_u32", v_tr[1][u], 3 * 16384, v_tr[0][u]))
e(valu("v_xor_b32", vy, vG, vq))
for ds in range(4):
    e(valu("v_xor_b32", vz, 4 * ds, vy)); e(valu("v_lshlrev_b32", vz, 4, vz)); e(valu("v_lshl_add_u32", vz, vq, 8, vz)); e(valu("v_add_u32", v_ka[ds], RING + 4 * 16384, vz))
e(valu("v_lshl_add_u32", vx, vG, 2, vr)); e(valu("v_and_b32", vy, 7, vx)); e(valu("v_lshlrev_b32", vx, 8, vx)); e(valu("v_lshl_add_u32", vx, vc_, 3, vx)); e(valu("v_add_u32", vx, RING, vx))
for db in range(8):
    e(valu("v_xor_b32", vz, db, vy)); e(valu("v_lshl_add_u32", v_va[db], vz, 5, vx))
e(salu("s_lshl_b32", s_t1, s_w, 12))
e(valu("v_lshlrev_b32", vx, 8, vG)); e(valu("v_add_u32", vx, s_t1, vx))
for j in range(4):
    e(valu("v_add_u32", vy, 4 * j, vG)); e(valu("v_xor_b32", vy, vy, vq)); e(valu("v_lshl_add_u32", v_kd[j], vy, 4, vx))
e(valu("v_and_b32", vz, 1, v_lane)); e(valu("v_lshl_add_u32", vx, vz, 4, vx))
for j in range(2):
    e(valu("v_add_u32", vy, 4 * j, vG)); e(valu("v_lshrrev_b32", vz, 1, vq)); e(valu("v_xor_b32", vy, vy, vz)); e(valu("v_lshl_add_u32", v_vd[j], vy, 5, vx))
e(salu("s_lshl_b32", s_t1, s_w, 14)); e(valu("v_add_u32", v_wl, s_t1, v_lin))
for ks in range(XFIRST, 16): xissue(ks)
if XD == 2:
    e(valu("v_xor_b32", vx, vq, vG)); e(valu("v_lshlrev_b32", vy, 8, vq)); e(valu("v_add_u32", vy, s_xb, vy))
    for b_ in range(4): e(valu("v_xor_b32", vz, 4 * b_, vx)); e(valu("v_lshl_add_u32", V(48 + 0) if False else vxr[b_], vz, 4, vy))
elif XD:
    e(valu("v_lshrrev_b32", vx, 1, vq)); e(valu("v_xor_b32", vx, vx, vG)); e(valu("v_lshlrev_b32", vx, 4, vx))
    e(valu("v_lshl_add_u32", vx, vq, 7, vx)); e(valu("v_add_u32", vxr[0], s_xb, vx)); e(valu("v_xor_b32", vxr[1], 64, vxr[0]))
e(salu("s_mov_b32", s_t1, hx(WS_FL), scc_w=False))
srd(S_FL, s_pair[0], s_pair[1], 32768, s_t1)
if WQT == 1: e(wqt)
ln_issue(LNPRE)
stamp()

C0 = -2.0 * math.sqrt(2.0 / math.pi) * math.log2(math.e); C1 = C0 * 0.044715
PF1 = int(os.environ.get("PF1", "0")) and ORD
def hpk(i, qb): return v_acc[(((4 + 2 * i) * 4 + qb) * 4, 4)] if PF1 else V(96 + 4 * (i * 4 + qb), 4)
DRY = int(os.environ.get("DRY", "0")) and ORD
s_sub, s_ret = S(92, 2), S(70, 2)
class GeluMark(I):
    def __init__(self): I.__init__(self, "; (gelu subroutine ran)", "label", states=0)
def mix_trans(ops, look=70):
    ops = list(ops); out = []
    def free(j):
        o = ops[j]
        for p in ops[:j]:
            if set(p.wr) & (set(o.rd) | set(o.wr)) or set(p.rd) & set(o.wr): return False
        if out and out[-1].kind == "trans" and o.kind != "trans" and set(out[-1].wr) & set(o.rd): return False
        return True
    D = int(os.environ.get("DEPD", "6"))
    def dist(j):
        o = ops[j]
        for k in range(1, min(D, len(out)) + 1):
            if set(out[-k].wr) & set(o.rd): return k
        return D + 1
    while ops:
        want = "valu" if (out and out[-1].kind == "trans") else "trans"
        cand = [j for j in range(min(look, len(ops))) if free(j)]
        if not cand: out.append(nop(0)); continue
        good = [j for j in cand if dist(j) > D]
        pick = next((j for j in good if ops[j].kind == want), good[0] if good else max(cand, key=lambda j: (dist(j), -j)))
        out.append(ops.pop(pick))
    return out
def gelu_block():
    cc = V(40, 2); one = V(44, 2)
    e(valu("v_mov_b32", cc[0], hx(f2u(C0)))); e(valu("v_mov_b32", cc[1], hx(f2u(C1)))); e(valu("v_mov_b32", one[0], "1.0")); e(nop(4))
    save = em.out; em.out = []
    for i in range(2):
        for qb in range(4):
            pk = hpk(i, qb)
            P_ = [(v_acc[(((2 * i + b) * 4 + qb) * 4 + 2 * k, 2)], v_acc[(((4 + 2 * i + b) * 4 + qb) * 4 + 2 * k, 2)], V(64 + 8 * (qb & 3) + 2 * (2 * b + k), 2)) for b in range(2) for k in range(2)]
            for g_, u_, x_ in P_: e(valu("v_pk_mul_f32", x_, g_, g_))
            for g_, u_, x_ in P_: e(valu("v_pk_fma_f32", x_, x_, cc, cc, mod="op_sel:[0,1,0] op_sel_hi:[1,1,0]"))
            for g_, u_, x_ in P_: e(valu("v_pk_mul_f32", x_, x_, g_))
            for g_, u_, x_ in P_: e(valu("v_exp_f32", x_[0], x_[0])); e(valu("v_exp_f32", x_[1], x_[1]))
            for g_, u_, x_ in P_: e(valu("v_pk_mul_f32", g_, g_, u_))
            for g_, u_, x_ in P_: e(valu("v_pk_add_f32", x_, x_, one, mod="op_sel_hi:[1,0]"))
            for g_, u_, x_ in P_: e(valu("v_rcp_f32", x_[0], x_[0])); e(valu("v_rcp_f32", x_[1], x_[1]))
            if not PF1:
                for g_, u_, x_ in P_: e(valu("v_mov_b64", u_, 0))
            for g_, u_, x_ in P_: e(valu("v_pk_mul_f32", g_, g_, x_))
            for k, (g_, u_, x_) in enumerate(P_): e(valu("v_cvt_pk_bf16_f32", pk[k], g_[0], g_[1]))
    ops = em.out; em.out = save
    for it in (mix_trans(ops) if int(os.environ.get("MIXT", "1")) else ops): e(it)
if DRY:
    e(raw("s_getpc_b64 %s" % s_ret, "salu", wr=[s_ret])); em.label("L_pc3")
    e(salu("s_add_u32", s_ret[0], s_ret[0], "L_gelu_end-L_pc3")); e(salu("s_addc_u32", s_ret[1], s_ret[1], 0, scc_r=True))
    em.label("L_gelu")
    gelu_block()
    e(raw("s_setpc_b64 %s" % s_ret, "salu", rd=[s_ret]))
    em.label("L_gelu_end")
v_f = V(128, 128)
LNM = int(os.environ.get("LNM", "1"))
vsum, vtmp, vmb, vdm = V(40), V(41), V(42), V(43)
vneg = V(56, 2)
diag(2)
if LNM:
    d1, d2 = V(56, 4), (V(60, 4) if XD != 2 else A(196, 4))
    xr = {}
    def xread(t2):
        em.wait(vm=xl[2 * t2 + 1])
        for ks in (2 * t2, 2 * t2 + 1): xr[ks] = e(dsread("ds_read_b128", v_xp[(4 * ks, 4)], vxr[ks & 1], (ks >> 1) * 2048))
    e(valu("v_mov_b32", vtmp, "0x3f803f80"))
    for i in range(4): e(valu("v_accvgpr_write_b32", a_ones[i], vtmp))
    e(valu("v_and_b32", vtmp, 3, v_lane))
    for r in range(1, 4): e(valu("v_cmp_eq_u32", S(68 + 2 * r, 2), r, vtmp))
    e(valu("v_bfe_u32", vtmp, v_lane, 2, 2)); e(valu("v_lshrrev_b32", vmb, 4, v_lane)); e(valu("v_cmp_eq_u32", S(68, 2), vtmp, vmb))
    LND = int(os.environ.get("LND", "4"))
    def xread4(sg):
        em.wait(vm=xl[4 * sg + 3])
        for ks in range(4 * sg, 4 * sg + 4): xr[ks] = e(dsread("ds_read_b128", v_xp[(4 * ks, 4)], vxr[ks & 3], sg * 4096))
    if XD == 1: xread(0)
    for ks in range(16):
        if XD == 2:
            if ks % 4 == 0: xread4(ks // 4)
            em.wait(lg=xr[ks])
        elif XD:
            if ks % 2 == 0 and ks + 2 < 16: xread(ks // 2 + 1)
            em.wait(lg=xr[ks])
        else: em.wait(vm=xl[ks])
        if ks == 15: diag(2)
        x4 = v_xp[(4 * ks, 4)]
        e(mfma(d1, a_ones, x4, 0 if ks == 0 else d1))
        if ks >= LND: ln_issue(1)
        for k in range(2):
            p = 4 * ks + k
            e(valu("v_lshlrev_b32", v_f[2 * p], 16, v_xp[p])); e(valu("v_and_b32", v_f[2 * p + 1], "0xffff0000", v_xp[p]))
        e(mfma(d2, x4, x4, 0 if ks == 0 else d2))
        for k in range(2, 4):
            p = 4 * ks + k
            e(valu("v_lshlrev_b32", v_f[2 * p], 16, v_xp[p])); e(valu("v_and_b32", v_f[2 * p + 1], "0xffff0000", v_xp[p]))
    if STAMP == 3: stamp()
    ln_issue(int(os.environ.get("LN_FIRST", "0")))
    diag(2)
    if STAMP == 3: stamp()
    e(nop(2))
    if XD == 2:
        e(nop(2))
        for r in range(4): e(valu("v_accvgpr_read_b32", V(60 + r), d2[r]))
        d2 = V(60, 4)
    e(valu("v_mul_f32", vsum, hx(f2u(1.0 / 512)), d1[0]))
    e(valu("v_cvt_pk_bf16_f32", vmb, vsum, vsum)); e(valu("v_lshlrev_b32", vmb, 16, vmb))
    e(valu("v_mov_b32", vdm, vsum))
    for r in range(1, 4): e(valu("v_cndmask_b32", d2[0], d2[0], d2[r], S(68 + 2 * r, 2)))
    e(valu("v_cndmask_b32", vsum, 0, d2[0], S(68, 2)))
    red4("v_add_f32", [vsum], [vtmp])
    e(valu("v_mul_f32", vsum, hx(f2u(1.0 / 512)), vsum))
    e(valu("v_fma_f32", vsum, "-" + str(vdm), vdm, vsum, extra_rd=vdm.regs()))
    if STAMP == 3: stamp()
else:
    acc = [V(56, 2), V(58, 2), V(60, 2), V(62, 2)]
    for ks in range(16):
        em.wait(vm=xl[ks])
        if ks == 15: diag(2)
        for k in range(4):
            p = 4 * ks + k
            e(valu("v_lshlrev_b32", v_f[2 * p], 16, v_xp[p])); e(valu("v_and_b32", v_f[2 * p + 1], "0xffff0000", v_xp[p]))
        for k in range(4):
            p = 4 * ks + k
            if ks == 0: e(valu("v_mov_b64", acc[k], v_f[(2 * p, 2)]))
            else: e(valu("v_pk_add_f32", acc[k], acc[k], v_f[(2 * p, 2)]))
    if STAMP == 3: stamp()
    ln_issue(int(os.environ.get("LN_FIRST", "12")))
    diag(2)
    if STAMP == 3: stamp()
    e(valu("v_pk_add_f32", acc[0], acc[0], acc[1])); e(valu("v_pk_add_f32", acc[2], acc[2], acc[3])); e(valu("v_pk_add_f32", acc[0], acc[0], acc[2]))
    e(valu("v_add_f32", vsum, acc[0][0], acc[0][1]))
    red4("v_add_f32", [vsum], [vtmp])
    e(valu("v_mul_f32", vsum, hx(f2u(1.0 / 512)), vsum))
    e(valu("v_cvt_pk_bf16_f32", vmb, vsum, vsum)); e(valu("v_lshlrev_b32", vmb, 16, vmb))
    e(valu("v_sub_f32", vdm, vsum, vmb))
    e(valu("v_sub_f32", vneg[0], 0, vmb))
    acc2 = [V(58, 2), V(60, 2), V(62, 2)]
    for p in range(64):
        e(valu("v_pk_add_f32", v_f[(2 * p, 2)], v_f[(2 * p, 2)], vneg, mod="op_sel_hi:[1,0]"))
    for p in range(64):
        a_ = acc2[p % 3]
        if p < 3: e(valu("v_pk_mul_f32", a_, v_f[(2 * p, 2)], v_f[(2 * p, 2)]))
        else: e(valu("v_pk_fma_f32", a_, v_f[(2 * p, 2)], v_f[(2 * p, 2)], a_))
    if STAMP == 3: stamp()
    e(valu("v_pk_add_f32", acc2[0], acc2[0], acc2[1])); e(valu("v_pk_add_f32", acc2[0], acc2[0], acc2[2]))
    e(valu("v_add_f32", vsum, acc2[0][0], acc2[0][1]))
    red4("v_add_f32", [vsum], [vtmp])
    e(valu("v_mul_f32", vsum, hx(f2u(1.0 / 512)), vsum))
    e(valu("v_fma_f32", vsum, "-" + str(vdm), vdm, vsum, extra_rd=vdm.regs()))
e(valu("v_max_f32", vsum, 0, vsum))
e(valu("v_cvt_pk_bf16_f32", vsum, vsum, vsum)); e(valu("v_lshlrev_b32", vsum, 16, vsum))
e(valu("v_add_f32", vsum, hx(f2u(1e-5)), vsum))
e(valu("v_cvt_pk_bf16_f32", vsum, vsum, vsum)); e(valu("v_lshlrev_b32", vsum, 16, vsum))
e(valu("v_sqrt_f32", vsum, vsum)); e(nop(0))
e(valu("v_cvt_pk_bf16_f32", vsum, vsum, vsum)); e(valu("v_lshlrev_b32", vsum, 16, vsum))
e(valu("v_rcp_f32", vneg[0], vsum)); e(nop(0))
if LNM: e(valu("v_mul_f32", vneg[1], "-" + str(vmb), vneg[0], mod="", extra_rd=vmb.regs()))
for k2 in range(8):
    if not LNM: break
    for p in range(8 * k2, 8 * k2 + 8): e(valu("v_pk_fma_f32", v_f[(2 * p, 2)], v_f[(2 * p, 2)], vneg, vneg, mod="op_sel:[0,0,1] op_sel_hi:[1,0,1]"))
    if k2:
        for ks in (2 * k2 - 2, 2 * k2 - 1): e(dswrite("ds_write_b128", v_wl, v_xp[(4 * ks, 4)], ks * 1024))
    for p in range(8 * k2, 8 * k2 + 8): e(valu("v_cvt_pk_bf16_f32", v_xp[p], v_f[2 * p], v_f[2 * p + 1]))
if LNM:
    for ks in (14, 15): e(dswrite("ds_write_b128", v_wl, v_xp[(4 * ks, 4)], ks * 1024))
for ks in range(16 if not LNM else 0):
    for k in range(4):
        p = 4 * ks + k
        if LNM: e(valu("v_pk_fma_f32", v_f[(2 * p, 2)], v_f[(2 * p, 2)], vneg, vneg, mod="op_sel:[0,0,1] op_sel_hi:[1,0,1]"))
        else: e(valu("v_pk_mul_f32", v_f[(2 * p, 2)], v_f[(2 * p, 2)], vneg, mod="op_sel_hi:[1,0]"))
    for k in range(4):
        p = 4 * ks + k
        e(valu("v_cvt_pk_bf16_f32", v_xp[p], v_f[2 * p], v_f[2 * p + 1]))
    e(dswrite("ds_write_b128", v_wl, v_xp[(4 * ks, 4)], ks * 1024))
ln_issue(int(os.environ.get("LN_LAST", "100")))
if STAMP == 3: stamp()
if DUMP == "ln": dump_regs([v_xp[i] for i in range(64)])
em.wait(lg0=True)
e(raw("s_barrier"))
stamp(); diag(); diag(2); diag(3)

PA = int(os.environ.get("PA", "1"))
SNAKE = int(os.environ.get("SNAKE", "1"))
def cost_of(it):
    k = getattr(it, "kind", "")
    return 2 if k == "trans" else (0 if k in ("salu", "nop") else 1)
class Fill:
    def __init__(self, items, start, end, spread=False): self.items, self.start, self.end, self.spread = list(items), start, end, spread; self.i = 0
    def done(self): return self.i == len(self.items)
def run_stream(NH, dmaf, dtok, accf, Bf, extra, fills, LOOK=6, nq=4, posf=lambda m: m % 6, ring=a_ring, first_dma=6, tr2=None, early_dma=False, w2=lambda g: False):
    NG = 4 * NH
    rtok = {}
    def reads(g):
        m, u = g >> 2, g & 3
        p = posf(m)
        d = ring[((g % 8) * 4, 4)]
        ar, of = (v_tr[p // 3][u], (p % 3) * 16384) if p < 6 else (tr2[u], (p - 6) * 16384)
        r = [dsread("ds_read_b64_tr_b16", d[(2 * h2, 2)], ar, of + h2 * 512) for h2 in range(2)]
        rtok[g] = r[1]
        return r
    assert all(k < NG for k in extra), "extra item scheduled past the end of the stream"
    pre = [reads(g) for g in range(3)]
    G, C = [], []
    cur = None
    for g in range(NG):
        gaps = [[], [], [], []]; cap = [2, 2, 2, 2]
        if g + 3 < NG:
            if (g + 3) & 3 == 0 and not (g > 0 and w2(g - 1)): gaps[0].append(LateW(dtok, (g + 3) >> 2))
            r = reads(g + 3); gaps[0].append(r[0]); gaps[1].append(r[1]); cap[0] -= 1; cap[1] -= 1
        md, j = (g + 4 * LOOK - 4) >> 2, (g + 4 * LOOK - 4) & 3
        if early_dma:
            md, j = (g + 4 * LOOK - 3) >> 2, (g + 4 * LOOK - 3) & 3
            if md >= first_dma and j < 2:
                if j == 0: cur = dmaf(md)
                if cur is not None:
                    if j == 0: gaps[1] += cur[0]
                    gaps[2].append(cur[1][2 * j]); gaps[3].append(cur[1][2 * j + 1]); cap[2] -= 1; cap[3] -= 1
                    if j == 1: dtok[md] = cur[1][3]
        elif md >= first_dma:
            if j == 0: cur = dmaf(md)
            if cur is not None:
                if j == 0: gaps[2] += cur[0]
                for it in cur[1][j::4]: gaps[3].append(it); cap[3] -= 1
                if j == 3: dtok[md] = cur[1][3]
        for (gp, it, cost) in extra.get(g, []):
            gaps[gp].append(it); cap[gp] -= cost
        if w2(g):
            if g & 1 == 0 and g + 1 < NG:
                gaps[3].insert(0, LateW2(rtok, [x for x in (g + 1, g + 2) if x < NG], dtok, (g + 4) >> 2 if ((g + 4) & 3 == 0 and g + 4 < NG) else None))
        elif g + 1 < NG: gaps[3].insert(0, Wait(lg=rtok[g + 1]))
        G.append(gaps); C.append(cap)
    B = {}
    for f in fills:
        idx = [(g, q) for g in range(f.start, f.end) for q in range(4)]
        caps = [max(0, C[g][q]) for g, q in idx]
        W = sum(cost_of(it) for it in f.items); T = sum(caps); n = len(idx)
        acc = 0.0; cum = 0
        for k, key in enumerate(idx):
            if W >= T: acc += caps[k] + (W - T) / n
            elif f.spread: acc += caps[k] * W / T
            else: acc += caps[k]
            B[key] = (f, acc)
    em.wait(vm=dtok[0])
    for r in pre: e(r)
    for p_ in extra.get(-1, []): e(p_[1])
    em.wait(lg0=True)
    used = {id(f): 0 for f in fills}
    for g in range(NG):
        m, u = g >> 2, g & 3
        d = ring[((g % 8) * 4, 4)]
        for qb in range(nq):
            qq = 3 - qb if (SNAKE and g & 1) else qb
            ac, first = accf(m, u, qq)
            e(mfma(ac, d, Bf(m, qq), 0 if first else ac))
            ent = B.get((g, qb))
            sawv = False
            if ent:
                f, lim = ent
                while not f.done() and getattr(f.items[f.i], "kind", "") in ("lds", "vmem", "salu") and used[id(f)] + cost_of(f.items[f.i]) <= lim + 0.5:
                    it = f.items[f.i]; f.i += 1; used[id(f)] += cost_of(it); e(it)
            for it in G[g][qb]: e(it)
            if ent:
                f, lim = ent
                lastgap = (g == f.end - 1 and qb == 3)
                while not f.done():
                    it = f.items[f.i]; c = cost_of(it)
                    if not lastgap:
                        if used[id(f)] + c > lim + 0.5: break
                        if sawv and getattr(it, "kind", "") in ("lds", "vmem"): break
                    f.i += 1; used[id(f)] += c; e(it)
                    if getattr(it, "kind", "") in ("valu", "trans"): sawv = True
    assert all(f.done() for f in fills)
class LateW2:
    def __init__(self, r, fl, d, k): self.r, self.fl, self.d, self.k = r, fl, d, k
    def __call__(self): return Wait(lg=[self.r[f] for f in self.fl], vm=(self.d[self.k] if self.k is not None else None))
class LateW:
    def __init__(self, d, k): self.d, self.k = d, k
    def __call__(self): return Wait(vm=self.d[self.k])

def s1_acc(m, u, qb):
    h = m & 1
    idx = ((h * 4 + u) * 4 + qb) * 4
    if m < 32: return A(idx, 4), m < 2
    return v_acc[(idx, 4)], m < 34
def s1_B(m, qb): return a_B[(((m >> 1) & 1) * 16 + qb * 4, 4)]
extra = {}
btok = {}
W3Z = int(os.environ.get("W3Z", "1"))
v_lz = [V(50), V(51)]
def bread(s, qb): return dsread("ds_read_b128", a_B[((s & 1) * 16 + qb * 4, 4)], v_lz[qb >> 1] if (W3Z and (s >= 16 if ORD else s < 16)) else v_lin, (qb * 16 + (s % 16)) * 1024)
if W3Z:
    s_hz = [S(84 - 16 + 0), S(69)]
    for h in range(2):
        e(salu("s_and_b32", s_t0, s_g, 1)); e(salu("s_lshl_b32", s_t0, s_t0, 2)); e(salu("s_add_u32", s_t0, s_t0, s_w))
        e(scmp("s_cmp_eq_u32", s_t0, 7 if h == 0 else 3)); e(salu("s_cselect_b32", s_hz[h], "0x40000", 0, scc_w=False, scc_r=True))
        e(valu("v_add_u32", v_lz[h], s_hz[h], v_lin))
extra[-1] = [(0, bread(0, qb), 1) for qb in range(4)]
for s in range(1, 32):
    for qb in range(4):
        extra.setdefault(8 * (s - 1) + 1 + qb, []).append((2, bread(s, qb), 1))
gi = 0; gj = 0; pend_s = []
for it in ln_v[lv[0]:]:
    if isinstance(it, list) and all(x.kind == "salu" for x in it): pend_s = it; continue
    if not isinstance(it, list) and it.kind == "dma":
        assert gi < 12
        extra.setdefault(gi // 3, []).append((gi % 3, [pend_s, it] if pend_s else it, 1)); pend_s = []
        gi += 1
    else:
        extra.setdefault(8 + 2 * gj, []).append((1, it, 1)); gj += 1
if WQC == 2: extra.setdefault(int(os.environ.get("WQG", "70")), []).append((1, wqs, 1))
C0 = -2.0 * math.sqrt(2.0 / math.pi) * math.log2(math.e); C1 = C0 * 0.044715
vc0, vc1 = V(40), V(41)
gel = [valu("v_mov_b32", vc0, hx(f2u(C0))), valu("v_mov_b32", vc1, hx(f2u(C1)))]
hst = []
tb = 0
for i in range(2):
    for qb in range(4):
        pk = hpk(i, qb); tb += 1
        for b in range(2):
            u = 2 * i + b
            T = [V(64 + 16 * b + k) for k in range(16)]
            G_, U_, X_ = T[0:4], T[4:8], T[8:12]
            ga = lambda r: A((u * 4 + qb) * 4 + r); ua = lambda r: A(((4 + u) * 4 + qb) * 4 + r)
            for r in range(4): gel.append(valu("v_accvgpr_read_b32", G_[r], ga(r)))
            for r in range(4): gel.append(valu("v_accvgpr_read_b32", U_[r], ua(r)))
            for r in range(4): gel.append(valu("v_mul_f32", X_[r], G_[r], G_[r]))
            for r in range(4): gel.append(valu("v_fma_f32", X_[r], X_[r], vc1, vc0))
            for r in range(4): gel.append(valu("v_mul_f32", X_[r], X_[r], G_[r]))
            for r in range(4): gel.append(valu("v_exp_f32", X_[r], X_[r]))
            for r in range(4): gel.append(valu("v_mul_f32", G_[r], G_[r], U_[r]))
            for r in range(4): gel.append(valu("v_add_f32", X_[r], "1.0", X_[r]))
            for r in range(4): gel.append(valu("v_rcp_f32", X_[r], X_[r]))
            gel.append(nop(0))
            for r in range(4): gel.append(valu("v_mul_f32", G_[r], G_[r], X_[r]))
            for k in range(2): gel.append(valu("v_cvt_pk_bf16_f32", pk[2 * b + k], G_[2 * k], G_[2 * k + 1]))
        st = bstore(pk, (V(46 + (qb >> 1)) if PF1 else v_lz[qb >> 1]) if W3Z else v_lin, S_H, s_h1 if i else s_h0, off=qb * 1024, mod="sc1")
        hst.append(st)
class Stamp:
    def __call__(self): stamp(); return []
if STAMP: extra.setdefault(128, []).append((0, Stamp(), 0))
if STAMP == 6:
    for g_ in (0, 8, 16, 24, 32, 48, 64, 96): extra.setdefault(g_, []).append((0, Stamp(), 0))
class Diag3:
    def __call__(self): diag(3); return []
if DIAG == 3:
    for g_ in (32, 128, 192): extra.setdefault(g_, []).append((0, Diag3(), 0))
class Grp:
    kind = "salu"
    def __init__(self, l): self.l = l
    def __call__(self):
        for x in self.l:
            if x.kind == "label": em.out.append(x)
            else: e(x)
        return []
def group_scc(items):
    out = []
    for it in items:
        if out and ("scc" in it.rd or it.kind == "label"):
            p = out.pop(); out.append(Grp((p.l if isinstance(p, Grp) else [p]) + [it]))
        else: out.append(it)
    return out
s_pf = [S(24, 2), S(26, 2), S(28, 2), S(30, 2)]
s_pfH = s_pair2
s_fo = S(3)
QS = math.log2(math.e) / math.sqrt(128.0)
vqs = V(42, 2); vqw = V(44)
save = em.out; em.out = []; spend = em.pend; em.pend = {}
NWO = 4 if MAP2 else 2
for it in range(3):
    e(salu("s_add_u32", s_t0, s_w, 4 * it))
    e(salu("s_sub_u32", s_t1, s_t0, NWO)); e(salu("s_min_u32", s_t1, s_t1, 6)); e(salu("s_lshl_b32", s_t1, s_t1, 13))
    e(salu("s_lshr_b32", s_t2, S(2), 3)); e(salu("s_mul_i32", s_t2, s_t2, 57344, scc_w=False)); e(salu("s_add_u32", s_t1, s_t1, s_t2))
    e(salu("s_add_u32", s_pf[it][0], S_WD[0], s_t1)); e(salu("s_addc_u32", s_pf[it][1], S_WD[1], 0, scc_r=True))
    if it == 0:
        e(sx(s_t1)); e(salu("s_lshl_b32", s_t1, s_t1, 15 if MAP2 else 14)); e(salu("s_lshl_b32", s_t2, s_w, 13)); e(salu("s_add_u32", s_t1, s_t1, s_t2))
        e(salu("s_add_u32", s_pf[1][0], S_WO[0], s_t1)); e(salu("s_addc_u32", s_pf[1][1], S_WO[1], 0, scc_r=True))
        e(scmp("s_cmp_lt_u32", s_w, NWO)); e(salu("s_cselect_b64", s_pf[0], s_pf[1], s_pf[0], scc_w=False, scc_r=True))
e(raw("s_getpc_b64 %s" % s_pf[3], "salu", wr=[s_pf[3]]))
em.label("L_pc1")
e(salu("s_lshl_b32", s_t0, s_w, 13)); e(salu("s_add_u32", s_t0, s_t0, "L_tail-L_pc1")); e(salu("s_min_u32", s_t0, s_t0, "L_code_end-L_pc1-8192"))
e(salu("s_add_u32", s_t1, s_t0, (1 if MAP2 else 3) * 8192)); e(salu("s_min_u32", s_t1, s_t1, "L_code_end-L_pc1-8192"))
e(salu("s_add_u32", s_pfH[0], s_pf[3][0], s_t1)); e(salu("s_addc_u32", s_pfH[1], s_pf[3][1], 0, scc_r=True))
e(scmp("s_cmp_lt_u32", s_w, 3 if MAP2 else 1)); e(salu("s_cselect_b64", s_pf[2], s_pf[2], s_pfH, scc_w=False, scc_r=True))
e(salu("s_add_u32", s_pf[3][0], s_pf[3][0], s_t0)); e(salu("s_addc_u32", s_pf[3][1], s_pf[3][1], 0, scc_r=True))
e(salu("s_lshl_b32", s_t0, s_cg, 2)); e(salu("s_add_u32", s_t0, s_t0, s_w)); e(salu("s_mul_i32", s_t0, s_t0, 7168, scc_w=False)); e(salu("s_min_u32", s_t0, s_t0, 229376 - 8192))
e(salu("s_add_u32", s_pfH[0], S_HC[0], s_t0)); e(salu("s_addc_u32", s_pfH[1], S_HC[1], 0, scc_r=True))
e(salu("s_lshl_b32", s_fo, s_cq, 3))
vx, vy, vz = V(45), V(46), V(47)
e(salu("s_lshl_b32", s_t1, s_w, 8))
pf_part = len(em.out)
dma_voffs(v_wo, 1024, s_t1, True)
e(salu("s_mul_i32", s_wdd, s_w, 448 * 1024 - 256, scc_w=False)); e(salu("s_lshl_b32", s_t3, s_cg, 7)); e(salu("s_add_u32", s_wdd, s_wdd, s_t3))
e(valu("v_mov_b32", vqs[0], hx(f2u(QS))))
e(valu("v_and_b32", vx, 15, v_lane)); e(valu("v_bfe_u32", vqw, v_lane, 5, 1)); e(valu("v_lshl_add_u32", vx, vqw, 4, vx)); e(valu("v_lshlrev_b32", vx, 4, vx))
e(valu("v_bfe_u32", vqw, v_lane, 4, 1)); e(valu("v_lshl_add_u32", vqw, vqw, 3, vx))
e(salu("s_lshl_b32", s_t1, s_w, 14)); e(valu("v_add_u32", vqw, s_t1, vqw))
for i in range(16 if not PF1 else 0): e(valu("v_accvgpr_write_b32", a_L[i], 0))
midset = group_scc(em.out[pf_part - 1:]) if ORD else group_scc(em.out)
pfset = group_scc(em.out[:pf_part - 1]); em.out = save; em.pend = spend
qconv = []
if ORD:
    QS_ = V(42)
    for ds in range(4):
        for q2 in range(2):
            T = [[V(64 + 16 * (q2 & 1) + 8 * j + k) for k in range(8)] for j in range(2)]
            qs = [2 * q2, 2 * q2 + 1]
            for k in range(8):
                for j in range(2): qconv.append(valu("v_accvgpr_read_b32", T[j][k], A(((2 * ds + (k >> 2)) * 4 + qs[j]) * 4 + (k & 3))))
            for k in range(8):
                for j in range(2): qconv.append(valu("v_mul_f32", T[j][k], QS_, T[j][k]))
            for k in range(4):
                for j in range(2): qconv.append(valu("v_cvt_pk_bf16_f32", T[j][k], T[j][2 * k], T[j][2 * k + 1]))
            for sw in ("v_permlane32_swap_b32", "v_permlane16_swap_b32"):
                for k in range(2):
                    for j in range(2): qconv.append(valu(sw, T[j][k], T[j][k + 2]))
            for k in range(4):
                for j in range(2): qconv.append(valu("v_accvgpr_write_b32", A((8 * ds + qs[j]) * 4 + k), T[j][k]))
HST = int(os.environ.get("HST", "0"))
if HST == 0: GEL_END = 254
for k in range(8):
    if HST: extra.setdefault(248 + k, []).append((0, hst[k], 1))
run_stream(64, s1_dma, dtok, s1_acc, s1_B, extra, [Fill(midset, 109, 130), Fill(qconv, 131, 236), Fill(pfset, 237, 255)] if ORD else [Fill(midset, 109, 130), Fill(gel, 131, GEL_END)], early_dma=int(os.environ.get('ED1', '0')), w2=lambda g: int(os.environ.get('W2A', '1')) and g >= 130 and not ORD)
if DUMP == "qacc": dump_regs([v_acc[i] for i in range(128)])
stamp(); diag(3)

if not ORD:
    em.wait(lg0=True)
    e(raw("s_barrier"))
def signal(off_s_expr_add, lab, v_t):
    e(scmp("s_cmp_lg_u32", s_w, 0)); e(raw("s_cbranch_scc1 %s" % lab, rd=["scc"]))
    e(salu("s_lshl_b32", s_t0, s_qb, 2))
    if off_s_expr_add: e(salu("s_add_u32", s_t0, s_t0, off_s_expr_add))
    e(valu("v_mov_b32", v_t, 1))
    e(raw("s_mov_b64 exec, 1", "salu", wr=["exec"]))
    e(raw("buffer_atomic_add %s, off, %s, %s sc1" % (v_t, S_DBG, s_t0)))
    e(raw("s_mov_b64 exec, -1", "salu", wr=["exec"]))
    em.label(lab)
if ORD:
    if DRY:
        e(raw("s_getpc_b64 %s" % s_sub, "salu", wr=[s_sub])); em.label("L_pc2")
        e(salu("s_sub_u32", s_sub[0], s_sub[0], "L_pc2-L_gelu")); e(salu("s_subb_u32", s_sub[1], s_sub[1], 0, scc_r=True))
        e(nop(1)); e(raw("s_swappc_b64 %s, %s" % (s_ret, s_sub), "salu", rd=[s_sub], wr=[s_ret])); em.out.append(GeluMark())
    else: gelu_block()
for blk in range(8 if not ORD else 0):
    for qb in range(4):
        a_ = v_acc[((blk * 4 + qb) * 4, 4)]
        t = a_[(0, 2)]
        for k in range(2): e(valu("v_pk_mul_f32", a_[(2 * k, 2)], a_[(2 * k, 2)], vqs, mod="op_sel_hi:[1,0]"))
        for k in range(2): e(valu("v_cvt_pk_bf16_f32", t[k], a_[2 * k], a_[2 * k + 1]))
        e(dswrite("ds_write_b64", vqw, t, (qb * 4 + (blk >> 1)) * 1024 + (blk & 1) * 512))
for j in range(4): e(valu("v_add_u32", v_wd[j], s_wdd, v_wo[j]))
if not ORD: em.wait(lg0=True)
for f in range(16 if not ORD else 0): e(dsread("ds_read_b128", a_Q[(4 * f, 4)], v_wl, f * 1024))
e(scmp("s_cmp_eq_u32", s_retry, 1)); e(raw("s_cbranch_scc1 L_maxpass", rd=["scc"]))
em.label("L_att_start")
if PF1 and W3Z:
    for h in range(2): e(valu("v_mov_b32", V(46 + h), v_lz[h]))
NZ0 = 32
for i in range(NZ0 if not ORD else 1): e(valu("v_mov_b64", v_acc[(2 * i, 2)], 0))
assert LSUM == 1 and LNM and not POI
e(valu("v_lshlrev_b32", V(3), 7, v_lane))
e(valu("v_and_b32", V(38), 7, v_lane)); e(valu("v_mov_b32", V(0), 0))
em.wait(vm=dtok[66], lg0=True)
e(raw("s_barrier"))
if DUMP == "q": dump_regs([a_Q[i] for i in range(64)])
stamp()

def Qf(qb, ds): return A((8 * ds + qb) * 4, 4) if ORD else a_Q[((qb * 4 + ds) * 4, 4)]
def Of(db, qb): return v_acc[((db * 4 + qb) * 4, 4)]
def fr(f): return a_ring[((f % 8) * 4, 4)]
def kslot(par): return 16384 if par == 0 else 0
def vslot(par): return 0 if par == 0 else 16384
def frag_reads(par, f):
    if f >= 32: par ^= 1; f -= 32
    d = fr(f)
    if f < 8 or 16 <= f < 24:
        kb = (f >> 2) if f < 8 else 2 + ((f - 16) >> 2)
        return [dsread("ds_read_b128", d, v_ka[f & 3], kslot(par) + kb * 4096)]
    ks2 = 0 if f < 16 else 1
    db = f & 7
    return [dsread("ds_read_b64_tr_b16", d[(2 * h, 2)], v_va[db], vslot(par) + ks2 * 8192 + h * 4096) for h in range(2)]
def read_sched(g):
    r = []
    if g + 3 < 24 or g >= 29: r.append(g + 3)
    if 19 <= g <= 26: r.append(g + 5)
    return r
def sm_val(g, k):
    if 7 <= g <= 22: b = 1; n = 2 * (g - 7) + k
    else: b = 0; n = 2 * ((g - 23) % 32) + k
    kb, qb, r = n >> 4, (n >> 2) & 3, n & 3
    return b, qb, kb, r
def sm_items(g):
    ex, ad = [], []
    for k in range(2):
        b, qb, kb, r = sm_val(g, k)
        x = v_S[b][qb * 8 + kb * 4 + r]
        l = (v_l1 if b else v_l0)[qb]
        ex.append(valu("v_exp_f32", x, x)); ad.append(valu("v_add_f32", l, l, x))
    b, qb, kb, r = sm_val((g - 1) % 32, 0)
    cv = valu("v_cvt_pk_bf16_f32", v_S[b][qb * 8 + kb * 2 + (r >> 1)], v_S[b][qb * 8 + kb * 4 + r], v_S[b][qb * 8 + kb * 4 + r + 1])
    return ex, ad, cv
def att_dma(par, g):
    if g >= 29: k = g - 29; sp = par
    elif g <= 4: k = g + 3; sp = par ^ 1
    else: return [], None
    sal = []
    if k == 0: sal = [salu("s_add_u32", "m0", s_m0b, 4 * 16384 + kslot(sp))]
    if k == 4: sal = [salu("s_add_u32", "m0", s_m0b, vslot(sp))]
    if k < 4: return sal, dma(v_kd[k], S_K, s_kK, k * 1024)
    return sal, dma(v_vd[k & 1], S_V, s_kV, (k - 4) * 1024)
SIDE_FIRST = 11
class Lbl:
    def __init__(self, n): self.n = n
    def __call__(self): em.label(self.n); return []
class LoopStamp:
    def __init__(self, k, par): self.k, self.par = k, par
    def __call__(self):
        k = self.k
        e(raw("s_memtime %s" % S(68 + 2 * k, 2), "other", wr=[S(68 + 2 * k, 2)]))
        if k == 2:
            e(raw("s_waitcnt lgkmcnt(0)", "wait")); em._retire(em.lgq, 0)
            for i in range(3): e(valu("v_writelane_b32", v_c, S(68 + 2 * i), i, rmw=True))
            e(salu("s_lshl_b32", S(74), S(2), 2)); e(salu("s_add_u32", S(74), S(74), s_w)); e(salu("s_lshl_b32", S(74), S(74), 4))
            e(salu("s_sub_u32", S(74), S(74), s_cnt)); e(salu("s_add_u32", S(74), S(74), 16)); e(salu("s_lshl_b32", S(74), S(74), 5))
            e(salu("s_add_u32", S(74), S(74), (1 << 20) + 16 * self.par))
            e(raw("s_mov_b64 exec, 7", "salu", wr=["exec"]))
            e(valu("v_lshlrev_b32", v_t, 2, v_lane))
            e(bstore(v_c, v_t, S_DMP, S(74), off=0))
            e(raw("s_mov_b64 exec, -1", "salu", wr=["exec"]))
            e(valu("v_lshlrev_b32", v_t, 7, v_lane))
        return []
v_tch, v_flag, v_fa = V(3), V(0), V(38)
xtok = []; lastdma = [None]
NITER = 13 if PF1 else 14
s_po0, s_po1, s_poe = s_h0, s_h1, s_off
s_pfc = S(16, 2); s_kvt = S(18, 2); KVIT = int(os.environ.get('KVIT', '12'))
ROT = int(os.environ.get('ROT', '8'))
LQ = int(os.environ.get("LQ", "2"))
def plan_adds():
    nmem = {}
    for g in range(32):
        n = sum(1 if (f % 32 < 8 or 16 <= f % 32 < 24) else 2 for f in read_sched(g)) + (1 if (g >= 29 or g <= 4) else 0) + (1 if g in (13, 14) else 0)
        nmem[g] = n
    free = {}
    for g in range(32):
        n = nmem[g]; a1 = 2 if n > 2 else min(n, 1); a3 = n - a1
        if a1 < 2: a1 += 1
        else: a3 += 1
        if g == 0: a1 += 1
        free[(g, 1)] = max(0, 2 - a1); free[(g, 3)] = max(0, 2 - a3)
        free[(g, 4)] = 2 if ((g & 8) and (g & 1) and ((g & 7) >> 1) < LQ) else 0
    jobs = []
    for g in range(7, 39):
        for k in range(2):
            b, qb, kb, r = sm_val(g % 32, k)
            if qb < LQ: continue
            early = 4 * g + (1 if k == 0 else 3)
            idx = kb * 4 + r
            if idx < 4:
                gsrc = g + 1 if idx == 0 else (g + 2 if idx == 1 else (g + 8 if idx == 2 else g + 9))
                dead = 4 * gsrc
            else: dead = 4 * (g + 11)
            if b == 1: dead = min(dead, 4 * 30)
            jobs.append((dead, early, b, qb, idx))
    plan = {}
    for dead, early, b, qb, idx in sorted(jobs):
        for t in range(early, dead):
            g, q = t >> 2, t & 3
            for gp in ([1] if q == 1 else ([3, 4] if q == 3 else [])):
                if free[(g % 32, gp)] > 0:
                    free[(g % 32, gp)] -= 1; plan.setdefault((g % 32, gp), []).append((b, qb, idx, g)); break
            else: continue
            break
        else:
            g = early >> 2; plan.setdefault((g % 32, early & 3), []).append((b, qb, idx, g)); print("; add overflow", g, file=sys.stderr)
    return plan
ADDS = plan_adds() if LSUM == 3 else {}
def add_items(g, gp, fin, pro):
    out = []
    for b, qb, idx, gabs in ADDS.get((g, gp), []):
        if fin and b == 0 and g >= 23: continue
        if pro and b == 1: continue
        out.append(valu("v_add_f32", v_l1[qb], v_l1[qb], v_S[b][qb * 8 + idx]))
    return out
ftok = {}
def att_group(par, g, do_mfma=True, do_mem=True, do_cvt=True, last=False, pp=None, xmem=(), xsal=(), xvalu=None, first=False):
    ex, ad, cv = sm_items(g)
    mem = []
    sal = []
    fin = (pp == 3)
    d = None
    if do_mem:
        if fin: sched = ([g + 3] if g + 3 < 16 else []) + ([g + 11] if 13 <= g <= 20 else [])
        else: sched = read_sched(g)
        for f in sched:
            r = frag_reads(par, f); mem += r; ftok[f % 32] = r
        if pp is None or (g <= 4 and pp <= 2) or (g >= 29 and pp <= 1):
            sal, d = att_dma(par, g)
            if d is not None: mem.append(d)
    loop = do_mem and pp is None and not first
    post0 = []
    if loop and par == 0:
        if g == 14: mem.append(I("global_load_dword %s, %s, %s" % (v_c, v_tch, s_pfc), "vmem", rd=v_tch.regs() + s_pfc.regs(), wr=[]))
        if g == 13: mem.append(I("buffer_load_ubyte %s, %s, %s, %s offen sc1" % (v_flag, v_fa, S_DBG, s_t2), "vmem", rd=S_DBG.regs() + s_t2.regs() + v_fa.regs(), wr=[]))
        if g == 8: sal = sal + [scmp("s_cmp_le_u32", s_cnt, ROT)]
        if g in (9, 10, 11, 12):
            q_ = [s_pfc] + s_pf
            sal = sal + [salu("s_cselect_b64", q_[g - 9], q_[g - 8], q_[g - 9], scc_w=False, scc_r=True)]
        if g == 0: post0 = [valu("v_cmp_eq_u32", "vcc", 1, v_flag)]
        if g == 2: sal = sal + [raw("s_cmp_eq_u32 vcc_lo, -1", "salu", rd=["vcc"], wr=["scc"])]
        if g == 3: sal = sal + [salu("s_cselect_b32", s_t0, s_cnt, -1, scc_w=False, scc_r=True)]
        if g == 4: sal = sal + [scmp("s_cmp_eq_u32", s_t0, ROT - 1)]
        if g == 5: sal = sal + [salu("s_cselect_b64", s_pf[3], s_pfH, s_pf[3], scc_w=False, scc_r=True)]
        if g == 15: sal = sal + [salu("s_cselect_b64", s_pf[3], S_K[(0, 2)], s_pf[3], scc_w=False, scc_r=True)]
        if g == 20: sal = sal + [scmp("s_cmp_eq_u32", s_cnt, KVIT + 1)]
        if g == 21: sal = sal + [salu("s_cselect_b64", s_pfc, s_kvt, S_K[(0, 2)], scc_w=False, scc_r=True)]
        if g == 13: sal = sal + [salu("s_cselect_b32", s_t2, s_fo, 256, scc_w=False, scc_r=True)]
        if g == 18: sal = sal + [scmp("s_cmp_eq_u32", s_cnt, s_sig)]
        if g == 19: sal = sal + [raw("s_cbranch_scc1 L_sigH_side", rd=["scc"]), Lbl("L_sigH_ret")]
    if loop and POI and par == 0 and do_mfma:
        if g == 22: sal = sal + [salu("s_add_u32", s_po1, s_po0, 65536)]
        if g == 16: mem.append(bstore(a_poi, v_lin, S_SP, s_po0, mod="sc1"))
        if g == 27: mem.append(bstore(a_poi, v_lin, S_SP, s_po1, mod="sc1"))
        if g == 23: sal = sal + [salu("s_add_u32", s_po0, s_po0, 1024)]
        if g == 24: sal = sal + [salu("s_min_u32", s_po0, s_po0, s_poe)]
    if do_mem and g == 4 and d is not None: lastdma[0] = d
    mem += list(xmem); sal = sal + list(xsal)
    gaps = [[], [], [], []]
    if g == 29 and do_mem and not fin:
        if STAMP == 2 and loop and do_mfma: gaps[0] += [LoopStamp(0, par)]
        gaps[0] += [Wait(lg0=True) if not do_mfma else (Wait(lg0=True, vm0=True) if (pp is None and par == 1) else Wait(lg0=True, vm=lastdma[0]))]
        if STAMP == 2 and loop and do_mfma: gaps[0] += [LoopStamp(1, par)]
        gaps[0] += [raw("s_barrier")]
        if STAMP == 2 and loop and do_mfma: gaps[0] += [LoopStamp(2, par)]
    gaps[0] += sal
    if g == 6 and do_mem and (pp is None or pp <= 1): gaps[0].append(salu("s_add_u32", s_kK, s_kK, 16384))
    if g == 7 and do_mem and (pp is None or pp <= 1): gaps[0].append(salu("s_add_u32", s_kV, s_kV, 16384))
    sm = not (fin and g >= 23)
    if fin and g > 23: do_cvt = False
    if fin and 16 <= g < 24: do_mfma = False
    if LSUM:
        if sm: gaps[0].append(ex[0])
        gaps[1] += mem[0:2] if len(mem) > 2 else mem[0:1]
        gaps[1] += post0
        nf = (g + 1) % 32
        if do_mem and not (fin and (16 <= nf < 24 or nf == 0)): gaps[2].append(Wait(lg=ftok.get(nf)))
        if last and g == 30: gaps[2].append(salu("s_sub_u32", s_cnt, s_cnt, 1))
        if sm: gaps[2].append(ex[1])
        gaps[3] += mem[2:] if len(mem) > 2 else mem[1:]
        pro = not do_mfma and not fin
        gaps[1] += add_items(g, 1, fin, pro)
        if do_cvt: gaps[1 if len([x for x in gaps[1] if x not in ()]) - len(add_items(g, 1, fin, pro)) < 2 else 3].append(cv)
        gaps[3] += add_items(g, 3, fin, pro)
    else:
      gaps[0] += mem[2:3]
      if sm: gaps[0].append(ex[0])
      if len(mem) > 0: gaps[1].append(mem[0])
      if len(mem) == 0 and do_cvt: gaps[1].append(cv)
      if sm: gaps[1].append(ad[0])
      gaps[1] += post0
      nf = (g + 1) % 32
      if do_mem and not (fin and (16 <= nf < 24 or nf == 0)): gaps[2].append(Wait(lg=ftok.get(nf)))
      if last and g == 30: gaps[2].append(salu("s_sub_u32", s_cnt, s_cnt, 1))
      gaps[2] += mem[3:]
      if sm: gaps[2].append(ex[1])
      if len(mem) > 1: gaps[3].append(mem[1])
      if len(mem) > 0 and do_cvt: gaps[3].append(cv)
      if sm: gaps[3].append(ad[1])
    for qb in range(4):
        if do_mfma:
            if g < 8 or 16 <= g < 24:
                b = 1 if g < 8 else 0
                kb, ds = (g >> 2) & 1, g & 3
                d = v_S[b][(qb * 8 + kb * 4, 4)]
                e(mfma(d, fr(g), Qf(qb, ds), v_negm[(qb * 4, 4)] if ds == 0 else d))
            else:
                b = 0 if g < 16 else 1
                qq = 3 - qb if (SNAKE and g & 1) else qb
                if PA: e(mfma(Of(g & 7, qq), v_S[b][(qq * 8, 4)], fr(g), 0 if (first and par == 0 and g < 16) else Of(g & 7, qq)))
                else: e(mfma(Of(g & 7, qq), fr(g), v_S[b][(qq * 8, 4)], Of(g & 7, qq)))
        else:
            if (qb & 1) and not gaps[qb][:1] or ((qb & 1) and getattr(gaps[qb][0], "kind", "") in ("valu",)): e(nop(0))
        for it in gaps[qb]: e(it)
        if xvalu is not None:
            c = 2 - sum(1 for it in gaps[qb] if getattr(it, "kind", "") in ("lds", "vmem", "dma", "valu"))
            while xvalu and c > 0:
                it = xvalu.pop(0); e(it); c -= 2 if it.kind == "trans" else 1
    if LSUM and do_mfma and (g & 8):
        k = g & 7
        lq = None if (fin and g >= 24) else (k >> 1 if k & 1 else None)
        if lq is not None and (LSUM != 3 or lq < LQ): e(mfma(a_L[(4 * lq, 4)], a_ones, v_S[0 if g < 16 else 1][(lq * 8, 4)], 0 if (first and par == 0 and g < 16) else a_L[(4 * lq, 4)]))
    if LSUM == 1 and fin and g == 23:
        e(nop(1))
        for lq in range(4): e(mfma(a_L[(4 * lq, 4)], a_ones, v_S[1][(lq * 8, 4)], a_L[(4 * lq, 4)]))
    if LSUM == 3: e(add_items(g, 4, fin, not do_mfma and not fin))

pr = [dsread("ds_read_b128", fr(f), v_ka[f & 3], (f >> 2) * 4096) for f in range(8)]
for r in pr: e(r)
zr = [valu("v_mov_b32", v_acc[i], 0) for i in ((range(2, 64) if not PF1 else []) if ORD else range(2 * NZ0, 128))]
for f in range(8):
    em.wait(lg=pr[f])
    for qb in range(4):
        d = v_S[0][(qb * 8 + (f >> 2) * 4, 4)]
        e(mfma(d, fr(f), Qf(qb, f & 3), 0 if (f & 3) == 0 else d))
        if qb == 0 and HST == 0 and not PF1: e(hst[f])
        if qb == 2 and f == 0:
            e(raw("s_mov_b64 exec, 3", "salu", wr=["exec"])); e(bstore(v_acc[0], V(3), S_FLZ, s_myfl, mod="sc1")); e(raw("s_mov_b64 exec, -1", "salu", wr=["exec"]))
        for _ in range(2):
            if zr: e(zr.pop(0))
assert not zr
e(salu("s_mov_b32", s_kK, 16384 + 8192, scc_w=False)); e(salu("s_mov_b32", s_kV, 16384, scc_w=False)); e(salu("s_mov_b32", s_cnt, NITER, scc_w=False))
e(scmp("s_cmp_lg_u32", s_retry, 0)); e(raw("s_cbranch_scc1 L_have_max2", rd=["scc"]))
e(nop(3))
mx = [V(97 + 4 * i) for i in range(4)]; mt = [V(98 + 4 * i) for i in range(4)]
for qb in range(4): e(valu("v_max3_f32", mx[qb], v_S[0][qb * 8], v_S[0][qb * 8 + 1], v_S[0][qb * 8 + 2]))
for qb in range(4): e(valu("v_max3_f32", mx[qb], mx[qb], v_S[0][qb * 8 + 3], v_S[0][qb * 8 + 4]))
for qb in range(4): e(valu("v_max3_f32", mx[qb], mx[qb], v_S[0][qb * 8 + 5], v_S[0][qb * 8 + 6]))
for qb in range(4): e(valu("v_max_f32", mx[qb], mx[qb], v_S[0][qb * 8 + 7]))
red4("v_max_f32", mx, mt)
for qb in range(4):
    for k in range(4): e(valu("v_sub_f32", v_negm[qb * 4 + k], 0, mx[qb]))
em.label("L_have_max2")
e(nop(3))
for qb in range(4):
    for k in range(8): e(valu("v_add_f32", v_S[0][qb * 8 + k], v_S[0][qb * 8 + k], v_negm[qb * 4]))
for g in range(23, 29): att_group(1, g, do_mfma=False, do_mem=False, do_cvt=(g != 23))
stamp(); diag()
e(salu("s_and_b32", s_t0, s_qb, 3)); e(salu("s_sub_u32", s_t0, 13, s_t0))
e(scmp("s_cmp_eq_u32", s_w, 0)); e(salu("s_cselect_b32", s_sig, s_t0, -1, scc_w=False, scc_r=True))
e(scmp("s_cmp_eq_u32", s_retry, 0)); e(salu("s_cselect_b32", s_sig, s_sig, -1, scc_w=False, scc_r=True))
e(salu("s_mov_b64", s_pfc, S_K[(0, 2)], scc_w=False))
if POI:
    e(salu("s_lshl_b32", s_po0, s_w, 4)); e(salu("s_add_u32", s_po0, s_po0, s_g)); e(salu("s_lshl_b32", s_po0, s_po0, 13))
    e(salu("s_add_u32", s_poe, s_po0, 7168))
e(scmp("s_cmp_lt_u32", s_w, 2)); e(salu("s_cselect_b64", s_kvt, S_K[(0, 2)], S_V[(0, 2)], scc_w=False, scc_r=True))
e(salu("s_and_b32", s_t0, s_w, 1)); e(sx(s_t1)); e(salu("s_lshl_b32", s_t1, s_t1, 1)); e(salu("s_add_u32", s_t0, s_t0, s_t1)); e(salu("s_lshl_b32", s_t0, s_t0, 13))
if MAP2: e(salu("s_add_u32", s_t0, s_t0, 262144))
e(salu("s_add_u32", s_kvt[0], s_kvt[0], s_t0)); e(salu("s_addc_u32", s_kvt[1], s_kvt[1], 0, scc_r=True))
for g in range(29, 32): att_group(1, g, do_mfma=False, do_mem=True)
if PF1:
    assert PA
    for par in range(2):
        for g in range(32): att_group(par, g, first=True, xmem=([hst[g - 5]] if (par == 0 and 5 <= g < 13) else []))
pro_end = len(em.out)
em.directive(".p2align 6")
em.label("L_att_loop")
def body():
    for par in range(2):
        for g in range(32): att_group(par, g, last=(par == 1))
b0 = len(em.out)
body()
b1 = len(em.out)
e(scmp("s_cmp_lg_u32", s_cnt, 0)); e(raw("s_cbranch_scc1 L_att_loop", rd=["scc"]))
b2 = len(em.out)
body()
second = em.out[b2:]; del em.out[b2:]
assert [i.text for i in second] == [i.text for i in em.out[b0:b1]], "loop not in steady state"
loop_probs = check_hazards(em.out[b1 - 40:b2] + second[:60], "loop-wrap")

em.label("L_tail")
v_ring2 = V(64, 32); v_B2 = V(96, 32)
QH = int(os.environ.get('QH', '0'))
XY = int(os.environ.get('XY', '0'))
NF1 = int(os.environ.get('NF1', '8'))
def hreg(kk, qb):
    if QH and 8 <= kk < 12: return A(16 * (kk - 8) + qb * 4, 4)
    if QH and kk >= 12: kk -= 4
    if kk >= 8: kk -= 8
    if ORD and kk < 4: return A(((2 * kk + 1) * 4 + qb) * 4, 4)
    return A((64 + 16 * kk if kk < 4 else 160 + 16 * (kk - 4)) + qb * 4, 4)
def Facc(u, qb):
    t = u * 4 + qb
    return A(128 + 4 * t if t < 8 else 224 + 4 * (t - 8), 4)
POS2 = [5, 0, 2, 3, 4, 1]
NB = int(os.environ.get("NB", "4"))
def pos2(m): return 6 + m if m < NB else POS2[(m - NB) % 6]
def kind2(m):
    if m < NF1: return ("F", m)
    if m < NF1 + 32: return ("O", (m - NF1) & 15, (m - NF1) >> 4) if XY else ("O", (m - NF1) >> 1, (m - NF1) & 1)
    return ("F", m - 32)
def s2_dma(m):
    if m >= 46: return None
    p = pos2(m); k = kind2(m)
    if k[0] == "O":
        return [m0set(p), salu("s_mov_b32", s_off, k[1] * 32 * 1024 + 128 * k[2], scc_w=False)], [dma(v_wo[j], S_WO, s_off, j * 1024) for j in range(4)]
    return [m0set(p), salu("s_mov_b32", s_off, k[1] * 32 * 1024, scc_w=False)], [dma(v_wd[j], S_WD, s_off, j * 1024) for j in range(4)]
dtok2 = {}; s2pre = {}
for m in range(6 + NB):
    s2pre[m] = s2_dma(m); dtok2[m] = s2pre[m][1][3]
class Seq:
    kind = "vmem"
    def __init__(self, l): self.l = l
    def __call__(self): return self.l
hld = {}; htok = {}
for kk in range(14):
    hld[kk] = [bload(hreg(kk, qb), v_lin, S_HC, s_hl, off=qb * 1024, mod="sc1") for qb in range(4)]
    htok[kk] = hld[kk][3]
e(salu("s_mov_b32", s_cnt, 0, scc_w=False))
em.label("L_pollH")
e(valu("v_cmp_ne_u32", "vcc", 1, v_flag)); e(salu("s_mul_i32", s_hb, s_w, 14 * 4096, scc_w=False)); e(nop(1))
e(raw("s_cbranch_vccz L_pollH_done", rd=["vcc"]))
e(salu("s_add_u32", s_cnt, s_cnt, 1)); e(scmp("s_cmp_ge_u32", s_cnt, 50000)); e(raw("s_cbranch_scc1 L_pollH_done", rd=["scc"]))
e(raw("s_sleep 4")); e(raw("buffer_load_ubyte %s, %s, %s, %s offen sc1" % (v_flag, v_fa, S_DBG, s_fo))); e(raw("s_waitcnt vmcnt(0)")); e(raw("s_branch L_pollH"))
em.label("L_pollH_done")
xaddr(V(39), V(0))
assert LSUM == 1
xsl = [bload(V(40 + 2 * u, 2), V(39), S_XC, 0, off=32 * u, n=2) for u in range(4)]
NH0 = 32
hsl = sorted([(pp, g) for pp in range(3) for g in (5, 13, 14, 15, 16, 17, 18, 27, 28, 9, 11)])[:NH0]
if QH:
    hsl += [(3, g) for g in list(range(8, 16)) + list(range(24, 32))]; NH0 = 48
px = {}
for k, key in enumerate(hsl):
    px.setdefault(key, ([], []))
    px[key][0].append(hld[k >> 2][k & 3])
    if k & 3 == 0: px[key][1].append(salu("s_add_u32", s_hl, s_hb, (k >> 2) * 4096))
for u in range(4): px.setdefault((int(os.environ.get('XSP', '3')), int(os.environ.get('XSG0', '13')) + u), ([], []))[0].append(xsl[u])
wsl = [(pp, g) for pp in range(2) for g in (6, 7, 8, 10, 12, 21, 22, 23)][:4 * NB] + [(2, 29), (2, 30), (2, 31), (3, 0), (3, 1), (3, 2), (3, 3), (3, 4)] + ([(2, g) for g in (6, 7, 8, 10, 12, 21, 22, 23)] if QH else [(3, g) for g in range(5, 13)]) + [(3, g) for g in range(24, 32)]
for k, key in enumerate(wsl):
    px.setdefault(key, ([], []))
    m, j = k >> 2, k & 3
    px[key][0].append(s2pre[m][1][j])
    if j == 0: px[key][1].extend(s2pre[m][0])
px[(3, 24)][1][:0] = [Wait(lg0=True), raw("s_barrier")]
lt = [V(48 + i) for i in range(4)]
NPK = int(os.environ.get("NPK", "0"))
rinv = [V(52 + i) for i in range(4)]
vxf = V(40, 8)
save = em.out; em.out = []
for qb in range(4): e(valu("v_accvgpr_read_b32", lt[qb], a_L[4 * qb]))
e(valu("v_add_f32", V(60), lt[0], lt[1])); e(valu("v_add_f32", V(61), lt[2], lt[3])); e(valu("v_add_f32", V(60), V(60), V(61)))
for qb in range(4): e(valu("v_rcp_f32", rinv[qb], lt[qb]))
e(valu("v_cmp_nge_f32", "vcc", hx(f2u(2.0 ** 30)), V(60)))
v_tr2 = V(56, 4); v_ow = V(62)
for u in range(4): e(valu("v_subrev_u32", v_tr2[u], RING, v_tr[0][u]))
if PA:
    def rT(qb, r): return V(100 + 8 * qb + r)
    v_l8 = V(63)
    vcap = em.lgq, em.pend; em.lgq, em.pend = [], {}
    e(valu("v_and_b32", V(61), 48, v_lane))
    for qb in range(4):
        for r in range(4): e(I("ds_bpermute_b32 %s, %s, %s offset:%d" % (rT(qb, r), V(61), rinv[qb], 4 * r), "lds", rd=["v61"] + rinv[qb].regs(), wr=rT(qb, r).regs()))
    em.lgq, em.pend = vcap
    e(valu("v_lshrrev_b32", v_l8, 4, v_lane)); e(valu("v_bfe_u32", V(60), v_lane, 2, 2)); e(valu("v_xor_b32", V(60), V(60), v_l8))
    e(valu("v_and_b32", v_ow, 15, v_lane)); e(valu("v_lshlrev_b32", v_ow, 5, v_ow)); e(valu("v_lshl_add_u32", v_ow, V(60), 3, v_ow))
    e(valu("v_subrev_u32", v_ow, RING, v_ow)); e(valu("v_add_u32", v_ow, s_m0b, v_ow))
    e(valu("v_xor_b32", v_l8, v_l8, v_lane)); e(valu("v_lshlrev_b32", v_l8, 3, v_l8))
else:
    e(valu("v_subrev_u32", v_ow, RING, v_lin)); e(valu("v_add_u32", v_ow, s_m0b, v_ow))
lred = em.out; em.out = save
for pp in range(4):
    for g in range(32):
        if STAMP == 4 and g in (0, 16): stamp()
        xm, xs = px.get((pp, g), ([], []))
        att_group(pp & 1, g, pp=pp, xmem=xm, xsal=xs, xvalu=(lred if (pp == 3 and g >= (26 if LSUM else 24)) else None))
for it in lred: e(it)
diag(); stamp()
if DUMP == "o":
    e(nop(7))
    for db in range(8):
        for qb in range(4):
            for k in range(4): e(valu("v_mul_f32", Of(db, qb)[k], Of(db, qb)[k], rinv[qb]))
    dump_regs([v_acc[i] for i in range(128)])

vm_ = V(60); vma = V(61)
class Mark:
    kind = "salu"
    def __init__(self, t): self.t = t
    def __call__(self):
        e(raw("s_cbranch_vccz L_nomark", rd=["vcc"])); e(valu("v_mov_b32", self.t, hx(MARK))); em.label("L_nomark"); return []
norm = [valu("v_and_b32", vma, 3, v_lane), valu("v_lshlrev_b32", vma, 12, vma)]
ow = []; ncv = []; ow2 = []
assert not (PA and (NB == 0 or NPK))
NPK_N = int(os.environ.get("NPK_N", "16")) if NPK else 0
for i in range(4):
    for qb in range(4):
        t = Of(2 * i, qb)
        for b in range(2):
            if i * 4 + qb < NPK_N:
                rp = V(52 + (qb & ~1), 2)
                for k in range(2): norm.append(valu("v_pk_mul_f32", Of(2 * i + b, qb)[(2 * k, 2)], Of(2 * i + b, qb)[(2 * k, 2)], rp, mod="op_sel:[0,%d] op_sel_hi:[1,%d]" % (qb & 1, qb & 1)))
            else:
                for k in range(4): norm.append(valu("v_mul_f32", Of(2 * i + b, qb)[k], Of(2 * i + b, qb)[k], rT(qb, k) if PA else rinv[qb]))
        for b in range(2):
            o = Of(2 * i + b, qb)
            for k in range(2): norm.append(valu("v_cvt_pk_bf16_f32", t[2 * b + k], o[2 * k], o[2 * k + 1]))
        ncv.append(norm[-1])
        if PA: ow2.append(dswrite("ds_write_b64", v_ow, t[(2, 2)], i * 16384 + qb * 1024 + 512))
        if i == 0 and qb == 0: norm.append(Mark(t[0]))
        ow.append(dswrite("ds_write_b64", v_ow, t[(0, 2)], i * 16384 + qb * 1024) if PA else dswrite("ds_write_b128", v_ow, t, i * 16384 + qb * 1024))
        if NB == 0: norm.append(ow[-1])
if NPK_N:
    cut = norm.index(ncv[NPK_N - 1]) + 1
    e(nop(4))
    for it in norm[:cut]: e(it)
    norm = norm[cut:]
class ChkNorm:
    def __init__(self, k): self.k = k
    def __call__(self):
        assert ncv[self.k].tok, "O write %d scheduled before its data" % self.k
        return [ow[self.k], ow2[self.k]] if PA else ow[self.k]
G0 = 4 * NF1
G1 = G0 + 128
mk = dsread("ds_read_b32", vm_, vma, 0)
class OBar:
    def __call__(self):
        assert all(w.tok for w in ow)
        em.wait(lg0=True); e(raw("s_barrier")); stamp(); e(mk); return []
class FbCheck:
    def __call__(self):
        em.wait(lg=mk)
        e(valu("v_cmp_eq_u32", "vcc", hx(MARK), vm_))
        e(scmp("s_cmp_lg_u32", s_retry, 0)); e(raw("s_cbranch_scc1 L_nofb", rd=["scc"]))
        e(nop(1))
        e(raw("s_cbranch_vccnz L_fallback", rd=["vcc"]))
        em.label("L_nofb")
        return []
def s2_acc(m, u, qb):
    k = kind2(m)
    if k[0] == "O": return v_acc[(((k[2] * 4 + u) * 4 + qb) * 4, 4)], k[1] == 0
    return Facc(u, qb), k[1] == 0
def s2_B(m, qb):
    k = kind2(m)
    if k[0] == "O": return v_B2[((k[1] & 1) * 16 + qb * 4, 4)]
    return hreg(k[1], qb)
def oread(s, qb):
    d = v_B2[((s & 1) * 16 + qb * 4, 4)]; of = (s & 3) * 16384 + (s >> 2) * 4096 + qb * 1024
    if PA: return [dsread("ds_read_b64_tr_b16", d[(2 * b, 2)], v_l8, of + 512 * b) for b in range(2)]
    return dsread("ds_read_b128", d, v_lin, of)
extra = {}
if NB:
    OW0 = int(os.environ.get("OW0", "11")); OWN = int(os.environ.get("OWN", "1"))
    for k in range(16):
        gg = OW0 + k // OWN
        assert (k >> 2) >= NB or gg > 4 * (k >> 2) + 3
        extra.setdefault(gg, []).append((2 + (k % OWN) % 2, ChkNorm(k), 1))
GB = G0 - int(os.environ.get("OBAR", "3"))
extra.setdefault(GB, []).append((0, OBar(), 0))
r0 = [oread(0, qb) for qb in range(4)]
for qb in range(4): extra.setdefault(GB + (qb >> 1), []).append((1 + (qb & 1) if qb < 2 else (qb & 1) * 2, r0[qb], 1))
extra.setdefault(G0 - 1, []).append((2, [Wait(lg=([x for y in r0 for x in y] if PA else r0)), FbCheck()], 0))
if XY:
    for mm in range(1, 32):
        rr = [oread(mm & 15, qb) for qb in range(4)]
        for qb in range(4): extra.setdefault(G0 + 4 * (mm - 1) + (qb >> 1), []).append((2 + (qb & 1), rr[qb], 1))
        extra.setdefault(G0 + 4 * mm - 1, []).append((2, Wait(lg=([x for y in rr for x in y] if PA else rr)), 0))
else:
    for s_ in range(1, 16):
        for qb in range(4): extra.setdefault(G0 + 8 * (s_ - 1) + 1 + qb, []).append((2, oread(s_, qb), 1))
class LateWait:
    def __init__(self, f): self.f = f
    def __call__(self): return Wait(vm=self.f())
vxa = V(48); vpoll = V(49); vfw = V(50)
vx, vy, vz = V(59), V(57), V(58)
save = em.out; em.out = []
xaddr(vxa, vx)
e(valu("v_and_b32", V(51), 7, v_lane)); e(valu("v_lshlrev_b32", V(51), 2, V(51)))
e(valu("v_add_u32", vfw, s_m0b, v_lin)); e(salu("s_lshl_b32", s_t0, s_w, 14)); e(salu("s_add_u32", s_t0, s_t0, RING)); e(valu("v_add_u32", V(55), s_t0, v_lin))
e(salu("s_lshl_b32", s_t3, s_w, 4)); e(salu("s_add_u32", s_t3, s_t3, s_g)); e(salu("s_lshl_b32", s_t3, s_t3, 13))
early = em.out; em.out = save
extra.setdefault(-1, []).append((0, LateWait(lambda: htok[0]), 0))
for kk in range(1, 14):
    g_ = 4 * kk if kk < NF1 else 4 * (kk + 32)
    extra.setdefault(g_ - 1, []).append((2, LateWait(lambda kk=kk: htok[kk]), 0))
HG0 = int(os.environ.get("HG0", "5")); HGS = int(os.environ.get("HGS", "1"))
for k in range(NH0, 56):
    prev = (k >> 2) - (12 if QH else 8)
    gfree = (4 * prev if prev < NF1 else 4 * (prev + 32)) + 5 + (k & 3)
    extra.setdefault(max(gfree, HG0 + HGS * (k - NH0)), []).append((2, Seq([salu("s_add_u32", s_hl, s_hb, (k >> 2) * 4096), hld[k >> 2][k & 3]]), 1))
def sreg(ip, qb, odd=0): return v_acc[(((2 * ip + odd) * 4 + qb) * 4, 4)]
SPV_ = int(os.environ.get('SPV', '1'))
sp = []; spst = []; stq = []
s_oob = S(19)
if os.environ.get("NOST") or os.environ.get("NOLD"): e(salu("s_mov_b32", s_oob, 524288, scc_w=False))
NSI = int(os.environ.get("NSI", "11"))
s_so = [s_t1, s_cnt, s_h0, s_h1]
for k in range(4): sp.append(salu("s_add_u32", s_so[k], s_t3, (k >> 1) * 65536 + (k & 1) * 4096))
for ip in range(4):
    for qb in range(4):
        t = sreg(ip, qb)
        for b in range(2):
            o = sreg(ip, qb, b)
            for k in range(2): sp.append(valu("v_cvt_pk_bf16_f32", t[2 * b + k], o[2 * k], o[2 * k + 1]))
        st = bstore(t, v_lin, S_SP, s_so[(ip >> 1) * 2 + (qb >> 1)], off=(qb & 1) * 2048 + (ip & 1) * 1024, mod="sc1")
        if os.environ.get("NOST") and not (ip == 3 and qb == 3): st = bstore(t, v_lin, S_SP, s_oob, off=0)
        spst.append((st, sp[-1]))
class St:
    def __init__(self, k): self.k = k
    def __call__(self):
        assert spst[self.k][1].tok
        return spst[self.k][0]
STG = int(os.environ.get("STG", "2"))
if XY:
    GY = G0 + 64
    XS0 = int(os.environ.get("XS0", "4")); XSG = int(os.environ.get("XSG", "5")); XFL = int(os.environ.get("XFL", "60"))
    for k in range(8): extra.setdefault(GY + XS0 + XSG * k, []).append((1, St(k), 1))
    class XFlag:
        def __call__(self): em.wait(vm=spst[7][0]); return flag_store(0)
    hx_ = sp.index(spst[7][1]) + 1
    if NF1 == 14:
        NSI = 8; spf = [Fill(sp[:hx_], GY + 2, GY + 14)]; ypost = sp[hx_:]
    else:
        extra.setdefault(GY + XFL, []).append((1, XFlag(), 1))
        NSI = int(os.environ.get("NSI", "16"))
        for k in range(8, NSI): extra.setdefault(G1 + 3 + STG * (k - 8), []).append((2, St(k), 1))
        spf = [Fill(sp[:hx_], GY + 2, GY + 14), Fill(sp[hx_:], G1 + 2, G1 + 10)]
else:
    if NF1 == 14:
        NSI = 0; spf = []; ypost = sp
    else:
        for k in range(NSI): extra.setdefault(G1 + 3 + STG * k, []).append((2, St(k), 1))
        spf = [Fill(sp, G1 + 2, G1 + int(os.environ.get("CVL", "16")))]
if POI:
    assert not XY and SPV_
    hint = [valu("v_mov_b32", V(57), 2), valu("v_lshlrev_b32", V(58), 7, v_lane), raw("s_mov_b64 exec, 3", "salu", wr=["exec"]),
            bstore(V(57), V(58), S_FL, s_myfl, mod="sc1"), raw("s_mov_b64 exec, -1", "salu", wr=["exec"])]
    extra.setdefault(G1 + int(os.environ.get("HINT", "4")), []).append((1, hint, 1))
FLG = int(os.environ.get("FLG", "0"))
if FLG:
    assert NSI == 16
    class YFlag:
        def __call__(self):
            em.wait(vm=spst[-1][0]); stamp()
            e(([] if XY else flag_store(0)) + flag_store(1))
            if MIDPOST == 5: static_loads()
            return []
    extra.setdefault(G1 + FLG, []).append((1, YFlag(), 1))
sti = [NSI]
def st_next(n=1):
    for _ in range(n):
        if sti[0] < 16: e(spst[sti[0]][0]); sti[0] += 1
def flag_store(h):
    return [valu("v_mov_b32", v_t, 1), raw("s_mov_b64 exec, 1", "salu", wr=["exec"]), bstore(v_t, None, S_FL, s_myfl, off=128 * h, mod="sc1"), raw("s_mov_b64 exec, -1", "salu", wr=["exec"])]
vpa = V(51)
s_done, s_new, s_sb = s_kK, s_kV, s_fo
SPV = int(os.environ.get("SPV", "1"))
def spl(gp, i): return sreg(gp >> 1, (gp & 1) * 2 + i, 0) if SPV else A((gp * 2 + i) * 4, 4)
def flag_load(): return bload(vpoll, vpa, S_FL, s_t2, n=1, mod="sc1")
lblc = [0]
def issue_new():
    k = lblc[0]; lblc[0] += 1
    e(valu("v_cmp_eq_u32", "vcc", 1, vpoll)); e(nop(1))
    e(raw("s_andn2_b32 %s, vcc_lo, %s" % (s_new, s_done), "salu", rd=["vcc", s_done], wr=[s_new, "scc"])); e(salu("s_and_b32", s_new, s_new, 255))
    e(raw("s_cbranch_scc0 L_in%d_end" % k, rd=["scc"]))
    e(salu("s_or_b32", s_done, s_done, s_new))
    for gp in range(8):
        e(scmp("s_bitcmp1_b32", s_new, gp)); e(raw("s_cbranch_scc0 L_in%d_%d" % (k, gp), rd=["scc"]))
        e(salu("s_add_u32", s_t0, s_sb, gp * 8192) if not os.environ.get("NOLD") else salu("s_mov_b32", s_t0, s_oob, scc_w=False))
        for i in range(2): e(raw(bload(spl(gp, i), v_lin, S_SPC, s_t0, off=i * 1024, mod="sc1").text))
        em.label("L_in%d_%d" % (k, gp))
    em.label("L_in%d_end" % k)
def static_loads():
    e(valu("v_cmp_eq_u32", "vcc", 1, vpoll)); e(nop(1))
    e(raw("s_and_b32 %s, vcc_lo, 255" % s_done, "salu", rd=["vcc"], wr=[s_done, "scc"]))
    for gp in range(8):
        e(salu("s_add_u32", s_t0, s_sb, gp * 8192)); e(scmp("s_bitcmp1_b32", s_done, gp)); e(salu("s_cselect_b32", s_t0, s_t0 if not os.environ.get("NOLD") else s_oob, 524288, scc_w=False, scc_r=True))
        for i in range(2): e(bload(spl(gp, i), v_lin, S_SPC, s_t0, off=i * 1024, mod="sc1"))
pinit = [salu("s_lshl_b32", s_t2, s_cq, 3), salu("s_add_u32", s_t2, s_t2, s_cg), salu("s_lshl_b32", s_t2, s_t2, 7), salu("s_mov_b32", s_done, 0, scc_w=False),
         salu("s_lshl_b32", s_sb, s_cg, 16), salu("s_lshl_b32", s_new, s_w, 11), salu("s_add_u32", s_sb, s_sb, s_new)]
extra.setdefault(G1 - 8, []).append((1, pinit, 0))
class MidPoll:
    def __init__(self, tok): self.tok = tok
    def __call__(self):
        em.wait(vm=self.tok); issue_new()
        e(salu("s_mov_b32", s_hb, s_done, scc_w=False))
        midmark.append(em.vm_total)
        return []
midmark = []
if int(os.environ.get("MID", "1")):
    pt = flag_load()
    MIDPOST = int(os.environ.get("MIDPOST", "2"))
    if MIDPOST == 4: extra.setdefault(184 - int(os.environ.get("MID4", "6")), []).append((2, pt, 1))
    else: extra.setdefault(G1 - int(os.environ.get("MID0", "-4")), []).append((2, pt, 1))
    if not MIDPOST: extra.setdefault(G1 + int(os.environ.get("MID1", "3")), []).append((0, MidPoll(pt), 0))
    elif MIDPOST != 4 and int(os.environ.get("MID0", "-4")) > 0 and NF1 < 14: extra.setdefault(G1 + 2, []).append((0, Wait(vm=pt), 0))
    if MIDPOST == 3:
        extra[G1 + 2].pop(); extra[G1 - int(os.environ.get("MID0", "-4"))].pop()
if STAMP and NF1 < 14: extra.setdefault(G1, []).append((0, Stamp(), 0))
if STAMP == 5:
    for g_ in (0, 8, 16, 24): extra.setdefault(g_, []).append((0, Stamp(), 0))
class Diag:
    def __call__(self): diag(); return []
if DIAG and NF1 < 14: extra.setdefault(G1, []).append((0, Diag(), 0))
vs = [Fill(norm, 0, GB - (3 if NB else 1)), Fill(early, G0 + 2, G0 + 40)] + spf
run_stream(46, s2_dma, dtok2, s2_acc, s2_B, extra, vs, posf=pos2, ring=v_ring2, first_dma=6 + NB, tr2=v_tr2, early_dma=int(os.environ.get('ED2', '0')), w2=lambda g: int(os.environ.get('W2B', '1')) and g < 28)
stamp(); diag()
if NF1 == 14:
    fw = [dswrite("ds_write_b128", vfw, Facc(u, qb), qb * 16384 + u * 1024) for qb in range(4) for u in range(4)]
    for k in range(4): e(fw.pop(0))
    e(nop(3))
    for it in ypost:
        e(it)
        if any(it is c for _, c in spst):
            st_next()
            if fw: e(fw.pop(0))
            if XY and sti[0] == int(os.environ.get("XFP", "12")): em.wait(vm=spst[7][0]); e(flag_store(0))
    for it in fw: e(it)
    stamp()
if MIDPOST == 4:
    em.wait(vm=pt); static_loads()
if MIDPOST == 3:
    st_next(16); fl3 = e(flag_load())
e(nop(5))
for qb in range(4 if NF1 < 14 else 0):
    for u in range(4):
        if len(em.lgq) >= 12: em.wait(lg=em.lgq[-12])
        e(dswrite("ds_write_b128", vfw, Facc(u, qb), qb * 16384 + u * 1024))
    if qb & 1: st_next(int(os.environ.get("STW", "1")))
if MIDPOST == 6:
    st_next(16); em.wait(vm=spst[-1][0]); stamp(); e(flag_store(0) + flag_store(1)); static_loads()
v_fr = V(96, 16); vE = V(64, 16); vs_ = V(80, 16)
for k in range(8): e(valu("v_mov_b64", vs_[(2 * k, 2)], 0))
if MIDPOST == 3:
    em.wait(vm=fl3); stamp()
    if not XY: e(flag_store(0))
    e(flag_store(1))
    static_loads()
em.wait(lg0=True)
e(raw("s_barrier"))
def frr(ws_, u): return sreg(ws_, u, 1)
for ws_ in range(4):
    for u in range(4):
        if len(em.lgq) >= 14: em.wait(lg=em.lgq[-14])
        e(dsread("ds_read_b128", frr(ws_, u), V(55), ws_ * 4096 + u * 1024))
st_next()
if MIDPOST:
    st_next(16)
    if MIDPOST == 1: static_loads()
em.wait(lg0=True)
for u in range(4):
    for k in range(2):
        e(valu("v_pk_add_f32", frr(0, u)[(2 * k, 2)], frr(0, u)[(2 * k, 2)], frr(1, u)[(2 * k, 2)]))
        e(valu("v_pk_add_f32", frr(2, u)[(2 * k, 2)], frr(2, u)[(2 * k, 2)], frr(3, u)[(2 * k, 2)]))
for u in range(4):
    for k in range(2): e(valu("v_pk_add_f32", v_fr[(4 * u + 2 * k, 2)], frr(0, u)[(2 * k, 2)], frr(2, u)[(2 * k, 2)]))
for k in range(16): e(valu("v_mul_f32", vE[k], hx(f2u(-math.log2(math.e))), v_fr[k]))
st_next()
for k in range(16): e(valu("v_exp_f32", vE[k], vE[k]))
for k in range(16): e(valu("v_add_f32", vE[k], "1.0", vE[k]))
st_next()
for k in range(16): e(valu("v_rcp_f32", vE[k], vE[k]))
for k in range(16): e(valu("v_mul_f32", v_fr[k], v_fr[k], vE[k]))
for k in range(8):
    e(valu("v_lshlrev_b32", vE[2 * k], 16, vxf[k])); e(valu("v_and_b32", vE[2 * k + 1], "0xffff0000", vxf[k]))
st_next()
stamp()
accn = [0]
def acc_pieces(mask, sprinkle=False):
    n = accn[0]; accn[0] += 1
    for gp in range(8):
        e(scmp("s_bitcmp1_b32", mask, gp)); e(raw("s_cbranch_scc0 L_acc%d_%d" % (n, gp), rd=["scc"]))
        if not SPV:
            for k2 in range(8): e(valu("v_accvgpr_read_b32", V(120 + k2), spl(gp, k2 >> 2)[k2 & 3]))
        assert SPV
        for k in range(8):
            src = spl(gp, k >> 2)[k & 3]
            e(valu("v_lshlrev_b32", V(112 + 2 * k), 16, src)); e(valu("v_and_b32", V(113 + 2 * k), "0xffff0000", src))
        for k in range(8): e(valu("v_pk_add_f32", vs_[(2 * k, 2)], vs_[(2 * k, 2)], V(112 + 2 * k, 2)))
        em.label("L_acc%d_%d" % (n, gp))
        if sprinkle and gp & 1: st_next()
if midmark:
    n_y = em.vm_total - midmark[0]
    e(raw("s_waitcnt vmcnt(%d)" % n_y, "wait")); em._retire(em.vmq, n_y)
    acc_pieces(s_hb, sprinkle=True)
st_next(16)
if POI:
    s_want = s_new
    e(salu("s_mov_b32", s_cnt, 0, scc_w=False)); e(salu("s_mov_b32", s_t1, hx(POISON), scc_w=False))
    if MIDPOST == 2: em.wait(vm=pt)
    stamp()
    em.label("L_fin_loop")
    e(valu("v_cmp_eq_u32", "vcc", 2, vpoll)); e(nop(1))
    e(raw("s_andn2_b32 %s, vcc_lo, %s" % (s_want, s_done), "salu", rd=["vcc", s_done], wr=[s_want, "scc"])); e(salu("s_and_b32", s_want, s_want, 255))
    for gp in range(8):
        e(scmp("s_bitcmp1_b32", s_want, gp)); e(raw("s_cbranch_scc0 L_pl_%d" % gp, rd=["scc"]))
        e(salu("s_add_u32", s_t0, s_sb, gp * 8192))
        for i in range(2): e(raw(bload(spl(gp, i), v_lin, S_SPC, s_t0, off=i * 1024, mod="sc1").text))
        em.label("L_pl_%d" % gp)
    e(raw(flag_load().text))
    e(raw("s_waitcnt vmcnt(0)", "wait")); em._retire(em.vmq, 0)
    for gp in range(8):
        e(scmp("s_bitcmp1_b32", s_want, gp)); e(raw("s_cbranch_scc0 L_pa_%d" % gp, rd=["scc"]))
        for k in range(8): e(valu("v_cmpx_ne_u32", "vcc", s_t1, spl(gp, k >> 2)[k & 3], extra_wr=["exec"]))
        e(nop(1))
        e(raw("s_cmp_eq_u64 exec, -1", "salu", rd=["exec"], wr=["scc"])); e(raw("s_mov_b64 exec, -1", "salu", wr=["exec"]))
        e(raw("s_cbranch_scc0 L_pa_%d" % gp, rd=["scc"]))
        e(salu("s_bitset1_b32", s_done, gp, scc_w=False))
        for k in range(8):
            src = spl(gp, k >> 2)[k & 3]
            e(valu("v_lshlrev_b32", V(112 + 2 * (k & 3)), 16, src)); e(valu("v_and_b32", V(113 + 2 * (k & 3)), "0xffff0000", src))
            e(valu("v_pk_add_f32", vs_[(2 * k, 2)], vs_[(2 * k, 2)], V(112 + 2 * (k & 3), 2)))
        em.label("L_pa_%d" % gp)
    e(salu("s_add_u32", s_cnt, s_cnt, 1)); e(scmp("s_cmp_ge_u32", s_cnt, 50000)); e(raw("s_cbranch_scc1 L_fin_done", rd=["scc"]))
    e(scmp("s_cmp_lg_u32", s_done, 255)); e(raw("s_cbranch_scc1 L_fin_loop", rd=["scc"]))
else:
    if MIDPOST != 2: e(flag_load())
    if MIDPOST not in (3, 6) and not FLG:
        em.wait(vm=spst[-1][0]); stamp()
        if not XY: e(flag_store(0))
        e(flag_store(1))
    if MIDPOST == 2:
        static_loads()
        if int(os.environ.get("FSL", "0")): e(raw("s_sleep %d" % int(os.environ.get("FSL"))))
        e(flag_load())
    s_prev = s_hl
    e(salu("s_mov_b32", s_prev, s_done if MIDPOST else 0, scc_w=False)); e(salu("s_mov_b32", s_cnt, 0, scc_w=False))
    em.label("L_fin_loop")
    em.wait(vm0=True)
    issue_new()
    e(raw(flag_load().text))
    acc_pieces(s_prev)
    e(salu("s_mov_b32", s_prev, s_new, scc_w=False))
    e(salu("s_add_u32", s_cnt, s_cnt, 1)); e(scmp("s_cmp_ge_u32", s_cnt, 50000)); e(raw("s_cbranch_scc1 L_fin_done", rd=["scc"]))
    e(scmp("s_cmp_lg_u32", s_prev, 0)); e(raw("s_cbranch_scc1 L_fin_loop", rd=["scc"]))
    if int(os.environ.get("PSL", "0")): e(raw("s_sleep %d" % int(os.environ.get("PSL"))))
    e(scmp("s_cmp_lg_u32", s_done, 255)); e(raw("s_cbranch_scc1 L_fin_loop", rd=["scc"]))
em.label("L_fin_done")
if DUMP == "fin": dump_regs([vs_[i] for i in range(16)] + [v_fr[i] for i in range(16)])
for k in range(8): e(valu("v_pk_fma_f32", vE[(2 * k, 2)], vs_[(2 * k, 2)], v_fr[(2 * k, 2)], vE[(2 * k, 2)]))
for k in range(8): e(valu("v_cvt_pk_bf16_f32", vxf[k], vE[2 * k], vE[2 * k + 1]))
for u in range(4): e(bstore(vxf[(2 * u, 2)], vxa, S_OUT, 0, off=32 * u, mod=os.environ.get("OUTM", "")))
stamp(); diag_out()
em.label("L_end")
e(raw("s_endpgm"))
main_end = len(em.out)

em.lgq, em.vmq, em.pend = [], [], {}
em.label("L_sigH_side")
e(salu("s_lshl_b32", s_t1, s_qb, 3)); e(salu("s_add_u32", s_t1, s_t1, s_g))
e(raw("s_mov_b64 exec, 2", "salu", wr=["exec"]))
e(raw("buffer_store_byte %s, off, %s, %s sc1" % (v_fa, S_DBG, s_t1)))
e(raw("s_mov_b64 exec, -1", "salu", wr=["exec"]))
e(raw("s_branch L_sigH_ret"))
em.label("L_fallback")
e(raw("s_waitcnt vmcnt(0) lgkmcnt(0)")); em._retire(em.vmq, 0); em._retire(em.lgq, 0)
e(salu("s_mov_b32", s_retry, 1, scc_w=False))
e(salu("s_lshl_b32", s_t0, s_w, 6)); e(valu("v_add_u32", v_tid, s_t0, v_lane))
e(raw("s_barrier"))
e(raw("s_branch L_restart"))
em.label("L_maxpass")
e(raw("s_waitcnt vmcnt(0) lgkmcnt(0)"))
e(salu("s_mov_b32", s_retry, 2, scc_w=False))
e(salu("s_mov_b32", S_H[2], 0, scc_w=False))
e(salu("s_mov_b32", s_kK, 0, scc_w=False))
fm = [V(40 + i) for i in range(4)]
for i in range(4): e(valu("v_mov_b32", fm[i], "0xff800000"))
em.label("L_fb_loop")
e(raw("s_barrier"))
e(salu("s_add_u32", "m0", s_m0b, 4 * 16384)); e(nop(0))
for j in range(4): e(dma(v_kd[j], S_K, s_kK, j * 1024))
em.wait(vm0=True)
e(raw("s_barrier"))
for kb in range(4):
    rr = [e(dsread("ds_read_b128", fr(ds), v_ka[ds], kb * 4096)) for ds in range(4)]
    em.wait(lg0=True)
    for ds in range(4):
        for qb in range(4):
            d = v_S[0][(qb * 4, 4)]
            e(mfma(d, fr(ds), Qf(qb, ds), 0 if ds == 0 else d))
    e(nop(7))
    for qb in range(4):
        e(valu("v_max3_f32", fm[qb], fm[qb], v_S[0][qb * 4], v_S[0][qb * 4 + 1])); e(valu("v_max3_f32", fm[qb], fm[qb], v_S[0][qb * 4 + 2], v_S[0][qb * 4 + 3]))
    e(nop(2))
e(salu("s_add_u32", s_kK, s_kK, 16384)); e(scmp("s_cmp_lt_u32", s_kK, 524288)); e(raw("s_cbranch_scc1 L_fb_loop", rd=["scc"]))
red4("v_max_f32", fm, [V(44 + i) for i in range(4)])
for qb in range(4):
    for k in range(4): e(valu("v_sub_f32", v_negm[qb * 4 + k], 0, fm[qb]))
e(raw("s_barrier"))
for m in (64, 65, 66):
    sa, dm = s1_dma(m); e(sa)
    for d in dm: e(d)
e(raw("s_waitcnt vmcnt(0)"))
e(raw("s_branch L_att_start"))
em.label("L_code_end")
e(raw("s_endpgm"))

ALIGN8 = int(os.environ.get("ALIGN8", "0"))
import re as _re
def isize(i):
    t = i.text
    if i.kind == "label": return 0
    op = t.split()[0]
    if i.kind in ("mfma", "lds", "vmem", "dma") or op.startswith(("buffer_", "global_", "ds_", "s_load", "s_memtime", "s_memrealtime")): return 8
    lit = False
    for tok in _re.split(r"[ ,]+", t)[1:]:
        if _re.fullmatch(r"-?\d+", tok): lit |= not (-16 <= int(tok) <= 64)
        elif tok.startswith("0x"): lit |= not (int(tok, 16) <= 64)
        elif tok.startswith("L_") and not op.startswith(("s_cbranch", "s_branch")): lit = True
    if op.startswith("s_"):
        if op in ("s_waitcnt", "s_nop", "s_barrier", "s_sleep", "s_endpgm") or op.startswith(("s_cbranch", "s_branch")): return 4
        return 8 if lit else 4
    e32 = ("v_exp_f32", "v_rcp_f32", "v_sqrt_f32", "v_mov_b32", "v_mov_b64", "v_add_f32", "v_sub_f32", "v_mul_f32", "v_max_f32", "v_and_b32", "v_xor_b32", "v_lshlrev_b32", "v_lshrrev_b32",
           "v_add_u32", "v_sub_u32", "v_subrev_u32", "v_mul_u32_u24", "v_min_u32", "v_readfirstlane_b32", "v_permlane16_swap_b32", "v_permlane32_swap_b32")
    if op in e32 and "-v" not in t: return 8 if lit else 4
    if op.startswith("v_cmp") and t.split()[1].startswith("vcc"): return 8 if lit else 4
    return 8
WIDE = ("v_exp_f32", "v_rcp_f32", "v_add_f32", "v_mul_f32", "v_mov_b32", "v_sub_f32", "v_and_b32", "v_lshlrev_b32")
if ALIGN8:
    pos = 0; cand = None; nfix = 0; nmiss = 0
    for i in em.out:
        if i.kind == "label":
            if i.text.startswith(".p2align"): pos = 0; cand = None
            continue
        if i.kind == "mfma" and pos % 8:
            if cand is not None: cand.text = cand.text.replace(cand.text.split()[0], cand.text.split()[0] + "_e64", 1); pos += 4; nfix += 1
            else: nmiss += 1
        if i.kind == "mfma": cand = None
        sz = isize(i)
        if sz == 4 and i.text.split()[0] in WIDE: cand = i
        pos += sz
    print("; align8: widened %d, unfixed %d" % (nfix, nmiss), file=sys.stderr)
probs = check_hazards(em.out, "main") + loop_probs
for p in probs: print("; HAZARD", p, file=sys.stderr)
assert not probs

hdr = open(os.path.join(os.path.dirname(os.path.abspath(__file__)), "header.txt")).read()
print(hdr.rstrip())
print("; @launch grid=(256,1,1) block=(256,1,1) lds=163840")
print('.amdgcn_target "amdgcn-amd-amdhsa--gfx950"\n.text\n.globl %s\n.p2align 8\n.type %s,@function\n%s:' % (KN, KN, KN))
print(em.text())
print('.section .rodata,"a"\n.p2align 6\n.amdhsa_kernel %s' % KN)
print("  .amdhsa_next_free_vgpr 512\n  .amdhsa_next_free_sgpr 102\n  .amdhsa_accum_offset 256\n  .amdhsa_group_segment_fixed_size 0\n  .amdhsa_kernarg_size 96\n  .amdhsa_user_sgpr_count 2\n  .amdhsa_user_sgpr_kernarg_segment_ptr 1\n  .amdhsa_system_sgpr_workgroup_id_x 1\n.end_amdhsa_kernel")
```

```python
import sys, os, math, struct
from asmgen import *

KN = "recurrent_scan__gqa_block_cached__geglu_ffn__prompt_kernel"
DUMP = os.environ.get("DUMP", "")
STAMP = int(os.environ.get("STAMP", "0"))
GEL_END = int(os.environ.get("GEL_END", "247")); GEL_EXTRA = int(os.environ.get("GEL_EXTRA", "360"))

def f2u(x): return struct.unpack("<I", struct.pack("<f", x))[0]
def hx(x): return "0x%x" % (x & 0xffffffff)

S_X, S_K, S_V, S_WQ, S_WO, S_WG, S_WU, S_WD, S_OUT, S_DBG, S_H, S_SP = [S(4 + 4 * i, 4) for i in range(12)]
s_g, s_qb, s_w = S(52), S(53), S(54)
s_t0, s_t1, s_t2, s_t3 = S(55), S(56), S(57), S(58)
s_m0b = S(59)
s_off = S(60)
s_cnt = S(61)
s_kK, s_kV = S(62), S(63)
s_retry = S(64)
s_h0, s_h1 = S(65), S(66)
s_hl = S(67); s_hb = S(78); s_myfl = S(79); s_wdd = S(67); s_sig = S(78)
s_ka = S(68, 16); s_kb = S(84, 8)
s_pair = S(92, 2); s_pair2 = S(94, 2)
S_DMP = S(96, 4)
s_cq, s_cg = S(76), S(77)
S_HC = S(80, 4)
S_SPC = S(84, 4)
S_XC = S(88, 4)
s_st = S(68, 4)

v_tid, v_lane, v_lin, v_t = V(0), V(1), V(2), V(3)
v_tr = [V(4, 4), V(8, 4)]
v_dA, v_dB = V(12, 4), V(16, 4)
v_ka = V(20, 4); v_va = V(24, 8); v_kd = V(32, 4); v_vd = V(36, 2)
v_wl = V(38)
v_c = V(39)
v_l0, v_l1 = V(40, 4), V(44, 4)
v_lsave = V(16, 4)
v_negm = V(48, 16)
v_S = [V(64, 32), V(96, 32)]
v_acc = V(128, 128)
a_ring = A(128, 32)
a_B = A(160, 32)
a_Q = A(0, 64)
ORD = int(os.environ.get("ORD", "1"))
v_wo, v_wd = (v_dB, v_dA) if ORD else (v_dA, v_dB)
a_F = A(0, 64)
a_x = A(248, 8)
LSUM = int(os.environ.get('LSUM', '1'))
a_L = A(224, 16); a_ones = A(240, 4)
POI = int(os.environ.get('POI', '0'))
POISON = 0x7f817f81
a_poi = A(244, 4)

RING = 65536
MARK = 0x7fc17fc1
WS_SP = 8 << 20
WS_DUMP = 32 << 20
WS_FL = (7 << 20) + (512 << 10)
S_FLZ = S(4, 4)
S_FL = S(4, 4)

em = Em()
e = em.e

def srd(dst, lo, hi, size, off_s=None):
    if off_s is None:
        e(salu("s_mov_b32", dst[0], lo, scc_w=False)); e(salu("s_mov_b32", dst[1], hi, scc_w=False))
    else:
        e(salu("s_add_u32", dst[0], lo, off_s)); e(salu("s_addc_u32", dst[1], hi, 0, scc_r=True))
    e(salu("s_mov_b32", dst[2], hx(size), scc_w=False)); e(salu("s_mov_b32", dst[3], "0x20000", scc_w=False))

DIAG = int(os.environ.get("DIAG", "0"))
HC_OFF = 128
diag_regs = [S(100, 2), S(70, 2), S(72, 2), S(74, 2), S(96, 2), S(98, 2), S(68, 2)] if DIAG == 1 else [S(100, 2), S(96, 2), S(70, 2), S(72, 2), S(74, 2), S(98, 2), S(92, 2)] if DIAG == 3 else [S(100, 2), S(96, 2), S(98, 2), S(94, 2), S(70, 2), S(72, 2), S(74, 2), S(68, 2)]
diag_n = [0]
def diag(which=1, last=False):
    if not DIAG or (which != DIAG and which != 0): return
    k = diag_n[0]; diag_n[0] += 1
    e(raw("%s %s" % ("s_memtime" if (os.environ.get("CYC") and not last) else "s_memrealtime", diag_regs[k]), "other", wr=[diag_regs[k]]))
    if k > 0: e(raw("s_waitcnt lgkmcnt(0)", "wait")); em._retire(em.lgq, 0)
AMP = os.environ.get("AMP")
def diag_out():
    if not DIAG: return
    diag(0, last=True)
    if AMP:
        k = int(AMP); last = diag_regs[diag_n[0] - 1]
        e(salu("s_sub_u32", s_t0, diag_regs[k][0], diag_regs[int(os.environ.get("AMP0", "0"))][0]))
        if os.environ.get("CYC"): e(salu("s_lshr_b32", s_t0, s_t0, 2))
        else: e(salu("s_lshl_b32", s_t0, s_t0, 2))
        em.label("L_amp")
        e(raw("s_memrealtime s[56:57]")); e(raw("s_waitcnt lgkmcnt(0)"))
        e(salu("s_sub_u32", s_t1, s_t1, last[0])); e(scmp("s_cmp_lt_u32", s_t1, s_t0)); e(raw("s_cbranch_scc1 L_amp", rd=["scc"]))
        return
    e(scmp("s_cmp_lg_u32", s_w, 0)); e(raw("s_cbranch_scc1 L_end", rd=["scc"]))
    e(raw("s_mov_b64 exec, 1", "salu", wr=["exec"]))
    e(salu("s_not_b32", s_t0, diag_regs[0][0]))
    for k in range(diag_n[0]):
        e(valu("v_mov_b32", V(4 + k), s_t0 if k == 0 else diag_regs[k][0]))
        e(raw("buffer_atomic_umax %s, off, %s, 0 offset:%d sc1" % (V(4 + k), S_DBG, 4 * k)))
    e(valu("v_mov_b32", V(12), diag_regs[0][0]))
    e(raw("buffer_atomic_umax %s, off, %s, 0 offset:%d sc1" % (V(12), S_DBG, 4 * 9)))
stamp_n = [0]
def stamp():
    if not STAMP: return
    k = stamp_n[0]; stamp_n[0] += 1
    e(raw("s_memtime %s" % S(68, 2), "other", wr=[S(68, 2)]))
    e(raw("s_memrealtime %s" % S(70, 2), "other", wr=[S(70, 2)]))
    e(raw("s_waitcnt lgkmcnt(0)", "wait")); em._retire(em.lgq, 0)
    for i in range(4): e(valu("v_writelane_b32", v_c, S(68 + i), i, rmw=True))
    e(salu("s_lshl_b32", S(72), S(2), 2)); e(salu("s_add_u32", S(72), S(72), s_w)); e(salu("s_lshl_b32", S(72), S(72), 9))
    e(salu("s_mov_b64", S(74, 2), "exec", scc_w=False)); e(raw("s_mov_b64 exec, 15", "salu", wr=["exec"]))
    e(valu("v_lshlrev_b32", v_t, 2, v_lane))
    e(bstore(v_c, v_t, S_DMP, S(72), off=k * 16))
    e(raw("s_mov_b64 exec, %s" % S(74, 2), "salu", wr=["exec"]))
    e(valu("v_lshlrev_b32", v_t, 7, v_lane))

def dump_regs(regs, finish=True):
    em.wait(lg0=True, vm0=True)
    e(nop(7)); e(nop(7))
    n = len(regs)
    e(salu("s_lshl_b32", s_t0, S(2), 2)); e(salu("s_add_u32", s_t0, s_t0, s_w)); e(salu("s_mul_i32", s_t0, s_t0, n * 256, scc_w=False))
    e(valu("v_lshlrev_b32", v_t, 2, v_lane))
    for k, r in enumerate(regs):
        e(bstore(r, v_t, S_DMP, s_t0, off=0))
        e(salu("s_add_u32", s_t0, s_t0, 256))
        if k % 32 == 31: em.wait(vm0=True)
    em.wait(vm0=True)
    if finish: e(raw("s_endpgm"))

def red4(op, x, tmp):
    for sw in ("v_permlane32_swap_b32", "v_permlane16_swap_b32"):
        for a, t in zip(x, tmp): e(valu("v_mov_b32", t, a))
        if len(x) < 3: e(nop(1))
        for a, t in zip(x, tmp): e(valu(sw, a, t))
        for a, t in zip(x, tmp): e(valu(op, a, a, t))

e(scmp("s_cmp_ge_u32", S(2), 256)); e(raw("s_cbranch_scc1 L_end", rd=["scc"]))
diag(0)
e(salu("s_mov_b32", s_retry, 0, scc_w=False))
em.label("L_restart")
i0 = e(I("s_load_dwordx16 %s, s[0:1], 0" % s_ka, "smem", wr=s_ka.regs()))
i1 = e(I("s_load_dwordx8 %s, s[0:1], 64" % s_kb, "smem", wr=s_kb.regs()))
vq, vG, vr, vc_, vx, vy, vz = [V(40 + i) for i in range(7)]
e(raw("s_getpc_b64 %s" % s_pair2, "salu", wr=[s_pair2]))
em.label("L_pc0")
CT0 = int(os.environ.get("CT0", "64"))
if CT0:
    e(valu("v_sub_u32", V(55), 255, v_tid)); e(valu("v_cmp_gt_u32", "vcc", CT0, V(55))); e(valu("v_lshlrev_b32", V(55), 7, V(55))); e(nop(0))
    e(raw("s_and_saveexec_b64 s[4:5], vcc", "salu", wr=["exec"], rd=["vcc"])); e(raw("s_cbranch_execz L_ct0"))
    e(raw("global_load_dword v55, v55, %s" % s_pair2))
    em.label("L_ct0")
    e(raw("s_mov_b64 exec, -1", "salu", wr=["exec"]))
MAP2 = int(os.environ.get("MAP2", "0"))
s_i = S(65)
if MAP2:
    e(salu("s_and_b32", s_g, S(2), 3)); e(salu("s_lshl_b32", s_g, s_g, 1)); e(salu("s_bfe_u32", s_t0, S(2), "0x10003")); e(salu("s_add_u32", s_g, s_g, s_t0))
    e(salu("s_bfe_u32", s_qb, S(2), "0x10002")); e(salu("s_lshl_b32", s_qb, s_qb, 4)); e(salu("s_lshr_b32", s_t0, S(2), 4)); e(salu("s_add_u32", s_qb, s_qb, s_t0))
else:
    e(salu("s_and_b32", s_g, S(2), 7)); e(salu("s_lshr_b32", s_qb, S(2), 3))
def sx(dst): return salu("s_lshr_b32", dst, S(2), 4 if MAP2 else 3)
TL = "-1" if MAP2 else "0xffffffff"
e(valu("v_and_b32", v_lane, 63, v_tid))
e(valu("v_lshrrev_b32", v_t, 6, v_tid))
e(valu("v_lshlrev_b32", v_lin, 4, v_lane))
e(valu("v_readfirstlane_b32", s_w, v_t))
e(valu("v_and_b32", vq, 15, v_lane)); e(valu("v_lshrrev_b32", vG, 4, v_lane))
vxo = V(47)
XD = int(os.environ.get("XD", "1"))
if XD == 2:
    vxq = V(60, 4); vxr = vxq
    for rg in range(4):
        e(valu("v_add_u32", vy, 4 * rg, vG)); e(valu("v_xor_b32", vz, vy, vq)); e(valu("v_lshl_add_u32", vy, v_t, 4, vy)); e(valu("v_lshlrev_b32", vy, 10, vy))
        e(valu("v_lshl_add_u32", vxq[rg], vz, 4, vy))
elif XD:
    vxo2 = V(50); vxr = [V(47), V(50)]
    e(valu("v_lshrrev_b32", vx, 3, v_lane)); e(valu("v_lshl_add_u32", vx, v_t, 4, vx)); e(valu("v_lshlrev_b32", vx, 10, vx))
    e(valu("v_and_b32", vy, 7, v_lane)); e(valu("v_xor_b32", vy, vy, vG)); e(valu("v_lshl_add_u32", vxo, vy, 4, vx))
    e(valu("v_xor_b32", vxo2, 64, vxo)); e(valu("v_add_u32", vxo2, 8192, vxo2))
else:
    e(valu("v_lshl_add_u32", vxo, v_t, 4, vq)); e(valu("v_lshlrev_b32", vxo, 10, vxo)); e(valu("v_lshl_add_u32", vxo, vG, 4, vxo))
vwg, vwq, vcw = V(52), V(53), V(54)
GM0 = int(os.environ.get("GM", "1"))
if GM0: e(salu("s_lshl_b32", s_t1, s_g, 7))
else: e(salu("s_mul_i32", s_t1, s_g, 448, scc_w=False)); e(salu("s_and_b32", s_t1, s_t1, hx(~127)))
e(salu("s_and_b32", s_t2, s_w, 1)); e(sx(s_t3)); e(salu("s_lshl_b32", s_t3, s_t3, 1)); e(salu("s_add_u32", s_t2, s_t2, s_t3))
e(salu("s_mul_i32", s_t2, s_t2, (16 if MAP2 else 8) * 3584, scc_w=False)); e(salu("s_add_u32", s_t1, s_t1, s_t2))
e(valu("v_lshrrev_b32", vx, 2, v_lane)); e(valu("v_mul_u32_u24", vx, 3584, vx)); e(valu("v_and_b32", vz, 3, v_lane)); e(valu("v_lshl_add_u32", vx, vz, 10 if GM0 else 7, vx))
e(valu("v_add_u32", vwg, s_t1, vx))
if GM0:
    e(salu("s_add_u32", s_t3, s_g, 1)); e(salu("s_lshr_b32", s_t3, s_t3, 1)); e(salu("s_lshl_b32", s_t3, s_t3, 7))
    e(valu("v_cmp_eq_u32", "vcc", 3, vz)); e(valu("v_subrev_u32", vx, s_t3, vwg)); e(nop(0)); e(valu("v_cndmask_b32", vwg, vwg, vx, "vcc"))
e(salu("s_lshr_b32", s_t2, S(2), 3)); e(salu("s_lshl_b32", s_t2, s_t2, 2)); e(salu("s_add_u32", s_t2, s_t2, s_w)); e(salu("s_mul_i32", s_t3, s_t2, 384, scc_w=False))
e(valu("v_lshlrev_b32", vcw, 7, v_lane)); e(valu("v_add_u32", vcw, s_t3, vcw))
e(salu("s_lshl_b32", s_t0, s_qb, 16))
em.wait(lg0=True)
diag(2)
srd(S_X, s_ka[0], s_ka[1], 65536, s_t0)
v_xp = V(64, 64)
XFIRST = int(os.environ.get("XFIRST", "12"))
if XD:
    s_xb = S(60)
    e(salu("s_lshl_b32", s_xb, s_w, 14))
    xo = [256 * (t >> 2) if XD == 2 else 128 * (t >> 1) for t in range(16)]
    xl = [dma(vxq[t & 3] if XD == 2 else (vxo2 if t & 1 else vxo), S_X, 0, off=xo[t]) for t in range(16)]
    def xissue(t): e(salu("s_add_u32", "m0", s_xb, t * 1024 - xo[t])); e(nop(0)); e(xl[t])
else:
    xl = [bload(v_xp[(4 * ks, 4)], vxo, S_X, 0, off=64 * ks) for ks in range(16)]
    def xissue(t): e(xl[t])
for ks in range(XFIRST): xissue(ks)
e(scmp("s_cmp_lt_u32", s_w, 2)); e(salu("s_cselect_b64", s_pair, s_ka[(12, 2)], s_ka[(14, 2)], scc_w=False, scc_r=True))
WT = int(os.environ.get("WT", "0"))
s_wgp = S(100, 2) if not DIAG else S(98, 2)
def wq_addr():
    e(sx(s_t2)); e(salu("s_lshl_b32", s_t2, s_t2, 2)); e(salu("s_add_u32", s_t2, s_t2, s_w))
    e(salu("s_lshl_b32", s_t2, s_t2, 16 if MAP2 else 15)); e(salu("s_lshl_b32", s_t3, s_g, 10)); e(salu("s_add_u32", s_t2, s_t2, s_t3))
    e(valu("v_lshrrev_b32", vx, 3, v_lane)); e(valu("v_lshlrev_b32", vx, 13, vx)); e(valu("v_and_b32", vz, 7, v_lane)); e(valu("v_lshl_add_u32", vx, vz, 7, vx))
    e(valu("v_add_u32", vwq, s_t2, vx))
if ORD:
    e(salu("s_mov_b64", s_wgp, s_pair, scc_w=False))
    wq_addr()
    e(raw("s_mov_b64 exec, " + TL, "salu", wr=["exec"]))
    e(I("global_load_dword %s, %s, %s" % (V(48), vwq, s_ka[(6, 2)]), "vmem", rd=vwq.regs() + s_ka[(6, 2)].regs(), wr=V(48).regs()))
elif WT:
    e(salu("s_lshl_b32", s_t3, S(2), 1)); e(salu("s_and_b32", s_t1, s_w, 1)); e(salu("s_add_u32", s_t3, s_t3, s_t1)); e(salu("s_mul_i32", s_t3, s_t3, 3584, scc_w=False))
    e(valu("v_lshlrev_b32", V(51), 7, v_lane)); e(valu("v_add_u32", V(51), s_t3, V(51)))
    e(raw("s_mov_b64 exec, 0xfffffff", "salu", wr=["exec"]))
    e(I("global_load_dword %s, %s, %s" % (V(48), V(51), s_pair), "vmem", rd=V(51).regs() + s_pair.regs(), wr=V(48).regs()))
    e(salu("s_mov_b64", s_wgp, s_pair, scc_w=False))
else:
    e(raw("s_mov_b64 exec, " + TL, "salu", wr=["exec"]))
    e(I("global_load_dword %s, %s, %s" % (V(48), vwg, s_pair), "vmem", rd=vwg.regs() + s_pair.regs(), wr=V(48).regs()))
e(raw("s_mov_b64 exec, 7", "salu", wr=["exec"]))
e(I("global_load_dword %s, %s, %s" % (V(49), vcw, s_pair2), "vmem", rd=vcw.regs() + s_pair2.regs(), wr=V(49).regs()))
e(raw("s_mov_b64 exec, -1", "salu", wr=["exec"]))
if not ORD: wq_addr()
e(salu("s_lshr_b32", s_t2, S(2), 6)); e(salu("s_and_b32", s_t3, S(2), 7)); e(salu("s_lshl_b32", s_t3, s_t3, 2)); e(salu("s_add_u32", s_t2, s_t2, s_t3))
e(salu("s_lshl_b32", s_t0, s_t2, 16))
srd(S_OUT, s_kb[2], s_kb[3], 65536, s_t0)
e(salu("s_lshl_b32", s_t1, s_g, 19))
srd(S_K, s_ka[2], s_ka[3], 524288, s_t1)
srd(S_V, s_ka[4], s_ka[5], 524288, s_t1)
srd(S_WO, s_ka[8], s_ka[9], 524288, s_t1)
srd(S_WQ, s_ka[6], s_ka[7], 4 << 20)
srd(S_WG, s_ka[12], s_ka[13], 1835008)
srd(S_WU, s_ka[14], s_ka[15], 1835008)
srd(S_WD, s_kb[0], s_kb[1], 1835008)
srd(S_DBG, s_kb[4], s_kb[5], 256)
e(salu("s_mul_i32", s_t1, s_qb, 229376, scc_w=False))
srd(S_H, s_kb[6], s_kb[7], 229376, s_t1)
e(salu("s_lshl_b32", s_t1, s_qb, 19)); e(salu("s_add_u32", s_t1, s_t1, hx(WS_SP)))
srd(S_SP, s_kb[6], s_kb[7], 524288, s_t1)
if DUMP or STAMP:
    e(salu("s_mov_b32", s_t1, hx(WS_DUMP), scc_w=False))
    srd(S_DMP, s_kb[6], s_kb[7], 200 << 20, s_t1)
e(salu("s_mov_b64", s_pair, S(90, 2), scc_w=False))
e(salu("s_lshl_b32", s_t0, s_t2, 16))
srd(S_XC, s_ka[0], s_ka[1], 65536, s_t0)
e(salu("s_mul_i32", s_t1, s_t2, 229376, scc_w=False))
srd(S_HC, s_pair[0], s_pair[1], 229376, s_t1)
e(salu("s_lshl_b32", s_t1, s_t2, 19)); e(salu("s_add_u32", s_t1, s_t1, hx(WS_SP)))
srd(S_SPC, s_pair[0], s_pair[1], 524288, s_t1)
e(salu("s_mov_b32", s_cq, s_t2, scc_w=False)); e(salu("s_bfe_u32", s_cg, S(2), "0x30003"))
e(salu("s_lshl_b32", s_myfl, s_qb, 2)); e(salu("s_add_u32", s_myfl, s_myfl, s_w)); e(salu("s_lshl_b32", s_myfl, s_myfl, 8))
e(salu("s_lshl_b32", s_t1, s_g, 2)); e(salu("s_add_u32", s_myfl, s_myfl, s_t1))
e(salu("s_lshl_b32", s_m0b, s_w, 12)); e(salu("s_add_u32", s_m0b, s_m0b, RING))
GM = int(os.environ.get("GM", "1"))
if GM:
    e(salu("s_lshl_b32", s_t1, s_w, 3)); e(salu("s_add_u32", s_t1, s_t1, s_g))
    e(salu("s_lshr_b32", s_t2, s_g, 1)); e(salu("s_add_u32", s_t2, s_t2, 24))
    e(scmp("s_cmp_eq_u32", s_w, 3)); e(salu("s_cselect_b32", s_t1, s_t2, s_t1, scc_w=False, scc_r=True))
else:
    e(salu("s_and_b32", s_t1, s_g, 1)); e(salu("s_lshl_b32", s_t1, s_t1, 2)); e(salu("s_add_u32", s_t1, s_t1, s_w))
    e(scmp("s_cmp_eq_u32", s_w, 3)); e(salu("s_cselect_b32", s_t1, 3, s_t1, scc_w=False, scc_r=True))
    e(salu("s_lshr_b32", s_t2, s_g, 1)); e(salu("s_mul_i32", s_t2, s_t2, 7, scc_w=False)); e(salu("s_add_u32", s_t1, s_t1, s_t2))
e(salu("s_lshl_b32", s_h0, s_t1, 13)); e(salu("s_add_u32", s_h1, s_h0, 4096))
e(salu("s_lshl_b32", s_t1, s_t1, 7))
e(salu("s_lshl_b32", s_t2, s_g, 2)); e(salu("s_add_u32", s_t2, s_t2, s_w)); e(salu("s_lshl_b32", s_t2, s_t2, 8))

def dma_voffs(dst, stride, colbase_s, perm):
    for j in range(4):
        e(valu("v_bfe_u32", vx, v_lane, 1, 2)); e(valu("v_bfe_u32", vy, v_lane, 4, 1))
        e(valu("v_xor_b32", vx, vx, vy))
        if j & 1: e(valu("v_xor_b32", vx, 2, vx))
        e(valu("v_and_b32", vy, 1, v_lane)); e(valu("v_lshlrev_b32", vy, 4, vy)); e(valu("v_lshl_add_u32", vx, vx, 5, vy))
        if not perm:
            e(valu("v_lshrrev_b32", vy, 3, v_lane)); rowadd = 8 * j
        else:
            e(valu("v_bfe_u32", vy, v_lane, 3, 2)); e(valu("v_bfe_u32", vz, v_lane, 5, 1)); e(valu("v_lshl_add_u32", vy, vz, 4, vy)); rowadd = 4 * j
        e(valu("v_mul_u32_u24", vy, stride, vy))
        e(valu("v_add3_u32", vx, vx, vy, colbase_s))
        e(valu("v_add_u32", dst[j], rowadd * stride - j * 1024, vx))

dma_voffs(v_dA, 3584, s_t1, False)
dma_voffs(v_dB, 8192, s_t2, False)

def m0set(p): return salu("s_add_u32", "m0", s_m0b, p * 16384) if p < 6 else salu("s_sub_u32", "m0", s_m0b, RING - (p - 6) * 16384)
def s1_dma(m):
    p = m % 6
    if ORD and m < 64: m ^= 32
    if m < 32:
        s, h = m >> 1, m & 1
        return [m0set(p), salu("s_mov_b32", s_off, s * 32 * 3584, scc_w=False)], [dma(v_dA[j], S_WU if h else S_WG, s_off, j * 1024) for j in range(4)]
    if m < 64:
        s, h = (m - 32) >> 1, m & 1
        return [m0set(p), salu("s_mov_b32", s_off, s * 32 * 8192 + 128 * h, scc_w=False)], [dma(v_dB[j], S_WQ, s_off, j * 1024) for j in range(4)]
    if m == 64:
        return [m0set(p), salu("s_mov_b32", s_off, 0, scc_w=False)], [dma(v_kd[j], S_K, s_off, j * 1024) for j in range(4)]
    if m == 65:
        return [m0set(p), salu("s_mov_b32", s_off, 8192, scc_w=False)], [dma(v_kd[j], S_K, s_off, j * 1024) for j in range(4)]
    if m == 66:
        return [m0set(p), salu("s_mov_b32", s_off, 0, scc_w=False)], [dma(v_vd[j & 1], S_V, s_off, j * 1024) for j in range(4)]
    return None
dtok = {}
ln_v = []
for m in range(6):
    sa, dm = s1_dma(m)
    ln_v.append(sa); ln_v += dm
    dtok[m] = dm[3]
def xaddr(dst, tmp):
    e(valu("v_and_b32", dst, 15, v_lane)); e(salu("s_lshl_b32", s_t0, s_w, 4)); e(valu("v_add_u32", dst, s_t0, dst)); e(valu("v_lshlrev_b32", dst, 10, dst))
    e(valu("v_lshrrev_b32", tmp, 4, v_lane)); e(valu("v_lshl_add_u32", dst, tmp, 3, dst)); e(salu("s_lshl_b32", s_t0, s_cg, 7)); e(valu("v_add_u32", dst, s_t0, dst))
WQT = int(os.environ.get("WQT", "0"))
wqt = [raw("s_mov_b64 exec, " + TL, "salu", wr=["exec"]), bload(V(46), vwq, S_WQ, 0, n=1), raw("s_mov_b64 exec, -1", "salu", wr=["exec"])]
WQC = int(os.environ.get("WQC", "2"))
wqs = wqt
if ORD:
    e(salu("s_lshl_b32", s_t3, S(2), 1)); e(salu("s_and_b32", s_t1, s_w, 1)); e(salu("s_add_u32", s_t3, s_t3, s_t1)); e(salu("s_mul_i32", s_t3, s_t3, 3584, scc_w=False))
    e(valu("v_lshlrev_b32", V(54), 7, v_lane)); e(valu("v_add_u32", V(54), s_t3, V(54)))
    wqt = [raw("s_mov_b64 exec, 0xfffffff", "salu", wr=["exec"]), I("global_load_dword %s, %s, %s" % (V(49), V(54), s_wgp), "vmem", rd=["v54"] + s_wgp.regs(), wr=["v49"]), raw("s_mov_b64 exec, -1", "salu", wr=["exec"])]
    wqs = [raw("s_mov_b64 exec, " + TL, "salu", wr=["exec"]), I("global_load_dword %s, %s, %s" % (V(46), vwg, s_wgp), "vmem", rd=vwg.regs() + s_wgp.regs(), wr=["v46"]), raw("s_mov_b64 exec, -1", "salu", wr=["exec"])]
elif WQC:
    e(salu("s_lshl_b32", s_t3, S(2), 2)); e(salu("s_add_u32", s_t3, s_t3, s_w)); e(salu("s_lshl_b32", s_t3, s_t3, 12))
    e(valu("v_lshlrev_b32", V(54), 7, v_lane)); e(valu("v_add_u32", V(54), s_t3, V(54)))
    wqt = [raw("s_mov_b64 exec, 0xffffffff", "salu", wr=["exec"]), bload(V(49), V(54), S_WQ, 0, n=1), raw("s_mov_b64 exec, -1", "salu", wr=["exec"])]
if WT == 2:
    wgt = [raw("s_mov_b64 exec, " + TL, "salu", wr=["exec"]), I("global_load_dword %s, %s, %s" % (V(51), vwg, s_wgp), "vmem", rd=vwg.regs() + s_wgp.regs(), wr=V(51).regs()), raw("s_mov_b64 exec, -1", "salu", wr=["exec"])]
    ln_v.insert(int(os.environ.get("WTP", "0")), wgt)
if WQT == 0: ln_v.append(wqt)
LNPRE = int(os.environ.get("LNPRE", "0"))
lv = [0]
def ln_issue(n=1):
    k = 0
    while k < n and lv[0] < len(ln_v):
        it = ln_v[lv[0]]; lv[0] += 1
        e(it)
        if not isinstance(it, list): k += 1
e(valu("v_bfe_u32", vr, v_lane, 2, 2)); e(valu("v_and_b32", vc_, 3, v_lane))
e(valu("v_lshlrev_b32", vx, 10, vG)); e(valu("v_lshl_add_u32", vx, vr, 7, vx)); e(valu("v_lshl_add_u32", vx, vc_, 3, vx)); e(valu("v_add_u32", vx, s_m0b, vx))
e(valu("v_lshrrev_b32", vy, 1, vr)); e(valu("v_and_b32", vz, 1, vG)); e(valu("v_lshl_add_u32", vy, vz, 1, vy))
for u in range(4):
    e(valu("v_xor_b32", vz, u, vy)); e(valu("v_lshl_add_u32", v_tr[0][u], vz, 5, vx)); e(valu("v_add_u32", v_tr[1][u], 3 * 16384, v_tr[0][u]))
e(valu("v_xor_b32", vy, vG, vq))
for ds in range(4):
    e(valu("v_xor_b32", vz, 4 * ds, vy)); e(valu("v_lshlrev_b32", vz, 4, vz)); e(valu("v_lshl_add_u32", vz, vq, 8, vz)); e(valu("v_add_u32", v_ka[ds], RING + 4 * 16384, vz))
e(valu("v_lshl_add_u32", vx, vG, 2, vr)); e(valu("v_and_b32", vy, 7, vx)); e(valu("v_lshlrev_b32", vx, 8, vx)); e(valu("v_lshl_add_u32", vx, vc_, 3, vx)); e(valu("v_add_u32", vx, RING, vx))
for db in range(8):
    e(valu("v_xor_b32", vz, db, vy)); e(valu("v_lshl_add_u32", v_va[db], vz, 5, vx))
e(salu("s_lshl_b32", s_t1, s_w, 12))
e(valu("v_lshlrev_b32", vx, 8, vG)); e(valu("v_add_u32", vx, s_t1, vx))
for j in range(4):
    e(valu("v_add_u32", vy, 4 * j, vG)); e(valu("v_xor_b32", vy, vy, vq)); e(valu("v_lshl_add_u32", v_kd[j], vy, 4, vx))
e(valu("v_and_b32", vz, 1, v_lane)); e(valu("v_lshl_add_u32", vx, vz, 4, vx))
for j in range(2):
    e(valu("v_add_u32", vy, 4 * j, vG)); e(valu("v_lshrrev_b32", vz, 1, vq)); e(valu("v_xor_b32", vy, vy, vz)); e(valu("v_lshl_add_u32", v_vd[j], vy, 5, vx))
e(salu("s_lshl_b32", s_t1, s_w, 14)); e(valu("v_add_u32", v_wl, s_t1, v_lin))
for ks in range(XFIRST, 16): xissue(ks)
if XD == 2:
    e(valu("v_xor_b32", vx, vq, vG)); e(valu("v_lshlrev_b32", vy, 8, vq)); e(valu("v_add_u32", vy, s_xb, vy))
    for b_ in range(4): e(valu("v_xor_b32", vz, 4 * b_, vx)); e(valu("v_lshl_add_u32", V(48 + 0) if False else vxr[b_], vz, 4, vy))
elif XD:
    e(valu("v_lshrrev_b32", vx, 1, vq)); e(valu("v_xor_b32", vx, vx, vG)); e(valu("v_lshlrev_b32", vx, 4, vx))
    e(valu("v_lshl_add_u32", vx, vq, 7, vx)); e(valu("v_add_u32", vxr[0], s_xb, vx)); e(valu("v_xor_b32", vxr[1], 64, vxr[0]))
e(salu("s_mov_b32", s_t1, hx(WS_FL), scc_w=False))
srd(S_FL, s_pair[0], s_pair[1], 32768, s_t1)
if WQT == 1: e(wqt)
ln_issue(LNPRE)
stamp()

C0 = -2.0 * math.sqrt(2.0 / math.pi) * math.log2(math.e); C1 = C0 * 0.044715
PF1 = int(os.environ.get("PF1", "0")) and ORD
def hpk(i, qb): return v_acc[(((4 + 2 * i) * 4 + qb) * 4, 4)] if PF1 else V(96 + 4 * (i * 4 + qb), 4)
DRY = int(os.environ.get("DRY", "0")) and ORD
s_sub, s_ret = S(92, 2), S(70, 2)
class GeluMark(I):
    def __init__(self): I.__init__(self, "; (gelu subroutine ran)", "label", states=0)
def mix_trans(ops, look=70):
    ops = list(ops); out = []
    def free(j):
        o = ops[j]
        for p in ops[:j]:
            if set(p.wr) & (set(o.rd) | set(o.wr)) or set(p.rd) & set(o.wr): return False
        if out and out[-1].kind == "trans" and o.kind != "trans" and set(out[-1].wr) & set(o.rd): return False
        return True
    D = int(os.environ.get("DEPD", "6"))
    def dist(j):
        o = ops[j]
        for k in range(1, min(D, len(out)) + 1):
            if set(out[-k].wr) & set(o.rd): return k
        return D + 1
    while ops:
        want = "valu" if (out and out[-1].kind == "trans") else "trans"
        cand = [j for j in range(min(look, len(ops))) if free(j)]
        if not cand: out.append(nop(0)); continue
        good = [j for j in cand if dist(j) > D]
        pick = next((j for j in good if ops[j].kind == want), good[0] if good else max(cand, key=lambda j: (dist(j), -j)))
        out.append(ops.pop(pick))
    return out
def gelu_block():
    cc = V(40, 2); one = V(44, 2)
    e(valu("v_mov_b32", cc[0], hx(f2u(C0)))); e(valu("v_mov_b32", cc[1], hx(f2u(C1)))); e(valu("v_mov_b32", one[0], "1.0")); e(nop(4))
    save = em.out; em.out = []
    for i in range(2):
        for qb in range(4):
            pk = hpk(i, qb)
            P_ = [(v_acc[(((2 * i + b) * 4 + qb) * 4 + 2 * k, 2)], v_acc[(((4 + 2 * i + b) * 4 + qb) * 4 + 2 * k, 2)], V(64 + 8 * (qb & 3) + 2 * (2 * b + k), 2)) for b in range(2) for k in range(2)]
            for g_, u_, x_ in P_: e(valu("v_pk_mul_f32", x_, g_, g_))
            for g_, u_, x_ in P_: e(valu("v_pk_fma_f32", x_, x_, cc, cc, mod="op_sel:[0,1,0] op_sel_hi:[1,1,0]"))
            for g_, u_, x_ in P_: e(valu("v_pk_mul_f32", x_, x_, g_))
            for g_, u_, x_ in P_: e(valu("v_exp_f32", x_[0], x_[0])); e(valu("v_exp_f32", x_[1], x_[1]))
            for g_, u_, x_ in P_: e(valu("v_pk_mul_f32", g_, g_, u_))
            for g_, u_, x_ in P_: e(valu("v_pk_add_f32", x_, x_, one, mod="op_sel_hi:[1,0]"))
            for g_, u_, x_ in P_: e(valu("v_rcp_f32", x_[0], x_[0])); e(valu("v_rcp_f32", x_[1], x_[1]))
            if not PF1:
                for g_, u_, x_ in P_: e(valu("v_mov_b64", u_, 0))
            for g_, u_, x_ in P_: e(valu("v_pk_mul_f32", g_, g_, x_))
            for k, (g_, u_, x_) in enumerate(P_): e(valu("v_cvt_pk_bf16_f32", pk[k], g_[0], g_[1]))
    ops = em.out; em.out = save
    for it in (mix_trans(ops) if int(os.environ.get("MIXT", "1")) else ops): e(it)
if DRY:
    e(raw("s_getpc_b64 %s" % s_ret, "salu", wr=[s_ret])); em.label("L_pc3")
    e(salu("s_add_u32", s_ret[0], s_ret[0], "L_gelu_end-L_pc3")); e(salu("s_addc_u32", s_ret[1], s_ret[1], 0, scc_r=True))
    em.label("L_gelu")
    gelu_block()
    e(raw("s_setpc_b64 %s" % s_ret, "salu", rd=[s_ret]))
    em.label("L_gelu_end")
v_f = V(128, 128)
LNM = int(os.environ.get("LNM", "1"))
vsum, vtmp, vmb, vdm = V(40), V(41), V(42), V(43)
vneg = V(56, 2)
diag(2)
if LNM:
    d1, d2 = V(56, 4), (V(60, 4) if XD != 2 else A(196, 4))
    xr = {}
    def xread(t2):
        em.wait(vm=xl[2 * t2 + 1])
        for ks in (2 * t2, 2 * t2 + 1): xr[ks] = e(dsread("ds_read_b128", v_xp[(4 * ks, 4)], vxr[ks & 1], (ks >> 1) * 2048))
    e(valu("v_mov_b32", vtmp, "0x3f803f80"))
    for i in range(4): e(valu("v_accvgpr_write_b32", a_ones[i], vtmp))
    e(valu("v_and_b32", vtmp, 3, v_lane))
    for r in range(1, 4): e(valu("v_cmp_eq_u32", S(68 + 2 * r, 2), r, vtmp))
    e(valu("v_bfe_u32", vtmp, v_lane, 2, 2)); e(valu("v_lshrrev_b32", vmb, 4, v_lane)); e(valu("v_cmp_eq_u32", S(68, 2), vtmp, vmb))
    LND = int(os.environ.get("LND", "4"))
    def xread4(sg):
        em.wait(vm=xl[4 * sg + 3])
        for ks in range(4 * sg, 4 * sg + 4): xr[ks] = e(dsread("ds_read_b128", v_xp[(4 * ks, 4)], vxr[ks & 3], sg * 4096))
    if XD == 1: xread(0)
    for ks in range(16):
        if XD == 2:
            if ks % 4 == 0: xread4(ks // 4)
            em.wait(lg=xr[ks])
        elif XD:
            if ks % 2 == 0 and ks + 2 < 16: xread(ks // 2 + 1)
            em.wait(lg=xr[ks])
        else: em.wait(vm=xl[ks])
        if ks == 15: diag(2)
        x4 = v_xp[(4 * ks, 4)]
        e(mfma(d1, a_ones, x4, 0 if ks == 0 else d1))
        if ks >= LND: ln_issue(1)
        for k in range(2):
            p = 4 * ks + k
            e(valu("v_lshlrev_b32", v_f[2 * p], 16, v_xp[p])); e(valu("v_and_b32", v_f[2 * p + 1], "0xffff0000", v_xp[p]))
        e(mfma(d2, x4, x4, 0 if ks == 0 else d2))
        for k in range(2, 4):
            p = 4 * ks + k
            e(valu("v_lshlrev_b32", v_f[2 * p], 16, v_xp[p])); e(valu("v_and_b32", v_f[2 * p + 1], "0xffff0000", v_xp[p]))
    if STAMP == 3: stamp()
    ln_issue(int(os.environ.get("LN_FIRST", "0")))
    diag(2)
    if STAMP == 3: stamp()
    e(nop(2))
    if XD == 2:
        e(nop(2))
        for r in range(4): e(valu("v_accvgpr_read_b32", V(60 + r), d2[r]))
        d2 = V(60, 4)
    e(valu("v_mul_f32", vsum, hx(f2u(1.0 / 512)), d1[0]))
    e(valu("v_cvt_pk_bf16_f32", vmb, vsum, vsum)); e(valu("v_lshlrev_b32", vmb, 16, vmb))
    e(valu("v_mov_b32", vdm, vsum))
    for r in range(1, 4): e(valu("v_cndmask_b32", d2[0], d2[0], d2[r], S(68 + 2 * r, 2)))
    e(valu("v_cndmask_b32", vsum, 0, d2[0], S(68, 2)))
    red4("v_add_f32", [vsum], [vtmp])
    e(valu("v_mul_f32", vsum, hx(f2u(1.0 / 512)), vsum))
    e(valu("v_fma_f32", vsum, "-" + str(vdm), vdm, vsum, extra_rd=vdm.regs()))
    if STAMP == 3: stamp()
else:
    acc = [V(56, 2), V(58, 2), V(60, 2), V(62, 2)]
    for ks in range(16):
        em.wait(vm=xl[ks])
        if ks == 15: diag(2)
        for k in range(4):
            p = 4 * ks + k
            e(valu("v_lshlrev_b32", v_f[2 * p], 16, v_xp[p])); e(valu("v_and_b32", v_f[2 * p + 1], "0xffff0000", v_xp[p]))
        for k in range(4):
            p = 4 * ks + k
            if ks == 0: e(valu("v_mov_b64", acc[k], v_f[(2 * p, 2)]))
            else: e(valu("v_pk_add_f32", acc[k], acc[k], v_f[(2 * p, 2)]))
    if STAMP == 3: stamp()
    ln_issue(int(os.environ.get("LN_FIRST", "12")))
    diag(2)
    if STAMP == 3: stamp()
    e(valu("v_pk_add_f32", acc[0], acc[0], acc[1])); e(valu("v_pk_add_f32", acc[2], acc[2], acc[3])); e(valu("v_pk_add_f32", acc[0], acc[0], acc[2]))
    e(valu("v_add_f32", vsum, acc[0][0], acc[0][1]))
    red4("v_add_f32", [vsum], [vtmp])
    e(valu("v_mul_f32", vsum, hx(f2u(1.0 / 512)), vsum))
    e(valu("v_cvt_pk_bf16_f32", vmb, vsum, vsum)); e(valu("v_lshlrev_b32", vmb, 16, vmb))
    e(valu("v_sub_f32", vdm, vsum, vmb))
    e(valu("v_sub_f32", vneg[0], 0, vmb))
    acc2 = [V(58, 2), V(60, 2), V(62, 2)]
    for p in range(64):
        e(valu("v_pk_add_f32", v_f[(2 * p, 2)], v_f[(2 * p, 2)], vneg, mod="op_sel_hi:[1,0]"))
    for p in range(64):
        a_ = acc2[p % 3]
        if p < 3: e(valu("v_pk_mul_f32", a_, v_f[(2 * p, 2)], v_f[(2 * p, 2)]))
        else: e(valu("v_pk_fma_f32", a_, v_f[(2 * p, 2)], v_f[(2 * p, 2)], a_))
    if STAMP == 3: stamp()
    e(valu("v_pk_add_f32", acc2[0], acc2[0], acc2[1])); e(valu("v_pk_add_f32", acc2[0], acc2[0], acc2[2]))
    e(valu("v_add_f32", vsum, acc2[0][0], acc2[0][1]))
    red4("v_add_f32", [vsum], [vtmp])
    e(valu("v_mul_f32", vsum, hx(f2u(1.0 / 512)), vsum))
    e(valu("v_fma_f32", vsum, "-" + str(vdm), vdm, vsum, extra_rd=vdm.regs()))
e(valu("v_max_f32", vsum, 0, vsum))
e(valu("v_cvt_pk_bf16_f32", vsum, vsum, vsum)); e(valu("v_lshlrev_b32", vsum, 16, vsum))
e(valu("v_add_f32", vsum, hx(f2u(1e-5)), vsum))
e(valu("v_cvt_pk_bf16_f32", vsum, vsum, vsum)); e(valu("v_lshlrev_b32", vsum, 16, vsum))
e(valu("v_sqrt_f32", vsum, vsum)); e(nop(0))
e(valu("v_cvt_pk_bf16_f32", vsum, vsum, vsum)); e(valu("v_lshlrev_b32", vsum, 16, vsum))
e(valu("v_rcp_f32", vneg[0], vsum)); e(nop(0))
if LNM: e(valu("v_mul_f32", vneg[1], "-" + str(vmb), vneg[0], mod="", extra_rd=vmb.regs()))
for k2 in range(8):
    if not LNM: break
    for p in range(8 * k2, 8 * k2 + 8): e(valu("v_pk_fma_f32", v_f[(2 * p, 2)], v_f[(2 * p, 2)], vneg, vneg, mod="op_sel:[0,0,1] op_sel_hi:[1,0,1]"))
    if k2:
        for ks in (2 * k2 - 2, 2 * k2 - 1): e(dswrite("ds_write_b128", v_wl, v_xp[(4 * ks, 4)], ks * 1024))
    for p in range(8 * k2, 8 * k2 + 8): e(valu("v_cvt_pk_bf16_f32", v_xp[p], v_f[2 * p], v_f[2 * p + 1]))
if LNM:
    for ks in (14, 15): e(dswrite("ds_write_b128", v_wl, v_xp[(4 * ks, 4)], ks * 1024))
for ks in range(16 if not LNM else 0):
    for k in range(4):
        p = 4 * ks + k
        if LNM: e(valu("v_pk_fma_f32", v_f[(2 * p, 2)], v_f[(2 * p, 2)], vneg, vneg, mod="op_sel:[0,0,1] op_sel_hi:[1,0,1]"))
        else: e(valu("v_pk_mul_f32", v_f[(2 * p, 2)], v_f[(2 * p, 2)], vneg, mod="op_sel_hi:[1,0]"))
    for k in range(4):
        p = 4 * ks + k
        e(valu("v_cvt_pk_bf16_f32", v_xp[p], v_f[2 * p], v_f[2 * p + 1]))
    e(dswrite("ds_write_b128", v_wl, v_xp[(4 * ks, 4)], ks * 1024))
ln_issue(int(os.environ.get("LN_LAST", "100")))
if STAMP == 3: stamp()
if DUMP == "ln": dump_regs([v_xp[i] for i in range(64)])
em.wait(lg0=True)
e(raw("s_barrier"))
stamp(); diag(); diag(2); diag(3)

PA = int(os.environ.get("PA", "1"))
SNAKE = int(os.environ.get("SNAKE", "1"))
def cost_of(it):
    k = getattr(it, "kind", "")
    return 2 if k == "trans" else (0 if k in ("salu", "nop") else 1)
class Fill:
    def __init__(self, items, start, end, spread=False): self.items, self.start, self.end, self.spread = list(items), start, end, spread; self.i = 0
    def done(self): return self.i == len(self.items)
def run_stream(NH, dmaf, dtok, accf, Bf, extra, fills, LOOK=6, nq=4, posf=lambda m: m % 6, ring=a_ring, first_dma=6, tr2=None, early_dma=False, w2=lambda g: False):
    NG = 4 * NH
    rtok = {}
    def reads(g):
        m, u = g >> 2, g & 3
        p = posf(m)
        d = ring[((g % 8) * 4, 4)]
        ar, of = (v_tr[p // 3][u], (p % 3) * 16384) if p < 6 else (tr2[u], (p - 6) * 16384)
        r = [dsread("ds_read_b64_tr_b16", d[(2 * h2, 2)], ar, of + h2 * 512) for h2 in range(2)]
        rtok[g] = r[1]
        return r
    assert all(k < NG for k in extra), "extra item scheduled past the end of the stream"
    pre = [reads(g) for g in range(3)]
    G, C = [], []
    cur = None
    for g in range(NG):
        gaps = [[], [], [], []]; cap = [2, 2, 2, 2]
        if g + 3 < NG:
            if (g + 3) & 3 == 0 and not (g > 0 and w2(g - 1)): gaps[0].append(LateW(dtok, (g + 3) >> 2))
            r = reads(g + 3); gaps[0].append(r[0]); gaps[1].append(r[1]); cap[0] -= 1; cap[1] -= 1
        md, j = (g + 4 * LOOK - 4) >> 2, (g + 4 * LOOK - 4) & 3
        if early_dma:
            md, j = (g + 4 * LOOK - 3) >> 2, (g + 4 * LOOK - 3) & 3
            if md >= first_dma and j < 2:
                if j == 0: cur = dmaf(md)
                if cur is not None:
                    if j == 0: gaps[1] += cur[0]
                    gaps[2].append(cur[1][2 * j]); gaps[3].append(cur[1][2 * j + 1]); cap[2] -= 1; cap[3] -= 1
                    if j == 1: dtok[md] = cur[1][3]
        elif md >= first_dma:
            if j == 0: cur = dmaf(md)
            if cur is not None:
                if j == 0: gaps[2] += cur[0]
                for it in cur[1][j::4]: gaps[3].append(it); cap[3] -= 1
                if j == 3: dtok[md] = cur[1][3]
        for (gp, it, cost) in extra.get(g, []):
            gaps[gp].append(it); cap[gp] -= cost
        if w2(g):
            if g & 1 == 0 and g + 1 < NG:
                gaps[3].insert(0, LateW2(rtok, [x for x in (g + 1, g + 2) if x < NG], dtok, (g + 4) >> 2 if ((g + 4) & 3 == 0 and g + 4 < NG) else None))
        elif g + 1 < NG: gaps[3].insert(0, Wait(lg=rtok[g + 1]))
        G.append(gaps); C.append(cap)
    B = {}
    for f in fills:
        idx = [(g, q) for g in range(f.start, f.end) for q in range(4)]
        caps = [max(0, C[g][q]) for g, q in idx]
        W = sum(cost_of(it) for it in f.items); T = sum(caps); n = len(idx)
        acc = 0.0; cum = 0
        for k, key in enumerate(idx):
            if W >= T: acc += caps[k] + (W - T) / n
            elif f.spread: acc += caps[k] * W / T
            else: acc += caps[k]
            B[key] = (f, acc)
    em.wait(vm=dtok[0])
    for r in pre: e(r)
    for p_ in extra.get(-1, []): e(p_[1])
    em.wait(lg0=True)
    used = {id(f): 0 for f in fills}
    for g in range(NG):
        m, u = g >> 2, g & 3
        d = ring[((g % 8) * 4, 4)]
        for qb in range(nq):
            qq = 3 - qb if (SNAKE and g & 1) else qb
            ac, first = accf(m, u, qq)
            e(mfma(ac, d, Bf(m, qq), 0 if first else ac))
            ent = B.get((g, qb))
            sawv = False
            if ent:
                f, lim = ent
                while not f.done() and getattr(f.items[f.i], "kind", "") in ("lds", "vmem", "salu") and used[id(f)] + cost_of(f.items[f.i]) <= lim + 0.5:
                    it = f.items[f.i]; f.i += 1; used[id(f)] += cost_of(it); e(it)
            for it in G[g][qb]: e(it)
            if ent:
                f, lim = ent
                lastgap = (g == f.end - 1 and qb == 3)
                while not f.done():
                    it = f.items[f.i]; c = cost_of(it)
                    if not lastgap:
                        if used[id(f)] + c > lim + 0.5: break
                        if sawv and getattr(it, "kind", "") in ("lds", "vmem"): break
                    f.i += 1; used[id(f)] += c; e(it)
                    if getattr(it, "kind", "") in ("valu", "trans"): sawv = True
    assert all(f.done() for f in fills)
class LateW2:
    def __init__(self, r, fl, d, k): self.r, self.fl, self.d, self.k = r, fl, d, k
    def __call__(self): return Wait(lg=[self.r[f] for f in self.fl], vm=(self.d[self.k] if self.k is not None else None))
class LateW:
    def __init__(self, d, k): self.d, self.k = d, k
    def __call__(self): return Wait(vm=self.d[self.k])

def s1_acc(m, u, qb):
    h = m & 1
    idx = ((h * 4 + u) * 4 + qb) * 4
    if m < 32: return A(idx, 4), m < 2
    return v_acc[(idx, 4)], m < 34
def s1_B(m, qb): return a_B[(((m >> 1) & 1) * 16 + qb * 4, 4)]
extra = {}
btok = {}
W3Z = int(os.environ.get("W3Z", "1"))
v_lz = [V(50), V(51)]
def bread(s, qb): return dsread("ds_read_b128", a_B[((s & 1) * 16 + qb * 4, 4)], v_lz[qb >> 1] if (W3Z and (s >= 16 if ORD else s < 16)) else v_lin, (qb * 16 + (s % 16)) * 1024)
if W3Z:
    s_hz = [S(84 - 16 + 0), S(69)]
    for h in range(2):
        e(salu("s_and_b32", s_t0, s_g, 1)); e(salu("s_lshl_b32", s_t0, s_t0, 2)); e(salu("s_add_u32", s_t0, s_t0, s_w))
        e(scmp("s_cmp_eq_u32", s_t0, 7 if h == 0 else 3)); e(salu("s_cselect_b32", s_hz[h], "0x40000", 0, scc_w=False, scc_r=True))
        e(valu("v_add_u32", v_lz[h], s_hz[h], v_lin))
extra[-1] = [(0, bread(0, qb), 1) for qb in range(4)]
for s in range(1, 32):
    for qb in range(4):
        extra.setdefault(8 * (s - 1) + 1 + qb, []).append((2, bread(s, qb), 1))
gi = 0; gj = 0; pend_s = []
for it in ln_v[lv[0]:]:
    if isinstance(it, list) and all(x.kind == "salu" for x in it): pend_s = it; continue
    if not isinstance(it, list) and it.kind == "dma":
        assert gi < 12
        extra.setdefault(gi // 3, []).append((gi % 3, [pend_s, it] if pend_s else it, 1)); pend_s = []
        gi += 1
    else:
        extra.setdefault(8 + 2 * gj, []).append((1, it, 1)); gj += 1
if WQC == 2: extra.setdefault(int(os.environ.get("WQG", "70")), []).append((1, wqs, 1))
C0 = -2.0 * math.sqrt(2.0 / math.pi) * math.log2(math.e); C1 = C0 * 0.044715
vc0, vc1 = V(40), V(41)
gel = [valu("v_mov_b32", vc0, hx(f2u(C0))), valu("v_mov_b32", vc1, hx(f2u(C1)))]
hst = []
tb = 0
for i in range(2):
    for qb in range(4):
        pk = hpk(i, qb); tb += 1
        for b in range(2):
            u = 2 * i + b
            T = [V(64 + 16 * b + k) for k in range(16)]
            G_, U_, X_ = T[0:4], T[4:8], T[8:12]
            ga = lambda r: A((u * 4 + qb) * 4 + r); ua = lambda r: A(((4 + u) * 4 + qb) * 4 + r)
            for r in range(4): gel.append(valu("v_accvgpr_read_b32", G_[r], ga(r)))
            for r in range(4): gel.append(valu("v_accvgpr_read_b32", U_[r], ua(r)))
            for r in range(4): gel.append(valu("v_mul_f32", X_[r], G_[r], G_[r]))
            for r in range(4): gel.append(valu("v_fma_f32", X_[r], X_[r], vc1, vc0))
            for r in range(4): gel.append(valu("v_mul_f32", X_[r], X_[r], G_[r]))
            for r in range(4): gel.append(valu("v_exp_f32", X_[r], X_[r]))
            for r in range(4): gel.append(valu("v_mul_f32", G_[r], G_[r], U_[r]))
            for r in range(4): gel.append(valu("v_add_f32", X_[r], "1.0", X_[r]))
            for r in range(4): gel.append(valu("v_rcp_f32", X_[r], X_[r]))
            gel.append(nop(0))
            for r in range(4): gel.append(valu("v_mul_f32", G_[r], G_[r], X_[r]))
            for k in range(2): gel.append(valu("v_cvt_pk_bf16_f32", pk[2 * b + k], G_[2 * k], G_[2 * k + 1]))
        st = bstore(pk, (V(46 + (qb >> 1)) if PF1 else v_lz[qb >> 1]) if W3Z else v_lin, S_H, s_h1 if i else s_h0, off=qb * 1024, mod="sc1")
        hst.append(st)
class Stamp:
    def __call__(self): stamp(); return []
if STAMP: extra.setdefault(128, []).append((0, Stamp(), 0))
if STAMP == 6:
    for g_ in (0, 8, 16, 24, 32, 48, 64, 96): extra.setdefault(g_, []).append((0, Stamp(), 0))
class Diag3:
    def __call__(self): diag(3); return []
if DIAG == 3:
    for g_ in (32, 128, 192): extra.setdefault(g_, []).append((0, Diag3(), 0))
class Grp:
    kind = "salu"
    def __init__(self, l): self.l = l
    def __call__(self):
        for x in self.l:
            if x.kind == "label": em.out.append(x)
            else: e(x)
        return []
def group_scc(items):
    out = []
    for it in items:
        if out and ("scc" in it.rd or it.kind == "label"):
            p = out.pop(); out.append(Grp((p.l if isinstance(p, Grp) else [p]) + [it]))
        else: out.append(it)
    return out
s_pf = [S(24, 2), S(26, 2), S(28, 2), S(30, 2)]
s_pfH = s_pair2
s_fo = S(3)
QS = math.log2(math.e) / math.sqrt(128.0)
vqs = V(42, 2); vqw = V(44)
save = em.out; em.out = []; spend = em.pend; em.pend = {}
NWO = 4 if MAP2 else 2
for it in range(3):
    e(salu("s_add_u32", s_t0, s_w, 4 * it))
    e(salu("s_sub_u32", s_t1, s_t0, NWO)); e(salu("s_min_u32", s_t1, s_t1, 6)); e(salu("s_lshl_b32", s_t1, s_t1, 13))
    e(salu("s_lshr_b32", s_t2, S(2), 3)); e(salu("s_mul_i32", s_t2, s_t2, 57344, scc_w=False)); e(salu("s_add_u32", s_t1, s_t1, s_t2))
    e(salu("s_add_u32", s_pf[it][0], S_WD[0], s_t1)); e(salu("s_addc_u32", s_pf[it][1], S_WD[1], 0, scc_r=True))
    if it == 0:
        e(sx(s_t1)); e(salu("s_lshl_b32", s_t1, s_t1, 15 if MAP2 else 14)); e(salu("s_lshl_b32", s_t2, s_w, 13)); e(salu("s_add_u32", s_t1, s_t1, s_t2))
        e(salu("s_add_u32", s_pf[1][0], S_WO[0], s_t1)); e(salu("s_addc_u32", s_pf[1][1], S_WO[1], 0, scc_r=True))
        e(scmp("s_cmp_lt_u32", s_w, NWO)); e(salu("s_cselect_b64", s_pf[0], s_pf[1], s_pf[0], scc_w=False, scc_r=True))
e(raw("s_getpc_b64 %s" % s_pf[3], "salu", wr=[s_pf[3]]))
em.label("L_pc1")
e(salu("s_lshl_b32", s_t0, s_w, 13)); e(salu("s_add_u32", s_t0, s_t0, "L_tail-L_pc1")); e(salu("s_min_u32", s_t0, s_t0, "L_code_end-L_pc1-8192"))
e(salu("s_add_u32", s_t1, s_t0, (1 if MAP2 else 3) * 8192)); e(salu("s_min_u32", s_t1, s_t1, "L_code_end-L_pc1-8192"))
e(salu("s_add_u32", s_pfH[0], s_pf[3][0], s_t1)); e(salu("s_addc_u32", s_pfH[1], s_pf[3][1], 0, scc_r=True))
e(scmp("s_cmp_lt_u32", s_w, 3 if MAP2 else 1)); e(salu("s_cselect_b64", s_pf[2], s_pf[2], s_pfH, scc_w=False, scc_r=True))
e(salu("s_add_u32", s_pf[3][0], s_pf[3][0], s_t0)); e(salu("s_addc_u32", s_pf[3][1], s_pf[3][1], 0, scc_r=True))
e(salu("s_lshl_b32", s_t0, s_cg, 2)); e(salu("s_add_u32", s_t0, s_t0, s_w)); e(salu("s_mul_i32", s_t0, s_t0, 7168, scc_w=False)); e(salu("s_min_u32", s_t0, s_t0, 229376 - 8192))
e(salu("s_add_u32", s_pfH[0], S_HC[0], s_t0)); e(salu("s_addc_u32", s_pfH[1], S_HC[1], 0, scc_r=True))
e(salu("s_lshl_b32", s_fo, s_cq, 3))
vx, vy, vz = V(45), V(46), V(47)
e(salu("s_lshl_b32", s_t1, s_w, 8))
pf_part = len(em.out)
dma_voffs(v_wo, 1024, s_t1, True)
e(salu("s_mul_i32", s_wdd, s_w, 448 * 1024 - 256, scc_w=False)); e(salu("s_lshl_b32", s_t3, s_cg, 7)); e(salu("s_add_u32", s_wdd, s_wdd, s_t3))
e(valu("v_mov_b32", vqs[0], hx(f2u(QS))))
e(valu("v_and_b32", vx, 15, v_lane)); e(valu("v_bfe_u32", vqw, v_lane, 5, 1)); e(valu("v_lshl_add_u32", vx, vqw, 4, vx)); e(valu("v_lshlrev_b32", vx, 4, vx))
e(valu("v_bfe_u32", vqw, v_lane, 4, 1)); e(valu("v_lshl_add_u32", vqw, vqw, 3, vx))
e(salu("s_lshl_b32", s_t1, s_w, 14)); e(valu("v_add_u32", vqw, s_t1, vqw))
for i in range(16 if not PF1 else 0): e(valu("v_accvgpr_write_b32", a_L[i], 0))
midset = group_scc(em.out[pf_part - 1:]) if ORD else group_scc(em.out)
pfset = group_scc(em.out[:pf_part - 1]); em.out = save; em.pend = spend
qconv = []
if ORD:
    QS_ = V(42)
    for ds in range(4):
        for q2 in range(2):
            T = [[V(64 + 16 * (q2 & 1) + 8 * j + k) for k in range(8)] for j in range(2)]
            qs = [2 * q2, 2 * q2 + 1]
            for k in range(8):
                for j in range(2): qconv.append(valu("v_accvgpr_read_b32", T[j][k], A(((2 * ds + (k >> 2)) * 4 + qs[j]) * 4 + (k & 3))))
            for k in range(8):
                for j in range(2): qconv.append(valu("v_mul_f32", T[j][k], QS_, T[j][k]))
            for k in range(4):
                for j in range(2): qconv.append(valu("v_cvt_pk_bf16_f32", T[j][k], T[j][2 * k], T[j][2 * k + 1]))
            for sw in ("v_permlane32_swap_b32", "v_permlane16_swap_b32"):
                for k in range(2):
                    for j in range(2): qconv.append(valu(sw, T[j][k], T[j][k + 2]))
            for k in range(4):
                for j in range(2): qconv.append(valu("v_accvgpr_write_b32", A((8 * ds + qs[j]) * 4 + k), T[j][k]))
HST = int(os.environ.get("HST", "0"))
if HST == 0: GEL_END = 254
for k in range(8):
    if HST: extra.setdefault(248 + k, []).append((0, hst[k], 1))
run_stream(64, s1_dma, dtok, s1_acc, s1_B, extra, [Fill(midset, 109, 130), Fill(qconv, 131, 236), Fill(pfset, 237, 255)] if ORD else [Fill(midset, 109, 130), Fill(gel, 131, GEL_END)], early_dma=int(os.environ.get('ED1', '0')), w2=lambda g: int(os.environ.get('W2A', '1')) and g >= 130 and not ORD)
if DUMP == "qacc": dump_regs([v_acc[i] for i in range(128)])
stamp(); diag(3)

if not ORD:
    em.wait(lg0=True)
    e(raw("s_barrier"))
def signal(off_s_expr_add, lab, v_t):
    e(scmp("s_cmp_lg_u32", s_w, 0)); e(raw("s_cbranch_scc1 %s" % lab, rd=["scc"]))
    e(salu("s_lshl_b32", s_t0, s_qb, 2))
    if off_s_expr_add: e(salu("s_add_u32", s_t0, s_t0, off_s_expr_add))
    e(valu("v_mov_b32", v_t, 1))
    e(raw("s_mov_b64 exec, 1", "salu", wr=["exec"]))
    e(raw("buffer_atomic_add %s, off, %s, %s sc1" % (v_t, S_DBG, s_t0)))
    e(raw("s_mov_b64 exec, -1", "salu", wr=["exec"]))
    em.label(lab)
if ORD:
    if DRY:
        e(raw("s_getpc_b64 %s" % s_sub, "salu", wr=[s_sub])); em.label("L_pc2")
        e(salu("s_sub_u32", s_sub[0], s_sub[0], "L_pc2-L_gelu")); e(salu("s_subb_u32", s_sub[1], s_sub[1], 0, scc_r=True))
        e(nop(1)); e(raw("s_swappc_b64 %s, %s" % (s_ret, s_sub), "salu", rd=[s_sub], wr=[s_ret])); em.out.append(GeluMark())
    else: gelu_block()
for blk in range(8 if not ORD else 0):
    for qb in range(4):
        a_ = v_acc[((blk * 4 + qb) * 4, 4)]
        t = a_[(0, 2)]
        for k in range(2): e(valu("v_pk_mul_f32", a_[(2 * k, 2)], a_[(2 * k, 2)], vqs, mod="op_sel_hi:[1,0]"))
        for k in range(2): e(valu("v_cvt_pk_bf16_f32", t[k], a_[2 * k], a_[2 * k + 1]))
        e(dswrite("ds_write_b64", vqw, t, (qb * 4 + (blk >> 1)) * 1024 + (blk & 1) * 512))
for j in range(4): e(valu("v_add_u32", v_wd[j], s_wdd, v_wo[j]))
if not ORD: em.wait(lg0=True)
for f in range(16 if not ORD else 0): e(dsread("ds_read_b128", a_Q[(4 * f, 4)], v_wl, f * 1024))
e(scmp("s_cmp_eq_u32", s_retry, 1)); e(raw("s_cbranch_scc1 L_maxpass", rd=["scc"]))
em.label("L_att_start")
if PF1 and W3Z:
    for h in range(2): e(valu("v_mov_b32", V(46 + h), v_lz[h]))
NZ0 = 32
for i in range(NZ0 if not ORD else 1): e(valu("v_mov_b64", v_acc[(2 * i, 2)], 0))
assert LSUM == 1 and LNM and not POI
e(valu("v_lshlrev_b32", V(3), 7, v_lane))
e(valu("v_and_b32", V(38), 7, v_lane)); e(valu("v_mov_b32", V(0), 0))
em.wait(vm=dtok[66], lg0=True)
e(raw("s_barrier"))
if DUMP == "q": dump_regs([a_Q[i] for i in range(64)])
stamp()

def Qf(qb, ds): return A((8 * ds + qb) * 4, 4) if ORD else a_Q[((qb * 4 + ds) * 4, 4)]
def Of(db, qb): return v_acc[((db * 4 + qb) * 4, 4)]
def fr(f): return a_ring[((f % 8) * 4, 4)]
def kslot(par): return 16384 if par == 0 else 0
def vslot(par): return 0 if par == 0 else 16384
def frag_reads(par, f):
    if f >= 32: par ^= 1; f -= 32
    d = fr(f)
    if f < 8 or 16 <= f < 24:
        kb = (f >> 2) if f < 8 else 2 + ((f - 16) >> 2)
        return [dsread("ds_read_b128", d, v_ka[f & 3], kslot(par) + kb * 4096)]
    ks2 = 0 if f < 16 else 1
    db = f & 7
    return [dsread("ds_read_b64_tr_b16", d[(2 * h, 2)], v_va[db], vslot(par) + ks2 * 8192 + h * 4096) for h in range(2)]
def read_sched(g):
    r = []
    if g + 3 < 24 or g >= 29: r.append(g + 3)
    if 19 <= g <= 26: r.append(g + 5)
    return r
def sm_val(g, k):
    if 7 <= g <= 22: b = 1; n = 2 * (g - 7) + k
    else: b = 0; n = 2 * ((g - 23) % 32) + k
    kb, qb, r = n >> 4, (n >> 2) & 3, n & 3
    return b, qb, kb, r
def sm_items(g):
    ex, ad = [], []
    for k in range(2):
        b, qb, kb, r = sm_val(g, k)
        x = v_S[b][qb * 8 + kb * 4 + r]
        l = (v_l1 if b else v_l0)[qb]
        ex.append(valu("v_exp_f32", x, x)); ad.append(valu("v_add_f32", l, l, x))
    b, qb, kb, r = sm_val((g - 1) % 32, 0)
    cv = valu("v_cvt_pk_bf16_f32", v_S[b][qb * 8 + kb * 2 + (r >> 1)], v_S[b][qb * 8 + kb * 4 + r], v_S[b][qb * 8 + kb * 4 + r + 1])
    return ex, ad, cv
def att_dma(par, g):
    if g >= 29: k = g - 29; sp = par
    elif g <= 4: k = g + 3; sp = par ^ 1
    else: return [], None
    sal = []
    if k == 0: sal = [salu("s_add_u32", "m0", s_m0b, 4 * 16384 + kslot(sp))]
    if k == 4: sal = [salu("s_add_u32", "m0", s_m0b, vslot(sp))]
    if k < 4: return sal, dma(v_kd[k], S_K, s_kK, k * 1024)
    return sal, dma(v_vd[k & 1], S_V, s_kV, (k - 4) * 1024)
SIDE_FIRST = 11
class Lbl:
    def __init__(self, n): self.n = n
    def __call__(self): em.label(self.n); return []
class LoopStamp:
    def __init__(self, k, par): self.k, self.par = k, par
    def __call__(self):
        k = self.k
        e(raw("s_memtime %s" % S(68 + 2 * k, 2), "other", wr=[S(68 + 2 * k, 2)]))
        if k == 2:
            e(raw("s_waitcnt lgkmcnt(0)", "wait")); em._retire(em.lgq, 0)
            for i in range(3): e(valu("v_writelane_b32", v_c, S(68 + 2 * i), i, rmw=True))
            e(salu("s_lshl_b32", S(74), S(2), 2)); e(salu("s_add_u32", S(74), S(74), s_w)); e(salu("s_lshl_b32", S(74), S(74), 4))
            e(salu("s_sub_u32", S(74), S(74), s_cnt)); e(salu("s_add_u32", S(74), S(74), 16)); e(salu("s_lshl_b32", S(74), S(74), 5))
            e(salu("s_add_u32", S(74), S(74), (1 << 20) + 16 * self.par))
            e(raw("s_mov_b64 exec, 7", "salu", wr=["exec"]))
            e(valu("v_lshlrev_b32", v_t, 2, v_lane))
            e(bstore(v_c, v_t, S_DMP, S(74), off=0))
            e(raw("s_mov_b64 exec, -1", "salu", wr=["exec"]))
            e(valu("v_lshlrev_b32", v_t, 7, v_lane))
        return []
v_tch, v_flag, v_fa = V(3), V(0), V(38)
xtok = []; lastdma = [None]
NITER = 13 if PF1 else 14
s_po0, s_po1, s_poe = s_h0, s_h1, s_off
s_pfc = S(16, 2); s_kvt = S(18, 2); KVIT = int(os.environ.get('KVIT', '12'))
ROT = int(os.environ.get('ROT', '8'))
LQ = int(os.environ.get("LQ", "2"))
def plan_adds():
    nmem = {}
    for g in range(32):
        n = sum(1 if (f % 32 < 8 or 16 <= f % 32 < 24) else 2 for f in read_sched(g)) + (1 if (g >= 29 or g <= 4) else 0) + (1 if g in (13, 14) else 0)
        nmem[g] = n
    free = {}
    for g in range(32):
        n = nmem[g]; a1 = 2 if n > 2 else min(n, 1); a3 = n - a1
        if a1 < 2: a1 += 1
        else: a3 += 1
        if g == 0: a1 += 1
        free[(g, 1)] = max(0, 2 - a1); free[(g, 3)] = max(0, 2 - a3)
        free[(g, 4)] = 2 if ((g & 8) and (g & 1) and ((g & 7) >> 1) < LQ) else 0
    jobs = []
    for g in range(7, 39):
        for k in range(2):
            b, qb, kb, r = sm_val(g % 32, k)
            if qb < LQ: continue
            early = 4 * g + (1 if k == 0 else 3)
            idx = kb * 4 + r
            if idx < 4:
                gsrc = g + 1 if idx == 0 else (g + 2 if idx == 1 else (g + 8 if idx == 2 else g + 9))
                dead = 4 * gsrc
            else: dead = 4 * (g + 11)
            if b == 1: dead = min(dead, 4 * 30)
            jobs.append((dead, early, b, qb, idx))
    plan = {}
    for dead, early, b, qb, idx in sorted(jobs):
        for t in range(early, dead):
            g, q = t >> 2, t & 3
            for gp in ([1] if q == 1 else ([3, 4] if q == 3 else [])):
                if free[(g % 32, gp)] > 0:
                    free[(g % 32, gp)] -= 1; plan.setdefault((g % 32, gp), []).append((b, qb, idx, g)); break
            else: continue
            break
        else:
            g = early >> 2; plan.setdefault((g % 32, early & 3), []).append((b, qb, idx, g)); print("; add overflow", g, file=sys.stderr)
    return plan
ADDS = plan_adds() if LSUM == 3 else {}
def add_items(g, gp, fin, pro):
    out = []
    for b, qb, idx, gabs in ADDS.get((g, gp), []):
        if fin and b == 0 and g >= 23: continue
        if pro and b == 1: continue
        out.append(valu("v_add_f32", v_l1[qb], v_l1[qb], v_S[b][qb * 8 + idx]))
    return out
ftok = {}
def att_group(par, g, do_mfma=True, do_mem=True, do_cvt=True, last=False, pp=None, xmem=(), xsal=(), xvalu=None, first=False):
    ex, ad, cv = sm_items(g)
    mem = []
    sal = []
    fin = (pp == 3)
    d = None
    if do_mem:
        if fin: sched = ([g + 3] if g + 3 < 16 else []) + ([g + 11] if 13 <= g <= 20 else [])
        else: sched = read_sched(g)
        for f in sched:
            r = frag_reads(par, f); mem += r; ftok[f % 32] = r
        if pp is None or (g <= 4 and pp <= 2) or (g >= 29 and pp <= 1):
            sal, d = att_dma(par, g)
            if d is not None: mem.append(d)
    loop = do_mem and pp is None and not first
    post0 = []
    if loop and par == 0:
        if g == 14: mem.append(I("global_load_dword %s, %s, %s" % (v_c, v_tch, s_pfc), "vmem", rd=v_tch.regs() + s_pfc.regs(), wr=[]))
        if g == 13: mem.append(I("buffer_load_ubyte %s, %s, %s, %s offen sc1" % (v_flag, v_fa, S_DBG, s_t2), "vmem", rd=S_DBG.regs() + s_t2.regs() + v_fa.regs(), wr=[]))
        if g == 8: sal = sal + [scmp("s_cmp_le_u32", s_cnt, ROT)]
        if g in (9, 10, 11, 12):
            q_ = [s_pfc] + s_pf
            sal = sal + [salu("s_cselect_b64", q_[g - 9], q_[g - 8], q_[g - 9], scc_w=False, scc_r=True)]
        if g == 0: post0 = [valu("v_cmp_eq_u32", "vcc", 1, v_flag)]
        if g == 2: sal = sal + [raw("s_cmp_eq_u32 vcc_lo, -1", "salu", rd=["vcc"], wr=["scc"])]
        if g == 3: sal = sal + [salu("s_cselect_b32", s_t0, s_cnt, -1, scc_w=False, scc_r=True)]
        if g == 4: sal = sal + [scmp("s_cmp_eq_u32", s_t0, ROT - 1)]
        if g == 5: sal = sal + [salu("s_cselect_b64", s_pf[3], s_pfH, s_pf[3], scc_w=False, scc_r=True)]
        if g == 15: sal = sal + [salu("s_cselect_b64", s_pf[3], S_K[(0, 2)], s_pf[3], scc_w=False, scc_r=True)]
        if MAP2:
            if g == 20: sal = sal + [salu("s_sub_u32", s_t1, s_cnt, KVIT + 1)]
            if g == 21: sal = sal + [scmp("s_cmp_le_u32", s_t1, 1)]
            if g == 22: sal = sal + [salu("s_cselect_b64", s_pfc, s_kvt, S_K[(0, 2)], scc_w=False, scc_r=True)]
            if g == 23: sal = sal + [salu("s_cselect_b32", s_t1, 262144, 0, scc_w=False, scc_r=True)]
            if g == 24: sal = sal + [salu("s_add_u32", s_kvt[0], s_kvt[0], s_t1)]
            if g == 25: sal = sal + [salu("s_addc_u32", s_kvt[1], s_kvt[1], 0, scc_r=True)]
        else:
            if g == 20: sal = sal + [scmp("s_cmp_eq_u32", s_cnt, KVIT + 1)]
            if g == 21: sal = sal + [salu("s_cselect_b64", s_pfc, s_kvt, S_K[(0, 2)], scc_w=False, scc_r=True)]
        if g == 13: sal = sal + [salu("s_cselect_b32", s_t2, s_fo, 256, scc_w=False, scc_r=True)]
        if g == 18: sal = sal + [scmp("s_cmp_eq_u32", s_cnt, s_sig)]
        if g == 19: sal = sal + [raw("s_cbranch_scc1 L_sigH_side", rd=["scc"]), Lbl("L_sigH_ret")]
    if loop and POI and par == 0 and do_mfma:
        if g == 22: sal = sal + [salu("s_add_u32", s_po1, s_po0, 65536)]
        if g == 16: mem.append(bstore(a_poi, v_lin, S_SP, s_po0, mod="sc1"))
        if g == 27: mem.append(bstore(a_poi, v_lin, S_SP, s_po1, mod="sc1"))
        if g == 23: sal = sal + [salu("s_add_u32", s_po0, s_po0, 1024)]
        if g == 24: sal = sal + [salu("s_min_u32", s_po0, s_po0, s_poe)]
    if do_mem and g == 4 and d is not None: lastdma[0] = d
    mem += list(xmem); sal = sal + list(xsal)
    gaps = [[], [], [], []]
    if g == 29 and do_mem and not fin:
        if STAMP == 2 and loop and do_mfma: gaps[0] += [LoopStamp(0, par)]
        gaps[0] += [Wait(lg0=True) if not do_mfma else (Wait(lg0=True, vm0=True) if (pp is None and par == 1) else Wait(lg0=True, vm=lastdma[0]))]
        if STAMP == 2 and loop and do_mfma: gaps[0] += [LoopStamp(1, par)]
        gaps[0] += [raw("s_barrier")]
        if STAMP == 2 and loop and do_mfma: gaps[0] += [LoopStamp(2, par)]
    gaps[0] += sal
    if g == 6 and do_mem and (pp is None or pp <= 1): gaps[0].append(salu("s_add_u32", s_kK, s_kK, 16384))
    if g == 7 and do_mem and (pp is None or pp <= 1): gaps[0].append(salu("s_add_u32", s_kV, s_kV, 16384))
    sm = not (fin and g >= 23)
    if fin and g > 23: do_cvt = False
    if fin and 16 <= g < 24: do_mfma = False
    if LSUM:
        if sm: gaps[0].append(ex[0])
        gaps[1] += mem[0:2] if len(mem) > 2 else mem[0:1]
        gaps[1] += post0
        nf = (g + 1) % 32
        if do_mem and not (fin and (16 <= nf < 24 or nf == 0)): gaps[2].append(Wait(lg=ftok.get(nf)))
        if last and g == 30: gaps[2].append(salu("s_sub_u32", s_cnt, s_cnt, 1))
        if sm: gaps[2].append(ex[1])
        gaps[3] += mem[2:] if len(mem) > 2 else mem[1:]
        pro = not do_mfma and not fin
        gaps[1] += add_items(g, 1, fin, pro)
        if do_cvt: gaps[1 if len([x for x in gaps[1] if x not in ()]) - len(add_items(g, 1, fin, pro)) < 2 else 3].append(cv)
        gaps[3] += add_items(g, 3, fin, pro)
    else:
      gaps[0] += mem[2:3]
      if sm: gaps[0].append(ex[0])
      if len(mem) > 0: gaps[1].append(mem[0])
      if len(mem) == 0 and do_cvt: gaps[1].append(cv)
      if sm: gaps[1].append(ad[0])
      gaps[1] += post0
      nf = (g + 1) % 32
      if do_mem and not (fin and (16 <= nf < 24 or nf == 0)): gaps[2].append(Wait(lg=ftok.get(nf)))
      if last and g == 30: gaps[2].append(salu("s_sub_u32", s_cnt, s_cnt, 1))
      gaps[2] += mem[3:]
      if sm: gaps[2].append(ex[1])
      if len(mem) > 1: gaps[3].append(mem[1])
      if len(mem) > 0 and do_cvt: gaps[3].append(cv)
      if sm: gaps[3].append(ad[1])
    for qb in range(4):
        if do_mfma:
            if g < 8 or 16 <= g < 24:
                b = 1 if g < 8 else 0
                kb, ds = (g >> 2) & 1, g & 3
                d = v_S[b][(qb * 8 + kb * 4, 4)]
                e(mfma(d, fr(g), Qf(qb, ds), v_negm[(qb * 4, 4)] if ds == 0 else d))
            else:
                b = 0 if g < 16 else 1
                qq = 3 - qb if (SNAKE and g & 1) else qb
                if PA: e(mfma(Of(g & 7, qq), v_S[b][(qq * 8, 4)], fr(g), 0 if (first and par == 0 and g < 16) else Of(g & 7, qq)))
                else: e(mfma(Of(g & 7, qq), fr(g), v_S[b][(qq * 8, 4)], Of(g & 7, qq)))
        else:
            if (qb & 1) and not gaps[qb][:1] or ((qb & 1) and getattr(gaps[qb][0], "kind", "") in ("valu",)): e(nop(0))
        for it in gaps[qb]: e(it)
        if xvalu is not None:
            c = 2 - sum(1 for it in gaps[qb] if getattr(it, "kind", "") in ("lds", "vmem", "dma", "valu"))
            while xvalu and c > 0:
                it = xvalu.pop(0); e(it); c -= 2 if it.kind == "trans" else 1
    if LSUM and do_mfma and (g & 8):
        k = g & 7
        lq = None if (fin and g >= 24) else (k >> 1 if k & 1 else None)
        if lq is not None and (LSUM != 3 or lq < LQ): e(mfma(a_L[(4 * lq, 4)], a_ones, v_S[0 if g < 16 else 1][(lq * 8, 4)], 0 if (first and par == 0 and g < 16) else a_L[(4 * lq, 4)]))
    if LSUM == 1 and fin and g == 23:
        e(nop(1))
        for lq in range(4): e(mfma(a_L[(4 * lq, 4)], a_ones, v_S[1][(lq * 8, 4)], a_L[(4 * lq, 4)]))
    if LSUM == 3: e(add_items(g, 4, fin, not do_mfma and not fin))

pr = [dsread("ds_read_b128", fr(f), v_ka[f & 3], (f >> 2) * 4096) for f in range(8)]
for r in pr: e(r)
zr = [valu("v_mov_b32", v_acc[i], 0) for i in ((range(2, 64) if not PF1 else []) if ORD else range(2 * NZ0, 128))]
for f in range(8):
    em.wait(lg=pr[f])
    for qb in range(4):
        d = v_S[0][(qb * 8 + (f >> 2) * 4, 4)]
        e(mfma(d, fr(f), Qf(qb, f & 3), 0 if (f & 3) == 0 else d))
        if qb == 0 and HST == 0 and not PF1: e(hst[f])
        if qb == 2 and f == 0:
            e(raw("s_mov_b64 exec, 3", "salu", wr=["exec"])); e(bstore(v_acc[0], V(3), S_FLZ, s_myfl, mod="sc1")); e(raw("s_mov_b64 exec, -1", "salu", wr=["exec"]))
        for _ in range(2):
            if zr: e(zr.pop(0))
assert not zr
e(salu("s_mov_b32", s_kK, 16384 + 8192, scc_w=False)); e(salu("s_mov_b32", s_kV, 16384, scc_w=False)); e(salu("s_mov_b32", s_cnt, NITER, scc_w=False))
e(scmp("s_cmp_lg_u32", s_retry, 0)); e(raw("s_cbranch_scc1 L_have_max2", rd=["scc"]))
e(nop(3))
mx = [V(97 + 4 * i) for i in range(4)]; mt = [V(98 + 4 * i) for i in range(4)]
for qb in range(4): e(valu("v_max3_f32", mx[qb], v_S[0][qb * 8], v_S[0][qb * 8 + 1], v_S[0][qb * 8 + 2]))
for qb in range(4): e(valu("v_max3_f32", mx[qb], mx[qb], v_S[0][qb * 8 + 3], v_S[0][qb * 8 + 4]))
for qb in range(4): e(valu("v_max3_f32", mx[qb], mx[qb], v_S[0][qb * 8 + 5], v_S[0][qb * 8 + 6]))
for qb in range(4): e(valu("v_max_f32", mx[qb], mx[qb], v_S[0][qb * 8 + 7]))
red4("v_max_f32", mx, mt)
for qb in range(4):
    for k in range(4): e(valu("v_sub_f32", v_negm[qb * 4 + k], 0, mx[qb]))
em.label("L_have_max2")
e(nop(3))
for qb in range(4):
    for k in range(8): e(valu("v_add_f32", v_S[0][qb * 8 + k], v_S[0][qb * 8 + k], v_negm[qb * 4]))
for g in range(23, 29): att_group(1, g, do_mfma=False, do_mem=False, do_cvt=(g != 23))
stamp(); diag()
e(salu("s_and_b32", s_t0, s_qb, 3)); e(salu("s_sub_u32", s_t0, 13, s_t0))
e(scmp("s_cmp_eq_u32", s_w, 0)); e(salu("s_cselect_b32", s_sig, s_t0, -1, scc_w=False, scc_r=True))
e(scmp("s_cmp_eq_u32", s_retry, 0)); e(salu("s_cselect_b32", s_sig, s_sig, -1, scc_w=False, scc_r=True))
e(salu("s_mov_b64", s_pfc, S_K[(0, 2)], scc_w=False))
if POI:
    e(salu("s_lshl_b32", s_po0, s_w, 4)); e(salu("s_add_u32", s_po0, s_po0, s_g)); e(salu("s_lshl_b32", s_po0, s_po0, 13))
    e(salu("s_add_u32", s_poe, s_po0, 7168))
e(scmp("s_cmp_lt_u32", s_w, 2)); e(salu("s_cselect_b64", s_kvt, S_K[(0, 2)], S_V[(0, 2)], scc_w=False, scc_r=True))
e(salu("s_and_b32", s_t0, s_w, 1)); e(sx(s_t1)); e(salu("s_lshl_b32", s_t1, s_t1, 1)); e(salu("s_add_u32", s_t0, s_t0, s_t1)); e(salu("s_lshl_b32", s_t0, s_t0, 13))
e(salu("s_add_u32", s_kvt[0], s_kvt[0], s_t0)); e(salu("s_addc_u32", s_kvt[1], s_kvt[1], 0, scc_r=True))
for g in range(29, 32): att_group(1, g, do_mfma=False, do_mem=True)
if PF1:
    assert PA
    for par in range(2):
        for g in range(32): att_group(par, g, first=True, xmem=([hst[g - 5]] if (par == 0 and 5 <= g < 13) else []))
pro_end = len(em.out)
em.directive(".p2align 6")
em.label("L_att_loop")
def body():
    for par in range(2):
        for g in range(32): att_group(par, g, last=(par == 1))
b0 = len(em.out)
body()
b1 = len(em.out)
e(scmp("s_cmp_lg_u32", s_cnt, 0)); e(raw("s_cbranch_scc1 L_att_loop", rd=["scc"]))
b2 = len(em.out)
body()
second = em.out[b2:]; del em.out[b2:]
assert [i.text for i in second] == [i.text for i in em.out[b0:b1]], "loop not in steady state"
loop_probs = check_hazards(em.out[b1 - 40:b2] + second[:60], "loop-wrap")

em.label("L_tail")
v_ring2 = V(64, 32); v_B2 = V(96, 32)
QH = int(os.environ.get('QH', '0'))
XY = int(os.environ.get('XY', '0'))
NF1 = int(os.environ.get('NF1', '8'))
def hreg(kk, qb):
    if QH and 8 <= kk < 12: return A(16 * (kk - 8) + qb * 4, 4)
    if QH and kk >= 12: kk -= 4
    if kk >= 8: kk -= 8
    if ORD and kk < 4: return A(((2 * kk + 1) * 4 + qb) * 4, 4)
    return A((64 + 16 * kk if kk < 4 else 160 + 16 * (kk - 4)) + qb * 4, 4)
def Facc(u, qb):
    t = u * 4 + qb
    return A(128 + 4 * t if t < 8 else 224 + 4 * (t - 8), 4)
POS2 = [5, 0, 2, 3, 4, 1]
NB = int(os.environ.get("NB", "4"))
def pos2(m): return 6 + m if m < NB else POS2[(m - NB) % 6]
def kind2(m):
    if m < NF1: return ("F", m)
    if m < NF1 + 32: return ("O", (m - NF1) & 15, (m - NF1) >> 4) if XY else ("O", (m - NF1) >> 1, (m - NF1) & 1)
    return ("F", m - 32)
def s2_dma(m):
    if m >= 46: return None
    p = pos2(m); k = kind2(m)
    if k[0] == "O":
        return [m0set(p), salu("s_mov_b32", s_off, k[1] * 32 * 1024 + 128 * k[2], scc_w=False)], [dma(v_wo[j], S_WO, s_off, j * 1024) for j in range(4)]
    return [m0set(p), salu("s_mov_b32", s_off, k[1] * 32 * 1024, scc_w=False)], [dma(v_wd[j], S_WD, s_off, j * 1024) for j in range(4)]
dtok2 = {}; s2pre = {}
for m in range(6 + NB):
    s2pre[m] = s2_dma(m); dtok2[m] = s2pre[m][1][3]
class Seq:
    kind = "vmem"
    def __init__(self, l): self.l = l
    def __call__(self): return self.l
hld = {}; htok = {}
for kk in range(14):
    hld[kk] = [bload(hreg(kk, qb), v_lin, S_HC, s_hl, off=qb * 1024, mod="sc1") for qb in range(4)]
    htok[kk] = hld[kk][3]
e(salu("s_mov_b32", s_cnt, 0, scc_w=False))
em.label("L_pollH")
e(valu("v_cmp_ne_u32", "vcc", 1, v_flag)); e(salu("s_mul_i32", s_hb, s_w, 14 * 4096, scc_w=False)); e(nop(1))
e(raw("s_cbranch_vccz L_pollH_done", rd=["vcc"]))
e(salu("s_add_u32", s_cnt, s_cnt, 1)); e(scmp("s_cmp_ge_u32", s_cnt, 50000)); e(raw("s_cbranch_scc1 L_pollH_done", rd=["scc"]))
e(raw("s_sleep 4")); e(raw("buffer_load_ubyte %s, %s, %s, %s offen sc1" % (v_flag, v_fa, S_DBG, s_fo))); e(raw("s_waitcnt vmcnt(0)")); e(raw("s_branch L_pollH"))
em.label("L_pollH_done")
xaddr(V(39), V(0))
assert LSUM == 1
xsl = [bload(V(40 + 2 * u, 2), V(39), S_XC, 0, off=32 * u, n=2) for u in range(4)]
NH0 = 32
hsl = sorted([(pp, g) for pp in range(3) for g in (5, 13, 14, 15, 16, 17, 18, 27, 28, 9, 11)])[:NH0]
if QH:
    hsl += [(3, g) for g in list(range(8, 16)) + list(range(24, 32))]; NH0 = 48
px = {}
for k, key in enumerate(hsl):
    px.setdefault(key, ([], []))
    px[key][0].append(hld[k >> 2][k & 3])
    if k & 3 == 0: px[key][1].append(salu("s_add_u32", s_hl, s_hb, (k >> 2) * 4096))
for u in range(4): px.setdefault((int(os.environ.get('XSP', '3')), int(os.environ.get('XSG0', '13')) + u), ([], []))[0].append(xsl[u])
wsl = [(pp, g) for pp in range(2) for g in (6, 7, 8, 10, 12, 21, 22, 23)][:4 * NB] + [(2, 29), (2, 30), (2, 31), (3, 0), (3, 1), (3, 2), (3, 3), (3, 4)] + ([(2, g) for g in (6, 7, 8, 10, 12, 21, 22, 23)] if QH else [(3, g) for g in range(5, 13)]) + [(3, g) for g in range(24, 32)]
for k, key in enumerate(wsl):
    px.setdefault(key, ([], []))
    m, j = k >> 2, k & 3
    px[key][0].append(s2pre[m][1][j])
    if j == 0: px[key][1].extend(s2pre[m][0])
px[(3, 24)][1][:0] = [Wait(lg0=True), raw("s_barrier")]
lt = [V(48 + i) for i in range(4)]
NPK = int(os.environ.get("NPK", "0"))
rinv = [V(52 + i) for i in range(4)]
vxf = V(40, 8)
save = em.out; em.out = []
for qb in range(4): e(valu("v_accvgpr_read_b32", lt[qb], a_L[4 * qb]))
e(valu("v_add_f32", V(60), lt[0], lt[1])); e(valu("v_add_f32", V(61), lt[2], lt[3])); e(valu("v_add_f32", V(60), V(60), V(61)))
for qb in range(4): e(valu("v_rcp_f32", rinv[qb], lt[qb]))
e(valu("v_cmp_nge_f32", "vcc", hx(f2u(2.0 ** 30)), V(60)))
v_tr2 = V(56, 4); v_ow = V(62)
for u in range(4): e(valu("v_subrev_u32", v_tr2[u], RING, v_tr[0][u]))
if PA:
    def rT(qb, r): return V(100 + 8 * qb + r)
    v_l8 = V(63)
    vcap = em.lgq, em.pend; em.lgq, em.pend = [], {}
    e(valu("v_and_b32", V(61), 48, v_lane))
    for qb in range(4):
        for r in range(4): e(I("ds_bpermute_b32 %s, %s, %s offset:%d" % (rT(qb, r), V(61), rinv[qb], 4 * r), "lds", rd=["v61"] + rinv[qb].regs(), wr=rT(qb, r).regs()))
    em.lgq, em.pend = vcap
    e(valu("v_lshrrev_b32", v_l8, 4, v_lane)); e(valu("v_bfe_u32", V(60), v_lane, 2, 2)); e(valu("v_xor_b32", V(60), V(60), v_l8))
    e(valu("v_and_b32", v_ow, 15, v_lane)); e(valu("v_lshlrev_b32", v_ow, 5, v_ow)); e(valu("v_lshl_add_u32", v_ow, V(60), 3, v_ow))
    e(valu("v_subrev_u32", v_ow, RING, v_ow)); e(valu("v_add_u32", v_ow, s_m0b, v_ow))
    e(valu("v_xor_b32", v_l8, v_l8, v_lane)); e(valu("v_lshlrev_b32", v_l8, 3, v_l8))
else:
    e(valu("v_subrev_u32", v_ow, RING, v_lin)); e(valu("v_add_u32", v_ow, s_m0b, v_ow))
lred = em.out; em.out = save
for pp in range(4):
    for g in range(32):
        if STAMP == 4 and g in (0, 16): stamp()
        xm, xs = px.get((pp, g), ([], []))
        att_group(pp & 1, g, pp=pp, xmem=xm, xsal=xs, xvalu=(lred if (pp == 3 and g >= (26 if LSUM else 24)) else None))
for it in lred: e(it)
diag(); stamp()
if DUMP == "o":
    e(nop(7))
    for db in range(8):
        for qb in range(4):
            for k in range(4): e(valu("v_mul_f32", Of(db, qb)[k], Of(db, qb)[k], rinv[qb]))
    dump_regs([v_acc[i] for i in range(128)])

vm_ = V(60); vma = V(61)
class Mark:
    kind = "salu"
    def __init__(self, t): self.t = t
    def __call__(self):
        e(raw("s_cbranch_vccz L_nomark", rd=["vcc"])); e(valu("v_mov_b32", self.t, hx(MARK))); em.label("L_nomark"); return []
norm = [valu("v_and_b32", vma, 3, v_lane), valu("v_lshlrev_b32", vma, 12, vma)]
ow = []; ncv = []; ow2 = []
assert not (PA and (NB == 0 or NPK))
NPK_N = int(os.environ.get("NPK_N", "16")) if NPK else 0
for i in range(4):
    for qb in range(4):
        t = Of(2 * i, qb)
        for b in range(2):
            if i * 4 + qb < NPK_N:
                rp = V(52 + (qb & ~1), 2)
                for k in range(2): norm.append(valu("v_pk_mul_f32", Of(2 * i + b, qb)[(2 * k, 2)], Of(2 * i + b, qb)[(2 * k, 2)], rp, mod="op_sel:[0,%d] op_sel_hi:[1,%d]" % (qb & 1, qb & 1)))
            else:
                for k in range(4): norm.append(valu("v_mul_f32", Of(2 * i + b, qb)[k], Of(2 * i + b, qb)[k], rT(qb, k) if PA else rinv[qb]))
        for b in range(2):
            o = Of(2 * i + b, qb)
            for k in range(2): norm.append(valu("v_cvt_pk_bf16_f32", t[2 * b + k], o[2 * k], o[2 * k + 1]))
        ncv.append(norm[-1])
        if PA: ow2.append(dswrite("ds_write_b64", v_ow, t[(2, 2)], i * 16384 + qb * 1024 + 512))
        if i == 0 and qb == 0: norm.append(Mark(t[0]))
        ow.append(dswrite("ds_write_b64", v_ow, t[(0, 2)], i * 16384 + qb * 1024) if PA else dswrite("ds_write_b128", v_ow, t, i * 16384 + qb * 1024))
        if NB == 0: norm.append(ow[-1])
if NPK_N:
    cut = norm.index(ncv[NPK_N - 1]) + 1
    e(nop(4))
    for it in norm[:cut]: e(it)
    norm = norm[cut:]
class ChkNorm:
    def __init__(self, k): self.k = k
    def __call__(self):
        assert ncv[self.k].tok, "O write %d scheduled before its data" % self.k
        return [ow[self.k], ow2[self.k]] if PA else ow[self.k]
G0 = 4 * NF1
G1 = G0 + 128
mk = dsread("ds_read_b32", vm_, vma, 0)
class OBar:
    def __call__(self):
        assert all(w.tok for w in ow)
        em.wait(lg0=True); e(raw("s_barrier")); stamp(); e(mk); return []
class FbCheck:
    def __call__(self):
        em.wait(lg=mk)
        e(valu("v_cmp_eq_u32", "vcc", hx(MARK), vm_))
        e(scmp("s_cmp_lg_u32", s_retry, 0)); e(raw("s_cbranch_scc1 L_nofb", rd=["scc"]))
        e(nop(1))
        e(raw("s_cbranch_vccnz L_fallback", rd=["vcc"]))
        em.label("L_nofb")
        return []
def s2_acc(m, u, qb):
    k = kind2(m)
    if k[0] == "O": return v_acc[(((k[2] * 4 + u) * 4 + qb) * 4, 4)], k[1] == 0
    return Facc(u, qb), k[1] == 0
def s2_B(m, qb):
    k = kind2(m)
    if k[0] == "O": return v_B2[((k[1] & 1) * 16 + qb * 4, 4)]
    return hreg(k[1], qb)
def oread(s, qb):
    d = v_B2[((s & 1) * 16 + qb * 4, 4)]; of = (s & 3) * 16384 + (s >> 2) * 4096 + qb * 1024
    if PA: return [dsread("ds_read_b64_tr_b16", d[(2 * b, 2)], v_l8, of + 512 * b) for b in range(2)]
    return dsread("ds_read_b128", d, v_lin, of)
extra = {}
if NB:
    OW0 = int(os.environ.get("OW0", "11")); OWN = int(os.environ.get("OWN", "1"))
    for k in range(16):
        gg = OW0 + k // OWN
        assert (k >> 2) >= NB or gg > 4 * (k >> 2) + 3
        extra.setdefault(gg, []).append((2 + (k % OWN) % 2, ChkNorm(k), 1))
GB = G0 - int(os.environ.get("OBAR", "3"))
extra.setdefault(GB, []).append((0, OBar(), 0))
r0 = [oread(0, qb) for qb in range(4)]
for qb in range(4): extra.setdefault(GB + (qb >> 1), []).append((1 + (qb & 1) if qb < 2 else (qb & 1) * 2, r0[qb], 1))
extra.setdefault(G0 - 1, []).append((2, [Wait(lg=([x for y in r0 for x in y] if PA else r0)), FbCheck()], 0))
if XY:
    for mm in range(1, 32):
        rr = [oread(mm & 15, qb) for qb in range(4)]
        for qb in range(4): extra.setdefault(G0 + 4 * (mm - 1) + (qb >> 1), []).append((2 + (qb & 1), rr[qb], 1))
        extra.setdefault(G0 + 4 * mm - 1, []).append((2, Wait(lg=([x for y in rr for x in y] if PA else rr)), 0))
else:
    for s_ in range(1, 16):
        for qb in range(4): extra.setdefault(G0 + 8 * (s_ - 1) + 1 + qb, []).append((2, oread(s_, qb), 1))
class LateWait:
    def __init__(self, f): self.f = f
    def __call__(self): return Wait(vm=self.f())
vxa = V(48); vpoll = V(49); vfw = V(50)
vx, vy, vz = V(59), V(57), V(58)
save = em.out; em.out = []
xaddr(vxa, vx)
e(valu("v_and_b32", V(51), 7, v_lane)); e(valu("v_lshlrev_b32", V(51), 2, V(51)))
e(valu("v_add_u32", vfw, s_m0b, v_lin)); e(salu("s_lshl_b32", s_t0, s_w, 14)); e(salu("s_add_u32", s_t0, s_t0, RING)); e(valu("v_add_u32", V(55), s_t0, v_lin))
e(salu("s_lshl_b32", s_t3, s_w, 4)); e(salu("s_add_u32", s_t3, s_t3, s_g)); e(salu("s_lshl_b32", s_t3, s_t3, 13))
early = em.out; em.out = save
extra.setdefault(-1, []).append((0, LateWait(lambda: htok[0]), 0))
for kk in range(1, 14):
    g_ = 4 * kk if kk < NF1 else 4 * (kk + 32)
    extra.setdefault(g_ - 1, []).append((2, LateWait(lambda kk=kk: htok[kk]), 0))
HG0 = int(os.environ.get("HG0", "5")); HGS = int(os.environ.get("HGS", "1"))
for k in range(NH0, 56):
    prev = (k >> 2) - (12 if QH else 8)
    gfree = (4 * prev if prev < NF1 else 4 * (prev + 32)) + 5 + (k & 3)
    extra.setdefault(max(gfree, HG0 + HGS * (k - NH0)), []).append((2, Seq([salu("s_add_u32", s_hl, s_hb, (k >> 2) * 4096), hld[k >> 2][k & 3]]), 1))
def sreg(ip, qb, odd=0): return v_acc[(((2 * ip + odd) * 4 + qb) * 4, 4)]
SPV_ = int(os.environ.get('SPV', '1'))
sp = []; spst = []; stq = []
s_oob = S(19)
if os.environ.get("NOST") or os.environ.get("NOLD"): e(salu("s_mov_b32", s_oob, 524288, scc_w=False))
NSI = int(os.environ.get("NSI", "11"))
s_so = [s_t1, s_cnt, s_h0, s_h1]
for k in range(4): sp.append(salu("s_add_u32", s_so[k], s_t3, (k >> 1) * 65536 + (k & 1) * 4096))
for ip in range(4):
    for qb in range(4):
        t = sreg(ip, qb)
        for b in range(2):
            o = sreg(ip, qb, b)
            for k in range(2): sp.append(valu("v_cvt_pk_bf16_f32", t[2 * b + k], o[2 * k], o[2 * k + 1]))
        st = bstore(t, v_lin, S_SP, s_so[(ip >> 1) * 2 + (qb >> 1)], off=(qb & 1) * 2048 + (ip & 1) * 1024, mod="sc1")
        if os.environ.get("NOST") and not (ip == 3 and qb == 3): st = bstore(t, v_lin, S_SP, s_oob, off=0)
        spst.append((st, sp[-1]))
class St:
    def __init__(self, k): self.k = k
    def __call__(self):
        assert spst[self.k][1].tok
        return spst[self.k][0]
STG = int(os.environ.get("STG", "2"))
if XY:
    GY = G0 + 64
    XS0 = int(os.environ.get("XS0", "4")); XSG = int(os.environ.get("XSG", "5")); XFL = int(os.environ.get("XFL", "60"))
    for k in range(8): extra.setdefault(GY + XS0 + XSG * k, []).append((1, St(k), 1))
    class XFlag:
        def __call__(self): em.wait(vm=spst[7][0]); return flag_store(0)
    hx_ = sp.index(spst[7][1]) + 1
    if NF1 == 14:
        NSI = 8; spf = [Fill(sp[:hx_], GY + 2, GY + 14)]; ypost = sp[hx_:]
    else:
        extra.setdefault(GY + XFL, []).append((1, XFlag(), 1))
        NSI = int(os.environ.get("NSI", "16"))
        for k in range(8, NSI): extra.setdefault(G1 + 3 + STG * (k - 8), []).append((2, St(k), 1))
        spf = [Fill(sp[:hx_], GY + 2, GY + 14), Fill(sp[hx_:], G1 + 2, G1 + 10)]
else:
    if NF1 == 14:
        NSI = 0; spf = []; ypost = sp
    else:
        for k in range(NSI): extra.setdefault(G1 + 3 + STG * k, []).append((2, St(k), 1))
        spf = [Fill(sp, G1 + 2, G1 + int(os.environ.get("CVL", "16")))]
if POI:
    assert not XY and SPV_
    hint = [valu("v_mov_b32", V(57), 2), valu("v_lshlrev_b32", V(58), 7, v_lane), raw("s_mov_b64 exec, 3", "salu", wr=["exec"]),
            bstore(V(57), V(58), S_FL, s_myfl, mod="sc1"), raw("s_mov_b64 exec, -1", "salu", wr=["exec"])]
    extra.setdefault(G1 + int(os.environ.get("HINT", "4")), []).append((1, hint, 1))
FLG = int(os.environ.get("FLG", "0"))
if FLG:
    assert NSI == 16
    class YFlag:
        def __call__(self):
            em.wait(vm=spst[-1][0]); stamp()
            e(([] if XY else flag_store(0)) + flag_store(1))
            if MIDPOST == 5: static_loads()
            return []
    extra.setdefault(G1 + FLG, []).append((1, YFlag(), 1))
sti = [NSI]
def st_next(n=1):
    for _ in range(n):
        if sti[0] < 16: e(spst[sti[0]][0]); sti[0] += 1
def flag_store(h):
    return [valu("v_mov_b32", v_t, 1), raw("s_mov_b64 exec, 1", "salu", wr=["exec"]), bstore(v_t, None, S_FL, s_myfl, off=128 * h, mod="sc1"), raw("s_mov_b64 exec, -1", "salu", wr=["exec"])]
vpa = V(51)
s_done, s_new, s_sb = s_kK, s_kV, s_fo
SPV = int(os.environ.get("SPV", "1"))
def spl(gp, i): return sreg(gp >> 1, (gp & 1) * 2 + i, 0) if SPV else A((gp * 2 + i) * 4, 4)
def flag_load(): return bload(vpoll, vpa, S_FL, s_t2, n=1, mod="sc1")
lblc = [0]
def issue_new():
    k = lblc[0]; lblc[0] += 1
    e(valu("v_cmp_eq_u32", "vcc", 1, vpoll)); e(nop(1))
    e(raw("s_andn2_b32 %s, vcc_lo, %s" % (s_new, s_done), "salu", rd=["vcc", s_done], wr=[s_new, "scc"])); e(salu("s_and_b32", s_new, s_new, 255))
    e(raw("s_cbranch_scc0 L_in%d_end" % k, rd=["scc"]))
    e(salu("s_or_b32", s_done, s_done, s_new))
    for gp in range(8):
        e(scmp("s_bitcmp1_b32", s_new, gp)); e(raw("s_cbranch_scc0 L_in%d_%d" % (k, gp), rd=["scc"]))
        e(salu("s_add_u32", s_t0, s_sb, gp * 8192) if not os.environ.get("NOLD") else salu("s_mov_b32", s_t0, s_oob, scc_w=False))
        for i in range(2): e(raw(bload(spl(gp, i), v_lin, S_SPC, s_t0, off=i * 1024, mod="sc1").text))
        em.label("L_in%d_%d" % (k, gp))
    em.label("L_in%d_end" % k)
def static_loads():
    e(valu("v_cmp_eq_u32", "vcc", 1, vpoll)); e(nop(1))
    e(raw("s_and_b32 %s, vcc_lo, 255" % s_done, "salu", rd=["vcc"], wr=[s_done, "scc"]))
    for gp in range(8):
        e(salu("s_add_u32", s_t0, s_sb, gp * 8192)); e(scmp("s_bitcmp1_b32", s_done, gp)); e(salu("s_cselect_b32", s_t0, s_t0 if not os.environ.get("NOLD") else s_oob, 524288, scc_w=False, scc_r=True))
        for i in range(2): e(bload(spl(gp, i), v_lin, S_SPC, s_t0, off=i * 1024, mod="sc1"))
pinit = [salu("s_lshl_b32", s_t2, s_cq, 3), salu("s_add_u32", s_t2, s_t2, s_cg), salu("s_lshl_b32", s_t2, s_t2, 7), salu("s_mov_b32", s_done, 0, scc_w=False),
         salu("s_lshl_b32", s_sb, s_cg, 16), salu("s_lshl_b32", s_new, s_w, 11), salu("s_add_u32", s_sb, s_sb, s_new)]
extra.setdefault(G1 - 8, []).append((1, pinit, 0))
class MidPoll:
    def __init__(self, tok): self.tok = tok
    def __call__(self):
        em.wait(vm=self.tok); issue_new()
        e(salu("s_mov_b32", s_hb, s_done, scc_w=False))
        midmark.append(em.vm_total)
        return []
midmark = []
if int(os.environ.get("MID", "1")):
    pt = flag_load()
    MIDPOST = int(os.environ.get("MIDPOST", "2"))
    if MIDPOST == 4: extra.setdefault(184 - int(os.environ.get("MID4", "6")), []).append((2, pt, 1))
    else: extra.setdefault(G1 - int(os.environ.get("MID0", "-4")), []).append((2, pt, 1))
    if not MIDPOST: extra.setdefault(G1 + int(os.environ.get("MID1", "3")), []).append((0, MidPoll(pt), 0))
    elif MIDPOST != 4 and int(os.environ.get("MID0", "-4")) > 0 and NF1 < 14: extra.setdefault(G1 + 2, []).append((0, Wait(vm=pt), 0))
    if MIDPOST == 3:
        extra[G1 + 2].pop(); extra[G1 - int(os.environ.get("MID0", "-4"))].pop()
if STAMP and NF1 < 14: extra.setdefault(G1, []).append((0, Stamp(), 0))
if STAMP == 5:
    for g_ in (0, 8, 16, 24): extra.setdefault(g_, []).append((0, Stamp(), 0))
class Diag:
    def __call__(self): diag(); return []
if DIAG and NF1 < 14: extra.setdefault(G1, []).append((0, Diag(), 0))
vs = [Fill(norm, 0, GB - (3 if NB else 1)), Fill(early, G0 + 2, G0 + 40)] + spf
run_stream(46, s2_dma, dtok2, s2_acc, s2_B, extra, vs, posf=pos2, ring=v_ring2, first_dma=6 + NB, tr2=v_tr2, early_dma=int(os.environ.get('ED2', '0')), w2=lambda g: int(os.environ.get('W2B', '1')) and g < 28)
stamp(); diag()
if NF1 == 14:
    fw = [dswrite("ds_write_b128", vfw, Facc(u, qb), qb * 16384 + u * 1024) for qb in range(4) for u in range(4)]
    for k in range(4): e(fw.pop(0))
    e(nop(3))
    for it in ypost:
        e(it)
        if any(it is c for _, c in spst):
            st_next()
            if fw: e(fw.pop(0))
            if XY and sti[0] == int(os.environ.get("XFP", "12")): em.wait(vm=spst[7][0]); e(flag_store(0))
    for it in fw: e(it)
    stamp()
if MIDPOST == 4:
    em.wait(vm=pt); static_loads()
if MIDPOST == 3:
    st_next(16); fl3 = e(flag_load())
e(nop(5))
for qb in range(4 if NF1 < 14 else 0):
    for u in range(4):
        if len(em.lgq) >= 12: em.wait(lg=em.lgq[-12])
        e(dswrite("ds_write_b128", vfw, Facc(u, qb), qb * 16384 + u * 1024))
    if qb & 1: st_next(int(os.environ.get("STW", "1")))
if MIDPOST == 6:
    st_next(16); em.wait(vm=spst[-1][0]); stamp(); e(flag_store(0) + flag_store(1)); static_loads()
v_fr = V(96, 16); vE = V(64, 16); vs_ = V(80, 16)
for k in range(8): e(valu("v_mov_b64", vs_[(2 * k, 2)], 0))
if MIDPOST == 3:
    em.wait(vm=fl3); stamp()
    if not XY: e(flag_store(0))
    e(flag_store(1))
    static_loads()
em.wait(lg0=True)
e(raw("s_barrier"))
def frr(ws_, u): return sreg(ws_, u, 1)
for ws_ in range(4):
    for u in range(4):
        if len(em.lgq) >= 14: em.wait(lg=em.lgq[-14])
        e(dsread("ds_read_b128", frr(ws_, u), V(55), ws_ * 4096 + u * 1024))
st_next()
if MIDPOST:
    st_next(16)
    if MIDPOST == 1: static_loads()
em.wait(lg0=True)
for u in range(4):
    for k in range(2):
        e(valu("v_pk_add_f32", frr(0, u)[(2 * k, 2)], frr(0, u)[(2 * k, 2)], frr(1, u)[(2 * k, 2)]))
        e(valu("v_pk_add_f32", frr(2, u)[(2 * k, 2)], frr(2, u)[(2 * k, 2)], frr(3, u)[(2 * k, 2)]))
for u in range(4):
    for k in range(2): e(valu("v_pk_add_f32", v_fr[(4 * u + 2 * k, 2)], frr(0, u)[(2 * k, 2)], frr(2, u)[(2 * k, 2)]))
for k in range(16): e(valu("v_mul_f32", vE[k], hx(f2u(-math.log2(math.e))), v_fr[k]))
st_next()
for k in range(16): e(valu("v_exp_f32", vE[k], vE[k]))
for k in range(16): e(valu("v_add_f32", vE[k], "1.0", vE[k]))
st_next()
for k in range(16): e(valu("v_rcp_f32", vE[k], vE[k]))
for k in range(16): e(valu("v_mul_f32", v_fr[k], v_fr[k], vE[k]))
for k in range(8):
    e(valu("v_lshlrev_b32", vE[2 * k], 16, vxf[k])); e(valu("v_and_b32", vE[2 * k + 1], "0xffff0000", vxf[k]))
st_next()
stamp()
accn = [0]
def acc_pieces(mask, sprinkle=False):
    n = accn[0]; accn[0] += 1
    for gp in range(8):
        e(scmp("s_bitcmp1_b32", mask, gp)); e(raw("s_cbranch_scc0 L_acc%d_%d" % (n, gp), rd=["scc"]))
        if not SPV:
            for k2 in range(8): e(valu("v_accvgpr_read_b32", V(120 + k2), spl(gp, k2 >> 2)[k2 & 3]))
        assert SPV
        for k in range(8):
            src = spl(gp, k >> 2)[k & 3]
            e(valu("v_lshlrev_b32", V(112 + 2 * k), 16, src)); e(valu("v_and_b32", V(113 + 2 * k), "0xffff0000", src))
        for k in range(8): e(valu("v_pk_add_f32", vs_[(2 * k, 2)], vs_[(2 * k, 2)], V(112 + 2 * k, 2)))
        em.label("L_acc%d_%d" % (n, gp))
        if sprinkle and gp & 1: st_next()
if midmark:
    n_y = em.vm_total - midmark[0]
    e(raw("s_waitcnt vmcnt(%d)" % n_y, "wait")); em._retire(em.vmq, n_y)
    acc_pieces(s_hb, sprinkle=True)
st_next(16)
if POI:
    s_want = s_new
    e(salu("s_mov_b32", s_cnt, 0, scc_w=False)); e(salu("s_mov_b32", s_t1, hx(POISON), scc_w=False))
    if MIDPOST == 2: em.wait(vm=pt)
    stamp()
    em.label("L_fin_loop")
    e(valu("v_cmp_eq_u32", "vcc", 2, vpoll)); e(nop(1))
    e(raw("s_andn2_b32 %s, vcc_lo, %s" % (s_want, s_done), "salu", rd=["vcc", s_done], wr=[s_want, "scc"])); e(salu("s_and_b32", s_want, s_want, 255))
    for gp in range(8):
        e(scmp("s_bitcmp1_b32", s_want, gp)); e(raw("s_cbranch_scc0 L_pl_%d" % gp, rd=["scc"]))
        e(salu("s_add_u32", s_t0, s_sb, gp * 8192))
        for i in range(2): e(raw(bload(spl(gp, i), v_lin, S_SPC, s_t0, off=i * 1024, mod="sc1").text))
        em.label("L_pl_%d" % gp)
    e(raw(flag_load().text))
    e(raw("s_waitcnt vmcnt(0)", "wait")); em._retire(em.vmq, 0)
    for gp in range(8):
        e(scmp("s_bitcmp1_b32", s_want, gp)); e(raw("s_cbranch_scc0 L_pa_%d" % gp, rd=["scc"]))
        for k in range(8): e(valu("v_cmpx_ne_u32", "vcc", s_t1, spl(gp, k >> 2)[k & 3], extra_wr=["exec"]))
        e(nop(1))
        e(raw("s_cmp_eq_u64 exec, -1", "salu", rd=["exec"], wr=["scc"])); e(raw("s_mov_b64 exec, -1", "salu", wr=["exec"]))
        e(raw("s_cbranch_scc0 L_pa_%d" % gp, rd=["scc"]))
        e(salu("s_bitset1_b32", s_done, gp, scc_w=False))
        for k in range(8):
            src = spl(gp, k >> 2)[k & 3]
            e(valu("v_lshlrev_b32", V(112 + 2 * (k & 3)), 16, src)); e(valu("v_and_b32", V(113 + 2 * (k & 3)), "0xffff0000", src))
            e(valu("v_pk_add_f32", vs_[(2 * k, 2)], vs_[(2 * k, 2)], V(112 + 2 * (k & 3), 2)))
        em.label("L_pa_%d" % gp)
    e(salu("s_add_u32", s_cnt, s_cnt, 1)); e(scmp("s_cmp_ge_u32", s_cnt, 50000)); e(raw("s_cbranch_scc1 L_fin_done", rd=["scc"]))
    e(scmp("s_cmp_lg_u32", s_done, 255)); e(raw("s_cbranch_scc1 L_fin_loop", rd=["scc"]))
else:
    if MIDPOST != 2: e(flag_load())
    if MIDPOST not in (3, 6) and not FLG:
        em.wait(vm=spst[-1][0]); stamp()
        if not XY: e(flag_store(0))
        e(flag_store(1))
    if MIDPOST == 2:
        static_loads()
        if int(os.environ.get("FSL", "0")): e(raw("s_sleep %d" % int(os.environ.get("FSL"))))
        e(flag_load())
    s_prev = s_hl
    e(salu("s_mov_b32", s_prev, s_done if MIDPOST else 0, scc_w=False)); e(salu("s_mov_b32", s_cnt, 0, scc_w=False))
    em.label("L_fin_loop")
    em.wait(vm0=True)
    issue_new()
    e(raw(flag_load().text))
    acc_pieces(s_prev)
    e(salu("s_mov_b32", s_prev, s_new, scc_w=False))
    e(salu("s_add_u32", s_cnt, s_cnt, 1)); e(scmp("s_cmp_ge_u32", s_cnt, 50000)); e(raw("s_cbranch_scc1 L_fin_done", rd=["scc"]))
    e(scmp("s_cmp_lg_u32", s_prev, 0)); e(raw("s_cbranch_scc1 L_fin_loop", rd=["scc"]))
    if int(os.environ.get("PSL", "0")): e(raw("s_sleep %d" % int(os.environ.get("PSL"))))
    e(scmp("s_cmp_lg_u32", s_done, 255)); e(raw("s_cbranch_scc1 L_fin_loop", rd=["scc"]))
em.label("L_fin_done")
if DUMP == "fin": dump_regs([vs_[i] for i in range(16)] + [v_fr[i] for i in range(16)])
for k in range(8): e(valu("v_pk_fma_f32", vE[(2 * k, 2)], vs_[(2 * k, 2)], v_fr[(2 * k, 2)], vE[(2 * k, 2)]))
for k in range(8): e(valu("v_cvt_pk_bf16_f32", vxf[k], vE[2 * k], vE[2 * k + 1]))
for u in range(4): e(bstore(vxf[(2 * u, 2)], vxa, S_OUT, 0, off=32 * u, mod=os.environ.get("OUTM", "")))
stamp(); diag_out()
em.label("L_end")
e(raw("s_endpgm"))
main_end = len(em.out)

em.lgq, em.vmq, em.pend = [], [], {}
em.label("L_sigH_side")
e(salu("s_lshl_b32", s_t1, s_qb, 3)); e(salu("s_add_u32", s_t1, s_t1, s_g))
e(raw("s_mov_b64 exec, 2", "salu", wr=["exec"]))
e(raw("buffer_store_byte %s, off, %s, %s sc1" % (v_fa, S_DBG, s_t1)))
e(raw("s_mov_b64 exec, -1", "salu", wr=["exec"]))
e(raw("s_branch L_sigH_ret"))
em.label("L_fallback")
e(raw("s_waitcnt vmcnt(0) lgkmcnt(0)")); em._retire(em.vmq, 0); em._retire(em.lgq, 0)
e(salu("s_mov_b32", s_retry, 1, scc_w=False))
e(salu("s_lshl_b32", s_t0, s_w, 6)); e(valu("v_add_u32", v_tid, s_t0, v_lane))
e(raw("s_barrier"))
e(raw("s_branch L_restart"))
em.label("L_maxpass")
e(raw("s_waitcnt vmcnt(0) lgkmcnt(0)"))
e(salu("s_mov_b32", s_retry, 2, scc_w=False))
e(salu("s_mov_b32", S_H[2], 0, scc_w=False))
e(salu("s_mov_b32", s_kK, 0, scc_w=False))
fm = [V(40 + i) for i in range(4)]
for i in range(4): e(valu("v_mov_b32", fm[i], "0xff800000"))
em.label("L_fb_loop")
e(raw("s_barrier"))
e(salu("s_add_u32", "m0", s_m0b, 4 * 16384)); e(nop(0))
for j in range(4): e(dma(v_kd[j], S_K, s_kK, j * 1024))
em.wait(vm0=True)
e(raw("s_barrier"))
for kb in range(4):
    rr = [e(dsread("ds_read_b128", fr(ds), v_ka[ds], kb * 4096)) for ds in range(4)]
    em.wait(lg0=True)
    for ds in range(4):
        for qb in range(4):
            d = v_S[0][(qb * 4, 4)]
            e(mfma(d, fr(ds), Qf(qb, ds), 0 if ds == 0 else d))
    e(nop(7))
    for qb in range(4):
        e(valu("v_max3_f32", fm[qb], fm[qb], v_S[0][qb * 4], v_S[0][qb * 4 + 1])); e(valu("v_max3_f32", fm[qb], fm[qb], v_S[0][qb * 4 + 2], v_S[0][qb * 4 + 3]))
    e(nop(2))
e(salu("s_add_u32", s_kK, s_kK, 16384)); e(scmp("s_cmp_lt_u32", s_kK, 524288)); e(raw("s_cbranch_scc1 L_fb_loop", rd=["scc"]))
red4("v_max_f32", fm, [V(44 + i) for i in range(4)])
for qb in range(4):
    for k in range(4): e(valu("v_sub_f32", v_negm[qb * 4 + k], 0, fm[qb]))
e(raw("s_barrier"))
for m in (64, 65, 66):
    sa, dm = s1_dma(m); e(sa)
    for d in dm: e(d)
e(raw("s_waitcnt vmcnt(0)"))
e(raw("s_branch L_att_start"))
em.label("L_code_end")
e(raw("s_endpgm"))

ALIGN8 = int(os.environ.get("ALIGN8", "0"))
import re as _re
def isize(i):
    t = i.text
    if i.kind == "label": return 0
    op = t.split()[0]
    if i.kind in ("mfma", "lds", "vmem", "dma") or op.startswith(("buffer_", "global_", "ds_", "s_load", "s_memtime", "s_memrealtime")): return 8
    lit = False
    for tok in _re.split(r"[ ,]+", t)[1:]:
        if _re.fullmatch(r"-?\d+", tok): lit |= not (-16 <= int(tok) <= 64)
        elif tok.startswith("0x"): lit |= not (int(tok, 16) <= 64)
        elif tok.startswith("L_") and not op.startswith(("s_cbranch", "s_branch")): lit = True
    if op.startswith("s_"):
        if op in ("s_waitcnt", "s_nop", "s_barrier", "s_sleep", "s_endpgm") or op.startswith(("s_cbranch", "s_branch")): return 4
        return 8 if lit else 4
    e32 = ("v_exp_f32", "v_rcp_f32", "v_sqrt_f32", "v_mov_b32", "v_mov_b64", "v_add_f32", "v_sub_f32", "v_mul_f32", "v_max_f32", "v_and_b32", "v_xor_b32", "v_lshlrev_b32", "v_lshrrev_b32",
           "v_add_u32", "v_sub_u32", "v_subrev_u32", "v_mul_u32_u24", "v_min_u32", "v_readfirstlane_b32", "v_permlane16_swap_b32", "v_permlane32_swap_b32")
    if op in e32 and "-v" not in t: return 8 if lit else 4
    if op.startswith("v_cmp") and t.split()[1].startswith("vcc"): return 8 if lit else 4
    return 8
WIDE = ("v_exp_f32", "v_rcp_f32", "v_add_f32", "v_mul_f32", "v_mov_b32", "v_sub_f32", "v_and_b32", "v_lshlrev_b32")
if ALIGN8:
    pos = 0; cand = None; nfix = 0; nmiss = 0
    for i in em.out:
        if i.kind == "label":
            if i.text.startswith(".p2align"): pos = 0; cand = None
            continue
        if i.kind == "mfma" and pos % 8:
            if cand is not None: cand.text = cand.text.replace(cand.text.split()[0], cand.text.split()[0] + "_e64", 1); pos += 4; nfix += 1
            else: nmiss += 1
        if i.kind == "mfma": cand = None
        sz = isize(i)
        if sz == 4 and i.text.split()[0] in WIDE: cand = i
        pos += sz
    print("; align8: widened %d, unfixed %d" % (nfix, nmiss), file=sys.stderr)
probs = check_hazards(em.out, "main") + loop_probs
for p in probs: print("; HAZARD", p, file=sys.stderr)
assert not probs

hdr = open(os.path.join(os.path.dirname(os.path.abspath(__file__)), "header.txt")).read()
print(hdr.rstrip())
print("; @launch grid=(256,1,1) block=(256,1,1) lds=163840")
print('.amdgcn_target "amdgcn-amd-amdhsa--gfx950"\n.text\n.globl %s\n.p2align 8\n.type %s,@function\n%s:' % (KN, KN, KN))
print(em.text())
print('.section .rodata,"a"\n.p2align 6\n.amdhsa_kernel %s' % KN)
print("  .amdhsa_next_free_vgpr 512\n  .amdhsa_next_free_sgpr 102\n  .amdhsa_accum_offset 256\n  .amdhsa_group_segment_fixed_size 0\n  .amdhsa_kernarg_size 96\n  .amdhsa_user_sgpr_count 2\n  .amdhsa_user_sgpr_kernarg_segment_ptr 1\n  .amdhsa_system_sgpr_workgroup_id_x 1\n.end_amdhsa_kernel")
```
